```python
import torch

def _softmax(x, axis=-1):
    return torch.softmax(x, dim=axis)
def _gelu(x):
    return torch.nn.functional.gelu(x, approximate="tanh")
def _silu(x):
    return torch.nn.functional.silu(x)
def _sigmoid(x):
    return torch.sigmoid(x)
def _layernorm(x, axis=-1, eps=1e-5):
    m = x.mean(dim=axis, keepdim=True)
    v = x.var(dim=axis, keepdim=True, unbiased=False)
    return (x - m) / torch.sqrt(v + eps)
def _scatter_add(tgt, idx, src, axis=0):
    return tgt.clone().index_add_(axis, idx, src)
def _segment_sum(src, seg, n):
    out = torch.zeros((n,) + src.shape[1:], dtype=src.dtype)
    return out.index_add_(0, seg, src)
def _pad(x, pw):
    flat = tuple(v for pair in reversed(pw) for v in pair)
    return torch.nn.functional.pad(x, flat)

kernel_name = 'standalone__edge_featured_mpnn_egc__graph'

def setup_inputs():

    _w = (lambda a: (lambda t: t.to(torch.bfloat16) if t.is_floating_point() else t)(torch.as_tensor(a)))
    N, deg, D, De = 10000, 32, 128, max(4, 1)
    E = N * deg
    return {
        "x": _w((lambda *s: torch.randn(*s, dtype=torch.bfloat16) * 0.1)(N, D)),
        "e_attr": _w((lambda *s: torch.randn(*s, dtype=torch.bfloat16) * 0.1)(E, De)),
        "src": _w((lambda lo, hi, *s: torch.randint(lo, hi, s))(0, N, E).to(torch.int64)),
        "dst": _w((lambda lo, hi, *s: torch.randint(lo, hi, s))(0, N, E).to(torch.int64)),
        "u_w": _w((lambda *s: torch.randn(*s, dtype=torch.bfloat16) * 0.05)(D, D)),
        "v_w": _w((lambda *s: torch.randn(*s, dtype=torch.bfloat16) * 0.05)(D, D)),
        "g_w": _w((lambda *s: torch.randn(*s, dtype=torch.bfloat16) * 0.1)(2 * D + De, D)),
    }

def reference(x, e_attr, src, dst, u_w, v_w, g_w):
    N, D = x.shape
    g_in = torch.concatenate([x[dst], x[src], e_attr], axis=-1)
    eta = _sigmoid(g_in @ g_w)
    hv = x @ v_w
    msg = eta * hv[src]
    agg = _segment_sum(msg, dst, N)
    return _silu(x @ u_w + agg)
```

```python
import sys, struct

OPT = dict(stamps=0, force_safe=0)
for a in sys.argv[2:]:
    k, v = a.split("=")
    OPT[k] = int(v)

out = []
def E(s=""):
    for line in s.split("\n"):
        line = line.strip()
        if not line:
            continue
        if line.endswith(":") or line.startswith("."):
            out.append(line)
        else:
            out.append("    " + line)

def f32(x):
    return "0x%08x" % struct.unpack("<I", struct.pack("<f", x))[0]

LOG2E = 1.4426950408889634
NB = 80
NBUCK = 125
CHUNK = 1280
NCHUNK = 250
WS_G = 0
G_HALF = 10000 * 256
WS_REC = 0x500000
REC_BYTES = NCHUNK * CHUNK * 12
WS_OFF = 0x900000
WS_STAMP = 0x1000000

nstamp = [0]
def STAMP(i):
    if OPT["stamps"]:
        E(f"s_memrealtime s[{64+2*i}:{65+2*i}]\ns_waitcnt lgkmcnt(0)")
def STAMP_OUT(kern, n, swave, label):
    if OPT["stamps"]:
        E(f"""
        s_load_dwordx2 s[60:61], s[0:1], 72
        s_lshl_b32 s62, s2, 4
        s_add_u32 s62, s62, {swave}
        s_lshl_b32 s62, s62, 6
        s_add_u32 s62, s62, {WS_STAMP + kern * 0x40000}
        s_mov_b64 exec, -1
        v_mov_b32 v1, s62
        s_waitcnt lgkmcnt(0)""")
        for i in range(n):
            E(f"v_mov_b32 v2, s{64+2*i}\nglobal_store_dword v1, v2, s[60:61] offset:{4*i}")
        E("s_waitcnt vmcnt(0)")
def STAMP_INIT(n):
    if OPT["stamps"]:
        for i in range(n):
            E(f"s_mov_b64 s[{64+2*i}:{65+2*i}], 0")

def header():
    E(f"""
; @launch kernel=mpnn_prep_kernel grid=(256,1,1) block=(832,1,1) lds={K1_LDS}
; @launch kernel=standalone__edge_featured_mpnn_egc__graph_kernel grid=(256,1,1) block=(1024,1,1) lds={K2_LDS}
""")
    E(""".amdgcn_target "amdgcn-amd-amdhsa--gfx950"
.text""")

def kernel_start(name):
    E(f""".globl {name}
.p2align 8
.type {name},@function
{name}:""")

def descriptor(name, vgpr, sgpr=96):
    E(f""".amdhsa_kernel {name}
.amdhsa_next_free_vgpr {vgpr}
.amdhsa_next_free_sgpr {sgpr}
.amdhsa_accum_offset {(vgpr+3)//4*4}
.amdhsa_group_segment_fixed_size 0
.amdhsa_kernarg_size 80
.amdhsa_user_sgpr_count 2
.amdhsa_user_sgpr_kernarg_segment_ptr 1
.amdhsa_system_sgpr_workgroup_id_x 1
.end_amdhsa_kernel""")

def gemm_stage(LW, LX, tag):
    E(f"""
    v_lshrrev_b32 v2, 3, v1
    v_bfe_u32 v3, v1, 4, 1                  ; (row>>1)&1
    s_and_b32 s30, s3, 1
    s_lshl_b32 s30, s30, 1
    v_or_b32 v3, s30, v3                    ; sigma
    v_lshlrev_b32 v3, 1, v3
    v_and_b32 v4, 7, v1
    v_xor_b32 v3, v3, v4
    v_lshlrev_b32 v3, 4, v3
    v_lshl_add_u32 v3, v2, 8, v3
    s_lshl_b32 s30, s3, 11                  ; 8*i rows * 256
    s_lshl_b32 s31, s20, 7
    s_add_u32 s30, s30, s31
    v_add_u32 v3, s30, v3
    v_add_u32 v5, 0x4000, v3                ; piece i = w+8
    s_and_b32 s22, s3, 3                    ; tau
    s_lshr_b32 s23, s3, 2                   ; rg
    v_lshrrev_b32 v6, 4, v1
    s_lshl_b32 s30, s22, 2
    v_add_u32 v6, s30, v6                   ; row&15
    v_and_b32 v7, 15, v1
    v_xor_b32 v7, v7, v6
    v_lshlrev_b32 v7, 4, v7
    v_lshl_add_u32 v7, v6, 8, v7
    s_mul_i32 s30, s21, {NB*256}
    s_mul_i32 s31, s23, {3*4096}
    s_add_u32 s30, s30, s31
    v_add_u32 v7, s30, v7
    v_add_u32 v8, 0x1000, v7
    v_add_u32 v9, 0x2000, v7
    s_lshl_b32 s30, s22, 10
    s_add_u32 s31, s31, s30
    s_add_u32 s31, s31, {LX}
    s_lshl_b32 s30, s3, 10
    s_add_u32 s30, s30, {LW}
    s_waitcnt lgkmcnt(0)
    """)
    yield
    E(f"""
    s_mov_b32 m0, s31
    s_add_u32 s31, s31, 0x1000
    global_load_lds_dwordx4 v7, s[28:29]
    s_mov_b32 m0, s31
    s_add_u32 s31, s31, 0x1000
    global_load_lds_dwordx4 v8, s[28:29]
    s_cmp_lg_u32 s23, 0
    s_cbranch_scc1 L_{tag}_x2
    s_mov_b32 m0, s31
    s_nop 0
    global_load_lds_dwordx4 v9, s[28:29]
L_{tag}_x2:
    s_mov_b32 m0, s30
    s_add_u32 s30, s30, 0x2000
    global_load_lds_dwordx4 v3, s[24:25]
    s_mov_b32 m0, s30
    s_add_u32 s30, s30, 0x2000
    global_load_lds_dwordx4 v5, s[24:25]
    s_mov_b32 m0, s30
    s_add_u32 s30, s30, 0x2000
    global_load_lds_dwordx4 v3, s[26:27]
    s_mov_b32 m0, s30
    s_nop 0
    global_load_lds_dwordx4 v5, s[26:27]
    """)
    yield

def gemm_addr(LW, LX):
    E(f"""
    v_lshrrev_b32 v2, 4, v1                 ; g
    v_bfe_u32 v3, v1, 2, 2                  ; r
    v_lshl_add_u32 v4, v2, 3, v3            ; 8g + r
    v_lshrrev_b32 v3, 1, v3                 ; r>>1
    v_and_b32 v5, 1, v2
    v_lshl_or_b32 v3, v5, 1, v3             ; sigma
    v_xor_b32 v3, s22, v3
    v_lshlrev_b32 v3, 5, v3
    v_lshl_add_u32 v10, v4, 7, v3
    v_and_b32 v3, 3, v1
    v_lshl_add_u32 v10, v3, 3, v10
    v_add_u32 v10, {LW}, v10
    v_and_b32 v4, 15, v1                    ; row
    v_xor_b32 v3, v2, v4
    v_lshlrev_b32 v3, 4, v3
    v_lshl_add_u32 v12, v4, 8, v3
    s_mul_i32 s30, s23, {3*4096}
    s_add_u32 s30, s30, {LX}
    v_xor_b32 v13, 64, v12
    v_xor_b32 v14, 0x80, v12
    v_xor_b32 v15, 0xc0, v12
    v_add_u32 v12, s30, v12
    v_add_u32 v13, s30, v13
    v_add_u32 v14, s30, v14
    v_add_u32 v15, s30, v15
    """)

WF = 16
XF = 48
AC = 96
def gemm_reads():
    for ks in range(4):
        E(f"ds_read_b128 v[{XF+4*ks}:{XF+4*ks+3}], v{12+ks}")
        for t in range(2):
            for rd in range(2):
                r = WF + 16*t + 4*ks + 2*rd
                E(f"ds_read_b64_tr_b16 v[{r}:{r+1}], v10 offset:{t*16384 + ks*4096 + rd*512}")
def gemm_xreads(rt):
    for ks in range(4):
        r = XF + 16*rt + 4*ks
        E(f"ds_read_b128 v[{r}:{r+3}], v{12+ks} offset:{rt*4096}")
def gemm_mfma(rt, transposed, ks_list=range(4)):
    for ks in ks_list:
        for t in range(2):
            a = XF + 16*rt + 4*ks; w = WF + 16*t + 4*ks; d = AC + 8*rt + 4*t
            c = "0" if ks == 0 else f"v[{d}:{d+3}]"
            if transposed:
                E(f"v_mfma_f32_16x16x32_bf16 v[{d}:{d+3}], v[{w}:{w+3}], v[{a}:{a+3}], {c}")
            else:
                E(f"v_mfma_f32_16x16x32_bf16 v[{d}:{d+3}], v[{a}:{a+3}], v[{w}:{w+3}], {c}")

K1_W = 0; K1_X = 32768; K1_CNT = 53248; K1_OFFS = 53760; K1_SORT = 54272
K1_LDS = K1_SORT + CHUNK * 12

def k1():
    kernel_start("mpnn_prep_kernel")
    STAMP_INIT(8)
    E(f"""
    s_cmp_ge_u32 s2, 256
    s_cbranch_scc1 L_k1_end
    v_lshrrev_b32 v2, 6, v0
    v_and_b32 v1, 63, v0
    v_readfirstlane_b32 s3, v2
    """)
    STAMP(0)
    E(f"""
    s_load_dwordx8 s[4:11], s[0:1], 0
    s_load_dwordx4 s[12:15], s[0:1], 40     ; v_w, g_w
    s_load_dwordx2 s[16:17], s[0:1], 72     ; ws
    s_cmp_ge_u32 s3, 8
    s_cbranch_scc1 L_k1_sort
    s_lshr_b32 s30, s2, 3
    s_and_b32 s20, s30, 1                   ; half
    s_lshr_b32 s30, s30, 1
    s_lshl_b32 s30, s30, 3
    s_and_b32 s31, s2, 7
    s_add_u32 s21, s30, s31
    s_cmp_ge_u32 s21, {NBUCK}
    s_cbranch_scc1 L_k1_end
    """)
    st = gemm_stage(K1_W, K1_X, "k1")
    next(st)
    E(f"""
    s_add_u32 s24, s14, {128*256}           ; B = g_w rows 128..255
    s_addc_u32 s25, s15, 0
    s_mov_b64 s[26:27], s[12:13]            ; V
    s_mov_b64 s[28:29], s[4:5]
    """)
    next(st)
    STAMP(1)
    E("s_barrier                               ; B0")
    gemm_addr(K1_W, K1_X)
    E(f"""
    v_lshlrev_b32 v11, 10, v2
    v_lshl_add_u32 v11, v4, 2, v11
    s_lshl_b32 s30, s22, 6
    v_add_u32 v11, s30, v11
    s_mul_i32 s32, s20, {G_HALF}
    s_mul_i32 s30, s21, {NB*256}
    s_add_u32 s32, s32, s30
    s_mul_i32 s30, s23, {3*4096}
    s_add_u32 s32, s32, s30
    s_add_u32 s33, s32, 0x1000
    s_add_u32 s34, s32, 0x2000
    s_mov_b32 s36, s16
    s_mov_b32 s37, s17
    s_mov_b32 s38, {2*G_HALF}
    s_mov_b32 s39, 0x20000
    s_mov_b32 s40, {f32(LOG2E)}
    s_mov_b32 s42, {f32(2.0**32)}
    s_mov_b32 s44, 0x07060100
    s_mov_b32 s45, 0x07060302
    v_mov_b32 v8, {f32(2.0**-100)}
    s_waitcnt vmcnt(0)
    """)
    STAMP(2)
    E("s_barrier                               ; B1")
    STAMP(3)
    gemm_reads()
    gemm_xreads(1)
    E("s_waitcnt lgkmcnt(4)")
    gemm_mfma(0, False)
    E("s_cmp_lg_u32 s23, 0\ns_cbranch_scc1 L_k1_g1")
    gemm_xreads(2)
    E("s_waitcnt lgkmcnt(4)")
    E("L_k1_g1b:")
    gemm_mfma(1, False)
    E("s_barrier                               ; B2")
    def pack(rt, soff):
        b = AC + 8*rt; h = b + 4
        E(f"""
        v_pk_mul_f32 v[{b}:{b+1}], v[{b}:{b+1}], s[40:41] op_sel_hi:[1,0]
        v_pk_mul_f32 v[{b+2}:{b+3}], v[{b+2}:{b+3}], s[40:41] op_sel_hi:[1,0]
        v_pk_fma_f32 v[{h}:{h+1}], v[{h}:{h+1}], s[42:43], v[8:9] op_sel_hi:[1,0,0]
        v_pk_fma_f32 v[{h+2}:{h+3}], v[{h+2}:{h+3}], s[42:43], v[8:9] op_sel_hi:[1,0,0]
        v_cvt_pk_bf16_f32 v2, v{b}, v{b+1}
        v_cvt_pk_bf16_f32 v3, v{b+2}, v{b+3}
        v_xor_b32 v4, 0x80008000, v2
        v_xor_b32 v5, 0x80008000, v3
        v_sub_u32_sdwa v{h}, v{h}, sext(v2) dst_sel:DWORD dst_unused:UNUSED_PAD src0_sel:DWORD src1_sel:WORD_0
        v_sub_u32_sdwa v{h+1}, v{h+1}, sext(v2) dst_sel:DWORD dst_unused:UNUSED_PAD src0_sel:DWORD src1_sel:WORD_1
        v_sub_u32_sdwa v{h+2}, v{h+2}, sext(v3) dst_sel:DWORD dst_unused:UNUSED_PAD src0_sel:DWORD src1_sel:WORD_0
        v_sub_u32_sdwa v{h+3}, v{h+3}, sext(v3) dst_sel:DWORD dst_unused:UNUSED_PAD src0_sel:DWORD src1_sel:WORD_1
        v_perm_b32 v{h}, v{h}, v4, s44
        v_perm_b32 v{h+1}, v{h+1}, v4, s45
        v_perm_b32 v{h+2}, v{h+2}, v5, s44
        v_perm_b32 v{h+3}, v{h+3}, v5, s45
        """)
        for r in range(4):
            E(f"buffer_store_dword v{h+r}, v11, s[36:39], s{soff} offen offset:{256*r}")
    pack(0, 32)
    E("s_cmp_lg_u32 s23, 0\ns_cbranch_scc1 L_k1_g2\ns_waitcnt lgkmcnt(0)")
    gemm_mfma(2, False)
    pack(1, 33)
    pack(2, 34)
    STAMP(4)
    if OPT["stamps"]:
        E("s_waitcnt vmcnt(0)"); STAMP(5); STAMP_OUT(0, 8, "s3", "a")
    E("s_endpgm")
    E("L_k1_g1:\ns_waitcnt lgkmcnt(0)\ns_branch L_k1_g1b")
    E("L_k1_g2:")
    pack(1, 33)
    STAMP(4)
    if OPT["stamps"]:
        E("s_waitcnt vmcnt(0)"); STAMP(5); STAMP_OUT(0, 8, "s3", "b")
    E("s_endpgm")
    E(f"""
L_k1_sort:
    s_and_b32 s30, s2, 7
    s_lshl_b32 s30, s30, 5
    s_lshr_b32 s31, s2, 3
    s_add_u32 s30, s30, s31
    s_lshl_b32 s30, s30, 2
    s_add_u32 s30, s30, {WS_OFF}
    v_lshlrev_b32 v30, 11, v1
    v_add_u32 v30, s30, v30
    v_mov_b32 v20, 0
    v_mov_b32 v21, 0
    s_cmp_ge_u32 s2, {NCHUNK}
    s_cbranch_scc1 L_k1_nochunk
    v_subrev_u32 v2, 512, v0                ; t = 0..319
    s_mul_i32 s30, s2, {CHUNK*4}
    v_lshl_add_u32 v3, v2, 4, s30
    v_lshlrev_b32 v22, 1, v3
    v_lshlrev_b32 v31, 3, v1
    s_waitcnt lgkmcnt(0)
    global_load_dwordx4 v[4:7], v3, s[10:11]
    global_load_dwordx4 v[8:11], v3, s[8:9]
    global_load_dwordx4 v[12:15], v22, s[6:7]
    global_load_dwordx4 v[16:19], v22, s[6:7] offset:16
    ds_write_b64 v31, v[20:21] offset:{K1_CNT}
    v_mov_b32 v20, 3
    s_mov_b32 s31, 52429
    s_movk_i32 s32, -20
    v_lshlrev_b32 v33, 4, v2
    s_mul_i32 s30, s2, {CHUNK*12}
    s_add_u32 s30, s30, {WS_REC}
    v_add_u32 v32, s30, v33
    v_add_u32 v34, 5120, v32
    v_add_u32 v35, 10240, v32
    s_waitcnt lgkmcnt(0)
    """)
    STAMP(1)
    E(f"""
    s_barrier                               ; B0
    s_waitcnt vmcnt(3)
    """)
    for i in range(4):
        E(f"""
        v_mul_u32_u24 v{22+i}, s31, v{4+i}
        v_lshrrev_b32 v{22+i}, 22, v{22+i}
        v_lshlrev_b32 v{22+i}, 2, v{22+i}        ; bucket*4
        ds_add_rtn_u32 v{26+i}, v{22+i}, v20 offset:{K1_CNT}
        """)
    for i in range(4):
        E(f"""
        v_mad_i32_i24 v{4+i}, v{22+i}, s32, v{4+i}
        v_lshlrev_b32 v{4+i}, 24, v{4+i}
        """)
    E("s_waitcnt lgkmcnt(0)")
    STAMP(2)
    E(f"""
    s_barrier                               ; B1
    ds_read_b64 v[36:37], v31 offset:{K1_CNT}
    s_waitcnt vmcnt(2)
    """)
    for i in range(4):
        E(f"v_lshl_or_b32 v{4+i}, v{8+i}, 8, v{4+i}")
    E(f"""
    s_waitcnt lgkmcnt(0)
    v_add_u32 v38, v36, v37
    v_mov_b32 v39, v38
    s_nop 1
    v_add_u32_dpp v39, v39, v39 row_shr:1 row_mask:0xf bank_mask:0xf bound_ctrl:0
    s_nop 1
    v_add_u32_dpp v39, v39, v39 row_shr:2 row_mask:0xf bank_mask:0xf bound_ctrl:0
    s_nop 1
    v_add_u32_dpp v39, v39, v39 row_shr:4 row_mask:0xf bank_mask:0xf bound_ctrl:0
    s_nop 1
    v_add_u32_dpp v39, v39, v39 row_shr:8 row_mask:0xf bank_mask:0xf bound_ctrl:0
    s_nop 1
    v_add_u32_dpp v39, v39, v39 row_bcast:15 row_mask:0xa bank_mask:0xf
    s_nop 1
    v_add_u32_dpp v39, v39, v39 row_bcast:31 row_mask:0xc bank_mask:0xf
    v_sub_u32 v40, v39, v38
    v_add_u32 v40, {K1_SORT//4}, v40
    v_add_u32 v41, v40, v36
    ds_write_b64 v31, v[40:41] offset:{K1_OFFS}
    """)
    for i in range(4):
        E(f"ds_read_b32 v{22+i}, v{22+i} offset:{K1_OFFS}")
    E(f"""
    s_mul_i32 s30, s2, {CHUNK*3}
    s_sub_u32 s30, s30, {K1_SORT//4}
    v_add_u32 v40, s30, v40
    v_add_u32 v41, s30, v41
    v_lshl_or_b32 v20, v40, 12, v36
    v_lshl_or_b32 v21, v41, 12, v37
    s_waitcnt vmcnt(0)
    s_cmp_lg_u32 s3, 12
    s_cbranch_scc1 L_k1_nooff
    global_store_dword v30, v20, s[16:17]
    global_store_dword v30, v21, s[16:17] offset:1024
L_k1_nooff:
    """)
    for i in range(4):
        E(f"""
        s_waitcnt lgkmcnt({3 + i})
        v_add_lshl_u32 v{22+i}, v{22+i}, v{26+i}, 2
        ds_write_b32 v{22+i}, v{4+i} offset:8
        ds_write2_b32 v{22+i}, v{12+2*i}, v{13+2*i} offset0:0 offset1:1
        """)
    E("s_waitcnt lgkmcnt(0)")
    STAMP(3)
    E(f"""
    s_barrier                               ; B2
    ds_read_b128 v[4:7], v33 offset:{K1_SORT}
    ds_read_b128 v[8:11], v33 offset:{K1_SORT+5120}
    ds_read_b128 v[12:15], v33 offset:{K1_SORT+10240}
    s_waitcnt lgkmcnt(2)
    global_store_dwordx4 v32, v[4:7], s[16:17]
    s_waitcnt lgkmcnt(1)
    global_store_dwordx4 v34, v[8:11], s[16:17]
    s_waitcnt lgkmcnt(0)
    global_store_dwordx4 v35, v[12:15], s[16:17]
    """)
    STAMP(4)
    if OPT["stamps"]:
        E("s_waitcnt vmcnt(0)"); STAMP(5); STAMP_OUT(0, 8, "s3", "c")
    E(f"""
    s_endpgm
L_k1_nochunk:
    s_cmp_lg_u32 s3, 12
    s_cbranch_scc1 L_k1_end
    s_waitcnt lgkmcnt(0)
    global_store_dword v30, v20, s[16:17]
    global_store_dword v30, v21, s[16:17] offset:1024
L_k1_end:
    s_endpgm
    """)

L_CNT = 0; L_LCNT = 512; L_FLAG = 516
L_LIST = 1024
L_SRC = 6656
L_EA = L_SRC + 81*256
L_NODE = L_EA + 81*512
NSTR = 392
L_W = 100864; L_X = L_W + 32768; L_C = L_X + 20480
K2_LDS = L_C + 1024
assert L_NODE + 81*NSTR <= L_W and K2_LDS <= 163840
NULL_SRC = 0x7fffff00

A1, A2, IDX, LN4, LN16, ASEL, CW, EAC = 4, 8, 12, 13, 14, 16, 18, 20
LP, W1, W2, AG, EAD, EA, XA, OFS, T, N, P, D, G0, G1 = 22, 24, 26, 27, 28, 30, 32, 36, 44, 52, 56, 64, 80, 96

def main_consts():
    E(f"""
    v_and_b32 v2, 15, v1                    ; n'
    v_lshlrev_b32 v{LN4}, 2, v2
    v_lshlrev_b32 v{LN16}, 4, v2
    v_lshlrev_b32 v{LN16+1}, 4, v2
    v_mov_b32 v{IDX}, 0x8888
    v_bfe_u32 v60, v1, 3, 2                 ; s = (l&31)>>3
    v_bfe_u32 v61, v1, 2, 1                 ; h = (l>>2)&1
    v_lshrrev_b32 v62, 5, v1                ; ha
    v_and_b32 v63, 3, v1                    ; q
    v_and_b32 v2, 1, v60
    v_lshlrev_b32 v2, 4, v2
    v_lshlrev_b32 v2, v2, s46
    v_lshrrev_b32 v60, 1, v60               ; s>>1
    v_lshl_add_u32 v3, v61, 1, v60
    v_sub_u32 v63, v63, v62                 ; q - ha : 0 -> A1, 2 -> A2
    v_lshl_add_u32 v3, v63, 1, v3
    v_and_b32 v63, 1, v63
    v_lshl_or_b32 v3, v63, 4, v3
    v_xor_b32 v61, v61, v62
    v_lshl_or_b32 v60, v61, 4, v60
    """)
    for i in range(8):
        E(f"v_cmp_eq_u32 s[{48+2*(i%4)}:{49+2*(i%4)}], {i}, v3")
        if i % 4 == 3:
            for j in range(i-3, i+1):
                E(f"v_cndmask_b32 v{A1+j}, 0, v2, s[{48+2*(j%4)}:{49+2*(j%4)}]")
    E(f"""
    v_cmp_eq_u32 s[48:49], 0, v60
    v_cmp_eq_u32 s[50:51], 1, v60
    v_bfe_u32 v61, v1, 4, 1
    v_and_b32 v63, 3, v1
    v_cndmask_b32 v{ASEL}, 0, v2, s[48:49]
    v_cndmask_b32 v{ASEL+1}, 0, v2, s[50:51]
    v_lshl_add_u32 v61, v61, 2, v63
    v_lshlrev_b32 v61, 3, v61
    v_add_u32 v{EAC}, {L_EA - 2*L_SRC}, v61
    s_lshl_b32 s30, s3, 5
    s_add_u32 s30, s30, {L_LIST}
    v_lshrrev_b32 v2, 4, v1
    v_lshl_add_u32 v{LP}, v2, 3, s30
    v_bfe_u32 v2, v1, 2, 2
    v_lshl_add_u32 v{LP+1}, v2, 3, s30
    """)

def cw_reads():
    E(f"""
    v_and_b32 v2, 15, v1
    v_lshrrev_b32 v3, 4, v1
    v_lshl_add_u32 v2, v2, 2, v3
    v_lshlrev_b32 v2, 1, v2
    v_add_u32 v2, {L_C}, v2
    ds_read_u16 v60, v2
    ds_read_u16 v61, v2 offset:128
    ds_read_u16 v62, v2 offset:256
    ds_read_u16 v63, v2 offset:384
    """)
def cw_finish():
    E(f"""
    v_lshlrev_b32 v60, 16, v60
    v_lshlrev_b32 v61, 16, v61
    v_lshlrev_b32 v62, 16, v62
    v_lshlrev_b32 v63, 16, v63
    v_pk_mul_f32 v[60:61], v[60:61], s[40:41] op_sel_hi:[1,0]
    v_pk_mul_f32 v[62:63], v[62:63], s[40:41] op_sel_hi:[1,0]
    v_cvt_pk_bf16_f32 v{CW}, v60, v61
    v_cvt_pk_bf16_f32 v{CW+1}, v62, v63
    """)

def prefill():
    E(f"""
    v_mov_b32 v100, 0
    v_mov_b32 v101, 0
    v_mov_b32 v102, 0
    v_mov_b32 v103, 0
    v_lshlrev_b32 v112, 4, v0
    v_add_u32 v113, {L_EA}, v112
    ds_write_b128 v113, v[100:103]
    ds_write_b128 v113, v[100:103] offset:16384
    ds_write_b128 v113, v[100:103] offset:{81*512 - 16384}
    v_mov_b32 v104, {NULL_SRC}
    v_mov_b32 v105, {NULL_SRC}
    v_mov_b32 v106, {NULL_SRC}
    v_mov_b32 v107, {NULL_SRC}
    ds_write_b128 v112, v[104:107] offset:{L_SRC}
    v_mov_b32 v108, {L_SRC + 80*256}
    v_mov_b32 v109, {L_NODE + 80*NSTR}
    v_mov_b32 v110, {L_SRC + 80*256}
    v_mov_b32 v111, {L_NODE + 80*NSTR}
    s_cmp_ge_u32 s3, 6
    s_cbranch_scc1 L_k2_pf1
    v_cmp_gt_u32 vcc, {(81*256 - 16384)//16}, v0
    s_and_saveexec_b64 s[48:49], vcc
    ds_write_b128 v112, v[104:107] offset:{L_SRC + 16384}
    s_mov_b64 exec, s[48:49]
    v_cmp_gt_u32 vcc, {(L_SRC - L_LIST)//16}, v0
    s_and_saveexec_b64 s[48:49], vcc
    ds_write_b128 v112, v[108:111] offset:{L_LIST}
    s_mov_b64 exec, s[48:49]
    s_branch L_k2_pf2
L_k2_pf1:
    s_cmp_ge_u32 s3, 8
    s_cbranch_scc1 L_k2_pf2
    v_subrev_u32 v114, 384, v0              ; 0..127
    v_lshlrev_b32 v115, 2, v114
    v_lshlrev_b32 v114, 8, v114
    v_add_u32 v114, {L_SRC}, v114
    ds_write_b32 v115, v114 offset:{L_CNT}
    v_add_u32 v115, {L_NODE + 80*NSTR - 128}, v115
    ds_write_b32 v115, v100
    v_mov_b32 v116, {L_LIST}
    v_mov_b32 v117, 0
    ds_write_b64 v100, v[116:117] offset:{L_LCNT}
L_k2_pf2:
    """)

def chain(G, q0, first):
    def exps(q):
        t = T + 4*(q & 1)
        return [f"v_exp_f32 v{t+s}, v{D+4*s+q}" for s in range(4)]
    def steps(q):
        t = T + 4*(q & 1); h = G + 4*q
        if first and q == 0:
            return [f"v_pk_add_f32 v[{P+2*p}:{P+2*p+1}], v[{t+2*p}:{t+2*p+1}], 1.0 op_sel_hi:[1,0]" for p in range(2)]
        r = []
        for p in range(2):
            n = f"v[{G+2*p}:{G+2*p+1}]" if (first and q == 1) else f"v[{N+2*p}:{N+2*p+1}]"
            r.append(f"v_pk_fma_f32 v[{N+2*p}:{N+2*p+1}], {n}, v[{t+2*p}:{t+2*p+1}], {n}")
        for p in range(2):
            r.append(f"v_pk_fma_f32 v[{N+2*p}:{N+2*p+1}], v[{h+2*p}:{h+2*p+1}], v[{P+2*p}:{P+2*p+1}], v[{N+2*p}:{N+2*p+1}]")
        for p in range(2):
            r.append(f"v_pk_fma_f32 v[{P+2*p}:{P+2*p+1}], v[{P+2*p}:{P+2*p+1}], v[{t+2*p}:{t+2*p+1}], v[{P+2*p}:{P+2*p+1}]")
        return r
    for x in exps(0): E(x)
    for q in range(4):
        nx = exps(q+1) if q < 3 else ["s_nop 0"]
        st = steps(q)
        seq = []
        while nx or st:
            if nx: seq.append(nx.pop(0))
            if st: seq.append(st.pop(0))
            if st: seq.append(st.pop(0))
        for x in seq: E(x)

def gathers(G, o):
    E(f"""
    v_lshl_add_u64 v[{o}:{o+1}], v[{o}:{o+1}], 0, v[{LN16}:{LN16+1}]
    v_lshl_add_u64 v[{o+2}:{o+3}], v[{o+2}:{o+3}], 0, v[{LN16}:{LN16+1}]
    """)
    for q in range(4):
        E(f"buffer_load_dwordx4 v[{G+4*q}:{G+4*q+3}], v{o+q}, s[36:39], 0 offen")

def k2():
    kernel_start("standalone__edge_featured_mpnn_egc__graph_kernel")
    STAMP_INIT(12)
    E(f"""
    s_and_b32 s20, s2, 1                    ; half
    s_bfe_u32 s30, s2, 0x20001              ; (id>>1)&3
    s_lshl_b32 s30, s30, 5
    s_lshr_b32 s31, s2, 3
    s_add_u32 s21, s30, s31                 ; bucket
    s_cmp_ge_u32 s2, 256
    s_cbranch_scc1 L_k2_end
    s_cmp_ge_u32 s21, {NBUCK}
    s_cbranch_scc1 L_k2_end
    s_mov_b32 s47, {OPT["force_safe"]}
    v_lshrrev_b32 v2, 6, v0
    v_and_b32 v1, 63, v0
    v_readfirstlane_b32 s3, v2
    """)
    STAMP(0)
    E(f"""
L_k2_restart:
    s_load_dwordx2 s[28:29], s[0:1], 0      ; x
    s_load_dwordx2 s[26:27], s[0:1], 32     ; u_w
    s_load_dwordx4 s[12:15], s[0:1], 48     ; g_w, out
    s_load_dwordx2 s[16:17], s[0:1], 72     ; ws
    s_mov_b32 s40, {f32(-LOG2E)}
    s_mov_b32 s42, {f32(2.0**32)}
    s_mov_b32 s46, 0x3f80
    s_mov_b32 s44, 512
    s_mov_b32 s45, 512
    s_cmp_ge_u32 s3, 8
    s_cbranch_scc1 L_k2_rec
    """)
    st = gemm_stage(L_W, L_X, "k2")
    next(st)
    E(f"""
    s_mov_b64 s[24:25], s[12:13]            ; A = g_w rows 0..127
    """)
    next(st)
    E(f"""
    s_cmp_lg_u32 s3, 7
    s_cbranch_scc1 L_k2_noc
    v_bfe_u32 v2, v1, 3, 2
    v_and_b32 v3, 7, v1
    v_lshlrev_b32 v3, 4, v3
    v_lshl_add_u32 v2, v2, 8, v3
    s_lshl_b32 s30, s20, 7
    s_add_u32 s30, s30, {256*256}
    v_add_u32 v2, s30, v2
    s_mov_b32 m0, {L_C}
    s_nop 0
    global_load_lds_dwordx4 v2, s[24:25]
L_k2_noc:
    s_branch L_k2_pf
L_k2_rec:
    s_lshl_b32 s30, s21, 10
    s_sub_u32 s31, s3, 8
    s_lshl_b32 s31, s31, 7
    s_add_u32 s30, s30, s31
    s_add_u32 s30, s30, {WS_OFF}
    v_lshrrev_b32 v2, 4, v1
    v_lshl_add_u32 v2, v2, 5, s30
    s_waitcnt lgkmcnt(0)
    global_load_dwordx4 v[64:67], v2, s[16:17]
    global_load_dwordx4 v[68:71], v2, s[16:17] offset:16
L_k2_pf:
    """)
    STAMP(1)
    prefill()
    E(f"""
    s_mul_i32 s30, s20, {G_HALF}
    s_add_u32 s36, s16, s30
    s_addc_u32 s37, s17, 0
    s_mov_b32 s38, {G_HALF}
    s_mov_b32 s39, 0x20000
    s_add_u32 s18, s16, {WS_REC}
    s_addc_u32 s19, s17, 0
    s_cmp_ge_u32 s3, 8
    s_cbranch_scc1 L_k2_rec2
    """)
    gemm_addr(L_W, L_X)
    E(f"""
    s_mul_i32 s30, s23, {48*NSTR}
    s_lshl_b32 s31, s22, 4
    s_add_u32 s30, s30, s31
    s_add_u32 s30, s30, {L_NODE}
    v_mul_u32_u24 v11, {NSTR}, v4
    v_lshl_add_u32 v11, v2, 2, v11
    v_add_u32 v11, s30, v11
    s_waitcnt vmcnt(0) lgkmcnt(0)
    """)
    STAMP(2)
    E("s_barrier                               ; B1")
    STAMP(3)
    gemm_reads()
    gemm_xreads(1)
    E("s_waitcnt lgkmcnt(4)")
    gemm_mfma(0, True)
    E("s_cmp_lg_u32 s23, 0\ns_cbranch_scc1 L_k2_g1")
    gemm_xreads(2)
    E("s_waitcnt lgkmcnt(4)")
    E("L_k2_g1b:")
    gemm_mfma(1, True)
    def fin(rt):
        a = AC + 8*rt; u = a + 4
        E(f"""
        v_pk_mul_f32 v[{a}:{a+1}], v[{a}:{a+1}], s[40:41] op_sel_hi:[1,0]
        v_pk_mul_f32 v[{a+2}:{a+3}], v[{a+2}:{a+3}], s[40:41] op_sel_hi:[1,0]
        v_pk_mul_f32 v[{u}:{u+1}], v[{u}:{u+1}], s[42:43] op_sel_hi:[1,0]
        v_pk_mul_f32 v[{u+2}:{u+3}], v[{u+2}:{u+3}], s[42:43] op_sel_hi:[1,0]
        v_cvt_pk_bf16_f32 v{a}, v{a}, v{a+1}
        v_cvt_pk_bf16_f32 v{a+2}, v{a+2}, v{a+3}
        ds_write2_b32 v11, v{u}, v{u+1} offset0:0 offset1:16
        ds_write2_b32 v11, v{u+2}, v{u+3} offset0:32 offset1:48
        ds_write2_b32 v11, v{a}, v{a+2} offset0:64 offset1:80
        v_add_u32 v11, {16*NSTR}, v11
        """)
    fin(0)
    E("s_cmp_lg_u32 s23, 0\ns_cbranch_scc1 L_k2_g2\ns_waitcnt lgkmcnt(0)")
    gemm_mfma(2, True)
    fin(1)
    fin(2)
    E("s_branch L_k2_gdone")
    E("L_k2_g1:\ns_waitcnt lgkmcnt(0)\ns_branch L_k2_g1b")
    E("L_k2_g2:")
    fin(1)
    E("L_k2_gdone:")
    cw_reads()
    main_c = True
    E("s_waitcnt lgkmcnt(0)")
    cw_finish()
    main_consts()
    E("s_branch L_k2_b2")
    RA = 72
    E(f"""
L_k2_rec2:
    """)
    main_consts()
    E(f"""
    v_and_b32 v2, 15, v1
    v_mul_u32_u24 v2, 3, v2                 ; 3j
    v_add_u32 v3, 48, v2
    v_mov_b32 v60, 4
    v_mov_b32 v61, 8
    v_mov_b32 v62, 0
    s_movk_i32 s33, 98
    v_mov_b32 v63, {L_NODE}
    s_cmp_lg_u32 s47, 0
    s_cbranch_scc1 L_k2_recskip
    s_waitcnt vmcnt(0)
    """)
    STAMP(2)
    for p in range(8):
        E(f"""
        v_and_b32 v{36+p}, 0xfff, v{64+p}
        v_lshrrev_b32 v{64+p}, 12, v{64+p}
        v_add_lshl_u32 v{64+p}, v{64+p}, v2, 2
        """)
    E(f"""
    v_max3_u32 v44, v36, v37, v38
    v_max3_u32 v45, v39, v40, v41
    v_max3_u32 v44, v44, v42, v43
    v_max_u32 v44, v44, v45
    v_cmp_lt_u32 vcc, 96, v44
    s_cbranch_vccnz L_k2_toobig
    """)
    def recload(p, base, jreg, off):
        r = base + 4*p
        E(f"global_load_dwordx3 v[{r}:{r+2}], v{64+p}, s[18:19]" + (f" offset:{off}" if off else ""))
    for p in range(8):
        E(f"v_cmp_gt_u32 vcc, v{36+p}, v2\ns_mov_b64 exec, vcc")
        E(f"s_cbranch_execz L_k2_nl{p}")
        recload(p, RA, 2, 0)
        E(f"L_k2_nl{p}:\ns_mov_b64 exec, -1")
    E("s_waitcnt lgkmcnt(0)")
    E("s_barrier                               ; B1")
    STAMP(3)
    cw_reads_late = True
    def place(plist, base, jreg, tag):
        for p in plist:
            r = base + 4*p
            E(f"""
            v_cmp_gt_u32 s[{48+2*(p%4)}:{49+2*(p%4)}], v{36+p}, v{jreg}
            v_lshrrev_b32 v{44+(p%4)}, 22, v{r+2}
            v_and_b32 v{r+2}, 0x3fffff, v{r+2}
            s_mov_b64 exec, s[{48+2*(p%4)}:{49+2*(p%4)}]
            ds_add_rtn_u32 v{48+2*(p%4)}, v{44+(p%4)}, v60 offset:{L_CNT}
            s_mov_b64 exec, -1
            """)
        E("s_waitcnt lgkmcnt(0)")
        for p in plist:
            r = base + 4*p; a = 48 + 2*(p % 4)
            E(f"""
            s_mov_b64 exec, s[{48+2*(p%4)}:{49+2*(p%4)}]
            ds_write_b32 v{a}, v{r+2}
            v_lshlrev_b32 v{r+3}, 1, v{a}
            v_and_b32 v{56+(p%4)}, 31, v{a}
            ds_write_b64 v{r+3}, v[{r}:{r+1}] offset:{L_EA - 2*L_SRC}
            v_cmp_eq_u32 s[{48+2*(p%4)}:{49+2*(p%4)}], 0, v{56+(p%4)}
            v_mad_u32_u24 v{a+1}, v{44+(p%4)}, s33, v63
            s_mov_b64 exec, s[{48+2*(p%4)}:{49+2*(p%4)}]
            ds_add_rtn_u32 v{56+(p%4)}, v62, v61 offset:{L_LCNT}
            """)
        E("s_waitcnt lgkmcnt(0)")
        for p in plist:
            a = 48 + 2*(p % 4)
            E(f"""
            s_mov_b64 exec, s[{48+2*(p%4)}:{49+2*(p%4)}]
            ds_write_b64 v{56+(p%4)}, v[{a}:{a+1}]
            """)
        E("s_mov_b64 exec, -1")
    E("s_waitcnt vmcnt(0)")
    STAMP(4)
    place(range(0, 4), RA, 2, "a")
    place(range(4, 8), RA, 2, "b")
    E(f"""
    v_max3_u32 v44, v36, v37, v38
    v_max3_u32 v45, v39, v40, v41
    v_max3_u32 v44, v44, v42, v43
    v_max_u32 v44, v44, v45
    v_cmp_lt_u32 vcc, 48, v44
    s_cbranch_vccz L_k2_recdone
    """)
    for p in range(8):
        E(f"v_cmp_gt_u32 vcc, v{36+p}, v3\ns_mov_b64 exec, vcc")
        E(f"s_cbranch_execz L_k2_nm{p}")
        recload(p, RA, 3, 192)
        E(f"L_k2_nm{p}:\ns_mov_b64 exec, -1")
    E("s_waitcnt vmcnt(0)")
    place(range(0, 4), RA, 3, "c")
    place(range(4, 8), RA, 3, "d")
    E(f"""
    s_branch L_k2_recdone
L_k2_toobig:
    s_waitcnt lgkmcnt(0)
    s_barrier                               ; B1
    ds_write_b32 v62, v60 offset:{L_FLAG}
    s_branch L_k2_recdone
L_k2_recskip:
    s_waitcnt vmcnt(0) lgkmcnt(0)
    s_barrier                               ; B1
L_k2_recdone:
    """)
    cw_reads()
    E("s_waitcnt lgkmcnt(0)")
    cw_finish()
    E(f"""
L_k2_b2:
    s_waitcnt lgkmcnt(0)
    """)
    STAMP(5)
    E(f"""
    s_barrier                               ; B2
    s_cmp_lg_u32 s47, 0
    s_cbranch_scc1 L_k2_safe
    v_lshlrev_b32 v2, 3, v1
    v_mov_b32 v3, 0
    ds_read_b64 v[{W1}:{W1+1}], v{LP}
    ds_read_b32 v{W2}, v{LP+1}
    ds_read_b64 v[60:61], v3 offset:{L_LCNT}
    ds_read_b64 v[62:63], v2 offset:{L_CNT}
    v_lshlrev_b32 v2, 9, v1
    v_add_u32 v2, {L_SRC + 256}, v2
    v_add_u32 v3, 256, v2
    s_waitcnt lgkmcnt(2)
    ds_read_b128 v[{OFS}:{OFS+3}], v{W1}
    ds_read_b128 v[{OFS+4}:{OFS+7}], v{W1} offset:16
    v_add_u32 v{AG}, v{W1+1}, v{LN4}
    v_lshl_add_u32 v{EAD}, v{W2}, 1, v{EAC}
    ds_read2_b32 v[{XA}:{XA+1}], v{AG} offset0:64 offset1:80
    ds_read_b64 v[{EA}:{EA+1}], v{EAD}
    s_waitcnt lgkmcnt(4)
    v_cmp_gt_u32 s[48:49], v62, v2
    v_cmp_gt_u32 s[50:51], v63, v3
    v_readfirstlane_b32 s30, v60
    v_readfirstlane_b32 s31, v61
    s_or_b64 s[48:49], s[48:49], s[50:51]
    s_cbranch_scc1 L_k2_gosafe
    s_cmp_lg_u32 s31, 0
    s_cbranch_scc1 L_k2_gosafe
    s_sub_u32 s30, s30, {L_LIST - 31}
    s_lshr_b32 s30, s30, 5
    s_min_u32 s30, s30, 160
    s_cmp_ge_u32 s3, s30
    s_cbranch_scc1 L_k2_mdone
    s_add_u32 s31, s3, 16
    s_waitcnt lgkmcnt(2)
    """)
    gathers(G0, OFS)
    gathers(G1, OFS+4)
    STAMP(6)
    E(f"""
L_k2_loop:
    v_lshl_add_u64 v[{LP}:{LP+1}], v[{LP}:{LP+1}], 0, s[44:45]
    s_waitcnt lgkmcnt(0)
    ds_read_b64 v[{W1}:{W1+1}], v{LP}
    ds_read_b32 v{W2}, v{LP+1}
    v_mfma_f32_32x32x8_bf16 v[{D}:{D+15}], v[{ASEL}:{ASEL+1}], v[{XA}:{XA+1}], 0
    v_mfma_f32_16x16x4_4b_bf16 v[{D}:{D+15}], v[{EA}:{EA+1}], v[{CW}:{CW+1}], v[{D}:{D+15}] cbsz:2 abid:0
    s_waitcnt vmcnt(4)
    v_smfmac_f32_32x32x32_bf16 v[{D}:{D+15}], v[{A1}:{A1+3}], v[{G0}:{G0+7}], v{IDX}
    v_smfmac_f32_32x32x32_bf16 v[{D}:{D+15}], v[{A2}:{A2+3}], v[{G0+8}:{G0+15}], v{IDX}
    s_waitcnt lgkmcnt(0)
    ds_read_b128 v[{OFS}:{OFS+3}], v{W1}
    ds_read_b128 v[{OFS+4}:{OFS+7}], v{W1} offset:16
    v_lshl_add_u32 v{EAD}, v{W2}, 1, v{EAC}
    s_nop 7
    """)
    chain(G0, 0, True)
    E(f"""
    s_cmp_ge_u32 s31, s30
    s_cbranch_scc1 L_k2_last0
    s_waitcnt lgkmcnt(0)
    """)
    gathers(G0, OFS)
    E(f"""
L_k2_last0r:
    v_mfma_f32_32x32x8_bf16 v[{D}:{D+15}], v[{ASEL}:{ASEL+1}], v[{XA}:{XA+1}], 0
    v_mfma_f32_16x16x4_4b_bf16 v[{D}:{D+15}], v[{EA}:{EA+1}], v[{CW}:{CW+1}], v[{D}:{D+15}] cbsz:2 abid:1
    s_waitcnt vmcnt(4)
    v_smfmac_f32_32x32x32_bf16 v[{D}:{D+15}], v[{A1}:{A1+3}], v[{G1}:{G1+7}], v{IDX}
    v_smfmac_f32_32x32x32_bf16 v[{D}:{D+15}], v[{A2}:{A2+3}], v[{G1+8}:{G1+15}], v{IDX}
    ds_read_b64 v[{EA}:{EA+1}], v{EAD}
    s_nop 10
    """)
    chain(G1, 4, False)
    E(f"""
    s_cmp_ge_u32 s31, s30
    s_cbranch_scc1 L_k2_last1
    """)
    gathers(G1, OFS+4)
    E(f"""
L_k2_last1:
    v_rcp_f32 v{P}, v{P}
    v_rcp_f32 v{P+1}, v{P+1}
    v_rcp_f32 v{P+2}, v{P+2}
    v_rcp_f32 v{P+3}, v{P+3}
    v_pk_mul_f32 v[{N}:{N+1}], v[{N}:{N+1}], v[{P}:{P+1}]
    v_pk_mul_f32 v[{N+2}:{N+3}], v[{N+2}:{N+3}], v[{P+2}:{P+3}]
    ds_add_f32 v{AG}, v{N}
    ds_add_f32 v{AG}, v{N+1} offset:64
    ds_add_f32 v{AG}, v{N+2} offset:128
    ds_add_f32 v{AG}, v{N+3} offset:192
    v_add_u32 v{AG}, v{W1+1}, v{LN4}
    s_cmp_ge_u32 s31, s30
    s_cbranch_scc1 L_k2_mdone
    ds_read2_b32 v[{XA}:{XA+1}], v{AG} offset0:64 offset1:80
    s_add_u32 s31, s31, 16
    s_branch L_k2_loop
L_k2_last0:
    s_waitcnt vmcnt(0)
    s_branch L_k2_last0r
L_k2_mdone:
    s_waitcnt lgkmcnt(0)
    """)
    STAMP(7)
    E(f"""
    s_barrier                               ; B3
    s_cmp_ge_u32 s3, 10
    s_cbranch_scc1 L_k2_edone
    v_lshrrev_b32 v2, 3, v0                 ; node
    v_and_b32 v3, 7, v0
    v_mul_u32_u24 v4, {NSTR}, v2
    v_lshl_add_u32 v4, v3, 3, v4
    v_add_u32 v4, {L_NODE}, v4
    ds_read2_b64 v[8:11], v4 offset0:0 offset1:8
    ds_read2_b64 v[12:15], v4 offset0:16 offset1:24
    s_mul_i32 s30, s21, {NB*256}
    s_lshl_b32 s31, s20, 7
    s_add_u32 s30, s30, s31
    v_lshlrev_b32 v3, 4, v3
    v_lshl_add_u32 v5, v2, 8, v3
    v_add_u32 v5, s30, v5
    s_mov_b32 s32, {f32(2.0**-32)}
    s_mov_b32 s34, {f32(-LOG2E * 2.0**-32)}
    s_waitcnt lgkmcnt(0)
    """)
    for p in range(4):
        E(f"v_pk_mul_f32 v[{16+2*p}:{17+2*p}], v[{8+2*p}:{9+2*p}], s[34:35] op_sel_hi:[1,0]")
    for i in range(8):
        E(f"v_exp_f32 v{16+i}, v{16+i}")
    E(f"""
    v_pk_add_f32 v[6:7], v[8:9], v[10:11]
    v_pk_add_f32 v[24:25], v[12:13], v[14:15]
    """)
    for p in range(4):
        E(f"v_pk_add_f32 v[{16+2*p}:{17+2*p}], v[{16+2*p}:{17+2*p}], 1.0 op_sel_hi:[1,0]")
    for i in range(8):
        E(f"v_rcp_f32 v{16+i}, v{16+i}")
    for p in range(4):
        E(f"v_pk_mul_f32 v[{8+2*p}:{9+2*p}], v[{8+2*p}:{9+2*p}], s[32:33] op_sel_hi:[1,0]")
    for p in range(4):
        E(f"v_pk_mul_f32 v[{8+2*p}:{9+2*p}], v[{8+2*p}:{9+2*p}], v[{16+2*p}:{17+2*p}]")
    E(f"""
    v_cvt_pk_bf16_f32 v16, v8, v10
    v_cvt_pk_bf16_f32 v17, v12, v14
    v_cvt_pk_bf16_f32 v18, v9, v11
    v_cvt_pk_bf16_f32 v19, v13, v15
    global_store_dwordx4 v5, v[16:19], s[14:15]
    v_pk_add_f32 v[6:7], v[6:7], v[24:25]
    v_add_f32 v6, v6, v7
    v_mov_b32 v7, 0x207
    v_cmp_class_f32 vcc, v6, v7
    s_cbranch_vccz L_k2_edone
    v_mov_b32 v6, 0
    ds_write_b32 v6, v7 offset:{L_FLAG}
L_k2_edone:
    """)
    STAMP(8)
    E(f"""
    s_cmp_lg_u32 s47, 0
    s_cbranch_scc1 L_k2_fin
    s_waitcnt lgkmcnt(0)
    s_barrier                               ; B4
    v_mov_b32 v6, 0
    ds_read_b32 v6, v6 offset:{L_FLAG}
    s_waitcnt lgkmcnt(0)
    v_readfirstlane_b32 s30, v6
    s_cmp_lg_u32 s30, 0
    s_cbranch_scc1 L_k2_gosafe
L_k2_fin:
    """)
    if OPT["stamps"]:
        E("s_waitcnt vmcnt(0)"); STAMP(9); STAMP_OUT(1, 12, "s3", "k2")
    E(f"""
L_k2_end:
    s_endpgm
L_k2_gosafe:
    s_mov_b32 s47, 1
    s_waitcnt vmcnt(0) lgkmcnt(0)
    s_barrier
    s_branch L_k2_restart
    """)
    E(f"""
L_k2_safe:
    v_and_b32 v2, 15, v1
    v_lshlrev_b32 v3, 3, v2
    v_add_u32 v3, {L_C}, v3
    ds_read_b64 v[64:65], v3
    ds_read_b64 v[66:67], v3 offset:128
    ds_read_b64 v[68:69], v3 offset:256
    ds_read_b64 v[70:71], v3 offset:384
    s_waitcnt lgkmcnt(0)
    """)
    for k in range(4):
        for p in range(2):
            E(f"""
            v_lshlrev_b32 v{80+4*k+2*p}, 16, v{64+2*k+p}
            v_and_b32 v{81+4*k+2*p}, 0xffff0000, v{64+2*k+p}
            v_mul_f32 v{80+4*k+2*p}, s40, v{80+4*k+2*p}
            v_mul_f32 v{81+4*k+2*p}, s40, v{81+4*k+2*p}
            """)
    E(f"""
    v_lshrrev_b32 v24, 4, v1
    v_mul_u32_u24 v24, 3, v24               ; 3*quarter
    s_movk_i32 s33, 98
    v_add_u32 v25, {L_NODE}, v{LN4}
    s_lshl_b32 s30, s21, 10
    s_lshl_b32 s31, s3, 6
    s_add_u32 s30, s30, s31
    s_add_u32 s30, s30, {WS_OFF}
    s_add_u32 s31, s30, 64
L_k2_scell:
    v_mov_b32 v26, s30
    global_load_dword v27, v26, s[16:17]
    s_waitcnt vmcnt(0)
    v_and_b32 v28, 0xfff, v27               ; 3*count
    v_lshrrev_b32 v27, 12, v27
    v_mov_b32 v29, v24
L_k2_srec:
    v_cmp_gt_u32 vcc, v28, v29
    s_and_saveexec_b64 s[48:49], vcc
    s_cbranch_execz L_k2_snext
    v_add_lshl_u32 v30, v27, v29, 2
    global_load_dwordx3 v[32:34], v30, s[18:19]
    s_waitcnt vmcnt(0)
    v_and_b32 v30, 0x3fffff, v34
    v_add_u32 v30, v30, v{LN16}
    buffer_load_dwordx4 v[36:39], v30, s[36:39], 0 offen
    v_lshrrev_b32 v31, 22, v34
    v_mad_u32_u24 v31, v31, s33, v25
    ds_read2_b32 v[40:41], v31 offset0:64 offset1:80
    v_lshlrev_b32 v44, 16, v32
    v_and_b32 v45, 0xffff0000, v32
    v_lshlrev_b32 v46, 16, v33
    v_and_b32 v47, 0xffff0000, v33
    s_waitcnt vmcnt(0) lgkmcnt(0)
    v_lshlrev_b32 v48, 16, v40
    v_and_b32 v49, 0xffff0000, v40
    v_lshlrev_b32 v50, 16, v41
    v_and_b32 v51, 0xffff0000, v41
    """)
    for s in range(4):
        E(f"v_lshlrev_b32 v52, 16, v{36+s}\nv_add_f32 v{48+s}, v{48+s}, v52")
        for k in range(4):
            E(f"v_fmac_f32 v{48+s}, v{44+k}, v{80+4*k+s}")
    for s in range(4): E(f"v_exp_f32 v{48+s}, v{48+s}")
    E("s_nop 0")
    for s in range(4): E(f"v_add_f32 v{48+s}, 1.0, v{48+s}")
    for s in range(4): E(f"v_rcp_f32 v{48+s}, v{48+s}")
    E("s_nop 0")
    for s in range(4): E(f"v_mul_f32 v{48+s}, v{48+s}, v{36+s}")
    for s in range(4): E(f"ds_add_f32 v31, v{48+s} offset:{64*s}")
    E(f"""
    s_mov_b64 exec, s[48:49]
    v_add_u32 v29, 12, v29
    s_branch L_k2_srec
L_k2_snext:
    s_mov_b64 exec, s[48:49]
    s_add_u32 s30, s30, 4
    s_cmp_lt_u32 s30, s31
    s_cbranch_scc1 L_k2_scell
    s_branch L_k2_mdone
    """)

header()
k1()
k2()
E('.section .rodata,"a"\n.p2align 6')
descriptor("mpnn_prep_kernel", 120)
E(".p2align 6")
descriptor("standalone__edge_featured_mpnn_egc__graph_kernel", 128)
text = "\n".join(l.lstrip() if l.lstrip().startswith(";") else l for l in out) + "\n"
open(sys.argv[1], "w").write(text)
```

```python
import sys, struct

OPT = dict(stamps=0, force_safe=0)
for a in sys.argv[2:]:
    k, v = a.split("=")
    OPT[k] = int(v)

out = []
def E(s=""):
    for line in s.split("\n"):
        line = line.strip()
        if not line:
            continue
        if line.endswith(":") or line.startswith("."):
            out.append(line)
        else:
            out.append("    " + line)

def f32(x):
    return "0x%08x" % struct.unpack("<I", struct.pack("<f", x))[0]

LOG2E = 1.4426950408889634
NB = 80
NBUCK = 125
CHUNK = 1280
NCHUNK = 250
WS_G = 0
G_HALF = 10000 * 256
WS_REC = 0x500000
REC_BYTES = NCHUNK * CHUNK * 12
WS_OFF = 0x900000
WS_STAMP = 0x1000000

nstamp = [0]
def STAMP(i):
    if OPT["stamps"]:
        E(f"s_memrealtime s[{64+2*i}:{65+2*i}]\ns_waitcnt lgkmcnt(0)")
def STAMP_OUT(kern, n, swave, label):
    if OPT["stamps"]:
        E(f"""
        s_load_dwordx2 s[60:61], s[0:1], 72
        s_lshl_b32 s62, s2, 4
        s_add_u32 s62, s62, {swave}
        s_lshl_b32 s62, s62, 6
        s_add_u32 s62, s62, {WS_STAMP + kern * 0x40000}
        s_mov_b64 exec, -1
        v_mov_b32 v1, s62
        s_waitcnt lgkmcnt(0)""")
        for i in range(n):
            E(f"v_mov_b32 v2, s{64+2*i}\nglobal_store_dword v1, v2, s[60:61] offset:{4*i}")
        E("s_waitcnt vmcnt(0)")
def STAMP_INIT(n):
    if OPT["stamps"]:
        for i in range(n):
            E(f"s_mov_b64 s[{64+2*i}:{65+2*i}], 0")

def header():
    E(f"""
; @launch kernel=mpnn_prep_kernel grid=(256,1,1) block=(832,1,1) lds={K1_LDS}
; @launch kernel=standalone__edge_featured_mpnn_egc__graph_kernel grid=(256,1,1) block=(1024,1,1) lds={K2_LDS}
""")
    E(""".amdgcn_target "amdgcn-amd-amdhsa--gfx950"
.text""")

def kernel_start(name):
    E(f""".globl {name}
.p2align 8
.type {name},@function
{name}:""")

def descriptor(name, vgpr, sgpr=96):
    E(f""".amdhsa_kernel {name}
.amdhsa_next_free_vgpr {vgpr}
.amdhsa_next_free_sgpr {sgpr}
.amdhsa_accum_offset {(vgpr+3)//4*4}
.amdhsa_group_segment_fixed_size 0
.amdhsa_kernarg_size 80
.amdhsa_user_sgpr_count 2
.amdhsa_user_sgpr_kernarg_segment_ptr 1
.amdhsa_system_sgpr_workgroup_id_x 1
.end_amdhsa_kernel""")

def gemm_stage(LW, LX, tag):
    E(f"""
    v_lshrrev_b32 v2, 3, v1
    v_bfe_u32 v3, v1, 4, 1                  ; (row>>1)&1
    s_and_b32 s30, s3, 1
    s_lshl_b32 s30, s30, 1
    v_or_b32 v3, s30, v3                    ; sigma
    v_lshlrev_b32 v3, 1, v3
    v_and_b32 v4, 7, v1
    v_xor_b32 v3, v3, v4
    v_lshlrev_b32 v3, 4, v3
    v_lshl_add_u32 v3, v2, 8, v3
    s_lshl_b32 s30, s3, 11                  ; 8*i rows * 256
    s_lshl_b32 s31, s20, 7
    s_add_u32 s30, s30, s31
    v_add_u32 v3, s30, v3
    v_add_u32 v5, 0x4000, v3                ; piece i = w+8
    s_and_b32 s22, s3, 3                    ; tau
    s_lshr_b32 s23, s3, 2                   ; rg
    v_lshrrev_b32 v6, 4, v1
    s_lshl_b32 s30, s22, 2
    v_add_u32 v6, s30, v6                   ; row&15
    v_and_b32 v7, 15, v1
    v_xor_b32 v7, v7, v6
    v_lshlrev_b32 v7, 4, v7
    v_lshl_add_u32 v7, v6, 8, v7
    s_mul_i32 s30, s21, {NB*256}
    s_mul_i32 s31, s23, {3*4096}
    s_add_u32 s30, s30, s31
    v_add_u32 v7, s30, v7
    v_add_u32 v8, 0x1000, v7
    v_add_u32 v9, 0x2000, v7
    s_lshl_b32 s30, s22, 10
    s_add_u32 s31, s31, s30
    s_add_u32 s31, s31, {LX}
    s_lshl_b32 s30, s3, 10
    s_add_u32 s30, s30, {LW}
    s_waitcnt lgkmcnt(0)
    """)
    yield
    E(f"""
    s_mov_b32 m0, s31
    s_add_u32 s31, s31, 0x1000
    global_load_lds_dwordx4 v7, s[28:29]
    s_mov_b32 m0, s31
    s_add_u32 s31, s31, 0x1000
    global_load_lds_dwordx4 v8, s[28:29]
    s_cmp_lg_u32 s23, 0
    s_cbranch_scc1 L_{tag}_x2
    s_mov_b32 m0, s31
    s_nop 0
    global_load_lds_dwordx4 v9, s[28:29]
L_{tag}_x2:
    s_mov_b32 m0, s30
    s_add_u32 s30, s30, 0x2000
    global_load_lds_dwordx4 v3, s[24:25]
    s_mov_b32 m0, s30
    s_add_u32 s30, s30, 0x2000
    global_load_lds_dwordx4 v5, s[24:25]
    s_mov_b32 m0, s30
    s_add_u32 s30, s30, 0x2000
    global_load_lds_dwordx4 v3, s[26:27]
    s_mov_b32 m0, s30
    s_nop 0
    global_load_lds_dwordx4 v5, s[26:27]
    """)
    yield

def gemm_addr(LW, LX):
    E(f"""
    v_lshrrev_b32 v2, 4, v1                 ; g
    v_bfe_u32 v3, v1, 2, 2                  ; r
    v_lshl_add_u32 v4, v2, 3, v3            ; 8g + r
    v_lshrrev_b32 v3, 1, v3                 ; r>>1
    v_and_b32 v5, 1, v2
    v_lshl_or_b32 v3, v5, 1, v3             ; sigma
    v_xor_b32 v3, s22, v3
    v_lshlrev_b32 v3, 5, v3
    v_lshl_add_u32 v10, v4, 7, v3
    v_and_b32 v3, 3, v1
    v_lshl_add_u32 v10, v3, 3, v10
    v_add_u32 v10, {LW}, v10
    v_and_b32 v4, 15, v1                    ; row
    v_xor_b32 v3, v2, v4
    v_lshlrev_b32 v3, 4, v3
    v_lshl_add_u32 v12, v4, 8, v3
    s_mul_i32 s30, s23, {3*4096}
    s_add_u32 s30, s30, {LX}
    v_xor_b32 v13, 64, v12
    v_xor_b32 v14, 0x80, v12
    v_xor_b32 v15, 0xc0, v12
    v_add_u32 v12, s30, v12
    v_add_u32 v13, s30, v13
    v_add_u32 v14, s30, v14
    v_add_u32 v15, s30, v15
    """)

WF = 16
XF = 48
AC = 96
def gemm_reads():
    for ks in range(4):
        E(f"ds_read_b128 v[{XF+4*ks}:{XF+4*ks+3}], v{12+ks}")
        for t in range(2):
            for rd in range(2):
                r = WF + 16*t + 4*ks + 2*rd
                E(f"ds_read_b64_tr_b16 v[{r}:{r+1}], v10 offset:{t*16384 + ks*4096 + rd*512}")
def gemm_xreads(rt):
    for ks in range(4):
        r = XF + 16*rt + 4*ks
        E(f"ds_read_b128 v[{r}:{r+3}], v{12+ks} offset:{rt*4096}")
def gemm_mfma(rt, transposed, ks_list=range(4)):
    for ks in ks_list:
        for t in range(2):
            a = XF + 16*rt + 4*ks; w = WF + 16*t + 4*ks; d = AC + 8*rt + 4*t
            c = "0" if ks == 0 else f"v[{d}:{d+3}]"
            if transposed:
                E(f"v_mfma_f32_16x16x32_bf16 v[{d}:{d+3}], v[{w}:{w+3}], v[{a}:{a+3}], {c}")
            else:
                E(f"v_mfma_f32_16x16x32_bf16 v[{d}:{d+3}], v[{a}:{a+3}], v[{w}:{w+3}], {c}")

K1_W = 0; K1_X = 32768; K1_CNT = 53248; K1_OFFS = 53760; K1_SORT = 54272
K1_LDS = K1_SORT + CHUNK * 12

def k1():
    kernel_start("mpnn_prep_kernel")
    STAMP_INIT(8)
    E(f"""
    s_cmp_ge_u32 s2, 256
    s_cbranch_scc1 L_k1_end
    v_lshrrev_b32 v2, 6, v0
    v_and_b32 v1, 63, v0
    v_readfirstlane_b32 s3, v2
    """)
    STAMP(0)
    E(f"""
    s_load_dwordx8 s[4:11], s[0:1], 0
    s_load_dwordx4 s[12:15], s[0:1], 40     ; v_w, g_w
    s_load_dwordx2 s[16:17], s[0:1], 72     ; ws
    s_cmp_ge_u32 s3, 8
    s_cbranch_scc1 L_k1_sort
    s_lshr_b32 s30, s2, 3
    s_and_b32 s20, s30, 1                   ; half
    s_lshr_b32 s30, s30, 1
    s_lshl_b32 s30, s30, 3
    s_and_b32 s31, s2, 7
    s_add_u32 s21, s30, s31
    s_cmp_ge_u32 s21, {NBUCK}
    s_cbranch_scc1 L_k1_end
    """)
    st = gemm_stage(K1_W, K1_X, "k1")
    next(st)
    E(f"""
    s_add_u32 s24, s14, {128*256}           ; B = g_w rows 128..255
    s_addc_u32 s25, s15, 0
    s_mov_b64 s[26:27], s[12:13]            ; V
    s_mov_b64 s[28:29], s[4:5]
    """)
    next(st)
    STAMP(1)
    E("s_barrier                               ; B0")
    gemm_addr(K1_W, K1_X)
    E(f"""
    v_lshlrev_b32 v11, 10, v2
    v_lshl_add_u32 v11, v4, 2, v11
    s_lshl_b32 s30, s22, 6
    v_add_u32 v11, s30, v11
    s_mul_i32 s32, s20, {G_HALF}
    s_mul_i32 s30, s21, {NB*256}
    s_add_u32 s32, s32, s30
    s_mul_i32 s30, s23, {3*4096}
    s_add_u32 s32, s32, s30
    s_add_u32 s33, s32, 0x1000
    s_add_u32 s34, s32, 0x2000
    s_mov_b32 s36, s16
    s_mov_b32 s37, s17
    s_mov_b32 s38, {2*G_HALF}
    s_mov_b32 s39, 0x20000
    s_mov_b32 s40, {f32(LOG2E)}
    s_mov_b32 s42, {f32(2.0**32)}
    s_mov_b32 s44, 0x07060100
    s_mov_b32 s45, 0x07060302
    v_mov_b32 v8, {f32(2.0**-100)}
    s_waitcnt vmcnt(0)
    """)
    STAMP(2)
    E("s_barrier                               ; B1")
    STAMP(3)
    gemm_reads()
    gemm_xreads(1)
    E("s_waitcnt lgkmcnt(4)")
    gemm_mfma(0, False)
    E("s_cmp_lg_u32 s23, 0\ns_cbranch_scc1 L_k1_g1")
    gemm_xreads(2)
    E("s_waitcnt lgkmcnt(4)")
    E("L_k1_g1b:")
    gemm_mfma(1, False)
    E("s_barrier                               ; B2")
    def pack(rt, soff):
        b = AC + 8*rt; h = b + 4
        E(f"""
        v_pk_mul_f32 v[{b}:{b+1}], v[{b}:{b+1}], s[40:41] op_sel_hi:[1,0]
        v_pk_mul_f32 v[{b+2}:{b+3}], v[{b+2}:{b+3}], s[40:41] op_sel_hi:[1,0]
        v_pk_fma_f32 v[{h}:{h+1}], v[{h}:{h+1}], s[42:43], v[8:9] op_sel_hi:[1,0,0]
        v_pk_fma_f32 v[{h+2}:{h+3}], v[{h+2}:{h+3}], s[42:43], v[8:9] op_sel_hi:[1,0,0]
        v_cvt_pk_bf16_f32 v2, v{b}, v{b+1}
        v_cvt_pk_bf16_f32 v3, v{b+2}, v{b+3}
        v_xor_b32 v4, 0x80008000, v2
        v_xor_b32 v5, 0x80008000, v3
        v_sub_u32_sdwa v{h}, v{h}, sext(v2) dst_sel:DWORD dst_unused:UNUSED_PAD src0_sel:DWORD src1_sel:WORD_0
        v_sub_u32_sdwa v{h+1}, v{h+1}, sext(v2) dst_sel:DWORD dst_unused:UNUSED_PAD src0_sel:DWORD src1_sel:WORD_1
        v_sub_u32_sdwa v{h+2}, v{h+2}, sext(v3) dst_sel:DWORD dst_unused:UNUSED_PAD src0_sel:DWORD src1_sel:WORD_0
        v_sub_u32_sdwa v{h+3}, v{h+3}, sext(v3) dst_sel:DWORD dst_unused:UNUSED_PAD src0_sel:DWORD src1_sel:WORD_1
        v_perm_b32 v{h}, v{h}, v4, s44
        v_perm_b32 v{h+1}, v{h+1}, v4, s45
        v_perm_b32 v{h+2}, v{h+2}, v5, s44
        v_perm_b32 v{h+3}, v{h+3}, v5, s45
        """)
        for r in range(4):
            E(f"buffer_store_dword v{h+r}, v11, s[36:39], s{soff} offen offset:{256*r}")
    pack(0, 32)
    E("s_cmp_lg_u32 s23, 0\ns_cbranch_scc1 L_k1_g2\ns_waitcnt lgkmcnt(0)")
    gemm_mfma(2, False)
    pack(1, 33)
    pack(2, 34)
    STAMP(4)
    if OPT["stamps"]:
        E("s_waitcnt vmcnt(0)"); STAMP(5); STAMP_OUT(0, 8, "s3", "a")
    E("s_endpgm")
    E("L_k1_g1:\ns_waitcnt lgkmcnt(0)\ns_branch L_k1_g1b")
    E("L_k1_g2:")
    pack(1, 33)
    STAMP(4)
    if OPT["stamps"]:
        E("s_waitcnt vmcnt(0)"); STAMP(5); STAMP_OUT(0, 8, "s3", "b")
    E("s_endpgm")
    E(f"""
L_k1_sort:
    s_and_b32 s30, s2, 7
    s_lshl_b32 s30, s30, 5
    s_lshr_b32 s31, s2, 3
    s_add_u32 s30, s30, s31
    s_lshl_b32 s30, s30, 2
    s_add_u32 s30, s30, {WS_OFF}
    v_lshlrev_b32 v30, 11, v1
    v_add_u32 v30, s30, v30
    v_mov_b32 v20, 0
    v_mov_b32 v21, 0
    s_cmp_ge_u32 s2, {NCHUNK}
    s_cbranch_scc1 L_k1_nochunk
    v_subrev_u32 v2, 512, v0                ; t = 0..319
    s_mul_i32 s30, s2, {CHUNK*4}
    v_lshl_add_u32 v3, v2, 4, s30
    v_lshlrev_b32 v22, 1, v3
    v_lshlrev_b32 v31, 3, v1
    s_waitcnt lgkmcnt(0)
    global_load_dwordx4 v[4:7], v3, s[10:11]
    global_load_dwordx4 v[8:11], v3, s[8:9]
    global_load_dwordx4 v[12:15], v22, s[6:7]
    global_load_dwordx4 v[16:19], v22, s[6:7] offset:16
    ds_write_b64 v31, v[20:21] offset:{K1_CNT}
    v_mov_b32 v20, 3
    s_mov_b32 s31, 52429
    s_movk_i32 s32, -20
    v_lshlrev_b32 v33, 4, v2
    s_mul_i32 s30, s2, {CHUNK*12}
    s_add_u32 s30, s30, {WS_REC}
    v_add_u32 v32, s30, v33
    v_add_u32 v34, 5120, v32
    v_add_u32 v35, 10240, v32
    s_waitcnt lgkmcnt(0)
    """)
    STAMP(1)
    E(f"""
    s_barrier                               ; B0
    s_waitcnt vmcnt(3)
    """)
    for i in range(4):
        E(f"""
        v_mul_u32_u24 v{22+i}, s31, v{4+i}
        v_lshrrev_b32 v{22+i}, 22, v{22+i}
        v_lshlrev_b32 v{22+i}, 2, v{22+i}        ; bucket*4
        ds_add_rtn_u32 v{26+i}, v{22+i}, v20 offset:{K1_CNT}
        """)
    for i in range(4):
        E(f"""
        v_mad_i32_i24 v{4+i}, v{22+i}, s32, v{4+i}
        v_lshlrev_b32 v{4+i}, 24, v{4+i}
        """)
    E("s_waitcnt lgkmcnt(0)")
    STAMP(2)
    E(f"""
    s_barrier                               ; B1
    ds_read_b64 v[36:37], v31 offset:{K1_CNT}
    s_waitcnt vmcnt(2)
    """)
    for i in range(4):
        E(f"v_lshl_or_b32 v{4+i}, v{8+i}, 8, v{4+i}")
    E(f"""
    s_waitcnt lgkmcnt(0)
    v_add_u32 v38, v36, v37
    v_mov_b32 v39, v38
    s_nop 1
    v_add_u32_dpp v39, v39, v39 row_shr:1 row_mask:0xf bank_mask:0xf bound_ctrl:0
    s_nop 1
    v_add_u32_dpp v39, v39, v39 row_shr:2 row_mask:0xf bank_mask:0xf bound_ctrl:0
    s_nop 1
    v_add_u32_dpp v39, v39, v39 row_shr:4 row_mask:0xf bank_mask:0xf bound_ctrl:0
    s_nop 1
    v_add_u32_dpp v39, v39, v39 row_shr:8 row_mask:0xf bank_mask:0xf bound_ctrl:0
    s_nop 1
    v_add_u32_dpp v39, v39, v39 row_bcast:15 row_mask:0xa bank_mask:0xf
    s_nop 1
    v_add_u32_dpp v39, v39, v39 row_bcast:31 row_mask:0xc bank_mask:0xf
    v_sub_u32 v40, v39, v38
    v_add_u32 v40, {K1_SORT//4}, v40
    v_add_u32 v41, v40, v36
    ds_write_b64 v31, v[40:41] offset:{K1_OFFS}
    """)
    for i in range(4):
        E(f"ds_read_b32 v{22+i}, v{22+i} offset:{K1_OFFS}")
    E(f"""
    s_mul_i32 s30, s2, {CHUNK*3}
    s_sub_u32 s30, s30, {K1_SORT//4}
    v_add_u32 v40, s30, v40
    v_add_u32 v41, s30, v41
    v_lshl_or_b32 v20, v40, 12, v36
    v_lshl_or_b32 v21, v41, 12, v37
    s_waitcnt vmcnt(0)
    s_cmp_lg_u32 s3, 12
    s_cbranch_scc1 L_k1_nooff
    global_store_dword v30, v20, s[16:17]
    global_store_dword v30, v21, s[16:17] offset:1024
L_k1_nooff:
    """)
    for i in range(4):
        E(f"""
        s_waitcnt lgkmcnt({3 + i})
        v_add_lshl_u32 v{22+i}, v{22+i}, v{26+i}, 2
        ds_write_b32 v{22+i}, v{4+i} offset:8
        ds_write2_b32 v{22+i}, v{12+2*i}, v{13+2*i} offset0:0 offset1:1
        """)
    E("s_waitcnt lgkmcnt(0)")
    STAMP(3)
    E(f"""
    s_barrier                               ; B2
    ds_read_b128 v[4:7], v33 offset:{K1_SORT}
    ds_read_b128 v[8:11], v33 offset:{K1_SORT+5120}
    ds_read_b128 v[12:15], v33 offset:{K1_SORT+10240}
    s_waitcnt lgkmcnt(2)
    global_store_dwordx4 v32, v[4:7], s[16:17]
    s_waitcnt lgkmcnt(1)
    global_store_dwordx4 v34, v[8:11], s[16:17]
    s_waitcnt lgkmcnt(0)
    global_store_dwordx4 v35, v[12:15], s[16:17]
    """)
    STAMP(4)
    if OPT["stamps"]:
        E("s_waitcnt vmcnt(0)"); STAMP(5); STAMP_OUT(0, 8, "s3", "c")
    E(f"""
    s_endpgm
L_k1_nochunk:
    s_cmp_lg_u32 s3, 12
    s_cbranch_scc1 L_k1_end
    s_waitcnt lgkmcnt(0)
    global_store_dword v30, v20, s[16:17]
    global_store_dword v30, v21, s[16:17] offset:1024
L_k1_end:
    s_endpgm
    """)

L_CNT = 0; L_LCNT = 512; L_FLAG = 516
L_LIST = 1024
L_SRC = 6656
L_EA = L_SRC + 81*256
L_NODE = L_EA + 81*512
NSTR = 648
L_W = L_NODE; L_X = L_W + 32768; L_C = L_X + 20480
L_DUM = L_C + 1024
K2_LDS = L_DUM + 1024
assert L_NODE + 80*NSTR <= L_C and K2_LDS <= 163840
NULL_SRC = 0x7fffff00

A1, A2, IDX, LN4, LN16, ASEL, CW, EAC = 4, 8, 12, 13, 14, 16, 18, 20
LP, W1, W2, AG, EAD, EA, XA, OFS, T, N, P, D, G0, G1 = 22, 24, 26, 27, 28, 30, 32, 36, 44, 52, 56, 64, 80, 96

def main_consts():
    E(f"""
    v_and_b32 v2, 15, v1                    ; n'
    v_lshlrev_b32 v{LN4}, 3, v2
    v_lshlrev_b32 v{LN16}, 4, v2
    v_lshlrev_b32 v{LN16+1}, 4, v2
    v_mov_b32 v{IDX}, 0x8888
    v_bfe_u32 v60, v1, 3, 2                 ; s = (l&31)>>3
    v_bfe_u32 v61, v1, 2, 1                 ; h = (l>>2)&1
    v_lshrrev_b32 v62, 5, v1                ; ha
    v_and_b32 v63, 3, v1                    ; q
    v_and_b32 v2, 1, v60
    v_lshlrev_b32 v2, 4, v2
    v_lshlrev_b32 v2, v2, s46
    v_lshrrev_b32 v60, 1, v60               ; s>>1
    v_lshl_add_u32 v3, v61, 1, v60
    v_sub_u32 v63, v63, v62                 ; q - ha : 0 -> A1, 2 -> A2
    v_lshl_add_u32 v3, v63, 1, v3
    v_and_b32 v63, 1, v63
    v_lshl_or_b32 v3, v63, 4, v3
    v_xor_b32 v61, v61, v62
    v_lshl_or_b32 v60, v61, 4, v60
    """)
    for i in range(8):
        E(f"v_cmp_eq_u32 s[{48+2*(i%4)}:{49+2*(i%4)}], {i}, v3")
        if i % 4 == 3:
            for j in range(i-3, i+1):
                E(f"v_cndmask_b32 v{A1+j}, 0, v2, s[{48+2*(j%4)}:{49+2*(j%4)}]")
    E(f"""
    v_cmp_eq_u32 s[48:49], 0, v60
    v_cmp_eq_u32 s[50:51], 1, v60
    v_bfe_u32 v61, v1, 4, 1
    v_and_b32 v63, 3, v1
    v_cndmask_b32 v{ASEL}, 0, v2, s[48:49]
    v_cndmask_b32 v{ASEL+1}, 0, v2, s[50:51]
    v_lshl_add_u32 v61, v61, 2, v63
    v_lshlrev_b32 v61, 3, v61
    v_add_u32 v{EAC}, {L_EA - 2*L_SRC}, v61
    s_lshl_b32 s30, s3, 5
    s_add_u32 s30, s30, {L_LIST}
    v_lshrrev_b32 v2, 4, v1
    v_lshl_add_u32 v{LP}, v2, 3, s30
    v_bfe_u32 v2, v1, 2, 2
    v_lshl_add_u32 v{LP+1}, v2, 3, s30
    """)

def cw_reads():
    E(f"""
    v_and_b32 v2, 15, v1
    v_lshrrev_b32 v3, 4, v1
    v_lshl_add_u32 v2, v2, 2, v3
    v_lshlrev_b32 v2, 1, v2
    v_add_u32 v2, {L_C}, v2
    ds_read_u16 v60, v2
    ds_read_u16 v61, v2 offset:128
    ds_read_u16 v62, v2 offset:256
    ds_read_u16 v63, v2 offset:384
    """)
def cw_finish():
    E(f"""
    v_lshlrev_b32 v60, 16, v60
    v_lshlrev_b32 v61, 16, v61
    v_lshlrev_b32 v62, 16, v62
    v_lshlrev_b32 v63, 16, v63
    v_pk_mul_f32 v[60:61], v[60:61], s[40:41] op_sel_hi:[1,0]
    v_pk_mul_f32 v[62:63], v[62:63], s[40:41] op_sel_hi:[1,0]
    v_cvt_pk_bf16_f32 v{CW}, v60, v61
    v_cvt_pk_bf16_f32 v{CW+1}, v62, v63
    """)

def prefill():
    E(f"""
    v_mov_b32 v100, 0
    v_mov_b32 v101, 0
    v_mov_b32 v102, 0
    v_mov_b32 v103, 0
    v_lshlrev_b32 v112, 4, v0
    v_add_u32 v113, {L_EA}, v112
    ds_write_b128 v113, v[100:103]
    ds_write_b128 v113, v[100:103] offset:16384
    ds_write_b128 v113, v[100:103] offset:{81*512 - 16384}
    v_mov_b32 v104, {NULL_SRC}
    v_mov_b32 v105, {NULL_SRC}
    v_mov_b32 v106, {NULL_SRC}
    v_mov_b32 v107, {NULL_SRC}
    ds_write_b128 v112, v[104:107] offset:{L_SRC}
    v_mov_b32 v108, {L_SRC + 80*256}
    v_mov_b32 v109, {L_DUM}
    v_mov_b32 v110, {L_SRC + 80*256}
    v_mov_b32 v111, {L_DUM}
    s_cmp_ge_u32 s3, 6
    s_cbranch_scc1 L_k2_pf1
    v_cmp_gt_u32 vcc, {(81*256 - 16384)//16}, v0
    s_and_saveexec_b64 s[48:49], vcc
    ds_write_b128 v112, v[104:107] offset:{L_SRC + 16384}
    s_mov_b64 exec, s[48:49]
    v_cmp_gt_u32 vcc, {(L_SRC - L_LIST)//16}, v0
    s_and_saveexec_b64 s[48:49], vcc
    ds_write_b128 v112, v[108:111] offset:{L_LIST}
    s_mov_b64 exec, s[48:49]
    s_branch L_k2_pf2
L_k2_pf1:
    s_cmp_ge_u32 s3, 8
    s_cbranch_scc1 L_k2_pf2
    v_subrev_u32 v114, 384, v0              ; 0..127
    v_lshlrev_b32 v115, 2, v114
    v_lshlrev_b32 v114, 8, v114
    v_add_u32 v114, {L_SRC}, v114
    ds_write_b32 v115, v114 offset:{L_CNT}
    v_add_u32 v115, {L_DUM + 256}, v115
    ds_write_b32 v115, v100
    v_mov_b32 v116, {L_LIST}
    v_mov_b32 v117, 0
    ds_write_b64 v100, v[116:117] offset:{L_LCNT}
L_k2_pf2:
    """)

def chain(G, q0, first):
    def exps(q):
        t = T + 4*(q & 1)
        return [f"v_exp_f32 v{t+s}, v{D+4*s+q}" for s in range(4)]
    def steps(q):
        t = T + 4*(q & 1); h = G + 4*q
        if first and q == 0:
            return [f"v_pk_add_f32 v[{P+2*p}:{P+2*p+1}], v[{t+2*p}:{t+2*p+1}], 1.0 op_sel_hi:[1,0]" for p in range(2)]
        r = []
        for p in range(2):
            n = f"v[{G+2*p}:{G+2*p+1}]" if (first and q == 1) else f"v[{N+2*p}:{N+2*p+1}]"
            r.append(f"v_pk_fma_f32 v[{N+2*p}:{N+2*p+1}], {n}, v[{t+2*p}:{t+2*p+1}], {n}")
        for p in range(2):
            r.append(f"v_pk_fma_f32 v[{N+2*p}:{N+2*p+1}], v[{h+2*p}:{h+2*p+1}], v[{P+2*p}:{P+2*p+1}], v[{N+2*p}:{N+2*p+1}]")
        for p in range(2):
            r.append(f"v_pk_fma_f32 v[{P+2*p}:{P+2*p+1}], v[{P+2*p}:{P+2*p+1}], v[{t+2*p}:{t+2*p+1}], v[{P+2*p}:{P+2*p+1}]")
        return r
    for x in exps(0): E(x)
    for q in range(4):
        nx = exps(q+1) if q < 3 else ["s_nop 0"]
        st = steps(q)
        seq = []
        while nx or st:
            if nx: seq.append(nx.pop(0))
            if st: seq.append(st.pop(0))
            if st: seq.append(st.pop(0))
        for x in seq: E(x)

def gathers(G, o):
    E(f"""
    v_lshl_add_u64 v[{o}:{o+1}], v[{o}:{o+1}], 0, v[{LN16}:{LN16+1}]
    v_lshl_add_u64 v[{o+2}:{o+3}], v[{o+2}:{o+3}], 0, v[{LN16}:{LN16+1}]
    """)
    for q in range(4):
        E(f"buffer_load_dwordx4 v[{G+4*q}:{G+4*q+3}], v{o+q}, s[36:39], 0 offen")

def k2():
    kernel_start("standalone__edge_featured_mpnn_egc__graph_kernel")
    STAMP_INIT(12)
    E(f"""
    s_and_b32 s20, s2, 1                    ; half
    s_bfe_u32 s30, s2, 0x20001              ; (id>>1)&3
    s_lshl_b32 s30, s30, 5
    s_lshr_b32 s31, s2, 3
    s_add_u32 s21, s30, s31                 ; bucket
    s_cmp_ge_u32 s2, 256
    s_cbranch_scc1 L_k2_end
    s_cmp_ge_u32 s21, {NBUCK}
    s_cbranch_scc1 L_k2_end
    s_mov_b32 s47, {OPT["force_safe"]}
    v_lshrrev_b32 v2, 6, v0
    v_and_b32 v1, 63, v0
    v_readfirstlane_b32 s3, v2
    """)
    STAMP(0)
    E(f"""
L_k2_restart:
    s_load_dwordx2 s[28:29], s[0:1], 0      ; x
    s_load_dwordx2 s[26:27], s[0:1], 32     ; u_w
    s_load_dwordx4 s[12:15], s[0:1], 48     ; g_w, out
    s_load_dwordx2 s[16:17], s[0:1], 72     ; ws
    s_mov_b32 s40, {f32(-LOG2E)}
    s_mov_b32 s42, {f32(2.0**32)}
    s_mov_b32 s46, 0x3f80
    s_mov_b32 s44, 512
    s_mov_b32 s45, 512
    s_cmp_ge_u32 s3, 8
    s_cbranch_scc1 L_k2_rec
    """)
    st = gemm_stage(L_W, L_X, "k2")
    next(st)
    E(f"""
    s_mov_b64 s[24:25], s[12:13]            ; A = g_w rows 0..127
    """)
    next(st)
    E(f"""
    s_cmp_lg_u32 s3, 7
    s_cbranch_scc1 L_k2_noc
    v_bfe_u32 v2, v1, 3, 2
    v_and_b32 v3, 7, v1
    v_lshlrev_b32 v3, 4, v3
    v_lshl_add_u32 v2, v2, 8, v3
    s_lshl_b32 s30, s20, 7
    s_add_u32 s30, s30, {256*256}
    v_add_u32 v2, s30, v2
    s_mov_b32 m0, {L_C}
    s_nop 0
    global_load_lds_dwordx4 v2, s[24:25]
L_k2_noc:
    s_branch L_k2_pf
L_k2_rec:
    s_lshl_b32 s30, s21, 10
    s_sub_u32 s31, s3, 8
    s_lshl_b32 s31, s31, 7
    s_add_u32 s30, s30, s31
    s_add_u32 s30, s30, {WS_OFF}
    v_lshrrev_b32 v2, 4, v1
    v_lshl_add_u32 v2, v2, 5, s30
    s_waitcnt lgkmcnt(0)
    global_load_dwordx4 v[64:67], v2, s[16:17]
    global_load_dwordx4 v[68:71], v2, s[16:17] offset:16
L_k2_pf:
    """)
    STAMP(1)
    prefill()
    E(f"""
    s_mul_i32 s30, s20, {G_HALF}
    s_add_u32 s36, s16, s30
    s_addc_u32 s37, s17, 0
    s_mov_b32 s38, {G_HALF}
    s_mov_b32 s39, 0x20000
    s_add_u32 s18, s16, {WS_REC}
    s_addc_u32 s19, s17, 0
    s_cmp_ge_u32 s3, 8
    s_cbranch_scc1 L_k2_rec2
    """)
    gemm_addr(L_W, L_X)
    E(f"""
    s_mul_i32 s30, s23, {48*NSTR}
    s_lshl_b32 s31, s22, 5
    s_add_u32 s30, s30, s31
    s_add_u32 s30, s30, {L_NODE}
    v_mul_u32_u24 v11, {NSTR}, v4
    v_lshl_add_u32 v11, v2, 3, v11
    v_add_u32 v11, s30, v11
    s_waitcnt vmcnt(0) lgkmcnt(0)
    """)
    STAMP(2)
    E("s_barrier                               ; B1")
    STAMP(3)
    gemm_reads()
    gemm_xreads(1)
    E("s_waitcnt lgkmcnt(4)")
    gemm_mfma(0, True)
    E("s_cmp_lg_u32 s23, 0\ns_cbranch_scc1 L_k2_g1")
    gemm_xreads(2)
    E("L_k2_g1:\ns_waitcnt lgkmcnt(0)\ns_barrier")
    gemm_mfma(1, True)
    def fin(rt):
        a = AC + 8*rt; u = a + 4
        E(f"""
        v_pk_mul_f32 v[{a}:{a+1}], v[{a}:{a+1}], s[40:41] op_sel_hi:[1,0]
        v_pk_mul_f32 v[{a+2}:{a+3}], v[{a+2}:{a+3}], s[40:41] op_sel_hi:[1,0]
        v_pk_mul_f32 v[{u}:{u+1}], v[{u}:{u+1}], s[42:43] op_sel_hi:[1,0]
        v_pk_mul_f32 v[{u+2}:{u+3}], v[{u+2}:{u+3}], s[42:43] op_sel_hi:[1,0]
        v_cvt_pk_bf16_f32 v{a}, v{a}, v{a+1}
        v_cvt_pk_bf16_f32 v{a+1}, v{a+2}, v{a+3}
        v_cvt_f64_f32 v[2:3], v{u}
        v_cvt_f64_f32 v[4:5], v{u+1}
        v_cvt_f64_f32 v[6:7], v{u+2}
        v_cvt_f64_f32 v[8:9], v{u+3}
        ds_write_b64 v11, v[{a}:{a+1}] offset:512
        ds_write2_b64 v11, v[2:3], v[4:5] offset0:0 offset1:16
        ds_write2_b64 v11, v[6:7], v[8:9] offset0:32 offset1:48
        v_add_u32 v11, {16*NSTR}, v11
        """)
    fin(0)
    E("s_cmp_lg_u32 s23, 0\ns_cbranch_scc1 L_k2_g2")
    gemm_mfma(2, True)
    fin(1)
    fin(2)
    E("s_branch L_k2_gdone")
    E("L_k2_g2:")
    fin(1)
    E("L_k2_gdone:")
    cw_reads()
    main_c = True
    E("s_waitcnt lgkmcnt(0)")
    cw_finish()
    main_consts()
    E("s_branch L_k2_b2")
    RA = 72
    E(f"""
L_k2_rec2:
    """)
    main_consts()
    E(f"""
    v_and_b32 v2, 15, v1
    v_mul_u32_u24 v2, 3, v2                 ; 3j
    v_add_u32 v3, 48, v2
    v_mov_b32 v60, 4
    v_mov_b32 v61, 8
    v_mov_b32 v62, 0
    s_movk_i32 s33, {NSTR//4}
    v_mov_b32 v63, {L_NODE}
    s_cmp_lg_u32 s47, 0
    s_cbranch_scc1 L_k2_recskip
    s_waitcnt vmcnt(0)
    """)
    STAMP(2)
    for p in range(8):
        E(f"""
        v_and_b32 v{36+p}, 0xfff, v{64+p}
        v_lshrrev_b32 v{64+p}, 12, v{64+p}
        v_add_lshl_u32 v{64+p}, v{64+p}, v2, 2
        """)
    E(f"""
    v_max3_u32 v44, v36, v37, v38
    v_max3_u32 v45, v39, v40, v41
    v_max3_u32 v44, v44, v42, v43
    v_max_u32 v44, v44, v45
    v_cmp_lt_u32 vcc, 96, v44
    s_cbranch_vccnz L_k2_toobig
    """)
    def recload(p, base, jreg, off):
        r = base + 4*p
        E(f"global_load_dwordx3 v[{r}:{r+2}], v{64+p}, s[18:19]" + (f" offset:{off}" if off else ""))
    for p in range(8):
        E(f"v_cmp_gt_u32 vcc, v{36+p}, v2\ns_mov_b64 exec, vcc")
        E(f"s_cbranch_execz L_k2_nl{p}")
        recload(p, RA, 2, 0)
        E(f"L_k2_nl{p}:\ns_mov_b64 exec, -1")
    E("s_waitcnt lgkmcnt(0)")
    E("s_barrier                               ; B1")
    STAMP(3)
    cw_reads_late = True
    def place(plist, base, jreg, tag):
        for p in plist:
            r = base + 4*p
            E(f"""
            v_cmp_gt_u32 s[{48+2*(p%4)}:{49+2*(p%4)}], v{36+p}, v{jreg}
            v_lshrrev_b32 v{44+(p%4)}, 22, v{r+2}
            v_and_b32 v{r+2}, 0x3fffff, v{r+2}
            s_mov_b64 exec, s[{48+2*(p%4)}:{49+2*(p%4)}]
            ds_add_rtn_u32 v{48+2*(p%4)}, v{44+(p%4)}, v60 offset:{L_CNT}
            s_mov_b64 exec, -1
            """)
        E("s_waitcnt lgkmcnt(0)")
        for p in plist:
            r = base + 4*p; a = 48 + 2*(p % 4)
            E(f"""
            s_mov_b64 exec, s[{48+2*(p%4)}:{49+2*(p%4)}]
            ds_write_b32 v{a}, v{r+2}
            v_lshlrev_b32 v{r+3}, 1, v{a}
            v_and_b32 v{56+(p%4)}, 31, v{a}
            ds_write_b64 v{r+3}, v[{r}:{r+1}] offset:{L_EA - 2*L_SRC}
            v_cmp_eq_u32 s[{48+2*(p%4)}:{49+2*(p%4)}], 0, v{56+(p%4)}
            v_mad_u32_u24 v{a+1}, v{44+(p%4)}, s33, v63
            s_mov_b64 exec, s[{48+2*(p%4)}:{49+2*(p%4)}]
            ds_add_rtn_u32 v{56+(p%4)}, v62, v61 offset:{L_LCNT}
            """)
        E("s_waitcnt lgkmcnt(0)")
        for p in plist:
            a = 48 + 2*(p % 4)
            E(f"""
            s_mov_b64 exec, s[{48+2*(p%4)}:{49+2*(p%4)}]
            ds_write_b64 v{56+(p%4)}, v[{a}:{a+1}]
            """)
        E("s_mov_b64 exec, -1")
    E("s_barrier                               ; B1b\ns_waitcnt vmcnt(0)")
    STAMP(4)
    place(range(0, 4), RA, 2, "a")
    place(range(4, 8), RA, 2, "b")
    E(f"""
    v_max3_u32 v44, v36, v37, v38
    v_max3_u32 v45, v39, v40, v41
    v_max3_u32 v44, v44, v42, v43
    v_max_u32 v44, v44, v45
    v_cmp_lt_u32 vcc, 48, v44
    s_cbranch_vccz L_k2_recdone
    """)
    for p in range(8):
        E(f"v_cmp_gt_u32 vcc, v{36+p}, v3\ns_mov_b64 exec, vcc")
        E(f"s_cbranch_execz L_k2_nm{p}")
        recload(p, RA, 3, 192)
        E(f"L_k2_nm{p}:\ns_mov_b64 exec, -1")
    E("s_waitcnt vmcnt(0)")
    place(range(0, 4), RA, 3, "c")
    place(range(4, 8), RA, 3, "d")
    E(f"""
    s_branch L_k2_recdone
L_k2_toobig:
    s_waitcnt lgkmcnt(0)
    s_barrier                               ; B1
    s_barrier                               ; B1b
    ds_write_b32 v62, v60 offset:{L_FLAG}
    s_branch L_k2_recdone
L_k2_recskip:
    s_waitcnt vmcnt(0) lgkmcnt(0)
    s_barrier                               ; B1
    s_barrier                               ; B1b
L_k2_recdone:
    """)
    cw_reads()
    E("s_waitcnt lgkmcnt(0)")
    cw_finish()
    E(f"""
L_k2_b2:
    s_waitcnt lgkmcnt(0)
    """)
    STAMP(5)
    E(f"""
    s_barrier                               ; B2
    s_cmp_lg_u32 s47, 0
    s_cbranch_scc1 L_k2_safe
    v_lshlrev_b32 v2, 3, v1
    v_mov_b32 v3, 0
    ds_read_b64 v[{W1}:{W1+1}], v{LP}
    ds_read_b32 v{W2}, v{LP+1}
    ds_read_b64 v[60:61], v3 offset:{L_LCNT}
    ds_read_b64 v[62:63], v2 offset:{L_CNT}
    v_lshlrev_b32 v2, 9, v1
    v_add_u32 v2, {L_SRC + 256}, v2
    v_add_u32 v3, 256, v2
    s_waitcnt lgkmcnt(2)
    ds_read_b128 v[{OFS}:{OFS+3}], v{W1}
    ds_read_b128 v[{OFS+4}:{OFS+7}], v{W1} offset:16
    v_add_u32 v{AG}, v{W1+1}, v{LN4}
    v_lshl_add_u32 v{EAD}, v{W2}, 1, v{EAC}
    ds_read_b64 v[{XA}:{XA+1}], v{AG} offset:512
    ds_read_b64 v[{EA}:{EA+1}], v{EAD}
    s_waitcnt lgkmcnt(4)
    v_cmp_gt_u32 s[48:49], v62, v2
    v_cmp_gt_u32 s[50:51], v63, v3
    v_readfirstlane_b32 s30, v60
    v_readfirstlane_b32 s31, v61
    s_or_b64 s[48:49], s[48:49], s[50:51]
    s_cbranch_scc1 L_k2_gosafe
    s_cmp_lg_u32 s31, 0
    s_cbranch_scc1 L_k2_gosafe
    s_sub_u32 s30, s30, {L_LIST - 31}
    s_lshr_b32 s30, s30, 5
    s_min_u32 s30, s30, 160
    s_cmp_ge_u32 s3, s30
    s_cbranch_scc1 L_k2_mdone
    s_add_u32 s31, s3, 16
    s_waitcnt lgkmcnt(2)
    """)
    gathers(G0, OFS)
    gathers(G1, OFS+4)
    STAMP(6)
    E(f"""
L_k2_loop:
    v_lshl_add_u64 v[{LP}:{LP+1}], v[{LP}:{LP+1}], 0, s[44:45]
    s_waitcnt lgkmcnt(0)
    ds_read_b64 v[{W1}:{W1+1}], v{LP}
    ds_read_b32 v{W2}, v{LP+1}
    v_mfma_f32_32x32x8_bf16 v[{D}:{D+15}], v[{ASEL}:{ASEL+1}], v[{XA}:{XA+1}], 0
    v_mfma_f32_16x16x4_4b_bf16 v[{D}:{D+15}], v[{EA}:{EA+1}], v[{CW}:{CW+1}], v[{D}:{D+15}] cbsz:2 abid:0
    s_waitcnt vmcnt(4)
    v_smfmac_f32_32x32x32_bf16 v[{D}:{D+15}], v[{A1}:{A1+3}], v[{G0}:{G0+7}], v{IDX}
    v_smfmac_f32_32x32x32_bf16 v[{D}:{D+15}], v[{A2}:{A2+3}], v[{G0+8}:{G0+15}], v{IDX}
    s_waitcnt lgkmcnt(0)
    ds_read_b128 v[{OFS}:{OFS+3}], v{W1}
    ds_read_b128 v[{OFS+4}:{OFS+7}], v{W1} offset:16
    v_lshl_add_u32 v{EAD}, v{W2}, 1, v{EAC}
    s_nop 7
    """)
    chain(G0, 0, True)
    E(f"""
    s_cmp_ge_u32 s31, s30
    s_cbranch_scc1 L_k2_last0
    s_waitcnt lgkmcnt(0)
    """)
    gathers(G0, OFS)
    E(f"""
L_k2_last0r:
    v_mfma_f32_32x32x8_bf16 v[{D}:{D+15}], v[{ASEL}:{ASEL+1}], v[{XA}:{XA+1}], 0
    v_mfma_f32_16x16x4_4b_bf16 v[{D}:{D+15}], v[{EA}:{EA+1}], v[{CW}:{CW+1}], v[{D}:{D+15}] cbsz:2 abid:1
    s_waitcnt vmcnt(4)
    v_smfmac_f32_32x32x32_bf16 v[{D}:{D+15}], v[{A1}:{A1+3}], v[{G1}:{G1+7}], v{IDX}
    v_smfmac_f32_32x32x32_bf16 v[{D}:{D+15}], v[{A2}:{A2+3}], v[{G1+8}:{G1+15}], v{IDX}
    ds_read_b64 v[{EA}:{EA+1}], v{EAD}
    s_nop 10
    """)
    chain(G1, 4, False)
    E(f"""
    s_cmp_ge_u32 s31, s30
    s_cbranch_scc1 L_k2_last1
    """)
    gathers(G1, OFS+4)
    E(f"""
L_k2_last1:
    v_rcp_f32 v{P}, v{P}
    v_rcp_f32 v{P+1}, v{P+1}
    v_rcp_f32 v{P+2}, v{P+2}
    v_rcp_f32 v{P+3}, v{P+3}
    v_pk_mul_f32 v[{N}:{N+1}], v[{N}:{N+1}], v[{P}:{P+1}]
    v_pk_mul_f32 v[{N+2}:{N+3}], v[{N+2}:{N+3}], v[{P+2}:{P+3}]
    v_cvt_f64_f32 v[{T}:{T+1}], v{N}
    v_cvt_f64_f32 v[{T+2}:{T+3}], v{N+1}
    v_cvt_f64_f32 v[{T+4}:{T+5}], v{N+2}
    v_cvt_f64_f32 v[{T+6}:{T+7}], v{N+3}
    ds_add_f64 v{AG}, v[{T}:{T+1}]
    ds_add_f64 v{AG}, v[{T+2}:{T+3}] offset:128
    ds_add_f64 v{AG}, v[{T+4}:{T+5}] offset:256
    ds_add_f64 v{AG}, v[{T+6}:{T+7}] offset:384
    v_add_u32 v{AG}, v{W1+1}, v{LN4}
    s_cmp_ge_u32 s31, s30
    s_cbranch_scc1 L_k2_mdone
    ds_read_b64 v[{XA}:{XA+1}], v{AG} offset:512
    s_add_u32 s31, s31, 16
    s_branch L_k2_loop
L_k2_last0:
    s_waitcnt vmcnt(0)
    s_branch L_k2_last0r
L_k2_mdone:
    s_waitcnt lgkmcnt(0)
    """)
    STAMP(7)
    E(f"""
    s_barrier                               ; B3
    s_cmp_ge_u32 s3, 10
    s_cbranch_scc1 L_k2_edone
    v_lshrrev_b32 v2, 3, v0                 ; node
    v_and_b32 v3, 7, v0
    v_mul_u32_u24 v4, {NSTR}, v2
    v_lshl_add_u32 v4, v3, 4, v4
    v_add_u32 v4, {L_NODE}, v4
    ds_read2_b64 v[28:31], v4 offset0:0 offset1:1
    ds_read2_b64 v[32:35], v4 offset0:16 offset1:17
    ds_read2_b64 v[36:39], v4 offset0:32 offset1:33
    ds_read2_b64 v[40:43], v4 offset0:48 offset1:49
    s_mul_i32 s30, s21, {NB*256}
    s_lshl_b32 s31, s20, 7
    s_add_u32 s30, s30, s31
    v_lshlrev_b32 v3, 4, v3
    v_lshl_add_u32 v5, v2, 8, v3
    v_add_u32 v5, s30, v5
    s_mov_b32 s32, {f32(2.0**-32)}
    s_mov_b32 s34, {f32(-LOG2E * 2.0**-32)}
    s_waitcnt lgkmcnt(0)
    """)
    for i in range(8):
        E(f"v_cvt_f32_f64 v{8+i}, v[{28+2*i}:{29+2*i}]")
    for p in range(4):
        E(f"v_pk_mul_f32 v[{16+2*p}:{17+2*p}], v[{8+2*p}:{9+2*p}], s[34:35] op_sel_hi:[1,0]")
    for i in range(8):
        E(f"v_exp_f32 v{16+i}, v{16+i}")
    E(f"""
    v_pk_add_f32 v[6:7], v[8:9], v[10:11]
    v_pk_add_f32 v[24:25], v[12:13], v[14:15]
    """)
    for p in range(4):
        E(f"v_pk_add_f32 v[{16+2*p}:{17+2*p}], v[{16+2*p}:{17+2*p}], 1.0 op_sel_hi:[1,0]")
    for i in range(8):
        E(f"v_rcp_f32 v{16+i}, v{16+i}")
    for p in range(4):
        E(f"v_pk_mul_f32 v[{8+2*p}:{9+2*p}], v[{8+2*p}:{9+2*p}], s[32:33] op_sel_hi:[1,0]")
    for p in range(4):
        E(f"v_pk_mul_f32 v[{8+2*p}:{9+2*p}], v[{8+2*p}:{9+2*p}], v[{16+2*p}:{17+2*p}]")
    E(f"""
    v_cvt_pk_bf16_f32 v16, v8, v10
    v_cvt_pk_bf16_f32 v17, v12, v14
    v_cvt_pk_bf16_f32 v18, v9, v11
    v_cvt_pk_bf16_f32 v19, v13, v15
    global_store_dwordx4 v5, v[16:19], s[14:15]
    v_pk_add_f32 v[6:7], v[6:7], v[24:25]
    v_add_f32 v6, v6, v7
    v_mov_b32 v7, 0x207
    v_cmp_class_f32 vcc, v6, v7
    s_cbranch_vccz L_k2_edone
    v_mov_b32 v6, 0
    ds_write_b32 v6, v7 offset:{L_FLAG}
L_k2_edone:
    """)
    STAMP(8)
    E(f"""
    s_cmp_lg_u32 s47, 0
    s_cbranch_scc1 L_k2_fin
    s_waitcnt lgkmcnt(0)
    s_barrier                               ; B4
    v_mov_b32 v6, 0
    ds_read_b32 v6, v6 offset:{L_FLAG}
    s_waitcnt lgkmcnt(0)
    v_readfirstlane_b32 s30, v6
    s_cmp_lg_u32 s30, 0
    s_cbranch_scc1 L_k2_gosafe
L_k2_fin:
    """)
    if OPT["stamps"]:
        E("s_waitcnt vmcnt(0)"); STAMP(9); STAMP_OUT(1, 12, "s3", "k2")
    E(f"""
L_k2_end:
    s_endpgm
L_k2_gosafe:
    s_mov_b32 s47, 1
    s_waitcnt vmcnt(0) lgkmcnt(0)
    s_barrier
    s_branch L_k2_restart
    """)
    E(f"""
L_k2_safe:
    v_and_b32 v2, 15, v1
    v_lshlrev_b32 v3, 3, v2
    v_add_u32 v3, {L_C}, v3
    ds_read_b64 v[64:65], v3
    ds_read_b64 v[66:67], v3 offset:128
    ds_read_b64 v[68:69], v3 offset:256
    ds_read_b64 v[70:71], v3 offset:384
    s_waitcnt lgkmcnt(0)
    """)
    for k in range(4):
        for p in range(2):
            E(f"""
            v_lshlrev_b32 v{80+4*k+2*p}, 16, v{64+2*k+p}
            v_and_b32 v{81+4*k+2*p}, 0xffff0000, v{64+2*k+p}
            v_mul_f32 v{80+4*k+2*p}, s40, v{80+4*k+2*p}
            v_mul_f32 v{81+4*k+2*p}, s40, v{81+4*k+2*p}
            """)
    E(f"""
    v_lshrrev_b32 v24, 4, v1
    v_mul_u32_u24 v24, 3, v24               ; 3*quarter
    s_movk_i32 s33, {NSTR//4}
    v_add_u32 v25, {L_NODE}, v{LN4}
    s_lshl_b32 s30, s21, 10
    s_lshl_b32 s31, s3, 6
    s_add_u32 s30, s30, s31
    s_add_u32 s30, s30, {WS_OFF}
    s_add_u32 s31, s30, 64
L_k2_scell:
    v_mov_b32 v26, s30
    global_load_dword v27, v26, s[16:17]
    s_waitcnt vmcnt(0)
    v_and_b32 v28, 0xfff, v27               ; 3*count
    v_lshrrev_b32 v27, 12, v27
    v_mov_b32 v29, v24
L_k2_srec:
    v_cmp_gt_u32 vcc, v28, v29
    s_and_saveexec_b64 s[48:49], vcc
    s_cbranch_execz L_k2_snext
    v_add_lshl_u32 v30, v27, v29, 2
    global_load_dwordx3 v[32:34], v30, s[18:19]
    s_waitcnt vmcnt(0)
    v_and_b32 v30, 0x3fffff, v34
    v_add_u32 v30, v30, v{LN16}
    buffer_load_dwordx4 v[36:39], v30, s[36:39], 0 offen
    v_lshrrev_b32 v31, 22, v34
    v_mad_u32_u24 v31, v31, s33, v25
    ds_read_b64 v[40:41], v31 offset:512
    v_lshlrev_b32 v44, 16, v32
    v_and_b32 v45, 0xffff0000, v32
    v_lshlrev_b32 v46, 16, v33
    v_and_b32 v47, 0xffff0000, v33
    s_waitcnt vmcnt(0) lgkmcnt(0)
    v_lshlrev_b32 v48, 16, v40
    v_and_b32 v49, 0xffff0000, v40
    v_lshlrev_b32 v50, 16, v41
    v_and_b32 v51, 0xffff0000, v41
    """)
    for s in range(4):
        E(f"v_lshlrev_b32 v52, 16, v{36+s}\nv_add_f32 v{48+s}, v{48+s}, v52")
        for k in range(4):
            E(f"v_fmac_f32 v{48+s}, v{44+k}, v{80+4*k+s}")
    for s in range(4): E(f"v_exp_f32 v{48+s}, v{48+s}")
    E("s_nop 0")
    for s in range(4): E(f"v_add_f32 v{48+s}, 1.0, v{48+s}")
    for s in range(4): E(f"v_rcp_f32 v{48+s}, v{48+s}")
    E("s_nop 0")
    for s in range(4): E(f"v_mul_f32 v{48+s}, v{48+s}, v{36+s}")
    for s in range(4): E(f"v_cvt_f64_f32 v[{54+2*s}:{55+2*s}], v{48+s}")
    for s in range(4): E(f"ds_add_f64 v31, v[{54+2*s}:{55+2*s}] offset:{128*s}")
    E(f"""
    s_mov_b64 exec, s[48:49]
    v_add_u32 v29, 12, v29
    s_branch L_k2_srec
L_k2_snext:
    s_mov_b64 exec, s[48:49]
    s_add_u32 s30, s30, 4
    s_cmp_lt_u32 s30, s31
    s_cbranch_scc1 L_k2_scell
    s_branch L_k2_mdone
    """)

header()
k1()
k2()
E('.section .rodata,"a"\n.p2align 6')
descriptor("mpnn_prep_kernel", 120)
E(".p2align 6")
descriptor("standalone__edge_featured_mpnn_egc__graph_kernel", 128)
text = "\n".join(l.lstrip() if l.lstrip().startswith(";") else l for l in out) + "\n"
open(sys.argv[1], "w").write(text)
```

```python
import sys, struct

OPT = dict(stamps=0, force_safe=0, nogather=0, nochain=0, nomfma=0, noadd=0, nosafe=0, dummy=0)
for a in sys.argv[2:]:
    k, v = a.split("=")
    OPT[k] = int(v)

out = []
def E(s=""):
    for line in s.split("\n"):
        line = line.strip()
        if not line:
            continue
        if line.endswith(":") or line.startswith("."):
            out.append(line)
        else:
            out.append("    " + line)

def f32(x):
    return "0x%08x" % struct.unpack("<I", struct.pack("<f", x))[0]

LOG2E = 1.4426950408889634
NB = 80
NBUCK = 125
CHUNK = 1280
NCHUNK = 250
WS_G = 0
G_HALF = 10000 * 256
WS_REC = 0x500000
REC_BYTES = NCHUNK * CHUNK * 12
WS_OFF = 0x900000
WS_STAMP = 0x1000000

nstamp = [0]
def STAMP(i):
    if OPT["stamps"]:
        E(f"s_memrealtime s[{64+2*i}:{65+2*i}]\ns_waitcnt lgkmcnt(0)")
def STAMP_OUT(kern, n, swave, label):
    if OPT["stamps"]:
        E(f"""
        s_load_dwordx2 s[60:61], s[0:1], 72
        s_lshl_b32 s62, s2, 4
        s_add_u32 s62, s62, {swave}
        s_lshl_b32 s62, s62, 6
        s_add_u32 s62, s62, {WS_STAMP + kern * 0x40000}
        s_mov_b64 exec, -1
        v_mov_b32 v1, s62
        s_waitcnt lgkmcnt(0)""")
        for i in range(n):
            E(f"v_mov_b32 v2, s{64+2*i}\nglobal_store_dword v1, v2, s[60:61] offset:{4*i}")
        E("s_waitcnt vmcnt(0)")
def STAMP_INIT(n):
    if OPT["stamps"]:
        for i in range(n):
            E(f"s_mov_b64 s[{64+2*i}:{65+2*i}], 0")

def header():
    E(f"""
; @launch kernel=mpnn_prep_kernel grid=(256,1,1) block=(832,1,1) lds={K1_LDS}
; @launch kernel=standalone__edge_featured_mpnn_egc__graph_kernel grid=(256,1,1) block=(1024,1,1) lds={K2_LDS}
""")
    for i in range(OPT["dummy"]):
        E("; @launch kernel=mpnn_nop_kernel grid=(256,1,1) block=(64,1,1) lds=0")
    E(""".amdgcn_target "amdgcn-amd-amdhsa--gfx950"
.text""")

def kernel_start(name):
    E(f""".globl {name}
.p2align 8
.type {name},@function
{name}:""")

def descriptor(name, vgpr, sgpr=96):
    E(f""".amdhsa_kernel {name}
.amdhsa_next_free_vgpr {vgpr}
.amdhsa_next_free_sgpr {sgpr}
.amdhsa_accum_offset {(vgpr+3)//4*4}
.amdhsa_group_segment_fixed_size 0
.amdhsa_kernarg_size 80
.amdhsa_user_sgpr_count 2
.amdhsa_user_sgpr_kernarg_segment_ptr 1
.amdhsa_system_sgpr_workgroup_id_x 1
.end_amdhsa_kernel""")

def gemm_stage(LW, LX, tag):
    E(f"""
    v_lshrrev_b32 v2, 3, v1
    v_bfe_u32 v3, v1, 4, 1                  ; (row>>1)&1
    s_and_b32 s30, s3, 1
    s_lshl_b32 s30, s30, 1
    v_or_b32 v3, s30, v3                    ; sigma
    v_lshlrev_b32 v3, 1, v3
    v_and_b32 v4, 7, v1
    v_xor_b32 v3, v3, v4
    v_lshlrev_b32 v3, 4, v3
    v_lshl_add_u32 v3, v2, 8, v3
    s_lshl_b32 s30, s3, 11                  ; 8*i rows * 256
    s_lshl_b32 s31, s20, 7
    s_add_u32 s30, s30, s31
    v_add_u32 v3, s30, v3
    v_add_u32 v5, 0x4000, v3                ; piece i = w+8
    s_and_b32 s22, s3, 3                    ; tau
    s_lshr_b32 s23, s3, 2                   ; rg
    v_lshrrev_b32 v6, 4, v1
    s_lshl_b32 s30, s22, 2
    v_add_u32 v6, s30, v6                   ; row&15
    v_and_b32 v7, 15, v1
    v_xor_b32 v7, v7, v6
    v_lshlrev_b32 v7, 4, v7
    v_lshl_add_u32 v7, v6, 8, v7
    s_mul_i32 s30, s21, {NB*256}
    s_mul_i32 s31, s23, {3*4096}
    s_add_u32 s30, s30, s31
    v_add_u32 v7, s30, v7
    v_add_u32 v8, 0x1000, v7
    v_add_u32 v9, 0x2000, v7
    s_lshl_b32 s30, s22, 10
    s_add_u32 s31, s31, s30
    s_add_u32 s31, s31, {LX}
    s_lshl_b32 s30, s3, 10
    s_add_u32 s30, s30, {LW}
    s_waitcnt lgkmcnt(0)
    """)
    yield
    E(f"""
    s_mov_b32 m0, s31
    s_add_u32 s31, s31, 0x1000
    global_load_lds_dwordx4 v7, s[28:29]
    s_mov_b32 m0, s31
    s_add_u32 s31, s31, 0x1000
    global_load_lds_dwordx4 v8, s[28:29]
    s_cmp_lg_u32 s23, 0
    s_cbranch_scc1 L_{tag}_x2
    s_mov_b32 m0, s31
    s_nop 0
    global_load_lds_dwordx4 v9, s[28:29]
L_{tag}_x2:
    s_mov_b32 m0, s30
    s_add_u32 s30, s30, 0x2000
    global_load_lds_dwordx4 v3, s[24:25]
    s_mov_b32 m0, s30
    s_add_u32 s30, s30, 0x2000
    global_load_lds_dwordx4 v5, s[24:25]
    s_mov_b32 m0, s30
    s_add_u32 s30, s30, 0x2000
    global_load_lds_dwordx4 v3, s[26:27]
    s_mov_b32 m0, s30
    s_nop 0
    global_load_lds_dwordx4 v5, s[26:27]
    """)
    yield

def gemm_addr(LW, LX):
    E(f"""
    v_lshrrev_b32 v2, 4, v1                 ; g
    v_bfe_u32 v3, v1, 2, 2                  ; r
    v_lshl_add_u32 v4, v2, 3, v3            ; 8g + r
    v_lshrrev_b32 v3, 1, v3                 ; r>>1
    v_and_b32 v5, 1, v2
    v_lshl_or_b32 v3, v5, 1, v3             ; sigma
    v_xor_b32 v3, s22, v3
    v_lshlrev_b32 v3, 5, v3
    v_lshl_add_u32 v10, v4, 7, v3
    v_and_b32 v3, 3, v1
    v_lshl_add_u32 v10, v3, 3, v10
    v_add_u32 v10, {LW}, v10
    v_and_b32 v4, 15, v1                    ; row
    v_xor_b32 v3, v2, v4
    v_lshlrev_b32 v3, 4, v3
    v_lshl_add_u32 v12, v4, 8, v3
    s_mul_i32 s30, s23, {3*4096}
    s_add_u32 s30, s30, {LX}
    v_xor_b32 v13, 64, v12
    v_xor_b32 v14, 0x80, v12
    v_xor_b32 v15, 0xc0, v12
    v_add_u32 v12, s30, v12
    v_add_u32 v13, s30, v13
    v_add_u32 v14, s30, v14
    v_add_u32 v15, s30, v15
    """)

WF = 16
XF = 48
AC = 96
def gemm_reads():
    for ks in range(4):
        E(f"ds_read_b128 v[{XF+4*ks}:{XF+4*ks+3}], v{12+ks}")
        for t in range(2):
            for rd in range(2):
                r = WF + 16*t + 4*ks + 2*rd
                E(f"ds_read_b64_tr_b16 v[{r}:{r+1}], v10 offset:{t*16384 + ks*4096 + rd*512}")
def gemm_xreads(rt):
    for ks in range(4):
        r = XF + 16*rt + 4*ks
        E(f"ds_read_b128 v[{r}:{r+3}], v{12+ks} offset:{rt*4096}")
def gemm_mfma(rt, transposed, ks_list=range(4)):
    for ks in ks_list:
        for t in range(2):
            a = XF + 16*rt + 4*ks; w = WF + 16*t + 4*ks; d = AC + 8*rt + 4*t
            c = "0" if ks == 0 else f"v[{d}:{d+3}]"
            if transposed:
                E(f"v_mfma_f32_16x16x32_bf16 v[{d}:{d+3}], v[{w}:{w+3}], v[{a}:{a+3}], {c}")
            else:
                E(f"v_mfma_f32_16x16x32_bf16 v[{d}:{d+3}], v[{a}:{a+3}], v[{w}:{w+3}], {c}")

K1_W = 0; K1_X = 32768; K1_CNT = 53248; K1_OFFS = 53760; K1_SORT = 54272
K1_LDS = K1_SORT + CHUNK * 12

def k1():
    kernel_start("mpnn_prep_kernel")
    STAMP_INIT(8)
    E(f"""
    s_cmp_ge_u32 s2, 256
    s_cbranch_scc1 L_k1_end
    v_lshrrev_b32 v2, 6, v0
    v_and_b32 v1, 63, v0
    v_readfirstlane_b32 s3, v2
    """)
    STAMP(0)
    E(f"""
    s_load_dwordx8 s[4:11], s[0:1], 0
    s_load_dwordx4 s[12:15], s[0:1], 40     ; v_w, g_w
    s_load_dwordx2 s[16:17], s[0:1], 72     ; ws
    s_cmp_ge_u32 s3, 8
    s_cbranch_scc1 L_k1_sort
    s_lshr_b32 s30, s2, 3
    s_and_b32 s20, s30, 1                   ; half
    s_lshr_b32 s30, s30, 1
    s_lshl_b32 s30, s30, 3
    s_and_b32 s31, s2, 7
    s_add_u32 s21, s30, s31
    s_cmp_ge_u32 s21, {NBUCK}
    s_cbranch_scc1 L_k1_end
    """)
    st = gemm_stage(K1_W, K1_X, "k1")
    next(st)
    E(f"""
    s_add_u32 s24, s14, {128*256}           ; B = g_w rows 128..255
    s_addc_u32 s25, s15, 0
    s_mov_b64 s[26:27], s[12:13]            ; V
    s_mov_b64 s[28:29], s[4:5]
    """)
    next(st)
    STAMP(1)
    E("s_barrier                               ; B0")
    gemm_addr(K1_W, K1_X)
    E(f"""
    v_lshlrev_b32 v11, 10, v2
    v_lshl_add_u32 v11, v4, 2, v11
    s_lshl_b32 s30, s22, 6
    v_add_u32 v11, s30, v11
    s_mul_i32 s32, s20, {G_HALF}
    s_mul_i32 s30, s21, {NB*256}
    s_add_u32 s32, s32, s30
    s_mul_i32 s30, s23, {3*4096}
    s_add_u32 s32, s32, s30
    s_add_u32 s33, s32, 0x1000
    s_add_u32 s34, s32, 0x2000
    s_mov_b32 s36, s16
    s_mov_b32 s37, s17
    s_mov_b32 s38, {2*G_HALF}
    s_mov_b32 s39, 0x20000
    s_mov_b32 s40, {f32(LOG2E)}
    s_mov_b32 s42, {f32(2.0**32)}
    s_mov_b32 s44, 0x07060100
    s_mov_b32 s45, 0x07060302
    v_mov_b32 v8, {f32(2.0**-100)}
    s_waitcnt vmcnt(0)
    """)
    STAMP(2)
    E("s_barrier                               ; B1")
    STAMP(3)
    gemm_reads()
    gemm_xreads(1)
    E("s_waitcnt lgkmcnt(4)")
    gemm_mfma(0, False)
    E("s_cmp_lg_u32 s23, 0\ns_cbranch_scc1 L_k1_g1")
    gemm_xreads(2)
    E("s_waitcnt lgkmcnt(4)")
    E("L_k1_g1b:")
    gemm_mfma(1, False)
    E("s_barrier                               ; B2")
    def pack(rt, soff):
        b = AC + 8*rt; h = b + 4
        E(f"""
        v_pk_mul_f32 v[{b}:{b+1}], v[{b}:{b+1}], s[40:41] op_sel_hi:[1,0]
        v_pk_mul_f32 v[{b+2}:{b+3}], v[{b+2}:{b+3}], s[40:41] op_sel_hi:[1,0]
        v_pk_fma_f32 v[{h}:{h+1}], v[{h}:{h+1}], s[42:43], v[8:9] op_sel_hi:[1,0,0]
        v_pk_fma_f32 v[{h+2}:{h+3}], v[{h+2}:{h+3}], s[42:43], v[8:9] op_sel_hi:[1,0,0]
        v_cvt_pk_bf16_f32 v2, v{b}, v{b+1}
        v_cvt_pk_bf16_f32 v3, v{b+2}, v{b+3}
        v_xor_b32 v4, 0x80008000, v2
        v_xor_b32 v5, 0x80008000, v3
        v_sub_u32_sdwa v{h}, v{h}, sext(v2) dst_sel:DWORD dst_unused:UNUSED_PAD src0_sel:DWORD src1_sel:WORD_0
        v_sub_u32_sdwa v{h+1}, v{h+1}, sext(v2) dst_sel:DWORD dst_unused:UNUSED_PAD src0_sel:DWORD src1_sel:WORD_1
        v_sub_u32_sdwa v{h+2}, v{h+2}, sext(v3) dst_sel:DWORD dst_unused:UNUSED_PAD src0_sel:DWORD src1_sel:WORD_0
        v_sub_u32_sdwa v{h+3}, v{h+3}, sext(v3) dst_sel:DWORD dst_unused:UNUSED_PAD src0_sel:DWORD src1_sel:WORD_1
        v_perm_b32 v{h}, v{h}, v4, s44
        v_perm_b32 v{h+1}, v{h+1}, v4, s45
        v_perm_b32 v{h+2}, v{h+2}, v5, s44
        v_perm_b32 v{h+3}, v{h+3}, v5, s45
        """)
        for r in range(4):
            E(f"buffer_store_dword v{h+r}, v11, s[36:39], s{soff} offen offset:{256*r}")
    pack(0, 32)
    E("s_cmp_lg_u32 s23, 0\ns_cbranch_scc1 L_k1_g2\ns_waitcnt lgkmcnt(0)")
    gemm_mfma(2, False)
    pack(1, 33)
    pack(2, 34)
    STAMP(4)
    if OPT["stamps"]:
        E("s_waitcnt vmcnt(0)"); STAMP(5); STAMP_OUT(0, 8, "s3", "a")
    E("s_endpgm")
    E("L_k1_g1:\ns_waitcnt lgkmcnt(0)\ns_branch L_k1_g1b")
    E("L_k1_g2:")
    pack(1, 33)
    STAMP(4)
    if OPT["stamps"]:
        E("s_waitcnt vmcnt(0)"); STAMP(5); STAMP_OUT(0, 8, "s3", "b")
    E("s_endpgm")
    E(f"""
L_k1_sort:
    s_and_b32 s30, s2, 7
    s_lshl_b32 s30, s30, 5
    s_lshr_b32 s31, s2, 3
    s_add_u32 s30, s30, s31
    s_lshl_b32 s30, s30, 2
    s_add_u32 s30, s30, {WS_OFF}
    v_lshlrev_b32 v30, 11, v1
    v_add_u32 v30, s30, v30
    v_mov_b32 v20, 0
    v_mov_b32 v21, 0
    s_cmp_ge_u32 s2, {NCHUNK}
    s_cbranch_scc1 L_k1_nochunk
    v_subrev_u32 v2, 512, v0                ; t = 0..319
    s_mul_i32 s30, s2, {CHUNK*4}
    v_lshl_add_u32 v3, v2, 4, s30
    v_lshlrev_b32 v22, 1, v3
    v_lshlrev_b32 v31, 3, v1
    s_waitcnt lgkmcnt(0)
    global_load_dwordx4 v[4:7], v3, s[10:11]
    global_load_dwordx4 v[8:11], v3, s[8:9]
    global_load_dwordx4 v[12:15], v22, s[6:7]
    global_load_dwordx4 v[16:19], v22, s[6:7] offset:16
    ds_write_b64 v31, v[20:21] offset:{K1_CNT}
    v_mov_b32 v20, 3
    s_mov_b32 s31, 52429
    s_movk_i32 s32, -20
    v_lshlrev_b32 v33, 4, v2
    s_mul_i32 s30, s2, {CHUNK*12}
    s_add_u32 s30, s30, {WS_REC}
    v_add_u32 v32, s30, v33
    v_add_u32 v34, 5120, v32
    v_add_u32 v35, 10240, v32
    s_waitcnt lgkmcnt(0)
    """)
    STAMP(1)
    E(f"""
    s_barrier                               ; B0
    s_waitcnt vmcnt(3)
    """)
    for i in range(4):
        E(f"""
        v_mul_u32_u24 v{22+i}, s31, v{4+i}
        v_lshrrev_b32 v{22+i}, 22, v{22+i}
        v_lshlrev_b32 v{22+i}, 2, v{22+i}        ; bucket*4
        ds_add_rtn_u32 v{26+i}, v{22+i}, v20 offset:{K1_CNT}
        """)
    for i in range(4):
        E(f"""
        v_mad_i32_i24 v{4+i}, v{22+i}, s32, v{4+i}
        v_lshlrev_b32 v{4+i}, 24, v{4+i}
        """)
    E("s_waitcnt lgkmcnt(0)")
    STAMP(2)
    E(f"""
    s_barrier                               ; B1
    ds_read_b64 v[36:37], v31 offset:{K1_CNT}
    s_waitcnt vmcnt(2)
    """)
    for i in range(4):
        E(f"v_lshl_or_b32 v{4+i}, v{8+i}, 8, v{4+i}")
    E(f"""
    s_waitcnt lgkmcnt(0)
    v_add_u32 v38, v36, v37
    v_mov_b32 v39, v38
    s_nop 1
    v_add_u32_dpp v39, v39, v39 row_shr:1 row_mask:0xf bank_mask:0xf bound_ctrl:0
    s_nop 1
    v_add_u32_dpp v39, v39, v39 row_shr:2 row_mask:0xf bank_mask:0xf bound_ctrl:0
    s_nop 1
    v_add_u32_dpp v39, v39, v39 row_shr:4 row_mask:0xf bank_mask:0xf bound_ctrl:0
    s_nop 1
    v_add_u32_dpp v39, v39, v39 row_shr:8 row_mask:0xf bank_mask:0xf bound_ctrl:0
    s_nop 1
    v_add_u32_dpp v39, v39, v39 row_bcast:15 row_mask:0xa bank_mask:0xf
    s_nop 1
    v_add_u32_dpp v39, v39, v39 row_bcast:31 row_mask:0xc bank_mask:0xf
    v_sub_u32 v40, v39, v38
    v_add_u32 v40, {K1_SORT//4}, v40
    v_add_u32 v41, v40, v36
    ds_write_b64 v31, v[40:41] offset:{K1_OFFS}
    """)
    for i in range(4):
        E(f"ds_read_b32 v{22+i}, v{22+i} offset:{K1_OFFS}")
    E(f"""
    s_mul_i32 s30, s2, {CHUNK*3}
    s_sub_u32 s30, s30, {K1_SORT//4}
    v_add_u32 v40, s30, v40
    v_add_u32 v41, s30, v41
    v_lshl_or_b32 v20, v40, 12, v36
    v_lshl_or_b32 v21, v41, 12, v37
    s_waitcnt vmcnt(0)
    s_cmp_lg_u32 s3, 12
    s_cbranch_scc1 L_k1_nooff
    global_store_dword v30, v20, s[16:17]
    global_store_dword v30, v21, s[16:17] offset:1024
L_k1_nooff:
    """)
    for i in range(4):
        E(f"""
        s_waitcnt lgkmcnt({3 + i})
        v_add_lshl_u32 v{22+i}, v{22+i}, v{26+i}, 2
        ds_write_b32 v{22+i}, v{4+i} offset:8
        ds_write2_b32 v{22+i}, v{12+2*i}, v{13+2*i} offset0:0 offset1:1
        """)
    E("s_waitcnt lgkmcnt(0)")
    STAMP(3)
    E(f"""
    s_barrier                               ; B2
    ds_read_b128 v[4:7], v33 offset:{K1_SORT}
    ds_read_b128 v[8:11], v33 offset:{K1_SORT+5120}
    ds_read_b128 v[12:15], v33 offset:{K1_SORT+10240}
    s_waitcnt lgkmcnt(2)
    global_store_dwordx4 v32, v[4:7], s[16:17]
    s_waitcnt lgkmcnt(1)
    global_store_dwordx4 v34, v[8:11], s[16:17]
    s_waitcnt lgkmcnt(0)
    global_store_dwordx4 v35, v[12:15], s[16:17]
    """)
    STAMP(4)
    if OPT["stamps"]:
        E("s_waitcnt vmcnt(0)"); STAMP(5); STAMP_OUT(0, 8, "s3", "c")
    E(f"""
    s_endpgm
L_k1_nochunk:
    s_cmp_lg_u32 s3, 12
    s_cbranch_scc1 L_k1_end
    s_waitcnt lgkmcnt(0)
    global_store_dword v30, v20, s[16:17]
    global_store_dword v30, v21, s[16:17] offset:1024
L_k1_end:
    s_endpgm
    """)

L_CNT = 0; L_LCNT = 512; L_FLAG = 516
L_LIST = 1024
L_SRC = 6656
L_EA = L_SRC + 81*256
L_NODE = L_EA + 81*512
NSTR = 648
L_W = L_NODE; L_X = L_W + 32768; L_C = L_X + 20480
L_DUM = L_C + 1024
K2_LDS = L_DUM + 1024
assert L_NODE + 80*NSTR <= L_C and K2_LDS <= 163840
NULL_SRC = 0x7fffff00

A1, A2, IDX, LN4, LN16, ASEL, CW, EAC = 4, 8, 12, 13, 14, 16, 18, 20
LP, W1, W2, AG, EAD, EA, XA, OFS, T, N, P, D, G0, G1 = 22, 24, 26, 27, 28, 30, 32, 36, 44, 52, 56, 64, 80, 96

def main_consts():
    E(f"""
    v_and_b32 v2, 15, v1                    ; n'
    v_lshlrev_b32 v{LN4}, 3, v2
    v_lshlrev_b32 v{LN16}, 4, v2
    v_lshlrev_b32 v{LN16+1}, 4, v2
    v_mov_b32 v{IDX}, 0x8888
    v_bfe_u32 v60, v1, 3, 2                 ; s = (l&31)>>3
    v_bfe_u32 v61, v1, 2, 1                 ; h = (l>>2)&1
    v_lshrrev_b32 v62, 5, v1                ; ha
    v_and_b32 v63, 3, v1                    ; q
    v_and_b32 v2, 1, v60
    v_lshlrev_b32 v2, 4, v2
    v_lshlrev_b32 v2, v2, s46
    v_lshrrev_b32 v60, 1, v60               ; s>>1
    v_lshl_add_u32 v3, v61, 1, v60
    v_sub_u32 v63, v63, v62                 ; q - ha : 0 -> A1, 2 -> A2
    v_lshl_add_u32 v3, v63, 1, v3
    v_and_b32 v63, 1, v63
    v_lshl_or_b32 v3, v63, 4, v3
    v_xor_b32 v61, v61, v62
    v_lshl_or_b32 v60, v61, 4, v60
    """)
    for i in range(8):
        E(f"v_cmp_eq_u32 s[{48+2*(i%4)}:{49+2*(i%4)}], {i}, v3")
        if i % 4 == 3:
            for j in range(i-3, i+1):
                E(f"v_cndmask_b32 v{A1+j}, 0, v2, s[{48+2*(j%4)}:{49+2*(j%4)}]")
    E(f"""
    v_cmp_eq_u32 s[48:49], 0, v60
    v_cmp_eq_u32 s[50:51], 1, v60
    v_bfe_u32 v61, v1, 4, 1
    v_and_b32 v63, 3, v1
    v_cndmask_b32 v{ASEL}, 0, v2, s[48:49]
    v_cndmask_b32 v{ASEL+1}, 0, v2, s[50:51]
    v_lshl_add_u32 v61, v61, 2, v63
    v_lshlrev_b32 v61, 3, v61
    v_add_u32 v{EAC}, {L_EA - 2*L_SRC}, v61
    s_lshl_b32 s30, s3, 5
    s_add_u32 s30, s30, {L_LIST}
    v_lshrrev_b32 v2, 4, v1
    v_lshl_add_u32 v{LP}, v2, 3, s30
    v_bfe_u32 v2, v1, 2, 2
    v_lshl_add_u32 v{LP+1}, v2, 3, s30
    """)

def cw_reads():
    E(f"""
    v_and_b32 v2, 15, v1
    v_lshrrev_b32 v3, 4, v1
    v_lshl_add_u32 v2, v2, 2, v3
    v_lshlrev_b32 v2, 1, v2
    v_add_u32 v2, {L_C}, v2
    ds_read_u16 v60, v2
    ds_read_u16 v61, v2 offset:128
    ds_read_u16 v62, v2 offset:256
    ds_read_u16 v63, v2 offset:384
    """)
def cw_finish():
    E(f"""
    v_lshlrev_b32 v60, 16, v60
    v_lshlrev_b32 v61, 16, v61
    v_lshlrev_b32 v62, 16, v62
    v_lshlrev_b32 v63, 16, v63
    v_pk_mul_f32 v[60:61], v[60:61], s[40:41] op_sel_hi:[1,0]
    v_pk_mul_f32 v[62:63], v[62:63], s[40:41] op_sel_hi:[1,0]
    v_cvt_pk_bf16_f32 v{CW}, v60, v61
    v_cvt_pk_bf16_f32 v{CW+1}, v62, v63
    """)

def prefill():
    E(f"""
    v_mov_b32 v100, 0
    v_mov_b32 v101, 0
    v_mov_b32 v102, 0
    v_mov_b32 v103, 0
    v_lshlrev_b32 v112, 4, v0
    v_add_u32 v113, {L_EA}, v112
    ds_write_b128 v113, v[100:103]
    ds_write_b128 v113, v[100:103] offset:16384
    ds_write_b128 v113, v[100:103] offset:{81*512 - 16384}
    v_mov_b32 v104, {NULL_SRC}
    v_mov_b32 v105, {NULL_SRC}
    v_mov_b32 v106, {NULL_SRC}
    v_mov_b32 v107, {NULL_SRC}
    ds_write_b128 v112, v[104:107] offset:{L_SRC}
    v_mov_b32 v108, {L_SRC + 80*256}
    v_mov_b32 v109, {L_DUM}
    v_mov_b32 v110, {L_SRC + 80*256}
    v_mov_b32 v111, {L_DUM}
    s_cmp_ge_u32 s3, 6
    s_cbranch_scc1 L_k2_pf1
    v_cmp_gt_u32 vcc, {(81*256 - 16384)//16}, v0
    s_and_saveexec_b64 s[48:49], vcc
    ds_write_b128 v112, v[104:107] offset:{L_SRC + 16384}
    s_mov_b64 exec, s[48:49]
    v_cmp_gt_u32 vcc, {(L_SRC - L_LIST)//16}, v0
    s_and_saveexec_b64 s[48:49], vcc
    ds_write_b128 v112, v[108:111] offset:{L_LIST}
    s_mov_b64 exec, s[48:49]
    s_branch L_k2_pf2
L_k2_pf1:
    s_cmp_ge_u32 s3, 8
    s_cbranch_scc1 L_k2_pf2
    v_subrev_u32 v114, 384, v0              ; 0..127
    v_lshlrev_b32 v115, 2, v114
    v_lshlrev_b32 v114, 8, v114
    v_add_u32 v114, {L_SRC}, v114
    ds_write_b32 v115, v114 offset:{L_CNT}
    v_add_u32 v115, {L_DUM + 256}, v115
    ds_write_b32 v115, v100
    v_mov_b32 v116, {L_LIST}
    v_mov_b32 v117, 0
    ds_write_b64 v100, v[116:117] offset:{L_LCNT}
L_k2_pf2:
    """)

def chain(G, q0, first):
    def exps(q):
        t = T + 4*(q & 1)
        return [f"v_exp_f32 v{t+s}, v{D+4*s+q}" for s in range(4)]
    def steps(q):
        t = T + 4*(q & 1); h = G + 4*q
        if first and q == 0:
            return [f"v_pk_add_f32 v[{P+2*p}:{P+2*p+1}], v[{t+2*p}:{t+2*p+1}], 1.0 op_sel_hi:[1,0]" for p in range(2)]
        r = []
        for p in range(2):
            n = f"v[{G+2*p}:{G+2*p+1}]" if (first and q == 1) else f"v[{N+2*p}:{N+2*p+1}]"
            r.append(f"v_pk_fma_f32 v[{N+2*p}:{N+2*p+1}], {n}, v[{t+2*p}:{t+2*p+1}], {n}")
        for p in range(2):
            r.append(f"v_pk_fma_f32 v[{N+2*p}:{N+2*p+1}], v[{h+2*p}:{h+2*p+1}], v[{P+2*p}:{P+2*p+1}], v[{N+2*p}:{N+2*p+1}]")
        for p in range(2):
            r.append(f"v_pk_fma_f32 v[{P+2*p}:{P+2*p+1}], v[{P+2*p}:{P+2*p+1}], v[{t+2*p}:{t+2*p+1}], v[{P+2*p}:{P+2*p+1}]")
        return r
    if OPT["nochain"]: return
    for x in exps(0): E(x)
    for q in range(4):
        nx = exps(q+1) if q < 3 else ["s_nop 0"]
        st = steps(q)
        seq = []
        while nx or st:
            if nx: seq.append(nx.pop(0))
            if st: seq.append(st.pop(0))
            if st: seq.append(st.pop(0))
        for x in seq: E(x)

def gathers(G, o):
    E(f"""
    v_lshl_add_u64 v[{o}:{o+1}], v[{o}:{o+1}], 0, v[{LN16}:{LN16+1}]
    v_lshl_add_u64 v[{o+2}:{o+3}], v[{o+2}:{o+3}], 0, v[{LN16}:{LN16+1}]
    """)
    for q in range(4):
        if not OPT["nogather"]:
            E(f"buffer_load_dwordx4 v[{G+4*q}:{G+4*q+3}], v{o+q}, s[36:39], 0 offen")

def k2():
    kernel_start("standalone__edge_featured_mpnn_egc__graph_kernel")
    STAMP_INIT(12)
    E(f"""
    s_and_b32 s20, s2, 1                    ; half
    s_bfe_u32 s30, s2, 0x20001              ; (id>>1)&3
    s_lshl_b32 s30, s30, 5
    s_lshr_b32 s31, s2, 3
    s_add_u32 s21, s30, s31                 ; bucket
    s_cmp_ge_u32 s2, 256
    s_cbranch_scc1 L_k2_end
    s_cmp_ge_u32 s21, {NBUCK}
    s_cbranch_scc1 L_k2_end
    s_mov_b32 s47, {OPT["force_safe"]}
    v_lshrrev_b32 v2, 6, v0
    v_and_b32 v1, 63, v0
    v_readfirstlane_b32 s3, v2
    """)
    STAMP(0)
    E(f"""
L_k2_restart:
    s_load_dwordx2 s[28:29], s[0:1], 0      ; x
    s_load_dwordx2 s[26:27], s[0:1], 32     ; u_w
    s_load_dwordx4 s[12:15], s[0:1], 48     ; g_w, out
    s_load_dwordx2 s[16:17], s[0:1], 72     ; ws
    s_mov_b32 s40, {f32(-LOG2E)}
    s_mov_b32 s42, {f32(2.0**32)}
    s_mov_b32 s46, 0x3f80
    s_mov_b32 s44, 512
    s_mov_b32 s45, 512
    s_cmp_ge_u32 s3, 8
    s_cbranch_scc1 L_k2_rec
    """)
    st = gemm_stage(L_W, L_X, "k2")
    next(st)
    E(f"""
    s_mov_b64 s[24:25], s[12:13]            ; A = g_w rows 0..127
    """)
    next(st)
    E(f"""
    s_cmp_lg_u32 s3, 7
    s_cbranch_scc1 L_k2_noc
    v_bfe_u32 v2, v1, 3, 2
    v_and_b32 v3, 7, v1
    v_lshlrev_b32 v3, 4, v3
    v_lshl_add_u32 v2, v2, 8, v3
    s_lshl_b32 s30, s20, 7
    s_add_u32 s30, s30, {256*256}
    v_add_u32 v2, s30, v2
    s_mov_b32 m0, {L_C}
    s_nop 0
    global_load_lds_dwordx4 v2, s[24:25]
L_k2_noc:
    s_branch L_k2_pf
L_k2_rec:
    s_lshl_b32 s30, s21, 10
    s_sub_u32 s31, s3, 8
    s_lshl_b32 s31, s31, 7
    s_add_u32 s30, s30, s31
    s_add_u32 s30, s30, {WS_OFF}
    v_lshrrev_b32 v2, 4, v1
    v_lshl_add_u32 v2, v2, 5, s30
    s_waitcnt lgkmcnt(0)
    global_load_dwordx4 v[64:67], v2, s[16:17]
    global_load_dwordx4 v[68:71], v2, s[16:17] offset:16
L_k2_pf:
    """)
    STAMP(1)
    prefill()
    E(f"""
    s_mul_i32 s30, s20, {G_HALF}
    s_add_u32 s36, s16, s30
    s_addc_u32 s37, s17, 0
    s_mov_b32 s38, {G_HALF}
    s_mov_b32 s39, 0x20000
    s_add_u32 s18, s16, {WS_REC}
    s_addc_u32 s19, s17, 0
    s_cmp_ge_u32 s3, 8
    s_cbranch_scc1 L_k2_rec2
    """)
    gemm_addr(L_W, L_X)
    E(f"""
    s_mul_i32 s30, s23, {48*NSTR}
    s_lshl_b32 s31, s22, 5
    s_add_u32 s30, s30, s31
    s_add_u32 s30, s30, {L_NODE}
    v_mul_u32_u24 v11, {NSTR}, v4
    v_lshl_add_u32 v11, v2, 3, v11
    v_add_u32 v11, s30, v11
    s_waitcnt vmcnt(0) lgkmcnt(0)
    """)
    STAMP(2)
    E("s_barrier                               ; B1")
    STAMP(3)
    gemm_reads()
    gemm_xreads(1)
    E("s_waitcnt lgkmcnt(4)")
    gemm_mfma(0, True)
    E("s_cmp_lg_u32 s23, 0\ns_cbranch_scc1 L_k2_g1")
    gemm_xreads(2)
    E("L_k2_g1:\ns_waitcnt lgkmcnt(0)\ns_barrier")
    gemm_mfma(1, True)
    def fin(rt):
        a = AC + 8*rt; u = a + 4
        E(f"""
        v_pk_mul_f32 v[{a}:{a+1}], v[{a}:{a+1}], s[40:41] op_sel_hi:[1,0]
        v_pk_mul_f32 v[{a+2}:{a+3}], v[{a+2}:{a+3}], s[40:41] op_sel_hi:[1,0]
        v_pk_mul_f32 v[{u}:{u+1}], v[{u}:{u+1}], s[42:43] op_sel_hi:[1,0]
        v_pk_mul_f32 v[{u+2}:{u+3}], v[{u+2}:{u+3}], s[42:43] op_sel_hi:[1,0]
        v_cvt_pk_bf16_f32 v{a}, v{a}, v{a+1}
        v_cvt_pk_bf16_f32 v{a+1}, v{a+2}, v{a+3}
        v_cvt_f64_f32 v[2:3], v{u}
        v_cvt_f64_f32 v[4:5], v{u+1}
        v_cvt_f64_f32 v[6:7], v{u+2}
        v_cvt_f64_f32 v[8:9], v{u+3}
        ds_write_b64 v11, v[{a}:{a+1}] offset:512
        ds_write2_b64 v11, v[2:3], v[4:5] offset0:0 offset1:16
        ds_write2_b64 v11, v[6:7], v[8:9] offset0:32 offset1:48
        v_add_u32 v11, {16*NSTR}, v11
        """)
    fin(0)
    E("s_cmp_lg_u32 s23, 0\ns_cbranch_scc1 L_k2_g2")
    gemm_mfma(2, True)
    fin(1)
    fin(2)
    E("s_branch L_k2_gdone")
    E("L_k2_g2:")
    fin(1)
    E("L_k2_gdone:")
    cw_reads()
    main_c = True
    E("s_waitcnt lgkmcnt(0)")
    cw_finish()
    main_consts()
    E("s_branch L_k2_b2")
    RA = 72
    E(f"""
L_k2_rec2:
    """)
    main_consts()
    E(f"""
    v_and_b32 v2, 15, v1
    v_mul_u32_u24 v2, 3, v2                 ; 3j
    v_add_u32 v3, 48, v2
    v_mov_b32 v60, 4
    v_mov_b32 v61, 8
    v_mov_b32 v62, 0
    s_movk_i32 s33, {NSTR//4}
    v_mov_b32 v63, {L_NODE}
    s_cmp_lg_u32 s47, 0
    s_cbranch_scc1 L_k2_recskip
    s_waitcnt vmcnt(0)
    """)
    STAMP(2)
    for p in range(8):
        E(f"""
        v_and_b32 v{36+p}, 0xfff, v{64+p}
        v_lshrrev_b32 v{64+p}, 12, v{64+p}
        v_add_lshl_u32 v{64+p}, v{64+p}, v2, 2
        """)
    E(f"""
    v_max3_u32 v44, v36, v37, v38
    v_max3_u32 v45, v39, v40, v41
    v_max3_u32 v44, v44, v42, v43
    v_max_u32 v44, v44, v45
    v_cmp_lt_u32 vcc, 96, v44
    s_cbranch_vccnz L_k2_toobig
    """)
    def recload(p, base, jreg, off):
        r = base + 4*p
        E(f"global_load_dwordx3 v[{r}:{r+2}], v{64+p}, s[18:19]" + (f" offset:{off}" if off else ""))
    for p in range(8):
        E(f"v_cmp_gt_u32 vcc, v{36+p}, v2\ns_mov_b64 exec, vcc")
        E(f"s_cbranch_execz L_k2_nl{p}")
        recload(p, RA, 2, 0)
        E(f"L_k2_nl{p}:\ns_mov_b64 exec, -1")
    E("s_waitcnt lgkmcnt(0)")
    E("s_barrier                               ; B1")
    STAMP(3)
    cw_reads_late = True
    def place(plist, base, jreg, tag):
        for p in plist:
            r = base + 4*p
            E(f"""
            v_cmp_gt_u32 s[{48+2*(p%4)}:{49+2*(p%4)}], v{36+p}, v{jreg}
            v_lshrrev_b32 v{44+(p%4)}, 22, v{r+2}
            v_and_b32 v{r+2}, 0x3fffff, v{r+2}
            s_mov_b64 exec, s[{48+2*(p%4)}:{49+2*(p%4)}]
            ds_add_rtn_u32 v{48+2*(p%4)}, v{44+(p%4)}, v60 offset:{L_CNT}
            s_mov_b64 exec, -1
            """)
        E("s_waitcnt lgkmcnt(0)")
        for p in plist:
            r = base + 4*p; a = 48 + 2*(p % 4)
            E(f"""
            s_mov_b64 exec, s[{48+2*(p%4)}:{49+2*(p%4)}]
            ds_write_b32 v{a}, v{r+2}
            v_lshlrev_b32 v{r+3}, 1, v{a}
            v_and_b32 v{56+(p%4)}, 31, v{a}
            ds_write_b64 v{r+3}, v[{r}:{r+1}] offset:{L_EA - 2*L_SRC}
            v_cmp_eq_u32 s[{48+2*(p%4)}:{49+2*(p%4)}], 0, v{56+(p%4)}
            v_mad_u32_u24 v{a+1}, v{44+(p%4)}, s33, v63
            s_mov_b64 exec, s[{48+2*(p%4)}:{49+2*(p%4)}]
            ds_add_rtn_u32 v{56+(p%4)}, v62, v61 offset:{L_LCNT}
            """)
        E("s_waitcnt lgkmcnt(0)")
        for p in plist:
            a = 48 + 2*(p % 4)
            E(f"""
            s_mov_b64 exec, s[{48+2*(p%4)}:{49+2*(p%4)}]
            ds_write_b64 v{56+(p%4)}, v[{a}:{a+1}]
            """)
        E("s_mov_b64 exec, -1")
    E("s_barrier                               ; B1b\ns_waitcnt vmcnt(0)")
    STAMP(4)
    place(range(0, 4), RA, 2, "a")
    place(range(4, 8), RA, 2, "b")
    E(f"""
    v_max3_u32 v44, v36, v37, v38
    v_max3_u32 v45, v39, v40, v41
    v_max3_u32 v44, v44, v42, v43
    v_max_u32 v44, v44, v45
    v_cmp_lt_u32 vcc, 48, v44
    s_cbranch_vccz L_k2_recdone
    """)
    for p in range(8):
        E(f"v_cmp_gt_u32 vcc, v{36+p}, v3\ns_mov_b64 exec, vcc")
        E(f"s_cbranch_execz L_k2_nm{p}")
        recload(p, RA, 3, 192)
        E(f"L_k2_nm{p}:\ns_mov_b64 exec, -1")
    E("s_waitcnt vmcnt(0)")
    place(range(0, 4), RA, 3, "c")
    place(range(4, 8), RA, 3, "d")
    E(f"""
    s_branch L_k2_recdone
L_k2_toobig:
    s_waitcnt lgkmcnt(0)
    s_barrier                               ; B1
    s_barrier                               ; B1b
    ds_write_b32 v62, v60 offset:{L_FLAG}
    s_branch L_k2_recdone
L_k2_recskip:
    s_waitcnt vmcnt(0) lgkmcnt(0)
    s_barrier                               ; B1
    s_barrier                               ; B1b
L_k2_recdone:
    """)
    cw_reads()
    E("s_waitcnt lgkmcnt(0)")
    cw_finish()
    E(f"""
L_k2_b2:
    s_waitcnt lgkmcnt(0)
    """)
    STAMP(5)
    E(f"""
    s_barrier                               ; B2
    s_cmp_lg_u32 s47, 0
    s_cbranch_scc1 L_k2_safe
    v_lshlrev_b32 v2, 3, v1
    v_mov_b32 v3, 0
    ds_read_b64 v[{W1}:{W1+1}], v{LP}
    ds_read_b32 v{W2}, v{LP+1}
    ds_read_b64 v[60:61], v3 offset:{L_LCNT}
    ds_read_b64 v[62:63], v2 offset:{L_CNT}
    v_lshlrev_b32 v2, 9, v1
    v_add_u32 v2, {L_SRC + 256}, v2
    v_add_u32 v3, 256, v2
    s_waitcnt lgkmcnt(2)
    ds_read_b128 v[{OFS}:{OFS+3}], v{W1}
    ds_read_b128 v[{OFS+4}:{OFS+7}], v{W1} offset:16
    v_add_u32 v{AG}, v{W1+1}, v{LN4}
    v_lshl_add_u32 v{EAD}, v{W2}, 1, v{EAC}
    ds_read_b64 v[{XA}:{XA+1}], v{AG} offset:512
    ds_read_b64 v[{EA}:{EA+1}], v{EAD}
    s_waitcnt lgkmcnt(4)
    v_cmp_gt_u32 s[48:49], v62, v2
    v_cmp_gt_u32 s[50:51], v63, v3
    v_readfirstlane_b32 s30, v60
    v_readfirstlane_b32 s31, v61
    s_or_b64 s[48:49], s[48:49], s[50:51]
    s_cbranch_scc1 L_k2_gosafe
    s_cmp_lg_u32 s31, 0
    s_cbranch_scc1 L_k2_gosafe
    s_sub_u32 s30, s30, {L_LIST - 31}
    s_lshr_b32 s30, s30, 5
    s_min_u32 s30, s30, 160
    s_cmp_ge_u32 s3, s30
    s_cbranch_scc1 L_k2_mdone
    s_add_u32 s31, s3, 16
    s_waitcnt lgkmcnt(2)
    """)
    gathers(G0, OFS)
    gathers(G1, OFS+4)
    STAMP(6)
    if OPT["stamps"]: E("s_memtime s[84:85]\ns_waitcnt lgkmcnt(0)")
    E(f"""
L_k2_loop:
    v_lshl_add_u64 v[{LP}:{LP+1}], v[{LP}:{LP+1}], 0, s[44:45]
    s_waitcnt lgkmcnt(0)
    ds_read_b64 v[{W1}:{W1+1}], v{LP}
    ds_read_b32 v{W2}, v{LP+1}
    v_mfma_f32_32x32x8_bf16 v[{D}:{D+15}], v[{ASEL}:{ASEL+1}], v[{XA}:{XA+1}], 0
    v_mfma_f32_16x16x4_4b_bf16 v[{D}:{D+15}], v[{EA}:{EA+1}], v[{CW}:{CW+1}], v[{D}:{D+15}] cbsz:2 abid:0
    s_waitcnt vmcnt(4)
    v_smfmac_f32_32x32x32_bf16 v[{D}:{D+15}], v[{A1}:{A1+3}], v[{G0}:{G0+7}], v{IDX}
    v_smfmac_f32_32x32x32_bf16 v[{D}:{D+15}], v[{A2}:{A2+3}], v[{G0+8}:{G0+15}], v{IDX}
    s_waitcnt lgkmcnt(0)
    ds_read_b128 v[{OFS}:{OFS+3}], v{W1}
    ds_read_b128 v[{OFS+4}:{OFS+7}], v{W1} offset:16
    v_lshl_add_u32 v{EAD}, v{W2}, 1, v{EAC}
    s_nop 7
    """)
    chain(G0, 0, True)
    E(f"""
    s_cmp_ge_u32 s31, s30
    s_cbranch_scc1 L_k2_last0
    s_waitcnt lgkmcnt(0)
    """)
    gathers(G0, OFS)
    E(f"""
L_k2_last0r:
    v_mfma_f32_32x32x8_bf16 v[{D}:{D+15}], v[{ASEL}:{ASEL+1}], v[{XA}:{XA+1}], 0
    v_mfma_f32_16x16x4_4b_bf16 v[{D}:{D+15}], v[{EA}:{EA+1}], v[{CW}:{CW+1}], v[{D}:{D+15}] cbsz:2 abid:1
    s_waitcnt vmcnt(4)
    v_smfmac_f32_32x32x32_bf16 v[{D}:{D+15}], v[{A1}:{A1+3}], v[{G1}:{G1+7}], v{IDX}
    v_smfmac_f32_32x32x32_bf16 v[{D}:{D+15}], v[{A2}:{A2+3}], v[{G1+8}:{G1+15}], v{IDX}
    ds_read_b64 v[{EA}:{EA+1}], v{EAD}
    s_nop 10
    """)
    chain(G1, 4, False)
    E(f"""
    s_cmp_ge_u32 s31, s30
    s_cbranch_scc1 L_k2_last1
    """)
    gathers(G1, OFS+4)
    E(f"""
L_k2_last1:
    v_rcp_f32 v{P}, v{P}
    v_rcp_f32 v{P+1}, v{P+1}
    v_rcp_f32 v{P+2}, v{P+2}
    v_rcp_f32 v{P+3}, v{P+3}
    v_pk_mul_f32 v[{N}:{N+1}], v[{N}:{N+1}], v[{P}:{P+1}]
    v_pk_mul_f32 v[{N+2}:{N+3}], v[{N+2}:{N+3}], v[{P+2}:{P+3}]
    v_cvt_f64_f32 v[{T}:{T+1}], v{N}
    v_cvt_f64_f32 v[{T+2}:{T+3}], v{N+1}
    v_cvt_f64_f32 v[{T+4}:{T+5}], v{N+2}
    v_cvt_f64_f32 v[{T+6}:{T+7}], v{N+3}
    ds_add_f64 v{AG}, v[{T}:{T+1}]
    ds_add_f64 v{AG}, v[{T+2}:{T+3}] offset:128
    ds_add_f64 v{AG}, v[{T+4}:{T+5}] offset:256
    ds_add_f64 v{AG}, v[{T+6}:{T+7}] offset:384
    v_add_u32 v{AG}, v{W1+1}, v{LN4}
    s_cmp_ge_u32 s31, s30
    s_cbranch_scc1 L_k2_mdone
    ds_read_b64 v[{XA}:{XA+1}], v{AG} offset:512
    s_add_u32 s31, s31, 16
    s_branch L_k2_loop
L_k2_last0:
    s_waitcnt vmcnt(0)
    s_branch L_k2_last0r
L_k2_mdone:
    s_waitcnt lgkmcnt(0)
    """)
    STAMP(7)
    if OPT["stamps"]: E("s_memtime s[86:87]\ns_waitcnt lgkmcnt(0)")
    E(f"""
    s_barrier                               ; B3
    s_cmp_ge_u32 s3, 10
    s_cbranch_scc1 L_k2_edone
    v_lshrrev_b32 v2, 3, v0                 ; node
    v_and_b32 v3, 7, v0
    v_mul_u32_u24 v4, {NSTR}, v2
    v_lshl_add_u32 v4, v3, 4, v4
    v_add_u32 v4, {L_NODE}, v4
    ds_read2_b64 v[28:31], v4 offset0:0 offset1:1
    ds_read2_b64 v[32:35], v4 offset0:16 offset1:17
    ds_read2_b64 v[36:39], v4 offset0:32 offset1:33
    ds_read2_b64 v[40:43], v4 offset0:48 offset1:49
    s_mul_i32 s30, s21, {NB*256}
    s_lshl_b32 s31, s20, 7
    s_add_u32 s30, s30, s31
    v_lshlrev_b32 v3, 4, v3
    v_lshl_add_u32 v5, v2, 8, v3
    v_add_u32 v5, s30, v5
    s_mov_b32 s32, {f32(2.0**-32)}
    s_mov_b32 s34, {f32(-LOG2E * 2.0**-32)}
    s_waitcnt lgkmcnt(0)
    """)
    for i in range(8):
        E(f"v_cvt_f32_f64 v{8+i}, v[{28+2*i}:{29+2*i}]")
    for p in range(4):
        E(f"v_pk_mul_f32 v[{16+2*p}:{17+2*p}], v[{8+2*p}:{9+2*p}], s[34:35] op_sel_hi:[1,0]")
    for i in range(8):
        E(f"v_exp_f32 v{16+i}, v{16+i}")
    E(f"""
    v_pk_add_f32 v[6:7], v[8:9], v[10:11]
    v_pk_add_f32 v[24:25], v[12:13], v[14:15]
    """)
    for p in range(4):
        E(f"v_pk_add_f32 v[{16+2*p}:{17+2*p}], v[{16+2*p}:{17+2*p}], 1.0 op_sel_hi:[1,0]")
    for i in range(8):
        E(f"v_rcp_f32 v{16+i}, v{16+i}")
    for p in range(4):
        E(f"v_pk_mul_f32 v[{8+2*p}:{9+2*p}], v[{8+2*p}:{9+2*p}], s[32:33] op_sel_hi:[1,0]")
    for p in range(4):
        E(f"v_pk_mul_f32 v[{8+2*p}:{9+2*p}], v[{8+2*p}:{9+2*p}], v[{16+2*p}:{17+2*p}]")
    E(f"""
    v_cvt_pk_bf16_f32 v16, v8, v10
    v_cvt_pk_bf16_f32 v17, v12, v14
    v_cvt_pk_bf16_f32 v18, v9, v11
    v_cvt_pk_bf16_f32 v19, v13, v15
    global_store_dwordx4 v5, v[16:19], s[14:15]
    v_pk_add_f32 v[6:7], v[6:7], v[24:25]
    v_add_f32 v6, v6, v7
    v_mov_b32 v7, 0x207
    v_cmp_class_f32 vcc, v6, v7
    s_cbranch_vccz L_k2_edone
    v_mov_b32 v6, 0
    ds_write_b32 v6, v7 offset:{L_FLAG}
L_k2_edone:
    """)
    STAMP(8)
    E(f"""
    s_cmp_lg_u32 s47, 0
    s_cbranch_scc1 L_k2_fin
    s_waitcnt lgkmcnt(0)
    s_barrier                               ; B4
    v_mov_b32 v6, 0
    ds_read_b32 v6, v6 offset:{L_FLAG}
    s_waitcnt lgkmcnt(0)
    v_readfirstlane_b32 s30, v6
    s_cmp_lg_u32 s30, 0
    s_cbranch_scc1 L_k2_gosafe
L_k2_fin:
    """)
    if OPT["stamps"]:
        E("s_waitcnt vmcnt(0)"); STAMP(9); STAMP_OUT(1, 12, "s3", "k2")
    E(f"""
L_k2_end:
    s_endpgm
L_k2_gosafe:
    s_mov_b32 s47, 1
    s_waitcnt vmcnt(0) lgkmcnt(0)
    s_barrier
    s_branch L_k2_restart
    """)
    E(f"""
L_k2_safe:
    v_and_b32 v2, 15, v1
    v_lshlrev_b32 v3, 3, v2
    v_add_u32 v3, {L_C}, v3
    ds_read_b64 v[64:65], v3
    ds_read_b64 v[66:67], v3 offset:128
    ds_read_b64 v[68:69], v3 offset:256
    ds_read_b64 v[70:71], v3 offset:384
    s_waitcnt lgkmcnt(0)
    """)
    for k in range(4):
        for p in range(2):
            E(f"""
            v_lshlrev_b32 v{80+4*k+2*p}, 16, v{64+2*k+p}
            v_and_b32 v{81+4*k+2*p}, 0xffff0000, v{64+2*k+p}
            v_mul_f32 v{80+4*k+2*p}, s40, v{80+4*k+2*p}
            v_mul_f32 v{81+4*k+2*p}, s40, v{81+4*k+2*p}
            """)
    E(f"""
    v_lshrrev_b32 v24, 4, v1
    v_mul_u32_u24 v24, 3, v24               ; 3*quarter
    s_movk_i32 s33, {NSTR//4}
    v_add_u32 v25, {L_NODE}, v{LN4}
    s_lshl_b32 s30, s21, 10
    s_lshl_b32 s31, s3, 6
    s_add_u32 s30, s30, s31
    s_add_u32 s30, s30, {WS_OFF}
    s_add_u32 s31, s30, 64
L_k2_scell:
    v_mov_b32 v26, s30
    global_load_dword v27, v26, s[16:17]
    s_waitcnt vmcnt(0)
    v_and_b32 v28, 0xfff, v27               ; 3*count
    v_lshrrev_b32 v27, 12, v27
    v_mov_b32 v29, v24
L_k2_srec:
    v_cmp_gt_u32 vcc, v28, v29
    s_and_saveexec_b64 s[48:49], vcc
    s_cbranch_execz L_k2_snext
    v_add_lshl_u32 v30, v27, v29, 2
    global_load_dwordx3 v[32:34], v30, s[18:19]
    s_waitcnt vmcnt(0)
    v_and_b32 v30, 0x3fffff, v34
    v_add_u32 v30, v30, v{LN16}
    buffer_load_dwordx4 v[36:39], v30, s[36:39], 0 offen
    v_lshrrev_b32 v31, 22, v34
    v_mad_u32_u24 v31, v31, s33, v25
    ds_read_b64 v[40:41], v31 offset:512
    v_lshlrev_b32 v44, 16, v32
    v_and_b32 v45, 0xffff0000, v32
    v_lshlrev_b32 v46, 16, v33
    v_and_b32 v47, 0xffff0000, v33
    s_waitcnt vmcnt(0) lgkmcnt(0)
    v_lshlrev_b32 v48, 16, v40
    v_and_b32 v49, 0xffff0000, v40
    v_lshlrev_b32 v50, 16, v41
    v_and_b32 v51, 0xffff0000, v41
    """)
    for s in range(4):
        E(f"v_lshlrev_b32 v52, 16, v{36+s}\nv_add_f32 v{48+s}, v{48+s}, v52")
        for k in range(4):
            E(f"v_fmac_f32 v{48+s}, v{44+k}, v{80+4*k+s}")
    for s in range(4): E(f"v_exp_f32 v{48+s}, v{48+s}")
    E("s_nop 0")
    for s in range(4): E(f"v_add_f32 v{48+s}, 1.0, v{48+s}")
    for s in range(4): E(f"v_rcp_f32 v{48+s}, v{48+s}")
    E("s_nop 0")
    for s in range(4): E(f"v_mul_f32 v{48+s}, v{48+s}, v{36+s}")
    for s in range(4): E(f"v_cvt_f64_f32 v[{54+2*s}:{55+2*s}], v{48+s}")
    for s in range(4): E(f"ds_add_f64 v31, v[{54+2*s}:{55+2*s}] offset:{128*s}")
    E(f"""
    s_mov_b64 exec, s[48:49]
    v_add_u32 v29, 12, v29
    s_branch L_k2_srec
L_k2_snext:
    s_mov_b64 exec, s[48:49]
    s_add_u32 s30, s30, 4
    s_cmp_lt_u32 s30, s31
    s_cbranch_scc1 L_k2_scell
    s_branch L_k2_mdone
    """)

header()
k1()
k2()
if OPT["dummy"]:
    kernel_start("mpnn_nop_kernel"); E("s_endpgm")
E('.section .rodata,"a"\n.p2align 6')
if OPT["dummy"]:
    descriptor("mpnn_nop_kernel", 8); E(".p2align 6")
descriptor("mpnn_prep_kernel", 120)
E(".p2align 6")
descriptor("standalone__edge_featured_mpnn_egc__graph_kernel", 128)
if OPT["nomfma"]: out = [l for l in out if not ("smfmac" in l or "32x32x8" in l or "x4_4b" in l)]
if OPT["noadd"]: out = [l for l in out if not ("ds_add_f64" in l)]
if OPT["nosafe"]: out = [l.replace("s_cbranch_vccz L_k2_edone", "s_branch L_k2_edone") for l in out]
text = "\n".join(l.lstrip() if l.lstrip().startswith(";") else l for l in out) + "\n"
open(sys.argv[1], "w").write(text)
```

```python
import sys, struct

OPT = dict(stamps=0, force_safe=0, nogather=0, nochain=0, nomfma=0, noadd=0, nosafe=0, dummy=0, spin=0)
for a in sys.argv[2:]:
    k, v = a.split("=")
    OPT[k] = int(v)

out = []
def E(s=""):
    for line in s.split("\n"):
        line = line.strip()
        if not line:
            continue
        if line.endswith(":") or line.startswith("."):
            out.append(line)
        else:
            out.append("    " + line)

def f32(x):
    return "0x%08x" % struct.unpack("<I", struct.pack("<f", x))[0]

LOG2E = 1.4426950408889634
NB = 80
NBUCK = 125
CHUNK = 1280
NCHUNK = 250
WS_G = 0
G_HALF = 10000 * 256
WS_REC = 0x500000
REC_BYTES = NCHUNK * CHUNK * 12
WS_OFF = 0x900000
WS_STAMP = 0x1000000

nstamp = [0]
def STAMP(i):
    if OPT["stamps"]:
        E(f"s_memrealtime s[{64+2*i}:{65+2*i}]\ns_waitcnt lgkmcnt(0)")
def STAMP_OUT(kern, n, swave, label):
    if OPT["stamps"]:
        E(f"""
        s_load_dwordx2 s[60:61], s[0:1], 72
        s_lshl_b32 s62, s2, 4
        s_add_u32 s62, s62, {swave}
        s_lshl_b32 s62, s62, 6
        s_add_u32 s62, s62, {WS_STAMP + kern * 0x40000}
        s_mov_b64 exec, -1
        v_mov_b32 v1, s62
        s_waitcnt lgkmcnt(0)""")
        for i in range(n):
            E(f"v_mov_b32 v2, s{64+2*i}\nglobal_store_dword v1, v2, s[60:61] offset:{4*i}")
        E("s_waitcnt vmcnt(0)")
def STAMP_INIT(n):
    if OPT["stamps"]:
        for i in range(n):
            E(f"s_mov_b64 s[{64+2*i}:{65+2*i}], 0")

def header():
    E(f"""
; @launch kernel=mpnn_prep_kernel grid=(256,1,1) block=(832,1,1) lds={K1_LDS}
; @launch kernel=standalone__edge_featured_mpnn_egc__graph_kernel grid=(256,1,1) block=(1024,1,1) lds={K2_LDS}
""")
    for i in range(OPT["dummy"]):
        E("; @launch kernel=mpnn_nop_kernel grid=(256,1,1) block=(64,1,1) lds=0")
    E(""".amdgcn_target "amdgcn-amd-amdhsa--gfx950"
.text""")

def kernel_start(name):
    E(f""".globl {name}
.p2align 8
.type {name},@function
{name}:""")

def descriptor(name, vgpr, sgpr=96):
    E(f""".amdhsa_kernel {name}
.amdhsa_next_free_vgpr {vgpr}
.amdhsa_next_free_sgpr {sgpr}
.amdhsa_accum_offset {(vgpr+3)//4*4}
.amdhsa_group_segment_fixed_size 0
.amdhsa_kernarg_size 80
.amdhsa_user_sgpr_count 2
.amdhsa_user_sgpr_kernarg_segment_ptr 1
.amdhsa_system_sgpr_workgroup_id_x 1
.end_amdhsa_kernel""")

def gemm_stage(LW, LX, tag):
    E(f"""
    v_lshrrev_b32 v2, 3, v1
    v_bfe_u32 v3, v1, 4, 1                  ; (row>>1)&1
    s_and_b32 s30, s3, 1
    s_lshl_b32 s30, s30, 1
    v_or_b32 v3, s30, v3                    ; sigma
    v_lshlrev_b32 v3, 1, v3
    v_and_b32 v4, 7, v1
    v_xor_b32 v3, v3, v4
    v_lshlrev_b32 v3, 4, v3
    v_lshl_add_u32 v3, v2, 8, v3
    s_lshl_b32 s30, s3, 11                  ; 8*i rows * 256
    s_lshl_b32 s31, s20, 7
    s_add_u32 s30, s30, s31
    v_add_u32 v3, s30, v3
    v_add_u32 v5, 0x4000, v3                ; piece i = w+8
    s_and_b32 s22, s3, 3                    ; tau
    s_lshr_b32 s23, s3, 2                   ; rg
    v_lshrrev_b32 v6, 4, v1
    s_lshl_b32 s30, s22, 2
    v_add_u32 v6, s30, v6                   ; row&15
    v_and_b32 v7, 15, v1
    v_xor_b32 v7, v7, v6
    v_lshlrev_b32 v7, 4, v7
    v_lshl_add_u32 v7, v6, 8, v7
    s_mul_i32 s30, s21, {NB*256}
    s_mul_i32 s31, s23, {3*4096}
    s_add_u32 s30, s30, s31
    v_add_u32 v7, s30, v7
    v_add_u32 v8, 0x1000, v7
    v_add_u32 v9, 0x2000, v7
    s_lshl_b32 s30, s22, 10
    s_add_u32 s31, s31, s30
    s_add_u32 s31, s31, {LX}
    s_lshl_b32 s30, s3, 10
    s_add_u32 s30, s30, {LW}
    s_waitcnt lgkmcnt(0)
    """)
    yield
    E(f"""
    s_mov_b32 m0, s31
    s_add_u32 s31, s31, 0x1000
    global_load_lds_dwordx4 v7, s[28:29]
    s_mov_b32 m0, s31
    s_add_u32 s31, s31, 0x1000
    global_load_lds_dwordx4 v8, s[28:29]
    s_cmp_lg_u32 s23, 0
    s_cbranch_scc1 L_{tag}_x2
    s_mov_b32 m0, s31
    s_nop 0
    global_load_lds_dwordx4 v9, s[28:29]
L_{tag}_x2:
    s_mov_b32 m0, s30
    s_add_u32 s30, s30, 0x2000
    global_load_lds_dwordx4 v3, s[24:25]
    s_mov_b32 m0, s30
    s_add_u32 s30, s30, 0x2000
    global_load_lds_dwordx4 v5, s[24:25]
    s_mov_b32 m0, s30
    s_add_u32 s30, s30, 0x2000
    global_load_lds_dwordx4 v3, s[26:27]
    s_mov_b32 m0, s30
    s_nop 0
    global_load_lds_dwordx4 v5, s[26:27]
    """)
    yield

def gemm_addr(LW, LX):
    E(f"""
    v_lshrrev_b32 v2, 4, v1                 ; g
    v_bfe_u32 v3, v1, 2, 2                  ; r
    v_lshl_add_u32 v4, v2, 3, v3            ; 8g + r
    v_lshrrev_b32 v3, 1, v3                 ; r>>1
    v_and_b32 v5, 1, v2
    v_lshl_or_b32 v3, v5, 1, v3             ; sigma
    v_xor_b32 v3, s22, v3
    v_lshlrev_b32 v3, 5, v3
    v_lshl_add_u32 v10, v4, 7, v3
    v_and_b32 v3, 3, v1
    v_lshl_add_u32 v10, v3, 3, v10
    v_add_u32 v10, {LW}, v10
    v_and_b32 v4, 15, v1                    ; row
    v_xor_b32 v3, v2, v4
    v_lshlrev_b32 v3, 4, v3
    v_lshl_add_u32 v12, v4, 8, v3
    s_mul_i32 s30, s23, {3*4096}
    s_add_u32 s30, s30, {LX}
    v_xor_b32 v13, 64, v12
    v_xor_b32 v14, 0x80, v12
    v_xor_b32 v15, 0xc0, v12
    v_add_u32 v12, s30, v12
    v_add_u32 v13, s30, v13
    v_add_u32 v14, s30, v14
    v_add_u32 v15, s30, v15
    """)

WF = 16
XF = 48
AC = 96
def gemm_reads():
    for ks in range(4):
        E(f"ds_read_b128 v[{XF+4*ks}:{XF+4*ks+3}], v{12+ks}")
        for t in range(2):
            for rd in range(2):
                r = WF + 16*t + 4*ks + 2*rd
                E(f"ds_read_b64_tr_b16 v[{r}:{r+1}], v10 offset:{t*16384 + ks*4096 + rd*512}")
def gemm_xreads(rt):
    for ks in range(4):
        r = XF + 16*rt + 4*ks
        E(f"ds_read_b128 v[{r}:{r+3}], v{12+ks} offset:{rt*4096}")
def gemm_mfma(rt, transposed, ks_list=range(4)):
    for ks in ks_list:
        for t in range(2):
            a = XF + 16*rt + 4*ks; w = WF + 16*t + 4*ks; d = AC + 8*rt + 4*t
            c = "0" if ks == 0 else f"v[{d}:{d+3}]"
            if transposed:
                E(f"v_mfma_f32_16x16x32_bf16 v[{d}:{d+3}], v[{w}:{w+3}], v[{a}:{a+3}], {c}")
            else:
                E(f"v_mfma_f32_16x16x32_bf16 v[{d}:{d+3}], v[{a}:{a+3}], v[{w}:{w+3}], {c}")

K1_W = 0; K1_X = 32768; K1_CNT = 53248; K1_OFFS = 53760; K1_SORT = 54272
K1_LDS = K1_SORT + CHUNK * 12

def k1():
    kernel_start("mpnn_prep_kernel")
    STAMP_INIT(8)
    E(f"""
    s_cmp_ge_u32 s2, 256
    s_cbranch_scc1 L_k1_end
    v_lshrrev_b32 v2, 6, v0
    v_and_b32 v1, 63, v0
    v_readfirstlane_b32 s3, v2
    """)
    STAMP(0)
    E(f"""
    s_load_dwordx8 s[4:11], s[0:1], 0
    s_load_dwordx4 s[12:15], s[0:1], 40     ; v_w, g_w
    s_load_dwordx2 s[16:17], s[0:1], 72     ; ws
    """)
    if OPT["spin"]:
        E(f"""
        s_or_b32 s30, s2, s3
        s_cbranch_scc1 L_k1_nospin
        s_memrealtime s[64:65]
        s_waitcnt lgkmcnt(0)
        v_mov_b32 v2, s64
        v_mov_b32 v3, {WS_STAMP}
        global_store_dword v3, v2, s[16:17]
        L_k1_nospin:
        """)
    E(f"""
    s_cmp_ge_u32 s3, 8
    s_cbranch_scc1 L_k1_sort
    s_lshr_b32 s30, s2, 3
    s_and_b32 s20, s30, 1                   ; half
    s_lshr_b32 s30, s30, 1
    s_lshl_b32 s30, s30, 3
    s_and_b32 s31, s2, 7
    s_add_u32 s21, s30, s31
    s_cmp_ge_u32 s21, {NBUCK}
    s_cbranch_scc1 L_k1_end
    """)
    st = gemm_stage(K1_W, K1_X, "k1")
    next(st)
    E(f"""
    s_add_u32 s24, s14, {128*256}           ; B = g_w rows 128..255
    s_addc_u32 s25, s15, 0
    s_mov_b64 s[26:27], s[12:13]            ; V
    s_mov_b64 s[28:29], s[4:5]
    """)
    next(st)
    STAMP(1)
    E("s_barrier                               ; B0")
    gemm_addr(K1_W, K1_X)
    E(f"""
    v_lshlrev_b32 v11, 10, v2
    v_lshl_add_u32 v11, v4, 2, v11
    s_lshl_b32 s30, s22, 6
    v_add_u32 v11, s30, v11
    s_mul_i32 s32, s20, {G_HALF}
    s_mul_i32 s30, s21, {NB*256}
    s_add_u32 s32, s32, s30
    s_mul_i32 s30, s23, {3*4096}
    s_add_u32 s32, s32, s30
    s_add_u32 s33, s32, 0x1000
    s_add_u32 s34, s32, 0x2000
    s_mov_b32 s36, s16
    s_mov_b32 s37, s17
    s_mov_b32 s38, {2*G_HALF}
    s_mov_b32 s39, 0x20000
    s_mov_b32 s40, {f32(LOG2E)}
    s_mov_b32 s42, {f32(2.0**32)}
    s_mov_b32 s44, 0x07060100
    s_mov_b32 s45, 0x07060302
    v_mov_b32 v8, {f32(2.0**-100)}
    s_waitcnt vmcnt(0)
    """)
    STAMP(2)
    E("s_barrier                               ; B1")
    STAMP(3)
    gemm_reads()
    gemm_xreads(1)
    E("s_waitcnt lgkmcnt(4)")
    gemm_mfma(0, False)
    E("s_cmp_lg_u32 s23, 0\ns_cbranch_scc1 L_k1_g1")
    gemm_xreads(2)
    E("s_waitcnt lgkmcnt(4)")
    E("L_k1_g1b:")
    gemm_mfma(1, False)
    E("s_barrier                               ; B2")
    def pack(rt, soff):
        b = AC + 8*rt; h = b + 4
        E(f"""
        v_pk_mul_f32 v[{b}:{b+1}], v[{b}:{b+1}], s[40:41] op_sel_hi:[1,0]
        v_pk_mul_f32 v[{b+2}:{b+3}], v[{b+2}:{b+3}], s[40:41] op_sel_hi:[1,0]
        v_pk_fma_f32 v[{h}:{h+1}], v[{h}:{h+1}], s[42:43], v[8:9] op_sel_hi:[1,0,0]
        v_pk_fma_f32 v[{h+2}:{h+3}], v[{h+2}:{h+3}], s[42:43], v[8:9] op_sel_hi:[1,0,0]
        v_cvt_pk_bf16_f32 v2, v{b}, v{b+1}
        v_cvt_pk_bf16_f32 v3, v{b+2}, v{b+3}
        v_xor_b32 v4, 0x80008000, v2
        v_xor_b32 v5, 0x80008000, v3
        v_sub_u32_sdwa v{h}, v{h}, sext(v2) dst_sel:DWORD dst_unused:UNUSED_PAD src0_sel:DWORD src1_sel:WORD_0
        v_sub_u32_sdwa v{h+1}, v{h+1}, sext(v2) dst_sel:DWORD dst_unused:UNUSED_PAD src0_sel:DWORD src1_sel:WORD_1
        v_sub_u32_sdwa v{h+2}, v{h+2}, sext(v3) dst_sel:DWORD dst_unused:UNUSED_PAD src0_sel:DWORD src1_sel:WORD_0
        v_sub_u32_sdwa v{h+3}, v{h+3}, sext(v3) dst_sel:DWORD dst_unused:UNUSED_PAD src0_sel:DWORD src1_sel:WORD_1
        v_perm_b32 v{h}, v{h}, v4, s44
        v_perm_b32 v{h+1}, v{h+1}, v4, s45
        v_perm_b32 v{h+2}, v{h+2}, v5, s44
        v_perm_b32 v{h+3}, v{h+3}, v5, s45
        """)
        for r in range(4):
            E(f"buffer_store_dword v{h+r}, v11, s[36:39], s{soff} offen offset:{256*r}")
    pack(0, 32)
    E("s_cmp_lg_u32 s23, 0\ns_cbranch_scc1 L_k1_g2\ns_waitcnt lgkmcnt(0)")
    gemm_mfma(2, False)
    pack(1, 33)
    pack(2, 34)
    STAMP(4)
    if OPT["stamps"]:
        E("s_waitcnt vmcnt(0)"); STAMP(5); STAMP_OUT(0, 8, "s3", "a")
    E("s_endpgm")
    E("L_k1_g1:\ns_waitcnt lgkmcnt(0)\ns_branch L_k1_g1b")
    E("L_k1_g2:")
    pack(1, 33)
    STAMP(4)
    if OPT["stamps"]:
        E("s_waitcnt vmcnt(0)"); STAMP(5); STAMP_OUT(0, 8, "s3", "b")
    E("s_endpgm")
    E(f"""
L_k1_sort:
    s_and_b32 s30, s2, 7
    s_lshl_b32 s30, s30, 5
    s_lshr_b32 s31, s2, 3
    s_add_u32 s30, s30, s31
    s_lshl_b32 s30, s30, 2
    s_add_u32 s30, s30, {WS_OFF}
    v_lshlrev_b32 v30, 11, v1
    v_add_u32 v30, s30, v30
    v_mov_b32 v20, 0
    v_mov_b32 v21, 0
    s_cmp_ge_u32 s2, {NCHUNK}
    s_cbranch_scc1 L_k1_nochunk
    v_subrev_u32 v2, 512, v0                ; t = 0..319
    s_mul_i32 s30, s2, {CHUNK*4}
    v_lshl_add_u32 v3, v2, 4, s30
    v_lshlrev_b32 v22, 1, v3
    v_lshlrev_b32 v31, 3, v1
    s_waitcnt lgkmcnt(0)
    global_load_dwordx4 v[4:7], v3, s[10:11]
    global_load_dwordx4 v[8:11], v3, s[8:9]
    global_load_dwordx4 v[12:15], v22, s[6:7]
    global_load_dwordx4 v[16:19], v22, s[6:7] offset:16
    ds_write_b64 v31, v[20:21] offset:{K1_CNT}
    v_mov_b32 v20, 3
    s_mov_b32 s31, 52429
    s_movk_i32 s32, -20
    v_lshlrev_b32 v33, 4, v2
    s_mul_i32 s30, s2, {CHUNK*12}
    s_add_u32 s30, s30, {WS_REC}
    v_add_u32 v32, s30, v33
    v_add_u32 v34, 5120, v32
    v_add_u32 v35, 10240, v32
    s_waitcnt lgkmcnt(0)
    """)
    STAMP(1)
    E(f"""
    s_barrier                               ; B0
    s_waitcnt vmcnt(3)
    """)
    for i in range(4):
        E(f"""
        v_mul_u32_u24 v{22+i}, s31, v{4+i}
        v_lshrrev_b32 v{22+i}, 22, v{22+i}
        v_lshlrev_b32 v{22+i}, 2, v{22+i}        ; bucket*4
        ds_add_rtn_u32 v{26+i}, v{22+i}, v20 offset:{K1_CNT}
        """)
    for i in range(4):
        E(f"""
        v_mad_i32_i24 v{4+i}, v{22+i}, s32, v{4+i}
        v_lshlrev_b32 v{4+i}, 24, v{4+i}
        """)
    E("s_waitcnt lgkmcnt(0)")
    STAMP(2)
    E(f"""
    s_barrier                               ; B1
    ds_read_b64 v[36:37], v31 offset:{K1_CNT}
    s_waitcnt vmcnt(2)
    """)
    for i in range(4):
        E(f"v_lshl_or_b32 v{4+i}, v{8+i}, 8, v{4+i}")
    E(f"""
    s_waitcnt lgkmcnt(0)
    v_add_u32 v38, v36, v37
    v_mov_b32 v39, v38
    s_nop 1
    v_add_u32_dpp v39, v39, v39 row_shr:1 row_mask:0xf bank_mask:0xf bound_ctrl:0
    s_nop 1
    v_add_u32_dpp v39, v39, v39 row_shr:2 row_mask:0xf bank_mask:0xf bound_ctrl:0
    s_nop 1
    v_add_u32_dpp v39, v39, v39 row_shr:4 row_mask:0xf bank_mask:0xf bound_ctrl:0
    s_nop 1
    v_add_u32_dpp v39, v39, v39 row_shr:8 row_mask:0xf bank_mask:0xf bound_ctrl:0
    s_nop 1
    v_add_u32_dpp v39, v39, v39 row_bcast:15 row_mask:0xa bank_mask:0xf
    s_nop 1
    v_add_u32_dpp v39, v39, v39 row_bcast:31 row_mask:0xc bank_mask:0xf
    v_sub_u32 v40, v39, v38
    v_add_u32 v40, {K1_SORT//4}, v40
    v_add_u32 v41, v40, v36
    ds_write_b64 v31, v[40:41] offset:{K1_OFFS}
    """)
    for i in range(4):
        E(f"ds_read_b32 v{22+i}, v{22+i} offset:{K1_OFFS}")
    E(f"""
    s_mul_i32 s30, s2, {CHUNK*3}
    s_sub_u32 s30, s30, {K1_SORT//4}
    v_add_u32 v40, s30, v40
    v_add_u32 v41, s30, v41
    v_lshl_or_b32 v20, v40, 12, v36
    v_lshl_or_b32 v21, v41, 12, v37
    s_waitcnt vmcnt(0)
    s_cmp_lg_u32 s3, 12
    s_cbranch_scc1 L_k1_nooff
    global_store_dword v30, v20, s[16:17]
    global_store_dword v30, v21, s[16:17] offset:1024
L_k1_nooff:
    """)
    for i in range(4):
        E(f"""
        s_waitcnt lgkmcnt({3 + i})
        v_add_lshl_u32 v{22+i}, v{22+i}, v{26+i}, 2
        ds_write_b32 v{22+i}, v{4+i} offset:8
        ds_write2_b32 v{22+i}, v{12+2*i}, v{13+2*i} offset0:0 offset1:1
        """)
    E("s_waitcnt lgkmcnt(0)")
    STAMP(3)
    E(f"""
    s_barrier                               ; B2
    ds_read_b128 v[4:7], v33 offset:{K1_SORT}
    ds_read_b128 v[8:11], v33 offset:{K1_SORT+5120}
    ds_read_b128 v[12:15], v33 offset:{K1_SORT+10240}
    s_waitcnt lgkmcnt(2)
    global_store_dwordx4 v32, v[4:7], s[16:17]
    s_waitcnt lgkmcnt(1)
    global_store_dwordx4 v34, v[8:11], s[16:17]
    s_waitcnt lgkmcnt(0)
    global_store_dwordx4 v35, v[12:15], s[16:17]
    """)
    STAMP(4)
    if OPT["stamps"]:
        E("s_waitcnt vmcnt(0)"); STAMP(5); STAMP_OUT(0, 8, "s3", "c")
    E(f"""
    s_endpgm
L_k1_nochunk:
    s_cmp_lg_u32 s3, 12
    s_cbranch_scc1 L_k1_end
    s_waitcnt lgkmcnt(0)
    global_store_dword v30, v20, s[16:17]
    global_store_dword v30, v21, s[16:17] offset:1024
L_k1_end:
    s_endpgm
    """)

L_CNT = 0; L_LCNT = 512; L_FLAG = 516
L_LIST = 1024
L_SRC = 6656
L_EA = L_SRC + 81*256
L_NODE = L_EA + 81*512
NSTR = 648
L_W = L_NODE; L_X = L_W + 32768; L_C = L_X + 20480
L_DUM = L_C + 1024
K2_LDS = L_DUM + 1024
assert L_NODE + 80*NSTR <= L_C and K2_LDS <= 163840
NULL_SRC = 0x7fffff00

A1, A2, IDX, LN4, LN16, ASEL, CW, EAC = 4, 8, 12, 13, 14, 16, 18, 20
LP, W1, W2, AG, EAD, EA, XA, OFS, T, N, P, D, G0, G1 = 22, 24, 26, 27, 28, 30, 32, 36, 44, 52, 56, 64, 80, 96

def main_consts():
    E(f"""
    v_and_b32 v2, 15, v1                    ; n'
    v_lshlrev_b32 v{LN4}, 3, v2
    v_lshlrev_b32 v{LN16}, 4, v2
    v_lshlrev_b32 v{LN16+1}, 4, v2
    v_mov_b32 v{IDX}, 0x8888
    v_bfe_u32 v60, v1, 3, 2                 ; s = (l&31)>>3
    v_bfe_u32 v61, v1, 2, 1                 ; h = (l>>2)&1
    v_lshrrev_b32 v62, 5, v1                ; ha
    v_and_b32 v63, 3, v1                    ; q
    v_and_b32 v2, 1, v60
    v_lshlrev_b32 v2, 4, v2
    v_lshlrev_b32 v2, v2, s46
    v_lshrrev_b32 v60, 1, v60               ; s>>1
    v_lshl_add_u32 v3, v61, 1, v60
    v_sub_u32 v63, v63, v62                 ; q - ha : 0 -> A1, 2 -> A2
    v_lshl_add_u32 v3, v63, 1, v3
    v_and_b32 v63, 1, v63
    v_lshl_or_b32 v3, v63, 4, v3
    v_xor_b32 v61, v61, v62
    v_lshl_or_b32 v60, v61, 4, v60
    """)
    for i in range(8):
        E(f"v_cmp_eq_u32 s[{48+2*(i%4)}:{49+2*(i%4)}], {i}, v3")
        if i % 4 == 3:
            for j in range(i-3, i+1):
                E(f"v_cndmask_b32 v{A1+j}, 0, v2, s[{48+2*(j%4)}:{49+2*(j%4)}]")
    E(f"""
    v_cmp_eq_u32 s[48:49], 0, v60
    v_cmp_eq_u32 s[50:51], 1, v60
    v_bfe_u32 v61, v1, 4, 1
    v_and_b32 v63, 3, v1
    v_cndmask_b32 v{ASEL}, 0, v2, s[48:49]
    v_cndmask_b32 v{ASEL+1}, 0, v2, s[50:51]
    v_lshl_add_u32 v61, v61, 2, v63
    v_lshlrev_b32 v61, 3, v61
    v_add_u32 v{EAC}, {L_EA - 2*L_SRC}, v61
    s_lshl_b32 s30, s3, 5
    s_add_u32 s30, s30, {L_LIST}
    v_lshrrev_b32 v2, 4, v1
    v_lshl_add_u32 v{LP}, v2, 3, s30
    v_bfe_u32 v2, v1, 2, 2
    v_lshl_add_u32 v{LP+1}, v2, 3, s30
    """)

def cw_reads():
    E(f"""
    v_and_b32 v2, 15, v1
    v_lshrrev_b32 v3, 4, v1
    v_lshl_add_u32 v2, v2, 2, v3
    v_lshlrev_b32 v2, 1, v2
    v_add_u32 v2, {L_C}, v2
    ds_read_u16 v60, v2
    ds_read_u16 v61, v2 offset:128
    ds_read_u16 v62, v2 offset:256
    ds_read_u16 v63, v2 offset:384
    """)
def cw_finish():
    E(f"""
    v_lshlrev_b32 v60, 16, v60
    v_lshlrev_b32 v61, 16, v61
    v_lshlrev_b32 v62, 16, v62
    v_lshlrev_b32 v63, 16, v63
    v_pk_mul_f32 v[60:61], v[60:61], s[40:41] op_sel_hi:[1,0]
    v_pk_mul_f32 v[62:63], v[62:63], s[40:41] op_sel_hi:[1,0]
    v_cvt_pk_bf16_f32 v{CW}, v60, v61
    v_cvt_pk_bf16_f32 v{CW+1}, v62, v63
    """)

def prefill():
    E(f"""
    v_mov_b32 v100, 0
    v_mov_b32 v101, 0
    v_mov_b32 v102, 0
    v_mov_b32 v103, 0
    v_lshlrev_b32 v112, 4, v0
    v_add_u32 v113, {L_EA}, v112
    ds_write_b128 v113, v[100:103]
    ds_write_b128 v113, v[100:103] offset:16384
    ds_write_b128 v113, v[100:103] offset:{81*512 - 16384}
    v_mov_b32 v104, {NULL_SRC}
    v_mov_b32 v105, {NULL_SRC}
    v_mov_b32 v106, {NULL_SRC}
    v_mov_b32 v107, {NULL_SRC}
    ds_write_b128 v112, v[104:107] offset:{L_SRC}
    v_mov_b32 v108, {L_SRC + 80*256}
    v_mov_b32 v109, {L_DUM}
    v_mov_b32 v110, {L_SRC + 80*256}
    v_mov_b32 v111, {L_DUM}
    s_cmp_ge_u32 s3, 6
    s_cbranch_scc1 L_k2_pf1
    v_cmp_gt_u32 vcc, {(81*256 - 16384)//16}, v0
    s_and_saveexec_b64 s[48:49], vcc
    ds_write_b128 v112, v[104:107] offset:{L_SRC + 16384}
    s_mov_b64 exec, s[48:49]
    v_cmp_gt_u32 vcc, {(L_SRC - L_LIST)//16}, v0
    s_and_saveexec_b64 s[48:49], vcc
    ds_write_b128 v112, v[108:111] offset:{L_LIST}
    s_mov_b64 exec, s[48:49]
    s_branch L_k2_pf2
L_k2_pf1:
    s_cmp_ge_u32 s3, 8
    s_cbranch_scc1 L_k2_pf2
    v_subrev_u32 v114, 384, v0              ; 0..127
    v_lshlrev_b32 v115, 2, v114
    v_lshlrev_b32 v114, 8, v114
    v_add_u32 v114, {L_SRC}, v114
    ds_write_b32 v115, v114 offset:{L_CNT}
    v_add_u32 v115, {L_DUM + 256}, v115
    ds_write_b32 v115, v100
    v_mov_b32 v116, {L_LIST}
    v_mov_b32 v117, 0
    ds_write_b64 v100, v[116:117] offset:{L_LCNT}
L_k2_pf2:
    """)

def chain(G, q0, first):
    def exps(q):
        t = T + 4*(q & 1)
        return [f"v_exp_f32 v{t+s}, v{D+4*s+q}" for s in range(4)]
    def steps(q):
        t = T + 4*(q & 1); h = G + 4*q
        if first and q == 0:
            return [f"v_pk_add_f32 v[{P+2*p}:{P+2*p+1}], v[{t+2*p}:{t+2*p+1}], 1.0 op_sel_hi:[1,0]" for p in range(2)]
        r = []
        for p in range(2):
            n = f"v[{G+2*p}:{G+2*p+1}]" if (first and q == 1) else f"v[{N+2*p}:{N+2*p+1}]"
            r.append(f"v_pk_fma_f32 v[{N+2*p}:{N+2*p+1}], {n}, v[{t+2*p}:{t+2*p+1}], {n}")
        for p in range(2):
            r.append(f"v_pk_fma_f32 v[{N+2*p}:{N+2*p+1}], v[{h+2*p}:{h+2*p+1}], v[{P+2*p}:{P+2*p+1}], v[{N+2*p}:{N+2*p+1}]")
        for p in range(2):
            r.append(f"v_pk_fma_f32 v[{P+2*p}:{P+2*p+1}], v[{P+2*p}:{P+2*p+1}], v[{t+2*p}:{t+2*p+1}], v[{P+2*p}:{P+2*p+1}]")
        return r
    if OPT["nochain"]: return
    for x in exps(0): E(x)
    for q in range(4):
        nx = exps(q+1) if q < 3 else ["s_nop 0"]
        st = steps(q)
        seq = []
        while nx or st:
            if nx: seq.append(nx.pop(0))
            if st: seq.append(st.pop(0))
            if st: seq.append(st.pop(0))
        for x in seq: E(x)

def gathers(G, o):
    E(f"""
    v_lshl_add_u64 v[{o}:{o+1}], v[{o}:{o+1}], 0, v[{LN16}:{LN16+1}]
    v_lshl_add_u64 v[{o+2}:{o+3}], v[{o+2}:{o+3}], 0, v[{LN16}:{LN16+1}]
    """)
    for q in range(4):
        if not OPT["nogather"]:
            E(f"buffer_load_dwordx4 v[{G+4*q}:{G+4*q+3}], v{o+q}, s[36:39], 0 offen")

def k2():
    kernel_start("standalone__edge_featured_mpnn_egc__graph_kernel")
    STAMP_INIT(12)
    E(f"""
    s_and_b32 s20, s2, 1                    ; half
    s_bfe_u32 s30, s2, 0x20001              ; (id>>1)&3
    s_lshl_b32 s30, s30, 5
    s_lshr_b32 s31, s2, 3
    s_add_u32 s21, s30, s31                 ; bucket
    s_cmp_ge_u32 s2, 256
    s_cbranch_scc1 L_k2_end
    s_cmp_ge_u32 s21, {NBUCK}
    s_cbranch_scc1 L_k2_end
    s_mov_b32 s47, {OPT["force_safe"]}
    v_lshrrev_b32 v2, 6, v0
    v_and_b32 v1, 63, v0
    v_readfirstlane_b32 s3, v2
    """)
    STAMP(0)
    E(f"""
L_k2_restart:
    s_load_dwordx2 s[28:29], s[0:1], 0      ; x
    s_load_dwordx2 s[26:27], s[0:1], 32     ; u_w
    s_load_dwordx4 s[12:15], s[0:1], 48     ; g_w, out
    s_load_dwordx2 s[16:17], s[0:1], 72     ; ws
    s_mov_b32 s40, {f32(-LOG2E)}
    s_mov_b32 s42, {f32(2.0**32)}
    s_mov_b32 s46, 0x3f80
    s_mov_b32 s44, 512
    s_mov_b32 s45, 512
    s_cmp_ge_u32 s3, 8
    s_cbranch_scc1 L_k2_rec
    """)
    st = gemm_stage(L_W, L_X, "k2")
    next(st)
    E(f"""
    s_mov_b64 s[24:25], s[12:13]            ; A = g_w rows 0..127
    """)
    next(st)
    E(f"""
    s_cmp_lg_u32 s3, 7
    s_cbranch_scc1 L_k2_noc
    v_bfe_u32 v2, v1, 3, 2
    v_and_b32 v3, 7, v1
    v_lshlrev_b32 v3, 4, v3
    v_lshl_add_u32 v2, v2, 8, v3
    s_lshl_b32 s30, s20, 7
    s_add_u32 s30, s30, {256*256}
    v_add_u32 v2, s30, v2
    s_mov_b32 m0, {L_C}
    s_nop 0
    global_load_lds_dwordx4 v2, s[24:25]
L_k2_noc:
    s_branch L_k2_pf
L_k2_rec:
    s_lshl_b32 s30, s21, 10
    s_sub_u32 s31, s3, 8
    s_lshl_b32 s31, s31, 7
    s_add_u32 s30, s30, s31
    s_add_u32 s30, s30, {WS_OFF}
    v_lshrrev_b32 v2, 4, v1
    v_lshl_add_u32 v2, v2, 5, s30
    s_waitcnt lgkmcnt(0)
    global_load_dwordx4 v[64:67], v2, s[16:17]
    global_load_dwordx4 v[68:71], v2, s[16:17] offset:16
L_k2_pf:
    """)
    STAMP(1)
    prefill()
    E(f"""
    s_mul_i32 s30, s20, {G_HALF}
    s_add_u32 s36, s16, s30
    s_addc_u32 s37, s17, 0
    s_mov_b32 s38, {G_HALF}
    s_mov_b32 s39, 0x20000
    s_add_u32 s18, s16, {WS_REC}
    s_addc_u32 s19, s17, 0
    s_cmp_ge_u32 s3, 8
    s_cbranch_scc1 L_k2_rec2
    """)
    gemm_addr(L_W, L_X)
    E(f"""
    s_mul_i32 s30, s23, {48*NSTR}
    s_lshl_b32 s31, s22, 5
    s_add_u32 s30, s30, s31
    s_add_u32 s30, s30, {L_NODE}
    v_mul_u32_u24 v11, {NSTR}, v4
    v_lshl_add_u32 v11, v2, 3, v11
    v_add_u32 v11, s30, v11
    s_waitcnt vmcnt(0) lgkmcnt(0)
    """)
    STAMP(2)
    E("s_barrier                               ; B1")
    STAMP(3)
    gemm_reads()
    gemm_xreads(1)
    E("s_waitcnt lgkmcnt(4)")
    gemm_mfma(0, True)
    E("s_cmp_lg_u32 s23, 0\ns_cbranch_scc1 L_k2_g1")
    gemm_xreads(2)
    E("L_k2_g1:\ns_waitcnt lgkmcnt(0)\ns_barrier")
    gemm_mfma(1, True)
    def fin(rt):
        a = AC + 8*rt; u = a + 4
        E(f"""
        v_pk_mul_f32 v[{a}:{a+1}], v[{a}:{a+1}], s[40:41] op_sel_hi:[1,0]
        v_pk_mul_f32 v[{a+2}:{a+3}], v[{a+2}:{a+3}], s[40:41] op_sel_hi:[1,0]
        v_pk_mul_f32 v[{u}:{u+1}], v[{u}:{u+1}], s[42:43] op_sel_hi:[1,0]
        v_pk_mul_f32 v[{u+2}:{u+3}], v[{u+2}:{u+3}], s[42:43] op_sel_hi:[1,0]
        v_cvt_pk_bf16_f32 v{a}, v{a}, v{a+1}
        v_cvt_pk_bf16_f32 v{a+1}, v{a+2}, v{a+3}
        v_cvt_f64_f32 v[2:3], v{u}
        v_cvt_f64_f32 v[4:5], v{u+1}
        v_cvt_f64_f32 v[6:7], v{u+2}
        v_cvt_f64_f32 v[8:9], v{u+3}
        ds_write_b64 v11, v[{a}:{a+1}] offset:512
        ds_write2_b64 v11, v[2:3], v[4:5] offset0:0 offset1:16
        ds_write2_b64 v11, v[6:7], v[8:9] offset0:32 offset1:48
        v_add_u32 v11, {16*NSTR}, v11
        """)
    fin(0)
    E("s_cmp_lg_u32 s23, 0\ns_cbranch_scc1 L_k2_g2")
    gemm_mfma(2, True)
    fin(1)
    fin(2)
    E("s_branch L_k2_gdone")
    E("L_k2_g2:")
    fin(1)
    E("L_k2_gdone:")
    cw_reads()
    main_c = True
    E("s_waitcnt lgkmcnt(0)")
    cw_finish()
    main_consts()
    E("s_branch L_k2_b2")
    RA = 72
    E(f"""
L_k2_rec2:
    """)
    main_consts()
    E(f"""
    v_and_b32 v2, 15, v1
    v_mul_u32_u24 v2, 3, v2                 ; 3j
    v_add_u32 v3, 48, v2
    v_mov_b32 v60, 4
    v_mov_b32 v61, 8
    v_mov_b32 v62, 0
    s_movk_i32 s33, {NSTR//4}
    v_mov_b32 v63, {L_NODE}
    s_cmp_lg_u32 s47, 0
    s_cbranch_scc1 L_k2_recskip
    s_waitcnt vmcnt(0)
    """)
    STAMP(2)
    for p in range(8):
        E(f"""
        v_and_b32 v{36+p}, 0xfff, v{64+p}
        v_lshrrev_b32 v{64+p}, 12, v{64+p}
        v_add_lshl_u32 v{64+p}, v{64+p}, v2, 2
        """)
    E(f"""
    v_max3_u32 v44, v36, v37, v38
    v_max3_u32 v45, v39, v40, v41
    v_max3_u32 v44, v44, v42, v43
    v_max_u32 v44, v44, v45
    v_cmp_lt_u32 vcc, 96, v44
    s_cbranch_vccnz L_k2_toobig
    """)
    def recload(p, base, jreg, off):
        r = base + 4*p
        E(f"global_load_dwordx3 v[{r}:{r+2}], v{64+p}, s[18:19]" + (f" offset:{off}" if off else ""))
    for p in range(8):
        E(f"v_cmp_gt_u32 vcc, v{36+p}, v2\ns_mov_b64 exec, vcc")
        E(f"s_cbranch_execz L_k2_nl{p}")
        recload(p, RA, 2, 0)
        E(f"L_k2_nl{p}:\ns_mov_b64 exec, -1")
    E("s_waitcnt lgkmcnt(0)")
    E("s_barrier                               ; B1")
    STAMP(3)
    cw_reads_late = True
    def place(plist, base, jreg, tag):
        for p in plist:
            r = base + 4*p
            E(f"""
            v_cmp_gt_u32 s[{48+2*(p%4)}:{49+2*(p%4)}], v{36+p}, v{jreg}
            v_lshrrev_b32 v{44+(p%4)}, 22, v{r+2}
            v_and_b32 v{r+2}, 0x3fffff, v{r+2}
            s_mov_b64 exec, s[{48+2*(p%4)}:{49+2*(p%4)}]
            ds_add_rtn_u32 v{48+2*(p%4)}, v{44+(p%4)}, v60 offset:{L_CNT}
            s_mov_b64 exec, -1
            """)
        E("s_waitcnt lgkmcnt(0)")
        for p in plist:
            r = base + 4*p; a = 48 + 2*(p % 4)
            E(f"""
            s_mov_b64 exec, s[{48+2*(p%4)}:{49+2*(p%4)}]
            ds_write_b32 v{a}, v{r+2}
            v_lshlrev_b32 v{r+3}, 1, v{a}
            v_and_b32 v{56+(p%4)}, 31, v{a}
            ds_write_b64 v{r+3}, v[{r}:{r+1}] offset:{L_EA - 2*L_SRC}
            v_cmp_eq_u32 s[{48+2*(p%4)}:{49+2*(p%4)}], 0, v{56+(p%4)}
            v_mad_u32_u24 v{a+1}, v{44+(p%4)}, s33, v63
            s_mov_b64 exec, s[{48+2*(p%4)}:{49+2*(p%4)}]
            ds_add_rtn_u32 v{56+(p%4)}, v62, v61 offset:{L_LCNT}
            """)
        E("s_waitcnt lgkmcnt(0)")
        for p in plist:
            a = 48 + 2*(p % 4)
            E(f"""
            s_mov_b64 exec, s[{48+2*(p%4)}:{49+2*(p%4)}]
            ds_write_b64 v{56+(p%4)}, v[{a}:{a+1}]
            """)
        E("s_mov_b64 exec, -1")
    E("s_barrier                               ; B1b\ns_waitcnt vmcnt(0)")
    STAMP(4)
    place(range(0, 4), RA, 2, "a")
    place(range(4, 8), RA, 2, "b")
    E(f"""
    v_max3_u32 v44, v36, v37, v38
    v_max3_u32 v45, v39, v40, v41
    v_max3_u32 v44, v44, v42, v43
    v_max_u32 v44, v44, v45
    v_cmp_lt_u32 vcc, 48, v44
    s_cbranch_vccz L_k2_recdone
    """)
    for p in range(8):
        E(f"v_cmp_gt_u32 vcc, v{36+p}, v3\ns_mov_b64 exec, vcc")
        E(f"s_cbranch_execz L_k2_nm{p}")
        recload(p, RA, 3, 192)
        E(f"L_k2_nm{p}:\ns_mov_b64 exec, -1")
    E("s_waitcnt vmcnt(0)")
    place(range(0, 4), RA, 3, "c")
    place(range(4, 8), RA, 3, "d")
    E(f"""
    s_branch L_k2_recdone
L_k2_toobig:
    s_waitcnt lgkmcnt(0)
    s_barrier                               ; B1
    s_barrier                               ; B1b
    ds_write_b32 v62, v60 offset:{L_FLAG}
    s_branch L_k2_recdone
L_k2_recskip:
    s_waitcnt vmcnt(0) lgkmcnt(0)
    s_barrier                               ; B1
    s_barrier                               ; B1b
L_k2_recdone:
    """)
    cw_reads()
    E("s_waitcnt lgkmcnt(0)")
    cw_finish()
    E(f"""
L_k2_b2:
    s_waitcnt lgkmcnt(0)
    """)
    STAMP(5)
    E(f"""
    s_barrier                               ; B2
    s_cmp_lg_u32 s47, 0
    s_cbranch_scc1 L_k2_safe
    v_lshlrev_b32 v2, 3, v1
    v_mov_b32 v3, 0
    ds_read_b64 v[{W1}:{W1+1}], v{LP}
    ds_read_b32 v{W2}, v{LP+1}
    ds_read_b64 v[60:61], v3 offset:{L_LCNT}
    ds_read_b64 v[62:63], v2 offset:{L_CNT}
    v_lshlrev_b32 v2, 9, v1
    v_add_u32 v2, {L_SRC + 256}, v2
    v_add_u32 v3, 256, v2
    s_waitcnt lgkmcnt(2)
    ds_read_b128 v[{OFS}:{OFS+3}], v{W1}
    ds_read_b128 v[{OFS+4}:{OFS+7}], v{W1} offset:16
    v_add_u32 v{AG}, v{W1+1}, v{LN4}
    v_lshl_add_u32 v{EAD}, v{W2}, 1, v{EAC}
    ds_read_b64 v[{XA}:{XA+1}], v{AG} offset:512
    ds_read_b64 v[{EA}:{EA+1}], v{EAD}
    s_waitcnt lgkmcnt(4)
    v_cmp_gt_u32 s[48:49], v62, v2
    v_cmp_gt_u32 s[50:51], v63, v3
    v_readfirstlane_b32 s30, v60
    v_readfirstlane_b32 s31, v61
    s_or_b64 s[48:49], s[48:49], s[50:51]
    s_cbranch_scc1 L_k2_gosafe
    s_cmp_lg_u32 s31, 0
    s_cbranch_scc1 L_k2_gosafe
    s_sub_u32 s30, s30, {L_LIST - 31}
    s_lshr_b32 s30, s30, 5
    s_min_u32 s30, s30, 160
    s_cmp_ge_u32 s3, s30
    s_cbranch_scc1 L_k2_mdone
    s_add_u32 s31, s3, 16
    s_waitcnt lgkmcnt(2)
    """)
    gathers(G0, OFS)
    gathers(G1, OFS+4)
    STAMP(6)
    if OPT["stamps"]: E("s_memtime s[84:85]\ns_waitcnt lgkmcnt(0)")
    E(f"""
L_k2_loop:
    v_lshl_add_u64 v[{LP}:{LP+1}], v[{LP}:{LP+1}], 0, s[44:45]
    s_waitcnt lgkmcnt(0)
    ds_read_b64 v[{W1}:{W1+1}], v{LP}
    ds_read_b32 v{W2}, v{LP+1}
    v_mfma_f32_32x32x8_bf16 v[{D}:{D+15}], v[{ASEL}:{ASEL+1}], v[{XA}:{XA+1}], 0
    v_mfma_f32_16x16x4_4b_bf16 v[{D}:{D+15}], v[{EA}:{EA+1}], v[{CW}:{CW+1}], v[{D}:{D+15}] cbsz:2 abid:0
    s_waitcnt vmcnt(4)
    v_smfmac_f32_32x32x32_bf16 v[{D}:{D+15}], v[{A1}:{A1+3}], v[{G0}:{G0+7}], v{IDX}
    v_smfmac_f32_32x32x32_bf16 v[{D}:{D+15}], v[{A2}:{A2+3}], v[{G0+8}:{G0+15}], v{IDX}
    s_waitcnt lgkmcnt(0)
    ds_read_b128 v[{OFS}:{OFS+3}], v{W1}
    ds_read_b128 v[{OFS+4}:{OFS+7}], v{W1} offset:16
    v_lshl_add_u32 v{EAD}, v{W2}, 1, v{EAC}
    s_nop 7
    """)
    chain(G0, 0, True)
    E(f"""
    s_cmp_ge_u32 s31, s30
    s_cbranch_scc1 L_k2_last0
    s_waitcnt lgkmcnt(0)
    """)
    gathers(G0, OFS)
    E(f"""
L_k2_last0r:
    v_mfma_f32_32x32x8_bf16 v[{D}:{D+15}], v[{ASEL}:{ASEL+1}], v[{XA}:{XA+1}], 0
    v_mfma_f32_16x16x4_4b_bf16 v[{D}:{D+15}], v[{EA}:{EA+1}], v[{CW}:{CW+1}], v[{D}:{D+15}] cbsz:2 abid:1
    s_waitcnt vmcnt(4)
    v_smfmac_f32_32x32x32_bf16 v[{D}:{D+15}], v[{A1}:{A1+3}], v[{G1}:{G1+7}], v{IDX}
    v_smfmac_f32_32x32x32_bf16 v[{D}:{D+15}], v[{A2}:{A2+3}], v[{G1+8}:{G1+15}], v{IDX}
    ds_read_b64 v[{EA}:{EA+1}], v{EAD}
    s_nop 10
    """)
    chain(G1, 4, False)
    E(f"""
    s_cmp_ge_u32 s31, s30
    s_cbranch_scc1 L_k2_last1
    """)
    gathers(G1, OFS+4)
    E(f"""
L_k2_last1:
    v_rcp_f32 v{P}, v{P}
    v_rcp_f32 v{P+1}, v{P+1}
    v_rcp_f32 v{P+2}, v{P+2}
    v_rcp_f32 v{P+3}, v{P+3}
    v_pk_mul_f32 v[{N}:{N+1}], v[{N}:{N+1}], v[{P}:{P+1}]
    v_pk_mul_f32 v[{N+2}:{N+3}], v[{N+2}:{N+3}], v[{P+2}:{P+3}]
    v_cvt_f64_f32 v[{T}:{T+1}], v{N}
    v_cvt_f64_f32 v[{T+2}:{T+3}], v{N+1}
    v_cvt_f64_f32 v[{T+4}:{T+5}], v{N+2}
    v_cvt_f64_f32 v[{T+6}:{T+7}], v{N+3}
    ds_add_f64 v{AG}, v[{T}:{T+1}]
    ds_add_f64 v{AG}, v[{T+2}:{T+3}] offset:128
    ds_add_f64 v{AG}, v[{T+4}:{T+5}] offset:256
    ds_add_f64 v{AG}, v[{T+6}:{T+7}] offset:384
    v_add_u32 v{AG}, v{W1+1}, v{LN4}
    s_cmp_ge_u32 s31, s30
    s_cbranch_scc1 L_k2_mdone
    ds_read_b64 v[{XA}:{XA+1}], v{AG} offset:512
    s_add_u32 s31, s31, 16
    s_branch L_k2_loop
L_k2_last0:
    s_waitcnt vmcnt(0)
    s_branch L_k2_last0r
L_k2_mdone:
    s_waitcnt lgkmcnt(0)
    """)
    STAMP(7)
    if OPT["stamps"]: E("s_memtime s[86:87]\ns_waitcnt lgkmcnt(0)")
    E(f"""
    s_barrier                               ; B3
    s_cmp_ge_u32 s3, 10
    s_cbranch_scc1 L_k2_edone
    v_lshrrev_b32 v2, 3, v0                 ; node
    v_and_b32 v3, 7, v0
    v_mul_u32_u24 v4, {NSTR}, v2
    v_lshl_add_u32 v4, v3, 4, v4
    v_add_u32 v4, {L_NODE}, v4
    ds_read2_b64 v[28:31], v4 offset0:0 offset1:1
    ds_read2_b64 v[32:35], v4 offset0:16 offset1:17
    ds_read2_b64 v[36:39], v4 offset0:32 offset1:33
    ds_read2_b64 v[40:43], v4 offset0:48 offset1:49
    s_mul_i32 s30, s21, {NB*256}
    s_lshl_b32 s31, s20, 7
    s_add_u32 s30, s30, s31
    v_lshlrev_b32 v3, 4, v3
    v_lshl_add_u32 v5, v2, 8, v3
    v_add_u32 v5, s30, v5
    s_mov_b32 s32, {f32(2.0**-32)}
    s_mov_b32 s34, {f32(-LOG2E * 2.0**-32)}
    s_waitcnt lgkmcnt(0)
    """)
    for i in range(8):
        E(f"v_cvt_f32_f64 v{8+i}, v[{28+2*i}:{29+2*i}]")
    for p in range(4):
        E(f"v_pk_mul_f32 v[{16+2*p}:{17+2*p}], v[{8+2*p}:{9+2*p}], s[34:35] op_sel_hi:[1,0]")
    for i in range(8):
        E(f"v_exp_f32 v{16+i}, v{16+i}")
    E(f"""
    v_pk_add_f32 v[6:7], v[8:9], v[10:11]
    v_pk_add_f32 v[24:25], v[12:13], v[14:15]
    """)
    for p in range(4):
        E(f"v_pk_add_f32 v[{16+2*p}:{17+2*p}], v[{16+2*p}:{17+2*p}], 1.0 op_sel_hi:[1,0]")
    for i in range(8):
        E(f"v_rcp_f32 v{16+i}, v{16+i}")
    for p in range(4):
        E(f"v_pk_mul_f32 v[{8+2*p}:{9+2*p}], v[{8+2*p}:{9+2*p}], s[32:33] op_sel_hi:[1,0]")
    for p in range(4):
        E(f"v_pk_mul_f32 v[{8+2*p}:{9+2*p}], v[{8+2*p}:{9+2*p}], v[{16+2*p}:{17+2*p}]")
    E(f"""
    v_cvt_pk_bf16_f32 v16, v8, v10
    v_cvt_pk_bf16_f32 v17, v12, v14
    v_cvt_pk_bf16_f32 v18, v9, v11
    v_cvt_pk_bf16_f32 v19, v13, v15
    global_store_dwordx4 v5, v[16:19], s[14:15]
    v_pk_add_f32 v[6:7], v[6:7], v[24:25]
    v_add_f32 v6, v6, v7
    v_mov_b32 v7, 0x207
    v_cmp_class_f32 vcc, v6, v7
    s_cbranch_vccz L_k2_edone
    v_mov_b32 v6, 0
    ds_write_b32 v6, v7 offset:{L_FLAG}
L_k2_edone:
    """)
    STAMP(8)
    E(f"""
    s_cmp_lg_u32 s47, 0
    s_cbranch_scc1 L_k2_fin
    s_waitcnt lgkmcnt(0)
    s_barrier                               ; B4
    v_mov_b32 v6, 0
    ds_read_b32 v6, v6 offset:{L_FLAG}
    s_waitcnt lgkmcnt(0)
    v_readfirstlane_b32 s30, v6
    s_cmp_lg_u32 s30, 0
    s_cbranch_scc1 L_k2_gosafe
L_k2_fin:
    """)
    if OPT["spin"]:
        E(f"""
        s_or_b32 s30, s2, s3
        s_cbranch_scc1 L_k2_end
        v_mov_b32 v3, {WS_STAMP}
        global_load_dword v2, v3, s[16:17]
        s_waitcnt vmcnt(0)
        v_readfirstlane_b32 s30, v2
        s_mov_b32 s31, 5000
        L_k2_spin:
        s_memrealtime s[64:65]
        s_waitcnt lgkmcnt(0)
        s_sub_u32 s31, s31, 1
        s_cmp_eq_u32 s31, 0
        s_cbranch_scc1 L_k2_end
        s_sub_u32 s64, s64, s30
        s_cmp_lt_u32 s64, {OPT["spin"]*100}
        s_cbranch_scc1 L_k2_spin
        """)
    if OPT["stamps"]:
        E("s_waitcnt vmcnt(0)"); STAMP(9); STAMP_OUT(1, 12, "s3", "k2")
    E(f"""
L_k2_end:
    s_endpgm
L_k2_gosafe:
    s_mov_b32 s47, 1
    s_waitcnt vmcnt(0) lgkmcnt(0)
    s_barrier
    s_branch L_k2_restart
    """)
    E(f"""
L_k2_safe:
    v_and_b32 v2, 15, v1
    v_lshlrev_b32 v3, 3, v2
    v_add_u32 v3, {L_C}, v3
    ds_read_b64 v[64:65], v3
    ds_read_b64 v[66:67], v3 offset:128
    ds_read_b64 v[68:69], v3 offset:256
    ds_read_b64 v[70:71], v3 offset:384
    s_waitcnt lgkmcnt(0)
    """)
    for k in range(4):
        for p in range(2):
            E(f"""
            v_lshlrev_b32 v{80+4*k+2*p}, 16, v{64+2*k+p}
            v_and_b32 v{81+4*k+2*p}, 0xffff0000, v{64+2*k+p}
            v_mul_f32 v{80+4*k+2*p}, s40, v{80+4*k+2*p}
            v_mul_f32 v{81+4*k+2*p}, s40, v{81+4*k+2*p}
            """)
    E(f"""
    v_lshrrev_b32 v24, 4, v1
    v_mul_u32_u24 v24, 3, v24               ; 3*quarter
    s_movk_i32 s33, {NSTR//4}
    v_add_u32 v25, {L_NODE}, v{LN4}
    s_lshl_b32 s30, s21, 10
    s_lshl_b32 s31, s3, 6
    s_add_u32 s30, s30, s31
    s_add_u32 s30, s30, {WS_OFF}
    s_add_u32 s31, s30, 64
L_k2_scell:
    v_mov_b32 v26, s30
    global_load_dword v27, v26, s[16:17]
    s_waitcnt vmcnt(0)
    v_and_b32 v28, 0xfff, v27               ; 3*count
    v_lshrrev_b32 v27, 12, v27
    v_mov_b32 v29, v24
L_k2_srec:
    v_cmp_gt_u32 vcc, v28, v29
    s_and_saveexec_b64 s[48:49], vcc
    s_cbranch_execz L_k2_snext
    v_add_lshl_u32 v30, v27, v29, 2
    global_load_dwordx3 v[32:34], v30, s[18:19]
    s_waitcnt vmcnt(0)
    v_and_b32 v30, 0x3fffff, v34
    v_add_u32 v30, v30, v{LN16}
    buffer_load_dwordx4 v[36:39], v30, s[36:39], 0 offen
    v_lshrrev_b32 v31, 22, v34
    v_mad_u32_u24 v31, v31, s33, v25
    ds_read_b64 v[40:41], v31 offset:512
    v_lshlrev_b32 v44, 16, v32
    v_and_b32 v45, 0xffff0000, v32
    v_lshlrev_b32 v46, 16, v33
    v_and_b32 v47, 0xffff0000, v33
    s_waitcnt vmcnt(0) lgkmcnt(0)
    v_lshlrev_b32 v48, 16, v40
    v_and_b32 v49, 0xffff0000, v40
    v_lshlrev_b32 v50, 16, v41
    v_and_b32 v51, 0xffff0000, v41
    """)
    for s in range(4):
        E(f"v_lshlrev_b32 v52, 16, v{36+s}\nv_add_f32 v{48+s}, v{48+s}, v52")
        for k in range(4):
            E(f"v_fmac_f32 v{48+s}, v{44+k}, v{80+4*k+s}")
    for s in range(4): E(f"v_exp_f32 v{48+s}, v{48+s}")
    E("s_nop 0")
    for s in range(4): E(f"v_add_f32 v{48+s}, 1.0, v{48+s}")
    for s in range(4): E(f"v_rcp_f32 v{48+s}, v{48+s}")
    E("s_nop 0")
    for s in range(4): E(f"v_mul_f32 v{48+s}, v{48+s}, v{36+s}")
    for s in range(4): E(f"v_cvt_f64_f32 v[{54+2*s}:{55+2*s}], v{48+s}")
    for s in range(4): E(f"ds_add_f64 v31, v[{54+2*s}:{55+2*s}] offset:{128*s}")
    E(f"""
    s_mov_b64 exec, s[48:49]
    v_add_u32 v29, 12, v29
    s_branch L_k2_srec
L_k2_snext:
    s_mov_b64 exec, s[48:49]
    s_add_u32 s30, s30, 4
    s_cmp_lt_u32 s30, s31
    s_cbranch_scc1 L_k2_scell
    s_branch L_k2_mdone
    """)

header()
k1()
k2()
if OPT["dummy"]:
    kernel_start("mpnn_nop_kernel"); E("s_endpgm")
E('.section .rodata,"a"\n.p2align 6')
if OPT["dummy"]:
    descriptor("mpnn_nop_kernel", 8); E(".p2align 6")
descriptor("mpnn_prep_kernel", 120)
E(".p2align 6")
descriptor("standalone__edge_featured_mpnn_egc__graph_kernel", 128)
if OPT["nomfma"]: out = [l for l in out if not ("smfmac" in l or "32x32x8" in l or "x4_4b" in l)]
if OPT["noadd"]: out = [l for l in out if not ("ds_add_f64" in l)]
if OPT["nosafe"]: out = [l.replace("s_cbranch_vccz L_k2_edone", "s_branch L_k2_edone") for l in out]
text = "\n".join(l.lstrip() if l.lstrip().startswith(";") else l for l in out) + "\n"
open(sys.argv[1], "w").write(text)
```

```python
import sys, struct

OPT = dict(stamps=0, force_safe=0, nogather=0, nosafe=0, prio=1, gsc1=1, osc=0, spin=0, codepf=1, srcmask=0x3fffff, nrec=0, warm=0, nochain=0)
for a in sys.argv[2:]:
    k, v = a.split("=")
    assert k in OPT, k
    OPT[k] = int(v, 0)

out = []
def E(s=""):
    for line in s.split("\n"):
        line = line.strip()
        if not line:
            continue
        if line.endswith(":") or line.startswith(".") or line.startswith(";"):
            out.append(line)
        else:
            out.append("    " + line)

def f32(x):
    return "0x%08x" % struct.unpack("<I", struct.pack("<f", x))[0]

NAME = "standalone__edge_featured_mpnn_egc__graph_kernel"
LOG2E = 1.4426950408889634
NB = 80; NBUCK = 125; CHUNK = 1280; NCHUNK = 250
NW = 12
G_HALF = 10000 * 256
WS_REC = 0x500000
WS_ROW = 0x900000
WS_FL2 = 0x980000
WS_TAG = 0x9c0000
WS_STAMP = 0x1000000
L_CNT = 0; L_DONE1 = 512; L_DONE2 = 516; L_FLAG = 520; L_NST = 524
L_SCNT = 1024; L_SOFF = 1536
L_LIST = 2048
SSTR = 272
L_SRC = 7936
L_EA = L_SRC + 81 * SSTR
L_EAEND = L_EA + 81 * 2 * SSTR
L_SORT = L_EA
L_WBV = 74240; L_X = L_WBV + 32768; L_WAU = L_X + 20480; L_C = L_WAU + 32768; L_DUM = L_C + 1024
LDS = L_DUM + 1024
L_NODE = L_WBV; NSTR = 640
assert L_EAEND <= L_WBV and L_NODE + 80 * NSTR <= L_WAU and LDS <= 163840 and L_EA % 16 == 0
NULL_SRC = 0x7fffff00
NSTATIC = 240
LSTR = NW * 32
POLL_MAX = 200000
SC1 = " sc1"

S_HALF, S_BUCK, S_P = 22, 23, 24
S_TAG, S_TAG8, S_SAFE = 25, 26, 27
S_N, S_K, S_IT = 70, 71, 72
ST0 = 74

def STAMP(i):
    if OPT["stamps"]:
        E(f"s_memrealtime s[{ST0+2*i}:{ST0+2*i+1}]\ns_waitcnt lgkmcnt(0)")
NSTAMP = 14
def STAMP_OUT():
    if OPT["stamps"]:
        E(f"""
        s_lshl_b32 s30, s2, 4
        s_add_u32 s30, s30, s3
        s_lshl_b32 s30, s30, 6
        s_add_u32 s30, s30, {WS_STAMP}
        s_mov_b64 exec, -1
        v_mov_b32 v3, s30""")
        for i in range(NSTAMP):
            E(f"v_mov_b32 v2, s{ST0+2*i}\nglobal_store_dword v3, v2, s[20:21] offset:{4*i}")
        E("s_waitcnt vmcnt(0)")

A1, A2, IDX, LN8, LN16, ASEL, CW, EAC = 4, 8, 12, 13, 14, 16, 18, 20
LP, WS_, WN, WE, AG, EA, XA, OFS, T, N, P, F = 22, 24, 25, 26, 27, 30, 32, 36, 44, 52, 56, 60
D0, D1, G = 72, 88, 104

def load_tag():
    E(f"""
    s_add_u32 s28, s20, {WS_TAG}
    s_addc_u32 s29, s21, 0
    s_load_dword s{S_TAG}, s[28:29], 0
    """)
def finish_tag():
    E(f"""
    s_mul_i32 s{S_TAG8}, s{S_TAG}, 0x85ebca6b
    s_mul_i32 s{S_TAG}, s{S_TAG}, 0x9e3779b1
    s_lshr_b32 s{S_TAG8}, s{S_TAG8}, 24
    s_add_u32 s{S_TAG}, s{S_TAG}, 0x7f4a7c15
    """)

def lds_wait_eq(addr, val, tag):
    E(f"""
    v_mov_b32 v2, 0
    s_mov_b32 s31, {POLL_MAX}
L_w_{tag}:
    ds_read_b32 v3, v2 offset:{addr}
    s_waitcnt lgkmcnt(0)
    v_readfirstlane_b32 s30, v3
    s_sub_u32 s31, s31, 1
    s_cmp_eq_u32 s31, 0
    s_cbranch_scc1 L_wd_{tag}
    s_cmp_eq_u32 s30, {val}
    s_cbranch_scc1 L_wd_{tag}
    s_sleep 1
    s_branch L_w_{tag}
L_wd_{tag}:
    """)

def main_consts():
    E(f"""
    v_lshrrev_b32 v2, 4, v1
    v_bfe_u32 v3, v1, 2, 2
    v_lshlrev_b32 v2, 5, v2
    v_lshl_add_u32 v2, v3, 7, v2
    v_and_b32 v63, 3, v1                    ; q
    v_lshl_add_u32 v2, v63, 3, v2
    v_add_u32 v2, {L_C}, v2
    ds_read_b64_tr_b16 v[{CW}:{CW+1}], v2
    v_and_b32 v2, 15, v1                    ; n'
    v_lshlrev_b32 v{LN8}, 3, v2
    v_lshlrev_b32 v{LN16}, 4, v2
    v_lshlrev_b32 v{LN16+1}, 4, v2
    v_mov_b32 v{IDX}, 0x8888
    v_bfe_u32 v60, v1, 3, 2                 ; s = (l&31)>>3
    v_bfe_u32 v61, v1, 2, 1                 ; h = (l>>2)&1
    v_lshrrev_b32 v62, 5, v1                ; ha
    v_and_b32 v2, 1, v60
    v_lshlrev_b32 v2, 4, v2
    v_lshlrev_b32 v2, v2, s46
    v_lshrrev_b32 v60, 1, v60               ; s>>1
    v_lshl_add_u32 v3, v61, 1, v60
    v_sub_u32 v63, v63, v62                 ; q - ha : 0 -> A1, 2 -> A2
    v_lshl_add_u32 v3, v63, 1, v3
    v_and_b32 v63, 1, v63
    v_lshl_or_b32 v3, v63, 4, v3
    v_xor_b32 v61, v61, v62
    v_lshl_or_b32 v60, v61, 4, v60
    """)
    for i in range(8):
        E(f"v_cmp_eq_u32 s[{48+2*(i%4)}:{49+2*(i%4)}], {i}, v3")
        if i % 4 == 3:
            for j in range(i-3, i+1):
                E(f"v_cndmask_b32 v{A1+j}, 0, v2, s[{48+2*(j%4)}:{49+2*(j%4)}]")
    E(f"""
    v_cmp_eq_u32 s[48:49], 0, v60
    v_cmp_eq_u32 s[50:51], 1, v60
    v_bfe_u32 v61, v1, 4, 1
    v_and_b32 v63, 3, v1
    v_cndmask_b32 v{ASEL}, 0, v2, s[48:49]
    v_cndmask_b32 v{ASEL+1}, 0, v2, s[50:51]
    v_lshl_add_u32 v61, v61, 2, v63
    v_lshlrev_b32 v61, 3, v61
    v_add_u32 v{EAC}, {L_EA - 2*L_SRC}, v61
    s_lshl_b32 s30, s3, 5
    s_add_u32 s30, s30, {L_LIST}
    v_lshrrev_b32 v2, 4, v1
    v_lshl_add_u32 v{LP}, v2, 3, s30
    v_bfe_u32 v2, v1, 2, 2
    v_lshl_add_u32 v{LP+1}, v2, 3, s30
    s_waitcnt lgkmcnt(0)
    v_lshlrev_b32 v60, 16, v{CW}
    v_and_b32 v61, 0xffff0000, v{CW}
    v_lshlrev_b32 v62, 16, v{CW+1}
    v_and_b32 v63, 0xffff0000, v{CW+1}
    v_mul_f32 v60, s40, v60
    v_mul_f32 v61, s40, v61
    v_mul_f32 v62, s40, v62
    v_mul_f32 v63, s40, v63
    v_cvt_pk_bf16_f32 v{CW}, v60, v61
    v_cvt_pk_bf16_f32 v{CW+1}, v62, v63
    """)

def gload(g, o):
    return f"buffer_load_dwordx4 v[{g}:{g+3}], v{o}, s[36:39], 0 offen" + (SC1 if OPT["gsc1"] else "")
def oadd(o):
    return f"v_lshl_add_u64 v[{o}:{o+1}], v[{o}:{o+1}], 0, v[{LN16}:{LN16+1}]"

def pk_steps(Gc, q, first):
    t = T + 4*(q & 1); h = Gc + 4*q
    if first and q == 0:
        return [f"v_pk_add_f32 v[{P+2*p}:{P+2*p+1}], v[{t+2*p}:{t+2*p+1}], 1.0 op_sel_hi:[1,0]" for p in range(2)]
    r = []
    for p in range(2):
        n = f"v[{Gc+2*p}:{Gc+2*p+1}]" if (first and q == 1) else f"v[{N+2*p}:{N+2*p+1}]"
        r.append(f"v_pk_fma_f32 v[{N+2*p}:{N+2*p+1}], {n}, v[{t+2*p}:{t+2*p+1}], {n}")
    for p in range(2):
        r.append(f"v_pk_fma_f32 v[{N+2*p}:{N+2*p+1}], v[{h+2*p}:{h+2*p+1}], v[{P+2*p}:{P+2*p+1}], v[{N+2*p}:{N+2*p+1}]")
    for p in range(2):
        r.append(f"v_pk_fma_f32 v[{P+2*p}:{P+2*p+1}], v[{P+2*p}:{P+2*p+1}], v[{t+2*p}:{t+2*p+1}], v[{P+2*p}:{P+2*p+1}]")
    return r
def exps(Dc, q):
    t = T + 4*(q & 1)
    return [f"v_exp_f32 v{t+s}, v{Dc+4*s+q}" for s in range(4)]
def weave(main, extra):
    for i, x in enumerate(main):
        E(x)
        for y in extra.get(i, []):
            E(y)
def m_a(Dn): return f"v_mfma_f32_32x32x8_bf16 v[{Dn}:{Dn+15}], v[{ASEL}:{ASEL+1}], v[{XA}:{XA+1}], 0"
def m_e(Dn, abid): return f"v_mfma_f32_16x16x4_4b_bf16 v[{Dn}:{Dn+15}], v[{EA}:{EA+1}], v[{CW}:{CW+1}], v[{Dn}:{Dn+15}] cbsz:2 abid:{abid}"
def m_s(Dn, A, g): return f"v_smfmac_f32_32x32x32_bf16 v[{Dn}:{Dn+15}], v[{A}:{A+3}], v[{g}:{g+7}], v{IDX}"

def body(par, loads):
    g0 = G + 32*par; g1 = g0 + 16; gn = G + 32*(1-par)
    agc = AG + par; agn = AG + 1 - par
    ld = loads and not OPT["nogather"]
    E("s_waitcnt vmcnt(8) lgkmcnt(4)")
    E(m_a(D1))
    for x in exps(D0, 0): E(x)
    E(m_s(D1, A1, g1))
    for x in exps(D0, 1): E(x)
    ex = {0: [f"v_add_u32 v{agn}, v{WN}, v{LN8}"],
          2: [f"ds_read_b64 v[{XA}:{XA+1}], v{agn} offset:512"],
          5: [f"v_lshl_add_u32 v{WE}, v{WE}, 1, v{EAC}"]}
    if loads:
        ex[1] = [f"ds_read_b128 v[{OFS}:{OFS+3}], v{WS_}"]
        ex[3] = [f"ds_read_b128 v[{OFS+4}:{OFS+7}], v{WS_} offset:16"]
    weave(pk_steps(g0, 0, True) + pk_steps(g0, 1, True), ex)
    E(m_e(D1, 1))
    for x in exps(D0, 2): E(x)
    E(m_s(D1, A2, g1+8))
    for x in exps(D0, 3): E(x)
    ex = {0: ["s_waitcnt lgkmcnt(0)", f"ds_read_b64 v[{EA}:{EA+1}], v{WE}"]}
    if loads:
        ex[0] += [oadd(OFS)]
        ex[2] = [oadd(OFS+2)]
    if ld:
        ex[1] = [gload(g0, OFS)]
        ex[3] = [gload(g0+4, OFS+1)]
        ex[5] = [gload(g0+8, OFS+2)]
        ex[9] = [gload(g0+12, OFS+3)]
    weave(pk_steps(g0, 2, False) + pk_steps(g0, 3, False), ex)
    E(f"s_waitcnt vmcnt({8 if loads else 4})")
    E(m_a(D0))
    for x in exps(D1, 0): E(x)
    E(m_s(D0, A1, gn))
    for x in exps(D1, 1): E(x)
    ex = {10: ["s_waitcnt lgkmcnt(0)"]}
    if loads:
        ex[0] = [oadd(OFS+4)]
        ex[2] = [oadd(OFS+6)]
    if ld:
        ex[5] = [gload(g1, OFS+4)]
        ex[10] = [gload(g1+4, OFS+5)] + ex[10]
    weave(pk_steps(g1, 0, False) + pk_steps(g1, 1, False), ex)
    E(m_e(D0, 0))
    for x in exps(D1, 2): E(x)
    E(m_s(D0, A2, gn+8))
    for x in exps(D1, 3): E(x)
    o = LSTR * par
    ex = {0: [f"ds_read_b32 v{WN}, v{LP} offset:{o + 2*LSTR + 4}"],
          1: [f"ds_read_b32 v{WE}, v{LP+1} offset:{o + 2*LSTR}"],
          2: [f"ds_read_b32 v{WS_}, v{LP} offset:{o + 3*LSTR}"]}
    if ld:
        ex[5] = [gload(g1+8, OFS+6)]
        ex[9] = [gload(g1+12, OFS+7)]
    weave(pk_steps(g1, 2, False) + pk_steps(g1, 3, False), ex)
    E(f"""
    v_rcp_f32 v{P}, v{P}
    v_rcp_f32 v{P+1}, v{P+1}
    v_rcp_f32 v{P+2}, v{P+2}
    v_rcp_f32 v{P+3}, v{P+3}
    v_pk_mul_f32 v[{N}:{N+1}], v[{N}:{N+1}], v[{P}:{P+1}]
    v_pk_mul_f32 v[{N+2}:{N+3}], v[{N+2}:{N+3}], v[{P+2}:{P+3}]
    """)
    if par == 1:
        E(f"v_lshl_add_u64 v[{LP}:{LP+1}], v[{LP}:{LP+1}], 0, s[44:45]")
    for s in range(4):
        E(f"v_cvt_f64_f32 v[{F+2*s}:{F+2*s+1}], v{N+s}")
        if s: E(f"ds_add_f64 v{agc}, v[{F+2*s-2}:{F+2*s-1}] offset:{128*(s-1)}")
    E(f"s_add_u32 s{S_K}, s{S_K}, {NW}")
    E(f"ds_add_f64 v{agc}, v[{F+6}:{F+7}] offset:384")
    if not loads:
        E("s_waitcnt vmcnt(0)")

E(f"""
; @launch grid=(256,1,1) block=({64*NW},1,1) lds={LDS}
.amdgcn_target "amdgcn-amd-amdhsa--gfx950"
.text
.globl {NAME}
.p2align 8
.type {NAME},@function
{NAME}:
""")
if OPT["stamps"]:
    for i in range(NSTAMP): E(f"s_mov_b64 s[{ST0+2*i}:{ST0+2*i+1}], 0")
STAMP(0)
E(f"""
    s_load_dwordx16 s[4:19], s[0:1], 0
    s_load_dwordx2 s[20:21], s[0:1], 72
    v_lshrrev_b32 v2, 6, v0
    v_and_b32 v1, 63, v0
    v_readfirstlane_b32 s3, v2
    s_and_b32 s{S_HALF}, s2, 1
    s_bfe_u32 s30, s2, 0x20001
    s_lshl_b32 s30, s30, 5
    s_lshr_b32 s31, s2, 3
    s_add_u32 s{S_BUCK}, s30, s31
    s_cmp_ge_u32 s2, 256
    s_cbranch_scc1 L_end
    s_cmp_ge_u32 s{S_BUCK}, {NBUCK}
    s_cbranch_scc1 L_end
    s_lshl_b32 s{S_P}, s{S_BUCK}, 1
    s_add_u32 s{S_P}, s{S_P}, s{S_HALF}
    s_mov_b32 s{S_SAFE}, 0
    s_cmp_ge_u32 s3, 5
    s_cbranch_scc1 L_nosort
    s_mul_i32 s30, s{S_P}, {CHUNK*4}
    v_lshl_add_u32 v3, v0, 4, s30
    v_lshlrev_b32 v22, 1, v3
    v_lshlrev_b32 v31, 3, v1
    v_mov_b32 v48, 0
    v_mov_b32 v49, 0
    v_mov_b32 v23, {WS_TAG}
    ds_write_b64 v31, v[48:49] offset:{L_SCNT}
    s_waitcnt lgkmcnt(0)
    global_load_dwordx4 v[4:7], v3, s[10:11]
    global_load_dwordx4 v[8:11], v3, s[8:9]
    global_load_dwordx4 v[12:15], v22, s[6:7]
    global_load_dwordx4 v[16:19], v22, s[6:7] offset:16
    global_load_dword v43, v23, s[20:21]
    s_barrier                               ; B0
""")
STAMP(1)
E(f"""
    v_mov_b32 v50, 0
    v_mov_b32 v51, 0
    v_mov_b32 v21, 1
    v_mov_b32 v20, 3
    s_mov_b32 s31, 52429
    s_movk_i32 s32, -20
    v_lshlrev_b32 v33, 4, v0
    s_mul_i32 s30, s{S_P}, {CHUNK*12}
    s_add_u32 s30, s30, {WS_REC}
    v_add_u32 v32, s30, v33
    v_add_u32 v34, 5120, v32
    v_add_u32 v35, 10240, v32
    s_mov_b32 s34, {POLL_MAX}
    s_waitcnt vmcnt(4)
""")
STAMP(2)
for i in range(4):
    E(f"""
    v_mul_u32_u24 v{22+i}, s31, v{4+i}
    v_lshrrev_b32 v{22+i}, 22, v{22+i}
    v_lshlrev_b32 v{22+i}, 2, v{22+i}        ; bucket*4
    ds_add_rtn_u32 v{26+i}, v{22+i}, v20 offset:{L_SCNT}
    """)
E(f"""
    s_mov_b64 exec, 1
    ds_add_u32 v48, v21 offset:{L_SCNT + 127*4}
    s_mov_b64 exec, -1
""")
for i in range(4):
    E(f"""
    v_mad_i32_i24 v{4+i}, v{22+i}, s32, v{4+i}
    v_lshlrev_b32 v{4+i}, 24, v{4+i}
    """)
E(f"""
L_s1:
    ds_read_b32 v38, v48 offset:{L_SCNT + 127*4}
    ds_read_b64 v[36:37], v31 offset:{L_SCNT}
    s_sub_u32 s34, s34, 1
    s_cbranch_scc1 L_s1d
    s_waitcnt lgkmcnt(0)
    v_readfirstlane_b32 s30, v38
    s_cmp_lg_u32 s30, 5
    s_cbranch_scc1 L_s1
L_s1d:
""")
def scan(r):
    for m in ("row_shr:1 row_mask:0xf bank_mask:0xf bound_ctrl:0", "row_shr:2 row_mask:0xf bank_mask:0xf bound_ctrl:0",
              "row_shr:4 row_mask:0xf bank_mask:0xf bound_ctrl:0", "row_shr:8 row_mask:0xf bank_mask:0xf bound_ctrl:0",
              "row_bcast:15 row_mask:0xa bank_mask:0xf", "row_bcast:31 row_mask:0xc bank_mask:0xf"):
        E(f"s_nop 1\nv_add_u32_dpp v{r}, v{r}, v{r} {m}")
E(f"""
    v_add_u32 v38, v36, v37
    v_add_u32 v39, v36, v37
""")
scan(39)
E(f"""
    v_sub_u32 v40, v39, v38
    v_add_u32 v40, {L_SORT//4}, v40
    v_add_u32 v41, v40, v36
    ds_write_b64 v31, v[40:41] offset:{L_SOFF}
""")
for i in range(4):
    E(f"ds_read_b32 v{22+i}, v{22+i} offset:{L_SOFF}")
E("s_waitcnt vmcnt(1)")
for i in range(4):
    E(f"v_lshl_or_b32 v{4+i}, v{8+i}, 8, v{4+i}")
for i in range(4):
    E(f"""
    s_waitcnt lgkmcnt({3 + i})
    v_add_lshl_u32 v{22+i}, v{22+i}, v{26+i}, 2
    ds_write_b32 v{22+i}, v{4+i} offset:8
    ds_write2_b32 v{22+i}, v{12+2*i}, v{13+2*i} offset0:0 offset1:1
    """)
E(f"""
    s_mov_b64 exec, 1
    ds_add_u32 v48, v21 offset:{L_SCNT + 126*4}
    s_mov_b64 exec, -1
L_s2:
    ds_read_b32 v38, v48 offset:{L_SCNT + 126*4}
    ds_read_b128 v[4:7], v33 offset:{L_SORT}
    ds_read_b128 v[8:11], v33 offset:{L_SORT+5120}
    ds_read_b128 v[12:15], v33 offset:{L_SORT+10240}
    s_sub_u32 s34, s34, 1
    s_cbranch_scc1 L_s2d
    s_waitcnt lgkmcnt(3)
    v_readfirstlane_b32 s30, v38
    s_cmp_lg_u32 s30, 5
    s_cbranch_scc1 L_s2
L_s2d:
    s_waitcnt lgkmcnt(2)
    global_store_dwordx4 v32, v[4:7], s[20:21] sc1
    s_waitcnt lgkmcnt(1)
    global_store_dwordx4 v34, v[8:11], s[20:21] sc1
    s_waitcnt lgkmcnt(0)
    global_store_dwordx4 v35, v[12:15], s[20:21] sc1
    ds_write_b128 v33, v[48:51] offset:{L_SORT}
    ds_write_b128 v33, v[48:51] offset:{L_SORT+5120}
    ds_write_b128 v33, v[48:51] offset:{L_SORT+10240}
""")
STAMP(3)
E(f"""
    s_waitcnt vmcnt(3)
    v_readfirstlane_b32 s{S_TAG}, v43
    s_mov_b32 s33, s3
    s_barrier                               ; B2
""")
finish_tag()
E(f"""
    s_lshl_b32 s30, s{S_TAG8}, 24
    s_sub_u32 s30, s30, {L_SORT//4}
    v_add_u32 v40, s30, v40
    v_add_u32 v41, s30, v41
    v_lshl_or_b32 v44, v36, 12, v40
    v_lshl_or_b32 v46, v37, 12, v41
    v_mov_b32 v45, s{S_TAG}
    v_mov_b32 v47, s{S_TAG}
    s_branch L_rec
; ---------------- waves 5..11
L_nosort:
""")
if OPT["codepf"]:
    E(f"""
    s_cmp_lg_u32 s3, 5
    s_cbranch_scc1 L_nopf
    s_getpc_b64 s[28:29]
L_pc:
    s_sub_u32 s28, s28, L_pc-{NAME}-256
    s_subb_u32 s29, s29, 0
    v_lshlrev_b32 v2, 7, v1
    v_add_u32 v3, 0x2000, v2
    v_min_u32 v3, L_codeend-{NAME}-320, v3
    global_load_dword v164, v2, s[28:29]
    global_load_dword v165, v3, s[28:29]
L_nopf:
    """)
E(f"""
L_restart:
    s_cmp_ge_u32 s3, 10
    s_cbranch_scc1 L_wdma
    s_sub_u32 s33, s3, 5
    v_lshrrev_b32 v2, 4, v1                 ; g
    v_and_b32 v4, 15, v1
    v_xor_b32 v3, v2, v4
    v_lshlrev_b32 v3, 4, v3
    v_lshl_add_u32 v6, v2, 8, v3            ; g*256 + (c^g)*16
    s_mul_i32 s30, s{S_BUCK}, {NB*256}
    s_lshl_b32 s31, s33, 12
    s_add_u32 s34, s30, s31
    v_add_u32 v6, s34, v6
    v_xor_b32 v7, 64, v6
    v_xor_b32 v8, 0x80, v6
    v_xor_b32 v9, 0xc0, v6
    s_add_u32 m0, s31, {L_X}
    s_waitcnt lgkmcnt(0)
    global_load_lds_dwordx4 v6, s[4:5]
    global_load_lds_dwordx4 v7, s[4:5] offset:1024
    global_load_lds_dwordx4 v8, s[4:5] offset:2048
    global_load_lds_dwordx4 v9, s[4:5] offset:3072
    s_barrier                               ; B0
""")
load_tag()
STAMP(1)
E(f"""
    v_subrev_u32 v10, 320, v0               ; t = 0..319
    v_lshlrev_b32 v11, 4, v10
    v_mov_b32 v12, {NULL_SRC}
    v_mov_b32 v13, {NULL_SRC}
    v_mov_b32 v14, {NULL_SRC}
    v_mov_b32 v15, {NULL_SRC}
    v_mov_b32 v16, 0
    v_mov_b32 v17, 0
    v_mov_b32 v18, 0
    v_mov_b32 v19, 0
""")
for o in (0, 5120, 10240, 15360, 81*SSTR - 5120):
    E(f"ds_write_b128 v11, v[12:15] offset:{L_SRC + o}")
E(f"v_add_u32 v20, {L_SORT + 15360}, v11")
rest = L_EAEND - (L_SORT + 15360)
for o in (0, 5120, 10240, 15360, 20480, rest - 5120):
    assert o + 5120 <= rest
    E(f"ds_write_b128 v20, v[16:19] offset:{o}")
assert rest <= 6*5120
E(f"""
    s_mov_b32 s31, 52429
    v_mul_u32_u24 v21, s31, v10
    v_lshrrev_b32 v21, 22, v21              ; block
    s_movk_i32 s32, -80
    v_mad_i32_i24 v22, v21, s32, v10        ; node
    v_mul_u32_u24 v24, {SSTR}, v22
    v_lshl_add_u32 v24, v21, 5, v24
    v_add_u32 v24, {L_SRC}, v24
    v_mul_u32_u24 v25, {NSTR}, v22
    v_add_u32 v25, {L_NODE}, v25
    v_mov_b32 v26, {L_SRC + 80*SSTR}
    v_mov_b32 v27, {L_DUM}
    v_mov_b32 v28, {L_SRC + 80*SSTR}
    v_mov_b32 v29, {L_DUM}
    v_lshlrev_b32 v23, 3, v10
    v_cmp_gt_u32 vcc, {NSTATIC}, v10
    s_and_saveexec_b64 s[48:49], vcc
    ds_write_b64 v23, v[24:25] offset:{L_LIST}
    s_mov_b64 exec, s[48:49]
    v_cmp_gt_u32 vcc, {(L_SRC - L_LIST - 8*NSTATIC)//16}, v10
    s_and_saveexec_b64 s[48:49], vcc
    ds_write_b128 v11, v[26:29] offset:{L_LIST + 8*NSTATIC}
    s_mov_b64 exec, s[48:49]
    v_mul_u32_u24 v24, {SSTR}, v10
    v_add_u32 v24, {L_SRC}, v24
    v_lshlrev_b32 v23, 2, v10
    v_add_u32 v25, {L_DUM + 256}, v23
    v_cmp_gt_u32 vcc, 128, v10
    s_and_saveexec_b64 s[48:49], vcc
    ds_write_b32 v23, v24 offset:{L_CNT}
    ds_write_b32 v25, v16
    ds_write_b128 v16, v[16:19] offset:{L_DONE1}
    s_mov_b64 exec, s[48:49]
    v_bfe_u32 v3, v1, 2, 2                  ; r
    v_lshl_add_u32 v5, v2, 3, v3            ; 8g + r
    v_lshrrev_b32 v3, 1, v3
    v_and_b32 v6, 1, v2
    v_lshl_or_b32 v3, v6, 1, v3             ; sigma
    v_lshlrev_b32 v3, 5, v3
    v_lshl_add_u32 v10, v5, 7, v3
    v_and_b32 v3, 3, v1
    v_lshl_add_u32 v10, v3, 3, v10
    v_add_u32 v10, {L_WBV}, v10
    v_xor_b32 v11, 32, v10
    v_xor_b32 v12, 64, v10
    v_xor_b32 v13, 0x60, v10
    v_xor_b32 v3, v2, v4
    v_lshlrev_b32 v3, 4, v3
    v_lshl_add_u32 v14, v4, 8, v3
    s_lshl_b32 s31, s33, 12
    s_add_u32 s31, s31, {L_X}
    v_add_u32 v14, s31, v14
    v_xor_b32 v15, 64, v14
    v_xor_b32 v16, 0x80, v14
    v_xor_b32 v17, 0xc0, v14
    s_mul_i32 s30, s{S_HALF}, {G_HALF}
    s_add_u32 s30, s30, s34
    v_lshlrev_b32 v18, 10, v2
    v_lshl_add_u32 v18, v4, 4, v18
    v_add_u32 v18, s30, v18
    s_mul_i32 s30, s33, {16*NSTR}
    s_add_u32 s30, s30, {L_NODE}
    v_mul_u32_u24 v19, {4*NSTR}, v2
    v_lshl_add_u32 v19, v4, 3, v19
    v_add_u32 v19, s30, v19
    s_mov_b32 s40, {f32(LOG2E)}
    s_mov_b32 s42, {f32(2.0**32)}
    s_mov_b32 s44, 0x07060100
    s_mov_b32 s45, 0x07060302
    v_mov_b32 v8, {f32(2.0**-100)}
    s_waitcnt lgkmcnt(0)
""")
finish_tag()
E("s_waitcnt vmcnt(0)")
STAMP(2)
E("s_barrier                               ; B2")
STAMP(3)
XF = 20; WF = 36; AC1 = 84; AC2 = 116; PK = 148
for ks in range(4):
    E(f"ds_read_b128 v[{XF+4*ks}:{XF+4*ks+3}], v{14+ks}")
units = [(gm, tau, t) for gm in range(2) for tau in range(4) for t in range(2)]
def wreads(u):
    gm, tau, t = units[u]
    b = WF + 16*(u % 3)
    if gm == 1 and t == 0:
        E(f"v_add_u32 v{10+tau}, {L_WAU - L_WBV}, v{10+tau}")
    for ks in range(4):
        for rd in range(2):
            r = b + 4*ks + 2*rd
            E(f"ds_read_b64_tr_b16 v[{r}:{r+1}], v{10+tau} offset:{t*16384 + ks*4096 + rd*512}")
def wmfma(u):
    gm, tau, t = units[u]
    b = WF + 16*(u % 3); d = (AC1, AC2)[gm] + 16*t + 4*tau
    for ks in range(4):
        c = "0" if ks == 0 else f"v[{d}:{d+3}]"
        E(f"v_mfma_f32_16x16x32_bf16 v[{d}:{d+3}], v[{XF+4*ks}:{XF+4*ks+3}], v[{b+4*ks}:{b+4*ks+3}], {c}")
def packG():
    b = AC1; h = AC1 + 16
    for i in range(8):
        E(f"v_pk_mul_f32 v[{b+2*i}:{b+2*i+1}], v[{b+2*i}:{b+2*i+1}], s[40:41] op_sel_hi:[1,0]")
    for i in range(8):
        E(f"v_pk_fma_f32 v[{h+2*i}:{h+2*i+1}], v[{h+2*i}:{h+2*i+1}], s[42:43], v[8:9] op_sel_hi:[1,0,0]")
    E(f"s_cmp_lg_u32 s{S_SAFE}, 0\ns_cbranch_scc1 L_nogst")
    for r in range(4):
        o = PK + 4*r
        E(f"""
        v_cvt_pk_bf16_f32 v2, v{b+r}, v{b+4+r}
        v_cvt_pk_bf16_f32 v3, v{b+8+r}, v{b+12+r}
        v_xor_b32 v4, 0x80008000, v2
        v_xor_b32 v5, 0x80008000, v3
        v_sub_u32_sdwa v{h+r}, v{h+r}, sext(v2) dst_sel:DWORD dst_unused:UNUSED_PAD src0_sel:DWORD src1_sel:WORD_0
        v_sub_u32_sdwa v{h+4+r}, v{h+4+r}, sext(v2) dst_sel:DWORD dst_unused:UNUSED_PAD src0_sel:DWORD src1_sel:WORD_1
        v_sub_u32_sdwa v{h+8+r}, v{h+8+r}, sext(v3) dst_sel:DWORD dst_unused:UNUSED_PAD src0_sel:DWORD src1_sel:WORD_0
        v_sub_u32_sdwa v{h+12+r}, v{h+12+r}, sext(v3) dst_sel:DWORD dst_unused:UNUSED_PAD src0_sel:DWORD src1_sel:WORD_1
        v_perm_b32 v{o}, v{h+r}, v4, s44
        v_perm_b32 v{o+1}, v{h+4+r}, v4, s45
        v_perm_b32 v{o+2}, v{h+8+r}, v5, s44
        v_perm_b32 v{o+3}, v{h+12+r}, v5, s45
        global_store_dwordx4 v18, v[{o}:{o+3}], s[20:21] offset:{256*r} sc1
        """)
    E("L_nogst:")
wreads(0)
for u in range(16):
    if u + 1 < 16:
        wreads(u+1)
        E("s_waitcnt lgkmcnt(8)")
    else:
        E("s_waitcnt lgkmcnt(0)")
    wmfma(u)
    if u == 7:
        E("s_nop 7")
        packG()
        STAMP(4)
E(f"""
    s_mov_b32 s40, {f32(-LOG2E)}
    s_mov_b32 s46, 0x3f80
    v_mov_b32 v2, 0
    v_mov_b32 v3, 1
    s_lshl_b32 s30, s{S_P}, 7
    s_add_u32 s30, s30, {WS_FL2}
    v_mov_b32 v4, s30
    v_mov_b32 v6, s{S_TAG}
    v_mov_b32 v7, s{S_TAG8}
""")
a = AC2; u_ = AC2 + 16
for i in range(8):
    E(f"v_pk_mul_f32 v[{a+2*i}:{a+2*i+1}], v[{a+2*i}:{a+2*i+1}], s[40:41] op_sel_hi:[1,0]")
for i in range(8):
    E(f"v_pk_mul_f32 v[{u_+2*i}:{u_+2*i+1}], v[{u_+2*i}:{u_+2*i+1}], s[42:43] op_sel_hi:[1,0]")
for r in range(4):
    E(f"v_cvt_pk_bf16_f32 v{AC1+2*r}, v{a+r}, v{a+4+r}\nv_cvt_pk_bf16_f32 v{AC1+2*r+1}, v{a+8+r}, v{a+12+r}")
for r in range(4):
    for tau in range(4):
        d = 24 + 8*r + 2*tau
        E(f"v_cvt_f64_f32 v[{d}:{d+1}], v{u_+4*tau+r}")
STAMP(5)
E(f"""
    s_waitcnt vmcnt(0)
    s_mov_b64 exec, 1
    ds_add_rtn_u32 v5, v2, v3 offset:{L_DONE2}
    s_waitcnt lgkmcnt(0)
    v_readfirstlane_b32 s30, v5
    s_add_u32 s30, s30, s{S_SAFE}
    s_cmp_lg_u32 s30, 4
    s_cbranch_scc1 L_nofl2
    global_store_dwordx2 v4, v[6:7], s[20:21] sc1
L_nofl2:
    s_mov_b64 exec, -1
""")
STAMP(6)
lds_wait_eq(L_DONE2, 5, "d2")
for r in range(4):
    E(f"""
    ds_write_b64 v19, v[{AC1+2*r}:{AC1+2*r+1}] offset:{NSTR*r + 512}
    ds_write_b64 v19, v[{24+8*r}:{25+8*r}] offset:{NSTR*r}
    ds_write_b64 v19, v[{26+8*r}:{27+8*r}] offset:{NSTR*r + 128}
    ds_write_b64 v19, v[{28+8*r}:{29+8*r}] offset:{NSTR*r + 256}
    ds_write_b64 v19, v[{30+8*r}:{31+8*r}] offset:{NSTR*r + 384}
    """)
E("s_waitcnt lgkmcnt(0)")
main_consts()
STAMP(7)
E(f"""
    s_cmp_ge_u32 s3, 7
    s_cbranch_scc1 L_b4
    s_cmp_lg_u32 s{S_SAFE}, 0
    s_cbranch_scc1 L_b4
    v_subrev_u32 v2, 320, v0
    v_lshlrev_b32 v3, 8, v2
    s_lshl_b32 s30, s{S_HALF}, 7
    s_add_u32 s30, s30, {WS_FL2}
    v_add_u32 v3, s30, v3
    v_cmp_gt_u32 vcc, {NBUCK}, v2
    s_mov_b64 exec, vcc
    s_mov_b32 s31, {POLL_MAX}
L_p2:
    global_load_dwordx2 v[60:61], v3, s[20:21] sc1
    s_waitcnt vmcnt(0)
    v_cmp_ne_u32 vcc, s{S_TAG}, v60
    v_cmp_ne_u32 s[48:49], s{S_TAG8}, v61
    s_sub_u32 s31, s31, 1
    s_cmp_eq_u32 s31, 0
    s_cbranch_scc1 L_p2d
    s_or_b64 exec, vcc, s[48:49]
    s_cbranch_scc1 L_p2
L_p2d:
    s_mov_b64 exec, -1
    s_branch L_b4
L_wdma:
    v_lshrrev_b32 v2, 3, v1
    v_bfe_u32 v3, v1, 4, 1
    s_and_b32 s30, s3, 1
    s_lshl_b32 s31, s30, 1
    v_or_b32 v3, s31, v3                    ; sigma
    v_lshlrev_b32 v3, 1, v3
    v_and_b32 v4, 7, v1
    v_xor_b32 v3, v3, v4
    v_lshlrev_b32 v3, 4, v3
    v_lshl_add_u32 v8, v2, 8, v3
    s_lshl_b32 s31, s30, 11
    s_lshl_b32 s32, s{S_HALF}, 7
    s_add_u32 s31, s31, s32
    v_add_u32 v8, s31, v8
""")
for n in range(1, 8):
    E(f"v_add_u32 v{8+n}, {4096*n - (2048 if n & 1 else 0)}, v8")
E(f"""
    s_lshl_b32 s30, s30, 10
    s_add_u32 m0, s30, {L_WBV}
    s_waitcnt lgkmcnt(0)
    s_add_u32 s34, s16, {128*256}
    s_addc_u32 s35, s17, 0
    s_barrier                               ; B0
""")
load_tag()
for ti, base in enumerate((34, 14, 16, 12)):
    for n in range(0, 8, 2):
        E(f"""
        global_load_lds_dwordx4 v{8+n}, s[{base}:{base+1}]
        global_load_lds_dwordx4 v{9+n}, s[{base}:{base+1}] offset:2048
        """)
        step = 4096 + (L_WAU - L_X if (ti == 1 and n == 6) else 0)
        if not (ti == 3 and n == 6):
            E(f"s_add_u32 m0, m0, {step}\ns_nop 0")
E(f"""
    v_bfe_u32 v2, v1, 3, 2
    v_lshlrev_b32 v4, 4, v4
    v_lshl_add_u32 v2, v2, 8, v4
    s_add_u32 s32, s32, {256*256}
    v_add_u32 v2, s32, v2
    s_mov_b32 m0, {L_C}
    s_cmp_lg_u32 s3, 10
    s_cbranch_scc1 L_noc
    global_load_lds_dwordx4 v2, s[16:17]
L_noc:
""")
E("s_waitcnt lgkmcnt(0)")
finish_tag()
STAMP(1)
E("s_waitcnt vmcnt(0)")
STAMP(2)
E(f"""
    s_barrier                               ; B2
    s_sub_u32 s33, s3, 5
L_rec:
    s_mov_b32 s40, {f32(-LOG2E)}
    s_mov_b32 s46, 0x3f80
""")
main_consts()
NP = 9
RA = 72; RB = RA + 4*NP
E(f"""
    s_cmp_lg_u32 s{S_SAFE}, 0
    s_cbranch_scc1 L_b4
    v_and_b32 v34, 15, v1                   ; j
    v_lshrrev_b32 v2, 4, v1
    v_mul_u32_u24 v2, {NP}, v2
    s_mul_i32 s30, s33, {4*NP}
    v_add3_u32 v35, v2, v34, s30
    s_lshl_b32 s30, s{S_BUCK}, 3
    s_add_u32 s30, s30, {WS_ROW}
    v_lshl_add_u32 v36, v35, 10, s30
    v_cmp_gt_u32 s[66:67], {NP}, v34
    v_cmp_gt_u32 vcc, {NCHUNK}, v35
    s_and_b64 s[66:67], s[66:67], vcc
    v_mul_u32_u24 v35, {CHUNK*3}, v35
    v_add_u32 v35, {WS_REC//4}, v35
    v_mul_u32_u24 v37, 3, v34               ; 3j
    v_mul_u32_u24 v38, 12, v34              ; 12j
    v_not_b32 v37, v37
    v_subrev_u32 v39, 48, v37
    v_mov_b32 v40, 0
    v_mov_b32 v41, 0
    v_mov_b32 v42, 4
    s_cmp_ge_u32 s3, 5
    s_cbranch_scc1 L_nopub
    v_mov_b32 v3, 1
    s_lshl_b32 s30, s{S_P}, 10
    s_add_u32 s30, s30, {WS_ROW}
    v_lshl_add_u32 v30, v1, 4, s30
    s_waitcnt vmcnt(0) lgkmcnt(0)
""")
STAMP(4)
E(f"""
    s_mov_b64 exec, 1
    ds_add_rtn_u32 v2, v40, v3 offset:{L_DONE1}
    s_waitcnt lgkmcnt(0)
    v_readfirstlane_b32 s30, v2
    s_mov_b64 exec, -1
    s_cmp_lg_u32 s30, 4
    s_cbranch_scc1 L_nopub
    global_store_dwordx4 v30, v[44:47], s[20:21] sc1
L_nopub:
""")
lds_wait_eq(L_DONE1, 5, "d1")
STAMP(5)
E(f"""
    s_mov_b64 exec, s[66:67]
    s_mov_b32 s31, {POLL_MAX}
L_p1:
    global_load_dwordx2 v[40:41], v36, s[20:21] sc1
    s_waitcnt vmcnt(0)
    v_cmp_ne_u32 vcc, s{S_TAG}, v41
    v_cmp_ne_u32_sdwa s[48:49], v40, s{S_TAG8} src0_sel:BYTE_3 src1_sel:DWORD
    s_sub_u32 s31, s31, 1
    s_cmp_eq_u32 s31, 0
    s_cbranch_scc1 L_p1d
    s_or_b64 exec, vcc, s[48:49]
    s_cbranch_scc1 L_p1
L_p1d:
    s_mov_b64 exec, -1
""")
STAMP(6)
E(f"""
    v_and_b32 v41, 0xfff, v40
    v_bfe_u32 v40, v40, 12, 12              ; 3*count
    v_add_lshl_u32 v41, v41, v35, 2
    v_cmp_lt_u32 vcc, 96, v40
    v_cmp_lt_u32 s[68:69], 48, v40
    s_cbranch_vccnz L_toobig
""")
for p in range(NP):
    r = RA + 4*p
    E(f"""
    v_add_co_u32_dpp v2, vcc, v40, v37 row_newbcast:{p} row_mask:0xf bank_mask:0xf
    v_add_u32_dpp v{r+3}, v41, v38 row_newbcast:{p} row_mask:0xf bank_mask:0xf
    s_mov_b64 s[{48+2*p}:{49+2*p}], vcc
    s_mov_b64 exec, vcc
    global_load_dwordx3 v[{r}:{r+2}], v{r+3}, s[20:21] sc1
    s_mov_b64 exec, -1
    """)
E(f"""
    s_or_b32 s68, s68, s69
    s_lshr_b32 s69, s68, 16
    s_or_b32 s68, s68, s69
    s_cbranch_scc0 L_noex
""")
for p in range(NP):
    r = RB + 4*p
    E(f"""
    s_bitcmp1_b32 s68, {p}
    s_cbranch_scc0 L_nx{p}
    v_add_co_u32_dpp v2, vcc, v40, v39 row_newbcast:{p} row_mask:0xf bank_mask:0xf
    s_mov_b64 exec, vcc
    global_load_dwordx3 v[{r}:{r+2}], v{RA+4*p+3}, s[20:21] offset:192 sc1
    s_mov_b64 exec, -1
L_nx{p}:
    """)
E("L_noex:")
STAMP(7)
def rank(r, m):
    E(f"""
    v_mul_u32_u24_sdwa v{r+3}, v42, v{r+2} dst_sel:DWORD dst_unused:UNUSED_PAD src0_sel:DWORD src1_sel:BYTE_3
    v_and_b32 v{r+2}, {OPT['srcmask']}, v{r+2}
    s_mov_b64 exec, {m}
    ds_add_rtn_u32 v{r+3}, v{r+3}, v42 offset:{L_CNT}
    """)
def put(r, m):
    E(f"""
    s_mov_b64 exec, {m}
    v_lshlrev_b32 v2, 1, v{r+3}
    ds_write_b32 v{r+3}, v{r+2}
    ds_write_b64 v2, v[{r}:{r+1}] offset:{L_EA - 2*L_SRC}
    """)
LAG = 2
for p in range(NP + LAG):
    if p < NP:
        E(f"s_waitcnt vmcnt({NP-1-p})\ns_mov_b64 exec, -1")
        rank(RA + 4*p, f"s[{48+2*p}:{49+2*p}]")
    q = p - LAG
    if q >= 0:
        younger = 0
        for j in range(q+1, min(p, NP-1)+1): younger += 1
        for j in range(max(0, q-LAG), q): younger += 2
        E(f"s_waitcnt lgkmcnt({younger})")
        put(RA + 4*q, f"s[{48+2*q}:{49+2*q}]")
E(f"""
    s_mov_b64 exec, -1
    s_cmp_eq_u32 s68, 0
    s_cbranch_scc1 L_b4
""")
for p in range(NP):
    r = RB + 4*p
    E(f"""
    s_bitcmp1_b32 s68, {p}
    s_cbranch_scc0 L_ny{p}
    v_add_co_u32_dpp v2, vcc, v40, v39 row_newbcast:{p} row_mask:0xf bank_mask:0xf
    """)
    rank(r, "vcc")
    E("s_waitcnt lgkmcnt(0)")
    put(r, "vcc")
    E(f"s_mov_b64 exec, -1\nL_ny{p}:")
E(f"""
    s_branch L_b4
L_toobig:
    v_mov_b32 v2, 0
    ds_write_b32 v2, v42 offset:{L_FLAG}
L_b4:
    s_mul_i32 s30, s{S_HALF}, {G_HALF}
    s_add_u32 s36, s20, s30
    s_addc_u32 s37, s21, 0
    s_mov_b32 s38, {OPT['nrec'] or G_HALF}
    s_mov_b32 s39, 0x20000
    s_mov_b32 s44, {2*LSTR}
    s_mov_b32 s45, {2*LSTR}
    ds_read_b64 v[60:61], v{LP}
    ds_read_b32 v62, v{LP+1}
    ds_read_b32 v63, v{LP} offset:{LSTR}
    ds_read_b32 v{WN}, v{LP} offset:{LSTR + 4}
    ds_read_b32 v{WE}, v{LP+1} offset:{LSTR}
    ds_read_b32 v{WS_}, v{LP} offset:{2*LSTR}
    s_waitcnt lgkmcnt(0)
    v_add_u32 v{AG}, v61, v{LN8}
    v_lshl_add_u32 v62, v62, 1, v{EAC}
""")
if OPT["warm"]:
    E(f"""
    s_barrier
    s_lshr_b32 s30, s2, 3
    s_mul_i32 s30, s30, 98304
    v_lshl_add_u32 v2, v0, 7, s30
    buffer_load_dword v3, v2, s[36:39], 0 offen sc1
    s_waitcnt vmcnt(0)
    s_sleep 40
    """)
STAMP(8)
E(f"""
    s_barrier                               ; B4
    s_cmp_lg_u32 s{S_SAFE}, 0
    s_cbranch_scc1 L_safe
    ds_read_b128 v[{OFS}:{OFS+3}], v60
    ds_read_b128 v[{OFS+4}:{OFS+7}], v60 offset:16
    ds_read_b128 v[{T}:{T+3}], v63
    ds_read_b128 v[{T+4}:{T+7}], v63 offset:16
    ds_read_b64 v[{XA}:{XA+1}], v{AG} offset:512
    ds_read_b64 v[{EA}:{EA+1}], v62
    s_cmp_lg_u32 s3, {NW-1}
    s_cbranch_scc1 L_nobuild
    v_lshlrev_b32 v2, 3, v1
    v_mov_b32 v3, 0
    ds_read_b64 v[64:65], v2 offset:{L_CNT}
    ds_read_b32 v71, v3 offset:{L_FLAG}
    v_mul_u32_u24 v66, {2*SSTR}, v1
    v_add_u32 v66, {L_SRC + 96}, v66
    v_add_u32 v68, {SSTR}, v66
    v_mul_u32_u24 v67, {2*NSTR}, v1
    v_add_u32 v67, {L_NODE}, v67
    v_add_u32 v69, {NSTR}, v67
    s_waitcnt lgkmcnt(0)
    v_sub_u32 v64, v64, v66 clamp
    v_sub_u32 v65, v65, v68 clamp
    v_max_u32 v70, v64, v65
    v_cmp_lt_u32 vcc, 160, v70
    v_cmp_ne_u32 s[48:49], 0, v71
    v_add_u32 v64, 31, v64
    v_add_u32 v65, 31, v65
    s_or_b64 vcc, vcc, s[48:49]
    s_cbranch_scc1 L_bad
    v_lshrrev_b32 v64, 5, v64
    v_lshrrev_b32 v65, 5, v65
    v_add_u32 v70, v64, v65
    v_add_u32 v71, v64, v65
""")
scan(71)
E(f"""
    v_sub_u32 v70, v71, v70
    v_lshlrev_b32 v70, 3, v70
    v_readlane_b32 s30, v71, 63
    v_lshl_add_u32 v71, v64, 3, v70
""")
for b in range(5):
    E(f"""
    v_cmp_lt_u32 vcc, {b}, v64
    v_cmp_lt_u32 s[48:49], {b}, v65
    s_mov_b64 exec, vcc
    ds_write_b64 v70, v[66:67] offset:{L_LIST + 8*NSTATIC + 8*b}
    s_mov_b64 exec, s[48:49]
    ds_write_b64 v71, v[68:69] offset:{L_LIST + 8*NSTATIC + 8*b}
    s_mov_b64 exec, -1
    """)
    if b < 4: E("v_add_u32 v66, 32, v66\nv_add_u32 v68, 32, v68")
E(f"""
    s_add_u32 s30, s30, {NSTATIC + 3}
    s_lshr_b32 s30, s30, 2
    s_branch L_built
L_bad:
    s_mov_b32 s30, -1
L_built:
    v_mov_b32 v2, s30
    ds_write_b32 v3, v2 offset:{L_NST}
    s_cmp_lg_u32 s{S_P}, 0
    s_cbranch_scc1 L_nobuild
    v_mov_b32 v2, s{S_TAG}
    v_mov_b32 v3, {WS_TAG}
    s_mov_b64 exec, 1
    global_store_dword v3, v2, s[20:21]
    s_mov_b64 exec, -1
L_nobuild:
    s_waitcnt lgkmcnt(0)
""")
for i, o in enumerate((OFS, OFS+4, T, T+4)):
    E(oadd(o)); E(oadd(o+2))
    if not OPT["nogather"]:
        for q in range(4): E(gload(G + 16*i + 4*q, o+q))
STAMP(9)
E(m_a(D0)); E(m_e(D0, 0))
E(f"""
    v_mov_b32 v2, 0
    s_mov_b32 s31, {POLL_MAX}
    s_waitcnt vmcnt(12)
""")
E(m_s(D0, A1, G)); E(m_s(D0, A2, G+8))
E(f"""
L_wn:
    ds_read_b32 v3, v2 offset:{L_NST}
    s_waitcnt lgkmcnt(0)
    v_readfirstlane_b32 s{S_N}, v3
    s_sub_u32 s31, s31, 1
    s_cmp_eq_u32 s31, 0
    s_cbranch_scc1 L_wnd
    s_cmp_eq_u32 s{S_N}, 0
    s_cbranch_scc1 L_wn
L_wnd:
    s_cmp_gt_u32 s{S_N}, {0 if OPT["force_safe"] else 160}
    s_cbranch_scc1 L_gosafe
    s_add_u32 s{S_K}, s3, {2*NW}
    s_add_u32 s28, s{S_N}, {2*NW}
    s_mov_b32 s{S_IT}, 0
    s_nop 3
""")
if OPT["prio"]: E("s_setprio 3")
STAMP(10)
if OPT["stamps"]: E(f"s_memtime s[{ST0+24}:{ST0+25}]\ns_waitcnt lgkmcnt(0)")
E("L_A:")
body(0, True)
E(f"s_cmp_ge_u32 s{S_K}, s{S_N}\ns_cbranch_scc1 L_Bt")
body(1, True)
if OPT["prio"]:
    E(f"""
    s_add_u32 s{S_IT}, s{S_IT}, 1
    s_setprio 0
    s_cmp_gt_u32 s{S_IT}, 2
    s_cbranch_scc1 L_pr
    s_setprio 1
    s_cmp_eq_u32 s{S_IT}, 2
    s_cbranch_scc1 L_pr
    s_setprio 2
L_pr:
    """)
E(f"s_cmp_lt_u32 s{S_K}, s{S_N}\ns_cbranch_scc1 L_A")
E("L_At:")
body(0, False)
E(f"s_cmp_ge_u32 s{S_K}, s28\ns_cbranch_scc1 L_mdone")
E("L_Bt:")
body(1, False)
if OPT["prio"]: E("s_setprio 0")
E(f"s_cmp_lt_u32 s{S_K}, s28\ns_cbranch_scc1 L_At")
E(f"""
L_mdone:
    s_waitcnt lgkmcnt(0)
""")
STAMP(11)
if OPT["stamps"]:
    E(f"s_memtime s[28:29]\ns_waitcnt lgkmcnt(0)\ns_sub_u32 s{ST0+24}, s28, s{ST0+24}")
E(f"""
    v_lshrrev_b32 v2, 5, v0
    v_and_b32 v3, 31, v0
    v_mul_u32_u24 v4, {NSTR}, v2
    v_lshl_add_u32 v4, v3, 4, v4
    v_add_u32 v4, {L_NODE}, v4
    s_mul_i32 s30, s{S_BUCK}, {NB*256}
    s_lshl_b32 s31, s{S_HALF}, 7
    s_add_u32 s30, s30, s31
    v_lshlrev_b32 v3, 2, v3
    v_lshl_add_u32 v5, v2, 8, v3
    v_add_u32 v5, s30, v5
    v_add_u32 v6, {24*256}, v5
    v_add_u32 v7, {48*256}, v5
    v_add_u32 v8, {72*256}, v5
    s_mov_b32 s32, {f32(2.0**-32)}
    s_mov_b32 s34, {f32(-LOG2E * 2.0**-32)}
    v_mov_b32 v9, 0x207
    s_barrier                               ; B5
""")
OSC = {0: "", 1: " sc1", 2: " nt"}[OPT["osc"]]
def epi(us):
    for u in us: E(f"ds_read_b128 v[{12+4*u}:{15+4*u}], v4 offset:{24*NSTR*u}")
    E("s_waitcnt lgkmcnt(0)")
    for u in us: E(f"v_cvt_f32_f64 v{28+2*u}, v[{12+4*u}:{13+4*u}]\nv_cvt_f32_f64 v{29+2*u}, v[{14+4*u}:{15+4*u}]")
    for u in us: E(f"v_pk_mul_f32 v[{36+2*u}:{37+2*u}], v[{28+2*u}:{29+2*u}], s[34:35] op_sel_hi:[1,0]")
    for u in us: E(f"v_exp_f32 v{36+2*u}, v{36+2*u}\nv_exp_f32 v{37+2*u}, v{37+2*u}")
    for u in us: E(f"v_pk_mul_f32 v[{28+2*u}:{29+2*u}], v[{28+2*u}:{29+2*u}], s[32:33] op_sel_hi:[1,0]")
    for u in us: E(f"v_pk_add_f32 v[{36+2*u}:{37+2*u}], v[{36+2*u}:{37+2*u}], 1.0 op_sel_hi:[1,0]")
    for u in us: E(f"v_rcp_f32 v{36+2*u}, v{36+2*u}\nv_rcp_f32 v{37+2*u}, v{37+2*u}")
    E("v_pk_add_f32 v[10:11], v[28:29], v[30:31]")
    for u in us: E(f"v_pk_mul_f32 v[{36+2*u}:{37+2*u}], v[{28+2*u}:{29+2*u}], v[{36+2*u}:{37+2*u}]")
    for u in us: E(f"v_cvt_pk_bf16_f32 v{44+u}, v{36+2*u}, v{37+2*u}\nglobal_store_dword v{5+u}, v{44+u}, s[18:19]{OSC}")
    for u in us[2:]: E(f"v_pk_add_f32 v[10:11], v[10:11], v[{28+2*u}:{29+2*u}]")
E("s_cmp_ge_u32 s3, 4\ns_cbranch_scc1 L_e3")
epi([0, 1, 2, 3])
E("s_branch L_e4\nL_e3:")
epi([0, 1, 2])
E(f"""
L_e4:
    v_add_f32 v10, v10, v11
    v_cmp_class_f32 vcc, v10, v9
    v_mov_b32 v2, 0
    s_cmp_lg_u32 s{S_SAFE}, 0
    s_cbranch_scc1 L_fin
    {"s_branch" if OPT["nosafe"] else "s_cbranch_vccz"} L_e5
    ds_write_b32 v2, v9 offset:{L_FLAG}
    s_waitcnt lgkmcnt(0)
L_e5:
    s_barrier                               ; B6
    ds_read_b32 v2, v2 offset:{L_FLAG}
    s_waitcnt lgkmcnt(0)
    v_readfirstlane_b32 s30, v2
    s_cmp_lg_u32 s30, 0
    s_cbranch_scc1 L_gosafe
L_fin:
""")
if OPT["stamps"]:
    E("s_waitcnt vmcnt(0)"); STAMP(13); STAMP_OUT()
E(f"""
L_end:
    s_endpgm
L_gosafe:
    s_mov_b32 s{S_SAFE}, 8
    s_setprio 0
    s_waitcnt vmcnt(0) lgkmcnt(0)
    s_barrier
    s_cmp_ge_u32 s3, 5
    s_cbranch_scc1 L_restart
    s_barrier                               ; B0
    s_barrier                               ; B2
    s_branch L_rec
L_safe:
    v_and_b32 v2, 15, v1
    v_lshlrev_b32 v3, 1, v2
    v_add_u32 v3, {L_C}, v3
""")
for k in range(4):
    for s in range(4):
        E(f"ds_read_u16 v{80+4*k+s}, v3 offset:{128*k + 32*s}")
E("s_waitcnt lgkmcnt(0)")
for i in range(16):
    E(f"v_lshlrev_b32 v{80+i}, 16, v{80+i}\nv_mul_f32 v{80+i}, s40, v{80+i}")
E(f"""
    v_lshrrev_b32 v24, 4, v1
    v_mul_u32_u24 v24, 3, v24               ; 3*quarter
    s_movk_i32 s33, {NSTR}
    v_add_u32 v25, {L_NODE}, v{LN8}
    s_mov_b32 s34, s3
L_scell:
    s_lshl_b32 s30, s34, 10
    s_lshl_b32 s31, s{S_BUCK}, 3
    s_add_u32 s30, s30, s31
    s_add_u32 s30, s30, {WS_ROW}
    v_mov_b32 v26, s30
    global_load_dword v27, v26, s[20:21] sc1
    s_mul_i32 s30, s34, {CHUNK*3}
    s_add_u32 s30, s30, {WS_REC//4}
    s_waitcnt vmcnt(0)
    v_bfe_u32 v28, v27, 12, 12              ; 3*count
    v_and_b32 v27, 0xfff, v27
    v_add_u32 v27, s30, v27
    v_mov_b32 v29, v24
L_srec:
    v_cmp_gt_u32 vcc, v28, v29
    s_and_saveexec_b64 s[48:49], vcc
    s_cbranch_execz L_snext
    v_add_lshl_u32 v30, v27, v29, 2
    global_load_dwordx3 v[32:34], v30, s[20:21] sc1
    s_waitcnt vmcnt(0)
    v_and_b32 v30, 0x3fffff, v34
    v_add_u32 v30, v30, v{LN16}
    buffer_load_dwordx4 v[36:39], v30, s[36:39], 0 offen sc1
    v_lshrrev_b32 v31, 24, v34
    v_mad_u32_u24 v31, v31, s33, v25
    ds_read_b64 v[40:41], v31 offset:512
    v_lshlrev_b32 v44, 16, v32
    v_and_b32 v45, 0xffff0000, v32
    v_lshlrev_b32 v46, 16, v33
    v_and_b32 v47, 0xffff0000, v33
    s_waitcnt vmcnt(0) lgkmcnt(0)
    v_lshlrev_b32 v48, 16, v40
    v_and_b32 v49, 0xffff0000, v40
    v_lshlrev_b32 v50, 16, v41
    v_and_b32 v51, 0xffff0000, v41
""")
for s in range(4):
    E(f"v_lshlrev_b32 v52, 16, v{36+s}\nv_add_f32 v{48+s}, v{48+s}, v52")
    for k in range(4):
        E(f"v_fmac_f32 v{48+s}, v{44+k}, v{80+4*k+s}")
for s in range(4): E(f"v_exp_f32 v{48+s}, v{48+s}")
E("s_nop 0")
for s in range(4): E(f"v_add_f32 v{48+s}, 1.0, v{48+s}")
for s in range(4): E(f"v_rcp_f32 v{48+s}, v{48+s}")
E("s_nop 0")
for s in range(4): E(f"v_mul_f32 v{48+s}, v{48+s}, v{36+s}")
for s in range(4): E(f"v_cvt_f64_f32 v[{54+2*s}:{55+2*s}], v{48+s}")
for s in range(4): E(f"ds_add_f64 v31, v[{54+2*s}:{55+2*s}] offset:{128*s}")
E(f"""
    s_mov_b64 exec, s[48:49]
    v_add_u32 v29, 12, v29
    s_branch L_srec
L_snext:
    s_mov_b64 exec, s[48:49]
    s_add_u32 s34, s34, {NW}
    s_cmp_lt_u32 s34, {NCHUNK}
    s_cbranch_scc1 L_scell
    s_branch L_mdone
L_codeend:
.section .rodata,"a"
.p2align 6
.amdhsa_kernel {NAME}
.amdhsa_next_free_vgpr 168
.amdhsa_next_free_sgpr 102
.amdhsa_accum_offset 168
.amdhsa_group_segment_fixed_size 0
.amdhsa_kernarg_size 80
.amdhsa_user_sgpr_count 2
.amdhsa_user_sgpr_kernarg_segment_ptr 1
.amdhsa_system_sgpr_workgroup_id_x 1
.end_amdhsa_kernel
""")
if OPT["nochain"]:
    i0 = out.index("L_A:"); i1 = out.index("L_mdone:")
    out = out[:i0] + [l for l in out[i0:i1] if not any(x in l for x in ("v_exp", "v_pk_", "mfma", "v_rcp", "v_cvt"))] + out[i1:]
open(sys.argv[1], "w").write("\n".join(out) + "\n")
```

```python
import sys, struct

OPT = dict(stamps=0, force_safe=0, nogather=0, nosafe=0, prio=1, gsc1=1, osc=0, spin=0, codepf=1, srcmask=0x3fffff, nrec=0, warm=0, nochain=0, probe=-1, pw=-1, pg=-1)
for a in sys.argv[2:]:
    k, v = a.split("=")
    assert k in OPT, k
    OPT[k] = int(v, 0)

out = []
def E(s=""):
    for line in s.split("\n"):
        line = line.strip()
        if not line:
            continue
        if line.endswith(":") or line.startswith(".") or line.startswith(";"):
            out.append(line)
        else:
            out.append("    " + line)

def f32(x):
    return "0x%08x" % struct.unpack("<I", struct.pack("<f", x))[0]

NAME = "standalone__edge_featured_mpnn_egc__graph_kernel"
LOG2E = 1.4426950408889634
NB = 80; NBUCK = 125; CHUNK = 1280; NCHUNK = 250
NW = 12
G_HALF = 10000 * 256
WS_REC = 0x500000
WS_ROW = 0x900000
WS_FL2 = 0x980000
WS_TAG = 0x9c0000
WS_STAMP = 0x1000000
L_CNT = 0; L_DONE1 = 512; L_DONE2 = 516; L_FLAG = 520; L_NST = 524
L_SCNT = 1024; L_SOFF = 1536
L_LIST = 2048
SSTR = 272
L_SRC = 7936
L_EA = L_SRC + 81 * SSTR
L_EAEND = L_EA + 81 * 2 * SSTR
L_SORT = L_EA
L_WBV = 74240; L_X = L_WBV + 32768; L_WAU = L_X + 20480; L_C = L_WAU + 32768; L_DUM = L_C + 1024
LDS = L_DUM + 1024
L_NODE = L_WBV; NSTR = 640
assert L_EAEND <= L_WBV and L_NODE + 80 * NSTR <= L_WAU and LDS <= 163840 and L_EA % 16 == 0
NULL_SRC = 0x7fffff00
NSTATIC = 240
LSTR = NW * 32
POLL_MAX = 200000
SC1 = " sc1"

S_HALF, S_BUCK, S_P = 22, 23, 24
S_TAG, S_TAG8, S_SAFE = 25, 26, 27
S_N, S_K, S_IT = 70, 71, 72
ST0 = 74

def STAMP(i):
    if OPT["stamps"] or (OPT["probe"] >= 0 and i == OPT["probe"]):
        E(f"s_memrealtime s[{ST0+2*i}:{ST0+2*i+1}]\ns_waitcnt lgkmcnt(0)")
    elif OPT["probe"] >= 0 and i == 0:
        E(f"s_memrealtime s[{ST0}:{ST0+1}]")
NSTAMP = 14
def STAMP_OUT():
    if OPT["stamps"]:
        E(f"""
        s_lshl_b32 s30, s2, 4
        s_add_u32 s30, s30, s3
        s_lshl_b32 s30, s30, 6
        s_add_u32 s30, s30, {WS_STAMP}
        s_mov_b64 exec, -1
        v_mov_b32 v3, s30""")
        for i in range(NSTAMP):
            E(f"v_mov_b32 v2, s{ST0+2*i}\nglobal_store_dword v3, v2, s[20:21] offset:{4*i}")
        E("s_waitcnt vmcnt(0)")

A1, A2, IDX, LN8, LN16, ASEL, CW, EAC = 4, 8, 12, 13, 14, 16, 18, 20
LP, WS_, WN, WE, AG, EA, XA, OFS, T, N, P, F = 22, 24, 25, 26, 27, 30, 32, 36, 44, 52, 56, 60
D0, D1, G = 72, 88, 104

def load_tag():
    E(f"""
    s_add_u32 s28, s20, {WS_TAG}
    s_addc_u32 s29, s21, 0
    s_load_dword s{S_TAG}, s[28:29], 0
    """)
def finish_tag():
    E(f"""
    s_mul_i32 s{S_TAG8}, s{S_TAG}, 0x85ebca6b
    s_mul_i32 s{S_TAG}, s{S_TAG}, 0x9e3779b1
    s_lshr_b32 s{S_TAG8}, s{S_TAG8}, 24
    s_add_u32 s{S_TAG}, s{S_TAG}, 0x7f4a7c15
    """)

def lds_wait_eq(addr, val, tag):
    E(f"""
    v_mov_b32 v2, 0
    s_mov_b32 s31, {POLL_MAX}
L_w_{tag}:
    ds_read_b32 v3, v2 offset:{addr}
    s_waitcnt lgkmcnt(0)
    v_readfirstlane_b32 s30, v3
    s_sub_u32 s31, s31, 1
    s_cmp_eq_u32 s31, 0
    s_cbranch_scc1 L_wd_{tag}
    s_cmp_eq_u32 s30, {val}
    s_cbranch_scc1 L_wd_{tag}
    s_sleep 1
    s_branch L_w_{tag}
L_wd_{tag}:
    """)

def main_consts():
    E(f"""
    v_lshrrev_b32 v2, 4, v1
    v_bfe_u32 v3, v1, 2, 2
    v_lshlrev_b32 v2, 5, v2
    v_lshl_add_u32 v2, v3, 7, v2
    v_and_b32 v63, 3, v1                    ; q
    v_lshl_add_u32 v2, v63, 3, v2
    v_add_u32 v2, {L_C}, v2
    ds_read_b64_tr_b16 v[{CW}:{CW+1}], v2
    v_and_b32 v2, 15, v1                    ; n'
    v_lshlrev_b32 v{LN8}, 3, v2
    v_lshlrev_b32 v{LN16}, 4, v2
    v_lshlrev_b32 v{LN16+1}, 4, v2
    v_mov_b32 v{IDX}, 0x8888
    v_bfe_u32 v60, v1, 3, 2                 ; s = (l&31)>>3
    v_bfe_u32 v61, v1, 2, 1                 ; h = (l>>2)&1
    v_lshrrev_b32 v62, 5, v1                ; ha
    v_and_b32 v2, 1, v60
    v_lshlrev_b32 v2, 4, v2
    v_lshlrev_b32 v2, v2, s46
    v_lshrrev_b32 v60, 1, v60               ; s>>1
    v_lshl_add_u32 v3, v61, 1, v60
    v_sub_u32 v63, v63, v62                 ; q - ha : 0 -> A1, 2 -> A2
    v_lshl_add_u32 v3, v63, 1, v3
    v_and_b32 v63, 1, v63
    v_lshl_or_b32 v3, v63, 4, v3
    v_xor_b32 v61, v61, v62
    v_lshl_or_b32 v60, v61, 4, v60
    """)
    for i in range(8):
        E(f"v_cmp_eq_u32 s[{48+2*(i%4)}:{49+2*(i%4)}], {i}, v3")
        if i % 4 == 3:
            for j in range(i-3, i+1):
                E(f"v_cndmask_b32 v{A1+j}, 0, v2, s[{48+2*(j%4)}:{49+2*(j%4)}]")
    E(f"""
    v_cmp_eq_u32 s[48:49], 0, v60
    v_cmp_eq_u32 s[50:51], 1, v60
    v_bfe_u32 v61, v1, 4, 1
    v_and_b32 v63, 3, v1
    v_cndmask_b32 v{ASEL}, 0, v2, s[48:49]
    v_cndmask_b32 v{ASEL+1}, 0, v2, s[50:51]
    v_lshl_add_u32 v61, v61, 2, v63
    v_lshlrev_b32 v61, 3, v61
    v_add_u32 v{EAC}, {L_EA - 2*L_SRC}, v61
    s_lshl_b32 s30, s3, 5
    s_add_u32 s30, s30, {L_LIST}
    v_lshrrev_b32 v2, 4, v1
    v_lshl_add_u32 v{LP}, v2, 3, s30
    v_bfe_u32 v2, v1, 2, 2
    v_lshl_add_u32 v{LP+1}, v2, 3, s30
    s_waitcnt lgkmcnt(0)
    v_lshlrev_b32 v60, 16, v{CW}
    v_and_b32 v61, 0xffff0000, v{CW}
    v_lshlrev_b32 v62, 16, v{CW+1}
    v_and_b32 v63, 0xffff0000, v{CW+1}
    v_mul_f32 v60, s40, v60
    v_mul_f32 v61, s40, v61
    v_mul_f32 v62, s40, v62
    v_mul_f32 v63, s40, v63
    v_cvt_pk_bf16_f32 v{CW}, v60, v61
    v_cvt_pk_bf16_f32 v{CW+1}, v62, v63
    """)

def gload(g, o):
    return f"buffer_load_dwordx4 v[{g}:{g+3}], v{o}, s[36:39], 0 offen" + (SC1 if OPT["gsc1"] else "")
def oadd(o):
    return f"v_lshl_add_u64 v[{o}:{o+1}], v[{o}:{o+1}], 0, v[{LN16}:{LN16+1}]"

def pk_steps(Gc, q, first):
    t = T + 4*(q & 1); h = Gc + 4*q
    if first and q == 0:
        return [f"v_pk_add_f32 v[{P+2*p}:{P+2*p+1}], v[{t+2*p}:{t+2*p+1}], 1.0 op_sel_hi:[1,0]" for p in range(2)]
    r = []
    for p in range(2):
        n = f"v[{Gc+2*p}:{Gc+2*p+1}]" if (first and q == 1) else f"v[{N+2*p}:{N+2*p+1}]"
        r.append(f"v_pk_fma_f32 v[{N+2*p}:{N+2*p+1}], {n}, v[{t+2*p}:{t+2*p+1}], {n}")
    for p in range(2):
        r.append(f"v_pk_fma_f32 v[{N+2*p}:{N+2*p+1}], v[{h+2*p}:{h+2*p+1}], v[{P+2*p}:{P+2*p+1}], v[{N+2*p}:{N+2*p+1}]")
    for p in range(2):
        r.append(f"v_pk_fma_f32 v[{P+2*p}:{P+2*p+1}], v[{P+2*p}:{P+2*p+1}], v[{t+2*p}:{t+2*p+1}], v[{P+2*p}:{P+2*p+1}]")
    return r
def exps(Dc, q):
    t = T + 4*(q & 1)
    return [f"v_exp_f32 v{t+s}, v{Dc+4*s+q}" for s in range(4)]
def weave(main, extra):
    for i, x in enumerate(main):
        E(x)
        for y in extra.get(i, []):
            E(y)
def m_a(Dn): return f"v_mfma_f32_32x32x8_bf16 v[{Dn}:{Dn+15}], v[{ASEL}:{ASEL+1}], v[{XA}:{XA+1}], 0"
def m_e(Dn, abid): return f"v_mfma_f32_16x16x4_4b_bf16 v[{Dn}:{Dn+15}], v[{EA}:{EA+1}], v[{CW}:{CW+1}], v[{Dn}:{Dn+15}] cbsz:2 abid:{abid}"
def m_s(Dn, A, g): return f"v_smfmac_f32_32x32x32_bf16 v[{Dn}:{Dn+15}], v[{A}:{A+3}], v[{g}:{g+7}], v{IDX}"

def body(par, loads):
    g0 = G + 32*par; g1 = g0 + 16; gn = G + 32*(1-par)
    agc = AG + par; agn = AG + 1 - par
    ld = loads and not OPT["nogather"]
    E("s_waitcnt vmcnt(8) lgkmcnt(4)")
    E(m_a(D1))
    for x in exps(D0, 0): E(x)
    E(m_s(D1, A1, g1))
    for x in exps(D0, 1): E(x)
    ex = {0: [f"v_add_u32 v{agn}, v{WN}, v{LN8}"],
          2: [f"ds_read_b64 v[{XA}:{XA+1}], v{agn} offset:512"],
          5: [f"v_lshl_add_u32 v{WE}, v{WE}, 1, v{EAC}"]}
    if loads:
        ex[1] = [f"ds_read_b128 v[{OFS}:{OFS+3}], v{WS_}"]
        ex[3] = [f"ds_read_b128 v[{OFS+4}:{OFS+7}], v{WS_} offset:16"]
    weave(pk_steps(g0, 0, True) + pk_steps(g0, 1, True), ex)
    E(m_e(D1, 1))
    for x in exps(D0, 2): E(x)
    E(m_s(D1, A2, g1+8))
    for x in exps(D0, 3): E(x)
    ex = {0: ["s_waitcnt lgkmcnt(0)", f"ds_read_b64 v[{EA}:{EA+1}], v{WE}"]}
    if loads:
        ex[0] += [oadd(OFS)]
        ex[2] = [oadd(OFS+2)]
    if ld:
        ex[1] = [gload(g0, OFS)]
        ex[3] = [gload(g0+4, OFS+1)]
        ex[5] = [gload(g0+8, OFS+2)]
        ex[9] = [gload(g0+12, OFS+3)]
    weave(pk_steps(g0, 2, False) + pk_steps(g0, 3, False), ex)
    E(f"s_waitcnt vmcnt({8 if loads else 4})")
    E(m_a(D0))
    for x in exps(D1, 0): E(x)
    E(m_s(D0, A1, gn))
    for x in exps(D1, 1): E(x)
    ex = {10: ["s_waitcnt lgkmcnt(0)"]}
    if loads:
        ex[0] = [oadd(OFS+4)]
        ex[2] = [oadd(OFS+6)]
    if ld:
        ex[5] = [gload(g1, OFS+4)]
        ex[10] = [gload(g1+4, OFS+5)] + ex[10]
    weave(pk_steps(g1, 0, False) + pk_steps(g1, 1, False), ex)
    E(m_e(D0, 0))
    for x in exps(D1, 2): E(x)
    E(m_s(D0, A2, gn+8))
    for x in exps(D1, 3): E(x)
    o = LSTR * par
    ex = {0: [f"ds_read_b32 v{WN}, v{LP} offset:{o + 2*LSTR + 4}"],
          1: [f"ds_read_b32 v{WE}, v{LP+1} offset:{o + 2*LSTR}"],
          2: [f"ds_read_b32 v{WS_}, v{LP} offset:{o + 3*LSTR}"]}
    if ld:
        ex[5] = [gload(g1+8, OFS+6)]
        ex[9] = [gload(g1+12, OFS+7)]
    weave(pk_steps(g1, 2, False) + pk_steps(g1, 3, False), ex)
    E(f"""
    v_rcp_f32 v{P}, v{P}
    v_rcp_f32 v{P+1}, v{P+1}
    v_rcp_f32 v{P+2}, v{P+2}
    v_rcp_f32 v{P+3}, v{P+3}
    v_pk_mul_f32 v[{N}:{N+1}], v[{N}:{N+1}], v[{P}:{P+1}]
    v_pk_mul_f32 v[{N+2}:{N+3}], v[{N+2}:{N+3}], v[{P+2}:{P+3}]
    """)
    if par == 1:
        E(f"v_lshl_add_u64 v[{LP}:{LP+1}], v[{LP}:{LP+1}], 0, s[44:45]")
    for s in range(4):
        E(f"v_cvt_f64_f32 v[{F+2*s}:{F+2*s+1}], v{N+s}")
        if s: E(f"ds_add_f64 v{agc}, v[{F+2*s-2}:{F+2*s-1}] offset:{128*(s-1)}")
    E(f"s_add_u32 s{S_K}, s{S_K}, {NW}")
    E(f"ds_add_f64 v{agc}, v[{F+6}:{F+7}] offset:384")
    if not loads:
        E("s_waitcnt vmcnt(0)")

E(f"""
; @launch grid=(256,1,1) block=({64*NW},1,1) lds={LDS}
.amdgcn_target "amdgcn-amd-amdhsa--gfx950"
.text
.globl {NAME}
.p2align 8
.type {NAME},@function
{NAME}:
""")
if OPT["stamps"]:
    for i in range(NSTAMP): E(f"s_mov_b64 s[{ST0+2*i}:{ST0+2*i+1}], 0")
STAMP(0)
E(f"""
    s_load_dwordx16 s[4:19], s[0:1], 0
    s_load_dwordx2 s[20:21], s[0:1], 72
    v_lshrrev_b32 v2, 6, v0
    v_and_b32 v1, 63, v0
    v_readfirstlane_b32 s3, v2
    s_and_b32 s{S_HALF}, s2, 1
    s_bfe_u32 s30, s2, 0x20001
    s_lshl_b32 s30, s30, 5
    s_lshr_b32 s31, s2, 3
    s_add_u32 s{S_BUCK}, s30, s31
    s_cmp_ge_u32 s2, 256
    s_cbranch_scc1 L_end
    s_cmp_ge_u32 s{S_BUCK}, {NBUCK}
    s_cbranch_scc1 L_end
    s_lshl_b32 s{S_P}, s{S_BUCK}, 1
    s_add_u32 s{S_P}, s{S_P}, s{S_HALF}
    s_mov_b32 s{S_SAFE}, 0
    s_cmp_ge_u32 s3, 5
    s_cbranch_scc1 L_nosort
    s_mul_i32 s30, s{S_P}, {CHUNK*4}
    v_lshl_add_u32 v3, v0, 4, s30
    v_lshlrev_b32 v22, 1, v3
    v_lshlrev_b32 v31, 3, v1
    v_mov_b32 v48, 0
    v_mov_b32 v49, 0
    v_mov_b32 v23, {WS_TAG}
    ds_write_b64 v31, v[48:49] offset:{L_SCNT}
    s_waitcnt lgkmcnt(0)
    global_load_dwordx4 v[4:7], v3, s[10:11]
    global_load_dwordx4 v[8:11], v3, s[8:9]
    global_load_dwordx4 v[12:15], v22, s[6:7]
    global_load_dwordx4 v[16:19], v22, s[6:7] offset:16
    global_load_dword v43, v23, s[20:21]
    s_barrier                               ; B0
""")
STAMP(1)
E(f"""
    v_mov_b32 v50, 0
    v_mov_b32 v51, 0
    v_mov_b32 v21, 1
    v_mov_b32 v20, 3
    s_mov_b32 s31, 52429
    s_movk_i32 s32, -20
    v_lshlrev_b32 v33, 4, v0
    s_mul_i32 s30, s{S_P}, {CHUNK*12}
    s_add_u32 s30, s30, {WS_REC}
    v_add_u32 v32, s30, v33
    v_add_u32 v34, 5120, v32
    v_add_u32 v35, 10240, v32
    s_mov_b32 s34, {POLL_MAX}
    s_waitcnt vmcnt(4)
""")
STAMP(2)
for i in range(4):
    E(f"""
    v_mul_u32_u24 v{22+i}, s31, v{4+i}
    v_lshrrev_b32 v{22+i}, 22, v{22+i}
    v_lshlrev_b32 v{22+i}, 2, v{22+i}        ; bucket*4
    ds_add_rtn_u32 v{26+i}, v{22+i}, v20 offset:{L_SCNT}
    """)
E(f"""
    s_mov_b64 exec, 1
    ds_add_u32 v48, v21 offset:{L_SCNT + 127*4}
    s_mov_b64 exec, -1
""")
for i in range(4):
    E(f"""
    v_mad_i32_i24 v{4+i}, v{22+i}, s32, v{4+i}
    v_lshlrev_b32 v{4+i}, 24, v{4+i}
    """)
E(f"""
L_s1:
    ds_read_b32 v38, v48 offset:{L_SCNT + 127*4}
    ds_read_b64 v[36:37], v31 offset:{L_SCNT}
    s_sub_u32 s34, s34, 1
    s_cbranch_scc1 L_s1d
    s_waitcnt lgkmcnt(0)
    v_readfirstlane_b32 s30, v38
    s_cmp_lg_u32 s30, 5
    s_cbranch_scc1 L_s1
L_s1d:
""")
def scan(r):
    for m in ("row_shr:1 row_mask:0xf bank_mask:0xf bound_ctrl:0", "row_shr:2 row_mask:0xf bank_mask:0xf bound_ctrl:0",
              "row_shr:4 row_mask:0xf bank_mask:0xf bound_ctrl:0", "row_shr:8 row_mask:0xf bank_mask:0xf bound_ctrl:0",
              "row_bcast:15 row_mask:0xa bank_mask:0xf", "row_bcast:31 row_mask:0xc bank_mask:0xf"):
        E(f"s_nop 1\nv_add_u32_dpp v{r}, v{r}, v{r} {m}")
E(f"""
    v_add_u32 v38, v36, v37
    v_add_u32 v39, v36, v37
""")
scan(39)
E(f"""
    v_sub_u32 v40, v39, v38
    v_add_u32 v40, {L_SORT//4}, v40
    v_add_u32 v41, v40, v36
    ds_write_b64 v31, v[40:41] offset:{L_SOFF}
""")
for i in range(4):
    E(f"ds_read_b32 v{22+i}, v{22+i} offset:{L_SOFF}")
E("s_waitcnt vmcnt(1)")
for i in range(4):
    E(f"v_lshl_or_b32 v{4+i}, v{8+i}, 8, v{4+i}")
for i in range(4):
    E(f"""
    s_waitcnt lgkmcnt({3 + i})
    v_add_lshl_u32 v{22+i}, v{22+i}, v{26+i}, 2
    ds_write_b32 v{22+i}, v{4+i} offset:8
    ds_write2_b32 v{22+i}, v{12+2*i}, v{13+2*i} offset0:0 offset1:1
    """)
E(f"""
    s_mov_b64 exec, 1
    ds_add_u32 v48, v21 offset:{L_SCNT + 126*4}
    s_mov_b64 exec, -1
L_s2:
    ds_read_b32 v38, v48 offset:{L_SCNT + 126*4}
    ds_read_b128 v[4:7], v33 offset:{L_SORT}
    ds_read_b128 v[8:11], v33 offset:{L_SORT+5120}
    ds_read_b128 v[12:15], v33 offset:{L_SORT+10240}
    s_sub_u32 s34, s34, 1
    s_cbranch_scc1 L_s2d
    s_waitcnt lgkmcnt(3)
    v_readfirstlane_b32 s30, v38
    s_cmp_lg_u32 s30, 5
    s_cbranch_scc1 L_s2
L_s2d:
    s_waitcnt lgkmcnt(2)
    global_store_dwordx4 v32, v[4:7], s[20:21] sc1
    s_waitcnt lgkmcnt(1)
    global_store_dwordx4 v34, v[8:11], s[20:21] sc1
    s_waitcnt lgkmcnt(0)
    global_store_dwordx4 v35, v[12:15], s[20:21] sc1
    ds_write_b128 v33, v[48:51] offset:{L_SORT}
    ds_write_b128 v33, v[48:51] offset:{L_SORT+5120}
    ds_write_b128 v33, v[48:51] offset:{L_SORT+10240}
""")
STAMP(3)
E(f"""
    s_waitcnt vmcnt(3)
    v_readfirstlane_b32 s{S_TAG}, v43
    s_mov_b32 s33, s3
    s_barrier                               ; B2
""")
finish_tag()
E(f"""
    s_lshl_b32 s30, s{S_TAG8}, 24
    s_sub_u32 s30, s30, {L_SORT//4}
    v_add_u32 v40, s30, v40
    v_add_u32 v41, s30, v41
    v_lshl_or_b32 v44, v36, 12, v40
    v_lshl_or_b32 v46, v37, 12, v41
    v_mov_b32 v45, s{S_TAG}
    v_mov_b32 v47, s{S_TAG}
    s_branch L_rec
; ---------------- waves 5..11
L_nosort:
""")
if OPT["codepf"]:
    E(f"""
    s_cmp_lg_u32 s3, 5
    s_cbranch_scc1 L_nopf
    s_getpc_b64 s[28:29]
L_pc:
    s_sub_u32 s28, s28, L_pc-{NAME}-256
    s_subb_u32 s29, s29, 0
    v_lshlrev_b32 v2, 7, v1
    v_add_u32 v3, 0x2000, v2
    v_min_u32 v3, L_codeend-{NAME}-320, v3
    global_load_dword v164, v2, s[28:29]
    global_load_dword v165, v3, s[28:29]
L_nopf:
    """)
E(f"""
L_restart:
    s_cmp_ge_u32 s3, 10
    s_cbranch_scc1 L_wdma
    s_sub_u32 s33, s3, 5
    v_lshrrev_b32 v2, 4, v1                 ; g
    v_and_b32 v4, 15, v1
    v_xor_b32 v3, v2, v4
    v_lshlrev_b32 v3, 4, v3
    v_lshl_add_u32 v6, v2, 8, v3            ; g*256 + (c^g)*16
    s_mul_i32 s30, s{S_BUCK}, {NB*256}
    s_lshl_b32 s31, s33, 12
    s_add_u32 s34, s30, s31
    v_add_u32 v6, s34, v6
    v_xor_b32 v7, 64, v6
    v_xor_b32 v8, 0x80, v6
    v_xor_b32 v9, 0xc0, v6
    s_add_u32 m0, s31, {L_X}
    s_waitcnt lgkmcnt(0)
    global_load_lds_dwordx4 v6, s[4:5]
    global_load_lds_dwordx4 v7, s[4:5] offset:1024
    global_load_lds_dwordx4 v8, s[4:5] offset:2048
    global_load_lds_dwordx4 v9, s[4:5] offset:3072
    s_barrier                               ; B0
""")
load_tag()
STAMP(1)
E(f"""
    v_subrev_u32 v10, 320, v0               ; t = 0..319
    v_lshlrev_b32 v11, 4, v10
    v_mov_b32 v12, {NULL_SRC}
    v_mov_b32 v13, {NULL_SRC}
    v_mov_b32 v14, {NULL_SRC}
    v_mov_b32 v15, {NULL_SRC}
    v_mov_b32 v16, 0
    v_mov_b32 v17, 0
    v_mov_b32 v18, 0
    v_mov_b32 v19, 0
""")
for o in (0, 5120, 10240, 15360, 81*SSTR - 5120):
    E(f"ds_write_b128 v11, v[12:15] offset:{L_SRC + o}")
E(f"v_add_u32 v20, {L_SORT + 15360}, v11")
rest = L_EAEND - (L_SORT + 15360)
for o in (0, 5120, 10240, 15360, 20480, rest - 5120):
    assert o + 5120 <= rest
    E(f"ds_write_b128 v20, v[16:19] offset:{o}")
assert rest <= 6*5120
E(f"""
    s_mov_b32 s31, 52429
    v_mul_u32_u24 v21, s31, v10
    v_lshrrev_b32 v21, 22, v21              ; block
    s_movk_i32 s32, -80
    v_mad_i32_i24 v22, v21, s32, v10        ; node
    v_mul_u32_u24 v24, {SSTR}, v22
    v_lshl_add_u32 v24, v21, 5, v24
    v_add_u32 v24, {L_SRC}, v24
    v_mul_u32_u24 v25, {NSTR}, v22
    v_add_u32 v25, {L_NODE}, v25
    v_mov_b32 v26, {L_SRC + 80*SSTR}
    v_mov_b32 v27, {L_DUM}
    v_mov_b32 v28, {L_SRC + 80*SSTR}
    v_mov_b32 v29, {L_DUM}
    v_lshlrev_b32 v23, 3, v10
    v_cmp_gt_u32 vcc, {NSTATIC}, v10
    s_and_saveexec_b64 s[48:49], vcc
    ds_write_b64 v23, v[24:25] offset:{L_LIST}
    s_mov_b64 exec, s[48:49]
    v_cmp_gt_u32 vcc, {(L_SRC - L_LIST - 8*NSTATIC)//16}, v10
    s_and_saveexec_b64 s[48:49], vcc
    ds_write_b128 v11, v[26:29] offset:{L_LIST + 8*NSTATIC}
    s_mov_b64 exec, s[48:49]
    v_mul_u32_u24 v24, {SSTR}, v10
    v_add_u32 v24, {L_SRC}, v24
    v_lshlrev_b32 v23, 2, v10
    v_add_u32 v25, {L_DUM + 256}, v23
    v_cmp_gt_u32 vcc, 128, v10
    s_and_saveexec_b64 s[48:49], vcc
    ds_write_b32 v23, v24 offset:{L_CNT}
    ds_write_b32 v25, v16
    ds_write_b128 v16, v[16:19] offset:{L_DONE1}
    s_mov_b64 exec, s[48:49]
    v_bfe_u32 v3, v1, 2, 2                  ; r
    v_lshl_add_u32 v5, v2, 3, v3            ; 8g + r
    v_lshrrev_b32 v3, 1, v3
    v_and_b32 v6, 1, v2
    v_lshl_or_b32 v3, v6, 1, v3             ; sigma
    v_lshlrev_b32 v3, 5, v3
    v_lshl_add_u32 v10, v5, 7, v3
    v_and_b32 v3, 3, v1
    v_lshl_add_u32 v10, v3, 3, v10
    v_add_u32 v10, {L_WBV}, v10
    v_xor_b32 v11, 32, v10
    v_xor_b32 v12, 64, v10
    v_xor_b32 v13, 0x60, v10
    v_xor_b32 v3, v2, v4
    v_lshlrev_b32 v3, 4, v3
    v_lshl_add_u32 v14, v4, 8, v3
    s_lshl_b32 s31, s33, 12
    s_add_u32 s31, s31, {L_X}
    v_add_u32 v14, s31, v14
    v_xor_b32 v15, 64, v14
    v_xor_b32 v16, 0x80, v14
    v_xor_b32 v17, 0xc0, v14
    s_mul_i32 s30, s{S_HALF}, {G_HALF}
    s_add_u32 s30, s30, s34
    v_lshlrev_b32 v18, 10, v2
    v_lshl_add_u32 v18, v4, 4, v18
    v_add_u32 v18, s30, v18
    s_mul_i32 s30, s33, {16*NSTR}
    s_add_u32 s30, s30, {L_NODE}
    v_mul_u32_u24 v19, {4*NSTR}, v2
    v_lshl_add_u32 v19, v4, 3, v19
    v_add_u32 v19, s30, v19
    s_mov_b32 s40, {f32(LOG2E)}
    s_mov_b32 s42, {f32(2.0**32)}
    s_mov_b32 s44, 0x07060100
    s_mov_b32 s45, 0x07060302
    v_mov_b32 v8, {f32(2.0**-100)}
    s_waitcnt lgkmcnt(0)
""")
finish_tag()
E("s_waitcnt vmcnt(0)")
STAMP(2)
E("s_barrier                               ; B2")
STAMP(3)
XF = 20; WF = 36; AC1 = 84; AC2 = 116; PK = 148
for ks in range(4):
    E(f"ds_read_b128 v[{XF+4*ks}:{XF+4*ks+3}], v{14+ks}")
units = [(gm, tau, t) for gm in range(2) for tau in range(4) for t in range(2)]
def wreads(u):
    gm, tau, t = units[u]
    b = WF + 16*(u % 3)
    if gm == 1 and t == 0:
        E(f"v_add_u32 v{10+tau}, {L_WAU - L_WBV}, v{10+tau}")
    for ks in range(4):
        for rd in range(2):
            r = b + 4*ks + 2*rd
            E(f"ds_read_b64_tr_b16 v[{r}:{r+1}], v{10+tau} offset:{t*16384 + ks*4096 + rd*512}")
def wmfma(u):
    gm, tau, t = units[u]
    b = WF + 16*(u % 3); d = (AC1, AC2)[gm] + 16*t + 4*tau
    for ks in range(4):
        c = "0" if ks == 0 else f"v[{d}:{d+3}]"
        E(f"v_mfma_f32_16x16x32_bf16 v[{d}:{d+3}], v[{XF+4*ks}:{XF+4*ks+3}], v[{b+4*ks}:{b+4*ks+3}], {c}")
def packG():
    b = AC1; h = AC1 + 16
    for i in range(8):
        E(f"v_pk_mul_f32 v[{b+2*i}:{b+2*i+1}], v[{b+2*i}:{b+2*i+1}], s[40:41] op_sel_hi:[1,0]")
    for i in range(8):
        E(f"v_pk_fma_f32 v[{h+2*i}:{h+2*i+1}], v[{h+2*i}:{h+2*i+1}], s[42:43], v[8:9] op_sel_hi:[1,0,0]")
    E(f"s_cmp_lg_u32 s{S_SAFE}, 0\ns_cbranch_scc1 L_nogst")
    for r in range(4):
        o = PK + 4*r
        E(f"""
        v_cvt_pk_bf16_f32 v2, v{b+r}, v{b+4+r}
        v_cvt_pk_bf16_f32 v3, v{b+8+r}, v{b+12+r}
        v_xor_b32 v4, 0x80008000, v2
        v_xor_b32 v5, 0x80008000, v3
        v_sub_u32_sdwa v{h+r}, v{h+r}, sext(v2) dst_sel:DWORD dst_unused:UNUSED_PAD src0_sel:DWORD src1_sel:WORD_0
        v_sub_u32_sdwa v{h+4+r}, v{h+4+r}, sext(v2) dst_sel:DWORD dst_unused:UNUSED_PAD src0_sel:DWORD src1_sel:WORD_1
        v_sub_u32_sdwa v{h+8+r}, v{h+8+r}, sext(v3) dst_sel:DWORD dst_unused:UNUSED_PAD src0_sel:DWORD src1_sel:WORD_0
        v_sub_u32_sdwa v{h+12+r}, v{h+12+r}, sext(v3) dst_sel:DWORD dst_unused:UNUSED_PAD src0_sel:DWORD src1_sel:WORD_1
        v_perm_b32 v{o}, v{h+r}, v4, s44
        v_perm_b32 v{o+1}, v{h+4+r}, v4, s45
        v_perm_b32 v{o+2}, v{h+8+r}, v5, s44
        v_perm_b32 v{o+3}, v{h+12+r}, v5, s45
        global_store_dwordx4 v18, v[{o}:{o+3}], s[20:21] offset:{256*r} sc1
        """)
    E("L_nogst:")
wreads(0)
for u in range(16):
    if u + 1 < 16:
        wreads(u+1)
        E("s_waitcnt lgkmcnt(8)")
    else:
        E("s_waitcnt lgkmcnt(0)")
    wmfma(u)
    if u == 7:
        E("s_nop 7")
        packG()
        STAMP(4)
E(f"""
    s_mov_b32 s40, {f32(-LOG2E)}
    s_mov_b32 s46, 0x3f80
    v_mov_b32 v2, 0
    v_mov_b32 v3, 1
    s_lshl_b32 s30, s{S_P}, 7
    s_add_u32 s30, s30, {WS_FL2}
    v_mov_b32 v4, s30
    v_mov_b32 v6, s{S_TAG}
    v_mov_b32 v7, s{S_TAG8}
""")
a = AC2; u_ = AC2 + 16
for i in range(8):
    E(f"v_pk_mul_f32 v[{a+2*i}:{a+2*i+1}], v[{a+2*i}:{a+2*i+1}], s[40:41] op_sel_hi:[1,0]")
for i in range(8):
    E(f"v_pk_mul_f32 v[{u_+2*i}:{u_+2*i+1}], v[{u_+2*i}:{u_+2*i+1}], s[42:43] op_sel_hi:[1,0]")
for r in range(4):
    E(f"v_cvt_pk_bf16_f32 v{AC1+2*r}, v{a+r}, v{a+4+r}\nv_cvt_pk_bf16_f32 v{AC1+2*r+1}, v{a+8+r}, v{a+12+r}")
for r in range(4):
    for tau in range(4):
        d = 24 + 8*r + 2*tau
        E(f"v_cvt_f64_f32 v[{d}:{d+1}], v{u_+4*tau+r}")
STAMP(5)
E(f"""
    s_waitcnt vmcnt(0)
    s_mov_b64 exec, 1
    ds_add_rtn_u32 v5, v2, v3 offset:{L_DONE2}
    s_waitcnt lgkmcnt(0)
    v_readfirstlane_b32 s30, v5
    s_add_u32 s30, s30, s{S_SAFE}
    s_cmp_lg_u32 s30, 4
    s_cbranch_scc1 L_nofl2
    global_store_dwordx2 v4, v[6:7], s[20:21] sc1
L_nofl2:
    s_mov_b64 exec, -1
""")
STAMP(6)
lds_wait_eq(L_DONE2, 5, "d2")
for r in range(4):
    E(f"""
    ds_write_b64 v19, v[{AC1+2*r}:{AC1+2*r+1}] offset:{NSTR*r + 512}
    ds_write_b64 v19, v[{24+8*r}:{25+8*r}] offset:{NSTR*r}
    ds_write_b64 v19, v[{26+8*r}:{27+8*r}] offset:{NSTR*r + 128}
    ds_write_b64 v19, v[{28+8*r}:{29+8*r}] offset:{NSTR*r + 256}
    ds_write_b64 v19, v[{30+8*r}:{31+8*r}] offset:{NSTR*r + 384}
    """)
E("s_waitcnt lgkmcnt(0)")
main_consts()
STAMP(7)
E(f"""
    s_cmp_ge_u32 s3, 7
    s_cbranch_scc1 L_b4
    s_cmp_lg_u32 s{S_SAFE}, 0
    s_cbranch_scc1 L_b4
    v_subrev_u32 v2, 320, v0
    v_lshlrev_b32 v3, 8, v2
    s_lshl_b32 s30, s{S_HALF}, 7
    s_add_u32 s30, s30, {WS_FL2}
    v_add_u32 v3, s30, v3
    v_cmp_gt_u32 vcc, {NBUCK}, v2
    s_mov_b64 exec, vcc
    s_mov_b32 s31, {POLL_MAX}
L_p2:
    global_load_dwordx2 v[60:61], v3, s[20:21] sc1
    s_waitcnt vmcnt(0)
    v_cmp_ne_u32 vcc, s{S_TAG}, v60
    v_cmp_ne_u32 s[48:49], s{S_TAG8}, v61
    s_sub_u32 s31, s31, 1
    s_cmp_eq_u32 s31, 0
    s_cbranch_scc1 L_p2d
    s_or_b64 exec, vcc, s[48:49]
    s_cbranch_scc1 L_p2
L_p2d:
    s_mov_b64 exec, -1
    s_branch L_b4
L_wdma:
    v_lshrrev_b32 v2, 3, v1
    v_bfe_u32 v3, v1, 4, 1
    s_and_b32 s30, s3, 1
    s_lshl_b32 s31, s30, 1
    v_or_b32 v3, s31, v3                    ; sigma
    v_lshlrev_b32 v3, 1, v3
    v_and_b32 v4, 7, v1
    v_xor_b32 v3, v3, v4
    v_lshlrev_b32 v3, 4, v3
    v_lshl_add_u32 v8, v2, 8, v3
    s_lshl_b32 s31, s30, 11
    s_lshl_b32 s32, s{S_HALF}, 7
    s_add_u32 s31, s31, s32
    v_add_u32 v8, s31, v8
""")
for n in range(1, 8):
    E(f"v_add_u32 v{8+n}, {4096*n - (2048 if n & 1 else 0)}, v8")
E(f"""
    s_lshl_b32 s30, s30, 10
    s_add_u32 m0, s30, {L_WBV}
    s_waitcnt lgkmcnt(0)
    s_add_u32 s34, s16, {128*256}
    s_addc_u32 s35, s17, 0
    s_barrier                               ; B0
""")
load_tag()
for ti, base in enumerate((34, 14, 16, 12)):
    for n in range(0, 8, 2):
        E(f"""
        global_load_lds_dwordx4 v{8+n}, s[{base}:{base+1}]
        global_load_lds_dwordx4 v{9+n}, s[{base}:{base+1}] offset:2048
        """)
        step = 4096 + (L_WAU - L_X if (ti == 1 and n == 6) else 0)
        if not (ti == 3 and n == 6):
            E(f"s_add_u32 m0, m0, {step}\ns_nop 0")
E(f"""
    v_bfe_u32 v2, v1, 3, 2
    v_lshlrev_b32 v4, 4, v4
    v_lshl_add_u32 v2, v2, 8, v4
    s_add_u32 s32, s32, {256*256}
    v_add_u32 v2, s32, v2
    s_mov_b32 m0, {L_C}
    s_cmp_lg_u32 s3, 10
    s_cbranch_scc1 L_noc
    global_load_lds_dwordx4 v2, s[16:17]
L_noc:
""")
E("s_waitcnt lgkmcnt(0)")
finish_tag()
STAMP(1)
E("s_waitcnt vmcnt(0)")
STAMP(2)
E(f"""
    s_barrier                               ; B2
    s_sub_u32 s33, s3, 5
L_rec:
    s_mov_b32 s40, {f32(-LOG2E)}
    s_mov_b32 s46, 0x3f80
""")
main_consts()
NP = 9
RA = 72; RB = RA + 4*NP
E(f"""
    s_cmp_lg_u32 s{S_SAFE}, 0
    s_cbranch_scc1 L_b4
    v_and_b32 v34, 15, v1                   ; j
    v_lshrrev_b32 v2, 4, v1
    v_mul_u32_u24 v2, {NP}, v2
    s_mul_i32 s30, s33, {4*NP}
    v_add3_u32 v35, v2, v34, s30
    s_lshl_b32 s30, s{S_BUCK}, 3
    s_add_u32 s30, s30, {WS_ROW}
    v_lshl_add_u32 v36, v35, 10, s30
    v_cmp_gt_u32 s[66:67], {NP}, v34
    v_cmp_gt_u32 vcc, {NCHUNK}, v35
    s_and_b64 s[66:67], s[66:67], vcc
    v_mul_u32_u24 v35, {CHUNK*3}, v35
    v_add_u32 v35, {WS_REC//4}, v35
    v_mul_u32_u24 v37, 3, v34               ; 3j
    v_mul_u32_u24 v38, 12, v34              ; 12j
    v_not_b32 v37, v37
    v_subrev_u32 v39, 48, v37
    v_mov_b32 v40, 0
    v_mov_b32 v41, 0
    v_mov_b32 v42, 4
    s_cmp_ge_u32 s3, 5
    s_cbranch_scc1 L_nopub
    v_mov_b32 v3, 1
    s_lshl_b32 s30, s{S_P}, 10
    s_add_u32 s30, s30, {WS_ROW}
    v_lshl_add_u32 v30, v1, 4, s30
    s_waitcnt vmcnt(0) lgkmcnt(0)
""")
STAMP(4)
E(f"""
    s_mov_b64 exec, 1
    ds_add_rtn_u32 v2, v40, v3 offset:{L_DONE1}
    s_waitcnt lgkmcnt(0)
    v_readfirstlane_b32 s30, v2
    s_mov_b64 exec, -1
    s_cmp_lg_u32 s30, 4
    s_cbranch_scc1 L_nopub
    global_store_dwordx4 v30, v[44:47], s[20:21] sc1
L_nopub:
""")
lds_wait_eq(L_DONE1, 5, "d1")
STAMP(5)
E(f"""
    s_mov_b64 exec, s[66:67]
    s_mov_b32 s31, {POLL_MAX}
L_p1:
    global_load_dwordx2 v[40:41], v36, s[20:21] sc1
    s_waitcnt vmcnt(0)
    v_cmp_ne_u32 vcc, s{S_TAG}, v41
    v_cmp_ne_u32_sdwa s[48:49], v40, s{S_TAG8} src0_sel:BYTE_3 src1_sel:DWORD
    s_sub_u32 s31, s31, 1
    s_cmp_eq_u32 s31, 0
    s_cbranch_scc1 L_p1d
    s_or_b64 exec, vcc, s[48:49]
    s_cbranch_scc1 L_p1
L_p1d:
    s_mov_b64 exec, -1
""")
STAMP(6)
E(f"""
    v_and_b32 v41, 0xfff, v40
    v_bfe_u32 v40, v40, 12, 12              ; 3*count
    v_add_lshl_u32 v41, v41, v35, 2
    v_cmp_lt_u32 vcc, 96, v40
    v_cmp_lt_u32 s[68:69], 48, v40
    s_cbranch_vccnz L_toobig
""")
for p in range(NP):
    r = RA + 4*p
    E(f"""
    v_add_co_u32_dpp v2, vcc, v40, v37 row_newbcast:{p} row_mask:0xf bank_mask:0xf
    v_add_u32_dpp v{r+3}, v41, v38 row_newbcast:{p} row_mask:0xf bank_mask:0xf
    s_mov_b64 s[{48+2*p}:{49+2*p}], vcc
    s_mov_b64 exec, vcc
    global_load_dwordx3 v[{r}:{r+2}], v{r+3}, s[20:21] sc1
    s_mov_b64 exec, -1
    """)
E(f"""
    s_or_b32 s68, s68, s69
    s_lshr_b32 s69, s68, 16
    s_or_b32 s68, s68, s69
    s_cbranch_scc0 L_noex
""")
for p in range(NP):
    r = RB + 4*p
    E(f"""
    s_bitcmp1_b32 s68, {p}
    s_cbranch_scc0 L_nx{p}
    v_add_co_u32_dpp v2, vcc, v40, v39 row_newbcast:{p} row_mask:0xf bank_mask:0xf
    s_mov_b64 exec, vcc
    global_load_dwordx3 v[{r}:{r+2}], v{RA+4*p+3}, s[20:21] offset:192 sc1
    s_mov_b64 exec, -1
L_nx{p}:
    """)
E("L_noex:")
STAMP(7)
def rank(r, m):
    E(f"""
    v_mul_u32_u24_sdwa v{r+3}, v42, v{r+2} dst_sel:DWORD dst_unused:UNUSED_PAD src0_sel:DWORD src1_sel:BYTE_3
    v_and_b32 v{r+2}, {OPT['srcmask']}, v{r+2}
    s_mov_b64 exec, {m}
    ds_add_rtn_u32 v{r+3}, v{r+3}, v42 offset:{L_CNT}
    """)
def put(r, m):
    E(f"""
    s_mov_b64 exec, {m}
    v_lshlrev_b32 v2, 1, v{r+3}
    ds_write_b32 v{r+3}, v{r+2}
    ds_write_b64 v2, v[{r}:{r+1}] offset:{L_EA - 2*L_SRC}
    """)
LAG = 2
for p in range(NP + LAG):
    if p < NP:
        E(f"s_waitcnt vmcnt({NP-1-p})\ns_mov_b64 exec, -1")
        rank(RA + 4*p, f"s[{48+2*p}:{49+2*p}]")
    q = p - LAG
    if q >= 0:
        younger = 0
        for j in range(q+1, min(p, NP-1)+1): younger += 1
        for j in range(max(0, q-LAG), q): younger += 2
        E(f"s_waitcnt lgkmcnt({younger})")
        put(RA + 4*q, f"s[{48+2*q}:{49+2*q}]")
E(f"""
    s_mov_b64 exec, -1
    s_cmp_eq_u32 s68, 0
    s_cbranch_scc1 L_b4
""")
for p in range(NP):
    r = RB + 4*p
    E(f"""
    s_bitcmp1_b32 s68, {p}
    s_cbranch_scc0 L_ny{p}
    v_add_co_u32_dpp v2, vcc, v40, v39 row_newbcast:{p} row_mask:0xf bank_mask:0xf
    """)
    rank(r, "vcc")
    E("s_waitcnt lgkmcnt(0)")
    put(r, "vcc")
    E(f"s_mov_b64 exec, -1\nL_ny{p}:")
E(f"""
    s_branch L_b4
L_toobig:
    v_mov_b32 v2, 0
    ds_write_b32 v2, v42 offset:{L_FLAG}
L_b4:
    s_mul_i32 s30, s{S_HALF}, {G_HALF}
    s_add_u32 s36, s20, s30
    s_addc_u32 s37, s21, 0
    s_mov_b32 s38, {OPT['nrec'] or G_HALF}
    s_mov_b32 s39, 0x20000
    s_mov_b32 s44, {2*LSTR}
    s_mov_b32 s45, {2*LSTR}
    ds_read_b64 v[60:61], v{LP}
    ds_read_b32 v62, v{LP+1}
    ds_read_b32 v63, v{LP} offset:{LSTR}
    ds_read_b32 v{WN}, v{LP} offset:{LSTR + 4}
    ds_read_b32 v{WE}, v{LP+1} offset:{LSTR}
    ds_read_b32 v{WS_}, v{LP} offset:{2*LSTR}
    s_waitcnt lgkmcnt(0)
    v_add_u32 v{AG}, v61, v{LN8}
    v_lshl_add_u32 v62, v62, 1, v{EAC}
""")
if OPT["warm"]:
    E(f"""
    s_barrier
    s_lshr_b32 s30, s2, 3
    s_mul_i32 s30, s30, 98304
    v_lshl_add_u32 v2, v0, 7, s30
    buffer_load_dword v3, v2, s[36:39], 0 offen sc1
    s_waitcnt vmcnt(0)
    s_sleep 40
    """)
STAMP(8)
E(f"""
    s_barrier                               ; B4
    s_cmp_lg_u32 s{S_SAFE}, 0
    s_cbranch_scc1 L_safe
    ds_read_b128 v[{OFS}:{OFS+3}], v60
    ds_read_b128 v[{OFS+4}:{OFS+7}], v60 offset:16
    ds_read_b128 v[{T}:{T+3}], v63
    ds_read_b128 v[{T+4}:{T+7}], v63 offset:16
    ds_read_b64 v[{XA}:{XA+1}], v{AG} offset:512
    ds_read_b64 v[{EA}:{EA+1}], v62
    s_cmp_lg_u32 s3, {NW-1}
    s_cbranch_scc1 L_nobuild
    v_lshlrev_b32 v2, 3, v1
    v_mov_b32 v3, 0
    ds_read_b64 v[64:65], v2 offset:{L_CNT}
    ds_read_b32 v71, v3 offset:{L_FLAG}
    v_mul_u32_u24 v66, {2*SSTR}, v1
    v_add_u32 v66, {L_SRC + 96}, v66
    v_add_u32 v68, {SSTR}, v66
    v_mul_u32_u24 v67, {2*NSTR}, v1
    v_add_u32 v67, {L_NODE}, v67
    v_add_u32 v69, {NSTR}, v67
    s_waitcnt lgkmcnt(0)
    v_sub_u32 v64, v64, v66 clamp
    v_sub_u32 v65, v65, v68 clamp
    v_max_u32 v70, v64, v65
    v_cmp_lt_u32 vcc, 160, v70
    v_cmp_ne_u32 s[48:49], 0, v71
    v_add_u32 v64, 31, v64
    v_add_u32 v65, 31, v65
    s_or_b64 vcc, vcc, s[48:49]
    s_cbranch_scc1 L_bad
    v_lshrrev_b32 v64, 5, v64
    v_lshrrev_b32 v65, 5, v65
    v_add_u32 v70, v64, v65
    v_add_u32 v71, v64, v65
""")
scan(71)
E(f"""
    v_sub_u32 v70, v71, v70
    v_lshlrev_b32 v70, 3, v70
    v_readlane_b32 s30, v71, 63
    v_lshl_add_u32 v71, v64, 3, v70
""")
for b in range(5):
    E(f"""
    v_cmp_lt_u32 vcc, {b}, v64
    v_cmp_lt_u32 s[48:49], {b}, v65
    s_mov_b64 exec, vcc
    ds_write_b64 v70, v[66:67] offset:{L_LIST + 8*NSTATIC + 8*b}
    s_mov_b64 exec, s[48:49]
    ds_write_b64 v71, v[68:69] offset:{L_LIST + 8*NSTATIC + 8*b}
    s_mov_b64 exec, -1
    """)
    if b < 4: E("v_add_u32 v66, 32, v66\nv_add_u32 v68, 32, v68")
E(f"""
    s_add_u32 s30, s30, {NSTATIC + 3}
    s_lshr_b32 s30, s30, 2
    s_branch L_built
L_bad:
    s_mov_b32 s30, -1
L_built:
    v_mov_b32 v2, s30
    ds_write_b32 v3, v2 offset:{L_NST}
    s_cmp_lg_u32 s{S_P}, 0
    s_cbranch_scc1 L_nobuild
    v_mov_b32 v2, s{S_TAG}
    v_mov_b32 v3, {WS_TAG}
    s_mov_b64 exec, 1
    global_store_dword v3, v2, s[20:21]
    s_mov_b64 exec, -1
L_nobuild:
    s_waitcnt lgkmcnt(0)
""")
for i, o in enumerate((OFS, OFS+4, T, T+4)):
    E(oadd(o)); E(oadd(o+2))
    if not OPT["nogather"]:
        for q in range(4): E(gload(G + 16*i + 4*q, o+q))
STAMP(9)
E(m_a(D0)); E(m_e(D0, 0))
E(f"""
    v_mov_b32 v2, 0
    s_mov_b32 s31, {POLL_MAX}
    s_waitcnt vmcnt(12)
""")
E(m_s(D0, A1, G)); E(m_s(D0, A2, G+8))
E(f"""
L_wn:
    ds_read_b32 v3, v2 offset:{L_NST}
    s_waitcnt lgkmcnt(0)
    v_readfirstlane_b32 s{S_N}, v3
    s_sub_u32 s31, s31, 1
    s_cmp_eq_u32 s31, 0
    s_cbranch_scc1 L_wnd
    s_cmp_eq_u32 s{S_N}, 0
    s_cbranch_scc1 L_wn
L_wnd:
    s_cmp_gt_u32 s{S_N}, {0 if OPT["force_safe"] else 160}
    s_cbranch_scc1 L_gosafe
    s_add_u32 s{S_K}, s3, {2*NW}
    s_add_u32 s28, s{S_N}, {2*NW}
    s_mov_b32 s{S_IT}, 0
    s_nop 3
""")
if OPT["prio"]: E("s_setprio 3")
STAMP(10)
if OPT["stamps"]: E(f"s_memtime s[{ST0+24}:{ST0+25}]\ns_waitcnt lgkmcnt(0)")
E("L_A:")
body(0, True)
E(f"s_cmp_ge_u32 s{S_K}, s{S_N}\ns_cbranch_scc1 L_Bt")
body(1, True)
if OPT["prio"]:
    E(f"""
    s_add_u32 s{S_IT}, s{S_IT}, 1
    s_setprio 0
    s_cmp_gt_u32 s{S_IT}, 2
    s_cbranch_scc1 L_pr
    s_setprio 1
    s_cmp_eq_u32 s{S_IT}, 2
    s_cbranch_scc1 L_pr
    s_setprio 2
L_pr:
    """)
E(f"s_cmp_lt_u32 s{S_K}, s{S_N}\ns_cbranch_scc1 L_A")
E("L_At:")
body(0, False)
E(f"s_cmp_ge_u32 s{S_K}, s28\ns_cbranch_scc1 L_mdone")
E("L_Bt:")
body(1, False)
if OPT["prio"]: E("s_setprio 0")
E(f"s_cmp_lt_u32 s{S_K}, s28\ns_cbranch_scc1 L_At")
E(f"""
L_mdone:
    s_waitcnt lgkmcnt(0)
""")
STAMP(11)
if OPT["stamps"]:
    E(f"s_memtime s[28:29]\ns_waitcnt lgkmcnt(0)\ns_sub_u32 s{ST0+24}, s28, s{ST0+24}")
E(f"""
    v_lshrrev_b32 v2, 5, v0
    v_and_b32 v3, 31, v0
    v_mul_u32_u24 v4, {NSTR}, v2
    v_lshl_add_u32 v4, v3, 4, v4
    v_add_u32 v4, {L_NODE}, v4
    s_mul_i32 s30, s{S_BUCK}, {NB*256}
    s_lshl_b32 s31, s{S_HALF}, 7
    s_add_u32 s30, s30, s31
    v_lshlrev_b32 v3, 2, v3
    v_lshl_add_u32 v5, v2, 8, v3
    v_add_u32 v5, s30, v5
    v_add_u32 v6, {24*256}, v5
    v_add_u32 v7, {48*256}, v5
    v_add_u32 v8, {72*256}, v5
    s_mov_b32 s32, {f32(2.0**-32)}
    s_mov_b32 s34, {f32(-LOG2E * 2.0**-32)}
    v_mov_b32 v9, 0x207
    s_barrier                               ; B5
""")
OSC = {0: "", 1: " sc1", 2: " nt"}[OPT["osc"]]
def epi(us):
    for u in us: E(f"ds_read_b128 v[{12+4*u}:{15+4*u}], v4 offset:{24*NSTR*u}")
    E("s_waitcnt lgkmcnt(0)")
    for u in us: E(f"v_cvt_f32_f64 v{28+2*u}, v[{12+4*u}:{13+4*u}]\nv_cvt_f32_f64 v{29+2*u}, v[{14+4*u}:{15+4*u}]")
    for u in us: E(f"v_pk_mul_f32 v[{36+2*u}:{37+2*u}], v[{28+2*u}:{29+2*u}], s[34:35] op_sel_hi:[1,0]")
    for u in us: E(f"v_exp_f32 v{36+2*u}, v{36+2*u}\nv_exp_f32 v{37+2*u}, v{37+2*u}")
    for u in us: E(f"v_pk_mul_f32 v[{28+2*u}:{29+2*u}], v[{28+2*u}:{29+2*u}], s[32:33] op_sel_hi:[1,0]")
    for u in us: E(f"v_pk_add_f32 v[{36+2*u}:{37+2*u}], v[{36+2*u}:{37+2*u}], 1.0 op_sel_hi:[1,0]")
    for u in us: E(f"v_rcp_f32 v{36+2*u}, v{36+2*u}\nv_rcp_f32 v{37+2*u}, v{37+2*u}")
    E("v_pk_add_f32 v[10:11], v[28:29], v[30:31]")
    for u in us: E(f"v_pk_mul_f32 v[{36+2*u}:{37+2*u}], v[{28+2*u}:{29+2*u}], v[{36+2*u}:{37+2*u}]")
    for u in us: E(f"v_cvt_pk_bf16_f32 v{44+u}, v{36+2*u}, v{37+2*u}\nglobal_store_dword v{5+u}, v{44+u}, s[18:19]{OSC}")
    for u in us[2:]: E(f"v_pk_add_f32 v[10:11], v[10:11], v[{28+2*u}:{29+2*u}]")
E("s_cmp_ge_u32 s3, 4\ns_cbranch_scc1 L_e3")
epi([0, 1, 2, 3])
E("s_branch L_e4\nL_e3:")
epi([0, 1, 2])
E(f"""
L_e4:
    v_add_f32 v10, v10, v11
    v_cmp_class_f32 vcc, v10, v9
    v_mov_b32 v2, 0
    s_cmp_lg_u32 s{S_SAFE}, 0
    s_cbranch_scc1 L_fin
    {"s_branch" if OPT["nosafe"] else "s_cbranch_vccz"} L_e5
    ds_write_b32 v2, v9 offset:{L_FLAG}
    s_waitcnt lgkmcnt(0)
L_e5:
    s_barrier                               ; B6
    ds_read_b32 v2, v2 offset:{L_FLAG}
    s_waitcnt lgkmcnt(0)
    v_readfirstlane_b32 s30, v2
    s_cmp_lg_u32 s30, 0
    s_cbranch_scc1 L_gosafe
L_fin:
""")
if OPT["stamps"]:
    E("s_waitcnt vmcnt(0)"); STAMP(13); STAMP_OUT()
if OPT["probe"] >= 0:
    T_ = ST0 + 2*OPT["probe"]
    E(f"""
    s_cmp_lg_u32 s3, {OPT["pw"]}
    s_cbranch_scc1 L_end
    s_cmp_lg_u32 s2, {OPT["pg"] if OPT["pg"] >= 0 else "s2"}
    s_cbranch_scc1 L_end
    s_sub_u32 s30, s{T_}, s{ST0}
    s_lshl_b32 s30, s30, 2
    s_add_u32 s30, s30, 3000
    s_min_u32 s30, s30, 20000
L_spin:
    s_memrealtime s[28:29]
    s_waitcnt lgkmcnt(0)
    s_sub_u32 s28, s28, s{ST0}
    s_cmp_lt_u32 s28, s30
    s_cbranch_scc1 L_spin
    """)
E(f"""
L_end:
    s_endpgm
L_gosafe:
    s_mov_b32 s{S_SAFE}, 8
    s_setprio 0
    s_waitcnt vmcnt(0) lgkmcnt(0)
    s_barrier
    s_cmp_ge_u32 s3, 5
    s_cbranch_scc1 L_restart
    s_barrier                               ; B0
    s_barrier                               ; B2
    s_branch L_rec
L_safe:
    v_and_b32 v2, 15, v1
    v_lshlrev_b32 v3, 1, v2
    v_add_u32 v3, {L_C}, v3
""")
for k in range(4):
    for s in range(4):
        E(f"ds_read_u16 v{80+4*k+s}, v3 offset:{128*k + 32*s}")
E("s_waitcnt lgkmcnt(0)")
for i in range(16):
    E(f"v_lshlrev_b32 v{80+i}, 16, v{80+i}\nv_mul_f32 v{80+i}, s40, v{80+i}")
E(f"""
    v_lshrrev_b32 v24, 4, v1
    v_mul_u32_u24 v24, 3, v24               ; 3*quarter
    s_movk_i32 s33, {NSTR}
    v_add_u32 v25, {L_NODE}, v{LN8}
    s_mov_b32 s34, s3
L_scell:
    s_lshl_b32 s30, s34, 10
    s_lshl_b32 s31, s{S_BUCK}, 3
    s_add_u32 s30, s30, s31
    s_add_u32 s30, s30, {WS_ROW}
    v_mov_b32 v26, s30
    global_load_dword v27, v26, s[20:21] sc1
    s_mul_i32 s30, s34, {CHUNK*3}
    s_add_u32 s30, s30, {WS_REC//4}
    s_waitcnt vmcnt(0)
    v_bfe_u32 v28, v27, 12, 12              ; 3*count
    v_and_b32 v27, 0xfff, v27
    v_add_u32 v27, s30, v27
    v_mov_b32 v29, v24
L_srec:
    v_cmp_gt_u32 vcc, v28, v29
    s_and_saveexec_b64 s[48:49], vcc
    s_cbranch_execz L_snext
    v_add_lshl_u32 v30, v27, v29, 2
    global_load_dwordx3 v[32:34], v30, s[20:21] sc1
    s_waitcnt vmcnt(0)
    v_and_b32 v30, 0x3fffff, v34
    v_add_u32 v30, v30, v{LN16}
    buffer_load_dwordx4 v[36:39], v30, s[36:39], 0 offen sc1
    v_lshrrev_b32 v31, 24, v34
    v_mad_u32_u24 v31, v31, s33, v25
    ds_read_b64 v[40:41], v31 offset:512
    v_lshlrev_b32 v44, 16, v32
    v_and_b32 v45, 0xffff0000, v32
    v_lshlrev_b32 v46, 16, v33
    v_and_b32 v47, 0xffff0000, v33
    s_waitcnt vmcnt(0) lgkmcnt(0)
    v_lshlrev_b32 v48, 16, v40
    v_and_b32 v49, 0xffff0000, v40
    v_lshlrev_b32 v50, 16, v41
    v_and_b32 v51, 0xffff0000, v41
""")
for s in range(4):
    E(f"v_lshlrev_b32 v52, 16, v{36+s}\nv_add_f32 v{48+s}, v{48+s}, v52")
    for k in range(4):
        E(f"v_fmac_f32 v{48+s}, v{44+k}, v{80+4*k+s}")
for s in range(4): E(f"v_exp_f32 v{48+s}, v{48+s}")
E("s_nop 0")
for s in range(4): E(f"v_add_f32 v{48+s}, 1.0, v{48+s}")
for s in range(4): E(f"v_rcp_f32 v{48+s}, v{48+s}")
E("s_nop 0")
for s in range(4): E(f"v_mul_f32 v{48+s}, v{48+s}, v{36+s}")
for s in range(4): E(f"v_cvt_f64_f32 v[{54+2*s}:{55+2*s}], v{48+s}")
for s in range(4): E(f"ds_add_f64 v31, v[{54+2*s}:{55+2*s}] offset:{128*s}")
E(f"""
    s_mov_b64 exec, s[48:49]
    v_add_u32 v29, 12, v29
    s_branch L_srec
L_snext:
    s_mov_b64 exec, s[48:49]
    s_add_u32 s34, s34, {NW}
    s_cmp_lt_u32 s34, {NCHUNK}
    s_cbranch_scc1 L_scell
    s_branch L_mdone
L_codeend:
.section .rodata,"a"
.p2align 6
.amdhsa_kernel {NAME}
.amdhsa_next_free_vgpr 168
.amdhsa_next_free_sgpr 102
.amdhsa_accum_offset 168
.amdhsa_group_segment_fixed_size 0
.amdhsa_kernarg_size 80
.amdhsa_user_sgpr_count 2
.amdhsa_user_sgpr_kernarg_segment_ptr 1
.amdhsa_system_sgpr_workgroup_id_x 1
.end_amdhsa_kernel
""")
if OPT["nochain"]:
    i0 = out.index("L_A:"); i1 = out.index("L_mdone:")
    out = out[:i0] + [l for l in out[i0:i1] if not any(x in l for x in ("v_exp", "v_pk_", "mfma", "v_rcp", "v_cvt"))] + out[i1:]
open(sys.argv[1], "w").write("\n".join(out) + "\n")
```

```python
import sys, struct

OPT = dict(stamps=0, force_safe=0, nogather=0, nosafe=0, prio=1, gsc1=1, osc=0, spin=0, codepf=1, srcmask=0x3fff00, nrec=0, warm=0, nochain=0, probe=-1, pw=-1, pg=-1, gpf=0, gate=1, aulate=0, early=0, cnt=0, rsc1=1, rdelay=0, p2sleep=0)
for a in sys.argv[2:]:
    k, v = a.split("=")
    assert k in OPT, k
    OPT[k] = int(v, 0)

out = []
def E(s=""):
    for line in s.split("\n"):
        line = line.strip()
        if not line:
            continue
        if line.endswith(":") or line.startswith(".") or line.startswith(";"):
            out.append(line)
        else:
            out.append("    " + line)

def f32(x):
    return "0x%08x" % struct.unpack("<I", struct.pack("<f", x))[0]

NAME = "standalone__edge_featured_mpnn_egc__graph_kernel"
LOG2E = 1.4426950408889634
NB = 80; NBUCK = 125; CHUNK = 1280; NCHUNK = 250
NW = 12
G_HALF = 10000 * 256
WS_REC = 0x500000
WS_ROW = 0xa00000
WS_FL2 = 0xa80000
WS_TAG = 0xac0000
SORTB = CHUNK * 16
WS_STAMP = 0x1000000
L_CNT = 0; L_SOFF = 512
L_SCNT = 1024
L_CTR = 1536; L_RD1 = 1540; L_DONE2 = 1544; L_FLAG = 1548; L_NST = 1552; L_GST = 1556
L_LIST = 2048
SSTR = 272
L_SRC = 7936
L_EA = L_SRC + 81 * SSTR
L_EAEND = L_EA + 81 * 2 * SSTR
L_SORT = L_EA
L_WBV = 74240; L_X = L_WBV + 32768; L_WAU = L_X + 20480; L_C = L_WAU + 32768; L_DUM = L_C + 1024
LDS = L_DUM + 1024
L_NODE = L_WBV; NSTR = 648
assert L_EAEND <= L_WBV and L_NODE + 80 * NSTR <= L_WAU and LDS <= 163840 and L_EA % 16 == 0
NULL_SRC = 0x7fffff00
NSTATIC = 240
LSTR = NW * 32
POLL_MAX = 200000
SC1 = " sc1"

S_HALF, S_BUCK, S_P = 22, 23, 24
S_TAG, S_TAG8, S_SAFE = 25, 26, 27
S_N, S_K, S_IT = 70, 71, 72
S_TAGRAW = 47
ST0 = 74

def ESTAMP(i):
    if OPT["early"] == 1 or (OPT["early"] and i == 0): E(f"s_memrealtime s[{ST0+2*i}:{ST0+2*i+1}]")
def FSTAMP(i):
    if OPT["early"] == 2: E(f"s_memrealtime s[{ST0+2*i}:{ST0+2*i+1}]\ns_waitcnt lgkmcnt(0)")
def STAMP(i):
    if OPT["early"] and 1 <= i <= 7: return
    if OPT["early"] and i == 0: return ESTAMP(0)
    if OPT["stamps"] or (OPT["probe"] >= 0 and i == OPT["probe"]):
        E(f"s_memrealtime s[{ST0+2*i}:{ST0+2*i+1}]\ns_waitcnt lgkmcnt(0)")
    elif OPT["probe"] >= 0 and i == 0:
        E(f"s_memrealtime s[{ST0}:{ST0+1}]")
NSTAMP = 14
def STAMP_OUT():
    if OPT["stamps"]:
        E(f"""
        s_lshl_b32 s30, s2, 4
        s_add_u32 s30, s30, s3
        s_lshl_b32 s30, s30, 6
        s_add_u32 s30, s30, {WS_STAMP}
        s_mov_b64 exec, -1
        v_mov_b32 v3, s30""")
        for i in range(NSTAMP):
            E(f"v_mov_b32 v2, s{ST0+2*i}\nglobal_store_dword v3, v2, s[20:21] offset:{4*i}")
        E("s_waitcnt vmcnt(0)")

A1, A2, IDX, LN8, LN16, ASEL, CW, EAC = 4, 8, 12, 13, 14, 16, 18, 20
LP, WS_, WN, WE, AG, EA, XA, OFS, T, N, P, F = 22, 24, 25, 26, 27, 30, 32, 36, 44, 52, 56, 60
D0, D1, G = 72, 88, 104

def finish_tag():
    E(f"""
    s_mul_i32 s{S_TAG8}, s{S_TAGRAW}, 0x85ebca6b
    s_mul_i32 s{S_TAG}, s{S_TAGRAW}, 0x9e3779b1
    s_lshr_b32 s{S_TAG8}, s{S_TAG8}, 24
    s_add_u32 s{S_TAG}, s{S_TAG}, 0x7f4a7c15
    """)
def get_tag(lab, q):
    E(f"""
    s_cmp_lg_u32 s{S_SAFE}, 0
    s_cbranch_scc1 L_tag_{lab}
    v_mov_b32 v2, 0
    s_mov_b32 s31, {POLL_MAX}
L_tg_{lab}:
    ds_read_b128 v[{q}:{q+3}], v2 offset:{L_SCNT + 124*4}
    s_sub_u32 s31, s31, 1
    s_cbranch_scc1 L_tag_{lab}
    s_waitcnt lgkmcnt(0)
    v_readfirstlane_b32 s30, v{q+3}
    v_readfirstlane_b32 s{S_TAGRAW}, v{q+1}
    s_cmp_lg_u32 s30, 4
    s_cbranch_scc1 L_tg_{lab}
    """)
    finish_tag()
    E(f"L_tag_{lab}:")

def lds_wait(addr, mask, val, tag, sleep=0):
    E(f"""
    v_mov_b32 v2, 0
    s_mov_b32 s31, {POLL_MAX}
L_w_{tag}:
    {f"s_sleep {sleep}" if sleep else ""}
    ds_read_b32 v3, v2 offset:{addr}
    s_sub_u32 s31, s31, 1
    s_cbranch_scc1 L_wd_{tag}
    s_waitcnt lgkmcnt(0)
    v_readfirstlane_b32 s30, v3
    s_and_b32 s30, s30, {mask}
    s_cmp_lg_u32 s30, {val}
    s_cbranch_scc1 L_w_{tag}
L_wd_{tag}:
    """)
SCAN = ("row_shr:1 row_mask:0xf bank_mask:0xf bound_ctrl:0", "row_shr:2 row_mask:0xf bank_mask:0xf bound_ctrl:0",
        "row_shr:4 row_mask:0xf bank_mask:0xf bound_ctrl:0", "row_shr:8 row_mask:0xf bank_mask:0xf bound_ctrl:0",
        "row_bcast:15 row_mask:0xa bank_mask:0xf", "row_bcast:31 row_mask:0xc bank_mask:0xf")
def scan(r):
    for m in SCAN:
        E(f"s_nop 1\nv_add_u32_dpp v{r}, v{r}, v{r} {m}")

def main_consts(sm=48):
    E(f"""
    v_and_b32 v2, 15, v1                    ; n'
    v_lshrrev_b32 v3, 4, v1
    v_lshl_add_u32 v3, v2, 2, v3
    v_lshlrev_b32 v3, 1, v3
    v_add_u32 v3, {L_C}, v3
    ds_read_u16 v64, v3                     ; C[0..3][feature 4n'+s]
    ds_read_u16 v65, v3 offset:128
    ds_read_u16 v66, v3 offset:256
    ds_read_u16 v67, v3 offset:384
    v_and_b32 v63, 3, v1                    ; q
    v_lshlrev_b32 v{LN8}, 3, v2
    v_lshlrev_b32 v{LN16}, 4, v2
    v_lshlrev_b32 v{LN16+1}, 4, v2
    v_mov_b32 v{IDX}, 0x8888
    v_bfe_u32 v60, v1, 3, 2                 ; s = (l&31)>>3
    v_bfe_u32 v61, v1, 2, 1                 ; h = (l>>2)&1
    v_lshrrev_b32 v62, 5, v1                ; ha
    v_and_b32 v2, 1, v60
    v_lshlrev_b32 v2, 4, v2
    v_lshlrev_b32 v2, v2, s46
    v_lshrrev_b32 v60, 1, v60               ; s>>1
    v_lshl_add_u32 v3, v61, 1, v60
    v_sub_u32 v63, v63, v62                 ; q - ha : 0 -> A1, 2 -> A2
    v_lshl_add_u32 v3, v63, 1, v3
    v_and_b32 v63, 1, v63
    v_lshl_or_b32 v3, v63, 4, v3
    v_xor_b32 v61, v61, v62
    v_lshl_or_b32 v60, v61, 4, v60
    """)
    mk = [f"s[{sm}:{sm+1}]", f"s[{sm+2}:{sm+3}]", f"s[{sm+4}:{sm+5}]", "vcc"]
    for i in range(8):
        E(f"v_cmp_eq_u32 {mk[i%4]}, {i}, v3")
        if i % 4 == 3:
            for j in range(i-3, i+1):
                E(f"v_cndmask_b32 v{A1+j}, 0, v2, {mk[j%4]}")
    E(f"""
    v_cmp_eq_u32 {mk[0]}, 0, v60
    v_cmp_eq_u32 {mk[1]}, 1, v60
    v_bfe_u32 v61, v1, 4, 1
    v_and_b32 v63, 3, v1
    v_cndmask_b32 v{ASEL}, 0, v2, {mk[0]}
    v_cndmask_b32 v{ASEL+1}, 0, v2, {mk[1]}
    v_lshl_add_u32 v61, v61, 2, v63
    v_lshlrev_b32 v61, 3, v61
    v_add_u32 v{EAC}, {L_EA - 2*L_SRC}, v61
    s_lshl_b32 s30, s3, 5
    s_add_u32 s30, s30, {L_LIST}
    v_lshrrev_b32 v2, 4, v1
    v_lshl_add_u32 v{LP}, v2, 3, s30
    v_bfe_u32 v2, v1, 2, 2
    v_lshl_add_u32 v{LP+1}, v2, 3, s30
    s_waitcnt lgkmcnt(0)
    v_lshlrev_b32 v60, 16, v64
    v_lshlrev_b32 v61, 16, v65
    v_lshlrev_b32 v62, 16, v66
    v_lshlrev_b32 v63, 16, v67
    v_mul_f32 v60, s40, v60
    v_mul_f32 v61, s40, v61
    v_mul_f32 v62, s40, v62
    v_mul_f32 v63, s40, v63
    v_cvt_pk_bf16_f32 v{CW}, v60, v61
    v_cvt_pk_bf16_f32 v{CW+1}, v62, v63
    """)

def gload(g, o):
    return f"buffer_load_dwordx4 v[{g}:{g+3}], v{o}, s[36:39], 0 offen" + (SC1 if OPT["gsc1"] else "")
def oadd(o):
    return f"v_lshl_add_u64 v[{o}:{o+1}], v[{o}:{o+1}], 0, v[{LN16}:{LN16+1}]"

def pk_steps(Gc, q, first):
    t = T + 4*(q & 1); h = Gc + 4*q
    if first and q == 0:
        return [f"v_pk_add_f32 v[{P+2*p}:{P+2*p+1}], v[{t+2*p}:{t+2*p+1}], 1.0 op_sel_hi:[1,0]" for p in range(2)]
    r = []
    for p in range(2):
        n = f"v[{Gc+2*p}:{Gc+2*p+1}]" if (first and q == 1) else f"v[{N+2*p}:{N+2*p+1}]"
        r.append(f"v_pk_fma_f32 v[{N+2*p}:{N+2*p+1}], {n}, v[{t+2*p}:{t+2*p+1}], {n}")
    for p in range(2):
        r.append(f"v_pk_fma_f32 v[{N+2*p}:{N+2*p+1}], v[{h+2*p}:{h+2*p+1}], v[{P+2*p}:{P+2*p+1}], v[{N+2*p}:{N+2*p+1}]")
    for p in range(2):
        r.append(f"v_pk_fma_f32 v[{P+2*p}:{P+2*p+1}], v[{P+2*p}:{P+2*p+1}], v[{t+2*p}:{t+2*p+1}], v[{P+2*p}:{P+2*p+1}]")
    return r
def exps(Dc, q):
    t = T + 4*(q & 1)
    return [f"v_exp_f32 v{t+s}, v{Dc+4*s+q}" for s in range(4)]
def weave(main, extra):
    for i, x in enumerate(main):
        E(x)
        for y in extra.get(i, []):
            E(y)
def m_a(Dn): return f"v_mfma_f32_32x32x8_bf16 v[{Dn}:{Dn+15}], v[{ASEL}:{ASEL+1}], v[{XA}:{XA+1}], 0"
def m_e(Dn, abid): return f"v_mfma_f32_16x16x4_4b_bf16 v[{Dn}:{Dn+15}], v[{EA}:{EA+1}], v[{CW}:{CW+1}], v[{Dn}:{Dn+15}] cbsz:2 abid:{abid}"
def m_s(Dn, A, g): return f"v_smfmac_f32_32x32x32_bf16 v[{Dn}:{Dn+15}], v[{A}:{A+3}], v[{g}:{g+7}], v{IDX}"

def body(par, loads):
    g0 = G + 32*par; g1 = g0 + 16; gn = G + 32*(1-par)
    agc = AG + par; agn = AG + 1 - par
    ld = loads and not OPT["nogather"]
    E("s_waitcnt vmcnt(8) lgkmcnt(4)")
    E(m_a(D1))
    for x in exps(D0, 0): E(x)
    E(m_s(D1, A1, g1))
    for x in exps(D0, 1): E(x)
    ex = {0: [f"v_add_u32 v{agn}, v{WN}, v{LN8}"],
          2: [f"ds_read_b64 v[{XA}:{XA+1}], v{agn} offset:512"],
          5: [f"v_lshl_add_u32 v{WE}, v{WE}, 1, v{EAC}"]}
    if loads:
        ex[1] = [f"ds_read_b128 v[{OFS}:{OFS+3}], v{WS_}"]
        ex[3] = [f"ds_read_b128 v[{OFS+4}:{OFS+7}], v{WS_} offset:16"]
    weave(pk_steps(g0, 0, True) + pk_steps(g0, 1, True), ex)
    E(m_e(D1, 1))
    for x in exps(D0, 2): E(x)
    E(m_s(D1, A2, g1+8))
    for x in exps(D0, 3): E(x)
    ex = {0: ["s_waitcnt lgkmcnt(0)", f"ds_read_b64 v[{EA}:{EA+1}], v{WE}"]}
    if loads:
        ex[0] += [oadd(OFS)]
        ex[2] = [oadd(OFS+2)]
    if ld:
        ex[1] = [gload(g0, OFS)]
        ex[3] = [gload(g0+4, OFS+1)]
        ex[5] = [gload(g0+8, OFS+2)]
        ex[9] = [gload(g0+12, OFS+3)]
    weave(pk_steps(g0, 2, False) + pk_steps(g0, 3, False), ex)
    E(f"s_waitcnt vmcnt({8 if loads else 4})")
    E(m_a(D0))
    for x in exps(D1, 0): E(x)
    E(m_s(D0, A1, gn))
    for x in exps(D1, 1): E(x)
    ex = {10: ["s_waitcnt lgkmcnt(0)"]}
    if loads:
        ex[0] = [oadd(OFS+4)]
        ex[2] = [oadd(OFS+6)]
    if ld:
        ex[5] = [gload(g1, OFS+4)]
        ex[10] = [gload(g1+4, OFS+5)] + ex[10]
    weave(pk_steps(g1, 0, False) + pk_steps(g1, 1, False), ex)
    E(m_e(D0, 0))
    for x in exps(D1, 2): E(x)
    E(m_s(D0, A2, gn+8))
    for x in exps(D1, 3): E(x)
    o = LSTR * par
    ex = {0: [f"ds_read_b32 v{WN}, v{LP} offset:{o + 2*LSTR + 4}"],
          1: [f"ds_read_b32 v{WE}, v{LP+1} offset:{o + 2*LSTR}"],
          2: [f"ds_read_b32 v{WS_}, v{LP} offset:{o + 3*LSTR}"]}
    if ld:
        ex[5] = [gload(g1+8, OFS+6)]
        ex[9] = [gload(g1+12, OFS+7)]
    weave(pk_steps(g1, 2, False) + pk_steps(g1, 3, False), ex)
    E(f"""
    v_rcp_f32 v{P}, v{P}
    v_rcp_f32 v{P+1}, v{P+1}
    v_rcp_f32 v{P+2}, v{P+2}
    v_rcp_f32 v{P+3}, v{P+3}
    v_pk_mul_f32 v[{N}:{N+1}], v[{N}:{N+1}], v[{P}:{P+1}]
    v_pk_mul_f32 v[{N+2}:{N+3}], v[{N+2}:{N+3}], v[{P+2}:{P+3}]
    """)
    if par == 1:
        E(f"v_lshl_add_u64 v[{LP}:{LP+1}], v[{LP}:{LP+1}], 0, s[44:45]")
    for s in range(4):
        E(f"v_cvt_f64_f32 v[{F+2*s}:{F+2*s+1}], v{N+s}")
        if s: E(f"ds_add_f64 v{agc}, v[{F+2*s-2}:{F+2*s-1}] offset:{128*(s-1)}")
    E(f"s_add_u32 s{S_K}, s{S_K}, {NW}")
    E(f"ds_add_f64 v{agc}, v[{F+6}:{F+7}] offset:384")
    if not loads:
        E("s_waitcnt vmcnt(0)")

E(f"""
; @launch grid=(256,1,1) block=({64*NW},1,1) lds={LDS}
.amdgcn_target "amdgcn-amd-amdhsa--gfx950"
.text
.globl {NAME}
.p2align 8
.type {NAME},@function
{NAME}:
""")
if OPT["stamps"] and OPT["early"] != 1:
    for i in range(NSTAMP): E(f"s_mov_b64 s[{ST0+2*i}:{ST0+2*i+1}], 0")
STAMP(0)
E(f"""
    s_load_dwordx16 s[4:19], s[0:1], 0
    s_load_dwordx2 s[20:21], s[0:1], 72
""")
if OPT["codepf"]:
    E(f"""
    s_getpc_b64 s[28:29]
L_pc:
    v_lshlrev_b32 v3, 7, v0
    v_cmp_gt_u32 vcc, L_codeend-L_pc-64, v3
    s_cbranch_vccz L_nopf
    s_mov_b64 exec, vcc
    global_load_dword v164, v3, s[28:29]
    s_mov_b64 exec, -1
L_nopf:
    """)
E(f"""
    v_lshrrev_b32 v2, 6, v0
    v_and_b32 v1, 63, v0
    v_readfirstlane_b32 s3, v2
    s_and_b32 s{S_HALF}, s2, 1
    s_bfe_u32 s30, s2, 0x20001
    s_lshl_b32 s30, s30, 5
    s_lshr_b32 s31, s2, 3
    s_add_u32 s{S_BUCK}, s30, s31
    s_cmp_ge_u32 s2, 256
    s_cbranch_scc1 L_end
    s_cmp_ge_u32 s{S_BUCK}, {NBUCK}
    s_cbranch_scc1 L_end
    s_lshl_b32 s{S_P}, s{S_BUCK}, 1
    s_add_u32 s{S_P}, s{S_P}, s{S_HALF}
    s_mov_b32 s{S_SAFE}, 0
L_restart:
    s_cmp_ge_u32 s3, 4
    s_cbranch_scc1 L_nosort
    v_mov_b32 v48, 0
    v_mov_b32 v49, 0
    v_mov_b32 v50, 0
    v_mov_b32 v51, 0
    v_lshlrev_b32 v10, 4, v1
    ds_write_b128 v10, v[48:51] offset:{L_SCNT}
    s_mul_i32 s30, s{S_P}, {CHUNK*4}
    v_lshl_add_u32 v3, v0, 4, s30
    s_add_u32 s30, s30, 4096
    v_lshl_add_u32 v9, v0, 2, s30
    v_lshlrev_b32 v10, 1, v3
    v_lshlrev_b32 v11, 1, v9
    v_mov_b32 v17, {WS_TAG}
    s_waitcnt lgkmcnt(0)
    global_load_dwordx4 v[4:7], v3, s[10:11]
    global_load_dword v8, v9, s[10:11]
    global_load_dword v43, v17, s[20:21]
    s_barrier                               ; B0
    global_load_dwordx4 v[12:15], v3, s[8:9]
    global_load_dword v16, v9, s[8:9]
    global_load_dwordx4 v[52:55], v10, s[6:7]
    global_load_dwordx4 v[60:63], v10, s[6:7] offset:16
    global_load_dwordx2 v[68:69], v11, s[6:7]
    s_barrier                               ; B0b
    s_branch L_sort
L_nosort:
    s_and_b32 s32, s3, 3                    ; tau
    s_lshr_b32 s33, s3, 3                   ; rg
    v_lshrrev_b32 v2, 4, v1                 ; g
    v_and_b32 v4, 15, v1
    s_lshl_b32 s30, s32, 2
    v_add_u32 v6, s30, v2                   ; row&15
    v_xor_b32 v7, v4, v6
    v_lshlrev_b32 v7, 4, v7
    v_lshl_add_u32 v7, v6, 8, v7
    s_mul_i32 s30, s{S_BUCK}, {NB*256}
    s_mul_i32 s31, s33, {3*4096}
    s_add_u32 s73, s30, s31
    v_add_u32 v7, s73, v7
    v_add_u32 v8, 0x1000, v7
    v_add_u32 v9, 0x2000, v7
    s_lshl_b32 s30, s32, 10
    s_add_u32 s31, s31, s30
    s_add_u32 m0, s31, {L_X}
    s_waitcnt lgkmcnt(0)
    s_barrier                               ; B0
    global_load_lds_dwordx4 v7, s[4:5]
    s_add_u32 m0, m0, 0x1000
    s_cmp_lg_u32 s33, 0
    global_load_lds_dwordx4 v8, s[4:5]
    s_cbranch_scc1 L_x2
    s_add_u32 m0, m0, 0x1000
    s_nop 0
    global_load_lds_dwordx4 v9, s[4:5]
L_x2:
    s_barrier                               ; B0b
    v_subrev_u32 v30, 256, v0               ; t = 0..511
    v_lshlrev_b32 v31, 4, v30
    v_mov_b32 v32, {NULL_SRC}
    v_mov_b32 v33, {NULL_SRC}
    v_mov_b32 v34, {NULL_SRC}
    v_mov_b32 v35, {NULL_SRC}
    v_mov_b32 v36, 0
    v_mov_b32 v37, 0
    v_mov_b32 v38, 0
    v_mov_b32 v39, 0
    v_add_u32 v40, {L_SORT + SORTB}, v31
""")
def cover(n): return list(range(0, n - 8192, 8192)) + [n - 8192]
for o in cover(81*SSTR): E(f"ds_write_b128 v31, v[32:35] offset:{L_SRC + o}")
for o in cover(L_EAEND - (L_SORT + SORTB)): E(f"ds_write_b128 v40, v[36:39] offset:{o}")
E(f"""
    v_lshrrev_b32 v5, 3, v1
    v_and_b32 v3, 1, v2
    s_and_b32 s30, s3, 1
    s_lshl_b32 s30, s30, 1
    v_or_b32 v3, s30, v3                    ; sigma
    v_lshlrev_b32 v3, 1, v3
    v_and_b32 v20, 7, v1
    v_xor_b32 v3, v3, v20
    v_lshlrev_b32 v3, 4, v3
    v_lshl_add_u32 v10, v5, 8, v3
    s_sub_u32 s28, s3, 4
    s_lshl_b32 s30, s28, 11
    s_lshl_b32 s31, s{S_HALF}, 7
    s_add_u32 s30, s30, s31
    v_add_u32 v10, s30, v10
    v_add_u32 v11, 0x4000, v10
    s_add_u32 s34, s16, {128*256}
    s_addc_u32 s35, s17, 0
    s_cmp_lg_u32 s3, 11
    s_cbranch_scc1 L_noc
    v_and_b32 v5, 3, v5
    v_lshlrev_b32 v20, 4, v20
    v_lshl_add_u32 v5, v5, 8, v20
    s_add_u32 s31, s31, {256*256}
    s_mov_b32 m0, {L_C}
    v_add_u32 v5, s31, v5
    global_load_lds_dwordx4 v5, s[16:17]
L_noc:
    s_lshl_b32 s28, s28, 10
    s_add_u32 m0, s28, {L_WBV}
""")
for ti, base in enumerate((34, 14)):
    for n in range(2):
        E(f"s_nop 0\nglobal_load_lds_dwordx4 v{10+n}, s[{base}:{base+1}]")
        if not (ti == 1 and n == 1):
            E(f"s_add_u32 m0, m0, 0x2000")
    if ti == 1:
        E(f"""
        s_cmp_ge_u32 s3, 8
        s_cbranch_scc1 L_pf2
        v_mov_b32 v32, {L_SRC + 80*SSTR}
        v_mov_b32 v33, {L_DUM}
        v_mov_b32 v34, {L_SRC + 80*SSTR}
        v_mov_b32 v35, {L_DUM}
        v_cmp_gt_u32 vcc, {(L_SRC - L_LIST - 8*NSTATIC)//16}, v30
        s_mov_b64 exec, vcc
        ds_write_b128 v31, v[32:35] offset:{L_LIST + 8*NSTATIC}
        s_branch L_pf3
L_pf2:
        s_cmp_ge_u32 s3, 10
        s_cbranch_scc1 L_pf3
        v_subrev_u32 v30, 256, v30              ; 0..127
        v_mul_u32_u24 v42, {SSTR}, v30
        v_add_u32 v42, {L_SRC}, v42
        v_mul_u32_u24 v43, {NSTR}, v30
        v_add_u32 v43, {L_NODE}, v43
        v_lshlrev_b32 v41, 2, v30
        ds_write_b32 v41, v42 offset:{L_CNT}
        v_add_u32 v41, {L_DUM + 256}, v41
        ds_write_b32 v41, v36
        v_lshlrev_b32 v41, 3, v30
        v_cmp_gt_u32 vcc, {NB}, v30
        s_mov_b64 exec, vcc
        ds_write_b64 v41, v[42:43] offset:{L_LIST}
        v_add_u32 v42, 32, v42
        ds_write_b64 v41, v[42:43] offset:{L_LIST + 8*NB}
        v_add_u32 v42, 32, v42
        ds_write_b64 v41, v[42:43] offset:{L_LIST + 16*NB}
L_pf3:
        s_mov_b64 exec, -1
        """)
STAMP(1)
E(f"""
    v_bfe_u32 v3, v1, 2, 2                  ; r
    v_lshl_add_u32 v5, v2, 3, v3            ; 8g + r
    v_lshrrev_b32 v3, 1, v3
    v_and_b32 v6, 1, v2
    v_lshl_or_b32 v3, v6, 1, v3             ; sigma
    v_xor_b32 v3, s32, v3
    v_lshlrev_b32 v3, 5, v3
    v_lshl_add_u32 v10, v5, 7, v3
    v_and_b32 v3, 3, v1
    v_lshl_add_u32 v10, v3, 3, v10
    v_add_u32 v10, {L_WBV}, v10
    v_xor_b32 v3, v2, v4
    v_lshlrev_b32 v3, 4, v3
    v_lshl_add_u32 v12, v4, 8, v3
    s_mul_i32 s31, s33, {3*4096}
    s_add_u32 s31, s31, {L_X}
    v_add_u32 v12, s31, v12
    v_xor_b32 v13, 64, v12
    v_xor_b32 v14, 0x80, v12
    v_xor_b32 v15, 0xc0, v12
    s_mul_i32 s30, s{S_HALF}, {G_HALF}
    s_add_u32 s30, s30, s73
    s_lshl_b32 s31, s32, 6
    s_add_u32 s30, s30, s31
    v_lshlrev_b32 v11, 10, v2
    v_lshl_add_u32 v11, v4, 2, v11
    v_add_u32 v11, s30, v11
    s_lshl_b32 s31, s32, 5
    s_add_u32 s31, s31, {L_NODE}
    v_mul_u32_u24 v16, {NSTR}, v4
    v_lshl_add_u32 v16, v2, 3, v16
    v_add_u32 v16, s31, v16
    s_mov_b32 s40, {f32(LOG2E)}
    s_mov_b32 s42, {f32(2.0**32)}
    s_mov_b32 s44, 0x07060100
    s_mov_b32 s45, 0x07060302
    v_mov_b32 v8, {f32(2.0**-100)}
    v_mov_b32 v7, 1
    v_mov_b32 v6, 0
    s_waitcnt vmcnt(0)
    s_mov_b64 exec, 1
    ds_add_u32 v6, v7 offset:{L_CTR}
    s_mov_b64 exec, -1
""")
STAMP(2)
lds_wait(L_CTR, 0xff, 8, "g1")
STAMP(3)
NP = 8
def rec_setup():
    E(f"""
    v_and_b32 v148, 15, v1                   ; j
    v_lshrrev_b32 v2, 4, v1
    v_lshl_add_u32 v149, v2, 3, v148
    s_lshl_b32 s30, s29, 5
    v_add_u32 v149, s30, v149
    s_lshl_b32 s30, s{S_BUCK}, 3
    s_add_u32 s30, s30, {WS_ROW}
    v_lshl_add_u32 v150, v149, 10, s30
    v_cmp_gt_u32 s[66:67], {NP}, v148
    v_cmp_gt_u32 vcc, {NCHUNK}, v149
    v_mov_b32 v154, 0
    v_mov_b32 v155, 0
    s_and_b64 s[66:67], s[66:67], vcc
    s_mov_b64 exec, s[66:67]
    global_load_dwordx2 v[154:155], v150, s[20:21] sc1
    s_mov_b64 exec, -1
    v_mul_u32_u24 v149, {CHUNK}, v149
    v_add_u32 v149, {WS_REC//16}, v149
    v_lshlrev_b32 v152, 4, v148               ; 16j
    v_not_b32 v151, v148
    v_subrev_u32 v153, 16, v151
    v_mov_b32 v156, 4
    """)
WF = 20; XF = 52; AC = 132
def wreads(ks):
    for t in range(2):
        for rd in range(2):
            r = WF + 16*t + 4*ks + 2*rd
            E(f"ds_read_b64_tr_b16 v[{r}:{r+1}], v10 offset:{t*16384 + ks*4096 + rd*512}")
def xread(rt, ks):
    r = XF + 16*rt + 4*ks
    return f"ds_read_b128 v[{r}:{r+3}], v{12+ks} offset:{rt*4096}"
def mf(rt, ks, transposed, acc):
    for t in range(2):
        a = XF + 16*rt + 4*ks; w = WF + 16*t + 4*ks; d = acc + 4*t
        c = "0" if ks == 0 else f"v[{d}:{d+3}]"
        if transposed: a, w = w, a
        E(f"v_mfma_f32_16x16x32_bf16 v[{d}:{d+3}], v[{a}:{a+3}], v[{w}:{w+3}], {c}")
def pack(rt, last):
    b = AC + 8*rt; h = b + 4
    for r in range(4): E(f"v_mul_f32 v{b+r}, s40, v{b+r}")
    for r in range(4): E(f"v_fma_f32 v{h+r}, v{h+r}, s42, v8")
    E(f"""
    v_cvt_pk_bf16_f32 v2, v{b}, v{b+1}
    v_cvt_pk_bf16_f32 v3, v{b+2}, v{b+3}
    v_xor_b32 v4, 0x80008000, v2
    v_xor_b32 v5, 0x80008000, v3
    v_sub_u32_sdwa v{h}, v{h}, sext(v2) dst_sel:DWORD dst_unused:UNUSED_PAD src0_sel:DWORD src1_sel:WORD_0
    v_sub_u32_sdwa v{h+1}, v{h+1}, sext(v2) dst_sel:DWORD dst_unused:UNUSED_PAD src0_sel:DWORD src1_sel:WORD_1
    v_sub_u32_sdwa v{h+2}, v{h+2}, sext(v3) dst_sel:DWORD dst_unused:UNUSED_PAD src0_sel:DWORD src1_sel:WORD_0
    v_sub_u32_sdwa v{h+3}, v{h+3}, sext(v3) dst_sel:DWORD dst_unused:UNUSED_PAD src0_sel:DWORD src1_sel:WORD_1
    """)
    for r in range(4):
        E(f"v_perm_b32 v{h+r}, v{h+r}, v{4 + (r>>1)}, s{44 + (r&1)}")
        E(f"global_store_dword v11, v{h+r}, s[20:21] offset:{256*r} sc1")
    if not last: E("v_add_u32 v11, 0x1000, v11")
E(f"""
    s_cmp_lg_u32 s{S_SAFE}, 0
    s_cbranch_scc1 L_nog1
""")
for ks in range(3):
    E(xread(0, ks)); wreads(ks)
E("s_waitcnt lgkmcnt(10)"); mf(0, 0, False, AC)
E(xread(0, 3)); wreads(3)
E("s_waitcnt lgkmcnt(10)"); mf(0, 1, False, AC)
for ks in range(4): E(xread(1, ks))
E("s_waitcnt lgkmcnt(9)"); mf(0, 2, False, AC)
E("s_waitcnt lgkmcnt(4)"); mf(0, 3, False, AC)
E("s_cmp_lg_u32 s33, 0\ns_cbranch_scc1 L_g1b")
for ks in range(4): E(xread(2, ks))
E("s_waitcnt lgkmcnt(4)")
for ks in range(4): mf(1, ks, False, AC+8)
pack(0, False)
E("s_waitcnt lgkmcnt(0)")
for ks in range(4): mf(2, ks, False, AC+16)
pack(1, False)
pack(2, True)
E(f"""
    s_mov_b64 exec, 1
    ds_add_u32 v6, v7 offset:{L_GST}
    s_mov_b64 exec, -1
L_g2x:
""")
for rt in (3, 4):
    for ks in range(4): E(xread(rt, ks))
STAMP(4)
get_tag("g", 160)
def done2(lab):
    E(f"""
    s_lshl_b32 s30, s{S_P}, 7
    s_add_u32 s30, s30, {WS_FL2}
    v_mov_b32 v160, s30
    v_mov_b32 v162, s{S_TAG}
    v_mov_b32 v163, s{S_TAG8}
    v_mov_b32 v2, 0
    v_mov_b32 v3, 1
    s_mov_b64 exec, 1
    s_waitcnt vmcnt(0)
    ds_add_rtn_u32 v161, v2, v3 offset:{L_DONE2}
    s_waitcnt lgkmcnt(0)
    v_readfirstlane_b32 s30, v161
    s_cmp_lg_u32 s30, 7
    s_cbranch_scc1 L_nofl_{lab}
    s_cmp_lg_u32 s{S_SAFE}, 0
    s_cbranch_scc1 L_nofs_{lab}
    global_store_dwordx2 v160, v[162:163], s[20:21] sc1
L_nofs_{lab}:
    ds_add_u32 v2, v3 offset:{L_DONE2}
L_nofl_{lab}:
    s_mov_b64 exec, -1
    """)
done2("g")
STAMP(5)
E(f"v_add_u32 v10, {L_WAU - L_WBV}, v10")
lds_wait(L_DONE2, 8, 8, "d2")
lds_wait(L_CTR, 0xff0000, 0x040000, "d3")
STAMP(6)
for ks in range(4): wreads(ks)
E(f"""
    s_mov_b32 s40, {f32(-LOG2E)}
    s_mov_b32 s46, 0x3f80
""")
def fin(acc, last):
    a = acc; u = acc + 4
    for r in range(4): E(f"v_mul_f32 v{a+r}, s40, v{a+r}")
    for r in range(4): E(f"v_mul_f32 v{u+r}, s42, v{u+r}")
    E(f"""
    v_cvt_pk_bf16_f32 v{a}, v{a}, v{a+1}
    v_cvt_pk_bf16_f32 v{a+1}, v{a+2}, v{a+3}
    v_cvt_f64_f32 v[2:3], v{u}
    v_cvt_f64_f32 v[4:5], v{u+1}
    v_cvt_f64_f32 v[6:7], v{u+2}
    v_cvt_f64_f32 v[8:9], v{u+3}
    ds_write_b64 v16, v[{a}:{a+1}] offset:512
    ds_write2_b64 v16, v[2:3], v[4:5] offset0:0 offset1:16
    ds_write2_b64 v16, v[6:7], v[8:9] offset0:32 offset1:48
    """)
    if not last: E(f"v_add_u32 v16, {16*NSTR}, v16")
for ks in range(4):
    E(f"s_waitcnt lgkmcnt({12 - 4*ks})"); mf(0, ks, True, AC)
for rt in range(1, 5):
    for ks in range(4): mf(rt, ks, True, AC + 8*(rt % 3))
    fin(AC + 8*((rt-1) % 3), False)
fin(AC + 8*(4 % 3), True)
main_consts()
STAMP(7)
E(f"""
    s_cmp_lg_u32 s{S_SAFE}, 0
    s_cbranch_scc1 L_b4
    s_and_b32 s32, s3, 3
    s_lshl_b32 s30, s32, 13
    s_lshl_b32 s31, s{S_HALF}, 7
    s_add_u32 s30, s30, s31
    s_add_u32 s30, s30, {WS_FL2}
    v_lshl_add_u32 v3, v1, 8, s30
    s_cmp_eq_u32 s32, 3
    s_cselect_b32 exec_lo, 0x1fffffff, -1
    s_mov_b32 exec_hi, 0
    s_mov_b32 s31, {POLL_MAX}
L_p2:
    global_load_dwordx2 v[60:61], v3, s[20:21] sc1
    s_waitcnt vmcnt(0)
    v_cmp_ne_u32 vcc, s{S_TAG}, v60
    v_cmp_ne_u32 s[48:49], s{S_TAG8}, v61
    s_sub_u32 s31, s31, 1
    s_cbranch_scc1 L_p2d
    s_or_b64 exec, vcc, s[48:49]
    s_cbranch_scc1 L_p2
L_p2d:
    s_mov_b64 exec, -1
""")
if OPT["gpf"]:
    E(f"""
    s_mul_i32 s30, s32, {2560*256}
    s_lshr_b32 s31, s2, 3
    s_mul_i32 s31, s31, {160*128}
    s_add_u32 s30, s30, s31
    v_lshl_add_u32 v3, v1, 7, s30
    v_min_u32 v3, {G_HALF - 128 - 8192}, v3
    s_mul_i32 s30, s{S_HALF}, {G_HALF}
    v_add_u32 v3, s30, v3
    v_add_u32 v2, 8192, v3
    {"s_bfm_b64 exec, %d, 0" % OPT["gpf"] if OPT["gpf"] < 64 else ""}
    global_load_dword v21, v3, s[20:21] sc1
    {"s_bfm_b64 exec, %d, 0" % (OPT["gpf"]-64) if 64 < OPT["gpf"] < 128 else ""}
    {"global_load_dword v29, v2, s[20:21] sc1" if OPT["gpf"] > 64 else ""}
    s_mov_b64 exec, -1
    """)
E(f"""
    s_branch L_b4
L_nog1:
    s_cmp_lg_u32 s33, 0
    s_cbranch_scc1 L_g1c
""")
for rt in range(3):
    for ks in range(4): E(xread(rt, ks))
E(f"""
    s_branch L_g2x
L_g1b:
    s_waitcnt lgkmcnt(0)
""")
for ks in range(4): mf(1, ks, False, AC+8)
E("s_sub_u32 s29, s3, 4")
rec_setup()
pack(0, False)
pack(1, True)
E(f"""
    s_mov_b64 exec, 1
    ds_add_u32 v6, v7 offset:{L_GST}
    s_mov_b64 exec, -1
L_g1c:
""")
STAMP(4)
get_tag("w", 160)
E(f"""
    s_branch L_rec
L_sort:
""")
STAMP(1)
E(f"""
    s_cmp_lg_u32 s{S_SAFE}, 0
    s_cbranch_scc1 L_sortskip
    v_mov_b32 v21, 1
    s_mov_b32 s31, 52429
    s_movk_i32 s32, -20
    v_lshlrev_b32 v9, 3, v1
    v_lshlrev_b32 v33, 4, v0
    s_mul_i32 s30, s{S_P}, {SORTB}
    s_add_u32 s30, s30, {WS_REC + 4096}
    v_add_u32 v32, s30, v33
    v_add_u32 v34, 8192, v32
    v_add_u32 v35, 16384, v32
    s_lshl_b32 s30, s{S_P}, 10
    s_add_u32 s30, s30, {WS_ROW}
    v_lshl_add_u32 v42, v1, 4, s30
    s_mov_b32 s34, {POLL_MAX}
    s_setprio 3
    s_waitcnt vmcnt(6)
""")
STAMP(2)
FSTAMP(1)
for i in range(5):
    E(f"""
    v_mul_u32_u24 v{22+i}, s31, v{4+i}
    v_lshrrev_b32 v{22+i}, 22, v{22+i}
    v_lshlrev_b32 v{22+i}, 2, v{22+i}        ; bucket*4
    ds_add_rtn_u32 v{27+i}, v{22+i}, v21 offset:{L_SCNT}
    """)
E(f"""
    s_mov_b64 exec, 1
    s_cmp_lg_u32 s3, 0
    s_cbranch_scc1 L_notag
    s_waitcnt vmcnt(5)
    ds_write_b32 v48, v43 offset:{L_SCNT + 125*4}
L_notag:
    ds_add_u32 v48, v21 offset:{L_SCNT + 127*4}
    s_mov_b64 exec, -1
L_s1:
    ds_read_b32 v38, v48 offset:{L_SCNT + 127*4}
    ds_read_b64 v[36:37], v9 offset:{L_SCNT}
    s_sub_u32 s34, s34, 1
    s_cbranch_scc1 L_s1d
    s_waitcnt lgkmcnt(0)
    v_readfirstlane_b32 s30, v38
    s_cmp_lg_u32 s30, 4
    s_cbranch_scc1 L_s1
L_s1d:
""")
FSTAMP(2)
E(f"""
    v_add_u32 v39, v36, v37
    v_add_u32 v38, v36, v37
    v_readlane_b32 s{S_TAGRAW}, v37, 62
""")
fill = []
for i in range(5):
    fill += [f"v_mad_i32_i24 v{4+i}, v{22+i}, s32, v{4+i}", f"v_lshlrev_b32 v{4+i}, 24, v{4+i}"]
for k, m in enumerate(SCAN):
    E(f"v_add_u32_dpp v39, v39, v39 {m}")
    for x in fill[2*k:2*k+2]: E(x)
E(f"""
    v_sub_u32 v40, v39, v38
    v_add_u32 v41, v40, v36
    ds_write_b64 v9, v[40:41] offset:{L_SOFF}
""")
for i in range(5):
    E(f"ds_read_b32 v{22+i}, v{22+i} offset:{L_SOFF}")
finish_tag()
E(f"""
    s_cmp_lg_u32 s3, 0
    s_cbranch_scc1 L_nopub
    s_lshl_b32 s35, s{S_TAG8}, 24
    v_mov_b32 v45, s{S_TAG}
    v_mov_b32 v47, s{S_TAG}
    v_lshl_or_b32 v44, v36, 12, v40
    v_lshl_or_b32 v46, v37, 12, v41
    v_or_b32 v44, s35, v44
    v_or_b32 v46, s35, v46
    global_store_dwordx4 v42, v[44:47], s[20:21] sc1
    s_waitcnt vmcnt(1)
    s_branch L_pub
L_nopub:
    s_waitcnt vmcnt(0)
L_pub:
""")
STAMP(4)
FSTAMP(3)
E("""
    v_mov_b64 v[56:57], v[54:55]
    v_mov_b64 v[64:65], v[62:63]
    s_waitcnt lgkmcnt(0)
""")
for i in range(5):
    E(f"""
    v_lshl_or_b32 v{54+4*i}, v{12+i}, 8, v{4+i}
    v_mov_b32 v{55+4*i}, s{S_TAG}
    v_add_lshl_u32 v{22+i}, v{22+i}, v{27+i}, 4
    ds_write_b128 v{22+i}, v[{52+4*i}:{55+4*i}] offset:{L_SORT}
    """)
E(f"""
    s_mov_b64 exec, 1
    ds_add_u32 v48, v21 offset:{L_SCNT + 126*4}
    s_mov_b64 exec, -1
""")
FSTAMP(4)
E(f"""
L_s2:
    ds_read_b32 v38, v48 offset:{L_SCNT + 126*4}
    ds_read_b128 v[72:75], v33 offset:{L_SORT}
    s_sub_u32 s34, s34, 1
    s_cbranch_scc1 L_s2d
    s_waitcnt lgkmcnt(1)
    v_readfirstlane_b32 s30, v38
    s_cmp_lg_u32 s30, 4
    s_cbranch_scc1 L_s2
L_s2d:
""")
FSTAMP(5)
for k in range(1, 5): E(f"ds_read_b128 v[{72+4*k}:{75+4*k}], v33 offset:{L_SORT + 4096*k}")
for k in range(5):
    E(f"s_waitcnt lgkmcnt({4-k})")
    E(f"global_store_dwordx4 v{(32,32,34,34,35)[k]}, v[{72+4*k}:{75+4*k}], s[20:21] offset:{0 if k & 1 else -4096} sc1")
FSTAMP(6)
for k in range(5): E(f"ds_write_b128 v33, v[48:51] offset:{L_SORT + 4096*k}")
STAMP(3)
FSTAMP(7)
RA = 72; RB = RA + 4*NP; RAD = RB + 4*NP
E(f"""
    s_branch L_sortdone
L_sortskip:
    s_waitcnt vmcnt(0)
L_sortdone:
    v_mov_b32 v21, 0x100
    s_mov_b64 exec, 1
    ds_add_u32 v48, v21 offset:{L_CTR}
    s_mov_b64 exec, -1
    v_lshrrev_b32 v5, 3, v1
    v_bfe_u32 v3, v1, 4, 1
    v_lshlrev_b32 v3, 1, v3
    v_and_b32 v20, 7, v1
    v_xor_b32 v3, v3, v20
    v_lshlrev_b32 v3, 4, v3
    v_lshl_add_u32 v10, v5, 8, v3
    s_lshl_b32 s30, s{S_HALF}, 7
    s_and_b32 s31, s3, 1
    s_lshl_b32 s31, s31, 14
    s_add_u32 s30, s30, s31
    v_add_u32 v10, s30, v10
    v_xor_b32 v11, 64, v10
    v_add_u32 v12, 2048, v10
    v_add_u32 v13, 3072, v11
    v_add_u32 v11, 1024, v11
    s_lshl_b32 s30, s3, 13
    s_add_u32 m0, s30, {L_WAU}
    s_cmp_lt_u32 s3, 2
    s_cselect_b32 s34, s16, s12
    s_cselect_b32 s35, s17, s13
    global_load_lds_dwordx4 v10, s[34:35]
    global_load_lds_dwordx4 v11, s[34:35] offset:1024
    global_load_lds_dwordx4 v12, s[34:35] offset:2048
    global_load_lds_dwordx4 v13, s[34:35] offset:3072
    s_add_u32 m0, m0, 4096
    s_add_u32 s34, s34, 8192
    s_addc_u32 s35, s35, 0
    global_load_lds_dwordx4 v10, s[34:35]
    global_load_lds_dwordx4 v11, s[34:35] offset:1024
    global_load_lds_dwordx4 v12, s[34:35] offset:2048
    global_load_lds_dwordx4 v13, s[34:35] offset:3072
    s_mov_b32 s29, s3
""")
rec_setup()
E(f"""
L_rec:
    s_mov_b32 s40, {f32(-LOG2E)}
    s_mov_b32 s46, 0x3f80
""")
lds_wait(L_CTR, 0xff, 8, "r0")
main_consts()
STAMP(5)
E("s_cmp_lt_u32 s3, 4\ns_cbranch_scc1 L_nod2")
done2("w")
E(f"""
    s_branch L_nod3
L_nod2:
    v_mov_b32 v2, 0
    v_mov_b32 v3, 0x10000
    s_mov_b64 exec, 1
    s_waitcnt vmcnt(0)
    ds_add_u32 v2, v3 offset:{L_CTR}
    s_mov_b64 exec, -1
L_nod3:
    s_cmp_lg_u32 s{S_SAFE}, 0
    s_cbranch_scc1 L_recskip
    s_mov_b64 exec, s[66:67]
    s_mov_b32 s34, {POLL_MAX}
    s_branch L_p1c
L_p1:
    global_load_dwordx2 v[154:155], v150, s[20:21] sc1
L_p1c:
    s_waitcnt vmcnt(0)
    v_cmp_ne_u32 vcc, s{S_TAG}, v155
    v_cmp_ne_u32_sdwa s[48:49], v154, s{S_TAG8} src0_sel:BYTE_3 src1_sel:DWORD
    s_sub_u32 s34, s34, 1
    s_cbranch_scc1 L_p1d
    s_or_b64 exec, vcc, s[48:49]
    s_cbranch_scc1 L_p1
L_p1d:
    s_mov_b64 exec, -1
""")
STAMP(6)
if OPT["cnt"]: E(f"s_sub_u32 s{ST0+2}, {POLL_MAX+1}, s34\ns_mov_b32 s34, {POLL_MAX}")
E(f"""
    v_and_b32 v155, 0xfff, v154
    v_bfe_u32 v154, v154, 12, 12              ; count
    v_add_lshl_u32 v155, v155, v149, 4
    v_cmp_lt_u32 vcc, 32, v154
    v_cmp_lt_u32 s[68:69], 16, v154
    s_cbranch_vccnz L_toobig
""")
for p in range(NP):
    E(f"""
    v_add_co_u32_dpp v2, vcc, v154, v151 row_newbcast:{p} row_mask:0xf bank_mask:0xf
    v_add_u32_dpp v{RAD+p}, v155, v152 row_newbcast:{p} row_mask:0xf bank_mask:0xf
    s_mov_b64 s[{48+2*p}:{49+2*p}], vcc
    """)
if OPT["gate"]:
    E(f"""
    s_cmp_lt_u32 s3, 4
    s_cselect_b32 s28, {L_GST}, 0
    s_cselect_b32 s29, 0, {L_DONE2}
    s_cselect_b32 s32, 8, 9
    s_add_u32 s28, s28, s29
    v_mov_b32 v2, s28
    s_mov_b32 s31, {POLL_MAX}
L_gate:
    ds_read_b32 v3, v2
    s_sub_u32 s31, s31, 1
    s_cbranch_scc1 L_gated
    s_waitcnt lgkmcnt(0)
    v_readfirstlane_b32 s30, v3
    s_cmp_lg_u32 s30, s32
    s_cbranch_scc1 L_gate
L_gated:
    """)
E(f"""
    s_or_b32 s68, s68, s69
    s_lshr_b32 s69, s68, 16
    s_or_b32 s68, s68, s69
    s_cbranch_scc0 L_noex
""")
for p in range(NP):
    r = RB + 4*p
    E(f"""
    s_bitcmp1_b32 s68, {p}
    s_cbranch_scc0 L_nx{p}
    v_add_co_u32_dpp v2, vcc, v154, v153 row_newbcast:{p} row_mask:0xf bank_mask:0xf
    s_mov_b64 exec, vcc
    global_load_dwordx4 v[{r}:{r+3}], v{RAD+p}, s[20:21] offset:256 sc1
    s_mov_b64 exec, -1
L_nx{p}:
    """)
E("L_noex:")
for p in range(NP):
    r = RA + 4*p
    E(f"""
    s_mov_b64 exec, s[{48+2*p}:{49+2*p}]
    global_load_dwordx4 v[{r}:{r+3}], v{RAD+p}, s[20:21] sc1
    """)
E("s_mov_b64 exec, -1")
STAMP(7)
lds_wait(L_CTR, 0xffff, 0x0408, "r1")
retries = []
def rank(r, m, ad, off, tag):
    E(f"""
    s_mov_b64 exec, {m}
    v_cmp_ne_u32 vcc, s{S_TAG}, v{r+3}
    s_cbranch_vccnz L_rt{tag}
L_rr{tag}:
    v_mul_u32_u24_sdwa v{r+3}, v156, v{r+2} dst_sel:DWORD dst_unused:UNUSED_PAD src0_sel:DWORD src1_sel:BYTE_3
    v_and_b32 v{r+2}, {OPT['srcmask']}, v{r+2}
    ds_add_rtn_u32 v{r+3}, v{r+3}, v156 offset:{L_CNT}
    """)
    retries.append(f"""
L_rt{tag}:
    s_mov_b64 exec, vcc
    global_load_dwordx4 v[{r}:{r+3}], v{ad}, s[20:21] offset:{off} sc1
    s_sub_u32 s34, s34, 1
    s_cbranch_scc1 L_toobig
    s_waitcnt vmcnt(0)
    v_cmp_ne_u32 vcc, s{S_TAG}, v{r+3}
    s_cbranch_vccnz L_rt{tag}
    s_mov_b64 exec, {m}
    s_branch L_rr{tag}
    """)
def put(r, m):
    E(f"""
    s_mov_b64 exec, {m}
    v_lshlrev_b32 v2, 1, v{r+3}
    ds_write_b32 v{r+3}, v{r+2}
    ds_write_b64 v2, v[{r}:{r+1}] offset:{L_EA - 2*L_SRC}
    """)
E(f"""
    s_cmp_eq_u32 s68, 0
    s_cbranch_scc1 L_noey
    s_waitcnt vmcnt({NP})
""")
for p in range(NP):
    r = RB + 4*p
    E(f"""
    s_bitcmp1_b32 s68, {p}
    s_cbranch_scc0 L_ny{p}
    v_add_co_u32_dpp v2, vcc, v154, v153 row_newbcast:{p} row_mask:0xf bank_mask:0xf
    s_mov_b64 s[64:65], vcc
    """)
    rank(r, "s[64:65]", RAD+p, 256, f"b{p}")
    E("s_waitcnt lgkmcnt(0)")
    put(r, "s[64:65]")
    E(f"s_mov_b64 exec, -1\nL_ny{p}:")
E("L_noey:")
LAG = 2
for p in range(NP + LAG):
    if p < NP:
        E(f"s_waitcnt vmcnt({NP-1-p})")
        rank(RA + 4*p, f"s[{48+2*p}:{49+2*p}]", RAD+p, 0, f"a{p}")
    q = p - LAG
    if q >= 0:
        younger = 0
        for j in range(q+1, min(p, NP-1)+1): younger += 1
        for j in range(max(0, q-LAG), q): younger += 2
        E(f"s_waitcnt lgkmcnt({younger})")
        put(RA + 4*q, f"s[{48+2*q}:{49+2*q}]")
E(f"""
    s_mov_b64 exec, -1
    {f"s_sub_u32 s{ST0+4}, {POLL_MAX+1}, s34" if OPT["cnt"] else ""}
    s_branch L_b4
L_toobig:
    s_mov_b64 exec, -1
    v_mov_b32 v2, 0
    ds_write_b32 v2, v156 offset:{L_FLAG}
L_recskip:
    s_waitcnt vmcnt(0)
L_b4:
    s_setprio 0
    s_mul_i32 s30, s{S_HALF}, {G_HALF}
    s_add_u32 s36, s20, s30
    s_addc_u32 s37, s21, 0
    s_mov_b32 s38, {OPT['nrec'] or G_HALF}
    s_mov_b32 s39, 0x20000
    s_mov_b32 s44, {2*LSTR}
    s_mov_b32 s45, {2*LSTR}
    ds_read_b64 v[60:61], v{LP}
    ds_read_b32 v62, v{LP+1}
    ds_read_b32 v63, v{LP} offset:{LSTR}
    ds_read_b32 v{WN}, v{LP} offset:{LSTR + 4}
    ds_read_b32 v{WE}, v{LP+1} offset:{LSTR}
    ds_read_b32 v{WS_}, v{LP} offset:{2*LSTR}
    s_waitcnt lgkmcnt(0)
    v_add_u32 v{AG}, v61, v{LN8}
    v_lshl_add_u32 v62, v62, 1, v{EAC}
""")
if OPT["warm"]:
    E(f"""
    s_barrier
    s_lshr_b32 s30, s2, 3
    s_mul_i32 s30, s30, 98304
    v_lshl_add_u32 v2, v0, 7, s30
    buffer_load_dword v3, v2, s[36:39], 0 offen sc1
    s_waitcnt vmcnt(0)
    s_sleep 40
    """)
STAMP(8)
E(f"""
    s_barrier                               ; B4
    s_cmp_lg_u32 s{S_SAFE}, 0
    s_cbranch_scc1 L_safe
    ds_read_b128 v[{OFS}:{OFS+3}], v60
    ds_read_b128 v[{OFS+4}:{OFS+7}], v60 offset:16
    ds_read_b128 v[{T}:{T+3}], v63
    ds_read_b128 v[{T+4}:{T+7}], v63 offset:16
    ds_read_b64 v[{XA}:{XA+1}], v{AG} offset:512
    ds_read_b64 v[{EA}:{EA+1}], v62
    s_cmp_lg_u32 s3, {NW-1}
    s_cbranch_scc1 L_nobuild
    v_lshlrev_b32 v2, 3, v1
    v_mov_b32 v3, 0
    ds_read_b64 v[64:65], v2 offset:{L_CNT}
    ds_read_b32 v71, v3 offset:{L_FLAG}
    v_mul_u32_u24 v66, {2*SSTR}, v1
    v_add_u32 v66, {L_SRC + 96}, v66
    v_add_u32 v68, {SSTR}, v66
    v_mul_u32_u24 v67, {2*NSTR}, v1
    v_add_u32 v67, {L_NODE}, v67
    v_add_u32 v69, {NSTR}, v67
    s_waitcnt lgkmcnt(0)
    v_sub_u32 v64, v64, v66 clamp
    v_sub_u32 v65, v65, v68 clamp
    v_max_u32 v70, v64, v65
    v_cmp_lt_u32 vcc, 160, v70
    v_cmp_ne_u32 s[48:49], 0, v71
    v_add_u32 v64, 31, v64
    v_add_u32 v65, 31, v65
    s_or_b64 vcc, vcc, s[48:49]
    s_cbranch_scc1 L_bad
    v_lshrrev_b32 v64, 5, v64
    v_lshrrev_b32 v65, 5, v65
    v_add_u32 v70, v64, v65
    v_add_u32 v71, v64, v65
""")
scan(71)
E(f"""
    v_sub_u32 v70, v71, v70
    v_lshlrev_b32 v70, 3, v70
    v_readlane_b32 s30, v71, 63
    v_lshl_add_u32 v71, v64, 3, v70
""")
for b in range(5):
    E(f"""
    v_cmp_lt_u32 vcc, {b}, v64
    v_cmp_lt_u32 s[48:49], {b}, v65
    s_mov_b64 exec, vcc
    ds_write_b64 v70, v[66:67] offset:{L_LIST + 8*NSTATIC + 8*b}
    s_mov_b64 exec, s[48:49]
    ds_write_b64 v71, v[68:69] offset:{L_LIST + 8*NSTATIC + 8*b}
    s_mov_b64 exec, -1
    """)
    if b < 4: E("v_add_u32 v66, 32, v66\nv_add_u32 v68, 32, v68")
E(f"""
    s_add_u32 s30, s30, {NSTATIC + 3}
    s_lshr_b32 s30, s30, 2
    s_branch L_built
L_bad:
    s_mov_b32 s30, -1
L_built:
    v_mov_b32 v2, s30
    ds_write_b32 v3, v2 offset:{L_NST}
    s_cmp_lg_u32 s{S_P}, 0
    s_cbranch_scc1 L_nobuild
    v_mov_b32 v2, s{S_TAG}
    v_mov_b32 v3, {WS_TAG}
    s_mov_b64 exec, 1
    global_store_dword v3, v2, s[20:21]
    s_mov_b64 exec, -1
L_nobuild:
    s_waitcnt lgkmcnt(0)
""")
for i, o in enumerate((OFS, OFS+4, T, T+4)):
    E(oadd(o)); E(oadd(o+2))
    if not OPT["nogather"]:
        for q in range(4): E(gload(G + 16*i + 4*q, o+q))
STAMP(9)
E(m_a(D0)); E(m_e(D0, 0))
E(f"""
    v_mov_b32 v2, 0
    s_mov_b32 s31, {POLL_MAX}
    s_waitcnt vmcnt(12)
""")
E(m_s(D0, A1, G)); E(m_s(D0, A2, G+8))
E(f"""
L_wn:
    ds_read_b32 v3, v2 offset:{L_NST}
    s_waitcnt lgkmcnt(0)
    v_readfirstlane_b32 s{S_N}, v3
    s_sub_u32 s31, s31, 1
    s_cmp_eq_u32 s31, 0
    s_cbranch_scc1 L_wnd
    s_cmp_eq_u32 s{S_N}, 0
    s_cbranch_scc1 L_wn
L_wnd:
    s_cmp_gt_u32 s{S_N}, {0 if OPT["force_safe"] else 160}
    s_cbranch_scc1 L_gosafe
    s_add_u32 s{S_K}, s3, {2*NW}
    s_add_u32 s28, s{S_N}, {2*NW}
    s_mov_b32 s{S_IT}, 0
    s_nop 3
""")
if OPT["prio"]: E("s_setprio 3")
STAMP(10)
if OPT["stamps"]: E(f"s_memtime s[{ST0+24}:{ST0+25}]\ns_waitcnt lgkmcnt(0)")
E("L_A:")
body(0, True)
E(f"s_cmp_ge_u32 s{S_K}, s{S_N}\ns_cbranch_scc1 L_Bt")
body(1, True)
if OPT["prio"]:
    E(f"""
    s_add_u32 s{S_IT}, s{S_IT}, 1
    s_setprio 0
    s_cmp_gt_u32 s{S_IT}, 2
    s_cbranch_scc1 L_pr
    s_setprio 1
    s_cmp_eq_u32 s{S_IT}, 2
    s_cbranch_scc1 L_pr
    s_setprio 2
L_pr:
    """)
E(f"s_cmp_lt_u32 s{S_K}, s{S_N}\ns_cbranch_scc1 L_A")
E("L_At:")
body(0, False)
E(f"s_cmp_ge_u32 s{S_K}, s28\ns_cbranch_scc1 L_mdone")
E("L_Bt:")
body(1, False)
if OPT["prio"]: E("s_setprio 0")
E(f"s_cmp_lt_u32 s{S_K}, s28\ns_cbranch_scc1 L_At")
E(f"""
L_mdone:
    s_waitcnt lgkmcnt(0)
""")
STAMP(11)
if OPT["stamps"]:
    E(f"s_memtime s[28:29]\ns_waitcnt lgkmcnt(0)\ns_sub_u32 s{ST0+24}, s28, s{ST0+24}")
E(f"""
    v_lshrrev_b32 v2, 5, v0
    v_and_b32 v3, 31, v0
    v_mul_u32_u24 v4, {NSTR}, v2
    v_and_b32 v5, 1, v3
    v_lshl_add_u32 v4, v5, 8, v4
    v_lshrrev_b32 v5, 1, v3
    v_lshl_add_u32 v4, v5, 3, v4
    v_add_u32 v4, {L_NODE}, v4
    s_mul_i32 s30, s{S_BUCK}, {NB*256}
    s_lshl_b32 s31, s{S_HALF}, 7
    s_add_u32 s30, s30, s31
    v_lshlrev_b32 v3, 2, v3
    v_lshl_add_u32 v5, v2, 8, v3
    v_add_u32 v5, s30, v5
    v_add_u32 v6, {24*256}, v5
    v_add_u32 v7, {48*256}, v5
    v_add_u32 v8, {72*256}, v5
    s_mov_b32 s32, {f32(2.0**-32)}
    s_mov_b32 s34, {f32(-LOG2E * 2.0**-32)}
    v_mov_b32 v9, 0x207
    s_barrier                               ; B5
""")
OSC = {0: "", 1: " sc1", 2: " nt"}[OPT["osc"]]
def epi(us):
    for u in us: E(f"ds_read_b64 v[{12+4*u}:{13+4*u}], v4 offset:{24*NSTR*u}\nds_read_b64 v[{14+4*u}:{15+4*u}], v4 offset:{24*NSTR*u + 128}")
    E("s_waitcnt lgkmcnt(0)")
    for u in us: E(f"v_cvt_f32_f64 v{28+2*u}, v[{12+4*u}:{13+4*u}]\nv_cvt_f32_f64 v{29+2*u}, v[{14+4*u}:{15+4*u}]")
    for u in us: E(f"v_pk_mul_f32 v[{36+2*u}:{37+2*u}], v[{28+2*u}:{29+2*u}], s[34:35] op_sel_hi:[1,0]")
    for u in us: E(f"v_exp_f32 v{36+2*u}, v{36+2*u}\nv_exp_f32 v{37+2*u}, v{37+2*u}")
    for u in us: E(f"v_pk_mul_f32 v[{28+2*u}:{29+2*u}], v[{28+2*u}:{29+2*u}], s[32:33] op_sel_hi:[1,0]")
    for u in us: E(f"v_pk_add_f32 v[{36+2*u}:{37+2*u}], v[{36+2*u}:{37+2*u}], 1.0 op_sel_hi:[1,0]")
    for u in us: E(f"v_rcp_f32 v{36+2*u}, v{36+2*u}\nv_rcp_f32 v{37+2*u}, v{37+2*u}")
    E("v_pk_add_f32 v[10:11], v[28:29], v[30:31]")
    for u in us: E(f"v_pk_mul_f32 v[{36+2*u}:{37+2*u}], v[{28+2*u}:{29+2*u}], v[{36+2*u}:{37+2*u}]")
    for u in us: E(f"v_cvt_pk_bf16_f32 v{44+u}, v{36+2*u}, v{37+2*u}\nglobal_store_dword v{5+u}, v{44+u}, s[18:19]{OSC}")
    for u in us[2:]: E(f"v_pk_add_f32 v[10:11], v[10:11], v[{28+2*u}:{29+2*u}]")
E("s_cmp_ge_u32 s3, 4\ns_cbranch_scc1 L_e3")
epi([0, 1, 2, 3])
E("s_branch L_e4\nL_e3:")
epi([0, 1, 2])
E(f"""
L_e4:
    v_add_f32 v10, v10, v11
    v_cmp_class_f32 vcc, v10, v9
    v_mov_b32 v2, 0
    s_cmp_lg_u32 s{S_SAFE}, 0
    s_cbranch_scc1 L_fin
    {"s_branch" if OPT["nosafe"] else "s_cbranch_vccz"} L_e5
    ds_write_b32 v2, v9 offset:{L_FLAG}
    s_waitcnt lgkmcnt(0)
L_e5:
    s_barrier                               ; B6
    ds_read_b32 v2, v2 offset:{L_FLAG}
    s_waitcnt lgkmcnt(0)
    v_readfirstlane_b32 s30, v2
    s_cmp_lg_u32 s30, 0
    s_cbranch_scc1 L_gosafe
L_fin:
""")
if OPT["stamps"]:
    E("s_waitcnt vmcnt(0)"); STAMP(13); STAMP_OUT()
if OPT["probe"] >= 0:
    T_ = ST0 + 2*OPT["probe"]
    E(f"""
    s_cmp_lg_u32 s3, {OPT["pw"]}
    s_cbranch_scc1 L_end
    s_cmp_lg_u32 s2, {OPT["pg"] if OPT["pg"] >= 0 else "s2"}
    s_cbranch_scc1 L_end
    s_sub_u32 s30, s{T_}, s{ST0}
    s_lshl_b32 s30, s30, 2
    s_add_u32 s30, s30, 3000
    s_min_u32 s30, s30, 20000
L_spin:
    s_memrealtime s[28:29]
    s_waitcnt lgkmcnt(0)
    s_sub_u32 s28, s28, s{ST0}
    s_cmp_lt_u32 s28, s30
    s_cbranch_scc1 L_spin
    """)
E(f"""
L_end:
    s_endpgm
L_gosafe:
    s_mov_b32 s{S_SAFE}, 8
    s_setprio 0
    s_waitcnt vmcnt(0) lgkmcnt(0)
    s_barrier
    s_branch L_restart
""")
for r in retries: E(r)
E(f"""
L_safe:
    v_and_b32 v2, 15, v1
    v_lshlrev_b32 v3, 3, v2
    v_add_u32 v3, {L_C}, v3
""")
for k in range(4):
    for s in range(4):
        E(f"ds_read_u16 v{80+4*k+s}, v3 offset:{128*k + 2*s}")
E("s_waitcnt lgkmcnt(0)")
for i in range(16):
    E(f"v_lshlrev_b32 v{80+i}, 16, v{80+i}\nv_mul_f32 v{80+i}, s40, v{80+i}")
E(f"""
    v_lshrrev_b32 v24, 4, v1
    s_movk_i32 s33, {NSTR}
    v_add_u32 v25, {L_NODE}, v{LN8}
    s_mov_b32 s34, s3
L_scell:
    s_lshl_b32 s30, s34, 10
    s_lshl_b32 s31, s{S_BUCK}, 3
    s_add_u32 s30, s30, s31
    s_add_u32 s30, s30, {WS_ROW}
    v_mov_b32 v26, s30
    global_load_dword v27, v26, s[20:21] sc1
    s_mul_i32 s30, s34, {CHUNK}
    s_add_u32 s30, s30, {WS_REC//16}
    s_waitcnt vmcnt(0)
    v_bfe_u32 v28, v27, 12, 12              ; count
    v_and_b32 v27, 0xfff, v27
    v_add_u32 v27, s30, v27
    v_mov_b32 v29, v24
L_srec:
    v_cmp_gt_u32 vcc, v28, v29
    s_and_saveexec_b64 s[48:49], vcc
    s_cbranch_execz L_snext
    v_add_lshl_u32 v30, v27, v29, 4
    s_mov_b32 s31, {POLL_MAX}
L_sget:
    global_load_dwordx4 v[32:35], v30, s[20:21] sc1
    s_sub_u32 s31, s31, 1
    s_cbranch_scc1 L_snext
    s_waitcnt vmcnt(0)
    v_cmp_ne_u32 vcc, s{S_TAG}, v35
    s_cbranch_vccnz L_sget
    v_and_b32 v30, 0x3fff00, v34
    v_add_u32 v30, v30, v{LN16}
    buffer_load_dwordx4 v[36:39], v30, s[36:39], 0 offen sc1
    v_lshrrev_b32 v31, 24, v34
    v_mad_u32_u24 v31, v31, s33, v25
    ds_read_b64 v[40:41], v31 offset:512
    v_lshlrev_b32 v44, 16, v32
    v_and_b32 v45, 0xffff0000, v32
    v_lshlrev_b32 v46, 16, v33
    v_and_b32 v47, 0xffff0000, v33
    s_waitcnt vmcnt(0) lgkmcnt(0)
    v_lshlrev_b32 v48, 16, v40
    v_and_b32 v49, 0xffff0000, v40
    v_lshlrev_b32 v50, 16, v41
    v_and_b32 v51, 0xffff0000, v41
""")
for s in range(4):
    E(f"v_lshlrev_b32 v52, 16, v{36+s}\nv_add_f32 v{48+s}, v{48+s}, v52")
    for k in range(4):
        E(f"v_fmac_f32 v{48+s}, v{44+k}, v{80+4*k+s}")
for s in range(4): E(f"v_exp_f32 v{48+s}, v{48+s}")
E("s_nop 0")
for s in range(4): E(f"v_add_f32 v{48+s}, 1.0, v{48+s}")
for s in range(4): E(f"v_rcp_f32 v{48+s}, v{48+s}")
E("s_nop 0")
for s in range(4): E(f"v_mul_f32 v{48+s}, v{48+s}, v{36+s}")
for s in range(4): E(f"v_cvt_f64_f32 v[{54+2*s}:{55+2*s}], v{48+s}")
for s in range(4): E(f"ds_add_f64 v31, v[{54+2*s}:{55+2*s}] offset:{128*s}")
E(f"""
    s_mov_b64 exec, s[48:49]
    v_add_u32 v29, 4, v29
    s_branch L_srec
L_snext:
    s_mov_b64 exec, s[48:49]
    s_add_u32 s34, s34, {NW}
    s_cmp_lt_u32 s34, {NCHUNK}
    s_cbranch_scc1 L_scell
    s_branch L_mdone
L_codeend:
.section .rodata,"a"
.p2align 6
.amdhsa_kernel {NAME}
.amdhsa_next_free_vgpr 168
.amdhsa_next_free_sgpr 102
.amdhsa_accum_offset 168
.amdhsa_group_segment_fixed_size 0
.amdhsa_kernarg_size 80
.amdhsa_user_sgpr_count 2
.amdhsa_user_sgpr_kernarg_segment_ptr 1
.amdhsa_system_sgpr_workgroup_id_x 1
.end_amdhsa_kernel
""")
if OPT["nochain"]:
    i0 = out.index("L_A:"); i1 = out.index("L_mdone:")
    out = out[:i0] + [l for l in out[i0:i1] if not any(x in l for x in ("v_exp", "v_pk_", "mfma", "v_rcp", "v_cvt"))] + out[i1:]
open(sys.argv[1], "w").write("\n".join(out) + "\n")
```

```python
import sys, struct

OPT = dict(stamps=0, force_safe=0, nogather=0, nosafe=0, prio=1, gsc1=1, osc=0, spin=0, codepf=1, srcmask=0x3fff00, nrec=0, warm=0, nochain=0, probe=-1, pw=-1, pg=-1, gpf=0, gate=1, aulate=0, early=0, cnt=0, rsc1=1, rdelay=0, p2sleep=0, touch=0)
for a in sys.argv[2:]:
    k, v = a.split("=")
    assert k in OPT, k
    OPT[k] = int(v, 0)

out = []
def E(s=""):
    for line in s.split("\n"):
        line = line.strip()
        if not line:
            continue
        if line.endswith(":") or line.startswith(".") or line.startswith(";"):
            out.append(line)
        else:
            out.append("    " + line)

def f32(x):
    return "0x%08x" % struct.unpack("<I", struct.pack("<f", x))[0]

NAME = "standalone__edge_featured_mpnn_egc__graph_kernel"
LOG2E = 1.4426950408889634
NB = 80; NBUCK = 125; CHUNK = 1280; NCHUNK = 250
NW = 12
G_HALF = 10000 * 256
WS_REC = 0x500000
WS_ROW = 0xa00000
WS_FL2 = 0xa80000
WS_TAG = 0xac0000
SORTB = CHUNK * 16
WS_STAMP = 0x1000000
L_CNT = 0; L_SOFF = 512
L_SCNT = 1024
L_CTR = 1536; L_RD1 = 1540; L_DONE2 = 1544; L_FLAG = 1548; L_NST = 1552; L_GST = 1556
L_LIST = 2048
SSTR = 272
L_SRC = 7936
L_EA = L_SRC + 81 * SSTR
L_EAEND = L_EA + 81 * 2 * SSTR
L_SORT = L_EA
L_WBV = 74240; L_X = L_WBV + 32768; L_WAU = L_X + 20480; L_C = L_WAU + 32768; L_DUM = L_C + 1024
LDS = L_DUM + 1024
L_NODE = L_WBV; NSTR = 648
assert L_EAEND <= L_WBV and L_NODE + 80 * NSTR <= L_WAU and LDS <= 163840 and L_EA % 16 == 0
NULL_SRC = 0x7fffff00
NSTATIC = 240
LSTR = NW * 32
POLL_MAX = 200000
SC1 = " sc1"

S_HALF, S_BUCK, S_P = 22, 23, 24
S_TAG, S_TAG8, S_SAFE = 25, 26, 27
S_N, S_K, S_IT = 70, 71, 72
S_TAGRAW = 47
ST0 = 74

def ESTAMP(i):
    if OPT["early"] == 1 or (OPT["early"] and i == 0): E(f"s_memrealtime s[{ST0+2*i}:{ST0+2*i+1}]")
def FSTAMP(i):
    if OPT["early"] == 2: E(f"s_memrealtime s[{ST0+2*i}:{ST0+2*i+1}]\ns_waitcnt lgkmcnt(0)")
def STAMP(i):
    if OPT["early"] and 1 <= i <= 7: return
    if OPT["early"] and i == 0: return ESTAMP(0)
    if OPT["stamps"] or (OPT["probe"] >= 0 and i == OPT["probe"]):
        E(f"s_memrealtime s[{ST0+2*i}:{ST0+2*i+1}]\ns_waitcnt lgkmcnt(0)")
    elif OPT["probe"] >= 0 and i == 0:
        E(f"s_memrealtime s[{ST0}:{ST0+1}]")
NSTAMP = 14
def STAMP_OUT():
    if OPT["stamps"]:
        E(f"""
        s_lshl_b32 s30, s2, 4
        s_add_u32 s30, s30, s3
        s_lshl_b32 s30, s30, 6
        s_add_u32 s30, s30, {WS_STAMP}
        s_mov_b64 exec, -1
        v_mov_b32 v3, s30""")
        for i in range(NSTAMP):
            E(f"v_mov_b32 v2, s{ST0+2*i}\nglobal_store_dword v3, v2, s[20:21] offset:{4*i}")
        E("s_waitcnt vmcnt(0)")

A1, A2, IDX, LN8, LN16, ASEL, CW, EAC = 4, 8, 12, 13, 14, 16, 18, 20
LP, WS_, WN, WE, AG, EA, XA, OFS, T, N, P, F = 22, 24, 25, 26, 27, 30, 32, 36, 44, 52, 56, 60
D0, D1, G = 72, 88, 104

def finish_tag():
    E(f"""
    s_mul_i32 s{S_TAG8}, s{S_TAGRAW}, 0x85ebca6b
    s_mul_i32 s{S_TAG}, s{S_TAGRAW}, 0x9e3779b1
    s_lshr_b32 s{S_TAG8}, s{S_TAG8}, 24
    s_add_u32 s{S_TAG}, s{S_TAG}, 0x7f4a7c15
    """)
def get_tag(lab, q):
    E(f"""
    s_cmp_lg_u32 s{S_SAFE}, 0
    s_cbranch_scc1 L_tag_{lab}
    v_mov_b32 v2, 0
    s_mov_b32 s31, {POLL_MAX}
L_tg_{lab}:
    ds_read_b128 v[{q}:{q+3}], v2 offset:{L_SCNT + 124*4}
    s_sub_u32 s31, s31, 1
    s_cbranch_scc1 L_tag_{lab}
    s_waitcnt lgkmcnt(0)
    v_readfirstlane_b32 s30, v{q+3}
    v_readfirstlane_b32 s{S_TAGRAW}, v{q+1}
    s_cmp_lg_u32 s30, 4
    s_cbranch_scc1 L_tg_{lab}
    """)
    finish_tag()
    E(f"L_tag_{lab}:")

def lds_wait(addr, mask, val, tag, sleep=0):
    E(f"""
    v_mov_b32 v2, 0
    s_mov_b32 s31, {POLL_MAX}
L_w_{tag}:
    {f"s_sleep {sleep}" if sleep else ""}
    ds_read_b32 v3, v2 offset:{addr}
    s_sub_u32 s31, s31, 1
    s_cbranch_scc1 L_wd_{tag}
    s_waitcnt lgkmcnt(0)
    v_readfirstlane_b32 s30, v3
    s_and_b32 s30, s30, {mask}
    s_cmp_lg_u32 s30, {val}
    s_cbranch_scc1 L_w_{tag}
L_wd_{tag}:
    """)
SCAN = ("row_shr:1 row_mask:0xf bank_mask:0xf bound_ctrl:0", "row_shr:2 row_mask:0xf bank_mask:0xf bound_ctrl:0",
        "row_shr:4 row_mask:0xf bank_mask:0xf bound_ctrl:0", "row_shr:8 row_mask:0xf bank_mask:0xf bound_ctrl:0",
        "row_bcast:15 row_mask:0xa bank_mask:0xf", "row_bcast:31 row_mask:0xc bank_mask:0xf")
def scan(r):
    for m in SCAN:
        E(f"s_nop 1\nv_add_u32_dpp v{r}, v{r}, v{r} {m}")

def main_consts(sm=48):
    E(f"""
    v_and_b32 v2, 15, v1                    ; n'
    v_lshrrev_b32 v3, 4, v1
    v_lshl_add_u32 v3, v2, 2, v3
    v_lshlrev_b32 v3, 1, v3
    v_add_u32 v3, {L_C}, v3
    ds_read_u16 v64, v3                     ; C[0..3][feature 4n'+s]
    ds_read_u16 v65, v3 offset:128
    ds_read_u16 v66, v3 offset:256
    ds_read_u16 v67, v3 offset:384
    v_and_b32 v63, 3, v1                    ; q
    v_lshlrev_b32 v{LN8}, 3, v2
    v_lshlrev_b32 v{LN16}, 4, v2
    v_lshlrev_b32 v{LN16+1}, 4, v2
    v_mov_b32 v{IDX}, 0x8888
    v_bfe_u32 v60, v1, 3, 2                 ; s = (l&31)>>3
    v_bfe_u32 v61, v1, 2, 1                 ; h = (l>>2)&1
    v_lshrrev_b32 v62, 5, v1                ; ha
    v_and_b32 v2, 1, v60
    v_lshlrev_b32 v2, 4, v2
    v_lshlrev_b32 v2, v2, s46
    v_lshrrev_b32 v60, 1, v60               ; s>>1
    v_lshl_add_u32 v3, v61, 1, v60
    v_sub_u32 v63, v63, v62                 ; q - ha : 0 -> A1, 2 -> A2
    v_lshl_add_u32 v3, v63, 1, v3
    v_and_b32 v63, 1, v63
    v_lshl_or_b32 v3, v63, 4, v3
    v_xor_b32 v61, v61, v62
    v_lshl_or_b32 v60, v61, 4, v60
    """)
    mk = [f"s[{sm}:{sm+1}]", f"s[{sm+2}:{sm+3}]", f"s[{sm+4}:{sm+5}]", "vcc"]
    for i in range(8):
        E(f"v_cmp_eq_u32 {mk[i%4]}, {i}, v3")
        if i % 4 == 3:
            for j in range(i-3, i+1):
                E(f"v_cndmask_b32 v{A1+j}, 0, v2, {mk[j%4]}")
    E(f"""
    v_cmp_eq_u32 {mk[0]}, 0, v60
    v_cmp_eq_u32 {mk[1]}, 1, v60
    v_bfe_u32 v61, v1, 4, 1
    v_and_b32 v63, 3, v1
    v_cndmask_b32 v{ASEL}, 0, v2, {mk[0]}
    v_cndmask_b32 v{ASEL+1}, 0, v2, {mk[1]}
    v_lshl_add_u32 v61, v61, 2, v63
    v_lshlrev_b32 v61, 3, v61
    v_add_u32 v{EAC}, {L_EA - 2*L_SRC}, v61
    s_lshl_b32 s30, s3, 5
    s_add_u32 s30, s30, {L_LIST}
    v_lshrrev_b32 v2, 4, v1
    v_lshl_add_u32 v{LP}, v2, 3, s30
    v_bfe_u32 v2, v1, 2, 2
    v_lshl_add_u32 v{LP+1}, v2, 3, s30
    s_waitcnt lgkmcnt(0)
    v_lshlrev_b32 v60, 16, v64
    v_lshlrev_b32 v61, 16, v65
    v_lshlrev_b32 v62, 16, v66
    v_lshlrev_b32 v63, 16, v67
    v_mul_f32 v60, s40, v60
    v_mul_f32 v61, s40, v61
    v_mul_f32 v62, s40, v62
    v_mul_f32 v63, s40, v63
    v_cvt_pk_bf16_f32 v{CW}, v60, v61
    v_cvt_pk_bf16_f32 v{CW+1}, v62, v63
    """)

def gload(g, o):
    return f"buffer_load_dwordx4 v[{g}:{g+3}], v{o}, s[36:39], 0 offen" + (SC1 if OPT["gsc1"] else "")
def oadd(o):
    return f"v_lshl_add_u64 v[{o}:{o+1}], v[{o}:{o+1}], 0, v[{LN16}:{LN16+1}]"

def pk_steps(Gc, q, first):
    t = T + 4*(q & 1); h = Gc + 4*q
    if first and q == 0:
        return [f"v_pk_add_f32 v[{P+2*p}:{P+2*p+1}], v[{t+2*p}:{t+2*p+1}], 1.0 op_sel_hi:[1,0]" for p in range(2)]
    r = []
    for p in range(2):
        n = f"v[{Gc+2*p}:{Gc+2*p+1}]" if (first and q == 1) else f"v[{N+2*p}:{N+2*p+1}]"
        r.append(f"v_pk_fma_f32 v[{N+2*p}:{N+2*p+1}], {n}, v[{t+2*p}:{t+2*p+1}], {n}")
    for p in range(2):
        r.append(f"v_pk_fma_f32 v[{N+2*p}:{N+2*p+1}], v[{h+2*p}:{h+2*p+1}], v[{P+2*p}:{P+2*p+1}], v[{N+2*p}:{N+2*p+1}]")
    for p in range(2):
        r.append(f"v_pk_fma_f32 v[{P+2*p}:{P+2*p+1}], v[{P+2*p}:{P+2*p+1}], v[{t+2*p}:{t+2*p+1}], v[{P+2*p}:{P+2*p+1}]")
    return r
def exps(Dc, q):
    t = T + 4*(q & 1)
    return [f"v_exp_f32 v{t+s}, v{Dc+4*s+q}" for s in range(4)]
def weave(main, extra):
    for i, x in enumerate(main):
        E(x)
        for y in extra.get(i, []):
            E(y)
def m_a(Dn): return f"v_mfma_f32_32x32x8_bf16 v[{Dn}:{Dn+15}], v[{ASEL}:{ASEL+1}], v[{XA}:{XA+1}], 0"
def m_e(Dn, abid): return f"v_mfma_f32_16x16x4_4b_bf16 v[{Dn}:{Dn+15}], v[{EA}:{EA+1}], v[{CW}:{CW+1}], v[{Dn}:{Dn+15}] cbsz:2 abid:{abid}"
def m_s(Dn, A, g): return f"v_smfmac_f32_32x32x32_bf16 v[{Dn}:{Dn+15}], v[{A}:{A+3}], v[{g}:{g+7}], v{IDX}"

def body(par, loads):
    g0 = G + 32*par; g1 = g0 + 16; gn = G + 32*(1-par)
    agc = AG + par; agn = AG + 1 - par
    ld = loads and not OPT["nogather"]
    E("s_waitcnt vmcnt(8) lgkmcnt(4)")
    E(m_a(D1))
    for x in exps(D0, 0): E(x)
    E(m_s(D1, A1, g1))
    for x in exps(D0, 1): E(x)
    ex = {0: [f"v_add_u32 v{agn}, v{WN}, v{LN8}"],
          2: [f"ds_read_b64 v[{XA}:{XA+1}], v{agn} offset:512"],
          5: [f"v_lshl_add_u32 v{WE}, v{WE}, 1, v{EAC}"]}
    if loads:
        ex[1] = [f"ds_read_b128 v[{OFS}:{OFS+3}], v{WS_}"]
        ex[3] = [f"ds_read_b128 v[{OFS+4}:{OFS+7}], v{WS_} offset:16"]
    weave(pk_steps(g0, 0, True) + pk_steps(g0, 1, True), ex)
    E(m_e(D1, 1))
    for x in exps(D0, 2): E(x)
    E(m_s(D1, A2, g1+8))
    for x in exps(D0, 3): E(x)
    ex = {0: ["s_waitcnt lgkmcnt(0)", f"ds_read_b64 v[{EA}:{EA+1}], v{WE}"]}
    if loads:
        ex[0] += [oadd(OFS)]
        ex[2] = [oadd(OFS+2)]
    if ld:
        ex[1] = [gload(g0, OFS)]
        ex[3] = [gload(g0+4, OFS+1)]
        ex[5] = [gload(g0+8, OFS+2)]
        ex[9] = [gload(g0+12, OFS+3)]
    weave(pk_steps(g0, 2, False) + pk_steps(g0, 3, False), ex)
    E(f"s_waitcnt vmcnt({8 if loads else 4})")
    E(m_a(D0))
    for x in exps(D1, 0): E(x)
    E(m_s(D0, A1, gn))
    for x in exps(D1, 1): E(x)
    ex = {10: ["s_waitcnt lgkmcnt(0)"]}
    if loads:
        ex[0] = [oadd(OFS+4)]
        ex[2] = [oadd(OFS+6)]
    if ld:
        ex[5] = [gload(g1, OFS+4)]
        ex[10] = [gload(g1+4, OFS+5)] + ex[10]
    weave(pk_steps(g1, 0, False) + pk_steps(g1, 1, False), ex)
    E(m_e(D0, 0))
    for x in exps(D1, 2): E(x)
    E(m_s(D0, A2, gn+8))
    for x in exps(D1, 3): E(x)
    o = LSTR * par
    ex = {0: [f"ds_read_b32 v{WN}, v{LP} offset:{o + 2*LSTR + 4}"],
          1: [f"ds_read_b32 v{WE}, v{LP+1} offset:{o + 2*LSTR}"],
          2: [f"ds_read_b32 v{WS_}, v{LP} offset:{o + 3*LSTR}"]}
    if ld:
        ex[5] = [gload(g1+8, OFS+6)]
        ex[9] = [gload(g1+12, OFS+7)]
    weave(pk_steps(g1, 2, False) + pk_steps(g1, 3, False), ex)
    E(f"""
    v_rcp_f32 v{P}, v{P}
    v_rcp_f32 v{P+1}, v{P+1}
    v_rcp_f32 v{P+2}, v{P+2}
    v_rcp_f32 v{P+3}, v{P+3}
    v_pk_mul_f32 v[{N}:{N+1}], v[{N}:{N+1}], v[{P}:{P+1}]
    v_pk_mul_f32 v[{N+2}:{N+3}], v[{N+2}:{N+3}], v[{P+2}:{P+3}]
    """)
    if par == 1:
        E(f"v_lshl_add_u64 v[{LP}:{LP+1}], v[{LP}:{LP+1}], 0, s[44:45]")
    for s in range(4):
        E(f"v_cvt_f64_f32 v[{F+2*s}:{F+2*s+1}], v{N+s}")
        if s: E(f"ds_add_f64 v{agc}, v[{F+2*s-2}:{F+2*s-1}] offset:{128*(s-1)}")
    E(f"s_add_u32 s{S_K}, s{S_K}, {NW}")
    E(f"ds_add_f64 v{agc}, v[{F+6}:{F+7}] offset:384")
    if not loads:
        E("s_waitcnt vmcnt(0)")

E(f"""
; @launch grid=(256,1,1) block=({64*NW},1,1) lds={LDS}
.amdgcn_target "amdgcn-amd-amdhsa--gfx950"
.text
.globl {NAME}
.p2align 8
.type {NAME},@function
{NAME}:
""")
if OPT["stamps"] and OPT["early"] != 1:
    for i in range(NSTAMP): E(f"s_mov_b64 s[{ST0+2*i}:{ST0+2*i+1}], 0")
STAMP(0)
E(f"""
    s_load_dwordx16 s[4:19], s[0:1], 0
    s_load_dwordx2 s[20:21], s[0:1], 72
""")
if OPT["codepf"]:
    E(f"""
    s_getpc_b64 s[28:29]
L_pc:
    v_lshlrev_b32 v3, 7, v0
    v_cmp_gt_u32 vcc, L_codeend-L_pc-64, v3
    s_cbranch_vccz L_nopf
    s_mov_b64 exec, vcc
    global_load_dword v164, v3, s[28:29]
    s_mov_b64 exec, -1
L_nopf:
    """)
E(f"""
    v_lshrrev_b32 v2, 6, v0
    v_and_b32 v1, 63, v0
    v_readfirstlane_b32 s3, v2
    s_and_b32 s{S_HALF}, s2, 1
    s_bfe_u32 s30, s2, 0x20001
    s_lshl_b32 s30, s30, 5
    s_lshr_b32 s31, s2, 3
    s_add_u32 s{S_BUCK}, s30, s31
    s_cmp_ge_u32 s2, 256
    s_cbranch_scc1 L_end
    s_cmp_ge_u32 s{S_BUCK}, {NBUCK}
    s_cbranch_scc1 L_end
    s_lshl_b32 s{S_P}, s{S_BUCK}, 1
    s_add_u32 s{S_P}, s{S_P}, s{S_HALF}
    s_mov_b32 s{S_SAFE}, 0
L_restart:
    s_cmp_ge_u32 s3, 4
    s_cbranch_scc1 L_nosort
    v_mov_b32 v48, 0
    v_mov_b32 v49, 0
    v_mov_b32 v50, 0
    v_mov_b32 v51, 0
    v_lshlrev_b32 v10, 4, v1
    ds_write_b128 v10, v[48:51] offset:{L_SCNT}
    s_mul_i32 s30, s{S_P}, {CHUNK*4}
    v_lshl_add_u32 v3, v0, 4, s30
    s_add_u32 s30, s30, 4096
    v_lshl_add_u32 v9, v0, 2, s30
    v_lshlrev_b32 v10, 1, v3
    v_lshlrev_b32 v11, 1, v9
    v_mov_b32 v17, {WS_TAG}
    s_waitcnt lgkmcnt(0)
    global_load_dwordx4 v[4:7], v3, s[10:11]
    global_load_dword v8, v9, s[10:11]
    global_load_dword v43, v17, s[20:21]
    s_barrier                               ; B0
    global_load_dwordx4 v[12:15], v3, s[8:9]
    global_load_dword v16, v9, s[8:9]
    global_load_dwordx4 v[52:55], v10, s[6:7]
    global_load_dwordx4 v[60:63], v10, s[6:7] offset:16
    global_load_dwordx2 v[68:69], v11, s[6:7]
    s_barrier                               ; B0b
    s_branch L_sort
L_nosort:
    s_and_b32 s32, s3, 3                    ; tau
    s_lshr_b32 s33, s3, 3                   ; rg
    v_lshrrev_b32 v2, 4, v1                 ; g
    v_and_b32 v4, 15, v1
    s_lshl_b32 s30, s32, 2
    v_add_u32 v6, s30, v2                   ; row&15
    v_xor_b32 v7, v4, v6
    v_lshlrev_b32 v7, 4, v7
    v_lshl_add_u32 v7, v6, 8, v7
    s_mul_i32 s30, s{S_BUCK}, {NB*256}
    s_mul_i32 s31, s33, {3*4096}
    s_add_u32 s73, s30, s31
    v_add_u32 v7, s73, v7
    v_add_u32 v8, 0x1000, v7
    v_add_u32 v9, 0x2000, v7
    s_lshl_b32 s30, s32, 10
    s_add_u32 s31, s31, s30
    s_add_u32 m0, s31, {L_X}
    s_waitcnt lgkmcnt(0)
""")
if OPT["touch"]:
    st = {1: 0x30000, 2: 0x200000}[OPT["touch"]]; n = {1: 60, 2: 6}[OPT["touch"]]
    so = {1: 0x10000, 2: 0x200000}[OPT["touch"]]; no = {1: 39, 2: 2}[OPT["touch"]]
    E(f"""
    s_cmp_lg_u32 s3, 4
    s_cbranch_scc1 L_not1
    v_mul_u32_u24 v3, {st}, v1
    s_bfm_b64 exec, {n}, 0
    global_load_dword v166, v3, s[20:21] sc1
    s_mov_b64 exec, -1
L_not1:
    s_cmp_lg_u32 s3, 5
    s_cbranch_scc1 L_not2
    v_mul_u32_u24 v3, {so}, v1
    s_bfm_b64 exec, {no}, 0
    global_load_dword v166, v3, s[18:19] sc1
    s_mov_b64 exec, 1
    global_load_dword v167, v3, s[12:13]
    global_load_dword v165, v3, s[14:15]
    global_load_dword v164, v3, s[16:17]
    s_mov_b64 exec, -1
L_not2:
    """)
E(f"""
    s_barrier                               ; B0
    global_load_lds_dwordx4 v7, s[4:5]
    s_add_u32 m0, m0, 0x1000
    s_cmp_lg_u32 s33, 0
    global_load_lds_dwordx4 v8, s[4:5]
    s_cbranch_scc1 L_x2
    s_add_u32 m0, m0, 0x1000
    s_nop 0
    global_load_lds_dwordx4 v9, s[4:5]
L_x2:
    s_barrier                               ; B0b
    v_subrev_u32 v30, 256, v0               ; t = 0..511
    v_lshlrev_b32 v31, 4, v30
    v_mov_b32 v32, {NULL_SRC}
    v_mov_b32 v33, {NULL_SRC}
    v_mov_b32 v34, {NULL_SRC}
    v_mov_b32 v35, {NULL_SRC}
    v_mov_b32 v36, 0
    v_mov_b32 v37, 0
    v_mov_b32 v38, 0
    v_mov_b32 v39, 0
    v_add_u32 v40, {L_SORT + SORTB}, v31
""")
def cover(n): return list(range(0, n - 8192, 8192)) + [n - 8192]
for o in cover(81*SSTR): E(f"ds_write_b128 v31, v[32:35] offset:{L_SRC + o}")
for o in cover(L_EAEND - (L_SORT + SORTB)): E(f"ds_write_b128 v40, v[36:39] offset:{o}")
E(f"""
    v_lshrrev_b32 v5, 3, v1
    v_and_b32 v3, 1, v2
    s_and_b32 s30, s3, 1
    s_lshl_b32 s30, s30, 1
    v_or_b32 v3, s30, v3                    ; sigma
    v_lshlrev_b32 v3, 1, v3
    v_and_b32 v20, 7, v1
    v_xor_b32 v3, v3, v20
    v_lshlrev_b32 v3, 4, v3
    v_lshl_add_u32 v10, v5, 8, v3
    s_sub_u32 s28, s3, 4
    s_lshl_b32 s30, s28, 11
    s_lshl_b32 s31, s{S_HALF}, 7
    s_add_u32 s30, s30, s31
    v_add_u32 v10, s30, v10
    v_add_u32 v11, 0x4000, v10
    s_add_u32 s34, s16, {128*256}
    s_addc_u32 s35, s17, 0
    s_cmp_lg_u32 s3, 11
    s_cbranch_scc1 L_noc
    v_and_b32 v5, 3, v5
    v_lshlrev_b32 v20, 4, v20
    v_lshl_add_u32 v5, v5, 8, v20
    s_add_u32 s31, s31, {256*256}
    s_mov_b32 m0, {L_C}
    v_add_u32 v5, s31, v5
    global_load_lds_dwordx4 v5, s[16:17]
L_noc:
    s_lshl_b32 s28, s28, 10
    s_add_u32 m0, s28, {L_WBV}
""")
for ti, base in enumerate((34, 14)):
    for n in range(2):
        E(f"s_nop 0\nglobal_load_lds_dwordx4 v{10+n}, s[{base}:{base+1}]")
        if not (ti == 1 and n == 1):
            E(f"s_add_u32 m0, m0, 0x2000")
    if ti == 1:
        E(f"""
        s_cmp_ge_u32 s3, 8
        s_cbranch_scc1 L_pf2
        v_mov_b32 v32, {L_SRC + 80*SSTR}
        v_mov_b32 v33, {L_DUM}
        v_mov_b32 v34, {L_SRC + 80*SSTR}
        v_mov_b32 v35, {L_DUM}
        v_cmp_gt_u32 vcc, {(L_SRC - L_LIST - 8*NSTATIC)//16}, v30
        s_mov_b64 exec, vcc
        ds_write_b128 v31, v[32:35] offset:{L_LIST + 8*NSTATIC}
        s_branch L_pf3
L_pf2:
        s_cmp_ge_u32 s3, 10
        s_cbranch_scc1 L_pf3
        v_subrev_u32 v30, 256, v30              ; 0..127
        v_mul_u32_u24 v42, {SSTR}, v30
        v_add_u32 v42, {L_SRC}, v42
        v_mul_u32_u24 v43, {NSTR}, v30
        v_add_u32 v43, {L_NODE}, v43
        v_lshlrev_b32 v41, 2, v30
        ds_write_b32 v41, v42 offset:{L_CNT}
        v_add_u32 v41, {L_DUM + 256}, v41
        ds_write_b32 v41, v36
        v_lshlrev_b32 v41, 3, v30
        v_cmp_gt_u32 vcc, {NB}, v30
        s_mov_b64 exec, vcc
        ds_write_b64 v41, v[42:43] offset:{L_LIST}
        v_add_u32 v42, 32, v42
        ds_write_b64 v41, v[42:43] offset:{L_LIST + 8*NB}
        v_add_u32 v42, 32, v42
        ds_write_b64 v41, v[42:43] offset:{L_LIST + 16*NB}
L_pf3:
        s_mov_b64 exec, -1
        """)
STAMP(1)
E(f"""
    v_bfe_u32 v3, v1, 2, 2                  ; r
    v_lshl_add_u32 v5, v2, 3, v3            ; 8g + r
    v_lshrrev_b32 v3, 1, v3
    v_and_b32 v6, 1, v2
    v_lshl_or_b32 v3, v6, 1, v3             ; sigma
    v_xor_b32 v3, s32, v3
    v_lshlrev_b32 v3, 5, v3
    v_lshl_add_u32 v10, v5, 7, v3
    v_and_b32 v3, 3, v1
    v_lshl_add_u32 v10, v3, 3, v10
    v_add_u32 v10, {L_WBV}, v10
    v_xor_b32 v3, v2, v4
    v_lshlrev_b32 v3, 4, v3
    v_lshl_add_u32 v12, v4, 8, v3
    s_mul_i32 s31, s33, {3*4096}
    s_add_u32 s31, s31, {L_X}
    v_add_u32 v12, s31, v12
    v_xor_b32 v13, 64, v12
    v_xor_b32 v14, 0x80, v12
    v_xor_b32 v15, 0xc0, v12
    s_mul_i32 s30, s{S_HALF}, {G_HALF}
    s_add_u32 s30, s30, s73
    s_lshl_b32 s31, s32, 6
    s_add_u32 s30, s30, s31
    v_lshlrev_b32 v11, 10, v2
    v_lshl_add_u32 v11, v4, 2, v11
    v_add_u32 v11, s30, v11
    s_lshl_b32 s31, s32, 5
    s_add_u32 s31, s31, {L_NODE}
    v_mul_u32_u24 v16, {NSTR}, v4
    v_lshl_add_u32 v16, v2, 3, v16
    v_add_u32 v16, s31, v16
    s_mov_b32 s40, {f32(LOG2E)}
    s_mov_b32 s42, {f32(2.0**32)}
    s_mov_b32 s44, 0x07060100
    s_mov_b32 s45, 0x07060302
    v_mov_b32 v8, {f32(2.0**-100)}
    v_mov_b32 v7, 1
    v_mov_b32 v6, 0
    s_waitcnt vmcnt(0)
    s_mov_b64 exec, 1
    ds_add_u32 v6, v7 offset:{L_CTR}
    s_mov_b64 exec, -1
""")
STAMP(2)
lds_wait(L_CTR, 0xff, 8, "g1")
STAMP(3)
NP = 8
def rec_setup():
    E(f"""
    v_and_b32 v148, 15, v1                   ; j
    v_lshrrev_b32 v2, 4, v1
    v_lshl_add_u32 v149, v2, 3, v148
    s_lshl_b32 s30, s29, 5
    v_add_u32 v149, s30, v149
    s_lshl_b32 s30, s{S_BUCK}, 3
    s_add_u32 s30, s30, {WS_ROW}
    v_lshl_add_u32 v150, v149, 10, s30
    v_cmp_gt_u32 s[66:67], {NP}, v148
    v_cmp_gt_u32 vcc, {NCHUNK}, v149
    v_mov_b32 v154, 0
    v_mov_b32 v155, 0
    s_and_b64 s[66:67], s[66:67], vcc
    s_mov_b64 exec, s[66:67]
    global_load_dwordx2 v[154:155], v150, s[20:21] sc1
    s_mov_b64 exec, -1
    v_mul_u32_u24 v149, {CHUNK}, v149
    v_add_u32 v149, {WS_REC//16}, v149
    v_lshlrev_b32 v152, 4, v148               ; 16j
    v_not_b32 v151, v148
    v_subrev_u32 v153, 16, v151
    v_mov_b32 v156, 4
    """)
WF = 20; XF = 52; AC = 132
def wreads(ks):
    for t in range(2):
        for rd in range(2):
            r = WF + 16*t + 4*ks + 2*rd
            E(f"ds_read_b64_tr_b16 v[{r}:{r+1}], v10 offset:{t*16384 + ks*4096 + rd*512}")
def xread(rt, ks):
    r = XF + 16*rt + 4*ks
    return f"ds_read_b128 v[{r}:{r+3}], v{12+ks} offset:{rt*4096}"
def mf(rt, ks, transposed, acc):
    for t in range(2):
        a = XF + 16*rt + 4*ks; w = WF + 16*t + 4*ks; d = acc + 4*t
        c = "0" if ks == 0 else f"v[{d}:{d+3}]"
        if transposed: a, w = w, a
        E(f"v_mfma_f32_16x16x32_bf16 v[{d}:{d+3}], v[{a}:{a+3}], v[{w}:{w+3}], {c}")
def pack(rt, last):
    b = AC + 8*rt; h = b + 4
    for r in range(4): E(f"v_mul_f32 v{b+r}, s40, v{b+r}")
    for r in range(4): E(f"v_fma_f32 v{h+r}, v{h+r}, s42, v8")
    E(f"""
    v_cvt_pk_bf16_f32 v2, v{b}, v{b+1}
    v_cvt_pk_bf16_f32 v3, v{b+2}, v{b+3}
    v_xor_b32 v4, 0x80008000, v2
    v_xor_b32 v5, 0x80008000, v3
    v_sub_u32_sdwa v{h}, v{h}, sext(v2) dst_sel:DWORD dst_unused:UNUSED_PAD src0_sel:DWORD src1_sel:WORD_0
    v_sub_u32_sdwa v{h+1}, v{h+1}, sext(v2) dst_sel:DWORD dst_unused:UNUSED_PAD src0_sel:DWORD src1_sel:WORD_1
    v_sub_u32_sdwa v{h+2}, v{h+2}, sext(v3) dst_sel:DWORD dst_unused:UNUSED_PAD src0_sel:DWORD src1_sel:WORD_0
    v_sub_u32_sdwa v{h+3}, v{h+3}, sext(v3) dst_sel:DWORD dst_unused:UNUSED_PAD src0_sel:DWORD src1_sel:WORD_1
    """)
    for r in range(4):
        E(f"v_perm_b32 v{h+r}, v{h+r}, v{4 + (r>>1)}, s{44 + (r&1)}")
        E(f"global_store_dword v11, v{h+r}, s[20:21] offset:{256*r} sc1")
    if not last: E("v_add_u32 v11, 0x1000, v11")
E(f"""
    s_cmp_lg_u32 s{S_SAFE}, 0
    s_cbranch_scc1 L_nog1
""")
for ks in range(3):
    E(xread(0, ks)); wreads(ks)
E("s_waitcnt lgkmcnt(10)"); mf(0, 0, False, AC)
E(xread(0, 3)); wreads(3)
E("s_waitcnt lgkmcnt(10)"); mf(0, 1, False, AC)
for ks in range(4): E(xread(1, ks))
E("s_waitcnt lgkmcnt(9)"); mf(0, 2, False, AC)
E("s_waitcnt lgkmcnt(4)"); mf(0, 3, False, AC)
E("s_cmp_lg_u32 s33, 0\ns_cbranch_scc1 L_g1b")
for ks in range(4): E(xread(2, ks))
E("s_waitcnt lgkmcnt(4)")
for ks in range(4): mf(1, ks, False, AC+8)
pack(0, False)
E("s_waitcnt lgkmcnt(0)")
for ks in range(4): mf(2, ks, False, AC+16)
pack(1, False)
pack(2, True)
E(f"""
    s_mov_b64 exec, 1
    ds_add_u32 v6, v7 offset:{L_GST}
    s_mov_b64 exec, -1
L_g2x:
""")
for rt in (3, 4):
    for ks in range(4): E(xread(rt, ks))
STAMP(4)
get_tag("g", 160)
def done2(lab):
    E(f"""
    s_lshl_b32 s30, s{S_P}, 7
    s_add_u32 s30, s30, {WS_FL2}
    v_mov_b32 v160, s30
    v_mov_b32 v162, s{S_TAG}
    v_mov_b32 v163, s{S_TAG8}
    v_mov_b32 v2, 0
    v_mov_b32 v3, 1
    s_mov_b64 exec, 1
    s_waitcnt vmcnt(0)
    ds_add_rtn_u32 v161, v2, v3 offset:{L_DONE2}
    s_waitcnt lgkmcnt(0)
    v_readfirstlane_b32 s30, v161
    s_cmp_lg_u32 s30, 7
    s_cbranch_scc1 L_nofl_{lab}
    s_cmp_lg_u32 s{S_SAFE}, 0
    s_cbranch_scc1 L_nofs_{lab}
    global_store_dwordx2 v160, v[162:163], s[20:21] sc1
L_nofs_{lab}:
    ds_add_u32 v2, v3 offset:{L_DONE2}
L_nofl_{lab}:
    s_mov_b64 exec, -1
    """)
done2("g")
STAMP(5)
E(f"v_add_u32 v10, {L_WAU - L_WBV}, v10")
lds_wait(L_DONE2, 8, 8, "d2")
lds_wait(L_CTR, 0xff0000, 0x040000, "d3")
STAMP(6)
for ks in range(4): wreads(ks)
E(f"""
    s_mov_b32 s40, {f32(-LOG2E)}
    s_mov_b32 s46, 0x3f80
""")
def fin(acc, last):
    a = acc; u = acc + 4
    for r in range(4): E(f"v_mul_f32 v{a+r}, s40, v{a+r}")
    for r in range(4): E(f"v_mul_f32 v{u+r}, s42, v{u+r}")
    E(f"""
    v_cvt_pk_bf16_f32 v{a}, v{a}, v{a+1}
    v_cvt_pk_bf16_f32 v{a+1}, v{a+2}, v{a+3}
    v_cvt_f64_f32 v[2:3], v{u}
    v_cvt_f64_f32 v[4:5], v{u+1}
    v_cvt_f64_f32 v[6:7], v{u+2}
    v_cvt_f64_f32 v[8:9], v{u+3}
    ds_write_b64 v16, v[{a}:{a+1}] offset:512
    ds_write2_b64 v16, v[2:3], v[4:5] offset0:0 offset1:16
    ds_write2_b64 v16, v[6:7], v[8:9] offset0:32 offset1:48
    """)
    if not last: E(f"v_add_u32 v16, {16*NSTR}, v16")
for ks in range(4):
    E(f"s_waitcnt lgkmcnt({12 - 4*ks})"); mf(0, ks, True, AC)
for rt in range(1, 5):
    for ks in range(4): mf(rt, ks, True, AC + 8*(rt % 3))
    fin(AC + 8*((rt-1) % 3), False)
fin(AC + 8*(4 % 3), True)
main_consts()
STAMP(7)
E(f"""
    s_cmp_lg_u32 s{S_SAFE}, 0
    s_cbranch_scc1 L_b4
    s_and_b32 s32, s3, 3
    s_lshl_b32 s30, s32, 13
    s_lshl_b32 s31, s{S_HALF}, 7
    s_add_u32 s30, s30, s31
    s_add_u32 s30, s30, {WS_FL2}
    v_lshl_add_u32 v3, v1, 8, s30
    s_cmp_eq_u32 s32, 3
    s_cselect_b32 exec_lo, 0x1fffffff, -1
    s_mov_b32 exec_hi, 0
    s_mov_b32 s31, {POLL_MAX}
L_p2:
    global_load_dwordx2 v[60:61], v3, s[20:21] sc1
    s_waitcnt vmcnt(0)
    v_cmp_ne_u32 vcc, s{S_TAG}, v60
    v_cmp_ne_u32 s[48:49], s{S_TAG8}, v61
    s_sub_u32 s31, s31, 1
    s_cbranch_scc1 L_p2d
    s_or_b64 exec, vcc, s[48:49]
    s_cbranch_scc1 L_p2
L_p2d:
    s_mov_b64 exec, -1
""")
if OPT["gpf"]:
    E(f"""
    s_mul_i32 s30, s32, {2560*256}
    s_lshr_b32 s31, s2, 3
    s_mul_i32 s31, s31, {160*128}
    s_add_u32 s30, s30, s31
    v_lshl_add_u32 v3, v1, 7, s30
    v_min_u32 v3, {G_HALF - 128 - 8192}, v3
    s_mul_i32 s30, s{S_HALF}, {G_HALF}
    v_add_u32 v3, s30, v3
    v_add_u32 v2, 8192, v3
    {"s_bfm_b64 exec, %d, 0" % OPT["gpf"] if OPT["gpf"] < 64 else ""}
    global_load_dword v21, v3, s[20:21] sc1
    {"s_bfm_b64 exec, %d, 0" % (OPT["gpf"]-64) if 64 < OPT["gpf"] < 128 else ""}
    {"global_load_dword v29, v2, s[20:21] sc1" if OPT["gpf"] > 64 else ""}
    s_mov_b64 exec, -1
    """)
E(f"""
    s_branch L_b4
L_nog1:
    s_cmp_lg_u32 s33, 0
    s_cbranch_scc1 L_g1c
""")
for rt in range(3):
    for ks in range(4): E(xread(rt, ks))
E(f"""
    s_branch L_g2x
L_g1b:
    s_waitcnt lgkmcnt(0)
""")
for ks in range(4): mf(1, ks, False, AC+8)
E("s_sub_u32 s29, s3, 4")
rec_setup()
pack(0, False)
pack(1, True)
E(f"""
    s_mov_b64 exec, 1
    ds_add_u32 v6, v7 offset:{L_GST}
    s_mov_b64 exec, -1
L_g1c:
""")
STAMP(4)
get_tag("w", 160)
E(f"""
    s_branch L_rec
L_sort:
""")
STAMP(1)
E(f"""
    s_cmp_lg_u32 s{S_SAFE}, 0
    s_cbranch_scc1 L_sortskip
    v_mov_b32 v21, 1
    s_mov_b32 s31, 52429
    s_movk_i32 s32, -20
    v_lshlrev_b32 v9, 3, v1
    v_lshlrev_b32 v33, 4, v0
    s_mul_i32 s30, s{S_P}, {SORTB}
    s_add_u32 s30, s30, {WS_REC + 4096}
    v_add_u32 v32, s30, v33
    v_add_u32 v34, 8192, v32
    v_add_u32 v35, 16384, v32
    s_lshl_b32 s30, s{S_P}, 10
    s_add_u32 s30, s30, {WS_ROW}
    v_lshl_add_u32 v42, v1, 4, s30
    s_mov_b32 s34, {POLL_MAX}
    s_setprio 3
    s_waitcnt vmcnt(6)
""")
STAMP(2)
FSTAMP(1)
for i in range(5):
    E(f"""
    v_mul_u32_u24 v{22+i}, s31, v{4+i}
    v_lshrrev_b32 v{22+i}, 22, v{22+i}
    v_lshlrev_b32 v{22+i}, 2, v{22+i}        ; bucket*4
    ds_add_rtn_u32 v{27+i}, v{22+i}, v21 offset:{L_SCNT}
    """)
E(f"""
    s_mov_b64 exec, 1
    s_cmp_lg_u32 s3, 0
    s_cbranch_scc1 L_notag
    s_waitcnt vmcnt(5)
    ds_write_b32 v48, v43 offset:{L_SCNT + 125*4}
L_notag:
    ds_add_u32 v48, v21 offset:{L_SCNT + 127*4}
    s_mov_b64 exec, -1
L_s1:
    ds_read_b32 v38, v48 offset:{L_SCNT + 127*4}
    ds_read_b64 v[36:37], v9 offset:{L_SCNT}
    s_sub_u32 s34, s34, 1
    s_cbranch_scc1 L_s1d
    s_waitcnt lgkmcnt(0)
    v_readfirstlane_b32 s30, v38
    s_cmp_lg_u32 s30, 4
    s_cbranch_scc1 L_s1
L_s1d:
""")
FSTAMP(2)
E(f"""
    v_add_u32 v39, v36, v37
    v_add_u32 v38, v36, v37
    v_readlane_b32 s{S_TAGRAW}, v37, 62
""")
fill = []
for i in range(5):
    fill += [f"v_mad_i32_i24 v{4+i}, v{22+i}, s32, v{4+i}", f"v_lshlrev_b32 v{4+i}, 24, v{4+i}"]
for k, m in enumerate(SCAN):
    E(f"v_add_u32_dpp v39, v39, v39 {m}")
    for x in fill[2*k:2*k+2]: E(x)
E(f"""
    v_sub_u32 v40, v39, v38
    v_add_u32 v41, v40, v36
    ds_write_b64 v9, v[40:41] offset:{L_SOFF}
""")
for i in range(5):
    E(f"ds_read_b32 v{22+i}, v{22+i} offset:{L_SOFF}")
finish_tag()
E(f"""
    s_cmp_lg_u32 s3, 0
    s_cbranch_scc1 L_nopub
    s_lshl_b32 s35, s{S_TAG8}, 24
    v_mov_b32 v45, s{S_TAG}
    v_mov_b32 v47, s{S_TAG}
    v_lshl_or_b32 v44, v36, 12, v40
    v_lshl_or_b32 v46, v37, 12, v41
    v_or_b32 v44, s35, v44
    v_or_b32 v46, s35, v46
    global_store_dwordx4 v42, v[44:47], s[20:21] sc1
    s_waitcnt vmcnt(1)
    s_branch L_pub
L_nopub:
    s_waitcnt vmcnt(0)
L_pub:
""")
STAMP(4)
FSTAMP(3)
E("""
    v_mov_b64 v[56:57], v[54:55]
    v_mov_b64 v[64:65], v[62:63]
    s_waitcnt lgkmcnt(0)
""")
for i in range(5):
    E(f"""
    v_lshl_or_b32 v{54+4*i}, v{12+i}, 8, v{4+i}
    v_mov_b32 v{55+4*i}, s{S_TAG}
    v_add_lshl_u32 v{22+i}, v{22+i}, v{27+i}, 4
    ds_write_b128 v{22+i}, v[{52+4*i}:{55+4*i}] offset:{L_SORT}
    """)
E(f"""
    s_mov_b64 exec, 1
    ds_add_u32 v48, v21 offset:{L_SCNT + 126*4}
    s_mov_b64 exec, -1
""")
FSTAMP(4)
E(f"""
L_s2:
    ds_read_b32 v38, v48 offset:{L_SCNT + 126*4}
    ds_read_b128 v[72:75], v33 offset:{L_SORT}
    s_sub_u32 s34, s34, 1
    s_cbranch_scc1 L_s2d
    s_waitcnt lgkmcnt(1)
    v_readfirstlane_b32 s30, v38
    s_cmp_lg_u32 s30, 4
    s_cbranch_scc1 L_s2
L_s2d:
""")
FSTAMP(5)
for k in range(1, 5): E(f"ds_read_b128 v[{72+4*k}:{75+4*k}], v33 offset:{L_SORT + 4096*k}")
for k in range(5):
    E(f"s_waitcnt lgkmcnt({4-k})")
    E(f"global_store_dwordx4 v{(32,32,34,34,35)[k]}, v[{72+4*k}:{75+4*k}], s[20:21] offset:{0 if k & 1 else -4096} sc1")
FSTAMP(6)
for k in range(5): E(f"ds_write_b128 v33, v[48:51] offset:{L_SORT + 4096*k}")
STAMP(3)
FSTAMP(7)
RA = 72; RB = RA + 4*NP; RAD = RB + 4*NP
E(f"""
    s_branch L_sortdone
L_sortskip:
    s_waitcnt vmcnt(0)
L_sortdone:
    v_mov_b32 v21, 0x100
    s_mov_b64 exec, 1
    ds_add_u32 v48, v21 offset:{L_CTR}
    s_mov_b64 exec, -1
    v_lshrrev_b32 v5, 3, v1
    v_bfe_u32 v3, v1, 4, 1
    v_lshlrev_b32 v3, 1, v3
    v_and_b32 v20, 7, v1
    v_xor_b32 v3, v3, v20
    v_lshlrev_b32 v3, 4, v3
    v_lshl_add_u32 v10, v5, 8, v3
    s_lshl_b32 s30, s{S_HALF}, 7
    s_and_b32 s31, s3, 1
    s_lshl_b32 s31, s31, 14
    s_add_u32 s30, s30, s31
    v_add_u32 v10, s30, v10
    v_xor_b32 v11, 64, v10
    v_add_u32 v12, 2048, v10
    v_add_u32 v13, 3072, v11
    v_add_u32 v11, 1024, v11
    s_lshl_b32 s30, s3, 13
    s_add_u32 m0, s30, {L_WAU}
    s_cmp_lt_u32 s3, 2
    s_cselect_b32 s34, s16, s12
    s_cselect_b32 s35, s17, s13
    global_load_lds_dwordx4 v10, s[34:35]
    global_load_lds_dwordx4 v11, s[34:35] offset:1024
    global_load_lds_dwordx4 v12, s[34:35] offset:2048
    global_load_lds_dwordx4 v13, s[34:35] offset:3072
    s_add_u32 m0, m0, 4096
    s_add_u32 s34, s34, 8192
    s_addc_u32 s35, s35, 0
    global_load_lds_dwordx4 v10, s[34:35]
    global_load_lds_dwordx4 v11, s[34:35] offset:1024
    global_load_lds_dwordx4 v12, s[34:35] offset:2048
    global_load_lds_dwordx4 v13, s[34:35] offset:3072
    s_mov_b32 s29, s3
""")
rec_setup()
E(f"""
L_rec:
    s_mov_b32 s40, {f32(-LOG2E)}
    s_mov_b32 s46, 0x3f80
""")
lds_wait(L_CTR, 0xff, 8, "r0")
main_consts()
STAMP(5)
E("s_cmp_lt_u32 s3, 4\ns_cbranch_scc1 L_nod2")
done2("w")
E(f"""
    s_branch L_nod3
L_nod2:
    v_mov_b32 v2, 0
    v_mov_b32 v3, 0x10000
    s_mov_b64 exec, 1
    s_waitcnt vmcnt(0)
    ds_add_u32 v2, v3 offset:{L_CTR}
    s_mov_b64 exec, -1
L_nod3:
    s_cmp_lg_u32 s{S_SAFE}, 0
    s_cbranch_scc1 L_recskip
    s_mov_b64 exec, s[66:67]
    s_mov_b32 s34, {POLL_MAX}
    s_branch L_p1c
L_p1:
    global_load_dwordx2 v[154:155], v150, s[20:21] sc1
L_p1c:
    s_waitcnt vmcnt(0)
    v_cmp_ne_u32 vcc, s{S_TAG}, v155
    v_cmp_ne_u32_sdwa s[48:49], v154, s{S_TAG8} src0_sel:BYTE_3 src1_sel:DWORD
    s_sub_u32 s34, s34, 1
    s_cbranch_scc1 L_p1d
    s_or_b64 exec, vcc, s[48:49]
    s_cbranch_scc1 L_p1
L_p1d:
    s_mov_b64 exec, -1
""")
STAMP(6)
if OPT["cnt"]: E(f"s_sub_u32 s{ST0+2}, {POLL_MAX+1}, s34\ns_mov_b32 s34, {POLL_MAX}")
E(f"""
    v_and_b32 v155, 0xfff, v154
    v_bfe_u32 v154, v154, 12, 12              ; count
    v_add_lshl_u32 v155, v155, v149, 4
    v_cmp_lt_u32 vcc, 32, v154
    v_cmp_lt_u32 s[68:69], 16, v154
    s_cbranch_vccnz L_toobig
""")
for p in range(NP):
    E(f"""
    v_add_co_u32_dpp v2, vcc, v154, v151 row_newbcast:{p} row_mask:0xf bank_mask:0xf
    v_add_u32_dpp v{RAD+p}, v155, v152 row_newbcast:{p} row_mask:0xf bank_mask:0xf
    s_mov_b64 s[{48+2*p}:{49+2*p}], vcc
    """)
if OPT["gate"]:
    E(f"""
    s_cmp_lt_u32 s3, 4
    s_cselect_b32 s28, {L_GST}, 0
    s_cselect_b32 s29, 0, {L_DONE2}
    s_cselect_b32 s32, 8, 9
    s_add_u32 s28, s28, s29
    v_mov_b32 v2, s28
    s_mov_b32 s31, {POLL_MAX}
L_gate:
    ds_read_b32 v3, v2
    s_sub_u32 s31, s31, 1
    s_cbranch_scc1 L_gated
    s_waitcnt lgkmcnt(0)
    v_readfirstlane_b32 s30, v3
    s_cmp_lg_u32 s30, s32
    s_cbranch_scc1 L_gate
L_gated:
    """)
E(f"""
    s_or_b32 s68, s68, s69
    s_lshr_b32 s69, s68, 16
    s_or_b32 s68, s68, s69
    s_cbranch_scc0 L_noex
""")
for p in range(NP):
    r = RB + 4*p
    E(f"""
    s_bitcmp1_b32 s68, {p}
    s_cbranch_scc0 L_nx{p}
    v_add_co_u32_dpp v2, vcc, v154, v153 row_newbcast:{p} row_mask:0xf bank_mask:0xf
    s_mov_b64 exec, vcc
    global_load_dwordx4 v[{r}:{r+3}], v{RAD+p}, s[20:21] offset:256 sc1
    s_mov_b64 exec, -1
L_nx{p}:
    """)
E("L_noex:")
for p in range(NP):
    r = RA + 4*p
    E(f"""
    s_mov_b64 exec, s[{48+2*p}:{49+2*p}]
    global_load_dwordx4 v[{r}:{r+3}], v{RAD+p}, s[20:21] sc1
    """)
E("s_mov_b64 exec, -1")
STAMP(7)
lds_wait(L_CTR, 0xffff, 0x0408, "r1")
retries = []
def rank(r, m, ad, off, tag):
    E(f"""
    s_mov_b64 exec, {m}
    v_cmp_ne_u32 vcc, s{S_TAG}, v{r+3}
    s_cbranch_vccnz L_rt{tag}
L_rr{tag}:
    v_mul_u32_u24_sdwa v{r+3}, v156, v{r+2} dst_sel:DWORD dst_unused:UNUSED_PAD src0_sel:DWORD src1_sel:BYTE_3
    v_and_b32 v{r+2}, {OPT['srcmask']}, v{r+2}
    ds_add_rtn_u32 v{r+3}, v{r+3}, v156 offset:{L_CNT}
    """)
    retries.append(f"""
L_rt{tag}:
    s_mov_b64 exec, vcc
    global_load_dwordx4 v[{r}:{r+3}], v{ad}, s[20:21] offset:{off} sc1
    s_sub_u32 s34, s34, 1
    s_cbranch_scc1 L_toobig
    s_waitcnt vmcnt(0)
    v_cmp_ne_u32 vcc, s{S_TAG}, v{r+3}
    s_cbranch_vccnz L_rt{tag}
    s_mov_b64 exec, {m}
    s_branch L_rr{tag}
    """)
def put(r, m):
    E(f"""
    s_mov_b64 exec, {m}
    v_lshlrev_b32 v2, 1, v{r+3}
    ds_write_b32 v{r+3}, v{r+2}
    ds_write_b64 v2, v[{r}:{r+1}] offset:{L_EA - 2*L_SRC}
    """)
E(f"""
    s_cmp_eq_u32 s68, 0
    s_cbranch_scc1 L_noey
    s_waitcnt vmcnt({NP})
""")
for p in range(NP):
    r = RB + 4*p
    E(f"""
    s_bitcmp1_b32 s68, {p}
    s_cbranch_scc0 L_ny{p}
    v_add_co_u32_dpp v2, vcc, v154, v153 row_newbcast:{p} row_mask:0xf bank_mask:0xf
    s_mov_b64 s[64:65], vcc
    """)
    rank(r, "s[64:65]", RAD+p, 256, f"b{p}")
    E("s_waitcnt lgkmcnt(0)")
    put(r, "s[64:65]")
    E(f"s_mov_b64 exec, -1\nL_ny{p}:")
E("L_noey:")
LAG = 2
for p in range(NP + LAG):
    if p < NP:
        E(f"s_waitcnt vmcnt({NP-1-p})")
        rank(RA + 4*p, f"s[{48+2*p}:{49+2*p}]", RAD+p, 0, f"a{p}")
    q = p - LAG
    if q >= 0:
        younger = 0
        for j in range(q+1, min(p, NP-1)+1): younger += 1
        for j in range(max(0, q-LAG), q): younger += 2
        E(f"s_waitcnt lgkmcnt({younger})")
        put(RA + 4*q, f"s[{48+2*q}:{49+2*q}]")
E(f"""
    s_mov_b64 exec, -1
    {f"s_sub_u32 s{ST0+4}, {POLL_MAX+1}, s34" if OPT["cnt"] else ""}
    s_branch L_b4
L_toobig:
    s_mov_b64 exec, -1
    v_mov_b32 v2, 0
    ds_write_b32 v2, v156 offset:{L_FLAG}
L_recskip:
    s_waitcnt vmcnt(0)
L_b4:
    s_setprio 0
    s_mul_i32 s30, s{S_HALF}, {G_HALF}
    s_add_u32 s36, s20, s30
    s_addc_u32 s37, s21, 0
    s_mov_b32 s38, {OPT['nrec'] or G_HALF}
    s_mov_b32 s39, 0x20000
    s_mov_b32 s44, {2*LSTR}
    s_mov_b32 s45, {2*LSTR}
    ds_read_b64 v[60:61], v{LP}
    ds_read_b32 v62, v{LP+1}
    ds_read_b32 v63, v{LP} offset:{LSTR}
    ds_read_b32 v{WN}, v{LP} offset:{LSTR + 4}
    ds_read_b32 v{WE}, v{LP+1} offset:{LSTR}
    ds_read_b32 v{WS_}, v{LP} offset:{2*LSTR}
    s_waitcnt lgkmcnt(0)
    v_add_u32 v{AG}, v61, v{LN8}
    v_lshl_add_u32 v62, v62, 1, v{EAC}
""")
if OPT["warm"]:
    E(f"""
    s_barrier
    s_lshr_b32 s30, s2, 3
    s_mul_i32 s30, s30, 98304
    v_lshl_add_u32 v2, v0, 7, s30
    buffer_load_dword v3, v2, s[36:39], 0 offen sc1
    s_waitcnt vmcnt(0)
    s_sleep 40
    """)
STAMP(8)
E(f"""
    s_barrier                               ; B4
    s_cmp_lg_u32 s{S_SAFE}, 0
    s_cbranch_scc1 L_safe
    ds_read_b128 v[{OFS}:{OFS+3}], v60
    ds_read_b128 v[{OFS+4}:{OFS+7}], v60 offset:16
    ds_read_b128 v[{T}:{T+3}], v63
    ds_read_b128 v[{T+4}:{T+7}], v63 offset:16
    ds_read_b64 v[{XA}:{XA+1}], v{AG} offset:512
    ds_read_b64 v[{EA}:{EA+1}], v62
    s_cmp_lg_u32 s3, {NW-1}
    s_cbranch_scc1 L_nobuild
    v_lshlrev_b32 v2, 3, v1
    v_mov_b32 v3, 0
    ds_read_b64 v[64:65], v2 offset:{L_CNT}
    ds_read_b32 v71, v3 offset:{L_FLAG}
    v_mul_u32_u24 v66, {2*SSTR}, v1
    v_add_u32 v66, {L_SRC + 96}, v66
    v_add_u32 v68, {SSTR}, v66
    v_mul_u32_u24 v67, {2*NSTR}, v1
    v_add_u32 v67, {L_NODE}, v67
    v_add_u32 v69, {NSTR}, v67
    s_waitcnt lgkmcnt(0)
    v_sub_u32 v64, v64, v66 clamp
    v_sub_u32 v65, v65, v68 clamp
    v_max_u32 v70, v64, v65
    v_cmp_lt_u32 vcc, 160, v70
    v_cmp_ne_u32 s[48:49], 0, v71
    v_add_u32 v64, 31, v64
    v_add_u32 v65, 31, v65
    s_or_b64 vcc, vcc, s[48:49]
    s_cbranch_scc1 L_bad
    v_lshrrev_b32 v64, 5, v64
    v_lshrrev_b32 v65, 5, v65
    v_add_u32 v70, v64, v65
    v_add_u32 v71, v64, v65
""")
scan(71)
E(f"""
    v_sub_u32 v70, v71, v70
    v_lshlrev_b32 v70, 3, v70
    v_readlane_b32 s30, v71, 63
    v_lshl_add_u32 v71, v64, 3, v70
""")
for b in range(5):
    E(f"""
    v_cmp_lt_u32 vcc, {b}, v64
    v_cmp_lt_u32 s[48:49], {b}, v65
    s_mov_b64 exec, vcc
    ds_write_b64 v70, v[66:67] offset:{L_LIST + 8*NSTATIC + 8*b}
    s_mov_b64 exec, s[48:49]
    ds_write_b64 v71, v[68:69] offset:{L_LIST + 8*NSTATIC + 8*b}
    s_mov_b64 exec, -1
    """)
    if b < 4: E("v_add_u32 v66, 32, v66\nv_add_u32 v68, 32, v68")
E(f"""
    s_add_u32 s30, s30, {NSTATIC + 3}
    s_lshr_b32 s30, s30, 2
    s_branch L_built
L_bad:
    s_mov_b32 s30, -1
L_built:
    v_mov_b32 v2, s30
    ds_write_b32 v3, v2 offset:{L_NST}
    s_cmp_lg_u32 s{S_P}, 0
    s_cbranch_scc1 L_nobuild
    v_mov_b32 v2, s{S_TAG}
    v_mov_b32 v3, {WS_TAG}
    s_mov_b64 exec, 1
    global_store_dword v3, v2, s[20:21]
    s_mov_b64 exec, -1
L_nobuild:
    s_waitcnt lgkmcnt(0)
""")
for i, o in enumerate((OFS, OFS+4, T, T+4)):
    E(oadd(o)); E(oadd(o+2))
    if not OPT["nogather"]:
        for q in range(4): E(gload(G + 16*i + 4*q, o+q))
STAMP(9)
E(m_a(D0)); E(m_e(D0, 0))
E(f"""
    v_mov_b32 v2, 0
    s_mov_b32 s31, {POLL_MAX}
    s_waitcnt vmcnt(12)
""")
E(m_s(D0, A1, G)); E(m_s(D0, A2, G+8))
E(f"""
L_wn:
    ds_read_b32 v3, v2 offset:{L_NST}
    s_waitcnt lgkmcnt(0)
    v_readfirstlane_b32 s{S_N}, v3
    s_sub_u32 s31, s31, 1
    s_cmp_eq_u32 s31, 0
    s_cbranch_scc1 L_wnd
    s_cmp_eq_u32 s{S_N}, 0
    s_cbranch_scc1 L_wn
L_wnd:
    s_cmp_gt_u32 s{S_N}, {0 if OPT["force_safe"] else 160}
    s_cbranch_scc1 L_gosafe
    s_add_u32 s{S_K}, s3, {2*NW}
    s_add_u32 s28, s{S_N}, {2*NW}
    s_mov_b32 s{S_IT}, 0
    s_nop 3
""")
if OPT["prio"]: E("s_setprio 3")
STAMP(10)
if OPT["stamps"]: E(f"s_memtime s[{ST0+24}:{ST0+25}]\ns_waitcnt lgkmcnt(0)")
E("L_A:")
body(0, True)
E(f"s_cmp_ge_u32 s{S_K}, s{S_N}\ns_cbranch_scc1 L_Bt")
body(1, True)
if OPT["prio"]:
    E(f"""
    s_add_u32 s{S_IT}, s{S_IT}, 1
    s_setprio 0
    s_cmp_gt_u32 s{S_IT}, 2
    s_cbranch_scc1 L_pr
    s_setprio 1
    s_cmp_eq_u32 s{S_IT}, 2
    s_cbranch_scc1 L_pr
    s_setprio 2
L_pr:
    """)
E(f"s_cmp_lt_u32 s{S_K}, s{S_N}\ns_cbranch_scc1 L_A")
E("L_At:")
body(0, False)
E(f"s_cmp_ge_u32 s{S_K}, s28\ns_cbranch_scc1 L_mdone")
E("L_Bt:")
body(1, False)
if OPT["prio"]: E("s_setprio 0")
E(f"s_cmp_lt_u32 s{S_K}, s28\ns_cbranch_scc1 L_At")
E(f"""
L_mdone:
    s_waitcnt lgkmcnt(0)
""")
STAMP(11)
if OPT["stamps"]:
    E(f"s_memtime s[28:29]\ns_waitcnt lgkmcnt(0)\ns_sub_u32 s{ST0+24}, s28, s{ST0+24}")
E(f"""
    v_lshrrev_b32 v2, 5, v0
    v_and_b32 v3, 31, v0
    v_mul_u32_u24 v4, {NSTR}, v2
    v_and_b32 v5, 1, v3
    v_lshl_add_u32 v4, v5, 8, v4
    v_lshrrev_b32 v5, 1, v3
    v_lshl_add_u32 v4, v5, 3, v4
    v_add_u32 v4, {L_NODE}, v4
    s_mul_i32 s30, s{S_BUCK}, {NB*256}
    s_lshl_b32 s31, s{S_HALF}, 7
    s_add_u32 s30, s30, s31
    v_lshlrev_b32 v3, 2, v3
    v_lshl_add_u32 v5, v2, 8, v3
    v_add_u32 v5, s30, v5
    v_add_u32 v6, {24*256}, v5
    v_add_u32 v7, {48*256}, v5
    v_add_u32 v8, {72*256}, v5
    s_mov_b32 s32, {f32(2.0**-32)}
    s_mov_b32 s34, {f32(-LOG2E * 2.0**-32)}
    v_mov_b32 v9, 0x207
    s_barrier                               ; B5
""")
OSC = {0: "", 1: " sc1", 2: " nt"}[OPT["osc"]]
def epi(us):
    for u in us: E(f"ds_read_b64 v[{12+4*u}:{13+4*u}], v4 offset:{24*NSTR*u}\nds_read_b64 v[{14+4*u}:{15+4*u}], v4 offset:{24*NSTR*u + 128}")
    E("s_waitcnt lgkmcnt(0)")
    for u in us: E(f"v_cvt_f32_f64 v{28+2*u}, v[{12+4*u}:{13+4*u}]\nv_cvt_f32_f64 v{29+2*u}, v[{14+4*u}:{15+4*u}]")
    for u in us: E(f"v_pk_mul_f32 v[{36+2*u}:{37+2*u}], v[{28+2*u}:{29+2*u}], s[34:35] op_sel_hi:[1,0]")
    for u in us: E(f"v_exp_f32 v{36+2*u}, v{36+2*u}\nv_exp_f32 v{37+2*u}, v{37+2*u}")
    for u in us: E(f"v_pk_mul_f32 v[{28+2*u}:{29+2*u}], v[{28+2*u}:{29+2*u}], s[32:33] op_sel_hi:[1,0]")
    for u in us: E(f"v_pk_add_f32 v[{36+2*u}:{37+2*u}], v[{36+2*u}:{37+2*u}], 1.0 op_sel_hi:[1,0]")
    for u in us: E(f"v_rcp_f32 v{36+2*u}, v{36+2*u}\nv_rcp_f32 v{37+2*u}, v{37+2*u}")
    E("v_pk_add_f32 v[10:11], v[28:29], v[30:31]")
    for u in us: E(f"v_pk_mul_f32 v[{36+2*u}:{37+2*u}], v[{28+2*u}:{29+2*u}], v[{36+2*u}:{37+2*u}]")
    for u in us: E(f"v_cvt_pk_bf16_f32 v{44+u}, v{36+2*u}, v{37+2*u}\nglobal_store_dword v{5+u}, v{44+u}, s[18:19]{OSC}")
    for u in us[2:]: E(f"v_pk_add_f32 v[10:11], v[10:11], v[{28+2*u}:{29+2*u}]")
E("s_cmp_ge_u32 s3, 4\ns_cbranch_scc1 L_e3")
epi([0, 1, 2, 3])
E("s_branch L_e4\nL_e3:")
epi([0, 1, 2])
E(f"""
L_e4:
    v_add_f32 v10, v10, v11
    v_cmp_class_f32 vcc, v10, v9
    v_mov_b32 v2, 0
    s_cmp_lg_u32 s{S_SAFE}, 0
    s_cbranch_scc1 L_fin
    {"s_branch" if OPT["nosafe"] else "s_cbranch_vccz"} L_e5
    ds_write_b32 v2, v9 offset:{L_FLAG}
    s_waitcnt lgkmcnt(0)
L_e5:
    s_barrier                               ; B6
    ds_read_b32 v2, v2 offset:{L_FLAG}
    s_waitcnt lgkmcnt(0)
    v_readfirstlane_b32 s30, v2
    s_cmp_lg_u32 s30, 0
    s_cbranch_scc1 L_gosafe
L_fin:
""")
if OPT["stamps"]:
    E("s_waitcnt vmcnt(0)"); STAMP(13); STAMP_OUT()
if OPT["probe"] >= 0:
    T_ = ST0 + 2*OPT["probe"]
    E(f"""
    s_cmp_lg_u32 s3, {OPT["pw"]}
    s_cbranch_scc1 L_end
    s_cmp_lg_u32 s2, {OPT["pg"] if OPT["pg"] >= 0 else "s2"}
    s_cbranch_scc1 L_end
    s_sub_u32 s30, s{T_}, s{ST0}
    s_lshl_b32 s30, s30, 2
    s_add_u32 s30, s30, 3000
    s_min_u32 s30, s30, 20000
L_spin:
    s_memrealtime s[28:29]
    s_waitcnt lgkmcnt(0)
    s_sub_u32 s28, s28, s{ST0}
    s_cmp_lt_u32 s28, s30
    s_cbranch_scc1 L_spin
    """)
E(f"""
L_end:
    s_endpgm
L_gosafe:
    s_mov_b32 s{S_SAFE}, 8
    s_setprio 0
    s_waitcnt vmcnt(0) lgkmcnt(0)
    s_barrier
    s_branch L_restart
""")
for r in retries: E(r)
E(f"""
L_safe:
    v_and_b32 v2, 15, v1
    v_lshlrev_b32 v3, 3, v2
    v_add_u32 v3, {L_C}, v3
""")
for k in range(4):
    for s in range(4):
        E(f"ds_read_u16 v{80+4*k+s}, v3 offset:{128*k + 2*s}")
E("s_waitcnt lgkmcnt(0)")
for i in range(16):
    E(f"v_lshlrev_b32 v{80+i}, 16, v{80+i}\nv_mul_f32 v{80+i}, s40, v{80+i}")
E(f"""
    v_lshrrev_b32 v24, 4, v1
    s_movk_i32 s33, {NSTR}
    v_add_u32 v25, {L_NODE}, v{LN8}
    s_mov_b32 s34, s3
L_scell:
    s_lshl_b32 s30, s34, 10
    s_lshl_b32 s31, s{S_BUCK}, 3
    s_add_u32 s30, s30, s31
    s_add_u32 s30, s30, {WS_ROW}
    v_mov_b32 v26, s30
    global_load_dword v27, v26, s[20:21] sc1
    s_mul_i32 s30, s34, {CHUNK}
    s_add_u32 s30, s30, {WS_REC//16}
    s_waitcnt vmcnt(0)
    v_bfe_u32 v28, v27, 12, 12              ; count
    v_and_b32 v27, 0xfff, v27
    v_add_u32 v27, s30, v27
    v_mov_b32 v29, v24
L_srec:
    v_cmp_gt_u32 vcc, v28, v29
    s_and_saveexec_b64 s[48:49], vcc
    s_cbranch_execz L_snext
    v_add_lshl_u32 v30, v27, v29, 4
    s_mov_b32 s31, {POLL_MAX}
L_sget:
    global_load_dwordx4 v[32:35], v30, s[20:21] sc1
    s_sub_u32 s31, s31, 1
    s_cbranch_scc1 L_snext
    s_waitcnt vmcnt(0)
    v_cmp_ne_u32 vcc, s{S_TAG}, v35
    s_cbranch_vccnz L_sget
    v_and_b32 v30, 0x3fff00, v34
    v_add_u32 v30, v30, v{LN16}
    buffer_load_dwordx4 v[36:39], v30, s[36:39], 0 offen sc1
    v_lshrrev_b32 v31, 24, v34
    v_mad_u32_u24 v31, v31, s33, v25
    ds_read_b64 v[40:41], v31 offset:512
    v_lshlrev_b32 v44, 16, v32
    v_and_b32 v45, 0xffff0000, v32
    v_lshlrev_b32 v46, 16, v33
    v_and_b32 v47, 0xffff0000, v33
    s_waitcnt vmcnt(0) lgkmcnt(0)
    v_lshlrev_b32 v48, 16, v40
    v_and_b32 v49, 0xffff0000, v40
    v_lshlrev_b32 v50, 16, v41
    v_and_b32 v51, 0xffff0000, v41
""")
for s in range(4):
    E(f"v_lshlrev_b32 v52, 16, v{36+s}\nv_add_f32 v{48+s}, v{48+s}, v52")
    for k in range(4):
        E(f"v_fmac_f32 v{48+s}, v{44+k}, v{80+4*k+s}")
for s in range(4): E(f"v_exp_f32 v{48+s}, v{48+s}")
E("s_nop 0")
for s in range(4): E(f"v_add_f32 v{48+s}, 1.0, v{48+s}")
for s in range(4): E(f"v_rcp_f32 v{48+s}, v{48+s}")
E("s_nop 0")
for s in range(4): E(f"v_mul_f32 v{48+s}, v{48+s}, v{36+s}")
for s in range(4): E(f"v_cvt_f64_f32 v[{54+2*s}:{55+2*s}], v{48+s}")
for s in range(4): E(f"ds_add_f64 v31, v[{54+2*s}:{55+2*s}] offset:{128*s}")
E(f"""
    s_mov_b64 exec, s[48:49]
    v_add_u32 v29, 4, v29
    s_branch L_srec
L_snext:
    s_mov_b64 exec, s[48:49]
    s_add_u32 s34, s34, {NW}
    s_cmp_lt_u32 s34, {NCHUNK}
    s_cbranch_scc1 L_scell
    s_branch L_mdone
L_codeend:
.section .rodata,"a"
.p2align 6
.amdhsa_kernel {NAME}
.amdhsa_next_free_vgpr 168
.amdhsa_next_free_sgpr 102
.amdhsa_accum_offset 168
.amdhsa_group_segment_fixed_size 0
.amdhsa_kernarg_size 80
.amdhsa_user_sgpr_count 2
.amdhsa_user_sgpr_kernarg_segment_ptr 1
.amdhsa_system_sgpr_workgroup_id_x 1
.end_amdhsa_kernel
""")
if OPT["nochain"]:
    i0 = out.index("L_A:"); i1 = out.index("L_mdone:")
    out = out[:i0] + [l for l in out[i0:i1] if not any(x in l for x in ("v_exp", "v_pk_", "mfma", "v_rcp", "v_cvt"))] + out[i1:]
open(sys.argv[1], "w").write("\n".join(out) + "\n")
```

```python
import sys, struct

OPT = dict(stamps=0, force_safe=0, nogather=0, nosafe=0, prio=1, gsc1=1, osc=0, spin=0, codepf=1, srcmask=0x3fff00, nrec=0, warm=0, nochain=0, probe=-1, pw=-1, pg=-1, gpf=0, gate=1, aulate=0, early=0, cnt=0, rsc1=1, rdelay=0, p2sleep=0)
for a in sys.argv[2:]:
    k, v = a.split("=")
    assert k in OPT, k
    OPT[k] = int(v, 0)

out = []
def E(s=""):
    for line in s.split("\n"):
        line = line.strip()
        if not line:
            continue
        if line.endswith(":") or line.startswith(".") or line.startswith(";"):
            out.append(line)
        else:
            out.append("    " + line)

def f32(x):
    return "0x%08x" % struct.unpack("<I", struct.pack("<f", x))[0]

NAME = "standalone__edge_featured_mpnn_egc__graph_kernel"
LOG2E = 1.4426950408889634
NB = 80; NBUCK = 125; CHUNK = 1280; NCHUNK = 250
NW = 12
G_HALF = 10000 * 256
WS_REC = 0x500000
WS_ROW = 0xa00000
WS_FL2 = 0xa80000
WS_TAG = 0xac0000
SORTB = CHUNK * 16
WS_STAMP = 0x1000000
L_CNT = 0; L_SOFF = 512
L_SCNT = 1024
L_CTR = 1536; L_RD1 = 1540; L_DONE2 = 1544; L_FLAG = 1548; L_NST = 1552; L_GST = 1556
L_LIST = 2048
SSTR = 272
L_SRC = 7936
L_EA = L_SRC + 81 * SSTR
L_EAEND = L_EA + 81 * 2 * SSTR
L_SORT = L_EA
L_WBV = 74240; L_X = L_WBV + 32768; L_WAU = L_X + 20480; L_C = L_WAU + 32768; L_DUM = L_C + 1024
LDS = L_DUM + 1024
L_NODE = L_WBV; NSTR = 640
assert L_EAEND <= L_WBV and L_NODE + 80 * NSTR <= L_WAU and LDS <= 163840 and L_EA % 16 == 0
NULL_SRC = 0x7fffff00
NSTATIC = 240
LSTR = NW * 32
POLL_MAX = 200000
SC1 = " sc1"

S_HALF, S_BUCK, S_P = 22, 23, 24
S_TAG, S_TAG8, S_SAFE = 25, 26, 27
S_N, S_K, S_IT = 70, 71, 72
S_TAGRAW = 47
ST0 = 74

def ESTAMP(i):
    if OPT["early"] == 1 or (OPT["early"] and i == 0): E(f"s_memrealtime s[{ST0+2*i}:{ST0+2*i+1}]")
def FSTAMP(i):
    if OPT["early"] == 2: E(f"s_memrealtime s[{ST0+2*i}:{ST0+2*i+1}]\ns_waitcnt lgkmcnt(0)")
def STAMP(i):
    if OPT["early"] and 1 <= i <= 7: return
    if OPT["early"] and i == 0: return ESTAMP(0)
    if OPT["stamps"] or (OPT["probe"] >= 0 and i == OPT["probe"]):
        E(f"s_memrealtime s[{ST0+2*i}:{ST0+2*i+1}]\ns_waitcnt lgkmcnt(0)")
    elif OPT["probe"] >= 0 and i == 0:
        E(f"s_memrealtime s[{ST0}:{ST0+1}]")
NSTAMP = 14
def STAMP_OUT():
    if OPT["stamps"]:
        E(f"""
        s_lshl_b32 s30, s2, 4
        s_add_u32 s30, s30, s3
        s_lshl_b32 s30, s30, 6
        s_add_u32 s30, s30, {WS_STAMP}
        s_mov_b64 exec, -1
        v_mov_b32 v3, s30""")
        for i in range(NSTAMP):
            E(f"v_mov_b32 v2, s{ST0+2*i}\nglobal_store_dword v3, v2, s[20:21] offset:{4*i}")
        E("s_waitcnt vmcnt(0)")

A1, A2, IDX, LN8, LN16, ASEL, CW, EAC = 4, 8, 12, 13, 14, 16, 18, 20
LP, WS_, WN, WE, AG, EA, XA, OFS, T, N, P, F = 22, 24, 25, 26, 27, 30, 32, 36, 44, 52, 56, 60
D0, D1, G = 72, 88, 104

def finish_tag():
    E(f"""
    s_mul_i32 s{S_TAG8}, s{S_TAGRAW}, 0x85ebca6b
    s_mul_i32 s{S_TAG}, s{S_TAGRAW}, 0x9e3779b1
    s_lshr_b32 s{S_TAG8}, s{S_TAG8}, 24
    s_add_u32 s{S_TAG}, s{S_TAG}, 0x7f4a7c15
    """)
def get_tag(lab, q):
    E(f"""
    s_cmp_lg_u32 s{S_SAFE}, 0
    s_cbranch_scc1 L_tag_{lab}
    v_mov_b32 v2, 0
    s_mov_b32 s31, {POLL_MAX}
L_tg_{lab}:
    ds_read_b128 v[{q}:{q+3}], v2 offset:{L_SCNT + 124*4}
    s_sub_u32 s31, s31, 1
    s_cbranch_scc1 L_tag_{lab}
    s_waitcnt lgkmcnt(0)
    v_readfirstlane_b32 s30, v{q+3}
    v_readfirstlane_b32 s{S_TAGRAW}, v{q+1}
    s_cmp_lg_u32 s30, 5
    s_cbranch_scc1 L_tg_{lab}
    """)
    finish_tag()
    E(f"L_tag_{lab}:")

def lds_wait(addr, mask, val, tag, sleep=0):
    E(f"""
    v_mov_b32 v2, 0
    s_mov_b32 s31, {POLL_MAX}
L_w_{tag}:
    {f"s_sleep {sleep}" if sleep else ""}
    ds_read_b32 v3, v2 offset:{addr}
    s_sub_u32 s31, s31, 1
    s_cbranch_scc1 L_wd_{tag}
    s_waitcnt lgkmcnt(0)
    v_readfirstlane_b32 s30, v3
    s_and_b32 s30, s30, {mask}
    s_cmp_lg_u32 s30, {val}
    s_cbranch_scc1 L_w_{tag}
L_wd_{tag}:
    """)
def scan(r):
    for m in ("row_shr:1 row_mask:0xf bank_mask:0xf bound_ctrl:0", "row_shr:2 row_mask:0xf bank_mask:0xf bound_ctrl:0",
              "row_shr:4 row_mask:0xf bank_mask:0xf bound_ctrl:0", "row_shr:8 row_mask:0xf bank_mask:0xf bound_ctrl:0",
              "row_bcast:15 row_mask:0xa bank_mask:0xf", "row_bcast:31 row_mask:0xc bank_mask:0xf"):
        E(f"s_nop 1\nv_add_u32_dpp v{r}, v{r}, v{r} {m}")

def main_consts(sm=48):
    E(f"""
    v_lshrrev_b32 v2, 4, v1
    v_bfe_u32 v3, v1, 2, 2
    v_lshlrev_b32 v2, 5, v2
    v_lshl_add_u32 v2, v3, 7, v2
    v_and_b32 v63, 3, v1                    ; q
    v_lshl_add_u32 v2, v63, 3, v2
    v_add_u32 v2, {L_C}, v2
    ds_read_b64_tr_b16 v[{CW}:{CW+1}], v2
    v_and_b32 v2, 15, v1                    ; n'
    v_lshlrev_b32 v{LN8}, 3, v2
    v_lshlrev_b32 v{LN16}, 4, v2
    v_lshlrev_b32 v{LN16+1}, 4, v2
    v_mov_b32 v{IDX}, 0x8888
    v_bfe_u32 v60, v1, 3, 2                 ; s = (l&31)>>3
    v_bfe_u32 v61, v1, 2, 1                 ; h = (l>>2)&1
    v_lshrrev_b32 v62, 5, v1                ; ha
    v_and_b32 v2, 1, v60
    v_lshlrev_b32 v2, 4, v2
    v_lshlrev_b32 v2, v2, s46
    v_lshrrev_b32 v60, 1, v60               ; s>>1
    v_lshl_add_u32 v3, v61, 1, v60
    v_sub_u32 v63, v63, v62                 ; q - ha : 0 -> A1, 2 -> A2
    v_lshl_add_u32 v3, v63, 1, v3
    v_and_b32 v63, 1, v63
    v_lshl_or_b32 v3, v63, 4, v3
    v_xor_b32 v61, v61, v62
    v_lshl_or_b32 v60, v61, 4, v60
    """)
    mk = [f"s[{sm}:{sm+1}]", f"s[{sm+2}:{sm+3}]", f"s[{sm+4}:{sm+5}]", "vcc"]
    for i in range(8):
        E(f"v_cmp_eq_u32 {mk[i%4]}, {i}, v3")
        if i % 4 == 3:
            for j in range(i-3, i+1):
                E(f"v_cndmask_b32 v{A1+j}, 0, v2, {mk[j%4]}")
    E(f"""
    v_cmp_eq_u32 {mk[0]}, 0, v60
    v_cmp_eq_u32 {mk[1]}, 1, v60
    v_bfe_u32 v61, v1, 4, 1
    v_and_b32 v63, 3, v1
    v_cndmask_b32 v{ASEL}, 0, v2, {mk[0]}
    v_cndmask_b32 v{ASEL+1}, 0, v2, {mk[1]}
    v_lshl_add_u32 v61, v61, 2, v63
    v_lshlrev_b32 v61, 3, v61
    v_add_u32 v{EAC}, {L_EA - 2*L_SRC}, v61
    s_lshl_b32 s30, s3, 5
    s_add_u32 s30, s30, {L_LIST}
    v_lshrrev_b32 v2, 4, v1
    v_lshl_add_u32 v{LP}, v2, 3, s30
    v_bfe_u32 v2, v1, 2, 2
    v_lshl_add_u32 v{LP+1}, v2, 3, s30
    s_waitcnt lgkmcnt(0)
    v_lshlrev_b32 v60, 16, v{CW}
    v_and_b32 v61, 0xffff0000, v{CW}
    v_lshlrev_b32 v62, 16, v{CW+1}
    v_and_b32 v63, 0xffff0000, v{CW+1}
    v_mul_f32 v60, s40, v60
    v_mul_f32 v61, s40, v61
    v_mul_f32 v62, s40, v62
    v_mul_f32 v63, s40, v63
    v_cvt_pk_bf16_f32 v{CW}, v60, v61
    v_cvt_pk_bf16_f32 v{CW+1}, v62, v63
    """)

def gload(g, o):
    return f"buffer_load_dwordx4 v[{g}:{g+3}], v{o}, s[36:39], 0 offen" + (SC1 if OPT["gsc1"] else "")
def oadd(o):
    return f"v_lshl_add_u64 v[{o}:{o+1}], v[{o}:{o+1}], 0, v[{LN16}:{LN16+1}]"

def pk_steps(Gc, q, first):
    t = T + 4*(q & 1); h = Gc + 4*q
    if first and q == 0:
        return [f"v_pk_add_f32 v[{P+2*p}:{P+2*p+1}], v[{t+2*p}:{t+2*p+1}], 1.0 op_sel_hi:[1,0]" for p in range(2)]
    r = []
    for p in range(2):
        n = f"v[{Gc+2*p}:{Gc+2*p+1}]" if (first and q == 1) else f"v[{N+2*p}:{N+2*p+1}]"
        r.append(f"v_pk_fma_f32 v[{N+2*p}:{N+2*p+1}], {n}, v[{t+2*p}:{t+2*p+1}], {n}")
    for p in range(2):
        r.append(f"v_pk_fma_f32 v[{N+2*p}:{N+2*p+1}], v[{h+2*p}:{h+2*p+1}], v[{P+2*p}:{P+2*p+1}], v[{N+2*p}:{N+2*p+1}]")
    for p in range(2):
        r.append(f"v_pk_fma_f32 v[{P+2*p}:{P+2*p+1}], v[{P+2*p}:{P+2*p+1}], v[{t+2*p}:{t+2*p+1}], v[{P+2*p}:{P+2*p+1}]")
    return r
def exps(Dc, q):
    t = T + 4*(q & 1)
    return [f"v_exp_f32 v{t+s}, v{Dc+4*s+q}" for s in range(4)]
def weave(main, extra):
    for i, x in enumerate(main):
        E(x)
        for y in extra.get(i, []):
            E(y)
def m_a(Dn): return f"v_mfma_f32_32x32x8_bf16 v[{Dn}:{Dn+15}], v[{ASEL}:{ASEL+1}], v[{XA}:{XA+1}], 0"
def m_e(Dn, abid): return f"v_mfma_f32_16x16x4_4b_bf16 v[{Dn}:{Dn+15}], v[{EA}:{EA+1}], v[{CW}:{CW+1}], v[{Dn}:{Dn+15}] cbsz:2 abid:{abid}"
def m_s(Dn, A, g): return f"v_smfmac_f32_32x32x32_bf16 v[{Dn}:{Dn+15}], v[{A}:{A+3}], v[{g}:{g+7}], v{IDX}"

def body(par, loads):
    g0 = G + 32*par; g1 = g0 + 16; gn = G + 32*(1-par)
    agc = AG + par; agn = AG + 1 - par
    ld = loads and not OPT["nogather"]
    E("s_waitcnt vmcnt(8) lgkmcnt(4)")
    E(m_a(D1))
    for x in exps(D0, 0): E(x)
    E(m_s(D1, A1, g1))
    for x in exps(D0, 1): E(x)
    ex = {0: [f"v_add_u32 v{agn}, v{WN}, v{LN8}"],
          2: [f"ds_read_b64 v[{XA}:{XA+1}], v{agn} offset:512"],
          5: [f"v_lshl_add_u32 v{WE}, v{WE}, 1, v{EAC}"]}
    if loads:
        ex[1] = [f"ds_read_b128 v[{OFS}:{OFS+3}], v{WS_}"]
        ex[3] = [f"ds_read_b128 v[{OFS+4}:{OFS+7}], v{WS_} offset:16"]
    weave(pk_steps(g0, 0, True) + pk_steps(g0, 1, True), ex)
    E(m_e(D1, 1))
    for x in exps(D0, 2): E(x)
    E(m_s(D1, A2, g1+8))
    for x in exps(D0, 3): E(x)
    ex = {0: ["s_waitcnt lgkmcnt(0)", f"ds_read_b64 v[{EA}:{EA+1}], v{WE}"]}
    if loads:
        ex[0] += [oadd(OFS)]
        ex[2] = [oadd(OFS+2)]
    if ld:
        ex[1] = [gload(g0, OFS)]
        ex[3] = [gload(g0+4, OFS+1)]
        ex[5] = [gload(g0+8, OFS+2)]
        ex[9] = [gload(g0+12, OFS+3)]
    weave(pk_steps(g0, 2, False) + pk_steps(g0, 3, False), ex)
    E(f"s_waitcnt vmcnt({8 if loads else 4})")
    E(m_a(D0))
    for x in exps(D1, 0): E(x)
    E(m_s(D0, A1, gn))
    for x in exps(D1, 1): E(x)
    ex = {10: ["s_waitcnt lgkmcnt(0)"]}
    if loads:
        ex[0] = [oadd(OFS+4)]
        ex[2] = [oadd(OFS+6)]
    if ld:
        ex[5] = [gload(g1, OFS+4)]
        ex[10] = [gload(g1+4, OFS+5)] + ex[10]
    weave(pk_steps(g1, 0, False) + pk_steps(g1, 1, False), ex)
    E(m_e(D0, 0))
    for x in exps(D1, 2): E(x)
    E(m_s(D0, A2, gn+8))
    for x in exps(D1, 3): E(x)
    o = LSTR * par
    ex = {0: [f"ds_read_b32 v{WN}, v{LP} offset:{o + 2*LSTR + 4}"],
          1: [f"ds_read_b32 v{WE}, v{LP+1} offset:{o + 2*LSTR}"],
          2: [f"ds_read_b32 v{WS_}, v{LP} offset:{o + 3*LSTR}"]}
    if ld:
        ex[5] = [gload(g1+8, OFS+6)]
        ex[9] = [gload(g1+12, OFS+7)]
    weave(pk_steps(g1, 2, False) + pk_steps(g1, 3, False), ex)
    E(f"""
    v_rcp_f32 v{P}, v{P}
    v_rcp_f32 v{P+1}, v{P+1}
    v_rcp_f32 v{P+2}, v{P+2}
    v_rcp_f32 v{P+3}, v{P+3}
    v_pk_mul_f32 v[{N}:{N+1}], v[{N}:{N+1}], v[{P}:{P+1}]
    v_pk_mul_f32 v[{N+2}:{N+3}], v[{N+2}:{N+3}], v[{P+2}:{P+3}]
    """)
    if par == 1:
        E(f"v_lshl_add_u64 v[{LP}:{LP+1}], v[{LP}:{LP+1}], 0, s[44:45]")
    for s in range(4):
        E(f"v_cvt_f64_f32 v[{F+2*s}:{F+2*s+1}], v{N+s}")
        if s: E(f"ds_add_f64 v{agc}, v[{F+2*s-2}:{F+2*s-1}] offset:{128*(s-1)}")
    E(f"s_add_u32 s{S_K}, s{S_K}, {NW}")
    E(f"ds_add_f64 v{agc}, v[{F+6}:{F+7}] offset:384")
    if not loads:
        E("s_waitcnt vmcnt(0)")

E(f"""
; @launch grid=(256,1,1) block=({64*NW},1,1) lds={LDS}
.amdgcn_target "amdgcn-amd-amdhsa--gfx950"
.text
.globl {NAME}
.p2align 8
.type {NAME},@function
{NAME}:
""")
if OPT["stamps"] and OPT["early"] != 1:
    for i in range(NSTAMP): E(f"s_mov_b64 s[{ST0+2*i}:{ST0+2*i+1}], 0")
STAMP(0)
E(f"""
    s_load_dwordx16 s[4:19], s[0:1], 0
    s_load_dwordx2 s[20:21], s[0:1], 72
""")
if OPT["codepf"]:
    E(f"""
    s_getpc_b64 s[28:29]
L_pc:
    v_lshlrev_b32 v3, 7, v0
    v_cmp_gt_u32 vcc, L_codeend-L_pc-64, v3
    s_cbranch_vccz L_nopf
    s_mov_b64 exec, vcc
    global_load_dword v164, v3, s[28:29]
    s_mov_b64 exec, -1
L_nopf:
    """)
E(f"""
    v_lshrrev_b32 v2, 6, v0
    v_and_b32 v1, 63, v0
    v_readfirstlane_b32 s3, v2
    s_and_b32 s{S_HALF}, s2, 1
    s_bfe_u32 s30, s2, 0x20001
    s_lshl_b32 s30, s30, 5
    s_lshr_b32 s31, s2, 3
    s_add_u32 s{S_BUCK}, s30, s31
    s_cmp_ge_u32 s2, 256
    s_cbranch_scc1 L_end
    s_cmp_ge_u32 s{S_BUCK}, {NBUCK}
    s_cbranch_scc1 L_end
    s_lshl_b32 s{S_P}, s{S_BUCK}, 1
    s_add_u32 s{S_P}, s{S_P}, s{S_HALF}
    s_mov_b32 s{S_SAFE}, 0
L_restart:
    s_cmp_ge_u32 s3, 5
    s_cbranch_scc1 L_nosort
    v_mov_b32 v48, 0
    v_mov_b32 v49, 0
    v_mov_b32 v50, 0
    v_mov_b32 v51, 0
    v_lshlrev_b32 v31, 4, v1
    ds_write_b128 v31, v[48:51] offset:{L_SCNT}
    s_mul_i32 s30, s{S_P}, {CHUNK*4}
    v_lshl_add_u32 v3, v0, 4, s30
    v_lshlrev_b32 v22, 1, v3
    v_mov_b32 v23, {WS_TAG}
""")
ESTAMP(1)
E("s_waitcnt lgkmcnt(0)")
ESTAMP(2)
E(f"""
    global_load_dwordx4 v[4:7], v3, s[10:11]
    global_load_dword v43, v23, s[20:21]
    global_load_dwordx4 v[8:11], v3, s[8:9]
    global_load_dwordx4 v[12:15], v22, s[6:7]
    global_load_dwordx4 v[16:19], v22, s[6:7] offset:16
""")
ESTAMP(3)
E("s_barrier                               ; B0")
E("s_barrier")
ESTAMP(4)
E(f"""
    s_branch L_sort
L_nosort:
""")
ESTAMP(1)
E(f"""
    s_cmp_lt_u32 s3, 10
    s_cbranch_scc1 L_nb
    s_barrier                               ; B0
    s_barrier                               ; B0b
L_nb:
    v_lshrrev_b32 v2, 4, v1                 ; g
    v_and_b32 v4, 15, v1
    v_lshrrev_b32 v5, 3, v1
    v_and_b32 v3, 1, v2
    v_lshlrev_b32 v3, 1, v3
    v_and_b32 v20, 7, v1
    v_xor_b32 v3, v3, v20
    v_lshlrev_b32 v3, 4, v3
    v_lshl_add_u32 v10, v5, 8, v3
    s_lshl_b32 s32, s{S_HALF}, 7
    v_add_u32 v10, s32, v10                 ; piece 0
    v_xor_b32 v11, 64, v10
    v_add_u32 v12, 2048, v10
    v_add_u32 v13, 3072, v11
    v_add_u32 v11, 1024, v11
    s_sub_u32 s33, s3, 5
    s_cmp_ge_u32 s3, 10
    s_cbranch_scc1 L_wau
    v_xor_b32 v3, v2, v4
    v_lshlrev_b32 v3, 4, v3
    v_lshl_add_u32 v6, v2, 8, v3            ; g*256 + (c^g)*16
    s_mul_i32 s30, s{S_BUCK}, {NB*256}
    s_lshl_b32 s31, s33, 12
    s_add_u32 s73, s30, s31
    v_add_u32 v6, s73, v6
    v_xor_b32 v7, 64, v6
    v_xor_b32 v8, 0x80, v6
    v_xor_b32 v9, 0xc0, v6
    s_add_u32 m0, s31, {L_X}
    s_and_b32 s30, s33, 1
    s_lshl_b32 s30, s30, 14
""")
ESTAMP(2)
E(f"""
    s_waitcnt lgkmcnt(0)
    s_add_u32 s34, s16, {128*256}
    s_addc_u32 s35, s17, 0
    s_cmp_ge_u32 s33, 2
    s_cselect_b32 s34, s14, s34
    s_cselect_b32 s35, s15, s35
    s_add_u32 s34, s34, s30
    s_addc_u32 s35, s35, 0
""")
ESTAMP(3)
E("s_barrier                               ; B0")
ESTAMP(4)
E(f"""
    global_load_lds_dwordx4 v6, s[4:5]
    global_load_lds_dwordx4 v7, s[4:5] offset:1024
    global_load_lds_dwordx4 v8, s[4:5] offset:2048
    global_load_lds_dwordx4 v9, s[4:5] offset:3072
    s_barrier                               ; B0b
""")
ESTAMP(5)
E(f"""
    s_cmp_eq_u32 s33, 4
    s_cbranch_scc1 L_crow
    s_lshl_b32 s30, s33, 13
    s_add_u32 m0, s30, {L_WBV}
    s_mov_b32 s31, 2
    s_branch L_wrun
L_wau:
""")
ESTAMP(2)
E(f"""
    s_waitcnt lgkmcnt(0)
    s_cmp_eq_u32 s3, 10
    s_cselect_b32 s34, s16, s12
    s_cselect_b32 s35, s17, s13
    s_cselect_b32 s30, 0, 0x4000
    s_add_u32 m0, s30, {L_WAU}
""")
E("s_branch L_prefill\nL_wau1:")
for i in (4,5,6,7): ESTAMP(i)
if OPT["aulate"] == 1: lds_wait(L_CTR, 0xff0000, 0x050000, "au", sleep=2)
if OPT["aulate"] == 2: lds_wait(L_CTR, 0xff, 4, "au", sleep=1)
E(f"""
    s_mov_b32 s31, 4
L_wrun:
    global_load_lds_dwordx4 v10, s[34:35]
    global_load_lds_dwordx4 v11, s[34:35] offset:1024
    global_load_lds_dwordx4 v12, s[34:35] offset:2048
    global_load_lds_dwordx4 v13, s[34:35] offset:3072
    s_add_u32 m0, m0, 4096
    s_add_u32 s34, s34, 8192
    s_addc_u32 s35, s35, 0
    s_sub_u32 s31, s31, 1
    s_cmp_lg_u32 s31, 0
    s_cbranch_scc1 L_wrun
    s_cmp_ge_u32 s3, 10
    s_cbranch_scc1 L_wau2
    s_branch L_gemm
L_crow:
    v_and_b32 v5, 3, v5
    v_lshlrev_b32 v20, 4, v20
    v_lshl_add_u32 v5, v5, 8, v20
    s_add_u32 s32, s32, {256*256}
    s_mov_b32 m0, {L_C}
    v_add_u32 v5, s32, v5
    global_load_lds_dwordx4 v5, s[16:17]
""")
E("""
L_gemm:
""")
ESTAMP(6)
STAMP(1)
E(f"""
    v_bfe_u32 v3, v1, 2, 2                  ; r
    v_lshl_add_u32 v5, v2, 3, v3            ; 8g + r
    v_lshrrev_b32 v3, 1, v3
    v_and_b32 v6, 1, v2
    v_lshl_or_b32 v3, v6, 1, v3             ; sigma
    v_lshlrev_b32 v3, 5, v3
    v_lshl_add_u32 v10, v5, 7, v3
    v_and_b32 v3, 3, v1
    v_lshl_add_u32 v10, v3, 3, v10
    v_add_u32 v10, {L_WBV}, v10
    v_xor_b32 v11, 32, v10
    v_xor_b32 v12, 64, v10
    v_xor_b32 v13, 0x60, v10
    v_xor_b32 v3, v2, v4
    v_lshlrev_b32 v3, 4, v3
    v_lshl_add_u32 v14, v4, 8, v3
    s_lshl_b32 s31, s33, 12
    s_add_u32 s31, s31, {L_X}
    v_add_u32 v14, s31, v14
    v_xor_b32 v15, 64, v14
    v_xor_b32 v16, 0x80, v14
    v_xor_b32 v17, 0xc0, v14
    s_mul_i32 s30, s{S_HALF}, {G_HALF}
    s_add_u32 s30, s30, s73
    v_lshlrev_b32 v18, 10, v2
    v_lshl_add_u32 v18, v4, 4, v18
    v_add_u32 v18, s30, v18
    s_mul_i32 s30, s33, {16*NSTR}
    s_add_u32 s30, s30, {L_NODE}
    v_mul_u32_u24 v19, {4*NSTR}, v2
    v_lshl_add_u32 v19, v4, 3, v19
    v_add_u32 v19, s30, v19
    s_mov_b32 s40, {f32(LOG2E)}
    s_mov_b32 s42, {f32(2.0**32)}
    s_mov_b32 s44, 0x07060100
    s_mov_b32 s45, 0x07060302
    v_mov_b32 v8, {f32(2.0**-100)}
    s_cmp_eq_u32 s33, 4
    s_cselect_b32 s30, 0x100, 1
    v_mov_b32 v7, s30
    v_mov_b32 v6, 0
""")
ESTAMP(7)
E(f"""
    s_waitcnt vmcnt(0)
    s_mov_b64 exec, 1
    ds_add_u32 v6, v7 offset:{L_CTR}
    s_mov_b64 exec, -1
""")
STAMP(2)
XF = 20; WF = 36; AC1 = 84; AC2 = 116; PK = 148
for ks in range(4):
    E(f"ds_read_b128 v[{XF+4*ks}:{XF+4*ks+3}], v{14+ks}")
lds_wait(L_CTR, 0xff, 4, "g1")
STAMP(3)
FSTAMP(1)
units = [(gm, tau, t) for gm in range(2) for tau in range(4) for t in range(2)]
def wreads(u):
    gm, tau, t = units[u]
    b = WF + 16*(u % 3)
    r = []
    for ks in range(4):
        for rd in range(2):
            q = b + 4*ks + 2*rd
            r.append(f"ds_read_b64_tr_b16 v[{q}:{q+1}], v{10+tau} offset:{t*16384 + ks*4096 + rd*512}")
    return r
def wmfma(u):
    gm, tau, t = units[u]
    b = WF + 16*(u % 3); d = (AC1, AC2)[gm] + 16*t + 4*tau
    r = []
    for ks in range(4):
        c = "0" if ks == 0 else f"v[{d}:{d+3}]"
        r.append(f"v_mfma_f32_16x16x32_bf16 v[{d}:{d+3}], v[{XF+4*ks}:{XF+4*ks+3}], v[{b+4*ks}:{b+4*ks+3}], {c}")
    return r
def gemm(u0):
    reads = []
    for u in range(u0, u0+8): reads += wreads(u)
    mf = []
    for u in range(u0, u0+8): mf += wmfma(u)
    AHEAD = 14
    for x in reads[:AHEAD]: E(x)
    issued = AHEAD
    for i, m in enumerate(mf):
        E(f"s_waitcnt lgkmcnt({issued - 2*(i+1)})")
        E(m)
        for x in reads[issued:issued+2]: E(x)
        issued = min(len(reads), issued + 2)
def packG():
    b = AC1; h = AC1 + 16
    for i in range(8):
        E(f"v_pk_mul_f32 v[{b+2*i}:{b+2*i+1}], v[{b+2*i}:{b+2*i+1}], s[40:41] op_sel_hi:[1,0]")
    for i in range(8):
        E(f"v_pk_fma_f32 v[{h+2*i}:{h+2*i+1}], v[{h+2*i}:{h+2*i+1}], s[42:43], v[8:9] op_sel_hi:[1,0,0]")
    E(f"s_cmp_lg_u32 s{S_SAFE}, 0\ns_cbranch_scc1 L_nogst")
    FSTAMP(3)
    for r in range(4):
        o = PK + 4*r
        E(f"""
        v_cvt_pk_bf16_f32 v2, v{b+r}, v{b+4+r}
        v_cvt_pk_bf16_f32 v3, v{b+8+r}, v{b+12+r}
        v_xor_b32 v4, 0x80008000, v2
        v_xor_b32 v5, 0x80008000, v3
        v_sub_u32_sdwa v{h+r}, v{h+r}, sext(v2) dst_sel:DWORD dst_unused:UNUSED_PAD src0_sel:DWORD src1_sel:WORD_0
        v_sub_u32_sdwa v{h+4+r}, v{h+4+r}, sext(v2) dst_sel:DWORD dst_unused:UNUSED_PAD src0_sel:DWORD src1_sel:WORD_1
        v_sub_u32_sdwa v{h+8+r}, v{h+8+r}, sext(v3) dst_sel:DWORD dst_unused:UNUSED_PAD src0_sel:DWORD src1_sel:WORD_0
        v_sub_u32_sdwa v{h+12+r}, v{h+12+r}, sext(v3) dst_sel:DWORD dst_unused:UNUSED_PAD src0_sel:DWORD src1_sel:WORD_1
        v_perm_b32 v{o}, v{h+r}, v4, s44
        v_perm_b32 v{o+1}, v{h+4+r}, v4, s45
        v_perm_b32 v{o+2}, v{h+8+r}, v5, s44
        v_perm_b32 v{o+3}, v{h+12+r}, v5, s45
        global_store_dwordx4 v18, v[{o}:{o+3}], s[20:21] offset:{256*r} sc1
        """)
        FSTAMP(4+r)
    E("L_nogst:")
E("s_setprio 2")
gemm(0)
FSTAMP(2)
E(f"""
    v_mov_b32 v7, 1
    s_mov_b64 exec, 1
    ds_add_u32 v6, v7 offset:{L_RD1}
    s_mov_b64 exec, -1
""")
for tau in range(4): E(f"v_add_u32 v{10+tau}, {L_WAU - L_WBV}, v{10+tau}")
packG()
if OPT["gate"]:
    E(f"""
    s_mov_b64 exec, 1
    ds_add_u32 v6, v7 offset:{L_GST}
    s_mov_b64 exec, -1
    """)
E("s_setprio 0")
STAMP(4)
lds_wait(L_CTR, 0xff00, 0x300, "g2")
gemm(8)
get_tag("g", 164)
E(f"""
    s_mov_b32 s40, {f32(-LOG2E)}
    s_mov_b32 s46, 0x3f80
    s_lshl_b32 s30, s{S_P}, 7
    s_add_u32 s30, s30, {WS_FL2}
    v_mov_b32 v166, s30
    v_mov_b32 v164, s{S_TAG}
    v_mov_b32 v165, s{S_TAG8}
    s_nop 1
""")
a = AC2; u_ = AC2 + 16
for i in range(8):
    E(f"v_pk_mul_f32 v[{a+2*i}:{a+2*i+1}], v[{a+2*i}:{a+2*i+1}], s[40:41] op_sel_hi:[1,0]")
for i in range(8):
    E(f"v_pk_mul_f32 v[{u_+2*i}:{u_+2*i+1}], v[{u_+2*i}:{u_+2*i+1}], s[42:43] op_sel_hi:[1,0]")
STAMP(5)
E(f"""
    s_waitcnt vmcnt(0)
    s_mov_b64 exec, 1
    ds_add_rtn_u32 v5, v6, v7 offset:{L_DONE2}
    s_waitcnt lgkmcnt(0)
    v_readfirstlane_b32 s30, v5
    s_add_u32 s30, s30, s{S_SAFE}
    s_cmp_lg_u32 s30, 4
    s_cbranch_scc1 L_nofl2
    global_store_dwordx2 v166, v[164:165], s[20:21] sc1
L_nofl2:
    s_mov_b64 exec, -1
""")
STAMP(6)
for r in range(4):
    E(f"v_cvt_pk_bf16_f32 v{AC1+2*r}, v{a+r}, v{a+4+r}\nv_cvt_pk_bf16_f32 v{AC1+2*r+1}, v{a+8+r}, v{a+12+r}")
for r in range(4):
    for tau in range(4):
        d = 24 + 8*r + 2*tau
        E(f"v_cvt_f64_f32 v[{d}:{d+1}], v{u_+4*tau+r}")
lds_wait(L_RD1, 0xff, 5, "d2")
for r in range(4):
    E(f"""
    ds_write_b64 v19, v[{AC1+2*r}:{AC1+2*r+1}] offset:{NSTR*r + 512}
    ds_write_b64 v19, v[{24+8*r}:{25+8*r}] offset:{NSTR*r}
    ds_write_b64 v19, v[{26+8*r}:{27+8*r}] offset:{NSTR*r + 128}
    ds_write_b64 v19, v[{28+8*r}:{29+8*r}] offset:{NSTR*r + 256}
    ds_write_b64 v19, v[{30+8*r}:{31+8*r}] offset:{NSTR*r + 384}
    """)
main_consts()
STAMP(7)
E(f"""
    s_cmp_lg_u32 s{S_SAFE}, 0
    s_cbranch_scc1 L_b4
    s_mul_i32 s30, s33, {25*256}
    s_lshl_b32 s31, s{S_HALF}, 7
    s_add_u32 s30, s30, s31
    s_add_u32 s30, s30, {WS_FL2}
    v_lshl_add_u32 v3, v1, 8, s30
    s_mov_b64 exec, 0x1ffffff
    s_mov_b32 s31, {POLL_MAX}
L_p2:
    {f"s_sleep {OPT['p2sleep']}" if OPT['p2sleep'] else ""}
    global_load_dwordx2 v[60:61], v3, s[20:21] sc1
    s_waitcnt vmcnt(0)
    v_cmp_ne_u32 vcc, s{S_TAG}, v60
    v_cmp_ne_u32 s[48:49], s{S_TAG8}, v61
    s_sub_u32 s31, s31, 1
    s_cmp_eq_u32 s31, 0
    s_cbranch_scc1 L_p2d
    s_or_b64 exec, vcc, s[48:49]
    s_cbranch_scc1 L_p2
L_p2d:
    s_mov_b64 exec, -1
""")
if OPT["gpf"]:
    E(f"""
    s_mul_i32 s30, s{S_HALF}, {G_HALF}
    s_mul_i32 s31, s33, {2000*256}
    s_add_u32 s30, s30, s31
    s_lshr_b32 s31, s2, 3
    s_mul_i32 s31, s31, {125*128}
    s_add_u32 s30, s30, s31
    v_lshl_add_u32 v3, v1, 7, s30
    v_add_u32 v2, {61*128}, v3
    {"s_bfm_b64 exec, %d, 0" % OPT["gpf"] if OPT["gpf"] < 64 else ""}
    global_load_dword v21, v3, s[20:21] sc1
    {"global_load_dword v29, v2, s[20:21] sc1" if OPT["gpf"] > 64 else ""}
    s_mov_b64 exec, -1
    """)
E(f"""
    s_branch L_b4
L_prefill:
""")
ESTAMP(3)
E(f"""
    v_subrev_u32 v30, 640, v0               ; t = 0..127
    v_lshlrev_b32 v31, 4, v30
    v_mov_b32 v32, {NULL_SRC}
    v_mov_b32 v33, {NULL_SRC}
    v_mov_b32 v34, {NULL_SRC}
    v_mov_b32 v35, {NULL_SRC}
    v_mov_b32 v36, 0
    v_mov_b32 v37, 0
    v_mov_b32 v38, 0
    v_mov_b32 v39, 0
    v_add_u32 v40, {L_SORT + SORTB}, v31
""")
def cover(n): return list(range(0, n - 2048, 2048)) + [n - 2048]
for o in cover(81*SSTR): E(f"ds_write_b128 v31, v[32:35] offset:{L_SRC + o}")
for o in cover(L_EAEND - (L_SORT + SORTB)): E(f"ds_write_b128 v40, v[36:39] offset:{o}")
E(f"""
    v_mov_b32 v32, {L_SRC + 80*SSTR}
    v_mov_b32 v33, {L_DUM}
    v_mov_b32 v34, {L_SRC + 80*SSTR}
    v_mov_b32 v35, {L_DUM}
""")
for o in cover(L_SRC - L_LIST - 8*NSTATIC): E(f"ds_write_b128 v31, v[32:35] offset:{L_LIST + 8*NSTATIC + o}")
E(f"""
    v_mul_u32_u24 v42, {SSTR}, v30
    v_add_u32 v42, {L_SRC}, v42
    v_mul_u32_u24 v43, {NSTR}, v30
    v_add_u32 v43, {L_NODE}, v43
    v_lshlrev_b32 v41, 2, v30
    ds_write_b32 v41, v42 offset:{L_CNT}
    v_add_u32 v41, {L_DUM + 256}, v41
    ds_write_b32 v41, v36
    v_lshlrev_b32 v41, 3, v30
    v_cmp_gt_u32 vcc, {NB}, v30
    s_mov_b64 exec, vcc
    ds_write_b64 v41, v[42:43] offset:{L_LIST}
    v_add_u32 v42, 32, v42
    ds_write_b64 v41, v[42:43] offset:{L_LIST + 8*NB}
    v_add_u32 v42, 32, v42
    ds_write_b64 v41, v[42:43] offset:{L_LIST + 16*NB}
    s_mov_b64 exec, -1
    s_branch L_wau1
L_wau2:
""")
E(f"""
    v_mov_b32 v48, 0
    v_mov_b32 v21, 0x100
""")
STAMP(1)
E(f"""
    s_waitcnt vmcnt(0)
""")
STAMP(2)
E(f"""
    s_mov_b64 exec, 1
    ds_add_u32 v48, v21 offset:{L_CTR}
    s_mov_b64 exec, -1
""")
get_tag("w", 4)
E(f"""
    s_branch L_rec
L_sort:
""")
ESTAMP(5)
STAMP(1)
E(f"""
    s_mov_b32 s33, s3
    s_cmp_lg_u32 s{S_SAFE}, 0
    s_cbranch_scc1 L_sortskip
    v_mov_b32 v21, 1
    s_mov_b32 s31, 52429
    s_movk_i32 s32, -20
    v_lshlrev_b32 v31, 3, v1
    v_lshlrev_b32 v33, 4, v0
    s_mul_i32 s30, s{S_P}, {SORTB}
    s_add_u32 s30, s30, {WS_REC}
    v_add_u32 v32, s30, v33
    v_add_u32 v34, 5120, v32
    v_add_u32 v35, 10240, v32
    v_add_u32 v42, 15360, v32
    s_lshl_b32 s30, s{S_P}, 10
    s_add_u32 s30, s30, {WS_ROW}
    v_lshl_add_u32 v30, v1, 4, s30
    s_mov_b32 s34, {POLL_MAX}
    s_setprio 3
""")
ESTAMP(6)
E("s_waitcnt vmcnt(4)")
ESTAMP(7)
STAMP(2)
FSTAMP(1)
for i in range(4):
    E(f"""
    v_mul_u32_u24 v{22+i}, s31, v{4+i}
    v_lshrrev_b32 v{22+i}, 22, v{22+i}
    v_lshlrev_b32 v{22+i}, 2, v{22+i}        ; bucket*4
    ds_add_rtn_u32 v{26+i}, v{22+i}, v21 offset:{L_SCNT}
    """)
E(f"""
    s_mov_b64 exec, 1
    s_cmp_lg_u32 s3, 0
    s_cbranch_scc1 L_notag
    s_waitcnt vmcnt(3)
    ds_write_b32 v48, v43 offset:{L_SCNT + 125*4}
L_notag:
    ds_add_u32 v48, v21 offset:{L_SCNT + 127*4}
    s_mov_b64 exec, -1
""")
for i in range(4):
    E(f"""
    v_mad_i32_i24 v{4+i}, v{22+i}, s32, v{4+i}
    v_lshlrev_b32 v{4+i}, 24, v{4+i}
    """)
E(f"""
L_s1:
    ds_read_b32 v38, v48 offset:{L_SCNT + 127*4}
    ds_read_b64 v[36:37], v31 offset:{L_SCNT}
    s_sub_u32 s34, s34, 1
    s_cbranch_scc1 L_s1d
    s_waitcnt lgkmcnt(0)
    v_readfirstlane_b32 s30, v38
    s_cmp_lg_u32 s30, 5
    s_cbranch_scc1 L_s1
L_s1d:
""")
FSTAMP(2)
E(f"""
    v_add_u32 v38, v36, v37
    v_add_u32 v39, v36, v37
    v_readlane_b32 s{S_TAGRAW}, v37, 62
""")
scan(39)
E(f"""
    v_sub_u32 v40, v39, v38
    v_add_u32 v41, v40, v36
    ds_write_b64 v31, v[40:41] offset:{L_SOFF}
""")
for i in range(4):
    E(f"ds_read_b32 v{22+i}, v{22+i} offset:{L_SOFF}")
finish_tag()
E(f"""
    s_cmp_lg_u32 s3, 0
    s_cbranch_scc1 L_nopub
    s_lshl_b32 s35, s{S_TAG8}, 24
    v_mov_b32 v45, s{S_TAG}
    v_mov_b32 v47, s{S_TAG}
    v_lshl_or_b32 v44, v36, 12, v40
    v_lshl_or_b32 v46, v37, 12, v41
    v_or_b32 v44, s35, v44
    v_or_b32 v46, s35, v46
    global_store_dwordx4 v30, v[44:47], s[20:21] sc1
    s_waitcnt vmcnt(1)
    s_branch L_pub
L_nopub:
    s_waitcnt vmcnt(0)
L_pub:
""")
STAMP(4)
FSTAMP(3)
for i in range(4):
    E(f"""
    v_lshl_or_b32 v{52+2*i}, v{8+i}, 8, v{4+i}
    v_mov_b32 v{53+2*i}, s{S_TAG}
    v_add_u32 v{26+i}, {L_SORT//16}, v{26+i}
    """)
for i in range(4):
    E(f"""
    s_waitcnt lgkmcnt(3)
    v_add_lshl_u32 v{22+i}, v{22+i}, v{26+i}, 4
    ds_write2_b64 v{22+i}, v[{12+2*i}:{13+2*i}], v[{52+2*i}:{53+2*i}] offset0:0 offset1:1
    """)
E(f"""
    s_mov_b64 exec, 1
    ds_add_u32 v48, v21 offset:{L_SCNT + 126*4}
    s_mov_b64 exec, -1
""")
FSTAMP(4)
E(f"""
L_s2:
    ds_read_b32 v38, v48 offset:{L_SCNT + 126*4}
    ds_read_b128 v[4:7], v33 offset:{L_SORT}
    s_sub_u32 s34, s34, 1
    s_cbranch_scc1 L_s2d
    s_waitcnt lgkmcnt(1)
    v_readfirstlane_b32 s30, v38
    s_cmp_lg_u32 s30, 5
    s_cbranch_scc1 L_s2
L_s2d:
""")
FSTAMP(5)
E(f"""
    ds_read_b128 v[8:11], v33 offset:{L_SORT+5120}
    ds_read_b128 v[12:15], v33 offset:{L_SORT+10240}
    ds_read_b128 v[16:19], v33 offset:{L_SORT+15360}
    s_waitcnt lgkmcnt(3)
    global_store_dwordx4 v32, v[4:7], s[20:21] sc1
    s_waitcnt lgkmcnt(2)
    global_store_dwordx4 v34, v[8:11], s[20:21] sc1
    s_waitcnt lgkmcnt(1)
    global_store_dwordx4 v35, v[12:15], s[20:21] sc1
    s_waitcnt lgkmcnt(0)
    global_store_dwordx4 v42, v[16:19], s[20:21] sc1
""")
FSTAMP(6)
E(f"""
    ds_write_b128 v33, v[48:51] offset:{L_SORT}
    ds_write_b128 v33, v[48:51] offset:{L_SORT+5120}
    ds_write_b128 v33, v[48:51] offset:{L_SORT+10240}
    ds_write_b128 v33, v[48:51] offset:{L_SORT+15360}
""")
STAMP(3)
FSTAMP(7)
NP = 9
RA = 72; RB = RA + 4*NP; RAD = RB + 4*NP
E(f"""
    s_branch L_sortdone
L_sortskip:
    s_waitcnt vmcnt(0)
L_sortdone:
    v_mov_b32 v21, 0x10000
    s_mov_b64 exec, 1
    ds_add_u32 v48, v21 offset:{L_CTR}
    s_mov_b64 exec, -1
L_rec:
    s_mov_b32 s40, {f32(-LOG2E)}
    s_mov_b32 s46, 0x3f80
    s_cmp_lg_u32 s{S_SAFE}, 0
    s_cbranch_scc1 L_recskip
    v_and_b32 v34, 15, v1                   ; j
    v_lshrrev_b32 v2, 4, v1
    v_mul_u32_u24 v2, {NP}, v2
    s_mul_i32 s30, s33, {4*NP}
    v_add3_u32 v35, v2, v34, s30
    s_lshl_b32 s30, s{S_BUCK}, 3
    s_add_u32 s30, s30, {WS_ROW}
    v_lshl_add_u32 v36, v35, 10, s30
    v_cmp_gt_u32 s[66:67], {NP}, v34
    v_cmp_gt_u32 vcc, {NCHUNK}, v35
    s_and_b64 s[66:67], s[66:67], vcc
    v_mul_u32_u24 v35, {CHUNK}, v35
    v_add_u32 v35, {WS_REC//16}, v35
    v_lshlrev_b32 v38, 4, v34               ; 16j
    v_not_b32 v37, v34
    v_subrev_u32 v39, 16, v37
    v_mov_b32 v40, 0
    v_mov_b32 v41, 0
    v_mov_b32 v42, 4
""")
STAMP(5)
E(f"""
    s_mov_b64 exec, s[66:67]
    s_mov_b32 s34, {POLL_MAX}
L_p1:
    global_load_dwordx2 v[40:41], v36, s[20:21] sc1
    s_waitcnt vmcnt(0)
    v_cmp_ne_u32 vcc, s{S_TAG}, v41
    v_cmp_ne_u32_sdwa s[48:49], v40, s{S_TAG8} src0_sel:BYTE_3 src1_sel:DWORD
    s_sub_u32 s34, s34, 1
    s_cbranch_scc1 L_p1d
    s_or_b64 exec, vcc, s[48:49]
    s_cbranch_scc1 L_p1
L_p1d:
    s_mov_b64 exec, -1
""")
STAMP(6)
if OPT["cnt"]: E(f"s_sub_u32 s{ST0+2}, {POLL_MAX+1}, s34\ns_mov_b32 s34, {POLL_MAX}")
if OPT["gate"]: lds_wait(L_GST, 0xff, 5, "gt")
if OPT["rdelay"]: E(f"s_sleep {OPT['rdelay']}"); STAMP(5)
E(f"""
    v_and_b32 v41, 0xfff, v40
    v_bfe_u32 v40, v40, 12, 12              ; count
    v_add_lshl_u32 v41, v41, v35, 4
    v_cmp_lt_u32 vcc, 32, v40
    v_cmp_lt_u32 s[68:69], 16, v40
    s_cbranch_vccnz L_toobig
""")
MK = 48
for p in range(NP):
    r = RA + 4*p
    E(f"""
    v_add_co_u32_dpp v2, vcc, v40, v37 row_newbcast:{p} row_mask:0xf bank_mask:0xf
    v_add_u32_dpp v{RAD+p}, v41, v38 row_newbcast:{p} row_mask:0xf bank_mask:0xf
    s_mov_b64 s[{48+2*p}:{49+2*p}], vcc
    s_mov_b64 exec, vcc
    global_load_dwordx4 v[{r}:{r+3}], v{RAD+p}, s[20:21]{SC1 if OPT["rsc1"] else ""}
    s_mov_b64 exec, -1
    """)
E(f"""
    s_or_b32 s68, s68, s69
    s_lshr_b32 s69, s68, 16
    s_or_b32 s68, s68, s69
    s_cbranch_scc0 L_noex
""")
for p in range(NP):
    r = RB + 4*p
    E(f"""
    s_bitcmp1_b32 s68, {p}
    s_cbranch_scc0 L_nx{p}
    v_add_co_u32_dpp v2, vcc, v40, v39 row_newbcast:{p} row_mask:0xf bank_mask:0xf
    s_mov_b64 exec, vcc
    global_load_dwordx4 v[{r}:{r+3}], v{RAD+p}, s[20:21] offset:256 sc1
    s_mov_b64 exec, -1
L_nx{p}:
    """)
E("L_noex:")
STAMP(7)
lds_wait(L_CTR, 0xffffff, 0x050304, "r1")
main_consts(28)
retries = []
def rank(r, m, ad, off, tag):
    E(f"""
    s_mov_b64 exec, {m}
    v_cmp_ne_u32 vcc, s{S_TAG}, v{r+3}
    s_cbranch_vccnz L_rt{tag}
L_rr{tag}:
    v_mul_u32_u24_sdwa v{r+3}, v42, v{r+2} dst_sel:DWORD dst_unused:UNUSED_PAD src0_sel:DWORD src1_sel:BYTE_3
    v_and_b32 v{r+2}, {OPT['srcmask']}, v{r+2}
    ds_add_rtn_u32 v{r+3}, v{r+3}, v42 offset:{L_CNT}
    """)
    retries.append(f"""
L_rt{tag}:
    s_mov_b64 exec, vcc
    global_load_dwordx4 v[{r}:{r+3}], v{ad}, s[20:21] offset:{off} sc1
    s_sub_u32 s34, s34, 1
    s_cbranch_scc1 L_toobig
    s_waitcnt vmcnt(0)
    v_cmp_ne_u32 vcc, s{S_TAG}, v{r+3}
    s_cbranch_vccnz L_rt{tag}
    s_mov_b64 exec, {m}
    s_branch L_rr{tag}
    """)
def put(r, m):
    E(f"""
    s_mov_b64 exec, {m}
    v_lshlrev_b32 v2, 1, v{r+3}
    ds_write_b32 v{r+3}, v{r+2}
    ds_write_b64 v2, v[{r}:{r+1}] offset:{L_EA - 2*L_SRC}
    """)
LAG = 2
for p in range(NP + LAG):
    if p < NP:
        E(f"s_waitcnt vmcnt({NP-1-p})")
        rank(RA + 4*p, f"s[{48+2*p}:{49+2*p}]", RAD+p, 0, f"a{p}")
    q = p - LAG
    if q >= 0:
        younger = 0
        for j in range(q+1, min(p, NP-1)+1): younger += 1
        for j in range(max(0, q-LAG), q): younger += 2
        E(f"s_waitcnt lgkmcnt({younger})")
        put(RA + 4*q, f"s[{48+2*q}:{49+2*q}]")
E(f"""
    s_mov_b64 exec, -1
    {f"s_sub_u32 s{ST0+4}, {POLL_MAX+1}, s34" if OPT["cnt"] else ""}
    s_cmp_eq_u32 s68, 0
    s_cbranch_scc1 L_b4
""")
for p in range(NP):
    r = RB + 4*p
    E(f"""
    s_bitcmp1_b32 s68, {p}
    s_cbranch_scc0 L_ny{p}
    v_add_co_u32_dpp v2, vcc, v40, v39 row_newbcast:{p} row_mask:0xf bank_mask:0xf
    s_mov_b64 s[48:49], vcc
    """)
    rank(r, "s[48:49]", RAD+p, 256, f"b{p}")
    E("s_waitcnt lgkmcnt(0)")
    put(r, "s[48:49]")
    E(f"s_mov_b64 exec, -1\nL_ny{p}:")
E(f"""
    s_branch L_b4
L_toobig:
    s_mov_b64 exec, -1
    v_mov_b32 v2, 0
    ds_write_b32 v2, v42 offset:{L_FLAG}
    s_waitcnt vmcnt(0)
L_recskip:
""")
lds_wait(L_CTR, 0xffffff, 0x050304, "r2")
main_consts()
E(f"""
L_b4:
    s_setprio 0
    s_mul_i32 s30, s{S_HALF}, {G_HALF}
    s_add_u32 s36, s20, s30
    s_addc_u32 s37, s21, 0
    s_mov_b32 s38, {OPT['nrec'] or G_HALF}
    s_mov_b32 s39, 0x20000
    s_mov_b32 s44, {2*LSTR}
    s_mov_b32 s45, {2*LSTR}
    ds_read_b64 v[60:61], v{LP}
    ds_read_b32 v62, v{LP+1}
    ds_read_b32 v63, v{LP} offset:{LSTR}
    ds_read_b32 v{WN}, v{LP} offset:{LSTR + 4}
    ds_read_b32 v{WE}, v{LP+1} offset:{LSTR}
    ds_read_b32 v{WS_}, v{LP} offset:{2*LSTR}
    s_waitcnt lgkmcnt(0)
    v_add_u32 v{AG}, v61, v{LN8}
    v_lshl_add_u32 v62, v62, 1, v{EAC}
""")
if OPT["warm"]:
    E(f"""
    s_barrier
    s_lshr_b32 s30, s2, 3
    s_mul_i32 s30, s30, 98304
    v_lshl_add_u32 v2, v0, 7, s30
    buffer_load_dword v3, v2, s[36:39], 0 offen sc1
    s_waitcnt vmcnt(0)
    s_sleep 40
    """)
STAMP(8)
E(f"""
    s_barrier                               ; B4
    s_cmp_lg_u32 s{S_SAFE}, 0
    s_cbranch_scc1 L_safe
    ds_read_b128 v[{OFS}:{OFS+3}], v60
    ds_read_b128 v[{OFS+4}:{OFS+7}], v60 offset:16
    ds_read_b128 v[{T}:{T+3}], v63
    ds_read_b128 v[{T+4}:{T+7}], v63 offset:16
    ds_read_b64 v[{XA}:{XA+1}], v{AG} offset:512
    ds_read_b64 v[{EA}:{EA+1}], v62
    s_cmp_lg_u32 s3, {NW-1}
    s_cbranch_scc1 L_nobuild
    v_lshlrev_b32 v2, 3, v1
    v_mov_b32 v3, 0
    ds_read_b64 v[64:65], v2 offset:{L_CNT}
    ds_read_b32 v71, v3 offset:{L_FLAG}
    v_mul_u32_u24 v66, {2*SSTR}, v1
    v_add_u32 v66, {L_SRC + 96}, v66
    v_add_u32 v68, {SSTR}, v66
    v_mul_u32_u24 v67, {2*NSTR}, v1
    v_add_u32 v67, {L_NODE}, v67
    v_add_u32 v69, {NSTR}, v67
    s_waitcnt lgkmcnt(0)
    v_sub_u32 v64, v64, v66 clamp
    v_sub_u32 v65, v65, v68 clamp
    v_max_u32 v70, v64, v65
    v_cmp_lt_u32 vcc, 160, v70
    v_cmp_ne_u32 s[48:49], 0, v71
    v_add_u32 v64, 31, v64
    v_add_u32 v65, 31, v65
    s_or_b64 vcc, vcc, s[48:49]
    s_cbranch_scc1 L_bad
    v_lshrrev_b32 v64, 5, v64
    v_lshrrev_b32 v65, 5, v65
    v_add_u32 v70, v64, v65
    v_add_u32 v71, v64, v65
""")
scan(71)
E(f"""
    v_sub_u32 v70, v71, v70
    v_lshlrev_b32 v70, 3, v70
    v_readlane_b32 s30, v71, 63
    v_lshl_add_u32 v71, v64, 3, v70
""")
for b in range(5):
    E(f"""
    v_cmp_lt_u32 vcc, {b}, v64
    v_cmp_lt_u32 s[48:49], {b}, v65
    s_mov_b64 exec, vcc
    ds_write_b64 v70, v[66:67] offset:{L_LIST + 8*NSTATIC + 8*b}
    s_mov_b64 exec, s[48:49]
    ds_write_b64 v71, v[68:69] offset:{L_LIST + 8*NSTATIC + 8*b}
    s_mov_b64 exec, -1
    """)
    if b < 4: E("v_add_u32 v66, 32, v66\nv_add_u32 v68, 32, v68")
E(f"""
    s_add_u32 s30, s30, {NSTATIC + 3}
    s_lshr_b32 s30, s30, 2
    s_branch L_built
L_bad:
    s_mov_b32 s30, -1
L_built:
    v_mov_b32 v2, s30
    ds_write_b32 v3, v2 offset:{L_NST}
    s_cmp_lg_u32 s{S_P}, 0
    s_cbranch_scc1 L_nobuild
    v_mov_b32 v2, s{S_TAG}
    v_mov_b32 v3, {WS_TAG}
    s_mov_b64 exec, 1
    global_store_dword v3, v2, s[20:21]
    s_mov_b64 exec, -1
L_nobuild:
    s_waitcnt lgkmcnt(0)
""")
for i, o in enumerate((OFS, OFS+4, T, T+4)):
    E(oadd(o)); E(oadd(o+2))
    if not OPT["nogather"]:
        for q in range(4): E(gload(G + 16*i + 4*q, o+q))
STAMP(9)
E(m_a(D0)); E(m_e(D0, 0))
E(f"""
    v_mov_b32 v2, 0
    s_mov_b32 s31, {POLL_MAX}
    s_waitcnt vmcnt(12)
""")
E(m_s(D0, A1, G)); E(m_s(D0, A2, G+8))
E(f"""
L_wn:
    ds_read_b32 v3, v2 offset:{L_NST}
    s_waitcnt lgkmcnt(0)
    v_readfirstlane_b32 s{S_N}, v3
    s_sub_u32 s31, s31, 1
    s_cmp_eq_u32 s31, 0
    s_cbranch_scc1 L_wnd
    s_cmp_eq_u32 s{S_N}, 0
    s_cbranch_scc1 L_wn
L_wnd:
    s_cmp_gt_u32 s{S_N}, {0 if OPT["force_safe"] else 160}
    s_cbranch_scc1 L_gosafe
    s_add_u32 s{S_K}, s3, {2*NW}
    s_add_u32 s28, s{S_N}, {2*NW}
    s_mov_b32 s{S_IT}, 0
    s_nop 3
""")
if OPT["prio"]: E("s_setprio 3")
STAMP(10)
if OPT["stamps"]: E(f"s_memtime s[{ST0+24}:{ST0+25}]\ns_waitcnt lgkmcnt(0)")
E("L_A:")
body(0, True)
E(f"s_cmp_ge_u32 s{S_K}, s{S_N}\ns_cbranch_scc1 L_Bt")
body(1, True)
if OPT["prio"]:
    E(f"""
    s_add_u32 s{S_IT}, s{S_IT}, 1
    s_setprio 0
    s_cmp_gt_u32 s{S_IT}, 2
    s_cbranch_scc1 L_pr
    s_setprio 1
    s_cmp_eq_u32 s{S_IT}, 2
    s_cbranch_scc1 L_pr
    s_setprio 2
L_pr:
    """)
E(f"s_cmp_lt_u32 s{S_K}, s{S_N}\ns_cbranch_scc1 L_A")
E("L_At:")
body(0, False)
E(f"s_cmp_ge_u32 s{S_K}, s28\ns_cbranch_scc1 L_mdone")
E("L_Bt:")
body(1, False)
if OPT["prio"]: E("s_setprio 0")
E(f"s_cmp_lt_u32 s{S_K}, s28\ns_cbranch_scc1 L_At")
E(f"""
L_mdone:
    s_waitcnt lgkmcnt(0)
""")
STAMP(11)
if OPT["stamps"]:
    E(f"s_memtime s[28:29]\ns_waitcnt lgkmcnt(0)\ns_sub_u32 s{ST0+24}, s28, s{ST0+24}")
E(f"""
    v_lshrrev_b32 v2, 5, v0
    v_and_b32 v3, 31, v0
    v_mul_u32_u24 v4, {NSTR}, v2
    v_lshl_add_u32 v4, v3, 4, v4
    v_add_u32 v4, {L_NODE}, v4
    s_mul_i32 s30, s{S_BUCK}, {NB*256}
    s_lshl_b32 s31, s{S_HALF}, 7
    s_add_u32 s30, s30, s31
    v_lshlrev_b32 v3, 2, v3
    v_lshl_add_u32 v5, v2, 8, v3
    v_add_u32 v5, s30, v5
    v_add_u32 v6, {24*256}, v5
    v_add_u32 v7, {48*256}, v5
    v_add_u32 v8, {72*256}, v5
    s_mov_b32 s32, {f32(2.0**-32)}
    s_mov_b32 s34, {f32(-LOG2E * 2.0**-32)}
    v_mov_b32 v9, 0x207
    s_barrier                               ; B5
""")
OSC = {0: "", 1: " sc1", 2: " nt"}[OPT["osc"]]
def epi(us):
    for u in us: E(f"ds_read_b128 v[{12+4*u}:{15+4*u}], v4 offset:{24*NSTR*u}")
    E("s_waitcnt lgkmcnt(0)")
    for u in us: E(f"v_cvt_f32_f64 v{28+2*u}, v[{12+4*u}:{13+4*u}]\nv_cvt_f32_f64 v{29+2*u}, v[{14+4*u}:{15+4*u}]")
    for u in us: E(f"v_pk_mul_f32 v[{36+2*u}:{37+2*u}], v[{28+2*u}:{29+2*u}], s[34:35] op_sel_hi:[1,0]")
    for u in us: E(f"v_exp_f32 v{36+2*u}, v{36+2*u}\nv_exp_f32 v{37+2*u}, v{37+2*u}")
    for u in us: E(f"v_pk_mul_f32 v[{28+2*u}:{29+2*u}], v[{28+2*u}:{29+2*u}], s[32:33] op_sel_hi:[1,0]")
    for u in us: E(f"v_pk_add_f32 v[{36+2*u}:{37+2*u}], v[{36+2*u}:{37+2*u}], 1.0 op_sel_hi:[1,0]")
    for u in us: E(f"v_rcp_f32 v{36+2*u}, v{36+2*u}\nv_rcp_f32 v{37+2*u}, v{37+2*u}")
    E("v_pk_add_f32 v[10:11], v[28:29], v[30:31]")
    for u in us: E(f"v_pk_mul_f32 v[{36+2*u}:{37+2*u}], v[{28+2*u}:{29+2*u}], v[{36+2*u}:{37+2*u}]")
    for u in us: E(f"v_cvt_pk_bf16_f32 v{44+u}, v{36+2*u}, v{37+2*u}\nglobal_store_dword v{5+u}, v{44+u}, s[18:19]{OSC}")
    for u in us[2:]: E(f"v_pk_add_f32 v[10:11], v[10:11], v[{28+2*u}:{29+2*u}]")
E("s_cmp_ge_u32 s3, 4\ns_cbranch_scc1 L_e3")
epi([0, 1, 2, 3])
E("s_branch L_e4\nL_e3:")
epi([0, 1, 2])
E(f"""
L_e4:
    v_add_f32 v10, v10, v11
    v_cmp_class_f32 vcc, v10, v9
    v_mov_b32 v2, 0
    s_cmp_lg_u32 s{S_SAFE}, 0
    s_cbranch_scc1 L_fin
    {"s_branch" if OPT["nosafe"] else "s_cbranch_vccz"} L_e5
    ds_write_b32 v2, v9 offset:{L_FLAG}
    s_waitcnt lgkmcnt(0)
L_e5:
    s_barrier                               ; B6
    ds_read_b32 v2, v2 offset:{L_FLAG}
    s_waitcnt lgkmcnt(0)
    v_readfirstlane_b32 s30, v2
    s_cmp_lg_u32 s30, 0
    s_cbranch_scc1 L_gosafe
L_fin:
""")
if OPT["stamps"]:
    E("s_waitcnt vmcnt(0)"); STAMP(13); STAMP_OUT()
if OPT["probe"] >= 0:
    T_ = ST0 + 2*OPT["probe"]
    E(f"""
    s_cmp_lg_u32 s3, {OPT["pw"]}
    s_cbranch_scc1 L_end
    s_cmp_lg_u32 s2, {OPT["pg"] if OPT["pg"] >= 0 else "s2"}
    s_cbranch_scc1 L_end
    s_sub_u32 s30, s{T_}, s{ST0}
    s_lshl_b32 s30, s30, 2
    s_add_u32 s30, s30, 3000
    s_min_u32 s30, s30, 20000
L_spin:
    s_memrealtime s[28:29]
    s_waitcnt lgkmcnt(0)
    s_sub_u32 s28, s28, s{ST0}
    s_cmp_lt_u32 s28, s30
    s_cbranch_scc1 L_spin
    """)
E(f"""
L_end:
    s_endpgm
L_gosafe:
    s_mov_b32 s{S_SAFE}, 8
    s_setprio 0
    s_waitcnt vmcnt(0) lgkmcnt(0)
    s_barrier
    s_branch L_restart
""")
for r in retries: E(r)
E(f"""
L_safe:
    v_and_b32 v2, 15, v1
    v_lshlrev_b32 v3, 1, v2
    v_add_u32 v3, {L_C}, v3
""")
for k in range(4):
    for s in range(4):
        E(f"ds_read_u16 v{80+4*k+s}, v3 offset:{128*k + 32*s}")
E("s_waitcnt lgkmcnt(0)")
for i in range(16):
    E(f"v_lshlrev_b32 v{80+i}, 16, v{80+i}\nv_mul_f32 v{80+i}, s40, v{80+i}")
E(f"""
    v_lshrrev_b32 v24, 4, v1
    s_movk_i32 s33, {NSTR}
    v_add_u32 v25, {L_NODE}, v{LN8}
    s_mov_b32 s34, s3
L_scell:
    s_lshl_b32 s30, s34, 10
    s_lshl_b32 s31, s{S_BUCK}, 3
    s_add_u32 s30, s30, s31
    s_add_u32 s30, s30, {WS_ROW}
    v_mov_b32 v26, s30
    global_load_dword v27, v26, s[20:21] sc1
    s_mul_i32 s30, s34, {CHUNK}
    s_add_u32 s30, s30, {WS_REC//16}
    s_waitcnt vmcnt(0)
    v_bfe_u32 v28, v27, 12, 12              ; count
    v_and_b32 v27, 0xfff, v27
    v_add_u32 v27, s30, v27
    v_mov_b32 v29, v24
L_srec:
    v_cmp_gt_u32 vcc, v28, v29
    s_and_saveexec_b64 s[48:49], vcc
    s_cbranch_execz L_snext
    v_add_lshl_u32 v30, v27, v29, 4
    s_mov_b32 s31, {POLL_MAX}
L_sget:
    global_load_dwordx4 v[32:35], v30, s[20:21] sc1
    s_sub_u32 s31, s31, 1
    s_cbranch_scc1 L_snext
    s_waitcnt vmcnt(0)
    v_cmp_ne_u32 vcc, s{S_TAG}, v35
    s_cbranch_vccnz L_sget
    v_and_b32 v30, 0x3fff00, v34
    v_add_u32 v30, v30, v{LN16}
    buffer_load_dwordx4 v[36:39], v30, s[36:39], 0 offen sc1
    v_lshrrev_b32 v31, 24, v34
    v_mad_u32_u24 v31, v31, s33, v25
    ds_read_b64 v[40:41], v31 offset:512
    v_lshlrev_b32 v44, 16, v32
    v_and_b32 v45, 0xffff0000, v32
    v_lshlrev_b32 v46, 16, v33
    v_and_b32 v47, 0xffff0000, v33
    s_waitcnt vmcnt(0) lgkmcnt(0)
    v_lshlrev_b32 v48, 16, v40
    v_and_b32 v49, 0xffff0000, v40
    v_lshlrev_b32 v50, 16, v41
    v_and_b32 v51, 0xffff0000, v41
""")
for s in range(4):
    E(f"v_lshlrev_b32 v52, 16, v{36+s}\nv_add_f32 v{48+s}, v{48+s}, v52")
    for k in range(4):
        E(f"v_fmac_f32 v{48+s}, v{44+k}, v{80+4*k+s}")
for s in range(4): E(f"v_exp_f32 v{48+s}, v{48+s}")
E("s_nop 0")
for s in range(4): E(f"v_add_f32 v{48+s}, 1.0, v{48+s}")
for s in range(4): E(f"v_rcp_f32 v{48+s}, v{48+s}")
E("s_nop 0")
for s in range(4): E(f"v_mul_f32 v{48+s}, v{48+s}, v{36+s}")
for s in range(4): E(f"v_cvt_f64_f32 v[{54+2*s}:{55+2*s}], v{48+s}")
for s in range(4): E(f"ds_add_f64 v31, v[{54+2*s}:{55+2*s}] offset:{128*s}")
E(f"""
    s_mov_b64 exec, s[48:49]
    v_add_u32 v29, 4, v29
    s_branch L_srec
L_snext:
    s_mov_b64 exec, s[48:49]
    s_add_u32 s34, s34, {NW}
    s_cmp_lt_u32 s34, {NCHUNK}
    s_cbranch_scc1 L_scell
    s_branch L_mdone
L_codeend:
.section .rodata,"a"
.p2align 6
.amdhsa_kernel {NAME}
.amdhsa_next_free_vgpr 168
.amdhsa_next_free_sgpr 102
.amdhsa_accum_offset 168
.amdhsa_group_segment_fixed_size 0
.amdhsa_kernarg_size 80
.amdhsa_user_sgpr_count 2
.amdhsa_user_sgpr_kernarg_segment_ptr 1
.amdhsa_system_sgpr_workgroup_id_x 1
.end_amdhsa_kernel
""")
if OPT["nochain"]:
    i0 = out.index("L_A:"); i1 = out.index("L_mdone:")
    out = out[:i0] + [l for l in out[i0:i1] if not any(x in l for x in ("v_exp", "v_pk_", "mfma", "v_rcp", "v_cvt"))] + out[i1:]
open(sys.argv[1], "w").write("\n".join(out) + "\n")
```

```python
import sys, struct

OPT = dict(stamps=0, force_safe=0, nogather=0, nosafe=0, prio=1, gsc1=1, osc=0, spin=0, codepf=1, srcmask=0x3fff00, nrec=0, warm=0, nochain=0, probe=-1, pw=-1, pg=-1, gpf=0, gate=1, aulate=0, early=0, cnt=0, rsc1=1, rdelay=0, p2sleep=0, touch=0, wsoff=0)
for a in sys.argv[2:]:
    k, v = a.split("=")
    assert k in OPT, k
    OPT[k] = int(v, 0)

out = []
def E(s=""):
    for line in s.split("\n"):
        line = line.strip()
        if not line:
            continue
        if line.endswith(":") or line.startswith(".") or line.startswith(";"):
            out.append(line)
        else:
            out.append("    " + line)

def f32(x):
    return "0x%08x" % struct.unpack("<I", struct.pack("<f", x))[0]

NAME = "standalone__edge_featured_mpnn_egc__graph_kernel"
LOG2E = 1.4426950408889634
NB = 80; NBUCK = 125; CHUNK = 1280; NCHUNK = 250
NW = 12
G_HALF = 10000 * 256
WS0 = OPT["wsoff"] << 20
WS_REC = WS0 + 0x500000
WS_ROW = WS0 + 0xa00000
WS_FL2 = WS0 + 0xa80000
WS_TAG = WS0 + 0xac0000
SORTB = CHUNK * 16
WS_STAMP = 0x1000000
L_CNT = 0; L_SOFF = 512
L_SCNT = 1024
L_CTR = 1536; L_RD1 = 1540; L_DONE2 = 1544; L_FLAG = 1548; L_NST = 1552; L_GST = 1556
L_LIST = 2048
SSTR = 272
L_SRC = 7936
L_EA = L_SRC + 81 * SSTR
L_EAEND = L_EA + 81 * 2 * SSTR
L_SORT = L_EA
L_WBV = 74240; L_X = L_WBV + 32768; L_WAU = L_X + 20480; L_C = L_WAU + 32768; L_DUM = L_C + 1024
LDS = L_DUM + 1024
L_NODE = L_WBV; NSTR = 648
assert L_EAEND <= L_WBV and L_NODE + 80 * NSTR <= L_WAU and LDS <= 163840 and L_EA % 16 == 0
NULL_SRC = 0x7fffff00
NSTATIC = 240
LSTR = NW * 32
POLL_MAX = 200000
SC1 = " sc1"

S_HALF, S_BUCK, S_P = 22, 23, 24
S_TAG, S_TAG8, S_SAFE = 25, 26, 27
S_N, S_K, S_IT = 70, 71, 72
S_TAGRAW = 47
ST0 = 74

def ESTAMP(i):
    if OPT["early"] == 1 or (OPT["early"] and i == 0): E(f"s_memrealtime s[{ST0+2*i}:{ST0+2*i+1}]")
def FSTAMP(i):
    if OPT["early"] == 2: E(f"s_memrealtime s[{ST0+2*i}:{ST0+2*i+1}]\ns_waitcnt lgkmcnt(0)")
def STAMP(i):
    if OPT["early"] and 1 <= i <= 7: return
    if OPT["early"] and i == 0: return ESTAMP(0)
    if OPT["stamps"] or (OPT["probe"] >= 0 and i == OPT["probe"]):
        E(f"s_memrealtime s[{ST0+2*i}:{ST0+2*i+1}]\ns_waitcnt lgkmcnt(0)")
    elif OPT["probe"] >= 0 and i == 0:
        E(f"s_memrealtime s[{ST0}:{ST0+1}]")
NSTAMP = 14
def STAMP_OUT():
    if OPT["stamps"]:
        E(f"""
        s_lshl_b32 s30, s2, 4
        s_add_u32 s30, s30, s3
        s_lshl_b32 s30, s30, 6
        s_add_u32 s30, s30, {WS_STAMP}
        s_mov_b64 exec, -1
        v_mov_b32 v3, s30""")
        for i in range(NSTAMP):
            E(f"v_mov_b32 v2, s{ST0+2*i}\nglobal_store_dword v3, v2, s[20:21] offset:{4*i}")
        E("s_waitcnt vmcnt(0)")

A1, A2, IDX, LN8, LN16, ASEL, CW, EAC = 4, 8, 12, 13, 14, 16, 18, 20
LP, WS_, WN, WE, AG, EA, XA, OFS, T, N, P, F = 22, 24, 25, 26, 27, 30, 32, 36, 44, 52, 56, 60
D0, D1, G = 72, 88, 104

def finish_tag():
    E(f"""
    s_mul_i32 s{S_TAG8}, s{S_TAGRAW}, 0x85ebca6b
    s_mul_i32 s{S_TAG}, s{S_TAGRAW}, 0x9e3779b1
    s_lshr_b32 s{S_TAG8}, s{S_TAG8}, 24
    s_add_u32 s{S_TAG}, s{S_TAG}, 0x7f4a7c15
    """)
def get_tag(lab, q):
    E(f"""
    s_cmp_lg_u32 s{S_SAFE}, 0
    s_cbranch_scc1 L_tag_{lab}
    v_mov_b32 v2, 0
    s_mov_b32 s31, {POLL_MAX}
L_tg_{lab}:
    ds_read_b128 v[{q}:{q+3}], v2 offset:{L_SCNT + 124*4}
    s_sub_u32 s31, s31, 1
    s_cbranch_scc1 L_tag_{lab}
    s_waitcnt lgkmcnt(0)
    v_readfirstlane_b32 s30, v{q+3}
    v_readfirstlane_b32 s{S_TAGRAW}, v{q+1}
    s_cmp_lg_u32 s30, 4
    s_cbranch_scc1 L_tg_{lab}
    """)
    finish_tag()
    E(f"L_tag_{lab}:")

def lds_wait(addr, mask, val, tag, sleep=0):
    E(f"""
    v_mov_b32 v2, 0
    s_mov_b32 s31, {POLL_MAX}
L_w_{tag}:
    {f"s_sleep {sleep}" if sleep else ""}
    ds_read_b32 v3, v2 offset:{addr}
    s_sub_u32 s31, s31, 1
    s_cbranch_scc1 L_wd_{tag}
    s_waitcnt lgkmcnt(0)
    v_readfirstlane_b32 s30, v3
    s_and_b32 s30, s30, {mask}
    s_cmp_lg_u32 s30, {val}
    s_cbranch_scc1 L_w_{tag}
L_wd_{tag}:
    """)
SCAN = ("row_shr:1 row_mask:0xf bank_mask:0xf bound_ctrl:0", "row_shr:2 row_mask:0xf bank_mask:0xf bound_ctrl:0",
        "row_shr:4 row_mask:0xf bank_mask:0xf bound_ctrl:0", "row_shr:8 row_mask:0xf bank_mask:0xf bound_ctrl:0",
        "row_bcast:15 row_mask:0xa bank_mask:0xf", "row_bcast:31 row_mask:0xc bank_mask:0xf")
def scan(r):
    for m in SCAN:
        E(f"s_nop 1\nv_add_u32_dpp v{r}, v{r}, v{r} {m}")

def main_consts(sm=48):
    E(f"""
    v_and_b32 v2, 15, v1                    ; n'
    v_lshrrev_b32 v3, 4, v1
    v_lshl_add_u32 v3, v2, 2, v3
    v_lshlrev_b32 v3, 1, v3
    v_add_u32 v3, {L_C}, v3
    ds_read_u16 v64, v3                     ; C[0..3][feature 4n'+s]
    ds_read_u16 v65, v3 offset:128
    ds_read_u16 v66, v3 offset:256
    ds_read_u16 v67, v3 offset:384
    v_and_b32 v63, 3, v1                    ; q
    v_lshlrev_b32 v{LN8}, 3, v2
    v_lshlrev_b32 v{LN16}, 4, v2
    v_lshlrev_b32 v{LN16+1}, 4, v2
    v_mov_b32 v{IDX}, 0x8888
    v_bfe_u32 v60, v1, 3, 2                 ; s = (l&31)>>3
    v_bfe_u32 v61, v1, 2, 1                 ; h = (l>>2)&1
    v_lshrrev_b32 v62, 5, v1                ; ha
    v_and_b32 v2, 1, v60
    v_lshlrev_b32 v2, 4, v2
    v_lshlrev_b32 v2, v2, s46
    v_lshrrev_b32 v60, 1, v60               ; s>>1
    v_lshl_add_u32 v3, v61, 1, v60
    v_sub_u32 v63, v63, v62                 ; q - ha : 0 -> A1, 2 -> A2
    v_lshl_add_u32 v3, v63, 1, v3
    v_and_b32 v63, 1, v63
    v_lshl_or_b32 v3, v63, 4, v3
    v_xor_b32 v61, v61, v62
    v_lshl_or_b32 v60, v61, 4, v60
    """)
    mk = [f"s[{sm}:{sm+1}]", f"s[{sm+2}:{sm+3}]", f"s[{sm+4}:{sm+5}]", "vcc"]
    for i in range(8):
        E(f"v_cmp_eq_u32 {mk[i%4]}, {i}, v3")
        if i % 4 == 3:
            for j in range(i-3, i+1):
                E(f"v_cndmask_b32 v{A1+j}, 0, v2, {mk[j%4]}")
    E(f"""
    v_cmp_eq_u32 {mk[0]}, 0, v60
    v_cmp_eq_u32 {mk[1]}, 1, v60
    v_bfe_u32 v61, v1, 4, 1
    v_and_b32 v63, 3, v1
    v_cndmask_b32 v{ASEL}, 0, v2, {mk[0]}
    v_cndmask_b32 v{ASEL+1}, 0, v2, {mk[1]}
    v_lshl_add_u32 v61, v61, 2, v63
    v_lshlrev_b32 v61, 3, v61
    v_add_u32 v{EAC}, {L_EA - 2*L_SRC}, v61
    s_lshl_b32 s30, s3, 5
    s_add_u32 s30, s30, {L_LIST}
    v_lshrrev_b32 v2, 4, v1
    v_lshl_add_u32 v{LP}, v2, 3, s30
    v_bfe_u32 v2, v1, 2, 2
    v_lshl_add_u32 v{LP+1}, v2, 3, s30
    s_waitcnt lgkmcnt(0)
    v_lshlrev_b32 v60, 16, v64
    v_lshlrev_b32 v61, 16, v65
    v_lshlrev_b32 v62, 16, v66
    v_lshlrev_b32 v63, 16, v67
    v_mul_f32 v60, s40, v60
    v_mul_f32 v61, s40, v61
    v_mul_f32 v62, s40, v62
    v_mul_f32 v63, s40, v63
    v_cvt_pk_bf16_f32 v{CW}, v60, v61
    v_cvt_pk_bf16_f32 v{CW+1}, v62, v63
    """)

def gload(g, o):
    return f"buffer_load_dwordx4 v[{g}:{g+3}], v{o}, s[36:39], 0 offen" + (SC1 if OPT["gsc1"] else "")
def oadd(o):
    return f"v_lshl_add_u64 v[{o}:{o+1}], v[{o}:{o+1}], 0, v[{LN16}:{LN16+1}]"

def pk_steps(Gc, q, first):
    t = T + 4*(q & 1); h = Gc + 4*q
    if first and q == 0:
        return [f"v_pk_add_f32 v[{P+2*p}:{P+2*p+1}], v[{t+2*p}:{t+2*p+1}], 1.0 op_sel_hi:[1,0]" for p in range(2)]
    r = []
    for p in range(2):
        n = f"v[{Gc+2*p}:{Gc+2*p+1}]" if (first and q == 1) else f"v[{N+2*p}:{N+2*p+1}]"
        r.append(f"v_pk_fma_f32 v[{N+2*p}:{N+2*p+1}], {n}, v[{t+2*p}:{t+2*p+1}], {n}")
    for p in range(2):
        r.append(f"v_pk_fma_f32 v[{N+2*p}:{N+2*p+1}], v[{h+2*p}:{h+2*p+1}], v[{P+2*p}:{P+2*p+1}], v[{N+2*p}:{N+2*p+1}]")
    for p in range(2):
        r.append(f"v_pk_fma_f32 v[{P+2*p}:{P+2*p+1}], v[{P+2*p}:{P+2*p+1}], v[{t+2*p}:{t+2*p+1}], v[{P+2*p}:{P+2*p+1}]")
    return r
def exps(Dc, q):
    t = T + 4*(q & 1)
    return [f"v_exp_f32 v{t+s}, v{Dc+4*s+q}" for s in range(4)]
def weave(main, extra):
    for i, x in enumerate(main):
        E(x)
        for y in extra.get(i, []):
            E(y)
def m_a(Dn): return f"v_mfma_f32_32x32x8_bf16 v[{Dn}:{Dn+15}], v[{ASEL}:{ASEL+1}], v[{XA}:{XA+1}], 0"
def m_e(Dn, abid): return f"v_mfma_f32_16x16x4_4b_bf16 v[{Dn}:{Dn+15}], v[{EA}:{EA+1}], v[{CW}:{CW+1}], v[{Dn}:{Dn+15}] cbsz:2 abid:{abid}"
def m_s(Dn, A, g): return f"v_smfmac_f32_32x32x32_bf16 v[{Dn}:{Dn+15}], v[{A}:{A+3}], v[{g}:{g+7}], v{IDX}"

def body(par, loads):
    g0 = G + 32*par; g1 = g0 + 16; gn = G + 32*(1-par)
    agc = AG + par; agn = AG + 1 - par
    ld = loads and not OPT["nogather"]
    E("s_waitcnt vmcnt(8) lgkmcnt(4)")
    E(m_a(D1))
    for x in exps(D0, 0): E(x)
    E(m_s(D1, A1, g1))
    for x in exps(D0, 1): E(x)
    ex = {0: [f"v_add_u32 v{agn}, v{WN}, v{LN8}"],
          2: [f"ds_read_b64 v[{XA}:{XA+1}], v{agn} offset:512"],
          5: [f"v_lshl_add_u32 v{WE}, v{WE}, 1, v{EAC}"]}
    if loads:
        ex[1] = [f"ds_read_b128 v[{OFS}:{OFS+3}], v{WS_}"]
        ex[3] = [f"ds_read_b128 v[{OFS+4}:{OFS+7}], v{WS_} offset:16"]
    weave(pk_steps(g0, 0, True) + pk_steps(g0, 1, True), ex)
    E(m_e(D1, 1))
    for x in exps(D0, 2): E(x)
    E(m_s(D1, A2, g1+8))
    for x in exps(D0, 3): E(x)
    ex = {0: ["s_waitcnt lgkmcnt(0)", f"ds_read_b64 v[{EA}:{EA+1}], v{WE}"]}
    if loads:
        ex[0] += [oadd(OFS)]
        ex[2] = [oadd(OFS+2)]
    if ld:
        ex[1] = [gload(g0, OFS)]
        ex[3] = [gload(g0+4, OFS+1)]
        ex[5] = [gload(g0+8, OFS+2)]
        ex[9] = [gload(g0+12, OFS+3)]
    weave(pk_steps(g0, 2, False) + pk_steps(g0, 3, False), ex)
    E(f"s_waitcnt vmcnt({8 if loads else 4})")
    E(m_a(D0))
    for x in exps(D1, 0): E(x)
    E(m_s(D0, A1, gn))
    for x in exps(D1, 1): E(x)
    ex = {10: ["s_waitcnt lgkmcnt(0)"]}
    if loads:
        ex[0] = [oadd(OFS+4)]
        ex[2] = [oadd(OFS+6)]
    if ld:
        ex[5] = [gload(g1, OFS+4)]
        ex[10] = [gload(g1+4, OFS+5)] + ex[10]
    weave(pk_steps(g1, 0, False) + pk_steps(g1, 1, False), ex)
    E(m_e(D0, 0))
    for x in exps(D1, 2): E(x)
    E(m_s(D0, A2, gn+8))
    for x in exps(D1, 3): E(x)
    o = LSTR * par
    ex = {0: [f"ds_read_b32 v{WN}, v{LP} offset:{o + 2*LSTR + 4}"],
          1: [f"ds_read_b32 v{WE}, v{LP+1} offset:{o + 2*LSTR}"],
          2: [f"ds_read_b32 v{WS_}, v{LP} offset:{o + 3*LSTR}"]}
    if ld:
        ex[5] = [gload(g1+8, OFS+6)]
        ex[9] = [gload(g1+12, OFS+7)]
    weave(pk_steps(g1, 2, False) + pk_steps(g1, 3, False), ex)
    E(f"""
    v_rcp_f32 v{P}, v{P}
    v_rcp_f32 v{P+1}, v{P+1}
    v_rcp_f32 v{P+2}, v{P+2}
    v_rcp_f32 v{P+3}, v{P+3}
    v_pk_mul_f32 v[{N}:{N+1}], v[{N}:{N+1}], v[{P}:{P+1}]
    v_pk_mul_f32 v[{N+2}:{N+3}], v[{N+2}:{N+3}], v[{P+2}:{P+3}]
    """)
    if par == 1:
        E(f"v_lshl_add_u64 v[{LP}:{LP+1}], v[{LP}:{LP+1}], 0, s[44:45]")
    for s in range(4):
        E(f"v_cvt_f64_f32 v[{F+2*s}:{F+2*s+1}], v{N+s}")
        if s: E(f"ds_add_f64 v{agc}, v[{F+2*s-2}:{F+2*s-1}] offset:{128*(s-1)}")
    E(f"s_add_u32 s{S_K}, s{S_K}, {NW}")
    E(f"ds_add_f64 v{agc}, v[{F+6}:{F+7}] offset:384")
    if not loads:
        E("s_waitcnt vmcnt(0)")

E(f"""
; @launch grid=(256,1,1) block=({64*NW},1,1) lds={LDS}
.amdgcn_target "amdgcn-amd-amdhsa--gfx950"
.text
.globl {NAME}
.p2align 8
.type {NAME},@function
{NAME}:
""")
if OPT["stamps"] and OPT["early"] != 1:
    for i in range(NSTAMP): E(f"s_mov_b64 s[{ST0+2*i}:{ST0+2*i+1}], 0")
STAMP(0)
E(f"""
    s_load_dwordx16 s[4:19], s[0:1], 0
    s_load_dwordx2 s[20:21], s[0:1], 72
""")
if OPT["codepf"]:
    E(f"""
    s_getpc_b64 s[28:29]
L_pc:
    v_lshlrev_b32 v3, 7, v0
    v_cmp_gt_u32 vcc, L_codeend-L_pc-64, v3
    s_cbranch_vccz L_nopf
    s_mov_b64 exec, vcc
    global_load_dword v164, v3, s[28:29]
    s_mov_b64 exec, -1
L_nopf:
    """)
E(f"""
    v_lshrrev_b32 v2, 6, v0
    v_and_b32 v1, 63, v0
    v_readfirstlane_b32 s3, v2
    s_and_b32 s{S_HALF}, s2, 1
    s_bfe_u32 s30, s2, 0x20001
    s_lshl_b32 s30, s30, 5
    s_lshr_b32 s31, s2, 3
    s_add_u32 s{S_BUCK}, s30, s31
    s_cmp_ge_u32 s2, 256
    s_cbranch_scc1 L_end
    s_cmp_ge_u32 s{S_BUCK}, {NBUCK}
    s_cbranch_scc1 L_end
    s_lshl_b32 s{S_P}, s{S_BUCK}, 1
    s_add_u32 s{S_P}, s{S_P}, s{S_HALF}
    s_mov_b32 s{S_SAFE}, 0
L_restart:
    s_cmp_ge_u32 s3, 4
    s_cbranch_scc1 L_nosort
    v_mov_b32 v48, 0
    v_mov_b32 v49, 0
    v_mov_b32 v50, 0
    v_mov_b32 v51, 0
    v_lshlrev_b32 v10, 4, v1
    ds_write_b128 v10, v[48:51] offset:{L_SCNT}
    s_mul_i32 s30, s{S_P}, {CHUNK*4}
    v_lshl_add_u32 v3, v0, 4, s30
    s_add_u32 s30, s30, 4096
    v_lshl_add_u32 v9, v0, 2, s30
    v_lshlrev_b32 v10, 1, v3
    v_lshlrev_b32 v11, 1, v9
    v_mov_b32 v17, {WS_TAG}
    s_waitcnt lgkmcnt(0)
    global_load_dwordx4 v[4:7], v3, s[10:11]
    global_load_dword v8, v9, s[10:11]
    global_load_dword v43, v17, s[20:21]
    s_barrier                               ; B0
    global_load_dwordx4 v[12:15], v3, s[8:9]
    global_load_dword v16, v9, s[8:9]
    global_load_dwordx4 v[52:55], v10, s[6:7]
    global_load_dwordx4 v[60:63], v10, s[6:7] offset:16
    global_load_dwordx2 v[68:69], v11, s[6:7]
    s_barrier                               ; B0b
    s_branch L_sort
L_nosort:
    s_and_b32 s32, s3, 3                    ; tau
    s_lshr_b32 s33, s3, 3                   ; rg
    v_lshrrev_b32 v2, 4, v1                 ; g
    v_and_b32 v4, 15, v1
    s_lshl_b32 s30, s32, 2
    v_add_u32 v6, s30, v2                   ; row&15
    v_xor_b32 v7, v4, v6
    v_lshlrev_b32 v7, 4, v7
    v_lshl_add_u32 v7, v6, 8, v7
    s_mul_i32 s30, s{S_BUCK}, {NB*256}
    s_mul_i32 s31, s33, {3*4096}
    s_add_u32 s73, s30, s31
    v_add_u32 v7, s73, v7
    v_add_u32 v8, 0x1000, v7
    v_add_u32 v9, 0x2000, v7
    s_lshl_b32 s30, s32, 10
    s_add_u32 s31, s31, s30
    s_add_u32 m0, s31, {L_X}
    s_waitcnt lgkmcnt(0)
""")
if OPT["touch"]:
    st = {1: 0x30000, 2: 0x200000}[OPT["touch"]]; n = {1: 60, 2: 6}[OPT["touch"]]
    so = {1: 0x10000, 2: 0x200000}[OPT["touch"]]; no = {1: 39, 2: 2}[OPT["touch"]]
    E(f"""
    s_cmp_lg_u32 s3, 4
    s_cbranch_scc1 L_not1
    v_mul_u32_u24 v3, {st}, v1
    s_bfm_b64 exec, {n}, 0
    global_load_dword v166, v3, s[20:21] sc1
    s_mov_b64 exec, -1
L_not1:
    s_cmp_lg_u32 s3, 5
    s_cbranch_scc1 L_not2
    v_mul_u32_u24 v3, {so}, v1
    s_bfm_b64 exec, {no}, 0
    global_load_dword v166, v3, s[18:19] sc1
    s_mov_b64 exec, 1
    global_load_dword v167, v3, s[12:13]
    global_load_dword v165, v3, s[14:15]
    global_load_dword v164, v3, s[16:17]
    s_mov_b64 exec, -1
L_not2:
    """)
E(f"""
    s_barrier                               ; B0
    global_load_lds_dwordx4 v7, s[4:5]
    s_add_u32 m0, m0, 0x1000
    s_cmp_lg_u32 s33, 0
    global_load_lds_dwordx4 v8, s[4:5]
    s_cbranch_scc1 L_x2
    s_add_u32 m0, m0, 0x1000
    s_nop 0
    global_load_lds_dwordx4 v9, s[4:5]
L_x2:
    s_barrier                               ; B0b
    v_subrev_u32 v30, 256, v0               ; t = 0..511
    v_lshlrev_b32 v31, 4, v30
    v_mov_b32 v32, {NULL_SRC}
    v_mov_b32 v33, {NULL_SRC}
    v_mov_b32 v34, {NULL_SRC}
    v_mov_b32 v35, {NULL_SRC}
    v_mov_b32 v36, 0
    v_mov_b32 v37, 0
    v_mov_b32 v38, 0
    v_mov_b32 v39, 0
    v_add_u32 v40, {L_SORT + SORTB}, v31
""")
def cover(n): return list(range(0, n - 8192, 8192)) + [n - 8192]
for o in cover(81*SSTR): E(f"ds_write_b128 v31, v[32:35] offset:{L_SRC + o}")
for o in cover(L_EAEND - (L_SORT + SORTB)): E(f"ds_write_b128 v40, v[36:39] offset:{o}")
E(f"""
    v_lshrrev_b32 v5, 3, v1
    v_and_b32 v3, 1, v2
    s_and_b32 s30, s3, 1
    s_lshl_b32 s30, s30, 1
    v_or_b32 v3, s30, v3                    ; sigma
    v_lshlrev_b32 v3, 1, v3
    v_and_b32 v20, 7, v1
    v_xor_b32 v3, v3, v20
    v_lshlrev_b32 v3, 4, v3
    v_lshl_add_u32 v10, v5, 8, v3
    s_sub_u32 s28, s3, 4
    s_lshl_b32 s30, s28, 11
    s_lshl_b32 s31, s{S_HALF}, 7
    s_add_u32 s30, s30, s31
    v_add_u32 v10, s30, v10
    v_add_u32 v11, 0x4000, v10
    s_add_u32 s34, s16, {128*256}
    s_addc_u32 s35, s17, 0
    s_cmp_lg_u32 s3, 11
    s_cbranch_scc1 L_noc
    v_and_b32 v5, 3, v5
    v_lshlrev_b32 v20, 4, v20
    v_lshl_add_u32 v5, v5, 8, v20
    s_add_u32 s31, s31, {256*256}
    s_mov_b32 m0, {L_C}
    v_add_u32 v5, s31, v5
    global_load_lds_dwordx4 v5, s[16:17]
L_noc:
    s_lshl_b32 s28, s28, 10
    s_add_u32 m0, s28, {L_WBV}
""")
for ti, base in enumerate((34, 14)):
    for n in range(2):
        E(f"s_nop 0\nglobal_load_lds_dwordx4 v{10+n}, s[{base}:{base+1}]")
        if not (ti == 1 and n == 1):
            E(f"s_add_u32 m0, m0, 0x2000")
    if ti == 1:
        E(f"""
        s_cmp_ge_u32 s3, 8
        s_cbranch_scc1 L_pf2
        v_mov_b32 v32, {L_SRC + 80*SSTR}
        v_mov_b32 v33, {L_DUM}
        v_mov_b32 v34, {L_SRC + 80*SSTR}
        v_mov_b32 v35, {L_DUM}
        v_cmp_gt_u32 vcc, {(L_SRC - L_LIST - 8*NSTATIC)//16}, v30
        s_mov_b64 exec, vcc
        ds_write_b128 v31, v[32:35] offset:{L_LIST + 8*NSTATIC}
        s_branch L_pf3
L_pf2:
        s_cmp_ge_u32 s3, 10
        s_cbranch_scc1 L_pf3
        v_subrev_u32 v30, 256, v30              ; 0..127
        v_mul_u32_u24 v42, {SSTR}, v30
        v_add_u32 v42, {L_SRC}, v42
        v_mul_u32_u24 v43, {NSTR}, v30
        v_add_u32 v43, {L_NODE}, v43
        v_lshlrev_b32 v41, 2, v30
        ds_write_b32 v41, v42 offset:{L_CNT}
        v_add_u32 v41, {L_DUM + 256}, v41
        ds_write_b32 v41, v36
        v_lshlrev_b32 v41, 3, v30
        v_cmp_gt_u32 vcc, {NB}, v30
        s_mov_b64 exec, vcc
        ds_write_b64 v41, v[42:43] offset:{L_LIST}
        v_add_u32 v42, 32, v42
        ds_write_b64 v41, v[42:43] offset:{L_LIST + 8*NB}
        v_add_u32 v42, 32, v42
        ds_write_b64 v41, v[42:43] offset:{L_LIST + 16*NB}
L_pf3:
        s_mov_b64 exec, -1
        """)
STAMP(1)
E(f"""
    v_bfe_u32 v3, v1, 2, 2                  ; r
    v_lshl_add_u32 v5, v2, 3, v3            ; 8g + r
    v_lshrrev_b32 v3, 1, v3
    v_and_b32 v6, 1, v2
    v_lshl_or_b32 v3, v6, 1, v3             ; sigma
    v_xor_b32 v3, s32, v3
    v_lshlrev_b32 v3, 5, v3
    v_lshl_add_u32 v10, v5, 7, v3
    v_and_b32 v3, 3, v1
    v_lshl_add_u32 v10, v3, 3, v10
    v_add_u32 v10, {L_WBV}, v10
    v_xor_b32 v3, v2, v4
    v_lshlrev_b32 v3, 4, v3
    v_lshl_add_u32 v12, v4, 8, v3
    s_mul_i32 s31, s33, {3*4096}
    s_add_u32 s31, s31, {L_X}
    v_add_u32 v12, s31, v12
    v_xor_b32 v13, 64, v12
    v_xor_b32 v14, 0x80, v12
    v_xor_b32 v15, 0xc0, v12
    s_mul_i32 s30, s{S_HALF}, {G_HALF}
    {f"s_add_u32 s30, s30, {WS0}" if WS0 else ""}
    s_add_u32 s30, s30, s73
    s_lshl_b32 s31, s32, 6
    s_add_u32 s30, s30, s31
    v_lshlrev_b32 v11, 10, v2
    v_lshl_add_u32 v11, v4, 2, v11
    v_add_u32 v11, s30, v11
    s_lshl_b32 s31, s32, 5
    s_add_u32 s31, s31, {L_NODE}
    v_mul_u32_u24 v16, {NSTR}, v4
    v_lshl_add_u32 v16, v2, 3, v16
    v_add_u32 v16, s31, v16
    s_mov_b32 s40, {f32(LOG2E)}
    s_mov_b32 s42, {f32(2.0**32)}
    s_mov_b32 s44, 0x07060100
    s_mov_b32 s45, 0x07060302
    v_mov_b32 v8, {f32(2.0**-100)}
    v_mov_b32 v7, 1
    v_mov_b32 v6, 0
    s_waitcnt vmcnt(0)
    s_mov_b64 exec, 1
    ds_add_u32 v6, v7 offset:{L_CTR}
    s_mov_b64 exec, -1
""")
STAMP(2)
lds_wait(L_CTR, 0xff, 8, "g1")
STAMP(3)
NP = 8
def rec_setup():
    E(f"""
    v_and_b32 v148, 15, v1                   ; j
    v_lshrrev_b32 v2, 4, v1
    v_lshl_add_u32 v149, v2, 3, v148
    s_lshl_b32 s30, s29, 5
    v_add_u32 v149, s30, v149
    s_lshl_b32 s30, s{S_BUCK}, 3
    s_add_u32 s30, s30, {WS_ROW}
    v_lshl_add_u32 v150, v149, 10, s30
    v_cmp_gt_u32 s[66:67], {NP}, v148
    v_cmp_gt_u32 vcc, {NCHUNK}, v149
    v_mov_b32 v154, 0
    v_mov_b32 v155, 0
    s_and_b64 s[66:67], s[66:67], vcc
    s_mov_b64 exec, s[66:67]
    global_load_dwordx2 v[154:155], v150, s[20:21] sc1
    s_mov_b64 exec, -1
    v_mul_u32_u24 v149, {CHUNK}, v149
    v_add_u32 v149, {WS_REC//16}, v149
    v_lshlrev_b32 v152, 4, v148               ; 16j
    v_not_b32 v151, v148
    v_subrev_u32 v153, 16, v151
    v_mov_b32 v156, 4
    """)
WF = 20; XF = 52; AC = 132
def wreads(ks):
    for t in range(2):
        for rd in range(2):
            r = WF + 16*t + 4*ks + 2*rd
            E(f"ds_read_b64_tr_b16 v[{r}:{r+1}], v10 offset:{t*16384 + ks*4096 + rd*512}")
def xread(rt, ks):
    r = XF + 16*rt + 4*ks
    return f"ds_read_b128 v[{r}:{r+3}], v{12+ks} offset:{rt*4096}"
def mf(rt, ks, transposed, acc):
    for t in range(2):
        a = XF + 16*rt + 4*ks; w = WF + 16*t + 4*ks; d = acc + 4*t
        c = "0" if ks == 0 else f"v[{d}:{d+3}]"
        if transposed: a, w = w, a
        E(f"v_mfma_f32_16x16x32_bf16 v[{d}:{d+3}], v[{a}:{a+3}], v[{w}:{w+3}], {c}")
def pack(rt, last):
    b = AC + 8*rt; h = b + 4
    for r in range(4): E(f"v_mul_f32 v{b+r}, s40, v{b+r}")
    for r in range(4): E(f"v_fma_f32 v{h+r}, v{h+r}, s42, v8")
    E(f"""
    v_cvt_pk_bf16_f32 v2, v{b}, v{b+1}
    v_cvt_pk_bf16_f32 v3, v{b+2}, v{b+3}
    v_xor_b32 v4, 0x80008000, v2
    v_xor_b32 v5, 0x80008000, v3
    v_sub_u32_sdwa v{h}, v{h}, sext(v2) dst_sel:DWORD dst_unused:UNUSED_PAD src0_sel:DWORD src1_sel:WORD_0
    v_sub_u32_sdwa v{h+1}, v{h+1}, sext(v2) dst_sel:DWORD dst_unused:UNUSED_PAD src0_sel:DWORD src1_sel:WORD_1
    v_sub_u32_sdwa v{h+2}, v{h+2}, sext(v3) dst_sel:DWORD dst_unused:UNUSED_PAD src0_sel:DWORD src1_sel:WORD_0
    v_sub_u32_sdwa v{h+3}, v{h+3}, sext(v3) dst_sel:DWORD dst_unused:UNUSED_PAD src0_sel:DWORD src1_sel:WORD_1
    """)
    for r in range(4):
        E(f"v_perm_b32 v{h+r}, v{h+r}, v{4 + (r>>1)}, s{44 + (r&1)}")
        E(f"global_store_dword v11, v{h+r}, s[20:21] offset:{256*r} sc1")
    if not last: E("v_add_u32 v11, 0x1000, v11")
E(f"""
    s_cmp_lg_u32 s{S_SAFE}, 0
    s_cbranch_scc1 L_nog1
""")
for ks in range(3):
    E(xread(0, ks)); wreads(ks)
E("s_waitcnt lgkmcnt(10)"); mf(0, 0, False, AC)
E(xread(0, 3)); wreads(3)
E("s_waitcnt lgkmcnt(10)"); mf(0, 1, False, AC)
for ks in range(4): E(xread(1, ks))
E("s_waitcnt lgkmcnt(9)"); mf(0, 2, False, AC)
E("s_waitcnt lgkmcnt(4)"); mf(0, 3, False, AC)
E("s_cmp_lg_u32 s33, 0\ns_cbranch_scc1 L_g1b")
for ks in range(4): E(xread(2, ks))
E("s_waitcnt lgkmcnt(4)")
for ks in range(4): mf(1, ks, False, AC+8)
pack(0, False)
E("s_waitcnt lgkmcnt(0)")
for ks in range(4): mf(2, ks, False, AC+16)
pack(1, False)
pack(2, True)
E(f"""
    s_mov_b64 exec, 1
    ds_add_u32 v6, v7 offset:{L_GST}
    s_mov_b64 exec, -1
L_g2x:
""")
for rt in (3, 4):
    for ks in range(4): E(xread(rt, ks))
STAMP(4)
get_tag("g", 160)
def done2(lab):
    E(f"""
    s_lshl_b32 s30, s{S_P}, 7
    s_add_u32 s30, s30, {WS_FL2}
    v_mov_b32 v160, s30
    v_mov_b32 v162, s{S_TAG}
    v_mov_b32 v163, s{S_TAG8}
    v_mov_b32 v2, 0
    v_mov_b32 v3, 1
    s_mov_b64 exec, 1
    s_waitcnt vmcnt(0)
    ds_add_rtn_u32 v161, v2, v3 offset:{L_DONE2}
    s_waitcnt lgkmcnt(0)
    v_readfirstlane_b32 s30, v161
    s_cmp_lg_u32 s30, 7
    s_cbranch_scc1 L_nofl_{lab}
    s_cmp_lg_u32 s{S_SAFE}, 0
    s_cbranch_scc1 L_nofs_{lab}
    global_store_dwordx2 v160, v[162:163], s[20:21] sc1
L_nofs_{lab}:
    ds_add_u32 v2, v3 offset:{L_DONE2}
L_nofl_{lab}:
    s_mov_b64 exec, -1
    """)
done2("g")
STAMP(5)
E(f"v_add_u32 v10, {L_WAU - L_WBV}, v10")
lds_wait(L_DONE2, 8, 8, "d2")
lds_wait(L_CTR, 0xff0000, 0x040000, "d3")
STAMP(6)
for ks in range(4): wreads(ks)
E(f"""
    s_mov_b32 s40, {f32(-LOG2E)}
    s_mov_b32 s46, 0x3f80
""")
def fin(acc, last):
    a = acc; u = acc + 4
    for r in range(4): E(f"v_mul_f32 v{a+r}, s40, v{a+r}")
    for r in range(4): E(f"v_mul_f32 v{u+r}, s42, v{u+r}")
    E(f"""
    v_cvt_pk_bf16_f32 v{a}, v{a}, v{a+1}
    v_cvt_pk_bf16_f32 v{a+1}, v{a+2}, v{a+3}
    v_cvt_f64_f32 v[2:3], v{u}
    v_cvt_f64_f32 v[4:5], v{u+1}
    v_cvt_f64_f32 v[6:7], v{u+2}
    v_cvt_f64_f32 v[8:9], v{u+3}
    ds_write_b64 v16, v[{a}:{a+1}] offset:512
    ds_write2_b64 v16, v[2:3], v[4:5] offset0:0 offset1:16
    ds_write2_b64 v16, v[6:7], v[8:9] offset0:32 offset1:48
    """)
    if not last: E(f"v_add_u32 v16, {16*NSTR}, v16")
for ks in range(4):
    E(f"s_waitcnt lgkmcnt({12 - 4*ks})"); mf(0, ks, True, AC)
for rt in range(1, 5):
    for ks in range(4): mf(rt, ks, True, AC + 8*(rt % 3))
    fin(AC + 8*((rt-1) % 3), False)
fin(AC + 8*(4 % 3), True)
main_consts()
STAMP(7)
E(f"""
    s_cmp_lg_u32 s{S_SAFE}, 0
    s_cbranch_scc1 L_b4
    s_and_b32 s32, s3, 3
    s_lshl_b32 s30, s32, 13
    s_lshl_b32 s31, s{S_HALF}, 7
    s_add_u32 s30, s30, s31
    s_add_u32 s30, s30, {WS_FL2}
    v_lshl_add_u32 v3, v1, 8, s30
    s_cmp_eq_u32 s32, 3
    s_cselect_b32 exec_lo, 0x1fffffff, -1
    s_mov_b32 exec_hi, 0
    s_mov_b32 s31, {POLL_MAX}
L_p2:
    global_load_dwordx2 v[60:61], v3, s[20:21] sc1
    s_waitcnt vmcnt(0)
    v_cmp_ne_u32 vcc, s{S_TAG}, v60
    v_cmp_ne_u32 s[48:49], s{S_TAG8}, v61
    s_sub_u32 s31, s31, 1
    s_cbranch_scc1 L_p2d
    s_or_b64 exec, vcc, s[48:49]
    s_cbranch_scc1 L_p2
L_p2d:
    s_mov_b64 exec, -1
""")
if OPT["gpf"]:
    E(f"""
    s_mul_i32 s30, s32, {2560*256}
    s_lshr_b32 s31, s2, 3
    s_mul_i32 s31, s31, {160*128}
    s_add_u32 s30, s30, s31
    v_lshl_add_u32 v3, v1, 7, s30
    v_min_u32 v3, {G_HALF - 128 - 8192}, v3
    s_mul_i32 s30, s{S_HALF}, {G_HALF}
    {f"s_add_u32 s30, s30, {WS0}" if WS0 else ""}
    v_add_u32 v3, s30, v3
    v_add_u32 v2, 8192, v3
    {"s_bfm_b64 exec, %d, 0" % OPT["gpf"] if OPT["gpf"] < 64 else ""}
    global_load_dword v21, v3, s[20:21] sc1
    {"s_bfm_b64 exec, %d, 0" % (OPT["gpf"]-64) if 64 < OPT["gpf"] < 128 else ""}
    {"global_load_dword v29, v2, s[20:21] sc1" if OPT["gpf"] > 64 else ""}
    s_mov_b64 exec, -1
    """)
E(f"""
    s_branch L_b4
L_nog1:
    s_cmp_lg_u32 s33, 0
    s_cbranch_scc1 L_g1c
""")
for rt in range(3):
    for ks in range(4): E(xread(rt, ks))
E(f"""
    s_branch L_g2x
L_g1b:
    s_waitcnt lgkmcnt(0)
""")
for ks in range(4): mf(1, ks, False, AC+8)
E("s_sub_u32 s29, s3, 4")
rec_setup()
pack(0, False)
pack(1, True)
E(f"""
    s_mov_b64 exec, 1
    ds_add_u32 v6, v7 offset:{L_GST}
    s_mov_b64 exec, -1
L_g1c:
""")
STAMP(4)
get_tag("w", 160)
E(f"""
    s_branch L_rec
L_sort:
""")
STAMP(1)
E(f"""
    s_cmp_lg_u32 s{S_SAFE}, 0
    s_cbranch_scc1 L_sortskip
    v_mov_b32 v21, 1
    s_mov_b32 s31, 52429
    s_movk_i32 s32, -20
    v_lshlrev_b32 v9, 3, v1
    v_lshlrev_b32 v33, 4, v0
    s_mul_i32 s30, s{S_P}, {SORTB}
    s_add_u32 s30, s30, {WS_REC + 4096}
    v_add_u32 v32, s30, v33
    v_add_u32 v34, 8192, v32
    v_add_u32 v35, 16384, v32
    s_lshl_b32 s30, s{S_P}, 10
    s_add_u32 s30, s30, {WS_ROW}
    v_lshl_add_u32 v42, v1, 4, s30
    s_mov_b32 s34, {POLL_MAX}
    s_setprio 3
    s_waitcnt vmcnt(6)
""")
STAMP(2)
FSTAMP(1)
for i in range(5):
    E(f"""
    v_mul_u32_u24 v{22+i}, s31, v{4+i}
    v_lshrrev_b32 v{22+i}, 22, v{22+i}
    v_lshlrev_b32 v{22+i}, 2, v{22+i}        ; bucket*4
    ds_add_rtn_u32 v{27+i}, v{22+i}, v21 offset:{L_SCNT}
    """)
E(f"""
    s_mov_b64 exec, 1
    s_cmp_lg_u32 s3, 0
    s_cbranch_scc1 L_notag
    s_waitcnt vmcnt(5)
    ds_write_b32 v48, v43 offset:{L_SCNT + 125*4}
L_notag:
    ds_add_u32 v48, v21 offset:{L_SCNT + 127*4}
    s_mov_b64 exec, -1
L_s1:
    ds_read_b32 v38, v48 offset:{L_SCNT + 127*4}
    ds_read_b64 v[36:37], v9 offset:{L_SCNT}
    s_sub_u32 s34, s34, 1
    s_cbranch_scc1 L_s1d
    s_waitcnt lgkmcnt(0)
    v_readfirstlane_b32 s30, v38
    s_cmp_lg_u32 s30, 4
    s_cbranch_scc1 L_s1
L_s1d:
""")
FSTAMP(2)
E(f"""
    v_add_u32 v39, v36, v37
    v_add_u32 v38, v36, v37
    v_readlane_b32 s{S_TAGRAW}, v37, 62
""")
fill = []
for i in range(5):
    fill += [f"v_mad_i32_i24 v{4+i}, v{22+i}, s32, v{4+i}", f"v_lshlrev_b32 v{4+i}, 24, v{4+i}"]
for k, m in enumerate(SCAN):
    E(f"v_add_u32_dpp v39, v39, v39 {m}")
    for x in fill[2*k:2*k+2]: E(x)
E(f"""
    v_sub_u32 v40, v39, v38
    v_add_u32 v41, v40, v36
    ds_write_b64 v9, v[40:41] offset:{L_SOFF}
""")
for i in range(5):
    E(f"ds_read_b32 v{22+i}, v{22+i} offset:{L_SOFF}")
finish_tag()
E(f"""
    s_cmp_lg_u32 s3, 0
    s_cbranch_scc1 L_nopub
    s_lshl_b32 s35, s{S_TAG8}, 24
    v_mov_b32 v45, s{S_TAG}
    v_mov_b32 v47, s{S_TAG}
    v_lshl_or_b32 v44, v36, 12, v40
    v_lshl_or_b32 v46, v37, 12, v41
    v_or_b32 v44, s35, v44
    v_or_b32 v46, s35, v46
    global_store_dwordx4 v42, v[44:47], s[20:21] sc1
    s_waitcnt vmcnt(1)
    s_branch L_pub
L_nopub:
    s_waitcnt vmcnt(0)
L_pub:
""")
STAMP(4)
FSTAMP(3)
E("""
    v_mov_b64 v[56:57], v[54:55]
    v_mov_b64 v[64:65], v[62:63]
    s_waitcnt lgkmcnt(0)
""")
for i in range(5):
    E(f"""
    v_lshl_or_b32 v{54+4*i}, v{12+i}, 8, v{4+i}
    v_mov_b32 v{55+4*i}, s{S_TAG}
    v_add_lshl_u32 v{22+i}, v{22+i}, v{27+i}, 4
    ds_write_b128 v{22+i}, v[{52+4*i}:{55+4*i}] offset:{L_SORT}
    """)
E(f"""
    s_mov_b64 exec, 1
    ds_add_u32 v48, v21 offset:{L_SCNT + 126*4}
    s_mov_b64 exec, -1
""")
FSTAMP(4)
E(f"""
L_s2:
    ds_read_b32 v38, v48 offset:{L_SCNT + 126*4}
    ds_read_b128 v[72:75], v33 offset:{L_SORT}
    s_sub_u32 s34, s34, 1
    s_cbranch_scc1 L_s2d
    s_waitcnt lgkmcnt(1)
    v_readfirstlane_b32 s30, v38
    s_cmp_lg_u32 s30, 4
    s_cbranch_scc1 L_s2
L_s2d:
""")
FSTAMP(5)
for k in range(1, 5): E(f"ds_read_b128 v[{72+4*k}:{75+4*k}], v33 offset:{L_SORT + 4096*k}")
for k in range(5):
    E(f"s_waitcnt lgkmcnt({4-k})")
    E(f"global_store_dwordx4 v{(32,32,34,34,35)[k]}, v[{72+4*k}:{75+4*k}], s[20:21] offset:{0 if k & 1 else -4096} sc1")
FSTAMP(6)
for k in range(5): E(f"ds_write_b128 v33, v[48:51] offset:{L_SORT + 4096*k}")
STAMP(3)
FSTAMP(7)
RA = 72; RB = RA + 4*NP; RAD = RB + 4*NP
E(f"""
    s_branch L_sortdone
L_sortskip:
    s_waitcnt vmcnt(0)
L_sortdone:
    v_mov_b32 v21, 0x100
    s_mov_b64 exec, 1
    ds_add_u32 v48, v21 offset:{L_CTR}
    s_mov_b64 exec, -1
    v_lshrrev_b32 v5, 3, v1
    v_bfe_u32 v3, v1, 4, 1
    v_lshlrev_b32 v3, 1, v3
    v_and_b32 v20, 7, v1
    v_xor_b32 v3, v3, v20
    v_lshlrev_b32 v3, 4, v3
    v_lshl_add_u32 v10, v5, 8, v3
    s_lshl_b32 s30, s{S_HALF}, 7
    s_and_b32 s31, s3, 1
    s_lshl_b32 s31, s31, 14
    s_add_u32 s30, s30, s31
    v_add_u32 v10, s30, v10
    v_xor_b32 v11, 64, v10
    v_add_u32 v12, 2048, v10
    v_add_u32 v13, 3072, v11
    v_add_u32 v11, 1024, v11
    s_lshl_b32 s30, s3, 13
    s_add_u32 m0, s30, {L_WAU}
    s_cmp_lt_u32 s3, 2
    s_cselect_b32 s34, s16, s12
    s_cselect_b32 s35, s17, s13
    global_load_lds_dwordx4 v10, s[34:35]
    global_load_lds_dwordx4 v11, s[34:35] offset:1024
    global_load_lds_dwordx4 v12, s[34:35] offset:2048
    global_load_lds_dwordx4 v13, s[34:35] offset:3072
    s_add_u32 m0, m0, 4096
    s_add_u32 s34, s34, 8192
    s_addc_u32 s35, s35, 0
    global_load_lds_dwordx4 v10, s[34:35]
    global_load_lds_dwordx4 v11, s[34:35] offset:1024
    global_load_lds_dwordx4 v12, s[34:35] offset:2048
    global_load_lds_dwordx4 v13, s[34:35] offset:3072
    s_mov_b32 s29, s3
""")
rec_setup()
E(f"""
L_rec:
    s_mov_b32 s40, {f32(-LOG2E)}
    s_mov_b32 s46, 0x3f80
""")
lds_wait(L_CTR, 0xff, 8, "r0")
main_consts()
STAMP(5)
E("s_cmp_lt_u32 s3, 4\ns_cbranch_scc1 L_nod2")
done2("w")
E(f"""
    s_branch L_nod3
L_nod2:
    v_mov_b32 v2, 0
    v_mov_b32 v3, 0x10000
    s_mov_b64 exec, 1
    s_waitcnt vmcnt(0)
    ds_add_u32 v2, v3 offset:{L_CTR}
    s_mov_b64 exec, -1
L_nod3:
    s_cmp_lg_u32 s{S_SAFE}, 0
    s_cbranch_scc1 L_recskip
    s_mov_b64 exec, s[66:67]
    s_mov_b32 s34, {POLL_MAX}
    s_branch L_p1c
L_p1:
    global_load_dwordx2 v[154:155], v150, s[20:21] sc1
L_p1c:
    s_waitcnt vmcnt(0)
    v_cmp_ne_u32 vcc, s{S_TAG}, v155
    v_cmp_ne_u32_sdwa s[48:49], v154, s{S_TAG8} src0_sel:BYTE_3 src1_sel:DWORD
    s_sub_u32 s34, s34, 1
    s_cbranch_scc1 L_p1d
    s_or_b64 exec, vcc, s[48:49]
    s_cbranch_scc1 L_p1
L_p1d:
    s_mov_b64 exec, -1
""")
STAMP(6)
if OPT["cnt"]: E(f"s_sub_u32 s{ST0+2}, {POLL_MAX+1}, s34\ns_mov_b32 s34, {POLL_MAX}")
E(f"""
    v_and_b32 v155, 0xfff, v154
    v_bfe_u32 v154, v154, 12, 12              ; count
    v_add_lshl_u32 v155, v155, v149, 4
    v_cmp_lt_u32 vcc, 32, v154
    v_cmp_lt_u32 s[68:69], 16, v154
    s_cbranch_vccnz L_toobig
""")
for p in range(NP):
    E(f"""
    v_add_co_u32_dpp v2, vcc, v154, v151 row_newbcast:{p} row_mask:0xf bank_mask:0xf
    v_add_u32_dpp v{RAD+p}, v155, v152 row_newbcast:{p} row_mask:0xf bank_mask:0xf
    s_mov_b64 s[{48+2*p}:{49+2*p}], vcc
    """)
if OPT["gate"]:
    E(f"""
    s_cmp_lt_u32 s3, 4
    s_cselect_b32 s28, {L_GST}, 0
    s_cselect_b32 s29, 0, {L_DONE2}
    s_cselect_b32 s32, 8, 9
    s_add_u32 s28, s28, s29
    v_mov_b32 v2, s28
    s_mov_b32 s31, {POLL_MAX}
L_gate:
    ds_read_b32 v3, v2
    s_sub_u32 s31, s31, 1
    s_cbranch_scc1 L_gated
    s_waitcnt lgkmcnt(0)
    v_readfirstlane_b32 s30, v3
    s_cmp_lg_u32 s30, s32
    s_cbranch_scc1 L_gate
L_gated:
    """)
E(f"""
    s_or_b32 s68, s68, s69
    s_lshr_b32 s69, s68, 16
    s_or_b32 s68, s68, s69
    s_cbranch_scc0 L_noex
""")
for p in range(NP):
    r = RB + 4*p
    E(f"""
    s_bitcmp1_b32 s68, {p}
    s_cbranch_scc0 L_nx{p}
    v_add_co_u32_dpp v2, vcc, v154, v153 row_newbcast:{p} row_mask:0xf bank_mask:0xf
    s_mov_b64 exec, vcc
    global_load_dwordx4 v[{r}:{r+3}], v{RAD+p}, s[20:21] offset:256 sc1
    s_mov_b64 exec, -1
L_nx{p}:
    """)
E("L_noex:")
for p in range(NP):
    r = RA + 4*p
    E(f"""
    s_mov_b64 exec, s[{48+2*p}:{49+2*p}]
    global_load_dwordx4 v[{r}:{r+3}], v{RAD+p}, s[20:21] sc1
    """)
E("s_mov_b64 exec, -1")
STAMP(7)
lds_wait(L_CTR, 0xffff, 0x0408, "r1")
retries = []
def rank(r, m, ad, off, tag):
    E(f"""
    s_mov_b64 exec, {m}
    v_cmp_ne_u32 vcc, s{S_TAG}, v{r+3}
    s_cbranch_vccnz L_rt{tag}
L_rr{tag}:
    v_mul_u32_u24_sdwa v{r+3}, v156, v{r+2} dst_sel:DWORD dst_unused:UNUSED_PAD src0_sel:DWORD src1_sel:BYTE_3
    v_and_b32 v{r+2}, {OPT['srcmask']}, v{r+2}
    ds_add_rtn_u32 v{r+3}, v{r+3}, v156 offset:{L_CNT}
    """)
    retries.append(f"""
L_rt{tag}:
    s_mov_b64 exec, vcc
    global_load_dwordx4 v[{r}:{r+3}], v{ad}, s[20:21] offset:{off} sc1
    s_sub_u32 s34, s34, 1
    s_cbranch_scc1 L_toobig
    s_waitcnt vmcnt(0)
    v_cmp_ne_u32 vcc, s{S_TAG}, v{r+3}
    s_cbranch_vccnz L_rt{tag}
    s_mov_b64 exec, {m}
    s_branch L_rr{tag}
    """)
def put(r, m):
    E(f"""
    s_mov_b64 exec, {m}
    v_lshlrev_b32 v2, 1, v{r+3}
    ds_write_b32 v{r+3}, v{r+2}
    ds_write_b64 v2, v[{r}:{r+1}] offset:{L_EA - 2*L_SRC}
    """)
E(f"""
    s_cmp_eq_u32 s68, 0
    s_cbranch_scc1 L_noey
    s_waitcnt vmcnt({NP})
""")
for p in range(NP):
    r = RB + 4*p
    E(f"""
    s_bitcmp1_b32 s68, {p}
    s_cbranch_scc0 L_ny{p}
    v_add_co_u32_dpp v2, vcc, v154, v153 row_newbcast:{p} row_mask:0xf bank_mask:0xf
    s_mov_b64 s[64:65], vcc
    """)
    rank(r, "s[64:65]", RAD+p, 256, f"b{p}")
    E("s_waitcnt lgkmcnt(0)")
    put(r, "s[64:65]")
    E(f"s_mov_b64 exec, -1\nL_ny{p}:")
E("L_noey:")
LAG = 2
for p in range(NP + LAG):
    if p < NP:
        E(f"s_waitcnt vmcnt({NP-1-p})")
        rank(RA + 4*p, f"s[{48+2*p}:{49+2*p}]", RAD+p, 0, f"a{p}")
    q = p - LAG
    if q >= 0:
        younger = 0
        for j in range(q+1, min(p, NP-1)+1): younger += 1
        for j in range(max(0, q-LAG), q): younger += 2
        E(f"s_waitcnt lgkmcnt({younger})")
        put(RA + 4*q, f"s[{48+2*q}:{49+2*q}]")
E(f"""
    s_mov_b64 exec, -1
    {f"s_sub_u32 s{ST0+4}, {POLL_MAX+1}, s34" if OPT["cnt"] else ""}
    s_branch L_b4
L_toobig:
    s_mov_b64 exec, -1
    v_mov_b32 v2, 0
    ds_write_b32 v2, v156 offset:{L_FLAG}
L_recskip:
    s_waitcnt vmcnt(0)
L_b4:
    s_setprio 0
    s_mul_i32 s30, s{S_HALF}, {G_HALF}
    {f"s_add_u32 s30, s30, {WS0}" if WS0 else ""}
    s_add_u32 s36, s20, s30
    s_addc_u32 s37, s21, 0
    s_mov_b32 s38, {OPT['nrec'] or G_HALF}
    s_mov_b32 s39, 0x20000
    s_mov_b32 s44, {2*LSTR}
    s_mov_b32 s45, {2*LSTR}
    ds_read_b64 v[60:61], v{LP}
    ds_read_b32 v62, v{LP+1}
    ds_read_b32 v63, v{LP} offset:{LSTR}
    ds_read_b32 v{WN}, v{LP} offset:{LSTR + 4}
    ds_read_b32 v{WE}, v{LP+1} offset:{LSTR}
    ds_read_b32 v{WS_}, v{LP} offset:{2*LSTR}
    s_waitcnt lgkmcnt(0)
    v_add_u32 v{AG}, v61, v{LN8}
    v_lshl_add_u32 v62, v62, 1, v{EAC}
""")
if OPT["warm"]:
    E(f"""
    s_barrier
    s_lshr_b32 s30, s2, 3
    s_mul_i32 s30, s30, 98304
    v_lshl_add_u32 v2, v0, 7, s30
    buffer_load_dword v3, v2, s[36:39], 0 offen sc1
    s_waitcnt vmcnt(0)
    s_sleep 40
    """)
STAMP(8)
E(f"""
    s_barrier                               ; B4
    s_cmp_lg_u32 s{S_SAFE}, 0
    s_cbranch_scc1 L_safe
    ds_read_b128 v[{OFS}:{OFS+3}], v60
    ds_read_b128 v[{OFS+4}:{OFS+7}], v60 offset:16
    ds_read_b128 v[{T}:{T+3}], v63
    ds_read_b128 v[{T+4}:{T+7}], v63 offset:16
    ds_read_b64 v[{XA}:{XA+1}], v{AG} offset:512
    ds_read_b64 v[{EA}:{EA+1}], v62
    s_cmp_lg_u32 s3, {NW-1}
    s_cbranch_scc1 L_nobuild
    v_lshlrev_b32 v2, 3, v1
    v_mov_b32 v3, 0
    ds_read_b64 v[64:65], v2 offset:{L_CNT}
    ds_read_b32 v71, v3 offset:{L_FLAG}
    v_mul_u32_u24 v66, {2*SSTR}, v1
    v_add_u32 v66, {L_SRC + 96}, v66
    v_add_u32 v68, {SSTR}, v66
    v_mul_u32_u24 v67, {2*NSTR}, v1
    v_add_u32 v67, {L_NODE}, v67
    v_add_u32 v69, {NSTR}, v67
    s_waitcnt lgkmcnt(0)
    v_sub_u32 v64, v64, v66 clamp
    v_sub_u32 v65, v65, v68 clamp
    v_max_u32 v70, v64, v65
    v_cmp_lt_u32 vcc, 160, v70
    v_cmp_ne_u32 s[48:49], 0, v71
    v_add_u32 v64, 31, v64
    v_add_u32 v65, 31, v65
    s_or_b64 vcc, vcc, s[48:49]
    s_cbranch_scc1 L_bad
    v_lshrrev_b32 v64, 5, v64
    v_lshrrev_b32 v65, 5, v65
    v_add_u32 v70, v64, v65
    v_add_u32 v71, v64, v65
""")
scan(71)
E(f"""
    v_sub_u32 v70, v71, v70
    v_lshlrev_b32 v70, 3, v70
    v_readlane_b32 s30, v71, 63
    v_lshl_add_u32 v71, v64, 3, v70
""")
for b in range(5):
    E(f"""
    v_cmp_lt_u32 vcc, {b}, v64
    v_cmp_lt_u32 s[48:49], {b}, v65
    s_mov_b64 exec, vcc
    ds_write_b64 v70, v[66:67] offset:{L_LIST + 8*NSTATIC + 8*b}
    s_mov_b64 exec, s[48:49]
    ds_write_b64 v71, v[68:69] offset:{L_LIST + 8*NSTATIC + 8*b}
    s_mov_b64 exec, -1
    """)
    if b < 4: E("v_add_u32 v66, 32, v66\nv_add_u32 v68, 32, v68")
E(f"""
    s_add_u32 s30, s30, {NSTATIC + 3}
    s_lshr_b32 s30, s30, 2
    s_branch L_built
L_bad:
    s_mov_b32 s30, -1
L_built:
    v_mov_b32 v2, s30
    ds_write_b32 v3, v2 offset:{L_NST}
    s_cmp_lg_u32 s{S_P}, 0
    s_cbranch_scc1 L_nobuild
    v_mov_b32 v2, s{S_TAG}
    v_mov_b32 v3, {WS_TAG}
    s_mov_b64 exec, 1
    global_store_dword v3, v2, s[20:21]
    s_mov_b64 exec, -1
L_nobuild:
    s_waitcnt lgkmcnt(0)
""")
for i, o in enumerate((OFS, OFS+4, T, T+4)):
    E(oadd(o)); E(oadd(o+2))
    if not OPT["nogather"]:
        for q in range(4): E(gload(G + 16*i + 4*q, o+q))
STAMP(9)
E(m_a(D0)); E(m_e(D0, 0))
E(f"""
    v_mov_b32 v2, 0
    s_mov_b32 s31, {POLL_MAX}
    s_waitcnt vmcnt(12)
""")
E(m_s(D0, A1, G)); E(m_s(D0, A2, G+8))
E(f"""
L_wn:
    ds_read_b32 v3, v2 offset:{L_NST}
    s_waitcnt lgkmcnt(0)
    v_readfirstlane_b32 s{S_N}, v3
    s_sub_u32 s31, s31, 1
    s_cmp_eq_u32 s31, 0
    s_cbranch_scc1 L_wnd
    s_cmp_eq_u32 s{S_N}, 0
    s_cbranch_scc1 L_wn
L_wnd:
    s_cmp_gt_u32 s{S_N}, {0 if OPT["force_safe"] else 160}
    s_cbranch_scc1 L_gosafe
    s_add_u32 s{S_K}, s3, {2*NW}
    s_add_u32 s28, s{S_N}, {2*NW}
    s_mov_b32 s{S_IT}, 0
    s_nop 3
""")
if OPT["prio"]: E("s_setprio 3")
STAMP(10)
if OPT["stamps"]: E(f"s_memtime s[{ST0+24}:{ST0+25}]\ns_waitcnt lgkmcnt(0)")
E("L_A:")
body(0, True)
E(f"s_cmp_ge_u32 s{S_K}, s{S_N}\ns_cbranch_scc1 L_Bt")
body(1, True)
if OPT["prio"]:
    E(f"""
    s_add_u32 s{S_IT}, s{S_IT}, 1
    s_setprio 0
    s_cmp_gt_u32 s{S_IT}, 2
    s_cbranch_scc1 L_pr
    s_setprio 1
    s_cmp_eq_u32 s{S_IT}, 2
    s_cbranch_scc1 L_pr
    s_setprio 2
L_pr:
    """)
E(f"s_cmp_lt_u32 s{S_K}, s{S_N}\ns_cbranch_scc1 L_A")
E("L_At:")
body(0, False)
E(f"s_cmp_ge_u32 s{S_K}, s28\ns_cbranch_scc1 L_mdone")
E("L_Bt:")
body(1, False)
if OPT["prio"]: E("s_setprio 0")
E(f"s_cmp_lt_u32 s{S_K}, s28\ns_cbranch_scc1 L_At")
E(f"""
L_mdone:
    s_waitcnt lgkmcnt(0)
""")
STAMP(11)
if OPT["stamps"]:
    E(f"s_memtime s[28:29]\ns_waitcnt lgkmcnt(0)\ns_sub_u32 s{ST0+24}, s28, s{ST0+24}")
E(f"""
    v_lshrrev_b32 v2, 5, v0
    v_and_b32 v3, 31, v0
    v_mul_u32_u24 v4, {NSTR}, v2
    v_and_b32 v5, 1, v3
    v_lshl_add_u32 v4, v5, 8, v4
    v_lshrrev_b32 v5, 1, v3
    v_lshl_add_u32 v4, v5, 3, v4
    v_add_u32 v4, {L_NODE}, v4
    s_mul_i32 s30, s{S_BUCK}, {NB*256}
    s_lshl_b32 s31, s{S_HALF}, 7
    s_add_u32 s30, s30, s31
    v_lshlrev_b32 v3, 2, v3
    v_lshl_add_u32 v5, v2, 8, v3
    v_add_u32 v5, s30, v5
    v_add_u32 v6, {24*256}, v5
    v_add_u32 v7, {48*256}, v5
    v_add_u32 v8, {72*256}, v5
    s_mov_b32 s32, {f32(2.0**-32)}
    s_mov_b32 s34, {f32(-LOG2E * 2.0**-32)}
    v_mov_b32 v9, 0x207
    s_barrier                               ; B5
""")
OSC = {0: "", 1: " sc1", 2: " nt"}[OPT["osc"]]
def epi(us):
    for u in us: E(f"ds_read_b64 v[{12+4*u}:{13+4*u}], v4 offset:{24*NSTR*u}\nds_read_b64 v[{14+4*u}:{15+4*u}], v4 offset:{24*NSTR*u + 128}")
    E("s_waitcnt lgkmcnt(0)")
    for u in us: E(f"v_cvt_f32_f64 v{28+2*u}, v[{12+4*u}:{13+4*u}]\nv_cvt_f32_f64 v{29+2*u}, v[{14+4*u}:{15+4*u}]")
    for u in us: E(f"v_pk_mul_f32 v[{36+2*u}:{37+2*u}], v[{28+2*u}:{29+2*u}], s[34:35] op_sel_hi:[1,0]")
    for u in us: E(f"v_exp_f32 v{36+2*u}, v{36+2*u}\nv_exp_f32 v{37+2*u}, v{37+2*u}")
    for u in us: E(f"v_pk_mul_f32 v[{28+2*u}:{29+2*u}], v[{28+2*u}:{29+2*u}], s[32:33] op_sel_hi:[1,0]")
    for u in us: E(f"v_pk_add_f32 v[{36+2*u}:{37+2*u}], v[{36+2*u}:{37+2*u}], 1.0 op_sel_hi:[1,0]")
    for u in us: E(f"v_rcp_f32 v{36+2*u}, v{36+2*u}\nv_rcp_f32 v{37+2*u}, v{37+2*u}")
    E("v_pk_add_f32 v[10:11], v[28:29], v[30:31]")
    for u in us: E(f"v_pk_mul_f32 v[{36+2*u}:{37+2*u}], v[{28+2*u}:{29+2*u}], v[{36+2*u}:{37+2*u}]")
    for u in us: E(f"v_cvt_pk_bf16_f32 v{44+u}, v{36+2*u}, v{37+2*u}\nglobal_store_dword v{5+u}, v{44+u}, s[18:19]{OSC}")
    for u in us[2:]: E(f"v_pk_add_f32 v[10:11], v[10:11], v[{28+2*u}:{29+2*u}]")
E("s_cmp_ge_u32 s3, 4\ns_cbranch_scc1 L_e3")
epi([0, 1, 2, 3])
E("s_branch L_e4\nL_e3:")
epi([0, 1, 2])
E(f"""
L_e4:
    v_add_f32 v10, v10, v11
    v_cmp_class_f32 vcc, v10, v9
    v_mov_b32 v2, 0
    s_cmp_lg_u32 s{S_SAFE}, 0
    s_cbranch_scc1 L_fin
    {"s_branch" if OPT["nosafe"] else "s_cbranch_vccz"} L_e5
    ds_write_b32 v2, v9 offset:{L_FLAG}
    s_waitcnt lgkmcnt(0)
L_e5:
    s_barrier                               ; B6
    ds_read_b32 v2, v2 offset:{L_FLAG}
    s_waitcnt lgkmcnt(0)
    v_readfirstlane_b32 s30, v2
    s_cmp_lg_u32 s30, 0
    s_cbranch_scc1 L_gosafe
L_fin:
""")
if OPT["stamps"]:
    E("s_waitcnt vmcnt(0)"); STAMP(13); STAMP_OUT()
if OPT["probe"] >= 0:
    T_ = ST0 + 2*OPT["probe"]
    E(f"""
    s_cmp_lg_u32 s3, {OPT["pw"]}
    s_cbranch_scc1 L_end
    s_cmp_lg_u32 s2, {OPT["pg"] if OPT["pg"] >= 0 else "s2"}
    s_cbranch_scc1 L_end
    s_sub_u32 s30, s{T_}, s{ST0}
    s_lshl_b32 s30, s30, 2
    s_add_u32 s30, s30, 3000
    s_min_u32 s30, s30, 20000
L_spin:
    s_memrealtime s[28:29]
    s_waitcnt lgkmcnt(0)
    s_sub_u32 s28, s28, s{ST0}
    s_cmp_lt_u32 s28, s30
    s_cbranch_scc1 L_spin
    """)
E(f"""
L_end:
    s_endpgm
L_gosafe:
    s_mov_b32 s{S_SAFE}, 8
    s_setprio 0
    s_waitcnt vmcnt(0) lgkmcnt(0)
    s_barrier
    s_branch L_restart
""")
for r in retries: E(r)
E(f"""
L_safe:
    v_and_b32 v2, 15, v1
    v_lshlrev_b32 v3, 3, v2
    v_add_u32 v3, {L_C}, v3
""")
for k in range(4):
    for s in range(4):
        E(f"ds_read_u16 v{80+4*k+s}, v3 offset:{128*k + 2*s}")
E("s_waitcnt lgkmcnt(0)")
for i in range(16):
    E(f"v_lshlrev_b32 v{80+i}, 16, v{80+i}\nv_mul_f32 v{80+i}, s40, v{80+i}")
E(f"""
    v_lshrrev_b32 v24, 4, v1
    s_movk_i32 s33, {NSTR}
    v_add_u32 v25, {L_NODE}, v{LN8}
    s_mov_b32 s34, s3
L_scell:
    s_lshl_b32 s30, s34, 10
    s_lshl_b32 s31, s{S_BUCK}, 3
    s_add_u32 s30, s30, s31
    s_add_u32 s30, s30, {WS_ROW}
    v_mov_b32 v26, s30
    global_load_dword v27, v26, s[20:21] sc1
    s_mul_i32 s30, s34, {CHUNK}
    s_add_u32 s30, s30, {WS_REC//16}
    s_waitcnt vmcnt(0)
    v_bfe_u32 v28, v27, 12, 12              ; count
    v_and_b32 v27, 0xfff, v27
    v_add_u32 v27, s30, v27
    v_mov_b32 v29, v24
L_srec:
    v_cmp_gt_u32 vcc, v28, v29
    s_and_saveexec_b64 s[48:49], vcc
    s_cbranch_execz L_snext
    v_add_lshl_u32 v30, v27, v29, 4
    s_mov_b32 s31, {POLL_MAX}
L_sget:
    global_load_dwordx4 v[32:35], v30, s[20:21] sc1
    s_sub_u32 s31, s31, 1
    s_cbranch_scc1 L_snext
    s_waitcnt vmcnt(0)
    v_cmp_ne_u32 vcc, s{S_TAG}, v35
    s_cbranch_vccnz L_sget
    v_and_b32 v30, 0x3fff00, v34
    v_add_u32 v30, v30, v{LN16}
    buffer_load_dwordx4 v[36:39], v30, s[36:39], 0 offen sc1
    v_lshrrev_b32 v31, 24, v34
    v_mad_u32_u24 v31, v31, s33, v25
    ds_read_b64 v[40:41], v31 offset:512
    v_lshlrev_b32 v44, 16, v32
    v_and_b32 v45, 0xffff0000, v32
    v_lshlrev_b32 v46, 16, v33
    v_and_b32 v47, 0xffff0000, v33
    s_waitcnt vmcnt(0) lgkmcnt(0)
    v_lshlrev_b32 v48, 16, v40
    v_and_b32 v49, 0xffff0000, v40
    v_lshlrev_b32 v50, 16, v41
    v_and_b32 v51, 0xffff0000, v41
""")
for s in range(4):
    E(f"v_lshlrev_b32 v52, 16, v{36+s}\nv_add_f32 v{48+s}, v{48+s}, v52")
    for k in range(4):
        E(f"v_fmac_f32 v{48+s}, v{44+k}, v{80+4*k+s}")
for s in range(4): E(f"v_exp_f32 v{48+s}, v{48+s}")
E("s_nop 0")
for s in range(4): E(f"v_add_f32 v{48+s}, 1.0, v{48+s}")
for s in range(4): E(f"v_rcp_f32 v{48+s}, v{48+s}")
E("s_nop 0")
for s in range(4): E(f"v_mul_f32 v{48+s}, v{48+s}, v{36+s}")
for s in range(4): E(f"v_cvt_f64_f32 v[{54+2*s}:{55+2*s}], v{48+s}")
for s in range(4): E(f"ds_add_f64 v31, v[{54+2*s}:{55+2*s}] offset:{128*s}")
E(f"""
    s_mov_b64 exec, s[48:49]
    v_add_u32 v29, 4, v29
    s_branch L_srec
L_snext:
    s_mov_b64 exec, s[48:49]
    s_add_u32 s34, s34, {NW}
    s_cmp_lt_u32 s34, {NCHUNK}
    s_cbranch_scc1 L_scell
    s_branch L_mdone
L_codeend:
.section .rodata,"a"
.p2align 6
.amdhsa_kernel {NAME}
.amdhsa_next_free_vgpr 168
.amdhsa_next_free_sgpr 102
.amdhsa_accum_offset 168
.amdhsa_group_segment_fixed_size 0
.amdhsa_kernarg_size 80
.amdhsa_user_sgpr_count 2
.amdhsa_user_sgpr_kernarg_segment_ptr 1
.amdhsa_system_sgpr_workgroup_id_x 1
.end_amdhsa_kernel
""")
if OPT["nochain"]:
    i0 = out.index("L_A:"); i1 = out.index("L_mdone:")
    out = out[:i0] + [l for l in out[i0:i1] if not any(x in l for x in ("v_exp", "v_pk_", "mfma", "v_rcp", "v_cvt"))] + out[i1:]
open(sys.argv[1], "w").write("\n".join(out) + "\n")
```

```python
import sys, struct

OPT = dict(stamps=0, force_safe=0, nogather=0, nosafe=0, prio=1, gsc1=1, osc=0, spin=0, codepf=1, srcmask=0x3fff00, nrec=0, warm=0, nochain=0, probe=-1, pw=-1, pg=-1, gpf=0, gate=1, aulate=0, early=0, cnt=0, rsc1=1, rdelay=0, p2sleep=0, touch=0, wsoff=0, rot=0)
for a in sys.argv[2:]:
    k, v = a.split("=")
    assert k in OPT, k
    OPT[k] = int(v, 0)

out = []
def E(s=""):
    for line in s.split("\n"):
        line = line.strip()
        if not line:
            continue
        if line.endswith(":") or line.startswith(".") or line.startswith(";"):
            out.append(line)
        else:
            out.append("    " + line)

def f32(x):
    return "0x%08x" % struct.unpack("<I", struct.pack("<f", x))[0]

NAME = "standalone__edge_featured_mpnn_egc__graph_kernel"
LOG2E = 1.4426950408889634
NB = 80; NBUCK = 125; CHUNK = 1280; NCHUNK = 250
NW = 12
G_HALF = 10000 * 256
WS0 = OPT["wsoff"] << 20
WS_REC = WS0 + 0x500000
WS_ROW = WS0 + 0xa00000
WS_FL2 = WS0 + 0xa80000
WS_TAG = WS0 + 0xac0000
SORTB = CHUNK * 16
WS_STAMP = 0x1000000
L_CNT = 0; L_SOFF = 512
L_SCNT = 1024
L_CTR = 1536; L_RD1 = 1540; L_DONE2 = 1544; L_FLAG = 1548; L_NST = 1552; L_GST = 1556
L_LIST = 2048
SSTR = 272
L_SRC = 7936
L_EA = L_SRC + 81 * SSTR
L_EAEND = L_EA + 81 * 2 * SSTR
L_SORT = L_EA
L_WBV = 74240; L_X = L_WBV + 32768; L_WAU = L_X + 20480; L_C = L_WAU + 32768; L_DUM = L_C + 1024
LDS = L_DUM + 1024
L_NODE = L_WBV; NSTR = 648
assert L_EAEND <= L_WBV and L_NODE + 80 * NSTR <= L_WAU and LDS <= 163840 and L_EA % 16 == 0
NULL_SRC = 0x7fffff00
NSTATIC = 240
LSTR = NW * 32
POLL_MAX = 200000
SC1 = " sc1"

S_HALF, S_BUCK, S_P = 22, 23, 24
S_TAG, S_TAG8, S_SAFE = 25, 26, 27
S_N, S_K, S_IT = 70, 71, 72
S_TAGRAW = 47
ST0 = 74

def ESTAMP(i):
    if OPT["early"] == 1 or (OPT["early"] and i == 0): E(f"s_memrealtime s[{ST0+2*i}:{ST0+2*i+1}]")
def FSTAMP(i):
    if OPT["early"] == 2: E(f"s_memrealtime s[{ST0+2*i}:{ST0+2*i+1}]\ns_waitcnt lgkmcnt(0)")
def STAMP(i):
    if OPT["early"] and 1 <= i <= 7: return
    if OPT["early"] and i == 0: return ESTAMP(0)
    if OPT["stamps"] or (OPT["probe"] >= 0 and i == OPT["probe"]):
        E(f"s_memrealtime s[{ST0+2*i}:{ST0+2*i+1}]\ns_waitcnt lgkmcnt(0)")
    elif OPT["probe"] >= 0 and i == 0:
        E(f"s_memrealtime s[{ST0}:{ST0+1}]")
NSTAMP = 14
def STAMP_OUT():
    if OPT["stamps"]:
        E(f"""
        s_lshl_b32 s30, s2, 4
        s_add_u32 s30, s30, s3
        s_lshl_b32 s30, s30, 6
        s_add_u32 s30, s30, {WS_STAMP - 0x100000}
        s_load_dwordx2 s[20:21], s[0:1], 72
        s_waitcnt lgkmcnt(0)
        s_mov_b64 exec, -1
        v_mov_b32 v3, s30""")
        for i in range(NSTAMP):
            E(f"v_mov_b32 v2, s{ST0+2*i}\nglobal_store_dword v3, v2, s[20:21] offset:{4*i}")
        E("s_waitcnt vmcnt(0)")

A1, A2, IDX, LN8, LN16, ASEL, CW, EAC = 4, 8, 12, 13, 14, 16, 18, 20
LP, WS_, WN, WE, AG, EA, XA, OFS, T, N, P, F = 22, 24, 25, 26, 27, 30, 32, 36, 44, 52, 56, 60
D0, D1, G = 72, 88, 104

def finish_tag():
    E(f"""
    s_mul_i32 s{S_TAG8}, s{S_TAGRAW}, 0x85ebca6b
    s_mul_i32 s{S_TAG}, s{S_TAGRAW}, 0x9e3779b1
    s_lshr_b32 s{S_TAG8}, s{S_TAG8}, 24
    s_add_u32 s{S_TAG}, s{S_TAG}, 0x7f4a7c15
    """)
    if OPT["rot"] == 1:
        E(f"""
        s_and_b32 s30, s{S_TAG8}, 15
        s_lshl_b32 s30, s30, 24
        s_add_u32 s20, s20, s30
        s_addc_u32 s21, s21, 0
        """)
def get_tag(lab, q):
    E(f"""
    s_cmp_lg_u32 s{S_SAFE}, 0
    s_cbranch_scc1 L_tag_{lab}
    v_mov_b32 v2, 0
    s_mov_b32 s31, {POLL_MAX}
L_tg_{lab}:
    ds_read_b128 v[{q}:{q+3}], v2 offset:{L_SCNT + 124*4}
    s_sub_u32 s31, s31, 1
    s_cbranch_scc1 L_tag_{lab}
    s_waitcnt lgkmcnt(0)
    v_readfirstlane_b32 s30, v{q+3}
    v_readfirstlane_b32 s{S_TAGRAW}, v{q+1}
    s_cmp_lg_u32 s30, 4
    s_cbranch_scc1 L_tg_{lab}
    """)
    finish_tag()
    E(f"L_tag_{lab}:")

def lds_wait(addr, mask, val, tag, sleep=0):
    E(f"""
    v_mov_b32 v2, 0
    s_mov_b32 s31, {POLL_MAX}
L_w_{tag}:
    {f"s_sleep {sleep}" if sleep else ""}
    ds_read_b32 v3, v2 offset:{addr}
    s_sub_u32 s31, s31, 1
    s_cbranch_scc1 L_wd_{tag}
    s_waitcnt lgkmcnt(0)
    v_readfirstlane_b32 s30, v3
    s_and_b32 s30, s30, {mask}
    s_cmp_lg_u32 s30, {val}
    s_cbranch_scc1 L_w_{tag}
L_wd_{tag}:
    """)
SCAN = ("row_shr:1 row_mask:0xf bank_mask:0xf bound_ctrl:0", "row_shr:2 row_mask:0xf bank_mask:0xf bound_ctrl:0",
        "row_shr:4 row_mask:0xf bank_mask:0xf bound_ctrl:0", "row_shr:8 row_mask:0xf bank_mask:0xf bound_ctrl:0",
        "row_bcast:15 row_mask:0xa bank_mask:0xf", "row_bcast:31 row_mask:0xc bank_mask:0xf")
def scan(r):
    for m in SCAN:
        E(f"s_nop 1\nv_add_u32_dpp v{r}, v{r}, v{r} {m}")

def main_consts(sm=48):
    E(f"""
    v_and_b32 v2, 15, v1                    ; n'
    v_lshrrev_b32 v3, 4, v1
    v_lshl_add_u32 v3, v2, 2, v3
    v_lshlrev_b32 v3, 1, v3
    v_add_u32 v3, {L_C}, v3
    ds_read_u16 v64, v3                     ; C[0..3][feature 4n'+s]
    ds_read_u16 v65, v3 offset:128
    ds_read_u16 v66, v3 offset:256
    ds_read_u16 v67, v3 offset:384
    v_and_b32 v63, 3, v1                    ; q
    v_lshlrev_b32 v{LN8}, 3, v2
    v_lshlrev_b32 v{LN16}, 4, v2
    v_lshlrev_b32 v{LN16+1}, 4, v2
    v_mov_b32 v{IDX}, 0x8888
    v_bfe_u32 v60, v1, 3, 2                 ; s = (l&31)>>3
    v_bfe_u32 v61, v1, 2, 1                 ; h = (l>>2)&1
    v_lshrrev_b32 v62, 5, v1                ; ha
    v_and_b32 v2, 1, v60
    v_lshlrev_b32 v2, 4, v2
    v_lshlrev_b32 v2, v2, s46
    v_lshrrev_b32 v60, 1, v60               ; s>>1
    v_lshl_add_u32 v3, v61, 1, v60
    v_sub_u32 v63, v63, v62                 ; q - ha : 0 -> A1, 2 -> A2
    v_lshl_add_u32 v3, v63, 1, v3
    v_and_b32 v63, 1, v63
    v_lshl_or_b32 v3, v63, 4, v3
    v_xor_b32 v61, v61, v62
    v_lshl_or_b32 v60, v61, 4, v60
    """)
    mk = [f"s[{sm}:{sm+1}]", f"s[{sm+2}:{sm+3}]", f"s[{sm+4}:{sm+5}]", "vcc"]
    for i in range(8):
        E(f"v_cmp_eq_u32 {mk[i%4]}, {i}, v3")
        if i % 4 == 3:
            for j in range(i-3, i+1):
                E(f"v_cndmask_b32 v{A1+j}, 0, v2, {mk[j%4]}")
    E(f"""
    v_cmp_eq_u32 {mk[0]}, 0, v60
    v_cmp_eq_u32 {mk[1]}, 1, v60
    v_bfe_u32 v61, v1, 4, 1
    v_and_b32 v63, 3, v1
    v_cndmask_b32 v{ASEL}, 0, v2, {mk[0]}
    v_cndmask_b32 v{ASEL+1}, 0, v2, {mk[1]}
    v_lshl_add_u32 v61, v61, 2, v63
    v_lshlrev_b32 v61, 3, v61
    v_add_u32 v{EAC}, {L_EA - 2*L_SRC}, v61
    s_lshl_b32 s30, s3, 5
    s_add_u32 s30, s30, {L_LIST}
    v_lshrrev_b32 v2, 4, v1
    v_lshl_add_u32 v{LP}, v2, 3, s30
    v_bfe_u32 v2, v1, 2, 2
    v_lshl_add_u32 v{LP+1}, v2, 3, s30
    s_waitcnt lgkmcnt(0)
    v_lshlrev_b32 v60, 16, v64
    v_lshlrev_b32 v61, 16, v65
    v_lshlrev_b32 v62, 16, v66
    v_lshlrev_b32 v63, 16, v67
    v_mul_f32 v60, s40, v60
    v_mul_f32 v61, s40, v61
    v_mul_f32 v62, s40, v62
    v_mul_f32 v63, s40, v63
    v_cvt_pk_bf16_f32 v{CW}, v60, v61
    v_cvt_pk_bf16_f32 v{CW+1}, v62, v63
    """)

def gload(g, o):
    return f"buffer_load_dwordx4 v[{g}:{g+3}], v{o}, s[36:39], 0 offen" + (SC1 if OPT["gsc1"] else "")
def oadd(o):
    return f"v_lshl_add_u64 v[{o}:{o+1}], v[{o}:{o+1}], 0, v[{LN16}:{LN16+1}]"

def pk_steps(Gc, q, first):
    t = T + 4*(q & 1); h = Gc + 4*q
    if first and q == 0:
        return [f"v_pk_add_f32 v[{P+2*p}:{P+2*p+1}], v[{t+2*p}:{t+2*p+1}], 1.0 op_sel_hi:[1,0]" for p in range(2)]
    r = []
    for p in range(2):
        n = f"v[{Gc+2*p}:{Gc+2*p+1}]" if (first and q == 1) else f"v[{N+2*p}:{N+2*p+1}]"
        r.append(f"v_pk_fma_f32 v[{N+2*p}:{N+2*p+1}], {n}, v[{t+2*p}:{t+2*p+1}], {n}")
    for p in range(2):
        r.append(f"v_pk_fma_f32 v[{N+2*p}:{N+2*p+1}], v[{h+2*p}:{h+2*p+1}], v[{P+2*p}:{P+2*p+1}], v[{N+2*p}:{N+2*p+1}]")
    for p in range(2):
        r.append(f"v_pk_fma_f32 v[{P+2*p}:{P+2*p+1}], v[{P+2*p}:{P+2*p+1}], v[{t+2*p}:{t+2*p+1}], v[{P+2*p}:{P+2*p+1}]")
    return r
def exps(Dc, q):
    t = T + 4*(q & 1)
    return [f"v_exp_f32 v{t+s}, v{Dc+4*s+q}" for s in range(4)]
def weave(main, extra):
    for i, x in enumerate(main):
        E(x)
        for y in extra.get(i, []):
            E(y)
def m_a(Dn): return f"v_mfma_f32_32x32x8_bf16 v[{Dn}:{Dn+15}], v[{ASEL}:{ASEL+1}], v[{XA}:{XA+1}], 0"
def m_e(Dn, abid): return f"v_mfma_f32_16x16x4_4b_bf16 v[{Dn}:{Dn+15}], v[{EA}:{EA+1}], v[{CW}:{CW+1}], v[{Dn}:{Dn+15}] cbsz:2 abid:{abid}"
def m_s(Dn, A, g): return f"v_smfmac_f32_32x32x32_bf16 v[{Dn}:{Dn+15}], v[{A}:{A+3}], v[{g}:{g+7}], v{IDX}"

def body(par, loads):
    g0 = G + 32*par; g1 = g0 + 16; gn = G + 32*(1-par)
    agc = AG + par; agn = AG + 1 - par
    ld = loads and not OPT["nogather"]
    E("s_waitcnt vmcnt(8) lgkmcnt(4)")
    E(m_a(D1))
    for x in exps(D0, 0): E(x)
    E(m_s(D1, A1, g1))
    for x in exps(D0, 1): E(x)
    ex = {0: [f"v_add_u32 v{agn}, v{WN}, v{LN8}"],
          2: [f"ds_read_b64 v[{XA}:{XA+1}], v{agn} offset:512"],
          5: [f"v_lshl_add_u32 v{WE}, v{WE}, 1, v{EAC}"]}
    if loads:
        ex[1] = [f"ds_read_b128 v[{OFS}:{OFS+3}], v{WS_}"]
        ex[3] = [f"ds_read_b128 v[{OFS+4}:{OFS+7}], v{WS_} offset:16"]
    weave(pk_steps(g0, 0, True) + pk_steps(g0, 1, True), ex)
    E(m_e(D1, 1))
    for x in exps(D0, 2): E(x)
    E(m_s(D1, A2, g1+8))
    for x in exps(D0, 3): E(x)
    ex = {0: ["s_waitcnt lgkmcnt(0)", f"ds_read_b64 v[{EA}:{EA+1}], v{WE}"]}
    if loads:
        ex[0] += [oadd(OFS)]
        ex[2] = [oadd(OFS+2)]
    if ld:
        ex[1] = [gload(g0, OFS)]
        ex[3] = [gload(g0+4, OFS+1)]
        ex[5] = [gload(g0+8, OFS+2)]
        ex[9] = [gload(g0+12, OFS+3)]
    weave(pk_steps(g0, 2, False) + pk_steps(g0, 3, False), ex)
    E(f"s_waitcnt vmcnt({8 if loads else 4})")
    E(m_a(D0))
    for x in exps(D1, 0): E(x)
    E(m_s(D0, A1, gn))
    for x in exps(D1, 1): E(x)
    ex = {10: ["s_waitcnt lgkmcnt(0)"]}
    if loads:
        ex[0] = [oadd(OFS+4)]
        ex[2] = [oadd(OFS+6)]
    if ld:
        ex[5] = [gload(g1, OFS+4)]
        ex[10] = [gload(g1+4, OFS+5)] + ex[10]
    weave(pk_steps(g1, 0, False) + pk_steps(g1, 1, False), ex)
    E(m_e(D0, 0))
    for x in exps(D1, 2): E(x)
    E(m_s(D0, A2, gn+8))
    for x in exps(D1, 3): E(x)
    o = LSTR * par
    ex = {0: [f"ds_read_b32 v{WN}, v{LP} offset:{o + 2*LSTR + 4}"],
          1: [f"ds_read_b32 v{WE}, v{LP+1} offset:{o + 2*LSTR}"],
          2: [f"ds_read_b32 v{WS_}, v{LP} offset:{o + 3*LSTR}"]}
    if ld:
        ex[5] = [gload(g1+8, OFS+6)]
        ex[9] = [gload(g1+12, OFS+7)]
    weave(pk_steps(g1, 2, False) + pk_steps(g1, 3, False), ex)
    E(f"""
    v_rcp_f32 v{P}, v{P}
    v_rcp_f32 v{P+1}, v{P+1}
    v_rcp_f32 v{P+2}, v{P+2}
    v_rcp_f32 v{P+3}, v{P+3}
    v_pk_mul_f32 v[{N}:{N+1}], v[{N}:{N+1}], v[{P}:{P+1}]
    v_pk_mul_f32 v[{N+2}:{N+3}], v[{N+2}:{N+3}], v[{P+2}:{P+3}]
    """)
    if par == 1:
        E(f"v_lshl_add_u64 v[{LP}:{LP+1}], v[{LP}:{LP+1}], 0, s[44:45]")
    for s in range(4):
        E(f"v_cvt_f64_f32 v[{F+2*s}:{F+2*s+1}], v{N+s}")
        if s: E(f"ds_add_f64 v{agc}, v[{F+2*s-2}:{F+2*s-1}] offset:{128*(s-1)}")
    E(f"s_add_u32 s{S_K}, s{S_K}, {NW}")
    E(f"ds_add_f64 v{agc}, v[{F+6}:{F+7}] offset:384")
    if not loads:
        E("s_waitcnt vmcnt(0)")

E(f"""
; @launch grid=(256,1,1) block=({64*NW},1,1) lds={LDS}
.amdgcn_target "amdgcn-amd-amdhsa--gfx950"
.text
.globl {NAME}
.p2align 8
.type {NAME},@function
{NAME}:
""")
if OPT["stamps"] and OPT["early"] != 1:
    for i in range(NSTAMP): E(f"s_mov_b64 s[{ST0+2*i}:{ST0+2*i+1}], 0")
STAMP(0)
E(f"""
    s_load_dwordx16 s[4:19], s[0:1], 0
    s_load_dwordx2 s[20:21], s[0:1], 72
    {"s_load_dwordx2 s[64:65], s[0:1], 64" if OPT["rot"] else ""}
    {"s_memrealtime s[62:63]" if OPT["rot"] else ""}
""")
if OPT["codepf"]:
    E(f"""
    s_getpc_b64 s[28:29]
L_pc:
    v_lshlrev_b32 v3, 7, v0
    v_cmp_gt_u32 vcc, L_codeend-L_pc-64, v3
    s_cbranch_vccz L_nopf
    s_mov_b64 exec, vcc
    global_load_dword v164, v3, s[28:29]
    s_mov_b64 exec, -1
L_nopf:
    """)
E(f"""
    v_lshrrev_b32 v2, 6, v0
    v_and_b32 v1, 63, v0
    v_readfirstlane_b32 s3, v2
    s_and_b32 s{S_HALF}, s2, 1
    s_bfe_u32 s30, s2, 0x20001
    s_lshl_b32 s30, s30, 5
    s_lshr_b32 s31, s2, 3
    s_add_u32 s{S_BUCK}, s30, s31
    s_cmp_ge_u32 s2, 256
    s_cbranch_scc1 L_end
    s_cmp_ge_u32 s{S_BUCK}, {NBUCK}
    s_cbranch_scc1 L_end
    s_lshl_b32 s{S_P}, s{S_BUCK}, 1
    s_add_u32 s{S_P}, s{S_P}, s{S_HALF}
    s_mov_b32 s{S_SAFE}, 0
L_restart:
    s_cmp_ge_u32 s3, 4
    s_cbranch_scc1 L_nosort
    v_mov_b32 v48, 0
    v_mov_b32 v49, 0
    v_mov_b32 v50, 0
    v_mov_b32 v51, 0
    v_lshlrev_b32 v10, 4, v1
    ds_write_b128 v10, v[48:51] offset:{L_SCNT}
    s_mul_i32 s30, s{S_P}, {CHUNK*4}
    v_lshl_add_u32 v3, v0, 4, s30
    s_add_u32 s30, s30, 4096
    v_lshl_add_u32 v9, v0, 2, s30
    v_lshlrev_b32 v10, 1, v3
    v_lshlrev_b32 v11, 1, v9
    v_mov_b32 v17, {WS_TAG}
    s_waitcnt lgkmcnt(0)
    global_load_dwordx4 v[4:7], v3, s[10:11]
    global_load_dword v8, v9, s[10:11]
""")
if OPT["rot"]:
    E(f"""
    s_or_b32 s30, s{S_P}, s3
    s_or_b32 s30, s30, s{S_SAFE}
    s_cbranch_scc1 L_nonce
    s_or_b32 s30, s62, 1
    v_mov_b32 v43, s30
    s_mov_b64 exec, 1
    global_store_dword v48, v43, s[64:65] sc1
    s_mov_b64 exec, -1
    s_branch L_nonce2
L_nonce:
    global_load_dword v43, v48, s[64:65] sc1
L_nonce2:
    """)
else:
    E("global_load_dword v43, v17, s[20:21]")
E(f"""
    s_barrier                               ; B0
    global_load_dwordx4 v[12:15], v3, s[8:9]
    global_load_dword v16, v9, s[8:9]
    global_load_dwordx4 v[52:55], v10, s[6:7]
    global_load_dwordx4 v[60:63], v10, s[6:7] offset:16
    global_load_dwordx2 v[68:69], v11, s[6:7]
    s_barrier                               ; B0b
    s_branch L_sort
L_nosort:
    s_and_b32 s32, s3, 3                    ; tau
    s_lshr_b32 s33, s3, 3                   ; rg
    v_lshrrev_b32 v2, 4, v1                 ; g
    v_and_b32 v4, 15, v1
    s_lshl_b32 s30, s32, 2
    v_add_u32 v6, s30, v2                   ; row&15
    v_xor_b32 v7, v4, v6
    v_lshlrev_b32 v7, 4, v7
    v_lshl_add_u32 v7, v6, 8, v7
    s_mul_i32 s30, s{S_BUCK}, {NB*256}
    s_mul_i32 s31, s33, {3*4096}
    s_add_u32 s73, s30, s31
    v_add_u32 v7, s73, v7
    v_add_u32 v8, 0x1000, v7
    v_add_u32 v9, 0x2000, v7
    s_lshl_b32 s30, s32, 10
    s_add_u32 s31, s31, s30
    s_add_u32 m0, s31, {L_X}
    s_waitcnt lgkmcnt(0)
""")
if OPT["touch"]:
    st = {1: 0x30000, 2: 0x200000}[OPT["touch"]]; n = {1: 60, 2: 6}[OPT["touch"]]
    so = {1: 0x10000, 2: 0x200000}[OPT["touch"]]; no = {1: 39, 2: 2}[OPT["touch"]]
    E(f"""
    s_cmp_lg_u32 s3, 4
    s_cbranch_scc1 L_not1
    v_mul_u32_u24 v3, {st}, v1
    s_bfm_b64 exec, {n}, 0
    global_load_dword v166, v3, s[20:21] sc1
    s_mov_b64 exec, -1
L_not1:
    s_cmp_lg_u32 s3, 5
    s_cbranch_scc1 L_not2
    v_mul_u32_u24 v3, {so}, v1
    s_bfm_b64 exec, {no}, 0
    global_load_dword v166, v3, s[18:19] sc1
    s_mov_b64 exec, 1
    global_load_dword v167, v3, s[12:13]
    global_load_dword v165, v3, s[14:15]
    global_load_dword v164, v3, s[16:17]
    s_mov_b64 exec, -1
L_not2:
    """)
E(f"""
    s_barrier                               ; B0
    global_load_lds_dwordx4 v7, s[4:5]
    s_add_u32 m0, m0, 0x1000
    s_cmp_lg_u32 s33, 0
    global_load_lds_dwordx4 v8, s[4:5]
    s_cbranch_scc1 L_x2
    s_add_u32 m0, m0, 0x1000
    s_nop 0
    global_load_lds_dwordx4 v9, s[4:5]
L_x2:
    s_barrier                               ; B0b
    v_subrev_u32 v30, 256, v0               ; t = 0..511
    v_lshlrev_b32 v31, 4, v30
    v_mov_b32 v32, {NULL_SRC}
    v_mov_b32 v33, {NULL_SRC}
    v_mov_b32 v34, {NULL_SRC}
    v_mov_b32 v35, {NULL_SRC}
    v_mov_b32 v36, 0
    v_mov_b32 v37, 0
    v_mov_b32 v38, 0
    v_mov_b32 v39, 0
    v_add_u32 v40, {L_SORT + SORTB}, v31
""")
def cover(n): return list(range(0, n - 8192, 8192)) + [n - 8192]
for o in cover(81*SSTR): E(f"ds_write_b128 v31, v[32:35] offset:{L_SRC + o}")
for o in cover(L_EAEND - (L_SORT + SORTB)): E(f"ds_write_b128 v40, v[36:39] offset:{o}")
E(f"""
    v_lshrrev_b32 v5, 3, v1
    v_and_b32 v3, 1, v2
    s_and_b32 s30, s3, 1
    s_lshl_b32 s30, s30, 1
    v_or_b32 v3, s30, v3                    ; sigma
    v_lshlrev_b32 v3, 1, v3
    v_and_b32 v20, 7, v1
    v_xor_b32 v3, v3, v20
    v_lshlrev_b32 v3, 4, v3
    v_lshl_add_u32 v10, v5, 8, v3
    s_sub_u32 s28, s3, 4
    s_lshl_b32 s30, s28, 11
    s_lshl_b32 s31, s{S_HALF}, 7
    s_add_u32 s30, s30, s31
    v_add_u32 v10, s30, v10
    v_add_u32 v11, 0x4000, v10
    s_add_u32 s34, s16, {128*256}
    s_addc_u32 s35, s17, 0
    s_cmp_lg_u32 s3, 11
    s_cbranch_scc1 L_noc
    v_and_b32 v5, 3, v5
    v_lshlrev_b32 v20, 4, v20
    v_lshl_add_u32 v5, v5, 8, v20
    s_add_u32 s31, s31, {256*256}
    s_mov_b32 m0, {L_C}
    v_add_u32 v5, s31, v5
    global_load_lds_dwordx4 v5, s[16:17]
L_noc:
    s_lshl_b32 s28, s28, 10
    s_add_u32 m0, s28, {L_WBV}
""")
for ti, base in enumerate((34, 14)):
    for n in range(2):
        E(f"s_nop 0\nglobal_load_lds_dwordx4 v{10+n}, s[{base}:{base+1}]")
        if not (ti == 1 and n == 1):
            E(f"s_add_u32 m0, m0, 0x2000")
    if ti == 1:
        E(f"""
        s_cmp_ge_u32 s3, 8
        s_cbranch_scc1 L_pf2
        v_mov_b32 v32, {L_SRC + 80*SSTR}
        v_mov_b32 v33, {L_DUM}
        v_mov_b32 v34, {L_SRC + 80*SSTR}
        v_mov_b32 v35, {L_DUM}
        v_cmp_gt_u32 vcc, {(L_SRC - L_LIST - 8*NSTATIC)//16}, v30
        s_mov_b64 exec, vcc
        ds_write_b128 v31, v[32:35] offset:{L_LIST + 8*NSTATIC}
        s_branch L_pf3
L_pf2:
        s_cmp_ge_u32 s3, 10
        s_cbranch_scc1 L_pf3
        v_subrev_u32 v30, 256, v30              ; 0..127
        v_mul_u32_u24 v42, {SSTR}, v30
        v_add_u32 v42, {L_SRC}, v42
        v_mul_u32_u24 v43, {NSTR}, v30
        v_add_u32 v43, {L_NODE}, v43
        v_lshlrev_b32 v41, 2, v30
        ds_write_b32 v41, v42 offset:{L_CNT}
        v_add_u32 v41, {L_DUM + 256}, v41
        ds_write_b32 v41, v36
        v_lshlrev_b32 v41, 3, v30
        v_cmp_gt_u32 vcc, {NB}, v30
        s_mov_b64 exec, vcc
        ds_write_b64 v41, v[42:43] offset:{L_LIST}
        v_add_u32 v42, 32, v42
        ds_write_b64 v41, v[42:43] offset:{L_LIST + 8*NB}
        v_add_u32 v42, 32, v42
        ds_write_b64 v41, v[42:43] offset:{L_LIST + 16*NB}
L_pf3:
        s_mov_b64 exec, -1
        """)
STAMP(1)
E(f"""
    v_bfe_u32 v3, v1, 2, 2                  ; r
    v_lshl_add_u32 v5, v2, 3, v3            ; 8g + r
    v_lshrrev_b32 v3, 1, v3
    v_and_b32 v6, 1, v2
    v_lshl_or_b32 v3, v6, 1, v3             ; sigma
    v_xor_b32 v3, s32, v3
    v_lshlrev_b32 v3, 5, v3
    v_lshl_add_u32 v10, v5, 7, v3
    v_and_b32 v3, 3, v1
    v_lshl_add_u32 v10, v3, 3, v10
    v_add_u32 v10, {L_WBV}, v10
    v_xor_b32 v3, v2, v4
    v_lshlrev_b32 v3, 4, v3
    v_lshl_add_u32 v12, v4, 8, v3
    s_mul_i32 s31, s33, {3*4096}
    s_add_u32 s31, s31, {L_X}
    v_add_u32 v12, s31, v12
    v_xor_b32 v13, 64, v12
    v_xor_b32 v14, 0x80, v12
    v_xor_b32 v15, 0xc0, v12
    s_mul_i32 s30, s{S_HALF}, {G_HALF}
    {f"s_add_u32 s30, s30, {WS0}" if WS0 else ""}
    s_add_u32 s30, s30, s73
    s_lshl_b32 s31, s32, 6
    s_add_u32 s30, s30, s31
    v_lshlrev_b32 v11, 10, v2
    v_lshl_add_u32 v11, v4, 2, v11
    v_add_u32 v11, s30, v11
    s_lshl_b32 s31, s32, 5
    s_add_u32 s31, s31, {L_NODE}
    v_mul_u32_u24 v16, {NSTR}, v4
    v_lshl_add_u32 v16, v2, 3, v16
    v_add_u32 v16, s31, v16
    s_mov_b32 s40, {f32(LOG2E)}
    s_mov_b32 s42, {f32(2.0**32)}
    s_mov_b32 s44, 0x07060100
    s_mov_b32 s45, 0x07060302
    v_mov_b32 v8, {f32(2.0**-100)}
    v_mov_b32 v7, 1
    v_mov_b32 v6, 0
    s_waitcnt vmcnt(0)
    s_mov_b64 exec, 1
    ds_add_u32 v6, v7 offset:{L_CTR}
    s_mov_b64 exec, -1
""")
STAMP(2)
get_tag("g", 160)
lds_wait(L_CTR, 0xff, 8, "g1")
STAMP(3)
NP = 8
def rec_setup():
    E(f"""
    v_and_b32 v148, 15, v1                   ; j
    v_lshrrev_b32 v2, 4, v1
    v_lshl_add_u32 v149, v2, 3, v148
    s_lshl_b32 s30, s29, 5
    v_add_u32 v149, s30, v149
    s_lshl_b32 s30, s{S_BUCK}, 3
    s_add_u32 s30, s30, {WS_ROW}
    v_lshl_add_u32 v150, v149, 10, s30
    v_cmp_gt_u32 s[66:67], {NP}, v148
    v_cmp_gt_u32 vcc, {NCHUNK}, v149
    v_mov_b32 v154, 0
    v_mov_b32 v155, 0
    s_and_b64 s[66:67], s[66:67], vcc
    s_mov_b64 exec, s[66:67]
    global_load_dwordx2 v[154:155], v150, s[20:21] sc1
    s_mov_b64 exec, -1
    v_mul_u32_u24 v149, {CHUNK}, v149
    v_add_u32 v149, {WS_REC//16}, v149
    v_lshlrev_b32 v152, 4, v148               ; 16j
    v_not_b32 v151, v148
    v_subrev_u32 v153, 16, v151
    v_mov_b32 v156, 4
    """)
WF = 20; XF = 52; AC = 132
def wreads(ks):
    for t in range(2):
        for rd in range(2):
            r = WF + 16*t + 4*ks + 2*rd
            E(f"ds_read_b64_tr_b16 v[{r}:{r+1}], v10 offset:{t*16384 + ks*4096 + rd*512}")
def xread(rt, ks):
    r = XF + 16*rt + 4*ks
    return f"ds_read_b128 v[{r}:{r+3}], v{12+ks} offset:{rt*4096}"
def mf(rt, ks, transposed, acc):
    for t in range(2):
        a = XF + 16*rt + 4*ks; w = WF + 16*t + 4*ks; d = acc + 4*t
        c = "0" if ks == 0 else f"v[{d}:{d+3}]"
        if transposed: a, w = w, a
        E(f"v_mfma_f32_16x16x32_bf16 v[{d}:{d+3}], v[{a}:{a+3}], v[{w}:{w+3}], {c}")
def pack(rt, last):
    b = AC + 8*rt; h = b + 4
    for r in range(4): E(f"v_mul_f32 v{b+r}, s40, v{b+r}")
    for r in range(4): E(f"v_fma_f32 v{h+r}, v{h+r}, s42, v8")
    E(f"""
    v_cvt_pk_bf16_f32 v2, v{b}, v{b+1}
    v_cvt_pk_bf16_f32 v3, v{b+2}, v{b+3}
    v_xor_b32 v4, 0x80008000, v2
    v_xor_b32 v5, 0x80008000, v3
    v_sub_u32_sdwa v{h}, v{h}, sext(v2) dst_sel:DWORD dst_unused:UNUSED_PAD src0_sel:DWORD src1_sel:WORD_0
    v_sub_u32_sdwa v{h+1}, v{h+1}, sext(v2) dst_sel:DWORD dst_unused:UNUSED_PAD src0_sel:DWORD src1_sel:WORD_1
    v_sub_u32_sdwa v{h+2}, v{h+2}, sext(v3) dst_sel:DWORD dst_unused:UNUSED_PAD src0_sel:DWORD src1_sel:WORD_0
    v_sub_u32_sdwa v{h+3}, v{h+3}, sext(v3) dst_sel:DWORD dst_unused:UNUSED_PAD src0_sel:DWORD src1_sel:WORD_1
    """)
    for r in range(4):
        E(f"v_perm_b32 v{h+r}, v{h+r}, v{4 + (r>>1)}, s{44 + (r&1)}")
        E(f"global_store_dword v11, v{h+r}, s[20:21] offset:{256*r} sc1")
    if not last: E("v_add_u32 v11, 0x1000, v11")
E(f"""
    s_cmp_lg_u32 s{S_SAFE}, 0
    s_cbranch_scc1 L_nog1
""")
for ks in range(3):
    E(xread(0, ks)); wreads(ks)
E("s_waitcnt lgkmcnt(10)"); mf(0, 0, False, AC)
E(xread(0, 3)); wreads(3)
E("s_waitcnt lgkmcnt(10)"); mf(0, 1, False, AC)
for ks in range(4): E(xread(1, ks))
E("s_waitcnt lgkmcnt(9)"); mf(0, 2, False, AC)
E("s_waitcnt lgkmcnt(4)"); mf(0, 3, False, AC)
E("s_cmp_lg_u32 s33, 0\ns_cbranch_scc1 L_g1b")
for ks in range(4): E(xread(2, ks))
E("s_waitcnt lgkmcnt(4)")
for ks in range(4): mf(1, ks, False, AC+8)
pack(0, False)
E("s_waitcnt lgkmcnt(0)")
for ks in range(4): mf(2, ks, False, AC+16)
pack(1, False)
pack(2, True)
E(f"""
    s_mov_b64 exec, 1
    ds_add_u32 v6, v7 offset:{L_GST}
    s_mov_b64 exec, -1
L_g2x:
""")
for rt in (3, 4):
    for ks in range(4): E(xread(rt, ks))
STAMP(4)
def done2(lab):
    E(f"""
    s_lshl_b32 s30, s{S_P}, 7
    s_add_u32 s30, s30, {WS_FL2}
    v_mov_b32 v160, s30
    v_mov_b32 v162, s{S_TAG}
    v_mov_b32 v163, s{S_TAG8}
    v_mov_b32 v2, 0
    v_mov_b32 v3, 1
    s_mov_b64 exec, 1
    s_waitcnt vmcnt(0)
    ds_add_rtn_u32 v161, v2, v3 offset:{L_DONE2}
    s_waitcnt lgkmcnt(0)
    v_readfirstlane_b32 s30, v161
    s_cmp_lg_u32 s30, 7
    s_cbranch_scc1 L_nofl_{lab}
    s_cmp_lg_u32 s{S_SAFE}, 0
    s_cbranch_scc1 L_nofs_{lab}
    global_store_dwordx2 v160, v[162:163], s[20:21] sc1
L_nofs_{lab}:
    ds_add_u32 v2, v3 offset:{L_DONE2}
L_nofl_{lab}:
    s_mov_b64 exec, -1
    """)
done2("g")
STAMP(5)
E(f"v_add_u32 v10, {L_WAU - L_WBV}, v10")
lds_wait(L_DONE2, 8, 8, "d2")
lds_wait(L_CTR, 0xff0000, 0x040000, "d3")
STAMP(6)
for ks in range(4): wreads(ks)
E(f"""
    s_mov_b32 s40, {f32(-LOG2E)}
    s_mov_b32 s46, 0x3f80
""")
def fin(acc, last):
    a = acc; u = acc + 4
    for r in range(4): E(f"v_mul_f32 v{a+r}, s40, v{a+r}")
    for r in range(4): E(f"v_mul_f32 v{u+r}, s42, v{u+r}")
    E(f"""
    v_cvt_pk_bf16_f32 v{a}, v{a}, v{a+1}
    v_cvt_pk_bf16_f32 v{a+1}, v{a+2}, v{a+3}
    v_cvt_f64_f32 v[2:3], v{u}
    v_cvt_f64_f32 v[4:5], v{u+1}
    v_cvt_f64_f32 v[6:7], v{u+2}
    v_cvt_f64_f32 v[8:9], v{u+3}
    ds_write_b64 v16, v[{a}:{a+1}] offset:512
    ds_write2_b64 v16, v[2:3], v[4:5] offset0:0 offset1:16
    ds_write2_b64 v16, v[6:7], v[8:9] offset0:32 offset1:48
    """)
    if not last: E(f"v_add_u32 v16, {16*NSTR}, v16")
for ks in range(4):
    E(f"s_waitcnt lgkmcnt({12 - 4*ks})"); mf(0, ks, True, AC)
for rt in range(1, 5):
    for ks in range(4): mf(rt, ks, True, AC + 8*(rt % 3))
    fin(AC + 8*((rt-1) % 3), False)
fin(AC + 8*(4 % 3), True)
main_consts()
STAMP(7)
E(f"""
    s_cmp_lg_u32 s{S_SAFE}, 0
    s_cbranch_scc1 L_b4
    s_and_b32 s32, s3, 3
    s_lshl_b32 s30, s32, 13
    s_lshl_b32 s31, s{S_HALF}, 7
    s_add_u32 s30, s30, s31
    s_add_u32 s30, s30, {WS_FL2}
    v_lshl_add_u32 v3, v1, 8, s30
    s_cmp_eq_u32 s32, 3
    s_cselect_b32 exec_lo, 0x1fffffff, -1
    s_mov_b32 exec_hi, 0
    s_mov_b32 s31, {POLL_MAX}
L_p2:
    global_load_dwordx2 v[60:61], v3, s[20:21] sc1
    s_waitcnt vmcnt(0)
    v_cmp_ne_u32 vcc, s{S_TAG}, v60
    v_cmp_ne_u32 s[48:49], s{S_TAG8}, v61
    s_sub_u32 s31, s31, 1
    s_cbranch_scc1 L_p2d
    s_or_b64 exec, vcc, s[48:49]
    s_cbranch_scc1 L_p2
L_p2d:
    s_mov_b64 exec, -1
""")
if OPT["gpf"]:
    E(f"""
    s_mul_i32 s30, s32, {2560*256}
    s_lshr_b32 s31, s2, 3
    s_mul_i32 s31, s31, {160*128}
    s_add_u32 s30, s30, s31
    v_lshl_add_u32 v3, v1, 7, s30
    v_min_u32 v3, {G_HALF - 128 - 8192}, v3
    s_mul_i32 s30, s{S_HALF}, {G_HALF}
    {f"s_add_u32 s30, s30, {WS0}" if WS0 else ""}
    v_add_u32 v3, s30, v3
    v_add_u32 v2, 8192, v3
    {"s_bfm_b64 exec, %d, 0" % OPT["gpf"] if OPT["gpf"] < 64 else ""}
    global_load_dword v21, v3, s[20:21] sc1
    {"s_bfm_b64 exec, %d, 0" % (OPT["gpf"]-64) if 64 < OPT["gpf"] < 128 else ""}
    {"global_load_dword v29, v2, s[20:21] sc1" if OPT["gpf"] > 64 else ""}
    s_mov_b64 exec, -1
    """)
E(f"""
    s_branch L_b4
L_nog1:
    s_cmp_lg_u32 s33, 0
    s_cbranch_scc1 L_g1c
""")
for rt in range(3):
    for ks in range(4): E(xread(rt, ks))
E(f"""
    s_branch L_g2x
L_g1b:
    s_waitcnt lgkmcnt(0)
""")
for ks in range(4): mf(1, ks, False, AC+8)
E("s_sub_u32 s29, s3, 4")
rec_setup()
pack(0, False)
pack(1, True)
E(f"""
    s_mov_b64 exec, 1
    ds_add_u32 v6, v7 offset:{L_GST}
    s_mov_b64 exec, -1
L_g1c:
""")
STAMP(4)
E(f"""
    s_branch L_rec
L_sort:
""")
STAMP(1)
E(f"""
    s_cmp_lg_u32 s{S_SAFE}, 0
    s_cbranch_scc1 L_sortskip
    v_mov_b32 v21, 1
    s_mov_b32 s31, 52429
    s_movk_i32 s32, -20
    v_lshlrev_b32 v9, 3, v1
    v_lshlrev_b32 v33, 4, v0
    s_mul_i32 s30, s{S_P}, {SORTB}
    s_add_u32 s30, s30, {WS_REC + 4096}
    v_add_u32 v32, s30, v33
    v_add_u32 v34, 8192, v32
    v_add_u32 v35, 16384, v32
    s_lshl_b32 s30, s{S_P}, 10
    s_add_u32 s30, s30, {WS_ROW}
    v_lshl_add_u32 v42, v1, 4, s30
    s_mov_b32 s34, {POLL_MAX}
    s_setprio 3
    s_waitcnt vmcnt(6)
""")
STAMP(2)
FSTAMP(1)
for i in range(5):
    E(f"""
    v_mul_u32_u24 v{22+i}, s31, v{4+i}
    v_lshrrev_b32 v{22+i}, 22, v{22+i}
    v_lshlrev_b32 v{22+i}, 2, v{22+i}        ; bucket*4
    ds_add_rtn_u32 v{27+i}, v{22+i}, v21 offset:{L_SCNT}
    """)
E(f"""
    s_mov_b64 exec, 1
    s_cmp_lg_u32 s3, 0
    s_cbranch_scc1 L_notag
    s_waitcnt vmcnt(5)
""")
if OPT["rot"]:
    E(f"""
L_np:
    v_readfirstlane_b32 s30, v43
    s_cmp_lg_u32 s30, 0
    s_cbranch_scc1 L_npd
    s_sub_u32 s34, s34, 1
    s_cbranch_scc1 L_npd
    global_load_dword v43, v48, s[64:65] sc1
    s_waitcnt vmcnt(0)
    s_branch L_np
L_npd:
    """)
E(f"""
    ds_write_b32 v48, v43 offset:{L_SCNT + 125*4}
L_notag:
    ds_add_u32 v48, v21 offset:{L_SCNT + 127*4}
    s_mov_b64 exec, -1
L_s1:
    ds_read_b32 v38, v48 offset:{L_SCNT + 127*4}
    ds_read_b64 v[36:37], v9 offset:{L_SCNT}
    s_sub_u32 s34, s34, 1
    s_cbranch_scc1 L_s1d
    s_waitcnt lgkmcnt(0)
    v_readfirstlane_b32 s30, v38
    s_cmp_lg_u32 s30, 4
    s_cbranch_scc1 L_s1
L_s1d:
""")
FSTAMP(2)
E(f"""
    v_add_u32 v39, v36, v37
    v_add_u32 v38, v36, v37
    v_readlane_b32 s{S_TAGRAW}, v37, 62
""")
fill = []
for i in range(5):
    fill += [f"v_mad_i32_i24 v{4+i}, v{22+i}, s32, v{4+i}", f"v_lshlrev_b32 v{4+i}, 24, v{4+i}"]
for k, m in enumerate(SCAN):
    E(f"v_add_u32_dpp v39, v39, v39 {m}")
    for x in fill[2*k:2*k+2]: E(x)
E(f"""
    v_sub_u32 v40, v39, v38
    v_add_u32 v41, v40, v36
    ds_write_b64 v9, v[40:41] offset:{L_SOFF}
""")
for i in range(5):
    E(f"ds_read_b32 v{22+i}, v{22+i} offset:{L_SOFF}")
finish_tag()
E(f"""
    s_cmp_lg_u32 s3, 0
    s_cbranch_scc1 L_nopub
    s_lshl_b32 s35, s{S_TAG8}, 24
    v_mov_b32 v45, s{S_TAG}
    v_mov_b32 v47, s{S_TAG}
    v_lshl_or_b32 v44, v36, 12, v40
    v_lshl_or_b32 v46, v37, 12, v41
    v_or_b32 v44, s35, v44
    v_or_b32 v46, s35, v46
    global_store_dwordx4 v42, v[44:47], s[20:21] sc1
    s_waitcnt vmcnt(1)
    s_branch L_pub
L_nopub:
    s_waitcnt vmcnt(0)
L_pub:
""")
STAMP(4)
FSTAMP(3)
E("""
    v_mov_b64 v[56:57], v[54:55]
    v_mov_b64 v[64:65], v[62:63]
    s_waitcnt lgkmcnt(0)
""")
for i in range(5):
    E(f"""
    v_lshl_or_b32 v{54+4*i}, v{12+i}, 8, v{4+i}
    v_mov_b32 v{55+4*i}, s{S_TAG}
    v_add_lshl_u32 v{22+i}, v{22+i}, v{27+i}, 4
    ds_write_b128 v{22+i}, v[{52+4*i}:{55+4*i}] offset:{L_SORT}
    """)
E(f"""
    s_mov_b64 exec, 1
    ds_add_u32 v48, v21 offset:{L_SCNT + 126*4}
    s_mov_b64 exec, -1
""")
FSTAMP(4)
E(f"""
L_s2:
    ds_read_b32 v38, v48 offset:{L_SCNT + 126*4}
    ds_read_b128 v[72:75], v33 offset:{L_SORT}
    s_sub_u32 s34, s34, 1
    s_cbranch_scc1 L_s2d
    s_waitcnt lgkmcnt(1)
    v_readfirstlane_b32 s30, v38
    s_cmp_lg_u32 s30, 4
    s_cbranch_scc1 L_s2
L_s2d:
""")
FSTAMP(5)
for k in range(1, 5): E(f"ds_read_b128 v[{72+4*k}:{75+4*k}], v33 offset:{L_SORT + 4096*k}")
for k in range(5):
    E(f"s_waitcnt lgkmcnt({4-k})")
    E(f"global_store_dwordx4 v{(32,32,34,34,35)[k]}, v[{72+4*k}:{75+4*k}], s[20:21] offset:{0 if k & 1 else -4096} sc1")
FSTAMP(6)
for k in range(5): E(f"ds_write_b128 v33, v[48:51] offset:{L_SORT + 4096*k}")
STAMP(3)
FSTAMP(7)
RA = 72; RB = RA + 4*NP; RAD = RB + 4*NP
E(f"""
    s_branch L_sortdone
L_sortskip:
    s_waitcnt vmcnt(0)
L_sortdone:
    v_mov_b32 v21, 0x100
    s_mov_b64 exec, 1
    ds_add_u32 v48, v21 offset:{L_CTR}
    s_mov_b64 exec, -1
    v_lshrrev_b32 v5, 3, v1
    v_bfe_u32 v3, v1, 4, 1
    v_lshlrev_b32 v3, 1, v3
    v_and_b32 v20, 7, v1
    v_xor_b32 v3, v3, v20
    v_lshlrev_b32 v3, 4, v3
    v_lshl_add_u32 v10, v5, 8, v3
    s_lshl_b32 s30, s{S_HALF}, 7
    s_and_b32 s31, s3, 1
    s_lshl_b32 s31, s31, 14
    s_add_u32 s30, s30, s31
    v_add_u32 v10, s30, v10
    v_xor_b32 v11, 64, v10
    v_add_u32 v12, 2048, v10
    v_add_u32 v13, 3072, v11
    v_add_u32 v11, 1024, v11
    s_lshl_b32 s30, s3, 13
    s_add_u32 m0, s30, {L_WAU}
    s_cmp_lt_u32 s3, 2
    s_cselect_b32 s34, s16, s12
    s_cselect_b32 s35, s17, s13
    global_load_lds_dwordx4 v10, s[34:35]
    global_load_lds_dwordx4 v11, s[34:35] offset:1024
    global_load_lds_dwordx4 v12, s[34:35] offset:2048
    global_load_lds_dwordx4 v13, s[34:35] offset:3072
    s_add_u32 m0, m0, 4096
    s_add_u32 s34, s34, 8192
    s_addc_u32 s35, s35, 0
    global_load_lds_dwordx4 v10, s[34:35]
    global_load_lds_dwordx4 v11, s[34:35] offset:1024
    global_load_lds_dwordx4 v12, s[34:35] offset:2048
    global_load_lds_dwordx4 v13, s[34:35] offset:3072
    s_mov_b32 s29, s3
""")
rec_setup()
E(f"""
L_rec:
    s_mov_b32 s40, {f32(-LOG2E)}
    s_mov_b32 s46, 0x3f80
""")
lds_wait(L_CTR, 0xff, 8, "r0")
main_consts()
STAMP(5)
E("s_cmp_lt_u32 s3, 4\ns_cbranch_scc1 L_nod2")
done2("w")
E(f"""
    s_branch L_nod3
L_nod2:
    v_mov_b32 v2, 0
    v_mov_b32 v3, 0x10000
    s_mov_b64 exec, 1
    s_waitcnt vmcnt(0)
    ds_add_u32 v2, v3 offset:{L_CTR}
    s_mov_b64 exec, -1
L_nod3:
    s_cmp_lg_u32 s{S_SAFE}, 0
    s_cbranch_scc1 L_recskip
    s_mov_b64 exec, s[66:67]
    s_mov_b32 s34, {POLL_MAX}
    s_branch L_p1c
L_p1:
    global_load_dwordx2 v[154:155], v150, s[20:21] sc1
L_p1c:
    s_waitcnt vmcnt(0)
    v_cmp_ne_u32 vcc, s{S_TAG}, v155
    v_cmp_ne_u32_sdwa s[48:49], v154, s{S_TAG8} src0_sel:BYTE_3 src1_sel:DWORD
    s_sub_u32 s34, s34, 1
    s_cbranch_scc1 L_p1d
    s_or_b64 exec, vcc, s[48:49]
    s_cbranch_scc1 L_p1
L_p1d:
    s_mov_b64 exec, -1
""")
STAMP(6)
if OPT["cnt"]: E(f"s_sub_u32 s{ST0+2}, {POLL_MAX+1}, s34\ns_mov_b32 s34, {POLL_MAX}")
E(f"""
    v_and_b32 v155, 0xfff, v154
    v_bfe_u32 v154, v154, 12, 12              ; count
    v_add_lshl_u32 v155, v155, v149, 4
    v_cmp_lt_u32 vcc, 32, v154
    v_cmp_lt_u32 s[68:69], 16, v154
    s_cbranch_vccnz L_toobig
""")
for p in range(NP):
    E(f"""
    v_add_co_u32_dpp v2, vcc, v154, v151 row_newbcast:{p} row_mask:0xf bank_mask:0xf
    v_add_u32_dpp v{RAD+p}, v155, v152 row_newbcast:{p} row_mask:0xf bank_mask:0xf
    s_mov_b64 s[{48+2*p}:{49+2*p}], vcc
    """)
if OPT["gate"]:
    E(f"""
    s_cmp_lt_u32 s3, 4
    s_cselect_b32 s28, {L_GST}, 0
    s_cselect_b32 s29, 0, {L_DONE2}
    s_cselect_b32 s32, 8, 9
    s_add_u32 s28, s28, s29
    v_mov_b32 v2, s28
    s_mov_b32 s31, {POLL_MAX}
L_gate:
    ds_read_b32 v3, v2
    s_sub_u32 s31, s31, 1
    s_cbranch_scc1 L_gated
    s_waitcnt lgkmcnt(0)
    v_readfirstlane_b32 s30, v3
    s_cmp_lg_u32 s30, s32
    s_cbranch_scc1 L_gate
L_gated:
    """)
E(f"""
    s_or_b32 s68, s68, s69
    s_lshr_b32 s69, s68, 16
    s_or_b32 s68, s68, s69
    s_cbranch_scc0 L_noex
""")
for p in range(NP):
    r = RB + 4*p
    E(f"""
    s_bitcmp1_b32 s68, {p}
    s_cbranch_scc0 L_nx{p}
    v_add_co_u32_dpp v2, vcc, v154, v153 row_newbcast:{p} row_mask:0xf bank_mask:0xf
    s_mov_b64 exec, vcc
    global_load_dwordx4 v[{r}:{r+3}], v{RAD+p}, s[20:21] offset:256 sc1
    s_mov_b64 exec, -1
L_nx{p}:
    """)
E("L_noex:")
for p in range(NP):
    r = RA + 4*p
    E(f"""
    s_mov_b64 exec, s[{48+2*p}:{49+2*p}]
    global_load_dwordx4 v[{r}:{r+3}], v{RAD+p}, s[20:21] sc1
    """)
E("s_mov_b64 exec, -1")
STAMP(7)
lds_wait(L_CTR, 0xffff, 0x0408, "r1")
retries = []
def rank(r, m, ad, off, tag):
    E(f"""
    s_mov_b64 exec, {m}
    v_cmp_ne_u32 vcc, s{S_TAG}, v{r+3}
    s_cbranch_vccnz L_rt{tag}
L_rr{tag}:
    v_mul_u32_u24_sdwa v{r+3}, v156, v{r+2} dst_sel:DWORD dst_unused:UNUSED_PAD src0_sel:DWORD src1_sel:BYTE_3
    v_and_b32 v{r+2}, {OPT['srcmask']}, v{r+2}
    ds_add_rtn_u32 v{r+3}, v{r+3}, v156 offset:{L_CNT}
    """)
    retries.append(f"""
L_rt{tag}:
    s_mov_b64 exec, vcc
    global_load_dwordx4 v[{r}:{r+3}], v{ad}, s[20:21] offset:{off} sc1
    s_sub_u32 s34, s34, 1
    s_cbranch_scc1 L_toobig
    s_waitcnt vmcnt(0)
    v_cmp_ne_u32 vcc, s{S_TAG}, v{r+3}
    s_cbranch_vccnz L_rt{tag}
    s_mov_b64 exec, {m}
    s_branch L_rr{tag}
    """)
def put(r, m):
    E(f"""
    s_mov_b64 exec, {m}
    v_lshlrev_b32 v2, 1, v{r+3}
    ds_write_b32 v{r+3}, v{r+2}
    ds_write_b64 v2, v[{r}:{r+1}] offset:{L_EA - 2*L_SRC}
    """)
E(f"""
    s_cmp_eq_u32 s68, 0
    s_cbranch_scc1 L_noey
    s_waitcnt vmcnt({NP})
""")
for p in range(NP):
    r = RB + 4*p
    E(f"""
    s_bitcmp1_b32 s68, {p}
    s_cbranch_scc0 L_ny{p}
    v_add_co_u32_dpp v2, vcc, v154, v153 row_newbcast:{p} row_mask:0xf bank_mask:0xf
    s_mov_b64 s[28:29], vcc
    """)
    rank(r, "s[28:29]", RAD+p, 256, f"b{p}")
    E("s_waitcnt lgkmcnt(0)")
    put(r, "s[28:29]")
    E(f"s_mov_b64 exec, -1\nL_ny{p}:")
E("L_noey:")
LAG = 2
for p in range(NP + LAG):
    if p < NP:
        E(f"s_waitcnt vmcnt({NP-1-p})")
        rank(RA + 4*p, f"s[{48+2*p}:{49+2*p}]", RAD+p, 0, f"a{p}")
    q = p - LAG
    if q >= 0:
        younger = 0
        for j in range(q+1, min(p, NP-1)+1): younger += 1
        for j in range(max(0, q-LAG), q): younger += 2
        E(f"s_waitcnt lgkmcnt({younger})")
        put(RA + 4*q, f"s[{48+2*q}:{49+2*q}]")
E(f"""
    s_mov_b64 exec, -1
    {f"s_sub_u32 s{ST0+4}, {POLL_MAX+1}, s34" if OPT["cnt"] else ""}
    s_branch L_b4
L_toobig:
    s_mov_b64 exec, -1
    v_mov_b32 v2, 0
    ds_write_b32 v2, v156 offset:{L_FLAG}
L_recskip:
    s_waitcnt vmcnt(0)
L_b4:
    s_setprio 0
    s_mul_i32 s30, s{S_HALF}, {G_HALF}
    {f"s_add_u32 s30, s30, {WS0}" if WS0 else ""}
    s_add_u32 s36, s20, s30
    s_addc_u32 s37, s21, 0
    s_mov_b32 s38, {OPT['nrec'] or G_HALF}
    s_mov_b32 s39, 0x20000
    s_mov_b32 s44, {2*LSTR}
    s_mov_b32 s45, {2*LSTR}
    ds_read_b64 v[60:61], v{LP}
    ds_read_b32 v62, v{LP+1}
    ds_read_b32 v63, v{LP} offset:{LSTR}
    ds_read_b32 v{WN}, v{LP} offset:{LSTR + 4}
    ds_read_b32 v{WE}, v{LP+1} offset:{LSTR}
    ds_read_b32 v{WS_}, v{LP} offset:{2*LSTR}
    s_waitcnt lgkmcnt(0)
    v_add_u32 v{AG}, v61, v{LN8}
    v_lshl_add_u32 v62, v62, 1, v{EAC}
""")
if OPT["warm"]:
    E(f"""
    s_barrier
    s_lshr_b32 s30, s2, 3
    s_mul_i32 s30, s30, 98304
    v_lshl_add_u32 v2, v0, 7, s30
    buffer_load_dword v3, v2, s[36:39], 0 offen sc1
    s_waitcnt vmcnt(0)
    s_sleep 40
    """)
STAMP(8)
E(f"""
    s_barrier                               ; B4
    s_cmp_lg_u32 s{S_SAFE}, 0
    s_cbranch_scc1 L_safe
    ds_read_b128 v[{OFS}:{OFS+3}], v60
    ds_read_b128 v[{OFS+4}:{OFS+7}], v60 offset:16
    ds_read_b128 v[{T}:{T+3}], v63
    ds_read_b128 v[{T+4}:{T+7}], v63 offset:16
    ds_read_b64 v[{XA}:{XA+1}], v{AG} offset:512
    ds_read_b64 v[{EA}:{EA+1}], v62
    s_cmp_lg_u32 s3, {NW-1}
    s_cbranch_scc1 L_nobuild
    v_lshlrev_b32 v2, 3, v1
    v_mov_b32 v3, 0
    ds_read_b64 v[64:65], v2 offset:{L_CNT}
    ds_read_b32 v71, v3 offset:{L_FLAG}
    v_mul_u32_u24 v66, {2*SSTR}, v1
    v_add_u32 v66, {L_SRC + 96}, v66
    v_add_u32 v68, {SSTR}, v66
    v_mul_u32_u24 v67, {2*NSTR}, v1
    v_add_u32 v67, {L_NODE}, v67
    v_add_u32 v69, {NSTR}, v67
    s_waitcnt lgkmcnt(0)
    v_sub_u32 v64, v64, v66 clamp
    v_sub_u32 v65, v65, v68 clamp
    v_max_u32 v70, v64, v65
    v_cmp_lt_u32 vcc, 160, v70
    v_cmp_ne_u32 s[48:49], 0, v71
    v_add_u32 v64, 31, v64
    v_add_u32 v65, 31, v65
    s_or_b64 vcc, vcc, s[48:49]
    s_cbranch_scc1 L_bad
    v_lshrrev_b32 v64, 5, v64
    v_lshrrev_b32 v65, 5, v65
    v_add_u32 v70, v64, v65
    v_add_u32 v71, v64, v65
""")
scan(71)
E(f"""
    v_sub_u32 v70, v71, v70
    v_lshlrev_b32 v70, 3, v70
    v_readlane_b32 s30, v71, 63
    v_lshl_add_u32 v71, v64, 3, v70
""")
for b in range(5):
    E(f"""
    v_cmp_lt_u32 vcc, {b}, v64
    v_cmp_lt_u32 s[48:49], {b}, v65
    s_mov_b64 exec, vcc
    ds_write_b64 v70, v[66:67] offset:{L_LIST + 8*NSTATIC + 8*b}
    s_mov_b64 exec, s[48:49]
    ds_write_b64 v71, v[68:69] offset:{L_LIST + 8*NSTATIC + 8*b}
    s_mov_b64 exec, -1
    """)
    if b < 4: E("v_add_u32 v66, 32, v66\nv_add_u32 v68, 32, v68")
E(f"""
    s_add_u32 s30, s30, {NSTATIC + 3}
    s_lshr_b32 s30, s30, 2
    s_branch L_built
L_bad:
    s_mov_b32 s30, -1
L_built:
    v_mov_b32 v2, s30
    ds_write_b32 v3, v2 offset:{L_NST}
    s_cmp_lg_u32 s{S_P}, 0
    s_cbranch_scc1 L_nobuild
    v_mov_b32 v2, s{S_TAG}
    v_mov_b32 v3, {WS_TAG}
    s_mov_b64 exec, 1
    global_store_dword v3, v2, s[20:21]
    s_mov_b64 exec, -1
L_nobuild:
    s_waitcnt lgkmcnt(0)
""")
for i, o in enumerate((OFS, OFS+4, T, T+4)):
    E(oadd(o)); E(oadd(o+2))
    if not OPT["nogather"]:
        for q in range(4): E(gload(G + 16*i + 4*q, o+q))
STAMP(9)
E(m_a(D0)); E(m_e(D0, 0))
E(f"""
    v_mov_b32 v2, 0
    s_mov_b32 s31, {POLL_MAX}
    s_waitcnt vmcnt(12)
""")
E(m_s(D0, A1, G)); E(m_s(D0, A2, G+8))
E(f"""
L_wn:
    ds_read_b32 v3, v2 offset:{L_NST}
    s_waitcnt lgkmcnt(0)
    v_readfirstlane_b32 s{S_N}, v3
    s_sub_u32 s31, s31, 1
    s_cmp_eq_u32 s31, 0
    s_cbranch_scc1 L_wnd
    s_cmp_eq_u32 s{S_N}, 0
    s_cbranch_scc1 L_wn
L_wnd:
    s_cmp_gt_u32 s{S_N}, {0 if OPT["force_safe"] else 160}
    s_cbranch_scc1 L_gosafe
    s_add_u32 s{S_K}, s3, {2*NW}
    s_add_u32 s28, s{S_N}, {2*NW}
    s_mov_b32 s{S_IT}, 0
    s_nop 3
""")
if OPT["prio"]: E("s_setprio 3")
STAMP(10)
if OPT["stamps"]: E(f"s_memtime s[{ST0+24}:{ST0+25}]\ns_waitcnt lgkmcnt(0)")
E("L_A:")
body(0, True)
E(f"s_cmp_ge_u32 s{S_K}, s{S_N}\ns_cbranch_scc1 L_Bt")
body(1, True)
if OPT["prio"]:
    E(f"""
    s_add_u32 s{S_IT}, s{S_IT}, 1
    s_setprio 0
    s_cmp_gt_u32 s{S_IT}, 2
    s_cbranch_scc1 L_pr
    s_setprio 1
    s_cmp_eq_u32 s{S_IT}, 2
    s_cbranch_scc1 L_pr
    s_setprio 2
L_pr:
    """)
E(f"s_cmp_lt_u32 s{S_K}, s{S_N}\ns_cbranch_scc1 L_A")
E("L_At:")
body(0, False)
E(f"s_cmp_ge_u32 s{S_K}, s28\ns_cbranch_scc1 L_mdone")
E("L_Bt:")
body(1, False)
if OPT["prio"]: E("s_setprio 0")
E(f"s_cmp_lt_u32 s{S_K}, s28\ns_cbranch_scc1 L_At")
E(f"""
L_mdone:
    s_waitcnt lgkmcnt(0)
""")
STAMP(11)
if OPT["stamps"]:
    E(f"s_memtime s[28:29]\ns_waitcnt lgkmcnt(0)\ns_sub_u32 s{ST0+24}, s28, s{ST0+24}")
E(f"""
    v_lshrrev_b32 v2, 5, v0
    v_and_b32 v3, 31, v0
    v_mul_u32_u24 v4, {NSTR}, v2
    v_and_b32 v5, 1, v3
    v_lshl_add_u32 v4, v5, 8, v4
    v_lshrrev_b32 v5, 1, v3
    v_lshl_add_u32 v4, v5, 3, v4
    v_add_u32 v4, {L_NODE}, v4
    s_mul_i32 s30, s{S_BUCK}, {NB*256}
    s_lshl_b32 s31, s{S_HALF}, 7
    s_add_u32 s30, s30, s31
    v_lshlrev_b32 v3, 2, v3
    v_lshl_add_u32 v5, v2, 8, v3
    v_add_u32 v5, s30, v5
    v_add_u32 v6, {24*256}, v5
    v_add_u32 v7, {48*256}, v5
    v_add_u32 v8, {72*256}, v5
    s_mov_b32 s32, {f32(2.0**-32)}
    s_mov_b32 s34, {f32(-LOG2E * 2.0**-32)}
    v_mov_b32 v9, 0x207
    s_barrier                               ; B5
""")
OSC = {0: "", 1: " sc1", 2: " nt"}[OPT["osc"]]
def epi(us):
    for u in us: E(f"ds_read_b64 v[{12+4*u}:{13+4*u}], v4 offset:{24*NSTR*u}\nds_read_b64 v[{14+4*u}:{15+4*u}], v4 offset:{24*NSTR*u + 128}")
    E("s_waitcnt lgkmcnt(0)")
    for u in us: E(f"v_cvt_f32_f64 v{28+2*u}, v[{12+4*u}:{13+4*u}]\nv_cvt_f32_f64 v{29+2*u}, v[{14+4*u}:{15+4*u}]")
    for u in us: E(f"v_pk_mul_f32 v[{36+2*u}:{37+2*u}], v[{28+2*u}:{29+2*u}], s[34:35] op_sel_hi:[1,0]")
    for u in us: E(f"v_exp_f32 v{36+2*u}, v{36+2*u}\nv_exp_f32 v{37+2*u}, v{37+2*u}")
    for u in us: E(f"v_pk_mul_f32 v[{28+2*u}:{29+2*u}], v[{28+2*u}:{29+2*u}], s[32:33] op_sel_hi:[1,0]")
    for u in us: E(f"v_pk_add_f32 v[{36+2*u}:{37+2*u}], v[{36+2*u}:{37+2*u}], 1.0 op_sel_hi:[1,0]")
    for u in us: E(f"v_rcp_f32 v{36+2*u}, v{36+2*u}\nv_rcp_f32 v{37+2*u}, v{37+2*u}")
    E("v_pk_add_f32 v[10:11], v[28:29], v[30:31]")
    for u in us: E(f"v_pk_mul_f32 v[{36+2*u}:{37+2*u}], v[{28+2*u}:{29+2*u}], v[{36+2*u}:{37+2*u}]")
    for u in us: E(f"v_cvt_pk_bf16_f32 v{44+u}, v{36+2*u}, v{37+2*u}\nglobal_store_dword v{5+u}, v{44+u}, s[18:19]{OSC}")
    for u in us[2:]: E(f"v_pk_add_f32 v[10:11], v[10:11], v[{28+2*u}:{29+2*u}]")
E("s_cmp_ge_u32 s3, 4\ns_cbranch_scc1 L_e3")
epi([0, 1, 2, 3])
E("s_branch L_e4\nL_e3:")
epi([0, 1, 2])
E(f"""
L_e4:
    v_add_f32 v10, v10, v11
    v_cmp_class_f32 vcc, v10, v9
    v_mov_b32 v2, 0
    s_cmp_lg_u32 s{S_SAFE}, 0
    s_cbranch_scc1 L_fin
    {"s_branch" if OPT["nosafe"] else "s_cbranch_vccz"} L_e5
    ds_write_b32 v2, v9 offset:{L_FLAG}
    s_waitcnt lgkmcnt(0)
L_e5:
    s_barrier                               ; B6
    ds_read_b32 v2, v2 offset:{L_FLAG}
    s_waitcnt lgkmcnt(0)
    v_readfirstlane_b32 s30, v2
    s_cmp_lg_u32 s30, 0
    s_cbranch_scc1 L_gosafe
L_fin:
""")
if OPT["stamps"]:
    E("s_waitcnt vmcnt(0)"); STAMP(13); STAMP_OUT()
if OPT["probe"] >= 0:
    T_ = ST0 + 2*OPT["probe"]
    E(f"""
    s_cmp_lg_u32 s3, {OPT["pw"]}
    s_cbranch_scc1 L_end
    s_cmp_lg_u32 s2, {OPT["pg"] if OPT["pg"] >= 0 else "s2"}
    s_cbranch_scc1 L_end
    s_sub_u32 s30, s{T_}, s{ST0}
    s_lshl_b32 s30, s30, 2
    s_add_u32 s30, s30, 3000
    s_min_u32 s30, s30, 20000
L_spin:
    s_memrealtime s[28:29]
    s_waitcnt lgkmcnt(0)
    s_sub_u32 s28, s28, s{ST0}
    s_cmp_lt_u32 s28, s30
    s_cbranch_scc1 L_spin
    """)
E(f"""
L_end:
    s_endpgm
L_gosafe:
    s_mov_b32 s{S_SAFE}, 8
    s_setprio 0
    s_waitcnt vmcnt(0) lgkmcnt(0)
    s_barrier
    s_branch L_restart
""")
for r in retries: E(r)
E(f"""
L_safe:
    v_and_b32 v2, 15, v1
    v_lshlrev_b32 v3, 3, v2
    v_add_u32 v3, {L_C}, v3
""")
for k in range(4):
    for s in range(4):
        E(f"ds_read_u16 v{80+4*k+s}, v3 offset:{128*k + 2*s}")
E("s_waitcnt lgkmcnt(0)")
for i in range(16):
    E(f"v_lshlrev_b32 v{80+i}, 16, v{80+i}\nv_mul_f32 v{80+i}, s40, v{80+i}")
E(f"""
    v_lshrrev_b32 v24, 4, v1
    s_movk_i32 s33, {NSTR}
    v_add_u32 v25, {L_NODE}, v{LN8}
    s_mov_b32 s34, s3
L_scell:
    s_lshl_b32 s30, s34, 10
    s_lshl_b32 s31, s{S_BUCK}, 3
    s_add_u32 s30, s30, s31
    s_add_u32 s30, s30, {WS_ROW}
    v_mov_b32 v26, s30
    global_load_dword v27, v26, s[20:21] sc1
    s_mul_i32 s30, s34, {CHUNK}
    s_add_u32 s30, s30, {WS_REC//16}
    s_waitcnt vmcnt(0)
    v_bfe_u32 v28, v27, 12, 12              ; count
    v_and_b32 v27, 0xfff, v27
    v_add_u32 v27, s30, v27
    v_mov_b32 v29, v24
L_srec:
    v_cmp_gt_u32 vcc, v28, v29
    s_and_saveexec_b64 s[48:49], vcc
    s_cbranch_execz L_snext
    v_add_lshl_u32 v30, v27, v29, 4
    s_mov_b32 s31, {POLL_MAX}
L_sget:
    global_load_dwordx4 v[32:35], v30, s[20:21] sc1
    s_sub_u32 s31, s31, 1
    s_cbranch_scc1 L_snext
    s_waitcnt vmcnt(0)
    v_cmp_ne_u32 vcc, s{S_TAG}, v35
    s_cbranch_vccnz L_sget
    v_and_b32 v30, 0x3fff00, v34
    v_add_u32 v30, v30, v{LN16}
    buffer_load_dwordx4 v[36:39], v30, s[36:39], 0 offen sc1
    v_lshrrev_b32 v31, 24, v34
    v_mad_u32_u24 v31, v31, s33, v25
    ds_read_b64 v[40:41], v31 offset:512
    v_lshlrev_b32 v44, 16, v32
    v_and_b32 v45, 0xffff0000, v32
    v_lshlrev_b32 v46, 16, v33
    v_and_b32 v47, 0xffff0000, v33
    s_waitcnt vmcnt(0) lgkmcnt(0)
    v_lshlrev_b32 v48, 16, v40
    v_and_b32 v49, 0xffff0000, v40
    v_lshlrev_b32 v50, 16, v41
    v_and_b32 v51, 0xffff0000, v41
""")
for s in range(4):
    E(f"v_lshlrev_b32 v52, 16, v{36+s}\nv_add_f32 v{48+s}, v{48+s}, v52")
    for k in range(4):
        E(f"v_fmac_f32 v{48+s}, v{44+k}, v{80+4*k+s}")
for s in range(4): E(f"v_exp_f32 v{48+s}, v{48+s}")
E("s_nop 0")
for s in range(4): E(f"v_add_f32 v{48+s}, 1.0, v{48+s}")
for s in range(4): E(f"v_rcp_f32 v{48+s}, v{48+s}")
E("s_nop 0")
for s in range(4): E(f"v_mul_f32 v{48+s}, v{48+s}, v{36+s}")
for s in range(4): E(f"v_cvt_f64_f32 v[{54+2*s}:{55+2*s}], v{48+s}")
for s in range(4): E(f"ds_add_f64 v31, v[{54+2*s}:{55+2*s}] offset:{128*s}")
E(f"""
    s_mov_b64 exec, s[48:49]
    v_add_u32 v29, 4, v29
    s_branch L_srec
L_snext:
    s_mov_b64 exec, s[48:49]
    s_add_u32 s34, s34, {NW}
    s_cmp_lt_u32 s34, {NCHUNK}
    s_cbranch_scc1 L_scell
    s_branch L_mdone
L_codeend:
.section .rodata,"a"
.p2align 6
.amdhsa_kernel {NAME}
.amdhsa_next_free_vgpr 168
.amdhsa_next_free_sgpr 102
.amdhsa_accum_offset 168
.amdhsa_group_segment_fixed_size 0
.amdhsa_kernarg_size 80
.amdhsa_user_sgpr_count 2
.amdhsa_user_sgpr_kernarg_segment_ptr 1
.amdhsa_system_sgpr_workgroup_id_x 1
.end_amdhsa_kernel
""")
if OPT["nochain"]:
    i0 = out.index("L_A:"); i1 = out.index("L_mdone:")
    out = out[:i0] + [l for l in out[i0:i1] if not any(x in l for x in ("v_exp", "v_pk_", "mfma", "v_rcp", "v_cvt"))] + out[i1:]
open(sys.argv[1], "w").write("\n".join(out) + "\n")
```

```python
import sys, struct

OPT = dict(stamps=0, force_safe=0, nogather=0, nosafe=0, prio=1, gsc1=1, osc=0, spin=0, codepf=1, srcmask=0x3fff00, nrec=0, warm=0, nochain=0, probe=-1, pw=-1, pg=-1, gpf=0, gate=1, aulate=0, early=0, cnt=0, rsc1=1, rdelay=0, p2sleep=0, touch=0, wsoff=0, rot=0, pollmax=200000)
for a in sys.argv[2:]:
    k, v = a.split("=")
    assert k in OPT, k
    OPT[k] = int(v, 0)

out = []
def E(s=""):
    for line in s.split("\n"):
        line = line.strip()
        if not line:
            continue
        if line.endswith(":") or line.startswith(".") or line.startswith(";"):
            out.append(line)
        else:
            out.append("    " + line)

def f32(x):
    return "0x%08x" % struct.unpack("<I", struct.pack("<f", x))[0]

NAME = "standalone__edge_featured_mpnn_egc__graph_kernel"
LOG2E = 1.4426950408889634
NB = 80; NBUCK = 125; CHUNK = 1280; NCHUNK = 250
NW = 12
G_HALF = 10000 * 256
WS0 = OPT["wsoff"] << 20
WS_REC = WS0 + 0x500000
WS_ROW = WS0 + 0xa00000
WS_FL2 = WS0 + 0xa80000
WS_TAG = WS0 + 0xac0000
SORTB = CHUNK * 16
WS_STAMP = 0x1000000
L_CNT = 0; L_SOFF = 512
L_SCNT = 1024
L_CTR = 1536; L_RD1 = 1540; L_DONE2 = 1544; L_FLAG = 1548; L_NST = 1552; L_GST = 1556
L_LIST = 2048
SSTR = 272
L_SRC = 7936
L_EA = L_SRC + 81 * SSTR
L_EAEND = L_EA + 81 * 2 * SSTR
L_SORT = L_EA
L_WBV = 74240; L_X = L_WBV + 32768; L_WAU = L_X + 20480; L_C = L_WAU + 32768; L_DUM = L_C + 1024
LDS = L_DUM + 1024
L_NODE = L_WBV; NSTR = 648
assert L_EAEND <= L_WBV and L_NODE + 80 * NSTR <= L_WAU and LDS <= 163840 and L_EA % 16 == 0
NULL_SRC = 0x7fffff00
NSTATIC = 240
LSTR = NW * 32
POLL_MAX = OPT["pollmax"]
SC1 = " sc1"

S_HALF, S_BUCK, S_P = 22, 23, 24
S_TAG, S_TAG8, S_SAFE = 25, 26, 27
S_N, S_K, S_IT = 70, 71, 72
S_TAGRAW = 47
ST0 = 74

def ESTAMP(i):
    if OPT["early"] == 1 or (OPT["early"] and i == 0): E(f"s_memrealtime s[{ST0+2*i}:{ST0+2*i+1}]")
def FSTAMP(i):
    if OPT["early"] == 2: E(f"s_memrealtime s[{ST0+2*i}:{ST0+2*i+1}]\ns_waitcnt lgkmcnt(0)")
def STAMP(i):
    if OPT["early"] and 1 <= i <= 7: return
    if OPT["early"] and i == 0: return ESTAMP(0)
    if OPT["stamps"] or (OPT["probe"] >= 0 and i == OPT["probe"]):
        E(f"s_memrealtime s[{ST0+2*i}:{ST0+2*i+1}]\ns_waitcnt lgkmcnt(0)")
    elif OPT["probe"] >= 0 and i == 0:
        E(f"s_memrealtime s[{ST0}:{ST0+1}]")
NSTAMP = 14
def STAMP_OUT():
    if OPT["stamps"]:
        E(f"""
        s_lshl_b32 s30, s2, 4
        s_add_u32 s30, s30, s3
        s_lshl_b32 s30, s30, 6
        s_add_u32 s30, s30, {WS_STAMP - 0x100000}
        s_load_dwordx2 s[20:21], s[0:1], 72
        s_waitcnt lgkmcnt(0)
        s_mov_b64 exec, -1
        v_mov_b32 v3, s30""")
        for i in range(NSTAMP):
            E(f"v_mov_b32 v2, s{ST0+2*i}\nglobal_store_dword v3, v2, s[20:21] offset:{4*i}")
        E("s_waitcnt vmcnt(0)")

A1, A2, IDX, LN8, LN16, ASEL, CW, EAC = 4, 8, 12, 13, 14, 16, 18, 20
LP, WS_, WN, WE, AG, EA, XA, OFS, T, N, P, F = 22, 24, 25, 26, 27, 30, 32, 36, 44, 52, 56, 60
D0, D1, G = 72, 88, 104

def finish_tag():
    E(f"""
    s_mul_i32 s{S_TAG8}, s{S_TAGRAW}, 0x85ebca6b
    s_mul_i32 s{S_TAG}, s{S_TAGRAW}, 0x9e3779b1
    s_lshr_b32 s{S_TAG8}, s{S_TAG8}, 24
    s_add_u32 s{S_TAG}, s{S_TAG}, 0x7f4a7c15
    """)
    if OPT["rot"] == 1:
        E(f"""
        s_and_b32 s30, s{S_TAG8}, 15
        s_lshl_b32 s30, s30, 24
        s_add_u32 s20, s20, s30
        s_addc_u32 s21, s21, 0
        """)
def get_tag(lab, q):
    E(f"""
    s_cmp_lg_u32 s{S_SAFE}, 0
    s_cbranch_scc1 L_tag_{lab}
    v_mov_b32 v2, 0
    s_mov_b32 s31, {POLL_MAX}
L_tg_{lab}:
    ds_read_b128 v[{q}:{q+3}], v2 offset:{L_SCNT + 124*4}
    s_sub_u32 s31, s31, 1
    s_cbranch_scc1 L_tag_{lab}
    s_waitcnt lgkmcnt(0)
    v_readfirstlane_b32 s30, v{q+3}
    v_readfirstlane_b32 s{S_TAGRAW}, v{q+1}
    s_cmp_lg_u32 s30, 4
    s_cbranch_scc1 L_tg_{lab}
    """)
    finish_tag()
    E(f"L_tag_{lab}:")

def lds_wait(addr, mask, val, tag, sleep=0):
    E(f"""
    v_mov_b32 v2, 0
    s_mov_b32 s31, {POLL_MAX}
L_w_{tag}:
    {f"s_sleep {sleep}" if sleep else ""}
    ds_read_b32 v3, v2 offset:{addr}
    s_sub_u32 s31, s31, 1
    s_cbranch_scc1 L_wd_{tag}
    s_waitcnt lgkmcnt(0)
    v_readfirstlane_b32 s30, v3
    s_and_b32 s30, s30, {mask}
    s_cmp_lg_u32 s30, {val}
    s_cbranch_scc1 L_w_{tag}
L_wd_{tag}:
    """)
SCAN = ("row_shr:1 row_mask:0xf bank_mask:0xf bound_ctrl:0", "row_shr:2 row_mask:0xf bank_mask:0xf bound_ctrl:0",
        "row_shr:4 row_mask:0xf bank_mask:0xf bound_ctrl:0", "row_shr:8 row_mask:0xf bank_mask:0xf bound_ctrl:0",
        "row_bcast:15 row_mask:0xa bank_mask:0xf", "row_bcast:31 row_mask:0xc bank_mask:0xf")
def scan(r):
    for m in SCAN:
        E(f"s_nop 1\nv_add_u32_dpp v{r}, v{r}, v{r} {m}")

def main_consts(sm=48):
    E(f"""
    v_and_b32 v2, 15, v1                    ; n'
    v_lshrrev_b32 v3, 4, v1
    v_lshl_add_u32 v3, v2, 2, v3
    v_lshlrev_b32 v3, 1, v3
    v_add_u32 v3, {L_C}, v3
    ds_read_u16 v64, v3                     ; C[0..3][feature 4n'+s]
    ds_read_u16 v65, v3 offset:128
    ds_read_u16 v66, v3 offset:256
    ds_read_u16 v67, v3 offset:384
    v_and_b32 v63, 3, v1                    ; q
    v_lshlrev_b32 v{LN8}, 3, v2
    v_lshlrev_b32 v{LN16}, 4, v2
    v_lshlrev_b32 v{LN16+1}, 4, v2
    v_mov_b32 v{IDX}, 0x8888
    v_bfe_u32 v60, v1, 3, 2                 ; s = (l&31)>>3
    v_bfe_u32 v61, v1, 2, 1                 ; h = (l>>2)&1
    v_lshrrev_b32 v62, 5, v1                ; ha
    v_and_b32 v2, 1, v60
    v_lshlrev_b32 v2, 4, v2
    v_lshlrev_b32 v2, v2, s46
    v_lshrrev_b32 v60, 1, v60               ; s>>1
    v_lshl_add_u32 v3, v61, 1, v60
    v_sub_u32 v63, v63, v62                 ; q - ha : 0 -> A1, 2 -> A2
    v_lshl_add_u32 v3, v63, 1, v3
    v_and_b32 v63, 1, v63
    v_lshl_or_b32 v3, v63, 4, v3
    v_xor_b32 v61, v61, v62
    v_lshl_or_b32 v60, v61, 4, v60
    """)
    mk = [f"s[{sm}:{sm+1}]", f"s[{sm+2}:{sm+3}]", f"s[{sm+4}:{sm+5}]", "vcc"]
    for i in range(8):
        E(f"v_cmp_eq_u32 {mk[i%4]}, {i}, v3")
        if i % 4 == 3:
            for j in range(i-3, i+1):
                E(f"v_cndmask_b32 v{A1+j}, 0, v2, {mk[j%4]}")
    E(f"""
    v_cmp_eq_u32 {mk[0]}, 0, v60
    v_cmp_eq_u32 {mk[1]}, 1, v60
    v_bfe_u32 v61, v1, 4, 1
    v_and_b32 v63, 3, v1
    v_cndmask_b32 v{ASEL}, 0, v2, {mk[0]}
    v_cndmask_b32 v{ASEL+1}, 0, v2, {mk[1]}
    v_lshl_add_u32 v61, v61, 2, v63
    v_lshlrev_b32 v61, 3, v61
    v_add_u32 v{EAC}, {L_EA - 2*L_SRC}, v61
    s_lshl_b32 s30, s3, 5
    s_add_u32 s30, s30, {L_LIST}
    v_lshrrev_b32 v2, 4, v1
    v_lshl_add_u32 v{LP}, v2, 3, s30
    v_bfe_u32 v2, v1, 2, 2
    v_lshl_add_u32 v{LP+1}, v2, 3, s30
    s_waitcnt lgkmcnt(0)
    v_lshlrev_b32 v60, 16, v64
    v_lshlrev_b32 v61, 16, v65
    v_lshlrev_b32 v62, 16, v66
    v_lshlrev_b32 v63, 16, v67
    v_mul_f32 v60, s40, v60
    v_mul_f32 v61, s40, v61
    v_mul_f32 v62, s40, v62
    v_mul_f32 v63, s40, v63
    v_cvt_pk_bf16_f32 v{CW}, v60, v61
    v_cvt_pk_bf16_f32 v{CW+1}, v62, v63
    """)

def gload(g, o):
    return f"buffer_load_dwordx4 v[{g}:{g+3}], v{o}, s[36:39], 0 offen" + (SC1 if OPT["gsc1"] else "")
def oadd(o):
    return f"v_lshl_add_u64 v[{o}:{o+1}], v[{o}:{o+1}], 0, v[{LN16}:{LN16+1}]"

def pk_steps(Gc, q, first):
    t = T + 4*(q & 1); h = Gc + 4*q
    if first and q == 0:
        return [f"v_pk_add_f32 v[{P+2*p}:{P+2*p+1}], v[{t+2*p}:{t+2*p+1}], 1.0 op_sel_hi:[1,0]" for p in range(2)]
    r = []
    for p in range(2):
        n = f"v[{Gc+2*p}:{Gc+2*p+1}]" if (first and q == 1) else f"v[{N+2*p}:{N+2*p+1}]"
        r.append(f"v_pk_fma_f32 v[{N+2*p}:{N+2*p+1}], {n}, v[{t+2*p}:{t+2*p+1}], {n}")
    for p in range(2):
        r.append(f"v_pk_fma_f32 v[{N+2*p}:{N+2*p+1}], v[{h+2*p}:{h+2*p+1}], v[{P+2*p}:{P+2*p+1}], v[{N+2*p}:{N+2*p+1}]")
    for p in range(2):
        r.append(f"v_pk_fma_f32 v[{P+2*p}:{P+2*p+1}], v[{P+2*p}:{P+2*p+1}], v[{t+2*p}:{t+2*p+1}], v[{P+2*p}:{P+2*p+1}]")
    return r
def exps(Dc, q):
    t = T + 4*(q & 1)
    return [f"v_exp_f32 v{t+s}, v{Dc+4*s+q}" for s in range(4)]
def weave(main, extra):
    for i, x in enumerate(main):
        E(x)
        for y in extra.get(i, []):
            E(y)
def m_a(Dn): return f"v_mfma_f32_32x32x8_bf16 v[{Dn}:{Dn+15}], v[{ASEL}:{ASEL+1}], v[{XA}:{XA+1}], 0"
def m_e(Dn, abid): return f"v_mfma_f32_16x16x4_4b_bf16 v[{Dn}:{Dn+15}], v[{EA}:{EA+1}], v[{CW}:{CW+1}], v[{Dn}:{Dn+15}] cbsz:2 abid:{abid}"
def m_s(Dn, A, g): return f"v_smfmac_f32_32x32x32_bf16 v[{Dn}:{Dn+15}], v[{A}:{A+3}], v[{g}:{g+7}], v{IDX}"

def body(par, loads):
    g0 = G + 32*par; g1 = g0 + 16; gn = G + 32*(1-par)
    agc = AG + par; agn = AG + 1 - par
    ld = loads and not OPT["nogather"]
    E("s_waitcnt vmcnt(8) lgkmcnt(4)")
    E(m_a(D1))
    for x in exps(D0, 0): E(x)
    E(m_s(D1, A1, g1))
    for x in exps(D0, 1): E(x)
    ex = {0: [f"v_add_u32 v{agn}, v{WN}, v{LN8}"],
          2: [f"ds_read_b64 v[{XA}:{XA+1}], v{agn} offset:512"],
          5: [f"v_lshl_add_u32 v{WE}, v{WE}, 1, v{EAC}"]}
    if loads:
        ex[1] = [f"ds_read_b128 v[{OFS}:{OFS+3}], v{WS_}"]
        ex[3] = [f"ds_read_b128 v[{OFS+4}:{OFS+7}], v{WS_} offset:16"]
    weave(pk_steps(g0, 0, True) + pk_steps(g0, 1, True), ex)
    E(m_e(D1, 1))
    for x in exps(D0, 2): E(x)
    E(m_s(D1, A2, g1+8))
    for x in exps(D0, 3): E(x)
    ex = {0: ["s_waitcnt lgkmcnt(0)", f"ds_read_b64 v[{EA}:{EA+1}], v{WE}"]}
    if loads:
        ex[0] += [oadd(OFS)]
        ex[2] = [oadd(OFS+2)]
    if ld:
        ex[1] = [gload(g0, OFS)]
        ex[3] = [gload(g0+4, OFS+1)]
        ex[5] = [gload(g0+8, OFS+2)]
        ex[9] = [gload(g0+12, OFS+3)]
    weave(pk_steps(g0, 2, False) + pk_steps(g0, 3, False), ex)
    E(f"s_waitcnt vmcnt({8 if loads else 4})")
    E(m_a(D0))
    for x in exps(D1, 0): E(x)
    E(m_s(D0, A1, gn))
    for x in exps(D1, 1): E(x)
    ex = {10: ["s_waitcnt lgkmcnt(0)"]}
    if loads:
        ex[0] = [oadd(OFS+4)]
        ex[2] = [oadd(OFS+6)]
    if ld:
        ex[5] = [gload(g1, OFS+4)]
        ex[10] = [gload(g1+4, OFS+5)] + ex[10]
    weave(pk_steps(g1, 0, False) + pk_steps(g1, 1, False), ex)
    E(m_e(D0, 0))
    for x in exps(D1, 2): E(x)
    E(m_s(D0, A2, gn+8))
    for x in exps(D1, 3): E(x)
    o = LSTR * par
    ex = {0: [f"ds_read_b32 v{WN}, v{LP} offset:{o + 2*LSTR + 4}"],
          1: [f"ds_read_b32 v{WE}, v{LP+1} offset:{o + 2*LSTR}"],
          2: [f"ds_read_b32 v{WS_}, v{LP} offset:{o + 3*LSTR}"]}
    if ld:
        ex[5] = [gload(g1+8, OFS+6)]
        ex[9] = [gload(g1+12, OFS+7)]
    weave(pk_steps(g1, 2, False) + pk_steps(g1, 3, False), ex)
    E(f"""
    v_rcp_f32 v{P}, v{P}
    v_rcp_f32 v{P+1}, v{P+1}
    v_rcp_f32 v{P+2}, v{P+2}
    v_rcp_f32 v{P+3}, v{P+3}
    v_pk_mul_f32 v[{N}:{N+1}], v[{N}:{N+1}], v[{P}:{P+1}]
    v_pk_mul_f32 v[{N+2}:{N+3}], v[{N+2}:{N+3}], v[{P+2}:{P+3}]
    """)
    if par == 1:
        E(f"v_lshl_add_u64 v[{LP}:{LP+1}], v[{LP}:{LP+1}], 0, s[44:45]")
    for s in range(4):
        E(f"v_cvt_f64_f32 v[{F+2*s}:{F+2*s+1}], v{N+s}")
        if s: E(f"ds_add_f64 v{agc}, v[{F+2*s-2}:{F+2*s-1}] offset:{128*(s-1)}")
    E(f"s_add_u32 s{S_K}, s{S_K}, {NW}")
    E(f"ds_add_f64 v{agc}, v[{F+6}:{F+7}] offset:384")
    if not loads:
        E("s_waitcnt vmcnt(0)")

E(f"""
; @launch grid=(256,1,1) block=({64*NW},1,1) lds={LDS}
.amdgcn_target "amdgcn-amd-amdhsa--gfx950"
.text
.globl {NAME}
.p2align 8
.type {NAME},@function
{NAME}:
""")
if OPT["stamps"] and OPT["early"] != 1:
    for i in range(NSTAMP): E(f"s_mov_b64 s[{ST0+2*i}:{ST0+2*i+1}], 0")
STAMP(0)
E(f"""
    s_load_dwordx16 s[4:19], s[0:1], 0
    s_load_dwordx2 s[20:21], s[0:1], 72
    {"s_load_dwordx2 s[64:65], s[0:1], 64" if OPT["rot"] else ""}
    {"s_memrealtime s[62:63]" if OPT["rot"] else ""}
""")
if OPT["codepf"]:
    E(f"""
    s_getpc_b64 s[28:29]
L_pc:
    v_lshlrev_b32 v3, 7, v0
    v_cmp_gt_u32 vcc, L_codeend-L_pc-64, v3
    s_cbranch_vccz L_nopf
    s_mov_b64 exec, vcc
    global_load_dword v164, v3, s[28:29]
    s_mov_b64 exec, -1
L_nopf:
    """)
E(f"""
    v_lshrrev_b32 v2, 6, v0
    v_and_b32 v1, 63, v0
    v_readfirstlane_b32 s3, v2
    s_and_b32 s{S_HALF}, s2, 1
    s_bfe_u32 s30, s2, 0x20001
    s_lshl_b32 s30, s30, 5
    s_lshr_b32 s31, s2, 3
    s_add_u32 s{S_BUCK}, s30, s31
    s_cmp_ge_u32 s2, 256
    s_cbranch_scc1 L_end
    s_cmp_ge_u32 s{S_BUCK}, {NBUCK}
    s_cbranch_scc1 L_end
    s_lshl_b32 s{S_P}, s{S_BUCK}, 1
    s_add_u32 s{S_P}, s{S_P}, s{S_HALF}
    s_mov_b32 s{S_SAFE}, 0
L_restart:
    s_cmp_ge_u32 s3, 4
    s_cbranch_scc1 L_nosort
    v_mov_b32 v48, 0
    v_mov_b32 v49, 0
    v_mov_b32 v50, 0
    v_mov_b32 v51, 0
    v_lshlrev_b32 v10, 4, v1
    ds_write_b128 v10, v[48:51] offset:{L_SCNT}
    s_mul_i32 s30, s{S_P}, {CHUNK*4}
    v_lshl_add_u32 v3, v0, 4, s30
    s_add_u32 s30, s30, 4096
    v_lshl_add_u32 v9, v0, 2, s30
    v_lshlrev_b32 v10, 1, v3
    v_lshlrev_b32 v11, 1, v9
    v_mov_b32 v17, {WS_TAG}
    s_waitcnt lgkmcnt(0)
    global_load_dwordx4 v[4:7], v3, s[10:11]
    global_load_dword v8, v9, s[10:11]
""")
if OPT["rot"]:
    E(f"""
    s_or_b32 s30, s{S_P}, s3
    s_or_b32 s30, s30, s{S_SAFE}
    s_cbranch_scc1 L_nonce
    s_or_b32 s30, s62, 1
    v_mov_b32 v43, s30
    s_mov_b64 exec, 1
    global_store_dword v48, v43, s[64:65] sc1
    s_mov_b64 exec, -1
    s_branch L_nonce2
L_nonce:
    global_load_dword v43, v48, s[64:65] sc1
L_nonce2:
    """)
else:
    E("global_load_dword v43, v17, s[20:21]")
E(f"""
    s_barrier                               ; B0
    global_load_dwordx4 v[12:15], v3, s[8:9]
    global_load_dword v16, v9, s[8:9]
    global_load_dwordx4 v[52:55], v10, s[6:7]
    global_load_dwordx4 v[60:63], v10, s[6:7] offset:16
    global_load_dwordx2 v[68:69], v11, s[6:7]
    s_barrier                               ; B0b
    s_branch L_sort
L_nosort:
    s_and_b32 s32, s3, 3                    ; tau
    s_lshr_b32 s33, s3, 3                   ; rg
    v_lshrrev_b32 v2, 4, v1                 ; g
    v_and_b32 v4, 15, v1
    s_lshl_b32 s30, s32, 2
    v_add_u32 v6, s30, v2                   ; row&15
    v_xor_b32 v7, v4, v6
    v_lshlrev_b32 v7, 4, v7
    v_lshl_add_u32 v7, v6, 8, v7
    s_mul_i32 s30, s{S_BUCK}, {NB*256}
    s_mul_i32 s31, s33, {3*4096}
    s_add_u32 s73, s30, s31
    v_add_u32 v7, s73, v7
    v_add_u32 v8, 0x1000, v7
    v_add_u32 v9, 0x2000, v7
    s_lshl_b32 s30, s32, 10
    s_add_u32 s31, s31, s30
    s_add_u32 m0, s31, {L_X}
    s_waitcnt lgkmcnt(0)
""")
if OPT["touch"]:
    st = {1: 0x30000, 2: 0x200000}[OPT["touch"]]; n = {1: 60, 2: 6}[OPT["touch"]]
    so = {1: 0x10000, 2: 0x200000}[OPT["touch"]]; no = {1: 39, 2: 2}[OPT["touch"]]
    E(f"""
    s_cmp_lg_u32 s3, 4
    s_cbranch_scc1 L_not1
    v_mul_u32_u24 v3, {st}, v1
    s_bfm_b64 exec, {n}, 0
    global_load_dword v166, v3, s[20:21] sc1
    s_mov_b64 exec, -1
L_not1:
    s_cmp_lg_u32 s3, 5
    s_cbranch_scc1 L_not2
    v_mul_u32_u24 v3, {so}, v1
    s_bfm_b64 exec, {no}, 0
    global_load_dword v166, v3, s[18:19] sc1
    s_mov_b64 exec, 1
    global_load_dword v167, v3, s[12:13]
    global_load_dword v165, v3, s[14:15]
    global_load_dword v164, v3, s[16:17]
    s_mov_b64 exec, -1
L_not2:
    """)
E(f"""
    s_barrier                               ; B0
    global_load_lds_dwordx4 v7, s[4:5]
    s_add_u32 m0, m0, 0x1000
    s_cmp_lg_u32 s33, 0
    global_load_lds_dwordx4 v8, s[4:5]
    s_cbranch_scc1 L_x2
    s_add_u32 m0, m0, 0x1000
    s_nop 0
    global_load_lds_dwordx4 v9, s[4:5]
L_x2:
    s_barrier                               ; B0b
    v_subrev_u32 v30, 256, v0               ; t = 0..511
    v_lshlrev_b32 v31, 4, v30
    v_mov_b32 v32, {NULL_SRC}
    v_mov_b32 v33, {NULL_SRC}
    v_mov_b32 v34, {NULL_SRC}
    v_mov_b32 v35, {NULL_SRC}
    v_mov_b32 v36, 0
    v_mov_b32 v37, 0
    v_mov_b32 v38, 0
    v_mov_b32 v39, 0
    v_add_u32 v40, {L_SORT + SORTB}, v31
""")
def cover(n): return list(range(0, n - 8192, 8192)) + [n - 8192]
for o in cover(81*SSTR): E(f"ds_write_b128 v31, v[32:35] offset:{L_SRC + o}")
for o in cover(L_EAEND - (L_SORT + SORTB)): E(f"ds_write_b128 v40, v[36:39] offset:{o}")
E(f"""
    v_lshrrev_b32 v5, 3, v1
    v_and_b32 v3, 1, v2
    s_and_b32 s30, s3, 1
    s_lshl_b32 s30, s30, 1
    v_or_b32 v3, s30, v3                    ; sigma
    v_lshlrev_b32 v3, 1, v3
    v_and_b32 v20, 7, v1
    v_xor_b32 v3, v3, v20
    v_lshlrev_b32 v3, 4, v3
    v_lshl_add_u32 v10, v5, 8, v3
    s_sub_u32 s28, s3, 4
    s_lshl_b32 s30, s28, 11
    s_lshl_b32 s31, s{S_HALF}, 7
    s_add_u32 s30, s30, s31
    v_add_u32 v10, s30, v10
    v_add_u32 v11, 0x4000, v10
    s_add_u32 s34, s16, {128*256}
    s_addc_u32 s35, s17, 0
    s_cmp_lg_u32 s3, 11
    s_cbranch_scc1 L_noc
    v_and_b32 v5, 3, v5
    v_lshlrev_b32 v20, 4, v20
    v_lshl_add_u32 v5, v5, 8, v20
    s_add_u32 s31, s31, {256*256}
    s_mov_b32 m0, {L_C}
    v_add_u32 v5, s31, v5
    global_load_lds_dwordx4 v5, s[16:17]
L_noc:
    s_lshl_b32 s28, s28, 10
    s_add_u32 m0, s28, {L_WBV}
""")
for ti, base in enumerate((34, 14)):
    for n in range(2):
        E(f"s_nop 0\nglobal_load_lds_dwordx4 v{10+n}, s[{base}:{base+1}]")
        if not (ti == 1 and n == 1):
            E(f"s_add_u32 m0, m0, 0x2000")
    if ti == 1:
        E(f"""
        s_cmp_ge_u32 s3, 8
        s_cbranch_scc1 L_pf2
        v_mov_b32 v32, {L_SRC + 80*SSTR}
        v_mov_b32 v33, {L_DUM}
        v_mov_b32 v34, {L_SRC + 80*SSTR}
        v_mov_b32 v35, {L_DUM}
        v_cmp_gt_u32 vcc, {(L_SRC - L_LIST - 8*NSTATIC)//16}, v30
        s_mov_b64 exec, vcc
        ds_write_b128 v31, v[32:35] offset:{L_LIST + 8*NSTATIC}
        s_branch L_pf3
L_pf2:
        s_cmp_ge_u32 s3, 10
        s_cbranch_scc1 L_pf3
        v_subrev_u32 v30, 256, v30              ; 0..127
        v_mul_u32_u24 v42, {SSTR}, v30
        v_add_u32 v42, {L_SRC}, v42
        v_mul_u32_u24 v43, {NSTR}, v30
        v_add_u32 v43, {L_NODE}, v43
        v_lshlrev_b32 v41, 2, v30
        ds_write_b32 v41, v42 offset:{L_CNT}
        v_add_u32 v41, {L_DUM + 256}, v41
        ds_write_b32 v41, v36
        v_lshlrev_b32 v41, 3, v30
        v_cmp_gt_u32 vcc, {NB}, v30
        s_mov_b64 exec, vcc
        ds_write_b64 v41, v[42:43] offset:{L_LIST}
        v_add_u32 v42, 32, v42
        ds_write_b64 v41, v[42:43] offset:{L_LIST + 8*NB}
        v_add_u32 v42, 32, v42
        ds_write_b64 v41, v[42:43] offset:{L_LIST + 16*NB}
L_pf3:
        s_mov_b64 exec, -1
        """)
STAMP(1)
E(f"""
    v_bfe_u32 v3, v1, 2, 2                  ; r
    v_lshl_add_u32 v5, v2, 3, v3            ; 8g + r
    v_lshrrev_b32 v3, 1, v3
    v_and_b32 v6, 1, v2
    v_lshl_or_b32 v3, v6, 1, v3             ; sigma
    v_xor_b32 v3, s32, v3
    v_lshlrev_b32 v3, 5, v3
    v_lshl_add_u32 v10, v5, 7, v3
    v_and_b32 v3, 3, v1
    v_lshl_add_u32 v10, v3, 3, v10
    v_add_u32 v10, {L_WBV}, v10
    v_xor_b32 v3, v2, v4
    v_lshlrev_b32 v3, 4, v3
    v_lshl_add_u32 v12, v4, 8, v3
    s_mul_i32 s31, s33, {3*4096}
    s_add_u32 s31, s31, {L_X}
    v_add_u32 v12, s31, v12
    v_xor_b32 v13, 64, v12
    v_xor_b32 v14, 0x80, v12
    v_xor_b32 v15, 0xc0, v12
    s_mul_i32 s30, s{S_HALF}, {G_HALF}
    {f"s_add_u32 s30, s30, {WS0}" if WS0 else ""}
    s_add_u32 s30, s30, s73
    s_lshl_b32 s31, s32, 6
    s_add_u32 s30, s30, s31
    v_lshlrev_b32 v11, 10, v2
    v_lshl_add_u32 v11, v4, 2, v11
    v_add_u32 v11, s30, v11
    s_lshl_b32 s31, s32, 5
    s_add_u32 s31, s31, {L_NODE}
    v_mul_u32_u24 v16, {NSTR}, v4
    v_lshl_add_u32 v16, v2, 3, v16
    v_add_u32 v16, s31, v16
    s_mov_b32 s40, {f32(LOG2E)}
    s_mov_b32 s42, {f32(2.0**32)}
    s_mov_b32 s44, 0x07060100
    s_mov_b32 s45, 0x07060302
    v_mov_b32 v8, {f32(2.0**-100)}
    v_mov_b32 v7, 1
    v_mov_b32 v6, 0
    s_waitcnt vmcnt(0)
    s_mov_b64 exec, 1
    ds_add_u32 v6, v7 offset:{L_CTR}
    s_mov_b64 exec, -1
""")
STAMP(2)
get_tag("g", 160)
lds_wait(L_CTR, 0xff, 8, "g1")
STAMP(3)
NP = 8
def rec_setup():
    E(f"""
    v_and_b32 v148, 15, v1                   ; j
    v_lshrrev_b32 v2, 4, v1
    v_lshl_add_u32 v149, v2, 3, v148
    s_lshl_b32 s30, s29, 5
    v_add_u32 v149, s30, v149
    s_lshl_b32 s30, s{S_BUCK}, 3
    s_add_u32 s30, s30, {WS_ROW}
    v_lshl_add_u32 v150, v149, 10, s30
    v_cmp_gt_u32 s[66:67], {NP}, v148
    v_cmp_gt_u32 vcc, {NCHUNK}, v149
    v_mov_b32 v154, 0
    v_mov_b32 v155, 0
    s_and_b64 s[66:67], s[66:67], vcc
    s_mov_b64 exec, s[66:67]
    global_load_dwordx2 v[154:155], v150, s[20:21] sc1
    s_mov_b64 exec, -1
    v_mul_u32_u24 v149, {CHUNK}, v149
    v_add_u32 v149, {WS_REC//16}, v149
    v_lshlrev_b32 v152, 4, v148               ; 16j
    v_not_b32 v151, v148
    v_subrev_u32 v153, 16, v151
    v_mov_b32 v156, 4
    """)
WF = 20; XF = 52; AC = 132
def wreads(ks):
    for t in range(2):
        for rd in range(2):
            r = WF + 16*t + 4*ks + 2*rd
            E(f"ds_read_b64_tr_b16 v[{r}:{r+1}], v10 offset:{t*16384 + ks*4096 + rd*512}")
def xread(rt, ks):
    r = XF + 16*rt + 4*ks
    return f"ds_read_b128 v[{r}:{r+3}], v{12+ks} offset:{rt*4096}"
def mf(rt, ks, transposed, acc):
    for t in range(2):
        a = XF + 16*rt + 4*ks; w = WF + 16*t + 4*ks; d = acc + 4*t
        c = "0" if ks == 0 else f"v[{d}:{d+3}]"
        if transposed: a, w = w, a
        E(f"v_mfma_f32_16x16x32_bf16 v[{d}:{d+3}], v[{a}:{a+3}], v[{w}:{w+3}], {c}")
def pack(rt, last):
    b = AC + 8*rt; h = b + 4
    for r in range(4): E(f"v_mul_f32 v{b+r}, s40, v{b+r}")
    for r in range(4): E(f"v_fma_f32 v{h+r}, v{h+r}, s42, v8")
    E(f"""
    v_cvt_pk_bf16_f32 v2, v{b}, v{b+1}
    v_cvt_pk_bf16_f32 v3, v{b+2}, v{b+3}
    v_xor_b32 v4, 0x80008000, v2
    v_xor_b32 v5, 0x80008000, v3
    v_sub_u32_sdwa v{h}, v{h}, sext(v2) dst_sel:DWORD dst_unused:UNUSED_PAD src0_sel:DWORD src1_sel:WORD_0
    v_sub_u32_sdwa v{h+1}, v{h+1}, sext(v2) dst_sel:DWORD dst_unused:UNUSED_PAD src0_sel:DWORD src1_sel:WORD_1
    v_sub_u32_sdwa v{h+2}, v{h+2}, sext(v3) dst_sel:DWORD dst_unused:UNUSED_PAD src0_sel:DWORD src1_sel:WORD_0
    v_sub_u32_sdwa v{h+3}, v{h+3}, sext(v3) dst_sel:DWORD dst_unused:UNUSED_PAD src0_sel:DWORD src1_sel:WORD_1
    """)
    for r in range(4):
        E(f"v_perm_b32 v{h+r}, v{h+r}, v{4 + (r>>1)}, s{44 + (r&1)}")
        E(f"global_store_dword v11, v{h+r}, s[20:21] offset:{256*r} sc1")
    if not last: E("v_add_u32 v11, 0x1000, v11")
E(f"""
    s_cmp_lg_u32 s{S_SAFE}, 0
    s_cbranch_scc1 L_nog1
""")
for ks in range(3):
    E(xread(0, ks)); wreads(ks)
E("s_waitcnt lgkmcnt(10)"); mf(0, 0, False, AC)
E(xread(0, 3)); wreads(3)
E("s_waitcnt lgkmcnt(10)"); mf(0, 1, False, AC)
for ks in range(4): E(xread(1, ks))
E("s_waitcnt lgkmcnt(9)"); mf(0, 2, False, AC)
E("s_waitcnt lgkmcnt(4)"); mf(0, 3, False, AC)
E("s_cmp_lg_u32 s33, 0\ns_cbranch_scc1 L_g1b")
for ks in range(4): E(xread(2, ks))
E("s_waitcnt lgkmcnt(4)")
for ks in range(4): mf(1, ks, False, AC+8)
pack(0, False)
E("s_waitcnt lgkmcnt(0)")
for ks in range(4): mf(2, ks, False, AC+16)
pack(1, False)
pack(2, True)
E(f"""
    s_mov_b64 exec, 1
    ds_add_u32 v6, v7 offset:{L_GST}
    s_mov_b64 exec, -1
L_g2x:
""")
for rt in (3, 4):
    for ks in range(4): E(xread(rt, ks))
STAMP(4)
def done2(lab):
    E(f"""
    s_lshl_b32 s30, s{S_P}, 7
    s_add_u32 s30, s30, {WS_FL2}
    v_mov_b32 v160, s30
    v_mov_b32 v162, s{S_TAG}
    v_mov_b32 v163, s{S_TAG8}
    v_mov_b32 v2, 0
    v_mov_b32 v3, 1
    s_mov_b64 exec, 1
    s_waitcnt vmcnt(0)
    ds_add_rtn_u32 v161, v2, v3 offset:{L_DONE2}
    s_waitcnt lgkmcnt(0)
    v_readfirstlane_b32 s30, v161
    s_cmp_lg_u32 s30, 7
    s_cbranch_scc1 L_nofl_{lab}
    s_cmp_lg_u32 s{S_SAFE}, 0
    s_cbranch_scc1 L_nofs_{lab}
    global_store_dwordx2 v160, v[162:163], s[20:21] sc1
L_nofs_{lab}:
    ds_add_u32 v2, v3 offset:{L_DONE2}
L_nofl_{lab}:
    s_mov_b64 exec, -1
    """)
done2("g")
STAMP(5)
E(f"v_add_u32 v10, {L_WAU - L_WBV}, v10")
lds_wait(L_DONE2, 8, 8, "d2")
lds_wait(L_CTR, 0xff0000, 0x040000, "d3")
STAMP(6)
for ks in range(4): wreads(ks)
E(f"""
    s_mov_b32 s40, {f32(-LOG2E)}
    s_mov_b32 s46, 0x3f80
""")
def fin(acc, last):
    a = acc; u = acc + 4
    for r in range(4): E(f"v_mul_f32 v{a+r}, s40, v{a+r}")
    for r in range(4): E(f"v_mul_f32 v{u+r}, s42, v{u+r}")
    E(f"""
    v_cvt_pk_bf16_f32 v{a}, v{a}, v{a+1}
    v_cvt_pk_bf16_f32 v{a+1}, v{a+2}, v{a+3}
    v_cvt_f64_f32 v[2:3], v{u}
    v_cvt_f64_f32 v[4:5], v{u+1}
    v_cvt_f64_f32 v[6:7], v{u+2}
    v_cvt_f64_f32 v[8:9], v{u+3}
    ds_write_b64 v16, v[{a}:{a+1}] offset:512
    ds_write2_b64 v16, v[2:3], v[4:5] offset0:0 offset1:16
    ds_write2_b64 v16, v[6:7], v[8:9] offset0:32 offset1:48
    """)
    if not last: E(f"v_add_u32 v16, {16*NSTR}, v16")
for ks in range(4):
    E(f"s_waitcnt lgkmcnt({12 - 4*ks})"); mf(0, ks, True, AC)
for rt in range(1, 5):
    for ks in range(4): mf(rt, ks, True, AC + 8*(rt % 3))
    fin(AC + 8*((rt-1) % 3), False)
fin(AC + 8*(4 % 3), True)
main_consts()
STAMP(7)
E(f"""
    s_cmp_lg_u32 s{S_SAFE}, 0
    s_cbranch_scc1 L_b4
    s_and_b32 s32, s3, 3
    s_lshl_b32 s30, s32, 13
    s_lshl_b32 s31, s{S_HALF}, 7
    s_add_u32 s30, s30, s31
    s_add_u32 s30, s30, {WS_FL2}
    v_lshl_add_u32 v3, v1, 8, s30
    s_cmp_eq_u32 s32, 3
    s_cselect_b32 exec_lo, 0x1fffffff, -1
    s_mov_b32 exec_hi, 0
    s_mov_b32 s31, {POLL_MAX}
L_p2:
    global_load_dwordx2 v[60:61], v3, s[20:21] sc1
    s_waitcnt vmcnt(0)
    v_cmp_ne_u32 vcc, s{S_TAG}, v60
    v_cmp_ne_u32 s[48:49], s{S_TAG8}, v61
    s_sub_u32 s31, s31, 1
    s_cbranch_scc1 L_p2d
    s_or_b64 exec, vcc, s[48:49]
    s_cbranch_scc1 L_p2
L_p2d:
    s_mov_b64 exec, -1
""")
if OPT["gpf"]:
    E(f"""
    s_mul_i32 s30, s32, {2560*256}
    s_lshr_b32 s31, s2, 3
    s_mul_i32 s31, s31, {160*128}
    s_add_u32 s30, s30, s31
    v_lshl_add_u32 v3, v1, 7, s30
    v_min_u32 v3, {G_HALF - 128 - 8192}, v3
    s_mul_i32 s30, s{S_HALF}, {G_HALF}
    {f"s_add_u32 s30, s30, {WS0}" if WS0 else ""}
    v_add_u32 v3, s30, v3
    v_add_u32 v2, 8192, v3
    {"s_bfm_b64 exec, %d, 0" % OPT["gpf"] if OPT["gpf"] < 64 else ""}
    global_load_dword v21, v3, s[20:21] sc1
    {"s_bfm_b64 exec, %d, 0" % (OPT["gpf"]-64) if 64 < OPT["gpf"] < 128 else ""}
    {"global_load_dword v29, v2, s[20:21] sc1" if OPT["gpf"] > 64 else ""}
    s_mov_b64 exec, -1
    """)
E(f"""
    s_branch L_b4
L_nog1:
    s_cmp_lg_u32 s33, 0
    s_cbranch_scc1 L_g1c
""")
for rt in range(3):
    for ks in range(4): E(xread(rt, ks))
E(f"""
    s_branch L_g2x
L_g1b:
    s_waitcnt lgkmcnt(0)
""")
for ks in range(4): mf(1, ks, False, AC+8)
E("s_sub_u32 s29, s3, 4")
rec_setup()
pack(0, False)
pack(1, True)
E(f"""
    s_mov_b64 exec, 1
    ds_add_u32 v6, v7 offset:{L_GST}
    s_mov_b64 exec, -1
L_g1c:
""")
STAMP(4)
E(f"""
    s_branch L_rec
L_sort:
""")
STAMP(1)
E(f"""
    s_cmp_lg_u32 s{S_SAFE}, 0
    s_cbranch_scc1 L_sortskip
    v_mov_b32 v21, 1
    s_mov_b32 s31, 52429
    s_movk_i32 s32, -20
    v_lshlrev_b32 v9, 3, v1
    v_lshlrev_b32 v33, 4, v0
    s_mul_i32 s30, s{S_P}, {SORTB}
    s_add_u32 s30, s30, {WS_REC + 4096}
    v_add_u32 v32, s30, v33
    v_add_u32 v34, 8192, v32
    v_add_u32 v35, 16384, v32
    s_lshl_b32 s30, s{S_P}, 10
    s_add_u32 s30, s30, {WS_ROW}
    v_lshl_add_u32 v42, v1, 4, s30
    s_mov_b32 s34, {POLL_MAX}
    s_setprio 3
    s_waitcnt vmcnt(6)
""")
STAMP(2)
FSTAMP(1)
for i in range(5):
    E(f"""
    v_mul_u32_u24 v{22+i}, s31, v{4+i}
    v_lshrrev_b32 v{22+i}, 22, v{22+i}
    v_lshlrev_b32 v{22+i}, 2, v{22+i}        ; bucket*4
    ds_add_rtn_u32 v{27+i}, v{22+i}, v21 offset:{L_SCNT}
    """)
E(f"""
    s_mov_b64 exec, 1
    s_cmp_lg_u32 s3, 0
    s_cbranch_scc1 L_notag
    s_waitcnt vmcnt(5)
""")
if OPT["rot"]:
    E(f"""
L_np:
    v_readfirstlane_b32 s30, v43
    s_cmp_lg_u32 s30, 0
    s_cbranch_scc1 L_npd
    s_sub_u32 s34, s34, 1
    s_cbranch_scc1 L_npd
    global_load_dword v43, v48, s[64:65] sc1
    s_waitcnt vmcnt(0)
    s_branch L_np
L_npd:
    s_mov_b32 s34, {POLL_MAX}
    """)
E(f"""
    ds_write_b32 v48, v43 offset:{L_SCNT + 125*4}
L_notag:
    ds_add_u32 v48, v21 offset:{L_SCNT + 127*4}
    s_mov_b64 exec, -1
L_s1:
    ds_read_b32 v38, v48 offset:{L_SCNT + 127*4}
    ds_read_b64 v[36:37], v9 offset:{L_SCNT}
    s_sub_u32 s34, s34, 1
    s_cbranch_scc1 L_s1d
    s_waitcnt lgkmcnt(0)
    v_readfirstlane_b32 s30, v38
    s_cmp_lg_u32 s30, 4
    s_cbranch_scc1 L_s1
L_s1d:
""")
FSTAMP(2)
E(f"""
    v_add_u32 v39, v36, v37
    v_add_u32 v38, v36, v37
    v_readlane_b32 s{S_TAGRAW}, v37, 62
""")
fill = []
for i in range(5):
    fill += [f"v_mad_i32_i24 v{4+i}, v{22+i}, s32, v{4+i}", f"v_lshlrev_b32 v{4+i}, 24, v{4+i}"]
for k, m in enumerate(SCAN):
    E(f"v_add_u32_dpp v39, v39, v39 {m}")
    for x in fill[2*k:2*k+2]: E(x)
E(f"""
    v_sub_u32 v40, v39, v38
    v_add_u32 v41, v40, v36
    ds_write_b64 v9, v[40:41] offset:{L_SOFF}
""")
for i in range(5):
    E(f"ds_read_b32 v{22+i}, v{22+i} offset:{L_SOFF}")
finish_tag()
E(f"""
    s_cmp_lg_u32 s3, 0
    s_cbranch_scc1 L_nopub
    s_lshl_b32 s35, s{S_TAG8}, 24
    v_mov_b32 v45, s{S_TAG}
    v_mov_b32 v47, s{S_TAG}
    v_lshl_or_b32 v44, v36, 12, v40
    v_lshl_or_b32 v46, v37, 12, v41
    v_or_b32 v44, s35, v44
    v_or_b32 v46, s35, v46
    global_store_dwordx4 v42, v[44:47], s[20:21] sc1
    s_waitcnt vmcnt(1)
    s_branch L_pub
L_nopub:
    s_waitcnt vmcnt(0)
L_pub:
""")
STAMP(4)
FSTAMP(3)
E("""
    v_mov_b64 v[56:57], v[54:55]
    v_mov_b64 v[64:65], v[62:63]
    s_waitcnt lgkmcnt(0)
""")
for i in range(5):
    E(f"""
    v_lshl_or_b32 v{54+4*i}, v{12+i}, 8, v{4+i}
    v_mov_b32 v{55+4*i}, s{S_TAG}
    v_add_lshl_u32 v{22+i}, v{22+i}, v{27+i}, 4
    ds_write_b128 v{22+i}, v[{52+4*i}:{55+4*i}] offset:{L_SORT}
    """)
E(f"""
    s_mov_b64 exec, 1
    ds_add_u32 v48, v21 offset:{L_SCNT + 126*4}
    s_mov_b64 exec, -1
""")
FSTAMP(4)
E(f"""
    s_mov_b32 s34, {POLL_MAX}
L_s2:
    ds_read_b32 v38, v48 offset:{L_SCNT + 126*4}
    ds_read_b128 v[72:75], v33 offset:{L_SORT}
    s_sub_u32 s34, s34, 1
    s_cbranch_scc1 L_s2d
    s_waitcnt lgkmcnt(1)
    v_readfirstlane_b32 s30, v38
    s_cmp_lg_u32 s30, 4
    s_cbranch_scc1 L_s2
L_s2d:
""")
FSTAMP(5)
for k in range(1, 5): E(f"ds_read_b128 v[{72+4*k}:{75+4*k}], v33 offset:{L_SORT + 4096*k}")
for k in range(5):
    E(f"s_waitcnt lgkmcnt({4-k})")
    E(f"global_store_dwordx4 v{(32,32,34,34,35)[k]}, v[{72+4*k}:{75+4*k}], s[20:21] offset:{0 if k & 1 else -4096} sc1")
FSTAMP(6)
for k in range(5): E(f"ds_write_b128 v33, v[48:51] offset:{L_SORT + 4096*k}")
STAMP(3)
FSTAMP(7)
RA = 72; RB = RA + 4*NP; RAD = RB + 4*NP
E(f"""
    s_branch L_sortdone
L_sortskip:
    s_waitcnt vmcnt(0)
L_sortdone:
    v_mov_b32 v21, 0x100
    s_mov_b64 exec, 1
    ds_add_u32 v48, v21 offset:{L_CTR}
    s_mov_b64 exec, -1
    v_lshrrev_b32 v5, 3, v1
    v_bfe_u32 v3, v1, 4, 1
    v_lshlrev_b32 v3, 1, v3
    v_and_b32 v20, 7, v1
    v_xor_b32 v3, v3, v20
    v_lshlrev_b32 v3, 4, v3
    v_lshl_add_u32 v10, v5, 8, v3
    s_lshl_b32 s30, s{S_HALF}, 7
    s_and_b32 s31, s3, 1
    s_lshl_b32 s31, s31, 14
    s_add_u32 s30, s30, s31
    v_add_u32 v10, s30, v10
    v_xor_b32 v11, 64, v10
    v_add_u32 v12, 2048, v10
    v_add_u32 v13, 3072, v11
    v_add_u32 v11, 1024, v11
    s_lshl_b32 s30, s3, 13
    s_add_u32 m0, s30, {L_WAU}
    s_cmp_lt_u32 s3, 2
    s_cselect_b32 s34, s16, s12
    s_cselect_b32 s35, s17, s13
    global_load_lds_dwordx4 v10, s[34:35]
    global_load_lds_dwordx4 v11, s[34:35] offset:1024
    global_load_lds_dwordx4 v12, s[34:35] offset:2048
    global_load_lds_dwordx4 v13, s[34:35] offset:3072
    s_add_u32 m0, m0, 4096
    s_add_u32 s34, s34, 8192
    s_addc_u32 s35, s35, 0
    global_load_lds_dwordx4 v10, s[34:35]
    global_load_lds_dwordx4 v11, s[34:35] offset:1024
    global_load_lds_dwordx4 v12, s[34:35] offset:2048
    global_load_lds_dwordx4 v13, s[34:35] offset:3072
    s_mov_b32 s29, s3
""")
rec_setup()
E(f"""
L_rec:
    s_mov_b32 s40, {f32(-LOG2E)}
    s_mov_b32 s46, 0x3f80
""")
lds_wait(L_CTR, 0xff, 8, "r0")
main_consts()
STAMP(5)
E("s_cmp_lt_u32 s3, 4\ns_cbranch_scc1 L_nod2")
done2("w")
E(f"""
    s_branch L_nod3
L_nod2:
    v_mov_b32 v2, 0
    v_mov_b32 v3, 0x10000
    s_mov_b64 exec, 1
    s_waitcnt vmcnt(0)
    ds_add_u32 v2, v3 offset:{L_CTR}
    s_mov_b64 exec, -1
L_nod3:
    s_cmp_lg_u32 s{S_SAFE}, 0
    s_cbranch_scc1 L_recskip
    s_mov_b64 exec, s[66:67]
    s_mov_b32 s34, {POLL_MAX}
    s_branch L_p1c
L_p1:
    global_load_dwordx2 v[154:155], v150, s[20:21] sc1
L_p1c:
    s_waitcnt vmcnt(0)
    v_cmp_ne_u32 vcc, s{S_TAG}, v155
    v_cmp_ne_u32_sdwa s[48:49], v154, s{S_TAG8} src0_sel:BYTE_3 src1_sel:DWORD
    s_sub_u32 s34, s34, 1
    s_cbranch_scc1 L_toobig
    s_or_b64 exec, vcc, s[48:49]
    s_cbranch_scc1 L_p1
L_p1d:
    s_mov_b64 exec, -1
""")
STAMP(6)
if OPT["cnt"]: E(f"s_sub_u32 s{ST0+2}, {POLL_MAX+1}, s34\ns_mov_b32 s34, {POLL_MAX}")
E(f"""
    v_and_b32 v155, 0xfff, v154
    v_bfe_u32 v154, v154, 12, 12              ; count
    v_add_lshl_u32 v155, v155, v149, 4
    v_cmp_lt_u32 vcc, 32, v154
    v_cmp_lt_u32 s[68:69], 16, v154
    s_cbranch_vccnz L_toobig
""")
for p in range(NP):
    E(f"""
    v_add_co_u32_dpp v2, vcc, v154, v151 row_newbcast:{p} row_mask:0xf bank_mask:0xf
    v_add_u32_dpp v{RAD+p}, v155, v152 row_newbcast:{p} row_mask:0xf bank_mask:0xf
    s_mov_b64 s[{48+2*p}:{49+2*p}], vcc
    """)
if OPT["gate"]:
    E(f"""
    s_cmp_lt_u32 s3, 4
    s_cselect_b32 s28, {L_GST}, 0
    s_cselect_b32 s29, 0, {L_DONE2}
    s_cselect_b32 s32, 8, 9
    s_add_u32 s28, s28, s29
    v_mov_b32 v2, s28
    s_mov_b32 s31, {POLL_MAX}
L_gate:
    ds_read_b32 v3, v2
    s_sub_u32 s31, s31, 1
    s_cbranch_scc1 L_gated
    s_waitcnt lgkmcnt(0)
    v_readfirstlane_b32 s30, v3
    s_cmp_lg_u32 s30, s32
    s_cbranch_scc1 L_gate
L_gated:
    """)
E(f"""
    s_or_b32 s68, s68, s69
    s_lshr_b32 s69, s68, 16
    s_or_b32 s68, s68, s69
    s_cbranch_scc0 L_noex
""")
for p in range(NP):
    r = RB + 4*p
    E(f"""
    s_bitcmp1_b32 s68, {p}
    s_cbranch_scc0 L_nx{p}
    v_add_co_u32_dpp v2, vcc, v154, v153 row_newbcast:{p} row_mask:0xf bank_mask:0xf
    s_mov_b64 exec, vcc
    global_load_dwordx4 v[{r}:{r+3}], v{RAD+p}, s[20:21] offset:256 sc1
    s_mov_b64 exec, -1
L_nx{p}:
    """)
E("L_noex:")
for p in range(NP):
    r = RA + 4*p
    E(f"""
    s_mov_b64 exec, s[{48+2*p}:{49+2*p}]
    global_load_dwordx4 v[{r}:{r+3}], v{RAD+p}, s[20:21] sc1
    """)
E("s_mov_b64 exec, -1")
STAMP(7)
lds_wait(L_CTR, 0xffff, 0x0408, "r1")
retries = []
def rank(r, m, ad, off, tag):
    E(f"""
    s_mov_b64 exec, {m}
    v_cmp_ne_u32 vcc, s{S_TAG}, v{r+3}
    s_cbranch_vccnz L_rt{tag}
L_rr{tag}:
    v_mul_u32_u24_sdwa v{r+3}, v156, v{r+2} dst_sel:DWORD dst_unused:UNUSED_PAD src0_sel:DWORD src1_sel:BYTE_3
    v_and_b32 v{r+2}, {OPT['srcmask']}, v{r+2}
    ds_add_rtn_u32 v{r+3}, v{r+3}, v156 offset:{L_CNT}
    """)
    retries.append(f"""
L_rt{tag}:
    s_mov_b64 exec, vcc
    global_load_dwordx4 v[{r}:{r+3}], v{ad}, s[20:21] offset:{off} sc1
    s_sub_u32 s34, s34, 1
    s_cbranch_scc1 L_toobig
    s_waitcnt vmcnt(0)
    v_cmp_ne_u32 vcc, s{S_TAG}, v{r+3}
    s_cbranch_vccnz L_rt{tag}
    s_mov_b64 exec, {m}
    s_branch L_rr{tag}
    """)
def put(r, m):
    E(f"""
    s_mov_b64 exec, {m}
    v_lshlrev_b32 v2, 1, v{r+3}
    ds_write_b32 v{r+3}, v{r+2}
    ds_write_b64 v2, v[{r}:{r+1}] offset:{L_EA - 2*L_SRC}
    """)
E(f"""
    s_cmp_eq_u32 s68, 0
    s_cbranch_scc1 L_noey
    s_waitcnt vmcnt({NP})
""")
for p in range(NP):
    r = RB + 4*p
    E(f"""
    s_bitcmp1_b32 s68, {p}
    s_cbranch_scc0 L_ny{p}
    v_add_co_u32_dpp v2, vcc, v154, v153 row_newbcast:{p} row_mask:0xf bank_mask:0xf
    s_mov_b64 s[28:29], vcc
    """)
    rank(r, "s[28:29]", RAD+p, 256, f"b{p}")
    E("s_waitcnt lgkmcnt(0)")
    put(r, "s[28:29]")
    E(f"s_mov_b64 exec, -1\nL_ny{p}:")
E("L_noey:")
LAG = 2
for p in range(NP + LAG):
    if p < NP:
        E(f"s_waitcnt vmcnt({NP-1-p})")
        rank(RA + 4*p, f"s[{48+2*p}:{49+2*p}]", RAD+p, 0, f"a{p}")
    q = p - LAG
    if q >= 0:
        younger = 0
        for j in range(q+1, min(p, NP-1)+1): younger += 1
        for j in range(max(0, q-LAG), q): younger += 2
        E(f"s_waitcnt lgkmcnt({younger})")
        put(RA + 4*q, f"s[{48+2*q}:{49+2*q}]")
E(f"""
    s_mov_b64 exec, -1
    {f"s_sub_u32 s{ST0+4}, {POLL_MAX+1}, s34" if OPT["cnt"] else ""}
    s_branch L_b4
L_toobig:
    s_mov_b64 exec, -1
    v_mov_b32 v2, 0
    ds_write_b32 v2, v156 offset:{L_FLAG}
L_recskip:
    s_waitcnt vmcnt(0)
L_b4:
    s_setprio 0
    s_mul_i32 s30, s{S_HALF}, {G_HALF}
    {f"s_add_u32 s30, s30, {WS0}" if WS0 else ""}
    s_add_u32 s36, s20, s30
    s_addc_u32 s37, s21, 0
    s_mov_b32 s38, {OPT['nrec'] or G_HALF}
    s_mov_b32 s39, 0x20000
    s_mov_b32 s44, {2*LSTR}
    s_mov_b32 s45, {2*LSTR}
    ds_read_b64 v[60:61], v{LP}
    ds_read_b32 v62, v{LP+1}
    ds_read_b32 v63, v{LP} offset:{LSTR}
    ds_read_b32 v{WN}, v{LP} offset:{LSTR + 4}
    ds_read_b32 v{WE}, v{LP+1} offset:{LSTR}
    ds_read_b32 v{WS_}, v{LP} offset:{2*LSTR}
    s_waitcnt lgkmcnt(0)
    v_add_u32 v{AG}, v61, v{LN8}
    v_lshl_add_u32 v62, v62, 1, v{EAC}
""")
if OPT["warm"]:
    E(f"""
    s_barrier
    s_lshr_b32 s30, s2, 3
    s_mul_i32 s30, s30, 98304
    v_lshl_add_u32 v2, v0, 7, s30
    buffer_load_dword v3, v2, s[36:39], 0 offen sc1
    s_waitcnt vmcnt(0)
    s_sleep 40
    """)
STAMP(8)
E(f"""
    s_barrier                               ; B4
    s_cmp_lg_u32 s{S_SAFE}, 0
    s_cbranch_scc1 L_safe
    ds_read_b128 v[{OFS}:{OFS+3}], v60
    ds_read_b128 v[{OFS+4}:{OFS+7}], v60 offset:16
    ds_read_b128 v[{T}:{T+3}], v63
    ds_read_b128 v[{T+4}:{T+7}], v63 offset:16
    ds_read_b64 v[{XA}:{XA+1}], v{AG} offset:512
    ds_read_b64 v[{EA}:{EA+1}], v62
    s_cmp_lg_u32 s3, {NW-1}
    s_cbranch_scc1 L_nobuild
    v_lshlrev_b32 v2, 3, v1
    v_mov_b32 v3, 0
    ds_read_b64 v[64:65], v2 offset:{L_CNT}
    ds_read_b32 v71, v3 offset:{L_FLAG}
    v_mul_u32_u24 v66, {2*SSTR}, v1
    v_add_u32 v66, {L_SRC + 96}, v66
    v_add_u32 v68, {SSTR}, v66
    v_mul_u32_u24 v67, {2*NSTR}, v1
    v_add_u32 v67, {L_NODE}, v67
    v_add_u32 v69, {NSTR}, v67
    s_waitcnt lgkmcnt(0)
    v_sub_u32 v64, v64, v66 clamp
    v_sub_u32 v65, v65, v68 clamp
    v_max_u32 v70, v64, v65
    v_cmp_lt_u32 vcc, 160, v70
    v_cmp_ne_u32 s[48:49], 0, v71
    v_add_u32 v64, 31, v64
    v_add_u32 v65, 31, v65
    s_or_b64 vcc, vcc, s[48:49]
    s_cbranch_scc1 L_bad
    v_lshrrev_b32 v64, 5, v64
    v_lshrrev_b32 v65, 5, v65
    v_add_u32 v70, v64, v65
    v_add_u32 v71, v64, v65
""")
scan(71)
E(f"""
    v_sub_u32 v70, v71, v70
    v_lshlrev_b32 v70, 3, v70
    v_readlane_b32 s30, v71, 63
    v_lshl_add_u32 v71, v64, 3, v70
""")
for b in range(5):
    E(f"""
    v_cmp_lt_u32 vcc, {b}, v64
    v_cmp_lt_u32 s[48:49], {b}, v65
    s_mov_b64 exec, vcc
    ds_write_b64 v70, v[66:67] offset:{L_LIST + 8*NSTATIC + 8*b}
    s_mov_b64 exec, s[48:49]
    ds_write_b64 v71, v[68:69] offset:{L_LIST + 8*NSTATIC + 8*b}
    s_mov_b64 exec, -1
    """)
    if b < 4: E("v_add_u32 v66, 32, v66\nv_add_u32 v68, 32, v68")
E(f"""
    s_add_u32 s30, s30, {NSTATIC + 3}
    s_lshr_b32 s30, s30, 2
    s_branch L_built
L_bad:
    s_mov_b32 s30, -1
L_built:
    v_mov_b32 v2, s30
    ds_write_b32 v3, v2 offset:{L_NST}
    s_cmp_lg_u32 s{S_P}, 0
    s_cbranch_scc1 L_nobuild
    v_mov_b32 v2, s{S_TAG}
    v_mov_b32 v3, {WS_TAG}
    s_mov_b64 exec, 1
    global_store_dword v3, v2, s[20:21]
    s_mov_b64 exec, -1
L_nobuild:
    s_waitcnt lgkmcnt(0)
""")
for i, o in enumerate((OFS, OFS+4, T, T+4)):
    E(oadd(o)); E(oadd(o+2))
    if not OPT["nogather"]:
        for q in range(4): E(gload(G + 16*i + 4*q, o+q))
STAMP(9)
E(m_a(D0)); E(m_e(D0, 0))
E(f"""
    v_mov_b32 v2, 0
    s_mov_b32 s31, {POLL_MAX}
    s_waitcnt vmcnt(12)
""")
E(m_s(D0, A1, G)); E(m_s(D0, A2, G+8))
E(f"""
L_wn:
    ds_read_b32 v3, v2 offset:{L_NST}
    s_waitcnt lgkmcnt(0)
    v_readfirstlane_b32 s{S_N}, v3
    s_sub_u32 s31, s31, 1
    s_cmp_eq_u32 s31, 0
    s_cbranch_scc1 L_wnd
    s_cmp_eq_u32 s{S_N}, 0
    s_cbranch_scc1 L_wn
L_wnd:
    s_cmp_gt_u32 s{S_N}, {0 if OPT["force_safe"] else 160}
    s_cbranch_scc1 L_gosafe
    s_add_u32 s{S_K}, s3, {2*NW}
    s_add_u32 s28, s{S_N}, {2*NW}
    s_mov_b32 s{S_IT}, 0
    s_nop 3
""")
if OPT["prio"]: E("s_setprio 3")
STAMP(10)
if OPT["stamps"]: E(f"s_memtime s[{ST0+24}:{ST0+25}]\ns_waitcnt lgkmcnt(0)")
E("L_A:")
body(0, True)
E(f"s_cmp_ge_u32 s{S_K}, s{S_N}\ns_cbranch_scc1 L_Bt")
body(1, True)
if OPT["prio"]:
    E(f"""
    s_add_u32 s{S_IT}, s{S_IT}, 1
    s_setprio 0
    s_cmp_gt_u32 s{S_IT}, 2
    s_cbranch_scc1 L_pr
    s_setprio 1
    s_cmp_eq_u32 s{S_IT}, 2
    s_cbranch_scc1 L_pr
    s_setprio 2
L_pr:
    """)
E(f"s_cmp_lt_u32 s{S_K}, s{S_N}\ns_cbranch_scc1 L_A")
E("L_At:")
body(0, False)
E(f"s_cmp_ge_u32 s{S_K}, s28\ns_cbranch_scc1 L_mdone")
E("L_Bt:")
body(1, False)
if OPT["prio"]: E("s_setprio 0")
E(f"s_cmp_lt_u32 s{S_K}, s28\ns_cbranch_scc1 L_At")
E(f"""
L_mdone:
    s_waitcnt lgkmcnt(0)
""")
STAMP(11)
if OPT["stamps"]:
    E(f"s_memtime s[28:29]\ns_waitcnt lgkmcnt(0)\ns_sub_u32 s{ST0+24}, s28, s{ST0+24}")
E(f"""
    v_lshrrev_b32 v2, 5, v0
    v_and_b32 v3, 31, v0
    v_mul_u32_u24 v4, {NSTR}, v2
    v_and_b32 v5, 1, v3
    v_lshl_add_u32 v4, v5, 8, v4
    v_lshrrev_b32 v5, 1, v3
    v_lshl_add_u32 v4, v5, 3, v4
    v_add_u32 v4, {L_NODE}, v4
    s_mul_i32 s30, s{S_BUCK}, {NB*256}
    s_lshl_b32 s31, s{S_HALF}, 7
    s_add_u32 s30, s30, s31
    v_lshlrev_b32 v3, 2, v3
    v_lshl_add_u32 v5, v2, 8, v3
    v_add_u32 v5, s30, v5
    v_add_u32 v6, {24*256}, v5
    v_add_u32 v7, {48*256}, v5
    v_add_u32 v8, {72*256}, v5
    s_mov_b32 s32, {f32(2.0**-32)}
    s_mov_b32 s34, {f32(-LOG2E * 2.0**-32)}
    v_mov_b32 v9, 0x207
    s_barrier                               ; B5
""")
OSC = {0: "", 1: " sc1", 2: " nt"}[OPT["osc"]]
def epi(us):
    for u in us: E(f"ds_read_b64 v[{12+4*u}:{13+4*u}], v4 offset:{24*NSTR*u}\nds_read_b64 v[{14+4*u}:{15+4*u}], v4 offset:{24*NSTR*u + 128}")
    E("s_waitcnt lgkmcnt(0)")
    for u in us: E(f"v_cvt_f32_f64 v{28+2*u}, v[{12+4*u}:{13+4*u}]\nv_cvt_f32_f64 v{29+2*u}, v[{14+4*u}:{15+4*u}]")
    for u in us: E(f"v_pk_mul_f32 v[{36+2*u}:{37+2*u}], v[{28+2*u}:{29+2*u}], s[34:35] op_sel_hi:[1,0]")
    for u in us: E(f"v_exp_f32 v{36+2*u}, v{36+2*u}\nv_exp_f32 v{37+2*u}, v{37+2*u}")
    for u in us: E(f"v_pk_mul_f32 v[{28+2*u}:{29+2*u}], v[{28+2*u}:{29+2*u}], s[32:33] op_sel_hi:[1,0]")
    for u in us: E(f"v_pk_add_f32 v[{36+2*u}:{37+2*u}], v[{36+2*u}:{37+2*u}], 1.0 op_sel_hi:[1,0]")
    for u in us: E(f"v_rcp_f32 v{36+2*u}, v{36+2*u}\nv_rcp_f32 v{37+2*u}, v{37+2*u}")
    E("v_pk_add_f32 v[10:11], v[28:29], v[30:31]")
    for u in us: E(f"v_pk_mul_f32 v[{36+2*u}:{37+2*u}], v[{28+2*u}:{29+2*u}], v[{36+2*u}:{37+2*u}]")
    for u in us: E(f"v_cvt_pk_bf16_f32 v{44+u}, v{36+2*u}, v{37+2*u}\nglobal_store_dword v{5+u}, v{44+u}, s[18:19]{OSC}")
    for u in us[2:]: E(f"v_pk_add_f32 v[10:11], v[10:11], v[{28+2*u}:{29+2*u}]")
E("s_cmp_ge_u32 s3, 4\ns_cbranch_scc1 L_e3")
epi([0, 1, 2, 3])
E("s_branch L_e4\nL_e3:")
epi([0, 1, 2])
E(f"""
L_e4:
    v_add_f32 v10, v10, v11
    v_cmp_class_f32 vcc, v10, v9
    v_mov_b32 v2, 0
    s_cmp_lg_u32 s{S_SAFE}, 0
    s_cbranch_scc1 L_fin
    {"s_branch" if OPT["nosafe"] else "s_cbranch_vccz"} L_e5
    ds_write_b32 v2, v9 offset:{L_FLAG}
    s_waitcnt lgkmcnt(0)
L_e5:
    s_barrier                               ; B6
    ds_read_b32 v2, v2 offset:{L_FLAG}
    s_waitcnt lgkmcnt(0)
    v_readfirstlane_b32 s30, v2
    s_cmp_lg_u32 s30, 0
    s_cbranch_scc1 L_gosafe
L_fin:
""")
if OPT["stamps"]:
    E("s_waitcnt vmcnt(0)"); STAMP(13); STAMP_OUT()
if OPT["probe"] >= 0:
    T_ = ST0 + 2*OPT["probe"]
    E(f"""
    s_cmp_lg_u32 s3, {OPT["pw"]}
    s_cbranch_scc1 L_end
    s_cmp_lg_u32 s2, {OPT["pg"] if OPT["pg"] >= 0 else "s2"}
    s_cbranch_scc1 L_end
    s_sub_u32 s30, s{T_}, s{ST0}
    s_lshl_b32 s30, s30, 2
    s_add_u32 s30, s30, 3000
    s_min_u32 s30, s30, 20000
L_spin:
    s_memrealtime s[28:29]
    s_waitcnt lgkmcnt(0)
    s_sub_u32 s28, s28, s{ST0}
    s_cmp_lt_u32 s28, s30
    s_cbranch_scc1 L_spin
    """)
E(f"""
L_end:
    s_endpgm
L_gosafe:
    s_mov_b32 s{S_SAFE}, 8
    s_setprio 0
    s_waitcnt vmcnt(0) lgkmcnt(0)
    s_barrier
    s_branch L_restart
""")
for r in retries: E(r)
E(f"""
L_safe:
    v_and_b32 v2, 15, v1
    v_lshlrev_b32 v3, 3, v2
    v_add_u32 v3, {L_C}, v3
""")
for k in range(4):
    for s in range(4):
        E(f"ds_read_u16 v{80+4*k+s}, v3 offset:{128*k + 2*s}")
E("s_waitcnt lgkmcnt(0)")
for i in range(16):
    E(f"v_lshlrev_b32 v{80+i}, 16, v{80+i}\nv_mul_f32 v{80+i}, s40, v{80+i}")
E(f"""
    v_lshrrev_b32 v24, 4, v1
    s_movk_i32 s33, {NSTR}
    v_add_u32 v25, {L_NODE}, v{LN8}
    s_mov_b32 s34, s3
    s_mov_b32 s35, {POLL_MAX}
L_scell:
    s_lshl_b32 s30, s34, 10
    s_lshl_b32 s31, s{S_BUCK}, 3
    s_add_u32 s30, s30, s31
    s_add_u32 s30, s30, {WS_ROW}
    v_mov_b32 v26, s30
    global_load_dword v27, v26, s[20:21] sc1
    s_mul_i32 s30, s34, {CHUNK}
    s_add_u32 s30, s30, {WS_REC//16}
    s_waitcnt vmcnt(0)
    v_bfe_u32 v28, v27, 12, 12              ; count
    v_and_b32 v27, 0xfff, v27
    v_add_u32 v27, s30, v27
    v_mov_b32 v29, v24
L_srec:
    v_cmp_gt_u32 vcc, v28, v29
    s_and_saveexec_b64 s[48:49], vcc
    s_cbranch_execz L_snext
    v_add_lshl_u32 v30, v27, v29, 4
L_sget:
    global_load_dwordx4 v[32:35], v30, s[20:21] sc1
    s_waitcnt vmcnt(0)
    v_cmp_ne_u32 vcc, s{S_TAG}, v35
    s_cbranch_vccz L_sgot
    s_sub_u32 s35, s35, 1
    s_cbranch_scc0 L_sget
    s_mov_b64 exec, -1
    s_branch L_mdone
L_sgot:
    v_and_b32 v30, 0x3fff00, v34
    v_add_u32 v30, v30, v{LN16}
    buffer_load_dwordx4 v[36:39], v30, s[36:39], 0 offen sc1
    v_lshrrev_b32 v31, 24, v34
    v_mad_u32_u24 v31, v31, s33, v25
    ds_read_b64 v[40:41], v31 offset:512
    v_lshlrev_b32 v44, 16, v32
    v_and_b32 v45, 0xffff0000, v32
    v_lshlrev_b32 v46, 16, v33
    v_and_b32 v47, 0xffff0000, v33
    s_waitcnt vmcnt(0) lgkmcnt(0)
    v_lshlrev_b32 v48, 16, v40
    v_and_b32 v49, 0xffff0000, v40
    v_lshlrev_b32 v50, 16, v41
    v_and_b32 v51, 0xffff0000, v41
""")
for s in range(4):
    E(f"v_lshlrev_b32 v52, 16, v{36+s}\nv_add_f32 v{48+s}, v{48+s}, v52")
    for k in range(4):
        E(f"v_fmac_f32 v{48+s}, v{44+k}, v{80+4*k+s}")
for s in range(4): E(f"v_exp_f32 v{48+s}, v{48+s}")
E("s_nop 0")
for s in range(4): E(f"v_add_f32 v{48+s}, 1.0, v{48+s}")
for s in range(4): E(f"v_rcp_f32 v{48+s}, v{48+s}")
E("s_nop 0")
for s in range(4): E(f"v_mul_f32 v{48+s}, v{48+s}, v{36+s}")
for s in range(4): E(f"v_cvt_f64_f32 v[{54+2*s}:{55+2*s}], v{48+s}")
for s in range(4): E(f"ds_add_f64 v31, v[{54+2*s}:{55+2*s}] offset:{128*s}")
E(f"""
    s_mov_b64 exec, s[48:49]
    v_add_u32 v29, 4, v29
    s_branch L_srec
L_snext:
    s_mov_b64 exec, s[48:49]
    s_add_u32 s34, s34, {NW}
    s_cmp_lt_u32 s34, {NCHUNK}
    s_cbranch_scc1 L_scell
    s_branch L_mdone
L_codeend:
.section .rodata,"a"
.p2align 6
.amdhsa_kernel {NAME}
.amdhsa_next_free_vgpr 168
.amdhsa_next_free_sgpr 102
.amdhsa_accum_offset 168
.amdhsa_group_segment_fixed_size 0
.amdhsa_kernarg_size 80
.amdhsa_user_sgpr_count 2
.amdhsa_user_sgpr_kernarg_segment_ptr 1
.amdhsa_system_sgpr_workgroup_id_x 1
.end_amdhsa_kernel
""")
if OPT["nochain"]:
    i0 = out.index("L_A:"); i1 = out.index("L_mdone:")
    out = out[:i0] + [l for l in out[i0:i1] if not any(x in l for x in ("v_exp", "v_pk_", "mfma", "v_rcp", "v_cvt"))] + out[i1:]
open(sys.argv[1], "w").write("\n".join(out) + "\n")
```

```python
import sys, struct

OPT = dict(stamps=0, force_safe=0, nogather=0, nosafe=0, prio=2, gsc1=1, osc=0, spin=0, codepf=1, srcmask=0x3fff00, nrec=0, warm=0, nochain=0, probe=-1, pw=-1, pg=-1, gpf=0, gate=1, aulate=0, early=0, cnt=0, rsc1=1, rdelay=0, p2sleep=0, touch=0, wsoff=0, rot=0, pollmax=200000, pa=7, pb=3, pc=1, p0=3, p1=3, ptime=0, dist=2, ldearly=1, drop=0)
for a in sys.argv[2:]:
    k, v = a.split("=")
    assert k in OPT, k
    OPT[k] = int(v, 0)

out = []
def E(s=""):
    for line in s.split("\n"):
        line = line.strip()
        if not line:
            continue
        if line.endswith(":") or line.startswith(".") or line.startswith(";"):
            out.append(line)
        else:
            out.append("    " + line)

def f32(x):
    return "0x%08x" % struct.unpack("<I", struct.pack("<f", x))[0]

NAME = "standalone__edge_featured_mpnn_egc__graph_kernel"
LOG2E = 1.4426950408889634
NB = 80; NBUCK = 125; CHUNK = 1280; NCHUNK = 250
NW = 12
G_HALF = 10000 * 256
WS0 = OPT["wsoff"] << 20
WS_REC = WS0 + 0x500000
WS_ROW = WS0 + 0xa00000
WS_FL2 = WS0 + 0xa80000
WS_TAG = WS0 + 0xac0000
SORTB = CHUNK * 16
WS_STAMP = 0x1000000
L_CNT = 0; L_SOFF = 512
L_SCNT = 1024
L_CTR = 1536; L_RD1 = 1540; L_DONE2 = 1544; L_FLAG = 1548; L_NST = 1552; L_GST = 1556
L_DUM = L_SOFF
L_LIST = 2048
L_LISTC = L_LIST + 4096
SSTR = 272
L_SRC = L_LIST + 8192
SRCB = 80 * SSTR + 32
L_EA = L_SRC + SRCB
L_EAEND = L_EA + 2 * SRCB
L_SORT = L_EA
L_WBV = (L_EAEND + 255) // 256 * 256; L_X = L_WBV + 32768; L_WAU = L_X + 20480; L_C = L_WAU + 32768
LDS = L_C + 1024
L_NODE = L_WBV; NSTR = 648
assert L_NODE + 80 * NSTR <= L_WAU and LDS <= 163840 and L_EA % 16 == 0
NULL_SRC = 0x7fffff00
POLL_MAX = OPT["pollmax"]
SC1 = " sc1"

S_HALF, S_BUCK, S_P = 22, 23, 24
S_TAG, S_TAG8, S_SAFE = 25, 26, 27
S_R, S_M, S_IT = 70, 71, 72
S_TAGRAW = 47
ST0 = 74

def ESTAMP(i):
    if OPT["early"] == 1 or (OPT["early"] and i == 0): E(f"s_memrealtime s[{ST0+2*i}:{ST0+2*i+1}]")
def FSTAMP(i):
    if OPT["early"] == 2: E(f"s_memrealtime s[{ST0+2*i}:{ST0+2*i+1}]\ns_waitcnt lgkmcnt(0)")
def STAMP(i):
    if OPT["early"] and 1 <= i <= 7: return
    if OPT["early"] and i == 0: return ESTAMP(0)
    if OPT["stamps"] or (OPT["probe"] >= 0 and i == OPT["probe"]):
        E(f"s_memrealtime s[{ST0+2*i}:{ST0+2*i+1}]\ns_waitcnt lgkmcnt(0)")
    elif OPT["probe"] >= 0 and i == 0:
        E(f"s_memrealtime s[{ST0}:{ST0+1}]")
NSTAMP = 14
def STAMP_OUT():
    if OPT["stamps"]:
        E(f"""
        s_lshl_b32 s30, s2, 4
        s_add_u32 s30, s30, s3
        s_lshl_b32 s30, s30, 6
        s_add_u32 s30, s30, {WS_STAMP - 0x100000}
        s_load_dwordx2 s[20:21], s[0:1], 72
        s_waitcnt lgkmcnt(0)
        s_mov_b64 exec, -1
        v_mov_b32 v3, s30""")
        for i in range(NSTAMP):
            E(f"v_mov_b32 v2, s{ST0+2*i}\nglobal_store_dword v3, v2, s[20:21] offset:{4*i}")
        E("s_waitcnt vmcnt(0)")

A1, A2, IDX, EAC, LN16, ASEL, CW, LN8 = 4, 8, 12, 13, 14, 16, 18, 20
LP, WS4, WN2, EA, XA, WE, OFS, AG, T, N, P, F = 22, 24, 28, 30, 32, 34, 36, 40, 44, 52, 56, 60
D0, D1, G = 72, 88, 104

def finish_tag():
    E(f"""
    s_mul_i32 s{S_TAG8}, s{S_TAGRAW}, 0x85ebca6b
    s_mul_i32 s{S_TAG}, s{S_TAGRAW}, 0x9e3779b1
    s_lshr_b32 s{S_TAG8}, s{S_TAG8}, 24
    s_add_u32 s{S_TAG}, s{S_TAG}, 0x7f4a7c15
    """)
    if OPT["rot"] == 1:
        E(f"""
        s_and_b32 s30, s{S_TAG8}, 15
        s_lshl_b32 s30, s30, 24
        s_add_u32 s20, s20, s30
        s_addc_u32 s21, s21, 0
        """)
def get_tag(lab, q):
    E(f"""
    s_cmp_lg_u32 s{S_SAFE}, 0
    s_cbranch_scc1 L_tag_{lab}
    v_mov_b32 v2, 0
    s_mov_b32 s31, {POLL_MAX}
L_tg_{lab}:
    ds_read_b128 v[{q}:{q+3}], v2 offset:{L_SCNT + 124*4}
    s_sub_u32 s31, s31, 1
    s_cbranch_scc1 L_tag_{lab}
    s_waitcnt lgkmcnt(0)
    v_readfirstlane_b32 s30, v{q+3}
    v_readfirstlane_b32 s{S_TAGRAW}, v{q+1}
    s_cmp_lg_u32 s30, 4
    s_cbranch_scc1 L_tg_{lab}
    """)
    finish_tag()
    E(f"L_tag_{lab}:")

def lds_wait(addr, mask, val, tag, sleep=0):
    E(f"""
    v_mov_b32 v2, 0
    s_mov_b32 s31, {POLL_MAX}
L_w_{tag}:
    {f"s_sleep {sleep}" if sleep else ""}
    ds_read_b32 v3, v2 offset:{addr}
    s_sub_u32 s31, s31, 1
    s_cbranch_scc1 L_wd_{tag}
    s_waitcnt lgkmcnt(0)
    v_readfirstlane_b32 s30, v3
    s_and_b32 s30, s30, {mask}
    s_cmp_lg_u32 s30, {val}
    s_cbranch_scc1 L_w_{tag}
L_wd_{tag}:
    """)
SCAN = ("row_shr:1 row_mask:0xf bank_mask:0xf bound_ctrl:0", "row_shr:2 row_mask:0xf bank_mask:0xf bound_ctrl:0",
        "row_shr:4 row_mask:0xf bank_mask:0xf bound_ctrl:0", "row_shr:8 row_mask:0xf bank_mask:0xf bound_ctrl:0",
        "row_bcast:15 row_mask:0xa bank_mask:0xf", "row_bcast:31 row_mask:0xc bank_mask:0xf")
def scan(r):
    for m in SCAN:
        E(f"s_nop 1\nv_add_u32_dpp v{r}, v{r}, v{r} {m}")

def main_consts(sm=48):
    E(f"""
    v_and_b32 v2, 15, v1                    ; n'
    v_lshrrev_b32 v3, 4, v1
    v_lshl_add_u32 v3, v2, 2, v3
    v_lshlrev_b32 v3, 1, v3
    v_add_u32 v3, {L_C}, v3
    ds_read_u16 v64, v3                     ; C[0..3][feature 4n'+s]
    ds_read_u16 v65, v3 offset:128
    ds_read_u16 v66, v3 offset:256
    ds_read_u16 v67, v3 offset:384
    v_and_b32 v63, 3, v1                    ; q
    v_lshlrev_b32 v{LN8}, 3, v2
    v_lshlrev_b32 v{LN8+1}, 3, v2
    v_lshlrev_b32 v{LN16}, 4, v2
    v_lshlrev_b32 v{LN16+1}, 4, v2
    v_mov_b32 v{IDX}, 0x8888
    v_bfe_u32 v60, v1, 3, 2                 ; s = (l&31)>>3
    v_bfe_u32 v61, v1, 2, 1                 ; h = (l>>2)&1
    v_lshrrev_b32 v62, 5, v1                ; ha
    v_and_b32 v2, 1, v60
    v_lshlrev_b32 v2, 4, v2
    v_lshlrev_b32 v2, v2, s46
    v_lshrrev_b32 v60, 1, v60               ; s>>1
    v_lshl_add_u32 v3, v61, 1, v60
    v_sub_u32 v63, v63, v62                 ; q - ha : 0 -> A1, 2 -> A2
    v_lshl_add_u32 v3, v63, 1, v3
    v_and_b32 v63, 1, v63
    v_lshl_or_b32 v3, v63, 4, v3
    v_xor_b32 v61, v61, v62
    v_lshl_or_b32 v60, v61, 4, v60
    """)
    mk = [f"s[{sm}:{sm+1}]", f"s[{sm+2}:{sm+3}]", f"s[{sm+4}:{sm+5}]", "vcc"]
    for i in range(8):
        E(f"v_cmp_eq_u32 {mk[i%4]}, {i}, v3")
        if i % 4 == 3:
            for j in range(i-3, i+1):
                E(f"v_cndmask_b32 v{A1+j}, 0, v2, {mk[j%4]}")
    E(f"""
    v_cmp_eq_u32 {mk[0]}, 0, v60
    v_cmp_eq_u32 {mk[1]}, 1, v60
    v_and_b32 v63, 3, v1
    v_lshlrev_b32 v61, 3, v63
    v_cndmask_b32 v{ASEL}, 0, v2, {mk[0]}
    v_cndmask_b32 v{ASEL+1}, 0, v2, {mk[1]}
    v_add_u32 v{EAC}, {L_EA - 2*L_SRC}, v61
    s_lshl_b32 s30, s3, 9
    s_sub_u32 s31, s30, 4096
    s_max_i32 s31, s31, 0
    s_add_u32 s30, s30, s31
    s_add_u32 s30, s30, {L_LIST}
    v_lshrrev_b32 v2, 4, v1
    v_lshl_add_u32 v{LP}, v2, 4, s30
    v_bfe_u32 v3, v1, 2, 2
    v_lshl_add_u32 v{LP+1}, v3, 4, s30
    v_lshl_add_u32 v{LP+1}, v2, 2, v{LP+1}
    s_waitcnt lgkmcnt(0)
    v_lshlrev_b32 v60, 16, v64
    v_lshlrev_b32 v61, 16, v65
    v_lshlrev_b32 v62, 16, v66
    v_lshlrev_b32 v63, 16, v67
    v_mul_f32 v60, s40, v60
    v_mul_f32 v61, s40, v61
    v_mul_f32 v62, s40, v62
    v_mul_f32 v63, s40, v63
    v_cvt_pk_bf16_f32 v{CW}, v60, v61
    v_cvt_pk_bf16_f32 v{CW+1}, v62, v63
    """)

def gload(g, o):
    return f"buffer_load_dwordx4 v[{g}:{g+3}], v{o}, s[36:39], 0 offen" + (SC1 if OPT["gsc1"] else "")
def oadd(o):
    return f"v_lshl_add_u64 v[{o}:{o+1}], v[{o}:{o+1}], 0, v[{LN16}:{LN16+1}]"

def pk_steps(Gc, q, first):
    t = T + 4*(q & 1); h = Gc + 4*q
    if first and q == 0:
        return [f"v_pk_add_f32 v[{P+2*p}:{P+2*p+1}], v[{t+2*p}:{t+2*p+1}], 1.0 op_sel_hi:[1,0]" for p in range(2)]
    r = []
    for p in range(2):
        n = f"v[{Gc+2*p}:{Gc+2*p+1}]" if (first and q == 1) else f"v[{N+2*p}:{N+2*p+1}]"
        r.append(f"v_pk_fma_f32 v[{N+2*p}:{N+2*p+1}], {n}, v[{t+2*p}:{t+2*p+1}], {n}")
    for p in range(2):
        r.append(f"v_pk_fma_f32 v[{N+2*p}:{N+2*p+1}], v[{h+2*p}:{h+2*p+1}], v[{P+2*p}:{P+2*p+1}], v[{N+2*p}:{N+2*p+1}]")
    for p in range(2):
        r.append(f"v_pk_fma_f32 v[{P+2*p}:{P+2*p+1}], v[{P+2*p}:{P+2*p+1}], v[{t+2*p}:{t+2*p+1}], v[{P+2*p}:{P+2*p+1}]")
    return r
def exps(Dc, q):
    t = T + 4*(q & 1)
    return [f"v_exp_f32 v{t+s}, v{Dc+4*s+q}" for s in range(4)]
def weave(main, extra):
    for i, x in enumerate(main):
        E(x)
        for y in extra.get(i, []):
            E(y)
def m_a(Dn): return f"v_mfma_f32_32x32x8_bf16 v[{Dn}:{Dn+15}], v[{ASEL}:{ASEL+1}], v[{XA}:{XA+1}], 0"
def m_e(Dn, abid): return f"v_mfma_f32_16x16x4_4b_bf16 v[{Dn}:{Dn+15}], v[{EA}:{EA+1}], v[{CW}:{CW+1}], v[{Dn}:{Dn+15}] cbsz:2 abid:{abid}"
def m_s(Dn, A, g): return f"v_smfmac_f32_32x32x32_bf16 v[{Dn}:{Dn+15}], v[{A}:{A+3}], v[{g}:{g+7}], v{IDX}"

outofline = []
def emit_to(lst, fn):
    global out
    keep = out; out = []
    fn(); lst += out; out = keep
DIST = OPT["dist"]; EARLY = OPT["ldearly"]
assert not (EARLY and DIST == 4)
def phase(u, loads):
    tag = f"{'L' if loads else 'T'}{u}"
    Dc, Dn = ((D0, D1), (D1, D0))[u & 1]
    gc = G + 16*u; gn = G + 16*((u+1) & 3); gl = G + 16*((u+DIST) & 3)
    ld = loads and not OPT["nogather"]
    kw = (u + DIST + EARLY) & 3
    wsgrp = 128 * ((3 - kw + u + DIST + EARLY) // 4 + 1) if kw == 3 else None
    def addloads(ex, pos):
        if loads:
            ex.setdefault(0, []).append(oadd(OFS)); ex.setdefault(2, []).append(oadd(OFS+2))
        if ld:
            for q in range(4): ex.setdefault(pos[q], []).append(gload(gl+4*q, OFS+q))
    E(f"L_{tag}:")
    if OPT["ptime"]: E(f"s_memrealtime s[28:29]\ns_mov_b32 m0, s{S_R}")
    E(f"s_waitcnt vmcnt({4*(DIST-2)})")
    if OPT["ptime"]: E(f"s_memrealtime s[30:31]")
    E(m_a(Dn))
    for x in exps(Dc, 0): E(x)
    E(m_s(Dn, A1, gn))
    for x in exps(Dc, 1): E(x)
    ex = {0: ["s_waitcnt lgkmcnt(0)"], 2: [f"ds_read_b64 v[{XA}:{XA+1}], v{AG + ((u+2) & 3)} offset:512"]}
    if OPT["ptime"]: ex[0] += ["v_writelane_b32 v35, s28, m0", "v_writelane_b32 v68, s30, m0"]
    if u % 2 == 0:
        p = AG + ((u+2) & 3)
        ex[0].append(f"v_lshl_add_u64 v[{p}:{p+1}], v[{WN2}:{WN2+1}], 0, v[{LN8}:{LN8+1}]")
    if EARLY: addloads(ex, (1, 3, 5, 6))
    elif loads: ex[1] = [f"ds_read_b128 v[{OFS}:{OFS+3}], v{WS4+kw}"]
    if u == 2:
        ex.setdefault(4, []).append(f"v_lshl_add_u32 v{WE}, v{WE}, 1, v{EAC}")
    E(f"s_bitcmp1_b32 s{S_M}, 0\ns_cbranch_scc1 L_{tag}f")
    weave(pk_steps(gc, 0, False) + pk_steps(gc, 1, False), ex)
    E(f"L_{tag}r:")
    def first():
        E(f"L_{tag}f:")
        weave(pk_steps(gc, 0, True) + pk_steps(gc, 1, True), ex)
        E(f"s_branch L_{tag}r")
    emit_to(outofline, first)
    E(m_e(Dn, (u+1) & 3))
    for x in exps(Dc, 2): E(x)
    E(m_s(Dn, A2, gn+8))
    for x in exps(Dc, 3): E(x)
    ex = {0: ["s_waitcnt lgkmcnt(0)"], 4: [], 6: [], 7: [f"s_sub_u32 s{S_R}, s{S_R}, 1"], 10: [f"s_lshr_b32 s{S_M}, s{S_M}, 1"], 11: [f"s_bitcmp1_b32 s{S_M}, 0"]}
    if not EARLY: addloads(ex, (1, 3, 5, 9) if DIST == 4 else (1, 3, 5, 7))
    elif loads: ex[1] = [f"ds_read_b128 v[{OFS}:{OFS+3}], v{WS4+kw}"]
    if u == 1:
        ex[4].append(f"ds_read_b64 v[{WN2}:{WN2+1}], v{LP} offset:{128+64}")
        ex[6].append(f"ds_read_b32 v{WE}, v{LP+1} offset:128")
    if u == 2:
        ex[4].append(f"ds_read_b64 v[{EA}:{EA+1}], v{WE}")
    if u == 3:
        ex[4].append(f"ds_read_b64 v[{WN2}:{WN2+1}], v{LP} offset:{128+64+8}")
        ex[8] = [f"v_lshl_add_u64 v[{LP}:{LP+1}], v[{LP}:{LP+1}], 0, s[44:45]"]
    if wsgrp and loads: ex[6].append(f"ds_read_b128 v[{WS4}:{WS4+3}], v{LP} offset:{wsgrp}")
    weave(pk_steps(gc, 2, False) + pk_steps(gc, 3, False), ex)
    E(f"s_cbranch_scc1 L_{tag}z\nL_{tag}y:")
    def fin():
        E(f"""
L_{tag}z:
        v_rcp_f32 v{P}, v{P}
        v_rcp_f32 v{P+1}, v{P+1}
        v_rcp_f32 v{P+2}, v{P+2}
        v_rcp_f32 v{P+3}, v{P+3}
        v_pk_mul_f32 v[{N}:{N+1}], v[{N}:{N+1}], v[{P}:{P+1}]
        v_pk_mul_f32 v[{N+2}:{N+3}], v[{N+2}:{N+3}], v[{P+2}:{P+3}]
        """)
        for s_ in range(4):
            E(f"v_cvt_f64_f32 v[{F+2*s_}:{F+2*s_+1}], v{N+s_}")
            if s_: E(f"ds_add_f64 v{AG+u}, v[{F+2*s_-2}:{F+2*s_-1}] offset:{128*(s_-1)}")
        E(f"ds_add_f64 v{AG+u}, v[{F+6}:{F+7}] offset:384")
        E(f"s_branch L_{tag}y")
    emit_to(outofline, fin)
    if OPT["prio"] == 2:
        E(f"s_bitcmp1_b32 s{S_IT}, s{S_R}\ns_cbranch_scc1 L_{tag}q\nL_{tag}p:")
        def pr():
            E(f"""
L_{tag}q:
            s_setprio 0
            s_cmp_le_u32 s{S_R}, {OPT["pc"]}
            s_cbranch_scc1 L_{tag}p
            s_setprio 1
            s_cmp_le_u32 s{S_R}, {OPT["pb"]}
            s_cbranch_scc1 L_{tag}p
            s_setprio 2
            s_branch L_{tag}p
            """)
        emit_to(outofline, pr)
    if u == 3 and OPT["prio"] == 1:
        E(f"""
        s_add_u32 s{S_IT}, s{S_IT}, 1
        s_setprio 0
        s_cmp_gt_u32 s{S_IT}, 2
        s_cbranch_scc1 L_{tag}p
        s_setprio 1
        s_cmp_eq_u32 s{S_IT}, 2
        s_cbranch_scc1 L_{tag}p
        s_setprio 2
L_{tag}p:
        """)
    if loads:
        E(f"s_cmp_le_u32 s{S_R}, {DIST}")
        if u < 3: E(f"s_cbranch_scc1 L_T{u+1}")
        else: E("s_cbranch_scc0 L_L0")
    else:
        E(f"s_waitcnt vmcnt(0)\ns_cmp_eq_u32 s{S_R}, 0")
        if u < 3: E("s_cbranch_scc1 L_mdone")
        else: E("s_cbranch_scc0 L_T0")

E(f"""
; @launch grid=(256,1,1) block=({64*NW},1,1) lds={LDS}
.amdgcn_target "amdgcn-amd-amdhsa--gfx950"
.text
.globl {NAME}
.p2align 8
.type {NAME},@function
{NAME}:
""")
if OPT["stamps"] and OPT["early"] != 1:
    for i in range(NSTAMP): E(f"s_mov_b64 s[{ST0+2*i}:{ST0+2*i+1}], 0")
STAMP(0)
E(f"""
    s_load_dwordx16 s[4:19], s[0:1], 0
    s_load_dwordx2 s[20:21], s[0:1], 72
    {"s_load_dwordx2 s[64:65], s[0:1], 64" if OPT["rot"] else ""}
    {"s_memrealtime s[62:63]" if OPT["rot"] else ""}
""")
if OPT["codepf"]:
    E(f"""
    s_getpc_b64 s[28:29]
L_pc:
    v_lshlrev_b32 v3, 7, v0
    v_cmp_gt_u32 vcc, L_codeend-L_pc-64, v3
    s_cbranch_vccz L_nopf
    s_mov_b64 exec, vcc
    global_load_dword v164, v3, s[28:29]
    s_mov_b64 exec, -1
L_nopf:
    """)
E(f"""
    v_lshrrev_b32 v2, 6, v0
    v_and_b32 v1, 63, v0
    v_readfirstlane_b32 s3, v2
    s_and_b32 s{S_HALF}, s2, 1
    s_bfe_u32 s30, s2, 0x20001
    s_lshl_b32 s30, s30, 5
    s_lshr_b32 s31, s2, 3
    s_add_u32 s{S_BUCK}, s30, s31
    s_cmp_ge_u32 s2, 256
    s_cbranch_scc1 L_end
    s_cmp_ge_u32 s{S_BUCK}, {NBUCK}
    s_cbranch_scc1 L_end
    s_lshl_b32 s{S_P}, s{S_BUCK}, 1
    s_add_u32 s{S_P}, s{S_P}, s{S_HALF}
    s_mov_b32 s{S_SAFE}, 0
L_restart:
    s_cmp_ge_u32 s3, 4
    s_cbranch_scc1 L_nosort
    v_mov_b32 v48, 0
    v_mov_b32 v49, 0
    v_mov_b32 v50, 0
    v_mov_b32 v51, 0
    v_lshlrev_b32 v10, 4, v1
    ds_write_b128 v10, v[48:51] offset:{L_SCNT}
    s_mul_i32 s30, s{S_P}, {CHUNK*4}
    v_lshl_add_u32 v3, v0, 4, s30
    s_add_u32 s30, s30, 4096
    v_lshl_add_u32 v9, v0, 2, s30
    v_lshlrev_b32 v10, 1, v3
    v_lshlrev_b32 v11, 1, v9
    v_mov_b32 v17, {WS_TAG}
    s_waitcnt lgkmcnt(0)
    global_load_dwordx4 v[4:7], v3, s[10:11]
    global_load_dword v8, v9, s[10:11]
""")
if OPT["rot"]:
    E(f"""
    s_or_b32 s30, s{S_P}, s3
    s_or_b32 s30, s30, s{S_SAFE}
    s_cbranch_scc1 L_nonce
    s_or_b32 s30, s62, 1
    v_mov_b32 v43, s30
    s_mov_b64 exec, 1
    global_store_dword v48, v43, s[64:65] sc1
    s_mov_b64 exec, -1
    s_branch L_nonce2
L_nonce:
    global_load_dword v43, v48, s[64:65] sc1
L_nonce2:
    """)
else:
    E("global_load_dword v43, v17, s[20:21]")
E(f"""
    s_barrier                               ; B0
    global_load_dwordx4 v[12:15], v3, s[8:9]
    global_load_dword v16, v9, s[8:9]
    global_load_dwordx4 v[52:55], v10, s[6:7]
    global_load_dwordx4 v[60:63], v10, s[6:7] offset:16
    global_load_dwordx2 v[68:69], v11, s[6:7]
    s_barrier                               ; B0b
    s_branch L_sort
L_nosort:
    s_and_b32 s32, s3, 3                    ; tau
    s_lshr_b32 s33, s3, 3                   ; rg
    v_lshrrev_b32 v2, 4, v1                 ; g
    v_and_b32 v4, 15, v1
    s_lshl_b32 s30, s32, 2
    v_add_u32 v6, s30, v2                   ; row&15
    v_xor_b32 v7, v4, v6
    v_lshlrev_b32 v7, 4, v7
    v_lshl_add_u32 v7, v6, 8, v7
    s_mul_i32 s30, s{S_BUCK}, {NB*256}
    s_mul_i32 s31, s33, {3*4096}
    s_add_u32 s73, s30, s31
    v_add_u32 v7, s73, v7
    v_add_u32 v8, 0x1000, v7
    v_add_u32 v9, 0x2000, v7
    s_lshl_b32 s30, s32, 10
    s_add_u32 s31, s31, s30
    s_add_u32 m0, s31, {L_X}
    s_waitcnt lgkmcnt(0)
""")
if OPT["touch"]:
    st = {1: 0x30000, 2: 0x200000}[OPT["touch"]]; n = {1: 60, 2: 6}[OPT["touch"]]
    so = {1: 0x10000, 2: 0x200000}[OPT["touch"]]; no = {1: 39, 2: 2}[OPT["touch"]]
    E(f"""
    s_cmp_lg_u32 s3, 4
    s_cbranch_scc1 L_not1
    v_mul_u32_u24 v3, {st}, v1
    s_bfm_b64 exec, {n}, 0
    global_load_dword v166, v3, s[20:21] sc1
    s_mov_b64 exec, -1
L_not1:
    s_cmp_lg_u32 s3, 5
    s_cbranch_scc1 L_not2
    v_mul_u32_u24 v3, {so}, v1
    s_bfm_b64 exec, {no}, 0
    global_load_dword v166, v3, s[18:19] sc1
    s_mov_b64 exec, 1
    global_load_dword v167, v3, s[12:13]
    global_load_dword v165, v3, s[14:15]
    global_load_dword v164, v3, s[16:17]
    s_mov_b64 exec, -1
L_not2:
    """)
E(f"""
    s_barrier                               ; B0
    global_load_lds_dwordx4 v7, s[4:5]
    s_add_u32 m0, m0, 0x1000
    s_cmp_lg_u32 s33, 0
    global_load_lds_dwordx4 v8, s[4:5]
    s_cbranch_scc1 L_x2
    s_add_u32 m0, m0, 0x1000
    s_nop 0
    global_load_lds_dwordx4 v9, s[4:5]
L_x2:
    s_barrier                               ; B0b
    v_subrev_u32 v30, 256, v0               ; t = 0..511
    v_lshlrev_b32 v31, 4, v30
    v_mov_b32 v32, {NULL_SRC}
    v_mov_b32 v33, {NULL_SRC}
    v_mov_b32 v34, {NULL_SRC}
    v_mov_b32 v35, {NULL_SRC}
    v_mov_b32 v36, 0
    v_mov_b32 v37, 0
    v_mov_b32 v38, 0
    v_mov_b32 v39, 0
    v_add_u32 v40, {L_SORT + SORTB}, v31
""")
def cover(n): return list(range(0, n - 8192, 8192)) + [n - 8192]
for o in cover(SRCB): E(f"ds_write_b128 v31, v[32:35] offset:{L_SRC + o}")
for o in cover(L_EAEND - (L_SORT + SORTB)): E(f"ds_write_b128 v40, v[36:39] offset:{o}")
E(f"""
    v_lshrrev_b32 v5, 3, v1
    v_and_b32 v3, 1, v2
    s_and_b32 s30, s3, 1
    s_lshl_b32 s30, s30, 1
    v_or_b32 v3, s30, v3                    ; sigma
    v_lshlrev_b32 v3, 1, v3
    v_and_b32 v20, 7, v1
    v_xor_b32 v3, v3, v20
    v_lshlrev_b32 v3, 4, v3
    v_lshl_add_u32 v10, v5, 8, v3
    s_sub_u32 s28, s3, 4
    s_lshl_b32 s30, s28, 11
    s_lshl_b32 s31, s{S_HALF}, 7
    s_add_u32 s30, s30, s31
    v_add_u32 v10, s30, v10
    v_add_u32 v11, 0x4000, v10
    s_add_u32 s34, s16, {128*256}
    s_addc_u32 s35, s17, 0
    s_cmp_lg_u32 s3, 11
    s_cbranch_scc1 L_noc
    v_and_b32 v5, 3, v5
    v_lshlrev_b32 v20, 4, v20
    v_lshl_add_u32 v5, v5, 8, v20
    s_add_u32 s31, s31, {256*256}
    s_mov_b32 m0, {L_C}
    v_add_u32 v5, s31, v5
    global_load_lds_dwordx4 v5, s[16:17]
L_noc:
    s_lshl_b32 s28, s28, 10
    s_add_u32 m0, s28, {L_WBV}
""")
for ti, base in enumerate((34, 14)):
    for n in range(2):
        E(f"s_nop 0\nglobal_load_lds_dwordx4 v{10+n}, s[{base}:{base+1}]")
        if not (ti == 1 and n == 1):
            E(f"s_add_u32 m0, m0, 0x2000")
    if ti == 1:
        E(f"""
        v_and_b32 v32, 3, v30                   ; quarter
        v_bfe_u32 v33, v30, 3, 3
        v_lshrrev_b32 v34, 5, v30
        s_and_b32 s30, s3, 3
        s_add_u32 s30, s30, 16
        s_cmp_ge_u32 s3, 8
        s_cselect_b32 s31, 7, 3
        s_cselect_b32 s29, 6, 12
        s_cselect_b64 vcc, -1, 0
        v_and_b32 v33, s31, v33
        v_mov_b32 v35, s30
        v_cndmask_b32 v34, v34, v35, vcc
        v_lshl_add_u32 v32, v34, 2, v32
        v_bfe_u32 v34, v30, 2, 1
        v_mul_u32_u24 v35, {NSTR - SSTR}, v34
        v_mul_u32_u24 v41, {L_NODE - L_SRC}, v34
        v_mul_u32_u24 v42, {L_SRC + 80*SSTR - L_DUM}, v34
        v_lshlrev_b32 v43, 4, v34
        v_add_u32 v35, {SSTR}, v35
        v_add_u32 v41, {L_SRC}, v41
        v_sub_u32 v42, {L_SRC + 80*SSTR}, v42
        v_sub_u32 v43, 16, v43
        v_lshlrev_b32 v33, 2, v33
        v_mad_u32_u24 v41, v32, v35, v41
        v_mad_u32_u24 v41, v33, v43, v41
        v_lshlrev_b32 v35, 5, v35
        v_mul_u32_u24 v34, 6, v43
        v_sub_u32 v35, v35, v34
        v_add_u32 v34, 2, v33
        v_cmp_gt_u32 s[48:49], 6, v33
        v_cmp_gt_u32 s[50:51], 6, v34
        v_cmp_gt_u32 s[52:53], s29, v33
        v_cmp_gt_u32 s[54:55], s29, v34
        v_cndmask_b32 v44, v35, 0, s[48:49]
        v_cndmask_b32 v46, v35, 0, s[50:51]
        v_add_u32 v44, v41, v44
        v_lshl_add_u32 v46, v43, 1, v46
        v_add_u32 v46, v41, v46
        v_add_u32 v45, v44, v43
        v_add_u32 v47, v46, v43
        v_cndmask_b32 v44, v42, v44, s[52:53]
        v_cndmask_b32 v45, v42, v45, s[52:53]
        v_cndmask_b32 v46, v42, v46, s[54:55]
        v_cndmask_b32 v47, v42, v47, s[54:55]
        ds_write_b128 v31, v[44:47] offset:{L_LIST}
        s_cmp_ge_u32 s3, 6
        s_cbranch_scc1 L_pf3
        v_mul_u32_u24 v42, {SSTR}, v30
        v_add_u32 v42, {L_SRC}, v42
        v_lshlrev_b32 v41, 2, v30
        ds_write_b32 v41, v42 offset:{L_CNT}
L_pf3:
        s_mov_b64 exec, -1
        """)
STAMP(1)
E(f"""
    v_bfe_u32 v3, v1, 2, 2                  ; r
    v_lshl_add_u32 v5, v2, 3, v3            ; 8g + r
    v_lshrrev_b32 v3, 1, v3
    v_and_b32 v6, 1, v2
    v_lshl_or_b32 v3, v6, 1, v3             ; sigma
    v_xor_b32 v3, s32, v3
    v_lshlrev_b32 v3, 5, v3
    v_lshl_add_u32 v10, v5, 7, v3
    v_and_b32 v3, 3, v1
    v_lshl_add_u32 v10, v3, 3, v10
    v_add_u32 v10, {L_WBV}, v10
    v_xor_b32 v3, v2, v4
    v_lshlrev_b32 v3, 4, v3
    v_lshl_add_u32 v12, v4, 8, v3
    s_mul_i32 s31, s33, {3*4096}
    s_add_u32 s31, s31, {L_X}
    v_add_u32 v12, s31, v12
    v_xor_b32 v13, 64, v12
    v_xor_b32 v14, 0x80, v12
    v_xor_b32 v15, 0xc0, v12
    s_mul_i32 s30, s{S_HALF}, {G_HALF}
    {f"s_add_u32 s30, s30, {WS0}" if WS0 else ""}
    s_add_u32 s30, s30, s73
    s_lshl_b32 s31, s32, 6
    s_add_u32 s30, s30, s31
    v_lshlrev_b32 v11, 10, v2
    v_lshl_add_u32 v11, v4, 2, v11
    v_add_u32 v11, s30, v11
    s_lshl_b32 s31, s32, 5
    s_add_u32 s31, s31, {L_NODE}
    v_mul_u32_u24 v16, {NSTR}, v4
    v_lshl_add_u32 v16, v2, 3, v16
    v_add_u32 v16, s31, v16
    s_mov_b32 s40, {f32(LOG2E)}
    s_mov_b32 s42, {f32(2.0**32)}
    s_mov_b32 s44, 0x07060100
    s_mov_b32 s45, 0x07060302
    v_mov_b32 v8, {f32(2.0**-100)}
    v_mov_b32 v7, 1
    v_mov_b32 v6, 0
    s_waitcnt vmcnt(0)
    s_mov_b64 exec, 1
    ds_add_u32 v6, v7 offset:{L_CTR}
    s_mov_b64 exec, -1
""")
STAMP(2)
get_tag("g", 160)
lds_wait(L_CTR, 0xff, 8, "g1")
STAMP(3)
NP = 8
def rec_setup():
    E(f"""
    v_and_b32 v148, 15, v1                   ; j
    v_lshrrev_b32 v2, 4, v1
    v_lshl_add_u32 v149, v2, 3, v148
    s_lshl_b32 s30, s29, 5
    v_add_u32 v149, s30, v149
    s_lshl_b32 s30, s{S_BUCK}, 3
    s_add_u32 s30, s30, {WS_ROW}
    v_lshl_add_u32 v150, v149, 10, s30
    v_cmp_gt_u32 s[66:67], {NP}, v148
    v_cmp_gt_u32 vcc, {NCHUNK}, v149
    v_mov_b32 v154, 0
    v_mov_b32 v155, 0
    s_and_b64 s[66:67], s[66:67], vcc
    s_mov_b64 exec, s[66:67]
    global_load_dwordx2 v[154:155], v150, s[20:21] sc1
    s_mov_b64 exec, -1
    v_mul_u32_u24 v149, {CHUNK}, v149
    v_add_u32 v149, {WS_REC//16}, v149
    v_lshlrev_b32 v152, 4, v148               ; 16j
    v_not_b32 v151, v148
    v_subrev_u32 v153, 16, v151
    v_mov_b32 v156, 4
    """)
WF = 20; XF = 52; AC = 132
def wreads(ks):
    for t in range(2):
        for rd in range(2):
            r = WF + 16*t + 4*ks + 2*rd
            E(f"ds_read_b64_tr_b16 v[{r}:{r+1}], v10 offset:{t*16384 + ks*4096 + rd*512}")
def xread(rt, ks):
    r = XF + 16*rt + 4*ks
    return f"ds_read_b128 v[{r}:{r+3}], v{12+ks} offset:{rt*4096}"
def mf(rt, ks, transposed, acc):
    for t in range(2):
        a = XF + 16*rt + 4*ks; w = WF + 16*t + 4*ks; d = acc + 4*t
        c = "0" if ks == 0 else f"v[{d}:{d+3}]"
        if transposed: a, w = w, a
        E(f"v_mfma_f32_16x16x32_bf16 v[{d}:{d+3}], v[{a}:{a+3}], v[{w}:{w+3}], {c}")
def pack(rt, last):
    b = AC + 8*rt; h = b + 4
    for r in range(4): E(f"v_mul_f32 v{b+r}, s40, v{b+r}")
    for r in range(4): E(f"v_fma_f32 v{h+r}, v{h+r}, s42, v8")
    E(f"""
    v_cvt_pk_bf16_f32 v2, v{b}, v{b+1}
    v_cvt_pk_bf16_f32 v3, v{b+2}, v{b+3}
    v_xor_b32 v4, 0x80008000, v2
    v_xor_b32 v5, 0x80008000, v3
    v_sub_u32_sdwa v{h}, v{h}, sext(v2) dst_sel:DWORD dst_unused:UNUSED_PAD src0_sel:DWORD src1_sel:WORD_0
    v_sub_u32_sdwa v{h+1}, v{h+1}, sext(v2) dst_sel:DWORD dst_unused:UNUSED_PAD src0_sel:DWORD src1_sel:WORD_1
    v_sub_u32_sdwa v{h+2}, v{h+2}, sext(v3) dst_sel:DWORD dst_unused:UNUSED_PAD src0_sel:DWORD src1_sel:WORD_0
    v_sub_u32_sdwa v{h+3}, v{h+3}, sext(v3) dst_sel:DWORD dst_unused:UNUSED_PAD src0_sel:DWORD src1_sel:WORD_1
    """)
    for r in range(4):
        E(f"v_perm_b32 v{h+r}, v{h+r}, v{4 + (r>>1)}, s{44 + (r&1)}")
        E(f"global_store_dword v11, v{h+r}, s[20:21] offset:{256*r} sc1")
    if not last: E("v_add_u32 v11, 0x1000, v11")
E(f"""
    s_cmp_lg_u32 s{S_SAFE}, 0
    s_cbranch_scc1 L_nog1
""")
for ks in range(3):
    E(xread(0, ks)); wreads(ks)
E("s_waitcnt lgkmcnt(10)"); mf(0, 0, False, AC)
E(xread(0, 3)); wreads(3)
E("s_waitcnt lgkmcnt(10)"); mf(0, 1, False, AC)
for ks in range(4): E(xread(1, ks))
E("s_waitcnt lgkmcnt(9)"); mf(0, 2, False, AC)
E("s_waitcnt lgkmcnt(4)"); mf(0, 3, False, AC)
E("s_cmp_lg_u32 s33, 0\ns_cbranch_scc1 L_g1b")
for ks in range(4): E(xread(2, ks))
E("s_waitcnt lgkmcnt(4)")
for ks in range(4): mf(1, ks, False, AC+8)
pack(0, False)
E("s_waitcnt lgkmcnt(0)")
for ks in range(4): mf(2, ks, False, AC+16)
pack(1, False)
pack(2, True)
E(f"""
    s_mov_b64 exec, 1
    ds_add_u32 v6, v7 offset:{L_GST}
    s_mov_b64 exec, -1
L_g2x:
""")
for rt in (3, 4):
    for ks in range(4): E(xread(rt, ks))
STAMP(4)
def done2(lab):
    E(f"""
    s_lshl_b32 s30, s{S_P}, 7
    s_add_u32 s30, s30, {WS_FL2}
    v_mov_b32 v160, s30
    v_mov_b32 v162, s{S_TAG}
    v_mov_b32 v163, s{S_TAG8}
    v_mov_b32 v2, 0
    v_mov_b32 v3, 1
    s_mov_b64 exec, 1
    s_waitcnt vmcnt(0)
    ds_add_rtn_u32 v161, v2, v3 offset:{L_DONE2}
    s_waitcnt lgkmcnt(0)
    v_readfirstlane_b32 s30, v161
    s_cmp_lg_u32 s30, 7
    s_cbranch_scc1 L_nofl_{lab}
    s_cmp_lg_u32 s{S_SAFE}, 0
    s_cbranch_scc1 L_nofs_{lab}
    global_store_dwordx2 v160, v[162:163], s[20:21] sc1
L_nofs_{lab}:
    ds_add_u32 v2, v3 offset:{L_DONE2}
L_nofl_{lab}:
    s_mov_b64 exec, -1
    """)
done2("g")
STAMP(5)
E(f"v_add_u32 v10, {L_WAU - L_WBV}, v10")
lds_wait(L_DONE2, 8, 8, "d2")
lds_wait(L_CTR, 0xff0000, 0x040000, "d3")
STAMP(6)
for ks in range(4): wreads(ks)
E(f"""
    s_mov_b32 s40, {f32(-LOG2E)}
    s_mov_b32 s46, 0x3f80
""")
def fin(acc, last):
    a = acc; u = acc + 4
    for r in range(4): E(f"v_mul_f32 v{a+r}, s40, v{a+r}")
    for r in range(4): E(f"v_mul_f32 v{u+r}, s42, v{u+r}")
    E(f"""
    v_cvt_pk_bf16_f32 v{a}, v{a}, v{a+1}
    v_cvt_pk_bf16_f32 v{a+1}, v{a+2}, v{a+3}
    v_cvt_f64_f32 v[2:3], v{u}
    v_cvt_f64_f32 v[4:5], v{u+1}
    v_cvt_f64_f32 v[6:7], v{u+2}
    v_cvt_f64_f32 v[8:9], v{u+3}
    ds_write_b64 v16, v[{a}:{a+1}] offset:512
    ds_write2_b64 v16, v[2:3], v[4:5] offset0:0 offset1:16
    ds_write2_b64 v16, v[6:7], v[8:9] offset0:32 offset1:48
    """)
    if not last: E(f"v_add_u32 v16, {16*NSTR}, v16")
for ks in range(4):
    E(f"s_waitcnt lgkmcnt({12 - 4*ks})"); mf(0, ks, True, AC)
for rt in range(1, 5):
    for ks in range(4): mf(rt, ks, True, AC + 8*(rt % 3))
    fin(AC + 8*((rt-1) % 3), False)
fin(AC + 8*(4 % 3), True)
main_consts()
STAMP(7)
E(f"""
    s_cmp_lg_u32 s{S_SAFE}, 0
    s_cbranch_scc1 L_b4
    s_and_b32 s32, s3, 3
    s_lshl_b32 s30, s32, 13
    s_lshl_b32 s31, s{S_HALF}, 7
    s_add_u32 s30, s30, s31
    s_add_u32 s30, s30, {WS_FL2}
    v_lshl_add_u32 v3, v1, 8, s30
    s_cmp_eq_u32 s32, 3
    s_cselect_b32 exec_lo, 0x1fffffff, -1
    s_mov_b32 exec_hi, 0
    s_mov_b32 s31, {POLL_MAX}
L_p2:
    global_load_dwordx2 v[60:61], v3, s[20:21] sc1
    s_waitcnt vmcnt(0)
    v_cmp_ne_u32 vcc, s{S_TAG}, v60
    v_cmp_ne_u32 s[48:49], s{S_TAG8}, v61
    s_sub_u32 s31, s31, 1
    s_cbranch_scc1 L_p2d
    s_or_b64 exec, vcc, s[48:49]
    s_cbranch_scc1 L_p2
L_p2d:
    s_mov_b64 exec, -1
""")
if OPT["gpf"]:
    E(f"""
    s_mul_i32 s30, s32, {2560*256}
    s_lshr_b32 s31, s2, 3
    s_mul_i32 s31, s31, {160*128}
    s_add_u32 s30, s30, s31
    v_lshl_add_u32 v3, v1, 7, s30
    v_min_u32 v3, {G_HALF - 128 - 8192}, v3
    s_mul_i32 s30, s{S_HALF}, {G_HALF}
    {f"s_add_u32 s30, s30, {WS0}" if WS0 else ""}
    v_add_u32 v3, s30, v3
    v_add_u32 v2, 8192, v3
    {"s_bfm_b64 exec, %d, 0" % OPT["gpf"] if OPT["gpf"] < 64 else ""}
    global_load_dword v35, v3, s[20:21] sc1
    {"s_bfm_b64 exec, %d, 0" % (OPT["gpf"]-64) if 64 < OPT["gpf"] < 128 else ""}
    {"global_load_dword v68, v2, s[20:21] sc1" if OPT["gpf"] > 64 else ""}
    s_mov_b64 exec, -1
    """)
E(f"""
    s_branch L_b4
L_nog1:
    s_cmp_lg_u32 s33, 0
    s_cbranch_scc1 L_g1c
""")
for rt in range(3):
    for ks in range(4): E(xread(rt, ks))
E(f"""
    s_branch L_g2x
L_g1b:
    s_waitcnt lgkmcnt(0)
""")
for ks in range(4): mf(1, ks, False, AC+8)
E("s_sub_u32 s29, s3, 4")
rec_setup()
pack(0, False)
pack(1, True)
E(f"""
    s_mov_b64 exec, 1
    ds_add_u32 v6, v7 offset:{L_GST}
    s_mov_b64 exec, -1
L_g1c:
""")
STAMP(4)
E(f"""
    s_branch L_rec
L_sort:
""")
STAMP(1)
E(f"""
    s_cmp_lg_u32 s{S_SAFE}, 0
    s_cbranch_scc1 L_sortskip
    v_mov_b32 v21, 1
    s_mov_b32 s31, 52429
    s_movk_i32 s32, -20
    v_lshlrev_b32 v9, 3, v1
    v_lshlrev_b32 v33, 4, v0
    s_mul_i32 s30, s{S_P}, {SORTB}
    s_add_u32 s30, s30, {WS_REC + 4096}
    v_add_u32 v32, s30, v33
    v_add_u32 v34, 8192, v32
    v_add_u32 v35, 16384, v32
    s_lshl_b32 s30, s{S_P}, 10
    s_add_u32 s30, s30, {WS_ROW}
    v_lshl_add_u32 v42, v1, 4, s30
    s_mov_b32 s34, {POLL_MAX}
    s_setprio 3
    s_waitcnt vmcnt(6)
""")
STAMP(2)
FSTAMP(1)
for i in range(5):
    E(f"""
    v_mul_u32_u24 v{22+i}, s31, v{4+i}
    v_lshrrev_b32 v{22+i}, 22, v{22+i}
    v_lshlrev_b32 v{22+i}, 2, v{22+i}        ; bucket*4
    ds_add_rtn_u32 v{27+i}, v{22+i}, v21 offset:{L_SCNT}
    """)
E(f"""
    s_mov_b64 exec, 1
    s_cmp_lg_u32 s3, 0
    s_cbranch_scc1 L_notag
    s_waitcnt vmcnt(5)
""")
if OPT["rot"]:
    E(f"""
L_np:
    v_readfirstlane_b32 s30, v43
    s_cmp_lg_u32 s30, 0
    s_cbranch_scc1 L_npd
    s_sub_u32 s34, s34, 1
    s_cbranch_scc1 L_npd
    global_load_dword v43, v48, s[64:65] sc1
    s_waitcnt vmcnt(0)
    s_branch L_np
L_npd:
    s_mov_b32 s34, {POLL_MAX}
    """)
E(f"""
    ds_write_b32 v48, v43 offset:{L_SCNT + 125*4}
L_notag:
    ds_add_u32 v48, v21 offset:{L_SCNT + 127*4}
    s_mov_b64 exec, -1
L_s1:
    ds_read_b32 v38, v48 offset:{L_SCNT + 127*4}
    ds_read_b64 v[36:37], v9 offset:{L_SCNT}
    s_sub_u32 s34, s34, 1
    s_cbranch_scc1 L_s1d
    s_waitcnt lgkmcnt(0)
    v_readfirstlane_b32 s30, v38
    s_cmp_lg_u32 s30, 4
    s_cbranch_scc1 L_s1
L_s1d:
""")
FSTAMP(2)
E(f"""
    v_add_u32 v39, v36, v37
    v_add_u32 v38, v36, v37
    v_readlane_b32 s{S_TAGRAW}, v37, 62
""")
fill = []
for i in range(5):
    fill += [f"v_mad_i32_i24 v{4+i}, v{22+i}, s32, v{4+i}", f"v_lshlrev_b32 v{4+i}, 24, v{4+i}"]
for k, m in enumerate(SCAN):
    E(f"v_add_u32_dpp v39, v39, v39 {m}")
    for x in fill[2*k:2*k+2]: E(x)
E(f"""
    v_sub_u32 v40, v39, v38
    v_add_u32 v41, v40, v36
    ds_write_b64 v9, v[40:41] offset:{L_SOFF}
""")
for i in range(5):
    E(f"ds_read_b32 v{22+i}, v{22+i} offset:{L_SOFF}")
finish_tag()
E(f"""
    s_cmp_lg_u32 s3, 0
    s_cbranch_scc1 L_nopub
    s_lshl_b32 s35, s{S_TAG8}, 24
    v_mov_b32 v45, s{S_TAG}
    v_mov_b32 v47, s{S_TAG}
    v_lshl_or_b32 v44, v36, 12, v40
    v_lshl_or_b32 v46, v37, 12, v41
    v_or_b32 v44, s35, v44
    v_or_b32 v46, s35, v46
    global_store_dwordx4 v42, v[44:47], s[20:21] sc1
    s_waitcnt vmcnt(1)
    s_branch L_pub
L_nopub:
    s_waitcnt vmcnt(0)
L_pub:
""")
STAMP(4)
FSTAMP(3)
E("""
    v_mov_b64 v[56:57], v[54:55]
    v_mov_b64 v[64:65], v[62:63]
    s_waitcnt lgkmcnt(0)
""")
for i in range(5):
    E(f"""
    v_lshl_or_b32 v{54+4*i}, v{12+i}, 8, v{4+i}
    v_mov_b32 v{55+4*i}, s{S_TAG}
    v_add_lshl_u32 v{22+i}, v{22+i}, v{27+i}, 4
    ds_write_b128 v{22+i}, v[{52+4*i}:{55+4*i}] offset:{L_SORT}
    """)
E(f"""
    s_mov_b64 exec, 1
    ds_add_u32 v48, v21 offset:{L_SCNT + 126*4}
    s_mov_b64 exec, -1
""")
FSTAMP(4)
E(f"""
    s_mov_b32 s34, {POLL_MAX}
L_s2:
    ds_read_b32 v38, v48 offset:{L_SCNT + 126*4}
    ds_read_b128 v[72:75], v33 offset:{L_SORT}
    s_sub_u32 s34, s34, 1
    s_cbranch_scc1 L_s2d
    s_waitcnt lgkmcnt(1)
    v_readfirstlane_b32 s30, v38
    s_cmp_lg_u32 s30, 4
    s_cbranch_scc1 L_s2
L_s2d:
""")
FSTAMP(5)
for k in range(1, 5): E(f"ds_read_b128 v[{72+4*k}:{75+4*k}], v33 offset:{L_SORT + 4096*k}")
for k in range(5):
    E(f"s_waitcnt lgkmcnt({4-k})")
    E(f"global_store_dwordx4 v{(32,32,34,34,35)[k]}, v[{72+4*k}:{75+4*k}], s[20:21] offset:{0 if k & 1 else -4096} sc1")
FSTAMP(6)
for k in range(5): E(f"ds_write_b128 v33, v[48:51] offset:{L_SORT + 4096*k}")
STAMP(3)
FSTAMP(7)
RA = 72; RB = RA + 4*NP; RAD = RB + 4*NP
E(f"""
    s_branch L_sortdone
L_sortskip:
    s_waitcnt vmcnt(0)
L_sortdone:
    v_mov_b32 v21, 0x100
    s_mov_b64 exec, 1
    ds_add_u32 v48, v21 offset:{L_CTR}
    s_mov_b64 exec, -1
    v_lshrrev_b32 v5, 3, v1
    v_bfe_u32 v3, v1, 4, 1
    v_lshlrev_b32 v3, 1, v3
    v_and_b32 v20, 7, v1
    v_xor_b32 v3, v3, v20
    v_lshlrev_b32 v3, 4, v3
    v_lshl_add_u32 v10, v5, 8, v3
    s_lshl_b32 s30, s{S_HALF}, 7
    s_and_b32 s31, s3, 1
    s_lshl_b32 s31, s31, 14
    s_add_u32 s30, s30, s31
    v_add_u32 v10, s30, v10
    v_xor_b32 v11, 64, v10
    v_add_u32 v12, 2048, v10
    v_add_u32 v13, 3072, v11
    v_add_u32 v11, 1024, v11
    s_lshl_b32 s30, s3, 13
    s_add_u32 m0, s30, {L_WAU}
    s_cmp_lt_u32 s3, 2
    s_cselect_b32 s34, s16, s12
    s_cselect_b32 s35, s17, s13
    global_load_lds_dwordx4 v10, s[34:35]
    global_load_lds_dwordx4 v11, s[34:35] offset:1024
    global_load_lds_dwordx4 v12, s[34:35] offset:2048
    global_load_lds_dwordx4 v13, s[34:35] offset:3072
    s_add_u32 m0, m0, 4096
    s_add_u32 s34, s34, 8192
    s_addc_u32 s35, s35, 0
    global_load_lds_dwordx4 v10, s[34:35]
    global_load_lds_dwordx4 v11, s[34:35] offset:1024
    global_load_lds_dwordx4 v12, s[34:35] offset:2048
    global_load_lds_dwordx4 v13, s[34:35] offset:3072
    s_mov_b32 s29, s3
""")
rec_setup()
E(f"""
L_rec:
    s_mov_b32 s40, {f32(-LOG2E)}
    s_mov_b32 s46, 0x3f80
""")
lds_wait(L_CTR, 0xff, 8, "r0")
main_consts()
STAMP(5)
E("s_cmp_lt_u32 s3, 4\ns_cbranch_scc1 L_nod2")
done2("w")
E(f"""
    s_branch L_nod3
L_nod2:
    v_mov_b32 v2, 0
    v_mov_b32 v3, 0x10000
    s_mov_b64 exec, 1
    s_waitcnt vmcnt(0)
    ds_add_u32 v2, v3 offset:{L_CTR}
    s_mov_b64 exec, -1
L_nod3:
    s_cmp_lg_u32 s{S_SAFE}, 0
    s_cbranch_scc1 L_recskip
    s_mov_b64 exec, s[66:67]
    s_mov_b32 s34, {POLL_MAX}
    s_branch L_p1c
L_p1:
    global_load_dwordx2 v[154:155], v150, s[20:21] sc1
L_p1c:
    s_waitcnt vmcnt(0)
    v_cmp_ne_u32 vcc, s{S_TAG}, v155
    v_cmp_ne_u32_sdwa s[48:49], v154, s{S_TAG8} src0_sel:BYTE_3 src1_sel:DWORD
    s_sub_u32 s34, s34, 1
    s_cbranch_scc1 L_toobig
    s_or_b64 exec, vcc, s[48:49]
    s_cbranch_scc1 L_p1
L_p1d:
    s_mov_b64 exec, -1
""")
STAMP(6)
if OPT["cnt"]: E(f"s_sub_u32 s{ST0+2}, {POLL_MAX+1}, s34\ns_mov_b32 s34, {POLL_MAX}")
E(f"""
    v_and_b32 v155, 0xfff, v154
    v_bfe_u32 v154, v154, 12, 12              ; count
    v_add_lshl_u32 v155, v155, v149, 4
    v_cmp_lt_u32 vcc, 32, v154
    v_cmp_lt_u32 s[68:69], 16, v154
    s_cbranch_vccnz L_toobig
""")
for p in range(NP):
    E(f"""
    v_add_co_u32_dpp v2, vcc, v154, v151 row_newbcast:{p} row_mask:0xf bank_mask:0xf
    v_add_u32_dpp v{RAD+p}, v155, v152 row_newbcast:{p} row_mask:0xf bank_mask:0xf
    s_mov_b64 s[{48+2*p}:{49+2*p}], vcc
    """)
if OPT["gate"]:
    E(f"""
    s_cmp_lt_u32 s3, 4
    s_cselect_b32 s28, {L_GST}, 0
    s_cselect_b32 s29, 0, {L_DONE2}
    s_cselect_b32 s32, 8, 9
    s_add_u32 s28, s28, s29
    v_mov_b32 v2, s28
    s_mov_b32 s31, {POLL_MAX}
L_gate:
    ds_read_b32 v3, v2
    s_sub_u32 s31, s31, 1
    s_cbranch_scc1 L_gated
    s_waitcnt lgkmcnt(0)
    v_readfirstlane_b32 s30, v3
    s_cmp_lg_u32 s30, s32
    s_cbranch_scc1 L_gate
L_gated:
    """)
E(f"""
    s_or_b32 s68, s68, s69
    s_lshr_b32 s69, s68, 16
    s_or_b32 s68, s68, s69
    s_cbranch_scc0 L_noex
""")
for p in range(NP):
    r = RB + 4*p
    E(f"""
    s_bitcmp1_b32 s68, {p}
    s_cbranch_scc0 L_nx{p}
    v_add_co_u32_dpp v2, vcc, v154, v153 row_newbcast:{p} row_mask:0xf bank_mask:0xf
    s_mov_b64 exec, vcc
    global_load_dwordx4 v[{r}:{r+3}], v{RAD+p}, s[20:21] offset:256 sc1
    s_mov_b64 exec, -1
L_nx{p}:
    """)
E("L_noex:")
for p in range(NP):
    r = RA + 4*p
    E(f"""
    s_mov_b64 exec, s[{48+2*p}:{49+2*p}]
    global_load_dwordx4 v[{r}:{r+3}], v{RAD+p}, s[20:21] sc1
    """)
E("s_mov_b64 exec, -1")
STAMP(7)
lds_wait(L_CTR, 0xffff, 0x0408, "r1")
retries = []
def rank(r, m, ad, off, tag):
    E(f"""
    s_mov_b64 exec, {m}
    v_cmp_ne_u32 vcc, s{S_TAG}, v{r+3}
    s_cbranch_vccnz L_rt{tag}
L_rr{tag}:
    v_mul_u32_u24_sdwa v{r+3}, v156, v{r+2} dst_sel:DWORD dst_unused:UNUSED_PAD src0_sel:DWORD src1_sel:BYTE_3
    v_and_b32 v{r+2}, {OPT['srcmask']}, v{r+2}
    ds_add_rtn_u32 v{r+3}, v{r+3}, v156 offset:{L_CNT}
    """)
    retries.append(f"""
L_rt{tag}:
    s_mov_b64 exec, vcc
    global_load_dwordx4 v[{r}:{r+3}], v{ad}, s[20:21] offset:{off} sc1
    s_sub_u32 s34, s34, 1
    s_cbranch_scc1 L_toobig
    s_waitcnt vmcnt(0)
    v_cmp_ne_u32 vcc, s{S_TAG}, v{r+3}
    s_cbranch_vccnz L_rt{tag}
    s_mov_b64 exec, {m}
    s_branch L_rr{tag}
    """)
def put(r, m):
    E(f"""
    s_mov_b64 exec, {m}
    v_lshlrev_b32 v2, 1, v{r+3}
    ds_write_b32 v{r+3}, v{r+2}
    ds_write_b64 v2, v[{r}:{r+1}] offset:{L_EA - 2*L_SRC}
    """)
E(f"""
    s_cmp_eq_u32 s68, 0
    s_cbranch_scc1 L_noey
    s_waitcnt vmcnt({NP})
""")
for p in range(NP):
    r = RB + 4*p
    E(f"""
    s_bitcmp1_b32 s68, {p}
    s_cbranch_scc0 L_ny{p}
    v_add_co_u32_dpp v2, vcc, v154, v153 row_newbcast:{p} row_mask:0xf bank_mask:0xf
    s_mov_b64 s[28:29], vcc
    """)
    rank(r, "s[28:29]", RAD+p, 256, f"b{p}")
    E("s_waitcnt lgkmcnt(0)")
    put(r, "s[28:29]")
    E(f"s_mov_b64 exec, -1\nL_ny{p}:")
E("L_noey:")
LAG = 2
for p in range(NP + LAG):
    if p < NP:
        E(f"s_waitcnt vmcnt({NP-1-p})")
        rank(RA + 4*p, f"s[{48+2*p}:{49+2*p}]", RAD+p, 0, f"a{p}")
    q = p - LAG
    if q >= 0:
        younger = 0
        for j in range(q+1, min(p, NP-1)+1): younger += 1
        for j in range(max(0, q-LAG), q): younger += 2
        E(f"s_waitcnt lgkmcnt({younger})")
        put(RA + 4*q, f"s[{48+2*q}:{49+2*q}]")
E(f"""
    s_mov_b64 exec, -1
    {f"s_sub_u32 s{ST0+4}, {POLL_MAX+1}, s34" if OPT["cnt"] else ""}
    s_branch L_b4
L_toobig:
    s_mov_b64 exec, -1
    v_mov_b32 v2, 0
    ds_write_b32 v2, v156 offset:{L_FLAG}
L_recskip:
    s_waitcnt vmcnt(0)
L_b4:
    s_setprio {OPT["p0"] if OPT["prio"] == 2 else 0}
    s_mul_i32 s30, s{S_HALF}, {G_HALF}
    {f"s_add_u32 s30, s30, {WS0}" if WS0 else ""}
    s_add_u32 s36, s20, s30
    s_addc_u32 s37, s21, 0
    s_mov_b32 s38, {OPT['nrec'] or G_HALF}
    s_mov_b32 s39, 0x20000
    s_mov_b32 s44, 128
    s_mov_b32 s45, 128
    ds_read_b128 v[60:63], v{LP}
    ds_read_b64 v[{AG}:{AG+1}], v{LP} offset:64
    ds_read_b64 v[{WN2}:{WN2+1}], v{LP} offset:72
    ds_read_b32 v{WE}, v{LP+1}
    s_waitcnt lgkmcnt(0)
    v_lshl_add_u64 v[{AG}:{AG+1}], v[{AG}:{AG+1}], 0, v[{LN8}:{LN8+1}]
    v_lshl_add_u32 v{WE}, v{WE}, 1, v{EAC}
""")
if OPT["warm"]:
    E(f"""
    s_barrier
    s_lshr_b32 s30, s2, 3
    s_mul_i32 s30, s30, 98304
    v_lshl_add_u32 v2, v0, 7, s30
    buffer_load_dword v3, v2, s[36:39], 0 offen sc1
    s_waitcnt vmcnt(0)
    s_sleep 40
    """)
STAMP(8)
E(f"""
    s_barrier                               ; B4
    s_cmp_lg_u32 s{S_SAFE}, 0
    s_cbranch_scc1 L_safe
    ds_read_b128 v[{T}:{T+3}], v60
    ds_read_b128 v[{T+4}:{T+7}], v61
    ds_read_b128 v[{T+8}:{T+11}], v62
    ds_read_b128 v[{T+12}:{T+15}], v63
    ds_read_b64 v[{XA}:{XA+1}], v{AG} offset:512
    ds_read_b64 v[{EA}:{EA+1}], v{WE}
    s_cmp_lt_u32 s3, {NW-2}
    s_cbranch_scc1 L_nobuild
    v_lshlrev_b32 v2, 3, v1
    v_mov_b32 v3, 0
    ds_read_b64 v[72:73], v2 offset:{L_CNT}
    ds_read_b32 v79, v3 offset:{L_FLAG}
    v_mul_u32_u24 v74, {2*SSTR}, v1
    v_add_u32 v74, {L_SRC + 96}, v74
    v_add_u32 v75, {SSTR}, v74
    v_mul_u32_u24 v82, {2*NSTR}, v1
    s_and_b32 s32, s3, 1
    s_mul_i32 s30, s32, {NSTR}
    s_add_u32 s30, s30, {L_NODE}
    v_add_u32 v82, s30, v82
    v_mov_b32 v83, v82
    s_mul_i32 s30, s32, {SSTR}
    v_add_u32 v80, s30, v74
    v_add_u32 v81, 16, v80
    s_waitcnt lgkmcnt(0)
    v_sub_u32 v72, v72, v74 clamp
    v_sub_u32 v73, v73, v75 clamp
    v_max_u32 v76, v72, v73
    v_cmp_lt_u32 vcc, 160, v76
    v_cmp_ne_u32 s[48:49], 0, v79
    v_add_u32 v74, 12, v72
    v_add_u32 v75, 12, v73
    s_or_b64 vcc, vcc, s[48:49]
    s_cbranch_scc1 L_bad
    v_add_u32 v72, 28, v72
    v_add_u32 v73, 28, v73
    v_lshrrev_b32 v74, 5, v74
    v_lshrrev_b32 v75, 5, v75
    v_lshrrev_b32 v72, 5, v72
    v_lshrrev_b32 v73, 5, v73
    v_sub_u32 v72, v72, v74
    v_sub_u32 v73, v73, v75
    v_lshl_or_b32 v72, v72, 16, v74
    v_lshl_or_b32 v73, v73, 16, v75
    v_add_u32 v76, v72, v73
    v_add_u32 v77, v72, v73
""")
scan(77)
E(f"""
    s_cmp_eq_u32 s32, 0
    s_cselect_b64 vcc, -1, 0
    v_readlane_b32 s30, v77, 63
    v_cndmask_b32 v76, v73, v76, vcc
    v_cndmask_b32 v72, v73, v72, vcc
    v_sub_u32 v77, v77, v76
    s_and_b32 s31, s30, 0xffff
    s_add_u32 s31, s31, 3
    s_lshr_b32 s31, s31, 2
    s_add_u32 s30, s30, 0x30000
    s_lshr_b32 s30, s30, 18
    s_lshl_b32 s33, s31, 1
    s_add_u32 s33, s33, s30
    s_cmp_gt_u32 s33, 112
    s_cbranch_scc1 L_bad
    s_lshl_b32 s30, s30, 8
    s_or_b32 s29, s30, s31
    v_and_b32 v74, 0xffff, v72
    v_and_b32 v76, 0xffff, v77
    s_mov_b32 s34, {L_LISTC}
    s_mov_b32 s35, {L_LIST + 384}
""")
def slotaddr():
    E(f"""
    v_add_u32 v78, 16, v76
    v_bfe_u32 v79, v76, 2, 2
    v_lshl_add_u32 v79, v79, 10, s34
    v_lshrrev_b32 v84, 5, v78
    v_lshl_add_u32 v79, v84, 7, v79
    v_bfe_u32 v84, v78, 4, 1
    v_lshl_add_u32 v79, v84, 3, v79
    v_lshrrev_b32 v84, 2, v76
    v_cmp_gt_u32 vcc, 32, v76
    v_lshl_add_u32 v84, v84, 9, s35
    v_and_b32 v78, 3, v76
    v_cndmask_b32 v79, v79, v84, vcc
    v_lshl_add_u32 v79, v78, 4, v79
    """)
E("""
L_bf:
    v_cmp_ne_u32 vcc, 0, v74
    s_and_b64 exec, exec, vcc
    s_cbranch_execz L_bfd
""")
slotaddr()
E(f"""
    ds_write_b64 v79, v[80:81]
    ds_write_b64 v79, v[82:83] offset:64
    v_add_u32 v80, 32, v80
    v_add_u32 v81, 32, v81
    v_add_u32 v76, 1, v76
    v_subrev_u32 v74, 1, v74
    s_branch L_bf
L_bfd:
    s_mov_b64 exec, -1
    v_lshrrev_b32 v77, 16, v77
    v_lshrrev_b32 v76, 3, v77
    v_add_u32 v76, s31, v76
    v_and_b32 v78, 3, v77
    v_lshl_add_u32 v76, v76, 2, v78
""")
slotaddr()
E(f"""
    v_and_b32 v78, 4, v77
    v_add_u32 v79, v79, v78
    v_cmp_lt_u32 vcc, 0xffff, v72
    s_mov_b64 exec, vcc
    ds_write2_b32 v79, v80, v82 offset0:0 offset1:16
    s_mov_b64 exec, -1
    s_mul_i32 s29, s29, s32
    s_add_u32 s29, s29, 0x10000
    s_branch L_built
L_bad:
    s_mov_b32 s29, 0x1010000
L_built:
    v_mov_b32 v2, s29
    s_mov_b64 exec, 1
    ds_add_u32 v3, v2 offset:{L_NST}
    s_add_u32 s30, s{S_P}, s32
    s_cmp_lg_u32 s30, 0
    s_cbranch_scc1 L_notw
    v_mov_b32 v2, s{S_TAG}
    v_mov_b32 v3, {WS_TAG}
    global_store_dword v3, v2, s[20:21]
L_notw:
    s_mov_b64 exec, -1
L_nobuild:
    s_waitcnt lgkmcnt(0)
""")
if EARLY:
    for q in range(0, 4, 2): E(f"v_mov_b64 v[{OFS+q}:{OFS+q+1}], v[{T+4*DIST+q}:{T+4*DIST+q+1}]")
for i in range(DIST):
    o = T + 4*i
    E(oadd(o)); E(oadd(o+2))
    if not OPT["nogather"]:
        for q in range(4): E(gload(G + 16*i + 4*q, o+q))
STAMP(9)
E(m_a(D0)); E(m_e(D0, 0))
E(f"""
    v_mov_b32 v2, 0
    s_mov_b32 s31, {POLL_MAX}
    s_waitcnt vmcnt({4*(DIST-1)})
""")
E(m_s(D0, A1, G)); E(m_s(D0, A2, G+8))
E(f"""
L_wn:
    ds_read_b32 v3, v2 offset:{L_NST}
    ds_read_b128 v[{WS4}:{WS4+3}], v{LP} offset:{128*((DIST+EARLY)//4)}
    s_sub_u32 s31, s31, 1
    s_cbranch_scc1 L_gosafe
    s_waitcnt lgkmcnt(0)
    v_readfirstlane_b32 s30, v3
    s_bitcmp1_b32 s30, 17
    s_cbranch_scc0 L_wn
    s_cmp_gt_u32 s30, {0 if OPT["force_safe"] else 0xffffff}
    s_cbranch_scc1 L_gosafe
    s_and_b32 s31, s30, 0xff
    s_bfe_u32 s30, s30, 0x80008
    s_lshl_b32 s32, s31, 1
    s_add_u32 s30, s30, s32
    s_lshl_b32 s32, s3, 1
    s_sub_i32 s30, s30, s32
    s_max_i32 s30, s30, 0
    s_cmp_ge_u32 s3, 8
    s_cbranch_scc1 L_nc
    s_min_u32 s30, s30, 2
    s_add_u32 s{S_R}, s30, 12
    s_cmp_ge_u32 s3, s31
    s_cselect_b32 s30, 0x2000, 0
    s_or_b32 s{S_M}, s30, 0x5041
    s_branch L_nd
L_nc:
    s_add_u32 s32, s30, 7
    s_lshr_b32 s32, s32, 3
    s_lshl_b32 s32, s32, 1
    s_and_b32 s30, s30, 7
    s_cmp_eq_u32 s30, 1
    s_subb_u32 s32, s32, 0
    s_add_u32 s{S_R}, s32, 6
    s_sub_i32 s31, s31, s3
    s_add_i32 s31, s31, 3
    s_max_i32 s31, s31, 0
    s_lshr_b32 s31, s31, 2
    s_lshl_b32 s31, s31, 1
    s_add_u32 s31, s31, 7
    s_lshl_b32 s31, -1, s31
    s_or_b32 s{S_M}, s31, 0x55555541
L_nd:
    s_mov_b32 s{S_IT}, {(1 << OPT["pa"]) | (1 << OPT["pb"]) | (1 << OPT["pc"]) if OPT["prio"] == 2 else 0}
""")
if OPT["prio"]: E(f"s_setprio {OPT['p1']}")
STAMP(10)
if OPT["ptime"]: E("v_mov_b32 v35, 0\nv_mov_b32 v68, 0")
if OPT["stamps"]: E(f"s_memtime s[{ST0+24}:{ST0+25}]\ns_waitcnt lgkmcnt(0)")
for u in range(4): phase(u, True)
for u in range(4): phase(u, False)
E(f"""
L_mdone:
    s_waitcnt lgkmcnt(0)
""")
STAMP(11)
if OPT["ptime"]:
    E(f"""
    s_lshl_b32 s30, s2, 4
    s_add_u32 s30, s30, s3
    s_lshl_b32 s30, s30, 8
    s_add_u32 s30, s30, 0xc00000
    v_lshl_add_u32 v2, v1, 2, s30
    s_mov_b32 exec_hi, 0
    global_store_dword v2, v35, s[20:21]
    global_store_dword v2, v68, s[20:21] offset:128
    s_mov_b64 exec, -1
    """)
if OPT["stamps"]:
    E(f"s_memtime s[28:29]\ns_waitcnt lgkmcnt(0)\ns_sub_u32 s{ST0+24}, s28, s{ST0+24}")
E(f"""
    v_lshrrev_b32 v2, 5, v0
    v_and_b32 v3, 31, v0
    v_mul_u32_u24 v4, {NSTR}, v2
    v_and_b32 v5, 1, v3
    v_lshl_add_u32 v4, v5, 8, v4
    v_lshrrev_b32 v5, 1, v3
    v_lshl_add_u32 v4, v5, 3, v4
    v_add_u32 v4, {L_NODE}, v4
    s_mul_i32 s30, s{S_BUCK}, {NB*256}
    s_lshl_b32 s31, s{S_HALF}, 7
    s_add_u32 s30, s30, s31
    v_lshlrev_b32 v3, 2, v3
    v_lshl_add_u32 v5, v2, 8, v3
    v_add_u32 v5, s30, v5
    v_add_u32 v6, {24*256}, v5
    v_add_u32 v7, {48*256}, v5
    v_add_u32 v8, {72*256}, v5
    s_mov_b32 s32, {f32(2.0**-32)}
    s_mov_b32 s34, {f32(-LOG2E * 2.0**-32)}
    v_mov_b32 v9, 0x207
    s_barrier                               ; B5
""")
OSC = {0: "", 1: " sc1", 2: " nt"}[OPT["osc"]]
def epi(us):
    for u in us: E(f"ds_read_b64 v[{12+4*u}:{13+4*u}], v4 offset:{24*NSTR*u}\nds_read_b64 v[{14+4*u}:{15+4*u}], v4 offset:{24*NSTR*u + 128}")
    E("s_waitcnt lgkmcnt(0)")
    for u in us: E(f"v_cvt_f32_f64 v{28+2*u}, v[{12+4*u}:{13+4*u}]\nv_cvt_f32_f64 v{29+2*u}, v[{14+4*u}:{15+4*u}]")
    for u in us: E(f"v_pk_mul_f32 v[{36+2*u}:{37+2*u}], v[{28+2*u}:{29+2*u}], s[34:35] op_sel_hi:[1,0]")
    for u in us: E(f"v_exp_f32 v{36+2*u}, v{36+2*u}\nv_exp_f32 v{37+2*u}, v{37+2*u}")
    for u in us: E(f"v_pk_mul_f32 v[{28+2*u}:{29+2*u}], v[{28+2*u}:{29+2*u}], s[32:33] op_sel_hi:[1,0]")
    for u in us: E(f"v_pk_add_f32 v[{36+2*u}:{37+2*u}], v[{36+2*u}:{37+2*u}], 1.0 op_sel_hi:[1,0]")
    for u in us: E(f"v_rcp_f32 v{36+2*u}, v{36+2*u}\nv_rcp_f32 v{37+2*u}, v{37+2*u}")
    E("v_pk_add_f32 v[10:11], v[28:29], v[30:31]")
    for u in us: E(f"v_pk_mul_f32 v[{36+2*u}:{37+2*u}], v[{28+2*u}:{29+2*u}], v[{36+2*u}:{37+2*u}]")
    for u in us: E(f"v_cvt_pk_bf16_f32 v{44+u}, v{36+2*u}, v{37+2*u}\nglobal_store_dword v{5+u}, v{44+u}, s[18:19]{OSC}")
    for u in us[2:]: E(f"v_pk_add_f32 v[10:11], v[10:11], v[{28+2*u}:{29+2*u}]")
E("s_cmp_ge_u32 s3, 4\ns_cbranch_scc1 L_e3")
epi([0, 1, 2, 3])
E("s_branch L_e4\nL_e3:")
epi([0, 1, 2])
E(f"""
L_e4:
    v_add_f32 v10, v10, v11
    v_cmp_class_f32 vcc, v10, v9
    v_mov_b32 v2, 0
    s_cmp_lg_u32 s{S_SAFE}, 0
    s_cbranch_scc1 L_fin
    {"s_branch" if OPT["nosafe"] else "s_cbranch_vccz"} L_e5
    ds_write_b32 v2, v9 offset:{L_FLAG}
    s_waitcnt lgkmcnt(0)
L_e5:
    s_barrier                               ; B6
    ds_read_b32 v2, v2 offset:{L_FLAG}
    s_waitcnt lgkmcnt(0)
    v_readfirstlane_b32 s30, v2
    s_cmp_lg_u32 s30, 0
    s_cbranch_scc1 L_gosafe
L_fin:
""")
if OPT["stamps"]:
    E("s_waitcnt vmcnt(0)"); STAMP(13); STAMP_OUT()
if OPT["probe"] >= 0:
    T_ = ST0 + 2*OPT["probe"]
    E(f"""
    s_cmp_lg_u32 s3, {OPT["pw"]}
    s_cbranch_scc1 L_end
    s_cmp_lg_u32 s2, {OPT["pg"] if OPT["pg"] >= 0 else "s2"}
    s_cbranch_scc1 L_end
    s_sub_u32 s30, s{T_}, s{ST0}
    s_lshl_b32 s30, s30, 2
    s_add_u32 s30, s30, 3000
    s_min_u32 s30, s30, 20000
L_spin:
    s_memrealtime s[28:29]
    s_waitcnt lgkmcnt(0)
    s_sub_u32 s28, s28, s{ST0}
    s_cmp_lt_u32 s28, s30
    s_cbranch_scc1 L_spin
    """)
E(f"""
L_end:
    s_endpgm
L_gosafe:
    s_mov_b32 s{S_SAFE}, 8
    s_setprio 0
    s_waitcnt vmcnt(0) lgkmcnt(0)
    s_barrier
    s_branch L_restart
""")
out += outofline
for r in retries: E(r)
E(f"""
L_safe:
    v_and_b32 v2, 15, v1
    v_lshlrev_b32 v3, 3, v2
    v_add_u32 v3, {L_C}, v3
""")
for k in range(4):
    for s in range(4):
        E(f"ds_read_u16 v{80+4*k+s}, v3 offset:{128*k + 2*s}")
E("s_waitcnt lgkmcnt(0)")
for i in range(16):
    E(f"v_lshlrev_b32 v{80+i}, 16, v{80+i}\nv_mul_f32 v{80+i}, s40, v{80+i}")
E(f"""
    v_lshrrev_b32 v24, 4, v1
    s_movk_i32 s33, {NSTR}
    v_add_u32 v25, {L_NODE}, v{LN8}
    s_mov_b32 s34, s3
    s_mov_b32 s35, {POLL_MAX}
L_scell:
    s_lshl_b32 s30, s34, 10
    s_lshl_b32 s31, s{S_BUCK}, 3
    s_add_u32 s30, s30, s31
    s_add_u32 s30, s30, {WS_ROW}
    v_mov_b32 v26, s30
    global_load_dword v27, v26, s[20:21] sc1
    s_mul_i32 s30, s34, {CHUNK}
    s_add_u32 s30, s30, {WS_REC//16}
    s_waitcnt vmcnt(0)
    v_bfe_u32 v28, v27, 12, 12              ; count
    v_and_b32 v27, 0xfff, v27
    v_add_u32 v27, s30, v27
    v_mov_b32 v29, v24
L_srec:
    v_cmp_gt_u32 vcc, v28, v29
    s_and_saveexec_b64 s[48:49], vcc
    s_cbranch_execz L_snext
    v_add_lshl_u32 v30, v27, v29, 4
L_sget:
    global_load_dwordx4 v[32:35], v30, s[20:21] sc1
    s_waitcnt vmcnt(0)
    v_cmp_ne_u32 vcc, s{S_TAG}, v35
    s_cbranch_vccz L_sgot
    s_sub_u32 s35, s35, 1
    s_cbranch_scc0 L_sget
    s_mov_b64 exec, -1
    s_branch L_mdone
L_sgot:
    v_and_b32 v30, 0x3fff00, v34
    v_add_u32 v30, v30, v{LN16}
    buffer_load_dwordx4 v[36:39], v30, s[36:39], 0 offen sc1
    v_lshrrev_b32 v31, 24, v34
    v_mad_u32_u24 v31, v31, s33, v25
    ds_read_b64 v[40:41], v31 offset:512
    v_lshlrev_b32 v44, 16, v32
    v_and_b32 v45, 0xffff0000, v32
    v_lshlrev_b32 v46, 16, v33
    v_and_b32 v47, 0xffff0000, v33
    s_waitcnt vmcnt(0) lgkmcnt(0)
    v_lshlrev_b32 v48, 16, v40
    v_and_b32 v49, 0xffff0000, v40
    v_lshlrev_b32 v50, 16, v41
    v_and_b32 v51, 0xffff0000, v41
""")
for s in range(4):
    E(f"v_lshlrev_b32 v52, 16, v{36+s}\nv_add_f32 v{48+s}, v{48+s}, v52")
    for k in range(4):
        E(f"v_fmac_f32 v{48+s}, v{44+k}, v{80+4*k+s}")
for s in range(4): E(f"v_exp_f32 v{48+s}, v{48+s}")
E("s_nop 0")
for s in range(4): E(f"v_add_f32 v{48+s}, 1.0, v{48+s}")
for s in range(4): E(f"v_rcp_f32 v{48+s}, v{48+s}")
E("s_nop 0")
for s in range(4): E(f"v_mul_f32 v{48+s}, v{48+s}, v{36+s}")
for s in range(4): E(f"v_cvt_f64_f32 v[{54+2*s}:{55+2*s}], v{48+s}")
for s in range(4): E(f"ds_add_f64 v31, v[{54+2*s}:{55+2*s}] offset:{128*s}")
E(f"""
    s_mov_b64 exec, s[48:49]
    v_add_u32 v29, 4, v29
    s_branch L_srec
L_snext:
    s_mov_b64 exec, s[48:49]
    s_add_u32 s34, s34, {NW}
    s_cmp_lt_u32 s34, {NCHUNK}
    s_cbranch_scc1 L_scell
    s_branch L_mdone
L_codeend:
.section .rodata,"a"
.p2align 6
.amdhsa_kernel {NAME}
.amdhsa_next_free_vgpr 168
.amdhsa_next_free_sgpr 102
.amdhsa_accum_offset 168
.amdhsa_group_segment_fixed_size 0
.amdhsa_kernarg_size 80
.amdhsa_user_sgpr_count 2
.amdhsa_user_sgpr_kernarg_segment_ptr 1
.amdhsa_system_sgpr_workgroup_id_x 1
.end_amdhsa_kernel
""")
if OPT["drop"]:
    i0 = out.index("L_L0:"); i1 = out.index("L_mdone:")
    pats = {1: ("smfmac",), 2: ("mfma",), 3: ("32x32x8",), 4: ("smfmac",), 5: ("v_exp",)}[OPT["drop"]]
    repl = {4: "    s_nop 2", 5: "    s_nop 1"}.get(OPT["drop"])
    mid = []
    for l in out[i0:i1]:
        if any(x in l for x in pats):
            if repl: mid.append(repl)
        else: mid.append(l)
    if OPT["drop"] == 3: mid = [l.replace("v[88:103] cbsz", "0 cbsz").replace("v[72:87] cbsz", "0 cbsz") for l in mid]
    out = out[:i0] + mid + out[i1:]
if OPT["nochain"]:
    i0 = out.index("L_L0:"); i1 = out.index("L_mdone:")
    out = out[:i0] + [l for l in out[i0:i1] if not any(x in l for x in ("v_exp", "v_pk_", "mfma", "v_rcp", "v_cvt"))] + out[i1:]
open(sys.argv[1], "w").write("\n".join(out) + "\n")
```

```python
import sys, struct

OPT = dict(stamps=0, force_safe=0, nogather=0, nosafe=0, prio=2, gsc1=1, osc=0, spin=0, codepf=1, srcmask=0x3fff00, nrec=0, warm=0, nochain=0, probe=-1, pw=-1, pg=-1, gpf=0, gate=1, aulate=0, early=0, cnt=0, rsc1=1, rdelay=0, p2sleep=0, touch=0, wsoff=0, rot=0, pollmax=200000, pa=7, pb=3, pc=1, p0=3, p1=3, ptime=0, dist=2, ldearly=1, drop=0)
for a in sys.argv[2:]:
    k, v = a.split("=")
    assert k in OPT, k
    OPT[k] = int(v, 0)

out = []
def E(s=""):
    for line in s.split("\n"):
        line = line.strip()
        if not line:
            continue
        if line.endswith(":") or line.startswith(".") or line.startswith(";"):
            out.append(line)
        else:
            out.append("    " + line)

def f32(x):
    return "0x%08x" % struct.unpack("<I", struct.pack("<f", x))[0]

NAME = "standalone__edge_featured_mpnn_egc__graph_kernel"
LOG2E = 1.4426950408889634
NB = 80; NBUCK = 125; CHUNK = 1280; NCHUNK = 250
NW = 12
G_HALF = 10000 * 256
WS0 = OPT["wsoff"] << 20
WS_REC = WS0 + 0x500000
WS_ROW = WS0 + 0xa00000
WS_FL2 = WS0 + 0xa80000
WS_TAG = WS0 + 0xac0000
SORTB = CHUNK * 16
WS_STAMP = 0x1000000
L_CNT = 0; L_SOFF = 512
L_SCNT = 1024
L_CTR = 1536; L_RD1 = 1540; L_DONE2 = 1544; L_FLAG = 1548; L_NST = 1552; L_GST = 1556
L_DUM = L_SOFF
L_LIST = 2048
L_LISTC = L_LIST + 4096
SSTR = 272
L_SRC = L_LIST + 8192
SRCB = 80 * SSTR + 32
L_EA = L_SRC + SRCB
L_EAEND = L_EA + 2 * SRCB
L_SORT = L_EA
L_WBV = (L_EAEND + 255) // 256 * 256; L_X = L_WBV + 32768; L_WAU = L_X + 20480; L_C = L_WAU + 32768
LDS = L_C + 1024
L_NODE = L_WBV; NSTR = 648
assert L_NODE + 80 * NSTR <= L_WAU and LDS <= 163840 and L_EA % 16 == 0
NULL_SRC = 0x7fffff00
POLL_MAX = OPT["pollmax"]
SC1 = " sc1"

S_HALF, S_BUCK, S_P = 22, 23, 24
S_TAG, S_TAG8, S_SAFE = 25, 26, 27
S_R, S_M, S_IT = 70, 71, 72
S_TAGRAW = 47
ST0 = 74

def ESTAMP(i):
    if OPT["early"] == 1 or (OPT["early"] and i == 0): E(f"s_memrealtime s[{ST0+2*i}:{ST0+2*i+1}]")
def FSTAMP(i):
    if OPT["early"] == 2: E(f"s_memrealtime s[{ST0+2*i}:{ST0+2*i+1}]\ns_waitcnt lgkmcnt(0)")
def STAMP(i):
    if OPT["stamps"] == 2:
        if i == 0: E(f"s_memrealtime s[{ST0}:{ST0+1}]")
        if i == 8: E(f"s_memrealtime s[{ST0+16}:{ST0+17}]")
        if i == 13: E(f"s_memrealtime s[{ST0+26}:{ST0+27}]\ns_waitcnt lgkmcnt(0)")
        return
    if OPT["early"] and 1 <= i <= 7: return
    if OPT["early"] and i == 0: return ESTAMP(0)
    if OPT["stamps"] or (OPT["probe"] >= 0 and i == OPT["probe"]):
        E(f"s_memrealtime s[{ST0+2*i}:{ST0+2*i+1}]\ns_waitcnt lgkmcnt(0)")
    elif OPT["probe"] >= 0 and i == 0:
        E(f"s_memrealtime s[{ST0}:{ST0+1}]")
NSTAMP = 14
def STAMP_OUT():
    if OPT["stamps"]:
        E(f"""
        s_lshl_b32 s30, s2, 4
        s_add_u32 s30, s30, s3
        s_lshl_b32 s30, s30, 6
        s_add_u32 s30, s30, {WS_STAMP - 0x100000}
        s_load_dwordx2 s[20:21], s[0:1], 72
        s_waitcnt lgkmcnt(0)
        s_mov_b64 exec, -1
        v_mov_b32 v3, s30""")
        for i in (range(NSTAMP) if OPT["stamps"] == 1 else (0, 8, 13)):
            E(f"v_mov_b32 v2, s{ST0+2*i}\nglobal_store_dword v3, v2, s[20:21] offset:{4*i}")
        E("s_waitcnt vmcnt(0)")

A1, A2, IDX, EAC, LN16, ASEL, CW, LN8 = 4, 8, 12, 13, 14, 16, 18, 20
LP, WS4, WN2, EA, XA, WE, OFS, AG, T, N, P, F = 22, 24, 28, 30, 32, 34, 36, 40, 44, 52, 56, 60
D0, D1, G = 72, 88, 104

def finish_tag():
    E(f"""
    s_mul_i32 s{S_TAG8}, s{S_TAGRAW}, 0x85ebca6b
    s_mul_i32 s{S_TAG}, s{S_TAGRAW}, 0x9e3779b1
    s_lshr_b32 s{S_TAG8}, s{S_TAG8}, 24
    s_add_u32 s{S_TAG}, s{S_TAG}, 0x7f4a7c15
    """)
    if OPT["rot"] == 1:
        E(f"""
        s_and_b32 s30, s{S_TAG8}, 15
        s_lshl_b32 s30, s30, 24
        s_add_u32 s20, s20, s30
        s_addc_u32 s21, s21, 0
        """)
def get_tag(lab, q):
    E(f"""
    s_cmp_lg_u32 s{S_SAFE}, 0
    s_cbranch_scc1 L_tag_{lab}
    v_mov_b32 v2, 0
    s_mov_b32 s31, {POLL_MAX}
L_tg_{lab}:
    ds_read_b128 v[{q}:{q+3}], v2 offset:{L_SCNT + 124*4}
    s_sub_u32 s31, s31, 1
    s_cbranch_scc1 L_tag_{lab}
    s_waitcnt lgkmcnt(0)
    v_readfirstlane_b32 s30, v{q+3}
    v_readfirstlane_b32 s{S_TAGRAW}, v{q+1}
    s_cmp_lg_u32 s30, 4
    s_cbranch_scc1 L_tg_{lab}
    """)
    finish_tag()
    E(f"L_tag_{lab}:")

def lds_wait(addr, mask, val, tag, sleep=0):
    E(f"""
    v_mov_b32 v2, 0
    s_mov_b32 s31, {POLL_MAX}
L_w_{tag}:
    {f"s_sleep {sleep}" if sleep else ""}
    ds_read_b32 v3, v2 offset:{addr}
    s_sub_u32 s31, s31, 1
    s_cbranch_scc1 L_wd_{tag}
    s_waitcnt lgkmcnt(0)
    v_readfirstlane_b32 s30, v3
    s_and_b32 s30, s30, {mask}
    s_cmp_lg_u32 s30, {val}
    s_cbranch_scc1 L_w_{tag}
L_wd_{tag}:
    """)
SCAN = ("row_shr:1 row_mask:0xf bank_mask:0xf bound_ctrl:0", "row_shr:2 row_mask:0xf bank_mask:0xf bound_ctrl:0",
        "row_shr:4 row_mask:0xf bank_mask:0xf bound_ctrl:0", "row_shr:8 row_mask:0xf bank_mask:0xf bound_ctrl:0",
        "row_bcast:15 row_mask:0xa bank_mask:0xf", "row_bcast:31 row_mask:0xc bank_mask:0xf")
def scan(r):
    for m in SCAN:
        E(f"s_nop 1\nv_add_u32_dpp v{r}, v{r}, v{r} {m}")

def main_consts(sm=48):
    E(f"""
    v_and_b32 v2, 15, v1                    ; n'
    v_lshrrev_b32 v3, 4, v1
    v_lshl_add_u32 v3, v2, 2, v3
    v_lshlrev_b32 v3, 1, v3
    v_add_u32 v3, {L_C}, v3
    ds_read_u16 v64, v3                     ; C[0..3][feature 4n'+s]
    ds_read_u16 v65, v3 offset:128
    ds_read_u16 v66, v3 offset:256
    ds_read_u16 v67, v3 offset:384
    v_and_b32 v63, 3, v1                    ; q
    v_lshlrev_b32 v{LN8}, 3, v2
    v_lshlrev_b32 v{LN8+1}, 3, v2
    v_lshlrev_b32 v{LN16}, 4, v2
    v_lshlrev_b32 v{LN16+1}, 4, v2
    v_mov_b32 v{IDX}, 0x8888
    v_bfe_u32 v60, v1, 3, 2                 ; s = (l&31)>>3
    v_bfe_u32 v61, v1, 2, 1                 ; h = (l>>2)&1
    v_lshrrev_b32 v62, 5, v1                ; ha
    v_and_b32 v2, 1, v60
    v_lshlrev_b32 v2, 4, v2
    v_lshlrev_b32 v2, v2, s46
    v_lshrrev_b32 v60, 1, v60               ; s>>1
    v_lshl_add_u32 v3, v61, 1, v60
    v_sub_u32 v63, v63, v62                 ; q - ha : 0 -> A1, 2 -> A2
    v_lshl_add_u32 v3, v63, 1, v3
    v_and_b32 v63, 1, v63
    v_lshl_or_b32 v3, v63, 4, v3
    v_xor_b32 v61, v61, v62
    v_lshl_or_b32 v60, v61, 4, v60
    """)
    mk = [f"s[{sm}:{sm+1}]", f"s[{sm+2}:{sm+3}]", f"s[{sm+4}:{sm+5}]", "vcc"]
    for i in range(8):
        E(f"v_cmp_eq_u32 {mk[i%4]}, {i}, v3")
        if i % 4 == 3:
            for j in range(i-3, i+1):
                E(f"v_cndmask_b32 v{A1+j}, 0, v2, {mk[j%4]}")
    E(f"""
    v_cmp_eq_u32 {mk[0]}, 0, v60
    v_cmp_eq_u32 {mk[1]}, 1, v60
    v_and_b32 v63, 3, v1
    v_lshlrev_b32 v61, 3, v63
    v_cndmask_b32 v{ASEL}, 0, v2, {mk[0]}
    v_cndmask_b32 v{ASEL+1}, 0, v2, {mk[1]}
    v_add_u32 v{EAC}, {L_EA - 2*L_SRC}, v61
    s_lshl_b32 s30, s3, 9
    s_sub_u32 s31, s30, 4096
    s_max_i32 s31, s31, 0
    s_add_u32 s30, s30, s31
    s_add_u32 s30, s30, {L_LIST}
    v_lshrrev_b32 v2, 4, v1
    v_lshl_add_u32 v{LP}, v2, 4, s30
    v_bfe_u32 v3, v1, 2, 2
    v_lshl_add_u32 v{LP+1}, v3, 4, s30
    v_lshl_add_u32 v{LP+1}, v2, 2, v{LP+1}
    s_waitcnt lgkmcnt(0)
    v_lshlrev_b32 v60, 16, v64
    v_lshlrev_b32 v61, 16, v65
    v_lshlrev_b32 v62, 16, v66
    v_lshlrev_b32 v63, 16, v67
    v_mul_f32 v60, s40, v60
    v_mul_f32 v61, s40, v61
    v_mul_f32 v62, s40, v62
    v_mul_f32 v63, s40, v63
    v_cvt_pk_bf16_f32 v{CW}, v60, v61
    v_cvt_pk_bf16_f32 v{CW+1}, v62, v63
    """)

def gload(g, o):
    return f"buffer_load_dwordx4 v[{g}:{g+3}], v{o}, s[36:39], 0 offen" + (SC1 if OPT["gsc1"] else "")
def oadd(o):
    return f"v_lshl_add_u64 v[{o}:{o+1}], v[{o}:{o+1}], 0, v[{LN16}:{LN16+1}]"

def pk_steps(Gc, q, first):
    t = T + 4*(q & 1); h = Gc + 4*q
    if first and q == 0:
        return [f"v_pk_add_f32 v[{P+2*p}:{P+2*p+1}], v[{t+2*p}:{t+2*p+1}], 1.0 op_sel_hi:[1,0]" for p in range(2)]
    r = []
    for p in range(2):
        n = f"v[{Gc+2*p}:{Gc+2*p+1}]" if (first and q == 1) else f"v[{N+2*p}:{N+2*p+1}]"
        r.append(f"v_pk_fma_f32 v[{N+2*p}:{N+2*p+1}], {n}, v[{t+2*p}:{t+2*p+1}], {n}")
    for p in range(2):
        r.append(f"v_pk_fma_f32 v[{N+2*p}:{N+2*p+1}], v[{h+2*p}:{h+2*p+1}], v[{P+2*p}:{P+2*p+1}], v[{N+2*p}:{N+2*p+1}]")
    for p in range(2):
        r.append(f"v_pk_fma_f32 v[{P+2*p}:{P+2*p+1}], v[{P+2*p}:{P+2*p+1}], v[{t+2*p}:{t+2*p+1}], v[{P+2*p}:{P+2*p+1}]")
    return r
def exps(Dc, q):
    t = T + 4*(q & 1)
    return [f"v_exp_f32 v{t+s}, v{Dc+4*s+q}" for s in range(4)]
def weave(main, extra):
    for i, x in enumerate(main):
        E(x)
        for y in extra.get(i, []):
            E(y)
def m_a(Dn): return f"v_mfma_f32_32x32x8_bf16 v[{Dn}:{Dn+15}], v[{ASEL}:{ASEL+1}], v[{XA}:{XA+1}], 0"
def m_e(Dn, abid): return f"v_mfma_f32_16x16x4_4b_bf16 v[{Dn}:{Dn+15}], v[{EA}:{EA+1}], v[{CW}:{CW+1}], v[{Dn}:{Dn+15}] cbsz:2 abid:{abid}"
def m_s(Dn, A, g): return f"v_smfmac_f32_32x32x32_bf16 v[{Dn}:{Dn+15}], v[{A}:{A+3}], v[{g}:{g+7}], v{IDX}"

outofline = []
def emit_to(lst, fn):
    global out
    keep = out; out = []
    fn(); lst += out; out = keep
DIST = OPT["dist"]; EARLY = OPT["ldearly"]
assert not (EARLY and DIST == 4)
def phase(u, loads):
    tag = f"{'L' if loads else 'T'}{u}"
    Dc, Dn = ((D0, D1), (D1, D0))[u & 1]
    gc = G + 16*u; gn = G + 16*((u+1) & 3); gl = G + 16*((u+DIST) & 3)
    ld = loads and not OPT["nogather"]
    kw = (u + DIST + EARLY) & 3
    wsgrp = 128 * ((3 - kw + u + DIST + EARLY) // 4 + 1) if kw == 3 else None
    def addloads(ex, pos):
        if loads:
            ex.setdefault(0, []).append(oadd(OFS)); ex.setdefault(2, []).append(oadd(OFS+2))
        if ld:
            for q in range(4): ex.setdefault(pos[q], []).append(gload(gl+4*q, OFS+q))
    E(f"L_{tag}:")
    if OPT["ptime"]: E(f"s_memrealtime s[28:29]\ns_mov_b32 m0, s{S_R}")
    E(f"s_waitcnt vmcnt({4*(DIST-2)})")
    if OPT["ptime"]: E(f"s_memrealtime s[30:31]")
    E(m_a(Dn))
    for x in exps(Dc, 0): E(x)
    E(m_s(Dn, A1, gn))
    for x in exps(Dc, 1): E(x)
    ex = {0: ["s_waitcnt lgkmcnt(0)"], 2: [f"ds_read_b64 v[{XA}:{XA+1}], v{AG + ((u+2) & 3)} offset:512"]}
    if OPT["ptime"]: ex[0] += ["v_writelane_b32 v35, s28, m0", "v_writelane_b32 v68, s30, m0"]
    if u % 2 == 0:
        p = AG + ((u+2) & 3)
        ex[0].append(f"v_lshl_add_u64 v[{p}:{p+1}], v[{WN2}:{WN2+1}], 0, v[{LN8}:{LN8+1}]")
    if EARLY: addloads(ex, (1, 3, 5, 6))
    elif loads: ex[1] = [f"ds_read_b128 v[{OFS}:{OFS+3}], v{WS4+kw}"]
    if u == 2:
        ex.setdefault(4, []).append(f"v_lshl_add_u32 v{WE}, v{WE}, 1, v{EAC}")
    E(f"s_bitcmp1_b32 s{S_M}, 0\ns_cbranch_scc1 L_{tag}f")
    weave(pk_steps(gc, 0, False) + pk_steps(gc, 1, False), ex)
    E(f"L_{tag}r:")
    def first():
        E(f"L_{tag}f:")
        weave(pk_steps(gc, 0, True) + pk_steps(gc, 1, True), ex)
        E(f"s_branch L_{tag}r")
    emit_to(outofline, first)
    E(m_e(Dn, (u+1) & 3))
    for x in exps(Dc, 2): E(x)
    E(m_s(Dn, A2, gn+8))
    for x in exps(Dc, 3): E(x)
    ex = {0: ["s_waitcnt lgkmcnt(0)"], 4: [], 6: [], 7: [f"s_sub_u32 s{S_R}, s{S_R}, 1"], 10: [f"s_lshr_b32 s{S_M}, s{S_M}, 1"], 11: [f"s_bitcmp1_b32 s{S_M}, 0"]}
    if not EARLY: addloads(ex, (1, 3, 5, 9) if DIST == 4 else (1, 3, 5, 7))
    elif loads: ex[1] = [f"ds_read_b128 v[{OFS}:{OFS+3}], v{WS4+kw}"]
    if u == 1:
        ex[4].append(f"ds_read_b64 v[{WN2}:{WN2+1}], v{LP} offset:{128+64}")
        ex[6].append(f"ds_read_b32 v{WE}, v{LP+1} offset:128")
    if u == 2:
        ex[4].append(f"ds_read_b64 v[{EA}:{EA+1}], v{WE}")
    if u == 3:
        ex[4].append(f"ds_read_b64 v[{WN2}:{WN2+1}], v{LP} offset:{128+64+8}")
        ex[8] = [f"v_lshl_add_u64 v[{LP}:{LP+1}], v[{LP}:{LP+1}], 0, s[44:45]"]
    if wsgrp and loads: ex[6].append(f"ds_read_b128 v[{WS4}:{WS4+3}], v{LP} offset:{wsgrp}")
    weave(pk_steps(gc, 2, False) + pk_steps(gc, 3, False), ex)
    E(f"s_cbranch_scc1 L_{tag}z\nL_{tag}y:")
    def fin():
        E(f"""
L_{tag}z:
        v_rcp_f32 v{P}, v{P}
        v_rcp_f32 v{P+1}, v{P+1}
        v_rcp_f32 v{P+2}, v{P+2}
        v_rcp_f32 v{P+3}, v{P+3}
        v_pk_mul_f32 v[{N}:{N+1}], v[{N}:{N+1}], v[{P}:{P+1}]
        v_pk_mul_f32 v[{N+2}:{N+3}], v[{N+2}:{N+3}], v[{P+2}:{P+3}]
        """)
        for s_ in range(4):
            E(f"v_cvt_f64_f32 v[{F+2*s_}:{F+2*s_+1}], v{N+s_}")
            if s_: E(f"ds_add_f64 v{AG+u}, v[{F+2*s_-2}:{F+2*s_-1}] offset:{128*(s_-1)}")
        E(f"ds_add_f64 v{AG+u}, v[{F+6}:{F+7}] offset:384")
        E(f"s_branch L_{tag}y")
    emit_to(outofline, fin)
    if OPT["prio"] == 2:
        E(f"s_bitcmp1_b32 s{S_IT}, s{S_R}\ns_cbranch_scc1 L_{tag}q\nL_{tag}p:")
        def pr():
            E(f"""
L_{tag}q:
            s_setprio 0
            s_cmp_le_u32 s{S_R}, {OPT["pc"]}
            s_cbranch_scc1 L_{tag}p
            s_setprio 1
            s_cmp_le_u32 s{S_R}, {OPT["pb"]}
            s_cbranch_scc1 L_{tag}p
            s_setprio 2
            s_branch L_{tag}p
            """)
        emit_to(outofline, pr)
    if u == 3 and OPT["prio"] == 1:
        E(f"""
        s_add_u32 s{S_IT}, s{S_IT}, 1
        s_setprio 0
        s_cmp_gt_u32 s{S_IT}, 2
        s_cbranch_scc1 L_{tag}p
        s_setprio 1
        s_cmp_eq_u32 s{S_IT}, 2
        s_cbranch_scc1 L_{tag}p
        s_setprio 2
L_{tag}p:
        """)
    if loads:
        E(f"s_cmp_le_u32 s{S_R}, {DIST}")
        if u < 3: E(f"s_cbranch_scc1 L_T{u+1}")
        else: E("s_cbranch_scc0 L_L0")
    else:
        E(f"s_waitcnt vmcnt(0)\ns_cmp_eq_u32 s{S_R}, 0")
        if u < 3: E("s_cbranch_scc1 L_mdone")
        else: E("s_cbranch_scc0 L_T0")

E(f"""
; @launch grid=(256,1,1) block=({64*NW},1,1) lds={LDS}
.amdgcn_target "amdgcn-amd-amdhsa--gfx950"
.text
.globl {NAME}
.p2align 8
.type {NAME},@function
{NAME}:
""")
if OPT["stamps"] == 1 and OPT["early"] != 1:
    for i in range(NSTAMP): E(f"s_mov_b64 s[{ST0+2*i}:{ST0+2*i+1}], 0")
STAMP(0)
E(f"""
    s_load_dwordx16 s[4:19], s[0:1], 0
    s_load_dwordx2 s[20:21], s[0:1], 72
    {"s_load_dwordx2 s[64:65], s[0:1], 64" if OPT["rot"] else ""}
    {"s_memrealtime s[62:63]" if OPT["rot"] else ""}
""")
if OPT["codepf"]:
    E(f"""
    s_getpc_b64 s[28:29]
L_pc:
    v_lshlrev_b32 v3, 7, v0
    v_cmp_gt_u32 vcc, L_codeend-L_pc-64, v3
    s_cbranch_vccz L_nopf
    s_mov_b64 exec, vcc
    global_load_dword v164, v3, s[28:29]
    s_mov_b64 exec, -1
L_nopf:
    """)
E(f"""
    v_lshrrev_b32 v2, 6, v0
    v_and_b32 v1, 63, v0
    v_readfirstlane_b32 s3, v2
    s_and_b32 s{S_HALF}, s2, 1
    s_bfe_u32 s30, s2, 0x20001
    s_lshl_b32 s30, s30, 5
    s_lshr_b32 s31, s2, 3
    s_add_u32 s{S_BUCK}, s30, s31
    s_cmp_ge_u32 s2, 256
    s_cbranch_scc1 L_end
    s_cmp_ge_u32 s{S_BUCK}, {NBUCK}
    s_cbranch_scc1 L_end
    s_lshl_b32 s{S_P}, s{S_BUCK}, 1
    s_add_u32 s{S_P}, s{S_P}, s{S_HALF}
    s_mov_b32 s{S_SAFE}, 0
L_restart:
    s_cmp_ge_u32 s3, 4
    s_cbranch_scc1 L_nosort
    v_mov_b32 v48, 0
    v_mov_b32 v49, 0
    v_mov_b32 v50, 0
    v_mov_b32 v51, 0
    v_lshlrev_b32 v10, 4, v1
    ds_write_b128 v10, v[48:51] offset:{L_SCNT}
    s_mul_i32 s30, s{S_P}, {CHUNK*4}
    v_lshl_add_u32 v3, v0, 4, s30
    s_add_u32 s30, s30, 4096
    v_lshl_add_u32 v9, v0, 2, s30
    v_lshlrev_b32 v10, 1, v3
    v_lshlrev_b32 v11, 1, v9
    v_mov_b32 v17, {WS_TAG}
    s_waitcnt lgkmcnt(0)
    global_load_dwordx4 v[4:7], v3, s[10:11]
    global_load_dword v8, v9, s[10:11]
""")
if OPT["rot"]:
    E(f"""
    s_or_b32 s30, s{S_P}, s3
    s_or_b32 s30, s30, s{S_SAFE}
    s_cbranch_scc1 L_nonce
    s_or_b32 s30, s62, 1
    v_mov_b32 v43, s30
    s_mov_b64 exec, 1
    global_store_dword v48, v43, s[64:65] sc1
    s_mov_b64 exec, -1
    s_branch L_nonce2
L_nonce:
    global_load_dword v43, v48, s[64:65] sc1
L_nonce2:
    """)
else:
    E("global_load_dword v43, v17, s[20:21]")
E(f"""
    s_barrier                               ; B0
    global_load_dwordx4 v[12:15], v3, s[8:9]
    global_load_dword v16, v9, s[8:9]
    global_load_dwordx4 v[52:55], v10, s[6:7]
    global_load_dwordx4 v[60:63], v10, s[6:7] offset:16
    global_load_dwordx2 v[68:69], v11, s[6:7]
    s_barrier                               ; B0b
    s_branch L_sort
L_nosort:
    s_and_b32 s32, s3, 3                    ; tau
    s_lshr_b32 s33, s3, 3                   ; rg
    v_lshrrev_b32 v2, 4, v1                 ; g
    v_and_b32 v4, 15, v1
    s_lshl_b32 s30, s32, 2
    v_add_u32 v6, s30, v2                   ; row&15
    v_xor_b32 v7, v4, v6
    v_lshlrev_b32 v7, 4, v7
    v_lshl_add_u32 v7, v6, 8, v7
    s_mul_i32 s30, s{S_BUCK}, {NB*256}
    s_mul_i32 s31, s33, {3*4096}
    s_add_u32 s73, s30, s31
    v_add_u32 v7, s73, v7
    v_add_u32 v8, 0x1000, v7
    v_add_u32 v9, 0x2000, v7
    s_lshl_b32 s30, s32, 10
    s_add_u32 s31, s31, s30
    s_add_u32 m0, s31, {L_X}
    s_waitcnt lgkmcnt(0)
""")
if OPT["touch"]:
    st = {1: 0x30000, 2: 0x200000}[OPT["touch"]]; n = {1: 60, 2: 6}[OPT["touch"]]
    so = {1: 0x10000, 2: 0x200000}[OPT["touch"]]; no = {1: 39, 2: 2}[OPT["touch"]]
    E(f"""
    s_cmp_lg_u32 s3, 4
    s_cbranch_scc1 L_not1
    v_mul_u32_u24 v3, {st}, v1
    s_bfm_b64 exec, {n}, 0
    global_load_dword v166, v3, s[20:21] sc1
    s_mov_b64 exec, -1
L_not1:
    s_cmp_lg_u32 s3, 5
    s_cbranch_scc1 L_not2
    v_mul_u32_u24 v3, {so}, v1
    s_bfm_b64 exec, {no}, 0
    global_load_dword v166, v3, s[18:19] sc1
    s_mov_b64 exec, 1
    global_load_dword v167, v3, s[12:13]
    global_load_dword v165, v3, s[14:15]
    global_load_dword v164, v3, s[16:17]
    s_mov_b64 exec, -1
L_not2:
    """)
E(f"""
    s_barrier                               ; B0
    global_load_lds_dwordx4 v7, s[4:5]
    s_add_u32 m0, m0, 0x1000
    s_cmp_lg_u32 s33, 0
    global_load_lds_dwordx4 v8, s[4:5]
    s_cbranch_scc1 L_x2
    s_add_u32 m0, m0, 0x1000
    s_nop 0
    global_load_lds_dwordx4 v9, s[4:5]
L_x2:
    s_barrier                               ; B0b
    v_subrev_u32 v30, 256, v0               ; t = 0..511
    v_lshlrev_b32 v31, 4, v30
    v_mov_b32 v32, {NULL_SRC}
    v_mov_b32 v33, {NULL_SRC}
    v_mov_b32 v34, {NULL_SRC}
    v_mov_b32 v35, {NULL_SRC}
    v_mov_b32 v36, 0
    v_mov_b32 v37, 0
    v_mov_b32 v38, 0
    v_mov_b32 v39, 0
    v_add_u32 v40, {L_SORT + SORTB}, v31
""")
def cover(n): return list(range(0, n - 8192, 8192)) + [n - 8192]
for o in cover(SRCB): E(f"ds_write_b128 v31, v[32:35] offset:{L_SRC + o}")
for o in cover(L_EAEND - (L_SORT + SORTB)): E(f"ds_write_b128 v40, v[36:39] offset:{o}")
E(f"""
    v_lshrrev_b32 v5, 3, v1
    v_and_b32 v3, 1, v2
    s_and_b32 s30, s3, 1
    s_lshl_b32 s30, s30, 1
    v_or_b32 v3, s30, v3                    ; sigma
    v_lshlrev_b32 v3, 1, v3
    v_and_b32 v20, 7, v1
    v_xor_b32 v3, v3, v20
    v_lshlrev_b32 v3, 4, v3
    v_lshl_add_u32 v10, v5, 8, v3
    s_sub_u32 s28, s3, 4
    s_lshl_b32 s30, s28, 11
    s_lshl_b32 s31, s{S_HALF}, 7
    s_add_u32 s30, s30, s31
    v_add_u32 v10, s30, v10
    v_add_u32 v11, 0x4000, v10
    s_add_u32 s34, s16, {128*256}
    s_addc_u32 s35, s17, 0
    s_cmp_lg_u32 s3, 11
    s_cbranch_scc1 L_noc
    v_and_b32 v5, 3, v5
    v_lshlrev_b32 v20, 4, v20
    v_lshl_add_u32 v5, v5, 8, v20
    s_add_u32 s31, s31, {256*256}
    s_mov_b32 m0, {L_C}
    v_add_u32 v5, s31, v5
    global_load_lds_dwordx4 v5, s[16:17]
L_noc:
    s_lshl_b32 s28, s28, 10
    s_add_u32 m0, s28, {L_WBV}
""")
for ti, base in enumerate((34, 14)):
    for n in range(2):
        E(f"s_nop 0\nglobal_load_lds_dwordx4 v{10+n}, s[{base}:{base+1}]")
        if not (ti == 1 and n == 1):
            E(f"s_add_u32 m0, m0, 0x2000")
    if ti == 1:
        E(f"""
        v_and_b32 v32, 3, v30                   ; quarter
        v_bfe_u32 v33, v30, 3, 3
        v_lshrrev_b32 v34, 5, v30
        s_and_b32 s30, s3, 3
        s_add_u32 s30, s30, 16
        s_cmp_ge_u32 s3, 8
        s_cselect_b32 s31, 7, 3
        s_cselect_b32 s29, 6, 12
        s_cselect_b64 vcc, -1, 0
        v_and_b32 v33, s31, v33
        v_mov_b32 v35, s30
        v_cndmask_b32 v34, v34, v35, vcc
        v_lshl_add_u32 v32, v34, 2, v32
        v_bfe_u32 v34, v30, 2, 1
        v_mul_u32_u24 v35, {NSTR - SSTR}, v34
        v_mul_u32_u24 v41, {L_NODE - L_SRC}, v34
        v_mul_u32_u24 v42, {L_SRC + 80*SSTR - L_DUM}, v34
        v_lshlrev_b32 v43, 4, v34
        v_add_u32 v35, {SSTR}, v35
        v_add_u32 v41, {L_SRC}, v41
        v_sub_u32 v42, {L_SRC + 80*SSTR}, v42
        v_sub_u32 v43, 16, v43
        v_lshlrev_b32 v33, 2, v33
        v_mad_u32_u24 v41, v32, v35, v41
        v_mad_u32_u24 v41, v33, v43, v41
        v_lshlrev_b32 v35, 5, v35
        v_mul_u32_u24 v34, 6, v43
        v_sub_u32 v35, v35, v34
        v_add_u32 v34, 2, v33
        v_cmp_gt_u32 s[48:49], 6, v33
        v_cmp_gt_u32 s[50:51], 6, v34
        v_cmp_gt_u32 s[52:53], s29, v33
        v_cmp_gt_u32 s[54:55], s29, v34
        v_cndmask_b32 v44, v35, 0, s[48:49]
        v_cndmask_b32 v46, v35, 0, s[50:51]
        v_add_u32 v44, v41, v44
        v_lshl_add_u32 v46, v43, 1, v46
        v_add_u32 v46, v41, v46
        v_add_u32 v45, v44, v43
        v_add_u32 v47, v46, v43
        v_cndmask_b32 v44, v42, v44, s[52:53]
        v_cndmask_b32 v45, v42, v45, s[52:53]
        v_cndmask_b32 v46, v42, v46, s[54:55]
        v_cndmask_b32 v47, v42, v47, s[54:55]
        ds_write_b128 v31, v[44:47] offset:{L_LIST}
        s_cmp_ge_u32 s3, 6
        s_cbranch_scc1 L_pf3
        v_mul_u32_u24 v42, {SSTR}, v30
        v_add_u32 v42, {L_SRC}, v42
        v_lshlrev_b32 v41, 2, v30
        ds_write_b32 v41, v42 offset:{L_CNT}
L_pf3:
        s_mov_b64 exec, -1
        """)
STAMP(1)
E(f"""
    v_bfe_u32 v3, v1, 2, 2                  ; r
    v_lshl_add_u32 v5, v2, 3, v3            ; 8g + r
    v_lshrrev_b32 v3, 1, v3
    v_and_b32 v6, 1, v2
    v_lshl_or_b32 v3, v6, 1, v3             ; sigma
    v_xor_b32 v3, s32, v3
    v_lshlrev_b32 v3, 5, v3
    v_lshl_add_u32 v10, v5, 7, v3
    v_and_b32 v3, 3, v1
    v_lshl_add_u32 v10, v3, 3, v10
    v_add_u32 v10, {L_WBV}, v10
    v_xor_b32 v3, v2, v4
    v_lshlrev_b32 v3, 4, v3
    v_lshl_add_u32 v12, v4, 8, v3
    s_mul_i32 s31, s33, {3*4096}
    s_add_u32 s31, s31, {L_X}
    v_add_u32 v12, s31, v12
    v_xor_b32 v13, 64, v12
    v_xor_b32 v14, 0x80, v12
    v_xor_b32 v15, 0xc0, v12
    s_mul_i32 s30, s{S_HALF}, {G_HALF}
    {f"s_add_u32 s30, s30, {WS0}" if WS0 else ""}
    s_add_u32 s30, s30, s73
    s_lshl_b32 s31, s32, 6
    s_add_u32 s30, s30, s31
    v_lshlrev_b32 v11, 10, v2
    v_lshl_add_u32 v11, v4, 2, v11
    v_add_u32 v11, s30, v11
    s_lshl_b32 s31, s32, 5
    s_add_u32 s31, s31, {L_NODE}
    v_mul_u32_u24 v16, {NSTR}, v4
    v_lshl_add_u32 v16, v2, 3, v16
    v_add_u32 v16, s31, v16
    s_mov_b32 s40, {f32(LOG2E)}
    s_mov_b32 s42, {f32(2.0**32)}
    s_mov_b32 s44, 0x07060100
    s_mov_b32 s45, 0x07060302
    v_mov_b32 v8, {f32(2.0**-100)}
    v_mov_b32 v7, 1
    v_mov_b32 v6, 0
    s_waitcnt vmcnt(0)
    s_mov_b64 exec, 1
    ds_add_u32 v6, v7 offset:{L_CTR}
    s_mov_b64 exec, -1
""")
STAMP(2)
get_tag("g", 160)
lds_wait(L_CTR, 0xff, 8, "g1")
STAMP(3)
NP = 8
def rec_setup():
    E(f"""
    v_and_b32 v148, 15, v1                   ; j
    v_lshrrev_b32 v2, 4, v1
    v_lshl_add_u32 v149, v2, 3, v148
    s_lshl_b32 s30, s29, 5
    v_add_u32 v149, s30, v149
    s_lshl_b32 s30, s{S_BUCK}, 3
    s_add_u32 s30, s30, {WS_ROW}
    v_lshl_add_u32 v150, v149, 10, s30
    v_cmp_gt_u32 s[66:67], {NP}, v148
    v_cmp_gt_u32 vcc, {NCHUNK}, v149
    v_mov_b32 v154, 0
    v_mov_b32 v155, 0
    s_and_b64 s[66:67], s[66:67], vcc
    s_mov_b64 exec, s[66:67]
    global_load_dwordx2 v[154:155], v150, s[20:21] sc1
    s_mov_b64 exec, -1
    v_mul_u32_u24 v149, {CHUNK}, v149
    v_add_u32 v149, {WS_REC//16}, v149
    v_lshlrev_b32 v152, 4, v148               ; 16j
    v_not_b32 v151, v148
    v_subrev_u32 v153, 16, v151
    v_mov_b32 v156, 4
    """)
WF = 20; XF = 52; AC = 132
def wreads(ks):
    for t in range(2):
        for rd in range(2):
            r = WF + 16*t + 4*ks + 2*rd
            E(f"ds_read_b64_tr_b16 v[{r}:{r+1}], v10 offset:{t*16384 + ks*4096 + rd*512}")
def xread(rt, ks):
    r = XF + 16*rt + 4*ks
    return f"ds_read_b128 v[{r}:{r+3}], v{12+ks} offset:{rt*4096}"
def mf(rt, ks, transposed, acc):
    for t in range(2):
        a = XF + 16*rt + 4*ks; w = WF + 16*t + 4*ks; d = acc + 4*t
        c = "0" if ks == 0 else f"v[{d}:{d+3}]"
        if transposed: a, w = w, a
        E(f"v_mfma_f32_16x16x32_bf16 v[{d}:{d+3}], v[{a}:{a+3}], v[{w}:{w+3}], {c}")
def pack(rt, last):
    b = AC + 8*rt; h = b + 4
    for r in range(4): E(f"v_mul_f32 v{b+r}, s40, v{b+r}")
    for r in range(4): E(f"v_fma_f32 v{h+r}, v{h+r}, s42, v8")
    E(f"""
    v_cvt_pk_bf16_f32 v2, v{b}, v{b+1}
    v_cvt_pk_bf16_f32 v3, v{b+2}, v{b+3}
    v_xor_b32 v4, 0x80008000, v2
    v_xor_b32 v5, 0x80008000, v3
    v_sub_u32_sdwa v{h}, v{h}, sext(v2) dst_sel:DWORD dst_unused:UNUSED_PAD src0_sel:DWORD src1_sel:WORD_0
    v_sub_u32_sdwa v{h+1}, v{h+1}, sext(v2) dst_sel:DWORD dst_unused:UNUSED_PAD src0_sel:DWORD src1_sel:WORD_1
    v_sub_u32_sdwa v{h+2}, v{h+2}, sext(v3) dst_sel:DWORD dst_unused:UNUSED_PAD src0_sel:DWORD src1_sel:WORD_0
    v_sub_u32_sdwa v{h+3}, v{h+3}, sext(v3) dst_sel:DWORD dst_unused:UNUSED_PAD src0_sel:DWORD src1_sel:WORD_1
    """)
    for r in range(4):
        E(f"v_perm_b32 v{h+r}, v{h+r}, v{4 + (r>>1)}, s{44 + (r&1)}")
        E(f"global_store_dword v11, v{h+r}, s[20:21] offset:{256*r} sc1")
    if not last: E("v_add_u32 v11, 0x1000, v11")
E(f"""
    s_cmp_lg_u32 s{S_SAFE}, 0
    s_cbranch_scc1 L_nog1
""")
for ks in range(3):
    E(xread(0, ks)); wreads(ks)
E("s_waitcnt lgkmcnt(10)"); mf(0, 0, False, AC)
E(xread(0, 3)); wreads(3)
E("s_waitcnt lgkmcnt(10)"); mf(0, 1, False, AC)
for ks in range(4): E(xread(1, ks))
E("s_waitcnt lgkmcnt(9)"); mf(0, 2, False, AC)
E("s_waitcnt lgkmcnt(4)"); mf(0, 3, False, AC)
E("s_cmp_lg_u32 s33, 0\ns_cbranch_scc1 L_g1b")
for ks in range(4): E(xread(2, ks))
E("s_waitcnt lgkmcnt(4)")
for ks in range(4): mf(1, ks, False, AC+8)
pack(0, False)
E("s_waitcnt lgkmcnt(0)")
for ks in range(4): mf(2, ks, False, AC+16)
pack(1, False)
pack(2, True)
E(f"""
    s_mov_b64 exec, 1
    ds_add_u32 v6, v7 offset:{L_GST}
    s_mov_b64 exec, -1
L_g2x:
""")
for rt in (3, 4):
    for ks in range(4): E(xread(rt, ks))
STAMP(4)
def done2(lab):
    E(f"""
    s_lshl_b32 s30, s{S_P}, 7
    s_add_u32 s30, s30, {WS_FL2}
    v_mov_b32 v160, s30
    v_mov_b32 v162, s{S_TAG}
    v_mov_b32 v163, s{S_TAG8}
    v_mov_b32 v2, 0
    v_mov_b32 v3, 1
    s_mov_b64 exec, 1
    s_waitcnt vmcnt(0)
    ds_add_rtn_u32 v161, v2, v3 offset:{L_DONE2}
    s_waitcnt lgkmcnt(0)
    v_readfirstlane_b32 s30, v161
    s_cmp_lg_u32 s30, 7
    s_cbranch_scc1 L_nofl_{lab}
    s_cmp_lg_u32 s{S_SAFE}, 0
    s_cbranch_scc1 L_nofs_{lab}
    global_store_dwordx2 v160, v[162:163], s[20:21] sc1
L_nofs_{lab}:
    ds_add_u32 v2, v3 offset:{L_DONE2}
L_nofl_{lab}:
    s_mov_b64 exec, -1
    """)
done2("g")
STAMP(5)
E(f"v_add_u32 v10, {L_WAU - L_WBV}, v10")
lds_wait(L_DONE2, 8, 8, "d2")
lds_wait(L_CTR, 0xff0000, 0x040000, "d3")
STAMP(6)
for ks in range(4): wreads(ks)
E(f"""
    s_mov_b32 s40, {f32(-LOG2E)}
    s_mov_b32 s46, 0x3f80
""")
def fin(acc, last):
    a = acc; u = acc + 4
    for r in range(4): E(f"v_mul_f32 v{a+r}, s40, v{a+r}")
    for r in range(4): E(f"v_mul_f32 v{u+r}, s42, v{u+r}")
    E(f"""
    v_cvt_pk_bf16_f32 v{a}, v{a}, v{a+1}
    v_cvt_pk_bf16_f32 v{a+1}, v{a+2}, v{a+3}
    v_cvt_f64_f32 v[2:3], v{u}
    v_cvt_f64_f32 v[4:5], v{u+1}
    v_cvt_f64_f32 v[6:7], v{u+2}
    v_cvt_f64_f32 v[8:9], v{u+3}
    ds_write_b64 v16, v[{a}:{a+1}] offset:512
    ds_write2_b64 v16, v[2:3], v[4:5] offset0:0 offset1:16
    ds_write2_b64 v16, v[6:7], v[8:9] offset0:32 offset1:48
    """)
    if not last: E(f"v_add_u32 v16, {16*NSTR}, v16")
for ks in range(4):
    E(f"s_waitcnt lgkmcnt({12 - 4*ks})"); mf(0, ks, True, AC)
for rt in range(1, 5):
    for ks in range(4): mf(rt, ks, True, AC + 8*(rt % 3))
    fin(AC + 8*((rt-1) % 3), False)
fin(AC + 8*(4 % 3), True)
main_consts()
STAMP(7)
E(f"""
    s_cmp_lg_u32 s{S_SAFE}, 0
    s_cbranch_scc1 L_b4
    s_and_b32 s32, s3, 3
    s_lshl_b32 s30, s32, 13
    s_lshl_b32 s31, s{S_HALF}, 7
    s_add_u32 s30, s30, s31
    s_add_u32 s30, s30, {WS_FL2}
    v_lshl_add_u32 v3, v1, 8, s30
    s_cmp_eq_u32 s32, 3
    s_cselect_b32 exec_lo, 0x1fffffff, -1
    s_mov_b32 exec_hi, 0
    s_mov_b32 s31, {POLL_MAX}
L_p2:
    global_load_dwordx2 v[60:61], v3, s[20:21] sc1
    s_waitcnt vmcnt(0)
    v_cmp_ne_u32 vcc, s{S_TAG}, v60
    v_cmp_ne_u32 s[48:49], s{S_TAG8}, v61
    s_sub_u32 s31, s31, 1
    s_cbranch_scc1 L_p2d
    s_or_b64 exec, vcc, s[48:49]
    s_cbranch_scc1 L_p2
L_p2d:
    s_mov_b64 exec, -1
""")
if OPT["gpf"]:
    E(f"""
    s_mul_i32 s30, s32, {2560*256}
    s_lshr_b32 s31, s2, 3
    s_mul_i32 s31, s31, {160*128}
    s_add_u32 s30, s30, s31
    v_lshl_add_u32 v3, v1, 7, s30
    v_min_u32 v3, {G_HALF - 128 - 8192}, v3
    s_mul_i32 s30, s{S_HALF}, {G_HALF}
    {f"s_add_u32 s30, s30, {WS0}" if WS0 else ""}
    v_add_u32 v3, s30, v3
    v_add_u32 v2, 8192, v3
    {"s_bfm_b64 exec, %d, 0" % OPT["gpf"] if OPT["gpf"] < 64 else ""}
    global_load_dword v35, v3, s[20:21] sc1
    {"s_bfm_b64 exec, %d, 0" % (OPT["gpf"]-64) if 64 < OPT["gpf"] < 128 else ""}
    {"global_load_dword v68, v2, s[20:21] sc1" if OPT["gpf"] > 64 else ""}
    s_mov_b64 exec, -1
    """)
E(f"""
    s_branch L_b4
L_nog1:
    s_cmp_lg_u32 s33, 0
    s_cbranch_scc1 L_g1c
""")
for rt in range(3):
    for ks in range(4): E(xread(rt, ks))
E(f"""
    s_branch L_g2x
L_g1b:
    s_waitcnt lgkmcnt(0)
""")
for ks in range(4): mf(1, ks, False, AC+8)
E("s_sub_u32 s29, s3, 4")
rec_setup()
pack(0, False)
pack(1, True)
E(f"""
    s_mov_b64 exec, 1
    ds_add_u32 v6, v7 offset:{L_GST}
    s_mov_b64 exec, -1
L_g1c:
""")
STAMP(4)
E(f"""
    s_branch L_rec
L_sort:
""")
STAMP(1)
E(f"""
    s_cmp_lg_u32 s{S_SAFE}, 0
    s_cbranch_scc1 L_sortskip
    v_mov_b32 v21, 1
    s_mov_b32 s31, 52429
    s_movk_i32 s32, -20
    v_lshlrev_b32 v9, 3, v1
    v_lshlrev_b32 v33, 4, v0
    s_mul_i32 s30, s{S_P}, {SORTB}
    s_add_u32 s30, s30, {WS_REC + 4096}
    v_add_u32 v32, s30, v33
    v_add_u32 v34, 8192, v32
    v_add_u32 v35, 16384, v32
    s_lshl_b32 s30, s{S_P}, 10
    s_add_u32 s30, s30, {WS_ROW}
    v_lshl_add_u32 v42, v1, 4, s30
    s_mov_b32 s34, {POLL_MAX}
    s_setprio 3
    s_waitcnt vmcnt(6)
""")
STAMP(2)
FSTAMP(1)
for i in range(5):
    E(f"""
    v_mul_u32_u24 v{22+i}, s31, v{4+i}
    v_lshrrev_b32 v{22+i}, 22, v{22+i}
    v_lshlrev_b32 v{22+i}, 2, v{22+i}        ; bucket*4
    ds_add_rtn_u32 v{27+i}, v{22+i}, v21 offset:{L_SCNT}
    """)
E(f"""
    s_mov_b64 exec, 1
    s_cmp_lg_u32 s3, 0
    s_cbranch_scc1 L_notag
    s_waitcnt vmcnt(5)
""")
if OPT["rot"]:
    E(f"""
L_np:
    v_readfirstlane_b32 s30, v43
    s_cmp_lg_u32 s30, 0
    s_cbranch_scc1 L_npd
    s_sub_u32 s34, s34, 1
    s_cbranch_scc1 L_npd
    global_load_dword v43, v48, s[64:65] sc1
    s_waitcnt vmcnt(0)
    s_branch L_np
L_npd:
    s_mov_b32 s34, {POLL_MAX}
    """)
E(f"""
    ds_write_b32 v48, v43 offset:{L_SCNT + 125*4}
L_notag:
    ds_add_u32 v48, v21 offset:{L_SCNT + 127*4}
    s_mov_b64 exec, -1
L_s1:
    ds_read_b32 v38, v48 offset:{L_SCNT + 127*4}
    ds_read_b64 v[36:37], v9 offset:{L_SCNT}
    s_sub_u32 s34, s34, 1
    s_cbranch_scc1 L_s1d
    s_waitcnt lgkmcnt(0)
    v_readfirstlane_b32 s30, v38
    s_cmp_lg_u32 s30, 4
    s_cbranch_scc1 L_s1
L_s1d:
""")
FSTAMP(2)
E(f"""
    v_add_u32 v39, v36, v37
    v_add_u32 v38, v36, v37
    v_readlane_b32 s{S_TAGRAW}, v37, 62
""")
fill = []
for i in range(5):
    fill += [f"v_mad_i32_i24 v{4+i}, v{22+i}, s32, v{4+i}", f"v_lshlrev_b32 v{4+i}, 24, v{4+i}"]
for k, m in enumerate(SCAN):
    E(f"v_add_u32_dpp v39, v39, v39 {m}")
    for x in fill[2*k:2*k+2]: E(x)
E(f"""
    v_sub_u32 v40, v39, v38
    v_add_u32 v41, v40, v36
    ds_write_b64 v9, v[40:41] offset:{L_SOFF}
""")
for i in range(5):
    E(f"ds_read_b32 v{22+i}, v{22+i} offset:{L_SOFF}")
finish_tag()
E(f"""
    s_cmp_lg_u32 s3, 0
    s_cbranch_scc1 L_nopub
    s_lshl_b32 s35, s{S_TAG8}, 24
    v_mov_b32 v45, s{S_TAG}
    v_mov_b32 v47, s{S_TAG}
    v_lshl_or_b32 v44, v36, 12, v40
    v_lshl_or_b32 v46, v37, 12, v41
    v_or_b32 v44, s35, v44
    v_or_b32 v46, s35, v46
    global_store_dwordx4 v42, v[44:47], s[20:21] sc1
    s_waitcnt vmcnt(1)
    s_branch L_pub
L_nopub:
    s_waitcnt vmcnt(0)
L_pub:
""")
STAMP(4)
FSTAMP(3)
E("""
    v_mov_b64 v[56:57], v[54:55]
    v_mov_b64 v[64:65], v[62:63]
    s_waitcnt lgkmcnt(0)
""")
for i in range(5):
    E(f"""
    v_lshl_or_b32 v{54+4*i}, v{12+i}, 8, v{4+i}
    v_mov_b32 v{55+4*i}, s{S_TAG}
    v_add_lshl_u32 v{22+i}, v{22+i}, v{27+i}, 4
    ds_write_b128 v{22+i}, v[{52+4*i}:{55+4*i}] offset:{L_SORT}
    """)
E(f"""
    s_mov_b64 exec, 1
    ds_add_u32 v48, v21 offset:{L_SCNT + 126*4}
    s_mov_b64 exec, -1
""")
FSTAMP(4)
E(f"""
    s_mov_b32 s34, {POLL_MAX}
L_s2:
    ds_read_b32 v38, v48 offset:{L_SCNT + 126*4}
    ds_read_b128 v[72:75], v33 offset:{L_SORT}
    s_sub_u32 s34, s34, 1
    s_cbranch_scc1 L_s2d
    s_waitcnt lgkmcnt(1)
    v_readfirstlane_b32 s30, v38
    s_cmp_lg_u32 s30, 4
    s_cbranch_scc1 L_s2
L_s2d:
""")
FSTAMP(5)
for k in range(1, 5): E(f"ds_read_b128 v[{72+4*k}:{75+4*k}], v33 offset:{L_SORT + 4096*k}")
for k in range(5):
    E(f"s_waitcnt lgkmcnt({4-k})")
    E(f"global_store_dwordx4 v{(32,32,34,34,35)[k]}, v[{72+4*k}:{75+4*k}], s[20:21] offset:{0 if k & 1 else -4096} sc1")
FSTAMP(6)
for k in range(5): E(f"ds_write_b128 v33, v[48:51] offset:{L_SORT + 4096*k}")
STAMP(3)
FSTAMP(7)
RA = 72; RB = RA + 4*NP; RAD = RB + 4*NP
E(f"""
    s_branch L_sortdone
L_sortskip:
    s_waitcnt vmcnt(0)
L_sortdone:
    v_mov_b32 v21, 0x100
    s_mov_b64 exec, 1
    ds_add_u32 v48, v21 offset:{L_CTR}
    s_mov_b64 exec, -1
    v_lshrrev_b32 v5, 3, v1
    v_bfe_u32 v3, v1, 4, 1
    v_lshlrev_b32 v3, 1, v3
    v_and_b32 v20, 7, v1
    v_xor_b32 v3, v3, v20
    v_lshlrev_b32 v3, 4, v3
    v_lshl_add_u32 v10, v5, 8, v3
    s_lshl_b32 s30, s{S_HALF}, 7
    s_and_b32 s31, s3, 1
    s_lshl_b32 s31, s31, 14
    s_add_u32 s30, s30, s31
    v_add_u32 v10, s30, v10
    v_xor_b32 v11, 64, v10
    v_add_u32 v12, 2048, v10
    v_add_u32 v13, 3072, v11
    v_add_u32 v11, 1024, v11
    s_lshl_b32 s30, s3, 13
    s_add_u32 m0, s30, {L_WAU}
    s_cmp_lt_u32 s3, 2
    s_cselect_b32 s34, s16, s12
    s_cselect_b32 s35, s17, s13
    global_load_lds_dwordx4 v10, s[34:35]
    global_load_lds_dwordx4 v11, s[34:35] offset:1024
    global_load_lds_dwordx4 v12, s[34:35] offset:2048
    global_load_lds_dwordx4 v13, s[34:35] offset:3072
    s_add_u32 m0, m0, 4096
    s_add_u32 s34, s34, 8192
    s_addc_u32 s35, s35, 0
    global_load_lds_dwordx4 v10, s[34:35]
    global_load_lds_dwordx4 v11, s[34:35] offset:1024
    global_load_lds_dwordx4 v12, s[34:35] offset:2048
    global_load_lds_dwordx4 v13, s[34:35] offset:3072
    s_mov_b32 s29, s3
""")
rec_setup()
E(f"""
L_rec:
    s_mov_b32 s40, {f32(-LOG2E)}
    s_mov_b32 s46, 0x3f80
""")
lds_wait(L_CTR, 0xff, 8, "r0")
main_consts()
STAMP(5)
E("s_cmp_lt_u32 s3, 4\ns_cbranch_scc1 L_nod2")
done2("w")
E(f"""
    s_branch L_nod3
L_nod2:
    v_mov_b32 v2, 0
    v_mov_b32 v3, 0x10000
    s_mov_b64 exec, 1
    s_waitcnt vmcnt(0)
    ds_add_u32 v2, v3 offset:{L_CTR}
    s_mov_b64 exec, -1
L_nod3:
    s_cmp_lg_u32 s{S_SAFE}, 0
    s_cbranch_scc1 L_recskip
    s_mov_b64 exec, s[66:67]
    s_mov_b32 s34, {POLL_MAX}
    s_branch L_p1c
L_p1:
    global_load_dwordx2 v[154:155], v150, s[20:21] sc1
L_p1c:
    s_waitcnt vmcnt(0)
    v_cmp_ne_u32 vcc, s{S_TAG}, v155
    v_cmp_ne_u32_sdwa s[48:49], v154, s{S_TAG8} src0_sel:BYTE_3 src1_sel:DWORD
    s_sub_u32 s34, s34, 1
    s_cbranch_scc1 L_toobig
    s_or_b64 exec, vcc, s[48:49]
    s_cbranch_scc1 L_p1
L_p1d:
    s_mov_b64 exec, -1
""")
STAMP(6)
if OPT["cnt"]: E(f"s_sub_u32 s{ST0+2}, {POLL_MAX+1}, s34\ns_mov_b32 s34, {POLL_MAX}")
E(f"""
    v_and_b32 v155, 0xfff, v154
    v_bfe_u32 v154, v154, 12, 12              ; count
    v_add_lshl_u32 v155, v155, v149, 4
    v_cmp_lt_u32 vcc, 32, v154
    v_cmp_lt_u32 s[68:69], 16, v154
    s_cbranch_vccnz L_toobig
""")
for p in range(NP):
    E(f"""
    v_add_co_u32_dpp v2, vcc, v154, v151 row_newbcast:{p} row_mask:0xf bank_mask:0xf
    v_add_u32_dpp v{RAD+p}, v155, v152 row_newbcast:{p} row_mask:0xf bank_mask:0xf
    s_mov_b64 s[{48+2*p}:{49+2*p}], vcc
    """)
if OPT["gate"]:
    E(f"""
    s_cmp_lt_u32 s3, 4
    s_cselect_b32 s28, {L_GST}, 0
    s_cselect_b32 s29, 0, {L_DONE2}
    s_cselect_b32 s32, 8, 9
    s_add_u32 s28, s28, s29
    v_mov_b32 v2, s28
    s_mov_b32 s31, {POLL_MAX}
L_gate:
    ds_read_b32 v3, v2
    s_sub_u32 s31, s31, 1
    s_cbranch_scc1 L_gated
    s_waitcnt lgkmcnt(0)
    v_readfirstlane_b32 s30, v3
    s_cmp_lg_u32 s30, s32
    s_cbranch_scc1 L_gate
L_gated:
    """)
E(f"""
    s_or_b32 s68, s68, s69
    s_lshr_b32 s69, s68, 16
    s_or_b32 s68, s68, s69
    s_cbranch_scc0 L_noex
""")
for p in range(NP):
    r = RB + 4*p
    E(f"""
    s_bitcmp1_b32 s68, {p}
    s_cbranch_scc0 L_nx{p}
    v_add_co_u32_dpp v2, vcc, v154, v153 row_newbcast:{p} row_mask:0xf bank_mask:0xf
    s_mov_b64 exec, vcc
    global_load_dwordx4 v[{r}:{r+3}], v{RAD+p}, s[20:21] offset:256 sc1
    s_mov_b64 exec, -1
L_nx{p}:
    """)
E("L_noex:")
for p in range(NP):
    r = RA + 4*p
    E(f"""
    s_mov_b64 exec, s[{48+2*p}:{49+2*p}]
    global_load_dwordx4 v[{r}:{r+3}], v{RAD+p}, s[20:21] sc1
    """)
E("s_mov_b64 exec, -1")
STAMP(7)
lds_wait(L_CTR, 0xffff, 0x0408, "r1")
retries = []
def rank(r, m, ad, off, tag):
    E(f"""
    s_mov_b64 exec, {m}
    v_cmp_ne_u32 vcc, s{S_TAG}, v{r+3}
    s_cbranch_vccnz L_rt{tag}
L_rr{tag}:
    v_mul_u32_u24_sdwa v{r+3}, v156, v{r+2} dst_sel:DWORD dst_unused:UNUSED_PAD src0_sel:DWORD src1_sel:BYTE_3
    v_and_b32 v{r+2}, {OPT['srcmask']}, v{r+2}
    ds_add_rtn_u32 v{r+3}, v{r+3}, v156 offset:{L_CNT}
    """)
    retries.append(f"""
L_rt{tag}:
    s_mov_b64 exec, vcc
    global_load_dwordx4 v[{r}:{r+3}], v{ad}, s[20:21] offset:{off} sc1
    s_sub_u32 s34, s34, 1
    s_cbranch_scc1 L_toobig
    s_waitcnt vmcnt(0)
    v_cmp_ne_u32 vcc, s{S_TAG}, v{r+3}
    s_cbranch_vccnz L_rt{tag}
    s_mov_b64 exec, {m}
    s_branch L_rr{tag}
    """)
def put(r, m):
    E(f"""
    s_mov_b64 exec, {m}
    v_lshlrev_b32 v2, 1, v{r+3}
    ds_write_b32 v{r+3}, v{r+2}
    ds_write_b64 v2, v[{r}:{r+1}] offset:{L_EA - 2*L_SRC}
    """)
E(f"""
    s_cmp_eq_u32 s68, 0
    s_cbranch_scc1 L_noey
    s_waitcnt vmcnt({NP})
""")
for p in range(NP):
    r = RB + 4*p
    E(f"""
    s_bitcmp1_b32 s68, {p}
    s_cbranch_scc0 L_ny{p}
    v_add_co_u32_dpp v2, vcc, v154, v153 row_newbcast:{p} row_mask:0xf bank_mask:0xf
    s_mov_b64 s[28:29], vcc
    """)
    rank(r, "s[28:29]", RAD+p, 256, f"b{p}")
    E("s_waitcnt lgkmcnt(0)")
    put(r, "s[28:29]")
    E(f"s_mov_b64 exec, -1\nL_ny{p}:")
E("L_noey:")
LAG = 2
for p in range(NP + LAG):
    if p < NP:
        E(f"s_waitcnt vmcnt({NP-1-p})")
        rank(RA + 4*p, f"s[{48+2*p}:{49+2*p}]", RAD+p, 0, f"a{p}")
    q = p - LAG
    if q >= 0:
        younger = 0
        for j in range(q+1, min(p, NP-1)+1): younger += 1
        for j in range(max(0, q-LAG), q): younger += 2
        E(f"s_waitcnt lgkmcnt({younger})")
        put(RA + 4*q, f"s[{48+2*q}:{49+2*q}]")
E(f"""
    s_mov_b64 exec, -1
    {f"s_sub_u32 s{ST0+4}, {POLL_MAX+1}, s34" if OPT["cnt"] else ""}
    s_branch L_b4
L_toobig:
    s_mov_b64 exec, -1
    v_mov_b32 v2, 0
    ds_write_b32 v2, v156 offset:{L_FLAG}
L_recskip:
    s_waitcnt vmcnt(0)
L_b4:
    s_setprio {OPT["p0"] if OPT["prio"] == 2 else 0}
    s_mul_i32 s30, s{S_HALF}, {G_HALF}
    {f"s_add_u32 s30, s30, {WS0}" if WS0 else ""}
    s_add_u32 s36, s20, s30
    s_addc_u32 s37, s21, 0
    s_mov_b32 s38, {OPT['nrec'] or G_HALF}
    s_mov_b32 s39, 0x20000
    s_mov_b32 s44, 128
    s_mov_b32 s45, 128
    ds_read_b128 v[60:63], v{LP}
    ds_read_b64 v[{AG}:{AG+1}], v{LP} offset:64
    ds_read_b64 v[{WN2}:{WN2+1}], v{LP} offset:72
    ds_read_b32 v{WE}, v{LP+1}
    s_waitcnt lgkmcnt(0)
    v_lshl_add_u64 v[{AG}:{AG+1}], v[{AG}:{AG+1}], 0, v[{LN8}:{LN8+1}]
    v_lshl_add_u32 v{WE}, v{WE}, 1, v{EAC}
""")
if OPT["warm"]:
    E(f"""
    s_barrier
    s_lshr_b32 s30, s2, 3
    s_mul_i32 s30, s30, 98304
    v_lshl_add_u32 v2, v0, 7, s30
    buffer_load_dword v3, v2, s[36:39], 0 offen sc1
    s_waitcnt vmcnt(0)
    s_sleep 40
    """)
STAMP(8)
E(f"""
    s_barrier                               ; B4
    s_cmp_lg_u32 s{S_SAFE}, 0
    s_cbranch_scc1 L_safe
    ds_read_b128 v[{T}:{T+3}], v60
    ds_read_b128 v[{T+4}:{T+7}], v61
    ds_read_b128 v[{T+8}:{T+11}], v62
    ds_read_b128 v[{T+12}:{T+15}], v63
    ds_read_b64 v[{XA}:{XA+1}], v{AG} offset:512
    ds_read_b64 v[{EA}:{EA+1}], v{WE}
    s_cmp_lt_u32 s3, {NW-2}
    s_cbranch_scc1 L_nobuild
    v_lshlrev_b32 v2, 3, v1
    v_mov_b32 v3, 0
    ds_read_b64 v[72:73], v2 offset:{L_CNT}
    ds_read_b32 v79, v3 offset:{L_FLAG}
    v_mul_u32_u24 v74, {2*SSTR}, v1
    v_add_u32 v74, {L_SRC + 96}, v74
    v_add_u32 v75, {SSTR}, v74
    v_mul_u32_u24 v82, {2*NSTR}, v1
    s_and_b32 s32, s3, 1
    s_mul_i32 s30, s32, {NSTR}
    s_add_u32 s30, s30, {L_NODE}
    v_add_u32 v82, s30, v82
    v_mov_b32 v83, v82
    s_mul_i32 s30, s32, {SSTR}
    v_add_u32 v80, s30, v74
    v_add_u32 v81, 16, v80
    s_waitcnt lgkmcnt(0)
    v_sub_u32 v72, v72, v74 clamp
    v_sub_u32 v73, v73, v75 clamp
    v_max_u32 v76, v72, v73
    v_cmp_lt_u32 vcc, 160, v76
    v_cmp_ne_u32 s[48:49], 0, v79
    v_add_u32 v74, 12, v72
    v_add_u32 v75, 12, v73
    s_or_b64 vcc, vcc, s[48:49]
    s_cbranch_scc1 L_bad
    v_add_u32 v72, 28, v72
    v_add_u32 v73, 28, v73
    v_lshrrev_b32 v74, 5, v74
    v_lshrrev_b32 v75, 5, v75
    v_lshrrev_b32 v72, 5, v72
    v_lshrrev_b32 v73, 5, v73
    v_sub_u32 v72, v72, v74
    v_sub_u32 v73, v73, v75
    v_lshl_or_b32 v72, v72, 16, v74
    v_lshl_or_b32 v73, v73, 16, v75
    v_add_u32 v76, v72, v73
    v_add_u32 v77, v72, v73
""")
scan(77)
E(f"""
    s_cmp_eq_u32 s32, 0
    s_cselect_b64 vcc, -1, 0
    v_readlane_b32 s30, v77, 63
    v_cndmask_b32 v76, v73, v76, vcc
    v_cndmask_b32 v72, v73, v72, vcc
    v_sub_u32 v77, v77, v76
    s_and_b32 s31, s30, 0xffff
    s_add_u32 s31, s31, 3
    s_lshr_b32 s31, s31, 2
    s_add_u32 s30, s30, 0x30000
    s_lshr_b32 s30, s30, 18
    s_lshl_b32 s33, s31, 1
    s_add_u32 s33, s33, s30
    s_cmp_gt_u32 s33, 112
    s_cbranch_scc1 L_bad
    s_lshl_b32 s30, s30, 8
    s_or_b32 s29, s30, s31
    v_and_b32 v74, 0xffff, v72
    v_and_b32 v76, 0xffff, v77
    s_mov_b32 s34, {L_LISTC}
    s_mov_b32 s35, {L_LIST + 384}
""")
def slotaddr():
    E(f"""
    v_add_u32 v78, 16, v76
    v_bfe_u32 v79, v76, 2, 2
    v_lshl_add_u32 v79, v79, 10, s34
    v_lshrrev_b32 v84, 5, v78
    v_lshl_add_u32 v79, v84, 7, v79
    v_bfe_u32 v84, v78, 4, 1
    v_lshl_add_u32 v79, v84, 3, v79
    v_lshrrev_b32 v84, 2, v76
    v_cmp_gt_u32 vcc, 32, v76
    v_lshl_add_u32 v84, v84, 9, s35
    v_and_b32 v78, 3, v76
    v_cndmask_b32 v79, v79, v84, vcc
    v_lshl_add_u32 v79, v78, 4, v79
    """)
E("""
L_bf:
    v_cmp_ne_u32 vcc, 0, v74
    s_and_b64 exec, exec, vcc
    s_cbranch_execz L_bfd
""")
slotaddr()
E(f"""
    ds_write_b64 v79, v[80:81]
    ds_write_b64 v79, v[82:83] offset:64
    v_add_u32 v80, 32, v80
    v_add_u32 v81, 32, v81
    v_add_u32 v76, 1, v76
    v_subrev_u32 v74, 1, v74
    s_branch L_bf
L_bfd:
    s_mov_b64 exec, -1
    v_lshrrev_b32 v77, 16, v77
    v_lshrrev_b32 v76, 3, v77
    v_add_u32 v76, s31, v76
    v_and_b32 v78, 3, v77
    v_lshl_add_u32 v76, v76, 2, v78
""")
slotaddr()
E(f"""
    v_and_b32 v78, 4, v77
    v_add_u32 v79, v79, v78
    v_cmp_lt_u32 vcc, 0xffff, v72
    s_mov_b64 exec, vcc
    ds_write2_b32 v79, v80, v82 offset0:0 offset1:16
    s_mov_b64 exec, -1
    s_mul_i32 s29, s29, s32
    s_add_u32 s29, s29, 0x10000
    s_branch L_built
L_bad:
    s_mov_b32 s29, 0x1010000
L_built:
    v_mov_b32 v2, s29
    s_mov_b64 exec, 1
    ds_add_u32 v3, v2 offset:{L_NST}
    s_add_u32 s30, s{S_P}, s32
    s_cmp_lg_u32 s30, 0
    s_cbranch_scc1 L_notw
    v_mov_b32 v2, s{S_TAG}
    v_mov_b32 v3, {WS_TAG}
    global_store_dword v3, v2, s[20:21]
L_notw:
    s_mov_b64 exec, -1
L_nobuild:
    s_waitcnt lgkmcnt(0)
""")
if EARLY:
    for q in range(0, 4, 2): E(f"v_mov_b64 v[{OFS+q}:{OFS+q+1}], v[{T+4*DIST+q}:{T+4*DIST+q+1}]")
for i in range(DIST):
    o = T + 4*i
    E(oadd(o)); E(oadd(o+2))
    if not OPT["nogather"]:
        for q in range(4): E(gload(G + 16*i + 4*q, o+q))
STAMP(9)
E(m_a(D0)); E(m_e(D0, 0))
E(f"""
    v_mov_b32 v2, 0
    s_mov_b32 s31, {POLL_MAX}
    s_waitcnt vmcnt({4*(DIST-1)})
""")
E(m_s(D0, A1, G)); E(m_s(D0, A2, G+8))
E(f"""
L_wn:
    ds_read_b32 v3, v2 offset:{L_NST}
    ds_read_b128 v[{WS4}:{WS4+3}], v{LP} offset:{128*((DIST+EARLY)//4)}
    s_sub_u32 s31, s31, 1
    s_cbranch_scc1 L_gosafe
    s_waitcnt lgkmcnt(0)
    v_readfirstlane_b32 s30, v3
    s_bitcmp1_b32 s30, 17
    s_cbranch_scc0 L_wn
    s_cmp_gt_u32 s30, {0 if OPT["force_safe"] else 0xffffff}
    s_cbranch_scc1 L_gosafe
    s_and_b32 s31, s30, 0xff
    s_bfe_u32 s30, s30, 0x80008
    s_lshl_b32 s32, s31, 1
    s_add_u32 s30, s30, s32
    s_lshl_b32 s32, s3, 1
    s_sub_i32 s30, s30, s32
    s_max_i32 s30, s30, 0
    s_cmp_ge_u32 s3, 8
    s_cbranch_scc1 L_nc
    s_min_u32 s30, s30, 2
    s_add_u32 s{S_R}, s30, 12
    s_cmp_ge_u32 s3, s31
    s_cselect_b32 s30, 0x2000, 0
    s_or_b32 s{S_M}, s30, 0x5041
    s_branch L_nd
L_nc:
    s_add_u32 s32, s30, 7
    s_lshr_b32 s32, s32, 3
    s_lshl_b32 s32, s32, 1
    s_and_b32 s30, s30, 7
    s_cmp_eq_u32 s30, 1
    s_subb_u32 s32, s32, 0
    s_add_u32 s{S_R}, s32, 6
    s_sub_i32 s31, s31, s3
    s_add_i32 s31, s31, 3
    s_max_i32 s31, s31, 0
    s_lshr_b32 s31, s31, 2
    s_lshl_b32 s31, s31, 1
    s_add_u32 s31, s31, 7
    s_lshl_b32 s31, -1, s31
    s_or_b32 s{S_M}, s31, 0x55555541
L_nd:
    s_mov_b32 s{S_IT}, {(1 << OPT["pa"]) | (1 << OPT["pb"]) | (1 << OPT["pc"]) if OPT["prio"] == 2 else 0}
""")
if OPT["prio"]: E(f"s_setprio {OPT['p1']}")
STAMP(10)
if OPT["ptime"]: E("v_mov_b32 v35, 0\nv_mov_b32 v68, 0")
if OPT["stamps"] == 1: E(f"s_memtime s[{ST0+24}:{ST0+25}]\ns_waitcnt lgkmcnt(0)")
for u in range(4): phase(u, True)
for u in range(4): phase(u, False)
E(f"""
L_mdone:
    s_waitcnt lgkmcnt(0)
""")
STAMP(11)
if OPT["ptime"]:
    E(f"""
    s_lshl_b32 s30, s2, 4
    s_add_u32 s30, s30, s3
    s_lshl_b32 s30, s30, 8
    s_add_u32 s30, s30, 0xc00000
    v_lshl_add_u32 v2, v1, 2, s30
    s_mov_b32 exec_hi, 0
    global_store_dword v2, v35, s[20:21]
    global_store_dword v2, v68, s[20:21] offset:128
    s_mov_b64 exec, -1
    """)
if OPT["stamps"] == 1:
    E(f"s_memtime s[28:29]\ns_waitcnt lgkmcnt(0)\ns_sub_u32 s{ST0+24}, s28, s{ST0+24}")
E(f"""
    v_lshrrev_b32 v2, 5, v0
    v_and_b32 v3, 31, v0
    v_mul_u32_u24 v4, {NSTR}, v2
    v_and_b32 v5, 1, v3
    v_lshl_add_u32 v4, v5, 8, v4
    v_lshrrev_b32 v5, 1, v3
    v_lshl_add_u32 v4, v5, 3, v4
    v_add_u32 v4, {L_NODE}, v4
    s_mul_i32 s30, s{S_BUCK}, {NB*256}
    s_lshl_b32 s31, s{S_HALF}, 7
    s_add_u32 s30, s30, s31
    v_lshlrev_b32 v3, 2, v3
    v_lshl_add_u32 v5, v2, 8, v3
    v_add_u32 v5, s30, v5
    v_add_u32 v6, {24*256}, v5
    v_add_u32 v7, {48*256}, v5
    v_add_u32 v8, {72*256}, v5
    s_mov_b32 s32, {f32(2.0**-32)}
    s_mov_b32 s34, {f32(-LOG2E * 2.0**-32)}
    v_mov_b32 v9, 0x207
    s_barrier                               ; B5
""")
OSC = {0: "", 1: " sc1", 2: " nt"}[OPT["osc"]]
def epi(us):
    for u in us: E(f"ds_read_b64 v[{12+4*u}:{13+4*u}], v4 offset:{24*NSTR*u}\nds_read_b64 v[{14+4*u}:{15+4*u}], v4 offset:{24*NSTR*u + 128}")
    E("s_waitcnt lgkmcnt(0)")
    for u in us: E(f"v_cvt_f32_f64 v{28+2*u}, v[{12+4*u}:{13+4*u}]\nv_cvt_f32_f64 v{29+2*u}, v[{14+4*u}:{15+4*u}]")
    for u in us: E(f"v_pk_mul_f32 v[{36+2*u}:{37+2*u}], v[{28+2*u}:{29+2*u}], s[34:35] op_sel_hi:[1,0]")
    for u in us: E(f"v_exp_f32 v{36+2*u}, v{36+2*u}\nv_exp_f32 v{37+2*u}, v{37+2*u}")
    for u in us: E(f"v_pk_mul_f32 v[{28+2*u}:{29+2*u}], v[{28+2*u}:{29+2*u}], s[32:33] op_sel_hi:[1,0]")
    for u in us: E(f"v_pk_add_f32 v[{36+2*u}:{37+2*u}], v[{36+2*u}:{37+2*u}], 1.0 op_sel_hi:[1,0]")
    for u in us: E(f"v_rcp_f32 v{36+2*u}, v{36+2*u}\nv_rcp_f32 v{37+2*u}, v{37+2*u}")
    E("v_pk_add_f32 v[10:11], v[28:29], v[30:31]")
    for u in us: E(f"v_pk_mul_f32 v[{36+2*u}:{37+2*u}], v[{28+2*u}:{29+2*u}], v[{36+2*u}:{37+2*u}]")
    for u in us: E(f"v_cvt_pk_bf16_f32 v{44+u}, v{36+2*u}, v{37+2*u}\nglobal_store_dword v{5+u}, v{44+u}, s[18:19]{OSC}")
    for u in us[2:]: E(f"v_pk_add_f32 v[10:11], v[10:11], v[{28+2*u}:{29+2*u}]")
E("s_cmp_ge_u32 s3, 4\ns_cbranch_scc1 L_e3")
epi([0, 1, 2, 3])
E("s_branch L_e4\nL_e3:")
epi([0, 1, 2])
E(f"""
L_e4:
    v_add_f32 v10, v10, v11
    v_cmp_class_f32 vcc, v10, v9
    v_mov_b32 v2, 0
    s_cmp_lg_u32 s{S_SAFE}, 0
    s_cbranch_scc1 L_fin
    {"s_branch" if OPT["nosafe"] else "s_cbranch_vccz"} L_e5
    ds_write_b32 v2, v9 offset:{L_FLAG}
    s_waitcnt lgkmcnt(0)
L_e5:
    s_barrier                               ; B6
    ds_read_b32 v2, v2 offset:{L_FLAG}
    s_waitcnt lgkmcnt(0)
    v_readfirstlane_b32 s30, v2
    s_cmp_lg_u32 s30, 0
    s_cbranch_scc1 L_gosafe
L_fin:
""")
if OPT["stamps"]:
    E("s_waitcnt vmcnt(0)"); STAMP(13); STAMP_OUT()
if OPT["probe"] >= 0:
    T_ = ST0 + 2*OPT["probe"]
    E(f"""
    s_cmp_lg_u32 s3, {OPT["pw"]}
    s_cbranch_scc1 L_end
    s_cmp_lg_u32 s2, {OPT["pg"] if OPT["pg"] >= 0 else "s2"}
    s_cbranch_scc1 L_end
    s_sub_u32 s30, s{T_}, s{ST0}
    s_lshl_b32 s30, s30, 2
    s_add_u32 s30, s30, 3000
    s_min_u32 s30, s30, 20000
L_spin:
    s_memrealtime s[28:29]
    s_waitcnt lgkmcnt(0)
    s_sub_u32 s28, s28, s{ST0}
    s_cmp_lt_u32 s28, s30
    s_cbranch_scc1 L_spin
    """)
E(f"""
L_end:
    s_endpgm
L_gosafe:
    s_mov_b32 s{S_SAFE}, 8
    s_setprio 0
    s_waitcnt vmcnt(0) lgkmcnt(0)
    s_barrier
    s_branch L_restart
""")
out += outofline
for r in retries: E(r)
E(f"""
L_safe:
    v_and_b32 v2, 15, v1
    v_lshlrev_b32 v3, 3, v2
    v_add_u32 v3, {L_C}, v3
""")
for k in range(4):
    for s in range(4):
        E(f"ds_read_u16 v{80+4*k+s}, v3 offset:{128*k + 2*s}")
E("s_waitcnt lgkmcnt(0)")
for i in range(16):
    E(f"v_lshlrev_b32 v{80+i}, 16, v{80+i}\nv_mul_f32 v{80+i}, s40, v{80+i}")
E(f"""
    v_lshrrev_b32 v24, 4, v1
    s_movk_i32 s33, {NSTR}
    v_add_u32 v25, {L_NODE}, v{LN8}
    s_mov_b32 s34, s3
    s_mov_b32 s35, {POLL_MAX}
L_scell:
    s_lshl_b32 s30, s34, 10
    s_lshl_b32 s31, s{S_BUCK}, 3
    s_add_u32 s30, s30, s31
    s_add_u32 s30, s30, {WS_ROW}
    v_mov_b32 v26, s30
    global_load_dword v27, v26, s[20:21] sc1
    s_mul_i32 s30, s34, {CHUNK}
    s_add_u32 s30, s30, {WS_REC//16}
    s_waitcnt vmcnt(0)
    v_bfe_u32 v28, v27, 12, 12              ; count
    v_and_b32 v27, 0xfff, v27
    v_add_u32 v27, s30, v27
    v_mov_b32 v29, v24
L_srec:
    v_cmp_gt_u32 vcc, v28, v29
    s_and_saveexec_b64 s[48:49], vcc
    s_cbranch_execz L_snext
    v_add_lshl_u32 v30, v27, v29, 4
L_sget:
    global_load_dwordx4 v[32:35], v30, s[20:21] sc1
    s_waitcnt vmcnt(0)
    v_cmp_ne_u32 vcc, s{S_TAG}, v35
    s_cbranch_vccz L_sgot
    s_sub_u32 s35, s35, 1
    s_cbranch_scc0 L_sget
    s_mov_b64 exec, -1
    s_branch L_mdone
L_sgot:
    v_and_b32 v30, 0x3fff00, v34
    v_add_u32 v30, v30, v{LN16}
    buffer_load_dwordx4 v[36:39], v30, s[36:39], 0 offen sc1
    v_lshrrev_b32 v31, 24, v34
    v_mad_u32_u24 v31, v31, s33, v25
    ds_read_b64 v[40:41], v31 offset:512
    v_lshlrev_b32 v44, 16, v32
    v_and_b32 v45, 0xffff0000, v32
    v_lshlrev_b32 v46, 16, v33
    v_and_b32 v47, 0xffff0000, v33
    s_waitcnt vmcnt(0) lgkmcnt(0)
    v_lshlrev_b32 v48, 16, v40
    v_and_b32 v49, 0xffff0000, v40
    v_lshlrev_b32 v50, 16, v41
    v_and_b32 v51, 0xffff0000, v41
""")
for s in range(4):
    E(f"v_lshlrev_b32 v52, 16, v{36+s}\nv_add_f32 v{48+s}, v{48+s}, v52")
    for k in range(4):
        E(f"v_fmac_f32 v{48+s}, v{44+k}, v{80+4*k+s}")
for s in range(4): E(f"v_exp_f32 v{48+s}, v{48+s}")
E("s_nop 0")
for s in range(4): E(f"v_add_f32 v{48+s}, 1.0, v{48+s}")
for s in range(4): E(f"v_rcp_f32 v{48+s}, v{48+s}")
E("s_nop 0")
for s in range(4): E(f"v_mul_f32 v{48+s}, v{48+s}, v{36+s}")
for s in range(4): E(f"v_cvt_f64_f32 v[{54+2*s}:{55+2*s}], v{48+s}")
for s in range(4): E(f"ds_add_f64 v31, v[{54+2*s}:{55+2*s}] offset:{128*s}")
E(f"""
    s_mov_b64 exec, s[48:49]
    v_add_u32 v29, 4, v29
    s_branch L_srec
L_snext:
    s_mov_b64 exec, s[48:49]
    s_add_u32 s34, s34, {NW}
    s_cmp_lt_u32 s34, {NCHUNK}
    s_cbranch_scc1 L_scell
    s_branch L_mdone
L_codeend:
.section .rodata,"a"
.p2align 6
.amdhsa_kernel {NAME}
.amdhsa_next_free_vgpr 168
.amdhsa_next_free_sgpr 102
.amdhsa_accum_offset 168
.amdhsa_group_segment_fixed_size 0
.amdhsa_kernarg_size 80
.amdhsa_user_sgpr_count 2
.amdhsa_user_sgpr_kernarg_segment_ptr 1
.amdhsa_system_sgpr_workgroup_id_x 1
.end_amdhsa_kernel
""")
if OPT["drop"]:
    i0 = out.index("L_L0:"); i1 = out.index("L_mdone:")
    pats = {1: ("smfmac",), 2: ("mfma",), 3: ("32x32x8",), 4: ("smfmac",), 5: ("v_exp",)}[OPT["drop"]]
    repl = {4: "    s_nop 2", 5: "    s_nop 1"}.get(OPT["drop"])
    mid = []
    for l in out[i0:i1]:
        if any(x in l for x in pats):
            if repl: mid.append(repl)
        else: mid.append(l)
    if OPT["drop"] == 3: mid = [l.replace("v[88:103] cbsz", "0 cbsz").replace("v[72:87] cbsz", "0 cbsz") for l in mid]
    out = out[:i0] + mid + out[i1:]
if OPT["nochain"]:
    i0 = out.index("L_L0:"); i1 = out.index("L_mdone:")
    out = out[:i0] + [l for l in out[i0:i1] if not any(x in l for x in ("v_exp", "v_pk_", "mfma", "v_rcp", "v_cvt"))] + out[i1:]
open(sys.argv[1], "w").write("\n".join(out) + "\n")
```

```python
import sys, struct

OPT = dict(hb=1, stamps=0, force_safe=0, nogather=0, nosafe=0, prio=2, gsc1=1, osc=0, codepf=1, srcmask=0x3fff00, nrec=0, warm=0,
           nochain=0, probe=-1, pw=-1, pg=-1, gpf=32, early=0, cnt=0, pollmax=200000, pa=7, pb=3, pc=1, p0=3, p1=3, ptime=0,
           dist=2, ldearly=1, drop=0, wgate=1, gate=1, gate2=1, rst=0, rsc1=1, nover=0, p2gate=1, p2sleep=4, hold=0, p2wait=0)
for a in sys.argv[2:]:
    k, v = a.split("=")
    assert k in OPT, k
    OPT[k] = int(v, 0)

out = []
def E(s=""):
    for line in s.split("\n"):
        line = line.strip()
        if not line:
            continue
        if line.endswith(":") or line.startswith(".") or line.startswith(";"):
            out.append(line)
        else:
            out.append("    " + line)

def f32(x):
    return "0x%08x" % struct.unpack("<I", struct.pack("<f", x))[0]

NAME = "standalone__edge_featured_mpnn_egc__graph_kernel"
LOG2E = 1.4426950408889634
NB = 80; NBUCK = 125; CHUNK = 1280; NCHUNK = 250
NW = 12
G_HALF = 10000 * 256
WS0 = 0
WS_REC = 0x500000
WS_ROW = 0x900000
WS_FL2 = 0x980000
WS_TAG = 0x9c0000
SORTB = CHUNK * 12 + 512
WS_STAMP = 0x1000000
L_CNT = 0; L_SOFF = 512
L_SCNT = 1024
L_CTR = 1536; L_RD = 1540; L_DONE2 = 1544; L_FLAG = 1548; L_NST = 1552; L_GST = 1556
L_DUM = L_SOFF
L_LIST = 2048
L_LISTC = L_LIST + 4096
SSTR = 272
L_SRC = L_LIST + 8192
SRCB = 80 * SSTR + 32
L_EA = L_SRC + SRCB
L_EAEND = L_EA + 2 * SRCB
L_SORT = L_EA
L_WBV = (L_EAEND + 255) // 256 * 256; L_X = L_WBV + 32768; L_WAU = L_X + 20480; L_C = L_WAU + 32768
LDS = L_C + 1024
L_NODE = L_WBV; NSTR = 648
assert L_NODE + 80 * NSTR <= L_WAU and LDS <= 163840 and L_EA % 16 == 0
NULL_SRC = 0x7fffff00
POLL_MAX = OPT["pollmax"]
SC1 = " sc1"

S_HALF, S_BUCK, S_P = 22, 23, 24
S_SAFE, S_TAG = 25, 26
S_R, S_M, S_IT = 70, 71, 72
S_TAGRAW = 47
ST0 = 74

def ESTAMP(i):
    if OPT["early"] == 1 or (OPT["early"] and i == 0): E(f"s_memrealtime s[{ST0+2*i}:{ST0+2*i+1}]")
def FSTAMP(i):
    if OPT["early"] == 2: E(f"s_memrealtime s[{ST0+2*i}:{ST0+2*i+1}]\ns_waitcnt lgkmcnt(0)")
def STAMP(i):
    if OPT["stamps"] == 2:
        if i == 0: E(f"s_memrealtime s[{ST0}:{ST0+1}]")
        if i == 8: E(f"s_memrealtime s[{ST0+16}:{ST0+17}]")
        if i == 13: E(f"s_memrealtime s[{ST0+26}:{ST0+27}]\ns_waitcnt lgkmcnt(0)")
        return
    if OPT["early"] and 1 <= i <= 7: return
    if OPT["early"] and i == 0: return ESTAMP(0)
    if OPT["stamps"] or (OPT["probe"] >= 0 and i == OPT["probe"]):
        E(f"s_memrealtime s[{ST0+2*i}:{ST0+2*i+1}]\ns_waitcnt lgkmcnt(0)")
    elif OPT["probe"] >= 0 and i == 0:
        E(f"s_memrealtime s[{ST0}:{ST0+1}]")
NSTAMP = 14
def STAMP_OUT():
    if OPT["stamps"]:
        E(f"""
        s_lshl_b32 s30, s2, 4
        s_add_u32 s30, s30, s3
        s_lshl_b32 s30, s30, 6
        s_add_u32 s30, s30, {WS_STAMP - 0x100000}
        s_load_dwordx2 s[20:21], s[0:1], 72
        s_waitcnt lgkmcnt(0)
        s_mov_b64 exec, -1
        v_mov_b32 v3, s30""")
        for i in (range(NSTAMP) if OPT["stamps"] == 1 else (0, 8, 13)):
            E(f"v_mov_b32 v2, s{ST0+2*i}\nglobal_store_dword v3, v2, s[20:21] offset:{4*i}")
        E("s_waitcnt vmcnt(0)")

A1, A2, IDX, EAC, LN16, ASEL, CW, LN8 = 4, 8, 12, 13, 14, 16, 18, 20
LP, WS4, WN2, EA, XA, WE, OFS, AG, T, N, P, F = 22, 24, 28, 30, 32, 34, 36, 40, 44, 52, 56, 60
D0, D1, G = 72, 88, 104

def finish_tag():
    E(f"""
    s_mul_i32 s{S_TAG+1}, s{S_TAGRAW}, 0x85ebca6b
    s_mul_i32 s{S_TAG}, s{S_TAGRAW}, 0x9e3779b1
    s_add_u32 s{S_TAG+1}, s{S_TAG+1}, 0x5bd1e995
    s_add_u32 s{S_TAG}, s{S_TAG}, 0x7f4a7c15
    """)
def get_tag(lab, q):
    E(f"""
    s_cmp_lg_u32 s{S_SAFE}, 0
    s_cbranch_scc1 L_tag_{lab}
    v_mov_b32 v2, 0
    s_mov_b32 s31, {POLL_MAX}
L_tg_{lab}:
    ds_read_b128 v[{q}:{q+3}], v2 offset:{L_SCNT + 124*4}
    s_sub_u32 s31, s31, 1
    s_cbranch_scc1 L_tag_{lab}
    s_waitcnt lgkmcnt(0)
    v_readfirstlane_b32 s30, v{q+3}
    v_readfirstlane_b32 s{S_TAGRAW}, v{q+1}
    s_cmp_lg_u32 s30, 4
    s_cbranch_scc1 L_tg_{lab}
    """)
    finish_tag()
    E(f"L_tag_{lab}:")

def lds_wait(addr, mask, val, tag, sleep=0, ne=False):
    E(f"""
    v_mov_b32 v2, 0
    s_mov_b32 s31, {POLL_MAX}
L_w_{tag}:
    {f"s_sleep {sleep}" if sleep else ""}
    ds_read_b32 v3, v2 offset:{addr}
    s_sub_u32 s31, s31, 1
    s_cbranch_scc1 L_wd_{tag}
    s_waitcnt lgkmcnt(0)
    v_readfirstlane_b32 s30, v3
    s_and_b32 s30, s30, {mask}
    s_cmp_lg_u32 s30, {val}
    s_cbranch_scc{0 if ne else 1} L_w_{tag}
L_wd_{tag}:
    """)
SCAN = ("row_shr:1 row_mask:0xf bank_mask:0xf bound_ctrl:0", "row_shr:2 row_mask:0xf bank_mask:0xf bound_ctrl:0",
        "row_shr:4 row_mask:0xf bank_mask:0xf bound_ctrl:0", "row_shr:8 row_mask:0xf bank_mask:0xf bound_ctrl:0",
        "row_bcast:15 row_mask:0xa bank_mask:0xf", "row_bcast:31 row_mask:0xc bank_mask:0xf")
def scan(r):
    for m in SCAN:
        E(f"s_nop 1\nv_add_u32_dpp v{r}, v{r}, v{r} {m}")

def main_consts(sm=48):
    E(f"""
    v_and_b32 v2, 15, v1                    ; n'
    v_lshrrev_b32 v3, 4, v1
    v_lshl_add_u32 v3, v2, 2, v3
    v_lshlrev_b32 v3, 1, v3
    v_add_u32 v3, {L_C}, v3
    ds_read_u16 v64, v3                     ; C[0..3][feature 4n'+s]
    ds_read_u16 v65, v3 offset:128
    ds_read_u16 v66, v3 offset:256
    ds_read_u16 v67, v3 offset:384
    v_and_b32 v63, 3, v1                    ; q
    v_lshlrev_b32 v{LN8}, 3, v2
    v_lshlrev_b32 v{LN8+1}, 3, v2
    v_lshlrev_b32 v{LN16}, 4, v2
    v_lshlrev_b32 v{LN16+1}, 4, v2
    v_mov_b32 v{IDX}, 0x8888
    v_bfe_u32 v60, v1, 3, 2                 ; s = (l&31)>>3
    v_bfe_u32 v61, v1, 2, 1                 ; h = (l>>2)&1
    v_lshrrev_b32 v62, 5, v1                ; ha
    v_and_b32 v2, 1, v60
    v_lshlrev_b32 v2, 4, v2
    v_lshlrev_b32 v2, v2, s46
    v_lshrrev_b32 v60, 1, v60               ; s>>1
    v_lshl_add_u32 v3, v61, 1, v60
    v_sub_u32 v63, v63, v62                 ; q - ha : 0 -> A1, 2 -> A2
    v_lshl_add_u32 v3, v63, 1, v3
    v_and_b32 v63, 1, v63
    v_lshl_or_b32 v3, v63, 4, v3
    v_xor_b32 v61, v61, v62
    v_lshl_or_b32 v60, v61, 4, v60
    """)
    mk = [f"s[{sm}:{sm+1}]", f"s[{sm+2}:{sm+3}]", f"s[{sm+4}:{sm+5}]", "vcc"]
    for i in range(8):
        E(f"v_cmp_eq_u32 {mk[i%4]}, {i}, v3")
        if i % 4 == 3:
            for j in range(i-3, i+1):
                E(f"v_cndmask_b32 v{A1+j}, 0, v2, {mk[j%4]}")
    E(f"""
    v_cmp_eq_u32 {mk[0]}, 0, v60
    v_cmp_eq_u32 {mk[1]}, 1, v60
    v_and_b32 v63, 3, v1
    v_lshlrev_b32 v61, 3, v63
    v_cndmask_b32 v{ASEL}, 0, v2, {mk[0]}
    v_cndmask_b32 v{ASEL+1}, 0, v2, {mk[1]}
    v_add_u32 v{EAC}, {L_EA - 2*L_SRC}, v61
    s_lshl_b32 s30, s3, 9
    s_sub_u32 s31, s30, 4096
    s_max_i32 s31, s31, 0
    s_add_u32 s30, s30, s31
    s_add_u32 s30, s30, {L_LIST}
    v_lshrrev_b32 v2, 4, v1
    v_lshl_add_u32 v{LP}, v2, 4, s30
    v_bfe_u32 v3, v1, 2, 2
    v_lshl_add_u32 v{LP+1}, v3, 4, s30
    v_lshl_add_u32 v{LP+1}, v2, 2, v{LP+1}
    s_waitcnt lgkmcnt(0)
    v_lshlrev_b32 v60, 16, v64
    v_lshlrev_b32 v61, 16, v65
    v_lshlrev_b32 v62, 16, v66
    v_lshlrev_b32 v63, 16, v67
    v_mul_f32 v60, s40, v60
    v_mul_f32 v61, s40, v61
    v_mul_f32 v62, s40, v62
    v_mul_f32 v63, s40, v63
    v_cvt_pk_bf16_f32 v{CW}, v60, v61
    v_cvt_pk_bf16_f32 v{CW+1}, v62, v63
    """)

def gload(g, o):
    return f"buffer_load_dwordx4 v[{g}:{g+3}], v{o}, s[36:39], 0 offen" + (SC1 if OPT["gsc1"] else "")
def oadd(o):
    return f"v_lshl_add_u64 v[{o}:{o+1}], v[{o}:{o+1}], 0, v[{LN16}:{LN16+1}]"

def pk_steps(Gc, q, first):
    t = T + 4*(q & 1); h = Gc + 4*q
    if first and q == 0:
        return [f"v_pk_add_f32 v[{P+2*p}:{P+2*p+1}], v[{t+2*p}:{t+2*p+1}], 1.0 op_sel_hi:[1,0]" for p in range(2)]
    r = []
    for p in range(2):
        n = f"v[{Gc+2*p}:{Gc+2*p+1}]" if (first and q == 1) else f"v[{N+2*p}:{N+2*p+1}]"
        r.append(f"v_pk_fma_f32 v[{N+2*p}:{N+2*p+1}], {n}, v[{t+2*p}:{t+2*p+1}], {n}")
    for p in range(2):
        r.append(f"v_pk_fma_f32 v[{N+2*p}:{N+2*p+1}], v[{h+2*p}:{h+2*p+1}], v[{P+2*p}:{P+2*p+1}], v[{N+2*p}:{N+2*p+1}]")
    for p in range(2):
        r.append(f"v_pk_fma_f32 v[{P+2*p}:{P+2*p+1}], v[{P+2*p}:{P+2*p+1}], v[{t+2*p}:{t+2*p+1}], v[{P+2*p}:{P+2*p+1}]")
    return r
def exps(Dc, q):
    t = T + 4*(q & 1)
    return [f"v_exp_f32 v{t+s}, v{Dc+4*s+q}" for s in range(4)]
def weave(main, extra):
    for i, x in enumerate(main):
        E(x)
        for y in extra.get(i, []):
            E(y)
def m_a(Dn): return f"v_mfma_f32_32x32x8_bf16 v[{Dn}:{Dn+15}], v[{ASEL}:{ASEL+1}], v[{XA}:{XA+1}], 0"
def m_e(Dn, abid): return f"v_mfma_f32_16x16x4_4b_bf16 v[{Dn}:{Dn+15}], v[{EA}:{EA+1}], v[{CW}:{CW+1}], v[{Dn}:{Dn+15}] cbsz:2 abid:{abid}"
def m_s(Dn, A, g): return f"v_smfmac_f32_32x32x32_bf16 v[{Dn}:{Dn+15}], v[{A}:{A+3}], v[{g}:{g+7}], v{IDX}"

outofline = []
def emit_to(lst, fn):
    global out
    keep = out; out = []
    fn(); lst += out; out = keep
DIST = OPT["dist"]; EARLY = OPT["ldearly"]
assert not (EARLY and DIST == 4)
def phase(u, loads):
    tag = f"{'L' if loads else 'T'}{u}"
    Dc, Dn = ((D0, D1), (D1, D0))[u & 1]
    gc = G + 16*u; gn = G + 16*((u+1) & 3); gl = G + 16*((u+DIST) & 3)
    ld = loads and not OPT["nogather"]
    kw = (u + DIST + EARLY) & 3
    wsgrp = 128 * ((3 - kw + u + DIST + EARLY) // 4 + 1) if kw == 3 else None
    def addloads(ex, pos):
        if loads:
            ex.setdefault(0, []).append(oadd(OFS)); ex.setdefault(2, []).append(oadd(OFS+2))
        if ld:
            for q in range(4): ex.setdefault(pos[q], []).append(gload(gl+4*q, OFS+q))
    E(f"L_{tag}:")
    if OPT["ptime"]: E(f"s_memrealtime s[28:29]\ns_mov_b32 m0, s{S_R}")
    E(f"s_waitcnt vmcnt({4*(DIST-2)})")
    if OPT["ptime"]: E(f"s_memrealtime s[30:31]")
    E(m_a(Dn))
    for x in exps(Dc, 0): E(x)
    E(m_s(Dn, A1, gn))
    for x in exps(Dc, 1): E(x)
    ex = {0: ["s_waitcnt lgkmcnt(0)"], 2: [f"ds_read_b64 v[{XA}:{XA+1}], v{AG + ((u+2) & 3)} offset:512"]}
    if OPT["ptime"]: ex[0] += ["v_writelane_b32 v35, s28, m0", "v_writelane_b32 v68, s30, m0"]
    if u % 2 == 0:
        p = AG + ((u+2) & 3)
        ex[0].append(f"v_lshl_add_u64 v[{p}:{p+1}], v[{WN2}:{WN2+1}], 0, v[{LN8}:{LN8+1}]")
    if EARLY: addloads(ex, (1, 3, 5, 6))
    elif loads: ex[1] = [f"ds_read_b128 v[{OFS}:{OFS+3}], v{WS4+kw}"]
    if u == 2:
        ex.setdefault(4, []).append(f"v_lshl_add_u32 v{WE}, v{WE}, 1, v{EAC}")
    E(f"s_bitcmp1_b32 s{S_M}, 0\ns_cbranch_scc1 L_{tag}f")
    weave(pk_steps(gc, 0, False) + pk_steps(gc, 1, False), ex)
    E(f"L_{tag}r:")
    def first():
        E(f"L_{tag}f:")
        weave(pk_steps(gc, 0, True) + pk_steps(gc, 1, True), ex)
        E(f"s_branch L_{tag}r")
    emit_to(outofline, first)
    E(m_e(Dn, (u+1) & 3))
    for x in exps(Dc, 2): E(x)
    E(m_s(Dn, A2, gn+8))
    for x in exps(Dc, 3): E(x)
    ex = {0: ["s_waitcnt lgkmcnt(0)"], 4: [], 6: [], 7: [f"s_sub_u32 s{S_R}, s{S_R}, 1"], 10: [f"s_lshr_b32 s{S_M}, s{S_M}, 1"], 11: [f"s_bitcmp1_b32 s{S_M}, 0"]}
    if not EARLY: addloads(ex, (1, 3, 5, 9) if DIST == 4 else (1, 3, 5, 7))
    elif loads: ex[1] = [f"ds_read_b128 v[{OFS}:{OFS+3}], v{WS4+kw}"]
    if u == 1:
        ex[4].append(f"ds_read_b64 v[{WN2}:{WN2+1}], v{LP} offset:{128+64}")
        ex[6].append(f"ds_read_b32 v{WE}, v{LP+1} offset:128")
    if u == 2:
        ex[4].append(f"ds_read_b64 v[{EA}:{EA+1}], v{WE}")
    if u == 3:
        ex[4].append(f"ds_read_b64 v[{WN2}:{WN2+1}], v{LP} offset:{128+64+8}")
        ex[8] = [f"v_lshl_add_u64 v[{LP}:{LP+1}], v[{LP}:{LP+1}], 0, s[44:45]"]
    if wsgrp and loads: ex[6].append(f"ds_read_b128 v[{WS4}:{WS4+3}], v{LP} offset:{wsgrp}")
    weave(pk_steps(gc, 2, False) + pk_steps(gc, 3, False), ex)
    E(f"s_cbranch_scc1 L_{tag}z\nL_{tag}y:")
    def fin():
        E(f"""
L_{tag}z:
        v_rcp_f32 v{P}, v{P}
        v_rcp_f32 v{P+1}, v{P+1}
        v_rcp_f32 v{P+2}, v{P+2}
        v_rcp_f32 v{P+3}, v{P+3}
        v_pk_mul_f32 v[{N}:{N+1}], v[{N}:{N+1}], v[{P}:{P+1}]
        v_pk_mul_f32 v[{N+2}:{N+3}], v[{N+2}:{N+3}], v[{P+2}:{P+3}]
        """)
        for s_ in range(4):
            E(f"v_cvt_f64_f32 v[{F+2*s_}:{F+2*s_+1}], v{N+s_}")
            if s_: E(f"ds_add_f64 v{AG+u}, v[{F+2*s_-2}:{F+2*s_-1}] offset:{128*(s_-1)}")
        E(f"ds_add_f64 v{AG+u}, v[{F+6}:{F+7}] offset:384")
        E(f"s_branch L_{tag}y")
    emit_to(outofline, fin)
    if OPT["prio"] == 2:
        E(f"s_bitcmp1_b32 s{S_IT}, s{S_R}\ns_cbranch_scc1 L_{tag}q\nL_{tag}p:")
        def pr():
            E(f"""
L_{tag}q:
            s_setprio 0
            s_cmp_le_u32 s{S_R}, {OPT["pc"]}
            s_cbranch_scc1 L_{tag}p
            s_setprio 1
            s_cmp_le_u32 s{S_R}, {OPT["pb"]}
            s_cbranch_scc1 L_{tag}p
            s_setprio 2
            s_branch L_{tag}p
            """)
        emit_to(outofline, pr)
    if u == 3 and OPT["prio"] == 1:
        E(f"""
        s_add_u32 s{S_IT}, s{S_IT}, 1
        s_setprio 0
        s_cmp_gt_u32 s{S_IT}, 2
        s_cbranch_scc1 L_{tag}p
        s_setprio 1
        s_cmp_eq_u32 s{S_IT}, 2
        s_cbranch_scc1 L_{tag}p
        s_setprio 2
L_{tag}p:
        """)
    if loads:
        E(f"s_cmp_le_u32 s{S_R}, {DIST}")
        if u < 3: E(f"s_cbranch_scc1 L_T{u+1}")
        else: E("s_cbranch_scc0 L_L0")
    else:
        E(f"s_waitcnt vmcnt(0)\ns_cmp_eq_u32 s{S_R}, 0")
        if u < 3: E("s_cbranch_scc1 L_mdone")
        else: E("s_cbranch_scc0 L_T0")

E(f"""
; @launch grid=(256,1,1) block=({64*NW},1,1) lds={LDS}
.amdgcn_target "amdgcn-amd-amdhsa--gfx950"
.text
.globl {NAME}
.p2align 8
.type {NAME},@function
{NAME}:
""")
if OPT["stamps"] == 1 and OPT["early"] != 1:
    for i in range(NSTAMP): E(f"s_mov_b64 s[{ST0+2*i}:{ST0+2*i+1}], 0")
STAMP(0)
E(f"""
    s_load_dwordx16 s[4:19], s[0:1], 0
    s_load_dwordx2 s[20:21], s[0:1], 72
""")
if OPT["codepf"]:
    E(f"""
    s_getpc_b64 s[28:29]
L_pc:
    v_lshlrev_b32 v3, 7, v0
    v_cmp_gt_u32 vcc, L_codeend-L_pc-64, v3
    s_cbranch_vccz L_nopf
    s_mov_b64 exec, vcc
    global_load_dword v164, v3, s[28:29]
    s_mov_b64 exec, -1
L_nopf:
    """)
E(f"""
    v_lshrrev_b32 v2, 6, v0
    v_and_b32 v1, 63, v0
    v_readfirstlane_b32 s3, v2
    {"s_bfe_u32 s%d, s2, 0x10002" % S_HALF if OPT["hb"] else "s_and_b32 s%d, s2, 1" % S_HALF}
    {"s_and_b32 s30, s2, 3" if OPT["hb"] else "s_bfe_u32 s30, s2, 0x20001"}
    s_lshl_b32 s30, s30, 5
    s_lshr_b32 s31, s2, 3
    s_add_u32 s{S_BUCK}, s30, s31
    s_cmp_ge_u32 s2, 256
    s_cbranch_scc1 L_end
    s_cmp_ge_u32 s{S_BUCK}, {NBUCK}
    s_cbranch_scc1 L_end
    s_lshl_b32 s{S_P}, s{S_BUCK}, 1
    s_add_u32 s{S_P}, s{S_P}, s{S_HALF}
    s_mov_b32 s{S_SAFE}, 0
L_restart:
    s_cmp_ge_u32 s3, 4
    s_cbranch_scc1 L_nosort
    v_mov_b32 v48, 0
    v_mov_b32 v49, 0
    v_mov_b32 v50, 0
    v_mov_b32 v51, 0
    v_lshlrev_b32 v10, 4, v1
    ds_write_b128 v10, v[48:51] offset:{L_SCNT}
    s_mul_i32 s30, s{S_P}, {CHUNK*4}
    v_lshl_add_u32 v3, v0, 4, s30
    s_add_u32 s30, s30, 4096
    v_lshl_add_u32 v9, v0, 2, s30
    v_lshlrev_b32 v10, 1, v3
    v_lshlrev_b32 v11, 1, v9
    v_mov_b32 v17, {WS_TAG}
    s_waitcnt lgkmcnt(0)
    global_load_dwordx4 v[4:7], v3, s[10:11]
    global_load_dword v8, v9, s[10:11]
    global_load_dword v43, v17, s[20:21]
    s_barrier                               ; B0
    global_load_dwordx4 v[12:15], v3, s[8:9]
    global_load_dword v16, v9, s[8:9]
    global_load_dwordx4 v[52:55], v10, s[6:7]
    global_load_dwordx4 v[56:59], v10, s[6:7] offset:16
    global_load_dwordx2 v[60:61], v11, s[6:7]
    s_barrier                               ; B0b
    s_branch L_sort
L_nosort:
    s_and_b32 s32, s3, 3                    ; tau
    s_lshr_b32 s33, s3, 3
    v_lshrrev_b32 v2, 4, v1                 ; g
    v_and_b32 v4, 15, v1
    s_lshl_b32 s30, s32, 2
    v_add_u32 v6, s30, v2                   ; row&15
    v_xor_b32 v7, v4, v6
    v_lshlrev_b32 v7, 4, v7
    v_lshl_add_u32 v7, v6, 8, v7
    s_mul_i32 s73, s{S_BUCK}, {NB*256}
    s_mul_i32 s31, s33, {3*4096}
    s_add_u32 s30, s73, s31
    v_add_u32 v7, s30, v7
    v_add_u32 v8, 0x1000, v7
    v_add_u32 v9, 0x2000, v7
    s_lshl_b32 s30, s32, 10
    s_add_u32 s31, s31, s30
    s_add_u32 m0, s31, {L_X}
    v_subrev_u32 v30, 256, v0               ; t = 0..511
    v_lshlrev_b32 v31, 4, v30
    v_mov_b32 v36, 0
    v_mov_b32 v37, 0
    v_mov_b32 v38, 0
    v_mov_b32 v39, 0
    v_add_u32 v40, {L_EA}, v31
    ds_write_b128 v40, v[36:39]
    ds_write_b128 v40, v[36:39] offset:8192
    s_waitcnt lgkmcnt(0)
    s_barrier                               ; B0
    global_load_lds_dwordx4 v7, s[4:5]
    s_add_u32 m0, m0, 0x1000
    s_cmp_lg_u32 s33, 0
    global_load_lds_dwordx4 v8, s[4:5]
    s_cbranch_scc1 L_x2
    s_add_u32 m0, m0, 0x1000
    s_nop 0
    global_load_lds_dwordx4 v9, s[4:5]
L_x2:
    s_barrier
    v_mov_b32 v32, {NULL_SRC}
    v_mov_b32 v33, v32
    v_mov_b32 v34, v32
    v_mov_b32 v35, v32
""")
def cover(lo, n): return list(range(lo, n - 8192, 8192)) + [n - 8192]
for o in cover(16384, L_EAEND - L_EA): E(f"ds_write_b128 v40, v[36:39] offset:{o}")
for o in cover(0, SRCB): E(f"ds_write_b128 v31, v[32:35] offset:{L_SRC + o}")
E(f"""
    v_lshrrev_b32 v5, 3, v1
    v_and_b32 v3, 1, v2
    s_and_b32 s30, s3, 1
    s_lshl_b32 s30, s30, 1
    v_or_b32 v3, s30, v3                    ; sigma
    v_lshlrev_b32 v3, 1, v3
    v_and_b32 v20, 7, v1
    v_xor_b32 v3, v3, v20
    v_lshlrev_b32 v3, 4, v3
    v_lshl_add_u32 v10, v5, 8, v3
    s_sub_u32 s28, s3, 4
    s_lshl_b32 s30, s28, 11
    s_lshl_b32 s31, s{S_HALF}, 7
    s_add_u32 s30, s30, s31
    v_add_u32 v10, s30, v10
    v_add_u32 v11, 0x4000, v10
    s_lshl_b32 s28, s28, 10
    s_add_u32 s34, s16, {128*256}
    s_addc_u32 s35, s17, 0
    s_cmp_lg_u32 s3, 11
    s_cbranch_scc1 L_noc
    v_and_b32 v5, 3, v5
    v_lshlrev_b32 v20, 4, v20
    v_lshl_add_u32 v5, v5, 8, v20
    s_add_u32 s31, s31, {256*256}
    s_mov_b32 m0, {L_C}
    v_add_u32 v5, s31, v5
    global_load_lds_dwordx4 v5, s[16:17]
L_noc:
    s_add_u32 m0, s28, {L_WBV}
""")
for ti, base in enumerate((34, 14)):
    for n in range(2):
        E(f"s_nop 0\nglobal_load_lds_dwordx4 v{10+n}, s[{base}:{base+1}]")
        if not (ti == 1 and n == 1):
            E(f"s_add_u32 m0, m0, 0x2000")
if OPT["wgate"]:
    E(f"""
    v_mov_b32 v7, 0x1000000
    s_mov_b64 exec, 1
    ds_add_u32 v36, v7 offset:{L_CTR}
    s_mov_b64 exec, -1
    """)
STAMP(1)
E(f"""
    v_and_b32 v32, 3, v30           ; quarter
    v_bfe_u32 v33, v30, 3, 3
    v_lshrrev_b32 v34, 5, v30
    s_and_b32 s30, s3, 3
    s_add_u32 s30, s30, 16
    s_cmp_ge_u32 s3, 8
    s_cselect_b32 s31, 7, 3
    s_cselect_b32 s29, 6, 12
    s_cselect_b64 vcc, -1, 0
    v_and_b32 v33, s31, v33
    v_mov_b32 v35, s30
    v_cndmask_b32 v34, v34, v35, vcc
    v_lshl_add_u32 v32, v34, 2, v32
    v_bfe_u32 v34, v30, 2, 1
    v_mul_u32_u24 v35, {NSTR - SSTR}, v34
    v_mul_u32_u24 v41, {L_NODE - L_SRC}, v34
    v_mul_u32_u24 v42, {L_SRC + 80*SSTR - L_DUM}, v34
    v_lshlrev_b32 v43, 4, v34
    v_add_u32 v35, {SSTR}, v35
    v_add_u32 v41, {L_SRC}, v41
    v_sub_u32 v42, {L_SRC + 80*SSTR}, v42
    v_sub_u32 v43, 16, v43
    v_lshlrev_b32 v33, 2, v33
    v_mad_u32_u24 v41, v32, v35, v41
    v_mad_u32_u24 v41, v33, v43, v41
    v_lshlrev_b32 v35, 5, v35
    v_mul_u32_u24 v34, 6, v43
    v_sub_u32 v35, v35, v34
    v_add_u32 v34, 2, v33
    v_cmp_gt_u32 s[48:49], 6, v33
    v_cmp_gt_u32 s[50:51], 6, v34
    v_cmp_gt_u32 s[52:53], s29, v33
    v_cmp_gt_u32 s[54:55], s29, v34
    v_cndmask_b32 v44, v35, 0, s[48:49]
    v_cndmask_b32 v46, v35, 0, s[50:51]
    v_add_u32 v44, v41, v44
    v_lshl_add_u32 v46, v43, 1, v46
    v_add_u32 v46, v41, v46
    v_add_u32 v45, v44, v43
    v_add_u32 v47, v46, v43
    v_cndmask_b32 v44, v42, v44, s[52:53]
    v_cndmask_b32 v45, v42, v45, s[52:53]
    v_cndmask_b32 v46, v42, v46, s[54:55]
    v_cndmask_b32 v47, v42, v47, s[54:55]
    ds_write_b128 v31, v[44:47] offset:{L_LIST}
    s_cmp_ge_u32 s3, 6
    s_cbranch_scc1 L_pf3
    v_mul_u32_u24 v42, {SSTR}, v30
    v_add_u32 v42, {L_SRC}, v42
    v_lshlrev_b32 v41, 2, v30
    ds_write_b32 v41, v42 offset:{L_CNT}
L_pf3:
    v_bfe_u32 v3, v1, 2, 2                  ; r
    v_lshl_add_u32 v5, v2, 3, v3            ; 8g + r
    v_lshrrev_b32 v3, 1, v3
    v_and_b32 v6, 1, v2
    v_lshl_or_b32 v3, v6, 1, v3             ; sigma
    v_xor_b32 v3, s32, v3
    v_lshlrev_b32 v3, 5, v3
    v_lshl_add_u32 v10, v5, 7, v3
    v_and_b32 v3, 3, v1
    v_lshl_add_u32 v10, v3, 3, v10
    s_mul_i32 s31, s33, {L_WAU - L_WBV}
    s_add_u32 s31, s31, {L_WBV}
    v_add_u32 v10, s31, v10
    v_xor_b32 v3, v2, v4
    v_lshlrev_b32 v3, 4, v3
    v_lshl_add_u32 v12, v4, 8, v3
    v_add_u32 v12, {L_X}, v12
    v_xor_b32 v13, 64, v12
    v_xor_b32 v14, 0x80, v12
    v_xor_b32 v15, 0xc0, v12
    s_mul_i32 s30, s{S_HALF}, {G_HALF}
    s_add_u32 s30, s30, s73
    s_lshl_b32 s31, s32, 6
    s_add_u32 s30, s30, s31
    v_lshlrev_b32 v11, 10, v2
    v_lshl_add_u32 v11, v4, 2, v11
    v_add_u32 v11, s30, v11
    s_lshl_b32 s31, s32, 5
    s_add_u32 s31, s31, {L_NODE}
    v_mul_u32_u24 v16, {NSTR}, v4
    v_lshl_add_u32 v16, v2, 3, v16
    v_add_u32 v16, s31, v16
    s_mov_b32 s40, {f32(-LOG2E)}
    s_mov_b32 s42, {f32(2.0**32)}
    s_mov_b32 s44, 0x07060100
    s_mov_b32 s45, 0x07060302
    s_mov_b32 s46, 0x3f80
    v_mov_b32 v17, {f32(2.0**-100)}
    v_mov_b32 v19, 1
    v_mov_b32 v18, 0
""")
get_tag("g", 160)
E(f"""
    s_waitcnt vmcnt(0)
    s_mov_b64 exec, 1
    ds_add_u32 v18, v19 offset:{L_CTR}
    s_mov_b64 exec, -1
""")
STAMP(2)
lds_wait(L_CTR, 0xff, 8, "g1")
STAMP(3)
NP = 8
RA = 72; RB = RA + 4*NP; RAD = RB + 4*NP
J3N, J12, J3N2, CELL, ROWA, FOUR, L0M, ACC, ENT, CAD = 156, 157, 158, 159, 160, 161, 162, 163, 164, 166
def rec_setup():
    E(f"""
    v_and_b32 v3, 15, v1                    ; j
    v_lshrrev_b32 v2, 4, v1
    v_lshl_add_u32 v{CELL}, v2, 3, v3
    s_lshl_b32 s30, s29, 5
    v_add_u32 v{CELL}, s30, v{CELL}
    s_lshl_b32 s30, s{S_BUCK}, 3
    s_add_u32 s30, s30, {WS_ROW}
    v_lshl_add_u32 v{ROWA}, v{CELL}, 10, s30
    v_cmp_gt_u32 s[66:67], {NP}, v3
    v_cmp_gt_u32 vcc, {NCHUNK}, v{CELL}
    v_mov_b32 v{ENT}, 0
    s_and_b64 s[66:67], s[66:67], vcc
    s_mov_b64 exec, s[66:67]
    global_load_dwordx2 v[{ENT}:{ENT+1}], v{ROWA}, s[20:21] sc1
    s_mov_b64 exec, -1
    v_mul_u32_u24 v{CELL}, {SORTB//4}, v{CELL}
    v_add_u32 v{CELL}, {WS_REC//4}, v{CELL}
    v_mul_u32_u24 v{J12}, 12, v3
    v_mul_u32_u24 v{J3N}, 3, v3
    v_not_b32 v{J3N}, v{J3N}
    v_subrev_u32 v{J3N2}, 48, v{J3N}
    v_subrev_u32 v{L0M}, 1, v3
    v_ashrrev_i32 v{L0M}, 31, v{L0M}
    v_mov_b32 v{FOUR}, 4
    """)
WF = 20; XF = 52; AC = 132
def wreads(ks):
    for t in range(2):
        for rd in range(2):
            r = WF + 16*t + 4*ks + 2*rd
            E(f"ds_read_b64_tr_b16 v[{r}:{r+1}], v10 offset:{t*16384 + ks*4096 + rd*512}")
def xread(rt, ks):
    r = XF + 16*rt + 4*ks
    return f"ds_read_b128 v[{r}:{r+3}], v{12+ks} offset:{rt*4096}"
def mf(rt, ks, transposed):
    for t in range(2):
        a = XF + 16*rt + 4*ks; w = WF + 16*t + 4*ks; d = AC + 8*(rt % 3) + 4*t
        c = "0" if ks == 0 else f"v[{d}:{d+3}]"
        if transposed: a, w = w, a
        E(f"v_mfma_f32_16x16x32_bf16 v[{d}:{d+3}], v[{a}:{a+3}], v[{w}:{w+3}], {c}")
def gemm(transposed, finish, before_first):
    for ks in range(3):
        E(xread(0, ks)); wreads(ks)
    E("s_waitcnt lgkmcnt(10)"); mf(0, 0, transposed)
    E(xread(0, 3)); wreads(3)
    E("s_waitcnt lgkmcnt(10)"); mf(0, 1, transposed)
    for ks in range(4): E(xread(1, ks))
    E("s_waitcnt lgkmcnt(9)"); mf(0, 2, transposed)
    for ks in range(4): E(xread(2, ks))
    E("s_waitcnt lgkmcnt(8)"); mf(0, 3, transposed)
    for ks in range(4): E(xread(3, ks))
    E("s_waitcnt lgkmcnt(8)")
    for ks in range(4):
        mf(1, ks, transposed); E(xread(4, ks))
    E(f"""
    s_mov_b64 exec, 1
    ds_add_u32 v18, v19 offset:{L_RD}
    s_mov_b64 exec, -1
    """)
    before_first()
    finish(0)
    E("s_waitcnt lgkmcnt(0)")
    for rt in range(2, 5):
        for ks in range(4): mf(rt, ks, transposed)
        finish(rt-1)
    finish(4)
def pack(rt):
    b = AC + 8*(rt % 3); h = b + 4
    for r in range(4): E(f"v_mul_f32 v{b+r}, s40, v{b+r}")
    for r in range(4): E(f"v_fma_f32 v{h+r}, v{h+r}, s42, v17")
    E(f"""
    v_cvt_pk_bf16_f32 v4, v{b}, v{b+1}
    v_cvt_pk_bf16_f32 v5, v{b+2}, v{b+3}
    v_xor_b32 v2, 0x80008000, v4
    v_xor_b32 v3, 0x80008000, v5
    v_sub_u32_sdwa v{h}, v{h}, sext(v2) dst_sel:DWORD dst_unused:UNUSED_PAD src0_sel:DWORD src1_sel:WORD_0
    v_sub_u32_sdwa v{h+1}, v{h+1}, sext(v2) dst_sel:DWORD dst_unused:UNUSED_PAD src0_sel:DWORD src1_sel:WORD_1
    v_sub_u32_sdwa v{h+2}, v{h+2}, sext(v3) dst_sel:DWORD dst_unused:UNUSED_PAD src0_sel:DWORD src1_sel:WORD_0
    v_sub_u32_sdwa v{h+3}, v{h+3}, sext(v3) dst_sel:DWORD dst_unused:UNUSED_PAD src0_sel:DWORD src1_sel:WORD_1
    """)
    for r in range(4):
        E(f"v_perm_b32 v{h+r}, v{h+r}, v{4 + (r>>1)}, s{44 + (r&1)}")
        E(f"global_store_dword v11, v{h+r}, s[20:21] offset:{256*r} sc1")
    if rt < 4: E("v_add_u32 v11, 0x1000, v11")
def fin(rt):
    a = AC + 8*(rt % 3); u = a + 4
    for r in range(4): E(f"v_mul_f32 v{a+r}, s40, v{a+r}")
    for r in range(4): E(f"v_mul_f32 v{u+r}, s42, v{u+r}")
    E(f"""
    v_cvt_pk_bf16_f32 v{a}, v{a}, v{a+1}
    v_cvt_pk_bf16_f32 v{a+1}, v{a+2}, v{a+3}
    v_cvt_f64_f32 v[2:3], v{u}
    v_cvt_f64_f32 v[4:5], v{u+1}
    v_cvt_f64_f32 v[6:7], v{u+2}
    v_cvt_f64_f32 v[8:9], v{u+3}
    ds_write_b64 v16, v[{a}:{a+1}] offset:512
    ds_write2_b64 v16, v[2:3], v[4:5] offset0:0 offset1:16
    ds_write2_b64 v16, v[6:7], v[8:9] offset0:32 offset1:48
    """)
    if rt < 4: E(f"v_add_u32 v16, {16*NSTR}, v16")
E(f"""
    s_cmp_lg_u32 s33, 0
    s_cbranch_scc1 L_gemm2
    s_cmp_lg_u32 s{S_SAFE}, 0
    s_cbranch_scc1 L_nog1
    s_setprio 2
""")
gemm(False, pack, lambda: lds_wait(L_CTR, {1: 0x80000, 2: 0xc0000}[OPT["hold"]], 0, "hold", sleep=1, ne=True) if OPT["hold"] else None)
E("s_setprio 0")
if OPT["gate"]:
    E(f"""
    s_mov_b64 exec, 1
    ds_add_u32 v18, v19 offset:{L_GST}
    s_mov_b64 exec, -1
    """)
STAMP(4)
main_consts()
E(f"""
    s_lshl_b32 s30, s{S_P}, 7
    s_add_u32 s30, s30, {WS_FL2}
    v_mov_b32 v60, s30
    v_mov_b32 v62, s{S_TAG}
    v_mov_b32 v63, s{S_TAG+1}
    v_mov_b32 v2, 0
    v_mov_b32 v3, 1
    s_lshl_b32 s30, s32, 13
    s_lshl_b32 s31, s{S_HALF}, 7
    s_add_u32 s30, s30, s31
    s_add_u32 s30, s30, {WS_FL2}
    v_lshl_add_u32 v64, v1, 8, s30
    s_mov_b64 exec, 1
    s_waitcnt vmcnt(0)
    ds_add_rtn_u32 v61, v2, v3 offset:{L_DONE2}
    s_waitcnt lgkmcnt(0)
    v_readfirstlane_b32 s30, v61
    s_cmp_lg_u32 s30, 3
    s_cbranch_scc1 L_nofl
    global_store_dwordx2 v60, v[62:63], s[20:21] sc1
    ds_add_u32 v2, v3 offset:{L_DONE2}
L_nofl:
""")
STAMP(5)
if OPT["p2gate"]:
    E("s_mov_b64 exec, -1")
    lds_wait(L_CTR, 0xff0000, 0x080000, "pg", sleep=1)
    E("s_mov_b32 exec_hi, 0")
if OPT["p2wait"]: E(f"s_sleep {OPT['p2wait']}")
STAMP(6)
E(f"""
    s_cmp_eq_u32 s32, 3
    s_cselect_b32 exec_lo, 0x1fffffff, -1
    s_mov_b32 s31, {POLL_MAX}
L_p2:
    global_load_dwordx2 v[66:67], v64, s[20:21] sc1
    s_sub_u32 s31, s31, 1
    s_cbranch_scc1 L_p2d
    s_waitcnt vmcnt(0)
    v_cmp_ne_u64 vcc, s[{S_TAG}:{S_TAG+1}], v[66:67]
    s_and_b64 exec, exec, vcc
    s_cbranch_scc0 L_p2d
    s_sleep {OPT["p2sleep"]}
    s_branch L_p2
L_p2d:
    s_mov_b64 exec, -1
""")
STAMP(7)
if OPT["gpf"]:
    E(f"""
    s_mul_i32 s30, s32, {2560*256}
    s_lshr_b32 s31, s2, 3
    s_mul_i32 s31, s31, {160*128}
    s_add_u32 s30, s30, s31
    v_lshl_add_u32 v3, v1, 7, s30
    v_min_u32 v3, {G_HALF - 128}, v3
    s_mul_i32 s30, s{S_HALF}, {G_HALF}
    v_add_u32 v3, s30, v3
    {"s_bfm_b64 exec, %d, 0" % OPT["gpf"] if OPT["gpf"] < 64 else ""}
    global_load_dword v35, v3, s[20:21] sc1
    s_mov_b64 exec, -1
    """)
E(f"""
    s_branch L_b4
L_nog1:
    s_mov_b64 exec, 1
    ds_add_u32 v18, v19 offset:{L_RD}
    s_mov_b64 exec, -1
    s_branch L_rec
L_gemm2:
""")
E("s_sub_u32 s29, s3, 4")
rec_setup()
for rt in range(5):
    for ks in range(4): E(xread(rt, ks))
E(f"""
    s_mov_b64 exec, 1
    ds_add_u32 v18, v19 offset:{L_RD}
    s_mov_b64 exec, -1
""")
lds_wait(L_RD, 0xff, 8, "rd")
lds_wait(L_CTR, 0xff00, 0x400, "au")
for ks in range(4): wreads(ks)
for ks in range(4):
    E(f"s_waitcnt lgkmcnt({12 - 4*ks})"); mf(0, ks, True)
for rt in range(1, 5):
    for ks in range(4): mf(rt, ks, True)
    fin(rt-1)
fin(4)
STAMP(4)
E(f"""
    s_branch L_rec
L_sort:
""")
STAMP(1)
E(f"""
    s_mov_b32 s40, {f32(-LOG2E)}
    s_mov_b32 s46, 0x3f80
    s_cmp_lg_u32 s{S_SAFE}, 0
    s_cbranch_scc1 L_sortskip
    v_mov_b32 v21, 1
    v_mov_b32 v20, 3
    s_mov_b32 s31, 52429
    s_movk_i32 s32, -20
    v_lshlrev_b32 v9, 3, v1
    v_lshlrev_b32 v33, 4, v0
    s_mul_i32 s30, s{S_P}, {SORTB}
    s_add_u32 s30, s30, {WS_REC + 4096}
    v_add_u32 v32, s30, v33
    v_add_u32 v34, 8192, v32
    s_lshl_b32 s30, s{S_P}, 10
    s_add_u32 s30, s30, {WS_ROW}
    v_lshl_add_u32 v42, v1, 4, s30
    s_mov_b32 s34, {POLL_MAX}
    s_setprio 3
    s_waitcnt vmcnt(6)
""")
STAMP(2)
FSTAMP(1)
for i in range(5):
    E(f"""
    v_mul_u32_u24 v{22+i}, s31, v{4+i}
    v_lshrrev_b32 v{22+i}, 22, v{22+i}
    v_lshlrev_b32 v{22+i}, 2, v{22+i}        ; bucket*4
    ds_add_rtn_u32 v{27+i}, v{22+i}, v20 offset:{L_SCNT}
    """)
E(f"""
    s_mov_b64 exec, 1
    s_cmp_lg_u32 s3, 0
    s_cbranch_scc1 L_notag
    s_waitcnt vmcnt(5)
    ds_write_b32 v48, v43 offset:{L_SCNT + 125*4}
L_notag:
    ds_add_u32 v48, v21 offset:{L_SCNT + 127*4}
    s_mov_b64 exec, -1
L_s1:
    ds_read_b32 v38, v48 offset:{L_SCNT + 127*4}
    ds_read_b64 v[36:37], v9 offset:{L_SCNT}
    s_sub_u32 s34, s34, 1
    s_cbranch_scc1 L_s1d
    s_waitcnt lgkmcnt(0)
    v_readfirstlane_b32 s30, v38
    s_cmp_lg_u32 s30, 4
    s_cbranch_scc1 L_s1
L_s1d:
""")
FSTAMP(2)
E(f"""
    v_add3_u32 v39, v36, v37, 2
    v_add3_u32 v38, v36, v37, 2
    v_readlane_b32 s{S_TAGRAW}, v37, 62
""")
fill = []
for i in range(5):
    fill += [f"v_mad_i32_i24 v{4+i}, v{22+i}, s32, v{4+i}", f"v_lshlrev_b32 v{4+i}, 24, v{4+i}"]
for k, m in enumerate(SCAN):
    E(f"v_add_u32_dpp v39, v39, v39 {m}")
    for x in fill[2*k:2*k+2]: E(x)
E(f"""
    v_sub_u32 v40, v39, v38
    v_add3_u32 v41, v40, v36, 1
    s_mov_b32 s30, {L_SORT}
    v_lshl_add_u32 v38, v40, 2, s30
    v_lshl_add_u32 v39, v41, 2, s30
    ds_write_b64 v9, v[38:39] offset:{L_SOFF}
""")
for i in range(5):
    E(f"ds_read_b32 v{22+i}, v{22+i} offset:{L_SOFF}")
finish_tag()
E(f"""
    s_cmp_lg_u32 s3, 0
    s_cbranch_scc1 L_nopub
    s_and_b32 s35, s{S_TAG+1}, 0xff000000
    v_mov_b32 v45, s{S_TAG}
    v_mov_b32 v47, s{S_TAG}
    v_lshl_or_b32 v44, v36, 12, v40
    v_lshl_or_b32 v46, v37, 12, v41
    v_or_b32 v44, s35, v44
    v_or_b32 v46, s35, v46
    global_store_dwordx4 v42, v[44:47], s[20:21] sc1
    s_waitcnt vmcnt(1)
    s_branch L_pub
L_nopub:
    s_cmp_lg_u32 s3, 1
    s_cbranch_scc1 L_nochk
    v_mov_b32 v44, s{S_TAG+1}
    s_mov_b32 exec_hi, 0x7fffffff
    ds_add_u32 v38, v44
    ds_add_u32 v39, v44
    s_mov_b32 exec_hi, -1
L_nochk:
    s_waitcnt vmcnt(0)
L_pub:
""")
STAMP(4)
FSTAMP(3)
for i in range(5): E(f"v_lshl_or_b32 v{4+i}, v{12+i}, 8, v{4+i}")
E("s_waitcnt lgkmcnt(0)")
for i in range(5):
    E(f"""
    v_lshl_add_u32 v{27+i}, v{27+i}, 2, v{22+i}
    v_add3_u32 v{12+i}, v{52+2*i}, v{53+2*i}, v{4+i}
    ds_write2_b32 v{27+i}, v{52+2*i}, v{53+2*i} offset0:2 offset1:3
    ds_write_b32 v{27+i}, v{4+i} offset:4
    ds_sub_u32 v{22+i}, v{12+i}
    """)
E(f"""
    s_mov_b64 exec, 1
    ds_add_u32 v48, v21 offset:{L_SCNT + 126*4}
    s_mov_b64 exec, -1
""")
FSTAMP(4)
E(f"""
    s_mov_b32 s34, {POLL_MAX}
L_s2:
    ds_read_b32 v38, v48 offset:{L_SCNT + 126*4}
    {f"ds_read_b32 v39, v48 offset:{L_CTR}" if OPT["wgate"] else ""}
    ds_read_b128 v[72:75], v33 offset:{L_SORT}
    s_sub_u32 s34, s34, 1
    s_cbranch_scc1 L_s2d
    s_waitcnt lgkmcnt(1)
    v_readfirstlane_b32 s30, v38
""")
if OPT["wgate"]:
    E(f"""
    v_readfirstlane_b32 s31, v39
    s_lshr_b32 s31, s31, 24
    s_add_u32 s30, s30, s31
    """)
E(f"""
    s_cmp_lg_u32 s30, {12 if OPT["wgate"] else 4}
    s_cbranch_scc1 L_s2
L_s2d:
""")
FSTAMP(5)
E(f"""
    ds_read_b128 v[76:79], v33 offset:{L_SORT + 4096}
    ds_read_b128 v[80:83], v33 offset:{L_SORT + 8192}
    ds_read_b128 v[84:87], v33 offset:{L_SORT + 12288}
    s_waitcnt lgkmcnt(3)
    global_store_dwordx4 v32, v[72:75], s[20:21] offset:-4096 sc1
    s_waitcnt lgkmcnt(2)
    global_store_dwordx4 v32, v[76:79], s[20:21] sc1
    s_waitcnt lgkmcnt(1)
    global_store_dwordx4 v34, v[80:83], s[20:21] offset:-4096 sc1
    s_cmp_eq_u32 s3, 3
    s_cselect_b32 exec_hi, 0, -1
    s_waitcnt lgkmcnt(0)
    global_store_dwordx4 v34, v[84:87], s[20:21] sc1
    s_mov_b32 exec_hi, -1
""")
FSTAMP(6)
for k in range(4): E(f"ds_write_b128 v33, v[48:51] offset:{L_SORT + 4096*k}")
STAMP(3)
FSTAMP(7)
E(f"""
    s_branch L_sortdone
L_sortskip:
    s_waitcnt vmcnt(0)
L_sortdone:
    v_lshrrev_b32 v5, 3, v1
    v_bfe_u32 v3, v1, 4, 1
    v_lshlrev_b32 v3, 1, v3
    v_and_b32 v20, 7, v1
    v_xor_b32 v3, v3, v20
    v_lshlrev_b32 v3, 4, v3
    v_lshl_add_u32 v10, v5, 8, v3
    s_lshl_b32 s30, s{S_HALF}, 7
    s_and_b32 s31, s3, 1
    s_lshl_b32 s31, s31, 14
    s_add_u32 s30, s30, s31
    v_add_u32 v10, s30, v10
    v_xor_b32 v11, 64, v10
    v_add_u32 v12, 2048, v10
    v_add_u32 v13, 3072, v11
    v_add_u32 v11, 1024, v11
    s_lshl_b32 s30, s3, 13
    s_add_u32 m0, s30, {L_WAU}
    s_cmp_lt_u32 s3, 2
    s_cselect_b32 s34, s16, s12
    s_cselect_b32 s35, s17, s13
    global_load_lds_dwordx4 v10, s[34:35]
    global_load_lds_dwordx4 v11, s[34:35] offset:1024
    global_load_lds_dwordx4 v12, s[34:35] offset:2048
    global_load_lds_dwordx4 v13, s[34:35] offset:3072
    s_add_u32 m0, m0, 4096
    s_add_u32 s34, s34, 8192
    s_addc_u32 s35, s35, 0
    global_load_lds_dwordx4 v10, s[34:35]
    global_load_lds_dwordx4 v11, s[34:35] offset:1024
    global_load_lds_dwordx4 v12, s[34:35] offset:2048
    global_load_lds_dwordx4 v13, s[34:35] offset:3072
    s_mov_b32 s29, s3
""")
rec_setup()
E(f"""
L_rec:
""")
lds_wait(L_CTR, 0xff, 8, "r0")
main_consts()
STAMP(5)
E(f"""
    s_cmp_ge_u32 s3, 4
    s_cbranch_scc1 L_nod2
    v_mov_b32 v2, 0
    v_mov_b32 v3, 0x100
    s_mov_b64 exec, 1
    s_waitcnt vmcnt(0)
    ds_add_u32 v2, v3 offset:{L_CTR}
    s_mov_b64 exec, -1
L_nod2:
    s_cmp_lg_u32 s{S_SAFE}, 0
    s_cbranch_scc1 L_recskip
    s_lshr_b32 s35, s{S_TAG+1}, 24
    s_mov_b64 exec, s[66:67]
    s_mov_b32 s34, {POLL_MAX}
    s_branch L_p1c
L_p1:
    global_load_dwordx2 v[{ENT}:{ENT+1}], v{ROWA}, s[20:21] sc1
L_p1c:
    s_sub_u32 s34, s34, 1
    s_cbranch_scc1 L_toobig
    s_waitcnt vmcnt(0)
    v_cmp_ne_u32 vcc, s{S_TAG}, v{ENT+1}
    v_cmp_ne_u32_sdwa s[48:49], v{ENT}, s35 src0_sel:BYTE_3 src1_sel:DWORD
    s_or_b64 exec, vcc, s[48:49]
    s_cbranch_scc1 L_p1
    s_mov_b64 exec, -1
""")
STAMP(6)
if OPT["cnt"]: E(f"s_sub_u32 s{ST0+2}, {POLL_MAX+1}, s34\ns_mov_b32 s34, {POLL_MAX}")
E(f"""
    v_and_b32 v{CAD}, 0xfff, v{ENT}
    v_bfe_u32 v{ENT}, v{ENT}, 12, 12            ; 3*count
    v_add_lshl_u32 v{CAD}, v{CAD}, v{CELL}, 2
    v_cmp_ne_u32 vcc, 0, v{ENT}
    s_sub_u32 s30, 0, s{S_TAG+1}
    v_mov_b32 v2, s30
    v_cndmask_b32 v{ENT+1}, 0, v2, vcc
    v_cmp_lt_u32 vcc, 96, v{ENT}
    v_cmp_lt_u32 s[68:69], 48, v{ENT}
    s_cbranch_vccnz L_toobig
""")
for p in range(NP):
    E(f"""
    v_add_co_u32_dpp v2, vcc, v{ENT}, v{J3N} row_newbcast:{p} row_mask:0xf bank_mask:0xf
    v_add_u32_dpp v{RAD+p}, v{CAD}, v{J12} row_newbcast:{p} row_mask:0xf bank_mask:0xf
    s_mov_b64 s[{48+2*p}:{49+2*p}], vcc
    """)
lds_wait(L_CTR, 0xff00, 0x400, "r1")
if OPT["gate"]: lds_wait(L_GST, 0xff, 4, "gt")
if OPT["gate2"]:
    E("s_cmp_lt_u32 s3, 4\ns_cbranch_scc1 L_wd_g2")
    lds_wait(L_DONE2, 0xff, 5, "g2")
E(f"""
    s_or_b32 s68, s68, s69
    s_lshr_b32 s69, s68, 16
    s_or_b32 s68, s68, s69
""")
def mask2(p): return f"v_add_co_u32_dpp v2, vcc, v{ENT}, v{J3N2} row_newbcast:{p} row_mask:0xf bank_mask:0xf"
def loads(ps, lab):
    E(f"s_and_b32 s30, s68, {sum(1 << p for p in ps)}\ns_cbranch_scc0 L_nx{lab}")
    for p in ps:
        r = RB + 4*p
        E(f"""
        s_bitcmp1_b32 s68, {p}
        s_cbranch_scc0 L_nx{lab}{p}
        {mask2(p)}
        s_mov_b64 exec, vcc
        global_load_dwordx4 v[{r}:{r+3}], v{RAD+p}, s[20:21] offset:192 sc1
        s_mov_b64 exec, -1
L_nx{lab}{p}:
        """)
    E(f"L_nx{lab}:")
    for p in ps:
        r = RA + 4*p
        E(f"""
        s_mov_b64 exec, s[{48+2*p}:{49+2*p}]
        global_load_dwordx4 v[{r}:{r+3}], v{RAD+p}, s[20:21]{SC1 if (OPT["rsc1"] or lab != "m") else ""}
        """)
    E("s_mov_b64 exec, -1")
loads(range(NP), "m")
def issued():
    if OPT["p2gate"]:
        E(f"""
        v_mov_b32 v2, 0
        v_mov_b32 v3, 0x10000
        s_mov_b64 exec, 1
        ds_add_u32 v2, v3 offset:{L_CTR}
        s_mov_b64 exec, -1
        """)
issued()
STAMP(7)
def rank(r, m):
    E(f"""
    s_mov_b64 exec, {m}
    v_mul_u32_u24_sdwa v{r}, v{FOUR}, v{r+1} dst_sel:DWORD dst_unused:UNUSED_PAD src0_sel:DWORD src1_sel:BYTE_3
    v_and_b32 v{r+1}, {OPT['srcmask']}, v{r+1}
    ds_add_rtn_u32 v{r}, v{r}, v{FOUR} offset:{L_CNT}
    """)
def put(r, m):
    E(f"""
    s_mov_b64 exec, {m}
    v_lshlrev_b32 v2, 1, v{r}
    ds_write_b32 v{r}, v{r+1}
    ds_write_b64 v2, v[{r+2}:{r+3}] offset:{L_EA - 2*L_SRC}
    """)
retries = []
pending = []
for gi, grp in enumerate(((0, 1, 2, 3), (4, 5), (6, 7))):
    bits = sum(1 << p for p in grp); m32 = bits | (bits << 16)
    E(f"""
L_ck{gi}:
    s_mov_b32 vcc_lo, {m32}
    s_mov_b32 vcc_hi, {m32}
    v_cndmask_b32 v{ACC}, 0, v{ENT+1}, vcc
    s_and_b32 s30, s68, {bits}
    s_cbranch_scc1 L_xa{gi}
L_xb{gi}:
    """)
    def xacc():
        E(f"L_xa{gi}:\ns_waitcnt vmcnt({NP})")
        for p in grp:
            r = RB + 4*p
            E(f"""
            {mask2(p)}
            s_mov_b64 exec, vcc
            v_add3_u32 v{ACC}, v{ACC}, v{r+1}, v{r+2}
            v_add_u32 v{ACC}, v{ACC}, v{r+3}
            s_mov_b64 exec, -1
            """)
        E(f"s_branch L_xb{gi}")
    emit_to(outofline, xacc)
    for p in grp:
        r = RA + 4*p
        E(f"""
        s_waitcnt vmcnt({NP-1-p})
        s_mov_b64 exec, s[{48+2*p}:{49+2*p}]
        v_and_b32 v{r}, v{r}, v{L0M}
        v_add3_u32 v{ACC}, v{ACC}, v{r+2}, v{r+3}
        v_add3_u32 v{ACC}, v{ACC}, v{r}, v{r+1}
        """)
    E("s_mov_b64 exec, -1\ns_nop 0")
    for k in (1, 2, 4, 8):
        E(f"v_add_u32_dpp v{ACC}, v{ACC}, v{ACC} row_ror:{k} row_mask:0xf bank_mask:0xf")
        if k < 8: E("s_nop 1")
    E(f"v_cmp_ne_u32 vcc, 0, v{ACC}\ns_cbranch_vccnz L_rt{gi}")
    if OPT["rst"]: STAMP(1+gi)
    def retry():
        E(f"L_rt{gi}:\ns_sub_u32 s34, s34, 1\ns_cbranch_scc1 L_giveup")
        loads(grp, f"r{gi}_")
        E(f"s_waitcnt vmcnt(0)\ns_branch L_ck{gi}")
    emit_to(outofline, retry)
    for p in grp: rank(RA + 4*p, f"s[{48+2*p}:{49+2*p}]")
    E(f"s_and_b32 s30, s68, {bits}\ns_cbranch_scc1 L_ya{gi}\nL_yb{gi}:")
    def xput():
        E(f"L_ya{gi}:")
        for p in grp:
            r = RB + 4*p
            E(f"""
            s_bitcmp1_b32 s68, {p}
            s_cbranch_scc0 L_yn{p}
            s_mov_b64 exec, -1
            {mask2(p)}
            """)
            rank(r, "vcc")
            E("s_waitcnt lgkmcnt(0)")
            put(r, "vcc")
            E(f"L_yn{p}:")
        E(f"s_branch L_yb{gi}")
    emit_to(outofline, xput)
    for k, p in enumerate(grp):
        E(f"s_waitcnt lgkmcnt({len(grp) - 1 - k + 2*k})")
        put(RA + 4*p, f"s[{48+2*p}:{49+2*p}]")
    E("s_mov_b64 exec, -1")
E(f"""
    {f"s_sub_u32 s{ST0+4}, {POLL_MAX+1}, s34" if OPT["cnt"] else ""}
    s_branch L_b4
L_toobig:
    s_mov_b64 exec, -1
""")
issued()
E(f"""
L_giveup:
    v_mov_b32 v2, 0
    ds_write_b32 v2, v{FOUR} offset:{L_FLAG}
L_recskip:
    s_waitcnt vmcnt(0)
L_b4:
    s_setprio {OPT["p0"] if OPT["prio"] == 2 else 0}
    s_mul_i32 s30, s{S_HALF}, {G_HALF}
    {f"s_add_u32 s30, s30, {WS0}" if WS0 else ""}
    s_add_u32 s36, s20, s30
    s_addc_u32 s37, s21, 0
    s_mov_b32 s38, {OPT['nrec'] or G_HALF}
    s_mov_b32 s39, 0x20000
    s_mov_b32 s44, 128
    s_mov_b32 s45, 128
    ds_read_b128 v[60:63], v{LP}
    ds_read_b64 v[{AG}:{AG+1}], v{LP} offset:64
    ds_read_b64 v[{WN2}:{WN2+1}], v{LP} offset:72
    ds_read_b32 v{WE}, v{LP+1}
    s_waitcnt lgkmcnt(0)
    v_lshl_add_u64 v[{AG}:{AG+1}], v[{AG}:{AG+1}], 0, v[{LN8}:{LN8+1}]
    v_lshl_add_u32 v{WE}, v{WE}, 1, v{EAC}
""")
if OPT["warm"]:
    E(f"""
    s_barrier
    s_lshr_b32 s30, s2, 3
    s_mul_i32 s30, s30, 98304
    v_lshl_add_u32 v2, v0, 7, s30
    buffer_load_dword v3, v2, s[36:39], 0 offen sc1
    s_waitcnt vmcnt(0)
    s_sleep 40
    """)
STAMP(8)
E(f"""
    s_barrier                               ; B4
    s_cmp_lg_u32 s{S_SAFE}, 0
    s_cbranch_scc1 L_safe
    ds_read_b128 v[{T}:{T+3}], v60
    ds_read_b128 v[{T+4}:{T+7}], v61
    ds_read_b128 v[{T+8}:{T+11}], v62
    ds_read_b128 v[{T+12}:{T+15}], v63
    ds_read_b64 v[{XA}:{XA+1}], v{AG} offset:512
    ds_read_b64 v[{EA}:{EA+1}], v{WE}
    s_cmp_lt_u32 s3, {NW-2}
    s_cbranch_scc1 L_nobuild
    v_lshlrev_b32 v2, 3, v1
    v_mov_b32 v3, 0
    ds_read_b64 v[72:73], v2 offset:{L_CNT}
    ds_read_b32 v79, v3 offset:{L_FLAG}
    v_mul_u32_u24 v74, {2*SSTR}, v1
    v_add_u32 v74, {L_SRC + 96}, v74
    v_add_u32 v75, {SSTR}, v74
    v_mul_u32_u24 v82, {2*NSTR}, v1
    s_and_b32 s32, s3, 1
    s_mul_i32 s30, s32, {NSTR}
    s_add_u32 s30, s30, {L_NODE}
    v_add_u32 v82, s30, v82
    v_mov_b32 v83, v82
    s_mul_i32 s30, s32, {SSTR}
    v_add_u32 v80, s30, v74
    v_add_u32 v81, 16, v80
    s_waitcnt lgkmcnt(0)
    v_sub_u32 v72, v72, v74 clamp
    v_sub_u32 v73, v73, v75 clamp
    v_max_u32 v76, v72, v73
    v_cmp_lt_u32 vcc, 160, v76
    v_cmp_ne_u32 s[48:49], 0, v79
    v_add_u32 v74, 12, v72
    v_add_u32 v75, 12, v73
    s_or_b64 vcc, vcc, s[48:49]
    s_cbranch_scc1 L_bad
    v_add_u32 v72, 28, v72
    v_add_u32 v73, 28, v73
    v_lshrrev_b32 v74, 5, v74
    v_lshrrev_b32 v75, 5, v75
    v_lshrrev_b32 v72, 5, v72
    v_lshrrev_b32 v73, 5, v73
    v_sub_u32 v72, v72, v74
    v_sub_u32 v73, v73, v75
    v_lshl_or_b32 v72, v72, 16, v74
    v_lshl_or_b32 v73, v73, 16, v75
    v_add_u32 v76, v72, v73
    v_add_u32 v77, v72, v73
""")
scan(77)
E(f"""
    s_cmp_eq_u32 s32, 0
    s_cselect_b64 vcc, -1, 0
    v_readlane_b32 s30, v77, 63
    v_cndmask_b32 v76, v73, v76, vcc
    v_cndmask_b32 v72, v73, v72, vcc
    v_sub_u32 v77, v77, v76
    s_and_b32 s31, s30, 0xffff
    s_add_u32 s31, s31, 3
    s_lshr_b32 s31, s31, 2
    s_add_u32 s30, s30, 0x30000
    s_lshr_b32 s30, s30, 18
    s_lshl_b32 s33, s31, 1
    s_add_u32 s33, s33, s30
    s_cmp_gt_u32 s33, 112
    s_cbranch_scc1 L_bad
    s_lshl_b32 s30, s30, 8
    s_or_b32 s29, s30, s31
    v_and_b32 v74, 0xffff, v72
    v_and_b32 v76, 0xffff, v77
    s_mov_b32 s34, {L_LISTC}
    s_mov_b32 s35, {L_LIST + 384}
""")
def slotaddr():
    E(f"""
    v_add_u32 v78, 16, v76
    v_bfe_u32 v79, v76, 2, 2
    v_lshl_add_u32 v79, v79, 10, s34
    v_lshrrev_b32 v84, 5, v78
    v_lshl_add_u32 v79, v84, 7, v79
    v_bfe_u32 v84, v78, 4, 1
    v_lshl_add_u32 v79, v84, 3, v79
    v_lshrrev_b32 v84, 2, v76
    v_cmp_gt_u32 vcc, 32, v76
    v_lshl_add_u32 v84, v84, 9, s35
    v_and_b32 v78, 3, v76
    v_cndmask_b32 v79, v79, v84, vcc
    v_lshl_add_u32 v79, v78, 4, v79
    """)
E("""
L_bf:
    v_cmp_ne_u32 vcc, 0, v74
    s_and_b64 exec, exec, vcc
    s_cbranch_execz L_bfd
""")
slotaddr()
E(f"""
    ds_write_b64 v79, v[80:81]
    ds_write_b64 v79, v[82:83] offset:64
    v_add_u32 v80, 32, v80
    v_add_u32 v81, 32, v81
    v_add_u32 v76, 1, v76
    v_subrev_u32 v74, 1, v74
    s_branch L_bf
L_bfd:
    s_mov_b64 exec, -1
    v_lshrrev_b32 v77, 16, v77
    v_lshrrev_b32 v76, 3, v77
    v_add_u32 v76, s31, v76
    v_and_b32 v78, 3, v77
    v_lshl_add_u32 v76, v76, 2, v78
""")
slotaddr()
E(f"""
    v_and_b32 v78, 4, v77
    v_add_u32 v79, v79, v78
    v_cmp_lt_u32 vcc, 0xffff, v72
    s_mov_b64 exec, vcc
    ds_write2_b32 v79, v80, v82 offset0:0 offset1:16
    s_mov_b64 exec, -1
    s_mul_i32 s29, s29, s32
    s_add_u32 s29, s29, 0x10000
    s_branch L_built
L_bad:
    s_mov_b32 s29, 0x1010000
L_built:
    v_mov_b32 v2, s29
    s_mov_b64 exec, 1
    ds_add_u32 v3, v2 offset:{L_NST}
    s_add_u32 s30, s{S_P}, s32
    s_cmp_lg_u32 s30, 0
    s_cbranch_scc1 L_notw
    v_mov_b32 v2, s{S_TAG}
    v_mov_b32 v3, {WS_TAG}
    global_store_dword v3, v2, s[20:21]
L_notw:
    s_mov_b64 exec, -1
L_nobuild:
    s_waitcnt lgkmcnt(0)
""")
if EARLY:
    for q in range(0, 4, 2): E(f"v_mov_b64 v[{OFS+q}:{OFS+q+1}], v[{T+4*DIST+q}:{T+4*DIST+q+1}]")
for i in range(DIST):
    o = T + 4*i
    E(oadd(o)); E(oadd(o+2))
    if not OPT["nogather"]:
        for q in range(4): E(gload(G + 16*i + 4*q, o+q))
STAMP(9)
E(m_a(D0)); E(m_e(D0, 0))
E(f"""
    v_mov_b32 v2, 0
    s_mov_b32 s31, {POLL_MAX}
    s_waitcnt vmcnt({4*(DIST-1)})
""")
E(m_s(D0, A1, G)); E(m_s(D0, A2, G+8))
E(f"""
L_wn:
    ds_read_b32 v3, v2 offset:{L_NST}
    ds_read_b128 v[{WS4}:{WS4+3}], v{LP} offset:{128*((DIST+EARLY)//4)}
    s_sub_u32 s31, s31, 1
    s_cbranch_scc1 L_gosafe
    s_waitcnt lgkmcnt(0)
    v_readfirstlane_b32 s30, v3
    s_bitcmp1_b32 s30, 17
    s_cbranch_scc0 L_wn
    s_cmp_gt_u32 s30, {0 if OPT["force_safe"] else 0xffffff}
    s_cbranch_scc1 L_gosafe
    s_and_b32 s31, s30, 0xff
    s_bfe_u32 s30, s30, 0x80008
    s_lshl_b32 s32, s31, 1
    s_add_u32 s30, s30, s32
    s_lshl_b32 s32, s3, 1
    s_sub_i32 s30, s30, s32
    s_max_i32 s30, s30, 0
    s_cmp_ge_u32 s3, 8
    s_cbranch_scc1 L_nc
    s_min_u32 s30, s30, 2
    s_add_u32 s{S_R}, s30, 12
    s_cmp_ge_u32 s3, s31
    s_cselect_b32 s30, 0x2000, 0
    s_or_b32 s{S_M}, s30, 0x5041
    s_branch L_nd
L_nc:
    s_add_u32 s32, s30, 7
    s_lshr_b32 s32, s32, 3
    s_lshl_b32 s32, s32, 1
    s_and_b32 s30, s30, 7
    s_cmp_eq_u32 s30, 1
    s_subb_u32 s32, s32, 0
    s_add_u32 s{S_R}, s32, 6
    s_sub_i32 s31, s31, s3
    s_add_i32 s31, s31, 3
    s_max_i32 s31, s31, 0
    s_lshr_b32 s31, s31, 2
    s_lshl_b32 s31, s31, 1
    s_add_u32 s31, s31, 7
    s_lshl_b32 s31, -1, s31
    s_or_b32 s{S_M}, s31, 0x55555541
L_nd:
    s_mov_b32 s{S_IT}, {(1 << OPT["pa"]) | (1 << OPT["pb"]) | (1 << OPT["pc"]) if OPT["prio"] == 2 else 0}
""")
if OPT["prio"]: E(f"s_setprio {OPT['p1']}")
STAMP(10)
if OPT["ptime"]: E("v_mov_b32 v35, 0\nv_mov_b32 v68, 0")
if OPT["stamps"] == 1: E(f"s_memtime s[{ST0+24}:{ST0+25}]\ns_waitcnt lgkmcnt(0)")
for u in range(4): phase(u, True)
for u in range(4): phase(u, False)
E(f"""
L_mdone:
    s_waitcnt lgkmcnt(0)
""")
STAMP(11)
if OPT["ptime"]:
    E(f"""
    s_lshl_b32 s30, s2, 4
    s_add_u32 s30, s30, s3
    s_lshl_b32 s30, s30, 8
    s_add_u32 s30, s30, 0xc00000
    v_lshl_add_u32 v2, v1, 2, s30
    s_mov_b32 exec_hi, 0
    global_store_dword v2, v35, s[20:21]
    global_store_dword v2, v68, s[20:21] offset:128
    s_mov_b64 exec, -1
    """)
if OPT["stamps"] == 1:
    E(f"s_memtime s[28:29]\ns_waitcnt lgkmcnt(0)\ns_sub_u32 s{ST0+24}, s28, s{ST0+24}")
E(f"""
    v_lshrrev_b32 v2, 5, v0
    v_and_b32 v3, 31, v0
    v_mul_u32_u24 v4, {NSTR}, v2
    v_and_b32 v5, 1, v3
    v_lshl_add_u32 v4, v5, 8, v4
    v_lshrrev_b32 v5, 1, v3
    v_lshl_add_u32 v4, v5, 3, v4
    v_add_u32 v4, {L_NODE}, v4
    s_mul_i32 s30, s{S_BUCK}, {NB*256}
    s_lshl_b32 s31, s{S_HALF}, 7
    s_add_u32 s30, s30, s31
    v_lshlrev_b32 v3, 2, v3
    v_lshl_add_u32 v5, v2, 8, v3
    v_add_u32 v5, s30, v5
    v_add_u32 v6, {24*256}, v5
    v_add_u32 v7, {48*256}, v5
    v_add_u32 v8, {72*256}, v5
    s_mov_b32 s32, {f32(2.0**-32)}
    s_mov_b32 s34, {f32(-LOG2E * 2.0**-32)}
    v_mov_b32 v9, 0x207
    s_barrier                               ; B5
""")
OSC = {0: "", 1: " sc1", 2: " nt"}[OPT["osc"]]
def epi(us):
    for u in us: E(f"ds_read_b64 v[{12+4*u}:{13+4*u}], v4 offset:{24*NSTR*u}\nds_read_b64 v[{14+4*u}:{15+4*u}], v4 offset:{24*NSTR*u + 128}")
    E("s_waitcnt lgkmcnt(0)")
    for u in us: E(f"v_cvt_f32_f64 v{28+2*u}, v[{12+4*u}:{13+4*u}]\nv_cvt_f32_f64 v{29+2*u}, v[{14+4*u}:{15+4*u}]")
    for u in us: E(f"v_pk_mul_f32 v[{36+2*u}:{37+2*u}], v[{28+2*u}:{29+2*u}], s[34:35] op_sel_hi:[1,0]")
    for u in us: E(f"v_exp_f32 v{36+2*u}, v{36+2*u}\nv_exp_f32 v{37+2*u}, v{37+2*u}")
    for u in us: E(f"v_pk_mul_f32 v[{28+2*u}:{29+2*u}], v[{28+2*u}:{29+2*u}], s[32:33] op_sel_hi:[1,0]")
    for u in us: E(f"v_pk_add_f32 v[{36+2*u}:{37+2*u}], v[{36+2*u}:{37+2*u}], 1.0 op_sel_hi:[1,0]")
    for u in us: E(f"v_rcp_f32 v{36+2*u}, v{36+2*u}\nv_rcp_f32 v{37+2*u}, v{37+2*u}")
    E("v_pk_add_f32 v[10:11], v[28:29], v[30:31]")
    for u in us: E(f"v_pk_mul_f32 v[{36+2*u}:{37+2*u}], v[{28+2*u}:{29+2*u}], v[{36+2*u}:{37+2*u}]")
    for u in us: E(f"v_cvt_pk_bf16_f32 v{44+u}, v{36+2*u}, v{37+2*u}\nglobal_store_dword v{5+u}, v{44+u}, s[18:19]{OSC}")
    for u in us[2:]: E(f"v_pk_add_f32 v[10:11], v[10:11], v[{28+2*u}:{29+2*u}]")
E("s_cmp_ge_u32 s3, 4\ns_cbranch_scc1 L_e3")
epi([0, 1, 2, 3])
E("s_branch L_e4\nL_e3:")
epi([0, 1, 2])
E(f"""
L_e4:
    v_add_f32 v10, v10, v11
    v_cmp_class_f32 vcc, v10, v9
    v_mov_b32 v2, 0
    s_cmp_lg_u32 s{S_SAFE}, 0
    s_cbranch_scc1 L_fin
    {"s_branch" if OPT["nosafe"] else "s_cbranch_vccz"} L_e5
    ds_write_b32 v2, v9 offset:{L_FLAG}
    s_waitcnt lgkmcnt(0)
L_e5:
    s_barrier                               ; B6
    ds_read_b32 v2, v2 offset:{L_FLAG}
    s_waitcnt lgkmcnt(0)
    v_readfirstlane_b32 s30, v2
    s_cmp_lg_u32 s30, 0
    s_cbranch_scc1 L_gosafe
L_fin:
""")
if OPT["stamps"]:
    E("s_waitcnt vmcnt(0)"); STAMP(13); STAMP_OUT()
if OPT["probe"] >= 0:
    T_ = ST0 + 2*OPT["probe"]
    E(f"""
    s_cmp_lg_u32 s3, {OPT["pw"]}
    s_cbranch_scc1 L_end
    s_cmp_lg_u32 s2, {OPT["pg"] if OPT["pg"] >= 0 else "s2"}
    s_cbranch_scc1 L_end
    s_sub_u32 s30, s{T_}, s{ST0}
    s_lshl_b32 s30, s30, 2
    s_add_u32 s30, s30, 3000
    s_min_u32 s30, s30, 20000
L_spin:
    s_memrealtime s[28:29]
    s_waitcnt lgkmcnt(0)
    s_sub_u32 s28, s28, s{ST0}
    s_cmp_lt_u32 s28, s30
    s_cbranch_scc1 L_spin
    """)
E(f"""
L_end:
    s_endpgm
L_gosafe:
    s_mov_b32 s{S_SAFE}, 8
    s_setprio 0
    s_waitcnt vmcnt(0) lgkmcnt(0)
    s_barrier
    s_branch L_restart
""")
out += outofline
for r in retries: E(r)
E(f"""
L_safe:
    v_and_b32 v2, 15, v1
    v_lshlrev_b32 v3, 3, v2
    v_add_u32 v3, {L_C}, v3
""")
for k in range(4):
    for s in range(4):
        E(f"ds_read_u16 v{80+4*k+s}, v3 offset:{128*k + 2*s}")
E("s_waitcnt lgkmcnt(0)")
for i in range(16):
    E(f"v_lshlrev_b32 v{80+i}, 16, v{80+i}\nv_mul_f32 v{80+i}, s40, v{80+i}")
E(f"""
    v_lshrrev_b32 v24, 4, v1
    v_mul_u32_u24 v24, 3, v24               ; 3*quarter
    s_movk_i32 s33, {NSTR}
    v_add_u32 v25, {L_NODE}, v{LN8}
    s_mov_b32 s34, s3
    s_mov_b32 s35, {POLL_MAX}
L_scell:
    s_lshl_b32 s30, s34, 10
    s_lshl_b32 s31, s{S_BUCK}, 3
    s_add_u32 s30, s30, s31
    s_add_u32 s30, s30, {WS_ROW}
    v_mov_b32 v26, s30
    global_load_dword v32, v26, s[20:21] sc1
    s_mul_i32 s30, s34, {SORTB//4}
    s_add_u32 s30, s30, {WS_REC//4}
    s_waitcnt vmcnt(0)
    v_bfe_u32 v28, v32, 12, 12              ; 3*count
    v_and_b32 v27, 0xfff, v32
    v_add_u32 v27, s30, v27
L_sver:
    v_mov_b32 v29, v1
    v_mov_b32 v31, 0
L_sv1:
    v_cmp_ge_u32 vcc, v28, v29
    s_and_saveexec_b64 s[48:49], vcc
    s_cbranch_execz L_sv2
    v_add_lshl_u32 v30, v27, v29, 2
    global_load_dword v32, v30, s[20:21] sc1
    s_waitcnt vmcnt(0)
    v_add_u32 v31, v31, v32
    s_mov_b64 exec, s[48:49]
    v_add_u32 v29, 64, v29
    s_branch L_sv1
L_sv2:
    s_mov_b64 exec, s[48:49]
""")
scan(31)
E(f"""
    s_nop 0
    v_readlane_b32 s30, v31, 63
    s_cmp_eq_u32 s30, s{S_TAG+1}
    s_cbranch_scc1 L_sok
    s_sub_u32 s35, s35, 1
    s_cbranch_scc0 L_sver
    s_branch L_mdone
L_sok:
    v_mov_b32 v29, v24
L_srec:
    v_cmp_gt_u32 vcc, v28, v29
    s_and_saveexec_b64 s[48:49], vcc
    s_cbranch_execz L_snext
    v_add_lshl_u32 v30, v27, v29, 2
    global_load_dwordx3 v[32:34], v30, s[20:21] offset:4 sc1
    s_waitcnt vmcnt(0)
    v_and_b32 v30, 0x3fff00, v32
    v_add_u32 v30, v30, v{LN16}
    buffer_load_dwordx4 v[36:39], v30, s[36:39], 0 offen sc1
    v_lshrrev_b32 v31, 24, v32
    v_mad_u32_u24 v31, v31, s33, v25
    ds_read_b64 v[40:41], v31 offset:512
    v_lshlrev_b32 v44, 16, v33
    v_and_b32 v45, 0xffff0000, v33
    v_lshlrev_b32 v46, 16, v34
    v_and_b32 v47, 0xffff0000, v34
    s_waitcnt vmcnt(0) lgkmcnt(0)
    v_lshlrev_b32 v48, 16, v40
    v_and_b32 v49, 0xffff0000, v40
    v_lshlrev_b32 v50, 16, v41
    v_and_b32 v51, 0xffff0000, v41
""")
for s in range(4):
    E(f"v_lshlrev_b32 v52, 16, v{36+s}\nv_add_f32 v{48+s}, v{48+s}, v52")
    for k in range(4):
        E(f"v_fmac_f32 v{48+s}, v{44+k}, v{80+4*k+s}")
for s in range(4): E(f"v_exp_f32 v{48+s}, v{48+s}")
E("s_nop 0")
for s in range(4): E(f"v_add_f32 v{48+s}, 1.0, v{48+s}")
for s in range(4): E(f"v_rcp_f32 v{48+s}, v{48+s}")
E("s_nop 0")
for s in range(4): E(f"v_mul_f32 v{48+s}, v{48+s}, v{36+s}")
for s in range(4): E(f"v_cvt_f64_f32 v[{54+2*s}:{55+2*s}], v{48+s}")
for s in range(4): E(f"ds_add_f64 v31, v[{54+2*s}:{55+2*s}] offset:{128*s}")
E(f"""
    s_mov_b64 exec, s[48:49]
    v_add_u32 v29, 12, v29
    s_branch L_srec
L_snext:
    s_mov_b64 exec, s[48:49]
    s_add_u32 s34, s34, {NW}
    s_cmp_lt_u32 s34, {NCHUNK}
    s_cbranch_scc1 L_scell
    s_branch L_mdone
L_codeend:
.section .rodata,"a"
.p2align 6
.amdhsa_kernel {NAME}
.amdhsa_next_free_vgpr 168
.amdhsa_next_free_sgpr 102
.amdhsa_accum_offset 168
.amdhsa_group_segment_fixed_size 0
.amdhsa_kernarg_size 80
.amdhsa_user_sgpr_count 2
.amdhsa_user_sgpr_kernarg_segment_ptr 1
.amdhsa_system_sgpr_workgroup_id_x 1
.end_amdhsa_kernel
""")
if OPT["drop"]:
    i0 = out.index("L_L0:"); i1 = out.index("L_mdone:")
    pats = {1: ("smfmac",), 2: ("mfma",), 3: ("32x32x8",), 4: ("smfmac",), 5: ("v_exp",)}[OPT["drop"]]
    repl = {4: "    s_nop 2", 5: "    s_nop 1"}.get(OPT["drop"])
    mid = []
    for l in out[i0:i1]:
        if any(x in l for x in pats):
            if repl: mid.append(repl)
        else: mid.append(l)
    if OPT["drop"] == 3: mid = [l.replace("v[88:103] cbsz", "0 cbsz").replace("v[72:87] cbsz", "0 cbsz") for l in mid]
    out = out[:i0] + mid + out[i1:]
if OPT["nochain"]:
    i0 = out.index("L_L0:"); i1 = out.index("L_mdone:")
    out = out[:i0] + [l for l in out[i0:i1] if not any(x in l for x in ("v_exp", "v_pk_", "mfma", "v_rcp", "v_cvt"))] + out[i1:]
open(sys.argv[1], "w").write("\n".join(out) + "\n")
```

```python
import sys, struct

OPT = dict(hb=1, stamps=0, force_safe=0, nogather=0, nosafe=0, prio=2, gsc1=1, osc=1, codepf=1, srcmask=0x3fff00, nrec=0, warm=0,
           nochain=0, probe=-1, pw=-1, pg=-1, gpf=32, early=0, cnt=0, pollmax=200000, pa=7, pb=3, pc=1, p0=3, p1=3, ptime=0,
           dist=2, ldearly=0, drop=0, wgate=0, gate=0, gate2=1, rst=0, rsc1=1, nover=0, p2gate=1, p2sleep=0, hold=0, slate=2, lpos=0, p1st=1, sig=1, gpace=4, gwin=-1, gp=0xf448c, ghold=0, rpace=-1, p2wait=0)
for a in sys.argv[2:]:
    k, v = a.split("=")
    assert k in OPT, k
    OPT[k] = int(v, 0)

out = []
def E(s=""):
    for line in s.split("\n"):
        line = line.strip()
        if not line:
            continue
        if line.endswith(":") or line.startswith(".") or line.startswith(";"):
            out.append(line)
        else:
            out.append("    " + line)

def f32(x):
    return "0x%08x" % struct.unpack("<I", struct.pack("<f", x))[0]

NAME = "standalone__edge_featured_mpnn_egc__graph_kernel"
LOG2E = 1.4426950408889634
NB = 80; NBUCK = 125; CHUNK = 1280; NCHUNK = 250
NW = 12
G_HALF = 10000 * 256
WS0 = 0
WS_REC = 0x500000
WS_ROW = 0x900000
WS_FL2 = 0x980000
WS_TAG = 0x9c0000
SORTB = CHUNK * 12 + 512
WS_STAMP = 0x1000000
L_CNT = 0; L_SOFF = 512
L_SCNT = 1024
L_CTR = 1536; L_RD = 1540; L_DONE2 = 1544; L_FLAG = 1548; L_NST = 1552; L_GST = 1556; L_GOK = 1560
L_DUM = L_SOFF
L_LIST = 2048
L_LISTC = L_LIST + 4096
SSTR = 272
L_SRC = L_LIST + 8192
SRCB = 80 * SSTR + 32
L_EA = L_SRC + SRCB
L_EAEND = L_EA + 2 * SRCB
L_SORT = L_EA
L_WBV = (L_EAEND + 255) // 256 * 256; L_X = L_WBV + 32768; L_WAU = L_X + 20480; L_C = L_WAU + 32768
LDS = L_C + 1024
L_NODE = L_WBV; NSTR = 648
assert L_NODE + 80 * NSTR <= L_WAU and LDS <= 163840 and L_EA % 16 == 0
NULL_SRC = 0x7fffff00
POLL_MAX = OPT["pollmax"]
SC1 = " sc1"

S_HALF, S_BUCK, S_P = 22, 23, 24
S_SAFE, S_TAG = 25, 26
S_R, S_M, S_IT = 70, 71, 72
S_TAGRAW = 47
ST0 = 74

def ESTAMP(i):
    if OPT["early"] == 1 or (OPT["early"] and i == 0): E(f"s_memrealtime s[{ST0+2*i}:{ST0+2*i+1}]")
def FSTAMP(i):
    if OPT["early"] == 2: E(f"s_memrealtime s[{ST0+2*i}:{ST0+2*i+1}]\ns_waitcnt lgkmcnt(0)")
def STAMP(i):
    if OPT["stamps"] == 2:
        if i == 0: E(f"s_memrealtime s[{ST0}:{ST0+1}]")
        if i == 13: E(f"s_memrealtime s[{ST0+26}:{ST0+27}]\ns_waitcnt lgkmcnt(0)")
        return
    if OPT["early"] and 1 <= i <= 7: return
    if OPT["early"] and i == 0: return ESTAMP(0)
    if OPT["stamps"] or (OPT["probe"] >= 0 and i == OPT["probe"]):
        E(f"s_memrealtime s[{ST0+2*i}:{ST0+2*i+1}]\ns_waitcnt lgkmcnt(0)")
    elif OPT["probe"] >= 0 and i == 0:
        E(f"s_memrealtime s[{ST0}:{ST0+1}]")
NSTAMP = 14
def STAMP_OUT():
    if OPT["stamps"]:
        E(f"""
        s_lshl_b32 s30, s2, 4
        s_add_u32 s30, s30, s3
        s_lshl_b32 s30, s30, 6
        s_add_u32 s30, s30, {WS_STAMP - 0x100000}
        s_load_dwordx2 s[20:21], s[0:1], 72
        s_waitcnt lgkmcnt(0)
        s_mov_b64 exec, -1
        v_mov_b32 v3, s30""")
        for i in (range(NSTAMP) if OPT["stamps"] == 1 else (0, 8, 13)):
            E(f"v_mov_b32 v2, s{ST0+2*i}\nglobal_store_dword v3, v2, s[20:21] offset:{4*i}")
        E("s_waitcnt vmcnt(0)")

A1, A2, IDX, EAC, LN16, ASEL, CW, LN8 = 4, 8, 12, 13, 14, 16, 18, 20
LP, WS4, WN2, EA, XA, WE, OFS, AG, T, N, P, F = 22, 24, 28, 30, 32, 34, 36, 40, 44, 52, 56, 60
D0, D1, G = 72, 88, 104

def finish_tag():
    E(f"""
    s_mul_i32 s{S_TAG+1}, s{S_TAGRAW}, 0x85ebca6b
    s_mul_i32 s{S_TAG}, s{S_TAGRAW}, 0x9e3779b1
    s_add_u32 s{S_TAG+1}, s{S_TAG+1}, 0x5bd1e995
    s_add_u32 s{S_TAG}, s{S_TAG}, 0x7f4a7c15
    """)
def get_tag(lab, q):
    E(f"""
    s_cmp_lg_u32 s{S_SAFE}, 0
    s_cbranch_scc1 L_tag_{lab}
    v_mov_b32 v2, 0
    s_mov_b32 s31, {POLL_MAX}
L_tg_{lab}:
    ds_read_b128 v[{q}:{q+3}], v2 offset:{L_SCNT + 124*4}
    s_sub_u32 s31, s31, 1
    s_cbranch_scc1 L_tag_{lab}
    s_waitcnt lgkmcnt(0)
    v_readfirstlane_b32 s30, v{q+3}
    v_readfirstlane_b32 s{S_TAGRAW}, v{q+1}
    s_cmp_lg_u32 s30, 4
    s_cbranch_scc1 L_tg_{lab}
    """)
    finish_tag()
    E(f"L_tag_{lab}:")

def lds_wait(addr, mask, val, tag, sleep=0, ne=False):
    E(f"""
    v_mov_b32 v2, 0
    s_mov_b32 s31, {POLL_MAX}
L_w_{tag}:
    {f"s_sleep {sleep}" if sleep else ""}
    ds_read_b32 v3, v2 offset:{addr}
    s_sub_u32 s31, s31, 1
    s_cbranch_scc1 L_wd_{tag}
    s_waitcnt lgkmcnt(0)
    v_readfirstlane_b32 s30, v3
    s_and_b32 s30, s30, {mask}
    s_cmp_lg_u32 s30, {val}
    s_cbranch_scc{0 if ne else 1} L_w_{tag}
L_wd_{tag}:
    """)
SCAN = ("row_shr:1 row_mask:0xf bank_mask:0xf bound_ctrl:0", "row_shr:2 row_mask:0xf bank_mask:0xf bound_ctrl:0",
        "row_shr:4 row_mask:0xf bank_mask:0xf bound_ctrl:0", "row_shr:8 row_mask:0xf bank_mask:0xf bound_ctrl:0",
        "row_bcast:15 row_mask:0xa bank_mask:0xf", "row_bcast:31 row_mask:0xc bank_mask:0xf")
def scan(r):
    for m in SCAN:
        E(f"s_nop 1\nv_add_u32_dpp v{r}, v{r}, v{r} {m}")

def main_consts(sm=48):
    E(f"""
    v_and_b32 v2, 15, v1                    ; n'
    v_lshrrev_b32 v3, 4, v1
    v_lshl_add_u32 v3, v2, 2, v3
    v_lshlrev_b32 v3, 1, v3
    v_add_u32 v3, {L_C}, v3
    ds_read_u16 v64, v3                     ; C[0..3][feature 4n'+s]
    ds_read_u16 v65, v3 offset:128
    ds_read_u16 v66, v3 offset:256
    ds_read_u16 v67, v3 offset:384
    v_and_b32 v63, 3, v1                    ; q
    v_lshlrev_b32 v{LN8}, 3, v2
    v_lshlrev_b32 v{LN8+1}, 3, v2
    v_lshlrev_b32 v{LN16}, 4, v2
    v_lshlrev_b32 v{LN16+1}, 4, v2
    v_mov_b32 v{IDX}, 0x8888
    v_bfe_u32 v60, v1, 3, 2                 ; s = (l&31)>>3
    v_bfe_u32 v61, v1, 2, 1                 ; h = (l>>2)&1
    v_lshrrev_b32 v62, 5, v1                ; ha
    v_and_b32 v2, 1, v60
    v_lshlrev_b32 v2, 4, v2
    v_lshlrev_b32 v2, v2, s46
    v_lshrrev_b32 v60, 1, v60               ; s>>1
    v_lshl_add_u32 v3, v61, 1, v60
    v_sub_u32 v63, v63, v62                 ; q - ha : 0 -> A1, 2 -> A2
    v_lshl_add_u32 v3, v63, 1, v3
    v_and_b32 v63, 1, v63
    v_lshl_or_b32 v3, v63, 4, v3
    v_xor_b32 v61, v61, v62
    v_lshl_or_b32 v60, v61, 4, v60
    """)
    mk = [f"s[{sm}:{sm+1}]", f"s[{sm+2}:{sm+3}]", f"s[{sm+4}:{sm+5}]", "vcc"]
    for i in range(8):
        E(f"v_cmp_eq_u32 {mk[i%4]}, {i}, v3")
        if i % 4 == 3:
            for j in range(i-3, i+1):
                E(f"v_cndmask_b32 v{A1+j}, 0, v2, {mk[j%4]}")
    E(f"""
    v_cmp_eq_u32 {mk[0]}, 0, v60
    v_cmp_eq_u32 {mk[1]}, 1, v60
    v_and_b32 v63, 3, v1
    v_lshlrev_b32 v61, 3, v63
    v_cndmask_b32 v{ASEL}, 0, v2, {mk[0]}
    v_cndmask_b32 v{ASEL+1}, 0, v2, {mk[1]}
    v_add_u32 v{EAC}, {L_EA - 2*L_SRC}, v61
    s_lshl_b32 s30, s3, 9
    s_sub_u32 s31, s30, 4096
    s_max_i32 s31, s31, 0
    s_add_u32 s30, s30, s31
    s_add_u32 s30, s30, {L_LIST}
    v_lshrrev_b32 v2, 4, v1
    v_lshl_add_u32 v{LP}, v2, 4, s30
    v_bfe_u32 v3, v1, 2, 2
    v_lshl_add_u32 v{LP+1}, v3, 4, s30
    v_lshl_add_u32 v{LP+1}, v2, 2, v{LP+1}
    s_waitcnt lgkmcnt(0)
    v_lshlrev_b32 v60, 16, v64
    v_lshlrev_b32 v61, 16, v65
    v_lshlrev_b32 v62, 16, v66
    v_lshlrev_b32 v63, 16, v67
    v_mul_f32 v60, s40, v60
    v_mul_f32 v61, s40, v61
    v_mul_f32 v62, s40, v62
    v_mul_f32 v63, s40, v63
    v_cvt_pk_bf16_f32 v{CW}, v60, v61
    v_cvt_pk_bf16_f32 v{CW+1}, v62, v63
    """)

def gload(g, o):
    return f"buffer_load_dwordx4 v[{g}:{g+3}], v{o}, s[36:39], 0 offen" + (SC1 if OPT["gsc1"] else "")
def oadd(o):
    return f"v_lshl_add_u64 v[{o}:{o+1}], v[{o}:{o+1}], 0, v[{LN16}:{LN16+1}]"

def pk_steps(Gc, q, first):
    t = T + 4*(q & 1); h = Gc + 4*q
    if first and q == 0:
        return [f"v_pk_add_f32 v[{P+2*p}:{P+2*p+1}], v[{t+2*p}:{t+2*p+1}], 1.0 op_sel_hi:[1,0]" for p in range(2)]
    r = []
    for p in range(2):
        n = f"v[{Gc+2*p}:{Gc+2*p+1}]" if (first and q == 1) else f"v[{N+2*p}:{N+2*p+1}]"
        r.append(f"v_pk_fma_f32 v[{N+2*p}:{N+2*p+1}], {n}, v[{t+2*p}:{t+2*p+1}], {n}")
    for p in range(2):
        r.append(f"v_pk_fma_f32 v[{N+2*p}:{N+2*p+1}], v[{h+2*p}:{h+2*p+1}], v[{P+2*p}:{P+2*p+1}], v[{N+2*p}:{N+2*p+1}]")
    for p in range(2):
        r.append(f"v_pk_fma_f32 v[{P+2*p}:{P+2*p+1}], v[{P+2*p}:{P+2*p+1}], v[{t+2*p}:{t+2*p+1}], v[{P+2*p}:{P+2*p+1}]")
    return r
def exps(Dc, q):
    t = T + 4*(q & 1)
    return [f"v_exp_f32 v{t+s}, v{Dc+4*s+q}" for s in range(4)]
def weave(main, extra):
    for i, x in enumerate(main):
        E(x)
        for y in extra.get(i, []):
            E(y)
def m_a(Dn): return f"v_mfma_f32_32x32x8_bf16 v[{Dn}:{Dn+15}], v[{ASEL}:{ASEL+1}], v[{XA}:{XA+1}], 0"
def m_e(Dn, abid): return f"v_mfma_f32_16x16x4_4b_bf16 v[{Dn}:{Dn+15}], v[{EA}:{EA+1}], v[{CW}:{CW+1}], v[{Dn}:{Dn+15}] cbsz:2 abid:{abid}"
def m_s(Dn, A, g): return f"v_smfmac_f32_32x32x32_bf16 v[{Dn}:{Dn+15}], v[{A}:{A+3}], v[{g}:{g+7}], v{IDX}"

outofline = []
def emit_to(lst, fn):
    global out
    keep = out; out = []
    fn(); lst += out; out = keep
DIST = OPT["dist"]; EARLY = OPT["ldearly"]
assert not (EARLY and DIST == 4)
def phase(u, loads):
    tag = f"{'L' if loads else 'T'}{u}"
    Dc, Dn = ((D0, D1), (D1, D0))[u & 1]
    gc = G + 16*u; gn = G + 16*((u+1) & 3); gl = G + 16*((u+DIST) & 3)
    ld = loads and not OPT["nogather"]
    kw = (u + DIST + EARLY) & 3
    wsgrp = 128 * ((3 - kw + u + DIST + EARLY) // 4 + 1) if kw == 3 else None
    def addloads(ex, pos):
        if loads:
            ex.setdefault(0, []).append(oadd(OFS)); ex.setdefault(2, []).append(oadd(OFS+2))
        if ld:
            for q in range(4): ex.setdefault(pos[q], []).append(gload(gl+4*q, OFS+q))
    E(f"L_{tag}:")
    if OPT["ptime"]: E(f"s_memrealtime s[28:29]\ns_mov_b32 m0, s{S_R}")
    if OPT["ptime"] == 2: E(f"s_memtime s[30:31]")
    SL = OPT["slate"]
    if not SL: E(f"s_waitcnt vmcnt({4*(DIST-2)})")
    if OPT["ptime"] == 1: E(f"s_memrealtime s[30:31]")
    E(m_a(Dn))
    for x in exps(Dc, 0): E(x)
    E(m_e(Dn, (u+1) & 3) if SL else m_s(Dn, A1, gn))
    for x in exps(Dc, 1): E(x)
    ex = {0: ["s_waitcnt lgkmcnt(0)"], 2: [f"ds_read_b64 v[{XA}:{XA+1}], v{AG + ((u+2) & 3)} offset:512"]}
    if OPT["ptime"]: ex[0] += ["v_writelane_b32 v35, s28, m0", "v_writelane_b32 v68, s30, m0"]
    if u % 2 == 0:
        p = AG + ((u+2) & 3)
        ex[0].append(f"v_lshl_add_u64 v[{p}:{p+1}], v[{WN2}:{WN2+1}], 0, v[{LN8}:{LN8+1}]")
    if EARLY: addloads(ex, (1, 3, 5, 6))
    elif loads: ex[1] = [f"ds_read_b128 v[{OFS}:{OFS+3}], v{WS4+kw}"]
    if u == 2:
        ex.setdefault(4, []).append(f"v_lshl_add_u32 v{WE}, v{WE}, 1, v{EAC}")
        if SL: ex.setdefault(7, []).append(f"ds_read_b64 v[{EA}:{EA+1}], v{WE}")
    E(f"s_bitcmp1_b32 s{S_M}, 0\ns_cbranch_scc1 L_{tag}f")
    weave(pk_steps(gc, 0, False) + pk_steps(gc, 1, False), ex)
    E(f"L_{tag}r:")
    def first():
        E(f"L_{tag}f:")
        weave(pk_steps(gc, 0, True) + pk_steps(gc, 1, True), ex)
        E(f"s_branch L_{tag}r")
    emit_to(outofline, first)
    if SL:
        E(f"s_waitcnt vmcnt({4*(DIST-2) + (4 if (EARLY and loads) else 0) + (2 if SL == 2 else 0)})")
        E(m_s(Dn, A1, gn))
    else:
        E(m_e(Dn, (u+1) & 3))
    for x in exps(Dc, 2): E(x)
    if SL == 2: E(f"s_waitcnt vmcnt({4*(DIST-2) + (4 if (EARLY and loads) else 0)})")
    E(m_s(Dn, A2, gn+8))
    for x in exps(Dc, 3): E(x)
    ex = {0: ["s_waitcnt lgkmcnt(0)"], 4: [], 6: [], 7: [f"s_sub_u32 s{S_R}, s{S_R}, 1"], 10: [f"s_lshr_b32 s{S_M}, s{S_M}, 1"], 11: [f"s_bitcmp1_b32 s{S_M}, 0"]}
    if not EARLY: addloads(ex, (1, 3, 5, 9) if DIST == 4 else ((1, 3, 5, 7), (1, 2, 3, 4), (4, 6, 8, 10), (2, 5, 8, 10))[OPT['lpos']])
    elif loads: ex[1] = [f"ds_read_b128 v[{OFS}:{OFS+3}], v{WS4+kw}"]
    if u == 1:
        ex[4].append(f"ds_read_b64 v[{WN2}:{WN2+1}], v{LP} offset:{128+64}")
        ex[6].append(f"ds_read_b32 v{WE}, v{LP+1} offset:128")
    if u == 2 and not SL:
        ex[4].append(f"ds_read_b64 v[{EA}:{EA+1}], v{WE}")
    if u == 3:
        ex[4].append(f"ds_read_b64 v[{WN2}:{WN2+1}], v{LP} offset:{128+64+8}")
        ex.setdefault(8, []).append(f"v_lshl_add_u64 v[{LP}:{LP+1}], v[{LP}:{LP+1}], 0, s[44:45]")
    if wsgrp and loads: ex[6].append(f"ds_read_b128 v[{WS4}:{WS4+3}], v{LP} offset:{wsgrp}")
    weave(pk_steps(gc, 2, False) + pk_steps(gc, 3, False), ex)
    E(f"s_cbranch_scc1 L_{tag}z\nL_{tag}y:")
    def fin():
        E(f"""
L_{tag}z:
        v_rcp_f32 v{P}, v{P}
        v_rcp_f32 v{P+1}, v{P+1}
        v_rcp_f32 v{P+2}, v{P+2}
        v_rcp_f32 v{P+3}, v{P+3}
        v_pk_mul_f32 v[{N}:{N+1}], v[{N}:{N+1}], v[{P}:{P+1}]
        v_pk_mul_f32 v[{N+2}:{N+3}], v[{N+2}:{N+3}], v[{P+2}:{P+3}]
        """)
        for s_ in range(4):
            E(f"v_cvt_f64_f32 v[{F+2*s_}:{F+2*s_+1}], v{N+s_}")
            if s_: E(f"ds_add_f64 v{AG+u}, v[{F+2*s_-2}:{F+2*s_-1}] offset:{128*(s_-1)}")
        E(f"ds_add_f64 v{AG+u}, v[{F+6}:{F+7}] offset:384")
        E(f"s_branch L_{tag}y")
    emit_to(outofline, fin)
    if OPT["prio"] == 2:
        E(f"s_bitcmp1_b32 s{S_IT}, s{S_R}\ns_cbranch_scc1 L_{tag}q\nL_{tag}p:")
        def pr():
            E(f"""
L_{tag}q:
            s_setprio 0
            s_cmp_le_u32 s{S_R}, {OPT["pc"]}
            s_cbranch_scc1 L_{tag}p
            s_setprio 1
            s_cmp_le_u32 s{S_R}, {OPT["pb"]}
            s_cbranch_scc1 L_{tag}p
            s_setprio 2
            s_branch L_{tag}p
            """)
        emit_to(outofline, pr)
    if u == 3 and OPT["prio"] == 1:
        E(f"""
        s_add_u32 s{S_IT}, s{S_IT}, 1
        s_setprio 0
        s_cmp_gt_u32 s{S_IT}, 2
        s_cbranch_scc1 L_{tag}p
        s_setprio 1
        s_cmp_eq_u32 s{S_IT}, 2
        s_cbranch_scc1 L_{tag}p
        s_setprio 2
L_{tag}p:
        """)
    if loads:
        E(f"s_cmp_le_u32 s{S_R}, {DIST}")
        if u < 3: E(f"s_cbranch_scc1 L_T{u+1}")
        else: E("s_cbranch_scc0 L_L0")
    else:
        E(f"s_waitcnt vmcnt(0)\ns_cmp_eq_u32 s{S_R}, 0")
        if u < 3: E("s_cbranch_scc1 L_mdone")
        else: E("s_cbranch_scc0 L_T0")

E(f"""
; @launch grid=(256,1,1) block=({64*NW},1,1) lds={LDS}
.amdgcn_target "amdgcn-amd-amdhsa--gfx950"
.text
.globl {NAME}
.p2align 8
.type {NAME},@function
{NAME}:
""")
if OPT["stamps"] == 1 and OPT["early"] != 1:
    for i in range(NSTAMP): E(f"s_mov_b64 s[{ST0+2*i}:{ST0+2*i+1}], 0")
STAMP(0)
E(f"""
    s_load_dwordx16 s[4:19], s[0:1], 0
    s_load_dwordx2 s[20:21], s[0:1], 72
""")
if OPT["codepf"]:
    E(f"""
    s_getpc_b64 s[28:29]
L_pc:
    v_lshlrev_b32 v3, 7, v0
    v_cmp_gt_u32 vcc, L_codeend-L_pc-64, v3
    s_cbranch_vccz L_nopf
    s_mov_b64 exec, vcc
    global_load_dword v164, v3, s[28:29]
    s_mov_b64 exec, -1
L_nopf:
    """)
E(f"""
    v_lshrrev_b32 v2, 6, v0
    v_and_b32 v1, 63, v0
    v_readfirstlane_b32 s3, v2
    {"s_bfe_u32 s%d, s2, 0x10002" % S_HALF if OPT["hb"] else "s_and_b32 s%d, s2, 1" % S_HALF}
    {"s_and_b32 s30, s2, 3" if OPT["hb"] else "s_bfe_u32 s30, s2, 0x20001"}
    s_lshl_b32 s30, s30, 5
    s_lshr_b32 s31, s2, 3
    s_add_u32 s{S_BUCK}, s30, s31
    s_cmp_ge_u32 s2, 256
    s_cbranch_scc1 L_end
    s_cmp_ge_u32 s{S_BUCK}, {NBUCK}
    s_cbranch_scc1 L_end
    s_lshl_b32 s{S_P}, s{S_BUCK}, 1
    s_add_u32 s{S_P}, s{S_P}, s{S_HALF}
    s_mov_b32 s{S_SAFE}, 0
L_restart:
    s_cmp_ge_u32 s3, 4
    s_cbranch_scc1 L_nosort
    v_mov_b32 v48, 0
    v_mov_b32 v49, 0
    v_mov_b32 v50, 0
    v_mov_b32 v51, 0
    v_lshlrev_b32 v10, 4, v1
    ds_write_b128 v10, v[48:51] offset:{L_SCNT}
    s_mul_i32 s30, s{S_P}, {CHUNK*4}
    v_lshl_add_u32 v3, v0, 4, s30
    s_add_u32 s30, s30, 4096
    v_lshl_add_u32 v9, v0, 2, s30
    v_lshlrev_b32 v10, 1, v3
    v_lshlrev_b32 v11, 1, v9
    v_mov_b32 v17, {WS_TAG}
    s_waitcnt lgkmcnt(0)
    global_load_dwordx4 v[4:7], v3, s[10:11]
    global_load_dword v8, v9, s[10:11]
    global_load_dword v43, v17, s[20:21]
    s_barrier                               ; B0
    global_load_dwordx4 v[12:15], v3, s[8:9]
    global_load_dword v16, v9, s[8:9]
    global_load_dwordx4 v[52:55], v10, s[6:7]
    global_load_dwordx4 v[56:59], v10, s[6:7] offset:16
    global_load_dwordx2 v[60:61], v11, s[6:7]
    s_barrier                               ; B0b
    s_branch L_sort
L_nosort:
    s_and_b32 s32, s3, 3                    ; tau
    s_lshr_b32 s33, s3, 3
    v_lshrrev_b32 v2, 4, v1                 ; g
    v_and_b32 v4, 15, v1
    s_lshl_b32 s30, s32, 2
    v_add_u32 v6, s30, v2                   ; row&15
    v_xor_b32 v7, v4, v6
    v_lshlrev_b32 v7, 4, v7
    v_lshl_add_u32 v7, v6, 8, v7
    s_mul_i32 s73, s{S_BUCK}, {NB*256}
    s_mul_i32 s31, s33, {3*4096}
    s_add_u32 s30, s73, s31
    v_add_u32 v7, s30, v7
    v_add_u32 v8, 0x1000, v7
    v_add_u32 v9, 0x2000, v7
    s_lshl_b32 s30, s32, 10
    s_add_u32 s31, s31, s30
    s_add_u32 m0, s31, {L_X}
    v_subrev_u32 v30, 256, v0               ; t = 0..511
    v_lshlrev_b32 v31, 4, v30
    v_mov_b32 v36, 0
    v_mov_b32 v37, 0
    v_mov_b32 v38, 0
    v_mov_b32 v39, 0
    v_add_u32 v40, {L_EA}, v31
    ds_write_b128 v40, v[36:39]
    ds_write_b128 v40, v[36:39] offset:8192
    s_waitcnt lgkmcnt(0)
    s_barrier                               ; B0
    global_load_lds_dwordx4 v7, s[4:5]
    s_add_u32 m0, m0, 0x1000
    s_cmp_lg_u32 s33, 0
    global_load_lds_dwordx4 v8, s[4:5]
    s_cbranch_scc1 L_x2
    s_add_u32 m0, m0, 0x1000
    s_nop 0
    global_load_lds_dwordx4 v9, s[4:5]
L_x2:
    s_barrier
    v_mov_b32 v32, {NULL_SRC}
    v_mov_b32 v33, v32
    v_mov_b32 v34, v32
    v_mov_b32 v35, v32
""")
def cover(lo, n): return list(range(lo, n - 8192, 8192)) + [n - 8192]
for o in cover(16384, L_EAEND - L_EA): E(f"ds_write_b128 v40, v[36:39] offset:{o}")
for o in cover(0, SRCB): E(f"ds_write_b128 v31, v[32:35] offset:{L_SRC + o}")
E(f"""
    v_lshrrev_b32 v5, 3, v1
    v_and_b32 v3, 1, v2
    s_and_b32 s30, s3, 1
    s_lshl_b32 s30, s30, 1
    v_or_b32 v3, s30, v3                    ; sigma
    v_lshlrev_b32 v3, 1, v3
    v_and_b32 v20, 7, v1
    v_xor_b32 v3, v3, v20
    v_lshlrev_b32 v3, 4, v3
    v_lshl_add_u32 v10, v5, 8, v3
    s_sub_u32 s28, s3, 4
    s_lshl_b32 s30, s28, 11
    s_lshl_b32 s31, s{S_HALF}, 7
    s_add_u32 s30, s30, s31
    v_add_u32 v10, s30, v10
    v_add_u32 v11, 0x4000, v10
    s_lshl_b32 s28, s28, 10
    s_add_u32 s34, s16, {128*256}
    s_addc_u32 s35, s17, 0
    s_cmp_lg_u32 s3, 11
    s_cbranch_scc1 L_noc
    v_and_b32 v5, 3, v5
    v_lshlrev_b32 v20, 4, v20
    v_lshl_add_u32 v5, v5, 8, v20
    s_add_u32 s31, s31, {256*256}
    s_mov_b32 m0, {L_C}
    v_add_u32 v5, s31, v5
    global_load_lds_dwordx4 v5, s[16:17]
L_noc:
    s_add_u32 m0, s28, {L_WBV}
""")
for ti, base in enumerate((34, 14)):
    for n in range(2):
        E(f"s_nop 0\nglobal_load_lds_dwordx4 v{10+n}, s[{base}:{base+1}]")
        if not (ti == 1 and n == 1):
            E(f"s_add_u32 m0, m0, 0x2000")
if OPT["wgate"]:
    E(f"""
    v_mov_b32 v7, 0x1000000
    s_mov_b64 exec, 1
    ds_add_u32 v36, v7 offset:{L_CTR}
    s_mov_b64 exec, -1
    """)
STAMP(1)
E(f"""
    v_and_b32 v32, 3, v30           ; quarter
    v_bfe_u32 v33, v30, 3, 3
    v_lshrrev_b32 v34, 5, v30
    s_and_b32 s30, s3, 3
    s_add_u32 s30, s30, 16
    s_cmp_ge_u32 s3, 8
    s_cselect_b32 s31, 7, 3
    s_cselect_b32 s29, 6, 12
    s_cselect_b64 vcc, -1, 0
    v_and_b32 v33, s31, v33
    v_mov_b32 v35, s30
    v_cndmask_b32 v34, v34, v35, vcc
    v_lshl_add_u32 v32, v34, 2, v32
    v_bfe_u32 v34, v30, 2, 1
    v_mul_u32_u24 v35, {NSTR - SSTR}, v34
    v_mul_u32_u24 v41, {L_NODE - L_SRC}, v34
    v_mul_u32_u24 v42, {L_SRC + 80*SSTR - L_DUM}, v34
    v_lshlrev_b32 v43, 4, v34
    v_add_u32 v35, {SSTR}, v35
    v_add_u32 v41, {L_SRC}, v41
    v_sub_u32 v42, {L_SRC + 80*SSTR}, v42
    v_sub_u32 v43, 16, v43
    v_lshlrev_b32 v33, 2, v33
    v_mad_u32_u24 v41, v32, v35, v41
    v_mad_u32_u24 v41, v33, v43, v41
    v_lshlrev_b32 v35, 5, v35
    v_mul_u32_u24 v34, 6, v43
    v_sub_u32 v35, v35, v34
    v_add_u32 v34, 2, v33
    v_cmp_gt_u32 s[48:49], 6, v33
    v_cmp_gt_u32 s[50:51], 6, v34
    v_cmp_gt_u32 s[52:53], s29, v33
    v_cmp_gt_u32 s[54:55], s29, v34
    v_cndmask_b32 v44, v35, 0, s[48:49]
    v_cndmask_b32 v46, v35, 0, s[50:51]
    v_add_u32 v44, v41, v44
    v_lshl_add_u32 v46, v43, 1, v46
    v_add_u32 v46, v41, v46
    v_add_u32 v45, v44, v43
    v_add_u32 v47, v46, v43
    v_cndmask_b32 v44, v42, v44, s[52:53]
    v_cndmask_b32 v45, v42, v45, s[52:53]
    v_cndmask_b32 v46, v42, v46, s[54:55]
    v_cndmask_b32 v47, v42, v47, s[54:55]
    ds_write_b128 v31, v[44:47] offset:{L_LIST}
    s_cmp_ge_u32 s3, 6
    s_cbranch_scc1 L_pf3
    v_mul_u32_u24 v42, {SSTR}, v30
    v_add_u32 v42, {L_SRC}, v42
    v_lshlrev_b32 v41, 2, v30
    ds_write_b32 v41, v42 offset:{L_CNT}
L_pf3:
    v_bfe_u32 v3, v1, 2, 2                  ; r
    v_lshl_add_u32 v5, v2, 3, v3            ; 8g + r
    v_lshrrev_b32 v3, 1, v3
    v_and_b32 v6, 1, v2
    v_lshl_or_b32 v3, v6, 1, v3             ; sigma
    v_xor_b32 v3, s32, v3
    v_lshlrev_b32 v3, 5, v3
    v_lshl_add_u32 v10, v5, 7, v3
    v_and_b32 v3, 3, v1
    v_lshl_add_u32 v10, v3, 3, v10
    s_mul_i32 s31, s33, {L_WAU - L_WBV}
    s_add_u32 s31, s31, {L_WBV}
    v_add_u32 v10, s31, v10
    v_xor_b32 v3, v2, v4
    v_lshlrev_b32 v3, 4, v3
    v_lshl_add_u32 v12, v4, 8, v3
    v_add_u32 v12, {L_X}, v12
    v_xor_b32 v13, 64, v12
    v_xor_b32 v14, 0x80, v12
    v_xor_b32 v15, 0xc0, v12
    s_mul_i32 s30, s{S_HALF}, {G_HALF}
    s_add_u32 s30, s30, s73
    s_lshl_b32 s31, s32, 6
    s_add_u32 s30, s30, s31
    v_lshlrev_b32 v11, 10, v2
    v_lshl_add_u32 v11, v4, 2, v11
    v_add_u32 v11, s30, v11
    s_lshl_b32 s31, s32, 5
    s_add_u32 s31, s31, {L_NODE}
    v_mul_u32_u24 v16, {NSTR}, v4
    v_lshl_add_u32 v16, v2, 3, v16
    v_add_u32 v16, s31, v16
    s_mov_b32 s40, {f32(-LOG2E)}
    s_mov_b32 s42, {f32(2.0**32)}
    s_mov_b32 s44, 0x07060100
    s_mov_b32 s45, 0x07060302
    s_mov_b32 s46, 0x3f80
    v_mov_b32 v17, {f32(2.0**-100)}
    v_mov_b32 v19, 1
    v_mov_b32 v18, 0
""")
get_tag("g", 160)
E(f"""
    s_waitcnt vmcnt(0)
    s_mov_b64 exec, 1
    ds_add_u32 v18, v19 offset:{L_CTR}
    s_mov_b64 exec, -1
""")
STAMP(2)
lds_wait(L_CTR, 0xff, 8, "g1")
STAMP(3)
NP = 8
RA = 72; RB = RA + 4*NP; RAD = RB + 4*NP
J3N, J12, J3N2, CELL, ROWA, FOUR, L0M, ACC, ENT, CAD = 156, 157, 158, 159, 160, 161, 162, 163, 164, 166
def rec_setup():
    E(f"""
    v_and_b32 v3, 15, v1                    ; j
    v_lshrrev_b32 v2, 4, v1
    v_lshl_add_u32 v{CELL}, v2, 3, v3
    s_lshl_b32 s30, s29, 5
    v_add_u32 v{CELL}, s30, v{CELL}
    s_lshl_b32 s30, s{S_BUCK}, 3
    s_add_u32 s30, s30, {WS_ROW}
    v_lshl_add_u32 v{ROWA}, v{CELL}, 10, s30
    v_cmp_gt_u32 s[66:67], {NP}, v3
    v_cmp_gt_u32 vcc, {NCHUNK}, v{CELL}
    v_mov_b32 v{ENT}, 0
    s_and_b64 s[66:67], s[66:67], vcc
    s_mov_b64 exec, s[66:67]
    global_load_dwordx2 v[{ENT}:{ENT+1}], v{ROWA}, s[20:21] sc1
    s_mov_b64 exec, -1
    v_mul_u32_u24 v{CELL}, {SORTB//4}, v{CELL}
    v_add_u32 v{CELL}, {WS_REC//4}, v{CELL}
    v_mul_u32_u24 v{J12}, 12, v3
    v_mul_u32_u24 v{J3N}, 3, v3
    v_not_b32 v{J3N}, v{J3N}
    v_subrev_u32 v{J3N2}, 48, v{J3N}
    v_subrev_u32 v{L0M}, 1, v3
    v_ashrrev_i32 v{L0M}, 31, v{L0M}
    v_mov_b32 v{FOUR}, 4
    """)
WF = 20; XF = 52; AC = 132
def wreads(ks):
    for t in range(2):
        for rd in range(2):
            r = WF + 16*t + 4*ks + 2*rd
            E(f"ds_read_b64_tr_b16 v[{r}:{r+1}], v10 offset:{t*16384 + ks*4096 + rd*512}")
def xread(rt, ks):
    r = XF + 16*rt + 4*ks
    return f"ds_read_b128 v[{r}:{r+3}], v{12+ks} offset:{rt*4096}"
def mf(rt, ks, transposed):
    for t in range(2):
        a = XF + 16*rt + 4*ks; w = WF + 16*t + 4*ks; d = AC + 8*(rt % 3) + 4*t
        c = "0" if ks == 0 else f"v[{d}:{d+3}]"
        if transposed: a, w = w, a
        E(f"v_mfma_f32_16x16x32_bf16 v[{d}:{d+3}], v[{a}:{a+3}], v[{w}:{w+3}], {c}")
def gemm(transposed, finish, before_first):
    for ks in range(3):
        E(xread(0, ks)); wreads(ks)
    E("s_waitcnt lgkmcnt(10)"); mf(0, 0, transposed)
    E(xread(0, 3)); wreads(3)
    E("s_waitcnt lgkmcnt(10)"); mf(0, 1, transposed)
    for ks in range(4): E(xread(1, ks))
    E("s_waitcnt lgkmcnt(9)"); mf(0, 2, transposed)
    for ks in range(4): E(xread(2, ks))
    E("s_waitcnt lgkmcnt(8)"); mf(0, 3, transposed)
    for ks in range(4): E(xread(3, ks))
    E("s_waitcnt lgkmcnt(8)")
    for ks in range(4):
        mf(1, ks, transposed); E(xread(4, ks))
    E(f"""
    s_mov_b64 exec, 1
    ds_add_u32 v18, v19 offset:{L_RD}
    s_mov_b64 exec, -1
    """)
    before_first()
    finish(0)
    E("s_waitcnt lgkmcnt(0)")
    for rt in range(2, 5):
        for ks in range(4): mf(rt, ks, transposed)
        finish(rt-1)
    finish(4)
def pack(rt):
    b = AC + 8*(rt % 3); h = b + 4
    for r in range(4): E(f"v_mul_f32 v{b+r}, s40, v{b+r}")
    for r in range(4): E(f"v_fma_f32 v{h+r}, v{h+r}, s42, v17")
    E(f"""
    v_cvt_pk_bf16_f32 v4, v{b}, v{b+1}
    v_cvt_pk_bf16_f32 v5, v{b+2}, v{b+3}
    v_xor_b32 v2, 0x80008000, v4
    v_xor_b32 v3, 0x80008000, v5
    v_sub_u32_sdwa v{h}, v{h}, sext(v2) dst_sel:DWORD dst_unused:UNUSED_PAD src0_sel:DWORD src1_sel:WORD_0
    v_sub_u32_sdwa v{h+1}, v{h+1}, sext(v2) dst_sel:DWORD dst_unused:UNUSED_PAD src0_sel:DWORD src1_sel:WORD_1
    v_sub_u32_sdwa v{h+2}, v{h+2}, sext(v3) dst_sel:DWORD dst_unused:UNUSED_PAD src0_sel:DWORD src1_sel:WORD_0
    v_sub_u32_sdwa v{h+3}, v{h+3}, sext(v3) dst_sel:DWORD dst_unused:UNUSED_PAD src0_sel:DWORD src1_sel:WORD_1
    """)
    w = (OPT["gp"] >> (4*(4-rt))) & 15 if OPT["gp"] else OPT["gpace"]
    if 0 <= w < 4*rt: E(f"s_waitcnt vmcnt({w})")
    if OPT["ghold"] == rt + 1:
        E("v_mov_b32 v6, v2\nv_mov_b32 v7, v3"); lds_wait(L_CTR, 0xff00, 0x400, "gh", sleep=1); E("v_mov_b32 v2, v6\nv_mov_b32 v3, v7")
    for r in range(4):
        E(f"v_perm_b32 v{h+r}, v{h+r}, v{4 + (r>>1)}, s{44 + (r&1)}")
        if OPT["gwin"] >= 0: E(f"s_waitcnt vmcnt({OPT['gwin']})")
        E(f"global_store_dword v11, v{h+r}, s[20:21] offset:{256*r} sc1")
    if rt < 4: E("v_add_u32 v11, 0x1000, v11")
def fin(rt):
    a = AC + 8*(rt % 3); u = a + 4
    for r in range(4): E(f"v_mul_f32 v{a+r}, s40, v{a+r}")
    for r in range(4): E(f"v_mul_f32 v{u+r}, s42, v{u+r}")
    E(f"""
    v_cvt_pk_bf16_f32 v{a}, v{a}, v{a+1}
    v_cvt_pk_bf16_f32 v{a+1}, v{a+2}, v{a+3}
    v_cvt_f64_f32 v[2:3], v{u}
    v_cvt_f64_f32 v[4:5], v{u+1}
    v_cvt_f64_f32 v[6:7], v{u+2}
    v_cvt_f64_f32 v[8:9], v{u+3}
    ds_write_b64 v16, v[{a}:{a+1}] offset:512
    ds_write2_b64 v16, v[2:3], v[4:5] offset0:0 offset1:16
    ds_write2_b64 v16, v[6:7], v[8:9] offset0:32 offset1:48
    """)
    if rt < 4: E(f"v_add_u32 v16, {16*NSTR}, v16")
E(f"""
    s_cmp_lg_u32 s33, 0
    s_cbranch_scc1 L_gemm2
    s_cmp_lg_u32 s{S_SAFE}, 0
    s_cbranch_scc1 L_nog1
    s_setprio 2
""")
gemm(False, pack, lambda: lds_wait(L_CTR, {1: 0x80000, 2: 0xc0000}[OPT["hold"]], 0, "hold", sleep=1, ne=True) if OPT["hold"] else None)
E("s_setprio 0")
if OPT["gate"]:
    E(f"""
    s_mov_b64 exec, 1
    ds_add_u32 v18, v19 offset:{L_GST}
    s_mov_b64 exec, -1
    """)
STAMP(4)
main_consts()
E(f"""
    s_lshl_b32 s30, s{S_P}, 7
    s_add_u32 s30, s30, {WS_FL2}
    v_mov_b32 v60, s30
    v_mov_b32 v62, s{S_TAG}
    v_mov_b32 v63, s{S_TAG+1}
    v_mov_b32 v2, 0
    v_mov_b32 v3, 1
    s_lshl_b32 s30, s32, 13
    s_lshl_b32 s31, s{S_HALF}, 7
    s_add_u32 s30, s30, s31
    s_add_u32 s30, s30, {WS_FL2}
    v_lshl_add_u32 v64, v1, 8, s30
    s_mul_i32 s30, s32, {2560*256}
    s_lshr_b32 s31, s2, 3
    s_mul_i32 s31, s31, {160*128}
    s_add_u32 s30, s30, s31
    v_lshl_add_u32 v65, v1, 7, s30
    v_min_u32 v65, {G_HALF - 128}, v65
    s_mul_i32 s30, s{S_HALF}, {G_HALF}
    v_add_u32 v65, s30, v65
    s_mov_b64 exec, 1
    s_waitcnt vmcnt(0)
    ds_add_rtn_u32 v61, v2, v3 offset:{L_DONE2}
    s_waitcnt lgkmcnt(0)
    v_readfirstlane_b32 s30, v61
    s_cmp_lg_u32 s30, 3
    s_cbranch_scc1 L_nofl
    global_store_dwordx2 v60, v[62:63], s[20:21] sc1
    ds_add_u32 v2, v3 offset:{L_DONE2}
L_nofl:
""")
STAMP(5)
if OPT["p2gate"]:
    E("s_mov_b64 exec, -1")
    lds_wait(L_CTR, 0xff0000, 0x080000, "pg", sleep=1)
    E("s_mov_b32 exec_hi, 0")
if OPT["p2wait"]: E(f"s_sleep {OPT['p2wait']}")
STAMP(6)
def gready():
    if OPT["gpf"]:
        E(f"""
        {"s_bfm_b64 exec, %d, 0" % OPT["gpf"] if OPT["gpf"] < 64 else "s_mov_b64 exec, -1"}
        global_load_dword v35, v65, s[20:21] sc1
        """)
    E(f"""
    s_mov_b64 exec, 1
    v_mov_b32 v2, 0
    v_mov_b32 v3, 1
    ds_add_u32 v2, v3 offset:{L_GOK}
    """)
E(f"""
    s_cmp_eq_u32 s32, 3
    s_cselect_b32 exec_lo, 0x1fffffff, -1
    {"" if OPT["p1st"] else "s_mov_b64 s[66:67], exec"}
    {"" if OPT["p1st"] else "s_branch L_p2n"}
    global_load_dwordx2 v[66:67], v64, s[20:21] sc1
    s_waitcnt vmcnt(0)
    v_cmp_ne_u64 s[66:67], s[{S_TAG}:{S_TAG+1}], v[66:67]
    s_cmp_lg_u64 s[66:67], 0
    s_cbranch_scc1 L_p2n
""")
gready()
E("L_p2n:\ns_mov_b64 exec, -1")
STAMP(7)
E(f"""
    s_branch L_b4
L_nog1:
    s_mov_b64 exec, 1
    ds_add_u32 v18, v19 offset:{L_RD}
    s_mov_b64 exec, -1
    s_branch L_rec
L_gemm2:
""")
E("s_sub_u32 s29, s3, 4")
rec_setup()
for rt in range(5):
    for ks in range(4): E(xread(rt, ks))
E(f"""
    s_mov_b64 exec, 1
    ds_add_u32 v18, v19 offset:{L_RD}
    s_mov_b64 exec, -1
""")
lds_wait(L_RD, 0xff, 8, "rd")
lds_wait(L_CTR, 0xff00, 0x400, "au")
for ks in range(4): wreads(ks)
for ks in range(4):
    E(f"s_waitcnt lgkmcnt({12 - 4*ks})"); mf(0, ks, True)
for rt in range(1, 5):
    for ks in range(4): mf(rt, ks, True)
    fin(rt-1)
fin(4)
STAMP(4)
E(f"""
    s_branch L_rec
L_sort:
""")
STAMP(1)
E(f"""
    s_mov_b32 s40, {f32(-LOG2E)}
    s_mov_b32 s46, 0x3f80
    s_cmp_lg_u32 s{S_SAFE}, 0
    s_cbranch_scc1 L_sortskip
    v_mov_b32 v21, 1
    v_mov_b32 v20, 3
    s_mov_b32 s31, 52429
    s_movk_i32 s32, -20
    v_lshlrev_b32 v9, 3, v1
    v_lshlrev_b32 v33, 4, v0
    s_mul_i32 s30, s{S_P}, {SORTB}
    s_add_u32 s30, s30, {WS_REC + 4096}
    v_add_u32 v32, s30, v33
    v_add_u32 v34, 8192, v32
    s_lshl_b32 s30, s{S_P}, 10
    s_add_u32 s30, s30, {WS_ROW}
    v_lshl_add_u32 v42, v1, 4, s30
    s_mov_b32 s34, {POLL_MAX}
    s_setprio 3
    s_waitcnt vmcnt(6)
""")
STAMP(2)
FSTAMP(1)
for i in range(5):
    E(f"""
    v_mul_u32_u24 v{22+i}, s31, v{4+i}
    v_lshrrev_b32 v{22+i}, 22, v{22+i}
    v_lshlrev_b32 v{22+i}, 2, v{22+i}        ; bucket*4
    ds_add_rtn_u32 v{27+i}, v{22+i}, v20 offset:{L_SCNT}
    """)
E(f"""
    s_mov_b64 exec, 1
    s_cmp_lg_u32 s3, 0
    s_cbranch_scc1 L_notag
    s_waitcnt vmcnt(5)
    ds_write_b32 v48, v43 offset:{L_SCNT + 125*4}
L_notag:
    ds_add_u32 v48, v21 offset:{L_SCNT + 127*4}
    s_mov_b64 exec, -1
L_s1:
    ds_read_b32 v38, v48 offset:{L_SCNT + 127*4}
    ds_read_b64 v[36:37], v9 offset:{L_SCNT}
    s_sub_u32 s34, s34, 1
    s_cbranch_scc1 L_s1d
    s_waitcnt lgkmcnt(0)
    v_readfirstlane_b32 s30, v38
    s_cmp_lg_u32 s30, 4
    s_cbranch_scc1 L_s1
L_s1d:
""")
FSTAMP(2)
E(f"""
    v_add3_u32 v39, v36, v37, 2
    v_add3_u32 v38, v36, v37, 2
    v_readlane_b32 s{S_TAGRAW}, v37, 62
""")
fill = []
for i in range(5):
    fill += [f"v_mad_i32_i24 v{4+i}, v{22+i}, s32, v{4+i}", f"v_lshlrev_b32 v{4+i}, 24, v{4+i}"]
for k, m in enumerate(SCAN):
    E(f"v_add_u32_dpp v39, v39, v39 {m}")
    for x in fill[2*k:2*k+2]: E(x)
E(f"""
    v_sub_u32 v40, v39, v38
    v_add3_u32 v41, v40, v36, 1
    s_mov_b32 s30, {L_SORT}
    v_lshl_add_u32 v38, v40, 2, s30
    v_lshl_add_u32 v39, v41, 2, s30
    ds_write_b64 v9, v[38:39] offset:{L_SOFF}
""")
for i in range(5):
    E(f"ds_read_b32 v{22+i}, v{22+i} offset:{L_SOFF}")
finish_tag()
E(f"""
    s_cmp_lg_u32 s3, 0
    s_cbranch_scc1 L_nopub
    s_and_b32 s35, s{S_TAG+1}, 0xff000000
    v_mov_b32 v45, s{S_TAG}
    v_mov_b32 v47, s{S_TAG}
    v_lshl_or_b32 v44, v36, 12, v40
    v_lshl_or_b32 v46, v37, 12, v41
    v_or_b32 v44, s35, v44
    v_or_b32 v46, s35, v46
    global_store_dwordx4 v42, v[44:47], s[20:21] sc1
    s_waitcnt vmcnt(1)
    s_branch L_pub
L_nopub:
    s_cmp_lg_u32 s3, 1
    s_cbranch_scc1 L_nochk
    v_mov_b32 v44, s{S_TAG+1}
    s_mov_b32 exec_hi, 0x7fffffff
    ds_add_u32 v38, v44
    ds_add_u32 v39, v44
    s_mov_b32 exec_hi, -1
L_nochk:
    s_waitcnt vmcnt(0)
L_pub:
""")
STAMP(4)
FSTAMP(3)
for i in range(5): E(f"v_lshl_or_b32 v{4+i}, v{12+i}, 8, v{4+i}")
E("s_waitcnt lgkmcnt(0)")
for i in range(5):
    E(f"""
    v_lshl_add_u32 v{27+i}, v{27+i}, 2, v{22+i}
    v_add3_u32 v{12+i}, v{52+2*i}, v{53+2*i}, v{4+i}
    ds_write2_b32 v{27+i}, v{52+2*i}, v{53+2*i} offset0:2 offset1:3
    ds_write_b32 v{27+i}, v{4+i} offset:4
    ds_sub_u32 v{22+i}, v{12+i}
    """)
E(f"""
    s_mov_b64 exec, 1
    ds_add_u32 v48, v21 offset:{L_SCNT + 126*4}
    s_mov_b64 exec, -1
""")
FSTAMP(4)
E(f"""
    s_mov_b32 s34, {POLL_MAX}
L_s2:
    ds_read_b32 v38, v48 offset:{L_SCNT + 126*4}
    {f"ds_read_b32 v39, v48 offset:{L_CTR}" if OPT["wgate"] else ""}
    ds_read_b128 v[72:75], v33 offset:{L_SORT}
    s_sub_u32 s34, s34, 1
    s_cbranch_scc1 L_s2d
    s_waitcnt lgkmcnt(1)
    v_readfirstlane_b32 s30, v38
""")
if OPT["wgate"]:
    E(f"""
    v_readfirstlane_b32 s31, v39
    s_lshr_b32 s31, s31, 24
    s_add_u32 s30, s30, s31
    """)
E(f"""
    s_cmp_lg_u32 s30, {12 if OPT["wgate"] else 4}
    s_cbranch_scc1 L_s2
L_s2d:
""")
FSTAMP(5)
E(f"""
    ds_read_b128 v[76:79], v33 offset:{L_SORT + 4096}
    ds_read_b128 v[80:83], v33 offset:{L_SORT + 8192}
    ds_read_b128 v[84:87], v33 offset:{L_SORT + 12288}
    s_waitcnt lgkmcnt(3)
    global_store_dwordx4 v32, v[72:75], s[20:21] offset:-4096 sc1
    s_waitcnt lgkmcnt(2)
    global_store_dwordx4 v32, v[76:79], s[20:21] sc1
    s_waitcnt lgkmcnt(1){f" vmcnt({OPT['rpace']})" if OPT['rpace'] >= 0 else ""}
    global_store_dwordx4 v34, v[80:83], s[20:21] offset:-4096 sc1
    s_cmp_eq_u32 s3, 3
    s_cselect_b32 exec_hi, 0, -1
    s_waitcnt lgkmcnt(0){f" vmcnt({OPT['rpace']})" if OPT['rpace'] >= 0 else ""}
    global_store_dwordx4 v34, v[84:87], s[20:21] sc1
    s_mov_b32 exec_hi, -1
""")
FSTAMP(6)
for k in range(4): E(f"ds_write_b128 v33, v[48:51] offset:{L_SORT + 4096*k}")
STAMP(3)
FSTAMP(7)
E(f"""
    s_branch L_sortdone
L_sortskip:
    s_waitcnt vmcnt(0)
L_sortdone:
    v_lshrrev_b32 v5, 3, v1
    v_bfe_u32 v3, v1, 4, 1
    v_lshlrev_b32 v3, 1, v3
    v_and_b32 v20, 7, v1
    v_xor_b32 v3, v3, v20
    v_lshlrev_b32 v3, 4, v3
    v_lshl_add_u32 v10, v5, 8, v3
    s_lshl_b32 s30, s{S_HALF}, 7
    s_and_b32 s31, s3, 1
    s_lshl_b32 s31, s31, 14
    s_add_u32 s30, s30, s31
    v_add_u32 v10, s30, v10
    v_xor_b32 v11, 64, v10
    v_add_u32 v12, 2048, v10
    v_add_u32 v13, 3072, v11
    v_add_u32 v11, 1024, v11
    s_lshl_b32 s30, s3, 13
    s_add_u32 m0, s30, {L_WAU}
    s_cmp_lt_u32 s3, 2
    s_cselect_b32 s34, s16, s12
    s_cselect_b32 s35, s17, s13
    global_load_lds_dwordx4 v10, s[34:35]
    global_load_lds_dwordx4 v11, s[34:35] offset:1024
    global_load_lds_dwordx4 v12, s[34:35] offset:2048
    global_load_lds_dwordx4 v13, s[34:35] offset:3072
    s_add_u32 m0, m0, 4096
    s_add_u32 s34, s34, 8192
    s_addc_u32 s35, s35, 0
    global_load_lds_dwordx4 v10, s[34:35]
    global_load_lds_dwordx4 v11, s[34:35] offset:1024
    global_load_lds_dwordx4 v12, s[34:35] offset:2048
    global_load_lds_dwordx4 v13, s[34:35] offset:3072
    s_mov_b32 s29, s3
""")
rec_setup()
E(f"""
L_rec:
""")
lds_wait(L_CTR, 0xff, 8, "r0")
main_consts()
STAMP(5)
E(f"""
    s_cmp_ge_u32 s3, 4
    s_cbranch_scc1 L_nod2
    v_mov_b32 v2, 0
    v_mov_b32 v3, 0x100
    s_mov_b64 exec, 1
    s_waitcnt vmcnt(0)
    ds_add_u32 v2, v3 offset:{L_CTR}
    s_mov_b64 exec, -1
L_nod2:
    s_cmp_lg_u32 s{S_SAFE}, 0
    s_cbranch_scc1 L_recskip
    s_lshr_b32 s35, s{S_TAG+1}, 24
    s_mov_b64 exec, s[66:67]
    s_mov_b32 s34, {POLL_MAX}
    s_branch L_p1c
L_p1:
    global_load_dwordx2 v[{ENT}:{ENT+1}], v{ROWA}, s[20:21] sc1
L_p1c:
    s_sub_u32 s34, s34, 1
    s_cbranch_scc1 L_toobig
    s_waitcnt vmcnt(0)
    v_cmp_ne_u32 vcc, s{S_TAG}, v{ENT+1}
    v_cmp_ne_u32_sdwa s[48:49], v{ENT}, s35 src0_sel:BYTE_3 src1_sel:DWORD
    s_or_b64 exec, vcc, s[48:49]
    s_cbranch_scc1 L_p1
    s_mov_b64 exec, -1
""")
STAMP(6)
if OPT["cnt"]: E(f"s_sub_u32 s{ST0+2}, {POLL_MAX+1}, s34\ns_mov_b32 s34, {POLL_MAX}")
E(f"""
    v_and_b32 v{CAD}, 0xfff, v{ENT}
    v_bfe_u32 v{ENT}, v{ENT}, 12, 12            ; 3*count
    v_add_lshl_u32 v{CAD}, v{CAD}, v{CELL}, 2
    v_cmp_ne_u32 vcc, 0, v{ENT}
    s_sub_u32 s30, 0, s{S_TAG+1}
    v_mov_b32 v2, s30
    v_cndmask_b32 v{ENT+1}, 0, v2, vcc
    v_cmp_lt_u32 vcc, 96, v{ENT}
    v_cmp_lt_u32 s[68:69], 48, v{ENT}
    s_cbranch_vccnz L_toobig
""")
for p in range(NP):
    E(f"""
    v_add_co_u32_dpp v2, vcc, v{ENT}, v{J3N} row_newbcast:{p} row_mask:0xf bank_mask:0xf
    v_add_u32_dpp v{RAD+p}, v{CAD}, v{J12} row_newbcast:{p} row_mask:0xf bank_mask:0xf
    s_mov_b64 s[{48+2*p}:{49+2*p}], vcc
    """)
lds_wait(L_CTR, 0xff00, 0x400, "r1")
if OPT["gate"]: lds_wait(L_GST, 0xff, 4, "gt")
if OPT["gate2"]:
    E("s_cmp_lt_u32 s3, 4\ns_cbranch_scc1 L_wd_g2")
    lds_wait(L_DONE2, 0xff, 5, "g2")
E(f"""
    s_or_b32 s68, s68, s69
    s_lshr_b32 s69, s68, 16
    s_or_b32 s68, s68, s69
""")
def mask2(p): return f"v_add_co_u32_dpp v2, vcc, v{ENT}, v{J3N2} row_newbcast:{p} row_mask:0xf bank_mask:0xf"
def loads(ps, lab):
    E(f"s_and_b32 s30, s68, {sum(1 << p for p in ps)}\ns_cbranch_scc0 L_nx{lab}")
    for p in ps:
        r = RB + 4*p
        E(f"""
        s_bitcmp1_b32 s68, {p}
        s_cbranch_scc0 L_nx{lab}{p}
        {mask2(p)}
        s_mov_b64 exec, vcc
        global_load_dwordx4 v[{r}:{r+3}], v{RAD+p}, s[20:21] offset:192 sc1
        s_mov_b64 exec, -1
L_nx{lab}{p}:
        """)
    E(f"L_nx{lab}:")
    for p in ps:
        r = RA + 4*p
        E(f"""
        s_mov_b64 exec, s[{48+2*p}:{49+2*p}]
        global_load_dwordx4 v[{r}:{r+3}], v{RAD+p}, s[20:21]{SC1 if (OPT["rsc1"] or lab != "m") else ""}
        """)
    E("s_mov_b64 exec, -1")
loads(range(NP), "m")
def issued():
    if OPT["p2gate"]:
        E(f"""
        v_mov_b32 v2, 0
        v_mov_b32 v3, 0x10000
        s_mov_b64 exec, 1
        ds_add_u32 v2, v3 offset:{L_CTR}
        s_mov_b64 exec, -1
        """)
if not OPT["sig"]: issued()
STAMP(7)
def rank(r, m):
    E(f"""
    s_mov_b64 exec, {m}
    v_mul_u32_u24_sdwa v{r}, v{FOUR}, v{r+1} dst_sel:DWORD dst_unused:UNUSED_PAD src0_sel:DWORD src1_sel:BYTE_3
    v_and_b32 v{r+1}, {OPT['srcmask']}, v{r+1}
    ds_add_rtn_u32 v{r}, v{r}, v{FOUR} offset:{L_CNT}
    """)
def put(r, m):
    E(f"""
    s_mov_b64 exec, {m}
    v_lshlrev_b32 v2, 1, v{r}
    ds_write_b32 v{r}, v{r+1}
    ds_write_b64 v2, v[{r+2}:{r+3}] offset:{L_EA - 2*L_SRC}
    """)
retries = []
pending = []
for gi, grp in enumerate(((0, 1, 2, 3), (4, 5), (6, 7))):
    bits = sum(1 << p for p in grp); m32 = bits | (bits << 16)
    E(f"""
L_ck{gi}:
    s_mov_b32 vcc_lo, {m32}
    s_mov_b32 vcc_hi, {m32}
    v_cndmask_b32 v{ACC}, 0, v{ENT+1}, vcc
    s_and_b32 s30, s68, {bits}
    s_cbranch_scc1 L_xa{gi}
L_xb{gi}:
    """)
    def xacc():
        E(f"L_xa{gi}:\ns_waitcnt vmcnt({NP})")
        for p in grp:
            r = RB + 4*p
            E(f"""
            {mask2(p)}
            s_mov_b64 exec, vcc
            v_add3_u32 v{ACC}, v{ACC}, v{r+1}, v{r+2}
            v_add_u32 v{ACC}, v{ACC}, v{r+3}
            s_mov_b64 exec, -1
            """)
        E(f"s_branch L_xb{gi}")
    emit_to(outofline, xacc)
    for p in grp:
        r = RA + 4*p
        E(f"""
        s_waitcnt vmcnt({NP-1-p})
        s_mov_b64 exec, s[{48+2*p}:{49+2*p}]
        v_and_b32 v{r}, v{r}, v{L0M}
        v_add3_u32 v{ACC}, v{ACC}, v{r+2}, v{r+3}
        v_add3_u32 v{ACC}, v{ACC}, v{r}, v{r+1}
        """)
    E("s_mov_b64 exec, -1\ns_nop 0")
    for k in (1, 2, 4, 8):
        E(f"v_add_u32_dpp v{ACC}, v{ACC}, v{ACC} row_ror:{k} row_mask:0xf bank_mask:0xf")
        if k < 8: E("s_nop 1")
    E(f"v_cmp_ne_u32 vcc, 0, v{ACC}\ns_cbranch_vccnz L_rt{gi}")
    if OPT["rst"]: STAMP(1+gi)
    if OPT["sig"] == gi + 1: issued()
    def retry():
        E(f"L_rt{gi}:\ns_sub_u32 s34, s34, 1\ns_cbranch_scc1 {'L_toobig' if gi < OPT['sig'] else 'L_giveup'}")
        loads(grp, f"r{gi}_")
        E(f"s_waitcnt vmcnt(0)\ns_branch L_ck{gi}")
    emit_to(outofline, retry)
    for p in grp: rank(RA + 4*p, f"s[{48+2*p}:{49+2*p}]")
    E(f"s_and_b32 s30, s68, {bits}\ns_cbranch_scc1 L_ya{gi}\nL_yb{gi}:")
    def xput():
        E(f"L_ya{gi}:")
        for p in grp:
            r = RB + 4*p
            E(f"""
            s_bitcmp1_b32 s68, {p}
            s_cbranch_scc0 L_yn{p}
            s_mov_b64 exec, -1
            {mask2(p)}
            """)
            rank(r, "vcc")
            E("s_waitcnt lgkmcnt(0)")
            put(r, "vcc")
            E(f"L_yn{p}:")
        E(f"s_branch L_yb{gi}")
    emit_to(outofline, xput)
    for k, p in enumerate(grp):
        E(f"s_waitcnt lgkmcnt({len(grp) - 1 - k + 2*k})")
        put(RA + 4*p, f"s[{48+2*p}:{49+2*p}]")
    E("s_mov_b64 exec, -1")
E(f"""
    {f"s_sub_u32 s{ST0+4}, {POLL_MAX+1}, s34" if OPT["cnt"] else ""}
    s_branch L_b4
L_toobig:
    s_mov_b64 exec, -1
""")
issued()
E(f"""
L_giveup:
    v_mov_b32 v2, 0
    ds_write_b32 v2, v{FOUR} offset:{L_FLAG}
L_recskip:
    s_waitcnt vmcnt(0)
L_b4:
    s_setprio {OPT["p0"] if OPT["prio"] == 2 else 0}
    s_mul_i32 s30, s{S_HALF}, {G_HALF}
    {f"s_add_u32 s30, s30, {WS0}" if WS0 else ""}
    s_add_u32 s36, s20, s30
    s_addc_u32 s37, s21, 0
    s_mov_b32 s38, {OPT['nrec'] or G_HALF}
    s_mov_b32 s39, 0x20000
    s_mov_b32 s44, 128
    s_mov_b32 s45, 128
    ds_read_b128 v[60:63], v{LP}
    ds_read_b64 v[{AG}:{AG+1}], v{LP} offset:64
    ds_read_b64 v[{WN2}:{WN2+1}], v{LP} offset:72
    ds_read_b32 v{WE}, v{LP+1}
    s_waitcnt lgkmcnt(0)
    v_lshl_add_u64 v[{AG}:{AG+1}], v[{AG}:{AG+1}], 0, v[{LN8}:{LN8+1}]
    v_lshl_add_u32 v{WE}, v{WE}, 1, v{EAC}
""")
if OPT["warm"]:
    E(f"""
    s_barrier
    s_lshr_b32 s30, s2, 3
    s_mul_i32 s30, s30, 98304
    v_lshl_add_u32 v2, v0, 7, s30
    buffer_load_dword v3, v2, s[36:39], 0 offen sc1
    s_waitcnt vmcnt(0)
    s_sleep 40
    """)
STAMP(8)
E(f"""
    s_barrier                               ; B4
    s_cmp_lg_u32 s{S_SAFE}, 0
    s_cbranch_scc1 L_safe
    ds_read_b128 v[{T}:{T+3}], v60
    ds_read_b128 v[{T+4}:{T+7}], v61
    ds_read_b64 v[{XA}:{XA+1}], v{AG} offset:512
    ds_read_b64 v[{EA}:{EA+1}], v{WE}
    s_lshr_b32 s30, s3, 2
    s_cmp_lg_u32 s30, 1
    s_cbranch_scc1 L_nopoll
    s_mov_b64 exec, s[66:67]
    s_cbranch_execz L_p2e
    s_mov_b32 s31, {POLL_MAX}
L_p2:
    global_load_dwordx2 v[66:67], v64, s[20:21] sc1
    s_sub_u32 s31, s31, 1
    s_cbranch_scc1 L_p2d
    s_waitcnt vmcnt(0)
    v_cmp_ne_u64 vcc, s[{S_TAG}:{S_TAG+1}], v[66:67]
    s_and_b64 exec, exec, vcc
    s_cbranch_scc0 L_p2d
    {f"s_sleep {OPT['p2sleep']}" if OPT['p2sleep'] else ""}
    s_branch L_p2
L_p2d:
""")
gready()
E(f"""
L_p2e:
    s_mov_b64 exec, -1
L_nopoll:
    s_cmp_lt_u32 s3, {NW-2}
    s_cbranch_scc1 L_nobuild
    v_lshlrev_b32 v2, 3, v1
    v_mov_b32 v3, 0
    ds_read_b64 v[72:73], v2 offset:{L_CNT}
    ds_read_b32 v79, v3 offset:{L_FLAG}
    v_mul_u32_u24 v74, {2*SSTR}, v1
    v_add_u32 v74, {L_SRC + 96}, v74
    v_add_u32 v75, {SSTR}, v74
    v_mul_u32_u24 v82, {2*NSTR}, v1
    s_and_b32 s32, s3, 1
    s_mul_i32 s30, s32, {NSTR}
    s_add_u32 s30, s30, {L_NODE}
    v_add_u32 v82, s30, v82
    v_mov_b32 v83, v82
    s_mul_i32 s30, s32, {SSTR}
    v_add_u32 v80, s30, v74
    v_add_u32 v81, 16, v80
    s_waitcnt lgkmcnt(0)
    v_sub_u32 v72, v72, v74 clamp
    v_sub_u32 v73, v73, v75 clamp
    v_max_u32 v76, v72, v73
    v_cmp_lt_u32 vcc, 160, v76
    v_cmp_ne_u32 s[48:49], 0, v79
    v_add_u32 v74, 12, v72
    v_add_u32 v75, 12, v73
    s_or_b64 vcc, vcc, s[48:49]
    s_cbranch_scc1 L_bad
    v_add_u32 v72, 28, v72
    v_add_u32 v73, 28, v73
    v_lshrrev_b32 v74, 5, v74
    v_lshrrev_b32 v75, 5, v75
    v_lshrrev_b32 v72, 5, v72
    v_lshrrev_b32 v73, 5, v73
    v_sub_u32 v72, v72, v74
    v_sub_u32 v73, v73, v75
    v_lshl_or_b32 v72, v72, 16, v74
    v_lshl_or_b32 v73, v73, 16, v75
    v_add_u32 v76, v72, v73
    v_add_u32 v77, v72, v73
""")
scan(77)
E(f"""
    s_cmp_eq_u32 s32, 0
    s_cselect_b64 vcc, -1, 0
    v_readlane_b32 s30, v77, 63
    v_cndmask_b32 v76, v73, v76, vcc
    v_cndmask_b32 v72, v73, v72, vcc
    v_sub_u32 v77, v77, v76
    s_and_b32 s31, s30, 0xffff
    s_add_u32 s31, s31, 3
    s_lshr_b32 s31, s31, 2
    s_add_u32 s30, s30, 0x30000
    s_lshr_b32 s30, s30, 18
    s_lshl_b32 s33, s31, 1
    s_add_u32 s33, s33, s30
    s_cmp_gt_u32 s33, 112
    s_cbranch_scc1 L_bad
    s_lshl_b32 s30, s30, 8
    s_or_b32 s29, s30, s31
    v_and_b32 v74, 0xffff, v72
    v_and_b32 v76, 0xffff, v77
    s_mov_b32 s34, {L_LISTC}
    s_mov_b32 s35, {L_LIST + 384}
""")
def slotaddr():
    E(f"""
    v_add_u32 v78, 16, v76
    v_bfe_u32 v79, v76, 2, 2
    v_lshl_add_u32 v79, v79, 10, s34
    v_lshrrev_b32 v84, 5, v78
    v_lshl_add_u32 v79, v84, 7, v79
    v_bfe_u32 v84, v78, 4, 1
    v_lshl_add_u32 v79, v84, 3, v79
    v_lshrrev_b32 v84, 2, v76
    v_cmp_gt_u32 vcc, 32, v76
    v_lshl_add_u32 v84, v84, 9, s35
    v_and_b32 v78, 3, v76
    v_cndmask_b32 v79, v79, v84, vcc
    v_lshl_add_u32 v79, v78, 4, v79
    """)
E("""
L_bf:
    v_cmp_ne_u32 vcc, 0, v74
    s_and_b64 exec, exec, vcc
    s_cbranch_execz L_bfd
""")
slotaddr()
E(f"""
    ds_write_b64 v79, v[80:81]
    ds_write_b64 v79, v[82:83] offset:64
    v_add_u32 v80, 32, v80
    v_add_u32 v81, 32, v81
    v_add_u32 v76, 1, v76
    v_subrev_u32 v74, 1, v74
    s_branch L_bf
L_bfd:
    s_mov_b64 exec, -1
    v_lshrrev_b32 v77, 16, v77
    v_lshrrev_b32 v76, 3, v77
    v_add_u32 v76, s31, v76
    v_and_b32 v78, 3, v77
    v_lshl_add_u32 v76, v76, 2, v78
""")
slotaddr()
E(f"""
    v_and_b32 v78, 4, v77
    v_add_u32 v79, v79, v78
    v_cmp_lt_u32 vcc, 0xffff, v72
    s_mov_b64 exec, vcc
    ds_write2_b32 v79, v80, v82 offset0:0 offset1:16
    s_mov_b64 exec, -1
    s_mul_i32 s29, s29, s32
    s_add_u32 s29, s29, 0x10000
    s_branch L_built
L_bad:
    s_mov_b32 s29, 0x1010000
L_built:
    v_mov_b32 v2, s29
    s_mov_b64 exec, 1
    ds_add_u32 v3, v2 offset:{L_NST}
    s_add_u32 s30, s{S_P}, s32
    s_cmp_lg_u32 s30, 0
    s_cbranch_scc1 L_notw
    v_mov_b32 v2, s{S_TAG}
    v_mov_b32 v3, {WS_TAG}
    global_store_dword v3, v2, s[20:21]
L_notw:
    s_mov_b64 exec, -1
L_nobuild:
    s_waitcnt lgkmcnt(0)
""")
assert DIST == 2 and not EARLY
E(m_a(D0))
for o in range(T, T+8, 2): E(oadd(o))
E(m_e(D0, 0))
lds_wait(L_GOK, 0xff, 4, "gok")
if OPT["stamps"] == 2: E(f"s_memrealtime s[{ST0+16}:{ST0+17}]")
if not OPT["nogather"]:
    for q in range(8): E(gload(G + 4*q, T+q))
STAMP(9)
E(f"""
    s_mov_b32 s31, {POLL_MAX}
    s_waitcnt vmcnt(4)
""")
E(m_s(D0, A1, G)); E(m_s(D0, A2, G+8))
E(f"""
L_wn:
    ds_read_b32 v3, v2 offset:{L_NST}
    ds_read_b128 v[{WS4}:{WS4+3}], v{LP} offset:{128*((DIST+EARLY)//4)}
    s_sub_u32 s31, s31, 1
    s_cbranch_scc1 L_gosafe
    s_waitcnt lgkmcnt(0)
    v_readfirstlane_b32 s30, v3
    s_bitcmp1_b32 s30, 17
    s_cbranch_scc0 L_wn
    s_cmp_gt_u32 s30, {0 if OPT["force_safe"] else 0xffffff}
    s_cbranch_scc1 L_gosafe
    s_and_b32 s31, s30, 0xff
    s_bfe_u32 s30, s30, 0x80008
    s_lshl_b32 s32, s31, 1
    s_add_u32 s30, s30, s32
    s_lshl_b32 s32, s3, 1
    s_sub_i32 s30, s30, s32
    s_max_i32 s30, s30, 0
    s_cmp_ge_u32 s3, 8
    s_cbranch_scc1 L_nc
    s_min_u32 s30, s30, 2
    s_add_u32 s{S_R}, s30, 12
    s_cmp_ge_u32 s3, s31
    s_cselect_b32 s30, 0x2000, 0
    s_or_b32 s{S_M}, s30, 0x5041
    s_branch L_nd
L_nc:
    s_add_u32 s32, s30, 7
    s_lshr_b32 s32, s32, 3
    s_lshl_b32 s32, s32, 1
    s_and_b32 s30, s30, 7
    s_cmp_eq_u32 s30, 1
    s_subb_u32 s32, s32, 0
    s_add_u32 s{S_R}, s32, 6
    s_sub_i32 s31, s31, s3
    s_add_i32 s31, s31, 3
    s_max_i32 s31, s31, 0
    s_lshr_b32 s31, s31, 2
    s_lshl_b32 s31, s31, 1
    s_add_u32 s31, s31, 7
    s_lshl_b32 s31, -1, s31
    s_or_b32 s{S_M}, s31, 0x55555541
L_nd:
    s_mov_b32 s{S_IT}, {(1 << OPT["pa"]) | (1 << OPT["pb"]) | (1 << OPT["pc"]) if OPT["prio"] == 2 else 0}
""")
if OPT["prio"]: E(f"s_setprio {OPT['p1']}")
STAMP(10)
if OPT["ptime"]: E("v_mov_b32 v35, 0\nv_mov_b32 v68, 0")
if OPT["stamps"] == 1: E(f"s_memtime s[{ST0+24}:{ST0+25}]\ns_waitcnt lgkmcnt(0)")
for u in range(4): phase(u, True)
for u in range(4): phase(u, False)
E(f"""
L_mdone:
    s_waitcnt lgkmcnt(0)
""")
STAMP(11)
if OPT["ptime"]:
    E(f"""
    s_lshl_b32 s30, s2, 4
    s_add_u32 s30, s30, s3
    s_lshl_b32 s30, s30, 8
    s_add_u32 s30, s30, 0xc00000
    v_lshl_add_u32 v2, v1, 2, s30
    s_mov_b32 exec_hi, 0
    global_store_dword v2, v35, s[20:21]
    global_store_dword v2, v68, s[20:21] offset:128
    s_mov_b64 exec, -1
    """)
if OPT["stamps"] == 1:
    E(f"s_memtime s[28:29]\ns_waitcnt lgkmcnt(0)\ns_sub_u32 s{ST0+24}, s28, s{ST0+24}")
E(f"""
    v_lshrrev_b32 v2, 5, v0
    v_and_b32 v3, 31, v0
    v_mul_u32_u24 v4, {NSTR}, v2
    v_and_b32 v5, 1, v3
    v_lshl_add_u32 v4, v5, 8, v4
    v_lshrrev_b32 v5, 1, v3
    v_lshl_add_u32 v4, v5, 3, v4
    v_add_u32 v4, {L_NODE}, v4
    s_mul_i32 s30, s{S_BUCK}, {NB*256}
    s_lshl_b32 s31, s{S_HALF}, 7
    s_add_u32 s30, s30, s31
    v_lshlrev_b32 v3, 2, v3
    v_lshl_add_u32 v5, v2, 8, v3
    v_add_u32 v5, s30, v5
    v_add_u32 v6, {24*256}, v5
    v_add_u32 v7, {48*256}, v5
    v_add_u32 v8, {72*256}, v5
    s_mov_b32 s32, {f32(2.0**32)}
    s_mov_b32 s34, {f32(-LOG2E * 2.0**-32)}
    v_mov_b32 v9, 0x207
    s_barrier                               ; B5
""")
OSC = {0: "", 1: " sc1", 2: " nt"}[OPT["osc"]]
def epi(us):
    for u in us: E(f"ds_read_b64 v[{12+4*u}:{13+4*u}], v4 offset:{24*NSTR*u}\nds_read_b64 v[{14+4*u}:{15+4*u}], v4 offset:{24*NSTR*u + 128}")
    E("s_waitcnt lgkmcnt(0)")
    for u in us: E(f"v_cvt_f32_f64 v{28+2*u}, v[{12+4*u}:{13+4*u}]\nv_cvt_f32_f64 v{29+2*u}, v[{14+4*u}:{15+4*u}]")
    for u in us: E(f"v_pk_mul_f32 v[{36+2*u}:{37+2*u}], v[{28+2*u}:{29+2*u}], s[34:35] op_sel_hi:[1,0]")
    for u in us: E(f"v_exp_f32 v{36+2*u}, v{36+2*u}\nv_exp_f32 v{37+2*u}, v{37+2*u}")
    E("v_pk_add_f32 v[10:11], v[28:29], v[30:31]")
    for u in us: E(f"v_pk_fma_f32 v[{36+2*u}:{37+2*u}], v[{36+2*u}:{37+2*u}], s[32:33], s[32:33] op_sel_hi:[1,0,0]")
    for u in us: E(f"v_rcp_f32 v{36+2*u}, v{36+2*u}\nv_rcp_f32 v{37+2*u}, v{37+2*u}")
    E("v_pk_add_f32 v[10:11], v[10:11], v[32:33]")
    for u in us: E(f"v_pk_mul_f32 v[{36+2*u}:{37+2*u}], v[{28+2*u}:{29+2*u}], v[{36+2*u}:{37+2*u}]")
    for u in us: E(f"v_cvt_pk_bf16_f32 v{44+u}, v{36+2*u}, v{37+2*u}\nglobal_store_dword v{5+u}, v{44+u}, s[18:19]{OSC}")
    for u in us[3:]: E(f"v_pk_add_f32 v[10:11], v[10:11], v[{28+2*u}:{29+2*u}]")
E("s_cmp_ge_u32 s3, 4\ns_cbranch_scc1 L_e3")
epi([0, 1, 2, 3])
E("s_branch L_e4\nL_e3:")
epi([0, 1, 2])
E(f"""
L_e4:
    v_add_f32 v10, v10, v11
    v_cmp_class_f32 vcc, v10, v9
    v_mov_b32 v2, 0
    s_cmp_lg_u32 s{S_SAFE}, 0
    s_cbranch_scc1 L_fin
    {"s_branch" if OPT["nosafe"] else "s_cbranch_vccz"} L_e5
    ds_write_b32 v2, v9 offset:{L_FLAG}
    s_waitcnt lgkmcnt(0)
L_e5:
    s_barrier                               ; B6
    ds_read_b32 v2, v2 offset:{L_FLAG}
    s_waitcnt lgkmcnt(0)
    v_readfirstlane_b32 s30, v2
    s_cmp_lg_u32 s30, 0
    s_cbranch_scc1 L_gosafe
L_fin:
""")
if OPT["stamps"]:
    E("s_waitcnt vmcnt(0)"); STAMP(13); STAMP_OUT()
if OPT["probe"] >= 0:
    T_ = ST0 + 2*OPT["probe"]
    E(f"""
    s_cmp_lg_u32 s3, {OPT["pw"]}
    s_cbranch_scc1 L_end
    s_cmp_lg_u32 s2, {OPT["pg"] if OPT["pg"] >= 0 else "s2"}
    s_cbranch_scc1 L_end
    s_sub_u32 s30, s{T_}, s{ST0}
    s_lshl_b32 s30, s30, 2
    s_add_u32 s30, s30, 3000
    s_min_u32 s30, s30, 20000
L_spin:
    s_memrealtime s[28:29]
    s_waitcnt lgkmcnt(0)
    s_sub_u32 s28, s28, s{ST0}
    s_cmp_lt_u32 s28, s30
    s_cbranch_scc1 L_spin
    """)
E(f"""
L_end:
    s_endpgm
L_gosafe:
    s_mov_b32 s{S_SAFE}, 8
    s_setprio 0
    s_waitcnt vmcnt(0) lgkmcnt(0)
    s_barrier
    s_branch L_restart
""")
out += outofline
for r in retries: E(r)
E(f"""
L_safe:
    v_and_b32 v2, 15, v1
    v_lshlrev_b32 v3, 3, v2
    v_add_u32 v3, {L_C}, v3
""")
for k in range(4):
    for s in range(4):
        E(f"ds_read_u16 v{80+4*k+s}, v3 offset:{128*k + 2*s}")
E("s_waitcnt lgkmcnt(0)")
for i in range(16):
    E(f"v_lshlrev_b32 v{80+i}, 16, v{80+i}\nv_mul_f32 v{80+i}, s40, v{80+i}")
E(f"""
    v_lshrrev_b32 v24, 4, v1
    v_mul_u32_u24 v24, 3, v24               ; 3*quarter
    s_movk_i32 s33, {NSTR}
    v_add_u32 v25, {L_NODE}, v{LN8}
    s_mov_b32 s34, s3
    s_mov_b32 s35, {POLL_MAX}
L_scell:
    s_lshl_b32 s30, s34, 10
    s_lshl_b32 s31, s{S_BUCK}, 3
    s_add_u32 s30, s30, s31
    s_add_u32 s30, s30, {WS_ROW}
    v_mov_b32 v26, s30
    global_load_dword v32, v26, s[20:21] sc1
    s_mul_i32 s30, s34, {SORTB//4}
    s_add_u32 s30, s30, {WS_REC//4}
    s_waitcnt vmcnt(0)
    v_bfe_u32 v28, v32, 12, 12              ; 3*count
    v_and_b32 v27, 0xfff, v32
    v_add_u32 v27, s30, v27
L_sver:
    v_mov_b32 v29, v1
    v_mov_b32 v31, 0
L_sv1:
    v_cmp_ge_u32 vcc, v28, v29
    s_and_saveexec_b64 s[48:49], vcc
    s_cbranch_execz L_sv2
    v_add_lshl_u32 v30, v27, v29, 2
    global_load_dword v32, v30, s[20:21] sc1
    s_waitcnt vmcnt(0)
    v_add_u32 v31, v31, v32
    s_mov_b64 exec, s[48:49]
    v_add_u32 v29, 64, v29
    s_branch L_sv1
L_sv2:
    s_mov_b64 exec, s[48:49]
""")
scan(31)
E(f"""
    s_nop 0
    v_readlane_b32 s30, v31, 63
    s_cmp_eq_u32 s30, s{S_TAG+1}
    s_cbranch_scc1 L_sok
    s_sub_u32 s35, s35, 1
    s_cbranch_scc0 L_sver
    s_branch L_mdone
L_sok:
    v_mov_b32 v29, v24
L_srec:
    v_cmp_gt_u32 vcc, v28, v29
    s_and_saveexec_b64 s[48:49], vcc
    s_cbranch_execz L_snext
    v_add_lshl_u32 v30, v27, v29, 2
    global_load_dwordx3 v[32:34], v30, s[20:21] offset:4 sc1
    s_waitcnt vmcnt(0)
    v_and_b32 v30, 0x3fff00, v32
    v_add_u32 v30, v30, v{LN16}
    buffer_load_dwordx4 v[36:39], v30, s[36:39], 0 offen sc1
    v_lshrrev_b32 v31, 24, v32
    v_mad_u32_u24 v31, v31, s33, v25
    ds_read_b64 v[40:41], v31 offset:512
    v_lshlrev_b32 v44, 16, v33
    v_and_b32 v45, 0xffff0000, v33
    v_lshlrev_b32 v46, 16, v34
    v_and_b32 v47, 0xffff0000, v34
    s_waitcnt vmcnt(0) lgkmcnt(0)
    v_lshlrev_b32 v48, 16, v40
    v_and_b32 v49, 0xffff0000, v40
    v_lshlrev_b32 v50, 16, v41
    v_and_b32 v51, 0xffff0000, v41
""")
for s in range(4):
    E(f"v_lshlrev_b32 v52, 16, v{36+s}\nv_add_f32 v{48+s}, v{48+s}, v52")
    for k in range(4):
        E(f"v_fmac_f32 v{48+s}, v{44+k}, v{80+4*k+s}")
for s in range(4): E(f"v_exp_f32 v{48+s}, v{48+s}")
E("s_nop 0")
for s in range(4): E(f"v_add_f32 v{48+s}, 1.0, v{48+s}")
for s in range(4): E(f"v_rcp_f32 v{48+s}, v{48+s}")
E("s_nop 0")
for s in range(4): E(f"v_mul_f32 v{48+s}, v{48+s}, v{36+s}")
for s in range(4): E(f"v_cvt_f64_f32 v[{54+2*s}:{55+2*s}], v{48+s}")
for s in range(4): E(f"ds_add_f64 v31, v[{54+2*s}:{55+2*s}] offset:{128*s}")
E(f"""
    s_mov_b64 exec, s[48:49]
    v_add_u32 v29, 12, v29
    s_branch L_srec
L_snext:
    s_mov_b64 exec, s[48:49]
    s_add_u32 s34, s34, {NW}
    s_cmp_lt_u32 s34, {NCHUNK}
    s_cbranch_scc1 L_scell
    s_branch L_mdone
L_codeend:
.section .rodata,"a"
.p2align 6
.amdhsa_kernel {NAME}
.amdhsa_next_free_vgpr 168
.amdhsa_next_free_sgpr 102
.amdhsa_accum_offset 168
.amdhsa_group_segment_fixed_size 0
.amdhsa_kernarg_size 80
.amdhsa_user_sgpr_count 2
.amdhsa_user_sgpr_kernarg_segment_ptr 1
.amdhsa_system_sgpr_workgroup_id_x 1
.end_amdhsa_kernel
""")
if OPT["drop"]:
    i0 = out.index("L_L0:"); i1 = out.index("L_mdone:")
    pats = {1: ("smfmac",), 2: ("mfma",), 3: ("32x32x8",), 4: ("smfmac",), 5: ("v_exp",)}[OPT["drop"]]
    repl = {4: "    s_nop 2", 5: "    s_nop 1"}.get(OPT["drop"])
    mid = []
    for l in out[i0:i1]:
        if any(x in l for x in pats):
            if repl: mid.append(repl)
        else: mid.append(l)
    if OPT["drop"] == 3: mid = [l.replace("v[88:103] cbsz", "0 cbsz").replace("v[72:87] cbsz", "0 cbsz") for l in mid]
    out = out[:i0] + mid + out[i1:]
if OPT["nochain"]:
    i0 = out.index("L_L0:"); i1 = out.index("L_mdone:")
    out = out[:i0] + [l for l in out[i0:i1] if not any(x in l for x in ("v_exp", "v_pk_", "mfma", "v_rcp", "v_cvt"))] + out[i1:]
open(sys.argv[1], "w").write("\n".join(out) + "\n")
```

```python
import sys, struct

OPT = dict(hb=1, stamps=0, force_safe=0, nogather=0, nosafe=0, prio=2, gsc1=1, osc=1, codepf=1, srcmask=0x3fff00, nrec=0, warm=0,
           nochain=0, probe=-1, pw=-1, pg=-1, gpf=32, early=0, cnt=0, pollmax=200000, pa=7, pb=3, pc=1, p0=3, p1=3, ptime=0,
           dist=2, ldearly=0, drop=0, wgate=0, gate=0, gate2=1, rst=0, rsc1=1, nover=0, p2gate=1, p2sleep=0, hold=0, slate=2, lpos=0, p1st=1, sig=1, gpace=4, gwin=-1, gp=0xf448c, ghold=0, nte=0, ntx=0, rpace=-1, p2wait=0)
for a in sys.argv[2:]:
    k, v = a.split("=")
    assert k in OPT, k
    OPT[k] = int(v, 0)

out = []
def E(s=""):
    for line in s.split("\n"):
        line = line.strip()
        if not line:
            continue
        if line.endswith(":") or line.startswith(".") or line.startswith(";"):
            out.append(line)
        else:
            out.append("    " + line)

def f32(x):
    return "0x%08x" % struct.unpack("<I", struct.pack("<f", x))[0]

NAME = "standalone__edge_featured_mpnn_egc__graph_kernel"
LOG2E = 1.4426950408889634
NB = 80; NBUCK = 125; CHUNK = 1280; NCHUNK = 250
NW = 12
G_HALF = 10000 * 256
WS0 = 0
WS_REC = 0x500000
WS_ROW = 0x900000
WS_FL2 = 0x980000
WS_TAG = 0x9c0000
SORTB = CHUNK * 12 + 512
WS_STAMP = 0x1000000
L_CNT = 0; L_SOFF = 512
L_SCNT = 1024
L_CTR = 1536; L_RD = 1540; L_DONE2 = 1544; L_FLAG = 1548; L_NST = 1552; L_GST = 1556; L_GOK = 1560
L_DUM = L_SOFF
L_LIST = 2048
L_LISTC = L_LIST + 4096
SSTR = 272
L_SRC = L_LIST + 8192
SRCB = 80 * SSTR + 32
L_EA = L_SRC + SRCB
L_EAEND = L_EA + 2 * SRCB
L_SORT = L_EA
L_WBV = (L_EAEND + 255) // 256 * 256; L_X = L_WBV + 32768; L_WAU = L_X + 20480; L_C = L_WAU + 32768
LDS = L_C + 1024
L_NODE = L_WBV; NSTR = 648
assert L_NODE + 80 * NSTR <= L_WAU and LDS <= 163840 and L_EA % 16 == 0
NULL_SRC = 0x7fffff00
POLL_MAX = OPT["pollmax"]
SC1 = " sc1"
NTE = " nt" if OPT["nte"] else ""
NTX = " nt" if OPT["ntx"] else ""

S_HALF, S_BUCK, S_P = 22, 23, 24
S_SAFE, S_TAG = 25, 26
S_R, S_M, S_IT = 70, 71, 72
S_TAGRAW = 47
ST0 = 74

def ESTAMP(i):
    if OPT["early"] == 1 or (OPT["early"] and i == 0): E(f"s_memrealtime s[{ST0+2*i}:{ST0+2*i+1}]")
def FSTAMP(i):
    if OPT["early"] == 2: E(f"s_memrealtime s[{ST0+2*i}:{ST0+2*i+1}]\ns_waitcnt lgkmcnt(0)")
def STAMP(i):
    if OPT["stamps"] == 2:
        if i == 0: E(f"s_memrealtime s[{ST0}:{ST0+1}]")
        if i == 13: E(f"s_memrealtime s[{ST0+26}:{ST0+27}]\ns_waitcnt lgkmcnt(0)")
        return
    if OPT["early"] and 1 <= i <= 7: return
    if OPT["early"] and i == 0: return ESTAMP(0)
    if OPT["stamps"] or (OPT["probe"] >= 0 and i == OPT["probe"]):
        E(f"s_memrealtime s[{ST0+2*i}:{ST0+2*i+1}]\ns_waitcnt lgkmcnt(0)")
    elif OPT["probe"] >= 0 and i == 0:
        E(f"s_memrealtime s[{ST0}:{ST0+1}]")
NSTAMP = 14
def STAMP_OUT():
    if OPT["stamps"]:
        E(f"""
        s_lshl_b32 s30, s2, 4
        s_add_u32 s30, s30, s3
        s_lshl_b32 s30, s30, 6
        s_add_u32 s30, s30, {WS_STAMP - 0x100000}
        s_load_dwordx2 s[20:21], s[0:1], 72
        s_waitcnt lgkmcnt(0)
        s_mov_b64 exec, -1
        v_mov_b32 v3, s30""")
        for i in (range(NSTAMP) if OPT["stamps"] == 1 else (0, 8, 13)):
            E(f"v_mov_b32 v2, s{ST0+2*i}\nglobal_store_dword v3, v2, s[20:21] offset:{4*i}")
        E("s_waitcnt vmcnt(0)")

A1, A2, IDX, EAC, LN16, ASEL, CW, LN8 = 4, 8, 12, 13, 14, 16, 18, 20
LP, WS4, WN2, EA, XA, WE, OFS, AG, T, N, P, F = 22, 24, 28, 30, 32, 34, 36, 40, 44, 52, 56, 60
D0, D1, G = 72, 88, 104

def finish_tag():
    E(f"""
    s_mul_i32 s{S_TAG+1}, s{S_TAGRAW}, 0x85ebca6b
    s_mul_i32 s{S_TAG}, s{S_TAGRAW}, 0x9e3779b1
    s_add_u32 s{S_TAG+1}, s{S_TAG+1}, 0x5bd1e995
    s_add_u32 s{S_TAG}, s{S_TAG}, 0x7f4a7c15
    """)
def get_tag(lab, q):
    E(f"""
    s_cmp_lg_u32 s{S_SAFE}, 0
    s_cbranch_scc1 L_tag_{lab}
    v_mov_b32 v2, 0
    s_mov_b32 s31, {POLL_MAX}
L_tg_{lab}:
    ds_read_b128 v[{q}:{q+3}], v2 offset:{L_SCNT + 124*4}
    s_sub_u32 s31, s31, 1
    s_cbranch_scc1 L_tag_{lab}
    s_waitcnt lgkmcnt(0)
    v_readfirstlane_b32 s30, v{q+3}
    v_readfirstlane_b32 s{S_TAGRAW}, v{q+1}
    s_cmp_lg_u32 s30, 4
    s_cbranch_scc1 L_tg_{lab}
    """)
    finish_tag()
    E(f"L_tag_{lab}:")

def lds_wait(addr, mask, val, tag, sleep=0, ne=False):
    E(f"""
    v_mov_b32 v2, 0
    s_mov_b32 s31, {POLL_MAX}
L_w_{tag}:
    {f"s_sleep {sleep}" if sleep else ""}
    ds_read_b32 v3, v2 offset:{addr}
    s_sub_u32 s31, s31, 1
    s_cbranch_scc1 L_wd_{tag}
    s_waitcnt lgkmcnt(0)
    v_readfirstlane_b32 s30, v3
    s_and_b32 s30, s30, {mask}
    s_cmp_lg_u32 s30, {val}
    s_cbranch_scc{0 if ne else 1} L_w_{tag}
L_wd_{tag}:
    """)
SCAN = ("row_shr:1 row_mask:0xf bank_mask:0xf bound_ctrl:0", "row_shr:2 row_mask:0xf bank_mask:0xf bound_ctrl:0",
        "row_shr:4 row_mask:0xf bank_mask:0xf bound_ctrl:0", "row_shr:8 row_mask:0xf bank_mask:0xf bound_ctrl:0",
        "row_bcast:15 row_mask:0xa bank_mask:0xf", "row_bcast:31 row_mask:0xc bank_mask:0xf")
def scan(r):
    for m in SCAN:
        E(f"s_nop 1\nv_add_u32_dpp v{r}, v{r}, v{r} {m}")

def main_consts(sm=48):
    E(f"""
    v_and_b32 v2, 15, v1                    ; n'
    v_lshrrev_b32 v3, 4, v1
    v_lshl_add_u32 v3, v2, 2, v3
    v_lshlrev_b32 v3, 1, v3
    v_add_u32 v3, {L_C}, v3
    ds_read_u16 v64, v3                     ; C[0..3][feature 4n'+s]
    ds_read_u16 v65, v3 offset:128
    ds_read_u16 v66, v3 offset:256
    ds_read_u16 v67, v3 offset:384
    v_and_b32 v63, 3, v1                    ; q
    v_lshlrev_b32 v{LN8}, 3, v2
    v_lshlrev_b32 v{LN8+1}, 3, v2
    v_lshlrev_b32 v{LN16}, 4, v2
    v_lshlrev_b32 v{LN16+1}, 4, v2
    v_mov_b32 v{IDX}, 0x8888
    v_bfe_u32 v60, v1, 3, 2                 ; s = (l&31)>>3
    v_bfe_u32 v61, v1, 2, 1                 ; h = (l>>2)&1
    v_lshrrev_b32 v62, 5, v1                ; ha
    v_and_b32 v2, 1, v60
    v_lshlrev_b32 v2, 4, v2
    v_lshlrev_b32 v2, v2, s46
    v_lshrrev_b32 v60, 1, v60               ; s>>1
    v_lshl_add_u32 v3, v61, 1, v60
    v_sub_u32 v63, v63, v62                 ; q - ha : 0 -> A1, 2 -> A2
    v_lshl_add_u32 v3, v63, 1, v3
    v_and_b32 v63, 1, v63
    v_lshl_or_b32 v3, v63, 4, v3
    v_xor_b32 v61, v61, v62
    v_lshl_or_b32 v60, v61, 4, v60
    """)
    mk = [f"s[{sm}:{sm+1}]", f"s[{sm+2}:{sm+3}]", f"s[{sm+4}:{sm+5}]", "vcc"]
    for i in range(8):
        E(f"v_cmp_eq_u32 {mk[i%4]}, {i}, v3")
        if i % 4 == 3:
            for j in range(i-3, i+1):
                E(f"v_cndmask_b32 v{A1+j}, 0, v2, {mk[j%4]}")
    E(f"""
    v_cmp_eq_u32 {mk[0]}, 0, v60
    v_cmp_eq_u32 {mk[1]}, 1, v60
    v_and_b32 v63, 3, v1
    v_lshlrev_b32 v61, 3, v63
    v_cndmask_b32 v{ASEL}, 0, v2, {mk[0]}
    v_cndmask_b32 v{ASEL+1}, 0, v2, {mk[1]}
    v_add_u32 v{EAC}, {L_EA - 2*L_SRC}, v61
    s_lshl_b32 s30, s3, 9
    s_sub_u32 s31, s30, 4096
    s_max_i32 s31, s31, 0
    s_add_u32 s30, s30, s31
    s_add_u32 s30, s30, {L_LIST}
    v_lshrrev_b32 v2, 4, v1
    v_lshl_add_u32 v{LP}, v2, 4, s30
    v_bfe_u32 v3, v1, 2, 2
    v_lshl_add_u32 v{LP+1}, v3, 4, s30
    v_lshl_add_u32 v{LP+1}, v2, 2, v{LP+1}
    s_waitcnt lgkmcnt(0)
    v_lshlrev_b32 v60, 16, v64
    v_lshlrev_b32 v61, 16, v65
    v_lshlrev_b32 v62, 16, v66
    v_lshlrev_b32 v63, 16, v67
    v_mul_f32 v60, s40, v60
    v_mul_f32 v61, s40, v61
    v_mul_f32 v62, s40, v62
    v_mul_f32 v63, s40, v63
    v_cvt_pk_bf16_f32 v{CW}, v60, v61
    v_cvt_pk_bf16_f32 v{CW+1}, v62, v63
    """)

def gload(g, o):
    return f"buffer_load_dwordx4 v[{g}:{g+3}], v{o}, s[36:39], 0 offen" + (SC1 if OPT["gsc1"] else "")
def oadd(o):
    return f"v_lshl_add_u64 v[{o}:{o+1}], v[{o}:{o+1}], 0, v[{LN16}:{LN16+1}]"

def pk_steps(Gc, q, first):
    t = T + 4*(q & 1); h = Gc + 4*q
    if first and q == 0:
        return [f"v_pk_add_f32 v[{P+2*p}:{P+2*p+1}], v[{t+2*p}:{t+2*p+1}], 1.0 op_sel_hi:[1,0]" for p in range(2)]
    r = []
    for p in range(2):
        n = f"v[{Gc+2*p}:{Gc+2*p+1}]" if (first and q == 1) else f"v[{N+2*p}:{N+2*p+1}]"
        r.append(f"v_pk_fma_f32 v[{N+2*p}:{N+2*p+1}], {n}, v[{t+2*p}:{t+2*p+1}], {n}")
    for p in range(2):
        r.append(f"v_pk_fma_f32 v[{N+2*p}:{N+2*p+1}], v[{h+2*p}:{h+2*p+1}], v[{P+2*p}:{P+2*p+1}], v[{N+2*p}:{N+2*p+1}]")
    for p in range(2):
        r.append(f"v_pk_fma_f32 v[{P+2*p}:{P+2*p+1}], v[{P+2*p}:{P+2*p+1}], v[{t+2*p}:{t+2*p+1}], v[{P+2*p}:{P+2*p+1}]")
    return r
def exps(Dc, q):
    t = T + 4*(q & 1)
    return [f"v_exp_f32 v{t+s}, v{Dc+4*s+q}" for s in range(4)]
def weave(main, extra):
    for i, x in enumerate(main):
        E(x)
        for y in extra.get(i, []):
            E(y)
def m_a(Dn): return f"v_mfma_f32_32x32x8_bf16 v[{Dn}:{Dn+15}], v[{ASEL}:{ASEL+1}], v[{XA}:{XA+1}], 0"
def m_e(Dn, abid): return f"v_mfma_f32_16x16x4_4b_bf16 v[{Dn}:{Dn+15}], v[{EA}:{EA+1}], v[{CW}:{CW+1}], v[{Dn}:{Dn+15}] cbsz:2 abid:{abid}"
def m_s(Dn, A, g): return f"v_smfmac_f32_32x32x32_bf16 v[{Dn}:{Dn+15}], v[{A}:{A+3}], v[{g}:{g+7}], v{IDX}"

outofline = []
def emit_to(lst, fn):
    global out
    keep = out; out = []
    fn(); lst += out; out = keep
DIST = OPT["dist"]; EARLY = OPT["ldearly"]
assert not (EARLY and DIST == 4)
def phase(u, loads):
    tag = f"{'L' if loads else 'T'}{u}"
    Dc, Dn = ((D0, D1), (D1, D0))[u & 1]
    gc = G + 16*u; gn = G + 16*((u+1) & 3); gl = G + 16*((u+DIST) & 3)
    ld = loads and not OPT["nogather"]
    kw = (u + DIST + EARLY) & 3
    wsgrp = 128 * ((3 - kw + u + DIST + EARLY) // 4 + 1) if kw == 3 else None
    def addloads(ex, pos):
        if loads:
            ex.setdefault(0, []).append(oadd(OFS)); ex.setdefault(2, []).append(oadd(OFS+2))
        if ld:
            for q in range(4): ex.setdefault(pos[q], []).append(gload(gl+4*q, OFS+q))
    E(f"L_{tag}:")
    if OPT["ptime"]: E(f"s_memrealtime s[28:29]\ns_mov_b32 m0, s{S_R}")
    if OPT["ptime"] == 2: E(f"s_memtime s[30:31]")
    SL = OPT["slate"]
    if not SL: E(f"s_waitcnt vmcnt({4*(DIST-2)})")
    if OPT["ptime"] == 1: E(f"s_memrealtime s[30:31]")
    E(m_a(Dn))
    for x in exps(Dc, 0): E(x)
    E(m_e(Dn, (u+1) & 3) if SL else m_s(Dn, A1, gn))
    for x in exps(Dc, 1): E(x)
    ex = {0: ["s_waitcnt lgkmcnt(0)"], 2: [f"ds_read_b64 v[{XA}:{XA+1}], v{AG + ((u+2) & 3)} offset:512"]}
    if OPT["ptime"]: ex[0] += ["v_writelane_b32 v35, s28, m0", "v_writelane_b32 v68, s30, m0"]
    if u % 2 == 0:
        p = AG + ((u+2) & 3)
        ex[0].append(f"v_lshl_add_u64 v[{p}:{p+1}], v[{WN2}:{WN2+1}], 0, v[{LN8}:{LN8+1}]")
    if EARLY: addloads(ex, (1, 3, 5, 6))
    elif loads: ex[1] = [f"ds_read_b128 v[{OFS}:{OFS+3}], v{WS4+kw}"]
    if u == 2:
        ex.setdefault(4, []).append(f"v_lshl_add_u32 v{WE}, v{WE}, 1, v{EAC}")
        if SL: ex.setdefault(7, []).append(f"ds_read_b64 v[{EA}:{EA+1}], v{WE}")
    E(f"s_bitcmp1_b32 s{S_M}, 0\ns_cbranch_scc1 L_{tag}f")
    weave(pk_steps(gc, 0, False) + pk_steps(gc, 1, False), ex)
    E(f"L_{tag}r:")
    def first():
        E(f"L_{tag}f:")
        weave(pk_steps(gc, 0, True) + pk_steps(gc, 1, True), ex)
        E(f"s_branch L_{tag}r")
    emit_to(outofline, first)
    if SL:
        E(f"s_waitcnt vmcnt({4*(DIST-2) + (4 if (EARLY and loads) else 0) + (2 if SL == 2 else 0)})")
        E(m_s(Dn, A1, gn))
    else:
        E(m_e(Dn, (u+1) & 3))
    for x in exps(Dc, 2): E(x)
    if SL == 2: E(f"s_waitcnt vmcnt({4*(DIST-2) + (4 if (EARLY and loads) else 0)})")
    E(m_s(Dn, A2, gn+8))
    for x in exps(Dc, 3): E(x)
    ex = {0: ["s_waitcnt lgkmcnt(0)"], 4: [], 6: [], 7: [f"s_sub_u32 s{S_R}, s{S_R}, 1"], 10: [f"s_lshr_b32 s{S_M}, s{S_M}, 1"], 11: [f"s_bitcmp1_b32 s{S_M}, 0"]}
    if not EARLY: addloads(ex, (1, 3, 5, 9) if DIST == 4 else ((1, 3, 5, 7), (1, 2, 3, 4), (4, 6, 8, 10), (2, 5, 8, 10))[OPT['lpos']])
    elif loads: ex[1] = [f"ds_read_b128 v[{OFS}:{OFS+3}], v{WS4+kw}"]
    if u == 1:
        ex[4].append(f"ds_read_b64 v[{WN2}:{WN2+1}], v{LP} offset:{128+64}")
        ex[6].append(f"ds_read_b32 v{WE}, v{LP+1} offset:128")
    if u == 2 and not SL:
        ex[4].append(f"ds_read_b64 v[{EA}:{EA+1}], v{WE}")
    if u == 3:
        ex[4].append(f"ds_read_b64 v[{WN2}:{WN2+1}], v{LP} offset:{128+64+8}")
        ex.setdefault(8, []).append(f"v_lshl_add_u64 v[{LP}:{LP+1}], v[{LP}:{LP+1}], 0, s[44:45]")
    if wsgrp and loads: ex[6].append(f"ds_read_b128 v[{WS4}:{WS4+3}], v{LP} offset:{wsgrp}")
    weave(pk_steps(gc, 2, False) + pk_steps(gc, 3, False), ex)
    E(f"s_cbranch_scc1 L_{tag}z\nL_{tag}y:")
    def fin():
        E(f"""
L_{tag}z:
        v_rcp_f32 v{P}, v{P}
        v_rcp_f32 v{P+1}, v{P+1}
        v_rcp_f32 v{P+2}, v{P+2}
        v_rcp_f32 v{P+3}, v{P+3}
        v_pk_mul_f32 v[{N}:{N+1}], v[{N}:{N+1}], v[{P}:{P+1}]
        v_pk_mul_f32 v[{N+2}:{N+3}], v[{N+2}:{N+3}], v[{P+2}:{P+3}]
        """)
        for s_ in range(4):
            E(f"v_cvt_f64_f32 v[{F+2*s_}:{F+2*s_+1}], v{N+s_}")
            if s_: E(f"ds_add_f64 v{AG+u}, v[{F+2*s_-2}:{F+2*s_-1}] offset:{128*(s_-1)}")
        E(f"ds_add_f64 v{AG+u}, v[{F+6}:{F+7}] offset:384")
        E(f"s_branch L_{tag}y")
    emit_to(outofline, fin)
    if OPT["prio"] == 2:
        E(f"s_bitcmp1_b32 s{S_IT}, s{S_R}\ns_cbranch_scc1 L_{tag}q\nL_{tag}p:")
        def pr():
            E(f"""
L_{tag}q:
            s_setprio 0
            s_cmp_le_u32 s{S_R}, {OPT["pc"]}
            s_cbranch_scc1 L_{tag}p
            s_setprio 1
            s_cmp_le_u32 s{S_R}, {OPT["pb"]}
            s_cbranch_scc1 L_{tag}p
            s_setprio 2
            s_branch L_{tag}p
            """)
        emit_to(outofline, pr)
    if u == 3 and OPT["prio"] == 1:
        E(f"""
        s_add_u32 s{S_IT}, s{S_IT}, 1
        s_setprio 0
        s_cmp_gt_u32 s{S_IT}, 2
        s_cbranch_scc1 L_{tag}p
        s_setprio 1
        s_cmp_eq_u32 s{S_IT}, 2
        s_cbranch_scc1 L_{tag}p
        s_setprio 2
L_{tag}p:
        """)
    if loads:
        E(f"s_cmp_le_u32 s{S_R}, {DIST}")
        if u < 3: E(f"s_cbranch_scc1 L_T{u+1}")
        else: E("s_cbranch_scc0 L_L0")
    else:
        E(f"s_waitcnt vmcnt(0)\ns_cmp_eq_u32 s{S_R}, 0")
        if u < 3: E("s_cbranch_scc1 L_mdone")
        else: E("s_cbranch_scc0 L_T0")

E(f"""
; @launch grid=(256,1,1) block=({64*NW},1,1) lds={LDS}
.amdgcn_target "amdgcn-amd-amdhsa--gfx950"
.text
.globl {NAME}
.p2align 8
.type {NAME},@function
{NAME}:
""")
if OPT["stamps"] == 1 and OPT["early"] != 1:
    for i in range(NSTAMP): E(f"s_mov_b64 s[{ST0+2*i}:{ST0+2*i+1}], 0")
STAMP(0)
E(f"""
    s_load_dwordx16 s[4:19], s[0:1], 0
    s_load_dwordx2 s[20:21], s[0:1], 72
""")
if OPT["codepf"]:
    E(f"""
    s_getpc_b64 s[28:29]
L_pc:
    v_lshlrev_b32 v3, 7, v0
    v_cmp_gt_u32 vcc, L_codeend-L_pc-64, v3
    s_cbranch_vccz L_nopf
    s_mov_b64 exec, vcc
    global_load_dword v164, v3, s[28:29]
    s_mov_b64 exec, -1
L_nopf:
    """)
E(f"""
    v_lshrrev_b32 v2, 6, v0
    v_and_b32 v1, 63, v0
    v_readfirstlane_b32 s3, v2
    {"s_bfe_u32 s%d, s2, 0x10002" % S_HALF if OPT["hb"] else "s_and_b32 s%d, s2, 1" % S_HALF}
    {"s_and_b32 s30, s2, 3" if OPT["hb"] else "s_bfe_u32 s30, s2, 0x20001"}
    s_lshl_b32 s30, s30, 5
    s_lshr_b32 s31, s2, 3
    s_add_u32 s{S_BUCK}, s30, s31
    s_cmp_ge_u32 s2, 256
    s_cbranch_scc1 L_end
    s_cmp_ge_u32 s{S_BUCK}, {NBUCK}
    s_cbranch_scc1 L_end
    s_lshl_b32 s{S_P}, s{S_BUCK}, 1
    s_add_u32 s{S_P}, s{S_P}, s{S_HALF}
    s_mov_b32 s{S_SAFE}, 0
L_restart:
    s_cmp_ge_u32 s3, 4
    s_cbranch_scc1 L_nosort
    v_mov_b32 v48, 0
    v_mov_b32 v49, 0
    v_mov_b32 v50, 0
    v_mov_b32 v51, 0
    v_lshlrev_b32 v10, 4, v1
    ds_write_b128 v10, v[48:51] offset:{L_SCNT}
    s_mul_i32 s30, s{S_P}, {CHUNK*4}
    v_lshl_add_u32 v3, v0, 4, s30
    s_add_u32 s30, s30, 4096
    v_lshl_add_u32 v9, v0, 2, s30
    v_lshlrev_b32 v10, 1, v3
    v_lshlrev_b32 v11, 1, v9
    v_mov_b32 v17, {WS_TAG}
    s_waitcnt lgkmcnt(0)
    global_load_dwordx4 v[4:7], v3, s[10:11]{NTE}
    global_load_dword v8, v9, s[10:11]{NTE}
    global_load_dword v43, v17, s[20:21]
    s_barrier                               ; B0
    global_load_dwordx4 v[12:15], v3, s[8:9]{NTE}
    global_load_dword v16, v9, s[8:9]{NTE}
    global_load_dwordx4 v[52:55], v10, s[6:7]{NTE}
    global_load_dwordx4 v[56:59], v10, s[6:7] offset:16{NTE}
    global_load_dwordx2 v[60:61], v11, s[6:7]{NTE}
    s_barrier                               ; B0b
    s_branch L_sort
L_nosort:
    s_and_b32 s32, s3, 3                    ; tau
    s_lshr_b32 s33, s3, 3
    v_lshrrev_b32 v2, 4, v1                 ; g
    v_and_b32 v4, 15, v1
    s_lshl_b32 s30, s32, 2
    v_add_u32 v6, s30, v2                   ; row&15
    v_xor_b32 v7, v4, v6
    v_lshlrev_b32 v7, 4, v7
    v_lshl_add_u32 v7, v6, 8, v7
    s_mul_i32 s73, s{S_BUCK}, {NB*256}
    s_mul_i32 s31, s33, {3*4096}
    s_add_u32 s30, s73, s31
    v_add_u32 v7, s30, v7
    v_add_u32 v8, 0x1000, v7
    v_add_u32 v9, 0x2000, v7
    s_lshl_b32 s30, s32, 10
    s_add_u32 s31, s31, s30
    s_add_u32 m0, s31, {L_X}
    v_subrev_u32 v30, 256, v0               ; t = 0..511
    v_lshlrev_b32 v31, 4, v30
    v_mov_b32 v36, 0
    v_mov_b32 v37, 0
    v_mov_b32 v38, 0
    v_mov_b32 v39, 0
    v_add_u32 v40, {L_EA}, v31
    ds_write_b128 v40, v[36:39]
    ds_write_b128 v40, v[36:39] offset:8192
    s_waitcnt lgkmcnt(0)
    s_barrier                               ; B0
    global_load_lds_dwordx4 v7, s[4:5]{NTX}
    s_add_u32 m0, m0, 0x1000
    s_cmp_lg_u32 s33, 0
    global_load_lds_dwordx4 v8, s[4:5]{NTX}
    s_cbranch_scc1 L_x2
    s_add_u32 m0, m0, 0x1000
    s_nop 0
    global_load_lds_dwordx4 v9, s[4:5]{NTX}
L_x2:
    s_barrier
    v_mov_b32 v32, {NULL_SRC}
    v_mov_b32 v33, v32
    v_mov_b32 v34, v32
    v_mov_b32 v35, v32
""")
def cover(lo, n): return list(range(lo, n - 8192, 8192)) + [n - 8192]
for o in cover(16384, L_EAEND - L_EA): E(f"ds_write_b128 v40, v[36:39] offset:{o}")
for o in cover(0, SRCB): E(f"ds_write_b128 v31, v[32:35] offset:{L_SRC + o}")
E(f"""
    v_lshrrev_b32 v5, 3, v1
    v_and_b32 v3, 1, v2
    s_and_b32 s30, s3, 1
    s_lshl_b32 s30, s30, 1
    v_or_b32 v3, s30, v3                    ; sigma
    v_lshlrev_b32 v3, 1, v3
    v_and_b32 v20, 7, v1
    v_xor_b32 v3, v3, v20
    v_lshlrev_b32 v3, 4, v3
    v_lshl_add_u32 v10, v5, 8, v3
    s_sub_u32 s28, s3, 4
    s_lshl_b32 s30, s28, 11
    s_lshl_b32 s31, s{S_HALF}, 7
    s_add_u32 s30, s30, s31
    v_add_u32 v10, s30, v10
    v_add_u32 v11, 0x4000, v10
    s_lshl_b32 s28, s28, 10
    s_add_u32 s34, s16, {128*256}
    s_addc_u32 s35, s17, 0
    s_cmp_lg_u32 s3, 11
    s_cbranch_scc1 L_noc
    v_and_b32 v5, 3, v5
    v_lshlrev_b32 v20, 4, v20
    v_lshl_add_u32 v5, v5, 8, v20
    s_add_u32 s31, s31, {256*256}
    s_mov_b32 m0, {L_C}
    v_add_u32 v5, s31, v5
    global_load_lds_dwordx4 v5, s[16:17]
L_noc:
    s_add_u32 m0, s28, {L_WBV}
""")
for ti, base in enumerate((34, 14)):
    for n in range(2):
        E(f"s_nop 0\nglobal_load_lds_dwordx4 v{10+n}, s[{base}:{base+1}]")
        if not (ti == 1 and n == 1):
            E(f"s_add_u32 m0, m0, 0x2000")
if OPT["wgate"]:
    E(f"""
    v_mov_b32 v7, 0x1000000
    s_mov_b64 exec, 1
    ds_add_u32 v36, v7 offset:{L_CTR}
    s_mov_b64 exec, -1
    """)
STAMP(1)
E(f"""
    v_and_b32 v32, 3, v30           ; quarter
    v_bfe_u32 v33, v30, 3, 3
    v_lshrrev_b32 v34, 5, v30
    s_and_b32 s30, s3, 3
    s_add_u32 s30, s30, 16
    s_cmp_ge_u32 s3, 8
    s_cselect_b32 s31, 7, 3
    s_cselect_b32 s29, 6, 12
    s_cselect_b64 vcc, -1, 0
    v_and_b32 v33, s31, v33
    v_mov_b32 v35, s30
    v_cndmask_b32 v34, v34, v35, vcc
    v_lshl_add_u32 v32, v34, 2, v32
    v_bfe_u32 v34, v30, 2, 1
    v_mul_u32_u24 v35, {NSTR - SSTR}, v34
    v_mul_u32_u24 v41, {L_NODE - L_SRC}, v34
    v_mul_u32_u24 v42, {L_SRC + 80*SSTR - L_DUM}, v34
    v_lshlrev_b32 v43, 4, v34
    v_add_u32 v35, {SSTR}, v35
    v_add_u32 v41, {L_SRC}, v41
    v_sub_u32 v42, {L_SRC + 80*SSTR}, v42
    v_sub_u32 v43, 16, v43
    v_lshlrev_b32 v33, 2, v33
    v_mad_u32_u24 v41, v32, v35, v41
    v_mad_u32_u24 v41, v33, v43, v41
    v_lshlrev_b32 v35, 5, v35
    v_mul_u32_u24 v34, 6, v43
    v_sub_u32 v35, v35, v34
    v_add_u32 v34, 2, v33
    v_cmp_gt_u32 s[48:49], 6, v33
    v_cmp_gt_u32 s[50:51], 6, v34
    v_cmp_gt_u32 s[52:53], s29, v33
    v_cmp_gt_u32 s[54:55], s29, v34
    v_cndmask_b32 v44, v35, 0, s[48:49]
    v_cndmask_b32 v46, v35, 0, s[50:51]
    v_add_u32 v44, v41, v44
    v_lshl_add_u32 v46, v43, 1, v46
    v_add_u32 v46, v41, v46
    v_add_u32 v45, v44, v43
    v_add_u32 v47, v46, v43
    v_cndmask_b32 v44, v42, v44, s[52:53]
    v_cndmask_b32 v45, v42, v45, s[52:53]
    v_cndmask_b32 v46, v42, v46, s[54:55]
    v_cndmask_b32 v47, v42, v47, s[54:55]
    ds_write_b128 v31, v[44:47] offset:{L_LIST}
    s_cmp_ge_u32 s3, 6
    s_cbranch_scc1 L_pf3
    v_mul_u32_u24 v42, {SSTR}, v30
    v_add_u32 v42, {L_SRC}, v42
    v_lshlrev_b32 v41, 2, v30
    ds_write_b32 v41, v42 offset:{L_CNT}
L_pf3:
    v_bfe_u32 v3, v1, 2, 2                  ; r
    v_lshl_add_u32 v5, v2, 3, v3            ; 8g + r
    v_lshrrev_b32 v3, 1, v3
    v_and_b32 v6, 1, v2
    v_lshl_or_b32 v3, v6, 1, v3             ; sigma
    v_xor_b32 v3, s32, v3
    v_lshlrev_b32 v3, 5, v3
    v_lshl_add_u32 v10, v5, 7, v3
    v_and_b32 v3, 3, v1
    v_lshl_add_u32 v10, v3, 3, v10
    s_mul_i32 s31, s33, {L_WAU - L_WBV}
    s_add_u32 s31, s31, {L_WBV}
    v_add_u32 v10, s31, v10
    v_xor_b32 v3, v2, v4
    v_lshlrev_b32 v3, 4, v3
    v_lshl_add_u32 v12, v4, 8, v3
    v_add_u32 v12, {L_X}, v12
    v_xor_b32 v13, 64, v12
    v_xor_b32 v14, 0x80, v12
    v_xor_b32 v15, 0xc0, v12
    s_mul_i32 s30, s{S_HALF}, {G_HALF}
    s_add_u32 s30, s30, s73
    s_lshl_b32 s31, s32, 6
    s_add_u32 s30, s30, s31
    v_lshlrev_b32 v11, 10, v2
    v_lshl_add_u32 v11, v4, 2, v11
    v_add_u32 v11, s30, v11
    s_lshl_b32 s31, s32, 5
    s_add_u32 s31, s31, {L_NODE}
    v_mul_u32_u24 v16, {NSTR}, v4
    v_lshl_add_u32 v16, v2, 3, v16
    v_add_u32 v16, s31, v16
    s_mov_b32 s40, {f32(-LOG2E)}
    s_mov_b32 s42, {f32(2.0**32)}
    s_mov_b32 s44, 0x07060100
    s_mov_b32 s45, 0x07060302
    s_mov_b32 s46, 0x3f80
    v_mov_b32 v17, {f32(2.0**-100)}
    v_mov_b32 v19, 1
    v_mov_b32 v18, 0
""")
get_tag("g", 160)
E(f"""
    s_waitcnt vmcnt(0)
    s_mov_b64 exec, 1
    ds_add_u32 v18, v19 offset:{L_CTR}
    s_mov_b64 exec, -1
""")
STAMP(2)
lds_wait(L_CTR, 0xff, 8, "g1")
STAMP(3)
NP = 8
RA = 72; RB = RA + 4*NP; RAD = RB + 4*NP
J3N, J12, J3N2, CELL, ROWA, FOUR, L0M, ACC, ENT, CAD = 156, 157, 158, 159, 160, 161, 162, 163, 164, 166
def rec_setup():
    E(f"""
    v_and_b32 v3, 15, v1                    ; j
    v_lshrrev_b32 v2, 4, v1
    v_lshl_add_u32 v{CELL}, v2, 3, v3
    s_lshl_b32 s30, s29, 5
    v_add_u32 v{CELL}, s30, v{CELL}
    s_lshl_b32 s30, s{S_BUCK}, 3
    s_add_u32 s30, s30, {WS_ROW}
    v_lshl_add_u32 v{ROWA}, v{CELL}, 10, s30
    v_cmp_gt_u32 s[66:67], {NP}, v3
    v_cmp_gt_u32 vcc, {NCHUNK}, v{CELL}
    v_mov_b32 v{ENT}, 0
    s_and_b64 s[66:67], s[66:67], vcc
    s_mov_b64 exec, s[66:67]
    global_load_dwordx2 v[{ENT}:{ENT+1}], v{ROWA}, s[20:21] sc1
    s_mov_b64 exec, -1
    v_mul_u32_u24 v{CELL}, {SORTB//4}, v{CELL}
    v_add_u32 v{CELL}, {WS_REC//4}, v{CELL}
    v_mul_u32_u24 v{J12}, 12, v3
    v_mul_u32_u24 v{J3N}, 3, v3
    v_not_b32 v{J3N}, v{J3N}
    v_subrev_u32 v{J3N2}, 48, v{J3N}
    v_subrev_u32 v{L0M}, 1, v3
    v_ashrrev_i32 v{L0M}, 31, v{L0M}
    v_mov_b32 v{FOUR}, 4
    """)
WF = 20; XF = 52; AC = 132
def wreads(ks):
    for t in range(2):
        for rd in range(2):
            r = WF + 16*t + 4*ks + 2*rd
            E(f"ds_read_b64_tr_b16 v[{r}:{r+1}], v10 offset:{t*16384 + ks*4096 + rd*512}")
def xread(rt, ks):
    r = XF + 16*rt + 4*ks
    return f"ds_read_b128 v[{r}:{r+3}], v{12+ks} offset:{rt*4096}"
def mf(rt, ks, transposed):
    for t in range(2):
        a = XF + 16*rt + 4*ks; w = WF + 16*t + 4*ks; d = AC + 8*(rt % 3) + 4*t
        c = "0" if ks == 0 else f"v[{d}:{d+3}]"
        if transposed: a, w = w, a
        E(f"v_mfma_f32_16x16x32_bf16 v[{d}:{d+3}], v[{a}:{a+3}], v[{w}:{w+3}], {c}")
def gemm(transposed, finish, before_first):
    for ks in range(3):
        E(xread(0, ks)); wreads(ks)
    E("s_waitcnt lgkmcnt(10)"); mf(0, 0, transposed)
    E(xread(0, 3)); wreads(3)
    E("s_waitcnt lgkmcnt(10)"); mf(0, 1, transposed)
    for ks in range(4): E(xread(1, ks))
    E("s_waitcnt lgkmcnt(9)"); mf(0, 2, transposed)
    for ks in range(4): E(xread(2, ks))
    E("s_waitcnt lgkmcnt(8)"); mf(0, 3, transposed)
    for ks in range(4): E(xread(3, ks))
    E("s_waitcnt lgkmcnt(8)")
    for ks in range(4):
        mf(1, ks, transposed); E(xread(4, ks))
    E(f"""
    s_mov_b64 exec, 1
    ds_add_u32 v18, v19 offset:{L_RD}
    s_mov_b64 exec, -1
    """)
    before_first()
    finish(0)
    E("s_waitcnt lgkmcnt(0)")
    for rt in range(2, 5):
        for ks in range(4): mf(rt, ks, transposed)
        finish(rt-1)
    finish(4)
def pack(rt):
    b = AC + 8*(rt % 3); h = b + 4
    for r in range(4): E(f"v_mul_f32 v{b+r}, s40, v{b+r}")
    for r in range(4): E(f"v_fma_f32 v{h+r}, v{h+r}, s42, v17")
    E(f"""
    v_cvt_pk_bf16_f32 v4, v{b}, v{b+1}
    v_cvt_pk_bf16_f32 v5, v{b+2}, v{b+3}
    v_xor_b32 v2, 0x80008000, v4
    v_xor_b32 v3, 0x80008000, v5
    v_sub_u32_sdwa v{h}, v{h}, sext(v2) dst_sel:DWORD dst_unused:UNUSED_PAD src0_sel:DWORD src1_sel:WORD_0
    v_sub_u32_sdwa v{h+1}, v{h+1}, sext(v2) dst_sel:DWORD dst_unused:UNUSED_PAD src0_sel:DWORD src1_sel:WORD_1
    v_sub_u32_sdwa v{h+2}, v{h+2}, sext(v3) dst_sel:DWORD dst_unused:UNUSED_PAD src0_sel:DWORD src1_sel:WORD_0
    v_sub_u32_sdwa v{h+3}, v{h+3}, sext(v3) dst_sel:DWORD dst_unused:UNUSED_PAD src0_sel:DWORD src1_sel:WORD_1
    """)
    w = (OPT["gp"] >> (4*(4-rt))) & 15 if OPT["gp"] else OPT["gpace"]
    if 0 <= w < 4*rt: E(f"s_waitcnt vmcnt({w})")
    if OPT["ghold"] == rt + 1:
        E("v_mov_b32 v6, v2\nv_mov_b32 v7, v3"); lds_wait(L_CTR, 0xff00, 0x400, "gh", sleep=1); E("v_mov_b32 v2, v6\nv_mov_b32 v3, v7")
    for r in range(4):
        E(f"v_perm_b32 v{h+r}, v{h+r}, v{4 + (r>>1)}, s{44 + (r&1)}")
        if OPT["gwin"] >= 0: E(f"s_waitcnt vmcnt({OPT['gwin']})")
        E(f"global_store_dword v11, v{h+r}, s[20:21] offset:{256*r} sc1")
    if rt < 4: E("v_add_u32 v11, 0x1000, v11")
def fin(rt):
    a = AC + 8*(rt % 3); u = a + 4
    for r in range(4): E(f"v_mul_f32 v{a+r}, s40, v{a+r}")
    for r in range(4): E(f"v_mul_f32 v{u+r}, s42, v{u+r}")
    E(f"""
    v_cvt_pk_bf16_f32 v{a}, v{a}, v{a+1}
    v_cvt_pk_bf16_f32 v{a+1}, v{a+2}, v{a+3}
    v_cvt_f64_f32 v[2:3], v{u}
    v_cvt_f64_f32 v[4:5], v{u+1}
    v_cvt_f64_f32 v[6:7], v{u+2}
    v_cvt_f64_f32 v[8:9], v{u+3}
    ds_write_b64 v16, v[{a}:{a+1}] offset:512
    ds_write2_b64 v16, v[2:3], v[4:5] offset0:0 offset1:16
    ds_write2_b64 v16, v[6:7], v[8:9] offset0:32 offset1:48
    """)
    if rt < 4: E(f"v_add_u32 v16, {16*NSTR}, v16")
E(f"""
    s_cmp_lg_u32 s33, 0
    s_cbranch_scc1 L_gemm2
    s_cmp_lg_u32 s{S_SAFE}, 0
    s_cbranch_scc1 L_nog1
    s_setprio 2
""")
gemm(False, pack, lambda: lds_wait(L_CTR, {1: 0x80000, 2: 0xc0000}[OPT["hold"]], 0, "hold", sleep=1, ne=True) if OPT["hold"] else None)
E("s_setprio 0")
if OPT["gate"]:
    E(f"""
    s_mov_b64 exec, 1
    ds_add_u32 v18, v19 offset:{L_GST}
    s_mov_b64 exec, -1
    """)
STAMP(4)
main_consts()
E(f"""
    s_lshl_b32 s30, s{S_P}, 7
    s_add_u32 s30, s30, {WS_FL2}
    v_mov_b32 v60, s30
    v_mov_b32 v62, s{S_TAG}
    v_mov_b32 v63, s{S_TAG+1}
    v_mov_b32 v2, 0
    v_mov_b32 v3, 1
    s_lshl_b32 s30, s32, 13
    s_lshl_b32 s31, s{S_HALF}, 7
    s_add_u32 s30, s30, s31
    s_add_u32 s30, s30, {WS_FL2}
    v_lshl_add_u32 v64, v1, 8, s30
    s_mul_i32 s30, s32, {2560*256}
    s_lshr_b32 s31, s2, 3
    s_mul_i32 s31, s31, {160*128}
    s_add_u32 s30, s30, s31
    v_lshl_add_u32 v65, v1, 7, s30
    v_min_u32 v65, {G_HALF - 128}, v65
    s_mul_i32 s30, s{S_HALF}, {G_HALF}
    v_add_u32 v65, s30, v65
    s_mov_b64 exec, 1
    s_waitcnt vmcnt(0)
    ds_add_rtn_u32 v61, v2, v3 offset:{L_DONE2}
    s_waitcnt lgkmcnt(0)
    v_readfirstlane_b32 s30, v61
    s_cmp_lg_u32 s30, 3
    s_cbranch_scc1 L_nofl
    global_store_dwordx2 v60, v[62:63], s[20:21] sc1
    ds_add_u32 v2, v3 offset:{L_DONE2}
L_nofl:
""")
STAMP(5)
if OPT["p2gate"]:
    E("s_mov_b64 exec, -1")
    lds_wait(L_CTR, 0xff0000, 0x080000, "pg", sleep=1)
    E("s_mov_b32 exec_hi, 0")
if OPT["p2wait"]: E(f"s_sleep {OPT['p2wait']}")
STAMP(6)
def gready():
    if OPT["gpf"]:
        E(f"""
        {"s_bfm_b64 exec, %d, 0" % OPT["gpf"] if OPT["gpf"] < 64 else "s_mov_b64 exec, -1"}
        global_load_dword v35, v65, s[20:21] sc1
        """)
    E(f"""
    s_mov_b64 exec, 1
    v_mov_b32 v2, 0
    v_mov_b32 v3, 1
    ds_add_u32 v2, v3 offset:{L_GOK}
    """)
E(f"""
    s_cmp_eq_u32 s32, 3
    s_cselect_b32 exec_lo, 0x1fffffff, -1
    {"" if OPT["p1st"] else "s_mov_b64 s[66:67], exec"}
    {"" if OPT["p1st"] else "s_branch L_p2n"}
    global_load_dwordx2 v[66:67], v64, s[20:21] sc1
    s_waitcnt vmcnt(0)
    v_cmp_ne_u64 s[66:67], s[{S_TAG}:{S_TAG+1}], v[66:67]
    s_cmp_lg_u64 s[66:67], 0
    s_cbranch_scc1 L_p2n
""")
gready()
E("L_p2n:\ns_mov_b64 exec, -1")
STAMP(7)
E(f"""
    s_branch L_b4
L_nog1:
    s_mov_b64 exec, 1
    ds_add_u32 v18, v19 offset:{L_RD}
    s_mov_b64 exec, -1
    s_branch L_rec
L_gemm2:
""")
E("s_sub_u32 s29, s3, 4")
rec_setup()
for rt in range(5):
    for ks in range(4): E(xread(rt, ks))
E(f"""
    s_mov_b64 exec, 1
    ds_add_u32 v18, v19 offset:{L_RD}
    s_mov_b64 exec, -1
""")
lds_wait(L_RD, 0xff, 8, "rd")
lds_wait(L_CTR, 0xff00, 0x400, "au")
for ks in range(4): wreads(ks)
for ks in range(4):
    E(f"s_waitcnt lgkmcnt({12 - 4*ks})"); mf(0, ks, True)
for rt in range(1, 5):
    for ks in range(4): mf(rt, ks, True)
    fin(rt-1)
fin(4)
STAMP(4)
E(f"""
    s_branch L_rec
L_sort:
""")
STAMP(1)
E(f"""
    s_mov_b32 s40, {f32(-LOG2E)}
    s_mov_b32 s46, 0x3f80
    s_cmp_lg_u32 s{S_SAFE}, 0
    s_cbranch_scc1 L_sortskip
    v_mov_b32 v21, 1
    v_mov_b32 v20, 3
    s_mov_b32 s31, 52429
    s_movk_i32 s32, -20
    v_lshlrev_b32 v9, 3, v1
    v_lshlrev_b32 v33, 4, v0
    s_mul_i32 s30, s{S_P}, {SORTB}
    s_add_u32 s30, s30, {WS_REC + 4096}
    v_add_u32 v32, s30, v33
    v_add_u32 v34, 8192, v32
    s_lshl_b32 s30, s{S_P}, 10
    s_add_u32 s30, s30, {WS_ROW}
    v_lshl_add_u32 v42, v1, 4, s30
    s_mov_b32 s34, {POLL_MAX}
    s_setprio 3
    s_waitcnt vmcnt(6)
""")
STAMP(2)
FSTAMP(1)
for i in range(5):
    E(f"""
    v_mul_u32_u24 v{22+i}, s31, v{4+i}
    v_lshrrev_b32 v{22+i}, 22, v{22+i}
    v_lshlrev_b32 v{22+i}, 2, v{22+i}        ; bucket*4
    ds_add_rtn_u32 v{27+i}, v{22+i}, v20 offset:{L_SCNT}
    """)
E(f"""
    s_mov_b64 exec, 1
    s_cmp_lg_u32 s3, 0
    s_cbranch_scc1 L_notag
    s_waitcnt vmcnt(5)
    ds_write_b32 v48, v43 offset:{L_SCNT + 125*4}
L_notag:
    ds_add_u32 v48, v21 offset:{L_SCNT + 127*4}
    s_mov_b64 exec, -1
L_s1:
    ds_read_b32 v38, v48 offset:{L_SCNT + 127*4}
    ds_read_b64 v[36:37], v9 offset:{L_SCNT}
    s_sub_u32 s34, s34, 1
    s_cbranch_scc1 L_s1d
    s_waitcnt lgkmcnt(0)
    v_readfirstlane_b32 s30, v38
    s_cmp_lg_u32 s30, 4
    s_cbranch_scc1 L_s1
L_s1d:
""")
FSTAMP(2)
E(f"""
    v_add3_u32 v39, v36, v37, 2
    v_add3_u32 v38, v36, v37, 2
    v_readlane_b32 s{S_TAGRAW}, v37, 62
""")
fill = []
for i in range(5):
    fill += [f"v_mad_i32_i24 v{4+i}, v{22+i}, s32, v{4+i}", f"v_lshlrev_b32 v{4+i}, 24, v{4+i}"]
for k, m in enumerate(SCAN):
    E(f"v_add_u32_dpp v39, v39, v39 {m}")
    for x in fill[2*k:2*k+2]: E(x)
E(f"""
    v_sub_u32 v40, v39, v38
    v_add3_u32 v41, v40, v36, 1
    s_mov_b32 s30, {L_SORT}
    v_lshl_add_u32 v38, v40, 2, s30
    v_lshl_add_u32 v39, v41, 2, s30
    ds_write_b64 v9, v[38:39] offset:{L_SOFF}
""")
for i in range(5):
    E(f"ds_read_b32 v{22+i}, v{22+i} offset:{L_SOFF}")
finish_tag()
E(f"""
    s_cmp_lg_u32 s3, 0
    s_cbranch_scc1 L_nopub
    s_and_b32 s35, s{S_TAG+1}, 0xff000000
    v_mov_b32 v45, s{S_TAG}
    v_mov_b32 v47, s{S_TAG}
    v_lshl_or_b32 v44, v36, 12, v40
    v_lshl_or_b32 v46, v37, 12, v41
    v_or_b32 v44, s35, v44
    v_or_b32 v46, s35, v46
    global_store_dwordx4 v42, v[44:47], s[20:21] sc1
    s_waitcnt vmcnt(1)
    s_branch L_pub
L_nopub:
    s_cmp_lg_u32 s3, 1
    s_cbranch_scc1 L_nochk
    v_mov_b32 v44, s{S_TAG+1}
    s_mov_b32 exec_hi, 0x7fffffff
    ds_add_u32 v38, v44
    ds_add_u32 v39, v44
    s_mov_b32 exec_hi, -1
L_nochk:
    s_waitcnt vmcnt(0)
L_pub:
""")
STAMP(4)
FSTAMP(3)
for i in range(5): E(f"v_lshl_or_b32 v{4+i}, v{12+i}, 8, v{4+i}")
E("s_waitcnt lgkmcnt(0)")
for i in range(5):
    E(f"""
    v_lshl_add_u32 v{27+i}, v{27+i}, 2, v{22+i}
    v_add3_u32 v{12+i}, v{52+2*i}, v{53+2*i}, v{4+i}
    ds_write2_b32 v{27+i}, v{52+2*i}, v{53+2*i} offset0:2 offset1:3
    ds_write_b32 v{27+i}, v{4+i} offset:4
    ds_sub_u32 v{22+i}, v{12+i}
    """)
E(f"""
    s_mov_b64 exec, 1
    ds_add_u32 v48, v21 offset:{L_SCNT + 126*4}
    s_mov_b64 exec, -1
""")
FSTAMP(4)
E(f"""
    s_mov_b32 s34, {POLL_MAX}
L_s2:
    ds_read_b32 v38, v48 offset:{L_SCNT + 126*4}
    {f"ds_read_b32 v39, v48 offset:{L_CTR}" if OPT["wgate"] else ""}
    ds_read_b128 v[72:75], v33 offset:{L_SORT}
    s_sub_u32 s34, s34, 1
    s_cbranch_scc1 L_s2d
    s_waitcnt lgkmcnt(1)
    v_readfirstlane_b32 s30, v38
""")
if OPT["wgate"]:
    E(f"""
    v_readfirstlane_b32 s31, v39
    s_lshr_b32 s31, s31, 24
    s_add_u32 s30, s30, s31
    """)
E(f"""
    s_cmp_lg_u32 s30, {12 if OPT["wgate"] else 4}
    s_cbranch_scc1 L_s2
L_s2d:
""")
FSTAMP(5)
E(f"""
    ds_read_b128 v[76:79], v33 offset:{L_SORT + 4096}
    ds_read_b128 v[80:83], v33 offset:{L_SORT + 8192}
    ds_read_b128 v[84:87], v33 offset:{L_SORT + 12288}
    s_waitcnt lgkmcnt(3)
    global_store_dwordx4 v32, v[72:75], s[20:21] offset:-4096 sc1
    s_waitcnt lgkmcnt(2)
    global_store_dwordx4 v32, v[76:79], s[20:21] sc1
    s_waitcnt lgkmcnt(1){f" vmcnt({OPT['rpace']})" if OPT['rpace'] >= 0 else ""}
    global_store_dwordx4 v34, v[80:83], s[20:21] offset:-4096 sc1
    s_cmp_eq_u32 s3, 3
    s_cselect_b32 exec_hi, 0, -1
    s_waitcnt lgkmcnt(0){f" vmcnt({OPT['rpace']})" if OPT['rpace'] >= 0 else ""}
    global_store_dwordx4 v34, v[84:87], s[20:21] sc1
    s_mov_b32 exec_hi, -1
""")
FSTAMP(6)
for k in range(4): E(f"ds_write_b128 v33, v[48:51] offset:{L_SORT + 4096*k}")
STAMP(3)
FSTAMP(7)
E(f"""
    s_branch L_sortdone
L_sortskip:
    s_waitcnt vmcnt(0)
L_sortdone:
    v_lshrrev_b32 v5, 3, v1
    v_bfe_u32 v3, v1, 4, 1
    v_lshlrev_b32 v3, 1, v3
    v_and_b32 v20, 7, v1
    v_xor_b32 v3, v3, v20
    v_lshlrev_b32 v3, 4, v3
    v_lshl_add_u32 v10, v5, 8, v3
    s_lshl_b32 s30, s{S_HALF}, 7
    s_and_b32 s31, s3, 1
    s_lshl_b32 s31, s31, 14
    s_add_u32 s30, s30, s31
    v_add_u32 v10, s30, v10
    v_xor_b32 v11, 64, v10
    v_add_u32 v12, 2048, v10
    v_add_u32 v13, 3072, v11
    v_add_u32 v11, 1024, v11
    s_lshl_b32 s30, s3, 13
    s_add_u32 m0, s30, {L_WAU}
    s_cmp_lt_u32 s3, 2
    s_cselect_b32 s34, s16, s12
    s_cselect_b32 s35, s17, s13
    global_load_lds_dwordx4 v10, s[34:35]
    global_load_lds_dwordx4 v11, s[34:35] offset:1024
    global_load_lds_dwordx4 v12, s[34:35] offset:2048
    global_load_lds_dwordx4 v13, s[34:35] offset:3072
    s_add_u32 m0, m0, 4096
    s_add_u32 s34, s34, 8192
    s_addc_u32 s35, s35, 0
    global_load_lds_dwordx4 v10, s[34:35]
    global_load_lds_dwordx4 v11, s[34:35] offset:1024
    global_load_lds_dwordx4 v12, s[34:35] offset:2048
    global_load_lds_dwordx4 v13, s[34:35] offset:3072
    s_mov_b32 s29, s3
""")
rec_setup()
E(f"""
L_rec:
""")
lds_wait(L_CTR, 0xff, 8, "r0")
main_consts()
STAMP(5)
E(f"""
    s_cmp_ge_u32 s3, 4
    s_cbranch_scc1 L_nod2
    v_mov_b32 v2, 0
    v_mov_b32 v3, 0x100
    s_mov_b64 exec, 1
    s_waitcnt vmcnt(0)
    ds_add_u32 v2, v3 offset:{L_CTR}
    s_mov_b64 exec, -1
L_nod2:
    s_cmp_lg_u32 s{S_SAFE}, 0
    s_cbranch_scc1 L_recskip
    s_lshr_b32 s35, s{S_TAG+1}, 24
    s_mov_b64 exec, s[66:67]
    s_mov_b32 s34, {POLL_MAX}
    s_branch L_p1c
L_p1:
    global_load_dwordx2 v[{ENT}:{ENT+1}], v{ROWA}, s[20:21] sc1
L_p1c:
    s_sub_u32 s34, s34, 1
    s_cbranch_scc1 L_toobig
    s_waitcnt vmcnt(0)
    v_cmp_ne_u32 vcc, s{S_TAG}, v{ENT+1}
    v_cmp_ne_u32_sdwa s[48:49], v{ENT}, s35 src0_sel:BYTE_3 src1_sel:DWORD
    s_or_b64 exec, vcc, s[48:49]
    s_cbranch_scc1 L_p1
    s_mov_b64 exec, -1
""")
STAMP(6)
if OPT["cnt"]: E(f"s_sub_u32 s{ST0+2}, {POLL_MAX+1}, s34\ns_mov_b32 s34, {POLL_MAX}")
E(f"""
    v_and_b32 v{CAD}, 0xfff, v{ENT}
    v_bfe_u32 v{ENT}, v{ENT}, 12, 12            ; 3*count
    v_add_lshl_u32 v{CAD}, v{CAD}, v{CELL}, 2
    v_cmp_ne_u32 vcc, 0, v{ENT}
    s_sub_u32 s30, 0, s{S_TAG+1}
    v_mov_b32 v2, s30
    v_cndmask_b32 v{ENT+1}, 0, v2, vcc
    v_cmp_lt_u32 vcc, 96, v{ENT}
    v_cmp_lt_u32 s[68:69], 48, v{ENT}
    s_cbranch_vccnz L_toobig
""")
for p in range(NP):
    E(f"""
    v_add_co_u32_dpp v2, vcc, v{ENT}, v{J3N} row_newbcast:{p} row_mask:0xf bank_mask:0xf
    v_add_u32_dpp v{RAD+p}, v{CAD}, v{J12} row_newbcast:{p} row_mask:0xf bank_mask:0xf
    s_mov_b64 s[{48+2*p}:{49+2*p}], vcc
    """)
lds_wait(L_CTR, 0xff00, 0x400, "r1")
if OPT["gate"]: lds_wait(L_GST, 0xff, 4, "gt")
if OPT["gate2"]:
    E("s_cmp_lt_u32 s3, 4\ns_cbranch_scc1 L_wd_g2")
    lds_wait(L_DONE2, 0xff, 5, "g2")
E(f"""
    s_or_b32 s68, s68, s69
    s_lshr_b32 s69, s68, 16
    s_or_b32 s68, s68, s69
""")
def mask2(p): return f"v_add_co_u32_dpp v2, vcc, v{ENT}, v{J3N2} row_newbcast:{p} row_mask:0xf bank_mask:0xf"
def loads(ps, lab):
    E(f"s_and_b32 s30, s68, {sum(1 << p for p in ps)}\ns_cbranch_scc0 L_nx{lab}")
    for p in ps:
        r = RB + 4*p
        E(f"""
        s_bitcmp1_b32 s68, {p}
        s_cbranch_scc0 L_nx{lab}{p}
        {mask2(p)}
        s_mov_b64 exec, vcc
        global_load_dwordx4 v[{r}:{r+3}], v{RAD+p}, s[20:21] offset:192 sc1
        s_mov_b64 exec, -1
L_nx{lab}{p}:
        """)
    E(f"L_nx{lab}:")
    for p in ps:
        r = RA + 4*p
        E(f"""
        s_mov_b64 exec, s[{48+2*p}:{49+2*p}]
        global_load_dwordx4 v[{r}:{r+3}], v{RAD+p}, s[20:21]{SC1 if (OPT["rsc1"] or lab != "m") else ""}
        """)
    E("s_mov_b64 exec, -1")
loads(range(NP), "m")
def issued():
    if OPT["p2gate"]:
        E(f"""
        v_mov_b32 v2, 0
        v_mov_b32 v3, 0x10000
        s_mov_b64 exec, 1
        ds_add_u32 v2, v3 offset:{L_CTR}
        s_mov_b64 exec, -1
        """)
if not OPT["sig"]: issued()
STAMP(7)
def rank(r, m):
    E(f"""
    s_mov_b64 exec, {m}
    v_mul_u32_u24_sdwa v{r}, v{FOUR}, v{r+1} dst_sel:DWORD dst_unused:UNUSED_PAD src0_sel:DWORD src1_sel:BYTE_3
    v_and_b32 v{r+1}, {OPT['srcmask']}, v{r+1}
    ds_add_rtn_u32 v{r}, v{r}, v{FOUR} offset:{L_CNT}
    """)
def put(r, m):
    E(f"""
    s_mov_b64 exec, {m}
    v_lshlrev_b32 v2, 1, v{r}
    ds_write_b32 v{r}, v{r+1}
    ds_write_b64 v2, v[{r+2}:{r+3}] offset:{L_EA - 2*L_SRC}
    """)
retries = []
pending = []
for gi, grp in enumerate(((0, 1, 2, 3), (4, 5), (6, 7))):
    bits = sum(1 << p for p in grp); m32 = bits | (bits << 16)
    E(f"""
L_ck{gi}:
    s_mov_b32 vcc_lo, {m32}
    s_mov_b32 vcc_hi, {m32}
    v_cndmask_b32 v{ACC}, 0, v{ENT+1}, vcc
    s_and_b32 s30, s68, {bits}
    s_cbranch_scc1 L_xa{gi}
L_xb{gi}:
    """)
    def xacc():
        E(f"L_xa{gi}:\ns_waitcnt vmcnt({NP})")
        for p in grp:
            r = RB + 4*p
            E(f"""
            {mask2(p)}
            s_mov_b64 exec, vcc
            v_add3_u32 v{ACC}, v{ACC}, v{r+1}, v{r+2}
            v_add_u32 v{ACC}, v{ACC}, v{r+3}
            s_mov_b64 exec, -1
            """)
        E(f"s_branch L_xb{gi}")
    emit_to(outofline, xacc)
    for p in grp:
        r = RA + 4*p
        E(f"""
        s_waitcnt vmcnt({NP-1-p})
        s_mov_b64 exec, s[{48+2*p}:{49+2*p}]
        v_and_b32 v{r}, v{r}, v{L0M}
        v_add3_u32 v{ACC}, v{ACC}, v{r+2}, v{r+3}
        v_add3_u32 v{ACC}, v{ACC}, v{r}, v{r+1}
        """)
    E("s_mov_b64 exec, -1\ns_nop 0")
    for k in (1, 2, 4, 8):
        E(f"v_add_u32_dpp v{ACC}, v{ACC}, v{ACC} row_ror:{k} row_mask:0xf bank_mask:0xf")
        if k < 8: E("s_nop 1")
    E(f"v_cmp_ne_u32 vcc, 0, v{ACC}\ns_cbranch_vccnz L_rt{gi}")
    if OPT["rst"]: STAMP(1+gi)
    if OPT["sig"] == gi + 1: issued()
    def retry():
        E(f"L_rt{gi}:\ns_sub_u32 s34, s34, 1\ns_cbranch_scc1 {'L_toobig' if gi < OPT['sig'] else 'L_giveup'}")
        loads(grp, f"r{gi}_")
        E(f"s_waitcnt vmcnt(0)\ns_branch L_ck{gi}")
    emit_to(outofline, retry)
    for p in grp: rank(RA + 4*p, f"s[{48+2*p}:{49+2*p}]")
    E(f"s_and_b32 s30, s68, {bits}\ns_cbranch_scc1 L_ya{gi}\nL_yb{gi}:")
    def xput():
        E(f"L_ya{gi}:")
        for p in grp:
            r = RB + 4*p
            E(f"""
            s_bitcmp1_b32 s68, {p}
            s_cbranch_scc0 L_yn{p}
            s_mov_b64 exec, -1
            {mask2(p)}
            """)
            rank(r, "vcc")
            E("s_waitcnt lgkmcnt(0)")
            put(r, "vcc")
            E(f"L_yn{p}:")
        E(f"s_branch L_yb{gi}")
    emit_to(outofline, xput)
    for k, p in enumerate(grp):
        E(f"s_waitcnt lgkmcnt({len(grp) - 1 - k + 2*k})")
        put(RA + 4*p, f"s[{48+2*p}:{49+2*p}]")
    E("s_mov_b64 exec, -1")
E(f"""
    {f"s_sub_u32 s{ST0+4}, {POLL_MAX+1}, s34" if OPT["cnt"] else ""}
    s_branch L_b4
L_toobig:
    s_mov_b64 exec, -1
""")
issued()
E(f"""
L_giveup:
    v_mov_b32 v2, 0
    ds_write_b32 v2, v{FOUR} offset:{L_FLAG}
L_recskip:
    s_waitcnt vmcnt(0)
L_b4:
    s_setprio {OPT["p0"] if OPT["prio"] == 2 else 0}
    s_mul_i32 s30, s{S_HALF}, {G_HALF}
    {f"s_add_u32 s30, s30, {WS0}" if WS0 else ""}
    s_add_u32 s36, s20, s30
    s_addc_u32 s37, s21, 0
    s_mov_b32 s38, {OPT['nrec'] or G_HALF}
    s_mov_b32 s39, 0x20000
    s_mov_b32 s44, 128
    s_mov_b32 s45, 128
    ds_read_b128 v[60:63], v{LP}
    ds_read_b64 v[{AG}:{AG+1}], v{LP} offset:64
    ds_read_b64 v[{WN2}:{WN2+1}], v{LP} offset:72
    ds_read_b32 v{WE}, v{LP+1}
    s_waitcnt lgkmcnt(0)
    v_lshl_add_u64 v[{AG}:{AG+1}], v[{AG}:{AG+1}], 0, v[{LN8}:{LN8+1}]
    v_lshl_add_u32 v{WE}, v{WE}, 1, v{EAC}
""")
if OPT["warm"]:
    E(f"""
    s_barrier
    s_lshr_b32 s30, s2, 3
    s_mul_i32 s30, s30, 98304
    v_lshl_add_u32 v2, v0, 7, s30
    buffer_load_dword v3, v2, s[36:39], 0 offen sc1
    s_waitcnt vmcnt(0)
    s_sleep 40
    """)
STAMP(8)
E(f"""
    s_barrier                               ; B4
    s_cmp_lg_u32 s{S_SAFE}, 0
    s_cbranch_scc1 L_safe
    ds_read_b128 v[{T}:{T+3}], v60
    ds_read_b128 v[{T+4}:{T+7}], v61
    ds_read_b64 v[{XA}:{XA+1}], v{AG} offset:512
    ds_read_b64 v[{EA}:{EA+1}], v{WE}
    s_lshr_b32 s30, s3, 2
    s_cmp_lg_u32 s30, 1
    s_cbranch_scc1 L_nopoll
    s_mov_b64 exec, s[66:67]
    s_cbranch_execz L_p2e
    s_mov_b32 s31, {POLL_MAX}
L_p2:
    global_load_dwordx2 v[66:67], v64, s[20:21] sc1
    s_sub_u32 s31, s31, 1
    s_cbranch_scc1 L_p2d
    s_waitcnt vmcnt(0)
    v_cmp_ne_u64 vcc, s[{S_TAG}:{S_TAG+1}], v[66:67]
    s_and_b64 exec, exec, vcc
    s_cbranch_scc0 L_p2d
    {f"s_sleep {OPT['p2sleep']}" if OPT['p2sleep'] else ""}
    s_branch L_p2
L_p2d:
""")
gready()
E(f"""
L_p2e:
    s_mov_b64 exec, -1
L_nopoll:
    s_cmp_lt_u32 s3, {NW-2}
    s_cbranch_scc1 L_nobuild
    v_lshlrev_b32 v2, 3, v1
    v_mov_b32 v3, 0
    ds_read_b64 v[72:73], v2 offset:{L_CNT}
    ds_read_b32 v79, v3 offset:{L_FLAG}
    v_mul_u32_u24 v74, {2*SSTR}, v1
    v_add_u32 v74, {L_SRC + 96}, v74
    v_add_u32 v75, {SSTR}, v74
    v_mul_u32_u24 v82, {2*NSTR}, v1
    s_and_b32 s32, s3, 1
    s_mul_i32 s30, s32, {NSTR}
    s_add_u32 s30, s30, {L_NODE}
    v_add_u32 v82, s30, v82
    v_mov_b32 v83, v82
    s_mul_i32 s30, s32, {SSTR}
    v_add_u32 v80, s30, v74
    v_add_u32 v81, 16, v80
    s_waitcnt lgkmcnt(0)
    v_sub_u32 v72, v72, v74 clamp
    v_sub_u32 v73, v73, v75 clamp
    v_max_u32 v76, v72, v73
    v_cmp_lt_u32 vcc, 160, v76
    v_cmp_ne_u32 s[48:49], 0, v79
    v_add_u32 v74, 12, v72
    v_add_u32 v75, 12, v73
    s_or_b64 vcc, vcc, s[48:49]
    s_cbranch_scc1 L_bad
    v_add_u32 v72, 28, v72
    v_add_u32 v73, 28, v73
    v_lshrrev_b32 v74, 5, v74
    v_lshrrev_b32 v75, 5, v75
    v_lshrrev_b32 v72, 5, v72
    v_lshrrev_b32 v73, 5, v73
    v_sub_u32 v72, v72, v74
    v_sub_u32 v73, v73, v75
    v_lshl_or_b32 v72, v72, 16, v74
    v_lshl_or_b32 v73, v73, 16, v75
    v_add_u32 v76, v72, v73
    v_add_u32 v77, v72, v73
""")
scan(77)
E(f"""
    s_cmp_eq_u32 s32, 0
    s_cselect_b64 vcc, -1, 0
    v_readlane_b32 s30, v77, 63
    v_cndmask_b32 v76, v73, v76, vcc
    v_cndmask_b32 v72, v73, v72, vcc
    v_sub_u32 v77, v77, v76
    s_and_b32 s31, s30, 0xffff
    s_add_u32 s31, s31, 3
    s_lshr_b32 s31, s31, 2
    s_add_u32 s30, s30, 0x30000
    s_lshr_b32 s30, s30, 18
    s_lshl_b32 s33, s31, 1
    s_add_u32 s33, s33, s30
    s_cmp_gt_u32 s33, 112
    s_cbranch_scc1 L_bad
    s_lshl_b32 s30, s30, 8
    s_or_b32 s29, s30, s31
    v_and_b32 v74, 0xffff, v72
    v_and_b32 v76, 0xffff, v77
    s_mov_b32 s34, {L_LISTC}
    s_mov_b32 s35, {L_LIST + 384}
""")
def slotaddr():
    E(f"""
    v_add_u32 v78, 16, v76
    v_bfe_u32 v79, v76, 2, 2
    v_lshl_add_u32 v79, v79, 10, s34
    v_lshrrev_b32 v84, 5, v78
    v_lshl_add_u32 v79, v84, 7, v79
    v_bfe_u32 v84, v78, 4, 1
    v_lshl_add_u32 v79, v84, 3, v79
    v_lshrrev_b32 v84, 2, v76
    v_cmp_gt_u32 vcc, 32, v76
    v_lshl_add_u32 v84, v84, 9, s35
    v_and_b32 v78, 3, v76
    v_cndmask_b32 v79, v79, v84, vcc
    v_lshl_add_u32 v79, v78, 4, v79
    """)
E("""
L_bf:
    v_cmp_ne_u32 vcc, 0, v74
    s_and_b64 exec, exec, vcc
    s_cbranch_execz L_bfd
""")
slotaddr()
E(f"""
    ds_write_b64 v79, v[80:81]
    ds_write_b64 v79, v[82:83] offset:64
    v_add_u32 v80, 32, v80
    v_add_u32 v81, 32, v81
    v_add_u32 v76, 1, v76
    v_subrev_u32 v74, 1, v74
    s_branch L_bf
L_bfd:
    s_mov_b64 exec, -1
    v_lshrrev_b32 v77, 16, v77
    v_lshrrev_b32 v76, 3, v77
    v_add_u32 v76, s31, v76
    v_and_b32 v78, 3, v77
    v_lshl_add_u32 v76, v76, 2, v78
""")
slotaddr()
E(f"""
    v_and_b32 v78, 4, v77
    v_add_u32 v79, v79, v78
    v_cmp_lt_u32 vcc, 0xffff, v72
    s_mov_b64 exec, vcc
    ds_write2_b32 v79, v80, v82 offset0:0 offset1:16
    s_mov_b64 exec, -1
    s_mul_i32 s29, s29, s32
    s_add_u32 s29, s29, 0x10000
    s_branch L_built
L_bad:
    s_mov_b32 s29, 0x1010000
L_built:
    v_mov_b32 v2, s29
    s_mov_b64 exec, 1
    ds_add_u32 v3, v2 offset:{L_NST}
    s_add_u32 s30, s{S_P}, s32
    s_cmp_lg_u32 s30, 0
    s_cbranch_scc1 L_notw
    v_mov_b32 v2, s{S_TAG}
    v_mov_b32 v3, {WS_TAG}
    global_store_dword v3, v2, s[20:21]
L_notw:
    s_mov_b64 exec, -1
L_nobuild:
    s_waitcnt lgkmcnt(0)
""")
assert DIST == 2 and not EARLY
E(m_a(D0))
for o in range(T, T+8, 2): E(oadd(o))
E(m_e(D0, 0))
lds_wait(L_GOK, 0xff, 4, "gok")
if OPT["stamps"] == 2: E(f"s_memrealtime s[{ST0+16}:{ST0+17}]")
if not OPT["nogather"]:
    for q in range(8): E(gload(G + 4*q, T+q))
STAMP(9)
E(f"""
    s_mov_b32 s31, {POLL_MAX}
    s_waitcnt vmcnt(4)
""")
E(m_s(D0, A1, G)); E(m_s(D0, A2, G+8))
E(f"""
L_wn:
    ds_read_b32 v3, v2 offset:{L_NST}
    ds_read_b128 v[{WS4}:{WS4+3}], v{LP} offset:{128*((DIST+EARLY)//4)}
    s_sub_u32 s31, s31, 1
    s_cbranch_scc1 L_gosafe
    s_waitcnt lgkmcnt(0)
    v_readfirstlane_b32 s30, v3
    s_bitcmp1_b32 s30, 17
    s_cbranch_scc0 L_wn
    s_cmp_gt_u32 s30, {0 if OPT["force_safe"] else 0xffffff}
    s_cbranch_scc1 L_gosafe
    s_and_b32 s31, s30, 0xff
    s_bfe_u32 s30, s30, 0x80008
    s_lshl_b32 s32, s31, 1
    s_add_u32 s30, s30, s32
    s_lshl_b32 s32, s3, 1
    s_sub_i32 s30, s30, s32
    s_max_i32 s30, s30, 0
    s_cmp_ge_u32 s3, 8
    s_cbranch_scc1 L_nc
    s_min_u32 s30, s30, 2
    s_add_u32 s{S_R}, s30, 12
    s_cmp_ge_u32 s3, s31
    s_cselect_b32 s30, 0x2000, 0
    s_or_b32 s{S_M}, s30, 0x5041
    s_branch L_nd
L_nc:
    s_add_u32 s32, s30, 7
    s_lshr_b32 s32, s32, 3
    s_lshl_b32 s32, s32, 1
    s_and_b32 s30, s30, 7
    s_cmp_eq_u32 s30, 1
    s_subb_u32 s32, s32, 0
    s_add_u32 s{S_R}, s32, 6
    s_sub_i32 s31, s31, s3
    s_add_i32 s31, s31, 3
    s_max_i32 s31, s31, 0
    s_lshr_b32 s31, s31, 2
    s_lshl_b32 s31, s31, 1
    s_add_u32 s31, s31, 7
    s_lshl_b32 s31, -1, s31
    s_or_b32 s{S_M}, s31, 0x55555541
L_nd:
    s_mov_b32 s{S_IT}, {(1 << OPT["pa"]) | (1 << OPT["pb"]) | (1 << OPT["pc"]) if OPT["prio"] == 2 else 0}
""")
if OPT["prio"]: E(f"s_setprio {OPT['p1']}")
STAMP(10)
if OPT["ptime"]: E("v_mov_b32 v35, 0\nv_mov_b32 v68, 0")
if OPT["stamps"] == 1: E(f"s_memtime s[{ST0+24}:{ST0+25}]\ns_waitcnt lgkmcnt(0)")
for u in range(4): phase(u, True)
for u in range(4): phase(u, False)
E(f"""
L_mdone:
    s_waitcnt lgkmcnt(0)
""")
STAMP(11)
if OPT["ptime"]:
    E(f"""
    s_lshl_b32 s30, s2, 4
    s_add_u32 s30, s30, s3
    s_lshl_b32 s30, s30, 8
    s_add_u32 s30, s30, 0xc00000
    v_lshl_add_u32 v2, v1, 2, s30
    s_mov_b32 exec_hi, 0
    global_store_dword v2, v35, s[20:21]
    global_store_dword v2, v68, s[20:21] offset:128
    s_mov_b64 exec, -1
    """)
if OPT["stamps"] == 1:
    E(f"s_memtime s[28:29]\ns_waitcnt lgkmcnt(0)\ns_sub_u32 s{ST0+24}, s28, s{ST0+24}")
E(f"""
    v_lshrrev_b32 v2, 5, v0
    v_and_b32 v3, 31, v0
    v_mul_u32_u24 v4, {NSTR}, v2
    v_and_b32 v5, 1, v3
    v_lshl_add_u32 v4, v5, 8, v4
    v_lshrrev_b32 v5, 1, v3
    v_lshl_add_u32 v4, v5, 3, v4
    v_add_u32 v4, {L_NODE}, v4
    s_mul_i32 s30, s{S_BUCK}, {NB*256}
    s_lshl_b32 s31, s{S_HALF}, 7
    s_add_u32 s30, s30, s31
    v_lshlrev_b32 v3, 2, v3
    v_lshl_add_u32 v5, v2, 8, v3
    v_add_u32 v5, s30, v5
    v_add_u32 v6, {24*256}, v5
    v_add_u32 v7, {48*256}, v5
    v_add_u32 v8, {72*256}, v5
    s_mov_b32 s32, {f32(2.0**32)}
    s_mov_b32 s34, {f32(-LOG2E * 2.0**-32)}
    v_mov_b32 v9, 0x207
    s_barrier                               ; B5
""")
OSC = {0: "", 1: " sc1", 2: " nt"}[OPT["osc"]]
def epi(us):
    for u in us: E(f"ds_read_b64 v[{12+4*u}:{13+4*u}], v4 offset:{24*NSTR*u}\nds_read_b64 v[{14+4*u}:{15+4*u}], v4 offset:{24*NSTR*u + 128}")
    E("s_waitcnt lgkmcnt(0)")
    for u in us: E(f"v_cvt_f32_f64 v{28+2*u}, v[{12+4*u}:{13+4*u}]\nv_cvt_f32_f64 v{29+2*u}, v[{14+4*u}:{15+4*u}]")
    for u in us: E(f"v_pk_mul_f32 v[{36+2*u}:{37+2*u}], v[{28+2*u}:{29+2*u}], s[34:35] op_sel_hi:[1,0]")
    for u in us: E(f"v_exp_f32 v{36+2*u}, v{36+2*u}\nv_exp_f32 v{37+2*u}, v{37+2*u}")
    E("v_pk_add_f32 v[10:11], v[28:29], v[30:31]")
    for u in us: E(f"v_pk_fma_f32 v[{36+2*u}:{37+2*u}], v[{36+2*u}:{37+2*u}], s[32:33], s[32:33] op_sel_hi:[1,0,0]")
    for u in us: E(f"v_rcp_f32 v{36+2*u}, v{36+2*u}\nv_rcp_f32 v{37+2*u}, v{37+2*u}")
    E("v_pk_add_f32 v[10:11], v[10:11], v[32:33]")
    for u in us: E(f"v_pk_mul_f32 v[{36+2*u}:{37+2*u}], v[{28+2*u}:{29+2*u}], v[{36+2*u}:{37+2*u}]")
    for u in us: E(f"v_cvt_pk_bf16_f32 v{44+u}, v{36+2*u}, v{37+2*u}\nglobal_store_dword v{5+u}, v{44+u}, s[18:19]{OSC}")
    for u in us[3:]: E(f"v_pk_add_f32 v[10:11], v[10:11], v[{28+2*u}:{29+2*u}]")
E("s_cmp_ge_u32 s3, 4\ns_cbranch_scc1 L_e3")
epi([0, 1, 2, 3])
E("s_branch L_e4\nL_e3:")
epi([0, 1, 2])
E(f"""
L_e4:
    v_add_f32 v10, v10, v11
    v_cmp_class_f32 vcc, v10, v9
    v_mov_b32 v2, 0
    s_cmp_lg_u32 s{S_SAFE}, 0
    s_cbranch_scc1 L_fin
    {"s_branch" if OPT["nosafe"] else "s_cbranch_vccz"} L_e5
    ds_write_b32 v2, v9 offset:{L_FLAG}
    s_waitcnt lgkmcnt(0)
L_e5:
    s_barrier                               ; B6
    ds_read_b32 v2, v2 offset:{L_FLAG}
    s_waitcnt lgkmcnt(0)
    v_readfirstlane_b32 s30, v2
    s_cmp_lg_u32 s30, 0
    s_cbranch_scc1 L_gosafe
L_fin:
""")
if OPT["stamps"]:
    E("s_waitcnt vmcnt(0)"); STAMP(13); STAMP_OUT()
if OPT["probe"] >= 0:
    T_ = ST0 + 2*OPT["probe"]
    E(f"""
    s_cmp_lg_u32 s3, {OPT["pw"]}
    s_cbranch_scc1 L_end
    s_cmp_lg_u32 s2, {OPT["pg"] if OPT["pg"] >= 0 else "s2"}
    s_cbranch_scc1 L_end
    s_sub_u32 s30, s{T_}, s{ST0}
    s_lshl_b32 s30, s30, 2
    s_add_u32 s30, s30, 3000
    s_min_u32 s30, s30, 20000
L_spin:
    s_memrealtime s[28:29]
    s_waitcnt lgkmcnt(0)
    s_sub_u32 s28, s28, s{ST0}
    s_cmp_lt_u32 s28, s30
    s_cbranch_scc1 L_spin
    """)
E(f"""
L_end:
    s_endpgm
L_gosafe:
    s_mov_b32 s{S_SAFE}, 8
    s_setprio 0
    s_waitcnt vmcnt(0) lgkmcnt(0)
    s_barrier
    s_branch L_restart
""")
out += outofline
for r in retries: E(r)
E(f"""
L_safe:
    v_and_b32 v2, 15, v1
    v_lshlrev_b32 v3, 3, v2
    v_add_u32 v3, {L_C}, v3
""")
for k in range(4):
    for s in range(4):
        E(f"ds_read_u16 v{80+4*k+s}, v3 offset:{128*k + 2*s}")
E("s_waitcnt lgkmcnt(0)")
for i in range(16):
    E(f"v_lshlrev_b32 v{80+i}, 16, v{80+i}\nv_mul_f32 v{80+i}, s40, v{80+i}")
E(f"""
    v_lshrrev_b32 v24, 4, v1
    v_mul_u32_u24 v24, 3, v24               ; 3*quarter
    s_movk_i32 s33, {NSTR}
    v_add_u32 v25, {L_NODE}, v{LN8}
    s_mov_b32 s34, s3
    s_mov_b32 s35, {POLL_MAX}
L_scell:
    s_lshl_b32 s30, s34, 10
    s_lshl_b32 s31, s{S_BUCK}, 3
    s_add_u32 s30, s30, s31
    s_add_u32 s30, s30, {WS_ROW}
    v_mov_b32 v26, s30
    global_load_dword v32, v26, s[20:21] sc1
    s_mul_i32 s30, s34, {SORTB//4}
    s_add_u32 s30, s30, {WS_REC//4}
    s_waitcnt vmcnt(0)
    v_bfe_u32 v28, v32, 12, 12              ; 3*count
    v_and_b32 v27, 0xfff, v32
    v_add_u32 v27, s30, v27
L_sver:
    v_mov_b32 v29, v1
    v_mov_b32 v31, 0
L_sv1:
    v_cmp_ge_u32 vcc, v28, v29
    s_and_saveexec_b64 s[48:49], vcc
    s_cbranch_execz L_sv2
    v_add_lshl_u32 v30, v27, v29, 2
    global_load_dword v32, v30, s[20:21] sc1
    s_waitcnt vmcnt(0)
    v_add_u32 v31, v31, v32
    s_mov_b64 exec, s[48:49]
    v_add_u32 v29, 64, v29
    s_branch L_sv1
L_sv2:
    s_mov_b64 exec, s[48:49]
""")
scan(31)
E(f"""
    s_nop 0
    v_readlane_b32 s30, v31, 63
    s_cmp_eq_u32 s30, s{S_TAG+1}
    s_cbranch_scc1 L_sok
    s_sub_u32 s35, s35, 1
    s_cbranch_scc0 L_sver
    s_branch L_mdone
L_sok:
    v_mov_b32 v29, v24
L_srec:
    v_cmp_gt_u32 vcc, v28, v29
    s_and_saveexec_b64 s[48:49], vcc
    s_cbranch_execz L_snext
    v_add_lshl_u32 v30, v27, v29, 2
    global_load_dwordx3 v[32:34], v30, s[20:21] offset:4 sc1
    s_waitcnt vmcnt(0)
    v_and_b32 v30, 0x3fff00, v32
    v_add_u32 v30, v30, v{LN16}
    buffer_load_dwordx4 v[36:39], v30, s[36:39], 0 offen sc1
    v_lshrrev_b32 v31, 24, v32
    v_mad_u32_u24 v31, v31, s33, v25
    ds_read_b64 v[40:41], v31 offset:512
    v_lshlrev_b32 v44, 16, v33
    v_and_b32 v45, 0xffff0000, v33
    v_lshlrev_b32 v46, 16, v34
    v_and_b32 v47, 0xffff0000, v34
    s_waitcnt vmcnt(0) lgkmcnt(0)
    v_lshlrev_b32 v48, 16, v40
    v_and_b32 v49, 0xffff0000, v40
    v_lshlrev_b32 v50, 16, v41
    v_and_b32 v51, 0xffff0000, v41
""")
for s in range(4):
    E(f"v_lshlrev_b32 v52, 16, v{36+s}\nv_add_f32 v{48+s}, v{48+s}, v52")
    for k in range(4):
        E(f"v_fmac_f32 v{48+s}, v{44+k}, v{80+4*k+s}")
for s in range(4): E(f"v_exp_f32 v{48+s}, v{48+s}")
E("s_nop 0")
for s in range(4): E(f"v_add_f32 v{48+s}, 1.0, v{48+s}")
for s in range(4): E(f"v_rcp_f32 v{48+s}, v{48+s}")
E("s_nop 0")
for s in range(4): E(f"v_mul_f32 v{48+s}, v{48+s}, v{36+s}")
for s in range(4): E(f"v_cvt_f64_f32 v[{54+2*s}:{55+2*s}], v{48+s}")
for s in range(4): E(f"ds_add_f64 v31, v[{54+2*s}:{55+2*s}] offset:{128*s}")
E(f"""
    s_mov_b64 exec, s[48:49]
    v_add_u32 v29, 12, v29
    s_branch L_srec
L_snext:
    s_mov_b64 exec, s[48:49]
    s_add_u32 s34, s34, {NW}
    s_cmp_lt_u32 s34, {NCHUNK}
    s_cbranch_scc1 L_scell
    s_branch L_mdone
L_codeend:
.section .rodata,"a"
.p2align 6
.amdhsa_kernel {NAME}
.amdhsa_next_free_vgpr 168
.amdhsa_next_free_sgpr 102
.amdhsa_accum_offset 168
.amdhsa_group_segment_fixed_size 0
.amdhsa_kernarg_size 80
.amdhsa_user_sgpr_count 2
.amdhsa_user_sgpr_kernarg_segment_ptr 1
.amdhsa_system_sgpr_workgroup_id_x 1
.end_amdhsa_kernel
""")
if OPT["drop"]:
    i0 = out.index("L_L0:"); i1 = out.index("L_mdone:")
    pats = {1: ("smfmac",), 2: ("mfma",), 3: ("32x32x8",), 4: ("smfmac",), 5: ("v_exp",)}[OPT["drop"]]
    repl = {4: "    s_nop 2", 5: "    s_nop 1"}.get(OPT["drop"])
    mid = []
    for l in out[i0:i1]:
        if any(x in l for x in pats):
            if repl: mid.append(repl)
        else: mid.append(l)
    if OPT["drop"] == 3: mid = [l.replace("v[88:103] cbsz", "0 cbsz").replace("v[72:87] cbsz", "0 cbsz") for l in mid]
    out = out[:i0] + mid + out[i1:]
if OPT["nochain"]:
    i0 = out.index("L_L0:"); i1 = out.index("L_mdone:")
    out = out[:i0] + [l for l in out[i0:i1] if not any(x in l for x in ("v_exp", "v_pk_", "mfma", "v_rcp", "v_cvt"))] + out[i1:]
open(sys.argv[1], "w").write("\n".join(out) + "\n")
```

```python
import sys, struct

OPT = dict(hb=1, stamps=0, force_safe=0, nogather=0, nosafe=0, prio=2, gsc1=1, osc=1, codepf=1, srcmask=0x3fff00, nrec=0, warm=0,
           nochain=0, probe=-1, pw=-1, pg=-1, gpf=32, early=0, cnt=0, pollmax=200000, pa=7, pb=3, pc=1, p0=3, p1=3, ptime=0,
           dist=2, ldearly=0, drop=0, wgate=0, gate=0, gate2=1, rst=0, rsc1=1, nover=0, p2gate=1, p2sleep=0, hold=0, slate=2, lpos=0, p1st=1, sig=1, gpace=4, gwin=-1, gp=0xf448c, ghold=0, nte=0, ewhen=2, ntx=0, rpace=-1, p2wait=0)
for a in sys.argv[2:]:
    k, v = a.split("=")
    assert k in OPT, k
    OPT[k] = int(v, 0)

out = []
def E(s=""):
    for line in s.split("\n"):
        line = line.strip()
        if not line:
            continue
        if line.endswith(":") or line.startswith(".") or line.startswith(";"):
            out.append(line)
        else:
            out.append("    " + line)

def f32(x):
    return "0x%08x" % struct.unpack("<I", struct.pack("<f", x))[0]

NAME = "standalone__edge_featured_mpnn_egc__graph_kernel"
LOG2E = 1.4426950408889634
NB = 80; NBUCK = 125; CHUNK = 1280; NCHUNK = 250
NW = 12
G_HALF = 10000 * 256
WS0 = 0
WS_REC = 0x500000
WS_ROW = 0x900000
WS_FL2 = 0x980000
WS_TAG = 0x9c0000
SORTB = CHUNK * 12 + 512
WS_STAMP = 0x1000000
L_CNT = 0; L_SOFF = 512
L_SCNT = 1024
L_CTR = 1536; L_RD = 1540; L_DONE2 = 1544; L_FLAG = 1548; L_NST = 1552; L_GST = 1556; L_GOK = 1560; L_AU = 1564
L_DUM = L_SOFF
L_LIST = 2048
L_LISTC = L_LIST + 4096
SSTR = 272
L_SRC = L_LIST + 8192
SRCB = 80 * SSTR + 32
L_EA = L_SRC + SRCB
L_EAEND = L_EA + 2 * SRCB
L_SORT = L_EA
L_WBV = (L_EAEND + 255) // 256 * 256; L_X = L_WBV + 32768; L_WAU = L_X + 20480; L_C = L_WAU + 32768
LDS = L_C + 1024
L_NODE = L_WBV; NSTR = 648
assert L_NODE + 80 * NSTR <= L_WAU and LDS <= 163840 and L_EA % 16 == 0
NULL_SRC = 0x7fffff00
POLL_MAX = OPT["pollmax"]
SC1 = " sc1"
NTE = " nt" if OPT["nte"] else ""
NTX = " nt" if OPT["ntx"] else ""

S_HALF, S_BUCK, S_P = 22, 23, 24
S_SAFE, S_TAG = 25, 26
S_R, S_M, S_IT = 70, 71, 72
S_TAGRAW = 47
ST0 = 74

def ESTAMP(i):
    if OPT["early"] == 1 or (OPT["early"] and i == 0): E(f"s_memrealtime s[{ST0+2*i}:{ST0+2*i+1}]")
def FSTAMP(i):
    if OPT["early"] == 2: E(f"s_memrealtime s[{ST0+2*i}:{ST0+2*i+1}]\ns_waitcnt lgkmcnt(0)")
def STAMP(i):
    if OPT["stamps"] == 2:
        if i == 0: E(f"s_memrealtime s[{ST0}:{ST0+1}]")
        if i == 13: E(f"s_memrealtime s[{ST0+26}:{ST0+27}]\ns_waitcnt lgkmcnt(0)")
        return
    if OPT["early"] and 1 <= i <= 7: return
    if OPT["early"] and i == 0: return ESTAMP(0)
    if OPT["stamps"] or (OPT["probe"] >= 0 and i == OPT["probe"]):
        E(f"s_memrealtime s[{ST0+2*i}:{ST0+2*i+1}]\ns_waitcnt lgkmcnt(0)")
    elif OPT["probe"] >= 0 and i == 0:
        E(f"s_memrealtime s[{ST0}:{ST0+1}]")
NSTAMP = 14
def STAMP_OUT():
    if OPT["stamps"]:
        E(f"""
        s_lshl_b32 s30, s2, 4
        s_add_u32 s30, s30, s3
        s_lshl_b32 s30, s30, 6
        s_add_u32 s30, s30, {WS_STAMP - 0x100000}
        s_load_dwordx2 s[20:21], s[0:1], 72
        s_waitcnt lgkmcnt(0)
        s_mov_b64 exec, -1
        v_mov_b32 v3, s30""")
        for i in (range(NSTAMP) if OPT["stamps"] == 1 else (0, 8, 13)):
            E(f"v_mov_b32 v2, s{ST0+2*i}\nglobal_store_dword v3, v2, s[20:21] offset:{4*i}")
        E("s_waitcnt vmcnt(0)")

A1, A2, IDX, EAC, LN16, ASEL, CW, LN8 = 4, 8, 12, 13, 14, 16, 18, 20
LP, WS4, WN2, EA, XA, WE, OFS, AG, T, N, P, F = 22, 24, 28, 30, 32, 34, 36, 40, 44, 52, 56, 60
D0, D1, G = 72, 88, 104

def finish_tag():
    E(f"""
    s_mul_i32 s{S_TAG+1}, s{S_TAGRAW}, 0x85ebca6b
    s_mul_i32 s{S_TAG}, s{S_TAGRAW}, 0x9e3779b1
    s_add_u32 s{S_TAG+1}, s{S_TAG+1}, 0x5bd1e995
    s_add_u32 s{S_TAG}, s{S_TAG}, 0x7f4a7c15
    """)
def get_tag(lab, q):
    E(f"""
    s_cmp_lg_u32 s{S_SAFE}, 0
    s_cbranch_scc1 L_tag_{lab}
    v_mov_b32 v2, 0
    s_mov_b32 s31, {POLL_MAX}
L_tg_{lab}:
    ds_read_b128 v[{q}:{q+3}], v2 offset:{L_SCNT + 124*4}
    s_sub_u32 s31, s31, 1
    s_cbranch_scc1 L_tag_{lab}
    s_waitcnt lgkmcnt(0)
    v_readfirstlane_b32 s30, v{q+3}
    v_readfirstlane_b32 s{S_TAGRAW}, v{q+1}
    s_cmp_lg_u32 s30, 4
    s_cbranch_scc1 L_tg_{lab}
    """)
    finish_tag()
    E(f"L_tag_{lab}:")

def lds_wait(addr, mask, val, tag, sleep=0, ne=False):
    E(f"""
    v_mov_b32 v2, 0
    s_mov_b32 s31, {POLL_MAX}
L_w_{tag}:
    {f"s_sleep {sleep}" if sleep else ""}
    ds_read_b32 v3, v2 offset:{addr}
    s_sub_u32 s31, s31, 1
    s_cbranch_scc1 L_wd_{tag}
    s_waitcnt lgkmcnt(0)
    v_readfirstlane_b32 s30, v3
    s_and_b32 s30, s30, {mask}
    s_cmp_lg_u32 s30, {val}
    s_cbranch_scc{0 if ne else 1} L_w_{tag}
L_wd_{tag}:
    """)
SCAN = ("row_shr:1 row_mask:0xf bank_mask:0xf bound_ctrl:0", "row_shr:2 row_mask:0xf bank_mask:0xf bound_ctrl:0",
        "row_shr:4 row_mask:0xf bank_mask:0xf bound_ctrl:0", "row_shr:8 row_mask:0xf bank_mask:0xf bound_ctrl:0",
        "row_bcast:15 row_mask:0xa bank_mask:0xf", "row_bcast:31 row_mask:0xc bank_mask:0xf")
def scan(r):
    for m in SCAN:
        E(f"s_nop 1\nv_add_u32_dpp v{r}, v{r}, v{r} {m}")

def main_consts(sm=48):
    E(f"""
    v_and_b32 v2, 15, v1                    ; n'
    v_lshrrev_b32 v3, 4, v1
    v_lshl_add_u32 v3, v2, 2, v3
    v_lshlrev_b32 v3, 1, v3
    v_add_u32 v3, {L_C}, v3
    ds_read_u16 v64, v3                     ; C[0..3][feature 4n'+s]
    ds_read_u16 v65, v3 offset:128
    ds_read_u16 v66, v3 offset:256
    ds_read_u16 v67, v3 offset:384
    v_and_b32 v63, 3, v1                    ; q
    v_lshlrev_b32 v{LN8}, 3, v2
    v_lshlrev_b32 v{LN8+1}, 3, v2
    v_lshlrev_b32 v{LN16}, 4, v2
    v_lshlrev_b32 v{LN16+1}, 4, v2
    v_mov_b32 v{IDX}, 0x8888
    v_bfe_u32 v60, v1, 3, 2                 ; s = (l&31)>>3
    v_bfe_u32 v61, v1, 2, 1                 ; h = (l>>2)&1
    v_lshrrev_b32 v62, 5, v1                ; ha
    v_and_b32 v2, 1, v60
    v_lshlrev_b32 v2, 4, v2
    v_lshlrev_b32 v2, v2, s46
    v_lshrrev_b32 v60, 1, v60               ; s>>1
    v_lshl_add_u32 v3, v61, 1, v60
    v_sub_u32 v63, v63, v62                 ; q - ha : 0 -> A1, 2 -> A2
    v_lshl_add_u32 v3, v63, 1, v3
    v_and_b32 v63, 1, v63
    v_lshl_or_b32 v3, v63, 4, v3
    v_xor_b32 v61, v61, v62
    v_lshl_or_b32 v60, v61, 4, v60
    """)
    mk = [f"s[{sm}:{sm+1}]", f"s[{sm+2}:{sm+3}]", f"s[{sm+4}:{sm+5}]", "vcc"]
    for i in range(8):
        E(f"v_cmp_eq_u32 {mk[i%4]}, {i}, v3")
        if i % 4 == 3:
            for j in range(i-3, i+1):
                E(f"v_cndmask_b32 v{A1+j}, 0, v2, {mk[j%4]}")
    E(f"""
    v_cmp_eq_u32 {mk[0]}, 0, v60
    v_cmp_eq_u32 {mk[1]}, 1, v60
    v_and_b32 v63, 3, v1
    v_lshlrev_b32 v61, 3, v63
    v_cndmask_b32 v{ASEL}, 0, v2, {mk[0]}
    v_cndmask_b32 v{ASEL+1}, 0, v2, {mk[1]}
    v_add_u32 v{EAC}, {L_EA - 2*L_SRC}, v61
    s_lshl_b32 s30, s3, 9
    s_sub_u32 s31, s30, 4096
    s_max_i32 s31, s31, 0
    s_add_u32 s30, s30, s31
    s_add_u32 s30, s30, {L_LIST}
    v_lshrrev_b32 v2, 4, v1
    v_lshl_add_u32 v{LP}, v2, 4, s30
    v_bfe_u32 v3, v1, 2, 2
    v_lshl_add_u32 v{LP+1}, v3, 4, s30
    v_lshl_add_u32 v{LP+1}, v2, 2, v{LP+1}
    s_waitcnt lgkmcnt(0)
    v_lshlrev_b32 v60, 16, v64
    v_lshlrev_b32 v61, 16, v65
    v_lshlrev_b32 v62, 16, v66
    v_lshlrev_b32 v63, 16, v67
    v_mul_f32 v60, s40, v60
    v_mul_f32 v61, s40, v61
    v_mul_f32 v62, s40, v62
    v_mul_f32 v63, s40, v63
    v_cvt_pk_bf16_f32 v{CW}, v60, v61
    v_cvt_pk_bf16_f32 v{CW+1}, v62, v63
    """)

def gload(g, o):
    return f"buffer_load_dwordx4 v[{g}:{g+3}], v{o}, s[36:39], 0 offen" + (SC1 if OPT["gsc1"] else "")
def oadd(o):
    return f"v_lshl_add_u64 v[{o}:{o+1}], v[{o}:{o+1}], 0, v[{LN16}:{LN16+1}]"

def pk_steps(Gc, q, first):
    t = T + 4*(q & 1); h = Gc + 4*q
    if first and q == 0:
        return [f"v_pk_add_f32 v[{P+2*p}:{P+2*p+1}], v[{t+2*p}:{t+2*p+1}], 1.0 op_sel_hi:[1,0]" for p in range(2)]
    r = []
    for p in range(2):
        n = f"v[{Gc+2*p}:{Gc+2*p+1}]" if (first and q == 1) else f"v[{N+2*p}:{N+2*p+1}]"
        r.append(f"v_pk_fma_f32 v[{N+2*p}:{N+2*p+1}], {n}, v[{t+2*p}:{t+2*p+1}], {n}")
    for p in range(2):
        r.append(f"v_pk_fma_f32 v[{N+2*p}:{N+2*p+1}], v[{h+2*p}:{h+2*p+1}], v[{P+2*p}:{P+2*p+1}], v[{N+2*p}:{N+2*p+1}]")
    for p in range(2):
        r.append(f"v_pk_fma_f32 v[{P+2*p}:{P+2*p+1}], v[{P+2*p}:{P+2*p+1}], v[{t+2*p}:{t+2*p+1}], v[{P+2*p}:{P+2*p+1}]")
    return r
def exps(Dc, q):
    t = T + 4*(q & 1)
    return [f"v_exp_f32 v{t+s}, v{Dc+4*s+q}" for s in range(4)]
def weave(main, extra):
    for i, x in enumerate(main):
        E(x)
        for y in extra.get(i, []):
            E(y)
def m_a(Dn): return f"v_mfma_f32_32x32x8_bf16 v[{Dn}:{Dn+15}], v[{ASEL}:{ASEL+1}], v[{XA}:{XA+1}], 0"
def m_e(Dn, abid): return f"v_mfma_f32_16x16x4_4b_bf16 v[{Dn}:{Dn+15}], v[{EA}:{EA+1}], v[{CW}:{CW+1}], v[{Dn}:{Dn+15}] cbsz:2 abid:{abid}"
def m_s(Dn, A, g): return f"v_smfmac_f32_32x32x32_bf16 v[{Dn}:{Dn+15}], v[{A}:{A+3}], v[{g}:{g+7}], v{IDX}"

outofline = []
def emit_to(lst, fn):
    global out
    keep = out; out = []
    fn(); lst += out; out = keep
DIST = OPT["dist"]; EARLY = OPT["ldearly"]
assert not (EARLY and DIST == 4)
def phase(u, loads):
    tag = f"{'L' if loads else 'T'}{u}"
    Dc, Dn = ((D0, D1), (D1, D0))[u & 1]
    gc = G + 16*u; gn = G + 16*((u+1) & 3); gl = G + 16*((u+DIST) & 3)
    ld = loads and not OPT["nogather"]
    kw = (u + DIST + EARLY) & 3
    wsgrp = 128 * ((3 - kw + u + DIST + EARLY) // 4 + 1) if kw == 3 else None
    def addloads(ex, pos):
        if loads:
            ex.setdefault(0, []).append(oadd(OFS)); ex.setdefault(2, []).append(oadd(OFS+2))
        if ld:
            for q in range(4): ex.setdefault(pos[q], []).append(gload(gl+4*q, OFS+q))
    E(f"L_{tag}:")
    if OPT["ptime"]: E(f"s_memrealtime s[28:29]\ns_mov_b32 m0, s{S_R}")
    if OPT["ptime"] == 2: E(f"s_memtime s[30:31]")
    SL = OPT["slate"]
    if not SL: E(f"s_waitcnt vmcnt({4*(DIST-2)})")
    if OPT["ptime"] == 1: E(f"s_memrealtime s[30:31]")
    E(m_a(Dn))
    for x in exps(Dc, 0): E(x)
    E(m_e(Dn, (u+1) & 3) if SL else m_s(Dn, A1, gn))
    for x in exps(Dc, 1): E(x)
    ex = {0: ["s_waitcnt lgkmcnt(0)"], 2: [f"ds_read_b64 v[{XA}:{XA+1}], v{AG + ((u+2) & 3)} offset:512"]}
    if OPT["ptime"]: ex[0] += ["v_writelane_b32 v35, s28, m0", "v_writelane_b32 v68, s30, m0"]
    if u % 2 == 0:
        p = AG + ((u+2) & 3)
        ex[0].append(f"v_lshl_add_u64 v[{p}:{p+1}], v[{WN2}:{WN2+1}], 0, v[{LN8}:{LN8+1}]")
    if EARLY: addloads(ex, (1, 3, 5, 6))
    elif loads: ex[1] = [f"ds_read_b128 v[{OFS}:{OFS+3}], v{WS4+kw}"]
    if u == 2:
        ex.setdefault(4, []).append(f"v_lshl_add_u32 v{WE}, v{WE}, 1, v{EAC}")
        if SL: ex.setdefault(7, []).append(f"ds_read_b64 v[{EA}:{EA+1}], v{WE}")
    E(f"s_bitcmp1_b32 s{S_M}, 0\ns_cbranch_scc1 L_{tag}f")
    weave(pk_steps(gc, 0, False) + pk_steps(gc, 1, False), ex)
    E(f"L_{tag}r:")
    def first():
        E(f"L_{tag}f:")
        weave(pk_steps(gc, 0, True) + pk_steps(gc, 1, True), ex)
        E(f"s_branch L_{tag}r")
    emit_to(outofline, first)
    if SL:
        E(f"s_waitcnt vmcnt({4*(DIST-2) + (4 if (EARLY and loads) else 0) + (2 if SL == 2 else 0)})")
        E(m_s(Dn, A1, gn))
    else:
        E(m_e(Dn, (u+1) & 3))
    for x in exps(Dc, 2): E(x)
    if SL == 2: E(f"s_waitcnt vmcnt({4*(DIST-2) + (4 if (EARLY and loads) else 0)})")
    E(m_s(Dn, A2, gn+8))
    for x in exps(Dc, 3): E(x)
    ex = {0: ["s_waitcnt lgkmcnt(0)"], 4: [], 6: [], 7: [f"s_sub_u32 s{S_R}, s{S_R}, 1"], 10: [f"s_lshr_b32 s{S_M}, s{S_M}, 1"], 11: [f"s_bitcmp1_b32 s{S_M}, 0"]}
    if not EARLY: addloads(ex, (1, 3, 5, 9) if DIST == 4 else ((1, 3, 5, 7), (1, 2, 3, 4), (4, 6, 8, 10), (2, 5, 8, 10))[OPT['lpos']])
    elif loads: ex[1] = [f"ds_read_b128 v[{OFS}:{OFS+3}], v{WS4+kw}"]
    if u == 1:
        ex[4].append(f"ds_read_b64 v[{WN2}:{WN2+1}], v{LP} offset:{128+64}")
        ex[6].append(f"ds_read_b32 v{WE}, v{LP+1} offset:128")
    if u == 2 and not SL:
        ex[4].append(f"ds_read_b64 v[{EA}:{EA+1}], v{WE}")
    if u == 3:
        ex[4].append(f"ds_read_b64 v[{WN2}:{WN2+1}], v{LP} offset:{128+64+8}")
        ex.setdefault(8, []).append(f"v_lshl_add_u64 v[{LP}:{LP+1}], v[{LP}:{LP+1}], 0, s[44:45]")
    if wsgrp and loads: ex[6].append(f"ds_read_b128 v[{WS4}:{WS4+3}], v{LP} offset:{wsgrp}")
    weave(pk_steps(gc, 2, False) + pk_steps(gc, 3, False), ex)
    E(f"s_cbranch_scc1 L_{tag}z\nL_{tag}y:")
    def fin():
        E(f"""
L_{tag}z:
        v_rcp_f32 v{P}, v{P}
        v_rcp_f32 v{P+1}, v{P+1}
        v_rcp_f32 v{P+2}, v{P+2}
        v_rcp_f32 v{P+3}, v{P+3}
        v_pk_mul_f32 v[{N}:{N+1}], v[{N}:{N+1}], v[{P}:{P+1}]
        v_pk_mul_f32 v[{N+2}:{N+3}], v[{N+2}:{N+3}], v[{P+2}:{P+3}]
        """)
        for s_ in range(4):
            E(f"v_cvt_f64_f32 v[{F+2*s_}:{F+2*s_+1}], v{N+s_}")
            if s_: E(f"ds_add_f64 v{AG+u}, v[{F+2*s_-2}:{F+2*s_-1}] offset:{128*(s_-1)}")
        E(f"ds_add_f64 v{AG+u}, v[{F+6}:{F+7}] offset:384")
        E(f"s_branch L_{tag}y")
    emit_to(outofline, fin)
    if OPT["prio"] == 2:
        E(f"s_bitcmp1_b32 s{S_IT}, s{S_R}\ns_cbranch_scc1 L_{tag}q\nL_{tag}p:")
        def pr():
            E(f"""
L_{tag}q:
            s_setprio 0
            s_cmp_le_u32 s{S_R}, {OPT["pc"]}
            s_cbranch_scc1 L_{tag}p
            s_setprio 1
            s_cmp_le_u32 s{S_R}, {OPT["pb"]}
            s_cbranch_scc1 L_{tag}p
            s_setprio 2
            s_branch L_{tag}p
            """)
        emit_to(outofline, pr)
    if u == 3 and OPT["prio"] == 1:
        E(f"""
        s_add_u32 s{S_IT}, s{S_IT}, 1
        s_setprio 0
        s_cmp_gt_u32 s{S_IT}, 2
        s_cbranch_scc1 L_{tag}p
        s_setprio 1
        s_cmp_eq_u32 s{S_IT}, 2
        s_cbranch_scc1 L_{tag}p
        s_setprio 2
L_{tag}p:
        """)
    if loads:
        E(f"s_cmp_le_u32 s{S_R}, {DIST}")
        if u < 3: E(f"s_cbranch_scc1 L_T{u+1}")
        else: E("s_cbranch_scc0 L_L0")
    else:
        E(f"s_waitcnt vmcnt(0)\ns_cmp_eq_u32 s{S_R}, 0")
        if u < 3: E("s_cbranch_scc1 L_mdone")
        else: E("s_cbranch_scc0 L_T0")

E(f"""
; @launch grid=(256,1,1) block=({64*NW},1,1) lds={LDS}
.amdgcn_target "amdgcn-amd-amdhsa--gfx950"
.text
.globl {NAME}
.p2align 8
.type {NAME},@function
{NAME}:
""")
if OPT["stamps"] == 1 and OPT["early"] != 1:
    for i in range(NSTAMP): E(f"s_mov_b64 s[{ST0+2*i}:{ST0+2*i+1}], 0")
STAMP(0)
E(f"""
    s_load_dwordx16 s[4:19], s[0:1], 0
    s_load_dwordx2 s[20:21], s[0:1], 72
""")
if OPT["codepf"]:
    E(f"""
    s_getpc_b64 s[28:29]
L_pc:
    v_lshlrev_b32 v3, 7, v0
    v_cmp_gt_u32 vcc, L_codeend-L_pc-64, v3
    s_cbranch_vccz L_nopf
    s_mov_b64 exec, vcc
    global_load_dword v164, v3, s[28:29]
    s_mov_b64 exec, -1
L_nopf:
    """)
E(f"""
    v_lshrrev_b32 v2, 6, v0
    v_and_b32 v1, 63, v0
    v_readfirstlane_b32 s3, v2
    {"s_bfe_u32 s%d, s2, 0x10002" % S_HALF if OPT["hb"] else "s_and_b32 s%d, s2, 1" % S_HALF}
    {"s_and_b32 s30, s2, 3" if OPT["hb"] else "s_bfe_u32 s30, s2, 0x20001"}
    s_lshl_b32 s30, s30, 5
    s_lshr_b32 s31, s2, 3
    s_add_u32 s{S_BUCK}, s30, s31
    s_cmp_ge_u32 s2, 256
    s_cbranch_scc1 L_end
    s_cmp_ge_u32 s{S_BUCK}, {NBUCK}
    s_cbranch_scc1 L_end
    s_lshl_b32 s{S_P}, s{S_BUCK}, 1
    s_add_u32 s{S_P}, s{S_P}, s{S_HALF}
    s_mov_b32 s{S_SAFE}, 0
L_restart:
    s_cmp_ge_u32 s3, 4
    s_cbranch_scc1 L_nosort
    v_mov_b32 v48, 0
    v_mov_b32 v49, 0
    v_mov_b32 v50, 0
    v_mov_b32 v51, 0
    v_lshlrev_b32 v10, 4, v1
    ds_write_b128 v10, v[48:51] offset:{L_SCNT}
    s_mul_i32 s30, s{S_P}, {CHUNK*4}
    v_lshl_add_u32 v3, v0, 4, s30
    s_add_u32 s30, s30, 4096
    v_lshl_add_u32 v18, v0, 2, s30
    v_lshlrev_b32 v10, 1, v3
    v_lshlrev_b32 v11, 1, v18
    v_mov_b32 v17, {WS_TAG}
    s_waitcnt lgkmcnt(0)
    global_load_dwordx4 v[4:7], v3, s[10:11]{NTE}
    global_load_dword v8, v18, s[10:11]{NTE}
    global_load_dword v43, v17, s[20:21]
    s_barrier                               ; B0
    s_barrier                               ; B0b
    s_branch L_sort
L_nosort:
    s_and_b32 s32, s3, 3                    ; tau
    s_lshr_b32 s33, s3, 3
    v_lshrrev_b32 v2, 4, v1                 ; g
    v_and_b32 v4, 15, v1
    s_lshl_b32 s30, s32, 2
    v_add_u32 v6, s30, v2                   ; row&15
    v_xor_b32 v7, v4, v6
    v_lshlrev_b32 v7, 4, v7
    v_lshl_add_u32 v7, v6, 8, v7
    s_mul_i32 s73, s{S_BUCK}, {NB*256}
    s_mul_i32 s31, s33, {3*4096}
    s_add_u32 s30, s73, s31
    v_add_u32 v7, s30, v7
    v_add_u32 v8, 0x1000, v7
    v_add_u32 v9, 0x2000, v7
    s_lshl_b32 s30, s32, 10
    s_add_u32 s31, s31, s30
    s_add_u32 m0, s31, {L_X}
    v_subrev_u32 v30, 256, v0               ; t = 0..511
    v_lshlrev_b32 v31, 4, v30
    v_mov_b32 v36, 0
    v_mov_b32 v37, 0
    v_mov_b32 v38, 0
    v_mov_b32 v39, 0
    v_add_u32 v40, {L_EA}, v31
    ds_write_b128 v40, v[36:39]
    ds_write_b128 v40, v[36:39] offset:8192
    s_waitcnt lgkmcnt(0)
    s_barrier                               ; B0
    global_load_lds_dwordx4 v7, s[4:5]{NTX}
    s_add_u32 m0, m0, 0x1000
    s_cmp_lg_u32 s33, 0
    global_load_lds_dwordx4 v8, s[4:5]{NTX}
    s_cbranch_scc1 L_x2
    s_add_u32 m0, m0, 0x1000
    s_nop 0
    global_load_lds_dwordx4 v9, s[4:5]{NTX}
L_x2:
    s_barrier
    v_lshrrev_b32 v5, 3, v1
    v_and_b32 v3, 1, v2
    s_and_b32 s30, s3, 1
    s_lshl_b32 s30, s30, 1
    v_or_b32 v3, s30, v3                    ; sigma
    v_lshlrev_b32 v3, 1, v3
    v_and_b32 v20, 7, v1
    v_xor_b32 v3, v3, v20
    v_lshlrev_b32 v3, 4, v3
    v_lshl_add_u32 v10, v5, 8, v3
    s_sub_u32 s28, s3, 4
    s_lshl_b32 s30, s28, 11
    s_lshl_b32 s31, s{S_HALF}, 7
    s_add_u32 s30, s30, s31
    v_add_u32 v10, s30, v10
    v_add_u32 v11, 0x4000, v10
    s_lshl_b32 s28, s28, 10
    s_add_u32 s34, s16, {128*256}
    s_addc_u32 s35, s17, 0
    s_cmp_lg_u32 s3, 11
    s_cbranch_scc1 L_noc
    v_and_b32 v5, 3, v5
    v_lshlrev_b32 v20, 4, v20
    v_lshl_add_u32 v5, v5, 8, v20
    s_add_u32 s31, s31, {256*256}
    s_mov_b32 m0, {L_C}
    v_add_u32 v5, s31, v5
    global_load_lds_dwordx4 v5, s[16:17]
L_noc:
    s_add_u32 m0, s28, {L_WBV}
""")
for ti, base in enumerate((34, 14)):
    for n in range(2):
        E(f"s_nop 0\nglobal_load_lds_dwordx4 v{10+n}, s[{base}:{base+1}]")
        if not (ti == 1 and n == 1):
            E(f"s_add_u32 m0, m0, 0x2000")
if OPT["wgate"]:
    E(f"""
    v_mov_b32 v7, 0x1000000
    s_mov_b64 exec, 1
    ds_add_u32 v36, v7 offset:{L_CTR}
    s_mov_b64 exec, -1
    """)
STAMP(1)
E(f"""
    v_mov_b32 v32, {NULL_SRC}
    v_mov_b32 v33, v32
    v_mov_b32 v34, v32
    v_mov_b32 v35, v32
""")
def cover(lo, n): return list(range(lo, n - 8192, 8192)) + [n - 8192]
for o in cover(16384, L_EAEND - L_EA): E(f"ds_write_b128 v40, v[36:39] offset:{o}")
for o in cover(0, SRCB): E(f"ds_write_b128 v31, v[32:35] offset:{L_SRC + o}")
E(f"""
    v_and_b32 v32, 3, v30           ; quarter
    v_bfe_u32 v33, v30, 3, 3
    v_lshrrev_b32 v34, 5, v30
    s_and_b32 s30, s3, 3
    s_add_u32 s30, s30, 16
    s_cmp_ge_u32 s3, 8
    s_cselect_b32 s31, 7, 3
    s_cselect_b32 s29, 6, 12
    s_cselect_b64 vcc, -1, 0
    v_and_b32 v33, s31, v33
    v_mov_b32 v35, s30
    v_cndmask_b32 v34, v34, v35, vcc
    v_lshl_add_u32 v32, v34, 2, v32
    v_bfe_u32 v34, v30, 2, 1
    v_mul_u32_u24 v35, {NSTR - SSTR}, v34
    v_mul_u32_u24 v41, {L_NODE - L_SRC}, v34
    v_mul_u32_u24 v42, {L_SRC + 80*SSTR - L_DUM}, v34
    v_lshlrev_b32 v43, 4, v34
    v_add_u32 v35, {SSTR}, v35
    v_add_u32 v41, {L_SRC}, v41
    v_sub_u32 v42, {L_SRC + 80*SSTR}, v42
    v_sub_u32 v43, 16, v43
    v_lshlrev_b32 v33, 2, v33
    v_mad_u32_u24 v41, v32, v35, v41
    v_mad_u32_u24 v41, v33, v43, v41
    v_lshlrev_b32 v35, 5, v35
    v_mul_u32_u24 v34, 6, v43
    v_sub_u32 v35, v35, v34
    v_add_u32 v34, 2, v33
    v_cmp_gt_u32 s[48:49], 6, v33
    v_cmp_gt_u32 s[50:51], 6, v34
    v_cmp_gt_u32 s[52:53], s29, v33
    v_cmp_gt_u32 s[54:55], s29, v34
    v_cndmask_b32 v44, v35, 0, s[48:49]
    v_cndmask_b32 v46, v35, 0, s[50:51]
    v_add_u32 v44, v41, v44
    v_lshl_add_u32 v46, v43, 1, v46
    v_add_u32 v46, v41, v46
    v_add_u32 v45, v44, v43
    v_add_u32 v47, v46, v43
    v_cndmask_b32 v44, v42, v44, s[52:53]
    v_cndmask_b32 v45, v42, v45, s[52:53]
    v_cndmask_b32 v46, v42, v46, s[54:55]
    v_cndmask_b32 v47, v42, v47, s[54:55]
    ds_write_b128 v31, v[44:47] offset:{L_LIST}
    s_cmp_ge_u32 s3, 6
    s_cbranch_scc1 L_pf3
    v_mul_u32_u24 v42, {SSTR}, v30
    v_add_u32 v42, {L_SRC}, v42
    v_lshlrev_b32 v41, 2, v30
    ds_write_b32 v41, v42 offset:{L_CNT}
L_pf3:
    v_bfe_u32 v3, v1, 2, 2                  ; r
    v_lshl_add_u32 v5, v2, 3, v3            ; 8g + r
    v_lshrrev_b32 v3, 1, v3
    v_and_b32 v6, 1, v2
    v_lshl_or_b32 v3, v6, 1, v3             ; sigma
    v_xor_b32 v3, s32, v3
    v_lshlrev_b32 v3, 5, v3
    v_lshl_add_u32 v10, v5, 7, v3
    v_and_b32 v3, 3, v1
    v_lshl_add_u32 v10, v3, 3, v10
    s_mul_i32 s31, s33, {L_WAU - L_WBV}
    s_add_u32 s31, s31, {L_WBV}
    v_add_u32 v10, s31, v10
    v_xor_b32 v3, v2, v4
    v_lshlrev_b32 v3, 4, v3
    v_lshl_add_u32 v12, v4, 8, v3
    v_add_u32 v12, {L_X}, v12
    v_xor_b32 v13, 64, v12
    v_xor_b32 v14, 0x80, v12
    v_xor_b32 v15, 0xc0, v12
    s_mul_i32 s30, s{S_HALF}, {G_HALF}
    s_add_u32 s30, s30, s73
    s_lshl_b32 s31, s32, 6
    s_add_u32 s30, s30, s31
    v_lshlrev_b32 v11, 10, v2
    v_lshl_add_u32 v11, v4, 2, v11
    v_add_u32 v11, s30, v11
    s_lshl_b32 s31, s32, 5
    s_add_u32 s31, s31, {L_NODE}
    v_mul_u32_u24 v16, {NSTR}, v4
    v_lshl_add_u32 v16, v2, 3, v16
    v_add_u32 v16, s31, v16
    s_mov_b32 s40, {f32(-LOG2E)}
    s_mov_b32 s42, {f32(2.0**32)}
    s_mov_b32 s44, 0x07060100
    s_mov_b32 s45, 0x07060302
    s_mov_b32 s46, 0x3f80
    v_mov_b32 v17, {f32(2.0**-100)}
    v_mov_b32 v19, 1
    v_mov_b32 v18, 0
""")
get_tag("g", 160)
E(f"""
    s_waitcnt vmcnt(0)
    s_mov_b64 exec, 1
    ds_add_u32 v18, v19 offset:{L_CTR}
    s_mov_b64 exec, -1
""")
STAMP(2)
lds_wait(L_CTR, 0xff, 8, "g1")
STAMP(3)
NP = 8
RA = 72; RB = RA + 4*NP; RAD = RB + 4*NP
J3N, J12, J3N2, CELL, ROWA, FOUR, L0M, ACC, ENT, CAD = 156, 157, 158, 159, 160, 161, 162, 163, 164, 166
def rec_setup():
    E(f"""
    v_and_b32 v3, 15, v1                    ; j
    v_lshrrev_b32 v2, 4, v1
    v_lshl_add_u32 v{CELL}, v2, 3, v3
    s_lshl_b32 s30, s29, 5
    v_add_u32 v{CELL}, s30, v{CELL}
    s_lshl_b32 s30, s{S_BUCK}, 3
    s_add_u32 s30, s30, {WS_ROW}
    v_lshl_add_u32 v{ROWA}, v{CELL}, 10, s30
    v_cmp_gt_u32 s[66:67], {NP}, v3
    v_cmp_gt_u32 vcc, {NCHUNK}, v{CELL}
    v_mov_b32 v{ENT}, 0
    s_and_b64 s[66:67], s[66:67], vcc
    s_mov_b64 exec, s[66:67]
    global_load_dwordx2 v[{ENT}:{ENT+1}], v{ROWA}, s[20:21] sc1
    s_mov_b64 exec, -1
    v_mul_u32_u24 v{CELL}, {SORTB//4}, v{CELL}
    v_add_u32 v{CELL}, {WS_REC//4}, v{CELL}
    v_mul_u32_u24 v{J12}, 12, v3
    v_mul_u32_u24 v{J3N}, 3, v3
    v_not_b32 v{J3N}, v{J3N}
    v_subrev_u32 v{J3N2}, 48, v{J3N}
    v_subrev_u32 v{L0M}, 1, v3
    v_ashrrev_i32 v{L0M}, 31, v{L0M}
    v_mov_b32 v{FOUR}, 4
    """)
WF = 20; XF = 52; AC = 132
def wreads(ks):
    for t in range(2):
        for rd in range(2):
            r = WF + 16*t + 4*ks + 2*rd
            E(f"ds_read_b64_tr_b16 v[{r}:{r+1}], v10 offset:{t*16384 + ks*4096 + rd*512}")
def xread(rt, ks):
    r = XF + 16*rt + 4*ks
    return f"ds_read_b128 v[{r}:{r+3}], v{12+ks} offset:{rt*4096}"
def mf(rt, ks, transposed):
    for t in range(2):
        a = XF + 16*rt + 4*ks; w = WF + 16*t + 4*ks; d = AC + 8*(rt % 3) + 4*t
        c = "0" if ks == 0 else f"v[{d}:{d+3}]"
        if transposed: a, w = w, a
        E(f"v_mfma_f32_16x16x32_bf16 v[{d}:{d+3}], v[{a}:{a+3}], v[{w}:{w+3}], {c}")
def gemm(transposed, finish, before_first):
    for ks in range(3):
        E(xread(0, ks)); wreads(ks)
    E("s_waitcnt lgkmcnt(10)"); mf(0, 0, transposed)
    E(xread(0, 3)); wreads(3)
    E("s_waitcnt lgkmcnt(10)"); mf(0, 1, transposed)
    for ks in range(4): E(xread(1, ks))
    E("s_waitcnt lgkmcnt(9)"); mf(0, 2, transposed)
    for ks in range(4): E(xread(2, ks))
    E("s_waitcnt lgkmcnt(8)"); mf(0, 3, transposed)
    for ks in range(4): E(xread(3, ks))
    E("s_waitcnt lgkmcnt(8)")
    for ks in range(4):
        mf(1, ks, transposed); E(xread(4, ks))
    E(f"""
    s_mov_b64 exec, 1
    ds_add_u32 v18, v19 offset:{L_RD}
    s_mov_b64 exec, -1
    """)
    before_first()
    finish(0)
    E("s_waitcnt lgkmcnt(0)")
    for rt in range(2, 5):
        for ks in range(4): mf(rt, ks, transposed)
        finish(rt-1)
    finish(4)
def pack(rt):
    b = AC + 8*(rt % 3); h = b + 4
    for r in range(4): E(f"v_mul_f32 v{b+r}, s40, v{b+r}")
    for r in range(4): E(f"v_fma_f32 v{h+r}, v{h+r}, s42, v17")
    E(f"""
    v_cvt_pk_bf16_f32 v4, v{b}, v{b+1}
    v_cvt_pk_bf16_f32 v5, v{b+2}, v{b+3}
    v_xor_b32 v2, 0x80008000, v4
    v_xor_b32 v3, 0x80008000, v5
    v_sub_u32_sdwa v{h}, v{h}, sext(v2) dst_sel:DWORD dst_unused:UNUSED_PAD src0_sel:DWORD src1_sel:WORD_0
    v_sub_u32_sdwa v{h+1}, v{h+1}, sext(v2) dst_sel:DWORD dst_unused:UNUSED_PAD src0_sel:DWORD src1_sel:WORD_1
    v_sub_u32_sdwa v{h+2}, v{h+2}, sext(v3) dst_sel:DWORD dst_unused:UNUSED_PAD src0_sel:DWORD src1_sel:WORD_0
    v_sub_u32_sdwa v{h+3}, v{h+3}, sext(v3) dst_sel:DWORD dst_unused:UNUSED_PAD src0_sel:DWORD src1_sel:WORD_1
    """)
    w = (OPT["gp"] >> (4*(4-rt))) & 15 if OPT["gp"] else OPT["gpace"]
    if 0 <= w < 4*rt: E(f"s_waitcnt vmcnt({w})")
    if OPT["ghold"] == rt + 1:
        E("v_mov_b32 v6, v2\nv_mov_b32 v7, v3"); lds_wait(L_CTR, 0xff00, 0x400, "gh", sleep=1); E("v_mov_b32 v2, v6\nv_mov_b32 v3, v7")
    for r in range(4):
        E(f"v_perm_b32 v{h+r}, v{h+r}, v{4 + (r>>1)}, s{44 + (r&1)}")
        if OPT["gwin"] >= 0: E(f"s_waitcnt vmcnt({OPT['gwin']})")
        E(f"global_store_dword v11, v{h+r}, s[20:21] offset:{256*r} sc1")
    if rt < 4: E("v_add_u32 v11, 0x1000, v11")
def fin(rt):
    a = AC + 8*(rt % 3); u = a + 4
    for r in range(4): E(f"v_mul_f32 v{a+r}, s40, v{a+r}")
    for r in range(4): E(f"v_mul_f32 v{u+r}, s42, v{u+r}")
    E(f"""
    v_cvt_pk_bf16_f32 v{a}, v{a}, v{a+1}
    v_cvt_pk_bf16_f32 v{a+1}, v{a+2}, v{a+3}
    v_cvt_f64_f32 v[2:3], v{u}
    v_cvt_f64_f32 v[4:5], v{u+1}
    v_cvt_f64_f32 v[6:7], v{u+2}
    v_cvt_f64_f32 v[8:9], v{u+3}
    ds_write_b64 v16, v[{a}:{a+1}] offset:512
    ds_write2_b64 v16, v[2:3], v[4:5] offset0:0 offset1:16
    ds_write2_b64 v16, v[6:7], v[8:9] offset0:32 offset1:48
    """)
    if rt < 4: E(f"v_add_u32 v16, {16*NSTR}, v16")
E(f"""
    s_cmp_lg_u32 s33, 0
    s_cbranch_scc1 L_gemm2
    s_cmp_lg_u32 s{S_SAFE}, 0
    s_cbranch_scc1 L_nog1
    s_setprio 2
""")
gemm(False, pack, lambda: lds_wait(L_CTR, {1: 0x80000, 2: 0xc0000}[OPT["hold"]], 0, "hold", sleep=1, ne=True) if OPT["hold"] else None)
E("s_setprio 0")
if OPT["gate"]:
    E(f"""
    s_mov_b64 exec, 1
    ds_add_u32 v18, v19 offset:{L_GST}
    s_mov_b64 exec, -1
    """)
STAMP(4)
main_consts()
E(f"""
    s_lshl_b32 s30, s{S_P}, 7
    s_add_u32 s30, s30, {WS_FL2}
    v_mov_b32 v60, s30
    v_mov_b32 v62, s{S_TAG}
    v_mov_b32 v63, s{S_TAG+1}
    v_mov_b32 v2, 0
    v_mov_b32 v3, 1
    s_lshl_b32 s30, s32, 13
    s_lshl_b32 s31, s{S_HALF}, 7
    s_add_u32 s30, s30, s31
    s_add_u32 s30, s30, {WS_FL2}
    v_lshl_add_u32 v64, v1, 8, s30
    s_mul_i32 s30, s32, {2560*256}
    s_lshr_b32 s31, s2, 3
    s_mul_i32 s31, s31, {160*128}
    s_add_u32 s30, s30, s31
    v_lshl_add_u32 v65, v1, 7, s30
    v_min_u32 v65, {G_HALF - 128}, v65
    s_mul_i32 s30, s{S_HALF}, {G_HALF}
    v_add_u32 v65, s30, v65
    s_mov_b64 exec, 1
    s_waitcnt vmcnt(0)
    ds_add_rtn_u32 v61, v2, v3 offset:{L_DONE2}
    s_waitcnt lgkmcnt(0)
    v_readfirstlane_b32 s30, v61
    s_cmp_lg_u32 s30, 3
    s_cbranch_scc1 L_nofl
    global_store_dwordx2 v60, v[62:63], s[20:21] sc1
    ds_add_u32 v2, v3 offset:{L_DONE2}
L_nofl:
""")
STAMP(5)
if OPT["p2gate"]:
    E("s_mov_b64 exec, -1")
    lds_wait(L_CTR, 0xff0000, 0x080000, "pg", sleep=1)
    E("s_mov_b32 exec_hi, 0")
if OPT["p2wait"]: E(f"s_sleep {OPT['p2wait']}")
STAMP(6)
def gready():
    if OPT["gpf"]:
        E(f"""
        {"s_bfm_b64 exec, %d, 0" % OPT["gpf"] if OPT["gpf"] < 64 else "s_mov_b64 exec, -1"}
        global_load_dword v35, v65, s[20:21] sc1
        """)
    E(f"""
    s_mov_b64 exec, 1
    v_mov_b32 v2, 0
    v_mov_b32 v3, 1
    ds_add_u32 v2, v3 offset:{L_GOK}
    """)
E(f"""
    s_cmp_eq_u32 s32, 3
    s_cselect_b32 exec_lo, 0x1fffffff, -1
    {"" if OPT["p1st"] else "s_mov_b64 s[66:67], exec"}
    {"" if OPT["p1st"] else "s_branch L_p2n"}
    global_load_dwordx2 v[66:67], v64, s[20:21] sc1
    s_waitcnt vmcnt(0)
    v_cmp_ne_u64 s[66:67], s[{S_TAG}:{S_TAG+1}], v[66:67]
    s_cmp_lg_u64 s[66:67], 0
    s_cbranch_scc1 L_p2n
""")
gready()
E("L_p2n:\ns_mov_b64 exec, -1")
STAMP(7)
E(f"""
    s_branch L_b4
L_nog1:
    s_mov_b64 exec, 1
    ds_add_u32 v18, v19 offset:{L_RD}
    s_mov_b64 exec, -1
    s_branch L_rec
L_gemm2:
""")
E(f"""
    v_lshrrev_b32 v5, 3, v1
    v_bfe_u32 v3, v1, 4, 1
    v_lshlrev_b32 v3, 1, v3
    v_and_b32 v4, 7, v1
    v_xor_b32 v3, v3, v4
    v_lshlrev_b32 v3, 4, v3
    v_lshl_add_u32 v6, v5, 8, v3
    s_lshl_b32 s30, s{S_HALF}, 7
    s_and_b32 s31, s3, 1
    s_lshl_b32 s31, s31, 14
    s_add_u32 s30, s30, s31
    v_add_u32 v6, s30, v6
    v_xor_b32 v7, 64, v6
    v_add_u32 v8, 2048, v6
    v_add_u32 v9, 3072, v7
    v_add_u32 v7, 1024, v7
    s_lshl_b32 s30, s32, 13
    s_add_u32 m0, s30, {L_WAU}
    s_cmp_lt_u32 s32, 2
    s_cselect_b32 s34, s16, s12
    s_cselect_b32 s35, s17, s13
    global_load_lds_dwordx4 v6, s[34:35]
    global_load_lds_dwordx4 v7, s[34:35] offset:1024
    global_load_lds_dwordx4 v8, s[34:35] offset:2048
    global_load_lds_dwordx4 v9, s[34:35] offset:3072
    s_add_u32 m0, m0, 4096
    s_add_u32 s34, s34, 8192
    s_addc_u32 s35, s35, 0
    global_load_lds_dwordx4 v6, s[34:35]
    global_load_lds_dwordx4 v7, s[34:35] offset:1024
    global_load_lds_dwordx4 v8, s[34:35] offset:2048
    global_load_lds_dwordx4 v9, s[34:35] offset:3072
""")
for rt in range(5):
    for ks in range(4): E(xread(rt, ks))
E(f"""
    s_mov_b64 exec, 1
    ds_add_u32 v18, v19 offset:{L_RD}
    s_mov_b64 exec, -1
""")
E(f"""
    s_mov_b64 exec, 1
    s_waitcnt vmcnt(0)
    ds_add_u32 v18, v19 offset:{L_RD}
    s_mov_b64 exec, -1
    s_sub_u32 s29, s3, 4
""")
rec_setup()
lds_wait(L_RD, 0xff, 12, "rd")
for ks in range(4): wreads(ks)
for ks in range(4):
    E(f"s_waitcnt lgkmcnt({12 - 4*ks})"); mf(0, ks, True)
for rt in range(1, 5):
    for ks in range(4): mf(rt, ks, True)
    fin(rt-1)
fin(4)
STAMP(4)
E(f"""
    s_branch L_rec
L_sort:
""")
STAMP(1)
E(f"""
    s_mov_b32 s40, {f32(-LOG2E)}
    s_mov_b32 s46, 0x3f80
    s_cmp_lg_u32 s{S_SAFE}, 0
    s_cbranch_scc1 L_sortskip
    v_mov_b32 v21, 1
    v_mov_b32 v20, 3
    s_mov_b32 s31, 52429
    s_movk_i32 s32, -20
    v_lshlrev_b32 v9, 3, v1
    v_lshlrev_b32 v33, 4, v0
    s_mul_i32 s30, s{S_P}, {SORTB}
    s_add_u32 s30, s30, {WS_REC + 4096}
    v_add_u32 v32, s30, v33
    v_add_u32 v34, 8192, v32
    s_lshl_b32 s30, s{S_P}, 10
    s_add_u32 s30, s30, {WS_ROW}
    v_lshl_add_u32 v42, v1, 4, s30
    s_mov_b32 s34, {POLL_MAX}
    s_setprio 3
    s_waitcnt vmcnt(1)
""")
STAMP(2)
FSTAMP(1)
for i in range(5):
    E(f"""
    v_mul_u32_u24 v{22+i}, s31, v{4+i}
    v_lshrrev_b32 v{22+i}, 22, v{22+i}
    v_lshlrev_b32 v{22+i}, 2, v{22+i}        ; bucket*4
    ds_add_rtn_u32 v{27+i}, v{22+i}, v20 offset:{L_SCNT}
    """)
E(f"""
    s_mov_b64 exec, 1
    s_cmp_lg_u32 s3, 0
    s_cbranch_scc1 L_notag
    s_waitcnt vmcnt(0)
    ds_write_b32 v48, v43 offset:{L_SCNT + 125*4}
L_notag:
    ds_add_u32 v48, v21 offset:{L_SCNT + 127*4}
    s_mov_b64 exec, -1
""")
if OPT["ewhen"] == 1: E(f"""
    global_load_dwordx4 v[12:15], v3, s[8:9]{NTE}
    global_load_dword v16, v18, s[8:9]{NTE}
    global_load_dwordx4 v[52:55], v10, s[6:7]{NTE}
    global_load_dwordx4 v[56:59], v10, s[6:7] offset:16{NTE}
    global_load_dwordx2 v[60:61], v11, s[6:7]{NTE}
""")
E(f"""
L_s1:
    ds_read_b32 v38, v48 offset:{L_SCNT + 127*4}
    ds_read_b64 v[36:37], v9 offset:{L_SCNT}
    s_sub_u32 s34, s34, 1
    s_cbranch_scc1 L_s1d
    s_waitcnt lgkmcnt(0)
    v_readfirstlane_b32 s30, v38
    s_cmp_lg_u32 s30, 4
    s_cbranch_scc1 L_s1
L_s1d:
""")
FSTAMP(2)
E(f"""
    v_add3_u32 v39, v36, v37, 2
    v_add3_u32 v38, v36, v37, 2
    v_readlane_b32 s{S_TAGRAW}, v37, 62
""")
fill = []
for i in range(5):
    fill += [f"v_mad_i32_i24 v{4+i}, v{22+i}, s32, v{4+i}", f"v_lshlrev_b32 v{4+i}, 24, v{4+i}"]
for k, m in enumerate(SCAN):
    E(f"v_add_u32_dpp v39, v39, v39 {m}")
    for x in fill[2*k:2*k+2]: E(x)
E(f"""
    v_sub_u32 v40, v39, v38
    v_add3_u32 v41, v40, v36, 1
    s_mov_b32 s30, {L_SORT}
    v_lshl_add_u32 v38, v40, 2, s30
    v_lshl_add_u32 v39, v41, 2, s30
    ds_write_b64 v9, v[38:39] offset:{L_SOFF}
""")
for i in range(5):
    E(f"ds_read_b32 v{22+i}, v{22+i} offset:{L_SOFF}")
finish_tag()
E(f"""
    s_cmp_lg_u32 s3, 0
    s_cbranch_scc1 L_nopub
    s_and_b32 s35, s{S_TAG+1}, 0xff000000
    v_mov_b32 v45, s{S_TAG}
    v_mov_b32 v47, s{S_TAG}
    v_lshl_or_b32 v44, v36, 12, v40
    v_lshl_or_b32 v46, v37, 12, v41
    v_or_b32 v44, s35, v44
    v_or_b32 v46, s35, v46
    global_store_dwordx4 v42, v[44:47], s[20:21] sc1
    {"s_waitcnt vmcnt(1)" if OPT["ewhen"] == 1 else ""}
    s_branch {"L_pub" if OPT["ewhen"] == 1 else "L_nochk"}
L_nopub:
    s_cmp_lg_u32 s3, 1
    s_cbranch_scc1 L_nochk
    v_mov_b32 v44, s{S_TAG+1}
    s_mov_b32 exec_hi, 0x7fffffff
    ds_add_u32 v38, v44
    ds_add_u32 v39, v44
    s_mov_b32 exec_hi, -1
L_nochk:
""")
if OPT["ewhen"] == 2: E(f"""
    global_load_dwordx4 v[12:15], v3, s[8:9]{NTE}
    global_load_dword v16, v18, s[8:9]{NTE}
    global_load_dwordx4 v[52:55], v10, s[6:7]{NTE}
    global_load_dwordx4 v[56:59], v10, s[6:7] offset:16{NTE}
    global_load_dwordx2 v[60:61], v11, s[6:7]{NTE}
""")
E(f"""
    s_waitcnt vmcnt(0)
L_pub:
""")
STAMP(4)
FSTAMP(3)
for i in range(5): E(f"v_lshl_or_b32 v{4+i}, v{12+i}, 8, v{4+i}")
E("s_waitcnt lgkmcnt(0)")
for i in range(5):
    E(f"""
    v_lshl_add_u32 v{27+i}, v{27+i}, 2, v{22+i}
    v_add3_u32 v{12+i}, v{52+2*i}, v{53+2*i}, v{4+i}
    ds_write2_b32 v{27+i}, v{52+2*i}, v{53+2*i} offset0:2 offset1:3
    ds_write_b32 v{27+i}, v{4+i} offset:4
    ds_sub_u32 v{22+i}, v{12+i}
    """)
E(f"""
    s_mov_b64 exec, 1
    ds_add_u32 v48, v21 offset:{L_SCNT + 126*4}
    s_mov_b64 exec, -1
""")
FSTAMP(4)
E(f"""
    s_mov_b32 s34, {POLL_MAX}
L_s2:
    ds_read_b32 v38, v48 offset:{L_SCNT + 126*4}
    {f"ds_read_b32 v39, v48 offset:{L_CTR}" if OPT["wgate"] else ""}
    ds_read_b128 v[72:75], v33 offset:{L_SORT}
    s_sub_u32 s34, s34, 1
    s_cbranch_scc1 L_s2d
    s_waitcnt lgkmcnt(1)
    v_readfirstlane_b32 s30, v38
""")
if OPT["wgate"]:
    E(f"""
    v_readfirstlane_b32 s31, v39
    s_lshr_b32 s31, s31, 24
    s_add_u32 s30, s30, s31
    """)
E(f"""
    s_cmp_lg_u32 s30, {12 if OPT["wgate"] else 4}
    s_cbranch_scc1 L_s2
L_s2d:
""")
FSTAMP(5)
E(f"""
    ds_read_b128 v[76:79], v33 offset:{L_SORT + 4096}
    ds_read_b128 v[80:83], v33 offset:{L_SORT + 8192}
    ds_read_b128 v[84:87], v33 offset:{L_SORT + 12288}
    s_waitcnt lgkmcnt(3)
    global_store_dwordx4 v32, v[72:75], s[20:21] offset:-4096 sc1
    s_waitcnt lgkmcnt(2)
    global_store_dwordx4 v32, v[76:79], s[20:21] sc1
    s_waitcnt lgkmcnt(1){f" vmcnt({OPT['rpace']})" if OPT['rpace'] >= 0 else ""}
    global_store_dwordx4 v34, v[80:83], s[20:21] offset:-4096 sc1
    s_cmp_eq_u32 s3, 3
    s_cselect_b32 exec_hi, 0, -1
    s_waitcnt lgkmcnt(0){f" vmcnt({OPT['rpace']})" if OPT['rpace'] >= 0 else ""}
    global_store_dwordx4 v34, v[84:87], s[20:21] sc1
    s_mov_b32 exec_hi, -1
""")
FSTAMP(6)
for k in range(4): E(f"ds_write_b128 v33, v[48:51] offset:{L_SORT + 4096*k}")
STAMP(3)
FSTAMP(7)
E(f"""
    s_branch L_sortdone
L_sortskip:
    s_waitcnt vmcnt(0)
L_sortdone:
    s_mov_b32 s29, s3
""")
rec_setup()
E(f"""
L_rec:
""")
lds_wait(L_CTR, 0xff, 8, "r0")
main_consts()
STAMP(5)
E(f"""
    s_cmp_ge_u32 s3, 4
    s_cbranch_scc1 L_nod2
    v_mov_b32 v2, 0
    v_mov_b32 v3, 0x100
    s_mov_b64 exec, 1
    s_waitcnt vmcnt(0)
    ds_add_u32 v2, v3 offset:{L_CTR}
    s_mov_b64 exec, -1
L_nod2:
    s_cmp_lg_u32 s{S_SAFE}, 0
    s_cbranch_scc1 L_recskip
    s_lshr_b32 s35, s{S_TAG+1}, 24
    s_mov_b64 exec, s[66:67]
    s_mov_b32 s34, {POLL_MAX}
    s_branch L_p1c
L_p1:
    global_load_dwordx2 v[{ENT}:{ENT+1}], v{ROWA}, s[20:21] sc1
L_p1c:
    s_sub_u32 s34, s34, 1
    s_cbranch_scc1 L_toobig
    s_waitcnt vmcnt(0)
    v_cmp_ne_u32 vcc, s{S_TAG}, v{ENT+1}
    v_cmp_ne_u32_sdwa s[48:49], v{ENT}, s35 src0_sel:BYTE_3 src1_sel:DWORD
    s_or_b64 exec, vcc, s[48:49]
    s_cbranch_scc1 L_p1
    s_mov_b64 exec, -1
""")
STAMP(6)
if OPT["cnt"]: E(f"s_sub_u32 s{ST0+2}, {POLL_MAX+1}, s34\ns_mov_b32 s34, {POLL_MAX}")
E(f"""
    v_and_b32 v{CAD}, 0xfff, v{ENT}
    v_bfe_u32 v{ENT}, v{ENT}, 12, 12            ; 3*count
    v_add_lshl_u32 v{CAD}, v{CAD}, v{CELL}, 2
    v_cmp_ne_u32 vcc, 0, v{ENT}
    s_sub_u32 s30, 0, s{S_TAG+1}
    v_mov_b32 v2, s30
    v_cndmask_b32 v{ENT+1}, 0, v2, vcc
    v_cmp_lt_u32 vcc, 96, v{ENT}
    v_cmp_lt_u32 s[68:69], 48, v{ENT}
    s_cbranch_vccnz L_toobig
""")
for p in range(NP):
    E(f"""
    v_add_co_u32_dpp v2, vcc, v{ENT}, v{J3N} row_newbcast:{p} row_mask:0xf bank_mask:0xf
    v_add_u32_dpp v{RAD+p}, v{CAD}, v{J12} row_newbcast:{p} row_mask:0xf bank_mask:0xf
    s_mov_b64 s[{48+2*p}:{49+2*p}], vcc
    """)
lds_wait(L_CTR, 0xff00, 0x400, "r1")
if OPT["gate"]: lds_wait(L_GST, 0xff, 4, "gt")
if OPT["gate2"]:
    E("s_cmp_lt_u32 s3, 4\ns_cbranch_scc1 L_wd_g2")
    lds_wait(L_DONE2, 0xff, 5, "g2")
E(f"""
    s_or_b32 s68, s68, s69
    s_lshr_b32 s69, s68, 16
    s_or_b32 s68, s68, s69
""")
def mask2(p): return f"v_add_co_u32_dpp v2, vcc, v{ENT}, v{J3N2} row_newbcast:{p} row_mask:0xf bank_mask:0xf"
def loads(ps, lab):
    E(f"s_and_b32 s30, s68, {sum(1 << p for p in ps)}\ns_cbranch_scc0 L_nx{lab}")
    for p in ps:
        r = RB + 4*p
        E(f"""
        s_bitcmp1_b32 s68, {p}
        s_cbranch_scc0 L_nx{lab}{p}
        {mask2(p)}
        s_mov_b64 exec, vcc
        global_load_dwordx4 v[{r}:{r+3}], v{RAD+p}, s[20:21] offset:192 sc1
        s_mov_b64 exec, -1
L_nx{lab}{p}:
        """)
    E(f"L_nx{lab}:")
    for p in ps:
        r = RA + 4*p
        E(f"""
        s_mov_b64 exec, s[{48+2*p}:{49+2*p}]
        global_load_dwordx4 v[{r}:{r+3}], v{RAD+p}, s[20:21]{SC1 if (OPT["rsc1"] or lab != "m") else ""}
        """)
    E("s_mov_b64 exec, -1")
loads(range(NP), "m")
def issued():
    if OPT["p2gate"]:
        E(f"""
        v_mov_b32 v2, 0
        v_mov_b32 v3, 0x10000
        s_mov_b64 exec, 1
        ds_add_u32 v2, v3 offset:{L_CTR}
        s_mov_b64 exec, -1
        """)
if not OPT["sig"]: issued()
STAMP(7)
def rank(r, m):
    E(f"""
    s_mov_b64 exec, {m}
    v_mul_u32_u24_sdwa v{r}, v{FOUR}, v{r+1} dst_sel:DWORD dst_unused:UNUSED_PAD src0_sel:DWORD src1_sel:BYTE_3
    v_and_b32 v{r+1}, {OPT['srcmask']}, v{r+1}
    ds_add_rtn_u32 v{r}, v{r}, v{FOUR} offset:{L_CNT}
    """)
def put(r, m):
    E(f"""
    s_mov_b64 exec, {m}
    v_lshlrev_b32 v2, 1, v{r}
    ds_write_b32 v{r}, v{r+1}
    ds_write_b64 v2, v[{r+2}:{r+3}] offset:{L_EA - 2*L_SRC}
    """)
retries = []
pending = []
for gi, grp in enumerate(((0, 1, 2, 3), (4, 5), (6, 7))):
    bits = sum(1 << p for p in grp); m32 = bits | (bits << 16)
    E(f"""
L_ck{gi}:
    s_mov_b32 vcc_lo, {m32}
    s_mov_b32 vcc_hi, {m32}
    v_cndmask_b32 v{ACC}, 0, v{ENT+1}, vcc
    s_and_b32 s30, s68, {bits}
    s_cbranch_scc1 L_xa{gi}
L_xb{gi}:
    """)
    def xacc():
        E(f"L_xa{gi}:\ns_waitcnt vmcnt({NP})")
        for p in grp:
            r = RB + 4*p
            E(f"""
            {mask2(p)}
            s_mov_b64 exec, vcc
            v_add3_u32 v{ACC}, v{ACC}, v{r+1}, v{r+2}
            v_add_u32 v{ACC}, v{ACC}, v{r+3}
            s_mov_b64 exec, -1
            """)
        E(f"s_branch L_xb{gi}")
    emit_to(outofline, xacc)
    for p in grp:
        r = RA + 4*p
        E(f"""
        s_waitcnt vmcnt({NP-1-p})
        s_mov_b64 exec, s[{48+2*p}:{49+2*p}]
        v_and_b32 v{r}, v{r}, v{L0M}
        v_add3_u32 v{ACC}, v{ACC}, v{r+2}, v{r+3}
        v_add3_u32 v{ACC}, v{ACC}, v{r}, v{r+1}
        """)
    E("s_mov_b64 exec, -1\ns_nop 0")
    for k in (1, 2, 4, 8):
        E(f"v_add_u32_dpp v{ACC}, v{ACC}, v{ACC} row_ror:{k} row_mask:0xf bank_mask:0xf")
        if k < 8: E("s_nop 1")
    E(f"v_cmp_ne_u32 vcc, 0, v{ACC}\ns_cbranch_vccnz L_rt{gi}")
    if OPT["rst"]: STAMP(1+gi)
    if OPT["sig"] == gi + 1: issued()
    def retry():
        E(f"L_rt{gi}:\ns_sub_u32 s34, s34, 1\ns_cbranch_scc1 {'L_toobig' if gi < OPT['sig'] else 'L_giveup'}")
        loads(grp, f"r{gi}_")
        E(f"s_waitcnt vmcnt(0)\ns_branch L_ck{gi}")
    emit_to(outofline, retry)
    for p in grp: rank(RA + 4*p, f"s[{48+2*p}:{49+2*p}]")
    E(f"s_and_b32 s30, s68, {bits}\ns_cbranch_scc1 L_ya{gi}\nL_yb{gi}:")
    def xput():
        E(f"L_ya{gi}:")
        for p in grp:
            r = RB + 4*p
            E(f"""
            s_bitcmp1_b32 s68, {p}
            s_cbranch_scc0 L_yn{p}
            s_mov_b64 exec, -1
            {mask2(p)}
            """)
            rank(r, "vcc")
            E("s_waitcnt lgkmcnt(0)")
            put(r, "vcc")
            E(f"L_yn{p}:")
        E(f"s_branch L_yb{gi}")
    emit_to(outofline, xput)
    for k, p in enumerate(grp):
        E(f"s_waitcnt lgkmcnt({len(grp) - 1 - k + 2*k})")
        put(RA + 4*p, f"s[{48+2*p}:{49+2*p}]")
    E("s_mov_b64 exec, -1")
E(f"""
    {f"s_sub_u32 s{ST0+4}, {POLL_MAX+1}, s34" if OPT["cnt"] else ""}
    s_branch L_b4
L_toobig:
    s_mov_b64 exec, -1
""")
issued()
E(f"""
L_giveup:
    v_mov_b32 v2, 0
    ds_write_b32 v2, v{FOUR} offset:{L_FLAG}
L_recskip:
    s_waitcnt vmcnt(0)
L_b4:
    s_setprio {OPT["p0"] if OPT["prio"] == 2 else 0}
    s_mul_i32 s30, s{S_HALF}, {G_HALF}
    {f"s_add_u32 s30, s30, {WS0}" if WS0 else ""}
    s_add_u32 s36, s20, s30
    s_addc_u32 s37, s21, 0
    s_mov_b32 s38, {OPT['nrec'] or G_HALF}
    s_mov_b32 s39, 0x20000
    s_mov_b32 s44, 128
    s_mov_b32 s45, 128
    ds_read_b128 v[60:63], v{LP}
    ds_read_b64 v[{AG}:{AG+1}], v{LP} offset:64
    ds_read_b64 v[{WN2}:{WN2+1}], v{LP} offset:72
    ds_read_b32 v{WE}, v{LP+1}
    s_waitcnt lgkmcnt(0)
    v_lshl_add_u64 v[{AG}:{AG+1}], v[{AG}:{AG+1}], 0, v[{LN8}:{LN8+1}]
    v_lshl_add_u32 v{WE}, v{WE}, 1, v{EAC}
""")
if OPT["warm"]:
    E(f"""
    s_barrier
    s_lshr_b32 s30, s2, 3
    s_mul_i32 s30, s30, 98304
    v_lshl_add_u32 v2, v0, 7, s30
    buffer_load_dword v3, v2, s[36:39], 0 offen sc1
    s_waitcnt vmcnt(0)
    s_sleep 40
    """)
STAMP(8)
E(f"""
    s_barrier                               ; B4
    s_cmp_lg_u32 s{S_SAFE}, 0
    s_cbranch_scc1 L_safe
    ds_read_b128 v[{T}:{T+3}], v60
    ds_read_b128 v[{T+4}:{T+7}], v61
    ds_read_b64 v[{XA}:{XA+1}], v{AG} offset:512
    ds_read_b64 v[{EA}:{EA+1}], v{WE}
    s_lshr_b32 s30, s3, 2
    s_cmp_lg_u32 s30, 1
    s_cbranch_scc1 L_nopoll
    s_mov_b64 exec, s[66:67]
    s_cbranch_execz L_p2e
    s_mov_b32 s31, {POLL_MAX}
L_p2:
    global_load_dwordx2 v[66:67], v64, s[20:21] sc1
    s_sub_u32 s31, s31, 1
    s_cbranch_scc1 L_p2d
    s_waitcnt vmcnt(0)
    v_cmp_ne_u64 vcc, s[{S_TAG}:{S_TAG+1}], v[66:67]
    s_and_b64 exec, exec, vcc
    s_cbranch_scc0 L_p2d
    {f"s_sleep {OPT['p2sleep']}" if OPT['p2sleep'] else ""}
    s_branch L_p2
L_p2d:
""")
gready()
E(f"""
L_p2e:
    s_mov_b64 exec, -1
L_nopoll:
    s_cmp_lt_u32 s3, {NW-2}
    s_cbranch_scc1 L_nobuild
    v_lshlrev_b32 v2, 3, v1
    v_mov_b32 v3, 0
    ds_read_b64 v[72:73], v2 offset:{L_CNT}
    ds_read_b32 v79, v3 offset:{L_FLAG}
    v_mul_u32_u24 v74, {2*SSTR}, v1
    v_add_u32 v74, {L_SRC + 96}, v74
    v_add_u32 v75, {SSTR}, v74
    v_mul_u32_u24 v82, {2*NSTR}, v1
    s_and_b32 s32, s3, 1
    s_mul_i32 s30, s32, {NSTR}
    s_add_u32 s30, s30, {L_NODE}
    v_add_u32 v82, s30, v82
    v_mov_b32 v83, v82
    s_mul_i32 s30, s32, {SSTR}
    v_add_u32 v80, s30, v74
    v_add_u32 v81, 16, v80
    s_waitcnt lgkmcnt(0)
    v_sub_u32 v72, v72, v74 clamp
    v_sub_u32 v73, v73, v75 clamp
    v_max_u32 v76, v72, v73
    v_cmp_lt_u32 vcc, 160, v76
    v_cmp_ne_u32 s[48:49], 0, v79
    v_add_u32 v74, 12, v72
    v_add_u32 v75, 12, v73
    s_or_b64 vcc, vcc, s[48:49]
    s_cbranch_scc1 L_bad
    v_add_u32 v72, 28, v72
    v_add_u32 v73, 28, v73
    v_lshrrev_b32 v74, 5, v74
    v_lshrrev_b32 v75, 5, v75
    v_lshrrev_b32 v72, 5, v72
    v_lshrrev_b32 v73, 5, v73
    v_sub_u32 v72, v72, v74
    v_sub_u32 v73, v73, v75
    v_lshl_or_b32 v72, v72, 16, v74
    v_lshl_or_b32 v73, v73, 16, v75
    v_add_u32 v76, v72, v73
    v_add_u32 v77, v72, v73
""")
scan(77)
E(f"""
    s_cmp_eq_u32 s32, 0
    s_cselect_b64 vcc, -1, 0
    v_readlane_b32 s30, v77, 63
    v_cndmask_b32 v76, v73, v76, vcc
    v_cndmask_b32 v72, v73, v72, vcc
    v_sub_u32 v77, v77, v76
    s_and_b32 s31, s30, 0xffff
    s_add_u32 s31, s31, 3
    s_lshr_b32 s31, s31, 2
    s_add_u32 s30, s30, 0x30000
    s_lshr_b32 s30, s30, 18
    s_lshl_b32 s33, s31, 1
    s_add_u32 s33, s33, s30
    s_cmp_gt_u32 s33, 112
    s_cbranch_scc1 L_bad
    s_lshl_b32 s30, s30, 8
    s_or_b32 s29, s30, s31
    v_and_b32 v74, 0xffff, v72
    v_and_b32 v76, 0xffff, v77
    s_mov_b32 s34, {L_LISTC}
    s_mov_b32 s35, {L_LIST + 384}
""")
def slotaddr():
    E(f"""
    v_add_u32 v78, 16, v76
    v_bfe_u32 v79, v76, 2, 2
    v_lshl_add_u32 v79, v79, 10, s34
    v_lshrrev_b32 v84, 5, v78
    v_lshl_add_u32 v79, v84, 7, v79
    v_bfe_u32 v84, v78, 4, 1
    v_lshl_add_u32 v79, v84, 3, v79
    v_lshrrev_b32 v84, 2, v76
    v_cmp_gt_u32 vcc, 32, v76
    v_lshl_add_u32 v84, v84, 9, s35
    v_and_b32 v78, 3, v76
    v_cndmask_b32 v79, v79, v84, vcc
    v_lshl_add_u32 v79, v78, 4, v79
    """)
E("""
L_bf:
    v_cmp_ne_u32 vcc, 0, v74
    s_and_b64 exec, exec, vcc
    s_cbranch_execz L_bfd
""")
slotaddr()
E(f"""
    ds_write_b64 v79, v[80:81]
    ds_write_b64 v79, v[82:83] offset:64
    v_add_u32 v80, 32, v80
    v_add_u32 v81, 32, v81
    v_add_u32 v76, 1, v76
    v_subrev_u32 v74, 1, v74
    s_branch L_bf
L_bfd:
    s_mov_b64 exec, -1
    v_lshrrev_b32 v77, 16, v77
    v_lshrrev_b32 v76, 3, v77
    v_add_u32 v76, s31, v76
    v_and_b32 v78, 3, v77
    v_lshl_add_u32 v76, v76, 2, v78
""")
slotaddr()
E(f"""
    v_and_b32 v78, 4, v77
    v_add_u32 v79, v79, v78
    v_cmp_lt_u32 vcc, 0xffff, v72
    s_mov_b64 exec, vcc
    ds_write2_b32 v79, v80, v82 offset0:0 offset1:16
    s_mov_b64 exec, -1
    s_mul_i32 s29, s29, s32
    s_add_u32 s29, s29, 0x10000
    s_branch L_built
L_bad:
    s_mov_b32 s29, 0x1010000
L_built:
    v_mov_b32 v2, s29
    s_mov_b64 exec, 1
    ds_add_u32 v3, v2 offset:{L_NST}
    s_add_u32 s30, s{S_P}, s32
    s_cmp_lg_u32 s30, 0
    s_cbranch_scc1 L_notw
    v_mov_b32 v2, s{S_TAG}
    v_mov_b32 v3, {WS_TAG}
    global_store_dword v3, v2, s[20:21] sc1
L_notw:
    s_mov_b64 exec, -1
L_nobuild:
    s_waitcnt lgkmcnt(0)
""")
assert DIST == 2 and not EARLY
E(m_a(D0))
for o in range(T, T+8, 2): E(oadd(o))
E(m_e(D0, 0))
lds_wait(L_GOK, 0xff, 4, "gok")
if OPT["stamps"] == 2: E(f"s_memrealtime s[{ST0+16}:{ST0+17}]")
if not OPT["nogather"]:
    for q in range(8): E(gload(G + 4*q, T+q))
STAMP(9)
E(f"""
    s_mov_b32 s31, {POLL_MAX}
    s_waitcnt vmcnt(4)
""")
E(m_s(D0, A1, G)); E(m_s(D0, A2, G+8))
E(f"""
L_wn:
    ds_read_b32 v3, v2 offset:{L_NST}
    ds_read_b128 v[{WS4}:{WS4+3}], v{LP} offset:{128*((DIST+EARLY)//4)}
    s_sub_u32 s31, s31, 1
    s_cbranch_scc1 L_gosafe
    s_waitcnt lgkmcnt(0)
    v_readfirstlane_b32 s30, v3
    s_bitcmp1_b32 s30, 17
    s_cbranch_scc0 L_wn
    s_cmp_gt_u32 s30, {0 if OPT["force_safe"] else 0xffffff}
    s_cbranch_scc1 L_gosafe
    s_and_b32 s31, s30, 0xff
    s_bfe_u32 s30, s30, 0x80008
    s_lshl_b32 s32, s31, 1
    s_add_u32 s30, s30, s32
    s_lshl_b32 s32, s3, 1
    s_sub_i32 s30, s30, s32
    s_max_i32 s30, s30, 0
    s_cmp_ge_u32 s3, 8
    s_cbranch_scc1 L_nc
    s_min_u32 s30, s30, 2
    s_add_u32 s{S_R}, s30, 12
    s_cmp_ge_u32 s3, s31
    s_cselect_b32 s30, 0x2000, 0
    s_or_b32 s{S_M}, s30, 0x5041
    s_branch L_nd
L_nc:
    s_add_u32 s32, s30, 7
    s_lshr_b32 s32, s32, 3
    s_lshl_b32 s32, s32, 1
    s_and_b32 s30, s30, 7
    s_cmp_eq_u32 s30, 1
    s_subb_u32 s32, s32, 0
    s_add_u32 s{S_R}, s32, 6
    s_sub_i32 s31, s31, s3
    s_add_i32 s31, s31, 3
    s_max_i32 s31, s31, 0
    s_lshr_b32 s31, s31, 2
    s_lshl_b32 s31, s31, 1
    s_add_u32 s31, s31, 7
    s_lshl_b32 s31, -1, s31
    s_or_b32 s{S_M}, s31, 0x55555541
L_nd:
    s_mov_b32 s{S_IT}, {(1 << OPT["pa"]) | (1 << OPT["pb"]) | (1 << OPT["pc"]) if OPT["prio"] == 2 else 0}
""")
if OPT["prio"]: E(f"s_setprio {OPT['p1']}")
STAMP(10)
if OPT["ptime"]: E("v_mov_b32 v35, 0\nv_mov_b32 v68, 0")
if OPT["stamps"] == 1: E(f"s_memtime s[{ST0+24}:{ST0+25}]\ns_waitcnt lgkmcnt(0)")
for u in range(4): phase(u, True)
for u in range(4): phase(u, False)
E(f"""
L_mdone:
    s_waitcnt lgkmcnt(0)
""")
STAMP(11)
if OPT["ptime"]:
    E(f"""
    s_lshl_b32 s30, s2, 4
    s_add_u32 s30, s30, s3
    s_lshl_b32 s30, s30, 8
    s_add_u32 s30, s30, 0xc00000
    v_lshl_add_u32 v2, v1, 2, s30
    s_mov_b32 exec_hi, 0
    global_store_dword v2, v35, s[20:21]
    global_store_dword v2, v68, s[20:21] offset:128
    s_mov_b64 exec, -1
    """)
if OPT["stamps"] == 1:
    E(f"s_memtime s[28:29]\ns_waitcnt lgkmcnt(0)\ns_sub_u32 s{ST0+24}, s28, s{ST0+24}")
E(f"""
    v_lshrrev_b32 v2, 5, v0
    v_and_b32 v3, 31, v0
    v_mul_u32_u24 v4, {NSTR}, v2
    v_and_b32 v5, 1, v3
    v_lshl_add_u32 v4, v5, 8, v4
    v_lshrrev_b32 v5, 1, v3
    v_lshl_add_u32 v4, v5, 3, v4
    v_add_u32 v4, {L_NODE}, v4
    s_mul_i32 s30, s{S_BUCK}, {NB*256}
    s_lshl_b32 s31, s{S_HALF}, 7
    s_add_u32 s30, s30, s31
    v_lshlrev_b32 v3, 2, v3
    v_lshl_add_u32 v5, v2, 8, v3
    v_add_u32 v5, s30, v5
    v_add_u32 v6, {24*256}, v5
    v_add_u32 v7, {48*256}, v5
    v_add_u32 v8, {72*256}, v5
    s_mov_b32 s32, {f32(2.0**32)}
    s_mov_b32 s34, {f32(-LOG2E * 2.0**-32)}
    v_mov_b32 v9, 0x207
    s_barrier                               ; B5
""")
OSC = {0: "", 1: " sc1", 2: " nt"}[OPT["osc"]]
def epi(us):
    for u in us: E(f"ds_read_b64 v[{12+4*u}:{13+4*u}], v4 offset:{24*NSTR*u}\nds_read_b64 v[{14+4*u}:{15+4*u}], v4 offset:{24*NSTR*u + 128}")
    E("s_waitcnt lgkmcnt(0)")
    for u in us: E(f"v_cvt_f32_f64 v{28+2*u}, v[{12+4*u}:{13+4*u}]\nv_cvt_f32_f64 v{29+2*u}, v[{14+4*u}:{15+4*u}]")
    for u in us: E(f"v_pk_mul_f32 v[{36+2*u}:{37+2*u}], v[{28+2*u}:{29+2*u}], s[34:35] op_sel_hi:[1,0]")
    for u in us: E(f"v_exp_f32 v{36+2*u}, v{36+2*u}\nv_exp_f32 v{37+2*u}, v{37+2*u}")
    E("v_pk_add_f32 v[10:11], v[28:29], v[30:31]")
    for u in us: E(f"v_pk_fma_f32 v[{36+2*u}:{37+2*u}], v[{36+2*u}:{37+2*u}], s[32:33], s[32:33] op_sel_hi:[1,0,0]")
    for u in us: E(f"v_rcp_f32 v{36+2*u}, v{36+2*u}\nv_rcp_f32 v{37+2*u}, v{37+2*u}")
    E("v_pk_add_f32 v[10:11], v[10:11], v[32:33]")
    for u in us: E(f"v_pk_mul_f32 v[{36+2*u}:{37+2*u}], v[{28+2*u}:{29+2*u}], v[{36+2*u}:{37+2*u}]")
    for u in us: E(f"v_cvt_pk_bf16_f32 v{44+u}, v{36+2*u}, v{37+2*u}\nglobal_store_dword v{5+u}, v{44+u}, s[18:19]{OSC}")
    for u in us[3:]: E(f"v_pk_add_f32 v[10:11], v[10:11], v[{28+2*u}:{29+2*u}]")
E("s_cmp_ge_u32 s3, 4\ns_cbranch_scc1 L_e3")
epi([0, 1, 2, 3])
E("s_branch L_e4\nL_e3:")
epi([0, 1, 2])
E(f"""
L_e4:
    v_add_f32 v10, v10, v11
    v_cmp_class_f32 vcc, v10, v9
    v_mov_b32 v2, 0
    s_cmp_lg_u32 s{S_SAFE}, 0
    s_cbranch_scc1 L_fin
    {"s_branch" if OPT["nosafe"] else "s_cbranch_vccz"} L_e5
    ds_write_b32 v2, v9 offset:{L_FLAG}
    s_waitcnt lgkmcnt(0)
L_e5:
    s_barrier                               ; B6
    ds_read_b32 v2, v2 offset:{L_FLAG}
    s_waitcnt lgkmcnt(0)
    v_readfirstlane_b32 s30, v2
    s_cmp_lg_u32 s30, 0
    s_cbranch_scc1 L_gosafe
L_fin:
""")
if OPT["stamps"]:
    E("s_waitcnt vmcnt(0)"); STAMP(13); STAMP_OUT()
if OPT["probe"] >= 0:
    T_ = ST0 + 2*OPT["probe"]
    E(f"""
    s_cmp_lg_u32 s3, {OPT["pw"]}
    s_cbranch_scc1 L_end
    s_cmp_lg_u32 s2, {OPT["pg"] if OPT["pg"] >= 0 else "s2"}
    s_cbranch_scc1 L_end
    s_sub_u32 s30, s{T_}, s{ST0}
    s_lshl_b32 s30, s30, 2
    s_add_u32 s30, s30, 3000
    s_min_u32 s30, s30, 20000
L_spin:
    s_memrealtime s[28:29]
    s_waitcnt lgkmcnt(0)
    s_sub_u32 s28, s28, s{ST0}
    s_cmp_lt_u32 s28, s30
    s_cbranch_scc1 L_spin
    """)
E(f"""
L_end:
    s_endpgm
L_gosafe:
    s_mov_b32 s{S_SAFE}, 8
    s_setprio 0
    s_waitcnt vmcnt(0) lgkmcnt(0)
    s_barrier
    s_branch L_restart
""")
out += outofline
for r in retries: E(r)
E(f"""
L_safe:
    v_and_b32 v2, 15, v1
    v_lshlrev_b32 v3, 3, v2
    v_add_u32 v3, {L_C}, v3
""")
for k in range(4):
    for s in range(4):
        E(f"ds_read_u16 v{80+4*k+s}, v3 offset:{128*k + 2*s}")
E("s_waitcnt lgkmcnt(0)")
for i in range(16):
    E(f"v_lshlrev_b32 v{80+i}, 16, v{80+i}\nv_mul_f32 v{80+i}, s40, v{80+i}")
E(f"""
    v_lshrrev_b32 v24, 4, v1
    v_mul_u32_u24 v24, 3, v24               ; 3*quarter
    s_movk_i32 s33, {NSTR}
    v_add_u32 v25, {L_NODE}, v{LN8}
    s_mov_b32 s34, s3
    s_mov_b32 s35, {POLL_MAX}
L_scell:
    s_lshl_b32 s30, s34, 10
    s_lshl_b32 s31, s{S_BUCK}, 3
    s_add_u32 s30, s30, s31
    s_add_u32 s30, s30, {WS_ROW}
    v_mov_b32 v26, s30
    global_load_dword v32, v26, s[20:21] sc1
    s_mul_i32 s30, s34, {SORTB//4}
    s_add_u32 s30, s30, {WS_REC//4}
    s_waitcnt vmcnt(0)
    v_bfe_u32 v28, v32, 12, 12              ; 3*count
    v_and_b32 v27, 0xfff, v32
    v_add_u32 v27, s30, v27
L_sver:
    v_mov_b32 v29, v1
    v_mov_b32 v31, 0
L_sv1:
    v_cmp_ge_u32 vcc, v28, v29
    s_and_saveexec_b64 s[48:49], vcc
    s_cbranch_execz L_sv2
    v_add_lshl_u32 v30, v27, v29, 2
    global_load_dword v32, v30, s[20:21] sc1
    s_waitcnt vmcnt(0)
    v_add_u32 v31, v31, v32
    s_mov_b64 exec, s[48:49]
    v_add_u32 v29, 64, v29
    s_branch L_sv1
L_sv2:
    s_mov_b64 exec, s[48:49]
""")
scan(31)
E(f"""
    s_nop 0
    v_readlane_b32 s30, v31, 63
    s_cmp_eq_u32 s30, s{S_TAG+1}
    s_cbranch_scc1 L_sok
    s_sub_u32 s35, s35, 1
    s_cbranch_scc0 L_sver
    s_branch L_mdone
L_sok:
    v_mov_b32 v29, v24
L_srec:
    v_cmp_gt_u32 vcc, v28, v29
    s_and_saveexec_b64 s[48:49], vcc
    s_cbranch_execz L_snext
    v_add_lshl_u32 v30, v27, v29, 2
    global_load_dwordx3 v[32:34], v30, s[20:21] offset:4 sc1
    s_waitcnt vmcnt(0)
    v_and_b32 v30, 0x3fff00, v32
    v_add_u32 v30, v30, v{LN16}
    buffer_load_dwordx4 v[36:39], v30, s[36:39], 0 offen sc1
    v_lshrrev_b32 v31, 24, v32
    v_mad_u32_u24 v31, v31, s33, v25
    ds_read_b64 v[40:41], v31 offset:512
    v_lshlrev_b32 v44, 16, v33
    v_and_b32 v45, 0xffff0000, v33
    v_lshlrev_b32 v46, 16, v34
    v_and_b32 v47, 0xffff0000, v34
    s_waitcnt vmcnt(0) lgkmcnt(0)
    v_lshlrev_b32 v48, 16, v40
    v_and_b32 v49, 0xffff0000, v40
    v_lshlrev_b32 v50, 16, v41
    v_and_b32 v51, 0xffff0000, v41
""")
for s in range(4):
    E(f"v_lshlrev_b32 v52, 16, v{36+s}\nv_add_f32 v{48+s}, v{48+s}, v52")
    for k in range(4):
        E(f"v_fmac_f32 v{48+s}, v{44+k}, v{80+4*k+s}")
for s in range(4): E(f"v_exp_f32 v{48+s}, v{48+s}")
E("s_nop 0")
for s in range(4): E(f"v_add_f32 v{48+s}, 1.0, v{48+s}")
for s in range(4): E(f"v_rcp_f32 v{48+s}, v{48+s}")
E("s_nop 0")
for s in range(4): E(f"v_mul_f32 v{48+s}, v{48+s}, v{36+s}")
for s in range(4): E(f"v_cvt_f64_f32 v[{54+2*s}:{55+2*s}], v{48+s}")
for s in range(4): E(f"ds_add_f64 v31, v[{54+2*s}:{55+2*s}] offset:{128*s}")
E(f"""
    s_mov_b64 exec, s[48:49]
    v_add_u32 v29, 12, v29
    s_branch L_srec
L_snext:
    s_mov_b64 exec, s[48:49]
    s_add_u32 s34, s34, {NW}
    s_cmp_lt_u32 s34, {NCHUNK}
    s_cbranch_scc1 L_scell
    s_branch L_mdone
L_codeend:
.section .rodata,"a"
.p2align 6
.amdhsa_kernel {NAME}
.amdhsa_next_free_vgpr 168
.amdhsa_next_free_sgpr 102
.amdhsa_accum_offset 168
.amdhsa_group_segment_fixed_size 0
.amdhsa_kernarg_size 80
.amdhsa_user_sgpr_count 2
.amdhsa_user_sgpr_kernarg_segment_ptr 1
.amdhsa_system_sgpr_workgroup_id_x 1
.end_amdhsa_kernel
""")
if OPT["drop"]:
    i0 = out.index("L_L0:"); i1 = out.index("L_mdone:")
    pats = {1: ("smfmac",), 2: ("mfma",), 3: ("32x32x8",), 4: ("smfmac",), 5: ("v_exp",)}[OPT["drop"]]
    repl = {4: "    s_nop 2", 5: "    s_nop 1"}.get(OPT["drop"])
    mid = []
    for l in out[i0:i1]:
        if any(x in l for x in pats):
            if repl: mid.append(repl)
        else: mid.append(l)
    if OPT["drop"] == 3: mid = [l.replace("v[88:103] cbsz", "0 cbsz").replace("v[72:87] cbsz", "0 cbsz") for l in mid]
    out = out[:i0] + mid + out[i1:]
if OPT["nochain"]:
    i0 = out.index("L_L0:"); i1 = out.index("L_mdone:")
    out = out[:i0] + [l for l in out[i0:i1] if not any(x in l for x in ("v_exp", "v_pk_", "mfma", "v_rcp", "v_cvt"))] + out[i1:]
open(sys.argv[1], "w").write("\n".join(out) + "\n")
```

```python
import sys, struct

OPT = dict(hb=1, stamps=0, force_safe=0, nogather=0, nosafe=0, prio=2, gsc1=1, osc=1, codepf=1, srcmask=0x3fff00, nrec=0, warm=0,
           nochain=0, probe=-1, pw=-1, pg=-1, gpf=32, early=0, cnt=0, pollmax=200000, pa=7, pb=3, pc=1, p0=3, p1=3, ptime=0,
           dist=2, ldearly=0, drop=0, wgate=0, gate=0, gate2=1, rst=0, rsc1=1, nover=0, p2gate=1, p2sleep=0, hold=0, slate=2, lpos=0, p1st=1, sig=1, gpace=4, gwin=-1, gp=0xf448c, ghold=0, nte=0, ewhen=2, wpf=0, ntx=0, rpace=-1, p2wait=0)
for a in sys.argv[2:]:
    k, v = a.split("=")
    assert k in OPT, k
    OPT[k] = int(v, 0)

out = []
def E(s=""):
    for line in s.split("\n"):
        line = line.strip()
        if not line:
            continue
        if line.endswith(":") or line.startswith(".") or line.startswith(";"):
            out.append(line)
        else:
            out.append("    " + line)

def f32(x):
    return "0x%08x" % struct.unpack("<I", struct.pack("<f", x))[0]

NAME = "standalone__edge_featured_mpnn_egc__graph_kernel"
LOG2E = 1.4426950408889634
NB = 80; NBUCK = 125; CHUNK = 1280; NCHUNK = 250
NW = 12
G_HALF = 10000 * 256
WS0 = 0
WS_REC = 0x500000
WS_ROW = 0x900000
WS_FL2 = 0x980000
WS_TAG = 0x9c0000
SORTB = CHUNK * 12 + 512
WS_STAMP = 0x1000000
L_CNT = 0; L_SOFF = 512
L_SCNT = 1024
L_CTR = 1536; L_RD = 1540; L_DONE2 = 1544; L_FLAG = 1548; L_NST = 1552; L_GST = 1556; L_GOK = 1560; L_AU = 1564
L_DUM = L_SOFF
L_LIST = 2048
L_LISTC = L_LIST + 4096
SSTR = 272
L_SRC = L_LIST + 8192
SRCB = 80 * SSTR + 32
L_EA = L_SRC + SRCB
L_EAEND = L_EA + 2 * SRCB
L_SORT = L_EA
L_WBV = (L_EAEND + 255) // 256 * 256; L_X = L_WBV + 32768; L_WAU = L_X + 20480; L_C = L_WAU + 32768
LDS = L_C + 1024
L_NODE = L_WBV; NSTR = 648
assert L_NODE + 80 * NSTR <= L_WAU and LDS <= 163840 and L_EA % 16 == 0
NULL_SRC = 0x7fffff00
POLL_MAX = OPT["pollmax"]
SC1 = " sc1"
NTE = " nt" if OPT["nte"] else ""
NTX = " nt" if OPT["ntx"] else ""

S_HALF, S_BUCK, S_P = 22, 23, 24
S_SAFE, S_TAG = 25, 26
S_R, S_M, S_IT = 70, 71, 72
S_TAGRAW = 47
ST0 = 74

def ESTAMP(i):
    if OPT["early"] == 1 or (OPT["early"] and i == 0): E(f"s_memrealtime s[{ST0+2*i}:{ST0+2*i+1}]")
def FSTAMP(i):
    if OPT["early"] == 2: E(f"s_memrealtime s[{ST0+2*i}:{ST0+2*i+1}]\ns_waitcnt lgkmcnt(0)")
def STAMP(i):
    if OPT["stamps"] == 2:
        if i == 0: E(f"s_memrealtime s[{ST0}:{ST0+1}]")
        if i == 13: E(f"s_memrealtime s[{ST0+26}:{ST0+27}]\ns_waitcnt lgkmcnt(0)")
        return
    if OPT["early"] and 1 <= i <= 7: return
    if OPT["early"] and i == 0: return ESTAMP(0)
    if OPT["stamps"] or (OPT["probe"] >= 0 and i == OPT["probe"]):
        E(f"s_memrealtime s[{ST0+2*i}:{ST0+2*i+1}]\ns_waitcnt lgkmcnt(0)")
    elif OPT["probe"] >= 0 and i == 0:
        E(f"s_memrealtime s[{ST0}:{ST0+1}]")
NSTAMP = 14
def STAMP_OUT():
    if OPT["stamps"]:
        E(f"""
        s_lshl_b32 s30, s2, 4
        s_add_u32 s30, s30, s3
        s_lshl_b32 s30, s30, 6
        s_add_u32 s30, s30, {WS_STAMP - 0x100000}
        s_load_dwordx2 s[20:21], s[0:1], 72
        s_waitcnt lgkmcnt(0)
        s_mov_b64 exec, -1
        v_mov_b32 v3, s30""")
        for i in (range(NSTAMP) if OPT["stamps"] == 1 else (0, 8, 13)):
            E(f"v_mov_b32 v2, s{ST0+2*i}\nglobal_store_dword v3, v2, s[20:21] offset:{4*i}")
        E("s_waitcnt vmcnt(0)")

A1, A2, IDX, EAC, LN16, ASEL, CW, LN8 = 4, 8, 12, 13, 14, 16, 18, 20
LP, WS4, WN2, EA, XA, WE, OFS, AG, T, N, P, F = 22, 24, 28, 30, 32, 34, 36, 40, 44, 52, 56, 60
D0, D1, G = 72, 88, 104

def finish_tag():
    E(f"""
    s_mul_i32 s{S_TAG+1}, s{S_TAGRAW}, 0x85ebca6b
    s_mul_i32 s{S_TAG}, s{S_TAGRAW}, 0x9e3779b1
    s_add_u32 s{S_TAG+1}, s{S_TAG+1}, 0x5bd1e995
    s_add_u32 s{S_TAG}, s{S_TAG}, 0x7f4a7c15
    """)
def get_tag(lab, q):
    E(f"""
    s_cmp_lg_u32 s{S_SAFE}, 0
    s_cbranch_scc1 L_tag_{lab}
    v_mov_b32 v2, 0
    s_mov_b32 s31, {POLL_MAX}
L_tg_{lab}:
    ds_read_b128 v[{q}:{q+3}], v2 offset:{L_SCNT + 124*4}
    s_sub_u32 s31, s31, 1
    s_cbranch_scc1 L_tag_{lab}
    s_waitcnt lgkmcnt(0)
    v_readfirstlane_b32 s30, v{q+3}
    v_readfirstlane_b32 s{S_TAGRAW}, v{q+1}
    s_cmp_lg_u32 s30, 4
    s_cbranch_scc1 L_tg_{lab}
    """)
    finish_tag()
    E(f"L_tag_{lab}:")

def lds_wait(addr, mask, val, tag, sleep=0, ne=False):
    E(f"""
    v_mov_b32 v2, 0
    s_mov_b32 s31, {POLL_MAX}
L_w_{tag}:
    {f"s_sleep {sleep}" if sleep else ""}
    ds_read_b32 v3, v2 offset:{addr}
    s_sub_u32 s31, s31, 1
    s_cbranch_scc1 L_wd_{tag}
    s_waitcnt lgkmcnt(0)
    v_readfirstlane_b32 s30, v3
    s_and_b32 s30, s30, {mask}
    s_cmp_lg_u32 s30, {val}
    s_cbranch_scc{0 if ne else 1} L_w_{tag}
L_wd_{tag}:
    """)
SCAN = ("row_shr:1 row_mask:0xf bank_mask:0xf bound_ctrl:0", "row_shr:2 row_mask:0xf bank_mask:0xf bound_ctrl:0",
        "row_shr:4 row_mask:0xf bank_mask:0xf bound_ctrl:0", "row_shr:8 row_mask:0xf bank_mask:0xf bound_ctrl:0",
        "row_bcast:15 row_mask:0xa bank_mask:0xf", "row_bcast:31 row_mask:0xc bank_mask:0xf")
def scan(r):
    for m in SCAN:
        E(f"s_nop 1\nv_add_u32_dpp v{r}, v{r}, v{r} {m}")

def main_consts(sm=48):
    E(f"""
    v_and_b32 v2, 15, v1                    ; n'
    v_lshrrev_b32 v3, 4, v1
    v_lshl_add_u32 v3, v2, 2, v3
    v_lshlrev_b32 v3, 1, v3
    v_add_u32 v3, {L_C}, v3
    ds_read_u16 v64, v3                     ; C[0..3][feature 4n'+s]
    ds_read_u16 v65, v3 offset:128
    ds_read_u16 v66, v3 offset:256
    ds_read_u16 v67, v3 offset:384
    v_and_b32 v63, 3, v1                    ; q
    v_lshlrev_b32 v{LN8}, 3, v2
    v_lshlrev_b32 v{LN8+1}, 3, v2
    v_lshlrev_b32 v{LN16}, 4, v2
    v_lshlrev_b32 v{LN16+1}, 4, v2
    v_mov_b32 v{IDX}, 0x8888
    v_bfe_u32 v60, v1, 3, 2                 ; s = (l&31)>>3
    v_bfe_u32 v61, v1, 2, 1                 ; h = (l>>2)&1
    v_lshrrev_b32 v62, 5, v1                ; ha
    v_and_b32 v2, 1, v60
    v_lshlrev_b32 v2, 4, v2
    v_lshlrev_b32 v2, v2, s46
    v_lshrrev_b32 v60, 1, v60               ; s>>1
    v_lshl_add_u32 v3, v61, 1, v60
    v_sub_u32 v63, v63, v62                 ; q - ha : 0 -> A1, 2 -> A2
    v_lshl_add_u32 v3, v63, 1, v3
    v_and_b32 v63, 1, v63
    v_lshl_or_b32 v3, v63, 4, v3
    v_xor_b32 v61, v61, v62
    v_lshl_or_b32 v60, v61, 4, v60
    """)
    mk = [f"s[{sm}:{sm+1}]", f"s[{sm+2}:{sm+3}]", f"s[{sm+4}:{sm+5}]", "vcc"]
    for i in range(8):
        E(f"v_cmp_eq_u32 {mk[i%4]}, {i}, v3")
        if i % 4 == 3:
            for j in range(i-3, i+1):
                E(f"v_cndmask_b32 v{A1+j}, 0, v2, {mk[j%4]}")
    E(f"""
    v_cmp_eq_u32 {mk[0]}, 0, v60
    v_cmp_eq_u32 {mk[1]}, 1, v60
    v_and_b32 v63, 3, v1
    v_lshlrev_b32 v61, 3, v63
    v_cndmask_b32 v{ASEL}, 0, v2, {mk[0]}
    v_cndmask_b32 v{ASEL+1}, 0, v2, {mk[1]}
    v_add_u32 v{EAC}, {L_EA - 2*L_SRC}, v61
    s_lshl_b32 s30, s3, 9
    s_sub_u32 s31, s30, 4096
    s_max_i32 s31, s31, 0
    s_add_u32 s30, s30, s31
    s_add_u32 s30, s30, {L_LIST}
    v_lshrrev_b32 v2, 4, v1
    v_lshl_add_u32 v{LP}, v2, 4, s30
    v_bfe_u32 v3, v1, 2, 2
    v_lshl_add_u32 v{LP+1}, v3, 4, s30
    v_lshl_add_u32 v{LP+1}, v2, 2, v{LP+1}
    s_waitcnt lgkmcnt(0)
    v_lshlrev_b32 v60, 16, v64
    v_lshlrev_b32 v61, 16, v65
    v_lshlrev_b32 v62, 16, v66
    v_lshlrev_b32 v63, 16, v67
    v_mul_f32 v60, s40, v60
    v_mul_f32 v61, s40, v61
    v_mul_f32 v62, s40, v62
    v_mul_f32 v63, s40, v63
    v_cvt_pk_bf16_f32 v{CW}, v60, v61
    v_cvt_pk_bf16_f32 v{CW+1}, v62, v63
    """)

def gload(g, o):
    return f"buffer_load_dwordx4 v[{g}:{g+3}], v{o}, s[36:39], 0 offen" + (SC1 if OPT["gsc1"] else "")
def oadd(o):
    return f"v_lshl_add_u64 v[{o}:{o+1}], v[{o}:{o+1}], 0, v[{LN16}:{LN16+1}]"

def pk_steps(Gc, q, first):
    t = T + 4*(q & 1); h = Gc + 4*q
    if first and q == 0:
        return [f"v_pk_add_f32 v[{P+2*p}:{P+2*p+1}], v[{t+2*p}:{t+2*p+1}], 1.0 op_sel_hi:[1,0]" for p in range(2)]
    r = []
    for p in range(2):
        n = f"v[{Gc+2*p}:{Gc+2*p+1}]" if (first and q == 1) else f"v[{N+2*p}:{N+2*p+1}]"
        r.append(f"v_pk_fma_f32 v[{N+2*p}:{N+2*p+1}], {n}, v[{t+2*p}:{t+2*p+1}], {n}")
    for p in range(2):
        r.append(f"v_pk_fma_f32 v[{N+2*p}:{N+2*p+1}], v[{h+2*p}:{h+2*p+1}], v[{P+2*p}:{P+2*p+1}], v[{N+2*p}:{N+2*p+1}]")
    for p in range(2):
        r.append(f"v_pk_fma_f32 v[{P+2*p}:{P+2*p+1}], v[{P+2*p}:{P+2*p+1}], v[{t+2*p}:{t+2*p+1}], v[{P+2*p}:{P+2*p+1}]")
    return r
def exps(Dc, q):
    t = T + 4*(q & 1)
    return [f"v_exp_f32 v{t+s}, v{Dc+4*s+q}" for s in range(4)]
def weave(main, extra):
    for i, x in enumerate(main):
        E(x)
        for y in extra.get(i, []):
            E(y)
def m_a(Dn): return f"v_mfma_f32_32x32x8_bf16 v[{Dn}:{Dn+15}], v[{ASEL}:{ASEL+1}], v[{XA}:{XA+1}], 0"
def m_e(Dn, abid): return f"v_mfma_f32_16x16x4_4b_bf16 v[{Dn}:{Dn+15}], v[{EA}:{EA+1}], v[{CW}:{CW+1}], v[{Dn}:{Dn+15}] cbsz:2 abid:{abid}"
def m_s(Dn, A, g): return f"v_smfmac_f32_32x32x32_bf16 v[{Dn}:{Dn+15}], v[{A}:{A+3}], v[{g}:{g+7}], v{IDX}"

outofline = []
def emit_to(lst, fn):
    global out
    keep = out; out = []
    fn(); lst += out; out = keep
DIST = OPT["dist"]; EARLY = OPT["ldearly"]
assert not (EARLY and DIST == 4)
def phase(u, loads):
    tag = f"{'L' if loads else 'T'}{u}"
    Dc, Dn = ((D0, D1), (D1, D0))[u & 1]
    gc = G + 16*u; gn = G + 16*((u+1) & 3); gl = G + 16*((u+DIST) & 3)
    ld = loads and not OPT["nogather"]
    kw = (u + DIST + EARLY) & 3
    wsgrp = 128 * ((3 - kw + u + DIST + EARLY) // 4 + 1) if kw == 3 else None
    def addloads(ex, pos):
        if loads:
            ex.setdefault(0, []).append(oadd(OFS)); ex.setdefault(2, []).append(oadd(OFS+2))
        if ld:
            for q in range(4): ex.setdefault(pos[q], []).append(gload(gl+4*q, OFS+q))
    E(f"L_{tag}:")
    if OPT["ptime"]: E(f"s_memrealtime s[28:29]\ns_mov_b32 m0, s{S_R}")
    if OPT["ptime"] == 2: E(f"s_memtime s[30:31]")
    SL = OPT["slate"]
    if not SL: E(f"s_waitcnt vmcnt({4*(DIST-2)})")
    if OPT["ptime"] == 1: E(f"s_memrealtime s[30:31]")
    E(m_a(Dn))
    for x in exps(Dc, 0): E(x)
    E(m_e(Dn, (u+1) & 3) if SL else m_s(Dn, A1, gn))
    for x in exps(Dc, 1): E(x)
    ex = {0: ["s_waitcnt lgkmcnt(0)"], 2: [f"ds_read_b64 v[{XA}:{XA+1}], v{AG + ((u+2) & 3)} offset:512"]}
    if OPT["ptime"]: ex[0] += ["v_writelane_b32 v35, s28, m0", "v_writelane_b32 v68, s30, m0"]
    if u % 2 == 0:
        p = AG + ((u+2) & 3)
        ex[0].append(f"v_lshl_add_u64 v[{p}:{p+1}], v[{WN2}:{WN2+1}], 0, v[{LN8}:{LN8+1}]")
    if EARLY: addloads(ex, (1, 3, 5, 6))
    elif loads: ex[1] = [f"ds_read_b128 v[{OFS}:{OFS+3}], v{WS4+kw}"]
    if u == 2:
        ex.setdefault(4, []).append(f"v_lshl_add_u32 v{WE}, v{WE}, 1, v{EAC}")
        if SL: ex.setdefault(7, []).append(f"ds_read_b64 v[{EA}:{EA+1}], v{WE}")
    E(f"s_bitcmp1_b32 s{S_M}, 0\ns_cbranch_scc1 L_{tag}f")
    weave(pk_steps(gc, 0, False) + pk_steps(gc, 1, False), ex)
    E(f"L_{tag}r:")
    def first():
        E(f"L_{tag}f:")
        weave(pk_steps(gc, 0, True) + pk_steps(gc, 1, True), ex)
        E(f"s_branch L_{tag}r")
    emit_to(outofline, first)
    if SL:
        E(f"s_waitcnt vmcnt({4*(DIST-2) + (4 if (EARLY and loads) else 0) + (2 if SL == 2 else 0)})")
        E(m_s(Dn, A1, gn))
    else:
        E(m_e(Dn, (u+1) & 3))
    for x in exps(Dc, 2): E(x)
    if SL == 2: E(f"s_waitcnt vmcnt({4*(DIST-2) + (4 if (EARLY and loads) else 0)})")
    E(m_s(Dn, A2, gn+8))
    for x in exps(Dc, 3): E(x)
    ex = {0: ["s_waitcnt lgkmcnt(0)"], 4: [], 6: [], 7: [f"s_sub_u32 s{S_R}, s{S_R}, 1"], 10: [f"s_lshr_b32 s{S_M}, s{S_M}, 1"], 11: [f"s_bitcmp1_b32 s{S_M}, 0"]}
    if not EARLY: addloads(ex, (1, 3, 5, 9) if DIST == 4 else ((1, 3, 5, 7), (1, 2, 3, 4), (4, 6, 8, 10), (2, 5, 8, 10))[OPT['lpos']])
    elif loads: ex[1] = [f"ds_read_b128 v[{OFS}:{OFS+3}], v{WS4+kw}"]
    if u == 1:
        ex[4].append(f"ds_read_b64 v[{WN2}:{WN2+1}], v{LP} offset:{128+64}")
        ex[6].append(f"ds_read_b32 v{WE}, v{LP+1} offset:128")
    if u == 2 and not SL:
        ex[4].append(f"ds_read_b64 v[{EA}:{EA+1}], v{WE}")
    if u == 3:
        ex[4].append(f"ds_read_b64 v[{WN2}:{WN2+1}], v{LP} offset:{128+64+8}")
        ex.setdefault(8, []).append(f"v_lshl_add_u64 v[{LP}:{LP+1}], v[{LP}:{LP+1}], 0, s[44:45]")
    if wsgrp and loads: ex[6].append(f"ds_read_b128 v[{WS4}:{WS4+3}], v{LP} offset:{wsgrp}")
    weave(pk_steps(gc, 2, False) + pk_steps(gc, 3, False), ex)
    E(f"s_cbranch_scc1 L_{tag}z\nL_{tag}y:")
    def fin():
        E(f"""
L_{tag}z:
        v_rcp_f32 v{P}, v{P}
        v_rcp_f32 v{P+1}, v{P+1}
        v_rcp_f32 v{P+2}, v{P+2}
        v_rcp_f32 v{P+3}, v{P+3}
        v_pk_mul_f32 v[{N}:{N+1}], v[{N}:{N+1}], v[{P}:{P+1}]
        v_pk_mul_f32 v[{N+2}:{N+3}], v[{N+2}:{N+3}], v[{P+2}:{P+3}]
        """)
        for s_ in range(4):
            E(f"v_cvt_f64_f32 v[{F+2*s_}:{F+2*s_+1}], v{N+s_}")
            if s_: E(f"ds_add_f64 v{AG+u}, v[{F+2*s_-2}:{F+2*s_-1}] offset:{128*(s_-1)}")
        E(f"ds_add_f64 v{AG+u}, v[{F+6}:{F+7}] offset:384")
        E(f"s_branch L_{tag}y")
    emit_to(outofline, fin)
    if OPT["prio"] == 2:
        E(f"s_bitcmp1_b32 s{S_IT}, s{S_R}\ns_cbranch_scc1 L_{tag}q\nL_{tag}p:")
        def pr():
            E(f"""
L_{tag}q:
            s_setprio 0
            s_cmp_le_u32 s{S_R}, {OPT["pc"]}
            s_cbranch_scc1 L_{tag}p
            s_setprio 1
            s_cmp_le_u32 s{S_R}, {OPT["pb"]}
            s_cbranch_scc1 L_{tag}p
            s_setprio 2
            s_branch L_{tag}p
            """)
        emit_to(outofline, pr)
    if u == 3 and OPT["prio"] == 1:
        E(f"""
        s_add_u32 s{S_IT}, s{S_IT}, 1
        s_setprio 0
        s_cmp_gt_u32 s{S_IT}, 2
        s_cbranch_scc1 L_{tag}p
        s_setprio 1
        s_cmp_eq_u32 s{S_IT}, 2
        s_cbranch_scc1 L_{tag}p
        s_setprio 2
L_{tag}p:
        """)
    if loads:
        E(f"s_cmp_le_u32 s{S_R}, {DIST}")
        if u < 3: E(f"s_cbranch_scc1 L_T{u+1}")
        else: E("s_cbranch_scc0 L_L0")
    else:
        E(f"s_waitcnt vmcnt(0)\ns_cmp_eq_u32 s{S_R}, 0")
        if u < 3: E("s_cbranch_scc1 L_mdone")
        else: E("s_cbranch_scc0 L_T0")

E(f"""
; @launch grid=(256,1,1) block=({64*NW},1,1) lds={LDS}
.amdgcn_target "amdgcn-amd-amdhsa--gfx950"
.text
.globl {NAME}
.p2align 8
.type {NAME},@function
{NAME}:
""")
if OPT["stamps"] == 1 and OPT["early"] != 1:
    for i in range(NSTAMP): E(f"s_mov_b64 s[{ST0+2*i}:{ST0+2*i+1}], 0")
STAMP(0)
E(f"""
    s_load_dwordx16 s[4:19], s[0:1], 0
    s_load_dwordx2 s[20:21], s[0:1], 72
""")
if OPT["codepf"]:
    E(f"""
    s_getpc_b64 s[28:29]
L_pc:
    v_lshlrev_b32 v3, 7, v0
    v_cmp_gt_u32 vcc, L_codeend-L_pc-64, v3
    s_cbranch_vccz L_nopf
    s_mov_b64 exec, vcc
    global_load_dword v164, v3, s[28:29]
    s_mov_b64 exec, -1
L_nopf:
    """)
E(f"""
    v_lshrrev_b32 v2, 6, v0
    v_and_b32 v1, 63, v0
    v_readfirstlane_b32 s3, v2
    {"s_bfe_u32 s%d, s2, 0x10002" % S_HALF if OPT["hb"] else "s_and_b32 s%d, s2, 1" % S_HALF}
    {"s_and_b32 s30, s2, 3" if OPT["hb"] else "s_bfe_u32 s30, s2, 0x20001"}
    s_lshl_b32 s30, s30, 5
    s_lshr_b32 s31, s2, 3
    s_add_u32 s{S_BUCK}, s30, s31
    s_cmp_ge_u32 s2, 256
    s_cbranch_scc1 L_end
    s_cmp_ge_u32 s{S_BUCK}, {NBUCK}
    s_cbranch_scc1 L_end
    s_lshl_b32 s{S_P}, s{S_BUCK}, 1
    s_add_u32 s{S_P}, s{S_P}, s{S_HALF}
    s_mov_b32 s{S_SAFE}, 0
L_restart:
    s_cmp_ge_u32 s3, 4
    s_cbranch_scc1 L_nosort
    v_mov_b32 v48, 0
    v_mov_b32 v49, 0
    v_mov_b32 v50, 0
    v_mov_b32 v51, 0
    v_lshlrev_b32 v10, 4, v1
    ds_write_b128 v10, v[48:51] offset:{L_SCNT}
    s_mul_i32 s30, s{S_P}, {CHUNK*4}
    v_lshl_add_u32 v3, v0, 4, s30
    s_add_u32 s30, s30, 4096
    v_lshl_add_u32 v18, v0, 2, s30
    v_lshlrev_b32 v10, 1, v3
    v_lshlrev_b32 v11, 1, v18
    v_mov_b32 v17, {WS_TAG}
    s_waitcnt lgkmcnt(0)
    global_load_dwordx4 v[4:7], v3, s[10:11]{NTE}
    global_load_dword v8, v18, s[10:11]{NTE}
    global_load_dword v43, v17, s[20:21]
    s_barrier                               ; B0
    s_barrier                               ; B0b
    s_branch L_sort
L_nosort:
    s_and_b32 s32, s3, 3                    ; tau
    s_lshr_b32 s33, s3, 3
    v_lshrrev_b32 v2, 4, v1                 ; g
    v_and_b32 v4, 15, v1
    s_lshl_b32 s30, s32, 2
    v_add_u32 v6, s30, v2                   ; row&15
    v_xor_b32 v7, v4, v6
    v_lshlrev_b32 v7, 4, v7
    v_lshl_add_u32 v7, v6, 8, v7
    s_mul_i32 s73, s{S_BUCK}, {NB*256}
    s_mul_i32 s31, s33, {3*4096}
    s_add_u32 s30, s73, s31
    v_add_u32 v7, s30, v7
    v_add_u32 v8, 0x1000, v7
    v_add_u32 v9, 0x2000, v7
    s_lshl_b32 s30, s32, 10
    s_add_u32 s31, s31, s30
    s_add_u32 m0, s31, {L_X}
    v_subrev_u32 v30, 256, v0               ; t = 0..511
    v_lshlrev_b32 v31, 4, v30
    v_mov_b32 v36, 0
    v_mov_b32 v37, 0
    v_mov_b32 v38, 0
    v_mov_b32 v39, 0
    v_add_u32 v40, {L_EA}, v31
    ds_write_b128 v40, v[36:39]
    ds_write_b128 v40, v[36:39] offset:8192
""")
if OPT["wpf"]:
    E(f"""
    s_lshr_b32 s30, s2, 3
    s_lshl_b32 s30, s30, 2
    v_add_u32 v3, s30, v1
    v_and_b32 v3, 127, v3
    s_lshl_b32 s30, s{S_HALF}, 7
    s_cmp_eq_u32 s3, 4
    s_cselect_b32 s31, 0x8000, 0
    s_add_u32 s30, s30, s31
    v_lshl_add_u32 v3, v3, 8, s30
    s_waitcnt lgkmcnt(0)
    s_cmp_lg_u32 s33, 0
    s_cbranch_scc1 L_nowpf
    s_cmp_eq_u32 s3, 5
    s_cselect_b32 s34, s14, s16
    s_cselect_b32 s35, s15, s17
    s_cmp_eq_u32 s3, 7
    s_cselect_b32 s34, s12, s34
    s_cselect_b32 s35, s13, s35
    s_mov_b64 exec, 0xffff
    global_load_dword v167, v3, s[34:35]
    s_mov_b64 exec, -1
L_nowpf:
    """)
    if OPT["wpf"] == 2:
        E(f"""
        s_cmp_lg_u32 s3, 8
        s_cbranch_scc1 L_notch
        s_mul_i32 s30, s{S_P}, {CHUNK*4}
        v_mov_b32 v3, s30
        v_lshlrev_b32 v5, 1, v3
        v_lshlrev_b32 v6, 21, v1
        s_mov_b64 exec, 1
        global_load_dword v167, v3, s[8:9]
        global_load_dword v166, v5, s[6:7]
        s_mov_b64 exec, 31
        global_load_dword v165, v6, s[20:21] sc1
        s_mov_b64 exec, 3
        global_load_dword v164, v6, s[18:19] sc1
        s_mov_b64 exec, -1
L_notch:
        """)
E(f"""
    s_waitcnt lgkmcnt(0)
    s_barrier                               ; B0
    global_load_lds_dwordx4 v7, s[4:5]{NTX}
    s_add_u32 m0, m0, 0x1000
    s_cmp_lg_u32 s33, 0
    global_load_lds_dwordx4 v8, s[4:5]{NTX}
    s_cbranch_scc1 L_x2
    s_add_u32 m0, m0, 0x1000
    s_nop 0
    global_load_lds_dwordx4 v9, s[4:5]{NTX}
L_x2:
    s_barrier
    v_lshrrev_b32 v5, 3, v1
    v_and_b32 v3, 1, v2
    s_and_b32 s30, s3, 1
    s_lshl_b32 s30, s30, 1
    v_or_b32 v3, s30, v3                    ; sigma
    v_lshlrev_b32 v3, 1, v3
    v_and_b32 v20, 7, v1
    v_xor_b32 v3, v3, v20
    v_lshlrev_b32 v3, 4, v3
    v_lshl_add_u32 v10, v5, 8, v3
    s_sub_u32 s28, s3, 4
    s_lshl_b32 s30, s28, 11
    s_lshl_b32 s31, s{S_HALF}, 7
    s_add_u32 s30, s30, s31
    v_add_u32 v10, s30, v10
    v_add_u32 v11, 0x4000, v10
    s_lshl_b32 s28, s28, 10
    s_add_u32 s34, s16, {128*256}
    s_addc_u32 s35, s17, 0
    s_cmp_lg_u32 s3, 11
    s_cbranch_scc1 L_noc
    v_and_b32 v5, 3, v5
    v_lshlrev_b32 v20, 4, v20
    v_lshl_add_u32 v5, v5, 8, v20
    s_add_u32 s31, s31, {256*256}
    s_mov_b32 m0, {L_C}
    v_add_u32 v5, s31, v5
    global_load_lds_dwordx4 v5, s[16:17]
L_noc:
    s_add_u32 m0, s28, {L_WBV}
""")
for ti, base in enumerate((34, 14)):
    for n in range(2):
        E(f"s_nop 0\nglobal_load_lds_dwordx4 v{10+n}, s[{base}:{base+1}]")
        if not (ti == 1 and n == 1):
            E(f"s_add_u32 m0, m0, 0x2000")
if OPT["wgate"]:
    E(f"""
    v_mov_b32 v7, 0x1000000
    s_mov_b64 exec, 1
    ds_add_u32 v36, v7 offset:{L_CTR}
    s_mov_b64 exec, -1
    """)
STAMP(1)
E(f"""
    v_mov_b32 v32, {NULL_SRC}
    v_mov_b32 v33, v32
    v_mov_b32 v34, v32
    v_mov_b32 v35, v32
""")
def cover(lo, n): return list(range(lo, n - 8192, 8192)) + [n - 8192]
for o in cover(16384, L_EAEND - L_EA): E(f"ds_write_b128 v40, v[36:39] offset:{o}")
for o in cover(0, SRCB): E(f"ds_write_b128 v31, v[32:35] offset:{L_SRC + o}")
E(f"""
    v_and_b32 v32, 3, v30           ; quarter
    v_bfe_u32 v33, v30, 3, 3
    v_lshrrev_b32 v34, 5, v30
    s_and_b32 s30, s3, 3
    s_add_u32 s30, s30, 16
    s_cmp_ge_u32 s3, 8
    s_cselect_b32 s31, 7, 3
    s_cselect_b32 s29, 6, 12
    s_cselect_b64 vcc, -1, 0
    v_and_b32 v33, s31, v33
    v_mov_b32 v35, s30
    v_cndmask_b32 v34, v34, v35, vcc
    v_lshl_add_u32 v32, v34, 2, v32
    v_bfe_u32 v34, v30, 2, 1
    v_mul_u32_u24 v35, {NSTR - SSTR}, v34
    v_mul_u32_u24 v41, {L_NODE - L_SRC}, v34
    v_mul_u32_u24 v42, {L_SRC + 80*SSTR - L_DUM}, v34
    v_lshlrev_b32 v43, 4, v34
    v_add_u32 v35, {SSTR}, v35
    v_add_u32 v41, {L_SRC}, v41
    v_sub_u32 v42, {L_SRC + 80*SSTR}, v42
    v_sub_u32 v43, 16, v43
    v_lshlrev_b32 v33, 2, v33
    v_mad_u32_u24 v41, v32, v35, v41
    v_mad_u32_u24 v41, v33, v43, v41
    v_lshlrev_b32 v35, 5, v35
    v_mul_u32_u24 v34, 6, v43
    v_sub_u32 v35, v35, v34
    v_add_u32 v34, 2, v33
    v_cmp_gt_u32 s[48:49], 6, v33
    v_cmp_gt_u32 s[50:51], 6, v34
    v_cmp_gt_u32 s[52:53], s29, v33
    v_cmp_gt_u32 s[54:55], s29, v34
    v_cndmask_b32 v44, v35, 0, s[48:49]
    v_cndmask_b32 v46, v35, 0, s[50:51]
    v_add_u32 v44, v41, v44
    v_lshl_add_u32 v46, v43, 1, v46
    v_add_u32 v46, v41, v46
    v_add_u32 v45, v44, v43
    v_add_u32 v47, v46, v43
    v_cndmask_b32 v44, v42, v44, s[52:53]
    v_cndmask_b32 v45, v42, v45, s[52:53]
    v_cndmask_b32 v46, v42, v46, s[54:55]
    v_cndmask_b32 v47, v42, v47, s[54:55]
    ds_write_b128 v31, v[44:47] offset:{L_LIST}
    s_cmp_ge_u32 s3, 6
    s_cbranch_scc1 L_pf3
    v_mul_u32_u24 v42, {SSTR}, v30
    v_add_u32 v42, {L_SRC}, v42
    v_lshlrev_b32 v41, 2, v30
    ds_write_b32 v41, v42 offset:{L_CNT}
L_pf3:
    v_bfe_u32 v3, v1, 2, 2                  ; r
    v_lshl_add_u32 v5, v2, 3, v3            ; 8g + r
    v_lshrrev_b32 v3, 1, v3
    v_and_b32 v6, 1, v2
    v_lshl_or_b32 v3, v6, 1, v3             ; sigma
    v_xor_b32 v3, s32, v3
    v_lshlrev_b32 v3, 5, v3
    v_lshl_add_u32 v10, v5, 7, v3
    v_and_b32 v3, 3, v1
    v_lshl_add_u32 v10, v3, 3, v10
    s_mul_i32 s31, s33, {L_WAU - L_WBV}
    s_add_u32 s31, s31, {L_WBV}
    v_add_u32 v10, s31, v10
    v_xor_b32 v3, v2, v4
    v_lshlrev_b32 v3, 4, v3
    v_lshl_add_u32 v12, v4, 8, v3
    v_add_u32 v12, {L_X}, v12
    v_xor_b32 v13, 64, v12
    v_xor_b32 v14, 0x80, v12
    v_xor_b32 v15, 0xc0, v12
    s_mul_i32 s30, s{S_HALF}, {G_HALF}
    s_add_u32 s30, s30, s73
    s_lshl_b32 s31, s32, 6
    s_add_u32 s30, s30, s31
    v_lshlrev_b32 v11, 10, v2
    v_lshl_add_u32 v11, v4, 2, v11
    v_add_u32 v11, s30, v11
    s_lshl_b32 s31, s32, 5
    s_add_u32 s31, s31, {L_NODE}
    v_mul_u32_u24 v16, {NSTR}, v4
    v_lshl_add_u32 v16, v2, 3, v16
    v_add_u32 v16, s31, v16
    s_mov_b32 s40, {f32(-LOG2E)}
    s_mov_b32 s42, {f32(2.0**32)}
    s_mov_b32 s44, 0x07060100
    s_mov_b32 s45, 0x07060302
    s_mov_b32 s46, 0x3f80
    v_mov_b32 v17, {f32(2.0**-100)}
    v_mov_b32 v19, 1
    v_mov_b32 v18, 0
""")
get_tag("g", 160)
E(f"""
    s_waitcnt vmcnt(0)
    s_mov_b64 exec, 1
    ds_add_u32 v18, v19 offset:{L_CTR}
    s_mov_b64 exec, -1
""")
STAMP(2)
lds_wait(L_CTR, 0xff, 8, "g1")
STAMP(3)
NP = 8
RA = 72; RB = RA + 4*NP; RAD = RB + 4*NP
J3N, J12, J3N2, CELL, ROWA, FOUR, L0M, ACC, ENT, CAD = 156, 157, 158, 159, 160, 161, 162, 163, 164, 166
def rec_setup():
    E(f"""
    v_and_b32 v3, 15, v1                    ; j
    v_lshrrev_b32 v2, 4, v1
    v_lshl_add_u32 v{CELL}, v2, 3, v3
    s_lshl_b32 s30, s29, 5
    v_add_u32 v{CELL}, s30, v{CELL}
    s_lshl_b32 s30, s{S_BUCK}, 3
    s_add_u32 s30, s30, {WS_ROW}
    v_lshl_add_u32 v{ROWA}, v{CELL}, 10, s30
    v_cmp_gt_u32 s[66:67], {NP}, v3
    v_cmp_gt_u32 vcc, {NCHUNK}, v{CELL}
    v_mov_b32 v{ENT}, 0
    s_and_b64 s[66:67], s[66:67], vcc
    s_mov_b64 exec, s[66:67]
    global_load_dwordx2 v[{ENT}:{ENT+1}], v{ROWA}, s[20:21] sc1
    s_mov_b64 exec, -1
    v_mul_u32_u24 v{CELL}, {SORTB//4}, v{CELL}
    v_add_u32 v{CELL}, {WS_REC//4}, v{CELL}
    v_mul_u32_u24 v{J12}, 12, v3
    v_mul_u32_u24 v{J3N}, 3, v3
    v_not_b32 v{J3N}, v{J3N}
    v_subrev_u32 v{J3N2}, 48, v{J3N}
    v_subrev_u32 v{L0M}, 1, v3
    v_ashrrev_i32 v{L0M}, 31, v{L0M}
    v_mov_b32 v{FOUR}, 4
    """)
WF = 20; XF = 52; AC = 132
def wreads(ks):
    for t in range(2):
        for rd in range(2):
            r = WF + 16*t + 4*ks + 2*rd
            E(f"ds_read_b64_tr_b16 v[{r}:{r+1}], v10 offset:{t*16384 + ks*4096 + rd*512}")
def xread(rt, ks):
    r = XF + 16*rt + 4*ks
    return f"ds_read_b128 v[{r}:{r+3}], v{12+ks} offset:{rt*4096}"
def mf(rt, ks, transposed):
    for t in range(2):
        a = XF + 16*rt + 4*ks; w = WF + 16*t + 4*ks; d = AC + 8*(rt % 3) + 4*t
        c = "0" if ks == 0 else f"v[{d}:{d+3}]"
        if transposed: a, w = w, a
        E(f"v_mfma_f32_16x16x32_bf16 v[{d}:{d+3}], v[{a}:{a+3}], v[{w}:{w+3}], {c}")
def gemm(transposed, finish, before_first):
    for ks in range(3):
        E(xread(0, ks)); wreads(ks)
    E("s_waitcnt lgkmcnt(10)"); mf(0, 0, transposed)
    E(xread(0, 3)); wreads(3)
    E("s_waitcnt lgkmcnt(10)"); mf(0, 1, transposed)
    for ks in range(4): E(xread(1, ks))
    E("s_waitcnt lgkmcnt(9)"); mf(0, 2, transposed)
    for ks in range(4): E(xread(2, ks))
    E("s_waitcnt lgkmcnt(8)"); mf(0, 3, transposed)
    for ks in range(4): E(xread(3, ks))
    E("s_waitcnt lgkmcnt(8)")
    for ks in range(4):
        mf(1, ks, transposed); E(xread(4, ks))
    E(f"""
    s_mov_b64 exec, 1
    ds_add_u32 v18, v19 offset:{L_RD}
    s_mov_b64 exec, -1
    """)
    before_first()
    finish(0)
    E("s_waitcnt lgkmcnt(0)")
    for rt in range(2, 5):
        for ks in range(4): mf(rt, ks, transposed)
        finish(rt-1)
    finish(4)
def pack(rt):
    b = AC + 8*(rt % 3); h = b + 4
    for r in range(4): E(f"v_mul_f32 v{b+r}, s40, v{b+r}")
    for r in range(4): E(f"v_fma_f32 v{h+r}, v{h+r}, s42, v17")
    E(f"""
    v_cvt_pk_bf16_f32 v4, v{b}, v{b+1}
    v_cvt_pk_bf16_f32 v5, v{b+2}, v{b+3}
    v_xor_b32 v2, 0x80008000, v4
    v_xor_b32 v3, 0x80008000, v5
    v_sub_u32_sdwa v{h}, v{h}, sext(v2) dst_sel:DWORD dst_unused:UNUSED_PAD src0_sel:DWORD src1_sel:WORD_0
    v_sub_u32_sdwa v{h+1}, v{h+1}, sext(v2) dst_sel:DWORD dst_unused:UNUSED_PAD src0_sel:DWORD src1_sel:WORD_1
    v_sub_u32_sdwa v{h+2}, v{h+2}, sext(v3) dst_sel:DWORD dst_unused:UNUSED_PAD src0_sel:DWORD src1_sel:WORD_0
    v_sub_u32_sdwa v{h+3}, v{h+3}, sext(v3) dst_sel:DWORD dst_unused:UNUSED_PAD src0_sel:DWORD src1_sel:WORD_1
    """)
    w = (OPT["gp"] >> (4*(4-rt))) & 15 if OPT["gp"] else OPT["gpace"]
    if 0 <= w < 4*rt: E(f"s_waitcnt vmcnt({w})")
    if OPT["ghold"] == rt + 1:
        E("v_mov_b32 v6, v2\nv_mov_b32 v7, v3"); lds_wait(L_CTR, 0xff00, 0x400, "gh", sleep=1); E("v_mov_b32 v2, v6\nv_mov_b32 v3, v7")
    for r in range(4):
        E(f"v_perm_b32 v{h+r}, v{h+r}, v{4 + (r>>1)}, s{44 + (r&1)}")
        if OPT["gwin"] >= 0: E(f"s_waitcnt vmcnt({OPT['gwin']})")
        E(f"global_store_dword v11, v{h+r}, s[20:21] offset:{256*r} sc1")
    if rt < 4: E("v_add_u32 v11, 0x1000, v11")
def fin(rt):
    a = AC + 8*(rt % 3); u = a + 4
    for r in range(4): E(f"v_mul_f32 v{a+r}, s40, v{a+r}")
    for r in range(4): E(f"v_mul_f32 v{u+r}, s42, v{u+r}")
    E(f"""
    v_cvt_pk_bf16_f32 v{a}, v{a}, v{a+1}
    v_cvt_pk_bf16_f32 v{a+1}, v{a+2}, v{a+3}
    v_cvt_f64_f32 v[2:3], v{u}
    v_cvt_f64_f32 v[4:5], v{u+1}
    v_cvt_f64_f32 v[6:7], v{u+2}
    v_cvt_f64_f32 v[8:9], v{u+3}
    ds_write_b64 v16, v[{a}:{a+1}] offset:512
    ds_write2_b64 v16, v[2:3], v[4:5] offset0:0 offset1:16
    ds_write2_b64 v16, v[6:7], v[8:9] offset0:32 offset1:48
    """)
    if rt < 4: E(f"v_add_u32 v16, {16*NSTR}, v16")
E(f"""
    s_cmp_lg_u32 s33, 0
    s_cbranch_scc1 L_gemm2
    s_cmp_lg_u32 s{S_SAFE}, 0
    s_cbranch_scc1 L_nog1
    s_setprio 2
""")
gemm(False, pack, lambda: lds_wait(L_CTR, {1: 0x80000, 2: 0xc0000}[OPT["hold"]], 0, "hold", sleep=1, ne=True) if OPT["hold"] else None)
E("s_setprio 0")
if OPT["gate"]:
    E(f"""
    s_mov_b64 exec, 1
    ds_add_u32 v18, v19 offset:{L_GST}
    s_mov_b64 exec, -1
    """)
STAMP(4)
main_consts()
E(f"""
    s_lshl_b32 s30, s{S_P}, 7
    s_add_u32 s30, s30, {WS_FL2}
    v_mov_b32 v60, s30
    v_mov_b32 v62, s{S_TAG}
    v_mov_b32 v63, s{S_TAG+1}
    v_mov_b32 v2, 0
    v_mov_b32 v3, 1
    s_lshl_b32 s30, s32, 13
    s_lshl_b32 s31, s{S_HALF}, 7
    s_add_u32 s30, s30, s31
    s_add_u32 s30, s30, {WS_FL2}
    v_lshl_add_u32 v64, v1, 8, s30
    s_mul_i32 s30, s32, {2560*256}
    s_lshr_b32 s31, s2, 3
    s_mul_i32 s31, s31, {160*128}
    s_add_u32 s30, s30, s31
    v_lshl_add_u32 v65, v1, 7, s30
    v_min_u32 v65, {G_HALF - 128}, v65
    s_mul_i32 s30, s{S_HALF}, {G_HALF}
    v_add_u32 v65, s30, v65
    s_mov_b64 exec, 1
    s_waitcnt vmcnt(0)
    ds_add_rtn_u32 v61, v2, v3 offset:{L_DONE2}
    s_waitcnt lgkmcnt(0)
    v_readfirstlane_b32 s30, v61
    s_cmp_lg_u32 s30, 3
    s_cbranch_scc1 L_nofl
    global_store_dwordx2 v60, v[62:63], s[20:21] sc1
    ds_add_u32 v2, v3 offset:{L_DONE2}
L_nofl:
""")
STAMP(5)
if OPT["p2gate"]:
    E("s_mov_b64 exec, -1")
    lds_wait(L_CTR, 0xff0000, 0x080000, "pg", sleep=1)
    E("s_mov_b32 exec_hi, 0")
if OPT["p2wait"]: E(f"s_sleep {OPT['p2wait']}")
STAMP(6)
def gready():
    if OPT["gpf"]:
        E(f"""
        {"s_bfm_b64 exec, %d, 0" % OPT["gpf"] if OPT["gpf"] < 64 else "s_mov_b64 exec, -1"}
        global_load_dword v35, v65, s[20:21] sc1
        """)
    E(f"""
    s_mov_b64 exec, 1
    v_mov_b32 v2, 0
    v_mov_b32 v3, 1
    ds_add_u32 v2, v3 offset:{L_GOK}
    """)
E(f"""
    s_cmp_eq_u32 s32, 3
    s_cselect_b32 exec_lo, 0x1fffffff, -1
    {"" if OPT["p1st"] else "s_mov_b64 s[66:67], exec"}
    {"" if OPT["p1st"] else "s_branch L_p2n"}
    global_load_dwordx2 v[66:67], v64, s[20:21] sc1
    s_waitcnt vmcnt(0)
    v_cmp_ne_u64 s[66:67], s[{S_TAG}:{S_TAG+1}], v[66:67]
    s_cmp_lg_u64 s[66:67], 0
    s_cbranch_scc1 L_p2n
""")
gready()
E("L_p2n:\ns_mov_b64 exec, -1")
STAMP(7)
E(f"""
    s_branch L_b4
L_nog1:
    s_mov_b64 exec, 1
    ds_add_u32 v18, v19 offset:{L_RD}
    s_mov_b64 exec, -1
    s_branch L_rec
L_gemm2:
""")
E(f"""
    v_lshrrev_b32 v5, 3, v1
    v_bfe_u32 v3, v1, 4, 1
    v_lshlrev_b32 v3, 1, v3
    v_and_b32 v4, 7, v1
    v_xor_b32 v3, v3, v4
    v_lshlrev_b32 v3, 4, v3
    v_lshl_add_u32 v6, v5, 8, v3
    s_lshl_b32 s30, s{S_HALF}, 7
    s_and_b32 s31, s3, 1
    s_lshl_b32 s31, s31, 14
    s_add_u32 s30, s30, s31
    v_add_u32 v6, s30, v6
    v_xor_b32 v7, 64, v6
    v_add_u32 v8, 2048, v6
    v_add_u32 v9, 3072, v7
    v_add_u32 v7, 1024, v7
    s_lshl_b32 s30, s32, 13
    s_add_u32 m0, s30, {L_WAU}
    s_cmp_lt_u32 s32, 2
    s_cselect_b32 s34, s16, s12
    s_cselect_b32 s35, s17, s13
    global_load_lds_dwordx4 v6, s[34:35]
    global_load_lds_dwordx4 v7, s[34:35] offset:1024
    global_load_lds_dwordx4 v8, s[34:35] offset:2048
    global_load_lds_dwordx4 v9, s[34:35] offset:3072
    s_add_u32 m0, m0, 4096
    s_add_u32 s34, s34, 8192
    s_addc_u32 s35, s35, 0
    global_load_lds_dwordx4 v6, s[34:35]
    global_load_lds_dwordx4 v7, s[34:35] offset:1024
    global_load_lds_dwordx4 v8, s[34:35] offset:2048
    global_load_lds_dwordx4 v9, s[34:35] offset:3072
""")
for rt in range(5):
    for ks in range(4): E(xread(rt, ks))
E(f"""
    s_mov_b64 exec, 1
    ds_add_u32 v18, v19 offset:{L_RD}
    s_mov_b64 exec, -1
""")
E(f"""
    s_mov_b64 exec, 1
    s_waitcnt vmcnt(0)
    ds_add_u32 v18, v19 offset:{L_RD}
    s_mov_b64 exec, -1
    s_sub_u32 s29, s3, 4
""")
rec_setup()
lds_wait(L_RD, 0xff, 12, "rd")
for ks in range(4): wreads(ks)
for ks in range(4):
    E(f"s_waitcnt lgkmcnt({12 - 4*ks})"); mf(0, ks, True)
for rt in range(1, 5):
    for ks in range(4): mf(rt, ks, True)
    fin(rt-1)
fin(4)
STAMP(4)
E(f"""
    s_branch L_rec
L_sort:
""")
STAMP(1)
E(f"""
    s_mov_b32 s40, {f32(-LOG2E)}
    s_mov_b32 s46, 0x3f80
    s_cmp_lg_u32 s{S_SAFE}, 0
    s_cbranch_scc1 L_sortskip
    v_mov_b32 v21, 1
    v_mov_b32 v20, 3
    s_mov_b32 s31, 52429
    s_movk_i32 s32, -20
    v_lshlrev_b32 v9, 3, v1
    v_lshlrev_b32 v33, 4, v0
    s_mul_i32 s30, s{S_P}, {SORTB}
    s_add_u32 s30, s30, {WS_REC + 4096}
    v_add_u32 v32, s30, v33
    v_add_u32 v34, 8192, v32
    s_lshl_b32 s30, s{S_P}, 10
    s_add_u32 s30, s30, {WS_ROW}
    v_lshl_add_u32 v42, v1, 4, s30
    s_mov_b32 s34, {POLL_MAX}
    s_setprio 3
    s_waitcnt vmcnt(1)
""")
STAMP(2)
FSTAMP(1)
for i in range(5):
    E(f"""
    v_mul_u32_u24 v{22+i}, s31, v{4+i}
    v_lshrrev_b32 v{22+i}, 22, v{22+i}
    v_lshlrev_b32 v{22+i}, 2, v{22+i}        ; bucket*4
    ds_add_rtn_u32 v{27+i}, v{22+i}, v20 offset:{L_SCNT}
    """)
E(f"""
    s_mov_b64 exec, 1
    s_cmp_lg_u32 s3, 0
    s_cbranch_scc1 L_notag
    s_waitcnt vmcnt(0)
    ds_write_b32 v48, v43 offset:{L_SCNT + 125*4}
L_notag:
    ds_add_u32 v48, v21 offset:{L_SCNT + 127*4}
    s_mov_b64 exec, -1
""")
if OPT["ewhen"] == 1: E(f"""
    global_load_dwordx4 v[12:15], v3, s[8:9]{NTE}
    global_load_dword v16, v18, s[8:9]{NTE}
    global_load_dwordx4 v[52:55], v10, s[6:7]{NTE}
    global_load_dwordx4 v[56:59], v10, s[6:7] offset:16{NTE}
    global_load_dwordx2 v[60:61], v11, s[6:7]{NTE}
""")
E(f"""
L_s1:
    ds_read_b32 v38, v48 offset:{L_SCNT + 127*4}
    ds_read_b64 v[36:37], v9 offset:{L_SCNT}
    s_sub_u32 s34, s34, 1
    s_cbranch_scc1 L_s1d
    s_waitcnt lgkmcnt(0)
    v_readfirstlane_b32 s30, v38
    s_cmp_lg_u32 s30, 4
    s_cbranch_scc1 L_s1
L_s1d:
""")
FSTAMP(2)
E(f"""
    v_add3_u32 v39, v36, v37, 2
    v_add3_u32 v38, v36, v37, 2
    v_readlane_b32 s{S_TAGRAW}, v37, 62
""")
fill = []
for i in range(5):
    fill += [f"v_mad_i32_i24 v{4+i}, v{22+i}, s32, v{4+i}", f"v_lshlrev_b32 v{4+i}, 24, v{4+i}"]
for k, m in enumerate(SCAN):
    E(f"v_add_u32_dpp v39, v39, v39 {m}")
    for x in fill[2*k:2*k+2]: E(x)
E(f"""
    v_sub_u32 v40, v39, v38
    v_add3_u32 v41, v40, v36, 1
    s_mov_b32 s30, {L_SORT}
    v_lshl_add_u32 v38, v40, 2, s30
    v_lshl_add_u32 v39, v41, 2, s30
    ds_write_b64 v9, v[38:39] offset:{L_SOFF}
""")
for i in range(5):
    E(f"ds_read_b32 v{22+i}, v{22+i} offset:{L_SOFF}")
finish_tag()
E(f"""
    s_cmp_lg_u32 s3, 0
    s_cbranch_scc1 L_nopub
    s_and_b32 s35, s{S_TAG+1}, 0xff000000
    v_mov_b32 v45, s{S_TAG}
    v_mov_b32 v47, s{S_TAG}
    v_lshl_or_b32 v44, v36, 12, v40
    v_lshl_or_b32 v46, v37, 12, v41
    v_or_b32 v44, s35, v44
    v_or_b32 v46, s35, v46
    global_store_dwordx4 v42, v[44:47], s[20:21] sc1
    {"s_waitcnt vmcnt(1)" if OPT["ewhen"] == 1 else ""}
    s_branch {"L_pub" if OPT["ewhen"] == 1 else "L_nochk"}
L_nopub:
    s_cmp_lg_u32 s3, 1
    s_cbranch_scc1 L_nochk
    v_mov_b32 v44, s{S_TAG+1}
    s_mov_b32 exec_hi, 0x7fffffff
    ds_add_u32 v38, v44
    ds_add_u32 v39, v44
    s_mov_b32 exec_hi, -1
L_nochk:
""")
if OPT["ewhen"] == 2: E(f"""
    global_load_dwordx4 v[12:15], v3, s[8:9]{NTE}
    global_load_dword v16, v18, s[8:9]{NTE}
    global_load_dwordx4 v[52:55], v10, s[6:7]{NTE}
    global_load_dwordx4 v[56:59], v10, s[6:7] offset:16{NTE}
    global_load_dwordx2 v[60:61], v11, s[6:7]{NTE}
""")
E(f"""
    s_waitcnt vmcnt(0)
L_pub:
""")
STAMP(4)
FSTAMP(3)
for i in range(5): E(f"v_lshl_or_b32 v{4+i}, v{12+i}, 8, v{4+i}")
E("s_waitcnt lgkmcnt(0)")
for i in range(5):
    E(f"""
    v_lshl_add_u32 v{27+i}, v{27+i}, 2, v{22+i}
    v_add3_u32 v{12+i}, v{52+2*i}, v{53+2*i}, v{4+i}
    ds_write2_b32 v{27+i}, v{52+2*i}, v{53+2*i} offset0:2 offset1:3
    ds_write_b32 v{27+i}, v{4+i} offset:4
    ds_sub_u32 v{22+i}, v{12+i}
    """)
E(f"""
    s_mov_b64 exec, 1
    ds_add_u32 v48, v21 offset:{L_SCNT + 126*4}
    s_mov_b64 exec, -1
""")
FSTAMP(4)
E(f"""
    s_mov_b32 s34, {POLL_MAX}
L_s2:
    ds_read_b32 v38, v48 offset:{L_SCNT + 126*4}
    {f"ds_read_b32 v39, v48 offset:{L_CTR}" if OPT["wgate"] else ""}
    ds_read_b128 v[72:75], v33 offset:{L_SORT}
    s_sub_u32 s34, s34, 1
    s_cbranch_scc1 L_s2d
    s_waitcnt lgkmcnt(1)
    v_readfirstlane_b32 s30, v38
""")
if OPT["wgate"]:
    E(f"""
    v_readfirstlane_b32 s31, v39
    s_lshr_b32 s31, s31, 24
    s_add_u32 s30, s30, s31
    """)
E(f"""
    s_cmp_lg_u32 s30, {12 if OPT["wgate"] else 4}
    s_cbranch_scc1 L_s2
L_s2d:
""")
FSTAMP(5)
E(f"""
    ds_read_b128 v[76:79], v33 offset:{L_SORT + 4096}
    ds_read_b128 v[80:83], v33 offset:{L_SORT + 8192}
    ds_read_b128 v[84:87], v33 offset:{L_SORT + 12288}
    s_waitcnt lgkmcnt(3)
    global_store_dwordx4 v32, v[72:75], s[20:21] offset:-4096 sc1
    s_waitcnt lgkmcnt(2)
    global_store_dwordx4 v32, v[76:79], s[20:21] sc1
    s_waitcnt lgkmcnt(1){f" vmcnt({OPT['rpace']})" if OPT['rpace'] >= 0 else ""}
    global_store_dwordx4 v34, v[80:83], s[20:21] offset:-4096 sc1
    s_cmp_eq_u32 s3, 3
    s_cselect_b32 exec_hi, 0, -1
    s_waitcnt lgkmcnt(0){f" vmcnt({OPT['rpace']})" if OPT['rpace'] >= 0 else ""}
    global_store_dwordx4 v34, v[84:87], s[20:21] sc1
    s_mov_b32 exec_hi, -1
""")
FSTAMP(6)
for k in range(4): E(f"ds_write_b128 v33, v[48:51] offset:{L_SORT + 4096*k}")
STAMP(3)
FSTAMP(7)
E(f"""
    s_branch L_sortdone
L_sortskip:
    s_waitcnt vmcnt(0)
L_sortdone:
    s_mov_b32 s29, s3
""")
rec_setup()
E(f"""
L_rec:
""")
lds_wait(L_CTR, 0xff, 8, "r0")
main_consts()
STAMP(5)
E(f"""
    s_cmp_ge_u32 s3, 4
    s_cbranch_scc1 L_nod2
    v_mov_b32 v2, 0
    v_mov_b32 v3, 0x100
    s_mov_b64 exec, 1
    s_waitcnt vmcnt(0)
    ds_add_u32 v2, v3 offset:{L_CTR}
    s_mov_b64 exec, -1
L_nod2:
    s_cmp_lg_u32 s{S_SAFE}, 0
    s_cbranch_scc1 L_recskip
    s_lshr_b32 s35, s{S_TAG+1}, 24
    s_mov_b64 exec, s[66:67]
    s_mov_b32 s34, {POLL_MAX}
    s_branch L_p1c
L_p1:
    global_load_dwordx2 v[{ENT}:{ENT+1}], v{ROWA}, s[20:21] sc1
L_p1c:
    s_sub_u32 s34, s34, 1
    s_cbranch_scc1 L_toobig
    s_waitcnt vmcnt(0)
    v_cmp_ne_u32 vcc, s{S_TAG}, v{ENT+1}
    v_cmp_ne_u32_sdwa s[48:49], v{ENT}, s35 src0_sel:BYTE_3 src1_sel:DWORD
    s_or_b64 exec, vcc, s[48:49]
    s_cbranch_scc1 L_p1
    s_mov_b64 exec, -1
""")
STAMP(6)
if OPT["cnt"]: E(f"s_sub_u32 s{ST0+2}, {POLL_MAX+1}, s34\ns_mov_b32 s34, {POLL_MAX}")
E(f"""
    v_and_b32 v{CAD}, 0xfff, v{ENT}
    v_bfe_u32 v{ENT}, v{ENT}, 12, 12            ; 3*count
    v_add_lshl_u32 v{CAD}, v{CAD}, v{CELL}, 2
    v_cmp_ne_u32 vcc, 0, v{ENT}
    s_sub_u32 s30, 0, s{S_TAG+1}
    v_mov_b32 v2, s30
    v_cndmask_b32 v{ENT+1}, 0, v2, vcc
    v_cmp_lt_u32 vcc, 96, v{ENT}
    v_cmp_lt_u32 s[68:69], 48, v{ENT}
    s_cbranch_vccnz L_toobig
""")
for p in range(NP):
    E(f"""
    v_add_co_u32_dpp v2, vcc, v{ENT}, v{J3N} row_newbcast:{p} row_mask:0xf bank_mask:0xf
    v_add_u32_dpp v{RAD+p}, v{CAD}, v{J12} row_newbcast:{p} row_mask:0xf bank_mask:0xf
    s_mov_b64 s[{48+2*p}:{49+2*p}], vcc
    """)
lds_wait(L_CTR, 0xff00, 0x400, "r1")
if OPT["gate"]: lds_wait(L_GST, 0xff, 4, "gt")
if OPT["gate2"]:
    E("s_cmp_lt_u32 s3, 4\ns_cbranch_scc1 L_wd_g2")
    lds_wait(L_DONE2, 0xff, 5, "g2")
E(f"""
    s_or_b32 s68, s68, s69
    s_lshr_b32 s69, s68, 16
    s_or_b32 s68, s68, s69
""")
def mask2(p): return f"v_add_co_u32_dpp v2, vcc, v{ENT}, v{J3N2} row_newbcast:{p} row_mask:0xf bank_mask:0xf"
def loads(ps, lab):
    E(f"s_and_b32 s30, s68, {sum(1 << p for p in ps)}\ns_cbranch_scc0 L_nx{lab}")
    for p in ps:
        r = RB + 4*p
        E(f"""
        s_bitcmp1_b32 s68, {p}
        s_cbranch_scc0 L_nx{lab}{p}
        {mask2(p)}
        s_mov_b64 exec, vcc
        global_load_dwordx4 v[{r}:{r+3}], v{RAD+p}, s[20:21] offset:192 sc1
        s_mov_b64 exec, -1
L_nx{lab}{p}:
        """)
    E(f"L_nx{lab}:")
    for p in ps:
        r = RA + 4*p
        E(f"""
        s_mov_b64 exec, s[{48+2*p}:{49+2*p}]
        global_load_dwordx4 v[{r}:{r+3}], v{RAD+p}, s[20:21]{SC1 if (OPT["rsc1"] or lab != "m") else ""}
        """)
    E("s_mov_b64 exec, -1")
loads(range(NP), "m")
def issued():
    if OPT["p2gate"]:
        E(f"""
        v_mov_b32 v2, 0
        v_mov_b32 v3, 0x10000
        s_mov_b64 exec, 1
        ds_add_u32 v2, v3 offset:{L_CTR}
        s_mov_b64 exec, -1
        """)
if not OPT["sig"]: issued()
STAMP(7)
def rank(r, m):
    E(f"""
    s_mov_b64 exec, {m}
    v_mul_u32_u24_sdwa v{r}, v{FOUR}, v{r+1} dst_sel:DWORD dst_unused:UNUSED_PAD src0_sel:DWORD src1_sel:BYTE_3
    v_and_b32 v{r+1}, {OPT['srcmask']}, v{r+1}
    ds_add_rtn_u32 v{r}, v{r}, v{FOUR} offset:{L_CNT}
    """)
def put(r, m):
    E(f"""
    s_mov_b64 exec, {m}
    v_lshlrev_b32 v2, 1, v{r}
    ds_write_b32 v{r}, v{r+1}
    ds_write_b64 v2, v[{r+2}:{r+3}] offset:{L_EA - 2*L_SRC}
    """)
retries = []
pending = []
for gi, grp in enumerate(((0, 1, 2, 3), (4, 5), (6, 7))):
    bits = sum(1 << p for p in grp); m32 = bits | (bits << 16)
    E(f"""
L_ck{gi}:
    s_mov_b32 vcc_lo, {m32}
    s_mov_b32 vcc_hi, {m32}
    v_cndmask_b32 v{ACC}, 0, v{ENT+1}, vcc
    s_and_b32 s30, s68, {bits}
    s_cbranch_scc1 L_xa{gi}
L_xb{gi}:
    """)
    def xacc():
        E(f"L_xa{gi}:\ns_waitcnt vmcnt({NP})")
        for p in grp:
            r = RB + 4*p
            E(f"""
            {mask2(p)}
            s_mov_b64 exec, vcc
            v_add3_u32 v{ACC}, v{ACC}, v{r+1}, v{r+2}
            v_add_u32 v{ACC}, v{ACC}, v{r+3}
            s_mov_b64 exec, -1
            """)
        E(f"s_branch L_xb{gi}")
    emit_to(outofline, xacc)
    for p in grp:
        r = RA + 4*p
        E(f"""
        s_waitcnt vmcnt({NP-1-p})
        s_mov_b64 exec, s[{48+2*p}:{49+2*p}]
        v_and_b32 v{r}, v{r}, v{L0M}
        v_add3_u32 v{ACC}, v{ACC}, v{r+2}, v{r+3}
        v_add3_u32 v{ACC}, v{ACC}, v{r}, v{r+1}
        """)
    E("s_mov_b64 exec, -1\ns_nop 0")
    for k in (1, 2, 4, 8):
        E(f"v_add_u32_dpp v{ACC}, v{ACC}, v{ACC} row_ror:{k} row_mask:0xf bank_mask:0xf")
        if k < 8: E("s_nop 1")
    E(f"v_cmp_ne_u32 vcc, 0, v{ACC}\ns_cbranch_vccnz L_rt{gi}")
    if OPT["rst"]: STAMP(1+gi)
    if OPT["sig"] == gi + 1: issued()
    def retry():
        E(f"L_rt{gi}:\ns_sub_u32 s34, s34, 1\ns_cbranch_scc1 {'L_toobig' if gi < OPT['sig'] else 'L_giveup'}")
        loads(grp, f"r{gi}_")
        E(f"s_waitcnt vmcnt(0)\ns_branch L_ck{gi}")
    emit_to(outofline, retry)
    for p in grp: rank(RA + 4*p, f"s[{48+2*p}:{49+2*p}]")
    E(f"s_and_b32 s30, s68, {bits}\ns_cbranch_scc1 L_ya{gi}\nL_yb{gi}:")
    def xput():
        E(f"L_ya{gi}:")
        for p in grp:
            r = RB + 4*p
            E(f"""
            s_bitcmp1_b32 s68, {p}
            s_cbranch_scc0 L_yn{p}
            s_mov_b64 exec, -1
            {mask2(p)}
            """)
            rank(r, "vcc")
            E("s_waitcnt lgkmcnt(0)")
            put(r, "vcc")
            E(f"L_yn{p}:")
        E(f"s_branch L_yb{gi}")
    emit_to(outofline, xput)
    for k, p in enumerate(grp):
        E(f"s_waitcnt lgkmcnt({len(grp) - 1 - k + 2*k})")
        put(RA + 4*p, f"s[{48+2*p}:{49+2*p}]")
    E("s_mov_b64 exec, -1")
E(f"""
    {f"s_sub_u32 s{ST0+4}, {POLL_MAX+1}, s34" if OPT["cnt"] else ""}
    s_branch L_b4
L_toobig:
    s_mov_b64 exec, -1
""")
issued()
E(f"""
L_giveup:
    v_mov_b32 v2, 0
    ds_write_b32 v2, v{FOUR} offset:{L_FLAG}
L_recskip:
    s_waitcnt vmcnt(0)
L_b4:
    s_setprio {OPT["p0"] if OPT["prio"] == 2 else 0}
    s_mul_i32 s30, s{S_HALF}, {G_HALF}
    {f"s_add_u32 s30, s30, {WS0}" if WS0 else ""}
    s_add_u32 s36, s20, s30
    s_addc_u32 s37, s21, 0
    s_mov_b32 s38, {OPT['nrec'] or G_HALF}
    s_mov_b32 s39, 0x20000
    s_mov_b32 s44, 128
    s_mov_b32 s45, 128
    ds_read_b128 v[60:63], v{LP}
    ds_read_b64 v[{AG}:{AG+1}], v{LP} offset:64
    ds_read_b64 v[{WN2}:{WN2+1}], v{LP} offset:72
    ds_read_b32 v{WE}, v{LP+1}
    s_waitcnt lgkmcnt(0)
    v_lshl_add_u64 v[{AG}:{AG+1}], v[{AG}:{AG+1}], 0, v[{LN8}:{LN8+1}]
    v_lshl_add_u32 v{WE}, v{WE}, 1, v{EAC}
""")
if OPT["warm"]:
    E(f"""
    s_barrier
    s_lshr_b32 s30, s2, 3
    s_mul_i32 s30, s30, 98304
    v_lshl_add_u32 v2, v0, 7, s30
    buffer_load_dword v3, v2, s[36:39], 0 offen sc1
    s_waitcnt vmcnt(0)
    s_sleep 40
    """)
STAMP(8)
E(f"""
    s_barrier                               ; B4
    s_cmp_lg_u32 s{S_SAFE}, 0
    s_cbranch_scc1 L_safe
    ds_read_b128 v[{T}:{T+3}], v60
    ds_read_b128 v[{T+4}:{T+7}], v61
    ds_read_b64 v[{XA}:{XA+1}], v{AG} offset:512
    ds_read_b64 v[{EA}:{EA+1}], v{WE}
    s_lshr_b32 s30, s3, 2
    s_cmp_lg_u32 s30, 1
    s_cbranch_scc1 L_nopoll
    s_mov_b64 exec, s[66:67]
    s_cbranch_execz L_p2e
    s_mov_b32 s31, {POLL_MAX}
L_p2:
    global_load_dwordx2 v[66:67], v64, s[20:21] sc1
    s_sub_u32 s31, s31, 1
    s_cbranch_scc1 L_p2d
    s_waitcnt vmcnt(0)
    v_cmp_ne_u64 vcc, s[{S_TAG}:{S_TAG+1}], v[66:67]
    s_and_b64 exec, exec, vcc
    s_cbranch_scc0 L_p2d
    {f"s_sleep {OPT['p2sleep']}" if OPT['p2sleep'] else ""}
    s_branch L_p2
L_p2d:
""")
gready()
E(f"""
L_p2e:
    s_mov_b64 exec, -1
L_nopoll:
    s_cmp_lt_u32 s3, {NW-2}
    s_cbranch_scc1 L_nobuild
    v_lshlrev_b32 v2, 3, v1
    v_mov_b32 v3, 0
    ds_read_b64 v[72:73], v2 offset:{L_CNT}
    ds_read_b32 v79, v3 offset:{L_FLAG}
    v_mul_u32_u24 v74, {2*SSTR}, v1
    v_add_u32 v74, {L_SRC + 96}, v74
    v_add_u32 v75, {SSTR}, v74
    v_mul_u32_u24 v82, {2*NSTR}, v1
    s_and_b32 s32, s3, 1
    s_mul_i32 s30, s32, {NSTR}
    s_add_u32 s30, s30, {L_NODE}
    v_add_u32 v82, s30, v82
    v_mov_b32 v83, v82
    s_mul_i32 s30, s32, {SSTR}
    v_add_u32 v80, s30, v74
    v_add_u32 v81, 16, v80
    s_waitcnt lgkmcnt(0)
    v_sub_u32 v72, v72, v74 clamp
    v_sub_u32 v73, v73, v75 clamp
    v_max_u32 v76, v72, v73
    v_cmp_lt_u32 vcc, 160, v76
    v_cmp_ne_u32 s[48:49], 0, v79
    v_add_u32 v74, 12, v72
    v_add_u32 v75, 12, v73
    s_or_b64 vcc, vcc, s[48:49]
    s_cbranch_scc1 L_bad
    v_add_u32 v72, 28, v72
    v_add_u32 v73, 28, v73
    v_lshrrev_b32 v74, 5, v74
    v_lshrrev_b32 v75, 5, v75
    v_lshrrev_b32 v72, 5, v72
    v_lshrrev_b32 v73, 5, v73
    v_sub_u32 v72, v72, v74
    v_sub_u32 v73, v73, v75
    v_lshl_or_b32 v72, v72, 16, v74
    v_lshl_or_b32 v73, v73, 16, v75
    v_add_u32 v76, v72, v73
    v_add_u32 v77, v72, v73
""")
scan(77)
E(f"""
    s_cmp_eq_u32 s32, 0
    s_cselect_b64 vcc, -1, 0
    v_readlane_b32 s30, v77, 63
    v_cndmask_b32 v76, v73, v76, vcc
    v_cndmask_b32 v72, v73, v72, vcc
    v_sub_u32 v77, v77, v76
    s_and_b32 s31, s30, 0xffff
    s_add_u32 s31, s31, 3
    s_lshr_b32 s31, s31, 2
    s_add_u32 s30, s30, 0x30000
    s_lshr_b32 s30, s30, 18
    s_lshl_b32 s33, s31, 1
    s_add_u32 s33, s33, s30
    s_cmp_gt_u32 s33, 112
    s_cbranch_scc1 L_bad
    s_lshl_b32 s30, s30, 8
    s_or_b32 s29, s30, s31
    v_and_b32 v74, 0xffff, v72
    v_and_b32 v76, 0xffff, v77
    s_mov_b32 s34, {L_LISTC}
    s_mov_b32 s35, {L_LIST + 384}
""")
def slotaddr():
    E(f"""
    v_add_u32 v78, 16, v76
    v_bfe_u32 v79, v76, 2, 2
    v_lshl_add_u32 v79, v79, 10, s34
    v_lshrrev_b32 v84, 5, v78
    v_lshl_add_u32 v79, v84, 7, v79
    v_bfe_u32 v84, v78, 4, 1
    v_lshl_add_u32 v79, v84, 3, v79
    v_lshrrev_b32 v84, 2, v76
    v_cmp_gt_u32 vcc, 32, v76
    v_lshl_add_u32 v84, v84, 9, s35
    v_and_b32 v78, 3, v76
    v_cndmask_b32 v79, v79, v84, vcc
    v_lshl_add_u32 v79, v78, 4, v79
    """)
E("""
L_bf:
    v_cmp_ne_u32 vcc, 0, v74
    s_and_b64 exec, exec, vcc
    s_cbranch_execz L_bfd
""")
slotaddr()
E(f"""
    ds_write_b64 v79, v[80:81]
    ds_write_b64 v79, v[82:83] offset:64
    v_add_u32 v80, 32, v80
    v_add_u32 v81, 32, v81
    v_add_u32 v76, 1, v76
    v_subrev_u32 v74, 1, v74
    s_branch L_bf
L_bfd:
    s_mov_b64 exec, -1
    v_lshrrev_b32 v77, 16, v77
    v_lshrrev_b32 v76, 3, v77
    v_add_u32 v76, s31, v76
    v_and_b32 v78, 3, v77
    v_lshl_add_u32 v76, v76, 2, v78
""")
slotaddr()
E(f"""
    v_and_b32 v78, 4, v77
    v_add_u32 v79, v79, v78
    v_cmp_lt_u32 vcc, 0xffff, v72
    s_mov_b64 exec, vcc
    ds_write2_b32 v79, v80, v82 offset0:0 offset1:16
    s_mov_b64 exec, -1
    s_mul_i32 s29, s29, s32
    s_add_u32 s29, s29, 0x10000
    s_branch L_built
L_bad:
    s_mov_b32 s29, 0x1010000
L_built:
    v_mov_b32 v2, s29
    s_mov_b64 exec, 1
    ds_add_u32 v3, v2 offset:{L_NST}
    s_add_u32 s30, s{S_P}, s32
    s_cmp_lg_u32 s30, 0
    s_cbranch_scc1 L_notw
    v_mov_b32 v2, s{S_TAG}
    v_mov_b32 v3, {WS_TAG}
    global_store_dword v3, v2, s[20:21] sc1
L_notw:
    s_mov_b64 exec, -1
L_nobuild:
    s_waitcnt lgkmcnt(0)
""")
assert DIST == 2 and not EARLY
E(m_a(D0))
for o in range(T, T+8, 2): E(oadd(o))
E(m_e(D0, 0))
lds_wait(L_GOK, 0xff, 4, "gok")
if OPT["stamps"] == 2: E(f"s_memrealtime s[{ST0+16}:{ST0+17}]")
if not OPT["nogather"]:
    for q in range(8): E(gload(G + 4*q, T+q))
STAMP(9)
E(f"""
    s_mov_b32 s31, {POLL_MAX}
    s_waitcnt vmcnt(4)
""")
E(m_s(D0, A1, G)); E(m_s(D0, A2, G+8))
E(f"""
L_wn:
    ds_read_b32 v3, v2 offset:{L_NST}
    ds_read_b128 v[{WS4}:{WS4+3}], v{LP} offset:{128*((DIST+EARLY)//4)}
    s_sub_u32 s31, s31, 1
    s_cbranch_scc1 L_gosafe
    s_waitcnt lgkmcnt(0)
    v_readfirstlane_b32 s30, v3
    s_bitcmp1_b32 s30, 17
    s_cbranch_scc0 L_wn
    s_cmp_gt_u32 s30, {0 if OPT["force_safe"] else 0xffffff}
    s_cbranch_scc1 L_gosafe
    s_and_b32 s31, s30, 0xff
    s_bfe_u32 s30, s30, 0x80008
    s_lshl_b32 s32, s31, 1
    s_add_u32 s30, s30, s32
    s_lshl_b32 s32, s3, 1
    s_sub_i32 s30, s30, s32
    s_max_i32 s30, s30, 0
    s_cmp_ge_u32 s3, 8
    s_cbranch_scc1 L_nc
    s_min_u32 s30, s30, 2
    s_add_u32 s{S_R}, s30, 12
    s_cmp_ge_u32 s3, s31
    s_cselect_b32 s30, 0x2000, 0
    s_or_b32 s{S_M}, s30, 0x5041
    s_branch L_nd
L_nc:
    s_add_u32 s32, s30, 7
    s_lshr_b32 s32, s32, 3
    s_lshl_b32 s32, s32, 1
    s_and_b32 s30, s30, 7
    s_cmp_eq_u32 s30, 1
    s_subb_u32 s32, s32, 0
    s_add_u32 s{S_R}, s32, 6
    s_sub_i32 s31, s31, s3
    s_add_i32 s31, s31, 3
    s_max_i32 s31, s31, 0
    s_lshr_b32 s31, s31, 2
    s_lshl_b32 s31, s31, 1
    s_add_u32 s31, s31, 7
    s_lshl_b32 s31, -1, s31
    s_or_b32 s{S_M}, s31, 0x55555541
L_nd:
    s_mov_b32 s{S_IT}, {(1 << OPT["pa"]) | (1 << OPT["pb"]) | (1 << OPT["pc"]) if OPT["prio"] == 2 else 0}
""")
if OPT["prio"]: E(f"s_setprio {OPT['p1']}")
STAMP(10)
if OPT["ptime"]: E("v_mov_b32 v35, 0\nv_mov_b32 v68, 0")
if OPT["stamps"] == 1: E(f"s_memtime s[{ST0+24}:{ST0+25}]\ns_waitcnt lgkmcnt(0)")
for u in range(4): phase(u, True)
for u in range(4): phase(u, False)
E(f"""
L_mdone:
    s_waitcnt lgkmcnt(0)
""")
STAMP(11)
if OPT["ptime"]:
    E(f"""
    s_lshl_b32 s30, s2, 4
    s_add_u32 s30, s30, s3
    s_lshl_b32 s30, s30, 8
    s_add_u32 s30, s30, 0xc00000
    v_lshl_add_u32 v2, v1, 2, s30
    s_mov_b32 exec_hi, 0
    global_store_dword v2, v35, s[20:21]
    global_store_dword v2, v68, s[20:21] offset:128
    s_mov_b64 exec, -1
    """)
if OPT["stamps"] == 1:
    E(f"s_memtime s[28:29]\ns_waitcnt lgkmcnt(0)\ns_sub_u32 s{ST0+24}, s28, s{ST0+24}")
E(f"""
    v_lshrrev_b32 v2, 5, v0
    v_and_b32 v3, 31, v0
    v_mul_u32_u24 v4, {NSTR}, v2
    v_and_b32 v5, 1, v3
    v_lshl_add_u32 v4, v5, 8, v4
    v_lshrrev_b32 v5, 1, v3
    v_lshl_add_u32 v4, v5, 3, v4
    v_add_u32 v4, {L_NODE}, v4
    s_mul_i32 s30, s{S_BUCK}, {NB*256}
    s_lshl_b32 s31, s{S_HALF}, 7
    s_add_u32 s30, s30, s31
    v_lshlrev_b32 v3, 2, v3
    v_lshl_add_u32 v5, v2, 8, v3
    v_add_u32 v5, s30, v5
    v_add_u32 v6, {24*256}, v5
    v_add_u32 v7, {48*256}, v5
    v_add_u32 v8, {72*256}, v5
    s_mov_b32 s32, {f32(2.0**32)}
    s_mov_b32 s34, {f32(-LOG2E * 2.0**-32)}
    v_mov_b32 v9, 0x207
    s_barrier                               ; B5
""")
OSC = {0: "", 1: " sc1", 2: " nt"}[OPT["osc"]]
def epi(us):
    for u in us: E(f"ds_read_b64 v[{12+4*u}:{13+4*u}], v4 offset:{24*NSTR*u}\nds_read_b64 v[{14+4*u}:{15+4*u}], v4 offset:{24*NSTR*u + 128}")
    E("s_waitcnt lgkmcnt(0)")
    for u in us: E(f"v_cvt_f32_f64 v{28+2*u}, v[{12+4*u}:{13+4*u}]\nv_cvt_f32_f64 v{29+2*u}, v[{14+4*u}:{15+4*u}]")
    for u in us: E(f"v_pk_mul_f32 v[{36+2*u}:{37+2*u}], v[{28+2*u}:{29+2*u}], s[34:35] op_sel_hi:[1,0]")
    for u in us: E(f"v_exp_f32 v{36+2*u}, v{36+2*u}\nv_exp_f32 v{37+2*u}, v{37+2*u}")
    E("v_pk_add_f32 v[10:11], v[28:29], v[30:31]")
    for u in us: E(f"v_pk_fma_f32 v[{36+2*u}:{37+2*u}], v[{36+2*u}:{37+2*u}], s[32:33], s[32:33] op_sel_hi:[1,0,0]")
    for u in us: E(f"v_rcp_f32 v{36+2*u}, v{36+2*u}\nv_rcp_f32 v{37+2*u}, v{37+2*u}")
    E("v_pk_add_f32 v[10:11], v[10:11], v[32:33]")
    for u in us: E(f"v_pk_mul_f32 v[{36+2*u}:{37+2*u}], v[{28+2*u}:{29+2*u}], v[{36+2*u}:{37+2*u}]")
    for u in us: E(f"v_cvt_pk_bf16_f32 v{44+u}, v{36+2*u}, v{37+2*u}\nglobal_store_dword v{5+u}, v{44+u}, s[18:19]{OSC}")
    for u in us[3:]: E(f"v_pk_add_f32 v[10:11], v[10:11], v[{28+2*u}:{29+2*u}]")
E("s_cmp_ge_u32 s3, 4\ns_cbranch_scc1 L_e3")
epi([0, 1, 2, 3])
E("s_branch L_e4\nL_e3:")
epi([0, 1, 2])
E(f"""
L_e4:
    v_add_f32 v10, v10, v11
    v_cmp_class_f32 vcc, v10, v9
    v_mov_b32 v2, 0
    s_cmp_lg_u32 s{S_SAFE}, 0
    s_cbranch_scc1 L_fin
    {"s_branch" if OPT["nosafe"] else "s_cbranch_vccz"} L_e5
    ds_write_b32 v2, v9 offset:{L_FLAG}
    s_waitcnt lgkmcnt(0)
L_e5:
    s_barrier                               ; B6
    ds_read_b32 v2, v2 offset:{L_FLAG}
    s_waitcnt lgkmcnt(0)
    v_readfirstlane_b32 s30, v2
    s_cmp_lg_u32 s30, 0
    s_cbranch_scc1 L_gosafe
L_fin:
""")
if OPT["stamps"]:
    E("s_waitcnt vmcnt(0)"); STAMP(13); STAMP_OUT()
if OPT["probe"] >= 0:
    T_ = ST0 + 2*OPT["probe"]
    E(f"""
    s_cmp_lg_u32 s3, {OPT["pw"]}
    s_cbranch_scc1 L_end
    s_cmp_lg_u32 s2, {OPT["pg"] if OPT["pg"] >= 0 else "s2"}
    s_cbranch_scc1 L_end
    s_sub_u32 s30, s{T_}, s{ST0}
    s_lshl_b32 s30, s30, 2
    s_add_u32 s30, s30, 3000
    s_min_u32 s30, s30, 20000
L_spin:
    s_memrealtime s[28:29]
    s_waitcnt lgkmcnt(0)
    s_sub_u32 s28, s28, s{ST0}
    s_cmp_lt_u32 s28, s30
    s_cbranch_scc1 L_spin
    """)
E(f"""
L_end:
    s_endpgm
L_gosafe:
    s_mov_b32 s{S_SAFE}, 8
    s_setprio 0
    s_waitcnt vmcnt(0) lgkmcnt(0)
    s_barrier
    s_branch L_restart
""")
out += outofline
for r in retries: E(r)
E(f"""
L_safe:
    v_and_b32 v2, 15, v1
    v_lshlrev_b32 v3, 3, v2
    v_add_u32 v3, {L_C}, v3
""")
for k in range(4):
    for s in range(4):
        E(f"ds_read_u16 v{80+4*k+s}, v3 offset:{128*k + 2*s}")
E("s_waitcnt lgkmcnt(0)")
for i in range(16):
    E(f"v_lshlrev_b32 v{80+i}, 16, v{80+i}\nv_mul_f32 v{80+i}, s40, v{80+i}")
E(f"""
    v_lshrrev_b32 v24, 4, v1
    v_mul_u32_u24 v24, 3, v24               ; 3*quarter
    s_movk_i32 s33, {NSTR}
    v_add_u32 v25, {L_NODE}, v{LN8}
    s_mov_b32 s34, s3
    s_mov_b32 s35, {POLL_MAX}
L_scell:
    s_lshl_b32 s30, s34, 10
    s_lshl_b32 s31, s{S_BUCK}, 3
    s_add_u32 s30, s30, s31
    s_add_u32 s30, s30, {WS_ROW}
    v_mov_b32 v26, s30
    global_load_dword v32, v26, s[20:21] sc1
    s_mul_i32 s30, s34, {SORTB//4}
    s_add_u32 s30, s30, {WS_REC//4}
    s_waitcnt vmcnt(0)
    v_bfe_u32 v28, v32, 12, 12              ; 3*count
    v_and_b32 v27, 0xfff, v32
    v_add_u32 v27, s30, v27
L_sver:
    v_mov_b32 v29, v1
    v_mov_b32 v31, 0
L_sv1:
    v_cmp_ge_u32 vcc, v28, v29
    s_and_saveexec_b64 s[48:49], vcc
    s_cbranch_execz L_sv2
    v_add_lshl_u32 v30, v27, v29, 2
    global_load_dword v32, v30, s[20:21] sc1
    s_waitcnt vmcnt(0)
    v_add_u32 v31, v31, v32
    s_mov_b64 exec, s[48:49]
    v_add_u32 v29, 64, v29
    s_branch L_sv1
L_sv2:
    s_mov_b64 exec, s[48:49]
""")
scan(31)
E(f"""
    s_nop 0
    v_readlane_b32 s30, v31, 63
    s_cmp_eq_u32 s30, s{S_TAG+1}
    s_cbranch_scc1 L_sok
    s_sub_u32 s35, s35, 1
    s_cbranch_scc0 L_sver
    s_branch L_mdone
L_sok:
    v_mov_b32 v29, v24
L_srec:
    v_cmp_gt_u32 vcc, v28, v29
    s_and_saveexec_b64 s[48:49], vcc
    s_cbranch_execz L_snext
    v_add_lshl_u32 v30, v27, v29, 2
    global_load_dwordx3 v[32:34], v30, s[20:21] offset:4 sc1
    s_waitcnt vmcnt(0)
    v_and_b32 v30, 0x3fff00, v32
    v_add_u32 v30, v30, v{LN16}
    buffer_load_dwordx4 v[36:39], v30, s[36:39], 0 offen sc1
    v_lshrrev_b32 v31, 24, v32
    v_mad_u32_u24 v31, v31, s33, v25
    ds_read_b64 v[40:41], v31 offset:512
    v_lshlrev_b32 v44, 16, v33
    v_and_b32 v45, 0xffff0000, v33
    v_lshlrev_b32 v46, 16, v34
    v_and_b32 v47, 0xffff0000, v34
    s_waitcnt vmcnt(0) lgkmcnt(0)
    v_lshlrev_b32 v48, 16, v40
    v_and_b32 v49, 0xffff0000, v40
    v_lshlrev_b32 v50, 16, v41
    v_and_b32 v51, 0xffff0000, v41
""")
for s in range(4):
    E(f"v_lshlrev_b32 v52, 16, v{36+s}\nv_add_f32 v{48+s}, v{48+s}, v52")
    for k in range(4):
        E(f"v_fmac_f32 v{48+s}, v{44+k}, v{80+4*k+s}")
for s in range(4): E(f"v_exp_f32 v{48+s}, v{48+s}")
E("s_nop 0")
for s in range(4): E(f"v_add_f32 v{48+s}, 1.0, v{48+s}")
for s in range(4): E(f"v_rcp_f32 v{48+s}, v{48+s}")
E("s_nop 0")
for s in range(4): E(f"v_mul_f32 v{48+s}, v{48+s}, v{36+s}")
for s in range(4): E(f"v_cvt_f64_f32 v[{54+2*s}:{55+2*s}], v{48+s}")
for s in range(4): E(f"ds_add_f64 v31, v[{54+2*s}:{55+2*s}] offset:{128*s}")
E(f"""
    s_mov_b64 exec, s[48:49]
    v_add_u32 v29, 12, v29
    s_branch L_srec
L_snext:
    s_mov_b64 exec, s[48:49]
    s_add_u32 s34, s34, {NW}
    s_cmp_lt_u32 s34, {NCHUNK}
    s_cbranch_scc1 L_scell
    s_branch L_mdone
L_codeend:
.section .rodata,"a"
.p2align 6
.amdhsa_kernel {NAME}
.amdhsa_next_free_vgpr 168
.amdhsa_next_free_sgpr 102
.amdhsa_accum_offset 168
.amdhsa_group_segment_fixed_size 0
.amdhsa_kernarg_size 80
.amdhsa_user_sgpr_count 2
.amdhsa_user_sgpr_kernarg_segment_ptr 1
.amdhsa_system_sgpr_workgroup_id_x 1
.end_amdhsa_kernel
""")
if OPT["drop"]:
    i0 = out.index("L_L0:"); i1 = out.index("L_mdone:")
    pats = {1: ("smfmac",), 2: ("mfma",), 3: ("32x32x8",), 4: ("smfmac",), 5: ("v_exp",)}[OPT["drop"]]
    repl = {4: "    s_nop 2", 5: "    s_nop 1"}.get(OPT["drop"])
    mid = []
    for l in out[i0:i1]:
        if any(x in l for x in pats):
            if repl: mid.append(repl)
        else: mid.append(l)
    if OPT["drop"] == 3: mid = [l.replace("v[88:103] cbsz", "0 cbsz").replace("v[72:87] cbsz", "0 cbsz") for l in mid]
    out = out[:i0] + mid + out[i1:]
if OPT["nochain"]:
    i0 = out.index("L_L0:"); i1 = out.index("L_mdone:")
    out = out[:i0] + [l for l in out[i0:i1] if not any(x in l for x in ("v_exp", "v_pk_", "mfma", "v_rcp", "v_cvt"))] + out[i1:]
open(sys.argv[1], "w").write("\n".join(out) + "\n")
```

```python
import sys, struct

OPT = dict(hb=1, stamps=0, force_safe=0, nogather=0, nosafe=0, prio=2, gsc1=1, osc=1, codepf=1, srcmask=0x3fff00, nrec=0, warm=0,
           nochain=0, probe=-1, pw=-1, pg=-1, gpf=32, early=0, cnt=0, pollmax=200000, pa=7, pb=3, pc=1, p0=3, p1=3, ptime=0,
           dist=2, ldearly=0, drop=0, wgate=0, gate=0, gate2=1, rst=0, rsc1=1, nover=0, p2gate=1, p2sleep=0, hold=0, slate=2, lpos=0, p1st=1, sig=1, gpace=4, gwin=-1, gp=0xf448c, ghold=0, nte=0, ewhen=2, wpf=0, pre=0, prelate=0, ntx=0, rpace=-1, p2wait=0)
for a in sys.argv[2:]:
    k, v = a.split("=")
    assert k in OPT, k
    OPT[k] = int(v, 0)

out = []
def E(s=""):
    for line in s.split("\n"):
        line = line.strip()
        if not line:
            continue
        if line.endswith(":") or line.startswith(".") or line.startswith(";"):
            out.append(line)
        else:
            out.append("    " + line)

def f32(x):
    return "0x%08x" % struct.unpack("<I", struct.pack("<f", x))[0]

NAME = "standalone__edge_featured_mpnn_egc__graph_kernel"
LOG2E = 1.4426950408889634
NB = 80; NBUCK = 125; CHUNK = 1280; NCHUNK = 250
NW = 12
G_HALF = 10000 * 256
WS0 = 0
WS_REC = 0x500000
WS_ROW = 0x900000
WS_FL2 = 0x980000
WS_TAG = 0x9c0000
SORTB = CHUNK * 12 + 512
WS_STAMP = 0x1000000
L_CNT = 0; L_SOFF = 512
L_SCNT = 1024
L_CTR = 1536; L_RD = 1540; L_DONE2 = 1544; L_FLAG = 1548; L_NST = 1552; L_GST = 1556; L_GOK = 1560; L_AU = 1564
L_DUM = L_SOFF
L_LIST = 2048
L_LISTC = L_LIST + 4096
SSTR = 272
L_SRC = L_LIST + 8192
SRCB = 80 * SSTR + 32
L_EA = L_SRC + SRCB
L_EAEND = L_EA + 2 * SRCB
L_SORT = L_EA
L_WBV = (L_EAEND + 255) // 256 * 256; L_X = L_WBV + 32768; L_WAU = L_X + 20480; L_C = L_WAU + 32768
LDS = L_C + 1024
L_NODE = L_WBV; NSTR = 648
assert L_NODE + 80 * NSTR <= L_WAU and LDS <= 163840 and L_EA % 16 == 0
NULL_SRC = 0x7fffff00
POLL_MAX = OPT["pollmax"]
SC1 = " sc1"
NTE = " nt" if OPT["nte"] else ""
NTX = " nt" if OPT["ntx"] else ""

S_HALF, S_BUCK, S_P = 22, 23, 24
S_SAFE, S_TAG = 25, 26
S_R, S_M, S_IT = 70, 71, 72
S_TAGRAW = 47
ST0 = 74

def ESTAMP(i):
    if OPT["early"] == 1 or (OPT["early"] and i == 0): E(f"s_memrealtime s[{ST0+2*i}:{ST0+2*i+1}]")
def FSTAMP(i):
    if OPT["early"] == 2: E(f"s_memrealtime s[{ST0+2*i}:{ST0+2*i+1}]\ns_waitcnt lgkmcnt(0)")
def STAMP(i):
    if OPT["stamps"] == 2:
        if i == 0: E(f"s_memrealtime s[{ST0}:{ST0+1}]")
        if i == 13: E(f"s_memrealtime s[{ST0+26}:{ST0+27}]\ns_waitcnt lgkmcnt(0)")
        return
    if OPT["early"] and 1 <= i <= 7: return
    if OPT["early"] and i == 0: return ESTAMP(0)
    if OPT["stamps"] or (OPT["probe"] >= 0 and i == OPT["probe"]):
        E(f"s_memrealtime s[{ST0+2*i}:{ST0+2*i+1}]\ns_waitcnt lgkmcnt(0)")
    elif OPT["probe"] >= 0 and i == 0:
        E(f"s_memrealtime s[{ST0}:{ST0+1}]")
NSTAMP = 14
def STAMP_OUT():
    if OPT["stamps"]:
        E(f"""
        s_lshl_b32 s30, s2, 4
        s_add_u32 s30, s30, s3
        s_lshl_b32 s30, s30, 6
        s_add_u32 s30, s30, {WS_STAMP - 0x100000}
        s_load_dwordx2 s[20:21], s[0:1], 72
        s_waitcnt lgkmcnt(0)
        s_mov_b64 exec, -1
        v_mov_b32 v3, s30""")
        for i in (range(NSTAMP) if OPT["stamps"] == 1 else (0, 8, 13)):
            E(f"v_mov_b32 v2, s{ST0+2*i}\nglobal_store_dword v3, v2, s[20:21] offset:{4*i}")
        E("s_waitcnt vmcnt(0)")

A1, A2, IDX, EAC, LN16, ASEL, CW, LN8 = 4, 8, 12, 13, 14, 16, 18, 20
LP, WS4, WN2, EA, XA, WE, OFS, AG, T, N, P, F = 22, 24, 28, 30, 32, 34, 36, 40, 44, 52, 56, 60
D0, D1, G = 72, 88, 104

def finish_tag():
    E(f"""
    s_mul_i32 s{S_TAG+1}, s{S_TAGRAW}, 0x85ebca6b
    s_mul_i32 s{S_TAG}, s{S_TAGRAW}, 0x9e3779b1
    s_add_u32 s{S_TAG+1}, s{S_TAG+1}, 0x5bd1e995
    s_add_u32 s{S_TAG}, s{S_TAG}, 0x7f4a7c15
    """)
def get_tag(lab, q):
    E(f"""
    s_cmp_lg_u32 s{S_SAFE}, 0
    s_cbranch_scc1 L_tag_{lab}
    v_mov_b32 v2, 0
    s_mov_b32 s31, {POLL_MAX}
L_tg_{lab}:
    ds_read_b128 v[{q}:{q+3}], v2 offset:{L_SCNT + 124*4}
    s_sub_u32 s31, s31, 1
    s_cbranch_scc1 L_tag_{lab}
    s_waitcnt lgkmcnt(0)
    v_readfirstlane_b32 s30, v{q+3}
    v_readfirstlane_b32 s{S_TAGRAW}, v{q+1}
    s_cmp_lg_u32 s30, 4
    s_cbranch_scc1 L_tg_{lab}
    """)
    finish_tag()
    E(f"L_tag_{lab}:")

def lds_wait(addr, mask, val, tag, sleep=0, ne=False):
    E(f"""
    v_mov_b32 v2, 0
    s_mov_b32 s31, {POLL_MAX}
L_w_{tag}:
    {f"s_sleep {sleep}" if sleep else ""}
    ds_read_b32 v3, v2 offset:{addr}
    s_sub_u32 s31, s31, 1
    s_cbranch_scc1 L_wd_{tag}
    s_waitcnt lgkmcnt(0)
    v_readfirstlane_b32 s30, v3
    s_and_b32 s30, s30, {mask}
    s_cmp_lg_u32 s30, {val}
    s_cbranch_scc{0 if ne else 1} L_w_{tag}
L_wd_{tag}:
    """)
SCAN = ("row_shr:1 row_mask:0xf bank_mask:0xf bound_ctrl:0", "row_shr:2 row_mask:0xf bank_mask:0xf bound_ctrl:0",
        "row_shr:4 row_mask:0xf bank_mask:0xf bound_ctrl:0", "row_shr:8 row_mask:0xf bank_mask:0xf bound_ctrl:0",
        "row_bcast:15 row_mask:0xa bank_mask:0xf", "row_bcast:31 row_mask:0xc bank_mask:0xf")
def scan(r):
    for m in SCAN:
        E(f"s_nop 1\nv_add_u32_dpp v{r}, v{r}, v{r} {m}")

def main_consts(sm=48):
    E(f"""
    v_and_b32 v2, 15, v1                    ; n'
    v_lshrrev_b32 v3, 4, v1
    v_lshl_add_u32 v3, v2, 2, v3
    v_lshlrev_b32 v3, 1, v3
    v_add_u32 v3, {L_C}, v3
    ds_read_u16 v64, v3                     ; C[0..3][feature 4n'+s]
    ds_read_u16 v65, v3 offset:128
    ds_read_u16 v66, v3 offset:256
    ds_read_u16 v67, v3 offset:384
    v_and_b32 v63, 3, v1                    ; q
    v_lshlrev_b32 v{LN8}, 3, v2
    v_lshlrev_b32 v{LN8+1}, 3, v2
    v_lshlrev_b32 v{LN16}, 4, v2
    v_lshlrev_b32 v{LN16+1}, 4, v2
    v_mov_b32 v{IDX}, 0x8888
    v_bfe_u32 v60, v1, 3, 2                 ; s = (l&31)>>3
    v_bfe_u32 v61, v1, 2, 1                 ; h = (l>>2)&1
    v_lshrrev_b32 v62, 5, v1                ; ha
    v_and_b32 v2, 1, v60
    v_lshlrev_b32 v2, 4, v2
    v_lshlrev_b32 v2, v2, s46
    v_lshrrev_b32 v60, 1, v60               ; s>>1
    v_lshl_add_u32 v3, v61, 1, v60
    v_sub_u32 v63, v63, v62                 ; q - ha : 0 -> A1, 2 -> A2
    v_lshl_add_u32 v3, v63, 1, v3
    v_and_b32 v63, 1, v63
    v_lshl_or_b32 v3, v63, 4, v3
    v_xor_b32 v61, v61, v62
    v_lshl_or_b32 v60, v61, 4, v60
    """)
    mk = [f"s[{sm}:{sm+1}]", f"s[{sm+2}:{sm+3}]", f"s[{sm+4}:{sm+5}]", "vcc"]
    for i in range(8):
        E(f"v_cmp_eq_u32 {mk[i%4]}, {i}, v3")
        if i % 4 == 3:
            for j in range(i-3, i+1):
                E(f"v_cndmask_b32 v{A1+j}, 0, v2, {mk[j%4]}")
    E(f"""
    v_cmp_eq_u32 {mk[0]}, 0, v60
    v_cmp_eq_u32 {mk[1]}, 1, v60
    v_and_b32 v63, 3, v1
    v_lshlrev_b32 v61, 3, v63
    v_cndmask_b32 v{ASEL}, 0, v2, {mk[0]}
    v_cndmask_b32 v{ASEL+1}, 0, v2, {mk[1]}
    v_add_u32 v{EAC}, {L_EA - 2*L_SRC}, v61
    s_lshl_b32 s30, s3, 9
    s_sub_u32 s31, s30, 4096
    s_max_i32 s31, s31, 0
    s_add_u32 s30, s30, s31
    s_add_u32 s30, s30, {L_LIST}
    v_lshrrev_b32 v2, 4, v1
    v_lshl_add_u32 v{LP}, v2, 4, s30
    v_bfe_u32 v3, v1, 2, 2
    v_lshl_add_u32 v{LP+1}, v3, 4, s30
    v_lshl_add_u32 v{LP+1}, v2, 2, v{LP+1}
    s_waitcnt lgkmcnt(0)
    v_lshlrev_b32 v60, 16, v64
    v_lshlrev_b32 v61, 16, v65
    v_lshlrev_b32 v62, 16, v66
    v_lshlrev_b32 v63, 16, v67
    v_mul_f32 v60, s40, v60
    v_mul_f32 v61, s40, v61
    v_mul_f32 v62, s40, v62
    v_mul_f32 v63, s40, v63
    v_cvt_pk_bf16_f32 v{CW}, v60, v61
    v_cvt_pk_bf16_f32 v{CW+1}, v62, v63
    """)

def gload(g, o):
    return f"buffer_load_dwordx4 v[{g}:{g+3}], v{o}, s[36:39], 0 offen" + (SC1 if OPT["gsc1"] else "")
def oadd(o):
    return f"v_lshl_add_u64 v[{o}:{o+1}], v[{o}:{o+1}], 0, v[{LN16}:{LN16+1}]"

def pk_steps(Gc, q, first):
    t = T + 4*(q & 1); h = Gc + 4*q
    if first and q == 0:
        return [f"v_pk_add_f32 v[{P+2*p}:{P+2*p+1}], v[{t+2*p}:{t+2*p+1}], 1.0 op_sel_hi:[1,0]" for p in range(2)]
    r = []
    for p in range(2):
        n = f"v[{Gc+2*p}:{Gc+2*p+1}]" if (first and q == 1) else f"v[{N+2*p}:{N+2*p+1}]"
        r.append(f"v_pk_fma_f32 v[{N+2*p}:{N+2*p+1}], {n}, v[{t+2*p}:{t+2*p+1}], {n}")
    for p in range(2):
        r.append(f"v_pk_fma_f32 v[{N+2*p}:{N+2*p+1}], v[{h+2*p}:{h+2*p+1}], v[{P+2*p}:{P+2*p+1}], v[{N+2*p}:{N+2*p+1}]")
    for p in range(2):
        r.append(f"v_pk_fma_f32 v[{P+2*p}:{P+2*p+1}], v[{P+2*p}:{P+2*p+1}], v[{t+2*p}:{t+2*p+1}], v[{P+2*p}:{P+2*p+1}]")
    return r
def exps(Dc, q):
    t = T + 4*(q & 1)
    return [f"v_exp_f32 v{t+s}, v{Dc+4*s+q}" for s in range(4)]
def weave(main, extra):
    for i, x in enumerate(main):
        E(x)
        for y in extra.get(i, []):
            E(y)
def m_a(Dn): return f"v_mfma_f32_32x32x8_bf16 v[{Dn}:{Dn+15}], v[{ASEL}:{ASEL+1}], v[{XA}:{XA+1}], 0"
def m_e(Dn, abid): return f"v_mfma_f32_16x16x4_4b_bf16 v[{Dn}:{Dn+15}], v[{EA}:{EA+1}], v[{CW}:{CW+1}], v[{Dn}:{Dn+15}] cbsz:2 abid:{abid}"
def m_s(Dn, A, g): return f"v_smfmac_f32_32x32x32_bf16 v[{Dn}:{Dn+15}], v[{A}:{A+3}], v[{g}:{g+7}], v{IDX}"

outofline = []
def emit_to(lst, fn):
    global out
    keep = out; out = []
    fn(); lst += out; out = keep
DIST = OPT["dist"]; EARLY = OPT["ldearly"]
assert not (EARLY and DIST == 4)
def phase(u, loads):
    tag = f"{'L' if loads else 'T'}{u}"
    Dc, Dn = ((D0, D1), (D1, D0))[u & 1]
    gc = G + 16*u; gn = G + 16*((u+1) & 3); gl = G + 16*((u+DIST) & 3)
    ld = loads and not OPT["nogather"]
    kw = (u + DIST + EARLY) & 3
    wsgrp = 128 * ((3 - kw + u + DIST + EARLY) // 4 + 1) if kw == 3 else None
    def addloads(ex, pos):
        if loads:
            ex.setdefault(0, []).append(oadd(OFS)); ex.setdefault(2, []).append(oadd(OFS+2))
        if ld:
            for q in range(4): ex.setdefault(pos[q], []).append(gload(gl+4*q, OFS+q))
    E(f"L_{tag}:")
    if OPT["ptime"]: E(f"s_memrealtime s[28:29]\ns_mov_b32 m0, s{S_R}")
    if OPT["ptime"] == 2: E(f"s_memtime s[30:31]")
    SL = OPT["slate"]
    if not SL: E(f"s_waitcnt vmcnt({4*(DIST-2)})")
    if OPT["ptime"] == 1: E(f"s_memrealtime s[30:31]")
    E(m_a(Dn))
    for x in exps(Dc, 0): E(x)
    E(m_e(Dn, (u+1) & 3) if SL else m_s(Dn, A1, gn))
    for x in exps(Dc, 1): E(x)
    ex = {0: ["s_waitcnt lgkmcnt(0)"], 2: [f"ds_read_b64 v[{XA}:{XA+1}], v{AG + ((u+2) & 3)} offset:512"]}
    if OPT["ptime"]: ex[0] += ["v_writelane_b32 v35, s28, m0", "v_writelane_b32 v68, s30, m0"]
    if u % 2 == 0:
        p = AG + ((u+2) & 3)
        ex[0].append(f"v_lshl_add_u64 v[{p}:{p+1}], v[{WN2}:{WN2+1}], 0, v[{LN8}:{LN8+1}]")
    if EARLY: addloads(ex, (1, 3, 5, 6))
    elif loads: ex[1] = [f"ds_read_b128 v[{OFS}:{OFS+3}], v{WS4+kw}"]
    if u == 2:
        ex.setdefault(4, []).append(f"v_lshl_add_u32 v{WE}, v{WE}, 1, v{EAC}")
        if SL: ex.setdefault(7, []).append(f"ds_read_b64 v[{EA}:{EA+1}], v{WE}")
    E(f"s_bitcmp1_b32 s{S_M}, 0\ns_cbranch_scc1 L_{tag}f")
    weave(pk_steps(gc, 0, False) + pk_steps(gc, 1, False), ex)
    E(f"L_{tag}r:")
    def first():
        E(f"L_{tag}f:")
        weave(pk_steps(gc, 0, True) + pk_steps(gc, 1, True), ex)
        E(f"s_branch L_{tag}r")
    emit_to(outofline, first)
    if SL:
        E(f"s_waitcnt vmcnt({4*(DIST-2) + (4 if (EARLY and loads) else 0) + (2 if SL == 2 else 0)})")
        E(m_s(Dn, A1, gn))
    else:
        E(m_e(Dn, (u+1) & 3))
    for x in exps(Dc, 2): E(x)
    if SL == 2: E(f"s_waitcnt vmcnt({4*(DIST-2) + (4 if (EARLY and loads) else 0)})")
    E(m_s(Dn, A2, gn+8))
    for x in exps(Dc, 3): E(x)
    ex = {0: ["s_waitcnt lgkmcnt(0)"], 4: [], 6: [], 7: [f"s_sub_u32 s{S_R}, s{S_R}, 1"], 10: [f"s_lshr_b32 s{S_M}, s{S_M}, 1"], 11: [f"s_bitcmp1_b32 s{S_M}, 0"]}
    if not EARLY: addloads(ex, (1, 3, 5, 9) if DIST == 4 else ((1, 3, 5, 7), (1, 2, 3, 4), (4, 6, 8, 10), (2, 5, 8, 10))[OPT['lpos']])
    elif loads: ex[1] = [f"ds_read_b128 v[{OFS}:{OFS+3}], v{WS4+kw}"]
    if u == 1:
        ex[4].append(f"ds_read_b64 v[{WN2}:{WN2+1}], v{LP} offset:{128+64}")
        ex[6].append(f"ds_read_b32 v{WE}, v{LP+1} offset:128")
    if u == 2 and not SL:
        ex[4].append(f"ds_read_b64 v[{EA}:{EA+1}], v{WE}")
    if u == 3:
        ex[4].append(f"ds_read_b64 v[{WN2}:{WN2+1}], v{LP} offset:{128+64+8}")
        ex.setdefault(8, []).append(f"v_lshl_add_u64 v[{LP}:{LP+1}], v[{LP}:{LP+1}], 0, s[44:45]")
    if wsgrp and loads: ex[6].append(f"ds_read_b128 v[{WS4}:{WS4+3}], v{LP} offset:{wsgrp}")
    weave(pk_steps(gc, 2, False) + pk_steps(gc, 3, False), ex)
    E(f"s_cbranch_scc1 L_{tag}z\nL_{tag}y:")
    def fin():
        E(f"""
L_{tag}z:
        v_rcp_f32 v{P}, v{P}
        v_rcp_f32 v{P+1}, v{P+1}
        v_rcp_f32 v{P+2}, v{P+2}
        v_rcp_f32 v{P+3}, v{P+3}
        v_pk_mul_f32 v[{N}:{N+1}], v[{N}:{N+1}], v[{P}:{P+1}]
        v_pk_mul_f32 v[{N+2}:{N+3}], v[{N+2}:{N+3}], v[{P+2}:{P+3}]
        """)
        for s_ in range(4):
            E(f"v_cvt_f64_f32 v[{F+2*s_}:{F+2*s_+1}], v{N+s_}")
            if s_: E(f"ds_add_f64 v{AG+u}, v[{F+2*s_-2}:{F+2*s_-1}] offset:{128*(s_-1)}")
        E(f"ds_add_f64 v{AG+u}, v[{F+6}:{F+7}] offset:384")
        E(f"s_branch L_{tag}y")
    emit_to(outofline, fin)
    if OPT["prio"] == 2:
        E(f"s_bitcmp1_b32 s{S_IT}, s{S_R}\ns_cbranch_scc1 L_{tag}q\nL_{tag}p:")
        def pr():
            E(f"""
L_{tag}q:
            s_setprio 0
            s_cmp_le_u32 s{S_R}, {OPT["pc"]}
            s_cbranch_scc1 L_{tag}p
            s_setprio 1
            s_cmp_le_u32 s{S_R}, {OPT["pb"]}
            s_cbranch_scc1 L_{tag}p
            s_setprio 2
            s_branch L_{tag}p
            """)
        emit_to(outofline, pr)
    if u == 3 and OPT["prio"] == 1:
        E(f"""
        s_add_u32 s{S_IT}, s{S_IT}, 1
        s_setprio 0
        s_cmp_gt_u32 s{S_IT}, 2
        s_cbranch_scc1 L_{tag}p
        s_setprio 1
        s_cmp_eq_u32 s{S_IT}, 2
        s_cbranch_scc1 L_{tag}p
        s_setprio 2
L_{tag}p:
        """)
    if loads:
        E(f"s_cmp_le_u32 s{S_R}, {DIST}")
        if u < 3: E(f"s_cbranch_scc1 L_T{u+1}")
        else: E("s_cbranch_scc0 L_L0")
    else:
        E(f"s_waitcnt vmcnt(0)\ns_cmp_eq_u32 s{S_R}, 0")
        if u < 3: E("s_cbranch_scc1 L_mdone")
        else: E("s_cbranch_scc0 L_T0")

E(f"""
; @launch grid=(256,1,1) block=({64*NW},1,1) lds={LDS}
.amdgcn_target "amdgcn-amd-amdhsa--gfx950"
.text
.globl {NAME}
.p2align 8
.type {NAME},@function
{NAME}:
""")
if OPT["stamps"] == 1 and OPT["early"] != 1:
    for i in range(NSTAMP): E(f"s_mov_b64 s[{ST0+2*i}:{ST0+2*i+1}], 0")
STAMP(0)
E(f"""
    s_load_dwordx16 s[4:19], s[0:1], 0
    s_load_dwordx2 s[20:21], s[0:1], 72
""")
if OPT["codepf"]:
    E(f"""
    s_getpc_b64 s[28:29]
L_pc:
    v_lshlrev_b32 v3, 7, v0
    v_cmp_gt_u32 vcc, L_codeend-L_pc-64, v3
    s_cbranch_vccz L_nopf
    s_mov_b64 exec, vcc
    global_load_dword v164, v3, s[28:29]
    s_mov_b64 exec, -1
L_nopf:
    """)
E(f"""
    v_lshrrev_b32 v2, 6, v0
    v_and_b32 v1, 63, v0
    v_readfirstlane_b32 s3, v2
    {"s_bfe_u32 s%d, s2, 0x10002" % S_HALF if OPT["hb"] else "s_and_b32 s%d, s2, 1" % S_HALF}
    {"s_and_b32 s30, s2, 3" if OPT["hb"] else "s_bfe_u32 s30, s2, 0x20001"}
    s_lshl_b32 s30, s30, 5
    s_lshr_b32 s31, s2, 3
    s_add_u32 s{S_BUCK}, s30, s31
    s_cmp_ge_u32 s2, 256
    s_cbranch_scc1 L_end
    s_cmp_ge_u32 s{S_BUCK}, {NBUCK}
    s_cbranch_scc1 L_end
    s_lshl_b32 s{S_P}, s{S_BUCK}, 1
    s_add_u32 s{S_P}, s{S_P}, s{S_HALF}
    s_mov_b32 s{S_SAFE}, 0
L_restart:
    s_cmp_ge_u32 s3, 4
    s_cbranch_scc1 L_nosort
    v_mov_b32 v48, 0
    v_mov_b32 v49, 0
    v_mov_b32 v50, 0
    v_mov_b32 v51, 0
    v_lshlrev_b32 v10, 4, v1
    ds_write_b128 v10, v[48:51] offset:{L_SCNT}
    s_mul_i32 s30, s{S_P}, {CHUNK*4}
    v_lshl_add_u32 v3, v0, 4, s30
    s_add_u32 s30, s30, 4096
    v_lshl_add_u32 v18, v0, 2, s30
    v_lshlrev_b32 v10, 1, v3
    v_lshlrev_b32 v11, 1, v18
    v_mov_b32 v17, {WS_TAG}
    s_waitcnt lgkmcnt(0)
    global_load_dwordx4 v[4:7], v3, s[10:11]{NTE}
    global_load_dword v8, v18, s[10:11]{NTE}
    global_load_dword v43, v17, s[20:21]
""")
def preclear():
    E(f"""
    s_cmp_lg_u32 s{S_SAFE}, 0
    s_cbranch_scc1 L_nopre
    s_mul_i32 s30, s{S_HALF}, {G_HALF}
    s_mul_i32 s31, s{S_BUCK}, {NB*256}
    s_add_u32 s30, s30, s31
    s_add_u32 s30, s30, {4096*(5-OPT["pre"])}
    v_lshl_add_u32 v19, v0, 4, s30
    """)
    for i in range(OPT["pre"]):
        E("global_store_dwordx4 v19, v[48:51], s[20:21] sc1")
        if i + 1 < OPT["pre"]: E("v_add_u32 v19, 4096, v19")
    E("L_nopre:")
if OPT["pre"] and not OPT["prelate"]: preclear()
E(f"""
    s_barrier                               ; B0
    s_barrier                               ; B0b
""")
if OPT["pre"] and OPT["prelate"]: preclear()
E(f"""
    s_branch L_sort
L_nosort:
    s_and_b32 s32, s3, 3                    ; tau
    s_lshr_b32 s33, s3, 3
    v_lshrrev_b32 v2, 4, v1                 ; g
    v_and_b32 v4, 15, v1
    s_lshl_b32 s30, s32, 2
    v_add_u32 v6, s30, v2                   ; row&15
    v_xor_b32 v7, v4, v6
    v_lshlrev_b32 v7, 4, v7
    v_lshl_add_u32 v7, v6, 8, v7
    s_mul_i32 s73, s{S_BUCK}, {NB*256}
    s_mul_i32 s31, s33, {3*4096}
    s_add_u32 s30, s73, s31
    v_add_u32 v7, s30, v7
    v_add_u32 v8, 0x1000, v7
    v_add_u32 v9, 0x2000, v7
    s_lshl_b32 s30, s32, 10
    s_add_u32 s31, s31, s30
    s_add_u32 m0, s31, {L_X}
    v_subrev_u32 v30, 256, v0               ; t = 0..511
    v_lshlrev_b32 v31, 4, v30
    v_mov_b32 v36, 0
    v_mov_b32 v37, 0
    v_mov_b32 v38, 0
    v_mov_b32 v39, 0
    v_add_u32 v40, {L_EA}, v31
    ds_write_b128 v40, v[36:39]
    ds_write_b128 v40, v[36:39] offset:8192
""")
if OPT["wpf"]:
    E(f"""
    s_lshr_b32 s30, s2, 3
    s_lshl_b32 s30, s30, 2
    v_add_u32 v3, s30, v1
    v_and_b32 v3, 127, v3
    s_lshl_b32 s30, s{S_HALF}, 7
    s_cmp_eq_u32 s3, 4
    s_cselect_b32 s31, 0x8000, 0
    s_add_u32 s30, s30, s31
    v_lshl_add_u32 v3, v3, 8, s30
    s_waitcnt lgkmcnt(0)
    s_cmp_lg_u32 s33, 0
    s_cbranch_scc1 L_nowpf
    s_cmp_eq_u32 s3, 5
    s_cselect_b32 s34, s14, s16
    s_cselect_b32 s35, s15, s17
    s_cmp_eq_u32 s3, 7
    s_cselect_b32 s34, s12, s34
    s_cselect_b32 s35, s13, s35
    s_mov_b64 exec, 0xffff
    global_load_dword v167, v3, s[34:35]
    s_mov_b64 exec, -1
L_nowpf:
    """)
    if OPT["wpf"] == 2:
        E(f"""
        s_cmp_lg_u32 s3, 8
        s_cbranch_scc1 L_notch
        s_mul_i32 s30, s{S_P}, {CHUNK*4}
        v_mov_b32 v3, s30
        v_lshlrev_b32 v5, 1, v3
        v_lshlrev_b32 v6, 21, v1
        s_mov_b64 exec, 1
        global_load_dword v167, v3, s[8:9]
        global_load_dword v166, v5, s[6:7]
        s_mov_b64 exec, 31
        global_load_dword v165, v6, s[20:21] sc1
        s_mov_b64 exec, 3
        global_load_dword v164, v6, s[18:19] sc1
        s_mov_b64 exec, -1
L_notch:
        """)
E(f"""
    s_waitcnt lgkmcnt(0)
    s_barrier                               ; B0
    global_load_lds_dwordx4 v7, s[4:5]{NTX}
    s_add_u32 m0, m0, 0x1000
    s_cmp_lg_u32 s33, 0
    global_load_lds_dwordx4 v8, s[4:5]{NTX}
    s_cbranch_scc1 L_x2
    s_add_u32 m0, m0, 0x1000
    s_nop 0
    global_load_lds_dwordx4 v9, s[4:5]{NTX}
L_x2:
    s_barrier
    v_lshrrev_b32 v5, 3, v1
    v_and_b32 v3, 1, v2
    s_and_b32 s30, s3, 1
    s_lshl_b32 s30, s30, 1
    v_or_b32 v3, s30, v3                    ; sigma
    v_lshlrev_b32 v3, 1, v3
    v_and_b32 v20, 7, v1
    v_xor_b32 v3, v3, v20
    v_lshlrev_b32 v3, 4, v3
    v_lshl_add_u32 v10, v5, 8, v3
    s_sub_u32 s28, s3, 4
    s_lshl_b32 s30, s28, 11
    s_lshl_b32 s31, s{S_HALF}, 7
    s_add_u32 s30, s30, s31
    v_add_u32 v10, s30, v10
    v_add_u32 v11, 0x4000, v10
    s_lshl_b32 s28, s28, 10
    s_add_u32 s34, s16, {128*256}
    s_addc_u32 s35, s17, 0
    s_cmp_lg_u32 s3, 11
    s_cbranch_scc1 L_noc
    v_and_b32 v5, 3, v5
    v_lshlrev_b32 v20, 4, v20
    v_lshl_add_u32 v5, v5, 8, v20
    s_add_u32 s31, s31, {256*256}
    s_mov_b32 m0, {L_C}
    v_add_u32 v5, s31, v5
    global_load_lds_dwordx4 v5, s[16:17]
L_noc:
    s_add_u32 m0, s28, {L_WBV}
""")
for ti, base in enumerate((34, 14)):
    for n in range(2):
        E(f"s_nop 0\nglobal_load_lds_dwordx4 v{10+n}, s[{base}:{base+1}]")
        if not (ti == 1 and n == 1):
            E(f"s_add_u32 m0, m0, 0x2000")
if OPT["wgate"]:
    E(f"""
    v_mov_b32 v7, 0x1000000
    s_mov_b64 exec, 1
    ds_add_u32 v36, v7 offset:{L_CTR}
    s_mov_b64 exec, -1
    """)
STAMP(1)
E(f"""
    v_mov_b32 v32, {NULL_SRC}
    v_mov_b32 v33, v32
    v_mov_b32 v34, v32
    v_mov_b32 v35, v32
""")
def cover(lo, n): return list(range(lo, n - 8192, 8192)) + [n - 8192]
for o in cover(16384, L_EAEND - L_EA): E(f"ds_write_b128 v40, v[36:39] offset:{o}")
for o in cover(0, SRCB): E(f"ds_write_b128 v31, v[32:35] offset:{L_SRC + o}")
E(f"""
    v_and_b32 v32, 3, v30           ; quarter
    v_bfe_u32 v33, v30, 3, 3
    v_lshrrev_b32 v34, 5, v30
    s_and_b32 s30, s3, 3
    s_add_u32 s30, s30, 16
    s_cmp_ge_u32 s3, 8
    s_cselect_b32 s31, 7, 3
    s_cselect_b32 s29, 6, 12
    s_cselect_b64 vcc, -1, 0
    v_and_b32 v33, s31, v33
    v_mov_b32 v35, s30
    v_cndmask_b32 v34, v34, v35, vcc
    v_lshl_add_u32 v32, v34, 2, v32
    v_bfe_u32 v34, v30, 2, 1
    v_mul_u32_u24 v35, {NSTR - SSTR}, v34
    v_mul_u32_u24 v41, {L_NODE - L_SRC}, v34
    v_mul_u32_u24 v42, {L_SRC + 80*SSTR - L_DUM}, v34
    v_lshlrev_b32 v43, 4, v34
    v_add_u32 v35, {SSTR}, v35
    v_add_u32 v41, {L_SRC}, v41
    v_sub_u32 v42, {L_SRC + 80*SSTR}, v42
    v_sub_u32 v43, 16, v43
    v_lshlrev_b32 v33, 2, v33
    v_mad_u32_u24 v41, v32, v35, v41
    v_mad_u32_u24 v41, v33, v43, v41
    v_lshlrev_b32 v35, 5, v35
    v_mul_u32_u24 v34, 6, v43
    v_sub_u32 v35, v35, v34
    v_add_u32 v34, 2, v33
    v_cmp_gt_u32 s[48:49], 6, v33
    v_cmp_gt_u32 s[50:51], 6, v34
    v_cmp_gt_u32 s[52:53], s29, v33
    v_cmp_gt_u32 s[54:55], s29, v34
    v_cndmask_b32 v44, v35, 0, s[48:49]
    v_cndmask_b32 v46, v35, 0, s[50:51]
    v_add_u32 v44, v41, v44
    v_lshl_add_u32 v46, v43, 1, v46
    v_add_u32 v46, v41, v46
    v_add_u32 v45, v44, v43
    v_add_u32 v47, v46, v43
    v_cndmask_b32 v44, v42, v44, s[52:53]
    v_cndmask_b32 v45, v42, v45, s[52:53]
    v_cndmask_b32 v46, v42, v46, s[54:55]
    v_cndmask_b32 v47, v42, v47, s[54:55]
    ds_write_b128 v31, v[44:47] offset:{L_LIST}
    s_cmp_ge_u32 s3, 6
    s_cbranch_scc1 L_pf3
    v_mul_u32_u24 v42, {SSTR}, v30
    v_add_u32 v42, {L_SRC}, v42
    v_lshlrev_b32 v41, 2, v30
    ds_write_b32 v41, v42 offset:{L_CNT}
L_pf3:
    v_bfe_u32 v3, v1, 2, 2                  ; r
    v_lshl_add_u32 v5, v2, 3, v3            ; 8g + r
    v_lshrrev_b32 v3, 1, v3
    v_and_b32 v6, 1, v2
    v_lshl_or_b32 v3, v6, 1, v3             ; sigma
    v_xor_b32 v3, s32, v3
    v_lshlrev_b32 v3, 5, v3
    v_lshl_add_u32 v10, v5, 7, v3
    v_and_b32 v3, 3, v1
    v_lshl_add_u32 v10, v3, 3, v10
    s_mul_i32 s31, s33, {L_WAU - L_WBV}
    s_add_u32 s31, s31, {L_WBV}
    v_add_u32 v10, s31, v10
    v_xor_b32 v3, v2, v4
    v_lshlrev_b32 v3, 4, v3
    v_lshl_add_u32 v12, v4, 8, v3
    v_add_u32 v12, {L_X}, v12
    v_xor_b32 v13, 64, v12
    v_xor_b32 v14, 0x80, v12
    v_xor_b32 v15, 0xc0, v12
    s_mul_i32 s30, s{S_HALF}, {G_HALF}
    s_add_u32 s30, s30, s73
    s_lshl_b32 s31, s32, 6
    s_add_u32 s30, s30, s31
    v_lshlrev_b32 v11, 10, v2
    v_lshl_add_u32 v11, v4, 2, v11
    v_add_u32 v11, s30, v11
    s_lshl_b32 s31, s32, 5
    s_add_u32 s31, s31, {L_NODE}
    v_mul_u32_u24 v16, {NSTR}, v4
    v_lshl_add_u32 v16, v2, 3, v16
    v_add_u32 v16, s31, v16
    s_mov_b32 s40, {f32(-LOG2E)}
    s_mov_b32 s42, {f32(2.0**32)}
    s_mov_b32 s44, 0x07060100
    s_mov_b32 s45, 0x07060302
    s_mov_b32 s46, 0x3f80
    v_mov_b32 v17, {f32(2.0**-100)}
    v_mov_b32 v19, 1
    v_mov_b32 v18, 0
""")
get_tag("g", 160)
E(f"""
    s_waitcnt vmcnt(0)
    s_mov_b64 exec, 1
    ds_add_u32 v18, v19 offset:{L_CTR}
    s_mov_b64 exec, -1
""")
STAMP(2)
lds_wait(L_CTR, 0xff, 8, "g1")
STAMP(3)
NP = 8
RA = 72; RB = RA + 4*NP; RAD = RB + 4*NP
J3N, J12, J3N2, CELL, ROWA, FOUR, L0M, ACC, ENT, CAD = 156, 157, 158, 159, 160, 161, 162, 163, 164, 166
def rec_setup():
    E(f"""
    v_and_b32 v3, 15, v1                    ; j
    v_lshrrev_b32 v2, 4, v1
    v_lshl_add_u32 v{CELL}, v2, 3, v3
    s_lshl_b32 s30, s29, 5
    v_add_u32 v{CELL}, s30, v{CELL}
    s_lshl_b32 s30, s{S_BUCK}, 3
    s_add_u32 s30, s30, {WS_ROW}
    v_lshl_add_u32 v{ROWA}, v{CELL}, 10, s30
    v_cmp_gt_u32 s[66:67], {NP}, v3
    v_cmp_gt_u32 vcc, {NCHUNK}, v{CELL}
    v_mov_b32 v{ENT}, 0
    s_and_b64 s[66:67], s[66:67], vcc
    s_mov_b64 exec, s[66:67]
    global_load_dwordx2 v[{ENT}:{ENT+1}], v{ROWA}, s[20:21] sc1
    s_mov_b64 exec, -1
    v_mul_u32_u24 v{CELL}, {SORTB//4}, v{CELL}
    v_add_u32 v{CELL}, {WS_REC//4}, v{CELL}
    v_mul_u32_u24 v{J12}, 12, v3
    v_mul_u32_u24 v{J3N}, 3, v3
    v_not_b32 v{J3N}, v{J3N}
    v_subrev_u32 v{J3N2}, 48, v{J3N}
    v_subrev_u32 v{L0M}, 1, v3
    v_ashrrev_i32 v{L0M}, 31, v{L0M}
    v_mov_b32 v{FOUR}, 4
    """)
WF = 20; XF = 52; AC = 132
def wreads(ks):
    for t in range(2):
        for rd in range(2):
            r = WF + 16*t + 4*ks + 2*rd
            E(f"ds_read_b64_tr_b16 v[{r}:{r+1}], v10 offset:{t*16384 + ks*4096 + rd*512}")
def xread(rt, ks):
    r = XF + 16*rt + 4*ks
    return f"ds_read_b128 v[{r}:{r+3}], v{12+ks} offset:{rt*4096}"
def mf(rt, ks, transposed):
    for t in range(2):
        a = XF + 16*rt + 4*ks; w = WF + 16*t + 4*ks; d = AC + 8*(rt % 3) + 4*t
        c = "0" if ks == 0 else f"v[{d}:{d+3}]"
        if transposed: a, w = w, a
        E(f"v_mfma_f32_16x16x32_bf16 v[{d}:{d+3}], v[{a}:{a+3}], v[{w}:{w+3}], {c}")
def gemm(transposed, finish, before_first):
    for ks in range(3):
        E(xread(0, ks)); wreads(ks)
    E("s_waitcnt lgkmcnt(10)"); mf(0, 0, transposed)
    E(xread(0, 3)); wreads(3)
    E("s_waitcnt lgkmcnt(10)"); mf(0, 1, transposed)
    for ks in range(4): E(xread(1, ks))
    E("s_waitcnt lgkmcnt(9)"); mf(0, 2, transposed)
    for ks in range(4): E(xread(2, ks))
    E("s_waitcnt lgkmcnt(8)"); mf(0, 3, transposed)
    for ks in range(4): E(xread(3, ks))
    E("s_waitcnt lgkmcnt(8)")
    for ks in range(4):
        mf(1, ks, transposed); E(xread(4, ks))
    E(f"""
    s_mov_b64 exec, 1
    ds_add_u32 v18, v19 offset:{L_RD}
    s_mov_b64 exec, -1
    """)
    before_first()
    finish(0)
    E("s_waitcnt lgkmcnt(0)")
    for rt in range(2, 5):
        for ks in range(4): mf(rt, ks, transposed)
        finish(rt-1)
    finish(4)
def pack(rt):
    b = AC + 8*(rt % 3); h = b + 4
    for r in range(4): E(f"v_mul_f32 v{b+r}, s40, v{b+r}")
    for r in range(4): E(f"v_fma_f32 v{h+r}, v{h+r}, s42, v17")
    E(f"""
    v_cvt_pk_bf16_f32 v4, v{b}, v{b+1}
    v_cvt_pk_bf16_f32 v5, v{b+2}, v{b+3}
    v_xor_b32 v2, 0x80008000, v4
    v_xor_b32 v3, 0x80008000, v5
    v_sub_u32_sdwa v{h}, v{h}, sext(v2) dst_sel:DWORD dst_unused:UNUSED_PAD src0_sel:DWORD src1_sel:WORD_0
    v_sub_u32_sdwa v{h+1}, v{h+1}, sext(v2) dst_sel:DWORD dst_unused:UNUSED_PAD src0_sel:DWORD src1_sel:WORD_1
    v_sub_u32_sdwa v{h+2}, v{h+2}, sext(v3) dst_sel:DWORD dst_unused:UNUSED_PAD src0_sel:DWORD src1_sel:WORD_0
    v_sub_u32_sdwa v{h+3}, v{h+3}, sext(v3) dst_sel:DWORD dst_unused:UNUSED_PAD src0_sel:DWORD src1_sel:WORD_1
    """)
    w = (OPT["gp"] >> (4*(4-rt))) & 15 if OPT["gp"] else OPT["gpace"]
    if 0 <= w < 4*rt: E(f"s_waitcnt vmcnt({w})")
    if OPT["pre"] and rt == 5 - OPT["pre"]: lds_wait(L_SCNT + 126*4, 0xff, 4, "pre")
    if OPT["ghold"] == rt + 1:
        E("v_mov_b32 v6, v2\nv_mov_b32 v7, v3"); lds_wait(L_CTR, 0xff00, 0x400, "gh", sleep=1); E("v_mov_b32 v2, v6\nv_mov_b32 v3, v7")
    for r in range(4):
        E(f"v_perm_b32 v{h+r}, v{h+r}, v{4 + (r>>1)}, s{44 + (r&1)}")
        if OPT["gwin"] >= 0: E(f"s_waitcnt vmcnt({OPT['gwin']})")
        E(f"global_store_dword v11, v{h+r}, s[20:21] offset:{256*r} sc1")
    if rt < 4: E("v_add_u32 v11, 0x1000, v11")
def fin(rt):
    a = AC + 8*(rt % 3); u = a + 4
    for r in range(4): E(f"v_mul_f32 v{a+r}, s40, v{a+r}")
    for r in range(4): E(f"v_mul_f32 v{u+r}, s42, v{u+r}")
    E(f"""
    v_cvt_pk_bf16_f32 v{a}, v{a}, v{a+1}
    v_cvt_pk_bf16_f32 v{a+1}, v{a+2}, v{a+3}
    v_cvt_f64_f32 v[2:3], v{u}
    v_cvt_f64_f32 v[4:5], v{u+1}
    v_cvt_f64_f32 v[6:7], v{u+2}
    v_cvt_f64_f32 v[8:9], v{u+3}
    ds_write_b64 v16, v[{a}:{a+1}] offset:512
    ds_write2_b64 v16, v[2:3], v[4:5] offset0:0 offset1:16
    ds_write2_b64 v16, v[6:7], v[8:9] offset0:32 offset1:48
    """)
    if rt < 4: E(f"v_add_u32 v16, {16*NSTR}, v16")
E(f"""
    s_cmp_lg_u32 s33, 0
    s_cbranch_scc1 L_gemm2
    s_cmp_lg_u32 s{S_SAFE}, 0
    s_cbranch_scc1 L_nog1
    s_setprio 2
""")
gemm(False, pack, lambda: lds_wait(L_CTR, {1: 0x80000, 2: 0xc0000}[OPT["hold"]], 0, "hold", sleep=1, ne=True) if OPT["hold"] else None)
E("s_setprio 0")
if OPT["gate"]:
    E(f"""
    s_mov_b64 exec, 1
    ds_add_u32 v18, v19 offset:{L_GST}
    s_mov_b64 exec, -1
    """)
STAMP(4)
main_consts()
E(f"""
    s_lshl_b32 s30, s{S_P}, 7
    s_add_u32 s30, s30, {WS_FL2}
    v_mov_b32 v60, s30
    v_mov_b32 v62, s{S_TAG}
    v_mov_b32 v63, s{S_TAG+1}
    v_mov_b32 v2, 0
    v_mov_b32 v3, 1
    s_lshl_b32 s30, s32, 13
    s_lshl_b32 s31, s{S_HALF}, 7
    s_add_u32 s30, s30, s31
    s_add_u32 s30, s30, {WS_FL2}
    v_lshl_add_u32 v64, v1, 8, s30
    s_mul_i32 s30, s32, {2560*256}
    s_lshr_b32 s31, s2, 3
    s_mul_i32 s31, s31, {160*128}
    s_add_u32 s30, s30, s31
    v_lshl_add_u32 v65, v1, 7, s30
    v_min_u32 v65, {G_HALF - 128}, v65
    s_mul_i32 s30, s{S_HALF}, {G_HALF}
    v_add_u32 v65, s30, v65
    s_mov_b64 exec, 1
    s_waitcnt vmcnt(0)
    ds_add_rtn_u32 v61, v2, v3 offset:{L_DONE2}
    s_waitcnt lgkmcnt(0)
    v_readfirstlane_b32 s30, v61
    s_cmp_lg_u32 s30, 3
    s_cbranch_scc1 L_nofl
    global_store_dwordx2 v60, v[62:63], s[20:21] sc1
    ds_add_u32 v2, v3 offset:{L_DONE2}
L_nofl:
""")
STAMP(5)
if OPT["p2gate"]:
    E("s_mov_b64 exec, -1")
    lds_wait(L_CTR, 0xff0000, 0x080000, "pg", sleep=1)
    E("s_mov_b32 exec_hi, 0")
if OPT["p2wait"]: E(f"s_sleep {OPT['p2wait']}")
STAMP(6)
def gready():
    if OPT["gpf"]:
        E(f"""
        {"s_bfm_b64 exec, %d, 0" % OPT["gpf"] if OPT["gpf"] < 64 else "s_mov_b64 exec, -1"}
        global_load_dword v35, v65, s[20:21] sc1
        """)
    E(f"""
    s_mov_b64 exec, 1
    v_mov_b32 v2, 0
    v_mov_b32 v3, 1
    ds_add_u32 v2, v3 offset:{L_GOK}
    """)
E(f"""
    s_cmp_eq_u32 s32, 3
    s_cselect_b32 exec_lo, 0x1fffffff, -1
    {"" if OPT["p1st"] else "s_mov_b64 s[66:67], exec"}
    {"" if OPT["p1st"] else "s_branch L_p2n"}
    global_load_dwordx2 v[66:67], v64, s[20:21] sc1
    s_waitcnt vmcnt(0)
    v_cmp_ne_u64 s[66:67], s[{S_TAG}:{S_TAG+1}], v[66:67]
    s_cmp_lg_u64 s[66:67], 0
    s_cbranch_scc1 L_p2n
""")
gready()
E("L_p2n:\ns_mov_b64 exec, -1")
STAMP(7)
E(f"""
    s_branch L_b4
L_nog1:
    s_mov_b64 exec, 1
    ds_add_u32 v18, v19 offset:{L_RD}
    s_mov_b64 exec, -1
    s_branch L_rec
L_gemm2:
""")
E(f"""
    v_lshrrev_b32 v5, 3, v1
    v_bfe_u32 v3, v1, 4, 1
    v_lshlrev_b32 v3, 1, v3
    v_and_b32 v4, 7, v1
    v_xor_b32 v3, v3, v4
    v_lshlrev_b32 v3, 4, v3
    v_lshl_add_u32 v6, v5, 8, v3
    s_lshl_b32 s30, s{S_HALF}, 7
    s_and_b32 s31, s3, 1
    s_lshl_b32 s31, s31, 14
    s_add_u32 s30, s30, s31
    v_add_u32 v6, s30, v6
    v_xor_b32 v7, 64, v6
    v_add_u32 v8, 2048, v6
    v_add_u32 v9, 3072, v7
    v_add_u32 v7, 1024, v7
    s_lshl_b32 s30, s32, 13
    s_add_u32 m0, s30, {L_WAU}
    s_cmp_lt_u32 s32, 2
    s_cselect_b32 s34, s16, s12
    s_cselect_b32 s35, s17, s13
    global_load_lds_dwordx4 v6, s[34:35]
    global_load_lds_dwordx4 v7, s[34:35] offset:1024
    global_load_lds_dwordx4 v8, s[34:35] offset:2048
    global_load_lds_dwordx4 v9, s[34:35] offset:3072
    s_add_u32 m0, m0, 4096
    s_add_u32 s34, s34, 8192
    s_addc_u32 s35, s35, 0
    global_load_lds_dwordx4 v6, s[34:35]
    global_load_lds_dwordx4 v7, s[34:35] offset:1024
    global_load_lds_dwordx4 v8, s[34:35] offset:2048
    global_load_lds_dwordx4 v9, s[34:35] offset:3072
""")
for rt in range(5):
    for ks in range(4): E(xread(rt, ks))
E(f"""
    s_mov_b64 exec, 1
    ds_add_u32 v18, v19 offset:{L_RD}
    s_mov_b64 exec, -1
""")
E(f"""
    s_mov_b64 exec, 1
    s_waitcnt vmcnt(0)
    ds_add_u32 v18, v19 offset:{L_RD}
    s_mov_b64 exec, -1
    s_sub_u32 s29, s3, 4
""")
rec_setup()
lds_wait(L_RD, 0xff, 12, "rd")
for ks in range(4): wreads(ks)
for ks in range(4):
    E(f"s_waitcnt lgkmcnt({12 - 4*ks})"); mf(0, ks, True)
for rt in range(1, 5):
    for ks in range(4): mf(rt, ks, True)
    fin(rt-1)
fin(4)
STAMP(4)
E(f"""
    s_branch L_rec
L_sort:
""")
STAMP(1)
E(f"""
    s_mov_b32 s40, {f32(-LOG2E)}
    s_mov_b32 s46, 0x3f80
    s_cmp_lg_u32 s{S_SAFE}, 0
    s_cbranch_scc1 L_sortskip
    v_mov_b32 v21, 1
    v_mov_b32 v20, 3
    s_mov_b32 s31, 52429
    s_movk_i32 s32, -20
    v_lshlrev_b32 v9, 3, v1
    v_lshlrev_b32 v33, 4, v0
    s_mul_i32 s30, s{S_P}, {SORTB}
    s_add_u32 s30, s30, {WS_REC + 4096}
    v_add_u32 v32, s30, v33
    v_add_u32 v34, 8192, v32
    s_lshl_b32 s30, s{S_P}, 10
    s_add_u32 s30, s30, {WS_ROW}
    v_lshl_add_u32 v42, v1, 4, s30
    s_mov_b32 s34, {POLL_MAX}
    s_setprio 3
    s_waitcnt vmcnt({1 + OPT['pre']})
""")
STAMP(2)
FSTAMP(1)
for i in range(5):
    E(f"""
    v_mul_u32_u24 v{22+i}, s31, v{4+i}
    v_lshrrev_b32 v{22+i}, 22, v{22+i}
    v_lshlrev_b32 v{22+i}, 2, v{22+i}        ; bucket*4
    ds_add_rtn_u32 v{27+i}, v{22+i}, v20 offset:{L_SCNT}
    """)
E(f"""
    s_mov_b64 exec, 1
    s_cmp_lg_u32 s3, 0
    s_cbranch_scc1 L_notag
    s_waitcnt vmcnt({OPT['pre']})
    ds_write_b32 v48, v43 offset:{L_SCNT + 125*4}
L_notag:
    ds_add_u32 v48, v21 offset:{L_SCNT + 127*4}
    s_mov_b64 exec, -1
""")
if OPT["ewhen"] == 1: E(f"""
    global_load_dwordx4 v[12:15], v3, s[8:9]{NTE}
    global_load_dword v16, v18, s[8:9]{NTE}
    global_load_dwordx4 v[52:55], v10, s[6:7]{NTE}
    global_load_dwordx4 v[56:59], v10, s[6:7] offset:16{NTE}
    global_load_dwordx2 v[60:61], v11, s[6:7]{NTE}
""")
E(f"""
L_s1:
    ds_read_b32 v38, v48 offset:{L_SCNT + 127*4}
    ds_read_b64 v[36:37], v9 offset:{L_SCNT}
    s_sub_u32 s34, s34, 1
    s_cbranch_scc1 L_s1d
    s_waitcnt lgkmcnt(0)
    v_readfirstlane_b32 s30, v38
    s_cmp_lg_u32 s30, 4
    s_cbranch_scc1 L_s1
L_s1d:
""")
FSTAMP(2)
E(f"""
    v_add3_u32 v39, v36, v37, 2
    v_add3_u32 v38, v36, v37, 2
    v_readlane_b32 s{S_TAGRAW}, v37, 62
""")
fill = []
for i in range(5):
    fill += [f"v_mad_i32_i24 v{4+i}, v{22+i}, s32, v{4+i}", f"v_lshlrev_b32 v{4+i}, 24, v{4+i}"]
for k, m in enumerate(SCAN):
    E(f"v_add_u32_dpp v39, v39, v39 {m}")
    for x in fill[2*k:2*k+2]: E(x)
E(f"""
    v_sub_u32 v40, v39, v38
    v_add3_u32 v41, v40, v36, 1
    s_mov_b32 s30, {L_SORT}
    v_lshl_add_u32 v38, v40, 2, s30
    v_lshl_add_u32 v39, v41, 2, s30
    ds_write_b64 v9, v[38:39] offset:{L_SOFF}
""")
for i in range(5):
    E(f"ds_read_b32 v{22+i}, v{22+i} offset:{L_SOFF}")
finish_tag()
E(f"""
    s_cmp_lg_u32 s3, 0
    s_cbranch_scc1 L_nopub
    s_and_b32 s35, s{S_TAG+1}, 0xff000000
    v_mov_b32 v45, s{S_TAG}
    v_mov_b32 v47, s{S_TAG}
    v_lshl_or_b32 v44, v36, 12, v40
    v_lshl_or_b32 v46, v37, 12, v41
    v_or_b32 v44, s35, v44
    v_or_b32 v46, s35, v46
    global_store_dwordx4 v42, v[44:47], s[20:21] sc1
    {"s_waitcnt vmcnt(1)" if OPT["ewhen"] == 1 else ""}
    s_branch {"L_pub" if OPT["ewhen"] == 1 else "L_nochk"}
L_nopub:
    s_cmp_lg_u32 s3, 1
    s_cbranch_scc1 L_nochk
    v_mov_b32 v44, s{S_TAG+1}
    s_mov_b32 exec_hi, 0x7fffffff
    ds_add_u32 v38, v44
    ds_add_u32 v39, v44
    s_mov_b32 exec_hi, -1
L_nochk:
""")
if OPT["ewhen"] == 2: E(f"""
    global_load_dwordx4 v[12:15], v3, s[8:9]{NTE}
    global_load_dword v16, v18, s[8:9]{NTE}
    global_load_dwordx4 v[52:55], v10, s[6:7]{NTE}
    global_load_dwordx4 v[56:59], v10, s[6:7] offset:16{NTE}
    global_load_dwordx2 v[60:61], v11, s[6:7]{NTE}
""")
E(f"""
    s_waitcnt vmcnt(0)
L_pub:
""")
STAMP(4)
FSTAMP(3)
for i in range(5): E(f"v_lshl_or_b32 v{4+i}, v{12+i}, 8, v{4+i}")
E("s_waitcnt lgkmcnt(0)")
for i in range(5):
    E(f"""
    v_lshl_add_u32 v{27+i}, v{27+i}, 2, v{22+i}
    v_add3_u32 v{12+i}, v{52+2*i}, v{53+2*i}, v{4+i}
    ds_write2_b32 v{27+i}, v{52+2*i}, v{53+2*i} offset0:2 offset1:3
    ds_write_b32 v{27+i}, v{4+i} offset:4
    ds_sub_u32 v{22+i}, v{12+i}
    """)
E(f"""
    s_mov_b64 exec, 1
    ds_add_u32 v48, v21 offset:{L_SCNT + 126*4}
    s_mov_b64 exec, -1
""")
FSTAMP(4)
E(f"""
    s_mov_b32 s34, {POLL_MAX}
L_s2:
    ds_read_b32 v38, v48 offset:{L_SCNT + 126*4}
    {f"ds_read_b32 v39, v48 offset:{L_CTR}" if OPT["wgate"] else ""}
    ds_read_b128 v[72:75], v33 offset:{L_SORT}
    s_sub_u32 s34, s34, 1
    s_cbranch_scc1 L_s2d
    s_waitcnt lgkmcnt(1)
    v_readfirstlane_b32 s30, v38
""")
if OPT["wgate"]:
    E(f"""
    v_readfirstlane_b32 s31, v39
    s_lshr_b32 s31, s31, 24
    s_add_u32 s30, s30, s31
    """)
E(f"""
    s_cmp_lg_u32 s30, {12 if OPT["wgate"] else 4}
    s_cbranch_scc1 L_s2
L_s2d:
""")
FSTAMP(5)
E(f"""
    ds_read_b128 v[76:79], v33 offset:{L_SORT + 4096}
    ds_read_b128 v[80:83], v33 offset:{L_SORT + 8192}
    ds_read_b128 v[84:87], v33 offset:{L_SORT + 12288}
    s_waitcnt lgkmcnt(3)
    global_store_dwordx4 v32, v[72:75], s[20:21] offset:-4096 sc1
    s_waitcnt lgkmcnt(2)
    global_store_dwordx4 v32, v[76:79], s[20:21] sc1
    s_waitcnt lgkmcnt(1){f" vmcnt({OPT['rpace']})" if OPT['rpace'] >= 0 else ""}
    global_store_dwordx4 v34, v[80:83], s[20:21] offset:-4096 sc1
    s_cmp_eq_u32 s3, 3
    s_cselect_b32 exec_hi, 0, -1
    s_waitcnt lgkmcnt(0){f" vmcnt({OPT['rpace']})" if OPT['rpace'] >= 0 else ""}
    global_store_dwordx4 v34, v[84:87], s[20:21] sc1
    s_mov_b32 exec_hi, -1
""")
FSTAMP(6)
for k in range(4): E(f"ds_write_b128 v33, v[48:51] offset:{L_SORT + 4096*k}")
STAMP(3)
FSTAMP(7)
E(f"""
    s_branch L_sortdone
L_sortskip:
    s_waitcnt vmcnt(0)
L_sortdone:
    s_mov_b32 s29, s3
""")
rec_setup()
E(f"""
L_rec:
""")
lds_wait(L_CTR, 0xff, 8, "r0")
main_consts()
STAMP(5)
E(f"""
    s_cmp_ge_u32 s3, 4
    s_cbranch_scc1 L_nod2
    v_mov_b32 v2, 0
    v_mov_b32 v3, 0x100
    s_mov_b64 exec, 1
    s_waitcnt vmcnt(0)
    ds_add_u32 v2, v3 offset:{L_CTR}
    s_mov_b64 exec, -1
L_nod2:
    s_cmp_lg_u32 s{S_SAFE}, 0
    s_cbranch_scc1 L_recskip
    s_lshr_b32 s35, s{S_TAG+1}, 24
    s_mov_b64 exec, s[66:67]
    s_mov_b32 s34, {POLL_MAX}
    s_branch L_p1c
L_p1:
    global_load_dwordx2 v[{ENT}:{ENT+1}], v{ROWA}, s[20:21] sc1
L_p1c:
    s_sub_u32 s34, s34, 1
    s_cbranch_scc1 L_toobig
    s_waitcnt vmcnt(0)
    v_cmp_ne_u32 vcc, s{S_TAG}, v{ENT+1}
    v_cmp_ne_u32_sdwa s[48:49], v{ENT}, s35 src0_sel:BYTE_3 src1_sel:DWORD
    s_or_b64 exec, vcc, s[48:49]
    s_cbranch_scc1 L_p1
    s_mov_b64 exec, -1
""")
STAMP(6)
if OPT["cnt"]: E(f"s_sub_u32 s{ST0+2}, {POLL_MAX+1}, s34\ns_mov_b32 s34, {POLL_MAX}")
E(f"""
    v_and_b32 v{CAD}, 0xfff, v{ENT}
    v_bfe_u32 v{ENT}, v{ENT}, 12, 12            ; 3*count
    v_add_lshl_u32 v{CAD}, v{CAD}, v{CELL}, 2
    v_cmp_ne_u32 vcc, 0, v{ENT}
    s_sub_u32 s30, 0, s{S_TAG+1}
    v_mov_b32 v2, s30
    v_cndmask_b32 v{ENT+1}, 0, v2, vcc
    v_cmp_lt_u32 vcc, 96, v{ENT}
    v_cmp_lt_u32 s[68:69], 48, v{ENT}
    s_cbranch_vccnz L_toobig
""")
for p in range(NP):
    E(f"""
    v_add_co_u32_dpp v2, vcc, v{ENT}, v{J3N} row_newbcast:{p} row_mask:0xf bank_mask:0xf
    v_add_u32_dpp v{RAD+p}, v{CAD}, v{J12} row_newbcast:{p} row_mask:0xf bank_mask:0xf
    s_mov_b64 s[{48+2*p}:{49+2*p}], vcc
    """)
lds_wait(L_CTR, 0xff00, 0x400, "r1")
if OPT["gate"]: lds_wait(L_GST, 0xff, 4, "gt")
if OPT["gate2"]:
    E("s_cmp_lt_u32 s3, 4\ns_cbranch_scc1 L_wd_g2")
    lds_wait(L_DONE2, 0xff, 5, "g2")
E(f"""
    s_or_b32 s68, s68, s69
    s_lshr_b32 s69, s68, 16
    s_or_b32 s68, s68, s69
""")
def mask2(p): return f"v_add_co_u32_dpp v2, vcc, v{ENT}, v{J3N2} row_newbcast:{p} row_mask:0xf bank_mask:0xf"
def loads(ps, lab):
    E(f"s_and_b32 s30, s68, {sum(1 << p for p in ps)}\ns_cbranch_scc0 L_nx{lab}")
    for p in ps:
        r = RB + 4*p
        E(f"""
        s_bitcmp1_b32 s68, {p}
        s_cbranch_scc0 L_nx{lab}{p}
        {mask2(p)}
        s_mov_b64 exec, vcc
        global_load_dwordx4 v[{r}:{r+3}], v{RAD+p}, s[20:21] offset:192 sc1
        s_mov_b64 exec, -1
L_nx{lab}{p}:
        """)
    E(f"L_nx{lab}:")
    for p in ps:
        r = RA + 4*p
        E(f"""
        s_mov_b64 exec, s[{48+2*p}:{49+2*p}]
        global_load_dwordx4 v[{r}:{r+3}], v{RAD+p}, s[20:21]{SC1 if (OPT["rsc1"] or lab != "m") else ""}
        """)
    E("s_mov_b64 exec, -1")
loads(range(NP), "m")
def issued():
    if OPT["p2gate"]:
        E(f"""
        v_mov_b32 v2, 0
        v_mov_b32 v3, 0x10000
        s_mov_b64 exec, 1
        ds_add_u32 v2, v3 offset:{L_CTR}
        s_mov_b64 exec, -1
        """)
if not OPT["sig"]: issued()
STAMP(7)
def rank(r, m):
    E(f"""
    s_mov_b64 exec, {m}
    v_mul_u32_u24_sdwa v{r}, v{FOUR}, v{r+1} dst_sel:DWORD dst_unused:UNUSED_PAD src0_sel:DWORD src1_sel:BYTE_3
    v_and_b32 v{r+1}, {OPT['srcmask']}, v{r+1}
    ds_add_rtn_u32 v{r}, v{r}, v{FOUR} offset:{L_CNT}
    """)
def put(r, m):
    E(f"""
    s_mov_b64 exec, {m}
    v_lshlrev_b32 v2, 1, v{r}
    ds_write_b32 v{r}, v{r+1}
    ds_write_b64 v2, v[{r+2}:{r+3}] offset:{L_EA - 2*L_SRC}
    """)
retries = []
pending = []
for gi, grp in enumerate(((0, 1, 2, 3), (4, 5), (6, 7))):
    bits = sum(1 << p for p in grp); m32 = bits | (bits << 16)
    E(f"""
L_ck{gi}:
    s_mov_b32 vcc_lo, {m32}
    s_mov_b32 vcc_hi, {m32}
    v_cndmask_b32 v{ACC}, 0, v{ENT+1}, vcc
    s_and_b32 s30, s68, {bits}
    s_cbranch_scc1 L_xa{gi}
L_xb{gi}:
    """)
    def xacc():
        E(f"L_xa{gi}:\ns_waitcnt vmcnt({NP})")
        for p in grp:
            r = RB + 4*p
            E(f"""
            {mask2(p)}
            s_mov_b64 exec, vcc
            v_add3_u32 v{ACC}, v{ACC}, v{r+1}, v{r+2}
            v_add_u32 v{ACC}, v{ACC}, v{r+3}
            s_mov_b64 exec, -1
            """)
        E(f"s_branch L_xb{gi}")
    emit_to(outofline, xacc)
    for p in grp:
        r = RA + 4*p
        E(f"""
        s_waitcnt vmcnt({NP-1-p})
        s_mov_b64 exec, s[{48+2*p}:{49+2*p}]
        v_and_b32 v{r}, v{r}, v{L0M}
        v_add3_u32 v{ACC}, v{ACC}, v{r+2}, v{r+3}
        v_add3_u32 v{ACC}, v{ACC}, v{r}, v{r+1}
        """)
    E("s_mov_b64 exec, -1\ns_nop 0")
    for k in (1, 2, 4, 8):
        E(f"v_add_u32_dpp v{ACC}, v{ACC}, v{ACC} row_ror:{k} row_mask:0xf bank_mask:0xf")
        if k < 8: E("s_nop 1")
    E(f"v_cmp_ne_u32 vcc, 0, v{ACC}\ns_cbranch_vccnz L_rt{gi}")
    if OPT["rst"]: STAMP(1+gi)
    if OPT["sig"] == gi + 1: issued()
    def retry():
        E(f"L_rt{gi}:\ns_sub_u32 s34, s34, 1\ns_cbranch_scc1 {'L_toobig' if gi < OPT['sig'] else 'L_giveup'}")
        loads(grp, f"r{gi}_")
        E(f"s_waitcnt vmcnt(0)\ns_branch L_ck{gi}")
    emit_to(outofline, retry)
    for p in grp: rank(RA + 4*p, f"s[{48+2*p}:{49+2*p}]")
    E(f"s_and_b32 s30, s68, {bits}\ns_cbranch_scc1 L_ya{gi}\nL_yb{gi}:")
    def xput():
        E(f"L_ya{gi}:")
        for p in grp:
            r = RB + 4*p
            E(f"""
            s_bitcmp1_b32 s68, {p}
            s_cbranch_scc0 L_yn{p}
            s_mov_b64 exec, -1
            {mask2(p)}
            """)
            rank(r, "vcc")
            E("s_waitcnt lgkmcnt(0)")
            put(r, "vcc")
            E(f"L_yn{p}:")
        E(f"s_branch L_yb{gi}")
    emit_to(outofline, xput)
    for k, p in enumerate(grp):
        E(f"s_waitcnt lgkmcnt({len(grp) - 1 - k + 2*k})")
        put(RA + 4*p, f"s[{48+2*p}:{49+2*p}]")
    E("s_mov_b64 exec, -1")
E(f"""
    {f"s_sub_u32 s{ST0+4}, {POLL_MAX+1}, s34" if OPT["cnt"] else ""}
    s_branch L_b4
L_toobig:
    s_mov_b64 exec, -1
""")
issued()
E(f"""
L_giveup:
    v_mov_b32 v2, 0
    ds_write_b32 v2, v{FOUR} offset:{L_FLAG}
L_recskip:
    s_waitcnt vmcnt(0)
L_b4:
    s_setprio {OPT["p0"] if OPT["prio"] == 2 else 0}
    s_mul_i32 s30, s{S_HALF}, {G_HALF}
    {f"s_add_u32 s30, s30, {WS0}" if WS0 else ""}
    s_add_u32 s36, s20, s30
    s_addc_u32 s37, s21, 0
    s_mov_b32 s38, {OPT['nrec'] or G_HALF}
    s_mov_b32 s39, 0x20000
    s_mov_b32 s44, 128
    s_mov_b32 s45, 128
    ds_read_b128 v[60:63], v{LP}
    ds_read_b64 v[{AG}:{AG+1}], v{LP} offset:64
    ds_read_b64 v[{WN2}:{WN2+1}], v{LP} offset:72
    ds_read_b32 v{WE}, v{LP+1}
    s_waitcnt lgkmcnt(0)
    v_lshl_add_u64 v[{AG}:{AG+1}], v[{AG}:{AG+1}], 0, v[{LN8}:{LN8+1}]
    v_lshl_add_u32 v{WE}, v{WE}, 1, v{EAC}
""")
if OPT["warm"]:
    E(f"""
    s_barrier
    s_lshr_b32 s30, s2, 3
    s_mul_i32 s30, s30, 98304
    v_lshl_add_u32 v2, v0, 7, s30
    buffer_load_dword v3, v2, s[36:39], 0 offen sc1
    s_waitcnt vmcnt(0)
    s_sleep 40
    """)
STAMP(8)
E(f"""
    s_barrier                               ; B4
    s_cmp_lg_u32 s{S_SAFE}, 0
    s_cbranch_scc1 L_safe
    ds_read_b128 v[{T}:{T+3}], v60
    ds_read_b128 v[{T+4}:{T+7}], v61
    ds_read_b64 v[{XA}:{XA+1}], v{AG} offset:512
    ds_read_b64 v[{EA}:{EA+1}], v{WE}
    s_lshr_b32 s30, s3, 2
    s_cmp_lg_u32 s30, 1
    s_cbranch_scc1 L_nopoll
    s_mov_b64 exec, s[66:67]
    s_cbranch_execz L_p2e
    s_mov_b32 s31, {POLL_MAX}
L_p2:
    global_load_dwordx2 v[66:67], v64, s[20:21] sc1
    s_sub_u32 s31, s31, 1
    s_cbranch_scc1 L_p2d
    s_waitcnt vmcnt(0)
    v_cmp_ne_u64 vcc, s[{S_TAG}:{S_TAG+1}], v[66:67]
    s_and_b64 exec, exec, vcc
    s_cbranch_scc0 L_p2d
    {f"s_sleep {OPT['p2sleep']}" if OPT['p2sleep'] else ""}
    s_branch L_p2
L_p2d:
""")
gready()
E(f"""
L_p2e:
    s_mov_b64 exec, -1
L_nopoll:
    s_cmp_lt_u32 s3, {NW-2}
    s_cbranch_scc1 L_nobuild
    v_lshlrev_b32 v2, 3, v1
    v_mov_b32 v3, 0
    ds_read_b64 v[72:73], v2 offset:{L_CNT}
    ds_read_b32 v79, v3 offset:{L_FLAG}
    v_mul_u32_u24 v74, {2*SSTR}, v1
    v_add_u32 v74, {L_SRC + 96}, v74
    v_add_u32 v75, {SSTR}, v74
    v_mul_u32_u24 v82, {2*NSTR}, v1
    s_and_b32 s32, s3, 1
    s_mul_i32 s30, s32, {NSTR}
    s_add_u32 s30, s30, {L_NODE}
    v_add_u32 v82, s30, v82
    v_mov_b32 v83, v82
    s_mul_i32 s30, s32, {SSTR}
    v_add_u32 v80, s30, v74
    v_add_u32 v81, 16, v80
    s_waitcnt lgkmcnt(0)
    v_sub_u32 v72, v72, v74 clamp
    v_sub_u32 v73, v73, v75 clamp
    v_max_u32 v76, v72, v73
    v_cmp_lt_u32 vcc, 160, v76
    v_cmp_ne_u32 s[48:49], 0, v79
    v_add_u32 v74, 12, v72
    v_add_u32 v75, 12, v73
    s_or_b64 vcc, vcc, s[48:49]
    s_cbranch_scc1 L_bad
    v_add_u32 v72, 28, v72
    v_add_u32 v73, 28, v73
    v_lshrrev_b32 v74, 5, v74
    v_lshrrev_b32 v75, 5, v75
    v_lshrrev_b32 v72, 5, v72
    v_lshrrev_b32 v73, 5, v73
    v_sub_u32 v72, v72, v74
    v_sub_u32 v73, v73, v75
    v_lshl_or_b32 v72, v72, 16, v74
    v_lshl_or_b32 v73, v73, 16, v75
    v_add_u32 v76, v72, v73
    v_add_u32 v77, v72, v73
""")
scan(77)
E(f"""
    s_cmp_eq_u32 s32, 0
    s_cselect_b64 vcc, -1, 0
    v_readlane_b32 s30, v77, 63
    v_cndmask_b32 v76, v73, v76, vcc
    v_cndmask_b32 v72, v73, v72, vcc
    v_sub_u32 v77, v77, v76
    s_and_b32 s31, s30, 0xffff
    s_add_u32 s31, s31, 3
    s_lshr_b32 s31, s31, 2
    s_add_u32 s30, s30, 0x30000
    s_lshr_b32 s30, s30, 18
    s_lshl_b32 s33, s31, 1
    s_add_u32 s33, s33, s30
    s_cmp_gt_u32 s33, 112
    s_cbranch_scc1 L_bad
    s_lshl_b32 s30, s30, 8
    s_or_b32 s29, s30, s31
    v_and_b32 v74, 0xffff, v72
    v_and_b32 v76, 0xffff, v77
    s_mov_b32 s34, {L_LISTC}
    s_mov_b32 s35, {L_LIST + 384}
""")
def slotaddr():
    E(f"""
    v_add_u32 v78, 16, v76
    v_bfe_u32 v79, v76, 2, 2
    v_lshl_add_u32 v79, v79, 10, s34
    v_lshrrev_b32 v84, 5, v78
    v_lshl_add_u32 v79, v84, 7, v79
    v_bfe_u32 v84, v78, 4, 1
    v_lshl_add_u32 v79, v84, 3, v79
    v_lshrrev_b32 v84, 2, v76
    v_cmp_gt_u32 vcc, 32, v76
    v_lshl_add_u32 v84, v84, 9, s35
    v_and_b32 v78, 3, v76
    v_cndmask_b32 v79, v79, v84, vcc
    v_lshl_add_u32 v79, v78, 4, v79
    """)
E("""
L_bf:
    v_cmp_ne_u32 vcc, 0, v74
    s_and_b64 exec, exec, vcc
    s_cbranch_execz L_bfd
""")
slotaddr()
E(f"""
    ds_write_b64 v79, v[80:81]
    ds_write_b64 v79, v[82:83] offset:64
    v_add_u32 v80, 32, v80
    v_add_u32 v81, 32, v81
    v_add_u32 v76, 1, v76
    v_subrev_u32 v74, 1, v74
    s_branch L_bf
L_bfd:
    s_mov_b64 exec, -1
    v_lshrrev_b32 v77, 16, v77
    v_lshrrev_b32 v76, 3, v77
    v_add_u32 v76, s31, v76
    v_and_b32 v78, 3, v77
    v_lshl_add_u32 v76, v76, 2, v78
""")
slotaddr()
E(f"""
    v_and_b32 v78, 4, v77
    v_add_u32 v79, v79, v78
    v_cmp_lt_u32 vcc, 0xffff, v72
    s_mov_b64 exec, vcc
    ds_write2_b32 v79, v80, v82 offset0:0 offset1:16
    s_mov_b64 exec, -1
    s_mul_i32 s29, s29, s32
    s_add_u32 s29, s29, 0x10000
    s_branch L_built
L_bad:
    s_mov_b32 s29, 0x1010000
L_built:
    v_mov_b32 v2, s29
    s_mov_b64 exec, 1
    ds_add_u32 v3, v2 offset:{L_NST}
    s_add_u32 s30, s{S_P}, s32
    s_cmp_lg_u32 s30, 0
    s_cbranch_scc1 L_notw
    v_mov_b32 v2, s{S_TAG}
    v_mov_b32 v3, {WS_TAG}
    global_store_dword v3, v2, s[20:21] sc1
L_notw:
    s_mov_b64 exec, -1
L_nobuild:
    s_waitcnt lgkmcnt(0)
""")
assert DIST == 2 and not EARLY
E(m_a(D0))
for o in range(T, T+8, 2): E(oadd(o))
E(m_e(D0, 0))
lds_wait(L_GOK, 0xff, 4, "gok")
if OPT["stamps"] == 2: E(f"s_memrealtime s[{ST0+16}:{ST0+17}]")
if not OPT["nogather"]:
    for q in range(8): E(gload(G + 4*q, T+q))
STAMP(9)
E(f"""
    s_mov_b32 s31, {POLL_MAX}
    s_waitcnt vmcnt(4)
""")
E(m_s(D0, A1, G)); E(m_s(D0, A2, G+8))
E(f"""
L_wn:
    ds_read_b32 v3, v2 offset:{L_NST}
    ds_read_b128 v[{WS4}:{WS4+3}], v{LP} offset:{128*((DIST+EARLY)//4)}
    s_sub_u32 s31, s31, 1
    s_cbranch_scc1 L_gosafe
    s_waitcnt lgkmcnt(0)
    v_readfirstlane_b32 s30, v3
    s_bitcmp1_b32 s30, 17
    s_cbranch_scc0 L_wn
    s_cmp_gt_u32 s30, {0 if OPT["force_safe"] else 0xffffff}
    s_cbranch_scc1 L_gosafe
    s_and_b32 s31, s30, 0xff
    s_bfe_u32 s30, s30, 0x80008
    s_lshl_b32 s32, s31, 1
    s_add_u32 s30, s30, s32
    s_lshl_b32 s32, s3, 1
    s_sub_i32 s30, s30, s32
    s_max_i32 s30, s30, 0
    s_cmp_ge_u32 s3, 8
    s_cbranch_scc1 L_nc
    s_min_u32 s30, s30, 2
    s_add_u32 s{S_R}, s30, 12
    s_cmp_ge_u32 s3, s31
    s_cselect_b32 s30, 0x2000, 0
    s_or_b32 s{S_M}, s30, 0x5041
    s_branch L_nd
L_nc:
    s_add_u32 s32, s30, 7
    s_lshr_b32 s32, s32, 3
    s_lshl_b32 s32, s32, 1
    s_and_b32 s30, s30, 7
    s_cmp_eq_u32 s30, 1
    s_subb_u32 s32, s32, 0
    s_add_u32 s{S_R}, s32, 6
    s_sub_i32 s31, s31, s3
    s_add_i32 s31, s31, 3
    s_max_i32 s31, s31, 0
    s_lshr_b32 s31, s31, 2
    s_lshl_b32 s31, s31, 1
    s_add_u32 s31, s31, 7
    s_lshl_b32 s31, -1, s31
    s_or_b32 s{S_M}, s31, 0x55555541
L_nd:
    s_mov_b32 s{S_IT}, {(1 << OPT["pa"]) | (1 << OPT["pb"]) | (1 << OPT["pc"]) if OPT["prio"] == 2 else 0}
""")
if OPT["prio"]: E(f"s_setprio {OPT['p1']}")
STAMP(10)
if OPT["ptime"]: E("v_mov_b32 v35, 0\nv_mov_b32 v68, 0")
if OPT["stamps"] == 1: E(f"s_memtime s[{ST0+24}:{ST0+25}]\ns_waitcnt lgkmcnt(0)")
for u in range(4): phase(u, True)
for u in range(4): phase(u, False)
E(f"""
L_mdone:
    s_waitcnt lgkmcnt(0)
""")
STAMP(11)
if OPT["ptime"]:
    E(f"""
    s_lshl_b32 s30, s2, 4
    s_add_u32 s30, s30, s3
    s_lshl_b32 s30, s30, 8
    s_add_u32 s30, s30, 0xc00000
    v_lshl_add_u32 v2, v1, 2, s30
    s_mov_b32 exec_hi, 0
    global_store_dword v2, v35, s[20:21]
    global_store_dword v2, v68, s[20:21] offset:128
    s_mov_b64 exec, -1
    """)
if OPT["stamps"] == 1:
    E(f"s_memtime s[28:29]\ns_waitcnt lgkmcnt(0)\ns_sub_u32 s{ST0+24}, s28, s{ST0+24}")
E(f"""
    v_lshrrev_b32 v2, 5, v0
    v_and_b32 v3, 31, v0
    v_mul_u32_u24 v4, {NSTR}, v2
    v_and_b32 v5, 1, v3
    v_lshl_add_u32 v4, v5, 8, v4
    v_lshrrev_b32 v5, 1, v3
    v_lshl_add_u32 v4, v5, 3, v4
    v_add_u32 v4, {L_NODE}, v4
    s_mul_i32 s30, s{S_BUCK}, {NB*256}
    s_lshl_b32 s31, s{S_HALF}, 7
    s_add_u32 s30, s30, s31
    v_lshlrev_b32 v3, 2, v3
    v_lshl_add_u32 v5, v2, 8, v3
    v_add_u32 v5, s30, v5
    v_add_u32 v6, {24*256}, v5
    v_add_u32 v7, {48*256}, v5
    v_add_u32 v8, {72*256}, v5
    s_mov_b32 s32, {f32(2.0**32)}
    s_mov_b32 s34, {f32(-LOG2E * 2.0**-32)}
    v_mov_b32 v9, 0x207
    s_barrier                               ; B5
""")
OSC = {0: "", 1: " sc1", 2: " nt"}[OPT["osc"]]
def epi(us):
    for u in us: E(f"ds_read_b64 v[{12+4*u}:{13+4*u}], v4 offset:{24*NSTR*u}\nds_read_b64 v[{14+4*u}:{15+4*u}], v4 offset:{24*NSTR*u + 128}")
    E("s_waitcnt lgkmcnt(0)")
    for u in us: E(f"v_cvt_f32_f64 v{28+2*u}, v[{12+4*u}:{13+4*u}]\nv_cvt_f32_f64 v{29+2*u}, v[{14+4*u}:{15+4*u}]")
    for u in us: E(f"v_pk_mul_f32 v[{36+2*u}:{37+2*u}], v[{28+2*u}:{29+2*u}], s[34:35] op_sel_hi:[1,0]")
    for u in us: E(f"v_exp_f32 v{36+2*u}, v{36+2*u}\nv_exp_f32 v{37+2*u}, v{37+2*u}")
    E("v_pk_add_f32 v[10:11], v[28:29], v[30:31]")
    for u in us: E(f"v_pk_fma_f32 v[{36+2*u}:{37+2*u}], v[{36+2*u}:{37+2*u}], s[32:33], s[32:33] op_sel_hi:[1,0,0]")
    for u in us: E(f"v_rcp_f32 v{36+2*u}, v{36+2*u}\nv_rcp_f32 v{37+2*u}, v{37+2*u}")
    E("v_pk_add_f32 v[10:11], v[10:11], v[32:33]")
    for u in us: E(f"v_pk_mul_f32 v[{36+2*u}:{37+2*u}], v[{28+2*u}:{29+2*u}], v[{36+2*u}:{37+2*u}]")
    for u in us: E(f"v_cvt_pk_bf16_f32 v{44+u}, v{36+2*u}, v{37+2*u}\nglobal_store_dword v{5+u}, v{44+u}, s[18:19]{OSC}")
    for u in us[3:]: E(f"v_pk_add_f32 v[10:11], v[10:11], v[{28+2*u}:{29+2*u}]")
E("s_cmp_ge_u32 s3, 4\ns_cbranch_scc1 L_e3")
epi([0, 1, 2, 3])
E("s_branch L_e4\nL_e3:")
epi([0, 1, 2])
E(f"""
L_e4:
    v_add_f32 v10, v10, v11
    v_cmp_class_f32 vcc, v10, v9
    v_mov_b32 v2, 0
    s_cmp_lg_u32 s{S_SAFE}, 0
    s_cbranch_scc1 L_fin
    {"s_branch" if OPT["nosafe"] else "s_cbranch_vccz"} L_e5
    ds_write_b32 v2, v9 offset:{L_FLAG}
    s_waitcnt lgkmcnt(0)
L_e5:
    s_barrier                               ; B6
    ds_read_b32 v2, v2 offset:{L_FLAG}
    s_waitcnt lgkmcnt(0)
    v_readfirstlane_b32 s30, v2
    s_cmp_lg_u32 s30, 0
    s_cbranch_scc1 L_gosafe
L_fin:
""")
if OPT["stamps"]:
    E("s_waitcnt vmcnt(0)"); STAMP(13); STAMP_OUT()
if OPT["probe"] >= 0:
    T_ = ST0 + 2*OPT["probe"]
    E(f"""
    s_cmp_lg_u32 s3, {OPT["pw"]}
    s_cbranch_scc1 L_end
    s_cmp_lg_u32 s2, {OPT["pg"] if OPT["pg"] >= 0 else "s2"}
    s_cbranch_scc1 L_end
    s_sub_u32 s30, s{T_}, s{ST0}
    s_lshl_b32 s30, s30, 2
    s_add_u32 s30, s30, 3000
    s_min_u32 s30, s30, 20000
L_spin:
    s_memrealtime s[28:29]
    s_waitcnt lgkmcnt(0)
    s_sub_u32 s28, s28, s{ST0}
    s_cmp_lt_u32 s28, s30
    s_cbranch_scc1 L_spin
    """)
E(f"""
L_end:
    s_endpgm
L_gosafe:
    s_mov_b32 s{S_SAFE}, 8
    s_setprio 0
    s_waitcnt vmcnt(0) lgkmcnt(0)
    s_barrier
    s_branch L_restart
""")
out += outofline
for r in retries: E(r)
E(f"""
L_safe:
    v_and_b32 v2, 15, v1
    v_lshlrev_b32 v3, 3, v2
    v_add_u32 v3, {L_C}, v3
""")
for k in range(4):
    for s in range(4):
        E(f"ds_read_u16 v{80+4*k+s}, v3 offset:{128*k + 2*s}")
E("s_waitcnt lgkmcnt(0)")
for i in range(16):
    E(f"v_lshlrev_b32 v{80+i}, 16, v{80+i}\nv_mul_f32 v{80+i}, s40, v{80+i}")
E(f"""
    v_lshrrev_b32 v24, 4, v1
    v_mul_u32_u24 v24, 3, v24               ; 3*quarter
    s_movk_i32 s33, {NSTR}
    v_add_u32 v25, {L_NODE}, v{LN8}
    s_mov_b32 s34, s3
    s_mov_b32 s35, {POLL_MAX}
L_scell:
    s_lshl_b32 s30, s34, 10
    s_lshl_b32 s31, s{S_BUCK}, 3
    s_add_u32 s30, s30, s31
    s_add_u32 s30, s30, {WS_ROW}
    v_mov_b32 v26, s30
    global_load_dword v32, v26, s[20:21] sc1
    s_mul_i32 s30, s34, {SORTB//4}
    s_add_u32 s30, s30, {WS_REC//4}
    s_waitcnt vmcnt(0)
    v_bfe_u32 v28, v32, 12, 12              ; 3*count
    v_and_b32 v27, 0xfff, v32
    v_add_u32 v27, s30, v27
L_sver:
    v_mov_b32 v29, v1
    v_mov_b32 v31, 0
L_sv1:
    v_cmp_ge_u32 vcc, v28, v29
    s_and_saveexec_b64 s[48:49], vcc
    s_cbranch_execz L_sv2
    v_add_lshl_u32 v30, v27, v29, 2
    global_load_dword v32, v30, s[20:21] sc1
    s_waitcnt vmcnt(0)
    v_add_u32 v31, v31, v32
    s_mov_b64 exec, s[48:49]
    v_add_u32 v29, 64, v29
    s_branch L_sv1
L_sv2:
    s_mov_b64 exec, s[48:49]
""")
scan(31)
E(f"""
    s_nop 0
    v_readlane_b32 s30, v31, 63
    s_cmp_eq_u32 s30, s{S_TAG+1}
    s_cbranch_scc1 L_sok
    s_sub_u32 s35, s35, 1
    s_cbranch_scc0 L_sver
    s_branch L_mdone
L_sok:
    v_mov_b32 v29, v24
L_srec:
    v_cmp_gt_u32 vcc, v28, v29
    s_and_saveexec_b64 s[48:49], vcc
    s_cbranch_execz L_snext
    v_add_lshl_u32 v30, v27, v29, 2
    global_load_dwordx3 v[32:34], v30, s[20:21] offset:4 sc1
    s_waitcnt vmcnt(0)
    v_and_b32 v30, 0x3fff00, v32
    v_add_u32 v30, v30, v{LN16}
    buffer_load_dwordx4 v[36:39], v30, s[36:39], 0 offen sc1
    v_lshrrev_b32 v31, 24, v32
    v_mad_u32_u24 v31, v31, s33, v25
    ds_read_b64 v[40:41], v31 offset:512
    v_lshlrev_b32 v44, 16, v33
    v_and_b32 v45, 0xffff0000, v33
    v_lshlrev_b32 v46, 16, v34
    v_and_b32 v47, 0xffff0000, v34
    s_waitcnt vmcnt(0) lgkmcnt(0)
    v_lshlrev_b32 v48, 16, v40
    v_and_b32 v49, 0xffff0000, v40
    v_lshlrev_b32 v50, 16, v41
    v_and_b32 v51, 0xffff0000, v41
""")
for s in range(4):
    E(f"v_lshlrev_b32 v52, 16, v{36+s}\nv_add_f32 v{48+s}, v{48+s}, v52")
    for k in range(4):
        E(f"v_fmac_f32 v{48+s}, v{44+k}, v{80+4*k+s}")
for s in range(4): E(f"v_exp_f32 v{48+s}, v{48+s}")
E("s_nop 0")
for s in range(4): E(f"v_add_f32 v{48+s}, 1.0, v{48+s}")
for s in range(4): E(f"v_rcp_f32 v{48+s}, v{48+s}")
E("s_nop 0")
for s in range(4): E(f"v_mul_f32 v{48+s}, v{48+s}, v{36+s}")
for s in range(4): E(f"v_cvt_f64_f32 v[{54+2*s}:{55+2*s}], v{48+s}")
for s in range(4): E(f"ds_add_f64 v31, v[{54+2*s}:{55+2*s}] offset:{128*s}")
E(f"""
    s_mov_b64 exec, s[48:49]
    v_add_u32 v29, 12, v29
    s_branch L_srec
L_snext:
    s_mov_b64 exec, s[48:49]
    s_add_u32 s34, s34, {NW}
    s_cmp_lt_u32 s34, {NCHUNK}
    s_cbranch_scc1 L_scell
    s_branch L_mdone
L_codeend:
.section .rodata,"a"
.p2align 6
.amdhsa_kernel {NAME}
.amdhsa_next_free_vgpr 168
.amdhsa_next_free_sgpr 102
.amdhsa_accum_offset 168
.amdhsa_group_segment_fixed_size 0
.amdhsa_kernarg_size 80
.amdhsa_user_sgpr_count 2
.amdhsa_user_sgpr_kernarg_segment_ptr 1
.amdhsa_system_sgpr_workgroup_id_x 1
.end_amdhsa_kernel
""")
if OPT["drop"]:
    i0 = out.index("L_L0:"); i1 = out.index("L_mdone:")
    pats = {1: ("smfmac",), 2: ("mfma",), 3: ("32x32x8",), 4: ("smfmac",), 5: ("v_exp",)}[OPT["drop"]]
    repl = {4: "    s_nop 2", 5: "    s_nop 1"}.get(OPT["drop"])
    mid = []
    for l in out[i0:i1]:
        if any(x in l for x in pats):
            if repl: mid.append(repl)
        else: mid.append(l)
    if OPT["drop"] == 3: mid = [l.replace("v[88:103] cbsz", "0 cbsz").replace("v[72:87] cbsz", "0 cbsz") for l in mid]
    out = out[:i0] + mid + out[i1:]
if OPT["nochain"]:
    i0 = out.index("L_L0:"); i1 = out.index("L_mdone:")
    out = out[:i0] + [l for l in out[i0:i1] if not any(x in l for x in ("v_exp", "v_pk_", "mfma", "v_rcp", "v_cvt"))] + out[i1:]
open(sys.argv[1], "w").write("\n".join(out) + "\n")
```

```python
import sys, struct

OPT = dict(hb=1, stamps=0, force_safe=0, nogather=0, nosafe=0, prio=2, gsc1=1, osc=1, codepf=1, srcmask=0x3fff00, nrec=0, warm=0,
           nochain=0, probe=-1, pw=-1, pg=-1, gpf=32, early=0, cnt=0, pollmax=200000, pa=7, pb=3, pc=1, p0=3, p1=3, ptime=0,
           dist=2, ldearly=0, drop=0, wgate=0, gate=0, gate2=1, rst=0, rsc1=1, nover=0, p2gate=1, p2sleep=0, hold=0, slate=2, lpos=0, p1st=1, sig=1, gpace=4, gwin=-1, gp=0xf448c, ghold=0, nte=0, ewhen=2, wpf=1, pre=0, prelate=0, ntx=0, rpace=-1, p2wait=0)
for a in sys.argv[2:]:
    k, v = a.split("=")
    assert k in OPT, k
    OPT[k] = int(v, 0)

out = []
def E(s=""):
    for line in s.split("\n"):
        line = line.strip()
        if not line:
            continue
        if line.endswith(":") or line.startswith(".") or line.startswith(";"):
            out.append(line)
        else:
            out.append("    " + line)

def f32(x):
    return "0x%08x" % struct.unpack("<I", struct.pack("<f", x))[0]

NAME = "standalone__edge_featured_mpnn_egc__graph_kernel"
LOG2E = 1.4426950408889634
NB = 80; NBUCK = 125; CHUNK = 1280; NCHUNK = 250
NW = 12
G_HALF = 10000 * 256
WS0 = 0
WS_REC = 0x500000
WS_ROW = 0x900000
WS_FL2 = 0x980000
WS_TAG = 0x9c0000
SORTB = CHUNK * 12 + 512
WS_STAMP = 0x1000000
L_CNT = 0; L_SOFF = 512
L_SCNT = 1024
L_CTR = 1536; L_RD = 1540; L_DONE2 = 1544; L_FLAG = 1548; L_NST = 1552; L_GST = 1556; L_GOK = 1560; L_AU = 1564
L_DUM = L_SOFF
L_LIST = 2048
L_LISTC = L_LIST + 4096
SSTR = 272
L_SRC = L_LIST + 8192
SRCB = 80 * SSTR + 32
L_EA = L_SRC + SRCB
L_EAEND = L_EA + 2 * SRCB
L_SORT = L_EA
L_WBV = (L_EAEND + 255) // 256 * 256; L_X = L_WBV + 32768; L_WAU = L_X + 20480; L_C = L_WAU + 32768
LDS = L_C + 1024
L_NODE = L_WBV; NSTR = 648
assert L_NODE + 80 * NSTR <= L_WAU and LDS <= 163840 and L_EA % 16 == 0
NULL_SRC = 0x7fffff00
POLL_MAX = OPT["pollmax"]
SC1 = " sc1"
NTE = " nt" if OPT["nte"] else ""
NTX = " nt" if OPT["ntx"] else ""

S_HALF, S_BUCK, S_P = 22, 23, 24
S_SAFE, S_TAG = 25, 26
S_R, S_M, S_IT = 70, 71, 72
S_TAGRAW = 47
ST0 = 74

def ESTAMP(i):
    if OPT["early"] == 1 or (OPT["early"] and i == 0): E(f"s_memrealtime s[{ST0+2*i}:{ST0+2*i+1}]")
def FSTAMP(i):
    if OPT["early"] == 2: E(f"s_memrealtime s[{ST0+2*i}:{ST0+2*i+1}]\ns_waitcnt lgkmcnt(0)")
def STAMP(i):
    if OPT["stamps"] == 2:
        if i == 0: E(f"s_memrealtime s[{ST0}:{ST0+1}]")
        if i == 13: E(f"s_memrealtime s[{ST0+26}:{ST0+27}]\ns_waitcnt lgkmcnt(0)")
        return
    if OPT["early"] and 1 <= i <= 7: return
    if OPT["early"] and i == 0: return ESTAMP(0)
    if OPT["stamps"] or (OPT["probe"] >= 0 and i == OPT["probe"]):
        E(f"s_memrealtime s[{ST0+2*i}:{ST0+2*i+1}]\ns_waitcnt lgkmcnt(0)")
    elif OPT["probe"] >= 0 and i == 0:
        E(f"s_memrealtime s[{ST0}:{ST0+1}]")
NSTAMP = 14
def STAMP_OUT():
    if OPT["stamps"]:
        E(f"""
        s_lshl_b32 s30, s2, 4
        s_add_u32 s30, s30, s3
        s_lshl_b32 s30, s30, 6
        s_add_u32 s30, s30, {WS_STAMP - 0x100000}
        s_load_dwordx2 s[20:21], s[0:1], 72
        s_waitcnt lgkmcnt(0)
        s_mov_b64 exec, -1
        v_mov_b32 v3, s30""")
        for i in (range(NSTAMP) if OPT["stamps"] == 1 else (0, 8, 13)):
            E(f"v_mov_b32 v2, s{ST0+2*i}\nglobal_store_dword v3, v2, s[20:21] offset:{4*i}")
        E("s_waitcnt vmcnt(0)")

A1, A2, IDX, EAC, LN16, ASEL, CW, LN8 = 4, 8, 12, 13, 14, 16, 18, 20
LP, WS4, WN2, EA, XA, WE, OFS, AG, T, N, P, F = 22, 24, 28, 30, 32, 34, 36, 40, 44, 52, 56, 60
D0, D1, G = 72, 88, 104

def finish_tag():
    E(f"""
    s_mul_i32 s{S_TAG+1}, s{S_TAGRAW}, 0x85ebca6b
    s_mul_i32 s{S_TAG}, s{S_TAGRAW}, 0x9e3779b1
    s_add_u32 s{S_TAG+1}, s{S_TAG+1}, 0x5bd1e995
    s_add_u32 s{S_TAG}, s{S_TAG}, 0x7f4a7c15
    """)
def get_tag(lab, q):
    E(f"""
    s_cmp_lg_u32 s{S_SAFE}, 0
    s_cbranch_scc1 L_tag_{lab}
    v_mov_b32 v2, 0
    s_mov_b32 s31, {POLL_MAX}
L_tg_{lab}:
    ds_read_b128 v[{q}:{q+3}], v2 offset:{L_SCNT + 124*4}
    s_sub_u32 s31, s31, 1
    s_cbranch_scc1 L_tag_{lab}
    s_waitcnt lgkmcnt(0)
    v_readfirstlane_b32 s30, v{q+3}
    v_readfirstlane_b32 s{S_TAGRAW}, v{q+1}
    s_cmp_lg_u32 s30, 4
    s_cbranch_scc1 L_tg_{lab}
    """)
    finish_tag()
    E(f"L_tag_{lab}:")

def lds_wait(addr, mask, val, tag, sleep=0, ne=False):
    E(f"""
    v_mov_b32 v2, 0
    s_mov_b32 s31, {POLL_MAX}
L_w_{tag}:
    {f"s_sleep {sleep}" if sleep else ""}
    ds_read_b32 v3, v2 offset:{addr}
    s_sub_u32 s31, s31, 1
    s_cbranch_scc1 L_wd_{tag}
    s_waitcnt lgkmcnt(0)
    v_readfirstlane_b32 s30, v3
    s_and_b32 s30, s30, {mask}
    s_cmp_lg_u32 s30, {val}
    s_cbranch_scc{0 if ne else 1} L_w_{tag}
L_wd_{tag}:
    """)
SCAN = ("row_shr:1 row_mask:0xf bank_mask:0xf bound_ctrl:0", "row_shr:2 row_mask:0xf bank_mask:0xf bound_ctrl:0",
        "row_shr:4 row_mask:0xf bank_mask:0xf bound_ctrl:0", "row_shr:8 row_mask:0xf bank_mask:0xf bound_ctrl:0",
        "row_bcast:15 row_mask:0xa bank_mask:0xf", "row_bcast:31 row_mask:0xc bank_mask:0xf")
def scan(r):
    for m in SCAN:
        E(f"s_nop 1\nv_add_u32_dpp v{r}, v{r}, v{r} {m}")

def main_consts(sm=48):
    E(f"""
    v_and_b32 v2, 15, v1                    ; n'
    v_lshrrev_b32 v3, 4, v1
    v_lshl_add_u32 v3, v2, 2, v3
    v_lshlrev_b32 v3, 1, v3
    v_add_u32 v3, {L_C}, v3
    ds_read_u16 v64, v3                     ; C[0..3][feature 4n'+s]
    ds_read_u16 v65, v3 offset:128
    ds_read_u16 v66, v3 offset:256
    ds_read_u16 v67, v3 offset:384
    v_and_b32 v63, 3, v1                    ; q
    v_lshlrev_b32 v{LN8}, 3, v2
    v_lshlrev_b32 v{LN8+1}, 3, v2
    v_lshlrev_b32 v{LN16}, 4, v2
    v_lshlrev_b32 v{LN16+1}, 4, v2
    v_mov_b32 v{IDX}, 0x8888
    v_bfe_u32 v60, v1, 3, 2                 ; s = (l&31)>>3
    v_bfe_u32 v61, v1, 2, 1                 ; h = (l>>2)&1
    v_lshrrev_b32 v62, 5, v1                ; ha
    v_and_b32 v2, 1, v60
    v_lshlrev_b32 v2, 4, v2
    v_lshlrev_b32 v2, v2, s46
    v_lshrrev_b32 v60, 1, v60               ; s>>1
    v_lshl_add_u32 v3, v61, 1, v60
    v_sub_u32 v63, v63, v62                 ; q - ha : 0 -> A1, 2 -> A2
    v_lshl_add_u32 v3, v63, 1, v3
    v_and_b32 v63, 1, v63
    v_lshl_or_b32 v3, v63, 4, v3
    v_xor_b32 v61, v61, v62
    v_lshl_or_b32 v60, v61, 4, v60
    """)
    mk = [f"s[{sm}:{sm+1}]", f"s[{sm+2}:{sm+3}]", f"s[{sm+4}:{sm+5}]", "vcc"]
    for i in range(8):
        E(f"v_cmp_eq_u32 {mk[i%4]}, {i}, v3")
        if i % 4 == 3:
            for j in range(i-3, i+1):
                E(f"v_cndmask_b32 v{A1+j}, 0, v2, {mk[j%4]}")
    E(f"""
    v_cmp_eq_u32 {mk[0]}, 0, v60
    v_cmp_eq_u32 {mk[1]}, 1, v60
    v_and_b32 v63, 3, v1
    v_lshlrev_b32 v61, 3, v63
    v_cndmask_b32 v{ASEL}, 0, v2, {mk[0]}
    v_cndmask_b32 v{ASEL+1}, 0, v2, {mk[1]}
    v_add_u32 v{EAC}, {L_EA - 2*L_SRC}, v61
    s_lshl_b32 s30, s3, 9
    s_sub_u32 s31, s30, 4096
    s_max_i32 s31, s31, 0
    s_add_u32 s30, s30, s31
    s_add_u32 s30, s30, {L_LIST}
    v_lshrrev_b32 v2, 4, v1
    v_lshl_add_u32 v{LP}, v2, 4, s30
    v_bfe_u32 v3, v1, 2, 2
    v_lshl_add_u32 v{LP+1}, v3, 4, s30
    v_lshl_add_u32 v{LP+1}, v2, 2, v{LP+1}
    s_waitcnt lgkmcnt(0)
    v_lshlrev_b32 v60, 16, v64
    v_lshlrev_b32 v61, 16, v65
    v_lshlrev_b32 v62, 16, v66
    v_lshlrev_b32 v63, 16, v67
    v_mul_f32 v60, s40, v60
    v_mul_f32 v61, s40, v61
    v_mul_f32 v62, s40, v62
    v_mul_f32 v63, s40, v63
    v_cvt_pk_bf16_f32 v{CW}, v60, v61
    v_cvt_pk_bf16_f32 v{CW+1}, v62, v63
    """)

def gload(g, o):
    return f"buffer_load_dwordx4 v[{g}:{g+3}], v{o}, s[36:39], 0 offen" + (SC1 if OPT["gsc1"] else "")
def oadd(o):
    return f"v_lshl_add_u64 v[{o}:{o+1}], v[{o}:{o+1}], 0, v[{LN16}:{LN16+1}]"

def pk_steps(Gc, q, first):
    t = T + 4*(q & 1); h = Gc + 4*q
    if first and q == 0:
        return [f"v_pk_add_f32 v[{P+2*p}:{P+2*p+1}], v[{t+2*p}:{t+2*p+1}], 1.0 op_sel_hi:[1,0]" for p in range(2)]
    r = []
    for p in range(2):
        n = f"v[{Gc+2*p}:{Gc+2*p+1}]" if (first and q == 1) else f"v[{N+2*p}:{N+2*p+1}]"
        r.append(f"v_pk_fma_f32 v[{N+2*p}:{N+2*p+1}], {n}, v[{t+2*p}:{t+2*p+1}], {n}")
    for p in range(2):
        r.append(f"v_pk_fma_f32 v[{N+2*p}:{N+2*p+1}], v[{h+2*p}:{h+2*p+1}], v[{P+2*p}:{P+2*p+1}], v[{N+2*p}:{N+2*p+1}]")
    for p in range(2):
        r.append(f"v_pk_fma_f32 v[{P+2*p}:{P+2*p+1}], v[{P+2*p}:{P+2*p+1}], v[{t+2*p}:{t+2*p+1}], v[{P+2*p}:{P+2*p+1}]")
    return r
def exps(Dc, q):
    t = T + 4*(q & 1)
    return [f"v_exp_f32 v{t+s}, v{Dc+4*s+q}" for s in range(4)]
def weave(main, extra):
    for i, x in enumerate(main):
        E(x)
        for y in extra.get(i, []):
            E(y)
def m_a(Dn): return f"v_mfma_f32_32x32x8_bf16 v[{Dn}:{Dn+15}], v[{ASEL}:{ASEL+1}], v[{XA}:{XA+1}], 0"
def m_e(Dn, abid): return f"v_mfma_f32_16x16x4_4b_bf16 v[{Dn}:{Dn+15}], v[{EA}:{EA+1}], v[{CW}:{CW+1}], v[{Dn}:{Dn+15}] cbsz:2 abid:{abid}"
def m_s(Dn, A, g): return f"v_smfmac_f32_32x32x32_bf16 v[{Dn}:{Dn+15}], v[{A}:{A+3}], v[{g}:{g+7}], v{IDX}"

outofline = []
def emit_to(lst, fn):
    global out
    keep = out; out = []
    fn(); lst += out; out = keep
DIST = OPT["dist"]; EARLY = OPT["ldearly"]
assert not (EARLY and DIST == 4)
def phase(u, loads):
    tag = f"{'L' if loads else 'T'}{u}"
    Dc, Dn = ((D0, D1), (D1, D0))[u & 1]
    gc = G + 16*u; gn = G + 16*((u+1) & 3); gl = G + 16*((u+DIST) & 3)
    ld = loads and not OPT["nogather"]
    kw = (u + DIST + EARLY) & 3
    wsgrp = 128 * ((3 - kw + u + DIST + EARLY) // 4 + 1) if kw == 3 else None
    def addloads(ex, pos):
        if loads:
            ex.setdefault(0, []).append(oadd(OFS)); ex.setdefault(2, []).append(oadd(OFS+2))
        if ld:
            for q in range(4): ex.setdefault(pos[q], []).append(gload(gl+4*q, OFS+q))
    E(f"L_{tag}:")
    if OPT["ptime"]: E(f"s_memrealtime s[28:29]\ns_mov_b32 m0, s{S_R}")
    if OPT["ptime"] == 2: E(f"s_memtime s[30:31]")
    SL = OPT["slate"]
    if not SL: E(f"s_waitcnt vmcnt({4*(DIST-2)})")
    if OPT["ptime"] == 1: E(f"s_memrealtime s[30:31]")
    E(m_a(Dn))
    for x in exps(Dc, 0): E(x)
    E(m_e(Dn, (u+1) & 3) if SL else m_s(Dn, A1, gn))
    for x in exps(Dc, 1): E(x)
    ex = {0: ["s_waitcnt lgkmcnt(0)"], 2: [f"ds_read_b64 v[{XA}:{XA+1}], v{AG + ((u+2) & 3)} offset:512"]}
    if OPT["ptime"]: ex[0] += ["v_writelane_b32 v35, s28, m0", "v_writelane_b32 v68, s30, m0"]
    if u % 2 == 0:
        p = AG + ((u+2) & 3)
        ex[0].append(f"v_lshl_add_u64 v[{p}:{p+1}], v[{WN2}:{WN2+1}], 0, v[{LN8}:{LN8+1}]")
    if EARLY: addloads(ex, (1, 3, 5, 6))
    elif loads: ex[1] = [f"ds_read_b128 v[{OFS}:{OFS+3}], v{WS4+kw}"]
    if u == 2:
        ex.setdefault(4, []).append(f"v_lshl_add_u32 v{WE}, v{WE}, 1, v{EAC}")
        if SL: ex.setdefault(7, []).append(f"ds_read_b64 v[{EA}:{EA+1}], v{WE}")
    E(f"s_bitcmp1_b32 s{S_M}, 0\ns_cbranch_scc1 L_{tag}f")
    weave(pk_steps(gc, 0, False) + pk_steps(gc, 1, False), ex)
    E(f"L_{tag}r:")
    def first():
        E(f"L_{tag}f:")
        weave(pk_steps(gc, 0, True) + pk_steps(gc, 1, True), ex)
        E(f"s_branch L_{tag}r")
    emit_to(outofline, first)
    if SL:
        E(f"s_waitcnt vmcnt({4*(DIST-2) + (4 if (EARLY and loads) else 0) + (2 if SL == 2 else 0)})")
        E(m_s(Dn, A1, gn))
    else:
        E(m_e(Dn, (u+1) & 3))
    for x in exps(Dc, 2): E(x)
    if SL == 2: E(f"s_waitcnt vmcnt({4*(DIST-2) + (4 if (EARLY and loads) else 0)})")
    E(m_s(Dn, A2, gn+8))
    for x in exps(Dc, 3): E(x)
    ex = {0: ["s_waitcnt lgkmcnt(0)"], 4: [], 6: [], 7: [f"s_sub_u32 s{S_R}, s{S_R}, 1"], 10: [f"s_lshr_b32 s{S_M}, s{S_M}, 1"], 11: [f"s_bitcmp1_b32 s{S_M}, 0"]}
    if not EARLY: addloads(ex, (1, 3, 5, 9) if DIST == 4 else ((1, 3, 5, 7), (1, 2, 3, 4), (4, 6, 8, 10), (2, 5, 8, 10))[OPT['lpos']])
    elif loads: ex[1] = [f"ds_read_b128 v[{OFS}:{OFS+3}], v{WS4+kw}"]
    if u == 1:
        ex[4].append(f"ds_read_b64 v[{WN2}:{WN2+1}], v{LP} offset:{128+64}")
        ex[6].append(f"ds_read_b32 v{WE}, v{LP+1} offset:128")
    if u == 2 and not SL:
        ex[4].append(f"ds_read_b64 v[{EA}:{EA+1}], v{WE}")
    if u == 3:
        ex[4].append(f"ds_read_b64 v[{WN2}:{WN2+1}], v{LP} offset:{128+64+8}")
        ex.setdefault(8, []).append(f"v_lshl_add_u64 v[{LP}:{LP+1}], v[{LP}:{LP+1}], 0, s[44:45]")
    if wsgrp and loads: ex[6].append(f"ds_read_b128 v[{WS4}:{WS4+3}], v{LP} offset:{wsgrp}")
    weave(pk_steps(gc, 2, False) + pk_steps(gc, 3, False), ex)
    E(f"s_cbranch_scc1 L_{tag}z\nL_{tag}y:")
    def fin():
        E(f"""
L_{tag}z:
        v_rcp_f32 v{P}, v{P}
        v_rcp_f32 v{P+1}, v{P+1}
        v_rcp_f32 v{P+2}, v{P+2}
        v_rcp_f32 v{P+3}, v{P+3}
        v_pk_mul_f32 v[{N}:{N+1}], v[{N}:{N+1}], v[{P}:{P+1}]
        v_pk_mul_f32 v[{N+2}:{N+3}], v[{N+2}:{N+3}], v[{P+2}:{P+3}]
        """)
        for s_ in range(4):
            E(f"v_cvt_f64_f32 v[{F+2*s_}:{F+2*s_+1}], v{N+s_}")
            if s_: E(f"ds_add_f64 v{AG+u}, v[{F+2*s_-2}:{F+2*s_-1}] offset:{128*(s_-1)}")
        E(f"ds_add_f64 v{AG+u}, v[{F+6}:{F+7}] offset:384")
        E(f"s_branch L_{tag}y")
    emit_to(outofline, fin)
    if OPT["prio"] == 2:
        E(f"s_bitcmp1_b32 s{S_IT}, s{S_R}\ns_cbranch_scc1 L_{tag}q\nL_{tag}p:")
        def pr():
            E(f"""
L_{tag}q:
            s_setprio 0
            s_cmp_le_u32 s{S_R}, {OPT["pc"]}
            s_cbranch_scc1 L_{tag}p
            s_setprio 1
            s_cmp_le_u32 s{S_R}, {OPT["pb"]}
            s_cbranch_scc1 L_{tag}p
            s_setprio 2
            s_branch L_{tag}p
            """)
        emit_to(outofline, pr)
    if u == 3 and OPT["prio"] == 1:
        E(f"""
        s_add_u32 s{S_IT}, s{S_IT}, 1
        s_setprio 0
        s_cmp_gt_u32 s{S_IT}, 2
        s_cbranch_scc1 L_{tag}p
        s_setprio 1
        s_cmp_eq_u32 s{S_IT}, 2
        s_cbranch_scc1 L_{tag}p
        s_setprio 2
L_{tag}p:
        """)
    if loads:
        E(f"s_cmp_le_u32 s{S_R}, {DIST}")
        if u < 3: E(f"s_cbranch_scc1 L_T{u+1}")
        else: E("s_cbranch_scc0 L_L0")
    else:
        E(f"s_waitcnt vmcnt(0)\ns_cmp_eq_u32 s{S_R}, 0")
        if u < 3: E("s_cbranch_scc1 L_mdone")
        else: E("s_cbranch_scc0 L_T0")

E(f"""
; @launch grid=(256,1,1) block=({64*NW},1,1) lds={LDS}
.amdgcn_target "amdgcn-amd-amdhsa--gfx950"
.text
.globl {NAME}
.p2align 8
.type {NAME},@function
{NAME}:
""")
if OPT["stamps"] == 1 and OPT["early"] != 1:
    for i in range(NSTAMP): E(f"s_mov_b64 s[{ST0+2*i}:{ST0+2*i+1}], 0")
STAMP(0)
E(f"""
    s_load_dwordx16 s[4:19], s[0:1], 0
    s_load_dwordx2 s[20:21], s[0:1], 72
""")
if OPT["codepf"]:
    E(f"""
    s_getpc_b64 s[28:29]
L_pc:
    v_lshlrev_b32 v3, 7, v0
    v_cmp_gt_u32 vcc, L_codeend-L_pc-64, v3
    s_cbranch_vccz L_nopf
    s_mov_b64 exec, vcc
    global_load_dword v164, v3, s[28:29]
    s_mov_b64 exec, -1
L_nopf:
    """)
E(f"""
    v_lshrrev_b32 v2, 6, v0
    v_and_b32 v1, 63, v0
    v_readfirstlane_b32 s3, v2
    {"s_bfe_u32 s%d, s2, 0x10002" % S_HALF if OPT["hb"] else "s_and_b32 s%d, s2, 1" % S_HALF}
    {"s_and_b32 s30, s2, 3" if OPT["hb"] else "s_bfe_u32 s30, s2, 0x20001"}
    s_lshl_b32 s30, s30, 5
    s_lshr_b32 s31, s2, 3
    s_add_u32 s{S_BUCK}, s30, s31
    s_cmp_ge_u32 s2, 256
    s_cbranch_scc1 L_end
    s_cmp_ge_u32 s{S_BUCK}, {NBUCK}
    s_cbranch_scc1 L_end
    s_lshl_b32 s{S_P}, s{S_BUCK}, 1
    s_add_u32 s{S_P}, s{S_P}, s{S_HALF}
    s_mov_b32 s{S_SAFE}, 0
L_restart:
    s_cmp_ge_u32 s3, 4
    s_cbranch_scc1 L_nosort
    v_mov_b32 v48, 0
    v_mov_b32 v49, 0
    v_mov_b32 v50, 0
    v_mov_b32 v51, 0
    v_lshlrev_b32 v10, 4, v1
    ds_write_b128 v10, v[48:51] offset:{L_SCNT}
    s_mul_i32 s30, s{S_P}, {CHUNK*4}
    v_lshl_add_u32 v3, v0, 4, s30
    s_add_u32 s30, s30, 4096
    v_lshl_add_u32 v18, v0, 2, s30
    v_lshlrev_b32 v10, 1, v3
    v_lshlrev_b32 v11, 1, v18
    v_mov_b32 v17, {WS_TAG}
    s_waitcnt lgkmcnt(0)
    global_load_dwordx4 v[4:7], v3, s[10:11]{NTE}
    global_load_dword v8, v18, s[10:11]{NTE}
    global_load_dword v43, v17, s[20:21]
""")
def preclear():
    E(f"""
    s_cmp_lg_u32 s{S_SAFE}, 0
    s_cbranch_scc1 L_nopre
    s_mul_i32 s30, s{S_HALF}, {G_HALF}
    s_mul_i32 s31, s{S_BUCK}, {NB*256}
    s_add_u32 s30, s30, s31
    s_add_u32 s30, s30, {4096*(5-OPT["pre"])}
    v_lshl_add_u32 v19, v0, 4, s30
    """)
    for i in range(OPT["pre"]):
        E("global_store_dwordx4 v19, v[48:51], s[20:21] sc1")
        if i + 1 < OPT["pre"]: E("v_add_u32 v19, 4096, v19")
    E("L_nopre:")
if OPT["pre"] and not OPT["prelate"]: preclear()
E(f"""
    s_barrier                               ; B0
    s_barrier                               ; B0b
""")
if OPT["pre"] and OPT["prelate"]: preclear()
E(f"""
    s_branch L_sort
L_nosort:
    s_and_b32 s32, s3, 3                    ; tau
    s_lshr_b32 s33, s3, 3
    v_lshrrev_b32 v2, 4, v1                 ; g
    v_and_b32 v4, 15, v1
    s_lshl_b32 s30, s32, 2
    v_add_u32 v6, s30, v2                   ; row&15
    v_xor_b32 v7, v4, v6
    v_lshlrev_b32 v7, 4, v7
    v_lshl_add_u32 v7, v6, 8, v7
    s_mul_i32 s73, s{S_BUCK}, {NB*256}
    s_mul_i32 s31, s33, {3*4096}
    s_add_u32 s30, s73, s31
    v_add_u32 v7, s30, v7
    v_add_u32 v8, 0x1000, v7
    v_add_u32 v9, 0x2000, v7
    s_lshl_b32 s30, s32, 10
    s_add_u32 s31, s31, s30
    s_add_u32 m0, s31, {L_X}
    v_subrev_u32 v30, 256, v0               ; t = 0..511
    v_lshlrev_b32 v31, 4, v30
    v_mov_b32 v36, 0
    v_mov_b32 v37, 0
    v_mov_b32 v38, 0
    v_mov_b32 v39, 0
    v_add_u32 v40, {L_EA}, v31
    ds_write_b128 v40, v[36:39]
    ds_write_b128 v40, v[36:39] offset:8192
""")
if OPT["wpf"]:
    E(f"""
    s_lshr_b32 s30, s2, 3
    s_lshl_b32 s30, s30, 2
    v_add_u32 v3, s30, v1
    v_and_b32 v3, 127, v3
    s_lshl_b32 s30, s{S_HALF}, 7
    s_cmp_eq_u32 s3, 4
    s_cselect_b32 s31, 0x8000, 0
    s_add_u32 s30, s30, s31
    v_lshl_add_u32 v3, v3, 8, s30
    s_waitcnt lgkmcnt(0)
    s_cmp_lg_u32 s33, 0
    s_cbranch_scc1 L_nowpf
    s_cmp_eq_u32 s3, 5
    s_cselect_b32 s34, s14, s16
    s_cselect_b32 s35, s15, s17
    s_cmp_eq_u32 s3, 7
    s_cselect_b32 s34, s12, s34
    s_cselect_b32 s35, s13, s35
    s_mov_b64 exec, 0xffff
    global_load_dword v167, v3, s[34:35]
    s_mov_b64 exec, -1
L_nowpf:
    """)
    if OPT["wpf"] == 2:
        E(f"""
        s_cmp_lg_u32 s3, 8
        s_cbranch_scc1 L_notch
        s_mul_i32 s30, s{S_P}, {CHUNK*4}
        v_mov_b32 v3, s30
        v_lshlrev_b32 v5, 1, v3
        v_lshlrev_b32 v6, 21, v1
        s_mov_b64 exec, 1
        global_load_dword v167, v3, s[8:9]
        global_load_dword v166, v5, s[6:7]
        s_mov_b64 exec, 31
        global_load_dword v165, v6, s[20:21] sc1
        s_mov_b64 exec, 3
        global_load_dword v164, v6, s[18:19] sc1
        s_mov_b64 exec, -1
L_notch:
        """)
E(f"""
    s_waitcnt lgkmcnt(0)
    s_barrier                               ; B0
    global_load_lds_dwordx4 v7, s[4:5]{NTX}
    s_add_u32 m0, m0, 0x1000
    s_cmp_lg_u32 s33, 0
    global_load_lds_dwordx4 v8, s[4:5]{NTX}
    s_cbranch_scc1 L_x2
    s_add_u32 m0, m0, 0x1000
    s_nop 0
    global_load_lds_dwordx4 v9, s[4:5]{NTX}
L_x2:
    s_barrier
    v_lshrrev_b32 v5, 3, v1
    v_and_b32 v3, 1, v2
    s_and_b32 s30, s3, 1
    s_lshl_b32 s30, s30, 1
    v_or_b32 v3, s30, v3                    ; sigma
    v_lshlrev_b32 v3, 1, v3
    v_and_b32 v20, 7, v1
    v_xor_b32 v3, v3, v20
    v_lshlrev_b32 v3, 4, v3
    v_lshl_add_u32 v10, v5, 8, v3
    s_sub_u32 s28, s3, 4
    s_lshl_b32 s30, s28, 11
    s_lshl_b32 s31, s{S_HALF}, 7
    s_add_u32 s30, s30, s31
    v_add_u32 v10, s30, v10
    v_add_u32 v11, 0x4000, v10
    s_lshl_b32 s28, s28, 10
    s_add_u32 s34, s16, {128*256}
    s_addc_u32 s35, s17, 0
    s_cmp_lg_u32 s3, 11
    s_cbranch_scc1 L_noc
    v_and_b32 v5, 3, v5
    v_lshlrev_b32 v20, 4, v20
    v_lshl_add_u32 v5, v5, 8, v20
    s_add_u32 s31, s31, {256*256}
    s_mov_b32 m0, {L_C}
    v_add_u32 v5, s31, v5
    global_load_lds_dwordx4 v5, s[16:17]
L_noc:
    s_add_u32 m0, s28, {L_WBV}
""")
for ti, base in enumerate((34, 14)):
    for n in range(2):
        E(f"s_nop 0\nglobal_load_lds_dwordx4 v{10+n}, s[{base}:{base+1}]")
        if not (ti == 1 and n == 1):
            E(f"s_add_u32 m0, m0, 0x2000")
if OPT["wgate"]:
    E(f"""
    v_mov_b32 v7, 0x1000000
    s_mov_b64 exec, 1
    ds_add_u32 v36, v7 offset:{L_CTR}
    s_mov_b64 exec, -1
    """)
STAMP(1)
E(f"""
    v_mov_b32 v32, {NULL_SRC}
    v_mov_b32 v33, v32
    v_mov_b32 v34, v32
    v_mov_b32 v35, v32
""")
def cover(lo, n): return list(range(lo, n - 8192, 8192)) + [n - 8192]
for o in cover(16384, L_EAEND - L_EA): E(f"ds_write_b128 v40, v[36:39] offset:{o}")
for o in cover(0, SRCB): E(f"ds_write_b128 v31, v[32:35] offset:{L_SRC + o}")
E(f"""
    v_and_b32 v32, 3, v30           ; quarter
    v_bfe_u32 v33, v30, 3, 3
    v_lshrrev_b32 v34, 5, v30
    s_and_b32 s30, s3, 3
    s_add_u32 s30, s30, 16
    s_cmp_ge_u32 s3, 8
    s_cselect_b32 s31, 7, 3
    s_cselect_b32 s29, 6, 12
    s_cselect_b64 vcc, -1, 0
    v_and_b32 v33, s31, v33
    v_mov_b32 v35, s30
    v_cndmask_b32 v34, v34, v35, vcc
    v_lshl_add_u32 v32, v34, 2, v32
    v_bfe_u32 v34, v30, 2, 1
    v_mul_u32_u24 v35, {NSTR - SSTR}, v34
    v_mul_u32_u24 v41, {L_NODE - L_SRC}, v34
    v_mul_u32_u24 v42, {L_SRC + 80*SSTR - L_DUM}, v34
    v_lshlrev_b32 v43, 4, v34
    v_add_u32 v35, {SSTR}, v35
    v_add_u32 v41, {L_SRC}, v41
    v_sub_u32 v42, {L_SRC + 80*SSTR}, v42
    v_sub_u32 v43, 16, v43
    v_lshlrev_b32 v33, 2, v33
    v_mad_u32_u24 v41, v32, v35, v41
    v_mad_u32_u24 v41, v33, v43, v41
    v_lshlrev_b32 v35, 5, v35
    v_mul_u32_u24 v34, 6, v43
    v_sub_u32 v35, v35, v34
    v_add_u32 v34, 2, v33
    v_cmp_gt_u32 s[48:49], 6, v33
    v_cmp_gt_u32 s[50:51], 6, v34
    v_cmp_gt_u32 s[52:53], s29, v33
    v_cmp_gt_u32 s[54:55], s29, v34
    v_cndmask_b32 v44, v35, 0, s[48:49]
    v_cndmask_b32 v46, v35, 0, s[50:51]
    v_add_u32 v44, v41, v44
    v_lshl_add_u32 v46, v43, 1, v46
    v_add_u32 v46, v41, v46
    v_add_u32 v45, v44, v43
    v_add_u32 v47, v46, v43
    v_cndmask_b32 v44, v42, v44, s[52:53]
    v_cndmask_b32 v45, v42, v45, s[52:53]
    v_cndmask_b32 v46, v42, v46, s[54:55]
    v_cndmask_b32 v47, v42, v47, s[54:55]
    ds_write_b128 v31, v[44:47] offset:{L_LIST}
    s_cmp_ge_u32 s3, 6
    s_cbranch_scc1 L_pf3
    v_mul_u32_u24 v42, {SSTR}, v30
    v_add_u32 v42, {L_SRC}, v42
    v_lshlrev_b32 v41, 2, v30
    ds_write_b32 v41, v42 offset:{L_CNT}
L_pf3:
    v_bfe_u32 v3, v1, 2, 2                  ; r
    v_lshl_add_u32 v5, v2, 3, v3            ; 8g + r
    v_lshrrev_b32 v3, 1, v3
    v_and_b32 v6, 1, v2
    v_lshl_or_b32 v3, v6, 1, v3             ; sigma
    v_xor_b32 v3, s32, v3
    v_lshlrev_b32 v3, 5, v3
    v_lshl_add_u32 v10, v5, 7, v3
    v_and_b32 v3, 3, v1
    v_lshl_add_u32 v10, v3, 3, v10
    s_mul_i32 s31, s33, {L_WAU - L_WBV}
    s_add_u32 s31, s31, {L_WBV}
    v_add_u32 v10, s31, v10
    v_xor_b32 v3, v2, v4
    v_lshlrev_b32 v3, 4, v3
    v_lshl_add_u32 v12, v4, 8, v3
    v_add_u32 v12, {L_X}, v12
    v_xor_b32 v13, 64, v12
    v_xor_b32 v14, 0x80, v12
    v_xor_b32 v15, 0xc0, v12
    s_mul_i32 s30, s{S_HALF}, {G_HALF}
    s_add_u32 s30, s30, s73
    s_lshl_b32 s31, s32, 6
    s_add_u32 s30, s30, s31
    v_lshlrev_b32 v11, 10, v2
    v_lshl_add_u32 v11, v4, 2, v11
    v_add_u32 v11, s30, v11
    s_lshl_b32 s31, s32, 5
    s_add_u32 s31, s31, {L_NODE}
    v_mul_u32_u24 v16, {NSTR}, v4
    v_lshl_add_u32 v16, v2, 3, v16
    v_add_u32 v16, s31, v16
    s_mov_b32 s40, {f32(-LOG2E)}
    s_mov_b32 s42, {f32(2.0**32)}
    s_mov_b32 s44, 0x07060100
    s_mov_b32 s45, 0x07060302
    s_mov_b32 s46, 0x3f80
    v_mov_b32 v17, {f32(2.0**-100)}
    v_mov_b32 v19, 1
    v_mov_b32 v18, 0
""")
get_tag("g", 160)
E(f"""
    s_waitcnt vmcnt(0)
    s_mov_b64 exec, 1
    ds_add_u32 v18, v19 offset:{L_CTR}
    s_mov_b64 exec, -1
""")
STAMP(2)
lds_wait(L_CTR, 0xff, 8, "g1")
STAMP(3)
NP = 8
RA = 72; RB = RA + 4*NP; RAD = RB + 4*NP
J3N, J12, J3N2, CELL, ROWA, FOUR, L0M, ACC, ENT, CAD = 156, 157, 158, 159, 160, 161, 162, 163, 164, 166
def rec_setup():
    E(f"""
    v_and_b32 v3, 15, v1                    ; j
    v_lshrrev_b32 v2, 4, v1
    v_lshl_add_u32 v{CELL}, v2, 3, v3
    s_lshl_b32 s30, s29, 5
    v_add_u32 v{CELL}, s30, v{CELL}
    s_lshl_b32 s30, s{S_BUCK}, 3
    s_add_u32 s30, s30, {WS_ROW}
    v_lshl_add_u32 v{ROWA}, v{CELL}, 10, s30
    v_cmp_gt_u32 s[66:67], {NP}, v3
    v_cmp_gt_u32 vcc, {NCHUNK}, v{CELL}
    v_mov_b32 v{ENT}, 0
    s_and_b64 s[66:67], s[66:67], vcc
    s_mov_b64 exec, s[66:67]
    global_load_dwordx2 v[{ENT}:{ENT+1}], v{ROWA}, s[20:21] sc1
    s_mov_b64 exec, -1
    v_mul_u32_u24 v{CELL}, {SORTB//4}, v{CELL}
    v_add_u32 v{CELL}, {WS_REC//4}, v{CELL}
    v_mul_u32_u24 v{J12}, 12, v3
    v_mul_u32_u24 v{J3N}, 3, v3
    v_not_b32 v{J3N}, v{J3N}
    v_subrev_u32 v{J3N2}, 48, v{J3N}
    v_subrev_u32 v{L0M}, 1, v3
    v_ashrrev_i32 v{L0M}, 31, v{L0M}
    v_mov_b32 v{FOUR}, 4
    """)
WF = 20; XF = 52; AC = 132
def wreads(ks):
    for t in range(2):
        for rd in range(2):
            r = WF + 16*t + 4*ks + 2*rd
            E(f"ds_read_b64_tr_b16 v[{r}:{r+1}], v10 offset:{t*16384 + ks*4096 + rd*512}")
def xread(rt, ks):
    r = XF + 16*rt + 4*ks
    return f"ds_read_b128 v[{r}:{r+3}], v{12+ks} offset:{rt*4096}"
def mf(rt, ks, transposed):
    for t in range(2):
        a = XF + 16*rt + 4*ks; w = WF + 16*t + 4*ks; d = AC + 8*(rt % 3) + 4*t
        c = "0" if ks == 0 else f"v[{d}:{d+3}]"
        if transposed: a, w = w, a
        E(f"v_mfma_f32_16x16x32_bf16 v[{d}:{d+3}], v[{a}:{a+3}], v[{w}:{w+3}], {c}")
def gemm(transposed, finish, before_first):
    for ks in range(3):
        E(xread(0, ks)); wreads(ks)
    E("s_waitcnt lgkmcnt(10)"); mf(0, 0, transposed)
    E(xread(0, 3)); wreads(3)
    E("s_waitcnt lgkmcnt(10)"); mf(0, 1, transposed)
    for ks in range(4): E(xread(1, ks))
    E("s_waitcnt lgkmcnt(9)"); mf(0, 2, transposed)
    for ks in range(4): E(xread(2, ks))
    E("s_waitcnt lgkmcnt(8)"); mf(0, 3, transposed)
    for ks in range(4): E(xread(3, ks))
    E("s_waitcnt lgkmcnt(8)")
    for ks in range(4):
        mf(1, ks, transposed); E(xread(4, ks))
    E(f"""
    s_mov_b64 exec, 1
    ds_add_u32 v18, v19 offset:{L_RD}
    s_mov_b64 exec, -1
    """)
    before_first()
    finish(0)
    E("s_waitcnt lgkmcnt(0)")
    for rt in range(2, 5):
        for ks in range(4): mf(rt, ks, transposed)
        finish(rt-1)
    finish(4)
def pack(rt):
    b = AC + 8*(rt % 3); h = b + 4
    for r in range(4): E(f"v_mul_f32 v{b+r}, s40, v{b+r}")
    for r in range(4): E(f"v_fma_f32 v{h+r}, v{h+r}, s42, v17")
    E(f"""
    v_cvt_pk_bf16_f32 v4, v{b}, v{b+1}
    v_cvt_pk_bf16_f32 v5, v{b+2}, v{b+3}
    v_xor_b32 v2, 0x80008000, v4
    v_xor_b32 v3, 0x80008000, v5
    v_sub_u32_sdwa v{h}, v{h}, sext(v2) dst_sel:DWORD dst_unused:UNUSED_PAD src0_sel:DWORD src1_sel:WORD_0
    v_sub_u32_sdwa v{h+1}, v{h+1}, sext(v2) dst_sel:DWORD dst_unused:UNUSED_PAD src0_sel:DWORD src1_sel:WORD_1
    v_sub_u32_sdwa v{h+2}, v{h+2}, sext(v3) dst_sel:DWORD dst_unused:UNUSED_PAD src0_sel:DWORD src1_sel:WORD_0
    v_sub_u32_sdwa v{h+3}, v{h+3}, sext(v3) dst_sel:DWORD dst_unused:UNUSED_PAD src0_sel:DWORD src1_sel:WORD_1
    """)
    w = (OPT["gp"] >> (4*(4-rt))) & 15 if OPT["gp"] else OPT["gpace"]
    if 0 <= w < 4*rt: E(f"s_waitcnt vmcnt({w})")
    if OPT["pre"] and rt == 5 - OPT["pre"]: lds_wait(L_SCNT + 126*4, 0xff, 4, "pre")
    if OPT["ghold"] == rt + 1:
        E("v_mov_b32 v6, v2\nv_mov_b32 v7, v3"); lds_wait(L_CTR, 0xff00, 0x400, "gh", sleep=1); E("v_mov_b32 v2, v6\nv_mov_b32 v3, v7")
    for r in range(4):
        E(f"v_perm_b32 v{h+r}, v{h+r}, v{4 + (r>>1)}, s{44 + (r&1)}")
        if OPT["gwin"] >= 0: E(f"s_waitcnt vmcnt({OPT['gwin']})")
        E(f"global_store_dword v11, v{h+r}, s[20:21] offset:{256*r} sc1")
    if rt < 4: E("v_add_u32 v11, 0x1000, v11")
def fin(rt):
    a = AC + 8*(rt % 3); u = a + 4
    for r in range(4): E(f"v_mul_f32 v{a+r}, s40, v{a+r}")
    for r in range(4): E(f"v_mul_f32 v{u+r}, s42, v{u+r}")
    E(f"""
    v_cvt_pk_bf16_f32 v{a}, v{a}, v{a+1}
    v_cvt_pk_bf16_f32 v{a+1}, v{a+2}, v{a+3}
    v_cvt_f64_f32 v[2:3], v{u}
    v_cvt_f64_f32 v[4:5], v{u+1}
    v_cvt_f64_f32 v[6:7], v{u+2}
    v_cvt_f64_f32 v[8:9], v{u+3}
    ds_write_b64 v16, v[{a}:{a+1}] offset:512
    ds_write2_b64 v16, v[2:3], v[4:5] offset0:0 offset1:16
    ds_write2_b64 v16, v[6:7], v[8:9] offset0:32 offset1:48
    """)
    if rt < 4: E(f"v_add_u32 v16, {16*NSTR}, v16")
E(f"""
    s_cmp_lg_u32 s33, 0
    s_cbranch_scc1 L_gemm2
    s_cmp_lg_u32 s{S_SAFE}, 0
    s_cbranch_scc1 L_nog1
    s_setprio 2
""")
gemm(False, pack, lambda: lds_wait(L_CTR, {1: 0x80000, 2: 0xc0000}[OPT["hold"]], 0, "hold", sleep=1, ne=True) if OPT["hold"] else None)
E("s_setprio 0")
if OPT["gate"] or OPT["gate2"] >= 3:
    E(f"""
    s_mov_b64 exec, 1
    ds_add_u32 v18, v19 offset:{L_GST}
    s_mov_b64 exec, -1
    """)
STAMP(4)
main_consts()
E(f"""
    s_lshl_b32 s30, s{S_P}, 7
    s_add_u32 s30, s30, {WS_FL2}
    v_mov_b32 v60, s30
    v_mov_b32 v62, s{S_TAG}
    v_mov_b32 v63, s{S_TAG+1}
    v_mov_b32 v2, 0
    v_mov_b32 v3, 1
    s_lshl_b32 s30, s32, 13
    s_lshl_b32 s31, s{S_HALF}, 7
    s_add_u32 s30, s30, s31
    s_add_u32 s30, s30, {WS_FL2}
    v_lshl_add_u32 v64, v1, 8, s30
    s_mul_i32 s30, s32, {2560*256}
    s_lshr_b32 s31, s2, 3
    s_mul_i32 s31, s31, {160*128}
    s_add_u32 s30, s30, s31
    v_lshl_add_u32 v65, v1, 7, s30
    v_min_u32 v65, {G_HALF - 128}, v65
    s_mul_i32 s30, s{S_HALF}, {G_HALF}
    v_add_u32 v65, s30, v65
    s_mov_b64 exec, 1
    s_waitcnt vmcnt(0)
    ds_add_rtn_u32 v61, v2, v3 offset:{L_DONE2}
    s_waitcnt lgkmcnt(0)
    v_readfirstlane_b32 s30, v61
    s_cmp_lg_u32 s30, 3
    s_cbranch_scc1 L_nofl
    global_store_dwordx2 v60, v[62:63], s[20:21] sc1
    ds_add_u32 v2, v3 offset:{L_DONE2}
L_nofl:
""")
STAMP(5)
if OPT["p2gate"]:
    E("s_mov_b64 exec, -1")
    lds_wait(L_CTR, 0xff0000, 0x080000, "pg", sleep=1)
    E("s_mov_b32 exec_hi, 0")
if OPT["p2wait"]: E(f"s_sleep {OPT['p2wait']}")
STAMP(6)
def gready():
    if OPT["gpf"]:
        E(f"""
        {"s_bfm_b64 exec, %d, 0" % OPT["gpf"] if OPT["gpf"] < 64 else "s_mov_b64 exec, -1"}
        global_load_dword v35, v65, s[20:21] sc1
        """)
    E(f"""
    s_mov_b64 exec, 1
    v_mov_b32 v2, 0
    v_mov_b32 v3, 1
    ds_add_u32 v2, v3 offset:{L_GOK}
    """)
E(f"""
    s_cmp_eq_u32 s32, 3
    s_cselect_b32 exec_lo, 0x1fffffff, -1
    {"" if OPT["p1st"] else "s_mov_b64 s[66:67], exec"}
    {"" if OPT["p1st"] else "s_branch L_p2n"}
    global_load_dwordx2 v[66:67], v64, s[20:21] sc1
    s_waitcnt vmcnt(0)
    v_cmp_ne_u64 s[66:67], s[{S_TAG}:{S_TAG+1}], v[66:67]
    s_cmp_lg_u64 s[66:67], 0
    s_cbranch_scc1 L_p2n
""")
gready()
E("L_p2n:\ns_mov_b64 exec, -1")
STAMP(7)
E(f"""
    s_branch L_b4
L_nog1:
    s_mov_b64 exec, 1
    ds_add_u32 v18, v19 offset:{L_RD}
    s_mov_b64 exec, -1
    s_branch L_rec
L_gemm2:
""")
E(f"""
    v_lshrrev_b32 v5, 3, v1
    v_bfe_u32 v3, v1, 4, 1
    v_lshlrev_b32 v3, 1, v3
    v_and_b32 v4, 7, v1
    v_xor_b32 v3, v3, v4
    v_lshlrev_b32 v3, 4, v3
    v_lshl_add_u32 v6, v5, 8, v3
    s_lshl_b32 s30, s{S_HALF}, 7
    s_and_b32 s31, s3, 1
    s_lshl_b32 s31, s31, 14
    s_add_u32 s30, s30, s31
    v_add_u32 v6, s30, v6
    v_xor_b32 v7, 64, v6
    v_add_u32 v8, 2048, v6
    v_add_u32 v9, 3072, v7
    v_add_u32 v7, 1024, v7
    s_lshl_b32 s30, s32, 13
    s_add_u32 m0, s30, {L_WAU}
    s_cmp_lt_u32 s32, 2
    s_cselect_b32 s34, s16, s12
    s_cselect_b32 s35, s17, s13
    global_load_lds_dwordx4 v6, s[34:35]
    global_load_lds_dwordx4 v7, s[34:35] offset:1024
    global_load_lds_dwordx4 v8, s[34:35] offset:2048
    global_load_lds_dwordx4 v9, s[34:35] offset:3072
    s_add_u32 m0, m0, 4096
    s_add_u32 s34, s34, 8192
    s_addc_u32 s35, s35, 0
    global_load_lds_dwordx4 v6, s[34:35]
    global_load_lds_dwordx4 v7, s[34:35] offset:1024
    global_load_lds_dwordx4 v8, s[34:35] offset:2048
    global_load_lds_dwordx4 v9, s[34:35] offset:3072
""")
for rt in range(5):
    for ks in range(4): E(xread(rt, ks))
E(f"""
    s_mov_b64 exec, 1
    ds_add_u32 v18, v19 offset:{L_RD}
    s_mov_b64 exec, -1
""")
E(f"""
    s_mov_b64 exec, 1
    s_waitcnt vmcnt(0)
    ds_add_u32 v18, v19 offset:{L_RD}
    s_mov_b64 exec, -1
    s_sub_u32 s29, s3, 4
""")
rec_setup()
lds_wait(L_RD, 0xff, 12, "rd")
for ks in range(4): wreads(ks)
for ks in range(4):
    E(f"s_waitcnt lgkmcnt({12 - 4*ks})"); mf(0, ks, True)
for rt in range(1, 5):
    for ks in range(4): mf(rt, ks, True)
    fin(rt-1)
fin(4)
STAMP(4)
E(f"""
    s_branch L_rec
L_sort:
""")
STAMP(1)
E(f"""
    s_mov_b32 s40, {f32(-LOG2E)}
    s_mov_b32 s46, 0x3f80
    s_cmp_lg_u32 s{S_SAFE}, 0
    s_cbranch_scc1 L_sortskip
    v_mov_b32 v21, 1
    v_mov_b32 v20, 3
    s_mov_b32 s31, 52429
    s_movk_i32 s32, -20
    v_lshlrev_b32 v9, 3, v1
    v_lshlrev_b32 v33, 4, v0
    s_mul_i32 s30, s{S_P}, {SORTB}
    s_add_u32 s30, s30, {WS_REC + 4096}
    v_add_u32 v32, s30, v33
    v_add_u32 v34, 8192, v32
    s_lshl_b32 s30, s{S_P}, 10
    s_add_u32 s30, s30, {WS_ROW}
    v_lshl_add_u32 v42, v1, 4, s30
    s_mov_b32 s34, {POLL_MAX}
    s_setprio 3
    s_waitcnt vmcnt({1 + OPT['pre']})
""")
STAMP(2)
FSTAMP(1)
for i in range(5):
    E(f"""
    v_mul_u32_u24 v{22+i}, s31, v{4+i}
    v_lshrrev_b32 v{22+i}, 22, v{22+i}
    v_lshlrev_b32 v{22+i}, 2, v{22+i}        ; bucket*4
    ds_add_rtn_u32 v{27+i}, v{22+i}, v20 offset:{L_SCNT}
    """)
E(f"""
    s_mov_b64 exec, 1
    s_cmp_lg_u32 s3, 0
    s_cbranch_scc1 L_notag
    s_waitcnt vmcnt({OPT['pre']})
    ds_write_b32 v48, v43 offset:{L_SCNT + 125*4}
L_notag:
    ds_add_u32 v48, v21 offset:{L_SCNT + 127*4}
    s_mov_b64 exec, -1
""")
if OPT["ewhen"] == 1: E(f"""
    global_load_dwordx4 v[12:15], v3, s[8:9]{NTE}
    global_load_dword v16, v18, s[8:9]{NTE}
    global_load_dwordx4 v[52:55], v10, s[6:7]{NTE}
    global_load_dwordx4 v[56:59], v10, s[6:7] offset:16{NTE}
    global_load_dwordx2 v[60:61], v11, s[6:7]{NTE}
""")
E(f"""
L_s1:
    ds_read_b32 v38, v48 offset:{L_SCNT + 127*4}
    ds_read_b64 v[36:37], v9 offset:{L_SCNT}
    s_sub_u32 s34, s34, 1
    s_cbranch_scc1 L_s1d
    s_waitcnt lgkmcnt(0)
    v_readfirstlane_b32 s30, v38
    s_cmp_lg_u32 s30, 4
    s_cbranch_scc1 L_s1
L_s1d:
""")
FSTAMP(2)
E(f"""
    v_add3_u32 v39, v36, v37, 2
    v_add3_u32 v38, v36, v37, 2
    v_readlane_b32 s{S_TAGRAW}, v37, 62
""")
fill = []
for i in range(5):
    fill += [f"v_mad_i32_i24 v{4+i}, v{22+i}, s32, v{4+i}", f"v_lshlrev_b32 v{4+i}, 24, v{4+i}"]
for k, m in enumerate(SCAN):
    E(f"v_add_u32_dpp v39, v39, v39 {m}")
    for x in fill[2*k:2*k+2]: E(x)
E(f"""
    v_sub_u32 v40, v39, v38
    v_add3_u32 v41, v40, v36, 1
    s_mov_b32 s30, {L_SORT}
    v_lshl_add_u32 v38, v40, 2, s30
    v_lshl_add_u32 v39, v41, 2, s30
    ds_write_b64 v9, v[38:39] offset:{L_SOFF}
""")
for i in range(5):
    E(f"ds_read_b32 v{22+i}, v{22+i} offset:{L_SOFF}")
finish_tag()
E(f"""
    s_cmp_lg_u32 s3, 0
    s_cbranch_scc1 L_nopub
    s_and_b32 s35, s{S_TAG+1}, 0xff000000
    v_mov_b32 v45, s{S_TAG}
    v_mov_b32 v47, s{S_TAG}
    v_lshl_or_b32 v44, v36, 12, v40
    v_lshl_or_b32 v46, v37, 12, v41
    v_or_b32 v44, s35, v44
    v_or_b32 v46, s35, v46
    global_store_dwordx4 v42, v[44:47], s[20:21] sc1
    {"s_waitcnt vmcnt(1)" if OPT["ewhen"] == 1 else ""}
    s_branch {"L_pub" if OPT["ewhen"] == 1 else "L_nochk"}
L_nopub:
    s_cmp_lg_u32 s3, 1
    s_cbranch_scc1 L_nochk
    v_mov_b32 v44, s{S_TAG+1}
    s_mov_b32 exec_hi, 0x7fffffff
    ds_add_u32 v38, v44
    ds_add_u32 v39, v44
    s_mov_b32 exec_hi, -1
L_nochk:
""")
if OPT["ewhen"] == 2: E(f"""
    global_load_dwordx4 v[12:15], v3, s[8:9]{NTE}
    global_load_dword v16, v18, s[8:9]{NTE}
    global_load_dwordx4 v[52:55], v10, s[6:7]{NTE}
    global_load_dwordx4 v[56:59], v10, s[6:7] offset:16{NTE}
    global_load_dwordx2 v[60:61], v11, s[6:7]{NTE}
""")
E(f"""
    s_waitcnt vmcnt(0)
L_pub:
""")
STAMP(4)
FSTAMP(3)
for i in range(5): E(f"v_lshl_or_b32 v{4+i}, v{12+i}, 8, v{4+i}")
E("s_waitcnt lgkmcnt(0)")
for i in range(5):
    E(f"""
    v_lshl_add_u32 v{27+i}, v{27+i}, 2, v{22+i}
    v_add3_u32 v{12+i}, v{52+2*i}, v{53+2*i}, v{4+i}
    ds_write2_b32 v{27+i}, v{52+2*i}, v{53+2*i} offset0:2 offset1:3
    ds_write_b32 v{27+i}, v{4+i} offset:4
    ds_sub_u32 v{22+i}, v{12+i}
    """)
E(f"""
    s_mov_b64 exec, 1
    ds_add_u32 v48, v21 offset:{L_SCNT + 126*4}
    s_mov_b64 exec, -1
""")
FSTAMP(4)
E(f"""
    s_mov_b32 s34, {POLL_MAX}
L_s2:
    ds_read_b32 v38, v48 offset:{L_SCNT + 126*4}
    {f"ds_read_b32 v39, v48 offset:{L_CTR}" if OPT["wgate"] else ""}
    ds_read_b128 v[72:75], v33 offset:{L_SORT}
    s_sub_u32 s34, s34, 1
    s_cbranch_scc1 L_s2d
    s_waitcnt lgkmcnt(1)
    v_readfirstlane_b32 s30, v38
""")
if OPT["wgate"]:
    E(f"""
    v_readfirstlane_b32 s31, v39
    s_lshr_b32 s31, s31, 24
    s_add_u32 s30, s30, s31
    """)
E(f"""
    s_cmp_lg_u32 s30, {12 if OPT["wgate"] else 4}
    s_cbranch_scc1 L_s2
L_s2d:
""")
FSTAMP(5)
E(f"""
    ds_read_b128 v[76:79], v33 offset:{L_SORT + 4096}
    ds_read_b128 v[80:83], v33 offset:{L_SORT + 8192}
    ds_read_b128 v[84:87], v33 offset:{L_SORT + 12288}
    s_waitcnt lgkmcnt(3)
    global_store_dwordx4 v32, v[72:75], s[20:21] offset:-4096 sc1
    s_waitcnt lgkmcnt(2)
    global_store_dwordx4 v32, v[76:79], s[20:21] sc1
    s_waitcnt lgkmcnt(1){f" vmcnt({OPT['rpace']})" if OPT['rpace'] >= 0 else ""}
    global_store_dwordx4 v34, v[80:83], s[20:21] offset:-4096 sc1
    s_cmp_eq_u32 s3, 3
    s_cselect_b32 exec_hi, 0, -1
    s_waitcnt lgkmcnt(0){f" vmcnt({OPT['rpace']})" if OPT['rpace'] >= 0 else ""}
    global_store_dwordx4 v34, v[84:87], s[20:21] sc1
    s_mov_b32 exec_hi, -1
""")
FSTAMP(6)
for k in range(4): E(f"ds_write_b128 v33, v[48:51] offset:{L_SORT + 4096*k}")
STAMP(3)
FSTAMP(7)
E(f"""
    s_branch L_sortdone
L_sortskip:
    s_waitcnt vmcnt(0)
L_sortdone:
    s_mov_b32 s29, s3
""")
rec_setup()
E(f"""
L_rec:
""")
lds_wait(L_CTR, 0xff, 8, "r0")
main_consts()
STAMP(5)
E(f"""
    s_cmp_ge_u32 s3, 4
    s_cbranch_scc1 L_nod2
    v_mov_b32 v2, 0
    v_mov_b32 v3, 0x100
    s_mov_b64 exec, 1
    s_waitcnt vmcnt(0)
    ds_add_u32 v2, v3 offset:{L_CTR}
    s_mov_b64 exec, -1
L_nod2:
    s_cmp_lg_u32 s{S_SAFE}, 0
    s_cbranch_scc1 L_recskip
    s_lshr_b32 s35, s{S_TAG+1}, 24
    s_mov_b64 exec, s[66:67]
    s_mov_b32 s34, {POLL_MAX}
    s_branch L_p1c
L_p1:
    global_load_dwordx2 v[{ENT}:{ENT+1}], v{ROWA}, s[20:21] sc1
L_p1c:
    s_sub_u32 s34, s34, 1
    s_cbranch_scc1 L_toobig
    s_waitcnt vmcnt(0)
    v_cmp_ne_u32 vcc, s{S_TAG}, v{ENT+1}
    v_cmp_ne_u32_sdwa s[48:49], v{ENT}, s35 src0_sel:BYTE_3 src1_sel:DWORD
    s_or_b64 exec, vcc, s[48:49]
    s_cbranch_scc1 L_p1
    s_mov_b64 exec, -1
""")
STAMP(6)
if OPT["cnt"]: E(f"s_sub_u32 s{ST0+2}, {POLL_MAX+1}, s34\ns_mov_b32 s34, {POLL_MAX}")
E(f"""
    v_and_b32 v{CAD}, 0xfff, v{ENT}
    v_bfe_u32 v{ENT}, v{ENT}, 12, 12            ; 3*count
    v_add_lshl_u32 v{CAD}, v{CAD}, v{CELL}, 2
    v_cmp_ne_u32 vcc, 0, v{ENT}
    s_sub_u32 s30, 0, s{S_TAG+1}
    v_mov_b32 v2, s30
    v_cndmask_b32 v{ENT+1}, 0, v2, vcc
    v_cmp_lt_u32 vcc, 96, v{ENT}
    v_cmp_lt_u32 s[68:69], 48, v{ENT}
    s_cbranch_vccnz L_toobig
""")
for p in range(NP):
    E(f"""
    v_add_co_u32_dpp v2, vcc, v{ENT}, v{J3N} row_newbcast:{p} row_mask:0xf bank_mask:0xf
    v_add_u32_dpp v{RAD+p}, v{CAD}, v{J12} row_newbcast:{p} row_mask:0xf bank_mask:0xf
    s_mov_b64 s[{48+2*p}:{49+2*p}], vcc
    """)
lds_wait(L_CTR, 0xff00, 0x400, "r1")
if OPT["gate"]: lds_wait(L_GST, 0xff, 4, "gt")
if OPT["gate2"] == 1:
    E("s_cmp_lt_u32 s3, 4\ns_cbranch_scc1 L_wd_g2")
    lds_wait(L_DONE2, 0xff, 5, "g2")
if OPT["gate2"] == 3:
    E("s_cmp_lt_u32 s3, 4\ns_cbranch_scc1 L_wd_g2")
    lds_wait(L_GST, 0xff, 4, "g2")
if OPT["gate2"] in (2, 4):
    E(f"""
    s_cmp_lt_u32 s3, 4
    s_cbranch_scc1 L_g2d
    s_mov_b32 s31, {POLL_MAX}
L_g2:
    ds_read_b128 v[60:63], v2 offset:{L_CTR}
    {f"ds_read_b32 v61, v2 offset:{L_GST}" if OPT["gate2"] == 4 else ""}
    s_sub_u32 s31, s31, 1
    s_cbranch_scc1 L_g2d
    s_waitcnt lgkmcnt(0)
    v_readfirstlane_b32 s30, v62
    v_readfirstlane_b32 s28, v60
    v_readfirstlane_b32 s29, v61
    s_cmp_eq_u32 s30, 5
    s_cbranch_scc1 L_g2d
    {"s_cmp_lg_u32 s29, 4" if OPT["gate2"] == 4 else ""}
    {"s_cbranch_scc1 L_g2" if OPT["gate2"] == 4 else ""}
    s_and_b32 s28, s28, 0xc0000
    s_cbranch_scc0 L_g2
L_g2d:
    """)
E(f"""
    s_or_b32 s68, s68, s69
    s_lshr_b32 s69, s68, 16
    s_or_b32 s68, s68, s69
""")
def mask2(p): return f"v_add_co_u32_dpp v2, vcc, v{ENT}, v{J3N2} row_newbcast:{p} row_mask:0xf bank_mask:0xf"
def loads(ps, lab):
    E(f"s_and_b32 s30, s68, {sum(1 << p for p in ps)}\ns_cbranch_scc0 L_nx{lab}")
    for p in ps:
        r = RB + 4*p
        E(f"""
        s_bitcmp1_b32 s68, {p}
        s_cbranch_scc0 L_nx{lab}{p}
        {mask2(p)}
        s_mov_b64 exec, vcc
        global_load_dwordx4 v[{r}:{r+3}], v{RAD+p}, s[20:21] offset:192 sc1
        s_mov_b64 exec, -1
L_nx{lab}{p}:
        """)
    E(f"L_nx{lab}:")
    for p in ps:
        r = RA + 4*p
        E(f"""
        s_mov_b64 exec, s[{48+2*p}:{49+2*p}]
        global_load_dwordx4 v[{r}:{r+3}], v{RAD+p}, s[20:21]{SC1 if (OPT["rsc1"] or lab != "m") else ""}
        """)
    E("s_mov_b64 exec, -1")
loads(range(NP), "m")
def issued():
    if OPT["p2gate"]:
        E(f"""
        v_mov_b32 v2, 0
        v_mov_b32 v3, 0x10000
        s_mov_b64 exec, 1
        ds_add_u32 v2, v3 offset:{L_CTR}
        s_mov_b64 exec, -1
        """)
if not OPT["sig"]: issued()
STAMP(7)
def rank(r, m):
    E(f"""
    s_mov_b64 exec, {m}
    v_mul_u32_u24_sdwa v{r}, v{FOUR}, v{r+1} dst_sel:DWORD dst_unused:UNUSED_PAD src0_sel:DWORD src1_sel:BYTE_3
    v_and_b32 v{r+1}, {OPT['srcmask']}, v{r+1}
    ds_add_rtn_u32 v{r}, v{r}, v{FOUR} offset:{L_CNT}
    """)
def put(r, m):
    E(f"""
    s_mov_b64 exec, {m}
    v_lshlrev_b32 v2, 1, v{r}
    ds_write_b32 v{r}, v{r+1}
    ds_write_b64 v2, v[{r+2}:{r+3}] offset:{L_EA - 2*L_SRC}
    """)
retries = []
pending = []
for gi, grp in enumerate(((0, 1, 2, 3), (4, 5), (6, 7))):
    bits = sum(1 << p for p in grp); m32 = bits | (bits << 16)
    E(f"""
L_ck{gi}:
    s_mov_b32 vcc_lo, {m32}
    s_mov_b32 vcc_hi, {m32}
    v_cndmask_b32 v{ACC}, 0, v{ENT+1}, vcc
    s_and_b32 s30, s68, {bits}
    s_cbranch_scc1 L_xa{gi}
L_xb{gi}:
    """)
    def xacc():
        E(f"L_xa{gi}:\ns_waitcnt vmcnt({NP})")
        for p in grp:
            r = RB + 4*p
            E(f"""
            {mask2(p)}
            s_mov_b64 exec, vcc
            v_add3_u32 v{ACC}, v{ACC}, v{r+1}, v{r+2}
            v_add_u32 v{ACC}, v{ACC}, v{r+3}
            s_mov_b64 exec, -1
            """)
        E(f"s_branch L_xb{gi}")
    emit_to(outofline, xacc)
    for p in grp:
        r = RA + 4*p
        E(f"""
        s_waitcnt vmcnt({NP-1-p})
        s_mov_b64 exec, s[{48+2*p}:{49+2*p}]
        v_and_b32 v{r}, v{r}, v{L0M}
        v_add3_u32 v{ACC}, v{ACC}, v{r+2}, v{r+3}
        v_add3_u32 v{ACC}, v{ACC}, v{r}, v{r+1}
        """)
    E("s_mov_b64 exec, -1\ns_nop 0")
    for k in (1, 2, 4, 8):
        E(f"v_add_u32_dpp v{ACC}, v{ACC}, v{ACC} row_ror:{k} row_mask:0xf bank_mask:0xf")
        if k < 8: E("s_nop 1")
    E(f"v_cmp_ne_u32 vcc, 0, v{ACC}\ns_cbranch_vccnz L_rt{gi}")
    if OPT["rst"]: STAMP(1+gi)
    if OPT["sig"] == gi + 1: issued()
    def retry():
        E(f"L_rt{gi}:\ns_sub_u32 s34, s34, 1\ns_cbranch_scc1 {'L_toobig' if gi < OPT['sig'] else 'L_giveup'}")
        loads(grp, f"r{gi}_")
        E(f"s_waitcnt vmcnt(0)\ns_branch L_ck{gi}")
    emit_to(outofline, retry)
    for p in grp: rank(RA + 4*p, f"s[{48+2*p}:{49+2*p}]")
    E(f"s_and_b32 s30, s68, {bits}\ns_cbranch_scc1 L_ya{gi}\nL_yb{gi}:")
    def xput():
        E(f"L_ya{gi}:")
        for p in grp:
            r = RB + 4*p
            E(f"""
            s_bitcmp1_b32 s68, {p}
            s_cbranch_scc0 L_yn{p}
            s_mov_b64 exec, -1
            {mask2(p)}
            """)
            rank(r, "vcc")
            E("s_waitcnt lgkmcnt(0)")
            put(r, "vcc")
            E(f"L_yn{p}:")
        E(f"s_branch L_yb{gi}")
    emit_to(outofline, xput)
    for k, p in enumerate(grp):
        E(f"s_waitcnt lgkmcnt({len(grp) - 1 - k + 2*k})")
        put(RA + 4*p, f"s[{48+2*p}:{49+2*p}]")
    E("s_mov_b64 exec, -1")
E(f"""
    {f"s_sub_u32 s{ST0+4}, {POLL_MAX+1}, s34" if OPT["cnt"] else ""}
    s_branch L_b4
L_toobig:
    s_mov_b64 exec, -1
""")
issued()
E(f"""
L_giveup:
    v_mov_b32 v2, 0
    ds_write_b32 v2, v{FOUR} offset:{L_FLAG}
L_recskip:
    s_waitcnt vmcnt(0)
L_b4:
    s_setprio {OPT["p0"] if OPT["prio"] == 2 else 0}
    s_mul_i32 s30, s{S_HALF}, {G_HALF}
    {f"s_add_u32 s30, s30, {WS0}" if WS0 else ""}
    s_add_u32 s36, s20, s30
    s_addc_u32 s37, s21, 0
    s_mov_b32 s38, {OPT['nrec'] or G_HALF}
    s_mov_b32 s39, 0x20000
    s_mov_b32 s44, 128
    s_mov_b32 s45, 128
    ds_read_b128 v[60:63], v{LP}
    ds_read_b64 v[{AG}:{AG+1}], v{LP} offset:64
    ds_read_b64 v[{WN2}:{WN2+1}], v{LP} offset:72
    ds_read_b32 v{WE}, v{LP+1}
    s_waitcnt lgkmcnt(0)
    v_lshl_add_u64 v[{AG}:{AG+1}], v[{AG}:{AG+1}], 0, v[{LN8}:{LN8+1}]
    v_lshl_add_u32 v{WE}, v{WE}, 1, v{EAC}
""")
if OPT["warm"]:
    E(f"""
    s_barrier
    s_lshr_b32 s30, s2, 3
    s_mul_i32 s30, s30, 98304
    v_lshl_add_u32 v2, v0, 7, s30
    buffer_load_dword v3, v2, s[36:39], 0 offen sc1
    s_waitcnt vmcnt(0)
    s_sleep 40
    """)
STAMP(8)
E(f"""
    s_barrier                               ; B4
    s_cmp_lg_u32 s{S_SAFE}, 0
    s_cbranch_scc1 L_safe
    ds_read_b128 v[{T}:{T+3}], v60
    ds_read_b128 v[{T+4}:{T+7}], v61
    ds_read_b64 v[{XA}:{XA+1}], v{AG} offset:512
    ds_read_b64 v[{EA}:{EA+1}], v{WE}
    s_lshr_b32 s30, s3, 2
    s_cmp_lg_u32 s30, 1
    s_cbranch_scc1 L_nopoll
    s_mov_b64 exec, s[66:67]
    s_cbranch_execz L_p2e
    s_mov_b32 s31, {POLL_MAX}
L_p2:
    global_load_dwordx2 v[66:67], v64, s[20:21] sc1
    s_sub_u32 s31, s31, 1
    s_cbranch_scc1 L_p2d
    s_waitcnt vmcnt(0)
    v_cmp_ne_u64 vcc, s[{S_TAG}:{S_TAG+1}], v[66:67]
    s_and_b64 exec, exec, vcc
    s_cbranch_scc0 L_p2d
    {f"s_sleep {OPT['p2sleep']}" if OPT['p2sleep'] else ""}
    s_branch L_p2
L_p2d:
""")
gready()
E(f"""
L_p2e:
    s_mov_b64 exec, -1
L_nopoll:
    s_cmp_lt_u32 s3, {NW-2}
    s_cbranch_scc1 L_nobuild
    v_lshlrev_b32 v2, 3, v1
    v_mov_b32 v3, 0
    ds_read_b64 v[72:73], v2 offset:{L_CNT}
    ds_read_b32 v79, v3 offset:{L_FLAG}
    v_mul_u32_u24 v74, {2*SSTR}, v1
    v_add_u32 v74, {L_SRC + 96}, v74
    v_add_u32 v75, {SSTR}, v74
    v_mul_u32_u24 v82, {2*NSTR}, v1
    s_and_b32 s32, s3, 1
    s_mul_i32 s30, s32, {NSTR}
    s_add_u32 s30, s30, {L_NODE}
    v_add_u32 v82, s30, v82
    v_mov_b32 v83, v82
    s_mul_i32 s30, s32, {SSTR}
    v_add_u32 v80, s30, v74
    v_add_u32 v81, 16, v80
    s_waitcnt lgkmcnt(0)
    v_sub_u32 v72, v72, v74 clamp
    v_sub_u32 v73, v73, v75 clamp
    v_max_u32 v76, v72, v73
    v_cmp_lt_u32 vcc, 160, v76
    v_cmp_ne_u32 s[48:49], 0, v79
    v_add_u32 v74, 12, v72
    v_add_u32 v75, 12, v73
    s_or_b64 vcc, vcc, s[48:49]
    s_cbranch_scc1 L_bad
    v_add_u32 v72, 28, v72
    v_add_u32 v73, 28, v73
    v_lshrrev_b32 v74, 5, v74
    v_lshrrev_b32 v75, 5, v75
    v_lshrrev_b32 v72, 5, v72
    v_lshrrev_b32 v73, 5, v73
    v_sub_u32 v72, v72, v74
    v_sub_u32 v73, v73, v75
    v_lshl_or_b32 v72, v72, 16, v74
    v_lshl_or_b32 v73, v73, 16, v75
    v_add_u32 v76, v72, v73
    v_add_u32 v77, v72, v73
""")
scan(77)
E(f"""
    s_cmp_eq_u32 s32, 0
    s_cselect_b64 vcc, -1, 0
    v_readlane_b32 s30, v77, 63
    v_cndmask_b32 v76, v73, v76, vcc
    v_cndmask_b32 v72, v73, v72, vcc
    v_sub_u32 v77, v77, v76
    s_and_b32 s31, s30, 0xffff
    s_add_u32 s31, s31, 3
    s_lshr_b32 s31, s31, 2
    s_add_u32 s30, s30, 0x30000
    s_lshr_b32 s30, s30, 18
    s_lshl_b32 s33, s31, 1
    s_add_u32 s33, s33, s30
    s_cmp_gt_u32 s33, 112
    s_cbranch_scc1 L_bad
    s_lshl_b32 s30, s30, 8
    s_or_b32 s29, s30, s31
    v_and_b32 v74, 0xffff, v72
    v_and_b32 v76, 0xffff, v77
    s_mov_b32 s34, {L_LISTC}
    s_mov_b32 s35, {L_LIST + 384}
""")
def slotaddr():
    E(f"""
    v_add_u32 v78, 16, v76
    v_bfe_u32 v79, v76, 2, 2
    v_lshl_add_u32 v79, v79, 10, s34
    v_lshrrev_b32 v84, 5, v78
    v_lshl_add_u32 v79, v84, 7, v79
    v_bfe_u32 v84, v78, 4, 1
    v_lshl_add_u32 v79, v84, 3, v79
    v_lshrrev_b32 v84, 2, v76
    v_cmp_gt_u32 vcc, 32, v76
    v_lshl_add_u32 v84, v84, 9, s35
    v_and_b32 v78, 3, v76
    v_cndmask_b32 v79, v79, v84, vcc
    v_lshl_add_u32 v79, v78, 4, v79
    """)
E("""
L_bf:
    v_cmp_ne_u32 vcc, 0, v74
    s_and_b64 exec, exec, vcc
    s_cbranch_execz L_bfd
""")
slotaddr()
E(f"""
    ds_write_b64 v79, v[80:81]
    ds_write_b64 v79, v[82:83] offset:64
    v_add_u32 v80, 32, v80
    v_add_u32 v81, 32, v81
    v_add_u32 v76, 1, v76
    v_subrev_u32 v74, 1, v74
    s_branch L_bf
L_bfd:
    s_mov_b64 exec, -1
    v_lshrrev_b32 v77, 16, v77
    v_lshrrev_b32 v76, 3, v77
    v_add_u32 v76, s31, v76
    v_and_b32 v78, 3, v77
    v_lshl_add_u32 v76, v76, 2, v78
""")
slotaddr()
E(f"""
    v_and_b32 v78, 4, v77
    v_add_u32 v79, v79, v78
    v_cmp_lt_u32 vcc, 0xffff, v72
    s_mov_b64 exec, vcc
    ds_write2_b32 v79, v80, v82 offset0:0 offset1:16
    s_mov_b64 exec, -1
    s_mul_i32 s29, s29, s32
    s_add_u32 s29, s29, 0x10000
    s_branch L_built
L_bad:
    s_mov_b32 s29, 0x1010000
L_built:
    v_mov_b32 v2, s29
    s_mov_b64 exec, 1
    ds_add_u32 v3, v2 offset:{L_NST}
    s_add_u32 s30, s{S_P}, s32
    s_cmp_lg_u32 s30, 0
    s_cbranch_scc1 L_notw
    v_mov_b32 v2, s{S_TAG}
    v_mov_b32 v3, {WS_TAG}
    global_store_dword v3, v2, s[20:21] sc1
L_notw:
    s_mov_b64 exec, -1
L_nobuild:
    s_waitcnt lgkmcnt(0)
""")
assert DIST == 2 and not EARLY
E(m_a(D0))
for o in range(T, T+8, 2): E(oadd(o))
E(m_e(D0, 0))
lds_wait(L_GOK, 0xff, 4, "gok")
if OPT["stamps"] == 2: E(f"s_memrealtime s[{ST0+16}:{ST0+17}]")
if not OPT["nogather"]:
    for q in range(8): E(gload(G + 4*q, T+q))
STAMP(9)
E(f"""
    s_mov_b32 s31, {POLL_MAX}
    s_waitcnt vmcnt(4)
""")
E(m_s(D0, A1, G)); E(m_s(D0, A2, G+8))
E(f"""
L_wn:
    ds_read_b32 v3, v2 offset:{L_NST}
    ds_read_b128 v[{WS4}:{WS4+3}], v{LP} offset:{128*((DIST+EARLY)//4)}
    s_sub_u32 s31, s31, 1
    s_cbranch_scc1 L_gosafe
    s_waitcnt lgkmcnt(0)
    v_readfirstlane_b32 s30, v3
    s_bitcmp1_b32 s30, 17
    s_cbranch_scc0 L_wn
    s_cmp_gt_u32 s30, {0 if OPT["force_safe"] else 0xffffff}
    s_cbranch_scc1 L_gosafe
    s_and_b32 s31, s30, 0xff
    s_bfe_u32 s30, s30, 0x80008
    s_lshl_b32 s32, s31, 1
    s_add_u32 s30, s30, s32
    s_lshl_b32 s32, s3, 1
    s_sub_i32 s30, s30, s32
    s_max_i32 s30, s30, 0
    s_cmp_ge_u32 s3, 8
    s_cbranch_scc1 L_nc
    s_min_u32 s30, s30, 2
    s_add_u32 s{S_R}, s30, 12
    s_cmp_ge_u32 s3, s31
    s_cselect_b32 s30, 0x2000, 0
    s_or_b32 s{S_M}, s30, 0x5041
    s_branch L_nd
L_nc:
    s_add_u32 s32, s30, 7
    s_lshr_b32 s32, s32, 3
    s_lshl_b32 s32, s32, 1
    s_and_b32 s30, s30, 7
    s_cmp_eq_u32 s30, 1
    s_subb_u32 s32, s32, 0
    s_add_u32 s{S_R}, s32, 6
    s_sub_i32 s31, s31, s3
    s_add_i32 s31, s31, 3
    s_max_i32 s31, s31, 0
    s_lshr_b32 s31, s31, 2
    s_lshl_b32 s31, s31, 1
    s_add_u32 s31, s31, 7
    s_lshl_b32 s31, -1, s31
    s_or_b32 s{S_M}, s31, 0x55555541
L_nd:
    s_mov_b32 s{S_IT}, {(1 << OPT["pa"]) | (1 << OPT["pb"]) | (1 << OPT["pc"]) if OPT["prio"] == 2 else 0}
""")
if OPT["prio"]: E(f"s_setprio {OPT['p1']}")
STAMP(10)
if OPT["ptime"]: E("v_mov_b32 v35, 0\nv_mov_b32 v68, 0")
if OPT["stamps"] == 1: E(f"s_memtime s[{ST0+24}:{ST0+25}]\ns_waitcnt lgkmcnt(0)")
for u in range(4): phase(u, True)
for u in range(4): phase(u, False)
E(f"""
L_mdone:
    s_waitcnt lgkmcnt(0)
""")
STAMP(11)
if OPT["ptime"]:
    E(f"""
    s_lshl_b32 s30, s2, 4
    s_add_u32 s30, s30, s3
    s_lshl_b32 s30, s30, 8
    s_add_u32 s30, s30, 0xc00000
    v_lshl_add_u32 v2, v1, 2, s30
    s_mov_b32 exec_hi, 0
    global_store_dword v2, v35, s[20:21]
    global_store_dword v2, v68, s[20:21] offset:128
    s_mov_b64 exec, -1
    """)
if OPT["stamps"] == 1:
    E(f"s_memtime s[28:29]\ns_waitcnt lgkmcnt(0)\ns_sub_u32 s{ST0+24}, s28, s{ST0+24}")
E(f"""
    v_lshrrev_b32 v2, 5, v0
    v_and_b32 v3, 31, v0
    v_mul_u32_u24 v4, {NSTR}, v2
    v_and_b32 v5, 1, v3
    v_lshl_add_u32 v4, v5, 8, v4
    v_lshrrev_b32 v5, 1, v3
    v_lshl_add_u32 v4, v5, 3, v4
    v_add_u32 v4, {L_NODE}, v4
    s_mul_i32 s30, s{S_BUCK}, {NB*256}
    s_lshl_b32 s31, s{S_HALF}, 7
    s_add_u32 s30, s30, s31
    v_lshlrev_b32 v3, 2, v3
    v_lshl_add_u32 v5, v2, 8, v3
    v_add_u32 v5, s30, v5
    v_add_u32 v6, {24*256}, v5
    v_add_u32 v7, {48*256}, v5
    v_add_u32 v8, {72*256}, v5
    s_mov_b32 s32, {f32(2.0**32)}
    s_mov_b32 s34, {f32(-LOG2E * 2.0**-32)}
    v_mov_b32 v9, 0x207
    s_barrier                               ; B5
""")
OSC = {0: "", 1: " sc1", 2: " nt"}[OPT["osc"]]
def epi(us):
    for u in us: E(f"ds_read_b64 v[{12+4*u}:{13+4*u}], v4 offset:{24*NSTR*u}\nds_read_b64 v[{14+4*u}:{15+4*u}], v4 offset:{24*NSTR*u + 128}")
    E("s_waitcnt lgkmcnt(0)")
    for u in us: E(f"v_cvt_f32_f64 v{28+2*u}, v[{12+4*u}:{13+4*u}]\nv_cvt_f32_f64 v{29+2*u}, v[{14+4*u}:{15+4*u}]")
    for u in us: E(f"v_pk_mul_f32 v[{36+2*u}:{37+2*u}], v[{28+2*u}:{29+2*u}], s[34:35] op_sel_hi:[1,0]")
    for u in us: E(f"v_exp_f32 v{36+2*u}, v{36+2*u}\nv_exp_f32 v{37+2*u}, v{37+2*u}")
    E("v_pk_add_f32 v[10:11], v[28:29], v[30:31]")
    for u in us: E(f"v_pk_fma_f32 v[{36+2*u}:{37+2*u}], v[{36+2*u}:{37+2*u}], s[32:33], s[32:33] op_sel_hi:[1,0,0]")
    for u in us: E(f"v_rcp_f32 v{36+2*u}, v{36+2*u}\nv_rcp_f32 v{37+2*u}, v{37+2*u}")
    E("v_pk_add_f32 v[10:11], v[10:11], v[32:33]")
    for u in us: E(f"v_pk_mul_f32 v[{36+2*u}:{37+2*u}], v[{28+2*u}:{29+2*u}], v[{36+2*u}:{37+2*u}]")
    for u in us: E(f"v_cvt_pk_bf16_f32 v{44+u}, v{36+2*u}, v{37+2*u}\nglobal_store_dword v{5+u}, v{44+u}, s[18:19]{OSC}")
    for u in us[3:]: E(f"v_pk_add_f32 v[10:11], v[10:11], v[{28+2*u}:{29+2*u}]")
E("s_cmp_ge_u32 s3, 4\ns_cbranch_scc1 L_e3")
epi([0, 1, 2, 3])
E("s_branch L_e4\nL_e3:")
epi([0, 1, 2])
E(f"""
L_e4:
    v_add_f32 v10, v10, v11
    v_cmp_class_f32 vcc, v10, v9
    v_mov_b32 v2, 0
    s_cmp_lg_u32 s{S_SAFE}, 0
    s_cbranch_scc1 L_fin
    {"s_branch" if OPT["nosafe"] else "s_cbranch_vccz"} L_e5
    ds_write_b32 v2, v9 offset:{L_FLAG}
    s_waitcnt lgkmcnt(0)
L_e5:
    s_barrier                               ; B6
    ds_read_b32 v2, v2 offset:{L_FLAG}
    s_waitcnt lgkmcnt(0)
    v_readfirstlane_b32 s30, v2
    s_cmp_lg_u32 s30, 0
    s_cbranch_scc1 L_gosafe
L_fin:
""")
if OPT["stamps"]:
    E("s_waitcnt vmcnt(0)"); STAMP(13); STAMP_OUT()
if OPT["probe"] >= 0:
    T_ = ST0 + 2*OPT["probe"]
    E(f"""
    s_cmp_lg_u32 s3, {OPT["pw"]}
    s_cbranch_scc1 L_end
    s_cmp_lg_u32 s2, {OPT["pg"] if OPT["pg"] >= 0 else "s2"}
    s_cbranch_scc1 L_end
    s_sub_u32 s30, s{T_}, s{ST0}
    s_lshl_b32 s30, s30, 2
    s_add_u32 s30, s30, 3000
    s_min_u32 s30, s30, 20000
L_spin:
    s_memrealtime s[28:29]
    s_waitcnt lgkmcnt(0)
    s_sub_u32 s28, s28, s{ST0}
    s_cmp_lt_u32 s28, s30
    s_cbranch_scc1 L_spin
    """)
E(f"""
L_end:
    s_endpgm
L_gosafe:
    s_mov_b32 s{S_SAFE}, 8
    s_setprio 0
    s_waitcnt vmcnt(0) lgkmcnt(0)
    s_barrier
    s_branch L_restart
""")
out += outofline
for r in retries: E(r)
E(f"""
L_safe:
    v_and_b32 v2, 15, v1
    v_lshlrev_b32 v3, 3, v2
    v_add_u32 v3, {L_C}, v3
""")
for k in range(4):
    for s in range(4):
        E(f"ds_read_u16 v{80+4*k+s}, v3 offset:{128*k + 2*s}")
E("s_waitcnt lgkmcnt(0)")
for i in range(16):
    E(f"v_lshlrev_b32 v{80+i}, 16, v{80+i}\nv_mul_f32 v{80+i}, s40, v{80+i}")
E(f"""
    v_lshrrev_b32 v24, 4, v1
    v_mul_u32_u24 v24, 3, v24               ; 3*quarter
    s_movk_i32 s33, {NSTR}
    v_add_u32 v25, {L_NODE}, v{LN8}
    s_mov_b32 s34, s3
    s_mov_b32 s35, {POLL_MAX}
L_scell:
    s_lshl_b32 s30, s34, 10
    s_lshl_b32 s31, s{S_BUCK}, 3
    s_add_u32 s30, s30, s31
    s_add_u32 s30, s30, {WS_ROW}
    v_mov_b32 v26, s30
    global_load_dword v32, v26, s[20:21] sc1
    s_mul_i32 s30, s34, {SORTB//4}
    s_add_u32 s30, s30, {WS_REC//4}
    s_waitcnt vmcnt(0)
    v_bfe_u32 v28, v32, 12, 12              ; 3*count
    v_and_b32 v27, 0xfff, v32
    v_add_u32 v27, s30, v27
L_sver:
    v_mov_b32 v29, v1
    v_mov_b32 v31, 0
L_sv1:
    v_cmp_ge_u32 vcc, v28, v29
    s_and_saveexec_b64 s[48:49], vcc
    s_cbranch_execz L_sv2
    v_add_lshl_u32 v30, v27, v29, 2
    global_load_dword v32, v30, s[20:21] sc1
    s_waitcnt vmcnt(0)
    v_add_u32 v31, v31, v32
    s_mov_b64 exec, s[48:49]
    v_add_u32 v29, 64, v29
    s_branch L_sv1
L_sv2:
    s_mov_b64 exec, s[48:49]
""")
scan(31)
E(f"""
    s_nop 0
    v_readlane_b32 s30, v31, 63
    s_cmp_eq_u32 s30, s{S_TAG+1}
    s_cbranch_scc1 L_sok
    s_sub_u32 s35, s35, 1
    s_cbranch_scc0 L_sver
    s_branch L_mdone
L_sok:
    v_mov_b32 v29, v24
L_srec:
    v_cmp_gt_u32 vcc, v28, v29
    s_and_saveexec_b64 s[48:49], vcc
    s_cbranch_execz L_snext
    v_add_lshl_u32 v30, v27, v29, 2
    global_load_dwordx3 v[32:34], v30, s[20:21] offset:4 sc1
    s_waitcnt vmcnt(0)
    v_and_b32 v30, 0x3fff00, v32
    v_add_u32 v30, v30, v{LN16}
    buffer_load_dwordx4 v[36:39], v30, s[36:39], 0 offen sc1
    v_lshrrev_b32 v31, 24, v32
    v_mad_u32_u24 v31, v31, s33, v25
    ds_read_b64 v[40:41], v31 offset:512
    v_lshlrev_b32 v44, 16, v33
    v_and_b32 v45, 0xffff0000, v33
    v_lshlrev_b32 v46, 16, v34
    v_and_b32 v47, 0xffff0000, v34
    s_waitcnt vmcnt(0) lgkmcnt(0)
    v_lshlrev_b32 v48, 16, v40
    v_and_b32 v49, 0xffff0000, v40
    v_lshlrev_b32 v50, 16, v41
    v_and_b32 v51, 0xffff0000, v41
""")
for s in range(4):
    E(f"v_lshlrev_b32 v52, 16, v{36+s}\nv_add_f32 v{48+s}, v{48+s}, v52")
    for k in range(4):
        E(f"v_fmac_f32 v{48+s}, v{44+k}, v{80+4*k+s}")
for s in range(4): E(f"v_exp_f32 v{48+s}, v{48+s}")
E("s_nop 0")
for s in range(4): E(f"v_add_f32 v{48+s}, 1.0, v{48+s}")
for s in range(4): E(f"v_rcp_f32 v{48+s}, v{48+s}")
E("s_nop 0")
for s in range(4): E(f"v_mul_f32 v{48+s}, v{48+s}, v{36+s}")
for s in range(4): E(f"v_cvt_f64_f32 v[{54+2*s}:{55+2*s}], v{48+s}")
for s in range(4): E(f"ds_add_f64 v31, v[{54+2*s}:{55+2*s}] offset:{128*s}")
E(f"""
    s_mov_b64 exec, s[48:49]
    v_add_u32 v29, 12, v29
    s_branch L_srec
L_snext:
    s_mov_b64 exec, s[48:49]
    s_add_u32 s34, s34, {NW}
    s_cmp_lt_u32 s34, {NCHUNK}
    s_cbranch_scc1 L_scell
    s_branch L_mdone
L_codeend:
.section .rodata,"a"
.p2align 6
.amdhsa_kernel {NAME}
.amdhsa_next_free_vgpr 168
.amdhsa_next_free_sgpr 102
.amdhsa_accum_offset 168
.amdhsa_group_segment_fixed_size 0
.amdhsa_kernarg_size 80
.amdhsa_user_sgpr_count 2
.amdhsa_user_sgpr_kernarg_segment_ptr 1
.amdhsa_system_sgpr_workgroup_id_x 1
.end_amdhsa_kernel
""")
if OPT["drop"]:
    i0 = out.index("L_L0:"); i1 = out.index("L_mdone:")
    pats = {1: ("smfmac",), 2: ("mfma",), 3: ("32x32x8",), 4: ("smfmac",), 5: ("v_exp",)}[OPT["drop"]]
    repl = {4: "    s_nop 2", 5: "    s_nop 1"}.get(OPT["drop"])
    mid = []
    for l in out[i0:i1]:
        if any(x in l for x in pats):
            if repl: mid.append(repl)
        else: mid.append(l)
    if OPT["drop"] == 3: mid = [l.replace("v[88:103] cbsz", "0 cbsz").replace("v[72:87] cbsz", "0 cbsz") for l in mid]
    out = out[:i0] + mid + out[i1:]
if OPT["nochain"]:
    i0 = out.index("L_L0:"); i1 = out.index("L_mdone:")
    out = out[:i0] + [l for l in out[i0:i1] if not any(x in l for x in ("v_exp", "v_pk_", "mfma", "v_rcp", "v_cvt"))] + out[i1:]
open(sys.argv[1], "w").write("\n".join(out) + "\n")
```

```python
import sys, struct

OPT = dict(hb=1, stamps=0, force_safe=0, nogather=0, nosafe=0, prio=2, gsc1=1, osc=1, codepf=1, srcmask=0x3fff00, nrec=0, warm=0,
           nochain=0, probe=-1, pw=-1, pg=-1, gpf=32, early=0, cnt=0, pollmax=200000, pa=7, pb=3, pc=1, p0=3, p1=3, ptime=0,
           dist=2, ldearly=0, drop=0, wgate=0, gate=0, gate2=1, rst=0, rsc1=1, nover=0, p2gate=1, p2sleep=0, hold=0, slate=2, lpos=0, p1st=1, sig=1, gpace=4, gwin=-1, gp=0xf448c, ghold=0, nte=0, ewhen=2, wpf=1, gpe=0, pre=0, prelate=0, ntx=0, rpace=-1, p2wait=0)
for a in sys.argv[2:]:
    k, v = a.split("=")
    assert k in OPT, k
    OPT[k] = int(v, 0)

out = []
def E(s=""):
    for line in s.split("\n"):
        line = line.strip()
        if not line:
            continue
        if line.endswith(":") or line.startswith(".") or line.startswith(";"):
            out.append(line)
        else:
            out.append("    " + line)

def f32(x):
    return "0x%08x" % struct.unpack("<I", struct.pack("<f", x))[0]

NAME = "standalone__edge_featured_mpnn_egc__graph_kernel"
LOG2E = 1.4426950408889634
NB = 80; NBUCK = 125; CHUNK = 1280; NCHUNK = 250
NW = 12
G_HALF = 10000 * 256
WS0 = 0
WS_REC = 0x500000
WS_ROW = 0x900000
WS_FL2 = 0x980000
WS_TAG = 0x9c0000
SORTB = CHUNK * 12 + 512
WS_STAMP = 0x1000000
L_CNT = 0; L_SOFF = 512
L_SCNT = 1024
L_CTR = 1536; L_RD = 1540; L_DONE2 = 1544; L_FLAG = 1548; L_NST = 1552; L_GST = 1556; L_GOK = 1560; L_AU = 1564
L_DUM = L_SOFF
L_LIST = 2048
L_LISTC = L_LIST + 4096
SSTR = 272
L_SRC = L_LIST + 8192
SRCB = 80 * SSTR + 32
L_EA = L_SRC + SRCB
L_EAEND = L_EA + 2 * SRCB
L_SORT = L_EA
L_WBV = (L_EAEND + 255) // 256 * 256; L_X = L_WBV + 32768; L_WAU = L_X + 20480; L_C = L_WAU + 32768
LDS = L_C + 1024
L_NODE = L_WBV; NSTR = 648
assert L_NODE + 80 * NSTR <= L_WAU and LDS <= 163840 and L_EA % 16 == 0
NULL_SRC = 0x7fffff00
POLL_MAX = OPT["pollmax"]
SC1 = " sc1"
NTE = " nt" if OPT["nte"] else ""
NTX = " nt" if OPT["ntx"] else ""

S_HALF, S_BUCK, S_P = 22, 23, 24
S_SAFE, S_TAG = 25, 26
S_R, S_M, S_IT = 70, 71, 72
S_TAGRAW = 47
ST0 = 74

def ESTAMP(i):
    if OPT["early"] == 1 or (OPT["early"] and i == 0): E(f"s_memrealtime s[{ST0+2*i}:{ST0+2*i+1}]")
def FSTAMP(i):
    if OPT["early"] == 2: E(f"s_memrealtime s[{ST0+2*i}:{ST0+2*i+1}]\ns_waitcnt lgkmcnt(0)")
def STAMP(i):
    if OPT["stamps"] == 2:
        if i == 0: E(f"s_memrealtime s[{ST0}:{ST0+1}]")
        if i == 13: E(f"s_memrealtime s[{ST0+26}:{ST0+27}]\ns_waitcnt lgkmcnt(0)")
        return
    if OPT["early"] and 1 <= i <= 7: return
    if OPT["early"] and i == 0: return ESTAMP(0)
    if OPT["stamps"] or (OPT["probe"] >= 0 and i == OPT["probe"]):
        E(f"s_memrealtime s[{ST0+2*i}:{ST0+2*i+1}]\ns_waitcnt lgkmcnt(0)")
    elif OPT["probe"] >= 0 and i == 0:
        E(f"s_memrealtime s[{ST0}:{ST0+1}]")
NSTAMP = 14
def STAMP_OUT():
    if OPT["stamps"]:
        E(f"""
        s_lshl_b32 s30, s2, 4
        s_add_u32 s30, s30, s3
        s_lshl_b32 s30, s30, 6
        s_add_u32 s30, s30, {WS_STAMP - 0x100000}
        s_load_dwordx2 s[20:21], s[0:1], 72
        s_waitcnt lgkmcnt(0)
        s_mov_b64 exec, -1
        v_mov_b32 v3, s30""")
        for i in (range(NSTAMP) if OPT["stamps"] == 1 else (0, 8, 13)):
            E(f"v_mov_b32 v2, s{ST0+2*i}\nglobal_store_dword v3, v2, s[20:21] offset:{4*i}")
        E("s_waitcnt vmcnt(0)")

A1, A2, IDX, EAC, LN16, ASEL, CW, LN8 = 4, 8, 12, 13, 14, 16, 18, 20
LP, WS4, WN2, EA, XA, WE, OFS, AG, T, N, P, F = 22, 24, 28, 30, 32, 34, 36, 40, 44, 52, 56, 60
D0, D1, G = 72, 88, 104

def finish_tag():
    E(f"""
    s_mul_i32 s{S_TAG+1}, s{S_TAGRAW}, 0x85ebca6b
    s_mul_i32 s{S_TAG}, s{S_TAGRAW}, 0x9e3779b1
    s_add_u32 s{S_TAG+1}, s{S_TAG+1}, 0x5bd1e995
    s_add_u32 s{S_TAG}, s{S_TAG}, 0x7f4a7c15
    """)
def get_tag(lab, q):
    E(f"""
    s_cmp_lg_u32 s{S_SAFE}, 0
    s_cbranch_scc1 L_tag_{lab}
    v_mov_b32 v2, 0
    s_mov_b32 s31, {POLL_MAX}
L_tg_{lab}:
    ds_read_b128 v[{q}:{q+3}], v2 offset:{L_SCNT + 124*4}
    s_sub_u32 s31, s31, 1
    s_cbranch_scc1 L_tag_{lab}
    s_waitcnt lgkmcnt(0)
    v_readfirstlane_b32 s30, v{q+3}
    v_readfirstlane_b32 s{S_TAGRAW}, v{q+1}
    s_cmp_lg_u32 s30, 4
    s_cbranch_scc1 L_tg_{lab}
    """)
    finish_tag()
    E(f"L_tag_{lab}:")

def lds_wait(addr, mask, val, tag, sleep=0, ne=False):
    E(f"""
    v_mov_b32 v2, 0
    s_mov_b32 s31, {POLL_MAX}
L_w_{tag}:
    {f"s_sleep {sleep}" if sleep else ""}
    ds_read_b32 v3, v2 offset:{addr}
    s_sub_u32 s31, s31, 1
    s_cbranch_scc1 L_wd_{tag}
    s_waitcnt lgkmcnt(0)
    v_readfirstlane_b32 s30, v3
    s_and_b32 s30, s30, {mask}
    s_cmp_lg_u32 s30, {val}
    s_cbranch_scc{0 if ne else 1} L_w_{tag}
L_wd_{tag}:
    """)
SCAN = ("row_shr:1 row_mask:0xf bank_mask:0xf bound_ctrl:0", "row_shr:2 row_mask:0xf bank_mask:0xf bound_ctrl:0",
        "row_shr:4 row_mask:0xf bank_mask:0xf bound_ctrl:0", "row_shr:8 row_mask:0xf bank_mask:0xf bound_ctrl:0",
        "row_bcast:15 row_mask:0xa bank_mask:0xf", "row_bcast:31 row_mask:0xc bank_mask:0xf")
def scan(r):
    for m in SCAN:
        E(f"s_nop 1\nv_add_u32_dpp v{r}, v{r}, v{r} {m}")

def main_consts(sm=48):
    E(f"""
    v_and_b32 v2, 15, v1                    ; n'
    v_lshrrev_b32 v3, 4, v1
    v_lshl_add_u32 v3, v2, 2, v3
    v_lshlrev_b32 v3, 1, v3
    v_add_u32 v3, {L_C}, v3
    ds_read_u16 v64, v3                     ; C[0..3][feature 4n'+s]
    ds_read_u16 v65, v3 offset:128
    ds_read_u16 v66, v3 offset:256
    ds_read_u16 v67, v3 offset:384
    v_and_b32 v63, 3, v1                    ; q
    v_lshlrev_b32 v{LN8}, 3, v2
    v_lshlrev_b32 v{LN8+1}, 3, v2
    v_lshlrev_b32 v{LN16}, 4, v2
    v_lshlrev_b32 v{LN16+1}, 4, v2
    v_mov_b32 v{IDX}, 0x8888
    v_bfe_u32 v60, v1, 3, 2                 ; s = (l&31)>>3
    v_bfe_u32 v61, v1, 2, 1                 ; h = (l>>2)&1
    v_lshrrev_b32 v62, 5, v1                ; ha
    v_and_b32 v2, 1, v60
    v_lshlrev_b32 v2, 4, v2
    v_lshlrev_b32 v2, v2, s46
    v_lshrrev_b32 v60, 1, v60               ; s>>1
    v_lshl_add_u32 v3, v61, 1, v60
    v_sub_u32 v63, v63, v62                 ; q - ha : 0 -> A1, 2 -> A2
    v_lshl_add_u32 v3, v63, 1, v3
    v_and_b32 v63, 1, v63
    v_lshl_or_b32 v3, v63, 4, v3
    v_xor_b32 v61, v61, v62
    v_lshl_or_b32 v60, v61, 4, v60
    """)
    mk = [f"s[{sm}:{sm+1}]", f"s[{sm+2}:{sm+3}]", f"s[{sm+4}:{sm+5}]", "vcc"]
    for i in range(8):
        E(f"v_cmp_eq_u32 {mk[i%4]}, {i}, v3")
        if i % 4 == 3:
            for j in range(i-3, i+1):
                E(f"v_cndmask_b32 v{A1+j}, 0, v2, {mk[j%4]}")
    E(f"""
    v_cmp_eq_u32 {mk[0]}, 0, v60
    v_cmp_eq_u32 {mk[1]}, 1, v60
    v_and_b32 v63, 3, v1
    v_lshlrev_b32 v61, 3, v63
    v_cndmask_b32 v{ASEL}, 0, v2, {mk[0]}
    v_cndmask_b32 v{ASEL+1}, 0, v2, {mk[1]}
    v_add_u32 v{EAC}, {L_EA - 2*L_SRC}, v61
    s_lshl_b32 s30, s3, 9
    s_sub_u32 s31, s30, 4096
    s_max_i32 s31, s31, 0
    s_add_u32 s30, s30, s31
    s_add_u32 s30, s30, {L_LIST}
    v_lshrrev_b32 v2, 4, v1
    v_lshl_add_u32 v{LP}, v2, 4, s30
    v_bfe_u32 v3, v1, 2, 2
    v_lshl_add_u32 v{LP+1}, v3, 4, s30
    v_lshl_add_u32 v{LP+1}, v2, 2, v{LP+1}
    s_waitcnt lgkmcnt(0)
    v_lshlrev_b32 v60, 16, v64
    v_lshlrev_b32 v61, 16, v65
    v_lshlrev_b32 v62, 16, v66
    v_lshlrev_b32 v63, 16, v67
    v_mul_f32 v60, s40, v60
    v_mul_f32 v61, s40, v61
    v_mul_f32 v62, s40, v62
    v_mul_f32 v63, s40, v63
    v_cvt_pk_bf16_f32 v{CW}, v60, v61
    v_cvt_pk_bf16_f32 v{CW+1}, v62, v63
    """)

def gload(g, o):
    return f"buffer_load_dwordx4 v[{g}:{g+3}], v{o}, s[36:39], 0 offen" + (SC1 if OPT["gsc1"] else "")
def oadd(o):
    return f"v_lshl_add_u64 v[{o}:{o+1}], v[{o}:{o+1}], 0, v[{LN16}:{LN16+1}]"

def pk_steps(Gc, q, first):
    t = T + 4*(q & 1); h = Gc + 4*q
    if first and q == 0:
        return [f"v_pk_add_f32 v[{P+2*p}:{P+2*p+1}], v[{t+2*p}:{t+2*p+1}], 1.0 op_sel_hi:[1,0]" for p in range(2)]
    r = []
    for p in range(2):
        n = f"v[{Gc+2*p}:{Gc+2*p+1}]" if (first and q == 1) else f"v[{N+2*p}:{N+2*p+1}]"
        r.append(f"v_pk_fma_f32 v[{N+2*p}:{N+2*p+1}], {n}, v[{t+2*p}:{t+2*p+1}], {n}")
    for p in range(2):
        r.append(f"v_pk_fma_f32 v[{N+2*p}:{N+2*p+1}], v[{h+2*p}:{h+2*p+1}], v[{P+2*p}:{P+2*p+1}], v[{N+2*p}:{N+2*p+1}]")
    for p in range(2):
        r.append(f"v_pk_fma_f32 v[{P+2*p}:{P+2*p+1}], v[{P+2*p}:{P+2*p+1}], v[{t+2*p}:{t+2*p+1}], v[{P+2*p}:{P+2*p+1}]")
    return r
def exps(Dc, q):
    t = T + 4*(q & 1)
    return [f"v_exp_f32 v{t+s}, v{Dc+4*s+q}" for s in range(4)]
def weave(main, extra):
    for i, x in enumerate(main):
        E(x)
        for y in extra.get(i, []):
            E(y)
def m_a(Dn): return f"v_mfma_f32_32x32x8_bf16 v[{Dn}:{Dn+15}], v[{ASEL}:{ASEL+1}], v[{XA}:{XA+1}], 0"
def m_e(Dn, abid): return f"v_mfma_f32_16x16x4_4b_bf16 v[{Dn}:{Dn+15}], v[{EA}:{EA+1}], v[{CW}:{CW+1}], v[{Dn}:{Dn+15}] cbsz:2 abid:{abid}"
def m_s(Dn, A, g): return f"v_smfmac_f32_32x32x32_bf16 v[{Dn}:{Dn+15}], v[{A}:{A+3}], v[{g}:{g+7}], v{IDX}"

outofline = []
def emit_to(lst, fn):
    global out
    keep = out; out = []
    fn(); lst += out; out = keep
DIST = OPT["dist"]; EARLY = OPT["ldearly"]
assert not (EARLY and DIST == 4)
def phase(u, loads):
    tag = f"{'L' if loads else 'T'}{u}"
    Dc, Dn = ((D0, D1), (D1, D0))[u & 1]
    gc = G + 16*u; gn = G + 16*((u+1) & 3); gl = G + 16*((u+DIST) & 3)
    ld = loads and not OPT["nogather"]
    kw = (u + DIST + EARLY) & 3
    wsgrp = 128 * ((3 - kw + u + DIST + EARLY) // 4 + 1) if kw == 3 else None
    def addloads(ex, pos):
        if loads:
            ex.setdefault(0, []).append(oadd(OFS)); ex.setdefault(2, []).append(oadd(OFS+2))
        if ld:
            for q in range(4): ex.setdefault(pos[q], []).append(gload(gl+4*q, OFS+q))
    E(f"L_{tag}:")
    if OPT["ptime"]: E(f"s_memrealtime s[28:29]\ns_mov_b32 m0, s{S_R}")
    if OPT["ptime"] == 2: E(f"s_memtime s[30:31]")
    SL = OPT["slate"]
    if not SL: E(f"s_waitcnt vmcnt({4*(DIST-2)})")
    if OPT["ptime"] == 1: E(f"s_memrealtime s[30:31]")
    E(m_a(Dn))
    for x in exps(Dc, 0): E(x)
    E(m_e(Dn, (u+1) & 3) if SL else m_s(Dn, A1, gn))
    for x in exps(Dc, 1): E(x)
    ex = {0: ["s_waitcnt lgkmcnt(0)"], 2: [f"ds_read_b64 v[{XA}:{XA+1}], v{AG + ((u+2) & 3)} offset:512"]}
    if OPT["ptime"]: ex[0] += ["v_writelane_b32 v35, s28, m0", "v_writelane_b32 v68, s30, m0"]
    if u % 2 == 0:
        p = AG + ((u+2) & 3)
        ex[0].append(f"v_lshl_add_u64 v[{p}:{p+1}], v[{WN2}:{WN2+1}], 0, v[{LN8}:{LN8+1}]")
    if EARLY: addloads(ex, (1, 3, 5, 6))
    elif loads: ex[1] = [f"ds_read_b128 v[{OFS}:{OFS+3}], v{WS4+kw}"]
    if u == 2:
        ex.setdefault(4, []).append(f"v_lshl_add_u32 v{WE}, v{WE}, 1, v{EAC}")
        if SL: ex.setdefault(7, []).append(f"ds_read_b64 v[{EA}:{EA+1}], v{WE}")
    E(f"s_bitcmp1_b32 s{S_M}, 0\ns_cbranch_scc1 L_{tag}f")
    weave(pk_steps(gc, 0, False) + pk_steps(gc, 1, False), ex)
    E(f"L_{tag}r:")
    def first():
        E(f"L_{tag}f:")
        weave(pk_steps(gc, 0, True) + pk_steps(gc, 1, True), ex)
        E(f"s_branch L_{tag}r")
    emit_to(outofline, first)
    if SL:
        E(f"s_waitcnt vmcnt({4*(DIST-2) + (4 if (EARLY and loads) else 0) + (2 if SL == 2 else 0)})")
        E(m_s(Dn, A1, gn))
    else:
        E(m_e(Dn, (u+1) & 3))
    for x in exps(Dc, 2): E(x)
    if SL == 2: E(f"s_waitcnt vmcnt({4*(DIST-2) + (4 if (EARLY and loads) else 0)})")
    E(m_s(Dn, A2, gn+8))
    for x in exps(Dc, 3): E(x)
    ex = {0: ["s_waitcnt lgkmcnt(0)"], 4: [], 6: [], 7: [f"s_sub_u32 s{S_R}, s{S_R}, 1"], 10: [f"s_lshr_b32 s{S_M}, s{S_M}, 1"], 11: [f"s_bitcmp1_b32 s{S_M}, 0"]}
    if not EARLY: addloads(ex, (1, 3, 5, 9) if DIST == 4 else ((1, 3, 5, 7), (1, 2, 3, 4), (4, 6, 8, 10), (2, 5, 8, 10))[OPT['lpos']])
    elif loads: ex[1] = [f"ds_read_b128 v[{OFS}:{OFS+3}], v{WS4+kw}"]
    if u == 1:
        ex[4].append(f"ds_read_b64 v[{WN2}:{WN2+1}], v{LP} offset:{128+64}")
        ex[6].append(f"ds_read_b32 v{WE}, v{LP+1} offset:128")
    if u == 2 and not SL:
        ex[4].append(f"ds_read_b64 v[{EA}:{EA+1}], v{WE}")
    if u == 3:
        ex[4].append(f"ds_read_b64 v[{WN2}:{WN2+1}], v{LP} offset:{128+64+8}")
        ex.setdefault(8, []).append(f"v_lshl_add_u64 v[{LP}:{LP+1}], v[{LP}:{LP+1}], 0, s[44:45]")
    if wsgrp and loads: ex[6].append(f"ds_read_b128 v[{WS4}:{WS4+3}], v{LP} offset:{wsgrp}")
    weave(pk_steps(gc, 2, False) + pk_steps(gc, 3, False), ex)
    E(f"s_cbranch_scc1 L_{tag}z\nL_{tag}y:")
    def fin():
        E(f"""
L_{tag}z:
        v_rcp_f32 v{P}, v{P}
        v_rcp_f32 v{P+1}, v{P+1}
        v_rcp_f32 v{P+2}, v{P+2}
        v_rcp_f32 v{P+3}, v{P+3}
        v_pk_mul_f32 v[{N}:{N+1}], v[{N}:{N+1}], v[{P}:{P+1}]
        v_pk_mul_f32 v[{N+2}:{N+3}], v[{N+2}:{N+3}], v[{P+2}:{P+3}]
        """)
        for s_ in range(4):
            E(f"v_cvt_f64_f32 v[{F+2*s_}:{F+2*s_+1}], v{N+s_}")
            if s_: E(f"ds_add_f64 v{AG+u}, v[{F+2*s_-2}:{F+2*s_-1}] offset:{128*(s_-1)}")
        E(f"ds_add_f64 v{AG+u}, v[{F+6}:{F+7}] offset:384")
        E(f"s_branch L_{tag}y")
    emit_to(outofline, fin)
    if OPT["prio"] == 2:
        E(f"s_bitcmp1_b32 s{S_IT}, s{S_R}\ns_cbranch_scc1 L_{tag}q\nL_{tag}p:")
        def pr():
            E(f"""
L_{tag}q:
            s_setprio 0
            s_cmp_le_u32 s{S_R}, {OPT["pc"]}
            s_cbranch_scc1 L_{tag}p
            s_setprio 1
            s_cmp_le_u32 s{S_R}, {OPT["pb"]}
            s_cbranch_scc1 L_{tag}p
            s_setprio 2
            s_branch L_{tag}p
            """)
        emit_to(outofline, pr)
    if u == 3 and OPT["prio"] == 1:
        E(f"""
        s_add_u32 s{S_IT}, s{S_IT}, 1
        s_setprio 0
        s_cmp_gt_u32 s{S_IT}, 2
        s_cbranch_scc1 L_{tag}p
        s_setprio 1
        s_cmp_eq_u32 s{S_IT}, 2
        s_cbranch_scc1 L_{tag}p
        s_setprio 2
L_{tag}p:
        """)
    if loads:
        E(f"s_cmp_le_u32 s{S_R}, {DIST}")
        if u < 3: E(f"s_cbranch_scc1 L_T{u+1}")
        else: E("s_cbranch_scc0 L_L0")
    else:
        E(f"s_waitcnt vmcnt(0)\ns_cmp_eq_u32 s{S_R}, 0")
        if u < 3: E("s_cbranch_scc1 L_mdone")
        else: E("s_cbranch_scc0 L_T0")

E(f"""
; @launch grid=(256,1,1) block=({64*NW},1,1) lds={LDS}
.amdgcn_target "amdgcn-amd-amdhsa--gfx950"
.text
.globl {NAME}
.p2align 8
.type {NAME},@function
{NAME}:
""")
if OPT["stamps"] == 1 and OPT["early"] != 1:
    for i in range(NSTAMP): E(f"s_mov_b64 s[{ST0+2*i}:{ST0+2*i+1}], 0")
STAMP(0)
E(f"""
    s_load_dwordx16 s[4:19], s[0:1], 0
    s_load_dwordx2 s[20:21], s[0:1], 72
""")
if OPT["codepf"]:
    E(f"""
    s_getpc_b64 s[28:29]
L_pc:
    v_lshlrev_b32 v3, 7, v0
    v_cmp_gt_u32 vcc, L_codeend-L_pc-64, v3
    s_cbranch_vccz L_nopf
    s_mov_b64 exec, vcc
    global_load_dword v164, v3, s[28:29]
    s_mov_b64 exec, -1
L_nopf:
    """)
E(f"""
    v_lshrrev_b32 v2, 6, v0
    v_and_b32 v1, 63, v0
    v_readfirstlane_b32 s3, v2
    {"s_bfe_u32 s%d, s2, 0x10002" % S_HALF if OPT["hb"] else "s_and_b32 s%d, s2, 1" % S_HALF}
    {"s_and_b32 s30, s2, 3" if OPT["hb"] else "s_bfe_u32 s30, s2, 0x20001"}
    s_lshl_b32 s30, s30, 5
    s_lshr_b32 s31, s2, 3
    s_add_u32 s{S_BUCK}, s30, s31
    s_cmp_ge_u32 s2, 256
    s_cbranch_scc1 L_end
    s_cmp_ge_u32 s{S_BUCK}, {NBUCK}
    s_cbranch_scc1 L_end
    s_lshl_b32 s{S_P}, s{S_BUCK}, 1
    s_add_u32 s{S_P}, s{S_P}, s{S_HALF}
    s_mov_b32 s{S_SAFE}, 0
L_restart:
    s_cmp_ge_u32 s3, 4
    s_cbranch_scc1 L_nosort
    v_mov_b32 v48, 0
    v_mov_b32 v49, 0
    v_mov_b32 v50, 0
    v_mov_b32 v51, 0
    v_lshlrev_b32 v10, 4, v1
    ds_write_b128 v10, v[48:51] offset:{L_SCNT}
    s_mul_i32 s30, s{S_P}, {CHUNK*4}
    v_lshl_add_u32 v3, v0, 4, s30
    s_add_u32 s30, s30, 4096
    v_lshl_add_u32 v18, v0, 2, s30
    v_lshlrev_b32 v10, 1, v3
    v_lshlrev_b32 v11, 1, v18
    v_mov_b32 v17, {WS_TAG}
    s_waitcnt lgkmcnt(0)
    global_load_dwordx4 v[4:7], v3, s[10:11]{NTE}
    global_load_dword v8, v18, s[10:11]{NTE}
    global_load_dword v43, v17, s[20:21]
""")
def preclear():
    E(f"""
    s_cmp_lg_u32 s{S_SAFE}, 0
    s_cbranch_scc1 L_nopre
    s_mul_i32 s30, s{S_HALF}, {G_HALF}
    s_mul_i32 s31, s{S_BUCK}, {NB*256}
    s_add_u32 s30, s30, s31
    s_add_u32 s30, s30, {4096*(5-OPT["pre"])}
    v_lshl_add_u32 v19, v0, 4, s30
    """)
    for i in range(OPT["pre"]):
        E("global_store_dwordx4 v19, v[48:51], s[20:21] sc1")
        if i + 1 < OPT["pre"]: E("v_add_u32 v19, 4096, v19")
    E("L_nopre:")
if OPT["pre"] and not OPT["prelate"]: preclear()
E(f"""
    s_barrier                               ; B0
    s_barrier                               ; B0b
""")
if OPT["pre"] and OPT["prelate"]: preclear()
E(f"""
    s_branch L_sort
L_nosort:
    s_and_b32 s32, s3, 3                    ; tau
    s_lshr_b32 s33, s3, 3
    v_lshrrev_b32 v2, 4, v1                 ; g
    v_and_b32 v4, 15, v1
    s_lshl_b32 s30, s32, 2
    v_add_u32 v6, s30, v2                   ; row&15
    v_xor_b32 v7, v4, v6
    v_lshlrev_b32 v7, 4, v7
    v_lshl_add_u32 v7, v6, 8, v7
    s_mul_i32 s73, s{S_BUCK}, {NB*256}
    s_mul_i32 s31, s33, {3*4096}
    s_add_u32 s30, s73, s31
    v_add_u32 v7, s30, v7
    v_add_u32 v8, 0x1000, v7
    v_add_u32 v9, 0x2000, v7
    s_lshl_b32 s30, s32, 10
    s_add_u32 s31, s31, s30
    s_add_u32 m0, s31, {L_X}
    v_subrev_u32 v30, 256, v0               ; t = 0..511
    v_lshlrev_b32 v31, 4, v30
    v_mov_b32 v36, 0
    v_mov_b32 v37, 0
    v_mov_b32 v38, 0
    v_mov_b32 v39, 0
    v_add_u32 v40, {L_EA}, v31
    ds_write_b128 v40, v[36:39]
    ds_write_b128 v40, v[36:39] offset:8192
""")
if OPT["wpf"]:
    E(f"""
    s_lshr_b32 s30, s2, 3
    s_lshl_b32 s30, s30, 2
    v_add_u32 v3, s30, v1
    v_and_b32 v3, 127, v3
    s_lshl_b32 s30, s{S_HALF}, 7
    s_cmp_eq_u32 s3, 4
    s_cselect_b32 s31, 0x8000, 0
    s_add_u32 s30, s30, s31
    v_lshl_add_u32 v3, v3, 8, s30
    s_waitcnt lgkmcnt(0)
    s_cmp_lg_u32 s33, 0
    s_cbranch_scc1 L_nowpf
    s_cmp_eq_u32 s3, 5
    s_cselect_b32 s34, s14, s16
    s_cselect_b32 s35, s15, s17
    s_cmp_eq_u32 s3, 7
    s_cselect_b32 s34, s12, s34
    s_cselect_b32 s35, s13, s35
    s_mov_b64 exec, 0xffff
    global_load_dword v167, v3, s[34:35]
    s_mov_b64 exec, -1
L_nowpf:
    """)
    if OPT["wpf"] == 2:
        E(f"""
        s_cmp_lg_u32 s3, 8
        s_cbranch_scc1 L_notch
        s_mul_i32 s30, s{S_P}, {CHUNK*4}
        v_mov_b32 v3, s30
        v_lshlrev_b32 v5, 1, v3
        v_lshlrev_b32 v6, 21, v1
        s_mov_b64 exec, 1
        global_load_dword v167, v3, s[8:9]
        global_load_dword v166, v5, s[6:7]
        s_mov_b64 exec, 31
        global_load_dword v165, v6, s[20:21] sc1
        s_mov_b64 exec, 3
        global_load_dword v164, v6, s[18:19] sc1
        s_mov_b64 exec, -1
L_notch:
        """)
E(f"""
    s_waitcnt lgkmcnt(0)
    s_barrier                               ; B0
    global_load_lds_dwordx4 v7, s[4:5]{NTX}
    s_add_u32 m0, m0, 0x1000
    s_cmp_lg_u32 s33, 0
    global_load_lds_dwordx4 v8, s[4:5]{NTX}
    s_cbranch_scc1 L_x2
    s_add_u32 m0, m0, 0x1000
    s_nop 0
    global_load_lds_dwordx4 v9, s[4:5]{NTX}
L_x2:
    s_barrier
    v_lshrrev_b32 v5, 3, v1
    v_and_b32 v3, 1, v2
    s_and_b32 s30, s3, 1
    s_lshl_b32 s30, s30, 1
    v_or_b32 v3, s30, v3                    ; sigma
    v_lshlrev_b32 v3, 1, v3
    v_and_b32 v20, 7, v1
    v_xor_b32 v3, v3, v20
    v_lshlrev_b32 v3, 4, v3
    v_lshl_add_u32 v10, v5, 8, v3
    s_sub_u32 s28, s3, 4
    s_lshl_b32 s30, s28, 11
    s_lshl_b32 s31, s{S_HALF}, 7
    s_add_u32 s30, s30, s31
    v_add_u32 v10, s30, v10
    v_add_u32 v11, 0x4000, v10
    s_lshl_b32 s28, s28, 10
    s_add_u32 s34, s16, {128*256}
    s_addc_u32 s35, s17, 0
    s_cmp_lg_u32 s3, 11
    s_cbranch_scc1 L_noc
    v_and_b32 v5, 3, v5
    v_lshlrev_b32 v20, 4, v20
    v_lshl_add_u32 v5, v5, 8, v20
    s_add_u32 s31, s31, {256*256}
    s_mov_b32 m0, {L_C}
    v_add_u32 v5, s31, v5
    global_load_lds_dwordx4 v5, s[16:17]
L_noc:
    s_add_u32 m0, s28, {L_WBV}
""")
for ti, base in enumerate((34, 14)):
    for n in range(2):
        E(f"s_nop 0\nglobal_load_lds_dwordx4 v{10+n}, s[{base}:{base+1}]")
        if not (ti == 1 and n == 1):
            E(f"s_add_u32 m0, m0, 0x2000")
if OPT["wgate"]:
    E(f"""
    v_mov_b32 v7, 0x1000000
    s_mov_b64 exec, 1
    ds_add_u32 v36, v7 offset:{L_CTR}
    s_mov_b64 exec, -1
    """)
STAMP(1)
E(f"""
    v_mov_b32 v32, {NULL_SRC}
    v_mov_b32 v33, v32
    v_mov_b32 v34, v32
    v_mov_b32 v35, v32
""")
def cover(lo, n): return list(range(lo, n - 8192, 8192)) + [n - 8192]
for o in cover(16384, L_EAEND - L_EA): E(f"ds_write_b128 v40, v[36:39] offset:{o}")
for o in cover(0, SRCB): E(f"ds_write_b128 v31, v[32:35] offset:{L_SRC + o}")
E(f"""
    v_and_b32 v32, 3, v30           ; quarter
    v_bfe_u32 v33, v30, 3, 3
    v_lshrrev_b32 v34, 5, v30
    s_and_b32 s30, s3, 3
    s_add_u32 s30, s30, 16
    s_cmp_ge_u32 s3, 8
    s_cselect_b32 s31, 7, 3
    s_cselect_b32 s29, 6, 12
    s_cselect_b64 vcc, -1, 0
    v_and_b32 v33, s31, v33
    v_mov_b32 v35, s30
    v_cndmask_b32 v34, v34, v35, vcc
    v_lshl_add_u32 v32, v34, 2, v32
    v_bfe_u32 v34, v30, 2, 1
    v_mul_u32_u24 v35, {NSTR - SSTR}, v34
    v_mul_u32_u24 v41, {L_NODE - L_SRC}, v34
    v_mul_u32_u24 v42, {L_SRC + 80*SSTR - L_DUM}, v34
    v_lshlrev_b32 v43, 4, v34
    v_add_u32 v35, {SSTR}, v35
    v_add_u32 v41, {L_SRC}, v41
    v_sub_u32 v42, {L_SRC + 80*SSTR}, v42
    v_sub_u32 v43, 16, v43
    v_lshlrev_b32 v33, 2, v33
    v_mad_u32_u24 v41, v32, v35, v41
    v_mad_u32_u24 v41, v33, v43, v41
    v_lshlrev_b32 v35, 5, v35
    v_mul_u32_u24 v34, 6, v43
    v_sub_u32 v35, v35, v34
    v_add_u32 v34, 2, v33
    v_cmp_gt_u32 s[48:49], 6, v33
    v_cmp_gt_u32 s[50:51], 6, v34
    v_cmp_gt_u32 s[52:53], s29, v33
    v_cmp_gt_u32 s[54:55], s29, v34
    v_cndmask_b32 v44, v35, 0, s[48:49]
    v_cndmask_b32 v46, v35, 0, s[50:51]
    v_add_u32 v44, v41, v44
    v_lshl_add_u32 v46, v43, 1, v46
    v_add_u32 v46, v41, v46
    v_add_u32 v45, v44, v43
    v_add_u32 v47, v46, v43
    v_cndmask_b32 v44, v42, v44, s[52:53]
    v_cndmask_b32 v45, v42, v45, s[52:53]
    v_cndmask_b32 v46, v42, v46, s[54:55]
    v_cndmask_b32 v47, v42, v47, s[54:55]
    ds_write_b128 v31, v[44:47] offset:{L_LIST}
    s_cmp_ge_u32 s3, 6
    s_cbranch_scc1 L_pf3
    v_mul_u32_u24 v42, {SSTR}, v30
    v_add_u32 v42, {L_SRC}, v42
    v_lshlrev_b32 v41, 2, v30
    ds_write_b32 v41, v42 offset:{L_CNT}
L_pf3:
    v_bfe_u32 v3, v1, 2, 2                  ; r
    v_lshl_add_u32 v5, v2, 3, v3            ; 8g + r
    v_lshrrev_b32 v3, 1, v3
    v_and_b32 v6, 1, v2
    v_lshl_or_b32 v3, v6, 1, v3             ; sigma
    v_xor_b32 v3, s32, v3
    v_lshlrev_b32 v3, 5, v3
    v_lshl_add_u32 v10, v5, 7, v3
    v_and_b32 v3, 3, v1
    v_lshl_add_u32 v10, v3, 3, v10
    s_mul_i32 s31, s33, {L_WAU - L_WBV}
    s_add_u32 s31, s31, {L_WBV}
    v_add_u32 v10, s31, v10
    v_xor_b32 v3, v2, v4
    v_lshlrev_b32 v3, 4, v3
    v_lshl_add_u32 v12, v4, 8, v3
    v_add_u32 v12, {L_X}, v12
    v_xor_b32 v13, 64, v12
    v_xor_b32 v14, 0x80, v12
    v_xor_b32 v15, 0xc0, v12
    s_mul_i32 s30, s{S_HALF}, {G_HALF}
    s_add_u32 s30, s30, s73
    s_lshl_b32 s31, s32, 6
    s_add_u32 s30, s30, s31
    v_lshlrev_b32 v11, 10, v2
    v_lshl_add_u32 v11, v4, 2, v11
    v_add_u32 v11, s30, v11
    s_lshl_b32 s31, s32, 5
    s_add_u32 s31, s31, {L_NODE}
    v_mul_u32_u24 v16, {NSTR}, v4
    v_lshl_add_u32 v16, v2, 3, v16
    v_add_u32 v16, s31, v16
    s_mov_b32 s40, {f32(-LOG2E)}
    s_mov_b32 s42, {f32(2.0**32)}
    s_mov_b32 s44, 0x07060100
    s_mov_b32 s45, 0x07060302
    s_mov_b32 s46, 0x3f80
    v_mov_b32 v17, {f32(2.0**-100)}
    v_mov_b32 v19, 1
    v_mov_b32 v18, 0
""")
get_tag("g", 160)
E(f"""
    s_waitcnt vmcnt(0)
    s_mov_b64 exec, 1
    ds_add_u32 v18, v19 offset:{L_CTR}
    s_mov_b64 exec, -1
""")
STAMP(2)
lds_wait(L_CTR, 0xff, 8, "g1")
STAMP(3)
NP = 8
RA = 72; RB = RA + 4*NP; RAD = RB + 4*NP
J3N, J12, J3N2, CELL, ROWA, FOUR, L0M, ACC, ENT, CAD = 156, 157, 158, 159, 160, 161, 162, 163, 164, 166
def rec_setup():
    E(f"""
    v_and_b32 v3, 15, v1                    ; j
    v_lshrrev_b32 v2, 4, v1
    v_lshl_add_u32 v{CELL}, v2, 3, v3
    s_lshl_b32 s30, s29, 5
    v_add_u32 v{CELL}, s30, v{CELL}
    s_lshl_b32 s30, s{S_BUCK}, 3
    s_add_u32 s30, s30, {WS_ROW}
    v_lshl_add_u32 v{ROWA}, v{CELL}, 10, s30
    v_cmp_gt_u32 s[66:67], {NP}, v3
    v_cmp_gt_u32 vcc, {NCHUNK}, v{CELL}
    v_mov_b32 v{ENT}, 0
    s_and_b64 s[66:67], s[66:67], vcc
    s_mov_b64 exec, s[66:67]
    global_load_dwordx2 v[{ENT}:{ENT+1}], v{ROWA}, s[20:21] sc1
    s_mov_b64 exec, -1
    v_mul_u32_u24 v{CELL}, {SORTB//4}, v{CELL}
    v_add_u32 v{CELL}, {WS_REC//4}, v{CELL}
    v_mul_u32_u24 v{J12}, 12, v3
    v_mul_u32_u24 v{J3N}, 3, v3
    v_not_b32 v{J3N}, v{J3N}
    v_subrev_u32 v{J3N2}, 48, v{J3N}
    v_subrev_u32 v{L0M}, 1, v3
    v_ashrrev_i32 v{L0M}, 31, v{L0M}
    v_mov_b32 v{FOUR}, 4
    """)
WF = 20; XF = 52; AC = 132
def wreads(ks):
    for t in range(2):
        for rd in range(2):
            r = WF + 16*t + 4*ks + 2*rd
            E(f"ds_read_b64_tr_b16 v[{r}:{r+1}], v10 offset:{t*16384 + ks*4096 + rd*512}")
def xread(rt, ks):
    r = XF + 16*rt + 4*ks
    return f"ds_read_b128 v[{r}:{r+3}], v{12+ks} offset:{rt*4096}"
def mf(rt, ks, transposed):
    for t in range(2):
        a = XF + 16*rt + 4*ks; w = WF + 16*t + 4*ks; d = AC + 8*(rt % 3) + 4*t
        c = "0" if ks == 0 else f"v[{d}:{d+3}]"
        if transposed: a, w = w, a
        E(f"v_mfma_f32_16x16x32_bf16 v[{d}:{d+3}], v[{a}:{a+3}], v[{w}:{w+3}], {c}")
def gemm(transposed, finish, before_first):
    for ks in range(3):
        E(xread(0, ks)); wreads(ks)
    E("s_waitcnt lgkmcnt(10)"); mf(0, 0, transposed)
    E(xread(0, 3)); wreads(3)
    E("s_waitcnt lgkmcnt(10)"); mf(0, 1, transposed)
    for ks in range(4): E(xread(1, ks))
    E("s_waitcnt lgkmcnt(9)"); mf(0, 2, transposed)
    for ks in range(4): E(xread(2, ks))
    E("s_waitcnt lgkmcnt(8)"); mf(0, 3, transposed)
    for ks in range(4): E(xread(3, ks))
    E("s_waitcnt lgkmcnt(8)")
    for ks in range(4):
        mf(1, ks, transposed); E(xread(4, ks))
    E(f"""
    s_mov_b64 exec, 1
    ds_add_u32 v18, v19 offset:{L_RD}
    s_mov_b64 exec, -1
    """)
    before_first()
    finish(0)
    E("s_waitcnt lgkmcnt(0)")
    for rt in range(2, 5):
        for ks in range(4): mf(rt, ks, transposed)
        finish(rt-1)
    finish(4)
def pack(rt):
    b = AC + 8*(rt % 3); h = b + 4
    for r in range(4): E(f"v_mul_f32 v{b+r}, s40, v{b+r}")
    for r in range(4): E(f"v_fma_f32 v{h+r}, v{h+r}, s42, v17")
    E(f"""
    v_cvt_pk_bf16_f32 v4, v{b}, v{b+1}
    v_cvt_pk_bf16_f32 v5, v{b+2}, v{b+3}
    v_xor_b32 v2, 0x80008000, v4
    v_xor_b32 v3, 0x80008000, v5
    v_sub_u32_sdwa v{h}, v{h}, sext(v2) dst_sel:DWORD dst_unused:UNUSED_PAD src0_sel:DWORD src1_sel:WORD_0
    v_sub_u32_sdwa v{h+1}, v{h+1}, sext(v2) dst_sel:DWORD dst_unused:UNUSED_PAD src0_sel:DWORD src1_sel:WORD_1
    v_sub_u32_sdwa v{h+2}, v{h+2}, sext(v3) dst_sel:DWORD dst_unused:UNUSED_PAD src0_sel:DWORD src1_sel:WORD_0
    v_sub_u32_sdwa v{h+3}, v{h+3}, sext(v3) dst_sel:DWORD dst_unused:UNUSED_PAD src0_sel:DWORD src1_sel:WORD_1
    """)
    w = (OPT["gp"] >> (4*(4-rt))) & 15 if OPT["gp"] else OPT["gpace"]
    if 0 <= w < 4*rt: E(f"s_waitcnt vmcnt({w})")
    if OPT["pre"] and rt == 5 - OPT["pre"]: lds_wait(L_SCNT + 126*4, 0xff, 4, "pre")
    if OPT["ghold"] == rt + 1:
        E("v_mov_b32 v6, v2\nv_mov_b32 v7, v3"); lds_wait(L_CTR, 0xff00, 0x400, "gh", sleep=1); E("v_mov_b32 v2, v6\nv_mov_b32 v3, v7")
    for r in range(4):
        E(f"v_perm_b32 v{h+r}, v{h+r}, v{4 + (r>>1)}, s{44 + (r&1)}")
        if OPT["gwin"] >= 0: E(f"s_waitcnt vmcnt({OPT['gwin']})")
        E(f"global_store_dword v11, v{h+r}, s[20:21] offset:{256*r} sc1")
    if rt < 4: E("v_add_u32 v11, 0x1000, v11")
def fin(rt):
    a = AC + 8*(rt % 3); u = a + 4
    for r in range(4): E(f"v_mul_f32 v{a+r}, s40, v{a+r}")
    for r in range(4): E(f"v_mul_f32 v{u+r}, s42, v{u+r}")
    E(f"""
    v_cvt_pk_bf16_f32 v{a}, v{a}, v{a+1}
    v_cvt_pk_bf16_f32 v{a+1}, v{a+2}, v{a+3}
    v_cvt_f64_f32 v[2:3], v{u}
    v_cvt_f64_f32 v[4:5], v{u+1}
    v_cvt_f64_f32 v[6:7], v{u+2}
    v_cvt_f64_f32 v[8:9], v{u+3}
    ds_write_b64 v16, v[{a}:{a+1}] offset:512
    ds_write2_b64 v16, v[2:3], v[4:5] offset0:0 offset1:16
    ds_write2_b64 v16, v[6:7], v[8:9] offset0:32 offset1:48
    """)
    if rt < 4: E(f"v_add_u32 v16, {16*NSTR}, v16")
E(f"""
    s_cmp_lg_u32 s33, 0
    s_cbranch_scc1 L_gemm2
    s_cmp_lg_u32 s{S_SAFE}, 0
    s_cbranch_scc1 L_nog1
    s_setprio 2
""")
gemm(False, pack, lambda: lds_wait(L_CTR, {1: 0x80000, 2: 0xc0000}[OPT["hold"]], 0, "hold", sleep=1, ne=True) if OPT["hold"] else None)
E("s_setprio 0")
if OPT["gate"] or OPT["gate2"] >= 3:
    E(f"""
    s_mov_b64 exec, 1
    ds_add_u32 v18, v19 offset:{L_GST}
    s_mov_b64 exec, -1
    """)
STAMP(4)
main_consts()
E(f"""
    s_lshl_b32 s30, s{S_P}, 7
    s_add_u32 s30, s30, {WS_FL2}
    v_mov_b32 v60, s30
    v_mov_b32 v62, s{S_TAG}
    v_mov_b32 v63, s{S_TAG+1}
    v_mov_b32 v2, 0
    v_mov_b32 v3, 1
    s_lshl_b32 s30, s32, 13
    s_lshl_b32 s31, s{S_HALF}, 7
    s_add_u32 s30, s30, s31
    s_add_u32 s30, s30, {WS_FL2}
    v_lshl_add_u32 v64, v1, 8, s30
    s_mul_i32 s30, s32, {2560*256}
    s_lshr_b32 s31, s2, 3
    s_mul_i32 s31, s31, {160*128}
    s_add_u32 s30, s30, s31
    v_lshl_add_u32 v65, v1, 7, s30
    v_min_u32 v65, {G_HALF - 128 - 16384}, v65
    s_mul_i32 s30, s{S_HALF}, {G_HALF}
    v_add_u32 v65, s30, v65
    s_mov_b64 exec, 1
    s_waitcnt vmcnt(0)
    ds_add_rtn_u32 v61, v2, v3 offset:{L_DONE2}
    s_waitcnt lgkmcnt(0)
    v_readfirstlane_b32 s30, v61
    s_cmp_lg_u32 s30, 3
    s_cbranch_scc1 L_nofl
    global_store_dwordx2 v60, v[62:63], s[20:21] sc1
    ds_add_u32 v2, v3 offset:{L_DONE2}
L_nofl:
""")
STAMP(5)
if OPT["p2gate"]:
    E("s_mov_b64 exec, -1")
    lds_wait(L_CTR, 0xff0000, 0x080000, "pg", sleep=1)
    E("s_mov_b32 exec_hi, 0")
if OPT["p2wait"]: E(f"s_sleep {OPT['p2wait']}")
STAMP(6)
def gready(lab):
    if OPT["gpe"]: E(f"s_cmp_lg_u32 s73, 0\ns_cbranch_scc1 L_gr{lab}")
    if OPT["gpf"]:
        E(f"""
        {"s_bfm_b64 exec, %d, 0" % OPT["gpf"] if OPT["gpf"] < 64 else "s_mov_b64 exec, -1"}
        global_load_dword v35, v65, s[20:21] sc1
        """)
    E(f"""
L_gr{lab}:
    s_mov_b64 exec, 1
    v_mov_b32 v2, 0
    v_mov_b32 v3, 1
    ds_add_u32 v2, v3 offset:{L_GOK}
    """)
E(f"""
    s_cmp_eq_u32 s32, 3
    s_cselect_b32 exec_lo, 0x1fffffff, -1
    {"" if OPT["p1st"] else "s_mov_b64 s[66:67], exec"}
    {"" if OPT["p1st"] else "s_branch L_p2n"}
    global_load_dwordx2 v[66:67], v64, s[20:21] sc1
    s_waitcnt vmcnt(0)
    v_cmp_ne_u64 s[66:67], s[{S_TAG}:{S_TAG+1}], v[66:67]
""")
if OPT["gpe"]:
    n = OPT["gpe"]
    E(f"""
    s_mov_b32 s73, 0
    s_lshr_b32 s30, s2, 3
    s_bitcmp1_b32 s66, s30
    s_cbranch_scc1 L_nogpe
    s_mov_b32 s73, 1
    """)
    for k in range(0, n, 64):
        E("s_mov_b64 exec, -1")
        if k: E(f"v_add_u32 v65, 8192, v65")
        if n - k < 64: E(f"s_bfm_b64 exec, {n-k}, 0")
        E(f"global_load_dword v{(35, 68, 69)[k//64]}, v65, s[20:21] sc1")
    E("L_nogpe:")
E(f"""
    s_cmp_lg_u64 s[66:67], 0
    s_cbranch_scc1 L_p2n
""")
gready("a")
E("L_p2n:\ns_mov_b64 exec, -1")
STAMP(7)
E(f"""
    s_branch L_b4
L_nog1:
    s_mov_b64 exec, 1
    ds_add_u32 v18, v19 offset:{L_RD}
    s_mov_b64 exec, -1
    s_branch L_rec
L_gemm2:
""")
E(f"""
    v_lshrrev_b32 v5, 3, v1
    v_bfe_u32 v3, v1, 4, 1
    v_lshlrev_b32 v3, 1, v3
    v_and_b32 v4, 7, v1
    v_xor_b32 v3, v3, v4
    v_lshlrev_b32 v3, 4, v3
    v_lshl_add_u32 v6, v5, 8, v3
    s_lshl_b32 s30, s{S_HALF}, 7
    s_and_b32 s31, s3, 1
    s_lshl_b32 s31, s31, 14
    s_add_u32 s30, s30, s31
    v_add_u32 v6, s30, v6
    v_xor_b32 v7, 64, v6
    v_add_u32 v8, 2048, v6
    v_add_u32 v9, 3072, v7
    v_add_u32 v7, 1024, v7
    s_lshl_b32 s30, s32, 13
    s_add_u32 m0, s30, {L_WAU}
    s_cmp_lt_u32 s32, 2
    s_cselect_b32 s34, s16, s12
    s_cselect_b32 s35, s17, s13
    global_load_lds_dwordx4 v6, s[34:35]
    global_load_lds_dwordx4 v7, s[34:35] offset:1024
    global_load_lds_dwordx4 v8, s[34:35] offset:2048
    global_load_lds_dwordx4 v9, s[34:35] offset:3072
    s_add_u32 m0, m0, 4096
    s_add_u32 s34, s34, 8192
    s_addc_u32 s35, s35, 0
    global_load_lds_dwordx4 v6, s[34:35]
    global_load_lds_dwordx4 v7, s[34:35] offset:1024
    global_load_lds_dwordx4 v8, s[34:35] offset:2048
    global_load_lds_dwordx4 v9, s[34:35] offset:3072
""")
for rt in range(5):
    for ks in range(4): E(xread(rt, ks))
E(f"""
    s_mov_b64 exec, 1
    ds_add_u32 v18, v19 offset:{L_RD}
    s_mov_b64 exec, -1
""")
E(f"""
    s_mov_b64 exec, 1
    s_waitcnt vmcnt(0)
    ds_add_u32 v18, v19 offset:{L_RD}
    s_mov_b64 exec, -1
    s_sub_u32 s29, s3, 4
""")
rec_setup()
lds_wait(L_RD, 0xff, 12, "rd")
for ks in range(4): wreads(ks)
for ks in range(4):
    E(f"s_waitcnt lgkmcnt({12 - 4*ks})"); mf(0, ks, True)
for rt in range(1, 5):
    for ks in range(4): mf(rt, ks, True)
    fin(rt-1)
fin(4)
STAMP(4)
E(f"""
    s_branch L_rec
L_sort:
""")
STAMP(1)
E(f"""
    s_mov_b32 s40, {f32(-LOG2E)}
    s_mov_b32 s46, 0x3f80
    s_cmp_lg_u32 s{S_SAFE}, 0
    s_cbranch_scc1 L_sortskip
    v_mov_b32 v21, 1
    v_mov_b32 v20, 3
    s_mov_b32 s31, 52429
    s_movk_i32 s32, -20
    v_lshlrev_b32 v9, 3, v1
    v_lshlrev_b32 v33, 4, v0
    s_mul_i32 s30, s{S_P}, {SORTB}
    s_add_u32 s30, s30, {WS_REC + 4096}
    v_add_u32 v32, s30, v33
    v_add_u32 v34, 8192, v32
    s_lshl_b32 s30, s{S_P}, 10
    s_add_u32 s30, s30, {WS_ROW}
    v_lshl_add_u32 v42, v1, 4, s30
    s_mov_b32 s34, {POLL_MAX}
    s_setprio 3
    s_waitcnt vmcnt({1 + OPT['pre']})
""")
STAMP(2)
FSTAMP(1)
for i in range(5):
    E(f"""
    v_mul_u32_u24 v{22+i}, s31, v{4+i}
    v_lshrrev_b32 v{22+i}, 22, v{22+i}
    v_lshlrev_b32 v{22+i}, 2, v{22+i}        ; bucket*4
    ds_add_rtn_u32 v{27+i}, v{22+i}, v20 offset:{L_SCNT}
    """)
E(f"""
    s_mov_b64 exec, 1
    s_cmp_lg_u32 s3, 0
    s_cbranch_scc1 L_notag
    s_waitcnt vmcnt({OPT['pre']})
    ds_write_b32 v48, v43 offset:{L_SCNT + 125*4}
L_notag:
    ds_add_u32 v48, v21 offset:{L_SCNT + 127*4}
    s_mov_b64 exec, -1
""")
if OPT["ewhen"] == 1: E(f"""
    global_load_dwordx4 v[12:15], v3, s[8:9]{NTE}
    global_load_dword v16, v18, s[8:9]{NTE}
    global_load_dwordx4 v[52:55], v10, s[6:7]{NTE}
    global_load_dwordx4 v[56:59], v10, s[6:7] offset:16{NTE}
    global_load_dwordx2 v[60:61], v11, s[6:7]{NTE}
""")
E(f"""
L_s1:
    ds_read_b32 v38, v48 offset:{L_SCNT + 127*4}
    ds_read_b64 v[36:37], v9 offset:{L_SCNT}
    s_sub_u32 s34, s34, 1
    s_cbranch_scc1 L_s1d
    s_waitcnt lgkmcnt(0)
    v_readfirstlane_b32 s30, v38
    s_cmp_lg_u32 s30, 4
    s_cbranch_scc1 L_s1
L_s1d:
""")
FSTAMP(2)
E(f"""
    v_add3_u32 v39, v36, v37, 2
    v_add3_u32 v38, v36, v37, 2
    v_readlane_b32 s{S_TAGRAW}, v37, 62
""")
fill = []
for i in range(5):
    fill += [f"v_mad_i32_i24 v{4+i}, v{22+i}, s32, v{4+i}", f"v_lshlrev_b32 v{4+i}, 24, v{4+i}"]
for k, m in enumerate(SCAN):
    E(f"v_add_u32_dpp v39, v39, v39 {m}")
    for x in fill[2*k:2*k+2]: E(x)
E(f"""
    v_sub_u32 v40, v39, v38
    v_add3_u32 v41, v40, v36, 1
    s_mov_b32 s30, {L_SORT}
    v_lshl_add_u32 v38, v40, 2, s30
    v_lshl_add_u32 v39, v41, 2, s30
    ds_write_b64 v9, v[38:39] offset:{L_SOFF}
""")
for i in range(5):
    E(f"ds_read_b32 v{22+i}, v{22+i} offset:{L_SOFF}")
finish_tag()
E(f"""
    s_cmp_lg_u32 s3, 0
    s_cbranch_scc1 L_nopub
    s_and_b32 s35, s{S_TAG+1}, 0xff000000
    v_mov_b32 v45, s{S_TAG}
    v_mov_b32 v47, s{S_TAG}
    v_lshl_or_b32 v44, v36, 12, v40
    v_lshl_or_b32 v46, v37, 12, v41
    v_or_b32 v44, s35, v44
    v_or_b32 v46, s35, v46
    global_store_dwordx4 v42, v[44:47], s[20:21] sc1
    {"s_waitcnt vmcnt(1)" if OPT["ewhen"] == 1 else ""}
    s_branch {"L_pub" if OPT["ewhen"] == 1 else "L_nochk"}
L_nopub:
    s_cmp_lg_u32 s3, 1
    s_cbranch_scc1 L_nochk
    v_mov_b32 v44, s{S_TAG+1}
    s_mov_b32 exec_hi, 0x7fffffff
    ds_add_u32 v38, v44
    ds_add_u32 v39, v44
    s_mov_b32 exec_hi, -1
L_nochk:
""")
if OPT["ewhen"] == 2: E(f"""
    global_load_dwordx4 v[12:15], v3, s[8:9]{NTE}
    global_load_dword v16, v18, s[8:9]{NTE}
    global_load_dwordx4 v[52:55], v10, s[6:7]{NTE}
    global_load_dwordx4 v[56:59], v10, s[6:7] offset:16{NTE}
    global_load_dwordx2 v[60:61], v11, s[6:7]{NTE}
""")
E(f"""
    s_waitcnt vmcnt(0)
L_pub:
""")
STAMP(4)
FSTAMP(3)
for i in range(5): E(f"v_lshl_or_b32 v{4+i}, v{12+i}, 8, v{4+i}")
E("s_waitcnt lgkmcnt(0)")
for i in range(5):
    E(f"""
    v_lshl_add_u32 v{27+i}, v{27+i}, 2, v{22+i}
    v_add3_u32 v{12+i}, v{52+2*i}, v{53+2*i}, v{4+i}
    ds_write2_b32 v{27+i}, v{52+2*i}, v{53+2*i} offset0:2 offset1:3
    ds_write_b32 v{27+i}, v{4+i} offset:4
    ds_sub_u32 v{22+i}, v{12+i}
    """)
E(f"""
    s_mov_b64 exec, 1
    ds_add_u32 v48, v21 offset:{L_SCNT + 126*4}
    s_mov_b64 exec, -1
""")
FSTAMP(4)
E(f"""
    s_mov_b32 s34, {POLL_MAX}
L_s2:
    ds_read_b32 v38, v48 offset:{L_SCNT + 126*4}
    {f"ds_read_b32 v39, v48 offset:{L_CTR}" if OPT["wgate"] else ""}
    ds_read_b128 v[72:75], v33 offset:{L_SORT}
    s_sub_u32 s34, s34, 1
    s_cbranch_scc1 L_s2d
    s_waitcnt lgkmcnt(1)
    v_readfirstlane_b32 s30, v38
""")
if OPT["wgate"]:
    E(f"""
    v_readfirstlane_b32 s31, v39
    s_lshr_b32 s31, s31, 24
    s_add_u32 s30, s30, s31
    """)
E(f"""
    s_cmp_lg_u32 s30, {12 if OPT["wgate"] else 4}
    s_cbranch_scc1 L_s2
L_s2d:
""")
FSTAMP(5)
E(f"""
    ds_read_b128 v[76:79], v33 offset:{L_SORT + 4096}
    ds_read_b128 v[80:83], v33 offset:{L_SORT + 8192}
    ds_read_b128 v[84:87], v33 offset:{L_SORT + 12288}
    s_waitcnt lgkmcnt(3)
    global_store_dwordx4 v32, v[72:75], s[20:21] offset:-4096 sc1
    s_waitcnt lgkmcnt(2)
    global_store_dwordx4 v32, v[76:79], s[20:21] sc1
    s_waitcnt lgkmcnt(1){f" vmcnt({OPT['rpace']})" if OPT['rpace'] >= 0 else ""}
    global_store_dwordx4 v34, v[80:83], s[20:21] offset:-4096 sc1
    s_cmp_eq_u32 s3, 3
    s_cselect_b32 exec_hi, 0, -1
    s_waitcnt lgkmcnt(0){f" vmcnt({OPT['rpace']})" if OPT['rpace'] >= 0 else ""}
    global_store_dwordx4 v34, v[84:87], s[20:21] sc1
    s_mov_b32 exec_hi, -1
""")
FSTAMP(6)
for k in range(4): E(f"ds_write_b128 v33, v[48:51] offset:{L_SORT + 4096*k}")
STAMP(3)
FSTAMP(7)
E(f"""
    s_branch L_sortdone
L_sortskip:
    s_waitcnt vmcnt(0)
L_sortdone:
    s_mov_b32 s29, s3
""")
rec_setup()
E(f"""
L_rec:
""")
lds_wait(L_CTR, 0xff, 8, "r0")
main_consts()
STAMP(5)
E(f"""
    s_cmp_ge_u32 s3, 4
    s_cbranch_scc1 L_nod2
    v_mov_b32 v2, 0
    v_mov_b32 v3, 0x100
    s_mov_b64 exec, 1
    s_waitcnt vmcnt(0)
    ds_add_u32 v2, v3 offset:{L_CTR}
    s_mov_b64 exec, -1
L_nod2:
    s_cmp_lg_u32 s{S_SAFE}, 0
    s_cbranch_scc1 L_recskip
    s_lshr_b32 s35, s{S_TAG+1}, 24
    s_mov_b64 exec, s[66:67]
    s_mov_b32 s34, {POLL_MAX}
    s_branch L_p1c
L_p1:
    global_load_dwordx2 v[{ENT}:{ENT+1}], v{ROWA}, s[20:21] sc1
L_p1c:
    s_sub_u32 s34, s34, 1
    s_cbranch_scc1 L_toobig
    s_waitcnt vmcnt(0)
    v_cmp_ne_u32 vcc, s{S_TAG}, v{ENT+1}
    v_cmp_ne_u32_sdwa s[48:49], v{ENT}, s35 src0_sel:BYTE_3 src1_sel:DWORD
    s_or_b64 exec, vcc, s[48:49]
    s_cbranch_scc1 L_p1
    s_mov_b64 exec, -1
""")
STAMP(6)
if OPT["cnt"]: E(f"s_sub_u32 s{ST0+2}, {POLL_MAX+1}, s34\ns_mov_b32 s34, {POLL_MAX}")
E(f"""
    v_and_b32 v{CAD}, 0xfff, v{ENT}
    v_bfe_u32 v{ENT}, v{ENT}, 12, 12            ; 3*count
    v_add_lshl_u32 v{CAD}, v{CAD}, v{CELL}, 2
    v_cmp_ne_u32 vcc, 0, v{ENT}
    s_sub_u32 s30, 0, s{S_TAG+1}
    v_mov_b32 v2, s30
    v_cndmask_b32 v{ENT+1}, 0, v2, vcc
    v_cmp_lt_u32 vcc, 96, v{ENT}
    v_cmp_lt_u32 s[68:69], 48, v{ENT}
    s_cbranch_vccnz L_toobig
""")
for p in range(NP):
    E(f"""
    v_add_co_u32_dpp v2, vcc, v{ENT}, v{J3N} row_newbcast:{p} row_mask:0xf bank_mask:0xf
    v_add_u32_dpp v{RAD+p}, v{CAD}, v{J12} row_newbcast:{p} row_mask:0xf bank_mask:0xf
    s_mov_b64 s[{48+2*p}:{49+2*p}], vcc
    """)
lds_wait(L_CTR, 0xff00, 0x400, "r1")
if OPT["gate"]: lds_wait(L_GST, 0xff, 4, "gt")
if OPT["gate2"] == 1:
    E("s_cmp_lt_u32 s3, 4\ns_cbranch_scc1 L_wd_g2")
    lds_wait(L_DONE2, 0xff, 5, "g2")
if OPT["gate2"] == 3:
    E("s_cmp_lt_u32 s3, 4\ns_cbranch_scc1 L_wd_g2")
    lds_wait(L_GST, 0xff, 4, "g2")
if OPT["gate2"] in (2, 4):
    E(f"""
    s_cmp_lt_u32 s3, 4
    s_cbranch_scc1 L_g2d
    s_mov_b32 s31, {POLL_MAX}
L_g2:
    ds_read_b128 v[60:63], v2 offset:{L_CTR}
    {f"ds_read_b32 v61, v2 offset:{L_GST}" if OPT["gate2"] == 4 else ""}
    s_sub_u32 s31, s31, 1
    s_cbranch_scc1 L_g2d
    s_waitcnt lgkmcnt(0)
    v_readfirstlane_b32 s30, v62
    v_readfirstlane_b32 s28, v60
    v_readfirstlane_b32 s29, v61
    s_cmp_eq_u32 s30, 5
    s_cbranch_scc1 L_g2d
    {"s_cmp_lg_u32 s29, 4" if OPT["gate2"] == 4 else ""}
    {"s_cbranch_scc1 L_g2" if OPT["gate2"] == 4 else ""}
    s_and_b32 s28, s28, 0xc0000
    s_cbranch_scc0 L_g2
L_g2d:
    """)
E(f"""
    s_or_b32 s68, s68, s69
    s_lshr_b32 s69, s68, 16
    s_or_b32 s68, s68, s69
""")
def mask2(p): return f"v_add_co_u32_dpp v2, vcc, v{ENT}, v{J3N2} row_newbcast:{p} row_mask:0xf bank_mask:0xf"
def loads(ps, lab):
    E(f"s_and_b32 s30, s68, {sum(1 << p for p in ps)}\ns_cbranch_scc0 L_nx{lab}")
    for p in ps:
        r = RB + 4*p
        E(f"""
        s_bitcmp1_b32 s68, {p}
        s_cbranch_scc0 L_nx{lab}{p}
        {mask2(p)}
        s_mov_b64 exec, vcc
        global_load_dwordx4 v[{r}:{r+3}], v{RAD+p}, s[20:21] offset:192 sc1
        s_mov_b64 exec, -1
L_nx{lab}{p}:
        """)
    E(f"L_nx{lab}:")
    for p in ps:
        r = RA + 4*p
        E(f"""
        s_mov_b64 exec, s[{48+2*p}:{49+2*p}]
        global_load_dwordx4 v[{r}:{r+3}], v{RAD+p}, s[20:21]{SC1 if (OPT["rsc1"] or lab != "m") else ""}
        """)
    E("s_mov_b64 exec, -1")
loads(range(NP), "m")
def issued():
    if OPT["p2gate"]:
        E(f"""
        v_mov_b32 v2, 0
        v_mov_b32 v3, 0x10000
        s_mov_b64 exec, 1
        ds_add_u32 v2, v3 offset:{L_CTR}
        s_mov_b64 exec, -1
        """)
if not OPT["sig"]: issued()
STAMP(7)
def rank(r, m):
    E(f"""
    s_mov_b64 exec, {m}
    v_mul_u32_u24_sdwa v{r}, v{FOUR}, v{r+1} dst_sel:DWORD dst_unused:UNUSED_PAD src0_sel:DWORD src1_sel:BYTE_3
    v_and_b32 v{r+1}, {OPT['srcmask']}, v{r+1}
    ds_add_rtn_u32 v{r}, v{r}, v{FOUR} offset:{L_CNT}
    """)
def put(r, m):
    E(f"""
    s_mov_b64 exec, {m}
    v_lshlrev_b32 v2, 1, v{r}
    ds_write_b32 v{r}, v{r+1}
    ds_write_b64 v2, v[{r+2}:{r+3}] offset:{L_EA - 2*L_SRC}
    """)
retries = []
pending = []
for gi, grp in enumerate(((0, 1, 2, 3), (4, 5), (6, 7))):
    bits = sum(1 << p for p in grp); m32 = bits | (bits << 16)
    E(f"""
L_ck{gi}:
    s_mov_b32 vcc_lo, {m32}
    s_mov_b32 vcc_hi, {m32}
    v_cndmask_b32 v{ACC}, 0, v{ENT+1}, vcc
    s_and_b32 s30, s68, {bits}
    s_cbranch_scc1 L_xa{gi}
L_xb{gi}:
    """)
    def xacc():
        E(f"L_xa{gi}:\ns_waitcnt vmcnt({NP})")
        for p in grp:
            r = RB + 4*p
            E(f"""
            {mask2(p)}
            s_mov_b64 exec, vcc
            v_add3_u32 v{ACC}, v{ACC}, v{r+1}, v{r+2}
            v_add_u32 v{ACC}, v{ACC}, v{r+3}
            s_mov_b64 exec, -1
            """)
        E(f"s_branch L_xb{gi}")
    emit_to(outofline, xacc)
    for p in grp:
        r = RA + 4*p
        E(f"""
        s_waitcnt vmcnt({NP-1-p})
        s_mov_b64 exec, s[{48+2*p}:{49+2*p}]
        v_and_b32 v{r}, v{r}, v{L0M}
        v_add3_u32 v{ACC}, v{ACC}, v{r+2}, v{r+3}
        v_add3_u32 v{ACC}, v{ACC}, v{r}, v{r+1}
        """)
    E("s_mov_b64 exec, -1\ns_nop 0")
    for k in (1, 2, 4, 8):
        E(f"v_add_u32_dpp v{ACC}, v{ACC}, v{ACC} row_ror:{k} row_mask:0xf bank_mask:0xf")
        if k < 8: E("s_nop 1")
    E(f"v_cmp_ne_u32 vcc, 0, v{ACC}\ns_cbranch_vccnz L_rt{gi}")
    if OPT["rst"]: STAMP(1+gi)
    if OPT["sig"] == gi + 1: issued()
    def retry():
        E(f"L_rt{gi}:\ns_sub_u32 s34, s34, 1\ns_cbranch_scc1 {'L_toobig' if gi < OPT['sig'] else 'L_giveup'}")
        loads(grp, f"r{gi}_")
        E(f"s_waitcnt vmcnt(0)\ns_branch L_ck{gi}")
    emit_to(outofline, retry)
    for p in grp: rank(RA + 4*p, f"s[{48+2*p}:{49+2*p}]")
    E(f"s_and_b32 s30, s68, {bits}\ns_cbranch_scc1 L_ya{gi}\nL_yb{gi}:")
    def xput():
        E(f"L_ya{gi}:")
        for p in grp:
            r = RB + 4*p
            E(f"""
            s_bitcmp1_b32 s68, {p}
            s_cbranch_scc0 L_yn{p}
            s_mov_b64 exec, -1
            {mask2(p)}
            """)
            rank(r, "vcc")
            E("s_waitcnt lgkmcnt(0)")
            put(r, "vcc")
            E(f"L_yn{p}:")
        E(f"s_branch L_yb{gi}")
    emit_to(outofline, xput)
    for k, p in enumerate(grp):
        E(f"s_waitcnt lgkmcnt({len(grp) - 1 - k + 2*k})")
        put(RA + 4*p, f"s[{48+2*p}:{49+2*p}]")
    E("s_mov_b64 exec, -1")
E(f"""
    {f"s_sub_u32 s{ST0+4}, {POLL_MAX+1}, s34" if OPT["cnt"] else ""}
    s_branch L_b4
L_toobig:
    s_mov_b64 exec, -1
""")
issued()
E(f"""
L_giveup:
    v_mov_b32 v2, 0
    ds_write_b32 v2, v{FOUR} offset:{L_FLAG}
L_recskip:
    s_waitcnt vmcnt(0)
L_b4:
    s_setprio {OPT["p0"] if OPT["prio"] == 2 else 0}
    s_mul_i32 s30, s{S_HALF}, {G_HALF}
    {f"s_add_u32 s30, s30, {WS0}" if WS0 else ""}
    s_add_u32 s36, s20, s30
    s_addc_u32 s37, s21, 0
    s_mov_b32 s38, {OPT['nrec'] or G_HALF}
    s_mov_b32 s39, 0x20000
    s_mov_b32 s44, 128
    s_mov_b32 s45, 128
    ds_read_b128 v[60:63], v{LP}
    ds_read_b64 v[{AG}:{AG+1}], v{LP} offset:64
    ds_read_b64 v[{WN2}:{WN2+1}], v{LP} offset:72
    ds_read_b32 v{WE}, v{LP+1}
    s_waitcnt lgkmcnt(0)
    v_lshl_add_u64 v[{AG}:{AG+1}], v[{AG}:{AG+1}], 0, v[{LN8}:{LN8+1}]
    v_lshl_add_u32 v{WE}, v{WE}, 1, v{EAC}
""")
if OPT["warm"]:
    E(f"""
    s_barrier
    s_lshr_b32 s30, s2, 3
    s_mul_i32 s30, s30, 98304
    v_lshl_add_u32 v2, v0, 7, s30
    buffer_load_dword v3, v2, s[36:39], 0 offen sc1
    s_waitcnt vmcnt(0)
    s_sleep 40
    """)
STAMP(8)
E(f"""
    s_barrier                               ; B4
    s_cmp_lg_u32 s{S_SAFE}, 0
    s_cbranch_scc1 L_safe
    ds_read_b128 v[{T}:{T+3}], v60
    ds_read_b128 v[{T+4}:{T+7}], v61
    ds_read_b64 v[{XA}:{XA+1}], v{AG} offset:512
    ds_read_b64 v[{EA}:{EA+1}], v{WE}
    s_lshr_b32 s30, s3, 2
    s_cmp_lg_u32 s30, 1
    s_cbranch_scc1 L_nopoll
    s_mov_b64 exec, s[66:67]
    s_cbranch_execz L_p2e
    s_mov_b32 s31, {POLL_MAX}
L_p2:
    global_load_dwordx2 v[66:67], v64, s[20:21] sc1
    s_sub_u32 s31, s31, 1
    s_cbranch_scc1 L_p2d
    s_waitcnt vmcnt(0)
    v_cmp_ne_u64 vcc, s[{S_TAG}:{S_TAG+1}], v[66:67]
    s_and_b64 exec, exec, vcc
    s_cbranch_scc0 L_p2d
    {f"s_sleep {OPT['p2sleep']}" if OPT['p2sleep'] else ""}
    s_branch L_p2
L_p2d:
""")
gready("b")
E(f"""
L_p2e:
    s_mov_b64 exec, -1
L_nopoll:
    s_cmp_lt_u32 s3, {NW-2}
    s_cbranch_scc1 L_nobuild
    v_lshlrev_b32 v2, 3, v1
    v_mov_b32 v3, 0
    ds_read_b64 v[72:73], v2 offset:{L_CNT}
    ds_read_b32 v79, v3 offset:{L_FLAG}
    v_mul_u32_u24 v74, {2*SSTR}, v1
    v_add_u32 v74, {L_SRC + 96}, v74
    v_add_u32 v75, {SSTR}, v74
    v_mul_u32_u24 v82, {2*NSTR}, v1
    s_and_b32 s32, s3, 1
    s_mul_i32 s30, s32, {NSTR}
    s_add_u32 s30, s30, {L_NODE}
    v_add_u32 v82, s30, v82
    v_mov_b32 v83, v82
    s_mul_i32 s30, s32, {SSTR}
    v_add_u32 v80, s30, v74
    v_add_u32 v81, 16, v80
    s_waitcnt lgkmcnt(0)
    v_sub_u32 v72, v72, v74 clamp
    v_sub_u32 v73, v73, v75 clamp
    v_max_u32 v76, v72, v73
    v_cmp_lt_u32 vcc, 160, v76
    v_cmp_ne_u32 s[48:49], 0, v79
    v_add_u32 v74, 12, v72
    v_add_u32 v75, 12, v73
    s_or_b64 vcc, vcc, s[48:49]
    s_cbranch_scc1 L_bad
    v_add_u32 v72, 28, v72
    v_add_u32 v73, 28, v73
    v_lshrrev_b32 v74, 5, v74
    v_lshrrev_b32 v75, 5, v75
    v_lshrrev_b32 v72, 5, v72
    v_lshrrev_b32 v73, 5, v73
    v_sub_u32 v72, v72, v74
    v_sub_u32 v73, v73, v75
    v_lshl_or_b32 v72, v72, 16, v74
    v_lshl_or_b32 v73, v73, 16, v75
    v_add_u32 v76, v72, v73
    v_add_u32 v77, v72, v73
""")
scan(77)
E(f"""
    s_cmp_eq_u32 s32, 0
    s_cselect_b64 vcc, -1, 0
    v_readlane_b32 s30, v77, 63
    v_cndmask_b32 v76, v73, v76, vcc
    v_cndmask_b32 v72, v73, v72, vcc
    v_sub_u32 v77, v77, v76
    s_and_b32 s31, s30, 0xffff
    s_add_u32 s31, s31, 3
    s_lshr_b32 s31, s31, 2
    s_add_u32 s30, s30, 0x30000
    s_lshr_b32 s30, s30, 18
    s_lshl_b32 s33, s31, 1
    s_add_u32 s33, s33, s30
    s_cmp_gt_u32 s33, 112
    s_cbranch_scc1 L_bad
    s_lshl_b32 s30, s30, 8
    s_or_b32 s29, s30, s31
    v_and_b32 v74, 0xffff, v72
    v_and_b32 v76, 0xffff, v77
    s_mov_b32 s34, {L_LISTC}
    s_mov_b32 s35, {L_LIST + 384}
""")
def slotaddr():
    E(f"""
    v_add_u32 v78, 16, v76
    v_bfe_u32 v79, v76, 2, 2
    v_lshl_add_u32 v79, v79, 10, s34
    v_lshrrev_b32 v84, 5, v78
    v_lshl_add_u32 v79, v84, 7, v79
    v_bfe_u32 v84, v78, 4, 1
    v_lshl_add_u32 v79, v84, 3, v79
    v_lshrrev_b32 v84, 2, v76
    v_cmp_gt_u32 vcc, 32, v76
    v_lshl_add_u32 v84, v84, 9, s35
    v_and_b32 v78, 3, v76
    v_cndmask_b32 v79, v79, v84, vcc
    v_lshl_add_u32 v79, v78, 4, v79
    """)
E("""
L_bf:
    v_cmp_ne_u32 vcc, 0, v74
    s_and_b64 exec, exec, vcc
    s_cbranch_execz L_bfd
""")
slotaddr()
E(f"""
    ds_write_b64 v79, v[80:81]
    ds_write_b64 v79, v[82:83] offset:64
    v_add_u32 v80, 32, v80
    v_add_u32 v81, 32, v81
    v_add_u32 v76, 1, v76
    v_subrev_u32 v74, 1, v74
    s_branch L_bf
L_bfd:
    s_mov_b64 exec, -1
    v_lshrrev_b32 v77, 16, v77
    v_lshrrev_b32 v76, 3, v77
    v_add_u32 v76, s31, v76
    v_and_b32 v78, 3, v77
    v_lshl_add_u32 v76, v76, 2, v78
""")
slotaddr()
E(f"""
    v_and_b32 v78, 4, v77
    v_add_u32 v79, v79, v78
    v_cmp_lt_u32 vcc, 0xffff, v72
    s_mov_b64 exec, vcc
    ds_write2_b32 v79, v80, v82 offset0:0 offset1:16
    s_mov_b64 exec, -1
    s_mul_i32 s29, s29, s32
    s_add_u32 s29, s29, 0x10000
    s_branch L_built
L_bad:
    s_mov_b32 s29, 0x1010000
L_built:
    v_mov_b32 v2, s29
    s_mov_b64 exec, 1
    ds_add_u32 v3, v2 offset:{L_NST}
    s_add_u32 s30, s{S_P}, s32
    s_cmp_lg_u32 s30, 0
    s_cbranch_scc1 L_notw
    v_mov_b32 v2, s{S_TAG}
    v_mov_b32 v3, {WS_TAG}
    global_store_dword v3, v2, s[20:21] sc1
L_notw:
    s_mov_b64 exec, -1
L_nobuild:
    s_waitcnt lgkmcnt(0)
""")
assert DIST == 2 and not EARLY
E(m_a(D0))
for o in range(T, T+8, 2): E(oadd(o))
E(m_e(D0, 0))
lds_wait(L_GOK, 0xff, 4, "gok")
if OPT["stamps"] == 2: E(f"s_memrealtime s[{ST0+16}:{ST0+17}]")
if not OPT["nogather"]:
    for q in range(8): E(gload(G + 4*q, T+q))
STAMP(9)
E(f"""
    s_mov_b32 s31, {POLL_MAX}
    s_waitcnt vmcnt(4)
""")
E(m_s(D0, A1, G)); E(m_s(D0, A2, G+8))
E(f"""
L_wn:
    ds_read_b32 v3, v2 offset:{L_NST}
    ds_read_b128 v[{WS4}:{WS4+3}], v{LP} offset:{128*((DIST+EARLY)//4)}
    s_sub_u32 s31, s31, 1
    s_cbranch_scc1 L_gosafe
    s_waitcnt lgkmcnt(0)
    v_readfirstlane_b32 s30, v3
    s_bitcmp1_b32 s30, 17
    s_cbranch_scc0 L_wn
    s_cmp_gt_u32 s30, {0 if OPT["force_safe"] else 0xffffff}
    s_cbranch_scc1 L_gosafe
    s_and_b32 s31, s30, 0xff
    s_bfe_u32 s30, s30, 0x80008
    s_lshl_b32 s32, s31, 1
    s_add_u32 s30, s30, s32
    s_lshl_b32 s32, s3, 1
    s_sub_i32 s30, s30, s32
    s_max_i32 s30, s30, 0
    s_cmp_ge_u32 s3, 8
    s_cbranch_scc1 L_nc
    s_min_u32 s30, s30, 2
    s_add_u32 s{S_R}, s30, 12
    s_cmp_ge_u32 s3, s31
    s_cselect_b32 s30, 0x2000, 0
    s_or_b32 s{S_M}, s30, 0x5041
    s_branch L_nd
L_nc:
    s_add_u32 s32, s30, 7
    s_lshr_b32 s32, s32, 3
    s_lshl_b32 s32, s32, 1
    s_and_b32 s30, s30, 7
    s_cmp_eq_u32 s30, 1
    s_subb_u32 s32, s32, 0
    s_add_u32 s{S_R}, s32, 6
    s_sub_i32 s31, s31, s3
    s_add_i32 s31, s31, 3
    s_max_i32 s31, s31, 0
    s_lshr_b32 s31, s31, 2
    s_lshl_b32 s31, s31, 1
    s_add_u32 s31, s31, 7
    s_lshl_b32 s31, -1, s31
    s_or_b32 s{S_M}, s31, 0x55555541
L_nd:
    s_mov_b32 s{S_IT}, {(1 << OPT["pa"]) | (1 << OPT["pb"]) | (1 << OPT["pc"]) if OPT["prio"] == 2 else 0}
""")
if OPT["prio"]: E(f"s_setprio {OPT['p1']}")
STAMP(10)
if OPT["ptime"]: E("v_mov_b32 v35, 0\nv_mov_b32 v68, 0")
if OPT["stamps"] == 1: E(f"s_memtime s[{ST0+24}:{ST0+25}]\ns_waitcnt lgkmcnt(0)")
for u in range(4): phase(u, True)
for u in range(4): phase(u, False)
E(f"""
L_mdone:
    s_waitcnt lgkmcnt(0)
""")
STAMP(11)
if OPT["ptime"]:
    E(f"""
    s_lshl_b32 s30, s2, 4
    s_add_u32 s30, s30, s3
    s_lshl_b32 s30, s30, 8
    s_add_u32 s30, s30, 0xc00000
    v_lshl_add_u32 v2, v1, 2, s30
    s_mov_b32 exec_hi, 0
    global_store_dword v2, v35, s[20:21]
    global_store_dword v2, v68, s[20:21] offset:128
    s_mov_b64 exec, -1
    """)
if OPT["stamps"] == 1:
    E(f"s_memtime s[28:29]\ns_waitcnt lgkmcnt(0)\ns_sub_u32 s{ST0+24}, s28, s{ST0+24}")
E(f"""
    v_lshrrev_b32 v2, 5, v0
    v_and_b32 v3, 31, v0
    v_mul_u32_u24 v4, {NSTR}, v2
    v_and_b32 v5, 1, v3
    v_lshl_add_u32 v4, v5, 8, v4
    v_lshrrev_b32 v5, 1, v3
    v_lshl_add_u32 v4, v5, 3, v4
    v_add_u32 v4, {L_NODE}, v4
    s_mul_i32 s30, s{S_BUCK}, {NB*256}
    s_lshl_b32 s31, s{S_HALF}, 7
    s_add_u32 s30, s30, s31
    v_lshlrev_b32 v3, 2, v3
    v_lshl_add_u32 v5, v2, 8, v3
    v_add_u32 v5, s30, v5
    v_add_u32 v6, {24*256}, v5
    v_add_u32 v7, {48*256}, v5
    v_add_u32 v8, {72*256}, v5
    s_mov_b32 s32, {f32(2.0**32)}
    s_mov_b32 s34, {f32(-LOG2E * 2.0**-32)}
    v_mov_b32 v9, 0x207
    s_barrier                               ; B5
""")
OSC = {0: "", 1: " sc1", 2: " nt"}[OPT["osc"]]
def epi(us):
    for u in us: E(f"ds_read_b64 v[{12+4*u}:{13+4*u}], v4 offset:{24*NSTR*u}\nds_read_b64 v[{14+4*u}:{15+4*u}], v4 offset:{24*NSTR*u + 128}")
    E("s_waitcnt lgkmcnt(0)")
    for u in us: E(f"v_cvt_f32_f64 v{28+2*u}, v[{12+4*u}:{13+4*u}]\nv_cvt_f32_f64 v{29+2*u}, v[{14+4*u}:{15+4*u}]")
    for u in us: E(f"v_pk_mul_f32 v[{36+2*u}:{37+2*u}], v[{28+2*u}:{29+2*u}], s[34:35] op_sel_hi:[1,0]")
    for u in us: E(f"v_exp_f32 v{36+2*u}, v{36+2*u}\nv_exp_f32 v{37+2*u}, v{37+2*u}")
    E("v_pk_add_f32 v[10:11], v[28:29], v[30:31]")
    for u in us: E(f"v_pk_fma_f32 v[{36+2*u}:{37+2*u}], v[{36+2*u}:{37+2*u}], s[32:33], s[32:33] op_sel_hi:[1,0,0]")
    for u in us: E(f"v_rcp_f32 v{36+2*u}, v{36+2*u}\nv_rcp_f32 v{37+2*u}, v{37+2*u}")
    E("v_pk_add_f32 v[10:11], v[10:11], v[32:33]")
    for u in us: E(f"v_pk_mul_f32 v[{36+2*u}:{37+2*u}], v[{28+2*u}:{29+2*u}], v[{36+2*u}:{37+2*u}]")
    for u in us: E(f"v_cvt_pk_bf16_f32 v{44+u}, v{36+2*u}, v{37+2*u}\nglobal_store_dword v{5+u}, v{44+u}, s[18:19]{OSC}")
    for u in us[3:]: E(f"v_pk_add_f32 v[10:11], v[10:11], v[{28+2*u}:{29+2*u}]")
E("s_cmp_ge_u32 s3, 4\ns_cbranch_scc1 L_e3")
epi([0, 1, 2, 3])
E("s_branch L_e4\nL_e3:")
epi([0, 1, 2])
E(f"""
L_e4:
    v_add_f32 v10, v10, v11
    v_cmp_class_f32 vcc, v10, v9
    v_mov_b32 v2, 0
    s_cmp_lg_u32 s{S_SAFE}, 0
    s_cbranch_scc1 L_fin
    {"s_branch" if OPT["nosafe"] else "s_cbranch_vccz"} L_e5
    ds_write_b32 v2, v9 offset:{L_FLAG}
    s_waitcnt lgkmcnt(0)
L_e5:
    s_barrier                               ; B6
    ds_read_b32 v2, v2 offset:{L_FLAG}
    s_waitcnt lgkmcnt(0)
    v_readfirstlane_b32 s30, v2
    s_cmp_lg_u32 s30, 0
    s_cbranch_scc1 L_gosafe
L_fin:
""")
if OPT["stamps"]:
    E("s_waitcnt vmcnt(0)"); STAMP(13); STAMP_OUT()
if OPT["probe"] >= 0:
    T_ = ST0 + 2*OPT["probe"]
    E(f"""
    s_cmp_lg_u32 s3, {OPT["pw"]}
    s_cbranch_scc1 L_end
    s_cmp_lg_u32 s2, {OPT["pg"] if OPT["pg"] >= 0 else "s2"}
    s_cbranch_scc1 L_end
    s_sub_u32 s30, s{T_}, s{ST0}
    s_lshl_b32 s30, s30, 2
    s_add_u32 s30, s30, 3000
    s_min_u32 s30, s30, 20000
L_spin:
    s_memrealtime s[28:29]
    s_waitcnt lgkmcnt(0)
    s_sub_u32 s28, s28, s{ST0}
    s_cmp_lt_u32 s28, s30
    s_cbranch_scc1 L_spin
    """)
E(f"""
L_end:
    s_endpgm
L_gosafe:
    s_mov_b32 s{S_SAFE}, 8
    s_setprio 0
    s_waitcnt vmcnt(0) lgkmcnt(0)
    s_barrier
    s_branch L_restart
""")
out += outofline
for r in retries: E(r)
E(f"""
L_safe:
    v_and_b32 v2, 15, v1
    v_lshlrev_b32 v3, 3, v2
    v_add_u32 v3, {L_C}, v3
""")
for k in range(4):
    for s in range(4):
        E(f"ds_read_u16 v{80+4*k+s}, v3 offset:{128*k + 2*s}")
E("s_waitcnt lgkmcnt(0)")
for i in range(16):
    E(f"v_lshlrev_b32 v{80+i}, 16, v{80+i}\nv_mul_f32 v{80+i}, s40, v{80+i}")
E(f"""
    v_lshrrev_b32 v24, 4, v1
    v_mul_u32_u24 v24, 3, v24               ; 3*quarter
    s_movk_i32 s33, {NSTR}
    v_add_u32 v25, {L_NODE}, v{LN8}
    s_mov_b32 s34, s3
    s_mov_b32 s35, {POLL_MAX}
L_scell:
    s_lshl_b32 s30, s34, 10
    s_lshl_b32 s31, s{S_BUCK}, 3
    s_add_u32 s30, s30, s31
    s_add_u32 s30, s30, {WS_ROW}
    v_mov_b32 v26, s30
    global_load_dword v32, v26, s[20:21] sc1
    s_mul_i32 s30, s34, {SORTB//4}
    s_add_u32 s30, s30, {WS_REC//4}
    s_waitcnt vmcnt(0)
    v_bfe_u32 v28, v32, 12, 12              ; 3*count
    v_and_b32 v27, 0xfff, v32
    v_add_u32 v27, s30, v27
L_sver:
    v_mov_b32 v29, v1
    v_mov_b32 v31, 0
L_sv1:
    v_cmp_ge_u32 vcc, v28, v29
    s_and_saveexec_b64 s[48:49], vcc
    s_cbranch_execz L_sv2
    v_add_lshl_u32 v30, v27, v29, 2
    global_load_dword v32, v30, s[20:21] sc1
    s_waitcnt vmcnt(0)
    v_add_u32 v31, v31, v32
    s_mov_b64 exec, s[48:49]
    v_add_u32 v29, 64, v29
    s_branch L_sv1
L_sv2:
    s_mov_b64 exec, s[48:49]
""")
scan(31)
E(f"""
    s_nop 0
    v_readlane_b32 s30, v31, 63
    s_cmp_eq_u32 s30, s{S_TAG+1}
    s_cbranch_scc1 L_sok
    s_sub_u32 s35, s35, 1
    s_cbranch_scc0 L_sver
    s_branch L_mdone
L_sok:
    v_mov_b32 v29, v24
L_srec:
    v_cmp_gt_u32 vcc, v28, v29
    s_and_saveexec_b64 s[48:49], vcc
    s_cbranch_execz L_snext
    v_add_lshl_u32 v30, v27, v29, 2
    global_load_dwordx3 v[32:34], v30, s[20:21] offset:4 sc1
    s_waitcnt vmcnt(0)
    v_and_b32 v30, 0x3fff00, v32
    v_add_u32 v30, v30, v{LN16}
    buffer_load_dwordx4 v[36:39], v30, s[36:39], 0 offen sc1
    v_lshrrev_b32 v31, 24, v32
    v_mad_u32_u24 v31, v31, s33, v25
    ds_read_b64 v[40:41], v31 offset:512
    v_lshlrev_b32 v44, 16, v33
    v_and_b32 v45, 0xffff0000, v33
    v_lshlrev_b32 v46, 16, v34
    v_and_b32 v47, 0xffff0000, v34
    s_waitcnt vmcnt(0) lgkmcnt(0)
    v_lshlrev_b32 v48, 16, v40
    v_and_b32 v49, 0xffff0000, v40
    v_lshlrev_b32 v50, 16, v41
    v_and_b32 v51, 0xffff0000, v41
""")
for s in range(4):
    E(f"v_lshlrev_b32 v52, 16, v{36+s}\nv_add_f32 v{48+s}, v{48+s}, v52")
    for k in range(4):
        E(f"v_fmac_f32 v{48+s}, v{44+k}, v{80+4*k+s}")
for s in range(4): E(f"v_exp_f32 v{48+s}, v{48+s}")
E("s_nop 0")
for s in range(4): E(f"v_add_f32 v{48+s}, 1.0, v{48+s}")
for s in range(4): E(f"v_rcp_f32 v{48+s}, v{48+s}")
E("s_nop 0")
for s in range(4): E(f"v_mul_f32 v{48+s}, v{48+s}, v{36+s}")
for s in range(4): E(f"v_cvt_f64_f32 v[{54+2*s}:{55+2*s}], v{48+s}")
for s in range(4): E(f"ds_add_f64 v31, v[{54+2*s}:{55+2*s}] offset:{128*s}")
E(f"""
    s_mov_b64 exec, s[48:49]
    v_add_u32 v29, 12, v29
    s_branch L_srec
L_snext:
    s_mov_b64 exec, s[48:49]
    s_add_u32 s34, s34, {NW}
    s_cmp_lt_u32 s34, {NCHUNK}
    s_cbranch_scc1 L_scell
    s_branch L_mdone
L_codeend:
.section .rodata,"a"
.p2align 6
.amdhsa_kernel {NAME}
.amdhsa_next_free_vgpr 168
.amdhsa_next_free_sgpr 102
.amdhsa_accum_offset 168
.amdhsa_group_segment_fixed_size 0
.amdhsa_kernarg_size 80
.amdhsa_user_sgpr_count 2
.amdhsa_user_sgpr_kernarg_segment_ptr 1
.amdhsa_system_sgpr_workgroup_id_x 1
.end_amdhsa_kernel
""")
if OPT["drop"]:
    i0 = out.index("L_L0:"); i1 = out.index("L_mdone:")
    pats = {1: ("smfmac",), 2: ("mfma",), 3: ("32x32x8",), 4: ("smfmac",), 5: ("v_exp",)}[OPT["drop"]]
    repl = {4: "    s_nop 2", 5: "    s_nop 1"}.get(OPT["drop"])
    mid = []
    for l in out[i0:i1]:
        if any(x in l for x in pats):
            if repl: mid.append(repl)
        else: mid.append(l)
    if OPT["drop"] == 3: mid = [l.replace("v[88:103] cbsz", "0 cbsz").replace("v[72:87] cbsz", "0 cbsz") for l in mid]
    out = out[:i0] + mid + out[i1:]
if OPT["nochain"]:
    i0 = out.index("L_L0:"); i1 = out.index("L_mdone:")
    out = out[:i0] + [l for l in out[i0:i1] if not any(x in l for x in ("v_exp", "v_pk_", "mfma", "v_rcp", "v_cvt"))] + out[i1:]
open(sys.argv[1], "w").write("\n".join(out) + "\n")
```

```python
import sys, struct

OPT = dict(hb=1, stamps=0, force_safe=0, nogather=0, nosafe=0, prio=2, gsc1=1, osc=1, codepf=1, srcmask=0x3fff00, nrec=0, warm=0,
           nochain=0, probe=-1, pw=-1, pg=-1, gpf=32, early=0, cnt=0, pollmax=200000, pa=7, pb=3, pc=1, p0=3, p1=3, ptime=0,
           dist=2, ldearly=0, drop=0, wgate=0, gate=0, gate2=1, rst=0, rsc1=1, nover=0, p2gate=1, p2sleep=0, hold=0, slate=2, lpos=0, p1st=1, sig=1, gpace=4, gwin=-1, gp=0xf448c, ghold=0, nte=0, ewhen=2, wpf=1, gpe=40, oneb=0, pre=0, prelate=0, ntx=0, rpace=-1, p2wait=0)
for a in sys.argv[2:]:
    k, v = a.split("=")
    assert k in OPT, k
    OPT[k] = int(v, 0)

out = []
def E(s=""):
    for line in s.split("\n"):
        line = line.strip()
        if not line:
            continue
        if line.endswith(":") or line.startswith(".") or line.startswith(";"):
            out.append(line)
        else:
            out.append("    " + line)

def f32(x):
    return "0x%08x" % struct.unpack("<I", struct.pack("<f", x))[0]

NAME = "standalone__edge_featured_mpnn_egc__graph_kernel"
LOG2E = 1.4426950408889634
NB = 80; NBUCK = 125; CHUNK = 1280; NCHUNK = 250
NW = 12
G_HALF = 10000 * 256
WS0 = 0
WS_REC = 0x500000
WS_ROW = 0x900000
WS_FL2 = 0x980000
WS_TAG = 0x9c0000
SORTB = CHUNK * 12 + 512
WS_STAMP = 0x1000000
L_CNT = 0; L_SOFF = 512
L_SCNT = 1024
L_CTR = 1536; L_RD = 1540; L_DONE2 = 1544; L_FLAG = 1548; L_NST = 1552; L_GST = 1556; L_GOK = 1560; L_AU = 1564
L_DUM = L_SOFF
L_LIST = 2048
L_LISTC = L_LIST + 4096
SSTR = 272
L_SRC = L_LIST + 8192
SRCB = 80 * SSTR + 32
L_EA = L_SRC + SRCB
L_EAEND = L_EA + 2 * SRCB
L_SORT = L_EA
L_WBV = (L_EAEND + 255) // 256 * 256; L_X = L_WBV + 32768; L_WAU = L_X + 20480; L_C = L_WAU + 32768
LDS = L_C + 1024
L_NODE = L_WBV; NSTR = 648
assert L_NODE + 80 * NSTR <= L_WAU and LDS <= 163840 and L_EA % 16 == 0
NULL_SRC = 0x7fffff00
POLL_MAX = OPT["pollmax"]
SC1 = " sc1"
NTE = " nt" if OPT["nte"] else ""
NTX = " nt" if OPT["ntx"] else ""

S_HALF, S_BUCK, S_P = 22, 23, 24
S_SAFE, S_TAG = 25, 26
S_R, S_M, S_IT = 70, 71, 72
S_TAGRAW = 47
ST0 = 74

def ESTAMP(i):
    if OPT["early"] == 1 or (OPT["early"] and i == 0): E(f"s_memrealtime s[{ST0+2*i}:{ST0+2*i+1}]")
def FSTAMP(i):
    if OPT["early"] == 2: E(f"s_memrealtime s[{ST0+2*i}:{ST0+2*i+1}]\ns_waitcnt lgkmcnt(0)")
def STAMP(i):
    if OPT["stamps"] == 2:
        if i == 0: E(f"s_memrealtime s[{ST0}:{ST0+1}]")
        if i == 13: E(f"s_memrealtime s[{ST0+26}:{ST0+27}]\ns_waitcnt lgkmcnt(0)")
        return
    if OPT["early"] and 1 <= i <= 7: return
    if OPT["early"] and i == 0: return ESTAMP(0)
    if OPT["stamps"] or (OPT["probe"] >= 0 and i == OPT["probe"]):
        E(f"s_memrealtime s[{ST0+2*i}:{ST0+2*i+1}]\ns_waitcnt lgkmcnt(0)")
    elif OPT["probe"] >= 0 and i == 0:
        E(f"s_memrealtime s[{ST0}:{ST0+1}]")
NSTAMP = 14
def STAMP_OUT():
    if OPT["stamps"]:
        E(f"""
        s_lshl_b32 s30, s2, 4
        s_add_u32 s30, s30, s3
        s_lshl_b32 s30, s30, 6
        s_add_u32 s30, s30, {WS_STAMP - 0x100000}
        s_load_dwordx2 s[20:21], s[0:1], 72
        s_waitcnt lgkmcnt(0)
        s_mov_b64 exec, -1
        v_mov_b32 v3, s30""")
        for i in (range(NSTAMP) if OPT["stamps"] == 1 else (0, 8, 13)):
            E(f"v_mov_b32 v2, s{ST0+2*i}\nglobal_store_dword v3, v2, s[20:21] offset:{4*i}")
        E("s_waitcnt vmcnt(0)")

A1, A2, IDX, EAC, LN16, ASEL, CW, LN8 = 4, 8, 12, 13, 14, 16, 18, 20
LP, WS4, WN2, EA, XA, WE, OFS, AG, T, N, P, F = 22, 24, 28, 30, 32, 34, 36, 40, 44, 52, 56, 60
D0, D1, G = 72, 88, 104

def finish_tag():
    E(f"""
    s_mul_i32 s{S_TAG+1}, s{S_TAGRAW}, 0x85ebca6b
    s_mul_i32 s{S_TAG}, s{S_TAGRAW}, 0x9e3779b1
    s_add_u32 s{S_TAG+1}, s{S_TAG+1}, 0x5bd1e995
    s_add_u32 s{S_TAG}, s{S_TAG}, 0x7f4a7c15
    """)
def get_tag(lab, q):
    E(f"""
    s_cmp_lg_u32 s{S_SAFE}, 0
    s_cbranch_scc1 L_tag_{lab}
    v_mov_b32 v2, 0
    s_mov_b32 s31, {POLL_MAX}
L_tg_{lab}:
    ds_read_b128 v[{q}:{q+3}], v2 offset:{L_SCNT + 124*4}
    s_sub_u32 s31, s31, 1
    s_cbranch_scc1 L_tag_{lab}
    s_waitcnt lgkmcnt(0)
    v_readfirstlane_b32 s30, v{q+3}
    v_readfirstlane_b32 s{S_TAGRAW}, v{q+1}
    s_cmp_lg_u32 s30, 4
    s_cbranch_scc1 L_tg_{lab}
    """)
    finish_tag()
    E(f"L_tag_{lab}:")

def lds_wait(addr, mask, val, tag, sleep=0, ne=False):
    E(f"""
    v_mov_b32 v2, 0
    s_mov_b32 s31, {POLL_MAX}
L_w_{tag}:
    {f"s_sleep {sleep}" if sleep else ""}
    ds_read_b32 v3, v2 offset:{addr}
    s_sub_u32 s31, s31, 1
    s_cbranch_scc1 L_wd_{tag}
    s_waitcnt lgkmcnt(0)
    v_readfirstlane_b32 s30, v3
    s_and_b32 s30, s30, {mask}
    s_cmp_lg_u32 s30, {val}
    s_cbranch_scc{0 if ne else 1} L_w_{tag}
L_wd_{tag}:
    """)
SCAN = ("row_shr:1 row_mask:0xf bank_mask:0xf bound_ctrl:0", "row_shr:2 row_mask:0xf bank_mask:0xf bound_ctrl:0",
        "row_shr:4 row_mask:0xf bank_mask:0xf bound_ctrl:0", "row_shr:8 row_mask:0xf bank_mask:0xf bound_ctrl:0",
        "row_bcast:15 row_mask:0xa bank_mask:0xf", "row_bcast:31 row_mask:0xc bank_mask:0xf")
def scan(r):
    for m in SCAN:
        E(f"s_nop 1\nv_add_u32_dpp v{r}, v{r}, v{r} {m}")

def main_consts(sm=48):
    E(f"""
    v_and_b32 v2, 15, v1                    ; n'
    v_lshrrev_b32 v3, 4, v1
    v_lshl_add_u32 v3, v2, 2, v3
    v_lshlrev_b32 v3, 1, v3
    v_add_u32 v3, {L_C}, v3
    ds_read_u16 v64, v3                     ; C[0..3][feature 4n'+s]
    ds_read_u16 v65, v3 offset:128
    ds_read_u16 v66, v3 offset:256
    ds_read_u16 v67, v3 offset:384
    v_and_b32 v63, 3, v1                    ; q
    v_lshlrev_b32 v{LN8}, 3, v2
    v_lshlrev_b32 v{LN8+1}, 3, v2
    v_lshlrev_b32 v{LN16}, 4, v2
    v_lshlrev_b32 v{LN16+1}, 4, v2
    v_mov_b32 v{IDX}, 0x8888
    v_bfe_u32 v60, v1, 3, 2                 ; s = (l&31)>>3
    v_bfe_u32 v61, v1, 2, 1                 ; h = (l>>2)&1
    v_lshrrev_b32 v62, 5, v1                ; ha
    v_and_b32 v2, 1, v60
    v_lshlrev_b32 v2, 4, v2
    v_lshlrev_b32 v2, v2, s46
    v_lshrrev_b32 v60, 1, v60               ; s>>1
    v_lshl_add_u32 v3, v61, 1, v60
    v_sub_u32 v63, v63, v62                 ; q - ha : 0 -> A1, 2 -> A2
    v_lshl_add_u32 v3, v63, 1, v3
    v_and_b32 v63, 1, v63
    v_lshl_or_b32 v3, v63, 4, v3
    v_xor_b32 v61, v61, v62
    v_lshl_or_b32 v60, v61, 4, v60
    """)
    mk = [f"s[{sm}:{sm+1}]", f"s[{sm+2}:{sm+3}]", f"s[{sm+4}:{sm+5}]", "vcc"]
    for i in range(8):
        E(f"v_cmp_eq_u32 {mk[i%4]}, {i}, v3")
        if i % 4 == 3:
            for j in range(i-3, i+1):
                E(f"v_cndmask_b32 v{A1+j}, 0, v2, {mk[j%4]}")
    E(f"""
    v_cmp_eq_u32 {mk[0]}, 0, v60
    v_cmp_eq_u32 {mk[1]}, 1, v60
    v_and_b32 v63, 3, v1
    v_lshlrev_b32 v61, 3, v63
    v_cndmask_b32 v{ASEL}, 0, v2, {mk[0]}
    v_cndmask_b32 v{ASEL+1}, 0, v2, {mk[1]}
    v_add_u32 v{EAC}, {L_EA - 2*L_SRC}, v61
    s_lshl_b32 s30, s3, 9
    s_sub_u32 s31, s30, 4096
    s_max_i32 s31, s31, 0
    s_add_u32 s30, s30, s31
    s_add_u32 s30, s30, {L_LIST}
    v_lshrrev_b32 v2, 4, v1
    v_lshl_add_u32 v{LP}, v2, 4, s30
    v_bfe_u32 v3, v1, 2, 2
    v_lshl_add_u32 v{LP+1}, v3, 4, s30
    v_lshl_add_u32 v{LP+1}, v2, 2, v{LP+1}
    s_waitcnt lgkmcnt(0)
    v_lshlrev_b32 v60, 16, v64
    v_lshlrev_b32 v61, 16, v65
    v_lshlrev_b32 v62, 16, v66
    v_lshlrev_b32 v63, 16, v67
    v_mul_f32 v60, s40, v60
    v_mul_f32 v61, s40, v61
    v_mul_f32 v62, s40, v62
    v_mul_f32 v63, s40, v63
    v_cvt_pk_bf16_f32 v{CW}, v60, v61
    v_cvt_pk_bf16_f32 v{CW+1}, v62, v63
    """)

def gload(g, o):
    return f"buffer_load_dwordx4 v[{g}:{g+3}], v{o}, s[36:39], 0 offen" + (SC1 if OPT["gsc1"] else "")
def oadd(o):
    return f"v_lshl_add_u64 v[{o}:{o+1}], v[{o}:{o+1}], 0, v[{LN16}:{LN16+1}]"

def pk_steps(Gc, q, first):
    t = T + 4*(q & 1); h = Gc + 4*q
    if first and q == 0:
        return [f"v_pk_add_f32 v[{P+2*p}:{P+2*p+1}], v[{t+2*p}:{t+2*p+1}], 1.0 op_sel_hi:[1,0]" for p in range(2)]
    r = []
    for p in range(2):
        n = f"v[{Gc+2*p}:{Gc+2*p+1}]" if (first and q == 1) else f"v[{N+2*p}:{N+2*p+1}]"
        r.append(f"v_pk_fma_f32 v[{N+2*p}:{N+2*p+1}], {n}, v[{t+2*p}:{t+2*p+1}], {n}")
    for p in range(2):
        r.append(f"v_pk_fma_f32 v[{N+2*p}:{N+2*p+1}], v[{h+2*p}:{h+2*p+1}], v[{P+2*p}:{P+2*p+1}], v[{N+2*p}:{N+2*p+1}]")
    for p in range(2):
        r.append(f"v_pk_fma_f32 v[{P+2*p}:{P+2*p+1}], v[{P+2*p}:{P+2*p+1}], v[{t+2*p}:{t+2*p+1}], v[{P+2*p}:{P+2*p+1}]")
    return r
def exps(Dc, q):
    t = T + 4*(q & 1)
    return [f"v_exp_f32 v{t+s}, v{Dc+4*s+q}" for s in range(4)]
def weave(main, extra):
    for i, x in enumerate(main):
        E(x)
        for y in extra.get(i, []):
            E(y)
def m_a(Dn): return f"v_mfma_f32_32x32x8_bf16 v[{Dn}:{Dn+15}], v[{ASEL}:{ASEL+1}], v[{XA}:{XA+1}], 0"
def m_e(Dn, abid): return f"v_mfma_f32_16x16x4_4b_bf16 v[{Dn}:{Dn+15}], v[{EA}:{EA+1}], v[{CW}:{CW+1}], v[{Dn}:{Dn+15}] cbsz:2 abid:{abid}"
def m_s(Dn, A, g): return f"v_smfmac_f32_32x32x32_bf16 v[{Dn}:{Dn+15}], v[{A}:{A+3}], v[{g}:{g+7}], v{IDX}"

outofline = []
def emit_to(lst, fn):
    global out
    keep = out; out = []
    fn(); lst += out; out = keep
DIST = OPT["dist"]; EARLY = OPT["ldearly"]
assert not (EARLY and DIST == 4)
def phase(u, loads):
    tag = f"{'L' if loads else 'T'}{u}"
    Dc, Dn = ((D0, D1), (D1, D0))[u & 1]
    gc = G + 16*u; gn = G + 16*((u+1) & 3); gl = G + 16*((u+DIST) & 3)
    ld = loads and not OPT["nogather"]
    kw = (u + DIST + EARLY) & 3
    wsgrp = 128 * ((3 - kw + u + DIST + EARLY) // 4 + 1) if kw == 3 else None
    def addloads(ex, pos):
        if loads:
            ex.setdefault(0, []).append(oadd(OFS)); ex.setdefault(2, []).append(oadd(OFS+2))
        if ld:
            for q in range(4): ex.setdefault(pos[q], []).append(gload(gl+4*q, OFS+q))
    E(f"L_{tag}:")
    SL = OPT["slate"]
    if not SL: E(f"s_waitcnt vmcnt({4*(DIST-2)})")
    E(m_a(Dn))
    for x in exps(Dc, 0): E(x)
    E(m_e(Dn, (u+1) & 3) if SL else m_s(Dn, A1, gn))
    for x in exps(Dc, 1): E(x)
    ex = {0: ["s_waitcnt lgkmcnt(0)"], 2: [f"ds_read_b64 v[{XA}:{XA+1}], v{AG + ((u+2) & 3)} offset:512"]}
    if u % 2 == 0:
        p = AG + ((u+2) & 3)
        ex[0].append(f"v_lshl_add_u64 v[{p}:{p+1}], v[{WN2}:{WN2+1}], 0, v[{LN8}:{LN8+1}]")
    if EARLY: addloads(ex, (1, 3, 5, 6))
    elif loads: ex[1] = [f"ds_read_b128 v[{OFS}:{OFS+3}], v{WS4+kw}"]
    if u == 2:
        ex.setdefault(4, []).append(f"v_lshl_add_u32 v{WE}, v{WE}, 1, v{EAC}")
        if SL: ex.setdefault(7, []).append(f"ds_read_b64 v[{EA}:{EA+1}], v{WE}")
    E(f"s_bitcmp1_b32 s{S_M}, 0\ns_cbranch_scc1 L_{tag}f")
    weave(pk_steps(gc, 0, False) + pk_steps(gc, 1, False), ex)
    E(f"L_{tag}r:")
    def first():
        E(f"L_{tag}f:")
        weave(pk_steps(gc, 0, True) + pk_steps(gc, 1, True), ex)
        E(f"s_branch L_{tag}r")
    emit_to(outofline, first)
    if SL:
        if OPT["ptime"]: E(f"s_memrealtime s[28:29]\ns_mov_b32 m0, s{S_R}")
        E(f"s_waitcnt vmcnt({4*(DIST-2) + (4 if (EARLY and loads) else 0) + (2 if SL == 2 else 0)})")
        E(m_s(Dn, A1, gn))
    else:
        E(m_e(Dn, (u+1) & 3))
    for x in exps(Dc, 2): E(x)
    if SL == 2: E(f"s_waitcnt vmcnt({4*(DIST-2) + (4 if (EARLY and loads) else 0)})")
    if OPT["ptime"]: E(f"s_memrealtime s[30:31]")
    E(m_s(Dn, A2, gn+8))
    for x in exps(Dc, 3): E(x)
    ex = {0: ["s_waitcnt lgkmcnt(0)"], 4: [], 6: [], 7: [f"s_sub_u32 s{S_R}, s{S_R}, 1"], 10: [f"s_lshr_b32 s{S_M}, s{S_M}, 1"], 11: [f"s_bitcmp1_b32 s{S_M}, 0"]}
    if OPT["ptime"]: ex[0] += ["v_writelane_b32 v70, s28, m0", "v_writelane_b32 v71, s30, m0"]
    if not EARLY: addloads(ex, (1, 3, 5, 9) if DIST == 4 else ((1, 3, 5, 7), (1, 2, 3, 4), (4, 6, 8, 10), (2, 5, 8, 10))[OPT['lpos']])
    elif loads: ex[1] = [f"ds_read_b128 v[{OFS}:{OFS+3}], v{WS4+kw}"]
    if u == 1:
        ex[4].append(f"ds_read_b64 v[{WN2}:{WN2+1}], v{LP} offset:{128+64}")
        ex[6].append(f"ds_read_b32 v{WE}, v{LP+1} offset:128")
    if u == 2 and not SL:
        ex[4].append(f"ds_read_b64 v[{EA}:{EA+1}], v{WE}")
    if u == 3:
        ex[4].append(f"ds_read_b64 v[{WN2}:{WN2+1}], v{LP} offset:{128+64+8}")
        ex.setdefault(8, []).append(f"v_lshl_add_u64 v[{LP}:{LP+1}], v[{LP}:{LP+1}], 0, s[44:45]")
    if wsgrp and loads: ex[6].append(f"ds_read_b128 v[{WS4}:{WS4+3}], v{LP} offset:{wsgrp}")
    weave(pk_steps(gc, 2, False) + pk_steps(gc, 3, False), ex)
    E(f"s_cbranch_scc1 L_{tag}z\nL_{tag}y:")
    def fin():
        E(f"""
L_{tag}z:
        v_rcp_f32 v{P}, v{P}
        v_rcp_f32 v{P+1}, v{P+1}
        v_rcp_f32 v{P+2}, v{P+2}
        v_rcp_f32 v{P+3}, v{P+3}
        v_pk_mul_f32 v[{N}:{N+1}], v[{N}:{N+1}], v[{P}:{P+1}]
        v_pk_mul_f32 v[{N+2}:{N+3}], v[{N+2}:{N+3}], v[{P+2}:{P+3}]
        """)
        for s_ in range(4):
            E(f"v_cvt_f64_f32 v[{F+2*s_}:{F+2*s_+1}], v{N+s_}")
            if s_: E(f"ds_add_f64 v{AG+u}, v[{F+2*s_-2}:{F+2*s_-1}] offset:{128*(s_-1)}")
        E(f"ds_add_f64 v{AG+u}, v[{F+6}:{F+7}] offset:384")
        E(f"s_branch L_{tag}y")
    emit_to(outofline, fin)
    if OPT["prio"] == 2:
        E(f"s_bitcmp1_b32 s{S_IT}, s{S_R}\ns_cbranch_scc1 L_{tag}q\nL_{tag}p:")
        def pr():
            E(f"""
L_{tag}q:
            s_setprio 0
            s_cmp_le_u32 s{S_R}, {OPT["pc"]}
            s_cbranch_scc1 L_{tag}p
            s_setprio 1
            s_cmp_le_u32 s{S_R}, {OPT["pb"]}
            s_cbranch_scc1 L_{tag}p
            s_setprio 2
            s_branch L_{tag}p
            """)
        emit_to(outofline, pr)
    if u == 3 and OPT["prio"] == 1:
        E(f"""
        s_add_u32 s{S_IT}, s{S_IT}, 1
        s_setprio 0
        s_cmp_gt_u32 s{S_IT}, 2
        s_cbranch_scc1 L_{tag}p
        s_setprio 1
        s_cmp_eq_u32 s{S_IT}, 2
        s_cbranch_scc1 L_{tag}p
        s_setprio 2
L_{tag}p:
        """)
    if loads:
        E(f"s_cmp_le_u32 s{S_R}, {DIST}")
        if u < 3: E(f"s_cbranch_scc1 L_T{u+1}")
        else: E("s_cbranch_scc0 L_L0")
    else:
        E(f"s_waitcnt vmcnt(0)\ns_cmp_eq_u32 s{S_R}, 0")
        if u < 3: E("s_cbranch_scc1 L_mdone")
        else: E("s_cbranch_scc0 L_T0")

E(f"""
; @launch grid=(256,1,1) block=({64*NW},1,1) lds={LDS}
.amdgcn_target "amdgcn-amd-amdhsa--gfx950"
.text
.globl {NAME}
.p2align 8
.type {NAME},@function
{NAME}:
""")
if OPT["stamps"] == 1 and OPT["early"] != 1:
    for i in range(NSTAMP): E(f"s_mov_b64 s[{ST0+2*i}:{ST0+2*i+1}], 0")
STAMP(0)
E(f"""
    s_load_dwordx16 s[4:19], s[0:1], 0
    s_load_dwordx2 s[20:21], s[0:1], 72
""")
if OPT["codepf"]:
    E(f"""
    s_getpc_b64 s[28:29]
L_pc:
    v_lshlrev_b32 v3, 7, v0
    v_cmp_gt_u32 vcc, L_codeend-L_pc-64, v3
    s_cbranch_vccz L_nopf
    s_mov_b64 exec, vcc
    global_load_dword v164, v3, s[28:29]
    s_mov_b64 exec, -1
L_nopf:
    """)
E(f"""
    v_lshrrev_b32 v2, 6, v0
    v_and_b32 v1, 63, v0
    v_readfirstlane_b32 s3, v2
    {"s_bfe_u32 s%d, s2, 0x10002" % S_HALF if OPT["hb"] else "s_and_b32 s%d, s2, 1" % S_HALF}
    {"s_and_b32 s30, s2, 3" if OPT["hb"] else "s_bfe_u32 s30, s2, 0x20001"}
    s_lshl_b32 s30, s30, 5
    s_lshr_b32 s31, s2, 3
    s_add_u32 s{S_BUCK}, s30, s31
    s_cmp_ge_u32 s2, 256
    s_cbranch_scc1 L_end
    s_cmp_ge_u32 s{S_BUCK}, {NBUCK}
    s_cbranch_scc1 L_end
    s_lshl_b32 s{S_P}, s{S_BUCK}, 1
    s_add_u32 s{S_P}, s{S_P}, s{S_HALF}
    s_mov_b32 s{S_SAFE}, 0
L_restart:
    s_cmp_ge_u32 s3, 4
    s_cbranch_scc1 L_nosort
    v_mov_b32 v48, 0
    v_mov_b32 v49, 0
    v_mov_b32 v50, 0
    v_mov_b32 v51, 0
    v_lshlrev_b32 v10, 4, v1
    ds_write_b128 v10, v[48:51] offset:{L_SCNT}
    s_mul_i32 s30, s{S_P}, {CHUNK*4}
    v_lshl_add_u32 v3, v0, 4, s30
    s_add_u32 s30, s30, 4096
    v_lshl_add_u32 v18, v0, 2, s30
    v_lshlrev_b32 v10, 1, v3
    v_lshlrev_b32 v11, 1, v18
    v_mov_b32 v17, {WS_TAG}
    s_waitcnt lgkmcnt(0)
    global_load_dwordx4 v[4:7], v3, s[10:11]{NTE}
    global_load_dword v8, v18, s[10:11]{NTE}
    global_load_dword v43, v17, s[20:21]
""")
def preclear():
    E(f"""
    s_cmp_lg_u32 s{S_SAFE}, 0
    s_cbranch_scc1 L_nopre
    s_mul_i32 s30, s{S_HALF}, {G_HALF}
    s_mul_i32 s31, s{S_BUCK}, {NB*256}
    s_add_u32 s30, s30, s31
    s_add_u32 s30, s30, {4096*(5-OPT["pre"])}
    v_lshl_add_u32 v19, v0, 4, s30
    """)
    for i in range(OPT["pre"]):
        E("global_store_dwordx4 v19, v[48:51], s[20:21] sc1")
        if i + 1 < OPT["pre"]: E("v_add_u32 v19, 4096, v19")
    E("L_nopre:")
if OPT["pre"] and not OPT["prelate"]: preclear()
E(f"""
    {"" if OPT["oneb"] else "s_barrier"}
    s_barrier                               ; B0b
""")
if OPT["pre"] and OPT["prelate"]: preclear()
E(f"""
    s_branch L_sort
L_nosort:
    s_and_b32 s32, s3, 3                    ; tau
    s_lshr_b32 s33, s3, 3
    v_lshrrev_b32 v2, 4, v1                 ; g
    v_and_b32 v4, 15, v1
    s_lshl_b32 s30, s32, 2
    v_add_u32 v6, s30, v2                   ; row&15
    v_xor_b32 v7, v4, v6
    v_lshlrev_b32 v7, 4, v7
    v_lshl_add_u32 v7, v6, 8, v7
    s_mul_i32 s73, s{S_BUCK}, {NB*256}
    s_mul_i32 s31, s33, {3*4096}
    s_add_u32 s30, s73, s31
    v_add_u32 v7, s30, v7
    v_add_u32 v8, 0x1000, v7
    v_add_u32 v9, 0x2000, v7
    s_lshl_b32 s30, s32, 10
    s_add_u32 s31, s31, s30
    s_add_u32 m0, s31, {L_X}
    v_subrev_u32 v30, 256, v0               ; t = 0..511
    v_lshlrev_b32 v31, 4, v30
    v_mov_b32 v36, 0
    v_mov_b32 v37, 0
    v_mov_b32 v38, 0
    v_mov_b32 v39, 0
    v_add_u32 v40, {L_EA}, v31
    ds_write_b128 v40, v[36:39]
    ds_write_b128 v40, v[36:39] offset:8192
""")
if OPT["wpf"]:
    E(f"""
    s_lshr_b32 s30, s2, 3
    s_lshl_b32 s30, s30, 2
    v_add_u32 v3, s30, v1
    v_and_b32 v3, 127, v3
    s_lshl_b32 s30, s{S_HALF}, 7
    s_cmp_eq_u32 s3, 4
    s_cselect_b32 s31, 0x8000, 0
    s_add_u32 s30, s30, s31
    v_lshl_add_u32 v3, v3, 8, s30
    s_waitcnt lgkmcnt(0)
    s_cmp_lg_u32 s33, 0
    s_cbranch_scc1 L_nowpf
    s_cmp_eq_u32 s3, 5
    s_cselect_b32 s34, s14, s16
    s_cselect_b32 s35, s15, s17
    s_cmp_eq_u32 s3, 7
    s_cselect_b32 s34, s12, s34
    s_cselect_b32 s35, s13, s35
    s_mov_b64 exec, 0xffff
    global_load_dword v167, v3, s[34:35]
    s_mov_b64 exec, -1
L_nowpf:
    """)
    if OPT["wpf"] == 2:
        E(f"""
        s_cmp_lg_u32 s3, 8
        s_cbranch_scc1 L_notch
        s_mul_i32 s30, s{S_P}, {CHUNK*4}
        v_mov_b32 v3, s30
        v_lshlrev_b32 v5, 1, v3
        v_lshlrev_b32 v6, 21, v1
        s_mov_b64 exec, 1
        global_load_dword v167, v3, s[8:9]
        global_load_dword v166, v5, s[6:7]
        s_mov_b64 exec, 31
        global_load_dword v165, v6, s[20:21] sc1
        s_mov_b64 exec, 3
        global_load_dword v164, v6, s[18:19] sc1
        s_mov_b64 exec, -1
L_notch:
        """)
E(f"""
    s_waitcnt lgkmcnt(0)
    {"" if OPT["oneb"] else "s_barrier"}
    global_load_lds_dwordx4 v7, s[4:5]{NTX}
    s_add_u32 m0, m0, 0x1000
    s_cmp_lg_u32 s33, 0
    global_load_lds_dwordx4 v8, s[4:5]{NTX}
    s_cbranch_scc1 L_x2
    s_add_u32 m0, m0, 0x1000
    s_nop 0
    global_load_lds_dwordx4 v9, s[4:5]{NTX}
L_x2:
    s_barrier
    v_lshrrev_b32 v5, 3, v1
    v_and_b32 v3, 1, v2
    s_and_b32 s30, s3, 1
    s_lshl_b32 s30, s30, 1
    v_or_b32 v3, s30, v3                    ; sigma
    v_lshlrev_b32 v3, 1, v3
    v_and_b32 v20, 7, v1
    v_xor_b32 v3, v3, v20
    v_lshlrev_b32 v3, 4, v3
    v_lshl_add_u32 v10, v5, 8, v3
    s_sub_u32 s28, s3, 4
    s_lshl_b32 s30, s28, 11
    s_lshl_b32 s31, s{S_HALF}, 7
    s_add_u32 s30, s30, s31
    v_add_u32 v10, s30, v10
    v_add_u32 v11, 0x4000, v10
    s_lshl_b32 s28, s28, 10
    s_add_u32 s34, s16, {128*256}
    s_addc_u32 s35, s17, 0
    s_cmp_lg_u32 s3, 11
    s_cbranch_scc1 L_noc
    v_and_b32 v5, 3, v5
    v_lshlrev_b32 v20, 4, v20
    v_lshl_add_u32 v5, v5, 8, v20
    s_add_u32 s31, s31, {256*256}
    s_mov_b32 m0, {L_C}
    v_add_u32 v5, s31, v5
    global_load_lds_dwordx4 v5, s[16:17]
L_noc:
    s_add_u32 m0, s28, {L_WBV}
""")
for ti, base in enumerate((34, 14)):
    for n in range(2):
        E(f"s_nop 0\nglobal_load_lds_dwordx4 v{10+n}, s[{base}:{base+1}]")
        if not (ti == 1 and n == 1):
            E(f"s_add_u32 m0, m0, 0x2000")
if OPT["wgate"]:
    E(f"""
    v_mov_b32 v7, 0x1000000
    s_mov_b64 exec, 1
    ds_add_u32 v36, v7 offset:{L_CTR}
    s_mov_b64 exec, -1
    """)
STAMP(1)
E(f"""
    v_mov_b32 v32, {NULL_SRC}
    v_mov_b32 v33, v32
    v_mov_b32 v34, v32
    v_mov_b32 v35, v32
""")
def cover(lo, n): return list(range(lo, n - 8192, 8192)) + [n - 8192]
for o in cover(16384, L_EAEND - L_EA): E(f"ds_write_b128 v40, v[36:39] offset:{o}")
for o in cover(0, SRCB): E(f"ds_write_b128 v31, v[32:35] offset:{L_SRC + o}")
E(f"""
    v_and_b32 v32, 3, v30           ; quarter
    v_bfe_u32 v33, v30, 3, 3
    v_lshrrev_b32 v34, 5, v30
    s_and_b32 s30, s3, 3
    s_add_u32 s30, s30, 16
    s_cmp_ge_u32 s3, 8
    s_cselect_b32 s31, 7, 3
    s_cselect_b32 s29, 6, 12
    s_cselect_b64 vcc, -1, 0
    v_and_b32 v33, s31, v33
    v_mov_b32 v35, s30
    v_cndmask_b32 v34, v34, v35, vcc
    v_lshl_add_u32 v32, v34, 2, v32
    v_bfe_u32 v34, v30, 2, 1
    v_mul_u32_u24 v35, {NSTR - SSTR}, v34
    v_mul_u32_u24 v41, {L_NODE - L_SRC}, v34
    v_mul_u32_u24 v42, {L_SRC + 80*SSTR - L_DUM}, v34
    v_lshlrev_b32 v43, 4, v34
    v_add_u32 v35, {SSTR}, v35
    v_add_u32 v41, {L_SRC}, v41
    v_sub_u32 v42, {L_SRC + 80*SSTR}, v42
    v_sub_u32 v43, 16, v43
    v_lshlrev_b32 v33, 2, v33
    v_mad_u32_u24 v41, v32, v35, v41
    v_mad_u32_u24 v41, v33, v43, v41
    v_lshlrev_b32 v35, 5, v35
    v_mul_u32_u24 v34, 6, v43
    v_sub_u32 v35, v35, v34
    v_add_u32 v34, 2, v33
    v_cmp_gt_u32 s[48:49], 6, v33
    v_cmp_gt_u32 s[50:51], 6, v34
    v_cmp_gt_u32 s[52:53], s29, v33
    v_cmp_gt_u32 s[54:55], s29, v34
    v_cndmask_b32 v44, v35, 0, s[48:49]
    v_cndmask_b32 v46, v35, 0, s[50:51]
    v_add_u32 v44, v41, v44
    v_lshl_add_u32 v46, v43, 1, v46
    v_add_u32 v46, v41, v46
    v_add_u32 v45, v44, v43
    v_add_u32 v47, v46, v43
    v_cndmask_b32 v44, v42, v44, s[52:53]
    v_cndmask_b32 v45, v42, v45, s[52:53]
    v_cndmask_b32 v46, v42, v46, s[54:55]
    v_cndmask_b32 v47, v42, v47, s[54:55]
    ds_write_b128 v31, v[44:47] offset:{L_LIST}
    s_cmp_ge_u32 s3, 6
    s_cbranch_scc1 L_pf3
    v_mul_u32_u24 v42, {SSTR}, v30
    v_add_u32 v42, {L_SRC}, v42
    v_lshlrev_b32 v41, 2, v30
    ds_write_b32 v41, v42 offset:{L_CNT}
L_pf3:
    v_bfe_u32 v3, v1, 2, 2                  ; r
    v_lshl_add_u32 v5, v2, 3, v3            ; 8g + r
    v_lshrrev_b32 v3, 1, v3
    v_and_b32 v6, 1, v2
    v_lshl_or_b32 v3, v6, 1, v3             ; sigma
    v_xor_b32 v3, s32, v3
    v_lshlrev_b32 v3, 5, v3
    v_lshl_add_u32 v10, v5, 7, v3
    v_and_b32 v3, 3, v1
    v_lshl_add_u32 v10, v3, 3, v10
    s_mul_i32 s31, s33, {L_WAU - L_WBV}
    s_add_u32 s31, s31, {L_WBV}
    v_add_u32 v10, s31, v10
    v_xor_b32 v3, v2, v4
    v_lshlrev_b32 v3, 4, v3
    v_lshl_add_u32 v12, v4, 8, v3
    v_add_u32 v12, {L_X}, v12
    v_xor_b32 v13, 64, v12
    v_xor_b32 v14, 0x80, v12
    v_xor_b32 v15, 0xc0, v12
    s_mul_i32 s30, s{S_HALF}, {G_HALF}
    s_add_u32 s30, s30, s73
    s_lshl_b32 s31, s32, 6
    s_add_u32 s30, s30, s31
    v_lshlrev_b32 v11, 10, v2
    v_lshl_add_u32 v11, v4, 2, v11
    v_add_u32 v11, s30, v11
    s_lshl_b32 s31, s32, 5
    s_add_u32 s31, s31, {L_NODE}
    v_mul_u32_u24 v16, {NSTR}, v4
    v_lshl_add_u32 v16, v2, 3, v16
    v_add_u32 v16, s31, v16
    s_mov_b32 s40, {f32(-LOG2E)}
    s_mov_b32 s42, {f32(2.0**32)}
    s_mov_b32 s44, 0x07060100
    s_mov_b32 s45, 0x07060302
    s_mov_b32 s46, 0x3f80
    v_mov_b32 v17, {f32(2.0**-100)}
    v_mov_b32 v19, 1
    v_mov_b32 v18, 0
""")
get_tag("g", 160)
E(f"""
    s_waitcnt vmcnt(0)
    s_mov_b64 exec, 1
    ds_add_u32 v18, v19 offset:{L_CTR}
    s_mov_b64 exec, -1
""")
STAMP(2)
lds_wait(L_CTR, 0xff, 8, "g1")
STAMP(3)
NP = 8
RA = 72; RB = RA + 4*NP; RAD = RB + 4*NP
J3N, J12, J3N2, CELL, ROWA, FOUR, L0M, ACC, ENT, CAD = 156, 157, 158, 159, 160, 161, 162, 163, 164, 166
def rec_setup():
    E(f"""
    v_and_b32 v3, 15, v1                    ; j
    v_lshrrev_b32 v2, 4, v1
    v_lshl_add_u32 v{CELL}, v2, 3, v3
    s_lshl_b32 s30, s29, 5
    v_add_u32 v{CELL}, s30, v{CELL}
    s_lshl_b32 s30, s{S_BUCK}, 3
    s_add_u32 s30, s30, {WS_ROW}
    v_lshl_add_u32 v{ROWA}, v{CELL}, 10, s30
    v_cmp_gt_u32 s[66:67], {NP}, v3
    v_cmp_gt_u32 vcc, {NCHUNK}, v{CELL}
    v_mov_b32 v{ENT}, 0
    s_and_b64 s[66:67], s[66:67], vcc
    s_mov_b64 exec, s[66:67]
    global_load_dwordx2 v[{ENT}:{ENT+1}], v{ROWA}, s[20:21] sc1
    s_mov_b64 exec, -1
    v_mul_u32_u24 v{CELL}, {SORTB//4}, v{CELL}
    v_add_u32 v{CELL}, {WS_REC//4}, v{CELL}
    v_mul_u32_u24 v{J12}, 12, v3
    v_mul_u32_u24 v{J3N}, 3, v3
    v_not_b32 v{J3N}, v{J3N}
    v_subrev_u32 v{J3N2}, 48, v{J3N}
    v_subrev_u32 v{L0M}, 1, v3
    v_ashrrev_i32 v{L0M}, 31, v{L0M}
    v_mov_b32 v{FOUR}, 4
    """)
WF = 20; XF = 52; AC = 132
def wreads(ks):
    for t in range(2):
        for rd in range(2):
            r = WF + 16*t + 4*ks + 2*rd
            E(f"ds_read_b64_tr_b16 v[{r}:{r+1}], v10 offset:{t*16384 + ks*4096 + rd*512}")
def xread(rt, ks):
    r = XF + 16*rt + 4*ks
    return f"ds_read_b128 v[{r}:{r+3}], v{12+ks} offset:{rt*4096}"
def mf(rt, ks, transposed):
    for t in range(2):
        a = XF + 16*rt + 4*ks; w = WF + 16*t + 4*ks; d = AC + 8*(rt % 3) + 4*t
        c = "0" if ks == 0 else f"v[{d}:{d+3}]"
        if transposed: a, w = w, a
        E(f"v_mfma_f32_16x16x32_bf16 v[{d}:{d+3}], v[{a}:{a+3}], v[{w}:{w+3}], {c}")
def gemm(transposed, finish, before_first):
    for ks in range(3):
        E(xread(0, ks)); wreads(ks)
    E("s_waitcnt lgkmcnt(10)"); mf(0, 0, transposed)
    E(xread(0, 3)); wreads(3)
    E("s_waitcnt lgkmcnt(10)"); mf(0, 1, transposed)
    for ks in range(4): E(xread(1, ks))
    E("s_waitcnt lgkmcnt(9)"); mf(0, 2, transposed)
    for ks in range(4): E(xread(2, ks))
    E("s_waitcnt lgkmcnt(8)"); mf(0, 3, transposed)
    for ks in range(4): E(xread(3, ks))
    E("s_waitcnt lgkmcnt(8)")
    for ks in range(4):
        mf(1, ks, transposed); E(xread(4, ks))
    E(f"""
    s_mov_b64 exec, 1
    ds_add_u32 v18, v19 offset:{L_RD}
    s_mov_b64 exec, -1
    """)
    before_first()
    finish(0)
    E("s_waitcnt lgkmcnt(0)")
    for rt in range(2, 5):
        for ks in range(4): mf(rt, ks, transposed)
        finish(rt-1)
    finish(4)
def pack(rt):
    b = AC + 8*(rt % 3); h = b + 4
    for r in range(4): E(f"v_mul_f32 v{b+r}, s40, v{b+r}")
    for r in range(4): E(f"v_fma_f32 v{h+r}, v{h+r}, s42, v17")
    E(f"""
    v_cvt_pk_bf16_f32 v4, v{b}, v{b+1}
    v_cvt_pk_bf16_f32 v5, v{b+2}, v{b+3}
    v_xor_b32 v2, 0x80008000, v4
    v_xor_b32 v3, 0x80008000, v5
    v_sub_u32_sdwa v{h}, v{h}, sext(v2) dst_sel:DWORD dst_unused:UNUSED_PAD src0_sel:DWORD src1_sel:WORD_0
    v_sub_u32_sdwa v{h+1}, v{h+1}, sext(v2) dst_sel:DWORD dst_unused:UNUSED_PAD src0_sel:DWORD src1_sel:WORD_1
    v_sub_u32_sdwa v{h+2}, v{h+2}, sext(v3) dst_sel:DWORD dst_unused:UNUSED_PAD src0_sel:DWORD src1_sel:WORD_0
    v_sub_u32_sdwa v{h+3}, v{h+3}, sext(v3) dst_sel:DWORD dst_unused:UNUSED_PAD src0_sel:DWORD src1_sel:WORD_1
    """)
    w = (OPT["gp"] >> (4*(4-rt))) & 15 if OPT["gp"] else OPT["gpace"]
    if 0 <= w < 4*rt: E(f"s_waitcnt vmcnt({w})")
    if OPT["pre"] and rt == 5 - OPT["pre"]: lds_wait(L_SCNT + 126*4, 0xff, 4, "pre")
    if OPT["ghold"] == rt + 1:
        E("v_mov_b32 v6, v2\nv_mov_b32 v7, v3"); lds_wait(L_CTR, 0xff00, 0x400, "gh", sleep=1); E("v_mov_b32 v2, v6\nv_mov_b32 v3, v7")
    for r in range(4):
        E(f"v_perm_b32 v{h+r}, v{h+r}, v{4 + (r>>1)}, s{44 + (r&1)}")
        if OPT["gwin"] >= 0: E(f"s_waitcnt vmcnt({OPT['gwin']})")
        E(f"global_store_dword v11, v{h+r}, s[20:21] offset:{256*r} sc1")
    if rt < 4: E("v_add_u32 v11, 0x1000, v11")
def fin(rt):
    a = AC + 8*(rt % 3); u = a + 4
    for r in range(4): E(f"v_mul_f32 v{a+r}, s40, v{a+r}")
    for r in range(4): E(f"v_mul_f32 v{u+r}, s42, v{u+r}")
    E(f"""
    v_cvt_pk_bf16_f32 v{a}, v{a}, v{a+1}
    v_cvt_pk_bf16_f32 v{a+1}, v{a+2}, v{a+3}
    v_cvt_f64_f32 v[2:3], v{u}
    v_cvt_f64_f32 v[4:5], v{u+1}
    v_cvt_f64_f32 v[6:7], v{u+2}
    v_cvt_f64_f32 v[8:9], v{u+3}
    ds_write_b64 v16, v[{a}:{a+1}] offset:512
    ds_write2_b64 v16, v[2:3], v[4:5] offset0:0 offset1:16
    ds_write2_b64 v16, v[6:7], v[8:9] offset0:32 offset1:48
    """)
    if rt < 4: E(f"v_add_u32 v16, {16*NSTR}, v16")
E(f"""
    s_cmp_lg_u32 s33, 0
    s_cbranch_scc1 L_gemm2
    s_cmp_lg_u32 s{S_SAFE}, 0
    s_cbranch_scc1 L_nog1
    s_setprio 2
""")
gemm(False, pack, lambda: lds_wait(L_CTR, {1: 0x80000, 2: 0xc0000}[OPT["hold"]], 0, "hold", sleep=1, ne=True) if OPT["hold"] else None)
E("s_setprio 0")
if OPT["gate"] or OPT["gate2"] >= 3:
    E(f"""
    s_mov_b64 exec, 1
    ds_add_u32 v18, v19 offset:{L_GST}
    s_mov_b64 exec, -1
    """)
STAMP(4)
main_consts()
E(f"""
    s_lshl_b32 s30, s{S_P}, 7
    s_add_u32 s30, s30, {WS_FL2}
    v_mov_b32 v60, s30
    v_mov_b32 v62, s{S_TAG}
    v_mov_b32 v63, s{S_TAG+1}
    v_mov_b32 v2, 0
    v_mov_b32 v3, 1
    s_lshl_b32 s30, s32, 13
    s_lshl_b32 s31, s{S_HALF}, 7
    s_add_u32 s30, s30, s31
    s_add_u32 s30, s30, {WS_FL2}
    v_lshl_add_u32 v64, v1, 8, s30
    s_mul_i32 s30, s32, {2560*256}
    s_lshr_b32 s31, s2, 3
    s_mul_i32 s31, s31, {160*128}
    s_add_u32 s30, s30, s31
    v_lshl_add_u32 v65, v1, 7, s30
    {'' if OPT['gpe'] else 'v_min_u32 v65, %d, v65' % (G_HALF - 128)}
    s_mul_i32 s30, s{S_HALF}, {G_HALF}
    v_add_u32 v65, s30, v65
    s_mov_b64 exec, 1
    s_waitcnt vmcnt(0)
    ds_add_rtn_u32 v61, v2, v3 offset:{L_DONE2}
    s_waitcnt lgkmcnt(0)
    v_readfirstlane_b32 s30, v61
    s_cmp_lg_u32 s30, 3
    s_cbranch_scc1 L_nofl
    global_store_dwordx2 v60, v[62:63], s[20:21] sc1
    ds_add_u32 v2, v3 offset:{L_DONE2}
L_nofl:
""")
STAMP(5)
if OPT["p2gate"]:
    E("s_mov_b64 exec, -1")
    lds_wait(L_CTR, 0xff0000, 0x080000, "pg", sleep=1)
    E("s_mov_b32 exec_hi, 0")
if OPT["p2wait"]: E(f"s_sleep {OPT['p2wait']}")
STAMP(6)
def gready(lab):
    if OPT["gpe"]: E(f"s_cmp_lg_u32 s73, 0\ns_cbranch_scc1 L_gr{lab}")
    if OPT["gpf"]:
        E(f"""
        {"s_bfm_b64 exec, %d, 0" % OPT["gpf"] if OPT["gpf"] < 64 else "s_mov_b64 exec, -1"}
        global_load_dword v35, v65, s[20:21] sc1
        """)
    E(f"""
L_gr{lab}:
    s_mov_b64 exec, 1
    v_mov_b32 v2, 0
    v_mov_b32 v3, 1
    ds_add_u32 v2, v3 offset:{L_GOK}
    """)
E(f"""
    s_cmp_eq_u32 s32, 3
    s_cselect_b32 exec_lo, 0x1fffffff, -1
    {"" if OPT["p1st"] else "s_mov_b64 s[66:67], exec"}
    {"" if OPT["p1st"] else "s_branch L_p2n"}
    global_load_dwordx2 v[66:67], v64, s[20:21] sc1
    s_waitcnt vmcnt(0)
    v_cmp_ne_u64 s[66:67], s[{S_TAG}:{S_TAG+1}], v[66:67]
""")
if OPT["gpe"]:
    n = OPT["gpe"]
    E(f"""
    s_mov_b32 s73, 0
    s_lshr_b32 s30, s2, 3
    s_bitcmp1_b32 s66, s30
    s_cbranch_scc1 L_nogpe
    s_mov_b32 s73, 1
    s_bitcmp1_b32 exec_lo, s30
    s_cbranch_scc0 L_nogpe
    """)
    for k in range(0, n, 64):
        E("s_mov_b64 exec, -1")
        if k: E(f"v_add_u32 v65, 8192, v65")
        if n - k < 64: E(f"s_bfm_b64 exec, {n-k}, 0")
        E(f"global_load_dword v{(35, 68, 69)[k//64]}, v65, s[20:21] sc1")
    E("L_nogpe:")
E(f"""
    s_cmp_lg_u64 s[66:67], 0
    s_cbranch_scc1 L_p2n
""")
gready("a")
E("L_p2n:\ns_mov_b64 exec, -1")
STAMP(7)
E(f"""
    s_branch L_b4
L_nog1:
    s_mov_b64 exec, 1
    ds_add_u32 v18, v19 offset:{L_RD}
    s_mov_b64 exec, -1
    s_branch L_rec
L_gemm2:
""")
E(f"""
    v_lshrrev_b32 v5, 3, v1
    v_bfe_u32 v3, v1, 4, 1
    v_lshlrev_b32 v3, 1, v3
    v_and_b32 v4, 7, v1
    v_xor_b32 v3, v3, v4
    v_lshlrev_b32 v3, 4, v3
    v_lshl_add_u32 v6, v5, 8, v3
    s_lshl_b32 s30, s{S_HALF}, 7
    s_and_b32 s31, s3, 1
    s_lshl_b32 s31, s31, 14
    s_add_u32 s30, s30, s31
    v_add_u32 v6, s30, v6
    v_xor_b32 v7, 64, v6
    v_add_u32 v8, 2048, v6
    v_add_u32 v9, 3072, v7
    v_add_u32 v7, 1024, v7
    s_lshl_b32 s30, s32, 13
    s_add_u32 m0, s30, {L_WAU}
    s_cmp_lt_u32 s32, 2
    s_cselect_b32 s34, s16, s12
    s_cselect_b32 s35, s17, s13
    global_load_lds_dwordx4 v6, s[34:35]
    global_load_lds_dwordx4 v7, s[34:35] offset:1024
    global_load_lds_dwordx4 v8, s[34:35] offset:2048
    global_load_lds_dwordx4 v9, s[34:35] offset:3072
    s_add_u32 m0, m0, 4096
    s_add_u32 s34, s34, 8192
    s_addc_u32 s35, s35, 0
    global_load_lds_dwordx4 v6, s[34:35]
    global_load_lds_dwordx4 v7, s[34:35] offset:1024
    global_load_lds_dwordx4 v8, s[34:35] offset:2048
    global_load_lds_dwordx4 v9, s[34:35] offset:3072
""")
for rt in range(5):
    for ks in range(4): E(xread(rt, ks))
E(f"""
    s_mov_b64 exec, 1
    ds_add_u32 v18, v19 offset:{L_RD}
    s_mov_b64 exec, -1
""")
E(f"""
    s_mov_b64 exec, 1
    s_waitcnt vmcnt(0)
    ds_add_u32 v18, v19 offset:{L_RD}
    s_mov_b64 exec, -1
    s_sub_u32 s29, s3, 4
""")
rec_setup()
lds_wait(L_RD, 0xff, 12, "rd")
for ks in range(4): wreads(ks)
for ks in range(4):
    E(f"s_waitcnt lgkmcnt({12 - 4*ks})"); mf(0, ks, True)
for rt in range(1, 5):
    for ks in range(4): mf(rt, ks, True)
    fin(rt-1)
fin(4)
STAMP(4)
E(f"""
    s_branch L_rec
L_sort:
""")
STAMP(1)
E(f"""
    s_mov_b32 s40, {f32(-LOG2E)}
    s_mov_b32 s46, 0x3f80
    s_cmp_lg_u32 s{S_SAFE}, 0
    s_cbranch_scc1 L_sortskip
    v_mov_b32 v21, 1
    v_mov_b32 v20, 3
    s_mov_b32 s31, 52429
    s_movk_i32 s32, -20
    v_lshlrev_b32 v9, 3, v1
    v_lshlrev_b32 v33, 4, v0
    s_mul_i32 s30, s{S_P}, {SORTB}
    s_add_u32 s30, s30, {WS_REC + 4096}
    v_add_u32 v32, s30, v33
    v_add_u32 v34, 8192, v32
    s_lshl_b32 s30, s{S_P}, 10
    s_add_u32 s30, s30, {WS_ROW}
    v_lshl_add_u32 v42, v1, 4, s30
    s_mov_b32 s34, {POLL_MAX}
    s_setprio 3
    s_waitcnt vmcnt({1 + OPT['pre']})
""")
STAMP(2)
FSTAMP(1)
for i in range(5):
    E(f"""
    v_mul_u32_u24 v{22+i}, s31, v{4+i}
    v_lshrrev_b32 v{22+i}, 22, v{22+i}
    v_lshlrev_b32 v{22+i}, 2, v{22+i}        ; bucket*4
    ds_add_rtn_u32 v{27+i}, v{22+i}, v20 offset:{L_SCNT}
    """)
E(f"""
    s_mov_b64 exec, 1
    s_cmp_lg_u32 s3, 0
    s_cbranch_scc1 L_notag
    s_waitcnt vmcnt({OPT['pre']})
    ds_write_b32 v48, v43 offset:{L_SCNT + 125*4}
L_notag:
    ds_add_u32 v48, v21 offset:{L_SCNT + 127*4}
    s_mov_b64 exec, -1
""")
if OPT["ewhen"] == 1: E(f"""
    global_load_dwordx4 v[12:15], v3, s[8:9]{NTE}
    global_load_dword v16, v18, s[8:9]{NTE}
    global_load_dwordx4 v[52:55], v10, s[6:7]{NTE}
    global_load_dwordx4 v[56:59], v10, s[6:7] offset:16{NTE}
    global_load_dwordx2 v[60:61], v11, s[6:7]{NTE}
""")
E(f"""
L_s1:
    ds_read_b32 v38, v48 offset:{L_SCNT + 127*4}
    ds_read_b64 v[36:37], v9 offset:{L_SCNT}
    s_sub_u32 s34, s34, 1
    s_cbranch_scc1 L_s1d
    s_waitcnt lgkmcnt(0)
    v_readfirstlane_b32 s30, v38
    s_cmp_lg_u32 s30, 4
    s_cbranch_scc1 L_s1
L_s1d:
""")
FSTAMP(2)
E(f"""
    v_add3_u32 v39, v36, v37, 2
    v_add3_u32 v38, v36, v37, 2
    v_readlane_b32 s{S_TAGRAW}, v37, 62
""")
fill = []
for i in range(5):
    fill += [f"v_mad_i32_i24 v{4+i}, v{22+i}, s32, v{4+i}", f"v_lshlrev_b32 v{4+i}, 24, v{4+i}"]
for k, m in enumerate(SCAN):
    E(f"v_add_u32_dpp v39, v39, v39 {m}")
    for x in fill[2*k:2*k+2]: E(x)
E(f"""
    v_sub_u32 v40, v39, v38
    v_add3_u32 v41, v40, v36, 1
    s_mov_b32 s30, {L_SORT}
    v_lshl_add_u32 v38, v40, 2, s30
    v_lshl_add_u32 v39, v41, 2, s30
    ds_write_b64 v9, v[38:39] offset:{L_SOFF}
""")
for i in range(5):
    E(f"ds_read_b32 v{22+i}, v{22+i} offset:{L_SOFF}")
finish_tag()
E(f"""
    s_cmp_lg_u32 s3, 0
    s_cbranch_scc1 L_nopub
    s_and_b32 s35, s{S_TAG+1}, 0xff000000
    v_mov_b32 v45, s{S_TAG}
    v_mov_b32 v47, s{S_TAG}
    v_lshl_or_b32 v44, v36, 12, v40
    v_lshl_or_b32 v46, v37, 12, v41
    v_or_b32 v44, s35, v44
    v_or_b32 v46, s35, v46
    global_store_dwordx4 v42, v[44:47], s[20:21] sc1
    {"s_waitcnt vmcnt(1)" if OPT["ewhen"] == 1 else ""}
    s_branch {"L_pub" if OPT["ewhen"] == 1 else "L_nochk"}
L_nopub:
    s_cmp_lg_u32 s3, 1
    s_cbranch_scc1 L_nochk
    v_mov_b32 v44, s{S_TAG+1}
    s_mov_b32 exec_hi, 0x7fffffff
    ds_add_u32 v38, v44
    ds_add_u32 v39, v44
    s_mov_b32 exec_hi, -1
L_nochk:
""")
if OPT["ewhen"] == 2: E(f"""
    global_load_dwordx4 v[12:15], v3, s[8:9]{NTE}
    global_load_dword v16, v18, s[8:9]{NTE}
    global_load_dwordx4 v[52:55], v10, s[6:7]{NTE}
    global_load_dwordx4 v[56:59], v10, s[6:7] offset:16{NTE}
    global_load_dwordx2 v[60:61], v11, s[6:7]{NTE}
""")
E(f"""
    s_waitcnt vmcnt(0)
L_pub:
""")
STAMP(4)
FSTAMP(3)
for i in range(5): E(f"v_lshl_or_b32 v{4+i}, v{12+i}, 8, v{4+i}")
E("s_waitcnt lgkmcnt(0)")
for i in range(5):
    E(f"""
    v_lshl_add_u32 v{27+i}, v{27+i}, 2, v{22+i}
    v_add3_u32 v{12+i}, v{52+2*i}, v{53+2*i}, v{4+i}
    ds_write2_b32 v{27+i}, v{52+2*i}, v{53+2*i} offset0:2 offset1:3
    ds_write_b32 v{27+i}, v{4+i} offset:4
    ds_sub_u32 v{22+i}, v{12+i}
    """)
E(f"""
    s_mov_b64 exec, 1
    ds_add_u32 v48, v21 offset:{L_SCNT + 126*4}
    s_mov_b64 exec, -1
""")
FSTAMP(4)
E(f"""
    s_mov_b32 s34, {POLL_MAX}
L_s2:
    ds_read_b32 v38, v48 offset:{L_SCNT + 126*4}
    {f"ds_read_b32 v39, v48 offset:{L_CTR}" if OPT["wgate"] else ""}
    ds_read_b128 v[72:75], v33 offset:{L_SORT}
    s_sub_u32 s34, s34, 1
    s_cbranch_scc1 L_s2d
    s_waitcnt lgkmcnt(1)
    v_readfirstlane_b32 s30, v38
""")
if OPT["wgate"]:
    E(f"""
    v_readfirstlane_b32 s31, v39
    s_lshr_b32 s31, s31, 24
    s_add_u32 s30, s30, s31
    """)
E(f"""
    s_cmp_lg_u32 s30, {12 if OPT["wgate"] else 4}
    s_cbranch_scc1 L_s2
L_s2d:
""")
FSTAMP(5)
E(f"""
    ds_read_b128 v[76:79], v33 offset:{L_SORT + 4096}
    ds_read_b128 v[80:83], v33 offset:{L_SORT + 8192}
    ds_read_b128 v[84:87], v33 offset:{L_SORT + 12288}
    s_waitcnt lgkmcnt(3)
    global_store_dwordx4 v32, v[72:75], s[20:21] offset:-4096 sc1
    s_waitcnt lgkmcnt(2)
    global_store_dwordx4 v32, v[76:79], s[20:21] sc1
    s_waitcnt lgkmcnt(1){f" vmcnt({OPT['rpace']})" if OPT['rpace'] >= 0 else ""}
    global_store_dwordx4 v34, v[80:83], s[20:21] offset:-4096 sc1
    s_cmp_eq_u32 s3, 3
    s_cselect_b32 exec_hi, 0, -1
    s_waitcnt lgkmcnt(0){f" vmcnt({OPT['rpace']})" if OPT['rpace'] >= 0 else ""}
    global_store_dwordx4 v34, v[84:87], s[20:21] sc1
    s_mov_b32 exec_hi, -1
""")
FSTAMP(6)
for k in range(4): E(f"ds_write_b128 v33, v[48:51] offset:{L_SORT + 4096*k}")
STAMP(3)
FSTAMP(7)
E(f"""
    s_branch L_sortdone
L_sortskip:
    s_waitcnt vmcnt(0)
L_sortdone:
    s_mov_b32 s29, s3
""")
rec_setup()
E(f"""
L_rec:
""")
lds_wait(L_CTR, 0xff, 8, "r0")
main_consts()
STAMP(5)
E(f"""
    s_cmp_ge_u32 s3, 4
    s_cbranch_scc1 L_nod2
    v_mov_b32 v2, 0
    v_mov_b32 v3, 0x100
    s_mov_b64 exec, 1
    s_waitcnt vmcnt(0)
    ds_add_u32 v2, v3 offset:{L_CTR}
    s_mov_b64 exec, -1
L_nod2:
    s_cmp_lg_u32 s{S_SAFE}, 0
    s_cbranch_scc1 L_recskip
    s_lshr_b32 s35, s{S_TAG+1}, 24
    s_mov_b64 exec, s[66:67]
    s_mov_b32 s34, {POLL_MAX}
    s_branch L_p1c
L_p1:
    global_load_dwordx2 v[{ENT}:{ENT+1}], v{ROWA}, s[20:21] sc1
L_p1c:
    s_sub_u32 s34, s34, 1
    s_cbranch_scc1 L_toobig
    s_waitcnt vmcnt(0)
    v_cmp_ne_u32 vcc, s{S_TAG}, v{ENT+1}
    v_cmp_ne_u32_sdwa s[48:49], v{ENT}, s35 src0_sel:BYTE_3 src1_sel:DWORD
    s_or_b64 exec, vcc, s[48:49]
    s_cbranch_scc1 L_p1
    s_mov_b64 exec, -1
""")
STAMP(6)
if OPT["cnt"]: E(f"s_sub_u32 s{ST0+2}, {POLL_MAX+1}, s34\ns_mov_b32 s34, {POLL_MAX}")
E(f"""
    v_and_b32 v{CAD}, 0xfff, v{ENT}
    v_bfe_u32 v{ENT}, v{ENT}, 12, 12            ; 3*count
    v_add_lshl_u32 v{CAD}, v{CAD}, v{CELL}, 2
    v_cmp_ne_u32 vcc, 0, v{ENT}
    s_sub_u32 s30, 0, s{S_TAG+1}
    v_mov_b32 v2, s30
    v_cndmask_b32 v{ENT+1}, 0, v2, vcc
    v_cmp_lt_u32 vcc, 96, v{ENT}
    v_cmp_lt_u32 s[68:69], 48, v{ENT}
    s_cbranch_vccnz L_toobig
""")
for p in range(NP):
    E(f"""
    v_add_co_u32_dpp v2, vcc, v{ENT}, v{J3N} row_newbcast:{p} row_mask:0xf bank_mask:0xf
    v_add_u32_dpp v{RAD+p}, v{CAD}, v{J12} row_newbcast:{p} row_mask:0xf bank_mask:0xf
    s_mov_b64 s[{48+2*p}:{49+2*p}], vcc
    """)
lds_wait(L_CTR, 0xff00, 0x400, "r1")
if OPT["gate"]: lds_wait(L_GST, 0xff, 4, "gt")
if OPT["gate2"] == 1:
    E("s_cmp_lt_u32 s3, 4\ns_cbranch_scc1 L_wd_g2")
    lds_wait(L_DONE2, 0xff, 5, "g2")
if OPT["gate2"] == 3:
    E("s_cmp_lt_u32 s3, 4\ns_cbranch_scc1 L_wd_g2")
    lds_wait(L_GST, 0xff, 4, "g2")
if OPT["gate2"] in (2, 4):
    E(f"""
    s_cmp_lt_u32 s3, 4
    s_cbranch_scc1 L_g2d
    s_mov_b32 s31, {POLL_MAX}
L_g2:
    ds_read_b128 v[60:63], v2 offset:{L_CTR}
    {f"ds_read_b32 v61, v2 offset:{L_GST}" if OPT["gate2"] == 4 else ""}
    s_sub_u32 s31, s31, 1
    s_cbranch_scc1 L_g2d
    s_waitcnt lgkmcnt(0)
    v_readfirstlane_b32 s30, v62
    v_readfirstlane_b32 s28, v60
    v_readfirstlane_b32 s29, v61
    s_cmp_eq_u32 s30, 5
    s_cbranch_scc1 L_g2d
    {"s_cmp_lg_u32 s29, 4" if OPT["gate2"] == 4 else ""}
    {"s_cbranch_scc1 L_g2" if OPT["gate2"] == 4 else ""}
    s_and_b32 s28, s28, 0xc0000
    s_cbranch_scc0 L_g2
L_g2d:
    """)
E(f"""
    s_or_b32 s68, s68, s69
    s_lshr_b32 s69, s68, 16
    s_or_b32 s68, s68, s69
""")
def mask2(p): return f"v_add_co_u32_dpp v2, vcc, v{ENT}, v{J3N2} row_newbcast:{p} row_mask:0xf bank_mask:0xf"
def loads(ps, lab):
    E(f"s_and_b32 s30, s68, {sum(1 << p for p in ps)}\ns_cbranch_scc0 L_nx{lab}")
    for p in ps:
        r = RB + 4*p
        E(f"""
        s_bitcmp1_b32 s68, {p}
        s_cbranch_scc0 L_nx{lab}{p}
        {mask2(p)}
        s_mov_b64 exec, vcc
        global_load_dwordx4 v[{r}:{r+3}], v{RAD+p}, s[20:21] offset:192 sc1
        s_mov_b64 exec, -1
L_nx{lab}{p}:
        """)
    E(f"L_nx{lab}:")
    for p in ps:
        r = RA + 4*p
        E(f"""
        s_mov_b64 exec, s[{48+2*p}:{49+2*p}]
        global_load_dwordx4 v[{r}:{r+3}], v{RAD+p}, s[20:21]{SC1 if (OPT["rsc1"] or lab != "m") else ""}
        """)
    E("s_mov_b64 exec, -1")
loads(range(NP), "m")
def issued():
    if OPT["p2gate"]:
        E(f"""
        v_mov_b32 v2, 0
        v_mov_b32 v3, 0x10000
        s_mov_b64 exec, 1
        ds_add_u32 v2, v3 offset:{L_CTR}
        s_mov_b64 exec, -1
        """)
if not OPT["sig"]: issued()
STAMP(7)
def rank(r, m):
    E(f"""
    s_mov_b64 exec, {m}
    v_mul_u32_u24_sdwa v{r}, v{FOUR}, v{r+1} dst_sel:DWORD dst_unused:UNUSED_PAD src0_sel:DWORD src1_sel:BYTE_3
    v_and_b32 v{r+1}, {OPT['srcmask']}, v{r+1}
    ds_add_rtn_u32 v{r}, v{r}, v{FOUR} offset:{L_CNT}
    """)
def put(r, m):
    E(f"""
    s_mov_b64 exec, {m}
    v_lshlrev_b32 v2, 1, v{r}
    ds_write_b32 v{r}, v{r+1}
    ds_write_b64 v2, v[{r+2}:{r+3}] offset:{L_EA - 2*L_SRC}
    """)
retries = []
pending = []
for gi, grp in enumerate(((0, 1, 2, 3), (4, 5), (6, 7))):
    bits = sum(1 << p for p in grp); m32 = bits | (bits << 16)
    E(f"""
L_ck{gi}:
    s_mov_b32 vcc_lo, {m32}
    s_mov_b32 vcc_hi, {m32}
    v_cndmask_b32 v{ACC}, 0, v{ENT+1}, vcc
    s_and_b32 s30, s68, {bits}
    s_cbranch_scc1 L_xa{gi}
L_xb{gi}:
    """)
    def xacc():
        E(f"L_xa{gi}:\ns_waitcnt vmcnt({NP})")
        for p in grp:
            r = RB + 4*p
            E(f"""
            {mask2(p)}
            s_mov_b64 exec, vcc
            v_add3_u32 v{ACC}, v{ACC}, v{r+1}, v{r+2}
            v_add_u32 v{ACC}, v{ACC}, v{r+3}
            s_mov_b64 exec, -1
            """)
        E(f"s_branch L_xb{gi}")
    emit_to(outofline, xacc)
    for p in grp:
        r = RA + 4*p
        E(f"""
        s_waitcnt vmcnt({NP-1-p})
        s_mov_b64 exec, s[{48+2*p}:{49+2*p}]
        v_and_b32 v{r}, v{r}, v{L0M}
        v_add3_u32 v{ACC}, v{ACC}, v{r+2}, v{r+3}
        v_add3_u32 v{ACC}, v{ACC}, v{r}, v{r+1}
        """)
    E("s_mov_b64 exec, -1\ns_nop 0")
    for k in (1, 2, 4, 8):
        E(f"v_add_u32_dpp v{ACC}, v{ACC}, v{ACC} row_ror:{k} row_mask:0xf bank_mask:0xf")
        if k < 8: E("s_nop 1")
    E(f"v_cmp_ne_u32 vcc, 0, v{ACC}\ns_cbranch_vccnz L_rt{gi}")
    if OPT["rst"]: STAMP(1+gi)
    if OPT["sig"] == gi + 1: issued()
    def retry():
        E(f"L_rt{gi}:\ns_sub_u32 s34, s34, 1\ns_cbranch_scc1 {'L_toobig' if gi < OPT['sig'] else 'L_giveup'}")
        loads(grp, f"r{gi}_")
        E(f"s_waitcnt vmcnt(0)\ns_branch L_ck{gi}")
    emit_to(outofline, retry)
    for p in grp: rank(RA + 4*p, f"s[{48+2*p}:{49+2*p}]")
    E(f"s_and_b32 s30, s68, {bits}\ns_cbranch_scc1 L_ya{gi}\nL_yb{gi}:")
    def xput():
        E(f"L_ya{gi}:")
        for p in grp:
            r = RB + 4*p
            E(f"""
            s_bitcmp1_b32 s68, {p}
            s_cbranch_scc0 L_yn{p}
            s_mov_b64 exec, -1
            {mask2(p)}
            """)
            rank(r, "vcc")
            E("s_waitcnt lgkmcnt(0)")
            put(r, "vcc")
            E(f"L_yn{p}:")
        E(f"s_branch L_yb{gi}")
    emit_to(outofline, xput)
    for k, p in enumerate(grp):
        E(f"s_waitcnt lgkmcnt({len(grp) - 1 - k + 2*k})")
        put(RA + 4*p, f"s[{48+2*p}:{49+2*p}]")
    E("s_mov_b64 exec, -1")
E(f"""
    {f"s_sub_u32 s{ST0+4}, {POLL_MAX+1}, s34" if OPT["cnt"] else ""}
    s_branch L_b4
L_toobig:
    s_mov_b64 exec, -1
""")
issued()
E(f"""
L_giveup:
    v_mov_b32 v2, 0
    ds_write_b32 v2, v{FOUR} offset:{L_FLAG}
L_recskip:
    s_waitcnt vmcnt(0)
L_b4:
    s_setprio {OPT["p0"] if OPT["prio"] == 2 else 0}
    s_mul_i32 s30, s{S_HALF}, {G_HALF}
    {f"s_add_u32 s30, s30, {WS0}" if WS0 else ""}
    s_add_u32 s36, s20, s30
    s_addc_u32 s37, s21, 0
    s_mov_b32 s38, {OPT['nrec'] or G_HALF}
    s_mov_b32 s39, 0x20000
    s_mov_b32 s44, 128
    s_mov_b32 s45, 128
    ds_read_b128 v[60:63], v{LP}
    ds_read_b64 v[{AG}:{AG+1}], v{LP} offset:64
    ds_read_b64 v[{WN2}:{WN2+1}], v{LP} offset:72
    ds_read_b32 v{WE}, v{LP+1}
    s_waitcnt lgkmcnt(0)
    v_lshl_add_u64 v[{AG}:{AG+1}], v[{AG}:{AG+1}], 0, v[{LN8}:{LN8+1}]
    v_lshl_add_u32 v{WE}, v{WE}, 1, v{EAC}
""")
if OPT["warm"]:
    E(f"""
    s_barrier
    s_lshr_b32 s30, s2, 3
    s_mul_i32 s30, s30, 98304
    v_lshl_add_u32 v2, v0, 7, s30
    buffer_load_dword v3, v2, s[36:39], 0 offen sc1
    s_waitcnt vmcnt(0)
    s_sleep 40
    """)
STAMP(8)
E(f"""
    s_barrier                               ; B4
    s_cmp_lg_u32 s{S_SAFE}, 0
    s_cbranch_scc1 L_safe
    ds_read_b128 v[{T}:{T+3}], v60
    ds_read_b128 v[{T+4}:{T+7}], v61
    ds_read_b64 v[{XA}:{XA+1}], v{AG} offset:512
    ds_read_b64 v[{EA}:{EA+1}], v{WE}
    s_lshr_b32 s30, s3, 2
    s_cmp_lg_u32 s30, 1
    s_cbranch_scc1 L_nopoll
    s_mov_b64 exec, s[66:67]
    s_cbranch_execz L_p2e
    s_mov_b32 s31, {POLL_MAX}
L_p2:
    global_load_dwordx2 v[66:67], v64, s[20:21] sc1
    s_sub_u32 s31, s31, 1
    s_cbranch_scc1 L_p2d
    s_waitcnt vmcnt(0)
    v_cmp_ne_u64 vcc, s[{S_TAG}:{S_TAG+1}], v[66:67]
    s_and_b64 exec, exec, vcc
    s_cbranch_scc0 L_p2d
    {f"s_sleep {OPT['p2sleep']}" if OPT['p2sleep'] else ""}
    s_branch L_p2
L_p2d:
""")
gready("b")
E(f"""
L_p2e:
    s_mov_b64 exec, -1
L_nopoll:
    s_cmp_lt_u32 s3, {NW-2}
    s_cbranch_scc1 L_nobuild
    v_lshlrev_b32 v2, 3, v1
    v_mov_b32 v3, 0
    ds_read_b64 v[72:73], v2 offset:{L_CNT}
    ds_read_b32 v79, v3 offset:{L_FLAG}
    v_mul_u32_u24 v74, {2*SSTR}, v1
    v_add_u32 v74, {L_SRC + 96}, v74
    v_add_u32 v75, {SSTR}, v74
    v_mul_u32_u24 v82, {2*NSTR}, v1
    s_and_b32 s32, s3, 1
    s_mul_i32 s30, s32, {NSTR}
    s_add_u32 s30, s30, {L_NODE}
    v_add_u32 v82, s30, v82
    v_mov_b32 v83, v82
    s_mul_i32 s30, s32, {SSTR}
    v_add_u32 v80, s30, v74
    v_add_u32 v81, 16, v80
    s_waitcnt lgkmcnt(0)
    v_sub_u32 v72, v72, v74 clamp
    v_sub_u32 v73, v73, v75 clamp
    v_max_u32 v76, v72, v73
    v_cmp_lt_u32 vcc, 160, v76
    v_cmp_ne_u32 s[48:49], 0, v79
    v_add_u32 v74, 12, v72
    v_add_u32 v75, 12, v73
    s_or_b64 vcc, vcc, s[48:49]
    s_cbranch_scc1 L_bad
    v_add_u32 v72, 28, v72
    v_add_u32 v73, 28, v73
    v_lshrrev_b32 v74, 5, v74
    v_lshrrev_b32 v75, 5, v75
    v_lshrrev_b32 v72, 5, v72
    v_lshrrev_b32 v73, 5, v73
    v_sub_u32 v72, v72, v74
    v_sub_u32 v73, v73, v75
    v_lshl_or_b32 v72, v72, 16, v74
    v_lshl_or_b32 v73, v73, 16, v75
    v_add_u32 v76, v72, v73
    v_add_u32 v77, v72, v73
""")
scan(77)
E(f"""
    s_cmp_eq_u32 s32, 0
    s_cselect_b64 vcc, -1, 0
    v_readlane_b32 s30, v77, 63
    v_cndmask_b32 v76, v73, v76, vcc
    v_cndmask_b32 v72, v73, v72, vcc
    v_sub_u32 v77, v77, v76
    s_and_b32 s31, s30, 0xffff
    s_add_u32 s31, s31, 3
    s_lshr_b32 s31, s31, 2
    s_add_u32 s30, s30, 0x30000
    s_lshr_b32 s30, s30, 18
    s_lshl_b32 s33, s31, 1
    s_add_u32 s33, s33, s30
    s_cmp_gt_u32 s33, 112
    s_cbranch_scc1 L_bad
    s_lshl_b32 s30, s30, 8
    s_or_b32 s29, s30, s31
    v_and_b32 v74, 0xffff, v72
    v_and_b32 v76, 0xffff, v77
    s_mov_b32 s34, {L_LISTC}
    s_mov_b32 s35, {L_LIST + 384}
""")
def slotaddr():
    E(f"""
    v_add_u32 v78, 16, v76
    v_bfe_u32 v79, v76, 2, 2
    v_lshl_add_u32 v79, v79, 10, s34
    v_lshrrev_b32 v84, 5, v78
    v_lshl_add_u32 v79, v84, 7, v79
    v_bfe_u32 v84, v78, 4, 1
    v_lshl_add_u32 v79, v84, 3, v79
    v_lshrrev_b32 v84, 2, v76
    v_cmp_gt_u32 vcc, 32, v76
    v_lshl_add_u32 v84, v84, 9, s35
    v_and_b32 v78, 3, v76
    v_cndmask_b32 v79, v79, v84, vcc
    v_lshl_add_u32 v79, v78, 4, v79
    """)
E("""
L_bf:
    v_cmp_ne_u32 vcc, 0, v74
    s_and_b64 exec, exec, vcc
    s_cbranch_execz L_bfd
""")
slotaddr()
E(f"""
    ds_write_b64 v79, v[80:81]
    ds_write_b64 v79, v[82:83] offset:64
    v_add_u32 v80, 32, v80
    v_add_u32 v81, 32, v81
    v_add_u32 v76, 1, v76
    v_subrev_u32 v74, 1, v74
    s_branch L_bf
L_bfd:
    s_mov_b64 exec, -1
    v_lshrrev_b32 v77, 16, v77
    v_lshrrev_b32 v76, 3, v77
    v_add_u32 v76, s31, v76
    v_and_b32 v78, 3, v77
    v_lshl_add_u32 v76, v76, 2, v78
""")
slotaddr()
E(f"""
    v_and_b32 v78, 4, v77
    v_add_u32 v79, v79, v78
    v_cmp_lt_u32 vcc, 0xffff, v72
    s_mov_b64 exec, vcc
    ds_write2_b32 v79, v80, v82 offset0:0 offset1:16
    s_mov_b64 exec, -1
    s_mul_i32 s29, s29, s32
    s_add_u32 s29, s29, 0x10000
    s_branch L_built
L_bad:
    s_mov_b32 s29, 0x1010000
L_built:
    v_mov_b32 v2, s29
    s_mov_b64 exec, 1
    ds_add_u32 v3, v2 offset:{L_NST}
    s_add_u32 s30, s{S_P}, s32
    s_cmp_lg_u32 s30, 0
    s_cbranch_scc1 L_notw
    v_mov_b32 v2, s{S_TAG}
    v_mov_b32 v3, {WS_TAG}
    global_store_dword v3, v2, s[20:21] sc1
L_notw:
    s_mov_b64 exec, -1
L_nobuild:
    s_waitcnt lgkmcnt(0)
""")
assert DIST == 2 and not EARLY
E(m_a(D0))
for o in range(T, T+8, 2): E(oadd(o))
E(m_e(D0, 0))
lds_wait(L_GOK, 0xff, 4, "gok")
if OPT["stamps"] == 2: E(f"s_memrealtime s[{ST0+16}:{ST0+17}]")
if not OPT["nogather"]:
    for q in range(8): E(gload(G + 4*q, T+q))
STAMP(9)
E(f"""
    s_mov_b32 s31, {POLL_MAX}
    s_waitcnt vmcnt(4)
""")
E(m_s(D0, A1, G)); E(m_s(D0, A2, G+8))
E(f"""
L_wn:
    ds_read_b32 v3, v2 offset:{L_NST}
    ds_read_b128 v[{WS4}:{WS4+3}], v{LP} offset:{128*((DIST+EARLY)//4)}
    s_sub_u32 s31, s31, 1
    s_cbranch_scc1 L_gosafe
    s_waitcnt lgkmcnt(0)
    v_readfirstlane_b32 s30, v3
    s_bitcmp1_b32 s30, 17
    s_cbranch_scc0 L_wn
    s_cmp_gt_u32 s30, {0 if OPT["force_safe"] else 0xffffff}
    s_cbranch_scc1 L_gosafe
    s_and_b32 s31, s30, 0xff
    s_bfe_u32 s30, s30, 0x80008
    s_lshl_b32 s32, s31, 1
    s_add_u32 s30, s30, s32
    s_lshl_b32 s32, s3, 1
    s_sub_i32 s30, s30, s32
    s_max_i32 s30, s30, 0
    s_cmp_ge_u32 s3, 8
    s_cbranch_scc1 L_nc
    s_min_u32 s30, s30, 2
    s_add_u32 s{S_R}, s30, 12
    s_cmp_ge_u32 s3, s31
    s_cselect_b32 s30, 0x2000, 0
    s_or_b32 s{S_M}, s30, 0x5041
    s_branch L_nd
L_nc:
    s_add_u32 s32, s30, 7
    s_lshr_b32 s32, s32, 3
    s_lshl_b32 s32, s32, 1
    s_and_b32 s30, s30, 7
    s_cmp_eq_u32 s30, 1
    s_subb_u32 s32, s32, 0
    s_add_u32 s{S_R}, s32, 6
    s_sub_i32 s31, s31, s3
    s_add_i32 s31, s31, 3
    s_max_i32 s31, s31, 0
    s_lshr_b32 s31, s31, 2
    s_lshl_b32 s31, s31, 1
    s_add_u32 s31, s31, 7
    s_lshl_b32 s31, -1, s31
    s_or_b32 s{S_M}, s31, 0x55555541
L_nd:
    s_mov_b32 s{S_IT}, {(1 << OPT["pa"]) | (1 << OPT["pb"]) | (1 << OPT["pc"]) if OPT["prio"] == 2 else 0}
""")
if OPT["prio"]: E(f"s_setprio {OPT['p1']}")
STAMP(10)
if OPT["ptime"]: E("v_mov_b32 v70, 0\nv_mov_b32 v71, 0")
if OPT["stamps"] == 1: E(f"s_memtime s[{ST0+24}:{ST0+25}]\ns_waitcnt lgkmcnt(0)")
for u in range(4): phase(u, True)
for u in range(4): phase(u, False)
E(f"""
L_mdone:
    s_waitcnt lgkmcnt(0)
""")
STAMP(11)
if OPT["ptime"]:
    E(f"""
    s_lshl_b32 s30, s2, 4
    s_add_u32 s30, s30, s3
    s_lshl_b32 s30, s30, 8
    s_add_u32 s30, s30, 0xc00000
    v_lshl_add_u32 v2, v1, 2, s30
    s_mov_b32 exec_hi, 0
    global_store_dword v2, v70, s[20:21]
    global_store_dword v2, v71, s[20:21] offset:128
    s_mov_b64 exec, -1
    """)
if OPT["stamps"] == 1:
    E(f"s_memtime s[28:29]\ns_waitcnt lgkmcnt(0)\ns_sub_u32 s{ST0+24}, s28, s{ST0+24}")
E(f"""
    v_lshrrev_b32 v2, 5, v0
    v_and_b32 v3, 31, v0
    v_mul_u32_u24 v4, {NSTR}, v2
    v_and_b32 v5, 1, v3
    v_lshl_add_u32 v4, v5, 8, v4
    v_lshrrev_b32 v5, 1, v3
    v_lshl_add_u32 v4, v5, 3, v4
    v_add_u32 v4, {L_NODE}, v4
    s_mul_i32 s30, s{S_BUCK}, {NB*256}
    s_lshl_b32 s31, s{S_HALF}, 7
    s_add_u32 s30, s30, s31
    v_lshlrev_b32 v3, 2, v3
    v_lshl_add_u32 v5, v2, 8, v3
    v_add_u32 v5, s30, v5
    v_add_u32 v6, {24*256}, v5
    v_add_u32 v7, {48*256}, v5
    v_add_u32 v8, {72*256}, v5
    s_mov_b32 s32, {f32(2.0**32)}
    s_mov_b32 s34, {f32(-LOG2E * 2.0**-32)}
    v_mov_b32 v9, 0x207
    s_barrier                               ; B5
""")
OSC = {0: "", 1: " sc1", 2: " nt"}[OPT["osc"]]
def epi(us):
    for u in us: E(f"ds_read_b64 v[{12+4*u}:{13+4*u}], v4 offset:{24*NSTR*u}\nds_read_b64 v[{14+4*u}:{15+4*u}], v4 offset:{24*NSTR*u + 128}")
    E("s_waitcnt lgkmcnt(0)")
    for u in us: E(f"v_cvt_f32_f64 v{28+2*u}, v[{12+4*u}:{13+4*u}]\nv_cvt_f32_f64 v{29+2*u}, v[{14+4*u}:{15+4*u}]")
    for u in us: E(f"v_pk_mul_f32 v[{36+2*u}:{37+2*u}], v[{28+2*u}:{29+2*u}], s[34:35] op_sel_hi:[1,0]")
    for u in us: E(f"v_exp_f32 v{36+2*u}, v{36+2*u}\nv_exp_f32 v{37+2*u}, v{37+2*u}")
    E("v_pk_add_f32 v[10:11], v[28:29], v[30:31]")
    for u in us: E(f"v_pk_fma_f32 v[{36+2*u}:{37+2*u}], v[{36+2*u}:{37+2*u}], s[32:33], s[32:33] op_sel_hi:[1,0,0]")
    for u in us: E(f"v_rcp_f32 v{36+2*u}, v{36+2*u}\nv_rcp_f32 v{37+2*u}, v{37+2*u}")
    E("v_pk_add_f32 v[10:11], v[10:11], v[32:33]")
    for u in us: E(f"v_pk_mul_f32 v[{36+2*u}:{37+2*u}], v[{28+2*u}:{29+2*u}], v[{36+2*u}:{37+2*u}]")
    for u in us: E(f"v_cvt_pk_bf16_f32 v{44+u}, v{36+2*u}, v{37+2*u}\nglobal_store_dword v{5+u}, v{44+u}, s[18:19]{OSC}")
    for u in us[3:]: E(f"v_pk_add_f32 v[10:11], v[10:11], v[{28+2*u}:{29+2*u}]")
E("s_cmp_ge_u32 s3, 4\ns_cbranch_scc1 L_e3")
epi([0, 1, 2, 3])
E("s_branch L_e4\nL_e3:")
epi([0, 1, 2])
E(f"""
L_e4:
    v_add_f32 v10, v10, v11
    v_cmp_class_f32 vcc, v10, v9
    v_mov_b32 v2, 0
    s_cmp_lg_u32 s{S_SAFE}, 0
    s_cbranch_scc1 L_fin
    {"s_branch" if OPT["nosafe"] else "s_cbranch_vccz"} L_e5
    ds_write_b32 v2, v9 offset:{L_FLAG}
    s_waitcnt lgkmcnt(0)
L_e5:
    s_barrier                               ; B6
    ds_read_b32 v2, v2 offset:{L_FLAG}
    s_waitcnt lgkmcnt(0)
    v_readfirstlane_b32 s30, v2
    s_cmp_lg_u32 s30, 0
    s_cbranch_scc1 L_gosafe
L_fin:
""")
if OPT["stamps"]:
    E("s_waitcnt vmcnt(0)"); STAMP(13); STAMP_OUT()
if OPT["probe"] >= 0:
    T_ = ST0 + 2*OPT["probe"]
    E(f"""
    s_cmp_lg_u32 s3, {OPT["pw"]}
    s_cbranch_scc1 L_end
    s_cmp_lg_u32 s2, {OPT["pg"] if OPT["pg"] >= 0 else "s2"}
    s_cbranch_scc1 L_end
    s_sub_u32 s30, s{T_}, s{ST0}
    s_lshl_b32 s30, s30, 2
    s_add_u32 s30, s30, 3000
    s_min_u32 s30, s30, 20000
L_spin:
    s_memrealtime s[28:29]
    s_waitcnt lgkmcnt(0)
    s_sub_u32 s28, s28, s{ST0}
    s_cmp_lt_u32 s28, s30
    s_cbranch_scc1 L_spin
    """)
E(f"""
L_end:
    s_endpgm
L_gosafe:
    s_mov_b32 s{S_SAFE}, 8
    s_setprio 0
    s_waitcnt vmcnt(0) lgkmcnt(0)
    s_barrier
    s_branch L_restart
""")
out += outofline
for r in retries: E(r)
E(f"""
L_safe:
    v_and_b32 v2, 15, v1
    v_lshlrev_b32 v3, 3, v2
    v_add_u32 v3, {L_C}, v3
""")
for k in range(4):
    for s in range(4):
        E(f"ds_read_u16 v{80+4*k+s}, v3 offset:{128*k + 2*s}")
E("s_waitcnt lgkmcnt(0)")
for i in range(16):
    E(f"v_lshlrev_b32 v{80+i}, 16, v{80+i}\nv_mul_f32 v{80+i}, s40, v{80+i}")
E(f"""
    v_lshrrev_b32 v24, 4, v1
    v_mul_u32_u24 v24, 3, v24               ; 3*quarter
    s_movk_i32 s33, {NSTR}
    v_add_u32 v25, {L_NODE}, v{LN8}
    s_mov_b32 s34, s3
    s_mov_b32 s35, {POLL_MAX}
L_scell:
    s_lshl_b32 s30, s34, 10
    s_lshl_b32 s31, s{S_BUCK}, 3
    s_add_u32 s30, s30, s31
    s_add_u32 s30, s30, {WS_ROW}
    v_mov_b32 v26, s30
    global_load_dword v32, v26, s[20:21] sc1
    s_mul_i32 s30, s34, {SORTB//4}
    s_add_u32 s30, s30, {WS_REC//4}
    s_waitcnt vmcnt(0)
    v_bfe_u32 v28, v32, 12, 12              ; 3*count
    v_and_b32 v27, 0xfff, v32
    v_add_u32 v27, s30, v27
L_sver:
    v_mov_b32 v29, v1
    v_mov_b32 v31, 0
L_sv1:
    v_cmp_ge_u32 vcc, v28, v29
    s_and_saveexec_b64 s[48:49], vcc
    s_cbranch_execz L_sv2
    v_add_lshl_u32 v30, v27, v29, 2
    global_load_dword v32, v30, s[20:21] sc1
    s_waitcnt vmcnt(0)
    v_add_u32 v31, v31, v32
    s_mov_b64 exec, s[48:49]
    v_add_u32 v29, 64, v29
    s_branch L_sv1
L_sv2:
    s_mov_b64 exec, s[48:49]
""")
scan(31)
E(f"""
    s_nop 0
    v_readlane_b32 s30, v31, 63
    s_cmp_eq_u32 s30, s{S_TAG+1}
    s_cbranch_scc1 L_sok
    s_sub_u32 s35, s35, 1
    s_cbranch_scc0 L_sver
    s_branch L_mdone
L_sok:
    v_mov_b32 v29, v24
L_srec:
    v_cmp_gt_u32 vcc, v28, v29
    s_and_saveexec_b64 s[48:49], vcc
    s_cbranch_execz L_snext
    v_add_lshl_u32 v30, v27, v29, 2
    global_load_dwordx3 v[32:34], v30, s[20:21] offset:4 sc1
    s_waitcnt vmcnt(0)
    v_and_b32 v30, 0x3fff00, v32
    v_add_u32 v30, v30, v{LN16}
    buffer_load_dwordx4 v[36:39], v30, s[36:39], 0 offen sc1
    v_lshrrev_b32 v31, 24, v32
    v_mad_u32_u24 v31, v31, s33, v25
    ds_read_b64 v[40:41], v31 offset:512
    v_lshlrev_b32 v44, 16, v33
    v_and_b32 v45, 0xffff0000, v33
    v_lshlrev_b32 v46, 16, v34
    v_and_b32 v47, 0xffff0000, v34
    s_waitcnt vmcnt(0) lgkmcnt(0)
    v_lshlrev_b32 v48, 16, v40
    v_and_b32 v49, 0xffff0000, v40
    v_lshlrev_b32 v50, 16, v41
    v_and_b32 v51, 0xffff0000, v41
""")
for s in range(4):
    E(f"v_lshlrev_b32 v52, 16, v{36+s}\nv_add_f32 v{48+s}, v{48+s}, v52")
    for k in range(4):
        E(f"v_fmac_f32 v{48+s}, v{44+k}, v{80+4*k+s}")
for s in range(4): E(f"v_exp_f32 v{48+s}, v{48+s}")
E("s_nop 0")
for s in range(4): E(f"v_add_f32 v{48+s}, 1.0, v{48+s}")
for s in range(4): E(f"v_rcp_f32 v{48+s}, v{48+s}")
E("s_nop 0")
for s in range(4): E(f"v_mul_f32 v{48+s}, v{48+s}, v{36+s}")
for s in range(4): E(f"v_cvt_f64_f32 v[{54+2*s}:{55+2*s}], v{48+s}")
for s in range(4): E(f"ds_add_f64 v31, v[{54+2*s}:{55+2*s}] offset:{128*s}")
E(f"""
    s_mov_b64 exec, s[48:49]
    v_add_u32 v29, 12, v29
    s_branch L_srec
L_snext:
    s_mov_b64 exec, s[48:49]
    s_add_u32 s34, s34, {NW}
    s_cmp_lt_u32 s34, {NCHUNK}
    s_cbranch_scc1 L_scell
    s_branch L_mdone
L_codeend:
.section .rodata,"a"
.p2align 6
.amdhsa_kernel {NAME}
.amdhsa_next_free_vgpr 168
.amdhsa_next_free_sgpr 102
.amdhsa_accum_offset 168
.amdhsa_group_segment_fixed_size 0
.amdhsa_kernarg_size 80
.amdhsa_user_sgpr_count 2
.amdhsa_user_sgpr_kernarg_segment_ptr 1
.amdhsa_system_sgpr_workgroup_id_x 1
.end_amdhsa_kernel
""")
if OPT["drop"]:
    i0 = out.index("L_L0:"); i1 = out.index("L_mdone:")
    pats = {1: ("smfmac",), 2: ("mfma",), 3: ("32x32x8",), 4: ("smfmac",), 5: ("v_exp",)}[OPT["drop"]]
    repl = {4: "    s_nop 2", 5: "    s_nop 1"}.get(OPT["drop"])
    mid = []
    for l in out[i0:i1]:
        if any(x in l for x in pats):
            if repl: mid.append(repl)
        else: mid.append(l)
    if OPT["drop"] == 3: mid = [l.replace("v[88:103] cbsz", "0 cbsz").replace("v[72:87] cbsz", "0 cbsz") for l in mid]
    out = out[:i0] + mid + out[i1:]
if OPT["nochain"]:
    i0 = out.index("L_L0:"); i1 = out.index("L_mdone:")
    out = out[:i0] + [l for l in out[i0:i1] if not any(x in l for x in ("v_exp", "v_pk_", "mfma", "v_rcp", "v_cvt"))] + out[i1:]
open(sys.argv[1], "w").write("\n".join(out) + "\n")
```

```python
import sys, struct

OPT = dict(hb=1, stamps=0, force_safe=0, nogather=0, nosafe=0, prio=2, gsc1=1, osc=1, codepf=1, srcmask=0x3fff00, nrec=0, warm=0,
           nochain=0, probe=-1, pw=-1, pg=-1, gpf=32, early=0, cnt=0, pollmax=200000, pa=7, pb=3, pc=1, p0=3, p1=3, ptime=0,
           dist=2, ldearly=0, drop=0, wgate=0, gate=0, gate2=1, rst=0, rsc1=1, nover=0, p2gate=1, p2sleep=0, hold=0, slate=2, lpos=0, p1st=1, sig=1, gpace=4, gwin=-1, gp=0xf448c, ghold=0, nte=0, ewhen=2, wpf=1, gpe=40, oneb=0, p0e=0, pre=0, prelate=0, ntx=0, rpace=-1, p2wait=0)
for a in sys.argv[2:]:
    k, v = a.split("=")
    assert k in OPT, k
    OPT[k] = int(v, 0)

out = []
def E(s=""):
    for line in s.split("\n"):
        line = line.strip()
        if not line:
            continue
        if line.endswith(":") or line.startswith(".") or line.startswith(";"):
            out.append(line)
        else:
            out.append("    " + line)

def f32(x):
    return "0x%08x" % struct.unpack("<I", struct.pack("<f", x))[0]

NAME = "standalone__edge_featured_mpnn_egc__graph_kernel"
LOG2E = 1.4426950408889634
NB = 80; NBUCK = 125; CHUNK = 1280; NCHUNK = 250
NW = 12
G_HALF = 10000 * 256
WS0 = 0
WS_REC = 0x500000
WS_ROW = 0x900000
WS_FL2 = 0x980000
WS_TAG = 0x9c0000
SORTB = CHUNK * 12 + 512
WS_STAMP = 0x1000000
L_CNT = 0; L_SOFF = 512
L_SCNT = 1024
L_CTR = 1536; L_RD = 1540; L_DONE2 = 1544; L_FLAG = 1548; L_NST = 1552; L_GST = 1556; L_GOK = 1560; L_AU = 1564
L_DUM = L_SOFF
L_LIST = 2048
L_LISTC = L_LIST + 4096
SSTR = 272
L_SRC = L_LIST + 8192
SRCB = 80 * SSTR + 32
L_EA = L_SRC + SRCB
L_EAEND = L_EA + 2 * SRCB
L_SORT = L_EA
L_WBV = (L_EAEND + 255) // 256 * 256; L_X = L_WBV + 32768; L_WAU = L_X + 20480; L_C = L_WAU + 32768
LDS = L_C + 1024
L_NODE = L_WBV; NSTR = 648
assert L_NODE + 80 * NSTR <= L_WAU and LDS <= 163840 and L_EA % 16 == 0
NULL_SRC = 0x7fffff00
POLL_MAX = OPT["pollmax"]
SC1 = " sc1"
NTE = " nt" if OPT["nte"] else ""
NTX = " nt" if OPT["ntx"] else ""

S_HALF, S_BUCK, S_P = 22, 23, 24
S_SAFE, S_TAG = 25, 26
S_R, S_M, S_IT = 70, 71, 72
S_TAGRAW = 47
ST0 = 74

def ESTAMP(i):
    if OPT["early"] == 1 or (OPT["early"] and i == 0): E(f"s_memrealtime s[{ST0+2*i}:{ST0+2*i+1}]")
def FSTAMP(i):
    if OPT["early"] == 2: E(f"s_memrealtime s[{ST0+2*i}:{ST0+2*i+1}]\ns_waitcnt lgkmcnt(0)")
def STAMP(i):
    if OPT["stamps"] == 2:
        if i == 0: E(f"s_memrealtime s[{ST0}:{ST0+1}]")
        if i == 13: E(f"s_memrealtime s[{ST0+26}:{ST0+27}]\ns_waitcnt lgkmcnt(0)")
        return
    if OPT["early"] and 1 <= i <= 7: return
    if OPT["early"] and i == 0: return ESTAMP(0)
    if OPT["stamps"] or (OPT["probe"] >= 0 and i == OPT["probe"]):
        E(f"s_memrealtime s[{ST0+2*i}:{ST0+2*i+1}]\ns_waitcnt lgkmcnt(0)")
    elif OPT["probe"] >= 0 and i == 0:
        E(f"s_memrealtime s[{ST0}:{ST0+1}]")
NSTAMP = 14
def STAMP_OUT():
    if OPT["stamps"]:
        E(f"""
        s_lshl_b32 s30, s2, 4
        s_add_u32 s30, s30, s3
        s_lshl_b32 s30, s30, 6
        s_add_u32 s30, s30, {WS_STAMP - 0x100000}
        s_load_dwordx2 s[20:21], s[0:1], 72
        s_waitcnt lgkmcnt(0)
        s_mov_b64 exec, -1
        v_mov_b32 v3, s30""")
        for i in (range(NSTAMP) if OPT["stamps"] == 1 else (0, 8, 13)):
            E(f"v_mov_b32 v2, s{ST0+2*i}\nglobal_store_dword v3, v2, s[20:21] offset:{4*i}")
        E("s_waitcnt vmcnt(0)")

A1, A2, IDX, EAC, LN16, ASEL, CW, LN8 = 4, 8, 12, 13, 14, 16, 18, 20
LP, WS4, WN2, EA, XA, WE, OFS, AG, T, N, P, F = 22, 24, 28, 30, 32, 34, 36, 40, 44, 52, 56, 60
D0, D1, G = 72, 88, 104

def finish_tag():
    E(f"""
    s_mul_i32 s{S_TAG+1}, s{S_TAGRAW}, 0x85ebca6b
    s_mul_i32 s{S_TAG}, s{S_TAGRAW}, 0x9e3779b1
    s_add_u32 s{S_TAG+1}, s{S_TAG+1}, 0x5bd1e995
    s_add_u32 s{S_TAG}, s{S_TAG}, 0x7f4a7c15
    """)
def get_tag(lab, q):
    E(f"""
    s_cmp_lg_u32 s{S_SAFE}, 0
    s_cbranch_scc1 L_tag_{lab}
    v_mov_b32 v2, 0
    s_mov_b32 s31, {POLL_MAX}
L_tg_{lab}:
    ds_read_b128 v[{q}:{q+3}], v2 offset:{L_SCNT + 124*4}
    s_sub_u32 s31, s31, 1
    s_cbranch_scc1 L_tag_{lab}
    s_waitcnt lgkmcnt(0)
    v_readfirstlane_b32 s30, v{q+3}
    v_readfirstlane_b32 s{S_TAGRAW}, v{q+1}
    s_cmp_lg_u32 s30, 4
    s_cbranch_scc1 L_tg_{lab}
    """)
    finish_tag()
    E(f"L_tag_{lab}:")

def lds_wait(addr, mask, val, tag, sleep=0, ne=False):
    E(f"""
    v_mov_b32 v2, 0
    s_mov_b32 s31, {POLL_MAX}
L_w_{tag}:
    {f"s_sleep {sleep}" if sleep else ""}
    ds_read_b32 v3, v2 offset:{addr}
    s_sub_u32 s31, s31, 1
    s_cbranch_scc1 L_wd_{tag}
    s_waitcnt lgkmcnt(0)
    v_readfirstlane_b32 s30, v3
    s_and_b32 s30, s30, {mask}
    s_cmp_lg_u32 s30, {val}
    s_cbranch_scc{0 if ne else 1} L_w_{tag}
L_wd_{tag}:
    """)
SCAN = ("row_shr:1 row_mask:0xf bank_mask:0xf bound_ctrl:0", "row_shr:2 row_mask:0xf bank_mask:0xf bound_ctrl:0",
        "row_shr:4 row_mask:0xf bank_mask:0xf bound_ctrl:0", "row_shr:8 row_mask:0xf bank_mask:0xf bound_ctrl:0",
        "row_bcast:15 row_mask:0xa bank_mask:0xf", "row_bcast:31 row_mask:0xc bank_mask:0xf")
def scan(r):
    for m in SCAN:
        E(f"s_nop 1\nv_add_u32_dpp v{r}, v{r}, v{r} {m}")

def main_consts(sm=48):
    E(f"""
    v_and_b32 v2, 15, v1                    ; n'
    v_lshrrev_b32 v3, 4, v1
    v_lshl_add_u32 v3, v2, 2, v3
    v_lshlrev_b32 v3, 1, v3
    v_add_u32 v3, {L_C}, v3
    ds_read_u16 v64, v3                     ; C[0..3][feature 4n'+s]
    ds_read_u16 v65, v3 offset:128
    ds_read_u16 v66, v3 offset:256
    ds_read_u16 v67, v3 offset:384
    v_and_b32 v63, 3, v1                    ; q
    v_lshlrev_b32 v{LN8}, 3, v2
    v_lshlrev_b32 v{LN8+1}, 3, v2
    v_lshlrev_b32 v{LN16}, 4, v2
    v_lshlrev_b32 v{LN16+1}, 4, v2
    v_mov_b32 v{IDX}, 0x8888
    v_bfe_u32 v60, v1, 3, 2                 ; s = (l&31)>>3
    v_bfe_u32 v61, v1, 2, 1                 ; h = (l>>2)&1
    v_lshrrev_b32 v62, 5, v1                ; ha
    v_and_b32 v2, 1, v60
    v_lshlrev_b32 v2, 4, v2
    v_lshlrev_b32 v2, v2, s46
    v_lshrrev_b32 v60, 1, v60               ; s>>1
    v_lshl_add_u32 v3, v61, 1, v60
    v_sub_u32 v63, v63, v62                 ; q - ha : 0 -> A1, 2 -> A2
    v_lshl_add_u32 v3, v63, 1, v3
    v_and_b32 v63, 1, v63
    v_lshl_or_b32 v3, v63, 4, v3
    v_xor_b32 v61, v61, v62
    v_lshl_or_b32 v60, v61, 4, v60
    """)
    mk = [f"s[{sm}:{sm+1}]", f"s[{sm+2}:{sm+3}]", f"s[{sm+4}:{sm+5}]", "vcc"]
    for i in range(8):
        E(f"v_cmp_eq_u32 {mk[i%4]}, {i}, v3")
        if i % 4 == 3:
            for j in range(i-3, i+1):
                E(f"v_cndmask_b32 v{A1+j}, 0, v2, {mk[j%4]}")
    E(f"""
    v_cmp_eq_u32 {mk[0]}, 0, v60
    v_cmp_eq_u32 {mk[1]}, 1, v60
    v_and_b32 v63, 3, v1
    v_lshlrev_b32 v61, 3, v63
    v_cndmask_b32 v{ASEL}, 0, v2, {mk[0]}
    v_cndmask_b32 v{ASEL+1}, 0, v2, {mk[1]}
    v_add_u32 v{EAC}, {L_EA - 2*L_SRC}, v61
    s_lshl_b32 s30, s3, 9
    s_sub_u32 s31, s30, 4096
    s_max_i32 s31, s31, 0
    s_add_u32 s30, s30, s31
    s_add_u32 s30, s30, {L_LIST}
    v_lshrrev_b32 v2, 4, v1
    v_lshl_add_u32 v{LP}, v2, 4, s30
    v_bfe_u32 v3, v1, 2, 2
    v_lshl_add_u32 v{LP+1}, v3, 4, s30
    v_lshl_add_u32 v{LP+1}, v2, 2, v{LP+1}
    s_waitcnt lgkmcnt(0)
    v_lshlrev_b32 v60, 16, v64
    v_lshlrev_b32 v61, 16, v65
    v_lshlrev_b32 v62, 16, v66
    v_lshlrev_b32 v63, 16, v67
    v_mul_f32 v60, s40, v60
    v_mul_f32 v61, s40, v61
    v_mul_f32 v62, s40, v62
    v_mul_f32 v63, s40, v63
    v_cvt_pk_bf16_f32 v{CW}, v60, v61
    v_cvt_pk_bf16_f32 v{CW+1}, v62, v63
    """)

def gload(g, o):
    return f"buffer_load_dwordx4 v[{g}:{g+3}], v{o}, s[36:39], 0 offen" + (SC1 if OPT["gsc1"] else "")
def oadd(o):
    return f"v_lshl_add_u64 v[{o}:{o+1}], v[{o}:{o+1}], 0, v[{LN16}:{LN16+1}]"

def pk_steps(Gc, q, first):
    t = T + 4*(q & 1); h = Gc + 4*q
    if first and q == 0:
        return [f"v_pk_add_f32 v[{P+2*p}:{P+2*p+1}], v[{t+2*p}:{t+2*p+1}], 1.0 op_sel_hi:[1,0]" for p in range(2)]
    r = []
    for p in range(2):
        n = f"v[{Gc+2*p}:{Gc+2*p+1}]" if (first and q == 1) else f"v[{N+2*p}:{N+2*p+1}]"
        r.append(f"v_pk_fma_f32 v[{N+2*p}:{N+2*p+1}], {n}, v[{t+2*p}:{t+2*p+1}], {n}")
    for p in range(2):
        r.append(f"v_pk_fma_f32 v[{N+2*p}:{N+2*p+1}], v[{h+2*p}:{h+2*p+1}], v[{P+2*p}:{P+2*p+1}], v[{N+2*p}:{N+2*p+1}]")
    for p in range(2):
        r.append(f"v_pk_fma_f32 v[{P+2*p}:{P+2*p+1}], v[{P+2*p}:{P+2*p+1}], v[{t+2*p}:{t+2*p+1}], v[{P+2*p}:{P+2*p+1}]")
    return r
def exps(Dc, q):
    t = T + 4*(q & 1)
    return [f"v_exp_f32 v{t+s}, v{Dc+4*s+q}" for s in range(4)]
def weave(main, extra):
    for i, x in enumerate(main):
        E(x)
        for y in extra.get(i, []):
            E(y)
def m_a(Dn): return f"v_mfma_f32_32x32x8_bf16 v[{Dn}:{Dn+15}], v[{ASEL}:{ASEL+1}], v[{XA}:{XA+1}], 0"
def m_e(Dn, abid): return f"v_mfma_f32_16x16x4_4b_bf16 v[{Dn}:{Dn+15}], v[{EA}:{EA+1}], v[{CW}:{CW+1}], v[{Dn}:{Dn+15}] cbsz:2 abid:{abid}"
def m_s(Dn, A, g): return f"v_smfmac_f32_32x32x32_bf16 v[{Dn}:{Dn+15}], v[{A}:{A+3}], v[{g}:{g+7}], v{IDX}"

outofline = []
def emit_to(lst, fn):
    global out
    keep = out; out = []
    fn(); lst += out; out = keep
DIST = OPT["dist"]; EARLY = OPT["ldearly"]
assert not (EARLY and DIST == 4)
def phase(u, loads):
    tag = f"{'L' if loads else 'T'}{u}"
    Dc, Dn = ((D0, D1), (D1, D0))[u & 1]
    gc = G + 16*u; gn = G + 16*((u+1) & 3); gl = G + 16*((u+DIST) & 3)
    ld = loads and not OPT["nogather"]
    kw = (u + DIST + EARLY) & 3
    wsgrp = 128 * ((3 - kw + u + DIST + EARLY) // 4 + 1) if kw == 3 else None
    def addloads(ex, pos):
        if loads:
            ex.setdefault(0, []).append(oadd(OFS)); ex.setdefault(2, []).append(oadd(OFS+2))
        if ld:
            for q in range(4): ex.setdefault(pos[q], []).append(gload(gl+4*q, OFS+q))
    E(f"L_{tag}:")
    SL = OPT["slate"]
    if not SL: E(f"s_waitcnt vmcnt({4*(DIST-2)})")
    E(m_a(Dn))
    for x in exps(Dc, 0): E(x)
    E(m_e(Dn, (u+1) & 3) if SL else m_s(Dn, A1, gn))
    for x in exps(Dc, 1): E(x)
    ex = {0: ["s_waitcnt lgkmcnt(0)"], 2: [f"ds_read_b64 v[{XA}:{XA+1}], v{AG + ((u+2) & 3)} offset:512"]}
    if u % 2 == 0:
        p = AG + ((u+2) & 3)
        ex[0].append(f"v_lshl_add_u64 v[{p}:{p+1}], v[{WN2}:{WN2+1}], 0, v[{LN8}:{LN8+1}]")
    if EARLY: addloads(ex, (1, 3, 5, 6))
    elif loads: ex[1] = [f"ds_read_b128 v[{OFS}:{OFS+3}], v{WS4+kw}"]
    if u == 2:
        ex.setdefault(4, []).append(f"v_lshl_add_u32 v{WE}, v{WE}, 1, v{EAC}")
        if SL: ex.setdefault(7, []).append(f"ds_read_b64 v[{EA}:{EA+1}], v{WE}")
    E(f"s_bitcmp1_b32 s{S_M}, 0\ns_cbranch_scc1 L_{tag}f")
    weave(pk_steps(gc, 0, False) + pk_steps(gc, 1, False), ex)
    E(f"L_{tag}r:")
    def first():
        E(f"L_{tag}f:")
        weave(pk_steps(gc, 0, True) + pk_steps(gc, 1, True), ex)
        E(f"s_branch L_{tag}r")
    emit_to(outofline, first)
    if SL:
        if OPT["ptime"]: E(f"s_memrealtime s[28:29]\ns_mov_b32 m0, s{S_R}")
        E(f"s_waitcnt vmcnt({4*(DIST-2) + (4 if (EARLY and loads) else 0) + (2 if SL == 2 else 0)})")
        E(m_s(Dn, A1, gn))
    else:
        E(m_e(Dn, (u+1) & 3))
    for x in exps(Dc, 2): E(x)
    if SL == 2: E(f"s_waitcnt vmcnt({4*(DIST-2) + (4 if (EARLY and loads) else 0)})")
    if OPT["ptime"]: E(f"s_memrealtime s[30:31]")
    E(m_s(Dn, A2, gn+8))
    for x in exps(Dc, 3): E(x)
    ex = {0: ["s_waitcnt lgkmcnt(0)"], 4: [], 6: [], 7: [f"s_sub_u32 s{S_R}, s{S_R}, 1"], 10: [f"s_lshr_b32 s{S_M}, s{S_M}, 1"], 11: [f"s_bitcmp1_b32 s{S_M}, 0"]}
    if OPT["ptime"]: ex[0] += ["v_writelane_b32 v70, s28, m0", "v_writelane_b32 v71, s30, m0"]
    if not EARLY: addloads(ex, (1, 3, 5, 9) if DIST == 4 else ((1, 3, 5, 7), (1, 2, 3, 4), (4, 6, 8, 10), (2, 5, 8, 10))[OPT['lpos']])
    elif loads: ex[1] = [f"ds_read_b128 v[{OFS}:{OFS+3}], v{WS4+kw}"]
    if u == 1:
        ex[4].append(f"ds_read_b64 v[{WN2}:{WN2+1}], v{LP} offset:{128+64}")
        ex[6].append(f"ds_read_b32 v{WE}, v{LP+1} offset:128")
    if u == 2 and not SL:
        ex[4].append(f"ds_read_b64 v[{EA}:{EA+1}], v{WE}")
    if u == 3:
        ex[4].append(f"ds_read_b64 v[{WN2}:{WN2+1}], v{LP} offset:{128+64+8}")
        ex.setdefault(8, []).append(f"v_lshl_add_u64 v[{LP}:{LP+1}], v[{LP}:{LP+1}], 0, s[44:45]")
    if wsgrp and loads: ex[6].append(f"ds_read_b128 v[{WS4}:{WS4+3}], v{LP} offset:{wsgrp}")
    weave(pk_steps(gc, 2, False) + pk_steps(gc, 3, False), ex)
    E(f"s_cbranch_scc1 L_{tag}z\nL_{tag}y:")
    def fin():
        E(f"""
L_{tag}z:
        v_rcp_f32 v{P}, v{P}
        v_rcp_f32 v{P+1}, v{P+1}
        v_rcp_f32 v{P+2}, v{P+2}
        v_rcp_f32 v{P+3}, v{P+3}
        v_pk_mul_f32 v[{N}:{N+1}], v[{N}:{N+1}], v[{P}:{P+1}]
        v_pk_mul_f32 v[{N+2}:{N+3}], v[{N+2}:{N+3}], v[{P+2}:{P+3}]
        """)
        for s_ in range(4):
            E(f"v_cvt_f64_f32 v[{F+2*s_}:{F+2*s_+1}], v{N+s_}")
            if s_: E(f"ds_add_f64 v{AG+u}, v[{F+2*s_-2}:{F+2*s_-1}] offset:{128*(s_-1)}")
        E(f"ds_add_f64 v{AG+u}, v[{F+6}:{F+7}] offset:384")
        E(f"s_branch L_{tag}y")
    emit_to(outofline, fin)
    if OPT["prio"] == 2:
        E(f"s_bitcmp1_b32 s{S_IT}, s{S_R}\ns_cbranch_scc1 L_{tag}q\nL_{tag}p:")
        def pr():
            E(f"""
L_{tag}q:
            s_setprio 0
            s_cmp_le_u32 s{S_R}, {OPT["pc"]}
            s_cbranch_scc1 L_{tag}p
            s_setprio 1
            s_cmp_le_u32 s{S_R}, {OPT["pb"]}
            s_cbranch_scc1 L_{tag}p
            s_setprio 2
            s_branch L_{tag}p
            """)
        emit_to(outofline, pr)
    if u == 3 and OPT["prio"] == 1:
        E(f"""
        s_add_u32 s{S_IT}, s{S_IT}, 1
        s_setprio 0
        s_cmp_gt_u32 s{S_IT}, 2
        s_cbranch_scc1 L_{tag}p
        s_setprio 1
        s_cmp_eq_u32 s{S_IT}, 2
        s_cbranch_scc1 L_{tag}p
        s_setprio 2
L_{tag}p:
        """)
    if loads:
        E(f"s_cmp_le_u32 s{S_R}, {DIST}")
        if u < 3: E(f"s_cbranch_scc1 L_T{u+1}")
        else: E("s_cbranch_scc0 L_L0")
    else:
        E(f"s_waitcnt vmcnt(0)\ns_cmp_eq_u32 s{S_R}, 0")
        if u < 3: E("s_cbranch_scc1 L_mdone")
        else: E("s_cbranch_scc0 L_T0")

E(f"""
; @launch grid=(256,1,1) block=({64*NW},1,1) lds={LDS}
.amdgcn_target "amdgcn-amd-amdhsa--gfx950"
.text
.globl {NAME}
.p2align 8
.type {NAME},@function
{NAME}:
""")
if OPT["stamps"] == 1 and OPT["early"] != 1:
    for i in range(NSTAMP): E(f"s_mov_b64 s[{ST0+2*i}:{ST0+2*i+1}], 0")
STAMP(0)
E(f"""
    s_load_dwordx16 s[4:19], s[0:1], 0
    s_load_dwordx2 s[20:21], s[0:1], 72
""")
if OPT["codepf"]:
    E(f"""
    s_getpc_b64 s[28:29]
L_pc:
    v_lshlrev_b32 v3, 7, v0
    v_cmp_gt_u32 vcc, L_codeend-L_pc-64, v3
    s_cbranch_vccz L_nopf
    s_mov_b64 exec, vcc
    global_load_dword v164, v3, s[28:29]
    s_mov_b64 exec, -1
L_nopf:
    """)
E(f"""
    v_lshrrev_b32 v2, 6, v0
    v_and_b32 v1, 63, v0
    v_readfirstlane_b32 s3, v2
    {"s_bfe_u32 s%d, s2, 0x10002" % S_HALF if OPT["hb"] else "s_and_b32 s%d, s2, 1" % S_HALF}
    {"s_and_b32 s30, s2, 3" if OPT["hb"] else "s_bfe_u32 s30, s2, 0x20001"}
    s_lshl_b32 s30, s30, 5
    s_lshr_b32 s31, s2, 3
    s_add_u32 s{S_BUCK}, s30, s31
    s_cmp_ge_u32 s2, 256
    s_cbranch_scc1 L_end
    s_cmp_ge_u32 s{S_BUCK}, {NBUCK}
    s_cbranch_scc1 L_end
    s_lshl_b32 s{S_P}, s{S_BUCK}, 1
    s_add_u32 s{S_P}, s{S_P}, s{S_HALF}
    s_mov_b32 s{S_SAFE}, 0
L_restart:
    s_cmp_ge_u32 s3, 4
    s_cbranch_scc1 L_nosort
    v_mov_b32 v48, 0
    v_mov_b32 v49, 0
    v_mov_b32 v50, 0
    v_mov_b32 v51, 0
    v_lshlrev_b32 v10, 4, v1
    ds_write_b128 v10, v[48:51] offset:{L_SCNT}
    s_mul_i32 s30, s{S_P}, {CHUNK*4}
    v_lshl_add_u32 v3, v0, 4, s30
    s_add_u32 s30, s30, 4096
    v_lshl_add_u32 v18, v0, 2, s30
    v_lshlrev_b32 v10, 1, v3
    v_lshlrev_b32 v11, 1, v18
    v_mov_b32 v17, {WS_TAG}
    s_waitcnt lgkmcnt(0)
    global_load_dwordx4 v[4:7], v3, s[10:11]{NTE}
    global_load_dword v8, v18, s[10:11]{NTE}
    global_load_dword v43, v17, s[20:21]
""")
def preclear():
    E(f"""
    s_cmp_lg_u32 s{S_SAFE}, 0
    s_cbranch_scc1 L_nopre
    s_mul_i32 s30, s{S_HALF}, {G_HALF}
    s_mul_i32 s31, s{S_BUCK}, {NB*256}
    s_add_u32 s30, s30, s31
    s_add_u32 s30, s30, {4096*(5-OPT["pre"])}
    v_lshl_add_u32 v19, v0, 4, s30
    """)
    for i in range(OPT["pre"]):
        E("global_store_dwordx4 v19, v[48:51], s[20:21] sc1")
        if i + 1 < OPT["pre"]: E("v_add_u32 v19, 4096, v19")
    E("L_nopre:")
if OPT["pre"] and not OPT["prelate"]: preclear()
E(f"""
    {"" if OPT["oneb"] else "s_barrier"}
    s_barrier                               ; B0b
""")
if OPT["pre"] and OPT["prelate"]: preclear()
E(f"""
    s_branch L_sort
L_nosort:
    s_and_b32 s32, s3, 3                    ; tau
    s_lshr_b32 s33, s3, 3
    v_lshrrev_b32 v2, 4, v1                 ; g
    v_and_b32 v4, 15, v1
    s_lshl_b32 s30, s32, 2
    v_add_u32 v6, s30, v2                   ; row&15
    v_xor_b32 v7, v4, v6
    v_lshlrev_b32 v7, 4, v7
    v_lshl_add_u32 v7, v6, 8, v7
    s_mul_i32 s73, s{S_BUCK}, {NB*256}
    s_mul_i32 s31, s33, {3*4096}
    s_add_u32 s30, s73, s31
    v_add_u32 v7, s30, v7
    v_add_u32 v8, 0x1000, v7
    v_add_u32 v9, 0x2000, v7
    s_lshl_b32 s30, s32, 10
    s_add_u32 s31, s31, s30
    s_add_u32 m0, s31, {L_X}
    v_subrev_u32 v30, 256, v0               ; t = 0..511
    v_lshlrev_b32 v31, 4, v30
    v_mov_b32 v36, 0
    v_mov_b32 v37, 0
    v_mov_b32 v38, 0
    v_mov_b32 v39, 0
    v_add_u32 v40, {L_EA}, v31
    ds_write_b128 v40, v[36:39]
    ds_write_b128 v40, v[36:39] offset:8192
""")
if OPT["wpf"]:
    E(f"""
    s_lshr_b32 s30, s2, 3
    s_lshl_b32 s30, s30, 2
    v_add_u32 v3, s30, v1
    v_and_b32 v3, 127, v3
    s_lshl_b32 s30, s{S_HALF}, 7
    s_cmp_eq_u32 s3, 4
    s_cselect_b32 s31, 0x8000, 0
    s_add_u32 s30, s30, s31
    v_lshl_add_u32 v3, v3, 8, s30
    s_waitcnt lgkmcnt(0)
    s_cmp_lg_u32 s33, 0
    s_cbranch_scc1 L_nowpf
    s_cmp_eq_u32 s3, 5
    s_cselect_b32 s34, s14, s16
    s_cselect_b32 s35, s15, s17
    s_cmp_eq_u32 s3, 7
    s_cselect_b32 s34, s12, s34
    s_cselect_b32 s35, s13, s35
    s_mov_b64 exec, 0xffff
    global_load_dword v167, v3, s[34:35]
    s_mov_b64 exec, -1
L_nowpf:
    """)
    if OPT["wpf"] == 2:
        E(f"""
        s_cmp_lg_u32 s3, 8
        s_cbranch_scc1 L_notch
        s_mul_i32 s30, s{S_P}, {CHUNK*4}
        v_mov_b32 v3, s30
        v_lshlrev_b32 v5, 1, v3
        v_lshlrev_b32 v6, 21, v1
        s_mov_b64 exec, 1
        global_load_dword v167, v3, s[8:9]
        global_load_dword v166, v5, s[6:7]
        s_mov_b64 exec, 31
        global_load_dword v165, v6, s[20:21] sc1
        s_mov_b64 exec, 3
        global_load_dword v164, v6, s[18:19] sc1
        s_mov_b64 exec, -1
L_notch:
        """)
E(f"""
    s_waitcnt lgkmcnt(0)
    {"" if OPT["oneb"] else "s_barrier"}
    global_load_lds_dwordx4 v7, s[4:5]{NTX}
    s_add_u32 m0, m0, 0x1000
    s_cmp_lg_u32 s33, 0
    global_load_lds_dwordx4 v8, s[4:5]{NTX}
    s_cbranch_scc1 L_x2
    s_add_u32 m0, m0, 0x1000
    s_nop 0
    global_load_lds_dwordx4 v9, s[4:5]{NTX}
L_x2:
    s_barrier
    v_lshrrev_b32 v5, 3, v1
    v_and_b32 v3, 1, v2
    s_and_b32 s30, s3, 1
    s_lshl_b32 s30, s30, 1
    v_or_b32 v3, s30, v3                    ; sigma
    v_lshlrev_b32 v3, 1, v3
    v_and_b32 v20, 7, v1
    v_xor_b32 v3, v3, v20
    v_lshlrev_b32 v3, 4, v3
    v_lshl_add_u32 v10, v5, 8, v3
    s_sub_u32 s28, s3, 4
    s_lshl_b32 s30, s28, 11
    s_lshl_b32 s31, s{S_HALF}, 7
    s_add_u32 s30, s30, s31
    v_add_u32 v10, s30, v10
    v_add_u32 v11, 0x4000, v10
    s_lshl_b32 s28, s28, 10
    s_add_u32 s34, s16, {128*256}
    s_addc_u32 s35, s17, 0
    s_cmp_lg_u32 s3, 11
    s_cbranch_scc1 L_noc
    v_and_b32 v5, 3, v5
    v_lshlrev_b32 v20, 4, v20
    v_lshl_add_u32 v5, v5, 8, v20
    s_add_u32 s31, s31, {256*256}
    s_mov_b32 m0, {L_C}
    v_add_u32 v5, s31, v5
    global_load_lds_dwordx4 v5, s[16:17]
L_noc:
    s_add_u32 m0, s28, {L_WBV}
""")
for ti, base in enumerate((34, 14)):
    for n in range(2):
        E(f"s_nop 0\nglobal_load_lds_dwordx4 v{10+n}, s[{base}:{base+1}]")
        if not (ti == 1 and n == 1):
            E(f"s_add_u32 m0, m0, 0x2000")
if OPT["wgate"]:
    E(f"""
    v_mov_b32 v7, 0x1000000
    s_mov_b64 exec, 1
    ds_add_u32 v36, v7 offset:{L_CTR}
    s_mov_b64 exec, -1
    """)
STAMP(1)
E(f"""
    v_mov_b32 v32, {NULL_SRC}
    v_mov_b32 v33, v32
    v_mov_b32 v34, v32
    v_mov_b32 v35, v32
""")
def cover(lo, n): return list(range(lo, n - 8192, 8192)) + [n - 8192]
for o in cover(16384, L_EAEND - L_EA): E(f"ds_write_b128 v40, v[36:39] offset:{o}")
for o in cover(0, SRCB): E(f"ds_write_b128 v31, v[32:35] offset:{L_SRC + o}")
E(f"""
    v_and_b32 v32, 3, v30           ; quarter
    v_bfe_u32 v33, v30, 3, 3
    v_lshrrev_b32 v34, 5, v30
    s_and_b32 s30, s3, 3
    s_add_u32 s30, s30, 16
    s_cmp_ge_u32 s3, 8
    s_cselect_b32 s31, 7, 3
    s_cselect_b32 s29, 6, 12
    s_cselect_b64 vcc, -1, 0
    v_and_b32 v33, s31, v33
    v_mov_b32 v35, s30
    v_cndmask_b32 v34, v34, v35, vcc
    v_lshl_add_u32 v32, v34, 2, v32
    v_bfe_u32 v34, v30, 2, 1
    v_mul_u32_u24 v35, {NSTR - SSTR}, v34
    v_mul_u32_u24 v41, {L_NODE - L_SRC}, v34
    v_mul_u32_u24 v42, {L_SRC + 80*SSTR - L_DUM}, v34
    v_lshlrev_b32 v43, 4, v34
    v_add_u32 v35, {SSTR}, v35
    v_add_u32 v41, {L_SRC}, v41
    v_sub_u32 v42, {L_SRC + 80*SSTR}, v42
    v_sub_u32 v43, 16, v43
    v_lshlrev_b32 v33, 2, v33
    v_mad_u32_u24 v41, v32, v35, v41
    v_mad_u32_u24 v41, v33, v43, v41
    v_lshlrev_b32 v35, 5, v35
    v_mul_u32_u24 v34, 6, v43
    v_sub_u32 v35, v35, v34
    v_add_u32 v34, 2, v33
    v_cmp_gt_u32 s[48:49], 6, v33
    v_cmp_gt_u32 s[50:51], 6, v34
    v_cmp_gt_u32 s[52:53], s29, v33
    v_cmp_gt_u32 s[54:55], s29, v34
    v_cndmask_b32 v44, v35, 0, s[48:49]
    v_cndmask_b32 v46, v35, 0, s[50:51]
    v_add_u32 v44, v41, v44
    v_lshl_add_u32 v46, v43, 1, v46
    v_add_u32 v46, v41, v46
    v_add_u32 v45, v44, v43
    v_add_u32 v47, v46, v43
    v_cndmask_b32 v44, v42, v44, s[52:53]
    v_cndmask_b32 v45, v42, v45, s[52:53]
    v_cndmask_b32 v46, v42, v46, s[54:55]
    v_cndmask_b32 v47, v42, v47, s[54:55]
    ds_write_b128 v31, v[44:47] offset:{L_LIST}
    s_cmp_ge_u32 s3, 6
    s_cbranch_scc1 L_pf3
    v_mul_u32_u24 v42, {SSTR}, v30
    v_add_u32 v42, {L_SRC}, v42
    v_lshlrev_b32 v41, 2, v30
    ds_write_b32 v41, v42 offset:{L_CNT}
L_pf3:
    v_bfe_u32 v3, v1, 2, 2                  ; r
    v_lshl_add_u32 v5, v2, 3, v3            ; 8g + r
    v_lshrrev_b32 v3, 1, v3
    v_and_b32 v6, 1, v2
    v_lshl_or_b32 v3, v6, 1, v3             ; sigma
    v_xor_b32 v3, s32, v3
    v_lshlrev_b32 v3, 5, v3
    v_lshl_add_u32 v10, v5, 7, v3
    v_and_b32 v3, 3, v1
    v_lshl_add_u32 v10, v3, 3, v10
    s_mul_i32 s31, s33, {L_WAU - L_WBV}
    s_add_u32 s31, s31, {L_WBV}
    v_add_u32 v10, s31, v10
    v_xor_b32 v3, v2, v4
    v_lshlrev_b32 v3, 4, v3
    v_lshl_add_u32 v12, v4, 8, v3
    v_add_u32 v12, {L_X}, v12
    v_xor_b32 v13, 64, v12
    v_xor_b32 v14, 0x80, v12
    v_xor_b32 v15, 0xc0, v12
    s_mul_i32 s30, s{S_HALF}, {G_HALF}
    s_add_u32 s30, s30, s73
    s_lshl_b32 s31, s32, 6
    s_add_u32 s30, s30, s31
    v_lshlrev_b32 v11, 10, v2
    v_lshl_add_u32 v11, v4, 2, v11
    v_add_u32 v11, s30, v11
    s_lshl_b32 s31, s32, 5
    s_add_u32 s31, s31, {L_NODE}
    v_mul_u32_u24 v16, {NSTR}, v4
    v_lshl_add_u32 v16, v2, 3, v16
    v_add_u32 v16, s31, v16
    s_mov_b32 s40, {f32(-LOG2E)}
    s_mov_b32 s42, {f32(2.0**32)}
    s_mov_b32 s44, 0x07060100
    s_mov_b32 s45, 0x07060302
    s_mov_b32 s46, 0x3f80
    v_mov_b32 v17, {f32(2.0**-100)}
    v_mov_b32 v19, 1
    v_mov_b32 v18, 0
""")
get_tag("g", 160)
E(f"""
    s_waitcnt vmcnt(0)
    s_mov_b64 exec, 1
    ds_add_u32 v18, v19 offset:{L_CTR}
    s_mov_b64 exec, -1
""")
STAMP(2)
lds_wait(L_CTR, 0xff, 8, "g1")
STAMP(3)
NP = 8
RA = 72; RB = RA + 4*NP; RAD = RB + 4*NP
J3N, J12, J3N2, CELL, ROWA, FOUR, L0M, ACC, ENT, CAD = 156, 157, 158, 159, 160, 161, 162, 163, 164, 166
def rec_setup():
    E(f"""
    v_and_b32 v3, 15, v1                    ; j
    v_lshrrev_b32 v2, 4, v1
    v_lshl_add_u32 v{CELL}, v2, 3, v3
    s_lshl_b32 s30, s29, 5
    v_add_u32 v{CELL}, s30, v{CELL}
    s_lshl_b32 s30, s{S_BUCK}, 3
    s_add_u32 s30, s30, {WS_ROW}
    v_lshl_add_u32 v{ROWA}, v{CELL}, 10, s30
    v_cmp_gt_u32 s[66:67], {NP}, v3
    v_cmp_gt_u32 vcc, {NCHUNK}, v{CELL}
    v_mov_b32 v{ENT}, 0
    s_and_b64 s[66:67], s[66:67], vcc
    s_mov_b64 exec, s[66:67]
    global_load_dwordx2 v[{ENT}:{ENT+1}], v{ROWA}, s[20:21] sc1
    s_mov_b64 exec, -1
    v_mul_u32_u24 v{CELL}, {SORTB//4}, v{CELL}
    v_add_u32 v{CELL}, {WS_REC//4}, v{CELL}
    v_mul_u32_u24 v{J12}, 12, v3
    v_mul_u32_u24 v{J3N}, 3, v3
    v_not_b32 v{J3N}, v{J3N}
    v_subrev_u32 v{J3N2}, 48, v{J3N}
    v_subrev_u32 v{L0M}, 1, v3
    v_ashrrev_i32 v{L0M}, 31, v{L0M}
    v_mov_b32 v{FOUR}, 4
    """)
WF = 20; XF = 52; AC = 132
def wreads(ks):
    for t in range(2):
        for rd in range(2):
            r = WF + 16*t + 4*ks + 2*rd
            E(f"ds_read_b64_tr_b16 v[{r}:{r+1}], v10 offset:{t*16384 + ks*4096 + rd*512}")
def xread(rt, ks):
    r = XF + 16*rt + 4*ks
    return f"ds_read_b128 v[{r}:{r+3}], v{12+ks} offset:{rt*4096}"
def mf(rt, ks, transposed):
    for t in range(2):
        a = XF + 16*rt + 4*ks; w = WF + 16*t + 4*ks; d = AC + 8*(rt % 3) + 4*t
        c = "0" if ks == 0 else f"v[{d}:{d+3}]"
        if transposed: a, w = w, a
        E(f"v_mfma_f32_16x16x32_bf16 v[{d}:{d+3}], v[{a}:{a+3}], v[{w}:{w+3}], {c}")
def gemm(transposed, finish, before_first):
    for ks in range(3):
        E(xread(0, ks)); wreads(ks)
    E("s_waitcnt lgkmcnt(10)"); mf(0, 0, transposed)
    E(xread(0, 3)); wreads(3)
    E("s_waitcnt lgkmcnt(10)"); mf(0, 1, transposed)
    for ks in range(4): E(xread(1, ks))
    E("s_waitcnt lgkmcnt(9)"); mf(0, 2, transposed)
    for ks in range(4): E(xread(2, ks))
    E("s_waitcnt lgkmcnt(8)"); mf(0, 3, transposed)
    for ks in range(4): E(xread(3, ks))
    if OPT["p0e"]:
        E("s_nop 3"); finish(0)
    E("s_waitcnt lgkmcnt(8)")
    for ks in range(4):
        mf(1, ks, transposed); E(xread(4, ks))
    E(f"""
    s_mov_b64 exec, 1
    ds_add_u32 v18, v19 offset:{L_RD}
    s_mov_b64 exec, -1
    """)
    before_first()
    if not OPT["p0e"]: finish(0)
    E("s_waitcnt lgkmcnt(0)")
    for rt in range(2, 5):
        for ks in range(4): mf(rt, ks, transposed)
        finish(rt-1)
    finish(4)
def pack(rt):
    b = AC + 8*(rt % 3); h = b + 4
    for r in range(4): E(f"v_mul_f32 v{b+r}, s40, v{b+r}")
    for r in range(4): E(f"v_fma_f32 v{h+r}, v{h+r}, s42, v17")
    E(f"""
    v_cvt_pk_bf16_f32 v4, v{b}, v{b+1}
    v_cvt_pk_bf16_f32 v5, v{b+2}, v{b+3}
    v_xor_b32 v2, 0x80008000, v4
    v_xor_b32 v3, 0x80008000, v5
    v_sub_u32_sdwa v{h}, v{h}, sext(v2) dst_sel:DWORD dst_unused:UNUSED_PAD src0_sel:DWORD src1_sel:WORD_0
    v_sub_u32_sdwa v{h+1}, v{h+1}, sext(v2) dst_sel:DWORD dst_unused:UNUSED_PAD src0_sel:DWORD src1_sel:WORD_1
    v_sub_u32_sdwa v{h+2}, v{h+2}, sext(v3) dst_sel:DWORD dst_unused:UNUSED_PAD src0_sel:DWORD src1_sel:WORD_0
    v_sub_u32_sdwa v{h+3}, v{h+3}, sext(v3) dst_sel:DWORD dst_unused:UNUSED_PAD src0_sel:DWORD src1_sel:WORD_1
    """)
    w = (OPT["gp"] >> (4*(4-rt))) & 15 if OPT["gp"] else OPT["gpace"]
    if 0 <= w < 4*rt: E(f"s_waitcnt vmcnt({w})")
    if OPT["pre"] and rt == 5 - OPT["pre"]: lds_wait(L_SCNT + 126*4, 0xff, 4, "pre")
    if OPT["ghold"] == rt + 1:
        E("v_mov_b32 v6, v2\nv_mov_b32 v7, v3"); lds_wait(L_CTR, 0xff00, 0x400, "gh", sleep=1); E("v_mov_b32 v2, v6\nv_mov_b32 v3, v7")
    for r in range(4):
        E(f"v_perm_b32 v{h+r}, v{h+r}, v{4 + (r>>1)}, s{44 + (r&1)}")
        if OPT["gwin"] >= 0: E(f"s_waitcnt vmcnt({OPT['gwin']})")
        E(f"global_store_dword v11, v{h+r}, s[20:21] offset:{256*r} sc1")
    if rt < 4: E("v_add_u32 v11, 0x1000, v11")
def fin(rt):
    a = AC + 8*(rt % 3); u = a + 4
    for r in range(4): E(f"v_mul_f32 v{a+r}, s40, v{a+r}")
    for r in range(4): E(f"v_mul_f32 v{u+r}, s42, v{u+r}")
    E(f"""
    v_cvt_pk_bf16_f32 v{a}, v{a}, v{a+1}
    v_cvt_pk_bf16_f32 v{a+1}, v{a+2}, v{a+3}
    v_cvt_f64_f32 v[2:3], v{u}
    v_cvt_f64_f32 v[4:5], v{u+1}
    v_cvt_f64_f32 v[6:7], v{u+2}
    v_cvt_f64_f32 v[8:9], v{u+3}
    ds_write_b64 v16, v[{a}:{a+1}] offset:512
    ds_write2_b64 v16, v[2:3], v[4:5] offset0:0 offset1:16
    ds_write2_b64 v16, v[6:7], v[8:9] offset0:32 offset1:48
    """)
    if rt < 4: E(f"v_add_u32 v16, {16*NSTR}, v16")
E(f"""
    s_cmp_lg_u32 s33, 0
    s_cbranch_scc1 L_gemm2
    s_cmp_lg_u32 s{S_SAFE}, 0
    s_cbranch_scc1 L_nog1
    s_setprio 2
""")
gemm(False, pack, lambda: lds_wait(L_CTR, {1: 0x80000, 2: 0xc0000}[OPT["hold"]], 0, "hold", sleep=1, ne=True) if OPT["hold"] else None)
E("s_setprio 0")
if OPT["gate"] or OPT["gate2"] >= 3:
    E(f"""
    s_mov_b64 exec, 1
    ds_add_u32 v18, v19 offset:{L_GST}
    s_mov_b64 exec, -1
    """)
STAMP(4)
main_consts()
E(f"""
    s_lshl_b32 s30, s{S_P}, 7
    s_add_u32 s30, s30, {WS_FL2}
    v_mov_b32 v60, s30
    v_mov_b32 v62, s{S_TAG}
    v_mov_b32 v63, s{S_TAG+1}
    v_mov_b32 v2, 0
    v_mov_b32 v3, 1
    s_lshl_b32 s30, s32, 13
    s_lshl_b32 s31, s{S_HALF}, 7
    s_add_u32 s30, s30, s31
    s_add_u32 s30, s30, {WS_FL2}
    v_lshl_add_u32 v64, v1, 8, s30
    s_mul_i32 s30, s32, {2560*256}
    s_lshr_b32 s31, s2, 3
    s_mul_i32 s31, s31, {160*128}
    s_add_u32 s30, s30, s31
    v_lshl_add_u32 v65, v1, 7, s30
    {'' if OPT['gpe'] else 'v_min_u32 v65, %d, v65' % (G_HALF - 128)}
    s_mul_i32 s30, s{S_HALF}, {G_HALF}
    v_add_u32 v65, s30, v65
    s_mov_b64 exec, 1
    s_waitcnt vmcnt(0)
    ds_add_rtn_u32 v61, v2, v3 offset:{L_DONE2}
    s_waitcnt lgkmcnt(0)
    v_readfirstlane_b32 s30, v61
    s_cmp_lg_u32 s30, 3
    s_cbranch_scc1 L_nofl
    global_store_dwordx2 v60, v[62:63], s[20:21] sc1
    ds_add_u32 v2, v3 offset:{L_DONE2}
L_nofl:
""")
STAMP(5)
if OPT["p2gate"]:
    E("s_mov_b64 exec, -1")
    lds_wait(L_CTR, 0xff0000, 0x080000, "pg", sleep=1)
    E("s_mov_b32 exec_hi, 0")
if OPT["p2wait"]: E(f"s_sleep {OPT['p2wait']}")
STAMP(6)
def gready(lab):
    if OPT["gpe"]: E(f"s_cmp_lg_u32 s73, 0\ns_cbranch_scc1 L_gr{lab}")
    if OPT["gpf"]:
        E(f"""
        {"s_bfm_b64 exec, %d, 0" % OPT["gpf"] if OPT["gpf"] < 64 else "s_mov_b64 exec, -1"}
        global_load_dword v35, v65, s[20:21] sc1
        """)
    E(f"""
L_gr{lab}:
    s_mov_b64 exec, 1
    v_mov_b32 v2, 0
    v_mov_b32 v3, 1
    ds_add_u32 v2, v3 offset:{L_GOK}
    """)
E(f"""
    s_cmp_eq_u32 s32, 3
    s_cselect_b32 exec_lo, 0x1fffffff, -1
    {"" if OPT["p1st"] else "s_mov_b64 s[66:67], exec"}
    {"" if OPT["p1st"] else "s_branch L_p2n"}
    global_load_dwordx2 v[66:67], v64, s[20:21] sc1
    s_waitcnt vmcnt(0)
    v_cmp_ne_u64 s[66:67], s[{S_TAG}:{S_TAG+1}], v[66:67]
""")
if OPT["gpe"]:
    n = OPT["gpe"]
    E(f"""
    s_mov_b32 s73, 0
    s_lshr_b32 s30, s2, 3
    s_bitcmp1_b32 s66, s30
    s_cbranch_scc1 L_nogpe
    s_mov_b32 s73, 1
    s_bitcmp1_b32 exec_lo, s30
    s_cbranch_scc0 L_nogpe
    """)
    for k in range(0, n, 64):
        E("s_mov_b64 exec, -1")
        if k: E(f"v_add_u32 v65, 8192, v65")
        if n - k < 64: E(f"s_bfm_b64 exec, {n-k}, 0")
        E(f"global_load_dword v{(35, 68, 69)[k//64]}, v65, s[20:21] sc1")
    E("L_nogpe:")
E(f"""
    s_cmp_lg_u64 s[66:67], 0
    s_cbranch_scc1 L_p2n
""")
gready("a")
E("L_p2n:\ns_mov_b64 exec, -1")
STAMP(7)
E(f"""
    s_branch L_b4
L_nog1:
    s_mov_b64 exec, 1
    ds_add_u32 v18, v19 offset:{L_RD}
    s_mov_b64 exec, -1
    s_branch L_rec
L_gemm2:
""")
E(f"""
    v_lshrrev_b32 v5, 3, v1
    v_bfe_u32 v3, v1, 4, 1
    v_lshlrev_b32 v3, 1, v3
    v_and_b32 v4, 7, v1
    v_xor_b32 v3, v3, v4
    v_lshlrev_b32 v3, 4, v3
    v_lshl_add_u32 v6, v5, 8, v3
    s_lshl_b32 s30, s{S_HALF}, 7
    s_and_b32 s31, s3, 1
    s_lshl_b32 s31, s31, 14
    s_add_u32 s30, s30, s31
    v_add_u32 v6, s30, v6
    v_xor_b32 v7, 64, v6
    v_add_u32 v8, 2048, v6
    v_add_u32 v9, 3072, v7
    v_add_u32 v7, 1024, v7
    s_lshl_b32 s30, s32, 13
    s_add_u32 m0, s30, {L_WAU}
    s_cmp_lt_u32 s32, 2
    s_cselect_b32 s34, s16, s12
    s_cselect_b32 s35, s17, s13
    global_load_lds_dwordx4 v6, s[34:35]
    global_load_lds_dwordx4 v7, s[34:35] offset:1024
    global_load_lds_dwordx4 v8, s[34:35] offset:2048
    global_load_lds_dwordx4 v9, s[34:35] offset:3072
    s_add_u32 m0, m0, 4096
    s_add_u32 s34, s34, 8192
    s_addc_u32 s35, s35, 0
    global_load_lds_dwordx4 v6, s[34:35]
    global_load_lds_dwordx4 v7, s[34:35] offset:1024
    global_load_lds_dwordx4 v8, s[34:35] offset:2048
    global_load_lds_dwordx4 v9, s[34:35] offset:3072
""")
for rt in range(5):
    for ks in range(4): E(xread(rt, ks))
E(f"""
    s_mov_b64 exec, 1
    ds_add_u32 v18, v19 offset:{L_RD}
    s_mov_b64 exec, -1
""")
E(f"""
    s_mov_b64 exec, 1
    s_waitcnt vmcnt(0)
    ds_add_u32 v18, v19 offset:{L_RD}
    s_mov_b64 exec, -1
    s_sub_u32 s29, s3, 4
""")
rec_setup()
lds_wait(L_RD, 0xff, 12, "rd")
for ks in range(4): wreads(ks)
for ks in range(4):
    E(f"s_waitcnt lgkmcnt({12 - 4*ks})"); mf(0, ks, True)
for rt in range(1, 5):
    for ks in range(4): mf(rt, ks, True)
    fin(rt-1)
fin(4)
STAMP(4)
E(f"""
    s_branch L_rec
L_sort:
""")
STAMP(1)
E(f"""
    s_mov_b32 s40, {f32(-LOG2E)}
    s_mov_b32 s46, 0x3f80
    s_cmp_lg_u32 s{S_SAFE}, 0
    s_cbranch_scc1 L_sortskip
    v_mov_b32 v21, 1
    v_mov_b32 v20, 3
    s_mov_b32 s31, 52429
    s_movk_i32 s32, -20
    v_lshlrev_b32 v9, 3, v1
    v_lshlrev_b32 v33, 4, v0
    s_mul_i32 s30, s{S_P}, {SORTB}
    s_add_u32 s30, s30, {WS_REC + 4096}
    v_add_u32 v32, s30, v33
    v_add_u32 v34, 8192, v32
    s_lshl_b32 s30, s{S_P}, 10
    s_add_u32 s30, s30, {WS_ROW}
    v_lshl_add_u32 v42, v1, 4, s30
    s_mov_b32 s34, {POLL_MAX}
    s_setprio 3
    s_waitcnt vmcnt({1 + OPT['pre']})
""")
STAMP(2)
FSTAMP(1)
for i in range(5):
    E(f"""
    v_mul_u32_u24 v{22+i}, s31, v{4+i}
    v_lshrrev_b32 v{22+i}, 22, v{22+i}
    v_lshlrev_b32 v{22+i}, 2, v{22+i}        ; bucket*4
    ds_add_rtn_u32 v{27+i}, v{22+i}, v20 offset:{L_SCNT}
    """)
E(f"""
    s_mov_b64 exec, 1
    s_cmp_lg_u32 s3, 0
    s_cbranch_scc1 L_notag
    s_waitcnt vmcnt({OPT['pre']})
    ds_write_b32 v48, v43 offset:{L_SCNT + 125*4}
L_notag:
    ds_add_u32 v48, v21 offset:{L_SCNT + 127*4}
    s_mov_b64 exec, -1
""")
if OPT["ewhen"] == 1: E(f"""
    global_load_dwordx4 v[12:15], v3, s[8:9]{NTE}
    global_load_dword v16, v18, s[8:9]{NTE}
    global_load_dwordx4 v[52:55], v10, s[6:7]{NTE}
    global_load_dwordx4 v[56:59], v10, s[6:7] offset:16{NTE}
    global_load_dwordx2 v[60:61], v11, s[6:7]{NTE}
""")
E(f"""
L_s1:
    ds_read_b32 v38, v48 offset:{L_SCNT + 127*4}
    ds_read_b64 v[36:37], v9 offset:{L_SCNT}
    s_sub_u32 s34, s34, 1
    s_cbranch_scc1 L_s1d
    s_waitcnt lgkmcnt(0)
    v_readfirstlane_b32 s30, v38
    s_cmp_lg_u32 s30, 4
    s_cbranch_scc1 L_s1
L_s1d:
""")
FSTAMP(2)
E(f"""
    v_add3_u32 v39, v36, v37, 2
    v_add3_u32 v38, v36, v37, 2
    v_readlane_b32 s{S_TAGRAW}, v37, 62
""")
fill = []
for i in range(5):
    fill += [f"v_mad_i32_i24 v{4+i}, v{22+i}, s32, v{4+i}", f"v_lshlrev_b32 v{4+i}, 24, v{4+i}"]
for k, m in enumerate(SCAN):
    E(f"v_add_u32_dpp v39, v39, v39 {m}")
    for x in fill[2*k:2*k+2]: E(x)
E(f"""
    v_sub_u32 v40, v39, v38
    v_add3_u32 v41, v40, v36, 1
    s_mov_b32 s30, {L_SORT}
    v_lshl_add_u32 v38, v40, 2, s30
    v_lshl_add_u32 v39, v41, 2, s30
    ds_write_b64 v9, v[38:39] offset:{L_SOFF}
""")
for i in range(5):
    E(f"ds_read_b32 v{22+i}, v{22+i} offset:{L_SOFF}")
finish_tag()
E(f"""
    s_cmp_lg_u32 s3, 0
    s_cbranch_scc1 L_nopub
    s_and_b32 s35, s{S_TAG+1}, 0xff000000
    v_mov_b32 v45, s{S_TAG}
    v_mov_b32 v47, s{S_TAG}
    v_lshl_or_b32 v44, v36, 12, v40
    v_lshl_or_b32 v46, v37, 12, v41
    v_or_b32 v44, s35, v44
    v_or_b32 v46, s35, v46
    global_store_dwordx4 v42, v[44:47], s[20:21] sc1
    {"s_waitcnt vmcnt(1)" if OPT["ewhen"] == 1 else ""}
    s_branch {"L_pub" if OPT["ewhen"] == 1 else "L_nochk"}
L_nopub:
    s_cmp_lg_u32 s3, 1
    s_cbranch_scc1 L_nochk
    v_mov_b32 v44, s{S_TAG+1}
    s_mov_b32 exec_hi, 0x7fffffff
    ds_add_u32 v38, v44
    ds_add_u32 v39, v44
    s_mov_b32 exec_hi, -1
L_nochk:
""")
if OPT["ewhen"] >= 3:
    E("v_mov_b32 v19, v3")
    if OPT["ewhen"] == 3: lds_wait(L_CTR, 0xff, 8, "ew")
    else: lds_wait(L_CTR, 0xff, 0, "ew", ne=True)
    E("v_mov_b32 v3, v19")
if OPT["ewhen"] >= 2: E(f"""
    global_load_dwordx4 v[12:15], v3, s[8:9]{NTE}
    global_load_dword v16, v18, s[8:9]{NTE}
    global_load_dwordx4 v[52:55], v10, s[6:7]{NTE}
    global_load_dwordx4 v[56:59], v10, s[6:7] offset:16{NTE}
    global_load_dwordx2 v[60:61], v11, s[6:7]{NTE}
""")
E(f"""
    s_waitcnt vmcnt(0)
L_pub:
""")
STAMP(4)
FSTAMP(3)
for i in range(5): E(f"v_lshl_or_b32 v{4+i}, v{12+i}, 8, v{4+i}")
E("s_waitcnt lgkmcnt(0)")
for i in range(5):
    E(f"""
    v_lshl_add_u32 v{27+i}, v{27+i}, 2, v{22+i}
    v_add3_u32 v{12+i}, v{52+2*i}, v{53+2*i}, v{4+i}
    ds_write2_b32 v{27+i}, v{52+2*i}, v{53+2*i} offset0:2 offset1:3
    ds_write_b32 v{27+i}, v{4+i} offset:4
    ds_sub_u32 v{22+i}, v{12+i}
    """)
E(f"""
    s_mov_b64 exec, 1
    ds_add_u32 v48, v21 offset:{L_SCNT + 126*4}
    s_mov_b64 exec, -1
""")
FSTAMP(4)
E(f"""
    s_mov_b32 s34, {POLL_MAX}
L_s2:
    ds_read_b32 v38, v48 offset:{L_SCNT + 126*4}
    {f"ds_read_b32 v39, v48 offset:{L_CTR}" if OPT["wgate"] else ""}
    ds_read_b128 v[72:75], v33 offset:{L_SORT}
    s_sub_u32 s34, s34, 1
    s_cbranch_scc1 L_s2d
    s_waitcnt lgkmcnt(1)
    v_readfirstlane_b32 s30, v38
""")
if OPT["wgate"]:
    E(f"""
    v_readfirstlane_b32 s31, v39
    s_lshr_b32 s31, s31, 24
    s_add_u32 s30, s30, s31
    """)
E(f"""
    s_cmp_lg_u32 s30, {12 if OPT["wgate"] else 4}
    s_cbranch_scc1 L_s2
L_s2d:
""")
FSTAMP(5)
E(f"""
    ds_read_b128 v[76:79], v33 offset:{L_SORT + 4096}
    ds_read_b128 v[80:83], v33 offset:{L_SORT + 8192}
    ds_read_b128 v[84:87], v33 offset:{L_SORT + 12288}
    s_waitcnt lgkmcnt(3)
    global_store_dwordx4 v32, v[72:75], s[20:21] offset:-4096 sc1
    s_waitcnt lgkmcnt(2)
    global_store_dwordx4 v32, v[76:79], s[20:21] sc1
    s_waitcnt lgkmcnt(1){f" vmcnt({OPT['rpace']})" if OPT['rpace'] >= 0 else ""}
    global_store_dwordx4 v34, v[80:83], s[20:21] offset:-4096 sc1
    s_cmp_eq_u32 s3, 3
    s_cselect_b32 exec_hi, 0, -1
    s_waitcnt lgkmcnt(0){f" vmcnt({OPT['rpace']})" if OPT['rpace'] >= 0 else ""}
    global_store_dwordx4 v34, v[84:87], s[20:21] sc1
    s_mov_b32 exec_hi, -1
""")
FSTAMP(6)
for k in range(4): E(f"ds_write_b128 v33, v[48:51] offset:{L_SORT + 4096*k}")
STAMP(3)
FSTAMP(7)
E(f"""
    s_branch L_sortdone
L_sortskip:
    s_waitcnt vmcnt(0)
L_sortdone:
    s_mov_b32 s29, s3
""")
rec_setup()
E(f"""
L_rec:
""")
lds_wait(L_CTR, 0xff, 8, "r0")
main_consts()
STAMP(5)
E(f"""
    s_cmp_ge_u32 s3, 4
    s_cbranch_scc1 L_nod2
    v_mov_b32 v2, 0
    v_mov_b32 v3, 0x100
    s_mov_b64 exec, 1
    s_waitcnt vmcnt(0)
    ds_add_u32 v2, v3 offset:{L_CTR}
    s_mov_b64 exec, -1
L_nod2:
    s_cmp_lg_u32 s{S_SAFE}, 0
    s_cbranch_scc1 L_recskip
    s_lshr_b32 s35, s{S_TAG+1}, 24
    s_mov_b64 exec, s[66:67]
    s_mov_b32 s34, {POLL_MAX}
    s_branch L_p1c
L_p1:
    global_load_dwordx2 v[{ENT}:{ENT+1}], v{ROWA}, s[20:21] sc1
L_p1c:
    s_sub_u32 s34, s34, 1
    s_cbranch_scc1 L_toobig
    s_waitcnt vmcnt(0)
    v_cmp_ne_u32 vcc, s{S_TAG}, v{ENT+1}
    v_cmp_ne_u32_sdwa s[48:49], v{ENT}, s35 src0_sel:BYTE_3 src1_sel:DWORD
    s_or_b64 exec, vcc, s[48:49]
    s_cbranch_scc1 L_p1
    s_mov_b64 exec, -1
""")
STAMP(6)
if OPT["cnt"]: E(f"s_sub_u32 s{ST0+2}, {POLL_MAX+1}, s34\ns_mov_b32 s34, {POLL_MAX}")
E(f"""
    v_and_b32 v{CAD}, 0xfff, v{ENT}
    v_bfe_u32 v{ENT}, v{ENT}, 12, 12            ; 3*count
    v_add_lshl_u32 v{CAD}, v{CAD}, v{CELL}, 2
    v_cmp_ne_u32 vcc, 0, v{ENT}
    s_sub_u32 s30, 0, s{S_TAG+1}
    v_mov_b32 v2, s30
    v_cndmask_b32 v{ENT+1}, 0, v2, vcc
    v_cmp_lt_u32 vcc, 96, v{ENT}
    v_cmp_lt_u32 s[68:69], 48, v{ENT}
    s_cbranch_vccnz L_toobig
""")
for p in range(NP):
    E(f"""
    v_add_co_u32_dpp v2, vcc, v{ENT}, v{J3N} row_newbcast:{p} row_mask:0xf bank_mask:0xf
    v_add_u32_dpp v{RAD+p}, v{CAD}, v{J12} row_newbcast:{p} row_mask:0xf bank_mask:0xf
    s_mov_b64 s[{48+2*p}:{49+2*p}], vcc
    """)
lds_wait(L_CTR, 0xff00, 0x400, "r1")
if OPT["gate"]: lds_wait(L_GST, 0xff, 4, "gt")
if OPT["gate2"] == 1:
    E("s_cmp_lt_u32 s3, 4\ns_cbranch_scc1 L_wd_g2")
    lds_wait(L_DONE2, 0xff, 5, "g2")
if OPT["gate2"] == 3:
    E("s_cmp_lt_u32 s3, 4\ns_cbranch_scc1 L_wd_g2")
    lds_wait(L_GST, 0xff, 4, "g2")
if OPT["gate2"] in (2, 4):
    E(f"""
    s_cmp_lt_u32 s3, 4
    s_cbranch_scc1 L_g2d
    s_mov_b32 s31, {POLL_MAX}
L_g2:
    ds_read_b128 v[60:63], v2 offset:{L_CTR}
    {f"ds_read_b32 v61, v2 offset:{L_GST}" if OPT["gate2"] == 4 else ""}
    s_sub_u32 s31, s31, 1
    s_cbranch_scc1 L_g2d
    s_waitcnt lgkmcnt(0)
    v_readfirstlane_b32 s30, v62
    v_readfirstlane_b32 s28, v60
    v_readfirstlane_b32 s29, v61
    s_cmp_eq_u32 s30, 5
    s_cbranch_scc1 L_g2d
    {"s_cmp_lg_u32 s29, 4" if OPT["gate2"] == 4 else ""}
    {"s_cbranch_scc1 L_g2" if OPT["gate2"] == 4 else ""}
    s_and_b32 s28, s28, 0xc0000
    s_cbranch_scc0 L_g2
L_g2d:
    """)
E(f"""
    s_or_b32 s68, s68, s69
    s_lshr_b32 s69, s68, 16
    s_or_b32 s68, s68, s69
""")
def mask2(p): return f"v_add_co_u32_dpp v2, vcc, v{ENT}, v{J3N2} row_newbcast:{p} row_mask:0xf bank_mask:0xf"
def loads(ps, lab):
    E(f"s_and_b32 s30, s68, {sum(1 << p for p in ps)}\ns_cbranch_scc0 L_nx{lab}")
    for p in ps:
        r = RB + 4*p
        E(f"""
        s_bitcmp1_b32 s68, {p}
        s_cbranch_scc0 L_nx{lab}{p}
        {mask2(p)}
        s_mov_b64 exec, vcc
        global_load_dwordx4 v[{r}:{r+3}], v{RAD+p}, s[20:21] offset:192 sc1
        s_mov_b64 exec, -1
L_nx{lab}{p}:
        """)
    E(f"L_nx{lab}:")
    for p in ps:
        r = RA + 4*p
        E(f"""
        s_mov_b64 exec, s[{48+2*p}:{49+2*p}]
        global_load_dwordx4 v[{r}:{r+3}], v{RAD+p}, s[20:21]{SC1 if (OPT["rsc1"] or lab != "m") else ""}
        """)
    E("s_mov_b64 exec, -1")
loads(range(NP), "m")
def issued():
    if OPT["p2gate"]:
        E(f"""
        v_mov_b32 v2, 0
        v_mov_b32 v3, 0x10000
        s_mov_b64 exec, 1
        ds_add_u32 v2, v3 offset:{L_CTR}
        s_mov_b64 exec, -1
        """)
if not OPT["sig"]: issued()
STAMP(7)
def rank(r, m):
    E(f"""
    s_mov_b64 exec, {m}
    v_mul_u32_u24_sdwa v{r}, v{FOUR}, v{r+1} dst_sel:DWORD dst_unused:UNUSED_PAD src0_sel:DWORD src1_sel:BYTE_3
    v_and_b32 v{r+1}, {OPT['srcmask']}, v{r+1}
    ds_add_rtn_u32 v{r}, v{r}, v{FOUR} offset:{L_CNT}
    """)
def put(r, m):
    E(f"""
    s_mov_b64 exec, {m}
    v_lshlrev_b32 v2, 1, v{r}
    ds_write_b32 v{r}, v{r+1}
    ds_write_b64 v2, v[{r+2}:{r+3}] offset:{L_EA - 2*L_SRC}
    """)
retries = []
pending = []
for gi, grp in enumerate(((0, 1, 2, 3), (4, 5), (6, 7))):
    bits = sum(1 << p for p in grp); m32 = bits | (bits << 16)
    E(f"""
L_ck{gi}:
    s_mov_b32 vcc_lo, {m32}
    s_mov_b32 vcc_hi, {m32}
    v_cndmask_b32 v{ACC}, 0, v{ENT+1}, vcc
    s_and_b32 s30, s68, {bits}
    s_cbranch_scc1 L_xa{gi}
L_xb{gi}:
    """)
    def xacc():
        E(f"L_xa{gi}:\ns_waitcnt vmcnt({NP})")
        for p in grp:
            r = RB + 4*p
            E(f"""
            {mask2(p)}
            s_mov_b64 exec, vcc
            v_add3_u32 v{ACC}, v{ACC}, v{r+1}, v{r+2}
            v_add_u32 v{ACC}, v{ACC}, v{r+3}
            s_mov_b64 exec, -1
            """)
        E(f"s_branch L_xb{gi}")
    emit_to(outofline, xacc)
    for p in grp:
        r = RA + 4*p
        E(f"""
        s_waitcnt vmcnt({NP-1-p})
        s_mov_b64 exec, s[{48+2*p}:{49+2*p}]
        v_and_b32 v{r}, v{r}, v{L0M}
        v_add3_u32 v{ACC}, v{ACC}, v{r+2}, v{r+3}
        v_add3_u32 v{ACC}, v{ACC}, v{r}, v{r+1}
        """)
    E("s_mov_b64 exec, -1\ns_nop 0")
    for k in (1, 2, 4, 8):
        E(f"v_add_u32_dpp v{ACC}, v{ACC}, v{ACC} row_ror:{k} row_mask:0xf bank_mask:0xf")
        if k < 8: E("s_nop 1")
    E(f"v_cmp_ne_u32 vcc, 0, v{ACC}\ns_cbranch_vccnz L_rt{gi}")
    if OPT["rst"]: STAMP(1+gi)
    if OPT["sig"] == gi + 1: issued()
    def retry():
        E(f"L_rt{gi}:\ns_sub_u32 s34, s34, 1\ns_cbranch_scc1 {'L_toobig' if gi < OPT['sig'] else 'L_giveup'}")
        loads(grp, f"r{gi}_")
        E(f"s_waitcnt vmcnt(0)\ns_branch L_ck{gi}")
    emit_to(outofline, retry)
    for p in grp: rank(RA + 4*p, f"s[{48+2*p}:{49+2*p}]")
    E(f"s_and_b32 s30, s68, {bits}\ns_cbranch_scc1 L_ya{gi}\nL_yb{gi}:")
    def xput():
        E(f"L_ya{gi}:")
        for p in grp:
            r = RB + 4*p
            E(f"""
            s_bitcmp1_b32 s68, {p}
            s_cbranch_scc0 L_yn{p}
            s_mov_b64 exec, -1
            {mask2(p)}
            """)
            rank(r, "vcc")
            E("s_waitcnt lgkmcnt(0)")
            put(r, "vcc")
            E(f"L_yn{p}:")
        E(f"s_branch L_yb{gi}")
    emit_to(outofline, xput)
    for k, p in enumerate(grp):
        E(f"s_waitcnt lgkmcnt({len(grp) - 1 - k + 2*k})")
        put(RA + 4*p, f"s[{48+2*p}:{49+2*p}]")
    E("s_mov_b64 exec, -1")
E(f"""
    {f"s_sub_u32 s{ST0+4}, {POLL_MAX+1}, s34" if OPT["cnt"] else ""}
    s_branch L_b4
L_toobig:
    s_mov_b64 exec, -1
""")
issued()
E(f"""
L_giveup:
    v_mov_b32 v2, 0
    ds_write_b32 v2, v{FOUR} offset:{L_FLAG}
L_recskip:
    s_waitcnt vmcnt(0)
L_b4:
    s_setprio {OPT["p0"] if OPT["prio"] == 2 else 0}
    s_mul_i32 s30, s{S_HALF}, {G_HALF}
    {f"s_add_u32 s30, s30, {WS0}" if WS0 else ""}
    s_add_u32 s36, s20, s30
    s_addc_u32 s37, s21, 0
    s_mov_b32 s38, {OPT['nrec'] or G_HALF}
    s_mov_b32 s39, 0x20000
    s_mov_b32 s44, 128
    s_mov_b32 s45, 128
    ds_read_b128 v[60:63], v{LP}
    ds_read_b64 v[{AG}:{AG+1}], v{LP} offset:64
    ds_read_b64 v[{WN2}:{WN2+1}], v{LP} offset:72
    ds_read_b32 v{WE}, v{LP+1}
    s_waitcnt lgkmcnt(0)
    v_lshl_add_u64 v[{AG}:{AG+1}], v[{AG}:{AG+1}], 0, v[{LN8}:{LN8+1}]
    v_lshl_add_u32 v{WE}, v{WE}, 1, v{EAC}
""")
if OPT["warm"]:
    E(f"""
    s_barrier
    s_lshr_b32 s30, s2, 3
    s_mul_i32 s30, s30, 98304
    v_lshl_add_u32 v2, v0, 7, s30
    buffer_load_dword v3, v2, s[36:39], 0 offen sc1
    s_waitcnt vmcnt(0)
    s_sleep 40
    """)
STAMP(8)
E(f"""
    s_barrier                               ; B4
    s_cmp_lg_u32 s{S_SAFE}, 0
    s_cbranch_scc1 L_safe
    ds_read_b128 v[{T}:{T+3}], v60
    ds_read_b128 v[{T+4}:{T+7}], v61
    ds_read_b64 v[{XA}:{XA+1}], v{AG} offset:512
    ds_read_b64 v[{EA}:{EA+1}], v{WE}
    s_lshr_b32 s30, s3, 2
    s_cmp_lg_u32 s30, 1
    s_cbranch_scc1 L_nopoll
    s_mov_b64 exec, s[66:67]
    s_cbranch_execz L_p2e
    s_mov_b32 s31, {POLL_MAX}
L_p2:
    global_load_dwordx2 v[66:67], v64, s[20:21] sc1
    s_sub_u32 s31, s31, 1
    s_cbranch_scc1 L_p2d
    s_waitcnt vmcnt(0)
    v_cmp_ne_u64 vcc, s[{S_TAG}:{S_TAG+1}], v[66:67]
    s_and_b64 exec, exec, vcc
    s_cbranch_scc0 L_p2d
    {f"s_sleep {OPT['p2sleep']}" if OPT['p2sleep'] else ""}
    s_branch L_p2
L_p2d:
""")
gready("b")
E(f"""
L_p2e:
    s_mov_b64 exec, -1
L_nopoll:
    s_cmp_lt_u32 s3, {NW-2}
    s_cbranch_scc1 L_nobuild
    v_lshlrev_b32 v2, 3, v1
    v_mov_b32 v3, 0
    ds_read_b64 v[72:73], v2 offset:{L_CNT}
    ds_read_b32 v79, v3 offset:{L_FLAG}
    v_mul_u32_u24 v74, {2*SSTR}, v1
    v_add_u32 v74, {L_SRC + 96}, v74
    v_add_u32 v75, {SSTR}, v74
    v_mul_u32_u24 v82, {2*NSTR}, v1
    s_and_b32 s32, s3, 1
    s_mul_i32 s30, s32, {NSTR}
    s_add_u32 s30, s30, {L_NODE}
    v_add_u32 v82, s30, v82
    v_mov_b32 v83, v82
    s_mul_i32 s30, s32, {SSTR}
    v_add_u32 v80, s30, v74
    v_add_u32 v81, 16, v80
    s_waitcnt lgkmcnt(0)
    v_sub_u32 v72, v72, v74 clamp
    v_sub_u32 v73, v73, v75 clamp
    v_max_u32 v76, v72, v73
    v_cmp_lt_u32 vcc, 160, v76
    v_cmp_ne_u32 s[48:49], 0, v79
    v_add_u32 v74, 12, v72
    v_add_u32 v75, 12, v73
    s_or_b64 vcc, vcc, s[48:49]
    s_cbranch_scc1 L_bad
    v_add_u32 v72, 28, v72
    v_add_u32 v73, 28, v73
    v_lshrrev_b32 v74, 5, v74
    v_lshrrev_b32 v75, 5, v75
    v_lshrrev_b32 v72, 5, v72
    v_lshrrev_b32 v73, 5, v73
    v_sub_u32 v72, v72, v74
    v_sub_u32 v73, v73, v75
    v_lshl_or_b32 v72, v72, 16, v74
    v_lshl_or_b32 v73, v73, 16, v75
    v_add_u32 v76, v72, v73
    v_add_u32 v77, v72, v73
""")
scan(77)
E(f"""
    s_cmp_eq_u32 s32, 0
    s_cselect_b64 vcc, -1, 0
    v_readlane_b32 s30, v77, 63
    v_cndmask_b32 v76, v73, v76, vcc
    v_cndmask_b32 v72, v73, v72, vcc
    v_sub_u32 v77, v77, v76
    s_and_b32 s31, s30, 0xffff
    s_add_u32 s31, s31, 3
    s_lshr_b32 s31, s31, 2
    s_add_u32 s30, s30, 0x30000
    s_lshr_b32 s30, s30, 18
    s_lshl_b32 s33, s31, 1
    s_add_u32 s33, s33, s30
    s_cmp_gt_u32 s33, 112
    s_cbranch_scc1 L_bad
    s_lshl_b32 s30, s30, 8
    s_or_b32 s29, s30, s31
    v_and_b32 v74, 0xffff, v72
    v_and_b32 v76, 0xffff, v77
    s_mov_b32 s34, {L_LISTC}
    s_mov_b32 s35, {L_LIST + 384}
""")
def slotaddr():
    E(f"""
    v_add_u32 v78, 16, v76
    v_bfe_u32 v79, v76, 2, 2
    v_lshl_add_u32 v79, v79, 10, s34
    v_lshrrev_b32 v84, 5, v78
    v_lshl_add_u32 v79, v84, 7, v79
    v_bfe_u32 v84, v78, 4, 1
    v_lshl_add_u32 v79, v84, 3, v79
    v_lshrrev_b32 v84, 2, v76
    v_cmp_gt_u32 vcc, 32, v76
    v_lshl_add_u32 v84, v84, 9, s35
    v_and_b32 v78, 3, v76
    v_cndmask_b32 v79, v79, v84, vcc
    v_lshl_add_u32 v79, v78, 4, v79
    """)
E("""
L_bf:
    v_cmp_ne_u32 vcc, 0, v74
    s_and_b64 exec, exec, vcc
    s_cbranch_execz L_bfd
""")
slotaddr()
E(f"""
    ds_write_b64 v79, v[80:81]
    ds_write_b64 v79, v[82:83] offset:64
    v_add_u32 v80, 32, v80
    v_add_u32 v81, 32, v81
    v_add_u32 v76, 1, v76
    v_subrev_u32 v74, 1, v74
    s_branch L_bf
L_bfd:
    s_mov_b64 exec, -1
    v_lshrrev_b32 v77, 16, v77
    v_lshrrev_b32 v76, 3, v77
    v_add_u32 v76, s31, v76
    v_and_b32 v78, 3, v77
    v_lshl_add_u32 v76, v76, 2, v78
""")
slotaddr()
E(f"""
    v_and_b32 v78, 4, v77
    v_add_u32 v79, v79, v78
    v_cmp_lt_u32 vcc, 0xffff, v72
    s_mov_b64 exec, vcc
    ds_write2_b32 v79, v80, v82 offset0:0 offset1:16
    s_mov_b64 exec, -1
    s_mul_i32 s29, s29, s32
    s_add_u32 s29, s29, 0x10000
    s_branch L_built
L_bad:
    s_mov_b32 s29, 0x1010000
L_built:
    v_mov_b32 v2, s29
    s_mov_b64 exec, 1
    ds_add_u32 v3, v2 offset:{L_NST}
    s_add_u32 s30, s{S_P}, s32
    s_cmp_lg_u32 s30, 0
    s_cbranch_scc1 L_notw
    v_mov_b32 v2, s{S_TAG}
    v_mov_b32 v3, {WS_TAG}
    global_store_dword v3, v2, s[20:21] sc1
L_notw:
    s_mov_b64 exec, -1
L_nobuild:
    s_waitcnt lgkmcnt(0)
""")
assert DIST == 2 and not EARLY
E(m_a(D0))
for o in range(T, T+8, 2): E(oadd(o))
E(m_e(D0, 0))
lds_wait(L_GOK, 0xff, 4, "gok")
if OPT["stamps"] == 2: E(f"s_memrealtime s[{ST0+16}:{ST0+17}]")
if not OPT["nogather"]:
    for q in range(8): E(gload(G + 4*q, T+q))
STAMP(9)
E(f"""
    s_mov_b32 s31, {POLL_MAX}
    s_waitcnt vmcnt(4)
""")
E(m_s(D0, A1, G)); E(m_s(D0, A2, G+8))
E(f"""
L_wn:
    ds_read_b32 v3, v2 offset:{L_NST}
    ds_read_b128 v[{WS4}:{WS4+3}], v{LP} offset:{128*((DIST+EARLY)//4)}
    s_sub_u32 s31, s31, 1
    s_cbranch_scc1 L_gosafe
    s_waitcnt lgkmcnt(0)
    v_readfirstlane_b32 s30, v3
    s_bitcmp1_b32 s30, 17
    s_cbranch_scc0 L_wn
    s_cmp_gt_u32 s30, {0 if OPT["force_safe"] else 0xffffff}
    s_cbranch_scc1 L_gosafe
    s_and_b32 s31, s30, 0xff
    s_bfe_u32 s30, s30, 0x80008
    s_lshl_b32 s32, s31, 1
    s_add_u32 s30, s30, s32
    s_lshl_b32 s32, s3, 1
    s_sub_i32 s30, s30, s32
    s_max_i32 s30, s30, 0
    s_cmp_ge_u32 s3, 8
    s_cbranch_scc1 L_nc
    s_min_u32 s30, s30, 2
    s_add_u32 s{S_R}, s30, 12
    s_cmp_ge_u32 s3, s31
    s_cselect_b32 s30, 0x2000, 0
    s_or_b32 s{S_M}, s30, 0x5041
    s_branch L_nd
L_nc:
    s_add_u32 s32, s30, 7
    s_lshr_b32 s32, s32, 3
    s_lshl_b32 s32, s32, 1
    s_and_b32 s30, s30, 7
    s_cmp_eq_u32 s30, 1
    s_subb_u32 s32, s32, 0
    s_add_u32 s{S_R}, s32, 6
    s_sub_i32 s31, s31, s3
    s_add_i32 s31, s31, 3
    s_max_i32 s31, s31, 0
    s_lshr_b32 s31, s31, 2
    s_lshl_b32 s31, s31, 1
    s_add_u32 s31, s31, 7
    s_lshl_b32 s31, -1, s31
    s_or_b32 s{S_M}, s31, 0x55555541
L_nd:
    s_mov_b32 s{S_IT}, {(1 << OPT["pa"]) | (1 << OPT["pb"]) | (1 << OPT["pc"]) if OPT["prio"] == 2 else 0}
""")
if OPT["prio"]: E(f"s_setprio {OPT['p1']}")
STAMP(10)
if OPT["ptime"]: E("v_mov_b32 v70, 0\nv_mov_b32 v71, 0")
if OPT["stamps"] == 1: E(f"s_memtime s[{ST0+24}:{ST0+25}]\ns_waitcnt lgkmcnt(0)")
for u in range(4): phase(u, True)
for u in range(4): phase(u, False)
E(f"""
L_mdone:
    s_waitcnt lgkmcnt(0)
""")
STAMP(11)
if OPT["ptime"]:
    E(f"""
    s_lshl_b32 s30, s2, 4
    s_add_u32 s30, s30, s3
    s_lshl_b32 s30, s30, 8
    s_add_u32 s30, s30, 0xc00000
    v_lshl_add_u32 v2, v1, 2, s30
    s_mov_b32 exec_hi, 0
    global_store_dword v2, v70, s[20:21]
    global_store_dword v2, v71, s[20:21] offset:128
    s_mov_b64 exec, -1
    """)
if OPT["stamps"] == 1:
    E(f"s_memtime s[28:29]\ns_waitcnt lgkmcnt(0)\ns_sub_u32 s{ST0+24}, s28, s{ST0+24}")
E(f"""
    v_lshrrev_b32 v2, 5, v0
    v_and_b32 v3, 31, v0
    v_mul_u32_u24 v4, {NSTR}, v2
    v_and_b32 v5, 1, v3
    v_lshl_add_u32 v4, v5, 8, v4
    v_lshrrev_b32 v5, 1, v3
    v_lshl_add_u32 v4, v5, 3, v4
    v_add_u32 v4, {L_NODE}, v4
    s_mul_i32 s30, s{S_BUCK}, {NB*256}
    s_lshl_b32 s31, s{S_HALF}, 7
    s_add_u32 s30, s30, s31
    v_lshlrev_b32 v3, 2, v3
    v_lshl_add_u32 v5, v2, 8, v3
    v_add_u32 v5, s30, v5
    v_add_u32 v6, {24*256}, v5
    v_add_u32 v7, {48*256}, v5
    v_add_u32 v8, {72*256}, v5
    s_mov_b32 s32, {f32(2.0**32)}
    s_mov_b32 s34, {f32(-LOG2E * 2.0**-32)}
    v_mov_b32 v9, 0x207
    s_barrier                               ; B5
""")
OSC = {0: "", 1: " sc1", 2: " nt"}[OPT["osc"]]
def epi(us):
    for u in us: E(f"ds_read_b64 v[{12+4*u}:{13+4*u}], v4 offset:{24*NSTR*u}\nds_read_b64 v[{14+4*u}:{15+4*u}], v4 offset:{24*NSTR*u + 128}")
    E("s_waitcnt lgkmcnt(0)")
    for u in us: E(f"v_cvt_f32_f64 v{28+2*u}, v[{12+4*u}:{13+4*u}]\nv_cvt_f32_f64 v{29+2*u}, v[{14+4*u}:{15+4*u}]")
    for u in us: E(f"v_pk_mul_f32 v[{36+2*u}:{37+2*u}], v[{28+2*u}:{29+2*u}], s[34:35] op_sel_hi:[1,0]")
    for u in us: E(f"v_exp_f32 v{36+2*u}, v{36+2*u}\nv_exp_f32 v{37+2*u}, v{37+2*u}")
    E("v_pk_add_f32 v[10:11], v[28:29], v[30:31]")
    for u in us: E(f"v_pk_fma_f32 v[{36+2*u}:{37+2*u}], v[{36+2*u}:{37+2*u}], s[32:33], s[32:33] op_sel_hi:[1,0,0]")
    for u in us: E(f"v_rcp_f32 v{36+2*u}, v{36+2*u}\nv_rcp_f32 v{37+2*u}, v{37+2*u}")
    E("v_pk_add_f32 v[10:11], v[10:11], v[32:33]")
    for u in us: E(f"v_pk_mul_f32 v[{36+2*u}:{37+2*u}], v[{28+2*u}:{29+2*u}], v[{36+2*u}:{37+2*u}]")
    for u in us: E(f"v_cvt_pk_bf16_f32 v{44+u}, v{36+2*u}, v{37+2*u}\nglobal_store_dword v{5+u}, v{44+u}, s[18:19]{OSC}")
    for u in us[3:]: E(f"v_pk_add_f32 v[10:11], v[10:11], v[{28+2*u}:{29+2*u}]")
E("s_cmp_ge_u32 s3, 4\ns_cbranch_scc1 L_e3")
epi([0, 1, 2, 3])
E("s_branch L_e4\nL_e3:")
epi([0, 1, 2])
E(f"""
L_e4:
    v_add_f32 v10, v10, v11
    v_cmp_class_f32 vcc, v10, v9
    v_mov_b32 v2, 0
    s_cmp_lg_u32 s{S_SAFE}, 0
    s_cbranch_scc1 L_fin
    {"s_branch" if OPT["nosafe"] else "s_cbranch_vccz"} L_e5
    ds_write_b32 v2, v9 offset:{L_FLAG}
    s_waitcnt lgkmcnt(0)
L_e5:
    s_barrier                               ; B6
    ds_read_b32 v2, v2 offset:{L_FLAG}
    s_waitcnt lgkmcnt(0)
    v_readfirstlane_b32 s30, v2
    s_cmp_lg_u32 s30, 0
    s_cbranch_scc1 L_gosafe
L_fin:
""")
if OPT["stamps"]:
    E("s_waitcnt vmcnt(0)"); STAMP(13); STAMP_OUT()
if OPT["probe"] >= 0:
    T_ = ST0 + 2*OPT["probe"]
    E(f"""
    s_cmp_lg_u32 s3, {OPT["pw"]}
    s_cbranch_scc1 L_end
    s_cmp_lg_u32 s2, {OPT["pg"] if OPT["pg"] >= 0 else "s2"}
    s_cbranch_scc1 L_end
    s_sub_u32 s30, s{T_}, s{ST0}
    s_lshl_b32 s30, s30, 2
    s_add_u32 s30, s30, 3000
    s_min_u32 s30, s30, 20000
L_spin:
    s_memrealtime s[28:29]
    s_waitcnt lgkmcnt(0)
    s_sub_u32 s28, s28, s{ST0}
    s_cmp_lt_u32 s28, s30
    s_cbranch_scc1 L_spin
    """)
E(f"""
L_end:
    s_endpgm
L_gosafe:
    s_mov_b32 s{S_SAFE}, 8
    s_setprio 0
    s_waitcnt vmcnt(0) lgkmcnt(0)
    s_barrier
    s_branch L_restart
""")
out += outofline
for r in retries: E(r)
E(f"""
L_safe:
    v_and_b32 v2, 15, v1
    v_lshlrev_b32 v3, 3, v2
    v_add_u32 v3, {L_C}, v3
""")
for k in range(4):
    for s in range(4):
        E(f"ds_read_u16 v{80+4*k+s}, v3 offset:{128*k + 2*s}")
E("s_waitcnt lgkmcnt(0)")
for i in range(16):
    E(f"v_lshlrev_b32 v{80+i}, 16, v{80+i}\nv_mul_f32 v{80+i}, s40, v{80+i}")
E(f"""
    v_lshrrev_b32 v24, 4, v1
    v_mul_u32_u24 v24, 3, v24               ; 3*quarter
    s_movk_i32 s33, {NSTR}
    v_add_u32 v25, {L_NODE}, v{LN8}
    s_mov_b32 s34, s3
    s_mov_b32 s35, {POLL_MAX}
L_scell:
    s_lshl_b32 s30, s34, 10
    s_lshl_b32 s31, s{S_BUCK}, 3
    s_add_u32 s30, s30, s31
    s_add_u32 s30, s30, {WS_ROW}
    v_mov_b32 v26, s30
    global_load_dword v32, v26, s[20:21] sc1
    s_mul_i32 s30, s34, {SORTB//4}
    s_add_u32 s30, s30, {WS_REC//4}
    s_waitcnt vmcnt(0)
    v_bfe_u32 v28, v32, 12, 12              ; 3*count
    v_and_b32 v27, 0xfff, v32
    v_add_u32 v27, s30, v27
L_sver:
    v_mov_b32 v29, v1
    v_mov_b32 v31, 0
L_sv1:
    v_cmp_ge_u32 vcc, v28, v29
    s_and_saveexec_b64 s[48:49], vcc
    s_cbranch_execz L_sv2
    v_add_lshl_u32 v30, v27, v29, 2
    global_load_dword v32, v30, s[20:21] sc1
    s_waitcnt vmcnt(0)
    v_add_u32 v31, v31, v32
    s_mov_b64 exec, s[48:49]
    v_add_u32 v29, 64, v29
    s_branch L_sv1
L_sv2:
    s_mov_b64 exec, s[48:49]
""")
scan(31)
E(f"""
    s_nop 0
    v_readlane_b32 s30, v31, 63
    s_cmp_eq_u32 s30, s{S_TAG+1}
    s_cbranch_scc1 L_sok
    s_sub_u32 s35, s35, 1
    s_cbranch_scc0 L_sver
    s_branch L_mdone
L_sok:
    v_mov_b32 v29, v24
L_srec:
    v_cmp_gt_u32 vcc, v28, v29
    s_and_saveexec_b64 s[48:49], vcc
    s_cbranch_execz L_snext
    v_add_lshl_u32 v30, v27, v29, 2
    global_load_dwordx3 v[32:34], v30, s[20:21] offset:4 sc1
    s_waitcnt vmcnt(0)
    v_and_b32 v30, 0x3fff00, v32
    v_add_u32 v30, v30, v{LN16}
    buffer_load_dwordx4 v[36:39], v30, s[36:39], 0 offen sc1
    v_lshrrev_b32 v31, 24, v32
    v_mad_u32_u24 v31, v31, s33, v25
    ds_read_b64 v[40:41], v31 offset:512
    v_lshlrev_b32 v44, 16, v33
    v_and_b32 v45, 0xffff0000, v33
    v_lshlrev_b32 v46, 16, v34
    v_and_b32 v47, 0xffff0000, v34
    s_waitcnt vmcnt(0) lgkmcnt(0)
    v_lshlrev_b32 v48, 16, v40
    v_and_b32 v49, 0xffff0000, v40
    v_lshlrev_b32 v50, 16, v41
    v_and_b32 v51, 0xffff0000, v41
""")
for s in range(4):
    E(f"v_lshlrev_b32 v52, 16, v{36+s}\nv_add_f32 v{48+s}, v{48+s}, v52")
    for k in range(4):
        E(f"v_fmac_f32 v{48+s}, v{44+k}, v{80+4*k+s}")
for s in range(4): E(f"v_exp_f32 v{48+s}, v{48+s}")
E("s_nop 0")
for s in range(4): E(f"v_add_f32 v{48+s}, 1.0, v{48+s}")
for s in range(4): E(f"v_rcp_f32 v{48+s}, v{48+s}")
E("s_nop 0")
for s in range(4): E(f"v_mul_f32 v{48+s}, v{48+s}, v{36+s}")
for s in range(4): E(f"v_cvt_f64_f32 v[{54+2*s}:{55+2*s}], v{48+s}")
for s in range(4): E(f"ds_add_f64 v31, v[{54+2*s}:{55+2*s}] offset:{128*s}")
E(f"""
    s_mov_b64 exec, s[48:49]
    v_add_u32 v29, 12, v29
    s_branch L_srec
L_snext:
    s_mov_b64 exec, s[48:49]
    s_add_u32 s34, s34, {NW}
    s_cmp_lt_u32 s34, {NCHUNK}
    s_cbranch_scc1 L_scell
    s_branch L_mdone
L_codeend:
.section .rodata,"a"
.p2align 6
.amdhsa_kernel {NAME}
.amdhsa_next_free_vgpr 168
.amdhsa_next_free_sgpr 102
.amdhsa_accum_offset 168
.amdhsa_group_segment_fixed_size 0
.amdhsa_kernarg_size 80
.amdhsa_user_sgpr_count 2
.amdhsa_user_sgpr_kernarg_segment_ptr 1
.amdhsa_system_sgpr_workgroup_id_x 1
.end_amdhsa_kernel
""")
if OPT["drop"]:
    i0 = out.index("L_L0:"); i1 = out.index("L_mdone:")
    pats = {1: ("smfmac",), 2: ("mfma",), 3: ("32x32x8",), 4: ("smfmac",), 5: ("v_exp",)}[OPT["drop"]]
    repl = {4: "    s_nop 2", 5: "    s_nop 1"}.get(OPT["drop"])
    mid = []
    for l in out[i0:i1]:
        if any(x in l for x in pats):
            if repl: mid.append(repl)
        else: mid.append(l)
    if OPT["drop"] == 3: mid = [l.replace("v[88:103] cbsz", "0 cbsz").replace("v[72:87] cbsz", "0 cbsz") for l in mid]
    out = out[:i0] + mid + out[i1:]
if OPT["nochain"]:
    i0 = out.index("L_L0:"); i1 = out.index("L_mdone:")
    out = out[:i0] + [l for l in out[i0:i1] if not any(x in l for x in ("v_exp", "v_pk_", "mfma", "v_rcp", "v_cvt"))] + out[i1:]
open(sys.argv[1], "w").write("\n".join(out) + "\n")
```

```python
import sys, struct

OPT = dict(hb=1, stamps=0, force_safe=0, nogather=0, nosafe=0, prio=2, gsc1=1, osc=1, codepf=1, srcmask=0x3fff00, nrec=0, warm=0,
           nochain=0, probe=-1, pw=-1, pg=-1, gpf=32, early=0, cnt=0, pollmax=200000, pa=7, pb=3, pc=1, p0=3, p1=3, ptime=0,
           dist=2, ldearly=0, drop=0, wgate=0, gate=1, gate2=1, rst=0, rsc1=1, nover=0, p2gate=1, p2sleep=0, hold=0, slate=2, lpos=0, p1st=1, sig=1, gpace=4, gwin=-1, gp=0xf448c, ghold=0, nte=0, ewhen=2, wpf=1, gpe=40, oneb=0, p0e=1, aul=0, t0f=0, pre=0, prelate=0, ntx=0, rpace=-1, p2wait=0)
for a in sys.argv[2:]:
    k, v = a.split("=")
    assert k in OPT, k
    OPT[k] = int(v, 0)

out = []
def E(s=""):
    for line in s.split("\n"):
        line = line.strip()
        if not line:
            continue
        if line.endswith(":") or line.startswith(".") or line.startswith(";"):
            out.append(line)
        else:
            out.append("    " + line)

def f32(x):
    return "0x%08x" % struct.unpack("<I", struct.pack("<f", x))[0]

NAME = "standalone__edge_featured_mpnn_egc__graph_kernel"
LOG2E = 1.4426950408889634
NB = 80; NBUCK = 125; CHUNK = 1280; NCHUNK = 250
NW = 12
G_HALF = 10000 * 256
WS0 = 0
WS_REC = 0x500000
WS_ROW = 0x900000
WS_FL2 = 0x980000
WS_TAG = 0x9c0000
SORTB = CHUNK * 12 + 512
WS_STAMP = 0x1000000
L_CNT = 0; L_SOFF = 512
L_SCNT = 1024
L_CTR = 1536; L_RD = 1540; L_DONE2 = 1544; L_FLAG = 1548; L_NST = 1552; L_GST = 1556; L_GOK = 1560; L_AU = 1564
L_DUM = L_SOFF
L_LIST = 2048
L_LISTC = L_LIST + 4096
SSTR = 272
L_SRC = L_LIST + 8192
SRCB = 80 * SSTR + 32
L_EA = L_SRC + SRCB
L_EAEND = L_EA + 2 * SRCB
L_SORT = L_EA
L_WBV = (L_EAEND + 255) // 256 * 256; L_X = L_WBV + 32768; L_WAU = L_X + 20480; L_C = L_WAU + 32768
LDS = L_C + 1024
L_NODE = L_WBV; NSTR = 648
assert L_NODE + 80 * NSTR <= L_WAU and LDS <= 163840 and L_EA % 16 == 0
NULL_SRC = 0x7fffff00
POLL_MAX = OPT["pollmax"]
SC1 = " sc1"
NTE = " nt" if OPT["nte"] else ""
NTX = " nt" if OPT["ntx"] else ""

S_HALF, S_BUCK, S_P = 22, 23, 24
S_SAFE, S_TAG = 25, 26
S_R, S_M, S_IT = 70, 71, 72
S_TAGRAW = 47
ST0 = 74

def ESTAMP(i):
    if OPT["early"] == 1 or (OPT["early"] and i == 0): E(f"s_memrealtime s[{ST0+2*i}:{ST0+2*i+1}]")
def FSTAMP(i):
    if OPT["early"] == 2: E(f"s_memrealtime s[{ST0+2*i}:{ST0+2*i+1}]\ns_waitcnt lgkmcnt(0)")
def STAMP(i):
    if OPT["stamps"] == 2:
        if i == 0: E(f"s_memrealtime s[{ST0}:{ST0+1}]")
        if i == 13: E(f"s_memrealtime s[{ST0+26}:{ST0+27}]\ns_waitcnt lgkmcnt(0)")
        return
    if OPT["early"] and 1 <= i <= 7: return
    if OPT["early"] and i == 0: return ESTAMP(0)
    if OPT["stamps"] or (OPT["probe"] >= 0 and i == OPT["probe"]):
        E(f"s_memrealtime s[{ST0+2*i}:{ST0+2*i+1}]\ns_waitcnt lgkmcnt(0)")
    elif OPT["probe"] >= 0 and i == 0:
        E(f"s_memrealtime s[{ST0}:{ST0+1}]")
NSTAMP = 14
def STAMP_OUT():
    if OPT["stamps"]:
        E(f"""
        s_lshl_b32 s30, s2, 4
        s_add_u32 s30, s30, s3
        s_lshl_b32 s30, s30, 6
        s_add_u32 s30, s30, {WS_STAMP - 0x100000}
        s_load_dwordx2 s[20:21], s[0:1], 72
        s_waitcnt lgkmcnt(0)
        s_mov_b64 exec, -1
        v_mov_b32 v3, s30""")
        for i in (range(NSTAMP) if OPT["stamps"] == 1 else (0, 8, 13)):
            E(f"v_mov_b32 v2, s{ST0+2*i}\nglobal_store_dword v3, v2, s[20:21] offset:{4*i}")
        E("s_waitcnt vmcnt(0)")

A1, A2, IDX, EAC, LN16, ASEL, CW, LN8 = 4, 8, 12, 13, 14, 16, 18, 20
LP, WS4, WN2, EA, XA, WE, OFS, AG, T, N, P, F = 22, 24, 28, 30, 32, 34, 36, 40, 44, 52, 56, 60
D0, D1, G = 72, 88, 104

def finish_tag():
    E(f"""
    s_mul_i32 s{S_TAG+1}, s{S_TAGRAW}, 0x85ebca6b
    s_mul_i32 s{S_TAG}, s{S_TAGRAW}, 0x9e3779b1
    s_add_u32 s{S_TAG+1}, s{S_TAG+1}, 0x5bd1e995
    s_add_u32 s{S_TAG}, s{S_TAG}, 0x7f4a7c15
    """)
def get_tag(lab, q):
    E(f"""
    s_cmp_lg_u32 s{S_SAFE}, 0
    s_cbranch_scc1 L_tag_{lab}
    v_mov_b32 v2, 0
    s_mov_b32 s31, {POLL_MAX}
L_tg_{lab}:
    ds_read_b128 v[{q}:{q+3}], v2 offset:{L_SCNT + 124*4}
    s_sub_u32 s31, s31, 1
    s_cbranch_scc1 L_tag_{lab}
    s_waitcnt lgkmcnt(0)
    v_readfirstlane_b32 s30, v{q+3}
    v_readfirstlane_b32 s{S_TAGRAW}, v{q+1}
    s_cmp_lg_u32 s30, 4
    s_cbranch_scc1 L_tg_{lab}
    """)
    finish_tag()
    E(f"L_tag_{lab}:")

def lds_wait(addr, mask, val, tag, sleep=0, ne=False):
    E(f"""
    v_mov_b32 v2, 0
    s_mov_b32 s31, {POLL_MAX}
L_w_{tag}:
    {f"s_sleep {sleep}" if sleep else ""}
    ds_read_b32 v3, v2 offset:{addr}
    s_sub_u32 s31, s31, 1
    s_cbranch_scc1 L_wd_{tag}
    s_waitcnt lgkmcnt(0)
    v_readfirstlane_b32 s30, v3
    s_and_b32 s30, s30, {mask}
    s_cmp_lg_u32 s30, {val}
    s_cbranch_scc{0 if ne else 1} L_w_{tag}
L_wd_{tag}:
    """)
SCAN = ("row_shr:1 row_mask:0xf bank_mask:0xf bound_ctrl:0", "row_shr:2 row_mask:0xf bank_mask:0xf bound_ctrl:0",
        "row_shr:4 row_mask:0xf bank_mask:0xf bound_ctrl:0", "row_shr:8 row_mask:0xf bank_mask:0xf bound_ctrl:0",
        "row_bcast:15 row_mask:0xa bank_mask:0xf", "row_bcast:31 row_mask:0xc bank_mask:0xf")
def scan(r):
    for m in SCAN:
        E(f"s_nop 1\nv_add_u32_dpp v{r}, v{r}, v{r} {m}")

def main_consts(sm=48):
    E(f"""
    v_and_b32 v2, 15, v1                    ; n'
    v_lshrrev_b32 v3, 4, v1
    v_lshl_add_u32 v3, v2, 2, v3
    v_lshlrev_b32 v3, 1, v3
    v_add_u32 v3, {L_C}, v3
    ds_read_u16 v64, v3                     ; C[0..3][feature 4n'+s]
    ds_read_u16 v65, v3 offset:128
    ds_read_u16 v66, v3 offset:256
    ds_read_u16 v67, v3 offset:384
    v_and_b32 v63, 3, v1                    ; q
    v_lshlrev_b32 v{LN8}, 3, v2
    v_lshlrev_b32 v{LN8+1}, 3, v2
    v_lshlrev_b32 v{LN16}, 4, v2
    v_lshlrev_b32 v{LN16+1}, 4, v2
    v_mov_b32 v{IDX}, 0x8888
    v_bfe_u32 v60, v1, 3, 2                 ; s = (l&31)>>3
    v_bfe_u32 v61, v1, 2, 1                 ; h = (l>>2)&1
    v_lshrrev_b32 v62, 5, v1                ; ha
    v_and_b32 v2, 1, v60
    v_lshlrev_b32 v2, 4, v2
    v_lshlrev_b32 v2, v2, s46
    v_lshrrev_b32 v60, 1, v60               ; s>>1
    v_lshl_add_u32 v3, v61, 1, v60
    v_sub_u32 v63, v63, v62                 ; q - ha : 0 -> A1, 2 -> A2
    v_lshl_add_u32 v3, v63, 1, v3
    v_and_b32 v63, 1, v63
    v_lshl_or_b32 v3, v63, 4, v3
    v_xor_b32 v61, v61, v62
    v_lshl_or_b32 v60, v61, 4, v60
    """)
    mk = [f"s[{sm}:{sm+1}]", f"s[{sm+2}:{sm+3}]", f"s[{sm+4}:{sm+5}]", "vcc"]
    for i in range(8):
        E(f"v_cmp_eq_u32 {mk[i%4]}, {i}, v3")
        if i % 4 == 3:
            for j in range(i-3, i+1):
                E(f"v_cndmask_b32 v{A1+j}, 0, v2, {mk[j%4]}")
    E(f"""
    v_cmp_eq_u32 {mk[0]}, 0, v60
    v_cmp_eq_u32 {mk[1]}, 1, v60
    v_and_b32 v63, 3, v1
    v_lshlrev_b32 v61, 3, v63
    v_cndmask_b32 v{ASEL}, 0, v2, {mk[0]}
    v_cndmask_b32 v{ASEL+1}, 0, v2, {mk[1]}
    v_add_u32 v{EAC}, {L_EA - 2*L_SRC}, v61
    s_lshl_b32 s30, s3, 9
    s_sub_u32 s31, s30, 4096
    s_max_i32 s31, s31, 0
    s_add_u32 s30, s30, s31
    s_add_u32 s30, s30, {L_LIST}
    v_lshrrev_b32 v2, 4, v1
    v_lshl_add_u32 v{LP}, v2, 4, s30
    v_bfe_u32 v3, v1, 2, 2
    v_lshl_add_u32 v{LP+1}, v3, 4, s30
    v_lshl_add_u32 v{LP+1}, v2, 2, v{LP+1}
    s_waitcnt lgkmcnt(0)
    v_lshlrev_b32 v60, 16, v64
    v_lshlrev_b32 v61, 16, v65
    v_lshlrev_b32 v62, 16, v66
    v_lshlrev_b32 v63, 16, v67
    v_mul_f32 v60, s40, v60
    v_mul_f32 v61, s40, v61
    v_mul_f32 v62, s40, v62
    v_mul_f32 v63, s40, v63
    v_cvt_pk_bf16_f32 v{CW}, v60, v61
    v_cvt_pk_bf16_f32 v{CW+1}, v62, v63
    """)

def gload(g, o):
    return f"buffer_load_dwordx4 v[{g}:{g+3}], v{o}, s[36:39], 0 offen" + (SC1 if OPT["gsc1"] else "")
def oadd(o):
    return f"v_lshl_add_u64 v[{o}:{o+1}], v[{o}:{o+1}], 0, v[{LN16}:{LN16+1}]"

def pk_steps(Gc, q, first):
    t = T + 4*(q & 1); h = Gc + 4*q
    if first and q == 0:
        return [f"v_pk_add_f32 v[{P+2*p}:{P+2*p+1}], v[{t+2*p}:{t+2*p+1}], 1.0 op_sel_hi:[1,0]" for p in range(2)]
    r = []
    for p in range(2):
        n = f"v[{Gc+2*p}:{Gc+2*p+1}]" if (first and q == 1) else f"v[{N+2*p}:{N+2*p+1}]"
        r.append(f"v_pk_fma_f32 v[{N+2*p}:{N+2*p+1}], {n}, v[{t+2*p}:{t+2*p+1}], {n}")
    for p in range(2):
        r.append(f"v_pk_fma_f32 v[{N+2*p}:{N+2*p+1}], v[{h+2*p}:{h+2*p+1}], v[{P+2*p}:{P+2*p+1}], v[{N+2*p}:{N+2*p+1}]")
    for p in range(2):
        r.append(f"v_pk_fma_f32 v[{P+2*p}:{P+2*p+1}], v[{P+2*p}:{P+2*p+1}], v[{t+2*p}:{t+2*p+1}], v[{P+2*p}:{P+2*p+1}]")
    return r
def exps(Dc, q):
    t = T + 4*(q & 1)
    return [f"v_exp_f32 v{t+s}, v{Dc+4*s+q}" for s in range(4)]
def weave(main, extra):
    for i, x in enumerate(main):
        E(x)
        for y in extra.get(i, []):
            E(y)
def m_a(Dn): return f"v_mfma_f32_32x32x8_bf16 v[{Dn}:{Dn+15}], v[{ASEL}:{ASEL+1}], v[{XA}:{XA+1}], 0"
def m_e(Dn, abid): return f"v_mfma_f32_16x16x4_4b_bf16 v[{Dn}:{Dn+15}], v[{EA}:{EA+1}], v[{CW}:{CW+1}], v[{Dn}:{Dn+15}] cbsz:2 abid:{abid}"
def m_s(Dn, A, g): return f"v_smfmac_f32_32x32x32_bf16 v[{Dn}:{Dn+15}], v[{A}:{A+3}], v[{g}:{g+7}], v{IDX}"

outofline = []
def emit_to(lst, fn):
    global out
    keep = out; out = []
    fn(); lst += out; out = keep
DIST = OPT["dist"]; EARLY = OPT["ldearly"]
assert not (EARLY and DIST == 4)
def phase(u, loads):
    tag = f"{'L' if loads else 'T'}{u}"
    Dc, Dn = ((D0, D1), (D1, D0))[u & 1]
    gc = G + 16*u; gn = G + 16*((u+1) & 3); gl = G + 16*((u+DIST) & 3)
    ld = loads and not OPT["nogather"]
    kw = (u + DIST + EARLY) & 3
    wsgrp = 128 * ((3 - kw + u + DIST + EARLY) // 4 + 1) if kw == 3 else None
    def addloads(ex, pos):
        if loads:
            ex.setdefault(0, []).append(oadd(OFS)); ex.setdefault(2, []).append(oadd(OFS+2))
        if ld:
            for q in range(4): ex.setdefault(pos[q], []).append(gload(gl+4*q, OFS+q))
    E(f"L_{tag}:")
    SL = OPT["slate"]
    if not SL: E(f"s_waitcnt vmcnt({4*(DIST-2)})")
    E(m_a(Dn))
    for x in exps(Dc, 0): E(x)
    E(m_e(Dn, (u+1) & 3) if SL else m_s(Dn, A1, gn))
    for x in exps(Dc, 1): E(x)
    ex = {0: ["s_waitcnt lgkmcnt(0)"], 2: [f"ds_read_b64 v[{XA}:{XA+1}], v{AG + ((u+2) & 3)} offset:512"]}
    if u % 2 == 0:
        p = AG + ((u+2) & 3)
        ex[0].append(f"v_lshl_add_u64 v[{p}:{p+1}], v[{WN2}:{WN2+1}], 0, v[{LN8}:{LN8+1}]")
    if EARLY: addloads(ex, (1, 3, 5, 6))
    elif loads: ex[1] = [f"ds_read_b128 v[{OFS}:{OFS+3}], v{WS4+kw}"]
    if u == 2:
        ex.setdefault(4, []).append(f"v_lshl_add_u32 v{WE}, v{WE}, 1, v{EAC}")
        if SL: ex.setdefault(7, []).append(f"ds_read_b64 v[{EA}:{EA+1}], v{WE}")
    E(f"s_bitcmp1_b32 s{S_M}, 0\ns_cbranch_scc1 L_{tag}f")
    weave(pk_steps(gc, 0, False) + pk_steps(gc, 1, False), ex)
    E(f"L_{tag}r:")
    def first():
        E(f"L_{tag}f:")
        weave(pk_steps(gc, 0, True) + pk_steps(gc, 1, True), ex)
        E(f"s_branch L_{tag}r")
    emit_to(outofline, first)
    if SL:
        if OPT["ptime"]: E(f"s_memrealtime s[28:29]\ns_mov_b32 m0, s{S_R}")
        E(f"s_waitcnt vmcnt({4*(DIST-2) + (4 if (EARLY and loads) else 0) + (2 if SL == 2 else 0)})")
        E(m_s(Dn, A1, gn))
    else:
        E(m_e(Dn, (u+1) & 3))
    for x in exps(Dc, 2): E(x)
    if SL == 2: E(f"s_waitcnt vmcnt({4*(DIST-2) + (4 if (EARLY and loads) else 0)})")
    if OPT["ptime"]: E(f"s_memrealtime s[30:31]")
    E(m_s(Dn, A2, gn+8))
    for x in exps(Dc, 3): E(x)
    ex = {0: ["s_waitcnt lgkmcnt(0)"], 4: [], 6: [], 7: [f"s_sub_u32 s{S_R}, s{S_R}, 1"], 10: [f"s_lshr_b32 s{S_M}, s{S_M}, 1"], 11: [f"s_bitcmp1_b32 s{S_M}, 0"]}
    if OPT["ptime"]: ex[0] += ["v_writelane_b32 v70, s28, m0", "v_writelane_b32 v71, s30, m0"]
    if not EARLY: addloads(ex, (1, 3, 5, 9) if DIST == 4 else ((1, 3, 5, 7), (1, 2, 3, 4), (4, 6, 8, 10), (2, 5, 8, 10))[OPT['lpos']])
    elif loads: ex[1] = [f"ds_read_b128 v[{OFS}:{OFS+3}], v{WS4+kw}"]
    if u == 1:
        ex[4].append(f"ds_read_b64 v[{WN2}:{WN2+1}], v{LP} offset:{128+64}")
        ex[6].append(f"ds_read_b32 v{WE}, v{LP+1} offset:128")
    if u == 2 and not SL:
        ex[4].append(f"ds_read_b64 v[{EA}:{EA+1}], v{WE}")
    if u == 3:
        ex[4].append(f"ds_read_b64 v[{WN2}:{WN2+1}], v{LP} offset:{128+64+8}")
        ex.setdefault(8, []).append(f"v_lshl_add_u64 v[{LP}:{LP+1}], v[{LP}:{LP+1}], 0, s[44:45]")
    if wsgrp and loads: ex[6].append(f"ds_read_b128 v[{WS4}:{WS4+3}], v{LP} offset:{wsgrp}")
    weave(pk_steps(gc, 2, False) + pk_steps(gc, 3, False), ex)
    E(f"s_cbranch_scc1 L_{tag}z\nL_{tag}y:")
    def fin():
        E(f"""
L_{tag}z:
        v_rcp_f32 v{P}, v{P}
        v_rcp_f32 v{P+1}, v{P+1}
        v_rcp_f32 v{P+2}, v{P+2}
        v_rcp_f32 v{P+3}, v{P+3}
        v_pk_mul_f32 v[{N}:{N+1}], v[{N}:{N+1}], v[{P}:{P+1}]
        v_pk_mul_f32 v[{N+2}:{N+3}], v[{N+2}:{N+3}], v[{P+2}:{P+3}]
        """)
        for s_ in range(4):
            E(f"v_cvt_f64_f32 v[{F+2*s_}:{F+2*s_+1}], v{N+s_}")
            if s_: E(f"ds_add_f64 v{AG+u}, v[{F+2*s_-2}:{F+2*s_-1}] offset:{128*(s_-1)}")
        E(f"ds_add_f64 v{AG+u}, v[{F+6}:{F+7}] offset:384")
        E(f"s_branch L_{tag}y")
    emit_to(outofline, fin)
    if OPT["prio"] == 2:
        E(f"s_bitcmp1_b32 s{S_IT}, s{S_R}\ns_cbranch_scc1 L_{tag}q\nL_{tag}p:")
        def pr():
            E(f"""
L_{tag}q:
            s_setprio 0
            s_cmp_le_u32 s{S_R}, {OPT["pc"]}
            s_cbranch_scc1 L_{tag}p
            s_setprio 1
            s_cmp_le_u32 s{S_R}, {OPT["pb"]}
            s_cbranch_scc1 L_{tag}p
            s_setprio 2
            s_branch L_{tag}p
            """)
        emit_to(outofline, pr)
    if u == 3 and OPT["prio"] == 1:
        E(f"""
        s_add_u32 s{S_IT}, s{S_IT}, 1
        s_setprio 0
        s_cmp_gt_u32 s{S_IT}, 2
        s_cbranch_scc1 L_{tag}p
        s_setprio 1
        s_cmp_eq_u32 s{S_IT}, 2
        s_cbranch_scc1 L_{tag}p
        s_setprio 2
L_{tag}p:
        """)
    if loads:
        E(f"s_cmp_le_u32 s{S_R}, {DIST}")
        if u < 3: E(f"s_cbranch_scc1 L_T{u+1}")
        else: E("s_cbranch_scc0 L_L0")
    else:
        E(f"s_waitcnt vmcnt(0)\ns_cmp_eq_u32 s{S_R}, 0")
        if u < 3: E("s_cbranch_scc1 L_mdone")
        else: E("s_cbranch_scc0 L_T0")

E(f"""
; @launch grid=(256,1,1) block=({64*NW},1,1) lds={LDS}
.amdgcn_target "amdgcn-amd-amdhsa--gfx950"
.text
.globl {NAME}
.p2align 8
.type {NAME},@function
{NAME}:
""")
if OPT["stamps"] == 1 and OPT["early"] != 1:
    for i in range(NSTAMP): E(f"s_mov_b64 s[{ST0+2*i}:{ST0+2*i+1}], 0")
STAMP(0)
E(f"""
    s_load_dwordx16 s[4:19], s[0:1], 0
    s_load_dwordx2 s[20:21], s[0:1], 72
""")
if OPT["codepf"]:
    E(f"""
    s_getpc_b64 s[28:29]
L_pc:
    v_lshlrev_b32 v3, 7, v0
    v_cmp_gt_u32 vcc, L_codeend-L_pc-64, v3
    s_cbranch_vccz L_nopf
    s_mov_b64 exec, vcc
    global_load_dword v164, v3, s[28:29]
    s_mov_b64 exec, -1
L_nopf:
    """)
E(f"""
    v_lshrrev_b32 v2, 6, v0
    v_and_b32 v1, 63, v0
    v_readfirstlane_b32 s3, v2
    {"s_bfe_u32 s%d, s2, 0x10002" % S_HALF if OPT["hb"] else "s_and_b32 s%d, s2, 1" % S_HALF}
    {"s_and_b32 s30, s2, 3" if OPT["hb"] else "s_bfe_u32 s30, s2, 0x20001"}
    s_lshl_b32 s30, s30, 5
    s_lshr_b32 s31, s2, 3
    s_add_u32 s{S_BUCK}, s30, s31
    s_cmp_ge_u32 s2, 256
    s_cbranch_scc1 L_end
    s_cmp_ge_u32 s{S_BUCK}, {NBUCK}
    s_cbranch_scc1 L_end
    s_lshl_b32 s{S_P}, s{S_BUCK}, 1
    s_add_u32 s{S_P}, s{S_P}, s{S_HALF}
    s_mov_b32 s{S_SAFE}, 0
L_restart:
    s_cmp_ge_u32 s3, 4
    s_cbranch_scc1 L_nosort
    v_mov_b32 v48, 0
    v_mov_b32 v49, 0
    v_mov_b32 v50, 0
    v_mov_b32 v51, 0
    v_lshlrev_b32 v10, 4, v1
    ds_write_b128 v10, v[48:51] offset:{L_SCNT}
    s_mul_i32 s30, s{S_P}, {CHUNK*4}
    v_lshl_add_u32 v3, v0, 4, s30
    s_add_u32 s30, s30, 4096
    v_lshl_add_u32 v18, v0, 2, s30
    v_lshlrev_b32 v10, 1, v3
    v_lshlrev_b32 v11, 1, v18
    v_mov_b32 v17, {WS_TAG}
    s_waitcnt lgkmcnt(0)
    global_load_dwordx4 v[4:7], v3, s[10:11]{NTE}
    global_load_dword v8, v18, s[10:11]{NTE}
    global_load_dword v43, v17, s[20:21]
""")
def preclear():
    E(f"""
    s_cmp_lg_u32 s{S_SAFE}, 0
    s_cbranch_scc1 L_nopre
    s_mul_i32 s30, s{S_HALF}, {G_HALF}
    s_mul_i32 s31, s{S_BUCK}, {NB*256}
    s_add_u32 s30, s30, s31
    s_add_u32 s30, s30, {4096*(5-OPT["pre"])}
    v_lshl_add_u32 v19, v0, 4, s30
    """)
    for i in range(OPT["pre"]):
        E("global_store_dwordx4 v19, v[48:51], s[20:21] sc1")
        if i + 1 < OPT["pre"]: E("v_add_u32 v19, 4096, v19")
    E("L_nopre:")
if OPT["pre"] and not OPT["prelate"]: preclear()
E(f"""
    {"" if OPT["oneb"] else "s_barrier"}
    s_barrier                               ; B0b
""")
if OPT["pre"] and OPT["prelate"]: preclear()
E(f"""
    s_branch L_sort
L_nosort:
    s_and_b32 s32, s3, 3                    ; tau
    s_lshr_b32 s33, s3, 3
    v_lshrrev_b32 v2, 4, v1                 ; g
    v_and_b32 v4, 15, v1
    s_lshl_b32 s30, s32, 2
    v_add_u32 v6, s30, v2                   ; row&15
    v_xor_b32 v7, v4, v6
    v_lshlrev_b32 v7, 4, v7
    v_lshl_add_u32 v7, v6, 8, v7
    s_mul_i32 s73, s{S_BUCK}, {NB*256}
    s_mul_i32 s31, s33, {3*4096}
    s_add_u32 s30, s73, s31
    v_add_u32 v7, s30, v7
    v_add_u32 v8, 0x1000, v7
    v_add_u32 v9, 0x2000, v7
    s_lshl_b32 s30, s32, 10
    s_add_u32 s31, s31, s30
    s_add_u32 m0, s31, {L_X}
    v_subrev_u32 v30, 256, v0               ; t = 0..511
    v_lshlrev_b32 v31, 4, v30
    v_mov_b32 v36, 0
    v_mov_b32 v37, 0
    v_mov_b32 v38, 0
    v_mov_b32 v39, 0
    v_add_u32 v40, {L_EA}, v31
    ds_write_b128 v40, v[36:39]
    ds_write_b128 v40, v[36:39] offset:8192
""")
if OPT["wpf"]:
    E(f"""
    s_lshr_b32 s30, s2, 3
    s_lshl_b32 s30, s30, 2
    v_add_u32 v3, s30, v1
    v_and_b32 v3, 127, v3
    s_lshl_b32 s30, s{S_HALF}, 7
    s_cmp_eq_u32 s3, 4
    s_cselect_b32 s31, 0x8000, 0
    s_add_u32 s30, s30, s31
    v_lshl_add_u32 v3, v3, 8, s30
    s_waitcnt lgkmcnt(0)
    s_cmp_lg_u32 s33, 0
    s_cbranch_scc1 L_nowpf
    s_cmp_eq_u32 s3, 5
    s_cselect_b32 s34, s14, s16
    s_cselect_b32 s35, s15, s17
    s_cmp_eq_u32 s3, 7
    s_cselect_b32 s34, s12, s34
    s_cselect_b32 s35, s13, s35
    s_mov_b64 exec, 0xffff
    global_load_dword v167, v3, s[34:35]
    s_mov_b64 exec, -1
L_nowpf:
    """)
    if OPT["wpf"] == 2:
        E(f"""
        s_cmp_lg_u32 s3, 8
        s_cbranch_scc1 L_notch
        s_mul_i32 s30, s{S_P}, {CHUNK*4}
        v_mov_b32 v3, s30
        v_lshlrev_b32 v5, 1, v3
        v_lshlrev_b32 v6, 21, v1
        s_mov_b64 exec, 1
        global_load_dword v167, v3, s[8:9]
        global_load_dword v166, v5, s[6:7]
        s_mov_b64 exec, 31
        global_load_dword v165, v6, s[20:21] sc1
        s_mov_b64 exec, 3
        global_load_dword v164, v6, s[18:19] sc1
        s_mov_b64 exec, -1
L_notch:
        """)
E(f"""
    s_waitcnt lgkmcnt(0)
    {"" if OPT["oneb"] else "s_barrier"}
""")
if not OPT["t0f"]: E(f"""
    global_load_lds_dwordx4 v7, s[4:5]{NTX}
    s_add_u32 m0, m0, 0x1000
    s_cmp_lg_u32 s33, 0
    global_load_lds_dwordx4 v8, s[4:5]{NTX}
    s_cbranch_scc1 L_x2
    s_add_u32 m0, m0, 0x1000
    s_nop 0
    global_load_lds_dwordx4 v9, s[4:5]{NTX}
L_x2:
    s_barrier
""")
else: E(f"""
    s_mov_b32 s29, m0
    s_cmp_lg_u32 s33, 0
    s_cbranch_scc1 L_x2
    global_load_lds_dwordx4 v7, s[4:5]
    s_add_u32 s29, s29, 0x1000
    v_mov_b32 v7, v8
    v_mov_b32 v8, v9
L_x2:
""")
E(f"""
    v_lshrrev_b32 v5, 3, v1
    v_and_b32 v3, 1, v2
    s_and_b32 s30, s3, 1
    s_lshl_b32 s30, s30, 1
    v_or_b32 v3, s30, v3                    ; sigma
    v_lshlrev_b32 v3, 1, v3
    v_and_b32 v20, 7, v1
    v_xor_b32 v3, v3, v20
    v_lshlrev_b32 v3, 4, v3
    v_lshl_add_u32 v10, v5, 8, v3
    s_sub_u32 s28, s3, 4
    s_lshl_b32 s30, s28, 11
    s_lshl_b32 s31, s{S_HALF}, 7
    s_add_u32 s30, s30, s31
    v_add_u32 v10, s30, v10
    v_add_u32 v11, 0x4000, v10
    s_lshl_b32 s28, s28, 10
    s_add_u32 s34, s16, {128*256}
    s_addc_u32 s35, s17, 0
    s_cmp_lg_u32 s3, 11
    s_cbranch_scc1 L_noc
    v_and_b32 v5, 3, v5
    v_lshlrev_b32 v20, 4, v20
    v_lshl_add_u32 v5, v5, 8, v20
    s_add_u32 s31, s31, {256*256}
    s_mov_b32 m0, {L_C}
    v_add_u32 v5, s31, v5
    global_load_lds_dwordx4 v5, s[16:17]
L_noc:
    s_add_u32 m0, s28, {L_WBV}
""")
for ti, base in enumerate((34, 14)):
    for n in range(2):
        E(f"s_nop 0\nglobal_load_lds_dwordx4 v{10+n}, s[{base}:{base+1}]")
        if not (ti == 1 and n == 1):
            E(f"s_add_u32 m0, m0, 0x2000")
if OPT["t0f"]:
    E(f"""
    s_mov_b32 m0, s29
    s_barrier                               ; B0b
    global_load_lds_dwordx4 v7, s[4:5]
    s_add_u32 m0, m0, 0x1000
    s_nop 0
    global_load_lds_dwordx4 v8, s[4:5]
    """)
if OPT["wgate"]:
    E(f"""
    v_mov_b32 v7, 0x1000000
    s_mov_b64 exec, 1
    ds_add_u32 v36, v7 offset:{L_CTR}
    s_mov_b64 exec, -1
    """)
STAMP(1)
E(f"""
    v_mov_b32 v32, {NULL_SRC}
    v_mov_b32 v33, v32
    v_mov_b32 v34, v32
    v_mov_b32 v35, v32
""")
def cover(lo, n): return list(range(lo, n - 8192, 8192)) + [n - 8192]
for o in cover(16384, L_EAEND - L_EA): E(f"ds_write_b128 v40, v[36:39] offset:{o}")
for o in cover(0, SRCB): E(f"ds_write_b128 v31, v[32:35] offset:{L_SRC + o}")
E(f"""
    v_and_b32 v32, 3, v30           ; quarter
    v_bfe_u32 v33, v30, 3, 3
    v_lshrrev_b32 v34, 5, v30
    s_and_b32 s30, s3, 3
    s_add_u32 s30, s30, 16
    s_cmp_ge_u32 s3, 8
    s_cselect_b32 s31, 7, 3
    s_cselect_b32 s29, 6, 12
    s_cselect_b64 vcc, -1, 0
    v_and_b32 v33, s31, v33
    v_mov_b32 v35, s30
    v_cndmask_b32 v34, v34, v35, vcc
    v_lshl_add_u32 v32, v34, 2, v32
    v_bfe_u32 v34, v30, 2, 1
    v_mul_u32_u24 v35, {NSTR - SSTR}, v34
    v_mul_u32_u24 v41, {L_NODE - L_SRC}, v34
    v_mul_u32_u24 v42, {L_SRC + 80*SSTR - L_DUM}, v34
    v_lshlrev_b32 v43, 4, v34
    v_add_u32 v35, {SSTR}, v35
    v_add_u32 v41, {L_SRC}, v41
    v_sub_u32 v42, {L_SRC + 80*SSTR}, v42
    v_sub_u32 v43, 16, v43
    v_lshlrev_b32 v33, 2, v33
    v_mad_u32_u24 v41, v32, v35, v41
    v_mad_u32_u24 v41, v33, v43, v41
    v_lshlrev_b32 v35, 5, v35
    v_mul_u32_u24 v34, 6, v43
    v_sub_u32 v35, v35, v34
    v_add_u32 v34, 2, v33
    v_cmp_gt_u32 s[48:49], 6, v33
    v_cmp_gt_u32 s[50:51], 6, v34
    v_cmp_gt_u32 s[52:53], s29, v33
    v_cmp_gt_u32 s[54:55], s29, v34
    v_cndmask_b32 v44, v35, 0, s[48:49]
    v_cndmask_b32 v46, v35, 0, s[50:51]
    v_add_u32 v44, v41, v44
    v_lshl_add_u32 v46, v43, 1, v46
    v_add_u32 v46, v41, v46
    v_add_u32 v45, v44, v43
    v_add_u32 v47, v46, v43
    v_cndmask_b32 v44, v42, v44, s[52:53]
    v_cndmask_b32 v45, v42, v45, s[52:53]
    v_cndmask_b32 v46, v42, v46, s[54:55]
    v_cndmask_b32 v47, v42, v47, s[54:55]
    ds_write_b128 v31, v[44:47] offset:{L_LIST}
    s_cmp_ge_u32 s3, 6
    s_cbranch_scc1 L_pf3
    v_mul_u32_u24 v42, {SSTR}, v30
    v_add_u32 v42, {L_SRC}, v42
    v_lshlrev_b32 v41, 2, v30
    ds_write_b32 v41, v42 offset:{L_CNT}
L_pf3:
    v_bfe_u32 v3, v1, 2, 2                  ; r
    v_lshl_add_u32 v5, v2, 3, v3            ; 8g + r
    v_lshrrev_b32 v3, 1, v3
    v_and_b32 v6, 1, v2
    v_lshl_or_b32 v3, v6, 1, v3             ; sigma
    v_xor_b32 v3, s32, v3
    v_lshlrev_b32 v3, 5, v3
    v_lshl_add_u32 v10, v5, 7, v3
    v_and_b32 v3, 3, v1
    v_lshl_add_u32 v10, v3, 3, v10
    s_mul_i32 s31, s33, {L_WAU - L_WBV}
    s_add_u32 s31, s31, {L_WBV}
    v_add_u32 v10, s31, v10
    v_xor_b32 v3, v2, v4
    v_lshlrev_b32 v3, 4, v3
    v_lshl_add_u32 v12, v4, 8, v3
    v_add_u32 v12, {L_X}, v12
    v_xor_b32 v13, 64, v12
    v_xor_b32 v14, 0x80, v12
    v_xor_b32 v15, 0xc0, v12
    s_mul_i32 s30, s{S_HALF}, {G_HALF}
    s_add_u32 s30, s30, s73
    s_lshl_b32 s31, s32, 6
    s_add_u32 s30, s30, s31
    v_lshlrev_b32 v11, 10, v2
    v_lshl_add_u32 v11, v4, 2, v11
    v_add_u32 v11, s30, v11
    s_lshl_b32 s31, s32, 5
    s_add_u32 s31, s31, {L_NODE}
    v_mul_u32_u24 v16, {NSTR}, v4
    v_lshl_add_u32 v16, v2, 3, v16
    v_add_u32 v16, s31, v16
    s_mov_b32 s40, {f32(-LOG2E)}
    s_mov_b32 s42, {f32(2.0**32)}
    s_mov_b32 s44, 0x07060100
    s_mov_b32 s45, 0x07060302
    s_mov_b32 s46, 0x3f80
    v_mov_b32 v17, {f32(2.0**-100)}
    v_mov_b32 v19, 1
    v_mov_b32 v18, 0
""")
def staged():
    get_tag("g", 160)
    E(f"""
    s_waitcnt vmcnt(0)
    s_mov_b64 exec, 1
    ds_add_u32 v18, v19 offset:{L_CTR}
    s_mov_b64 exec, -1
    """)
    STAMP(2)
    lds_wait(L_CTR, 0xff, 8, "g1")
if OPT["t0f"]:
    E(f"""
    s_waitcnt vmcnt(2)
    s_mov_b64 exec, 1
    ds_add_u32 v18, v19 offset:{L_AU}
    s_mov_b64 exec, -1
    s_or_b32 s30, s33, s{S_SAFE}
    s_cbranch_scc0 L_t0
    """)
staged()
STAMP(3)
NP = 8
RA = 72; RB = RA + 4*NP; RAD = RB + 4*NP
J3N, J12, J3N2, CELL, ROWA, FOUR, L0M, ACC, ENT, CAD = 156, 157, 158, 159, 160, 161, 162, 163, 164, 166
def rec_setup():
    E(f"""
    v_and_b32 v3, 15, v1                    ; j
    v_lshrrev_b32 v2, 4, v1
    v_lshl_add_u32 v{CELL}, v2, 3, v3
    s_lshl_b32 s30, s29, 5
    v_add_u32 v{CELL}, s30, v{CELL}
    s_lshl_b32 s30, s{S_BUCK}, 3
    s_add_u32 s30, s30, {WS_ROW}
    v_lshl_add_u32 v{ROWA}, v{CELL}, 10, s30
    v_cmp_gt_u32 s[66:67], {NP}, v3
    v_cmp_gt_u32 vcc, {NCHUNK}, v{CELL}
    v_mov_b32 v{ENT}, 0
    s_and_b64 s[66:67], s[66:67], vcc
    s_mov_b64 exec, s[66:67]
    global_load_dwordx2 v[{ENT}:{ENT+1}], v{ROWA}, s[20:21] sc1
    s_mov_b64 exec, -1
    v_mul_u32_u24 v{CELL}, {SORTB//4}, v{CELL}
    v_add_u32 v{CELL}, {WS_REC//4}, v{CELL}
    v_mul_u32_u24 v{J12}, 12, v3
    v_mul_u32_u24 v{J3N}, 3, v3
    v_not_b32 v{J3N}, v{J3N}
    v_subrev_u32 v{J3N2}, 48, v{J3N}
    v_subrev_u32 v{L0M}, 1, v3
    v_ashrrev_i32 v{L0M}, 31, v{L0M}
    v_mov_b32 v{FOUR}, 4
    """)
WF = 20; XF = 52; AC = 132
def wreads(ks):
    for t in range(2):
        for rd in range(2):
            r = WF + 16*t + 4*ks + 2*rd
            E(f"ds_read_b64_tr_b16 v[{r}:{r+1}], v10 offset:{t*16384 + ks*4096 + rd*512}")
def xread(rt, ks):
    r = XF + 16*rt + 4*ks
    return f"ds_read_b128 v[{r}:{r+3}], v{12+ks} offset:{rt*4096}"
def mf(rt, ks, transposed):
    for t in range(2):
        a = XF + 16*rt + 4*ks; w = WF + 16*t + 4*ks; d = AC + 8*(rt % 3) + 4*t
        c = "0" if ks == 0 else f"v[{d}:{d+3}]"
        if transposed: a, w = w, a
        E(f"v_mfma_f32_16x16x32_bf16 v[{d}:{d+3}], v[{a}:{a+3}], v[{w}:{w+3}], {c}")
def gemm(transposed, finish, before_first):
    for ks in range(3):
        E(xread(0, ks)); wreads(ks)
    E("s_waitcnt lgkmcnt(10)"); mf(0, 0, transposed)
    E(xread(0, 3)); wreads(3)
    E("s_waitcnt lgkmcnt(10)"); mf(0, 1, transposed)
    for ks in range(4): E(xread(1, ks))
    E("s_waitcnt lgkmcnt(9)"); mf(0, 2, transposed)
    for ks in range(4): E(xread(2, ks))
    E("s_waitcnt lgkmcnt(8)"); mf(0, 3, transposed)
    for ks in range(4): E(xread(3, ks))
    if OPT["p0e"]:
        E("s_nop 3"); finish(0)
    E("s_waitcnt lgkmcnt(8)")
    for ks in range(4):
        mf(1, ks, transposed); E(xread(4, ks))
    E(f"""
    s_mov_b64 exec, 1
    ds_add_u32 v18, v19 offset:{L_RD}
    s_mov_b64 exec, -1
    """)
    before_first()
    if not OPT["p0e"]: finish(0)
    E("s_waitcnt lgkmcnt(0)")
    for rt in range(2, 5):
        for ks in range(4): mf(rt, ks, transposed)
        finish(rt-1)
    finish(4)
def pack(rt):
    b = AC + 8*(rt % 3); h = b + 4
    for r in range(4): E(f"v_mul_f32 v{b+r}, s40, v{b+r}")
    for r in range(4): E(f"v_fma_f32 v{h+r}, v{h+r}, s42, v17")
    E(f"""
    v_cvt_pk_bf16_f32 v4, v{b}, v{b+1}
    v_cvt_pk_bf16_f32 v5, v{b+2}, v{b+3}
    v_xor_b32 v2, 0x80008000, v4
    v_xor_b32 v3, 0x80008000, v5
    v_sub_u32_sdwa v{h}, v{h}, sext(v2) dst_sel:DWORD dst_unused:UNUSED_PAD src0_sel:DWORD src1_sel:WORD_0
    v_sub_u32_sdwa v{h+1}, v{h+1}, sext(v2) dst_sel:DWORD dst_unused:UNUSED_PAD src0_sel:DWORD src1_sel:WORD_1
    v_sub_u32_sdwa v{h+2}, v{h+2}, sext(v3) dst_sel:DWORD dst_unused:UNUSED_PAD src0_sel:DWORD src1_sel:WORD_0
    v_sub_u32_sdwa v{h+3}, v{h+3}, sext(v3) dst_sel:DWORD dst_unused:UNUSED_PAD src0_sel:DWORD src1_sel:WORD_1
    """)
    w = (OPT["gp"] >> (4*(4-rt))) & 15 if OPT["gp"] else OPT["gpace"]
    if 0 <= w < 4*rt: E(f"s_waitcnt vmcnt({w})")
    if OPT["pre"] and rt == 5 - OPT["pre"]: lds_wait(L_SCNT + 126*4, 0xff, 4, "pre")
    if OPT["ghold"] == rt + 1:
        E("v_mov_b32 v6, v2\nv_mov_b32 v7, v3"); lds_wait(L_CTR, 0xff00, 0x400, "gh", sleep=1); E("v_mov_b32 v2, v6\nv_mov_b32 v3, v7")
    for r in range(4):
        E(f"v_perm_b32 v{h+r}, v{h+r}, v{4 + (r>>1)}, s{44 + (r&1)}")
        if OPT["gwin"] >= 0: E(f"s_waitcnt vmcnt({OPT['gwin']})")
        E(f"global_store_dword v11, v{h+r}, s[20:21] offset:{256*r} sc1")
    if rt < 4: E("v_add_u32 v11, 0x1000, v11")
def fin(rt):
    a = AC + 8*(rt % 3); u = a + 4
    for r in range(4): E(f"v_mul_f32 v{a+r}, s40, v{a+r}")
    for r in range(4): E(f"v_mul_f32 v{u+r}, s42, v{u+r}")
    E(f"""
    v_cvt_pk_bf16_f32 v{a}, v{a}, v{a+1}
    v_cvt_pk_bf16_f32 v{a+1}, v{a+2}, v{a+3}
    v_cvt_f64_f32 v[2:3], v{u}
    v_cvt_f64_f32 v[4:5], v{u+1}
    v_cvt_f64_f32 v[6:7], v{u+2}
    v_cvt_f64_f32 v[8:9], v{u+3}
    ds_write_b64 v16, v[{a}:{a+1}] offset:512
    ds_write2_b64 v16, v[2:3], v[4:5] offset0:0 offset1:16
    ds_write2_b64 v16, v[6:7], v[8:9] offset0:32 offset1:48
    """)
    if rt < 4: E(f"v_add_u32 v16, {16*NSTR}, v16")
E(f"""
    s_cmp_lg_u32 s33, 0
    s_cbranch_scc1 L_gemm2
    s_cmp_lg_u32 s{S_SAFE}, 0
    s_cbranch_scc1 L_nog1
    s_setprio 2
""")
if OPT["t0f"]:
    E("L_t0:\ns_setprio 2")
    lds_wait(L_AU, 0xff, 8, "t0")
    STAMP(3)
    for ks in range(3):
        E(xread(0, ks)); wreads(ks)
    E("s_waitcnt lgkmcnt(10)"); mf(0, 0, False)
    E(xread(0, 3)); wreads(3)
    for ks in range(1, 4):
        E(f"s_waitcnt lgkmcnt({15 - 5*ks})"); mf(0, ks, False)
    E("s_nop 7"); pack(0)
    get_tag("t", 160)
    E(f"""
    s_waitcnt vmcnt(4)
    s_mov_b64 exec, 1
    ds_add_u32 v18, v19 offset:{L_CTR}
    s_mov_b64 exec, -1
    """)
    lds_wait(L_CTR, 0xff, 8, "t1")
    for rt in range(1, 4):
        for ks in range(4): E(xread(rt, ks))
    E("s_waitcnt lgkmcnt(8)")
    for ks in range(4):
        mf(1, ks, False); E(xread(4, ks))
    E(f"""
    s_mov_b64 exec, 1
    ds_add_u32 v18, v19 offset:{L_RD}
    s_mov_b64 exec, -1
    s_nop 3
    """)
    pack(1)
    E("s_waitcnt lgkmcnt(0)")
    for ks in range(4): mf(2, ks, False)
    for rt in range(3, 5):
        for ks in range(4): mf(rt, ks, False)
        pack(rt-1)
    pack(4)
else: gemm(False, pack, lambda: lds_wait(L_CTR, {1: 0x80000, 2: 0xc0000}[OPT["hold"]], 0, "hold", sleep=1, ne=True) if OPT["hold"] else None)
E("s_setprio 0")
if OPT["gate"] or OPT["gate2"] >= 3:
    E(f"""
    s_mov_b64 exec, 1
    ds_add_u32 v18, v19 offset:{L_GST}
    s_mov_b64 exec, -1
    """)
STAMP(4)
main_consts()
E(f"""
    s_lshl_b32 s30, s{S_P}, 7
    s_add_u32 s30, s30, {WS_FL2}
    v_mov_b32 v60, s30
    v_mov_b32 v62, s{S_TAG}
    v_mov_b32 v63, s{S_TAG+1}
    v_mov_b32 v2, 0
    v_mov_b32 v3, 1
    s_lshl_b32 s30, s32, 13
    s_lshl_b32 s31, s{S_HALF}, 7
    s_add_u32 s30, s30, s31
    s_add_u32 s30, s30, {WS_FL2}
    v_lshl_add_u32 v64, v1, 8, s30
    s_mul_i32 s30, s32, {2560*256}
    s_lshr_b32 s31, s2, 3
    s_mul_i32 s31, s31, {160*128}
    s_add_u32 s30, s30, s31
    v_lshl_add_u32 v65, v1, 7, s30
    {'' if OPT['gpe'] else 'v_min_u32 v65, %d, v65' % (G_HALF - 128)}
    s_mul_i32 s30, s{S_HALF}, {G_HALF}
    v_add_u32 v65, s30, v65
    s_mov_b64 exec, 1
    s_waitcnt vmcnt(0)
    ds_add_rtn_u32 v61, v2, v3 offset:{L_DONE2}
    s_waitcnt lgkmcnt(0)
    v_readfirstlane_b32 s30, v61
    s_cmp_lg_u32 s30, 3
    s_cbranch_scc1 L_nofl
    global_store_dwordx2 v60, v[62:63], s[20:21] sc1
    ds_add_u32 v2, v3 offset:{L_DONE2}
L_nofl:
""")
STAMP(5)
if OPT["p2gate"]:
    E("s_mov_b64 exec, -1")
    lds_wait(L_CTR, 0xff0000, 0x080000, "pg", sleep=1)
    E("s_mov_b32 exec_hi, 0")
if OPT["p2wait"]: E(f"s_sleep {OPT['p2wait']}")
STAMP(6)
def gready(lab):
    if OPT["gpe"]: E(f"s_cmp_lg_u32 s73, 0\ns_cbranch_scc1 L_gr{lab}")
    if OPT["gpf"]:
        E(f"""
        {"s_bfm_b64 exec, %d, 0" % OPT["gpf"] if OPT["gpf"] < 64 else "s_mov_b64 exec, -1"}
        global_load_dword v35, v65, s[20:21] sc1
        """)
    E(f"""
L_gr{lab}:
    s_mov_b64 exec, 1
    v_mov_b32 v2, 0
    v_mov_b32 v3, 1
    ds_add_u32 v2, v3 offset:{L_GOK}
    """)
E(f"""
    s_cmp_eq_u32 s32, 3
    s_cselect_b32 exec_lo, 0x1fffffff, -1
    {"" if OPT["p1st"] else "s_mov_b64 s[66:67], exec"}
    {"" if OPT["p1st"] else "s_branch L_p2n"}
    global_load_dwordx2 v[66:67], v64, s[20:21] sc1
    s_waitcnt vmcnt(0)
    v_cmp_ne_u64 s[66:67], s[{S_TAG}:{S_TAG+1}], v[66:67]
""")
if OPT["gpe"]:
    n = OPT["gpe"]
    E(f"""
    s_mov_b32 s73, 0
    s_lshr_b32 s30, s2, 3
    s_bitcmp1_b32 s66, s30
    s_cbranch_scc1 L_nogpe
    s_mov_b32 s73, 1
    s_bitcmp1_b32 exec_lo, s30
    s_cbranch_scc0 L_nogpe
    """)
    for k in range(0, n, 64):
        E("s_mov_b64 exec, -1")
        if k: E(f"v_add_u32 v65, 8192, v65")
        if n - k < 64: E(f"s_bfm_b64 exec, {n-k}, 0")
        E(f"global_load_dword v{(35, 68, 69)[k//64]}, v65, s[20:21] sc1")
    E("L_nogpe:")
E(f"""
    s_cmp_lg_u64 s[66:67], 0
    s_cbranch_scc1 L_p2n
""")
gready("a")
E("L_p2n:\ns_mov_b64 exec, -1")
STAMP(7)
E(f"""
    s_branch L_b4
L_nog1:
    s_mov_b64 exec, 1
    ds_add_u32 v18, v19 offset:{L_RD}
    s_mov_b64 exec, -1
    s_branch L_rec
L_gemm2:
""")
def stage_au():
    E(f"""
    v_lshrrev_b32 v5, 3, v1
    v_bfe_u32 v3, v1, 4, 1
    v_lshlrev_b32 v3, 1, v3
    v_and_b32 v4, 7, v1
    v_xor_b32 v3, v3, v4
    v_lshlrev_b32 v3, 4, v3
    v_lshl_add_u32 v6, v5, 8, v3
    s_lshl_b32 s30, s{S_HALF}, 7
    s_and_b32 s31, s3, 1
    s_lshl_b32 s31, s31, 14
    s_add_u32 s30, s30, s31
    v_add_u32 v6, s30, v6
    v_xor_b32 v7, 64, v6
    v_add_u32 v8, 2048, v6
    v_add_u32 v9, 3072, v7
    v_add_u32 v7, 1024, v7
    s_lshl_b32 s30, s32, 13
    s_add_u32 m0, s30, {L_WAU}
    s_cmp_lt_u32 s32, 2
    s_cselect_b32 s34, s16, s12
    s_cselect_b32 s35, s17, s13
    global_load_lds_dwordx4 v6, s[34:35]
    global_load_lds_dwordx4 v7, s[34:35] offset:1024
    global_load_lds_dwordx4 v8, s[34:35] offset:2048
    global_load_lds_dwordx4 v9, s[34:35] offset:3072
    s_add_u32 m0, m0, 4096
    s_add_u32 s34, s34, 8192
    s_addc_u32 s35, s35, 0
    global_load_lds_dwordx4 v6, s[34:35]
    global_load_lds_dwordx4 v7, s[34:35] offset:1024
    global_load_lds_dwordx4 v8, s[34:35] offset:2048
    global_load_lds_dwordx4 v9, s[34:35] offset:3072
""")
if not OPT['aul']: stage_au()
for rt in range(5):
    for ks in range(4): E(xread(rt, ks))
E(f"""
    s_mov_b64 exec, 1
    ds_add_u32 v18, v19 offset:{L_RD}
    s_mov_b64 exec, -1
""")
if OPT['aul']:
    lds_wait(L_RD, 8, 8, "aul"); stage_au()
E(f"""
    s_mov_b64 exec, 1
    s_waitcnt vmcnt(0)
    ds_add_u32 v18, v19 offset:{L_RD}
    s_mov_b64 exec, -1
    s_sub_u32 s29, s3, 4
""")
rec_setup()
lds_wait(L_RD, 0xff, 12, "rd")
for ks in range(4): wreads(ks)
for ks in range(4):
    E(f"s_waitcnt lgkmcnt({12 - 4*ks})"); mf(0, ks, True)
for rt in range(1, 5):
    for ks in range(4): mf(rt, ks, True)
    fin(rt-1)
fin(4)
STAMP(4)
E(f"""
    s_branch L_rec
L_sort:
""")
STAMP(1)
E(f"""
    s_mov_b32 s40, {f32(-LOG2E)}
    s_mov_b32 s46, 0x3f80
    s_cmp_lg_u32 s{S_SAFE}, 0
    s_cbranch_scc1 L_sortskip
    v_mov_b32 v21, 1
    v_mov_b32 v20, 3
    s_mov_b32 s31, 52429
    s_movk_i32 s32, -20
    v_lshlrev_b32 v9, 3, v1
    v_lshlrev_b32 v33, 4, v0
    s_mul_i32 s30, s{S_P}, {SORTB}
    s_add_u32 s30, s30, {WS_REC + 4096}
    v_add_u32 v32, s30, v33
    v_add_u32 v34, 8192, v32
    s_lshl_b32 s30, s{S_P}, 10
    s_add_u32 s30, s30, {WS_ROW}
    v_lshl_add_u32 v42, v1, 4, s30
    s_mov_b32 s34, {POLL_MAX}
    s_setprio 3
    s_waitcnt vmcnt({1 + OPT['pre']})
""")
STAMP(2)
FSTAMP(1)
for i in range(5):
    E(f"""
    v_mul_u32_u24 v{22+i}, s31, v{4+i}
    v_lshrrev_b32 v{22+i}, 22, v{22+i}
    v_lshlrev_b32 v{22+i}, 2, v{22+i}        ; bucket*4
    ds_add_rtn_u32 v{27+i}, v{22+i}, v20 offset:{L_SCNT}
    """)
E(f"""
    s_mov_b64 exec, 1
    s_cmp_lg_u32 s3, 0
    s_cbranch_scc1 L_notag
    s_waitcnt vmcnt({OPT['pre']})
    ds_write_b32 v48, v43 offset:{L_SCNT + 125*4}
L_notag:
    ds_add_u32 v48, v21 offset:{L_SCNT + 127*4}
    s_mov_b64 exec, -1
""")
if OPT["ewhen"] == 1: E(f"""
    global_load_dwordx4 v[12:15], v3, s[8:9]{NTE}
    global_load_dword v16, v18, s[8:9]{NTE}
    global_load_dwordx4 v[52:55], v10, s[6:7]{NTE}
    global_load_dwordx4 v[56:59], v10, s[6:7] offset:16{NTE}
    global_load_dwordx2 v[60:61], v11, s[6:7]{NTE}
""")
E(f"""
L_s1:
    ds_read_b32 v38, v48 offset:{L_SCNT + 127*4}
    ds_read_b64 v[36:37], v9 offset:{L_SCNT}
    s_sub_u32 s34, s34, 1
    s_cbranch_scc1 L_s1d
    s_waitcnt lgkmcnt(0)
    v_readfirstlane_b32 s30, v38
    s_cmp_lg_u32 s30, 4
    s_cbranch_scc1 L_s1
L_s1d:
""")
FSTAMP(2)
E(f"""
    v_add3_u32 v39, v36, v37, 2
    v_add3_u32 v38, v36, v37, 2
    v_readlane_b32 s{S_TAGRAW}, v37, 62
""")
fill = []
for i in range(5):
    fill += [f"v_mad_i32_i24 v{4+i}, v{22+i}, s32, v{4+i}", f"v_lshlrev_b32 v{4+i}, 24, v{4+i}"]
for k, m in enumerate(SCAN):
    E(f"v_add_u32_dpp v39, v39, v39 {m}")
    for x in fill[2*k:2*k+2]: E(x)
E(f"""
    v_sub_u32 v40, v39, v38
    v_add3_u32 v41, v40, v36, 1
    s_mov_b32 s30, {L_SORT}
    v_lshl_add_u32 v38, v40, 2, s30
    v_lshl_add_u32 v39, v41, 2, s30
    ds_write_b64 v9, v[38:39] offset:{L_SOFF}
""")
for i in range(5):
    E(f"ds_read_b32 v{22+i}, v{22+i} offset:{L_SOFF}")
finish_tag()
E(f"""
    s_cmp_lg_u32 s3, 0
    s_cbranch_scc1 L_nopub
    s_and_b32 s35, s{S_TAG+1}, 0xff000000
    v_mov_b32 v45, s{S_TAG}
    v_mov_b32 v47, s{S_TAG}
    v_lshl_or_b32 v44, v36, 12, v40
    v_lshl_or_b32 v46, v37, 12, v41
    v_or_b32 v44, s35, v44
    v_or_b32 v46, s35, v46
    global_store_dwordx4 v42, v[44:47], s[20:21] sc1
    {"s_waitcnt vmcnt(1)" if OPT["ewhen"] == 1 else ""}
    s_branch {"L_pub" if OPT["ewhen"] == 1 else "L_nochk"}
L_nopub:
    s_cmp_lg_u32 s3, 1
    s_cbranch_scc1 L_nochk
    v_mov_b32 v44, s{S_TAG+1}
    s_mov_b32 exec_hi, 0x7fffffff
    ds_add_u32 v38, v44
    ds_add_u32 v39, v44
    s_mov_b32 exec_hi, -1
L_nochk:
""")
if OPT["ewhen"] >= 3:
    E("v_mov_b32 v19, v3")
    if OPT["ewhen"] == 3: lds_wait(L_CTR, 0xff, 8, "ew")
    else: lds_wait(L_CTR, 0xff, 0, "ew", ne=True)
    E("v_mov_b32 v3, v19")
if OPT["ewhen"] >= 2: E(f"""
    global_load_dwordx4 v[12:15], v3, s[8:9]{NTE}
    global_load_dword v16, v18, s[8:9]{NTE}
    global_load_dwordx4 v[52:55], v10, s[6:7]{NTE}
    global_load_dwordx4 v[56:59], v10, s[6:7] offset:16{NTE}
    global_load_dwordx2 v[60:61], v11, s[6:7]{NTE}
""")
E(f"""
    s_waitcnt vmcnt(0)
L_pub:
""")
STAMP(4)
FSTAMP(3)
for i in range(5): E(f"v_lshl_or_b32 v{4+i}, v{12+i}, 8, v{4+i}")
E("s_waitcnt lgkmcnt(0)")
for i in range(5):
    E(f"""
    v_lshl_add_u32 v{27+i}, v{27+i}, 2, v{22+i}
    v_add3_u32 v{12+i}, v{52+2*i}, v{53+2*i}, v{4+i}
    ds_write2_b32 v{27+i}, v{52+2*i}, v{53+2*i} offset0:2 offset1:3
    ds_write_b32 v{27+i}, v{4+i} offset:4
    ds_sub_u32 v{22+i}, v{12+i}
    """)
E(f"""
    s_mov_b64 exec, 1
    ds_add_u32 v48, v21 offset:{L_SCNT + 126*4}
    s_mov_b64 exec, -1
""")
FSTAMP(4)
E(f"""
    s_mov_b32 s34, {POLL_MAX}
L_s2:
    ds_read_b32 v38, v48 offset:{L_SCNT + 126*4}
    {f"ds_read_b32 v39, v48 offset:{L_CTR}" if OPT["wgate"] else ""}
    ds_read_b128 v[72:75], v33 offset:{L_SORT}
    s_sub_u32 s34, s34, 1
    s_cbranch_scc1 L_s2d
    s_waitcnt lgkmcnt(1)
    v_readfirstlane_b32 s30, v38
""")
if OPT["wgate"]:
    E(f"""
    v_readfirstlane_b32 s31, v39
    s_lshr_b32 s31, s31, 24
    s_add_u32 s30, s30, s31
    """)
E(f"""
    s_cmp_lg_u32 s30, {12 if OPT["wgate"] else 4}
    s_cbranch_scc1 L_s2
L_s2d:
""")
FSTAMP(5)
E(f"""
    ds_read_b128 v[76:79], v33 offset:{L_SORT + 4096}
    ds_read_b128 v[80:83], v33 offset:{L_SORT + 8192}
    ds_read_b128 v[84:87], v33 offset:{L_SORT + 12288}
    s_waitcnt lgkmcnt(3)
    global_store_dwordx4 v32, v[72:75], s[20:21] offset:-4096 sc1
    s_waitcnt lgkmcnt(2)
    global_store_dwordx4 v32, v[76:79], s[20:21] sc1
    s_waitcnt lgkmcnt(1){f" vmcnt({OPT['rpace']})" if OPT['rpace'] >= 0 else ""}
    global_store_dwordx4 v34, v[80:83], s[20:21] offset:-4096 sc1
    s_cmp_eq_u32 s3, 3
    s_cselect_b32 exec_hi, 0, -1
    s_waitcnt lgkmcnt(0){f" vmcnt({OPT['rpace']})" if OPT['rpace'] >= 0 else ""}
    global_store_dwordx4 v34, v[84:87], s[20:21] sc1
    s_mov_b32 exec_hi, -1
""")
FSTAMP(6)
for k in range(4): E(f"ds_write_b128 v33, v[48:51] offset:{L_SORT + 4096*k}")
STAMP(3)
FSTAMP(7)
E(f"""
    s_branch L_sortdone
L_sortskip:
    s_waitcnt vmcnt(0)
L_sortdone:
    s_mov_b32 s29, s3
""")
rec_setup()
E(f"""
L_rec:
""")
lds_wait(L_CTR, 0xff, 8, "r0")
main_consts()
STAMP(5)
E(f"""
    s_cmp_ge_u32 s3, 4
    s_cbranch_scc1 L_nod2
    v_mov_b32 v2, 0
    v_mov_b32 v3, 0x100
    s_mov_b64 exec, 1
    s_waitcnt vmcnt(0)
    ds_add_u32 v2, v3 offset:{L_CTR}
    s_mov_b64 exec, -1
L_nod2:
    s_cmp_lg_u32 s{S_SAFE}, 0
    s_cbranch_scc1 L_recskip
    s_lshr_b32 s35, s{S_TAG+1}, 24
    s_mov_b64 exec, s[66:67]
    s_mov_b32 s34, {POLL_MAX}
    s_branch L_p1c
L_p1:
    global_load_dwordx2 v[{ENT}:{ENT+1}], v{ROWA}, s[20:21] sc1
L_p1c:
    s_sub_u32 s34, s34, 1
    s_cbranch_scc1 L_toobig
    s_waitcnt vmcnt(0)
    v_cmp_ne_u32 vcc, s{S_TAG}, v{ENT+1}
    v_cmp_ne_u32_sdwa s[48:49], v{ENT}, s35 src0_sel:BYTE_3 src1_sel:DWORD
    s_or_b64 exec, vcc, s[48:49]
    s_cbranch_scc1 L_p1
    s_mov_b64 exec, -1
""")
STAMP(6)
if OPT["cnt"]: E(f"s_sub_u32 s{ST0+2}, {POLL_MAX+1}, s34\ns_mov_b32 s34, {POLL_MAX}")
E(f"""
    v_and_b32 v{CAD}, 0xfff, v{ENT}
    v_bfe_u32 v{ENT}, v{ENT}, 12, 12            ; 3*count
    v_add_lshl_u32 v{CAD}, v{CAD}, v{CELL}, 2
    v_cmp_ne_u32 vcc, 0, v{ENT}
    s_sub_u32 s30, 0, s{S_TAG+1}
    v_mov_b32 v2, s30
    v_cndmask_b32 v{ENT+1}, 0, v2, vcc
    v_cmp_lt_u32 vcc, 96, v{ENT}
    v_cmp_lt_u32 s[68:69], 48, v{ENT}
    s_cbranch_vccnz L_toobig
""")
for p in range(NP):
    E(f"""
    v_add_co_u32_dpp v2, vcc, v{ENT}, v{J3N} row_newbcast:{p} row_mask:0xf bank_mask:0xf
    v_add_u32_dpp v{RAD+p}, v{CAD}, v{J12} row_newbcast:{p} row_mask:0xf bank_mask:0xf
    s_mov_b64 s[{48+2*p}:{49+2*p}], vcc
    """)
lds_wait(L_CTR, 0xff00, 0x400, "r1")
if OPT["gate"]: lds_wait(L_GST, 0xff, 4, "gt")
if OPT["gate2"] == 1:
    E("s_cmp_lt_u32 s3, 4\ns_cbranch_scc1 L_wd_g2")
    lds_wait(L_DONE2, 0xff, 5, "g2")
if OPT["gate2"] == 3:
    E("s_cmp_lt_u32 s3, 4\ns_cbranch_scc1 L_wd_g2")
    lds_wait(L_GST, 0xff, 4, "g2")
if OPT["gate2"] in (2, 4):
    E(f"""
    s_cmp_lt_u32 s3, 4
    s_cbranch_scc1 L_g2d
    s_mov_b32 s31, {POLL_MAX}
L_g2:
    ds_read_b128 v[60:63], v2 offset:{L_CTR}
    {f"ds_read_b32 v61, v2 offset:{L_GST}" if OPT["gate2"] == 4 else ""}
    s_sub_u32 s31, s31, 1
    s_cbranch_scc1 L_g2d
    s_waitcnt lgkmcnt(0)
    v_readfirstlane_b32 s30, v62
    v_readfirstlane_b32 s28, v60
    v_readfirstlane_b32 s29, v61
    s_cmp_eq_u32 s30, 5
    s_cbranch_scc1 L_g2d
    {"s_cmp_lg_u32 s29, 4" if OPT["gate2"] == 4 else ""}
    {"s_cbranch_scc1 L_g2" if OPT["gate2"] == 4 else ""}
    s_and_b32 s28, s28, 0xc0000
    s_cbranch_scc0 L_g2
L_g2d:
    """)
E(f"""
    s_or_b32 s68, s68, s69
    s_lshr_b32 s69, s68, 16
    s_or_b32 s68, s68, s69
""")
def mask2(p): return f"v_add_co_u32_dpp v2, vcc, v{ENT}, v{J3N2} row_newbcast:{p} row_mask:0xf bank_mask:0xf"
def loads(ps, lab):
    E(f"s_and_b32 s30, s68, {sum(1 << p for p in ps)}\ns_cbranch_scc0 L_nx{lab}")
    for p in ps:
        r = RB + 4*p
        E(f"""
        s_bitcmp1_b32 s68, {p}
        s_cbranch_scc0 L_nx{lab}{p}
        {mask2(p)}
        s_mov_b64 exec, vcc
        global_load_dwordx4 v[{r}:{r+3}], v{RAD+p}, s[20:21] offset:192 sc1
        s_mov_b64 exec, -1
L_nx{lab}{p}:
        """)
    E(f"L_nx{lab}:")
    for p in ps:
        r = RA + 4*p
        E(f"""
        s_mov_b64 exec, s[{48+2*p}:{49+2*p}]
        global_load_dwordx4 v[{r}:{r+3}], v{RAD+p}, s[20:21]{SC1 if (OPT["rsc1"] or lab != "m") else ""}
        """)
    E("s_mov_b64 exec, -1")
loads(range(NP), "m")
def issued():
    if OPT["p2gate"]:
        E(f"""
        v_mov_b32 v2, 0
        v_mov_b32 v3, 0x10000
        s_mov_b64 exec, 1
        ds_add_u32 v2, v3 offset:{L_CTR}
        s_mov_b64 exec, -1
        """)
if not OPT["sig"]: issued()
STAMP(7)
def rank(r, m):
    E(f"""
    s_mov_b64 exec, {m}
    v_mul_u32_u24_sdwa v{r}, v{FOUR}, v{r+1} dst_sel:DWORD dst_unused:UNUSED_PAD src0_sel:DWORD src1_sel:BYTE_3
    v_and_b32 v{r+1}, {OPT['srcmask']}, v{r+1}
    ds_add_rtn_u32 v{r}, v{r}, v{FOUR} offset:{L_CNT}
    """)
def put(r, m):
    E(f"""
    s_mov_b64 exec, {m}
    v_lshlrev_b32 v2, 1, v{r}
    ds_write_b32 v{r}, v{r+1}
    ds_write_b64 v2, v[{r+2}:{r+3}] offset:{L_EA - 2*L_SRC}
    """)
retries = []
pending = []
for gi, grp in enumerate(((0, 1, 2, 3), (4, 5), (6, 7))):
    bits = sum(1 << p for p in grp); m32 = bits | (bits << 16)
    E(f"""
L_ck{gi}:
    s_mov_b32 vcc_lo, {m32}
    s_mov_b32 vcc_hi, {m32}
    v_cndmask_b32 v{ACC}, 0, v{ENT+1}, vcc
    s_and_b32 s30, s68, {bits}
    s_cbranch_scc1 L_xa{gi}
L_xb{gi}:
    """)
    def xacc():
        E(f"L_xa{gi}:\ns_waitcnt vmcnt({NP})")
        for p in grp:
            r = RB + 4*p
            E(f"""
            {mask2(p)}
            s_mov_b64 exec, vcc
            v_add3_u32 v{ACC}, v{ACC}, v{r+1}, v{r+2}
            v_add_u32 v{ACC}, v{ACC}, v{r+3}
            s_mov_b64 exec, -1
            """)
        E(f"s_branch L_xb{gi}")
    emit_to(outofline, xacc)
    for p in grp:
        r = RA + 4*p
        E(f"""
        s_waitcnt vmcnt({NP-1-p})
        s_mov_b64 exec, s[{48+2*p}:{49+2*p}]
        v_and_b32 v{r}, v{r}, v{L0M}
        v_add3_u32 v{ACC}, v{ACC}, v{r+2}, v{r+3}
        v_add3_u32 v{ACC}, v{ACC}, v{r}, v{r+1}
        """)
    E("s_mov_b64 exec, -1\ns_nop 0")
    for k in (1, 2, 4, 8):
        E(f"v_add_u32_dpp v{ACC}, v{ACC}, v{ACC} row_ror:{k} row_mask:0xf bank_mask:0xf")
        if k < 8: E("s_nop 1")
    E(f"v_cmp_ne_u32 vcc, 0, v{ACC}\ns_cbranch_vccnz L_rt{gi}")
    if OPT["rst"]: STAMP(1+gi)
    if OPT["sig"] == gi + 1: issued()
    def retry():
        E(f"L_rt{gi}:\ns_sub_u32 s34, s34, 1\ns_cbranch_scc1 {'L_toobig' if gi < OPT['sig'] else 'L_giveup'}")
        loads(grp, f"r{gi}_")
        E(f"s_waitcnt vmcnt(0)\ns_branch L_ck{gi}")
    emit_to(outofline, retry)
    for p in grp: rank(RA + 4*p, f"s[{48+2*p}:{49+2*p}]")
    E(f"s_and_b32 s30, s68, {bits}\ns_cbranch_scc1 L_ya{gi}\nL_yb{gi}:")
    def xput():
        E(f"L_ya{gi}:")
        for p in grp:
            r = RB + 4*p
            E(f"""
            s_bitcmp1_b32 s68, {p}
            s_cbranch_scc0 L_yn{p}
            s_mov_b64 exec, -1
            {mask2(p)}
            """)
            rank(r, "vcc")
            E("s_waitcnt lgkmcnt(0)")
            put(r, "vcc")
            E(f"L_yn{p}:")
        E(f"s_branch L_yb{gi}")
    emit_to(outofline, xput)
    for k, p in enumerate(grp):
        E(f"s_waitcnt lgkmcnt({len(grp) - 1 - k + 2*k})")
        put(RA + 4*p, f"s[{48+2*p}:{49+2*p}]")
    E("s_mov_b64 exec, -1")
E(f"""
    {f"s_sub_u32 s{ST0+4}, {POLL_MAX+1}, s34" if OPT["cnt"] else ""}
    s_branch L_b4
L_toobig:
    s_mov_b64 exec, -1
""")
issued()
E(f"""
L_giveup:
    v_mov_b32 v2, 0
    ds_write_b32 v2, v{FOUR} offset:{L_FLAG}
L_recskip:
    s_waitcnt vmcnt(0)
L_b4:
    s_setprio {OPT["p0"] if OPT["prio"] == 2 else 0}
    s_mul_i32 s30, s{S_HALF}, {G_HALF}
    {f"s_add_u32 s30, s30, {WS0}" if WS0 else ""}
    s_add_u32 s36, s20, s30
    s_addc_u32 s37, s21, 0
    s_mov_b32 s38, {OPT['nrec'] or G_HALF}
    s_mov_b32 s39, 0x20000
    s_mov_b32 s44, 128
    s_mov_b32 s45, 128
    ds_read_b128 v[60:63], v{LP}
    ds_read_b64 v[{AG}:{AG+1}], v{LP} offset:64
    ds_read_b64 v[{WN2}:{WN2+1}], v{LP} offset:72
    ds_read_b32 v{WE}, v{LP+1}
    s_waitcnt lgkmcnt(0)
    v_lshl_add_u64 v[{AG}:{AG+1}], v[{AG}:{AG+1}], 0, v[{LN8}:{LN8+1}]
    v_lshl_add_u32 v{WE}, v{WE}, 1, v{EAC}
""")
if OPT["warm"]:
    E(f"""
    s_barrier
    s_lshr_b32 s30, s2, 3
    s_mul_i32 s30, s30, 98304
    v_lshl_add_u32 v2, v0, 7, s30
    buffer_load_dword v3, v2, s[36:39], 0 offen sc1
    s_waitcnt vmcnt(0)
    s_sleep 40
    """)
STAMP(8)
E(f"""
    s_barrier                               ; B4
    s_cmp_lg_u32 s{S_SAFE}, 0
    s_cbranch_scc1 L_safe
    ds_read_b128 v[{T}:{T+3}], v60
    ds_read_b128 v[{T+4}:{T+7}], v61
    ds_read_b64 v[{XA}:{XA+1}], v{AG} offset:512
    ds_read_b64 v[{EA}:{EA+1}], v{WE}
    s_lshr_b32 s30, s3, 2
    s_cmp_lg_u32 s30, 1
    s_cbranch_scc1 L_nopoll
    s_mov_b64 exec, s[66:67]
    s_cbranch_execz L_p2e
    s_mov_b32 s31, {POLL_MAX}
L_p2:
    global_load_dwordx2 v[66:67], v64, s[20:21] sc1
    s_sub_u32 s31, s31, 1
    s_cbranch_scc1 L_p2d
    s_waitcnt vmcnt(0)
    v_cmp_ne_u64 vcc, s[{S_TAG}:{S_TAG+1}], v[66:67]
    s_and_b64 exec, exec, vcc
    s_cbranch_scc0 L_p2d
    {f"s_sleep {OPT['p2sleep']}" if OPT['p2sleep'] else ""}
    s_branch L_p2
L_p2d:
""")
gready("b")
E(f"""
L_p2e:
    s_mov_b64 exec, -1
L_nopoll:
    s_cmp_lt_u32 s3, {NW-2}
    s_cbranch_scc1 L_nobuild
    v_lshlrev_b32 v2, 3, v1
    v_mov_b32 v3, 0
    ds_read_b64 v[72:73], v2 offset:{L_CNT}
    ds_read_b32 v79, v3 offset:{L_FLAG}
    v_mul_u32_u24 v74, {2*SSTR}, v1
    v_add_u32 v74, {L_SRC + 96}, v74
    v_add_u32 v75, {SSTR}, v74
    v_mul_u32_u24 v82, {2*NSTR}, v1
    s_and_b32 s32, s3, 1
    s_mul_i32 s30, s32, {NSTR}
    s_add_u32 s30, s30, {L_NODE}
    v_add_u32 v82, s30, v82
    v_mov_b32 v83, v82
    s_mul_i32 s30, s32, {SSTR}
    v_add_u32 v80, s30, v74
    v_add_u32 v81, 16, v80
    s_waitcnt lgkmcnt(0)
    v_sub_u32 v72, v72, v74 clamp
    v_sub_u32 v73, v73, v75 clamp
    v_max_u32 v76, v72, v73
    v_cmp_lt_u32 vcc, 160, v76
    v_cmp_ne_u32 s[48:49], 0, v79
    v_add_u32 v74, 12, v72
    v_add_u32 v75, 12, v73
    s_or_b64 vcc, vcc, s[48:49]
    s_cbranch_scc1 L_bad
    v_add_u32 v72, 28, v72
    v_add_u32 v73, 28, v73
    v_lshrrev_b32 v74, 5, v74
    v_lshrrev_b32 v75, 5, v75
    v_lshrrev_b32 v72, 5, v72
    v_lshrrev_b32 v73, 5, v73
    v_sub_u32 v72, v72, v74
    v_sub_u32 v73, v73, v75
    v_lshl_or_b32 v72, v72, 16, v74
    v_lshl_or_b32 v73, v73, 16, v75
    v_add_u32 v76, v72, v73
    v_add_u32 v77, v72, v73
""")
scan(77)
E(f"""
    s_cmp_eq_u32 s32, 0
    s_cselect_b64 vcc, -1, 0
    v_readlane_b32 s30, v77, 63
    v_cndmask_b32 v76, v73, v76, vcc
    v_cndmask_b32 v72, v73, v72, vcc
    v_sub_u32 v77, v77, v76
    s_and_b32 s31, s30, 0xffff
    s_add_u32 s31, s31, 3
    s_lshr_b32 s31, s31, 2
    s_add_u32 s30, s30, 0x30000
    s_lshr_b32 s30, s30, 18
    s_lshl_b32 s33, s31, 1
    s_add_u32 s33, s33, s30
    s_cmp_gt_u32 s33, 112
    s_cbranch_scc1 L_bad
    s_lshl_b32 s30, s30, 8
    s_or_b32 s29, s30, s31
    v_and_b32 v74, 0xffff, v72
    v_and_b32 v76, 0xffff, v77
    s_mov_b32 s34, {L_LISTC}
    s_mov_b32 s35, {L_LIST + 384}
""")
def slotaddr():
    E(f"""
    v_add_u32 v78, 16, v76
    v_bfe_u32 v79, v76, 2, 2
    v_lshl_add_u32 v79, v79, 10, s34
    v_lshrrev_b32 v84, 5, v78
    v_lshl_add_u32 v79, v84, 7, v79
    v_bfe_u32 v84, v78, 4, 1
    v_lshl_add_u32 v79, v84, 3, v79
    v_lshrrev_b32 v84, 2, v76
    v_cmp_gt_u32 vcc, 32, v76
    v_lshl_add_u32 v84, v84, 9, s35
    v_and_b32 v78, 3, v76
    v_cndmask_b32 v79, v79, v84, vcc
    v_lshl_add_u32 v79, v78, 4, v79
    """)
E("""
L_bf:
    v_cmp_ne_u32 vcc, 0, v74
    s_and_b64 exec, exec, vcc
    s_cbranch_execz L_bfd
""")
slotaddr()
E(f"""
    ds_write_b64 v79, v[80:81]
    ds_write_b64 v79, v[82:83] offset:64
    v_add_u32 v80, 32, v80
    v_add_u32 v81, 32, v81
    v_add_u32 v76, 1, v76
    v_subrev_u32 v74, 1, v74
    s_branch L_bf
L_bfd:
    s_mov_b64 exec, -1
    v_lshrrev_b32 v77, 16, v77
    v_lshrrev_b32 v76, 3, v77
    v_add_u32 v76, s31, v76
    v_and_b32 v78, 3, v77
    v_lshl_add_u32 v76, v76, 2, v78
""")
slotaddr()
E(f"""
    v_and_b32 v78, 4, v77
    v_add_u32 v79, v79, v78
    v_cmp_lt_u32 vcc, 0xffff, v72
    s_mov_b64 exec, vcc
    ds_write2_b32 v79, v80, v82 offset0:0 offset1:16
    s_mov_b64 exec, -1
    s_mul_i32 s29, s29, s32
    s_add_u32 s29, s29, 0x10000
    s_branch L_built
L_bad:
    s_mov_b32 s29, 0x1010000
L_built:
    v_mov_b32 v2, s29
    s_mov_b64 exec, 1
    ds_add_u32 v3, v2 offset:{L_NST}
    s_add_u32 s30, s{S_P}, s32
    s_cmp_lg_u32 s30, 0
    s_cbranch_scc1 L_notw
    v_mov_b32 v2, s{S_TAG}
    v_mov_b32 v3, {WS_TAG}
    global_store_dword v3, v2, s[20:21] sc1
L_notw:
    s_mov_b64 exec, -1
L_nobuild:
    s_waitcnt lgkmcnt(0)
""")
assert DIST == 2 and not EARLY
E(m_a(D0))
for o in range(T, T+8, 2): E(oadd(o))
E(m_e(D0, 0))
lds_wait(L_GOK, 0xff, 4, "gok")
if OPT["stamps"] == 2: E(f"s_memrealtime s[{ST0+16}:{ST0+17}]")
if not OPT["nogather"]:
    for q in range(8): E(gload(G + 4*q, T+q))
STAMP(9)
E(f"""
    s_mov_b32 s31, {POLL_MAX}
    s_waitcnt vmcnt(4)
""")
E(m_s(D0, A1, G)); E(m_s(D0, A2, G+8))
E(f"""
L_wn:
    ds_read_b32 v3, v2 offset:{L_NST}
    ds_read_b128 v[{WS4}:{WS4+3}], v{LP} offset:{128*((DIST+EARLY)//4)}
    s_sub_u32 s31, s31, 1
    s_cbranch_scc1 L_gosafe
    s_waitcnt lgkmcnt(0)
    v_readfirstlane_b32 s30, v3
    s_bitcmp1_b32 s30, 17
    s_cbranch_scc0 L_wn
    s_cmp_gt_u32 s30, {0 if OPT["force_safe"] else 0xffffff}
    s_cbranch_scc1 L_gosafe
    s_and_b32 s31, s30, 0xff
    s_bfe_u32 s30, s30, 0x80008
    s_lshl_b32 s32, s31, 1
    s_add_u32 s30, s30, s32
    s_lshl_b32 s32, s3, 1
    s_sub_i32 s30, s30, s32
    s_max_i32 s30, s30, 0
    s_cmp_ge_u32 s3, 8
    s_cbranch_scc1 L_nc
    s_min_u32 s30, s30, 2
    s_add_u32 s{S_R}, s30, 12
    s_cmp_ge_u32 s3, s31
    s_cselect_b32 s30, 0x2000, 0
    s_or_b32 s{S_M}, s30, 0x5041
    s_branch L_nd
L_nc:
    s_add_u32 s32, s30, 7
    s_lshr_b32 s32, s32, 3
    s_lshl_b32 s32, s32, 1
    s_and_b32 s30, s30, 7
    s_cmp_eq_u32 s30, 1
    s_subb_u32 s32, s32, 0
    s_add_u32 s{S_R}, s32, 6
    s_sub_i32 s31, s31, s3
    s_add_i32 s31, s31, 3
    s_max_i32 s31, s31, 0
    s_lshr_b32 s31, s31, 2
    s_lshl_b32 s31, s31, 1
    s_add_u32 s31, s31, 7
    s_lshl_b32 s31, -1, s31
    s_or_b32 s{S_M}, s31, 0x55555541
L_nd:
    s_mov_b32 s{S_IT}, {(1 << OPT["pa"]) | (1 << OPT["pb"]) | (1 << OPT["pc"]) if OPT["prio"] == 2 else 0}
""")
if OPT["prio"]: E(f"s_setprio {OPT['p1']}")
STAMP(10)
if OPT["ptime"]: E("v_mov_b32 v70, 0\nv_mov_b32 v71, 0")
if OPT["stamps"] == 1: E(f"s_memtime s[{ST0+24}:{ST0+25}]\ns_waitcnt lgkmcnt(0)")
for u in range(4): phase(u, True)
for u in range(4): phase(u, False)
E(f"""
L_mdone:
    s_waitcnt lgkmcnt(0)
""")
STAMP(11)
if OPT["ptime"]:
    E(f"""
    s_lshl_b32 s30, s2, 4
    s_add_u32 s30, s30, s3
    s_lshl_b32 s30, s30, 8
    s_add_u32 s30, s30, 0xc00000
    v_lshl_add_u32 v2, v1, 2, s30
    s_mov_b32 exec_hi, 0
    global_store_dword v2, v70, s[20:21]
    global_store_dword v2, v71, s[20:21] offset:128
    s_mov_b64 exec, -1
    """)
if OPT["stamps"] == 1:
    E(f"s_memtime s[28:29]\ns_waitcnt lgkmcnt(0)\ns_sub_u32 s{ST0+24}, s28, s{ST0+24}")
E(f"""
    v_lshrrev_b32 v2, 5, v0
    v_and_b32 v3, 31, v0
    v_mul_u32_u24 v4, {NSTR}, v2
    v_and_b32 v5, 1, v3
    v_lshl_add_u32 v4, v5, 8, v4
    v_lshrrev_b32 v5, 1, v3
    v_lshl_add_u32 v4, v5, 3, v4
    v_add_u32 v4, {L_NODE}, v4
    s_mul_i32 s30, s{S_BUCK}, {NB*256}
    s_lshl_b32 s31, s{S_HALF}, 7
    s_add_u32 s30, s30, s31
    v_lshlrev_b32 v3, 2, v3
    v_lshl_add_u32 v5, v2, 8, v3
    v_add_u32 v5, s30, v5
    v_add_u32 v6, {24*256}, v5
    v_add_u32 v7, {48*256}, v5
    v_add_u32 v8, {72*256}, v5
    s_mov_b32 s32, {f32(2.0**32)}
    s_mov_b32 s34, {f32(-LOG2E * 2.0**-32)}
    v_mov_b32 v9, 0x207
    s_barrier                               ; B5
""")
OSC = {0: "", 1: " sc1", 2: " nt"}[OPT["osc"]]
def epi(us):
    for u in us: E(f"ds_read_b64 v[{12+4*u}:{13+4*u}], v4 offset:{24*NSTR*u}\nds_read_b64 v[{14+4*u}:{15+4*u}], v4 offset:{24*NSTR*u + 128}")
    E("s_waitcnt lgkmcnt(0)")
    for u in us: E(f"v_cvt_f32_f64 v{28+2*u}, v[{12+4*u}:{13+4*u}]\nv_cvt_f32_f64 v{29+2*u}, v[{14+4*u}:{15+4*u}]")
    for u in us: E(f"v_pk_mul_f32 v[{36+2*u}:{37+2*u}], v[{28+2*u}:{29+2*u}], s[34:35] op_sel_hi:[1,0]")
    for u in us: E(f"v_exp_f32 v{36+2*u}, v{36+2*u}\nv_exp_f32 v{37+2*u}, v{37+2*u}")
    E("v_pk_add_f32 v[10:11], v[28:29], v[30:31]")
    for u in us: E(f"v_pk_fma_f32 v[{36+2*u}:{37+2*u}], v[{36+2*u}:{37+2*u}], s[32:33], s[32:33] op_sel_hi:[1,0,0]")
    for u in us: E(f"v_rcp_f32 v{36+2*u}, v{36+2*u}\nv_rcp_f32 v{37+2*u}, v{37+2*u}")
    E("v_pk_add_f32 v[10:11], v[10:11], v[32:33]")
    for u in us: E(f"v_pk_mul_f32 v[{36+2*u}:{37+2*u}], v[{28+2*u}:{29+2*u}], v[{36+2*u}:{37+2*u}]")
    for u in us: E(f"v_cvt_pk_bf16_f32 v{44+u}, v{36+2*u}, v{37+2*u}\nglobal_store_dword v{5+u}, v{44+u}, s[18:19]{OSC}")
    for u in us[3:]: E(f"v_pk_add_f32 v[10:11], v[10:11], v[{28+2*u}:{29+2*u}]")
E("s_cmp_ge_u32 s3, 4\ns_cbranch_scc1 L_e3")
epi([0, 1, 2, 3])
E("s_branch L_e4\nL_e3:")
epi([0, 1, 2])
E(f"""
L_e4:
    v_add_f32 v10, v10, v11
    v_cmp_class_f32 vcc, v10, v9
    v_mov_b32 v2, 0
    s_cmp_lg_u32 s{S_SAFE}, 0
    s_cbranch_scc1 L_fin
    {"s_branch" if OPT["nosafe"] else "s_cbranch_vccz"} L_e5
    ds_write_b32 v2, v9 offset:{L_FLAG}
    s_waitcnt lgkmcnt(0)
L_e5:
    s_barrier                               ; B6
    ds_read_b32 v2, v2 offset:{L_FLAG}
    s_waitcnt lgkmcnt(0)
    v_readfirstlane_b32 s30, v2
    s_cmp_lg_u32 s30, 0
    s_cbranch_scc1 L_gosafe
L_fin:
""")
if OPT["stamps"]:
    E("s_waitcnt vmcnt(0)"); STAMP(13); STAMP_OUT()
if OPT["probe"] >= 0:
    T_ = ST0 + 2*OPT["probe"]
    E(f"""
    s_cmp_lg_u32 s3, {OPT["pw"]}
    s_cbranch_scc1 L_end
    s_cmp_lg_u32 s2, {OPT["pg"] if OPT["pg"] >= 0 else "s2"}
    s_cbranch_scc1 L_end
    s_sub_u32 s30, s{T_}, s{ST0}
    s_lshl_b32 s30, s30, 2
    s_add_u32 s30, s30, 3000
    s_min_u32 s30, s30, 20000
L_spin:
    s_memrealtime s[28:29]
    s_waitcnt lgkmcnt(0)
    s_sub_u32 s28, s28, s{ST0}
    s_cmp_lt_u32 s28, s30
    s_cbranch_scc1 L_spin
    """)
E(f"""
L_end:
    s_endpgm
L_gosafe:
    s_mov_b32 s{S_SAFE}, 8
    s_setprio 0
    s_waitcnt vmcnt(0) lgkmcnt(0)
    s_barrier
    s_branch L_restart
""")
out += outofline
for r in retries: E(r)
E(f"""
L_safe:
    v_and_b32 v2, 15, v1
    v_lshlrev_b32 v3, 3, v2
    v_add_u32 v3, {L_C}, v3
""")
for k in range(4):
    for s in range(4):
        E(f"ds_read_u16 v{80+4*k+s}, v3 offset:{128*k + 2*s}")
E("s_waitcnt lgkmcnt(0)")
for i in range(16):
    E(f"v_lshlrev_b32 v{80+i}, 16, v{80+i}\nv_mul_f32 v{80+i}, s40, v{80+i}")
E(f"""
    v_lshrrev_b32 v24, 4, v1
    v_mul_u32_u24 v24, 3, v24               ; 3*quarter
    s_movk_i32 s33, {NSTR}
    v_add_u32 v25, {L_NODE}, v{LN8}
    s_mov_b32 s34, s3
    s_mov_b32 s35, {POLL_MAX}
L_scell:
    s_lshl_b32 s30, s34, 10
    s_lshl_b32 s31, s{S_BUCK}, 3
    s_add_u32 s30, s30, s31
    s_add_u32 s30, s30, {WS_ROW}
    v_mov_b32 v26, s30
    global_load_dword v32, v26, s[20:21] sc1
    s_mul_i32 s30, s34, {SORTB//4}
    s_add_u32 s30, s30, {WS_REC//4}
    s_waitcnt vmcnt(0)
    v_bfe_u32 v28, v32, 12, 12              ; 3*count
    v_and_b32 v27, 0xfff, v32
    v_add_u32 v27, s30, v27
L_sver:
    v_mov_b32 v29, v1
    v_mov_b32 v31, 0
L_sv1:
    v_cmp_ge_u32 vcc, v28, v29
    s_and_saveexec_b64 s[48:49], vcc
    s_cbranch_execz L_sv2
    v_add_lshl_u32 v30, v27, v29, 2
    global_load_dword v32, v30, s[20:21] sc1
    s_waitcnt vmcnt(0)
    v_add_u32 v31, v31, v32
    s_mov_b64 exec, s[48:49]
    v_add_u32 v29, 64, v29
    s_branch L_sv1
L_sv2:
    s_mov_b64 exec, s[48:49]
""")
scan(31)
E(f"""
    s_nop 0
    v_readlane_b32 s30, v31, 63
    s_cmp_eq_u32 s30, s{S_TAG+1}
    s_cbranch_scc1 L_sok
    s_sub_u32 s35, s35, 1
    s_cbranch_scc0 L_sver
    s_branch L_mdone
L_sok:
    v_mov_b32 v29, v24
L_srec:
    v_cmp_gt_u32 vcc, v28, v29
    s_and_saveexec_b64 s[48:49], vcc
    s_cbranch_execz L_snext
    v_add_lshl_u32 v30, v27, v29, 2
    global_load_dwordx3 v[32:34], v30, s[20:21] offset:4 sc1
    s_waitcnt vmcnt(0)
    v_and_b32 v30, 0x3fff00, v32
    v_add_u32 v30, v30, v{LN16}
    buffer_load_dwordx4 v[36:39], v30, s[36:39], 0 offen sc1
    v_lshrrev_b32 v31, 24, v32
    v_mad_u32_u24 v31, v31, s33, v25
    ds_read_b64 v[40:41], v31 offset:512
    v_lshlrev_b32 v44, 16, v33
    v_and_b32 v45, 0xffff0000, v33
    v_lshlrev_b32 v46, 16, v34
    v_and_b32 v47, 0xffff0000, v34
    s_waitcnt vmcnt(0) lgkmcnt(0)
    v_lshlrev_b32 v48, 16, v40
    v_and_b32 v49, 0xffff0000, v40
    v_lshlrev_b32 v50, 16, v41
    v_and_b32 v51, 0xffff0000, v41
""")
for s in range(4):
    E(f"v_lshlrev_b32 v52, 16, v{36+s}\nv_add_f32 v{48+s}, v{48+s}, v52")
    for k in range(4):
        E(f"v_fmac_f32 v{48+s}, v{44+k}, v{80+4*k+s}")
for s in range(4): E(f"v_exp_f32 v{48+s}, v{48+s}")
E("s_nop 0")
for s in range(4): E(f"v_add_f32 v{48+s}, 1.0, v{48+s}")
for s in range(4): E(f"v_rcp_f32 v{48+s}, v{48+s}")
E("s_nop 0")
for s in range(4): E(f"v_mul_f32 v{48+s}, v{48+s}, v{36+s}")
for s in range(4): E(f"v_cvt_f64_f32 v[{54+2*s}:{55+2*s}], v{48+s}")
for s in range(4): E(f"ds_add_f64 v31, v[{54+2*s}:{55+2*s}] offset:{128*s}")
E(f"""
    s_mov_b64 exec, s[48:49]
    v_add_u32 v29, 12, v29
    s_branch L_srec
L_snext:
    s_mov_b64 exec, s[48:49]
    s_add_u32 s34, s34, {NW}
    s_cmp_lt_u32 s34, {NCHUNK}
    s_cbranch_scc1 L_scell
    s_branch L_mdone
L_codeend:
.section .rodata,"a"
.p2align 6
.amdhsa_kernel {NAME}
.amdhsa_next_free_vgpr 168
.amdhsa_next_free_sgpr 102
.amdhsa_accum_offset 168
.amdhsa_group_segment_fixed_size 0
.amdhsa_kernarg_size 80
.amdhsa_user_sgpr_count 2
.amdhsa_user_sgpr_kernarg_segment_ptr 1
.amdhsa_system_sgpr_workgroup_id_x 1
.end_amdhsa_kernel
""")
if OPT["drop"]:
    i0 = out.index("L_L0:"); i1 = out.index("L_mdone:")
    pats = {1: ("smfmac",), 2: ("mfma",), 3: ("32x32x8",), 4: ("smfmac",), 5: ("v_exp",)}[OPT["drop"]]
    repl = {4: "    s_nop 2", 5: "    s_nop 1"}.get(OPT["drop"])
    mid = []
    for l in out[i0:i1]:
        if any(x in l for x in pats):
            if repl: mid.append(repl)
        else: mid.append(l)
    if OPT["drop"] == 3: mid = [l.replace("v[88:103] cbsz", "0 cbsz").replace("v[72:87] cbsz", "0 cbsz") for l in mid]
    out = out[:i0] + mid + out[i1:]
if OPT["nochain"]:
    i0 = out.index("L_L0:"); i1 = out.index("L_mdone:")
    out = out[:i0] + [l for l in out[i0:i1] if not any(x in l for x in ("v_exp", "v_pk_", "mfma", "v_rcp", "v_cvt"))] + out[i1:]
open(sys.argv[1], "w").write("\n".join(out) + "\n")
```

```python
from mblib import *
from cdna_launch import _hip, _check
ON_GPU = os.path.exists('/dev/kfd')
A1, A2, IDX, LN16, ASEL, CW, EA, XA, OFS, T, N, P, LPT = 4, 8, 12, 14, 16, 18, 30, 32, 36, 44, 52, 56, 22
D0, D1, G = 64, 80, 96
def pk(Gc, q):
    t = T + 4*(q & 1); h = Gc + 4*q; r = []
    for p in range(2): r.append(f"v_pk_fma_f32 v[{N+2*p}:{N+2*p+1}], v[{N+2*p}:{N+2*p+1}], v[{t+2*p}:{t+2*p+1}], v[{N+2*p}:{N+2*p+1}]")
    for p in range(2): r.append(f"v_pk_fma_f32 v[{N+2*p}:{N+2*p+1}], v[{h+2*p}:{h+2*p+1}], v[{P+2*p}:{P+2*p+1}], v[{N+2*p}:{N+2*p+1}]")
    for p in range(2): r.append(f"v_pk_fma_f32 v[{P+2*p}:{P+2*p+1}], v[{P+2*p}:{P+2*p+1}], v[{t+2*p}:{t+2*p+1}], v[{P+2*p}:{P+2*p+1}]")
    return r
def ex(Dc, q): return [f"v_exp_f32 v{T+4*(q&1)+s}, v{Dc+4*s+q}" for s in range(4)]
def weave(m, e):
    o = []
    for i, x in enumerate(m): o.append(x); o += e.get(i, [])
    return o
def phase(u, salu):
    Dc, Dn = ((D0, D1), (D1, D0))[u]; gc = G + 16*u; gn = G + 16*(1-u)
    S = lambda n: ["s_bitcmp1_b32 s40, 0", "s_cbranch_scc1 L_x"]*n if salu else []
    o = [f"v_mfma_f32_32x32x8_bf16 v[{Dn}:{Dn+15}], v[{ASEL}:{ASEL+1}], v[{XA}:{XA+1}], 0"] + ex(Dc,0)
    o += [f"v_mfma_f32_16x16x4_4b_bf16 v[{Dn}:{Dn+15}], v[{EA}:{EA+1}], v[{CW}:{CW+1}], v[{Dn}:{Dn+15}] cbsz:2 abid:{u}"] + ex(Dc,1) + (S(1) or ["s_nop 0"])
    o += weave(pk(gc,0)+pk(gc,1), {0:["s_waitcnt lgkmcnt(0)"], 1:[f"ds_read_b128 v[{OFS}:{OFS+3}], v{LPT} offset:{64*u}"], 2:[f"ds_read_b64 v[{XA}:{XA+1}], v23"]})
    o += ["s_waitcnt vmcnt(2)", f"v_smfmac_f32_32x32x32_bf16 v[{Dn}:{Dn+15}], v[{A1}:{A1+3}], v[{gn}:{gn+7}], v{IDX}"] + ex(Dc,2)
    o += ["s_waitcnt vmcnt(0)", f"v_smfmac_f32_32x32x32_bf16 v[{Dn}:{Dn+15}], v[{A2}:{A2+3}], v[{gn+8}:{gn+15}], v{IDX}"] + ex(Dc,3)
    ld = lambda q: f"buffer_load_dwordx4 v[{gc+4*q}:{gc+4*q+3}], v{OFS+q}, s[8:11], 0 offen sc1"
    oa = lambda r: f"v_lshl_add_u64 v[{r}:{r+1}], v[{r}:{r+1}], 0, v[{LN16}:{LN16+1}]"
    e = {0:["s_waitcnt lgkmcnt(0)", oa(OFS)], 1:[ld(0)], 2:[oa(OFS+2)], 3:[ld(1)], 5:[ld(2)], 9:[ld(3)], 7:["s_sub_u32 s20, s20, 1"], 10:["s_lshr_b32 s41, s41, 1"] if salu else []}
    if u == 1: e[8] = [f"v_add_u32 v{LPT}, 128, v{LPT}"]
    o += weave(pk(gc,2)+pk(gc,3), e) + S(2)
    if u == 1: o += [f"v_mov_b64 v[{P}:{P+1}], v[24:25]", f"v_mov_b64 v[{P+2}:{P+3}], v[24:25]", f"v_mov_b64 v[{N}:{N+1}], v[24:25]", f"v_mov_b64 v[{N+2}:{N+3}], v[24:25]"]
    return o
def kern(tiles, salu, var=None):
    s = f"""
    s_load_dwordx2 s[4:5], s[0:1], 0
    s_load_dwordx2 s[8:9], s[0:1], 8
    s_load_dwordx2 s[16:17], s[0:1], 16
    v_lshrrev_b32 v1, 6, v0
    s_nop 1
    v_readfirstlane_b32 s3, v1
    v_and_b32 v1, 63, v0
    v_lshlrev_b32 v2, 6, v1
    s_waitcnt lgkmcnt(0)
    global_load_dwordx4 v[4:7], v2, s[16:17]
    global_load_dwordx4 v[8:11], v2, s[16:17] offset:16
    global_load_dwordx4 v[16:19], v2, s[16:17] offset:32
    global_load_dwordx4 v[30:33], v2, s[16:17] offset:48
    s_bfe_u32 s22, s2, 0x10002
    s_mul_i32 s22, s22, 2560000
    s_add_u32 s8, s8, s22
    s_addc_u32 s9, s9, 0
    s_mov_b32 s10, 2560000
    s_mov_b32 s11, 0x20000
    s_lshl_b32 s7, s2, 12
    v_add_u32 v3, s7, v0
    s_mov_b32 s21, 0x9E3779B1
    s_mov_b32 s24, 10000
    v_and_b32 v20, 63, v0
    v_lshlrev_b32 v20, 2, v20
    s_lshl_b32 s7, s3, 12
    v_add_u32 v20, s7, v20
"""
    for i in range(16):
        s += f"    v_mul_lo_u32 v3, v3, s21\n    v_add_u32 v3, 0x3c6ef35f, v3\n    v_mul_hi_u32 v21, v3, s24\n    v_lshlrev_b32 v21, 8, v21\n    ds_write_b32 v20, v21 offset:{256*i}\n"
    s += f"""
    v_mov_b32 v{IDX}, 0x8888
    v_and_b32 v2, 15, v1
    v_lshlrev_b32 v{LN16}, 4, v2
    v_lshlrev_b32 v{LN16+1}, 4, v2
    v_lshrrev_b32 v2, 4, v1
    s_lshl_b32 s7, s3, 12
    v_lshl_add_u32 v{LPT}, v2, 4, s7
    v_lshlrev_b32 v23, 3, v1
    v_add_u32 v23, 65536, v23
    v_mov_b32 v24, 1.0
    v_mov_b32 v25, 1.0
    s_mov_b32 s40, 0
    s_mov_b32 s41, 0
    s_lshr_b32 s42, s3, 2
    s_setprio 3
    s_mov_b32 s20, {tiles}
""" + "".join(f"    v_mov_b32 v{r}, 0.5\n" for r in list(range(44,64)) + list(range(64,128))) + """
    s_waitcnt vmcnt(0)
    ds_write_b64 v23, v[32:33]
    s_waitcnt lgkmcnt(0)
    s_barrier
    s_memrealtime s[64:65]
    s_memtime s[68:69]
    s_waitcnt lgkmcnt(0)
L_loop:
""" + "\n".join("    " + x for x in (var or (lambda l: l))(phase(0, salu) + phase(1, salu))) + """
    s_cmp_gt_i32 s20, 0
    s_cbranch_scc1 L_loop
L_x:
    s_waitcnt vmcnt(0)
    s_memrealtime s[66:67]
    s_memtime s[70:71]
    s_waitcnt lgkmcnt(0)
    s_lshl_b32 s20, s2, 4
    s_add_u32 s20, s20, s3
    s_lshl_b32 s20, s20, 4
    v_mov_b32 v3, s20
    v_mov_b32 v4, s64
    v_mov_b32 v5, s66
    v_mov_b32 v6, s68
    v_mov_b32 v7, s70
    global_store_dwordx4 v3, v[4:7], s[4:5]
    s_waitcnt vmcnt(0)
"""
    return s
if __name__ == "__main__":
    rng = np.random.default_rng(0)
    bf = lambda x: (np.float32(x).view(np.uint32) >> 16).astype(np.uint32)
    L = np.arange(64); m = L & 31; ha = L >> 5; s_ = m >> 3; q = m & 3; h = (m >> 2) & 1
    c = np.zeros((64,16), np.uint32)
    for l in range(64):
        one = 0x3f80 << (16*(s_[l]&1)); reg = 2*h[l] + (s_[l]>>1)
        if q[l] == ha[l]: c[l, reg] = one
        if q[l]-2 == ha[l]: c[l, 4+reg] = one
        if h[l] == ha[l]: c[l, 8+(s_[l]>>1)] = one
    r = lambda n, sc: bf(rng.normal(size=n)*sc) | (bf(rng.normal(size=n)*sc) << 16)
    for j in (10,11,12,13,14,15): c[:, j] = r(64, 0.15)
    if ON_GPU:
        out = DeviceBuffer(1<<20); cb = DeviceBuffer.from_numpy(c); tab = DeviceBuffer.from_numpy(r(1280000, 0.15)); big = DeviceBuffer(64<<20)
    drop = lambda *p: (lambda l: [x for x in l if not any(y in x for y in p)])
    def addmov(n): return lambda l: sum(([x] + ["v_mov_b32 v26, v27"]*n if "ds_read_b64" in x else [x] for x in l), [])
    def v3(l):
        o = []
        for x in l:
            if "32x32x8" in x:
                d = int(x.split("v[")[1].split(":")[0]); g = G + 16*(1 if d == D1 else 0); cur = (d, g)
                continue
            if "x4_4b" in x: continue
            if "smfmac" in x and f"v[{A1}:" in x:
                d, g = cur
                o += [f"s_waitcnt vmcnt(0)"] + [f"v_mfma_f32_4x4x4_16b_bf16 v[{d+4*q}:{d+4*q+3}], v[{ASEL}:{ASEL+1}], v[{g+4*q}:{g+4*q+1}], v[60:63]" for q in range(4)]
                continue
            if "smfmac" in x:
                d, g = cur
                o += [f"v_smfmac_f32_32x32x32_bf16 v[{d}:{d+15}], v[30:33], v[4:11], v{IDX}"] + [f"v_lshlrev_b64 v[{g+4*q}:{g+4*q+1}], 16, v[{g+4*q+2}:{g+4*q+3}]" for q in range(4)]
                continue
            o.append(x)
        return o
    def rot(l):
        return l + ["s_add_u32 s42, s42, 1", "s_cmp_eq_u32 s42, 3", "s_cselect_b32 s42, 0, s42", "s_setprio 0", "s_cmp_eq_u32 s42, 0", "s_cbranch_scc1 L_r", "s_setprio 1", "s_cmp_eq_u32 s42, 1", "s_cbranch_scc1 L_r", "s_setprio 2", "L_r:"]
    def lad(a_, b_, c_):
        return lambda l: l + ["s_setprio 0", f"s_cmp_le_u32 s20, {c_}", "s_cbranch_scc1 L_r", "s_setprio 1", f"s_cmp_le_u32 s20, {b_}", "s_cbranch_scc1 L_r", "s_setprio 2", f"s_cmp_le_u32 s20, {a_}", "s_cbranch_scc1 L_r", "s_setprio 3", "L_r:"]
    nl = drop("buffer_load")
    def o7(eterm, extra):
        def f(l):
            o = []; i = 0
            for x in l:
                if "32x32x8" in x:
                    d = int(x.split("v[")[1].split(":")[0]); g = G + 16*(1 if d == D1 else 0); pend = []
                    if eterm == "s": pend = []
                    if eterm == "d": pend = [f"v_mfma_f32_16x16x16_bf16 v[{d+4*q}:{d+4*q+3}], v[{A1+2*q}:{A1+2*q+1}], v[{CW}:{CW+1}], v[60:63]" for q in range(4)]; pend = sum(([p, None] for p in pend), [])
                    continue
                if "x4_4b" in x: continue
                if "smfmac" in x and f"v[{A1}:" in x:
                    c0 = lambda q: ("v[60:63]" if eterm == "s" else f"v[{d+4*q}:{d+4*q+3}]")
                    m = lambda q, p: f"v_mfma_f32_4x4x4_16b_bf16 v[{d+4*q}:{d+4*q+3}], v[{ASEL}:{ASEL+1}], v[{g+4*q+2*p}:{g+4*q+2*p+1}], " + (c0(q) if p == 0 else f"v[{d+4*q}:{d+4*q+3}]")
                    if eterm == "s": pend = [[m(0,0), m(1,0)], [m(0,1), m(1,1), "s_waitcnt vmcnt(0)"], [m(2,0), m(3,0)], [m(2,1), m(3,1)]]
                    else: pend = [m(0,0), m(1,0), m(0,1), m(1,1)]
                    continue
                if "smfmac" in x:
                    if eterm == "s": o.append(f"v_smfmac_f32_32x32x32_bf16 v[{d}:{d+15}], v[30:33], v[4:11], v{IDX}")
                    else: pend = [[m(2,0), m(3,0)], [m(2,1), m(3,1)]]
                    continue
                if "v_exp" in x and pend:
                    p = pend.pop(0)
                    if p: o += p if isinstance(p, list) else [p]
                o.append(x)
                if "ds_read_b64" in x: o += extra
            return o
        return f
    fl = lad(24,8,2)
    xs = ["v_mov_b32 v26, v27", "ds_read_b64 v[28:29], v23", "ds_read_b64 v[28:29], v23"]; xd = ["v_mov_b32 v26, v27", "ds_read_b128 v[40:43], v22", "ds_read_b128 v[40:43], v22"]
    def v3x(l):
        o = []
        for x in v3(l):
            o.append(x)
            if "ds_read_b64" in x: o += xs
        return o
    V = {"base": fl, "v3": lambda l: fl(v3(l)), "v3+": lambda l: fl(v3x(l)), "o7s+": lambda l: fl(o7("s", xs)(l)), "o7d+": lambda l: fl(o7("d", xd)(l)), "+4mov": lambda l: fl(addmov(4)(l)), "noa": lambda l: [x.replace("v[80:95] cbsz", "0 cbsz").replace("v[64:79] cbsz", "0 cbsz") for x in fl(drop("32x32x8")(l))],
         "nosm": lambda l: fl(drop("smfmac")(l)), "base2": fl}
    for name, var in V.items():
        waves, tiles, salu = 12, 56, 1
        co = build(kern(tiles, salu, var), "ml", 256, 64*waves, lds=100000, vgpr=128)
        if not ON_GPU: continue
        k = AsmKernel(co, "mb_kernel"); line = f"{name:10s}:"
        for it in range(4):
            sync(); _check(_hip.hipMemsetAsync(big._ptr, 1, (64<<20) if it == 3 else 1<<16, None))
            k.launch((256,1,1),(64*waves,1,1), pack_ptr_kernargs([out.ptr, tab.ptr, cb.ptr, out.ptr]), 100000); sync()
            o = out.to_numpy(np.uint32, (256,16,4)).astype(np.int64)[:, :waves]
            t = np.median(o[:,:,1].max(axis=1) - o[:,:,0].min(axis=1))/100; cy = np.median(((o[:,:,3]-o[:,:,2])&0xffffffff).max(axis=1))
            if it: line += f" | {t/(tiles*waves/4)*1000:.1f} ns/tile {cy/(tiles*waves/4):.0f} cyc"
        print(line, flush=True); k.unload()
```

```python
import sys, struct

OPT = dict(hb=1, b31=1, split=3, grp=0, allg=0, eag=1, stamps=0, force_safe=0, nogather=0, nosafe=0, prio=2, gsc1=1, osc=1, codepf=1, srcmask=0x3fff00, nrec=0, warm=0,
           nochain=0, probe=-1, pw=-1, pg=-1, gpf=32, early=0, cnt=0, pollmax=200000, pa=7, pb=3, pc=1, p0=3, p1=3, ptime=0,
           dist=2, ldearly=0, drop=0, wgate=0, gate=0, gate2=1, rst=0, rsc1=1, nover=0, p2gate=1, p2sleep=0, hold=0, slate=2, lpos=0, p1st=1, sig=2, gpace=4, gwin=-1, gp=0xf448c, ghold=0, nte=0, ewhen=2, wpf=1, gpe=40, oneb=0, p0e=0, aul=0, t0f=0, pre=0, prelate=0, ntx=0, rpace=-1, p2wait=0)
for a in sys.argv[2:]:
    k, v = a.split("=")
    assert k in OPT, k
    OPT[k] = int(v, 0)

out = []
def E(s=""):
    for line in s.split("\n"):
        line = line.strip()
        if not line:
            continue
        if line.endswith(":") or line.startswith(".") or line.startswith(";"):
            out.append(line)
        else:
            out.append("    " + line)

def f32(x):
    return "0x%08x" % struct.unpack("<I", struct.pack("<f", x))[0]

NAME = "standalone__edge_featured_mpnn_egc__graph_kernel"
LOG2E = 1.4426950408889634
NB = 80; NBUCK = 125; CHUNK = 1280; NCHUNK = 250
NW = 12
G_HALF = 10000 * 256
WS0 = 0
WS_REC = 0x500000
WS_ROW = 0x900000
WS_FL2 = 0x980000
WS_TAG = 0x9c0000
SORTB = CHUNK * 12 + 512
WS_STAMP = 0x1000000
L_CNT = 0; L_SOFF = 512
L_SCNT = 1024
L_CTR = 1536; L_RD = 1540; L_DONE2 = 1544; L_FLAG = 1548; L_NST = 1552; L_GST = 1556; L_GOK = 1560; L_AU = 1564
L_DUM = L_SOFF
L_LIST = 2048
L_LISTC = L_LIST + 4096
SSTR = 272
L_SRC = L_LIST + 8192
SRCB = 80 * SSTR + 32
L_EA = L_SRC + SRCB
L_EAEND = L_EA + 2 * SRCB
L_SORT = L_EA
L_WBV = (L_EAEND + 255) // 256 * 256; L_X = L_WBV + 32768; L_WAU = L_X + 20480; L_C = L_WAU + 32768
LDS = L_C + 1024
L_NODE = L_WBV; NSTR = 648
assert L_NODE + 80 * NSTR <= L_WAU and LDS <= 163840 and L_EA % 16 == 0
NULL_SRC = 0x7fffff00
POLL_MAX = OPT["pollmax"]
LDS_MAX = 20 * POLL_MAX
SC1 = " sc1"
NTE = " nt" if OPT["nte"] else ""
NTX = " nt" if OPT["ntx"] else ""

S_HALF, S_BUCK, S_P = 22, 23, 24
S_SAFE, S_TAG = 25, 26
S_R, S_M, S_IT = 70, 71, 72
S_TAGRAW = 47
ST0 = 74

def ESTAMP(i):
    if OPT["early"] == 1 or (OPT["early"] and i == 0): E(f"s_memrealtime s[{ST0+2*i}:{ST0+2*i+1}]")
def FSTAMP(i):
    if OPT["early"] == 2: E(f"s_memrealtime s[{ST0+2*i}:{ST0+2*i+1}]\ns_waitcnt lgkmcnt(0)")
def STAMP(i):
    if OPT["stamps"] == 2:
        if i == 0: E(f"s_memrealtime s[{ST0}:{ST0+1}]")
        if i == 13: E(f"s_memrealtime s[{ST0+26}:{ST0+27}]\ns_waitcnt lgkmcnt(0)")
        return
    if OPT["early"] and 1 <= i <= 7: return
    if OPT["early"] and i == 0: return ESTAMP(0)
    if OPT["stamps"] or (OPT["probe"] >= 0 and i == OPT["probe"]):
        E(f"s_memrealtime s[{ST0+2*i}:{ST0+2*i+1}]\ns_waitcnt lgkmcnt(0)")
    elif OPT["probe"] >= 0 and i == 0:
        E(f"s_memrealtime s[{ST0}:{ST0+1}]")
NSTAMP = 14
def STAMP_OUT():
    if OPT["stamps"]:
        E(f"""
        s_lshl_b32 s30, s2, 4
        s_add_u32 s30, s30, s3
        s_lshl_b32 s30, s30, 6
        s_add_u32 s30, s30, {WS_STAMP - 0x100000}
        s_load_dwordx2 s[20:21], s[0:1], 72
        s_waitcnt lgkmcnt(0)
        s_mov_b64 exec, -1
        v_mov_b32 v3, s30""")
        for i in (range(NSTAMP) if OPT["stamps"] == 1 else (0, 8, 13)):
            E(f"v_mov_b32 v2, s{ST0+2*i}\nglobal_store_dword v3, v2, s[20:21] offset:{4*i}")
        E("s_waitcnt vmcnt(0)")

A1, A2, IDX, EAC, LN16, ASEL, CW, LN8 = 4, 8, 12, 13, 14, 16, 18, 20
LP, WS4, WN2, EA, XA, WE, OFS, AG, T, N, P, F = 22, 24, 28, 30, 32, 34, 36, 40, 44, 52, 56, 60
D0, D1, G = 72, 88, 104

def finish_tag():
    E(f"""
    s_mul_i32 s{S_TAG+1}, s{S_TAGRAW}, 0x85ebca6b
    s_mul_i32 s{S_TAG}, s{S_TAGRAW}, 0x9e3779b1
    s_add_u32 s{S_TAG+1}, s{S_TAG+1}, 0x5bd1e995
    s_add_u32 s{S_TAG}, s{S_TAG}, 0x7f4a7c15
    """)
def get_tag(lab, q):
    E(f"""
    s_cmp_lg_u32 s{S_SAFE}, 0
    s_cbranch_scc1 L_tag_{lab}
    v_mov_b32 v2, 0
    s_mov_b32 s31, {LDS_MAX}
L_tg_{lab}:
    ds_read_b128 v[{q}:{q+3}], v2 offset:{L_SCNT + 124*4}
    s_sub_u32 s31, s31, 1
    s_cbranch_scc1 L_tag_{lab}
    s_waitcnt lgkmcnt(0)
    v_readfirstlane_b32 s30, v{q+3}
    v_readfirstlane_b32 s{S_TAGRAW}, v{q+1}
    s_cmp_lg_u32 s30, 4
    s_cbranch_scc1 L_tg_{lab}
    """)
    finish_tag()
    E(f"L_tag_{lab}:")

def lds_wait(addr, mask, val, tag, sleep=0, ne=False):
    E(f"""
    v_mov_b32 v2, 0
    s_mov_b32 s31, {LDS_MAX}
L_w_{tag}:
    {f"s_sleep {sleep}" if sleep else ""}
    ds_read_b32 v3, v2 offset:{addr}
    s_sub_u32 s31, s31, 1
    s_cbranch_scc1 L_wd_{tag}
    s_waitcnt lgkmcnt(0)
    v_readfirstlane_b32 s30, v3
    s_and_b32 s30, s30, {mask}
    s_cmp_lg_u32 s30, {val}
    s_cbranch_scc{0 if ne else 1} L_w_{tag}
L_wd_{tag}:
    """)
SCAN = ("row_shr:1 row_mask:0xf bank_mask:0xf bound_ctrl:0", "row_shr:2 row_mask:0xf bank_mask:0xf bound_ctrl:0",
        "row_shr:4 row_mask:0xf bank_mask:0xf bound_ctrl:0", "row_shr:8 row_mask:0xf bank_mask:0xf bound_ctrl:0",
        "row_bcast:15 row_mask:0xa bank_mask:0xf", "row_bcast:31 row_mask:0xc bank_mask:0xf")
def scan(r):
    for m in SCAN:
        E(f"s_nop 1\nv_add_u32_dpp v{r}, v{r}, v{r} {m}")

def main_consts(sm=48):
    E(f"""
    v_and_b32 v2, 15, v1                    ; n'
    v_lshrrev_b32 v3, 4, v1
    v_lshl_add_u32 v3, v2, 2, v3
    v_lshlrev_b32 v3, 1, v3
    v_add_u32 v3, {L_C}, v3
    ds_read_u16 v64, v3                     ; C[0..3][feature 4n'+s]
    ds_read_u16 v65, v3 offset:128
    ds_read_u16 v66, v3 offset:256
    ds_read_u16 v67, v3 offset:384
    v_and_b32 v63, 3, v1                    ; q
    v_lshlrev_b32 v{LN8}, 3, v2
    v_lshlrev_b32 v{LN8+1}, 3, v2
    v_lshlrev_b32 v{LN16}, 4, v2
    v_lshlrev_b32 v{LN16+1}, 4, v2
    v_mov_b32 v{IDX}, 0x8888
    v_bfe_u32 v60, v1, 3, 2                 ; s = (l&31)>>3
    v_bfe_u32 v61, v1, 2, 1                 ; h = (l>>2)&1
    v_lshrrev_b32 v62, 5, v1                ; ha
    v_and_b32 v2, 1, v60
    v_lshlrev_b32 v2, 4, v2
    v_lshlrev_b32 v2, v2, s46
    v_lshrrev_b32 v60, 1, v60               ; s>>1
    v_lshl_add_u32 v3, v61, 1, v60
    v_sub_u32 v63, v63, v62                 ; q - ha : 0 -> A1, 2 -> A2
    v_lshl_add_u32 v3, v63, 1, v3
    v_and_b32 v63, 1, v63
    v_lshl_or_b32 v3, v63, 4, v3
    v_xor_b32 v61, v61, v62
    v_lshl_or_b32 v60, v61, 4, v60
    """)
    mk = [f"s[{sm}:{sm+1}]", f"s[{sm+2}:{sm+3}]", f"s[{sm+4}:{sm+5}]", "vcc"]
    for i in range(8):
        E(f"v_cmp_eq_u32 {mk[i%4]}, {i}, v3")
        if i % 4 == 3:
            for j in range(i-3, i+1):
                E(f"v_cndmask_b32 v{A1+j}, 0, v2, {mk[j%4]}")
    E(f"""
    v_cmp_eq_u32 {mk[0]}, 0, v60
    v_cmp_eq_u32 {mk[1]}, 1, v60
    v_and_b32 v63, 3, v1
    v_lshlrev_b32 v61, 3, v63
    v_cndmask_b32 v{ASEL}, 0, v2, {mk[0]}
    v_cndmask_b32 v{ASEL+1}, 0, v2, {mk[1]}
    v_add_u32 v{EAC}, {L_EA - 2*L_SRC}, v61
    s_lshl_b32 s30, s3, 9
    s_sub_u32 s31, s30, 4096
    s_max_i32 s31, s31, 0
    s_add_u32 s30, s30, s31
    s_add_u32 s30, s30, {L_LIST}
    v_lshrrev_b32 v2, 4, v1
    v_lshl_add_u32 v{LP}, v2, 4, s30
    v_bfe_u32 v3, v1, 2, 2
    v_lshl_add_u32 v{LP+1}, v3, 4, s30
    v_lshl_add_u32 v{LP+1}, v2, 2, v{LP+1}
    s_waitcnt lgkmcnt(0)
    v_lshlrev_b32 v60, 16, v64
    v_lshlrev_b32 v61, 16, v65
    v_lshlrev_b32 v62, 16, v66
    v_lshlrev_b32 v63, 16, v67
    v_mul_f32 v60, s40, v60
    v_mul_f32 v61, s40, v61
    v_mul_f32 v62, s40, v62
    v_mul_f32 v63, s40, v63
    v_cvt_pk_bf16_f32 v{CW}, v60, v61
    v_cvt_pk_bf16_f32 v{CW+1}, v62, v63
    """)

def gload(g, o):
    return f"buffer_load_dwordx4 v[{g}:{g+3}], v{o}, s[36:39], 0 offen" + (SC1 if OPT["gsc1"] else "")
def oadd(o):
    return f"v_lshl_add_u64 v[{o}:{o+1}], v[{o}:{o+1}], 0, v[{LN16}:{LN16+1}]"

def pk_steps(Gc, q, first):
    t = T + 4*(q & 1); h = Gc + 4*q
    if first and q == 0:
        return [f"v_pk_add_f32 v[{P+2*p}:{P+2*p+1}], v[{t+2*p}:{t+2*p+1}], 1.0 op_sel_hi:[1,0]" for p in range(2)]
    r = []
    for p in range(2):
        n = f"v[{Gc+2*p}:{Gc+2*p+1}]" if (first and q == 1) else f"v[{N+2*p}:{N+2*p+1}]"
        r.append(f"v_pk_fma_f32 v[{N+2*p}:{N+2*p+1}], {n}, v[{t+2*p}:{t+2*p+1}], {n}")
    for p in range(2):
        r.append(f"v_pk_fma_f32 v[{N+2*p}:{N+2*p+1}], v[{h+2*p}:{h+2*p+1}], v[{P+2*p}:{P+2*p+1}], v[{N+2*p}:{N+2*p+1}]")
    for p in range(2):
        r.append(f"v_pk_fma_f32 v[{P+2*p}:{P+2*p+1}], v[{P+2*p}:{P+2*p+1}], v[{t+2*p}:{t+2*p+1}], v[{P+2*p}:{P+2*p+1}]")
    return r
def exps(Dc, q):
    t = T + 4*(q & 1)
    return [f"v_exp_f32 v{t+s}, v{Dc+4*s+q}" for s in range(4)]
def weave(main, extra):
    for i, x in enumerate(main):
        E(x)
        for y in extra.get(i, []):
            E(y)
def m_a(Dn): return f"v_mfma_f32_32x32x8_bf16 v[{Dn}:{Dn+15}], v[{ASEL}:{ASEL+1}], v[{XA}:{XA+1}], 0"
def m_e(Dn, abid): return f"v_mfma_f32_16x16x4_4b_bf16 v[{Dn}:{Dn+15}], v[{EA}:{EA+1}], v[{CW}:{CW+1}], v[{Dn}:{Dn+15}] cbsz:2 abid:{abid}"
def m_s(Dn, A, g): return f"v_smfmac_f32_32x32x32_bf16 v[{Dn}:{Dn+15}], v[{A}:{A+3}], v[{g}:{g+7}], v{IDX}"

outofline = []
def emit_to(lst, fn):
    global out
    keep = out; out = []
    fn(); lst += out; out = keep
DIST = OPT["dist"]; EARLY = OPT["ldearly"]
assert not (EARLY and DIST == 4)
def phase(u, loads):
    tag = f"{'L' if loads else 'T'}{u}"
    Dc, Dn = ((D0, D1), (D1, D0))[u & 1]
    gc = G + 16*u; gn = G + 16*((u+1) & 3); gl = G + 16*((u+DIST) & 3)
    ld = loads and not OPT["nogather"]
    kw = (u + DIST + EARLY) & 3
    wsgrp = 128 * ((3 - kw + u + DIST + EARLY) // 4 + 1) if kw == 3 else None
    def addloads(ex, pos):
        if loads:
            ex.setdefault(0, []).append(oadd(OFS)); ex.setdefault(2, []).append(oadd(OFS+2))
        if ld:
            for q in range(4): ex.setdefault(pos[q], []).append(gload(gl+4*q, OFS+q))
    E(f"L_{tag}:")
    SL = OPT["slate"]
    if not SL: E(f"s_waitcnt vmcnt({4*(DIST-2)})")
    E(m_a(Dn))
    for x in exps(Dc, 0): E(x)
    E(m_e(Dn, (u+1) & 3) if SL else m_s(Dn, A1, gn))
    for x in exps(Dc, 1): E(x)
    ex = {0: ["s_waitcnt lgkmcnt(0)"], 2: [f"ds_read_b64 v[{XA}:{XA+1}], v{AG + ((u+2) & 3)} offset:512"]}
    if u % 2 == 0:
        p = AG + ((u+2) & 3)
        ex[0].append(f"v_lshl_add_u64 v[{p}:{p+1}], v[{WN2}:{WN2+1}], 0, v[{LN8}:{LN8+1}]")
    if EARLY: addloads(ex, (1, 3, 5, 6))
    elif loads: ex[1] = [f"ds_read_b128 v[{OFS}:{OFS+3}], v{WS4+kw}"]
    if u == 2:
        ex.setdefault(4, []).append(f"v_lshl_add_u32 v{WE}, v{WE}, 1, v{EAC}")
        if SL: ex.setdefault(7, []).append(f"ds_read_b64 v[{EA}:{EA+1}], v{WE}")
    E(f"s_bitcmp1_b32 s{S_M}, 0\ns_cbranch_scc1 L_{tag}f")
    weave(pk_steps(gc, 0, False) + pk_steps(gc, 1, False), ex)
    E(f"L_{tag}r:")
    def first():
        E(f"L_{tag}f:")
        weave(pk_steps(gc, 0, True) + pk_steps(gc, 1, True), ex)
        E(f"s_branch L_{tag}r")
    emit_to(outofline, first)
    if SL:
        if OPT["ptime"]: E(f"s_memrealtime s[28:29]\ns_mov_b32 m0, s{S_R}")
        E(f"s_waitcnt vmcnt({4*(DIST-2) + (4 if (EARLY and loads) else 0) + (2 if SL == 2 else 0)})")
        E(m_s(Dn, A1, gn))
    else:
        E(m_e(Dn, (u+1) & 3))
    for x in exps(Dc, 2): E(x)
    if SL == 2: E(f"s_waitcnt vmcnt({4*(DIST-2) + (4 if (EARLY and loads) else 0)})")
    if OPT["ptime"]: E(f"s_memrealtime s[30:31]")
    E(m_s(Dn, A2, gn+8))
    for x in exps(Dc, 3): E(x)
    ex = {0: ["s_waitcnt lgkmcnt(0)"], 4: [], 6: [], 7: [f"s_sub_u32 s{S_R}, s{S_R}, 1"], 10: [f"s_lshr_b32 s{S_M}, s{S_M}, 1"], 11: [f"s_bitcmp1_b32 s{S_M}, 0"]}
    if OPT["ptime"]: ex[0] += ["v_writelane_b32 v70, s28, m0", "v_writelane_b32 v71, s30, m0"]
    if not EARLY: addloads(ex, (1, 3, 5, 9) if DIST == 4 else ((1, 3, 5, 7), (1, 2, 3, 4), (4, 6, 8, 10), (2, 5, 8, 10))[OPT['lpos']])
    elif loads: ex[1] = [f"ds_read_b128 v[{OFS}:{OFS+3}], v{WS4+kw}"]
    if u == 1:
        ex[4].append(f"ds_read_b64 v[{WN2}:{WN2+1}], v{LP} offset:{128+64}")
        ex[6].append(f"ds_read_b32 v{WE}, v{LP+1} offset:128")
    if u == 2 and not SL:
        ex[4].append(f"ds_read_b64 v[{EA}:{EA+1}], v{WE}")
    if u == 3:
        ex[4].append(f"ds_read_b64 v[{WN2}:{WN2+1}], v{LP} offset:{128+64+8}")
        ex.setdefault(8, []).append(f"v_lshl_add_u64 v[{LP}:{LP+1}], v[{LP}:{LP+1}], 0, s[44:45]")
    if wsgrp and loads: ex[6].append(f"ds_read_b128 v[{WS4}:{WS4+3}], v{LP} offset:{wsgrp}")
    weave(pk_steps(gc, 2, False) + pk_steps(gc, 3, False), ex)
    E(f"s_cbranch_scc1 L_{tag}z\nL_{tag}y:")
    def fin():
        E(f"""
L_{tag}z:
        v_rcp_f32 v{P}, v{P}
        v_rcp_f32 v{P+1}, v{P+1}
        v_rcp_f32 v{P+2}, v{P+2}
        v_rcp_f32 v{P+3}, v{P+3}
        v_pk_mul_f32 v[{N}:{N+1}], v[{N}:{N+1}], v[{P}:{P+1}]
        v_pk_mul_f32 v[{N+2}:{N+3}], v[{N+2}:{N+3}], v[{P+2}:{P+3}]
        """)
        for s_ in range(4):
            E(f"v_cvt_f64_f32 v[{F+2*s_}:{F+2*s_+1}], v{N+s_}")
            if s_: E(f"ds_add_f64 v{AG+u}, v[{F+2*s_-2}:{F+2*s_-1}] offset:{128*(s_-1)}")
        E(f"ds_add_f64 v{AG+u}, v[{F+6}:{F+7}] offset:384")
        E(f"s_branch L_{tag}y")
    emit_to(outofline, fin)
    if OPT["prio"] == 2:
        E(f"s_bitcmp1_b32 s{S_IT}, s{S_R}\ns_cbranch_scc1 L_{tag}q\nL_{tag}p:")
        def pr():
            E(f"""
L_{tag}q:
            s_setprio 0
            s_cmp_le_u32 s{S_R}, {OPT["pc"]}
            s_cbranch_scc1 L_{tag}p
            s_setprio 1
            s_cmp_le_u32 s{S_R}, {OPT["pb"]}
            s_cbranch_scc1 L_{tag}p
            s_setprio 2
            s_branch L_{tag}p
            """)
        emit_to(outofline, pr)
    if u == 3 and OPT["prio"] == 1:
        E(f"""
        s_add_u32 s{S_IT}, s{S_IT}, 1
        s_setprio 0
        s_cmp_gt_u32 s{S_IT}, 2
        s_cbranch_scc1 L_{tag}p
        s_setprio 1
        s_cmp_eq_u32 s{S_IT}, 2
        s_cbranch_scc1 L_{tag}p
        s_setprio 2
L_{tag}p:
        """)
    if loads:
        E(f"s_cmp_le_u32 s{S_R}, {DIST}")
        if u < 3: E(f"s_cbranch_scc1 L_T{u+1}")
        else: E("s_cbranch_scc0 L_L0")
    else:
        E(f"s_waitcnt vmcnt(0)\ns_cmp_eq_u32 s{S_R}, 0")
        if u < 3: E("s_cbranch_scc1 L_mdone")
        else: E("s_cbranch_scc0 L_T0")

E(f"""
; @launch grid=(256,1,1) block=({64*NW},1,1) lds={LDS}
.amdgcn_target "amdgcn-amd-amdhsa--gfx950"
.text
.globl {NAME}
.p2align 8
.type {NAME},@function
{NAME}:
""")
if OPT["stamps"] == 1 and OPT["early"] != 1:
    for i in range(NSTAMP): E(f"s_mov_b64 s[{ST0+2*i}:{ST0+2*i+1}], 0")
STAMP(0)
E(f"""
    s_load_dwordx16 s[4:19], s[0:1], 0
    s_load_dwordx2 s[20:21], s[0:1], 72
""")
if OPT["codepf"]:
    E(f"""
    s_getpc_b64 s[28:29]
L_pc:
    v_lshlrev_b32 v3, 7, v0
    v_cmp_gt_u32 vcc, L_codeend-L_pc-64, v3
    s_cbranch_vccz L_nopf
    s_mov_b64 exec, vcc
    global_load_dword v164, v3, s[28:29]
    s_mov_b64 exec, -1
L_nopf:
    """)
E(f"""
    v_lshrrev_b32 v2, 6, v0
    v_and_b32 v1, 63, v0
    v_readfirstlane_b32 s3, v2
    {"s_bfe_u32 s%d, s2, 0x10002" % S_HALF if OPT["hb"] else "s_and_b32 s%d, s2, 1" % S_HALF}
    {"s_and_b32 s30, s2, 3" if OPT["hb"] else "s_bfe_u32 s30, s2, 0x20001"}
    {"s_mul_i32 s30, s30, 31" if OPT["b31"] else "s_lshl_b32 s30, s30, 5"}
    s_lshr_b32 s31, s2, 3
    s_add_u32 s{S_BUCK}, s30, s31
    {"s_cmp_eq_u32 s30, 93                    ; 31 buckets per XCD of a half, 32 on the last" if OPT["b31"] else "s_cmp_ge_u32 s2, 256"}
    {"s_subb_u32 s31, s31, 0" if OPT["b31"] else "s_cbranch_scc1 L_end"}
    {"s_cmp_ge_i32 s31, 31" if OPT["b31"] else "s_cmp_ge_u32 s%d, %d" % (S_BUCK, NBUCK)}
    s_cbranch_scc1 L_end
    s_lshl_b32 s{S_P}, s{S_BUCK}, 1
    s_add_u32 s{S_P}, s{S_P}, s{S_HALF}
    s_mov_b32 s{S_SAFE}, 0
L_restart:
    s_cmp_ge_u32 s3, 4
    s_cbranch_scc1 L_nosort
    v_mov_b32 v48, 0
    v_mov_b32 v49, 0
    v_mov_b32 v50, 0
    v_mov_b32 v51, 0
    v_lshlrev_b32 v10, 4, v1
    ds_write_b128 v10, v[48:51] offset:{L_SCNT}
    s_mul_i32 s30, s{S_P}, {CHUNK*4}
    v_lshl_add_u32 v3, v0, 4, s30
    s_add_u32 s30, s30, 4096
    v_lshl_add_u32 v18, v0, 2, s30
    v_lshlrev_b32 v10, 1, v3
    v_lshlrev_b32 v11, 1, v18
    v_mov_b32 v17, {WS_TAG}
    s_waitcnt lgkmcnt(0)
    global_load_dwordx4 v[4:7], v3, s[10:11]{NTE}
    global_load_dword v8, v18, s[10:11]{NTE}
    global_load_dword v43, v17, s[20:21]
""")
def preclear():
    E(f"""
    s_cmp_lg_u32 s{S_SAFE}, 0
    s_cbranch_scc1 L_nopre
    s_mul_i32 s30, s{S_HALF}, {G_HALF}
    s_mul_i32 s31, s{S_BUCK}, {NB*256}
    s_add_u32 s30, s30, s31
    s_add_u32 s30, s30, {4096*(5-OPT["pre"])}
    v_lshl_add_u32 v19, v0, 4, s30
    """)
    for i in range(OPT["pre"]):
        E("global_store_dwordx4 v19, v[48:51], s[20:21] sc1")
        if i + 1 < OPT["pre"]: E("v_add_u32 v19, 4096, v19")
    E("L_nopre:")
if OPT["pre"] and not OPT["prelate"]: preclear()
E(f"""
    {"" if OPT["oneb"] else "s_barrier"}
    s_barrier                               ; B0b
""")
if OPT["pre"] and OPT["prelate"]: preclear()
E(f"""
    s_branch L_sort
L_nosort:
    s_and_b32 s32, s3, 3                    ; tau
    s_lshr_b32 s33, s3, 3
    v_lshrrev_b32 v2, 4, v1                 ; g
    v_and_b32 v4, 15, v1
    s_lshl_b32 s30, s32, 2
    v_add_u32 v6, s30, v2                   ; row&15
    v_xor_b32 v7, v4, v6
    v_lshlrev_b32 v7, 4, v7
    v_lshl_add_u32 v7, v6, 8, v7
    s_mul_i32 s73, s{S_BUCK}, {NB*256}
    s_mul_i32 s31, s33, {3*4096}
    s_add_u32 s30, s73, s31
    v_add_u32 v7, s30, v7
    v_add_u32 v8, 0x1000, v7
    v_add_u32 v9, 0x2000, v7
    s_lshl_b32 s30, s32, 10
    s_add_u32 s31, s31, s30
    s_add_u32 m0, s31, {L_X}
    v_subrev_u32 v30, 256, v0               ; t = 0..511
    v_lshlrev_b32 v31, 4, v30
    v_mov_b32 v36, 0
    v_mov_b32 v37, 0
    v_mov_b32 v38, 0
    v_mov_b32 v39, 0
    v_add_u32 v40, {L_EA}, v31
    ds_write_b128 v40, v[36:39]
    ds_write_b128 v40, v[36:39] offset:8192
""")
if OPT["wpf"]:
    E(f"""
    s_lshr_b32 s30, s2, 3
    s_lshl_b32 s30, s30, 2
    v_add_u32 v3, s30, v1
    v_and_b32 v3, 127, v3
    s_lshl_b32 s30, s{S_HALF}, 7
    s_cmp_eq_u32 s3, 4
    s_cselect_b32 s31, 0x8000, 0
    s_add_u32 s30, s30, s31
    v_lshl_add_u32 v3, v3, 8, s30
    s_waitcnt lgkmcnt(0)
    s_cmp_lg_u32 s33, 0
    s_cbranch_scc1 L_nowpf
    s_cmp_eq_u32 s3, 5
    s_cselect_b32 s34, s14, s16
    s_cselect_b32 s35, s15, s17
    s_cmp_eq_u32 s3, 7
    s_cselect_b32 s34, s12, s34
    s_cselect_b32 s35, s13, s35
    s_mov_b64 exec, 0xffff
    global_load_dword v167, v3, s[34:35]
    s_mov_b64 exec, -1
L_nowpf:
    """)
    if OPT["wpf"] == 2:
        E(f"""
        s_cmp_lg_u32 s3, 8
        s_cbranch_scc1 L_notch
        s_mul_i32 s30, s{S_P}, {CHUNK*4}
        v_mov_b32 v3, s30
        v_lshlrev_b32 v5, 1, v3
        v_lshlrev_b32 v6, 21, v1
        s_mov_b64 exec, 1
        global_load_dword v167, v3, s[8:9]
        global_load_dword v166, v5, s[6:7]
        s_mov_b64 exec, 31
        global_load_dword v165, v6, s[20:21] sc1
        s_mov_b64 exec, 3
        global_load_dword v164, v6, s[18:19] sc1
        s_mov_b64 exec, -1
L_notch:
        """)
E(f"""
    s_waitcnt lgkmcnt(0)
    {"" if OPT["oneb"] else "s_barrier"}
""")
if not OPT["t0f"]: E(f"""
    global_load_lds_dwordx4 v7, s[4:5]{NTX}
    s_add_u32 m0, m0, 0x1000
    s_cmp_lg_u32 s33, 0
    global_load_lds_dwordx4 v8, s[4:5]{NTX}
    s_cbranch_scc1 L_x2
    s_add_u32 m0, m0, 0x1000
    s_nop 0
    global_load_lds_dwordx4 v9, s[4:5]{NTX}
L_x2:
    s_barrier
""")
else: E(f"""
    s_mov_b32 s29, m0
    s_cmp_lg_u32 s33, 0
    s_cbranch_scc1 L_x2
    global_load_lds_dwordx4 v7, s[4:5]
    s_add_u32 s29, s29, 0x1000
    v_mov_b32 v7, v8
    v_mov_b32 v8, v9
L_x2:
""")
E(f"""
    v_lshrrev_b32 v5, 3, v1
    v_and_b32 v3, 1, v2
    s_and_b32 s30, s3, 1
    s_lshl_b32 s30, s30, 1
    v_or_b32 v3, s30, v3                    ; sigma
    v_lshlrev_b32 v3, 1, v3
    v_and_b32 v20, 7, v1
    v_xor_b32 v3, v3, v20
    v_lshlrev_b32 v3, 4, v3
    v_lshl_add_u32 v10, v5, 8, v3
    s_sub_u32 s28, s3, 4
    s_lshl_b32 s30, s28, 11
    s_lshl_b32 s31, s{S_HALF}, 7
    s_add_u32 s30, s30, s31
    v_add_u32 v10, s30, v10
    v_add_u32 v11, 0x4000, v10
    s_lshl_b32 s28, s28, 10
    s_add_u32 s34, s16, {128*256}
    s_addc_u32 s35, s17, 0
    s_cmp_lg_u32 s3, 11
    s_cbranch_scc1 L_noc
    v_and_b32 v5, 3, v5
    v_lshlrev_b32 v20, 4, v20
    v_lshl_add_u32 v5, v5, 8, v20
    s_add_u32 s31, s31, {256*256}
    s_mov_b32 m0, {L_C}
    v_add_u32 v5, s31, v5
    global_load_lds_dwordx4 v5, s[16:17]
L_noc:
    s_add_u32 m0, s28, {L_WBV}
""")
for ti, base in enumerate((34, 14)):
    for n in range(2):
        E(f"s_nop 0\nglobal_load_lds_dwordx4 v{10+n}, s[{base}:{base+1}]")
        if not (ti == 1 and n == 1):
            E(f"s_add_u32 m0, m0, 0x2000")
if OPT["t0f"]:
    E(f"""
    s_mov_b32 m0, s29
    s_barrier                               ; B0b
    global_load_lds_dwordx4 v7, s[4:5]
    s_add_u32 m0, m0, 0x1000
    s_nop 0
    global_load_lds_dwordx4 v8, s[4:5]
    """)
if OPT["wgate"] or OPT["ewhen"] == 5:
    E(f"""
    v_mov_b32 v7, 0x1000000
    s_mov_b64 exec, 1
    ds_add_u32 v36, v7 offset:{L_CTR}
    s_mov_b64 exec, -1
    """)
STAMP(1)
E(f"""
    v_mov_b32 v32, {NULL_SRC}
    v_mov_b32 v33, v32
    v_mov_b32 v34, v32
    v_mov_b32 v35, v32
""")
def cover(lo, n): return list(range(lo, n - 8192, 8192)) + [n - 8192]
for o in cover(16384, L_EAEND - L_EA): E(f"ds_write_b128 v40, v[36:39] offset:{o}")
for o in cover(0, SRCB): E(f"ds_write_b128 v31, v[32:35] offset:{L_SRC + o}")
E(f"""
    v_and_b32 v32, 3, v30           ; quarter
    v_bfe_u32 v33, v30, 3, 3
    v_lshrrev_b32 v34, 5, v30
    s_and_b32 s30, s3, 3
    s_add_u32 s30, s30, 16
    s_cmp_ge_u32 s3, 8
    s_cselect_b32 s31, 7, 3
    s_cselect_b32 s29, 6, 12
    s_cselect_b64 vcc, -1, 0
    v_and_b32 v33, s31, v33
    v_mov_b32 v35, s30
    v_cndmask_b32 v34, v34, v35, vcc
    v_lshl_add_u32 v32, v34, 2, v32
    v_bfe_u32 v34, v30, 2, 1
    v_mul_u32_u24 v35, {NSTR - SSTR}, v34
    v_mul_u32_u24 v41, {L_NODE - L_SRC}, v34
    v_mul_u32_u24 v42, {L_SRC + 80*SSTR - L_DUM}, v34
    v_lshlrev_b32 v43, 4, v34
    v_add_u32 v35, {SSTR}, v35
    v_add_u32 v41, {L_SRC}, v41
    v_sub_u32 v42, {L_SRC + 80*SSTR}, v42
    v_sub_u32 v43, 16, v43
    v_lshlrev_b32 v33, 2, v33
    v_mad_u32_u24 v41, v32, v35, v41
    v_mad_u32_u24 v41, v33, v43, v41
    v_lshlrev_b32 v35, 5, v35
    v_mul_u32_u24 v34, 6, v43
    v_sub_u32 v35, v35, v34
    v_add_u32 v34, 2, v33
    v_cmp_gt_u32 s[48:49], 6, v33
    v_cmp_gt_u32 s[50:51], 6, v34
    v_cmp_gt_u32 s[52:53], s29, v33
    v_cmp_gt_u32 s[54:55], s29, v34
    v_cndmask_b32 v44, v35, 0, s[48:49]
    v_cndmask_b32 v46, v35, 0, s[50:51]
    v_add_u32 v44, v41, v44
    v_lshl_add_u32 v46, v43, 1, v46
    v_add_u32 v46, v41, v46
    v_add_u32 v45, v44, v43
    v_add_u32 v47, v46, v43
    v_cndmask_b32 v44, v42, v44, s[52:53]
    v_cndmask_b32 v45, v42, v45, s[52:53]
    v_cndmask_b32 v46, v42, v46, s[54:55]
    v_cndmask_b32 v47, v42, v47, s[54:55]
    ds_write_b128 v31, v[44:47] offset:{L_LIST}
    s_cmp_ge_u32 s3, 6
    s_cbranch_scc1 L_pf3
    v_mul_u32_u24 v42, {SSTR}, v30
    v_add_u32 v42, {L_SRC}, v42
    v_lshlrev_b32 v41, 2, v30
    ds_write_b32 v41, v42 offset:{L_CNT}
L_pf3:
    v_bfe_u32 v3, v1, 2, 2                  ; r
    v_lshl_add_u32 v5, v2, 3, v3            ; 8g + r
    v_lshrrev_b32 v3, 1, v3
    v_and_b32 v6, 1, v2
    v_lshl_or_b32 v3, v6, 1, v3             ; sigma
    v_xor_b32 v3, s32, v3
    v_lshlrev_b32 v3, 5, v3
    v_lshl_add_u32 v10, v5, 7, v3
    v_and_b32 v3, 3, v1
    v_lshl_add_u32 v10, v3, 3, v10
    s_mul_i32 s31, s33, {L_WAU - L_WBV}
    s_add_u32 s31, s31, {L_WBV}
    v_add_u32 v10, s31, v10
    v_xor_b32 v3, v2, v4
    v_lshlrev_b32 v3, 4, v3
    v_lshl_add_u32 v12, v4, 8, v3
    v_add_u32 v12, {L_X}, v12
    v_xor_b32 v13, 64, v12
    v_xor_b32 v14, 0x80, v12
    v_xor_b32 v15, 0xc0, v12
    s_mul_i32 s30, s{S_HALF}, {G_HALF}
    s_add_u32 s30, s30, s73
    s_lshl_b32 s31, s32, 6
    s_add_u32 s30, s30, s31
    v_lshlrev_b32 v11, 10, v2
    v_lshl_add_u32 v11, v4, 2, v11
    v_add_u32 v11, s30, v11
    s_lshl_b32 s31, s32, 5
    s_add_u32 s31, s31, {L_NODE}
    v_mul_u32_u24 v16, {NSTR}, v4
    v_lshl_add_u32 v16, v2, 3, v16
    v_add_u32 v16, s31, v16
    s_mov_b32 s40, {f32(-LOG2E)}
    s_mov_b32 s42, {f32(2.0**32)}
    s_mov_b32 s44, 0x07060100
    s_mov_b32 s45, 0x07060302
    s_mov_b32 s46, 0x3f80
    v_mov_b32 v17, {f32(2.0**-100)}
    v_mov_b32 v19, 1
    v_mov_b32 v18, 0
""")
def staged():
    get_tag("g", 160)
    E(f"""
    s_waitcnt vmcnt(0)
    s_mov_b64 exec, 1
    ds_add_u32 v18, v19 offset:{L_CTR}
    s_mov_b64 exec, -1
    """)
    STAMP(2)
    lds_wait(L_CTR, 0xff, 8, "g1")
if OPT["t0f"]:
    E(f"""
    s_waitcnt vmcnt(2)
    s_mov_b64 exec, 1
    ds_add_u32 v18, v19 offset:{L_AU}
    s_mov_b64 exec, -1
    s_or_b32 s30, s33, s{S_SAFE}
    s_cbranch_scc0 L_t0
    """)
staged()
STAMP(3)
NP = 8
RA = 72; RB = RA + 4*NP; RAD = RB + 4*NP
J3N, J12, J3N2, CELL, ROWA, FOUR, L0M, ACC, ENT, CAD = 156, 157, 158, 159, 160, 161, 162, 163, 164, 166
def rec_setup():
    E(f"""
    v_and_b32 v3, 15, v1                    ; j
    v_lshrrev_b32 v2, 4, v1
    v_lshl_add_u32 v{CELL}, v2, 3, v3
    s_lshl_b32 s30, s29, 5
    v_add_u32 v{CELL}, s30, v{CELL}
    s_lshl_b32 s30, s{S_BUCK}, 3
    s_add_u32 s30, s30, {WS_ROW}
    v_lshl_add_u32 v{ROWA}, v{CELL}, 10, s30
    v_cmp_gt_u32 s[66:67], {NP}, v3
    v_cmp_gt_u32 vcc, {NCHUNK}, v{CELL}
    v_mov_b32 v{ENT}, 0
    s_and_b64 s[66:67], s[66:67], vcc
    s_mov_b64 exec, s[66:67]
    global_load_dwordx2 v[{ENT}:{ENT+1}], v{ROWA}, s[20:21] sc1
    s_mov_b64 exec, -1
    v_mul_u32_u24 v{CELL}, {SORTB//4}, v{CELL}
    v_add_u32 v{CELL}, {WS_REC//4}, v{CELL}
    v_mul_u32_u24 v{J12}, 12, v3
    v_mul_u32_u24 v{J3N}, 3, v3
    v_not_b32 v{J3N}, v{J3N}
    v_subrev_u32 v{J3N2}, 48, v{J3N}
    v_subrev_u32 v{L0M}, 1, v3
    v_ashrrev_i32 v{L0M}, 31, v{L0M}
    v_mov_b32 v{FOUR}, 4
    """)
WF = 20; XF = 52; AC = 132
def wreads(ks):
    for t in range(2):
        for rd in range(2):
            r = WF + 16*t + 4*ks + 2*rd
            E(f"ds_read_b64_tr_b16 v[{r}:{r+1}], v10 offset:{t*16384 + ks*4096 + rd*512}")
def xread(rt, ks):
    r = XF + 16*rt + 4*ks
    return f"ds_read_b128 v[{r}:{r+3}], v{12+ks} offset:{rt*4096}"
def mf(rt, ks, transposed):
    for t in range(2):
        a = XF + 16*rt + 4*ks; w = WF + 16*t + 4*ks; d = AC + 8*(rt % 3) + 4*t
        c = "0" if ks == 0 else f"v[{d}:{d+3}]"
        if transposed: a, w = w, a
        E(f"v_mfma_f32_16x16x32_bf16 v[{d}:{d+3}], v[{a}:{a+3}], v[{w}:{w+3}], {c}")
def gemm(transposed, finish, before_first):
    for ks in range(3):
        E(xread(0, ks)); wreads(ks)
    E("s_waitcnt lgkmcnt(10)"); mf(0, 0, transposed)
    E(xread(0, 3)); wreads(3)
    E("s_waitcnt lgkmcnt(10)"); mf(0, 1, transposed)
    for ks in range(4): E(xread(1, ks))
    E("s_waitcnt lgkmcnt(9)"); mf(0, 2, transposed)
    for ks in range(4): E(xread(2, ks))
    E("s_waitcnt lgkmcnt(8)"); mf(0, 3, transposed)
    for ks in range(4): E(xread(3, ks))
    if OPT["p0e"]:
        E("s_nop 3"); finish(0)
    E("s_waitcnt lgkmcnt(8)")
    for ks in range(4):
        mf(1, ks, transposed); E(xread(4, ks))
    E(f"""
    s_mov_b64 exec, 1
    ds_add_u32 v18, v19 offset:{L_RD}
    s_mov_b64 exec, -1
    """)
    before_first()
    if not OPT["p0e"]: finish(0)
    E("s_waitcnt lgkmcnt(0)")
    for rt in range(2, 5):
        for ks in range(4): mf(rt, ks, transposed)
        finish(rt-1)
    finish(4)
def pack(rt):
    b = AC + 8*(rt % 3); h = b + 4
    for r in range(4): E(f"v_mul_f32 v{b+r}, s40, v{b+r}")
    for r in range(4): E(f"v_fma_f32 v{h+r}, v{h+r}, s42, v17")
    E(f"""
    v_cvt_pk_bf16_f32 v4, v{b}, v{b+1}
    v_cvt_pk_bf16_f32 v5, v{b+2}, v{b+3}
    v_xor_b32 v2, 0x80008000, v4
    v_xor_b32 v3, 0x80008000, v5
    v_sub_u32_sdwa v{h}, v{h}, sext(v2) dst_sel:DWORD dst_unused:UNUSED_PAD src0_sel:DWORD src1_sel:WORD_0
    v_sub_u32_sdwa v{h+1}, v{h+1}, sext(v2) dst_sel:DWORD dst_unused:UNUSED_PAD src0_sel:DWORD src1_sel:WORD_1
    v_sub_u32_sdwa v{h+2}, v{h+2}, sext(v3) dst_sel:DWORD dst_unused:UNUSED_PAD src0_sel:DWORD src1_sel:WORD_0
    v_sub_u32_sdwa v{h+3}, v{h+3}, sext(v3) dst_sel:DWORD dst_unused:UNUSED_PAD src0_sel:DWORD src1_sel:WORD_1
    """)
    w = (OPT["gp"] >> (4*(4-rt))) & 15 if OPT["gp"] else OPT["gpace"]
    if 0 <= w < 4*rt: E(f"s_waitcnt vmcnt({w})")
    if OPT["pre"] and rt == 5 - OPT["pre"]: lds_wait(L_SCNT + 126*4, 0xff, 4, "pre")
    if OPT["ghold"] == rt + 1:
        E("v_mov_b32 v6, v2\nv_mov_b32 v7, v3"); lds_wait(L_CTR, 0xff00, 0x400, "gh", sleep=1); E("v_mov_b32 v2, v6\nv_mov_b32 v3, v7")
    for r in range(4):
        E(f"v_perm_b32 v{h+r}, v{h+r}, v{4 + (r>>1)}, s{44 + (r&1)}")
        if OPT["gwin"] >= 0: E(f"s_waitcnt vmcnt({OPT['gwin']})")
        E(f"global_store_dword v11, v{h+r}, s[20:21] offset:{256*r} sc1")
    if rt < 4: E("v_add_u32 v11, 0x1000, v11")
def fin(rt):
    a = AC + 8*(rt % 3); u = a + 4
    for r in range(4): E(f"v_mul_f32 v{a+r}, s40, v{a+r}")
    for r in range(4): E(f"v_mul_f32 v{u+r}, s42, v{u+r}")
    E(f"""
    v_cvt_pk_bf16_f32 v{a}, v{a}, v{a+1}
    v_cvt_pk_bf16_f32 v{a+1}, v{a+2}, v{a+3}
    v_cvt_f64_f32 v[2:3], v{u}
    v_cvt_f64_f32 v[4:5], v{u+1}
    v_cvt_f64_f32 v[6:7], v{u+2}
    v_cvt_f64_f32 v[8:9], v{u+3}
    ds_write_b64 v16, v[{a}:{a+1}] offset:512
    ds_write2_b64 v16, v[2:3], v[4:5] offset0:0 offset1:16
    ds_write2_b64 v16, v[6:7], v[8:9] offset0:32 offset1:48
    """)
    if rt < 4: E(f"v_add_u32 v16, {16*NSTR}, v16")
E(f"""
    s_cmp_lg_u32 s33, 0
    s_cbranch_scc1 L_gemm2
    s_cmp_lg_u32 s{S_SAFE}, 0
    s_cbranch_scc1 L_nog1
    s_setprio 2
""")
if OPT["t0f"]:
    E("L_t0:\ns_setprio 2")
    lds_wait(L_AU, 0xff, 8, "t0")
    STAMP(3)
    for ks in range(3):
        E(xread(0, ks)); wreads(ks)
    E("s_waitcnt lgkmcnt(10)"); mf(0, 0, False)
    E(xread(0, 3)); wreads(3)
    for ks in range(1, 4):
        E(f"s_waitcnt lgkmcnt({15 - 5*ks})"); mf(0, ks, False)
    E("s_nop 7"); pack(0)
    get_tag("t", 160)
    E(f"""
    s_waitcnt vmcnt(4)
    s_mov_b64 exec, 1
    ds_add_u32 v18, v19 offset:{L_CTR}
    s_mov_b64 exec, -1
    """)
    lds_wait(L_CTR, 0xff, 8, "t1")
    for rt in range(1, 4):
        for ks in range(4): E(xread(rt, ks))
    E("s_waitcnt lgkmcnt(8)")
    for ks in range(4):
        mf(1, ks, False); E(xread(4, ks))
    E(f"""
    s_mov_b64 exec, 1
    ds_add_u32 v18, v19 offset:{L_RD}
    s_mov_b64 exec, -1
    s_nop 3
    """)
    pack(1)
    E("s_waitcnt lgkmcnt(0)")
    for ks in range(4): mf(2, ks, False)
    for rt in range(3, 5):
        for ks in range(4): mf(rt, ks, False)
        pack(rt-1)
    pack(4)
else: gemm(False, pack, lambda: lds_wait(L_CTR, {1: 0x80000, 2: 0xc0000}[OPT["hold"]], 0, "hold", sleep=1, ne=True) if OPT["hold"] else None)
E("s_setprio 0")
if OPT["gate"] or OPT["gate2"] >= 3:
    E(f"""
    s_mov_b64 exec, 1
    ds_add_u32 v18, v19 offset:{L_GST}
    s_mov_b64 exec, -1
    """)
STAMP(4)
main_consts()
E(f"""
    s_lshl_b32 s30, s{S_P}, 7
    s_add_u32 s30, s30, {WS_FL2}
    v_mov_b32 v60, s30
    v_mov_b32 v62, s{S_TAG}
    v_mov_b32 v63, s{S_TAG+1}
    v_mov_b32 v2, 0
    v_mov_b32 v3, 1
    s_lshl_b32 s30, s32, 13
    s_lshl_b32 s31, s{S_HALF}, 7
    s_add_u32 s30, s30, s31
    s_add_u32 s30, s30, {WS_FL2}
    v_lshl_add_u32 v64, v1, 8, s30
    s_mul_i32 s30, s32, {2560*256}
    s_lshr_b32 s31, s2, 3
    s_mul_i32 s31, s31, {160*128}
    s_add_u32 s30, s30, s31
    v_lshl_add_u32 v65, v1, 7, s30
    {'' if OPT['gpe'] else 'v_min_u32 v65, %d, v65' % (G_HALF - 128)}
    s_mul_i32 s30, s{S_HALF}, {G_HALF}
    v_add_u32 v65, s30, v65
    s_mov_b64 exec, 1
    s_waitcnt vmcnt(0)
    ds_add_rtn_u32 v61, v2, v3 offset:{L_DONE2}
    s_waitcnt lgkmcnt(0)
    v_readfirstlane_b32 s30, v61
    s_cmp_lg_u32 s30, 3
    s_cbranch_scc1 L_nofl
    global_store_dwordx2 v60, v[62:63], s[20:21] sc1
    ds_add_u32 v2, v3 offset:{L_DONE2}
L_nofl:
""")
STAMP(5)
if OPT["p2gate"]:
    E("s_mov_b64 exec, -1")
    lds_wait(L_CTR, 0xff0000, 0x080000, "pg", sleep=1)
    E("s_mov_b32 exec_hi, 0")
if OPT["p2wait"]: E(f"s_sleep {OPT['p2wait']}")
STAMP(6)
def gready(lab):
    if OPT["gpe"]: E(f"s_cmp_lg_u32 s73, 0\ns_cbranch_scc1 L_gr{lab}")
    if OPT["gpf"]:
        E(f"""
        {"s_bfm_b64 exec, %d, 0" % OPT["gpf"] if OPT["gpf"] < 64 else "s_mov_b64 exec, -1"}
        global_load_dword v35, v65, s[20:21] sc1
        """)
    E(f"""
L_gr{lab}:
    s_mov_b64 exec, 1
    v_mov_b32 v2, 0
    v_mov_b32 v3, 1
    ds_add_u32 v2, v3 offset:{L_GOK}
    """)
E(f"""
    s_cmp_eq_u32 s32, 3
    s_cselect_b32 exec_lo, 0x1fffffff, -1
    {"" if OPT["p1st"] else "s_mov_b64 s[66:67], exec"}
    {"" if OPT["p1st"] else "s_branch L_p2n"}
    global_load_dwordx2 v[66:67], v64, s[20:21] sc1
    s_waitcnt vmcnt(0)
    v_cmp_ne_u64 s[66:67], s[{S_TAG}:{S_TAG+1}], v[66:67]
""")
if OPT["gpe"]:
    n = OPT["gpe"]
    E(f"""
    s_mov_b32 s73, 0
    s_lshr_b32 s30, s2, 3
    s_bitcmp1_b32 s66, s30
    s_cbranch_scc1 L_nogpe
    s_mov_b32 s73, 1
    s_bitcmp1_b32 exec_lo, s30
    s_cbranch_scc0 L_nogpe
    """)
    for k in range(0, n, 64):
        E("s_mov_b64 exec, -1")
        if k: E(f"v_add_u32 v65, 8192, v65")
        if n - k < 64: E(f"s_bfm_b64 exec, {n-k}, 0")
        E(f"global_load_dword v{(35, 68, 69)[k//64]}, v65, s[20:21] sc1")
    E("L_nogpe:")
E(f"""
    s_cmp_lg_u64 s[66:67], 0
    s_cbranch_scc1 L_p2n
""")
gready("a")
E("L_p2n:\ns_mov_b64 exec, -1")
STAMP(7)
E(f"""
    s_branch L_b4
L_nog1:
    s_mov_b64 exec, 1
    ds_add_u32 v18, v19 offset:{L_RD}
    s_mov_b64 exec, -1
    s_branch L_rec
L_gemm2:
""")
def stage_au():
    E(f"""
    v_lshrrev_b32 v5, 3, v1
    v_bfe_u32 v3, v1, 4, 1
    v_lshlrev_b32 v3, 1, v3
    v_and_b32 v4, 7, v1
    v_xor_b32 v3, v3, v4
    v_lshlrev_b32 v3, 4, v3
    v_lshl_add_u32 v6, v5, 8, v3
    s_lshl_b32 s30, s{S_HALF}, 7
    s_and_b32 s31, s3, 1
    s_lshl_b32 s31, s31, 14
    s_add_u32 s30, s30, s31
    v_add_u32 v6, s30, v6
    v_xor_b32 v7, 64, v6
    v_add_u32 v8, 2048, v6
    v_add_u32 v9, 3072, v7
    v_add_u32 v7, 1024, v7
    s_lshl_b32 s30, s32, 13
    s_add_u32 m0, s30, {L_WAU}
    s_cmp_lt_u32 s32, 2
    s_cselect_b32 s34, s16, s12
    s_cselect_b32 s35, s17, s13
    global_load_lds_dwordx4 v6, s[34:35]
    global_load_lds_dwordx4 v7, s[34:35] offset:1024
    global_load_lds_dwordx4 v8, s[34:35] offset:2048
    global_load_lds_dwordx4 v9, s[34:35] offset:3072
    s_add_u32 m0, m0, 4096
    s_add_u32 s34, s34, 8192
    s_addc_u32 s35, s35, 0
    global_load_lds_dwordx4 v6, s[34:35]
    global_load_lds_dwordx4 v7, s[34:35] offset:1024
    global_load_lds_dwordx4 v8, s[34:35] offset:2048
    global_load_lds_dwordx4 v9, s[34:35] offset:3072
""")
if not OPT['aul']: stage_au()
for rt in range(5):
    for ks in range(4): E(xread(rt, ks))
E(f"""
    s_mov_b64 exec, 1
    ds_add_u32 v18, v19 offset:{L_RD}
    s_mov_b64 exec, -1
""")
if OPT['aul']:
    lds_wait(L_RD, 8, 8, "aul"); stage_au()
E(f"""
    s_mov_b64 exec, 1
    s_waitcnt vmcnt(0)
    ds_add_u32 v18, v19 offset:{L_RD}
    s_mov_b64 exec, -1
    s_sub_u32 s29, s3, 4
""")
rec_setup()
lds_wait(L_RD, 0xff, 12, "rd")
for ks in range(4): wreads(ks)
for ks in range(4):
    E(f"s_waitcnt lgkmcnt({12 - 4*ks})"); mf(0, ks, True)
for rt in range(1, 5):
    for ks in range(4): mf(rt, ks, True)
    fin(rt-1)
fin(4)
STAMP(4)
E(f"""
    s_branch L_rec
L_sort:
""")
STAMP(1)
E(f"""
    s_mov_b32 s40, {f32(-LOG2E)}
    s_mov_b32 s46, 0x3f80
    s_cmp_lg_u32 s{S_SAFE}, 0
    s_cbranch_scc1 L_sortskip
    v_mov_b32 v21, 1
    v_mov_b32 v20, 3
    s_mov_b32 s31, 52429
    s_movk_i32 s32, -20
    v_lshlrev_b32 v9, 3, v1
    v_lshlrev_b32 v33, 4, v0
    s_mul_i32 s30, s{S_P}, {SORTB}
    s_add_u32 s30, s30, {WS_REC + 4096}
    v_add_u32 v32, s30, v33
    v_add_u32 v34, 8192, v32
    s_lshl_b32 s30, s{S_P}, 10
    s_add_u32 s30, s30, {WS_ROW}
    v_lshl_add_u32 v42, v1, 4, s30
    s_mov_b32 s34, {LDS_MAX}
    s_setprio 3
    s_waitcnt vmcnt({1 + OPT['pre']})
""")
STAMP(2)
FSTAMP(1)
for i in range(5):
    E(f"""
    v_mul_u32_u24 v{22+i}, s31, v{4+i}
    v_lshrrev_b32 v{22+i}, 22, v{22+i}
    v_lshlrev_b32 v{22+i}, 2, v{22+i}        ; bucket*4
    ds_add_rtn_u32 v{27+i}, v{22+i}, v20 offset:{L_SCNT}
    """)
E(f"""
    s_mov_b64 exec, 1
    s_cmp_lg_u32 s3, 0
    s_cbranch_scc1 L_notag
    s_waitcnt vmcnt({OPT['pre']})
    ds_write_b32 v48, v43 offset:{L_SCNT + 125*4}
L_notag:
    ds_add_u32 v48, v21 offset:{L_SCNT + 127*4}
    s_mov_b64 exec, -1
""")
if OPT["ewhen"] == 1: E(f"""
    global_load_dwordx4 v[12:15], v3, s[8:9]{NTE}
    global_load_dword v16, v18, s[8:9]{NTE}
    global_load_dwordx4 v[52:55], v10, s[6:7]{NTE}
    global_load_dwordx4 v[56:59], v10, s[6:7] offset:16{NTE}
    global_load_dwordx2 v[60:61], v11, s[6:7]{NTE}
""")
E(f"""
L_s1:
    ds_read_b32 v38, v48 offset:{L_SCNT + 127*4}
    ds_read_b64 v[36:37], v9 offset:{L_SCNT}
    s_sub_u32 s34, s34, 1
    s_cbranch_scc1 L_s1d
    s_waitcnt lgkmcnt(0)
    v_readfirstlane_b32 s30, v38
    s_cmp_lg_u32 s30, 4
    s_cbranch_scc1 L_s1
L_s1d:
""")
FSTAMP(2)
E(f"""
    v_add3_u32 v39, v36, v37, 2
    v_add3_u32 v38, v36, v37, 2
    v_readlane_b32 s{S_TAGRAW}, v37, 62
""")
fill = []
for i in range(5):
    fill += [f"v_mad_i32_i24 v{4+i}, v{22+i}, s32, v{4+i}", f"v_lshlrev_b32 v{4+i}, 24, v{4+i}"]
for k, m in enumerate(SCAN):
    E(f"v_add_u32_dpp v39, v39, v39 {m}")
    for x in fill[2*k:2*k+2]: E(x)
E(f"""
    v_sub_u32 v40, v39, v38
    v_add3_u32 v41, v40, v36, 1
    s_mov_b32 s30, {L_SORT}
    v_lshl_add_u32 v38, v40, 2, s30
    v_lshl_add_u32 v39, v41, 2, s30
    ds_write_b64 v9, v[38:39] offset:{L_SOFF}
""")
for i in range(5):
    E(f"ds_read_b32 v{22+i}, v{22+i} offset:{L_SOFF}")
finish_tag()
E(f"""
    s_cmp_lg_u32 s3, 0
    s_cbranch_scc1 L_nopub
    s_and_b32 s35, s{S_TAG+1}, 0xff000000
    v_mov_b32 v45, s{S_TAG}
    v_mov_b32 v47, s{S_TAG}
    v_lshl_or_b32 v44, v36, 12, v40
    v_lshl_or_b32 v46, v37, 12, v41
    v_or_b32 v44, s35, v44
    v_or_b32 v46, s35, v46
    global_store_dwordx4 v42, v[44:47], s[20:21] sc1
    {"s_waitcnt vmcnt(1)" if OPT["ewhen"] == 1 else ""}
    s_branch {"L_pub" if OPT["ewhen"] == 1 else "L_nochk"}
L_nopub:
    s_cmp_lg_u32 s3, 1
    s_cbranch_scc1 L_nochk
    v_mov_b32 v44, s{S_TAG+1}
    s_mov_b32 exec_hi, 0x7fffffff
    ds_add_u32 v38, v44
    ds_add_u32 v39, v44
    s_mov_b32 exec_hi, -1
L_nochk:
""")
if OPT["ewhen"] >= 3:
    E("v_mov_b32 v19, v3")
    if OPT["ewhen"] == 3: lds_wait(L_CTR, 0xff, 8, "ew")
    elif OPT["ewhen"] == 5: lds_wait(L_CTR, 0xff000000, 0x08000000, "ew")
    else: lds_wait(L_CTR, 0xff, 0, "ew", ne=True)
    E("v_mov_b32 v3, v19")
if OPT["ewhen"] >= 2: E(f"""
    global_load_dwordx4 v[12:15], v3, s[8:9]{NTE}
    global_load_dword v16, v18, s[8:9]{NTE}
    global_load_dwordx4 v[52:55], v10, s[6:7]{NTE}
    global_load_dwordx4 v[56:59], v10, s[6:7] offset:16{NTE}
    global_load_dwordx2 v[60:61], v11, s[6:7]{NTE}
""")
E(f"""
    s_waitcnt vmcnt(0)
L_pub:
""")
STAMP(4)
FSTAMP(3)
for i in range(5): E(f"v_lshl_or_b32 v{4+i}, v{12+i}, 8, v{4+i}")
E("s_waitcnt lgkmcnt(0)")
for i in range(5):
    E(f"""
    v_lshl_add_u32 v{27+i}, v{27+i}, 2, v{22+i}
    v_add3_u32 v{12+i}, v{52+2*i}, v{53+2*i}, v{4+i}
    ds_write2_b32 v{27+i}, v{52+2*i}, v{53+2*i} offset0:2 offset1:3
    ds_write_b32 v{27+i}, v{4+i} offset:4
    ds_sub_u32 v{22+i}, v{12+i}
    """)
E(f"""
    s_mov_b64 exec, 1
    ds_add_u32 v48, v21 offset:{L_SCNT + 126*4}
    s_mov_b64 exec, -1
""")
FSTAMP(4)
E(f"""
    s_mov_b32 s34, {LDS_MAX}
L_s2:
    ds_read_b32 v38, v48 offset:{L_SCNT + 126*4}
    {f"ds_read_b32 v39, v48 offset:{L_CTR}" if OPT["wgate"] else ""}
    ds_read_b128 v[72:75], v33 offset:{L_SORT}
    s_sub_u32 s34, s34, 1
    s_cbranch_scc1 L_s2d
    s_waitcnt lgkmcnt(1)
    v_readfirstlane_b32 s30, v38
""")
if OPT["wgate"]:
    E(f"""
    v_readfirstlane_b32 s31, v39
    s_lshr_b32 s31, s31, 24
    s_add_u32 s30, s30, s31
    """)
E(f"""
    s_cmp_lg_u32 s30, {12 if OPT["wgate"] else 4}
    s_cbranch_scc1 L_s2
L_s2d:
""")
FSTAMP(5)
E(f"""
    ds_read_b128 v[76:79], v33 offset:{L_SORT + 4096}
    ds_read_b128 v[80:83], v33 offset:{L_SORT + 8192}
    ds_read_b128 v[84:87], v33 offset:{L_SORT + 12288}
    s_waitcnt lgkmcnt(3)
    global_store_dwordx4 v32, v[72:75], s[20:21] offset:-4096 sc1
    s_waitcnt lgkmcnt(2)
    global_store_dwordx4 v32, v[76:79], s[20:21] sc1
    s_waitcnt lgkmcnt(1){f" vmcnt({OPT['rpace']})" if OPT['rpace'] >= 0 else ""}
    global_store_dwordx4 v34, v[80:83], s[20:21] offset:-4096 sc1
    s_cmp_eq_u32 s3, 3
    s_cselect_b32 exec_hi, 0, -1
    s_waitcnt lgkmcnt(0){f" vmcnt({OPT['rpace']})" if OPT['rpace'] >= 0 else ""}
    global_store_dwordx4 v34, v[84:87], s[20:21] sc1
    s_mov_b32 exec_hi, -1
""")
FSTAMP(6)
for k in range(4): E(f"ds_write_b128 v33, v[48:51] offset:{L_SORT + 4096*k}")
STAMP(3)
FSTAMP(7)
E(f"""
    s_branch L_sortdone
L_sortskip:
    s_waitcnt vmcnt(0)
L_sortdone:
    s_mov_b32 s29, s3
""")
rec_setup()
E(f"""
L_rec:
""")
lds_wait(L_CTR, 0xff, 8, "r0")
main_consts()
STAMP(5)
E(f"""
    s_cmp_ge_u32 s3, 4
    s_cbranch_scc1 L_nod2
    v_mov_b32 v2, 0
    v_mov_b32 v3, 0x100
    s_mov_b64 exec, 1
    s_waitcnt vmcnt(0)
    ds_add_u32 v2, v3 offset:{L_CTR}
    s_mov_b64 exec, -1
L_nod2:
    s_cmp_lg_u32 s{S_SAFE}, 0
    s_cbranch_scc1 L_recskip
    s_lshr_b32 s35, s{S_TAG+1}, 24
    s_mov_b64 exec, s[66:67]
    s_mov_b32 s34, {POLL_MAX}
    s_branch L_p1c
L_p1:
    global_load_dwordx2 v[{ENT}:{ENT+1}], v{ROWA}, s[20:21] sc1
L_p1c:
    s_sub_u32 s34, s34, 1
    s_cbranch_scc1 L_toobig
    s_waitcnt vmcnt(0)
    v_cmp_ne_u32 vcc, s{S_TAG}, v{ENT+1}
    v_cmp_ne_u32_sdwa s[48:49], v{ENT}, s35 src0_sel:BYTE_3 src1_sel:DWORD
    s_or_b64 exec, vcc, s[48:49]
    s_cbranch_scc1 L_p1
    s_mov_b64 exec, -1
""")
STAMP(6)
if OPT["cnt"]: E(f"s_sub_u32 s{ST0+2}, {POLL_MAX+1}, s34\ns_mov_b32 s34, {POLL_MAX}")
E(f"""
    v_and_b32 v{CAD}, 0xfff, v{ENT}
    v_bfe_u32 v{ENT}, v{ENT}, 12, 12            ; 3*count
    v_add_lshl_u32 v{CAD}, v{CAD}, v{CELL}, 2
    v_cmp_ne_u32 vcc, 0, v{ENT}
    s_sub_u32 s30, 0, s{S_TAG+1}
    v_mov_b32 v2, s30
    v_cndmask_b32 v{ENT+1}, 0, v2, vcc
    v_cmp_lt_u32 vcc, 96, v{ENT}
    v_cmp_lt_u32 s[68:69], 48, v{ENT}
    s_cbranch_vccnz L_toobig
""")
for p in range(NP):
    E(f"""
    v_add_co_u32_dpp v2, vcc, v{ENT}, v{J3N} row_newbcast:{p} row_mask:0xf bank_mask:0xf
    v_add_u32_dpp v{RAD+p}, v{CAD}, v{J12} row_newbcast:{p} row_mask:0xf bank_mask:0xf
    s_mov_b64 s[{48+2*p}:{49+2*p}], vcc
    """)
lds_wait(L_CTR, 0xff00, 0x400, "r1")
if OPT["gate"]: lds_wait(L_GST, 0xff, 4, "gt")
if OPT["gate2"] == 1 and not OPT["split"]:
    if not OPT["allg"]: E("s_cmp_lt_u32 s3, 4\ns_cbranch_scc1 L_wd_g2")
    lds_wait(L_DONE2, 0xff, 5, "g2")
if OPT["gate2"] == 3:
    E("s_cmp_lt_u32 s3, 4\ns_cbranch_scc1 L_wd_g2")
    lds_wait(L_GST, 0xff, 4, "g2")
if OPT["gate2"] in (2, 4):
    E(f"""
    s_cmp_lt_u32 s3, 4
    s_cbranch_scc1 L_g2d
    s_mov_b32 s31, {POLL_MAX}
L_g2:
    ds_read_b128 v[60:63], v2 offset:{L_CTR}
    {f"ds_read_b32 v61, v2 offset:{L_GST}" if OPT["gate2"] == 4 else ""}
    s_sub_u32 s31, s31, 1
    s_cbranch_scc1 L_g2d
    s_waitcnt lgkmcnt(0)
    v_readfirstlane_b32 s30, v62
    v_readfirstlane_b32 s28, v60
    v_readfirstlane_b32 s29, v61
    s_cmp_eq_u32 s30, 5
    s_cbranch_scc1 L_g2d
    {"s_cmp_lg_u32 s29, 4" if OPT["gate2"] == 4 else ""}
    {"s_cbranch_scc1 L_g2" if OPT["gate2"] == 4 else ""}
    s_and_b32 s28, s28, 0xc0000
    s_cbranch_scc0 L_g2
L_g2d:
    """)
E(f"""
    s_or_b32 s68, s68, s69
    s_lshr_b32 s69, s68, 16
    s_or_b32 s68, s68, s69
""")
def mask2(p): return f"v_add_co_u32_dpp v2, vcc, v{ENT}, v{J3N2} row_newbcast:{p} row_mask:0xf bank_mask:0xf"
def loads(ps, lab):
    E(f"s_and_b32 s30, s68, {sum(1 << p for p in ps)}\ns_cbranch_scc0 L_nx{lab}")
    for p in ps:
        r = RB + 4*p
        E(f"""
        s_bitcmp1_b32 s68, {p}
        s_cbranch_scc0 L_nx{lab}{p}
        {mask2(p)}
        s_mov_b64 exec, vcc
        global_load_dwordx4 v[{r}:{r+3}], v{RAD+p}, s[20:21] offset:192 sc1
        s_mov_b64 exec, -1
L_nx{lab}{p}:
        """)
    E(f"L_nx{lab}:")
    for p in ps:
        r = RA + 4*p
        E(f"""
        s_mov_b64 exec, s[{48+2*p}:{49+2*p}]
        global_load_dwordx4 v[{r}:{r+3}], v{RAD+p}, s[20:21]{SC1 if (OPT["rsc1"] or lab != "m") else ""}
        """)
    E("s_mov_b64 exec, -1")
SP = OPT["split"]
GROUPS = {0: ((0,1,2,3),(4,5),(6,7)), 4: ((0,1,2,3),(4,5),(6,7)), 5: ((0,1,2),(3,4),(5,6,7)), 6: ((0,1,2,3),(4,5),(6,7)), 3: ((0,1,2),(3,4,5),(6,7)), 2: ((0,1),(2,3,4,5),(6,7)), 1: ((0,),(1,2,3,4),(5,6,7))}[SP]
if OPT['grp'] == 1: GROUPS = ((0,1),(2,3,4),(5,6,7))
if OPT['grp'] == 2: GROUPS = ((0,1),(2,3),(4,5),(6,7))
loads(range(SP or NP), "m")
if OPT["eag"]:
    E(f"""
    v_mov_b32 v2, 0
    ds_read_b32 v3, v2 offset:{L_DONE2}
    s_waitcnt lgkmcnt(0)
    v_readfirstlane_b32 s73, v3
    s_cmp_lg_u32 s73, 5
    s_cbranch_scc1 L_neag
    """)
    loads(range(SP, NP), "e")
    E("L_neag:")
def issued():
    if OPT["p2gate"]:
        E(f"""
        v_mov_b32 v2, 0
        v_mov_b32 v3, 0x10000
        s_mov_b64 exec, 1
        ds_add_u32 v2, v3 offset:{L_CTR}
        s_mov_b64 exec, -1
        """)
if not OPT["sig"]: issued()
STAMP(7)
def rank(r, m):
    E(f"""
    s_mov_b64 exec, {m}
    v_mul_u32_u24_sdwa v{r}, v{FOUR}, v{r+1} dst_sel:DWORD dst_unused:UNUSED_PAD src0_sel:DWORD src1_sel:BYTE_3
    v_and_b32 v{r+1}, {OPT['srcmask']}, v{r+1}
    ds_add_rtn_u32 v{r}, v{r}, v{FOUR} offset:{L_CNT}
    """)
def put(r, m):
    E(f"""
    s_mov_b64 exec, {m}
    v_lshlrev_b32 v2, 1, v{r}
    ds_write_b32 v{r}, v{r+1}
    ds_write_b64 v2, v[{r+2}:{r+3}] offset:{L_EA - 2*L_SRC}
    """)
retries = []
pending = []
for gi, grp in enumerate(GROUPS):
    bits = sum(1 << p for p in grp); m32 = bits | (bits << 16)
    if SP and grp[0] == SP:
        if OPT["eag"]: E("s_cmp_eq_u32 s73, 5\ns_cbranch_scc1 L_eagd")
        lds_wait(L_DONE2, 0xff, 5, "g2")
        loads(range(SP, NP), "n")
        E("L_eagd:")
        if OPT["sig"] == 9: issued()
    last = NP if (not SP or grp[0] >= SP) else SP
    first_ = 0 if (not SP or grp[0] < SP) else SP
    E(f"""
L_ck{gi}:
    s_mov_b32 vcc_lo, {m32}
    s_mov_b32 vcc_hi, {m32}
    v_cndmask_b32 v{ACC}, 0, v{ENT+1}, vcc
    s_and_b32 s30, s68, {bits}
    s_cbranch_scc1 L_xa{gi}
L_xb{gi}:
    """)
    def xacc():
        E(f"L_xa{gi}:\ns_waitcnt vmcnt({last - first_})")
        for p in grp:
            r = RB + 4*p
            E(f"""
            {mask2(p)}
            s_mov_b64 exec, vcc
            v_add3_u32 v{ACC}, v{ACC}, v{r+1}, v{r+2}
            v_add_u32 v{ACC}, v{ACC}, v{r+3}
            s_mov_b64 exec, -1
            """)
        E(f"s_branch L_xb{gi}")
    emit_to(outofline, xacc)
    for p in grp:
        r = RA + 4*p
        E(f"""
        s_waitcnt vmcnt({last-1-p})
        s_mov_b64 exec, s[{48+2*p}:{49+2*p}]
        v_and_b32 v{r}, v{r}, v{L0M}
        v_add3_u32 v{ACC}, v{ACC}, v{r+2}, v{r+3}
        v_add3_u32 v{ACC}, v{ACC}, v{r}, v{r+1}
        """)
    E("s_mov_b64 exec, -1\ns_nop 0")
    for k in (1, 2, 4, 8):
        E(f"v_add_u32_dpp v{ACC}, v{ACC}, v{ACC} row_ror:{k} row_mask:0xf bank_mask:0xf")
        if k < 8: E("s_nop 1")
    E(f"v_cmp_ne_u32 vcc, 0, v{ACC}\ns_cbranch_vccnz L_rt{gi}")
    if OPT["rst"]: STAMP(1+gi)
    if OPT["sig"] == gi + 1: issued()
    def retry():
        E(f"L_rt{gi}:\ns_sub_u32 s34, s34, 1\ns_cbranch_scc1 {'L_toobig' if (gi < OPT['sig'] if OPT['sig'] != 9 else grp[0] < SP) else 'L_giveup'}")
        loads(grp, f"r{gi}_")
        E(f"s_waitcnt vmcnt(0)\ns_branch L_ck{gi}")
    emit_to(outofline, retry)
    for p in grp: rank(RA + 4*p, f"s[{48+2*p}:{49+2*p}]")
    E(f"s_and_b32 s30, s68, {bits}\ns_cbranch_scc1 L_ya{gi}\nL_yb{gi}:")
    def xput():
        E(f"L_ya{gi}:")
        for p in grp:
            r = RB + 4*p
            E(f"""
            s_bitcmp1_b32 s68, {p}
            s_cbranch_scc0 L_yn{p}
            s_mov_b64 exec, -1
            {mask2(p)}
            """)
            rank(r, "vcc")
            E("s_waitcnt lgkmcnt(0)")
            put(r, "vcc")
            E(f"L_yn{p}:")
        E(f"s_branch L_yb{gi}")
    emit_to(outofline, xput)
    for k, p in enumerate(grp):
        E(f"s_waitcnt lgkmcnt({len(grp) - 1 - k + 2*k})")
        put(RA + 4*p, f"s[{48+2*p}:{49+2*p}]")
    E("s_mov_b64 exec, -1")
E(f"""
    {f"s_sub_u32 s{ST0+4}, {POLL_MAX+1}, s34" if OPT["cnt"] else ""}
    s_branch L_b4
L_toobig:
    s_mov_b64 exec, -1
""")
issued()
E(f"""
L_giveup:
    v_mov_b32 v2, 0
    ds_write_b32 v2, v{FOUR} offset:{L_FLAG}
L_recskip:
    s_waitcnt vmcnt(0)
L_b4:
    s_setprio {OPT["p0"] if OPT["prio"] == 2 else 0}
    s_mul_i32 s30, s{S_HALF}, {G_HALF}
    {f"s_add_u32 s30, s30, {WS0}" if WS0 else ""}
    s_add_u32 s36, s20, s30
    s_addc_u32 s37, s21, 0
    s_mov_b32 s38, {OPT['nrec'] or G_HALF}
    s_mov_b32 s39, 0x20000
    s_mov_b32 s44, 128
    s_mov_b32 s45, 128
    ds_read_b128 v[60:63], v{LP}
    ds_read_b64 v[{AG}:{AG+1}], v{LP} offset:64
    ds_read_b64 v[{WN2}:{WN2+1}], v{LP} offset:72
    ds_read_b32 v{WE}, v{LP+1}
    s_waitcnt lgkmcnt(0)
    v_lshl_add_u64 v[{AG}:{AG+1}], v[{AG}:{AG+1}], 0, v[{LN8}:{LN8+1}]
    v_lshl_add_u32 v{WE}, v{WE}, 1, v{EAC}
""")
if OPT["warm"]:
    E(f"""
    s_barrier
    s_lshr_b32 s30, s2, 3
    s_mul_i32 s30, s30, 98304
    v_lshl_add_u32 v2, v0, 7, s30
    buffer_load_dword v3, v2, s[36:39], 0 offen sc1
    s_waitcnt vmcnt(0)
    s_sleep 40
    """)
STAMP(8)
E(f"""
    s_barrier                               ; B4
    s_cmp_lg_u32 s{S_SAFE}, 0
    s_cbranch_scc1 L_safe
    ds_read_b128 v[{T}:{T+3}], v60
    ds_read_b128 v[{T+4}:{T+7}], v61
    ds_read_b64 v[{XA}:{XA+1}], v{AG} offset:512
    ds_read_b64 v[{EA}:{EA+1}], v{WE}
    s_lshr_b32 s30, s3, 2
    s_cmp_lg_u32 s30, 1
    s_cbranch_scc1 L_nopoll
    s_mov_b64 exec, s[66:67]
    s_cbranch_execz L_p2e
    s_mov_b32 s31, {POLL_MAX}
L_p2:
    global_load_dwordx2 v[66:67], v64, s[20:21] sc1
    s_sub_u32 s31, s31, 1
    s_cbranch_scc1 L_p2d
    s_waitcnt vmcnt(0)
    v_cmp_ne_u64 vcc, s[{S_TAG}:{S_TAG+1}], v[66:67]
    s_and_b64 exec, exec, vcc
    s_cbranch_scc0 L_p2d
    {f"s_sleep {OPT['p2sleep']}" if OPT['p2sleep'] else ""}
    s_branch L_p2
L_p2d:
""")
gready("b")
E(f"""
L_p2e:
    s_mov_b64 exec, -1
L_nopoll:
    s_cmp_lt_u32 s3, {NW-2}
    s_cbranch_scc1 L_nobuild
    v_lshlrev_b32 v2, 3, v1
    v_mov_b32 v3, 0
    ds_read_b64 v[72:73], v2 offset:{L_CNT}
    ds_read_b32 v79, v3 offset:{L_FLAG}
    v_mul_u32_u24 v74, {2*SSTR}, v1
    v_add_u32 v74, {L_SRC + 96}, v74
    v_add_u32 v75, {SSTR}, v74
    v_mul_u32_u24 v82, {2*NSTR}, v1
    s_and_b32 s32, s3, 1
    s_mul_i32 s30, s32, {NSTR}
    s_add_u32 s30, s30, {L_NODE}
    v_add_u32 v82, s30, v82
    v_mov_b32 v83, v82
    s_mul_i32 s30, s32, {SSTR}
    v_add_u32 v80, s30, v74
    v_add_u32 v81, 16, v80
    s_waitcnt lgkmcnt(0)
    v_sub_u32 v72, v72, v74 clamp
    v_sub_u32 v73, v73, v75 clamp
    v_max_u32 v76, v72, v73
    v_cmp_lt_u32 vcc, 160, v76
    v_cmp_ne_u32 s[48:49], 0, v79
    v_add_u32 v74, 12, v72
    v_add_u32 v75, 12, v73
    s_or_b64 vcc, vcc, s[48:49]
    s_cbranch_scc1 L_bad
    v_add_u32 v72, 28, v72
    v_add_u32 v73, 28, v73
    v_lshrrev_b32 v74, 5, v74
    v_lshrrev_b32 v75, 5, v75
    v_lshrrev_b32 v72, 5, v72
    v_lshrrev_b32 v73, 5, v73
    v_sub_u32 v72, v72, v74
    v_sub_u32 v73, v73, v75
    v_lshl_or_b32 v72, v72, 16, v74
    v_lshl_or_b32 v73, v73, 16, v75
    v_add_u32 v76, v72, v73
    v_add_u32 v77, v72, v73
""")
scan(77)
E(f"""
    s_cmp_eq_u32 s32, 0
    s_cselect_b64 vcc, -1, 0
    v_readlane_b32 s30, v77, 63
    v_cndmask_b32 v76, v73, v76, vcc
    v_cndmask_b32 v72, v73, v72, vcc
    v_sub_u32 v77, v77, v76
    s_and_b32 s50, s30, 0xffff
    s_add_u32 s31, s50, 3
    s_lshr_b32 s31, s31, 2
    s_sub_u32 s51, 0, s50
    s_and_b32 s51, s51, 3
    s_lshr_b32 s30, s30, 16
    s_add_u32 s30, s30, 3
    s_sub_u32 s30, s30, s51
    s_lshr_b32 s30, s30, 2
    s_lshl_b32 s33, s31, 1
    s_add_u32 s33, s33, s30
    s_cmp_gt_u32 s33, 104
    s_cbranch_scc1 L_bad
    s_lshl_b32 s30, s30, 8
    s_or_b32 s29, s30, s31
    v_and_b32 v74, 0xffff, v72
    v_and_b32 v76, 0xffff, v77
    s_mov_b32 s34, {L_LISTC}
    s_mov_b32 s35, {L_LIST + 384}
""")
def slotaddr():
    E(f"""
    v_add_u32 v78, 16, v76
    v_bfe_u32 v79, v76, 2, 2
    v_lshl_add_u32 v79, v79, 10, s34
    v_lshrrev_b32 v84, 5, v78
    v_lshl_add_u32 v79, v84, 7, v79
    v_bfe_u32 v84, v78, 4, 1
    v_lshl_add_u32 v79, v84, 3, v79
    v_lshrrev_b32 v84, 2, v76
    v_cmp_gt_u32 vcc, 32, v76
    v_lshl_add_u32 v84, v84, 9, s35
    v_and_b32 v78, 3, v76
    v_cndmask_b32 v79, v79, v84, vcc
    v_lshl_add_u32 v79, v78, 4, v79
    """)
E("""
L_bf:
    v_cmp_ne_u32 vcc, 0, v74
    s_and_b64 exec, exec, vcc
    s_cbranch_execz L_bfd
""")
slotaddr()
E(f"""
    ds_write_b64 v79, v[80:81]
    ds_write_b64 v79, v[82:83] offset:64
    v_add_u32 v80, 32, v80
    v_add_u32 v81, 32, v81
    v_add_u32 v76, 1, v76
    v_subrev_u32 v74, 1, v74
    s_branch L_bf
L_bfd:
    s_mov_b64 exec, -1
    v_lshrrev_b32 v77, 16, v77
    s_sub_u32 s52, 0, s31
    s_and_b32 s52, s52, 3
    s_add_u32 s53, s31, s52
    s_lshl_b32 s52, s52, 3
    v_subrev_u32 v73, s51, v77              ; j' = j - spare
    v_subrev_u32 v74, s52, v73
    v_lshrrev_b32 v76, 3, v73
    v_add_u32 v76, s31, v76
    v_and_b32 v75, 4, v73
    v_lshrrev_b32 v78, 5, v74
    v_lshl_add_u32 v78, v78, 2, s53
    v_bfe_u32 v79, v74, 2, 2
    v_add_u32 v78, v78, v79
    v_cmp_gt_u32 vcc, s52, v73
    v_lshrrev_b32 v74, 2, v74
    v_and_b32 v74, 4, v74
    v_cndmask_b32 v76, v78, v76, vcc        ; slot
    v_cndmask_b32 v75, v74, v75, vcc
    v_and_b32 v78, 3, v73
    v_cmp_gt_u32 s[54:55], s51, v77
    v_lshl_add_u32 v76, v76, 2, v78
    v_add_u32 v78, s50, v77
    v_cndmask_b32 v76, v76, v78, s[54:55]
""")
slotaddr()
E(f"""
    v_cmp_lt_u32 vcc, 0xffff, v72
    v_add_u32 v75, v79, v75
    s_andn2_b64 exec, vcc, s[54:55]
    ds_write2_b32 v75, v80, v82 offset0:0 offset1:16
    s_and_b64 exec, vcc, s[54:55]
    ds_write_b64 v79, v[80:81]
    ds_write_b64 v79, v[82:83] offset:64
    s_mov_b64 exec, -1
    s_mul_i32 s29, s29, s32
    s_add_u32 s29, s29, 0x10000
    s_branch L_built
L_bad:
    s_mov_b32 s29, 0x1010000
L_built:
    v_mov_b32 v2, s29
    s_mov_b64 exec, 1
    ds_add_u32 v3, v2 offset:{L_NST}
    s_add_u32 s30, s{S_P}, s32
    s_cmp_lg_u32 s30, 0
    s_cbranch_scc1 L_notw
    v_mov_b32 v2, s{S_TAG}
    v_mov_b32 v3, {WS_TAG}
    global_store_dword v3, v2, s[20:21] sc1
L_notw:
    s_mov_b64 exec, -1
L_nobuild:
    s_waitcnt lgkmcnt(0)
""")
assert DIST == 2 and not EARLY
E(m_a(D0))
for o in range(T, T+8, 2): E(oadd(o))
E(m_e(D0, 0))
lds_wait(L_GOK, 0xff, 4, "gok")
if OPT["stamps"] == 2: E(f"s_memrealtime s[{ST0+16}:{ST0+17}]")
if not OPT["nogather"]:
    for q in range(8): E(gload(G + 4*q, T+q))
STAMP(9)
E(f"""
    s_mov_b32 s31, {LDS_MAX}
    s_waitcnt vmcnt(4)
""")
E(m_s(D0, A1, G)); E(m_s(D0, A2, G+8))
E(f"""
L_wn:
    ds_read_b32 v3, v2 offset:{L_NST}
    ds_read_b128 v[{WS4}:{WS4+3}], v{LP} offset:{128*((DIST+EARLY)//4)}
    s_sub_u32 s31, s31, 1
    s_cbranch_scc1 L_gosafe
    s_waitcnt lgkmcnt(0)
    v_readfirstlane_b32 s30, v3
    s_bitcmp1_b32 s30, 17
    s_cbranch_scc0 L_wn
    s_cmp_gt_u32 s30, {0 if OPT["force_safe"] else 0xffffff}
    s_cbranch_scc1 L_gosafe
    s_and_b32 s31, s30, 0xff
    s_bfe_u32 s30, s30, 0x80008
    s_and_b32 s28, s3, 3
    s_sub_u32 s32, 0, s31
    s_and_b32 s32, s32, 3
    s_add_u32 s33, s28, s32
    s_sub_i32 s33, s33, 4
    s_lshl_b32 s29, s33, 1
    s_sub_i32 s29, s30, s29
    s_max_i32 s29, s29, 0
    s_min_i32 s29, s29, 2
    s_cmp_lt_i32 s33, 0
    s_cselect_b32 s29, 0, s29
    s_lshl_b32 s32, s32, 1
    s_sub_i32 s30, s30, s32
    s_sub_i32 s30, s30, s28
    s_add_i32 s30, s30, 3
    s_max_i32 s30, s30, 0
    s_lshr_b32 s30, s30, 2
    s_add_u32 s30, s30, s29
    s_sub_u32 s32, s31, s28
    s_add_u32 s32, s32, 3
    s_lshr_b32 s32, s32, 2
    s_lshl_b32 s32, s32, 1
    s_add_u32 s30, s30, s32
    s_lshr_b32 s32, s3, 2
    s_lshl_b32 s32, s32, 1
    s_sub_i32 s30, s30, s32
    s_max_i32 s30, s30, 0
    s_cmp_ge_u32 s3, 8
    s_cbranch_scc1 L_nc
    s_min_u32 s30, s30, 2
    s_add_u32 s{S_R}, s30, 12
    s_cmp_ge_u32 s3, s31
    s_cselect_b32 s30, 0x2000, 0
    s_or_b32 s{S_M}, s30, 0x5041
    s_branch L_nd
L_nc:
    s_add_u32 s{S_R}, s30, 6
    s_sub_i32 s31, s31, s3
    s_add_i32 s31, s31, 3
    s_max_i32 s31, s31, 0
    s_lshr_b32 s31, s31, 2
    s_lshl_b32 s31, s31, 1
    s_add_u32 s31, s31, 7
    s_lshl_b32 s31, -1, s31
    s_or_b32 s{S_M}, s31, 0x55555541
L_nd:
    s_mov_b32 s{S_IT}, {(1 << OPT["pa"]) | (1 << OPT["pb"]) | (1 << OPT["pc"]) if OPT["prio"] == 2 else 0}
""")
if OPT["prio"]: E(f"s_setprio {OPT['p1']}")
STAMP(10)
if OPT["ptime"]: E("v_mov_b32 v70, 0\nv_mov_b32 v71, 0")
if OPT["stamps"] == 1: E(f"s_memtime s[{ST0+24}:{ST0+25}]\ns_waitcnt lgkmcnt(0)")
for u in range(4): phase(u, True)
for u in range(4): phase(u, False)
E(f"""
L_mdone:
    s_waitcnt lgkmcnt(0)
""")
STAMP(11)
if OPT["ptime"]:
    E(f"""
    s_lshl_b32 s30, s2, 4
    s_add_u32 s30, s30, s3
    s_lshl_b32 s30, s30, 8
    s_add_u32 s30, s30, 0xc00000
    v_lshl_add_u32 v2, v1, 2, s30
    s_mov_b32 exec_hi, 0
    global_store_dword v2, v70, s[20:21]
    global_store_dword v2, v71, s[20:21] offset:128
    s_mov_b64 exec, -1
    """)
if OPT["stamps"] == 1:
    E(f"s_memtime s[28:29]\ns_waitcnt lgkmcnt(0)\ns_sub_u32 s{ST0+24}, s28, s{ST0+24}")
E(f"""
    v_lshrrev_b32 v2, 5, v0
    v_and_b32 v3, 31, v0
    v_mul_u32_u24 v4, {NSTR}, v2
    v_and_b32 v5, 1, v3
    v_lshl_add_u32 v4, v5, 8, v4
    v_lshrrev_b32 v5, 1, v3
    v_lshl_add_u32 v4, v5, 3, v4
    v_add_u32 v4, {L_NODE}, v4
    s_mul_i32 s30, s{S_BUCK}, {NB*256}
    s_lshl_b32 s31, s{S_HALF}, 7
    s_add_u32 s30, s30, s31
    v_lshlrev_b32 v3, 2, v3
    v_lshl_add_u32 v5, v2, 8, v3
    v_add_u32 v5, s30, v5
    v_add_u32 v6, {24*256}, v5
    v_add_u32 v7, {48*256}, v5
    v_add_u32 v8, {72*256}, v5
    s_mov_b32 s32, {f32(2.0**32)}
    s_mov_b32 s34, {f32(-LOG2E * 2.0**-32)}
    v_mov_b32 v9, 0x207
    s_barrier                               ; B5
""")
OSC = {0: "", 1: " sc1", 2: " nt"}[OPT["osc"]]
def epi(us):
    for u in us: E(f"ds_read_b64 v[{12+4*u}:{13+4*u}], v4 offset:{24*NSTR*u}\nds_read_b64 v[{14+4*u}:{15+4*u}], v4 offset:{24*NSTR*u + 128}")
    E("s_waitcnt lgkmcnt(0)")
    for u in us: E(f"v_cvt_f32_f64 v{28+2*u}, v[{12+4*u}:{13+4*u}]\nv_cvt_f32_f64 v{29+2*u}, v[{14+4*u}:{15+4*u}]")
    for u in us: E(f"v_pk_mul_f32 v[{36+2*u}:{37+2*u}], v[{28+2*u}:{29+2*u}], s[34:35] op_sel_hi:[1,0]")
    for u in us: E(f"v_exp_f32 v{36+2*u}, v{36+2*u}\nv_exp_f32 v{37+2*u}, v{37+2*u}")
    E("v_pk_add_f32 v[10:11], v[28:29], v[30:31]")
    for u in us: E(f"v_pk_fma_f32 v[{36+2*u}:{37+2*u}], v[{36+2*u}:{37+2*u}], s[32:33], s[32:33] op_sel_hi:[1,0,0]")
    for u in us: E(f"v_rcp_f32 v{36+2*u}, v{36+2*u}\nv_rcp_f32 v{37+2*u}, v{37+2*u}")
    E("v_pk_add_f32 v[10:11], v[10:11], v[32:33]")
    for u in us: E(f"v_pk_mul_f32 v[{36+2*u}:{37+2*u}], v[{28+2*u}:{29+2*u}], v[{36+2*u}:{37+2*u}]")
    for u in us: E(f"v_cvt_pk_bf16_f32 v{44+u}, v{36+2*u}, v{37+2*u}\nglobal_store_dword v{5+u}, v{44+u}, s[18:19]{OSC}")
    for u in us[3:]: E(f"v_pk_add_f32 v[10:11], v[10:11], v[{28+2*u}:{29+2*u}]")
E("s_cmp_ge_u32 s3, 4\ns_cbranch_scc1 L_e3")
epi([0, 1, 2, 3])
E("s_branch L_e4\nL_e3:")
epi([0, 1, 2])
E(f"""
L_e4:
    v_add_f32 v10, v10, v11
    v_cmp_class_f32 vcc, v10, v9
    v_mov_b32 v2, 0
    s_cmp_lg_u32 s{S_SAFE}, 0
    s_cbranch_scc1 L_fin
    {"s_branch" if OPT["nosafe"] else "s_cbranch_vccz"} L_e5
    ds_write_b32 v2, v9 offset:{L_FLAG}
    s_waitcnt lgkmcnt(0)
L_e5:
    s_barrier                               ; B6
    ds_read_b32 v2, v2 offset:{L_FLAG}
    s_waitcnt lgkmcnt(0)
    v_readfirstlane_b32 s30, v2
    s_cmp_lg_u32 s30, 0
    s_cbranch_scc1 L_gosafe
L_fin:
""")
if OPT["stamps"]:
    E("s_waitcnt vmcnt(0)"); STAMP(13); STAMP_OUT()
if OPT["probe"] >= 0:
    T_ = ST0 + 2*OPT["probe"]
    E(f"""
    s_cmp_lg_u32 s3, {OPT["pw"]}
    s_cbranch_scc1 L_end
    s_cmp_lg_u32 s2, {OPT["pg"] if OPT["pg"] >= 0 else "s2"}
    s_cbranch_scc1 L_end
    s_sub_u32 s30, s{T_}, s{ST0}
    s_lshl_b32 s30, s30, 2
    s_add_u32 s30, s30, 3000
    s_min_u32 s30, s30, 20000
L_spin:
    s_memrealtime s[28:29]
    s_waitcnt lgkmcnt(0)
    s_sub_u32 s28, s28, s{ST0}
    s_cmp_lt_u32 s28, s30
    s_cbranch_scc1 L_spin
    """)
E(f"""
L_end:
    s_endpgm
L_gosafe:
    s_mov_b32 s{S_SAFE}, 8
    s_setprio 0
    s_waitcnt vmcnt(0) lgkmcnt(0)
    s_barrier
    s_branch L_restart
""")
out += outofline
for r in retries: E(r)
E(f"""
L_safe:
    v_and_b32 v2, 15, v1
    v_lshlrev_b32 v3, 3, v2
    v_add_u32 v3, {L_C}, v3
""")
for k in range(4):
    for s in range(4):
        E(f"ds_read_u16 v{80+4*k+s}, v3 offset:{128*k + 2*s}")
E("s_waitcnt lgkmcnt(0)")
for i in range(16):
    E(f"v_lshlrev_b32 v{80+i}, 16, v{80+i}\nv_mul_f32 v{80+i}, s40, v{80+i}")
E(f"""
    v_lshrrev_b32 v24, 4, v1
    v_mul_u32_u24 v24, 3, v24               ; 3*quarter
    s_movk_i32 s33, {NSTR}
    v_add_u32 v25, {L_NODE}, v{LN8}
    s_mov_b32 s34, s3
    s_mov_b32 s35, {POLL_MAX}
L_scell:
    s_lshl_b32 s30, s34, 10
    s_lshl_b32 s31, s{S_BUCK}, 3
    s_add_u32 s30, s30, s31
    s_add_u32 s30, s30, {WS_ROW}
    v_mov_b32 v26, s30
    global_load_dword v32, v26, s[20:21] sc1
    s_mul_i32 s30, s34, {SORTB//4}
    s_add_u32 s30, s30, {WS_REC//4}
    s_waitcnt vmcnt(0)
    v_bfe_u32 v28, v32, 12, 12              ; 3*count
    v_and_b32 v27, 0xfff, v32
    v_add_u32 v27, s30, v27
L_sver:
    v_mov_b32 v29, v1
    v_mov_b32 v31, 0
L_sv1:
    v_cmp_ge_u32 vcc, v28, v29
    s_and_saveexec_b64 s[48:49], vcc
    s_cbranch_execz L_sv2
    v_add_lshl_u32 v30, v27, v29, 2
    global_load_dword v32, v30, s[20:21] sc1
    s_waitcnt vmcnt(0)
    v_add_u32 v31, v31, v32
    s_mov_b64 exec, s[48:49]
    v_add_u32 v29, 64, v29
    s_branch L_sv1
L_sv2:
    s_mov_b64 exec, s[48:49]
""")
scan(31)
E(f"""
    s_nop 0
    v_readlane_b32 s30, v31, 63
    s_cmp_eq_u32 s30, s{S_TAG+1}
    s_cbranch_scc1 L_sok
    s_sub_u32 s35, s35, 1
    s_cbranch_scc0 L_sver
    s_branch L_mdone
L_sok:
    v_mov_b32 v29, v24
L_srec:
    v_cmp_gt_u32 vcc, v28, v29
    s_and_saveexec_b64 s[48:49], vcc
    s_cbranch_execz L_snext
    v_add_lshl_u32 v30, v27, v29, 2
    global_load_dwordx3 v[32:34], v30, s[20:21] offset:4 sc1
    s_waitcnt vmcnt(0)
    v_and_b32 v30, 0x3fff00, v32
    v_add_u32 v30, v30, v{LN16}
    buffer_load_dwordx4 v[36:39], v30, s[36:39], 0 offen sc1
    v_lshrrev_b32 v31, 24, v32
    v_mad_u32_u24 v31, v31, s33, v25
    ds_read_b64 v[40:41], v31 offset:512
    v_lshlrev_b32 v44, 16, v33
    v_and_b32 v45, 0xffff0000, v33
    v_lshlrev_b32 v46, 16, v34
    v_and_b32 v47, 0xffff0000, v34
    s_waitcnt vmcnt(0) lgkmcnt(0)
    v_lshlrev_b32 v48, 16, v40
    v_and_b32 v49, 0xffff0000, v40
    v_lshlrev_b32 v50, 16, v41
    v_and_b32 v51, 0xffff0000, v41
""")
for s in range(4):
    E(f"v_lshlrev_b32 v52, 16, v{36+s}\nv_add_f32 v{48+s}, v{48+s}, v52")
    for k in range(4):
        E(f"v_fmac_f32 v{48+s}, v{44+k}, v{80+4*k+s}")
for s in range(4): E(f"v_exp_f32 v{48+s}, v{48+s}")
E("s_nop 0")
for s in range(4): E(f"v_add_f32 v{48+s}, 1.0, v{48+s}")
for s in range(4): E(f"v_rcp_f32 v{48+s}, v{48+s}")
E("s_nop 0")
for s in range(4): E(f"v_mul_f32 v{48+s}, v{48+s}, v{36+s}")
for s in range(4): E(f"v_cvt_f64_f32 v[{54+2*s}:{55+2*s}], v{48+s}")
for s in range(4): E(f"ds_add_f64 v31, v[{54+2*s}:{55+2*s}] offset:{128*s}")
E(f"""
    s_mov_b64 exec, s[48:49]
    v_add_u32 v29, 12, v29
    s_branch L_srec
L_snext:
    s_mov_b64 exec, s[48:49]
    s_add_u32 s34, s34, {NW}
    s_cmp_lt_u32 s34, {NCHUNK}
    s_cbranch_scc1 L_scell
    s_branch L_mdone
L_codeend:
.section .rodata,"a"
.p2align 6
.amdhsa_kernel {NAME}
.amdhsa_next_free_vgpr 168
.amdhsa_next_free_sgpr 102
.amdhsa_accum_offset 168
.amdhsa_group_segment_fixed_size 0
.amdhsa_kernarg_size 80
.amdhsa_user_sgpr_count 2
.amdhsa_user_sgpr_kernarg_segment_ptr 1
.amdhsa_system_sgpr_workgroup_id_x 1
.end_amdhsa_kernel
""")
if OPT["drop"]:
    i0 = out.index("L_L0:"); i1 = out.index("L_mdone:")
    pats = {1: ("smfmac",), 2: ("mfma",), 3: ("32x32x8",), 4: ("smfmac",), 5: ("v_exp",)}[OPT["drop"]]
    repl = {4: "    s_nop 2", 5: "    s_nop 1"}.get(OPT["drop"])
    mid = []
    for l in out[i0:i1]:
        if any(x in l for x in pats):
            if repl: mid.append(repl)
        else: mid.append(l)
    if OPT["drop"] == 3: mid = [l.replace("v[88:103] cbsz", "0 cbsz").replace("v[72:87] cbsz", "0 cbsz") for l in mid]
    out = out[:i0] + mid + out[i1:]
if OPT["nochain"]:
    i0 = out.index("L_L0:"); i1 = out.index("L_mdone:")
    out = out[:i0] + [l for l in out[i0:i1] if not any(x in l for x in ("v_exp", "v_pk_", "mfma", "v_rcp", "v_cvt"))] + out[i1:]
open(sys.argv[1], "w").write("\n".join(out) + "\n")
```

```python
import sys, struct

OPT = dict(hb=1, b31=1, split=3, grp=0, allg=0, eag=1, stamps=0, force_safe=0, nogather=0, nosafe=0, prio=2, gsc1=1, osc=1, codepf=1, srcmask=0x3fff00, nrec=0, warm=0,
           nochain=0, probe=-1, pw=-1, pg=-1, gpf=32, early=0, cnt=0, pollmax=200000, pa=7, pb=3, pc=1, p0=3, p1=3, ptime=0,
           dist=2, ldearly=0, drop=0, wgate=0, gate=0, gate2=1, rst=0, rsc1=1, nover=0, p2gate=1, p2sleep=0, hold=0, slate=2, lpos=0, p1st=1, sig=2, gpace=4, gwin=-1, gp=0xf448c, ghold=0, nte=0, ewhen=1, wpf=1, gpe=40, oneb=0, tagl=0, p0e=0, aul=0, t0f=0, pre=0, prelate=0, ntx=0, rpace=-1, p2wait=0)
for a in sys.argv[2:]:
    k, v = a.split("=")
    assert k in OPT, k
    OPT[k] = int(v, 0)

out = []
def E(s=""):
    for line in s.split("\n"):
        line = line.strip()
        if not line:
            continue
        if line.endswith(":") or line.startswith(".") or line.startswith(";"):
            out.append(line)
        else:
            out.append("    " + line)

def f32(x):
    return "0x%08x" % struct.unpack("<I", struct.pack("<f", x))[0]

NAME = "standalone__edge_featured_mpnn_egc__graph_kernel"
LOG2E = 1.4426950408889634
NB = 80; NBUCK = 125; CHUNK = 1280; NCHUNK = 250
NW = 12
G_HALF = 10000 * 256
WS0 = 0
WS_REC = 0x500000
WS_ROW = 0x900000
WS_FL2 = 0x980000
WS_TAG = 0x9c0000
SORTB = CHUNK * 12 + 512
WS_STAMP = 0x1000000
L_CNT = 0; L_SOFF = 512
L_SCNT = 1024
L_CTR = 1536; L_RD = 1540; L_DONE2 = 1544; L_FLAG = 1548; L_NST = 1552; L_GST = 1556; L_GOK = 1560; L_AU = 1564
L_DUM = L_SOFF
L_LIST = 2048
L_LISTC = L_LIST + 4096
SSTR = 272
L_SRC = L_LIST + 8192
SRCB = 80 * SSTR + 32
L_EA = L_SRC + SRCB
L_EAEND = L_EA + 2 * SRCB
L_SORT = L_EA
L_WBV = (L_EAEND + 255) // 256 * 256; L_X = L_WBV + 32768; L_WAU = L_X + 20480; L_C = L_WAU + 32768
LDS = L_C + 1024
L_NODE = L_WBV; NSTR = 648
assert L_NODE + 80 * NSTR <= L_WAU and LDS <= 163840 and L_EA % 16 == 0
NULL_SRC = 0x7fffff00
POLL_MAX = OPT["pollmax"]
LDS_MAX = 20 * POLL_MAX
SC1 = " sc1"
NTE = " nt" if OPT["nte"] else ""
NTX = " nt" if OPT["ntx"] else ""

S_HALF, S_BUCK, S_P = 22, 23, 24
S_SAFE, S_TAG = 25, 26
S_R, S_M, S_IT = 70, 71, 72
S_TAGRAW = 47
ST0 = 74

def ESTAMP(i):
    if OPT["early"] == 1 or (OPT["early"] and i == 0): E(f"s_memrealtime s[{ST0+2*i}:{ST0+2*i+1}]")
def FSTAMP(i):
    if OPT["early"] == 2: E(f"s_memrealtime s[{ST0+2*i}:{ST0+2*i+1}]\ns_waitcnt lgkmcnt(0)")
def STAMP(i):
    if OPT["stamps"] == 2:
        if i == 0: E(f"s_memrealtime s[{ST0}:{ST0+1}]")
        if i == 13: E(f"s_memrealtime s[{ST0+26}:{ST0+27}]\ns_waitcnt lgkmcnt(0)")
        return
    if OPT["early"] and 1 <= i <= 7: return
    if OPT["early"] and i == 0: return ESTAMP(0)
    if OPT["stamps"] or (OPT["probe"] >= 0 and i == OPT["probe"]):
        E(f"s_memrealtime s[{ST0+2*i}:{ST0+2*i+1}]\ns_waitcnt lgkmcnt(0)")
    elif OPT["probe"] >= 0 and i == 0:
        E(f"s_memrealtime s[{ST0}:{ST0+1}]")
NSTAMP = 14
def STAMP_OUT():
    if OPT["stamps"]:
        E(f"""
        s_lshl_b32 s30, s2, 4
        s_add_u32 s30, s30, s3
        s_lshl_b32 s30, s30, 6
        s_add_u32 s30, s30, {WS_STAMP - 0x100000}
        s_load_dwordx2 s[20:21], s[0:1], 72
        s_waitcnt lgkmcnt(0)
        s_mov_b64 exec, -1
        v_mov_b32 v3, s30""")
        for i in (range(NSTAMP) if OPT["stamps"] == 1 else (0, 8, 13)):
            E(f"v_mov_b32 v2, s{ST0+2*i}\nglobal_store_dword v3, v2, s[20:21] offset:{4*i}")
        E("s_waitcnt vmcnt(0)")

A1, A2, IDX, EAC, LN16, ASEL, CW, LN8 = 4, 8, 12, 13, 14, 16, 18, 20
LP, WS4, WN2, EA, XA, WE, OFS, AG, T, N, P, F = 22, 24, 28, 30, 32, 34, 36, 40, 44, 52, 56, 60
D0, D1, G = 72, 88, 104

def finish_tag():
    E(f"""
    s_mul_i32 s{S_TAG+1}, s{S_TAGRAW}, 0x85ebca6b
    s_mul_i32 s{S_TAG}, s{S_TAGRAW}, 0x9e3779b1
    s_add_u32 s{S_TAG+1}, s{S_TAG+1}, 0x5bd1e995
    s_add_u32 s{S_TAG}, s{S_TAG}, 0x7f4a7c15
    """)
def get_tag(lab, q):
    E(f"""
    s_cmp_lg_u32 s{S_SAFE}, 0
    s_cbranch_scc1 L_tag_{lab}
    v_mov_b32 v2, 0
    s_mov_b32 s31, {LDS_MAX}
L_tg_{lab}:
    ds_read_b128 v[{q}:{q+3}], v2 offset:{L_SCNT + 124*4}
    s_sub_u32 s31, s31, 1
    s_cbranch_scc1 L_tag_{lab}
    s_waitcnt lgkmcnt(0)
    v_readfirstlane_b32 s30, v{q+3}
    v_readfirstlane_b32 s{S_TAGRAW}, v{q+1}
    s_cmp_lg_u32 s30, 4
    s_cbranch_scc1 L_tg_{lab}
    """)
    finish_tag()
    E(f"L_tag_{lab}:")

def lds_wait(addr, mask, val, tag, sleep=0, ne=False):
    E(f"""
    v_mov_b32 v2, 0
    s_mov_b32 s31, {LDS_MAX}
L_w_{tag}:
    {f"s_sleep {sleep}" if sleep else ""}
    ds_read_b32 v3, v2 offset:{addr}
    s_sub_u32 s31, s31, 1
    s_cbranch_scc1 L_wd_{tag}
    s_waitcnt lgkmcnt(0)
    v_readfirstlane_b32 s30, v3
    s_and_b32 s30, s30, {mask}
    s_cmp_lg_u32 s30, {val}
    s_cbranch_scc{0 if ne else 1} L_w_{tag}
L_wd_{tag}:
    """)
SCAN = ("row_shr:1 row_mask:0xf bank_mask:0xf bound_ctrl:0", "row_shr:2 row_mask:0xf bank_mask:0xf bound_ctrl:0",
        "row_shr:4 row_mask:0xf bank_mask:0xf bound_ctrl:0", "row_shr:8 row_mask:0xf bank_mask:0xf bound_ctrl:0",
        "row_bcast:15 row_mask:0xa bank_mask:0xf", "row_bcast:31 row_mask:0xc bank_mask:0xf")
def scan(r):
    for m in SCAN:
        E(f"s_nop 1\nv_add_u32_dpp v{r}, v{r}, v{r} {m}")

def main_consts(sm=48):
    E(f"""
    v_and_b32 v2, 15, v1                    ; n'
    v_lshrrev_b32 v3, 4, v1
    v_lshl_add_u32 v3, v2, 2, v3
    v_lshlrev_b32 v3, 1, v3
    v_add_u32 v3, {L_C}, v3
    ds_read_u16 v64, v3                     ; C[0..3][feature 4n'+s]
    ds_read_u16 v65, v3 offset:128
    ds_read_u16 v66, v3 offset:256
    ds_read_u16 v67, v3 offset:384
    v_and_b32 v63, 3, v1                    ; q
    v_lshlrev_b32 v{LN8}, 3, v2
    v_lshlrev_b32 v{LN8+1}, 3, v2
    v_lshlrev_b32 v{LN16}, 4, v2
    v_lshlrev_b32 v{LN16+1}, 4, v2
    v_mov_b32 v{IDX}, 0x8888
    v_bfe_u32 v60, v1, 3, 2                 ; s = (l&31)>>3
    v_bfe_u32 v61, v1, 2, 1                 ; h = (l>>2)&1
    v_lshrrev_b32 v62, 5, v1                ; ha
    v_and_b32 v2, 1, v60
    v_lshlrev_b32 v2, 4, v2
    v_lshlrev_b32 v2, v2, s46
    v_lshrrev_b32 v60, 1, v60               ; s>>1
    v_lshl_add_u32 v3, v61, 1, v60
    v_sub_u32 v63, v63, v62                 ; q - ha : 0 -> A1, 2 -> A2
    v_lshl_add_u32 v3, v63, 1, v3
    v_and_b32 v63, 1, v63
    v_lshl_or_b32 v3, v63, 4, v3
    v_xor_b32 v61, v61, v62
    v_lshl_or_b32 v60, v61, 4, v60
    """)
    mk = [f"s[{sm}:{sm+1}]", f"s[{sm+2}:{sm+3}]", f"s[{sm+4}:{sm+5}]", "vcc"]
    for i in range(8):
        E(f"v_cmp_eq_u32 {mk[i%4]}, {i}, v3")
        if i % 4 == 3:
            for j in range(i-3, i+1):
                E(f"v_cndmask_b32 v{A1+j}, 0, v2, {mk[j%4]}")
    E(f"""
    v_cmp_eq_u32 {mk[0]}, 0, v60
    v_cmp_eq_u32 {mk[1]}, 1, v60
    v_and_b32 v63, 3, v1
    v_lshlrev_b32 v61, 3, v63
    v_cndmask_b32 v{ASEL}, 0, v2, {mk[0]}
    v_cndmask_b32 v{ASEL+1}, 0, v2, {mk[1]}
    v_add_u32 v{EAC}, {L_EA - 2*L_SRC}, v61
    s_lshl_b32 s30, s3, 9
    s_sub_u32 s31, s30, 4096
    s_max_i32 s31, s31, 0
    s_add_u32 s30, s30, s31
    s_add_u32 s30, s30, {L_LIST}
    v_lshrrev_b32 v2, 4, v1
    v_lshl_add_u32 v{LP}, v2, 4, s30
    v_bfe_u32 v3, v1, 2, 2
    v_lshl_add_u32 v{LP+1}, v3, 4, s30
    v_lshl_add_u32 v{LP+1}, v2, 2, v{LP+1}
    s_waitcnt lgkmcnt(0)
    v_lshlrev_b32 v60, 16, v64
    v_lshlrev_b32 v61, 16, v65
    v_lshlrev_b32 v62, 16, v66
    v_lshlrev_b32 v63, 16, v67
    v_mul_f32 v60, s40, v60
    v_mul_f32 v61, s40, v61
    v_mul_f32 v62, s40, v62
    v_mul_f32 v63, s40, v63
    v_cvt_pk_bf16_f32 v{CW}, v60, v61
    v_cvt_pk_bf16_f32 v{CW+1}, v62, v63
    """)

def gload(g, o):
    return f"buffer_load_dwordx4 v[{g}:{g+3}], v{o}, s[36:39], 0 offen" + (SC1 if OPT["gsc1"] else "")
def oadd(o):
    return f"v_lshl_add_u64 v[{o}:{o+1}], v[{o}:{o+1}], 0, v[{LN16}:{LN16+1}]"

def pk_steps(Gc, q, first):
    t = T + 4*(q & 1); h = Gc + 4*q
    if first and q == 0:
        return [f"v_pk_add_f32 v[{P+2*p}:{P+2*p+1}], v[{t+2*p}:{t+2*p+1}], 1.0 op_sel_hi:[1,0]" for p in range(2)]
    r = []
    for p in range(2):
        n = f"v[{Gc+2*p}:{Gc+2*p+1}]" if (first and q == 1) else f"v[{N+2*p}:{N+2*p+1}]"
        r.append(f"v_pk_fma_f32 v[{N+2*p}:{N+2*p+1}], {n}, v[{t+2*p}:{t+2*p+1}], {n}")
    for p in range(2):
        r.append(f"v_pk_fma_f32 v[{N+2*p}:{N+2*p+1}], v[{h+2*p}:{h+2*p+1}], v[{P+2*p}:{P+2*p+1}], v[{N+2*p}:{N+2*p+1}]")
    for p in range(2):
        r.append(f"v_pk_fma_f32 v[{P+2*p}:{P+2*p+1}], v[{P+2*p}:{P+2*p+1}], v[{t+2*p}:{t+2*p+1}], v[{P+2*p}:{P+2*p+1}]")
    return r
def exps(Dc, q):
    t = T + 4*(q & 1)
    return [f"v_exp_f32 v{t+s}, v{Dc+4*s+q}" for s in range(4)]
def weave(main, extra):
    for i, x in enumerate(main):
        E(x)
        for y in extra.get(i, []):
            E(y)
def m_a(Dn): return f"v_mfma_f32_32x32x8_bf16 v[{Dn}:{Dn+15}], v[{ASEL}:{ASEL+1}], v[{XA}:{XA+1}], 0"
def m_e(Dn, abid): return f"v_mfma_f32_16x16x4_4b_bf16 v[{Dn}:{Dn+15}], v[{EA}:{EA+1}], v[{CW}:{CW+1}], v[{Dn}:{Dn+15}] cbsz:2 abid:{abid}"
def m_s(Dn, A, g): return f"v_smfmac_f32_32x32x32_bf16 v[{Dn}:{Dn+15}], v[{A}:{A+3}], v[{g}:{g+7}], v{IDX}"

outofline = []
def emit_to(lst, fn):
    global out
    keep = out; out = []
    fn(); lst += out; out = keep
DIST = OPT["dist"]; EARLY = OPT["ldearly"]
assert not (EARLY and DIST == 4)
def phase(u, loads):
    tag = f"{'L' if loads else 'T'}{u}"
    Dc, Dn = ((D0, D1), (D1, D0))[u & 1]
    gc = G + 16*u; gn = G + 16*((u+1) & 3); gl = G + 16*((u+DIST) & 3)
    ld = loads and not OPT["nogather"]
    kw = (u + DIST + EARLY) & 3
    wsgrp = 128 * ((3 - kw + u + DIST + EARLY) // 4 + 1) if kw == 3 else None
    def addloads(ex, pos):
        if loads:
            ex.setdefault(0, []).append(oadd(OFS)); ex.setdefault(2, []).append(oadd(OFS+2))
        if ld:
            for q in range(4): ex.setdefault(pos[q], []).append(gload(gl+4*q, OFS+q))
    E(f"L_{tag}:")
    SL = OPT["slate"]
    if not SL: E(f"s_waitcnt vmcnt({4*(DIST-2)})")
    E(m_a(Dn))
    for x in exps(Dc, 0): E(x)
    E(m_e(Dn, (u+1) & 3) if SL else m_s(Dn, A1, gn))
    for x in exps(Dc, 1): E(x)
    ex = {0: ["s_waitcnt lgkmcnt(0)"], 2: [f"ds_read_b64 v[{XA}:{XA+1}], v{AG + ((u+2) & 3)} offset:512"]}
    if u % 2 == 0:
        p = AG + ((u+2) & 3)
        ex[0].append(f"v_lshl_add_u64 v[{p}:{p+1}], v[{WN2}:{WN2+1}], 0, v[{LN8}:{LN8+1}]")
    if EARLY: addloads(ex, (1, 3, 5, 6))
    elif loads: ex[1] = [f"ds_read_b128 v[{OFS}:{OFS+3}], v{WS4+kw}"]
    if u == 2:
        ex.setdefault(4, []).append(f"v_lshl_add_u32 v{WE}, v{WE}, 1, v{EAC}")
        if SL: ex.setdefault(7, []).append(f"ds_read_b64 v[{EA}:{EA+1}], v{WE}")
    E(f"s_bitcmp1_b32 s{S_M}, 0\ns_cbranch_scc1 L_{tag}f")
    weave(pk_steps(gc, 0, False) + pk_steps(gc, 1, False), ex)
    E(f"L_{tag}r:")
    def first():
        E(f"L_{tag}f:")
        weave(pk_steps(gc, 0, True) + pk_steps(gc, 1, True), ex)
        E(f"s_branch L_{tag}r")
    emit_to(outofline, first)
    if SL:
        if OPT["ptime"]: E(f"s_memrealtime s[28:29]\ns_mov_b32 m0, s{S_R}")
        E(f"s_waitcnt vmcnt({4*(DIST-2) + (4 if (EARLY and loads) else 0) + (2 if SL == 2 else 0)})")
        E(m_s(Dn, A1, gn))
    else:
        E(m_e(Dn, (u+1) & 3))
    for x in exps(Dc, 2): E(x)
    if SL == 2: E(f"s_waitcnt vmcnt({4*(DIST-2) + (4 if (EARLY and loads) else 0)})")
    if OPT["ptime"]: E(f"s_memrealtime s[30:31]")
    E(m_s(Dn, A2, gn+8))
    for x in exps(Dc, 3): E(x)
    ex = {0: ["s_waitcnt lgkmcnt(0)"], 4: [], 6: [], 7: [f"s_sub_u32 s{S_R}, s{S_R}, 1"], 10: [f"s_lshr_b32 s{S_M}, s{S_M}, 1"], 11: [f"s_bitcmp1_b32 s{S_M}, 0"]}
    if OPT["ptime"]: ex[0] += ["v_writelane_b32 v70, s28, m0", "v_writelane_b32 v71, s30, m0"]
    if not EARLY: addloads(ex, (1, 3, 5, 9) if DIST == 4 else ((1, 3, 5, 7), (1, 2, 3, 4), (4, 6, 8, 10), (2, 5, 8, 10))[OPT['lpos']])
    elif loads: ex[1] = [f"ds_read_b128 v[{OFS}:{OFS+3}], v{WS4+kw}"]
    if u == 1:
        ex[4].append(f"ds_read_b64 v[{WN2}:{WN2+1}], v{LP} offset:{128+64}")
        ex[6].append(f"ds_read_b32 v{WE}, v{LP+1} offset:128")
    if u == 2 and not SL:
        ex[4].append(f"ds_read_b64 v[{EA}:{EA+1}], v{WE}")
    if u == 3:
        ex[4].append(f"ds_read_b64 v[{WN2}:{WN2+1}], v{LP} offset:{128+64+8}")
        ex.setdefault(8, []).append(f"v_lshl_add_u64 v[{LP}:{LP+1}], v[{LP}:{LP+1}], 0, s[44:45]")
    if wsgrp and loads: ex[6].append(f"ds_read_b128 v[{WS4}:{WS4+3}], v{LP} offset:{wsgrp}")
    weave(pk_steps(gc, 2, False) + pk_steps(gc, 3, False), ex)
    E(f"s_cbranch_scc1 L_{tag}z\nL_{tag}y:")
    def fin():
        E(f"""
L_{tag}z:
        v_rcp_f32 v{P}, v{P}
        v_rcp_f32 v{P+1}, v{P+1}
        v_rcp_f32 v{P+2}, v{P+2}
        v_rcp_f32 v{P+3}, v{P+3}
        v_pk_mul_f32 v[{N}:{N+1}], v[{N}:{N+1}], v[{P}:{P+1}]
        v_pk_mul_f32 v[{N+2}:{N+3}], v[{N+2}:{N+3}], v[{P+2}:{P+3}]
        """)
        for s_ in range(4):
            E(f"v_cvt_f64_f32 v[{F+2*s_}:{F+2*s_+1}], v{N+s_}")
            if s_: E(f"ds_add_f64 v{AG+u}, v[{F+2*s_-2}:{F+2*s_-1}] offset:{128*(s_-1)}")
        E(f"ds_add_f64 v{AG+u}, v[{F+6}:{F+7}] offset:384")
        E(f"s_branch L_{tag}y")
    emit_to(outofline, fin)
    if OPT["prio"] == 2:
        E(f"s_bitcmp1_b32 s{S_IT}, s{S_R}\ns_cbranch_scc1 L_{tag}q\nL_{tag}p:")
        def pr():
            E(f"""
L_{tag}q:
            s_setprio 0
            s_cmp_le_u32 s{S_R}, {OPT["pc"]}
            s_cbranch_scc1 L_{tag}p
            s_setprio 1
            s_cmp_le_u32 s{S_R}, {OPT["pb"]}
            s_cbranch_scc1 L_{tag}p
            s_setprio 2
            s_branch L_{tag}p
            """)
        emit_to(outofline, pr)
    if u == 3 and OPT["prio"] == 1:
        E(f"""
        s_add_u32 s{S_IT}, s{S_IT}, 1
        s_setprio 0
        s_cmp_gt_u32 s{S_IT}, 2
        s_cbranch_scc1 L_{tag}p
        s_setprio 1
        s_cmp_eq_u32 s{S_IT}, 2
        s_cbranch_scc1 L_{tag}p
        s_setprio 2
L_{tag}p:
        """)
    if loads:
        E(f"s_cmp_le_u32 s{S_R}, {DIST}")
        if u < 3: E(f"s_cbranch_scc1 L_T{u+1}")
        else: E("s_cbranch_scc0 L_L0")
    else:
        E(f"s_waitcnt vmcnt(0)\ns_cmp_eq_u32 s{S_R}, 0")
        if u < 3: E("s_cbranch_scc1 L_mdone")
        else: E("s_cbranch_scc0 L_T0")

E(f"""
; @launch grid=(256,1,1) block=({64*NW},1,1) lds={LDS}
.amdgcn_target "amdgcn-amd-amdhsa--gfx950"
.text
.globl {NAME}
.p2align 8
.type {NAME},@function
{NAME}:
""")
if OPT["stamps"] == 1 and OPT["early"] != 1:
    for i in range(NSTAMP): E(f"s_mov_b64 s[{ST0+2*i}:{ST0+2*i+1}], 0")
STAMP(0)
E(f"""
    s_load_dwordx16 s[4:19], s[0:1], 0
    s_load_dwordx2 s[20:21], s[0:1], 72
""")
if OPT["codepf"]:
    E(f"""
    s_getpc_b64 s[28:29]
L_pc:
    v_lshlrev_b32 v3, 7, v0
    v_cmp_gt_u32 vcc, L_codeend-L_pc-64, v3
    s_cbranch_vccz L_nopf
    s_mov_b64 exec, vcc
    global_load_dword v164, v3, s[28:29]
    s_mov_b64 exec, -1
L_nopf:
    """)
E(f"""
    v_lshrrev_b32 v2, 6, v0
    v_and_b32 v1, 63, v0
    v_readfirstlane_b32 s3, v2
    {"s_bfe_u32 s%d, s2, 0x10002" % S_HALF if OPT["hb"] else "s_and_b32 s%d, s2, 1" % S_HALF}
    {"s_and_b32 s30, s2, 3" if OPT["hb"] else "s_bfe_u32 s30, s2, 0x20001"}
    {"s_mul_i32 s30, s30, 31" if OPT["b31"] else "s_lshl_b32 s30, s30, 5"}
    s_lshr_b32 s31, s2, 3
    s_add_u32 s{S_BUCK}, s30, s31
    {"s_cmp_eq_u32 s30, 93                    ; 31 buckets per XCD of a half, 32 on the last" if OPT["b31"] else "s_cmp_ge_u32 s2, 256"}
    {"s_subb_u32 s31, s31, 0" if OPT["b31"] else "s_cbranch_scc1 L_end"}
    {"s_cmp_ge_i32 s31, 31" if OPT["b31"] else "s_cmp_ge_u32 s%d, %d" % (S_BUCK, NBUCK)}
    s_cbranch_scc1 L_end
    s_lshl_b32 s{S_P}, s{S_BUCK}, 1
    s_add_u32 s{S_P}, s{S_P}, s{S_HALF}
    s_mov_b32 s{S_SAFE}, 0
L_restart:
    s_cmp_ge_u32 s3, 4
    s_cbranch_scc1 L_nosort
    v_mov_b32 v48, 0
    v_mov_b32 v49, 0
    v_mov_b32 v50, 0
    v_mov_b32 v51, 0
    v_lshlrev_b32 v10, 4, v1
    ds_write_b128 v10, v[48:51] offset:{L_SCNT}
    s_mul_i32 s30, s{S_P}, {CHUNK*4}
    v_lshl_add_u32 v3, v0, 4, s30
    s_add_u32 s30, s30, 4096
    v_lshl_add_u32 v18, v0, 2, s30
    v_lshlrev_b32 v10, 1, v3
    v_lshlrev_b32 v11, 1, v18
    v_mov_b32 v17, {WS_TAG}
    s_waitcnt lgkmcnt(0)
    global_load_dwordx4 v[4:7], v3, s[10:11]{NTE}
    global_load_dword v8, v18, s[10:11]{NTE}
    global_load_dword v43, v17, s[20:21]
""")
def preclear():
    E(f"""
    s_cmp_lg_u32 s{S_SAFE}, 0
    s_cbranch_scc1 L_nopre
    s_mul_i32 s30, s{S_HALF}, {G_HALF}
    s_mul_i32 s31, s{S_BUCK}, {NB*256}
    s_add_u32 s30, s30, s31
    s_add_u32 s30, s30, {4096*(5-OPT["pre"])}
    v_lshl_add_u32 v19, v0, 4, s30
    """)
    for i in range(OPT["pre"]):
        E("global_store_dwordx4 v19, v[48:51], s[20:21] sc1")
        if i + 1 < OPT["pre"]: E("v_add_u32 v19, 4096, v19")
    E("L_nopre:")
if OPT["pre"] and not OPT["prelate"]: preclear()
E(f"""
    {"" if OPT["oneb"] else "s_barrier"}
""")
if OPT["ewhen"] == 0: E(f"""
    global_load_dwordx4 v[12:15], v3, s[8:9]{NTE}
    global_load_dword v16, v18, s[8:9]{NTE}
    global_load_dwordx4 v[52:55], v10, s[6:7]{NTE}
    global_load_dwordx4 v[56:59], v10, s[6:7] offset:16{NTE}
    global_load_dwordx2 v[60:61], v11, s[6:7]{NTE}
""")
E("s_barrier                               ; B0b")
if OPT["ewhen"] == 7: E(f"""
    global_load_dwordx4 v[12:15], v3, s[8:9]{NTE}
    global_load_dword v16, v18, s[8:9]{NTE}
    global_load_dwordx4 v[52:55], v10, s[6:7]{NTE}
    global_load_dwordx4 v[56:59], v10, s[6:7] offset:16{NTE}
    global_load_dwordx2 v[60:61], v11, s[6:7]{NTE}
""")
if OPT["pre"] and OPT["prelate"]: preclear()
E(f"""
    s_branch L_sort
L_nosort:
    s_and_b32 s32, s3, 3                    ; tau
    s_lshr_b32 s33, s3, 3
    v_lshrrev_b32 v2, 4, v1                 ; g
    v_and_b32 v4, 15, v1
    s_lshl_b32 s30, s32, 2
    v_add_u32 v6, s30, v2                   ; row&15
    v_xor_b32 v7, v4, v6
    v_lshlrev_b32 v7, 4, v7
    v_lshl_add_u32 v7, v6, 8, v7
    s_mul_i32 s73, s{S_BUCK}, {NB*256}
    s_mul_i32 s31, s33, {3*4096}
    s_add_u32 s30, s73, s31
    v_add_u32 v7, s30, v7
    v_add_u32 v8, 0x1000, v7
    v_add_u32 v9, 0x2000, v7
    s_lshl_b32 s30, s32, 10
    s_add_u32 s31, s31, s30
    s_add_u32 m0, s31, {L_X}
    v_subrev_u32 v30, 256, v0               ; t = 0..511
    v_lshlrev_b32 v31, 4, v30
    v_mov_b32 v36, 0
    v_mov_b32 v37, 0
    v_mov_b32 v38, 0
    v_mov_b32 v39, 0
    v_add_u32 v40, {L_EA}, v31
    ds_write_b128 v40, v[36:39]
    ds_write_b128 v40, v[36:39] offset:8192
""")
if OPT["wpf"]:
    E(f"""
    s_lshr_b32 s30, s2, 3
    s_lshl_b32 s30, s30, 2
    v_add_u32 v3, s30, v1
    v_and_b32 v3, 127, v3
    s_lshl_b32 s30, s{S_HALF}, 7
    s_cmp_eq_u32 s3, 4
    s_cselect_b32 s31, 0x8000, 0
    s_add_u32 s30, s30, s31
    v_lshl_add_u32 v3, v3, 8, s30
    s_waitcnt lgkmcnt(0)
    s_cmp_lg_u32 s33, 0
    s_cbranch_scc1 L_nowpf
    s_cmp_eq_u32 s3, 5
    s_cselect_b32 s34, s14, s16
    s_cselect_b32 s35, s15, s17
    s_cmp_eq_u32 s3, 7
    s_cselect_b32 s34, s12, s34
    s_cselect_b32 s35, s13, s35
    s_mov_b64 exec, 0xffff
    global_load_dword v167, v3, s[34:35]
    s_mov_b64 exec, -1
L_nowpf:
    """)
    if OPT["wpf"] == 2:
        E(f"""
        s_cmp_lg_u32 s3, 8
        s_cbranch_scc1 L_notch
        s_mul_i32 s30, s{S_P}, {CHUNK*4}
        v_mov_b32 v3, s30
        v_lshlrev_b32 v5, 1, v3
        v_lshlrev_b32 v6, 21, v1
        s_mov_b64 exec, 1
        global_load_dword v167, v3, s[8:9]
        global_load_dword v166, v5, s[6:7]
        s_mov_b64 exec, 31
        global_load_dword v165, v6, s[20:21] sc1
        s_mov_b64 exec, 3
        global_load_dword v164, v6, s[18:19] sc1
        s_mov_b64 exec, -1
L_notch:
        """)
E(f"""
    s_waitcnt lgkmcnt(0)
    {"" if OPT["oneb"] else "s_barrier"}
""")
if not OPT["t0f"]: E(f"""
    global_load_lds_dwordx4 v7, s[4:5]{NTX}
    s_add_u32 m0, m0, 0x1000
    s_cmp_lg_u32 s33, 0
    global_load_lds_dwordx4 v8, s[4:5]{NTX}
    s_cbranch_scc1 L_x2
    s_add_u32 m0, m0, 0x1000
    s_nop 0
    global_load_lds_dwordx4 v9, s[4:5]{NTX}
L_x2:
    s_barrier
""")
else: E(f"""
    s_mov_b32 s29, m0
    s_cmp_lg_u32 s33, 0
    s_cbranch_scc1 L_x2
    global_load_lds_dwordx4 v7, s[4:5]
    s_add_u32 s29, s29, 0x1000
    v_mov_b32 v7, v8
    v_mov_b32 v8, v9
L_x2:
""")
E(f"""
    v_lshrrev_b32 v5, 3, v1
    v_and_b32 v3, 1, v2
    s_and_b32 s30, s3, 1
    s_lshl_b32 s30, s30, 1
    v_or_b32 v3, s30, v3                    ; sigma
    v_lshlrev_b32 v3, 1, v3
    v_and_b32 v20, 7, v1
    v_xor_b32 v3, v3, v20
    v_lshlrev_b32 v3, 4, v3
    v_lshl_add_u32 v10, v5, 8, v3
    s_sub_u32 s28, s3, 4
    s_lshl_b32 s30, s28, 11
    s_lshl_b32 s31, s{S_HALF}, 7
    s_add_u32 s30, s30, s31
    v_add_u32 v10, s30, v10
    v_add_u32 v11, 0x4000, v10
    s_lshl_b32 s28, s28, 10
    s_add_u32 s34, s16, {128*256}
    s_addc_u32 s35, s17, 0
    s_cmp_lg_u32 s3, 11
    s_cbranch_scc1 L_noc
    v_and_b32 v5, 3, v5
    v_lshlrev_b32 v20, 4, v20
    v_lshl_add_u32 v5, v5, 8, v20
    s_add_u32 s31, s31, {256*256}
    s_mov_b32 m0, {L_C}
    v_add_u32 v5, s31, v5
    global_load_lds_dwordx4 v5, s[16:17]
L_noc:
    s_add_u32 m0, s28, {L_WBV}
""")
for ti, base in enumerate((34, 14)):
    for n in range(2):
        E(f"s_nop 0\nglobal_load_lds_dwordx4 v{10+n}, s[{base}:{base+1}]")
        if not (ti == 1 and n == 1):
            E(f"s_add_u32 m0, m0, 0x2000")
if OPT["t0f"]:
    E(f"""
    s_mov_b32 m0, s29
    s_barrier                               ; B0b
    global_load_lds_dwordx4 v7, s[4:5]
    s_add_u32 m0, m0, 0x1000
    s_nop 0
    global_load_lds_dwordx4 v8, s[4:5]
    """)
if OPT["wgate"] or OPT["ewhen"] in (5, 6):
    E(f"""
    v_mov_b32 v7, 0x1000000
    s_mov_b64 exec, 1
    ds_add_u32 v36, v7 offset:{L_CTR}
    s_mov_b64 exec, -1
    """)
STAMP(1)
E(f"""
    v_mov_b32 v32, {NULL_SRC}
    v_mov_b32 v33, v32
    v_mov_b32 v34, v32
    v_mov_b32 v35, v32
""")
def cover(lo, n): return list(range(lo, n - 8192, 8192)) + [n - 8192]
for o in cover(16384, L_EAEND - L_EA): E(f"ds_write_b128 v40, v[36:39] offset:{o}")
for o in cover(0, SRCB): E(f"ds_write_b128 v31, v[32:35] offset:{L_SRC + o}")
E(f"""
    v_and_b32 v32, 3, v30           ; quarter
    v_bfe_u32 v33, v30, 3, 3
    v_lshrrev_b32 v34, 5, v30
    s_and_b32 s30, s3, 3
    s_add_u32 s30, s30, 16
    s_cmp_ge_u32 s3, 8
    s_cselect_b32 s31, 7, 3
    s_cselect_b32 s29, 6, 12
    s_cselect_b64 vcc, -1, 0
    v_and_b32 v33, s31, v33
    v_mov_b32 v35, s30
    v_cndmask_b32 v34, v34, v35, vcc
    v_lshl_add_u32 v32, v34, 2, v32
    v_bfe_u32 v34, v30, 2, 1
    v_mul_u32_u24 v35, {NSTR - SSTR}, v34
    v_mul_u32_u24 v41, {L_NODE - L_SRC}, v34
    v_mul_u32_u24 v42, {L_SRC + 80*SSTR - L_DUM}, v34
    v_lshlrev_b32 v43, 4, v34
    v_add_u32 v35, {SSTR}, v35
    v_add_u32 v41, {L_SRC}, v41
    v_sub_u32 v42, {L_SRC + 80*SSTR}, v42
    v_sub_u32 v43, 16, v43
    v_lshlrev_b32 v33, 2, v33
    v_mad_u32_u24 v41, v32, v35, v41
    v_mad_u32_u24 v41, v33, v43, v41
    v_lshlrev_b32 v35, 5, v35
    v_mul_u32_u24 v34, 6, v43
    v_sub_u32 v35, v35, v34
    v_add_u32 v34, 2, v33
    v_cmp_gt_u32 s[48:49], 6, v33
    v_cmp_gt_u32 s[50:51], 6, v34
    v_cmp_gt_u32 s[52:53], s29, v33
    v_cmp_gt_u32 s[54:55], s29, v34
    v_cndmask_b32 v44, v35, 0, s[48:49]
    v_cndmask_b32 v46, v35, 0, s[50:51]
    v_add_u32 v44, v41, v44
    v_lshl_add_u32 v46, v43, 1, v46
    v_add_u32 v46, v41, v46
    v_add_u32 v45, v44, v43
    v_add_u32 v47, v46, v43
    v_cndmask_b32 v44, v42, v44, s[52:53]
    v_cndmask_b32 v45, v42, v45, s[52:53]
    v_cndmask_b32 v46, v42, v46, s[54:55]
    v_cndmask_b32 v47, v42, v47, s[54:55]
    ds_write_b128 v31, v[44:47] offset:{L_LIST}
    s_cmp_ge_u32 s3, 6
    s_cbranch_scc1 L_pf3
    v_mul_u32_u24 v42, {SSTR}, v30
    v_add_u32 v42, {L_SRC}, v42
    v_lshlrev_b32 v41, 2, v30
    ds_write_b32 v41, v42 offset:{L_CNT}
L_pf3:
    v_bfe_u32 v3, v1, 2, 2                  ; r
    v_lshl_add_u32 v5, v2, 3, v3            ; 8g + r
    v_lshrrev_b32 v3, 1, v3
    v_and_b32 v6, 1, v2
    v_lshl_or_b32 v3, v6, 1, v3             ; sigma
    v_xor_b32 v3, s32, v3
    v_lshlrev_b32 v3, 5, v3
    v_lshl_add_u32 v10, v5, 7, v3
    v_and_b32 v3, 3, v1
    v_lshl_add_u32 v10, v3, 3, v10
    s_mul_i32 s31, s33, {L_WAU - L_WBV}
    s_add_u32 s31, s31, {L_WBV}
    v_add_u32 v10, s31, v10
    v_xor_b32 v3, v2, v4
    v_lshlrev_b32 v3, 4, v3
    v_lshl_add_u32 v12, v4, 8, v3
    v_add_u32 v12, {L_X}, v12
    v_xor_b32 v13, 64, v12
    v_xor_b32 v14, 0x80, v12
    v_xor_b32 v15, 0xc0, v12
    s_mul_i32 s30, s{S_HALF}, {G_HALF}
    s_add_u32 s30, s30, s73
    s_lshl_b32 s31, s32, 6
    s_add_u32 s30, s30, s31
    v_lshlrev_b32 v11, 10, v2
    v_lshl_add_u32 v11, v4, 2, v11
    v_add_u32 v11, s30, v11
    s_lshl_b32 s31, s32, 5
    s_add_u32 s31, s31, {L_NODE}
    v_mul_u32_u24 v16, {NSTR}, v4
    v_lshl_add_u32 v16, v2, 3, v16
    v_add_u32 v16, s31, v16
    s_mov_b32 s40, {f32(-LOG2E)}
    s_mov_b32 s42, {f32(2.0**32)}
    s_mov_b32 s44, 0x07060100
    s_mov_b32 s45, 0x07060302
    s_mov_b32 s46, 0x3f80
    v_mov_b32 v17, {f32(2.0**-100)}
    v_mov_b32 v19, 1
    v_mov_b32 v18, 0
""")
def staged():
    if not OPT["tagl"]: get_tag("g", 160)
    E(f"""
    s_waitcnt vmcnt(0)
    s_mov_b64 exec, 1
    ds_add_u32 v18, v19 offset:{L_CTR}
    s_mov_b64 exec, -1
    """)
    STAMP(2)
    lds_wait(L_CTR, 0xff, 8, "g1")
if OPT["t0f"]:
    E(f"""
    s_waitcnt vmcnt(2)
    s_mov_b64 exec, 1
    ds_add_u32 v18, v19 offset:{L_AU}
    s_mov_b64 exec, -1
    s_or_b32 s30, s33, s{S_SAFE}
    s_cbranch_scc0 L_t0
    """)
staged()
STAMP(3)
NP = 8
RA = 72; RB = RA + 4*NP; RAD = RB + 4*NP
J3N, J12, J3N2, CELL, ROWA, FOUR, L0M, ACC, ENT, CAD = 156, 157, 158, 159, 160, 161, 162, 163, 164, 166
def rec_setup():
    E(f"""
    v_and_b32 v3, 15, v1                    ; j
    v_lshrrev_b32 v2, 4, v1
    v_lshl_add_u32 v{CELL}, v2, 3, v3
    s_lshl_b32 s30, s29, 5
    v_add_u32 v{CELL}, s30, v{CELL}
    s_lshl_b32 s30, s{S_BUCK}, 3
    s_add_u32 s30, s30, {WS_ROW}
    v_lshl_add_u32 v{ROWA}, v{CELL}, 10, s30
    v_cmp_gt_u32 s[66:67], {NP}, v3
    v_cmp_gt_u32 vcc, {NCHUNK}, v{CELL}
    v_mov_b32 v{ENT}, 0
    s_and_b64 s[66:67], s[66:67], vcc
    s_mov_b64 exec, s[66:67]
    global_load_dwordx2 v[{ENT}:{ENT+1}], v{ROWA}, s[20:21] sc1
    s_mov_b64 exec, -1
    v_mul_u32_u24 v{CELL}, {SORTB//4}, v{CELL}
    v_add_u32 v{CELL}, {WS_REC//4}, v{CELL}
    v_mul_u32_u24 v{J12}, 12, v3
    v_mul_u32_u24 v{J3N}, 3, v3
    v_not_b32 v{J3N}, v{J3N}
    v_subrev_u32 v{J3N2}, 48, v{J3N}
    v_subrev_u32 v{L0M}, 1, v3
    v_ashrrev_i32 v{L0M}, 31, v{L0M}
    v_mov_b32 v{FOUR}, 4
    """)
WF = 20; XF = 52; AC = 132
def wreads(ks):
    for t in range(2):
        for rd in range(2):
            r = WF + 16*t + 4*ks + 2*rd
            E(f"ds_read_b64_tr_b16 v[{r}:{r+1}], v10 offset:{t*16384 + ks*4096 + rd*512}")
def xread(rt, ks):
    r = XF + 16*rt + 4*ks
    return f"ds_read_b128 v[{r}:{r+3}], v{12+ks} offset:{rt*4096}"
def mf(rt, ks, transposed):
    for t in range(2):
        a = XF + 16*rt + 4*ks; w = WF + 16*t + 4*ks; d = AC + 8*(rt % 3) + 4*t
        c = "0" if ks == 0 else f"v[{d}:{d+3}]"
        if transposed: a, w = w, a
        E(f"v_mfma_f32_16x16x32_bf16 v[{d}:{d+3}], v[{a}:{a+3}], v[{w}:{w+3}], {c}")
def gemm(transposed, finish, before_first):
    for ks in range(3):
        E(xread(0, ks)); wreads(ks)
    E("s_waitcnt lgkmcnt(10)"); mf(0, 0, transposed)
    E(xread(0, 3)); wreads(3)
    E("s_waitcnt lgkmcnt(10)"); mf(0, 1, transposed)
    for ks in range(4): E(xread(1, ks))
    E("s_waitcnt lgkmcnt(9)"); mf(0, 2, transposed)
    for ks in range(4): E(xread(2, ks))
    E("s_waitcnt lgkmcnt(8)"); mf(0, 3, transposed)
    for ks in range(4): E(xread(3, ks))
    if OPT["p0e"]:
        E("s_nop 3"); finish(0)
    E("s_waitcnt lgkmcnt(8)")
    for ks in range(4):
        mf(1, ks, transposed); E(xread(4, ks))
    E(f"""
    s_mov_b64 exec, 1
    ds_add_u32 v18, v19 offset:{L_RD}
    s_mov_b64 exec, -1
    """)
    before_first()
    if not OPT["p0e"]: finish(0)
    E("s_waitcnt lgkmcnt(0)")
    for rt in range(2, 5):
        for ks in range(4): mf(rt, ks, transposed)
        finish(rt-1)
    finish(4)
def pack(rt):
    b = AC + 8*(rt % 3); h = b + 4
    for r in range(4): E(f"v_mul_f32 v{b+r}, s40, v{b+r}")
    for r in range(4): E(f"v_fma_f32 v{h+r}, v{h+r}, s42, v17")
    E(f"""
    v_cvt_pk_bf16_f32 v4, v{b}, v{b+1}
    v_cvt_pk_bf16_f32 v5, v{b+2}, v{b+3}
    v_xor_b32 v2, 0x80008000, v4
    v_xor_b32 v3, 0x80008000, v5
    v_sub_u32_sdwa v{h}, v{h}, sext(v2) dst_sel:DWORD dst_unused:UNUSED_PAD src0_sel:DWORD src1_sel:WORD_0
    v_sub_u32_sdwa v{h+1}, v{h+1}, sext(v2) dst_sel:DWORD dst_unused:UNUSED_PAD src0_sel:DWORD src1_sel:WORD_1
    v_sub_u32_sdwa v{h+2}, v{h+2}, sext(v3) dst_sel:DWORD dst_unused:UNUSED_PAD src0_sel:DWORD src1_sel:WORD_0
    v_sub_u32_sdwa v{h+3}, v{h+3}, sext(v3) dst_sel:DWORD dst_unused:UNUSED_PAD src0_sel:DWORD src1_sel:WORD_1
    """)
    w = (OPT["gp"] >> (4*(4-rt))) & 15 if OPT["gp"] else OPT["gpace"]
    if 0 <= w < 4*rt: E(f"s_waitcnt vmcnt({w})")
    if OPT["pre"] and rt == 5 - OPT["pre"]: lds_wait(L_SCNT + 126*4, 0xff, 4, "pre")
    if OPT["ghold"] == rt + 1:
        E("v_mov_b32 v6, v2\nv_mov_b32 v7, v3"); lds_wait(L_CTR, 0xff00, 0x400, "gh", sleep=1); E("v_mov_b32 v2, v6\nv_mov_b32 v3, v7")
    for r in range(4):
        E(f"v_perm_b32 v{h+r}, v{h+r}, v{4 + (r>>1)}, s{44 + (r&1)}")
        if OPT["gwin"] >= 0: E(f"s_waitcnt vmcnt({OPT['gwin']})")
        E(f"global_store_dword v11, v{h+r}, s[20:21] offset:{256*r} sc1")
    if rt < 4: E("v_add_u32 v11, 0x1000, v11")
def fin(rt):
    a = AC + 8*(rt % 3); u = a + 4
    for r in range(4): E(f"v_mul_f32 v{a+r}, s40, v{a+r}")
    for r in range(4): E(f"v_mul_f32 v{u+r}, s42, v{u+r}")
    E(f"""
    v_cvt_pk_bf16_f32 v{a}, v{a}, v{a+1}
    v_cvt_pk_bf16_f32 v{a+1}, v{a+2}, v{a+3}
    v_cvt_f64_f32 v[2:3], v{u}
    v_cvt_f64_f32 v[4:5], v{u+1}
    v_cvt_f64_f32 v[6:7], v{u+2}
    v_cvt_f64_f32 v[8:9], v{u+3}
    ds_write_b64 v16, v[{a}:{a+1}] offset:512
    ds_write2_b64 v16, v[2:3], v[4:5] offset0:0 offset1:16
    ds_write2_b64 v16, v[6:7], v[8:9] offset0:32 offset1:48
    """)
    if rt < 4: E(f"v_add_u32 v16, {16*NSTR}, v16")
E(f"""
    s_cmp_lg_u32 s33, 0
    s_cbranch_scc1 L_gemm2
    s_cmp_lg_u32 s{S_SAFE}, 0
    s_cbranch_scc1 L_nog1
    s_setprio 2
""")
if OPT["t0f"]:
    E("L_t0:\ns_setprio 2")
    lds_wait(L_AU, 0xff, 8, "t0")
    STAMP(3)
    for ks in range(3):
        E(xread(0, ks)); wreads(ks)
    E("s_waitcnt lgkmcnt(10)"); mf(0, 0, False)
    E(xread(0, 3)); wreads(3)
    for ks in range(1, 4):
        E(f"s_waitcnt lgkmcnt({15 - 5*ks})"); mf(0, ks, False)
    E("s_nop 7"); pack(0)
    get_tag("t", 160)
    E(f"""
    s_waitcnt vmcnt(4)
    s_mov_b64 exec, 1
    ds_add_u32 v18, v19 offset:{L_CTR}
    s_mov_b64 exec, -1
    """)
    lds_wait(L_CTR, 0xff, 8, "t1")
    for rt in range(1, 4):
        for ks in range(4): E(xread(rt, ks))
    E("s_waitcnt lgkmcnt(8)")
    for ks in range(4):
        mf(1, ks, False); E(xread(4, ks))
    E(f"""
    s_mov_b64 exec, 1
    ds_add_u32 v18, v19 offset:{L_RD}
    s_mov_b64 exec, -1
    s_nop 3
    """)
    pack(1)
    E("s_waitcnt lgkmcnt(0)")
    for ks in range(4): mf(2, ks, False)
    for rt in range(3, 5):
        for ks in range(4): mf(rt, ks, False)
        pack(rt-1)
    pack(4)
else: gemm(False, pack, lambda: lds_wait(L_CTR, {1: 0x80000, 2: 0xc0000}[OPT["hold"]], 0, "hold", sleep=1, ne=True) if OPT["hold"] else None)
E("s_setprio 0")
if OPT["gate"] or OPT["gate2"] >= 3:
    E(f"""
    s_mov_b64 exec, 1
    ds_add_u32 v18, v19 offset:{L_GST}
    s_mov_b64 exec, -1
    """)
STAMP(4)
if OPT["tagl"]: get_tag("g", 160)
main_consts()
E(f"""
    s_lshl_b32 s30, s{S_P}, 7
    s_add_u32 s30, s30, {WS_FL2}
    v_mov_b32 v60, s30
    v_mov_b32 v62, s{S_TAG}
    v_mov_b32 v63, s{S_TAG+1}
    v_mov_b32 v2, 0
    v_mov_b32 v3, 1
    s_lshl_b32 s30, s32, 13
    s_lshl_b32 s31, s{S_HALF}, 7
    s_add_u32 s30, s30, s31
    s_add_u32 s30, s30, {WS_FL2}
    v_lshl_add_u32 v64, v1, 8, s30
    s_mul_i32 s30, s32, {2560*256}
    s_lshr_b32 s31, s2, 3
    s_mul_i32 s31, s31, {160*128}
    s_add_u32 s30, s30, s31
    v_lshl_add_u32 v65, v1, 7, s30
    {'' if OPT['gpe'] else 'v_min_u32 v65, %d, v65' % (G_HALF - 128)}
    s_mul_i32 s30, s{S_HALF}, {G_HALF}
    v_add_u32 v65, s30, v65
    s_mov_b64 exec, 1
    s_waitcnt vmcnt(0)
    ds_add_rtn_u32 v61, v2, v3 offset:{L_DONE2}
    s_waitcnt lgkmcnt(0)
    v_readfirstlane_b32 s30, v61
    s_cmp_lg_u32 s30, 3
    s_cbranch_scc1 L_nofl
    global_store_dwordx2 v60, v[62:63], s[20:21] sc1
    ds_add_u32 v2, v3 offset:{L_DONE2}
L_nofl:
""")
STAMP(5)
if OPT["p2gate"]:
    E("s_mov_b64 exec, -1")
    lds_wait(L_CTR, 0xff0000, 0x080000, "pg", sleep=1)
    E("s_mov_b32 exec_hi, 0")
if OPT["p2wait"]: E(f"s_sleep {OPT['p2wait']}")
STAMP(6)
def gready(lab):
    if OPT["gpe"]: E(f"s_cmp_lg_u32 s73, 0\ns_cbranch_scc1 L_gr{lab}")
    if OPT["gpf"]:
        E(f"""
        {"s_bfm_b64 exec, %d, 0" % OPT["gpf"] if OPT["gpf"] < 64 else "s_mov_b64 exec, -1"}
        global_load_dword v35, v65, s[20:21] sc1
        """)
    E(f"""
L_gr{lab}:
    s_mov_b64 exec, 1
    v_mov_b32 v2, 0
    v_mov_b32 v3, 1
    ds_add_u32 v2, v3 offset:{L_GOK}
    """)
E(f"""
    s_cmp_eq_u32 s32, 3
    s_cselect_b32 exec_lo, 0x1fffffff, -1
    {"" if OPT["p1st"] else "s_mov_b64 s[66:67], exec"}
    {"" if OPT["p1st"] else "s_branch L_p2n"}
    global_load_dwordx2 v[66:67], v64, s[20:21] sc1
    s_waitcnt vmcnt(0)
    v_cmp_ne_u64 s[66:67], s[{S_TAG}:{S_TAG+1}], v[66:67]
""")
if OPT["gpe"]:
    n = OPT["gpe"]
    E(f"""
    s_mov_b32 s73, 0
    s_lshr_b32 s30, s2, 3
    s_bitcmp1_b32 s66, s30
    s_cbranch_scc1 L_nogpe
    s_mov_b32 s73, 1
    s_bitcmp1_b32 exec_lo, s30
    s_cbranch_scc0 L_nogpe
    """)
    for k in range(0, n, 64):
        E("s_mov_b64 exec, -1")
        if k: E(f"v_add_u32 v65, 8192, v65")
        if n - k < 64: E(f"s_bfm_b64 exec, {n-k}, 0")
        E(f"global_load_dword v{(35, 68, 69)[k//64]}, v65, s[20:21] sc1")
    E("L_nogpe:")
E(f"""
    s_cmp_lg_u64 s[66:67], 0
    s_cbranch_scc1 L_p2n
""")
gready("a")
E("L_p2n:\ns_mov_b64 exec, -1")
STAMP(7)
E(f"""
    s_branch L_b4
L_nog1:
    s_mov_b64 exec, 1
    ds_add_u32 v18, v19 offset:{L_RD}
    s_mov_b64 exec, -1
    s_branch L_rec
L_gemm2:
""")
def stage_au():
    E(f"""
    v_lshrrev_b32 v5, 3, v1
    v_bfe_u32 v3, v1, 4, 1
    v_lshlrev_b32 v3, 1, v3
    v_and_b32 v4, 7, v1
    v_xor_b32 v3, v3, v4
    v_lshlrev_b32 v3, 4, v3
    v_lshl_add_u32 v6, v5, 8, v3
    s_lshl_b32 s30, s{S_HALF}, 7
    s_and_b32 s31, s3, 1
    s_lshl_b32 s31, s31, 14
    s_add_u32 s30, s30, s31
    v_add_u32 v6, s30, v6
    v_xor_b32 v7, 64, v6
    v_add_u32 v8, 2048, v6
    v_add_u32 v9, 3072, v7
    v_add_u32 v7, 1024, v7
    s_lshl_b32 s30, s32, 13
    s_add_u32 m0, s30, {L_WAU}
    s_cmp_lt_u32 s32, 2
    s_cselect_b32 s34, s16, s12
    s_cselect_b32 s35, s17, s13
    global_load_lds_dwordx4 v6, s[34:35]
    global_load_lds_dwordx4 v7, s[34:35] offset:1024
    global_load_lds_dwordx4 v8, s[34:35] offset:2048
    global_load_lds_dwordx4 v9, s[34:35] offset:3072
    s_add_u32 m0, m0, 4096
    s_add_u32 s34, s34, 8192
    s_addc_u32 s35, s35, 0
    global_load_lds_dwordx4 v6, s[34:35]
    global_load_lds_dwordx4 v7, s[34:35] offset:1024
    global_load_lds_dwordx4 v8, s[34:35] offset:2048
    global_load_lds_dwordx4 v9, s[34:35] offset:3072
""")
if not OPT['aul']: stage_au()
for rt in range(5):
    for ks in range(4): E(xread(rt, ks))
E(f"""
    s_mov_b64 exec, 1
    ds_add_u32 v18, v19 offset:{L_RD}
    s_mov_b64 exec, -1
""")
if OPT['aul']:
    lds_wait(L_RD, 8, 8, "aul"); stage_au()
E(f"""
    s_mov_b64 exec, 1
    s_waitcnt vmcnt(0)
    ds_add_u32 v18, v19 offset:{L_RD}
    s_mov_b64 exec, -1
    s_sub_u32 s29, s3, 4
""")
rec_setup()
lds_wait(L_RD, 0xff, 12, "rd")
for ks in range(4): wreads(ks)
for ks in range(4):
    E(f"s_waitcnt lgkmcnt({12 - 4*ks})"); mf(0, ks, True)
for rt in range(1, 5):
    for ks in range(4): mf(rt, ks, True)
    fin(rt-1)
fin(4)
if OPT["tagl"]: get_tag("h", 144)
STAMP(4)
E(f"""
    s_branch L_rec
L_sort:
""")
STAMP(1)
E(f"""
    s_mov_b32 s40, {f32(-LOG2E)}
    s_mov_b32 s46, 0x3f80
    s_cmp_lg_u32 s{S_SAFE}, 0
    s_cbranch_scc1 L_sortskip
    v_mov_b32 v21, 1
    v_mov_b32 v20, 3
    s_mov_b32 s31, 52429
    s_movk_i32 s32, -20
    v_lshlrev_b32 v9, 3, v1
    v_lshlrev_b32 v33, 4, v0
    s_mul_i32 s30, s{S_P}, {SORTB}
    s_add_u32 s30, s30, {WS_REC + 4096}
    v_add_u32 v32, s30, v33
    v_add_u32 v34, 8192, v32
    s_lshl_b32 s30, s{S_P}, 10
    s_add_u32 s30, s30, {WS_ROW}
    v_lshl_add_u32 v42, v1, 4, s30
    s_mov_b32 s34, {LDS_MAX}
    s_setprio 3
""")
E6 = OPT["ewhen"] in (0, 6, 7)
if OPT["ewhen"] == 6:
    E("v_mov_b32 v19, v3")
    lds_wait(L_CTR, 0xff000000, 0x08000000, "ew")
    E("v_mov_b32 v3, v19\ns_mov_b32 s31, 52429")
    E(f"""
    global_load_dwordx4 v[12:15], v3, s[8:9]{NTE}
    global_load_dword v16, v18, s[8:9]{NTE}
    global_load_dwordx4 v[52:55], v10, s[6:7]{NTE}
    global_load_dwordx4 v[56:59], v10, s[6:7] offset:16{NTE}
    global_load_dwordx2 v[60:61], v11, s[6:7]{NTE}
""")
E(f"""
    s_waitcnt vmcnt({1 + OPT['pre'] + 5*E6})
""")
STAMP(2)
FSTAMP(1)
for i in range(5):
    E(f"""
    v_mul_u32_u24 v{22+i}, s31, v{4+i}
    v_lshrrev_b32 v{22+i}, 22, v{22+i}
    v_lshlrev_b32 v{22+i}, 2, v{22+i}        ; bucket*4
    ds_add_rtn_u32 v{27+i}, v{22+i}, v20 offset:{L_SCNT}
    """)
E(f"""
    s_mov_b64 exec, 1
    s_cmp_lg_u32 s3, 0
    s_cbranch_scc1 L_notag
    s_waitcnt vmcnt({OPT['pre'] + 5*E6})
    ds_write_b32 v48, v43 offset:{L_SCNT + 125*4}
L_notag:
    ds_add_u32 v48, v21 offset:{L_SCNT + 127*4}
    s_mov_b64 exec, -1
""")
if OPT["ewhen"] == 1: E(f"""
    global_load_dwordx4 v[12:15], v3, s[8:9]{NTE}
    global_load_dword v16, v18, s[8:9]{NTE}
    global_load_dwordx4 v[52:55], v10, s[6:7]{NTE}
    global_load_dwordx4 v[56:59], v10, s[6:7] offset:16{NTE}
    global_load_dwordx2 v[60:61], v11, s[6:7]{NTE}
""")
E(f"""
L_s1:
    ds_read_b32 v38, v48 offset:{L_SCNT + 127*4}
    ds_read_b64 v[36:37], v9 offset:{L_SCNT}
    s_sub_u32 s34, s34, 1
    s_cbranch_scc1 L_s1d
    s_waitcnt lgkmcnt(0)
    v_readfirstlane_b32 s30, v38
    s_cmp_lg_u32 s30, 4
    s_cbranch_scc1 L_s1
L_s1d:
""")
FSTAMP(2)
E(f"""
    v_add3_u32 v39, v36, v37, 2
    v_add3_u32 v38, v36, v37, 2
    v_readlane_b32 s{S_TAGRAW}, v37, 62
""")
fill = []
for i in range(5):
    fill += [f"v_mad_i32_i24 v{4+i}, v{22+i}, s32, v{4+i}", f"v_lshlrev_b32 v{4+i}, 24, v{4+i}"]
for k, m in enumerate(SCAN):
    E(f"v_add_u32_dpp v39, v39, v39 {m}")
    for x in fill[2*k:2*k+2]: E(x)
E(f"""
    v_sub_u32 v40, v39, v38
    v_add3_u32 v41, v40, v36, 1
    s_mov_b32 s30, {L_SORT}
    v_lshl_add_u32 v38, v40, 2, s30
    v_lshl_add_u32 v39, v41, 2, s30
    ds_write_b64 v9, v[38:39] offset:{L_SOFF}
""")
for i in range(5):
    E(f"ds_read_b32 v{22+i}, v{22+i} offset:{L_SOFF}")
finish_tag()
E(f"""
    s_cmp_lg_u32 s3, 0
    s_cbranch_scc1 L_nopub
    s_and_b32 s35, s{S_TAG+1}, 0xff000000
    v_mov_b32 v45, s{S_TAG}
    v_mov_b32 v47, s{S_TAG}
    v_lshl_or_b32 v44, v36, 12, v40
    v_lshl_or_b32 v46, v37, 12, v41
    v_or_b32 v44, s35, v44
    v_or_b32 v46, s35, v46
    global_store_dwordx4 v42, v[44:47], s[20:21] sc1
    {"s_waitcnt vmcnt(1)" if OPT["ewhen"] in (0, 1, 6, 7) else ""}
    s_branch {"L_pub" if OPT["ewhen"] in (0, 1, 6, 7) else "L_nochk"}
L_nopub:
    s_cmp_lg_u32 s3, 1
    s_cbranch_scc1 L_nochk
    v_mov_b32 v44, s{S_TAG+1}
    s_mov_b32 exec_hi, 0x7fffffff
    ds_add_u32 v38, v44
    ds_add_u32 v39, v44
    s_mov_b32 exec_hi, -1
L_nochk:
""")
if 3 <= OPT["ewhen"] <= 5:
    E("v_mov_b32 v19, v3")
    if OPT["ewhen"] == 3: lds_wait(L_CTR, 0xff, 8, "ew")
    elif OPT["ewhen"] == 5: lds_wait(L_CTR, 0xff000000, 0x08000000, "ew")
    else: lds_wait(L_CTR, 0xff, 0, "ew", ne=True)
    E("v_mov_b32 v3, v19")
if 2 <= OPT["ewhen"] <= 5: E(f"""
    global_load_dwordx4 v[12:15], v3, s[8:9]{NTE}
    global_load_dword v16, v18, s[8:9]{NTE}
    global_load_dwordx4 v[52:55], v10, s[6:7]{NTE}
    global_load_dwordx4 v[56:59], v10, s[6:7] offset:16{NTE}
    global_load_dwordx2 v[60:61], v11, s[6:7]{NTE}
""")
E(f"""
    s_waitcnt vmcnt(0)
L_pub:
""")
STAMP(4)
FSTAMP(3)
for i in range(5): E(f"v_lshl_or_b32 v{4+i}, v{12+i}, 8, v{4+i}")
E("s_waitcnt lgkmcnt(0)")
for i in range(5):
    E(f"""
    v_lshl_add_u32 v{27+i}, v{27+i}, 2, v{22+i}
    v_add3_u32 v{12+i}, v{52+2*i}, v{53+2*i}, v{4+i}
    ds_write2_b32 v{27+i}, v{52+2*i}, v{53+2*i} offset0:2 offset1:3
    ds_write_b32 v{27+i}, v{4+i} offset:4
    ds_sub_u32 v{22+i}, v{12+i}
    """)
E(f"""
    s_mov_b64 exec, 1
    ds_add_u32 v48, v21 offset:{L_SCNT + 126*4}
    s_mov_b64 exec, -1
""")
FSTAMP(4)
E(f"""
    s_mov_b32 s34, {LDS_MAX}
L_s2:
    ds_read_b32 v38, v48 offset:{L_SCNT + 126*4}
    {f"ds_read_b32 v39, v48 offset:{L_CTR}" if OPT["wgate"] else ""}
    ds_read_b128 v[72:75], v33 offset:{L_SORT}
    s_sub_u32 s34, s34, 1
    s_cbranch_scc1 L_s2d
    s_waitcnt lgkmcnt(1)
    v_readfirstlane_b32 s30, v38
""")
if OPT["wgate"]:
    E(f"""
    v_readfirstlane_b32 s31, v39
    s_lshr_b32 s31, s31, 24
    s_add_u32 s30, s30, s31
    """)
E(f"""
    s_cmp_lg_u32 s30, {12 if OPT["wgate"] else 4}
    s_cbranch_scc1 L_s2
L_s2d:
""")
FSTAMP(5)
E(f"""
    ds_read_b128 v[76:79], v33 offset:{L_SORT + 4096}
    ds_read_b128 v[80:83], v33 offset:{L_SORT + 8192}
    ds_read_b128 v[84:87], v33 offset:{L_SORT + 12288}
    s_waitcnt lgkmcnt(3)
    global_store_dwordx4 v32, v[72:75], s[20:21] offset:-4096 sc1
    s_waitcnt lgkmcnt(2)
    global_store_dwordx4 v32, v[76:79], s[20:21] sc1
    s_waitcnt lgkmcnt(1){f" vmcnt({OPT['rpace']})" if OPT['rpace'] >= 0 else ""}
    global_store_dwordx4 v34, v[80:83], s[20:21] offset:-4096 sc1
    s_cmp_eq_u32 s3, 3
    s_cselect_b32 exec_hi, 0, -1
    s_waitcnt lgkmcnt(0){f" vmcnt({OPT['rpace']})" if OPT['rpace'] >= 0 else ""}
    global_store_dwordx4 v34, v[84:87], s[20:21] sc1
    s_mov_b32 exec_hi, -1
""")
FSTAMP(6)
for k in range(4): E(f"ds_write_b128 v33, v[48:51] offset:{L_SORT + 4096*k}")
STAMP(3)
FSTAMP(7)
E(f"""
    s_branch L_sortdone
L_sortskip:
    s_waitcnt vmcnt(0)
L_sortdone:
    s_mov_b32 s29, s3
""")
rec_setup()
E(f"""
L_rec:
""")
lds_wait(L_CTR, 0xff, 8, "r0")
main_consts()
STAMP(5)
E(f"""
    s_cmp_ge_u32 s3, 4
    s_cbranch_scc1 L_nod2
    v_mov_b32 v2, 0
    v_mov_b32 v3, 0x100
    s_mov_b64 exec, 1
    s_waitcnt vmcnt(0)
    ds_add_u32 v2, v3 offset:{L_CTR}
    s_mov_b64 exec, -1
L_nod2:
    s_cmp_lg_u32 s{S_SAFE}, 0
    s_cbranch_scc1 L_recskip
    s_lshr_b32 s35, s{S_TAG+1}, 24
    s_mov_b64 exec, s[66:67]
    s_mov_b32 s34, {POLL_MAX}
    s_branch L_p1c
L_p1:
    global_load_dwordx2 v[{ENT}:{ENT+1}], v{ROWA}, s[20:21] sc1
L_p1c:
    s_sub_u32 s34, s34, 1
    s_cbranch_scc1 L_toobig
    s_waitcnt vmcnt(0)
    v_cmp_ne_u32 vcc, s{S_TAG}, v{ENT+1}
    v_cmp_ne_u32_sdwa s[48:49], v{ENT}, s35 src0_sel:BYTE_3 src1_sel:DWORD
    s_or_b64 exec, vcc, s[48:49]
    s_cbranch_scc1 L_p1
    s_mov_b64 exec, -1
""")
STAMP(6)
if OPT["cnt"]: E(f"s_sub_u32 s{ST0+2}, {POLL_MAX+1}, s34\ns_mov_b32 s34, {POLL_MAX}")
E(f"""
    v_and_b32 v{CAD}, 0xfff, v{ENT}
    v_bfe_u32 v{ENT}, v{ENT}, 12, 12            ; 3*count
    v_add_lshl_u32 v{CAD}, v{CAD}, v{CELL}, 2
    v_cmp_ne_u32 vcc, 0, v{ENT}
    s_sub_u32 s30, 0, s{S_TAG+1}
    v_mov_b32 v2, s30
    v_cndmask_b32 v{ENT+1}, 0, v2, vcc
    v_cmp_lt_u32 vcc, 96, v{ENT}
    v_cmp_lt_u32 s[68:69], 48, v{ENT}
    s_cbranch_vccnz L_toobig
""")
for p in range(NP):
    E(f"""
    v_add_co_u32_dpp v2, vcc, v{ENT}, v{J3N} row_newbcast:{p} row_mask:0xf bank_mask:0xf
    v_add_u32_dpp v{RAD+p}, v{CAD}, v{J12} row_newbcast:{p} row_mask:0xf bank_mask:0xf
    s_mov_b64 s[{48+2*p}:{49+2*p}], vcc
    """)
lds_wait(L_CTR, 0xff00, 0x400, "r1")
if OPT["gate"]: lds_wait(L_GST, 0xff, 4, "gt")
if OPT["gate2"] == 1 and not OPT["split"]:
    if not OPT["allg"]: E("s_cmp_lt_u32 s3, 4\ns_cbranch_scc1 L_wd_g2")
    lds_wait(L_DONE2, 0xff, 5, "g2")
if OPT["gate2"] == 3:
    E("s_cmp_lt_u32 s3, 4\ns_cbranch_scc1 L_wd_g2")
    lds_wait(L_GST, 0xff, 4, "g2")
if OPT["gate2"] in (2, 4):
    E(f"""
    s_cmp_lt_u32 s3, 4
    s_cbranch_scc1 L_g2d
    s_mov_b32 s31, {POLL_MAX}
L_g2:
    ds_read_b128 v[60:63], v2 offset:{L_CTR}
    {f"ds_read_b32 v61, v2 offset:{L_GST}" if OPT["gate2"] == 4 else ""}
    s_sub_u32 s31, s31, 1
    s_cbranch_scc1 L_g2d
    s_waitcnt lgkmcnt(0)
    v_readfirstlane_b32 s30, v62
    v_readfirstlane_b32 s28, v60
    v_readfirstlane_b32 s29, v61
    s_cmp_eq_u32 s30, 5
    s_cbranch_scc1 L_g2d
    {"s_cmp_lg_u32 s29, 4" if OPT["gate2"] == 4 else ""}
    {"s_cbranch_scc1 L_g2" if OPT["gate2"] == 4 else ""}
    s_and_b32 s28, s28, 0xc0000
    s_cbranch_scc0 L_g2
L_g2d:
    """)
E(f"""
    s_or_b32 s68, s68, s69
    s_lshr_b32 s69, s68, 16
    s_or_b32 s68, s68, s69
""")
def mask2(p): return f"v_add_co_u32_dpp v2, vcc, v{ENT}, v{J3N2} row_newbcast:{p} row_mask:0xf bank_mask:0xf"
def loads(ps, lab):
    E(f"s_and_b32 s30, s68, {sum(1 << p for p in ps)}\ns_cbranch_scc0 L_nx{lab}")
    for p in ps:
        r = RB + 4*p
        E(f"""
        s_bitcmp1_b32 s68, {p}
        s_cbranch_scc0 L_nx{lab}{p}
        {mask2(p)}
        s_mov_b64 exec, vcc
        global_load_dwordx4 v[{r}:{r+3}], v{RAD+p}, s[20:21] offset:192 sc1
        s_mov_b64 exec, -1
L_nx{lab}{p}:
        """)
    E(f"L_nx{lab}:")
    for p in ps:
        r = RA + 4*p
        E(f"""
        s_mov_b64 exec, s[{48+2*p}:{49+2*p}]
        global_load_dwordx4 v[{r}:{r+3}], v{RAD+p}, s[20:21]{SC1 if (OPT["rsc1"] or lab != "m") else ""}
        """)
    E("s_mov_b64 exec, -1")
SP = OPT["split"]
GROUPS = {0: ((0,1,2,3),(4,5),(6,7)), 4: ((0,1,2,3),(4,5),(6,7)), 5: ((0,1,2),(3,4),(5,6,7)), 6: ((0,1,2,3),(4,5),(6,7)), 3: ((0,1,2),(3,4,5),(6,7)), 2: ((0,1),(2,3,4,5),(6,7)), 1: ((0,),(1,2,3,4),(5,6,7))}[SP]
if OPT['grp'] == 1: GROUPS = ((0,1),(2,3,4),(5,6,7))
if OPT['grp'] == 2: GROUPS = ((0,1),(2,3),(4,5),(6,7))
loads(range(SP or NP), "m")
if OPT["eag"]:
    E(f"""
    v_mov_b32 v2, 0
    ds_read_b32 v3, v2 offset:{L_DONE2}
    s_waitcnt lgkmcnt(0)
    v_readfirstlane_b32 s73, v3
    s_cmp_lg_u32 s73, 5
    s_cbranch_scc1 L_neag
    """)
    loads(range(SP, NP), "e")
    E("L_neag:")
def issued():
    if OPT["p2gate"]:
        E(f"""
        v_mov_b32 v2, 0
        v_mov_b32 v3, 0x10000
        s_mov_b64 exec, 1
        ds_add_u32 v2, v3 offset:{L_CTR}
        s_mov_b64 exec, -1
        """)
if not OPT["sig"]: issued()
STAMP(7)
def rank(r, m):
    E(f"""
    s_mov_b64 exec, {m}
    v_mul_u32_u24_sdwa v{r}, v{FOUR}, v{r+1} dst_sel:DWORD dst_unused:UNUSED_PAD src0_sel:DWORD src1_sel:BYTE_3
    v_and_b32 v{r+1}, {OPT['srcmask']}, v{r+1}
    ds_add_rtn_u32 v{r}, v{r}, v{FOUR} offset:{L_CNT}
    """)
def put(r, m):
    E(f"""
    s_mov_b64 exec, {m}
    v_lshlrev_b32 v2, 1, v{r}
    ds_write_b32 v{r}, v{r+1}
    ds_write_b64 v2, v[{r+2}:{r+3}] offset:{L_EA - 2*L_SRC}
    """)
retries = []
pending = []
for gi, grp in enumerate(GROUPS):
    bits = sum(1 << p for p in grp); m32 = bits | (bits << 16)
    if SP and grp[0] == SP:
        if OPT["eag"]: E("s_cmp_eq_u32 s73, 5\ns_cbranch_scc1 L_eagd")
        lds_wait(L_DONE2, 0xff, 5, "g2")
        loads(range(SP, NP), "n")
        E("L_eagd:")
        if OPT["sig"] == 9: issued()
    last = NP if (not SP or grp[0] >= SP) else SP
    first_ = 0 if (not SP or grp[0] < SP) else SP
    E(f"""
L_ck{gi}:
    s_mov_b32 vcc_lo, {m32}
    s_mov_b32 vcc_hi, {m32}
    v_cndmask_b32 v{ACC}, 0, v{ENT+1}, vcc
    s_and_b32 s30, s68, {bits}
    s_cbranch_scc1 L_xa{gi}
L_xb{gi}:
    """)
    def xacc():
        E(f"L_xa{gi}:\ns_waitcnt vmcnt({last - first_})")
        for p in grp:
            r = RB + 4*p
            E(f"""
            {mask2(p)}
            s_mov_b64 exec, vcc
            v_add3_u32 v{ACC}, v{ACC}, v{r+1}, v{r+2}
            v_add_u32 v{ACC}, v{ACC}, v{r+3}
            s_mov_b64 exec, -1
            """)
        E(f"s_branch L_xb{gi}")
    emit_to(outofline, xacc)
    for p in grp:
        r = RA + 4*p
        E(f"""
        s_waitcnt vmcnt({last-1-p})
        s_mov_b64 exec, s[{48+2*p}:{49+2*p}]
        v_and_b32 v{r}, v{r}, v{L0M}
        v_add3_u32 v{ACC}, v{ACC}, v{r+2}, v{r+3}
        v_add3_u32 v{ACC}, v{ACC}, v{r}, v{r+1}
        """)
    E("s_mov_b64 exec, -1\ns_nop 0")
    for k in (1, 2, 4, 8):
        E(f"v_add_u32_dpp v{ACC}, v{ACC}, v{ACC} row_ror:{k} row_mask:0xf bank_mask:0xf")
        if k < 8: E("s_nop 1")
    E(f"v_cmp_ne_u32 vcc, 0, v{ACC}\ns_cbranch_vccnz L_rt{gi}")
    if OPT["rst"]: STAMP(1+gi)
    if OPT["sig"] == gi + 1: issued()
    def retry():
        E(f"L_rt{gi}:\ns_sub_u32 s34, s34, 1\ns_cbranch_scc1 {'L_toobig' if (gi < OPT['sig'] if OPT['sig'] != 9 else grp[0] < SP) else 'L_giveup'}")
        loads(grp, f"r{gi}_")
        E(f"s_waitcnt vmcnt(0)\ns_branch L_ck{gi}")
    emit_to(outofline, retry)
    for p in grp: rank(RA + 4*p, f"s[{48+2*p}:{49+2*p}]")
    E(f"s_and_b32 s30, s68, {bits}\ns_cbranch_scc1 L_ya{gi}\nL_yb{gi}:")
    def xput():
        E(f"L_ya{gi}:")
        for p in grp:
            r = RB + 4*p
            E(f"""
            s_bitcmp1_b32 s68, {p}
            s_cbranch_scc0 L_yn{p}
            s_mov_b64 exec, -1
            {mask2(p)}
            """)
            rank(r, "vcc")
            E("s_waitcnt lgkmcnt(0)")
            put(r, "vcc")
            E(f"L_yn{p}:")
        E(f"s_branch L_yb{gi}")
    emit_to(outofline, xput)
    for k, p in enumerate(grp):
        E(f"s_waitcnt lgkmcnt({len(grp) - 1 - k + 2*k})")
        put(RA + 4*p, f"s[{48+2*p}:{49+2*p}]")
    E("s_mov_b64 exec, -1")
E(f"""
    {f"s_sub_u32 s{ST0+4}, {POLL_MAX+1}, s34" if OPT["cnt"] else ""}
    s_branch L_b4
L_toobig:
    s_mov_b64 exec, -1
""")
issued()
E(f"""
L_giveup:
    v_mov_b32 v2, 0
    ds_write_b32 v2, v{FOUR} offset:{L_FLAG}
L_recskip:
    s_waitcnt vmcnt(0)
L_b4:
    s_setprio {OPT["p0"] if OPT["prio"] == 2 else 0}
    s_mul_i32 s30, s{S_HALF}, {G_HALF}
    {f"s_add_u32 s30, s30, {WS0}" if WS0 else ""}
    s_add_u32 s36, s20, s30
    s_addc_u32 s37, s21, 0
    s_mov_b32 s38, {OPT['nrec'] or G_HALF}
    s_mov_b32 s39, 0x20000
    s_mov_b32 s44, 128
    s_mov_b32 s45, 128
    ds_read_b128 v[60:63], v{LP}
    ds_read_b64 v[{AG}:{AG+1}], v{LP} offset:64
    ds_read_b64 v[{WN2}:{WN2+1}], v{LP} offset:72
    ds_read_b32 v{WE}, v{LP+1}
    s_waitcnt lgkmcnt(0)
    v_lshl_add_u64 v[{AG}:{AG+1}], v[{AG}:{AG+1}], 0, v[{LN8}:{LN8+1}]
    v_lshl_add_u32 v{WE}, v{WE}, 1, v{EAC}
""")
if OPT["warm"]:
    E(f"""
    s_barrier
    s_lshr_b32 s30, s2, 3
    s_mul_i32 s30, s30, 98304
    v_lshl_add_u32 v2, v0, 7, s30
    buffer_load_dword v3, v2, s[36:39], 0 offen sc1
    s_waitcnt vmcnt(0)
    s_sleep 40
    """)
STAMP(8)
E(f"""
    s_barrier                               ; B4
    s_cmp_lg_u32 s{S_SAFE}, 0
    s_cbranch_scc1 L_safe
    ds_read_b128 v[{T}:{T+3}], v60
    ds_read_b128 v[{T+4}:{T+7}], v61
    ds_read_b64 v[{XA}:{XA+1}], v{AG} offset:512
    ds_read_b64 v[{EA}:{EA+1}], v{WE}
    s_lshr_b32 s30, s3, 2
    s_cmp_lg_u32 s30, 1
    s_cbranch_scc1 L_nopoll
    s_mov_b64 exec, s[66:67]
    s_cbranch_execz L_p2e
    s_mov_b32 s31, {POLL_MAX}
L_p2:
    global_load_dwordx2 v[66:67], v64, s[20:21] sc1
    s_sub_u32 s31, s31, 1
    s_cbranch_scc1 L_p2d
    s_waitcnt vmcnt(0)
    v_cmp_ne_u64 vcc, s[{S_TAG}:{S_TAG+1}], v[66:67]
    s_and_b64 exec, exec, vcc
    s_cbranch_scc0 L_p2d
    {f"s_sleep {OPT['p2sleep']}" if OPT['p2sleep'] else ""}
    s_branch L_p2
L_p2d:
""")
gready("b")
E(f"""
L_p2e:
    s_mov_b64 exec, -1
L_nopoll:
    s_cmp_lt_u32 s3, {NW-2}
    s_cbranch_scc1 L_nobuild
    v_lshlrev_b32 v2, 3, v1
    v_mov_b32 v3, 0
    ds_read_b64 v[72:73], v2 offset:{L_CNT}
    ds_read_b32 v79, v3 offset:{L_FLAG}
    v_mul_u32_u24 v74, {2*SSTR}, v1
    v_add_u32 v74, {L_SRC + 96}, v74
    v_add_u32 v75, {SSTR}, v74
    v_mul_u32_u24 v82, {2*NSTR}, v1
    s_and_b32 s32, s3, 1
    s_mul_i32 s30, s32, {NSTR}
    s_add_u32 s30, s30, {L_NODE}
    v_add_u32 v82, s30, v82
    v_mov_b32 v83, v82
    s_mul_i32 s30, s32, {SSTR}
    v_add_u32 v80, s30, v74
    v_add_u32 v81, 16, v80
    s_waitcnt lgkmcnt(0)
    v_sub_u32 v72, v72, v74 clamp
    v_sub_u32 v73, v73, v75 clamp
    v_max_u32 v76, v72, v73
    v_cmp_lt_u32 vcc, 160, v76
    v_cmp_ne_u32 s[48:49], 0, v79
    v_add_u32 v74, 12, v72
    v_add_u32 v75, 12, v73
    s_or_b64 vcc, vcc, s[48:49]
    s_cbranch_scc1 L_bad
    v_add_u32 v72, 28, v72
    v_add_u32 v73, 28, v73
    v_lshrrev_b32 v74, 5, v74
    v_lshrrev_b32 v75, 5, v75
    v_lshrrev_b32 v72, 5, v72
    v_lshrrev_b32 v73, 5, v73
    v_sub_u32 v72, v72, v74
    v_sub_u32 v73, v73, v75
    v_lshl_or_b32 v72, v72, 16, v74
    v_lshl_or_b32 v73, v73, 16, v75
    v_add_u32 v76, v72, v73
    v_add_u32 v77, v72, v73
""")
scan(77)
E(f"""
    s_cmp_eq_u32 s32, 0
    s_cselect_b64 vcc, -1, 0
    v_readlane_b32 s30, v77, 63
    v_cndmask_b32 v76, v73, v76, vcc
    v_cndmask_b32 v72, v73, v72, vcc
    v_sub_u32 v77, v77, v76
    s_and_b32 s50, s30, 0xffff
    s_add_u32 s31, s50, 3
    s_lshr_b32 s31, s31, 2
    s_sub_u32 s51, 0, s50
    s_and_b32 s51, s51, 3
    s_lshr_b32 s30, s30, 16
    s_add_u32 s30, s30, 3
    s_sub_u32 s30, s30, s51
    s_lshr_b32 s30, s30, 2
    s_lshl_b32 s33, s31, 1
    s_add_u32 s33, s33, s30
    s_cmp_gt_u32 s33, 104
    s_cbranch_scc1 L_bad
    s_lshl_b32 s30, s30, 8
    s_or_b32 s29, s30, s31
    v_and_b32 v74, 0xffff, v72
    v_and_b32 v76, 0xffff, v77
    s_mov_b32 s34, {L_LISTC}
    s_mov_b32 s35, {L_LIST + 384}
""")
def slotaddr():
    E(f"""
    v_add_u32 v78, 16, v76
    v_bfe_u32 v79, v76, 2, 2
    v_lshl_add_u32 v79, v79, 10, s34
    v_lshrrev_b32 v84, 5, v78
    v_lshl_add_u32 v79, v84, 7, v79
    v_bfe_u32 v84, v78, 4, 1
    v_lshl_add_u32 v79, v84, 3, v79
    v_lshrrev_b32 v84, 2, v76
    v_cmp_gt_u32 vcc, 32, v76
    v_lshl_add_u32 v84, v84, 9, s35
    v_and_b32 v78, 3, v76
    v_cndmask_b32 v79, v79, v84, vcc
    v_lshl_add_u32 v79, v78, 4, v79
    """)
E("""
L_bf:
    v_cmp_ne_u32 vcc, 0, v74
    s_and_b64 exec, exec, vcc
    s_cbranch_execz L_bfd
""")
slotaddr()
E(f"""
    ds_write_b64 v79, v[80:81]
    ds_write_b64 v79, v[82:83] offset:64
    v_add_u32 v80, 32, v80
    v_add_u32 v81, 32, v81
    v_add_u32 v76, 1, v76
    v_subrev_u32 v74, 1, v74
    s_branch L_bf
L_bfd:
    s_mov_b64 exec, -1
    v_lshrrev_b32 v77, 16, v77
    s_sub_u32 s52, 0, s31
    s_and_b32 s52, s52, 3
    s_add_u32 s53, s31, s52
    s_lshl_b32 s52, s52, 3
    v_subrev_u32 v73, s51, v77              ; j' = j - spare
    v_subrev_u32 v74, s52, v73
    v_lshrrev_b32 v76, 3, v73
    v_add_u32 v76, s31, v76
    v_and_b32 v75, 4, v73
    v_lshrrev_b32 v78, 5, v74
    v_lshl_add_u32 v78, v78, 2, s53
    v_bfe_u32 v79, v74, 2, 2
    v_add_u32 v78, v78, v79
    v_cmp_gt_u32 vcc, s52, v73
    v_lshrrev_b32 v74, 2, v74
    v_and_b32 v74, 4, v74
    v_cndmask_b32 v76, v78, v76, vcc        ; slot
    v_cndmask_b32 v75, v74, v75, vcc
    v_and_b32 v78, 3, v73
    v_cmp_gt_u32 s[54:55], s51, v77
    v_lshl_add_u32 v76, v76, 2, v78
    v_add_u32 v78, s50, v77
    v_cndmask_b32 v76, v76, v78, s[54:55]
""")
slotaddr()
E(f"""
    v_cmp_lt_u32 vcc, 0xffff, v72
    v_add_u32 v75, v79, v75
    s_andn2_b64 exec, vcc, s[54:55]
    ds_write2_b32 v75, v80, v82 offset0:0 offset1:16
    s_and_b64 exec, vcc, s[54:55]
    ds_write_b64 v79, v[80:81]
    ds_write_b64 v79, v[82:83] offset:64
    s_mov_b64 exec, -1
    s_mul_i32 s29, s29, s32
    s_add_u32 s29, s29, 0x10000
    s_branch L_built
L_bad:
    s_mov_b32 s29, 0x1010000
L_built:
    v_mov_b32 v2, s29
    s_mov_b64 exec, 1
    ds_add_u32 v3, v2 offset:{L_NST}
    s_add_u32 s30, s{S_P}, s32
    s_cmp_lg_u32 s30, 0
    s_cbranch_scc1 L_notw
    v_mov_b32 v2, s{S_TAG}
    v_mov_b32 v3, {WS_TAG}
    global_store_dword v3, v2, s[20:21] sc1
L_notw:
    s_mov_b64 exec, -1
L_nobuild:
    s_waitcnt lgkmcnt(0)
""")
assert DIST == 2 and not EARLY
E(m_a(D0))
for o in range(T, T+8, 2): E(oadd(o))
E(m_e(D0, 0))
lds_wait(L_GOK, 0xff, 4, "gok")
if OPT["stamps"] == 2: E(f"s_memrealtime s[{ST0+16}:{ST0+17}]")
if not OPT["nogather"]:
    for q in range(8): E(gload(G + 4*q, T+q))
STAMP(9)
E(f"""
    s_mov_b32 s31, {LDS_MAX}
    s_waitcnt vmcnt(4)
""")
E(m_s(D0, A1, G)); E(m_s(D0, A2, G+8))
E(f"""
L_wn:
    ds_read_b32 v3, v2 offset:{L_NST}
    ds_read_b128 v[{WS4}:{WS4+3}], v{LP} offset:{128*((DIST+EARLY)//4)}
    s_sub_u32 s31, s31, 1
    s_cbranch_scc1 L_gosafe
    s_waitcnt lgkmcnt(0)
    v_readfirstlane_b32 s30, v3
    s_bitcmp1_b32 s30, 17
    s_cbranch_scc0 L_wn
    s_cmp_gt_u32 s30, {0 if OPT["force_safe"] else 0xffffff}
    s_cbranch_scc1 L_gosafe
    s_and_b32 s31, s30, 0xff
    s_bfe_u32 s30, s30, 0x80008
    s_and_b32 s28, s3, 3
    s_sub_u32 s32, 0, s31
    s_and_b32 s32, s32, 3
    s_add_u32 s33, s28, s32
    s_sub_i32 s33, s33, 4
    s_lshl_b32 s29, s33, 1
    s_sub_i32 s29, s30, s29
    s_max_i32 s29, s29, 0
    s_min_i32 s29, s29, 2
    s_cmp_lt_i32 s33, 0
    s_cselect_b32 s29, 0, s29
    s_lshl_b32 s32, s32, 1
    s_sub_i32 s30, s30, s32
    s_sub_i32 s30, s30, s28
    s_add_i32 s30, s30, 3
    s_max_i32 s30, s30, 0
    s_lshr_b32 s30, s30, 2
    s_add_u32 s30, s30, s29
    s_sub_u32 s32, s31, s28
    s_add_u32 s32, s32, 3
    s_lshr_b32 s32, s32, 2
    s_lshl_b32 s32, s32, 1
    s_add_u32 s30, s30, s32
    s_lshr_b32 s32, s3, 2
    s_lshl_b32 s32, s32, 1
    s_sub_i32 s30, s30, s32
    s_max_i32 s30, s30, 0
    s_cmp_ge_u32 s3, 8
    s_cbranch_scc1 L_nc
    s_min_u32 s30, s30, 2
    s_add_u32 s{S_R}, s30, 12
    s_cmp_ge_u32 s3, s31
    s_cselect_b32 s30, 0x2000, 0
    s_or_b32 s{S_M}, s30, 0x5041
    s_branch L_nd
L_nc:
    s_add_u32 s{S_R}, s30, 6
    s_sub_i32 s31, s31, s3
    s_add_i32 s31, s31, 3
    s_max_i32 s31, s31, 0
    s_lshr_b32 s31, s31, 2
    s_lshl_b32 s31, s31, 1
    s_add_u32 s31, s31, 7
    s_lshl_b32 s31, -1, s31
    s_or_b32 s{S_M}, s31, 0x55555541
L_nd:
    s_mov_b32 s{S_IT}, {(1 << OPT["pa"]) | (1 << OPT["pb"]) | (1 << OPT["pc"]) if OPT["prio"] == 2 else 0}
""")
if OPT["prio"]: E(f"s_setprio {OPT['p1']}")
STAMP(10)
if OPT["ptime"]: E("v_mov_b32 v70, 0\nv_mov_b32 v71, 0")
if OPT["stamps"] == 1: E(f"s_memtime s[{ST0+24}:{ST0+25}]\ns_waitcnt lgkmcnt(0)")
for u in range(4): phase(u, True)
for u in range(4): phase(u, False)
E(f"""
L_mdone:
    s_waitcnt lgkmcnt(0)
""")
STAMP(11)
if OPT["ptime"]:
    E(f"""
    s_lshl_b32 s30, s2, 4
    s_add_u32 s30, s30, s3
    s_lshl_b32 s30, s30, 8
    s_add_u32 s30, s30, 0xc00000
    v_lshl_add_u32 v2, v1, 2, s30
    s_mov_b32 exec_hi, 0
    global_store_dword v2, v70, s[20:21]
    global_store_dword v2, v71, s[20:21] offset:128
    s_mov_b64 exec, -1
    """)
if OPT["stamps"] == 1:
    E(f"s_memtime s[28:29]\ns_waitcnt lgkmcnt(0)\ns_sub_u32 s{ST0+24}, s28, s{ST0+24}")
E(f"""
    v_lshrrev_b32 v2, 5, v0
    v_and_b32 v3, 31, v0
    v_mul_u32_u24 v4, {NSTR}, v2
    v_and_b32 v5, 1, v3
    v_lshl_add_u32 v4, v5, 8, v4
    v_lshrrev_b32 v5, 1, v3
    v_lshl_add_u32 v4, v5, 3, v4
    v_add_u32 v4, {L_NODE}, v4
    s_mul_i32 s30, s{S_BUCK}, {NB*256}
    s_lshl_b32 s31, s{S_HALF}, 7
    s_add_u32 s30, s30, s31
    v_lshlrev_b32 v3, 2, v3
    v_lshl_add_u32 v5, v2, 8, v3
    v_add_u32 v5, s30, v5
    v_add_u32 v6, {24*256}, v5
    v_add_u32 v7, {48*256}, v5
    v_add_u32 v8, {72*256}, v5
    s_mov_b32 s32, {f32(2.0**32)}
    s_mov_b32 s34, {f32(-LOG2E * 2.0**-32)}
    v_mov_b32 v9, 0x207
    s_barrier                               ; B5
""")
OSC = {0: "", 1: " sc1", 2: " nt"}[OPT["osc"]]
def epi(us):
    for u in us: E(f"ds_read_b64 v[{12+4*u}:{13+4*u}], v4 offset:{24*NSTR*u}\nds_read_b64 v[{14+4*u}:{15+4*u}], v4 offset:{24*NSTR*u + 128}")
    E("s_waitcnt lgkmcnt(0)")
    for u in us: E(f"v_cvt_f32_f64 v{28+2*u}, v[{12+4*u}:{13+4*u}]\nv_cvt_f32_f64 v{29+2*u}, v[{14+4*u}:{15+4*u}]")
    for u in us: E(f"v_pk_mul_f32 v[{36+2*u}:{37+2*u}], v[{28+2*u}:{29+2*u}], s[34:35] op_sel_hi:[1,0]")
    for u in us: E(f"v_exp_f32 v{36+2*u}, v{36+2*u}\nv_exp_f32 v{37+2*u}, v{37+2*u}")
    E("v_pk_add_f32 v[10:11], v[28:29], v[30:31]")
    for u in us: E(f"v_pk_fma_f32 v[{36+2*u}:{37+2*u}], v[{36+2*u}:{37+2*u}], s[32:33], s[32:33] op_sel_hi:[1,0,0]")
    for u in us: E(f"v_rcp_f32 v{36+2*u}, v{36+2*u}\nv_rcp_f32 v{37+2*u}, v{37+2*u}")
    E("v_pk_add_f32 v[10:11], v[10:11], v[32:33]")
    for u in us: E(f"v_pk_mul_f32 v[{36+2*u}:{37+2*u}], v[{28+2*u}:{29+2*u}], v[{36+2*u}:{37+2*u}]")
    for u in us: E(f"v_cvt_pk_bf16_f32 v{44+u}, v{36+2*u}, v{37+2*u}\nglobal_store_dword v{5+u}, v{44+u}, s[18:19]{OSC}")
    for u in us[3:]: E(f"v_pk_add_f32 v[10:11], v[10:11], v[{28+2*u}:{29+2*u}]")
E("s_cmp_ge_u32 s3, 4\ns_cbranch_scc1 L_e3")
epi([0, 1, 2, 3])
E("s_branch L_e4\nL_e3:")
epi([0, 1, 2])
E(f"""
L_e4:
    v_add_f32 v10, v10, v11
    v_cmp_class_f32 vcc, v10, v9
    v_mov_b32 v2, 0
    s_cmp_lg_u32 s{S_SAFE}, 0
    s_cbranch_scc1 L_fin
    {"s_branch" if OPT["nosafe"] else "s_cbranch_vccz"} L_e5
    ds_write_b32 v2, v9 offset:{L_FLAG}
    s_waitcnt lgkmcnt(0)
L_e5:
    s_barrier                               ; B6
    ds_read_b32 v2, v2 offset:{L_FLAG}
    s_waitcnt lgkmcnt(0)
    v_readfirstlane_b32 s30, v2
    s_cmp_lg_u32 s30, 0
    s_cbranch_scc1 L_gosafe
L_fin:
""")
if OPT["stamps"]:
    E("s_waitcnt vmcnt(0)"); STAMP(13); STAMP_OUT()
if OPT["probe"] >= 0:
    T_ = ST0 + 2*OPT["probe"]
    E(f"""
    s_cmp_lg_u32 s3, {OPT["pw"]}
    s_cbranch_scc1 L_end
    s_cmp_lg_u32 s2, {OPT["pg"] if OPT["pg"] >= 0 else "s2"}
    s_cbranch_scc1 L_end
    s_sub_u32 s30, s{T_}, s{ST0}
    s_lshl_b32 s30, s30, 2
    s_add_u32 s30, s30, 3000
    s_min_u32 s30, s30, 20000
L_spin:
    s_memrealtime s[28:29]
    s_waitcnt lgkmcnt(0)
    s_sub_u32 s28, s28, s{ST0}
    s_cmp_lt_u32 s28, s30
    s_cbranch_scc1 L_spin
    """)
E(f"""
L_end:
    s_endpgm
L_gosafe:
    s_mov_b32 s{S_SAFE}, 8
    s_setprio 0
    s_waitcnt vmcnt(0) lgkmcnt(0)
    s_barrier
    s_branch L_restart
""")
out += outofline
for r in retries: E(r)
E(f"""
L_safe:
    v_and_b32 v2, 15, v1
    v_lshlrev_b32 v3, 3, v2
    v_add_u32 v3, {L_C}, v3
""")
for k in range(4):
    for s in range(4):
        E(f"ds_read_u16 v{80+4*k+s}, v3 offset:{128*k + 2*s}")
E("s_waitcnt lgkmcnt(0)")
for i in range(16):
    E(f"v_lshlrev_b32 v{80+i}, 16, v{80+i}\nv_mul_f32 v{80+i}, s40, v{80+i}")
E(f"""
    v_lshrrev_b32 v24, 4, v1
    v_mul_u32_u24 v24, 3, v24               ; 3*quarter
    s_movk_i32 s33, {NSTR}
    v_add_u32 v25, {L_NODE}, v{LN8}
    s_mov_b32 s34, s3
    s_mov_b32 s35, {POLL_MAX}
L_scell:
    s_lshl_b32 s30, s34, 10
    s_lshl_b32 s31, s{S_BUCK}, 3
    s_add_u32 s30, s30, s31
    s_add_u32 s30, s30, {WS_ROW}
    v_mov_b32 v26, s30
    global_load_dword v32, v26, s[20:21] sc1
    s_mul_i32 s30, s34, {SORTB//4}
    s_add_u32 s30, s30, {WS_REC//4}
    s_waitcnt vmcnt(0)
    v_bfe_u32 v28, v32, 12, 12              ; 3*count
    v_and_b32 v27, 0xfff, v32
    v_add_u32 v27, s30, v27
L_sver:
    v_mov_b32 v29, v1
    v_mov_b32 v31, 0
L_sv1:
    v_cmp_ge_u32 vcc, v28, v29
    s_and_saveexec_b64 s[48:49], vcc
    s_cbranch_execz L_sv2
    v_add_lshl_u32 v30, v27, v29, 2
    global_load_dword v32, v30, s[20:21] sc1
    s_waitcnt vmcnt(0)
    v_add_u32 v31, v31, v32
    s_mov_b64 exec, s[48:49]
    v_add_u32 v29, 64, v29
    s_branch L_sv1
L_sv2:
    s_mov_b64 exec, s[48:49]
""")
scan(31)
E(f"""
    s_nop 0
    v_readlane_b32 s30, v31, 63
    s_cmp_eq_u32 s30, s{S_TAG+1}
    s_cbranch_scc1 L_sok
    s_sub_u32 s35, s35, 1
    s_cbranch_scc0 L_sver
    s_branch L_mdone
L_sok:
    v_mov_b32 v29, v24
L_srec:
    v_cmp_gt_u32 vcc, v28, v29
    s_and_saveexec_b64 s[48:49], vcc
    s_cbranch_execz L_snext
    v_add_lshl_u32 v30, v27, v29, 2
    global_load_dwordx3 v[32:34], v30, s[20:21] offset:4 sc1
    s_waitcnt vmcnt(0)
    v_and_b32 v30, 0x3fff00, v32
    v_add_u32 v30, v30, v{LN16}
    buffer_load_dwordx4 v[36:39], v30, s[36:39], 0 offen sc1
    v_lshrrev_b32 v31, 24, v32
    v_mad_u32_u24 v31, v31, s33, v25
    ds_read_b64 v[40:41], v31 offset:512
    v_lshlrev_b32 v44, 16, v33
    v_and_b32 v45, 0xffff0000, v33
    v_lshlrev_b32 v46, 16, v34
    v_and_b32 v47, 0xffff0000, v34
    s_waitcnt vmcnt(0) lgkmcnt(0)
    v_lshlrev_b32 v48, 16, v40
    v_and_b32 v49, 0xffff0000, v40
    v_lshlrev_b32 v50, 16, v41
    v_and_b32 v51, 0xffff0000, v41
""")
for s in range(4):
    E(f"v_lshlrev_b32 v52, 16, v{36+s}\nv_add_f32 v{48+s}, v{48+s}, v52")
    for k in range(4):
        E(f"v_fmac_f32 v{48+s}, v{44+k}, v{80+4*k+s}")
for s in range(4): E(f"v_exp_f32 v{48+s}, v{48+s}")
E("s_nop 0")
for s in range(4): E(f"v_add_f32 v{48+s}, 1.0, v{48+s}")
for s in range(4): E(f"v_rcp_f32 v{48+s}, v{48+s}")
E("s_nop 0")
for s in range(4): E(f"v_mul_f32 v{48+s}, v{48+s}, v{36+s}")
for s in range(4): E(f"v_cvt_f64_f32 v[{54+2*s}:{55+2*s}], v{48+s}")
for s in range(4): E(f"ds_add_f64 v31, v[{54+2*s}:{55+2*s}] offset:{128*s}")
E(f"""
    s_mov_b64 exec, s[48:49]
    v_add_u32 v29, 12, v29
    s_branch L_srec
L_snext:
    s_mov_b64 exec, s[48:49]
    s_add_u32 s34, s34, {NW}
    s_cmp_lt_u32 s34, {NCHUNK}
    s_cbranch_scc1 L_scell
    s_branch L_mdone
L_codeend:
.section .rodata,"a"
.p2align 6
.amdhsa_kernel {NAME}
.amdhsa_next_free_vgpr 168
.amdhsa_next_free_sgpr 102
.amdhsa_accum_offset 168
.amdhsa_group_segment_fixed_size 0
.amdhsa_kernarg_size 80
.amdhsa_user_sgpr_count 2
.amdhsa_user_sgpr_kernarg_segment_ptr 1
.amdhsa_system_sgpr_workgroup_id_x 1
.end_amdhsa_kernel
""")
if OPT["drop"]:
    i0 = out.index("L_L0:"); i1 = out.index("L_mdone:")
    pats = {1: ("smfmac",), 2: ("mfma",), 3: ("32x32x8",), 4: ("smfmac",), 5: ("v_exp",)}[OPT["drop"]]
    repl = {4: "    s_nop 2", 5: "    s_nop 1"}.get(OPT["drop"])
    mid = []
    for l in out[i0:i1]:
        if any(x in l for x in pats):
            if repl: mid.append(repl)
        else: mid.append(l)
    if OPT["drop"] == 3: mid = [l.replace("v[88:103] cbsz", "0 cbsz").replace("v[72:87] cbsz", "0 cbsz") for l in mid]
    out = out[:i0] + mid + out[i1:]
if OPT["nochain"]:
    i0 = out.index("L_L0:"); i1 = out.index("L_mdone:")
    out = out[:i0] + [l for l in out[i0:i1] if not any(x in l for x in ("v_exp", "v_pk_", "mfma", "v_rcp", "v_cvt"))] + out[i1:]
open(sys.argv[1], "w").write("\n".join(out) + "\n")
```

```python
import sys, struct

OPT = dict(hb=1, b31=1, split=3, grp=0, allg=0, eag=1, stamps=0, force_safe=0, nogather=0, nosafe=0, prio=2, gsc1=1, osc=1, codepf=1, srcmask=0x3fff00, nrec=0, warm=0,
           nochain=0, probe=-1, pw=-1, pg=-1, gpf=32, early=0, cnt=0, pollmax=200000, pa=6, pb=4, pc=2, p0=3, p1=3, ptime=0,
           dist=2, ldearly=0, drop=0, wgate=0, gate=0, gate2=1, rst=0, rsc1=1, nover=0, p2gate=1, p2sleep=0, hold=0, slate=2, lpos=0, p1st=1, sig=2, gpace=4, gwin=-1, gp=0xf448c, ghold=0, nte=0, ewhen=1, wpf=1, gpe=40, oneb=0, tagl=0, p0e=0, aul=0, t0f=0, pre=0, prelate=0, ntx=0, rpace=-1, p2wait=0)
for a in sys.argv[2:]:
    k, v = a.split("=")
    assert k in OPT, k
    OPT[k] = int(v, 0)

out = []
def E(s=""):
    for line in s.split("\n"):
        line = line.strip()
        if not line:
            continue
        if line.endswith(":") or line.startswith(".") or line.startswith(";"):
            out.append(line)
        else:
            out.append("    " + line)

def f32(x):
    return "0x%08x" % struct.unpack("<I", struct.pack("<f", x))[0]

NAME = "standalone__edge_featured_mpnn_egc__graph_kernel"
LOG2E = 1.4426950408889634
NB = 80; NBUCK = 125; CHUNK = 1280; NCHUNK = 250
NW = 12
G_HALF = 10000 * 256
WS0 = 0
WS_REC = 0x500000
WS_ROW = 0x900000
WS_FL2 = 0x980000
WS_TAG = 0x9c0000
SORTB = CHUNK * 12 + 512
WS_STAMP = 0x1000000
L_CNT = 0; L_SOFF = 512
L_SCNT = 1024
L_CTR = 1536; L_RD = 1540; L_DONE2 = 1544; L_FLAG = 1548; L_NST = 1552; L_GST = 1556; L_GOK = 1560; L_AU = 1564; L_DYN = 1568
L_DUM = L_SOFF
L_LIST = 2048
L_LISTC = L_LIST + 4096
SSTR = 272
L_SRC = L_LIST + 8192
SRCB = 80 * SSTR + 32
L_EA = L_SRC + SRCB
L_EAEND = L_EA + 2 * SRCB
L_SORT = L_EA
L_WBV = (L_EAEND + 255) // 256 * 256; L_X = L_WBV + 32768; L_WAU = L_X + 20480; L_C = L_WAU + 32768
LDS = L_C + 1024
L_NODE = L_WBV; NSTR = 648
assert L_NODE + 80 * NSTR <= L_WAU and LDS <= 163840 and L_EA % 16 == 0
NULL_SRC = 0x7fffff00
POLL_MAX = OPT["pollmax"]
LDS_MAX = 20 * POLL_MAX
SC1 = " sc1"
NTE = " nt" if OPT["nte"] else ""
NTX = " nt" if OPT["ntx"] else ""

S_HALF, S_BUCK, S_P = 22, 23, 24
S_SAFE, S_TAG = 25, 26
S_R, S_M, S_IT = 70, 71, 72
S_TAGRAW = 47
ST0 = 74

def ESTAMP(i):
    if OPT["early"] == 1 or (OPT["early"] and i == 0): E(f"s_memrealtime s[{ST0+2*i}:{ST0+2*i+1}]")
def FSTAMP(i):
    if OPT["early"] == 2: E(f"s_memrealtime s[{ST0+2*i}:{ST0+2*i+1}]\ns_waitcnt lgkmcnt(0)")
def STAMP(i):
    if OPT["stamps"] == 2:
        if i == 0: E(f"s_memrealtime s[{ST0}:{ST0+1}]")
        if i == 13: E(f"s_memrealtime s[{ST0+26}:{ST0+27}]\ns_waitcnt lgkmcnt(0)")
        return
    if OPT["early"] and 1 <= i <= 7: return
    if OPT["early"] and i == 0: return ESTAMP(0)
    if OPT["stamps"] or (OPT["probe"] >= 0 and i == OPT["probe"]):
        E(f"s_memrealtime s[{ST0+2*i}:{ST0+2*i+1}]\ns_waitcnt lgkmcnt(0)")
    elif OPT["probe"] >= 0 and i == 0:
        E(f"s_memrealtime s[{ST0}:{ST0+1}]")
NSTAMP = 14
def STAMP_OUT():
    if OPT["stamps"]:
        E(f"""
        s_lshl_b32 s30, s2, 4
        s_add_u32 s30, s30, s3
        s_lshl_b32 s30, s30, 6
        s_add_u32 s30, s30, {WS_STAMP - 0x100000}
        s_load_dwordx2 s[20:21], s[0:1], 72
        s_waitcnt lgkmcnt(0)
        s_mov_b64 exec, -1
        v_mov_b32 v3, s30""")
        for i in (range(NSTAMP) if OPT["stamps"] == 1 else (0, 8, 13)):
            E(f"v_mov_b32 v2, s{ST0+2*i}\nglobal_store_dword v3, v2, s[20:21] offset:{4*i}")
        E("s_waitcnt vmcnt(0)")

A1, A2, IDX, EAC, LN16, ASEL, CW, LN8 = 4, 8, 12, 13, 14, 16, 18, 20
LP, WS4, WN2, EA, XA, WE, OFS, AG, T, N, P, F = 22, 24, 28, 30, 32, 34, 36, 40, 44, 52, 56, 60
D0, D1, G = 72, 88, 104

def finish_tag():
    E(f"""
    s_mul_i32 s{S_TAG+1}, s{S_TAGRAW}, 0x85ebca6b
    s_mul_i32 s{S_TAG}, s{S_TAGRAW}, 0x9e3779b1
    s_add_u32 s{S_TAG+1}, s{S_TAG+1}, 0x5bd1e995
    s_add_u32 s{S_TAG}, s{S_TAG}, 0x7f4a7c15
    """)
def get_tag(lab, q):
    E(f"""
    s_cmp_lg_u32 s{S_SAFE}, 0
    s_cbranch_scc1 L_tag_{lab}
    v_mov_b32 v2, 0
    s_mov_b32 s31, {LDS_MAX}
L_tg_{lab}:
    ds_read_b128 v[{q}:{q+3}], v2 offset:{L_SCNT + 124*4}
    s_sub_u32 s31, s31, 1
    s_cbranch_scc1 L_tag_{lab}
    s_waitcnt lgkmcnt(0)
    v_readfirstlane_b32 s30, v{q+3}
    v_readfirstlane_b32 s{S_TAGRAW}, v{q+1}
    s_cmp_lg_u32 s30, 4
    s_cbranch_scc1 L_tg_{lab}
    """)
    finish_tag()
    E(f"L_tag_{lab}:")

def lds_wait(addr, mask, val, tag, sleep=0, ne=False):
    E(f"""
    v_mov_b32 v2, 0
    s_mov_b32 s31, {LDS_MAX}
L_w_{tag}:
    {f"s_sleep {sleep}" if sleep else ""}
    ds_read_b32 v3, v2 offset:{addr}
    s_sub_u32 s31, s31, 1
    s_cbranch_scc1 L_wd_{tag}
    s_waitcnt lgkmcnt(0)
    v_readfirstlane_b32 s30, v3
    s_and_b32 s30, s30, {mask}
    s_cmp_lg_u32 s30, {val}
    s_cbranch_scc{0 if ne else 1} L_w_{tag}
L_wd_{tag}:
    """)
SCAN = ("row_shr:1 row_mask:0xf bank_mask:0xf bound_ctrl:0", "row_shr:2 row_mask:0xf bank_mask:0xf bound_ctrl:0",
        "row_shr:4 row_mask:0xf bank_mask:0xf bound_ctrl:0", "row_shr:8 row_mask:0xf bank_mask:0xf bound_ctrl:0",
        "row_bcast:15 row_mask:0xa bank_mask:0xf", "row_bcast:31 row_mask:0xc bank_mask:0xf")
def scan(r):
    for m in SCAN:
        E(f"s_nop 1\nv_add_u32_dpp v{r}, v{r}, v{r} {m}")

def main_consts(sm=48):
    E(f"""
    v_and_b32 v2, 15, v1                    ; n'
    v_lshrrev_b32 v3, 4, v1
    v_lshl_add_u32 v3, v2, 2, v3
    v_lshlrev_b32 v3, 1, v3
    v_add_u32 v3, {L_C}, v3
    ds_read_u16 v64, v3                     ; C[0..3][feature 4n'+s]
    ds_read_u16 v65, v3 offset:128
    ds_read_u16 v66, v3 offset:256
    ds_read_u16 v67, v3 offset:384
    v_and_b32 v63, 3, v1                    ; q
    v_lshlrev_b32 v{LN8}, 3, v2
    v_lshlrev_b32 v{LN8+1}, 3, v2
    v_lshlrev_b32 v{LN16}, 4, v2
    v_lshlrev_b32 v{LN16+1}, 4, v2
    v_mov_b32 v{IDX}, 0x8888
    v_bfe_u32 v60, v1, 3, 2                 ; s = (l&31)>>3
    v_bfe_u32 v61, v1, 2, 1                 ; h = (l>>2)&1
    v_lshrrev_b32 v62, 5, v1                ; ha
    v_and_b32 v2, 1, v60
    v_lshlrev_b32 v2, 4, v2
    v_lshlrev_b32 v2, v2, s46
    v_lshrrev_b32 v60, 1, v60               ; s>>1
    v_lshl_add_u32 v3, v61, 1, v60
    v_sub_u32 v63, v63, v62                 ; q - ha : 0 -> A1, 2 -> A2
    v_lshl_add_u32 v3, v63, 1, v3
    v_and_b32 v63, 1, v63
    v_lshl_or_b32 v3, v63, 4, v3
    v_xor_b32 v61, v61, v62
    v_lshl_or_b32 v60, v61, 4, v60
    """)
    mk = [f"s[{sm}:{sm+1}]", f"s[{sm+2}:{sm+3}]", f"s[{sm+4}:{sm+5}]", "vcc"]
    for i in range(8):
        E(f"v_cmp_eq_u32 {mk[i%4]}, {i}, v3")
        if i % 4 == 3:
            for j in range(i-3, i+1):
                E(f"v_cndmask_b32 v{A1+j}, 0, v2, {mk[j%4]}")
    E(f"""
    v_cmp_eq_u32 {mk[0]}, 0, v60
    v_cmp_eq_u32 {mk[1]}, 1, v60
    v_and_b32 v63, 3, v1
    v_lshlrev_b32 v61, 3, v63
    v_cndmask_b32 v{ASEL}, 0, v2, {mk[0]}
    v_cndmask_b32 v{ASEL+1}, 0, v2, {mk[1]}
    v_add_u32 v{EAC}, {L_EA - 2*L_SRC}, v61
    s_lshl_b32 s30, s3, 9
    s_sub_u32 s31, s30, 4096
    s_max_i32 s31, s31, 0
    s_add_u32 s30, s30, s31
    s_add_u32 s30, s30, {L_LIST}
    v_lshrrev_b32 v2, 4, v1
    v_lshl_add_u32 v{LP}, v2, 4, s30
    v_bfe_u32 v3, v1, 2, 2
    v_lshl_add_u32 v{LP+1}, v3, 4, s30
    v_lshl_add_u32 v{LP+1}, v2, 2, v{LP+1}
    s_lshl_b32 s30, s3, 2
    s_and_b32 s31, s30, 32
    s_add_u32 s30, s30, s31
    v_lshrrev_b32 v2, 5, v1
    v_add_u32 v2, s30, v2
    v_and_b32 v3, 31, v1
    v_mul_u32_u24 v68, {NSTR}, v2
    v_and_b32 v69, 1, v3
    v_lshl_add_u32 v68, v69, 8, v68
    v_lshrrev_b32 v69, 1, v3
    v_lshl_add_u32 v68, v69, 3, v68
    v_add_u32 v68, {L_NODE}, v68
    s_mul_i32 s30, s{S_BUCK}, {NB*256}
    s_lshl_b32 s31, s{S_HALF}, 7
    s_add_u32 s30, s30, s31
    v_lshlrev_b32 v3, 2, v3
    v_lshl_add_u32 v69, v2, 8, v3
    v_add_u32 v69, s30, v69
    v_add_u32 v70, {32*256}, v69
    s_waitcnt lgkmcnt(0)
    v_lshlrev_b32 v60, 16, v64
    v_lshlrev_b32 v61, 16, v65
    v_lshlrev_b32 v62, 16, v66
    v_lshlrev_b32 v63, 16, v67
    v_mul_f32 v60, s40, v60
    v_mul_f32 v61, s40, v61
    v_mul_f32 v62, s40, v62
    v_mul_f32 v63, s40, v63
    v_cvt_pk_bf16_f32 v{CW}, v60, v61
    v_cvt_pk_bf16_f32 v{CW+1}, v62, v63
    """)

def gload(g, o):
    return f"buffer_load_dwordx4 v[{g}:{g+3}], v{o}, s[36:39], 0 offen" + (SC1 if OPT["gsc1"] else "")
def oadd(o):
    return f"v_lshl_add_u64 v[{o}:{o+1}], v[{o}:{o+1}], 0, v[{LN16}:{LN16+1}]"

def pk_steps(Gc, q, first):
    t = T + 4*(q & 1); h = Gc + 4*q
    if first and q == 0:
        return [f"v_pk_add_f32 v[{P+2*p}:{P+2*p+1}], v[{t+2*p}:{t+2*p+1}], 1.0 op_sel_hi:[1,0]" for p in range(2)]
    r = []
    for p in range(2):
        n = f"v[{Gc+2*p}:{Gc+2*p+1}]" if (first and q == 1) else f"v[{N+2*p}:{N+2*p+1}]"
        r.append(f"v_pk_fma_f32 v[{N+2*p}:{N+2*p+1}], {n}, v[{t+2*p}:{t+2*p+1}], {n}")
    for p in range(2):
        r.append(f"v_pk_fma_f32 v[{N+2*p}:{N+2*p+1}], v[{h+2*p}:{h+2*p+1}], v[{P+2*p}:{P+2*p+1}], v[{N+2*p}:{N+2*p+1}]")
    for p in range(2):
        r.append(f"v_pk_fma_f32 v[{P+2*p}:{P+2*p+1}], v[{P+2*p}:{P+2*p+1}], v[{t+2*p}:{t+2*p+1}], v[{P+2*p}:{P+2*p+1}]")
    return r
def exps(Dc, q):
    t = T + 4*(q & 1)
    return [f"v_exp_f32 v{t+s}, v{Dc+4*s+q}" for s in range(4)]
def weave(main, extra):
    for i, x in enumerate(main):
        E(x)
        for y in extra.get(i, []):
            E(y)
def m_a(Dn): return f"v_mfma_f32_32x32x8_bf16 v[{Dn}:{Dn+15}], v[{ASEL}:{ASEL+1}], v[{XA}:{XA+1}], 0"
def m_e(Dn, abid): return f"v_mfma_f32_16x16x4_4b_bf16 v[{Dn}:{Dn+15}], v[{EA}:{EA+1}], v[{CW}:{CW+1}], v[{Dn}:{Dn+15}] cbsz:2 abid:{abid}"
def m_s(Dn, A, g): return f"v_smfmac_f32_32x32x32_bf16 v[{Dn}:{Dn+15}], v[{A}:{A+3}], v[{g}:{g+7}], v{IDX}"

outofline = []
def emit_to(lst, fn):
    global out
    keep = out; out = []
    fn(); lst += out; out = keep
assert OPT["pa"] == 6 and OPT["prio"] == 2
DIST = OPT["dist"]; EARLY = OPT["ldearly"]
assert not (EARLY and DIST == 4)
def phase(u, loads):
    tag = f"{'L' if loads else 'T'}{u}"
    Dc, Dn = ((D0, D1), (D1, D0))[u & 1]
    gc = G + 16*u; gn = G + 16*((u+1) & 3); gl = G + 16*((u+DIST) & 3)
    ld = loads and not OPT["nogather"]
    kw = (u + DIST + EARLY) & 3
    wsgrp = 128 * ((3 - kw + u + DIST + EARLY) // 4 + 1) if kw == 3 else None
    def addloads(ex, pos):
        if loads:
            ex.setdefault(0, []).append(oadd(OFS)); ex.setdefault(2, []).append(oadd(OFS+2))
        if ld:
            for q in range(4): ex.setdefault(pos[q], []).append(gload(gl+4*q, OFS+q))
    E(f"L_{tag}:")
    SL = OPT["slate"]
    if not SL: E(f"s_waitcnt vmcnt({4*(DIST-2)})")
    E(m_a(Dn))
    for x in exps(Dc, 0): E(x)
    E(m_e(Dn, (u+1) & 3) if SL else m_s(Dn, A1, gn))
    for x in exps(Dc, 1): E(x)
    ex = {0: ["s_waitcnt lgkmcnt(0)"], 2: [f"ds_read_b64 v[{XA}:{XA+1}], v{AG + ((u+2) & 3)} offset:512"]}
    if u % 2 == 0:
        p = AG + ((u+2) & 3)
        ex[0].append(f"v_lshl_add_u64 v[{p}:{p+1}], v[{WN2}:{WN2+1}], 0, v[{LN8}:{LN8+1}]")
    if EARLY: addloads(ex, (1, 3, 5, 6))
    elif loads: ex[1] = [f"ds_read_b128 v[{OFS}:{OFS+3}], v{WS4+kw}"]
    if u == 2:
        ex.setdefault(4, []).append(f"v_lshl_add_u32 v{WE}, v{WE}, 1, v{EAC}")
        if SL: ex.setdefault(7, []).append(f"ds_read_b64 v[{EA}:{EA+1}], v{WE}")
    E(f"s_bitcmp1_b32 s{S_M}, 0\ns_cbranch_scc1 L_{tag}f")
    weave(pk_steps(gc, 0, False) + pk_steps(gc, 1, False), ex)
    E(f"L_{tag}r:")
    def first():
        E(f"L_{tag}f:")
        weave(pk_steps(gc, 0, True) + pk_steps(gc, 1, True), ex)
        E(f"s_branch L_{tag}r")
    emit_to(outofline, first)
    if SL:
        if OPT["ptime"]: E(f"s_memrealtime s[28:29]\ns_mov_b32 m0, s{S_R}")
        E(f"s_waitcnt vmcnt({4*(DIST-2) + (4 if (EARLY and loads) else 0) + (2 if SL == 2 else 0)})")
        E(m_s(Dn, A1, gn))
    else:
        E(m_e(Dn, (u+1) & 3))
    for x in exps(Dc, 2): E(x)
    if SL == 2: E(f"s_waitcnt vmcnt({4*(DIST-2) + (4 if (EARLY and loads) else 0)})")
    if OPT["ptime"]: E(f"s_memrealtime s[30:31]")
    E(m_s(Dn, A2, gn+8))
    for x in exps(Dc, 3): E(x)
    ex = {0: ["s_waitcnt lgkmcnt(0)"], 4: [], 6: [], 7: [f"s_sub_u32 s{S_R}, s{S_R}, 1"], 10: [f"s_lshr_b32 s{S_M}, s{S_M}, 1"], 11: [f"s_bitcmp1_b32 s{S_M}, 0"]}
    if OPT["ptime"]: ex[0] += ["v_writelane_b32 v70, s28, m0", "v_writelane_b32 v71, s30, m0"]
    if not EARLY: addloads(ex, (1, 3, 5, 9) if DIST == 4 else ((1, 3, 5, 7), (1, 2, 3, 4), (4, 6, 8, 10), (2, 5, 8, 10))[OPT['lpos']])
    elif loads: ex[1] = [f"ds_read_b128 v[{OFS}:{OFS+3}], v{WS4+kw}"]
    if u == 1:
        ex[4].append(f"ds_read_b64 v[{WN2}:{WN2+1}], v{LP} offset:{128+64}")
        ex[6].append(f"ds_read_b32 v{WE}, v{LP+1} offset:128")
    if u == 2 and not SL:
        ex[4].append(f"ds_read_b64 v[{EA}:{EA+1}], v{WE}")
    if u == 3:
        ex[4].append(f"ds_read_b64 v[{WN2}:{WN2+1}], v{LP} offset:{128+64+8}")
        ex.setdefault(8, []).append(f"v_lshl_add_u64 v[{LP}:{LP+1}], v[{LP}:{LP+1}], 0, s[44:45]")
    if wsgrp and loads: ex[6].append(f"ds_read_b128 v[{WS4}:{WS4+3}], v{LP} offset:{wsgrp}")
    weave(pk_steps(gc, 2, False) + pk_steps(gc, 3, False), ex)
    E(f"s_cbranch_scc1 L_{tag}z\nL_{tag}y:")
    def fin():
        E(f"""
L_{tag}z:
        v_rcp_f32 v{P}, v{P}
        v_rcp_f32 v{P+1}, v{P+1}
        v_rcp_f32 v{P+2}, v{P+2}
        v_rcp_f32 v{P+3}, v{P+3}
        v_pk_mul_f32 v[{N}:{N+1}], v[{N}:{N+1}], v[{P}:{P+1}]
        v_pk_mul_f32 v[{N+2}:{N+3}], v[{N+2}:{N+3}], v[{P+2}:{P+3}]
        """)
        for s_ in range(4):
            E(f"v_cvt_f64_f32 v[{F+2*s_}:{F+2*s_+1}], v{N+s_}")
            if s_: E(f"ds_add_f64 v{AG+u}, v[{F+2*s_-2}:{F+2*s_-1}] offset:{128*(s_-1)}")
        E(f"ds_add_f64 v{AG+u}, v[{F+6}:{F+7}] offset:384")
        E(f"s_branch L_{tag}y")
    emit_to(outofline, fin)
    if OPT["prio"] == 2:
        E(f"s_bitcmp1_b32 s{S_IT}, s{S_R}\ns_cbranch_scc1 L_{tag}q\nL_{tag}p:")
        def pr():
            E(f"""
L_{tag}q:
            s_setprio 0
            s_cmp_le_u32 s{S_R}, {OPT["pc"]}
            s_cbranch_scc1 L_{tag}p
            s_setprio 1
            s_cmp_le_u32 s{S_R}, {OPT["pb"]}
            s_cbranch_scc1 L_{tag}p
            s_setprio 2
            s_mov_b64 exec, 1
            ds_add_u32 v2, v3 offset:{L_DYN}
            s_mov_b64 exec, -1
            s_branch L_{tag}p
            """)
        emit_to(outofline, pr)
    if u == 3 and OPT["prio"] == 1:
        E(f"""
        s_add_u32 s{S_IT}, s{S_IT}, 1
        s_setprio 0
        s_cmp_gt_u32 s{S_IT}, 2
        s_cbranch_scc1 L_{tag}p
        s_setprio 1
        s_cmp_eq_u32 s{S_IT}, 2
        s_cbranch_scc1 L_{tag}p
        s_setprio 2
L_{tag}p:
        """)
    if loads:
        E(f"s_cmp_le_u32 s{S_R}, {DIST}")
        if u < 3: E(f"s_cbranch_scc1 L_T{u+1}")
        else: E("s_cbranch_scc0 L_L0")
    else:
        E(f"s_waitcnt vmcnt(0)\ns_cmp_eq_u32 s{S_R}, 0")
        if u < 3: E("s_cbranch_scc1 L_mdone")
        else: E("s_cbranch_scc0 L_T0")

E(f"""
; Edge-gated message passing in one launch, one workgroup per (bucket of 80 nodes, half of the features).
; @launch grid=(256,1,1) block=({64*NW},1,1) lds={LDS}
.amdgcn_target "amdgcn-amd-amdhsa--gfx950"
.text
.globl {NAME}
.p2align 8
.type {NAME},@function
{NAME}:
""")
if OPT["stamps"] == 1 and OPT["early"] != 1:
    for i in range(NSTAMP): E(f"s_mov_b64 s[{ST0+2*i}:{ST0+2*i+1}], 0")
STAMP(0)
E(f"""
    s_load_dwordx16 s[4:19], s[0:1], 0
    s_load_dwordx2 s[20:21], s[0:1], 72
""")
if OPT["codepf"]:
    E(f"""
    s_getpc_b64 s[28:29]
L_pc:
    v_lshlrev_b32 v3, 7, v0
    v_cmp_gt_u32 vcc, L_codeend-L_pc-64, v3
    s_cbranch_vccz L_nopf
    s_mov_b64 exec, vcc
    global_load_dword v164, v3, s[28:29]
    s_mov_b64 exec, -1
L_nopf:
    """)
E(f"""
    v_lshrrev_b32 v2, 6, v0
    v_and_b32 v1, 63, v0
    v_readfirstlane_b32 s3, v2
    {"s_bfe_u32 s%d, s2, 0x10002" % S_HALF if OPT["hb"] else "s_and_b32 s%d, s2, 1" % S_HALF}
    {"s_and_b32 s30, s2, 3" if OPT["hb"] else "s_bfe_u32 s30, s2, 0x20001"}
    {"s_mul_i32 s30, s30, 31" if OPT["b31"] else "s_lshl_b32 s30, s30, 5"}
    s_lshr_b32 s31, s2, 3
    s_add_u32 s{S_BUCK}, s30, s31
    {"s_cmp_eq_u32 s30, 93                    ; 31 buckets per XCD of a half, 32 on the last" if OPT["b31"] else "s_cmp_ge_u32 s2, 256"}
    {"s_subb_u32 s31, s31, 0" if OPT["b31"] else "s_cbranch_scc1 L_end"}
    {"s_cmp_ge_i32 s31, 31" if OPT["b31"] else "s_cmp_ge_u32 s%d, %d" % (S_BUCK, NBUCK)}
    s_cbranch_scc1 L_end
    s_lshl_b32 s{S_P}, s{S_BUCK}, 1
    s_add_u32 s{S_P}, s{S_P}, s{S_HALF}
    s_mov_b32 s{S_SAFE}, 0
L_restart:
    s_cmp_ge_u32 s3, 4
    s_cbranch_scc1 L_nosort
    v_mov_b32 v48, 0
    v_mov_b32 v49, 0
    v_mov_b32 v50, 0
    v_mov_b32 v51, 0
    v_lshlrev_b32 v10, 4, v1
    ds_write_b128 v10, v[48:51] offset:{L_SCNT}
    s_mul_i32 s30, s{S_P}, {CHUNK*4}
    v_lshl_add_u32 v3, v0, 4, s30
    s_add_u32 s30, s30, 4096
    v_lshl_add_u32 v18, v0, 2, s30
    v_lshlrev_b32 v10, 1, v3
    v_lshlrev_b32 v11, 1, v18
    v_mov_b32 v17, {WS_TAG}
    s_waitcnt lgkmcnt(0)
    global_load_dwordx4 v[4:7], v3, s[10:11]{NTE}
    global_load_dword v8, v18, s[10:11]{NTE}
    global_load_dword v43, v17, s[20:21]
""")
def preclear():
    E(f"""
    s_cmp_lg_u32 s{S_SAFE}, 0
    s_cbranch_scc1 L_nopre
    s_mul_i32 s30, s{S_HALF}, {G_HALF}
    s_mul_i32 s31, s{S_BUCK}, {NB*256}
    s_add_u32 s30, s30, s31
    s_add_u32 s30, s30, {4096*(5-OPT["pre"])}
    v_lshl_add_u32 v19, v0, 4, s30
    """)
    for i in range(OPT["pre"]):
        E("global_store_dwordx4 v19, v[48:51], s[20:21] sc1")
        if i + 1 < OPT["pre"]: E("v_add_u32 v19, 4096, v19")
    E("L_nopre:")
if OPT["pre"] and not OPT["prelate"]: preclear()
E(f"""
    {"" if OPT["oneb"] else "s_barrier"}
""")
if OPT["ewhen"] == 0: E(f"""
    global_load_dwordx4 v[12:15], v3, s[8:9]{NTE}
    global_load_dword v16, v18, s[8:9]{NTE}
    global_load_dwordx4 v[52:55], v10, s[6:7]{NTE}
    global_load_dwordx4 v[56:59], v10, s[6:7] offset:16{NTE}
    global_load_dwordx2 v[60:61], v11, s[6:7]{NTE}
""")
E("s_barrier                               ; B0b")
if OPT["ewhen"] == 7: E(f"""
    global_load_dwordx4 v[12:15], v3, s[8:9]{NTE}
    global_load_dword v16, v18, s[8:9]{NTE}
    global_load_dwordx4 v[52:55], v10, s[6:7]{NTE}
    global_load_dwordx4 v[56:59], v10, s[6:7] offset:16{NTE}
    global_load_dwordx2 v[60:61], v11, s[6:7]{NTE}
""")
if OPT["pre"] and OPT["prelate"]: preclear()
E(f"""
    s_branch L_sort
L_nosort:
    s_and_b32 s32, s3, 3                    ; tau
    s_lshr_b32 s33, s3, 3
    v_lshrrev_b32 v2, 4, v1                 ; g
    v_and_b32 v4, 15, v1
    s_lshl_b32 s30, s32, 2
    v_add_u32 v6, s30, v2                   ; row&15
    v_xor_b32 v7, v4, v6
    v_lshlrev_b32 v7, 4, v7
    v_lshl_add_u32 v7, v6, 8, v7
    s_mul_i32 s73, s{S_BUCK}, {NB*256}
    s_mul_i32 s31, s33, {3*4096}
    s_add_u32 s30, s73, s31
    v_add_u32 v7, s30, v7
    v_add_u32 v8, 0x1000, v7
    v_add_u32 v9, 0x2000, v7
    s_lshl_b32 s30, s32, 10
    s_add_u32 s31, s31, s30
    s_add_u32 m0, s31, {L_X}
    v_subrev_u32 v30, 256, v0               ; t = 0..511
    v_lshlrev_b32 v31, 4, v30
    v_mov_b32 v36, 0
    v_mov_b32 v37, 0
    v_mov_b32 v38, 0
    v_mov_b32 v39, 0
    v_add_u32 v40, {L_EA}, v31
    ds_write_b128 v40, v[36:39]
    ds_write_b128 v40, v[36:39] offset:8192
""")
if OPT["wpf"]:
    E(f"""
    s_lshr_b32 s30, s2, 3
    s_lshl_b32 s30, s30, 2
    v_add_u32 v3, s30, v1
    v_and_b32 v3, 127, v3
    s_lshl_b32 s30, s{S_HALF}, 7
    s_cmp_eq_u32 s3, 4
    s_cselect_b32 s31, 0x8000, 0
    s_add_u32 s30, s30, s31
    v_lshl_add_u32 v3, v3, 8, s30
    s_waitcnt lgkmcnt(0)
    s_cmp_lg_u32 s33, 0
    s_cbranch_scc1 L_nowpf
    s_cmp_eq_u32 s3, 5
    s_cselect_b32 s34, s14, s16
    s_cselect_b32 s35, s15, s17
    s_cmp_eq_u32 s3, 7
    s_cselect_b32 s34, s12, s34
    s_cselect_b32 s35, s13, s35
    s_mov_b64 exec, 0xffff
    global_load_dword v167, v3, s[34:35]
    s_mov_b64 exec, -1
L_nowpf:
    """)
    if OPT["wpf"] == 2:
        E(f"""
        s_cmp_lg_u32 s3, 8
        s_cbranch_scc1 L_notch
        s_mul_i32 s30, s{S_P}, {CHUNK*4}
        v_mov_b32 v3, s30
        v_lshlrev_b32 v5, 1, v3
        v_lshlrev_b32 v6, 21, v1
        s_mov_b64 exec, 1
        global_load_dword v167, v3, s[8:9]
        global_load_dword v166, v5, s[6:7]
        s_mov_b64 exec, 31
        global_load_dword v165, v6, s[20:21] sc1
        s_mov_b64 exec, 3
        global_load_dword v164, v6, s[18:19] sc1
        s_mov_b64 exec, -1
L_notch:
        """)
E(f"""
    s_waitcnt lgkmcnt(0)
    {"" if OPT["oneb"] else "s_barrier"}
""")
if not OPT["t0f"]: E(f"""
    global_load_lds_dwordx4 v7, s[4:5]{NTX}
    s_add_u32 m0, m0, 0x1000
    s_cmp_lg_u32 s33, 0
    global_load_lds_dwordx4 v8, s[4:5]{NTX}
    s_cbranch_scc1 L_x2
    s_add_u32 m0, m0, 0x1000
    s_nop 0
    global_load_lds_dwordx4 v9, s[4:5]{NTX}
L_x2:
    s_barrier
""")
else: E(f"""
    s_mov_b32 s29, m0
    s_cmp_lg_u32 s33, 0
    s_cbranch_scc1 L_x2
    global_load_lds_dwordx4 v7, s[4:5]
    s_add_u32 s29, s29, 0x1000
    v_mov_b32 v7, v8
    v_mov_b32 v8, v9
L_x2:
""")
E(f"""
    v_lshrrev_b32 v5, 3, v1
    v_and_b32 v3, 1, v2
    s_and_b32 s30, s3, 1
    s_lshl_b32 s30, s30, 1
    v_or_b32 v3, s30, v3                    ; sigma
    v_lshlrev_b32 v3, 1, v3
    v_and_b32 v20, 7, v1
    v_xor_b32 v3, v3, v20
    v_lshlrev_b32 v3, 4, v3
    v_lshl_add_u32 v10, v5, 8, v3
    s_sub_u32 s28, s3, 4
    s_lshl_b32 s30, s28, 11
    s_lshl_b32 s31, s{S_HALF}, 7
    s_add_u32 s30, s30, s31
    v_add_u32 v10, s30, v10
    v_add_u32 v11, 0x4000, v10
    s_lshl_b32 s28, s28, 10
    s_add_u32 s34, s16, {128*256}
    s_addc_u32 s35, s17, 0
    s_cmp_lg_u32 s3, 11
    s_cbranch_scc1 L_noc
    v_and_b32 v5, 3, v5
    v_lshlrev_b32 v20, 4, v20
    v_lshl_add_u32 v5, v5, 8, v20
    s_add_u32 s31, s31, {256*256}
    s_mov_b32 m0, {L_C}
    v_add_u32 v5, s31, v5
    global_load_lds_dwordx4 v5, s[16:17]
L_noc:
    s_add_u32 m0, s28, {L_WBV}
""")
for ti, base in enumerate((34, 14)):
    for n in range(2):
        E(f"s_nop 0\nglobal_load_lds_dwordx4 v{10+n}, s[{base}:{base+1}]")
        if not (ti == 1 and n == 1):
            E(f"s_add_u32 m0, m0, 0x2000")
if OPT["t0f"]:
    E(f"""
    s_mov_b32 m0, s29
    s_barrier                               ; B0b
    global_load_lds_dwordx4 v7, s[4:5]
    s_add_u32 m0, m0, 0x1000
    s_nop 0
    global_load_lds_dwordx4 v8, s[4:5]
    """)
if OPT["wgate"] or OPT["ewhen"] in (5, 6):
    E(f"""
    v_mov_b32 v7, 0x1000000
    s_mov_b64 exec, 1
    ds_add_u32 v36, v7 offset:{L_CTR}
    s_mov_b64 exec, -1
    """)
STAMP(1)
E(f"""
    v_mov_b32 v32, {NULL_SRC}
    v_mov_b32 v33, v32
    v_mov_b32 v34, v32
    v_mov_b32 v35, v32
""")
def cover(lo, n): return list(range(lo, n - 8192, 8192)) + [n - 8192]
for o in cover(16384, L_EAEND - L_EA): E(f"ds_write_b128 v40, v[36:39] offset:{o}")
for o in cover(0, SRCB): E(f"ds_write_b128 v31, v[32:35] offset:{L_SRC + o}")
E(f"""
    v_and_b32 v32, 3, v30           ; quarter
    v_bfe_u32 v33, v30, 3, 3
    v_lshrrev_b32 v34, 5, v30
    s_and_b32 s30, s3, 3
    s_add_u32 s30, s30, 16
    s_cmp_ge_u32 s3, 8
    s_cselect_b32 s31, 7, 3
    s_cselect_b32 s29, 0, 6
    s_cselect_b64 vcc, -1, 0
    v_and_b32 v33, s31, v33
    v_mov_b32 v35, s30
    v_cndmask_b32 v34, v34, v35, vcc
    v_lshl_add_u32 v32, v34, 2, v32
    v_bfe_u32 v34, v30, 2, 1
    v_mul_u32_u24 v35, {NSTR - SSTR}, v34
    v_mul_u32_u24 v41, {L_NODE - L_SRC}, v34
    v_mul_u32_u24 v42, {L_SRC + 80*SSTR - L_DUM}, v34
    v_lshlrev_b32 v43, 4, v34
    v_add_u32 v35, {SSTR}, v35
    v_add_u32 v41, {L_SRC}, v41
    v_sub_u32 v42, {L_SRC + 80*SSTR}, v42
    v_sub_u32 v43, 16, v43
    v_lshlrev_b32 v33, 2, v33
    v_mad_u32_u24 v41, v32, v35, v41
    v_mad_u32_u24 v41, v33, v43, v41
    v_lshlrev_b32 v35, 5, v35
    v_lshlrev_b32 v34, 3, v43
    v_sub_u32 v35, v35, v34
    v_cmp_gt_u32 s[48:49], 8, v33
    v_and_b32 v33, 7, v33
    v_add_u32 v34, 2, v33
    v_cmp_gt_u32 s[52:53], s29, v33
    v_cmp_gt_u32 s[54:55], s29, v34
    v_cndmask_b32 v44, v35, 0, s[48:49]
    v_cndmask_b32 v46, v35, 0, s[48:49]
    v_add_u32 v44, v41, v44
    v_lshl_add_u32 v46, v43, 1, v46
    v_add_u32 v46, v41, v46
    v_add_u32 v45, v44, v43
    v_add_u32 v47, v46, v43
    v_cndmask_b32 v44, v42, v44, s[52:53]
    v_cndmask_b32 v45, v42, v45, s[52:53]
    v_cndmask_b32 v46, v42, v46, s[54:55]
    v_cndmask_b32 v47, v42, v47, s[54:55]
    ds_write_b128 v31, v[44:47] offset:{L_LIST}
    s_cmp_ge_u32 s3, 6
    s_cbranch_scc1 L_pf3
    v_mul_u32_u24 v42, {SSTR}, v30
    v_add_u32 v42, {L_SRC}, v42
    v_lshlrev_b32 v41, 2, v30
    ds_write_b32 v41, v42 offset:{L_CNT}
L_pf3:
    v_bfe_u32 v3, v1, 2, 2                  ; r
    v_lshl_add_u32 v5, v2, 3, v3            ; 8g + r
    v_lshrrev_b32 v3, 1, v3
    v_and_b32 v6, 1, v2
    v_lshl_or_b32 v3, v6, 1, v3             ; sigma
    v_xor_b32 v3, s32, v3
    v_lshlrev_b32 v3, 5, v3
    v_lshl_add_u32 v10, v5, 7, v3
    v_and_b32 v3, 3, v1
    v_lshl_add_u32 v10, v3, 3, v10
    s_mul_i32 s31, s33, {L_WAU - L_WBV}
    s_add_u32 s31, s31, {L_WBV}
    v_add_u32 v10, s31, v10
    v_xor_b32 v3, v2, v4
    v_lshlrev_b32 v3, 4, v3
    v_lshl_add_u32 v12, v4, 8, v3
    v_add_u32 v12, {L_X}, v12
    v_xor_b32 v13, 64, v12
    v_xor_b32 v14, 0x80, v12
    v_xor_b32 v15, 0xc0, v12
    s_mul_i32 s30, s{S_HALF}, {G_HALF}
    s_add_u32 s30, s30, s73
    s_lshl_b32 s31, s32, 6
    s_add_u32 s30, s30, s31
    v_lshlrev_b32 v11, 10, v2
    v_lshl_add_u32 v11, v4, 2, v11
    v_add_u32 v11, s30, v11
    s_lshl_b32 s31, s32, 5
    s_add_u32 s31, s31, {L_NODE}
    v_mul_u32_u24 v16, {NSTR}, v4
    v_lshl_add_u32 v16, v2, 3, v16
    v_add_u32 v16, s31, v16
    s_mov_b32 s40, {f32(-LOG2E)}
    s_mov_b32 s42, {f32(2.0**32)}
    s_mov_b32 s44, 0x07060100
    s_mov_b32 s45, 0x07060302
    s_mov_b32 s46, 0x3f80
    v_mov_b32 v17, {f32(2.0**-100)}
    v_mov_b32 v19, 1
    v_mov_b32 v18, 0
""")
def staged():
    if not OPT["tagl"]: get_tag("g", 160)
    E(f"""
    s_waitcnt vmcnt(0)
    s_mov_b64 exec, 1
    ds_add_u32 v18, v19 offset:{L_CTR}
    s_mov_b64 exec, -1
    """)
    STAMP(2)
    lds_wait(L_CTR, 0xff, 8, "g1")
if OPT["t0f"]:
    E(f"""
    s_waitcnt vmcnt(2)
    s_mov_b64 exec, 1
    ds_add_u32 v18, v19 offset:{L_AU}
    s_mov_b64 exec, -1
    s_or_b32 s30, s33, s{S_SAFE}
    s_cbranch_scc0 L_t0
    """)
staged()
STAMP(3)
NP = 8
RA = 72; RB = RA + 4*NP; RAD = RB + 4*NP
J3N, J12, J3N2, CELL, ROWA, FOUR, L0M, ACC, ENT, CAD = 156, 157, 158, 159, 160, 161, 162, 163, 164, 166
def rec_setup():
    E(f"""
    v_and_b32 v3, 15, v1                    ; j
    v_lshrrev_b32 v2, 4, v1
    v_lshl_add_u32 v{CELL}, v2, 3, v3
    s_lshl_b32 s30, s29, 5
    v_add_u32 v{CELL}, s30, v{CELL}
    s_lshl_b32 s30, s{S_BUCK}, 3
    s_add_u32 s30, s30, {WS_ROW}
    v_lshl_add_u32 v{ROWA}, v{CELL}, 10, s30
    v_cmp_gt_u32 s[66:67], {NP}, v3
    v_cmp_gt_u32 vcc, {NCHUNK}, v{CELL}
    v_mov_b32 v{ENT}, 0
    s_and_b64 s[66:67], s[66:67], vcc
    s_mov_b64 exec, s[66:67]
    global_load_dwordx2 v[{ENT}:{ENT+1}], v{ROWA}, s[20:21] sc1
    s_mov_b64 exec, -1
    v_mul_u32_u24 v{CELL}, {SORTB//4}, v{CELL}
    v_add_u32 v{CELL}, {WS_REC//4}, v{CELL}
    v_mul_u32_u24 v{J12}, 12, v3
    v_mul_u32_u24 v{J3N}, 3, v3
    v_not_b32 v{J3N}, v{J3N}
    v_subrev_u32 v{J3N2}, 48, v{J3N}
    v_subrev_u32 v{L0M}, 1, v3
    v_ashrrev_i32 v{L0M}, 31, v{L0M}
    v_mov_b32 v{FOUR}, 4
    """)
WF = 20; XF = 52; AC = 132
def wreads(ks):
    for t in range(2):
        for rd in range(2):
            r = WF + 16*t + 4*ks + 2*rd
            E(f"ds_read_b64_tr_b16 v[{r}:{r+1}], v10 offset:{t*16384 + ks*4096 + rd*512}")
def xread(rt, ks):
    r = XF + 16*rt + 4*ks
    return f"ds_read_b128 v[{r}:{r+3}], v{12+ks} offset:{rt*4096}"
def mf(rt, ks, transposed):
    for t in range(2):
        a = XF + 16*rt + 4*ks; w = WF + 16*t + 4*ks; d = AC + 8*(rt % 3) + 4*t
        c = "0" if ks == 0 else f"v[{d}:{d+3}]"
        if transposed: a, w = w, a
        E(f"v_mfma_f32_16x16x32_bf16 v[{d}:{d+3}], v[{a}:{a+3}], v[{w}:{w+3}], {c}")
def gemm(transposed, finish, before_first):
    for ks in range(3):
        E(xread(0, ks)); wreads(ks)
    E("s_waitcnt lgkmcnt(10)"); mf(0, 0, transposed)
    E(xread(0, 3)); wreads(3)
    E("s_waitcnt lgkmcnt(10)"); mf(0, 1, transposed)
    for ks in range(4): E(xread(1, ks))
    E("s_waitcnt lgkmcnt(9)"); mf(0, 2, transposed)
    for ks in range(4): E(xread(2, ks))
    E("s_waitcnt lgkmcnt(8)"); mf(0, 3, transposed)
    for ks in range(4): E(xread(3, ks))
    if OPT["p0e"]:
        E("s_nop 3"); finish(0)
    E("s_waitcnt lgkmcnt(8)")
    for ks in range(4):
        mf(1, ks, transposed); E(xread(4, ks))
    E(f"""
    s_mov_b64 exec, 1
    ds_add_u32 v18, v19 offset:{L_RD}
    s_mov_b64 exec, -1
    """)
    before_first()
    if not OPT["p0e"]: finish(0)
    E("s_waitcnt lgkmcnt(0)")
    for rt in range(2, 5):
        for ks in range(4): mf(rt, ks, transposed)
        finish(rt-1)
    finish(4)
def pack(rt):
    b = AC + 8*(rt % 3); h = b + 4
    for r in range(4): E(f"v_mul_f32 v{b+r}, s40, v{b+r}")
    for r in range(4): E(f"v_fma_f32 v{h+r}, v{h+r}, s42, v17")
    E(f"""
    v_cvt_pk_bf16_f32 v4, v{b}, v{b+1}
    v_cvt_pk_bf16_f32 v5, v{b+2}, v{b+3}
    v_xor_b32 v2, 0x80008000, v4
    v_xor_b32 v3, 0x80008000, v5
    v_sub_u32_sdwa v{h}, v{h}, sext(v2) dst_sel:DWORD dst_unused:UNUSED_PAD src0_sel:DWORD src1_sel:WORD_0
    v_sub_u32_sdwa v{h+1}, v{h+1}, sext(v2) dst_sel:DWORD dst_unused:UNUSED_PAD src0_sel:DWORD src1_sel:WORD_1
    v_sub_u32_sdwa v{h+2}, v{h+2}, sext(v3) dst_sel:DWORD dst_unused:UNUSED_PAD src0_sel:DWORD src1_sel:WORD_0
    v_sub_u32_sdwa v{h+3}, v{h+3}, sext(v3) dst_sel:DWORD dst_unused:UNUSED_PAD src0_sel:DWORD src1_sel:WORD_1
    """)
    w = (OPT["gp"] >> (4*(4-rt))) & 15 if OPT["gp"] else OPT["gpace"]
    if 0 <= w < 4*rt: E(f"s_waitcnt vmcnt({w})")
    if OPT["pre"] and rt == 5 - OPT["pre"]: lds_wait(L_SCNT + 126*4, 0xff, 4, "pre")
    if OPT["ghold"] == rt + 1:
        E("v_mov_b32 v6, v2\nv_mov_b32 v7, v3"); lds_wait(L_CTR, 0xff00, 0x400, "gh", sleep=1); E("v_mov_b32 v2, v6\nv_mov_b32 v3, v7")
    for r in range(4):
        E(f"v_perm_b32 v{h+r}, v{h+r}, v{4 + (r>>1)}, s{44 + (r&1)}")
        if OPT["gwin"] >= 0: E(f"s_waitcnt vmcnt({OPT['gwin']})")
        E(f"global_store_dword v11, v{h+r}, s[20:21] offset:{256*r} sc1")
    if rt < 4: E("v_add_u32 v11, 0x1000, v11")
def fin(rt):
    a = AC + 8*(rt % 3); u = a + 4
    for r in range(4): E(f"v_mul_f32 v{a+r}, s40, v{a+r}")
    for r in range(4): E(f"v_mul_f32 v{u+r}, s42, v{u+r}")
    E(f"""
    v_cvt_pk_bf16_f32 v{a}, v{a}, v{a+1}
    v_cvt_pk_bf16_f32 v{a+1}, v{a+2}, v{a+3}
    v_cvt_f64_f32 v[2:3], v{u}
    v_cvt_f64_f32 v[4:5], v{u+1}
    v_cvt_f64_f32 v[6:7], v{u+2}
    v_cvt_f64_f32 v[8:9], v{u+3}
    ds_write_b64 v16, v[{a}:{a+1}] offset:512
    ds_write2_b64 v16, v[2:3], v[4:5] offset0:0 offset1:16
    ds_write2_b64 v16, v[6:7], v[8:9] offset0:32 offset1:48
    """)
    if rt < 4: E(f"v_add_u32 v16, {16*NSTR}, v16")
E(f"""
    s_cmp_lg_u32 s33, 0
    s_cbranch_scc1 L_gemm2
    s_cmp_lg_u32 s{S_SAFE}, 0
    s_cbranch_scc1 L_nog1
    s_setprio 2
""")
if OPT["t0f"]:
    E("L_t0:\ns_setprio 2")
    lds_wait(L_AU, 0xff, 8, "t0")
    STAMP(3)
    for ks in range(3):
        E(xread(0, ks)); wreads(ks)
    E("s_waitcnt lgkmcnt(10)"); mf(0, 0, False)
    E(xread(0, 3)); wreads(3)
    for ks in range(1, 4):
        E(f"s_waitcnt lgkmcnt({15 - 5*ks})"); mf(0, ks, False)
    E("s_nop 7"); pack(0)
    get_tag("t", 160)
    E(f"""
    s_waitcnt vmcnt(4)
    s_mov_b64 exec, 1
    ds_add_u32 v18, v19 offset:{L_CTR}
    s_mov_b64 exec, -1
    """)
    lds_wait(L_CTR, 0xff, 8, "t1")
    for rt in range(1, 4):
        for ks in range(4): E(xread(rt, ks))
    E("s_waitcnt lgkmcnt(8)")
    for ks in range(4):
        mf(1, ks, False); E(xread(4, ks))
    E(f"""
    s_mov_b64 exec, 1
    ds_add_u32 v18, v19 offset:{L_RD}
    s_mov_b64 exec, -1
    s_nop 3
    """)
    pack(1)
    E("s_waitcnt lgkmcnt(0)")
    for ks in range(4): mf(2, ks, False)
    for rt in range(3, 5):
        for ks in range(4): mf(rt, ks, False)
        pack(rt-1)
    pack(4)
else: gemm(False, pack, lambda: lds_wait(L_CTR, {1: 0x80000, 2: 0xc0000}[OPT["hold"]], 0, "hold", sleep=1, ne=True) if OPT["hold"] else None)
E("s_setprio 0")
if OPT["gate"] or OPT["gate2"] >= 3:
    E(f"""
    s_mov_b64 exec, 1
    ds_add_u32 v18, v19 offset:{L_GST}
    s_mov_b64 exec, -1
    """)
STAMP(4)
if OPT["tagl"]: get_tag("g", 160)
main_consts()
E(f"""
    s_lshl_b32 s30, s{S_P}, 7
    s_add_u32 s30, s30, {WS_FL2}
    v_mov_b32 v60, s30
    v_mov_b32 v62, s{S_TAG}
    v_mov_b32 v63, s{S_TAG+1}
    v_mov_b32 v2, 0
    v_mov_b32 v3, 1
    s_lshl_b32 s30, s32, 13
    s_lshl_b32 s31, s{S_HALF}, 7
    s_add_u32 s30, s30, s31
    s_add_u32 s30, s30, {WS_FL2}
    v_lshl_add_u32 v64, v1, 8, s30
    s_mul_i32 s30, s32, {2560*256}
    s_lshr_b32 s31, s2, 3
    s_mul_i32 s31, s31, {160*128}
    s_add_u32 s30, s30, s31
    v_lshl_add_u32 v65, v1, 7, s30
    {'' if OPT['gpe'] else 'v_min_u32 v65, %d, v65' % (G_HALF - 128)}
    s_mul_i32 s30, s{S_HALF}, {G_HALF}
    v_add_u32 v65, s30, v65
    s_mov_b64 exec, 1
    s_waitcnt vmcnt(0)
    ds_add_rtn_u32 v61, v2, v3 offset:{L_DONE2}
    s_waitcnt lgkmcnt(0)
    v_readfirstlane_b32 s30, v61
    s_cmp_lg_u32 s30, 3
    s_cbranch_scc1 L_nofl
    global_store_dwordx2 v60, v[62:63], s[20:21] sc1
    ds_add_u32 v2, v3 offset:{L_DONE2}
L_nofl:
""")
STAMP(5)
if OPT["p2gate"]:
    E("s_mov_b64 exec, -1")
    lds_wait(L_CTR, 0xff0000, 0x080000, "pg", sleep=1)
    E("s_mov_b32 exec_hi, 0")
if OPT["p2wait"]: E(f"s_sleep {OPT['p2wait']}")
STAMP(6)
def gready(lab):
    if OPT["gpe"]: E(f"s_cmp_lg_u32 s73, 0\ns_cbranch_scc1 L_gr{lab}")
    if OPT["gpf"]:
        E(f"""
        {"s_bfm_b64 exec, %d, 0" % OPT["gpf"] if OPT["gpf"] < 64 else "s_mov_b64 exec, -1"}
        global_load_dword v35, v65, s[20:21] sc1
        """)
    E(f"""
L_gr{lab}:
    s_mov_b64 exec, 1
    v_mov_b32 v2, 0
    v_mov_b32 v3, 1
    ds_add_u32 v2, v3 offset:{L_GOK}
    """)
E(f"""
    s_cmp_eq_u32 s32, 3
    s_cselect_b32 exec_lo, 0x1fffffff, -1
    {"" if OPT["p1st"] else "s_mov_b64 s[66:67], exec"}
    {"" if OPT["p1st"] else "s_branch L_p2n"}
    global_load_dwordx2 v[66:67], v64, s[20:21] sc1
    s_waitcnt vmcnt(0)
    v_cmp_ne_u64 s[66:67], s[{S_TAG}:{S_TAG+1}], v[66:67]
""")
if OPT["gpe"]:
    n = OPT["gpe"]
    E(f"""
    s_mov_b32 s73, 0
    s_lshr_b32 s30, s2, 3
    s_bitcmp1_b32 s66, s30
    s_cbranch_scc1 L_nogpe
    s_mov_b32 s73, 1
    s_bitcmp1_b32 exec_lo, s30
    s_cbranch_scc0 L_nogpe
    """)
    for k in range(0, n, 64):
        E("s_mov_b64 exec, -1")
        if k: E(f"v_add_u32 v65, 8192, v65")
        if n - k < 64: E(f"s_bfm_b64 exec, {n-k}, 0")
        E(f"global_load_dword v{(35, 68, 69)[k//64]}, v65, s[20:21] sc1")
    E("L_nogpe:")
E(f"""
    s_cmp_lg_u64 s[66:67], 0
    s_cbranch_scc1 L_p2n
""")
gready("a")
E("L_p2n:\ns_mov_b64 exec, -1")
STAMP(7)
E(f"""
    s_branch L_b4
L_nog1:
    s_mov_b64 exec, 1
    ds_add_u32 v18, v19 offset:{L_RD}
    s_mov_b64 exec, -1
    s_branch L_rec
L_gemm2:
""")
def stage_au():
    E(f"""
    v_lshrrev_b32 v5, 3, v1
    v_bfe_u32 v3, v1, 4, 1
    v_lshlrev_b32 v3, 1, v3
    v_and_b32 v4, 7, v1
    v_xor_b32 v3, v3, v4
    v_lshlrev_b32 v3, 4, v3
    v_lshl_add_u32 v6, v5, 8, v3
    s_lshl_b32 s30, s{S_HALF}, 7
    s_and_b32 s31, s3, 1
    s_lshl_b32 s31, s31, 14
    s_add_u32 s30, s30, s31
    v_add_u32 v6, s30, v6
    v_xor_b32 v7, 64, v6
    v_add_u32 v8, 2048, v6
    v_add_u32 v9, 3072, v7
    v_add_u32 v7, 1024, v7
    s_lshl_b32 s30, s32, 13
    s_add_u32 m0, s30, {L_WAU}
    s_cmp_lt_u32 s32, 2
    s_cselect_b32 s34, s16, s12
    s_cselect_b32 s35, s17, s13
    global_load_lds_dwordx4 v6, s[34:35]
    global_load_lds_dwordx4 v7, s[34:35] offset:1024
    global_load_lds_dwordx4 v8, s[34:35] offset:2048
    global_load_lds_dwordx4 v9, s[34:35] offset:3072
    s_add_u32 m0, m0, 4096
    s_add_u32 s34, s34, 8192
    s_addc_u32 s35, s35, 0
    global_load_lds_dwordx4 v6, s[34:35]
    global_load_lds_dwordx4 v7, s[34:35] offset:1024
    global_load_lds_dwordx4 v8, s[34:35] offset:2048
    global_load_lds_dwordx4 v9, s[34:35] offset:3072
""")
if not OPT['aul']: stage_au()
for rt in range(5):
    for ks in range(4): E(xread(rt, ks))
E(f"""
    s_mov_b64 exec, 1
    ds_add_u32 v18, v19 offset:{L_RD}
    s_mov_b64 exec, -1
""")
if OPT['aul']:
    lds_wait(L_RD, 8, 8, "aul"); stage_au()
E(f"""
    s_mov_b64 exec, 1
    s_waitcnt vmcnt(0)
    ds_add_u32 v18, v19 offset:{L_RD}
    s_mov_b64 exec, -1
    s_sub_u32 s29, s3, 4
""")
rec_setup()
lds_wait(L_RD, 0xff, 12, "rd")
for ks in range(4): wreads(ks)
for ks in range(4):
    E(f"s_waitcnt lgkmcnt({12 - 4*ks})"); mf(0, ks, True)
for rt in range(1, 5):
    for ks in range(4): mf(rt, ks, True)
    fin(rt-1)
fin(4)
if OPT["tagl"]: get_tag("h", 144)
STAMP(4)
E(f"""
    s_branch L_rec
L_sort:
""")
STAMP(1)
E(f"""
    s_mov_b32 s40, {f32(-LOG2E)}
    s_mov_b32 s46, 0x3f80
    s_cmp_lg_u32 s{S_SAFE}, 0
    s_cbranch_scc1 L_sortskip
    v_mov_b32 v21, 1
    v_mov_b32 v20, 3
    s_mov_b32 s31, 52429
    s_movk_i32 s32, -20
    v_lshlrev_b32 v9, 3, v1
    v_lshlrev_b32 v33, 4, v0
    s_mul_i32 s30, s{S_P}, {SORTB}
    s_add_u32 s30, s30, {WS_REC + 4096}
    v_add_u32 v32, s30, v33
    v_add_u32 v34, 8192, v32
    s_lshl_b32 s30, s{S_P}, 10
    s_add_u32 s30, s30, {WS_ROW}
    v_lshl_add_u32 v42, v1, 4, s30
    s_mov_b32 s34, {LDS_MAX}
    s_setprio 3
""")
E6 = OPT["ewhen"] in (0, 6, 7)
if OPT["ewhen"] == 6:
    E("v_mov_b32 v19, v3")
    lds_wait(L_CTR, 0xff000000, 0x08000000, "ew")
    E("v_mov_b32 v3, v19\ns_mov_b32 s31, 52429")
    E(f"""
    global_load_dwordx4 v[12:15], v3, s[8:9]{NTE}
    global_load_dword v16, v18, s[8:9]{NTE}
    global_load_dwordx4 v[52:55], v10, s[6:7]{NTE}
    global_load_dwordx4 v[56:59], v10, s[6:7] offset:16{NTE}
    global_load_dwordx2 v[60:61], v11, s[6:7]{NTE}
""")
E(f"""
    s_waitcnt vmcnt({1 + OPT['pre'] + 5*E6})
""")
STAMP(2)
FSTAMP(1)
for i in range(5):
    E(f"""
    v_mul_u32_u24 v{22+i}, s31, v{4+i}
    v_lshrrev_b32 v{22+i}, 22, v{22+i}
    v_lshlrev_b32 v{22+i}, 2, v{22+i}        ; bucket*4
    ds_add_rtn_u32 v{27+i}, v{22+i}, v20 offset:{L_SCNT}
    """)
E(f"""
    s_mov_b64 exec, 1
    s_cmp_lg_u32 s3, 0
    s_cbranch_scc1 L_notag
    s_waitcnt vmcnt({OPT['pre'] + 5*E6})
    ds_write_b32 v48, v43 offset:{L_SCNT + 125*4}
L_notag:
    ds_add_u32 v48, v21 offset:{L_SCNT + 127*4}
    s_mov_b64 exec, -1
""")
if OPT["ewhen"] == 1: E(f"""
    global_load_dwordx4 v[12:15], v3, s[8:9]{NTE}
    global_load_dword v16, v18, s[8:9]{NTE}
    global_load_dwordx4 v[52:55], v10, s[6:7]{NTE}
    global_load_dwordx4 v[56:59], v10, s[6:7] offset:16{NTE}
    global_load_dwordx2 v[60:61], v11, s[6:7]{NTE}
""")
E(f"""
L_s1:
    ds_read_b32 v38, v48 offset:{L_SCNT + 127*4}
    ds_read_b64 v[36:37], v9 offset:{L_SCNT}
    s_sub_u32 s34, s34, 1
    s_cbranch_scc1 L_s1d
    s_waitcnt lgkmcnt(0)
    v_readfirstlane_b32 s30, v38
    s_cmp_lg_u32 s30, 4
    s_cbranch_scc1 L_s1
L_s1d:
""")
FSTAMP(2)
E(f"""
    v_add3_u32 v39, v36, v37, 2
    v_add3_u32 v38, v36, v37, 2
    v_readlane_b32 s{S_TAGRAW}, v37, 62
""")
fill = []
for i in range(5):
    fill += [f"v_mad_i32_i24 v{4+i}, v{22+i}, s32, v{4+i}", f"v_lshlrev_b32 v{4+i}, 24, v{4+i}"]
for k, m in enumerate(SCAN):
    E(f"v_add_u32_dpp v39, v39, v39 {m}")
    for x in fill[2*k:2*k+2]: E(x)
E(f"""
    v_sub_u32 v40, v39, v38
    v_add3_u32 v41, v40, v36, 1
    s_mov_b32 s30, {L_SORT}
    v_lshl_add_u32 v38, v40, 2, s30
    v_lshl_add_u32 v39, v41, 2, s30
    ds_write_b64 v9, v[38:39] offset:{L_SOFF}
""")
for i in range(5):
    E(f"ds_read_b32 v{22+i}, v{22+i} offset:{L_SOFF}")
finish_tag()
E(f"""
    s_cmp_lg_u32 s3, 0
    s_cbranch_scc1 L_nopub
    s_and_b32 s35, s{S_TAG+1}, 0xff000000
    v_mov_b32 v45, s{S_TAG}
    v_mov_b32 v47, s{S_TAG}
    v_lshl_or_b32 v44, v36, 12, v40
    v_lshl_or_b32 v46, v37, 12, v41
    v_or_b32 v44, s35, v44
    v_or_b32 v46, s35, v46
    global_store_dwordx4 v42, v[44:47], s[20:21] sc1
    {"s_waitcnt vmcnt(1)" if OPT["ewhen"] in (0, 1, 6, 7) else ""}
    s_branch {"L_pub" if OPT["ewhen"] in (0, 1, 6, 7) else "L_nochk"}
L_nopub:
    s_cmp_lg_u32 s3, 1
    s_cbranch_scc1 L_nochk
    v_mov_b32 v44, s{S_TAG+1}
    s_mov_b32 exec_hi, 0x7fffffff
    ds_add_u32 v38, v44
    ds_add_u32 v39, v44
    s_mov_b32 exec_hi, -1
L_nochk:
""")
if 3 <= OPT["ewhen"] <= 5:
    E("v_mov_b32 v19, v3")
    if OPT["ewhen"] == 3: lds_wait(L_CTR, 0xff, 8, "ew")
    elif OPT["ewhen"] == 5: lds_wait(L_CTR, 0xff000000, 0x08000000, "ew")
    else: lds_wait(L_CTR, 0xff, 0, "ew", ne=True)
    E("v_mov_b32 v3, v19")
if 2 <= OPT["ewhen"] <= 5: E(f"""
    global_load_dwordx4 v[12:15], v3, s[8:9]{NTE}
    global_load_dword v16, v18, s[8:9]{NTE}
    global_load_dwordx4 v[52:55], v10, s[6:7]{NTE}
    global_load_dwordx4 v[56:59], v10, s[6:7] offset:16{NTE}
    global_load_dwordx2 v[60:61], v11, s[6:7]{NTE}
""")
E(f"""
    s_waitcnt vmcnt(0)
L_pub:
""")
STAMP(4)
FSTAMP(3)
for i in range(5): E(f"v_lshl_or_b32 v{4+i}, v{12+i}, 8, v{4+i}")
E("s_waitcnt lgkmcnt(0)")
for i in range(5):
    E(f"""
    v_lshl_add_u32 v{27+i}, v{27+i}, 2, v{22+i}
    v_add3_u32 v{12+i}, v{52+2*i}, v{53+2*i}, v{4+i}
    ds_write2_b32 v{27+i}, v{52+2*i}, v{53+2*i} offset0:2 offset1:3
    ds_write_b32 v{27+i}, v{4+i} offset:4
    ds_sub_u32 v{22+i}, v{12+i}
    """)
E(f"""
    s_mov_b64 exec, 1
    ds_add_u32 v48, v21 offset:{L_SCNT + 126*4}
    s_mov_b64 exec, -1
""")
FSTAMP(4)
E(f"""
    s_mov_b32 s34, {LDS_MAX}
L_s2:
    ds_read_b32 v38, v48 offset:{L_SCNT + 126*4}
    {f"ds_read_b32 v39, v48 offset:{L_CTR}" if OPT["wgate"] else ""}
    ds_read_b128 v[72:75], v33 offset:{L_SORT}
    s_sub_u32 s34, s34, 1
    s_cbranch_scc1 L_s2d
    s_waitcnt lgkmcnt(1)
    v_readfirstlane_b32 s30, v38
""")
if OPT["wgate"]:
    E(f"""
    v_readfirstlane_b32 s31, v39
    s_lshr_b32 s31, s31, 24
    s_add_u32 s30, s30, s31
    """)
E(f"""
    s_cmp_lg_u32 s30, {12 if OPT["wgate"] else 4}
    s_cbranch_scc1 L_s2
L_s2d:
""")
FSTAMP(5)
E(f"""
    ds_read_b128 v[76:79], v33 offset:{L_SORT + 4096}
    ds_read_b128 v[80:83], v33 offset:{L_SORT + 8192}
    ds_read_b128 v[84:87], v33 offset:{L_SORT + 12288}
    s_waitcnt lgkmcnt(3)
    global_store_dwordx4 v32, v[72:75], s[20:21] offset:-4096 sc1
    s_waitcnt lgkmcnt(2)
    global_store_dwordx4 v32, v[76:79], s[20:21] sc1
    s_waitcnt lgkmcnt(1){f" vmcnt({OPT['rpace']})" if OPT['rpace'] >= 0 else ""}
    global_store_dwordx4 v34, v[80:83], s[20:21] offset:-4096 sc1
    s_cmp_eq_u32 s3, 3
    s_cselect_b32 exec_hi, 0, -1
    s_waitcnt lgkmcnt(0){f" vmcnt({OPT['rpace']})" if OPT['rpace'] >= 0 else ""}
    global_store_dwordx4 v34, v[84:87], s[20:21] sc1
    s_mov_b32 exec_hi, -1
""")
FSTAMP(6)
for k in range(4): E(f"ds_write_b128 v33, v[48:51] offset:{L_SORT + 4096*k}")
STAMP(3)
FSTAMP(7)
E(f"""
    s_branch L_sortdone
L_sortskip:
    s_waitcnt vmcnt(0)
L_sortdone:
    s_mov_b32 s29, s3
""")
rec_setup()
E(f"""
L_rec:
""")
lds_wait(L_CTR, 0xff, 8, "r0")
main_consts()
STAMP(5)
E(f"""
    s_cmp_ge_u32 s3, 4
    s_cbranch_scc1 L_nod2
    v_mov_b32 v2, 0
    v_mov_b32 v3, 0x100
    s_mov_b64 exec, 1
    s_waitcnt vmcnt(0)
    ds_add_u32 v2, v3 offset:{L_CTR}
    s_mov_b64 exec, -1
L_nod2:
    s_cmp_lg_u32 s{S_SAFE}, 0
    s_cbranch_scc1 L_recskip
    s_lshr_b32 s35, s{S_TAG+1}, 24
    s_mov_b64 exec, s[66:67]
    s_mov_b32 s34, {POLL_MAX}
    s_branch L_p1c
L_p1:
    global_load_dwordx2 v[{ENT}:{ENT+1}], v{ROWA}, s[20:21] sc1
L_p1c:
    s_sub_u32 s34, s34, 1
    s_cbranch_scc1 L_toobig
    s_waitcnt vmcnt(0)
    v_cmp_ne_u32 vcc, s{S_TAG}, v{ENT+1}
    v_cmp_ne_u32_sdwa s[48:49], v{ENT}, s35 src0_sel:BYTE_3 src1_sel:DWORD
    s_or_b64 exec, vcc, s[48:49]
    s_cbranch_scc1 L_p1
    s_mov_b64 exec, -1
""")
STAMP(6)
if OPT["cnt"]: E(f"s_sub_u32 s{ST0+2}, {POLL_MAX+1}, s34\ns_mov_b32 s34, {POLL_MAX}")
E(f"""
    v_and_b32 v{CAD}, 0xfff, v{ENT}
    v_bfe_u32 v{ENT}, v{ENT}, 12, 12            ; 3*count
    v_add_lshl_u32 v{CAD}, v{CAD}, v{CELL}, 2
    v_cmp_ne_u32 vcc, 0, v{ENT}
    s_sub_u32 s30, 0, s{S_TAG+1}
    v_mov_b32 v2, s30
    v_cndmask_b32 v{ENT+1}, 0, v2, vcc
    v_cmp_lt_u32 vcc, 96, v{ENT}
    v_cmp_lt_u32 s[68:69], 48, v{ENT}
    s_cbranch_vccnz L_toobig
""")
for p in range(NP):
    E(f"""
    v_add_co_u32_dpp v2, vcc, v{ENT}, v{J3N} row_newbcast:{p} row_mask:0xf bank_mask:0xf
    v_add_u32_dpp v{RAD+p}, v{CAD}, v{J12} row_newbcast:{p} row_mask:0xf bank_mask:0xf
    s_mov_b64 s[{48+2*p}:{49+2*p}], vcc
    """)
lds_wait(L_CTR, 0xff00, 0x400, "r1")
if OPT["gate"]: lds_wait(L_GST, 0xff, 4, "gt")
if OPT["gate2"] == 1 and not OPT["split"]:
    if not OPT["allg"]: E("s_cmp_lt_u32 s3, 4\ns_cbranch_scc1 L_wd_g2")
    lds_wait(L_DONE2, 0xff, 5, "g2")
if OPT["gate2"] == 3:
    E("s_cmp_lt_u32 s3, 4\ns_cbranch_scc1 L_wd_g2")
    lds_wait(L_GST, 0xff, 4, "g2")
if OPT["gate2"] in (2, 4):
    E(f"""
    s_cmp_lt_u32 s3, 4
    s_cbranch_scc1 L_g2d
    s_mov_b32 s31, {POLL_MAX}
L_g2:
    ds_read_b128 v[60:63], v2 offset:{L_CTR}
    {f"ds_read_b32 v61, v2 offset:{L_GST}" if OPT["gate2"] == 4 else ""}
    s_sub_u32 s31, s31, 1
    s_cbranch_scc1 L_g2d
    s_waitcnt lgkmcnt(0)
    v_readfirstlane_b32 s30, v62
    v_readfirstlane_b32 s28, v60
    v_readfirstlane_b32 s29, v61
    s_cmp_eq_u32 s30, 5
    s_cbranch_scc1 L_g2d
    {"s_cmp_lg_u32 s29, 4" if OPT["gate2"] == 4 else ""}
    {"s_cbranch_scc1 L_g2" if OPT["gate2"] == 4 else ""}
    s_and_b32 s28, s28, 0xc0000
    s_cbranch_scc0 L_g2
L_g2d:
    """)
E(f"""
    s_or_b32 s68, s68, s69
    s_lshr_b32 s69, s68, 16
    s_or_b32 s68, s68, s69
""")
def mask2(p): return f"v_add_co_u32_dpp v2, vcc, v{ENT}, v{J3N2} row_newbcast:{p} row_mask:0xf bank_mask:0xf"
def loads(ps, lab):
    E(f"s_and_b32 s30, s68, {sum(1 << p for p in ps)}\ns_cbranch_scc0 L_nx{lab}")
    for p in ps:
        r = RB + 4*p
        E(f"""
        s_bitcmp1_b32 s68, {p}
        s_cbranch_scc0 L_nx{lab}{p}
        {mask2(p)}
        s_mov_b64 exec, vcc
        global_load_dwordx4 v[{r}:{r+3}], v{RAD+p}, s[20:21] offset:192 sc1
        s_mov_b64 exec, -1
L_nx{lab}{p}:
        """)
    E(f"L_nx{lab}:")
    for p in ps:
        r = RA + 4*p
        E(f"""
        s_mov_b64 exec, s[{48+2*p}:{49+2*p}]
        global_load_dwordx4 v[{r}:{r+3}], v{RAD+p}, s[20:21]{SC1 if (OPT["rsc1"] or lab != "m") else ""}
        """)
    E("s_mov_b64 exec, -1")
SP = OPT["split"]
GROUPS = {0: ((0,1,2,3),(4,5),(6,7)), 4: ((0,1,2,3),(4,5),(6,7)), 5: ((0,1,2),(3,4),(5,6,7)), 6: ((0,1,2,3),(4,5),(6,7)), 3: ((0,1,2),(3,4,5),(6,7)), 2: ((0,1),(2,3,4,5),(6,7)), 1: ((0,),(1,2,3,4),(5,6,7))}[SP]
if OPT['grp'] == 1: GROUPS = ((0,1),(2,3,4),(5,6,7))
if OPT['grp'] == 2: GROUPS = ((0,1),(2,3),(4,5),(6,7))
loads(range(SP or NP), "m")
if OPT["eag"]:
    E(f"""
    v_mov_b32 v2, 0
    ds_read_b32 v3, v2 offset:{L_DONE2}
    s_waitcnt lgkmcnt(0)
    v_readfirstlane_b32 s73, v3
    s_cmp_lg_u32 s73, 5
    s_cbranch_scc1 L_neag
    """)
    loads(range(SP, NP), "e")
    E("L_neag:")
def issued():
    if OPT["p2gate"]:
        E(f"""
        v_mov_b32 v2, 0
        v_mov_b32 v3, 0x10000
        s_mov_b64 exec, 1
        ds_add_u32 v2, v3 offset:{L_CTR}
        s_mov_b64 exec, -1
        """)
if not OPT["sig"]: issued()
STAMP(7)
def rank(r, m):
    E(f"""
    s_mov_b64 exec, {m}
    v_mul_u32_u24_sdwa v{r}, v{FOUR}, v{r+1} dst_sel:DWORD dst_unused:UNUSED_PAD src0_sel:DWORD src1_sel:BYTE_3
    v_and_b32 v{r+1}, {OPT['srcmask']}, v{r+1}
    ds_add_rtn_u32 v{r}, v{r}, v{FOUR} offset:{L_CNT}
    """)
def put(r, m):
    E(f"""
    s_mov_b64 exec, {m}
    v_lshlrev_b32 v2, 1, v{r}
    ds_write_b32 v{r}, v{r+1}
    ds_write_b64 v2, v[{r+2}:{r+3}] offset:{L_EA - 2*L_SRC}
    """)
retries = []
pending = []
for gi, grp in enumerate(GROUPS):
    bits = sum(1 << p for p in grp); m32 = bits | (bits << 16)
    if SP and grp[0] == SP:
        if OPT["eag"]: E("s_cmp_eq_u32 s73, 5\ns_cbranch_scc1 L_eagd")
        lds_wait(L_DONE2, 0xff, 5, "g2")
        loads(range(SP, NP), "n")
        E("L_eagd:")
        if OPT["sig"] == 9: issued()
    last = NP if (not SP or grp[0] >= SP) else SP
    first_ = 0 if (not SP or grp[0] < SP) else SP
    E(f"""
L_ck{gi}:
    s_mov_b32 vcc_lo, {m32}
    s_mov_b32 vcc_hi, {m32}
    v_cndmask_b32 v{ACC}, 0, v{ENT+1}, vcc
    s_and_b32 s30, s68, {bits}
    s_cbranch_scc1 L_xa{gi}
L_xb{gi}:
    """)
    def xacc():
        E(f"L_xa{gi}:\ns_waitcnt vmcnt({last - first_})")
        for p in grp:
            r = RB + 4*p
            E(f"""
            {mask2(p)}
            s_mov_b64 exec, vcc
            v_add3_u32 v{ACC}, v{ACC}, v{r+1}, v{r+2}
            v_add_u32 v{ACC}, v{ACC}, v{r+3}
            s_mov_b64 exec, -1
            """)
        E(f"s_branch L_xb{gi}")
    emit_to(outofline, xacc)
    for p in grp:
        r = RA + 4*p
        E(f"""
        s_waitcnt vmcnt({last-1-p})
        s_mov_b64 exec, s[{48+2*p}:{49+2*p}]
        v_and_b32 v{r}, v{r}, v{L0M}
        v_add3_u32 v{ACC}, v{ACC}, v{r+2}, v{r+3}
        v_add3_u32 v{ACC}, v{ACC}, v{r}, v{r+1}
        """)
    E("s_mov_b64 exec, -1\ns_nop 0")
    for k in (1, 2, 4, 8):
        E(f"v_add_u32_dpp v{ACC}, v{ACC}, v{ACC} row_ror:{k} row_mask:0xf bank_mask:0xf")
        if k < 8: E("s_nop 1")
    E(f"v_cmp_ne_u32 vcc, 0, v{ACC}\ns_cbranch_vccnz L_rt{gi}")
    if OPT["rst"]: STAMP(1+gi)
    if OPT["sig"] == gi + 1: issued()
    def retry():
        E(f"L_rt{gi}:\ns_sub_u32 s34, s34, 1\ns_cbranch_scc1 {'L_toobig' if (gi < OPT['sig'] if OPT['sig'] != 9 else grp[0] < SP) else 'L_giveup'}")
        loads(grp, f"r{gi}_")
        E(f"s_waitcnt vmcnt(0)\ns_branch L_ck{gi}")
    emit_to(outofline, retry)
    for p in grp: rank(RA + 4*p, f"s[{48+2*p}:{49+2*p}]")
    E(f"s_and_b32 s30, s68, {bits}\ns_cbranch_scc1 L_ya{gi}\nL_yb{gi}:")
    def xput():
        E(f"L_ya{gi}:")
        for p in grp:
            r = RB + 4*p
            E(f"""
            s_bitcmp1_b32 s68, {p}
            s_cbranch_scc0 L_yn{p}
            s_mov_b64 exec, -1
            {mask2(p)}
            """)
            rank(r, "vcc")
            E("s_waitcnt lgkmcnt(0)")
            put(r, "vcc")
            E(f"L_yn{p}:")
        E(f"s_branch L_yb{gi}")
    emit_to(outofline, xput)
    for k, p in enumerate(grp):
        E(f"s_waitcnt lgkmcnt({len(grp) - 1 - k + 2*k})")
        put(RA + 4*p, f"s[{48+2*p}:{49+2*p}]")
    E("s_mov_b64 exec, -1")
E(f"""
    {f"s_sub_u32 s{ST0+4}, {POLL_MAX+1}, s34" if OPT["cnt"] else ""}
    s_branch L_b4
L_toobig:
    s_mov_b64 exec, -1
""")
issued()
E(f"""
L_giveup:
    v_mov_b32 v2, 0
    ds_write_b32 v2, v{FOUR} offset:{L_FLAG}
L_recskip:
    s_waitcnt vmcnt(0)
L_b4:
    s_setprio {OPT["p0"] if OPT["prio"] == 2 else 0}
    s_mul_i32 s30, s{S_HALF}, {G_HALF}
    {f"s_add_u32 s30, s30, {WS0}" if WS0 else ""}
    s_add_u32 s36, s20, s30
    s_addc_u32 s37, s21, 0
    s_mov_b32 s38, {OPT['nrec'] or G_HALF}
    s_mov_b32 s39, 0x20000
    s_mov_b32 s44, 128
    s_mov_b32 s45, 128
    ds_read_b128 v[{WS4}:{WS4+3}], v{LP}
    ds_read_b64 v[{AG}:{AG+1}], v{LP} offset:64
    ds_read_b64 v[{WN2}:{WN2+1}], v{LP} offset:72
    ds_read_b32 v{WE}, v{LP+1}
    s_waitcnt lgkmcnt(0)
    v_lshl_add_u64 v[{AG}:{AG+1}], v[{AG}:{AG+1}], 0, v[{LN8}:{LN8+1}]
    v_lshl_add_u32 v{WE}, v{WE}, 1, v{EAC}
""")
assert OPT["gpe"] <= 64 and not OPT["ptime"]
if OPT["warm"]:
    E(f"""
    s_barrier
    s_lshr_b32 s30, s2, 3
    s_mul_i32 s30, s30, 98304
    v_lshl_add_u32 v2, v0, 7, s30
    buffer_load_dword v3, v2, s[36:39], 0 offen sc1
    s_waitcnt vmcnt(0)
    s_sleep 40
    """)
STAMP(8)
E(f"""
    s_barrier                               ; B4
    s_cmp_lg_u32 s{S_SAFE}, 0
    s_cbranch_scc1 L_safe
    ds_read_b128 v[{T}:{T+3}], v{WS4}
    ds_read_b128 v[{T+4}:{T+7}], v{WS4+1}
    ds_read_b64 v[{XA}:{XA+1}], v{AG} offset:512
    ds_read_b64 v[{EA}:{EA+1}], v{WE}
    s_lshr_b32 s30, s3, 2
    s_cmp_lg_u32 s30, 1
    s_cbranch_scc1 L_nopoll
    s_mov_b64 exec, s[66:67]
    s_cbranch_execz L_p2e
    s_mov_b32 s31, {POLL_MAX}
L_p2:
    global_load_dwordx2 v[66:67], v64, s[20:21] sc1
    s_sub_u32 s31, s31, 1
    s_cbranch_scc1 L_p2d
    s_waitcnt vmcnt(0)
    v_cmp_ne_u64 vcc, s[{S_TAG}:{S_TAG+1}], v[66:67]
    s_and_b64 exec, exec, vcc
    s_cbranch_scc0 L_p2d
    {f"s_sleep {OPT['p2sleep']}" if OPT['p2sleep'] else ""}
    s_branch L_p2
L_p2d:
""")
gready("b")
E(f"""
L_p2e:
    s_mov_b64 exec, -1
L_nopoll:
    s_cmp_lt_u32 s3, 8
    s_cbranch_scc1 L_nobuild
; waves 8..11: place the edges past the 24th of every node: blocks of 8 (two tiles), then remainders of up to 4
    v_lshlrev_b32 v2, 3, v1
    v_mov_b32 v3, 0
    ds_read_b64 v[72:73], v2 offset:{L_CNT}
    ds_read_b32 v79, v3 offset:{L_FLAG}
    v_mul_u32_u24 v74, {2*SSTR}, v1
    v_add_u32 v74, {L_SRC + 96}, v74
    v_add_u32 v75, {SSTR}, v74
    v_mul_u32_u24 v82, {2*NSTR}, v1
    s_and_b32 s32, s3, 1
    s_mul_i32 s30, s32, {NSTR}
    s_add_u32 s30, s30, {L_NODE}
    v_add_u32 v82, s30, v82
    v_mov_b32 v83, v82
    s_mul_i32 s30, s32, {SSTR}
    v_add_u32 v80, s30, v74
    v_add_u32 v81, 16, v80
    s_waitcnt lgkmcnt(0)
    v_sub_u32 v72, v72, v74 clamp
    v_sub_u32 v73, v73, v75 clamp
    v_max_u32 v76, v72, v73
    v_cmp_lt_u32 vcc, 160, v76
    v_cmp_ne_u32 s[48:49], 0, v79
    v_add_u32 v74, 12, v72
    v_add_u32 v75, 12, v73
    s_or_b64 vcc, vcc, s[48:49]
    s_cbranch_scc1 L_bad
    v_add_u32 v72, 28, v72
    v_add_u32 v73, 28, v73
    v_lshrrev_b32 v74, 5, v74
    v_lshrrev_b32 v75, 5, v75
    v_lshrrev_b32 v72, 5, v72
    v_lshrrev_b32 v73, 5, v73
    v_sub_u32 v72, v72, v74
    v_sub_u32 v73, v73, v75
    v_lshl_or_b32 v72, v72, 16, v74
    v_lshl_or_b32 v73, v73, 16, v75
    v_add_u32 v76, v72, v73
    v_add_u32 v77, v72, v73
""")
scan(77)
E(f"""
    s_cmp_eq_u32 s32, 0
    s_cselect_b64 vcc, -1, 0
    v_readlane_b32 s30, v77, 63
    v_cndmask_b32 v76, v73, v76, vcc
    v_cndmask_b32 v72, v73, v72, vcc
    v_sub_u32 v77, v77, v76
    s_and_b32 s50, s30, 0xffff
    s_add_u32 s31, s50, 3
    s_lshr_b32 s31, s31, 2
    s_sub_u32 s51, 0, s50
    s_and_b32 s51, s51, 3                   ; spare quarters of the last such slot take remainders
    s_lshr_b32 s30, s30, 16
    s_add_u32 s30, s30, 3
    s_sub_u32 s30, s30, s51
    s_lshr_b32 s30, s30, 2
    s_lshl_b32 s33, s31, 1
    s_add_u32 s33, s33, s30
    s_cmp_gt_u32 s33, 104
    s_cbranch_scc1 L_bad
    s_lshl_b32 s30, s30, 8
    s_or_b32 s29, s30, s31
    v_and_b32 v74, 0xffff, v72
    v_and_b32 v76, 0xffff, v77
    s_mov_b32 s34, {L_LISTC}
    s_mov_b32 s35, {L_LIST + 136}
""")
def slotaddr():
    E(f"""
    v_subrev_u32 v78, 32, v76
    v_bfe_u32 v79, v76, 2, 2
    v_lshl_add_u32 v79, v79, 10, s34
    v_lshrrev_b32 v84, 5, v78
    v_lshl_add_u32 v79, v84, 7, v79
    v_bfe_u32 v84, v78, 4, 1
    v_lshl_add_u32 v79, v84, 3, v79
    v_lshrrev_b32 v84, 2, v76
    v_cmp_gt_u32 vcc, 32, v76
    v_lshl_add_u32 v84, v84, 9, s35
    v_and_b32 v78, 3, v76
    v_cndmask_b32 v79, v79, v84, vcc
    v_lshl_add_u32 v79, v78, 4, v79
    """)
E("""
    s_cmp_lt_u32 s3, 10
    s_cbranch_scc1 L_brem
L_bf:
    v_cmp_ne_u32 vcc, 0, v74
    s_and_b64 exec, exec, vcc
    s_cbranch_execz L_bfd
""")
slotaddr()
E(f"""
    ds_write_b64 v79, v[80:81]
    ds_write_b64 v79, v[82:83] offset:64
    v_add_u32 v80, 32, v80
    v_add_u32 v81, 32, v81
    v_add_u32 v76, 1, v76
    v_subrev_u32 v74, 1, v74
    s_branch L_bf
L_brem:
    v_lshl_add_u32 v80, v74, 5, v80
    v_add_u32 v81, 16, v80
    v_lshrrev_b32 v77, 16, v77
    s_sub_u32 s52, 0, s31
    s_and_b32 s52, s52, 3
    s_add_u32 s53, s31, s52
    s_lshl_b32 s52, s52, 3
    v_subrev_u32 v73, s51, v77              ; j' = j - spare
    v_subrev_u32 v74, s52, v73
    v_lshrrev_b32 v76, 3, v73
    v_add_u32 v76, s31, v76
    v_and_b32 v75, 4, v73
    v_lshrrev_b32 v78, 5, v74
    v_lshl_add_u32 v78, v78, 2, s53
    v_bfe_u32 v79, v74, 2, 2
    v_add_u32 v78, v78, v79
    v_cmp_gt_u32 vcc, s52, v73
    v_lshrrev_b32 v74, 2, v74
    v_and_b32 v74, 4, v74
    v_cndmask_b32 v76, v78, v76, vcc        ; slot
    v_cndmask_b32 v75, v74, v75, vcc
    v_and_b32 v78, 3, v73
    v_cmp_gt_u32 s[54:55], s51, v77
    v_lshl_add_u32 v76, v76, 2, v78
    v_add_u32 v78, s50, v77
    v_cndmask_b32 v76, v76, v78, s[54:55]
""")
slotaddr()
E(f"""
    v_cmp_lt_u32 vcc, 0xffff, v72
    v_add_u32 v75, v79, v75
    s_andn2_b64 exec, vcc, s[54:55]
    ds_write2_b32 v75, v80, v82 offset0:0 offset1:16
    s_and_b64 exec, vcc, s[54:55]
    ds_write_b64 v79, v[80:81]
    ds_write_b64 v79, v[82:83] offset:64
L_bfd:
    s_mov_b64 exec, -1
    s_mov_b32 s56, s29
    s_cmp_eq_u32 s3, 8
    s_cselect_b32 s29, s29, 0
    s_add_u32 s29, s29, 0x10000
    s_branch L_built
L_bad:
    s_mov_b32 s56, 0
    s_mov_b32 s29, 0x1010000
L_built:
    v_mov_b32 v2, s29
    s_mov_b64 exec, 1
    ds_add_u32 v3, v2 offset:{L_NST}
    s_add_u32 s30, s{S_P}, s3
    s_cmp_lg_u32 s30, 8
    s_cbranch_scc1 L_notw
    v_mov_b32 v2, s{S_TAG}
    v_mov_b32 v3, {WS_TAG}
    global_store_dword v3, v2, s[20:21] sc1
L_notw:
    s_mov_b64 exec, -1
    v_mov_b32 v2, 0
    s_mov_b32 s30, s56
    s_and_b32 s31, s30, 0xff
    s_bfe_u32 s30, s30, 0x80008
    s_and_b32 s28, s3, 3
    s_sub_u32 s32, 0, s31
    s_and_b32 s32, s32, 3
    s_add_u32 s33, s28, s32
    s_sub_i32 s33, s33, 4
    s_lshl_b32 s29, s33, 1
    s_sub_i32 s29, s30, s29
    s_max_i32 s29, s29, 0
    s_min_i32 s29, s29, 2
    s_cmp_lt_i32 s33, 0
    s_cselect_b32 s29, 0, s29
    s_lshl_b32 s32, s32, 1
    s_sub_i32 s30, s30, s32
    s_sub_i32 s30, s30, s28
    s_add_i32 s30, s30, 3
    s_max_i32 s30, s30, 0
    s_lshr_b32 s30, s30, 2
    s_add_u32 s30, s30, s29
    s_sub_u32 s32, s31, s28
    s_add_u32 s32, s32, 3
    s_lshr_b32 s32, s32, 2
    s_lshl_b32 s32, s32, 1
    s_add_u32 s30, s30, s32
    s_sub_i32 s30, s30, 4
    s_max_i32 s30, s30, 0
    s_add_u32 s{S_R}, s30, 6
    s_sub_i32 s31, s31, s3
    s_add_i32 s31, s31, 3
    s_max_i32 s31, s31, 0
    s_lshr_b32 s31, s31, 2
    s_lshl_b32 s31, s31, 1
    s_lshl_b32 s31, -1, s31
    s_or_b32 s31, s31, 0x55555555
    s_lshl_b32 s32, 2, s30
    s_sub_u32 s32, s32, 1
    s_and_b32 s31, s31, s32
    s_lshl_b32 s32, 64, s30
    s_or_b32 s{S_M}, s31, s32
    v_and_b32 v72, 15, v1
    v_lshrrev_b32 v73, 4, v1
    s_lshl_b32 s31, s3, 2
    s_add_u32 s31, s31, 32
    v_add_u32 v73, s31, v73                 ; node
    v_mul_u32_u24 v74, {SSTR}, v73
    v_lshl_add_u32 v74, v72, 4, v74
    v_add_u32 v74, {L_SRC}, v74
    v_mul_u32_u24 v75, {NSTR}, v73
    v_add_u32 v75, {L_NODE}, v75
    v_cmp_gt_u32 vcc, 6, v72
    v_add_u32 v72, s30, v72
    v_lshrrev_b32 v73, 2, v72
    v_lshl_add_u32 v73, v73, 7, v{LP}
    v_and_b32 v72, 3, v72
    v_lshl_add_u32 v73, v72, 2, v73
    s_mov_b64 exec, vcc
    ds_write2_b32 v73, v74, v75 offset0:0 offset1:16
    s_cmp_lg_u32 s30, 0
    s_cbranch_scc1 L_cw2
    v_mov_b32 v3, 1
    s_mov_b64 exec, 1
    ds_add_u32 v2, v3 offset:{L_DYN}
L_cw2:
    s_mov_b64 exec, -1
    s_mov_b32 s31, {LDS_MAX}
L_wnc:
    ds_read_b32 v3, v2 offset:{L_NST}
    s_sub_u32 s31, s31, 1
    s_cbranch_scc1 L_gosafe
    s_waitcnt lgkmcnt(0)
    v_readfirstlane_b32 s30, v3
    s_bitcmp1_b32 s30, 18
    s_cbranch_scc0 L_wnc
    s_cmp_gt_u32 s30, {0 if OPT["force_safe"] else 0xffffff}
    s_cbranch_scc1 L_gosafe
    ds_read_b128 v[{WS4}:{WS4+3}], v{LP}
    ds_read_b64 v[{AG}:{AG+1}], v{LP} offset:64
    ds_read_b64 v[{WN2}:{WN2+1}], v{LP} offset:72
    ds_read_b32 v{WE}, v{LP+1}
    s_waitcnt lgkmcnt(0)
    v_lshl_add_u64 v[{AG}:{AG+1}], v[{AG}:{AG+1}], 0, v[{LN8}:{LN8+1}]
    v_lshl_add_u32 v{WE}, v{WE}, 1, v{EAC}
    ds_read_b128 v[{T}:{T+3}], v{WS4}
    ds_read_b128 v[{T+4}:{T+7}], v{WS4+1}
    ds_read_b64 v[{XA}:{XA+1}], v{AG} offset:512
    ds_read_b64 v[{EA}:{EA+1}], v{WE}
L_nobuild:
    s_waitcnt lgkmcnt(0)
""")
assert DIST == 2 and not EARLY
E(m_a(D0))
for o in range(T, T+8, 2): E(oadd(o))
E(m_e(D0, 0))
E(f"ds_read_b64 v[{XA}:{XA+1}], v{AG+1} offset:512")
lds_wait(L_GOK, 0xff, 4, "gok")
if OPT["stamps"] == 2: E(f"s_memrealtime s[{ST0+16}:{ST0+17}]")
if not OPT["nogather"]:
    for q in range(8): E(gload(G + 4*q, T+q))
STAMP(9)
E(f"""
    s_mov_b32 s31, {LDS_MAX}
    s_waitcnt vmcnt(4)
""")
E(m_s(D0, A1, G)); E(m_s(D0, A2, G+8))
E(f"""
    s_cmp_ge_u32 s3, 8
    s_cbranch_scc1 L_nd
L_wna:
    ds_read_b32 v3, v2 offset:{L_NST}
    s_sub_u32 s31, s31, 1
    s_cbranch_scc1 L_gosafe
    s_waitcnt lgkmcnt(0)
    v_readfirstlane_b32 s30, v3
    s_bitcmp1_b32 s30, 18
    s_cbranch_scc0 L_wna
    s_cmp_gt_u32 s30, {0 if OPT["force_safe"] else 0xffffff}
    s_cbranch_scc1 L_gosafe
    s_and_b32 s31, s30, 0xff
    s_mov_b32 s{S_R}, 14
    s_cmp_ge_u32 s3, s31
    s_cselect_b32 s30, 0x80, 0
    s_or_b32 s{S_M}, s30, 0x4141
L_nd:
    v_mov_b32 v3, 1
    s_nop 5
    s_mov_b32 s{S_IT}, {(1 << OPT["pa"]) | (1 << OPT["pb"]) | (1 << OPT["pc"]) if OPT["prio"] == 2 else 0}
""")
if OPT["prio"]: E(f"s_setprio {OPT['p1']}")
STAMP(10)
if OPT["ptime"]: E("v_mov_b32 v70, 0\nv_mov_b32 v71, 0")
if OPT["stamps"] == 1: E(f"s_memtime s[{ST0+24}:{ST0+25}]\ns_waitcnt lgkmcnt(0)")
for u in range(4): phase(u, True)
for u in range(4): phase(u, False)
E(f"""
L_mdone:
""")
STAMP(11)
if OPT["ptime"]:
    E(f"""
    s_lshl_b32 s30, s2, 4
    s_add_u32 s30, s30, s3
    s_lshl_b32 s30, s30, 8
    s_add_u32 s30, s30, 0xc00000
    v_lshl_add_u32 v2, v1, 2, s30
    s_mov_b32 exec_hi, 0
    global_store_dword v2, v70, s[20:21]
    global_store_dword v2, v71, s[20:21] offset:128
    s_mov_b64 exec, -1
    """)
if OPT["stamps"] == 1:
    E(f"s_memtime s[28:29]\ns_waitcnt lgkmcnt(0)\ns_sub_u32 s{ST0+24}, s28, s{ST0+24}")
E(f"""
    s_mov_b32 s32, {f32(2.0**32)}
    s_mov_b32 s34, {f32(-LOG2E * 2.0**-32)}
    v_mov_b32 v9, 0x207
    s_cmp_eq_u32 s{S_SAFE}, 0
    s_cbranch_scc1 L_dy
    s_waitcnt lgkmcnt(0)
    s_barrier
L_dy:
    v_mov_b32 v2, 0
    s_mov_b32 s31, {LDS_MAX}
""")
OSC = {0: "", 1: " sc1", 2: " nt"}[OPT["osc"]]
def epi(us):
    E(f"L_dw{len(us)}:\nds_read_b32 v3, v2 offset:{L_DYN}")
    for u in us: E(f"ds_read_b64 v[{12+4*u}:{13+4*u}], v68 offset:{(0,2,32,34)[u]*NSTR}\nds_read_b64 v[{14+4*u}:{15+4*u}], v68 offset:{(0,2,32,34)[u]*NSTR + 128}")
    E(f"""
    s_sub_u32 s31, s31, 1
    s_cbranch_scc1 L_dx{len(us)}
    s_waitcnt lgkmcnt({2*len(us)})
    v_readfirstlane_b32 s30, v3
    s_add_u32 s30, s30, s{S_SAFE}
    s_cmp_lt_u32 s30, 12
    s_cbranch_scc1 L_dw{len(us)}
L_dx{len(us)}:
    s_waitcnt lgkmcnt(0)
    """)
    for u in us: E(f"v_cvt_f32_f64 v{28+2*u}, v[{12+4*u}:{13+4*u}]\nv_cvt_f32_f64 v{29+2*u}, v[{14+4*u}:{15+4*u}]")
    for u in us: E(f"v_pk_mul_f32 v[{36+2*u}:{37+2*u}], v[{28+2*u}:{29+2*u}], s[34:35] op_sel_hi:[1,0]")
    for u in us: E(f"v_exp_f32 v{36+2*u}, v{36+2*u}\nv_exp_f32 v{37+2*u}, v{37+2*u}")
    E("v_pk_add_f32 v[10:11], v[28:29], v[30:31]")
    for u in us: E(f"v_pk_fma_f32 v[{36+2*u}:{37+2*u}], v[{36+2*u}:{37+2*u}], s[32:33], s[32:33] op_sel_hi:[1,0,0]")
    for u in us: E(f"v_rcp_f32 v{36+2*u}, v{36+2*u}\nv_rcp_f32 v{37+2*u}, v{37+2*u}")
    E("v_pk_add_f32 v[10:11], v[10:11], v[32:33]" if len(us) > 2 else "s_nop 0")
    for u in us: E(f"v_pk_mul_f32 v[{36+2*u}:{37+2*u}], v[{28+2*u}:{29+2*u}], v[{36+2*u}:{37+2*u}]")
    for u in us: E(f"v_cvt_pk_bf16_f32 v{44+u}, v{36+2*u}, v{37+2*u}\nglobal_store_dword v{69+(u>>1)}, v{44+u}, s[18:19] offset:{512*(u&1)}{OSC}")
    for u in us[3:]: E(f"v_pk_add_f32 v[10:11], v[10:11], v[{28+2*u}:{29+2*u}]")
E("s_cmp_ge_u32 s3, 8\ns_cbranch_scc1 L_e3")
epi([0, 1, 2, 3])
E("s_branch L_e4\nL_e3:")
epi([0, 1])
E(f"""
L_e4:
    v_add_f32 v10, v10, v11
    v_cmp_class_f32 vcc, v10, v9
    v_mov_b32 v2, 0
    s_cmp_lg_u32 s{S_SAFE}, 0
    s_cbranch_scc1 L_fin
    {"s_branch" if OPT["nosafe"] else "s_cbranch_vccz"} L_e5
    ds_write_b32 v2, v9 offset:{L_FLAG}
    s_waitcnt lgkmcnt(0)
L_e5:
    s_barrier                               ; B6
    ds_read_b32 v2, v2 offset:{L_FLAG}
    s_waitcnt lgkmcnt(0)
    v_readfirstlane_b32 s30, v2
    s_cmp_lg_u32 s30, 0
    s_cbranch_scc1 L_gosafe
L_fin:
""")
if OPT["stamps"]:
    E("s_waitcnt vmcnt(0)"); STAMP(13); STAMP_OUT()
if OPT["probe"] >= 0:
    T_ = ST0 + 2*OPT["probe"]
    E(f"""
    s_cmp_lg_u32 s3, {OPT["pw"]}
    s_cbranch_scc1 L_end
    s_cmp_lg_u32 s2, {OPT["pg"] if OPT["pg"] >= 0 else "s2"}
    s_cbranch_scc1 L_end
    s_sub_u32 s30, s{T_}, s{ST0}
    s_lshl_b32 s30, s30, 2
    s_add_u32 s30, s30, 3000
    s_min_u32 s30, s30, 20000
L_spin:
    s_memrealtime s[28:29]
    s_waitcnt lgkmcnt(0)
    s_sub_u32 s28, s28, s{ST0}
    s_cmp_lt_u32 s28, s30
    s_cbranch_scc1 L_spin
    """)
E(f"""
L_end:
    s_endpgm
L_gosafe:
    s_mov_b32 s{S_SAFE}, 16
    s_setprio 0
    s_waitcnt vmcnt(0) lgkmcnt(0)
    s_barrier
    s_branch L_restart
""")
out += outofline
for r in retries: E(r)
E(f"""
L_safe:
    v_and_b32 v2, 15, v1
    v_lshlrev_b32 v3, 3, v2
    v_add_u32 v3, {L_C}, v3
""")
for k in range(4):
    for s in range(4):
        E(f"ds_read_u16 v{80+4*k+s}, v3 offset:{128*k + 2*s}")
E("s_waitcnt lgkmcnt(0)")
for i in range(16):
    E(f"v_lshlrev_b32 v{80+i}, 16, v{80+i}\nv_mul_f32 v{80+i}, s40, v{80+i}")
E(f"""
    v_lshrrev_b32 v24, 4, v1
    v_mul_u32_u24 v24, 3, v24               ; 3*quarter
    s_movk_i32 s33, {NSTR}
    v_add_u32 v25, {L_NODE}, v{LN8}
    s_mov_b32 s34, s3
    s_mov_b32 s35, {POLL_MAX}
L_scell:
    s_lshl_b32 s30, s34, 10
    s_lshl_b32 s31, s{S_BUCK}, 3
    s_add_u32 s30, s30, s31
    s_add_u32 s30, s30, {WS_ROW}
    v_mov_b32 v26, s30
    global_load_dword v32, v26, s[20:21] sc1
    s_mul_i32 s30, s34, {SORTB//4}
    s_add_u32 s30, s30, {WS_REC//4}
    s_waitcnt vmcnt(0)
    v_bfe_u32 v28, v32, 12, 12              ; 3*count
    v_and_b32 v27, 0xfff, v32
    v_add_u32 v27, s30, v27
L_sver:
    v_mov_b32 v29, v1
    v_mov_b32 v31, 0
L_sv1:
    v_cmp_ge_u32 vcc, v28, v29
    s_and_saveexec_b64 s[48:49], vcc
    s_cbranch_execz L_sv2
    v_add_lshl_u32 v30, v27, v29, 2
    global_load_dword v32, v30, s[20:21] sc1
    s_waitcnt vmcnt(0)
    v_add_u32 v31, v31, v32
    s_mov_b64 exec, s[48:49]
    v_add_u32 v29, 64, v29
    s_branch L_sv1
L_sv2:
    s_mov_b64 exec, s[48:49]
""")
scan(31)
E(f"""
    s_nop 0
    v_readlane_b32 s30, v31, 63
    s_cmp_eq_u32 s30, s{S_TAG+1}
    s_cbranch_scc1 L_sok
    s_sub_u32 s35, s35, 1
    s_cbranch_scc0 L_sver
    s_branch L_mdone
L_sok:
    v_mov_b32 v29, v24
L_srec:
    v_cmp_gt_u32 vcc, v28, v29
    s_and_saveexec_b64 s[48:49], vcc
    s_cbranch_execz L_snext
    v_add_lshl_u32 v30, v27, v29, 2
    global_load_dwordx3 v[32:34], v30, s[20:21] offset:4 sc1
    s_waitcnt vmcnt(0)
    v_and_b32 v30, 0x3fff00, v32
    v_add_u32 v30, v30, v{LN16}
    buffer_load_dwordx4 v[36:39], v30, s[36:39], 0 offen sc1
    v_lshrrev_b32 v31, 24, v32
    v_mad_u32_u24 v31, v31, s33, v25
    ds_read_b64 v[40:41], v31 offset:512
    v_lshlrev_b32 v44, 16, v33
    v_and_b32 v45, 0xffff0000, v33
    v_lshlrev_b32 v46, 16, v34
    v_and_b32 v47, 0xffff0000, v34
    s_waitcnt vmcnt(0) lgkmcnt(0)
    v_lshlrev_b32 v48, 16, v40
    v_and_b32 v49, 0xffff0000, v40
    v_lshlrev_b32 v50, 16, v41
    v_and_b32 v51, 0xffff0000, v41
""")
for s in range(4):
    E(f"v_lshlrev_b32 v52, 16, v{36+s}\nv_add_f32 v{48+s}, v{48+s}, v52")
    for k in range(4):
        E(f"v_fmac_f32 v{48+s}, v{44+k}, v{80+4*k+s}")
for s in range(4): E(f"v_exp_f32 v{48+s}, v{48+s}")
E("s_nop 0")
for s in range(4): E(f"v_add_f32 v{48+s}, 1.0, v{48+s}")
for s in range(4): E(f"v_rcp_f32 v{48+s}, v{48+s}")
E("s_nop 0")
for s in range(4): E(f"v_mul_f32 v{48+s}, v{48+s}, v{36+s}")
for s in range(4): E(f"v_cvt_f64_f32 v[{54+2*s}:{55+2*s}], v{48+s}")
for s in range(4): E(f"ds_add_f64 v31, v[{54+2*s}:{55+2*s}] offset:{128*s}")
E(f"""
    s_mov_b64 exec, s[48:49]
    v_add_u32 v29, 12, v29
    s_branch L_srec
L_snext:
    s_mov_b64 exec, s[48:49]
    s_add_u32 s34, s34, {NW}
    s_cmp_lt_u32 s34, {NCHUNK}
    s_cbranch_scc1 L_scell
    s_branch L_mdone
L_codeend:
.section .rodata,"a"
.p2align 6
.amdhsa_kernel {NAME}
.amdhsa_next_free_vgpr 168
.amdhsa_next_free_sgpr 102
.amdhsa_accum_offset 168
.amdhsa_group_segment_fixed_size 0
.amdhsa_kernarg_size 80
.amdhsa_user_sgpr_count 2
.amdhsa_user_sgpr_kernarg_segment_ptr 1
.amdhsa_system_sgpr_workgroup_id_x 1
.end_amdhsa_kernel
""")
if OPT["drop"]:
    i0 = out.index("L_L0:"); i1 = out.index("L_mdone:")
    pats = {1: ("smfmac",), 2: ("mfma",), 3: ("32x32x8",), 4: ("smfmac",), 5: ("v_exp",)}[OPT["drop"]]
    repl = {4: "    s_nop 2", 5: "    s_nop 1"}.get(OPT["drop"])
    mid = []
    for l in out[i0:i1]:
        if any(x in l for x in pats):
            if repl: mid.append(repl)
        else: mid.append(l)
    if OPT["drop"] == 3: mid = [l.replace("v[88:103] cbsz", "0 cbsz").replace("v[72:87] cbsz", "0 cbsz") for l in mid]
    out = out[:i0] + mid + out[i1:]
if OPT["nochain"]:
    i0 = out.index("L_L0:"); i1 = out.index("L_mdone:")
    out = out[:i0] + [l for l in out[i0:i1] if not any(x in l for x in ("v_exp", "v_pk_", "mfma", "v_rcp", "v_cvt"))] + out[i1:]
open(sys.argv[1], "w").write("\n".join(out) + "\n")
```

```python
import sys, struct

OPT = dict(hb=1, aue=0, mcl=2, b31=1, split=3, grp=0, allg=0, eag=1, stamps=0, force_safe=0, nogather=0, nosafe=0, prio=2, gsc1=1, osc=1, codepf=1, srcmask=0x3fff00, nrec=0, warm=0,
           nochain=0, probe=-1, pw=-1, pg=-1, gpf=32, early=0, cnt=0, pollmax=200000, pa=6, pb=3, pc=2, p0=3, p1=3, ptime=0,
           dist=2, ldearly=0, drop=0, wgate=0, gate=0, gate2=1, rst=0, rsc1=1, nover=0, p2gate=1, p2sleep=0, hold=0, slate=2, lpos=0, p1st=1, sig=2, gpace=4, gwin=-1, gp=0xf448c, ghold=0, nte=0, ewhen=1, wpf=1, gpe=40, oneb=0, tagl=0, p0e=0, aul=0, t0f=0, pre=0, prelate=0, ntx=0, rpace=-1, p2wait=0)
for a in sys.argv[2:]:
    k, v = a.split("=")
    assert k in OPT, k
    OPT[k] = int(v, 0)

out = []
def E(s=""):
    for line in s.split("\n"):
        line = line.strip()
        if not line:
            continue
        if line.endswith(":") or line.startswith(".") or line.startswith(";"):
            out.append(line)
        else:
            out.append("    " + line)

def f32(x):
    return "0x%08x" % struct.unpack("<I", struct.pack("<f", x))[0]

NAME = "standalone__edge_featured_mpnn_egc__graph_kernel"
LOG2E = 1.4426950408889634
NB = 80; NBUCK = 125; CHUNK = 1280; NCHUNK = 250
NW = 12
G_HALF = 10000 * 256
WS0 = 0
WS_REC = 0x500000
WS_ROW = 0x900000
WS_FL2 = 0x980000
WS_TAG = 0x9c0000
SORTB = CHUNK * 12 + 512
WS_STAMP = 0x1000000
L_CNT = 0; L_SOFF = 512
L_SCNT = 1024
L_CTR = 1536; L_RD = 1540; L_DONE2 = 1544; L_FLAG = 1548; L_NST = 1552; L_GST = 1556; L_GOK = 1560; L_AU = 1564; L_DYN = 1568
L_DUM = L_SOFF
L_LIST = 2048
L_LISTC = L_LIST + 4096
SSTR = 272
L_SRC = L_LIST + 8192
SRCB = 80 * SSTR + 32
L_EA = L_SRC + SRCB
L_EAEND = L_EA + 2 * SRCB
L_SORT = L_EA
L_WBV = (L_EAEND + 255) // 256 * 256; L_X = L_WBV + 32768; L_WAU = L_X + 20480; L_C = L_WAU + 32768
LDS = L_C + 1024
L_NODE = L_WBV; NSTR = 648
assert L_NODE + 80 * NSTR <= L_WAU and LDS <= 163840 and L_EA % 16 == 0
NULL_SRC = 0x7fffff00
POLL_MAX = OPT["pollmax"]
LDS_MAX = 20 * POLL_MAX
SC1 = " sc1"
NTE = " nt" if OPT["nte"] else ""
NTX = " nt" if OPT["ntx"] else ""

S_HALF, S_BUCK, S_P = 22, 23, 24
S_SAFE, S_TAG = 25, 26
S_R, S_M, S_IT = 70, 71, 72
S_TAGRAW = 47
ST0 = 74

def ESTAMP(i):
    if OPT["early"] == 1 or (OPT["early"] and i == 0): E(f"s_memrealtime s[{ST0+2*i}:{ST0+2*i+1}]")
def FSTAMP(i):
    if OPT["early"] == 2: E(f"s_memrealtime s[{ST0+2*i}:{ST0+2*i+1}]\ns_waitcnt lgkmcnt(0)")
def STAMP(i):
    if OPT["stamps"] == 2:
        if i == 0: E(f"s_memrealtime s[{ST0}:{ST0+1}]")
        if i == 13: E(f"s_memrealtime s[{ST0+26}:{ST0+27}]\ns_waitcnt lgkmcnt(0)")
        return
    if OPT["early"] and 1 <= i <= 7: return
    if OPT["early"] and i == 0: return ESTAMP(0)
    if OPT["stamps"] or (OPT["probe"] >= 0 and i == OPT["probe"]):
        E(f"s_memrealtime s[{ST0+2*i}:{ST0+2*i+1}]\ns_waitcnt lgkmcnt(0)")
    elif OPT["probe"] >= 0 and i == 0:
        E(f"s_memrealtime s[{ST0}:{ST0+1}]")
NSTAMP = 14
def STAMP_OUT():
    if OPT["stamps"]:
        E(f"""
        s_lshl_b32 s30, s2, 4
        s_add_u32 s30, s30, s3
        s_lshl_b32 s30, s30, 6
        s_add_u32 s30, s30, {WS_STAMP - 0x100000}
        s_load_dwordx2 s[20:21], s[0:1], 72
        s_waitcnt lgkmcnt(0)
        s_mov_b64 exec, -1
        v_mov_b32 v3, s30""")
        for i in (range(NSTAMP) if OPT["stamps"] == 1 else (0, 8, 13)):
            E(f"v_mov_b32 v2, s{ST0+2*i}\nglobal_store_dword v3, v2, s[20:21] offset:{4*i}")
        E("s_waitcnt vmcnt(0)")

A1, A2, IDX, EAC, LN16, ASEL, CW, LN8 = 4, 8, 12, 13, 14, 16, 18, 20
LP, WS4, WN2, EA, XA, WE, OFS, AG, T, N, P, F = 22, 24, 28, 30, 32, 34, 36, 40, 44, 52, 56, 60
D0, D1, G = 72, 88, 104

def finish_tag():
    E(f"""
    s_mul_i32 s{S_TAG+1}, s{S_TAGRAW}, 0x85ebca6b
    s_mul_i32 s{S_TAG}, s{S_TAGRAW}, 0x9e3779b1
    s_add_u32 s{S_TAG+1}, s{S_TAG+1}, 0x5bd1e995
    s_add_u32 s{S_TAG}, s{S_TAG}, 0x7f4a7c15
    """)
def get_tag(lab, q):
    E(f"""
    s_cmp_lg_u32 s{S_SAFE}, 0
    s_cbranch_scc1 L_tag_{lab}
    v_mov_b32 v2, 0
    s_mov_b32 s31, {LDS_MAX}
L_tg_{lab}:
    ds_read_b128 v[{q}:{q+3}], v2 offset:{L_SCNT + 124*4}
    s_sub_u32 s31, s31, 1
    s_cbranch_scc1 L_tag_{lab}
    s_waitcnt lgkmcnt(0)
    v_readfirstlane_b32 s30, v{q+3}
    v_readfirstlane_b32 s{S_TAGRAW}, v{q+1}
    s_cmp_lg_u32 s30, 4
    s_cbranch_scc1 L_tg_{lab}
    """)
    finish_tag()
    E(f"L_tag_{lab}:")

def lds_wait(addr, mask, val, tag, sleep=0, ne=False):
    E(f"""
    v_mov_b32 v2, 0
    s_mov_b32 s31, {LDS_MAX}
L_w_{tag}:
    {f"s_sleep {sleep}" if sleep else ""}
    ds_read_b32 v3, v2 offset:{addr}
    s_sub_u32 s31, s31, 1
    s_cbranch_scc1 L_wd_{tag}
    s_waitcnt lgkmcnt(0)
    v_readfirstlane_b32 s30, v3
    s_and_b32 s30, s30, {mask}
    s_cmp_lg_u32 s30, {val}
    s_cbranch_scc{0 if ne else 1} L_w_{tag}
L_wd_{tag}:
    """)
SCAN = ("row_shr:1 row_mask:0xf bank_mask:0xf bound_ctrl:0", "row_shr:2 row_mask:0xf bank_mask:0xf bound_ctrl:0",
        "row_shr:4 row_mask:0xf bank_mask:0xf bound_ctrl:0", "row_shr:8 row_mask:0xf bank_mask:0xf bound_ctrl:0",
        "row_bcast:15 row_mask:0xa bank_mask:0xf", "row_bcast:31 row_mask:0xc bank_mask:0xf")
def scan(r):
    for m in SCAN:
        E(f"s_nop 1\nv_add_u32_dpp v{r}, v{r}, v{r} {m}")

def main_consts(sm=48):
    E(f"""
    v_and_b32 v2, 15, v1                    ; n'
    v_lshrrev_b32 v3, 4, v1
    v_lshl_add_u32 v3, v2, 2, v3
    v_lshlrev_b32 v3, 1, v3
    v_add_u32 v3, {L_C}, v3
    ds_read_u16 v64, v3                     ; C[0..3][feature 4n'+s]
    ds_read_u16 v65, v3 offset:128
    ds_read_u16 v66, v3 offset:256
    ds_read_u16 v67, v3 offset:384
    v_and_b32 v63, 3, v1                    ; q
    v_lshlrev_b32 v{LN8}, 3, v2
    v_lshlrev_b32 v{LN8+1}, 3, v2
    v_lshlrev_b32 v{LN16}, 4, v2
    v_lshlrev_b32 v{LN16+1}, 4, v2
    v_mov_b32 v{IDX}, 0x8888
    v_bfe_u32 v60, v1, 3, 2                 ; s = (l&31)>>3
    v_bfe_u32 v61, v1, 2, 1                 ; h = (l>>2)&1
    v_lshrrev_b32 v62, 5, v1                ; ha
    v_and_b32 v2, 1, v60
    v_lshlrev_b32 v2, 4, v2
    v_lshlrev_b32 v2, v2, s46
    v_lshrrev_b32 v60, 1, v60               ; s>>1
    v_lshl_add_u32 v3, v61, 1, v60
    v_sub_u32 v63, v63, v62                 ; q - ha : 0 -> A1, 2 -> A2
    v_lshl_add_u32 v3, v63, 1, v3
    v_and_b32 v63, 1, v63
    v_lshl_or_b32 v3, v63, 4, v3
    v_xor_b32 v61, v61, v62
    v_lshl_or_b32 v60, v61, 4, v60
    """)
    mk = [f"s[{sm}:{sm+1}]", f"s[{sm+2}:{sm+3}]", f"s[{sm+4}:{sm+5}]", "vcc"]
    for i in range(8):
        E(f"v_cmp_eq_u32 {mk[i%4]}, {i}, v3")
        if i % 4 == 3:
            for j in range(i-3, i+1):
                E(f"v_cndmask_b32 v{A1+j}, 0, v2, {mk[j%4]}")
    E(f"""
    v_cmp_eq_u32 {mk[0]}, 0, v60
    v_cmp_eq_u32 {mk[1]}, 1, v60
    v_and_b32 v63, 3, v1
    v_lshlrev_b32 v61, 3, v63
    v_cndmask_b32 v{ASEL}, 0, v2, {mk[0]}
    v_cndmask_b32 v{ASEL+1}, 0, v2, {mk[1]}
    v_add_u32 v{EAC}, {L_EA - 2*L_SRC}, v61
    s_lshl_b32 s30, s3, 9
    s_sub_u32 s31, s30, 4096
    s_max_i32 s31, s31, 0
    s_add_u32 s30, s30, s31
    s_add_u32 s30, s30, {L_LIST}
    v_lshrrev_b32 v2, 4, v1
    v_lshl_add_u32 v{LP}, v2, 4, s30
    v_bfe_u32 v3, v1, 2, 2
    v_lshl_add_u32 v{LP+1}, v3, 4, s30
    v_lshl_add_u32 v{LP+1}, v2, 2, v{LP+1}
    s_lshl_b32 s30, s3, 2
    s_add_u32 s30, s30, 32
    v_add_u32 v2, s30, v2
    v_mul_u32_u24 v68, {NSTR}, v2
    v_add_u32 v68, v68, v{LN8}
    v_add_u32 v68, {L_NODE - 32*NSTR}, v68
    s_mul_i32 s30, s{S_BUCK}, {NB*256}
    s_lshl_b32 s31, s{S_HALF}, 7
    s_add_u32 s30, s30, s31
    v_lshl_add_u32 v69, v2, 8, v{LN8}
    v_add_u32 v69, s30, v69
    s_waitcnt lgkmcnt(0)
    v_lshlrev_b32 v60, 16, v64
    v_lshlrev_b32 v61, 16, v65
    v_lshlrev_b32 v62, 16, v66
    v_lshlrev_b32 v63, 16, v67
    v_mul_f32 v60, s40, v60
    v_mul_f32 v61, s40, v61
    v_mul_f32 v62, s40, v62
    v_mul_f32 v63, s40, v63
    v_cvt_pk_bf16_f32 v{CW}, v60, v61
    v_cvt_pk_bf16_f32 v{CW+1}, v62, v63
    """)

def gload(g, o):
    return f"buffer_load_dwordx4 v[{g}:{g+3}], v{o}, s[36:39], 0 offen" + (SC1 if OPT["gsc1"] else "")
def oadd(o):
    return f"v_lshl_add_u64 v[{o}:{o+1}], v[{o}:{o+1}], 0, v[{LN16}:{LN16+1}]"

def pk_steps(Gc, q, first):
    t = T + 4*(q & 1); h = Gc + 4*q
    if first and q == 0:
        return [f"v_pk_add_f32 v[{P+2*p}:{P+2*p+1}], v[{t+2*p}:{t+2*p+1}], 1.0 op_sel_hi:[1,0]" for p in range(2)]
    r = []
    for p in range(2):
        n = f"v[{Gc+2*p}:{Gc+2*p+1}]" if (first and q == 1) else f"v[{N+2*p}:{N+2*p+1}]"
        r.append(f"v_pk_fma_f32 v[{N+2*p}:{N+2*p+1}], {n}, v[{t+2*p}:{t+2*p+1}], {n}")
    for p in range(2):
        r.append(f"v_pk_fma_f32 v[{N+2*p}:{N+2*p+1}], v[{h+2*p}:{h+2*p+1}], v[{P+2*p}:{P+2*p+1}], v[{N+2*p}:{N+2*p+1}]")
    for p in range(2):
        r.append(f"v_pk_fma_f32 v[{P+2*p}:{P+2*p+1}], v[{P+2*p}:{P+2*p+1}], v[{t+2*p}:{t+2*p+1}], v[{P+2*p}:{P+2*p+1}]")
    return r
def exps(Dc, q):
    t = T + 4*(q & 1)
    return [f"v_exp_f32 v{t+s}, v{Dc+4*s+q}" for s in range(4)]
def weave(main, extra):
    for i, x in enumerate(main):
        E(x)
        for y in extra.get(i, []):
            E(y)
def m_a(Dn): return f"v_mfma_f32_32x32x8_bf16 v[{Dn}:{Dn+15}], v[{ASEL}:{ASEL+1}], v[{XA}:{XA+1}], 0"
def m_e(Dn, abid): return f"v_mfma_f32_16x16x4_4b_bf16 v[{Dn}:{Dn+15}], v[{EA}:{EA+1}], v[{CW}:{CW+1}], v[{Dn}:{Dn+15}] cbsz:2 abid:{abid}"
def m_s(Dn, A, g): return f"v_smfmac_f32_32x32x32_bf16 v[{Dn}:{Dn+15}], v[{A}:{A+3}], v[{g}:{g+7}], v{IDX}"

outofline = []
def emit_to(lst, fn):
    global out
    keep = out; out = []
    fn(); lst += out; out = keep
assert OPT["pa"] == 6 and OPT["prio"] == 2
DIST = OPT["dist"]; EARLY = OPT["ldearly"]
assert not (EARLY and DIST == 4)
def phase(u, loads):
    tag = f"{'L' if loads else 'T'}{u}"
    Dc, Dn = ((D0, D1), (D1, D0))[u & 1]
    gc = G + 16*u; gn = G + 16*((u+1) & 3); gl = G + 16*((u+DIST) & 3)
    ld = loads and not OPT["nogather"]
    kw = (u + DIST + EARLY) & 3
    wsgrp = 128 * ((3 - kw + u + DIST + EARLY) // 4 + 1) if kw == 3 else None
    def addloads(ex, pos):
        if loads:
            ex.setdefault(0, []).append(oadd(OFS)); ex.setdefault(2, []).append(oadd(OFS+2))
        if ld:
            for q in range(4): ex.setdefault(pos[q], []).append(gload(gl+4*q, OFS+q))
    E(f"L_{tag}:")
    SL = OPT["slate"]
    if not SL: E(f"s_waitcnt vmcnt({4*(DIST-2)})")
    E(m_a(Dn))
    for x in exps(Dc, 0): E(x)
    E(m_e(Dn, (u+1) & 3) if SL else m_s(Dn, A1, gn))
    for x in exps(Dc, 1): E(x)
    ex = {0: ["s_waitcnt lgkmcnt(0)"], 2: [f"ds_read_b64 v[{XA}:{XA+1}], v{AG + ((u+2) & 3)} offset:512"]}
    if u % 2 == 0:
        p = AG + ((u+2) & 3)
        ex[0].append(f"v_lshl_add_u64 v[{p}:{p+1}], v[{WN2}:{WN2+1}], 0, v[{LN8}:{LN8+1}]")
    if EARLY: addloads(ex, (1, 3, 5, 6))
    elif loads: ex[1] = [f"ds_read_b128 v[{OFS}:{OFS+3}], v{WS4+kw}"]
    if u == 2:
        ex.setdefault(4, []).append(f"v_lshl_add_u32 v{WE}, v{WE}, 1, v{EAC}")
        if SL: ex.setdefault(7, []).append(f"ds_read_b64 v[{EA}:{EA+1}], v{WE}")
    E(f"s_bitcmp1_b32 s{S_M}, 0\ns_cbranch_scc1 L_{tag}f")
    weave(pk_steps(gc, 0, False) + pk_steps(gc, 1, False), ex)
    E(f"L_{tag}r:")
    def first():
        E(f"L_{tag}f:")
        weave(pk_steps(gc, 0, True) + pk_steps(gc, 1, True), ex)
        E(f"s_branch L_{tag}r")
    emit_to(outofline, first)
    if SL:
        if OPT["ptime"]: E(f"s_memrealtime s[28:29]\ns_mov_b32 m0, s{S_R}")
        E(f"s_waitcnt vmcnt({4*(DIST-2) + (4 if (EARLY and loads) else 0) + (2 if SL == 2 else 0)})")
        E(m_s(Dn, A1, gn))
    else:
        E(m_e(Dn, (u+1) & 3))
    for x in exps(Dc, 2): E(x)
    if SL == 2: E(f"s_waitcnt vmcnt({4*(DIST-2) + (4 if (EARLY and loads) else 0)})")
    if OPT["ptime"]: E(f"s_memrealtime s[30:31]")
    E(m_s(Dn, A2, gn+8))
    for x in exps(Dc, 3): E(x)
    ex = {0: ["s_waitcnt lgkmcnt(0)"], 4: [], 6: [], 7: [f"s_sub_u32 s{S_R}, s{S_R}, 1"], 10: [f"s_lshr_b32 s{S_M}, s{S_M}, 1"], 11: [f"s_bitcmp1_b32 s{S_M}, 0"]}
    if OPT["ptime"]: ex[0] += ["v_writelane_b32 v70, s28, m0", "v_writelane_b32 v71, s30, m0"]
    if not EARLY: addloads(ex, (1, 3, 5, 9) if DIST == 4 else ((1, 3, 5, 7), (1, 2, 3, 4), (4, 6, 8, 10), (2, 5, 8, 10))[OPT['lpos']])
    elif loads: ex[1] = [f"ds_read_b128 v[{OFS}:{OFS+3}], v{WS4+kw}"]
    if u == 1:
        ex[4].append(f"ds_read_b64 v[{WN2}:{WN2+1}], v{LP} offset:{128+64}")
        ex[6].append(f"ds_read_b32 v{WE}, v{LP+1} offset:128")
    if u == 2 and not SL:
        ex[4].append(f"ds_read_b64 v[{EA}:{EA+1}], v{WE}")
    if u == 3:
        ex[4].append(f"ds_read_b64 v[{WN2}:{WN2+1}], v{LP} offset:{128+64+8}")
        ex.setdefault(8, []).append(f"v_lshl_add_u64 v[{LP}:{LP+1}], v[{LP}:{LP+1}], 0, s[44:45]")
    if wsgrp and loads: ex[6].append(f"ds_read_b128 v[{WS4}:{WS4+3}], v{LP} offset:{wsgrp}")
    weave(pk_steps(gc, 2, False) + pk_steps(gc, 3, False), ex)
    E(f"s_cbranch_scc1 L_{tag}z\nL_{tag}y:")
    def fin():
        E(f"""
L_{tag}z:
        v_rcp_f32 v{P}, v{P}
        v_rcp_f32 v{P+1}, v{P+1}
        v_rcp_f32 v{P+2}, v{P+2}
        v_rcp_f32 v{P+3}, v{P+3}
        v_pk_mul_f32 v[{N}:{N+1}], v[{N}:{N+1}], v[{P}:{P+1}]
        v_pk_mul_f32 v[{N+2}:{N+3}], v[{N+2}:{N+3}], v[{P+2}:{P+3}]
        """)
        for s_ in range(4):
            E(f"v_cvt_f64_f32 v[{F+2*s_}:{F+2*s_+1}], v{N+s_}")
            if s_: E(f"ds_add_f64 v{AG+u}, v[{F+2*s_-2}:{F+2*s_-1}] offset:{128*(s_-1)}")
        E(f"ds_add_f64 v{AG+u}, v[{F+6}:{F+7}] offset:384")
        E(f"s_branch L_{tag}y")
    emit_to(outofline, fin)
    if OPT["prio"] == 2:
        E(f"s_bitcmp1_b32 s{S_IT}, s{S_R}\ns_cbranch_scc1 L_{tag}q\nL_{tag}p:")
        def pr():
            E(f"""
L_{tag}q:
            s_setprio 0
            s_cmp_le_u32 s{S_R}, {OPT["pc"]}
            s_cbranch_scc1 L_{tag}p
            s_setprio 1
            s_cmp_le_u32 s{S_R}, {OPT["pb"]}
            s_cbranch_scc1 L_{tag}p
            s_setprio 2
            s_mov_b64 exec, 1
            ds_add_u32 v2, v3 offset:{L_DYN}
            s_mov_b64 exec, -1
            s_branch L_{tag}p
            """)
        emit_to(outofline, pr)
    if u == 3 and OPT["prio"] == 1:
        E(f"""
        s_add_u32 s{S_IT}, s{S_IT}, 1
        s_setprio 0
        s_cmp_gt_u32 s{S_IT}, 2
        s_cbranch_scc1 L_{tag}p
        s_setprio 1
        s_cmp_eq_u32 s{S_IT}, 2
        s_cbranch_scc1 L_{tag}p
        s_setprio 2
L_{tag}p:
        """)
    if loads:
        E(f"s_cmp_le_u32 s{S_R}, {DIST}")
        if u < 3: E(f"s_cbranch_scc1 L_T{u+1}")
        else: E("s_cbranch_scc0 L_L0")
    else:
        E(f"s_waitcnt vmcnt(0)\ns_cmp_eq_u32 s{S_R}, 0")
        if u < 3: E("s_cbranch_scc1 L_mdone")
        else: E("s_cbranch_scc0 L_T0")

E(f"""
; Edge-gated message passing in one launch, one workgroup per (bucket of 80 nodes, half of the features).
; @launch grid=(256,1,1) block=({64*NW},1,1) lds={LDS}
.amdgcn_target "amdgcn-amd-amdhsa--gfx950"
.text
.globl {NAME}
.p2align 8
.type {NAME},@function
{NAME}:
""")
if OPT["stamps"] == 1 and OPT["early"] != 1:
    for i in range(NSTAMP): E(f"s_mov_b64 s[{ST0+2*i}:{ST0+2*i+1}], 0")
STAMP(0)
E(f"""
    s_load_dwordx16 s[4:19], s[0:1], 0
    s_load_dwordx2 s[20:21], s[0:1], 72
""")
if OPT["codepf"]:
    E(f"""
    s_getpc_b64 s[28:29]
L_pc:
    v_lshlrev_b32 v3, 7, v0
    v_cmp_gt_u32 vcc, L_codeend-L_pc-64, v3
    s_cbranch_vccz L_nopf
    s_mov_b64 exec, vcc
    global_load_dword v164, v3, s[28:29]
    s_mov_b64 exec, -1
L_nopf:
    """)
E(f"""
    v_lshrrev_b32 v2, 6, v0
    v_and_b32 v1, 63, v0
    v_readfirstlane_b32 s3, v2
    {"s_bfe_u32 s%d, s2, 0x10002" % S_HALF if OPT["hb"] else "s_and_b32 s%d, s2, 1" % S_HALF}
    {"s_and_b32 s30, s2, 3" if OPT["hb"] else "s_bfe_u32 s30, s2, 0x20001"}
    {"s_mul_i32 s30, s30, 31" if OPT["b31"] else "s_lshl_b32 s30, s30, 5"}
    s_lshr_b32 s31, s2, 3
    s_add_u32 s{S_BUCK}, s30, s31
    {"s_cmp_eq_u32 s30, 93                    ; 31 buckets per XCD of a half, 32 on the last" if OPT["b31"] else "s_cmp_ge_u32 s2, 256"}
    {"s_subb_u32 s31, s31, 0" if OPT["b31"] else "s_cbranch_scc1 L_end"}
    {"s_cmp_ge_i32 s31, 31" if OPT["b31"] else "s_cmp_ge_u32 s%d, %d" % (S_BUCK, NBUCK)}
    s_cbranch_scc1 L_end
    s_lshl_b32 s{S_P}, s{S_BUCK}, 1
    s_add_u32 s{S_P}, s{S_P}, s{S_HALF}
    s_mov_b32 s{S_SAFE}, 0
L_restart:
    s_cmp_ge_u32 s3, 4
    s_cbranch_scc1 L_nosort
    v_mov_b32 v48, 0
    v_mov_b32 v49, 0
    v_mov_b32 v50, 0
    v_mov_b32 v51, 0
    v_lshlrev_b32 v10, 4, v1
    ds_write_b128 v10, v[48:51] offset:{L_SCNT}
    s_mul_i32 s30, s{S_P}, {CHUNK*4}
    v_lshl_add_u32 v3, v0, 4, s30
    s_add_u32 s30, s30, 4096
    v_lshl_add_u32 v18, v0, 2, s30
    v_lshlrev_b32 v10, 1, v3
    v_lshlrev_b32 v11, 1, v18
    v_mov_b32 v17, {WS_TAG}
    s_waitcnt lgkmcnt(0)
    global_load_dwordx4 v[4:7], v3, s[10:11]{NTE}
    global_load_dword v8, v18, s[10:11]{NTE}
    global_load_dword v43, v17, s[20:21]
""")
def preclear():
    E(f"""
    s_cmp_lg_u32 s{S_SAFE}, 0
    s_cbranch_scc1 L_nopre
    s_mul_i32 s30, s{S_HALF}, {G_HALF}
    s_mul_i32 s31, s{S_BUCK}, {NB*256}
    s_add_u32 s30, s30, s31
    s_add_u32 s30, s30, {4096*(5-OPT["pre"])}
    v_lshl_add_u32 v19, v0, 4, s30
    """)
    for i in range(OPT["pre"]):
        E("global_store_dwordx4 v19, v[48:51], s[20:21] sc1")
        if i + 1 < OPT["pre"]: E("v_add_u32 v19, 4096, v19")
    E("L_nopre:")
if OPT["pre"] and not OPT["prelate"]: preclear()
E(f"""
    {"" if OPT["oneb"] else "s_barrier"}
""")
if OPT["ewhen"] == 0: E(f"""
    global_load_dwordx4 v[12:15], v3, s[8:9]{NTE}
    global_load_dword v16, v18, s[8:9]{NTE}
    global_load_dwordx4 v[52:55], v10, s[6:7]{NTE}
    global_load_dwordx4 v[56:59], v10, s[6:7] offset:16{NTE}
    global_load_dwordx2 v[60:61], v11, s[6:7]{NTE}
""")
E("s_barrier                               ; B0b")
if OPT["ewhen"] == 7: E(f"""
    global_load_dwordx4 v[12:15], v3, s[8:9]{NTE}
    global_load_dword v16, v18, s[8:9]{NTE}
    global_load_dwordx4 v[52:55], v10, s[6:7]{NTE}
    global_load_dwordx4 v[56:59], v10, s[6:7] offset:16{NTE}
    global_load_dwordx2 v[60:61], v11, s[6:7]{NTE}
""")
if OPT["pre"] and OPT["prelate"]: preclear()
E(f"""
    s_branch L_sort
L_nosort:
    s_and_b32 s32, s3, 3                    ; tau
    s_lshr_b32 s33, s3, 3
    v_lshrrev_b32 v2, 4, v1                 ; g
    v_and_b32 v4, 15, v1
    s_lshl_b32 s30, s32, 2
    v_add_u32 v6, s30, v2                   ; row&15
    v_xor_b32 v7, v4, v6
    v_lshlrev_b32 v7, 4, v7
    v_lshl_add_u32 v7, v6, 8, v7
    s_mul_i32 s73, s{S_BUCK}, {NB*256}
    s_mul_i32 s31, s33, {3*4096}
    s_add_u32 s30, s73, s31
    v_add_u32 v7, s30, v7
    v_add_u32 v8, 0x1000, v7
    v_add_u32 v9, 0x2000, v7
    s_lshl_b32 s30, s32, 10
    s_add_u32 s31, s31, s30
    s_add_u32 m0, s31, {L_X}
    v_subrev_u32 v30, 256, v0               ; t = 0..511
    v_lshlrev_b32 v31, 4, v30
    v_mov_b32 v36, 0
    v_mov_b32 v37, 0
    v_mov_b32 v38, 0
    v_mov_b32 v39, 0
    v_add_u32 v40, {L_EA}, v31
    ds_write_b128 v40, v[36:39]
    ds_write_b128 v40, v[36:39] offset:8192
""")
if OPT["wpf"]:
    E(f"""
    s_lshr_b32 s30, s2, 3
    s_lshl_b32 s30, s30, 2
    v_add_u32 v3, s30, v1
    v_and_b32 v3, 127, v3
    s_lshl_b32 s30, s{S_HALF}, 7
    s_cmp_eq_u32 s3, 4
    s_cselect_b32 s31, 0x8000, 0
    s_add_u32 s30, s30, s31
    v_lshl_add_u32 v3, v3, 8, s30
    s_waitcnt lgkmcnt(0)
    s_cmp_lg_u32 s33, 0
    s_cbranch_scc1 L_nowpf
    s_cmp_eq_u32 s3, 5
    s_cselect_b32 s34, s14, s16
    s_cselect_b32 s35, s15, s17
    s_cmp_eq_u32 s3, 7
    s_cselect_b32 s34, s12, s34
    s_cselect_b32 s35, s13, s35
    s_mov_b64 exec, 0xffff
    global_load_dword v167, v3, s[34:35]
    s_mov_b64 exec, -1
L_nowpf:
    """)
    if OPT["wpf"] == 2:
        E(f"""
        s_cmp_lg_u32 s3, 8
        s_cbranch_scc1 L_notch
        s_mul_i32 s30, s{S_P}, {CHUNK*4}
        v_mov_b32 v3, s30
        v_lshlrev_b32 v5, 1, v3
        v_lshlrev_b32 v6, 21, v1
        s_mov_b64 exec, 1
        global_load_dword v167, v3, s[8:9]
        global_load_dword v166, v5, s[6:7]
        s_mov_b64 exec, 31
        global_load_dword v165, v6, s[20:21] sc1
        s_mov_b64 exec, 3
        global_load_dword v164, v6, s[18:19] sc1
        s_mov_b64 exec, -1
L_notch:
        """)
E(f"""
    s_waitcnt lgkmcnt(0)
    {"" if OPT["oneb"] else "s_barrier"}
""")
if not OPT["t0f"]: E(f"""
    global_load_lds_dwordx4 v7, s[4:5]{NTX}
    s_add_u32 m0, m0, 0x1000
    s_cmp_lg_u32 s33, 0
    global_load_lds_dwordx4 v8, s[4:5]{NTX}
    s_cbranch_scc1 L_x2
    s_add_u32 m0, m0, 0x1000
    s_nop 0
    global_load_lds_dwordx4 v9, s[4:5]{NTX}
L_x2:
    s_barrier
""")
else: E(f"""
    s_mov_b32 s29, m0
    s_cmp_lg_u32 s33, 0
    s_cbranch_scc1 L_x2
    global_load_lds_dwordx4 v7, s[4:5]
    s_add_u32 s29, s29, 0x1000
    v_mov_b32 v7, v8
    v_mov_b32 v8, v9
L_x2:
""")
E(f"""
    v_lshrrev_b32 v5, 3, v1
    v_and_b32 v3, 1, v2
    s_and_b32 s30, s3, 1
    s_lshl_b32 s30, s30, 1
    v_or_b32 v3, s30, v3                    ; sigma
    v_lshlrev_b32 v3, 1, v3
    v_and_b32 v20, 7, v1
    v_xor_b32 v3, v3, v20
    v_lshlrev_b32 v3, 4, v3
    v_lshl_add_u32 v10, v5, 8, v3
    s_sub_u32 s28, s3, 4
    s_lshl_b32 s30, s28, 11
    s_lshl_b32 s31, s{S_HALF}, 7
    s_add_u32 s30, s30, s31
    v_add_u32 v10, s30, v10
    v_add_u32 v11, 0x4000, v10
    s_lshl_b32 s28, s28, 10
    s_add_u32 s34, s16, {128*256}
    s_addc_u32 s35, s17, 0
    s_cmp_lg_u32 s3, 11
    s_cbranch_scc1 L_noc
    v_and_b32 v5, 3, v5
    v_lshlrev_b32 v20, 4, v20
    v_lshl_add_u32 v5, v5, 8, v20
    s_add_u32 s31, s31, {256*256}
    s_mov_b32 m0, {L_C}
    v_add_u32 v5, s31, v5
    global_load_lds_dwordx4 v5, s[16:17]
L_noc:
    s_add_u32 m0, s28, {L_WBV}
""")
for ti, base in enumerate((34, 14)):
    for n in range(2):
        E(f"s_nop 0\nglobal_load_lds_dwordx4 v{10+n}, s[{base}:{base+1}]")
        if not (ti == 1 and n == 1):
            E(f"s_add_u32 m0, m0, 0x2000")
def stage_au():
    E(f"""
    v_lshrrev_b32 v5, 3, v1
    v_bfe_u32 v3, v1, 4, 1
    v_lshlrev_b32 v3, 1, v3
    v_and_b32 v20, 7, v1
    v_xor_b32 v3, v3, v20
    v_lshlrev_b32 v3, 4, v3
    v_lshl_add_u32 v6, v5, 8, v3
    s_lshl_b32 s30, s{S_HALF}, 7
    s_and_b32 s31, s3, 1
    s_lshl_b32 s31, s31, 14
    s_add_u32 s30, s30, s31
    v_add_u32 v6, s30, v6
    v_xor_b32 v7, 64, v6
    v_add_u32 v8, 2048, v6
    v_add_u32 v9, 3072, v7
    v_add_u32 v7, 1024, v7
    s_lshl_b32 s30, s32, 13
    s_add_u32 m0, s30, {L_WAU}
    s_cmp_lt_u32 s32, 2
    s_cselect_b32 s34, s16, s12
    s_cselect_b32 s35, s17, s13
    global_load_lds_dwordx4 v6, s[34:35]
    global_load_lds_dwordx4 v7, s[34:35] offset:1024
    global_load_lds_dwordx4 v8, s[34:35] offset:2048
    global_load_lds_dwordx4 v9, s[34:35] offset:3072
    s_add_u32 m0, m0, 4096
    s_add_u32 s34, s34, 8192
    s_addc_u32 s35, s35, 0
    global_load_lds_dwordx4 v6, s[34:35]
    global_load_lds_dwordx4 v7, s[34:35] offset:1024
    global_load_lds_dwordx4 v8, s[34:35] offset:2048
    global_load_lds_dwordx4 v9, s[34:35] offset:3072
""")
if OPT["aue"] == 1:
    E("s_cmp_eq_u32 s33, 0\ns_cbranch_scc1 L_noau"); stage_au(); E("L_noau:")
if OPT["t0f"]:
    E(f"""
    s_mov_b32 m0, s29
    s_barrier                               ; B0b
    global_load_lds_dwordx4 v7, s[4:5]
    s_add_u32 m0, m0, 0x1000
    s_nop 0
    global_load_lds_dwordx4 v8, s[4:5]
    """)
if OPT["wgate"] or OPT["ewhen"] in (5, 6):
    E(f"""
    v_mov_b32 v7, 0x1000000
    s_mov_b64 exec, 1
    ds_add_u32 v36, v7 offset:{L_CTR}
    s_mov_b64 exec, -1
    """)
STAMP(1)
E(f"""
    v_mov_b32 v32, {NULL_SRC}
    v_mov_b32 v33, v32
    v_mov_b32 v34, v32
    v_mov_b32 v35, v32
""")
def cover(lo, n): return list(range(lo, n - 8192, 8192)) + [n - 8192]
for o in cover(16384, L_EAEND - L_EA): E(f"ds_write_b128 v40, v[36:39] offset:{o}")
for o in cover(0, SRCB): E(f"ds_write_b128 v31, v[32:35] offset:{L_SRC + o}")
E(f"""
    v_and_b32 v32, 3, v30           ; quarter
    v_bfe_u32 v33, v30, 3, 3
    v_lshrrev_b32 v34, 5, v30
    s_and_b32 s30, s3, 3
    s_add_u32 s30, s30, 16
    s_cmp_ge_u32 s3, 8
    s_cselect_b32 s31, 7, 3
    s_cselect_b32 s29, 0, 6
    s_cselect_b64 vcc, -1, 0
    v_and_b32 v33, s31, v33
    v_mov_b32 v35, s30
    v_cndmask_b32 v34, v34, v35, vcc
    v_lshl_add_u32 v32, v34, 2, v32
    v_bfe_u32 v34, v30, 2, 1
    v_mul_u32_u24 v35, {NSTR - SSTR}, v34
    v_mul_u32_u24 v41, {L_NODE - L_SRC}, v34
    v_mul_u32_u24 v42, {L_SRC + 80*SSTR - L_DUM}, v34
    v_lshlrev_b32 v43, 4, v34
    v_add_u32 v35, {SSTR}, v35
    v_add_u32 v41, {L_SRC}, v41
    v_sub_u32 v42, {L_SRC + 80*SSTR}, v42
    v_sub_u32 v43, 16, v43
    v_lshlrev_b32 v33, 2, v33
    v_mad_u32_u24 v41, v32, v35, v41
    v_mad_u32_u24 v41, v33, v43, v41
    v_lshlrev_b32 v35, 5, v35
    v_lshlrev_b32 v34, 3, v43
    v_sub_u32 v35, v35, v34
    v_cmp_gt_u32 s[48:49], 8, v33
    v_and_b32 v33, 7, v33
    v_add_u32 v34, 2, v33
    v_cmp_gt_u32 s[52:53], s29, v33
    v_cmp_gt_u32 s[54:55], s29, v34
    v_cndmask_b32 v44, v35, 0, s[48:49]
    v_cndmask_b32 v46, v35, 0, s[48:49]
    v_add_u32 v44, v41, v44
    v_lshl_add_u32 v46, v43, 1, v46
    v_add_u32 v46, v41, v46
    v_add_u32 v45, v44, v43
    v_add_u32 v47, v46, v43
    v_cndmask_b32 v44, v42, v44, s[52:53]
    v_cndmask_b32 v45, v42, v45, s[52:53]
    v_cndmask_b32 v46, v42, v46, s[54:55]
    v_cndmask_b32 v47, v42, v47, s[54:55]
    ds_write_b128 v31, v[44:47] offset:{L_LIST}
    s_cmp_ge_u32 s3, 6
    s_cbranch_scc1 L_pf3
    v_mul_u32_u24 v42, {SSTR}, v30
    v_add_u32 v42, {L_SRC}, v42
    v_lshlrev_b32 v41, 2, v30
    ds_write_b32 v41, v42 offset:{L_CNT}
L_pf3:
    v_bfe_u32 v3, v1, 2, 2                  ; r
    v_lshl_add_u32 v5, v2, 3, v3            ; 8g + r
    v_lshrrev_b32 v3, 1, v3
    v_and_b32 v6, 1, v2
    v_lshl_or_b32 v3, v6, 1, v3             ; sigma
    v_xor_b32 v3, s32, v3
    v_lshlrev_b32 v3, 5, v3
    v_lshl_add_u32 v10, v5, 7, v3
    v_and_b32 v3, 3, v1
    v_lshl_add_u32 v10, v3, 3, v10
    s_mul_i32 s31, s33, {L_WAU - L_WBV}
    s_add_u32 s31, s31, {L_WBV}
    v_add_u32 v10, s31, v10
    v_xor_b32 v3, v2, v4
    v_lshlrev_b32 v3, 4, v3
    v_lshl_add_u32 v12, v4, 8, v3
    v_add_u32 v12, {L_X}, v12
    v_xor_b32 v13, 64, v12
    v_xor_b32 v14, 0x80, v12
    v_xor_b32 v15, 0xc0, v12
    s_mul_i32 s30, s{S_HALF}, {G_HALF}
    s_add_u32 s30, s30, s73
    s_lshl_b32 s31, s32, 6
    s_add_u32 s30, s30, s31
    v_lshlrev_b32 v11, 10, v2
    v_lshl_add_u32 v11, v4, 2, v11
    v_add_u32 v11, s30, v11
    s_lshl_b32 s31, s32, 5
    s_add_u32 s31, s31, {L_NODE}
    v_mul_u32_u24 v16, {NSTR}, v4
    v_lshl_add_u32 v16, v2, 3, v16
    v_add_u32 v16, s31, v16
    s_mov_b32 s40, {f32(-LOG2E)}
    s_mov_b32 s42, {f32(2.0**32)}
    s_mov_b32 s44, 0x07060100
    s_mov_b32 s45, 0x07060302
    s_mov_b32 s46, 0x3f80
    v_mov_b32 v17, {f32(2.0**-100)}
    v_mov_b32 v19, 1
    v_mov_b32 v18, 0
""")
def staged():
    if not OPT["tagl"]: get_tag("g", 160)
    if OPT["aue"] == 2:
        E("s_cmp_eq_u32 s33, 0\ns_cbranch_scc1 L_noau"); stage_au(); E("L_noau:")
    if OPT["aue"]: E("s_waitcnt vmcnt(8)\ns_cmp_lg_u32 s33, 0\ns_cbranch_scc1 L_stg")
    E(f"""
    s_waitcnt vmcnt(0)
L_stg:
    s_mov_b64 exec, 1
    ds_add_u32 v18, v19 offset:{L_CTR}
    s_mov_b64 exec, -1
    """)
    STAMP(2)
    lds_wait(L_CTR, 0xff, 8, "g1")
if OPT["t0f"]:
    E(f"""
    s_waitcnt vmcnt(2)
    s_mov_b64 exec, 1
    ds_add_u32 v18, v19 offset:{L_AU}
    s_mov_b64 exec, -1
    s_or_b32 s30, s33, s{S_SAFE}
    s_cbranch_scc0 L_t0
    """)
staged()
STAMP(3)
NP = 8
RA = 72; RB = RA + 4*NP; RAD = RB + 4*NP
J3N, J12, J3N2, CELL, ROWA, FOUR, L0M, ACC, ENT, CAD = 156, 157, 158, 159, 160, 161, 162, 163, 164, 166
def rec_setup():
    E(f"""
    v_and_b32 v3, 15, v1                    ; j
    v_lshrrev_b32 v2, 4, v1
    v_lshl_add_u32 v{CELL}, v2, 3, v3
    s_lshl_b32 s30, s29, 5
    v_add_u32 v{CELL}, s30, v{CELL}
    s_lshl_b32 s30, s{S_BUCK}, 3
    s_add_u32 s30, s30, {WS_ROW}
    v_lshl_add_u32 v{ROWA}, v{CELL}, 10, s30
    v_cmp_gt_u32 s[66:67], {NP}, v3
    v_cmp_gt_u32 vcc, {NCHUNK}, v{CELL}
    v_mov_b32 v{ENT}, 0
    s_and_b64 s[66:67], s[66:67], vcc
    s_mov_b64 exec, s[66:67]
    global_load_dwordx2 v[{ENT}:{ENT+1}], v{ROWA}, s[20:21] sc1
    s_mov_b64 exec, -1
    v_mul_u32_u24 v{CELL}, {SORTB//4}, v{CELL}
    v_add_u32 v{CELL}, {WS_REC//4}, v{CELL}
    v_mul_u32_u24 v{J12}, 12, v3
    v_mul_u32_u24 v{J3N}, 3, v3
    v_not_b32 v{J3N}, v{J3N}
    v_subrev_u32 v{J3N2}, 48, v{J3N}
    v_subrev_u32 v{L0M}, 1, v3
    v_ashrrev_i32 v{L0M}, 31, v{L0M}
    v_mov_b32 v{FOUR}, 4
    """)
WF = 20; XF = 52; AC = 132
def wreads(ks):
    for t in range(2):
        for rd in range(2):
            r = WF + 16*t + 4*ks + 2*rd
            E(f"ds_read_b64_tr_b16 v[{r}:{r+1}], v10 offset:{t*16384 + ks*4096 + rd*512}")
def xread(rt, ks):
    r = XF + 16*rt + 4*ks
    return f"ds_read_b128 v[{r}:{r+3}], v{12+ks} offset:{rt*4096}"
def mf(rt, ks, transposed):
    for t in range(2):
        a = XF + 16*rt + 4*ks; w = WF + 16*t + 4*ks; d = AC + 8*(rt % 3) + 4*t
        c = "0" if ks == 0 else f"v[{d}:{d+3}]"
        if transposed: a, w = w, a
        E(f"v_mfma_f32_16x16x32_bf16 v[{d}:{d+3}], v[{a}:{a+3}], v[{w}:{w+3}], {c}")
def gemm(transposed, finish, before_first):
    for ks in range(3):
        E(xread(0, ks)); wreads(ks)
    E("s_waitcnt lgkmcnt(10)"); mf(0, 0, transposed)
    E(xread(0, 3)); wreads(3)
    E("s_waitcnt lgkmcnt(10)"); mf(0, 1, transposed)
    for ks in range(4): E(xread(1, ks))
    E("s_waitcnt lgkmcnt(9)"); mf(0, 2, transposed)
    for ks in range(4): E(xread(2, ks))
    E("s_waitcnt lgkmcnt(8)"); mf(0, 3, transposed)
    for ks in range(4): E(xread(3, ks))
    if OPT["p0e"]:
        E("s_nop 3"); finish(0)
    E("s_waitcnt lgkmcnt(8)")
    for ks in range(4):
        mf(1, ks, transposed); E(xread(4, ks))
    E(f"""
    s_mov_b64 exec, 1
    ds_add_u32 v18, v19 offset:{L_RD}
    s_mov_b64 exec, -1
    """)
    before_first()
    if not OPT["p0e"]: finish(0)
    E("s_waitcnt lgkmcnt(0)")
    for rt in range(2, 5):
        for ks in range(4): mf(rt, ks, transposed)
        finish(rt-1)
    finish(4)
def pack(rt):
    b = AC + 8*(rt % 3); h = b + 4
    for r in range(4): E(f"v_mul_f32 v{b+r}, s40, v{b+r}")
    for r in range(4): E(f"v_fma_f32 v{h+r}, v{h+r}, s42, v17")
    E(f"""
    v_cvt_pk_bf16_f32 v4, v{b}, v{b+1}
    v_cvt_pk_bf16_f32 v5, v{b+2}, v{b+3}
    v_xor_b32 v2, 0x80008000, v4
    v_xor_b32 v3, 0x80008000, v5
    v_sub_u32_sdwa v{h}, v{h}, sext(v2) dst_sel:DWORD dst_unused:UNUSED_PAD src0_sel:DWORD src1_sel:WORD_0
    v_sub_u32_sdwa v{h+1}, v{h+1}, sext(v2) dst_sel:DWORD dst_unused:UNUSED_PAD src0_sel:DWORD src1_sel:WORD_1
    v_sub_u32_sdwa v{h+2}, v{h+2}, sext(v3) dst_sel:DWORD dst_unused:UNUSED_PAD src0_sel:DWORD src1_sel:WORD_0
    v_sub_u32_sdwa v{h+3}, v{h+3}, sext(v3) dst_sel:DWORD dst_unused:UNUSED_PAD src0_sel:DWORD src1_sel:WORD_1
    """)
    w = (OPT["gp"] >> (4*(4-rt))) & 15 if OPT["gp"] else OPT["gpace"]
    if 0 <= w < 4*rt: E(f"s_waitcnt vmcnt({w})")
    if OPT["pre"] and rt == 5 - OPT["pre"]: lds_wait(L_SCNT + 126*4, 0xff, 4, "pre")
    if OPT["ghold"] == rt + 1:
        E("v_mov_b32 v6, v2\nv_mov_b32 v7, v3"); lds_wait(L_CTR, 0xff00, 0x400, "gh", sleep=1); E("v_mov_b32 v2, v6\nv_mov_b32 v3, v7")
    for r in range(4):
        E(f"v_perm_b32 v{h+r}, v{h+r}, v{4 + (r>>1)}, s{44 + (r&1)}")
        if OPT["gwin"] >= 0: E(f"s_waitcnt vmcnt({OPT['gwin']})")
        E(f"global_store_dword v11, v{h+r}, s[20:21] offset:{256*r} sc1")
    if rt < 4: E("v_add_u32 v11, 0x1000, v11")
def fin(rt):
    a = AC + 8*(rt % 3); u = a + 4
    for r in range(4): E(f"v_mul_f32 v{a+r}, s40, v{a+r}")
    for r in range(4): E(f"v_mul_f32 v{u+r}, s42, v{u+r}")
    E(f"""
    v_cvt_pk_bf16_f32 v{a}, v{a}, v{a+1}
    v_cvt_pk_bf16_f32 v{a+1}, v{a+2}, v{a+3}
    v_cvt_f64_f32 v[2:3], v{u}
    v_cvt_f64_f32 v[4:5], v{u+1}
    v_cvt_f64_f32 v[6:7], v{u+2}
    v_cvt_f64_f32 v[8:9], v{u+3}
    ds_write_b64 v16, v[{a}:{a+1}] offset:512
    ds_write2_b64 v16, v[2:3], v[4:5] offset0:0 offset1:16
    ds_write2_b64 v16, v[6:7], v[8:9] offset0:32 offset1:48
    """)
    if rt < 4: E(f"v_add_u32 v16, {16*NSTR}, v16")
E(f"""
    s_cmp_lg_u32 s33, 0
    s_cbranch_scc1 L_gemm2
    s_cmp_lg_u32 s{S_SAFE}, 0
    s_cbranch_scc1 L_nog1
    s_setprio 2
""")
if OPT["t0f"]:
    E("L_t0:\ns_setprio 2")
    lds_wait(L_AU, 0xff, 8, "t0")
    STAMP(3)
    for ks in range(3):
        E(xread(0, ks)); wreads(ks)
    E("s_waitcnt lgkmcnt(10)"); mf(0, 0, False)
    E(xread(0, 3)); wreads(3)
    for ks in range(1, 4):
        E(f"s_waitcnt lgkmcnt({15 - 5*ks})"); mf(0, ks, False)
    E("s_nop 7"); pack(0)
    get_tag("t", 160)
    E(f"""
    s_waitcnt vmcnt(4)
    s_mov_b64 exec, 1
    ds_add_u32 v18, v19 offset:{L_CTR}
    s_mov_b64 exec, -1
    """)
    lds_wait(L_CTR, 0xff, 8, "t1")
    for rt in range(1, 4):
        for ks in range(4): E(xread(rt, ks))
    E("s_waitcnt lgkmcnt(8)")
    for ks in range(4):
        mf(1, ks, False); E(xread(4, ks))
    E(f"""
    s_mov_b64 exec, 1
    ds_add_u32 v18, v19 offset:{L_RD}
    s_mov_b64 exec, -1
    s_nop 3
    """)
    pack(1)
    E("s_waitcnt lgkmcnt(0)")
    for ks in range(4): mf(2, ks, False)
    for rt in range(3, 5):
        for ks in range(4): mf(rt, ks, False)
        pack(rt-1)
    pack(4)
else: gemm(False, pack, lambda: lds_wait(L_CTR, {1: 0x80000, 2: 0xc0000}[OPT["hold"]], 0, "hold", sleep=1, ne=True) if OPT["hold"] else None)
E("s_setprio 0")
if OPT["gate"] or OPT["gate2"] >= 3:
    E(f"""
    s_mov_b64 exec, 1
    ds_add_u32 v18, v19 offset:{L_GST}
    s_mov_b64 exec, -1
    """)
STAMP(4)
if OPT["tagl"]: get_tag("g", 160)
main_consts()
E(f"""
    s_lshl_b32 s30, s{S_P}, 7
    s_add_u32 s30, s30, {WS_FL2}
    v_mov_b32 v60, s30
    v_mov_b32 v62, s{S_TAG}
    v_mov_b32 v63, s{S_TAG+1}
    v_mov_b32 v2, 0
    v_mov_b32 v3, 1
    s_lshl_b32 s30, s32, 13
    s_lshl_b32 s31, s{S_HALF}, 7
    s_add_u32 s30, s30, s31
    s_add_u32 s30, s30, {WS_FL2}
    v_lshl_add_u32 v64, v1, 8, s30
    s_mul_i32 s30, s32, {2560*256}
    s_lshr_b32 s31, s2, 3
    s_mul_i32 s31, s31, {160*128}
    s_add_u32 s30, s30, s31
    v_lshl_add_u32 v65, v1, 7, s30
    {'' if OPT['gpe'] else 'v_min_u32 v65, %d, v65' % (G_HALF - 128)}
    s_mul_i32 s30, s{S_HALF}, {G_HALF}
    v_add_u32 v65, s30, v65
    s_mov_b64 exec, 1
    s_waitcnt vmcnt(0)
    ds_add_rtn_u32 v61, v2, v3 offset:{L_DONE2}
    s_waitcnt lgkmcnt(0)
    v_readfirstlane_b32 s30, v61
    s_cmp_lg_u32 s30, 3
    s_cbranch_scc1 L_nofl
    global_store_dwordx2 v60, v[62:63], s[20:21] sc1
    ds_add_u32 v2, v3 offset:{L_DONE2}
L_nofl:
""")
STAMP(5)
if OPT["p2gate"]:
    E("s_mov_b64 exec, -1")
    lds_wait(L_CTR, 0xff0000, 0x080000, "pg", sleep=1)
    E("s_mov_b32 exec_hi, 0")
if OPT["p2wait"]: E(f"s_sleep {OPT['p2wait']}")
STAMP(6)
def gready(lab):
    if OPT["gpe"]: E(f"s_cmp_lg_u32 s73, 0\ns_cbranch_scc1 L_gr{lab}")
    if OPT["gpf"]:
        E(f"""
        {"s_bfm_b64 exec, %d, 0" % OPT["gpf"] if OPT["gpf"] < 64 else "s_mov_b64 exec, -1"}
        global_load_dword v35, v65, s[20:21] sc1
        """)
    E(f"""
L_gr{lab}:
    s_mov_b64 exec, 1
    v_mov_b32 v2, 0
    v_mov_b32 v3, 1
    ds_add_u32 v2, v3 offset:{L_GOK}
    """)
E(f"""
    s_cmp_eq_u32 s32, 3
    s_cselect_b32 exec_lo, 0x1fffffff, -1
    {"" if OPT["p1st"] else "s_mov_b64 s[66:67], exec"}
    {"" if OPT["p1st"] else "s_branch L_p2n"}
    global_load_dwordx2 v[66:67], v64, s[20:21] sc1
    s_waitcnt vmcnt(0)
    v_cmp_ne_u64 s[66:67], s[{S_TAG}:{S_TAG+1}], v[66:67]
""")
if OPT["gpe"]:
    n = OPT["gpe"]
    E(f"""
    s_mov_b32 s73, 0
    s_lshr_b32 s30, s2, 3
    s_bitcmp1_b32 s66, s30
    s_cbranch_scc1 L_nogpe
    s_mov_b32 s73, 1
    s_bitcmp1_b32 exec_lo, s30
    s_cbranch_scc0 L_nogpe
    """)
    for k in range(0, n, 64):
        E("s_mov_b64 exec, -1")
        if k: E(f"v_add_u32 v65, 8192, v65")
        if n - k < 64: E(f"s_bfm_b64 exec, {n-k}, 0")
        E(f"global_load_dword v{(35, 68, 69)[k//64]}, v65, s[20:21] sc1")
    E("L_nogpe:")
E(f"""
    s_cmp_lg_u64 s[66:67], 0
    s_cbranch_scc1 L_p2n
""")
gready("a")
E("L_p2n:\ns_mov_b64 exec, -1")
STAMP(7)
E(f"""
    s_branch L_b4
L_nog1:
    s_mov_b64 exec, 1
    ds_add_u32 v18, v19 offset:{L_RD}
    s_mov_b64 exec, -1
    s_branch L_rec
L_gemm2:
""")
if not OPT['aul'] and not OPT['aue']: stage_au()
for rt in range(5):
    for ks in range(4): E(xread(rt, ks))
E(f"""
    s_mov_b64 exec, 1
    ds_add_u32 v18, v19 offset:{L_RD}
    s_mov_b64 exec, -1
""")
if OPT['aul']:
    lds_wait(L_RD, 8, 8, "aul"); stage_au()
E(f"""
    s_mov_b64 exec, 1
    s_waitcnt vmcnt(0)
    ds_add_u32 v18, v19 offset:{L_RD}
    s_mov_b64 exec, -1
    s_sub_u32 s29, s3, 4
""")
rec_setup()
lds_wait(L_RD, 0xff, 12, "rd")
for ks in range(4): wreads(ks)
for ks in range(4):
    E(f"s_waitcnt lgkmcnt({12 - 4*ks})"); mf(0, ks, True)
for rt in range(1, 5):
    for ks in range(4): mf(rt, ks, True)
    fin(rt-1)
fin(4)
if OPT["tagl"]: get_tag("h", 144)
STAMP(4)
E(f"""
    s_branch L_rec
L_sort:
""")
STAMP(1)
E(f"""
    s_mov_b32 s40, {f32(-LOG2E)}
    s_mov_b32 s46, 0x3f80
    s_cmp_lg_u32 s{S_SAFE}, 0
    s_cbranch_scc1 L_sortskip
    v_mov_b32 v21, 1
    v_mov_b32 v20, 3
    s_mov_b32 s31, 52429
    s_movk_i32 s32, -20
    v_lshlrev_b32 v9, 3, v1
    v_lshlrev_b32 v33, 4, v0
    s_mul_i32 s30, s{S_P}, {SORTB}
    s_add_u32 s30, s30, {WS_REC + 4096}
    v_add_u32 v32, s30, v33
    v_add_u32 v34, 8192, v32
    s_lshl_b32 s30, s{S_P}, 10
    s_add_u32 s30, s30, {WS_ROW}
    v_lshl_add_u32 v42, v1, 4, s30
    s_mov_b32 s34, {LDS_MAX}
    s_setprio 3
""")
E6 = OPT["ewhen"] in (0, 6, 7)
if OPT["ewhen"] == 6:
    E("v_mov_b32 v19, v3")
    lds_wait(L_CTR, 0xff000000, 0x08000000, "ew")
    E("v_mov_b32 v3, v19\ns_mov_b32 s31, 52429")
    E(f"""
    global_load_dwordx4 v[12:15], v3, s[8:9]{NTE}
    global_load_dword v16, v18, s[8:9]{NTE}
    global_load_dwordx4 v[52:55], v10, s[6:7]{NTE}
    global_load_dwordx4 v[56:59], v10, s[6:7] offset:16{NTE}
    global_load_dwordx2 v[60:61], v11, s[6:7]{NTE}
""")
E(f"""
    s_waitcnt vmcnt({1 + OPT['pre'] + 5*E6})
""")
STAMP(2)
FSTAMP(1)
for i in range(5):
    E(f"""
    v_mul_u32_u24 v{22+i}, s31, v{4+i}
    v_lshrrev_b32 v{22+i}, 22, v{22+i}
    v_lshlrev_b32 v{22+i}, 2, v{22+i}        ; bucket*4
    ds_add_rtn_u32 v{27+i}, v{22+i}, v20 offset:{L_SCNT}
    """)
E(f"""
    s_mov_b64 exec, 1
    s_cmp_lg_u32 s3, 0
    s_cbranch_scc1 L_notag
    s_waitcnt vmcnt({OPT['pre'] + 5*E6})
    ds_write_b32 v48, v43 offset:{L_SCNT + 125*4}
L_notag:
    ds_add_u32 v48, v21 offset:{L_SCNT + 127*4}
    s_mov_b64 exec, -1
""")
if OPT["ewhen"] == 1: E(f"""
    global_load_dwordx4 v[12:15], v3, s[8:9]{NTE}
    global_load_dword v16, v18, s[8:9]{NTE}
    global_load_dwordx4 v[52:55], v10, s[6:7]{NTE}
    global_load_dwordx4 v[56:59], v10, s[6:7] offset:16{NTE}
    global_load_dwordx2 v[60:61], v11, s[6:7]{NTE}
""")
E(f"""
L_s1:
    ds_read_b32 v38, v48 offset:{L_SCNT + 127*4}
    ds_read_b64 v[36:37], v9 offset:{L_SCNT}
    s_sub_u32 s34, s34, 1
    s_cbranch_scc1 L_s1d
    s_waitcnt lgkmcnt(0)
    v_readfirstlane_b32 s30, v38
    s_cmp_lg_u32 s30, 4
    s_cbranch_scc1 L_s1
L_s1d:
""")
FSTAMP(2)
E(f"""
    v_add3_u32 v39, v36, v37, 2
    v_add3_u32 v38, v36, v37, 2
    v_readlane_b32 s{S_TAGRAW}, v37, 62
""")
fill = []
for i in range(5):
    fill += [f"v_mad_i32_i24 v{4+i}, v{22+i}, s32, v{4+i}", f"v_lshlrev_b32 v{4+i}, 24, v{4+i}"]
for k, m in enumerate(SCAN):
    E(f"v_add_u32_dpp v39, v39, v39 {m}")
    for x in fill[2*k:2*k+2]: E(x)
E(f"""
    v_sub_u32 v40, v39, v38
    v_add3_u32 v41, v40, v36, 1
    s_mov_b32 s30, {L_SORT}
    v_lshl_add_u32 v38, v40, 2, s30
    v_lshl_add_u32 v39, v41, 2, s30
    ds_write_b64 v9, v[38:39] offset:{L_SOFF}
""")
for i in range(5):
    E(f"ds_read_b32 v{22+i}, v{22+i} offset:{L_SOFF}")
finish_tag()
E(f"""
    s_cmp_lg_u32 s3, 0
    s_cbranch_scc1 L_nopub
    s_and_b32 s35, s{S_TAG+1}, 0xff000000
    v_mov_b32 v45, s{S_TAG}
    v_mov_b32 v47, s{S_TAG}
    v_lshl_or_b32 v44, v36, 12, v40
    v_lshl_or_b32 v46, v37, 12, v41
    v_or_b32 v44, s35, v44
    v_or_b32 v46, s35, v46
    global_store_dwordx4 v42, v[44:47], s[20:21] sc1
    {"s_waitcnt vmcnt(1)" if OPT["ewhen"] in (0, 1, 6, 7) else ""}
    s_branch {"L_pub" if OPT["ewhen"] in (0, 1, 6, 7) else "L_nochk"}
L_nopub:
    s_cmp_lg_u32 s3, 1
    s_cbranch_scc1 L_nochk
    v_mov_b32 v44, s{S_TAG+1}
    s_mov_b32 exec_hi, 0x7fffffff
    ds_add_u32 v38, v44
    ds_add_u32 v39, v44
    s_mov_b32 exec_hi, -1
L_nochk:
""")
if 3 <= OPT["ewhen"] <= 5:
    E("v_mov_b32 v19, v3")
    if OPT["ewhen"] == 3: lds_wait(L_CTR, 0xff, 8, "ew")
    elif OPT["ewhen"] == 5: lds_wait(L_CTR, 0xff000000, 0x08000000, "ew")
    else: lds_wait(L_CTR, 0xff, 0, "ew", ne=True)
    E("v_mov_b32 v3, v19")
if 2 <= OPT["ewhen"] <= 5: E(f"""
    global_load_dwordx4 v[12:15], v3, s[8:9]{NTE}
    global_load_dword v16, v18, s[8:9]{NTE}
    global_load_dwordx4 v[52:55], v10, s[6:7]{NTE}
    global_load_dwordx4 v[56:59], v10, s[6:7] offset:16{NTE}
    global_load_dwordx2 v[60:61], v11, s[6:7]{NTE}
""")
E(f"""
    s_waitcnt vmcnt(0)
L_pub:
""")
STAMP(4)
FSTAMP(3)
for i in range(5): E(f"v_lshl_or_b32 v{4+i}, v{12+i}, 8, v{4+i}")
E("s_waitcnt lgkmcnt(0)")
for i in range(5):
    E(f"""
    v_lshl_add_u32 v{27+i}, v{27+i}, 2, v{22+i}
    v_add3_u32 v{12+i}, v{52+2*i}, v{53+2*i}, v{4+i}
    ds_write2_b32 v{27+i}, v{52+2*i}, v{53+2*i} offset0:2 offset1:3
    ds_write_b32 v{27+i}, v{4+i} offset:4
    ds_sub_u32 v{22+i}, v{12+i}
    """)
E(f"""
    s_mov_b64 exec, 1
    ds_add_u32 v48, v21 offset:{L_SCNT + 126*4}
    s_mov_b64 exec, -1
""")
FSTAMP(4)
E(f"""
    s_mov_b32 s34, {LDS_MAX}
L_s2:
    ds_read_b32 v38, v48 offset:{L_SCNT + 126*4}
    {f"ds_read_b32 v39, v48 offset:{L_CTR}" if OPT["wgate"] else ""}
    ds_read_b128 v[72:75], v33 offset:{L_SORT}
    s_sub_u32 s34, s34, 1
    s_cbranch_scc1 L_s2d
    s_waitcnt lgkmcnt(1)
    v_readfirstlane_b32 s30, v38
""")
if OPT["wgate"]:
    E(f"""
    v_readfirstlane_b32 s31, v39
    s_lshr_b32 s31, s31, 24
    s_add_u32 s30, s30, s31
    """)
E(f"""
    s_cmp_lg_u32 s30, {12 if OPT["wgate"] else 4}
    s_cbranch_scc1 L_s2
L_s2d:
""")
FSTAMP(5)
E(f"""
    ds_read_b128 v[76:79], v33 offset:{L_SORT + 4096}
    ds_read_b128 v[80:83], v33 offset:{L_SORT + 8192}
    ds_read_b128 v[84:87], v33 offset:{L_SORT + 12288}
    s_waitcnt lgkmcnt(3)
    global_store_dwordx4 v32, v[72:75], s[20:21] offset:-4096 sc1
    s_waitcnt lgkmcnt(2)
    global_store_dwordx4 v32, v[76:79], s[20:21] sc1
    s_waitcnt lgkmcnt(1){f" vmcnt({OPT['rpace']})" if OPT['rpace'] >= 0 else ""}
    global_store_dwordx4 v34, v[80:83], s[20:21] offset:-4096 sc1
    s_cmp_eq_u32 s3, 3
    s_cselect_b32 exec_hi, 0, -1
    s_waitcnt lgkmcnt(0){f" vmcnt({OPT['rpace']})" if OPT['rpace'] >= 0 else ""}
    global_store_dwordx4 v34, v[84:87], s[20:21] sc1
    s_mov_b32 exec_hi, -1
""")
FSTAMP(6)
for k in range(4): E(f"ds_write_b128 v33, v[48:51] offset:{L_SORT + 4096*k}")
STAMP(3)
FSTAMP(7)
E(f"""
    s_branch L_sortdone
L_sortskip:
    s_waitcnt vmcnt(0)
L_sortdone:
    s_mov_b32 s29, s3
""")
rec_setup()
E(f"""
L_rec:
""")
if OPT["mcl"]: E(f"s_cmp_ge_u32 s3, 8\ns_cbranch_scc1 L_nomc")
lds_wait(L_CTR, 0xff, 8, "r0")
if OPT["mcl"] != 2: main_consts()
E("L_nomc:")
STAMP(5)
E(f"""
    s_cmp_ge_u32 s3, 4
    s_cbranch_scc1 L_nod2
    v_mov_b32 v2, 0
    v_mov_b32 v3, 0x100
    s_mov_b64 exec, 1
    s_waitcnt vmcnt(0)
    ds_add_u32 v2, v3 offset:{L_CTR}
    s_mov_b64 exec, -1
L_nod2:
    s_cmp_lg_u32 s{S_SAFE}, 0
    s_cbranch_scc1 L_recskip
    s_lshr_b32 s35, s{S_TAG+1}, 24
    s_mov_b64 exec, s[66:67]
    s_mov_b32 s34, {POLL_MAX}
    s_branch L_p1c
L_p1:
    global_load_dwordx2 v[{ENT}:{ENT+1}], v{ROWA}, s[20:21] sc1
L_p1c:
    s_sub_u32 s34, s34, 1
    s_cbranch_scc1 L_toobig
    s_waitcnt vmcnt(0)
    v_cmp_ne_u32 vcc, s{S_TAG}, v{ENT+1}
    v_cmp_ne_u32_sdwa s[48:49], v{ENT}, s35 src0_sel:BYTE_3 src1_sel:DWORD
    s_or_b64 exec, vcc, s[48:49]
    s_cbranch_scc1 L_p1
    s_mov_b64 exec, -1
""")
STAMP(6)
if OPT["cnt"]: E(f"s_sub_u32 s{ST0+2}, {POLL_MAX+1}, s34\ns_mov_b32 s34, {POLL_MAX}")
E(f"""
    v_and_b32 v{CAD}, 0xfff, v{ENT}
    v_bfe_u32 v{ENT}, v{ENT}, 12, 12            ; 3*count
    v_add_lshl_u32 v{CAD}, v{CAD}, v{CELL}, 2
    v_cmp_ne_u32 vcc, 0, v{ENT}
    s_sub_u32 s30, 0, s{S_TAG+1}
    v_mov_b32 v2, s30
    v_cndmask_b32 v{ENT+1}, 0, v2, vcc
    v_cmp_lt_u32 vcc, 96, v{ENT}
    v_cmp_lt_u32 s[68:69], 48, v{ENT}
    s_cbranch_vccnz L_toobig
""")
for p in range(NP):
    E(f"""
    v_add_co_u32_dpp v2, vcc, v{ENT}, v{J3N} row_newbcast:{p} row_mask:0xf bank_mask:0xf
    v_add_u32_dpp v{RAD+p}, v{CAD}, v{J12} row_newbcast:{p} row_mask:0xf bank_mask:0xf
    s_mov_b64 s[{48+2*p}:{49+2*p}], vcc
    """)
lds_wait(L_CTR, 0xff00, 0x400, "r1")
if OPT["gate"]: lds_wait(L_GST, 0xff, 4, "gt")
if OPT["gate2"] == 1 and not OPT["split"]:
    if not OPT["allg"]: E("s_cmp_lt_u32 s3, 4\ns_cbranch_scc1 L_wd_g2")
    lds_wait(L_DONE2, 0xff, 5, "g2")
if OPT["gate2"] == 3:
    E("s_cmp_lt_u32 s3, 4\ns_cbranch_scc1 L_wd_g2")
    lds_wait(L_GST, 0xff, 4, "g2")
if OPT["gate2"] in (2, 4):
    E(f"""
    s_cmp_lt_u32 s3, 4
    s_cbranch_scc1 L_g2d
    s_mov_b32 s31, {POLL_MAX}
L_g2:
    ds_read_b128 v[60:63], v2 offset:{L_CTR}
    {f"ds_read_b32 v61, v2 offset:{L_GST}" if OPT["gate2"] == 4 else ""}
    s_sub_u32 s31, s31, 1
    s_cbranch_scc1 L_g2d
    s_waitcnt lgkmcnt(0)
    v_readfirstlane_b32 s30, v62
    v_readfirstlane_b32 s28, v60
    v_readfirstlane_b32 s29, v61
    s_cmp_eq_u32 s30, 5
    s_cbranch_scc1 L_g2d
    {"s_cmp_lg_u32 s29, 4" if OPT["gate2"] == 4 else ""}
    {"s_cbranch_scc1 L_g2" if OPT["gate2"] == 4 else ""}
    s_and_b32 s28, s28, 0xc0000
    s_cbranch_scc0 L_g2
L_g2d:
    """)
E(f"""
    s_or_b32 s68, s68, s69
    s_lshr_b32 s69, s68, 16
    s_or_b32 s68, s68, s69
""")
def mask2(p): return f"v_add_co_u32_dpp v2, vcc, v{ENT}, v{J3N2} row_newbcast:{p} row_mask:0xf bank_mask:0xf"
def loads(ps, lab):
    E(f"s_and_b32 s30, s68, {sum(1 << p for p in ps)}\ns_cbranch_scc0 L_nx{lab}")
    for p in ps:
        r = RB + 4*p
        E(f"""
        s_bitcmp1_b32 s68, {p}
        s_cbranch_scc0 L_nx{lab}{p}
        {mask2(p)}
        s_mov_b64 exec, vcc
        global_load_dwordx4 v[{r}:{r+3}], v{RAD+p}, s[20:21] offset:192 sc1
        s_mov_b64 exec, -1
L_nx{lab}{p}:
        """)
    E(f"L_nx{lab}:")
    for p in ps:
        r = RA + 4*p
        E(f"""
        s_mov_b64 exec, s[{48+2*p}:{49+2*p}]
        global_load_dwordx4 v[{r}:{r+3}], v{RAD+p}, s[20:21]{SC1 if (OPT["rsc1"] or lab != "m") else ""}
        """)
    E("s_mov_b64 exec, -1")
SP = OPT["split"]
GROUPS = {0: ((0,1,2,3),(4,5),(6,7)), 4: ((0,1,2,3),(4,5),(6,7)), 5: ((0,1,2),(3,4),(5,6,7)), 6: ((0,1,2,3),(4,5),(6,7)), 3: ((0,1,2),(3,4,5),(6,7)), 2: ((0,1),(2,3,4,5),(6,7)), 1: ((0,),(1,2,3,4),(5,6,7))}[SP]
if OPT['grp'] == 1: GROUPS = ((0,1),(2,3,4),(5,6,7))
if OPT['grp'] == 2: GROUPS = ((0,1),(2,3),(4,5),(6,7))
loads(range(SP or NP), "m")
if OPT["eag"]:
    E(f"""
    v_mov_b32 v2, 0
    ds_read_b32 v3, v2 offset:{L_DONE2}
    s_waitcnt lgkmcnt(0)
    v_readfirstlane_b32 s73, v3
    s_cmp_lg_u32 s73, 5
    s_cbranch_scc1 L_neag
    """)
    loads(range(SP, NP), "e")
    E("L_neag:")
def issued():
    if OPT["p2gate"]:
        E(f"""
        v_mov_b32 v2, 0
        v_mov_b32 v3, 0x10000
        s_mov_b64 exec, 1
        ds_add_u32 v2, v3 offset:{L_CTR}
        s_mov_b64 exec, -1
        """)
if OPT["mcl"]:
    if OPT["mcl"] == 1: E(f"s_cmp_lt_u32 s3, 8\ns_cbranch_scc1 L_nomc2")
    main_consts(28); E("L_nomc2:")
if not OPT["sig"]: issued()
STAMP(7)
def rank(r, m):
    E(f"""
    s_mov_b64 exec, {m}
    v_mul_u32_u24_sdwa v{r}, v{FOUR}, v{r+1} dst_sel:DWORD dst_unused:UNUSED_PAD src0_sel:DWORD src1_sel:BYTE_3
    v_and_b32 v{r+1}, {OPT['srcmask']}, v{r+1}
    ds_add_rtn_u32 v{r}, v{r}, v{FOUR} offset:{L_CNT}
    """)
def put(r, m):
    E(f"""
    s_mov_b64 exec, {m}
    v_lshlrev_b32 v2, 1, v{r}
    ds_write_b32 v{r}, v{r+1}
    ds_write_b64 v2, v[{r+2}:{r+3}] offset:{L_EA - 2*L_SRC}
    """)
retries = []
pending = []
for gi, grp in enumerate(GROUPS):
    bits = sum(1 << p for p in grp); m32 = bits | (bits << 16)
    if SP and grp[0] == SP:
        if OPT["eag"]: E("s_cmp_eq_u32 s73, 5\ns_cbranch_scc1 L_eagd")
        lds_wait(L_DONE2, 0xff, 5, "g2")
        loads(range(SP, NP), "n")
        E("L_eagd:")
        if OPT["sig"] == 9: issued()
    last = NP if (not SP or grp[0] >= SP) else SP
    first_ = 0 if (not SP or grp[0] < SP) else SP
    E(f"""
L_ck{gi}:
    s_mov_b32 vcc_lo, {m32}
    s_mov_b32 vcc_hi, {m32}
    v_cndmask_b32 v{ACC}, 0, v{ENT+1}, vcc
    s_and_b32 s30, s68, {bits}
    s_cbranch_scc1 L_xa{gi}
L_xb{gi}:
    """)
    def xacc():
        E(f"L_xa{gi}:\ns_waitcnt vmcnt({last - first_})")
        for p in grp:
            r = RB + 4*p
            E(f"""
            {mask2(p)}
            s_mov_b64 exec, vcc
            v_add3_u32 v{ACC}, v{ACC}, v{r+1}, v{r+2}
            v_add_u32 v{ACC}, v{ACC}, v{r+3}
            s_mov_b64 exec, -1
            """)
        E(f"s_branch L_xb{gi}")
    emit_to(outofline, xacc)
    for p in grp:
        r = RA + 4*p
        E(f"""
        s_waitcnt vmcnt({last-1-p})
        s_mov_b64 exec, s[{48+2*p}:{49+2*p}]
        v_and_b32 v{r}, v{r}, v{L0M}
        v_add3_u32 v{ACC}, v{ACC}, v{r+2}, v{r+3}
        v_add3_u32 v{ACC}, v{ACC}, v{r}, v{r+1}
        """)
    E("s_mov_b64 exec, -1\ns_nop 0")
    for k in (1, 2, 4, 8):
        E(f"v_add_u32_dpp v{ACC}, v{ACC}, v{ACC} row_ror:{k} row_mask:0xf bank_mask:0xf")
        if k < 8: E("s_nop 1")
    E(f"v_cmp_ne_u32 vcc, 0, v{ACC}\ns_cbranch_vccnz L_rt{gi}")
    if OPT["rst"]: STAMP(1+gi)
    if OPT["sig"] == gi + 1: issued()
    def retry():
        E(f"L_rt{gi}:\ns_sub_u32 s34, s34, 1\ns_cbranch_scc1 {'L_toobig' if (gi < OPT['sig'] if OPT['sig'] != 9 else grp[0] < SP) else 'L_giveup'}")
        loads(grp, f"r{gi}_")
        E(f"s_waitcnt vmcnt(0)\ns_branch L_ck{gi}")
    emit_to(outofline, retry)
    for p in grp: rank(RA + 4*p, f"s[{48+2*p}:{49+2*p}]")
    E(f"s_and_b32 s30, s68, {bits}\ns_cbranch_scc1 L_ya{gi}\nL_yb{gi}:")
    def xput():
        E(f"L_ya{gi}:")
        for p in grp:
            r = RB + 4*p
            E(f"""
            s_bitcmp1_b32 s68, {p}
            s_cbranch_scc0 L_yn{p}
            s_mov_b64 exec, -1
            {mask2(p)}
            """)
            rank(r, "vcc")
            E("s_waitcnt lgkmcnt(0)")
            put(r, "vcc")
            E(f"L_yn{p}:")
        E(f"s_branch L_yb{gi}")
    emit_to(outofline, xput)
    for k, p in enumerate(grp):
        E(f"s_waitcnt lgkmcnt({len(grp) - 1 - k + 2*k})")
        put(RA + 4*p, f"s[{48+2*p}:{49+2*p}]")
    E("s_mov_b64 exec, -1")
E(f"""
    {f"s_sub_u32 s{ST0+4}, {POLL_MAX+1}, s34" if OPT["cnt"] else ""}
    s_branch L_b4
L_toobig:
    s_mov_b64 exec, -1
""")
issued()
E(f"""
L_giveup:
    v_mov_b32 v2, 0
    ds_write_b32 v2, v{FOUR} offset:{L_FLAG}
L_recskip:
    s_waitcnt vmcnt(0)
""")
if OPT["mcl"]: main_consts()
E(f"""
L_b4:
    s_setprio {OPT["p0"] if OPT["prio"] == 2 else 0}
    s_mul_i32 s30, s{S_HALF}, {G_HALF}
    {f"s_add_u32 s30, s30, {WS0}" if WS0 else ""}
    s_add_u32 s36, s20, s30
    s_addc_u32 s37, s21, 0
    s_mov_b32 s38, {OPT['nrec'] or G_HALF}
    s_mov_b32 s39, 0x20000
    s_mov_b32 s44, 128
    s_mov_b32 s45, 128
    ds_read_b128 v[{WS4}:{WS4+3}], v{LP}
    ds_read_b64 v[{AG}:{AG+1}], v{LP} offset:64
    ds_read_b64 v[{WN2}:{WN2+1}], v{LP} offset:72
    ds_read_b32 v{WE}, v{LP+1}
    s_waitcnt lgkmcnt(0)
    v_lshl_add_u64 v[{AG}:{AG+1}], v[{AG}:{AG+1}], 0, v[{LN8}:{LN8+1}]
    v_lshl_add_u32 v{WE}, v{WE}, 1, v{EAC}
""")
assert OPT["gpe"] <= 64 and not OPT["ptime"]
if OPT["warm"]:
    E(f"""
    s_barrier
    s_lshr_b32 s30, s2, 3
    s_mul_i32 s30, s30, 98304
    v_lshl_add_u32 v2, v0, 7, s30
    buffer_load_dword v3, v2, s[36:39], 0 offen sc1
    s_waitcnt vmcnt(0)
    s_sleep 40
    """)
STAMP(8)
E(f"""
    s_barrier                               ; B4
    s_cmp_lg_u32 s{S_SAFE}, 0
    s_cbranch_scc1 L_safe
    ds_read_b128 v[{T}:{T+3}], v{WS4}
    ds_read_b128 v[{T+4}:{T+7}], v{WS4+1}
    ds_read_b64 v[{XA}:{XA+1}], v{AG} offset:512
    ds_read_b64 v[{EA}:{EA+1}], v{WE}
    s_lshr_b32 s30, s3, 2
    s_cmp_lg_u32 s30, 1
    s_cbranch_scc1 L_nopoll
    s_mov_b64 exec, s[66:67]
    s_cbranch_execz L_p2e
    s_mov_b32 s31, {POLL_MAX}
L_p2:
    global_load_dwordx2 v[66:67], v64, s[20:21] sc1
    s_sub_u32 s31, s31, 1
    s_cbranch_scc1 L_p2d
    s_waitcnt vmcnt(0)
    v_cmp_ne_u64 vcc, s[{S_TAG}:{S_TAG+1}], v[66:67]
    s_and_b64 exec, exec, vcc
    s_cbranch_scc0 L_p2d
    {f"s_sleep {OPT['p2sleep']}" if OPT['p2sleep'] else ""}
    s_branch L_p2
L_p2d:
""")
gready("b")
E(f"""
L_p2e:
    s_mov_b64 exec, -1
L_nopoll:
    s_cmp_lt_u32 s3, 8
    s_cbranch_scc1 L_nobuild
; waves 8..11: place the edges past the 24th of every node: blocks of 8 (two tiles), then remainders of up to 4
    v_lshlrev_b32 v2, 3, v1
    v_mov_b32 v3, 0
    ds_read_b64 v[72:73], v2 offset:{L_CNT}
    ds_read_b32 v79, v3 offset:{L_FLAG}
    v_mul_u32_u24 v74, {2*SSTR}, v1
    v_add_u32 v74, {L_SRC + 96}, v74
    v_add_u32 v75, {SSTR}, v74
    v_mul_u32_u24 v82, {2*NSTR}, v1
    s_and_b32 s32, s3, 1
    s_mul_i32 s30, s32, {NSTR}
    s_add_u32 s30, s30, {L_NODE}
    v_add_u32 v82, s30, v82
    v_mov_b32 v83, v82
    s_mul_i32 s30, s32, {SSTR}
    v_add_u32 v80, s30, v74
    v_add_u32 v81, 16, v80
    s_waitcnt lgkmcnt(0)
    v_sub_u32 v72, v72, v74 clamp
    v_sub_u32 v73, v73, v75 clamp
    v_max_u32 v76, v72, v73
    v_cmp_lt_u32 vcc, 160, v76
    v_cmp_ne_u32 s[48:49], 0, v79
    v_add_u32 v74, 12, v72
    v_add_u32 v75, 12, v73
    s_or_b64 vcc, vcc, s[48:49]
    s_cbranch_scc1 L_bad
    v_add_u32 v72, 28, v72
    v_add_u32 v73, 28, v73
    v_lshrrev_b32 v74, 5, v74
    v_lshrrev_b32 v75, 5, v75
    v_lshrrev_b32 v72, 5, v72
    v_lshrrev_b32 v73, 5, v73
    v_sub_u32 v72, v72, v74
    v_sub_u32 v73, v73, v75
    v_lshl_or_b32 v72, v72, 16, v74
    v_lshl_or_b32 v73, v73, 16, v75
    v_add_u32 v76, v72, v73
    v_add_u32 v77, v72, v73
""")
scan(77)
E(f"""
    s_cmp_eq_u32 s32, 0
    s_cselect_b64 vcc, -1, 0
    v_readlane_b32 s30, v77, 63
    v_cndmask_b32 v76, v73, v76, vcc
    v_cndmask_b32 v72, v73, v72, vcc
    v_sub_u32 v77, v77, v76
    s_and_b32 s50, s30, 0xffff
    s_add_u32 s31, s50, 3
    s_lshr_b32 s31, s31, 2
    s_sub_u32 s51, 0, s50
    s_and_b32 s51, s51, 3                   ; spare quarters of the last such slot take remainders
    s_lshr_b32 s30, s30, 16
    s_add_u32 s30, s30, 3
    s_sub_u32 s30, s30, s51
    s_lshr_b32 s30, s30, 2
    s_lshl_b32 s33, s31, 1
    s_add_u32 s33, s33, s30
    s_cmp_gt_u32 s33, 104
    s_cbranch_scc1 L_bad
    s_lshl_b32 s30, s30, 8
    s_or_b32 s29, s30, s31
    v_and_b32 v74, 0xffff, v72
    v_and_b32 v76, 0xffff, v77
    s_mov_b32 s34, {L_LISTC}
    s_mov_b32 s35, {L_LIST + 136}
""")
def slotaddr():
    E(f"""
    v_subrev_u32 v78, 32, v76
    v_bfe_u32 v79, v76, 2, 2
    v_lshl_add_u32 v79, v79, 10, s34
    v_lshrrev_b32 v84, 5, v78
    v_lshl_add_u32 v79, v84, 7, v79
    v_bfe_u32 v84, v78, 4, 1
    v_lshl_add_u32 v79, v84, 3, v79
    v_lshrrev_b32 v84, 2, v76
    v_cmp_gt_u32 vcc, 32, v76
    v_lshl_add_u32 v84, v84, 9, s35
    v_and_b32 v78, 3, v76
    v_cndmask_b32 v79, v79, v84, vcc
    v_lshl_add_u32 v79, v78, 4, v79
    """)
E("""
    s_cmp_lt_u32 s3, 10
    s_cbranch_scc1 L_brem
L_bf:
    v_cmp_ne_u32 vcc, 0, v74
    s_and_b64 exec, exec, vcc
    s_cbranch_execz L_bfd
""")
slotaddr()
E(f"""
    ds_write_b64 v79, v[80:81]
    ds_write_b64 v79, v[82:83] offset:64
    v_add_u32 v80, 32, v80
    v_add_u32 v81, 32, v81
    v_add_u32 v76, 1, v76
    v_subrev_u32 v74, 1, v74
    s_branch L_bf
L_brem:
    v_lshl_add_u32 v80, v74, 5, v80
    v_add_u32 v81, 16, v80
    v_lshrrev_b32 v77, 16, v77
    s_sub_u32 s52, 0, s31
    s_and_b32 s52, s52, 3
    s_add_u32 s53, s31, s52
    s_lshl_b32 s52, s52, 3
    v_subrev_u32 v73, s51, v77              ; j' = j - spare
    v_subrev_u32 v74, s52, v73
    v_lshrrev_b32 v76, 3, v73
    v_add_u32 v76, s31, v76
    v_and_b32 v75, 4, v73
    v_lshrrev_b32 v78, 5, v74
    v_lshl_add_u32 v78, v78, 2, s53
    v_bfe_u32 v79, v74, 2, 2
    v_add_u32 v78, v78, v79
    v_cmp_gt_u32 vcc, s52, v73
    v_lshrrev_b32 v74, 2, v74
    v_and_b32 v74, 4, v74
    v_cndmask_b32 v76, v78, v76, vcc        ; slot
    v_cndmask_b32 v75, v74, v75, vcc
    v_and_b32 v78, 3, v73
    v_cmp_gt_u32 s[54:55], s51, v77
    v_lshl_add_u32 v76, v76, 2, v78
    v_add_u32 v78, s50, v77
    v_cndmask_b32 v76, v76, v78, s[54:55]
""")
slotaddr()
E(f"""
    v_cmp_lt_u32 vcc, 0xffff, v72
    v_add_u32 v75, v79, v75
    s_andn2_b64 exec, vcc, s[54:55]
    ds_write2_b32 v75, v80, v82 offset0:0 offset1:16
    s_and_b64 exec, vcc, s[54:55]
    ds_write_b64 v79, v[80:81]
    ds_write_b64 v79, v[82:83] offset:64
L_bfd:
    s_mov_b64 exec, -1
    s_mov_b32 s56, s29
    s_cmp_eq_u32 s3, 8
    s_cselect_b32 s29, s29, 0
    s_add_u32 s29, s29, 0x10000
    s_branch L_built
L_bad:
    s_mov_b32 s56, 0
    s_mov_b32 s29, 0x1010000
L_built:
    v_mov_b32 v2, s29
    s_mov_b64 exec, 1
    ds_add_u32 v3, v2 offset:{L_NST}
    s_add_u32 s30, s{S_P}, s3
    s_cmp_lg_u32 s30, 8
    s_cbranch_scc1 L_notw
    v_mov_b32 v2, s{S_TAG}
    v_mov_b32 v3, {WS_TAG}
    global_store_dword v3, v2, s[20:21] sc1
L_notw:
    s_mov_b64 exec, -1
    v_mov_b32 v2, 0
    s_mov_b32 s30, s56
    s_and_b32 s31, s30, 0xff
    s_bfe_u32 s30, s30, 0x80008
    s_and_b32 s28, s3, 3
    s_sub_u32 s32, 0, s31
    s_and_b32 s32, s32, 3
    s_add_u32 s33, s28, s32
    s_sub_i32 s33, s33, 4
    s_lshl_b32 s29, s33, 1
    s_sub_i32 s29, s30, s29
    s_max_i32 s29, s29, 0
    s_min_i32 s29, s29, 2
    s_cmp_lt_i32 s33, 0
    s_cselect_b32 s29, 0, s29
    s_lshl_b32 s32, s32, 1
    s_sub_i32 s30, s30, s32
    s_sub_i32 s30, s30, s28
    s_add_i32 s30, s30, 3
    s_max_i32 s30, s30, 0
    s_lshr_b32 s30, s30, 2
    s_add_u32 s30, s30, s29
    s_sub_u32 s32, s31, s28
    s_add_u32 s32, s32, 3
    s_lshr_b32 s32, s32, 2
    s_lshl_b32 s32, s32, 1
    s_add_u32 s30, s30, s32
    s_sub_i32 s30, s30, 4
    s_max_i32 s30, s30, 0
    s_add_u32 s{S_R}, s30, 6
    s_sub_i32 s31, s31, s3
    s_add_i32 s31, s31, 3
    s_max_i32 s31, s31, 0
    s_lshr_b32 s31, s31, 2
    s_lshl_b32 s31, s31, 1
    s_lshl_b32 s31, -1, s31
    s_or_b32 s31, s31, 0x55555555
    s_lshl_b32 s32, 2, s30
    s_sub_u32 s32, s32, 1
    s_and_b32 s31, s31, s32
    s_lshl_b32 s32, 64, s30
    s_or_b32 s{S_M}, s31, s32
    v_and_b32 v72, 15, v1
    v_lshrrev_b32 v73, 4, v1
    s_lshl_b32 s31, s3, 2
    s_add_u32 s31, s31, 32
    v_add_u32 v73, s31, v73                 ; node
    v_mul_u32_u24 v74, {SSTR}, v73
    v_lshl_add_u32 v74, v72, 4, v74
    v_add_u32 v74, {L_SRC}, v74
    v_mul_u32_u24 v75, {NSTR}, v73
    v_add_u32 v75, {L_NODE}, v75
    v_cmp_gt_u32 vcc, 6, v72
    v_add_u32 v72, s30, v72
    v_lshrrev_b32 v73, 2, v72
    v_lshl_add_u32 v73, v73, 7, v{LP}
    v_and_b32 v72, 3, v72
    v_lshl_add_u32 v73, v72, 2, v73
    s_mov_b64 exec, vcc
    ds_write2_b32 v73, v74, v75 offset0:0 offset1:16
    s_cmp_lg_u32 s30, 0
    s_cbranch_scc1 L_cw2
    v_mov_b32 v3, 1
    s_mov_b64 exec, 1
    ds_add_u32 v2, v3 offset:{L_DYN}
L_cw2:
    s_mov_b64 exec, -1
    s_mov_b32 s31, {LDS_MAX}
L_wnc:
    ds_read_b32 v3, v2 offset:{L_NST}
    s_sub_u32 s31, s31, 1
    s_cbranch_scc1 L_gosafe
    s_waitcnt lgkmcnt(0)
    v_readfirstlane_b32 s30, v3
    s_bitcmp1_b32 s30, 18
    s_cbranch_scc0 L_wnc
    s_cmp_gt_u32 s30, {0 if OPT["force_safe"] else 0xffffff}
    s_cbranch_scc1 L_gosafe
    ds_read_b128 v[{WS4}:{WS4+3}], v{LP}
    ds_read_b64 v[{AG}:{AG+1}], v{LP} offset:64
    ds_read_b64 v[{WN2}:{WN2+1}], v{LP} offset:72
    ds_read_b32 v{WE}, v{LP+1}
    s_waitcnt lgkmcnt(0)
    v_lshl_add_u64 v[{AG}:{AG+1}], v[{AG}:{AG+1}], 0, v[{LN8}:{LN8+1}]
    v_lshl_add_u32 v{WE}, v{WE}, 1, v{EAC}
    ds_read_b128 v[{T}:{T+3}], v{WS4}
    ds_read_b128 v[{T+4}:{T+7}], v{WS4+1}
    ds_read_b64 v[{XA}:{XA+1}], v{AG} offset:512
    ds_read_b64 v[{EA}:{EA+1}], v{WE}
L_nobuild:
    s_waitcnt lgkmcnt(0)
""")
assert DIST == 2 and not EARLY
E(m_a(D0))
for o in range(T, T+8, 2): E(oadd(o))
E(m_e(D0, 0))
E(f"ds_read_b64 v[{XA}:{XA+1}], v{AG+1} offset:512")
lds_wait(L_GOK, 0xff, 4, "gok")
if OPT["stamps"] == 2: E(f"s_memrealtime s[{ST0+16}:{ST0+17}]")
if not OPT["nogather"]:
    for q in range(8): E(gload(G + 4*q, T+q))
STAMP(9)
E(f"""
    s_mov_b32 s31, {LDS_MAX}
""")
E(f"""
    s_cmp_ge_u32 s3, 8
    s_cbranch_scc1 L_nd
L_wna:
    ds_read_b32 v3, v2 offset:{L_NST}
    s_sub_u32 s31, s31, 1
    s_cbranch_scc1 L_gosafe
    s_waitcnt lgkmcnt(0)
    v_readfirstlane_b32 s30, v3
    s_bitcmp1_b32 s30, 18
    s_cbranch_scc0 L_wna
    s_cmp_gt_u32 s30, {0 if OPT["force_safe"] else 0xffffff}
    s_cbranch_scc1 L_gosafe
    s_and_b32 s31, s30, 0xff
    s_mov_b32 s{S_R}, 14
    s_cmp_ge_u32 s3, s31
    s_cselect_b32 s30, 0x80, 0
    s_or_b32 s{S_M}, s30, 0x4141
L_nd:
    s_waitcnt vmcnt(6)
    {m_s(D0, A1, G)}
    s_waitcnt vmcnt(4)
    {m_s(D0, A2, G+8)}
    v_mov_b32 v3, 1
    s_nop 7
    s_mov_b32 s{S_IT}, {(1 << OPT["pa"]) | (1 << OPT["pb"]) | (1 << OPT["pc"]) if OPT["prio"] == 2 else 0}
""")
if OPT["prio"]: E(f"s_setprio {OPT['p1']}")
STAMP(10)
if OPT["ptime"]: E("v_mov_b32 v70, 0\nv_mov_b32 v71, 0")
if OPT["stamps"] == 1: E(f"s_memtime s[{ST0+24}:{ST0+25}]\ns_waitcnt lgkmcnt(0)")
for u in range(4): phase(u, True)
assert OPT["pc"] >= 2
def aggread(r, k, node): return f"ds_read_b64 v[{r+2*k}:{r+2*k+1}], v68 offset:{node*NSTR + 128*k}"
def tail(u):
    Dc, Dn = ((D0, D1), (D1, D0))[u & 1]
    gc = G + 16*u; gn = G + 16*((u+1) & 3)
    E(f"L_T{u}:")
    E(m_a(Dn))
    for x in exps(Dc, 0): E(x)
    E(m_e(Dn, (u+1) & 3))
    for x in exps(Dc, 1): E(x)
    E(f"ds_read_b32 v3, v2 offset:{L_DYN}")
    weave(pk_steps(gc, 0, False) + pk_steps(gc, 1, False), {2*k+1: [aggread(F, k, 32)] for k in range(4)})
    E("s_waitcnt vmcnt(2)"); E(m_s(Dn, A1, gn))
    for x in exps(Dc, 2): E(x)
    E("s_waitcnt vmcnt(0)"); E(m_s(Dn, A2, gn+8))
    for x in exps(Dc, 3): E(x)
    for x in pk_steps(gc, 2, False) + pk_steps(gc, 3, False): E(x)
    for q in (0, 2):
        for x in exps(Dn, q) + exps(Dn, q+1): E(x)
        for x in pk_steps(gn, q, False) + pk_steps(gn, q+1, False): E(x)
for u in (1, 2, 3):
    def t_(): tail(u); E("s_branch L_mdone")
    emit_to(outofline, t_)
tail(0)
E(f"""
L_mdone:
""")
STAMP(11)
if OPT["ptime"]:
    E(f"""
    s_lshl_b32 s30, s2, 4
    s_add_u32 s30, s30, s3
    s_lshl_b32 s30, s30, 8
    s_add_u32 s30, s30, 0xc00000
    v_lshl_add_u32 v2, v1, 2, s30
    s_mov_b32 exec_hi, 0
    global_store_dword v2, v70, s[20:21]
    global_store_dword v2, v71, s[20:21] offset:128
    s_mov_b64 exec, -1
    """)
if OPT["stamps"] == 1:
    E(f"s_memtime s[28:29]\ns_waitcnt lgkmcnt(0)\ns_sub_u32 s{ST0+24}, s28, s{ST0+24}")
E(f"""
    s_mov_b32 s32, {f32(2.0**32)}
    s_mov_b32 s34, {f32(-LOG2E * 2.0**-32)}
    s_mov_b32 s31, {LDS_MAX}
    v_rcp_f32 v{P}, v{P}
    v_rcp_f32 v{P+1}, v{P+1}
    v_rcp_f32 v{P+2}, v{P+2}
    v_rcp_f32 v{P+3}, v{P+3}
L_dw:
    s_waitcnt lgkmcnt(0)
    v_readfirstlane_b32 s30, v3
    s_add_u32 s30, s30, s{S_SAFE}
    s_cmp_lt_u32 s30, 12
    s_cbranch_scc1 L_dr
L_dx:
    s_cmp_ge_u32 s3, 8
    s_cbranch_scc1 L_d1
""")
for k in range(4): E(aggread(12, k, 0))
E("L_d1:")
def reread():
    E(f"L_dr:\ns_sub_u32 s31, s31, 1\ns_cbranch_scc1 L_dx\nds_read_b32 v3, v2 offset:{L_DYN}")
    for k in range(4): E(aggread(F, k, 32))
    E("s_branch L_dw")
emit_to(outofline, reread)
OSC = {0: "", 1: " sc1", 2: " nt"}[OPT["osc"]]
def silu(y, first):
    for p in range(2): E(f"v_pk_mul_f32 v[{36+2*p}:{37+2*p}], v[{y+2*p}:{y+2*p+1}], s[34:35] op_sel_hi:[1,0]")
    for k in range(4): E(f"v_exp_f32 v{36+k}, v{36+k}")
    E(f"v_pk_add_f32 v[10:11], v[{y}:{y+1}], v[{y+2}:{y+3}]" if first else f"v_pk_add_f32 v[10:11], v[10:11], v[{y}:{y+1}]")
    for p in range(2): E(f"v_pk_fma_f32 v[{36+2*p}:{37+2*p}], v[{36+2*p}:{37+2*p}], s[32:33], s[32:33] op_sel_hi:[1,0,0]")
    for k in range(4): E(f"v_rcp_f32 v{36+k}, v{36+k}")
    E("v_mov_b32 v9, 0x207" if first else f"v_pk_add_f32 v[10:11], v[10:11], v[{y+2}:{y+3}]")
    for p in range(2): E(f"v_pk_mul_f32 v[{36+2*p}:{37+2*p}], v[{y+2*p}:{y+2*p+1}], v[{36+2*p}:{37+2*p}]")
    o = 44 if first else 46
    E(f"v_cvt_pk_bf16_f32 v{o}, v36, v37\nv_cvt_pk_bf16_f32 v{o+1}, v38, v39")
    E(f"global_store_dwordx2 v69, v[{o}:{o+1}], s[18:19]{OSC}")
for k in range(4): E(f"v_cvt_f32_f64 v{28+k}, v[{F+2*k}:{F+2*k+1}]")
for p in range(2): E(f"v_pk_fma_f32 v[{28+2*p}:{29+2*p}], v[{N+2*p}:{N+2*p+1}], v[{P+2*p}:{P+2*p+1}], v[{28+2*p}:{29+2*p}]")
silu(28, True)
E(f"""
    s_cmp_ge_u32 s3, 8
    s_cbranch_scc1 L_e4
    v_subrev_u32 v69, {32*256}, v69
    s_waitcnt lgkmcnt(0)
""")
for k in range(4): E(f"v_cvt_f32_f64 v{28+k}, v[{12+2*k}:{13+2*k}]")
silu(28, False)
E(f"""
L_e4:
    v_add_f32 v10, v10, v11
    v_cmp_class_f32 vcc, v10, v9
    v_mov_b32 v2, 0
    s_cmp_lg_u32 s{S_SAFE}, 0
    s_cbranch_scc1 L_fin
    {"s_branch" if OPT["nosafe"] else "s_cbranch_vccz"} L_e5
    ds_write_b32 v2, v9 offset:{L_FLAG}
    s_waitcnt lgkmcnt(0)
L_e5:
    s_barrier                               ; B6
    ds_read_b32 v2, v2 offset:{L_FLAG}
    s_waitcnt lgkmcnt(0)
    v_readfirstlane_b32 s30, v2
    s_cmp_lg_u32 s30, 0
    s_cbranch_scc1 L_gosafe
L_fin:
""")
if OPT["stamps"]:
    E("s_waitcnt vmcnt(0)"); STAMP(13); STAMP_OUT()
if OPT["probe"] >= 0:
    T_ = ST0 + 2*OPT["probe"]
    E(f"""
    s_cmp_lg_u32 s3, {OPT["pw"]}
    s_cbranch_scc1 L_end
    s_cmp_lg_u32 s2, {OPT["pg"] if OPT["pg"] >= 0 else "s2"}
    s_cbranch_scc1 L_end
    s_sub_u32 s30, s{T_}, s{ST0}
    s_lshl_b32 s30, s30, 2
    s_add_u32 s30, s30, 3000
    s_min_u32 s30, s30, 20000
L_spin:
    s_memrealtime s[28:29]
    s_waitcnt lgkmcnt(0)
    s_sub_u32 s28, s28, s{ST0}
    s_cmp_lt_u32 s28, s30
    s_cbranch_scc1 L_spin
    """)
E(f"""
L_end:
    s_endpgm
L_gosafe:
    s_mov_b32 s{S_SAFE}, 16
    s_setprio 0
    s_waitcnt vmcnt(0) lgkmcnt(0)
    s_barrier
    s_branch L_restart
""")
out += outofline
for r in retries: E(r)
E(f"""
L_safe:
    v_and_b32 v2, 15, v1
    v_lshlrev_b32 v3, 3, v2
    v_add_u32 v3, {L_C}, v3
""")
for k in range(4):
    for s in range(4):
        E(f"ds_read_u16 v{80+4*k+s}, v3 offset:{128*k + 2*s}")
E("s_waitcnt lgkmcnt(0)")
for i in range(16):
    E(f"v_lshlrev_b32 v{80+i}, 16, v{80+i}\nv_mul_f32 v{80+i}, s40, v{80+i}")
E(f"""
    v_lshrrev_b32 v24, 4, v1
    v_mul_u32_u24 v24, 3, v24               ; 3*quarter
    s_movk_i32 s33, {NSTR}
    v_add_u32 v25, {L_NODE}, v{LN8}
    s_mov_b32 s34, s3
    s_mov_b32 s35, {POLL_MAX}
L_scell:
    s_lshl_b32 s30, s34, 10
    s_lshl_b32 s31, s{S_BUCK}, 3
    s_add_u32 s30, s30, s31
    s_add_u32 s30, s30, {WS_ROW}
    v_mov_b32 v26, s30
    global_load_dword v32, v26, s[20:21] sc1
    s_mul_i32 s30, s34, {SORTB//4}
    s_add_u32 s30, s30, {WS_REC//4}
    s_waitcnt vmcnt(0)
    v_bfe_u32 v28, v32, 12, 12              ; 3*count
    v_and_b32 v27, 0xfff, v32
    v_add_u32 v27, s30, v27
L_sver:
    v_mov_b32 v29, v1
    v_mov_b32 v31, 0
L_sv1:
    v_cmp_ge_u32 vcc, v28, v29
    s_and_saveexec_b64 s[48:49], vcc
    s_cbranch_execz L_sv2
    v_add_lshl_u32 v30, v27, v29, 2
    global_load_dword v32, v30, s[20:21] sc1
    s_waitcnt vmcnt(0)
    v_add_u32 v31, v31, v32
    s_mov_b64 exec, s[48:49]
    v_add_u32 v29, 64, v29
    s_branch L_sv1
L_sv2:
    s_mov_b64 exec, s[48:49]
""")
scan(31)
E(f"""
    s_nop 0
    v_readlane_b32 s30, v31, 63
    s_cmp_eq_u32 s30, s{S_TAG+1}
    s_cbranch_scc1 L_sok
    s_sub_u32 s35, s35, 1
    s_cbranch_scc0 L_sver
    s_branch L_sdone
L_sok:
    v_mov_b32 v29, v24
L_srec:
    v_cmp_gt_u32 vcc, v28, v29
    s_and_saveexec_b64 s[48:49], vcc
    s_cbranch_execz L_snext
    v_add_lshl_u32 v30, v27, v29, 2
    global_load_dwordx3 v[32:34], v30, s[20:21] offset:4 sc1
    s_waitcnt vmcnt(0)
    v_and_b32 v30, 0x3fff00, v32
    v_add_u32 v30, v30, v{LN16}
    buffer_load_dwordx4 v[36:39], v30, s[36:39], 0 offen sc1
    v_lshrrev_b32 v31, 24, v32
    v_mad_u32_u24 v31, v31, s33, v25
    ds_read_b64 v[40:41], v31 offset:512
    v_lshlrev_b32 v44, 16, v33
    v_and_b32 v45, 0xffff0000, v33
    v_lshlrev_b32 v46, 16, v34
    v_and_b32 v47, 0xffff0000, v34
    s_waitcnt vmcnt(0) lgkmcnt(0)
    v_lshlrev_b32 v48, 16, v40
    v_and_b32 v49, 0xffff0000, v40
    v_lshlrev_b32 v50, 16, v41
    v_and_b32 v51, 0xffff0000, v41
""")
for s in range(4):
    E(f"v_lshlrev_b32 v52, 16, v{36+s}\nv_add_f32 v{48+s}, v{48+s}, v52")
    for k in range(4):
        E(f"v_fmac_f32 v{48+s}, v{44+k}, v{80+4*k+s}")
for s in range(4): E(f"v_exp_f32 v{48+s}, v{48+s}")
E("s_nop 0")
for s in range(4): E(f"v_add_f32 v{48+s}, 1.0, v{48+s}")
for s in range(4): E(f"v_rcp_f32 v{48+s}, v{48+s}")
E("s_nop 0")
for s in range(4): E(f"v_mul_f32 v{48+s}, v{48+s}, v{36+s}")
for s in range(4): E(f"v_cvt_f64_f32 v[{54+2*s}:{55+2*s}], v{48+s}")
for s in range(4): E(f"ds_add_f64 v31, v[{54+2*s}:{55+2*s}] offset:{128*s}")
E(f"""
    s_mov_b64 exec, s[48:49]
    v_add_u32 v29, 12, v29
    s_branch L_srec
L_snext:
    s_mov_b64 exec, s[48:49]
    s_add_u32 s34, s34, {NW}
    s_cmp_lt_u32 s34, {NCHUNK}
    s_cbranch_scc1 L_scell
L_sdone:
    s_waitcnt lgkmcnt(0)
    s_barrier
    v_mov_b32 v3, 0
""")
for k in range(4): E(f"v_mov_b32 v{N+k}, 0\nv_mov_b32 v{P+k}, 1.0"); E(aggread(F, k, 32))
E(f"""
    s_branch L_mdone
L_codeend:
.section .rodata,"a"
.p2align 6
.amdhsa_kernel {NAME}
.amdhsa_next_free_vgpr 168
.amdhsa_next_free_sgpr 102
.amdhsa_accum_offset 168
.amdhsa_group_segment_fixed_size 0
.amdhsa_kernarg_size 80
.amdhsa_user_sgpr_count 2
.amdhsa_user_sgpr_kernarg_segment_ptr 1
.amdhsa_system_sgpr_workgroup_id_x 1
.end_amdhsa_kernel
""")
if OPT["drop"]:
    i0 = out.index("L_L0:"); i1 = out.index("L_mdone:")
    pats = {1: ("smfmac",), 2: ("mfma",), 3: ("32x32x8",), 4: ("smfmac",), 5: ("v_exp",)}[OPT["drop"]]
    repl = {4: "    s_nop 2", 5: "    s_nop 1"}.get(OPT["drop"])
    mid = []
    for l in out[i0:i1]:
        if any(x in l for x in pats):
            if repl: mid.append(repl)
        else: mid.append(l)
    if OPT["drop"] == 3: mid = [l.replace("v[88:103] cbsz", "0 cbsz").replace("v[72:87] cbsz", "0 cbsz") for l in mid]
    out = out[:i0] + mid + out[i1:]
if OPT["nochain"]:
    i0 = out.index("L_L0:"); i1 = out.index("L_mdone:")
    out = out[:i0] + [l for l in out[i0:i1] if not any(x in l for x in ("v_exp", "v_pk_", "mfma", "v_rcp", "v_cvt"))] + out[i1:]
open(sys.argv[1], "w").write("\n".join(out) + "\n")
```

```python
from mblib import *
from cdna_launch import _hip, _check
ON_GPU = os.path.exists('/dev/kfd')
A1, A2, IDX, LN16, ASEL, CW, EA, XA, OFS, T, N, P, LPT = 4, 8, 12, 14, 16, 18, 30, 32, 36, 44, 52, 56, 22
D0, D1, G = 64, 80, 96
def pk(Gc, q):
    t = T + 4*(q & 1); h = Gc + 4*q; r = []
    for p in range(2): r.append(f"v_pk_fma_f32 v[{N+2*p}:{N+2*p+1}], v[{N+2*p}:{N+2*p+1}], v[{t+2*p}:{t+2*p+1}], v[{N+2*p}:{N+2*p+1}]")
    for p in range(2): r.append(f"v_pk_fma_f32 v[{N+2*p}:{N+2*p+1}], v[{h+2*p}:{h+2*p+1}], v[{P+2*p}:{P+2*p+1}], v[{N+2*p}:{N+2*p+1}]")
    for p in range(2): r.append(f"v_pk_fma_f32 v[{P+2*p}:{P+2*p+1}], v[{P+2*p}:{P+2*p+1}], v[{t+2*p}:{t+2*p+1}], v[{P+2*p}:{P+2*p+1}]")
    return r
def ex(Dc, q): return [f"v_exp_f32 v{T+4*(q&1)+s}, v{Dc+4*s+q}" for s in range(4)]
def weave(m, e):
    o = []
    for i, x in enumerate(m): o.append(x); o += e.get(i, [])
    return o
def phase(u, salu):
    Dc, Dn = ((D0, D1), (D1, D0))[u]; gc = G + 16*u; gn = G + 16*(1-u)
    S = lambda n: ["s_bitcmp1_b32 s40, 0", "s_cbranch_scc1 L_x"]*n if salu else []
    o = [f"v_mfma_f32_32x32x8_bf16 v[{Dn}:{Dn+15}], v[{ASEL}:{ASEL+1}], v[{XA}:{XA+1}], 0"] + ex(Dc,0)
    o += [f"v_mfma_f32_16x16x4_4b_bf16 v[{Dn}:{Dn+15}], v[{EA}:{EA+1}], v[{CW}:{CW+1}], v[{Dn}:{Dn+15}] cbsz:2 abid:{u}"] + ex(Dc,1) + (S(1) or ["s_nop 0"])
    o += weave(pk(gc,0)+pk(gc,1), {0:["s_waitcnt lgkmcnt(0)"], 1:[f"ds_read_b128 v[{OFS}:{OFS+3}], v{LPT} offset:{64*u}"], 2:[f"ds_read_b64 v[{XA}:{XA+1}], v23"]})
    o += ["s_waitcnt vmcnt(2)", f"v_smfmac_f32_32x32x32_bf16 v[{Dn}:{Dn+15}], v[{A1}:{A1+3}], v[{gn}:{gn+7}], v{IDX}"] + ex(Dc,2)
    o += ["s_waitcnt vmcnt(0)", f"v_smfmac_f32_32x32x32_bf16 v[{Dn}:{Dn+15}], v[{A2}:{A2+3}], v[{gn+8}:{gn+15}], v{IDX}"] + ex(Dc,3)
    ld = lambda q: f"buffer_load_dwordx4 v[{gc+4*q}:{gc+4*q+3}], v{OFS+q}, s[8:11], 0 offen sc1"
    oa = lambda r: f"v_lshl_add_u64 v[{r}:{r+1}], v[{r}:{r+1}], 0, v[{LN16}:{LN16+1}]"
    e = {0:["s_waitcnt lgkmcnt(0)", oa(OFS)], 1:[ld(0)], 2:[oa(OFS+2)], 3:[ld(1)], 5:[ld(2)], 9:[ld(3)], 7:["s_sub_u32 s20, s20, 1"], 10:["s_lshr_b32 s41, s41, 1"] if salu else []}
    if u == 1: e[8] = [f"v_add_u32 v{LPT}, 128, v{LPT}"]
    o += weave(pk(gc,2)+pk(gc,3), e) + S(2)
    if u == 1: o += [f"v_mov_b64 v[{P}:{P+1}], v[24:25]", f"v_mov_b64 v[{P+2}:{P+3}], v[24:25]", f"v_mov_b64 v[{N}:{N+1}], v[24:25]", f"v_mov_b64 v[{N+2}:{N+3}], v[24:25]"]
    return o
def kern(tiles, salu, var=None):
    s = f"""
    s_load_dwordx2 s[4:5], s[0:1], 0
    s_load_dwordx2 s[8:9], s[0:1], 8
    s_load_dwordx2 s[16:17], s[0:1], 16
    v_lshrrev_b32 v1, 6, v0
    s_nop 1
    v_readfirstlane_b32 s3, v1
    v_and_b32 v1, 63, v0
    v_lshlrev_b32 v2, 6, v1
    s_waitcnt lgkmcnt(0)
    global_load_dwordx4 v[4:7], v2, s[16:17]
    global_load_dwordx4 v[8:11], v2, s[16:17] offset:16
    global_load_dwordx4 v[16:19], v2, s[16:17] offset:32
    global_load_dwordx4 v[30:33], v2, s[16:17] offset:48
    s_bfe_u32 s22, s2, 0x10002
    s_mul_i32 s22, s22, 2560000
    s_add_u32 s8, s8, s22
    s_addc_u32 s9, s9, 0
    s_mov_b32 s10, 2560000
    s_mov_b32 s11, 0x20000
    s_lshl_b32 s7, s2, 12
    v_add_u32 v3, s7, v0
    s_mov_b32 s21, 0x9E3779B1
    s_mov_b32 s24, 10000
    v_and_b32 v20, 63, v0
    v_lshlrev_b32 v20, 2, v20
    s_lshl_b32 s7, s3, 12
    v_add_u32 v20, s7, v20
"""
    for i in range(16):
        s += f"    v_mul_lo_u32 v3, v3, s21\n    v_add_u32 v3, 0x3c6ef35f, v3\n    v_mul_hi_u32 v21, v3, s24\n    v_lshlrev_b32 v21, 8, v21\n    ds_write_b32 v20, v21 offset:{256*i}\n"
    s += f"""
    v_mov_b32 v{IDX}, 0x8888
    v_and_b32 v2, 15, v1
    v_lshlrev_b32 v{LN16}, 4, v2
    v_lshlrev_b32 v{LN16+1}, 4, v2
    v_lshrrev_b32 v2, 4, v1
    s_lshl_b32 s7, s3, 12
    v_lshl_add_u32 v{LPT}, v2, 4, s7
    v_lshlrev_b32 v23, 3, v1
    v_add_u32 v23, 65536, v23
    v_mov_b32 v24, 1.0
    v_mov_b32 v25, 1.0
    s_mov_b32 s40, 0
    s_mov_b32 s41, 0
    s_mov_b32 s50, 0x33333333
    s_mov_b32 s51, 0x33333333
    s_mov_b32 s52, 0xcccccccc
    s_mov_b32 s53, 0xcccccccc
    v_lshlrev_b32 v26, 4, v1
    v_add_u32 v26, 66560, v26
    s_lshr_b32 s42, s3, 2
    s_setprio 3
    s_mov_b32 s20, {tiles}
""" + "".join(f"    v_mov_b32 v{r}, 0.5\n" for r in list(range(44,64)) + list(range(64,128))) + """
    s_waitcnt vmcnt(0)
    ds_write_b64 v23, v[32:33]
    ds_write_b128 v26, v[30:33]
    v_mov_b32 v60, 0
    v_mov_b32 v61, 0
    v_mov_b32 v62, 0
    v_mov_b32 v63, 0
    s_waitcnt lgkmcnt(0)
    s_barrier
    s_memrealtime s[64:65]
    s_memtime s[68:69]
    s_waitcnt lgkmcnt(0)
L_loop:
""" + "\n".join("    " + x for x in (var or (lambda l: l))(phase(0, salu) + phase(1, salu))) + """
    s_cmp_gt_i32 s20, 0
    s_cbranch_scc1 L_loop
L_x:
    s_waitcnt vmcnt(0)
    s_memrealtime s[66:67]
    s_memtime s[70:71]
    s_waitcnt lgkmcnt(0)
    s_lshl_b32 s20, s2, 4
    s_add_u32 s20, s20, s3
    s_lshl_b32 s20, s20, 4
    v_mov_b32 v3, s20
    v_mov_b32 v4, s64
    v_mov_b32 v5, s66
    v_mov_b32 v6, s68
    v_mov_b32 v7, s70
    global_store_dwordx4 v3, v[4:7], s[4:5]
    s_waitcnt vmcnt(0)
"""
    return s
if __name__ == "__main__":
    rng = np.random.default_rng(0)
    bf = lambda x: (np.float32(x).view(np.uint32) >> 16).astype(np.uint32)
    L = np.arange(64); m = L & 31; ha = L >> 5; s_ = m >> 3; q = m & 3; h = (m >> 2) & 1
    c = np.zeros((64,16), np.uint32)
    for l in range(64):
        one = 0x3f80 << (16*(s_[l]&1)); reg = 2*h[l] + (s_[l]>>1)
        if q[l] == ha[l]: c[l, reg] = one
        if q[l]-2 == ha[l]: c[l, 4+reg] = one
        if h[l] == ha[l]: c[l, 8+(s_[l]>>1)] = one
    r = lambda n, sc: bf(rng.normal(size=n)*sc) | (bf(rng.normal(size=n)*sc) << 16)
    for j in (10,11,12,13,14,15): c[:, j] = r(64, 0.15)
    c3 = c.copy()
    for j in range(8): c3[:, j] = np.where(((L>>4)&1) == (j>>2), r(64, 0.15), 0)
    c3[:, 8] = np.where((L&3) == 0, 0x3f80, np.where((L&3) == 1, 0x3f800000, 0)); c3[:, 9] = np.where((L&3) == 2, 0x3f80, np.where((L&3) == 3, 0x3f800000, 0))
    if ON_GPU:
        out = DeviceBuffer(1<<20); cb = DeviceBuffer.from_numpy(c); cb3 = DeviceBuffer.from_numpy(c3); tab = DeviceBuffer.from_numpy(r(1280000, 0.15)); big = DeviceBuffer(64<<20)
    drop = lambda *p: (lambda l: [x for x in l if not any(y in x for y in p)])
    def addmov(n): return lambda l: sum(([x] + ["v_mov_b32 v28, v27"]*n if "ds_read_b64" in x else [x] for x in l), [])
    def v3(l):
        o = []
        for x in l:
            if "32x32x8" in x:
                d = int(x.split("v[")[1].split(":")[0]); g = G + 16*(1 if d == D1 else 0); cur = (d, g)
                continue
            if "x4_4b" in x: continue
            if "smfmac" in x and f"v[{A1}:" in x:
                d, g = cur
                o += [f"s_waitcnt vmcnt(0)"] + [f"v_mfma_f32_4x4x4_16b_bf16 v[{d+4*q}:{d+4*q+3}], v[{ASEL}:{ASEL+1}], v[{g+4*q}:{g+4*q+1}], v[60:63]" for q in range(4)]
                continue
            if "smfmac" in x:
                d, g = cur
                o += [f"v_smfmac_f32_32x32x32_bf16 v[{d}:{d+15}], v[30:33], v[4:11], v{IDX}"] + [f"v_lshlrev_b64 v[{g+4*q}:{g+4*q+1}], 16, v[{g+4*q+2}:{g+4*q+3}]" for q in range(4)]
                continue
            o.append(x)
        return o
    def rot(l):
        return l + ["s_add_u32 s42, s42, 1", "s_cmp_eq_u32 s42, 3", "s_cselect_b32 s42, 0, s42", "s_setprio 0", "s_cmp_eq_u32 s42, 0", "s_cbranch_scc1 L_r", "s_setprio 1", "s_cmp_eq_u32 s42, 1", "s_cbranch_scc1 L_r", "s_setprio 2", "L_r:"]
    def lad(a_, b_, c_):
        return lambda l: l + ["s_setprio 0", f"s_cmp_le_u32 s20, {c_}", "s_cbranch_scc1 L_r", "s_setprio 1", f"s_cmp_le_u32 s20, {b_}", "s_cbranch_scc1 L_r", "s_setprio 2", f"s_cmp_le_u32 s20, {a_}", "s_cbranch_scc1 L_r", "s_setprio 3", "L_r:"]
    nl = drop("buffer_load")
    def o7(eterm, extra):
        def f(l):
            o = []; i = 0
            for x in l:
                if "32x32x8" in x:
                    d = int(x.split("v[")[1].split(":")[0]); g = G + 16*(1 if d == D1 else 0); pend = []
                    if eterm == "s": pend = []
                    if eterm == "d": pend = [f"v_mfma_f32_16x16x16_bf16 v[{d+4*q}:{d+4*q+3}], v[{A1+2*q}:{A1+2*q+1}], v[{CW}:{CW+1}], v[60:63]" for q in range(4)]; pend = sum(([p, None] for p in pend), [])
                    continue
                if "x4_4b" in x: continue
                if "smfmac" in x and f"v[{A1}:" in x:
                    c0 = lambda q: ("v[60:63]" if eterm == "s" else f"v[{d+4*q}:{d+4*q+3}]")
                    m = lambda q, p: f"v_mfma_f32_4x4x4_16b_bf16 v[{d+4*q}:{d+4*q+3}], v[{ASEL}:{ASEL+1}], v[{g+4*q+2*p}:{g+4*q+2*p+1}], " + (c0(q) if p == 0 else f"v[{d+4*q}:{d+4*q+3}]")
                    if eterm == "s": pend = [[m(0,0), m(1,0)], [m(0,1), m(1,1), "s_waitcnt vmcnt(0)"], [m(2,0), m(3,0)], [m(2,1), m(3,1)]]
                    else: pend = [m(0,0), m(1,0), m(0,1), m(1,1)]
                    continue
                if "smfmac" in x:
                    if eterm == "s": o.append(f"v_smfmac_f32_32x32x32_bf16 v[{d}:{d+15}], v[30:33], v[4:11], v{IDX}")
                    else: pend = [[m(2,0), m(3,0)], [m(2,1), m(3,1)]]
                    continue
                if "v_exp" in x and pend:
                    p = pend.pop(0)
                    if p: o += p if isinstance(p, list) else [p]
                o.append(x)
                if "ds_read_b64" in x: o += extra
            return o
        return f
    fl = lad(24,8,2)
    xs = ["v_mov_b32 v28, v27", "ds_read_b64 v[28:29], v23", "ds_read_b64 v[28:29], v23"]; xd = ["v_mov_b32 v28, v27", "ds_read_b128 v[40:43], v22", "ds_read_b128 v[40:43], v22"]
    def v3x(l):
        o = []
        for x in v3(l):
            o.append(x)
            if "ds_read_b64" in x: o += xs
        return o
    def v3b(l):
        o = []; pend = []
        for x in l:
            if "32x32x8" in x:
                d = int(x.split("v[")[1].split(":")[0]); g = G + 16*(1 if d == D1 else 0); continue
            if "x4_4b" in x: continue
            mx = lambda q: f"v_mfma_f32_4x4x4_16b_bf16 v[{d+4*q}:{d+4*q+3}], v[{ASEL}:{ASEL+1}], v[{g+4*q}:{g+4*q+1}], v[40:43]"
            shf = lambda q: f"v_lshlrev_b64 v[{g+4*q}:{g+4*q+1}], 16, v[{g+4*q+2}:{g+4*q+3}]"
            if "smfmac" in x and f"v[{A1}:" in x:
                pend = [[mx(0)], [mx(1)], ["s_waitcnt vmcnt(0)", mx(2)], [mx(3)]]; continue
            if "vmcnt(0)" in x: continue
            if "smfmac" in x:
                o += [shf(0), shf(1), shf(2), f"v_smfmac_f32_32x32x32_bf16 v[{d}:{d+15}], v[60:63], v[4:11], v{IDX}", shf(3)]; continue
            if "v_exp" in x and pend: o += pend.pop(0)
            if "ds_read_b64" in x:
                o += ["ds_read_b128 v[40:43], v26", "s_mov_b64 exec, s[50:51]", "ds_read_b64 v[60:61], v23", "s_mov_b64 exec, s[52:53]", "ds_read_b64 v[62:63], v23", "s_mov_b64 exec, -1"]; continue
            o.append(x)
        return o
    m5 = addmov(5)
    V = {"base": fl, "v3b": lambda l: fl(v3b(l)), "base+5": lambda l: fl(m5(l)), "v3b+5": lambda l: fl(v3b(m5(l))), "base+8": lambda l: fl(addmov(8)(l)), "v3b+8": lambda l: fl(v3b(addmov(8)(l))), "base2": fl}
    for name, var in V.items():
        waves, tiles, salu = 12, 56, 1
        co = build(kern(tiles, salu, var), "ml", 256, 64*waves, lds=100000, vgpr=128)
        if not ON_GPU: continue
        k = AsmKernel(co, "mb_kernel"); line = f"{name:10s}:"
        for it in range(4):
            sync(); _check(_hip.hipMemsetAsync(big._ptr, 1, (64<<20) if it == 3 else 1<<16, None))
            k.launch((256,1,1),(64*waves,1,1), pack_ptr_kernargs([out.ptr, tab.ptr, (cb3 if 'v3' in name else cb).ptr, out.ptr]), 100000); sync()
            o = out.to_numpy(np.uint32, (256,16,4)).astype(np.int64)[:, :waves]
            t = np.median(o[:,:,1].max(axis=1) - o[:,:,0].min(axis=1))/100; cy = np.median(((o[:,:,3]-o[:,:,2])&0xffffffff).max(axis=1))
            if it: line += f" | {t/(tiles*waves/4)*1000:.1f} ns/tile {cy/(tiles*waves/4):.0f} cyc"
        print(line, flush=True); k.unload()
```

```python
import sys, struct

OPT = dict(hb=1, pgs=0, al=0, sl=0, sigw=0, aue=0, mcl=2, b31=1, split=3, grp=0, allg=0, eag=1, stamps=0, force_safe=0, nogather=0, nosafe=0, prio=2, gsc1=1, osc=1, codepf=1, srcmask=0x3fff00, nrec=0, warm=0,
           nochain=0, probe=-1, pw=-1, pg=-1, gpf=32, early=0, cnt=0, pollmax=200000, pa=6, pb=3, pc=2, p0=3, p1=3, ptime=0,
           dist=2, ldearly=0, drop=0, wgate=0, gate=0, gate2=1, rst=0, rsc1=1, nover=0, p2gate=1, p2sleep=0, hold=0, slate=2, lpos=0, p1st=1, sig=2, gpace=4, gwin=-1, gp=0xf448c, ghold=0, nte=0, ewhen=1, wpf=1, gpe=40, oneb=0, tagl=0, p0e=0, aul=0, t0f=0, pre=0, prelate=0, ntx=0, rpace=-1, p2wait=0)
for a in sys.argv[2:]:
    k, v = a.split("=")
    assert k in OPT, k
    OPT[k] = int(v, 0)

out = []
def E(s=""):
    for line in s.split("\n"):
        line = line.strip()
        if not line:
            continue
        if line.endswith(":") or line.startswith(".") or line.startswith(";"):
            out.append(line)
        else:
            out.append("    " + line)

def f32(x):
    return "0x%08x" % struct.unpack("<I", struct.pack("<f", x))[0]

NAME = "standalone__edge_featured_mpnn_egc__graph_kernel"
LOG2E = 1.4426950408889634
NB = 80; NBUCK = 125; CHUNK = 1280; NCHUNK = 250
NW = 12
G_HALF = 10000 * 256
WS0 = 0
WS_REC = 0x500000
WS_ROW = 0x900000
WS_FL2 = 0x980000
WS_TAG = 0x9c0000
SORTB = CHUNK * 12 + 512
WS_STAMP = 0x1000000
L_CNT = 0; L_SOFF = 512
L_SCNT = 1024
L_CTR = 1536; L_RD = 1540; L_DONE2 = 1544; L_FLAG = 1548; L_NST = 1552; L_GST = 1556; L_GOK = 1560; L_AU = 1564; L_DYN = 1568
L_DUM = L_SOFF
L_LIST = 2048
L_LISTC = L_LIST + 4096
SSTR = 272
L_SRC = L_LIST + 8192
SRCB = 80 * SSTR + 32
L_EA = L_SRC + SRCB
L_EAEND = L_EA + 2 * SRCB
L_SORT = L_EA
L_WBV = (L_EAEND + 255) // 256 * 256; L_X = L_WBV + 32768; L_WAU = L_X + 20480; L_C = L_WAU + 32768
LDS = L_C + 1024
L_NODE = L_WBV; NSTR = 648
assert L_NODE + 80 * NSTR <= L_WAU and LDS <= 163840 and L_EA % 16 == 0
NULL_SRC = 0x7fffff00
POLL_MAX = OPT["pollmax"]
LDS_MAX = 20 * POLL_MAX
SC1 = " sc1"
NTE = " nt" if OPT["nte"] else ""
NTX = " nt" if OPT["ntx"] else ""

S_HALF, S_BUCK, S_P = 22, 23, 24
S_SAFE, S_TAG = 25, 26
S_R, S_M, S_IT = 70, 71, 72
S_TAGRAW = 47
ST0 = 74

def ESTAMP(i):
    if OPT["early"] == 1 or (OPT["early"] and i == 0): E(f"s_memrealtime s[{ST0+2*i}:{ST0+2*i+1}]")
def FSTAMP(i):
    if OPT["early"] == 2: E(f"s_memrealtime s[{ST0+2*i}:{ST0+2*i+1}]\ns_waitcnt lgkmcnt(0)")
def STAMP(i):
    if OPT["stamps"] == 2:
        if i == 0: E(f"s_memrealtime s[{ST0}:{ST0+1}]")
        if i == 13: E(f"s_memrealtime s[{ST0+26}:{ST0+27}]\ns_waitcnt lgkmcnt(0)")
        return
    if OPT["early"] and 1 <= i <= 7: return
    if OPT["early"] and i == 0: return ESTAMP(0)
    if OPT["stamps"] or (OPT["probe"] >= 0 and i == OPT["probe"]):
        E(f"s_memrealtime s[{ST0+2*i}:{ST0+2*i+1}]\ns_waitcnt lgkmcnt(0)")
    elif OPT["probe"] >= 0 and i == 0:
        E(f"s_memrealtime s[{ST0}:{ST0+1}]")
NSTAMP = 14
def STAMP_OUT():
    if OPT["stamps"]:
        E(f"""
        s_lshl_b32 s30, s2, 4
        s_add_u32 s30, s30, s3
        s_lshl_b32 s30, s30, 6
        s_add_u32 s30, s30, {WS_STAMP - 0x100000}
        s_load_dwordx2 s[20:21], s[0:1], 72
        s_waitcnt lgkmcnt(0)
        s_mov_b64 exec, -1
        v_mov_b32 v3, s30""")
        for i in (range(NSTAMP) if OPT["stamps"] == 1 else (0, 8, 13)):
            E(f"v_mov_b32 v2, s{ST0+2*i}\nglobal_store_dword v3, v2, s[20:21] offset:{4*i}")
        E("s_waitcnt vmcnt(0)")

A1, A2, IDX, EAC, LN16, ASEL, CW, LN8 = 4, 8, 12, 13, 14, 16, 18, 20
LP, WS4, WN2, EA, XA, WE, OFS, AG, T, N, P, F = 22, 24, 28, 30, 32, 34, 36, 40, 44, 52, 56, 60
D0, D1, G = 72, 88, 104

def finish_tag():
    E(f"""
    s_mul_i32 s{S_TAG+1}, s{S_TAGRAW}, 0x85ebca6b
    s_mul_i32 s{S_TAG}, s{S_TAGRAW}, 0x9e3779b1
    s_add_u32 s{S_TAG+1}, s{S_TAG+1}, 0x5bd1e995
    s_add_u32 s{S_TAG}, s{S_TAG}, 0x7f4a7c15
    """)
def get_tag(lab, q):
    E(f"""
    s_cmp_lg_u32 s{S_SAFE}, 0
    s_cbranch_scc1 L_tag_{lab}
    v_mov_b32 v2, 0
    s_mov_b32 s31, {LDS_MAX}
L_tg_{lab}:
    ds_read_b128 v[{q}:{q+3}], v2 offset:{L_SCNT + 124*4}
    s_sub_u32 s31, s31, 1
    s_cbranch_scc1 L_tag_{lab}
    s_waitcnt lgkmcnt(0)
    v_readfirstlane_b32 s30, v{q+3}
    v_readfirstlane_b32 s{S_TAGRAW}, v{q+1}
    s_cmp_lg_u32 s30, 4
    s_cbranch_scc1 L_tg_{lab}
    """)
    finish_tag()
    E(f"L_tag_{lab}:")

def lds_wait(addr, mask, val, tag, sleep=0, ne=False):
    E(f"""
    v_mov_b32 v2, 0
    s_mov_b32 s31, {LDS_MAX}
    {f"s_branch L_wf_{tag}" if sleep else ""}
L_w_{tag}:
    {f"s_sleep {sleep}" if sleep else ""}
L_wf_{tag}:
    ds_read_b32 v3, v2 offset:{addr}
    s_sub_u32 s31, s31, 1
    s_cbranch_scc1 L_wd_{tag}
    s_waitcnt lgkmcnt(0)
    v_readfirstlane_b32 s30, v3
    s_and_b32 s30, s30, {mask}
    s_cmp_lg_u32 s30, {val}
    s_cbranch_scc{0 if ne else 1} L_w_{tag}
L_wd_{tag}:
    """)
SCAN = ("row_shr:1 row_mask:0xf bank_mask:0xf bound_ctrl:0", "row_shr:2 row_mask:0xf bank_mask:0xf bound_ctrl:0",
        "row_shr:4 row_mask:0xf bank_mask:0xf bound_ctrl:0", "row_shr:8 row_mask:0xf bank_mask:0xf bound_ctrl:0",
        "row_bcast:15 row_mask:0xa bank_mask:0xf", "row_bcast:31 row_mask:0xc bank_mask:0xf")
def scan(r):
    for m in SCAN:
        E(f"s_nop 1\nv_add_u32_dpp v{r}, v{r}, v{r} {m}")

def main_consts(sm=48):
    E(f"""
    v_and_b32 v2, 15, v1                    ; n'
    v_lshrrev_b32 v3, 4, v1
    v_lshl_add_u32 v3, v2, 2, v3
    v_lshlrev_b32 v3, 1, v3
    v_add_u32 v3, {L_C}, v3
    ds_read_u16 v64, v3                     ; C[0..3][feature 4n'+s]
    ds_read_u16 v65, v3 offset:128
    ds_read_u16 v66, v3 offset:256
    ds_read_u16 v67, v3 offset:384
    v_and_b32 v63, 3, v1                    ; q
    v_lshlrev_b32 v{LN8}, 3, v2
    v_lshlrev_b32 v{LN8+1}, 3, v2
    v_lshlrev_b32 v{LN16}, 4, v2
    v_lshlrev_b32 v{LN16+1}, 4, v2
    v_mov_b32 v{IDX}, 0x8888
    v_bfe_u32 v60, v1, 3, 2                 ; s = (l&31)>>3
    v_bfe_u32 v61, v1, 2, 1                 ; h = (l>>2)&1
    v_lshrrev_b32 v62, 5, v1                ; ha
    v_and_b32 v2, 1, v60
    v_lshlrev_b32 v2, 4, v2
    v_lshlrev_b32 v2, v2, s46               ; 1.0 (bf16) in half s&1
    v_lshrrev_b32 v60, 1, v60               ; s>>1
    v_lshl_add_u32 v3, v61, 1, v60
    v_sub_u32 v63, v63, v62                 ; q - ha : 0 -> A1, 2 -> A2
    v_lshl_add_u32 v3, v63, 1, v3
    v_and_b32 v63, 1, v63
    v_lshl_or_b32 v3, v63, 4, v3
    v_xor_b32 v61, v61, v62
    v_lshl_or_b32 v60, v61, 4, v60
    """)
    mk = [f"s[{sm}:{sm+1}]", f"s[{sm+2}:{sm+3}]", f"s[{sm+4}:{sm+5}]", "vcc"]
    for i in range(8):
        E(f"v_cmp_eq_u32 {mk[i%4]}, {i}, v3")
        if i % 4 == 3:
            for j in range(i-3, i+1):
                E(f"v_cndmask_b32 v{A1+j}, 0, v2, {mk[j%4]}")
    E(f"""
    v_cmp_eq_u32 {mk[0]}, 0, v60
    v_cmp_eq_u32 {mk[1]}, 1, v60
    v_and_b32 v63, 3, v1
    v_lshlrev_b32 v61, 3, v63
    v_cndmask_b32 v{ASEL}, 0, v2, {mk[0]}
    v_cndmask_b32 v{ASEL+1}, 0, v2, {mk[1]}
    v_add_u32 v{EAC}, {L_EA - 2*L_SRC}, v61
    s_lshl_b32 s30, s3, 9
    s_sub_u32 s31, s30, 4096
    s_max_i32 s31, s31, 0
    s_add_u32 s30, s30, s31
    s_add_u32 s30, s30, {L_LIST}
    v_lshrrev_b32 v2, 4, v1
    v_lshl_add_u32 v{LP}, v2, 4, s30
    v_bfe_u32 v3, v1, 2, 2
    v_lshl_add_u32 v{LP+1}, v3, 4, s30
    v_lshl_add_u32 v{LP+1}, v2, 2, v{LP+1}
    s_lshl_b32 s30, s3, 2
    s_add_u32 s30, s30, 32
    v_add_u32 v2, s30, v2
    v_mul_u32_u24 v68, {NSTR}, v2
    v_add_u32 v68, v68, v{LN8}
    v_add_u32 v68, {L_NODE - 32*NSTR}, v68
    s_mul_i32 s30, s{S_BUCK}, {NB*256}
    s_lshl_b32 s31, s{S_HALF}, 7
    s_add_u32 s30, s30, s31
    v_lshl_add_u32 v69, v2, 8, v{LN8}
    v_add_u32 v69, s30, v69
    s_waitcnt lgkmcnt(0)
    v_lshlrev_b32 v60, 16, v64
    v_lshlrev_b32 v61, 16, v65
    v_lshlrev_b32 v62, 16, v66
    v_lshlrev_b32 v63, 16, v67
    v_mul_f32 v60, s40, v60
    v_mul_f32 v61, s40, v61
    v_mul_f32 v62, s40, v62
    v_mul_f32 v63, s40, v63
    v_cvt_pk_bf16_f32 v{CW}, v60, v61
    v_cvt_pk_bf16_f32 v{CW+1}, v62, v63
    """)

def gload(g, o):
    return f"buffer_load_dwordx4 v[{g}:{g+3}], v{o}, s[36:39], 0 offen" + (SC1 if OPT["gsc1"] else "")
def oadd(o):
    return f"v_lshl_add_u64 v[{o}:{o+1}], v[{o}:{o+1}], 0, v[{LN16}:{LN16+1}]"

def pk_steps(Gc, q, first):
    t = T + 4*(q & 1); h = Gc + 4*q
    if first and q == 0:
        return [f"v_pk_add_f32 v[{P+2*p}:{P+2*p+1}], v[{t+2*p}:{t+2*p+1}], 1.0 op_sel_hi:[1,0]" for p in range(2)]
    r = []
    for p in range(2):
        n = f"v[{Gc+2*p}:{Gc+2*p+1}]" if (first and q == 1) else f"v[{N+2*p}:{N+2*p+1}]"
        r.append(f"v_pk_fma_f32 v[{N+2*p}:{N+2*p+1}], {n}, v[{t+2*p}:{t+2*p+1}], {n}")
    for p in range(2):
        r.append(f"v_pk_fma_f32 v[{N+2*p}:{N+2*p+1}], v[{h+2*p}:{h+2*p+1}], v[{P+2*p}:{P+2*p+1}], v[{N+2*p}:{N+2*p+1}]")
    for p in range(2):
        r.append(f"v_pk_fma_f32 v[{P+2*p}:{P+2*p+1}], v[{P+2*p}:{P+2*p+1}], v[{t+2*p}:{t+2*p+1}], v[{P+2*p}:{P+2*p+1}]")
    return r
def exps(Dc, q):
    t = T + 4*(q & 1)
    return [f"v_exp_f32 v{t+s}, v{Dc+4*s+q}" for s in range(4)]
def weave(main, extra):
    for i, x in enumerate(main):
        E(x)
        for y in extra.get(i, []):
            E(y)
def m_a(Dn): return f"v_mfma_f32_32x32x8_bf16 v[{Dn}:{Dn+15}], v[{ASEL}:{ASEL+1}], v[{XA}:{XA+1}], 0"
def m_e(Dn, abid): return f"v_mfma_f32_16x16x4_4b_bf16 v[{Dn}:{Dn+15}], v[{EA}:{EA+1}], v[{CW}:{CW+1}], v[{Dn}:{Dn+15}] cbsz:2 abid:{abid}"
def m_s(Dn, A, g): return f"v_smfmac_f32_32x32x32_bf16 v[{Dn}:{Dn+15}], v[{A}:{A+3}], v[{g}:{g+7}], v{IDX}"

outofline = []
def emit_to(lst, fn):
    global out
    keep = out; out = []
    fn(); lst += out; out = keep
assert OPT["pa"] == 6 and OPT["prio"] == 2
DIST = OPT["dist"]; EARLY = OPT["ldearly"]
assert not (EARLY and DIST == 4)
def phase(u, loads):
    tag = f"{'L' if loads else 'T'}{u}"
    Dc, Dn = ((D0, D1), (D1, D0))[u & 1]
    gc = G + 16*u; gn = G + 16*((u+1) & 3); gl = G + 16*((u+DIST) & 3)
    ld = loads and not OPT["nogather"]
    kw = (u + DIST + EARLY) & 3
    wsgrp = 128 * ((3 - kw + u + DIST + EARLY) // 4 + 1) if kw == 3 else None
    def addloads(ex, pos):
        if loads:
            ex.setdefault(0, []).append(oadd(OFS)); ex.setdefault(2, []).append(oadd(OFS+2))
        if ld:
            for q in range(4): ex.setdefault(pos[q], []).append(gload(gl+4*q, OFS+q))
    E(f"L_{tag}:")
    SL = OPT["slate"]
    if not SL: E(f"s_waitcnt vmcnt({4*(DIST-2)})")
    E(m_a(Dn))
    for x in exps(Dc, 0): E(x)
    E(m_e(Dn, (u+1) & 3) if SL else m_s(Dn, A1, gn))
    for x in exps(Dc, 1): E(x)
    ex = {0: ["s_waitcnt lgkmcnt(0)"], 2: [f"ds_read_b64 v[{XA}:{XA+1}], v{AG + ((u+2) & 3)} offset:512"]}
    if u % 2 == 0:
        p = AG + ((u+2) & 3)
        ex[0].append(f"v_lshl_add_u64 v[{p}:{p+1}], v[{WN2}:{WN2+1}], 0, v[{LN8}:{LN8+1}]")
    if EARLY: addloads(ex, (1, 3, 5, 6))
    elif loads: ex[1] = [f"ds_read_b128 v[{OFS}:{OFS+3}], v{WS4+kw}"]
    if u == 2:
        ex.setdefault(4, []).append(f"v_lshl_add_u32 v{WE}, v{WE}, 1, v{EAC}")
        if SL: ex.setdefault(7, []).append(f"ds_read_b64 v[{EA}:{EA+1}], v{WE}")
    E(f"s_bitcmp1_b32 s{S_M}, 0\ns_cbranch_scc1 L_{tag}f")
    weave(pk_steps(gc, 0, False) + pk_steps(gc, 1, False), ex)
    E(f"L_{tag}r:")
    def first():
        E(f"L_{tag}f:")
        weave(pk_steps(gc, 0, True) + pk_steps(gc, 1, True), ex)
        E(f"s_branch L_{tag}r")
    emit_to(outofline, first)
    if SL:
        if OPT["ptime"]: E(f"s_memrealtime s[28:29]\ns_mov_b32 m0, s{S_R}")
        E(f"s_waitcnt vmcnt({4*(DIST-2) + (4 if (EARLY and loads) else 0) + (2 if SL == 2 else 0)})")
        E(m_s(Dn, A1, gn))
    else:
        E(m_e(Dn, (u+1) & 3))
    for x in exps(Dc, 2): E(x)
    if SL == 2: E(f"s_waitcnt vmcnt({4*(DIST-2) + (4 if (EARLY and loads) else 0)})")
    if OPT["ptime"]: E(f"s_memrealtime s[30:31]")
    E(m_s(Dn, A2, gn+8))
    for x in exps(Dc, 3): E(x)
    ex = {0: ["s_waitcnt lgkmcnt(0)"], 4: [], 6: [], 7: [f"s_sub_u32 s{S_R}, s{S_R}, 1"], 10: [f"s_lshr_b32 s{S_M}, s{S_M}, 1"], 11: [f"s_bitcmp1_b32 s{S_M}, 0"]}
    if OPT["ptime"]: ex[0] += ["v_writelane_b32 v70, s28, m0", "v_writelane_b32 v71, s30, m0"]
    if not EARLY: addloads(ex, (1, 3, 5, 9) if DIST == 4 else ((1, 3, 5, 7), (1, 2, 3, 4), (4, 6, 8, 10), (2, 5, 8, 10))[OPT['lpos']])
    elif loads: ex[1] = [f"ds_read_b128 v[{OFS}:{OFS+3}], v{WS4+kw}"]
    if u == 1:
        ex[4].append(f"ds_read_b64 v[{WN2}:{WN2+1}], v{LP} offset:{128+64}")
        ex[6].append(f"ds_read_b32 v{WE}, v{LP+1} offset:128")
    if u == 2 and not SL:
        ex[4].append(f"ds_read_b64 v[{EA}:{EA+1}], v{WE}")
    if u == 3:
        ex[4].append(f"ds_read_b64 v[{WN2}:{WN2+1}], v{LP} offset:{128+64+8}")
        ex.setdefault(8, []).append(f"v_lshl_add_u64 v[{LP}:{LP+1}], v[{LP}:{LP+1}], 0, s[44:45]")
    if wsgrp and loads: ex[6].append(f"ds_read_b128 v[{WS4}:{WS4+3}], v{LP} offset:{wsgrp}")
    weave(pk_steps(gc, 2, False) + pk_steps(gc, 3, False), ex)
    E(f"s_cbranch_scc1 L_{tag}z\nL_{tag}y:")
    def fin():
        E(f"""
L_{tag}z:
        v_rcp_f32 v{P}, v{P}
        v_rcp_f32 v{P+1}, v{P+1}
        v_rcp_f32 v{P+2}, v{P+2}
        v_rcp_f32 v{P+3}, v{P+3}
        v_pk_mul_f32 v[{N}:{N+1}], v[{N}:{N+1}], v[{P}:{P+1}]
        v_pk_mul_f32 v[{N+2}:{N+3}], v[{N+2}:{N+3}], v[{P+2}:{P+3}]
        """)
        for s_ in range(4):
            E(f"v_cvt_f64_f32 v[{F+2*s_}:{F+2*s_+1}], v{N+s_}")
            if s_: E(f"ds_add_f64 v{AG+u}, v[{F+2*s_-2}:{F+2*s_-1}] offset:{128*(s_-1)}")
        E(f"ds_add_f64 v{AG+u}, v[{F+6}:{F+7}] offset:384")
        E(f"s_branch L_{tag}y")
    emit_to(outofline, fin)
    if OPT["prio"] == 2:
        E(f"s_bitcmp1_b32 s{S_IT}, s{S_R}\ns_cbranch_scc1 L_{tag}q\nL_{tag}p:")
        def pr():
            E(f"""
L_{tag}q:
            s_setprio 0
            s_cmp_le_u32 s{S_R}, {OPT["pc"]}
            s_cbranch_scc1 L_{tag}p
            s_setprio 1
            s_cmp_le_u32 s{S_R}, {OPT["pb"]}
            s_cbranch_scc1 L_{tag}p
            s_setprio 2
            s_mov_b64 exec, 1
            ds_add_u32 v2, v3 offset:{L_DYN}
            s_mov_b64 exec, -1
            s_branch L_{tag}p
            """)
        emit_to(outofline, pr)
    if u == 3 and OPT["prio"] == 1:
        E(f"""
        s_add_u32 s{S_IT}, s{S_IT}, 1
        s_setprio 0
        s_cmp_gt_u32 s{S_IT}, 2
        s_cbranch_scc1 L_{tag}p
        s_setprio 1
        s_cmp_eq_u32 s{S_IT}, 2
        s_cbranch_scc1 L_{tag}p
        s_setprio 2
L_{tag}p:
        """)
    if loads:
        E(f"s_cmp_le_u32 s{S_R}, {DIST}")
        if u < 3: E(f"s_cbranch_scc1 L_T{u+1}")
        else: E("s_cbranch_scc0 L_L0")
    else:
        E(f"s_waitcnt vmcnt(0)\ns_cmp_eq_u32 s{S_R}, 0")
        if u < 3: E("s_cbranch_scc1 L_mdone")
        else: E("s_cbranch_scc0 L_T0")

E(f"""
; Edge-gated message passing in one launch, one workgroup per (bucket of 80 nodes, half of the features).
;  sum_i h_i / (1 + t_i), t = exp(-z), is carried as a fraction N / P along a node's edges (exact algebra); if that
; @launch grid=(256,1,1) block=({64*NW},1,1) lds={LDS}
.amdgcn_target "amdgcn-amd-amdhsa--gfx950"
.text
.globl {NAME}
.p2align 8
.type {NAME},@function
{NAME}:
""")
if OPT["stamps"] == 1 and OPT["early"] != 1:
    for i in range(NSTAMP): E(f"s_mov_b64 s[{ST0+2*i}:{ST0+2*i+1}], 0")
STAMP(0)
E(f"""
    s_load_dwordx16 s[4:19], s[0:1], 0
    s_load_dwordx2 s[20:21], s[0:1], 72
""")
if OPT["codepf"]:
    E(f"""
    s_getpc_b64 s[28:29]
L_pc:
    v_lshlrev_b32 v3, 7, v0
    v_cmp_gt_u32 vcc, L_codeend-L_pc-64, v3
    s_cbranch_vccz L_nopf
    s_mov_b64 exec, vcc
    global_load_dword v164, v3, s[28:29]
    s_mov_b64 exec, -1
L_nopf:
    """)
E(f"""
    v_lshrrev_b32 v2, 6, v0
    v_and_b32 v1, 63, v0
    v_readfirstlane_b32 s3, v2
    {"s_bfe_u32 s%d, s2, 0x10002" % S_HALF if OPT["hb"] else "s_and_b32 s%d, s2, 1" % S_HALF}
    {"s_and_b32 s30, s2, 3" if OPT["hb"] else "s_bfe_u32 s30, s2, 0x20001"}
    {"s_mul_i32 s30, s30, 31" if OPT["b31"] else "s_lshl_b32 s30, s30, 5"}
    s_lshr_b32 s31, s2, 3
    s_add_u32 s{S_BUCK}, s30, s31
    {"s_cmp_eq_u32 s30, 93                    ; 31 buckets per XCD of a half, 32 on the last" if OPT["b31"] else "s_cmp_ge_u32 s2, 256"}
    {"s_subb_u32 s31, s31, 0" if OPT["b31"] else "s_cbranch_scc1 L_end"}
    {"s_cmp_ge_i32 s31, 31" if OPT["b31"] else "s_cmp_ge_u32 s%d, %d" % (S_BUCK, NBUCK)}
    s_cbranch_scc1 L_end
    s_lshl_b32 s{S_P}, s{S_BUCK}, 1
    s_add_u32 s{S_P}, s{S_P}, s{S_HALF}
    s_mov_b32 s{S_SAFE}, 0
L_restart:
    s_cmp_ge_u32 s3, 4
    s_cbranch_scc1 L_nosort
    v_mov_b32 v48, 0
    v_mov_b32 v49, 0
    v_mov_b32 v50, 0
    v_mov_b32 v51, 0
    v_lshlrev_b32 v10, 4, v1
    ds_write_b128 v10, v[48:51] offset:{L_SCNT}
    s_mul_i32 s30, s{S_P}, {CHUNK*4}
    v_lshl_add_u32 v3, v0, 4, s30
    s_add_u32 s30, s30, 4096
    v_lshl_add_u32 v18, v0, 2, s30
    v_lshlrev_b32 v10, 1, v3
    v_lshlrev_b32 v11, 1, v18
    v_mov_b32 v17, {WS_TAG}
    s_waitcnt lgkmcnt(0)
    global_load_dwordx4 v[4:7], v3, s[10:11]{NTE}
    global_load_dword v8, v18, s[10:11]{NTE}
    global_load_dword v43, v17, s[20:21]
""")
def preclear():
    E(f"""
    s_cmp_lg_u32 s{S_SAFE}, 0
    s_cbranch_scc1 L_nopre
    s_mul_i32 s30, s{S_HALF}, {G_HALF}
    s_mul_i32 s31, s{S_BUCK}, {NB*256}
    s_add_u32 s30, s30, s31
    s_add_u32 s30, s30, {4096*(5-OPT["pre"])}
    v_lshl_add_u32 v19, v0, 4, s30
    """)
    for i in range(OPT["pre"]):
        E("global_store_dwordx4 v19, v[48:51], s[20:21] sc1")
        if i + 1 < OPT["pre"]: E("v_add_u32 v19, 4096, v19")
    E("L_nopre:")
if OPT["pre"] and not OPT["prelate"]: preclear()
E(f"""
    {"" if OPT["oneb"] else "s_barrier"}
""")
if OPT["ewhen"] == 0: E(f"""
    global_load_dwordx4 v[12:15], v3, s[8:9]{NTE}
    global_load_dword v16, v18, s[8:9]{NTE}
    global_load_dwordx4 v[52:55], v10, s[6:7]{NTE}
    global_load_dwordx4 v[56:59], v10, s[6:7] offset:16{NTE}
    global_load_dwordx2 v[60:61], v11, s[6:7]{NTE}
""")
E("s_barrier                               ; B0b")
if OPT["ewhen"] == 7: E(f"""
    global_load_dwordx4 v[12:15], v3, s[8:9]{NTE}
    global_load_dword v16, v18, s[8:9]{NTE}
    global_load_dwordx4 v[52:55], v10, s[6:7]{NTE}
    global_load_dwordx4 v[56:59], v10, s[6:7] offset:16{NTE}
    global_load_dwordx2 v[60:61], v11, s[6:7]{NTE}
""")
if OPT["pre"] and OPT["prelate"]: preclear()
E(f"""
    s_branch L_sort
L_nosort:
    s_and_b32 s32, s3, 3                    ; tau
    s_lshr_b32 s33, s3, 3
    v_lshrrev_b32 v2, 4, v1                 ; g
    v_and_b32 v4, 15, v1
    s_lshl_b32 s30, s32, 2
    v_add_u32 v6, s30, v2                   ; row&15
    v_xor_b32 v7, v4, v6
    v_lshlrev_b32 v7, 4, v7
    v_lshl_add_u32 v7, v6, 8, v7
    s_mul_i32 s73, s{S_BUCK}, {NB*256}
    s_mul_i32 s31, s33, {3*4096}
    s_add_u32 s30, s73, s31
    v_add_u32 v7, s30, v7
    v_add_u32 v8, 0x1000, v7
    v_add_u32 v9, 0x2000, v7
    s_lshl_b32 s30, s32, 10
    s_add_u32 s31, s31, s30
    s_add_u32 m0, s31, {L_X}
    v_subrev_u32 v30, 256, v0               ; t = 0..511
    v_lshlrev_b32 v31, 4, v30
    v_mov_b32 v36, 0
    v_mov_b32 v37, 0
    v_mov_b32 v38, 0
    v_mov_b32 v39, 0
    v_add_u32 v40, {L_EA}, v31
    ds_write_b128 v40, v[36:39]
    ds_write_b128 v40, v[36:39] offset:8192
""")
if OPT["wpf"]:
    E(f"""
    s_lshr_b32 s30, s2, 3
    s_lshl_b32 s30, s30, 2
    v_add_u32 v3, s30, v1
    v_and_b32 v3, 127, v3
    s_lshl_b32 s30, s{S_HALF}, 7
    s_cmp_eq_u32 s3, 4
    s_cselect_b32 s31, 0x8000, 0
    s_add_u32 s30, s30, s31
    v_lshl_add_u32 v3, v3, 8, s30
    s_waitcnt lgkmcnt(0)
    s_cmp_lg_u32 s33, 0
    s_cbranch_scc1 L_nowpf
    s_cmp_eq_u32 s3, 5
    s_cselect_b32 s34, s14, s16
    s_cselect_b32 s35, s15, s17
    s_cmp_eq_u32 s3, 7
    s_cselect_b32 s34, s12, s34
    s_cselect_b32 s35, s13, s35
    s_mov_b64 exec, 0xffff
    global_load_dword v167, v3, s[34:35]
    s_mov_b64 exec, -1
L_nowpf:
    """)
    if OPT["wpf"] == 2:
        E(f"""
        s_cmp_lg_u32 s3, 8
        s_cbranch_scc1 L_notch
        s_mul_i32 s30, s{S_P}, {CHUNK*4}
        v_mov_b32 v3, s30
        v_lshlrev_b32 v5, 1, v3
        v_lshlrev_b32 v6, 21, v1
        s_mov_b64 exec, 1
        global_load_dword v167, v3, s[8:9]
        global_load_dword v166, v5, s[6:7]
        s_mov_b64 exec, 31
        global_load_dword v165, v6, s[20:21] sc1
        s_mov_b64 exec, 3
        global_load_dword v164, v6, s[18:19] sc1
        s_mov_b64 exec, -1
L_notch:
        """)
E(f"""
    s_waitcnt lgkmcnt(0)
    {"" if OPT["oneb"] else "s_barrier"}
""")
if not OPT["t0f"]: E(f"""
    global_load_lds_dwordx4 v7, s[4:5]{NTX}
    s_add_u32 m0, m0, 0x1000
    s_cmp_lg_u32 s33, 0
    global_load_lds_dwordx4 v8, s[4:5]{NTX}
    s_cbranch_scc1 L_x2
    s_add_u32 m0, m0, 0x1000
    s_nop 0
    global_load_lds_dwordx4 v9, s[4:5]{NTX}
L_x2:
    s_barrier
""")
else: E(f"""
    s_mov_b32 s29, m0
    s_cmp_lg_u32 s33, 0
    s_cbranch_scc1 L_x2
    global_load_lds_dwordx4 v7, s[4:5]
    s_add_u32 s29, s29, 0x1000
    v_mov_b32 v7, v8
    v_mov_b32 v8, v9
L_x2:
""")
E(f"""
    v_lshrrev_b32 v5, 3, v1
    v_and_b32 v3, 1, v2
    s_and_b32 s30, s3, 1
    s_lshl_b32 s30, s30, 1
    v_or_b32 v3, s30, v3                    ; sigma
    v_lshlrev_b32 v3, 1, v3
    v_and_b32 v20, 7, v1
    v_xor_b32 v3, v3, v20
    v_lshlrev_b32 v3, 4, v3
    v_lshl_add_u32 v10, v5, 8, v3
    s_sub_u32 s28, s3, 4
    s_lshl_b32 s30, s28, 11
    s_lshl_b32 s31, s{S_HALF}, 7
    s_add_u32 s30, s30, s31
    v_add_u32 v10, s30, v10
    v_add_u32 v11, 0x4000, v10
    s_lshl_b32 s28, s28, 10
    s_add_u32 s34, s16, {128*256}
    s_addc_u32 s35, s17, 0
    s_cmp_lg_u32 s3, 11
    s_cbranch_scc1 L_noc
    v_and_b32 v5, 3, v5
    v_lshlrev_b32 v20, 4, v20
    v_lshl_add_u32 v5, v5, 8, v20
    s_add_u32 s31, s31, {256*256}
    s_mov_b32 m0, {L_C}
    v_add_u32 v5, s31, v5
    global_load_lds_dwordx4 v5, s[16:17]
L_noc:
    s_add_u32 m0, s28, {L_WBV}
""")
for ti, base in enumerate((34, 14)):
    for n in range(2):
        E(f"s_nop 0\nglobal_load_lds_dwordx4 v{10+n}, s[{base}:{base+1}]")
        if not (ti == 1 and n == 1):
            E(f"s_add_u32 m0, m0, 0x2000")
def stage_au():
    E(f"""
    v_lshrrev_b32 v5, 3, v1
    v_bfe_u32 v3, v1, 4, 1
    v_lshlrev_b32 v3, 1, v3
    v_and_b32 v20, 7, v1
    v_xor_b32 v3, v3, v20
    v_lshlrev_b32 v3, 4, v3
    v_lshl_add_u32 v6, v5, 8, v3
    s_lshl_b32 s30, s{S_HALF}, 7
    s_and_b32 s31, s3, 1
    s_lshl_b32 s31, s31, 14
    s_add_u32 s30, s30, s31
    v_add_u32 v6, s30, v6
    v_xor_b32 v7, 64, v6
    v_add_u32 v8, 2048, v6
    v_add_u32 v9, 3072, v7
    v_add_u32 v7, 1024, v7
    s_lshl_b32 s30, s32, 13
    s_add_u32 m0, s30, {L_WAU}
    s_cmp_lt_u32 s32, 2
    s_cselect_b32 s34, s16, s12
    s_cselect_b32 s35, s17, s13
    global_load_lds_dwordx4 v6, s[34:35]
    global_load_lds_dwordx4 v7, s[34:35] offset:1024
    global_load_lds_dwordx4 v8, s[34:35] offset:2048
    global_load_lds_dwordx4 v9, s[34:35] offset:3072
    s_add_u32 m0, m0, 4096
    s_add_u32 s34, s34, 8192
    s_addc_u32 s35, s35, 0
    global_load_lds_dwordx4 v6, s[34:35]
    global_load_lds_dwordx4 v7, s[34:35] offset:1024
    global_load_lds_dwordx4 v8, s[34:35] offset:2048
    global_load_lds_dwordx4 v9, s[34:35] offset:3072
""")
if OPT["aue"] == 1:
    E("s_cmp_eq_u32 s33, 0\ns_cbranch_scc1 L_noau"); stage_au(); E("L_noau:")
if OPT["t0f"]:
    E(f"""
    s_mov_b32 m0, s29
    s_barrier                               ; B0b
    global_load_lds_dwordx4 v7, s[4:5]
    s_add_u32 m0, m0, 0x1000
    s_nop 0
    global_load_lds_dwordx4 v8, s[4:5]
    """)
if OPT["wgate"] or OPT["ewhen"] in (5, 6):
    E(f"""
    v_mov_b32 v7, 0x1000000
    s_mov_b64 exec, 1
    ds_add_u32 v36, v7 offset:{L_CTR}
    s_mov_b64 exec, -1
    """)
STAMP(1)
E(f"""
    v_mov_b32 v32, {NULL_SRC}
    v_mov_b32 v33, v32
    v_mov_b32 v34, v32
    v_mov_b32 v35, v32
""")
def cover(lo, n): return list(range(lo, n - 8192, 8192)) + [n - 8192]
for o in cover(16384, L_EAEND - L_EA): E(f"ds_write_b128 v40, v[36:39] offset:{o}")
for o in cover(0, SRCB): E(f"ds_write_b128 v31, v[32:35] offset:{L_SRC + o}")
E(f"""
    v_and_b32 v32, 3, v30           ; quarter
    v_bfe_u32 v33, v30, 3, 3
    v_lshrrev_b32 v34, 5, v30
    s_and_b32 s30, s3, 3
    s_add_u32 s30, s30, 16
    s_cmp_ge_u32 s3, 8
    s_cselect_b32 s31, 7, 3
    s_cselect_b32 s29, 0, 6
    s_cselect_b64 vcc, -1, 0
    v_and_b32 v33, s31, v33
    v_mov_b32 v35, s30
    v_cndmask_b32 v34, v34, v35, vcc
    v_lshl_add_u32 v32, v34, 2, v32
    v_bfe_u32 v34, v30, 2, 1
    v_mul_u32_u24 v35, {NSTR - SSTR}, v34
    v_mul_u32_u24 v41, {L_NODE - L_SRC}, v34
    v_mul_u32_u24 v42, {L_SRC + 80*SSTR - L_DUM}, v34
    v_lshlrev_b32 v43, 4, v34
    v_add_u32 v35, {SSTR}, v35
    v_add_u32 v41, {L_SRC}, v41
    v_sub_u32 v42, {L_SRC + 80*SSTR}, v42
    v_sub_u32 v43, 16, v43
    v_lshlrev_b32 v33, 2, v33
    v_mad_u32_u24 v41, v32, v35, v41
    v_mad_u32_u24 v41, v33, v43, v41
    v_lshlrev_b32 v35, 5, v35
    v_lshlrev_b32 v34, 3, v43
    v_sub_u32 v35, v35, v34
    v_cmp_gt_u32 s[48:49], 8, v33
    v_and_b32 v33, 7, v33
    v_add_u32 v34, 2, v33
    v_cmp_gt_u32 s[52:53], s29, v33
    v_cmp_gt_u32 s[54:55], s29, v34
    v_cndmask_b32 v44, v35, 0, s[48:49]
    v_cndmask_b32 v46, v35, 0, s[48:49]
    v_add_u32 v44, v41, v44
    v_lshl_add_u32 v46, v43, 1, v46
    v_add_u32 v46, v41, v46
    v_add_u32 v45, v44, v43
    v_add_u32 v47, v46, v43
    v_cndmask_b32 v44, v42, v44, s[52:53]
    v_cndmask_b32 v45, v42, v45, s[52:53]
    v_cndmask_b32 v46, v42, v46, s[54:55]
    v_cndmask_b32 v47, v42, v47, s[54:55]
    ds_write_b128 v31, v[44:47] offset:{L_LIST}
    s_cmp_ge_u32 s3, 6
    s_cbranch_scc1 L_pf3
    v_mul_u32_u24 v42, {SSTR}, v30
    v_add_u32 v42, {L_SRC}, v42
    v_lshlrev_b32 v41, 2, v30
    ds_write_b32 v41, v42 offset:{L_CNT}
L_pf3:
    v_bfe_u32 v3, v1, 2, 2                  ; r
    v_lshl_add_u32 v5, v2, 3, v3            ; 8g + r
    v_lshrrev_b32 v3, 1, v3
    v_and_b32 v6, 1, v2
    v_lshl_or_b32 v3, v6, 1, v3             ; sigma
    v_xor_b32 v3, s32, v3
    v_lshlrev_b32 v3, 5, v3
    v_lshl_add_u32 v10, v5, 7, v3
    v_and_b32 v3, 3, v1
    v_lshl_add_u32 v10, v3, 3, v10
    s_mul_i32 s31, s33, {L_WAU - L_WBV}
    s_add_u32 s31, s31, {L_WBV}
    v_add_u32 v10, s31, v10
    v_xor_b32 v3, v2, v4
    v_lshlrev_b32 v3, 4, v3
    v_lshl_add_u32 v12, v4, 8, v3
    v_add_u32 v12, {L_X}, v12
    v_xor_b32 v13, 64, v12
    v_xor_b32 v14, 0x80, v12
    v_xor_b32 v15, 0xc0, v12
    s_mul_i32 s30, s{S_HALF}, {G_HALF}
    s_add_u32 s30, s30, s73
    s_lshl_b32 s31, s32, 6
    s_add_u32 s30, s30, s31
    v_lshlrev_b32 v11, 10, v2
    v_lshl_add_u32 v11, v4, 2, v11
    v_add_u32 v11, s30, v11
    s_lshl_b32 s31, s32, 5
    s_add_u32 s31, s31, {L_NODE}
    v_mul_u32_u24 v16, {NSTR}, v4
    v_lshl_add_u32 v16, v2, 3, v16
    v_add_u32 v16, s31, v16
    s_mov_b32 s40, {f32(-LOG2E)}
    s_mov_b32 s42, {f32(2.0**32)}
    s_mov_b32 s44, 0x07060100
    s_mov_b32 s45, 0x07060302
    s_mov_b32 s46, 0x3f80
    v_mov_b32 v17, {f32(2.0**-100)}
    v_mov_b32 v19, 1
    v_mov_b32 v18, 0
""")
def staged():
    if not OPT["tagl"]: get_tag("g", 160)
    if OPT["aue"] == 2:
        E("s_cmp_eq_u32 s33, 0\ns_cbranch_scc1 L_noau"); stage_au(); E("L_noau:")
    if OPT["aue"]: E("s_waitcnt vmcnt(8)\ns_cmp_lg_u32 s33, 0\ns_cbranch_scc1 L_stg")
    E(f"""
    s_waitcnt vmcnt(0)
L_stg:
    s_mov_b64 exec, 1
    ds_add_u32 v18, v19 offset:{L_CTR}
    s_mov_b64 exec, -1
    """)
    STAMP(2)
    lds_wait(L_CTR, 0xff, 8, "g1", sleep=(OPT["sl"] >> 1) & 1)
if OPT["t0f"]:
    E(f"""
    s_waitcnt vmcnt(2)
    s_mov_b64 exec, 1
    ds_add_u32 v18, v19 offset:{L_AU}
    s_mov_b64 exec, -1
    s_or_b32 s30, s33, s{S_SAFE}
    s_cbranch_scc0 L_t0
    """)
staged()
STAMP(3)
NP = 8
RA = 72; RB = RA + 4*NP; RAD = RB + 4*NP
J3N, J12, J3N2, CELL, ROWA, FOUR, L0M, ACC, ENT, CAD = 156, 157, 158, 159, 160, 161, 162, 163, 164, 166
def rec_setup():
    E(f"""
    v_and_b32 v3, 15, v1                    ; j
    v_lshrrev_b32 v2, 4, v1
    v_lshl_add_u32 v{CELL}, v2, 3, v3
    s_lshl_b32 s30, s29, 5
    v_add_u32 v{CELL}, s30, v{CELL}
    s_lshl_b32 s30, s{S_BUCK}, 3
    s_add_u32 s30, s30, {WS_ROW}
    v_lshl_add_u32 v{ROWA}, v{CELL}, 10, s30
    v_cmp_gt_u32 s[66:67], {NP}, v3
    v_cmp_gt_u32 vcc, {NCHUNK}, v{CELL}
    v_mov_b32 v{ENT}, 0
    s_and_b64 s[66:67], s[66:67], vcc
    s_mov_b64 exec, s[66:67]
    global_load_dwordx2 v[{ENT}:{ENT+1}], v{ROWA}, s[20:21] sc1
    s_mov_b64 exec, -1
    v_mul_u32_u24 v{CELL}, {SORTB//4}, v{CELL}
    v_add_u32 v{CELL}, {WS_REC//4}, v{CELL}
    v_mul_u32_u24 v{J12}, 12, v3
    v_mul_u32_u24 v{J3N}, 3, v3
    v_not_b32 v{J3N}, v{J3N}
    v_subrev_u32 v{J3N2}, 48, v{J3N}
    v_subrev_u32 v{L0M}, 1, v3
    v_ashrrev_i32 v{L0M}, 31, v{L0M}            ; all ones in the first lane of each row
    v_mov_b32 v{FOUR}, 4
    """)
WF = 20; XF = 52; AC = 132
def wreads(ks):
    for t in range(2):
        for rd in range(2):
            r = WF + 16*t + 4*ks + 2*rd
            E(f"ds_read_b64_tr_b16 v[{r}:{r+1}], v10 offset:{t*16384 + ks*4096 + rd*512}")
def xread(rt, ks):
    r = XF + 16*rt + 4*ks
    return f"ds_read_b128 v[{r}:{r+3}], v{12+ks} offset:{rt*4096}"
def mf(rt, ks, transposed):
    for t in range(2):
        a = XF + 16*rt + 4*ks; w = WF + 16*t + 4*ks; d = AC + 8*(rt % 3) + 4*t
        c = "0" if ks == 0 else f"v[{d}:{d+3}]"
        if transposed: a, w = w, a
        E(f"v_mfma_f32_16x16x32_bf16 v[{d}:{d+3}], v[{a}:{a+3}], v[{w}:{w+3}], {c}")
def gemm(transposed, finish, before_first):
    for ks in range(3):
        E(xread(0, ks)); wreads(ks)
    E("s_waitcnt lgkmcnt(10)"); mf(0, 0, transposed)
    E(xread(0, 3)); wreads(3)
    E("s_waitcnt lgkmcnt(10)"); mf(0, 1, transposed)
    for ks in range(4): E(xread(1, ks))
    E("s_waitcnt lgkmcnt(9)"); mf(0, 2, transposed)
    for ks in range(4): E(xread(2, ks))
    E("s_waitcnt lgkmcnt(8)"); mf(0, 3, transposed)
    for ks in range(4): E(xread(3, ks))
    if OPT["p0e"]:
        E("s_nop 3"); finish(0)
    E("s_waitcnt lgkmcnt(8)")
    for ks in range(4):
        mf(1, ks, transposed); E(xread(4, ks))
    E(f"""
    s_mov_b64 exec, 1
    ds_add_u32 v18, v19 offset:{L_RD}
    s_mov_b64 exec, -1
    """)
    before_first()
    if not OPT["p0e"]: finish(0)
    E("s_waitcnt lgkmcnt(0)")
    for rt in range(2, 5):
        for ks in range(4): mf(rt, ks, transposed)
        finish(rt-1)
    finish(4)
def pack(rt):
    b = AC + 8*(rt % 3); h = b + 4
    for r in range(4): E(f"v_mul_f32 v{b+r}, s40, v{b+r}")
    for r in range(4): E(f"v_fma_f32 v{h+r}, v{h+r}, s42, v17")
    E(f"""
    v_cvt_pk_bf16_f32 v4, v{b}, v{b+1}
    v_cvt_pk_bf16_f32 v5, v{b+2}, v{b+3}
    v_xor_b32 v2, 0x80008000, v4
    v_xor_b32 v3, 0x80008000, v5
    v_sub_u32_sdwa v{h}, v{h}, sext(v2) dst_sel:DWORD dst_unused:UNUSED_PAD src0_sel:DWORD src1_sel:WORD_0
    v_sub_u32_sdwa v{h+1}, v{h+1}, sext(v2) dst_sel:DWORD dst_unused:UNUSED_PAD src0_sel:DWORD src1_sel:WORD_1
    v_sub_u32_sdwa v{h+2}, v{h+2}, sext(v3) dst_sel:DWORD dst_unused:UNUSED_PAD src0_sel:DWORD src1_sel:WORD_0
    v_sub_u32_sdwa v{h+3}, v{h+3}, sext(v3) dst_sel:DWORD dst_unused:UNUSED_PAD src0_sel:DWORD src1_sel:WORD_1
    """)
    w = (OPT["gp"] >> (4*(4-rt))) & 15 if OPT["gp"] else OPT["gpace"]
    if 0 <= w < 4*rt: E(f"s_waitcnt vmcnt({w})")
    if OPT["pre"] and rt == 5 - OPT["pre"]: lds_wait(L_SCNT + 126*4, 0xff, 4, "pre")
    if OPT["ghold"] == rt + 1:
        E("v_mov_b32 v6, v2\nv_mov_b32 v7, v3"); lds_wait(L_CTR, 0xff00, 0x400, "gh", sleep=1); E("v_mov_b32 v2, v6\nv_mov_b32 v3, v7")
    for r in range(4):
        E(f"v_perm_b32 v{h+r}, v{h+r}, v{4 + (r>>1)}, s{44 + (r&1)}")
        if OPT["gwin"] >= 0: E(f"s_waitcnt vmcnt({OPT['gwin']})")
        E(f"global_store_dword v11, v{h+r}, s[20:21] offset:{256*r} sc1")
    if rt < 4: E("v_add_u32 v11, 0x1000, v11")
def fin(rt):
    a = AC + 8*(rt % 3); u = a + 4
    for r in range(4): E(f"v_mul_f32 v{a+r}, s40, v{a+r}")
    for r in range(4): E(f"v_mul_f32 v{u+r}, s42, v{u+r}")
    E(f"""
    v_cvt_pk_bf16_f32 v{a}, v{a}, v{a+1}
    v_cvt_pk_bf16_f32 v{a+1}, v{a+2}, v{a+3}
    v_cvt_f64_f32 v[2:3], v{u}
    v_cvt_f64_f32 v[4:5], v{u+1}
    v_cvt_f64_f32 v[6:7], v{u+2}
    v_cvt_f64_f32 v[8:9], v{u+3}
    ds_write_b64 v16, v[{a}:{a+1}] offset:512
    ds_write2_b64 v16, v[2:3], v[4:5] offset0:0 offset1:16
    ds_write2_b64 v16, v[6:7], v[8:9] offset0:32 offset1:48
    """)
    if rt < 4: E(f"v_add_u32 v16, {16*NSTR}, v16")
E(f"""
    s_cmp_lg_u32 s33, 0
    s_cbranch_scc1 L_gemm2
    s_cmp_lg_u32 s{S_SAFE}, 0
    s_cbranch_scc1 L_nog1
    s_setprio 2
""")
if OPT["t0f"]:
    E("L_t0:\ns_setprio 2")
    lds_wait(L_AU, 0xff, 8, "t0")
    STAMP(3)
    for ks in range(3):
        E(xread(0, ks)); wreads(ks)
    E("s_waitcnt lgkmcnt(10)"); mf(0, 0, False)
    E(xread(0, 3)); wreads(3)
    for ks in range(1, 4):
        E(f"s_waitcnt lgkmcnt({15 - 5*ks})"); mf(0, ks, False)
    E("s_nop 7"); pack(0)
    get_tag("t", 160)
    E(f"""
    s_waitcnt vmcnt(4)
    s_mov_b64 exec, 1
    ds_add_u32 v18, v19 offset:{L_CTR}
    s_mov_b64 exec, -1
    """)
    lds_wait(L_CTR, 0xff, 8, "t1")
    for rt in range(1, 4):
        for ks in range(4): E(xread(rt, ks))
    E("s_waitcnt lgkmcnt(8)")
    for ks in range(4):
        mf(1, ks, False); E(xread(4, ks))
    E(f"""
    s_mov_b64 exec, 1
    ds_add_u32 v18, v19 offset:{L_RD}
    s_mov_b64 exec, -1
    s_nop 3
    """)
    pack(1)
    E("s_waitcnt lgkmcnt(0)")
    for ks in range(4): mf(2, ks, False)
    for rt in range(3, 5):
        for ks in range(4): mf(rt, ks, False)
        pack(rt-1)
    pack(4)
else: gemm(False, pack, lambda: lds_wait(L_CTR, {1: 0x80000, 2: 0xc0000}[OPT["hold"]], 0, "hold", sleep=1, ne=True) if OPT["hold"] else None)
E("s_setprio 0")
if OPT["gate"] or OPT["gate2"] >= 3:
    E(f"""
    s_mov_b64 exec, 1
    ds_add_u32 v18, v19 offset:{L_GST}
    s_mov_b64 exec, -1
    """)
STAMP(4)
if OPT["tagl"]: get_tag("g", 160)
main_consts()
E(f"""
    s_lshl_b32 s30, s{S_P}, 7
    s_add_u32 s30, s30, {WS_FL2}
    v_mov_b32 v60, s30
    v_mov_b32 v62, s{S_TAG}
    v_mov_b32 v63, s{S_TAG+1}
    v_mov_b32 v2, 0
    v_mov_b32 v3, 1
    s_lshl_b32 s30, s32, 13
    s_lshl_b32 s31, s{S_HALF}, 7
    s_add_u32 s30, s30, s31
    s_add_u32 s30, s30, {WS_FL2}
    v_lshl_add_u32 v64, v1, 8, s30
    s_mul_i32 s30, s32, {2560*256}
    s_lshr_b32 s31, s2, 3
    s_mul_i32 s31, s31, {160*128}
    s_add_u32 s30, s30, s31
    v_lshl_add_u32 v65, v1, 7, s30
    {'' if OPT['gpe'] else 'v_min_u32 v65, %d, v65' % (G_HALF - 128)}
    s_mul_i32 s30, s{S_HALF}, {G_HALF}
    v_add_u32 v65, s30, v65
    s_mov_b64 exec, 1
    s_waitcnt vmcnt(0)
    ds_add_rtn_u32 v61, v2, v3 offset:{L_DONE2}
    s_waitcnt lgkmcnt(0)
    v_readfirstlane_b32 s30, v61
    s_cmp_lg_u32 s30, 3
    s_cbranch_scc1 L_nofl
    global_store_dwordx2 v60, v[62:63], s[20:21] sc1
    ds_add_u32 v2, v3 offset:{L_DONE2}
L_nofl:
""")
STAMP(5)
if OPT["p2gate"]:
    E("s_mov_b64 exec, -1")
    lds_wait(L_CTR, 0xff0000, 0x080000, "pg", sleep=OPT["pgs"])
    E("s_mov_b32 exec_hi, 0")
if OPT["p2wait"]: E(f"s_sleep {OPT['p2wait']}")
STAMP(6)
def gready(lab):
    if OPT["gpe"]: E(f"s_cmp_lg_u32 s73, 0\ns_cbranch_scc1 L_gr{lab}")
    if OPT["gpf"]:
        E(f"""
        {"s_bfm_b64 exec, %d, 0" % OPT["gpf"] if OPT["gpf"] < 64 else "s_mov_b64 exec, -1"}
        global_load_dword v35, v65, s[20:21] sc1
        """)
    E(f"""
L_gr{lab}:
    s_mov_b64 exec, 1
    v_mov_b32 v2, 0
    v_mov_b32 v3, 1
    ds_add_u32 v2, v3 offset:{L_GOK}
    """)
E(f"""
; each of the four waves checks the flags of 32 producers of this half: once now, again after the barrier if needed
    s_cmp_eq_u32 s32, 3
    s_cselect_b32 exec_lo, 0x1fffffff, -1
    {"" if OPT["p1st"] else "s_mov_b64 s[66:67], exec"}
    {"" if OPT["p1st"] else "s_branch L_p2n"}
    global_load_dwordx2 v[66:67], v64, s[20:21] sc1
    s_waitcnt vmcnt(0)
    v_cmp_ne_u64 s[66:67], s[{S_TAG}:{S_TAG+1}], v[66:67]
""")
if OPT["gpe"]:
    n = OPT["gpe"]
    E(f"""
    s_mov_b32 s73, 0
    s_lshr_b32 s30, s2, 3
    s_bitcmp1_b32 s66, s30
    s_cbranch_scc1 L_nogpe
    s_mov_b32 s73, 1
    s_bitcmp1_b32 exec_lo, s30
    s_cbranch_scc0 L_nogpe
    """)
    for k in range(0, n, 64):
        E("s_mov_b64 exec, -1")
        if k: E(f"v_add_u32 v65, 8192, v65")
        if n - k < 64: E(f"s_bfm_b64 exec, {n-k}, 0")
        E(f"global_load_dword v{(35, 68, 69)[k//64]}, v65, s[20:21] sc1")
    E("L_nogpe:")
E(f"""
    s_cmp_lg_u64 s[66:67], 0
    s_cbranch_scc1 L_p2n
""")
gready("a")
E("L_p2n:\ns_mov_b64 exec, -1")
STAMP(7)
E(f"""
    s_branch L_b4
L_nog1:
    s_mov_b64 exec, 1
    ds_add_u32 v18, v19 offset:{L_RD}
    s_mov_b64 exec, -1
    s_branch L_rec
L_gemm2:
""")
if not OPT['aul'] and not OPT['aue']: stage_au()
for rt in range(5):
    for ks in range(4): E(xread(rt, ks))
E(f"""
    s_mov_b64 exec, 1
    ds_add_u32 v18, v19 offset:{L_RD}
    s_mov_b64 exec, -1
""")
if OPT['aul']:
    lds_wait(L_RD, 8, 8, "aul"); stage_au()
E(f"""
    s_mov_b64 exec, 1
    s_waitcnt vmcnt(0)
    ds_add_u32 v18, v19 offset:{L_RD}
    s_mov_b64 exec, -1
    s_sub_u32 s29, s3, 4
""")
rec_setup()
lds_wait(L_RD, 0xff, 12, "rd", sleep=(OPT["sl"] >> 2) & 1)
for ks in range(4): wreads(ks)
for ks in range(4):
    E(f"s_waitcnt lgkmcnt({12 - 4*ks})"); mf(0, ks, True)
for rt in range(1, 5):
    for ks in range(4): mf(rt, ks, True)
    fin(rt-1)
fin(4)
if OPT["tagl"]: get_tag("h", 144)
STAMP(4)
E(f"""
    s_branch L_rec
L_sort:
""")
STAMP(1)
E(f"""
    s_mov_b32 s40, {f32(-LOG2E)}
    s_mov_b32 s46, 0x3f80
    s_cmp_lg_u32 s{S_SAFE}, 0
    s_cbranch_scc1 L_sortskip
    v_mov_b32 v21, 1
    v_mov_b32 v20, 3
    s_mov_b32 s31, 52429
    s_movk_i32 s32, -20
    v_lshlrev_b32 v9, 3, v1
    v_lshlrev_b32 v33, 4, v0
    s_mul_i32 s30, s{S_P}, {SORTB}
    s_add_u32 s30, s30, {WS_REC + 4096}
    v_add_u32 v32, s30, v33                 ; copy-out global offset
    v_add_u32 v34, 8192, v32
    s_lshl_b32 s30, s{S_P}, 10
    s_add_u32 s30, s30, {WS_ROW}
    v_lshl_add_u32 v42, v1, 4, s30
    s_mov_b32 s34, {LDS_MAX}
    s_setprio 3
""")
E6 = OPT["ewhen"] in (0, 6, 7)
if OPT["ewhen"] == 6:
    E("v_mov_b32 v19, v3")
    lds_wait(L_CTR, 0xff000000, 0x08000000, "ew")
    E("v_mov_b32 v3, v19\ns_mov_b32 s31, 52429")
    E(f"""
    global_load_dwordx4 v[12:15], v3, s[8:9]{NTE}
    global_load_dword v16, v18, s[8:9]{NTE}
    global_load_dwordx4 v[52:55], v10, s[6:7]{NTE}
    global_load_dwordx4 v[56:59], v10, s[6:7] offset:16{NTE}
    global_load_dwordx2 v[60:61], v11, s[6:7]{NTE}
""")
E(f"""
    s_waitcnt vmcnt({1 + OPT['pre'] + 5*E6})
""")
STAMP(2)
FSTAMP(1)
for i in range(5):
    E(f"""
    v_mul_u32_u24 v{22+i}, s31, v{4+i}
    v_lshrrev_b32 v{22+i}, 22, v{22+i}
    v_lshlrev_b32 v{22+i}, 2, v{22+i}        ; bucket*4
    ds_add_rtn_u32 v{27+i}, v{22+i}, v20 offset:{L_SCNT}
    """)
E(f"""
    s_mov_b64 exec, 1
    s_cmp_lg_u32 s3, 0
    s_cbranch_scc1 L_notag
    s_waitcnt vmcnt({OPT['pre'] + 5*E6})
    ds_write_b32 v48, v43 offset:{L_SCNT + 125*4}
L_notag:
    ds_add_u32 v48, v21 offset:{L_SCNT + 127*4}  ; arrival count of the four waves (LDS runs a wave's ops in order)
    s_mov_b64 exec, -1
""")
if OPT["ewhen"] == 1: E(f"""
    global_load_dwordx4 v[12:15], v3, s[8:9]{NTE}
    global_load_dword v16, v18, s[8:9]{NTE}
    global_load_dwordx4 v[52:55], v10, s[6:7]{NTE}
    global_load_dwordx4 v[56:59], v10, s[6:7] offset:16{NTE}
    global_load_dwordx2 v[60:61], v11, s[6:7]{NTE}
""")
E(f"""
L_s1:
    ds_read_b32 v38, v48 offset:{L_SCNT + 127*4}
    ds_read_b64 v[36:37], v9 offset:{L_SCNT}
    s_sub_u32 s34, s34, 1
    s_cbranch_scc1 L_s1d
    s_waitcnt lgkmcnt(0)
    v_readfirstlane_b32 s30, v38
    s_cmp_lg_u32 s30, 4
    s_cbranch_scc1 L_s1
L_s1d:
""")
FSTAMP(2)
E(f"""
    v_add3_u32 v39, v36, v37, 2
    v_add3_u32 v38, v36, v37, 2
    v_readlane_b32 s{S_TAGRAW}, v37, 62
""")
fill = []
for i in range(5):
    fill += [f"v_mad_i32_i24 v{4+i}, v{22+i}, s32, v{4+i}", f"v_lshlrev_b32 v{4+i}, 24, v{4+i}"]
for k, m in enumerate(SCAN):
    E(f"v_add_u32_dpp v39, v39, v39 {m}")
    for x in fill[2*k:2*k+2]: E(x)
E(f"""
    v_sub_u32 v40, v39, v38
    v_add3_u32 v41, v40, v36, 1
    s_mov_b32 s30, {L_SORT}
    v_lshl_add_u32 v38, v40, 2, s30
    v_lshl_add_u32 v39, v41, 2, s30
    ds_write_b64 v9, v[38:39] offset:{L_SOFF}
""")
for i in range(5):
    E(f"ds_read_b32 v{22+i}, v{22+i} offset:{L_SOFF}")
finish_tag()
E(f"""
    s_cmp_lg_u32 s3, 0
    s_cbranch_scc1 L_nopub
    s_and_b32 s35, s{S_TAG+1}, 0xff000000
    v_mov_b32 v45, s{S_TAG}
    v_mov_b32 v47, s{S_TAG}
    v_lshl_or_b32 v44, v36, 12, v40
    v_lshl_or_b32 v46, v37, 12, v41
    v_or_b32 v44, s35, v44
    v_or_b32 v46, s35, v46
    global_store_dwordx4 v42, v[44:47], s[20:21] sc1
    {"s_waitcnt vmcnt(1)" if OPT["ewhen"] in (0, 1, 6, 7) else ""}
    s_branch {"L_pub" if OPT["ewhen"] in (0, 1, 6, 7) else "L_nochk"}
L_nopub:
    s_cmp_lg_u32 s3, 1
    s_cbranch_scc1 L_nochk
    v_mov_b32 v44, s{S_TAG+1}
    s_mov_b32 exec_hi, 0x7fffffff
    ds_add_u32 v38, v44
    ds_add_u32 v39, v44
    s_mov_b32 exec_hi, -1
L_nochk:
""")
if 3 <= OPT["ewhen"] <= 5:
    E("v_mov_b32 v19, v3")
    if OPT["ewhen"] == 3: lds_wait(L_CTR, 0xff, 8, "ew")
    elif OPT["ewhen"] == 5: lds_wait(L_CTR, 0xff000000, 0x08000000, "ew")
    else: lds_wait(L_CTR, 0xff, 0, "ew", ne=True)
    E("v_mov_b32 v3, v19")
if 2 <= OPT["ewhen"] <= 5: E(f"""
    global_load_dwordx4 v[12:15], v3, s[8:9]{NTE}
    global_load_dword v16, v18, s[8:9]{NTE}
    global_load_dwordx4 v[52:55], v10, s[6:7]{NTE}
    global_load_dwordx4 v[56:59], v10, s[6:7] offset:16{NTE}
    global_load_dwordx2 v[60:61], v11, s[6:7]{NTE}
""")
E(f"""
    s_waitcnt vmcnt(0)
L_pub:
""")
STAMP(4)
FSTAMP(3)
for i in range(5): E(f"v_lshl_or_b32 v{4+i}, v{12+i}, 8, v{4+i}")
E("s_waitcnt lgkmcnt(0)")
for i in range(5):
    E(f"""
    v_lshl_add_u32 v{27+i}, v{27+i}, 2, v{22+i}
    v_add3_u32 v{12+i}, v{52+2*i}, v{53+2*i}, v{4+i}
    ds_write2_b32 v{27+i}, v{52+2*i}, v{53+2*i} offset0:2 offset1:3
    ds_write_b32 v{27+i}, v{4+i} offset:4
    ds_sub_u32 v{22+i}, v{12+i}
    """)
E(f"""
    s_mov_b64 exec, 1
    ds_add_u32 v48, v21 offset:{L_SCNT + 126*4}
    s_mov_b64 exec, -1
""")
FSTAMP(4)
E(f"""
    s_mov_b32 s34, {LDS_MAX}
L_s2:
    ds_read_b32 v38, v48 offset:{L_SCNT + 126*4}
    {f"ds_read_b32 v39, v48 offset:{L_CTR}" if OPT["wgate"] else ""}
    ds_read_b128 v[72:75], v33 offset:{L_SORT}
    s_sub_u32 s34, s34, 1
    s_cbranch_scc1 L_s2d
    s_waitcnt lgkmcnt(1)
    v_readfirstlane_b32 s30, v38
""")
if OPT["wgate"]:
    E(f"""
    v_readfirstlane_b32 s31, v39
    s_lshr_b32 s31, s31, 24
    s_add_u32 s30, s30, s31
    """)
E(f"""
    s_cmp_lg_u32 s30, {12 if OPT["wgate"] else 4}
    s_cbranch_scc1 L_s2
L_s2d:
""")
FSTAMP(5)
E(f"""
    ds_read_b128 v[76:79], v33 offset:{L_SORT + 4096}
    ds_read_b128 v[80:83], v33 offset:{L_SORT + 8192}
    ds_read_b128 v[84:87], v33 offset:{L_SORT + 12288}
    s_waitcnt lgkmcnt(3)
    global_store_dwordx4 v32, v[72:75], s[20:21] offset:-4096 sc1
    s_waitcnt lgkmcnt(2)
    global_store_dwordx4 v32, v[76:79], s[20:21] sc1
    s_waitcnt lgkmcnt(1){f" vmcnt({OPT['rpace']})" if OPT['rpace'] >= 0 else ""}
    global_store_dwordx4 v34, v[80:83], s[20:21] offset:-4096 sc1
    s_cmp_eq_u32 s3, 3
    s_cselect_b32 exec_hi, 0, -1
    s_waitcnt lgkmcnt(0){f" vmcnt({OPT['rpace']})" if OPT['rpace'] >= 0 else ""}
    global_store_dwordx4 v34, v[84:87], s[20:21] sc1
    s_mov_b32 exec_hi, -1
""")
FSTAMP(6)
for k in range(4): E(f"ds_write_b128 v33, v[48:51] offset:{L_SORT + 4096*k}")
STAMP(3)
FSTAMP(7)
E(f"""
    s_branch L_sortdone
L_sortskip:
    s_waitcnt vmcnt(0)
L_sortdone:
    s_mov_b32 s29, s3
""")
rec_setup()
E(f"""
L_rec:
""")
if OPT["mcl"]: E(f"s_cmp_ge_u32 s3, 8\ns_cbranch_scc1 L_nomc")
lds_wait(L_CTR, 0xff, 8, "r0")
if OPT["mcl"] != 2: main_consts()
E("L_nomc:")
STAMP(5)
E(f"""
    s_cmp_ge_u32 s3, 4
    s_cbranch_scc1 L_nod2
    v_mov_b32 v2, 0
    v_mov_b32 v3, 0x100
    s_mov_b64 exec, 1
    s_waitcnt vmcnt(0)
    ds_add_u32 v2, v3 offset:{L_CTR}
    s_mov_b64 exec, -1
L_nod2:
    s_cmp_lg_u32 s{S_SAFE}, 0
    s_cbranch_scc1 L_recskip
    s_lshr_b32 s35, s{S_TAG+1}, 24
    s_mov_b64 exec, s[66:67]
    s_mov_b32 s34, {POLL_MAX}
    s_branch L_p1c
L_p1:
    global_load_dwordx2 v[{ENT}:{ENT+1}], v{ROWA}, s[20:21] sc1
L_p1c:
    s_sub_u32 s34, s34, 1
    s_cbranch_scc1 L_toobig
    s_waitcnt vmcnt(0)
    v_cmp_ne_u32 vcc, s{S_TAG}, v{ENT+1}
    v_cmp_ne_u32_sdwa s[48:49], v{ENT}, s35 src0_sel:BYTE_3 src1_sel:DWORD
    s_or_b64 exec, vcc, s[48:49]
    s_cbranch_scc1 L_p1
    s_mov_b64 exec, -1
""")
STAMP(6)
if OPT["cnt"]: E(f"s_sub_u32 s{ST0+2}, {POLL_MAX+1}, s34\ns_mov_b32 s34, {POLL_MAX}")
E(f"""
    v_and_b32 v{CAD}, 0xfff, v{ENT}
    v_bfe_u32 v{ENT}, v{ENT}, 12, 12            ; 3*count
    v_add_lshl_u32 v{CAD}, v{CAD}, v{CELL}, 2
    v_cmp_ne_u32 vcc, 0, v{ENT}
    s_sub_u32 s30, 0, s{S_TAG+1}
    v_mov_b32 v2, s30
    v_cndmask_b32 v{ENT+1}, 0, v2, vcc
    v_cmp_lt_u32 vcc, 96, v{ENT}
    v_cmp_lt_u32 s[68:69], 48, v{ENT}
    s_cbranch_vccnz L_toobig
""")
for p in range(NP):
    E(f"""
    v_add_co_u32_dpp v2, vcc, v{ENT}, v{J3N} row_newbcast:{p} row_mask:0xf bank_mask:0xf
    v_add_u32_dpp v{RAD+p}, v{CAD}, v{J12} row_newbcast:{p} row_mask:0xf bank_mask:0xf
    s_mov_b64 s[{48+2*p}:{49+2*p}], vcc
    """)
lds_wait(L_CTR, 0xff00, 0x400, "r1", sleep=(OPT["sl"] >> 2) & 1)
if OPT["gate"]: lds_wait(L_GST, 0xff, 4, "gt")
if OPT["gate2"] == 1 and not OPT["split"]:
    if not OPT["allg"]: E("s_cmp_lt_u32 s3, 4\ns_cbranch_scc1 L_wd_g2")
    lds_wait(L_DONE2, 0xff, 5, "g2")
if OPT["gate2"] == 3:
    E("s_cmp_lt_u32 s3, 4\ns_cbranch_scc1 L_wd_g2")
    lds_wait(L_GST, 0xff, 4, "g2")
if OPT["gate2"] in (2, 4):
    E(f"""
    s_cmp_lt_u32 s3, 4
    s_cbranch_scc1 L_g2d
    s_mov_b32 s31, {POLL_MAX}
L_g2:
    ds_read_b128 v[60:63], v2 offset:{L_CTR}
    {f"ds_read_b32 v61, v2 offset:{L_GST}" if OPT["gate2"] == 4 else ""}
    s_sub_u32 s31, s31, 1
    s_cbranch_scc1 L_g2d
    s_waitcnt lgkmcnt(0)
    v_readfirstlane_b32 s30, v62
    v_readfirstlane_b32 s28, v60
    v_readfirstlane_b32 s29, v61
    s_cmp_eq_u32 s30, 5
    s_cbranch_scc1 L_g2d
    {"s_cmp_lg_u32 s29, 4" if OPT["gate2"] == 4 else ""}
    {"s_cbranch_scc1 L_g2" if OPT["gate2"] == 4 else ""}
    s_and_b32 s28, s28, 0xc0000
    s_cbranch_scc0 L_g2
L_g2d:
    """)
E(f"""
    s_or_b32 s68, s68, s69
    s_lshr_b32 s69, s68, 16
    s_or_b32 s68, s68, s69
""")
def mask2(p): return f"v_add_co_u32_dpp v2, vcc, v{ENT}, v{J3N2} row_newbcast:{p} row_mask:0xf bank_mask:0xf"
def loads(ps, lab):
    E(f"s_and_b32 s30, s68, {sum(1 << p for p in ps)}\ns_cbranch_scc0 L_nx{lab}")
    for p in ps:
        r = RB + 4*p
        E(f"""
        s_bitcmp1_b32 s68, {p}
        s_cbranch_scc0 L_nx{lab}{p}
        {mask2(p)}
        s_mov_b64 exec, vcc
        global_load_dwordx4 v[{r}:{r+3}], v{RAD+p}, s[20:21] offset:192 sc1
        s_mov_b64 exec, -1
L_nx{lab}{p}:
        """)
    E(f"L_nx{lab}:")
    for p in ps:
        r = RA + 4*p
        E(f"""
        s_mov_b64 exec, s[{48+2*p}:{49+2*p}]
        global_load_dwordx4 v[{r}:{r+3}], v{RAD+p}, s[20:21]{SC1 if (OPT["rsc1"] or lab != "m") else ""}
        """)
    E("s_mov_b64 exec, -1")
SP = OPT["split"]
GROUPS = {0: ((0,1,2,3),(4,5),(6,7)), 4: ((0,1,2,3),(4,5),(6,7)), 5: ((0,1,2),(3,4),(5,6,7)), 6: ((0,1,2,3),(4,5),(6,7)), 3: ((0,1,2),(3,4,5),(6,7)), 2: ((0,1),(2,3,4,5),(6,7)), 1: ((0,),(1,2,3,4),(5,6,7))}[SP]
if OPT['grp'] == 1: GROUPS = ((0,1),(2,3,4),(5,6,7))
if OPT['grp'] == 2: GROUPS = ((0,1),(2,3),(4,5),(6,7))
if OPT['grp'] == 3: GROUPS = (tuple(range(SP)), tuple(range(SP, NP)))
if OPT['grp'] == 4: GROUPS = ((0,1,2),(3,4,5,6),(7,))
loads(range(SP or NP), "m")
if OPT["eag"]:
    E(f"""
    v_mov_b32 v2, 0
    ds_read_b32 v3, v2 offset:{L_DONE2}
    s_waitcnt lgkmcnt(0)
    v_readfirstlane_b32 s73, v3
    s_cmp_lg_u32 s73, 5
    s_cbranch_scc1 L_neag
    """)
    loads(range(SP, NP), "e")
    E("L_neag:")
def issued():
    if OPT["p2gate"]:
        E(f"""
        v_mov_b32 v2, 0
        v_mov_b32 v3, 0x10000
        s_mov_b64 exec, 1
        ds_add_u32 v2, v3 offset:{L_CTR}
        s_mov_b64 exec, -1
        """)
if OPT["mcl"]:
    if OPT["mcl"] == 1: E(f"s_cmp_lt_u32 s3, 8\ns_cbranch_scc1 L_nomc2")
    main_consts(28); E("L_nomc2:")
if not OPT["sig"]: issued()
STAMP(7)
def rank(r, m):
    E(f"""
    s_mov_b64 exec, {m}
    v_mul_u32_u24_sdwa v{r}, v{FOUR}, v{r+1} dst_sel:DWORD dst_unused:UNUSED_PAD src0_sel:DWORD src1_sel:BYTE_3
    v_and_b32 v{r+1}, {OPT['srcmask']}, v{r+1}
    ds_add_rtn_u32 v{r}, v{r}, v{FOUR} offset:{L_CNT}
    """)
def put(r, m):
    E(f"""
    s_mov_b64 exec, {m}
    v_lshlrev_b32 v2, 1, v{r}
    ds_write_b32 v{r}, v{r+1}
    ds_write_b64 v2, v[{r+2}:{r+3}] offset:{L_EA - 2*L_SRC}
    """)
retries = []
pending = []
for gi, grp in enumerate(GROUPS):
    bits = sum(1 << p for p in grp); m32 = bits | (bits << 16)
    if SP and grp[0] == SP:
        if OPT["eag"]: E("s_cmp_eq_u32 s73, 5\ns_cbranch_scc1 L_eagd")
        lds_wait(L_DONE2, 0xff, 5, "g2", sleep=(OPT["sl"] >> 3) & 1)
        loads(range(SP, NP), "n")
        E("L_eagd:")
        if OPT["sig"] == 9:
            if OPT["sigw"]: E(f"s_waitcnt vmcnt({NP - SP - OPT['sigw']})")
            issued()
    last = NP if (not SP or grp[0] >= SP) else SP
    first_ = 0 if (not SP or grp[0] < SP) else SP
    E(f"""
L_ck{gi}:
    s_mov_b32 vcc_lo, {m32}
    s_mov_b32 vcc_hi, {m32}
    v_cndmask_b32 v{ACC}, 0, v{ENT+1}, vcc
    s_and_b32 s30, s68, {bits}
    s_cbranch_scc1 L_xa{gi}
L_xb{gi}:
    """)
    def xacc():
        E(f"L_xa{gi}:\ns_waitcnt vmcnt({last - first_})")
        for p in grp:
            r = RB + 4*p
            E(f"""
            {mask2(p)}
            s_mov_b64 exec, vcc
            v_add3_u32 v{ACC}, v{ACC}, v{r+1}, v{r+2}
            v_add_u32 v{ACC}, v{ACC}, v{r+3}
            s_mov_b64 exec, -1
            """)
        E(f"s_branch L_xb{gi}")
    emit_to(outofline, xacc)
    for p in grp:
        r = RA + 4*p
        E(f"""
        s_waitcnt vmcnt({last-1-p})
        s_mov_b64 exec, s[{48+2*p}:{49+2*p}]
        v_and_b32 v{r}, v{r}, v{L0M}
        v_add3_u32 v{ACC}, v{ACC}, v{r+2}, v{r+3}
        v_add3_u32 v{ACC}, v{ACC}, v{r}, v{r+1}
        """)
    E("s_mov_b64 exec, -1\ns_nop 0")
    for k in (1, 2, 4, 8):
        E(f"v_add_u32_dpp v{ACC}, v{ACC}, v{ACC} row_ror:{k} row_mask:0xf bank_mask:0xf")
        if k < 8: E("s_nop 1")
    E(f"v_cmp_ne_u32 vcc, 0, v{ACC}\ns_cbranch_vccnz L_rt{gi}")
    if OPT["rst"]: STAMP(1+gi)
    if OPT["sig"] == gi + 1: issued()
    def retry():
        E(f"L_rt{gi}:\ns_sub_u32 s34, s34, 1\ns_cbranch_scc1 {'L_toobig' if (gi < OPT['sig'] if OPT['sig'] != 9 else grp[0] < SP) else 'L_giveup'}")
        loads(grp, f"r{gi}_")
        E(f"s_waitcnt vmcnt(0)\ns_branch L_ck{gi}")
    emit_to(outofline, retry)
    for p in grp: rank(RA + 4*p, f"s[{48+2*p}:{49+2*p}]")
    E(f"s_and_b32 s30, s68, {bits}\ns_cbranch_scc1 L_ya{gi}\nL_yb{gi}:")
    def xput():
        E(f"L_ya{gi}:")
        for p in grp:
            r = RB + 4*p
            E(f"""
            s_bitcmp1_b32 s68, {p}
            s_cbranch_scc0 L_yn{p}
            s_mov_b64 exec, -1
            {mask2(p)}
            """)
            rank(r, "vcc")
            E("s_waitcnt lgkmcnt(0)")
            put(r, "vcc")
            E(f"L_yn{p}:")
        E(f"s_branch L_yb{gi}")
    emit_to(outofline, xput)
    for k, p in enumerate(grp):
        E(f"s_waitcnt lgkmcnt({len(grp) - 1 - k + 2*k})")
        put(RA + 4*p, f"s[{48+2*p}:{49+2*p}]")
    E("s_mov_b64 exec, -1")
E(f"""
    {f"s_sub_u32 s{ST0+4}, {POLL_MAX+1}, s34" if OPT["cnt"] else ""}
    s_branch L_b4
L_toobig:
    s_mov_b64 exec, -1
""")
issued()
E(f"""
L_giveup:
    v_mov_b32 v2, 0
    ds_write_b32 v2, v{FOUR} offset:{L_FLAG}
L_recskip:
    s_waitcnt vmcnt(0)
""")
if OPT["mcl"]: main_consts()
E(f"""
; ---------------- all waves: main loop
L_b4:
    s_setprio {OPT["p0"] if OPT["prio"] == 2 else 0}
    s_mul_i32 s30, s{S_HALF}, {G_HALF}
    {f"s_add_u32 s30, s30, {WS0}" if WS0 else ""}
    s_add_u32 s36, s20, s30
    s_addc_u32 s37, s21, 0
    s_mov_b32 s38, {OPT['nrec'] or G_HALF}
    s_mov_b32 s39, 0x20000
    s_mov_b32 s44, 128
    s_mov_b32 s45, 128
    ds_read_b128 v[{WS4}:{WS4+3}], v{LP}
    ds_read_b64 v[{AG}:{AG+1}], v{LP} offset:64
    ds_read_b64 v[{WN2}:{WN2+1}], v{LP} offset:72
    ds_read_b32 v{WE}, v{LP+1}
    s_waitcnt lgkmcnt(0)
    v_lshl_add_u64 v[{AG}:{AG+1}], v[{AG}:{AG+1}], 0, v[{LN8}:{LN8+1}]
    v_lshl_add_u32 v{WE}, v{WE}, 1, v{EAC}
""")
assert OPT["gpe"] <= 64 and not OPT["ptime"]
if OPT["warm"]:
    E(f"""
    s_barrier
    s_lshr_b32 s30, s2, 3
    s_mul_i32 s30, s30, 98304
    v_lshl_add_u32 v2, v0, 7, s30
    buffer_load_dword v3, v2, s[36:39], 0 offen sc1
    s_waitcnt vmcnt(0)
    s_sleep 40
    """)
STAMP(8)
E(f"""
    s_barrier                               ; B4
    s_cmp_lg_u32 s{S_SAFE}, 0
    s_cbranch_scc1 L_safe
    ds_read_b128 v[{T}:{T+3}], v{WS4}
    ds_read_b128 v[{T+4}:{T+7}], v{WS4+1}
    ds_read_b64 v[{XA}:{XA+1}], v{AG} offset:512
    ds_read_b64 v[{EA}:{EA+1}], v{WE}
    s_lshr_b32 s30, s3, 2
    s_cmp_lg_u32 s30, 1
    s_cbranch_scc1 L_nopoll
    s_mov_b64 exec, s[66:67]
    s_cbranch_execz L_p2e
    s_mov_b32 s31, {POLL_MAX}
L_p2:
    global_load_dwordx2 v[66:67], v64, s[20:21] sc1
    s_sub_u32 s31, s31, 1
    s_cbranch_scc1 L_p2d
    s_waitcnt vmcnt(0)
    v_cmp_ne_u64 vcc, s[{S_TAG}:{S_TAG+1}], v[66:67]
    s_and_b64 exec, exec, vcc
    s_cbranch_scc0 L_p2d
    {f"s_sleep {OPT['p2sleep']}" if OPT['p2sleep'] else ""}
    s_branch L_p2
L_p2d:
""")
gready("b")
E(f"""
L_p2e:
    s_mov_b64 exec, -1
L_nopoll:
    s_cmp_lt_u32 s3, 8
    s_cbranch_scc1 L_nobuild
; waves 8..11: place the edges past the 24th of every node: blocks of 8 (two tiles), then remainders of up to 4
    v_lshlrev_b32 v2, 3, v1
    v_mov_b32 v3, 0
    ds_read_b64 v[72:73], v2 offset:{L_CNT}
    ds_read_b32 v79, v3 offset:{L_FLAG}
    v_mul_u32_u24 v74, {2*SSTR}, v1
    v_add_u32 v74, {L_SRC + 96}, v74
    v_add_u32 v75, {SSTR}, v74
    v_mul_u32_u24 v82, {2*NSTR}, v1
    s_and_b32 s32, s3, 1
    s_mul_i32 s30, s32, {NSTR}
    s_add_u32 s30, s30, {L_NODE}
    v_add_u32 v82, s30, v82
    v_mov_b32 v83, v82
    s_mul_i32 s30, s32, {SSTR}
    v_add_u32 v80, s30, v74
    v_add_u32 v81, 16, v80
    s_waitcnt lgkmcnt(0)
    v_sub_u32 v72, v72, v74 clamp
    v_sub_u32 v73, v73, v75 clamp
    v_max_u32 v76, v72, v73
    v_cmp_lt_u32 vcc, 160, v76
    v_cmp_ne_u32 s[48:49], 0, v79
    v_add_u32 v74, 12, v72
    v_add_u32 v75, 12, v73
    s_or_b64 vcc, vcc, s[48:49]
    s_cbranch_scc1 L_bad
    v_add_u32 v72, 28, v72
    v_add_u32 v73, 28, v73
    v_lshrrev_b32 v74, 5, v74
    v_lshrrev_b32 v75, 5, v75
    v_lshrrev_b32 v72, 5, v72
    v_lshrrev_b32 v73, 5, v73
    v_sub_u32 v72, v72, v74
    v_sub_u32 v73, v73, v75
    v_lshl_or_b32 v72, v72, 16, v74
    v_lshl_or_b32 v73, v73, 16, v75
    v_add_u32 v76, v72, v73
    v_add_u32 v77, v72, v73
""")
scan(77)
E(f"""
    s_cmp_eq_u32 s32, 0
    s_cselect_b64 vcc, -1, 0
    v_readlane_b32 s30, v77, 63
    v_cndmask_b32 v76, v73, v76, vcc
    v_cndmask_b32 v72, v73, v72, vcc
    v_sub_u32 v77, v77, v76
    s_and_b32 s50, s30, 0xffff
    s_add_u32 s31, s50, 3
    s_lshr_b32 s31, s31, 2
    s_sub_u32 s51, 0, s50
    s_and_b32 s51, s51, 3                   ; spare quarters of the last such slot take remainders
    s_lshr_b32 s30, s30, 16
    s_add_u32 s30, s30, 3
    s_sub_u32 s30, s30, s51
    s_lshr_b32 s30, s30, 2
    s_lshl_b32 s33, s31, 1
    s_add_u32 s33, s33, s30
    s_cmp_gt_u32 s33, 104
    s_cbranch_scc1 L_bad
    s_lshl_b32 s30, s30, 8
    s_or_b32 s29, s30, s31
    v_and_b32 v74, 0xffff, v72
    v_and_b32 v76, 0xffff, v77
    s_mov_b32 s34, {L_LISTC}
    s_mov_b32 s35, {L_LIST + 136}
""")
def slotaddr():
    E(f"""
    v_subrev_u32 v78, 32, v76
    v_bfe_u32 v79, v76, 2, 2
    v_lshl_add_u32 v79, v79, 10, s34
    v_lshrrev_b32 v84, 5, v78
    v_lshl_add_u32 v79, v84, 7, v79
    v_bfe_u32 v84, v78, 4, 1
    v_lshl_add_u32 v79, v84, 3, v79
    v_lshrrev_b32 v84, 2, v76
    v_cmp_gt_u32 vcc, 32, v76
    v_lshl_add_u32 v84, v84, 9, s35
    v_and_b32 v78, 3, v76
    v_cndmask_b32 v79, v79, v84, vcc
    v_lshl_add_u32 v79, v78, 4, v79
    """)
E("""
    s_cmp_lt_u32 s3, 10
    s_cbranch_scc1 L_brem
L_bf:
    v_cmp_ne_u32 vcc, 0, v74
    s_and_b64 exec, exec, vcc
    s_cbranch_execz L_bfd
""")
slotaddr()
E(f"""
    ds_write_b64 v79, v[80:81]
    ds_write_b64 v79, v[82:83] offset:64
    v_add_u32 v80, 32, v80
    v_add_u32 v81, 32, v81
    v_add_u32 v76, 1, v76
    v_subrev_u32 v74, 1, v74
    s_branch L_bf
L_brem:
    v_lshl_add_u32 v80, v74, 5, v80
    v_add_u32 v81, 16, v80
    v_lshrrev_b32 v77, 16, v77
    s_sub_u32 s52, 0, s31
    s_and_b32 s52, s52, 3
    s_add_u32 s53, s31, s52
    s_lshl_b32 s52, s52, 3
    v_subrev_u32 v73, s51, v77              ; j' = j - spare
    v_subrev_u32 v74, s52, v73
    v_lshrrev_b32 v76, 3, v73
    v_add_u32 v76, s31, v76
    v_and_b32 v75, 4, v73
    v_lshrrev_b32 v78, 5, v74
    v_lshl_add_u32 v78, v78, 2, s53
    v_bfe_u32 v79, v74, 2, 2
    v_add_u32 v78, v78, v79
    v_cmp_gt_u32 vcc, s52, v73
    v_lshrrev_b32 v74, 2, v74
    v_and_b32 v74, 4, v74
    v_cndmask_b32 v76, v78, v76, vcc        ; slot
    v_cndmask_b32 v75, v74, v75, vcc
    v_and_b32 v78, 3, v73
    v_cmp_gt_u32 s[54:55], s51, v77
    v_lshl_add_u32 v76, v76, 2, v78
    v_add_u32 v78, s50, v77
    v_cndmask_b32 v76, v76, v78, s[54:55]
""")
slotaddr()
E(f"""
    v_cmp_lt_u32 vcc, 0xffff, v72
    v_add_u32 v75, v79, v75
    s_andn2_b64 exec, vcc, s[54:55]
    ds_write2_b32 v75, v80, v82 offset0:0 offset1:16
    s_and_b64 exec, vcc, s[54:55]
    ds_write_b64 v79, v[80:81]
    ds_write_b64 v79, v[82:83] offset:64
L_bfd:
    s_mov_b64 exec, -1
    s_mov_b32 s56, s29
    s_cmp_eq_u32 s3, 8
    s_cselect_b32 s29, s29, 0
    s_add_u32 s29, s29, 0x10000
    s_branch L_built
L_bad:
    s_mov_b32 s56, 0
    s_mov_b32 s29, 0x1010000
L_built:
    v_mov_b32 v2, s29
    s_mov_b64 exec, 1
    ds_add_u32 v3, v2 offset:{L_NST}
    s_add_u32 s30, s{S_P}, s3
    s_cmp_lg_u32 s30, 8
    s_cbranch_scc1 L_notw
    v_mov_b32 v2, s{S_TAG}
    v_mov_b32 v3, {WS_TAG}
    global_store_dword v3, v2, s[20:21] sc1
L_notw:
    s_mov_b64 exec, -1
    v_mov_b32 v2, 0
    s_mov_b32 s30, s56
    s_and_b32 s31, s30, 0xff
    s_bfe_u32 s30, s30, 0x80008
    s_and_b32 s28, s3, 3
    s_sub_u32 s32, 0, s31
    s_and_b32 s32, s32, 3
    s_add_u32 s33, s28, s32
    s_sub_i32 s33, s33, 4
    s_lshl_b32 s29, s33, 1
    s_sub_i32 s29, s30, s29
    s_max_i32 s29, s29, 0
    s_min_i32 s29, s29, 2
    s_cmp_lt_i32 s33, 0
    s_cselect_b32 s29, 0, s29
    s_lshl_b32 s32, s32, 1
    s_sub_i32 s30, s30, s32
    s_sub_i32 s30, s30, s28
    s_add_i32 s30, s30, 3
    s_max_i32 s30, s30, 0
    s_lshr_b32 s30, s30, 2
    s_add_u32 s30, s30, s29
    s_sub_u32 s32, s31, s28
    s_add_u32 s32, s32, 3
    s_lshr_b32 s32, s32, 2
    s_lshl_b32 s32, s32, 1
    s_add_u32 s30, s30, s32
    s_sub_i32 s30, s30, 4
    s_max_i32 s30, s30, 0
    s_add_u32 s{S_R}, s30, 6
    s_sub_i32 s31, s31, s3
    s_add_i32 s31, s31, 3
    s_max_i32 s31, s31, 0
    s_lshr_b32 s31, s31, 2
    s_lshl_b32 s31, s31, 1
    s_lshl_b32 s31, -1, s31
    s_or_b32 s31, s31, 0x55555555
    s_lshl_b32 s32, 2, s30
    s_sub_u32 s32, s32, 1
    s_and_b32 s31, s31, s32
    s_lshl_b32 s32, 64, s30
    s_or_b32 s{S_M}, s31, s32
    v_and_b32 v72, 15, v1
    v_lshrrev_b32 v73, 4, v1
    s_lshl_b32 s31, s3, 2
    s_add_u32 s31, s31, 32
    v_add_u32 v73, s31, v73                 ; node
    v_mul_u32_u24 v74, {SSTR}, v73
    v_lshl_add_u32 v74, v72, 4, v74
    v_add_u32 v74, {L_SRC}, v74
    v_mul_u32_u24 v75, {NSTR}, v73
    v_add_u32 v75, {L_NODE}, v75
    v_cmp_gt_u32 vcc, 6, v72
    v_add_u32 v72, s30, v72
    v_lshrrev_b32 v73, 2, v72
    v_lshl_add_u32 v73, v73, 7, v{LP}
    v_and_b32 v72, 3, v72
    v_lshl_add_u32 v73, v72, 2, v73
    s_mov_b64 exec, vcc
    ds_write2_b32 v73, v74, v75 offset0:0 offset1:16
    s_cmp_lg_u32 s30, 0
    s_cbranch_scc1 L_cw2
    v_mov_b32 v3, 1
    s_mov_b64 exec, 1
    ds_add_u32 v2, v3 offset:{L_DYN}
L_cw2:
    s_mov_b64 exec, -1
    s_mov_b32 s31, {LDS_MAX}
L_wnc:
    ds_read_b32 v3, v2 offset:{L_NST}
    s_sub_u32 s31, s31, 1
    s_cbranch_scc1 L_gosafe
    s_waitcnt lgkmcnt(0)
    v_readfirstlane_b32 s30, v3
    s_bitcmp1_b32 s30, 18
    s_cbranch_scc0 L_wnc
    s_cmp_gt_u32 s30, {0 if OPT["force_safe"] else 0xffffff}
    s_cbranch_scc1 L_gosafe
    ds_read_b128 v[{WS4}:{WS4+3}], v{LP}
    ds_read_b64 v[{AG}:{AG+1}], v{LP} offset:64
    ds_read_b64 v[{WN2}:{WN2+1}], v{LP} offset:72
    ds_read_b32 v{WE}, v{LP+1}
    s_waitcnt lgkmcnt(0)
    v_lshl_add_u64 v[{AG}:{AG+1}], v[{AG}:{AG+1}], 0, v[{LN8}:{LN8+1}]
    v_lshl_add_u32 v{WE}, v{WE}, 1, v{EAC}
    ds_read_b128 v[{T}:{T+3}], v{WS4}
    ds_read_b128 v[{T+4}:{T+7}], v{WS4+1}
    ds_read_b64 v[{XA}:{XA+1}], v{AG} offset:512
    ds_read_b64 v[{EA}:{EA+1}], v{WE}
L_nobuild:
    s_waitcnt lgkmcnt(0)
""")
assert DIST == 2 and not EARLY
E(m_a(D0))
for o in range(T, T+8, 2): E(oadd(o))
E(m_e(D0, 0))
E(f"ds_read_b64 v[{XA}:{XA+1}], v{AG+1} offset:512")
lds_wait(L_GOK, 0xff, 4, "gok", sleep=OPT["sl"] & 1)
if OPT["stamps"] == 2: E(f"s_memrealtime s[{ST0+16}:{ST0+17}]")
if not OPT["nogather"]:
    for q in range(8): E(gload(G + 4*q, T+q))
STAMP(9)
E(f"""
    s_mov_b32 s31, {LDS_MAX}
""")
E(f"""
    s_cmp_ge_u32 s3, 8
    s_cbranch_scc1 L_nd
L_wna:
    ds_read_b32 v3, v2 offset:{L_NST}
    s_sub_u32 s31, s31, 1
    s_cbranch_scc1 L_gosafe
    s_waitcnt lgkmcnt(0)
    v_readfirstlane_b32 s30, v3
    s_bitcmp1_b32 s30, 18
    s_cbranch_scc0 L_wna
    s_cmp_gt_u32 s30, {0 if OPT["force_safe"] else 0xffffff}
    s_cbranch_scc1 L_gosafe
    s_and_b32 s31, s30, 0xff
    s_mov_b32 s{S_R}, 14
    s_cmp_ge_u32 s3, s31
    s_cselect_b32 s30, 0x80, 0
    s_or_b32 s{S_M}, s30, 0x4141
L_nd:
    s_waitcnt vmcnt(6)
    {m_s(D0, A1, G)}
    s_waitcnt vmcnt(4)
    {m_s(D0, A2, G+8)}
    v_mov_b32 v3, 1
    s_nop 7
    s_mov_b32 s{S_IT}, {(1 << OPT["pa"]) | (1 << OPT["pb"]) | (1 << OPT["pc"]) if OPT["prio"] == 2 else 0}
""")
if OPT["prio"]: E(f"s_setprio {OPT['p1']}")
STAMP(10)
if OPT["ptime"]: E("v_mov_b32 v70, 0\nv_mov_b32 v71, 0")
if OPT["stamps"] == 1: E(f"s_memtime s[{ST0+24}:{ST0+25}]\ns_waitcnt lgkmcnt(0)")
for u in range(4): phase(u, True)
assert OPT["pc"] >= 2
def aggread(r, k, node): return f"ds_read_b64 v[{r+2*k}:{r+2*k+1}], v68 offset:{node*NSTR + 128*k}"
def tail(u):
    Dc, Dn = ((D0, D1), (D1, D0))[u & 1]
    gc = G + 16*u; gn = G + 16*((u+1) & 3)
    E(f"L_T{u}:")
    E(m_a(Dn))
    for x in exps(Dc, 0): E(x)
    E(m_e(Dn, (u+1) & 3))
    for x in exps(Dc, 1): E(x)
    E(f"ds_read_b32 v3, v2 offset:{L_DYN}")
    weave(pk_steps(gc, 0, False) + pk_steps(gc, 1, False), {2*k+1: [aggread(F, k, 32)] for k in range(4)})
    E("s_waitcnt vmcnt(2)"); E(m_s(Dn, A1, gn))
    for x in exps(Dc, 2): E(x)
    E("s_waitcnt vmcnt(0)"); E(m_s(Dn, A2, gn+8))
    for x in exps(Dc, 3): E(x)
    for x in pk_steps(gc, 2, False) + pk_steps(gc, 3, False): E(x)
    for q in (0, 2):
        for x in exps(Dn, q) + exps(Dn, q+1): E(x)
        for x in pk_steps(gn, q, False) + pk_steps(gn, q+1, False): E(x)
for u in (1, 2, 3):
    def t_(): tail(u); E("s_branch L_mdone")
    emit_to(outofline, t_)
tail(0)
E(f"""
L_mdone:
""")
STAMP(11)
if OPT["ptime"]:
    E(f"""
    s_lshl_b32 s30, s2, 4
    s_add_u32 s30, s30, s3
    s_lshl_b32 s30, s30, 8
    s_add_u32 s30, s30, 0xc00000
    v_lshl_add_u32 v2, v1, 2, s30
    s_mov_b32 exec_hi, 0
    global_store_dword v2, v70, s[20:21]
    global_store_dword v2, v71, s[20:21] offset:128
    s_mov_b64 exec, -1
    """)
if OPT["stamps"] == 1:
    E(f"s_memtime s[28:29]\ns_waitcnt lgkmcnt(0)\ns_sub_u32 s{ST0+24}, s28, s{ST0+24}")
E(f"""
    s_mov_b32 s32, {f32(2.0**32)}
    s_mov_b32 s34, {f32(-LOG2E * 2.0**-32)}
    s_mov_b32 s31, {LDS_MAX}
    v_rcp_f32 v{P}, v{P}
    v_rcp_f32 v{P+1}, v{P+1}
    v_rcp_f32 v{P+2}, v{P+2}
    v_rcp_f32 v{P+3}, v{P+3}
; the sums were read behind the count of waves that are on their last chain; with all twelve there they are complete
L_dw:
    s_waitcnt lgkmcnt(0)
    v_readfirstlane_b32 s30, v3
    s_add_u32 s30, s30, s{S_SAFE}
    s_cmp_lt_u32 s30, 12
    s_cbranch_scc1 L_dr
L_dx:
    s_cmp_ge_u32 s3, 8
    s_cbranch_scc1 L_d1
""")
for k in range(4): E(aggread(12, k, 0))
E("L_d1:")
def reread():
    E(f"L_dr:\ns_sub_u32 s31, s31, 1\ns_cbranch_scc1 L_dx\nds_read_b32 v3, v2 offset:{L_DYN}")
    for k in range(4): E(aggread(F, k, 32))
    E("s_branch L_dw")
emit_to(outofline, reread)
OSC = {0: "", 1: " sc1", 2: " nt"}[OPT["osc"]]
def silu(y, first):
    for p in range(2): E(f"v_pk_mul_f32 v[{36+2*p}:{37+2*p}], v[{y+2*p}:{y+2*p+1}], s[34:35] op_sel_hi:[1,0]")
    for k in range(4): E(f"v_exp_f32 v{36+k}, v{36+k}")
    E(f"v_pk_add_f32 v[10:11], v[{y}:{y+1}], v[{y+2}:{y+3}]" if first else f"v_pk_add_f32 v[10:11], v[10:11], v[{y}:{y+1}]")
    for p in range(2): E(f"v_pk_fma_f32 v[{36+2*p}:{37+2*p}], v[{36+2*p}:{37+2*p}], s[32:33], s[32:33] op_sel_hi:[1,0,0]")
    for k in range(4): E(f"v_rcp_f32 v{36+k}, v{36+k}")
    E("v_mov_b32 v9, 0x207" if first else f"v_pk_add_f32 v[10:11], v[10:11], v[{y+2}:{y+3}]")
    for p in range(2): E(f"v_pk_mul_f32 v[{36+2*p}:{37+2*p}], v[{y+2*p}:{y+2*p+1}], v[{36+2*p}:{37+2*p}]")
    o = 44 if first else 46
    E(f"v_cvt_pk_bf16_f32 v{o}, v36, v37\nv_cvt_pk_bf16_f32 v{o+1}, v38, v39")
    E(f"global_store_dwordx2 v69, v[{o}:{o+1}], s[18:19]{OSC}")
for k in range(4): E(f"v_cvt_f32_f64 v{28+k}, v[{F+2*k}:{F+2*k+1}]")
for p in range(2): E(f"v_pk_fma_f32 v[{28+2*p}:{29+2*p}], v[{N+2*p}:{N+2*p+1}], v[{P+2*p}:{P+2*p+1}], v[{28+2*p}:{29+2*p}]")
silu(28, True)
E(f"""
    s_cmp_ge_u32 s3, 8
    s_cbranch_scc1 L_e4
    v_subrev_u32 v69, {32*256}, v69
    s_waitcnt lgkmcnt(0)
""")
for k in range(4): E(f"v_cvt_f32_f64 v{28+k}, v[{12+2*k}:{13+2*k}]")
silu(28, False)
E(f"""
L_e4:
    v_add_f32 v10, v10, v11
    v_cmp_class_f32 vcc, v10, v9
    v_mov_b32 v2, 0
    s_cmp_lg_u32 s{S_SAFE}, 0
    s_cbranch_scc1 L_fin
    {"s_branch" if OPT["nosafe"] else "s_cbranch_vccz"} L_e5
    ds_write_b32 v2, v9 offset:{L_FLAG}
    s_waitcnt lgkmcnt(0)
L_e5:
    s_barrier                               ; B6
    ds_read_b32 v2, v2 offset:{L_FLAG}
    s_waitcnt lgkmcnt(0)
    v_readfirstlane_b32 s30, v2
    s_cmp_lg_u32 s30, 0
    s_cbranch_scc1 L_gosafe
L_fin:
""")
if OPT["stamps"]:
    E("s_waitcnt vmcnt(0)"); STAMP(13); STAMP_OUT()
if OPT["probe"] >= 0:
    T_ = ST0 + 2*OPT["probe"]
    E(f"""
    s_cmp_lg_u32 s3, {OPT["pw"]}
    s_cbranch_scc1 L_end
    s_cmp_lg_u32 s2, {OPT["pg"] if OPT["pg"] >= 0 else "s2"}
    s_cbranch_scc1 L_end
    s_sub_u32 s30, s{T_}, s{ST0}
    s_lshl_b32 s30, s30, 2
    s_add_u32 s30, s30, 3000
    s_min_u32 s30, s30, 20000
L_spin:
    s_memrealtime s[28:29]
    s_waitcnt lgkmcnt(0)
    s_sub_u32 s28, s28, s{ST0}
    s_cmp_lt_u32 s28, s30
    s_cbranch_scc1 L_spin
    """)
E(f"""
L_end:
    s_endpgm
; ---------------- fall back: redo the node terms, then evaluate edge by edge
L_gosafe:
    s_mov_b32 s{S_SAFE}, 16
    s_setprio 0
    s_waitcnt vmcnt(0) lgkmcnt(0)
    s_barrier
    s_branch L_restart
""")
out += outofline
for r in retries: E(r)
E(f"""
L_safe:
    v_and_b32 v2, 15, v1
    v_lshlrev_b32 v3, 3, v2
    v_add_u32 v3, {L_C}, v3
""")
for k in range(4):
    for s in range(4):
        E(f"ds_read_u16 v{80+4*k+s}, v3 offset:{128*k + 2*s}")
E("s_waitcnt lgkmcnt(0)")
for i in range(16):
    E(f"v_lshlrev_b32 v{80+i}, 16, v{80+i}\nv_mul_f32 v{80+i}, s40, v{80+i}")
E(f"""
    v_lshrrev_b32 v24, 4, v1
    v_mul_u32_u24 v24, 3, v24               ; 3*quarter
    s_movk_i32 s33, {NSTR}
    v_add_u32 v25, {L_NODE}, v{LN8}
    s_mov_b32 s34, s3
    s_mov_b32 s35, {POLL_MAX}
L_scell:
    s_lshl_b32 s30, s34, 10
    s_lshl_b32 s31, s{S_BUCK}, 3
    s_add_u32 s30, s30, s31
    s_add_u32 s30, s30, {WS_ROW}
    v_mov_b32 v26, s30
    global_load_dword v32, v26, s[20:21] sc1
    s_mul_i32 s30, s34, {SORTB//4}
    s_add_u32 s30, s30, {WS_REC//4}
    s_waitcnt vmcnt(0)
    v_bfe_u32 v28, v32, 12, 12              ; 3*count
    v_and_b32 v27, 0xfff, v32
    v_add_u32 v27, s30, v27
L_sver:
    v_mov_b32 v29, v1
    v_mov_b32 v31, 0
L_sv1:
    v_cmp_ge_u32 vcc, v28, v29
    s_and_saveexec_b64 s[48:49], vcc
    s_cbranch_execz L_sv2
    v_add_lshl_u32 v30, v27, v29, 2
    global_load_dword v32, v30, s[20:21] sc1
    s_waitcnt vmcnt(0)
    v_add_u32 v31, v31, v32
    s_mov_b64 exec, s[48:49]
    v_add_u32 v29, 64, v29
    s_branch L_sv1
L_sv2:
    s_mov_b64 exec, s[48:49]
""")
scan(31)
E(f"""
    s_nop 0
    v_readlane_b32 s30, v31, 63
    s_cmp_eq_u32 s30, s{S_TAG+1}
    s_cbranch_scc1 L_sok
    s_sub_u32 s35, s35, 1
    s_cbranch_scc0 L_sver
    s_branch L_sdone
L_sok:
    v_mov_b32 v29, v24
L_srec:
    v_cmp_gt_u32 vcc, v28, v29
    s_and_saveexec_b64 s[48:49], vcc
    s_cbranch_execz L_snext
    v_add_lshl_u32 v30, v27, v29, 2
    global_load_dwordx3 v[32:34], v30, s[20:21] offset:4 sc1
    s_waitcnt vmcnt(0)
    v_and_b32 v30, 0x3fff00, v32
    v_add_u32 v30, v30, v{LN16}
    buffer_load_dwordx4 v[36:39], v30, s[36:39], 0 offen sc1
    v_lshrrev_b32 v31, 24, v32
    v_mad_u32_u24 v31, v31, s33, v25
    ds_read_b64 v[40:41], v31 offset:512
    v_lshlrev_b32 v44, 16, v33
    v_and_b32 v45, 0xffff0000, v33
    v_lshlrev_b32 v46, 16, v34
    v_and_b32 v47, 0xffff0000, v34
    s_waitcnt vmcnt(0) lgkmcnt(0)
    v_lshlrev_b32 v48, 16, v40
    v_and_b32 v49, 0xffff0000, v40
    v_lshlrev_b32 v50, 16, v41
    v_and_b32 v51, 0xffff0000, v41
""")
for s in range(4):
    E(f"v_lshlrev_b32 v52, 16, v{36+s}\nv_add_f32 v{48+s}, v{48+s}, v52")
    for k in range(4):
        E(f"v_fmac_f32 v{48+s}, v{44+k}, v{80+4*k+s}")
for s in range(4): E(f"v_exp_f32 v{48+s}, v{48+s}")
E("s_nop 0")
for s in range(4): E(f"v_add_f32 v{48+s}, 1.0, v{48+s}")
for s in range(4): E(f"v_rcp_f32 v{48+s}, v{48+s}")
E("s_nop 0")
for s in range(4): E(f"v_mul_f32 v{48+s}, v{48+s}, v{36+s}")
for s in range(4): E(f"v_cvt_f64_f32 v[{54+2*s}:{55+2*s}], v{48+s}")
for s in range(4): E(f"ds_add_f64 v31, v[{54+2*s}:{55+2*s}] offset:{128*s}")
E(f"""
    s_mov_b64 exec, s[48:49]
    v_add_u32 v29, 12, v29
    s_branch L_srec
L_snext:
    s_mov_b64 exec, s[48:49]
    s_add_u32 s34, s34, {NW}
    s_cmp_lt_u32 s34, {NCHUNK}
    s_cbranch_scc1 L_scell
L_sdone:
    s_waitcnt lgkmcnt(0)
    s_barrier
    v_mov_b32 v3, 0
""")
for k in range(4): E(f"v_mov_b32 v{N+k}, 0\nv_mov_b32 v{P+k}, 1.0"); E(aggread(F, k, 32))
E(f"""
    s_branch L_mdone
L_codeend:
.section .rodata,"a"
.p2align 6
.amdhsa_kernel {NAME}
.amdhsa_next_free_vgpr 168
.amdhsa_next_free_sgpr 102
.amdhsa_accum_offset 168
.amdhsa_group_segment_fixed_size 0
.amdhsa_kernarg_size 80
.amdhsa_user_sgpr_count 2
.amdhsa_user_sgpr_kernarg_segment_ptr 1
.amdhsa_system_sgpr_workgroup_id_x 1
.end_amdhsa_kernel
""")
if OPT["al"]:
    i0 = out.index("L_L0:"); i1 = out.index("L_mdone:")
    mid = []; odd = False
    for l in out[i0:i1]:
        t = l.strip()
        if t.endswith(":") or t.startswith(";"): mid.append(l); continue
        four = t.startswith(("s_", "v_exp"))
        if not four and odd and OPT["al"] >= 3:
            mid.append("    s_nop 0"); odd = False
        if four: odd = not odd
        mid.append(l)
    pre = [".p2align 6, , 60"] if OPT["al"] != 2 else [".p2align 6, , 60", "    s_nop 0"]
    out = out[:i0] + pre + mid + out[i1:]
if OPT["drop"]:
    i0 = out.index("L_L0:"); i1 = out.index("L_mdone:")
    pats = {1: ("smfmac",), 2: ("mfma",), 3: ("32x32x8",), 4: ("smfmac",), 5: ("v_exp",)}[OPT["drop"]]
    repl = {4: "    s_nop 2", 5: "    s_nop 1"}.get(OPT["drop"])
    mid = []
    for l in out[i0:i1]:
        if any(x in l for x in pats):
            if repl: mid.append(repl)
        else: mid.append(l)
    if OPT["drop"] == 3: mid = [l.replace("v[88:103] cbsz", "0 cbsz").replace("v[72:87] cbsz", "0 cbsz") for l in mid]
    out = out[:i0] + mid + out[i1:]
if OPT["nochain"]:
    i0 = out.index("L_L0:"); i1 = out.index("L_mdone:")
    out = out[:i0] + [l for l in out[i0:i1] if not any(x in l for x in ("v_exp", "v_pk_", "mfma", "v_rcp", "v_cvt"))] + out[i1:]
open(sys.argv[1], "w").write("\n".join(out) + "\n")
```

```python
import sys, struct

OPT = dict(hb=1, pgs=0, al=0, sl=0, sigw=0, aue=0, mcl=2, b31=1, split=3, grp=0, allg=0, eag=1, stamps=0, force_safe=0, nogather=0, nosafe=0, prio=2, gsc1=1, osc=1, codepf=1, srcmask=0x3fff00, nrec=0, warm=0,
           nochain=0, probe=-1, pw=-1, pg=-1, gpf=32, early=0, cnt=0, pollmax=200000, pa=6, pb=3, pc=2, p0=3, p1=3, ptime=0,
           dist=2, ldearly=0, drop=0, wgate=0, gate=0, gate2=1, rst=0, rsc1=1, nover=0, p2gate=1, p2sleep=0, hold=0, slate=2, lpos=0, p1st=1, sig=2, gpace=4, gwin=-1, gp=0xf448c, ghold=0, nte=0, ewhen=6, eah=0, wpf=1, gpe=40, oneb=0, tagl=0, p0e=0, aul=0, t0f=0, pre=0, prelate=0, ntx=0, rpace=-1, p2wait=0)
for a in sys.argv[2:]:
    k, v = a.split("=")
    assert k in OPT, k
    OPT[k] = int(v, 0)

out = []
def E(s=""):
    for line in s.split("\n"):
        line = line.strip()
        if not line:
            continue
        if line.endswith(":") or line.startswith(".") or line.startswith(";"):
            out.append(line)
        else:
            out.append("    " + line)

def f32(x):
    return "0x%08x" % struct.unpack("<I", struct.pack("<f", x))[0]

NAME = "standalone__edge_featured_mpnn_egc__graph_kernel"
LOG2E = 1.4426950408889634
NB = 80; NBUCK = 125; CHUNK = 1280; NCHUNK = 250
NW = 12
G_HALF = 10000 * 256
WS0 = 0
WS_REC = 0x500000
WS_ROW = 0x900000
WS_FL2 = 0x980000
WS_TAG = 0x9c0000
SORTB = CHUNK * 12 + 512
WS_STAMP = 0x1000000
L_CNT = 0; L_SOFF = 512
L_SCNT = 1024
L_CTR = 1536; L_RD = 1540; L_DONE2 = 1544; L_FLAG = 1548; L_NST = 1552; L_GST = 1556; L_GOK = 1560; L_AU = 1564; L_DYN = 1568; L_EAOK = 1572
L_DUM = L_SOFF
L_LIST = 2048
L_LISTC = L_LIST + 4096
SSTR = 272
L_SRC = L_LIST + 8192
SRCB = 80 * SSTR + 32
L_EA = L_SRC + SRCB
L_EAEND = L_EA + 2 * SRCB
L_SORT = L_EA
L_WBV = (L_EAEND + 255) // 256 * 256; L_X = L_WBV + 32768; L_WAU = L_X + 20480; L_C = L_WAU + 32768
LDS = L_C + 1024
L_NODE = L_WBV; NSTR = 648
assert L_NODE + 80 * NSTR <= L_WAU and LDS <= 163840 and L_EA % 16 == 0
NULL_SRC = 0x7fffff00
POLL_MAX = OPT["pollmax"]
LDS_MAX = 20 * POLL_MAX
SC1 = " sc1"
NTE = " nt" if OPT["nte"] else ""
NTX = " nt" if OPT["ntx"] else ""

S_HALF, S_BUCK, S_P = 22, 23, 24
S_SAFE, S_TAG = 25, 26
S_R, S_M, S_IT = 70, 71, 72
S_TAGRAW = 47
ST0 = 74

def ESTAMP(i):
    if OPT["early"] == 1 or (OPT["early"] and i == 0): E(f"s_memrealtime s[{ST0+2*i}:{ST0+2*i+1}]")
def FSTAMP(i):
    if OPT["early"] == 2: E(f"s_memrealtime s[{ST0+2*i}:{ST0+2*i+1}]\ns_waitcnt lgkmcnt(0)")
def STAMP(i):
    if OPT["stamps"] == 2:
        if i == 0: E(f"s_memrealtime s[{ST0}:{ST0+1}]")
        if i == 13: E(f"s_memrealtime s[{ST0+26}:{ST0+27}]\ns_waitcnt lgkmcnt(0)")
        return
    if OPT["early"] and 1 <= i <= 7: return
    if OPT["early"] and i == 0: return ESTAMP(0)
    if OPT["stamps"] or (OPT["probe"] >= 0 and i == OPT["probe"]):
        E(f"s_memrealtime s[{ST0+2*i}:{ST0+2*i+1}]\ns_waitcnt lgkmcnt(0)")
    elif OPT["probe"] >= 0 and i == 0:
        E(f"s_memrealtime s[{ST0}:{ST0+1}]")
NSTAMP = 14
def STAMP_OUT():
    if OPT["stamps"]:
        E(f"""
        s_lshl_b32 s30, s2, 4
        s_add_u32 s30, s30, s3
        s_lshl_b32 s30, s30, 6
        s_add_u32 s30, s30, {WS_STAMP - 0x100000}
        s_load_dwordx2 s[20:21], s[0:1], 72
        s_waitcnt lgkmcnt(0)
        s_mov_b64 exec, -1
        v_mov_b32 v3, s30""")
        for i in (range(NSTAMP) if OPT["stamps"] == 1 else (0, 8, 13)):
            E(f"v_mov_b32 v2, s{ST0+2*i}\nglobal_store_dword v3, v2, s[20:21] offset:{4*i}")
        E("s_waitcnt vmcnt(0)")

A1, A2, IDX, EAC, LN16, ASEL, CW, LN8 = 4, 8, 12, 13, 14, 16, 18, 20
LP, WS4, WN2, EA, XA, WE, OFS, AG, T, N, P, F = 22, 24, 28, 30, 32, 34, 36, 40, 44, 52, 56, 60
D0, D1, G = 72, 88, 104

def finish_tag():
    E(f"""
    s_mul_i32 s{S_TAG+1}, s{S_TAGRAW}, 0x85ebca6b
    s_mul_i32 s{S_TAG}, s{S_TAGRAW}, 0x9e3779b1
    s_add_u32 s{S_TAG+1}, s{S_TAG+1}, 0x5bd1e995
    s_add_u32 s{S_TAG}, s{S_TAG}, 0x7f4a7c15
    """)
def get_tag(lab, q):
    E(f"""
    s_cmp_lg_u32 s{S_SAFE}, 0
    s_cbranch_scc1 L_tag_{lab}
    v_mov_b32 v2, 0
    s_mov_b32 s31, {LDS_MAX}
L_tg_{lab}:
    ds_read_b128 v[{q}:{q+3}], v2 offset:{L_SCNT + 124*4}
    s_sub_u32 s31, s31, 1
    s_cbranch_scc1 L_tag_{lab}
    s_waitcnt lgkmcnt(0)
    v_readfirstlane_b32 s30, v{q+3}
    v_readfirstlane_b32 s{S_TAGRAW}, v{q+1}
    s_cmp_lg_u32 s30, 4
    s_cbranch_scc1 L_tg_{lab}
    """)
    finish_tag()
    E(f"L_tag_{lab}:")

def lds_wait(addr, mask, val, tag, sleep=0, ne=False):
    E(f"""
    v_mov_b32 v2, 0
    s_mov_b32 s31, {LDS_MAX}
    {f"s_branch L_wf_{tag}" if sleep else ""}
L_w_{tag}:
    {f"s_sleep {sleep}" if sleep else ""}
L_wf_{tag}:
    ds_read_b32 v3, v2 offset:{addr}
    s_sub_u32 s31, s31, 1
    s_cbranch_scc1 L_wd_{tag}
    s_waitcnt lgkmcnt(0)
    v_readfirstlane_b32 s30, v3
    s_and_b32 s30, s30, {mask}
    s_cmp_lg_u32 s30, {val}
    s_cbranch_scc{0 if ne else 1} L_w_{tag}
L_wd_{tag}:
    """)
SCAN = ("row_shr:1 row_mask:0xf bank_mask:0xf bound_ctrl:0", "row_shr:2 row_mask:0xf bank_mask:0xf bound_ctrl:0",
        "row_shr:4 row_mask:0xf bank_mask:0xf bound_ctrl:0", "row_shr:8 row_mask:0xf bank_mask:0xf bound_ctrl:0",
        "row_bcast:15 row_mask:0xa bank_mask:0xf", "row_bcast:31 row_mask:0xc bank_mask:0xf")
def scan(r):
    for m in SCAN:
        E(f"s_nop 1\nv_add_u32_dpp v{r}, v{r}, v{r} {m}")

def main_consts(sm=48):
    E(f"""
    v_and_b32 v2, 15, v1                    ; n'
    v_lshrrev_b32 v3, 4, v1
    v_lshl_add_u32 v3, v2, 2, v3
    v_lshlrev_b32 v3, 1, v3
    v_add_u32 v3, {L_C}, v3
    ds_read_u16 v64, v3                     ; C[0..3][feature 4n'+s]
    ds_read_u16 v65, v3 offset:128
    ds_read_u16 v66, v3 offset:256
    ds_read_u16 v67, v3 offset:384
    v_and_b32 v63, 3, v1                    ; q
    v_lshlrev_b32 v{LN8}, 3, v2
    v_lshlrev_b32 v{LN8+1}, 3, v2
    v_lshlrev_b32 v{LN16}, 4, v2
    v_lshlrev_b32 v{LN16+1}, 4, v2
    v_mov_b32 v{IDX}, 0x8888
    v_bfe_u32 v60, v1, 3, 2                 ; s = (l&31)>>3
    v_bfe_u32 v61, v1, 2, 1                 ; h = (l>>2)&1
    v_lshrrev_b32 v62, 5, v1                ; ha
    v_and_b32 v2, 1, v60
    v_lshlrev_b32 v2, 4, v2
    v_lshlrev_b32 v2, v2, s46               ; 1.0 (bf16) in half s&1
    v_lshrrev_b32 v60, 1, v60               ; s>>1
    v_lshl_add_u32 v3, v61, 1, v60
    v_sub_u32 v63, v63, v62                 ; q - ha : 0 -> A1, 2 -> A2
    v_lshl_add_u32 v3, v63, 1, v3
    v_and_b32 v63, 1, v63
    v_lshl_or_b32 v3, v63, 4, v3
    v_xor_b32 v61, v61, v62
    v_lshl_or_b32 v60, v61, 4, v60
    """)
    mk = [f"s[{sm}:{sm+1}]", f"s[{sm+2}:{sm+3}]", f"s[{sm+4}:{sm+5}]", "vcc"]
    for i in range(8):
        E(f"v_cmp_eq_u32 {mk[i%4]}, {i}, v3")
        if i % 4 == 3:
            for j in range(i-3, i+1):
                E(f"v_cndmask_b32 v{A1+j}, 0, v2, {mk[j%4]}")
    E(f"""
    v_cmp_eq_u32 {mk[0]}, 0, v60
    v_cmp_eq_u32 {mk[1]}, 1, v60
    v_and_b32 v63, 3, v1
    v_lshlrev_b32 v61, 3, v63
    v_cndmask_b32 v{ASEL}, 0, v2, {mk[0]}
    v_cndmask_b32 v{ASEL+1}, 0, v2, {mk[1]}
    v_add_u32 v{EAC}, {L_EA - 2*L_SRC}, v61
    s_lshl_b32 s30, s3, 9
    s_sub_u32 s31, s30, 4096
    s_max_i32 s31, s31, 0
    s_add_u32 s30, s30, s31
    s_add_u32 s30, s30, {L_LIST}
    v_lshrrev_b32 v2, 4, v1
    v_lshl_add_u32 v{LP}, v2, 4, s30
    v_bfe_u32 v3, v1, 2, 2
    v_lshl_add_u32 v{LP+1}, v3, 4, s30
    v_lshl_add_u32 v{LP+1}, v2, 2, v{LP+1}
    s_lshl_b32 s30, s3, 2
    s_add_u32 s30, s30, 32
    v_add_u32 v2, s30, v2
    v_mul_u32_u24 v68, {NSTR}, v2
    v_add_u32 v68, v68, v{LN8}
    v_add_u32 v68, {L_NODE - 32*NSTR}, v68
    s_mul_i32 s30, s{S_BUCK}, {NB*256}
    s_lshl_b32 s31, s{S_HALF}, 7
    s_add_u32 s30, s30, s31
    v_lshl_add_u32 v69, v2, 8, v{LN8}
    v_add_u32 v69, s30, v69
    s_waitcnt lgkmcnt(0)
    v_lshlrev_b32 v60, 16, v64
    v_lshlrev_b32 v61, 16, v65
    v_lshlrev_b32 v62, 16, v66
    v_lshlrev_b32 v63, 16, v67
    v_mul_f32 v60, s40, v60
    v_mul_f32 v61, s40, v61
    v_mul_f32 v62, s40, v62
    v_mul_f32 v63, s40, v63
    v_cvt_pk_bf16_f32 v{CW}, v60, v61
    v_cvt_pk_bf16_f32 v{CW+1}, v62, v63
    """)

def gload(g, o):
    return f"buffer_load_dwordx4 v[{g}:{g+3}], v{o}, s[36:39], 0 offen" + (SC1 if OPT["gsc1"] else "")
def oadd(o):
    return f"v_lshl_add_u64 v[{o}:{o+1}], v[{o}:{o+1}], 0, v[{LN16}:{LN16+1}]"

def pk_steps(Gc, q, first):
    t = T + 4*(q & 1); h = Gc + 4*q
    if first and q == 0:
        return [f"v_pk_add_f32 v[{P+2*p}:{P+2*p+1}], v[{t+2*p}:{t+2*p+1}], 1.0 op_sel_hi:[1,0]" for p in range(2)]
    r = []
    for p in range(2):
        n = f"v[{Gc+2*p}:{Gc+2*p+1}]" if (first and q == 1) else f"v[{N+2*p}:{N+2*p+1}]"
        r.append(f"v_pk_fma_f32 v[{N+2*p}:{N+2*p+1}], {n}, v[{t+2*p}:{t+2*p+1}], {n}")
    for p in range(2):
        r.append(f"v_pk_fma_f32 v[{N+2*p}:{N+2*p+1}], v[{h+2*p}:{h+2*p+1}], v[{P+2*p}:{P+2*p+1}], v[{N+2*p}:{N+2*p+1}]")
    for p in range(2):
        r.append(f"v_pk_fma_f32 v[{P+2*p}:{P+2*p+1}], v[{P+2*p}:{P+2*p+1}], v[{t+2*p}:{t+2*p+1}], v[{P+2*p}:{P+2*p+1}]")
    return r
def exps(Dc, q):
    t = T + 4*(q & 1)
    return [f"v_exp_f32 v{t+s}, v{Dc+4*s+q}" for s in range(4)]
def weave(main, extra):
    for i, x in enumerate(main):
        E(x)
        for y in extra.get(i, []):
            E(y)
def m_a(Dn): return f"v_mfma_f32_32x32x8_bf16 v[{Dn}:{Dn+15}], v[{ASEL}:{ASEL+1}], v[{XA}:{XA+1}], 0"
def m_e(Dn, abid): return f"v_mfma_f32_16x16x4_4b_bf16 v[{Dn}:{Dn+15}], v[{EA}:{EA+1}], v[{CW}:{CW+1}], v[{Dn}:{Dn+15}] cbsz:2 abid:{abid}"
def m_s(Dn, A, g): return f"v_smfmac_f32_32x32x32_bf16 v[{Dn}:{Dn+15}], v[{A}:{A+3}], v[{g}:{g+7}], v{IDX}"

outofline = []
def emit_to(lst, fn):
    global out
    keep = out; out = []
    fn(); lst += out; out = keep
assert OPT["pa"] == 6 and OPT["prio"] == 2
DIST = OPT["dist"]; EARLY = OPT["ldearly"]
assert not (EARLY and DIST == 4)
def phase(u, loads):
    tag = f"{'L' if loads else 'T'}{u}"
    Dc, Dn = ((D0, D1), (D1, D0))[u & 1]
    gc = G + 16*u; gn = G + 16*((u+1) & 3); gl = G + 16*((u+DIST) & 3)
    ld = loads and not OPT["nogather"]
    kw = (u + DIST + EARLY) & 3
    wsgrp = 128 * ((3 - kw + u + DIST + EARLY) // 4 + 1) if kw == 3 else None
    def addloads(ex, pos):
        if loads:
            ex.setdefault(0, []).append(oadd(OFS)); ex.setdefault(2, []).append(oadd(OFS+2))
        if ld:
            for q in range(4): ex.setdefault(pos[q], []).append(gload(gl+4*q, OFS+q))
    E(f"L_{tag}:")
    SL = OPT["slate"]
    if not SL: E(f"s_waitcnt vmcnt({4*(DIST-2)})")
    E(m_a(Dn))
    for x in exps(Dc, 0): E(x)
    E(m_e(Dn, (u+1) & 3) if SL else m_s(Dn, A1, gn))
    for x in exps(Dc, 1): E(x)
    ex = {0: ["s_waitcnt lgkmcnt(0)"], 2: [f"ds_read_b64 v[{XA}:{XA+1}], v{AG + ((u+2) & 3)} offset:512"]}
    if u % 2 == 0:
        p = AG + ((u+2) & 3)
        ex[0].append(f"v_lshl_add_u64 v[{p}:{p+1}], v[{WN2}:{WN2+1}], 0, v[{LN8}:{LN8+1}]")
    if EARLY: addloads(ex, (1, 3, 5, 6))
    elif loads: ex[1] = [f"ds_read_b128 v[{OFS}:{OFS+3}], v{WS4+kw}"]
    if u == 2:
        ex.setdefault(4, []).append(f"v_lshl_add_u32 v{WE}, v{WE}, 1, v{EAC}")
        if SL: ex.setdefault(7, []).append(f"ds_read_b64 v[{EA}:{EA+1}], v{WE}")
    E(f"s_bitcmp1_b32 s{S_M}, 0\ns_cbranch_scc1 L_{tag}f")
    weave(pk_steps(gc, 0, False) + pk_steps(gc, 1, False), ex)
    E(f"L_{tag}r:")
    def first():
        E(f"L_{tag}f:")
        weave(pk_steps(gc, 0, True) + pk_steps(gc, 1, True), ex)
        E(f"s_branch L_{tag}r")
    emit_to(outofline, first)
    if SL:
        if OPT["ptime"]: E(f"s_memrealtime s[28:29]\ns_mov_b32 m0, s{S_R}")
        E(f"s_waitcnt vmcnt({4*(DIST-2) + (4 if (EARLY and loads) else 0) + (2 if SL == 2 else 0)})")
        E(m_s(Dn, A1, gn))
    else:
        E(m_e(Dn, (u+1) & 3))
    for x in exps(Dc, 2): E(x)
    if SL == 2: E(f"s_waitcnt vmcnt({4*(DIST-2) + (4 if (EARLY and loads) else 0)})")
    if OPT["ptime"]: E(f"s_memrealtime s[30:31]")
    E(m_s(Dn, A2, gn+8))
    for x in exps(Dc, 3): E(x)
    ex = {0: ["s_waitcnt lgkmcnt(0)"], 4: [], 6: [], 7: [f"s_sub_u32 s{S_R}, s{S_R}, 1"], 10: [f"s_lshr_b32 s{S_M}, s{S_M}, 1"], 11: [f"s_bitcmp1_b32 s{S_M}, 0"]}
    if OPT["ptime"]: ex[0] += ["v_writelane_b32 v70, s28, m0", "v_writelane_b32 v71, s30, m0"]
    if not EARLY: addloads(ex, (1, 3, 5, 9) if DIST == 4 else ((1, 3, 5, 7), (1, 2, 3, 4), (4, 6, 8, 10), (2, 5, 8, 10))[OPT['lpos']])
    elif loads: ex[1] = [f"ds_read_b128 v[{OFS}:{OFS+3}], v{WS4+kw}"]
    if u == 1:
        ex[4].append(f"ds_read_b64 v[{WN2}:{WN2+1}], v{LP} offset:{128+64}")
        ex[6].append(f"ds_read_b32 v{WE}, v{LP+1} offset:128")
    if u == 2 and not SL:
        ex[4].append(f"ds_read_b64 v[{EA}:{EA+1}], v{WE}")
    if u == 3:
        ex[4].append(f"ds_read_b64 v[{WN2}:{WN2+1}], v{LP} offset:{128+64+8}")
        ex.setdefault(8, []).append(f"v_lshl_add_u64 v[{LP}:{LP+1}], v[{LP}:{LP+1}], 0, s[44:45]")
    if wsgrp and loads: ex[6].append(f"ds_read_b128 v[{WS4}:{WS4+3}], v{LP} offset:{wsgrp}")
    weave(pk_steps(gc, 2, False) + pk_steps(gc, 3, False), ex)
    E(f"s_cbranch_scc1 L_{tag}z\nL_{tag}y:")
    def fin():
        E(f"""
L_{tag}z:
        v_rcp_f32 v{P}, v{P}
        v_rcp_f32 v{P+1}, v{P+1}
        v_rcp_f32 v{P+2}, v{P+2}
        v_rcp_f32 v{P+3}, v{P+3}
        v_pk_mul_f32 v[{N}:{N+1}], v[{N}:{N+1}], v[{P}:{P+1}]
        v_pk_mul_f32 v[{N+2}:{N+3}], v[{N+2}:{N+3}], v[{P+2}:{P+3}]
        """)
        for s_ in range(4):
            E(f"v_cvt_f64_f32 v[{F+2*s_}:{F+2*s_+1}], v{N+s_}")
            if s_: E(f"ds_add_f64 v{AG+u}, v[{F+2*s_-2}:{F+2*s_-1}] offset:{128*(s_-1)}")
        E(f"ds_add_f64 v{AG+u}, v[{F+6}:{F+7}] offset:384")
        E(f"s_branch L_{tag}y")
    emit_to(outofline, fin)
    if OPT["prio"] == 2:
        E(f"s_bitcmp1_b32 s{S_IT}, s{S_R}\ns_cbranch_scc1 L_{tag}q\nL_{tag}p:")
        def pr():
            E(f"""
L_{tag}q:
            s_setprio 0
            s_cmp_le_u32 s{S_R}, {OPT["pc"]}
            s_cbranch_scc1 L_{tag}p
            s_setprio 1
            s_cmp_le_u32 s{S_R}, {OPT["pb"]}
            s_cbranch_scc1 L_{tag}p
            s_setprio 2
            s_mov_b64 exec, 1
            ds_add_u32 v2, v3 offset:{L_DYN}
            s_mov_b64 exec, -1
            s_branch L_{tag}p
            """)
        emit_to(outofline, pr)
    if u == 3 and OPT["prio"] == 1:
        E(f"""
        s_add_u32 s{S_IT}, s{S_IT}, 1
        s_setprio 0
        s_cmp_gt_u32 s{S_IT}, 2
        s_cbranch_scc1 L_{tag}p
        s_setprio 1
        s_cmp_eq_u32 s{S_IT}, 2
        s_cbranch_scc1 L_{tag}p
        s_setprio 2
L_{tag}p:
        """)
    if loads:
        E(f"s_cmp_le_u32 s{S_R}, {DIST}")
        if u < 3: E(f"s_cbranch_scc1 L_T{u+1}")
        else: E("s_cbranch_scc0 L_L0")
    else:
        E(f"s_waitcnt vmcnt(0)\ns_cmp_eq_u32 s{S_R}, 0")
        if u < 3: E("s_cbranch_scc1 L_mdone")
        else: E("s_cbranch_scc0 L_T0")

E(f"""
; Edge-gated message passing in one launch, one workgroup per (bucket of 80 nodes, half of the features).
;  sum_i h_i / (1 + t_i), t = exp(-z), is carried as a fraction N / P along a node's edges (exact algebra); if that
; @launch grid=(256,1,1) block=({64*NW},1,1) lds={LDS}
.amdgcn_target "amdgcn-amd-amdhsa--gfx950"
.text
.globl {NAME}
.p2align 8
.type {NAME},@function
{NAME}:
""")
if OPT["stamps"] == 1 and OPT["early"] != 1:
    for i in range(NSTAMP): E(f"s_mov_b64 s[{ST0+2*i}:{ST0+2*i+1}], 0")
STAMP(0)
E(f"""
    s_load_dwordx16 s[4:19], s[0:1], 0
    s_load_dwordx2 s[20:21], s[0:1], 72
""")
if OPT["codepf"]:
    E(f"""
    s_getpc_b64 s[28:29]
L_pc:
    v_lshlrev_b32 v3, 7, v0
    v_cmp_gt_u32 vcc, L_codeend-L_pc-64, v3
    s_cbranch_vccz L_nopf
    s_mov_b64 exec, vcc
    global_load_dword v164, v3, s[28:29]
    s_mov_b64 exec, -1
L_nopf:
    """)
E(f"""
    v_lshrrev_b32 v2, 6, v0
    v_and_b32 v1, 63, v0
    v_readfirstlane_b32 s3, v2
    {"s_bfe_u32 s%d, s2, 0x10002" % S_HALF if OPT["hb"] else "s_and_b32 s%d, s2, 1" % S_HALF}
    {"s_and_b32 s30, s2, 3" if OPT["hb"] else "s_bfe_u32 s30, s2, 0x20001"}
    {"s_mul_i32 s30, s30, 31" if OPT["b31"] else "s_lshl_b32 s30, s30, 5"}
    s_lshr_b32 s31, s2, 3
    s_add_u32 s{S_BUCK}, s30, s31
    {"s_cmp_eq_u32 s30, 93                    ; 31 buckets per XCD of a half, 32 on the last" if OPT["b31"] else "s_cmp_ge_u32 s2, 256"}
    {"s_subb_u32 s31, s31, 0" if OPT["b31"] else "s_cbranch_scc1 L_end"}
    {"s_cmp_ge_i32 s31, 31" if OPT["b31"] else "s_cmp_ge_u32 s%d, %d" % (S_BUCK, NBUCK)}
    s_cbranch_scc1 L_end
    s_lshl_b32 s{S_P}, s{S_BUCK}, 1
    s_add_u32 s{S_P}, s{S_P}, s{S_HALF}
    s_mov_b32 s{S_SAFE}, 0
L_restart:
    s_cmp_ge_u32 s3, 4
    s_cbranch_scc1 L_nosort
    v_mov_b32 v48, 0
    v_mov_b32 v49, 0
    v_mov_b32 v50, 0
    v_mov_b32 v51, 0
    v_lshlrev_b32 v10, 4, v1
    ds_write_b128 v10, v[48:51] offset:{L_SCNT}
    s_mul_i32 s30, s{S_P}, {CHUNK*4}
    v_lshl_add_u32 v3, v0, 4, s30
    s_add_u32 s30, s30, 4096
    v_lshl_add_u32 v18, v0, 2, s30
    v_lshlrev_b32 v10, 1, v3
    v_lshlrev_b32 v11, 1, v18
    v_mov_b32 v17, {WS_TAG}
    s_waitcnt lgkmcnt(0)
    global_load_dwordx4 v[4:7], v3, s[10:11]{NTE}
    global_load_dword v8, v18, s[10:11]{NTE}
    global_load_dword v43, v17, s[20:21]
""")
def preclear():
    E(f"""
    s_cmp_lg_u32 s{S_SAFE}, 0
    s_cbranch_scc1 L_nopre
    s_mul_i32 s30, s{S_HALF}, {G_HALF}
    s_mul_i32 s31, s{S_BUCK}, {NB*256}
    s_add_u32 s30, s30, s31
    s_add_u32 s30, s30, {4096*(5-OPT["pre"])}
    v_lshl_add_u32 v19, v0, 4, s30
    """)
    for i in range(OPT["pre"]):
        E("global_store_dwordx4 v19, v[48:51], s[20:21] sc1")
        if i + 1 < OPT["pre"]: E("v_add_u32 v19, 4096, v19")
    E("L_nopre:")
if OPT["pre"] and not OPT["prelate"]: preclear()
E(f"""
    {"" if OPT["oneb"] else "s_barrier"}
""")
if OPT["ewhen"] == 0: E(f"""
    global_load_dwordx4 v[12:15], v3, s[8:9]{NTE}
    global_load_dword v16, v18, s[8:9]{NTE}
    global_load_dwordx4 v[52:55], v10, s[6:7]{NTE}
    global_load_dwordx4 v[56:59], v10, s[6:7] offset:16{NTE}
    global_load_dwordx2 v[60:61], v11, s[6:7]{NTE}
""")
E("s_barrier                               ; B0b")
if OPT["ewhen"] == 7: E(f"""
    global_load_dwordx4 v[12:15], v3, s[8:9]{NTE}
    global_load_dword v16, v18, s[8:9]{NTE}
    global_load_dwordx4 v[52:55], v10, s[6:7]{NTE}
    global_load_dwordx4 v[56:59], v10, s[6:7] offset:16{NTE}
    global_load_dwordx2 v[60:61], v11, s[6:7]{NTE}
""")
if OPT["pre"] and OPT["prelate"]: preclear()
E(f"""
    s_branch L_sort
L_nosort:
    s_and_b32 s32, s3, 3                    ; tau
    s_lshr_b32 s33, s3, 3
    v_lshrrev_b32 v2, 4, v1                 ; g
    v_and_b32 v4, 15, v1
    s_lshl_b32 s30, s32, 2
    v_add_u32 v6, s30, v2                   ; row&15
    v_xor_b32 v7, v4, v6
    v_lshlrev_b32 v7, 4, v7
    v_lshl_add_u32 v7, v6, 8, v7
    s_mul_i32 s73, s{S_BUCK}, {NB*256}
    s_mul_i32 s31, s33, {3*4096}
    s_add_u32 s30, s73, s31
    v_add_u32 v7, s30, v7
    v_add_u32 v8, 0x1000, v7
    v_add_u32 v9, 0x2000, v7
    s_lshl_b32 s30, s32, 10
    s_add_u32 s31, s31, s30
    s_add_u32 m0, s31, {L_X}
    v_subrev_u32 v30, 256, v0               ; t = 0..511
    v_lshlrev_b32 v31, 4, v30
    v_mov_b32 v36, 0
    v_mov_b32 v37, 0
    v_mov_b32 v38, 0
    v_mov_b32 v39, 0
    v_add_u32 v40, {L_EA}, v31
    ds_write_b128 v40, v[36:39]
    ds_write_b128 v40, v[36:39] offset:8192
""")
if OPT["wpf"]:
    E(f"""
    s_lshr_b32 s30, s2, 3
    s_lshl_b32 s30, s30, 2
    v_add_u32 v3, s30, v1
    v_and_b32 v3, 127, v3
    s_lshl_b32 s30, s{S_HALF}, 7
    s_cmp_eq_u32 s3, 4
    s_cselect_b32 s31, 0x8000, 0
    s_add_u32 s30, s30, s31
    v_lshl_add_u32 v3, v3, 8, s30
    s_waitcnt lgkmcnt(0)
    s_cmp_lg_u32 s33, 0
    s_cbranch_scc1 L_nowpf
    s_cmp_eq_u32 s3, 5
    s_cselect_b32 s34, s14, s16
    s_cselect_b32 s35, s15, s17
    s_cmp_eq_u32 s3, 7
    s_cselect_b32 s34, s12, s34
    s_cselect_b32 s35, s13, s35
    s_mov_b64 exec, 0xffff
    global_load_dword v167, v3, s[34:35]
    s_mov_b64 exec, -1
L_nowpf:
    """)
    if OPT["wpf"] == 2:
        E(f"""
        s_cmp_lg_u32 s3, 8
        s_cbranch_scc1 L_notch
        s_mul_i32 s30, s{S_P}, {CHUNK*4}
        v_mov_b32 v3, s30
        v_lshlrev_b32 v5, 1, v3
        v_lshlrev_b32 v6, 21, v1
        s_mov_b64 exec, 1
        global_load_dword v167, v3, s[8:9]
        global_load_dword v166, v5, s[6:7]
        s_mov_b64 exec, 31
        global_load_dword v165, v6, s[20:21] sc1
        s_mov_b64 exec, 3
        global_load_dword v164, v6, s[18:19] sc1
        s_mov_b64 exec, -1
L_notch:
        """)
E(f"""
    s_waitcnt lgkmcnt(0)
    {"" if OPT["oneb"] else "s_barrier"}
""")
if not OPT["t0f"]: E(f"""
    global_load_lds_dwordx4 v7, s[4:5]{NTX}
    s_add_u32 m0, m0, 0x1000
    s_cmp_lg_u32 s33, 0
    global_load_lds_dwordx4 v8, s[4:5]{NTX}
    s_cbranch_scc1 L_x2
    s_add_u32 m0, m0, 0x1000
    s_nop 0
    global_load_lds_dwordx4 v9, s[4:5]{NTX}
L_x2:
    s_barrier
""")
else: E(f"""
    s_mov_b32 s29, m0
    s_cmp_lg_u32 s33, 0
    s_cbranch_scc1 L_x2
    global_load_lds_dwordx4 v7, s[4:5]
    s_add_u32 s29, s29, 0x1000
    v_mov_b32 v7, v8
    v_mov_b32 v8, v9
L_x2:
""")
E(f"""
    v_lshrrev_b32 v5, 3, v1
    v_and_b32 v3, 1, v2
    s_and_b32 s30, s3, 1
    s_lshl_b32 s30, s30, 1
    v_or_b32 v3, s30, v3                    ; sigma
    v_lshlrev_b32 v3, 1, v3
    v_and_b32 v20, 7, v1
    v_xor_b32 v3, v3, v20
    v_lshlrev_b32 v3, 4, v3
    v_lshl_add_u32 v10, v5, 8, v3
    s_sub_u32 s28, s3, 4
    s_lshl_b32 s30, s28, 11
    s_lshl_b32 s31, s{S_HALF}, 7
    s_add_u32 s30, s30, s31
    v_add_u32 v10, s30, v10
    v_add_u32 v11, 0x4000, v10
    s_lshl_b32 s28, s28, 10
    s_add_u32 s34, s16, {128*256}
    s_addc_u32 s35, s17, 0
    s_cmp_lg_u32 s3, 11
    s_cbranch_scc1 L_noc
    v_and_b32 v5, 3, v5
    v_lshlrev_b32 v20, 4, v20
    v_lshl_add_u32 v5, v5, 8, v20
    s_add_u32 s31, s31, {256*256}
    s_mov_b32 m0, {L_C}
    v_add_u32 v5, s31, v5
    global_load_lds_dwordx4 v5, s[16:17]
L_noc:
    s_add_u32 m0, s28, {L_WBV}
""")
for ti, base in enumerate((34, 14)):
    for n in range(2):
        E(f"s_nop 0\nglobal_load_lds_dwordx4 v{10+n}, s[{base}:{base+1}]")
        if not (ti == 1 and n == 1):
            E(f"s_add_u32 m0, m0, 0x2000")
def stage_au():
    E(f"""
    v_lshrrev_b32 v5, 3, v1
    v_bfe_u32 v3, v1, 4, 1
    v_lshlrev_b32 v3, 1, v3
    v_and_b32 v20, 7, v1
    v_xor_b32 v3, v3, v20
    v_lshlrev_b32 v3, 4, v3
    v_lshl_add_u32 v6, v5, 8, v3
    s_lshl_b32 s30, s{S_HALF}, 7
    s_and_b32 s31, s3, 1
    s_lshl_b32 s31, s31, 14
    s_add_u32 s30, s30, s31
    v_add_u32 v6, s30, v6
    v_xor_b32 v7, 64, v6
    v_add_u32 v8, 2048, v6
    v_add_u32 v9, 3072, v7
    v_add_u32 v7, 1024, v7
    s_lshl_b32 s30, s32, 13
    s_add_u32 m0, s30, {L_WAU}
    s_cmp_lt_u32 s32, 2
    s_cselect_b32 s34, s16, s12
    s_cselect_b32 s35, s17, s13
    global_load_lds_dwordx4 v6, s[34:35]
    global_load_lds_dwordx4 v7, s[34:35] offset:1024
    global_load_lds_dwordx4 v8, s[34:35] offset:2048
    global_load_lds_dwordx4 v9, s[34:35] offset:3072
    s_add_u32 m0, m0, 4096
    s_add_u32 s34, s34, 8192
    s_addc_u32 s35, s35, 0
    global_load_lds_dwordx4 v6, s[34:35]
    global_load_lds_dwordx4 v7, s[34:35] offset:1024
    global_load_lds_dwordx4 v8, s[34:35] offset:2048
    global_load_lds_dwordx4 v9, s[34:35] offset:3072
""")
if OPT["aue"] == 1:
    E("s_cmp_eq_u32 s33, 0\ns_cbranch_scc1 L_noau"); stage_au(); E("L_noau:")
if OPT["t0f"]:
    E(f"""
    s_mov_b32 m0, s29
    s_barrier                               ; B0b
    global_load_lds_dwordx4 v7, s[4:5]
    s_add_u32 m0, m0, 0x1000
    s_nop 0
    global_load_lds_dwordx4 v8, s[4:5]
    """)
if OPT["wgate"] or OPT["ewhen"] in (5, 6):
    E(f"""
    v_mov_b32 v7, 0x1000000
    s_mov_b64 exec, 1
    ds_add_u32 v36, v7 offset:{L_CTR}
    s_mov_b64 exec, -1
    """)
STAMP(1)
E(f"""
    v_mov_b32 v32, {NULL_SRC}
    v_mov_b32 v33, v32
    v_mov_b32 v34, v32
    v_mov_b32 v35, v32
""")
def cover(lo, n): return list(range(lo, n - 8192, 8192)) + [n - 8192]
for o in cover(16384, L_EAEND - L_EA): E(f"ds_write_b128 v40, v[36:39] offset:{o}")
for o in cover(0, SRCB): E(f"ds_write_b128 v31, v[32:35] offset:{L_SRC + o}")
E(f"""
    v_and_b32 v32, 3, v30           ; quarter
    v_bfe_u32 v33, v30, 3, 3
    v_lshrrev_b32 v34, 5, v30
    s_and_b32 s30, s3, 3
    s_add_u32 s30, s30, 16
    s_cmp_ge_u32 s3, 8
    s_cselect_b32 s31, 7, 3
    s_cselect_b32 s29, 0, 6
    s_cselect_b64 vcc, -1, 0
    v_and_b32 v33, s31, v33
    v_mov_b32 v35, s30
    v_cndmask_b32 v34, v34, v35, vcc
    v_lshl_add_u32 v32, v34, 2, v32
    v_bfe_u32 v34, v30, 2, 1
    v_mul_u32_u24 v35, {NSTR - SSTR}, v34
    v_mul_u32_u24 v41, {L_NODE - L_SRC}, v34
    v_mul_u32_u24 v42, {L_SRC + 80*SSTR - L_DUM}, v34
    v_lshlrev_b32 v43, 4, v34
    v_add_u32 v35, {SSTR}, v35
    v_add_u32 v41, {L_SRC}, v41
    v_sub_u32 v42, {L_SRC + 80*SSTR}, v42
    v_sub_u32 v43, 16, v43
    v_lshlrev_b32 v33, 2, v33
    v_mad_u32_u24 v41, v32, v35, v41
    v_mad_u32_u24 v41, v33, v43, v41
    v_lshlrev_b32 v35, 5, v35
    v_lshlrev_b32 v34, 3, v43
    v_sub_u32 v35, v35, v34
    v_cmp_gt_u32 s[48:49], 8, v33
    v_and_b32 v33, 7, v33
    v_add_u32 v34, 2, v33
    v_cmp_gt_u32 s[52:53], s29, v33
    v_cmp_gt_u32 s[54:55], s29, v34
    v_cndmask_b32 v44, v35, 0, s[48:49]
    v_cndmask_b32 v46, v35, 0, s[48:49]
    v_add_u32 v44, v41, v44
    v_lshl_add_u32 v46, v43, 1, v46
    v_add_u32 v46, v41, v46
    v_add_u32 v45, v44, v43
    v_add_u32 v47, v46, v43
    v_cndmask_b32 v44, v42, v44, s[52:53]
    v_cndmask_b32 v45, v42, v45, s[52:53]
    v_cndmask_b32 v46, v42, v46, s[54:55]
    v_cndmask_b32 v47, v42, v47, s[54:55]
    ds_write_b128 v31, v[44:47] offset:{L_LIST}
    s_cmp_ge_u32 s3, 6
    s_cbranch_scc1 L_pf3
    v_mul_u32_u24 v42, {SSTR}, v30
    v_add_u32 v42, {L_SRC}, v42
    v_lshlrev_b32 v41, 2, v30
    ds_write_b32 v41, v42 offset:{L_CNT}
L_pf3:
    v_bfe_u32 v3, v1, 2, 2                  ; r
    v_lshl_add_u32 v5, v2, 3, v3            ; 8g + r
    v_lshrrev_b32 v3, 1, v3
    v_and_b32 v6, 1, v2
    v_lshl_or_b32 v3, v6, 1, v3             ; sigma
    v_xor_b32 v3, s32, v3
    v_lshlrev_b32 v3, 5, v3
    v_lshl_add_u32 v10, v5, 7, v3
    v_and_b32 v3, 3, v1
    v_lshl_add_u32 v10, v3, 3, v10
    s_mul_i32 s31, s33, {L_WAU - L_WBV}
    s_add_u32 s31, s31, {L_WBV}
    v_add_u32 v10, s31, v10
    v_xor_b32 v3, v2, v4
    v_lshlrev_b32 v3, 4, v3
    v_lshl_add_u32 v12, v4, 8, v3
    v_add_u32 v12, {L_X}, v12
    v_xor_b32 v13, 64, v12
    v_xor_b32 v14, 0x80, v12
    v_xor_b32 v15, 0xc0, v12
    s_mul_i32 s30, s{S_HALF}, {G_HALF}
    s_add_u32 s30, s30, s73
    s_lshl_b32 s31, s32, 6
    s_add_u32 s30, s30, s31
    v_lshlrev_b32 v11, 10, v2
    v_lshl_add_u32 v11, v4, 2, v11
    v_add_u32 v11, s30, v11
    s_lshl_b32 s31, s32, 5
    s_add_u32 s31, s31, {L_NODE}
    v_mul_u32_u24 v16, {NSTR}, v4
    v_lshl_add_u32 v16, v2, 3, v16
    v_add_u32 v16, s31, v16
    s_mov_b32 s40, {f32(-LOG2E)}
    s_mov_b32 s42, {f32(2.0**32)}
    s_mov_b32 s44, 0x07060100
    s_mov_b32 s45, 0x07060302
    s_mov_b32 s46, 0x3f80
    v_mov_b32 v17, {f32(2.0**-100)}
    v_mov_b32 v19, 1
    v_mov_b32 v18, 0
""")
def staged():
    if not OPT["tagl"]: get_tag("g", 160)
    if OPT["aue"] == 2:
        E("s_cmp_eq_u32 s33, 0\ns_cbranch_scc1 L_noau"); stage_au(); E("L_noau:")
    if OPT["aue"]: E("s_waitcnt vmcnt(8)\ns_cmp_lg_u32 s33, 0\ns_cbranch_scc1 L_stg")
    E(f"""
    s_waitcnt vmcnt(0)
L_stg:
    s_mov_b64 exec, 1
    ds_add_u32 v18, v19 offset:{L_CTR}
    s_mov_b64 exec, -1
    """)
    STAMP(2)
    lds_wait(L_CTR, 0xff, 8, "g1", sleep=(OPT["sl"] >> 1) & 1)
if OPT["t0f"]:
    E(f"""
    s_waitcnt vmcnt(2)
    s_mov_b64 exec, 1
    ds_add_u32 v18, v19 offset:{L_AU}
    s_mov_b64 exec, -1
    s_or_b32 s30, s33, s{S_SAFE}
    s_cbranch_scc0 L_t0
    """)
staged()
STAMP(3)
NP = 8
RA = 72; RB = RA + 4*NP; RAD = RB + 4*NP
J3N, J12, J3N2, CELL, ROWA, FOUR, L0M, ACC, ENT, CAD = 156, 157, 158, 159, 160, 161, 162, 163, 164, 166
def rec_setup():
    E(f"""
    v_and_b32 v3, 15, v1                    ; j
    v_lshrrev_b32 v2, 4, v1
    v_lshl_add_u32 v{CELL}, v2, 3, v3
    s_lshl_b32 s30, s29, 5
    v_add_u32 v{CELL}, s30, v{CELL}
    s_lshl_b32 s30, s{S_BUCK}, 3
    s_add_u32 s30, s30, {WS_ROW}
    v_lshl_add_u32 v{ROWA}, v{CELL}, 10, s30
    v_cmp_gt_u32 s[66:67], {NP}, v3
    v_cmp_gt_u32 vcc, {NCHUNK}, v{CELL}
    v_mov_b32 v{ENT}, 0
    s_and_b64 s[66:67], s[66:67], vcc
    s_mov_b64 exec, s[66:67]
    global_load_dwordx2 v[{ENT}:{ENT+1}], v{ROWA}, s[20:21] sc1
    s_mov_b64 exec, -1
    v_mul_u32_u24 v{CELL}, {SORTB//4}, v{CELL}
    v_add_u32 v{CELL}, {WS_REC//4}, v{CELL}
    v_mul_u32_u24 v{J12}, 12, v3
    v_mul_u32_u24 v{J3N}, 3, v3
    v_not_b32 v{J3N}, v{J3N}
    v_subrev_u32 v{J3N2}, 48, v{J3N}
    v_subrev_u32 v{L0M}, 1, v3
    v_ashrrev_i32 v{L0M}, 31, v{L0M}            ; all ones in the first lane of each row
    v_mov_b32 v{FOUR}, 4
    """)
WF = 20; XF = 52; AC = 132
def wreads(ks):
    for t in range(2):
        for rd in range(2):
            r = WF + 16*t + 4*ks + 2*rd
            E(f"ds_read_b64_tr_b16 v[{r}:{r+1}], v10 offset:{t*16384 + ks*4096 + rd*512}")
def xread(rt, ks):
    r = XF + 16*rt + 4*ks
    return f"ds_read_b128 v[{r}:{r+3}], v{12+ks} offset:{rt*4096}"
def mf(rt, ks, transposed):
    for t in range(2):
        a = XF + 16*rt + 4*ks; w = WF + 16*t + 4*ks; d = AC + 8*(rt % 3) + 4*t
        c = "0" if ks == 0 else f"v[{d}:{d+3}]"
        if transposed: a, w = w, a
        E(f"v_mfma_f32_16x16x32_bf16 v[{d}:{d+3}], v[{a}:{a+3}], v[{w}:{w+3}], {c}")
def gemm(transposed, finish, before_first):
    for ks in range(3):
        E(xread(0, ks)); wreads(ks)
    E("s_waitcnt lgkmcnt(10)"); mf(0, 0, transposed)
    E(xread(0, 3)); wreads(3)
    E("s_waitcnt lgkmcnt(10)"); mf(0, 1, transposed)
    for ks in range(4): E(xread(1, ks))
    E("s_waitcnt lgkmcnt(9)"); mf(0, 2, transposed)
    for ks in range(4): E(xread(2, ks))
    E("s_waitcnt lgkmcnt(8)"); mf(0, 3, transposed)
    for ks in range(4): E(xread(3, ks))
    if OPT["p0e"]:
        E("s_nop 3"); finish(0)
    E("s_waitcnt lgkmcnt(8)")
    for ks in range(4):
        mf(1, ks, transposed); E(xread(4, ks))
    E(f"""
    s_mov_b64 exec, 1
    ds_add_u32 v18, v19 offset:{L_RD}
    s_mov_b64 exec, -1
    """)
    before_first()
    if not OPT["p0e"]: finish(0)
    E("s_waitcnt lgkmcnt(0)")
    for rt in range(2, 5):
        for ks in range(4): mf(rt, ks, transposed)
        finish(rt-1)
    finish(4)
def pack(rt):
    b = AC + 8*(rt % 3); h = b + 4
    for r in range(4): E(f"v_mul_f32 v{b+r}, s40, v{b+r}")
    for r in range(4): E(f"v_fma_f32 v{h+r}, v{h+r}, s42, v17")
    E(f"""
    v_cvt_pk_bf16_f32 v4, v{b}, v{b+1}
    v_cvt_pk_bf16_f32 v5, v{b+2}, v{b+3}
    v_xor_b32 v2, 0x80008000, v4
    v_xor_b32 v3, 0x80008000, v5
    v_sub_u32_sdwa v{h}, v{h}, sext(v2) dst_sel:DWORD dst_unused:UNUSED_PAD src0_sel:DWORD src1_sel:WORD_0
    v_sub_u32_sdwa v{h+1}, v{h+1}, sext(v2) dst_sel:DWORD dst_unused:UNUSED_PAD src0_sel:DWORD src1_sel:WORD_1
    v_sub_u32_sdwa v{h+2}, v{h+2}, sext(v3) dst_sel:DWORD dst_unused:UNUSED_PAD src0_sel:DWORD src1_sel:WORD_0
    v_sub_u32_sdwa v{h+3}, v{h+3}, sext(v3) dst_sel:DWORD dst_unused:UNUSED_PAD src0_sel:DWORD src1_sel:WORD_1
    """)
    w = (OPT["gp"] >> (4*(4-rt))) & 15 if OPT["gp"] else OPT["gpace"]
    if 0 <= w < 4*rt: E(f"s_waitcnt vmcnt({w})")
    if OPT["pre"] and rt == 5 - OPT["pre"]: lds_wait(L_SCNT + 126*4, 0xff, 4, "pre")
    if OPT["eah"] == rt + 1: lds_wait(L_EAOK, 0xff, 4, "eah")
    if OPT["ghold"] == rt + 1:
        E("v_mov_b32 v6, v2\nv_mov_b32 v7, v3"); lds_wait(L_CTR, 0xff00, 0x400, "gh", sleep=1); E("v_mov_b32 v2, v6\nv_mov_b32 v3, v7")
    for r in range(4):
        E(f"v_perm_b32 v{h+r}, v{h+r}, v{4 + (r>>1)}, s{44 + (r&1)}")
        if OPT["gwin"] >= 0: E(f"s_waitcnt vmcnt({OPT['gwin']})")
        E(f"global_store_dword v11, v{h+r}, s[20:21] offset:{256*r} sc1")
    if rt < 4: E("v_add_u32 v11, 0x1000, v11")
def fin(rt):
    a = AC + 8*(rt % 3); u = a + 4
    for r in range(4): E(f"v_mul_f32 v{a+r}, s40, v{a+r}")
    for r in range(4): E(f"v_mul_f32 v{u+r}, s42, v{u+r}")
    E(f"""
    v_cvt_pk_bf16_f32 v{a}, v{a}, v{a+1}
    v_cvt_pk_bf16_f32 v{a+1}, v{a+2}, v{a+3}
    v_cvt_f64_f32 v[2:3], v{u}
    v_cvt_f64_f32 v[4:5], v{u+1}
    v_cvt_f64_f32 v[6:7], v{u+2}
    v_cvt_f64_f32 v[8:9], v{u+3}
    ds_write_b64 v16, v[{a}:{a+1}] offset:512
    ds_write2_b64 v16, v[2:3], v[4:5] offset0:0 offset1:16
    ds_write2_b64 v16, v[6:7], v[8:9] offset0:32 offset1:48
    """)
    if rt < 4: E(f"v_add_u32 v16, {16*NSTR}, v16")
E(f"""
    s_cmp_lg_u32 s33, 0
    s_cbranch_scc1 L_gemm2
    s_cmp_lg_u32 s{S_SAFE}, 0
    s_cbranch_scc1 L_nog1
    s_setprio 2
""")
if OPT["t0f"]:
    E("L_t0:\ns_setprio 2")
    lds_wait(L_AU, 0xff, 8, "t0")
    STAMP(3)
    for ks in range(3):
        E(xread(0, ks)); wreads(ks)
    E("s_waitcnt lgkmcnt(10)"); mf(0, 0, False)
    E(xread(0, 3)); wreads(3)
    for ks in range(1, 4):
        E(f"s_waitcnt lgkmcnt({15 - 5*ks})"); mf(0, ks, False)
    E("s_nop 7"); pack(0)
    get_tag("t", 160)
    E(f"""
    s_waitcnt vmcnt(4)
    s_mov_b64 exec, 1
    ds_add_u32 v18, v19 offset:{L_CTR}
    s_mov_b64 exec, -1
    """)
    lds_wait(L_CTR, 0xff, 8, "t1")
    for rt in range(1, 4):
        for ks in range(4): E(xread(rt, ks))
    E("s_waitcnt lgkmcnt(8)")
    for ks in range(4):
        mf(1, ks, False); E(xread(4, ks))
    E(f"""
    s_mov_b64 exec, 1
    ds_add_u32 v18, v19 offset:{L_RD}
    s_mov_b64 exec, -1
    s_nop 3
    """)
    pack(1)
    E("s_waitcnt lgkmcnt(0)")
    for ks in range(4): mf(2, ks, False)
    for rt in range(3, 5):
        for ks in range(4): mf(rt, ks, False)
        pack(rt-1)
    pack(4)
else: gemm(False, pack, lambda: lds_wait(L_CTR, {1: 0x80000, 2: 0xc0000}[OPT["hold"]], 0, "hold", sleep=1, ne=True) if OPT["hold"] else None)
E("s_setprio 0")
if OPT["gate"] or OPT["gate2"] >= 3:
    E(f"""
    s_mov_b64 exec, 1
    ds_add_u32 v18, v19 offset:{L_GST}
    s_mov_b64 exec, -1
    """)
STAMP(4)
if OPT["tagl"]: get_tag("g", 160)
main_consts()
E(f"""
    s_lshl_b32 s30, s{S_P}, 7
    s_add_u32 s30, s30, {WS_FL2}
    v_mov_b32 v60, s30
    v_mov_b32 v62, s{S_TAG}
    v_mov_b32 v63, s{S_TAG+1}
    v_mov_b32 v2, 0
    v_mov_b32 v3, 1
    s_lshl_b32 s30, s32, 13
    s_lshl_b32 s31, s{S_HALF}, 7
    s_add_u32 s30, s30, s31
    s_add_u32 s30, s30, {WS_FL2}
    v_lshl_add_u32 v64, v1, 8, s30
    s_mul_i32 s30, s32, {2560*256}
    s_lshr_b32 s31, s2, 3
    s_mul_i32 s31, s31, {160*128}
    s_add_u32 s30, s30, s31
    v_lshl_add_u32 v65, v1, 7, s30
    {'' if OPT['gpe'] else 'v_min_u32 v65, %d, v65' % (G_HALF - 128)}
    s_mul_i32 s30, s{S_HALF}, {G_HALF}
    v_add_u32 v65, s30, v65
    s_mov_b64 exec, 1
    s_waitcnt vmcnt(0)
    ds_add_rtn_u32 v61, v2, v3 offset:{L_DONE2}
    s_waitcnt lgkmcnt(0)
    v_readfirstlane_b32 s30, v61
    s_cmp_lg_u32 s30, 3
    s_cbranch_scc1 L_nofl
    global_store_dwordx2 v60, v[62:63], s[20:21] sc1
    ds_add_u32 v2, v3 offset:{L_DONE2}
L_nofl:
""")
STAMP(5)
if OPT["p2gate"]:
    E("s_mov_b64 exec, -1")
    lds_wait(L_CTR, 0xff0000, 0x080000, "pg", sleep=OPT["pgs"])
    E("s_mov_b32 exec_hi, 0")
if OPT["p2wait"]: E(f"s_sleep {OPT['p2wait']}")
STAMP(6)
def gready(lab):
    if OPT["gpe"]: E(f"s_cmp_lg_u32 s73, 0\ns_cbranch_scc1 L_gr{lab}")
    if OPT["gpf"]:
        E(f"""
        {"s_bfm_b64 exec, %d, 0" % OPT["gpf"] if OPT["gpf"] < 64 else "s_mov_b64 exec, -1"}
        global_load_dword v35, v65, s[20:21] sc1
        """)
    E(f"""
L_gr{lab}:
    s_mov_b64 exec, 1
    v_mov_b32 v2, 0
    v_mov_b32 v3, 1
    ds_add_u32 v2, v3 offset:{L_GOK}
    """)
E(f"""
; each of the four waves checks the flags of 32 producers of this half: once now, again after the barrier if needed
    s_cmp_eq_u32 s32, 3
    s_cselect_b32 exec_lo, 0x1fffffff, -1
    {"" if OPT["p1st"] else "s_mov_b64 s[66:67], exec"}
    {"" if OPT["p1st"] else "s_branch L_p2n"}
    global_load_dwordx2 v[66:67], v64, s[20:21] sc1
    s_waitcnt vmcnt(0)
    v_cmp_ne_u64 s[66:67], s[{S_TAG}:{S_TAG+1}], v[66:67]
""")
if OPT["gpe"]:
    n = OPT["gpe"]
    E(f"""
    s_mov_b32 s73, 0
    s_lshr_b32 s30, s2, 3
    s_bitcmp1_b32 s66, s30
    s_cbranch_scc1 L_nogpe
    s_mov_b32 s73, 1
    s_bitcmp1_b32 exec_lo, s30
    s_cbranch_scc0 L_nogpe
    """)
    for k in range(0, n, 64):
        E("s_mov_b64 exec, -1")
        if k: E(f"v_add_u32 v65, 8192, v65")
        if n - k < 64: E(f"s_bfm_b64 exec, {n-k}, 0")
        E(f"global_load_dword v{(35, 68, 69)[k//64]}, v65, s[20:21] sc1")
    E("L_nogpe:")
E(f"""
    s_cmp_lg_u64 s[66:67], 0
    s_cbranch_scc1 L_p2n
""")
gready("a")
E("L_p2n:\ns_mov_b64 exec, -1")
STAMP(7)
E(f"""
    s_branch L_b4
L_nog1:
    s_mov_b64 exec, 1
    ds_add_u32 v18, v19 offset:{L_RD}
    s_mov_b64 exec, -1
    s_branch L_rec
L_gemm2:
""")
if not OPT['aul'] and not OPT['aue']: stage_au()
for rt in range(5):
    for ks in range(4): E(xread(rt, ks))
E(f"""
    s_mov_b64 exec, 1
    ds_add_u32 v18, v19 offset:{L_RD}
    s_mov_b64 exec, -1
""")
if OPT['aul']:
    lds_wait(L_RD, 8, 8, "aul"); stage_au()
E(f"""
    s_mov_b64 exec, 1
    s_waitcnt vmcnt(0)
    ds_add_u32 v18, v19 offset:{L_RD}
    s_mov_b64 exec, -1
    s_sub_u32 s29, s3, 4
""")
rec_setup()
lds_wait(L_RD, 0xff, 12, "rd", sleep=(OPT["sl"] >> 2) & 1)
for ks in range(4): wreads(ks)
for ks in range(4):
    E(f"s_waitcnt lgkmcnt({12 - 4*ks})"); mf(0, ks, True)
for rt in range(1, 5):
    for ks in range(4): mf(rt, ks, True)
    fin(rt-1)
fin(4)
if OPT["tagl"]: get_tag("h", 144)
STAMP(4)
E(f"""
    s_branch L_rec
L_sort:
""")
STAMP(1)
E(f"""
    s_mov_b32 s40, {f32(-LOG2E)}
    s_mov_b32 s46, 0x3f80
    s_cmp_lg_u32 s{S_SAFE}, 0
    s_cbranch_scc1 L_sortskip
    v_mov_b32 v21, 1
    v_mov_b32 v20, 3
    s_mov_b32 s31, 52429
    s_movk_i32 s32, -20
    v_lshlrev_b32 v9, 3, v1
    v_lshlrev_b32 v33, 4, v0
    s_mul_i32 s30, s{S_P}, {SORTB}
    s_add_u32 s30, s30, {WS_REC + 4096}
    v_add_u32 v32, s30, v33                 ; copy-out global offset
    v_add_u32 v34, 8192, v32
    s_lshl_b32 s30, s{S_P}, 10
    s_add_u32 s30, s30, {WS_ROW}
    v_lshl_add_u32 v42, v1, 4, s30
    s_mov_b32 s34, {LDS_MAX}
    s_setprio 3
""")
E6 = OPT["ewhen"] in (0, 6, 7)
if OPT["ewhen"] == 6:
    E("v_mov_b32 v19, v3")
    lds_wait(L_CTR, 0xff000000, 0x08000000, "ew")
    E("v_mov_b32 v3, v19\ns_mov_b32 s31, 52429")
    E(f"""
    global_load_dwordx4 v[12:15], v3, s[8:9]{NTE}
    global_load_dword v16, v18, s[8:9]{NTE}
    global_load_dwordx4 v[52:55], v10, s[6:7]{NTE}
    global_load_dwordx4 v[56:59], v10, s[6:7] offset:16{NTE}
    global_load_dwordx2 v[60:61], v11, s[6:7]{NTE}
""")
E(f"""
    s_waitcnt vmcnt({1 + OPT['pre'] + 5*E6})
""")
STAMP(2)
FSTAMP(1)
for i in range(5):
    E(f"""
    v_mul_u32_u24 v{22+i}, s31, v{4+i}
    v_lshrrev_b32 v{22+i}, 22, v{22+i}
    v_lshlrev_b32 v{22+i}, 2, v{22+i}        ; bucket*4
    ds_add_rtn_u32 v{27+i}, v{22+i}, v20 offset:{L_SCNT}
    """)
E(f"""
    s_mov_b64 exec, 1
    s_cmp_lg_u32 s3, 0
    s_cbranch_scc1 L_notag
    s_waitcnt vmcnt({OPT['pre'] + 5*E6})
    ds_write_b32 v48, v43 offset:{L_SCNT + 125*4}
L_notag:
    ds_add_u32 v48, v21 offset:{L_SCNT + 127*4}  ; arrival count of the four waves (LDS runs a wave's ops in order)
    s_mov_b64 exec, -1
""")
if OPT["ewhen"] == 1: E(f"""
    global_load_dwordx4 v[12:15], v3, s[8:9]{NTE}
    global_load_dword v16, v18, s[8:9]{NTE}
    global_load_dwordx4 v[52:55], v10, s[6:7]{NTE}
    global_load_dwordx4 v[56:59], v10, s[6:7] offset:16{NTE}
    global_load_dwordx2 v[60:61], v11, s[6:7]{NTE}
""")
E(f"""
L_s1:
    ds_read_b32 v38, v48 offset:{L_SCNT + 127*4}
    ds_read_b64 v[36:37], v9 offset:{L_SCNT}
    s_sub_u32 s34, s34, 1
    s_cbranch_scc1 L_s1d
    s_waitcnt lgkmcnt(0)
    v_readfirstlane_b32 s30, v38
    s_cmp_lg_u32 s30, 4
    s_cbranch_scc1 L_s1
L_s1d:
""")
FSTAMP(2)
E(f"""
    v_add3_u32 v39, v36, v37, 2
    v_add3_u32 v38, v36, v37, 2
    v_readlane_b32 s{S_TAGRAW}, v37, 62
""")
fill = []
for i in range(5):
    fill += [f"v_mad_i32_i24 v{4+i}, v{22+i}, s32, v{4+i}", f"v_lshlrev_b32 v{4+i}, 24, v{4+i}"]
for k, m in enumerate(SCAN):
    E(f"v_add_u32_dpp v39, v39, v39 {m}")
    for x in fill[2*k:2*k+2]: E(x)
E(f"""
    v_sub_u32 v40, v39, v38
    v_add3_u32 v41, v40, v36, 1
    s_mov_b32 s30, {L_SORT}
    v_lshl_add_u32 v38, v40, 2, s30
    v_lshl_add_u32 v39, v41, 2, s30
    ds_write_b64 v9, v[38:39] offset:{L_SOFF}
""")
for i in range(5):
    E(f"ds_read_b32 v{22+i}, v{22+i} offset:{L_SOFF}")
finish_tag()
E(f"""
    s_cmp_lg_u32 s3, 0
    s_cbranch_scc1 L_nopub
    s_and_b32 s35, s{S_TAG+1}, 0xff000000
    v_mov_b32 v45, s{S_TAG}
    v_mov_b32 v47, s{S_TAG}
    v_lshl_or_b32 v44, v36, 12, v40
    v_lshl_or_b32 v46, v37, 12, v41
    v_or_b32 v44, s35, v44
    v_or_b32 v46, s35, v46
    global_store_dwordx4 v42, v[44:47], s[20:21] sc1
    {"s_waitcnt vmcnt(1)" if OPT["ewhen"] in (0, 1, 6, 7) else ""}
    s_branch {"L_pub" if OPT["ewhen"] in (0, 1, 6, 7) else "L_nochk"}
L_nopub:
    s_cmp_lg_u32 s3, 1
    s_cbranch_scc1 L_nochk
    v_mov_b32 v44, s{S_TAG+1}
    s_mov_b32 exec_hi, 0x7fffffff
    ds_add_u32 v38, v44
    ds_add_u32 v39, v44
    s_mov_b32 exec_hi, -1
L_nochk:
""")
if 3 <= OPT["ewhen"] <= 5:
    E("v_mov_b32 v19, v3")
    if OPT["ewhen"] == 3: lds_wait(L_CTR, 0xff, 8, "ew")
    elif OPT["ewhen"] == 5: lds_wait(L_CTR, 0xff000000, 0x08000000, "ew")
    else: lds_wait(L_CTR, 0xff, 0, "ew", ne=True)
    E("v_mov_b32 v3, v19")
if 2 <= OPT["ewhen"] <= 5: E(f"""
    global_load_dwordx4 v[12:15], v3, s[8:9]{NTE}
    global_load_dword v16, v18, s[8:9]{NTE}
    global_load_dwordx4 v[52:55], v10, s[6:7]{NTE}
    global_load_dwordx4 v[56:59], v10, s[6:7] offset:16{NTE}
    global_load_dwordx2 v[60:61], v11, s[6:7]{NTE}
""")
E(f"""
    s_waitcnt vmcnt(0)
L_pub:
""")
if OPT["eah"]:
    E(f"""
    s_mov_b64 exec, 1
    ds_add_u32 v48, v21 offset:{L_EAOK}
    s_mov_b64 exec, -1
    """)
STAMP(4)
FSTAMP(3)
for i in range(5): E(f"v_lshl_or_b32 v{4+i}, v{12+i}, 8, v{4+i}")
E("s_waitcnt lgkmcnt(0)")
for i in range(5):
    E(f"""
    v_lshl_add_u32 v{27+i}, v{27+i}, 2, v{22+i}
    v_add3_u32 v{12+i}, v{52+2*i}, v{53+2*i}, v{4+i}
    ds_write2_b32 v{27+i}, v{52+2*i}, v{53+2*i} offset0:2 offset1:3
    ds_write_b32 v{27+i}, v{4+i} offset:4
    ds_sub_u32 v{22+i}, v{12+i}
    """)
E(f"""
    s_mov_b64 exec, 1
    ds_add_u32 v48, v21 offset:{L_SCNT + 126*4}
    s_mov_b64 exec, -1
""")
FSTAMP(4)
E(f"""
    s_mov_b32 s34, {LDS_MAX}
L_s2:
    ds_read_b32 v38, v48 offset:{L_SCNT + 126*4}
    {f"ds_read_b32 v39, v48 offset:{L_CTR}" if OPT["wgate"] else ""}
    ds_read_b128 v[72:75], v33 offset:{L_SORT}
    s_sub_u32 s34, s34, 1
    s_cbranch_scc1 L_s2d
    s_waitcnt lgkmcnt(1)
    v_readfirstlane_b32 s30, v38
""")
if OPT["wgate"]:
    E(f"""
    v_readfirstlane_b32 s31, v39
    s_lshr_b32 s31, s31, 24
    s_add_u32 s30, s30, s31
    """)
E(f"""
    s_cmp_lg_u32 s30, {12 if OPT["wgate"] else 4}
    s_cbranch_scc1 L_s2
L_s2d:
""")
FSTAMP(5)
E(f"""
    ds_read_b128 v[76:79], v33 offset:{L_SORT + 4096}
    ds_read_b128 v[80:83], v33 offset:{L_SORT + 8192}
    ds_read_b128 v[84:87], v33 offset:{L_SORT + 12288}
    s_waitcnt lgkmcnt(3)
    global_store_dwordx4 v32, v[72:75], s[20:21] offset:-4096 sc1
    s_waitcnt lgkmcnt(2)
    global_store_dwordx4 v32, v[76:79], s[20:21] sc1
    s_waitcnt lgkmcnt(1){f" vmcnt({OPT['rpace']})" if OPT['rpace'] >= 0 else ""}
    global_store_dwordx4 v34, v[80:83], s[20:21] offset:-4096 sc1
    s_cmp_eq_u32 s3, 3
    s_cselect_b32 exec_hi, 0, -1
    s_waitcnt lgkmcnt(0){f" vmcnt({OPT['rpace']})" if OPT['rpace'] >= 0 else ""}
    global_store_dwordx4 v34, v[84:87], s[20:21] sc1
    s_mov_b32 exec_hi, -1
""")
FSTAMP(6)
for k in range(4): E(f"ds_write_b128 v33, v[48:51] offset:{L_SORT + 4096*k}")
STAMP(3)
FSTAMP(7)
E(f"""
    s_branch L_sortdone
L_sortskip:
    s_waitcnt vmcnt(0)
L_sortdone:
    s_mov_b32 s29, s3
""")
rec_setup()
E(f"""
L_rec:
""")
if OPT["mcl"]: E(f"s_cmp_ge_u32 s3, 8\ns_cbranch_scc1 L_nomc")
lds_wait(L_CTR, 0xff, 8, "r0")
if OPT["mcl"] != 2: main_consts()
E("L_nomc:")
STAMP(5)
E(f"""
    s_cmp_ge_u32 s3, 4
    s_cbranch_scc1 L_nod2
    v_mov_b32 v2, 0
    v_mov_b32 v3, 0x100
    s_mov_b64 exec, 1
    s_waitcnt vmcnt(0)
    ds_add_u32 v2, v3 offset:{L_CTR}
    s_mov_b64 exec, -1
L_nod2:
    s_cmp_lg_u32 s{S_SAFE}, 0
    s_cbranch_scc1 L_recskip
    s_lshr_b32 s35, s{S_TAG+1}, 24
    s_mov_b64 exec, s[66:67]
    s_mov_b32 s34, {POLL_MAX}
    s_branch L_p1c
L_p1:
    global_load_dwordx2 v[{ENT}:{ENT+1}], v{ROWA}, s[20:21] sc1
L_p1c:
    s_sub_u32 s34, s34, 1
    s_cbranch_scc1 L_toobig
    s_waitcnt vmcnt(0)
    v_cmp_ne_u32 vcc, s{S_TAG}, v{ENT+1}
    v_cmp_ne_u32_sdwa s[48:49], v{ENT}, s35 src0_sel:BYTE_3 src1_sel:DWORD
    s_or_b64 exec, vcc, s[48:49]
    s_cbranch_scc1 L_p1
    s_mov_b64 exec, -1
""")
STAMP(6)
if OPT["cnt"]: E(f"s_sub_u32 s{ST0+2}, {POLL_MAX+1}, s34\ns_mov_b32 s34, {POLL_MAX}")
E(f"""
    v_and_b32 v{CAD}, 0xfff, v{ENT}
    v_bfe_u32 v{ENT}, v{ENT}, 12, 12            ; 3*count
    v_add_lshl_u32 v{CAD}, v{CAD}, v{CELL}, 2
    v_cmp_ne_u32 vcc, 0, v{ENT}
    s_sub_u32 s30, 0, s{S_TAG+1}
    v_mov_b32 v2, s30
    v_cndmask_b32 v{ENT+1}, 0, v2, vcc
    v_cmp_lt_u32 vcc, 96, v{ENT}
    v_cmp_lt_u32 s[68:69], 48, v{ENT}
    s_cbranch_vccnz L_toobig
""")
for p in range(NP):
    E(f"""
    v_add_co_u32_dpp v2, vcc, v{ENT}, v{J3N} row_newbcast:{p} row_mask:0xf bank_mask:0xf
    v_add_u32_dpp v{RAD+p}, v{CAD}, v{J12} row_newbcast:{p} row_mask:0xf bank_mask:0xf
    s_mov_b64 s[{48+2*p}:{49+2*p}], vcc
    """)
lds_wait(L_CTR, 0xff00, 0x400, "r1", sleep=(OPT["sl"] >> 2) & 1)
if OPT["gate"]: lds_wait(L_GST, 0xff, 4, "gt")
if OPT["gate2"] == 1 and not OPT["split"]:
    if not OPT["allg"]: E("s_cmp_lt_u32 s3, 4\ns_cbranch_scc1 L_wd_g2")
    lds_wait(L_DONE2, 0xff, 5, "g2")
if OPT["gate2"] == 3:
    E("s_cmp_lt_u32 s3, 4\ns_cbranch_scc1 L_wd_g2")
    lds_wait(L_GST, 0xff, 4, "g2")
if OPT["gate2"] in (2, 4):
    E(f"""
    s_cmp_lt_u32 s3, 4
    s_cbranch_scc1 L_g2d
    s_mov_b32 s31, {POLL_MAX}
L_g2:
    ds_read_b128 v[60:63], v2 offset:{L_CTR}
    {f"ds_read_b32 v61, v2 offset:{L_GST}" if OPT["gate2"] == 4 else ""}
    s_sub_u32 s31, s31, 1
    s_cbranch_scc1 L_g2d
    s_waitcnt lgkmcnt(0)
    v_readfirstlane_b32 s30, v62
    v_readfirstlane_b32 s28, v60
    v_readfirstlane_b32 s29, v61
    s_cmp_eq_u32 s30, 5
    s_cbranch_scc1 L_g2d
    {"s_cmp_lg_u32 s29, 4" if OPT["gate2"] == 4 else ""}
    {"s_cbranch_scc1 L_g2" if OPT["gate2"] == 4 else ""}
    s_and_b32 s28, s28, 0xc0000
    s_cbranch_scc0 L_g2
L_g2d:
    """)
E(f"""
    s_or_b32 s68, s68, s69
    s_lshr_b32 s69, s68, 16
    s_or_b32 s68, s68, s69
""")
def mask2(p): return f"v_add_co_u32_dpp v2, vcc, v{ENT}, v{J3N2} row_newbcast:{p} row_mask:0xf bank_mask:0xf"
def loads(ps, lab):
    E(f"s_and_b32 s30, s68, {sum(1 << p for p in ps)}\ns_cbranch_scc0 L_nx{lab}")
    for p in ps:
        r = RB + 4*p
        E(f"""
        s_bitcmp1_b32 s68, {p}
        s_cbranch_scc0 L_nx{lab}{p}
        {mask2(p)}
        s_mov_b64 exec, vcc
        global_load_dwordx4 v[{r}:{r+3}], v{RAD+p}, s[20:21] offset:192 sc1
        s_mov_b64 exec, -1
L_nx{lab}{p}:
        """)
    E(f"L_nx{lab}:")
    for p in ps:
        r = RA + 4*p
        E(f"""
        s_mov_b64 exec, s[{48+2*p}:{49+2*p}]
        global_load_dwordx4 v[{r}:{r+3}], v{RAD+p}, s[20:21]{SC1 if (OPT["rsc1"] or lab != "m") else ""}
        """)
    E("s_mov_b64 exec, -1")
SP = OPT["split"]
GROUPS = {0: ((0,1,2,3),(4,5),(6,7)), 4: ((0,1,2,3),(4,5),(6,7)), 5: ((0,1,2),(3,4),(5,6,7)), 6: ((0,1,2,3),(4,5),(6,7)), 3: ((0,1,2),(3,4,5),(6,7)), 2: ((0,1),(2,3,4,5),(6,7)), 1: ((0,),(1,2,3,4),(5,6,7))}[SP]
if OPT['grp'] == 1: GROUPS = ((0,1),(2,3,4),(5,6,7))
if OPT['grp'] == 2: GROUPS = ((0,1),(2,3),(4,5),(6,7))
if OPT['grp'] == 3: GROUPS = (tuple(range(SP)), tuple(range(SP, NP)))
if OPT['grp'] == 4: GROUPS = ((0,1,2),(3,4,5,6),(7,))
loads(range(SP or NP), "m")
if OPT["eag"]:
    E(f"""
    v_mov_b32 v2, 0
    ds_read_b32 v3, v2 offset:{L_DONE2}
    s_waitcnt lgkmcnt(0)
    v_readfirstlane_b32 s73, v3
    s_cmp_lg_u32 s73, 5
    s_cbranch_scc1 L_neag
    """)
    loads(range(SP, NP), "e")
    E("L_neag:")
def issued():
    if OPT["p2gate"]:
        E(f"""
        v_mov_b32 v2, 0
        v_mov_b32 v3, 0x10000
        s_mov_b64 exec, 1
        ds_add_u32 v2, v3 offset:{L_CTR}
        s_mov_b64 exec, -1
        """)
if OPT["mcl"]:
    if OPT["mcl"] == 1: E(f"s_cmp_lt_u32 s3, 8\ns_cbranch_scc1 L_nomc2")
    main_consts(28); E("L_nomc2:")
if not OPT["sig"]: issued()
STAMP(7)
def rank(r, m):
    E(f"""
    s_mov_b64 exec, {m}
    v_mul_u32_u24_sdwa v{r}, v{FOUR}, v{r+1} dst_sel:DWORD dst_unused:UNUSED_PAD src0_sel:DWORD src1_sel:BYTE_3
    v_and_b32 v{r+1}, {OPT['srcmask']}, v{r+1}
    ds_add_rtn_u32 v{r}, v{r}, v{FOUR} offset:{L_CNT}
    """)
def put(r, m):
    E(f"""
    s_mov_b64 exec, {m}
    v_lshlrev_b32 v2, 1, v{r}
    ds_write_b32 v{r}, v{r+1}
    ds_write_b64 v2, v[{r+2}:{r+3}] offset:{L_EA - 2*L_SRC}
    """)
retries = []
pending = []
for gi, grp in enumerate(GROUPS):
    bits = sum(1 << p for p in grp); m32 = bits | (bits << 16)
    if SP and grp[0] == SP:
        if OPT["eag"]: E("s_cmp_eq_u32 s73, 5\ns_cbranch_scc1 L_eagd")
        lds_wait(L_DONE2, 0xff, 5, "g2", sleep=(OPT["sl"] >> 3) & 1)
        loads(range(SP, NP), "n")
        E("L_eagd:")
        if OPT["sig"] == 9:
            if OPT["sigw"]: E(f"s_waitcnt vmcnt({NP - SP - OPT['sigw']})")
            issued()
    last = NP if (not SP or grp[0] >= SP) else SP
    first_ = 0 if (not SP or grp[0] < SP) else SP
    E(f"""
L_ck{gi}:
    s_mov_b32 vcc_lo, {m32}
    s_mov_b32 vcc_hi, {m32}
    v_cndmask_b32 v{ACC}, 0, v{ENT+1}, vcc
    s_and_b32 s30, s68, {bits}
    s_cbranch_scc1 L_xa{gi}
L_xb{gi}:
    """)
    def xacc():
        E(f"L_xa{gi}:\ns_waitcnt vmcnt({last - first_})")
        for p in grp:
            r = RB + 4*p
            E(f"""
            {mask2(p)}
            s_mov_b64 exec, vcc
            v_add3_u32 v{ACC}, v{ACC}, v{r+1}, v{r+2}
            v_add_u32 v{ACC}, v{ACC}, v{r+3}
            s_mov_b64 exec, -1
            """)
        E(f"s_branch L_xb{gi}")
    emit_to(outofline, xacc)
    for p in grp:
        r = RA + 4*p
        E(f"""
        s_waitcnt vmcnt({last-1-p})
        s_mov_b64 exec, s[{48+2*p}:{49+2*p}]
        v_and_b32 v{r}, v{r}, v{L0M}
        v_add3_u32 v{ACC}, v{ACC}, v{r+2}, v{r+3}
        v_add3_u32 v{ACC}, v{ACC}, v{r}, v{r+1}
        """)
    E("s_mov_b64 exec, -1\ns_nop 0")
    for k in (1, 2, 4, 8):
        E(f"v_add_u32_dpp v{ACC}, v{ACC}, v{ACC} row_ror:{k} row_mask:0xf bank_mask:0xf")
        if k < 8: E("s_nop 1")
    E(f"v_cmp_ne_u32 vcc, 0, v{ACC}\ns_cbranch_vccnz L_rt{gi}")
    if OPT["rst"]: STAMP(1+gi)
    if OPT["sig"] == gi + 1: issued()
    def retry():
        E(f"L_rt{gi}:\ns_sub_u32 s34, s34, 1\ns_cbranch_scc1 {'L_toobig' if (gi < OPT['sig'] if OPT['sig'] != 9 else grp[0] < SP) else 'L_giveup'}")
        loads(grp, f"r{gi}_")
        E(f"s_waitcnt vmcnt(0)\ns_branch L_ck{gi}")
    emit_to(outofline, retry)
    for p in grp: rank(RA + 4*p, f"s[{48+2*p}:{49+2*p}]")
    E(f"s_and_b32 s30, s68, {bits}\ns_cbranch_scc1 L_ya{gi}\nL_yb{gi}:")
    def xput():
        E(f"L_ya{gi}:")
        for p in grp:
            r = RB + 4*p
            E(f"""
            s_bitcmp1_b32 s68, {p}
            s_cbranch_scc0 L_yn{p}
            s_mov_b64 exec, -1
            {mask2(p)}
            """)
            rank(r, "vcc")
            E("s_waitcnt lgkmcnt(0)")
            put(r, "vcc")
            E(f"L_yn{p}:")
        E(f"s_branch L_yb{gi}")
    emit_to(outofline, xput)
    for k, p in enumerate(grp):
        E(f"s_waitcnt lgkmcnt({len(grp) - 1 - k + 2*k})")
        put(RA + 4*p, f"s[{48+2*p}:{49+2*p}]")
    E("s_mov_b64 exec, -1")
E(f"""
    {f"s_sub_u32 s{ST0+4}, {POLL_MAX+1}, s34" if OPT["cnt"] else ""}
    s_branch L_b4
L_toobig:
    s_mov_b64 exec, -1
""")
issued()
E(f"""
L_giveup:
    v_mov_b32 v2, 0
    ds_write_b32 v2, v{FOUR} offset:{L_FLAG}
L_recskip:
    s_waitcnt vmcnt(0)
""")
if OPT["mcl"]: main_consts()
E(f"""
; ---------------- all waves: main loop
L_b4:
    s_setprio {OPT["p0"] if OPT["prio"] == 2 else 0}
    s_mul_i32 s30, s{S_HALF}, {G_HALF}
    {f"s_add_u32 s30, s30, {WS0}" if WS0 else ""}
    s_add_u32 s36, s20, s30
    s_addc_u32 s37, s21, 0
    s_mov_b32 s38, {OPT['nrec'] or G_HALF}
    s_mov_b32 s39, 0x20000
    s_mov_b32 s44, 128
    s_mov_b32 s45, 128
    ds_read_b128 v[{WS4}:{WS4+3}], v{LP}
    ds_read_b64 v[{AG}:{AG+1}], v{LP} offset:64
    ds_read_b64 v[{WN2}:{WN2+1}], v{LP} offset:72
    ds_read_b32 v{WE}, v{LP+1}
    s_waitcnt lgkmcnt(0)
    v_lshl_add_u64 v[{AG}:{AG+1}], v[{AG}:{AG+1}], 0, v[{LN8}:{LN8+1}]
    v_lshl_add_u32 v{WE}, v{WE}, 1, v{EAC}
""")
assert OPT["gpe"] <= 64 and not OPT["ptime"]
if OPT["warm"]:
    E(f"""
    s_barrier
    s_lshr_b32 s30, s2, 3
    s_mul_i32 s30, s30, 98304
    v_lshl_add_u32 v2, v0, 7, s30
    buffer_load_dword v3, v2, s[36:39], 0 offen sc1
    s_waitcnt vmcnt(0)
    s_sleep 40
    """)
STAMP(8)
E(f"""
    s_barrier                               ; B4
    s_cmp_lg_u32 s{S_SAFE}, 0
    s_cbranch_scc1 L_safe
    ds_read_b128 v[{T}:{T+3}], v{WS4}
    ds_read_b128 v[{T+4}:{T+7}], v{WS4+1}
    ds_read_b64 v[{XA}:{XA+1}], v{AG} offset:512
    ds_read_b64 v[{EA}:{EA+1}], v{WE}
    s_lshr_b32 s30, s3, 2
    s_cmp_lg_u32 s30, 1
    s_cbranch_scc1 L_nopoll
    s_mov_b64 exec, s[66:67]
    s_cbranch_execz L_p2e
    s_mov_b32 s31, {POLL_MAX}
L_p2:
    global_load_dwordx2 v[66:67], v64, s[20:21] sc1
    s_sub_u32 s31, s31, 1
    s_cbranch_scc1 L_p2d
    s_waitcnt vmcnt(0)
    v_cmp_ne_u64 vcc, s[{S_TAG}:{S_TAG+1}], v[66:67]
    s_and_b64 exec, exec, vcc
    s_cbranch_scc0 L_p2d
    {f"s_sleep {OPT['p2sleep']}" if OPT['p2sleep'] else ""}
    s_branch L_p2
L_p2d:
""")
gready("b")
E(f"""
L_p2e:
    s_mov_b64 exec, -1
L_nopoll:
    s_cmp_lt_u32 s3, 8
    s_cbranch_scc1 L_nobuild
; waves 8..11: place the edges past the 24th of every node: blocks of 8 (two tiles), then remainders of up to 4
    v_lshlrev_b32 v2, 3, v1
    v_mov_b32 v3, 0
    ds_read_b64 v[72:73], v2 offset:{L_CNT}
    ds_read_b32 v79, v3 offset:{L_FLAG}
    v_mul_u32_u24 v74, {2*SSTR}, v1
    v_add_u32 v74, {L_SRC + 96}, v74
    v_add_u32 v75, {SSTR}, v74
    v_mul_u32_u24 v82, {2*NSTR}, v1
    s_and_b32 s32, s3, 1
    s_mul_i32 s30, s32, {NSTR}
    s_add_u32 s30, s30, {L_NODE}
    v_add_u32 v82, s30, v82
    v_mov_b32 v83, v82
    s_mul_i32 s30, s32, {SSTR}
    v_add_u32 v80, s30, v74
    v_add_u32 v81, 16, v80
    s_waitcnt lgkmcnt(0)
    v_sub_u32 v72, v72, v74 clamp
    v_sub_u32 v73, v73, v75 clamp
    v_max_u32 v76, v72, v73
    v_cmp_lt_u32 vcc, 160, v76
    v_cmp_ne_u32 s[48:49], 0, v79
    v_add_u32 v74, 12, v72
    v_add_u32 v75, 12, v73
    s_or_b64 vcc, vcc, s[48:49]
    s_cbranch_scc1 L_bad
    v_add_u32 v72, 28, v72
    v_add_u32 v73, 28, v73
    v_lshrrev_b32 v74, 5, v74
    v_lshrrev_b32 v75, 5, v75
    v_lshrrev_b32 v72, 5, v72
    v_lshrrev_b32 v73, 5, v73
    v_sub_u32 v72, v72, v74
    v_sub_u32 v73, v73, v75
    v_lshl_or_b32 v72, v72, 16, v74
    v_lshl_or_b32 v73, v73, 16, v75
    v_add_u32 v76, v72, v73
    v_add_u32 v77, v72, v73
""")
scan(77)
E(f"""
    s_cmp_eq_u32 s32, 0
    s_cselect_b64 vcc, -1, 0
    v_readlane_b32 s30, v77, 63
    v_cndmask_b32 v76, v73, v76, vcc
    v_cndmask_b32 v72, v73, v72, vcc
    v_sub_u32 v77, v77, v76
    s_and_b32 s50, s30, 0xffff
    s_add_u32 s31, s50, 3
    s_lshr_b32 s31, s31, 2
    s_sub_u32 s51, 0, s50
    s_and_b32 s51, s51, 3                   ; spare quarters of the last such slot take remainders
    s_lshr_b32 s30, s30, 16
    s_add_u32 s30, s30, 3
    s_sub_u32 s30, s30, s51
    s_lshr_b32 s30, s30, 2
    s_lshl_b32 s33, s31, 1
    s_add_u32 s33, s33, s30
    s_cmp_gt_u32 s33, 104
    s_cbranch_scc1 L_bad
    s_lshl_b32 s30, s30, 8
    s_or_b32 s29, s30, s31
    v_and_b32 v74, 0xffff, v72
    v_and_b32 v76, 0xffff, v77
    s_mov_b32 s34, {L_LISTC}
    s_mov_b32 s35, {L_LIST + 136}
""")
def slotaddr():
    E(f"""
    v_subrev_u32 v78, 32, v76
    v_bfe_u32 v79, v76, 2, 2
    v_lshl_add_u32 v79, v79, 10, s34
    v_lshrrev_b32 v84, 5, v78
    v_lshl_add_u32 v79, v84, 7, v79
    v_bfe_u32 v84, v78, 4, 1
    v_lshl_add_u32 v79, v84, 3, v79
    v_lshrrev_b32 v84, 2, v76
    v_cmp_gt_u32 vcc, 32, v76
    v_lshl_add_u32 v84, v84, 9, s35
    v_and_b32 v78, 3, v76
    v_cndmask_b32 v79, v79, v84, vcc
    v_lshl_add_u32 v79, v78, 4, v79
    """)
E("""
    s_cmp_lt_u32 s3, 10
    s_cbranch_scc1 L_brem
L_bf:
    v_cmp_ne_u32 vcc, 0, v74
    s_and_b64 exec, exec, vcc
    s_cbranch_execz L_bfd
""")
slotaddr()
E(f"""
    ds_write_b64 v79, v[80:81]
    ds_write_b64 v79, v[82:83] offset:64
    v_add_u32 v80, 32, v80
    v_add_u32 v81, 32, v81
    v_add_u32 v76, 1, v76
    v_subrev_u32 v74, 1, v74
    s_branch L_bf
L_brem:
    v_lshl_add_u32 v80, v74, 5, v80
    v_add_u32 v81, 16, v80
    v_lshrrev_b32 v77, 16, v77
    s_sub_u32 s52, 0, s31
    s_and_b32 s52, s52, 3
    s_add_u32 s53, s31, s52
    s_lshl_b32 s52, s52, 3
    v_subrev_u32 v73, s51, v77              ; j' = j - spare
    v_subrev_u32 v74, s52, v73
    v_lshrrev_b32 v76, 3, v73
    v_add_u32 v76, s31, v76
    v_and_b32 v75, 4, v73
    v_lshrrev_b32 v78, 5, v74
    v_lshl_add_u32 v78, v78, 2, s53
    v_bfe_u32 v79, v74, 2, 2
    v_add_u32 v78, v78, v79
    v_cmp_gt_u32 vcc, s52, v73
    v_lshrrev_b32 v74, 2, v74
    v_and_b32 v74, 4, v74
    v_cndmask_b32 v76, v78, v76, vcc        ; slot
    v_cndmask_b32 v75, v74, v75, vcc
    v_and_b32 v78, 3, v73
    v_cmp_gt_u32 s[54:55], s51, v77
    v_lshl_add_u32 v76, v76, 2, v78
    v_add_u32 v78, s50, v77
    v_cndmask_b32 v76, v76, v78, s[54:55]
""")
slotaddr()
E(f"""
    v_cmp_lt_u32 vcc, 0xffff, v72
    v_add_u32 v75, v79, v75
    s_andn2_b64 exec, vcc, s[54:55]
    ds_write2_b32 v75, v80, v82 offset0:0 offset1:16
    s_and_b64 exec, vcc, s[54:55]
    ds_write_b64 v79, v[80:81]
    ds_write_b64 v79, v[82:83] offset:64
L_bfd:
    s_mov_b64 exec, -1
    s_mov_b32 s56, s29
    s_cmp_eq_u32 s3, 8
    s_cselect_b32 s29, s29, 0
    s_add_u32 s29, s29, 0x10000
    s_branch L_built
L_bad:
    s_mov_b32 s56, 0
    s_mov_b32 s29, 0x1010000
L_built:
    v_mov_b32 v2, s29
    s_mov_b64 exec, 1
    ds_add_u32 v3, v2 offset:{L_NST}
    s_add_u32 s30, s{S_P}, s3
    s_cmp_lg_u32 s30, 8
    s_cbranch_scc1 L_notw
    v_mov_b32 v2, s{S_TAG}
    v_mov_b32 v3, {WS_TAG}
    global_store_dword v3, v2, s[20:21] sc1
L_notw:
    s_mov_b64 exec, -1
    v_mov_b32 v2, 0
    s_mov_b32 s30, s56
    s_and_b32 s31, s30, 0xff
    s_bfe_u32 s30, s30, 0x80008
    s_and_b32 s28, s3, 3
    s_sub_u32 s32, 0, s31
    s_and_b32 s32, s32, 3
    s_add_u32 s33, s28, s32
    s_sub_i32 s33, s33, 4
    s_lshl_b32 s29, s33, 1
    s_sub_i32 s29, s30, s29
    s_max_i32 s29, s29, 0
    s_min_i32 s29, s29, 2
    s_cmp_lt_i32 s33, 0
    s_cselect_b32 s29, 0, s29
    s_lshl_b32 s32, s32, 1
    s_sub_i32 s30, s30, s32
    s_sub_i32 s30, s30, s28
    s_add_i32 s30, s30, 3
    s_max_i32 s30, s30, 0
    s_lshr_b32 s30, s30, 2
    s_add_u32 s30, s30, s29
    s_sub_u32 s32, s31, s28
    s_add_u32 s32, s32, 3
    s_lshr_b32 s32, s32, 2
    s_lshl_b32 s32, s32, 1
    s_add_u32 s30, s30, s32
    s_sub_i32 s30, s30, 4
    s_max_i32 s30, s30, 0
    s_add_u32 s{S_R}, s30, 6
    s_sub_i32 s31, s31, s3
    s_add_i32 s31, s31, 3
    s_max_i32 s31, s31, 0
    s_lshr_b32 s31, s31, 2
    s_lshl_b32 s31, s31, 1
    s_lshl_b32 s31, -1, s31
    s_or_b32 s31, s31, 0x55555555
    s_lshl_b32 s32, 2, s30
    s_sub_u32 s32, s32, 1
    s_and_b32 s31, s31, s32
    s_lshl_b32 s32, 64, s30
    s_or_b32 s{S_M}, s31, s32
    v_and_b32 v72, 15, v1
    v_lshrrev_b32 v73, 4, v1
    s_lshl_b32 s31, s3, 2
    s_add_u32 s31, s31, 32
    v_add_u32 v73, s31, v73                 ; node
    v_mul_u32_u24 v74, {SSTR}, v73
    v_lshl_add_u32 v74, v72, 4, v74
    v_add_u32 v74, {L_SRC}, v74
    v_mul_u32_u24 v75, {NSTR}, v73
    v_add_u32 v75, {L_NODE}, v75
    v_cmp_gt_u32 vcc, 6, v72
    v_add_u32 v72, s30, v72
    v_lshrrev_b32 v73, 2, v72
    v_lshl_add_u32 v73, v73, 7, v{LP}
    v_and_b32 v72, 3, v72
    v_lshl_add_u32 v73, v72, 2, v73
    s_mov_b64 exec, vcc
    ds_write2_b32 v73, v74, v75 offset0:0 offset1:16
    s_cmp_lg_u32 s30, 0
    s_cbranch_scc1 L_cw2
    v_mov_b32 v3, 1
    s_mov_b64 exec, 1
    ds_add_u32 v2, v3 offset:{L_DYN}
L_cw2:
    s_mov_b64 exec, -1
    s_mov_b32 s31, {LDS_MAX}
L_wnc:
    ds_read_b32 v3, v2 offset:{L_NST}
    s_sub_u32 s31, s31, 1
    s_cbranch_scc1 L_gosafe
    s_waitcnt lgkmcnt(0)
    v_readfirstlane_b32 s30, v3
    s_bitcmp1_b32 s30, 18
    s_cbranch_scc0 L_wnc
    s_cmp_gt_u32 s30, {0 if OPT["force_safe"] else 0xffffff}
    s_cbranch_scc1 L_gosafe
    ds_read_b128 v[{WS4}:{WS4+3}], v{LP}
    ds_read_b64 v[{AG}:{AG+1}], v{LP} offset:64
    ds_read_b64 v[{WN2}:{WN2+1}], v{LP} offset:72
    ds_read_b32 v{WE}, v{LP+1}
    s_waitcnt lgkmcnt(0)
    v_lshl_add_u64 v[{AG}:{AG+1}], v[{AG}:{AG+1}], 0, v[{LN8}:{LN8+1}]
    v_lshl_add_u32 v{WE}, v{WE}, 1, v{EAC}
    ds_read_b128 v[{T}:{T+3}], v{WS4}
    ds_read_b128 v[{T+4}:{T+7}], v{WS4+1}
    ds_read_b64 v[{XA}:{XA+1}], v{AG} offset:512
    ds_read_b64 v[{EA}:{EA+1}], v{WE}
L_nobuild:
    s_waitcnt lgkmcnt(0)
""")
assert DIST == 2 and not EARLY
E(m_a(D0))
for o in range(T, T+8, 2): E(oadd(o))
E(m_e(D0, 0))
E(f"ds_read_b64 v[{XA}:{XA+1}], v{AG+1} offset:512")
lds_wait(L_GOK, 0xff, 4, "gok", sleep=OPT["sl"] & 1)
if OPT["stamps"] == 2: E(f"s_memrealtime s[{ST0+16}:{ST0+17}]")
if not OPT["nogather"]:
    for q in range(8): E(gload(G + 4*q, T+q))
STAMP(9)
E(f"""
    s_mov_b32 s31, {LDS_MAX}
""")
E(f"""
    s_cmp_ge_u32 s3, 8
    s_cbranch_scc1 L_nd
L_wna:
    ds_read_b32 v3, v2 offset:{L_NST}
    s_sub_u32 s31, s31, 1
    s_cbranch_scc1 L_gosafe
    s_waitcnt lgkmcnt(0)
    v_readfirstlane_b32 s30, v3
    s_bitcmp1_b32 s30, 18
    s_cbranch_scc0 L_wna
    s_cmp_gt_u32 s30, {0 if OPT["force_safe"] else 0xffffff}
    s_cbranch_scc1 L_gosafe
    s_and_b32 s31, s30, 0xff
    s_mov_b32 s{S_R}, 14
    s_cmp_ge_u32 s3, s31
    s_cselect_b32 s30, 0x80, 0
    s_or_b32 s{S_M}, s30, 0x4141
L_nd:
    s_waitcnt vmcnt(6)
    {m_s(D0, A1, G)}
    s_waitcnt vmcnt(4)
    {m_s(D0, A2, G+8)}
    v_mov_b32 v3, 1
    s_nop 7
    s_mov_b32 s{S_IT}, {(1 << OPT["pa"]) | (1 << OPT["pb"]) | (1 << OPT["pc"]) if OPT["prio"] == 2 else 0}
""")
if OPT["prio"]: E(f"s_setprio {OPT['p1']}")
STAMP(10)
if OPT["ptime"]: E("v_mov_b32 v70, 0\nv_mov_b32 v71, 0")
if OPT["stamps"] == 1: E(f"s_memtime s[{ST0+24}:{ST0+25}]\ns_waitcnt lgkmcnt(0)")
for u in range(4): phase(u, True)
assert OPT["pc"] >= 2
def aggread(r, k, node): return f"ds_read_b64 v[{r+2*k}:{r+2*k+1}], v68 offset:{node*NSTR + 128*k}"
def tail(u):
    Dc, Dn = ((D0, D1), (D1, D0))[u & 1]
    gc = G + 16*u; gn = G + 16*((u+1) & 3)
    E(f"L_T{u}:")
    E(m_a(Dn))
    for x in exps(Dc, 0): E(x)
    E(m_e(Dn, (u+1) & 3))
    for x in exps(Dc, 1): E(x)
    E(f"ds_read_b32 v3, v2 offset:{L_DYN}")
    weave(pk_steps(gc, 0, False) + pk_steps(gc, 1, False), {2*k+1: [aggread(F, k, 32)] for k in range(4)})
    E("s_waitcnt vmcnt(2)"); E(m_s(Dn, A1, gn))
    for x in exps(Dc, 2): E(x)
    E("s_waitcnt vmcnt(0)"); E(m_s(Dn, A2, gn+8))
    for x in exps(Dc, 3): E(x)
    for x in pk_steps(gc, 2, False) + pk_steps(gc, 3, False): E(x)
    for q in (0, 2):
        for x in exps(Dn, q) + exps(Dn, q+1): E(x)
        for x in pk_steps(gn, q, False) + pk_steps(gn, q+1, False): E(x)
for u in (1, 2, 3):
    def t_(): tail(u); E("s_branch L_mdone")
    emit_to(outofline, t_)
tail(0)
E(f"""
L_mdone:
""")
STAMP(11)
if OPT["ptime"]:
    E(f"""
    s_lshl_b32 s30, s2, 4
    s_add_u32 s30, s30, s3
    s_lshl_b32 s30, s30, 8
    s_add_u32 s30, s30, 0xc00000
    v_lshl_add_u32 v2, v1, 2, s30
    s_mov_b32 exec_hi, 0
    global_store_dword v2, v70, s[20:21]
    global_store_dword v2, v71, s[20:21] offset:128
    s_mov_b64 exec, -1
    """)
if OPT["stamps"] == 1:
    E(f"s_memtime s[28:29]\ns_waitcnt lgkmcnt(0)\ns_sub_u32 s{ST0+24}, s28, s{ST0+24}")
E(f"""
    s_mov_b32 s32, {f32(2.0**32)}
    s_mov_b32 s34, {f32(-LOG2E * 2.0**-32)}
    s_mov_b32 s31, {LDS_MAX}
    v_rcp_f32 v{P}, v{P}
    v_rcp_f32 v{P+1}, v{P+1}
    v_rcp_f32 v{P+2}, v{P+2}
    v_rcp_f32 v{P+3}, v{P+3}
; the sums were read behind the count of waves that are on their last chain; with all twelve there they are complete
L_dw:
    s_waitcnt lgkmcnt(0)
    v_readfirstlane_b32 s30, v3
    s_add_u32 s30, s30, s{S_SAFE}
    s_cmp_lt_u32 s30, 12
    s_cbranch_scc1 L_dr
L_dx:
    s_cmp_ge_u32 s3, 8
    s_cbranch_scc1 L_d1
""")
for k in range(4): E(aggread(12, k, 0))
E("L_d1:")
def reread():
    E(f"L_dr:\ns_sub_u32 s31, s31, 1\ns_cbranch_scc1 L_dx\nds_read_b32 v3, v2 offset:{L_DYN}")
    for k in range(4): E(aggread(F, k, 32))
    E("s_branch L_dw")
emit_to(outofline, reread)
OSC = {0: "", 1: " sc1", 2: " nt"}[OPT["osc"]]
def silu(y, first):
    for p in range(2): E(f"v_pk_mul_f32 v[{36+2*p}:{37+2*p}], v[{y+2*p}:{y+2*p+1}], s[34:35] op_sel_hi:[1,0]")
    for k in range(4): E(f"v_exp_f32 v{36+k}, v{36+k}")
    E(f"v_pk_add_f32 v[10:11], v[{y}:{y+1}], v[{y+2}:{y+3}]" if first else f"v_pk_add_f32 v[10:11], v[10:11], v[{y}:{y+1}]")
    for p in range(2): E(f"v_pk_fma_f32 v[{36+2*p}:{37+2*p}], v[{36+2*p}:{37+2*p}], s[32:33], s[32:33] op_sel_hi:[1,0,0]")
    for k in range(4): E(f"v_rcp_f32 v{36+k}, v{36+k}")
    E("v_mov_b32 v9, 0x207" if first else f"v_pk_add_f32 v[10:11], v[10:11], v[{y+2}:{y+3}]")
    for p in range(2): E(f"v_pk_mul_f32 v[{36+2*p}:{37+2*p}], v[{y+2*p}:{y+2*p+1}], v[{36+2*p}:{37+2*p}]")
    o = 44 if first else 46
    E(f"v_cvt_pk_bf16_f32 v{o}, v36, v37\nv_cvt_pk_bf16_f32 v{o+1}, v38, v39")
    E(f"global_store_dwordx2 v69, v[{o}:{o+1}], s[18:19]{OSC}")
for k in range(4): E(f"v_cvt_f32_f64 v{28+k}, v[{F+2*k}:{F+2*k+1}]")
for p in range(2): E(f"v_pk_fma_f32 v[{28+2*p}:{29+2*p}], v[{N+2*p}:{N+2*p+1}], v[{P+2*p}:{P+2*p+1}], v[{28+2*p}:{29+2*p}]")
silu(28, True)
E(f"""
    s_cmp_ge_u32 s3, 8
    s_cbranch_scc1 L_e4
    v_subrev_u32 v69, {32*256}, v69
    s_waitcnt lgkmcnt(0)
""")
for k in range(4): E(f"v_cvt_f32_f64 v{28+k}, v[{12+2*k}:{13+2*k}]")
silu(28, False)
E(f"""
L_e4:
    v_add_f32 v10, v10, v11
    v_cmp_class_f32 vcc, v10, v9
    v_mov_b32 v2, 0
    s_cmp_lg_u32 s{S_SAFE}, 0
    s_cbranch_scc1 L_fin
    {"s_branch" if OPT["nosafe"] else "s_cbranch_vccz"} L_e5
    ds_write_b32 v2, v9 offset:{L_FLAG}
    s_waitcnt lgkmcnt(0)
L_e5:
    s_barrier                               ; B6
    ds_read_b32 v2, v2 offset:{L_FLAG}
    s_waitcnt lgkmcnt(0)
    v_readfirstlane_b32 s30, v2
    s_cmp_lg_u32 s30, 0
    s_cbranch_scc1 L_gosafe
L_fin:
""")
if OPT["stamps"]:
    E("s_waitcnt vmcnt(0)"); STAMP(13); STAMP_OUT()
if OPT["probe"] >= 0:
    T_ = ST0 + 2*OPT["probe"]
    E(f"""
    s_cmp_lg_u32 s3, {OPT["pw"]}
    s_cbranch_scc1 L_end
    s_cmp_lg_u32 s2, {OPT["pg"] if OPT["pg"] >= 0 else "s2"}
    s_cbranch_scc1 L_end
    s_sub_u32 s30, s{T_}, s{ST0}
    s_lshl_b32 s30, s30, 2
    s_add_u32 s30, s30, 3000
    s_min_u32 s30, s30, 20000
L_spin:
    s_memrealtime s[28:29]
    s_waitcnt lgkmcnt(0)
    s_sub_u32 s28, s28, s{ST0}
    s_cmp_lt_u32 s28, s30
    s_cbranch_scc1 L_spin
    """)
E(f"""
L_end:
    s_endpgm
; ---------------- fall back: redo the node terms, then evaluate edge by edge
L_gosafe:
    s_mov_b32 s{S_SAFE}, 16
    s_setprio 0
    s_waitcnt vmcnt(0) lgkmcnt(0)
    s_barrier
    s_branch L_restart
""")
out += outofline
for r in retries: E(r)
E(f"""
L_safe:
    v_and_b32 v2, 15, v1
    v_lshlrev_b32 v3, 3, v2
    v_add_u32 v3, {L_C}, v3
""")
for k in range(4):
    for s in range(4):
        E(f"ds_read_u16 v{80+4*k+s}, v3 offset:{128*k + 2*s}")
E("s_waitcnt lgkmcnt(0)")
for i in range(16):
    E(f"v_lshlrev_b32 v{80+i}, 16, v{80+i}\nv_mul_f32 v{80+i}, s40, v{80+i}")
E(f"""
    v_lshrrev_b32 v24, 4, v1
    v_mul_u32_u24 v24, 3, v24               ; 3*quarter
    s_movk_i32 s33, {NSTR}
    v_add_u32 v25, {L_NODE}, v{LN8}
    s_mov_b32 s34, s3
    s_mov_b32 s35, {POLL_MAX}
L_scell:
    s_lshl_b32 s30, s34, 10
    s_lshl_b32 s31, s{S_BUCK}, 3
    s_add_u32 s30, s30, s31
    s_add_u32 s30, s30, {WS_ROW}
    v_mov_b32 v26, s30
    global_load_dword v32, v26, s[20:21] sc1
    s_mul_i32 s30, s34, {SORTB//4}
    s_add_u32 s30, s30, {WS_REC//4}
    s_waitcnt vmcnt(0)
    v_bfe_u32 v28, v32, 12, 12              ; 3*count
    v_and_b32 v27, 0xfff, v32
    v_add_u32 v27, s30, v27
L_sver:
    v_mov_b32 v29, v1
    v_mov_b32 v31, 0
L_sv1:
    v_cmp_ge_u32 vcc, v28, v29
    s_and_saveexec_b64 s[48:49], vcc
    s_cbranch_execz L_sv2
    v_add_lshl_u32 v30, v27, v29, 2
    global_load_dword v32, v30, s[20:21] sc1
    s_waitcnt vmcnt(0)
    v_add_u32 v31, v31, v32
    s_mov_b64 exec, s[48:49]
    v_add_u32 v29, 64, v29
    s_branch L_sv1
L_sv2:
    s_mov_b64 exec, s[48:49]
""")
scan(31)
E(f"""
    s_nop 0
    v_readlane_b32 s30, v31, 63
    s_cmp_eq_u32 s30, s{S_TAG+1}
    s_cbranch_scc1 L_sok
    s_sub_u32 s35, s35, 1
    s_cbranch_scc0 L_sver
    s_branch L_sdone
L_sok:
    v_mov_b32 v29, v24
L_srec:
    v_cmp_gt_u32 vcc, v28, v29
    s_and_saveexec_b64 s[48:49], vcc
    s_cbranch_execz L_snext
    v_add_lshl_u32 v30, v27, v29, 2
    global_load_dwordx3 v[32:34], v30, s[20:21] offset:4 sc1
    s_waitcnt vmcnt(0)
    v_and_b32 v30, 0x3fff00, v32
    v_add_u32 v30, v30, v{LN16}
    buffer_load_dwordx4 v[36:39], v30, s[36:39], 0 offen sc1
    v_lshrrev_b32 v31, 24, v32
    v_mad_u32_u24 v31, v31, s33, v25
    ds_read_b64 v[40:41], v31 offset:512
    v_lshlrev_b32 v44, 16, v33
    v_and_b32 v45, 0xffff0000, v33
    v_lshlrev_b32 v46, 16, v34
    v_and_b32 v47, 0xffff0000, v34
    s_waitcnt vmcnt(0) lgkmcnt(0)
    v_lshlrev_b32 v48, 16, v40
    v_and_b32 v49, 0xffff0000, v40
    v_lshlrev_b32 v50, 16, v41
    v_and_b32 v51, 0xffff0000, v41
""")
for s in range(4):
    E(f"v_lshlrev_b32 v52, 16, v{36+s}\nv_add_f32 v{48+s}, v{48+s}, v52")
    for k in range(4):
        E(f"v_fmac_f32 v{48+s}, v{44+k}, v{80+4*k+s}")
for s in range(4): E(f"v_exp_f32 v{48+s}, v{48+s}")
E("s_nop 0")
for s in range(4): E(f"v_add_f32 v{48+s}, 1.0, v{48+s}")
for s in range(4): E(f"v_rcp_f32 v{48+s}, v{48+s}")
E("s_nop 0")
for s in range(4): E(f"v_mul_f32 v{48+s}, v{48+s}, v{36+s}")
for s in range(4): E(f"v_cvt_f64_f32 v[{54+2*s}:{55+2*s}], v{48+s}")
for s in range(4): E(f"ds_add_f64 v31, v[{54+2*s}:{55+2*s}] offset:{128*s}")
E(f"""
    s_mov_b64 exec, s[48:49]
    v_add_u32 v29, 12, v29
    s_branch L_srec
L_snext:
    s_mov_b64 exec, s[48:49]
    s_add_u32 s34, s34, {NW}
    s_cmp_lt_u32 s34, {NCHUNK}
    s_cbranch_scc1 L_scell
L_sdone:
    s_waitcnt lgkmcnt(0)
    s_barrier
    v_mov_b32 v3, 0
""")
for k in range(4): E(f"v_mov_b32 v{N+k}, 0\nv_mov_b32 v{P+k}, 1.0"); E(aggread(F, k, 32))
E(f"""
    s_branch L_mdone
L_codeend:
.section .rodata,"a"
.p2align 6
.amdhsa_kernel {NAME}
.amdhsa_next_free_vgpr 168
.amdhsa_next_free_sgpr 102
.amdhsa_accum_offset 168
.amdhsa_group_segment_fixed_size 0
.amdhsa_kernarg_size 80
.amdhsa_user_sgpr_count 2
.amdhsa_user_sgpr_kernarg_segment_ptr 1
.amdhsa_system_sgpr_workgroup_id_x 1
.end_amdhsa_kernel
""")
if OPT["al"]:
    i0 = out.index("L_L0:"); i1 = out.index("L_mdone:")
    mid = []; odd = False
    for l in out[i0:i1]:
        t = l.strip()
        if t.endswith(":") or t.startswith(";"): mid.append(l); continue
        four = t.startswith(("s_", "v_exp"))
        if not four and odd and OPT["al"] >= 3:
            mid.append("    s_nop 0"); odd = False
        if four: odd = not odd
        mid.append(l)
    pre = [".p2align 6, , 60"] if OPT["al"] != 2 else [".p2align 6, , 60", "    s_nop 0"]
    out = out[:i0] + pre + mid + out[i1:]
if OPT["drop"]:
    i0 = out.index("L_L0:"); i1 = out.index("L_mdone:")
    pats = {1: ("smfmac",), 2: ("mfma",), 3: ("32x32x8",), 4: ("smfmac",), 5: ("v_exp",)}[OPT["drop"]]
    repl = {4: "    s_nop 2", 5: "    s_nop 1"}.get(OPT["drop"])
    mid = []
    for l in out[i0:i1]:
        if any(x in l for x in pats):
            if repl: mid.append(repl)
        else: mid.append(l)
    if OPT["drop"] == 3: mid = [l.replace("v[88:103] cbsz", "0 cbsz").replace("v[72:87] cbsz", "0 cbsz") for l in mid]
    out = out[:i0] + mid + out[i1:]
if OPT["nochain"]:
    i0 = out.index("L_L0:"); i1 = out.index("L_mdone:")
    out = out[:i0] + [l for l in out[i0:i1] if not any(x in l for x in ("v_exp", "v_pk_", "mfma", "v_rcp", "v_cvt"))] + out[i1:]
open(sys.argv[1], "w").write("\n".join(out) + "\n")
```

```python
import sys, struct

OPT = dict(hb=1, pgs=0, al=0, sl=0, sigw=0, aue=0, mcl=2, b31=1, split=3, grp=0, allg=0, eag=1, stamps=0, force_safe=0, nogather=0, nosafe=0, prio=2, gsc1=1, osc=1, codepf=1, srcmask=0x3fff00, nrec=0, warm=0,
           nochain=0, probe=-1, pw=-1, pg=-1, gpf=32, early=0, cnt=0, pollmax=200000, pa=6, pb=3, pc=2, p0=3, p1=3, ptime=0,
           dist=2, ldearly=0, drop=0, wgate=0, gate=0, gate2=1, rst=0, rsc1=1, nover=0, p2gate=1, p2sleep=0, hold=0, slate=2, lpos=0, p1st=1, sig=2, gpace=4, gwin=-1, gp=0xf448c, ghold=0, nte=0, ewhen=6, eah=0, rih=0, wpf=1, gpe=40, oneb=0, tagl=0, p0e=0, aul=0, t0f=0, pre=0, prelate=0, ntx=0, rpace=-1, p2wait=0)
for a in sys.argv[2:]:
    k, v = a.split("=")
    assert k in OPT, k
    OPT[k] = int(v, 0)

out = []
def E(s=""):
    for line in s.split("\n"):
        line = line.strip()
        if not line:
            continue
        if line.endswith(":") or line.startswith(".") or line.startswith(";"):
            out.append(line)
        else:
            out.append("    " + line)

def f32(x):
    return "0x%08x" % struct.unpack("<I", struct.pack("<f", x))[0]

NAME = "standalone__edge_featured_mpnn_egc__graph_kernel"
LOG2E = 1.4426950408889634
NB = 80; NBUCK = 125; CHUNK = 1280; NCHUNK = 250
NW = 12
G_HALF = 10000 * 256
WS0 = 0
WS_REC = 0x500000
WS_ROW = 0x900000
WS_FL2 = 0x980000
WS_TAG = 0x9c0000
SORTB = CHUNK * 12 + 512
WS_STAMP = 0x1000000
L_CNT = 0; L_SOFF = 512
L_SCNT = 1024
L_CTR = 1536; L_RD = 1540; L_DONE2 = 1544; L_FLAG = 1548; L_NST = 1552; L_GST = 1556; L_GOK = 1560; L_AU = 1564; L_DYN = 1568; L_EAOK = 1572
L_DUM = L_SOFF
L_LIST = 2048
L_LISTC = L_LIST + 4096
SSTR = 272
L_SRC = L_LIST + 8192
SRCB = 80 * SSTR + 32
L_EA = L_SRC + SRCB
L_EAEND = L_EA + 2 * SRCB
L_SORT = L_EA
L_WBV = (L_EAEND + 255) // 256 * 256; L_X = L_WBV + 32768; L_WAU = L_X + 20480; L_C = L_WAU + 32768
LDS = L_C + 1024
L_NODE = L_WBV; NSTR = 648
assert L_NODE + 80 * NSTR <= L_WAU and LDS <= 163840 and L_EA % 16 == 0
NULL_SRC = 0x7fffff00
POLL_MAX = OPT["pollmax"]
LDS_MAX = 20 * POLL_MAX
SC1 = " sc1"
NTE = " nt" if OPT["nte"] else ""
NTX = " nt" if OPT["ntx"] else ""

S_HALF, S_BUCK, S_P = 22, 23, 24
S_SAFE, S_TAG = 25, 26
S_R, S_M, S_IT = 70, 71, 72
S_TAGRAW = 47
ST0 = 74

def ESTAMP(i):
    if OPT["early"] == 1 or (OPT["early"] and i == 0): E(f"s_memrealtime s[{ST0+2*i}:{ST0+2*i+1}]")
def FSTAMP(i):
    if OPT["early"] == 2: E(f"s_memrealtime s[{ST0+2*i}:{ST0+2*i+1}]\ns_waitcnt lgkmcnt(0)")
def STAMP(i):
    if OPT["stamps"] == 2:
        if i == 0: E(f"s_memrealtime s[{ST0}:{ST0+1}]")
        if i == 13: E(f"s_memrealtime s[{ST0+26}:{ST0+27}]\ns_waitcnt lgkmcnt(0)")
        return
    if OPT["early"] and 1 <= i <= 7: return
    if OPT["early"] and i == 0: return ESTAMP(0)
    if OPT["stamps"] or (OPT["probe"] >= 0 and i == OPT["probe"]):
        E(f"s_memrealtime s[{ST0+2*i}:{ST0+2*i+1}]\ns_waitcnt lgkmcnt(0)")
    elif OPT["probe"] >= 0 and i == 0:
        E(f"s_memrealtime s[{ST0}:{ST0+1}]")
NSTAMP = 14
def STAMP_OUT():
    if OPT["stamps"]:
        E(f"""
        s_lshl_b32 s30, s2, 4
        s_add_u32 s30, s30, s3
        s_lshl_b32 s30, s30, 6
        s_add_u32 s30, s30, {WS_STAMP - 0x100000}
        s_load_dwordx2 s[20:21], s[0:1], 72
        s_waitcnt lgkmcnt(0)
        s_mov_b64 exec, -1
        v_mov_b32 v3, s30""")
        for i in (range(NSTAMP) if OPT["stamps"] == 1 else (0, 8, 13)):
            E(f"v_mov_b32 v2, s{ST0+2*i}\nglobal_store_dword v3, v2, s[20:21] offset:{4*i}")
        E("s_waitcnt vmcnt(0)")

A1, A2, IDX, EAC, LN16, ASEL, CW, LN8 = 4, 8, 12, 13, 14, 16, 18, 20
LP, WS4, WN2, EA, XA, WE, OFS, AG, T, N, P, F = 22, 24, 28, 30, 32, 34, 36, 40, 44, 52, 56, 60
D0, D1, G = 72, 88, 104

def finish_tag():
    E(f"""
    s_mul_i32 s{S_TAG+1}, s{S_TAGRAW}, 0x85ebca6b
    s_mul_i32 s{S_TAG}, s{S_TAGRAW}, 0x9e3779b1
    s_add_u32 s{S_TAG+1}, s{S_TAG+1}, 0x5bd1e995
    s_add_u32 s{S_TAG}, s{S_TAG}, 0x7f4a7c15
    """)
def get_tag(lab, q):
    E(f"""
    s_cmp_lg_u32 s{S_SAFE}, 0
    s_cbranch_scc1 L_tag_{lab}
    v_mov_b32 v2, 0
    s_mov_b32 s31, {LDS_MAX}
L_tg_{lab}:
    ds_read_b128 v[{q}:{q+3}], v2 offset:{L_SCNT + 124*4}
    s_sub_u32 s31, s31, 1
    s_cbranch_scc1 L_tag_{lab}
    s_waitcnt lgkmcnt(0)
    v_readfirstlane_b32 s30, v{q+3}
    v_readfirstlane_b32 s{S_TAGRAW}, v{q+1}
    s_cmp_lg_u32 s30, 4
    s_cbranch_scc1 L_tg_{lab}
    """)
    finish_tag()
    E(f"L_tag_{lab}:")

def lds_wait(addr, mask, val, tag, sleep=0, ne=False):
    E(f"""
    v_mov_b32 v2, 0
    s_mov_b32 s31, {LDS_MAX}
    {f"s_branch L_wf_{tag}" if sleep else ""}
L_w_{tag}:
    {f"s_sleep {sleep}" if sleep else ""}
L_wf_{tag}:
    ds_read_b32 v3, v2 offset:{addr}
    s_sub_u32 s31, s31, 1
    s_cbranch_scc1 L_wd_{tag}
    s_waitcnt lgkmcnt(0)
    v_readfirstlane_b32 s30, v3
    s_and_b32 s30, s30, {mask}
    s_cmp_lg_u32 s30, {val}
    s_cbranch_scc{0 if ne else 1} L_w_{tag}
L_wd_{tag}:
    """)
SCAN = ("row_shr:1 row_mask:0xf bank_mask:0xf bound_ctrl:0", "row_shr:2 row_mask:0xf bank_mask:0xf bound_ctrl:0",
        "row_shr:4 row_mask:0xf bank_mask:0xf bound_ctrl:0", "row_shr:8 row_mask:0xf bank_mask:0xf bound_ctrl:0",
        "row_bcast:15 row_mask:0xa bank_mask:0xf", "row_bcast:31 row_mask:0xc bank_mask:0xf")
def scan(r):
    for m in SCAN:
        E(f"s_nop 1\nv_add_u32_dpp v{r}, v{r}, v{r} {m}")

def main_consts(sm=48):
    E(f"""
    v_and_b32 v2, 15, v1                    ; n'
    v_lshrrev_b32 v3, 4, v1
    v_lshl_add_u32 v3, v2, 2, v3
    v_lshlrev_b32 v3, 1, v3
    v_add_u32 v3, {L_C}, v3
    ds_read_u16 v64, v3                     ; C[0..3][feature 4n'+s]
    ds_read_u16 v65, v3 offset:128
    ds_read_u16 v66, v3 offset:256
    ds_read_u16 v67, v3 offset:384
    v_and_b32 v63, 3, v1                    ; q
    v_lshlrev_b32 v{LN8}, 3, v2
    v_lshlrev_b32 v{LN8+1}, 3, v2
    v_lshlrev_b32 v{LN16}, 4, v2
    v_lshlrev_b32 v{LN16+1}, 4, v2
    v_mov_b32 v{IDX}, 0x8888
    v_bfe_u32 v60, v1, 3, 2                 ; s = (l&31)>>3
    v_bfe_u32 v61, v1, 2, 1                 ; h = (l>>2)&1
    v_lshrrev_b32 v62, 5, v1                ; ha
    v_and_b32 v2, 1, v60
    v_lshlrev_b32 v2, 4, v2
    v_lshlrev_b32 v2, v2, s46               ; 1.0 (bf16) in half s&1
    v_lshrrev_b32 v60, 1, v60               ; s>>1
    v_lshl_add_u32 v3, v61, 1, v60
    v_sub_u32 v63, v63, v62                 ; q - ha : 0 -> A1, 2 -> A2
    v_lshl_add_u32 v3, v63, 1, v3
    v_and_b32 v63, 1, v63
    v_lshl_or_b32 v3, v63, 4, v3
    v_xor_b32 v61, v61, v62
    v_lshl_or_b32 v60, v61, 4, v60
    """)
    mk = [f"s[{sm}:{sm+1}]", f"s[{sm+2}:{sm+3}]", f"s[{sm+4}:{sm+5}]", "vcc"]
    for i in range(8):
        E(f"v_cmp_eq_u32 {mk[i%4]}, {i}, v3")
        if i % 4 == 3:
            for j in range(i-3, i+1):
                E(f"v_cndmask_b32 v{A1+j}, 0, v2, {mk[j%4]}")
    E(f"""
    v_cmp_eq_u32 {mk[0]}, 0, v60
    v_cmp_eq_u32 {mk[1]}, 1, v60
    v_and_b32 v63, 3, v1
    v_lshlrev_b32 v61, 3, v63
    v_cndmask_b32 v{ASEL}, 0, v2, {mk[0]}
    v_cndmask_b32 v{ASEL+1}, 0, v2, {mk[1]}
    v_add_u32 v{EAC}, {L_EA - 2*L_SRC}, v61
    s_lshl_b32 s30, s3, 9
    s_sub_u32 s31, s30, 4096
    s_max_i32 s31, s31, 0
    s_add_u32 s30, s30, s31
    s_add_u32 s30, s30, {L_LIST}
    v_lshrrev_b32 v2, 4, v1
    v_lshl_add_u32 v{LP}, v2, 4, s30
    v_bfe_u32 v3, v1, 2, 2
    v_lshl_add_u32 v{LP+1}, v3, 4, s30
    v_lshl_add_u32 v{LP+1}, v2, 2, v{LP+1}
    s_lshl_b32 s30, s3, 2
    s_add_u32 s30, s30, 32
    v_add_u32 v2, s30, v2
    v_mul_u32_u24 v68, {NSTR}, v2
    v_add_u32 v68, v68, v{LN8}
    v_add_u32 v68, {L_NODE - 32*NSTR}, v68
    s_mul_i32 s30, s{S_BUCK}, {NB*256}
    s_lshl_b32 s31, s{S_HALF}, 7
    s_add_u32 s30, s30, s31
    v_lshl_add_u32 v69, v2, 8, v{LN8}
    v_add_u32 v69, s30, v69
    s_waitcnt lgkmcnt(0)
    v_lshlrev_b32 v60, 16, v64
    v_lshlrev_b32 v61, 16, v65
    v_lshlrev_b32 v62, 16, v66
    v_lshlrev_b32 v63, 16, v67
    v_mul_f32 v60, s40, v60
    v_mul_f32 v61, s40, v61
    v_mul_f32 v62, s40, v62
    v_mul_f32 v63, s40, v63
    v_cvt_pk_bf16_f32 v{CW}, v60, v61
    v_cvt_pk_bf16_f32 v{CW+1}, v62, v63
    """)

def gload(g, o):
    return f"buffer_load_dwordx4 v[{g}:{g+3}], v{o}, s[36:39], 0 offen" + (SC1 if OPT["gsc1"] else "")
def oadd(o):
    return f"v_lshl_add_u64 v[{o}:{o+1}], v[{o}:{o+1}], 0, v[{LN16}:{LN16+1}]"

def pk_steps(Gc, q, first):
    t = T + 4*(q & 1); h = Gc + 4*q
    if first and q == 0:
        return [f"v_pk_add_f32 v[{P+2*p}:{P+2*p+1}], v[{t+2*p}:{t+2*p+1}], 1.0 op_sel_hi:[1,0]" for p in range(2)]
    r = []
    for p in range(2):
        n = f"v[{Gc+2*p}:{Gc+2*p+1}]" if (first and q == 1) else f"v[{N+2*p}:{N+2*p+1}]"
        r.append(f"v_pk_fma_f32 v[{N+2*p}:{N+2*p+1}], {n}, v[{t+2*p}:{t+2*p+1}], {n}")
    for p in range(2):
        r.append(f"v_pk_fma_f32 v[{N+2*p}:{N+2*p+1}], v[{h+2*p}:{h+2*p+1}], v[{P+2*p}:{P+2*p+1}], v[{N+2*p}:{N+2*p+1}]")
    for p in range(2):
        r.append(f"v_pk_fma_f32 v[{P+2*p}:{P+2*p+1}], v[{P+2*p}:{P+2*p+1}], v[{t+2*p}:{t+2*p+1}], v[{P+2*p}:{P+2*p+1}]")
    return r
def exps(Dc, q):
    t = T + 4*(q & 1)
    return [f"v_exp_f32 v{t+s}, v{Dc+4*s+q}" for s in range(4)]
def weave(main, extra):
    for i, x in enumerate(main):
        E(x)
        for y in extra.get(i, []):
            E(y)
def m_a(Dn): return f"v_mfma_f32_32x32x8_bf16 v[{Dn}:{Dn+15}], v[{ASEL}:{ASEL+1}], v[{XA}:{XA+1}], 0"
def m_e(Dn, abid): return f"v_mfma_f32_16x16x4_4b_bf16 v[{Dn}:{Dn+15}], v[{EA}:{EA+1}], v[{CW}:{CW+1}], v[{Dn}:{Dn+15}] cbsz:2 abid:{abid}"
def m_s(Dn, A, g): return f"v_smfmac_f32_32x32x32_bf16 v[{Dn}:{Dn+15}], v[{A}:{A+3}], v[{g}:{g+7}], v{IDX}"

outofline = []
def emit_to(lst, fn):
    global out
    keep = out; out = []
    fn(); lst += out; out = keep
assert OPT["pa"] == 6 and OPT["prio"] == 2
DIST = OPT["dist"]; EARLY = OPT["ldearly"]
assert not (EARLY and DIST == 4)
def phase(u, loads):
    tag = f"{'L' if loads else 'T'}{u}"
    Dc, Dn = ((D0, D1), (D1, D0))[u & 1]
    gc = G + 16*u; gn = G + 16*((u+1) & 3); gl = G + 16*((u+DIST) & 3)
    ld = loads and not OPT["nogather"]
    kw = (u + DIST + EARLY) & 3
    wsgrp = 128 * ((3 - kw + u + DIST + EARLY) // 4 + 1) if kw == 3 else None
    def addloads(ex, pos):
        if loads:
            ex.setdefault(0, []).append(oadd(OFS)); ex.setdefault(2, []).append(oadd(OFS+2))
        if ld:
            for q in range(4): ex.setdefault(pos[q], []).append(gload(gl+4*q, OFS+q))
    E(f"L_{tag}:")
    SL = OPT["slate"]
    if not SL: E(f"s_waitcnt vmcnt({4*(DIST-2)})")
    E(m_a(Dn))
    for x in exps(Dc, 0): E(x)
    E(m_e(Dn, (u+1) & 3) if SL else m_s(Dn, A1, gn))
    for x in exps(Dc, 1): E(x)
    ex = {0: ["s_waitcnt lgkmcnt(0)"], 2: [f"ds_read_b64 v[{XA}:{XA+1}], v{AG + ((u+2) & 3)} offset:512"]}
    if u % 2 == 0:
        p = AG + ((u+2) & 3)
        ex[0].append(f"v_lshl_add_u64 v[{p}:{p+1}], v[{WN2}:{WN2+1}], 0, v[{LN8}:{LN8+1}]")
    if EARLY: addloads(ex, (1, 3, 5, 6))
    elif loads: ex[1] = [f"ds_read_b128 v[{OFS}:{OFS+3}], v{WS4+kw}"]
    if u == 2:
        ex.setdefault(4, []).append(f"v_lshl_add_u32 v{WE}, v{WE}, 1, v{EAC}")
        if SL: ex.setdefault(7, []).append(f"ds_read_b64 v[{EA}:{EA+1}], v{WE}")
    E(f"s_bitcmp1_b32 s{S_M}, 0\ns_cbranch_scc1 L_{tag}f")
    weave(pk_steps(gc, 0, False) + pk_steps(gc, 1, False), ex)
    E(f"L_{tag}r:")
    def first():
        E(f"L_{tag}f:")
        weave(pk_steps(gc, 0, True) + pk_steps(gc, 1, True), ex)
        E(f"s_branch L_{tag}r")
    emit_to(outofline, first)
    if SL:
        if OPT["ptime"]: E(f"s_memrealtime s[28:29]\ns_mov_b32 m0, s{S_R}")
        E(f"s_waitcnt vmcnt({4*(DIST-2) + (4 if (EARLY and loads) else 0) + (2 if SL == 2 else 0)})")
        E(m_s(Dn, A1, gn))
    else:
        E(m_e(Dn, (u+1) & 3))
    for x in exps(Dc, 2): E(x)
    if SL == 2: E(f"s_waitcnt vmcnt({4*(DIST-2) + (4 if (EARLY and loads) else 0)})")
    if OPT["ptime"]: E(f"s_memrealtime s[30:31]")
    E(m_s(Dn, A2, gn+8))
    for x in exps(Dc, 3): E(x)
    ex = {0: ["s_waitcnt lgkmcnt(0)"], 4: [], 6: [], 7: [f"s_sub_u32 s{S_R}, s{S_R}, 1"], 10: [f"s_lshr_b32 s{S_M}, s{S_M}, 1"], 11: [f"s_bitcmp1_b32 s{S_M}, 0"]}
    if OPT["ptime"]: ex[0] += ["v_writelane_b32 v70, s28, m0", "v_writelane_b32 v71, s30, m0"]
    if not EARLY: addloads(ex, (1, 3, 5, 9) if DIST == 4 else ((1, 3, 5, 7), (1, 2, 3, 4), (4, 6, 8, 10), (2, 5, 8, 10))[OPT['lpos']])
    elif loads: ex[1] = [f"ds_read_b128 v[{OFS}:{OFS+3}], v{WS4+kw}"]
    if u == 1:
        ex[4].append(f"ds_read_b64 v[{WN2}:{WN2+1}], v{LP} offset:{128+64}")
        ex[6].append(f"ds_read_b32 v{WE}, v{LP+1} offset:128")
    if u == 2 and not SL:
        ex[4].append(f"ds_read_b64 v[{EA}:{EA+1}], v{WE}")
    if u == 3:
        ex[4].append(f"ds_read_b64 v[{WN2}:{WN2+1}], v{LP} offset:{128+64+8}")
        ex.setdefault(8, []).append(f"v_lshl_add_u64 v[{LP}:{LP+1}], v[{LP}:{LP+1}], 0, s[44:45]")
    if wsgrp and loads: ex[6].append(f"ds_read_b128 v[{WS4}:{WS4+3}], v{LP} offset:{wsgrp}")
    weave(pk_steps(gc, 2, False) + pk_steps(gc, 3, False), ex)
    E(f"s_cbranch_scc1 L_{tag}z\nL_{tag}y:")
    def fin():
        E(f"""
L_{tag}z:
        v_rcp_f32 v{P}, v{P}
        v_rcp_f32 v{P+1}, v{P+1}
        v_rcp_f32 v{P+2}, v{P+2}
        v_rcp_f32 v{P+3}, v{P+3}
        v_pk_mul_f32 v[{N}:{N+1}], v[{N}:{N+1}], v[{P}:{P+1}]
        v_pk_mul_f32 v[{N+2}:{N+3}], v[{N+2}:{N+3}], v[{P+2}:{P+3}]
        """)
        for s_ in range(4):
            E(f"v_cvt_f64_f32 v[{F+2*s_}:{F+2*s_+1}], v{N+s_}")
            if s_: E(f"ds_add_f64 v{AG+u}, v[{F+2*s_-2}:{F+2*s_-1}] offset:{128*(s_-1)}")
        E(f"ds_add_f64 v{AG+u}, v[{F+6}:{F+7}] offset:384")
        E(f"s_branch L_{tag}y")
    emit_to(outofline, fin)
    if OPT["prio"] == 2:
        E(f"s_bitcmp1_b32 s{S_IT}, s{S_R}\ns_cbranch_scc1 L_{tag}q\nL_{tag}p:")
        def pr():
            E(f"""
L_{tag}q:
            s_setprio 0
            s_cmp_le_u32 s{S_R}, {OPT["pc"]}
            s_cbranch_scc1 L_{tag}p
            s_setprio 1
            s_cmp_le_u32 s{S_R}, {OPT["pb"]}
            s_cbranch_scc1 L_{tag}p
            s_setprio 2
            s_mov_b64 exec, 1
            ds_add_u32 v2, v3 offset:{L_DYN}
            s_mov_b64 exec, -1
            s_branch L_{tag}p
            """)
        emit_to(outofline, pr)
    if u == 3 and OPT["prio"] == 1:
        E(f"""
        s_add_u32 s{S_IT}, s{S_IT}, 1
        s_setprio 0
        s_cmp_gt_u32 s{S_IT}, 2
        s_cbranch_scc1 L_{tag}p
        s_setprio 1
        s_cmp_eq_u32 s{S_IT}, 2
        s_cbranch_scc1 L_{tag}p
        s_setprio 2
L_{tag}p:
        """)
    if loads:
        E(f"s_cmp_le_u32 s{S_R}, {DIST}")
        if u < 3: E(f"s_cbranch_scc1 L_T{u+1}")
        else: E("s_cbranch_scc0 L_L0")
    else:
        E(f"s_waitcnt vmcnt(0)\ns_cmp_eq_u32 s{S_R}, 0")
        if u < 3: E("s_cbranch_scc1 L_mdone")
        else: E("s_cbranch_scc0 L_T0")

E(f"""
; Edge-gated message passing in one launch, one workgroup per (bucket of 80 nodes, half of the features).
;  sum_i h_i / (1 + t_i), t = exp(-z), is carried as a fraction N / P along a node's edges (exact algebra); if that
; @launch grid=(256,1,1) block=({64*NW},1,1) lds={LDS}
.amdgcn_target "amdgcn-amd-amdhsa--gfx950"
.text
.globl {NAME}
.p2align 8
.type {NAME},@function
{NAME}:
""")
if OPT["stamps"] == 1 and OPT["early"] != 1:
    for i in range(NSTAMP): E(f"s_mov_b64 s[{ST0+2*i}:{ST0+2*i+1}], 0")
STAMP(0)
E(f"""
    s_load_dwordx16 s[4:19], s[0:1], 0
    s_load_dwordx2 s[20:21], s[0:1], 72
""")
if OPT["codepf"]:
    E(f"""
    s_getpc_b64 s[28:29]
L_pc:
    v_lshlrev_b32 v3, 7, v0
    v_cmp_gt_u32 vcc, L_codeend-L_pc-64, v3
    s_cbranch_vccz L_nopf
    s_mov_b64 exec, vcc
    global_load_dword v164, v3, s[28:29]
    s_mov_b64 exec, -1
L_nopf:
    """)
E(f"""
    v_lshrrev_b32 v2, 6, v0
    v_and_b32 v1, 63, v0
    v_readfirstlane_b32 s3, v2
    {"s_bfe_u32 s%d, s2, 0x10002" % S_HALF if OPT["hb"] else "s_and_b32 s%d, s2, 1" % S_HALF}
    {"s_and_b32 s30, s2, 3" if OPT["hb"] else "s_bfe_u32 s30, s2, 0x20001"}
    {"s_mul_i32 s30, s30, 31" if OPT["b31"] else "s_lshl_b32 s30, s30, 5"}
    s_lshr_b32 s31, s2, 3
    s_add_u32 s{S_BUCK}, s30, s31
    {"s_cmp_eq_u32 s30, 93                    ; 31 buckets per XCD of a half, 32 on the last" if OPT["b31"] else "s_cmp_ge_u32 s2, 256"}
    {"s_subb_u32 s31, s31, 0" if OPT["b31"] else "s_cbranch_scc1 L_end"}
    {"s_cmp_ge_i32 s31, 31" if OPT["b31"] else "s_cmp_ge_u32 s%d, %d" % (S_BUCK, NBUCK)}
    s_cbranch_scc1 L_end
    s_lshl_b32 s{S_P}, s{S_BUCK}, 1
    s_add_u32 s{S_P}, s{S_P}, s{S_HALF}
    s_mov_b32 s{S_SAFE}, 0
L_restart:
    s_cmp_ge_u32 s3, 4
    s_cbranch_scc1 L_nosort
    v_mov_b32 v48, 0
    v_mov_b32 v49, 0
    v_mov_b32 v50, 0
    v_mov_b32 v51, 0
    v_lshlrev_b32 v10, 4, v1
    ds_write_b128 v10, v[48:51] offset:{L_SCNT}
    s_mul_i32 s30, s{S_P}, {CHUNK*4}
    v_lshl_add_u32 v3, v0, 4, s30
    s_add_u32 s30, s30, 4096
    v_lshl_add_u32 v18, v0, 2, s30
    v_lshlrev_b32 v10, 1, v3
    v_lshlrev_b32 v11, 1, v18
    v_mov_b32 v17, {WS_TAG}
    s_waitcnt lgkmcnt(0)
    global_load_dwordx4 v[4:7], v3, s[10:11]{NTE}
    global_load_dword v8, v18, s[10:11]{NTE}
    global_load_dword v43, v17, s[20:21]
""")
def preclear():
    E(f"""
    s_cmp_lg_u32 s{S_SAFE}, 0
    s_cbranch_scc1 L_nopre
    s_mul_i32 s30, s{S_HALF}, {G_HALF}
    s_mul_i32 s31, s{S_BUCK}, {NB*256}
    s_add_u32 s30, s30, s31
    s_add_u32 s30, s30, {4096*(5-OPT["pre"])}
    v_lshl_add_u32 v19, v0, 4, s30
    """)
    for i in range(OPT["pre"]):
        E("global_store_dwordx4 v19, v[48:51], s[20:21] sc1")
        if i + 1 < OPT["pre"]: E("v_add_u32 v19, 4096, v19")
    E("L_nopre:")
if OPT["pre"] and not OPT["prelate"]: preclear()
E(f"""
    {"" if OPT["oneb"] else "s_barrier"}
""")
if OPT["ewhen"] == 0: E(f"""
    global_load_dwordx4 v[12:15], v3, s[8:9]{NTE}
    global_load_dword v16, v18, s[8:9]{NTE}
    global_load_dwordx4 v[52:55], v10, s[6:7]{NTE}
    global_load_dwordx4 v[56:59], v10, s[6:7] offset:16{NTE}
    global_load_dwordx2 v[60:61], v11, s[6:7]{NTE}
""")
E("s_barrier                               ; B0b")
if OPT["ewhen"] == 7: E(f"""
    global_load_dwordx4 v[12:15], v3, s[8:9]{NTE}
    global_load_dword v16, v18, s[8:9]{NTE}
    global_load_dwordx4 v[52:55], v10, s[6:7]{NTE}
    global_load_dwordx4 v[56:59], v10, s[6:7] offset:16{NTE}
    global_load_dwordx2 v[60:61], v11, s[6:7]{NTE}
""")
if OPT["pre"] and OPT["prelate"]: preclear()
E(f"""
    s_branch L_sort
L_nosort:
    s_and_b32 s32, s3, 3                    ; tau
    s_lshr_b32 s33, s3, 3
    v_lshrrev_b32 v2, 4, v1                 ; g
    v_and_b32 v4, 15, v1
    s_lshl_b32 s30, s32, 2
    v_add_u32 v6, s30, v2                   ; row&15
    v_xor_b32 v7, v4, v6
    v_lshlrev_b32 v7, 4, v7
    v_lshl_add_u32 v7, v6, 8, v7
    s_mul_i32 s73, s{S_BUCK}, {NB*256}
    s_mul_i32 s31, s33, {3*4096}
    s_add_u32 s30, s73, s31
    v_add_u32 v7, s30, v7
    v_add_u32 v8, 0x1000, v7
    v_add_u32 v9, 0x2000, v7
    s_lshl_b32 s30, s32, 10
    s_add_u32 s31, s31, s30
    s_add_u32 m0, s31, {L_X}
    v_subrev_u32 v30, 256, v0               ; t = 0..511
    v_lshlrev_b32 v31, 4, v30
    v_mov_b32 v36, 0
    v_mov_b32 v37, 0
    v_mov_b32 v38, 0
    v_mov_b32 v39, 0
    v_add_u32 v40, {L_EA}, v31
    ds_write_b128 v40, v[36:39]
    ds_write_b128 v40, v[36:39] offset:8192
""")
if OPT["wpf"]:
    E(f"""
    s_lshr_b32 s30, s2, 3
    s_lshl_b32 s30, s30, 2
    v_add_u32 v3, s30, v1
    v_and_b32 v3, 127, v3
    s_lshl_b32 s30, s{S_HALF}, 7
    s_cmp_eq_u32 s3, 4
    s_cselect_b32 s31, 0x8000, 0
    s_add_u32 s30, s30, s31
    v_lshl_add_u32 v3, v3, 8, s30
    s_waitcnt lgkmcnt(0)
    s_cmp_lg_u32 s33, 0
    s_cbranch_scc1 L_nowpf
    s_cmp_eq_u32 s3, 5
    s_cselect_b32 s34, s14, s16
    s_cselect_b32 s35, s15, s17
    s_cmp_eq_u32 s3, 7
    s_cselect_b32 s34, s12, s34
    s_cselect_b32 s35, s13, s35
    s_mov_b64 exec, 0xffff
    global_load_dword v167, v3, s[34:35]
    s_mov_b64 exec, -1
L_nowpf:
    """)
    if OPT["wpf"] == 2:
        E(f"""
        s_cmp_lg_u32 s3, 8
        s_cbranch_scc1 L_notch
        s_mul_i32 s30, s{S_P}, {CHUNK*4}
        v_mov_b32 v3, s30
        v_lshlrev_b32 v5, 1, v3
        v_lshlrev_b32 v6, 21, v1
        s_mov_b64 exec, 1
        global_load_dword v167, v3, s[8:9]
        global_load_dword v166, v5, s[6:7]
        s_mov_b64 exec, 31
        global_load_dword v165, v6, s[20:21] sc1
        s_mov_b64 exec, 3
        global_load_dword v164, v6, s[18:19] sc1
        s_mov_b64 exec, -1
L_notch:
        """)
E(f"""
    s_waitcnt lgkmcnt(0)
    {"" if OPT["oneb"] else "s_barrier"}
""")
if not OPT["t0f"]: E(f"""
    global_load_lds_dwordx4 v7, s[4:5]{NTX}
    s_add_u32 m0, m0, 0x1000
    s_cmp_lg_u32 s33, 0
    global_load_lds_dwordx4 v8, s[4:5]{NTX}
    s_cbranch_scc1 L_x2
    s_add_u32 m0, m0, 0x1000
    s_nop 0
    global_load_lds_dwordx4 v9, s[4:5]{NTX}
L_x2:
    s_barrier
""")
else: E(f"""
    s_mov_b32 s29, m0
    s_cmp_lg_u32 s33, 0
    s_cbranch_scc1 L_x2
    global_load_lds_dwordx4 v7, s[4:5]
    s_add_u32 s29, s29, 0x1000
    v_mov_b32 v7, v8
    v_mov_b32 v8, v9
L_x2:
""")
E(f"""
    v_lshrrev_b32 v5, 3, v1
    v_and_b32 v3, 1, v2
    s_and_b32 s30, s3, 1
    s_lshl_b32 s30, s30, 1
    v_or_b32 v3, s30, v3                    ; sigma
    v_lshlrev_b32 v3, 1, v3
    v_and_b32 v20, 7, v1
    v_xor_b32 v3, v3, v20
    v_lshlrev_b32 v3, 4, v3
    v_lshl_add_u32 v10, v5, 8, v3
    s_sub_u32 s28, s3, 4
    s_lshl_b32 s30, s28, 11
    s_lshl_b32 s31, s{S_HALF}, 7
    s_add_u32 s30, s30, s31
    v_add_u32 v10, s30, v10
    v_add_u32 v11, 0x4000, v10
    s_lshl_b32 s28, s28, 10
    s_add_u32 s34, s16, {128*256}
    s_addc_u32 s35, s17, 0
    s_cmp_lg_u32 s3, 11
    s_cbranch_scc1 L_noc
    v_and_b32 v5, 3, v5
    v_lshlrev_b32 v20, 4, v20
    v_lshl_add_u32 v5, v5, 8, v20
    s_add_u32 s31, s31, {256*256}
    s_mov_b32 m0, {L_C}
    v_add_u32 v5, s31, v5
    global_load_lds_dwordx4 v5, s[16:17]
L_noc:
    s_add_u32 m0, s28, {L_WBV}
""")
for ti, base in enumerate((34, 14)):
    for n in range(2):
        E(f"s_nop 0\nglobal_load_lds_dwordx4 v{10+n}, s[{base}:{base+1}]")
        if not (ti == 1 and n == 1):
            E(f"s_add_u32 m0, m0, 0x2000")
def stage_au():
    E(f"""
    v_lshrrev_b32 v5, 3, v1
    v_bfe_u32 v3, v1, 4, 1
    v_lshlrev_b32 v3, 1, v3
    v_and_b32 v20, 7, v1
    v_xor_b32 v3, v3, v20
    v_lshlrev_b32 v3, 4, v3
    v_lshl_add_u32 v6, v5, 8, v3
    s_lshl_b32 s30, s{S_HALF}, 7
    s_and_b32 s31, s3, 1
    s_lshl_b32 s31, s31, 14
    s_add_u32 s30, s30, s31
    v_add_u32 v6, s30, v6
    v_xor_b32 v7, 64, v6
    v_add_u32 v8, 2048, v6
    v_add_u32 v9, 3072, v7
    v_add_u32 v7, 1024, v7
    s_lshl_b32 s30, s32, 13
    s_add_u32 m0, s30, {L_WAU}
    s_cmp_lt_u32 s32, 2
    s_cselect_b32 s34, s16, s12
    s_cselect_b32 s35, s17, s13
    global_load_lds_dwordx4 v6, s[34:35]
    global_load_lds_dwordx4 v7, s[34:35] offset:1024
    global_load_lds_dwordx4 v8, s[34:35] offset:2048
    global_load_lds_dwordx4 v9, s[34:35] offset:3072
    s_add_u32 m0, m0, 4096
    s_add_u32 s34, s34, 8192
    s_addc_u32 s35, s35, 0
    global_load_lds_dwordx4 v6, s[34:35]
    global_load_lds_dwordx4 v7, s[34:35] offset:1024
    global_load_lds_dwordx4 v8, s[34:35] offset:2048
    global_load_lds_dwordx4 v9, s[34:35] offset:3072
""")
if OPT["aue"] == 1:
    E("s_cmp_eq_u32 s33, 0\ns_cbranch_scc1 L_noau"); stage_au(); E("L_noau:")
if OPT["t0f"]:
    E(f"""
    s_mov_b32 m0, s29
    s_barrier                               ; B0b
    global_load_lds_dwordx4 v7, s[4:5]
    s_add_u32 m0, m0, 0x1000
    s_nop 0
    global_load_lds_dwordx4 v8, s[4:5]
    """)
if OPT["wgate"] or OPT["ewhen"] in (5, 6, 8, 9):
    E(f"""
    v_mov_b32 v7, 0x1000000
    s_mov_b64 exec, 1
    ds_add_u32 v36, v7 offset:{L_CTR}
    s_mov_b64 exec, -1
    """)
STAMP(1)
E(f"""
    v_mov_b32 v32, {NULL_SRC}
    v_mov_b32 v33, v32
    v_mov_b32 v34, v32
    v_mov_b32 v35, v32
""")
def cover(lo, n): return list(range(lo, n - 8192, 8192)) + [n - 8192]
for o in cover(16384, L_EAEND - L_EA): E(f"ds_write_b128 v40, v[36:39] offset:{o}")
for o in cover(0, SRCB): E(f"ds_write_b128 v31, v[32:35] offset:{L_SRC + o}")
E(f"""
    v_and_b32 v32, 3, v30           ; quarter
    v_bfe_u32 v33, v30, 3, 3
    v_lshrrev_b32 v34, 5, v30
    s_and_b32 s30, s3, 3
    s_add_u32 s30, s30, 16
    s_cmp_ge_u32 s3, 8
    s_cselect_b32 s31, 7, 3
    s_cselect_b32 s29, 0, 6
    s_cselect_b64 vcc, -1, 0
    v_and_b32 v33, s31, v33
    v_mov_b32 v35, s30
    v_cndmask_b32 v34, v34, v35, vcc
    v_lshl_add_u32 v32, v34, 2, v32
    v_bfe_u32 v34, v30, 2, 1
    v_mul_u32_u24 v35, {NSTR - SSTR}, v34
    v_mul_u32_u24 v41, {L_NODE - L_SRC}, v34
    v_mul_u32_u24 v42, {L_SRC + 80*SSTR - L_DUM}, v34
    v_lshlrev_b32 v43, 4, v34
    v_add_u32 v35, {SSTR}, v35
    v_add_u32 v41, {L_SRC}, v41
    v_sub_u32 v42, {L_SRC + 80*SSTR}, v42
    v_sub_u32 v43, 16, v43
    v_lshlrev_b32 v33, 2, v33
    v_mad_u32_u24 v41, v32, v35, v41
    v_mad_u32_u24 v41, v33, v43, v41
    v_lshlrev_b32 v35, 5, v35
    v_lshlrev_b32 v34, 3, v43
    v_sub_u32 v35, v35, v34
    v_cmp_gt_u32 s[48:49], 8, v33
    v_and_b32 v33, 7, v33
    v_add_u32 v34, 2, v33
    v_cmp_gt_u32 s[52:53], s29, v33
    v_cmp_gt_u32 s[54:55], s29, v34
    v_cndmask_b32 v44, v35, 0, s[48:49]
    v_cndmask_b32 v46, v35, 0, s[48:49]
    v_add_u32 v44, v41, v44
    v_lshl_add_u32 v46, v43, 1, v46
    v_add_u32 v46, v41, v46
    v_add_u32 v45, v44, v43
    v_add_u32 v47, v46, v43
    v_cndmask_b32 v44, v42, v44, s[52:53]
    v_cndmask_b32 v45, v42, v45, s[52:53]
    v_cndmask_b32 v46, v42, v46, s[54:55]
    v_cndmask_b32 v47, v42, v47, s[54:55]
    ds_write_b128 v31, v[44:47] offset:{L_LIST}
    s_cmp_ge_u32 s3, 6
    s_cbranch_scc1 L_pf3
    v_mul_u32_u24 v42, {SSTR}, v30
    v_add_u32 v42, {L_SRC}, v42
    v_lshlrev_b32 v41, 2, v30
    ds_write_b32 v41, v42 offset:{L_CNT}
L_pf3:
    v_bfe_u32 v3, v1, 2, 2                  ; r
    v_lshl_add_u32 v5, v2, 3, v3            ; 8g + r
    v_lshrrev_b32 v3, 1, v3
    v_and_b32 v6, 1, v2
    v_lshl_or_b32 v3, v6, 1, v3             ; sigma
    v_xor_b32 v3, s32, v3
    v_lshlrev_b32 v3, 5, v3
    v_lshl_add_u32 v10, v5, 7, v3
    v_and_b32 v3, 3, v1
    v_lshl_add_u32 v10, v3, 3, v10
    s_mul_i32 s31, s33, {L_WAU - L_WBV}
    s_add_u32 s31, s31, {L_WBV}
    v_add_u32 v10, s31, v10
    v_xor_b32 v3, v2, v4
    v_lshlrev_b32 v3, 4, v3
    v_lshl_add_u32 v12, v4, 8, v3
    v_add_u32 v12, {L_X}, v12
    v_xor_b32 v13, 64, v12
    v_xor_b32 v14, 0x80, v12
    v_xor_b32 v15, 0xc0, v12
    s_mul_i32 s30, s{S_HALF}, {G_HALF}
    s_add_u32 s30, s30, s73
    s_lshl_b32 s31, s32, 6
    s_add_u32 s30, s30, s31
    v_lshlrev_b32 v11, 10, v2
    v_lshl_add_u32 v11, v4, 2, v11
    v_add_u32 v11, s30, v11
    s_lshl_b32 s31, s32, 5
    s_add_u32 s31, s31, {L_NODE}
    v_mul_u32_u24 v16, {NSTR}, v4
    v_lshl_add_u32 v16, v2, 3, v16
    v_add_u32 v16, s31, v16
    s_mov_b32 s40, {f32(-LOG2E)}
    s_mov_b32 s42, {f32(2.0**32)}
    s_mov_b32 s44, 0x07060100
    s_mov_b32 s45, 0x07060302
    s_mov_b32 s46, 0x3f80
    v_mov_b32 v17, {f32(2.0**-100)}
    v_mov_b32 v19, 1
    v_mov_b32 v18, 0
""")
def staged():
    if not OPT["tagl"]: get_tag("g", 160)
    if OPT["aue"] == 2:
        E("s_cmp_eq_u32 s33, 0\ns_cbranch_scc1 L_noau"); stage_au(); E("L_noau:")
    if OPT["aue"]: E("s_waitcnt vmcnt(8)\ns_cmp_lg_u32 s33, 0\ns_cbranch_scc1 L_stg")
    E(f"""
    s_waitcnt vmcnt(0)
L_stg:
    s_mov_b64 exec, 1
    ds_add_u32 v18, v19 offset:{L_CTR}
    s_mov_b64 exec, -1
    """)
    STAMP(2)
    lds_wait(L_CTR, 0xff, 8, "g1", sleep=(OPT["sl"] >> 1) & 1)
if OPT["t0f"]:
    E(f"""
    s_waitcnt vmcnt(2)
    s_mov_b64 exec, 1
    ds_add_u32 v18, v19 offset:{L_AU}
    s_mov_b64 exec, -1
    s_or_b32 s30, s33, s{S_SAFE}
    s_cbranch_scc0 L_t0
    """)
staged()
STAMP(3)
NP = 8
RA = 72; RB = RA + 4*NP; RAD = RB + 4*NP
J3N, J12, J3N2, CELL, ROWA, FOUR, L0M, ACC, ENT, CAD = 156, 157, 158, 159, 160, 161, 162, 163, 164, 166
def rec_setup():
    E(f"""
    v_and_b32 v3, 15, v1                    ; j
    v_lshrrev_b32 v2, 4, v1
    v_lshl_add_u32 v{CELL}, v2, 3, v3
    s_lshl_b32 s30, s29, 5
    v_add_u32 v{CELL}, s30, v{CELL}
    s_lshl_b32 s30, s{S_BUCK}, 3
    s_add_u32 s30, s30, {WS_ROW}
    v_lshl_add_u32 v{ROWA}, v{CELL}, 10, s30
    v_cmp_gt_u32 s[66:67], {NP}, v3
    v_cmp_gt_u32 vcc, {NCHUNK}, v{CELL}
    v_mov_b32 v{ENT}, 0
    s_and_b64 s[66:67], s[66:67], vcc
    s_mov_b64 exec, s[66:67]
    global_load_dwordx2 v[{ENT}:{ENT+1}], v{ROWA}, s[20:21] sc1
    s_mov_b64 exec, -1
    v_mul_u32_u24 v{CELL}, {SORTB//4}, v{CELL}
    v_add_u32 v{CELL}, {WS_REC//4}, v{CELL}
    v_mul_u32_u24 v{J12}, 12, v3
    v_mul_u32_u24 v{J3N}, 3, v3
    v_not_b32 v{J3N}, v{J3N}
    v_subrev_u32 v{J3N2}, 48, v{J3N}
    v_subrev_u32 v{L0M}, 1, v3
    v_ashrrev_i32 v{L0M}, 31, v{L0M}            ; all ones in the first lane of each row
    v_mov_b32 v{FOUR}, 4
    """)
WF = 20; XF = 52; AC = 132
def wreads(ks):
    for t in range(2):
        for rd in range(2):
            r = WF + 16*t + 4*ks + 2*rd
            E(f"ds_read_b64_tr_b16 v[{r}:{r+1}], v10 offset:{t*16384 + ks*4096 + rd*512}")
def xread(rt, ks):
    r = XF + 16*rt + 4*ks
    return f"ds_read_b128 v[{r}:{r+3}], v{12+ks} offset:{rt*4096}"
def mf(rt, ks, transposed):
    for t in range(2):
        a = XF + 16*rt + 4*ks; w = WF + 16*t + 4*ks; d = AC + 8*(rt % 3) + 4*t
        c = "0" if ks == 0 else f"v[{d}:{d+3}]"
        if transposed: a, w = w, a
        E(f"v_mfma_f32_16x16x32_bf16 v[{d}:{d+3}], v[{a}:{a+3}], v[{w}:{w+3}], {c}")
def gemm(transposed, finish, before_first):
    for ks in range(3):
        E(xread(0, ks)); wreads(ks)
    E("s_waitcnt lgkmcnt(10)"); mf(0, 0, transposed)
    E(xread(0, 3)); wreads(3)
    E("s_waitcnt lgkmcnt(10)"); mf(0, 1, transposed)
    for ks in range(4): E(xread(1, ks))
    E("s_waitcnt lgkmcnt(9)"); mf(0, 2, transposed)
    for ks in range(4): E(xread(2, ks))
    E("s_waitcnt lgkmcnt(8)"); mf(0, 3, transposed)
    for ks in range(4): E(xread(3, ks))
    if OPT["p0e"]:
        E("s_nop 3"); finish(0)
    E("s_waitcnt lgkmcnt(8)")
    for ks in range(4):
        mf(1, ks, transposed); E(xread(4, ks))
    E(f"""
    s_mov_b64 exec, 1
    ds_add_u32 v18, v19 offset:{L_RD}
    s_mov_b64 exec, -1
    """)
    before_first()
    if not OPT["p0e"]: finish(0)
    E("s_waitcnt lgkmcnt(0)")
    for rt in range(2, 5):
        for ks in range(4): mf(rt, ks, transposed)
        finish(rt-1)
    finish(4)
def pack(rt):
    b = AC + 8*(rt % 3); h = b + 4
    for r in range(4): E(f"v_mul_f32 v{b+r}, s40, v{b+r}")
    for r in range(4): E(f"v_fma_f32 v{h+r}, v{h+r}, s42, v17")
    E(f"""
    v_cvt_pk_bf16_f32 v4, v{b}, v{b+1}
    v_cvt_pk_bf16_f32 v5, v{b+2}, v{b+3}
    v_xor_b32 v2, 0x80008000, v4
    v_xor_b32 v3, 0x80008000, v5
    v_sub_u32_sdwa v{h}, v{h}, sext(v2) dst_sel:DWORD dst_unused:UNUSED_PAD src0_sel:DWORD src1_sel:WORD_0
    v_sub_u32_sdwa v{h+1}, v{h+1}, sext(v2) dst_sel:DWORD dst_unused:UNUSED_PAD src0_sel:DWORD src1_sel:WORD_1
    v_sub_u32_sdwa v{h+2}, v{h+2}, sext(v3) dst_sel:DWORD dst_unused:UNUSED_PAD src0_sel:DWORD src1_sel:WORD_0
    v_sub_u32_sdwa v{h+3}, v{h+3}, sext(v3) dst_sel:DWORD dst_unused:UNUSED_PAD src0_sel:DWORD src1_sel:WORD_1
    """)
    w = (OPT["gp"] >> (4*(4-rt))) & 15 if OPT["gp"] else OPT["gpace"]
    if 0 <= w < 4*rt: E(f"s_waitcnt vmcnt({w})")
    if OPT["pre"] and rt == 5 - OPT["pre"]: lds_wait(L_SCNT + 126*4, 0xff, 4, "pre")
    if rt + 1 in (OPT["eah"], OPT["rih"]): lds_wait(L_EAOK, 0xff, 4, "eah")
    if OPT["ghold"] == rt + 1:
        E("v_mov_b32 v6, v2\nv_mov_b32 v7, v3"); lds_wait(L_CTR, 0xff00, 0x400, "gh", sleep=1); E("v_mov_b32 v2, v6\nv_mov_b32 v3, v7")
    for r in range(4):
        E(f"v_perm_b32 v{h+r}, v{h+r}, v{4 + (r>>1)}, s{44 + (r&1)}")
        if OPT["gwin"] >= 0: E(f"s_waitcnt vmcnt({OPT['gwin']})")
        E(f"global_store_dword v11, v{h+r}, s[20:21] offset:{256*r} sc1")
    if rt < 4: E("v_add_u32 v11, 0x1000, v11")
def fin(rt):
    a = AC + 8*(rt % 3); u = a + 4
    for r in range(4): E(f"v_mul_f32 v{a+r}, s40, v{a+r}")
    for r in range(4): E(f"v_mul_f32 v{u+r}, s42, v{u+r}")
    E(f"""
    v_cvt_pk_bf16_f32 v{a}, v{a}, v{a+1}
    v_cvt_pk_bf16_f32 v{a+1}, v{a+2}, v{a+3}
    v_cvt_f64_f32 v[2:3], v{u}
    v_cvt_f64_f32 v[4:5], v{u+1}
    v_cvt_f64_f32 v[6:7], v{u+2}
    v_cvt_f64_f32 v[8:9], v{u+3}
    ds_write_b64 v16, v[{a}:{a+1}] offset:512
    ds_write2_b64 v16, v[2:3], v[4:5] offset0:0 offset1:16
    ds_write2_b64 v16, v[6:7], v[8:9] offset0:32 offset1:48
    """)
    if rt < 4: E(f"v_add_u32 v16, {16*NSTR}, v16")
E(f"""
    s_cmp_lg_u32 s33, 0
    s_cbranch_scc1 L_gemm2
    s_cmp_lg_u32 s{S_SAFE}, 0
    s_cbranch_scc1 L_nog1
    s_setprio 2
""")
if OPT["t0f"]:
    E("L_t0:\ns_setprio 2")
    lds_wait(L_AU, 0xff, 8, "t0")
    STAMP(3)
    for ks in range(3):
        E(xread(0, ks)); wreads(ks)
    E("s_waitcnt lgkmcnt(10)"); mf(0, 0, False)
    E(xread(0, 3)); wreads(3)
    for ks in range(1, 4):
        E(f"s_waitcnt lgkmcnt({15 - 5*ks})"); mf(0, ks, False)
    E("s_nop 7"); pack(0)
    get_tag("t", 160)
    E(f"""
    s_waitcnt vmcnt(4)
    s_mov_b64 exec, 1
    ds_add_u32 v18, v19 offset:{L_CTR}
    s_mov_b64 exec, -1
    """)
    lds_wait(L_CTR, 0xff, 8, "t1")
    for rt in range(1, 4):
        for ks in range(4): E(xread(rt, ks))
    E("s_waitcnt lgkmcnt(8)")
    for ks in range(4):
        mf(1, ks, False); E(xread(4, ks))
    E(f"""
    s_mov_b64 exec, 1
    ds_add_u32 v18, v19 offset:{L_RD}
    s_mov_b64 exec, -1
    s_nop 3
    """)
    pack(1)
    E("s_waitcnt lgkmcnt(0)")
    for ks in range(4): mf(2, ks, False)
    for rt in range(3, 5):
        for ks in range(4): mf(rt, ks, False)
        pack(rt-1)
    pack(4)
else: gemm(False, pack, lambda: lds_wait(L_CTR, {1: 0x80000, 2: 0xc0000}[OPT["hold"]], 0, "hold", sleep=1, ne=True) if OPT["hold"] else None)
E("s_setprio 0")
if OPT["gate"] or OPT["gate2"] >= 3:
    E(f"""
    s_mov_b64 exec, 1
    ds_add_u32 v18, v19 offset:{L_GST}
    s_mov_b64 exec, -1
    """)
STAMP(4)
if OPT["tagl"]: get_tag("g", 160)
main_consts()
E(f"""
    s_lshl_b32 s30, s{S_P}, 7
    s_add_u32 s30, s30, {WS_FL2}
    v_mov_b32 v60, s30
    v_mov_b32 v62, s{S_TAG}
    v_mov_b32 v63, s{S_TAG+1}
    v_mov_b32 v2, 0
    v_mov_b32 v3, 1
    s_lshl_b32 s30, s32, 13
    s_lshl_b32 s31, s{S_HALF}, 7
    s_add_u32 s30, s30, s31
    s_add_u32 s30, s30, {WS_FL2}
    v_lshl_add_u32 v64, v1, 8, s30
    s_mul_i32 s30, s32, {2560*256}
    s_lshr_b32 s31, s2, 3
    s_mul_i32 s31, s31, {160*128}
    s_add_u32 s30, s30, s31
    v_lshl_add_u32 v65, v1, 7, s30
    {'' if OPT['gpe'] else 'v_min_u32 v65, %d, v65' % (G_HALF - 128)}
    s_mul_i32 s30, s{S_HALF}, {G_HALF}
    v_add_u32 v65, s30, v65
    s_mov_b64 exec, 1
    s_waitcnt vmcnt(0)
    ds_add_rtn_u32 v61, v2, v3 offset:{L_DONE2}
    s_waitcnt lgkmcnt(0)
    v_readfirstlane_b32 s30, v61
    s_cmp_lg_u32 s30, 3
    s_cbranch_scc1 L_nofl
    global_store_dwordx2 v60, v[62:63], s[20:21] sc1
    ds_add_u32 v2, v3 offset:{L_DONE2}
L_nofl:
""")
STAMP(5)
if OPT["p2gate"]:
    E("s_mov_b64 exec, -1")
    lds_wait(L_CTR, 0xff0000, 0x080000, "pg", sleep=OPT["pgs"])
    E("s_mov_b32 exec_hi, 0")
if OPT["p2wait"]: E(f"s_sleep {OPT['p2wait']}")
STAMP(6)
def gready(lab):
    if OPT["gpe"]: E(f"s_cmp_lg_u32 s73, 0\ns_cbranch_scc1 L_gr{lab}")
    if OPT["gpf"]:
        E(f"""
        {"s_bfm_b64 exec, %d, 0" % OPT["gpf"] if OPT["gpf"] < 64 else "s_mov_b64 exec, -1"}
        global_load_dword v35, v65, s[20:21] sc1
        """)
    E(f"""
L_gr{lab}:
    s_mov_b64 exec, 1
    v_mov_b32 v2, 0
    v_mov_b32 v3, 1
    ds_add_u32 v2, v3 offset:{L_GOK}
    """)
E(f"""
; each of the four waves checks the flags of 32 producers of this half: once now, again after the barrier if needed
    s_cmp_eq_u32 s32, 3
    s_cselect_b32 exec_lo, 0x1fffffff, -1
    {"" if OPT["p1st"] else "s_mov_b64 s[66:67], exec"}
    {"" if OPT["p1st"] else "s_branch L_p2n"}
    global_load_dwordx2 v[66:67], v64, s[20:21] sc1
    s_waitcnt vmcnt(0)
    v_cmp_ne_u64 s[66:67], s[{S_TAG}:{S_TAG+1}], v[66:67]
""")
if OPT["gpe"]:
    n = OPT["gpe"]
    E(f"""
    s_mov_b32 s73, 0
    s_lshr_b32 s30, s2, 3
    s_bitcmp1_b32 s66, s30
    s_cbranch_scc1 L_nogpe
    s_mov_b32 s73, 1
    s_bitcmp1_b32 exec_lo, s30
    s_cbranch_scc0 L_nogpe
    """)
    for k in range(0, n, 64):
        E("s_mov_b64 exec, -1")
        if k: E(f"v_add_u32 v65, 8192, v65")
        if n - k < 64: E(f"s_bfm_b64 exec, {n-k}, 0")
        E(f"global_load_dword v{(35, 68, 69)[k//64]}, v65, s[20:21] sc1")
    E("L_nogpe:")
E(f"""
    s_cmp_lg_u64 s[66:67], 0
    s_cbranch_scc1 L_p2n
""")
gready("a")
E("L_p2n:\ns_mov_b64 exec, -1")
STAMP(7)
E(f"""
    s_branch L_b4
L_nog1:
    s_mov_b64 exec, 1
    ds_add_u32 v18, v19 offset:{L_RD}
    s_mov_b64 exec, -1
    s_branch L_rec
L_gemm2:
""")
if not OPT['aul'] and not OPT['aue']: stage_au()
for rt in range(5):
    for ks in range(4): E(xread(rt, ks))
E(f"""
    s_mov_b64 exec, 1
    ds_add_u32 v18, v19 offset:{L_RD}
    s_mov_b64 exec, -1
""")
if OPT['aul']:
    lds_wait(L_RD, 8, 8, "aul"); stage_au()
E(f"""
    s_mov_b64 exec, 1
    s_waitcnt vmcnt(0)
    ds_add_u32 v18, v19 offset:{L_RD}
    s_mov_b64 exec, -1
    s_sub_u32 s29, s3, 4
""")
rec_setup()
lds_wait(L_RD, 0xff, 12, "rd", sleep=(OPT["sl"] >> 2) & 1)
for ks in range(4): wreads(ks)
for ks in range(4):
    E(f"s_waitcnt lgkmcnt({12 - 4*ks})"); mf(0, ks, True)
for rt in range(1, 5):
    for ks in range(4): mf(rt, ks, True)
    fin(rt-1)
fin(4)
if OPT["tagl"]: get_tag("h", 144)
STAMP(4)
E(f"""
    s_branch L_rec
L_sort:
""")
STAMP(1)
E(f"""
    s_mov_b32 s40, {f32(-LOG2E)}
    s_mov_b32 s46, 0x3f80
    s_cmp_lg_u32 s{S_SAFE}, 0
    s_cbranch_scc1 L_sortskip
    v_mov_b32 v21, 1
    v_mov_b32 v20, 3
    s_mov_b32 s31, 52429
    s_movk_i32 s32, -20
    v_lshlrev_b32 v9, 3, v1
    v_lshlrev_b32 v33, 4, v0
    s_mul_i32 s30, s{S_P}, {SORTB}
    s_add_u32 s30, s30, {WS_REC + 4096}
    v_add_u32 v32, s30, v33                 ; copy-out global offset
    v_add_u32 v34, 8192, v32
    s_lshl_b32 s30, s{S_P}, 10
    s_add_u32 s30, s30, {WS_ROW}
    v_lshl_add_u32 v42, v1, 4, s30
    s_mov_b32 s34, {LDS_MAX}
    s_setprio 3
""")
E6 = OPT["ewhen"] in (0, 6, 7)
if OPT["ewhen"] == 6:
    E("v_mov_b32 v19, v3")
    lds_wait(L_CTR, 0xff000000, 0x08000000, "ew")
    E("v_mov_b32 v3, v19\ns_mov_b32 s31, 52429")
    E(f"""
    global_load_dwordx4 v[12:15], v3, s[8:9]{NTE}
    global_load_dword v16, v18, s[8:9]{NTE}
    global_load_dwordx4 v[52:55], v10, s[6:7]{NTE}
    global_load_dwordx4 v[56:59], v10, s[6:7] offset:16{NTE}
    global_load_dwordx2 v[60:61], v11, s[6:7]{NTE}
""")
E(f"""
    s_waitcnt vmcnt({1 + OPT['pre'] + 5*E6})
""")
STAMP(2)
FSTAMP(1)
for i in range(5):
    E(f"""
    v_mul_u32_u24 v{22+i}, s31, v{4+i}
    v_lshrrev_b32 v{22+i}, 22, v{22+i}
    v_lshlrev_b32 v{22+i}, 2, v{22+i}        ; bucket*4
    ds_add_rtn_u32 v{27+i}, v{22+i}, v20 offset:{L_SCNT}
    """)
E(f"""
    s_mov_b64 exec, 1
    s_cmp_lg_u32 s3, 0
    s_cbranch_scc1 L_notag
    s_waitcnt vmcnt({OPT['pre'] + 5*E6})
    ds_write_b32 v48, v43 offset:{L_SCNT + 125*4}
L_notag:
    ds_add_u32 v48, v21 offset:{L_SCNT + 127*4}  ; arrival count of the four waves (LDS runs a wave's ops in order)
    s_mov_b64 exec, -1
""")
if OPT["ewhen"] == 1: E(f"""
    global_load_dwordx4 v[12:15], v3, s[8:9]{NTE}
    global_load_dword v16, v18, s[8:9]{NTE}
    global_load_dwordx4 v[52:55], v10, s[6:7]{NTE}
    global_load_dwordx4 v[56:59], v10, s[6:7] offset:16{NTE}
    global_load_dwordx2 v[60:61], v11, s[6:7]{NTE}
""")
E(f"""
    {"s_mov_b32 s65, 0" if OPT["ewhen"] == 8 else ""}
L_s1:
    ds_read_b32 v38, v48 offset:{L_SCNT + 127*4}
    {f"ds_read_b32 v39, v48 offset:{L_CTR}" if OPT["ewhen"] == 8 else ""}
    ds_read_b64 v[36:37], v9 offset:{L_SCNT}
    s_sub_u32 s34, s34, 1
    s_cbranch_scc1 L_s1d
    s_waitcnt lgkmcnt(0)
""")
if OPT["ewhen"] == 8: E(f"""
    v_readfirstlane_b32 s30, v39
    s_lshr_b32 s30, s30, 27
    s_cmp_le_u32 s30, s65
    s_cbranch_scc1 L_e8a
    s_mov_b32 s65, 1
    global_load_dwordx4 v[12:15], v3, s[8:9]{NTE}
    global_load_dword v16, v18, s[8:9]{NTE}
    global_load_dwordx4 v[52:55], v10, s[6:7]{NTE}
    global_load_dwordx4 v[56:59], v10, s[6:7] offset:16{NTE}
    global_load_dwordx2 v[60:61], v11, s[6:7]{NTE}
L_e8a:
""")
E(f"""
    v_readfirstlane_b32 s30, v38
    s_cmp_lg_u32 s30, 4
    s_cbranch_scc1 L_s1
L_s1d:
""")
FSTAMP(2)
E(f"""
    v_add3_u32 v39, v36, v37, 2
    v_add3_u32 v38, v36, v37, 2
    v_readlane_b32 s{S_TAGRAW}, v37, 62
""")
fill = []
for i in range(5):
    fill += [f"v_mad_i32_i24 v{4+i}, v{22+i}, s32, v{4+i}", f"v_lshlrev_b32 v{4+i}, 24, v{4+i}"]
for k, m in enumerate(SCAN):
    E(f"v_add_u32_dpp v39, v39, v39 {m}")
    for x in fill[2*k:2*k+2]: E(x)
E(f"""
    v_sub_u32 v40, v39, v38
    v_add3_u32 v41, v40, v36, 1
    s_mov_b32 s30, {L_SORT}
    v_lshl_add_u32 v38, v40, 2, s30
    v_lshl_add_u32 v39, v41, 2, s30
    ds_write_b64 v9, v[38:39] offset:{L_SOFF}
""")
for i in range(5):
    E(f"ds_read_b32 v{22+i}, v{22+i} offset:{L_SOFF}")
finish_tag()
if OPT["ewhen"] in (9, 10):
    if OPT["ewhen"] == 9:
        E("v_mov_b32 v19, v3"); lds_wait(L_CTR, 0xff000000, 0x08000000, "ew"); E("v_mov_b32 v3, v19")
    E(f"""
    global_load_dwordx4 v[12:15], v3, s[8:9]{NTE}
    global_load_dword v16, v18, s[8:9]{NTE}
    global_load_dwordx4 v[52:55], v10, s[6:7]{NTE}
    global_load_dwordx4 v[56:59], v10, s[6:7] offset:16{NTE}
    global_load_dwordx2 v[60:61], v11, s[6:7]{NTE}
""")
E(f"""
    s_cmp_lg_u32 s3, 0
    s_cbranch_scc1 L_nopub
    s_and_b32 s35, s{S_TAG+1}, 0xff000000
    v_mov_b32 v45, s{S_TAG}
    v_mov_b32 v47, s{S_TAG}
    v_lshl_or_b32 v44, v36, 12, v40
    v_lshl_or_b32 v46, v37, 12, v41
    v_or_b32 v44, s35, v44
    v_or_b32 v46, s35, v46
    global_store_dwordx4 v42, v[44:47], s[20:21] sc1
    {"s_waitcnt vmcnt(1)" if OPT["ewhen"] in (0, 1, 6, 7, 9, 10) else ""}
    s_branch {"L_pub" if OPT["ewhen"] in (0, 1, 6, 7, 9, 10) else "L_nochk"}
L_nopub:
    s_cmp_lg_u32 s3, 1
    s_cbranch_scc1 L_nochk
    v_mov_b32 v44, s{S_TAG+1}
    s_mov_b32 exec_hi, 0x7fffffff
    ds_add_u32 v38, v44
    ds_add_u32 v39, v44
    s_mov_b32 exec_hi, -1
L_nochk:
""")
if OPT["ewhen"] == 8:
    E("s_cmp_lg_u32 s65, 0\ns_cbranch_scc1 L_e8b\nv_mov_b32 v19, v3")
    lds_wait(L_CTR, 0xff000000, 0x08000000, "ew")
    E(f"""
    v_mov_b32 v3, v19
    global_load_dwordx4 v[12:15], v3, s[8:9]{NTE}
    global_load_dword v16, v18, s[8:9]{NTE}
    global_load_dwordx4 v[52:55], v10, s[6:7]{NTE}
    global_load_dwordx4 v[56:59], v10, s[6:7] offset:16{NTE}
    global_load_dwordx2 v[60:61], v11, s[6:7]{NTE}
L_e8b:
""")
if 3 <= OPT["ewhen"] <= 5:
    E("v_mov_b32 v19, v3")
    if OPT["ewhen"] == 3: lds_wait(L_CTR, 0xff, 8, "ew")
    elif OPT["ewhen"] == 5: lds_wait(L_CTR, 0xff000000, 0x08000000, "ew")
    else: lds_wait(L_CTR, 0xff, 0, "ew", ne=True)
    E("v_mov_b32 v3, v19")
if 2 <= OPT["ewhen"] <= 5: E(f"""
    global_load_dwordx4 v[12:15], v3, s[8:9]{NTE}
    global_load_dword v16, v18, s[8:9]{NTE}
    global_load_dwordx4 v[52:55], v10, s[6:7]{NTE}
    global_load_dwordx4 v[56:59], v10, s[6:7] offset:16{NTE}
    global_load_dwordx2 v[60:61], v11, s[6:7]{NTE}
""")
E(f"""
    s_waitcnt vmcnt(0)
L_pub:
""")
if OPT["eah"]:
    E(f"""
    s_mov_b64 exec, 1
    ds_add_u32 v48, v21 offset:{L_EAOK}
    s_mov_b64 exec, -1
    """)
STAMP(4)
FSTAMP(3)
for i in range(5): E(f"v_lshl_or_b32 v{4+i}, v{12+i}, 8, v{4+i}")
E("s_waitcnt lgkmcnt(0)")
for i in range(5):
    E(f"""
    v_lshl_add_u32 v{27+i}, v{27+i}, 2, v{22+i}
    v_add3_u32 v{12+i}, v{52+2*i}, v{53+2*i}, v{4+i}
    ds_write2_b32 v{27+i}, v{52+2*i}, v{53+2*i} offset0:2 offset1:3
    ds_write_b32 v{27+i}, v{4+i} offset:4
    ds_sub_u32 v{22+i}, v{12+i}
    """)
E(f"""
    s_mov_b64 exec, 1
    ds_add_u32 v48, v21 offset:{L_SCNT + 126*4}
    s_mov_b64 exec, -1
""")
FSTAMP(4)
E(f"""
    s_mov_b32 s34, {LDS_MAX}
L_s2:
    ds_read_b32 v38, v48 offset:{L_SCNT + 126*4}
    {f"ds_read_b32 v39, v48 offset:{L_CTR}" if OPT["wgate"] else ""}
    ds_read_b128 v[72:75], v33 offset:{L_SORT}
    s_sub_u32 s34, s34, 1
    s_cbranch_scc1 L_s2d
    s_waitcnt lgkmcnt(1)
    v_readfirstlane_b32 s30, v38
""")
if OPT["wgate"]:
    E(f"""
    v_readfirstlane_b32 s31, v39
    s_lshr_b32 s31, s31, 24
    s_add_u32 s30, s30, s31
    """)
E(f"""
    s_cmp_lg_u32 s30, {12 if OPT["wgate"] else 4}
    s_cbranch_scc1 L_s2
L_s2d:
""")
FSTAMP(5)
E(f"""
    ds_read_b128 v[76:79], v33 offset:{L_SORT + 4096}
    ds_read_b128 v[80:83], v33 offset:{L_SORT + 8192}
    ds_read_b128 v[84:87], v33 offset:{L_SORT + 12288}
    s_waitcnt lgkmcnt(3)
    global_store_dwordx4 v32, v[72:75], s[20:21] offset:-4096 sc1
    s_waitcnt lgkmcnt(2)
    global_store_dwordx4 v32, v[76:79], s[20:21] sc1
    s_waitcnt lgkmcnt(1){f" vmcnt({OPT['rpace']})" if OPT['rpace'] >= 0 else ""}
    global_store_dwordx4 v34, v[80:83], s[20:21] offset:-4096 sc1
    s_cmp_eq_u32 s3, 3
    s_cselect_b32 exec_hi, 0, -1
    s_waitcnt lgkmcnt(0){f" vmcnt({OPT['rpace']})" if OPT['rpace'] >= 0 else ""}
    global_store_dwordx4 v34, v[84:87], s[20:21] sc1
    s_mov_b32 exec_hi, -1
""")
if OPT["rih"]:
    E(f"""
    s_mov_b64 exec, 1
    ds_add_u32 v48, v21 offset:{L_EAOK}
    s_mov_b64 exec, -1
    """)
FSTAMP(6)
for k in range(4): E(f"ds_write_b128 v33, v[48:51] offset:{L_SORT + 4096*k}")
STAMP(3)
FSTAMP(7)
E(f"""
    s_branch L_sortdone
L_sortskip:
    s_waitcnt vmcnt(0)
L_sortdone:
    s_mov_b32 s29, s3
""")
rec_setup()
E(f"""
L_rec:
""")
if OPT["mcl"]: E(f"s_cmp_ge_u32 s3, 8\ns_cbranch_scc1 L_nomc")
lds_wait(L_CTR, 0xff, 8, "r0")
if OPT["mcl"] != 2: main_consts()
E("L_nomc:")
STAMP(5)
E(f"""
    s_cmp_ge_u32 s3, 4
    s_cbranch_scc1 L_nod2
    v_mov_b32 v2, 0
    v_mov_b32 v3, 0x100
    s_mov_b64 exec, 1
    s_waitcnt vmcnt(0)
    ds_add_u32 v2, v3 offset:{L_CTR}
    s_mov_b64 exec, -1
L_nod2:
    s_cmp_lg_u32 s{S_SAFE}, 0
    s_cbranch_scc1 L_recskip
    s_lshr_b32 s35, s{S_TAG+1}, 24
    s_mov_b64 exec, s[66:67]
    s_mov_b32 s34, {POLL_MAX}
    s_branch L_p1c
L_p1:
    global_load_dwordx2 v[{ENT}:{ENT+1}], v{ROWA}, s[20:21] sc1
L_p1c:
    s_sub_u32 s34, s34, 1
    s_cbranch_scc1 L_toobig
    s_waitcnt vmcnt(0)
    v_cmp_ne_u32 vcc, s{S_TAG}, v{ENT+1}
    v_cmp_ne_u32_sdwa s[48:49], v{ENT}, s35 src0_sel:BYTE_3 src1_sel:DWORD
    s_or_b64 exec, vcc, s[48:49]
    s_cbranch_scc1 L_p1
    s_mov_b64 exec, -1
""")
STAMP(6)
if OPT["cnt"]: E(f"s_sub_u32 s{ST0+2}, {POLL_MAX+1}, s34\ns_mov_b32 s34, {POLL_MAX}")
E(f"""
    v_and_b32 v{CAD}, 0xfff, v{ENT}
    v_bfe_u32 v{ENT}, v{ENT}, 12, 12            ; 3*count
    v_add_lshl_u32 v{CAD}, v{CAD}, v{CELL}, 2
    v_cmp_ne_u32 vcc, 0, v{ENT}
    s_sub_u32 s30, 0, s{S_TAG+1}
    v_mov_b32 v2, s30
    v_cndmask_b32 v{ENT+1}, 0, v2, vcc
    v_cmp_lt_u32 vcc, 96, v{ENT}
    v_cmp_lt_u32 s[68:69], 48, v{ENT}
    s_cbranch_vccnz L_toobig
""")
for p in range(NP):
    E(f"""
    v_add_co_u32_dpp v2, vcc, v{ENT}, v{J3N} row_newbcast:{p} row_mask:0xf bank_mask:0xf
    v_add_u32_dpp v{RAD+p}, v{CAD}, v{J12} row_newbcast:{p} row_mask:0xf bank_mask:0xf
    s_mov_b64 s[{48+2*p}:{49+2*p}], vcc
    """)
lds_wait(L_CTR, 0xff00, 0x400, "r1", sleep=(OPT["sl"] >> 2) & 1)
if OPT["gate"]: lds_wait(L_GST, 0xff, 4, "gt")
if OPT["gate2"] == 1 and not OPT["split"]:
    if not OPT["allg"]: E("s_cmp_lt_u32 s3, 4\ns_cbranch_scc1 L_wd_g2")
    lds_wait(L_DONE2, 0xff, 5, "g2")
if OPT["gate2"] == 3:
    E("s_cmp_lt_u32 s3, 4\ns_cbranch_scc1 L_wd_g2")
    lds_wait(L_GST, 0xff, 4, "g2")
if OPT["gate2"] in (2, 4):
    E(f"""
    s_cmp_lt_u32 s3, 4
    s_cbranch_scc1 L_g2d
    s_mov_b32 s31, {POLL_MAX}
L_g2:
    ds_read_b128 v[60:63], v2 offset:{L_CTR}
    {f"ds_read_b32 v61, v2 offset:{L_GST}" if OPT["gate2"] == 4 else ""}
    s_sub_u32 s31, s31, 1
    s_cbranch_scc1 L_g2d
    s_waitcnt lgkmcnt(0)
    v_readfirstlane_b32 s30, v62
    v_readfirstlane_b32 s28, v60
    v_readfirstlane_b32 s29, v61
    s_cmp_eq_u32 s30, 5
    s_cbranch_scc1 L_g2d
    {"s_cmp_lg_u32 s29, 4" if OPT["gate2"] == 4 else ""}
    {"s_cbranch_scc1 L_g2" if OPT["gate2"] == 4 else ""}
    s_and_b32 s28, s28, 0xc0000
    s_cbranch_scc0 L_g2
L_g2d:
    """)
E(f"""
    s_or_b32 s68, s68, s69
    s_lshr_b32 s69, s68, 16
    s_or_b32 s68, s68, s69
""")
def mask2(p): return f"v_add_co_u32_dpp v2, vcc, v{ENT}, v{J3N2} row_newbcast:{p} row_mask:0xf bank_mask:0xf"
def loads(ps, lab):
    E(f"s_and_b32 s30, s68, {sum(1 << p for p in ps)}\ns_cbranch_scc0 L_nx{lab}")
    for p in ps:
        r = RB + 4*p
        E(f"""
        s_bitcmp1_b32 s68, {p}
        s_cbranch_scc0 L_nx{lab}{p}
        {mask2(p)}
        s_mov_b64 exec, vcc
        global_load_dwordx4 v[{r}:{r+3}], v{RAD+p}, s[20:21] offset:192 sc1
        s_mov_b64 exec, -1
L_nx{lab}{p}:
        """)
    E(f"L_nx{lab}:")
    for p in ps:
        r = RA + 4*p
        E(f"""
        s_mov_b64 exec, s[{48+2*p}:{49+2*p}]
        global_load_dwordx4 v[{r}:{r+3}], v{RAD+p}, s[20:21]{SC1 if (OPT["rsc1"] or lab != "m") else ""}
        """)
    E("s_mov_b64 exec, -1")
SP = OPT["split"]
GROUPS = {0: ((0,1,2,3),(4,5),(6,7)), 4: ((0,1,2,3),(4,5),(6,7)), 5: ((0,1,2),(3,4),(5,6,7)), 6: ((0,1,2,3),(4,5),(6,7)), 3: ((0,1,2),(3,4,5),(6,7)), 2: ((0,1),(2,3,4,5),(6,7)), 1: ((0,),(1,2,3,4),(5,6,7))}[SP]
if OPT['grp'] == 1: GROUPS = ((0,1),(2,3,4),(5,6,7))
if OPT['grp'] == 2: GROUPS = ((0,1),(2,3),(4,5),(6,7))
if OPT['grp'] == 3: GROUPS = (tuple(range(SP)), tuple(range(SP, NP)))
if OPT['grp'] == 4: GROUPS = ((0,1,2),(3,4,5,6),(7,))
loads(range(SP or NP), "m")
if OPT["eag"]:
    E(f"""
    v_mov_b32 v2, 0
    ds_read_b32 v3, v2 offset:{L_DONE2}
    s_waitcnt lgkmcnt(0)
    v_readfirstlane_b32 s73, v3
    s_cmp_lg_u32 s73, 5
    s_cbranch_scc1 L_neag
    """)
    loads(range(SP, NP), "e")
    E("L_neag:")
def issued():
    if OPT["p2gate"]:
        E(f"""
        v_mov_b32 v2, 0
        v_mov_b32 v3, 0x10000
        s_mov_b64 exec, 1
        ds_add_u32 v2, v3 offset:{L_CTR}
        s_mov_b64 exec, -1
        """)
if OPT["mcl"]:
    if OPT["mcl"] == 1: E(f"s_cmp_lt_u32 s3, 8\ns_cbranch_scc1 L_nomc2")
    main_consts(28); E("L_nomc2:")
if not OPT["sig"]: issued()
STAMP(7)
def rank(r, m):
    E(f"""
    s_mov_b64 exec, {m}
    v_mul_u32_u24_sdwa v{r}, v{FOUR}, v{r+1} dst_sel:DWORD dst_unused:UNUSED_PAD src0_sel:DWORD src1_sel:BYTE_3
    v_and_b32 v{r+1}, {OPT['srcmask']}, v{r+1}
    ds_add_rtn_u32 v{r}, v{r}, v{FOUR} offset:{L_CNT}
    """)
def put(r, m):
    E(f"""
    s_mov_b64 exec, {m}
    v_lshlrev_b32 v2, 1, v{r}
    ds_write_b32 v{r}, v{r+1}
    ds_write_b64 v2, v[{r+2}:{r+3}] offset:{L_EA - 2*L_SRC}
    """)
retries = []
pending = []
for gi, grp in enumerate(GROUPS):
    bits = sum(1 << p for p in grp); m32 = bits | (bits << 16)
    if SP and grp[0] == SP:
        if OPT["eag"]: E("s_cmp_eq_u32 s73, 5\ns_cbranch_scc1 L_eagd")
        lds_wait(L_DONE2, 0xff, 5, "g2", sleep=(OPT["sl"] >> 3) & 1)
        loads(range(SP, NP), "n")
        E("L_eagd:")
        if OPT["sig"] == 9:
            if OPT["sigw"]: E(f"s_waitcnt vmcnt({NP - SP - OPT['sigw']})")
            issued()
    last = NP if (not SP or grp[0] >= SP) else SP
    first_ = 0 if (not SP or grp[0] < SP) else SP
    E(f"""
L_ck{gi}:
    s_mov_b32 vcc_lo, {m32}
    s_mov_b32 vcc_hi, {m32}
    v_cndmask_b32 v{ACC}, 0, v{ENT+1}, vcc
    s_and_b32 s30, s68, {bits}
    s_cbranch_scc1 L_xa{gi}
L_xb{gi}:
    """)
    def xacc():
        E(f"L_xa{gi}:\ns_waitcnt vmcnt({last - first_})")
        for p in grp:
            r = RB + 4*p
            E(f"""
            {mask2(p)}
            s_mov_b64 exec, vcc
            v_add3_u32 v{ACC}, v{ACC}, v{r+1}, v{r+2}
            v_add_u32 v{ACC}, v{ACC}, v{r+3}
            s_mov_b64 exec, -1
            """)
        E(f"s_branch L_xb{gi}")
    emit_to(outofline, xacc)
    for p in grp:
        r = RA + 4*p
        E(f"""
        s_waitcnt vmcnt({last-1-p})
        s_mov_b64 exec, s[{48+2*p}:{49+2*p}]
        v_and_b32 v{r}, v{r}, v{L0M}
        v_add3_u32 v{ACC}, v{ACC}, v{r+2}, v{r+3}
        v_add3_u32 v{ACC}, v{ACC}, v{r}, v{r+1}
        """)
    E("s_mov_b64 exec, -1\ns_nop 0")
    for k in (1, 2, 4, 8):
        E(f"v_add_u32_dpp v{ACC}, v{ACC}, v{ACC} row_ror:{k} row_mask:0xf bank_mask:0xf")
        if k < 8: E("s_nop 1")
    E(f"v_cmp_ne_u32 vcc, 0, v{ACC}\ns_cbranch_vccnz L_rt{gi}")
    if OPT["rst"]: STAMP(1+gi)
    if OPT["sig"] == gi + 1: issued()
    def retry():
        E(f"L_rt{gi}:\ns_sub_u32 s34, s34, 1\ns_cbranch_scc1 {'L_toobig' if (gi < OPT['sig'] if OPT['sig'] != 9 else grp[0] < SP) else 'L_giveup'}")
        loads(grp, f"r{gi}_")
        E(f"s_waitcnt vmcnt(0)\ns_branch L_ck{gi}")
    emit_to(outofline, retry)
    for p in grp: rank(RA + 4*p, f"s[{48+2*p}:{49+2*p}]")
    E(f"s_and_b32 s30, s68, {bits}\ns_cbranch_scc1 L_ya{gi}\nL_yb{gi}:")
    def xput():
        E(f"L_ya{gi}:")
        for p in grp:
            r = RB + 4*p
            E(f"""
            s_bitcmp1_b32 s68, {p}
            s_cbranch_scc0 L_yn{p}
            s_mov_b64 exec, -1
            {mask2(p)}
            """)
            rank(r, "vcc")
            E("s_waitcnt lgkmcnt(0)")
            put(r, "vcc")
            E(f"L_yn{p}:")
        E(f"s_branch L_yb{gi}")
    emit_to(outofline, xput)
    for k, p in enumerate(grp):
        E(f"s_waitcnt lgkmcnt({len(grp) - 1 - k + 2*k})")
        put(RA + 4*p, f"s[{48+2*p}:{49+2*p}]")
    E("s_mov_b64 exec, -1")
E(f"""
    {f"s_sub_u32 s{ST0+4}, {POLL_MAX+1}, s34" if OPT["cnt"] else ""}
    s_branch L_b4
L_toobig:
    s_mov_b64 exec, -1
""")
issued()
E(f"""
L_giveup:
    v_mov_b32 v2, 0
    ds_write_b32 v2, v{FOUR} offset:{L_FLAG}
L_recskip:
    s_waitcnt vmcnt(0)
""")
if OPT["mcl"]: main_consts()
E(f"""
; ---------------- all waves: main loop
L_b4:
    s_setprio {OPT["p0"] if OPT["prio"] == 2 else 0}
    s_mul_i32 s30, s{S_HALF}, {G_HALF}
    {f"s_add_u32 s30, s30, {WS0}" if WS0 else ""}
    s_add_u32 s36, s20, s30
    s_addc_u32 s37, s21, 0
    s_mov_b32 s38, {OPT['nrec'] or G_HALF}
    s_mov_b32 s39, 0x20000
    s_mov_b32 s44, 128
    s_mov_b32 s45, 128
    ds_read_b128 v[{WS4}:{WS4+3}], v{LP}
    ds_read_b64 v[{AG}:{AG+1}], v{LP} offset:64
    ds_read_b64 v[{WN2}:{WN2+1}], v{LP} offset:72
    ds_read_b32 v{WE}, v{LP+1}
    s_waitcnt lgkmcnt(0)
    v_lshl_add_u64 v[{AG}:{AG+1}], v[{AG}:{AG+1}], 0, v[{LN8}:{LN8+1}]
    v_lshl_add_u32 v{WE}, v{WE}, 1, v{EAC}
""")
assert OPT["gpe"] <= 64 and not OPT["ptime"]
if OPT["warm"]:
    E(f"""
    s_barrier
    s_lshr_b32 s30, s2, 3
    s_mul_i32 s30, s30, 98304
    v_lshl_add_u32 v2, v0, 7, s30
    buffer_load_dword v3, v2, s[36:39], 0 offen sc1
    s_waitcnt vmcnt(0)
    s_sleep 40
    """)
STAMP(8)
E(f"""
    s_barrier                               ; B4
    s_cmp_lg_u32 s{S_SAFE}, 0
    s_cbranch_scc1 L_safe
    ds_read_b128 v[{T}:{T+3}], v{WS4}
    ds_read_b128 v[{T+4}:{T+7}], v{WS4+1}
    ds_read_b64 v[{XA}:{XA+1}], v{AG} offset:512
    ds_read_b64 v[{EA}:{EA+1}], v{WE}
    s_lshr_b32 s30, s3, 2
    s_cmp_lg_u32 s30, 1
    s_cbranch_scc1 L_nopoll
    s_mov_b64 exec, s[66:67]
    s_cbranch_execz L_p2e
    s_mov_b32 s31, {POLL_MAX}
L_p2:
    global_load_dwordx2 v[66:67], v64, s[20:21] sc1
    s_sub_u32 s31, s31, 1
    s_cbranch_scc1 L_p2d
    s_waitcnt vmcnt(0)
    v_cmp_ne_u64 vcc, s[{S_TAG}:{S_TAG+1}], v[66:67]
    s_and_b64 exec, exec, vcc
    s_cbranch_scc0 L_p2d
    {f"s_sleep {OPT['p2sleep']}" if OPT['p2sleep'] else ""}
    s_branch L_p2
L_p2d:
""")
gready("b")
E(f"""
L_p2e:
    s_mov_b64 exec, -1
L_nopoll:
    s_cmp_lt_u32 s3, 8
    s_cbranch_scc1 L_nobuild
; waves 8..11: place the edges past the 24th of every node: blocks of 8 (two tiles), then remainders of up to 4
    v_lshlrev_b32 v2, 3, v1
    v_mov_b32 v3, 0
    ds_read_b64 v[72:73], v2 offset:{L_CNT}
    ds_read_b32 v79, v3 offset:{L_FLAG}
    v_mul_u32_u24 v74, {2*SSTR}, v1
    v_add_u32 v74, {L_SRC + 96}, v74
    v_add_u32 v75, {SSTR}, v74
    v_mul_u32_u24 v82, {2*NSTR}, v1
    s_and_b32 s32, s3, 1
    s_mul_i32 s30, s32, {NSTR}
    s_add_u32 s30, s30, {L_NODE}
    v_add_u32 v82, s30, v82
    v_mov_b32 v83, v82
    s_mul_i32 s30, s32, {SSTR}
    v_add_u32 v80, s30, v74
    v_add_u32 v81, 16, v80
    s_waitcnt lgkmcnt(0)
    v_sub_u32 v72, v72, v74 clamp
    v_sub_u32 v73, v73, v75 clamp
    v_max_u32 v76, v72, v73
    v_cmp_lt_u32 vcc, 160, v76
    v_cmp_ne_u32 s[48:49], 0, v79
    v_add_u32 v74, 12, v72
    v_add_u32 v75, 12, v73
    s_or_b64 vcc, vcc, s[48:49]
    s_cbranch_scc1 L_bad
    v_add_u32 v72, 28, v72
    v_add_u32 v73, 28, v73
    v_lshrrev_b32 v74, 5, v74
    v_lshrrev_b32 v75, 5, v75
    v_lshrrev_b32 v72, 5, v72
    v_lshrrev_b32 v73, 5, v73
    v_sub_u32 v72, v72, v74
    v_sub_u32 v73, v73, v75
    v_lshl_or_b32 v72, v72, 16, v74
    v_lshl_or_b32 v73, v73, 16, v75
    v_add_u32 v76, v72, v73
    v_add_u32 v77, v72, v73
""")
scan(77)
E(f"""
    s_cmp_eq_u32 s32, 0
    s_cselect_b64 vcc, -1, 0
    v_readlane_b32 s30, v77, 63
    v_cndmask_b32 v76, v73, v76, vcc
    v_cndmask_b32 v72, v73, v72, vcc
    v_sub_u32 v77, v77, v76
    s_and_b32 s50, s30, 0xffff
    s_add_u32 s31, s50, 3
    s_lshr_b32 s31, s31, 2
    s_sub_u32 s51, 0, s50
    s_and_b32 s51, s51, 3                   ; spare quarters of the last such slot take remainders
    s_lshr_b32 s30, s30, 16
    s_add_u32 s30, s30, 3
    s_sub_u32 s30, s30, s51
    s_lshr_b32 s30, s30, 2
    s_lshl_b32 s33, s31, 1
    s_add_u32 s33, s33, s30
    s_cmp_gt_u32 s33, 104
    s_cbranch_scc1 L_bad
    s_lshl_b32 s30, s30, 8
    s_or_b32 s29, s30, s31
    v_and_b32 v74, 0xffff, v72
    v_and_b32 v76, 0xffff, v77
    s_mov_b32 s34, {L_LISTC}
    s_mov_b32 s35, {L_LIST + 136}
""")
def slotaddr():
    E(f"""
    v_subrev_u32 v78, 32, v76
    v_bfe_u32 v79, v76, 2, 2
    v_lshl_add_u32 v79, v79, 10, s34
    v_lshrrev_b32 v84, 5, v78
    v_lshl_add_u32 v79, v84, 7, v79
    v_bfe_u32 v84, v78, 4, 1
    v_lshl_add_u32 v79, v84, 3, v79
    v_lshrrev_b32 v84, 2, v76
    v_cmp_gt_u32 vcc, 32, v76
    v_lshl_add_u32 v84, v84, 9, s35
    v_and_b32 v78, 3, v76
    v_cndmask_b32 v79, v79, v84, vcc
    v_lshl_add_u32 v79, v78, 4, v79
    """)
E("""
    s_cmp_lt_u32 s3, 10
    s_cbranch_scc1 L_brem
L_bf:
    v_cmp_ne_u32 vcc, 0, v74
    s_and_b64 exec, exec, vcc
    s_cbranch_execz L_bfd
""")
slotaddr()
E(f"""
    ds_write_b64 v79, v[80:81]
    ds_write_b64 v79, v[82:83] offset:64
    v_add_u32 v80, 32, v80
    v_add_u32 v81, 32, v81
    v_add_u32 v76, 1, v76
    v_subrev_u32 v74, 1, v74
    s_branch L_bf
L_brem:
    v_lshl_add_u32 v80, v74, 5, v80
    v_add_u32 v81, 16, v80
    v_lshrrev_b32 v77, 16, v77
    s_sub_u32 s52, 0, s31
    s_and_b32 s52, s52, 3
    s_add_u32 s53, s31, s52
    s_lshl_b32 s52, s52, 3
    v_subrev_u32 v73, s51, v77              ; j' = j - spare
    v_subrev_u32 v74, s52, v73
    v_lshrrev_b32 v76, 3, v73
    v_add_u32 v76, s31, v76
    v_and_b32 v75, 4, v73
    v_lshrrev_b32 v78, 5, v74
    v_lshl_add_u32 v78, v78, 2, s53
    v_bfe_u32 v79, v74, 2, 2
    v_add_u32 v78, v78, v79
    v_cmp_gt_u32 vcc, s52, v73
    v_lshrrev_b32 v74, 2, v74
    v_and_b32 v74, 4, v74
    v_cndmask_b32 v76, v78, v76, vcc        ; slot
    v_cndmask_b32 v75, v74, v75, vcc
    v_and_b32 v78, 3, v73
    v_cmp_gt_u32 s[54:55], s51, v77
    v_lshl_add_u32 v76, v76, 2, v78
    v_add_u32 v78, s50, v77
    v_cndmask_b32 v76, v76, v78, s[54:55]
""")
slotaddr()
E(f"""
    v_cmp_lt_u32 vcc, 0xffff, v72
    v_add_u32 v75, v79, v75
    s_andn2_b64 exec, vcc, s[54:55]
    ds_write2_b32 v75, v80, v82 offset0:0 offset1:16
    s_and_b64 exec, vcc, s[54:55]
    ds_write_b64 v79, v[80:81]
    ds_write_b64 v79, v[82:83] offset:64
L_bfd:
    s_mov_b64 exec, -1
    s_mov_b32 s56, s29
    s_cmp_eq_u32 s3, 8
    s_cselect_b32 s29, s29, 0
    s_add_u32 s29, s29, 0x10000
    s_branch L_built
L_bad:
    s_mov_b32 s56, 0
    s_mov_b32 s29, 0x1010000
L_built:
    v_mov_b32 v2, s29
    s_mov_b64 exec, 1
    ds_add_u32 v3, v2 offset:{L_NST}
    s_add_u32 s30, s{S_P}, s3
    s_cmp_lg_u32 s30, 8
    s_cbranch_scc1 L_notw
    v_mov_b32 v2, s{S_TAG}
    v_mov_b32 v3, {WS_TAG}
    global_store_dword v3, v2, s[20:21] sc1
L_notw:
    s_mov_b64 exec, -1
    v_mov_b32 v2, 0
    s_mov_b32 s30, s56
    s_and_b32 s31, s30, 0xff
    s_bfe_u32 s30, s30, 0x80008
    s_and_b32 s28, s3, 3
    s_sub_u32 s32, 0, s31
    s_and_b32 s32, s32, 3
    s_add_u32 s33, s28, s32
    s_sub_i32 s33, s33, 4
    s_lshl_b32 s29, s33, 1
    s_sub_i32 s29, s30, s29
    s_max_i32 s29, s29, 0
    s_min_i32 s29, s29, 2
    s_cmp_lt_i32 s33, 0
    s_cselect_b32 s29, 0, s29
    s_lshl_b32 s32, s32, 1
    s_sub_i32 s30, s30, s32
    s_sub_i32 s30, s30, s28
    s_add_i32 s30, s30, 3
    s_max_i32 s30, s30, 0
    s_lshr_b32 s30, s30, 2
    s_add_u32 s30, s30, s29
    s_sub_u32 s32, s31, s28
    s_add_u32 s32, s32, 3
    s_lshr_b32 s32, s32, 2
    s_lshl_b32 s32, s32, 1
    s_add_u32 s30, s30, s32
    s_sub_i32 s30, s30, 4
    s_max_i32 s30, s30, 0
    s_add_u32 s{S_R}, s30, 6
    s_sub_i32 s31, s31, s3
    s_add_i32 s31, s31, 3
    s_max_i32 s31, s31, 0
    s_lshr_b32 s31, s31, 2
    s_lshl_b32 s31, s31, 1
    s_lshl_b32 s31, -1, s31
    s_or_b32 s31, s31, 0x55555555
    s_lshl_b32 s32, 2, s30
    s_sub_u32 s32, s32, 1
    s_and_b32 s31, s31, s32
    s_lshl_b32 s32, 64, s30
    s_or_b32 s{S_M}, s31, s32
    v_and_b32 v72, 15, v1
    v_lshrrev_b32 v73, 4, v1
    s_lshl_b32 s31, s3, 2
    s_add_u32 s31, s31, 32
    v_add_u32 v73, s31, v73                 ; node
    v_mul_u32_u24 v74, {SSTR}, v73
    v_lshl_add_u32 v74, v72, 4, v74
    v_add_u32 v74, {L_SRC}, v74
    v_mul_u32_u24 v75, {NSTR}, v73
    v_add_u32 v75, {L_NODE}, v75
    v_cmp_gt_u32 vcc, 6, v72
    v_add_u32 v72, s30, v72
    v_lshrrev_b32 v73, 2, v72
    v_lshl_add_u32 v73, v73, 7, v{LP}
    v_and_b32 v72, 3, v72
    v_lshl_add_u32 v73, v72, 2, v73
    s_mov_b64 exec, vcc
    ds_write2_b32 v73, v74, v75 offset0:0 offset1:16
    s_cmp_lg_u32 s30, 0
    s_cbranch_scc1 L_cw2
    v_mov_b32 v3, 1
    s_mov_b64 exec, 1
    ds_add_u32 v2, v3 offset:{L_DYN}
L_cw2:
    s_mov_b64 exec, -1
    s_mov_b32 s31, {LDS_MAX}
L_wnc:
    ds_read_b32 v3, v2 offset:{L_NST}
    s_sub_u32 s31, s31, 1
    s_cbranch_scc1 L_gosafe
    s_waitcnt lgkmcnt(0)
    v_readfirstlane_b32 s30, v3
    s_bitcmp1_b32 s30, 18
    s_cbranch_scc0 L_wnc
    s_cmp_gt_u32 s30, {0 if OPT["force_safe"] else 0xffffff}
    s_cbranch_scc1 L_gosafe
    ds_read_b128 v[{WS4}:{WS4+3}], v{LP}
    ds_read_b64 v[{AG}:{AG+1}], v{LP} offset:64
    ds_read_b64 v[{WN2}:{WN2+1}], v{LP} offset:72
    ds_read_b32 v{WE}, v{LP+1}
    s_waitcnt lgkmcnt(0)
    v_lshl_add_u64 v[{AG}:{AG+1}], v[{AG}:{AG+1}], 0, v[{LN8}:{LN8+1}]
    v_lshl_add_u32 v{WE}, v{WE}, 1, v{EAC}
    ds_read_b128 v[{T}:{T+3}], v{WS4}
    ds_read_b128 v[{T+4}:{T+7}], v{WS4+1}
    ds_read_b64 v[{XA}:{XA+1}], v{AG} offset:512
    ds_read_b64 v[{EA}:{EA+1}], v{WE}
L_nobuild:
    s_waitcnt lgkmcnt(0)
""")
assert DIST == 2 and not EARLY
E(m_a(D0))
for o in range(T, T+8, 2): E(oadd(o))
E(m_e(D0, 0))
E(f"ds_read_b64 v[{XA}:{XA+1}], v{AG+1} offset:512")
lds_wait(L_GOK, 0xff, 4, "gok", sleep=OPT["sl"] & 1)
if OPT["stamps"] == 2: E(f"s_memrealtime s[{ST0+16}:{ST0+17}]")
if not OPT["nogather"]:
    for q in range(8): E(gload(G + 4*q, T+q))
STAMP(9)
E(f"""
    s_mov_b32 s31, {LDS_MAX}
""")
E(f"""
    s_cmp_ge_u32 s3, 8
    s_cbranch_scc1 L_nd
L_wna:
    ds_read_b32 v3, v2 offset:{L_NST}
    s_sub_u32 s31, s31, 1
    s_cbranch_scc1 L_gosafe
    s_waitcnt lgkmcnt(0)
    v_readfirstlane_b32 s30, v3
    s_bitcmp1_b32 s30, 18
    s_cbranch_scc0 L_wna
    s_cmp_gt_u32 s30, {0 if OPT["force_safe"] else 0xffffff}
    s_cbranch_scc1 L_gosafe
    s_and_b32 s31, s30, 0xff
    s_mov_b32 s{S_R}, 14
    s_cmp_ge_u32 s3, s31
    s_cselect_b32 s30, 0x80, 0
    s_or_b32 s{S_M}, s30, 0x4141
L_nd:
    s_waitcnt vmcnt(6)
    {m_s(D0, A1, G)}
    s_waitcnt vmcnt(4)
    {m_s(D0, A2, G+8)}
    v_mov_b32 v3, 1
    s_nop 7
    s_mov_b32 s{S_IT}, {(1 << OPT["pa"]) | (1 << OPT["pb"]) | (1 << OPT["pc"]) if OPT["prio"] == 2 else 0}
""")
if OPT["prio"]: E(f"s_setprio {OPT['p1']}")
STAMP(10)
if OPT["ptime"]: E("v_mov_b32 v70, 0\nv_mov_b32 v71, 0")
if OPT["stamps"] == 1: E(f"s_memtime s[{ST0+24}:{ST0+25}]\ns_waitcnt lgkmcnt(0)")
for u in range(4): phase(u, True)
assert OPT["pc"] >= 2
def aggread(r, k, node): return f"ds_read_b64 v[{r+2*k}:{r+2*k+1}], v68 offset:{node*NSTR + 128*k}"
def tail(u):
    Dc, Dn = ((D0, D1), (D1, D0))[u & 1]
    gc = G + 16*u; gn = G + 16*((u+1) & 3)
    E(f"L_T{u}:")
    E(m_a(Dn))
    for x in exps(Dc, 0): E(x)
    E(m_e(Dn, (u+1) & 3))
    for x in exps(Dc, 1): E(x)
    E(f"ds_read_b32 v3, v2 offset:{L_DYN}")
    weave(pk_steps(gc, 0, False) + pk_steps(gc, 1, False), {2*k+1: [aggread(F, k, 32)] for k in range(4)})
    E("s_waitcnt vmcnt(2)"); E(m_s(Dn, A1, gn))
    for x in exps(Dc, 2): E(x)
    E("s_waitcnt vmcnt(0)"); E(m_s(Dn, A2, gn+8))
    for x in exps(Dc, 3): E(x)
    for x in pk_steps(gc, 2, False) + pk_steps(gc, 3, False): E(x)
    for q in (0, 2):
        for x in exps(Dn, q) + exps(Dn, q+1): E(x)
        for x in pk_steps(gn, q, False) + pk_steps(gn, q+1, False): E(x)
for u in (1, 2, 3):
    def t_(): tail(u); E("s_branch L_mdone")
    emit_to(outofline, t_)
tail(0)
E(f"""
L_mdone:
""")
STAMP(11)
if OPT["ptime"]:
    E(f"""
    s_lshl_b32 s30, s2, 4
    s_add_u32 s30, s30, s3
    s_lshl_b32 s30, s30, 8
    s_add_u32 s30, s30, 0xc00000
    v_lshl_add_u32 v2, v1, 2, s30
    s_mov_b32 exec_hi, 0
    global_store_dword v2, v70, s[20:21]
    global_store_dword v2, v71, s[20:21] offset:128
    s_mov_b64 exec, -1
    """)
if OPT["stamps"] == 1:
    E(f"s_memtime s[28:29]\ns_waitcnt lgkmcnt(0)\ns_sub_u32 s{ST0+24}, s28, s{ST0+24}")
E(f"""
    s_mov_b32 s32, {f32(2.0**32)}
    s_mov_b32 s34, {f32(-LOG2E * 2.0**-32)}
    s_mov_b32 s31, {LDS_MAX}
    v_rcp_f32 v{P}, v{P}
    v_rcp_f32 v{P+1}, v{P+1}
    v_rcp_f32 v{P+2}, v{P+2}
    v_rcp_f32 v{P+3}, v{P+3}
; the sums were read behind the count of waves that are on their last chain; with all twelve there they are complete
L_dw:
    s_waitcnt lgkmcnt(0)
    v_readfirstlane_b32 s30, v3
    s_add_u32 s30, s30, s{S_SAFE}
    s_cmp_lt_u32 s30, 12
    s_cbranch_scc1 L_dr
L_dx:
    s_cmp_ge_u32 s3, 8
    s_cbranch_scc1 L_d1
""")
for k in range(4): E(aggread(12, k, 0))
E("L_d1:")
def reread():
    E(f"L_dr:\ns_sub_u32 s31, s31, 1\ns_cbranch_scc1 L_dx\nds_read_b32 v3, v2 offset:{L_DYN}")
    for k in range(4): E(aggread(F, k, 32))
    E("s_branch L_dw")
emit_to(outofline, reread)
OSC = {0: "", 1: " sc1", 2: " nt"}[OPT["osc"]]
def silu(y, first):
    for p in range(2): E(f"v_pk_mul_f32 v[{36+2*p}:{37+2*p}], v[{y+2*p}:{y+2*p+1}], s[34:35] op_sel_hi:[1,0]")
    for k in range(4): E(f"v_exp_f32 v{36+k}, v{36+k}")
    E(f"v_pk_add_f32 v[10:11], v[{y}:{y+1}], v[{y+2}:{y+3}]" if first else f"v_pk_add_f32 v[10:11], v[10:11], v[{y}:{y+1}]")
    for p in range(2): E(f"v_pk_fma_f32 v[{36+2*p}:{37+2*p}], v[{36+2*p}:{37+2*p}], s[32:33], s[32:33] op_sel_hi:[1,0,0]")
    for k in range(4): E(f"v_rcp_f32 v{36+k}, v{36+k}")
    E("v_mov_b32 v9, 0x207" if first else f"v_pk_add_f32 v[10:11], v[10:11], v[{y+2}:{y+3}]")
    for p in range(2): E(f"v_pk_mul_f32 v[{36+2*p}:{37+2*p}], v[{y+2*p}:{y+2*p+1}], v[{36+2*p}:{37+2*p}]")
    o = 44 if first else 46
    E(f"v_cvt_pk_bf16_f32 v{o}, v36, v37\nv_cvt_pk_bf16_f32 v{o+1}, v38, v39")
    E(f"global_store_dwordx2 v69, v[{o}:{o+1}], s[18:19]{OSC}")
for k in range(4): E(f"v_cvt_f32_f64 v{28+k}, v[{F+2*k}:{F+2*k+1}]")
for p in range(2): E(f"v_pk_fma_f32 v[{28+2*p}:{29+2*p}], v[{N+2*p}:{N+2*p+1}], v[{P+2*p}:{P+2*p+1}], v[{28+2*p}:{29+2*p}]")
silu(28, True)
E(f"""
    s_cmp_ge_u32 s3, 8
    s_cbranch_scc1 L_e4
    v_subrev_u32 v69, {32*256}, v69
    s_waitcnt lgkmcnt(0)
""")
for k in range(4): E(f"v_cvt_f32_f64 v{28+k}, v[{12+2*k}:{13+2*k}]")
silu(28, False)
E(f"""
L_e4:
    v_add_f32 v10, v10, v11
    v_cmp_class_f32 vcc, v10, v9
    v_mov_b32 v2, 0
    s_cmp_lg_u32 s{S_SAFE}, 0
    s_cbranch_scc1 L_fin
    {"s_branch" if OPT["nosafe"] else "s_cbranch_vccz"} L_e5
    ds_write_b32 v2, v9 offset:{L_FLAG}
    s_waitcnt lgkmcnt(0)
L_e5:
    s_barrier                               ; B6
    ds_read_b32 v2, v2 offset:{L_FLAG}
    s_waitcnt lgkmcnt(0)
    v_readfirstlane_b32 s30, v2
    s_cmp_lg_u32 s30, 0
    s_cbranch_scc1 L_gosafe
L_fin:
""")
if OPT["stamps"]:
    E("s_waitcnt vmcnt(0)"); STAMP(13); STAMP_OUT()
if OPT["probe"] >= 0:
    T_ = ST0 + 2*OPT["probe"]
    E(f"""
    s_cmp_lg_u32 s3, {OPT["pw"]}
    s_cbranch_scc1 L_end
    s_cmp_lg_u32 s2, {OPT["pg"] if OPT["pg"] >= 0 else "s2"}
    s_cbranch_scc1 L_end
    s_sub_u32 s30, s{T_}, s{ST0}
    s_lshl_b32 s30, s30, 2
    s_add_u32 s30, s30, 3000
    s_min_u32 s30, s30, 20000
L_spin:
    s_memrealtime s[28:29]
    s_waitcnt lgkmcnt(0)
    s_sub_u32 s28, s28, s{ST0}
    s_cmp_lt_u32 s28, s30
    s_cbranch_scc1 L_spin
    """)
E(f"""
L_end:
    s_endpgm
; ---------------- fall back: redo the node terms, then evaluate edge by edge
L_gosafe:
    s_mov_b32 s{S_SAFE}, 16
    s_setprio 0
    s_waitcnt vmcnt(0) lgkmcnt(0)
    s_barrier
    s_branch L_restart
""")
out += outofline
for r in retries: E(r)
E(f"""
L_safe:
    v_and_b32 v2, 15, v1
    v_lshlrev_b32 v3, 3, v2
    v_add_u32 v3, {L_C}, v3
""")
for k in range(4):
    for s in range(4):
        E(f"ds_read_u16 v{80+4*k+s}, v3 offset:{128*k + 2*s}")
E("s_waitcnt lgkmcnt(0)")
for i in range(16):
    E(f"v_lshlrev_b32 v{80+i}, 16, v{80+i}\nv_mul_f32 v{80+i}, s40, v{80+i}")
E(f"""
    v_lshrrev_b32 v24, 4, v1
    v_mul_u32_u24 v24, 3, v24               ; 3*quarter
    s_movk_i32 s33, {NSTR}
    v_add_u32 v25, {L_NODE}, v{LN8}
    s_mov_b32 s34, s3
    s_mov_b32 s35, {POLL_MAX}
L_scell:
    s_lshl_b32 s30, s34, 10
    s_lshl_b32 s31, s{S_BUCK}, 3
    s_add_u32 s30, s30, s31
    s_add_u32 s30, s30, {WS_ROW}
    v_mov_b32 v26, s30
    global_load_dword v32, v26, s[20:21] sc1
    s_mul_i32 s30, s34, {SORTB//4}
    s_add_u32 s30, s30, {WS_REC//4}
    s_waitcnt vmcnt(0)
    v_bfe_u32 v28, v32, 12, 12              ; 3*count
    v_and_b32 v27, 0xfff, v32
    v_add_u32 v27, s30, v27
L_sver:
    v_mov_b32 v29, v1
    v_mov_b32 v31, 0
L_sv1:
    v_cmp_ge_u32 vcc, v28, v29
    s_and_saveexec_b64 s[48:49], vcc
    s_cbranch_execz L_sv2
    v_add_lshl_u32 v30, v27, v29, 2
    global_load_dword v32, v30, s[20:21] sc1
    s_waitcnt vmcnt(0)
    v_add_u32 v31, v31, v32
    s_mov_b64 exec, s[48:49]
    v_add_u32 v29, 64, v29
    s_branch L_sv1
L_sv2:
    s_mov_b64 exec, s[48:49]
""")
scan(31)
E(f"""
    s_nop 0
    v_readlane_b32 s30, v31, 63
    s_cmp_eq_u32 s30, s{S_TAG+1}
    s_cbranch_scc1 L_sok
    s_sub_u32 s35, s35, 1
    s_cbranch_scc0 L_sver
    s_branch L_sdone
L_sok:
    v_mov_b32 v29, v24
L_srec:
    v_cmp_gt_u32 vcc, v28, v29
    s_and_saveexec_b64 s[48:49], vcc
    s_cbranch_execz L_snext
    v_add_lshl_u32 v30, v27, v29, 2
    global_load_dwordx3 v[32:34], v30, s[20:21] offset:4 sc1
    s_waitcnt vmcnt(0)
    v_and_b32 v30, 0x3fff00, v32
    v_add_u32 v30, v30, v{LN16}
    buffer_load_dwordx4 v[36:39], v30, s[36:39], 0 offen sc1
    v_lshrrev_b32 v31, 24, v32
    v_mad_u32_u24 v31, v31, s33, v25
    ds_read_b64 v[40:41], v31 offset:512
    v_lshlrev_b32 v44, 16, v33
    v_and_b32 v45, 0xffff0000, v33
    v_lshlrev_b32 v46, 16, v34
    v_and_b32 v47, 0xffff0000, v34
    s_waitcnt vmcnt(0) lgkmcnt(0)
    v_lshlrev_b32 v48, 16, v40
    v_and_b32 v49, 0xffff0000, v40
    v_lshlrev_b32 v50, 16, v41
    v_and_b32 v51, 0xffff0000, v41
""")
for s in range(4):
    E(f"v_lshlrev_b32 v52, 16, v{36+s}\nv_add_f32 v{48+s}, v{48+s}, v52")
    for k in range(4):
        E(f"v_fmac_f32 v{48+s}, v{44+k}, v{80+4*k+s}")
for s in range(4): E(f"v_exp_f32 v{48+s}, v{48+s}")
E("s_nop 0")
for s in range(4): E(f"v_add_f32 v{48+s}, 1.0, v{48+s}")
for s in range(4): E(f"v_rcp_f32 v{48+s}, v{48+s}")
E("s_nop 0")
for s in range(4): E(f"v_mul_f32 v{48+s}, v{48+s}, v{36+s}")
for s in range(4): E(f"v_cvt_f64_f32 v[{54+2*s}:{55+2*s}], v{48+s}")
for s in range(4): E(f"ds_add_f64 v31, v[{54+2*s}:{55+2*s}] offset:{128*s}")
E(f"""
    s_mov_b64 exec, s[48:49]
    v_add_u32 v29, 12, v29
    s_branch L_srec
L_snext:
    s_mov_b64 exec, s[48:49]
    s_add_u32 s34, s34, {NW}
    s_cmp_lt_u32 s34, {NCHUNK}
    s_cbranch_scc1 L_scell
L_sdone:
    s_waitcnt lgkmcnt(0)
    s_barrier
    v_mov_b32 v3, 0
""")
for k in range(4): E(f"v_mov_b32 v{N+k}, 0\nv_mov_b32 v{P+k}, 1.0"); E(aggread(F, k, 32))
E(f"""
    s_branch L_mdone
L_codeend:
.section .rodata,"a"
.p2align 6
.amdhsa_kernel {NAME}
.amdhsa_next_free_vgpr 168
.amdhsa_next_free_sgpr 102
.amdhsa_accum_offset 168
.amdhsa_group_segment_fixed_size 0
.amdhsa_kernarg_size 80
.amdhsa_user_sgpr_count 2
.amdhsa_user_sgpr_kernarg_segment_ptr 1
.amdhsa_system_sgpr_workgroup_id_x 1
.end_amdhsa_kernel
""")
if OPT["al"]:
    i0 = out.index("L_L0:"); i1 = out.index("L_mdone:")
    mid = []; odd = False
    for l in out[i0:i1]:
        t = l.strip()
        if t.endswith(":") or t.startswith(";"): mid.append(l); continue
        four = t.startswith(("s_", "v_exp"))
        if not four and odd and OPT["al"] >= 3:
            mid.append("    s_nop 0"); odd = False
        if four: odd = not odd
        mid.append(l)
    pre = [".p2align 6, , 60"] if OPT["al"] != 2 else [".p2align 6, , 60", "    s_nop 0"]
    out = out[:i0] + pre + mid + out[i1:]
if OPT["drop"]:
    i0 = out.index("L_L0:"); i1 = out.index("L_mdone:")
    pats = {1: ("smfmac",), 2: ("mfma",), 3: ("32x32x8",), 4: ("smfmac",), 5: ("v_exp",)}[OPT["drop"]]
    repl = {4: "    s_nop 2", 5: "    s_nop 1"}.get(OPT["drop"])
    mid = []
    for l in out[i0:i1]:
        if any(x in l for x in pats):
            if repl: mid.append(repl)
        else: mid.append(l)
    if OPT["drop"] == 3: mid = [l.replace("v[88:103] cbsz", "0 cbsz").replace("v[72:87] cbsz", "0 cbsz") for l in mid]
    out = out[:i0] + mid + out[i1:]
if OPT["nochain"]:
    i0 = out.index("L_L0:"); i1 = out.index("L_mdone:")
    out = out[:i0] + [l for l in out[i0:i1] if not any(x in l for x in ("v_exp", "v_pk_", "mfma", "v_rcp", "v_cvt"))] + out[i1:]
open(sys.argv[1], "w").write("\n".join(out) + "\n")
```

```python
import sys, struct

OPT = dict(hb=1, pgs=0, al=0, sl=0, sigw=0, aue=0, mcl=2, b31=1, split=3, grp=0, allg=0, eag=1, stamps=0, force_safe=0, nogather=0, nosafe=0, prio=2, gsc1=1, osc=1, codepf=1, srcmask=0x3fff00, nrec=0, warm=0,
           nochain=0, probe=-1, pw=-1, pg=-1, gpf=32, early=0, cnt=0, pollmax=200000, pa=6, pb=3, pc=2, p0=3, p1=3, ptime=0,
           dist=2, ldearly=0, drop=0, wgate=0, gate=0, gate2=1, rst=0, rsc1=1, nover=0, p2gate=1, p2sleep=0, hold=0, slate=2, lpos=0, p1st=1, sig=2, gpace=4, gwin=-1, gp=0xf448c, ghold=0, nte=0, ewhen=6, eah=0, rih=0, stg=0, wpf=1, gpe=40, oneb=0, tagl=0, p0e=0, aul=0, t0f=0, pre=0, prelate=0, ntx=0, rpace=-1, p2wait=0)
for a in sys.argv[2:]:
    k, v = a.split("=")
    assert k in OPT, k
    OPT[k] = int(v, 0)

out = []
def E(s=""):
    for line in s.split("\n"):
        line = line.strip()
        if not line:
            continue
        if line.endswith(":") or line.startswith(".") or line.startswith(";"):
            out.append(line)
        else:
            out.append("    " + line)

def f32(x):
    return "0x%08x" % struct.unpack("<I", struct.pack("<f", x))[0]

NAME = "standalone__edge_featured_mpnn_egc__graph_kernel"
LOG2E = 1.4426950408889634
NB = 80; NBUCK = 125; CHUNK = 1280; NCHUNK = 250
NW = 12
G_HALF = 10000 * 256
WS0 = 0
WS_REC = 0x500000
WS_ROW = 0x900000
WS_FL2 = 0x980000
WS_TAG = 0x9c0000
SORTB = CHUNK * 12 + 512
WS_STAMP = 0x1000000
L_CNT = 0; L_SOFF = 512
L_SCNT = 1024
L_CTR = 1536; L_RD = 1540; L_DONE2 = 1544; L_FLAG = 1548; L_NST = 1552; L_GST = 1556; L_GOK = 1560; L_AU = 1564; L_DYN = 1568; L_EAOK = 1572
L_DUM = L_SOFF
L_LIST = 2048
L_LISTC = L_LIST + 4096
SSTR = 272
L_SRC = L_LIST + 8192
SRCB = 80 * SSTR + 32
L_EA = L_SRC + SRCB
L_EAEND = L_EA + 2 * SRCB
L_SORT = L_EA
L_WBV = (L_EAEND + 255) // 256 * 256; L_X = L_WBV + 32768; L_WAU = L_X + 20480; L_C = L_WAU + 32768
LDS = L_C + 1024
L_NODE = L_WBV; NSTR = 648
assert L_NODE + 80 * NSTR <= L_WAU and LDS <= 163840 and L_EA % 16 == 0
NULL_SRC = 0x7fffff00
POLL_MAX = OPT["pollmax"]
LDS_MAX = 20 * POLL_MAX
SC1 = " sc1"
NTE = " nt" if OPT["nte"] else ""
NTX = " nt" if OPT["ntx"] else ""

S_HALF, S_BUCK, S_P = 22, 23, 24
S_SAFE, S_TAG = 25, 26
S_R, S_M, S_IT = 70, 71, 72
S_TAGRAW = 47
ST0 = 74

def ESTAMP(i):
    if OPT["early"] == 1 or (OPT["early"] and i == 0): E(f"s_memrealtime s[{ST0+2*i}:{ST0+2*i+1}]")
def FSTAMP(i):
    if OPT["early"] == 2: E(f"s_memrealtime s[{ST0+2*i}:{ST0+2*i+1}]\ns_waitcnt lgkmcnt(0)")
def STAMP(i):
    if OPT["stamps"] == 2:
        if i == 0: E(f"s_memrealtime s[{ST0}:{ST0+1}]")
        if i == 13: E(f"s_memrealtime s[{ST0+26}:{ST0+27}]\ns_waitcnt lgkmcnt(0)")
        return
    if OPT["early"] and 1 <= i <= 7: return
    if OPT["early"] and i == 0: return ESTAMP(0)
    if OPT["stamps"] or (OPT["probe"] >= 0 and i == OPT["probe"]):
        E(f"s_memrealtime s[{ST0+2*i}:{ST0+2*i+1}]\ns_waitcnt lgkmcnt(0)")
    elif OPT["probe"] >= 0 and i == 0:
        E(f"s_memrealtime s[{ST0}:{ST0+1}]")
NSTAMP = 14
def STAMP_OUT():
    if OPT["stamps"]:
        E(f"""
        s_lshl_b32 s30, s2, 4
        s_add_u32 s30, s30, s3
        s_lshl_b32 s30, s30, 6
        s_add_u32 s30, s30, {WS_STAMP - 0x100000}
        s_load_dwordx2 s[20:21], s[0:1], 72
        s_waitcnt lgkmcnt(0)
        s_mov_b64 exec, -1
        v_mov_b32 v3, s30""")
        for i in (range(NSTAMP) if OPT["stamps"] == 1 else (0, 8, 13)):
            E(f"v_mov_b32 v2, s{ST0+2*i}\nglobal_store_dword v3, v2, s[20:21] offset:{4*i}")
        E("s_waitcnt vmcnt(0)")

A1, A2, IDX, EAC, LN16, ASEL, CW, LN8 = 4, 8, 12, 13, 14, 16, 18, 20
LP, WS4, WN2, EA, XA, WE, OFS, AG, T, N, P, F = 22, 24, 28, 30, 32, 34, 36, 40, 44, 52, 56, 60
D0, D1, G = 72, 88, 104

def finish_tag():
    E(f"""
    s_mul_i32 s{S_TAG+1}, s{S_TAGRAW}, 0x85ebca6b
    s_mul_i32 s{S_TAG}, s{S_TAGRAW}, 0x9e3779b1
    s_add_u32 s{S_TAG+1}, s{S_TAG+1}, 0x5bd1e995
    s_add_u32 s{S_TAG}, s{S_TAG}, 0x7f4a7c15
    """)
def get_tag(lab, q):
    E(f"""
    s_cmp_lg_u32 s{S_SAFE}, 0
    s_cbranch_scc1 L_tag_{lab}
    v_mov_b32 v2, 0
    s_mov_b32 s31, {LDS_MAX}
L_tg_{lab}:
    ds_read_b128 v[{q}:{q+3}], v2 offset:{L_SCNT + 124*4}
    s_sub_u32 s31, s31, 1
    s_cbranch_scc1 L_tag_{lab}
    s_waitcnt lgkmcnt(0)
    v_readfirstlane_b32 s30, v{q+3}
    v_readfirstlane_b32 s{S_TAGRAW}, v{q+1}
    s_cmp_lg_u32 s30, 4
    s_cbranch_scc1 L_tg_{lab}
    """)
    finish_tag()
    E(f"L_tag_{lab}:")

def lds_wait(addr, mask, val, tag, sleep=0, ne=False):
    E(f"""
    v_mov_b32 v2, 0
    s_mov_b32 s31, {LDS_MAX}
    {f"s_branch L_wf_{tag}" if sleep else ""}
L_w_{tag}:
    {f"s_sleep {sleep}" if sleep else ""}
L_wf_{tag}:
    ds_read_b32 v3, v2 offset:{addr}
    s_sub_u32 s31, s31, 1
    s_cbranch_scc1 L_wd_{tag}
    s_waitcnt lgkmcnt(0)
    v_readfirstlane_b32 s30, v3
    s_and_b32 s30, s30, {mask}
    s_cmp_lg_u32 s30, {val}
    s_cbranch_scc{0 if ne else 1} L_w_{tag}
L_wd_{tag}:
    """)
SCAN = ("row_shr:1 row_mask:0xf bank_mask:0xf bound_ctrl:0", "row_shr:2 row_mask:0xf bank_mask:0xf bound_ctrl:0",
        "row_shr:4 row_mask:0xf bank_mask:0xf bound_ctrl:0", "row_shr:8 row_mask:0xf bank_mask:0xf bound_ctrl:0",
        "row_bcast:15 row_mask:0xa bank_mask:0xf", "row_bcast:31 row_mask:0xc bank_mask:0xf")
def scan(r):
    for m in SCAN:
        E(f"s_nop 1\nv_add_u32_dpp v{r}, v{r}, v{r} {m}")

def main_consts(sm=48):
    E(f"""
    v_and_b32 v2, 15, v1                    ; n'
    v_lshrrev_b32 v3, 4, v1
    v_lshl_add_u32 v3, v2, 2, v3
    v_lshlrev_b32 v3, 1, v3
    v_add_u32 v3, {L_C}, v3
    ds_read_u16 v64, v3                     ; C[0..3][feature 4n'+s]
    ds_read_u16 v65, v3 offset:128
    ds_read_u16 v66, v3 offset:256
    ds_read_u16 v67, v3 offset:384
    v_and_b32 v63, 3, v1                    ; q
    v_lshlrev_b32 v{LN8}, 3, v2
    v_lshlrev_b32 v{LN8+1}, 3, v2
    v_lshlrev_b32 v{LN16}, 4, v2
    v_lshlrev_b32 v{LN16+1}, 4, v2
    v_mov_b32 v{IDX}, 0x8888
    v_bfe_u32 v60, v1, 3, 2                 ; s = (l&31)>>3
    v_bfe_u32 v61, v1, 2, 1                 ; h = (l>>2)&1
    v_lshrrev_b32 v62, 5, v1                ; ha
    v_and_b32 v2, 1, v60
    v_lshlrev_b32 v2, 4, v2
    v_lshlrev_b32 v2, v2, s46               ; 1.0 (bf16) in half s&1
    v_lshrrev_b32 v60, 1, v60               ; s>>1
    v_lshl_add_u32 v3, v61, 1, v60
    v_sub_u32 v63, v63, v62                 ; q - ha : 0 -> A1, 2 -> A2
    v_lshl_add_u32 v3, v63, 1, v3
    v_and_b32 v63, 1, v63
    v_lshl_or_b32 v3, v63, 4, v3
    v_xor_b32 v61, v61, v62
    v_lshl_or_b32 v60, v61, 4, v60
    """)
    mk = [f"s[{sm}:{sm+1}]", f"s[{sm+2}:{sm+3}]", f"s[{sm+4}:{sm+5}]", "vcc"]
    for i in range(8):
        E(f"v_cmp_eq_u32 {mk[i%4]}, {i}, v3")
        if i % 4 == 3:
            for j in range(i-3, i+1):
                E(f"v_cndmask_b32 v{A1+j}, 0, v2, {mk[j%4]}")
    E(f"""
    v_cmp_eq_u32 {mk[0]}, 0, v60
    v_cmp_eq_u32 {mk[1]}, 1, v60
    v_and_b32 v63, 3, v1
    v_lshlrev_b32 v61, 3, v63
    v_cndmask_b32 v{ASEL}, 0, v2, {mk[0]}
    v_cndmask_b32 v{ASEL+1}, 0, v2, {mk[1]}
    v_add_u32 v{EAC}, {L_EA - 2*L_SRC}, v61
    s_lshl_b32 s30, s3, 9
    s_sub_u32 s31, s30, 4096
    s_max_i32 s31, s31, 0
    s_add_u32 s30, s30, s31
    s_add_u32 s30, s30, {L_LIST}
    v_lshrrev_b32 v2, 4, v1
    v_lshl_add_u32 v{LP}, v2, 4, s30
    v_bfe_u32 v3, v1, 2, 2
    v_lshl_add_u32 v{LP+1}, v3, 4, s30
    v_lshl_add_u32 v{LP+1}, v2, 2, v{LP+1}
    s_lshl_b32 s30, s3, 2
    s_add_u32 s30, s30, 32
    v_add_u32 v2, s30, v2
    v_mul_u32_u24 v68, {NSTR}, v2
    v_add_u32 v68, v68, v{LN8}
    v_add_u32 v68, {L_NODE - 32*NSTR}, v68
    s_mul_i32 s30, s{S_BUCK}, {NB*256}
    s_lshl_b32 s31, s{S_HALF}, 7
    s_add_u32 s30, s30, s31
    v_lshl_add_u32 v69, v2, 8, v{LN8}
    v_add_u32 v69, s30, v69
    s_waitcnt lgkmcnt(0)
    v_lshlrev_b32 v60, 16, v64
    v_lshlrev_b32 v61, 16, v65
    v_lshlrev_b32 v62, 16, v66
    v_lshlrev_b32 v63, 16, v67
    v_mul_f32 v60, s40, v60
    v_mul_f32 v61, s40, v61
    v_mul_f32 v62, s40, v62
    v_mul_f32 v63, s40, v63
    v_cvt_pk_bf16_f32 v{CW}, v60, v61
    v_cvt_pk_bf16_f32 v{CW+1}, v62, v63
    """)

def gload(g, o):
    return f"buffer_load_dwordx4 v[{g}:{g+3}], v{o}, s[36:39], 0 offen" + (SC1 if OPT["gsc1"] else "")
def oadd(o):
    return f"v_lshl_add_u64 v[{o}:{o+1}], v[{o}:{o+1}], 0, v[{LN16}:{LN16+1}]"

def pk_steps(Gc, q, first):
    t = T + 4*(q & 1); h = Gc + 4*q
    if first and q == 0:
        return [f"v_pk_add_f32 v[{P+2*p}:{P+2*p+1}], v[{t+2*p}:{t+2*p+1}], 1.0 op_sel_hi:[1,0]" for p in range(2)]
    r = []
    for p in range(2):
        n = f"v[{Gc+2*p}:{Gc+2*p+1}]" if (first and q == 1) else f"v[{N+2*p}:{N+2*p+1}]"
        r.append(f"v_pk_fma_f32 v[{N+2*p}:{N+2*p+1}], {n}, v[{t+2*p}:{t+2*p+1}], {n}")
    for p in range(2):
        r.append(f"v_pk_fma_f32 v[{N+2*p}:{N+2*p+1}], v[{h+2*p}:{h+2*p+1}], v[{P+2*p}:{P+2*p+1}], v[{N+2*p}:{N+2*p+1}]")
    for p in range(2):
        r.append(f"v_pk_fma_f32 v[{P+2*p}:{P+2*p+1}], v[{P+2*p}:{P+2*p+1}], v[{t+2*p}:{t+2*p+1}], v[{P+2*p}:{P+2*p+1}]")
    return r
def exps(Dc, q):
    t = T + 4*(q & 1)
    return [f"v_exp_f32 v{t+s}, v{Dc+4*s+q}" for s in range(4)]
def weave(main, extra):
    for i, x in enumerate(main):
        E(x)
        for y in extra.get(i, []):
            E(y)
def m_a(Dn): return f"v_mfma_f32_32x32x8_bf16 v[{Dn}:{Dn+15}], v[{ASEL}:{ASEL+1}], v[{XA}:{XA+1}], 0"
def m_e(Dn, abid): return f"v_mfma_f32_16x16x4_4b_bf16 v[{Dn}:{Dn+15}], v[{EA}:{EA+1}], v[{CW}:{CW+1}], v[{Dn}:{Dn+15}] cbsz:2 abid:{abid}"
def m_s(Dn, A, g): return f"v_smfmac_f32_32x32x32_bf16 v[{Dn}:{Dn+15}], v[{A}:{A+3}], v[{g}:{g+7}], v{IDX}"

outofline = []
def emit_to(lst, fn):
    global out
    keep = out; out = []
    fn(); lst += out; out = keep
assert OPT["pa"] == 6 and OPT["prio"] == 2
DIST = OPT["dist"]; EARLY = OPT["ldearly"]
assert not (EARLY and DIST == 4)
def phase(u, loads):
    tag = f"{'L' if loads else 'T'}{u}"
    Dc, Dn = ((D0, D1), (D1, D0))[u & 1]
    gc = G + 16*u; gn = G + 16*((u+1) & 3); gl = G + 16*((u+DIST) & 3)
    ld = loads and not OPT["nogather"]
    kw = (u + DIST + EARLY) & 3
    wsgrp = 128 * ((3 - kw + u + DIST + EARLY) // 4 + 1) if kw == 3 else None
    def addloads(ex, pos):
        if loads:
            ex.setdefault(0, []).append(oadd(OFS)); ex.setdefault(2, []).append(oadd(OFS+2))
        if ld:
            for q in range(4): ex.setdefault(pos[q], []).append(gload(gl+4*q, OFS+q))
    E(f"L_{tag}:")
    SL = OPT["slate"]
    if not SL: E(f"s_waitcnt vmcnt({4*(DIST-2)})")
    E(m_a(Dn))
    for x in exps(Dc, 0): E(x)
    E(m_e(Dn, (u+1) & 3) if SL else m_s(Dn, A1, gn))
    for x in exps(Dc, 1): E(x)
    ex = {0: ["s_waitcnt lgkmcnt(0)"], 2: [f"ds_read_b64 v[{XA}:{XA+1}], v{AG + ((u+2) & 3)} offset:512"]}
    if u % 2 == 0:
        p = AG + ((u+2) & 3)
        ex[0].append(f"v_lshl_add_u64 v[{p}:{p+1}], v[{WN2}:{WN2+1}], 0, v[{LN8}:{LN8+1}]")
    if EARLY: addloads(ex, (1, 3, 5, 6))
    elif loads: ex[1] = [f"ds_read_b128 v[{OFS}:{OFS+3}], v{WS4+kw}"]
    if u == 2:
        ex.setdefault(4, []).append(f"v_lshl_add_u32 v{WE}, v{WE}, 1, v{EAC}")
        if SL: ex.setdefault(7, []).append(f"ds_read_b64 v[{EA}:{EA+1}], v{WE}")
    E(f"s_bitcmp1_b32 s{S_M}, 0\ns_cbranch_scc1 L_{tag}f")
    weave(pk_steps(gc, 0, False) + pk_steps(gc, 1, False), ex)
    E(f"L_{tag}r:")
    def first():
        E(f"L_{tag}f:")
        weave(pk_steps(gc, 0, True) + pk_steps(gc, 1, True), ex)
        E(f"s_branch L_{tag}r")
    emit_to(outofline, first)
    if SL:
        if OPT["ptime"]: E(f"s_memrealtime s[28:29]\ns_mov_b32 m0, s{S_R}")
        E(f"s_waitcnt vmcnt({4*(DIST-2) + (4 if (EARLY and loads) else 0) + (2 if SL == 2 else 0)})")
        E(m_s(Dn, A1, gn))
    else:
        E(m_e(Dn, (u+1) & 3))
    for x in exps(Dc, 2): E(x)
    if SL == 2: E(f"s_waitcnt vmcnt({4*(DIST-2) + (4 if (EARLY and loads) else 0)})")
    if OPT["ptime"]: E(f"s_memrealtime s[30:31]")
    E(m_s(Dn, A2, gn+8))
    for x in exps(Dc, 3): E(x)
    ex = {0: ["s_waitcnt lgkmcnt(0)"], 4: [], 6: [], 7: [f"s_sub_u32 s{S_R}, s{S_R}, 1"], 10: [f"s_lshr_b32 s{S_M}, s{S_M}, 1"], 11: [f"s_bitcmp1_b32 s{S_M}, 0"]}
    if OPT["ptime"]: ex[0] += ["v_writelane_b32 v70, s28, m0", "v_writelane_b32 v71, s30, m0"]
    if not EARLY: addloads(ex, (1, 3, 5, 9) if DIST == 4 else ((1, 3, 5, 7), (1, 2, 3, 4), (4, 6, 8, 10), (2, 5, 8, 10))[OPT['lpos']])
    elif loads: ex[1] = [f"ds_read_b128 v[{OFS}:{OFS+3}], v{WS4+kw}"]
    if u == 1:
        ex[4].append(f"ds_read_b64 v[{WN2}:{WN2+1}], v{LP} offset:{128+64}")
        ex[6].append(f"ds_read_b32 v{WE}, v{LP+1} offset:128")
    if u == 2 and not SL:
        ex[4].append(f"ds_read_b64 v[{EA}:{EA+1}], v{WE}")
    if u == 3:
        ex[4].append(f"ds_read_b64 v[{WN2}:{WN2+1}], v{LP} offset:{128+64+8}")
        ex.setdefault(8, []).append(f"v_lshl_add_u64 v[{LP}:{LP+1}], v[{LP}:{LP+1}], 0, s[44:45]")
    if wsgrp and loads: ex[6].append(f"ds_read_b128 v[{WS4}:{WS4+3}], v{LP} offset:{wsgrp}")
    weave(pk_steps(gc, 2, False) + pk_steps(gc, 3, False), ex)
    E(f"s_cbranch_scc1 L_{tag}z\nL_{tag}y:")
    def fin():
        E(f"""
L_{tag}z:
        v_rcp_f32 v{P}, v{P}
        v_rcp_f32 v{P+1}, v{P+1}
        v_rcp_f32 v{P+2}, v{P+2}
        v_rcp_f32 v{P+3}, v{P+3}
        v_pk_mul_f32 v[{N}:{N+1}], v[{N}:{N+1}], v[{P}:{P+1}]
        v_pk_mul_f32 v[{N+2}:{N+3}], v[{N+2}:{N+3}], v[{P+2}:{P+3}]
        """)
        for s_ in range(4):
            E(f"v_cvt_f64_f32 v[{F+2*s_}:{F+2*s_+1}], v{N+s_}")
            if s_: E(f"ds_add_f64 v{AG+u}, v[{F+2*s_-2}:{F+2*s_-1}] offset:{128*(s_-1)}")
        E(f"ds_add_f64 v{AG+u}, v[{F+6}:{F+7}] offset:384")
        E(f"s_branch L_{tag}y")
    emit_to(outofline, fin)
    if OPT["prio"] == 2:
        E(f"s_bitcmp1_b32 s{S_IT}, s{S_R}\ns_cbranch_scc1 L_{tag}q\nL_{tag}p:")
        def pr():
            E(f"""
L_{tag}q:
            s_setprio 0
            s_cmp_le_u32 s{S_R}, {OPT["pc"]}
            s_cbranch_scc1 L_{tag}p
            s_setprio 1
            s_cmp_le_u32 s{S_R}, {OPT["pb"]}
            s_cbranch_scc1 L_{tag}p
            s_setprio 2
            s_mov_b64 exec, 1
            ds_add_u32 v2, v3 offset:{L_DYN}
            s_mov_b64 exec, -1
            s_branch L_{tag}p
            """)
        emit_to(outofline, pr)
    if u == 3 and OPT["prio"] == 1:
        E(f"""
        s_add_u32 s{S_IT}, s{S_IT}, 1
        s_setprio 0
        s_cmp_gt_u32 s{S_IT}, 2
        s_cbranch_scc1 L_{tag}p
        s_setprio 1
        s_cmp_eq_u32 s{S_IT}, 2
        s_cbranch_scc1 L_{tag}p
        s_setprio 2
L_{tag}p:
        """)
    if loads:
        E(f"s_cmp_le_u32 s{S_R}, {DIST}")
        if u < 3: E(f"s_cbranch_scc1 L_T{u+1}")
        else: E("s_cbranch_scc0 L_L0")
    else:
        E(f"s_waitcnt vmcnt(0)\ns_cmp_eq_u32 s{S_R}, 0")
        if u < 3: E("s_cbranch_scc1 L_mdone")
        else: E("s_cbranch_scc0 L_T0")

E(f"""
; Edge-gated message passing in one launch, one workgroup per (bucket of 80 nodes, half of the features).
;  sum_i h_i / (1 + t_i), t = exp(-z), is carried as a fraction N / P along a node's edges (exact algebra); if that
; @launch grid=(256,1,1) block=({64*NW},1,1) lds={LDS}
.amdgcn_target "amdgcn-amd-amdhsa--gfx950"
.text
.globl {NAME}
.p2align 8
.type {NAME},@function
{NAME}:
""")
if OPT["stamps"] == 1 and OPT["early"] != 1:
    for i in range(NSTAMP): E(f"s_mov_b64 s[{ST0+2*i}:{ST0+2*i+1}], 0")
STAMP(0)
E(f"""
    s_load_dwordx16 s[4:19], s[0:1], 0
    s_load_dwordx2 s[20:21], s[0:1], 72
""")
if OPT["codepf"]:
    E(f"""
    s_getpc_b64 s[28:29]
L_pc:
    v_lshlrev_b32 v3, 7, v0
    v_cmp_gt_u32 vcc, L_codeend-L_pc-64, v3
    s_cbranch_vccz L_nopf
    s_mov_b64 exec, vcc
    global_load_dword v164, v3, s[28:29]
    s_mov_b64 exec, -1
L_nopf:
    """)
E(f"""
    v_lshrrev_b32 v2, 6, v0
    v_and_b32 v1, 63, v0
    v_readfirstlane_b32 s3, v2
    {"s_bfe_u32 s%d, s2, 0x10002" % S_HALF if OPT["hb"] else "s_and_b32 s%d, s2, 1" % S_HALF}
    {"s_and_b32 s30, s2, 3" if OPT["hb"] else "s_bfe_u32 s30, s2, 0x20001"}
    {"s_mul_i32 s30, s30, 31" if OPT["b31"] else "s_lshl_b32 s30, s30, 5"}
    s_lshr_b32 s31, s2, 3
    s_add_u32 s{S_BUCK}, s30, s31
    {"s_cmp_eq_u32 s30, 93                    ; 31 buckets per XCD of a half, 32 on the last" if OPT["b31"] else "s_cmp_ge_u32 s2, 256"}
    {"s_subb_u32 s31, s31, 0" if OPT["b31"] else "s_cbranch_scc1 L_end"}
    {"s_cmp_ge_i32 s31, 31" if OPT["b31"] else "s_cmp_ge_u32 s%d, %d" % (S_BUCK, NBUCK)}
    s_cbranch_scc1 L_end
    s_lshl_b32 s{S_P}, s{S_BUCK}, 1
    s_add_u32 s{S_P}, s{S_P}, s{S_HALF}
    s_mov_b32 s{S_SAFE}, 0
L_restart:
    s_cmp_ge_u32 s3, 4
    s_cbranch_scc1 L_nosort
    v_mov_b32 v48, 0
    v_mov_b32 v49, 0
    v_mov_b32 v50, 0
    v_mov_b32 v51, 0
    v_lshlrev_b32 v10, 4, v1
    ds_write_b128 v10, v[48:51] offset:{L_SCNT}
    s_mul_i32 s30, s{S_P}, {CHUNK*4}
    v_lshl_add_u32 v3, v0, 4, s30
    s_add_u32 s30, s30, 4096
    v_lshl_add_u32 v18, v0, 2, s30
    v_lshlrev_b32 v10, 1, v3
    v_lshlrev_b32 v11, 1, v18
    v_mov_b32 v17, {WS_TAG}
    s_waitcnt lgkmcnt(0)
    global_load_dwordx4 v[4:7], v3, s[10:11]{NTE}
    global_load_dword v8, v18, s[10:11]{NTE}
""")
STG = OPT["stg"]
if STG: E(f"""
    s_add_u32 s28, s20, {WS_TAG}
    s_addc_u32 s29, s21, 0
    s_load_dword s65, s[28:29], 0
""")
else: E("global_load_dword v43, v17, s[20:21]")
E(f"""
""")
def preclear():
    E(f"""
    s_cmp_lg_u32 s{S_SAFE}, 0
    s_cbranch_scc1 L_nopre
    s_mul_i32 s30, s{S_HALF}, {G_HALF}
    s_mul_i32 s31, s{S_BUCK}, {NB*256}
    s_add_u32 s30, s30, s31
    s_add_u32 s30, s30, {4096*(5-OPT["pre"])}
    v_lshl_add_u32 v19, v0, 4, s30
    """)
    for i in range(OPT["pre"]):
        E("global_store_dwordx4 v19, v[48:51], s[20:21] sc1")
        if i + 1 < OPT["pre"]: E("v_add_u32 v19, 4096, v19")
    E("L_nopre:")
if OPT["pre"] and not OPT["prelate"]: preclear()
E(f"""
    {"" if OPT["oneb"] else "s_barrier"}
""")
if OPT["ewhen"] == 0: E(f"""
    global_load_dwordx4 v[12:15], v3, s[8:9]{NTE}
    global_load_dword v16, v18, s[8:9]{NTE}
    global_load_dwordx4 v[52:55], v10, s[6:7]{NTE}
    global_load_dwordx4 v[56:59], v10, s[6:7] offset:16{NTE}
    global_load_dwordx2 v[60:61], v11, s[6:7]{NTE}
""")
E("s_barrier                               ; B0b")
if OPT["ewhen"] == 7: E(f"""
    global_load_dwordx4 v[12:15], v3, s[8:9]{NTE}
    global_load_dword v16, v18, s[8:9]{NTE}
    global_load_dwordx4 v[52:55], v10, s[6:7]{NTE}
    global_load_dwordx4 v[56:59], v10, s[6:7] offset:16{NTE}
    global_load_dwordx2 v[60:61], v11, s[6:7]{NTE}
""")
if OPT["pre"] and OPT["prelate"]: preclear()
E(f"""
    s_branch L_sort
L_nosort:
    s_and_b32 s32, s3, 3                    ; tau
    s_lshr_b32 s33, s3, 3
    v_lshrrev_b32 v2, 4, v1                 ; g
    v_and_b32 v4, 15, v1
    s_lshl_b32 s30, s32, 2
    v_add_u32 v6, s30, v2                   ; row&15
    v_xor_b32 v7, v4, v6
    v_lshlrev_b32 v7, 4, v7
    v_lshl_add_u32 v7, v6, 8, v7
    s_mul_i32 s73, s{S_BUCK}, {NB*256}
    s_mul_i32 s31, s33, {3*4096}
    s_add_u32 s30, s73, s31
    v_add_u32 v7, s30, v7
    v_add_u32 v8, 0x1000, v7
    v_add_u32 v9, 0x2000, v7
    s_lshl_b32 s30, s32, 10
    s_add_u32 s31, s31, s30
    s_add_u32 m0, s31, {L_X}
    v_subrev_u32 v30, 256, v0               ; t = 0..511
    v_lshlrev_b32 v31, 4, v30
    v_mov_b32 v36, 0
    v_mov_b32 v37, 0
    v_mov_b32 v38, 0
    v_mov_b32 v39, 0
    v_add_u32 v40, {L_EA}, v31
    ds_write_b128 v40, v[36:39]
    ds_write_b128 v40, v[36:39] offset:8192
""")
if OPT["wpf"]:
    E(f"""
    s_lshr_b32 s30, s2, 3
    s_lshl_b32 s30, s30, 2
    v_add_u32 v3, s30, v1
    v_and_b32 v3, 127, v3
    s_lshl_b32 s30, s{S_HALF}, 7
    s_cmp_eq_u32 s3, 4
    s_cselect_b32 s31, 0x8000, 0
    s_add_u32 s30, s30, s31
    v_lshl_add_u32 v3, v3, 8, s30
    s_waitcnt lgkmcnt(0)
    s_cmp_lg_u32 s33, 0
    s_cbranch_scc1 L_nowpf
    s_cmp_eq_u32 s3, 5
    s_cselect_b32 s34, s14, s16
    s_cselect_b32 s35, s15, s17
    s_cmp_eq_u32 s3, 7
    s_cselect_b32 s34, s12, s34
    s_cselect_b32 s35, s13, s35
    s_mov_b64 exec, 0xffff
    global_load_dword v167, v3, s[34:35]
    s_mov_b64 exec, -1
L_nowpf:
    """)
    if OPT["wpf"] == 2:
        E(f"""
        s_cmp_lg_u32 s3, 8
        s_cbranch_scc1 L_notch
        s_mul_i32 s30, s{S_P}, {CHUNK*4}
        v_mov_b32 v3, s30
        v_lshlrev_b32 v5, 1, v3
        v_lshlrev_b32 v6, 21, v1
        s_mov_b64 exec, 1
        global_load_dword v167, v3, s[8:9]
        global_load_dword v166, v5, s[6:7]
        s_mov_b64 exec, 31
        global_load_dword v165, v6, s[20:21] sc1
        s_mov_b64 exec, 3
        global_load_dword v164, v6, s[18:19] sc1
        s_mov_b64 exec, -1
L_notch:
        """)
E(f"""
    s_waitcnt lgkmcnt(0)
    {"" if OPT["oneb"] else "s_barrier"}
""")
if not OPT["t0f"]: E(f"""
    global_load_lds_dwordx4 v7, s[4:5]{NTX}
    s_add_u32 m0, m0, 0x1000
    s_cmp_lg_u32 s33, 0
    global_load_lds_dwordx4 v8, s[4:5]{NTX}
    s_cbranch_scc1 L_x2
    s_add_u32 m0, m0, 0x1000
    s_nop 0
    global_load_lds_dwordx4 v9, s[4:5]{NTX}
L_x2:
    s_barrier
""")
else: E(f"""
    s_mov_b32 s29, m0
    s_cmp_lg_u32 s33, 0
    s_cbranch_scc1 L_x2
    global_load_lds_dwordx4 v7, s[4:5]
    s_add_u32 s29, s29, 0x1000
    v_mov_b32 v7, v8
    v_mov_b32 v8, v9
L_x2:
""")
E(f"""
    v_lshrrev_b32 v5, 3, v1
    v_and_b32 v3, 1, v2
    s_and_b32 s30, s3, 1
    s_lshl_b32 s30, s30, 1
    v_or_b32 v3, s30, v3                    ; sigma
    v_lshlrev_b32 v3, 1, v3
    v_and_b32 v20, 7, v1
    v_xor_b32 v3, v3, v20
    v_lshlrev_b32 v3, 4, v3
    v_lshl_add_u32 v10, v5, 8, v3
    s_sub_u32 s28, s3, 4
    s_lshl_b32 s30, s28, 11
    s_lshl_b32 s31, s{S_HALF}, 7
    s_add_u32 s30, s30, s31
    v_add_u32 v10, s30, v10
    v_add_u32 v11, 0x4000, v10
    s_lshl_b32 s28, s28, 10
    s_add_u32 s34, s16, {128*256}
    s_addc_u32 s35, s17, 0
    s_cmp_lg_u32 s3, 11
    s_cbranch_scc1 L_noc
    v_and_b32 v5, 3, v5
    v_lshlrev_b32 v20, 4, v20
    v_lshl_add_u32 v5, v5, 8, v20
    s_add_u32 s31, s31, {256*256}
    s_mov_b32 m0, {L_C}
    v_add_u32 v5, s31, v5
    global_load_lds_dwordx4 v5, s[16:17]
L_noc:
    s_add_u32 m0, s28, {L_WBV}
""")
for ti, base in enumerate((34, 14)):
    for n in range(2):
        E(f"s_nop 0\nglobal_load_lds_dwordx4 v{10+n}, s[{base}:{base+1}]")
        if not (ti == 1 and n == 1):
            E(f"s_add_u32 m0, m0, 0x2000")
def stage_au():
    E(f"""
    v_lshrrev_b32 v5, 3, v1
    v_bfe_u32 v3, v1, 4, 1
    v_lshlrev_b32 v3, 1, v3
    v_and_b32 v20, 7, v1
    v_xor_b32 v3, v3, v20
    v_lshlrev_b32 v3, 4, v3
    v_lshl_add_u32 v6, v5, 8, v3
    s_lshl_b32 s30, s{S_HALF}, 7
    s_and_b32 s31, s3, 1
    s_lshl_b32 s31, s31, 14
    s_add_u32 s30, s30, s31
    v_add_u32 v6, s30, v6
    v_xor_b32 v7, 64, v6
    v_add_u32 v8, 2048, v6
    v_add_u32 v9, 3072, v7
    v_add_u32 v7, 1024, v7
    s_lshl_b32 s30, s32, 13
    s_add_u32 m0, s30, {L_WAU}
    s_cmp_lt_u32 s32, 2
    s_cselect_b32 s34, s16, s12
    s_cselect_b32 s35, s17, s13
    global_load_lds_dwordx4 v6, s[34:35]
    global_load_lds_dwordx4 v7, s[34:35] offset:1024
    global_load_lds_dwordx4 v8, s[34:35] offset:2048
    global_load_lds_dwordx4 v9, s[34:35] offset:3072
    s_add_u32 m0, m0, 4096
    s_add_u32 s34, s34, 8192
    s_addc_u32 s35, s35, 0
    global_load_lds_dwordx4 v6, s[34:35]
    global_load_lds_dwordx4 v7, s[34:35] offset:1024
    global_load_lds_dwordx4 v8, s[34:35] offset:2048
    global_load_lds_dwordx4 v9, s[34:35] offset:3072
""")
if OPT["aue"] == 1:
    E("s_cmp_eq_u32 s33, 0\ns_cbranch_scc1 L_noau"); stage_au(); E("L_noau:")
if OPT["t0f"]:
    E(f"""
    s_mov_b32 m0, s29
    s_barrier                               ; B0b
    global_load_lds_dwordx4 v7, s[4:5]
    s_add_u32 m0, m0, 0x1000
    s_nop 0
    global_load_lds_dwordx4 v8, s[4:5]
    """)
if OPT["wgate"] or OPT["ewhen"] in (5, 6, 8, 9):
    E(f"""
    v_mov_b32 v7, 0x1000000
    s_mov_b64 exec, 1
    ds_add_u32 v36, v7 offset:{L_CTR}
    s_mov_b64 exec, -1
    """)
STAMP(1)
E(f"""
    v_mov_b32 v32, {NULL_SRC}
    v_mov_b32 v33, v32
    v_mov_b32 v34, v32
    v_mov_b32 v35, v32
""")
def cover(lo, n): return list(range(lo, n - 8192, 8192)) + [n - 8192]
for o in cover(16384, L_EAEND - L_EA): E(f"ds_write_b128 v40, v[36:39] offset:{o}")
for o in cover(0, SRCB): E(f"ds_write_b128 v31, v[32:35] offset:{L_SRC + o}")
E(f"""
    v_and_b32 v32, 3, v30           ; quarter
    v_bfe_u32 v33, v30, 3, 3
    v_lshrrev_b32 v34, 5, v30
    s_and_b32 s30, s3, 3
    s_add_u32 s30, s30, 16
    s_cmp_ge_u32 s3, 8
    s_cselect_b32 s31, 7, 3
    s_cselect_b32 s29, 0, 6
    s_cselect_b64 vcc, -1, 0
    v_and_b32 v33, s31, v33
    v_mov_b32 v35, s30
    v_cndmask_b32 v34, v34, v35, vcc
    v_lshl_add_u32 v32, v34, 2, v32
    v_bfe_u32 v34, v30, 2, 1
    v_mul_u32_u24 v35, {NSTR - SSTR}, v34
    v_mul_u32_u24 v41, {L_NODE - L_SRC}, v34
    v_mul_u32_u24 v42, {L_SRC + 80*SSTR - L_DUM}, v34
    v_lshlrev_b32 v43, 4, v34
    v_add_u32 v35, {SSTR}, v35
    v_add_u32 v41, {L_SRC}, v41
    v_sub_u32 v42, {L_SRC + 80*SSTR}, v42
    v_sub_u32 v43, 16, v43
    v_lshlrev_b32 v33, 2, v33
    v_mad_u32_u24 v41, v32, v35, v41
    v_mad_u32_u24 v41, v33, v43, v41
    v_lshlrev_b32 v35, 5, v35
    v_lshlrev_b32 v34, 3, v43
    v_sub_u32 v35, v35, v34
    v_cmp_gt_u32 s[48:49], 8, v33
    v_and_b32 v33, 7, v33
    v_add_u32 v34, 2, v33
    v_cmp_gt_u32 s[52:53], s29, v33
    v_cmp_gt_u32 s[54:55], s29, v34
    v_cndmask_b32 v44, v35, 0, s[48:49]
    v_cndmask_b32 v46, v35, 0, s[48:49]
    v_add_u32 v44, v41, v44
    v_lshl_add_u32 v46, v43, 1, v46
    v_add_u32 v46, v41, v46
    v_add_u32 v45, v44, v43
    v_add_u32 v47, v46, v43
    v_cndmask_b32 v44, v42, v44, s[52:53]
    v_cndmask_b32 v45, v42, v45, s[52:53]
    v_cndmask_b32 v46, v42, v46, s[54:55]
    v_cndmask_b32 v47, v42, v47, s[54:55]
    ds_write_b128 v31, v[44:47] offset:{L_LIST}
    s_cmp_ge_u32 s3, 6
    s_cbranch_scc1 L_pf3
    v_mul_u32_u24 v42, {SSTR}, v30
    v_add_u32 v42, {L_SRC}, v42
    v_lshlrev_b32 v41, 2, v30
    ds_write_b32 v41, v42 offset:{L_CNT}
L_pf3:
    v_bfe_u32 v3, v1, 2, 2                  ; r
    v_lshl_add_u32 v5, v2, 3, v3            ; 8g + r
    v_lshrrev_b32 v3, 1, v3
    v_and_b32 v6, 1, v2
    v_lshl_or_b32 v3, v6, 1, v3             ; sigma
    v_xor_b32 v3, s32, v3
    v_lshlrev_b32 v3, 5, v3
    v_lshl_add_u32 v10, v5, 7, v3
    v_and_b32 v3, 3, v1
    v_lshl_add_u32 v10, v3, 3, v10
    s_mul_i32 s31, s33, {L_WAU - L_WBV}
    s_add_u32 s31, s31, {L_WBV}
    v_add_u32 v10, s31, v10
    v_xor_b32 v3, v2, v4
    v_lshlrev_b32 v3, 4, v3
    v_lshl_add_u32 v12, v4, 8, v3
    v_add_u32 v12, {L_X}, v12
    v_xor_b32 v13, 64, v12
    v_xor_b32 v14, 0x80, v12
    v_xor_b32 v15, 0xc0, v12
    s_mul_i32 s30, s{S_HALF}, {G_HALF}
    s_add_u32 s30, s30, s73
    s_lshl_b32 s31, s32, 6
    s_add_u32 s30, s30, s31
    v_lshlrev_b32 v11, 10, v2
    v_lshl_add_u32 v11, v4, 2, v11
    v_add_u32 v11, s30, v11
    s_lshl_b32 s31, s32, 5
    s_add_u32 s31, s31, {L_NODE}
    v_mul_u32_u24 v16, {NSTR}, v4
    v_lshl_add_u32 v16, v2, 3, v16
    v_add_u32 v16, s31, v16
    s_mov_b32 s40, {f32(-LOG2E)}
    s_mov_b32 s42, {f32(2.0**32)}
    s_mov_b32 s44, 0x07060100
    s_mov_b32 s45, 0x07060302
    s_mov_b32 s46, 0x3f80
    v_mov_b32 v17, {f32(2.0**-100)}
    v_mov_b32 v19, 1
    v_mov_b32 v18, 0
""")
def staged():
    if not OPT["tagl"]: get_tag("g", 160)
    if OPT["aue"] == 2:
        E("s_cmp_eq_u32 s33, 0\ns_cbranch_scc1 L_noau"); stage_au(); E("L_noau:")
    if OPT["aue"]: E("s_waitcnt vmcnt(8)\ns_cmp_lg_u32 s33, 0\ns_cbranch_scc1 L_stg")
    E(f"""
    s_waitcnt vmcnt(0)
L_stg:
    s_mov_b64 exec, 1
    ds_add_u32 v18, v19 offset:{L_CTR}
    s_mov_b64 exec, -1
    """)
    STAMP(2)
    lds_wait(L_CTR, 0xff, 8, "g1", sleep=(OPT["sl"] >> 1) & 1)
if OPT["t0f"]:
    E(f"""
    s_waitcnt vmcnt(2)
    s_mov_b64 exec, 1
    ds_add_u32 v18, v19 offset:{L_AU}
    s_mov_b64 exec, -1
    s_or_b32 s30, s33, s{S_SAFE}
    s_cbranch_scc0 L_t0
    """)
staged()
STAMP(3)
NP = 8
RA = 72; RB = RA + 4*NP; RAD = RB + 4*NP
J3N, J12, J3N2, CELL, ROWA, FOUR, L0M, ACC, ENT, CAD = 156, 157, 158, 159, 160, 161, 162, 163, 164, 166
def rec_setup():
    E(f"""
    v_and_b32 v3, 15, v1                    ; j
    v_lshrrev_b32 v2, 4, v1
    v_lshl_add_u32 v{CELL}, v2, 3, v3
    s_lshl_b32 s30, s29, 5
    v_add_u32 v{CELL}, s30, v{CELL}
    s_lshl_b32 s30, s{S_BUCK}, 3
    s_add_u32 s30, s30, {WS_ROW}
    v_lshl_add_u32 v{ROWA}, v{CELL}, 10, s30
    v_cmp_gt_u32 s[66:67], {NP}, v3
    v_cmp_gt_u32 vcc, {NCHUNK}, v{CELL}
    v_mov_b32 v{ENT}, 0
    s_and_b64 s[66:67], s[66:67], vcc
    s_mov_b64 exec, s[66:67]
    global_load_dwordx2 v[{ENT}:{ENT+1}], v{ROWA}, s[20:21] sc1
    s_mov_b64 exec, -1
    v_mul_u32_u24 v{CELL}, {SORTB//4}, v{CELL}
    v_add_u32 v{CELL}, {WS_REC//4}, v{CELL}
    v_mul_u32_u24 v{J12}, 12, v3
    v_mul_u32_u24 v{J3N}, 3, v3
    v_not_b32 v{J3N}, v{J3N}
    v_subrev_u32 v{J3N2}, 48, v{J3N}
    v_subrev_u32 v{L0M}, 1, v3
    v_ashrrev_i32 v{L0M}, 31, v{L0M}            ; all ones in the first lane of each row
    v_mov_b32 v{FOUR}, 4
    """)
WF = 20; XF = 52; AC = 132
def wreads(ks):
    for t in range(2):
        for rd in range(2):
            r = WF + 16*t + 4*ks + 2*rd
            E(f"ds_read_b64_tr_b16 v[{r}:{r+1}], v10 offset:{t*16384 + ks*4096 + rd*512}")
def xread(rt, ks):
    r = XF + 16*rt + 4*ks
    return f"ds_read_b128 v[{r}:{r+3}], v{12+ks} offset:{rt*4096}"
def mf(rt, ks, transposed):
    for t in range(2):
        a = XF + 16*rt + 4*ks; w = WF + 16*t + 4*ks; d = AC + 8*(rt % 3) + 4*t
        c = "0" if ks == 0 else f"v[{d}:{d+3}]"
        if transposed: a, w = w, a
        E(f"v_mfma_f32_16x16x32_bf16 v[{d}:{d+3}], v[{a}:{a+3}], v[{w}:{w+3}], {c}")
def gemm(transposed, finish, before_first):
    for ks in range(3):
        E(xread(0, ks)); wreads(ks)
    E("s_waitcnt lgkmcnt(10)"); mf(0, 0, transposed)
    E(xread(0, 3)); wreads(3)
    E("s_waitcnt lgkmcnt(10)"); mf(0, 1, transposed)
    for ks in range(4): E(xread(1, ks))
    E("s_waitcnt lgkmcnt(9)"); mf(0, 2, transposed)
    for ks in range(4): E(xread(2, ks))
    E("s_waitcnt lgkmcnt(8)"); mf(0, 3, transposed)
    for ks in range(4): E(xread(3, ks))
    if OPT["p0e"]:
        E("s_nop 3"); finish(0)
    E("s_waitcnt lgkmcnt(8)")
    for ks in range(4):
        mf(1, ks, transposed); E(xread(4, ks))
    E(f"""
    s_mov_b64 exec, 1
    ds_add_u32 v18, v19 offset:{L_RD}
    s_mov_b64 exec, -1
    """)
    before_first()
    if not OPT["p0e"]: finish(0)
    E("s_waitcnt lgkmcnt(0)")
    for rt in range(2, 5):
        for ks in range(4): mf(rt, ks, transposed)
        finish(rt-1)
    finish(4)
def pack(rt):
    b = AC + 8*(rt % 3); h = b + 4
    for r in range(4): E(f"v_mul_f32 v{b+r}, s40, v{b+r}")
    for r in range(4): E(f"v_fma_f32 v{h+r}, v{h+r}, s42, v17")
    E(f"""
    v_cvt_pk_bf16_f32 v4, v{b}, v{b+1}
    v_cvt_pk_bf16_f32 v5, v{b+2}, v{b+3}
    v_xor_b32 v2, 0x80008000, v4
    v_xor_b32 v3, 0x80008000, v5
    v_sub_u32_sdwa v{h}, v{h}, sext(v2) dst_sel:DWORD dst_unused:UNUSED_PAD src0_sel:DWORD src1_sel:WORD_0
    v_sub_u32_sdwa v{h+1}, v{h+1}, sext(v2) dst_sel:DWORD dst_unused:UNUSED_PAD src0_sel:DWORD src1_sel:WORD_1
    v_sub_u32_sdwa v{h+2}, v{h+2}, sext(v3) dst_sel:DWORD dst_unused:UNUSED_PAD src0_sel:DWORD src1_sel:WORD_0
    v_sub_u32_sdwa v{h+3}, v{h+3}, sext(v3) dst_sel:DWORD dst_unused:UNUSED_PAD src0_sel:DWORD src1_sel:WORD_1
    """)
    w = (OPT["gp"] >> (4*(4-rt))) & 15 if OPT["gp"] else OPT["gpace"]
    if 0 <= w < 4*rt: E(f"s_waitcnt vmcnt({w})")
    if OPT["pre"] and rt == 5 - OPT["pre"]: lds_wait(L_SCNT + 126*4, 0xff, 4, "pre")
    if rt + 1 in (OPT["eah"], OPT["rih"]): lds_wait(L_EAOK, 0xff, 4, "eah")
    if OPT["ghold"] == rt + 1:
        E("v_mov_b32 v6, v2\nv_mov_b32 v7, v3"); lds_wait(L_CTR, 0xff00, 0x400, "gh", sleep=1); E("v_mov_b32 v2, v6\nv_mov_b32 v3, v7")
    for r in range(4):
        E(f"v_perm_b32 v{h+r}, v{h+r}, v{4 + (r>>1)}, s{44 + (r&1)}")
        if OPT["gwin"] >= 0: E(f"s_waitcnt vmcnt({OPT['gwin']})")
        E(f"global_store_dword v11, v{h+r}, s[20:21] offset:{256*r} sc1")
    if rt < 4: E("v_add_u32 v11, 0x1000, v11")
def fin(rt):
    a = AC + 8*(rt % 3); u = a + 4
    for r in range(4): E(f"v_mul_f32 v{a+r}, s40, v{a+r}")
    for r in range(4): E(f"v_mul_f32 v{u+r}, s42, v{u+r}")
    E(f"""
    v_cvt_pk_bf16_f32 v{a}, v{a}, v{a+1}
    v_cvt_pk_bf16_f32 v{a+1}, v{a+2}, v{a+3}
    v_cvt_f64_f32 v[2:3], v{u}
    v_cvt_f64_f32 v[4:5], v{u+1}
    v_cvt_f64_f32 v[6:7], v{u+2}
    v_cvt_f64_f32 v[8:9], v{u+3}
    ds_write_b64 v16, v[{a}:{a+1}] offset:512
    ds_write2_b64 v16, v[2:3], v[4:5] offset0:0 offset1:16
    ds_write2_b64 v16, v[6:7], v[8:9] offset0:32 offset1:48
    """)
    if rt < 4: E(f"v_add_u32 v16, {16*NSTR}, v16")
E(f"""
    s_cmp_lg_u32 s33, 0
    s_cbranch_scc1 L_gemm2
    s_cmp_lg_u32 s{S_SAFE}, 0
    s_cbranch_scc1 L_nog1
    s_setprio 2
""")
if OPT["t0f"]:
    E("L_t0:\ns_setprio 2")
    lds_wait(L_AU, 0xff, 8, "t0")
    STAMP(3)
    for ks in range(3):
        E(xread(0, ks)); wreads(ks)
    E("s_waitcnt lgkmcnt(10)"); mf(0, 0, False)
    E(xread(0, 3)); wreads(3)
    for ks in range(1, 4):
        E(f"s_waitcnt lgkmcnt({15 - 5*ks})"); mf(0, ks, False)
    E("s_nop 7"); pack(0)
    get_tag("t", 160)
    E(f"""
    s_waitcnt vmcnt(4)
    s_mov_b64 exec, 1
    ds_add_u32 v18, v19 offset:{L_CTR}
    s_mov_b64 exec, -1
    """)
    lds_wait(L_CTR, 0xff, 8, "t1")
    for rt in range(1, 4):
        for ks in range(4): E(xread(rt, ks))
    E("s_waitcnt lgkmcnt(8)")
    for ks in range(4):
        mf(1, ks, False); E(xread(4, ks))
    E(f"""
    s_mov_b64 exec, 1
    ds_add_u32 v18, v19 offset:{L_RD}
    s_mov_b64 exec, -1
    s_nop 3
    """)
    pack(1)
    E("s_waitcnt lgkmcnt(0)")
    for ks in range(4): mf(2, ks, False)
    for rt in range(3, 5):
        for ks in range(4): mf(rt, ks, False)
        pack(rt-1)
    pack(4)
else: gemm(False, pack, lambda: lds_wait(L_CTR, {1: 0x80000, 2: 0xc0000}[OPT["hold"]], 0, "hold", sleep=1, ne=True) if OPT["hold"] else None)
E("s_setprio 0")
if OPT["gate"] or OPT["gate2"] >= 3:
    E(f"""
    s_mov_b64 exec, 1
    ds_add_u32 v18, v19 offset:{L_GST}
    s_mov_b64 exec, -1
    """)
STAMP(4)
if OPT["tagl"]: get_tag("g", 160)
main_consts()
E(f"""
    s_lshl_b32 s30, s{S_P}, 7
    s_add_u32 s30, s30, {WS_FL2}
    v_mov_b32 v60, s30
    v_mov_b32 v62, s{S_TAG}
    v_mov_b32 v63, s{S_TAG+1}
    v_mov_b32 v2, 0
    v_mov_b32 v3, 1
    s_lshl_b32 s30, s32, 13
    s_lshl_b32 s31, s{S_HALF}, 7
    s_add_u32 s30, s30, s31
    s_add_u32 s30, s30, {WS_FL2}
    v_lshl_add_u32 v64, v1, 8, s30
    s_mul_i32 s30, s32, {2560*256}
    s_lshr_b32 s31, s2, 3
    s_mul_i32 s31, s31, {160*128}
    s_add_u32 s30, s30, s31
    v_lshl_add_u32 v65, v1, 7, s30
    {'' if OPT['gpe'] else 'v_min_u32 v65, %d, v65' % (G_HALF - 128)}
    s_mul_i32 s30, s{S_HALF}, {G_HALF}
    v_add_u32 v65, s30, v65
    s_mov_b64 exec, 1
    s_waitcnt vmcnt(0)
    ds_add_rtn_u32 v61, v2, v3 offset:{L_DONE2}
    s_waitcnt lgkmcnt(0)
    v_readfirstlane_b32 s30, v61
    s_cmp_lg_u32 s30, 3
    s_cbranch_scc1 L_nofl
    global_store_dwordx2 v60, v[62:63], s[20:21] sc1
    ds_add_u32 v2, v3 offset:{L_DONE2}
L_nofl:
""")
STAMP(5)
if OPT["p2gate"]:
    E("s_mov_b64 exec, -1")
    lds_wait(L_CTR, 0xff0000, 0x080000, "pg", sleep=OPT["pgs"])
    E("s_mov_b32 exec_hi, 0")
if OPT["p2wait"]: E(f"s_sleep {OPT['p2wait']}")
STAMP(6)
def gready(lab):
    if OPT["gpe"]: E(f"s_cmp_lg_u32 s73, 0\ns_cbranch_scc1 L_gr{lab}")
    if OPT["gpf"]:
        E(f"""
        {"s_bfm_b64 exec, %d, 0" % OPT["gpf"] if OPT["gpf"] < 64 else "s_mov_b64 exec, -1"}
        global_load_dword v35, v65, s[20:21] sc1
        """)
    E(f"""
L_gr{lab}:
    s_mov_b64 exec, 1
    v_mov_b32 v2, 0
    v_mov_b32 v3, 1
    ds_add_u32 v2, v3 offset:{L_GOK}
    """)
E(f"""
; each of the four waves checks the flags of 32 producers of this half: once now, again after the barrier if needed
    s_cmp_eq_u32 s32, 3
    s_cselect_b32 exec_lo, 0x1fffffff, -1
    {"" if OPT["p1st"] else "s_mov_b64 s[66:67], exec"}
    {"" if OPT["p1st"] else "s_branch L_p2n"}
    global_load_dwordx2 v[66:67], v64, s[20:21] sc1
    s_waitcnt vmcnt(0)
    v_cmp_ne_u64 s[66:67], s[{S_TAG}:{S_TAG+1}], v[66:67]
""")
if OPT["gpe"]:
    n = OPT["gpe"]
    E(f"""
    s_mov_b32 s73, 0
    s_lshr_b32 s30, s2, 3
    s_bitcmp1_b32 s66, s30
    s_cbranch_scc1 L_nogpe
    s_mov_b32 s73, 1
    s_bitcmp1_b32 exec_lo, s30
    s_cbranch_scc0 L_nogpe
    """)
    for k in range(0, n, 64):
        E("s_mov_b64 exec, -1")
        if k: E(f"v_add_u32 v65, 8192, v65")
        if n - k < 64: E(f"s_bfm_b64 exec, {n-k}, 0")
        E(f"global_load_dword v{(35, 68, 69)[k//64]}, v65, s[20:21] sc1")
    E("L_nogpe:")
E(f"""
    s_cmp_lg_u64 s[66:67], 0
    s_cbranch_scc1 L_p2n
""")
gready("a")
E("L_p2n:\ns_mov_b64 exec, -1")
STAMP(7)
E(f"""
    s_branch L_b4
L_nog1:
    s_mov_b64 exec, 1
    ds_add_u32 v18, v19 offset:{L_RD}
    s_mov_b64 exec, -1
    s_branch L_rec
L_gemm2:
""")
if not OPT['aul'] and not OPT['aue']: stage_au()
for rt in range(5):
    for ks in range(4): E(xread(rt, ks))
E(f"""
    s_mov_b64 exec, 1
    ds_add_u32 v18, v19 offset:{L_RD}
    s_mov_b64 exec, -1
""")
if OPT['aul']:
    lds_wait(L_RD, 8, 8, "aul"); stage_au()
E(f"""
    s_mov_b64 exec, 1
    s_waitcnt vmcnt(0)
    ds_add_u32 v18, v19 offset:{L_RD}
    s_mov_b64 exec, -1
    s_sub_u32 s29, s3, 4
""")
rec_setup()
lds_wait(L_RD, 0xff, 12, "rd", sleep=(OPT["sl"] >> 2) & 1)
for ks in range(4): wreads(ks)
for ks in range(4):
    E(f"s_waitcnt lgkmcnt({12 - 4*ks})"); mf(0, ks, True)
for rt in range(1, 5):
    for ks in range(4): mf(rt, ks, True)
    fin(rt-1)
fin(4)
if OPT["tagl"]: get_tag("h", 144)
STAMP(4)
E(f"""
    s_branch L_rec
L_sort:
""")
STAMP(1)
E(f"""
    s_mov_b32 s40, {f32(-LOG2E)}
    s_mov_b32 s46, 0x3f80
    s_cmp_lg_u32 s{S_SAFE}, 0
    s_cbranch_scc1 L_sortskip
    v_mov_b32 v21, 1
    v_mov_b32 v20, 3
    s_mov_b32 s31, 52429
    s_movk_i32 s32, -20
    v_lshlrev_b32 v9, 3, v1
    v_lshlrev_b32 v33, 4, v0
    s_mul_i32 s30, s{S_P}, {SORTB}
    s_add_u32 s30, s30, {WS_REC + 4096}
    v_add_u32 v32, s30, v33                 ; copy-out global offset
    v_add_u32 v34, 8192, v32
    s_lshl_b32 s30, s{S_P}, 10
    s_add_u32 s30, s30, {WS_ROW}
    v_lshl_add_u32 v42, v1, 4, s30
    s_mov_b32 s34, {LDS_MAX}
    s_setprio 3
""")
E6 = OPT["ewhen"] in (0, 6, 7)
if OPT["ewhen"] == 6:
    E("v_mov_b32 v19, v3")
    lds_wait(L_CTR, 0xff000000, 0x08000000, "ew")
    E("v_mov_b32 v3, v19\ns_mov_b32 s31, 52429")
    E(f"""
    global_load_dwordx4 v[12:15], v3, s[8:9]{NTE}
    global_load_dword v16, v18, s[8:9]{NTE}
    global_load_dwordx4 v[52:55], v10, s[6:7]{NTE}
    global_load_dwordx4 v[56:59], v10, s[6:7] offset:16{NTE}
    global_load_dwordx2 v[60:61], v11, s[6:7]{NTE}
""")
E(f"""
    s_waitcnt vmcnt({(0 if STG else 1) + OPT['pre'] + 5*E6})
""")
STAMP(2)
FSTAMP(1)
for i in range(5):
    E(f"""
    v_mul_u32_u24 v{22+i}, s31, v{4+i}
    v_lshrrev_b32 v{22+i}, 22, v{22+i}
    v_lshlrev_b32 v{22+i}, 2, v{22+i}        ; bucket*4
    ds_add_rtn_u32 v{27+i}, v{22+i}, v20 offset:{L_SCNT}
    """)
E(f"""
    s_mov_b64 exec, 1
    s_cmp_lg_u32 s3, 0
    s_cbranch_scc1 L_notag
    {"s_waitcnt lgkmcnt(0)" if STG else "s_waitcnt vmcnt(%d)" % (OPT['pre'] + 5*E6)}
    {"v_mov_b32 v43, s65" if STG else ""}
""")
if OPT["probe"] == 12: STAMP(12)
E(f"""
    ds_write_b32 v48, v43 offset:{L_SCNT + 125*4}
L_notag:
    ds_add_u32 v48, v21 offset:{L_SCNT + 127*4}  ; arrival count of the four waves (LDS runs a wave's ops in order)
    s_mov_b64 exec, -1
""")
if OPT["ewhen"] == 1: E(f"""
    global_load_dwordx4 v[12:15], v3, s[8:9]{NTE}
    global_load_dword v16, v18, s[8:9]{NTE}
    global_load_dwordx4 v[52:55], v10, s[6:7]{NTE}
    global_load_dwordx4 v[56:59], v10, s[6:7] offset:16{NTE}
    global_load_dwordx2 v[60:61], v11, s[6:7]{NTE}
""")
E(f"""
    {"s_mov_b32 s65, 0" if OPT["ewhen"] == 8 else ""}
L_s1:
    ds_read_b32 v38, v48 offset:{L_SCNT + 127*4}
    {f"ds_read_b32 v39, v48 offset:{L_CTR}" if OPT["ewhen"] == 8 else ""}
    ds_read_b64 v[36:37], v9 offset:{L_SCNT}
    s_sub_u32 s34, s34, 1
    s_cbranch_scc1 L_s1d
    s_waitcnt lgkmcnt(0)
""")
if OPT["ewhen"] == 8: E(f"""
    v_readfirstlane_b32 s30, v39
    s_lshr_b32 s30, s30, 27
    s_cmp_le_u32 s30, s65
    s_cbranch_scc1 L_e8a
    s_mov_b32 s65, 1
    global_load_dwordx4 v[12:15], v3, s[8:9]{NTE}
    global_load_dword v16, v18, s[8:9]{NTE}
    global_load_dwordx4 v[52:55], v10, s[6:7]{NTE}
    global_load_dwordx4 v[56:59], v10, s[6:7] offset:16{NTE}
    global_load_dwordx2 v[60:61], v11, s[6:7]{NTE}
L_e8a:
""")
E(f"""
    v_readfirstlane_b32 s30, v38
    s_cmp_lg_u32 s30, 4
    s_cbranch_scc1 L_s1
L_s1d:
""")
FSTAMP(2)
E(f"""
    v_add3_u32 v39, v36, v37, 2
    v_add3_u32 v38, v36, v37, 2
    v_readlane_b32 s{S_TAGRAW}, v37, 62
""")
fill = []
for i in range(5):
    fill += [f"v_mad_i32_i24 v{4+i}, v{22+i}, s32, v{4+i}", f"v_lshlrev_b32 v{4+i}, 24, v{4+i}"]
for k, m in enumerate(SCAN):
    E(f"v_add_u32_dpp v39, v39, v39 {m}")
    for x in fill[2*k:2*k+2]: E(x)
E(f"""
    v_sub_u32 v40, v39, v38
    v_add3_u32 v41, v40, v36, 1
    s_mov_b32 s30, {L_SORT}
    v_lshl_add_u32 v38, v40, 2, s30
    v_lshl_add_u32 v39, v41, 2, s30
    ds_write_b64 v9, v[38:39] offset:{L_SOFF}
""")
for i in range(5):
    E(f"ds_read_b32 v{22+i}, v{22+i} offset:{L_SOFF}")
finish_tag()
if OPT["ewhen"] in (9, 10):
    if OPT["ewhen"] == 9:
        E("v_mov_b32 v19, v3"); lds_wait(L_CTR, 0xff000000, 0x08000000, "ew"); E("v_mov_b32 v3, v19")
    E(f"""
    global_load_dwordx4 v[12:15], v3, s[8:9]{NTE}
    global_load_dword v16, v18, s[8:9]{NTE}
    global_load_dwordx4 v[52:55], v10, s[6:7]{NTE}
    global_load_dwordx4 v[56:59], v10, s[6:7] offset:16{NTE}
    global_load_dwordx2 v[60:61], v11, s[6:7]{NTE}
""")
E(f"""
    s_cmp_lg_u32 s3, 0
    s_cbranch_scc1 L_nopub
    s_and_b32 s35, s{S_TAG+1}, 0xff000000
    v_mov_b32 v45, s{S_TAG}
    v_mov_b32 v47, s{S_TAG}
    v_lshl_or_b32 v44, v36, 12, v40
    v_lshl_or_b32 v46, v37, 12, v41
    v_or_b32 v44, s35, v44
    v_or_b32 v46, s35, v46
    global_store_dwordx4 v42, v[44:47], s[20:21] sc1
    {"s_waitcnt vmcnt(1)" if OPT["ewhen"] in (0, 1, 6, 7, 9, 10) else ""}
    s_branch {"L_pub" if OPT["ewhen"] in (0, 1, 6, 7, 9, 10) else "L_nochk"}
L_nopub:
    s_cmp_lg_u32 s3, 1
    s_cbranch_scc1 L_nochk
    v_mov_b32 v44, s{S_TAG+1}
    s_mov_b32 exec_hi, 0x7fffffff
    ds_add_u32 v38, v44
    ds_add_u32 v39, v44
    s_mov_b32 exec_hi, -1
L_nochk:
""")
if OPT["ewhen"] == 8:
    E("s_cmp_lg_u32 s65, 0\ns_cbranch_scc1 L_e8b\nv_mov_b32 v19, v3")
    lds_wait(L_CTR, 0xff000000, 0x08000000, "ew")
    E(f"""
    v_mov_b32 v3, v19
    global_load_dwordx4 v[12:15], v3, s[8:9]{NTE}
    global_load_dword v16, v18, s[8:9]{NTE}
    global_load_dwordx4 v[52:55], v10, s[6:7]{NTE}
    global_load_dwordx4 v[56:59], v10, s[6:7] offset:16{NTE}
    global_load_dwordx2 v[60:61], v11, s[6:7]{NTE}
L_e8b:
""")
if 3 <= OPT["ewhen"] <= 5:
    E("v_mov_b32 v19, v3")
    if OPT["ewhen"] == 3: lds_wait(L_CTR, 0xff, 8, "ew")
    elif OPT["ewhen"] == 5: lds_wait(L_CTR, 0xff000000, 0x08000000, "ew")
    else: lds_wait(L_CTR, 0xff, 0, "ew", ne=True)
    E("v_mov_b32 v3, v19")
if 2 <= OPT["ewhen"] <= 5: E(f"""
    global_load_dwordx4 v[12:15], v3, s[8:9]{NTE}
    global_load_dword v16, v18, s[8:9]{NTE}
    global_load_dwordx4 v[52:55], v10, s[6:7]{NTE}
    global_load_dwordx4 v[56:59], v10, s[6:7] offset:16{NTE}
    global_load_dwordx2 v[60:61], v11, s[6:7]{NTE}
""")
E(f"""
    s_waitcnt vmcnt(0)
L_pub:
""")
if OPT["eah"]:
    E(f"""
    s_mov_b64 exec, 1
    ds_add_u32 v48, v21 offset:{L_EAOK}
    s_mov_b64 exec, -1
    """)
STAMP(4)
FSTAMP(3)
for i in range(5): E(f"v_lshl_or_b32 v{4+i}, v{12+i}, 8, v{4+i}")
E("s_waitcnt lgkmcnt(0)")
for i in range(5):
    E(f"""
    v_lshl_add_u32 v{27+i}, v{27+i}, 2, v{22+i}
    v_add3_u32 v{12+i}, v{52+2*i}, v{53+2*i}, v{4+i}
    ds_write2_b32 v{27+i}, v{52+2*i}, v{53+2*i} offset0:2 offset1:3
    ds_write_b32 v{27+i}, v{4+i} offset:4
    ds_sub_u32 v{22+i}, v{12+i}
    """)
E(f"""
    s_mov_b64 exec, 1
    ds_add_u32 v48, v21 offset:{L_SCNT + 126*4}
    s_mov_b64 exec, -1
""")
FSTAMP(4)
E(f"""
    s_mov_b32 s34, {LDS_MAX}
L_s2:
    ds_read_b32 v38, v48 offset:{L_SCNT + 126*4}
    {f"ds_read_b32 v39, v48 offset:{L_CTR}" if OPT["wgate"] else ""}
    ds_read_b128 v[72:75], v33 offset:{L_SORT}
    s_sub_u32 s34, s34, 1
    s_cbranch_scc1 L_s2d
    s_waitcnt lgkmcnt(1)
    v_readfirstlane_b32 s30, v38
""")
if OPT["wgate"]:
    E(f"""
    v_readfirstlane_b32 s31, v39
    s_lshr_b32 s31, s31, 24
    s_add_u32 s30, s30, s31
    """)
E(f"""
    s_cmp_lg_u32 s30, {12 if OPT["wgate"] else 4}
    s_cbranch_scc1 L_s2
L_s2d:
""")
FSTAMP(5)
E(f"""
    ds_read_b128 v[76:79], v33 offset:{L_SORT + 4096}
    ds_read_b128 v[80:83], v33 offset:{L_SORT + 8192}
    ds_read_b128 v[84:87], v33 offset:{L_SORT + 12288}
    s_waitcnt lgkmcnt(3)
    global_store_dwordx4 v32, v[72:75], s[20:21] offset:-4096 sc1
    s_waitcnt lgkmcnt(2)
    global_store_dwordx4 v32, v[76:79], s[20:21] sc1
    s_waitcnt lgkmcnt(1){f" vmcnt({OPT['rpace']})" if OPT['rpace'] >= 0 else ""}
    global_store_dwordx4 v34, v[80:83], s[20:21] offset:-4096 sc1
    s_cmp_eq_u32 s3, 3
    s_cselect_b32 exec_hi, 0, -1
    s_waitcnt lgkmcnt(0){f" vmcnt({OPT['rpace']})" if OPT['rpace'] >= 0 else ""}
    global_store_dwordx4 v34, v[84:87], s[20:21] sc1
    s_mov_b32 exec_hi, -1
""")
if OPT["rih"]:
    E(f"""
    s_mov_b64 exec, 1
    ds_add_u32 v48, v21 offset:{L_EAOK}
    s_mov_b64 exec, -1
    """)
FSTAMP(6)
for k in range(4): E(f"ds_write_b128 v33, v[48:51] offset:{L_SORT + 4096*k}")
STAMP(3)
FSTAMP(7)
E(f"""
    s_branch L_sortdone
L_sortskip:
    s_waitcnt vmcnt(0)
L_sortdone:
    s_mov_b32 s29, s3
""")
rec_setup()
E(f"""
L_rec:
""")
if OPT["mcl"]: E(f"s_cmp_ge_u32 s3, 8\ns_cbranch_scc1 L_nomc")
lds_wait(L_CTR, 0xff, 8, "r0")
if OPT["mcl"] != 2: main_consts()
E("L_nomc:")
STAMP(5)
E(f"""
    s_cmp_ge_u32 s3, 4
    s_cbranch_scc1 L_nod2
    v_mov_b32 v2, 0
    v_mov_b32 v3, 0x100
    s_mov_b64 exec, 1
    s_waitcnt vmcnt(0)
    ds_add_u32 v2, v3 offset:{L_CTR}
    s_mov_b64 exec, -1
L_nod2:
    s_cmp_lg_u32 s{S_SAFE}, 0
    s_cbranch_scc1 L_recskip
    s_lshr_b32 s35, s{S_TAG+1}, 24
    s_mov_b64 exec, s[66:67]
    s_mov_b32 s34, {POLL_MAX}
    s_branch L_p1c
L_p1:
    global_load_dwordx2 v[{ENT}:{ENT+1}], v{ROWA}, s[20:21] sc1
L_p1c:
    s_sub_u32 s34, s34, 1
    s_cbranch_scc1 L_toobig
    s_waitcnt vmcnt(0)
    v_cmp_ne_u32 vcc, s{S_TAG}, v{ENT+1}
    v_cmp_ne_u32_sdwa s[48:49], v{ENT}, s35 src0_sel:BYTE_3 src1_sel:DWORD
    s_or_b64 exec, vcc, s[48:49]
    s_cbranch_scc1 L_p1
    s_mov_b64 exec, -1
""")
STAMP(6)
if OPT["cnt"]: E(f"s_sub_u32 s{ST0+2}, {POLL_MAX+1}, s34\ns_mov_b32 s34, {POLL_MAX}")
E(f"""
    v_and_b32 v{CAD}, 0xfff, v{ENT}
    v_bfe_u32 v{ENT}, v{ENT}, 12, 12            ; 3*count
    v_add_lshl_u32 v{CAD}, v{CAD}, v{CELL}, 2
    v_cmp_ne_u32 vcc, 0, v{ENT}
    s_sub_u32 s30, 0, s{S_TAG+1}
    v_mov_b32 v2, s30
    v_cndmask_b32 v{ENT+1}, 0, v2, vcc
    v_cmp_lt_u32 vcc, 96, v{ENT}
    v_cmp_lt_u32 s[68:69], 48, v{ENT}
    s_cbranch_vccnz L_toobig
""")
for p in range(NP):
    E(f"""
    v_add_co_u32_dpp v2, vcc, v{ENT}, v{J3N} row_newbcast:{p} row_mask:0xf bank_mask:0xf
    v_add_u32_dpp v{RAD+p}, v{CAD}, v{J12} row_newbcast:{p} row_mask:0xf bank_mask:0xf
    s_mov_b64 s[{48+2*p}:{49+2*p}], vcc
    """)
lds_wait(L_CTR, 0xff00, 0x400, "r1", sleep=(OPT["sl"] >> 2) & 1)
if OPT["gate"]: lds_wait(L_GST, 0xff, 4, "gt")
if OPT["gate2"] == 1 and not OPT["split"]:
    if not OPT["allg"]: E("s_cmp_lt_u32 s3, 4\ns_cbranch_scc1 L_wd_g2")
    lds_wait(L_DONE2, 0xff, 5, "g2")
if OPT["gate2"] == 3:
    E("s_cmp_lt_u32 s3, 4\ns_cbranch_scc1 L_wd_g2")
    lds_wait(L_GST, 0xff, 4, "g2")
if OPT["gate2"] in (2, 4):
    E(f"""
    s_cmp_lt_u32 s3, 4
    s_cbranch_scc1 L_g2d
    s_mov_b32 s31, {POLL_MAX}
L_g2:
    ds_read_b128 v[60:63], v2 offset:{L_CTR}
    {f"ds_read_b32 v61, v2 offset:{L_GST}" if OPT["gate2"] == 4 else ""}
    s_sub_u32 s31, s31, 1
    s_cbranch_scc1 L_g2d
    s_waitcnt lgkmcnt(0)
    v_readfirstlane_b32 s30, v62
    v_readfirstlane_b32 s28, v60
    v_readfirstlane_b32 s29, v61
    s_cmp_eq_u32 s30, 5
    s_cbranch_scc1 L_g2d
    {"s_cmp_lg_u32 s29, 4" if OPT["gate2"] == 4 else ""}
    {"s_cbranch_scc1 L_g2" if OPT["gate2"] == 4 else ""}
    s_and_b32 s28, s28, 0xc0000
    s_cbranch_scc0 L_g2
L_g2d:
    """)
E(f"""
    s_or_b32 s68, s68, s69
    s_lshr_b32 s69, s68, 16
    s_or_b32 s68, s68, s69
""")
def mask2(p): return f"v_add_co_u32_dpp v2, vcc, v{ENT}, v{J3N2} row_newbcast:{p} row_mask:0xf bank_mask:0xf"
def loads(ps, lab):
    E(f"s_and_b32 s30, s68, {sum(1 << p for p in ps)}\ns_cbranch_scc0 L_nx{lab}")
    for p in ps:
        r = RB + 4*p
        E(f"""
        s_bitcmp1_b32 s68, {p}
        s_cbranch_scc0 L_nx{lab}{p}
        {mask2(p)}
        s_mov_b64 exec, vcc
        global_load_dwordx4 v[{r}:{r+3}], v{RAD+p}, s[20:21] offset:192 sc1
        s_mov_b64 exec, -1
L_nx{lab}{p}:
        """)
    E(f"L_nx{lab}:")
    for p in ps:
        r = RA + 4*p
        E(f"""
        s_mov_b64 exec, s[{48+2*p}:{49+2*p}]
        global_load_dwordx4 v[{r}:{r+3}], v{RAD+p}, s[20:21]{SC1 if (OPT["rsc1"] or lab != "m") else ""}
        """)
    E("s_mov_b64 exec, -1")
SP = OPT["split"]
GROUPS = {0: ((0,1,2,3),(4,5),(6,7)), 4: ((0,1,2,3),(4,5),(6,7)), 5: ((0,1,2),(3,4),(5,6,7)), 6: ((0,1,2,3),(4,5),(6,7)), 3: ((0,1,2),(3,4,5),(6,7)), 2: ((0,1),(2,3,4,5),(6,7)), 1: ((0,),(1,2,3,4),(5,6,7))}[SP]
if OPT['grp'] == 1: GROUPS = ((0,1),(2,3,4),(5,6,7))
if OPT['grp'] == 2: GROUPS = ((0,1),(2,3),(4,5),(6,7))
if OPT['grp'] == 3: GROUPS = (tuple(range(SP)), tuple(range(SP, NP)))
if OPT['grp'] == 4: GROUPS = ((0,1,2),(3,4,5,6),(7,))
loads(range(SP or NP), "m")
if OPT["eag"]:
    E(f"""
    v_mov_b32 v2, 0
    ds_read_b32 v3, v2 offset:{L_DONE2}
    s_waitcnt lgkmcnt(0)
    v_readfirstlane_b32 s73, v3
    s_cmp_lg_u32 s73, 5
    s_cbranch_scc1 L_neag
    """)
    loads(range(SP, NP), "e")
    E("L_neag:")
def issued():
    if OPT["p2gate"]:
        E(f"""
        v_mov_b32 v2, 0
        v_mov_b32 v3, 0x10000
        s_mov_b64 exec, 1
        ds_add_u32 v2, v3 offset:{L_CTR}
        s_mov_b64 exec, -1
        """)
if OPT["mcl"]:
    if OPT["mcl"] == 1: E(f"s_cmp_lt_u32 s3, 8\ns_cbranch_scc1 L_nomc2")
    main_consts(28); E("L_nomc2:")
if not OPT["sig"]: issued()
STAMP(7)
def rank(r, m):
    E(f"""
    s_mov_b64 exec, {m}
    v_mul_u32_u24_sdwa v{r}, v{FOUR}, v{r+1} dst_sel:DWORD dst_unused:UNUSED_PAD src0_sel:DWORD src1_sel:BYTE_3
    v_and_b32 v{r+1}, {OPT['srcmask']}, v{r+1}
    ds_add_rtn_u32 v{r}, v{r}, v{FOUR} offset:{L_CNT}
    """)
def put(r, m):
    E(f"""
    s_mov_b64 exec, {m}
    v_lshlrev_b32 v2, 1, v{r}
    ds_write_b32 v{r}, v{r+1}
    ds_write_b64 v2, v[{r+2}:{r+3}] offset:{L_EA - 2*L_SRC}
    """)
retries = []
pending = []
for gi, grp in enumerate(GROUPS):
    bits = sum(1 << p for p in grp); m32 = bits | (bits << 16)
    if SP and grp[0] == SP:
        if OPT["eag"]: E("s_cmp_eq_u32 s73, 5\ns_cbranch_scc1 L_eagd")
        lds_wait(L_DONE2, 0xff, 5, "g2", sleep=(OPT["sl"] >> 3) & 1)
        loads(range(SP, NP), "n")
        E("L_eagd:")
        if OPT["sig"] == 9:
            if OPT["sigw"]: E(f"s_waitcnt vmcnt({NP - SP - OPT['sigw']})")
            issued()
    last = NP if (not SP or grp[0] >= SP) else SP
    first_ = 0 if (not SP or grp[0] < SP) else SP
    E(f"""
L_ck{gi}:
    s_mov_b32 vcc_lo, {m32}
    s_mov_b32 vcc_hi, {m32}
    v_cndmask_b32 v{ACC}, 0, v{ENT+1}, vcc
    s_and_b32 s30, s68, {bits}
    s_cbranch_scc1 L_xa{gi}
L_xb{gi}:
    """)
    def xacc():
        E(f"L_xa{gi}:\ns_waitcnt vmcnt({last - first_})")
        for p in grp:
            r = RB + 4*p
            E(f"""
            {mask2(p)}
            s_mov_b64 exec, vcc
            v_add3_u32 v{ACC}, v{ACC}, v{r+1}, v{r+2}
            v_add_u32 v{ACC}, v{ACC}, v{r+3}
            s_mov_b64 exec, -1
            """)
        E(f"s_branch L_xb{gi}")
    emit_to(outofline, xacc)
    for p in grp:
        r = RA + 4*p
        E(f"""
        s_waitcnt vmcnt({last-1-p})
        s_mov_b64 exec, s[{48+2*p}:{49+2*p}]
        v_and_b32 v{r}, v{r}, v{L0M}
        v_add3_u32 v{ACC}, v{ACC}, v{r+2}, v{r+3}
        v_add3_u32 v{ACC}, v{ACC}, v{r}, v{r+1}
        """)
    E("s_mov_b64 exec, -1\ns_nop 0")
    for k in (1, 2, 4, 8):
        E(f"v_add_u32_dpp v{ACC}, v{ACC}, v{ACC} row_ror:{k} row_mask:0xf bank_mask:0xf")
        if k < 8: E("s_nop 1")
    E(f"v_cmp_ne_u32 vcc, 0, v{ACC}\ns_cbranch_vccnz L_rt{gi}")
    if OPT["rst"]: STAMP(1+gi)
    if OPT["sig"] == gi + 1: issued()
    def retry():
        E(f"L_rt{gi}:\ns_sub_u32 s34, s34, 1\ns_cbranch_scc1 {'L_toobig' if (gi < OPT['sig'] if OPT['sig'] != 9 else grp[0] < SP) else 'L_giveup'}")
        loads(grp, f"r{gi}_")
        E(f"s_waitcnt vmcnt(0)\ns_branch L_ck{gi}")
    emit_to(outofline, retry)
    for p in grp: rank(RA + 4*p, f"s[{48+2*p}:{49+2*p}]")
    E(f"s_and_b32 s30, s68, {bits}\ns_cbranch_scc1 L_ya{gi}\nL_yb{gi}:")
    def xput():
        E(f"L_ya{gi}:")
        for p in grp:
            r = RB + 4*p
            E(f"""
            s_bitcmp1_b32 s68, {p}
            s_cbranch_scc0 L_yn{p}
            s_mov_b64 exec, -1
            {mask2(p)}
            """)
            rank(r, "vcc")
            E("s_waitcnt lgkmcnt(0)")
            put(r, "vcc")
            E(f"L_yn{p}:")
        E(f"s_branch L_yb{gi}")
    emit_to(outofline, xput)
    for k, p in enumerate(grp):
        E(f"s_waitcnt lgkmcnt({len(grp) - 1 - k + 2*k})")
        put(RA + 4*p, f"s[{48+2*p}:{49+2*p}]")
    E("s_mov_b64 exec, -1")
E(f"""
    {f"s_sub_u32 s{ST0+4}, {POLL_MAX+1}, s34" if OPT["cnt"] else ""}
    s_branch L_b4
L_toobig:
    s_mov_b64 exec, -1
""")
issued()
E(f"""
L_giveup:
    v_mov_b32 v2, 0
    ds_write_b32 v2, v{FOUR} offset:{L_FLAG}
L_recskip:
    s_waitcnt vmcnt(0)
""")
if OPT["mcl"]: main_consts()
E(f"""
; ---------------- all waves: main loop
L_b4:
    s_setprio {OPT["p0"] if OPT["prio"] == 2 else 0}
    s_mul_i32 s30, s{S_HALF}, {G_HALF}
    {f"s_add_u32 s30, s30, {WS0}" if WS0 else ""}
    s_add_u32 s36, s20, s30
    s_addc_u32 s37, s21, 0
    s_mov_b32 s38, {OPT['nrec'] or G_HALF}
    s_mov_b32 s39, 0x20000
    s_mov_b32 s44, 128
    s_mov_b32 s45, 128
    ds_read_b128 v[{WS4}:{WS4+3}], v{LP}
    ds_read_b64 v[{AG}:{AG+1}], v{LP} offset:64
    ds_read_b64 v[{WN2}:{WN2+1}], v{LP} offset:72
    ds_read_b32 v{WE}, v{LP+1}
    s_waitcnt lgkmcnt(0)
    v_lshl_add_u64 v[{AG}:{AG+1}], v[{AG}:{AG+1}], 0, v[{LN8}:{LN8+1}]
    v_lshl_add_u32 v{WE}, v{WE}, 1, v{EAC}
""")
assert OPT["gpe"] <= 64 and not OPT["ptime"]
if OPT["warm"]:
    E(f"""
    s_barrier
    s_lshr_b32 s30, s2, 3
    s_mul_i32 s30, s30, 98304
    v_lshl_add_u32 v2, v0, 7, s30
    buffer_load_dword v3, v2, s[36:39], 0 offen sc1
    s_waitcnt vmcnt(0)
    s_sleep 40
    """)
STAMP(8)
E(f"""
    s_barrier                               ; B4
    s_cmp_lg_u32 s{S_SAFE}, 0
    s_cbranch_scc1 L_safe
    ds_read_b128 v[{T}:{T+3}], v{WS4}
    ds_read_b128 v[{T+4}:{T+7}], v{WS4+1}
    ds_read_b64 v[{XA}:{XA+1}], v{AG} offset:512
    ds_read_b64 v[{EA}:{EA+1}], v{WE}
    s_lshr_b32 s30, s3, 2
    s_cmp_lg_u32 s30, 1
    s_cbranch_scc1 L_nopoll
    s_mov_b64 exec, s[66:67]
    s_cbranch_execz L_p2e
    s_mov_b32 s31, {POLL_MAX}
L_p2:
    global_load_dwordx2 v[66:67], v64, s[20:21] sc1
    s_sub_u32 s31, s31, 1
    s_cbranch_scc1 L_p2d
    s_waitcnt vmcnt(0)
    v_cmp_ne_u64 vcc, s[{S_TAG}:{S_TAG+1}], v[66:67]
    s_and_b64 exec, exec, vcc
    s_cbranch_scc0 L_p2d
    {f"s_sleep {OPT['p2sleep']}" if OPT['p2sleep'] else ""}
    s_branch L_p2
L_p2d:
""")
gready("b")
E(f"""
L_p2e:
    s_mov_b64 exec, -1
L_nopoll:
    s_cmp_lt_u32 s3, 8
    s_cbranch_scc1 L_nobuild
; waves 8..11: place the edges past the 24th of every node: blocks of 8 (two tiles), then remainders of up to 4
    v_lshlrev_b32 v2, 3, v1
    v_mov_b32 v3, 0
    ds_read_b64 v[72:73], v2 offset:{L_CNT}
    ds_read_b32 v79, v3 offset:{L_FLAG}
    v_mul_u32_u24 v74, {2*SSTR}, v1
    v_add_u32 v74, {L_SRC + 96}, v74
    v_add_u32 v75, {SSTR}, v74
    v_mul_u32_u24 v82, {2*NSTR}, v1
    s_and_b32 s32, s3, 1
    s_mul_i32 s30, s32, {NSTR}
    s_add_u32 s30, s30, {L_NODE}
    v_add_u32 v82, s30, v82
    v_mov_b32 v83, v82
    s_mul_i32 s30, s32, {SSTR}
    v_add_u32 v80, s30, v74
    v_add_u32 v81, 16, v80
    s_waitcnt lgkmcnt(0)
    v_sub_u32 v72, v72, v74 clamp
    v_sub_u32 v73, v73, v75 clamp
    v_max_u32 v76, v72, v73
    v_cmp_lt_u32 vcc, 160, v76
    v_cmp_ne_u32 s[48:49], 0, v79
    v_add_u32 v74, 12, v72
    v_add_u32 v75, 12, v73
    s_or_b64 vcc, vcc, s[48:49]
    s_cbranch_scc1 L_bad
    v_add_u32 v72, 28, v72
    v_add_u32 v73, 28, v73
    v_lshrrev_b32 v74, 5, v74
    v_lshrrev_b32 v75, 5, v75
    v_lshrrev_b32 v72, 5, v72
    v_lshrrev_b32 v73, 5, v73
    v_sub_u32 v72, v72, v74
    v_sub_u32 v73, v73, v75
    v_lshl_or_b32 v72, v72, 16, v74
    v_lshl_or_b32 v73, v73, 16, v75
    v_add_u32 v76, v72, v73
    v_add_u32 v77, v72, v73
""")
scan(77)
E(f"""
    s_cmp_eq_u32 s32, 0
    s_cselect_b64 vcc, -1, 0
    v_readlane_b32 s30, v77, 63
    v_cndmask_b32 v76, v73, v76, vcc
    v_cndmask_b32 v72, v73, v72, vcc
    v_sub_u32 v77, v77, v76
    s_and_b32 s50, s30, 0xffff
    s_add_u32 s31, s50, 3
    s_lshr_b32 s31, s31, 2
    s_sub_u32 s51, 0, s50
    s_and_b32 s51, s51, 3                   ; spare quarters of the last such slot take remainders
    s_lshr_b32 s30, s30, 16
    s_add_u32 s30, s30, 3
    s_sub_u32 s30, s30, s51
    s_lshr_b32 s30, s30, 2
    s_lshl_b32 s33, s31, 1
    s_add_u32 s33, s33, s30
    s_cmp_gt_u32 s33, 104
    s_cbranch_scc1 L_bad
    s_lshl_b32 s30, s30, 8
    s_or_b32 s29, s30, s31
    v_and_b32 v74, 0xffff, v72
    v_and_b32 v76, 0xffff, v77
    s_mov_b32 s34, {L_LISTC}
    s_mov_b32 s35, {L_LIST + 136}
""")
def slotaddr():
    E(f"""
    v_subrev_u32 v78, 32, v76
    v_bfe_u32 v79, v76, 2, 2
    v_lshl_add_u32 v79, v79, 10, s34
    v_lshrrev_b32 v84, 5, v78
    v_lshl_add_u32 v79, v84, 7, v79
    v_bfe_u32 v84, v78, 4, 1
    v_lshl_add_u32 v79, v84, 3, v79
    v_lshrrev_b32 v84, 2, v76
    v_cmp_gt_u32 vcc, 32, v76
    v_lshl_add_u32 v84, v84, 9, s35
    v_and_b32 v78, 3, v76
    v_cndmask_b32 v79, v79, v84, vcc
    v_lshl_add_u32 v79, v78, 4, v79
    """)
E("""
    s_cmp_lt_u32 s3, 10
    s_cbranch_scc1 L_brem
L_bf:
    v_cmp_ne_u32 vcc, 0, v74
    s_and_b64 exec, exec, vcc
    s_cbranch_execz L_bfd
""")
slotaddr()
E(f"""
    ds_write_b64 v79, v[80:81]
    ds_write_b64 v79, v[82:83] offset:64
    v_add_u32 v80, 32, v80
    v_add_u32 v81, 32, v81
    v_add_u32 v76, 1, v76
    v_subrev_u32 v74, 1, v74
    s_branch L_bf
L_brem:
    v_lshl_add_u32 v80, v74, 5, v80
    v_add_u32 v81, 16, v80
    v_lshrrev_b32 v77, 16, v77
    s_sub_u32 s52, 0, s31
    s_and_b32 s52, s52, 3
    s_add_u32 s53, s31, s52
    s_lshl_b32 s52, s52, 3
    v_subrev_u32 v73, s51, v77              ; j' = j - spare
    v_subrev_u32 v74, s52, v73
    v_lshrrev_b32 v76, 3, v73
    v_add_u32 v76, s31, v76
    v_and_b32 v75, 4, v73
    v_lshrrev_b32 v78, 5, v74
    v_lshl_add_u32 v78, v78, 2, s53
    v_bfe_u32 v79, v74, 2, 2
    v_add_u32 v78, v78, v79
    v_cmp_gt_u32 vcc, s52, v73
    v_lshrrev_b32 v74, 2, v74
    v_and_b32 v74, 4, v74
    v_cndmask_b32 v76, v78, v76, vcc        ; slot
    v_cndmask_b32 v75, v74, v75, vcc
    v_and_b32 v78, 3, v73
    v_cmp_gt_u32 s[54:55], s51, v77
    v_lshl_add_u32 v76, v76, 2, v78
    v_add_u32 v78, s50, v77
    v_cndmask_b32 v76, v76, v78, s[54:55]
""")
slotaddr()
E(f"""
    v_cmp_lt_u32 vcc, 0xffff, v72
    v_add_u32 v75, v79, v75
    s_andn2_b64 exec, vcc, s[54:55]
    ds_write2_b32 v75, v80, v82 offset0:0 offset1:16
    s_and_b64 exec, vcc, s[54:55]
    ds_write_b64 v79, v[80:81]
    ds_write_b64 v79, v[82:83] offset:64
L_bfd:
    s_mov_b64 exec, -1
    s_mov_b32 s56, s29
    s_cmp_eq_u32 s3, 8
    s_cselect_b32 s29, s29, 0
    s_add_u32 s29, s29, 0x10000
    s_branch L_built
L_bad:
    s_mov_b32 s56, 0
    s_mov_b32 s29, 0x1010000
L_built:
    v_mov_b32 v2, s29
    s_mov_b64 exec, 1
    ds_add_u32 v3, v2 offset:{L_NST}
    s_add_u32 s30, s{S_P}, s3
    s_cmp_lg_u32 s30, 8
    s_cbranch_scc1 L_notw
    v_mov_b32 v2, s{S_TAG}
    v_mov_b32 v3, {WS_TAG}
    global_store_dword v3, v2, s[20:21] sc1
L_notw:
    s_mov_b64 exec, -1
    v_mov_b32 v2, 0
    s_mov_b32 s30, s56
    s_and_b32 s31, s30, 0xff
    s_bfe_u32 s30, s30, 0x80008
    s_and_b32 s28, s3, 3
    s_sub_u32 s32, 0, s31
    s_and_b32 s32, s32, 3
    s_add_u32 s33, s28, s32
    s_sub_i32 s33, s33, 4
    s_lshl_b32 s29, s33, 1
    s_sub_i32 s29, s30, s29
    s_max_i32 s29, s29, 0
    s_min_i32 s29, s29, 2
    s_cmp_lt_i32 s33, 0
    s_cselect_b32 s29, 0, s29
    s_lshl_b32 s32, s32, 1
    s_sub_i32 s30, s30, s32
    s_sub_i32 s30, s30, s28
    s_add_i32 s30, s30, 3
    s_max_i32 s30, s30, 0
    s_lshr_b32 s30, s30, 2
    s_add_u32 s30, s30, s29
    s_sub_u32 s32, s31, s28
    s_add_u32 s32, s32, 3
    s_lshr_b32 s32, s32, 2
    s_lshl_b32 s32, s32, 1
    s_add_u32 s30, s30, s32
    s_sub_i32 s30, s30, 4
    s_max_i32 s30, s30, 0
    s_add_u32 s{S_R}, s30, 6
    s_sub_i32 s31, s31, s3
    s_add_i32 s31, s31, 3
    s_max_i32 s31, s31, 0
    s_lshr_b32 s31, s31, 2
    s_lshl_b32 s31, s31, 1
    s_lshl_b32 s31, -1, s31
    s_or_b32 s31, s31, 0x55555555
    s_lshl_b32 s32, 2, s30
    s_sub_u32 s32, s32, 1
    s_and_b32 s31, s31, s32
    s_lshl_b32 s32, 64, s30
    s_or_b32 s{S_M}, s31, s32
    v_and_b32 v72, 15, v1
    v_lshrrev_b32 v73, 4, v1
    s_lshl_b32 s31, s3, 2
    s_add_u32 s31, s31, 32
    v_add_u32 v73, s31, v73                 ; node
    v_mul_u32_u24 v74, {SSTR}, v73
    v_lshl_add_u32 v74, v72, 4, v74
    v_add_u32 v74, {L_SRC}, v74
    v_mul_u32_u24 v75, {NSTR}, v73
    v_add_u32 v75, {L_NODE}, v75
    v_cmp_gt_u32 vcc, 6, v72
    v_add_u32 v72, s30, v72
    v_lshrrev_b32 v73, 2, v72
    v_lshl_add_u32 v73, v73, 7, v{LP}
    v_and_b32 v72, 3, v72
    v_lshl_add_u32 v73, v72, 2, v73
    s_mov_b64 exec, vcc
    ds_write2_b32 v73, v74, v75 offset0:0 offset1:16
    s_cmp_lg_u32 s30, 0
    s_cbranch_scc1 L_cw2
    v_mov_b32 v3, 1
    s_mov_b64 exec, 1
    ds_add_u32 v2, v3 offset:{L_DYN}
L_cw2:
    s_mov_b64 exec, -1
    s_mov_b32 s31, {LDS_MAX}
L_wnc:
    ds_read_b32 v3, v2 offset:{L_NST}
    s_sub_u32 s31, s31, 1
    s_cbranch_scc1 L_gosafe
    s_waitcnt lgkmcnt(0)
    v_readfirstlane_b32 s30, v3
    s_bitcmp1_b32 s30, 18
    s_cbranch_scc0 L_wnc
    s_cmp_gt_u32 s30, {0 if OPT["force_safe"] else 0xffffff}
    s_cbranch_scc1 L_gosafe
    ds_read_b128 v[{WS4}:{WS4+3}], v{LP}
    ds_read_b64 v[{AG}:{AG+1}], v{LP} offset:64
    ds_read_b64 v[{WN2}:{WN2+1}], v{LP} offset:72
    ds_read_b32 v{WE}, v{LP+1}
    s_waitcnt lgkmcnt(0)
    v_lshl_add_u64 v[{AG}:{AG+1}], v[{AG}:{AG+1}], 0, v[{LN8}:{LN8+1}]
    v_lshl_add_u32 v{WE}, v{WE}, 1, v{EAC}
    ds_read_b128 v[{T}:{T+3}], v{WS4}
    ds_read_b128 v[{T+4}:{T+7}], v{WS4+1}
    ds_read_b64 v[{XA}:{XA+1}], v{AG} offset:512
    ds_read_b64 v[{EA}:{EA+1}], v{WE}
L_nobuild:
    s_waitcnt lgkmcnt(0)
""")
assert DIST == 2 and not EARLY
E(m_a(D0))
for o in range(T, T+8, 2): E(oadd(o))
E(m_e(D0, 0))
E(f"ds_read_b64 v[{XA}:{XA+1}], v{AG+1} offset:512")
lds_wait(L_GOK, 0xff, 4, "gok", sleep=OPT["sl"] & 1)
if OPT["stamps"] == 2: E(f"s_memrealtime s[{ST0+16}:{ST0+17}]")
if not OPT["nogather"]:
    for q in range(8): E(gload(G + 4*q, T+q))
STAMP(9)
E(f"""
    s_mov_b32 s31, {LDS_MAX}
""")
E(f"""
    s_cmp_ge_u32 s3, 8
    s_cbranch_scc1 L_nd
L_wna:
    ds_read_b32 v3, v2 offset:{L_NST}
    s_sub_u32 s31, s31, 1
    s_cbranch_scc1 L_gosafe
    s_waitcnt lgkmcnt(0)
    v_readfirstlane_b32 s30, v3
    s_bitcmp1_b32 s30, 18
    s_cbranch_scc0 L_wna
    s_cmp_gt_u32 s30, {0 if OPT["force_safe"] else 0xffffff}
    s_cbranch_scc1 L_gosafe
    s_and_b32 s31, s30, 0xff
    s_mov_b32 s{S_R}, 14
    s_cmp_ge_u32 s3, s31
    s_cselect_b32 s30, 0x80, 0
    s_or_b32 s{S_M}, s30, 0x4141
L_nd:
    s_waitcnt vmcnt(6)
    {m_s(D0, A1, G)}
    s_waitcnt vmcnt(4)
    {m_s(D0, A2, G+8)}
    v_mov_b32 v3, 1
    s_nop 7
    s_mov_b32 s{S_IT}, {(1 << OPT["pa"]) | (1 << OPT["pb"]) | (1 << OPT["pc"]) if OPT["prio"] == 2 else 0}
""")
if OPT["prio"]: E(f"s_setprio {OPT['p1']}")
STAMP(10)
if OPT["ptime"]: E("v_mov_b32 v70, 0\nv_mov_b32 v71, 0")
if OPT["stamps"] == 1: E(f"s_memtime s[{ST0+24}:{ST0+25}]\ns_waitcnt lgkmcnt(0)")
for u in range(4): phase(u, True)
assert OPT["pc"] >= 2
def aggread(r, k, node): return f"ds_read_b64 v[{r+2*k}:{r+2*k+1}], v68 offset:{node*NSTR + 128*k}"
def tail(u):
    Dc, Dn = ((D0, D1), (D1, D0))[u & 1]
    gc = G + 16*u; gn = G + 16*((u+1) & 3)
    E(f"L_T{u}:")
    E(m_a(Dn))
    for x in exps(Dc, 0): E(x)
    E(m_e(Dn, (u+1) & 3))
    for x in exps(Dc, 1): E(x)
    E(f"ds_read_b32 v3, v2 offset:{L_DYN}")
    weave(pk_steps(gc, 0, False) + pk_steps(gc, 1, False), {2*k+1: [aggread(F, k, 32)] for k in range(4)})
    E("s_waitcnt vmcnt(2)"); E(m_s(Dn, A1, gn))
    for x in exps(Dc, 2): E(x)
    E("s_waitcnt vmcnt(0)"); E(m_s(Dn, A2, gn+8))
    for x in exps(Dc, 3): E(x)
    for x in pk_steps(gc, 2, False) + pk_steps(gc, 3, False): E(x)
    for q in (0, 2):
        for x in exps(Dn, q) + exps(Dn, q+1): E(x)
        for x in pk_steps(gn, q, False) + pk_steps(gn, q+1, False): E(x)
for u in (1, 2, 3):
    def t_(): tail(u); E("s_branch L_mdone")
    emit_to(outofline, t_)
tail(0)
E(f"""
L_mdone:
""")
STAMP(11)
if OPT["ptime"]:
    E(f"""
    s_lshl_b32 s30, s2, 4
    s_add_u32 s30, s30, s3
    s_lshl_b32 s30, s30, 8
    s_add_u32 s30, s30, 0xc00000
    v_lshl_add_u32 v2, v1, 2, s30
    s_mov_b32 exec_hi, 0
    global_store_dword v2, v70, s[20:21]
    global_store_dword v2, v71, s[20:21] offset:128
    s_mov_b64 exec, -1
    """)
if OPT["stamps"] == 1:
    E(f"s_memtime s[28:29]\ns_waitcnt lgkmcnt(0)\ns_sub_u32 s{ST0+24}, s28, s{ST0+24}")
E(f"""
    s_mov_b32 s32, {f32(2.0**32)}
    s_mov_b32 s34, {f32(-LOG2E * 2.0**-32)}
    s_mov_b32 s31, {LDS_MAX}
    v_rcp_f32 v{P}, v{P}
    v_rcp_f32 v{P+1}, v{P+1}
    v_rcp_f32 v{P+2}, v{P+2}
    v_rcp_f32 v{P+3}, v{P+3}
; the sums were read behind the count of waves that are on their last chain; with all twelve there they are complete
L_dw:
    s_waitcnt lgkmcnt(0)
    v_readfirstlane_b32 s30, v3
    s_add_u32 s30, s30, s{S_SAFE}
    s_cmp_lt_u32 s30, 12
    s_cbranch_scc1 L_dr
L_dx:
    s_cmp_ge_u32 s3, 8
    s_cbranch_scc1 L_d1
""")
for k in range(4): E(aggread(12, k, 0))
E("L_d1:")
def reread():
    E(f"L_dr:\ns_sub_u32 s31, s31, 1\ns_cbranch_scc1 L_dx\nds_read_b32 v3, v2 offset:{L_DYN}")
    for k in range(4): E(aggread(F, k, 32))
    E("s_branch L_dw")
emit_to(outofline, reread)
OSC = {0: "", 1: " sc1", 2: " nt"}[OPT["osc"]]
def silu(y, first):
    for p in range(2): E(f"v_pk_mul_f32 v[{36+2*p}:{37+2*p}], v[{y+2*p}:{y+2*p+1}], s[34:35] op_sel_hi:[1,0]")
    for k in range(4): E(f"v_exp_f32 v{36+k}, v{36+k}")
    E(f"v_pk_add_f32 v[10:11], v[{y}:{y+1}], v[{y+2}:{y+3}]" if first else f"v_pk_add_f32 v[10:11], v[10:11], v[{y}:{y+1}]")
    for p in range(2): E(f"v_pk_fma_f32 v[{36+2*p}:{37+2*p}], v[{36+2*p}:{37+2*p}], s[32:33], s[32:33] op_sel_hi:[1,0,0]")
    for k in range(4): E(f"v_rcp_f32 v{36+k}, v{36+k}")
    E("v_mov_b32 v9, 0x207" if first else f"v_pk_add_f32 v[10:11], v[10:11], v[{y+2}:{y+3}]")
    for p in range(2): E(f"v_pk_mul_f32 v[{36+2*p}:{37+2*p}], v[{y+2*p}:{y+2*p+1}], v[{36+2*p}:{37+2*p}]")
    o = 44 if first else 46
    E(f"v_cvt_pk_bf16_f32 v{o}, v36, v37\nv_cvt_pk_bf16_f32 v{o+1}, v38, v39")
    E(f"global_store_dwordx2 v69, v[{o}:{o+1}], s[18:19]{OSC}")
for k in range(4): E(f"v_cvt_f32_f64 v{28+k}, v[{F+2*k}:{F+2*k+1}]")
for p in range(2): E(f"v_pk_fma_f32 v[{28+2*p}:{29+2*p}], v[{N+2*p}:{N+2*p+1}], v[{P+2*p}:{P+2*p+1}], v[{28+2*p}:{29+2*p}]")
silu(28, True)
E(f"""
    s_cmp_ge_u32 s3, 8
    s_cbranch_scc1 L_e4
    v_subrev_u32 v69, {32*256}, v69
    s_waitcnt lgkmcnt(0)
""")
for k in range(4): E(f"v_cvt_f32_f64 v{28+k}, v[{12+2*k}:{13+2*k}]")
silu(28, False)
E(f"""
L_e4:
    v_add_f32 v10, v10, v11
    v_cmp_class_f32 vcc, v10, v9
    v_mov_b32 v2, 0
    s_cmp_lg_u32 s{S_SAFE}, 0
    s_cbranch_scc1 L_fin
    {"s_branch" if OPT["nosafe"] else "s_cbranch_vccz"} L_e5
    ds_write_b32 v2, v9 offset:{L_FLAG}
    s_waitcnt lgkmcnt(0)
L_e5:
    s_barrier                               ; B6
    ds_read_b32 v2, v2 offset:{L_FLAG}
    s_waitcnt lgkmcnt(0)
    v_readfirstlane_b32 s30, v2
    s_cmp_lg_u32 s30, 0
    s_cbranch_scc1 L_gosafe
L_fin:
""")
if OPT["stamps"]:
    E("s_waitcnt vmcnt(0)"); STAMP(13); STAMP_OUT()
if OPT["probe"] >= 0:
    T_ = ST0 + 2*OPT["probe"]
    E(f"""
    s_cmp_lg_u32 s3, {OPT["pw"]}
    s_cbranch_scc1 L_end
    s_cmp_lg_u32 s2, {OPT["pg"] if OPT["pg"] >= 0 else "s2"}
    s_cbranch_scc1 L_end
    s_sub_u32 s30, s{T_}, s{ST0}
    s_lshl_b32 s30, s30, 2
    s_add_u32 s30, s30, 3000
    s_min_u32 s30, s30, 20000
L_spin:
    s_memrealtime s[28:29]
    s_waitcnt lgkmcnt(0)
    s_sub_u32 s28, s28, s{ST0}
    s_cmp_lt_u32 s28, s30
    s_cbranch_scc1 L_spin
    """)
E(f"""
L_end:
    s_endpgm
; ---------------- fall back: redo the node terms, then evaluate edge by edge
L_gosafe:
    s_mov_b32 s{S_SAFE}, 16
    s_setprio 0
    s_waitcnt vmcnt(0) lgkmcnt(0)
    s_barrier
    s_branch L_restart
""")
out += outofline
for r in retries: E(r)
E(f"""
L_safe:
    v_and_b32 v2, 15, v1
    v_lshlrev_b32 v3, 3, v2
    v_add_u32 v3, {L_C}, v3
""")
for k in range(4):
    for s in range(4):
        E(f"ds_read_u16 v{80+4*k+s}, v3 offset:{128*k + 2*s}")
E("s_waitcnt lgkmcnt(0)")
for i in range(16):
    E(f"v_lshlrev_b32 v{80+i}, 16, v{80+i}\nv_mul_f32 v{80+i}, s40, v{80+i}")
E(f"""
    v_lshrrev_b32 v24, 4, v1
    v_mul_u32_u24 v24, 3, v24               ; 3*quarter
    s_movk_i32 s33, {NSTR}
    v_add_u32 v25, {L_NODE}, v{LN8}
    s_mov_b32 s34, s3
    s_mov_b32 s35, {POLL_MAX}
L_scell:
    s_lshl_b32 s30, s34, 10
    s_lshl_b32 s31, s{S_BUCK}, 3
    s_add_u32 s30, s30, s31
    s_add_u32 s30, s30, {WS_ROW}
    v_mov_b32 v26, s30
    global_load_dword v32, v26, s[20:21] sc1
    s_mul_i32 s30, s34, {SORTB//4}
    s_add_u32 s30, s30, {WS_REC//4}
    s_waitcnt vmcnt(0)
    v_bfe_u32 v28, v32, 12, 12              ; 3*count
    v_and_b32 v27, 0xfff, v32
    v_add_u32 v27, s30, v27
L_sver:
    v_mov_b32 v29, v1
    v_mov_b32 v31, 0
L_sv1:
    v_cmp_ge_u32 vcc, v28, v29
    s_and_saveexec_b64 s[48:49], vcc
    s_cbranch_execz L_sv2
    v_add_lshl_u32 v30, v27, v29, 2
    global_load_dword v32, v30, s[20:21] sc1
    s_waitcnt vmcnt(0)
    v_add_u32 v31, v31, v32
    s_mov_b64 exec, s[48:49]
    v_add_u32 v29, 64, v29
    s_branch L_sv1
L_sv2:
    s_mov_b64 exec, s[48:49]
""")
scan(31)
E(f"""
    s_nop 0
    v_readlane_b32 s30, v31, 63
    s_cmp_eq_u32 s30, s{S_TAG+1}
    s_cbranch_scc1 L_sok
    s_sub_u32 s35, s35, 1
    s_cbranch_scc0 L_sver
    s_branch L_sdone
L_sok:
    v_mov_b32 v29, v24
L_srec:
    v_cmp_gt_u32 vcc, v28, v29
    s_and_saveexec_b64 s[48:49], vcc
    s_cbranch_execz L_snext
    v_add_lshl_u32 v30, v27, v29, 2
    global_load_dwordx3 v[32:34], v30, s[20:21] offset:4 sc1
    s_waitcnt vmcnt(0)
    v_and_b32 v30, 0x3fff00, v32
    v_add_u32 v30, v30, v{LN16}
    buffer_load_dwordx4 v[36:39], v30, s[36:39], 0 offen sc1
    v_lshrrev_b32 v31, 24, v32
    v_mad_u32_u24 v31, v31, s33, v25
    ds_read_b64 v[40:41], v31 offset:512
    v_lshlrev_b32 v44, 16, v33
    v_and_b32 v45, 0xffff0000, v33
    v_lshlrev_b32 v46, 16, v34
    v_and_b32 v47, 0xffff0000, v34
    s_waitcnt vmcnt(0) lgkmcnt(0)
    v_lshlrev_b32 v48, 16, v40
    v_and_b32 v49, 0xffff0000, v40
    v_lshlrev_b32 v50, 16, v41
    v_and_b32 v51, 0xffff0000, v41
""")
for s in range(4):
    E(f"v_lshlrev_b32 v52, 16, v{36+s}\nv_add_f32 v{48+s}, v{48+s}, v52")
    for k in range(4):
        E(f"v_fmac_f32 v{48+s}, v{44+k}, v{80+4*k+s}")
for s in range(4): E(f"v_exp_f32 v{48+s}, v{48+s}")
E("s_nop 0")
for s in range(4): E(f"v_add_f32 v{48+s}, 1.0, v{48+s}")
for s in range(4): E(f"v_rcp_f32 v{48+s}, v{48+s}")
E("s_nop 0")
for s in range(4): E(f"v_mul_f32 v{48+s}, v{48+s}, v{36+s}")
for s in range(4): E(f"v_cvt_f64_f32 v[{54+2*s}:{55+2*s}], v{48+s}")
for s in range(4): E(f"ds_add_f64 v31, v[{54+2*s}:{55+2*s}] offset:{128*s}")
E(f"""
    s_mov_b64 exec, s[48:49]
    v_add_u32 v29, 12, v29
    s_branch L_srec
L_snext:
    s_mov_b64 exec, s[48:49]
    s_add_u32 s34, s34, {NW}
    s_cmp_lt_u32 s34, {NCHUNK}
    s_cbranch_scc1 L_scell
L_sdone:
    s_waitcnt lgkmcnt(0)
    s_barrier
    v_mov_b32 v3, 0
""")
for k in range(4): E(f"v_mov_b32 v{N+k}, 0\nv_mov_b32 v{P+k}, 1.0"); E(aggread(F, k, 32))
E(f"""
    s_branch L_mdone
L_codeend:
.section .rodata,"a"
.p2align 6
.amdhsa_kernel {NAME}
.amdhsa_next_free_vgpr 168
.amdhsa_next_free_sgpr 102
.amdhsa_accum_offset 168
.amdhsa_group_segment_fixed_size 0
.amdhsa_kernarg_size 80
.amdhsa_user_sgpr_count 2
.amdhsa_user_sgpr_kernarg_segment_ptr 1
.amdhsa_system_sgpr_workgroup_id_x 1
.end_amdhsa_kernel
""")
if OPT["al"]:
    i0 = out.index("L_L0:"); i1 = out.index("L_mdone:")
    mid = []; odd = False
    for l in out[i0:i1]:
        t = l.strip()
        if t.endswith(":") or t.startswith(";"): mid.append(l); continue
        four = t.startswith(("s_", "v_exp"))
        if not four and odd and OPT["al"] >= 3:
            mid.append("    s_nop 0"); odd = False
        if four: odd = not odd
        mid.append(l)
    pre = [".p2align 6, , 60"] if OPT["al"] != 2 else [".p2align 6, , 60", "    s_nop 0"]
    out = out[:i0] + pre + mid + out[i1:]
if OPT["drop"]:
    i0 = out.index("L_L0:"); i1 = out.index("L_mdone:")
    pats = {1: ("smfmac",), 2: ("mfma",), 3: ("32x32x8",), 4: ("smfmac",), 5: ("v_exp",)}[OPT["drop"]]
    repl = {4: "    s_nop 2", 5: "    s_nop 1"}.get(OPT["drop"])
    mid = []
    for l in out[i0:i1]:
        if any(x in l for x in pats):
            if repl: mid.append(repl)
        else: mid.append(l)
    if OPT["drop"] == 3: mid = [l.replace("v[88:103] cbsz", "0 cbsz").replace("v[72:87] cbsz", "0 cbsz") for l in mid]
    out = out[:i0] + mid + out[i1:]
if OPT["nochain"]:
    i0 = out.index("L_L0:"); i1 = out.index("L_mdone:")
    out = out[:i0] + [l for l in out[i0:i1] if not any(x in l for x in ("v_exp", "v_pk_", "mfma", "v_rcp", "v_cvt"))] + out[i1:]
open(sys.argv[1], "w").write("\n".join(out) + "\n")
```

```python
import sys, struct

OPT = dict(hb=1, pgs=0, al=0, sl=0, sigw=0, aue=0, mcl=2, b31=1, split=3, grp=0, allg=0, eag=1, stamps=0, force_safe=0, nogather=0, nosafe=0, prio=2, gsc1=1, osc=1, codepf=1, srcmask=0x3fff00, nrec=0, warm=0,
           nochain=0, probe=-1, pw=-1, pg=-1, gpf=32, early=0, cnt=0, pollmax=200000, pa=6, pb=3, pc=2, p0=3, p1=3, ptime=0,
           dist=2, ldearly=0, drop=0, wgate=0, gate=0, gate2=1, rst=0, rsc1=1, nover=0, p2gate=1, p2sleep=0, hold=0, slate=2, lpos=0, p1st=1, sig=2, gpace=4, gwin=-1, gp=0xf448c, ghold=0, nte=0, ewhen=6, eah=0, rih=0, stg=0, bvf=0, wpf=1, gpe=40, oneb=0, tagl=0, p0e=0, aul=0, t0f=0, pre=0, prelate=0, ntx=0, rpace=-1, p2wait=0)
for a in sys.argv[2:]:
    k, v = a.split("=")
    assert k in OPT, k
    OPT[k] = int(v, 0)

out = []
def E(s=""):
    for line in s.split("\n"):
        line = line.strip()
        if not line:
            continue
        if line.endswith(":") or line.startswith(".") or line.startswith(";"):
            out.append(line)
        else:
            out.append("    " + line)

def f32(x):
    return "0x%08x" % struct.unpack("<I", struct.pack("<f", x))[0]

NAME = "standalone__edge_featured_mpnn_egc__graph_kernel"
LOG2E = 1.4426950408889634
NB = 80; NBUCK = 125; CHUNK = 1280; NCHUNK = 250
NW = 12
G_HALF = 10000 * 256
WS0 = 0
WS_REC = 0x500000
WS_ROW = 0x900000
WS_FL2 = 0x980000
WS_TAG = 0x9c0000
SORTB = CHUNK * 12 + 512
WS_STAMP = 0x1000000
L_CNT = 0; L_SOFF = 512
L_SCNT = 1024
L_CTR = 1536; L_RD = 1540; L_DONE2 = 1544; L_FLAG = 1548; L_NST = 1552; L_GST = 1556; L_GOK = 1560; L_AU = 1564; L_DYN = 1568; L_EAOK = 1572
L_DUM = L_SOFF
L_LIST = 2048
L_LISTC = L_LIST + 4096
SSTR = 272
L_SRC = L_LIST + 8192
SRCB = 80 * SSTR + 32
L_EA = L_SRC + SRCB
L_EAEND = L_EA + 2 * SRCB
L_SORT = L_EA
L_WBV = (L_EAEND + 255) // 256 * 256; L_X = L_WBV + 32768; L_WAU = L_X + 20480; L_C = L_WAU + 32768
LDS = L_C + 1024
L_NODE = L_WBV; NSTR = 648
assert L_NODE + 80 * NSTR <= L_WAU and LDS <= 163840 and L_EA % 16 == 0
NULL_SRC = 0x7fffff00
POLL_MAX = OPT["pollmax"]
LDS_MAX = 20 * POLL_MAX
SC1 = " sc1"
NTE = " nt" if OPT["nte"] else ""
NTX = " nt" if OPT["ntx"] else ""

S_HALF, S_BUCK, S_P = 22, 23, 24
S_SAFE, S_TAG = 25, 26
S_R, S_M, S_IT = 70, 71, 72
S_TAGRAW = 47
ST0 = 74

def ESTAMP(i):
    if OPT["early"] == 1 or (OPT["early"] and i == 0): E(f"s_memrealtime s[{ST0+2*i}:{ST0+2*i+1}]")
def FSTAMP(i):
    if OPT["early"] == 2: E(f"s_memrealtime s[{ST0+2*i}:{ST0+2*i+1}]\ns_waitcnt lgkmcnt(0)")
def STAMP(i):
    if OPT["stamps"] == 2:
        if i == 0: E(f"s_memrealtime s[{ST0}:{ST0+1}]")
        if i == 13: E(f"s_memrealtime s[{ST0+26}:{ST0+27}]\ns_waitcnt lgkmcnt(0)")
        return
    if OPT["early"] and 1 <= i <= 7: return
    if OPT["early"] and i == 0: return ESTAMP(0)
    if OPT["stamps"] or (OPT["probe"] >= 0 and i == OPT["probe"]):
        E(f"s_memrealtime s[{ST0+2*i}:{ST0+2*i+1}]\ns_waitcnt lgkmcnt(0)")
    elif OPT["probe"] >= 0 and i == 0:
        E(f"s_memrealtime s[{ST0}:{ST0+1}]")
NSTAMP = 14
def STAMP_OUT():
    if OPT["stamps"]:
        E(f"""
        s_lshl_b32 s30, s2, 4
        s_add_u32 s30, s30, s3
        s_lshl_b32 s30, s30, 6
        s_add_u32 s30, s30, {WS_STAMP - 0x100000}
        s_load_dwordx2 s[20:21], s[0:1], 72
        s_waitcnt lgkmcnt(0)
        s_mov_b64 exec, -1
        v_mov_b32 v3, s30""")
        for i in (range(NSTAMP) if OPT["stamps"] == 1 else (0, 8, 13)):
            E(f"v_mov_b32 v2, s{ST0+2*i}\nglobal_store_dword v3, v2, s[20:21] offset:{4*i}")
        E("s_waitcnt vmcnt(0)")

A1, A2, IDX, EAC, LN16, ASEL, CW, LN8 = 4, 8, 12, 13, 14, 16, 18, 20
LP, WS4, WN2, EA, XA, WE, OFS, AG, T, N, P, F = 22, 24, 28, 30, 32, 34, 36, 40, 44, 52, 56, 60
D0, D1, G = 72, 88, 104

def finish_tag():
    E(f"""
    s_mul_i32 s{S_TAG+1}, s{S_TAGRAW}, 0x85ebca6b
    s_mul_i32 s{S_TAG}, s{S_TAGRAW}, 0x9e3779b1
    s_add_u32 s{S_TAG+1}, s{S_TAG+1}, 0x5bd1e995
    s_add_u32 s{S_TAG}, s{S_TAG}, 0x7f4a7c15
    """)
def get_tag(lab, q):
    E(f"""
    s_cmp_lg_u32 s{S_SAFE}, 0
    s_cbranch_scc1 L_tag_{lab}
    v_mov_b32 v2, 0
    s_mov_b32 s31, {LDS_MAX}
L_tg_{lab}:
    ds_read_b128 v[{q}:{q+3}], v2 offset:{L_SCNT + 124*4}
    s_sub_u32 s31, s31, 1
    s_cbranch_scc1 L_tag_{lab}
    s_waitcnt lgkmcnt(0)
    v_readfirstlane_b32 s30, v{q+3}
    v_readfirstlane_b32 s{S_TAGRAW}, v{q+1}
    s_cmp_lg_u32 s30, 4
    s_cbranch_scc1 L_tg_{lab}
    """)
    finish_tag()
    E(f"L_tag_{lab}:")

def lds_wait(addr, mask, val, tag, sleep=0, ne=False):
    E(f"""
    v_mov_b32 v2, 0
    s_mov_b32 s31, {LDS_MAX}
    {f"s_branch L_wf_{tag}" if sleep else ""}
L_w_{tag}:
    {f"s_sleep {sleep}" if sleep else ""}
L_wf_{tag}:
    ds_read_b32 v3, v2 offset:{addr}
    s_sub_u32 s31, s31, 1
    s_cbranch_scc1 L_wd_{tag}
    s_waitcnt lgkmcnt(0)
    v_readfirstlane_b32 s30, v3
    s_and_b32 s30, s30, {mask}
    s_cmp_lg_u32 s30, {val}
    s_cbranch_scc{0 if ne else 1} L_w_{tag}
L_wd_{tag}:
    """)
SCAN = ("row_shr:1 row_mask:0xf bank_mask:0xf bound_ctrl:0", "row_shr:2 row_mask:0xf bank_mask:0xf bound_ctrl:0",
        "row_shr:4 row_mask:0xf bank_mask:0xf bound_ctrl:0", "row_shr:8 row_mask:0xf bank_mask:0xf bound_ctrl:0",
        "row_bcast:15 row_mask:0xa bank_mask:0xf", "row_bcast:31 row_mask:0xc bank_mask:0xf")
def scan(r):
    for m in SCAN:
        E(f"s_nop 1\nv_add_u32_dpp v{r}, v{r}, v{r} {m}")

def main_consts(sm=48):
    E(f"""
    v_and_b32 v2, 15, v1                    ; n'
    v_lshrrev_b32 v3, 4, v1
    v_lshl_add_u32 v3, v2, 2, v3
    v_lshlrev_b32 v3, 1, v3
    v_add_u32 v3, {L_C}, v3
    ds_read_u16 v64, v3                     ; C[0..3][feature 4n'+s]
    ds_read_u16 v65, v3 offset:128
    ds_read_u16 v66, v3 offset:256
    ds_read_u16 v67, v3 offset:384
    v_and_b32 v63, 3, v1                    ; q
    v_lshlrev_b32 v{LN8}, 3, v2
    v_lshlrev_b32 v{LN8+1}, 3, v2
    v_lshlrev_b32 v{LN16}, 4, v2
    v_lshlrev_b32 v{LN16+1}, 4, v2
    v_mov_b32 v{IDX}, 0x8888
    v_bfe_u32 v60, v1, 3, 2                 ; s = (l&31)>>3
    v_bfe_u32 v61, v1, 2, 1                 ; h = (l>>2)&1
    v_lshrrev_b32 v62, 5, v1                ; ha
    v_and_b32 v2, 1, v60
    v_lshlrev_b32 v2, 4, v2
    v_lshlrev_b32 v2, v2, s46               ; 1.0 (bf16) in half s&1
    v_lshrrev_b32 v60, 1, v60               ; s>>1
    v_lshl_add_u32 v3, v61, 1, v60
    v_sub_u32 v63, v63, v62                 ; q - ha : 0 -> A1, 2 -> A2
    v_lshl_add_u32 v3, v63, 1, v3
    v_and_b32 v63, 1, v63
    v_lshl_or_b32 v3, v63, 4, v3
    v_xor_b32 v61, v61, v62
    v_lshl_or_b32 v60, v61, 4, v60
    """)
    mk = [f"s[{sm}:{sm+1}]", f"s[{sm+2}:{sm+3}]", f"s[{sm+4}:{sm+5}]", "vcc"]
    for i in range(8):
        E(f"v_cmp_eq_u32 {mk[i%4]}, {i}, v3")
        if i % 4 == 3:
            for j in range(i-3, i+1):
                E(f"v_cndmask_b32 v{A1+j}, 0, v2, {mk[j%4]}")
    E(f"""
    v_cmp_eq_u32 {mk[0]}, 0, v60
    v_cmp_eq_u32 {mk[1]}, 1, v60
    v_and_b32 v63, 3, v1
    v_lshlrev_b32 v61, 3, v63
    v_cndmask_b32 v{ASEL}, 0, v2, {mk[0]}
    v_cndmask_b32 v{ASEL+1}, 0, v2, {mk[1]}
    v_add_u32 v{EAC}, {L_EA - 2*L_SRC}, v61
    s_lshl_b32 s30, s3, 9
    s_sub_u32 s31, s30, 4096
    s_max_i32 s31, s31, 0
    s_add_u32 s30, s30, s31
    s_add_u32 s30, s30, {L_LIST}
    v_lshrrev_b32 v2, 4, v1
    v_lshl_add_u32 v{LP}, v2, 4, s30
    v_bfe_u32 v3, v1, 2, 2
    v_lshl_add_u32 v{LP+1}, v3, 4, s30
    v_lshl_add_u32 v{LP+1}, v2, 2, v{LP+1}
    s_lshl_b32 s30, s3, 2
    s_add_u32 s30, s30, 32
    v_add_u32 v2, s30, v2
    v_mul_u32_u24 v68, {NSTR}, v2
    v_add_u32 v68, v68, v{LN8}
    v_add_u32 v68, {L_NODE - 32*NSTR}, v68
    s_mul_i32 s30, s{S_BUCK}, {NB*256}
    s_lshl_b32 s31, s{S_HALF}, 7
    s_add_u32 s30, s30, s31
    v_lshl_add_u32 v69, v2, 8, v{LN8}
    v_add_u32 v69, s30, v69
    s_waitcnt lgkmcnt(0)
    v_lshlrev_b32 v60, 16, v64
    v_lshlrev_b32 v61, 16, v65
    v_lshlrev_b32 v62, 16, v66
    v_lshlrev_b32 v63, 16, v67
    v_mul_f32 v60, s40, v60
    v_mul_f32 v61, s40, v61
    v_mul_f32 v62, s40, v62
    v_mul_f32 v63, s40, v63
    v_cvt_pk_bf16_f32 v{CW}, v60, v61
    v_cvt_pk_bf16_f32 v{CW+1}, v62, v63
    """)

def gload(g, o):
    return f"buffer_load_dwordx4 v[{g}:{g+3}], v{o}, s[36:39], 0 offen" + (SC1 if OPT["gsc1"] else "")
def oadd(o):
    return f"v_lshl_add_u64 v[{o}:{o+1}], v[{o}:{o+1}], 0, v[{LN16}:{LN16+1}]"

def pk_steps(Gc, q, first):
    t = T + 4*(q & 1); h = Gc + 4*q
    if first and q == 0:
        return [f"v_pk_add_f32 v[{P+2*p}:{P+2*p+1}], v[{t+2*p}:{t+2*p+1}], 1.0 op_sel_hi:[1,0]" for p in range(2)]
    r = []
    for p in range(2):
        n = f"v[{Gc+2*p}:{Gc+2*p+1}]" if (first and q == 1) else f"v[{N+2*p}:{N+2*p+1}]"
        r.append(f"v_pk_fma_f32 v[{N+2*p}:{N+2*p+1}], {n}, v[{t+2*p}:{t+2*p+1}], {n}")
    for p in range(2):
        r.append(f"v_pk_fma_f32 v[{N+2*p}:{N+2*p+1}], v[{h+2*p}:{h+2*p+1}], v[{P+2*p}:{P+2*p+1}], v[{N+2*p}:{N+2*p+1}]")
    for p in range(2):
        r.append(f"v_pk_fma_f32 v[{P+2*p}:{P+2*p+1}], v[{P+2*p}:{P+2*p+1}], v[{t+2*p}:{t+2*p+1}], v[{P+2*p}:{P+2*p+1}]")
    return r
def exps(Dc, q):
    t = T + 4*(q & 1)
    return [f"v_exp_f32 v{t+s}, v{Dc+4*s+q}" for s in range(4)]
def weave(main, extra):
    for i, x in enumerate(main):
        E(x)
        for y in extra.get(i, []):
            E(y)
def m_a(Dn): return f"v_mfma_f32_32x32x8_bf16 v[{Dn}:{Dn+15}], v[{ASEL}:{ASEL+1}], v[{XA}:{XA+1}], 0"
def m_e(Dn, abid): return f"v_mfma_f32_16x16x4_4b_bf16 v[{Dn}:{Dn+15}], v[{EA}:{EA+1}], v[{CW}:{CW+1}], v[{Dn}:{Dn+15}] cbsz:2 abid:{abid}"
def m_s(Dn, A, g): return f"v_smfmac_f32_32x32x32_bf16 v[{Dn}:{Dn+15}], v[{A}:{A+3}], v[{g}:{g+7}], v{IDX}"

outofline = []
def emit_to(lst, fn):
    global out
    keep = out; out = []
    fn(); lst += out; out = keep
assert OPT["pa"] == 6 and OPT["prio"] == 2
DIST = OPT["dist"]; EARLY = OPT["ldearly"]
assert not (EARLY and DIST == 4)
def phase(u, loads):
    tag = f"{'L' if loads else 'T'}{u}"
    Dc, Dn = ((D0, D1), (D1, D0))[u & 1]
    gc = G + 16*u; gn = G + 16*((u+1) & 3); gl = G + 16*((u+DIST) & 3)
    ld = loads and not OPT["nogather"]
    kw = (u + DIST + EARLY) & 3
    wsgrp = 128 * ((3 - kw + u + DIST + EARLY) // 4 + 1) if kw == 3 else None
    def addloads(ex, pos):
        if loads:
            ex.setdefault(0, []).append(oadd(OFS)); ex.setdefault(2, []).append(oadd(OFS+2))
        if ld:
            for q in range(4): ex.setdefault(pos[q], []).append(gload(gl+4*q, OFS+q))
    E(f"L_{tag}:")
    SL = OPT["slate"]
    if not SL: E(f"s_waitcnt vmcnt({4*(DIST-2)})")
    E(m_a(Dn))
    for x in exps(Dc, 0): E(x)
    E(m_e(Dn, (u+1) & 3) if SL else m_s(Dn, A1, gn))
    for x in exps(Dc, 1): E(x)
    ex = {0: ["s_waitcnt lgkmcnt(0)"], 2: [f"ds_read_b64 v[{XA}:{XA+1}], v{AG + ((u+2) & 3)} offset:512"]}
    if u % 2 == 0:
        p = AG + ((u+2) & 3)
        ex[0].append(f"v_lshl_add_u64 v[{p}:{p+1}], v[{WN2}:{WN2+1}], 0, v[{LN8}:{LN8+1}]")
    if EARLY: addloads(ex, (1, 3, 5, 6))
    elif loads: ex[1] = [f"ds_read_b128 v[{OFS}:{OFS+3}], v{WS4+kw}"]
    if u == 2:
        ex.setdefault(4, []).append(f"v_lshl_add_u32 v{WE}, v{WE}, 1, v{EAC}")
        if SL: ex.setdefault(7, []).append(f"ds_read_b64 v[{EA}:{EA+1}], v{WE}")
    E(f"s_bitcmp1_b32 s{S_M}, 0\ns_cbranch_scc1 L_{tag}f")
    weave(pk_steps(gc, 0, False) + pk_steps(gc, 1, False), ex)
    E(f"L_{tag}r:")
    def first():
        E(f"L_{tag}f:")
        weave(pk_steps(gc, 0, True) + pk_steps(gc, 1, True), ex)
        E(f"s_branch L_{tag}r")
    emit_to(outofline, first)
    if SL:
        if OPT["ptime"]: E(f"s_memrealtime s[28:29]\ns_mov_b32 m0, s{S_R}")
        E(f"s_waitcnt vmcnt({4*(DIST-2) + (4 if (EARLY and loads) else 0) + (2 if SL == 2 else 0)})")
        E(m_s(Dn, A1, gn))
    else:
        E(m_e(Dn, (u+1) & 3))
    for x in exps(Dc, 2): E(x)
    if SL == 2: E(f"s_waitcnt vmcnt({4*(DIST-2) + (4 if (EARLY and loads) else 0)})")
    if OPT["ptime"]: E(f"s_memrealtime s[30:31]")
    E(m_s(Dn, A2, gn+8))
    for x in exps(Dc, 3): E(x)
    ex = {0: ["s_waitcnt lgkmcnt(0)"], 4: [], 6: [], 7: [f"s_sub_u32 s{S_R}, s{S_R}, 1"], 10: [f"s_lshr_b32 s{S_M}, s{S_M}, 1"], 11: [f"s_bitcmp1_b32 s{S_M}, 0"]}
    if OPT["ptime"]: ex[0] += ["v_writelane_b32 v70, s28, m0", "v_writelane_b32 v71, s30, m0"]
    if not EARLY: addloads(ex, (1, 3, 5, 9) if DIST == 4 else ((1, 3, 5, 7), (1, 2, 3, 4), (4, 6, 8, 10), (2, 5, 8, 10))[OPT['lpos']])
    elif loads: ex[1] = [f"ds_read_b128 v[{OFS}:{OFS+3}], v{WS4+kw}"]
    if u == 1:
        ex[4].append(f"ds_read_b64 v[{WN2}:{WN2+1}], v{LP} offset:{128+64}")
        ex[6].append(f"ds_read_b32 v{WE}, v{LP+1} offset:128")
    if u == 2 and not SL:
        ex[4].append(f"ds_read_b64 v[{EA}:{EA+1}], v{WE}")
    if u == 3:
        ex[4].append(f"ds_read_b64 v[{WN2}:{WN2+1}], v{LP} offset:{128+64+8}")
        ex.setdefault(8, []).append(f"v_lshl_add_u64 v[{LP}:{LP+1}], v[{LP}:{LP+1}], 0, s[44:45]")
    if wsgrp and loads: ex[6].append(f"ds_read_b128 v[{WS4}:{WS4+3}], v{LP} offset:{wsgrp}")
    weave(pk_steps(gc, 2, False) + pk_steps(gc, 3, False), ex)
    E(f"s_cbranch_scc1 L_{tag}z\nL_{tag}y:")
    def fin():
        E(f"""
L_{tag}z:
        v_rcp_f32 v{P}, v{P}
        v_rcp_f32 v{P+1}, v{P+1}
        v_rcp_f32 v{P+2}, v{P+2}
        v_rcp_f32 v{P+3}, v{P+3}
        v_pk_mul_f32 v[{N}:{N+1}], v[{N}:{N+1}], v[{P}:{P+1}]
        v_pk_mul_f32 v[{N+2}:{N+3}], v[{N+2}:{N+3}], v[{P+2}:{P+3}]
        """)
        for s_ in range(4):
            E(f"v_cvt_f64_f32 v[{F+2*s_}:{F+2*s_+1}], v{N+s_}")
            if s_: E(f"ds_add_f64 v{AG+u}, v[{F+2*s_-2}:{F+2*s_-1}] offset:{128*(s_-1)}")
        E(f"ds_add_f64 v{AG+u}, v[{F+6}:{F+7}] offset:384")
        E(f"s_branch L_{tag}y")
    emit_to(outofline, fin)
    if OPT["prio"] == 2:
        E(f"s_bitcmp1_b32 s{S_IT}, s{S_R}\ns_cbranch_scc1 L_{tag}q\nL_{tag}p:")
        def pr():
            E(f"""
L_{tag}q:
            s_setprio 0
            s_cmp_le_u32 s{S_R}, {OPT["pc"]}
            s_cbranch_scc1 L_{tag}p
            s_setprio 1
            s_cmp_le_u32 s{S_R}, {OPT["pb"]}
            s_cbranch_scc1 L_{tag}p
            s_setprio 2
            s_mov_b64 exec, 1
            ds_add_u32 v2, v3 offset:{L_DYN}
            s_mov_b64 exec, -1
            s_branch L_{tag}p
            """)
        emit_to(outofline, pr)
    if u == 3 and OPT["prio"] == 1:
        E(f"""
        s_add_u32 s{S_IT}, s{S_IT}, 1
        s_setprio 0
        s_cmp_gt_u32 s{S_IT}, 2
        s_cbranch_scc1 L_{tag}p
        s_setprio 1
        s_cmp_eq_u32 s{S_IT}, 2
        s_cbranch_scc1 L_{tag}p
        s_setprio 2
L_{tag}p:
        """)
    if loads:
        E(f"s_cmp_le_u32 s{S_R}, {DIST}")
        if u < 3: E(f"s_cbranch_scc1 L_T{u+1}")
        else: E("s_cbranch_scc0 L_L0")
    else:
        E(f"s_waitcnt vmcnt(0)\ns_cmp_eq_u32 s{S_R}, 0")
        if u < 3: E("s_cbranch_scc1 L_mdone")
        else: E("s_cbranch_scc0 L_T0")

E(f"""
; Edge-gated message passing in one launch, one workgroup per (bucket of 80 nodes, half of the features).
;  sum_i h_i / (1 + t_i), t = exp(-z), is carried as a fraction N / P along a node's edges (exact algebra); if that
; @launch grid=(256,1,1) block=({64*NW},1,1) lds={LDS}
.amdgcn_target "amdgcn-amd-amdhsa--gfx950"
.text
.globl {NAME}
.p2align 8
.type {NAME},@function
{NAME}:
""")
if OPT["stamps"] == 1 and OPT["early"] != 1:
    for i in range(NSTAMP): E(f"s_mov_b64 s[{ST0+2*i}:{ST0+2*i+1}], 0")
STAMP(0)
E(f"""
    s_load_dwordx16 s[4:19], s[0:1], 0
    s_load_dwordx2 s[20:21], s[0:1], 72
""")
if OPT["codepf"]:
    E(f"""
    s_getpc_b64 s[28:29]
L_pc:
    v_lshlrev_b32 v3, 7, v0
    v_cmp_gt_u32 vcc, L_codeend-L_pc-64, v3
    s_cbranch_vccz L_nopf
    s_mov_b64 exec, vcc
    global_load_dword v164, v3, s[28:29]
    s_mov_b64 exec, -1
L_nopf:
    """)
E(f"""
    v_lshrrev_b32 v2, 6, v0
    v_and_b32 v1, 63, v0
    v_readfirstlane_b32 s3, v2
    {"s_bfe_u32 s%d, s2, 0x10002" % S_HALF if OPT["hb"] else "s_and_b32 s%d, s2, 1" % S_HALF}
    {"s_and_b32 s30, s2, 3" if OPT["hb"] else "s_bfe_u32 s30, s2, 0x20001"}
    {"s_mul_i32 s30, s30, 31" if OPT["b31"] else "s_lshl_b32 s30, s30, 5"}
    s_lshr_b32 s31, s2, 3
    s_add_u32 s{S_BUCK}, s30, s31
    {"s_cmp_eq_u32 s30, 93                    ; 31 buckets per XCD of a half, 32 on the last" if OPT["b31"] else "s_cmp_ge_u32 s2, 256"}
    {"s_subb_u32 s31, s31, 0" if OPT["b31"] else "s_cbranch_scc1 L_end"}
    {"s_cmp_ge_i32 s31, 31" if OPT["b31"] else "s_cmp_ge_u32 s%d, %d" % (S_BUCK, NBUCK)}
    s_cbranch_scc1 L_end
    s_lshl_b32 s{S_P}, s{S_BUCK}, 1
    s_add_u32 s{S_P}, s{S_P}, s{S_HALF}
    s_mov_b32 s{S_SAFE}, 0
L_restart:
    s_cmp_ge_u32 s3, 4
    s_cbranch_scc1 L_nosort
    v_mov_b32 v48, 0
    v_mov_b32 v49, 0
    v_mov_b32 v50, 0
    v_mov_b32 v51, 0
    v_lshlrev_b32 v10, 4, v1
    ds_write_b128 v10, v[48:51] offset:{L_SCNT}
    s_mul_i32 s30, s{S_P}, {CHUNK*4}
    v_lshl_add_u32 v3, v0, 4, s30
    s_add_u32 s30, s30, 4096
    v_lshl_add_u32 v18, v0, 2, s30
    v_lshlrev_b32 v10, 1, v3
    v_lshlrev_b32 v11, 1, v18
    v_mov_b32 v17, {WS_TAG}
    s_waitcnt lgkmcnt(0)
    global_load_dwordx4 v[4:7], v3, s[10:11]{NTE}
    global_load_dword v8, v18, s[10:11]{NTE}
""")
STG = OPT["stg"]
if STG: E(f"""
    s_add_u32 s28, s20, {WS_TAG}
    s_addc_u32 s29, s21, 0
    s_load_dword s65, s[28:29], 0
""")
else: E("global_load_dword v43, v17, s[20:21]")
E(f"""
""")
def preclear():
    E(f"""
    s_cmp_lg_u32 s{S_SAFE}, 0
    s_cbranch_scc1 L_nopre
    s_mul_i32 s30, s{S_HALF}, {G_HALF}
    s_mul_i32 s31, s{S_BUCK}, {NB*256}
    s_add_u32 s30, s30, s31
    s_add_u32 s30, s30, {4096*(5-OPT["pre"])}
    v_lshl_add_u32 v19, v0, 4, s30
    """)
    for i in range(OPT["pre"]):
        E("global_store_dwordx4 v19, v[48:51], s[20:21] sc1")
        if i + 1 < OPT["pre"]: E("v_add_u32 v19, 4096, v19")
    E("L_nopre:")
if OPT["pre"] and not OPT["prelate"]: preclear()
E(f"""
    {"" if OPT["oneb"] else "s_barrier"}
""")
if OPT["ewhen"] == 0: E(f"""
    global_load_dwordx4 v[12:15], v3, s[8:9]{NTE}
    global_load_dword v16, v18, s[8:9]{NTE}
    global_load_dwordx4 v[52:55], v10, s[6:7]{NTE}
    global_load_dwordx4 v[56:59], v10, s[6:7] offset:16{NTE}
    global_load_dwordx2 v[60:61], v11, s[6:7]{NTE}
""")
E("s_barrier                               ; B0b")
if OPT["ewhen"] == 7: E(f"""
    global_load_dwordx4 v[12:15], v3, s[8:9]{NTE}
    global_load_dword v16, v18, s[8:9]{NTE}
    global_load_dwordx4 v[52:55], v10, s[6:7]{NTE}
    global_load_dwordx4 v[56:59], v10, s[6:7] offset:16{NTE}
    global_load_dwordx2 v[60:61], v11, s[6:7]{NTE}
""")
if OPT["pre"] and OPT["prelate"]: preclear()
E(f"""
    s_branch L_sort
L_nosort:
    s_and_b32 s32, s3, 3                    ; tau
    s_lshr_b32 s33, s3, 3
    v_lshrrev_b32 v2, 4, v1                 ; g
    v_and_b32 v4, 15, v1
    s_lshl_b32 s30, s32, 2
    v_add_u32 v6, s30, v2                   ; row&15
    v_xor_b32 v7, v4, v6
    v_lshlrev_b32 v7, 4, v7
    v_lshl_add_u32 v7, v6, 8, v7
    s_mul_i32 s73, s{S_BUCK}, {NB*256}
    s_mul_i32 s31, s33, {3*4096}
    s_add_u32 s30, s73, s31
    v_add_u32 v7, s30, v7
    v_add_u32 v8, 0x1000, v7
    v_add_u32 v9, 0x2000, v7
    s_lshl_b32 s30, s32, 10
    s_add_u32 s31, s31, s30
    s_add_u32 m0, s31, {L_X}
    v_subrev_u32 v30, 256, v0               ; t = 0..511
    v_lshlrev_b32 v31, 4, v30
    v_mov_b32 v36, 0
    v_mov_b32 v37, 0
    v_mov_b32 v38, 0
    v_mov_b32 v39, 0
    v_add_u32 v40, {L_EA}, v31
    ds_write_b128 v40, v[36:39]
    ds_write_b128 v40, v[36:39] offset:8192
""")
if OPT["wpf"]:
    E(f"""
    s_lshr_b32 s30, s2, 3
    s_lshl_b32 s30, s30, 2
    v_add_u32 v3, s30, v1
    v_and_b32 v3, 127, v3
    s_lshl_b32 s30, s{S_HALF}, 7
    s_cmp_eq_u32 s3, 4
    s_cselect_b32 s31, 0x8000, 0
    s_add_u32 s30, s30, s31
    v_lshl_add_u32 v3, v3, 8, s30
    s_waitcnt lgkmcnt(0)
    s_cmp_lg_u32 s33, 0
    s_cbranch_scc1 L_nowpf
    s_cmp_eq_u32 s3, 5
    s_cselect_b32 s34, s14, s16
    s_cselect_b32 s35, s15, s17
    s_cmp_eq_u32 s3, 7
    s_cselect_b32 s34, s12, s34
    s_cselect_b32 s35, s13, s35
    s_mov_b64 exec, 0xffff
    global_load_dword v167, v3, s[34:35]
    s_mov_b64 exec, -1
L_nowpf:
    """)
    if OPT["wpf"] == 2:
        E(f"""
        s_cmp_lg_u32 s3, 8
        s_cbranch_scc1 L_notch
        s_mul_i32 s30, s{S_P}, {CHUNK*4}
        v_mov_b32 v3, s30
        v_lshlrev_b32 v5, 1, v3
        v_lshlrev_b32 v6, 21, v1
        s_mov_b64 exec, 1
        global_load_dword v167, v3, s[8:9]
        global_load_dword v166, v5, s[6:7]
        s_mov_b64 exec, 31
        global_load_dword v165, v6, s[20:21] sc1
        s_mov_b64 exec, 3
        global_load_dword v164, v6, s[18:19] sc1
        s_mov_b64 exec, -1
L_notch:
        """)
E(f"""
    s_waitcnt lgkmcnt(0)
    {"" if OPT["oneb"] else "s_barrier"}
""")
if OPT["bvf"]: E("s_mov_b32 s29, m0")
elif not OPT["t0f"]: E(f"""
    global_load_lds_dwordx4 v7, s[4:5]{NTX}
    s_add_u32 m0, m0, 0x1000
    s_cmp_lg_u32 s33, 0
    global_load_lds_dwordx4 v8, s[4:5]{NTX}
    s_cbranch_scc1 L_x2
    s_add_u32 m0, m0, 0x1000
    s_nop 0
    global_load_lds_dwordx4 v9, s[4:5]{NTX}
L_x2:
    s_barrier
""")
else: E(f"""
    s_mov_b32 s29, m0
    s_cmp_lg_u32 s33, 0
    s_cbranch_scc1 L_x2
    global_load_lds_dwordx4 v7, s[4:5]
    s_add_u32 s29, s29, 0x1000
    v_mov_b32 v7, v8
    v_mov_b32 v8, v9
L_x2:
""")
E(f"""
    v_lshrrev_b32 v5, 3, v1
    v_and_b32 v3, 1, v2
    s_and_b32 s30, s3, 1
    s_lshl_b32 s30, s30, 1
    v_or_b32 v3, s30, v3                    ; sigma
    v_lshlrev_b32 v3, 1, v3
    v_and_b32 v20, 7, v1
    v_xor_b32 v3, v3, v20
    v_lshlrev_b32 v3, 4, v3
    v_lshl_add_u32 v10, v5, 8, v3
    s_sub_u32 s28, s3, 4
    s_lshl_b32 s30, s28, 11
    s_lshl_b32 s31, s{S_HALF}, 7
    s_add_u32 s30, s30, s31
    v_add_u32 v10, s30, v10
    v_add_u32 v11, 0x4000, v10
    s_lshl_b32 s28, s28, 10
    s_add_u32 s34, s16, {128*256}
    s_addc_u32 s35, s17, 0
    s_cmp_lg_u32 s3, 11
    s_cbranch_scc1 L_noc
    v_and_b32 v5, 3, v5
    v_lshlrev_b32 v20, 4, v20
    v_lshl_add_u32 v5, v5, 8, v20
    s_add_u32 s31, s31, {256*256}
    s_mov_b32 m0, {L_C}
    v_add_u32 v5, s31, v5
    global_load_lds_dwordx4 v5, s[16:17]
L_noc:
    s_add_u32 m0, s28, {L_WBV}
""")
for ti, base in enumerate((34, 14)):
    for n in range(2):
        E(f"s_nop 0\nglobal_load_lds_dwordx4 v{10+n}, s[{base}:{base+1}]")
        if not (ti == 1 and n == 1):
            E(f"s_add_u32 m0, m0, 0x2000")
def stage_au():
    E(f"""
    v_lshrrev_b32 v5, 3, v1
    v_bfe_u32 v3, v1, 4, 1
    v_lshlrev_b32 v3, 1, v3
    v_and_b32 v20, 7, v1
    v_xor_b32 v3, v3, v20
    v_lshlrev_b32 v3, 4, v3
    v_lshl_add_u32 v6, v5, 8, v3
    s_lshl_b32 s30, s{S_HALF}, 7
    s_and_b32 s31, s3, 1
    s_lshl_b32 s31, s31, 14
    s_add_u32 s30, s30, s31
    v_add_u32 v6, s30, v6
    v_xor_b32 v7, 64, v6
    v_add_u32 v8, 2048, v6
    v_add_u32 v9, 3072, v7
    v_add_u32 v7, 1024, v7
    s_lshl_b32 s30, s32, 13
    s_add_u32 m0, s30, {L_WAU}
    s_cmp_lt_u32 s32, 2
    s_cselect_b32 s34, s16, s12
    s_cselect_b32 s35, s17, s13
    global_load_lds_dwordx4 v6, s[34:35]
    global_load_lds_dwordx4 v7, s[34:35] offset:1024
    global_load_lds_dwordx4 v8, s[34:35] offset:2048
    global_load_lds_dwordx4 v9, s[34:35] offset:3072
    s_add_u32 m0, m0, 4096
    s_add_u32 s34, s34, 8192
    s_addc_u32 s35, s35, 0
    global_load_lds_dwordx4 v6, s[34:35]
    global_load_lds_dwordx4 v7, s[34:35] offset:1024
    global_load_lds_dwordx4 v8, s[34:35] offset:2048
    global_load_lds_dwordx4 v9, s[34:35] offset:3072
""")
if OPT["aue"] == 1:
    E("s_cmp_eq_u32 s33, 0\ns_cbranch_scc1 L_noau"); stage_au(); E("L_noau:")
if OPT["bvf"]:
    E(f"""
    s_mov_b32 m0, s29
    s_barrier                               ; B0b
    global_load_lds_dwordx4 v7, s[4:5]
    s_add_u32 m0, m0, 0x1000
    s_cmp_lg_u32 s33, 0
    global_load_lds_dwordx4 v8, s[4:5]
    s_cbranch_scc1 L_x2
    s_add_u32 m0, m0, 0x1000
    s_nop 0
    global_load_lds_dwordx4 v9, s[4:5]
L_x2:
    """)
if OPT["t0f"]:
    E(f"""
    s_mov_b32 m0, s29
    s_barrier                               ; B0b
    global_load_lds_dwordx4 v7, s[4:5]
    s_add_u32 m0, m0, 0x1000
    s_nop 0
    global_load_lds_dwordx4 v8, s[4:5]
    """)
if OPT["wgate"] or OPT["ewhen"] in (5, 6, 8, 9):
    E(f"""
    v_mov_b32 v7, 0x1000000
    s_mov_b64 exec, 1
    ds_add_u32 v36, v7 offset:{L_CTR}
    s_mov_b64 exec, -1
    """)
STAMP(1)
E(f"""
    v_mov_b32 v32, {NULL_SRC}
    v_mov_b32 v33, v32
    v_mov_b32 v34, v32
    v_mov_b32 v35, v32
""")
def cover(lo, n): return list(range(lo, n - 8192, 8192)) + [n - 8192]
for o in cover(16384, L_EAEND - L_EA): E(f"ds_write_b128 v40, v[36:39] offset:{o}")
for o in cover(0, SRCB): E(f"ds_write_b128 v31, v[32:35] offset:{L_SRC + o}")
E(f"""
    v_and_b32 v32, 3, v30           ; quarter
    v_bfe_u32 v33, v30, 3, 3
    v_lshrrev_b32 v34, 5, v30
    s_and_b32 s30, s3, 3
    s_add_u32 s30, s30, 16
    s_cmp_ge_u32 s3, 8
    s_cselect_b32 s31, 7, 3
    s_cselect_b32 s29, 0, 6
    s_cselect_b64 vcc, -1, 0
    v_and_b32 v33, s31, v33
    v_mov_b32 v35, s30
    v_cndmask_b32 v34, v34, v35, vcc
    v_lshl_add_u32 v32, v34, 2, v32
    v_bfe_u32 v34, v30, 2, 1
    v_mul_u32_u24 v35, {NSTR - SSTR}, v34
    v_mul_u32_u24 v41, {L_NODE - L_SRC}, v34
    v_mul_u32_u24 v42, {L_SRC + 80*SSTR - L_DUM}, v34
    v_lshlrev_b32 v43, 4, v34
    v_add_u32 v35, {SSTR}, v35
    v_add_u32 v41, {L_SRC}, v41
    v_sub_u32 v42, {L_SRC + 80*SSTR}, v42
    v_sub_u32 v43, 16, v43
    v_lshlrev_b32 v33, 2, v33
    v_mad_u32_u24 v41, v32, v35, v41
    v_mad_u32_u24 v41, v33, v43, v41
    v_lshlrev_b32 v35, 5, v35
    v_lshlrev_b32 v34, 3, v43
    v_sub_u32 v35, v35, v34
    v_cmp_gt_u32 s[48:49], 8, v33
    v_and_b32 v33, 7, v33
    v_add_u32 v34, 2, v33
    v_cmp_gt_u32 s[52:53], s29, v33
    v_cmp_gt_u32 s[54:55], s29, v34
    v_cndmask_b32 v44, v35, 0, s[48:49]
    v_cndmask_b32 v46, v35, 0, s[48:49]
    v_add_u32 v44, v41, v44
    v_lshl_add_u32 v46, v43, 1, v46
    v_add_u32 v46, v41, v46
    v_add_u32 v45, v44, v43
    v_add_u32 v47, v46, v43
    v_cndmask_b32 v44, v42, v44, s[52:53]
    v_cndmask_b32 v45, v42, v45, s[52:53]
    v_cndmask_b32 v46, v42, v46, s[54:55]
    v_cndmask_b32 v47, v42, v47, s[54:55]
    ds_write_b128 v31, v[44:47] offset:{L_LIST}
    s_cmp_ge_u32 s3, 6
    s_cbranch_scc1 L_pf3
    v_mul_u32_u24 v42, {SSTR}, v30
    v_add_u32 v42, {L_SRC}, v42
    v_lshlrev_b32 v41, 2, v30
    ds_write_b32 v41, v42 offset:{L_CNT}
L_pf3:
    v_bfe_u32 v3, v1, 2, 2                  ; r
    v_lshl_add_u32 v5, v2, 3, v3            ; 8g + r
    v_lshrrev_b32 v3, 1, v3
    v_and_b32 v6, 1, v2
    v_lshl_or_b32 v3, v6, 1, v3             ; sigma
    v_xor_b32 v3, s32, v3
    v_lshlrev_b32 v3, 5, v3
    v_lshl_add_u32 v10, v5, 7, v3
    v_and_b32 v3, 3, v1
    v_lshl_add_u32 v10, v3, 3, v10
    s_mul_i32 s31, s33, {L_WAU - L_WBV}
    s_add_u32 s31, s31, {L_WBV}
    v_add_u32 v10, s31, v10
    v_xor_b32 v3, v2, v4
    v_lshlrev_b32 v3, 4, v3
    v_lshl_add_u32 v12, v4, 8, v3
    v_add_u32 v12, {L_X}, v12
    v_xor_b32 v13, 64, v12
    v_xor_b32 v14, 0x80, v12
    v_xor_b32 v15, 0xc0, v12
    s_mul_i32 s30, s{S_HALF}, {G_HALF}
    s_add_u32 s30, s30, s73
    s_lshl_b32 s31, s32, 6
    s_add_u32 s30, s30, s31
    v_lshlrev_b32 v11, 10, v2
    v_lshl_add_u32 v11, v4, 2, v11
    v_add_u32 v11, s30, v11
    s_lshl_b32 s31, s32, 5
    s_add_u32 s31, s31, {L_NODE}
    v_mul_u32_u24 v16, {NSTR}, v4
    v_lshl_add_u32 v16, v2, 3, v16
    v_add_u32 v16, s31, v16
    s_mov_b32 s40, {f32(-LOG2E)}
    s_mov_b32 s42, {f32(2.0**32)}
    s_mov_b32 s44, 0x07060100
    s_mov_b32 s45, 0x07060302
    s_mov_b32 s46, 0x3f80
    v_mov_b32 v17, {f32(2.0**-100)}
    v_mov_b32 v19, 1
    v_mov_b32 v18, 0
""")
def staged():
    if not OPT["tagl"]: get_tag("g", 160)
    if OPT["aue"] == 2:
        E("s_cmp_eq_u32 s33, 0\ns_cbranch_scc1 L_noau"); stage_au(); E("L_noau:")
    if OPT["aue"]: E("s_waitcnt vmcnt(8)\ns_cmp_lg_u32 s33, 0\ns_cbranch_scc1 L_stg")
    E(f"""
    s_waitcnt vmcnt(0)
L_stg:
    s_mov_b64 exec, 1
    ds_add_u32 v18, v19 offset:{L_CTR}
    s_mov_b64 exec, -1
    """)
    STAMP(2)
    lds_wait(L_CTR, 0xff, 8, "g1", sleep=(OPT["sl"] >> 1) & 1)
if OPT["t0f"]:
    E(f"""
    s_waitcnt vmcnt(2)
    s_mov_b64 exec, 1
    ds_add_u32 v18, v19 offset:{L_AU}
    s_mov_b64 exec, -1
    s_or_b32 s30, s33, s{S_SAFE}
    s_cbranch_scc0 L_t0
    """)
staged()
STAMP(3)
NP = 8
RA = 72; RB = RA + 4*NP; RAD = RB + 4*NP
J3N, J12, J3N2, CELL, ROWA, FOUR, L0M, ACC, ENT, CAD = 156, 157, 158, 159, 160, 161, 162, 163, 164, 166
def rec_setup():
    E(f"""
    v_and_b32 v3, 15, v1                    ; j
    v_lshrrev_b32 v2, 4, v1
    v_lshl_add_u32 v{CELL}, v2, 3, v3
    s_lshl_b32 s30, s29, 5
    v_add_u32 v{CELL}, s30, v{CELL}
    s_lshl_b32 s30, s{S_BUCK}, 3
    s_add_u32 s30, s30, {WS_ROW}
    v_lshl_add_u32 v{ROWA}, v{CELL}, 10, s30
    v_cmp_gt_u32 s[66:67], {NP}, v3
    v_cmp_gt_u32 vcc, {NCHUNK}, v{CELL}
    v_mov_b32 v{ENT}, 0
    s_and_b64 s[66:67], s[66:67], vcc
    s_mov_b64 exec, s[66:67]
    global_load_dwordx2 v[{ENT}:{ENT+1}], v{ROWA}, s[20:21] sc1
    s_mov_b64 exec, -1
    v_mul_u32_u24 v{CELL}, {SORTB//4}, v{CELL}
    v_add_u32 v{CELL}, {WS_REC//4}, v{CELL}
    v_mul_u32_u24 v{J12}, 12, v3
    v_mul_u32_u24 v{J3N}, 3, v3
    v_not_b32 v{J3N}, v{J3N}
    v_subrev_u32 v{J3N2}, 48, v{J3N}
    v_subrev_u32 v{L0M}, 1, v3
    v_ashrrev_i32 v{L0M}, 31, v{L0M}            ; all ones in the first lane of each row
    v_mov_b32 v{FOUR}, 4
    """)
WF = 20; XF = 52; AC = 132
def wreads(ks):
    for t in range(2):
        for rd in range(2):
            r = WF + 16*t + 4*ks + 2*rd
            E(f"ds_read_b64_tr_b16 v[{r}:{r+1}], v10 offset:{t*16384 + ks*4096 + rd*512}")
def xread(rt, ks):
    r = XF + 16*rt + 4*ks
    return f"ds_read_b128 v[{r}:{r+3}], v{12+ks} offset:{rt*4096}"
def mf(rt, ks, transposed):
    for t in range(2):
        a = XF + 16*rt + 4*ks; w = WF + 16*t + 4*ks; d = AC + 8*(rt % 3) + 4*t
        c = "0" if ks == 0 else f"v[{d}:{d+3}]"
        if transposed: a, w = w, a
        E(f"v_mfma_f32_16x16x32_bf16 v[{d}:{d+3}], v[{a}:{a+3}], v[{w}:{w+3}], {c}")
def gemm(transposed, finish, before_first):
    for ks in range(3):
        E(xread(0, ks)); wreads(ks)
    E("s_waitcnt lgkmcnt(10)"); mf(0, 0, transposed)
    E(xread(0, 3)); wreads(3)
    E("s_waitcnt lgkmcnt(10)"); mf(0, 1, transposed)
    for ks in range(4): E(xread(1, ks))
    E("s_waitcnt lgkmcnt(9)"); mf(0, 2, transposed)
    for ks in range(4): E(xread(2, ks))
    E("s_waitcnt lgkmcnt(8)"); mf(0, 3, transposed)
    for ks in range(4): E(xread(3, ks))
    if OPT["p0e"]:
        E("s_nop 3"); finish(0)
    E("s_waitcnt lgkmcnt(8)")
    for ks in range(4):
        mf(1, ks, transposed); E(xread(4, ks))
    E(f"""
    s_mov_b64 exec, 1
    ds_add_u32 v18, v19 offset:{L_RD}
    s_mov_b64 exec, -1
    """)
    before_first()
    if not OPT["p0e"]: finish(0)
    E("s_waitcnt lgkmcnt(0)")
    for rt in range(2, 5):
        for ks in range(4): mf(rt, ks, transposed)
        finish(rt-1)
    finish(4)
def pack(rt):
    b = AC + 8*(rt % 3); h = b + 4
    for r in range(4): E(f"v_mul_f32 v{b+r}, s40, v{b+r}")
    for r in range(4): E(f"v_fma_f32 v{h+r}, v{h+r}, s42, v17")
    E(f"""
    v_cvt_pk_bf16_f32 v4, v{b}, v{b+1}
    v_cvt_pk_bf16_f32 v5, v{b+2}, v{b+3}
    v_xor_b32 v2, 0x80008000, v4
    v_xor_b32 v3, 0x80008000, v5
    v_sub_u32_sdwa v{h}, v{h}, sext(v2) dst_sel:DWORD dst_unused:UNUSED_PAD src0_sel:DWORD src1_sel:WORD_0
    v_sub_u32_sdwa v{h+1}, v{h+1}, sext(v2) dst_sel:DWORD dst_unused:UNUSED_PAD src0_sel:DWORD src1_sel:WORD_1
    v_sub_u32_sdwa v{h+2}, v{h+2}, sext(v3) dst_sel:DWORD dst_unused:UNUSED_PAD src0_sel:DWORD src1_sel:WORD_0
    v_sub_u32_sdwa v{h+3}, v{h+3}, sext(v3) dst_sel:DWORD dst_unused:UNUSED_PAD src0_sel:DWORD src1_sel:WORD_1
    """)
    w = (OPT["gp"] >> (4*(4-rt))) & 15 if OPT["gp"] else OPT["gpace"]
    if 0 <= w < 4*rt: E(f"s_waitcnt vmcnt({w})")
    if OPT["pre"] and rt == 5 - OPT["pre"]: lds_wait(L_SCNT + 126*4, 0xff, 4, "pre")
    if rt + 1 in (OPT["eah"], OPT["rih"]): lds_wait(L_EAOK, 0xff, 4, "eah")
    if OPT["ghold"] == rt + 1:
        E("v_mov_b32 v6, v2\nv_mov_b32 v7, v3"); lds_wait(L_CTR, 0xff00, 0x400, "gh", sleep=1); E("v_mov_b32 v2, v6\nv_mov_b32 v3, v7")
    for r in range(4):
        E(f"v_perm_b32 v{h+r}, v{h+r}, v{4 + (r>>1)}, s{44 + (r&1)}")
        if OPT["gwin"] >= 0: E(f"s_waitcnt vmcnt({OPT['gwin']})")
        E(f"global_store_dword v11, v{h+r}, s[20:21] offset:{256*r} sc1")
    if rt < 4: E("v_add_u32 v11, 0x1000, v11")
def fin(rt):
    a = AC + 8*(rt % 3); u = a + 4
    for r in range(4): E(f"v_mul_f32 v{a+r}, s40, v{a+r}")
    for r in range(4): E(f"v_mul_f32 v{u+r}, s42, v{u+r}")
    E(f"""
    v_cvt_pk_bf16_f32 v{a}, v{a}, v{a+1}
    v_cvt_pk_bf16_f32 v{a+1}, v{a+2}, v{a+3}
    v_cvt_f64_f32 v[2:3], v{u}
    v_cvt_f64_f32 v[4:5], v{u+1}
    v_cvt_f64_f32 v[6:7], v{u+2}
    v_cvt_f64_f32 v[8:9], v{u+3}
    ds_write_b64 v16, v[{a}:{a+1}] offset:512
    ds_write2_b64 v16, v[2:3], v[4:5] offset0:0 offset1:16
    ds_write2_b64 v16, v[6:7], v[8:9] offset0:32 offset1:48
    """)
    if rt < 4: E(f"v_add_u32 v16, {16*NSTR}, v16")
E(f"""
    s_cmp_lg_u32 s33, 0
    s_cbranch_scc1 L_gemm2
    s_cmp_lg_u32 s{S_SAFE}, 0
    s_cbranch_scc1 L_nog1
    s_setprio 2
""")
if OPT["t0f"]:
    E("L_t0:\ns_setprio 2")
    lds_wait(L_AU, 0xff, 8, "t0")
    STAMP(3)
    for ks in range(3):
        E(xread(0, ks)); wreads(ks)
    E("s_waitcnt lgkmcnt(10)"); mf(0, 0, False)
    E(xread(0, 3)); wreads(3)
    for ks in range(1, 4):
        E(f"s_waitcnt lgkmcnt({15 - 5*ks})"); mf(0, ks, False)
    E("s_nop 7"); pack(0)
    get_tag("t", 160)
    E(f"""
    s_waitcnt vmcnt(4)
    s_mov_b64 exec, 1
    ds_add_u32 v18, v19 offset:{L_CTR}
    s_mov_b64 exec, -1
    """)
    lds_wait(L_CTR, 0xff, 8, "t1")
    for rt in range(1, 4):
        for ks in range(4): E(xread(rt, ks))
    E("s_waitcnt lgkmcnt(8)")
    for ks in range(4):
        mf(1, ks, False); E(xread(4, ks))
    E(f"""
    s_mov_b64 exec, 1
    ds_add_u32 v18, v19 offset:{L_RD}
    s_mov_b64 exec, -1
    s_nop 3
    """)
    pack(1)
    E("s_waitcnt lgkmcnt(0)")
    for ks in range(4): mf(2, ks, False)
    for rt in range(3, 5):
        for ks in range(4): mf(rt, ks, False)
        pack(rt-1)
    pack(4)
else: gemm(False, pack, lambda: lds_wait(L_CTR, {1: 0x80000, 2: 0xc0000}[OPT["hold"]], 0, "hold", sleep=1, ne=True) if OPT["hold"] else None)
E("s_setprio 0")
if OPT["gate"] or OPT["gate2"] >= 3:
    E(f"""
    s_mov_b64 exec, 1
    ds_add_u32 v18, v19 offset:{L_GST}
    s_mov_b64 exec, -1
    """)
STAMP(4)
if OPT["tagl"]: get_tag("g", 160)
main_consts()
E(f"""
    s_lshl_b32 s30, s{S_P}, 7
    s_add_u32 s30, s30, {WS_FL2}
    v_mov_b32 v60, s30
    v_mov_b32 v62, s{S_TAG}
    v_mov_b32 v63, s{S_TAG+1}
    v_mov_b32 v2, 0
    v_mov_b32 v3, 1
    s_lshl_b32 s30, s32, 13
    s_lshl_b32 s31, s{S_HALF}, 7
    s_add_u32 s30, s30, s31
    s_add_u32 s30, s30, {WS_FL2}
    v_lshl_add_u32 v64, v1, 8, s30
    s_mul_i32 s30, s32, {2560*256}
    s_lshr_b32 s31, s2, 3
    s_mul_i32 s31, s31, {160*128}
    s_add_u32 s30, s30, s31
    v_lshl_add_u32 v65, v1, 7, s30
    {'' if OPT['gpe'] else 'v_min_u32 v65, %d, v65' % (G_HALF - 128)}
    s_mul_i32 s30, s{S_HALF}, {G_HALF}
    v_add_u32 v65, s30, v65
    s_mov_b64 exec, 1
    s_waitcnt vmcnt(0)
    ds_add_rtn_u32 v61, v2, v3 offset:{L_DONE2}
    s_waitcnt lgkmcnt(0)
    v_readfirstlane_b32 s30, v61
    s_cmp_lg_u32 s30, 3
    s_cbranch_scc1 L_nofl
    global_store_dwordx2 v60, v[62:63], s[20:21] sc1
    ds_add_u32 v2, v3 offset:{L_DONE2}
L_nofl:
""")
STAMP(5)
if OPT["p2gate"]:
    E("s_mov_b64 exec, -1")
    lds_wait(L_CTR, 0xff0000, 0x080000, "pg", sleep=OPT["pgs"])
    E("s_mov_b32 exec_hi, 0")
if OPT["p2wait"]: E(f"s_sleep {OPT['p2wait']}")
STAMP(6)
def gready(lab):
    if OPT["gpe"]: E(f"s_cmp_lg_u32 s73, 0\ns_cbranch_scc1 L_gr{lab}")
    if OPT["gpf"]:
        E(f"""
        {"s_bfm_b64 exec, %d, 0" % OPT["gpf"] if OPT["gpf"] < 64 else "s_mov_b64 exec, -1"}
        global_load_dword v35, v65, s[20:21] sc1
        """)
    E(f"""
L_gr{lab}:
    s_mov_b64 exec, 1
    v_mov_b32 v2, 0
    v_mov_b32 v3, 1
    ds_add_u32 v2, v3 offset:{L_GOK}
    """)
E(f"""
; each of the four waves checks the flags of 32 producers of this half: once now, again after the barrier if needed
    s_cmp_eq_u32 s32, 3
    s_cselect_b32 exec_lo, 0x1fffffff, -1
    {"" if OPT["p1st"] else "s_mov_b64 s[66:67], exec"}
    {"" if OPT["p1st"] else "s_branch L_p2n"}
    global_load_dwordx2 v[66:67], v64, s[20:21] sc1
    s_waitcnt vmcnt(0)
    v_cmp_ne_u64 s[66:67], s[{S_TAG}:{S_TAG+1}], v[66:67]
""")
if OPT["gpe"]:
    n = OPT["gpe"]
    E(f"""
    s_mov_b32 s73, 0
    s_lshr_b32 s30, s2, 3
    s_bitcmp1_b32 s66, s30
    s_cbranch_scc1 L_nogpe
    s_mov_b32 s73, 1
    s_bitcmp1_b32 exec_lo, s30
    s_cbranch_scc0 L_nogpe
    """)
    for k in range(0, n, 64):
        E("s_mov_b64 exec, -1")
        if k: E(f"v_add_u32 v65, 8192, v65")
        if n - k < 64: E(f"s_bfm_b64 exec, {n-k}, 0")
        E(f"global_load_dword v{(35, 68, 69)[k//64]}, v65, s[20:21] sc1")
    E("L_nogpe:")
E(f"""
    s_cmp_lg_u64 s[66:67], 0
    s_cbranch_scc1 L_p2n
""")
gready("a")
E("L_p2n:\ns_mov_b64 exec, -1")
STAMP(7)
E(f"""
    s_branch L_b4
L_nog1:
    s_mov_b64 exec, 1
    ds_add_u32 v18, v19 offset:{L_RD}
    s_mov_b64 exec, -1
    s_branch L_rec
L_gemm2:
""")
if not OPT['aul'] and not OPT['aue']: stage_au()
for rt in range(5):
    for ks in range(4): E(xread(rt, ks))
E(f"""
    s_mov_b64 exec, 1
    ds_add_u32 v18, v19 offset:{L_RD}
    s_mov_b64 exec, -1
""")
if OPT['aul']:
    lds_wait(L_RD, 8, 8, "aul"); stage_au()
E(f"""
    s_mov_b64 exec, 1
    s_waitcnt vmcnt(0)
    ds_add_u32 v18, v19 offset:{L_RD}
    s_mov_b64 exec, -1
    s_sub_u32 s29, s3, 4
""")
rec_setup()
lds_wait(L_RD, 0xff, 12, "rd", sleep=(OPT["sl"] >> 2) & 1)
for ks in range(4): wreads(ks)
for ks in range(4):
    E(f"s_waitcnt lgkmcnt({12 - 4*ks})"); mf(0, ks, True)
for rt in range(1, 5):
    for ks in range(4): mf(rt, ks, True)
    fin(rt-1)
fin(4)
if OPT["tagl"]: get_tag("h", 144)
STAMP(4)
E(f"""
    s_branch L_rec
L_sort:
""")
STAMP(1)
E(f"""
    s_mov_b32 s40, {f32(-LOG2E)}
    s_mov_b32 s46, 0x3f80
    s_cmp_lg_u32 s{S_SAFE}, 0
    s_cbranch_scc1 L_sortskip
    v_mov_b32 v21, 1
    v_mov_b32 v20, 3
    s_mov_b32 s31, 52429
    s_movk_i32 s32, -20
    v_lshlrev_b32 v9, 3, v1
    v_lshlrev_b32 v33, 4, v0
    s_mul_i32 s30, s{S_P}, {SORTB}
    s_add_u32 s30, s30, {WS_REC + 4096}
    v_add_u32 v32, s30, v33                 ; copy-out global offset
    v_add_u32 v34, 8192, v32
    s_lshl_b32 s30, s{S_P}, 10
    s_add_u32 s30, s30, {WS_ROW}
    v_lshl_add_u32 v42, v1, 4, s30
    s_mov_b32 s34, {LDS_MAX}
    s_setprio 3
""")
E6 = OPT["ewhen"] in (0, 6, 7)
if OPT["ewhen"] == 6:
    E("v_mov_b32 v19, v3")
    lds_wait(L_CTR, 0xff000000, 0x08000000, "ew")
    E("v_mov_b32 v3, v19\ns_mov_b32 s31, 52429")
    E(f"""
    global_load_dwordx4 v[12:15], v3, s[8:9]{NTE}
    global_load_dword v16, v18, s[8:9]{NTE}
    global_load_dwordx4 v[52:55], v10, s[6:7]{NTE}
    global_load_dwordx4 v[56:59], v10, s[6:7] offset:16{NTE}
    global_load_dwordx2 v[60:61], v11, s[6:7]{NTE}
""")
E(f"""
    s_waitcnt vmcnt({(0 if STG else 1) + OPT['pre'] + 5*E6})
""")
STAMP(2)
FSTAMP(1)
for i in range(5):
    E(f"""
    v_mul_u32_u24 v{22+i}, s31, v{4+i}
    v_lshrrev_b32 v{22+i}, 22, v{22+i}
    v_lshlrev_b32 v{22+i}, 2, v{22+i}        ; bucket*4
    ds_add_rtn_u32 v{27+i}, v{22+i}, v20 offset:{L_SCNT}
    """)
E(f"""
    s_mov_b64 exec, 1
    s_cmp_lg_u32 s3, 0
    s_cbranch_scc1 L_notag
    {"s_waitcnt lgkmcnt(0)" if STG else "s_waitcnt vmcnt(%d)" % (OPT['pre'] + 5*E6)}
    {"v_mov_b32 v43, s65" if STG else ""}
""")
if OPT["probe"] == 12: STAMP(12)
E(f"""
    ds_write_b32 v48, v43 offset:{L_SCNT + 125*4}
L_notag:
    ds_add_u32 v48, v21 offset:{L_SCNT + 127*4}  ; arrival count of the four waves (LDS runs a wave's ops in order)
    s_mov_b64 exec, -1
""")
if OPT["ewhen"] == 1: E(f"""
    global_load_dwordx4 v[12:15], v3, s[8:9]{NTE}
    global_load_dword v16, v18, s[8:9]{NTE}
    global_load_dwordx4 v[52:55], v10, s[6:7]{NTE}
    global_load_dwordx4 v[56:59], v10, s[6:7] offset:16{NTE}
    global_load_dwordx2 v[60:61], v11, s[6:7]{NTE}
""")
E(f"""
    {"s_mov_b32 s65, 0" if OPT["ewhen"] == 8 else ""}
L_s1:
    ds_read_b32 v38, v48 offset:{L_SCNT + 127*4}
    {f"ds_read_b32 v39, v48 offset:{L_CTR}" if OPT["ewhen"] == 8 else ""}
    ds_read_b64 v[36:37], v9 offset:{L_SCNT}
    s_sub_u32 s34, s34, 1
    s_cbranch_scc1 L_s1d
    s_waitcnt lgkmcnt(0)
""")
if OPT["ewhen"] == 8: E(f"""
    v_readfirstlane_b32 s30, v39
    s_lshr_b32 s30, s30, 27
    s_cmp_le_u32 s30, s65
    s_cbranch_scc1 L_e8a
    s_mov_b32 s65, 1
    global_load_dwordx4 v[12:15], v3, s[8:9]{NTE}
    global_load_dword v16, v18, s[8:9]{NTE}
    global_load_dwordx4 v[52:55], v10, s[6:7]{NTE}
    global_load_dwordx4 v[56:59], v10, s[6:7] offset:16{NTE}
    global_load_dwordx2 v[60:61], v11, s[6:7]{NTE}
L_e8a:
""")
E(f"""
    v_readfirstlane_b32 s30, v38
    s_cmp_lg_u32 s30, 4
    s_cbranch_scc1 L_s1
L_s1d:
""")
FSTAMP(2)
E(f"""
    v_add3_u32 v39, v36, v37, 2
    v_add3_u32 v38, v36, v37, 2
    v_readlane_b32 s{S_TAGRAW}, v37, 62
""")
fill = []
for i in range(5):
    fill += [f"v_mad_i32_i24 v{4+i}, v{22+i}, s32, v{4+i}", f"v_lshlrev_b32 v{4+i}, 24, v{4+i}"]
for k, m in enumerate(SCAN):
    E(f"v_add_u32_dpp v39, v39, v39 {m}")
    for x in fill[2*k:2*k+2]: E(x)
E(f"""
    v_sub_u32 v40, v39, v38
    v_add3_u32 v41, v40, v36, 1
    s_mov_b32 s30, {L_SORT}
    v_lshl_add_u32 v38, v40, 2, s30
    v_lshl_add_u32 v39, v41, 2, s30
    ds_write_b64 v9, v[38:39] offset:{L_SOFF}
""")
for i in range(5):
    E(f"ds_read_b32 v{22+i}, v{22+i} offset:{L_SOFF}")
finish_tag()
if OPT["ewhen"] in (9, 10):
    if OPT["ewhen"] == 9:
        E("v_mov_b32 v19, v3"); lds_wait(L_CTR, 0xff000000, 0x08000000, "ew"); E("v_mov_b32 v3, v19")
    E(f"""
    global_load_dwordx4 v[12:15], v3, s[8:9]{NTE}
    global_load_dword v16, v18, s[8:9]{NTE}
    global_load_dwordx4 v[52:55], v10, s[6:7]{NTE}
    global_load_dwordx4 v[56:59], v10, s[6:7] offset:16{NTE}
    global_load_dwordx2 v[60:61], v11, s[6:7]{NTE}
""")
E(f"""
    s_cmp_lg_u32 s3, 0
    s_cbranch_scc1 L_nopub
    s_and_b32 s35, s{S_TAG+1}, 0xff000000
    v_mov_b32 v45, s{S_TAG}
    v_mov_b32 v47, s{S_TAG}
    v_lshl_or_b32 v44, v36, 12, v40
    v_lshl_or_b32 v46, v37, 12, v41
    v_or_b32 v44, s35, v44
    v_or_b32 v46, s35, v46
    global_store_dwordx4 v42, v[44:47], s[20:21] sc1
    {"s_waitcnt vmcnt(1)" if OPT["ewhen"] in (0, 1, 6, 7, 9, 10) else ""}
    s_branch {"L_pub" if OPT["ewhen"] in (0, 1, 6, 7, 9, 10) else "L_nochk"}
L_nopub:
    s_cmp_lg_u32 s3, 1
    s_cbranch_scc1 L_nochk
    v_mov_b32 v44, s{S_TAG+1}
    s_mov_b32 exec_hi, 0x7fffffff
    ds_add_u32 v38, v44
    ds_add_u32 v39, v44
    s_mov_b32 exec_hi, -1
L_nochk:
""")
if OPT["ewhen"] == 8:
    E("s_cmp_lg_u32 s65, 0\ns_cbranch_scc1 L_e8b\nv_mov_b32 v19, v3")
    lds_wait(L_CTR, 0xff000000, 0x08000000, "ew")
    E(f"""
    v_mov_b32 v3, v19
    global_load_dwordx4 v[12:15], v3, s[8:9]{NTE}
    global_load_dword v16, v18, s[8:9]{NTE}
    global_load_dwordx4 v[52:55], v10, s[6:7]{NTE}
    global_load_dwordx4 v[56:59], v10, s[6:7] offset:16{NTE}
    global_load_dwordx2 v[60:61], v11, s[6:7]{NTE}
L_e8b:
""")
if 3 <= OPT["ewhen"] <= 5:
    E("v_mov_b32 v19, v3")
    if OPT["ewhen"] == 3: lds_wait(L_CTR, 0xff, 8, "ew")
    elif OPT["ewhen"] == 5: lds_wait(L_CTR, 0xff000000, 0x08000000, "ew")
    else: lds_wait(L_CTR, 0xff, 0, "ew", ne=True)
    E("v_mov_b32 v3, v19")
if 2 <= OPT["ewhen"] <= 5: E(f"""
    global_load_dwordx4 v[12:15], v3, s[8:9]{NTE}
    global_load_dword v16, v18, s[8:9]{NTE}
    global_load_dwordx4 v[52:55], v10, s[6:7]{NTE}
    global_load_dwordx4 v[56:59], v10, s[6:7] offset:16{NTE}
    global_load_dwordx2 v[60:61], v11, s[6:7]{NTE}
""")
E(f"""
    s_waitcnt vmcnt(0)
L_pub:
""")
if OPT["eah"]:
    E(f"""
    s_mov_b64 exec, 1
    ds_add_u32 v48, v21 offset:{L_EAOK}
    s_mov_b64 exec, -1
    """)
STAMP(4)
FSTAMP(3)
for i in range(5): E(f"v_lshl_or_b32 v{4+i}, v{12+i}, 8, v{4+i}")
E("s_waitcnt lgkmcnt(0)")
for i in range(5):
    E(f"""
    v_lshl_add_u32 v{27+i}, v{27+i}, 2, v{22+i}
    v_add3_u32 v{12+i}, v{52+2*i}, v{53+2*i}, v{4+i}
    ds_write2_b32 v{27+i}, v{52+2*i}, v{53+2*i} offset0:2 offset1:3
    ds_write_b32 v{27+i}, v{4+i} offset:4
    ds_sub_u32 v{22+i}, v{12+i}
    """)
E(f"""
    s_mov_b64 exec, 1
    ds_add_u32 v48, v21 offset:{L_SCNT + 126*4}
    s_mov_b64 exec, -1
""")
FSTAMP(4)
E(f"""
    s_mov_b32 s34, {LDS_MAX}
L_s2:
    ds_read_b32 v38, v48 offset:{L_SCNT + 126*4}
    {f"ds_read_b32 v39, v48 offset:{L_CTR}" if OPT["wgate"] else ""}
    ds_read_b128 v[72:75], v33 offset:{L_SORT}
    s_sub_u32 s34, s34, 1
    s_cbranch_scc1 L_s2d
    s_waitcnt lgkmcnt(1)
    v_readfirstlane_b32 s30, v38
""")
if OPT["wgate"]:
    E(f"""
    v_readfirstlane_b32 s31, v39
    s_lshr_b32 s31, s31, 24
    s_add_u32 s30, s30, s31
    """)
E(f"""
    s_cmp_lg_u32 s30, {12 if OPT["wgate"] else 4}
    s_cbranch_scc1 L_s2
L_s2d:
""")
FSTAMP(5)
E(f"""
    ds_read_b128 v[76:79], v33 offset:{L_SORT + 4096}
    ds_read_b128 v[80:83], v33 offset:{L_SORT + 8192}
    ds_read_b128 v[84:87], v33 offset:{L_SORT + 12288}
    s_waitcnt lgkmcnt(3)
    global_store_dwordx4 v32, v[72:75], s[20:21] offset:-4096 sc1
    s_waitcnt lgkmcnt(2)
    global_store_dwordx4 v32, v[76:79], s[20:21] sc1
    s_waitcnt lgkmcnt(1){f" vmcnt({OPT['rpace']})" if OPT['rpace'] >= 0 else ""}
    global_store_dwordx4 v34, v[80:83], s[20:21] offset:-4096 sc1
    s_cmp_eq_u32 s3, 3
    s_cselect_b32 exec_hi, 0, -1
    s_waitcnt lgkmcnt(0){f" vmcnt({OPT['rpace']})" if OPT['rpace'] >= 0 else ""}
    global_store_dwordx4 v34, v[84:87], s[20:21] sc1
    s_mov_b32 exec_hi, -1
""")
if OPT["rih"]:
    E(f"""
    s_mov_b64 exec, 1
    ds_add_u32 v48, v21 offset:{L_EAOK}
    s_mov_b64 exec, -1
    """)
FSTAMP(6)
for k in range(4): E(f"ds_write_b128 v33, v[48:51] offset:{L_SORT + 4096*k}")
STAMP(3)
FSTAMP(7)
E(f"""
    s_branch L_sortdone
L_sortskip:
    s_waitcnt vmcnt(0)
L_sortdone:
    s_mov_b32 s29, s3
""")
rec_setup()
E(f"""
L_rec:
""")
if OPT["mcl"]: E(f"s_cmp_ge_u32 s3, 8\ns_cbranch_scc1 L_nomc")
lds_wait(L_CTR, 0xff, 8, "r0")
if OPT["mcl"] != 2: main_consts()
E("L_nomc:")
STAMP(5)
E(f"""
    s_cmp_ge_u32 s3, 4
    s_cbranch_scc1 L_nod2
    v_mov_b32 v2, 0
    v_mov_b32 v3, 0x100
    s_mov_b64 exec, 1
    s_waitcnt vmcnt(0)
    ds_add_u32 v2, v3 offset:{L_CTR}
    s_mov_b64 exec, -1
L_nod2:
    s_cmp_lg_u32 s{S_SAFE}, 0
    s_cbranch_scc1 L_recskip
    s_lshr_b32 s35, s{S_TAG+1}, 24
    s_mov_b64 exec, s[66:67]
    s_mov_b32 s34, {POLL_MAX}
    s_branch L_p1c
L_p1:
    global_load_dwordx2 v[{ENT}:{ENT+1}], v{ROWA}, s[20:21] sc1
L_p1c:
    s_sub_u32 s34, s34, 1
    s_cbranch_scc1 L_toobig
    s_waitcnt vmcnt(0)
    v_cmp_ne_u32 vcc, s{S_TAG}, v{ENT+1}
    v_cmp_ne_u32_sdwa s[48:49], v{ENT}, s35 src0_sel:BYTE_3 src1_sel:DWORD
    s_or_b64 exec, vcc, s[48:49]
    s_cbranch_scc1 L_p1
    s_mov_b64 exec, -1
""")
STAMP(6)
if OPT["cnt"]: E(f"s_sub_u32 s{ST0+2}, {POLL_MAX+1}, s34\ns_mov_b32 s34, {POLL_MAX}")
E(f"""
    v_and_b32 v{CAD}, 0xfff, v{ENT}
    v_bfe_u32 v{ENT}, v{ENT}, 12, 12            ; 3*count
    v_add_lshl_u32 v{CAD}, v{CAD}, v{CELL}, 2
    v_cmp_ne_u32 vcc, 0, v{ENT}
    s_sub_u32 s30, 0, s{S_TAG+1}
    v_mov_b32 v2, s30
    v_cndmask_b32 v{ENT+1}, 0, v2, vcc
    v_cmp_lt_u32 vcc, 96, v{ENT}
    v_cmp_lt_u32 s[68:69], 48, v{ENT}
    s_cbranch_vccnz L_toobig
""")
for p in range(NP):
    E(f"""
    v_add_co_u32_dpp v2, vcc, v{ENT}, v{J3N} row_newbcast:{p} row_mask:0xf bank_mask:0xf
    v_add_u32_dpp v{RAD+p}, v{CAD}, v{J12} row_newbcast:{p} row_mask:0xf bank_mask:0xf
    s_mov_b64 s[{48+2*p}:{49+2*p}], vcc
    """)
lds_wait(L_CTR, 0xff00, 0x400, "r1", sleep=(OPT["sl"] >> 2) & 1)
if OPT["gate"]: lds_wait(L_GST, 0xff, 4, "gt")
if OPT["gate2"] == 1 and not OPT["split"]:
    if not OPT["allg"]: E("s_cmp_lt_u32 s3, 4\ns_cbranch_scc1 L_wd_g2")
    lds_wait(L_DONE2, 0xff, 5, "g2")
if OPT["gate2"] == 3:
    E("s_cmp_lt_u32 s3, 4\ns_cbranch_scc1 L_wd_g2")
    lds_wait(L_GST, 0xff, 4, "g2")
if OPT["gate2"] in (2, 4):
    E(f"""
    s_cmp_lt_u32 s3, 4
    s_cbranch_scc1 L_g2d
    s_mov_b32 s31, {POLL_MAX}
L_g2:
    ds_read_b128 v[60:63], v2 offset:{L_CTR}
    {f"ds_read_b32 v61, v2 offset:{L_GST}" if OPT["gate2"] == 4 else ""}
    s_sub_u32 s31, s31, 1
    s_cbranch_scc1 L_g2d
    s_waitcnt lgkmcnt(0)
    v_readfirstlane_b32 s30, v62
    v_readfirstlane_b32 s28, v60
    v_readfirstlane_b32 s29, v61
    s_cmp_eq_u32 s30, 5
    s_cbranch_scc1 L_g2d
    {"s_cmp_lg_u32 s29, 4" if OPT["gate2"] == 4 else ""}
    {"s_cbranch_scc1 L_g2" if OPT["gate2"] == 4 else ""}
    s_and_b32 s28, s28, 0xc0000
    s_cbranch_scc0 L_g2
L_g2d:
    """)
E(f"""
    s_or_b32 s68, s68, s69
    s_lshr_b32 s69, s68, 16
    s_or_b32 s68, s68, s69
""")
def mask2(p): return f"v_add_co_u32_dpp v2, vcc, v{ENT}, v{J3N2} row_newbcast:{p} row_mask:0xf bank_mask:0xf"
def loads(ps, lab):
    E(f"s_and_b32 s30, s68, {sum(1 << p for p in ps)}\ns_cbranch_scc0 L_nx{lab}")
    for p in ps:
        r = RB + 4*p
        E(f"""
        s_bitcmp1_b32 s68, {p}
        s_cbranch_scc0 L_nx{lab}{p}
        {mask2(p)}
        s_mov_b64 exec, vcc
        global_load_dwordx4 v[{r}:{r+3}], v{RAD+p}, s[20:21] offset:192 sc1
        s_mov_b64 exec, -1
L_nx{lab}{p}:
        """)
    E(f"L_nx{lab}:")
    for p in ps:
        r = RA + 4*p
        E(f"""
        s_mov_b64 exec, s[{48+2*p}:{49+2*p}]
        global_load_dwordx4 v[{r}:{r+3}], v{RAD+p}, s[20:21]{SC1 if (OPT["rsc1"] or lab != "m") else ""}
        """)
    E("s_mov_b64 exec, -1")
SP = OPT["split"]
GROUPS = {0: ((0,1,2,3),(4,5),(6,7)), 4: ((0,1,2,3),(4,5),(6,7)), 5: ((0,1,2),(3,4),(5,6,7)), 6: ((0,1,2,3),(4,5),(6,7)), 3: ((0,1,2),(3,4,5),(6,7)), 2: ((0,1),(2,3,4,5),(6,7)), 1: ((0,),(1,2,3,4),(5,6,7))}[SP]
if OPT['grp'] == 1: GROUPS = ((0,1),(2,3,4),(5,6,7))
if OPT['grp'] == 2: GROUPS = ((0,1),(2,3),(4,5),(6,7))
if OPT['grp'] == 3: GROUPS = (tuple(range(SP)), tuple(range(SP, NP)))
if OPT['grp'] == 4: GROUPS = ((0,1,2),(3,4,5,6),(7,))
loads(range(SP or NP), "m")
if OPT["eag"]:
    E(f"""
    v_mov_b32 v2, 0
    ds_read_b32 v3, v2 offset:{L_DONE2}
    s_waitcnt lgkmcnt(0)
    v_readfirstlane_b32 s73, v3
    s_cmp_lg_u32 s73, 5
    s_cbranch_scc1 L_neag
    """)
    loads(range(SP, NP), "e")
    E("L_neag:")
def issued():
    if OPT["p2gate"]:
        E(f"""
        v_mov_b32 v2, 0
        v_mov_b32 v3, 0x10000
        s_mov_b64 exec, 1
        ds_add_u32 v2, v3 offset:{L_CTR}
        s_mov_b64 exec, -1
        """)
if OPT["mcl"]:
    if OPT["mcl"] == 1: E(f"s_cmp_lt_u32 s3, 8\ns_cbranch_scc1 L_nomc2")
    main_consts(28); E("L_nomc2:")
if not OPT["sig"]: issued()
STAMP(7)
def rank(r, m):
    E(f"""
    s_mov_b64 exec, {m}
    v_mul_u32_u24_sdwa v{r}, v{FOUR}, v{r+1} dst_sel:DWORD dst_unused:UNUSED_PAD src0_sel:DWORD src1_sel:BYTE_3
    v_and_b32 v{r+1}, {OPT['srcmask']}, v{r+1}
    ds_add_rtn_u32 v{r}, v{r}, v{FOUR} offset:{L_CNT}
    """)
def put(r, m):
    E(f"""
    s_mov_b64 exec, {m}
    v_lshlrev_b32 v2, 1, v{r}
    ds_write_b32 v{r}, v{r+1}
    ds_write_b64 v2, v[{r+2}:{r+3}] offset:{L_EA - 2*L_SRC}
    """)
retries = []
pending = []
for gi, grp in enumerate(GROUPS):
    bits = sum(1 << p for p in grp); m32 = bits | (bits << 16)
    if SP and grp[0] == SP:
        if OPT["eag"]: E("s_cmp_eq_u32 s73, 5\ns_cbranch_scc1 L_eagd")
        lds_wait(L_DONE2, 0xff, 5, "g2", sleep=(OPT["sl"] >> 3) & 1)
        loads(range(SP, NP), "n")
        E("L_eagd:")
        if OPT["sig"] == 9:
            if OPT["sigw"]: E(f"s_waitcnt vmcnt({NP - SP - OPT['sigw']})")
            issued()
    last = NP if (not SP or grp[0] >= SP) else SP
    first_ = 0 if (not SP or grp[0] < SP) else SP
    E(f"""
L_ck{gi}:
    s_mov_b32 vcc_lo, {m32}
    s_mov_b32 vcc_hi, {m32}
    v_cndmask_b32 v{ACC}, 0, v{ENT+1}, vcc
    s_and_b32 s30, s68, {bits}
    s_cbranch_scc1 L_xa{gi}
L_xb{gi}:
    """)
    def xacc():
        E(f"L_xa{gi}:\ns_waitcnt vmcnt({last - first_})")
        for p in grp:
            r = RB + 4*p
            E(f"""
            {mask2(p)}
            s_mov_b64 exec, vcc
            v_add3_u32 v{ACC}, v{ACC}, v{r+1}, v{r+2}
            v_add_u32 v{ACC}, v{ACC}, v{r+3}
            s_mov_b64 exec, -1
            """)
        E(f"s_branch L_xb{gi}")
    emit_to(outofline, xacc)
    for p in grp:
        r = RA + 4*p
        E(f"""
        s_waitcnt vmcnt({last-1-p})
        s_mov_b64 exec, s[{48+2*p}:{49+2*p}]
        v_and_b32 v{r}, v{r}, v{L0M}
        v_add3_u32 v{ACC}, v{ACC}, v{r+2}, v{r+3}
        v_add3_u32 v{ACC}, v{ACC}, v{r}, v{r+1}
        """)
    E("s_mov_b64 exec, -1\ns_nop 0")
    for k in (1, 2, 4, 8):
        E(f"v_add_u32_dpp v{ACC}, v{ACC}, v{ACC} row_ror:{k} row_mask:0xf bank_mask:0xf")
        if k < 8: E("s_nop 1")
    E(f"v_cmp_ne_u32 vcc, 0, v{ACC}\ns_cbranch_vccnz L_rt{gi}")
    if OPT["rst"]: STAMP(1+gi)
    if OPT["sig"] == gi + 1: issued()
    def retry():
        E(f"L_rt{gi}:\ns_sub_u32 s34, s34, 1\ns_cbranch_scc1 {'L_toobig' if (gi < OPT['sig'] if OPT['sig'] != 9 else grp[0] < SP) else 'L_giveup'}")
        loads(grp, f"r{gi}_")
        E(f"s_waitcnt vmcnt(0)\ns_branch L_ck{gi}")
    emit_to(outofline, retry)
    for p in grp: rank(RA + 4*p, f"s[{48+2*p}:{49+2*p}]")
    E(f"s_and_b32 s30, s68, {bits}\ns_cbranch_scc1 L_ya{gi}\nL_yb{gi}:")
    def xput():
        E(f"L_ya{gi}:")
        for p in grp:
            r = RB + 4*p
            E(f"""
            s_bitcmp1_b32 s68, {p}
            s_cbranch_scc0 L_yn{p}
            s_mov_b64 exec, -1
            {mask2(p)}
            """)
            rank(r, "vcc")
            E("s_waitcnt lgkmcnt(0)")
            put(r, "vcc")
            E(f"L_yn{p}:")
        E(f"s_branch L_yb{gi}")
    emit_to(outofline, xput)
    for k, p in enumerate(grp):
        E(f"s_waitcnt lgkmcnt({len(grp) - 1 - k + 2*k})")
        put(RA + 4*p, f"s[{48+2*p}:{49+2*p}]")
    E("s_mov_b64 exec, -1")
E(f"""
    {f"s_sub_u32 s{ST0+4}, {POLL_MAX+1}, s34" if OPT["cnt"] else ""}
    s_branch L_b4
L_toobig:
    s_mov_b64 exec, -1
""")
issued()
E(f"""
L_giveup:
    v_mov_b32 v2, 0
    ds_write_b32 v2, v{FOUR} offset:{L_FLAG}
L_recskip:
    s_waitcnt vmcnt(0)
""")
if OPT["mcl"]: main_consts()
E(f"""
; ---------------- all waves: main loop
L_b4:
    s_setprio {OPT["p0"] if OPT["prio"] == 2 else 0}
    s_mul_i32 s30, s{S_HALF}, {G_HALF}
    {f"s_add_u32 s30, s30, {WS0}" if WS0 else ""}
    s_add_u32 s36, s20, s30
    s_addc_u32 s37, s21, 0
    s_mov_b32 s38, {OPT['nrec'] or G_HALF}
    s_mov_b32 s39, 0x20000
    s_mov_b32 s44, 128
    s_mov_b32 s45, 128
    ds_read_b128 v[{WS4}:{WS4+3}], v{LP}
    ds_read_b64 v[{AG}:{AG+1}], v{LP} offset:64
    ds_read_b64 v[{WN2}:{WN2+1}], v{LP} offset:72
    ds_read_b32 v{WE}, v{LP+1}
    s_waitcnt lgkmcnt(0)
    v_lshl_add_u64 v[{AG}:{AG+1}], v[{AG}:{AG+1}], 0, v[{LN8}:{LN8+1}]
    v_lshl_add_u32 v{WE}, v{WE}, 1, v{EAC}
""")
assert OPT["gpe"] <= 64 and not OPT["ptime"]
if OPT["warm"]:
    E(f"""
    s_barrier
    s_lshr_b32 s30, s2, 3
    s_mul_i32 s30, s30, 98304
    v_lshl_add_u32 v2, v0, 7, s30
    buffer_load_dword v3, v2, s[36:39], 0 offen sc1
    s_waitcnt vmcnt(0)
    s_sleep 40
    """)
STAMP(8)
E(f"""
    s_barrier                               ; B4
    s_cmp_lg_u32 s{S_SAFE}, 0
    s_cbranch_scc1 L_safe
    ds_read_b128 v[{T}:{T+3}], v{WS4}
    ds_read_b128 v[{T+4}:{T+7}], v{WS4+1}
    ds_read_b64 v[{XA}:{XA+1}], v{AG} offset:512
    ds_read_b64 v[{EA}:{EA+1}], v{WE}
    s_lshr_b32 s30, s3, 2
    s_cmp_lg_u32 s30, 1
    s_cbranch_scc1 L_nopoll
    s_mov_b64 exec, s[66:67]
    s_cbranch_execz L_p2e
    s_mov_b32 s31, {POLL_MAX}
L_p2:
    global_load_dwordx2 v[66:67], v64, s[20:21] sc1
    s_sub_u32 s31, s31, 1
    s_cbranch_scc1 L_p2d
    s_waitcnt vmcnt(0)
    v_cmp_ne_u64 vcc, s[{S_TAG}:{S_TAG+1}], v[66:67]
    s_and_b64 exec, exec, vcc
    s_cbranch_scc0 L_p2d
    {f"s_sleep {OPT['p2sleep']}" if OPT['p2sleep'] else ""}
    s_branch L_p2
L_p2d:
""")
gready("b")
E(f"""
L_p2e:
    s_mov_b64 exec, -1
L_nopoll:
    s_cmp_lt_u32 s3, 8
    s_cbranch_scc1 L_nobuild
; waves 8..11: place the edges past the 24th of every node: blocks of 8 (two tiles), then remainders of up to 4
    v_lshlrev_b32 v2, 3, v1
    v_mov_b32 v3, 0
    ds_read_b64 v[72:73], v2 offset:{L_CNT}
    ds_read_b32 v79, v3 offset:{L_FLAG}
    v_mul_u32_u24 v74, {2*SSTR}, v1
    v_add_u32 v74, {L_SRC + 96}, v74
    v_add_u32 v75, {SSTR}, v74
    v_mul_u32_u24 v82, {2*NSTR}, v1
    s_and_b32 s32, s3, 1
    s_mul_i32 s30, s32, {NSTR}
    s_add_u32 s30, s30, {L_NODE}
    v_add_u32 v82, s30, v82
    v_mov_b32 v83, v82
    s_mul_i32 s30, s32, {SSTR}
    v_add_u32 v80, s30, v74
    v_add_u32 v81, 16, v80
    s_waitcnt lgkmcnt(0)
    v_sub_u32 v72, v72, v74 clamp
    v_sub_u32 v73, v73, v75 clamp
    v_max_u32 v76, v72, v73
    v_cmp_lt_u32 vcc, 160, v76
    v_cmp_ne_u32 s[48:49], 0, v79
    v_add_u32 v74, 12, v72
    v_add_u32 v75, 12, v73
    s_or_b64 vcc, vcc, s[48:49]
    s_cbranch_scc1 L_bad
    v_add_u32 v72, 28, v72
    v_add_u32 v73, 28, v73
    v_lshrrev_b32 v74, 5, v74
    v_lshrrev_b32 v75, 5, v75
    v_lshrrev_b32 v72, 5, v72
    v_lshrrev_b32 v73, 5, v73
    v_sub_u32 v72, v72, v74
    v_sub_u32 v73, v73, v75
    v_lshl_or_b32 v72, v72, 16, v74
    v_lshl_or_b32 v73, v73, 16, v75
    v_add_u32 v76, v72, v73
    v_add_u32 v77, v72, v73
""")
scan(77)
E(f"""
    s_cmp_eq_u32 s32, 0
    s_cselect_b64 vcc, -1, 0
    v_readlane_b32 s30, v77, 63
    v_cndmask_b32 v76, v73, v76, vcc
    v_cndmask_b32 v72, v73, v72, vcc
    v_sub_u32 v77, v77, v76
    s_and_b32 s50, s30, 0xffff
    s_add_u32 s31, s50, 3
    s_lshr_b32 s31, s31, 2
    s_sub_u32 s51, 0, s50
    s_and_b32 s51, s51, 3                   ; spare quarters of the last such slot take remainders
    s_lshr_b32 s30, s30, 16
    s_add_u32 s30, s30, 3
    s_sub_u32 s30, s30, s51
    s_lshr_b32 s30, s30, 2
    s_lshl_b32 s33, s31, 1
    s_add_u32 s33, s33, s30
    s_cmp_gt_u32 s33, 104
    s_cbranch_scc1 L_bad
    s_lshl_b32 s30, s30, 8
    s_or_b32 s29, s30, s31
    v_and_b32 v74, 0xffff, v72
    v_and_b32 v76, 0xffff, v77
    s_mov_b32 s34, {L_LISTC}
    s_mov_b32 s35, {L_LIST + 136}
""")
def slotaddr():
    E(f"""
    v_subrev_u32 v78, 32, v76
    v_bfe_u32 v79, v76, 2, 2
    v_lshl_add_u32 v79, v79, 10, s34
    v_lshrrev_b32 v84, 5, v78
    v_lshl_add_u32 v79, v84, 7, v79
    v_bfe_u32 v84, v78, 4, 1
    v_lshl_add_u32 v79, v84, 3, v79
    v_lshrrev_b32 v84, 2, v76
    v_cmp_gt_u32 vcc, 32, v76
    v_lshl_add_u32 v84, v84, 9, s35
    v_and_b32 v78, 3, v76
    v_cndmask_b32 v79, v79, v84, vcc
    v_lshl_add_u32 v79, v78, 4, v79
    """)
E("""
    s_cmp_lt_u32 s3, 10
    s_cbranch_scc1 L_brem
L_bf:
    v_cmp_ne_u32 vcc, 0, v74
    s_and_b64 exec, exec, vcc
    s_cbranch_execz L_bfd
""")
slotaddr()
E(f"""
    ds_write_b64 v79, v[80:81]
    ds_write_b64 v79, v[82:83] offset:64
    v_add_u32 v80, 32, v80
    v_add_u32 v81, 32, v81
    v_add_u32 v76, 1, v76
    v_subrev_u32 v74, 1, v74
    s_branch L_bf
L_brem:
    v_lshl_add_u32 v80, v74, 5, v80
    v_add_u32 v81, 16, v80
    v_lshrrev_b32 v77, 16, v77
    s_sub_u32 s52, 0, s31
    s_and_b32 s52, s52, 3
    s_add_u32 s53, s31, s52
    s_lshl_b32 s52, s52, 3
    v_subrev_u32 v73, s51, v77              ; j' = j - spare
    v_subrev_u32 v74, s52, v73
    v_lshrrev_b32 v76, 3, v73
    v_add_u32 v76, s31, v76
    v_and_b32 v75, 4, v73
    v_lshrrev_b32 v78, 5, v74
    v_lshl_add_u32 v78, v78, 2, s53
    v_bfe_u32 v79, v74, 2, 2
    v_add_u32 v78, v78, v79
    v_cmp_gt_u32 vcc, s52, v73
    v_lshrrev_b32 v74, 2, v74
    v_and_b32 v74, 4, v74
    v_cndmask_b32 v76, v78, v76, vcc        ; slot
    v_cndmask_b32 v75, v74, v75, vcc
    v_and_b32 v78, 3, v73
    v_cmp_gt_u32 s[54:55], s51, v77
    v_lshl_add_u32 v76, v76, 2, v78
    v_add_u32 v78, s50, v77
    v_cndmask_b32 v76, v76, v78, s[54:55]
""")
slotaddr()
E(f"""
    v_cmp_lt_u32 vcc, 0xffff, v72
    v_add_u32 v75, v79, v75
    s_andn2_b64 exec, vcc, s[54:55]
    ds_write2_b32 v75, v80, v82 offset0:0 offset1:16
    s_and_b64 exec, vcc, s[54:55]
    ds_write_b64 v79, v[80:81]
    ds_write_b64 v79, v[82:83] offset:64
L_bfd:
    s_mov_b64 exec, -1
    s_mov_b32 s56, s29
    s_cmp_eq_u32 s3, 8
    s_cselect_b32 s29, s29, 0
    s_add_u32 s29, s29, 0x10000
    s_branch L_built
L_bad:
    s_mov_b32 s56, 0
    s_mov_b32 s29, 0x1010000
L_built:
    v_mov_b32 v2, s29
    s_mov_b64 exec, 1
    ds_add_u32 v3, v2 offset:{L_NST}
    s_add_u32 s30, s{S_P}, s3
    s_cmp_lg_u32 s30, 8
    s_cbranch_scc1 L_notw
    v_mov_b32 v2, s{S_TAG}
    v_mov_b32 v3, {WS_TAG}
    global_store_dword v3, v2, s[20:21] sc1
L_notw:
    s_mov_b64 exec, -1
    v_mov_b32 v2, 0
    s_mov_b32 s30, s56
    s_and_b32 s31, s30, 0xff
    s_bfe_u32 s30, s30, 0x80008
    s_and_b32 s28, s3, 3
    s_sub_u32 s32, 0, s31
    s_and_b32 s32, s32, 3
    s_add_u32 s33, s28, s32
    s_sub_i32 s33, s33, 4
    s_lshl_b32 s29, s33, 1
    s_sub_i32 s29, s30, s29
    s_max_i32 s29, s29, 0
    s_min_i32 s29, s29, 2
    s_cmp_lt_i32 s33, 0
    s_cselect_b32 s29, 0, s29
    s_lshl_b32 s32, s32, 1
    s_sub_i32 s30, s30, s32
    s_sub_i32 s30, s30, s28
    s_add_i32 s30, s30, 3
    s_max_i32 s30, s30, 0
    s_lshr_b32 s30, s30, 2
    s_add_u32 s30, s30, s29
    s_sub_u32 s32, s31, s28
    s_add_u32 s32, s32, 3
    s_lshr_b32 s32, s32, 2
    s_lshl_b32 s32, s32, 1
    s_add_u32 s30, s30, s32
    s_sub_i32 s30, s30, 4
    s_max_i32 s30, s30, 0
    s_add_u32 s{S_R}, s30, 6
    s_sub_i32 s31, s31, s3
    s_add_i32 s31, s31, 3
    s_max_i32 s31, s31, 0
    s_lshr_b32 s31, s31, 2
    s_lshl_b32 s31, s31, 1
    s_lshl_b32 s31, -1, s31
    s_or_b32 s31, s31, 0x55555555
    s_lshl_b32 s32, 2, s30
    s_sub_u32 s32, s32, 1
    s_and_b32 s31, s31, s32
    s_lshl_b32 s32, 64, s30
    s_or_b32 s{S_M}, s31, s32
    v_and_b32 v72, 15, v1
    v_lshrrev_b32 v73, 4, v1
    s_lshl_b32 s31, s3, 2
    s_add_u32 s31, s31, 32
    v_add_u32 v73, s31, v73                 ; node
    v_mul_u32_u24 v74, {SSTR}, v73
    v_lshl_add_u32 v74, v72, 4, v74
    v_add_u32 v74, {L_SRC}, v74
    v_mul_u32_u24 v75, {NSTR}, v73
    v_add_u32 v75, {L_NODE}, v75
    v_cmp_gt_u32 vcc, 6, v72
    v_add_u32 v72, s30, v72
    v_lshrrev_b32 v73, 2, v72
    v_lshl_add_u32 v73, v73, 7, v{LP}
    v_and_b32 v72, 3, v72
    v_lshl_add_u32 v73, v72, 2, v73
    s_mov_b64 exec, vcc
    ds_write2_b32 v73, v74, v75 offset0:0 offset1:16
    s_cmp_lg_u32 s30, 0
    s_cbranch_scc1 L_cw2
    v_mov_b32 v3, 1
    s_mov_b64 exec, 1
    ds_add_u32 v2, v3 offset:{L_DYN}
L_cw2:
    s_mov_b64 exec, -1
    s_mov_b32 s31, {LDS_MAX}
L_wnc:
    ds_read_b32 v3, v2 offset:{L_NST}
    s_sub_u32 s31, s31, 1
    s_cbranch_scc1 L_gosafe
    s_waitcnt lgkmcnt(0)
    v_readfirstlane_b32 s30, v3
    s_bitcmp1_b32 s30, 18
    s_cbranch_scc0 L_wnc
    s_cmp_gt_u32 s30, {0 if OPT["force_safe"] else 0xffffff}
    s_cbranch_scc1 L_gosafe
    ds_read_b128 v[{WS4}:{WS4+3}], v{LP}
    ds_read_b64 v[{AG}:{AG+1}], v{LP} offset:64
    ds_read_b64 v[{WN2}:{WN2+1}], v{LP} offset:72
    ds_read_b32 v{WE}, v{LP+1}
    s_waitcnt lgkmcnt(0)
    v_lshl_add_u64 v[{AG}:{AG+1}], v[{AG}:{AG+1}], 0, v[{LN8}:{LN8+1}]
    v_lshl_add_u32 v{WE}, v{WE}, 1, v{EAC}
    ds_read_b128 v[{T}:{T+3}], v{WS4}
    ds_read_b128 v[{T+4}:{T+7}], v{WS4+1}
    ds_read_b64 v[{XA}:{XA+1}], v{AG} offset:512
    ds_read_b64 v[{EA}:{EA+1}], v{WE}
L_nobuild:
    s_waitcnt lgkmcnt(0)
""")
assert DIST == 2 and not EARLY
E(m_a(D0))
for o in range(T, T+8, 2): E(oadd(o))
E(m_e(D0, 0))
E(f"ds_read_b64 v[{XA}:{XA+1}], v{AG+1} offset:512")
lds_wait(L_GOK, 0xff, 4, "gok", sleep=OPT["sl"] & 1)
if OPT["stamps"] == 2: E(f"s_memrealtime s[{ST0+16}:{ST0+17}]")
if not OPT["nogather"]:
    for q in range(8): E(gload(G + 4*q, T+q))
STAMP(9)
E(f"""
    s_mov_b32 s31, {LDS_MAX}
""")
E(f"""
    s_cmp_ge_u32 s3, 8
    s_cbranch_scc1 L_nd
L_wna:
    ds_read_b32 v3, v2 offset:{L_NST}
    s_sub_u32 s31, s31, 1
    s_cbranch_scc1 L_gosafe
    s_waitcnt lgkmcnt(0)
    v_readfirstlane_b32 s30, v3
    s_bitcmp1_b32 s30, 18
    s_cbranch_scc0 L_wna
    s_cmp_gt_u32 s30, {0 if OPT["force_safe"] else 0xffffff}
    s_cbranch_scc1 L_gosafe
    s_and_b32 s31, s30, 0xff
    s_mov_b32 s{S_R}, 14
    s_cmp_ge_u32 s3, s31
    s_cselect_b32 s30, 0x80, 0
    s_or_b32 s{S_M}, s30, 0x4141
L_nd:
    s_waitcnt vmcnt(6)
    {m_s(D0, A1, G)}
    s_waitcnt vmcnt(4)
    {m_s(D0, A2, G+8)}
    v_mov_b32 v3, 1
    s_nop 7
    s_mov_b32 s{S_IT}, {(1 << OPT["pa"]) | (1 << OPT["pb"]) | (1 << OPT["pc"]) if OPT["prio"] == 2 else 0}
""")
if OPT["prio"]: E(f"s_setprio {OPT['p1']}")
STAMP(10)
if OPT["ptime"]: E("v_mov_b32 v70, 0\nv_mov_b32 v71, 0")
if OPT["stamps"] == 1: E(f"s_memtime s[{ST0+24}:{ST0+25}]\ns_waitcnt lgkmcnt(0)")
for u in range(4): phase(u, True)
assert OPT["pc"] >= 2
def aggread(r, k, node): return f"ds_read_b64 v[{r+2*k}:{r+2*k+1}], v68 offset:{node*NSTR + 128*k}"
def tail(u):
    Dc, Dn = ((D0, D1), (D1, D0))[u & 1]
    gc = G + 16*u; gn = G + 16*((u+1) & 3)
    E(f"L_T{u}:")
    E(m_a(Dn))
    for x in exps(Dc, 0): E(x)
    E(m_e(Dn, (u+1) & 3))
    for x in exps(Dc, 1): E(x)
    E(f"ds_read_b32 v3, v2 offset:{L_DYN}")
    weave(pk_steps(gc, 0, False) + pk_steps(gc, 1, False), {2*k+1: [aggread(F, k, 32)] for k in range(4)})
    E("s_waitcnt vmcnt(2)"); E(m_s(Dn, A1, gn))
    for x in exps(Dc, 2): E(x)
    E("s_waitcnt vmcnt(0)"); E(m_s(Dn, A2, gn+8))
    for x in exps(Dc, 3): E(x)
    for x in pk_steps(gc, 2, False) + pk_steps(gc, 3, False): E(x)
    for q in (0, 2):
        for x in exps(Dn, q) + exps(Dn, q+1): E(x)
        for x in pk_steps(gn, q, False) + pk_steps(gn, q+1, False): E(x)
for u in (1, 2, 3):
    def t_(): tail(u); E("s_branch L_mdone")
    emit_to(outofline, t_)
tail(0)
E(f"""
L_mdone:
""")
STAMP(11)
if OPT["ptime"]:
    E(f"""
    s_lshl_b32 s30, s2, 4
    s_add_u32 s30, s30, s3
    s_lshl_b32 s30, s30, 8
    s_add_u32 s30, s30, 0xc00000
    v_lshl_add_u32 v2, v1, 2, s30
    s_mov_b32 exec_hi, 0
    global_store_dword v2, v70, s[20:21]
    global_store_dword v2, v71, s[20:21] offset:128
    s_mov_b64 exec, -1
    """)
if OPT["stamps"] == 1:
    E(f"s_memtime s[28:29]\ns_waitcnt lgkmcnt(0)\ns_sub_u32 s{ST0+24}, s28, s{ST0+24}")
E(f"""
    s_mov_b32 s32, {f32(2.0**32)}
    s_mov_b32 s34, {f32(-LOG2E * 2.0**-32)}
    s_mov_b32 s31, {LDS_MAX}
    v_rcp_f32 v{P}, v{P}
    v_rcp_f32 v{P+1}, v{P+1}
    v_rcp_f32 v{P+2}, v{P+2}
    v_rcp_f32 v{P+3}, v{P+3}
; the sums were read behind the count of waves that are on their last chain; with all twelve there they are complete
L_dw:
    s_waitcnt lgkmcnt(0)
    v_readfirstlane_b32 s30, v3
    s_add_u32 s30, s30, s{S_SAFE}
    s_cmp_lt_u32 s30, 12
    s_cbranch_scc1 L_dr
L_dx:
    s_cmp_ge_u32 s3, 8
    s_cbranch_scc1 L_d1
""")
for k in range(4): E(aggread(12, k, 0))
E("L_d1:")
def reread():
    E(f"L_dr:\ns_sub_u32 s31, s31, 1\ns_cbranch_scc1 L_dx\nds_read_b32 v3, v2 offset:{L_DYN}")
    for k in range(4): E(aggread(F, k, 32))
    E("s_branch L_dw")
emit_to(outofline, reread)
OSC = {0: "", 1: " sc1", 2: " nt"}[OPT["osc"]]
def silu(y, first):
    for p in range(2): E(f"v_pk_mul_f32 v[{36+2*p}:{37+2*p}], v[{y+2*p}:{y+2*p+1}], s[34:35] op_sel_hi:[1,0]")
    for k in range(4): E(f"v_exp_f32 v{36+k}, v{36+k}")
    E(f"v_pk_add_f32 v[10:11], v[{y}:{y+1}], v[{y+2}:{y+3}]" if first else f"v_pk_add_f32 v[10:11], v[10:11], v[{y}:{y+1}]")
    for p in range(2): E(f"v_pk_fma_f32 v[{36+2*p}:{37+2*p}], v[{36+2*p}:{37+2*p}], s[32:33], s[32:33] op_sel_hi:[1,0,0]")
    for k in range(4): E(f"v_rcp_f32 v{36+k}, v{36+k}")
    E("v_mov_b32 v9, 0x207" if first else f"v_pk_add_f32 v[10:11], v[10:11], v[{y+2}:{y+3}]")
    for p in range(2): E(f"v_pk_mul_f32 v[{36+2*p}:{37+2*p}], v[{y+2*p}:{y+2*p+1}], v[{36+2*p}:{37+2*p}]")
    o = 44 if first else 46
    E(f"v_cvt_pk_bf16_f32 v{o}, v36, v37\nv_cvt_pk_bf16_f32 v{o+1}, v38, v39")
    E(f"global_store_dwordx2 v69, v[{o}:{o+1}], s[18:19]{OSC}")
for k in range(4): E(f"v_cvt_f32_f64 v{28+k}, v[{F+2*k}:{F+2*k+1}]")
for p in range(2): E(f"v_pk_fma_f32 v[{28+2*p}:{29+2*p}], v[{N+2*p}:{N+2*p+1}], v[{P+2*p}:{P+2*p+1}], v[{28+2*p}:{29+2*p}]")
silu(28, True)
E(f"""
    s_cmp_ge_u32 s3, 8
    s_cbranch_scc1 L_e4
    v_subrev_u32 v69, {32*256}, v69
    s_waitcnt lgkmcnt(0)
""")
for k in range(4): E(f"v_cvt_f32_f64 v{28+k}, v[{12+2*k}:{13+2*k}]")
silu(28, False)
E(f"""
L_e4:
    v_add_f32 v10, v10, v11
    v_cmp_class_f32 vcc, v10, v9
    v_mov_b32 v2, 0
    s_cmp_lg_u32 s{S_SAFE}, 0
    s_cbranch_scc1 L_fin
    {"s_branch" if OPT["nosafe"] else "s_cbranch_vccz"} L_e5
    ds_write_b32 v2, v9 offset:{L_FLAG}
    s_waitcnt lgkmcnt(0)
L_e5:
    s_barrier                               ; B6
    ds_read_b32 v2, v2 offset:{L_FLAG}
    s_waitcnt lgkmcnt(0)
    v_readfirstlane_b32 s30, v2
    s_cmp_lg_u32 s30, 0
    s_cbranch_scc1 L_gosafe
L_fin:
""")
if OPT["stamps"]:
    E("s_waitcnt vmcnt(0)"); STAMP(13); STAMP_OUT()
if OPT["probe"] >= 0:
    T_ = ST0 + 2*OPT["probe"]
    E(f"""
    s_cmp_lg_u32 s3, {OPT["pw"]}
    s_cbranch_scc1 L_end
    s_cmp_lg_u32 s2, {OPT["pg"] if OPT["pg"] >= 0 else "s2"}
    s_cbranch_scc1 L_end
    s_sub_u32 s30, s{T_}, s{ST0}
    s_lshl_b32 s30, s30, 2
    s_add_u32 s30, s30, 3000
    s_min_u32 s30, s30, 20000
L_spin:
    s_memrealtime s[28:29]
    s_waitcnt lgkmcnt(0)
    s_sub_u32 s28, s28, s{ST0}
    s_cmp_lt_u32 s28, s30
    s_cbranch_scc1 L_spin
    """)
E(f"""
L_end:
    s_endpgm
; ---------------- fall back: redo the node terms, then evaluate edge by edge
L_gosafe:
    s_mov_b32 s{S_SAFE}, 16
    s_setprio 0
    s_waitcnt vmcnt(0) lgkmcnt(0)
    s_barrier
    s_branch L_restart
""")
out += outofline
for r in retries: E(r)
E(f"""
L_safe:
    v_and_b32 v2, 15, v1
    v_lshlrev_b32 v3, 3, v2
    v_add_u32 v3, {L_C}, v3
""")
for k in range(4):
    for s in range(4):
        E(f"ds_read_u16 v{80+4*k+s}, v3 offset:{128*k + 2*s}")
E("s_waitcnt lgkmcnt(0)")
for i in range(16):
    E(f"v_lshlrev_b32 v{80+i}, 16, v{80+i}\nv_mul_f32 v{80+i}, s40, v{80+i}")
E(f"""
    v_lshrrev_b32 v24, 4, v1
    v_mul_u32_u24 v24, 3, v24               ; 3*quarter
    s_movk_i32 s33, {NSTR}
    v_add_u32 v25, {L_NODE}, v{LN8}
    s_mov_b32 s34, s3
    s_mov_b32 s35, {POLL_MAX}
L_scell:
    s_lshl_b32 s30, s34, 10
    s_lshl_b32 s31, s{S_BUCK}, 3
    s_add_u32 s30, s30, s31
    s_add_u32 s30, s30, {WS_ROW}
    v_mov_b32 v26, s30
    global_load_dword v32, v26, s[20:21] sc1
    s_mul_i32 s30, s34, {SORTB//4}
    s_add_u32 s30, s30, {WS_REC//4}
    s_waitcnt vmcnt(0)
    v_bfe_u32 v28, v32, 12, 12              ; 3*count
    v_and_b32 v27, 0xfff, v32
    v_add_u32 v27, s30, v27
L_sver:
    v_mov_b32 v29, v1
    v_mov_b32 v31, 0
L_sv1:
    v_cmp_ge_u32 vcc, v28, v29
    s_and_saveexec_b64 s[48:49], vcc
    s_cbranch_execz L_sv2
    v_add_lshl_u32 v30, v27, v29, 2
    global_load_dword v32, v30, s[20:21] sc1
    s_waitcnt vmcnt(0)
    v_add_u32 v31, v31, v32
    s_mov_b64 exec, s[48:49]
    v_add_u32 v29, 64, v29
    s_branch L_sv1
L_sv2:
    s_mov_b64 exec, s[48:49]
""")
scan(31)
E(f"""
    s_nop 0
    v_readlane_b32 s30, v31, 63
    s_cmp_eq_u32 s30, s{S_TAG+1}
    s_cbranch_scc1 L_sok
    s_sub_u32 s35, s35, 1
    s_cbranch_scc0 L_sver
    s_branch L_sdone
L_sok:
    v_mov_b32 v29, v24
L_srec:
    v_cmp_gt_u32 vcc, v28, v29
    s_and_saveexec_b64 s[48:49], vcc
    s_cbranch_execz L_snext
    v_add_lshl_u32 v30, v27, v29, 2
    global_load_dwordx3 v[32:34], v30, s[20:21] offset:4 sc1
    s_waitcnt vmcnt(0)
    v_and_b32 v30, 0x3fff00, v32
    v_add_u32 v30, v30, v{LN16}
    buffer_load_dwordx4 v[36:39], v30, s[36:39], 0 offen sc1
    v_lshrrev_b32 v31, 24, v32
    v_mad_u32_u24 v31, v31, s33, v25
    ds_read_b64 v[40:41], v31 offset:512
    v_lshlrev_b32 v44, 16, v33
    v_and_b32 v45, 0xffff0000, v33
    v_lshlrev_b32 v46, 16, v34
    v_and_b32 v47, 0xffff0000, v34
    s_waitcnt vmcnt(0) lgkmcnt(0)
    v_lshlrev_b32 v48, 16, v40
    v_and_b32 v49, 0xffff0000, v40
    v_lshlrev_b32 v50, 16, v41
    v_and_b32 v51, 0xffff0000, v41
""")
for s in range(4):
    E(f"v_lshlrev_b32 v52, 16, v{36+s}\nv_add_f32 v{48+s}, v{48+s}, v52")
    for k in range(4):
        E(f"v_fmac_f32 v{48+s}, v{44+k}, v{80+4*k+s}")
for s in range(4): E(f"v_exp_f32 v{48+s}, v{48+s}")
E("s_nop 0")
for s in range(4): E(f"v_add_f32 v{48+s}, 1.0, v{48+s}")
for s in range(4): E(f"v_rcp_f32 v{48+s}, v{48+s}")
E("s_nop 0")
for s in range(4): E(f"v_mul_f32 v{48+s}, v{48+s}, v{36+s}")
for s in range(4): E(f"v_cvt_f64_f32 v[{54+2*s}:{55+2*s}], v{48+s}")
for s in range(4): E(f"ds_add_f64 v31, v[{54+2*s}:{55+2*s}] offset:{128*s}")
E(f"""
    s_mov_b64 exec, s[48:49]
    v_add_u32 v29, 12, v29
    s_branch L_srec
L_snext:
    s_mov_b64 exec, s[48:49]
    s_add_u32 s34, s34, {NW}
    s_cmp_lt_u32 s34, {NCHUNK}
    s_cbranch_scc1 L_scell
L_sdone:
    s_waitcnt lgkmcnt(0)
    s_barrier
    v_mov_b32 v3, 0
""")
for k in range(4): E(f"v_mov_b32 v{N+k}, 0\nv_mov_b32 v{P+k}, 1.0"); E(aggread(F, k, 32))
E(f"""
    s_branch L_mdone
L_codeend:
.section .rodata,"a"
.p2align 6
.amdhsa_kernel {NAME}
.amdhsa_next_free_vgpr 168
.amdhsa_next_free_sgpr 102
.amdhsa_accum_offset 168
.amdhsa_group_segment_fixed_size 0
.amdhsa_kernarg_size 80
.amdhsa_user_sgpr_count 2
.amdhsa_user_sgpr_kernarg_segment_ptr 1
.amdhsa_system_sgpr_workgroup_id_x 1
.end_amdhsa_kernel
""")
if OPT["al"]:
    i0 = out.index("L_L0:"); i1 = out.index("L_mdone:")
    mid = []; odd = False
    for l in out[i0:i1]:
        t = l.strip()
        if t.endswith(":") or t.startswith(";"): mid.append(l); continue
        four = t.startswith(("s_", "v_exp"))
        if not four and odd and OPT["al"] >= 3:
            mid.append("    s_nop 0"); odd = False
        if four: odd = not odd
        mid.append(l)
    pre = [".p2align 6, , 60"] if OPT["al"] != 2 else [".p2align 6, , 60", "    s_nop 0"]
    out = out[:i0] + pre + mid + out[i1:]
if OPT["drop"]:
    i0 = out.index("L_L0:"); i1 = out.index("L_mdone:")
    pats = {1: ("smfmac",), 2: ("mfma",), 3: ("32x32x8",), 4: ("smfmac",), 5: ("v_exp",)}[OPT["drop"]]
    repl = {4: "    s_nop 2", 5: "    s_nop 1"}.get(OPT["drop"])
    mid = []
    for l in out[i0:i1]:
        if any(x in l for x in pats):
            if repl: mid.append(repl)
        else: mid.append(l)
    if OPT["drop"] == 3: mid = [l.replace("v[88:103] cbsz", "0 cbsz").replace("v[72:87] cbsz", "0 cbsz") for l in mid]
    out = out[:i0] + mid + out[i1:]
if OPT["nochain"]:
    i0 = out.index("L_L0:"); i1 = out.index("L_mdone:")
    out = out[:i0] + [l for l in out[i0:i1] if not any(x in l for x in ("v_exp", "v_pk_", "mfma", "v_rcp", "v_cvt"))] + out[i1:]
open(sys.argv[1], "w").write("\n".join(out) + "\n")
```

```python
import sys, struct

OPT = dict(hb=1, pgs=0, al=0, sl=0, sigw=0, aue=0, mcl=2, b31=1, split=3, grp=0, allg=0, eag=1, stamps=0, force_safe=0, nogather=0, nosafe=0, prio=2, gsc1=1, osc=1, codepf=1, srcmask=0x3fff00, nrec=0, warm=0,
           nochain=0, probe=-1, pw=-1, pg=-1, gpf=32, early=0, cnt=0, pollmax=200000, pa=6, pb=3, pc=2, p0=3, p1=3, ptime=0,
           dist=2, ldearly=0, drop=0, wgate=0, gate=0, gate2=1, rst=0, rsc1=1, nover=0, p2gate=1, p2sleep=0, hold=0, slate=2, lpos=0, p1st=1, sig=2, gpace=4, gwin=-1, gp=0xf448c, ghold=0, nte=0, ewhen=6, eah=0, rih=0, stg=1, bvf=1, tch=0, wpf=1, gpe=40, oneb=0, tagl=0, p0e=0, aul=0, t0f=0, pre=0, prelate=0, ntx=0, rpace=-1, p2wait=0)
for a in sys.argv[2:]:
    k, v = a.split("=")
    assert k in OPT, k
    OPT[k] = int(v, 0)

out = []
def E(s=""):
    for line in s.split("\n"):
        line = line.strip()
        if not line:
            continue
        if line.endswith(":") or line.startswith(".") or line.startswith(";"):
            out.append(line)
        else:
            out.append("    " + line)

def f32(x):
    return "0x%08x" % struct.unpack("<I", struct.pack("<f", x))[0]

NAME = "standalone__edge_featured_mpnn_egc__graph_kernel"
LOG2E = 1.4426950408889634
NB = 80; NBUCK = 125; CHUNK = 1280; NCHUNK = 250
NW = 12
G_HALF = 10000 * 256
WS0 = 0
WS_REC = 0x500000
WS_ROW = 0x900000
WS_FL2 = 0x980000
WS_TAG = 0x9c0000
SORTB = CHUNK * 12 + 512
WS_STAMP = 0x1000000
L_CNT = 0; L_SOFF = 512
L_SCNT = 1024
L_CTR = 1536; L_RD = 1540; L_DONE2 = 1544; L_FLAG = 1548; L_NST = 1552; L_GST = 1556; L_GOK = 1560; L_AU = 1564; L_DYN = 1568; L_EAOK = 1572
L_DUM = L_SOFF
L_LIST = 2048
L_LISTC = L_LIST + 4096
SSTR = 272
L_SRC = L_LIST + 8192
SRCB = 80 * SSTR + 32
L_EA = L_SRC + SRCB
L_EAEND = L_EA + 2 * SRCB
L_SORT = L_EA
L_WBV = (L_EAEND + 255) // 256 * 256; L_X = L_WBV + 32768; L_WAU = L_X + 20480; L_C = L_WAU + 32768
LDS = L_C + 1024
L_NODE = L_WBV; NSTR = 648
assert L_NODE + 80 * NSTR <= L_WAU and LDS <= 163840 and L_EA % 16 == 0
NULL_SRC = 0x7fffff00
POLL_MAX = OPT["pollmax"]
LDS_MAX = 20 * POLL_MAX
SC1 = " sc1"
NTE = " nt" if OPT["nte"] else ""
NTX = " nt" if OPT["ntx"] else ""

S_HALF, S_BUCK, S_P = 22, 23, 24
S_SAFE, S_TAG = 25, 26
S_R, S_M, S_IT = 70, 71, 72
S_TAGRAW = 47
ST0 = 74

def ESTAMP(i):
    if OPT["early"] == 1 or (OPT["early"] and i == 0): E(f"s_memrealtime s[{ST0+2*i}:{ST0+2*i+1}]")
def FSTAMP(i):
    if OPT["early"] == 2: E(f"s_memrealtime s[{ST0+2*i}:{ST0+2*i+1}]\ns_waitcnt lgkmcnt(0)")
def STAMP(i):
    if OPT["stamps"] == 2:
        if i == 0: E(f"s_memrealtime s[{ST0}:{ST0+1}]")
        if i == 13: E(f"s_memrealtime s[{ST0+26}:{ST0+27}]\ns_waitcnt lgkmcnt(0)")
        return
    if OPT["early"] and 1 <= i <= 7: return
    if OPT["early"] and i == 0: return ESTAMP(0)
    if OPT["stamps"] or (OPT["probe"] >= 0 and i == OPT["probe"]):
        E(f"s_memrealtime s[{ST0+2*i}:{ST0+2*i+1}]\ns_waitcnt lgkmcnt(0)")
    elif OPT["probe"] >= 0 and i == 0:
        E(f"s_memrealtime s[{ST0}:{ST0+1}]")
NSTAMP = 14
def STAMP_OUT():
    if OPT["stamps"]:
        E(f"""
        s_lshl_b32 s30, s2, 4
        s_add_u32 s30, s30, s3
        s_lshl_b32 s30, s30, 6
        s_add_u32 s30, s30, {WS_STAMP - 0x100000}
        s_load_dwordx2 s[20:21], s[0:1], 72
        s_waitcnt lgkmcnt(0)
        s_mov_b64 exec, -1
        v_mov_b32 v3, s30""")
        for i in (range(NSTAMP) if OPT["stamps"] == 1 else (0, 8, 13)):
            E(f"v_mov_b32 v2, s{ST0+2*i}\nglobal_store_dword v3, v2, s[20:21] offset:{4*i}")
        E("s_waitcnt vmcnt(0)")

A1, A2, IDX, EAC, LN16, ASEL, CW, LN8 = 4, 8, 12, 13, 14, 16, 18, 20
LP, WS4, WN2, EA, XA, WE, OFS, AG, T, N, P, F = 22, 24, 28, 30, 32, 34, 36, 40, 44, 52, 56, 60
D0, D1, G = 72, 88, 104

def finish_tag():
    E(f"""
    s_mul_i32 s{S_TAG+1}, s{S_TAGRAW}, 0x85ebca6b
    s_mul_i32 s{S_TAG}, s{S_TAGRAW}, 0x9e3779b1
    s_add_u32 s{S_TAG+1}, s{S_TAG+1}, 0x5bd1e995
    s_add_u32 s{S_TAG}, s{S_TAG}, 0x7f4a7c15
    """)
def get_tag(lab, q):
    E(f"""
    s_cmp_lg_u32 s{S_SAFE}, 0
    s_cbranch_scc1 L_tag_{lab}
    v_mov_b32 v2, 0
    s_mov_b32 s31, {LDS_MAX}
L_tg_{lab}:
    ds_read_b128 v[{q}:{q+3}], v2 offset:{L_SCNT + 124*4}
    s_sub_u32 s31, s31, 1
    s_cbranch_scc1 L_tag_{lab}
    s_waitcnt lgkmcnt(0)
    v_readfirstlane_b32 s30, v{q+3}
    v_readfirstlane_b32 s{S_TAGRAW}, v{q+1}
    s_cmp_lg_u32 s30, 4
    s_cbranch_scc1 L_tg_{lab}
    """)
    finish_tag()
    E(f"L_tag_{lab}:")

def lds_wait(addr, mask, val, tag, sleep=0, ne=False):
    E(f"""
    v_mov_b32 v2, 0
    s_mov_b32 s31, {LDS_MAX}
    {f"s_branch L_wf_{tag}" if sleep else ""}
L_w_{tag}:
    {f"s_sleep {sleep}" if sleep else ""}
L_wf_{tag}:
    ds_read_b32 v3, v2 offset:{addr}
    s_sub_u32 s31, s31, 1
    s_cbranch_scc1 L_wd_{tag}
    s_waitcnt lgkmcnt(0)
    v_readfirstlane_b32 s30, v3
    s_and_b32 s30, s30, {mask}
    s_cmp_lg_u32 s30, {val}
    s_cbranch_scc{0 if ne else 1} L_w_{tag}
L_wd_{tag}:
    """)
SCAN = ("row_shr:1 row_mask:0xf bank_mask:0xf bound_ctrl:0", "row_shr:2 row_mask:0xf bank_mask:0xf bound_ctrl:0",
        "row_shr:4 row_mask:0xf bank_mask:0xf bound_ctrl:0", "row_shr:8 row_mask:0xf bank_mask:0xf bound_ctrl:0",
        "row_bcast:15 row_mask:0xa bank_mask:0xf", "row_bcast:31 row_mask:0xc bank_mask:0xf")
def scan(r):
    for m in SCAN:
        E(f"s_nop 1\nv_add_u32_dpp v{r}, v{r}, v{r} {m}")

def main_consts(sm=48):
    E(f"""
    v_and_b32 v2, 15, v1                    ; n'
    v_lshrrev_b32 v3, 4, v1
    v_lshl_add_u32 v3, v2, 2, v3
    v_lshlrev_b32 v3, 1, v3
    v_add_u32 v3, {L_C}, v3
    ds_read_u16 v64, v3                     ; C[0..3][feature 4n'+s]
    ds_read_u16 v65, v3 offset:128
    ds_read_u16 v66, v3 offset:256
    ds_read_u16 v67, v3 offset:384
    v_and_b32 v63, 3, v1                    ; q
    v_lshlrev_b32 v{LN8}, 3, v2
    v_lshlrev_b32 v{LN8+1}, 3, v2
    v_lshlrev_b32 v{LN16}, 4, v2
    v_lshlrev_b32 v{LN16+1}, 4, v2
    v_mov_b32 v{IDX}, 0x8888
    v_bfe_u32 v60, v1, 3, 2                 ; s = (l&31)>>3
    v_bfe_u32 v61, v1, 2, 1                 ; h = (l>>2)&1
    v_lshrrev_b32 v62, 5, v1                ; ha
    v_and_b32 v2, 1, v60
    v_lshlrev_b32 v2, 4, v2
    v_lshlrev_b32 v2, v2, s46               ; 1.0 (bf16) in half s&1
    v_lshrrev_b32 v60, 1, v60               ; s>>1
    v_lshl_add_u32 v3, v61, 1, v60
    v_sub_u32 v63, v63, v62                 ; q - ha : 0 -> A1, 2 -> A2
    v_lshl_add_u32 v3, v63, 1, v3
    v_and_b32 v63, 1, v63
    v_lshl_or_b32 v3, v63, 4, v3
    v_xor_b32 v61, v61, v62
    v_lshl_or_b32 v60, v61, 4, v60
    """)
    mk = [f"s[{sm}:{sm+1}]", f"s[{sm+2}:{sm+3}]", f"s[{sm+4}:{sm+5}]", "vcc"]
    for i in range(8):
        E(f"v_cmp_eq_u32 {mk[i%4]}, {i}, v3")
        if i % 4 == 3:
            for j in range(i-3, i+1):
                E(f"v_cndmask_b32 v{A1+j}, 0, v2, {mk[j%4]}")
    E(f"""
    v_cmp_eq_u32 {mk[0]}, 0, v60
    v_cmp_eq_u32 {mk[1]}, 1, v60
    v_and_b32 v63, 3, v1
    v_lshlrev_b32 v61, 3, v63
    v_cndmask_b32 v{ASEL}, 0, v2, {mk[0]}
    v_cndmask_b32 v{ASEL+1}, 0, v2, {mk[1]}
    v_add_u32 v{EAC}, {L_EA - 2*L_SRC}, v61
    s_lshl_b32 s30, s3, 9
    s_sub_u32 s31, s30, 4096
    s_max_i32 s31, s31, 0
    s_add_u32 s30, s30, s31
    s_add_u32 s30, s30, {L_LIST}
    v_lshrrev_b32 v2, 4, v1
    v_lshl_add_u32 v{LP}, v2, 4, s30
    v_bfe_u32 v3, v1, 2, 2
    v_lshl_add_u32 v{LP+1}, v3, 4, s30
    v_lshl_add_u32 v{LP+1}, v2, 2, v{LP+1}
    s_lshl_b32 s30, s3, 2
    s_add_u32 s30, s30, 32
    v_add_u32 v2, s30, v2
    v_mul_u32_u24 v68, {NSTR}, v2
    v_add_u32 v68, v68, v{LN8}
    v_add_u32 v68, {L_NODE - 32*NSTR}, v68
    s_mul_i32 s30, s{S_BUCK}, {NB*256}
    s_lshl_b32 s31, s{S_HALF}, 7
    s_add_u32 s30, s30, s31
    v_lshl_add_u32 v69, v2, 8, v{LN8}
    v_add_u32 v69, s30, v69
    s_waitcnt lgkmcnt(0)
    v_lshlrev_b32 v60, 16, v64
    v_lshlrev_b32 v61, 16, v65
    v_lshlrev_b32 v62, 16, v66
    v_lshlrev_b32 v63, 16, v67
    v_mul_f32 v60, s40, v60
    v_mul_f32 v61, s40, v61
    v_mul_f32 v62, s40, v62
    v_mul_f32 v63, s40, v63
    v_cvt_pk_bf16_f32 v{CW}, v60, v61
    v_cvt_pk_bf16_f32 v{CW+1}, v62, v63
    """)

def gload(g, o):
    return f"buffer_load_dwordx4 v[{g}:{g+3}], v{o}, s[36:39], 0 offen" + (SC1 if OPT["gsc1"] else "")
def oadd(o):
    return f"v_lshl_add_u64 v[{o}:{o+1}], v[{o}:{o+1}], 0, v[{LN16}:{LN16+1}]"

def pk_steps(Gc, q, first):
    t = T + 4*(q & 1); h = Gc + 4*q
    if first and q == 0:
        return [f"v_pk_add_f32 v[{P+2*p}:{P+2*p+1}], v[{t+2*p}:{t+2*p+1}], 1.0 op_sel_hi:[1,0]" for p in range(2)]
    r = []
    for p in range(2):
        n = f"v[{Gc+2*p}:{Gc+2*p+1}]" if (first and q == 1) else f"v[{N+2*p}:{N+2*p+1}]"
        r.append(f"v_pk_fma_f32 v[{N+2*p}:{N+2*p+1}], {n}, v[{t+2*p}:{t+2*p+1}], {n}")
    for p in range(2):
        r.append(f"v_pk_fma_f32 v[{N+2*p}:{N+2*p+1}], v[{h+2*p}:{h+2*p+1}], v[{P+2*p}:{P+2*p+1}], v[{N+2*p}:{N+2*p+1}]")
    for p in range(2):
        r.append(f"v_pk_fma_f32 v[{P+2*p}:{P+2*p+1}], v[{P+2*p}:{P+2*p+1}], v[{t+2*p}:{t+2*p+1}], v[{P+2*p}:{P+2*p+1}]")
    return r
def exps(Dc, q):
    t = T + 4*(q & 1)
    return [f"v_exp_f32 v{t+s}, v{Dc+4*s+q}" for s in range(4)]
def weave(main, extra):
    for i, x in enumerate(main):
        E(x)
        for y in extra.get(i, []):
            E(y)
def m_a(Dn): return f"v_mfma_f32_32x32x8_bf16 v[{Dn}:{Dn+15}], v[{ASEL}:{ASEL+1}], v[{XA}:{XA+1}], 0"
def m_e(Dn, abid): return f"v_mfma_f32_16x16x4_4b_bf16 v[{Dn}:{Dn+15}], v[{EA}:{EA+1}], v[{CW}:{CW+1}], v[{Dn}:{Dn+15}] cbsz:2 abid:{abid}"
def m_s(Dn, A, g): return f"v_smfmac_f32_32x32x32_bf16 v[{Dn}:{Dn+15}], v[{A}:{A+3}], v[{g}:{g+7}], v{IDX}"

outofline = []
def emit_to(lst, fn):
    global out
    keep = out; out = []
    fn(); lst += out; out = keep
assert OPT["pa"] == 6 and OPT["prio"] == 2
DIST = OPT["dist"]; EARLY = OPT["ldearly"]
assert not (EARLY and DIST == 4)
def phase(u, loads):
    tag = f"{'L' if loads else 'T'}{u}"
    Dc, Dn = ((D0, D1), (D1, D0))[u & 1]
    gc = G + 16*u; gn = G + 16*((u+1) & 3); gl = G + 16*((u+DIST) & 3)
    ld = loads and not OPT["nogather"]
    kw = (u + DIST + EARLY) & 3
    wsgrp = 128 * ((3 - kw + u + DIST + EARLY) // 4 + 1) if kw == 3 else None
    def addloads(ex, pos):
        if loads:
            ex.setdefault(0, []).append(oadd(OFS)); ex.setdefault(2, []).append(oadd(OFS+2))
        if ld:
            for q in range(4): ex.setdefault(pos[q], []).append(gload(gl+4*q, OFS+q))
    E(f"L_{tag}:")
    SL = OPT["slate"]
    if not SL: E(f"s_waitcnt vmcnt({4*(DIST-2)})")
    E(m_a(Dn))
    for x in exps(Dc, 0): E(x)
    E(m_e(Dn, (u+1) & 3) if SL else m_s(Dn, A1, gn))
    for x in exps(Dc, 1): E(x)
    ex = {0: ["s_waitcnt lgkmcnt(0)"], 2: [f"ds_read_b64 v[{XA}:{XA+1}], v{AG + ((u+2) & 3)} offset:512"]}
    if u % 2 == 0:
        p = AG + ((u+2) & 3)
        ex[0].append(f"v_lshl_add_u64 v[{p}:{p+1}], v[{WN2}:{WN2+1}], 0, v[{LN8}:{LN8+1}]")
    if EARLY: addloads(ex, (1, 3, 5, 6))
    elif loads: ex[1] = [f"ds_read_b128 v[{OFS}:{OFS+3}], v{WS4+kw}"]
    if u == 2:
        ex.setdefault(4, []).append(f"v_lshl_add_u32 v{WE}, v{WE}, 1, v{EAC}")
        if SL: ex.setdefault(7, []).append(f"ds_read_b64 v[{EA}:{EA+1}], v{WE}")
    E(f"s_bitcmp1_b32 s{S_M}, 0\ns_cbranch_scc1 L_{tag}f")
    weave(pk_steps(gc, 0, False) + pk_steps(gc, 1, False), ex)
    E(f"L_{tag}r:")
    def first():
        E(f"L_{tag}f:")
        weave(pk_steps(gc, 0, True) + pk_steps(gc, 1, True), ex)
        E(f"s_branch L_{tag}r")
    emit_to(outofline, first)
    if SL:
        if OPT["ptime"]: E(f"s_memrealtime s[28:29]\ns_mov_b32 m0, s{S_R}")
        E(f"s_waitcnt vmcnt({4*(DIST-2) + (4 if (EARLY and loads) else 0) + (2 if SL == 2 else 0)})")
        E(m_s(Dn, A1, gn))
    else:
        E(m_e(Dn, (u+1) & 3))
    for x in exps(Dc, 2): E(x)
    if SL == 2: E(f"s_waitcnt vmcnt({4*(DIST-2) + (4 if (EARLY and loads) else 0)})")
    if OPT["ptime"]: E(f"s_memrealtime s[30:31]")
    E(m_s(Dn, A2, gn+8))
    for x in exps(Dc, 3): E(x)
    ex = {0: ["s_waitcnt lgkmcnt(0)"], 4: [], 6: [], 7: [f"s_sub_u32 s{S_R}, s{S_R}, 1"], 10: [f"s_lshr_b32 s{S_M}, s{S_M}, 1"], 11: [f"s_bitcmp1_b32 s{S_M}, 0"]}
    if OPT["ptime"]: ex[0] += ["v_writelane_b32 v70, s28, m0", "v_writelane_b32 v71, s30, m0"]
    if not EARLY: addloads(ex, (1, 3, 5, 9) if DIST == 4 else ((1, 3, 5, 7), (1, 2, 3, 4), (4, 6, 8, 10), (2, 5, 8, 10))[OPT['lpos']])
    elif loads: ex[1] = [f"ds_read_b128 v[{OFS}:{OFS+3}], v{WS4+kw}"]
    if u == 1:
        ex[4].append(f"ds_read_b64 v[{WN2}:{WN2+1}], v{LP} offset:{128+64}")
        ex[6].append(f"ds_read_b32 v{WE}, v{LP+1} offset:128")
    if u == 2 and not SL:
        ex[4].append(f"ds_read_b64 v[{EA}:{EA+1}], v{WE}")
    if u == 3:
        ex[4].append(f"ds_read_b64 v[{WN2}:{WN2+1}], v{LP} offset:{128+64+8}")
        ex.setdefault(8, []).append(f"v_lshl_add_u64 v[{LP}:{LP+1}], v[{LP}:{LP+1}], 0, s[44:45]")
    if wsgrp and loads: ex[6].append(f"ds_read_b128 v[{WS4}:{WS4+3}], v{LP} offset:{wsgrp}")
    weave(pk_steps(gc, 2, False) + pk_steps(gc, 3, False), ex)
    E(f"s_cbranch_scc1 L_{tag}z\nL_{tag}y:")
    def fin():
        E(f"""
L_{tag}z:
        v_rcp_f32 v{P}, v{P}
        v_rcp_f32 v{P+1}, v{P+1}
        v_rcp_f32 v{P+2}, v{P+2}
        v_rcp_f32 v{P+3}, v{P+3}
        v_pk_mul_f32 v[{N}:{N+1}], v[{N}:{N+1}], v[{P}:{P+1}]
        v_pk_mul_f32 v[{N+2}:{N+3}], v[{N+2}:{N+3}], v[{P+2}:{P+3}]
        """)
        for s_ in range(4):
            E(f"v_cvt_f64_f32 v[{F+2*s_}:{F+2*s_+1}], v{N+s_}")
            if s_: E(f"ds_add_f64 v{AG+u}, v[{F+2*s_-2}:{F+2*s_-1}] offset:{128*(s_-1)}")
        E(f"ds_add_f64 v{AG+u}, v[{F+6}:{F+7}] offset:384")
        E(f"s_branch L_{tag}y")
    emit_to(outofline, fin)
    if OPT["prio"] == 2:
        E(f"s_bitcmp1_b32 s{S_IT}, s{S_R}\ns_cbranch_scc1 L_{tag}q\nL_{tag}p:")
        def pr():
            E(f"""
L_{tag}q:
            s_setprio 0
            s_cmp_le_u32 s{S_R}, {OPT["pc"]}
            s_cbranch_scc1 L_{tag}p
            s_setprio 1
            s_cmp_le_u32 s{S_R}, {OPT["pb"]}
            s_cbranch_scc1 L_{tag}p
            s_setprio 2
            s_mov_b64 exec, 1
            ds_add_u32 v2, v3 offset:{L_DYN}
            s_mov_b64 exec, -1
            s_branch L_{tag}p
            """)
        emit_to(outofline, pr)
    if u == 3 and OPT["prio"] == 1:
        E(f"""
        s_add_u32 s{S_IT}, s{S_IT}, 1
        s_setprio 0
        s_cmp_gt_u32 s{S_IT}, 2
        s_cbranch_scc1 L_{tag}p
        s_setprio 1
        s_cmp_eq_u32 s{S_IT}, 2
        s_cbranch_scc1 L_{tag}p
        s_setprio 2
L_{tag}p:
        """)
    if loads:
        E(f"s_cmp_le_u32 s{S_R}, {DIST}")
        if u < 3: E(f"s_cbranch_scc1 L_T{u+1}")
        else: E("s_cbranch_scc0 L_L0")
    else:
        E(f"s_waitcnt vmcnt(0)\ns_cmp_eq_u32 s{S_R}, 0")
        if u < 3: E("s_cbranch_scc1 L_mdone")
        else: E("s_cbranch_scc0 L_T0")

E(f"""
; Edge-gated message passing in one launch, one workgroup per (bucket of 80 nodes, half of the features).
;  sum_i h_i / (1 + t_i), t = exp(-z), is carried as a fraction N / P along a node's edges (exact algebra); if that
; @launch grid=(256,1,1) block=({64*NW},1,1) lds={LDS}
.amdgcn_target "amdgcn-amd-amdhsa--gfx950"
.text
.globl {NAME}
.p2align 8
.type {NAME},@function
{NAME}:
""")
if OPT["stamps"] == 1 and OPT["early"] != 1:
    for i in range(NSTAMP): E(f"s_mov_b64 s[{ST0+2*i}:{ST0+2*i+1}], 0")
STAMP(0)
E(f"""
    s_load_dwordx16 s[4:19], s[0:1], 0
    s_load_dwordx2 s[20:21], s[0:1], 72
""")
if OPT["codepf"]:
    E(f"""
    s_getpc_b64 s[28:29]
L_pc:
    v_lshlrev_b32 v3, 7, v0
    v_cmp_gt_u32 vcc, L_codeend-L_pc-64, v3
    s_cbranch_vccz L_nopf
    s_mov_b64 exec, vcc
    global_load_dword v164, v3, s[28:29]
    s_mov_b64 exec, -1
L_nopf:
    """)
E(f"""
    v_lshrrev_b32 v2, 6, v0
    v_and_b32 v1, 63, v0
    v_readfirstlane_b32 s3, v2
    {"s_bfe_u32 s%d, s2, 0x10002" % S_HALF if OPT["hb"] else "s_and_b32 s%d, s2, 1" % S_HALF}
    {"s_and_b32 s30, s2, 3" if OPT["hb"] else "s_bfe_u32 s30, s2, 0x20001"}
    {"s_mul_i32 s30, s30, 31" if OPT["b31"] else "s_lshl_b32 s30, s30, 5"}
    s_lshr_b32 s31, s2, 3
    s_add_u32 s{S_BUCK}, s30, s31
    {"s_cmp_eq_u32 s30, 93                    ; 31 buckets per XCD of a half, 32 on the last" if OPT["b31"] else "s_cmp_ge_u32 s2, 256"}
    {"s_subb_u32 s31, s31, 0" if OPT["b31"] else "s_cbranch_scc1 L_end"}
    {"s_cmp_ge_i32 s31, 31" if OPT["b31"] else "s_cmp_ge_u32 s%d, %d" % (S_BUCK, NBUCK)}
    s_cbranch_scc1 L_end
    s_lshl_b32 s{S_P}, s{S_BUCK}, 1
    s_add_u32 s{S_P}, s{S_P}, s{S_HALF}
    s_mov_b32 s{S_SAFE}, 0
L_restart:
    s_cmp_ge_u32 s3, 4
    s_cbranch_scc1 L_nosort
    v_mov_b32 v48, 0
    v_mov_b32 v49, 0
    v_mov_b32 v50, 0
    v_mov_b32 v51, 0
    v_lshlrev_b32 v10, 4, v1
    ds_write_b128 v10, v[48:51] offset:{L_SCNT}
    s_mul_i32 s30, s{S_P}, {CHUNK*4}
    v_lshl_add_u32 v3, v0, 4, s30
    s_add_u32 s30, s30, 4096
    v_lshl_add_u32 v18, v0, 2, s30
    v_lshlrev_b32 v10, 1, v3
    v_lshlrev_b32 v11, 1, v18
    v_mov_b32 v17, {WS_TAG}
    s_waitcnt lgkmcnt(0)
    global_load_dwordx4 v[4:7], v3, s[10:11]{NTE}
    global_load_dword v8, v18, s[10:11]{NTE}
""")
STG = OPT["stg"]
if STG: E(f"""
    s_add_u32 s28, s20, {WS_TAG}
    s_addc_u32 s29, s21, 0
    s_load_dword s65, s[28:29], 0
""")
else: E("global_load_dword v43, v17, s[20:21]")
E(f"""
""")
def preclear():
    E(f"""
    s_cmp_lg_u32 s{S_SAFE}, 0
    s_cbranch_scc1 L_nopre
    s_mul_i32 s30, s{S_HALF}, {G_HALF}
    s_mul_i32 s31, s{S_BUCK}, {NB*256}
    s_add_u32 s30, s30, s31
    s_add_u32 s30, s30, {4096*(5-OPT["pre"])}
    v_lshl_add_u32 v19, v0, 4, s30
    """)
    for i in range(OPT["pre"]):
        E("global_store_dwordx4 v19, v[48:51], s[20:21] sc1")
        if i + 1 < OPT["pre"]: E("v_add_u32 v19, 4096, v19")
    E("L_nopre:")
if OPT["pre"] and not OPT["prelate"]: preclear()
E(f"""
    {"" if OPT["oneb"] else "s_barrier"}
""")
if OPT["ewhen"] == 0: E(f"""
    global_load_dwordx4 v[12:15], v3, s[8:9]{NTE}
    global_load_dword v16, v18, s[8:9]{NTE}
    global_load_dwordx4 v[52:55], v10, s[6:7]{NTE}
    global_load_dwordx4 v[56:59], v10, s[6:7] offset:16{NTE}
    global_load_dwordx2 v[60:61], v11, s[6:7]{NTE}
""")
E("s_barrier                               ; B0b")
if OPT["ewhen"] == 7: E(f"""
    global_load_dwordx4 v[12:15], v3, s[8:9]{NTE}
    global_load_dword v16, v18, s[8:9]{NTE}
    global_load_dwordx4 v[52:55], v10, s[6:7]{NTE}
    global_load_dwordx4 v[56:59], v10, s[6:7] offset:16{NTE}
    global_load_dwordx2 v[60:61], v11, s[6:7]{NTE}
""")
if OPT["pre"] and OPT["prelate"]: preclear()
E(f"""
    s_branch L_sort
L_nosort:
    s_and_b32 s32, s3, 3                    ; tau
    s_lshr_b32 s33, s3, 3
    v_lshrrev_b32 v2, 4, v1                 ; g
    v_and_b32 v4, 15, v1
    s_lshl_b32 s30, s32, 2
    v_add_u32 v6, s30, v2                   ; row&15
    v_xor_b32 v7, v4, v6
    v_lshlrev_b32 v7, 4, v7
    v_lshl_add_u32 v7, v6, 8, v7
    s_mul_i32 s73, s{S_BUCK}, {NB*256}
    s_mul_i32 s31, s33, {3*4096}
    s_add_u32 s30, s73, s31
    v_add_u32 v7, s30, v7
    v_add_u32 v8, 0x1000, v7
    v_add_u32 v9, 0x2000, v7
    s_lshl_b32 s30, s32, 10
    s_add_u32 s31, s31, s30
    s_add_u32 m0, s31, {L_X}
    v_subrev_u32 v30, 256, v0               ; t = 0..511
    v_lshlrev_b32 v31, 4, v30
    v_mov_b32 v36, 0
    v_mov_b32 v37, 0
    v_mov_b32 v38, 0
    v_mov_b32 v39, 0
    v_add_u32 v40, {L_EA}, v31
    ds_write_b128 v40, v[36:39]
    ds_write_b128 v40, v[36:39] offset:8192
""")
if OPT["wpf"]:
    E(f"""
    s_lshr_b32 s30, s2, 3
    s_lshl_b32 s30, s30, 2
    v_add_u32 v3, s30, v1
    v_and_b32 v3, 127, v3
    s_lshl_b32 s30, s{S_HALF}, 7
    s_cmp_eq_u32 s3, 4
    s_cselect_b32 s31, 0x8000, 0
    s_add_u32 s30, s30, s31
    v_lshl_add_u32 v3, v3, 8, s30
    s_waitcnt lgkmcnt(0)
    s_cmp_lg_u32 s33, 0
    s_cbranch_scc1 L_nowpf
    s_cmp_eq_u32 s3, 5
    s_cselect_b32 s34, s14, s16
    s_cselect_b32 s35, s15, s17
    s_cmp_eq_u32 s3, 7
    s_cselect_b32 s34, s12, s34
    s_cselect_b32 s35, s13, s35
    s_mov_b64 exec, 0xffff
    global_load_dword v167, v3, s[34:35]
    s_mov_b64 exec, -1
L_nowpf:
    """)
    if OPT["wpf"] == 2:
        E(f"""
        s_cmp_lg_u32 s3, 8
        s_cbranch_scc1 L_notch
        s_mul_i32 s30, s{S_P}, {CHUNK*4}
        v_mov_b32 v3, s30
        v_lshlrev_b32 v5, 1, v3
        v_lshlrev_b32 v6, 21, v1
        s_mov_b64 exec, 1
        global_load_dword v167, v3, s[8:9]
        global_load_dword v166, v5, s[6:7]
        s_mov_b64 exec, 31
        global_load_dword v165, v6, s[20:21] sc1
        s_mov_b64 exec, 3
        global_load_dword v164, v6, s[18:19] sc1
        s_mov_b64 exec, -1
L_notch:
        """)
E("s_waitcnt lgkmcnt(0)")
if OPT["tch"]:
    n = OPT["tch"]
    E(f"""
    s_sub_u32 s30, s3, 4
    s_mul_i32 s31, s30, 2560
    s_add_u32 s31, s31, s73
    s_add_u32 s56, s4, s31
    s_addc_u32 s57, s5, 0
    s_mul_i32 s31, s{S_P}, {CHUNK*8}
    s_mul_i32 s30, s30, 1280
    s_add_u32 s31, s31, s30
    s_add_u32 s58, s6, s31
    s_addc_u32 s59, s7, 0
    """)
    for i in range(n): E(f"s_load_dword s60, s[56:57], {128*i}")
    E("s_load_dword s61, s[58:59], 0")
E(f"""
    {"" if OPT["oneb"] else "s_barrier"}
""")
if OPT["bvf"]:
    E("s_mov_b32 s29, m0")
elif not OPT["t0f"]: E(f"""
    global_load_lds_dwordx4 v7, s[4:5]{NTX}
    s_add_u32 m0, m0, 0x1000
    s_cmp_lg_u32 s33, 0
    global_load_lds_dwordx4 v8, s[4:5]{NTX}
    s_cbranch_scc1 L_x2
    s_add_u32 m0, m0, 0x1000
    s_nop 0
    global_load_lds_dwordx4 v9, s[4:5]{NTX}
L_x2:
    s_barrier
""")
else: E(f"""
    s_mov_b32 s29, m0
    s_cmp_lg_u32 s33, 0
    s_cbranch_scc1 L_x2
    global_load_lds_dwordx4 v7, s[4:5]
    s_add_u32 s29, s29, 0x1000
    v_mov_b32 v7, v8
    v_mov_b32 v8, v9
L_x2:
""")
E(f"""
    v_lshrrev_b32 v5, 3, v1
    v_and_b32 v3, 1, v2
    s_and_b32 s30, s3, 1
    s_lshl_b32 s30, s30, 1
    v_or_b32 v3, s30, v3                    ; sigma
    v_lshlrev_b32 v3, 1, v3
    v_and_b32 v20, 7, v1
    v_xor_b32 v3, v3, v20
    v_lshlrev_b32 v3, 4, v3
    v_lshl_add_u32 v10, v5, 8, v3
    s_sub_u32 s28, s3, 4
    s_lshl_b32 s30, s28, 11
    s_lshl_b32 s31, s{S_HALF}, 7
    s_add_u32 s30, s30, s31
    v_add_u32 v10, s30, v10
    v_add_u32 v11, 0x4000, v10
    s_lshl_b32 s28, s28, 10
    s_add_u32 s34, s16, {128*256}
    s_addc_u32 s35, s17, 0
    s_cmp_lg_u32 s3, 11
    s_cbranch_scc1 L_noc
    v_and_b32 v5, 3, v5
    v_lshlrev_b32 v20, 4, v20
    v_lshl_add_u32 v5, v5, 8, v20
    s_add_u32 s31, s31, {256*256}
    s_mov_b32 m0, {L_C}
    v_add_u32 v5, s31, v5
    global_load_lds_dwordx4 v5, s[16:17]
L_noc:
    s_add_u32 m0, s28, {L_WBV}
""")
for ti, base in enumerate((34, 14)):
    for n in range(2):
        E(f"s_nop 0\nglobal_load_lds_dwordx4 v{10+n}, s[{base}:{base+1}]")
        if not (ti == 1 and n == 1):
            E(f"s_add_u32 m0, m0, 0x2000")
def stage_au():
    E(f"""
    v_lshrrev_b32 v5, 3, v1
    v_bfe_u32 v3, v1, 4, 1
    v_lshlrev_b32 v3, 1, v3
    v_and_b32 v20, 7, v1
    v_xor_b32 v3, v3, v20
    v_lshlrev_b32 v3, 4, v3
    v_lshl_add_u32 v6, v5, 8, v3
    s_lshl_b32 s30, s{S_HALF}, 7
    s_and_b32 s31, s3, 1
    s_lshl_b32 s31, s31, 14
    s_add_u32 s30, s30, s31
    v_add_u32 v6, s30, v6
    v_xor_b32 v7, 64, v6
    v_add_u32 v8, 2048, v6
    v_add_u32 v9, 3072, v7
    v_add_u32 v7, 1024, v7
    s_lshl_b32 s30, s32, 13
    s_add_u32 m0, s30, {L_WAU}
    s_cmp_lt_u32 s32, 2
    s_cselect_b32 s34, s16, s12
    s_cselect_b32 s35, s17, s13
    global_load_lds_dwordx4 v6, s[34:35]
    global_load_lds_dwordx4 v7, s[34:35] offset:1024
    global_load_lds_dwordx4 v8, s[34:35] offset:2048
    global_load_lds_dwordx4 v9, s[34:35] offset:3072
    s_add_u32 m0, m0, 4096
    s_add_u32 s34, s34, 8192
    s_addc_u32 s35, s35, 0
    global_load_lds_dwordx4 v6, s[34:35]
    global_load_lds_dwordx4 v7, s[34:35] offset:1024
    global_load_lds_dwordx4 v8, s[34:35] offset:2048
    global_load_lds_dwordx4 v9, s[34:35] offset:3072
""")
if OPT["aue"] == 1:
    E("s_cmp_eq_u32 s33, 0\ns_cbranch_scc1 L_noau"); stage_au(); E("L_noau:")
if OPT["bvf"]:
    E(f"""
    s_mov_b32 m0, s29
    s_barrier                               ; B0b
    global_load_lds_dwordx4 v7, s[4:5]
    s_add_u32 m0, m0, 0x1000
    s_cmp_lg_u32 s33, 0
    global_load_lds_dwordx4 v8, s[4:5]
    s_cbranch_scc1 L_x2
    s_add_u32 m0, m0, 0x1000
    s_nop 0
    global_load_lds_dwordx4 v9, s[4:5]
L_x2:
    """)
if OPT["t0f"]:
    E(f"""
    s_mov_b32 m0, s29
    s_barrier                               ; B0b
    global_load_lds_dwordx4 v7, s[4:5]
    s_add_u32 m0, m0, 0x1000
    s_nop 0
    global_load_lds_dwordx4 v8, s[4:5]
    """)
if OPT["wgate"] or OPT["ewhen"] in (5, 6, 8, 9):
    E(f"""
    v_mov_b32 v7, 0x1000000
    s_mov_b64 exec, 1
    ds_add_u32 v36, v7 offset:{L_CTR}
    s_mov_b64 exec, -1
    """)
STAMP(1)
E(f"""
    v_mov_b32 v32, {NULL_SRC}
    v_mov_b32 v33, v32
    v_mov_b32 v34, v32
    v_mov_b32 v35, v32
""")
def cover(lo, n): return list(range(lo, n - 8192, 8192)) + [n - 8192]
for o in cover(16384, L_EAEND - L_EA): E(f"ds_write_b128 v40, v[36:39] offset:{o}")
for o in cover(0, SRCB): E(f"ds_write_b128 v31, v[32:35] offset:{L_SRC + o}")
E(f"""
    v_and_b32 v32, 3, v30           ; quarter
    v_bfe_u32 v33, v30, 3, 3
    v_lshrrev_b32 v34, 5, v30
    s_and_b32 s30, s3, 3
    s_add_u32 s30, s30, 16
    s_cmp_ge_u32 s3, 8
    s_cselect_b32 s31, 7, 3
    s_cselect_b32 s29, 0, 6
    s_cselect_b64 vcc, -1, 0
    v_and_b32 v33, s31, v33
    v_mov_b32 v35, s30
    v_cndmask_b32 v34, v34, v35, vcc
    v_lshl_add_u32 v32, v34, 2, v32
    v_bfe_u32 v34, v30, 2, 1
    v_mul_u32_u24 v35, {NSTR - SSTR}, v34
    v_mul_u32_u24 v41, {L_NODE - L_SRC}, v34
    v_mul_u32_u24 v42, {L_SRC + 80*SSTR - L_DUM}, v34
    v_lshlrev_b32 v43, 4, v34
    v_add_u32 v35, {SSTR}, v35
    v_add_u32 v41, {L_SRC}, v41
    v_sub_u32 v42, {L_SRC + 80*SSTR}, v42
    v_sub_u32 v43, 16, v43
    v_lshlrev_b32 v33, 2, v33
    v_mad_u32_u24 v41, v32, v35, v41
    v_mad_u32_u24 v41, v33, v43, v41
    v_lshlrev_b32 v35, 5, v35
    v_lshlrev_b32 v34, 3, v43
    v_sub_u32 v35, v35, v34
    v_cmp_gt_u32 s[48:49], 8, v33
    v_and_b32 v33, 7, v33
    v_add_u32 v34, 2, v33
    v_cmp_gt_u32 s[52:53], s29, v33
    v_cmp_gt_u32 s[54:55], s29, v34
    v_cndmask_b32 v44, v35, 0, s[48:49]
    v_cndmask_b32 v46, v35, 0, s[48:49]
    v_add_u32 v44, v41, v44
    v_lshl_add_u32 v46, v43, 1, v46
    v_add_u32 v46, v41, v46
    v_add_u32 v45, v44, v43
    v_add_u32 v47, v46, v43
    v_cndmask_b32 v44, v42, v44, s[52:53]
    v_cndmask_b32 v45, v42, v45, s[52:53]
    v_cndmask_b32 v46, v42, v46, s[54:55]
    v_cndmask_b32 v47, v42, v47, s[54:55]
    ds_write_b128 v31, v[44:47] offset:{L_LIST}
    s_cmp_ge_u32 s3, 6
    s_cbranch_scc1 L_pf3
    v_mul_u32_u24 v42, {SSTR}, v30
    v_add_u32 v42, {L_SRC}, v42
    v_lshlrev_b32 v41, 2, v30
    ds_write_b32 v41, v42 offset:{L_CNT}
L_pf3:
    v_bfe_u32 v3, v1, 2, 2                  ; r
    v_lshl_add_u32 v5, v2, 3, v3            ; 8g + r
    v_lshrrev_b32 v3, 1, v3
    v_and_b32 v6, 1, v2
    v_lshl_or_b32 v3, v6, 1, v3             ; sigma
    v_xor_b32 v3, s32, v3
    v_lshlrev_b32 v3, 5, v3
    v_lshl_add_u32 v10, v5, 7, v3
    v_and_b32 v3, 3, v1
    v_lshl_add_u32 v10, v3, 3, v10
    s_mul_i32 s31, s33, {L_WAU - L_WBV}
    s_add_u32 s31, s31, {L_WBV}
    v_add_u32 v10, s31, v10
    v_xor_b32 v3, v2, v4
    v_lshlrev_b32 v3, 4, v3
    v_lshl_add_u32 v12, v4, 8, v3
    v_add_u32 v12, {L_X}, v12
    v_xor_b32 v13, 64, v12
    v_xor_b32 v14, 0x80, v12
    v_xor_b32 v15, 0xc0, v12
    s_mul_i32 s30, s{S_HALF}, {G_HALF}
    s_add_u32 s30, s30, s73
    s_lshl_b32 s31, s32, 6
    s_add_u32 s30, s30, s31
    v_lshlrev_b32 v11, 10, v2
    v_lshl_add_u32 v11, v4, 2, v11
    v_add_u32 v11, s30, v11
    s_lshl_b32 s31, s32, 5
    s_add_u32 s31, s31, {L_NODE}
    v_mul_u32_u24 v16, {NSTR}, v4
    v_lshl_add_u32 v16, v2, 3, v16
    v_add_u32 v16, s31, v16
    s_mov_b32 s40, {f32(-LOG2E)}
    s_mov_b32 s42, {f32(2.0**32)}
    s_mov_b32 s44, 0x07060100
    s_mov_b32 s45, 0x07060302
    s_mov_b32 s46, 0x3f80
    v_mov_b32 v17, {f32(2.0**-100)}
    v_mov_b32 v19, 1
    v_mov_b32 v18, 0
""")
def staged():
    if not OPT["tagl"]: get_tag("g", 160)
    if OPT["aue"] == 2:
        E("s_cmp_eq_u32 s33, 0\ns_cbranch_scc1 L_noau"); stage_au(); E("L_noau:")
    if OPT["aue"]: E("s_waitcnt vmcnt(8)\ns_cmp_lg_u32 s33, 0\ns_cbranch_scc1 L_stg")
    E(f"""
    s_waitcnt vmcnt(0)
L_stg:
    s_mov_b64 exec, 1
    ds_add_u32 v18, v19 offset:{L_CTR}
    s_mov_b64 exec, -1
    """)
    STAMP(2)
    lds_wait(L_CTR, 0xff, 8, "g1", sleep=(OPT["sl"] >> 1) & 1)
if OPT["t0f"]:
    E(f"""
    s_waitcnt vmcnt(2)
    s_mov_b64 exec, 1
    ds_add_u32 v18, v19 offset:{L_AU}
    s_mov_b64 exec, -1
    s_or_b32 s30, s33, s{S_SAFE}
    s_cbranch_scc0 L_t0
    """)
staged()
STAMP(3)
NP = 8
RA = 72; RB = RA + 4*NP; RAD = RB + 4*NP
J3N, J12, J3N2, CELL, ROWA, FOUR, L0M, ACC, ENT, CAD = 156, 157, 158, 159, 160, 161, 162, 163, 164, 166
def rec_setup():
    E(f"""
    v_and_b32 v3, 15, v1                    ; j
    v_lshrrev_b32 v2, 4, v1
    v_lshl_add_u32 v{CELL}, v2, 3, v3
    s_lshl_b32 s30, s29, 5
    v_add_u32 v{CELL}, s30, v{CELL}
    s_lshl_b32 s30, s{S_BUCK}, 3
    s_add_u32 s30, s30, {WS_ROW}
    v_lshl_add_u32 v{ROWA}, v{CELL}, 10, s30
    v_cmp_gt_u32 s[66:67], {NP}, v3
    v_cmp_gt_u32 vcc, {NCHUNK}, v{CELL}
    v_mov_b32 v{ENT}, 0
    s_and_b64 s[66:67], s[66:67], vcc
    s_mov_b64 exec, s[66:67]
    global_load_dwordx2 v[{ENT}:{ENT+1}], v{ROWA}, s[20:21] sc1
    s_mov_b64 exec, -1
    v_mul_u32_u24 v{CELL}, {SORTB//4}, v{CELL}
    v_add_u32 v{CELL}, {WS_REC//4}, v{CELL}
    v_mul_u32_u24 v{J12}, 12, v3
    v_mul_u32_u24 v{J3N}, 3, v3
    v_not_b32 v{J3N}, v{J3N}
    v_subrev_u32 v{J3N2}, 48, v{J3N}
    v_subrev_u32 v{L0M}, 1, v3
    v_ashrrev_i32 v{L0M}, 31, v{L0M}            ; all ones in the first lane of each row
    v_mov_b32 v{FOUR}, 4
    """)
WF = 20; XF = 52; AC = 132
def wreads(ks):
    for t in range(2):
        for rd in range(2):
            r = WF + 16*t + 4*ks + 2*rd
            E(f"ds_read_b64_tr_b16 v[{r}:{r+1}], v10 offset:{t*16384 + ks*4096 + rd*512}")
def xread(rt, ks):
    r = XF + 16*rt + 4*ks
    return f"ds_read_b128 v[{r}:{r+3}], v{12+ks} offset:{rt*4096}"
def mf(rt, ks, transposed):
    for t in range(2):
        a = XF + 16*rt + 4*ks; w = WF + 16*t + 4*ks; d = AC + 8*(rt % 3) + 4*t
        c = "0" if ks == 0 else f"v[{d}:{d+3}]"
        if transposed: a, w = w, a
        E(f"v_mfma_f32_16x16x32_bf16 v[{d}:{d+3}], v[{a}:{a+3}], v[{w}:{w+3}], {c}")
def gemm(transposed, finish, before_first):
    for ks in range(3):
        E(xread(0, ks)); wreads(ks)
    E("s_waitcnt lgkmcnt(10)"); mf(0, 0, transposed)
    E(xread(0, 3)); wreads(3)
    E("s_waitcnt lgkmcnt(10)"); mf(0, 1, transposed)
    for ks in range(4): E(xread(1, ks))
    E("s_waitcnt lgkmcnt(9)"); mf(0, 2, transposed)
    for ks in range(4): E(xread(2, ks))
    E("s_waitcnt lgkmcnt(8)"); mf(0, 3, transposed)
    for ks in range(4): E(xread(3, ks))
    if OPT["p0e"]:
        E("s_nop 3"); finish(0)
    E("s_waitcnt lgkmcnt(8)")
    for ks in range(4):
        mf(1, ks, transposed); E(xread(4, ks))
    E(f"""
    s_mov_b64 exec, 1
    ds_add_u32 v18, v19 offset:{L_RD}
    s_mov_b64 exec, -1
    """)
    before_first()
    if not OPT["p0e"]: finish(0)
    E("s_waitcnt lgkmcnt(0)")
    for rt in range(2, 5):
        for ks in range(4): mf(rt, ks, transposed)
        finish(rt-1)
    finish(4)
def pack(rt):
    b = AC + 8*(rt % 3); h = b + 4
    for r in range(4): E(f"v_mul_f32 v{b+r}, s40, v{b+r}")
    for r in range(4): E(f"v_fma_f32 v{h+r}, v{h+r}, s42, v17")
    E(f"""
    v_cvt_pk_bf16_f32 v4, v{b}, v{b+1}
    v_cvt_pk_bf16_f32 v5, v{b+2}, v{b+3}
    v_xor_b32 v2, 0x80008000, v4
    v_xor_b32 v3, 0x80008000, v5
    v_sub_u32_sdwa v{h}, v{h}, sext(v2) dst_sel:DWORD dst_unused:UNUSED_PAD src0_sel:DWORD src1_sel:WORD_0
    v_sub_u32_sdwa v{h+1}, v{h+1}, sext(v2) dst_sel:DWORD dst_unused:UNUSED_PAD src0_sel:DWORD src1_sel:WORD_1
    v_sub_u32_sdwa v{h+2}, v{h+2}, sext(v3) dst_sel:DWORD dst_unused:UNUSED_PAD src0_sel:DWORD src1_sel:WORD_0
    v_sub_u32_sdwa v{h+3}, v{h+3}, sext(v3) dst_sel:DWORD dst_unused:UNUSED_PAD src0_sel:DWORD src1_sel:WORD_1
    """)
    w = (OPT["gp"] >> (4*(4-rt))) & 15 if OPT["gp"] else OPT["gpace"]
    if 0 <= w < 4*rt: E(f"s_waitcnt vmcnt({w})")
    if OPT["pre"] and rt == 5 - OPT["pre"]: lds_wait(L_SCNT + 126*4, 0xff, 4, "pre")
    if rt + 1 in (OPT["eah"], OPT["rih"]): lds_wait(L_EAOK, 0xff, 4, "eah")
    if OPT["ghold"] == rt + 1:
        E("v_mov_b32 v6, v2\nv_mov_b32 v7, v3"); lds_wait(L_CTR, 0xff00, 0x400, "gh", sleep=1); E("v_mov_b32 v2, v6\nv_mov_b32 v3, v7")
    for r in range(4):
        E(f"v_perm_b32 v{h+r}, v{h+r}, v{4 + (r>>1)}, s{44 + (r&1)}")
        if OPT["gwin"] >= 0: E(f"s_waitcnt vmcnt({OPT['gwin']})")
        E(f"global_store_dword v11, v{h+r}, s[20:21] offset:{256*r} sc1")
    if rt < 4: E("v_add_u32 v11, 0x1000, v11")
def fin(rt):
    a = AC + 8*(rt % 3); u = a + 4
    for r in range(4): E(f"v_mul_f32 v{a+r}, s40, v{a+r}")
    for r in range(4): E(f"v_mul_f32 v{u+r}, s42, v{u+r}")
    E(f"""
    v_cvt_pk_bf16_f32 v{a}, v{a}, v{a+1}
    v_cvt_pk_bf16_f32 v{a+1}, v{a+2}, v{a+3}
    v_cvt_f64_f32 v[2:3], v{u}
    v_cvt_f64_f32 v[4:5], v{u+1}
    v_cvt_f64_f32 v[6:7], v{u+2}
    v_cvt_f64_f32 v[8:9], v{u+3}
    ds_write_b64 v16, v[{a}:{a+1}] offset:512
    ds_write2_b64 v16, v[2:3], v[4:5] offset0:0 offset1:16
    ds_write2_b64 v16, v[6:7], v[8:9] offset0:32 offset1:48
    """)
    if rt < 4: E(f"v_add_u32 v16, {16*NSTR}, v16")
E(f"""
    s_cmp_lg_u32 s33, 0
    s_cbranch_scc1 L_gemm2
    s_cmp_lg_u32 s{S_SAFE}, 0
    s_cbranch_scc1 L_nog1
    s_setprio 2
""")
if OPT["t0f"]:
    E("L_t0:\ns_setprio 2")
    lds_wait(L_AU, 0xff, 8, "t0")
    STAMP(3)
    for ks in range(3):
        E(xread(0, ks)); wreads(ks)
    E("s_waitcnt lgkmcnt(10)"); mf(0, 0, False)
    E(xread(0, 3)); wreads(3)
    for ks in range(1, 4):
        E(f"s_waitcnt lgkmcnt({15 - 5*ks})"); mf(0, ks, False)
    E("s_nop 7"); pack(0)
    get_tag("t", 160)
    E(f"""
    s_waitcnt vmcnt(4)
    s_mov_b64 exec, 1
    ds_add_u32 v18, v19 offset:{L_CTR}
    s_mov_b64 exec, -1
    """)
    lds_wait(L_CTR, 0xff, 8, "t1")
    for rt in range(1, 4):
        for ks in range(4): E(xread(rt, ks))
    E("s_waitcnt lgkmcnt(8)")
    for ks in range(4):
        mf(1, ks, False); E(xread(4, ks))
    E(f"""
    s_mov_b64 exec, 1
    ds_add_u32 v18, v19 offset:{L_RD}
    s_mov_b64 exec, -1
    s_nop 3
    """)
    pack(1)
    E("s_waitcnt lgkmcnt(0)")
    for ks in range(4): mf(2, ks, False)
    for rt in range(3, 5):
        for ks in range(4): mf(rt, ks, False)
        pack(rt-1)
    pack(4)
else: gemm(False, pack, lambda: lds_wait(L_CTR, {1: 0x80000, 2: 0xc0000}[OPT["hold"]], 0, "hold", sleep=1, ne=True) if OPT["hold"] else None)
E("s_setprio 0")
if OPT["gate"] or OPT["gate2"] >= 3:
    E(f"""
    s_mov_b64 exec, 1
    ds_add_u32 v18, v19 offset:{L_GST}
    s_mov_b64 exec, -1
    """)
STAMP(4)
if OPT["tagl"]: get_tag("g", 160)
main_consts()
E(f"""
    s_lshl_b32 s30, s{S_P}, 7
    s_add_u32 s30, s30, {WS_FL2}
    v_mov_b32 v60, s30
    v_mov_b32 v62, s{S_TAG}
    v_mov_b32 v63, s{S_TAG+1}
    v_mov_b32 v2, 0
    v_mov_b32 v3, 1
    s_lshl_b32 s30, s32, 13
    s_lshl_b32 s31, s{S_HALF}, 7
    s_add_u32 s30, s30, s31
    s_add_u32 s30, s30, {WS_FL2}
    v_lshl_add_u32 v64, v1, 8, s30
    s_mul_i32 s30, s32, {2560*256}
    s_lshr_b32 s31, s2, 3
    s_mul_i32 s31, s31, {160*128}
    s_add_u32 s30, s30, s31
    v_lshl_add_u32 v65, v1, 7, s30
    {'' if OPT['gpe'] else 'v_min_u32 v65, %d, v65' % (G_HALF - 128)}
    s_mul_i32 s30, s{S_HALF}, {G_HALF}
    v_add_u32 v65, s30, v65
    s_mov_b64 exec, 1
    s_waitcnt vmcnt(0)
    ds_add_rtn_u32 v61, v2, v3 offset:{L_DONE2}
    s_waitcnt lgkmcnt(0)
    v_readfirstlane_b32 s30, v61
    s_cmp_lg_u32 s30, 3
    s_cbranch_scc1 L_nofl
    global_store_dwordx2 v60, v[62:63], s[20:21] sc1
    ds_add_u32 v2, v3 offset:{L_DONE2}
L_nofl:
""")
STAMP(5)
if OPT["p2gate"]:
    E("s_mov_b64 exec, -1")
    lds_wait(L_CTR, 0xff0000, 0x080000, "pg", sleep=OPT["pgs"])
    E("s_mov_b32 exec_hi, 0")
if OPT["p2wait"]: E(f"s_sleep {OPT['p2wait']}")
STAMP(6)
def gready(lab):
    if OPT["gpe"]: E(f"s_cmp_lg_u32 s73, 0\ns_cbranch_scc1 L_gr{lab}")
    if OPT["gpf"]:
        E(f"""
        {"s_bfm_b64 exec, %d, 0" % OPT["gpf"] if OPT["gpf"] < 64 else "s_mov_b64 exec, -1"}
        global_load_dword v35, v65, s[20:21] sc1
        """)
    E(f"""
L_gr{lab}:
    s_mov_b64 exec, 1
    v_mov_b32 v2, 0
    v_mov_b32 v3, 1
    ds_add_u32 v2, v3 offset:{L_GOK}
    """)
E(f"""
; each of the four waves checks the flags of 32 producers of this half: once now, again after the barrier if needed
    s_cmp_eq_u32 s32, 3
    s_cselect_b32 exec_lo, 0x1fffffff, -1
    {"" if OPT["p1st"] else "s_mov_b64 s[66:67], exec"}
    {"" if OPT["p1st"] else "s_branch L_p2n"}
    global_load_dwordx2 v[66:67], v64, s[20:21] sc1
    s_waitcnt vmcnt(0)
    v_cmp_ne_u64 s[66:67], s[{S_TAG}:{S_TAG+1}], v[66:67]
""")
if OPT["gpe"]:
    n = OPT["gpe"]
    E(f"""
    s_mov_b32 s73, 0
    s_lshr_b32 s30, s2, 3
    s_bitcmp1_b32 s66, s30
    s_cbranch_scc1 L_nogpe
    s_mov_b32 s73, 1
    s_bitcmp1_b32 exec_lo, s30
    s_cbranch_scc0 L_nogpe
    """)
    for k in range(0, n, 64):
        E("s_mov_b64 exec, -1")
        if k: E(f"v_add_u32 v65, 8192, v65")
        if n - k < 64: E(f"s_bfm_b64 exec, {n-k}, 0")
        E(f"global_load_dword v{(35, 68, 69)[k//64]}, v65, s[20:21] sc1")
    E("L_nogpe:")
E(f"""
    s_cmp_lg_u64 s[66:67], 0
    s_cbranch_scc1 L_p2n
""")
gready("a")
E("L_p2n:\ns_mov_b64 exec, -1")
STAMP(7)
E(f"""
    s_branch L_b4
L_nog1:
    s_mov_b64 exec, 1
    ds_add_u32 v18, v19 offset:{L_RD}
    s_mov_b64 exec, -1
    s_branch L_rec
L_gemm2:
""")
if not OPT['aul'] and not OPT['aue']: stage_au()
for rt in range(5):
    for ks in range(4): E(xread(rt, ks))
E(f"""
    s_mov_b64 exec, 1
    ds_add_u32 v18, v19 offset:{L_RD}
    s_mov_b64 exec, -1
""")
if OPT['aul']:
    lds_wait(L_RD, 8, 8, "aul"); stage_au()
E(f"""
    s_mov_b64 exec, 1
    s_waitcnt vmcnt(0)
    ds_add_u32 v18, v19 offset:{L_RD}
    s_mov_b64 exec, -1
    s_sub_u32 s29, s3, 4
""")
rec_setup()
lds_wait(L_RD, 0xff, 12, "rd", sleep=(OPT["sl"] >> 2) & 1)
for ks in range(4): wreads(ks)
for ks in range(4):
    E(f"s_waitcnt lgkmcnt({12 - 4*ks})"); mf(0, ks, True)
for rt in range(1, 5):
    for ks in range(4): mf(rt, ks, True)
    fin(rt-1)
fin(4)
if OPT["tagl"]: get_tag("h", 144)
STAMP(4)
E(f"""
    s_branch L_rec
L_sort:
""")
STAMP(1)
E(f"""
    s_mov_b32 s40, {f32(-LOG2E)}
    s_mov_b32 s46, 0x3f80
    s_cmp_lg_u32 s{S_SAFE}, 0
    s_cbranch_scc1 L_sortskip
    v_mov_b32 v21, 1
    v_mov_b32 v20, 3
    s_mov_b32 s31, 52429
    s_movk_i32 s32, -20
    v_lshlrev_b32 v9, 3, v1
    v_lshlrev_b32 v33, 4, v0
    s_mul_i32 s30, s{S_P}, {SORTB}
    s_add_u32 s30, s30, {WS_REC + 4096}
    v_add_u32 v32, s30, v33                 ; copy-out global offset
    v_add_u32 v34, 8192, v32
    s_lshl_b32 s30, s{S_P}, 10
    s_add_u32 s30, s30, {WS_ROW}
    v_lshl_add_u32 v42, v1, 4, s30
    s_mov_b32 s34, {LDS_MAX}
    s_setprio 3
""")
E6 = OPT["ewhen"] in (0, 6, 7)
if OPT["ewhen"] == 6:
    E("v_mov_b32 v19, v3")
    lds_wait(L_CTR, 0xff000000, 0x08000000, "ew")
    E("v_mov_b32 v3, v19\ns_mov_b32 s31, 52429")
    E(f"""
    global_load_dwordx4 v[12:15], v3, s[8:9]{NTE}
    global_load_dword v16, v18, s[8:9]{NTE}
    global_load_dwordx4 v[52:55], v10, s[6:7]{NTE}
    global_load_dwordx4 v[56:59], v10, s[6:7] offset:16{NTE}
    global_load_dwordx2 v[60:61], v11, s[6:7]{NTE}
""")
E(f"""
    s_waitcnt vmcnt({(0 if STG else 1) + OPT['pre'] + 5*E6})
""")
STAMP(2)
FSTAMP(1)
for i in range(5):
    E(f"""
    v_mul_u32_u24 v{22+i}, s31, v{4+i}
    v_lshrrev_b32 v{22+i}, 22, v{22+i}
    v_lshlrev_b32 v{22+i}, 2, v{22+i}        ; bucket*4
    ds_add_rtn_u32 v{27+i}, v{22+i}, v20 offset:{L_SCNT}
    """)
E(f"""
    s_mov_b64 exec, 1
    s_cmp_lg_u32 s3, 0
    s_cbranch_scc1 L_notag
    {"s_waitcnt lgkmcnt(0)" if STG else "s_waitcnt vmcnt(%d)" % (OPT['pre'] + 5*E6)}
    {"v_mov_b32 v43, s65" if STG else ""}
""")
if OPT["probe"] == 12: STAMP(12)
E(f"""
    ds_write_b32 v48, v43 offset:{L_SCNT + 125*4}
L_notag:
    ds_add_u32 v48, v21 offset:{L_SCNT + 127*4}  ; arrival count of the four waves (LDS runs a wave's ops in order)
    s_mov_b64 exec, -1
""")
if OPT["ewhen"] == 1: E(f"""
    global_load_dwordx4 v[12:15], v3, s[8:9]{NTE}
    global_load_dword v16, v18, s[8:9]{NTE}
    global_load_dwordx4 v[52:55], v10, s[6:7]{NTE}
    global_load_dwordx4 v[56:59], v10, s[6:7] offset:16{NTE}
    global_load_dwordx2 v[60:61], v11, s[6:7]{NTE}
""")
E(f"""
    {"s_mov_b32 s65, 0" if OPT["ewhen"] == 8 else ""}
L_s1:
    ds_read_b32 v38, v48 offset:{L_SCNT + 127*4}
    {f"ds_read_b32 v39, v48 offset:{L_CTR}" if OPT["ewhen"] == 8 else ""}
    ds_read_b64 v[36:37], v9 offset:{L_SCNT}
    s_sub_u32 s34, s34, 1
    s_cbranch_scc1 L_s1d
    s_waitcnt lgkmcnt(0)
""")
if OPT["ewhen"] == 8: E(f"""
    v_readfirstlane_b32 s30, v39
    s_lshr_b32 s30, s30, 27
    s_cmp_le_u32 s30, s65
    s_cbranch_scc1 L_e8a
    s_mov_b32 s65, 1
    global_load_dwordx4 v[12:15], v3, s[8:9]{NTE}
    global_load_dword v16, v18, s[8:9]{NTE}
    global_load_dwordx4 v[52:55], v10, s[6:7]{NTE}
    global_load_dwordx4 v[56:59], v10, s[6:7] offset:16{NTE}
    global_load_dwordx2 v[60:61], v11, s[6:7]{NTE}
L_e8a:
""")
E(f"""
    v_readfirstlane_b32 s30, v38
    s_cmp_lg_u32 s30, 4
    s_cbranch_scc1 L_s1
L_s1d:
""")
FSTAMP(2)
E(f"""
    v_add3_u32 v39, v36, v37, 2
    v_add3_u32 v38, v36, v37, 2
    v_readlane_b32 s{S_TAGRAW}, v37, 62
""")
fill = []
for i in range(5):
    fill += [f"v_mad_i32_i24 v{4+i}, v{22+i}, s32, v{4+i}", f"v_lshlrev_b32 v{4+i}, 24, v{4+i}"]
for k, m in enumerate(SCAN):
    E(f"v_add_u32_dpp v39, v39, v39 {m}")
    for x in fill[2*k:2*k+2]: E(x)
E(f"""
    v_sub_u32 v40, v39, v38
    v_add3_u32 v41, v40, v36, 1
    s_mov_b32 s30, {L_SORT}
    v_lshl_add_u32 v38, v40, 2, s30
    v_lshl_add_u32 v39, v41, 2, s30
    ds_write_b64 v9, v[38:39] offset:{L_SOFF}
""")
for i in range(5):
    E(f"ds_read_b32 v{22+i}, v{22+i} offset:{L_SOFF}")
finish_tag()
if OPT["ewhen"] in (9, 10):
    if OPT["ewhen"] == 9:
        E("v_mov_b32 v19, v3"); lds_wait(L_CTR, 0xff000000, 0x08000000, "ew"); E("v_mov_b32 v3, v19")
    E(f"""
    global_load_dwordx4 v[12:15], v3, s[8:9]{NTE}
    global_load_dword v16, v18, s[8:9]{NTE}
    global_load_dwordx4 v[52:55], v10, s[6:7]{NTE}
    global_load_dwordx4 v[56:59], v10, s[6:7] offset:16{NTE}
    global_load_dwordx2 v[60:61], v11, s[6:7]{NTE}
""")
E(f"""
    s_cmp_lg_u32 s3, 0
    s_cbranch_scc1 L_nopub
    s_and_b32 s35, s{S_TAG+1}, 0xff000000
    v_mov_b32 v45, s{S_TAG}
    v_mov_b32 v47, s{S_TAG}
    v_lshl_or_b32 v44, v36, 12, v40
    v_lshl_or_b32 v46, v37, 12, v41
    v_or_b32 v44, s35, v44
    v_or_b32 v46, s35, v46
    global_store_dwordx4 v42, v[44:47], s[20:21] sc1
    {"s_waitcnt vmcnt(1)" if OPT["ewhen"] in (0, 1, 6, 7, 9, 10) else ""}
    s_branch {"L_pub" if OPT["ewhen"] in (0, 1, 6, 7, 9, 10) else "L_nochk"}
L_nopub:
    s_cmp_lg_u32 s3, 1
    s_cbranch_scc1 L_nochk
    v_mov_b32 v44, s{S_TAG+1}
    s_mov_b32 exec_hi, 0x7fffffff
    ds_add_u32 v38, v44
    ds_add_u32 v39, v44
    s_mov_b32 exec_hi, -1
L_nochk:
""")
if OPT["ewhen"] == 8:
    E("s_cmp_lg_u32 s65, 0\ns_cbranch_scc1 L_e8b\nv_mov_b32 v19, v3")
    lds_wait(L_CTR, 0xff000000, 0x08000000, "ew")
    E(f"""
    v_mov_b32 v3, v19
    global_load_dwordx4 v[12:15], v3, s[8:9]{NTE}
    global_load_dword v16, v18, s[8:9]{NTE}
    global_load_dwordx4 v[52:55], v10, s[6:7]{NTE}
    global_load_dwordx4 v[56:59], v10, s[6:7] offset:16{NTE}
    global_load_dwordx2 v[60:61], v11, s[6:7]{NTE}
L_e8b:
""")
if 3 <= OPT["ewhen"] <= 5:
    E("v_mov_b32 v19, v3")
    if OPT["ewhen"] == 3: lds_wait(L_CTR, 0xff, 8, "ew")
    elif OPT["ewhen"] == 5: lds_wait(L_CTR, 0xff000000, 0x08000000, "ew")
    else: lds_wait(L_CTR, 0xff, 0, "ew", ne=True)
    E("v_mov_b32 v3, v19")
if 2 <= OPT["ewhen"] <= 5: E(f"""
    global_load_dwordx4 v[12:15], v3, s[8:9]{NTE}
    global_load_dword v16, v18, s[8:9]{NTE}
    global_load_dwordx4 v[52:55], v10, s[6:7]{NTE}
    global_load_dwordx4 v[56:59], v10, s[6:7] offset:16{NTE}
    global_load_dwordx2 v[60:61], v11, s[6:7]{NTE}
""")
E(f"""
    s_waitcnt vmcnt(0)
L_pub:
""")
if OPT["eah"]:
    E(f"""
    s_mov_b64 exec, 1
    ds_add_u32 v48, v21 offset:{L_EAOK}
    s_mov_b64 exec, -1
    """)
STAMP(4)
FSTAMP(3)
for i in range(5): E(f"v_lshl_or_b32 v{4+i}, v{12+i}, 8, v{4+i}")
E("s_waitcnt lgkmcnt(0)")
for i in range(5):
    E(f"""
    v_lshl_add_u32 v{27+i}, v{27+i}, 2, v{22+i}
    v_add3_u32 v{12+i}, v{52+2*i}, v{53+2*i}, v{4+i}
    ds_write2_b32 v{27+i}, v{52+2*i}, v{53+2*i} offset0:2 offset1:3
    ds_write_b32 v{27+i}, v{4+i} offset:4
    ds_sub_u32 v{22+i}, v{12+i}
    """)
E(f"""
    s_mov_b64 exec, 1
    ds_add_u32 v48, v21 offset:{L_SCNT + 126*4}
    s_mov_b64 exec, -1
""")
FSTAMP(4)
E(f"""
    s_mov_b32 s34, {LDS_MAX}
L_s2:
    ds_read_b32 v38, v48 offset:{L_SCNT + 126*4}
    {f"ds_read_b32 v39, v48 offset:{L_CTR}" if OPT["wgate"] else ""}
    ds_read_b128 v[72:75], v33 offset:{L_SORT}
    s_sub_u32 s34, s34, 1
    s_cbranch_scc1 L_s2d
    s_waitcnt lgkmcnt(1)
    v_readfirstlane_b32 s30, v38
""")
if OPT["wgate"]:
    E(f"""
    v_readfirstlane_b32 s31, v39
    s_lshr_b32 s31, s31, 24
    s_add_u32 s30, s30, s31
    """)
E(f"""
    s_cmp_lg_u32 s30, {12 if OPT["wgate"] else 4}
    s_cbranch_scc1 L_s2
L_s2d:
""")
FSTAMP(5)
E(f"""
    ds_read_b128 v[76:79], v33 offset:{L_SORT + 4096}
    ds_read_b128 v[80:83], v33 offset:{L_SORT + 8192}
    ds_read_b128 v[84:87], v33 offset:{L_SORT + 12288}
    s_waitcnt lgkmcnt(3)
    global_store_dwordx4 v32, v[72:75], s[20:21] offset:-4096 sc1
    s_waitcnt lgkmcnt(2)
    global_store_dwordx4 v32, v[76:79], s[20:21] sc1
    s_waitcnt lgkmcnt(1){f" vmcnt({OPT['rpace']})" if OPT['rpace'] >= 0 else ""}
    global_store_dwordx4 v34, v[80:83], s[20:21] offset:-4096 sc1
    s_cmp_eq_u32 s3, 3
    s_cselect_b32 exec_hi, 0, -1
    s_waitcnt lgkmcnt(0){f" vmcnt({OPT['rpace']})" if OPT['rpace'] >= 0 else ""}
    global_store_dwordx4 v34, v[84:87], s[20:21] sc1
    s_mov_b32 exec_hi, -1
""")
if OPT["rih"]:
    E(f"""
    s_mov_b64 exec, 1
    ds_add_u32 v48, v21 offset:{L_EAOK}
    s_mov_b64 exec, -1
    """)
FSTAMP(6)
for k in range(4): E(f"ds_write_b128 v33, v[48:51] offset:{L_SORT + 4096*k}")
STAMP(3)
FSTAMP(7)
E(f"""
    s_branch L_sortdone
L_sortskip:
    s_waitcnt vmcnt(0)
L_sortdone:
    s_mov_b32 s29, s3
""")
rec_setup()
E(f"""
L_rec:
""")
if OPT["mcl"]: E(f"s_cmp_ge_u32 s3, 8\ns_cbranch_scc1 L_nomc")
lds_wait(L_CTR, 0xff, 8, "r0")
if OPT["mcl"] != 2: main_consts()
E("L_nomc:")
STAMP(5)
E(f"""
    s_cmp_ge_u32 s3, 4
    s_cbranch_scc1 L_nod2
    v_mov_b32 v2, 0
    v_mov_b32 v3, 0x100
    s_mov_b64 exec, 1
    s_waitcnt vmcnt(0)
    ds_add_u32 v2, v3 offset:{L_CTR}
    s_mov_b64 exec, -1
L_nod2:
    s_cmp_lg_u32 s{S_SAFE}, 0
    s_cbranch_scc1 L_recskip
    s_lshr_b32 s35, s{S_TAG+1}, 24
    s_mov_b64 exec, s[66:67]
    s_mov_b32 s34, {POLL_MAX}
    s_branch L_p1c
L_p1:
    global_load_dwordx2 v[{ENT}:{ENT+1}], v{ROWA}, s[20:21] sc1
L_p1c:
    s_sub_u32 s34, s34, 1
    s_cbranch_scc1 L_toobig
    s_waitcnt vmcnt(0)
    v_cmp_ne_u32 vcc, s{S_TAG}, v{ENT+1}
    v_cmp_ne_u32_sdwa s[48:49], v{ENT}, s35 src0_sel:BYTE_3 src1_sel:DWORD
    s_or_b64 exec, vcc, s[48:49]
    s_cbranch_scc1 L_p1
    s_mov_b64 exec, -1
""")
STAMP(6)
if OPT["cnt"]: E(f"s_sub_u32 s{ST0+2}, {POLL_MAX+1}, s34\ns_mov_b32 s34, {POLL_MAX}")
E(f"""
    v_and_b32 v{CAD}, 0xfff, v{ENT}
    v_bfe_u32 v{ENT}, v{ENT}, 12, 12            ; 3*count
    v_add_lshl_u32 v{CAD}, v{CAD}, v{CELL}, 2
    v_cmp_ne_u32 vcc, 0, v{ENT}
    s_sub_u32 s30, 0, s{S_TAG+1}
    v_mov_b32 v2, s30
    v_cndmask_b32 v{ENT+1}, 0, v2, vcc
    v_cmp_lt_u32 vcc, 96, v{ENT}
    v_cmp_lt_u32 s[68:69], 48, v{ENT}
    s_cbranch_vccnz L_toobig
""")
for p in range(NP):
    E(f"""
    v_add_co_u32_dpp v2, vcc, v{ENT}, v{J3N} row_newbcast:{p} row_mask:0xf bank_mask:0xf
    v_add_u32_dpp v{RAD+p}, v{CAD}, v{J12} row_newbcast:{p} row_mask:0xf bank_mask:0xf
    s_mov_b64 s[{48+2*p}:{49+2*p}], vcc
    """)
lds_wait(L_CTR, 0xff00, 0x400, "r1", sleep=(OPT["sl"] >> 2) & 1)
if OPT["gate"]: lds_wait(L_GST, 0xff, 4, "gt")
if OPT["gate2"] == 1 and not OPT["split"]:
    if not OPT["allg"]: E("s_cmp_lt_u32 s3, 4\ns_cbranch_scc1 L_wd_g2")
    lds_wait(L_DONE2, 0xff, 5, "g2")
if OPT["gate2"] == 3:
    E("s_cmp_lt_u32 s3, 4\ns_cbranch_scc1 L_wd_g2")
    lds_wait(L_GST, 0xff, 4, "g2")
if OPT["gate2"] in (2, 4):
    E(f"""
    s_cmp_lt_u32 s3, 4
    s_cbranch_scc1 L_g2d
    s_mov_b32 s31, {POLL_MAX}
L_g2:
    ds_read_b128 v[60:63], v2 offset:{L_CTR}
    {f"ds_read_b32 v61, v2 offset:{L_GST}" if OPT["gate2"] == 4 else ""}
    s_sub_u32 s31, s31, 1
    s_cbranch_scc1 L_g2d
    s_waitcnt lgkmcnt(0)
    v_readfirstlane_b32 s30, v62
    v_readfirstlane_b32 s28, v60
    v_readfirstlane_b32 s29, v61
    s_cmp_eq_u32 s30, 5
    s_cbranch_scc1 L_g2d
    {"s_cmp_lg_u32 s29, 4" if OPT["gate2"] == 4 else ""}
    {"s_cbranch_scc1 L_g2" if OPT["gate2"] == 4 else ""}
    s_and_b32 s28, s28, 0xc0000
    s_cbranch_scc0 L_g2
L_g2d:
    """)
E(f"""
    s_or_b32 s68, s68, s69
    s_lshr_b32 s69, s68, 16
    s_or_b32 s68, s68, s69
""")
def mask2(p): return f"v_add_co_u32_dpp v2, vcc, v{ENT}, v{J3N2} row_newbcast:{p} row_mask:0xf bank_mask:0xf"
def loads(ps, lab):
    E(f"s_and_b32 s30, s68, {sum(1 << p for p in ps)}\ns_cbranch_scc0 L_nx{lab}")
    for p in ps:
        r = RB + 4*p
        E(f"""
        s_bitcmp1_b32 s68, {p}
        s_cbranch_scc0 L_nx{lab}{p}
        {mask2(p)}
        s_mov_b64 exec, vcc
        global_load_dwordx4 v[{r}:{r+3}], v{RAD+p}, s[20:21] offset:192 sc1
        s_mov_b64 exec, -1
L_nx{lab}{p}:
        """)
    E(f"L_nx{lab}:")
    for p in ps:
        r = RA + 4*p
        E(f"""
        s_mov_b64 exec, s[{48+2*p}:{49+2*p}]
        global_load_dwordx4 v[{r}:{r+3}], v{RAD+p}, s[20:21]{SC1 if (OPT["rsc1"] or lab != "m") else ""}
        """)
    E("s_mov_b64 exec, -1")
SP = OPT["split"]
GROUPS = {0: ((0,1,2,3),(4,5),(6,7)), 4: ((0,1,2,3),(4,5),(6,7)), 5: ((0,1,2),(3,4),(5,6,7)), 6: ((0,1,2,3),(4,5),(6,7)), 3: ((0,1,2),(3,4,5),(6,7)), 2: ((0,1),(2,3,4,5),(6,7)), 1: ((0,),(1,2,3,4),(5,6,7))}[SP]
if OPT['grp'] == 1: GROUPS = ((0,1),(2,3,4),(5,6,7))
if OPT['grp'] == 2: GROUPS = ((0,1),(2,3),(4,5),(6,7))
if OPT['grp'] == 3: GROUPS = (tuple(range(SP)), tuple(range(SP, NP)))
if OPT['grp'] == 4: GROUPS = ((0,1,2),(3,4,5,6),(7,))
loads(range(SP or NP), "m")
if OPT["eag"]:
    E(f"""
    v_mov_b32 v2, 0
    ds_read_b32 v3, v2 offset:{L_DONE2}
    s_waitcnt lgkmcnt(0)
    v_readfirstlane_b32 s73, v3
    s_cmp_lg_u32 s73, 5
    s_cbranch_scc1 L_neag
    """)
    loads(range(SP, NP), "e")
    E("L_neag:")
def issued():
    if OPT["p2gate"]:
        E(f"""
        v_mov_b32 v2, 0
        v_mov_b32 v3, 0x10000
        s_mov_b64 exec, 1
        ds_add_u32 v2, v3 offset:{L_CTR}
        s_mov_b64 exec, -1
        """)
if OPT["mcl"]:
    if OPT["mcl"] == 1: E(f"s_cmp_lt_u32 s3, 8\ns_cbranch_scc1 L_nomc2")
    main_consts(28); E("L_nomc2:")
if not OPT["sig"]: issued()
STAMP(7)
def rank(r, m):
    E(f"""
    s_mov_b64 exec, {m}
    v_mul_u32_u24_sdwa v{r}, v{FOUR}, v{r+1} dst_sel:DWORD dst_unused:UNUSED_PAD src0_sel:DWORD src1_sel:BYTE_3
    v_and_b32 v{r+1}, {OPT['srcmask']}, v{r+1}
    ds_add_rtn_u32 v{r}, v{r}, v{FOUR} offset:{L_CNT}
    """)
def put(r, m):
    E(f"""
    s_mov_b64 exec, {m}
    v_lshlrev_b32 v2, 1, v{r}
    ds_write_b32 v{r}, v{r+1}
    ds_write_b64 v2, v[{r+2}:{r+3}] offset:{L_EA - 2*L_SRC}
    """)
retries = []
pending = []
for gi, grp in enumerate(GROUPS):
    bits = sum(1 << p for p in grp); m32 = bits | (bits << 16)
    if SP and grp[0] == SP:
        if OPT["eag"]: E("s_cmp_eq_u32 s73, 5\ns_cbranch_scc1 L_eagd")
        lds_wait(L_DONE2, 0xff, 5, "g2", sleep=(OPT["sl"] >> 3) & 1)
        loads(range(SP, NP), "n")
        E("L_eagd:")
        if OPT["sig"] == 9:
            if OPT["sigw"]: E(f"s_waitcnt vmcnt({NP - SP - OPT['sigw']})")
            issued()
    last = NP if (not SP or grp[0] >= SP) else SP
    first_ = 0 if (not SP or grp[0] < SP) else SP
    E(f"""
L_ck{gi}:
    s_mov_b32 vcc_lo, {m32}
    s_mov_b32 vcc_hi, {m32}
    v_cndmask_b32 v{ACC}, 0, v{ENT+1}, vcc
    s_and_b32 s30, s68, {bits}
    s_cbranch_scc1 L_xa{gi}
L_xb{gi}:
    """)
    def xacc():
        E(f"L_xa{gi}:\ns_waitcnt vmcnt({last - first_})")
        for p in grp:
            r = RB + 4*p
            E(f"""
            {mask2(p)}
            s_mov_b64 exec, vcc
            v_add3_u32 v{ACC}, v{ACC}, v{r+1}, v{r+2}
            v_add_u32 v{ACC}, v{ACC}, v{r+3}
            s_mov_b64 exec, -1
            """)
        E(f"s_branch L_xb{gi}")
    emit_to(outofline, xacc)
    for p in grp:
        r = RA + 4*p
        E(f"""
        s_waitcnt vmcnt({last-1-p})
        s_mov_b64 exec, s[{48+2*p}:{49+2*p}]
        v_and_b32 v{r}, v{r}, v{L0M}
        v_add3_u32 v{ACC}, v{ACC}, v{r+2}, v{r+3}
        v_add3_u32 v{ACC}, v{ACC}, v{r}, v{r+1}
        """)
    E("s_mov_b64 exec, -1\ns_nop 0")
    for k in (1, 2, 4, 8):
        E(f"v_add_u32_dpp v{ACC}, v{ACC}, v{ACC} row_ror:{k} row_mask:0xf bank_mask:0xf")
        if k < 8: E("s_nop 1")
    E(f"v_cmp_ne_u32 vcc, 0, v{ACC}\ns_cbranch_vccnz L_rt{gi}")
    if OPT["rst"]: STAMP(1+gi)
    if OPT["sig"] == gi + 1: issued()
    def retry():
        E(f"L_rt{gi}:\ns_sub_u32 s34, s34, 1\ns_cbranch_scc1 {'L_toobig' if (gi < OPT['sig'] if OPT['sig'] != 9 else grp[0] < SP) else 'L_giveup'}")
        loads(grp, f"r{gi}_")
        E(f"s_waitcnt vmcnt(0)\ns_branch L_ck{gi}")
    emit_to(outofline, retry)
    for p in grp: rank(RA + 4*p, f"s[{48+2*p}:{49+2*p}]")
    E(f"s_and_b32 s30, s68, {bits}\ns_cbranch_scc1 L_ya{gi}\nL_yb{gi}:")
    def xput():
        E(f"L_ya{gi}:")
        for p in grp:
            r = RB + 4*p
            E(f"""
            s_bitcmp1_b32 s68, {p}
            s_cbranch_scc0 L_yn{p}
            s_mov_b64 exec, -1
            {mask2(p)}
            """)
            rank(r, "vcc")
            E("s_waitcnt lgkmcnt(0)")
            put(r, "vcc")
            E(f"L_yn{p}:")
        E(f"s_branch L_yb{gi}")
    emit_to(outofline, xput)
    for k, p in enumerate(grp):
        E(f"s_waitcnt lgkmcnt({len(grp) - 1 - k + 2*k})")
        put(RA + 4*p, f"s[{48+2*p}:{49+2*p}]")
    E("s_mov_b64 exec, -1")
E(f"""
    {f"s_sub_u32 s{ST0+4}, {POLL_MAX+1}, s34" if OPT["cnt"] else ""}
    s_branch L_b4
L_toobig:
    s_mov_b64 exec, -1
""")
issued()
E(f"""
L_giveup:
    v_mov_b32 v2, 0
    ds_write_b32 v2, v{FOUR} offset:{L_FLAG}
L_recskip:
    s_waitcnt vmcnt(0)
""")
if OPT["mcl"]: main_consts()
E(f"""
; ---------------- all waves: main loop
L_b4:
    s_setprio {OPT["p0"] if OPT["prio"] == 2 else 0}
    s_mul_i32 s30, s{S_HALF}, {G_HALF}
    {f"s_add_u32 s30, s30, {WS0}" if WS0 else ""}
    s_add_u32 s36, s20, s30
    s_addc_u32 s37, s21, 0
    s_mov_b32 s38, {OPT['nrec'] or G_HALF}
    s_mov_b32 s39, 0x20000
    s_mov_b32 s44, 128
    s_mov_b32 s45, 128
    ds_read_b128 v[{WS4}:{WS4+3}], v{LP}
    ds_read_b64 v[{AG}:{AG+1}], v{LP} offset:64
    ds_read_b64 v[{WN2}:{WN2+1}], v{LP} offset:72
    ds_read_b32 v{WE}, v{LP+1}
    s_waitcnt lgkmcnt(0)
    v_lshl_add_u64 v[{AG}:{AG+1}], v[{AG}:{AG+1}], 0, v[{LN8}:{LN8+1}]
    v_lshl_add_u32 v{WE}, v{WE}, 1, v{EAC}
""")
assert OPT["gpe"] <= 64 and not OPT["ptime"]
if OPT["warm"]:
    E(f"""
    s_barrier
    s_lshr_b32 s30, s2, 3
    s_mul_i32 s30, s30, 98304
    v_lshl_add_u32 v2, v0, 7, s30
    buffer_load_dword v3, v2, s[36:39], 0 offen sc1
    s_waitcnt vmcnt(0)
    s_sleep 40
    """)
STAMP(8)
E(f"""
    s_barrier                               ; B4
    s_cmp_lg_u32 s{S_SAFE}, 0
    s_cbranch_scc1 L_safe
    ds_read_b128 v[{T}:{T+3}], v{WS4}
    ds_read_b128 v[{T+4}:{T+7}], v{WS4+1}
    ds_read_b64 v[{XA}:{XA+1}], v{AG} offset:512
    ds_read_b64 v[{EA}:{EA+1}], v{WE}
    s_lshr_b32 s30, s3, 2
    s_cmp_lg_u32 s30, 1
    s_cbranch_scc1 L_nopoll
    s_mov_b64 exec, s[66:67]
    s_cbranch_execz L_p2e
    s_mov_b32 s31, {POLL_MAX}
L_p2:
    global_load_dwordx2 v[66:67], v64, s[20:21] sc1
    s_sub_u32 s31, s31, 1
    s_cbranch_scc1 L_p2d
    s_waitcnt vmcnt(0)
    v_cmp_ne_u64 vcc, s[{S_TAG}:{S_TAG+1}], v[66:67]
    s_and_b64 exec, exec, vcc
    s_cbranch_scc0 L_p2d
    {f"s_sleep {OPT['p2sleep']}" if OPT['p2sleep'] else ""}
    s_branch L_p2
L_p2d:
""")
gready("b")
E(f"""
L_p2e:
    s_mov_b64 exec, -1
L_nopoll:
    s_cmp_lt_u32 s3, 8
    s_cbranch_scc1 L_nobuild
; waves 8..11: place the edges past the 24th of every node: blocks of 8 (two tiles), then remainders of up to 4
    v_lshlrev_b32 v2, 3, v1
    v_mov_b32 v3, 0
    ds_read_b64 v[72:73], v2 offset:{L_CNT}
    ds_read_b32 v79, v3 offset:{L_FLAG}
    v_mul_u32_u24 v74, {2*SSTR}, v1
    v_add_u32 v74, {L_SRC + 96}, v74
    v_add_u32 v75, {SSTR}, v74
    v_mul_u32_u24 v82, {2*NSTR}, v1
    s_and_b32 s32, s3, 1
    s_mul_i32 s30, s32, {NSTR}
    s_add_u32 s30, s30, {L_NODE}
    v_add_u32 v82, s30, v82
    v_mov_b32 v83, v82
    s_mul_i32 s30, s32, {SSTR}
    v_add_u32 v80, s30, v74
    v_add_u32 v81, 16, v80
    s_waitcnt lgkmcnt(0)
    v_sub_u32 v72, v72, v74 clamp
    v_sub_u32 v73, v73, v75 clamp
    v_max_u32 v76, v72, v73
    v_cmp_lt_u32 vcc, 160, v76
    v_cmp_ne_u32 s[48:49], 0, v79
    v_add_u32 v74, 12, v72
    v_add_u32 v75, 12, v73
    s_or_b64 vcc, vcc, s[48:49]
    s_cbranch_scc1 L_bad
    v_add_u32 v72, 28, v72
    v_add_u32 v73, 28, v73
    v_lshrrev_b32 v74, 5, v74
    v_lshrrev_b32 v75, 5, v75
    v_lshrrev_b32 v72, 5, v72
    v_lshrrev_b32 v73, 5, v73
    v_sub_u32 v72, v72, v74
    v_sub_u32 v73, v73, v75
    v_lshl_or_b32 v72, v72, 16, v74
    v_lshl_or_b32 v73, v73, 16, v75
    v_add_u32 v76, v72, v73
    v_add_u32 v77, v72, v73
""")
scan(77)
E(f"""
    s_cmp_eq_u32 s32, 0
    s_cselect_b64 vcc, -1, 0
    v_readlane_b32 s30, v77, 63
    v_cndmask_b32 v76, v73, v76, vcc
    v_cndmask_b32 v72, v73, v72, vcc
    v_sub_u32 v77, v77, v76
    s_and_b32 s50, s30, 0xffff
    s_add_u32 s31, s50, 3
    s_lshr_b32 s31, s31, 2
    s_sub_u32 s51, 0, s50
    s_and_b32 s51, s51, 3                   ; spare quarters of the last such slot take remainders
    s_lshr_b32 s30, s30, 16
    s_add_u32 s30, s30, 3
    s_sub_u32 s30, s30, s51
    s_lshr_b32 s30, s30, 2
    s_lshl_b32 s33, s31, 1
    s_add_u32 s33, s33, s30
    s_cmp_gt_u32 s33, 104
    s_cbranch_scc1 L_bad
    s_lshl_b32 s30, s30, 8
    s_or_b32 s29, s30, s31
    v_and_b32 v74, 0xffff, v72
    v_and_b32 v76, 0xffff, v77
    s_mov_b32 s34, {L_LISTC}
    s_mov_b32 s35, {L_LIST + 136}
""")
def slotaddr():
    E(f"""
    v_subrev_u32 v78, 32, v76
    v_bfe_u32 v79, v76, 2, 2
    v_lshl_add_u32 v79, v79, 10, s34
    v_lshrrev_b32 v84, 5, v78
    v_lshl_add_u32 v79, v84, 7, v79
    v_bfe_u32 v84, v78, 4, 1
    v_lshl_add_u32 v79, v84, 3, v79
    v_lshrrev_b32 v84, 2, v76
    v_cmp_gt_u32 vcc, 32, v76
    v_lshl_add_u32 v84, v84, 9, s35
    v_and_b32 v78, 3, v76
    v_cndmask_b32 v79, v79, v84, vcc
    v_lshl_add_u32 v79, v78, 4, v79
    """)
E("""
    s_cmp_lt_u32 s3, 10
    s_cbranch_scc1 L_brem
L_bf:
    v_cmp_ne_u32 vcc, 0, v74
    s_and_b64 exec, exec, vcc
    s_cbranch_execz L_bfd
""")
slotaddr()
E(f"""
    ds_write_b64 v79, v[80:81]
    ds_write_b64 v79, v[82:83] offset:64
    v_add_u32 v80, 32, v80
    v_add_u32 v81, 32, v81
    v_add_u32 v76, 1, v76
    v_subrev_u32 v74, 1, v74
    s_branch L_bf
L_brem:
    v_lshl_add_u32 v80, v74, 5, v80
    v_add_u32 v81, 16, v80
    v_lshrrev_b32 v77, 16, v77
    s_sub_u32 s52, 0, s31
    s_and_b32 s52, s52, 3
    s_add_u32 s53, s31, s52
    s_lshl_b32 s52, s52, 3
    v_subrev_u32 v73, s51, v77              ; j' = j - spare
    v_subrev_u32 v74, s52, v73
    v_lshrrev_b32 v76, 3, v73
    v_add_u32 v76, s31, v76
    v_and_b32 v75, 4, v73
    v_lshrrev_b32 v78, 5, v74
    v_lshl_add_u32 v78, v78, 2, s53
    v_bfe_u32 v79, v74, 2, 2
    v_add_u32 v78, v78, v79
    v_cmp_gt_u32 vcc, s52, v73
    v_lshrrev_b32 v74, 2, v74
    v_and_b32 v74, 4, v74
    v_cndmask_b32 v76, v78, v76, vcc        ; slot
    v_cndmask_b32 v75, v74, v75, vcc
    v_and_b32 v78, 3, v73
    v_cmp_gt_u32 s[54:55], s51, v77
    v_lshl_add_u32 v76, v76, 2, v78
    v_add_u32 v78, s50, v77
    v_cndmask_b32 v76, v76, v78, s[54:55]
""")
slotaddr()
E(f"""
    v_cmp_lt_u32 vcc, 0xffff, v72
    v_add_u32 v75, v79, v75
    s_andn2_b64 exec, vcc, s[54:55]
    ds_write2_b32 v75, v80, v82 offset0:0 offset1:16
    s_and_b64 exec, vcc, s[54:55]
    ds_write_b64 v79, v[80:81]
    ds_write_b64 v79, v[82:83] offset:64
L_bfd:
    s_mov_b64 exec, -1
    s_mov_b32 s56, s29
    s_cmp_eq_u32 s3, 8
    s_cselect_b32 s29, s29, 0
    s_add_u32 s29, s29, 0x10000
    s_branch L_built
L_bad:
    s_mov_b32 s56, 0
    s_mov_b32 s29, 0x1010000
L_built:
    v_mov_b32 v2, s29
    s_mov_b64 exec, 1
    ds_add_u32 v3, v2 offset:{L_NST}
    s_add_u32 s30, s{S_P}, s3
    s_cmp_lg_u32 s30, 8
    s_cbranch_scc1 L_notw
    v_mov_b32 v2, s{S_TAG}
    v_mov_b32 v3, {WS_TAG}
    global_store_dword v3, v2, s[20:21] sc1
L_notw:
    s_mov_b64 exec, -1
    v_mov_b32 v2, 0
    s_mov_b32 s30, s56
    s_and_b32 s31, s30, 0xff
    s_bfe_u32 s30, s30, 0x80008
    s_and_b32 s28, s3, 3
    s_sub_u32 s32, 0, s31
    s_and_b32 s32, s32, 3
    s_add_u32 s33, s28, s32
    s_sub_i32 s33, s33, 4
    s_lshl_b32 s29, s33, 1
    s_sub_i32 s29, s30, s29
    s_max_i32 s29, s29, 0
    s_min_i32 s29, s29, 2
    s_cmp_lt_i32 s33, 0
    s_cselect_b32 s29, 0, s29
    s_lshl_b32 s32, s32, 1
    s_sub_i32 s30, s30, s32
    s_sub_i32 s30, s30, s28
    s_add_i32 s30, s30, 3
    s_max_i32 s30, s30, 0
    s_lshr_b32 s30, s30, 2
    s_add_u32 s30, s30, s29
    s_sub_u32 s32, s31, s28
    s_add_u32 s32, s32, 3
    s_lshr_b32 s32, s32, 2
    s_lshl_b32 s32, s32, 1
    s_add_u32 s30, s30, s32
    s_sub_i32 s30, s30, 4
    s_max_i32 s30, s30, 0
    s_add_u32 s{S_R}, s30, 6
    s_sub_i32 s31, s31, s3
    s_add_i32 s31, s31, 3
    s_max_i32 s31, s31, 0
    s_lshr_b32 s31, s31, 2
    s_lshl_b32 s31, s31, 1
    s_lshl_b32 s31, -1, s31
    s_or_b32 s31, s31, 0x55555555
    s_lshl_b32 s32, 2, s30
    s_sub_u32 s32, s32, 1
    s_and_b32 s31, s31, s32
    s_lshl_b32 s32, 64, s30
    s_or_b32 s{S_M}, s31, s32
    v_and_b32 v72, 15, v1
    v_lshrrev_b32 v73, 4, v1
    s_lshl_b32 s31, s3, 2
    s_add_u32 s31, s31, 32
    v_add_u32 v73, s31, v73                 ; node
    v_mul_u32_u24 v74, {SSTR}, v73
    v_lshl_add_u32 v74, v72, 4, v74
    v_add_u32 v74, {L_SRC}, v74
    v_mul_u32_u24 v75, {NSTR}, v73
    v_add_u32 v75, {L_NODE}, v75
    v_cmp_gt_u32 vcc, 6, v72
    v_add_u32 v72, s30, v72
    v_lshrrev_b32 v73, 2, v72
    v_lshl_add_u32 v73, v73, 7, v{LP}
    v_and_b32 v72, 3, v72
    v_lshl_add_u32 v73, v72, 2, v73
    s_mov_b64 exec, vcc
    ds_write2_b32 v73, v74, v75 offset0:0 offset1:16
    s_cmp_lg_u32 s30, 0
    s_cbranch_scc1 L_cw2
    v_mov_b32 v3, 1
    s_mov_b64 exec, 1
    ds_add_u32 v2, v3 offset:{L_DYN}
L_cw2:
    s_mov_b64 exec, -1
    s_mov_b32 s31, {LDS_MAX}
L_wnc:
    ds_read_b32 v3, v2 offset:{L_NST}
    s_sub_u32 s31, s31, 1
    s_cbranch_scc1 L_gosafe
    s_waitcnt lgkmcnt(0)
    v_readfirstlane_b32 s30, v3
    s_bitcmp1_b32 s30, 18
    s_cbranch_scc0 L_wnc
    s_cmp_gt_u32 s30, {0 if OPT["force_safe"] else 0xffffff}
    s_cbranch_scc1 L_gosafe
    ds_read_b128 v[{WS4}:{WS4+3}], v{LP}
    ds_read_b64 v[{AG}:{AG+1}], v{LP} offset:64
    ds_read_b64 v[{WN2}:{WN2+1}], v{LP} offset:72
    ds_read_b32 v{WE}, v{LP+1}
    s_waitcnt lgkmcnt(0)
    v_lshl_add_u64 v[{AG}:{AG+1}], v[{AG}:{AG+1}], 0, v[{LN8}:{LN8+1}]
    v_lshl_add_u32 v{WE}, v{WE}, 1, v{EAC}
    ds_read_b128 v[{T}:{T+3}], v{WS4}
    ds_read_b128 v[{T+4}:{T+7}], v{WS4+1}
    ds_read_b64 v[{XA}:{XA+1}], v{AG} offset:512
    ds_read_b64 v[{EA}:{EA+1}], v{WE}
L_nobuild:
    s_waitcnt lgkmcnt(0)
""")
assert DIST == 2 and not EARLY
E(m_a(D0))
for o in range(T, T+8, 2): E(oadd(o))
E(m_e(D0, 0))
E(f"ds_read_b64 v[{XA}:{XA+1}], v{AG+1} offset:512")
lds_wait(L_GOK, 0xff, 4, "gok", sleep=OPT["sl"] & 1)
if OPT["stamps"] == 2: E(f"s_memrealtime s[{ST0+16}:{ST0+17}]")
if not OPT["nogather"]:
    for q in range(8): E(gload(G + 4*q, T+q))
STAMP(9)
E(f"""
    s_mov_b32 s31, {LDS_MAX}
""")
E(f"""
    s_cmp_ge_u32 s3, 8
    s_cbranch_scc1 L_nd
L_wna:
    ds_read_b32 v3, v2 offset:{L_NST}
    s_sub_u32 s31, s31, 1
    s_cbranch_scc1 L_gosafe
    s_waitcnt lgkmcnt(0)
    v_readfirstlane_b32 s30, v3
    s_bitcmp1_b32 s30, 18
    s_cbranch_scc0 L_wna
    s_cmp_gt_u32 s30, {0 if OPT["force_safe"] else 0xffffff}
    s_cbranch_scc1 L_gosafe
    s_and_b32 s31, s30, 0xff
    s_mov_b32 s{S_R}, 14
    s_cmp_ge_u32 s3, s31
    s_cselect_b32 s30, 0x80, 0
    s_or_b32 s{S_M}, s30, 0x4141
L_nd:
    s_waitcnt vmcnt(6)
    {m_s(D0, A1, G)}
    s_waitcnt vmcnt(4)
    {m_s(D0, A2, G+8)}
    v_mov_b32 v3, 1
    s_nop 7
    s_mov_b32 s{S_IT}, {(1 << OPT["pa"]) | (1 << OPT["pb"]) | (1 << OPT["pc"]) if OPT["prio"] == 2 else 0}
""")
if OPT["prio"]: E(f"s_setprio {OPT['p1']}")
STAMP(10)
if OPT["ptime"]: E("v_mov_b32 v70, 0\nv_mov_b32 v71, 0")
if OPT["stamps"] == 1: E(f"s_memtime s[{ST0+24}:{ST0+25}]\ns_waitcnt lgkmcnt(0)")
for u in range(4): phase(u, True)
assert OPT["pc"] >= 2
def aggread(r, k, node): return f"ds_read_b64 v[{r+2*k}:{r+2*k+1}], v68 offset:{node*NSTR + 128*k}"
def tail(u):
    Dc, Dn = ((D0, D1), (D1, D0))[u & 1]
    gc = G + 16*u; gn = G + 16*((u+1) & 3)
    E(f"L_T{u}:")
    E(m_a(Dn))
    for x in exps(Dc, 0): E(x)
    E(m_e(Dn, (u+1) & 3))
    for x in exps(Dc, 1): E(x)
    E(f"ds_read_b32 v3, v2 offset:{L_DYN}")
    weave(pk_steps(gc, 0, False) + pk_steps(gc, 1, False), {2*k+1: [aggread(F, k, 32)] for k in range(4)})
    E("s_waitcnt vmcnt(2)"); E(m_s(Dn, A1, gn))
    for x in exps(Dc, 2): E(x)
    E("s_waitcnt vmcnt(0)"); E(m_s(Dn, A2, gn+8))
    for x in exps(Dc, 3): E(x)
    for x in pk_steps(gc, 2, False) + pk_steps(gc, 3, False): E(x)
    for q in (0, 2):
        for x in exps(Dn, q) + exps(Dn, q+1): E(x)
        for x in pk_steps(gn, q, False) + pk_steps(gn, q+1, False): E(x)
for u in (1, 2, 3):
    def t_(): tail(u); E("s_branch L_mdone")
    emit_to(outofline, t_)
tail(0)
E(f"""
L_mdone:
""")
STAMP(11)
if OPT["ptime"]:
    E(f"""
    s_lshl_b32 s30, s2, 4
    s_add_u32 s30, s30, s3
    s_lshl_b32 s30, s30, 8
    s_add_u32 s30, s30, 0xc00000
    v_lshl_add_u32 v2, v1, 2, s30
    s_mov_b32 exec_hi, 0
    global_store_dword v2, v70, s[20:21]
    global_store_dword v2, v71, s[20:21] offset:128
    s_mov_b64 exec, -1
    """)
if OPT["stamps"] == 1:
    E(f"s_memtime s[28:29]\ns_waitcnt lgkmcnt(0)\ns_sub_u32 s{ST0+24}, s28, s{ST0+24}")
E(f"""
    s_mov_b32 s32, {f32(2.0**32)}
    s_mov_b32 s34, {f32(-LOG2E * 2.0**-32)}
    s_mov_b32 s31, {LDS_MAX}
    v_rcp_f32 v{P}, v{P}
    v_rcp_f32 v{P+1}, v{P+1}
    v_rcp_f32 v{P+2}, v{P+2}
    v_rcp_f32 v{P+3}, v{P+3}
; the sums were read behind the count of waves that are on their last chain; with all twelve there they are complete
L_dw:
    s_waitcnt lgkmcnt(0)
    v_readfirstlane_b32 s30, v3
    s_add_u32 s30, s30, s{S_SAFE}
    s_cmp_lt_u32 s30, 12
    s_cbranch_scc1 L_dr
L_dx:
    s_cmp_ge_u32 s3, 8
    s_cbranch_scc1 L_d1
""")
for k in range(4): E(aggread(12, k, 0))
E("L_d1:")
def reread():
    E(f"L_dr:\ns_sub_u32 s31, s31, 1\ns_cbranch_scc1 L_dx\nds_read_b32 v3, v2 offset:{L_DYN}")
    for k in range(4): E(aggread(F, k, 32))
    E("s_branch L_dw")
emit_to(outofline, reread)
OSC = {0: "", 1: " sc1", 2: " nt"}[OPT["osc"]]
def silu(y, first):
    for p in range(2): E(f"v_pk_mul_f32 v[{36+2*p}:{37+2*p}], v[{y+2*p}:{y+2*p+1}], s[34:35] op_sel_hi:[1,0]")
    for k in range(4): E(f"v_exp_f32 v{36+k}, v{36+k}")
    E(f"v_pk_add_f32 v[10:11], v[{y}:{y+1}], v[{y+2}:{y+3}]" if first else f"v_pk_add_f32 v[10:11], v[10:11], v[{y}:{y+1}]")
    for p in range(2): E(f"v_pk_fma_f32 v[{36+2*p}:{37+2*p}], v[{36+2*p}:{37+2*p}], s[32:33], s[32:33] op_sel_hi:[1,0,0]")
    for k in range(4): E(f"v_rcp_f32 v{36+k}, v{36+k}")
    E("v_mov_b32 v9, 0x207" if first else f"v_pk_add_f32 v[10:11], v[10:11], v[{y+2}:{y+3}]")
    for p in range(2): E(f"v_pk_mul_f32 v[{36+2*p}:{37+2*p}], v[{y+2*p}:{y+2*p+1}], v[{36+2*p}:{37+2*p}]")
    o = 44 if first else 46
    E(f"v_cvt_pk_bf16_f32 v{o}, v36, v37\nv_cvt_pk_bf16_f32 v{o+1}, v38, v39")
    E(f"global_store_dwordx2 v69, v[{o}:{o+1}], s[18:19]{OSC}")
for k in range(4): E(f"v_cvt_f32_f64 v{28+k}, v[{F+2*k}:{F+2*k+1}]")
for p in range(2): E(f"v_pk_fma_f32 v[{28+2*p}:{29+2*p}], v[{N+2*p}:{N+2*p+1}], v[{P+2*p}:{P+2*p+1}], v[{28+2*p}:{29+2*p}]")
silu(28, True)
E(f"""
    s_cmp_ge_u32 s3, 8
    s_cbranch_scc1 L_e4
    v_subrev_u32 v69, {32*256}, v69
    s_waitcnt lgkmcnt(0)
""")
for k in range(4): E(f"v_cvt_f32_f64 v{28+k}, v[{12+2*k}:{13+2*k}]")
silu(28, False)
E(f"""
L_e4:
    v_add_f32 v10, v10, v11
    v_cmp_class_f32 vcc, v10, v9
    v_mov_b32 v2, 0
    s_cmp_lg_u32 s{S_SAFE}, 0
    s_cbranch_scc1 L_fin
    {"s_branch" if OPT["nosafe"] else "s_cbranch_vccz"} L_e5
    ds_write_b32 v2, v9 offset:{L_FLAG}
    s_waitcnt lgkmcnt(0)
L_e5:
    s_barrier                               ; B6
    ds_read_b32 v2, v2 offset:{L_FLAG}
    s_waitcnt lgkmcnt(0)
    v_readfirstlane_b32 s30, v2
    s_cmp_lg_u32 s30, 0
    s_cbranch_scc1 L_gosafe
L_fin:
""")
if OPT["stamps"]:
    E("s_waitcnt vmcnt(0)"); STAMP(13); STAMP_OUT()
if OPT["probe"] >= 0:
    T_ = ST0 + 2*OPT["probe"]
    E(f"""
    s_cmp_lg_u32 s3, {OPT["pw"]}
    s_cbranch_scc1 L_end
    s_cmp_lg_u32 s2, {OPT["pg"] if OPT["pg"] >= 0 else "s2"}
    s_cbranch_scc1 L_end
    s_sub_u32 s30, s{T_}, s{ST0}
    s_lshl_b32 s30, s30, 2
    s_add_u32 s30, s30, 3000
    s_min_u32 s30, s30, 20000
L_spin:
    s_memrealtime s[28:29]
    s_waitcnt lgkmcnt(0)
    s_sub_u32 s28, s28, s{ST0}
    s_cmp_lt_u32 s28, s30
    s_cbranch_scc1 L_spin
    """)
E(f"""
L_end:
    s_endpgm
; ---------------- fall back: redo the node terms, then evaluate edge by edge
L_gosafe:
    s_mov_b32 s{S_SAFE}, 16
    s_setprio 0
    s_waitcnt vmcnt(0) lgkmcnt(0)
    s_barrier
    s_branch L_restart
""")
out += outofline
for r in retries: E(r)
E(f"""
L_safe:
    v_and_b32 v2, 15, v1
    v_lshlrev_b32 v3, 3, v2
    v_add_u32 v3, {L_C}, v3
""")
for k in range(4):
    for s in range(4):
        E(f"ds_read_u16 v{80+4*k+s}, v3 offset:{128*k + 2*s}")
E("s_waitcnt lgkmcnt(0)")
for i in range(16):
    E(f"v_lshlrev_b32 v{80+i}, 16, v{80+i}\nv_mul_f32 v{80+i}, s40, v{80+i}")
E(f"""
    v_lshrrev_b32 v24, 4, v1
    v_mul_u32_u24 v24, 3, v24               ; 3*quarter
    s_movk_i32 s33, {NSTR}
    v_add_u32 v25, {L_NODE}, v{LN8}
    s_mov_b32 s34, s3
    s_mov_b32 s35, {POLL_MAX}
L_scell:
    s_lshl_b32 s30, s34, 10
    s_lshl_b32 s31, s{S_BUCK}, 3
    s_add_u32 s30, s30, s31
    s_add_u32 s30, s30, {WS_ROW}
    v_mov_b32 v26, s30
    global_load_dword v32, v26, s[20:21] sc1
    s_mul_i32 s30, s34, {SORTB//4}
    s_add_u32 s30, s30, {WS_REC//4}
    s_waitcnt vmcnt(0)
    v_bfe_u32 v28, v32, 12, 12              ; 3*count
    v_and_b32 v27, 0xfff, v32
    v_add_u32 v27, s30, v27
L_sver:
    v_mov_b32 v29, v1
    v_mov_b32 v31, 0
L_sv1:
    v_cmp_ge_u32 vcc, v28, v29
    s_and_saveexec_b64 s[48:49], vcc
    s_cbranch_execz L_sv2
    v_add_lshl_u32 v30, v27, v29, 2
    global_load_dword v32, v30, s[20:21] sc1
    s_waitcnt vmcnt(0)
    v_add_u32 v31, v31, v32
    s_mov_b64 exec, s[48:49]
    v_add_u32 v29, 64, v29
    s_branch L_sv1
L_sv2:
    s_mov_b64 exec, s[48:49]
""")
scan(31)
E(f"""
    s_nop 0
    v_readlane_b32 s30, v31, 63
    s_cmp_eq_u32 s30, s{S_TAG+1}
    s_cbranch_scc1 L_sok
    s_sub_u32 s35, s35, 1
    s_cbranch_scc0 L_sver
    s_branch L_sdone
L_sok:
    v_mov_b32 v29, v24
L_srec:
    v_cmp_gt_u32 vcc, v28, v29
    s_and_saveexec_b64 s[48:49], vcc
    s_cbranch_execz L_snext
    v_add_lshl_u32 v30, v27, v29, 2
    global_load_dwordx3 v[32:34], v30, s[20:21] offset:4 sc1
    s_waitcnt vmcnt(0)
    v_and_b32 v30, 0x3fff00, v32
    v_add_u32 v30, v30, v{LN16}
    buffer_load_dwordx4 v[36:39], v30, s[36:39], 0 offen sc1
    v_lshrrev_b32 v31, 24, v32
    v_mad_u32_u24 v31, v31, s33, v25
    ds_read_b64 v[40:41], v31 offset:512
    v_lshlrev_b32 v44, 16, v33
    v_and_b32 v45, 0xffff0000, v33
    v_lshlrev_b32 v46, 16, v34
    v_and_b32 v47, 0xffff0000, v34
    s_waitcnt vmcnt(0) lgkmcnt(0)
    v_lshlrev_b32 v48, 16, v40
    v_and_b32 v49, 0xffff0000, v40
    v_lshlrev_b32 v50, 16, v41
    v_and_b32 v51, 0xffff0000, v41
""")
for s in range(4):
    E(f"v_lshlrev_b32 v52, 16, v{36+s}\nv_add_f32 v{48+s}, v{48+s}, v52")
    for k in range(4):
        E(f"v_fmac_f32 v{48+s}, v{44+k}, v{80+4*k+s}")
for s in range(4): E(f"v_exp_f32 v{48+s}, v{48+s}")
E("s_nop 0")
for s in range(4): E(f"v_add_f32 v{48+s}, 1.0, v{48+s}")
for s in range(4): E(f"v_rcp_f32 v{48+s}, v{48+s}")
E("s_nop 0")
for s in range(4): E(f"v_mul_f32 v{48+s}, v{48+s}, v{36+s}")
for s in range(4): E(f"v_cvt_f64_f32 v[{54+2*s}:{55+2*s}], v{48+s}")
for s in range(4): E(f"ds_add_f64 v31, v[{54+2*s}:{55+2*s}] offset:{128*s}")
E(f"""
    s_mov_b64 exec, s[48:49]
    v_add_u32 v29, 12, v29
    s_branch L_srec
L_snext:
    s_mov_b64 exec, s[48:49]
    s_add_u32 s34, s34, {NW}
    s_cmp_lt_u32 s34, {NCHUNK}
    s_cbranch_scc1 L_scell
L_sdone:
    s_waitcnt lgkmcnt(0)
    s_barrier
    v_mov_b32 v3, 0
""")
for k in range(4): E(f"v_mov_b32 v{N+k}, 0\nv_mov_b32 v{P+k}, 1.0"); E(aggread(F, k, 32))
E(f"""
    s_branch L_mdone
L_codeend:
.section .rodata,"a"
.p2align 6
.amdhsa_kernel {NAME}
.amdhsa_next_free_vgpr 168
.amdhsa_next_free_sgpr 102
.amdhsa_accum_offset 168
.amdhsa_group_segment_fixed_size 0
.amdhsa_kernarg_size 80
.amdhsa_user_sgpr_count 2
.amdhsa_user_sgpr_kernarg_segment_ptr 1
.amdhsa_system_sgpr_workgroup_id_x 1
.end_amdhsa_kernel
""")
if OPT["al"]:
    i0 = out.index("L_L0:"); i1 = out.index("L_mdone:")
    mid = []; odd = False
    for l in out[i0:i1]:
        t = l.strip()
        if t.endswith(":") or t.startswith(";"): mid.append(l); continue
        four = t.startswith(("s_", "v_exp"))
        if not four and odd and OPT["al"] >= 3:
            mid.append("    s_nop 0"); odd = False
        if four: odd = not odd
        mid.append(l)
    pre = [".p2align 6, , 60"] if OPT["al"] != 2 else [".p2align 6, , 60", "    s_nop 0"]
    out = out[:i0] + pre + mid + out[i1:]
if OPT["drop"]:
    i0 = out.index("L_L0:"); i1 = out.index("L_mdone:")
    pats = {1: ("smfmac",), 2: ("mfma",), 3: ("32x32x8",), 4: ("smfmac",), 5: ("v_exp",)}[OPT["drop"]]
    repl = {4: "    s_nop 2", 5: "    s_nop 1"}.get(OPT["drop"])
    mid = []
    for l in out[i0:i1]:
        if any(x in l for x in pats):
            if repl: mid.append(repl)
        else: mid.append(l)
    if OPT["drop"] == 3: mid = [l.replace("v[88:103] cbsz", "0 cbsz").replace("v[72:87] cbsz", "0 cbsz") for l in mid]
    out = out[:i0] + mid + out[i1:]
if OPT["nochain"]:
    i0 = out.index("L_L0:"); i1 = out.index("L_mdone:")
    out = out[:i0] + [l for l in out[i0:i1] if not any(x in l for x in ("v_exp", "v_pk_", "mfma", "v_rcp", "v_cvt"))] + out[i1:]
open(sys.argv[1], "w").write("\n".join(out) + "\n")
```

```python
import sys, struct

OPT = dict(hb=1, pgs=0, al=0, sl=0, sigw=0, aue=0, mcl=2, b31=1, split=3, grp=0, allg=0, eag=1, stamps=0, force_safe=0, nogather=0, nosafe=0, prio=2, gsc1=1, osc=1, codepf=1, srcmask=0x3fff00, nrec=0, warm=0,
           nochain=0, probe=-1, pw=-1, pg=-1, gpf=32, early=0, cnt=0, pollmax=200000, pa=6, pb=3, pc=2, p0=3, p1=3, ptime=0,
           dist=2, ldearly=0, drop=0, wgate=0, gate=0, gate2=1, rst=0, rsc1=1, nover=0, p2gate=1, p2sleep=0, hold=0, slate=2, lpos=0, p1st=1, sig=2, gpace=4, gwin=-1, gp=0xf448c, ghold=0, nte=0, ewhen=6, eah=0, rih=0, stg=1, bvf=1, tch=0, xpf=0, wpf=1, gpe=40, oneb=0, tagl=0, p0e=0, aul=0, t0f=0, pre=0, prelate=0, ntx=0, rpace=-1, p2wait=0)
for a in sys.argv[2:]:
    k, v = a.split("=")
    assert k in OPT, k
    OPT[k] = int(v, 0)

out = []
def E(s=""):
    for line in s.split("\n"):
        line = line.strip()
        if not line:
            continue
        if line.endswith(":") or line.startswith(".") or line.startswith(";"):
            out.append(line)
        else:
            out.append("    " + line)

def f32(x):
    return "0x%08x" % struct.unpack("<I", struct.pack("<f", x))[0]

NAME = "standalone__edge_featured_mpnn_egc__graph_kernel"
LOG2E = 1.4426950408889634
NB = 80; NBUCK = 125; CHUNK = 1280; NCHUNK = 250
NW = 12
G_HALF = 10000 * 256
WS0 = 0
WS_REC = 0x500000
WS_ROW = 0x900000
WS_FL2 = 0x980000
WS_TAG = 0x9c0000
SORTB = CHUNK * 12 + 512
WS_STAMP = 0x1000000
L_CNT = 0; L_SOFF = 512
L_SCNT = 1024
L_CTR = 1536; L_RD = 1540; L_DONE2 = 1544; L_FLAG = 1548; L_NST = 1552; L_GST = 1556; L_GOK = 1560; L_AU = 1564; L_DYN = 1568; L_EAOK = 1572
L_DUM = L_SOFF
L_LIST = 2048
L_LISTC = L_LIST + 4096
SSTR = 272
L_SRC = L_LIST + 8192
SRCB = 80 * SSTR + 32
L_EA = L_SRC + SRCB
L_EAEND = L_EA + 2 * SRCB
L_SORT = L_EA
L_WBV = (L_EAEND + 255) // 256 * 256; L_X = L_WBV + 32768; L_WAU = L_X + 20480; L_C = L_WAU + 32768
LDS = L_C + 1024
L_NODE = L_WBV; NSTR = 648
assert L_NODE + 80 * NSTR <= L_WAU and LDS <= 163840 and L_EA % 16 == 0
NULL_SRC = 0x7fffff00
POLL_MAX = OPT["pollmax"]
LDS_MAX = 20 * POLL_MAX
SC1 = " sc1"
NTE = " nt" if OPT["nte"] else ""
NTX = " nt" if OPT["ntx"] else ""

S_HALF, S_BUCK, S_P = 22, 23, 24
S_SAFE, S_TAG = 25, 26
S_R, S_M, S_IT = 70, 71, 72
S_TAGRAW = 47
ST0 = 74

def ESTAMP(i):
    if OPT["early"] == 1 or (OPT["early"] and i == 0): E(f"s_memrealtime s[{ST0+2*i}:{ST0+2*i+1}]")
def FSTAMP(i):
    if OPT["early"] == 2: E(f"s_memrealtime s[{ST0+2*i}:{ST0+2*i+1}]\ns_waitcnt lgkmcnt(0)")
def STAMP(i):
    if OPT["stamps"] == 2:
        if i == 0: E(f"s_memrealtime s[{ST0}:{ST0+1}]")
        if i == 13: E(f"s_memrealtime s[{ST0+26}:{ST0+27}]\ns_waitcnt lgkmcnt(0)")
        return
    if OPT["early"] and 1 <= i <= 7: return
    if OPT["early"] and i == 0: return ESTAMP(0)
    if OPT["stamps"] or (OPT["probe"] >= 0 and i == OPT["probe"]):
        E(f"s_memrealtime s[{ST0+2*i}:{ST0+2*i+1}]\ns_waitcnt lgkmcnt(0)")
    elif OPT["probe"] >= 0 and i == 0:
        E(f"s_memrealtime s[{ST0}:{ST0+1}]")
NSTAMP = 14
def STAMP_OUT():
    if OPT["stamps"]:
        E(f"""
        s_lshl_b32 s30, s2, 4
        s_add_u32 s30, s30, s3
        s_lshl_b32 s30, s30, 6
        s_add_u32 s30, s30, {WS_STAMP - 0x100000}
        s_load_dwordx2 s[20:21], s[0:1], 72
        s_waitcnt lgkmcnt(0)
        s_mov_b64 exec, -1
        v_mov_b32 v3, s30""")
        for i in (range(NSTAMP) if OPT["stamps"] == 1 else (0, 8, 13)):
            E(f"v_mov_b32 v2, s{ST0+2*i}\nglobal_store_dword v3, v2, s[20:21] offset:{4*i}")
        E("s_waitcnt vmcnt(0)")

A1, A2, IDX, EAC, LN16, ASEL, CW, LN8 = 4, 8, 12, 13, 14, 16, 18, 20
LP, WS4, WN2, EA, XA, WE, OFS, AG, T, N, P, F = 22, 24, 28, 30, 32, 34, 36, 40, 44, 52, 56, 60
D0, D1, G = 72, 88, 104

def finish_tag():
    E(f"""
    s_mul_i32 s{S_TAG+1}, s{S_TAGRAW}, 0x85ebca6b
    s_mul_i32 s{S_TAG}, s{S_TAGRAW}, 0x9e3779b1
    s_add_u32 s{S_TAG+1}, s{S_TAG+1}, 0x5bd1e995
    s_add_u32 s{S_TAG}, s{S_TAG}, 0x7f4a7c15
    """)
def get_tag(lab, q):
    E(f"""
    s_cmp_lg_u32 s{S_SAFE}, 0
    s_cbranch_scc1 L_tag_{lab}
    v_mov_b32 v2, 0
    s_mov_b32 s31, {LDS_MAX}
L_tg_{lab}:
    ds_read_b128 v[{q}:{q+3}], v2 offset:{L_SCNT + 124*4}
    s_sub_u32 s31, s31, 1
    s_cbranch_scc1 L_tag_{lab}
    s_waitcnt lgkmcnt(0)
    v_readfirstlane_b32 s30, v{q+3}
    v_readfirstlane_b32 s{S_TAGRAW}, v{q+1}
    s_cmp_lg_u32 s30, 4
    s_cbranch_scc1 L_tg_{lab}
    """)
    finish_tag()
    E(f"L_tag_{lab}:")

def lds_wait(addr, mask, val, tag, sleep=0, ne=False):
    E(f"""
    v_mov_b32 v2, 0
    s_mov_b32 s31, {LDS_MAX}
    {f"s_branch L_wf_{tag}" if sleep else ""}
L_w_{tag}:
    {f"s_sleep {sleep}" if sleep else ""}
L_wf_{tag}:
    ds_read_b32 v3, v2 offset:{addr}
    s_sub_u32 s31, s31, 1
    s_cbranch_scc1 L_wd_{tag}
    s_waitcnt lgkmcnt(0)
    v_readfirstlane_b32 s30, v3
    s_and_b32 s30, s30, {mask}
    s_cmp_lg_u32 s30, {val}
    s_cbranch_scc{0 if ne else 1} L_w_{tag}
L_wd_{tag}:
    """)
SCAN = ("row_shr:1 row_mask:0xf bank_mask:0xf bound_ctrl:0", "row_shr:2 row_mask:0xf bank_mask:0xf bound_ctrl:0",
        "row_shr:4 row_mask:0xf bank_mask:0xf bound_ctrl:0", "row_shr:8 row_mask:0xf bank_mask:0xf bound_ctrl:0",
        "row_bcast:15 row_mask:0xa bank_mask:0xf", "row_bcast:31 row_mask:0xc bank_mask:0xf")
def scan(r):
    for m in SCAN:
        E(f"s_nop 1\nv_add_u32_dpp v{r}, v{r}, v{r} {m}")

def main_consts(sm=48):
    E(f"""
    v_and_b32 v2, 15, v1                    ; n'
    v_lshrrev_b32 v3, 4, v1
    v_lshl_add_u32 v3, v2, 2, v3
    v_lshlrev_b32 v3, 1, v3
    v_add_u32 v3, {L_C}, v3
    ds_read_u16 v64, v3                     ; C[0..3][feature 4n'+s]
    ds_read_u16 v65, v3 offset:128
    ds_read_u16 v66, v3 offset:256
    ds_read_u16 v67, v3 offset:384
    v_and_b32 v63, 3, v1                    ; q
    v_lshlrev_b32 v{LN8}, 3, v2
    v_lshlrev_b32 v{LN8+1}, 3, v2
    v_lshlrev_b32 v{LN16}, 4, v2
    v_lshlrev_b32 v{LN16+1}, 4, v2
    v_mov_b32 v{IDX}, 0x8888
    v_bfe_u32 v60, v1, 3, 2                 ; s = (l&31)>>3
    v_bfe_u32 v61, v1, 2, 1                 ; h = (l>>2)&1
    v_lshrrev_b32 v62, 5, v1                ; ha
    v_and_b32 v2, 1, v60
    v_lshlrev_b32 v2, 4, v2
    v_lshlrev_b32 v2, v2, s46               ; 1.0 (bf16) in half s&1
    v_lshrrev_b32 v60, 1, v60               ; s>>1
    v_lshl_add_u32 v3, v61, 1, v60
    v_sub_u32 v63, v63, v62                 ; q - ha : 0 -> A1, 2 -> A2
    v_lshl_add_u32 v3, v63, 1, v3
    v_and_b32 v63, 1, v63
    v_lshl_or_b32 v3, v63, 4, v3
    v_xor_b32 v61, v61, v62
    v_lshl_or_b32 v60, v61, 4, v60
    """)
    mk = [f"s[{sm}:{sm+1}]", f"s[{sm+2}:{sm+3}]", f"s[{sm+4}:{sm+5}]", "vcc"]
    for i in range(8):
        E(f"v_cmp_eq_u32 {mk[i%4]}, {i}, v3")
        if i % 4 == 3:
            for j in range(i-3, i+1):
                E(f"v_cndmask_b32 v{A1+j}, 0, v2, {mk[j%4]}")
    E(f"""
    v_cmp_eq_u32 {mk[0]}, 0, v60
    v_cmp_eq_u32 {mk[1]}, 1, v60
    v_and_b32 v63, 3, v1
    v_lshlrev_b32 v61, 3, v63
    v_cndmask_b32 v{ASEL}, 0, v2, {mk[0]}
    v_cndmask_b32 v{ASEL+1}, 0, v2, {mk[1]}
    v_add_u32 v{EAC}, {L_EA - 2*L_SRC}, v61
    s_lshl_b32 s30, s3, 9
    s_sub_u32 s31, s30, 4096
    s_max_i32 s31, s31, 0
    s_add_u32 s30, s30, s31
    s_add_u32 s30, s30, {L_LIST}
    v_lshrrev_b32 v2, 4, v1
    v_lshl_add_u32 v{LP}, v2, 4, s30
    v_bfe_u32 v3, v1, 2, 2
    v_lshl_add_u32 v{LP+1}, v3, 4, s30
    v_lshl_add_u32 v{LP+1}, v2, 2, v{LP+1}
    s_lshl_b32 s30, s3, 2
    s_add_u32 s30, s30, 32
    v_add_u32 v2, s30, v2
    v_mul_u32_u24 v68, {NSTR}, v2
    v_add_u32 v68, v68, v{LN8}
    v_add_u32 v68, {L_NODE - 32*NSTR}, v68
    s_mul_i32 s30, s{S_BUCK}, {NB*256}
    s_lshl_b32 s31, s{S_HALF}, 7
    s_add_u32 s30, s30, s31
    v_lshl_add_u32 v69, v2, 8, v{LN8}
    v_add_u32 v69, s30, v69
    s_waitcnt lgkmcnt(0)
    v_lshlrev_b32 v60, 16, v64
    v_lshlrev_b32 v61, 16, v65
    v_lshlrev_b32 v62, 16, v66
    v_lshlrev_b32 v63, 16, v67
    v_mul_f32 v60, s40, v60
    v_mul_f32 v61, s40, v61
    v_mul_f32 v62, s40, v62
    v_mul_f32 v63, s40, v63
    v_cvt_pk_bf16_f32 v{CW}, v60, v61
    v_cvt_pk_bf16_f32 v{CW+1}, v62, v63
    """)

def gload(g, o):
    return f"buffer_load_dwordx4 v[{g}:{g+3}], v{o}, s[36:39], 0 offen" + (SC1 if OPT["gsc1"] else "")
def oadd(o):
    return f"v_lshl_add_u64 v[{o}:{o+1}], v[{o}:{o+1}], 0, v[{LN16}:{LN16+1}]"

def pk_steps(Gc, q, first):
    t = T + 4*(q & 1); h = Gc + 4*q
    if first and q == 0:
        return [f"v_pk_add_f32 v[{P+2*p}:{P+2*p+1}], v[{t+2*p}:{t+2*p+1}], 1.0 op_sel_hi:[1,0]" for p in range(2)]
    r = []
    for p in range(2):
        n = f"v[{Gc+2*p}:{Gc+2*p+1}]" if (first and q == 1) else f"v[{N+2*p}:{N+2*p+1}]"
        r.append(f"v_pk_fma_f32 v[{N+2*p}:{N+2*p+1}], {n}, v[{t+2*p}:{t+2*p+1}], {n}")
    for p in range(2):
        r.append(f"v_pk_fma_f32 v[{N+2*p}:{N+2*p+1}], v[{h+2*p}:{h+2*p+1}], v[{P+2*p}:{P+2*p+1}], v[{N+2*p}:{N+2*p+1}]")
    for p in range(2):
        r.append(f"v_pk_fma_f32 v[{P+2*p}:{P+2*p+1}], v[{P+2*p}:{P+2*p+1}], v[{t+2*p}:{t+2*p+1}], v[{P+2*p}:{P+2*p+1}]")
    return r
def exps(Dc, q):
    t = T + 4*(q & 1)
    return [f"v_exp_f32 v{t+s}, v{Dc+4*s+q}" for s in range(4)]
def weave(main, extra):
    for i, x in enumerate(main):
        E(x)
        for y in extra.get(i, []):
            E(y)
def m_a(Dn): return f"v_mfma_f32_32x32x8_bf16 v[{Dn}:{Dn+15}], v[{ASEL}:{ASEL+1}], v[{XA}:{XA+1}], 0"
def m_e(Dn, abid): return f"v_mfma_f32_16x16x4_4b_bf16 v[{Dn}:{Dn+15}], v[{EA}:{EA+1}], v[{CW}:{CW+1}], v[{Dn}:{Dn+15}] cbsz:2 abid:{abid}"
def m_s(Dn, A, g): return f"v_smfmac_f32_32x32x32_bf16 v[{Dn}:{Dn+15}], v[{A}:{A+3}], v[{g}:{g+7}], v{IDX}"

outofline = []
def emit_to(lst, fn):
    global out
    keep = out; out = []
    fn(); lst += out; out = keep
assert OPT["pa"] == 6 and OPT["prio"] == 2
DIST = OPT["dist"]; EARLY = OPT["ldearly"]
assert not (EARLY and DIST == 4)
def phase(u, loads):
    tag = f"{'L' if loads else 'T'}{u}"
    Dc, Dn = ((D0, D1), (D1, D0))[u & 1]
    gc = G + 16*u; gn = G + 16*((u+1) & 3); gl = G + 16*((u+DIST) & 3)
    ld = loads and not OPT["nogather"]
    kw = (u + DIST + EARLY) & 3
    wsgrp = 128 * ((3 - kw + u + DIST + EARLY) // 4 + 1) if kw == 3 else None
    def addloads(ex, pos):
        if loads:
            ex.setdefault(0, []).append(oadd(OFS)); ex.setdefault(2, []).append(oadd(OFS+2))
        if ld:
            for q in range(4): ex.setdefault(pos[q], []).append(gload(gl+4*q, OFS+q))
    E(f"L_{tag}:")
    SL = OPT["slate"]
    if not SL: E(f"s_waitcnt vmcnt({4*(DIST-2)})")
    E(m_a(Dn))
    for x in exps(Dc, 0): E(x)
    E(m_e(Dn, (u+1) & 3) if SL else m_s(Dn, A1, gn))
    for x in exps(Dc, 1): E(x)
    ex = {0: ["s_waitcnt lgkmcnt(0)"], 2: [f"ds_read_b64 v[{XA}:{XA+1}], v{AG + ((u+2) & 3)} offset:512"]}
    if u % 2 == 0:
        p = AG + ((u+2) & 3)
        ex[0].append(f"v_lshl_add_u64 v[{p}:{p+1}], v[{WN2}:{WN2+1}], 0, v[{LN8}:{LN8+1}]")
    if EARLY: addloads(ex, (1, 3, 5, 6))
    elif loads: ex[1] = [f"ds_read_b128 v[{OFS}:{OFS+3}], v{WS4+kw}"]
    if u == 2:
        ex.setdefault(4, []).append(f"v_lshl_add_u32 v{WE}, v{WE}, 1, v{EAC}")
        if SL: ex.setdefault(7, []).append(f"ds_read_b64 v[{EA}:{EA+1}], v{WE}")
    E(f"s_bitcmp1_b32 s{S_M}, 0\ns_cbranch_scc1 L_{tag}f")
    weave(pk_steps(gc, 0, False) + pk_steps(gc, 1, False), ex)
    E(f"L_{tag}r:")
    def first():
        E(f"L_{tag}f:")
        weave(pk_steps(gc, 0, True) + pk_steps(gc, 1, True), ex)
        E(f"s_branch L_{tag}r")
    emit_to(outofline, first)
    if SL:
        if OPT["ptime"]: E(f"s_memrealtime s[28:29]\ns_mov_b32 m0, s{S_R}")
        E(f"s_waitcnt vmcnt({4*(DIST-2) + (4 if (EARLY and loads) else 0) + (2 if SL == 2 else 0)})")
        E(m_s(Dn, A1, gn))
    else:
        E(m_e(Dn, (u+1) & 3))
    for x in exps(Dc, 2): E(x)
    if SL == 2: E(f"s_waitcnt vmcnt({4*(DIST-2) + (4 if (EARLY and loads) else 0)})")
    if OPT["ptime"]: E(f"s_memrealtime s[30:31]")
    E(m_s(Dn, A2, gn+8))
    for x in exps(Dc, 3): E(x)
    ex = {0: ["s_waitcnt lgkmcnt(0)"], 4: [], 6: [], 7: [f"s_sub_u32 s{S_R}, s{S_R}, 1"], 10: [f"s_lshr_b32 s{S_M}, s{S_M}, 1"], 11: [f"s_bitcmp1_b32 s{S_M}, 0"]}
    if OPT["ptime"]: ex[0] += ["v_writelane_b32 v70, s28, m0", "v_writelane_b32 v71, s30, m0"]
    if not EARLY: addloads(ex, (1, 3, 5, 9) if DIST == 4 else ((1, 3, 5, 7), (1, 2, 3, 4), (4, 6, 8, 10), (2, 5, 8, 10))[OPT['lpos']])
    elif loads: ex[1] = [f"ds_read_b128 v[{OFS}:{OFS+3}], v{WS4+kw}"]
    if u == 1:
        ex[4].append(f"ds_read_b64 v[{WN2}:{WN2+1}], v{LP} offset:{128+64}")
        ex[6].append(f"ds_read_b32 v{WE}, v{LP+1} offset:128")
    if u == 2 and not SL:
        ex[4].append(f"ds_read_b64 v[{EA}:{EA+1}], v{WE}")
    if u == 3:
        ex[4].append(f"ds_read_b64 v[{WN2}:{WN2+1}], v{LP} offset:{128+64+8}")
        ex.setdefault(8, []).append(f"v_lshl_add_u64 v[{LP}:{LP+1}], v[{LP}:{LP+1}], 0, s[44:45]")
    if wsgrp and loads: ex[6].append(f"ds_read_b128 v[{WS4}:{WS4+3}], v{LP} offset:{wsgrp}")
    weave(pk_steps(gc, 2, False) + pk_steps(gc, 3, False), ex)
    E(f"s_cbranch_scc1 L_{tag}z\nL_{tag}y:")
    def fin():
        E(f"""
L_{tag}z:
        v_rcp_f32 v{P}, v{P}
        v_rcp_f32 v{P+1}, v{P+1}
        v_rcp_f32 v{P+2}, v{P+2}
        v_rcp_f32 v{P+3}, v{P+3}
        v_pk_mul_f32 v[{N}:{N+1}], v[{N}:{N+1}], v[{P}:{P+1}]
        v_pk_mul_f32 v[{N+2}:{N+3}], v[{N+2}:{N+3}], v[{P+2}:{P+3}]
        """)
        for s_ in range(4):
            E(f"v_cvt_f64_f32 v[{F+2*s_}:{F+2*s_+1}], v{N+s_}")
            if s_: E(f"ds_add_f64 v{AG+u}, v[{F+2*s_-2}:{F+2*s_-1}] offset:{128*(s_-1)}")
        E(f"ds_add_f64 v{AG+u}, v[{F+6}:{F+7}] offset:384")
        E(f"s_branch L_{tag}y")
    emit_to(outofline, fin)
    if OPT["prio"] == 2:
        E(f"s_bitcmp1_b32 s{S_IT}, s{S_R}\ns_cbranch_scc1 L_{tag}q\nL_{tag}p:")
        def pr():
            E(f"""
L_{tag}q:
            s_setprio 0
            s_cmp_le_u32 s{S_R}, {OPT["pc"]}
            s_cbranch_scc1 L_{tag}p
            s_setprio 1
            s_cmp_le_u32 s{S_R}, {OPT["pb"]}
            s_cbranch_scc1 L_{tag}p
            s_setprio 2
            s_mov_b64 exec, 1
            ds_add_u32 v2, v3 offset:{L_DYN}
            s_mov_b64 exec, -1
            s_branch L_{tag}p
            """)
        emit_to(outofline, pr)
    if u == 3 and OPT["prio"] == 1:
        E(f"""
        s_add_u32 s{S_IT}, s{S_IT}, 1
        s_setprio 0
        s_cmp_gt_u32 s{S_IT}, 2
        s_cbranch_scc1 L_{tag}p
        s_setprio 1
        s_cmp_eq_u32 s{S_IT}, 2
        s_cbranch_scc1 L_{tag}p
        s_setprio 2
L_{tag}p:
        """)
    if loads:
        E(f"s_cmp_le_u32 s{S_R}, {DIST}")
        if u < 3: E(f"s_cbranch_scc1 L_T{u+1}")
        else: E("s_cbranch_scc0 L_L0")
    else:
        E(f"s_waitcnt vmcnt(0)\ns_cmp_eq_u32 s{S_R}, 0")
        if u < 3: E("s_cbranch_scc1 L_mdone")
        else: E("s_cbranch_scc0 L_T0")

E(f"""
; Edge-gated message passing in one launch, one workgroup per (bucket of 80 nodes, half of the features).
;  sum_i h_i / (1 + t_i), t = exp(-z), is carried as a fraction N / P along a node's edges (exact algebra); if that
; @launch grid=(256,1,1) block=({64*NW},1,1) lds={LDS}
.amdgcn_target "amdgcn-amd-amdhsa--gfx950"
.text
.globl {NAME}
.p2align 8
.type {NAME},@function
{NAME}:
""")
if OPT["stamps"] == 1 and OPT["early"] != 1:
    for i in range(NSTAMP): E(f"s_mov_b64 s[{ST0+2*i}:{ST0+2*i+1}], 0")
STAMP(0)
E(f"""
    s_load_dwordx16 s[4:19], s[0:1], 0
    s_load_dwordx2 s[20:21], s[0:1], 72
""")
if OPT["codepf"]:
    E(f"""
    s_getpc_b64 s[28:29]
L_pc:
    v_lshlrev_b32 v3, 7, v0
    v_cmp_gt_u32 vcc, L_codeend-L_pc-64, v3
    s_cbranch_vccz L_nopf
    s_mov_b64 exec, vcc
    global_load_dword v164, v3, s[28:29]
    s_mov_b64 exec, -1
L_nopf:
    """)
E(f"""
    v_lshrrev_b32 v2, 6, v0
    v_and_b32 v1, 63, v0
    v_readfirstlane_b32 s3, v2
    {"s_bfe_u32 s%d, s2, 0x10002" % S_HALF if OPT["hb"] else "s_and_b32 s%d, s2, 1" % S_HALF}
    {"s_and_b32 s30, s2, 3" if OPT["hb"] else "s_bfe_u32 s30, s2, 0x20001"}
    {"s_mul_i32 s30, s30, 31" if OPT["b31"] else "s_lshl_b32 s30, s30, 5"}
    s_lshr_b32 s31, s2, 3
    s_add_u32 s{S_BUCK}, s30, s31
    {"s_cmp_eq_u32 s30, 93                    ; 31 buckets per XCD of a half, 32 on the last" if OPT["b31"] else "s_cmp_ge_u32 s2, 256"}
    {"s_subb_u32 s31, s31, 0" if OPT["b31"] else "s_cbranch_scc1 L_end"}
    {"s_cmp_ge_i32 s31, 31" if OPT["b31"] else "s_cmp_ge_u32 s%d, %d" % (S_BUCK, NBUCK)}
    s_cbranch_scc1 L_end
    s_lshl_b32 s{S_P}, s{S_BUCK}, 1
    s_add_u32 s{S_P}, s{S_P}, s{S_HALF}
    s_mov_b32 s{S_SAFE}, 0
L_restart:
    s_cmp_ge_u32 s3, 4
    s_cbranch_scc1 L_nosort
    v_mov_b32 v48, 0
    v_mov_b32 v49, 0
    v_mov_b32 v50, 0
    v_mov_b32 v51, 0
    v_lshlrev_b32 v10, 4, v1
    ds_write_b128 v10, v[48:51] offset:{L_SCNT}
    s_mul_i32 s30, s{S_P}, {CHUNK*4}
    v_lshl_add_u32 v3, v0, 4, s30
    s_add_u32 s30, s30, 4096
    v_lshl_add_u32 v18, v0, 2, s30
    v_lshlrev_b32 v10, 1, v3
    v_lshlrev_b32 v11, 1, v18
    v_mov_b32 v17, {WS_TAG}
    s_waitcnt lgkmcnt(0)
    global_load_dwordx4 v[4:7], v3, s[10:11]{NTE}
    global_load_dword v8, v18, s[10:11]{NTE}
""")
STG = OPT["stg"]
if STG: E(f"""
    s_add_u32 s28, s20, {WS_TAG}
    s_addc_u32 s29, s21, 0
    s_load_dword s65, s[28:29], 0
""")
else: E("global_load_dword v43, v17, s[20:21]")
E(f"""
""")
def preclear():
    E(f"""
    s_cmp_lg_u32 s{S_SAFE}, 0
    s_cbranch_scc1 L_nopre
    s_mul_i32 s30, s{S_HALF}, {G_HALF}
    s_mul_i32 s31, s{S_BUCK}, {NB*256}
    s_add_u32 s30, s30, s31
    s_add_u32 s30, s30, {4096*(5-OPT["pre"])}
    v_lshl_add_u32 v19, v0, 4, s30
    """)
    for i in range(OPT["pre"]):
        E("global_store_dwordx4 v19, v[48:51], s[20:21] sc1")
        if i + 1 < OPT["pre"]: E("v_add_u32 v19, 4096, v19")
    E("L_nopre:")
if OPT["pre"] and not OPT["prelate"]: preclear()
E(f"""
    {"" if OPT["oneb"] else "s_barrier"}
""")
if OPT["ewhen"] == 0: E(f"""
    global_load_dwordx4 v[12:15], v3, s[8:9]{NTE}
    global_load_dword v16, v18, s[8:9]{NTE}
    global_load_dwordx4 v[52:55], v10, s[6:7]{NTE}
    global_load_dwordx4 v[56:59], v10, s[6:7] offset:16{NTE}
    global_load_dwordx2 v[60:61], v11, s[6:7]{NTE}
""")
E("s_barrier                               ; B0b")
if OPT["ewhen"] == 7: E(f"""
    global_load_dwordx4 v[12:15], v3, s[8:9]{NTE}
    global_load_dword v16, v18, s[8:9]{NTE}
    global_load_dwordx4 v[52:55], v10, s[6:7]{NTE}
    global_load_dwordx4 v[56:59], v10, s[6:7] offset:16{NTE}
    global_load_dwordx2 v[60:61], v11, s[6:7]{NTE}
""")
if OPT["pre"] and OPT["prelate"]: preclear()
E(f"""
    s_branch L_sort
L_nosort:
    s_and_b32 s32, s3, 3                    ; tau
    s_lshr_b32 s33, s3, 3
    v_lshrrev_b32 v2, 4, v1                 ; g
    v_and_b32 v4, 15, v1
    s_lshl_b32 s30, s32, 2
    v_add_u32 v6, s30, v2                   ; row&15
    v_xor_b32 v7, v4, v6
    v_lshlrev_b32 v7, 4, v7
    v_lshl_add_u32 v7, v6, 8, v7
    s_mul_i32 s73, s{S_BUCK}, {NB*256}
    s_mul_i32 s31, s33, {3*4096}
    s_add_u32 s30, s73, s31
    v_add_u32 v7, s30, v7
    v_add_u32 v8, 0x1000, v7
    v_add_u32 v9, 0x2000, v7
    s_lshl_b32 s30, s32, 10
    s_add_u32 s31, s31, s30
    s_add_u32 m0, s31, {L_X}
    v_subrev_u32 v30, 256, v0               ; t = 0..511
    v_lshlrev_b32 v31, 4, v30
    v_mov_b32 v36, 0
    v_mov_b32 v37, 0
    v_mov_b32 v38, 0
    v_mov_b32 v39, 0
    v_add_u32 v40, {L_EA}, v31
    ds_write_b128 v40, v[36:39]
    ds_write_b128 v40, v[36:39] offset:8192
""")
if OPT["wpf"]:
    E(f"""
    s_lshr_b32 s30, s2, 3
    s_lshl_b32 s30, s30, 2
    v_add_u32 v3, s30, v1
    v_and_b32 v3, 127, v3
    s_lshl_b32 s30, s{S_HALF}, 7
    s_cmp_eq_u32 s3, 4
    s_cselect_b32 s31, 0x8000, 0
    s_add_u32 s30, s30, s31
    v_lshl_add_u32 v3, v3, 8, s30
    s_waitcnt lgkmcnt(0)
    s_cmp_lg_u32 s33, 0
    s_cbranch_scc1 L_nowpf
    s_cmp_eq_u32 s3, 5
    s_cselect_b32 s34, s14, s16
    s_cselect_b32 s35, s15, s17
    s_cmp_eq_u32 s3, 7
    s_cselect_b32 s34, s12, s34
    s_cselect_b32 s35, s13, s35
    s_mov_b64 exec, 0xffff
    global_load_dword v167, v3, s[34:35]
    s_mov_b64 exec, -1
L_nowpf:
    """)
    if OPT["wpf"] == 2:
        E(f"""
        s_cmp_lg_u32 s3, 8
        s_cbranch_scc1 L_notch
        s_mul_i32 s30, s{S_P}, {CHUNK*4}
        v_mov_b32 v3, s30
        v_lshlrev_b32 v5, 1, v3
        v_lshlrev_b32 v6, 21, v1
        s_mov_b64 exec, 1
        global_load_dword v167, v3, s[8:9]
        global_load_dword v166, v5, s[6:7]
        s_mov_b64 exec, 31
        global_load_dword v165, v6, s[20:21] sc1
        s_mov_b64 exec, 3
        global_load_dword v164, v6, s[18:19] sc1
        s_mov_b64 exec, -1
L_notch:
        """)
E("s_waitcnt lgkmcnt(0)")
if OPT["tch"]:
    n = OPT["tch"]
    E(f"""
    s_sub_u32 s30, s3, 4
    s_mul_i32 s31, s30, 2560
    s_add_u32 s31, s31, s73
    s_add_u32 s56, s4, s31
    s_addc_u32 s57, s5, 0
    s_mul_i32 s31, s{S_P}, {CHUNK*8}
    s_mul_i32 s30, s30, 1280
    s_add_u32 s31, s31, s30
    s_add_u32 s58, s6, s31
    s_addc_u32 s59, s7, 0
    """)
    for i in range(n): E(f"s_load_dword s60, s[56:57], {128*i}")
    E("s_load_dword s61, s[58:59], 0")
E(f"""
    {"" if OPT["oneb"] else "s_barrier"}
""")
if OPT["bvf"]:
    E("s_mov_b32 s29, m0")
elif not OPT["t0f"]: E(f"""
    global_load_lds_dwordx4 v7, s[4:5]{NTX}
    s_add_u32 m0, m0, 0x1000
    s_cmp_lg_u32 s33, 0
    global_load_lds_dwordx4 v8, s[4:5]{NTX}
    s_cbranch_scc1 L_x2
    s_add_u32 m0, m0, 0x1000
    s_nop 0
    global_load_lds_dwordx4 v9, s[4:5]{NTX}
L_x2:
    s_barrier
""")
else: E(f"""
    s_mov_b32 s29, m0
    s_cmp_lg_u32 s33, 0
    s_cbranch_scc1 L_x2
    global_load_lds_dwordx4 v7, s[4:5]
    s_add_u32 s29, s29, 0x1000
    v_mov_b32 v7, v8
    v_mov_b32 v8, v9
L_x2:
""")
E(f"""
    v_lshrrev_b32 v5, 3, v1
    v_and_b32 v3, 1, v2
    s_and_b32 s30, s3, 1
    s_lshl_b32 s30, s30, 1
    v_or_b32 v3, s30, v3                    ; sigma
    v_lshlrev_b32 v3, 1, v3
    v_and_b32 v20, 7, v1
    v_xor_b32 v3, v3, v20
    v_lshlrev_b32 v3, 4, v3
    v_lshl_add_u32 v10, v5, 8, v3
    s_sub_u32 s28, s3, 4
    s_lshl_b32 s30, s28, 11
    s_lshl_b32 s31, s{S_HALF}, 7
    s_add_u32 s30, s30, s31
    v_add_u32 v10, s30, v10
    v_add_u32 v11, 0x4000, v10
    s_lshl_b32 s28, s28, 10
    s_add_u32 s34, s16, {128*256}
    s_addc_u32 s35, s17, 0
    s_cmp_lg_u32 s3, 11
    s_cbranch_scc1 L_noc
    v_and_b32 v5, 3, v5
    v_lshlrev_b32 v20, 4, v20
    v_lshl_add_u32 v5, v5, 8, v20
    s_add_u32 s31, s31, {256*256}
    s_mov_b32 m0, {L_C}
    v_add_u32 v5, s31, v5
    global_load_lds_dwordx4 v5, s[16:17]
L_noc:
    s_add_u32 m0, s28, {L_WBV}
""")
for ti, base in enumerate((34, 14)):
    for n in range(2):
        E(f"s_nop 0\nglobal_load_lds_dwordx4 v{10+n}, s[{base}:{base+1}]")
        if not (ti == 1 and n == 1):
            E(f"s_add_u32 m0, m0, 0x2000")
def stage_au():
    E(f"""
    v_lshrrev_b32 v5, 3, v1
    v_bfe_u32 v3, v1, 4, 1
    v_lshlrev_b32 v3, 1, v3
    v_and_b32 v20, 7, v1
    v_xor_b32 v3, v3, v20
    v_lshlrev_b32 v3, 4, v3
    v_lshl_add_u32 v6, v5, 8, v3
    s_lshl_b32 s30, s{S_HALF}, 7
    s_and_b32 s31, s3, 1
    s_lshl_b32 s31, s31, 14
    s_add_u32 s30, s30, s31
    v_add_u32 v6, s30, v6
    v_xor_b32 v7, 64, v6
    v_add_u32 v8, 2048, v6
    v_add_u32 v9, 3072, v7
    v_add_u32 v7, 1024, v7
    s_lshl_b32 s30, s32, 13
    s_add_u32 m0, s30, {L_WAU}
    s_cmp_lt_u32 s32, 2
    s_cselect_b32 s34, s16, s12
    s_cselect_b32 s35, s17, s13
    global_load_lds_dwordx4 v6, s[34:35]
    global_load_lds_dwordx4 v7, s[34:35] offset:1024
    global_load_lds_dwordx4 v8, s[34:35] offset:2048
    global_load_lds_dwordx4 v9, s[34:35] offset:3072
    s_add_u32 m0, m0, 4096
    s_add_u32 s34, s34, 8192
    s_addc_u32 s35, s35, 0
    global_load_lds_dwordx4 v6, s[34:35]
    global_load_lds_dwordx4 v7, s[34:35] offset:1024
    global_load_lds_dwordx4 v8, s[34:35] offset:2048
    global_load_lds_dwordx4 v9, s[34:35] offset:3072
""")
if OPT["aue"] == 1:
    E("s_cmp_eq_u32 s33, 0\ns_cbranch_scc1 L_noau"); stage_au(); E("L_noau:")
if OPT["bvf"]:
    E(f"""
    s_mov_b32 m0, s29
    {"v_lshl_add_u32 v5, v1, 7, s73" if OPT["xpf"] else ""}
    {"v_add_u32 v3, 8192, v5" if OPT["xpf"] else ""}
    {"v_add_u32 v20, 12288, v5" if OPT["xpf"] else ""}
    s_barrier                               ; B0b
    """)
    if OPT["xpf"]:
        E(f"""
        s_cmp_lg_u32 s3, 4
        s_cbranch_scc1 L_noxpf
        global_load_dword v166, v20, s[4:5]
        global_load_dword v165, v5, s[4:5]
        s_mov_b32 exec_hi, 0
        global_load_dword v164, v3, s[4:5]
        s_mov_b32 exec_hi, -1
L_noxpf:
        """)
    E(f"""
    global_load_lds_dwordx4 v7, s[4:5]
    s_add_u32 m0, m0, 0x1000
    s_cmp_lg_u32 s33, 0
    global_load_lds_dwordx4 v8, s[4:5]
    s_cbranch_scc1 L_x2
    s_add_u32 m0, m0, 0x1000
    s_nop 0
    global_load_lds_dwordx4 v9, s[4:5]
L_x2:
    """)
if OPT["t0f"]:
    E(f"""
    s_mov_b32 m0, s29
    s_barrier                               ; B0b
    global_load_lds_dwordx4 v7, s[4:5]
    s_add_u32 m0, m0, 0x1000
    s_nop 0
    global_load_lds_dwordx4 v8, s[4:5]
    """)
if OPT["wgate"] or OPT["ewhen"] in (5, 6, 8, 9):
    E(f"""
    v_mov_b32 v7, 0x1000000
    s_mov_b64 exec, 1
    ds_add_u32 v36, v7 offset:{L_CTR}
    s_mov_b64 exec, -1
    """)
STAMP(1)
E(f"""
    v_mov_b32 v32, {NULL_SRC}
    v_mov_b32 v33, v32
    v_mov_b32 v34, v32
    v_mov_b32 v35, v32
""")
def cover(lo, n): return list(range(lo, n - 8192, 8192)) + [n - 8192]
for o in cover(16384, L_EAEND - L_EA): E(f"ds_write_b128 v40, v[36:39] offset:{o}")
for o in cover(0, SRCB): E(f"ds_write_b128 v31, v[32:35] offset:{L_SRC + o}")
E(f"""
    v_and_b32 v32, 3, v30           ; quarter
    v_bfe_u32 v33, v30, 3, 3
    v_lshrrev_b32 v34, 5, v30
    s_and_b32 s30, s3, 3
    s_add_u32 s30, s30, 16
    s_cmp_ge_u32 s3, 8
    s_cselect_b32 s31, 7, 3
    s_cselect_b32 s29, 0, 6
    s_cselect_b64 vcc, -1, 0
    v_and_b32 v33, s31, v33
    v_mov_b32 v35, s30
    v_cndmask_b32 v34, v34, v35, vcc
    v_lshl_add_u32 v32, v34, 2, v32
    v_bfe_u32 v34, v30, 2, 1
    v_mul_u32_u24 v35, {NSTR - SSTR}, v34
    v_mul_u32_u24 v41, {L_NODE - L_SRC}, v34
    v_mul_u32_u24 v42, {L_SRC + 80*SSTR - L_DUM}, v34
    v_lshlrev_b32 v43, 4, v34
    v_add_u32 v35, {SSTR}, v35
    v_add_u32 v41, {L_SRC}, v41
    v_sub_u32 v42, {L_SRC + 80*SSTR}, v42
    v_sub_u32 v43, 16, v43
    v_lshlrev_b32 v33, 2, v33
    v_mad_u32_u24 v41, v32, v35, v41
    v_mad_u32_u24 v41, v33, v43, v41
    v_lshlrev_b32 v35, 5, v35
    v_lshlrev_b32 v34, 3, v43
    v_sub_u32 v35, v35, v34
    v_cmp_gt_u32 s[48:49], 8, v33
    v_and_b32 v33, 7, v33
    v_add_u32 v34, 2, v33
    v_cmp_gt_u32 s[52:53], s29, v33
    v_cmp_gt_u32 s[54:55], s29, v34
    v_cndmask_b32 v44, v35, 0, s[48:49]
    v_cndmask_b32 v46, v35, 0, s[48:49]
    v_add_u32 v44, v41, v44
    v_lshl_add_u32 v46, v43, 1, v46
    v_add_u32 v46, v41, v46
    v_add_u32 v45, v44, v43
    v_add_u32 v47, v46, v43
    v_cndmask_b32 v44, v42, v44, s[52:53]
    v_cndmask_b32 v45, v42, v45, s[52:53]
    v_cndmask_b32 v46, v42, v46, s[54:55]
    v_cndmask_b32 v47, v42, v47, s[54:55]
    ds_write_b128 v31, v[44:47] offset:{L_LIST}
    s_cmp_ge_u32 s3, 6
    s_cbranch_scc1 L_pf3
    v_mul_u32_u24 v42, {SSTR}, v30
    v_add_u32 v42, {L_SRC}, v42
    v_lshlrev_b32 v41, 2, v30
    ds_write_b32 v41, v42 offset:{L_CNT}
L_pf3:
    v_bfe_u32 v3, v1, 2, 2                  ; r
    v_lshl_add_u32 v5, v2, 3, v3            ; 8g + r
    v_lshrrev_b32 v3, 1, v3
    v_and_b32 v6, 1, v2
    v_lshl_or_b32 v3, v6, 1, v3             ; sigma
    v_xor_b32 v3, s32, v3
    v_lshlrev_b32 v3, 5, v3
    v_lshl_add_u32 v10, v5, 7, v3
    v_and_b32 v3, 3, v1
    v_lshl_add_u32 v10, v3, 3, v10
    s_mul_i32 s31, s33, {L_WAU - L_WBV}
    s_add_u32 s31, s31, {L_WBV}
    v_add_u32 v10, s31, v10
    v_xor_b32 v3, v2, v4
    v_lshlrev_b32 v3, 4, v3
    v_lshl_add_u32 v12, v4, 8, v3
    v_add_u32 v12, {L_X}, v12
    v_xor_b32 v13, 64, v12
    v_xor_b32 v14, 0x80, v12
    v_xor_b32 v15, 0xc0, v12
    s_mul_i32 s30, s{S_HALF}, {G_HALF}
    s_add_u32 s30, s30, s73
    s_lshl_b32 s31, s32, 6
    s_add_u32 s30, s30, s31
    v_lshlrev_b32 v11, 10, v2
    v_lshl_add_u32 v11, v4, 2, v11
    v_add_u32 v11, s30, v11
    s_lshl_b32 s31, s32, 5
    s_add_u32 s31, s31, {L_NODE}
    v_mul_u32_u24 v16, {NSTR}, v4
    v_lshl_add_u32 v16, v2, 3, v16
    v_add_u32 v16, s31, v16
    s_mov_b32 s40, {f32(-LOG2E)}
    s_mov_b32 s42, {f32(2.0**32)}
    s_mov_b32 s44, 0x07060100
    s_mov_b32 s45, 0x07060302
    s_mov_b32 s46, 0x3f80
    v_mov_b32 v17, {f32(2.0**-100)}
    v_mov_b32 v19, 1
    v_mov_b32 v18, 0
""")
def staged():
    if not OPT["tagl"]: get_tag("g", 160)
    if OPT["aue"] == 2:
        E("s_cmp_eq_u32 s33, 0\ns_cbranch_scc1 L_noau"); stage_au(); E("L_noau:")
    if OPT["aue"]: E("s_waitcnt vmcnt(8)\ns_cmp_lg_u32 s33, 0\ns_cbranch_scc1 L_stg")
    E(f"""
    s_waitcnt vmcnt(0)
L_stg:
    s_mov_b64 exec, 1
    ds_add_u32 v18, v19 offset:{L_CTR}
    s_mov_b64 exec, -1
    """)
    STAMP(2)
    lds_wait(L_CTR, 0xff, 8, "g1", sleep=(OPT["sl"] >> 1) & 1)
if OPT["t0f"]:
    E(f"""
    s_waitcnt vmcnt(2)
    s_mov_b64 exec, 1
    ds_add_u32 v18, v19 offset:{L_AU}
    s_mov_b64 exec, -1
    s_or_b32 s30, s33, s{S_SAFE}
    s_cbranch_scc0 L_t0
    """)
staged()
STAMP(3)
NP = 8
RA = 72; RB = RA + 4*NP; RAD = RB + 4*NP
J3N, J12, J3N2, CELL, ROWA, FOUR, L0M, ACC, ENT, CAD = 156, 157, 158, 159, 160, 161, 162, 163, 164, 166
def rec_setup():
    E(f"""
    v_and_b32 v3, 15, v1                    ; j
    v_lshrrev_b32 v2, 4, v1
    v_lshl_add_u32 v{CELL}, v2, 3, v3
    s_lshl_b32 s30, s29, 5
    v_add_u32 v{CELL}, s30, v{CELL}
    s_lshl_b32 s30, s{S_BUCK}, 3
    s_add_u32 s30, s30, {WS_ROW}
    v_lshl_add_u32 v{ROWA}, v{CELL}, 10, s30
    v_cmp_gt_u32 s[66:67], {NP}, v3
    v_cmp_gt_u32 vcc, {NCHUNK}, v{CELL}
    v_mov_b32 v{ENT}, 0
    s_and_b64 s[66:67], s[66:67], vcc
    s_mov_b64 exec, s[66:67]
    global_load_dwordx2 v[{ENT}:{ENT+1}], v{ROWA}, s[20:21] sc1
    s_mov_b64 exec, -1
    v_mul_u32_u24 v{CELL}, {SORTB//4}, v{CELL}
    v_add_u32 v{CELL}, {WS_REC//4}, v{CELL}
    v_mul_u32_u24 v{J12}, 12, v3
    v_mul_u32_u24 v{J3N}, 3, v3
    v_not_b32 v{J3N}, v{J3N}
    v_subrev_u32 v{J3N2}, 48, v{J3N}
    v_subrev_u32 v{L0M}, 1, v3
    v_ashrrev_i32 v{L0M}, 31, v{L0M}            ; all ones in the first lane of each row
    v_mov_b32 v{FOUR}, 4
    """)
WF = 20; XF = 52; AC = 132
def wreads(ks):
    for t in range(2):
        for rd in range(2):
            r = WF + 16*t + 4*ks + 2*rd
            E(f"ds_read_b64_tr_b16 v[{r}:{r+1}], v10 offset:{t*16384 + ks*4096 + rd*512}")
def xread(rt, ks):
    r = XF + 16*rt + 4*ks
    return f"ds_read_b128 v[{r}:{r+3}], v{12+ks} offset:{rt*4096}"
def mf(rt, ks, transposed):
    for t in range(2):
        a = XF + 16*rt + 4*ks; w = WF + 16*t + 4*ks; d = AC + 8*(rt % 3) + 4*t
        c = "0" if ks == 0 else f"v[{d}:{d+3}]"
        if transposed: a, w = w, a
        E(f"v_mfma_f32_16x16x32_bf16 v[{d}:{d+3}], v[{a}:{a+3}], v[{w}:{w+3}], {c}")
def gemm(transposed, finish, before_first):
    for ks in range(3):
        E(xread(0, ks)); wreads(ks)
    E("s_waitcnt lgkmcnt(10)"); mf(0, 0, transposed)
    E(xread(0, 3)); wreads(3)
    E("s_waitcnt lgkmcnt(10)"); mf(0, 1, transposed)
    for ks in range(4): E(xread(1, ks))
    E("s_waitcnt lgkmcnt(9)"); mf(0, 2, transposed)
    for ks in range(4): E(xread(2, ks))
    E("s_waitcnt lgkmcnt(8)"); mf(0, 3, transposed)
    for ks in range(4): E(xread(3, ks))
    if OPT["p0e"]:
        E("s_nop 3"); finish(0)
    E("s_waitcnt lgkmcnt(8)")
    for ks in range(4):
        mf(1, ks, transposed); E(xread(4, ks))
    E(f"""
    s_mov_b64 exec, 1
    ds_add_u32 v18, v19 offset:{L_RD}
    s_mov_b64 exec, -1
    """)
    before_first()
    if not OPT["p0e"]: finish(0)
    E("s_waitcnt lgkmcnt(0)")
    for rt in range(2, 5):
        for ks in range(4): mf(rt, ks, transposed)
        finish(rt-1)
    finish(4)
def pack(rt):
    b = AC + 8*(rt % 3); h = b + 4
    for r in range(4): E(f"v_mul_f32 v{b+r}, s40, v{b+r}")
    for r in range(4): E(f"v_fma_f32 v{h+r}, v{h+r}, s42, v17")
    E(f"""
    v_cvt_pk_bf16_f32 v4, v{b}, v{b+1}
    v_cvt_pk_bf16_f32 v5, v{b+2}, v{b+3}
    v_xor_b32 v2, 0x80008000, v4
    v_xor_b32 v3, 0x80008000, v5
    v_sub_u32_sdwa v{h}, v{h}, sext(v2) dst_sel:DWORD dst_unused:UNUSED_PAD src0_sel:DWORD src1_sel:WORD_0
    v_sub_u32_sdwa v{h+1}, v{h+1}, sext(v2) dst_sel:DWORD dst_unused:UNUSED_PAD src0_sel:DWORD src1_sel:WORD_1
    v_sub_u32_sdwa v{h+2}, v{h+2}, sext(v3) dst_sel:DWORD dst_unused:UNUSED_PAD src0_sel:DWORD src1_sel:WORD_0
    v_sub_u32_sdwa v{h+3}, v{h+3}, sext(v3) dst_sel:DWORD dst_unused:UNUSED_PAD src0_sel:DWORD src1_sel:WORD_1
    """)
    w = (OPT["gp"] >> (4*(4-rt))) & 15 if OPT["gp"] else OPT["gpace"]
    if 0 <= w < 4*rt: E(f"s_waitcnt vmcnt({w})")
    if OPT["pre"] and rt == 5 - OPT["pre"]: lds_wait(L_SCNT + 126*4, 0xff, 4, "pre")
    if rt + 1 in (OPT["eah"], OPT["rih"]): lds_wait(L_EAOK, 0xff, 4, "eah")
    if OPT["ghold"] == rt + 1:
        E("v_mov_b32 v6, v2\nv_mov_b32 v7, v3"); lds_wait(L_CTR, 0xff00, 0x400, "gh", sleep=1); E("v_mov_b32 v2, v6\nv_mov_b32 v3, v7")
    for r in range(4):
        E(f"v_perm_b32 v{h+r}, v{h+r}, v{4 + (r>>1)}, s{44 + (r&1)}")
        if OPT["gwin"] >= 0: E(f"s_waitcnt vmcnt({OPT['gwin']})")
        E(f"global_store_dword v11, v{h+r}, s[20:21] offset:{256*r} sc1")
    if rt < 4: E("v_add_u32 v11, 0x1000, v11")
def fin(rt):
    a = AC + 8*(rt % 3); u = a + 4
    for r in range(4): E(f"v_mul_f32 v{a+r}, s40, v{a+r}")
    for r in range(4): E(f"v_mul_f32 v{u+r}, s42, v{u+r}")
    E(f"""
    v_cvt_pk_bf16_f32 v{a}, v{a}, v{a+1}
    v_cvt_pk_bf16_f32 v{a+1}, v{a+2}, v{a+3}
    v_cvt_f64_f32 v[2:3], v{u}
    v_cvt_f64_f32 v[4:5], v{u+1}
    v_cvt_f64_f32 v[6:7], v{u+2}
    v_cvt_f64_f32 v[8:9], v{u+3}
    ds_write_b64 v16, v[{a}:{a+1}] offset:512
    ds_write2_b64 v16, v[2:3], v[4:5] offset0:0 offset1:16
    ds_write2_b64 v16, v[6:7], v[8:9] offset0:32 offset1:48
    """)
    if rt < 4: E(f"v_add_u32 v16, {16*NSTR}, v16")
E(f"""
    s_cmp_lg_u32 s33, 0
    s_cbranch_scc1 L_gemm2
    s_cmp_lg_u32 s{S_SAFE}, 0
    s_cbranch_scc1 L_nog1
    s_setprio 2
""")
if OPT["t0f"]:
    E("L_t0:\ns_setprio 2")
    lds_wait(L_AU, 0xff, 8, "t0")
    STAMP(3)
    for ks in range(3):
        E(xread(0, ks)); wreads(ks)
    E("s_waitcnt lgkmcnt(10)"); mf(0, 0, False)
    E(xread(0, 3)); wreads(3)
    for ks in range(1, 4):
        E(f"s_waitcnt lgkmcnt({15 - 5*ks})"); mf(0, ks, False)
    E("s_nop 7"); pack(0)
    get_tag("t", 160)
    E(f"""
    s_waitcnt vmcnt(4)
    s_mov_b64 exec, 1
    ds_add_u32 v18, v19 offset:{L_CTR}
    s_mov_b64 exec, -1
    """)
    lds_wait(L_CTR, 0xff, 8, "t1")
    for rt in range(1, 4):
        for ks in range(4): E(xread(rt, ks))
    E("s_waitcnt lgkmcnt(8)")
    for ks in range(4):
        mf(1, ks, False); E(xread(4, ks))
    E(f"""
    s_mov_b64 exec, 1
    ds_add_u32 v18, v19 offset:{L_RD}
    s_mov_b64 exec, -1
    s_nop 3
    """)
    pack(1)
    E("s_waitcnt lgkmcnt(0)")
    for ks in range(4): mf(2, ks, False)
    for rt in range(3, 5):
        for ks in range(4): mf(rt, ks, False)
        pack(rt-1)
    pack(4)
else: gemm(False, pack, lambda: lds_wait(L_CTR, {1: 0x80000, 2: 0xc0000}[OPT["hold"]], 0, "hold", sleep=1, ne=True) if OPT["hold"] else None)
E("s_setprio 0")
if OPT["gate"] or OPT["gate2"] >= 3:
    E(f"""
    s_mov_b64 exec, 1
    ds_add_u32 v18, v19 offset:{L_GST}
    s_mov_b64 exec, -1
    """)
STAMP(4)
if OPT["tagl"]: get_tag("g", 160)
main_consts()
E(f"""
    s_lshl_b32 s30, s{S_P}, 7
    s_add_u32 s30, s30, {WS_FL2}
    v_mov_b32 v60, s30
    v_mov_b32 v62, s{S_TAG}
    v_mov_b32 v63, s{S_TAG+1}
    v_mov_b32 v2, 0
    v_mov_b32 v3, 1
    s_lshl_b32 s30, s32, 13
    s_lshl_b32 s31, s{S_HALF}, 7
    s_add_u32 s30, s30, s31
    s_add_u32 s30, s30, {WS_FL2}
    v_lshl_add_u32 v64, v1, 8, s30
    s_mul_i32 s30, s32, {2560*256}
    s_lshr_b32 s31, s2, 3
    s_mul_i32 s31, s31, {160*128}
    s_add_u32 s30, s30, s31
    v_lshl_add_u32 v65, v1, 7, s30
    {'' if OPT['gpe'] else 'v_min_u32 v65, %d, v65' % (G_HALF - 128)}
    s_mul_i32 s30, s{S_HALF}, {G_HALF}
    v_add_u32 v65, s30, v65
    s_mov_b64 exec, 1
    s_waitcnt vmcnt(0)
    ds_add_rtn_u32 v61, v2, v3 offset:{L_DONE2}
    s_waitcnt lgkmcnt(0)
    v_readfirstlane_b32 s30, v61
    s_cmp_lg_u32 s30, 3
    s_cbranch_scc1 L_nofl
    global_store_dwordx2 v60, v[62:63], s[20:21] sc1
    ds_add_u32 v2, v3 offset:{L_DONE2}
L_nofl:
""")
STAMP(5)
if OPT["p2gate"]:
    E("s_mov_b64 exec, -1")
    lds_wait(L_CTR, 0xff0000, 0x080000, "pg", sleep=OPT["pgs"])
    E("s_mov_b32 exec_hi, 0")
if OPT["p2wait"]: E(f"s_sleep {OPT['p2wait']}")
STAMP(6)
def gready(lab):
    if OPT["gpe"]: E(f"s_cmp_lg_u32 s73, 0\ns_cbranch_scc1 L_gr{lab}")
    if OPT["gpf"]:
        E(f"""
        {"s_bfm_b64 exec, %d, 0" % OPT["gpf"] if OPT["gpf"] < 64 else "s_mov_b64 exec, -1"}
        global_load_dword v35, v65, s[20:21] sc1
        """)
    E(f"""
L_gr{lab}:
    s_mov_b64 exec, 1
    v_mov_b32 v2, 0
    v_mov_b32 v3, 1
    ds_add_u32 v2, v3 offset:{L_GOK}
    """)
E(f"""
; each of the four waves checks the flags of 32 producers of this half: once now, again after the barrier if needed
    s_cmp_eq_u32 s32, 3
    s_cselect_b32 exec_lo, 0x1fffffff, -1
    {"" if OPT["p1st"] else "s_mov_b64 s[66:67], exec"}
    {"" if OPT["p1st"] else "s_branch L_p2n"}
    global_load_dwordx2 v[66:67], v64, s[20:21] sc1
    s_waitcnt vmcnt(0)
    v_cmp_ne_u64 s[66:67], s[{S_TAG}:{S_TAG+1}], v[66:67]
""")
if OPT["gpe"]:
    n = OPT["gpe"]
    E(f"""
    s_mov_b32 s73, 0
    s_lshr_b32 s30, s2, 3
    s_bitcmp1_b32 s66, s30
    s_cbranch_scc1 L_nogpe
    s_mov_b32 s73, 1
    s_bitcmp1_b32 exec_lo, s30
    s_cbranch_scc0 L_nogpe
    """)
    for k in range(0, n, 64):
        E("s_mov_b64 exec, -1")
        if k: E(f"v_add_u32 v65, 8192, v65")
        if n - k < 64: E(f"s_bfm_b64 exec, {n-k}, 0")
        E(f"global_load_dword v{(35, 68, 69)[k//64]}, v65, s[20:21] sc1")
    E("L_nogpe:")
E(f"""
    s_cmp_lg_u64 s[66:67], 0
    s_cbranch_scc1 L_p2n
""")
gready("a")
E("L_p2n:\ns_mov_b64 exec, -1")
STAMP(7)
E(f"""
    s_branch L_b4
L_nog1:
    s_mov_b64 exec, 1
    ds_add_u32 v18, v19 offset:{L_RD}
    s_mov_b64 exec, -1
    s_branch L_rec
L_gemm2:
""")
if not OPT['aul'] and not OPT['aue']: stage_au()
for rt in range(5):
    for ks in range(4): E(xread(rt, ks))
E(f"""
    s_mov_b64 exec, 1
    ds_add_u32 v18, v19 offset:{L_RD}
    s_mov_b64 exec, -1
""")
if OPT['aul']:
    lds_wait(L_RD, 8, 8, "aul"); stage_au()
E(f"""
    s_mov_b64 exec, 1
    s_waitcnt vmcnt(0)
    ds_add_u32 v18, v19 offset:{L_RD}
    s_mov_b64 exec, -1
    s_sub_u32 s29, s3, 4
""")
rec_setup()
lds_wait(L_RD, 0xff, 12, "rd", sleep=(OPT["sl"] >> 2) & 1)
for ks in range(4): wreads(ks)
for ks in range(4):
    E(f"s_waitcnt lgkmcnt({12 - 4*ks})"); mf(0, ks, True)
for rt in range(1, 5):
    for ks in range(4): mf(rt, ks, True)
    fin(rt-1)
fin(4)
if OPT["tagl"]: get_tag("h", 144)
STAMP(4)
E(f"""
    s_branch L_rec
L_sort:
""")
STAMP(1)
E(f"""
    s_mov_b32 s40, {f32(-LOG2E)}
    s_mov_b32 s46, 0x3f80
    s_cmp_lg_u32 s{S_SAFE}, 0
    s_cbranch_scc1 L_sortskip
    v_mov_b32 v21, 1
    v_mov_b32 v20, 3
    s_mov_b32 s31, 52429
    s_movk_i32 s32, -20
    v_lshlrev_b32 v9, 3, v1
    v_lshlrev_b32 v33, 4, v0
    s_mul_i32 s30, s{S_P}, {SORTB}
    s_add_u32 s30, s30, {WS_REC + 4096}
    v_add_u32 v32, s30, v33                 ; copy-out global offset
    v_add_u32 v34, 8192, v32
    s_lshl_b32 s30, s{S_P}, 10
    s_add_u32 s30, s30, {WS_ROW}
    v_lshl_add_u32 v42, v1, 4, s30
    s_mov_b32 s34, {LDS_MAX}
    s_setprio 3
""")
E6 = OPT["ewhen"] in (0, 6, 7)
if OPT["ewhen"] == 6:
    E("v_mov_b32 v19, v3")
    lds_wait(L_CTR, 0xff000000, 0x08000000, "ew")
    E("v_mov_b32 v3, v19\ns_mov_b32 s31, 52429")
    E(f"""
    global_load_dwordx4 v[12:15], v3, s[8:9]{NTE}
    global_load_dword v16, v18, s[8:9]{NTE}
    global_load_dwordx4 v[52:55], v10, s[6:7]{NTE}
    global_load_dwordx4 v[56:59], v10, s[6:7] offset:16{NTE}
    global_load_dwordx2 v[60:61], v11, s[6:7]{NTE}
""")
E(f"""
    s_waitcnt vmcnt({(0 if STG else 1) + OPT['pre'] + 5*E6})
""")
STAMP(2)
FSTAMP(1)
for i in range(5):
    E(f"""
    v_mul_u32_u24 v{22+i}, s31, v{4+i}
    v_lshrrev_b32 v{22+i}, 22, v{22+i}
    v_lshlrev_b32 v{22+i}, 2, v{22+i}        ; bucket*4
    ds_add_rtn_u32 v{27+i}, v{22+i}, v20 offset:{L_SCNT}
    """)
E(f"""
    s_mov_b64 exec, 1
    s_cmp_lg_u32 s3, 0
    s_cbranch_scc1 L_notag
    {"s_waitcnt lgkmcnt(0)" if STG else "s_waitcnt vmcnt(%d)" % (OPT['pre'] + 5*E6)}
    {"v_mov_b32 v43, s65" if STG else ""}
""")
if OPT["probe"] == 12: STAMP(12)
E(f"""
    ds_write_b32 v48, v43 offset:{L_SCNT + 125*4}
L_notag:
    ds_add_u32 v48, v21 offset:{L_SCNT + 127*4}  ; arrival count of the four waves (LDS runs a wave's ops in order)
    s_mov_b64 exec, -1
""")
if OPT["ewhen"] == 1: E(f"""
    global_load_dwordx4 v[12:15], v3, s[8:9]{NTE}
    global_load_dword v16, v18, s[8:9]{NTE}
    global_load_dwordx4 v[52:55], v10, s[6:7]{NTE}
    global_load_dwordx4 v[56:59], v10, s[6:7] offset:16{NTE}
    global_load_dwordx2 v[60:61], v11, s[6:7]{NTE}
""")
E(f"""
    {"s_mov_b32 s65, 0" if OPT["ewhen"] == 8 else ""}
L_s1:
    ds_read_b32 v38, v48 offset:{L_SCNT + 127*4}
    {f"ds_read_b32 v39, v48 offset:{L_CTR}" if OPT["ewhen"] == 8 else ""}
    ds_read_b64 v[36:37], v9 offset:{L_SCNT}
    s_sub_u32 s34, s34, 1
    s_cbranch_scc1 L_s1d
    s_waitcnt lgkmcnt(0)
""")
if OPT["ewhen"] == 8: E(f"""
    v_readfirstlane_b32 s30, v39
    s_lshr_b32 s30, s30, 27
    s_cmp_le_u32 s30, s65
    s_cbranch_scc1 L_e8a
    s_mov_b32 s65, 1
    global_load_dwordx4 v[12:15], v3, s[8:9]{NTE}
    global_load_dword v16, v18, s[8:9]{NTE}
    global_load_dwordx4 v[52:55], v10, s[6:7]{NTE}
    global_load_dwordx4 v[56:59], v10, s[6:7] offset:16{NTE}
    global_load_dwordx2 v[60:61], v11, s[6:7]{NTE}
L_e8a:
""")
E(f"""
    v_readfirstlane_b32 s30, v38
    s_cmp_lg_u32 s30, 4
    s_cbranch_scc1 L_s1
L_s1d:
""")
FSTAMP(2)
E(f"""
    v_add3_u32 v39, v36, v37, 2
    v_add3_u32 v38, v36, v37, 2
    v_readlane_b32 s{S_TAGRAW}, v37, 62
""")
fill = []
for i in range(5):
    fill += [f"v_mad_i32_i24 v{4+i}, v{22+i}, s32, v{4+i}", f"v_lshlrev_b32 v{4+i}, 24, v{4+i}"]
for k, m in enumerate(SCAN):
    E(f"v_add_u32_dpp v39, v39, v39 {m}")
    for x in fill[2*k:2*k+2]: E(x)
E(f"""
    v_sub_u32 v40, v39, v38
    v_add3_u32 v41, v40, v36, 1
    s_mov_b32 s30, {L_SORT}
    v_lshl_add_u32 v38, v40, 2, s30
    v_lshl_add_u32 v39, v41, 2, s30
    ds_write_b64 v9, v[38:39] offset:{L_SOFF}
""")
for i in range(5):
    E(f"ds_read_b32 v{22+i}, v{22+i} offset:{L_SOFF}")
finish_tag()
if OPT["ewhen"] in (9, 10):
    if OPT["ewhen"] == 9:
        E("v_mov_b32 v19, v3"); lds_wait(L_CTR, 0xff000000, 0x08000000, "ew"); E("v_mov_b32 v3, v19")
    E(f"""
    global_load_dwordx4 v[12:15], v3, s[8:9]{NTE}
    global_load_dword v16, v18, s[8:9]{NTE}
    global_load_dwordx4 v[52:55], v10, s[6:7]{NTE}
    global_load_dwordx4 v[56:59], v10, s[6:7] offset:16{NTE}
    global_load_dwordx2 v[60:61], v11, s[6:7]{NTE}
""")
E(f"""
    s_cmp_lg_u32 s3, 0
    s_cbranch_scc1 L_nopub
    s_and_b32 s35, s{S_TAG+1}, 0xff000000
    v_mov_b32 v45, s{S_TAG}
    v_mov_b32 v47, s{S_TAG}
    v_lshl_or_b32 v44, v36, 12, v40
    v_lshl_or_b32 v46, v37, 12, v41
    v_or_b32 v44, s35, v44
    v_or_b32 v46, s35, v46
    global_store_dwordx4 v42, v[44:47], s[20:21] sc1
    {"s_waitcnt vmcnt(1)" if OPT["ewhen"] in (0, 1, 6, 7, 9, 10) else ""}
    s_branch {"L_pub" if OPT["ewhen"] in (0, 1, 6, 7, 9, 10) else "L_nochk"}
L_nopub:
    s_cmp_lg_u32 s3, 1
    s_cbranch_scc1 L_nochk
    v_mov_b32 v44, s{S_TAG+1}
    s_mov_b32 exec_hi, 0x7fffffff
    ds_add_u32 v38, v44
    ds_add_u32 v39, v44
    s_mov_b32 exec_hi, -1
L_nochk:
""")
if OPT["ewhen"] == 8:
    E("s_cmp_lg_u32 s65, 0\ns_cbranch_scc1 L_e8b\nv_mov_b32 v19, v3")
    lds_wait(L_CTR, 0xff000000, 0x08000000, "ew")
    E(f"""
    v_mov_b32 v3, v19
    global_load_dwordx4 v[12:15], v3, s[8:9]{NTE}
    global_load_dword v16, v18, s[8:9]{NTE}
    global_load_dwordx4 v[52:55], v10, s[6:7]{NTE}
    global_load_dwordx4 v[56:59], v10, s[6:7] offset:16{NTE}
    global_load_dwordx2 v[60:61], v11, s[6:7]{NTE}
L_e8b:
""")
if 3 <= OPT["ewhen"] <= 5:
    E("v_mov_b32 v19, v3")
    if OPT["ewhen"] == 3: lds_wait(L_CTR, 0xff, 8, "ew")
    elif OPT["ewhen"] == 5: lds_wait(L_CTR, 0xff000000, 0x08000000, "ew")
    else: lds_wait(L_CTR, 0xff, 0, "ew", ne=True)
    E("v_mov_b32 v3, v19")
if 2 <= OPT["ewhen"] <= 5: E(f"""
    global_load_dwordx4 v[12:15], v3, s[8:9]{NTE}
    global_load_dword v16, v18, s[8:9]{NTE}
    global_load_dwordx4 v[52:55], v10, s[6:7]{NTE}
    global_load_dwordx4 v[56:59], v10, s[6:7] offset:16{NTE}
    global_load_dwordx2 v[60:61], v11, s[6:7]{NTE}
""")
E(f"""
    s_waitcnt vmcnt(0)
L_pub:
""")
if OPT["eah"]:
    E(f"""
    s_mov_b64 exec, 1
    ds_add_u32 v48, v21 offset:{L_EAOK}
    s_mov_b64 exec, -1
    """)
STAMP(4)
FSTAMP(3)
for i in range(5): E(f"v_lshl_or_b32 v{4+i}, v{12+i}, 8, v{4+i}")
E("s_waitcnt lgkmcnt(0)")
for i in range(5):
    E(f"""
    v_lshl_add_u32 v{27+i}, v{27+i}, 2, v{22+i}
    v_add3_u32 v{12+i}, v{52+2*i}, v{53+2*i}, v{4+i}
    ds_write2_b32 v{27+i}, v{52+2*i}, v{53+2*i} offset0:2 offset1:3
    ds_write_b32 v{27+i}, v{4+i} offset:4
    ds_sub_u32 v{22+i}, v{12+i}
    """)
E(f"""
    s_mov_b64 exec, 1
    ds_add_u32 v48, v21 offset:{L_SCNT + 126*4}
    s_mov_b64 exec, -1
""")
FSTAMP(4)
E(f"""
    s_mov_b32 s34, {LDS_MAX}
L_s2:
    ds_read_b32 v38, v48 offset:{L_SCNT + 126*4}
    {f"ds_read_b32 v39, v48 offset:{L_CTR}" if OPT["wgate"] else ""}
    ds_read_b128 v[72:75], v33 offset:{L_SORT}
    s_sub_u32 s34, s34, 1
    s_cbranch_scc1 L_s2d
    s_waitcnt lgkmcnt(1)
    v_readfirstlane_b32 s30, v38
""")
if OPT["wgate"]:
    E(f"""
    v_readfirstlane_b32 s31, v39
    s_lshr_b32 s31, s31, 24
    s_add_u32 s30, s30, s31
    """)
E(f"""
    s_cmp_lg_u32 s30, {12 if OPT["wgate"] else 4}
    s_cbranch_scc1 L_s2
L_s2d:
""")
FSTAMP(5)
E(f"""
    ds_read_b128 v[76:79], v33 offset:{L_SORT + 4096}
    ds_read_b128 v[80:83], v33 offset:{L_SORT + 8192}
    ds_read_b128 v[84:87], v33 offset:{L_SORT + 12288}
    s_waitcnt lgkmcnt(3)
    global_store_dwordx4 v32, v[72:75], s[20:21] offset:-4096 sc1
    s_waitcnt lgkmcnt(2)
    global_store_dwordx4 v32, v[76:79], s[20:21] sc1
    s_waitcnt lgkmcnt(1){f" vmcnt({OPT['rpace']})" if OPT['rpace'] >= 0 else ""}
    global_store_dwordx4 v34, v[80:83], s[20:21] offset:-4096 sc1
    s_cmp_eq_u32 s3, 3
    s_cselect_b32 exec_hi, 0, -1
    s_waitcnt lgkmcnt(0){f" vmcnt({OPT['rpace']})" if OPT['rpace'] >= 0 else ""}
    global_store_dwordx4 v34, v[84:87], s[20:21] sc1
    s_mov_b32 exec_hi, -1
""")
if OPT["rih"]:
    E(f"""
    s_mov_b64 exec, 1
    ds_add_u32 v48, v21 offset:{L_EAOK}
    s_mov_b64 exec, -1
    """)
FSTAMP(6)
for k in range(4): E(f"ds_write_b128 v33, v[48:51] offset:{L_SORT + 4096*k}")
STAMP(3)
FSTAMP(7)
E(f"""
    s_branch L_sortdone
L_sortskip:
    s_waitcnt vmcnt(0)
L_sortdone:
    s_mov_b32 s29, s3
""")
rec_setup()
E(f"""
L_rec:
""")
if OPT["mcl"]: E(f"s_cmp_ge_u32 s3, 8\ns_cbranch_scc1 L_nomc")
lds_wait(L_CTR, 0xff, 8, "r0")
if OPT["mcl"] != 2: main_consts()
E("L_nomc:")
STAMP(5)
E(f"""
    s_cmp_ge_u32 s3, 4
    s_cbranch_scc1 L_nod2
    v_mov_b32 v2, 0
    v_mov_b32 v3, 0x100
    s_mov_b64 exec, 1
    s_waitcnt vmcnt(0)
    ds_add_u32 v2, v3 offset:{L_CTR}
    s_mov_b64 exec, -1
L_nod2:
    s_cmp_lg_u32 s{S_SAFE}, 0
    s_cbranch_scc1 L_recskip
    s_lshr_b32 s35, s{S_TAG+1}, 24
    s_mov_b64 exec, s[66:67]
    s_mov_b32 s34, {POLL_MAX}
    s_branch L_p1c
L_p1:
    global_load_dwordx2 v[{ENT}:{ENT+1}], v{ROWA}, s[20:21] sc1
L_p1c:
    s_sub_u32 s34, s34, 1
    s_cbranch_scc1 L_toobig
    s_waitcnt vmcnt(0)
    v_cmp_ne_u32 vcc, s{S_TAG}, v{ENT+1}
    v_cmp_ne_u32_sdwa s[48:49], v{ENT}, s35 src0_sel:BYTE_3 src1_sel:DWORD
    s_or_b64 exec, vcc, s[48:49]
    s_cbranch_scc1 L_p1
    s_mov_b64 exec, -1
""")
STAMP(6)
if OPT["cnt"]: E(f"s_sub_u32 s{ST0+2}, {POLL_MAX+1}, s34\ns_mov_b32 s34, {POLL_MAX}")
E(f"""
    v_and_b32 v{CAD}, 0xfff, v{ENT}
    v_bfe_u32 v{ENT}, v{ENT}, 12, 12            ; 3*count
    v_add_lshl_u32 v{CAD}, v{CAD}, v{CELL}, 2
    v_cmp_ne_u32 vcc, 0, v{ENT}
    s_sub_u32 s30, 0, s{S_TAG+1}
    v_mov_b32 v2, s30
    v_cndmask_b32 v{ENT+1}, 0, v2, vcc
    v_cmp_lt_u32 vcc, 96, v{ENT}
    v_cmp_lt_u32 s[68:69], 48, v{ENT}
    s_cbranch_vccnz L_toobig
""")
for p in range(NP):
    E(f"""
    v_add_co_u32_dpp v2, vcc, v{ENT}, v{J3N} row_newbcast:{p} row_mask:0xf bank_mask:0xf
    v_add_u32_dpp v{RAD+p}, v{CAD}, v{J12} row_newbcast:{p} row_mask:0xf bank_mask:0xf
    s_mov_b64 s[{48+2*p}:{49+2*p}], vcc
    """)
lds_wait(L_CTR, 0xff00, 0x400, "r1", sleep=(OPT["sl"] >> 2) & 1)
if OPT["gate"]: lds_wait(L_GST, 0xff, 4, "gt")
if OPT["gate2"] == 1 and not OPT["split"]:
    if not OPT["allg"]: E("s_cmp_lt_u32 s3, 4\ns_cbranch_scc1 L_wd_g2")
    lds_wait(L_DONE2, 0xff, 5, "g2")
if OPT["gate2"] == 3:
    E("s_cmp_lt_u32 s3, 4\ns_cbranch_scc1 L_wd_g2")
    lds_wait(L_GST, 0xff, 4, "g2")
if OPT["gate2"] in (2, 4):
    E(f"""
    s_cmp_lt_u32 s3, 4
    s_cbranch_scc1 L_g2d
    s_mov_b32 s31, {POLL_MAX}
L_g2:
    ds_read_b128 v[60:63], v2 offset:{L_CTR}
    {f"ds_read_b32 v61, v2 offset:{L_GST}" if OPT["gate2"] == 4 else ""}
    s_sub_u32 s31, s31, 1
    s_cbranch_scc1 L_g2d
    s_waitcnt lgkmcnt(0)
    v_readfirstlane_b32 s30, v62
    v_readfirstlane_b32 s28, v60
    v_readfirstlane_b32 s29, v61
    s_cmp_eq_u32 s30, 5
    s_cbranch_scc1 L_g2d
    {"s_cmp_lg_u32 s29, 4" if OPT["gate2"] == 4 else ""}
    {"s_cbranch_scc1 L_g2" if OPT["gate2"] == 4 else ""}
    s_and_b32 s28, s28, 0xc0000
    s_cbranch_scc0 L_g2
L_g2d:
    """)
E(f"""
    s_or_b32 s68, s68, s69
    s_lshr_b32 s69, s68, 16
    s_or_b32 s68, s68, s69
""")
def mask2(p): return f"v_add_co_u32_dpp v2, vcc, v{ENT}, v{J3N2} row_newbcast:{p} row_mask:0xf bank_mask:0xf"
def loads(ps, lab):
    E(f"s_and_b32 s30, s68, {sum(1 << p for p in ps)}\ns_cbranch_scc0 L_nx{lab}")
    for p in ps:
        r = RB + 4*p
        E(f"""
        s_bitcmp1_b32 s68, {p}
        s_cbranch_scc0 L_nx{lab}{p}
        {mask2(p)}
        s_mov_b64 exec, vcc
        global_load_dwordx4 v[{r}:{r+3}], v{RAD+p}, s[20:21] offset:192 sc1
        s_mov_b64 exec, -1
L_nx{lab}{p}:
        """)
    E(f"L_nx{lab}:")
    for p in ps:
        r = RA + 4*p
        E(f"""
        s_mov_b64 exec, s[{48+2*p}:{49+2*p}]
        global_load_dwordx4 v[{r}:{r+3}], v{RAD+p}, s[20:21]{SC1 if (OPT["rsc1"] or lab != "m") else ""}
        """)
    E("s_mov_b64 exec, -1")
SP = OPT["split"]
GROUPS = {0: ((0,1,2,3),(4,5),(6,7)), 4: ((0,1,2,3),(4,5),(6,7)), 5: ((0,1,2),(3,4),(5,6,7)), 6: ((0,1,2,3),(4,5),(6,7)), 3: ((0,1,2),(3,4,5),(6,7)), 2: ((0,1),(2,3,4,5),(6,7)), 1: ((0,),(1,2,3,4),(5,6,7))}[SP]
if OPT['grp'] == 1: GROUPS = ((0,1),(2,3,4),(5,6,7))
if OPT['grp'] == 2: GROUPS = ((0,1),(2,3),(4,5),(6,7))
if OPT['grp'] == 3: GROUPS = (tuple(range(SP)), tuple(range(SP, NP)))
if OPT['grp'] == 4: GROUPS = ((0,1,2),(3,4,5,6),(7,))
loads(range(SP or NP), "m")
if OPT["eag"]:
    E(f"""
    v_mov_b32 v2, 0
    ds_read_b32 v3, v2 offset:{L_DONE2}
    s_waitcnt lgkmcnt(0)
    v_readfirstlane_b32 s73, v3
    s_cmp_lg_u32 s73, 5
    s_cbranch_scc1 L_neag
    """)
    loads(range(SP, NP), "e")
    E("L_neag:")
def issued():
    if OPT["p2gate"]:
        E(f"""
        v_mov_b32 v2, 0
        v_mov_b32 v3, 0x10000
        s_mov_b64 exec, 1
        ds_add_u32 v2, v3 offset:{L_CTR}
        s_mov_b64 exec, -1
        """)
if OPT["mcl"]:
    if OPT["mcl"] == 1: E(f"s_cmp_lt_u32 s3, 8\ns_cbranch_scc1 L_nomc2")
    main_consts(28); E("L_nomc2:")
if not OPT["sig"]: issued()
STAMP(7)
def rank(r, m):
    E(f"""
    s_mov_b64 exec, {m}
    v_mul_u32_u24_sdwa v{r}, v{FOUR}, v{r+1} dst_sel:DWORD dst_unused:UNUSED_PAD src0_sel:DWORD src1_sel:BYTE_3
    v_and_b32 v{r+1}, {OPT['srcmask']}, v{r+1}
    ds_add_rtn_u32 v{r}, v{r}, v{FOUR} offset:{L_CNT}
    """)
def put(r, m):
    E(f"""
    s_mov_b64 exec, {m}
    v_lshlrev_b32 v2, 1, v{r}
    ds_write_b32 v{r}, v{r+1}
    ds_write_b64 v2, v[{r+2}:{r+3}] offset:{L_EA - 2*L_SRC}
    """)
retries = []
pending = []
for gi, grp in enumerate(GROUPS):
    bits = sum(1 << p for p in grp); m32 = bits | (bits << 16)
    if SP and grp[0] == SP:
        if OPT["eag"]: E("s_cmp_eq_u32 s73, 5\ns_cbranch_scc1 L_eagd")
        lds_wait(L_DONE2, 0xff, 5, "g2", sleep=(OPT["sl"] >> 3) & 1)
        loads(range(SP, NP), "n")
        E("L_eagd:")
        if OPT["sig"] == 9:
            if OPT["sigw"]: E(f"s_waitcnt vmcnt({NP - SP - OPT['sigw']})")
            issued()
    last = NP if (not SP or grp[0] >= SP) else SP
    first_ = 0 if (not SP or grp[0] < SP) else SP
    E(f"""
L_ck{gi}:
    s_mov_b32 vcc_lo, {m32}
    s_mov_b32 vcc_hi, {m32}
    v_cndmask_b32 v{ACC}, 0, v{ENT+1}, vcc
    s_and_b32 s30, s68, {bits}
    s_cbranch_scc1 L_xa{gi}
L_xb{gi}:
    """)
    def xacc():
        E(f"L_xa{gi}:\ns_waitcnt vmcnt({last - first_})")
        for p in grp:
            r = RB + 4*p
            E(f"""
            {mask2(p)}
            s_mov_b64 exec, vcc
            v_add3_u32 v{ACC}, v{ACC}, v{r+1}, v{r+2}
            v_add_u32 v{ACC}, v{ACC}, v{r+3}
            s_mov_b64 exec, -1
            """)
        E(f"s_branch L_xb{gi}")
    emit_to(outofline, xacc)
    for p in grp:
        r = RA + 4*p
        E(f"""
        s_waitcnt vmcnt({last-1-p})
        s_mov_b64 exec, s[{48+2*p}:{49+2*p}]
        v_and_b32 v{r}, v{r}, v{L0M}
        v_add3_u32 v{ACC}, v{ACC}, v{r+2}, v{r+3}
        v_add3_u32 v{ACC}, v{ACC}, v{r}, v{r+1}
        """)
    E("s_mov_b64 exec, -1\ns_nop 0")
    for k in (1, 2, 4, 8):
        E(f"v_add_u32_dpp v{ACC}, v{ACC}, v{ACC} row_ror:{k} row_mask:0xf bank_mask:0xf")
        if k < 8: E("s_nop 1")
    E(f"v_cmp_ne_u32 vcc, 0, v{ACC}\ns_cbranch_vccnz L_rt{gi}")
    if OPT["rst"]: STAMP(1+gi)
    if OPT["sig"] == gi + 1: issued()
    def retry():
        E(f"L_rt{gi}:\ns_sub_u32 s34, s34, 1\ns_cbranch_scc1 {'L_toobig' if (gi < OPT['sig'] if OPT['sig'] != 9 else grp[0] < SP) else 'L_giveup'}")
        loads(grp, f"r{gi}_")
        E(f"s_waitcnt vmcnt(0)\ns_branch L_ck{gi}")
    emit_to(outofline, retry)
    for p in grp: rank(RA + 4*p, f"s[{48+2*p}:{49+2*p}]")
    E(f"s_and_b32 s30, s68, {bits}\ns_cbranch_scc1 L_ya{gi}\nL_yb{gi}:")
    def xput():
        E(f"L_ya{gi}:")
        for p in grp:
            r = RB + 4*p
            E(f"""
            s_bitcmp1_b32 s68, {p}
            s_cbranch_scc0 L_yn{p}
            s_mov_b64 exec, -1
            {mask2(p)}
            """)
            rank(r, "vcc")
            E("s_waitcnt lgkmcnt(0)")
            put(r, "vcc")
            E(f"L_yn{p}:")
        E(f"s_branch L_yb{gi}")
    emit_to(outofline, xput)
    for k, p in enumerate(grp):
        E(f"s_waitcnt lgkmcnt({len(grp) - 1 - k + 2*k})")
        put(RA + 4*p, f"s[{48+2*p}:{49+2*p}]")
    E("s_mov_b64 exec, -1")
E(f"""
    {f"s_sub_u32 s{ST0+4}, {POLL_MAX+1}, s34" if OPT["cnt"] else ""}
    s_branch L_b4
L_toobig:
    s_mov_b64 exec, -1
""")
issued()
E(f"""
L_giveup:
    v_mov_b32 v2, 0
    ds_write_b32 v2, v{FOUR} offset:{L_FLAG}
L_recskip:
    s_waitcnt vmcnt(0)
""")
if OPT["mcl"]: main_consts()
E(f"""
; ---------------- all waves: main loop
L_b4:
    s_setprio {OPT["p0"] if OPT["prio"] == 2 else 0}
    s_mul_i32 s30, s{S_HALF}, {G_HALF}
    {f"s_add_u32 s30, s30, {WS0}" if WS0 else ""}
    s_add_u32 s36, s20, s30
    s_addc_u32 s37, s21, 0
    s_mov_b32 s38, {OPT['nrec'] or G_HALF}
    s_mov_b32 s39, 0x20000
    s_mov_b32 s44, 128
    s_mov_b32 s45, 128
    ds_read_b128 v[{WS4}:{WS4+3}], v{LP}
    ds_read_b64 v[{AG}:{AG+1}], v{LP} offset:64
    ds_read_b64 v[{WN2}:{WN2+1}], v{LP} offset:72
    ds_read_b32 v{WE}, v{LP+1}
    s_waitcnt lgkmcnt(0)
    v_lshl_add_u64 v[{AG}:{AG+1}], v[{AG}:{AG+1}], 0, v[{LN8}:{LN8+1}]
    v_lshl_add_u32 v{WE}, v{WE}, 1, v{EAC}
""")
assert OPT["gpe"] <= 64 and not OPT["ptime"]
if OPT["warm"]:
    E(f"""
    s_barrier
    s_lshr_b32 s30, s2, 3
    s_mul_i32 s30, s30, 98304
    v_lshl_add_u32 v2, v0, 7, s30
    buffer_load_dword v3, v2, s[36:39], 0 offen sc1
    s_waitcnt vmcnt(0)
    s_sleep 40
    """)
STAMP(8)
E(f"""
    s_barrier                               ; B4
    s_cmp_lg_u32 s{S_SAFE}, 0
    s_cbranch_scc1 L_safe
    ds_read_b128 v[{T}:{T+3}], v{WS4}
    ds_read_b128 v[{T+4}:{T+7}], v{WS4+1}
    ds_read_b64 v[{XA}:{XA+1}], v{AG} offset:512
    ds_read_b64 v[{EA}:{EA+1}], v{WE}
    s_lshr_b32 s30, s3, 2
    s_cmp_lg_u32 s30, 1
    s_cbranch_scc1 L_nopoll
    s_mov_b64 exec, s[66:67]
    s_cbranch_execz L_p2e
    s_mov_b32 s31, {POLL_MAX}
L_p2:
    global_load_dwordx2 v[66:67], v64, s[20:21] sc1
    s_sub_u32 s31, s31, 1
    s_cbranch_scc1 L_p2d
    s_waitcnt vmcnt(0)
    v_cmp_ne_u64 vcc, s[{S_TAG}:{S_TAG+1}], v[66:67]
    s_and_b64 exec, exec, vcc
    s_cbranch_scc0 L_p2d
    {f"s_sleep {OPT['p2sleep']}" if OPT['p2sleep'] else ""}
    s_branch L_p2
L_p2d:
""")
gready("b")
E(f"""
L_p2e:
    s_mov_b64 exec, -1
L_nopoll:
    s_cmp_lt_u32 s3, 8
    s_cbranch_scc1 L_nobuild
; waves 8..11: place the edges past the 24th of every node: blocks of 8 (two tiles), then remainders of up to 4
    v_lshlrev_b32 v2, 3, v1
    v_mov_b32 v3, 0
    ds_read_b64 v[72:73], v2 offset:{L_CNT}
    ds_read_b32 v79, v3 offset:{L_FLAG}
    v_mul_u32_u24 v74, {2*SSTR}, v1
    v_add_u32 v74, {L_SRC + 96}, v74
    v_add_u32 v75, {SSTR}, v74
    v_mul_u32_u24 v82, {2*NSTR}, v1
    s_and_b32 s32, s3, 1
    s_mul_i32 s30, s32, {NSTR}
    s_add_u32 s30, s30, {L_NODE}
    v_add_u32 v82, s30, v82
    v_mov_b32 v83, v82
    s_mul_i32 s30, s32, {SSTR}
    v_add_u32 v80, s30, v74
    v_add_u32 v81, 16, v80
    s_waitcnt lgkmcnt(0)
    v_sub_u32 v72, v72, v74 clamp
    v_sub_u32 v73, v73, v75 clamp
    v_max_u32 v76, v72, v73
    v_cmp_lt_u32 vcc, 160, v76
    v_cmp_ne_u32 s[48:49], 0, v79
    v_add_u32 v74, 12, v72
    v_add_u32 v75, 12, v73
    s_or_b64 vcc, vcc, s[48:49]
    s_cbranch_scc1 L_bad
    v_add_u32 v72, 28, v72
    v_add_u32 v73, 28, v73
    v_lshrrev_b32 v74, 5, v74
    v_lshrrev_b32 v75, 5, v75
    v_lshrrev_b32 v72, 5, v72
    v_lshrrev_b32 v73, 5, v73
    v_sub_u32 v72, v72, v74
    v_sub_u32 v73, v73, v75
    v_lshl_or_b32 v72, v72, 16, v74
    v_lshl_or_b32 v73, v73, 16, v75
    v_add_u32 v76, v72, v73
    v_add_u32 v77, v72, v73
""")
scan(77)
E(f"""
    s_cmp_eq_u32 s32, 0
    s_cselect_b64 vcc, -1, 0
    v_readlane_b32 s30, v77, 63
    v_cndmask_b32 v76, v73, v76, vcc
    v_cndmask_b32 v72, v73, v72, vcc
    v_sub_u32 v77, v77, v76
    s_and_b32 s50, s30, 0xffff
    s_add_u32 s31, s50, 3
    s_lshr_b32 s31, s31, 2
    s_sub_u32 s51, 0, s50
    s_and_b32 s51, s51, 3                   ; spare quarters of the last such slot take remainders
    s_lshr_b32 s30, s30, 16
    s_add_u32 s30, s30, 3
    s_sub_u32 s30, s30, s51
    s_lshr_b32 s30, s30, 2
    s_lshl_b32 s33, s31, 1
    s_add_u32 s33, s33, s30
    s_cmp_gt_u32 s33, 104
    s_cbranch_scc1 L_bad
    s_lshl_b32 s30, s30, 8
    s_or_b32 s29, s30, s31
    v_and_b32 v74, 0xffff, v72
    v_and_b32 v76, 0xffff, v77
    s_mov_b32 s34, {L_LISTC}
    s_mov_b32 s35, {L_LIST + 136}
""")
def slotaddr():
    E(f"""
    v_subrev_u32 v78, 32, v76
    v_bfe_u32 v79, v76, 2, 2
    v_lshl_add_u32 v79, v79, 10, s34
    v_lshrrev_b32 v84, 5, v78
    v_lshl_add_u32 v79, v84, 7, v79
    v_bfe_u32 v84, v78, 4, 1
    v_lshl_add_u32 v79, v84, 3, v79
    v_lshrrev_b32 v84, 2, v76
    v_cmp_gt_u32 vcc, 32, v76
    v_lshl_add_u32 v84, v84, 9, s35
    v_and_b32 v78, 3, v76
    v_cndmask_b32 v79, v79, v84, vcc
    v_lshl_add_u32 v79, v78, 4, v79
    """)
E("""
    s_cmp_lt_u32 s3, 10
    s_cbranch_scc1 L_brem
L_bf:
    v_cmp_ne_u32 vcc, 0, v74
    s_and_b64 exec, exec, vcc
    s_cbranch_execz L_bfd
""")
slotaddr()
E(f"""
    ds_write_b64 v79, v[80:81]
    ds_write_b64 v79, v[82:83] offset:64
    v_add_u32 v80, 32, v80
    v_add_u32 v81, 32, v81
    v_add_u32 v76, 1, v76
    v_subrev_u32 v74, 1, v74
    s_branch L_bf
L_brem:
    v_lshl_add_u32 v80, v74, 5, v80
    v_add_u32 v81, 16, v80
    v_lshrrev_b32 v77, 16, v77
    s_sub_u32 s52, 0, s31
    s_and_b32 s52, s52, 3
    s_add_u32 s53, s31, s52
    s_lshl_b32 s52, s52, 3
    v_subrev_u32 v73, s51, v77              ; j' = j - spare
    v_subrev_u32 v74, s52, v73
    v_lshrrev_b32 v76, 3, v73
    v_add_u32 v76, s31, v76
    v_and_b32 v75, 4, v73
    v_lshrrev_b32 v78, 5, v74
    v_lshl_add_u32 v78, v78, 2, s53
    v_bfe_u32 v79, v74, 2, 2
    v_add_u32 v78, v78, v79
    v_cmp_gt_u32 vcc, s52, v73
    v_lshrrev_b32 v74, 2, v74
    v_and_b32 v74, 4, v74
    v_cndmask_b32 v76, v78, v76, vcc        ; slot
    v_cndmask_b32 v75, v74, v75, vcc
    v_and_b32 v78, 3, v73
    v_cmp_gt_u32 s[54:55], s51, v77
    v_lshl_add_u32 v76, v76, 2, v78
    v_add_u32 v78, s50, v77
    v_cndmask_b32 v76, v76, v78, s[54:55]
""")
slotaddr()
E(f"""
    v_cmp_lt_u32 vcc, 0xffff, v72
    v_add_u32 v75, v79, v75
    s_andn2_b64 exec, vcc, s[54:55]
    ds_write2_b32 v75, v80, v82 offset0:0 offset1:16
    s_and_b64 exec, vcc, s[54:55]
    ds_write_b64 v79, v[80:81]
    ds_write_b64 v79, v[82:83] offset:64
L_bfd:
    s_mov_b64 exec, -1
    s_mov_b32 s56, s29
    s_cmp_eq_u32 s3, 8
    s_cselect_b32 s29, s29, 0
    s_add_u32 s29, s29, 0x10000
    s_branch L_built
L_bad:
    s_mov_b32 s56, 0
    s_mov_b32 s29, 0x1010000
L_built:
    v_mov_b32 v2, s29
    s_mov_b64 exec, 1
    ds_add_u32 v3, v2 offset:{L_NST}
    s_add_u32 s30, s{S_P}, s3
    s_cmp_lg_u32 s30, 8
    s_cbranch_scc1 L_notw
    v_mov_b32 v2, s{S_TAG}
    v_mov_b32 v3, {WS_TAG}
    global_store_dword v3, v2, s[20:21] sc1
L_notw:
    s_mov_b64 exec, -1
    v_mov_b32 v2, 0
    s_mov_b32 s30, s56
    s_and_b32 s31, s30, 0xff
    s_bfe_u32 s30, s30, 0x80008
    s_and_b32 s28, s3, 3
    s_sub_u32 s32, 0, s31
    s_and_b32 s32, s32, 3
    s_add_u32 s33, s28, s32
    s_sub_i32 s33, s33, 4
    s_lshl_b32 s29, s33, 1
    s_sub_i32 s29, s30, s29
    s_max_i32 s29, s29, 0
    s_min_i32 s29, s29, 2
    s_cmp_lt_i32 s33, 0
    s_cselect_b32 s29, 0, s29
    s_lshl_b32 s32, s32, 1
    s_sub_i32 s30, s30, s32
    s_sub_i32 s30, s30, s28
    s_add_i32 s30, s30, 3
    s_max_i32 s30, s30, 0
    s_lshr_b32 s30, s30, 2
    s_add_u32 s30, s30, s29
    s_sub_u32 s32, s31, s28
    s_add_u32 s32, s32, 3
    s_lshr_b32 s32, s32, 2
    s_lshl_b32 s32, s32, 1
    s_add_u32 s30, s30, s32
    s_sub_i32 s30, s30, 4
    s_max_i32 s30, s30, 0
    s_add_u32 s{S_R}, s30, 6
    s_sub_i32 s31, s31, s3
    s_add_i32 s31, s31, 3
    s_max_i32 s31, s31, 0
    s_lshr_b32 s31, s31, 2
    s_lshl_b32 s31, s31, 1
    s_lshl_b32 s31, -1, s31
    s_or_b32 s31, s31, 0x55555555
    s_lshl_b32 s32, 2, s30
    s_sub_u32 s32, s32, 1
    s_and_b32 s31, s31, s32
    s_lshl_b32 s32, 64, s30
    s_or_b32 s{S_M}, s31, s32
    v_and_b32 v72, 15, v1
    v_lshrrev_b32 v73, 4, v1
    s_lshl_b32 s31, s3, 2
    s_add_u32 s31, s31, 32
    v_add_u32 v73, s31, v73                 ; node
    v_mul_u32_u24 v74, {SSTR}, v73
    v_lshl_add_u32 v74, v72, 4, v74
    v_add_u32 v74, {L_SRC}, v74
    v_mul_u32_u24 v75, {NSTR}, v73
    v_add_u32 v75, {L_NODE}, v75
    v_cmp_gt_u32 vcc, 6, v72
    v_add_u32 v72, s30, v72
    v_lshrrev_b32 v73, 2, v72
    v_lshl_add_u32 v73, v73, 7, v{LP}
    v_and_b32 v72, 3, v72
    v_lshl_add_u32 v73, v72, 2, v73
    s_mov_b64 exec, vcc
    ds_write2_b32 v73, v74, v75 offset0:0 offset1:16
    s_cmp_lg_u32 s30, 0
    s_cbranch_scc1 L_cw2
    v_mov_b32 v3, 1
    s_mov_b64 exec, 1
    ds_add_u32 v2, v3 offset:{L_DYN}
L_cw2:
    s_mov_b64 exec, -1
    s_mov_b32 s31, {LDS_MAX}
L_wnc:
    ds_read_b32 v3, v2 offset:{L_NST}
    s_sub_u32 s31, s31, 1
    s_cbranch_scc1 L_gosafe
    s_waitcnt lgkmcnt(0)
    v_readfirstlane_b32 s30, v3
    s_bitcmp1_b32 s30, 18
    s_cbranch_scc0 L_wnc
    s_cmp_gt_u32 s30, {0 if OPT["force_safe"] else 0xffffff}
    s_cbranch_scc1 L_gosafe
    ds_read_b128 v[{WS4}:{WS4+3}], v{LP}
    ds_read_b64 v[{AG}:{AG+1}], v{LP} offset:64
    ds_read_b64 v[{WN2}:{WN2+1}], v{LP} offset:72
    ds_read_b32 v{WE}, v{LP+1}
    s_waitcnt lgkmcnt(0)
    v_lshl_add_u64 v[{AG}:{AG+1}], v[{AG}:{AG+1}], 0, v[{LN8}:{LN8+1}]
    v_lshl_add_u32 v{WE}, v{WE}, 1, v{EAC}
    ds_read_b128 v[{T}:{T+3}], v{WS4}
    ds_read_b128 v[{T+4}:{T+7}], v{WS4+1}
    ds_read_b64 v[{XA}:{XA+1}], v{AG} offset:512
    ds_read_b64 v[{EA}:{EA+1}], v{WE}
L_nobuild:
    s_waitcnt lgkmcnt(0)
""")
assert DIST == 2 and not EARLY
E(m_a(D0))
for o in range(T, T+8, 2): E(oadd(o))
E(m_e(D0, 0))
E(f"ds_read_b64 v[{XA}:{XA+1}], v{AG+1} offset:512")
lds_wait(L_GOK, 0xff, 4, "gok", sleep=OPT["sl"] & 1)
if OPT["stamps"] == 2: E(f"s_memrealtime s[{ST0+16}:{ST0+17}]")
if not OPT["nogather"]:
    for q in range(8): E(gload(G + 4*q, T+q))
STAMP(9)
E(f"""
    s_mov_b32 s31, {LDS_MAX}
""")
E(f"""
    s_cmp_ge_u32 s3, 8
    s_cbranch_scc1 L_nd
L_wna:
    ds_read_b32 v3, v2 offset:{L_NST}
    s_sub_u32 s31, s31, 1
    s_cbranch_scc1 L_gosafe
    s_waitcnt lgkmcnt(0)
    v_readfirstlane_b32 s30, v3
    s_bitcmp1_b32 s30, 18
    s_cbranch_scc0 L_wna
    s_cmp_gt_u32 s30, {0 if OPT["force_safe"] else 0xffffff}
    s_cbranch_scc1 L_gosafe
    s_and_b32 s31, s30, 0xff
    s_mov_b32 s{S_R}, 14
    s_cmp_ge_u32 s3, s31
    s_cselect_b32 s30, 0x80, 0
    s_or_b32 s{S_M}, s30, 0x4141
L_nd:
    s_waitcnt vmcnt(6)
    {m_s(D0, A1, G)}
    s_waitcnt vmcnt(4)
    {m_s(D0, A2, G+8)}
    v_mov_b32 v3, 1
    s_nop 7
    s_mov_b32 s{S_IT}, {(1 << OPT["pa"]) | (1 << OPT["pb"]) | (1 << OPT["pc"]) if OPT["prio"] == 2 else 0}
""")
if OPT["prio"]: E(f"s_setprio {OPT['p1']}")
STAMP(10)
if OPT["ptime"]: E("v_mov_b32 v70, 0\nv_mov_b32 v71, 0")
if OPT["stamps"] == 1: E(f"s_memtime s[{ST0+24}:{ST0+25}]\ns_waitcnt lgkmcnt(0)")
for u in range(4): phase(u, True)
assert OPT["pc"] >= 2
def aggread(r, k, node): return f"ds_read_b64 v[{r+2*k}:{r+2*k+1}], v68 offset:{node*NSTR + 128*k}"
def tail(u):
    Dc, Dn = ((D0, D1), (D1, D0))[u & 1]
    gc = G + 16*u; gn = G + 16*((u+1) & 3)
    E(f"L_T{u}:")
    E(m_a(Dn))
    for x in exps(Dc, 0): E(x)
    E(m_e(Dn, (u+1) & 3))
    for x in exps(Dc, 1): E(x)
    E(f"ds_read_b32 v3, v2 offset:{L_DYN}")
    weave(pk_steps(gc, 0, False) + pk_steps(gc, 1, False), {2*k+1: [aggread(F, k, 32)] for k in range(4)})
    E("s_waitcnt vmcnt(2)"); E(m_s(Dn, A1, gn))
    for x in exps(Dc, 2): E(x)
    E("s_waitcnt vmcnt(0)"); E(m_s(Dn, A2, gn+8))
    for x in exps(Dc, 3): E(x)
    for x in pk_steps(gc, 2, False) + pk_steps(gc, 3, False): E(x)
    for q in (0, 2):
        for x in exps(Dn, q) + exps(Dn, q+1): E(x)
        for x in pk_steps(gn, q, False) + pk_steps(gn, q+1, False): E(x)
for u in (1, 2, 3):
    def t_(): tail(u); E("s_branch L_mdone")
    emit_to(outofline, t_)
tail(0)
E(f"""
L_mdone:
""")
STAMP(11)
if OPT["ptime"]:
    E(f"""
    s_lshl_b32 s30, s2, 4
    s_add_u32 s30, s30, s3
    s_lshl_b32 s30, s30, 8
    s_add_u32 s30, s30, 0xc00000
    v_lshl_add_u32 v2, v1, 2, s30
    s_mov_b32 exec_hi, 0
    global_store_dword v2, v70, s[20:21]
    global_store_dword v2, v71, s[20:21] offset:128
    s_mov_b64 exec, -1
    """)
if OPT["stamps"] == 1:
    E(f"s_memtime s[28:29]\ns_waitcnt lgkmcnt(0)\ns_sub_u32 s{ST0+24}, s28, s{ST0+24}")
E(f"""
    s_mov_b32 s32, {f32(2.0**32)}
    s_mov_b32 s34, {f32(-LOG2E * 2.0**-32)}
    s_mov_b32 s31, {LDS_MAX}
    v_rcp_f32 v{P}, v{P}
    v_rcp_f32 v{P+1}, v{P+1}
    v_rcp_f32 v{P+2}, v{P+2}
    v_rcp_f32 v{P+3}, v{P+3}
; the sums were read behind the count of waves that are on their last chain; with all twelve there they are complete
L_dw:
    s_waitcnt lgkmcnt(0)
    v_readfirstlane_b32 s30, v3
    s_add_u32 s30, s30, s{S_SAFE}
    s_cmp_lt_u32 s30, 12
    s_cbranch_scc1 L_dr
L_dx:
    s_cmp_ge_u32 s3, 8
    s_cbranch_scc1 L_d1
""")
for k in range(4): E(aggread(12, k, 0))
E("L_d1:")
def reread():
    E(f"L_dr:\ns_sub_u32 s31, s31, 1\ns_cbranch_scc1 L_dx\nds_read_b32 v3, v2 offset:{L_DYN}")
    for k in range(4): E(aggread(F, k, 32))
    E("s_branch L_dw")
emit_to(outofline, reread)
OSC = {0: "", 1: " sc1", 2: " nt"}[OPT["osc"]]
def silu(y, first):
    for p in range(2): E(f"v_pk_mul_f32 v[{36+2*p}:{37+2*p}], v[{y+2*p}:{y+2*p+1}], s[34:35] op_sel_hi:[1,0]")
    for k in range(4): E(f"v_exp_f32 v{36+k}, v{36+k}")
    E(f"v_pk_add_f32 v[10:11], v[{y}:{y+1}], v[{y+2}:{y+3}]" if first else f"v_pk_add_f32 v[10:11], v[10:11], v[{y}:{y+1}]")
    for p in range(2): E(f"v_pk_fma_f32 v[{36+2*p}:{37+2*p}], v[{36+2*p}:{37+2*p}], s[32:33], s[32:33] op_sel_hi:[1,0,0]")
    for k in range(4): E(f"v_rcp_f32 v{36+k}, v{36+k}")
    E("v_mov_b32 v9, 0x207" if first else f"v_pk_add_f32 v[10:11], v[10:11], v[{y+2}:{y+3}]")
    for p in range(2): E(f"v_pk_mul_f32 v[{36+2*p}:{37+2*p}], v[{y+2*p}:{y+2*p+1}], v[{36+2*p}:{37+2*p}]")
    o = 44 if first else 46
    E(f"v_cvt_pk_bf16_f32 v{o}, v36, v37\nv_cvt_pk_bf16_f32 v{o+1}, v38, v39")
    E(f"global_store_dwordx2 v69, v[{o}:{o+1}], s[18:19]{OSC}")
for k in range(4): E(f"v_cvt_f32_f64 v{28+k}, v[{F+2*k}:{F+2*k+1}]")
for p in range(2): E(f"v_pk_fma_f32 v[{28+2*p}:{29+2*p}], v[{N+2*p}:{N+2*p+1}], v[{P+2*p}:{P+2*p+1}], v[{28+2*p}:{29+2*p}]")
silu(28, True)
E(f"""
    s_cmp_ge_u32 s3, 8
    s_cbranch_scc1 L_e4
    v_subrev_u32 v69, {32*256}, v69
    s_waitcnt lgkmcnt(0)
""")
for k in range(4): E(f"v_cvt_f32_f64 v{28+k}, v[{12+2*k}:{13+2*k}]")
silu(28, False)
E(f"""
L_e4:
    v_add_f32 v10, v10, v11
    v_cmp_class_f32 vcc, v10, v9
    v_mov_b32 v2, 0
    s_cmp_lg_u32 s{S_SAFE}, 0
    s_cbranch_scc1 L_fin
    {"s_branch" if OPT["nosafe"] else "s_cbranch_vccz"} L_e5
    ds_write_b32 v2, v9 offset:{L_FLAG}
    s_waitcnt lgkmcnt(0)
L_e5:
    s_barrier                               ; B6
    ds_read_b32 v2, v2 offset:{L_FLAG}
    s_waitcnt lgkmcnt(0)
    v_readfirstlane_b32 s30, v2
    s_cmp_lg_u32 s30, 0
    s_cbranch_scc1 L_gosafe
L_fin:
""")
if OPT["stamps"]:
    E("s_waitcnt vmcnt(0)"); STAMP(13); STAMP_OUT()
if OPT["probe"] >= 0:
    T_ = ST0 + 2*OPT["probe"]
    E(f"""
    s_cmp_lg_u32 s3, {OPT["pw"]}
    s_cbranch_scc1 L_end
    s_cmp_lg_u32 s2, {OPT["pg"] if OPT["pg"] >= 0 else "s2"}
    s_cbranch_scc1 L_end
    s_sub_u32 s30, s{T_}, s{ST0}
    s_lshl_b32 s30, s30, 2
    s_add_u32 s30, s30, 3000
    s_min_u32 s30, s30, 20000
L_spin:
    s_memrealtime s[28:29]
    s_waitcnt lgkmcnt(0)
    s_sub_u32 s28, s28, s{ST0}
    s_cmp_lt_u32 s28, s30
    s_cbranch_scc1 L_spin
    """)
E(f"""
L_end:
    s_endpgm
; ---------------- fall back: redo the node terms, then evaluate edge by edge
L_gosafe:
    s_mov_b32 s{S_SAFE}, 16
    s_setprio 0
    s_waitcnt vmcnt(0) lgkmcnt(0)
    s_barrier
    s_branch L_restart
""")
out += outofline
for r in retries: E(r)
E(f"""
L_safe:
    v_and_b32 v2, 15, v1
    v_lshlrev_b32 v3, 3, v2
    v_add_u32 v3, {L_C}, v3
""")
for k in range(4):
    for s in range(4):
        E(f"ds_read_u16 v{80+4*k+s}, v3 offset:{128*k + 2*s}")
E("s_waitcnt lgkmcnt(0)")
for i in range(16):
    E(f"v_lshlrev_b32 v{80+i}, 16, v{80+i}\nv_mul_f32 v{80+i}, s40, v{80+i}")
E(f"""
    v_lshrrev_b32 v24, 4, v1
    v_mul_u32_u24 v24, 3, v24               ; 3*quarter
    s_movk_i32 s33, {NSTR}
    v_add_u32 v25, {L_NODE}, v{LN8}
    s_mov_b32 s34, s3
    s_mov_b32 s35, {POLL_MAX}
L_scell:
    s_lshl_b32 s30, s34, 10
    s_lshl_b32 s31, s{S_BUCK}, 3
    s_add_u32 s30, s30, s31
    s_add_u32 s30, s30, {WS_ROW}
    v_mov_b32 v26, s30
    global_load_dword v32, v26, s[20:21] sc1
    s_mul_i32 s30, s34, {SORTB//4}
    s_add_u32 s30, s30, {WS_REC//4}
    s_waitcnt vmcnt(0)
    v_bfe_u32 v28, v32, 12, 12              ; 3*count
    v_and_b32 v27, 0xfff, v32
    v_add_u32 v27, s30, v27
L_sver:
    v_mov_b32 v29, v1
    v_mov_b32 v31, 0
L_sv1:
    v_cmp_ge_u32 vcc, v28, v29
    s_and_saveexec_b64 s[48:49], vcc
    s_cbranch_execz L_sv2
    v_add_lshl_u32 v30, v27, v29, 2
    global_load_dword v32, v30, s[20:21] sc1
    s_waitcnt vmcnt(0)
    v_add_u32 v31, v31, v32
    s_mov_b64 exec, s[48:49]
    v_add_u32 v29, 64, v29
    s_branch L_sv1
L_sv2:
    s_mov_b64 exec, s[48:49]
""")
scan(31)
E(f"""
    s_nop 0
    v_readlane_b32 s30, v31, 63
    s_cmp_eq_u32 s30, s{S_TAG+1}
    s_cbranch_scc1 L_sok
    s_sub_u32 s35, s35, 1
    s_cbranch_scc0 L_sver
    s_branch L_sdone
L_sok:
    v_mov_b32 v29, v24
L_srec:
    v_cmp_gt_u32 vcc, v28, v29
    s_and_saveexec_b64 s[48:49], vcc
    s_cbranch_execz L_snext
    v_add_lshl_u32 v30, v27, v29, 2
    global_load_dwordx3 v[32:34], v30, s[20:21] offset:4 sc1
    s_waitcnt vmcnt(0)
    v_and_b32 v30, 0x3fff00, v32
    v_add_u32 v30, v30, v{LN16}
    buffer_load_dwordx4 v[36:39], v30, s[36:39], 0 offen sc1
    v_lshrrev_b32 v31, 24, v32
    v_mad_u32_u24 v31, v31, s33, v25
    ds_read_b64 v[40:41], v31 offset:512
    v_lshlrev_b32 v44, 16, v33
    v_and_b32 v45, 0xffff0000, v33
    v_lshlrev_b32 v46, 16, v34
    v_and_b32 v47, 0xffff0000, v34
    s_waitcnt vmcnt(0) lgkmcnt(0)
    v_lshlrev_b32 v48, 16, v40
    v_and_b32 v49, 0xffff0000, v40
    v_lshlrev_b32 v50, 16, v41
    v_and_b32 v51, 0xffff0000, v41
""")
for s in range(4):
    E(f"v_lshlrev_b32 v52, 16, v{36+s}\nv_add_f32 v{48+s}, v{48+s}, v52")
    for k in range(4):
        E(f"v_fmac_f32 v{48+s}, v{44+k}, v{80+4*k+s}")
for s in range(4): E(f"v_exp_f32 v{48+s}, v{48+s}")
E("s_nop 0")
for s in range(4): E(f"v_add_f32 v{48+s}, 1.0, v{48+s}")
for s in range(4): E(f"v_rcp_f32 v{48+s}, v{48+s}")
E("s_nop 0")
for s in range(4): E(f"v_mul_f32 v{48+s}, v{48+s}, v{36+s}")
for s in range(4): E(f"v_cvt_f64_f32 v[{54+2*s}:{55+2*s}], v{48+s}")
for s in range(4): E(f"ds_add_f64 v31, v[{54+2*s}:{55+2*s}] offset:{128*s}")
E(f"""
    s_mov_b64 exec, s[48:49]
    v_add_u32 v29, 12, v29
    s_branch L_srec
L_snext:
    s_mov_b64 exec, s[48:49]
    s_add_u32 s34, s34, {NW}
    s_cmp_lt_u32 s34, {NCHUNK}
    s_cbranch_scc1 L_scell
L_sdone:
    s_waitcnt lgkmcnt(0)
    s_barrier
    v_mov_b32 v3, 0
""")
for k in range(4): E(f"v_mov_b32 v{N+k}, 0\nv_mov_b32 v{P+k}, 1.0"); E(aggread(F, k, 32))
E(f"""
    s_branch L_mdone
L_codeend:
.section .rodata,"a"
.p2align 6
.amdhsa_kernel {NAME}
.amdhsa_next_free_vgpr 168
.amdhsa_next_free_sgpr 102
.amdhsa_accum_offset 168
.amdhsa_group_segment_fixed_size 0
.amdhsa_kernarg_size 80
.amdhsa_user_sgpr_count 2
.amdhsa_user_sgpr_kernarg_segment_ptr 1
.amdhsa_system_sgpr_workgroup_id_x 1
.end_amdhsa_kernel
""")
if OPT["al"]:
    i0 = out.index("L_L0:"); i1 = out.index("L_mdone:")
    mid = []; odd = False
    for l in out[i0:i1]:
        t = l.strip()
        if t.endswith(":") or t.startswith(";"): mid.append(l); continue
        four = t.startswith(("s_", "v_exp"))
        if not four and odd and OPT["al"] >= 3:
            mid.append("    s_nop 0"); odd = False
        if four: odd = not odd
        mid.append(l)
    pre = [".p2align 6, , 60"] if OPT["al"] != 2 else [".p2align 6, , 60", "    s_nop 0"]
    out = out[:i0] + pre + mid + out[i1:]
if OPT["drop"]:
    i0 = out.index("L_L0:"); i1 = out.index("L_mdone:")
    pats = {1: ("smfmac",), 2: ("mfma",), 3: ("32x32x8",), 4: ("smfmac",), 5: ("v_exp",)}[OPT["drop"]]
    repl = {4: "    s_nop 2", 5: "    s_nop 1"}.get(OPT["drop"])
    mid = []
    for l in out[i0:i1]:
        if any(x in l for x in pats):
            if repl: mid.append(repl)
        else: mid.append(l)
    if OPT["drop"] == 3: mid = [l.replace("v[88:103] cbsz", "0 cbsz").replace("v[72:87] cbsz", "0 cbsz") for l in mid]
    out = out[:i0] + mid + out[i1:]
if OPT["nochain"]:
    i0 = out.index("L_L0:"); i1 = out.index("L_mdone:")
    out = out[:i0] + [l for l in out[i0:i1] if not any(x in l for x in ("v_exp", "v_pk_", "mfma", "v_rcp", "v_cvt"))] + out[i1:]
open(sys.argv[1], "w").write("\n".join(out) + "\n")
```

```python
import sys, struct

OPT = dict(hb=1, pgs=0, al=0, sl=0, sigw=0, aue=0, mcl=2, b31=1, split=3, grp=0, allg=0, eag=1, stamps=0, force_safe=0, nogather=0, nosafe=0, prio=2, gsc1=1, osc=1, codepf=1, srcmask=0x3fff00, nrec=0, warm=0,
           nochain=0, probe=-1, pw=-1, pg=-1, gpf=32, early=0, cnt=0, pollmax=200000, pa=6, pb=3, pc=2, p0=3, p1=3, ptime=0,
           dist=2, ldearly=0, drop=0, wgate=0, gate=0, gate2=1, rst=0, rsc1=1, nover=0, p2gate=1, p2sleep=0, hold=0, slate=2, lpos=0, p1st=1, sig=2, gpace=4, gwin=-1, gp=0xf448c, ghold=0, nte=0, ewhen=6, eah=0, rih=0, stg=1, bvf=1, tch=0, xpf=1, wpf=1, gpe=40, oneb=0, tagl=0, p0e=0, aul=0, t0f=0, pre=0, prelate=0, ntx=0, rpace=-1, p2wait=0)
for a in sys.argv[2:]:
    k, v = a.split("=")
    assert k in OPT, k
    OPT[k] = int(v, 0)

out = []
def E(s=""):
    for line in s.split("\n"):
        line = line.strip()
        if not line:
            continue
        if line.endswith(":") or line.startswith(".") or line.startswith(";"):
            out.append(line)
        else:
            out.append("    " + line)

def f32(x):
    return "0x%08x" % struct.unpack("<I", struct.pack("<f", x))[0]

NAME = "standalone__edge_featured_mpnn_egc__graph_kernel"
LOG2E = 1.4426950408889634
NB = 80; NBUCK = 125; CHUNK = 1280; NCHUNK = 250
NW = 12
G_HALF = 10000 * 256
WS0 = 0
WS_REC = 0x500000
WS_ROW = 0x900000
WS_FL2 = 0x980000
WS_TAG = 0x9c0000
SORTB = CHUNK * 12 + 512
WS_STAMP = 0x1000000
L_CNT = 0; L_SOFF = 512
L_SCNT = 1024
L_CTR = 1536; L_RD = 1540; L_DONE2 = 1544; L_FLAG = 1548; L_NST = 1552; L_GST = 1556; L_GOK = 1560; L_AU = 1564; L_DYN = 1568; L_EAOK = 1572
L_DUM = L_SOFF
L_LIST = 2048
L_LISTC = L_LIST + 4096
SSTR = 272
L_SRC = L_LIST + 8192
SRCB = 80 * SSTR + 32
L_EA = L_SRC + SRCB
L_EAEND = L_EA + 2 * SRCB
L_SORT = L_EA
L_WBV = (L_EAEND + 255) // 256 * 256; L_X = L_WBV + 32768; L_WAU = L_X + 20480; L_C = L_WAU + 32768
LDS = L_C + 1024
L_NODE = L_WBV; NSTR = 648
assert L_NODE + 80 * NSTR <= L_WAU and LDS <= 163840 and L_EA % 16 == 0
NULL_SRC = 0x7fffff00
POLL_MAX = OPT["pollmax"]
LDS_MAX = 20 * POLL_MAX
SC1 = " sc1"
NTE = " nt" if OPT["nte"] else ""
NTX = " nt" if OPT["ntx"] else ""

S_HALF, S_BUCK, S_P = 22, 23, 24
S_SAFE, S_TAG = 25, 26
S_R, S_M, S_IT = 70, 71, 72
S_TAGRAW = 47
ST0 = 74

def ESTAMP(i):
    if OPT["early"] == 1 or (OPT["early"] and i == 0): E(f"s_memrealtime s[{ST0+2*i}:{ST0+2*i+1}]")
def FSTAMP(i):
    if OPT["early"] == 2: E(f"s_memrealtime s[{ST0+2*i}:{ST0+2*i+1}]\ns_waitcnt lgkmcnt(0)")
def STAMP(i):
    if OPT["stamps"] == 2:
        if i == 0: E(f"s_memrealtime s[{ST0}:{ST0+1}]")
        if i == 13: E(f"s_memrealtime s[{ST0+26}:{ST0+27}]\ns_waitcnt lgkmcnt(0)")
        return
    if OPT["early"] and 1 <= i <= 7: return
    if OPT["early"] and i == 0: return ESTAMP(0)
    if OPT["stamps"] or (OPT["probe"] >= 0 and i == OPT["probe"]):
        E(f"s_memrealtime s[{ST0+2*i}:{ST0+2*i+1}]\ns_waitcnt lgkmcnt(0)")
    elif OPT["probe"] >= 0 and i == 0:
        E(f"s_memrealtime s[{ST0}:{ST0+1}]")
NSTAMP = 14
def STAMP_OUT():
    if OPT["stamps"]:
        E(f"""
        s_lshl_b32 s30, s2, 4
        s_add_u32 s30, s30, s3
        s_lshl_b32 s30, s30, 6
        s_add_u32 s30, s30, {WS_STAMP - 0x100000}
        s_load_dwordx2 s[20:21], s[0:1], 72
        s_waitcnt lgkmcnt(0)
        s_mov_b64 exec, -1
        v_mov_b32 v3, s30""")
        for i in (range(NSTAMP) if OPT["stamps"] == 1 else (0, 8, 13)):
            E(f"v_mov_b32 v2, s{ST0+2*i}\nglobal_store_dword v3, v2, s[20:21] offset:{4*i}")
        E("s_waitcnt vmcnt(0)")

A1, A2, IDX, EAC, LN16, ASEL, CW, LN8 = 4, 8, 12, 13, 14, 16, 18, 20
LP, WS4, WN2, EA, XA, WE, OFS, AG, T, N, P, F = 22, 24, 28, 30, 32, 34, 36, 40, 44, 52, 56, 60
D0, D1, G = 72, 88, 104

def finish_tag():
    E(f"""
    s_mul_i32 s{S_TAG+1}, s{S_TAGRAW}, 0x85ebca6b
    s_mul_i32 s{S_TAG}, s{S_TAGRAW}, 0x9e3779b1
    s_add_u32 s{S_TAG+1}, s{S_TAG+1}, 0x5bd1e995
    s_add_u32 s{S_TAG}, s{S_TAG}, 0x7f4a7c15
    """)
def get_tag(lab, q):
    E(f"""
    s_cmp_lg_u32 s{S_SAFE}, 0
    s_cbranch_scc1 L_tag_{lab}
    v_mov_b32 v2, 0
    s_mov_b32 s31, {LDS_MAX}
L_tg_{lab}:
    ds_read_b128 v[{q}:{q+3}], v2 offset:{L_SCNT + 124*4}
    s_sub_u32 s31, s31, 1
    s_cbranch_scc1 L_tag_{lab}
    s_waitcnt lgkmcnt(0)
    v_readfirstlane_b32 s30, v{q+3}
    v_readfirstlane_b32 s{S_TAGRAW}, v{q+1}
    s_cmp_lg_u32 s30, 4
    s_cbranch_scc1 L_tg_{lab}
    """)
    finish_tag()
    E(f"L_tag_{lab}:")

def lds_wait(addr, mask, val, tag, sleep=0, ne=False):
    E(f"""
    v_mov_b32 v2, 0
    s_mov_b32 s31, {LDS_MAX}
    {f"s_branch L_wf_{tag}" if sleep else ""}
L_w_{tag}:
    {f"s_sleep {sleep}" if sleep else ""}
L_wf_{tag}:
    ds_read_b32 v3, v2 offset:{addr}
    s_sub_u32 s31, s31, 1
    s_cbranch_scc1 L_wd_{tag}
    s_waitcnt lgkmcnt(0)
    v_readfirstlane_b32 s30, v3
    s_and_b32 s30, s30, {mask}
    s_cmp_lg_u32 s30, {val}
    s_cbranch_scc{0 if ne else 1} L_w_{tag}
L_wd_{tag}:
    """)
SCAN = ("row_shr:1 row_mask:0xf bank_mask:0xf bound_ctrl:0", "row_shr:2 row_mask:0xf bank_mask:0xf bound_ctrl:0",
        "row_shr:4 row_mask:0xf bank_mask:0xf bound_ctrl:0", "row_shr:8 row_mask:0xf bank_mask:0xf bound_ctrl:0",
        "row_bcast:15 row_mask:0xa bank_mask:0xf", "row_bcast:31 row_mask:0xc bank_mask:0xf")
def scan(r):
    for m in SCAN:
        E(f"s_nop 1\nv_add_u32_dpp v{r}, v{r}, v{r} {m}")

def main_consts(sm=48):
    E(f"""
    v_and_b32 v2, 15, v1                    ; n'
    v_lshrrev_b32 v3, 4, v1
    v_lshl_add_u32 v3, v2, 2, v3
    v_lshlrev_b32 v3, 1, v3
    v_add_u32 v3, {L_C}, v3
    ds_read_u16 v64, v3                     ; C[0..3][feature 4n'+s]
    ds_read_u16 v65, v3 offset:128
    ds_read_u16 v66, v3 offset:256
    ds_read_u16 v67, v3 offset:384
    v_and_b32 v63, 3, v1                    ; q
    v_lshlrev_b32 v{LN8}, 3, v2
    v_lshlrev_b32 v{LN8+1}, 3, v2
    v_lshlrev_b32 v{LN16}, 4, v2
    v_lshlrev_b32 v{LN16+1}, 4, v2
    v_mov_b32 v{IDX}, 0x8888
    v_bfe_u32 v60, v1, 3, 2                 ; s = (l&31)>>3
    v_bfe_u32 v61, v1, 2, 1                 ; h = (l>>2)&1
    v_lshrrev_b32 v62, 5, v1                ; ha
    v_and_b32 v2, 1, v60
    v_lshlrev_b32 v2, 4, v2
    v_lshlrev_b32 v2, v2, s46               ; 1.0 (bf16) in half s&1
    v_lshrrev_b32 v60, 1, v60               ; s>>1
    v_lshl_add_u32 v3, v61, 1, v60
    v_sub_u32 v63, v63, v62                 ; q - ha : 0 -> A1, 2 -> A2
    v_lshl_add_u32 v3, v63, 1, v3
    v_and_b32 v63, 1, v63
    v_lshl_or_b32 v3, v63, 4, v3
    v_xor_b32 v61, v61, v62
    v_lshl_or_b32 v60, v61, 4, v60
    """)
    mk = [f"s[{sm}:{sm+1}]", f"s[{sm+2}:{sm+3}]", f"s[{sm+4}:{sm+5}]", "vcc"]
    for i in range(8):
        E(f"v_cmp_eq_u32 {mk[i%4]}, {i}, v3")
        if i % 4 == 3:
            for j in range(i-3, i+1):
                E(f"v_cndmask_b32 v{A1+j}, 0, v2, {mk[j%4]}")
    E(f"""
    v_cmp_eq_u32 {mk[0]}, 0, v60
    v_cmp_eq_u32 {mk[1]}, 1, v60
    v_and_b32 v63, 3, v1
    v_lshlrev_b32 v61, 3, v63
    v_cndmask_b32 v{ASEL}, 0, v2, {mk[0]}
    v_cndmask_b32 v{ASEL+1}, 0, v2, {mk[1]}
    v_add_u32 v{EAC}, {L_EA - 2*L_SRC}, v61
    s_lshl_b32 s30, s3, 9
    s_sub_u32 s31, s30, 4096
    s_max_i32 s31, s31, 0
    s_add_u32 s30, s30, s31
    s_add_u32 s30, s30, {L_LIST}
    v_lshrrev_b32 v2, 4, v1
    v_lshl_add_u32 v{LP}, v2, 4, s30
    v_bfe_u32 v3, v1, 2, 2
    v_lshl_add_u32 v{LP+1}, v3, 4, s30
    v_lshl_add_u32 v{LP+1}, v2, 2, v{LP+1}
    s_lshl_b32 s30, s3, 2
    s_add_u32 s30, s30, 32
    v_add_u32 v2, s30, v2
    v_mul_u32_u24 v68, {NSTR}, v2
    v_add_u32 v68, v68, v{LN8}
    v_add_u32 v68, {L_NODE - 32*NSTR}, v68
    s_mul_i32 s30, s{S_BUCK}, {NB*256}
    s_lshl_b32 s31, s{S_HALF}, 7
    s_add_u32 s30, s30, s31
    v_lshl_add_u32 v69, v2, 8, v{LN8}
    v_add_u32 v69, s30, v69
    s_waitcnt lgkmcnt(0)
    v_lshlrev_b32 v60, 16, v64
    v_lshlrev_b32 v61, 16, v65
    v_lshlrev_b32 v62, 16, v66
    v_lshlrev_b32 v63, 16, v67
    v_mul_f32 v60, s40, v60
    v_mul_f32 v61, s40, v61
    v_mul_f32 v62, s40, v62
    v_mul_f32 v63, s40, v63
    v_cvt_pk_bf16_f32 v{CW}, v60, v61
    v_cvt_pk_bf16_f32 v{CW+1}, v62, v63
    """)

def gload(g, o):
    return f"buffer_load_dwordx4 v[{g}:{g+3}], v{o}, s[36:39], 0 offen" + (SC1 if OPT["gsc1"] else "")
def oadd(o):
    return f"v_lshl_add_u64 v[{o}:{o+1}], v[{o}:{o+1}], 0, v[{LN16}:{LN16+1}]"

def pk_steps(Gc, q, first):
    t = T + 4*(q & 1); h = Gc + 4*q
    if first and q == 0:
        return [f"v_pk_add_f32 v[{P+2*p}:{P+2*p+1}], v[{t+2*p}:{t+2*p+1}], 1.0 op_sel_hi:[1,0]" for p in range(2)]
    r = []
    for p in range(2):
        n = f"v[{Gc+2*p}:{Gc+2*p+1}]" if (first and q == 1) else f"v[{N+2*p}:{N+2*p+1}]"
        r.append(f"v_pk_fma_f32 v[{N+2*p}:{N+2*p+1}], {n}, v[{t+2*p}:{t+2*p+1}], {n}")
    for p in range(2):
        r.append(f"v_pk_fma_f32 v[{N+2*p}:{N+2*p+1}], v[{h+2*p}:{h+2*p+1}], v[{P+2*p}:{P+2*p+1}], v[{N+2*p}:{N+2*p+1}]")
    for p in range(2):
        r.append(f"v_pk_fma_f32 v[{P+2*p}:{P+2*p+1}], v[{P+2*p}:{P+2*p+1}], v[{t+2*p}:{t+2*p+1}], v[{P+2*p}:{P+2*p+1}]")
    return r
def exps(Dc, q):
    t = T + 4*(q & 1)
    return [f"v_exp_f32 v{t+s}, v{Dc+4*s+q}" for s in range(4)]
def weave(main, extra):
    for i, x in enumerate(main):
        E(x)
        for y in extra.get(i, []):
            E(y)
def m_a(Dn): return f"v_mfma_f32_32x32x8_bf16 v[{Dn}:{Dn+15}], v[{ASEL}:{ASEL+1}], v[{XA}:{XA+1}], 0"
def m_e(Dn, abid): return f"v_mfma_f32_16x16x4_4b_bf16 v[{Dn}:{Dn+15}], v[{EA}:{EA+1}], v[{CW}:{CW+1}], v[{Dn}:{Dn+15}] cbsz:2 abid:{abid}"
def m_s(Dn, A, g): return f"v_smfmac_f32_32x32x32_bf16 v[{Dn}:{Dn+15}], v[{A}:{A+3}], v[{g}:{g+7}], v{IDX}"

outofline = []
def emit_to(lst, fn):
    global out
    keep = out; out = []
    fn(); lst += out; out = keep
assert OPT["pa"] == 6 and OPT["prio"] == 2
DIST = OPT["dist"]; EARLY = OPT["ldearly"]
assert not (EARLY and DIST == 4)
def phase(u, loads):
    tag = f"{'L' if loads else 'T'}{u}"
    Dc, Dn = ((D0, D1), (D1, D0))[u & 1]
    gc = G + 16*u; gn = G + 16*((u+1) & 3); gl = G + 16*((u+DIST) & 3)
    ld = loads and not OPT["nogather"]
    kw = (u + DIST + EARLY) & 3
    wsgrp = 128 * ((3 - kw + u + DIST + EARLY) // 4 + 1) if kw == 3 else None
    def addloads(ex, pos):
        if loads:
            ex.setdefault(0, []).append(oadd(OFS)); ex.setdefault(2, []).append(oadd(OFS+2))
        if ld:
            for q in range(4): ex.setdefault(pos[q], []).append(gload(gl+4*q, OFS+q))
    E(f"L_{tag}:")
    SL = OPT["slate"]
    if not SL: E(f"s_waitcnt vmcnt({4*(DIST-2)})")
    E(m_a(Dn))
    for x in exps(Dc, 0): E(x)
    E(m_e(Dn, (u+1) & 3) if SL else m_s(Dn, A1, gn))
    for x in exps(Dc, 1): E(x)
    ex = {0: ["s_waitcnt lgkmcnt(0)"], 2: [f"ds_read_b64 v[{XA}:{XA+1}], v{AG + ((u+2) & 3)} offset:512"]}
    if u % 2 == 0:
        p = AG + ((u+2) & 3)
        ex[0].append(f"v_lshl_add_u64 v[{p}:{p+1}], v[{WN2}:{WN2+1}], 0, v[{LN8}:{LN8+1}]")
    if EARLY: addloads(ex, (1, 3, 5, 6))
    elif loads: ex[1] = [f"ds_read_b128 v[{OFS}:{OFS+3}], v{WS4+kw}"]
    if u == 2:
        ex.setdefault(4, []).append(f"v_lshl_add_u32 v{WE}, v{WE}, 1, v{EAC}")
        if SL: ex.setdefault(7, []).append(f"ds_read_b64 v[{EA}:{EA+1}], v{WE}")
    E(f"s_bitcmp1_b32 s{S_M}, 0\ns_cbranch_scc1 L_{tag}f")
    weave(pk_steps(gc, 0, False) + pk_steps(gc, 1, False), ex)
    E(f"L_{tag}r:")
    def first():
        E(f"L_{tag}f:")
        weave(pk_steps(gc, 0, True) + pk_steps(gc, 1, True), ex)
        E(f"s_branch L_{tag}r")
    emit_to(outofline, first)
    if SL:
        if OPT["ptime"]: E(f"s_memrealtime s[28:29]\ns_mov_b32 m0, s{S_R}")
        E(f"s_waitcnt vmcnt({4*(DIST-2) + (4 if (EARLY and loads) else 0) + (2 if SL == 2 else 0)})")
        E(m_s(Dn, A1, gn))
    else:
        E(m_e(Dn, (u+1) & 3))
    for x in exps(Dc, 2): E(x)
    if SL == 2: E(f"s_waitcnt vmcnt({4*(DIST-2) + (4 if (EARLY and loads) else 0)})")
    if OPT["ptime"]: E(f"s_memrealtime s[30:31]")
    E(m_s(Dn, A2, gn+8))
    for x in exps(Dc, 3): E(x)
    ex = {0: ["s_waitcnt lgkmcnt(0)"], 4: [], 6: [], 7: [f"s_sub_u32 s{S_R}, s{S_R}, 1"], 10: [f"s_lshr_b32 s{S_M}, s{S_M}, 1"], 11: [f"s_bitcmp1_b32 s{S_M}, 0"]}
    if OPT["ptime"]: ex[0] += ["v_writelane_b32 v70, s28, m0", "v_writelane_b32 v71, s30, m0"]
    if not EARLY: addloads(ex, (1, 3, 5, 9) if DIST == 4 else ((1, 3, 5, 7), (1, 2, 3, 4), (4, 6, 8, 10), (2, 5, 8, 10))[OPT['lpos']])
    elif loads: ex[1] = [f"ds_read_b128 v[{OFS}:{OFS+3}], v{WS4+kw}"]
    if u == 1:
        ex[4].append(f"ds_read_b64 v[{WN2}:{WN2+1}], v{LP} offset:{128+64}")
        ex[6].append(f"ds_read_b32 v{WE}, v{LP+1} offset:128")
    if u == 2 and not SL:
        ex[4].append(f"ds_read_b64 v[{EA}:{EA+1}], v{WE}")
    if u == 3:
        ex[4].append(f"ds_read_b64 v[{WN2}:{WN2+1}], v{LP} offset:{128+64+8}")
        ex.setdefault(8, []).append(f"v_lshl_add_u64 v[{LP}:{LP+1}], v[{LP}:{LP+1}], 0, s[44:45]")
    if wsgrp and loads: ex[6].append(f"ds_read_b128 v[{WS4}:{WS4+3}], v{LP} offset:{wsgrp}")
    weave(pk_steps(gc, 2, False) + pk_steps(gc, 3, False), ex)
    E(f"s_cbranch_scc1 L_{tag}z\nL_{tag}y:")
    def fin():
        E(f"""
L_{tag}z:
        v_rcp_f32 v{P}, v{P}
        v_rcp_f32 v{P+1}, v{P+1}
        v_rcp_f32 v{P+2}, v{P+2}
        v_rcp_f32 v{P+3}, v{P+3}
        v_pk_mul_f32 v[{N}:{N+1}], v[{N}:{N+1}], v[{P}:{P+1}]
        v_pk_mul_f32 v[{N+2}:{N+3}], v[{N+2}:{N+3}], v[{P+2}:{P+3}]
        """)
        for s_ in range(4):
            E(f"v_cvt_f64_f32 v[{F+2*s_}:{F+2*s_+1}], v{N+s_}")
            if s_: E(f"ds_add_f64 v{AG+u}, v[{F+2*s_-2}:{F+2*s_-1}] offset:{128*(s_-1)}")
        E(f"ds_add_f64 v{AG+u}, v[{F+6}:{F+7}] offset:384")
        E(f"s_branch L_{tag}y")
    emit_to(outofline, fin)
    if OPT["prio"] == 2:
        E(f"s_bitcmp1_b32 s{S_IT}, s{S_R}\ns_cbranch_scc1 L_{tag}q\nL_{tag}p:")
        def pr():
            E(f"""
L_{tag}q:
            s_setprio 0
            s_cmp_le_u32 s{S_R}, {OPT["pc"]}
            s_cbranch_scc1 L_{tag}p
            s_setprio 1
            s_cmp_le_u32 s{S_R}, {OPT["pb"]}
            s_cbranch_scc1 L_{tag}p
            s_setprio 2
            s_mov_b64 exec, 1
            ds_add_u32 v2, v3 offset:{L_DYN}
            s_mov_b64 exec, -1
            s_branch L_{tag}p
            """)
        emit_to(outofline, pr)
    if u == 3 and OPT["prio"] == 1:
        E(f"""
        s_add_u32 s{S_IT}, s{S_IT}, 1
        s_setprio 0
        s_cmp_gt_u32 s{S_IT}, 2
        s_cbranch_scc1 L_{tag}p
        s_setprio 1
        s_cmp_eq_u32 s{S_IT}, 2
        s_cbranch_scc1 L_{tag}p
        s_setprio 2
L_{tag}p:
        """)
    if loads:
        E(f"s_cmp_le_u32 s{S_R}, {DIST}")
        if u < 3: E(f"s_cbranch_scc1 L_T{u+1}")
        else: E("s_cbranch_scc0 L_L0")
    else:
        E(f"s_waitcnt vmcnt(0)\ns_cmp_eq_u32 s{S_R}, 0")
        if u < 3: E("s_cbranch_scc1 L_mdone")
        else: E("s_cbranch_scc0 L_T0")

E(f"""
; Edge-gated message passing in one launch, one workgroup per (bucket of 80 nodes, half of the features).
;  sum_i h_i / (1 + t_i), t = exp(-z), is carried as a fraction N / P along a node's edges (exact algebra); if that
; @launch grid=(256,1,1) block=({64*NW},1,1) lds={LDS}
.amdgcn_target "amdgcn-amd-amdhsa--gfx950"
.text
.globl {NAME}
.p2align 8
.type {NAME},@function
{NAME}:
""")
if OPT["stamps"] == 1 and OPT["early"] != 1:
    for i in range(NSTAMP): E(f"s_mov_b64 s[{ST0+2*i}:{ST0+2*i+1}], 0")
STAMP(0)
E(f"""
    s_load_dwordx16 s[4:19], s[0:1], 0
    s_load_dwordx2 s[20:21], s[0:1], 72
""")
if OPT["codepf"]:
    E(f"""
    s_getpc_b64 s[28:29]
L_pc:
    v_lshlrev_b32 v3, 7, v0
    v_cmp_gt_u32 vcc, L_codeend-L_pc-64, v3
    s_cbranch_vccz L_nopf
    s_mov_b64 exec, vcc
    global_load_dword v164, v3, s[28:29]
    s_mov_b64 exec, -1
L_nopf:
    """)
E(f"""
    v_lshrrev_b32 v2, 6, v0
    v_and_b32 v1, 63, v0
    v_readfirstlane_b32 s3, v2
    {"s_bfe_u32 s%d, s2, 0x10002" % S_HALF if OPT["hb"] else "s_and_b32 s%d, s2, 1" % S_HALF}
    {"s_and_b32 s30, s2, 3" if OPT["hb"] else "s_bfe_u32 s30, s2, 0x20001"}
    {"s_mul_i32 s30, s30, 31" if OPT["b31"] else "s_lshl_b32 s30, s30, 5"}
    s_lshr_b32 s31, s2, 3
    s_add_u32 s{S_BUCK}, s30, s31
    {"s_cmp_eq_u32 s30, 93                    ; 31 buckets per XCD of a half, 32 on the last" if OPT["b31"] else "s_cmp_ge_u32 s2, 256"}
    {"s_subb_u32 s31, s31, 0" if OPT["b31"] else "s_cbranch_scc1 L_end"}
    {"s_cmp_ge_i32 s31, 31" if OPT["b31"] else "s_cmp_ge_u32 s%d, %d" % (S_BUCK, NBUCK)}
    s_cbranch_scc1 L_end
    s_lshl_b32 s{S_P}, s{S_BUCK}, 1
    s_add_u32 s{S_P}, s{S_P}, s{S_HALF}
    s_mov_b32 s{S_SAFE}, 0
L_restart:
    s_cmp_ge_u32 s3, 4
    s_cbranch_scc1 L_nosort
    v_mov_b32 v48, 0
    v_mov_b32 v49, 0
    v_mov_b32 v50, 0
    v_mov_b32 v51, 0
    v_lshlrev_b32 v10, 4, v1
    ds_write_b128 v10, v[48:51] offset:{L_SCNT}
    s_mul_i32 s30, s{S_P}, {CHUNK*4}
    v_lshl_add_u32 v3, v0, 4, s30
    s_add_u32 s30, s30, 4096
    v_lshl_add_u32 v18, v0, 2, s30
    v_lshlrev_b32 v10, 1, v3
    v_lshlrev_b32 v11, 1, v18
    v_mov_b32 v17, {WS_TAG}
    s_waitcnt lgkmcnt(0)
    global_load_dwordx4 v[4:7], v3, s[10:11]{NTE}
    global_load_dword v8, v18, s[10:11]{NTE}
""")
STG = OPT["stg"]
if STG: E(f"""
    s_add_u32 s28, s20, {WS_TAG}
    s_addc_u32 s29, s21, 0
    s_load_dword s65, s[28:29], 0
""")
else: E("global_load_dword v43, v17, s[20:21]")
E(f"""
""")
def preclear():
    E(f"""
    s_cmp_lg_u32 s{S_SAFE}, 0
    s_cbranch_scc1 L_nopre
    s_mul_i32 s30, s{S_HALF}, {G_HALF}
    s_mul_i32 s31, s{S_BUCK}, {NB*256}
    s_add_u32 s30, s30, s31
    s_add_u32 s30, s30, {4096*(5-OPT["pre"])}
    v_lshl_add_u32 v19, v0, 4, s30
    """)
    for i in range(OPT["pre"]):
        E("global_store_dwordx4 v19, v[48:51], s[20:21] sc1")
        if i + 1 < OPT["pre"]: E("v_add_u32 v19, 4096, v19")
    E("L_nopre:")
if OPT["pre"] and not OPT["prelate"]: preclear()
E(f"""
    {"" if OPT["oneb"] else "s_barrier"}
""")
if OPT["ewhen"] == 0: E(f"""
    global_load_dwordx4 v[12:15], v3, s[8:9]{NTE}
    global_load_dword v16, v18, s[8:9]{NTE}
    global_load_dwordx4 v[52:55], v10, s[6:7]{NTE}
    global_load_dwordx4 v[56:59], v10, s[6:7] offset:16{NTE}
    global_load_dwordx2 v[60:61], v11, s[6:7]{NTE}
""")
E("s_barrier                               ; B0b")
if OPT["ewhen"] == 7: E(f"""
    global_load_dwordx4 v[12:15], v3, s[8:9]{NTE}
    global_load_dword v16, v18, s[8:9]{NTE}
    global_load_dwordx4 v[52:55], v10, s[6:7]{NTE}
    global_load_dwordx4 v[56:59], v10, s[6:7] offset:16{NTE}
    global_load_dwordx2 v[60:61], v11, s[6:7]{NTE}
""")
if OPT["pre"] and OPT["prelate"]: preclear()
E(f"""
    s_branch L_sort
L_nosort:
    s_and_b32 s32, s3, 3                    ; tau
    s_lshr_b32 s33, s3, 3
    v_lshrrev_b32 v2, 4, v1                 ; g
    v_and_b32 v4, 15, v1
    s_lshl_b32 s30, s32, 2
    v_add_u32 v6, s30, v2                   ; row&15
    v_xor_b32 v7, v4, v6
    v_lshlrev_b32 v7, 4, v7
    v_lshl_add_u32 v7, v6, 8, v7
    s_mul_i32 s73, s{S_BUCK}, {NB*256}
    s_mul_i32 s31, s33, {3*4096}
    s_add_u32 s30, s73, s31
    v_add_u32 v7, s30, v7
    v_add_u32 v8, 0x1000, v7
    v_add_u32 v9, 0x2000, v7
    s_lshl_b32 s30, s32, 10
    s_add_u32 s31, s31, s30
    s_add_u32 m0, s31, {L_X}
    v_subrev_u32 v30, 256, v0               ; t = 0..511
    v_lshlrev_b32 v31, 4, v30
    v_mov_b32 v36, 0
    v_mov_b32 v37, 0
    v_mov_b32 v38, 0
    v_mov_b32 v39, 0
    v_add_u32 v40, {L_EA}, v31
    ds_write_b128 v40, v[36:39]
    ds_write_b128 v40, v[36:39] offset:8192
""")
if OPT["wpf"]:
    E(f"""
    s_lshr_b32 s30, s2, 3
    s_lshl_b32 s30, s30, 2
    v_add_u32 v3, s30, v1
    v_and_b32 v3, 127, v3
    s_lshl_b32 s30, s{S_HALF}, 7
    s_cmp_eq_u32 s3, 4
    s_cselect_b32 s31, 0x8000, 0
    s_add_u32 s30, s30, s31
    v_lshl_add_u32 v3, v3, 8, s30
    s_waitcnt lgkmcnt(0)
    s_cmp_lg_u32 s33, 0
    s_cbranch_scc1 L_nowpf
    s_cmp_eq_u32 s3, 5
    s_cselect_b32 s34, s14, s16
    s_cselect_b32 s35, s15, s17
    s_cmp_eq_u32 s3, 7
    s_cselect_b32 s34, s12, s34
    s_cselect_b32 s35, s13, s35
    s_mov_b64 exec, 0xffff
    global_load_dword v167, v3, s[34:35]
    s_mov_b64 exec, -1
L_nowpf:
    """)
    if OPT["wpf"] == 2:
        E(f"""
        s_cmp_lg_u32 s3, 8
        s_cbranch_scc1 L_notch
        s_mul_i32 s30, s{S_P}, {CHUNK*4}
        v_mov_b32 v3, s30
        v_lshlrev_b32 v5, 1, v3
        v_lshlrev_b32 v6, 21, v1
        s_mov_b64 exec, 1
        global_load_dword v167, v3, s[8:9]
        global_load_dword v166, v5, s[6:7]
        s_mov_b64 exec, 31
        global_load_dword v165, v6, s[20:21] sc1
        s_mov_b64 exec, 3
        global_load_dword v164, v6, s[18:19] sc1
        s_mov_b64 exec, -1
L_notch:
        """)
E("s_waitcnt lgkmcnt(0)")
if OPT["tch"]:
    n = OPT["tch"]
    E(f"""
    s_sub_u32 s30, s3, 4
    s_mul_i32 s31, s30, 2560
    s_add_u32 s31, s31, s73
    s_add_u32 s56, s4, s31
    s_addc_u32 s57, s5, 0
    s_mul_i32 s31, s{S_P}, {CHUNK*8}
    s_mul_i32 s30, s30, 1280
    s_add_u32 s31, s31, s30
    s_add_u32 s58, s6, s31
    s_addc_u32 s59, s7, 0
    """)
    for i in range(n): E(f"s_load_dword s60, s[56:57], {128*i}")
    E("s_load_dword s61, s[58:59], 0")
E(f"""
    {"" if OPT["oneb"] else "s_barrier"}
""")
if OPT["bvf"]:
    E("s_mov_b32 s29, m0")
elif not OPT["t0f"]: E(f"""
    global_load_lds_dwordx4 v7, s[4:5]{NTX}
    s_add_u32 m0, m0, 0x1000
    s_cmp_lg_u32 s33, 0
    global_load_lds_dwordx4 v8, s[4:5]{NTX}
    s_cbranch_scc1 L_x2
    s_add_u32 m0, m0, 0x1000
    s_nop 0
    global_load_lds_dwordx4 v9, s[4:5]{NTX}
L_x2:
    s_barrier
""")
else: E(f"""
    s_mov_b32 s29, m0
    s_cmp_lg_u32 s33, 0
    s_cbranch_scc1 L_x2
    global_load_lds_dwordx4 v7, s[4:5]
    s_add_u32 s29, s29, 0x1000
    v_mov_b32 v7, v8
    v_mov_b32 v8, v9
L_x2:
""")
E(f"""
    v_lshrrev_b32 v5, 3, v1
    v_and_b32 v3, 1, v2
    s_and_b32 s30, s3, 1
    s_lshl_b32 s30, s30, 1
    v_or_b32 v3, s30, v3                    ; sigma
    v_lshlrev_b32 v3, 1, v3
    v_and_b32 v20, 7, v1
    v_xor_b32 v3, v3, v20
    v_lshlrev_b32 v3, 4, v3
    v_lshl_add_u32 v10, v5, 8, v3
    s_sub_u32 s28, s3, 4
    s_lshl_b32 s30, s28, 11
    s_lshl_b32 s31, s{S_HALF}, 7
    s_add_u32 s30, s30, s31
    v_add_u32 v10, s30, v10
    v_add_u32 v11, 0x4000, v10
    s_lshl_b32 s28, s28, 10
    s_add_u32 s34, s16, {128*256}
    s_addc_u32 s35, s17, 0
    s_cmp_lg_u32 s3, 11
    s_cbranch_scc1 L_noc
    v_and_b32 v5, 3, v5
    v_lshlrev_b32 v20, 4, v20
    v_lshl_add_u32 v5, v5, 8, v20
    s_add_u32 s31, s31, {256*256}
    s_mov_b32 m0, {L_C}
    v_add_u32 v5, s31, v5
    global_load_lds_dwordx4 v5, s[16:17]
L_noc:
    s_add_u32 m0, s28, {L_WBV}
""")
for ti, base in enumerate((34, 14)):
    for n in range(2):
        E(f"s_nop 0\nglobal_load_lds_dwordx4 v{10+n}, s[{base}:{base+1}]")
        if not (ti == 1 and n == 1):
            E(f"s_add_u32 m0, m0, 0x2000")
def stage_au():
    E(f"""
    v_lshrrev_b32 v5, 3, v1
    v_bfe_u32 v3, v1, 4, 1
    v_lshlrev_b32 v3, 1, v3
    v_and_b32 v20, 7, v1
    v_xor_b32 v3, v3, v20
    v_lshlrev_b32 v3, 4, v3
    v_lshl_add_u32 v6, v5, 8, v3
    s_lshl_b32 s30, s{S_HALF}, 7
    s_and_b32 s31, s3, 1
    s_lshl_b32 s31, s31, 14
    s_add_u32 s30, s30, s31
    v_add_u32 v6, s30, v6
    v_xor_b32 v7, 64, v6
    v_add_u32 v8, 2048, v6
    v_add_u32 v9, 3072, v7
    v_add_u32 v7, 1024, v7
    s_lshl_b32 s30, s32, 13
    s_add_u32 m0, s30, {L_WAU}
    s_cmp_lt_u32 s32, 2
    s_cselect_b32 s34, s16, s12
    s_cselect_b32 s35, s17, s13
    global_load_lds_dwordx4 v6, s[34:35]
    global_load_lds_dwordx4 v7, s[34:35] offset:1024
    global_load_lds_dwordx4 v8, s[34:35] offset:2048
    global_load_lds_dwordx4 v9, s[34:35] offset:3072
    s_add_u32 m0, m0, 4096
    s_add_u32 s34, s34, 8192
    s_addc_u32 s35, s35, 0
    global_load_lds_dwordx4 v6, s[34:35]
    global_load_lds_dwordx4 v7, s[34:35] offset:1024
    global_load_lds_dwordx4 v8, s[34:35] offset:2048
    global_load_lds_dwordx4 v9, s[34:35] offset:3072
""")
if OPT["aue"] == 1:
    E("s_cmp_eq_u32 s33, 0\ns_cbranch_scc1 L_noau"); stage_au(); E("L_noau:")
if OPT["bvf"]:
    E(f"""
    s_mov_b32 m0, s29
    {"v_lshl_add_u32 v5, v1, 7, s73" if OPT["xpf"] else ""}
    {"v_add_u32 v3, 8192, v5" if OPT["xpf"] else ""}
    {"v_add_u32 v20, 12288, v5" if OPT["xpf"] else ""}
    s_barrier                               ; B0b
    """)
    if OPT["xpf"] == 3:
        E(f"""
        s_cmp_lg_u32 s3, 8
        s_cbranch_scc1 L_noxpf
        global_load_dword v166, v20, s[4:5]
        global_load_dword v165, v3, s[4:5] offset:-4096
L_noxpf:
        """)
    elif OPT["xpf"]:
        E(f"""
        s_cmp_lg_u32 s3, 4
        s_cbranch_scc1 L_noxpf
        global_load_dword v166, v20, s[4:5]
        global_load_dword v165, v5, s[4:5]
        s_mov_b32 exec_hi, 0
        global_load_dword v164, v3, s[4:5]
        s_mov_b32 exec_hi, -1
        """)
        if OPT["xpf"] == 2: E(f"""
        s_mul_i32 s30, s{S_P}, {CHUNK*8}
        v_lshl_add_u32 v5, v1, 7, s30
        global_load_dword v159, v5, s[6:7]
        """)
        E(f"""
L_noxpf:
        """)
    E(f"""
    global_load_lds_dwordx4 v7, s[4:5]
    s_add_u32 m0, m0, 0x1000
    s_cmp_lg_u32 s33, 0
    global_load_lds_dwordx4 v8, s[4:5]
    s_cbranch_scc1 L_x2
    s_add_u32 m0, m0, 0x1000
    s_nop 0
    global_load_lds_dwordx4 v9, s[4:5]
L_x2:
    """)
if OPT["t0f"] and not OPT["bvf"]:
    E(f"""
    s_mov_b32 m0, s29
    s_barrier                               ; B0b
    global_load_lds_dwordx4 v7, s[4:5]
    s_add_u32 m0, m0, 0x1000
    s_nop 0
    global_load_lds_dwordx4 v8, s[4:5]
    """)
if OPT["wgate"] or OPT["ewhen"] in (5, 6, 8, 9):
    E(f"""
    v_mov_b32 v7, 0x1000000
    s_mov_b64 exec, 1
    ds_add_u32 v36, v7 offset:{L_CTR}
    s_mov_b64 exec, -1
    """)
STAMP(1)
E(f"""
    v_mov_b32 v32, {NULL_SRC}
    v_mov_b32 v33, v32
    v_mov_b32 v34, v32
    v_mov_b32 v35, v32
""")
def cover(lo, n): return list(range(lo, n - 8192, 8192)) + [n - 8192]
for o in cover(16384, L_EAEND - L_EA): E(f"ds_write_b128 v40, v[36:39] offset:{o}")
for o in cover(0, SRCB): E(f"ds_write_b128 v31, v[32:35] offset:{L_SRC + o}")
E(f"""
    v_and_b32 v32, 3, v30           ; quarter
    v_bfe_u32 v33, v30, 3, 3
    v_lshrrev_b32 v34, 5, v30
    s_and_b32 s30, s3, 3
    s_add_u32 s30, s30, 16
    s_cmp_ge_u32 s3, 8
    s_cselect_b32 s31, 7, 3
    s_cselect_b32 s29, 0, 6
    s_cselect_b64 vcc, -1, 0
    v_and_b32 v33, s31, v33
    v_mov_b32 v35, s30
    v_cndmask_b32 v34, v34, v35, vcc
    v_lshl_add_u32 v32, v34, 2, v32
    v_bfe_u32 v34, v30, 2, 1
    v_mul_u32_u24 v35, {NSTR - SSTR}, v34
    v_mul_u32_u24 v41, {L_NODE - L_SRC}, v34
    v_mul_u32_u24 v42, {L_SRC + 80*SSTR - L_DUM}, v34
    v_lshlrev_b32 v43, 4, v34
    v_add_u32 v35, {SSTR}, v35
    v_add_u32 v41, {L_SRC}, v41
    v_sub_u32 v42, {L_SRC + 80*SSTR}, v42
    v_sub_u32 v43, 16, v43
    v_lshlrev_b32 v33, 2, v33
    v_mad_u32_u24 v41, v32, v35, v41
    v_mad_u32_u24 v41, v33, v43, v41
    v_lshlrev_b32 v35, 5, v35
    v_lshlrev_b32 v34, 3, v43
    v_sub_u32 v35, v35, v34
    v_cmp_gt_u32 s[48:49], 8, v33
    v_and_b32 v33, 7, v33
    v_add_u32 v34, 2, v33
    v_cmp_gt_u32 s[52:53], s29, v33
    v_cmp_gt_u32 s[54:55], s29, v34
    v_cndmask_b32 v44, v35, 0, s[48:49]
    v_cndmask_b32 v46, v35, 0, s[48:49]
    v_add_u32 v44, v41, v44
    v_lshl_add_u32 v46, v43, 1, v46
    v_add_u32 v46, v41, v46
    v_add_u32 v45, v44, v43
    v_add_u32 v47, v46, v43
    v_cndmask_b32 v44, v42, v44, s[52:53]
    v_cndmask_b32 v45, v42, v45, s[52:53]
    v_cndmask_b32 v46, v42, v46, s[54:55]
    v_cndmask_b32 v47, v42, v47, s[54:55]
    ds_write_b128 v31, v[44:47] offset:{L_LIST}
    s_cmp_ge_u32 s3, 6
    s_cbranch_scc1 L_pf3
    v_mul_u32_u24 v42, {SSTR}, v30
    v_add_u32 v42, {L_SRC}, v42
    v_lshlrev_b32 v41, 2, v30
    ds_write_b32 v41, v42 offset:{L_CNT}
L_pf3:
    v_bfe_u32 v3, v1, 2, 2                  ; r
    v_lshl_add_u32 v5, v2, 3, v3            ; 8g + r
    v_lshrrev_b32 v3, 1, v3
    v_and_b32 v6, 1, v2
    v_lshl_or_b32 v3, v6, 1, v3             ; sigma
    v_xor_b32 v3, s32, v3
    v_lshlrev_b32 v3, 5, v3
    v_lshl_add_u32 v10, v5, 7, v3
    v_and_b32 v3, 3, v1
    v_lshl_add_u32 v10, v3, 3, v10
    s_mul_i32 s31, s33, {L_WAU - L_WBV}
    s_add_u32 s31, s31, {L_WBV}
    v_add_u32 v10, s31, v10
    v_xor_b32 v3, v2, v4
    v_lshlrev_b32 v3, 4, v3
    v_lshl_add_u32 v12, v4, 8, v3
    v_add_u32 v12, {L_X}, v12
    v_xor_b32 v13, 64, v12
    v_xor_b32 v14, 0x80, v12
    v_xor_b32 v15, 0xc0, v12
    s_mul_i32 s30, s{S_HALF}, {G_HALF}
    s_add_u32 s30, s30, s73
    s_lshl_b32 s31, s32, 6
    s_add_u32 s30, s30, s31
    v_lshlrev_b32 v11, 10, v2
    v_lshl_add_u32 v11, v4, 2, v11
    v_add_u32 v11, s30, v11
    s_lshl_b32 s31, s32, 5
    s_add_u32 s31, s31, {L_NODE}
    v_mul_u32_u24 v16, {NSTR}, v4
    v_lshl_add_u32 v16, v2, 3, v16
    v_add_u32 v16, s31, v16
    s_mov_b32 s40, {f32(-LOG2E)}
    s_mov_b32 s42, {f32(2.0**32)}
    s_mov_b32 s44, 0x07060100
    s_mov_b32 s45, 0x07060302
    s_mov_b32 s46, 0x3f80
    v_mov_b32 v17, {f32(2.0**-100)}
    v_mov_b32 v19, 1
    v_mov_b32 v18, 0
""")
def staged():
    if not OPT["tagl"]: get_tag("g", 160)
    if OPT["aue"] == 2:
        E("s_cmp_eq_u32 s33, 0\ns_cbranch_scc1 L_noau"); stage_au(); E("L_noau:")
    if OPT["aue"]: E("s_waitcnt vmcnt(8)\ns_cmp_lg_u32 s33, 0\ns_cbranch_scc1 L_stg")
    E(f"""
    s_waitcnt vmcnt(0)
L_stg:
    s_mov_b64 exec, 1
    ds_add_u32 v18, v19 offset:{L_CTR}
    s_mov_b64 exec, -1
    """)
    STAMP(2)
    lds_wait(L_CTR, 0xff, 8, "g1", sleep=(OPT["sl"] >> 1) & 1)
if OPT["t0f"]:
    E(f"""
    {"s_waitcnt vmcnt(4)" if OPT["xpf"] == 3 else ""}
    {"s_cmp_eq_u32 s3, 8" if OPT["xpf"] == 3 else ""}
    {"s_cbranch_scc1 L_t0w" if OPT["xpf"] == 3 else ""}
    s_waitcnt vmcnt(2)
L_t0w:
    s_mov_b64 exec, 1
    ds_add_u32 v18, v19 offset:{L_AU}
    s_mov_b64 exec, -1
    s_or_b32 s30, s33, s{S_SAFE}
    s_cbranch_scc0 L_t0
    """)
staged()
STAMP(3)
NP = 8
RA = 72; RB = RA + 4*NP; RAD = RB + 4*NP
J3N, J12, J3N2, CELL, ROWA, FOUR, L0M, ACC, ENT, CAD = 156, 157, 158, 159, 160, 161, 162, 163, 164, 166
def rec_setup():
    E(f"""
    v_and_b32 v3, 15, v1                    ; j
    v_lshrrev_b32 v2, 4, v1
    v_lshl_add_u32 v{CELL}, v2, 3, v3
    s_lshl_b32 s30, s29, 5
    v_add_u32 v{CELL}, s30, v{CELL}
    s_lshl_b32 s30, s{S_BUCK}, 3
    s_add_u32 s30, s30, {WS_ROW}
    v_lshl_add_u32 v{ROWA}, v{CELL}, 10, s30
    v_cmp_gt_u32 s[66:67], {NP}, v3
    v_cmp_gt_u32 vcc, {NCHUNK}, v{CELL}
    v_mov_b32 v{ENT}, 0
    s_and_b64 s[66:67], s[66:67], vcc
    s_mov_b64 exec, s[66:67]
    global_load_dwordx2 v[{ENT}:{ENT+1}], v{ROWA}, s[20:21] sc1
    s_mov_b64 exec, -1
    v_mul_u32_u24 v{CELL}, {SORTB//4}, v{CELL}
    v_add_u32 v{CELL}, {WS_REC//4}, v{CELL}
    v_mul_u32_u24 v{J12}, 12, v3
    v_mul_u32_u24 v{J3N}, 3, v3
    v_not_b32 v{J3N}, v{J3N}
    v_subrev_u32 v{J3N2}, 48, v{J3N}
    v_subrev_u32 v{L0M}, 1, v3
    v_ashrrev_i32 v{L0M}, 31, v{L0M}            ; all ones in the first lane of each row
    v_mov_b32 v{FOUR}, 4
    """)
WF = 20; XF = 52; AC = 132
def wreads(ks):
    for t in range(2):
        for rd in range(2):
            r = WF + 16*t + 4*ks + 2*rd
            E(f"ds_read_b64_tr_b16 v[{r}:{r+1}], v10 offset:{t*16384 + ks*4096 + rd*512}")
def xread(rt, ks):
    r = XF + 16*rt + 4*ks
    return f"ds_read_b128 v[{r}:{r+3}], v{12+ks} offset:{rt*4096}"
def mf(rt, ks, transposed):
    for t in range(2):
        a = XF + 16*rt + 4*ks; w = WF + 16*t + 4*ks; d = AC + 8*(rt % 3) + 4*t
        c = "0" if ks == 0 else f"v[{d}:{d+3}]"
        if transposed: a, w = w, a
        E(f"v_mfma_f32_16x16x32_bf16 v[{d}:{d+3}], v[{a}:{a+3}], v[{w}:{w+3}], {c}")
def gemm(transposed, finish, before_first):
    for ks in range(3):
        E(xread(0, ks)); wreads(ks)
    E("s_waitcnt lgkmcnt(10)"); mf(0, 0, transposed)
    E(xread(0, 3)); wreads(3)
    E("s_waitcnt lgkmcnt(10)"); mf(0, 1, transposed)
    for ks in range(4): E(xread(1, ks))
    E("s_waitcnt lgkmcnt(9)"); mf(0, 2, transposed)
    for ks in range(4): E(xread(2, ks))
    E("s_waitcnt lgkmcnt(8)"); mf(0, 3, transposed)
    for ks in range(4): E(xread(3, ks))
    if OPT["p0e"]:
        E("s_nop 3"); finish(0)
    E("s_waitcnt lgkmcnt(8)")
    for ks in range(4):
        mf(1, ks, transposed); E(xread(4, ks))
    E(f"""
    s_mov_b64 exec, 1
    ds_add_u32 v18, v19 offset:{L_RD}
    s_mov_b64 exec, -1
    """)
    before_first()
    if not OPT["p0e"]: finish(0)
    E("s_waitcnt lgkmcnt(0)")
    for rt in range(2, 5):
        for ks in range(4): mf(rt, ks, transposed)
        finish(rt-1)
    finish(4)
def pack(rt):
    b = AC + 8*(rt % 3); h = b + 4
    for r in range(4): E(f"v_mul_f32 v{b+r}, s40, v{b+r}")
    for r in range(4): E(f"v_fma_f32 v{h+r}, v{h+r}, s42, v17")
    E(f"""
    v_cvt_pk_bf16_f32 v4, v{b}, v{b+1}
    v_cvt_pk_bf16_f32 v5, v{b+2}, v{b+3}
    v_xor_b32 v2, 0x80008000, v4
    v_xor_b32 v3, 0x80008000, v5
    v_sub_u32_sdwa v{h}, v{h}, sext(v2) dst_sel:DWORD dst_unused:UNUSED_PAD src0_sel:DWORD src1_sel:WORD_0
    v_sub_u32_sdwa v{h+1}, v{h+1}, sext(v2) dst_sel:DWORD dst_unused:UNUSED_PAD src0_sel:DWORD src1_sel:WORD_1
    v_sub_u32_sdwa v{h+2}, v{h+2}, sext(v3) dst_sel:DWORD dst_unused:UNUSED_PAD src0_sel:DWORD src1_sel:WORD_0
    v_sub_u32_sdwa v{h+3}, v{h+3}, sext(v3) dst_sel:DWORD dst_unused:UNUSED_PAD src0_sel:DWORD src1_sel:WORD_1
    """)
    w = (OPT["gp"] >> (4*(4-rt))) & 15 if OPT["gp"] else OPT["gpace"]
    if 0 <= w < 4*rt: E(f"s_waitcnt vmcnt({w})")
    if OPT["pre"] and rt == 5 - OPT["pre"]: lds_wait(L_SCNT + 126*4, 0xff, 4, "pre")
    if rt + 1 in (OPT["eah"], OPT["rih"]): lds_wait(L_EAOK, 0xff, 4, "eah")
    if OPT["ghold"] == rt + 1:
        E("v_mov_b32 v6, v2\nv_mov_b32 v7, v3"); lds_wait(L_CTR, 0xff00, 0x400, "gh", sleep=1); E("v_mov_b32 v2, v6\nv_mov_b32 v3, v7")
    for r in range(4):
        E(f"v_perm_b32 v{h+r}, v{h+r}, v{4 + (r>>1)}, s{44 + (r&1)}")
        if OPT["gwin"] >= 0: E(f"s_waitcnt vmcnt({OPT['gwin']})")
        E(f"global_store_dword v11, v{h+r}, s[20:21] offset:{256*r} sc1")
    if rt < 4: E("v_add_u32 v11, 0x1000, v11")
def fin(rt):
    a = AC + 8*(rt % 3); u = a + 4
    for r in range(4): E(f"v_mul_f32 v{a+r}, s40, v{a+r}")
    for r in range(4): E(f"v_mul_f32 v{u+r}, s42, v{u+r}")
    E(f"""
    v_cvt_pk_bf16_f32 v{a}, v{a}, v{a+1}
    v_cvt_pk_bf16_f32 v{a+1}, v{a+2}, v{a+3}
    v_cvt_f64_f32 v[2:3], v{u}
    v_cvt_f64_f32 v[4:5], v{u+1}
    v_cvt_f64_f32 v[6:7], v{u+2}
    v_cvt_f64_f32 v[8:9], v{u+3}
    ds_write_b64 v16, v[{a}:{a+1}] offset:512
    ds_write2_b64 v16, v[2:3], v[4:5] offset0:0 offset1:16
    ds_write2_b64 v16, v[6:7], v[8:9] offset0:32 offset1:48
    """)
    if rt < 4: E(f"v_add_u32 v16, {16*NSTR}, v16")
E(f"""
    s_cmp_lg_u32 s33, 0
    s_cbranch_scc1 L_gemm2
    s_cmp_lg_u32 s{S_SAFE}, 0
    s_cbranch_scc1 L_nog1
    s_setprio 2
""")
if OPT["t0f"]:
    E("L_t0:\ns_setprio 2")
    lds_wait(L_AU, 0xff, 8, "t0")
    STAMP(3)
    for ks in range(3):
        E(xread(0, ks)); wreads(ks)
    E("s_waitcnt lgkmcnt(10)"); mf(0, 0, False)
    E(xread(0, 3)); wreads(3)
    for ks in range(1, 4):
        E(f"s_waitcnt lgkmcnt({15 - 5*ks})"); mf(0, ks, False)
    E("s_nop 7"); pack(0)
    get_tag("t", 160)
    E(f"""
    s_waitcnt vmcnt(4)
    s_mov_b64 exec, 1
    ds_add_u32 v18, v19 offset:{L_CTR}
    s_mov_b64 exec, -1
    """)
    lds_wait(L_CTR, 0xff, 8, "t1")
    for rt in range(1, 4):
        for ks in range(4): E(xread(rt, ks))
    E("s_waitcnt lgkmcnt(8)")
    for ks in range(4):
        mf(1, ks, False); E(xread(4, ks))
    E(f"""
    s_mov_b64 exec, 1
    ds_add_u32 v18, v19 offset:{L_RD}
    s_mov_b64 exec, -1
    s_nop 3
    """)
    pack(1)
    E("s_waitcnt lgkmcnt(0)")
    for ks in range(4): mf(2, ks, False)
    for rt in range(3, 5):
        for ks in range(4): mf(rt, ks, False)
        pack(rt-1)
    pack(4)
else: gemm(False, pack, lambda: lds_wait(L_CTR, {1: 0x80000, 2: 0xc0000}[OPT["hold"]], 0, "hold", sleep=1, ne=True) if OPT["hold"] else None)
E("s_setprio 0")
if OPT["gate"] or OPT["gate2"] >= 3:
    E(f"""
    s_mov_b64 exec, 1
    ds_add_u32 v18, v19 offset:{L_GST}
    s_mov_b64 exec, -1
    """)
STAMP(4)
if OPT["tagl"]: get_tag("g", 160)
main_consts()
E(f"""
    s_lshl_b32 s30, s{S_P}, 7
    s_add_u32 s30, s30, {WS_FL2}
    v_mov_b32 v60, s30
    v_mov_b32 v62, s{S_TAG}
    v_mov_b32 v63, s{S_TAG+1}
    v_mov_b32 v2, 0
    v_mov_b32 v3, 1
    s_lshl_b32 s30, s32, 13
    s_lshl_b32 s31, s{S_HALF}, 7
    s_add_u32 s30, s30, s31
    s_add_u32 s30, s30, {WS_FL2}
    v_lshl_add_u32 v64, v1, 8, s30
    s_mul_i32 s30, s32, {2560*256}
    s_lshr_b32 s31, s2, 3
    s_mul_i32 s31, s31, {160*128}
    s_add_u32 s30, s30, s31
    v_lshl_add_u32 v65, v1, 7, s30
    {'' if OPT['gpe'] else 'v_min_u32 v65, %d, v65' % (G_HALF - 128)}
    s_mul_i32 s30, s{S_HALF}, {G_HALF}
    v_add_u32 v65, s30, v65
    s_mov_b64 exec, 1
    s_waitcnt vmcnt(0)
    ds_add_rtn_u32 v61, v2, v3 offset:{L_DONE2}
    s_waitcnt lgkmcnt(0)
    v_readfirstlane_b32 s30, v61
    s_cmp_lg_u32 s30, 3
    s_cbranch_scc1 L_nofl
    global_store_dwordx2 v60, v[62:63], s[20:21] sc1
    ds_add_u32 v2, v3 offset:{L_DONE2}
L_nofl:
""")
STAMP(5)
if OPT["p2gate"]:
    E("s_mov_b64 exec, -1")
    lds_wait(L_CTR, 0xff0000, 0x080000, "pg", sleep=OPT["pgs"])
    E("s_mov_b32 exec_hi, 0")
if OPT["p2wait"]: E(f"s_sleep {OPT['p2wait']}")
STAMP(6)
def gready(lab):
    if OPT["gpe"]: E(f"s_cmp_lg_u32 s73, 0\ns_cbranch_scc1 L_gr{lab}")
    if OPT["gpf"]:
        E(f"""
        {"s_bfm_b64 exec, %d, 0" % OPT["gpf"] if OPT["gpf"] < 64 else "s_mov_b64 exec, -1"}
        global_load_dword v35, v65, s[20:21] sc1
        """)
    E(f"""
L_gr{lab}:
    s_mov_b64 exec, 1
    v_mov_b32 v2, 0
    v_mov_b32 v3, 1
    ds_add_u32 v2, v3 offset:{L_GOK}
    """)
E(f"""
; each of the four waves checks the flags of 32 producers of this half: once now, again after the barrier if needed
    s_cmp_eq_u32 s32, 3
    s_cselect_b32 exec_lo, 0x1fffffff, -1
    {"" if OPT["p1st"] else "s_mov_b64 s[66:67], exec"}
    {"" if OPT["p1st"] else "s_branch L_p2n"}
    global_load_dwordx2 v[66:67], v64, s[20:21] sc1
    s_waitcnt vmcnt(0)
    v_cmp_ne_u64 s[66:67], s[{S_TAG}:{S_TAG+1}], v[66:67]
""")
if OPT["gpe"]:
    n = OPT["gpe"]
    E(f"""
    s_mov_b32 s73, 0
    s_lshr_b32 s30, s2, 3
    s_bitcmp1_b32 s66, s30
    s_cbranch_scc1 L_nogpe
    s_mov_b32 s73, 1
    s_bitcmp1_b32 exec_lo, s30
    s_cbranch_scc0 L_nogpe
    """)
    for k in range(0, n, 64):
        E("s_mov_b64 exec, -1")
        if k: E(f"v_add_u32 v65, 8192, v65")
        if n - k < 64: E(f"s_bfm_b64 exec, {n-k}, 0")
        E(f"global_load_dword v{(35, 68, 69)[k//64]}, v65, s[20:21] sc1")
    E("L_nogpe:")
E(f"""
    s_cmp_lg_u64 s[66:67], 0
    s_cbranch_scc1 L_p2n
""")
gready("a")
E("L_p2n:\ns_mov_b64 exec, -1")
STAMP(7)
E(f"""
    s_branch L_b4
L_nog1:
    s_mov_b64 exec, 1
    ds_add_u32 v18, v19 offset:{L_RD}
    s_mov_b64 exec, -1
    s_branch L_rec
L_gemm2:
""")
if not OPT['aul'] and not OPT['aue']: stage_au()
for rt in range(5):
    for ks in range(4): E(xread(rt, ks))
E(f"""
    s_mov_b64 exec, 1
    ds_add_u32 v18, v19 offset:{L_RD}
    s_mov_b64 exec, -1
""")
if OPT['aul']:
    lds_wait(L_RD, 8, 8, "aul"); stage_au()
E(f"""
    s_mov_b64 exec, 1
    s_waitcnt vmcnt(0)
    ds_add_u32 v18, v19 offset:{L_RD}
    s_mov_b64 exec, -1
    s_sub_u32 s29, s3, 4
""")
rec_setup()
lds_wait(L_RD, 0xff, 12, "rd", sleep=(OPT["sl"] >> 2) & 1)
for ks in range(4): wreads(ks)
for ks in range(4):
    E(f"s_waitcnt lgkmcnt({12 - 4*ks})"); mf(0, ks, True)
for rt in range(1, 5):
    for ks in range(4): mf(rt, ks, True)
    fin(rt-1)
fin(4)
if OPT["tagl"]: get_tag("h", 144)
STAMP(4)
E(f"""
    s_branch L_rec
L_sort:
""")
STAMP(1)
E(f"""
    s_mov_b32 s40, {f32(-LOG2E)}
    s_mov_b32 s46, 0x3f80
    s_cmp_lg_u32 s{S_SAFE}, 0
    s_cbranch_scc1 L_sortskip
    v_mov_b32 v21, 1
    v_mov_b32 v20, 3
    s_mov_b32 s31, 52429
    s_movk_i32 s32, -20
    v_lshlrev_b32 v9, 3, v1
    v_lshlrev_b32 v33, 4, v0
    s_mul_i32 s30, s{S_P}, {SORTB}
    s_add_u32 s30, s30, {WS_REC + 4096}
    v_add_u32 v32, s30, v33                 ; copy-out global offset
    v_add_u32 v34, 8192, v32
    s_lshl_b32 s30, s{S_P}, 10
    s_add_u32 s30, s30, {WS_ROW}
    v_lshl_add_u32 v42, v1, 4, s30
    s_mov_b32 s34, {LDS_MAX}
    s_setprio 3
""")
E6 = OPT["ewhen"] in (0, 6, 7)
if OPT["ewhen"] == 6:
    E("v_mov_b32 v19, v3")
    lds_wait(L_CTR, 0xff000000, 0x08000000, "ew")
    E("v_mov_b32 v3, v19\ns_mov_b32 s31, 52429")
    E(f"""
    global_load_dwordx4 v[12:15], v3, s[8:9]{NTE}
    global_load_dword v16, v18, s[8:9]{NTE}
    global_load_dwordx4 v[52:55], v10, s[6:7]{NTE}
    global_load_dwordx4 v[56:59], v10, s[6:7] offset:16{NTE}
    global_load_dwordx2 v[60:61], v11, s[6:7]{NTE}
""")
E(f"""
    s_waitcnt vmcnt({(0 if STG else 1) + OPT['pre'] + 5*E6})
""")
STAMP(2)
FSTAMP(1)
for i in range(5):
    E(f"""
    v_mul_u32_u24 v{22+i}, s31, v{4+i}
    v_lshrrev_b32 v{22+i}, 22, v{22+i}
    v_lshlrev_b32 v{22+i}, 2, v{22+i}        ; bucket*4
    ds_add_rtn_u32 v{27+i}, v{22+i}, v20 offset:{L_SCNT}
    """)
E(f"""
    s_mov_b64 exec, 1
    s_cmp_lg_u32 s3, 0
    s_cbranch_scc1 L_notag
    {"s_waitcnt lgkmcnt(0)" if STG else "s_waitcnt vmcnt(%d)" % (OPT['pre'] + 5*E6)}
    {"v_mov_b32 v43, s65" if STG else ""}
""")
if OPT["probe"] == 12: STAMP(12)
E(f"""
    ds_write_b32 v48, v43 offset:{L_SCNT + 125*4}
L_notag:
    ds_add_u32 v48, v21 offset:{L_SCNT + 127*4}  ; arrival count of the four waves (LDS runs a wave's ops in order)
    s_mov_b64 exec, -1
""")
if OPT["ewhen"] == 1: E(f"""
    global_load_dwordx4 v[12:15], v3, s[8:9]{NTE}
    global_load_dword v16, v18, s[8:9]{NTE}
    global_load_dwordx4 v[52:55], v10, s[6:7]{NTE}
    global_load_dwordx4 v[56:59], v10, s[6:7] offset:16{NTE}
    global_load_dwordx2 v[60:61], v11, s[6:7]{NTE}
""")
E(f"""
    {"s_mov_b32 s65, 0" if OPT["ewhen"] == 8 else ""}
L_s1:
    ds_read_b32 v38, v48 offset:{L_SCNT + 127*4}
    {f"ds_read_b32 v39, v48 offset:{L_CTR}" if OPT["ewhen"] == 8 else ""}
    ds_read_b64 v[36:37], v9 offset:{L_SCNT}
    s_sub_u32 s34, s34, 1
    s_cbranch_scc1 L_s1d
    s_waitcnt lgkmcnt(0)
""")
if OPT["ewhen"] == 8: E(f"""
    v_readfirstlane_b32 s30, v39
    s_lshr_b32 s30, s30, 27
    s_cmp_le_u32 s30, s65
    s_cbranch_scc1 L_e8a
    s_mov_b32 s65, 1
    global_load_dwordx4 v[12:15], v3, s[8:9]{NTE}
    global_load_dword v16, v18, s[8:9]{NTE}
    global_load_dwordx4 v[52:55], v10, s[6:7]{NTE}
    global_load_dwordx4 v[56:59], v10, s[6:7] offset:16{NTE}
    global_load_dwordx2 v[60:61], v11, s[6:7]{NTE}
L_e8a:
""")
E(f"""
    v_readfirstlane_b32 s30, v38
    s_cmp_lg_u32 s30, 4
    s_cbranch_scc1 L_s1
L_s1d:
""")
FSTAMP(2)
E(f"""
    v_add3_u32 v39, v36, v37, 2
    v_add3_u32 v38, v36, v37, 2
    v_readlane_b32 s{S_TAGRAW}, v37, 62
""")
fill = []
for i in range(5):
    fill += [f"v_mad_i32_i24 v{4+i}, v{22+i}, s32, v{4+i}", f"v_lshlrev_b32 v{4+i}, 24, v{4+i}"]
for k, m in enumerate(SCAN):
    E(f"v_add_u32_dpp v39, v39, v39 {m}")
    for x in fill[2*k:2*k+2]: E(x)
E(f"""
    v_sub_u32 v40, v39, v38
    v_add3_u32 v41, v40, v36, 1
    s_mov_b32 s30, {L_SORT}
    v_lshl_add_u32 v38, v40, 2, s30
    v_lshl_add_u32 v39, v41, 2, s30
    ds_write_b64 v9, v[38:39] offset:{L_SOFF}
""")
for i in range(5):
    E(f"ds_read_b32 v{22+i}, v{22+i} offset:{L_SOFF}")
finish_tag()
if OPT["ewhen"] in (9, 10):
    if OPT["ewhen"] == 9:
        E("v_mov_b32 v19, v3"); lds_wait(L_CTR, 0xff000000, 0x08000000, "ew"); E("v_mov_b32 v3, v19")
    E(f"""
    global_load_dwordx4 v[12:15], v3, s[8:9]{NTE}
    global_load_dword v16, v18, s[8:9]{NTE}
    global_load_dwordx4 v[52:55], v10, s[6:7]{NTE}
    global_load_dwordx4 v[56:59], v10, s[6:7] offset:16{NTE}
    global_load_dwordx2 v[60:61], v11, s[6:7]{NTE}
""")
E(f"""
    s_cmp_lg_u32 s3, 0
    s_cbranch_scc1 L_nopub
    s_and_b32 s35, s{S_TAG+1}, 0xff000000
    v_mov_b32 v45, s{S_TAG}
    v_mov_b32 v47, s{S_TAG}
    v_lshl_or_b32 v44, v36, 12, v40
    v_lshl_or_b32 v46, v37, 12, v41
    v_or_b32 v44, s35, v44
    v_or_b32 v46, s35, v46
    global_store_dwordx4 v42, v[44:47], s[20:21] sc1
    {"s_waitcnt vmcnt(1)" if OPT["ewhen"] in (0, 1, 6, 7, 9, 10) else ""}
    s_branch {"L_pub" if OPT["ewhen"] in (0, 1, 6, 7, 9, 10) else "L_nochk"}
L_nopub:
    s_cmp_lg_u32 s3, 1
    s_cbranch_scc1 L_nochk
    v_mov_b32 v44, s{S_TAG+1}
    s_mov_b32 exec_hi, 0x7fffffff
    ds_add_u32 v38, v44
    ds_add_u32 v39, v44
    s_mov_b32 exec_hi, -1
L_nochk:
""")
if OPT["ewhen"] == 8:
    E("s_cmp_lg_u32 s65, 0\ns_cbranch_scc1 L_e8b\nv_mov_b32 v19, v3")
    lds_wait(L_CTR, 0xff000000, 0x08000000, "ew")
    E(f"""
    v_mov_b32 v3, v19
    global_load_dwordx4 v[12:15], v3, s[8:9]{NTE}
    global_load_dword v16, v18, s[8:9]{NTE}
    global_load_dwordx4 v[52:55], v10, s[6:7]{NTE}
    global_load_dwordx4 v[56:59], v10, s[6:7] offset:16{NTE}
    global_load_dwordx2 v[60:61], v11, s[6:7]{NTE}
L_e8b:
""")
if 3 <= OPT["ewhen"] <= 5:
    E("v_mov_b32 v19, v3")
    if OPT["ewhen"] == 3: lds_wait(L_CTR, 0xff, 8, "ew")
    elif OPT["ewhen"] == 5: lds_wait(L_CTR, 0xff000000, 0x08000000, "ew")
    else: lds_wait(L_CTR, 0xff, 0, "ew", ne=True)
    E("v_mov_b32 v3, v19")
if 2 <= OPT["ewhen"] <= 5: E(f"""
    global_load_dwordx4 v[12:15], v3, s[8:9]{NTE}
    global_load_dword v16, v18, s[8:9]{NTE}
    global_load_dwordx4 v[52:55], v10, s[6:7]{NTE}
    global_load_dwordx4 v[56:59], v10, s[6:7] offset:16{NTE}
    global_load_dwordx2 v[60:61], v11, s[6:7]{NTE}
""")
E(f"""
    s_waitcnt vmcnt(0)
L_pub:
""")
if OPT["eah"]:
    E(f"""
    s_mov_b64 exec, 1
    ds_add_u32 v48, v21 offset:{L_EAOK}
    s_mov_b64 exec, -1
    """)
STAMP(4)
FSTAMP(3)
for i in range(5): E(f"v_lshl_or_b32 v{4+i}, v{12+i}, 8, v{4+i}")
E("s_waitcnt lgkmcnt(0)")
for i in range(5):
    E(f"""
    v_lshl_add_u32 v{27+i}, v{27+i}, 2, v{22+i}
    v_add3_u32 v{12+i}, v{52+2*i}, v{53+2*i}, v{4+i}
    ds_write2_b32 v{27+i}, v{52+2*i}, v{53+2*i} offset0:2 offset1:3
    ds_write_b32 v{27+i}, v{4+i} offset:4
    ds_sub_u32 v{22+i}, v{12+i}
    """)
E(f"""
    s_mov_b64 exec, 1
    ds_add_u32 v48, v21 offset:{L_SCNT + 126*4}
    s_mov_b64 exec, -1
""")
FSTAMP(4)
E(f"""
    s_mov_b32 s34, {LDS_MAX}
L_s2:
    ds_read_b32 v38, v48 offset:{L_SCNT + 126*4}
    {f"ds_read_b32 v39, v48 offset:{L_CTR}" if OPT["wgate"] else ""}
    ds_read_b128 v[72:75], v33 offset:{L_SORT}
    s_sub_u32 s34, s34, 1
    s_cbranch_scc1 L_s2d
    s_waitcnt lgkmcnt(1)
    v_readfirstlane_b32 s30, v38
""")
if OPT["wgate"]:
    E(f"""
    v_readfirstlane_b32 s31, v39
    s_lshr_b32 s31, s31, 24
    s_add_u32 s30, s30, s31
    """)
E(f"""
    s_cmp_lg_u32 s30, {12 if OPT["wgate"] else 4}
    s_cbranch_scc1 L_s2
L_s2d:
""")
FSTAMP(5)
E(f"""
    ds_read_b128 v[76:79], v33 offset:{L_SORT + 4096}
    ds_read_b128 v[80:83], v33 offset:{L_SORT + 8192}
    ds_read_b128 v[84:87], v33 offset:{L_SORT + 12288}
    s_waitcnt lgkmcnt(3)
    global_store_dwordx4 v32, v[72:75], s[20:21] offset:-4096 sc1
    s_waitcnt lgkmcnt(2)
    global_store_dwordx4 v32, v[76:79], s[20:21] sc1
    s_waitcnt lgkmcnt(1){f" vmcnt({OPT['rpace']})" if OPT['rpace'] >= 0 else ""}
    global_store_dwordx4 v34, v[80:83], s[20:21] offset:-4096 sc1
    s_cmp_eq_u32 s3, 3
    s_cselect_b32 exec_hi, 0, -1
    s_waitcnt lgkmcnt(0){f" vmcnt({OPT['rpace']})" if OPT['rpace'] >= 0 else ""}
    global_store_dwordx4 v34, v[84:87], s[20:21] sc1
    s_mov_b32 exec_hi, -1
""")
if OPT["rih"]:
    E(f"""
    s_mov_b64 exec, 1
    ds_add_u32 v48, v21 offset:{L_EAOK}
    s_mov_b64 exec, -1
    """)
FSTAMP(6)
for k in range(4): E(f"ds_write_b128 v33, v[48:51] offset:{L_SORT + 4096*k}")
STAMP(3)
FSTAMP(7)
E(f"""
    s_branch L_sortdone
L_sortskip:
    s_waitcnt vmcnt(0)
L_sortdone:
    s_mov_b32 s29, s3
""")
rec_setup()
E(f"""
L_rec:
""")
if OPT["mcl"]: E(f"s_cmp_ge_u32 s3, 8\ns_cbranch_scc1 L_nomc")
lds_wait(L_CTR, 0xff, 8, "r0")
if OPT["mcl"] != 2: main_consts()
E("L_nomc:")
STAMP(5)
E(f"""
    s_cmp_ge_u32 s3, 4
    s_cbranch_scc1 L_nod2
    v_mov_b32 v2, 0
    v_mov_b32 v3, 0x100
    s_mov_b64 exec, 1
    s_waitcnt vmcnt(0)
    ds_add_u32 v2, v3 offset:{L_CTR}
    s_mov_b64 exec, -1
L_nod2:
    s_cmp_lg_u32 s{S_SAFE}, 0
    s_cbranch_scc1 L_recskip
    s_lshr_b32 s35, s{S_TAG+1}, 24
    s_mov_b64 exec, s[66:67]
    s_mov_b32 s34, {POLL_MAX}
    s_branch L_p1c
L_p1:
    global_load_dwordx2 v[{ENT}:{ENT+1}], v{ROWA}, s[20:21] sc1
L_p1c:
    s_sub_u32 s34, s34, 1
    s_cbranch_scc1 L_toobig
    s_waitcnt vmcnt(0)
    v_cmp_ne_u32 vcc, s{S_TAG}, v{ENT+1}
    v_cmp_ne_u32_sdwa s[48:49], v{ENT}, s35 src0_sel:BYTE_3 src1_sel:DWORD
    s_or_b64 exec, vcc, s[48:49]
    s_cbranch_scc1 L_p1
    s_mov_b64 exec, -1
""")
STAMP(6)
if OPT["cnt"]: E(f"s_sub_u32 s{ST0+2}, {POLL_MAX+1}, s34\ns_mov_b32 s34, {POLL_MAX}")
E(f"""
    v_and_b32 v{CAD}, 0xfff, v{ENT}
    v_bfe_u32 v{ENT}, v{ENT}, 12, 12            ; 3*count
    v_add_lshl_u32 v{CAD}, v{CAD}, v{CELL}, 2
    v_cmp_ne_u32 vcc, 0, v{ENT}
    s_sub_u32 s30, 0, s{S_TAG+1}
    v_mov_b32 v2, s30
    v_cndmask_b32 v{ENT+1}, 0, v2, vcc
    v_cmp_lt_u32 vcc, 96, v{ENT}
    v_cmp_lt_u32 s[68:69], 48, v{ENT}
    s_cbranch_vccnz L_toobig
""")
for p in range(NP):
    E(f"""
    v_add_co_u32_dpp v2, vcc, v{ENT}, v{J3N} row_newbcast:{p} row_mask:0xf bank_mask:0xf
    v_add_u32_dpp v{RAD+p}, v{CAD}, v{J12} row_newbcast:{p} row_mask:0xf bank_mask:0xf
    s_mov_b64 s[{48+2*p}:{49+2*p}], vcc
    """)
lds_wait(L_CTR, 0xff00, 0x400, "r1", sleep=(OPT["sl"] >> 2) & 1)
if OPT["gate"]: lds_wait(L_GST, 0xff, 4, "gt")
if OPT["gate2"] == 1 and not OPT["split"]:
    if not OPT["allg"]: E("s_cmp_lt_u32 s3, 4\ns_cbranch_scc1 L_wd_g2")
    lds_wait(L_DONE2, 0xff, 5, "g2")
if OPT["gate2"] == 3:
    E("s_cmp_lt_u32 s3, 4\ns_cbranch_scc1 L_wd_g2")
    lds_wait(L_GST, 0xff, 4, "g2")
if OPT["gate2"] in (2, 4):
    E(f"""
    s_cmp_lt_u32 s3, 4
    s_cbranch_scc1 L_g2d
    s_mov_b32 s31, {POLL_MAX}
L_g2:
    ds_read_b128 v[60:63], v2 offset:{L_CTR}
    {f"ds_read_b32 v61, v2 offset:{L_GST}" if OPT["gate2"] == 4 else ""}
    s_sub_u32 s31, s31, 1
    s_cbranch_scc1 L_g2d
    s_waitcnt lgkmcnt(0)
    v_readfirstlane_b32 s30, v62
    v_readfirstlane_b32 s28, v60
    v_readfirstlane_b32 s29, v61
    s_cmp_eq_u32 s30, 5
    s_cbranch_scc1 L_g2d
    {"s_cmp_lg_u32 s29, 4" if OPT["gate2"] == 4 else ""}
    {"s_cbranch_scc1 L_g2" if OPT["gate2"] == 4 else ""}
    s_and_b32 s28, s28, 0xc0000
    s_cbranch_scc0 L_g2
L_g2d:
    """)
E(f"""
    s_or_b32 s68, s68, s69
    s_lshr_b32 s69, s68, 16
    s_or_b32 s68, s68, s69
""")
def mask2(p): return f"v_add_co_u32_dpp v2, vcc, v{ENT}, v{J3N2} row_newbcast:{p} row_mask:0xf bank_mask:0xf"
def loads(ps, lab):
    E(f"s_and_b32 s30, s68, {sum(1 << p for p in ps)}\ns_cbranch_scc0 L_nx{lab}")
    for p in ps:
        r = RB + 4*p
        E(f"""
        s_bitcmp1_b32 s68, {p}
        s_cbranch_scc0 L_nx{lab}{p}
        {mask2(p)}
        s_mov_b64 exec, vcc
        global_load_dwordx4 v[{r}:{r+3}], v{RAD+p}, s[20:21] offset:192 sc1
        s_mov_b64 exec, -1
L_nx{lab}{p}:
        """)
    E(f"L_nx{lab}:")
    for p in ps:
        r = RA + 4*p
        E(f"""
        s_mov_b64 exec, s[{48+2*p}:{49+2*p}]
        global_load_dwordx4 v[{r}:{r+3}], v{RAD+p}, s[20:21]{SC1 if (OPT["rsc1"] or lab != "m") else ""}
        """)
    E("s_mov_b64 exec, -1")
SP = OPT["split"]
GROUPS = {0: ((0,1,2,3),(4,5),(6,7)), 4: ((0,1,2,3),(4,5),(6,7)), 5: ((0,1,2),(3,4),(5,6,7)), 6: ((0,1,2,3),(4,5),(6,7)), 3: ((0,1,2),(3,4,5),(6,7)), 2: ((0,1),(2,3,4,5),(6,7)), 1: ((0,),(1,2,3,4),(5,6,7))}[SP]
if OPT['grp'] == 1: GROUPS = ((0,1),(2,3,4),(5,6,7))
if OPT['grp'] == 2: GROUPS = ((0,1),(2,3),(4,5),(6,7))
if OPT['grp'] == 3: GROUPS = (tuple(range(SP)), tuple(range(SP, NP)))
if OPT['grp'] == 4: GROUPS = ((0,1,2),(3,4,5,6),(7,))
loads(range(SP or NP), "m")
if OPT["eag"]:
    E(f"""
    v_mov_b32 v2, 0
    ds_read_b32 v3, v2 offset:{L_DONE2}
    s_waitcnt lgkmcnt(0)
    v_readfirstlane_b32 s73, v3
    s_cmp_lg_u32 s73, 5
    s_cbranch_scc1 L_neag
    """)
    loads(range(SP, NP), "e")
    E("L_neag:")
def issued():
    if OPT["p2gate"]:
        E(f"""
        v_mov_b32 v2, 0
        v_mov_b32 v3, 0x10000
        s_mov_b64 exec, 1
        ds_add_u32 v2, v3 offset:{L_CTR}
        s_mov_b64 exec, -1
        """)
if OPT["mcl"]:
    if OPT["mcl"] == 1: E(f"s_cmp_lt_u32 s3, 8\ns_cbranch_scc1 L_nomc2")
    main_consts(28); E("L_nomc2:")
if not OPT["sig"]: issued()
STAMP(7)
def rank(r, m):
    E(f"""
    s_mov_b64 exec, {m}
    v_mul_u32_u24_sdwa v{r}, v{FOUR}, v{r+1} dst_sel:DWORD dst_unused:UNUSED_PAD src0_sel:DWORD src1_sel:BYTE_3
    v_and_b32 v{r+1}, {OPT['srcmask']}, v{r+1}
    ds_add_rtn_u32 v{r}, v{r}, v{FOUR} offset:{L_CNT}
    """)
def put(r, m):
    E(f"""
    s_mov_b64 exec, {m}
    v_lshlrev_b32 v2, 1, v{r}
    ds_write_b32 v{r}, v{r+1}
    ds_write_b64 v2, v[{r+2}:{r+3}] offset:{L_EA - 2*L_SRC}
    """)
retries = []
pending = []
for gi, grp in enumerate(GROUPS):
    bits = sum(1 << p for p in grp); m32 = bits | (bits << 16)
    if SP and grp[0] == SP:
        if OPT["eag"]: E("s_cmp_eq_u32 s73, 5\ns_cbranch_scc1 L_eagd")
        lds_wait(L_DONE2, 0xff, 5, "g2", sleep=(OPT["sl"] >> 3) & 1)
        loads(range(SP, NP), "n")
        E("L_eagd:")
        if OPT["sig"] == 9:
            if OPT["sigw"]: E(f"s_waitcnt vmcnt({NP - SP - OPT['sigw']})")
            issued()
    last = NP if (not SP or grp[0] >= SP) else SP
    first_ = 0 if (not SP or grp[0] < SP) else SP
    E(f"""
L_ck{gi}:
    s_mov_b32 vcc_lo, {m32}
    s_mov_b32 vcc_hi, {m32}
    v_cndmask_b32 v{ACC}, 0, v{ENT+1}, vcc
    s_and_b32 s30, s68, {bits}
    s_cbranch_scc1 L_xa{gi}
L_xb{gi}:
    """)
    def xacc():
        E(f"L_xa{gi}:\ns_waitcnt vmcnt({last - first_})")
        for p in grp:
            r = RB + 4*p
            E(f"""
            {mask2(p)}
            s_mov_b64 exec, vcc
            v_add3_u32 v{ACC}, v{ACC}, v{r+1}, v{r+2}
            v_add_u32 v{ACC}, v{ACC}, v{r+3}
            s_mov_b64 exec, -1
            """)
        E(f"s_branch L_xb{gi}")
    emit_to(outofline, xacc)
    for p in grp:
        r = RA + 4*p
        E(f"""
        s_waitcnt vmcnt({last-1-p})
        s_mov_b64 exec, s[{48+2*p}:{49+2*p}]
        v_and_b32 v{r}, v{r}, v{L0M}
        v_add3_u32 v{ACC}, v{ACC}, v{r+2}, v{r+3}
        v_add3_u32 v{ACC}, v{ACC}, v{r}, v{r+1}
        """)
    E("s_mov_b64 exec, -1\ns_nop 0")
    for k in (1, 2, 4, 8):
        E(f"v_add_u32_dpp v{ACC}, v{ACC}, v{ACC} row_ror:{k} row_mask:0xf bank_mask:0xf")
        if k < 8: E("s_nop 1")
    E(f"v_cmp_ne_u32 vcc, 0, v{ACC}\ns_cbranch_vccnz L_rt{gi}")
    if OPT["rst"]: STAMP(1+gi)
    if OPT["sig"] == gi + 1: issued()
    def retry():
        E(f"L_rt{gi}:\ns_sub_u32 s34, s34, 1\ns_cbranch_scc1 {'L_toobig' if (gi < OPT['sig'] if OPT['sig'] != 9 else grp[0] < SP) else 'L_giveup'}")
        loads(grp, f"r{gi}_")
        E(f"s_waitcnt vmcnt(0)\ns_branch L_ck{gi}")
    emit_to(outofline, retry)
    for p in grp: rank(RA + 4*p, f"s[{48+2*p}:{49+2*p}]")
    E(f"s_and_b32 s30, s68, {bits}\ns_cbranch_scc1 L_ya{gi}\nL_yb{gi}:")
    def xput():
        E(f"L_ya{gi}:")
        for p in grp:
            r = RB + 4*p
            E(f"""
            s_bitcmp1_b32 s68, {p}
            s_cbranch_scc0 L_yn{p}
            s_mov_b64 exec, -1
            {mask2(p)}
            """)
            rank(r, "vcc")
            E("s_waitcnt lgkmcnt(0)")
            put(r, "vcc")
            E(f"L_yn{p}:")
        E(f"s_branch L_yb{gi}")
    emit_to(outofline, xput)
    for k, p in enumerate(grp):
        E(f"s_waitcnt lgkmcnt({len(grp) - 1 - k + 2*k})")
        put(RA + 4*p, f"s[{48+2*p}:{49+2*p}]")
    E("s_mov_b64 exec, -1")
E(f"""
    {f"s_sub_u32 s{ST0+4}, {POLL_MAX+1}, s34" if OPT["cnt"] else ""}
    s_branch L_b4
L_toobig:
    s_mov_b64 exec, -1
""")
issued()
E(f"""
L_giveup:
    v_mov_b32 v2, 0
    ds_write_b32 v2, v{FOUR} offset:{L_FLAG}
L_recskip:
    s_waitcnt vmcnt(0)
""")
if OPT["mcl"]: main_consts()
E(f"""
; ---------------- all waves: main loop
L_b4:
    s_setprio {OPT["p0"] if OPT["prio"] == 2 else 0}
    s_mul_i32 s30, s{S_HALF}, {G_HALF}
    {f"s_add_u32 s30, s30, {WS0}" if WS0 else ""}
    s_add_u32 s36, s20, s30
    s_addc_u32 s37, s21, 0
    s_mov_b32 s38, {OPT['nrec'] or G_HALF}
    s_mov_b32 s39, 0x20000
    s_mov_b32 s44, 128
    s_mov_b32 s45, 128
    ds_read_b128 v[{WS4}:{WS4+3}], v{LP}
    ds_read_b64 v[{AG}:{AG+1}], v{LP} offset:64
    ds_read_b64 v[{WN2}:{WN2+1}], v{LP} offset:72
    ds_read_b32 v{WE}, v{LP+1}
    s_waitcnt lgkmcnt(0)
    v_lshl_add_u64 v[{AG}:{AG+1}], v[{AG}:{AG+1}], 0, v[{LN8}:{LN8+1}]
    v_lshl_add_u32 v{WE}, v{WE}, 1, v{EAC}
""")
assert OPT["gpe"] <= 64 and not OPT["ptime"]
if OPT["warm"]:
    E(f"""
    s_barrier
    s_lshr_b32 s30, s2, 3
    s_mul_i32 s30, s30, 98304
    v_lshl_add_u32 v2, v0, 7, s30
    buffer_load_dword v3, v2, s[36:39], 0 offen sc1
    s_waitcnt vmcnt(0)
    s_sleep 40
    """)
STAMP(8)
E(f"""
    s_barrier                               ; B4
    s_cmp_lg_u32 s{S_SAFE}, 0
    s_cbranch_scc1 L_safe
    ds_read_b128 v[{T}:{T+3}], v{WS4}
    ds_read_b128 v[{T+4}:{T+7}], v{WS4+1}
    ds_read_b64 v[{XA}:{XA+1}], v{AG} offset:512
    ds_read_b64 v[{EA}:{EA+1}], v{WE}
    s_lshr_b32 s30, s3, 2
    s_cmp_lg_u32 s30, 1
    s_cbranch_scc1 L_nopoll
    s_mov_b64 exec, s[66:67]
    s_cbranch_execz L_p2e
    s_mov_b32 s31, {POLL_MAX}
L_p2:
    global_load_dwordx2 v[66:67], v64, s[20:21] sc1
    s_sub_u32 s31, s31, 1
    s_cbranch_scc1 L_p2d
    s_waitcnt vmcnt(0)
    v_cmp_ne_u64 vcc, s[{S_TAG}:{S_TAG+1}], v[66:67]
    s_and_b64 exec, exec, vcc
    s_cbranch_scc0 L_p2d
    {f"s_sleep {OPT['p2sleep']}" if OPT['p2sleep'] else ""}
    s_branch L_p2
L_p2d:
""")
gready("b")
E(f"""
L_p2e:
    s_mov_b64 exec, -1
L_nopoll:
    s_cmp_lt_u32 s3, 8
    s_cbranch_scc1 L_nobuild
; waves 8..11: place the edges past the 24th of every node: blocks of 8 (two tiles), then remainders of up to 4
    v_lshlrev_b32 v2, 3, v1
    v_mov_b32 v3, 0
    ds_read_b64 v[72:73], v2 offset:{L_CNT}
    ds_read_b32 v79, v3 offset:{L_FLAG}
    v_mul_u32_u24 v74, {2*SSTR}, v1
    v_add_u32 v74, {L_SRC + 96}, v74
    v_add_u32 v75, {SSTR}, v74
    v_mul_u32_u24 v82, {2*NSTR}, v1
    s_and_b32 s32, s3, 1
    s_mul_i32 s30, s32, {NSTR}
    s_add_u32 s30, s30, {L_NODE}
    v_add_u32 v82, s30, v82
    v_mov_b32 v83, v82
    s_mul_i32 s30, s32, {SSTR}
    v_add_u32 v80, s30, v74
    v_add_u32 v81, 16, v80
    s_waitcnt lgkmcnt(0)
    v_sub_u32 v72, v72, v74 clamp
    v_sub_u32 v73, v73, v75 clamp
    v_max_u32 v76, v72, v73
    v_cmp_lt_u32 vcc, 160, v76
    v_cmp_ne_u32 s[48:49], 0, v79
    v_add_u32 v74, 12, v72
    v_add_u32 v75, 12, v73
    s_or_b64 vcc, vcc, s[48:49]
    s_cbranch_scc1 L_bad
    v_add_u32 v72, 28, v72
    v_add_u32 v73, 28, v73
    v_lshrrev_b32 v74, 5, v74
    v_lshrrev_b32 v75, 5, v75
    v_lshrrev_b32 v72, 5, v72
    v_lshrrev_b32 v73, 5, v73
    v_sub_u32 v72, v72, v74
    v_sub_u32 v73, v73, v75
    v_lshl_or_b32 v72, v72, 16, v74
    v_lshl_or_b32 v73, v73, 16, v75
    v_add_u32 v76, v72, v73
    v_add_u32 v77, v72, v73
""")
scan(77)
E(f"""
    s_cmp_eq_u32 s32, 0
    s_cselect_b64 vcc, -1, 0
    v_readlane_b32 s30, v77, 63
    v_cndmask_b32 v76, v73, v76, vcc
    v_cndmask_b32 v72, v73, v72, vcc
    v_sub_u32 v77, v77, v76
    s_and_b32 s50, s30, 0xffff
    s_add_u32 s31, s50, 3
    s_lshr_b32 s31, s31, 2
    s_sub_u32 s51, 0, s50
    s_and_b32 s51, s51, 3                   ; spare quarters of the last such slot take remainders
    s_lshr_b32 s30, s30, 16
    s_add_u32 s30, s30, 3
    s_sub_u32 s30, s30, s51
    s_lshr_b32 s30, s30, 2
    s_lshl_b32 s33, s31, 1
    s_add_u32 s33, s33, s30
    s_cmp_gt_u32 s33, 104
    s_cbranch_scc1 L_bad
    s_lshl_b32 s30, s30, 8
    s_or_b32 s29, s30, s31
    v_and_b32 v74, 0xffff, v72
    v_and_b32 v76, 0xffff, v77
    s_mov_b32 s34, {L_LISTC}
    s_mov_b32 s35, {L_LIST + 136}
""")
def slotaddr():
    E(f"""
    v_subrev_u32 v78, 32, v76
    v_bfe_u32 v79, v76, 2, 2
    v_lshl_add_u32 v79, v79, 10, s34
    v_lshrrev_b32 v84, 5, v78
    v_lshl_add_u32 v79, v84, 7, v79
    v_bfe_u32 v84, v78, 4, 1
    v_lshl_add_u32 v79, v84, 3, v79
    v_lshrrev_b32 v84, 2, v76
    v_cmp_gt_u32 vcc, 32, v76
    v_lshl_add_u32 v84, v84, 9, s35
    v_and_b32 v78, 3, v76
    v_cndmask_b32 v79, v79, v84, vcc
    v_lshl_add_u32 v79, v78, 4, v79
    """)
E("""
    s_cmp_lt_u32 s3, 10
    s_cbranch_scc1 L_brem
L_bf:
    v_cmp_ne_u32 vcc, 0, v74
    s_and_b64 exec, exec, vcc
    s_cbranch_execz L_bfd
""")
slotaddr()
E(f"""
    ds_write_b64 v79, v[80:81]
    ds_write_b64 v79, v[82:83] offset:64
    v_add_u32 v80, 32, v80
    v_add_u32 v81, 32, v81
    v_add_u32 v76, 1, v76
    v_subrev_u32 v74, 1, v74
    s_branch L_bf
L_brem:
    v_lshl_add_u32 v80, v74, 5, v80
    v_add_u32 v81, 16, v80
    v_lshrrev_b32 v77, 16, v77
    s_sub_u32 s52, 0, s31
    s_and_b32 s52, s52, 3
    s_add_u32 s53, s31, s52
    s_lshl_b32 s52, s52, 3
    v_subrev_u32 v73, s51, v77              ; j' = j - spare
    v_subrev_u32 v74, s52, v73
    v_lshrrev_b32 v76, 3, v73
    v_add_u32 v76, s31, v76
    v_and_b32 v75, 4, v73
    v_lshrrev_b32 v78, 5, v74
    v_lshl_add_u32 v78, v78, 2, s53
    v_bfe_u32 v79, v74, 2, 2
    v_add_u32 v78, v78, v79
    v_cmp_gt_u32 vcc, s52, v73
    v_lshrrev_b32 v74, 2, v74
    v_and_b32 v74, 4, v74
    v_cndmask_b32 v76, v78, v76, vcc        ; slot
    v_cndmask_b32 v75, v74, v75, vcc
    v_and_b32 v78, 3, v73
    v_cmp_gt_u32 s[54:55], s51, v77
    v_lshl_add_u32 v76, v76, 2, v78
    v_add_u32 v78, s50, v77
    v_cndmask_b32 v76, v76, v78, s[54:55]
""")
slotaddr()
E(f"""
    v_cmp_lt_u32 vcc, 0xffff, v72
    v_add_u32 v75, v79, v75
    s_andn2_b64 exec, vcc, s[54:55]
    ds_write2_b32 v75, v80, v82 offset0:0 offset1:16
    s_and_b64 exec, vcc, s[54:55]
    ds_write_b64 v79, v[80:81]
    ds_write_b64 v79, v[82:83] offset:64
L_bfd:
    s_mov_b64 exec, -1
    s_mov_b32 s56, s29
    s_cmp_eq_u32 s3, 8
    s_cselect_b32 s29, s29, 0
    s_add_u32 s29, s29, 0x10000
    s_branch L_built
L_bad:
    s_mov_b32 s56, 0
    s_mov_b32 s29, 0x1010000
L_built:
    v_mov_b32 v2, s29
    s_mov_b64 exec, 1
    ds_add_u32 v3, v2 offset:{L_NST}
    s_add_u32 s30, s{S_P}, s3
    s_cmp_lg_u32 s30, 8
    s_cbranch_scc1 L_notw
    v_mov_b32 v2, s{S_TAG}
    v_mov_b32 v3, {WS_TAG}
    global_store_dword v3, v2, s[20:21] sc1
L_notw:
    s_mov_b64 exec, -1
    v_mov_b32 v2, 0
    s_mov_b32 s30, s56
    s_and_b32 s31, s30, 0xff
    s_bfe_u32 s30, s30, 0x80008
    s_and_b32 s28, s3, 3
    s_sub_u32 s32, 0, s31
    s_and_b32 s32, s32, 3
    s_add_u32 s33, s28, s32
    s_sub_i32 s33, s33, 4
    s_lshl_b32 s29, s33, 1
    s_sub_i32 s29, s30, s29
    s_max_i32 s29, s29, 0
    s_min_i32 s29, s29, 2
    s_cmp_lt_i32 s33, 0
    s_cselect_b32 s29, 0, s29
    s_lshl_b32 s32, s32, 1
    s_sub_i32 s30, s30, s32
    s_sub_i32 s30, s30, s28
    s_add_i32 s30, s30, 3
    s_max_i32 s30, s30, 0
    s_lshr_b32 s30, s30, 2
    s_add_u32 s30, s30, s29
    s_sub_u32 s32, s31, s28
    s_add_u32 s32, s32, 3
    s_lshr_b32 s32, s32, 2
    s_lshl_b32 s32, s32, 1
    s_add_u32 s30, s30, s32
    s_sub_i32 s30, s30, 4
    s_max_i32 s30, s30, 0
    s_add_u32 s{S_R}, s30, 6
    s_sub_i32 s31, s31, s3
    s_add_i32 s31, s31, 3
    s_max_i32 s31, s31, 0
    s_lshr_b32 s31, s31, 2
    s_lshl_b32 s31, s31, 1
    s_lshl_b32 s31, -1, s31
    s_or_b32 s31, s31, 0x55555555
    s_lshl_b32 s32, 2, s30
    s_sub_u32 s32, s32, 1
    s_and_b32 s31, s31, s32
    s_lshl_b32 s32, 64, s30
    s_or_b32 s{S_M}, s31, s32
    v_and_b32 v72, 15, v1
    v_lshrrev_b32 v73, 4, v1
    s_lshl_b32 s31, s3, 2
    s_add_u32 s31, s31, 32
    v_add_u32 v73, s31, v73                 ; node
    v_mul_u32_u24 v74, {SSTR}, v73
    v_lshl_add_u32 v74, v72, 4, v74
    v_add_u32 v74, {L_SRC}, v74
    v_mul_u32_u24 v75, {NSTR}, v73
    v_add_u32 v75, {L_NODE}, v75
    v_cmp_gt_u32 vcc, 6, v72
    v_add_u32 v72, s30, v72
    v_lshrrev_b32 v73, 2, v72
    v_lshl_add_u32 v73, v73, 7, v{LP}
    v_and_b32 v72, 3, v72
    v_lshl_add_u32 v73, v72, 2, v73
    s_mov_b64 exec, vcc
    ds_write2_b32 v73, v74, v75 offset0:0 offset1:16
    s_cmp_lg_u32 s30, 0
    s_cbranch_scc1 L_cw2
    v_mov_b32 v3, 1
    s_mov_b64 exec, 1
    ds_add_u32 v2, v3 offset:{L_DYN}
L_cw2:
    s_mov_b64 exec, -1
    s_mov_b32 s31, {LDS_MAX}
L_wnc:
    ds_read_b32 v3, v2 offset:{L_NST}
    s_sub_u32 s31, s31, 1
    s_cbranch_scc1 L_gosafe
    s_waitcnt lgkmcnt(0)
    v_readfirstlane_b32 s30, v3
    s_bitcmp1_b32 s30, 18
    s_cbranch_scc0 L_wnc
    s_cmp_gt_u32 s30, {0 if OPT["force_safe"] else 0xffffff}
    s_cbranch_scc1 L_gosafe
    ds_read_b128 v[{WS4}:{WS4+3}], v{LP}
    ds_read_b64 v[{AG}:{AG+1}], v{LP} offset:64
    ds_read_b64 v[{WN2}:{WN2+1}], v{LP} offset:72
    ds_read_b32 v{WE}, v{LP+1}
    s_waitcnt lgkmcnt(0)
    v_lshl_add_u64 v[{AG}:{AG+1}], v[{AG}:{AG+1}], 0, v[{LN8}:{LN8+1}]
    v_lshl_add_u32 v{WE}, v{WE}, 1, v{EAC}
    ds_read_b128 v[{T}:{T+3}], v{WS4}
    ds_read_b128 v[{T+4}:{T+7}], v{WS4+1}
    ds_read_b64 v[{XA}:{XA+1}], v{AG} offset:512
    ds_read_b64 v[{EA}:{EA+1}], v{WE}
L_nobuild:
    s_waitcnt lgkmcnt(0)
""")
assert DIST == 2 and not EARLY
E(m_a(D0))
for o in range(T, T+8, 2): E(oadd(o))
E(m_e(D0, 0))
E(f"ds_read_b64 v[{XA}:{XA+1}], v{AG+1} offset:512")
lds_wait(L_GOK, 0xff, 4, "gok", sleep=OPT["sl"] & 1)
if OPT["stamps"] == 2: E(f"s_memrealtime s[{ST0+16}:{ST0+17}]")
if not OPT["nogather"]:
    for q in range(8): E(gload(G + 4*q, T+q))
STAMP(9)
E(f"""
    s_mov_b32 s31, {LDS_MAX}
""")
E(f"""
    s_cmp_ge_u32 s3, 8
    s_cbranch_scc1 L_nd
L_wna:
    ds_read_b32 v3, v2 offset:{L_NST}
    s_sub_u32 s31, s31, 1
    s_cbranch_scc1 L_gosafe
    s_waitcnt lgkmcnt(0)
    v_readfirstlane_b32 s30, v3
    s_bitcmp1_b32 s30, 18
    s_cbranch_scc0 L_wna
    s_cmp_gt_u32 s30, {0 if OPT["force_safe"] else 0xffffff}
    s_cbranch_scc1 L_gosafe
    s_and_b32 s31, s30, 0xff
    s_mov_b32 s{S_R}, 14
    s_cmp_ge_u32 s3, s31
    s_cselect_b32 s30, 0x80, 0
    s_or_b32 s{S_M}, s30, 0x4141
L_nd:
    s_waitcnt vmcnt(6)
    {m_s(D0, A1, G)}
    s_waitcnt vmcnt(4)
    {m_s(D0, A2, G+8)}
    v_mov_b32 v3, 1
    s_nop 7
    s_mov_b32 s{S_IT}, {(1 << OPT["pa"]) | (1 << OPT["pb"]) | (1 << OPT["pc"]) if OPT["prio"] == 2 else 0}
""")
if OPT["prio"]: E(f"s_setprio {OPT['p1']}")
STAMP(10)
if OPT["ptime"]: E("v_mov_b32 v70, 0\nv_mov_b32 v71, 0")
if OPT["stamps"] == 1: E(f"s_memtime s[{ST0+24}:{ST0+25}]\ns_waitcnt lgkmcnt(0)")
for u in range(4): phase(u, True)
assert OPT["pc"] >= 2
def aggread(r, k, node): return f"ds_read_b64 v[{r+2*k}:{r+2*k+1}], v68 offset:{node*NSTR + 128*k}"
def tail(u):
    Dc, Dn = ((D0, D1), (D1, D0))[u & 1]
    gc = G + 16*u; gn = G + 16*((u+1) & 3)
    E(f"L_T{u}:")
    E(m_a(Dn))
    for x in exps(Dc, 0): E(x)
    E(m_e(Dn, (u+1) & 3))
    for x in exps(Dc, 1): E(x)
    E(f"ds_read_b32 v3, v2 offset:{L_DYN}")
    weave(pk_steps(gc, 0, False) + pk_steps(gc, 1, False), {2*k+1: [aggread(F, k, 32)] for k in range(4)})
    E("s_waitcnt vmcnt(2)"); E(m_s(Dn, A1, gn))
    for x in exps(Dc, 2): E(x)
    E("s_waitcnt vmcnt(0)"); E(m_s(Dn, A2, gn+8))
    for x in exps(Dc, 3): E(x)
    for x in pk_steps(gc, 2, False) + pk_steps(gc, 3, False): E(x)
    for q in (0, 2):
        for x in exps(Dn, q) + exps(Dn, q+1): E(x)
        for x in pk_steps(gn, q, False) + pk_steps(gn, q+1, False): E(x)
for u in (1, 2, 3):
    def t_(): tail(u); E("s_branch L_mdone")
    emit_to(outofline, t_)
tail(0)
E(f"""
L_mdone:
""")
STAMP(11)
if OPT["ptime"]:
    E(f"""
    s_lshl_b32 s30, s2, 4
    s_add_u32 s30, s30, s3
    s_lshl_b32 s30, s30, 8
    s_add_u32 s30, s30, 0xc00000
    v_lshl_add_u32 v2, v1, 2, s30
    s_mov_b32 exec_hi, 0
    global_store_dword v2, v70, s[20:21]
    global_store_dword v2, v71, s[20:21] offset:128
    s_mov_b64 exec, -1
    """)
if OPT["stamps"] == 1:
    E(f"s_memtime s[28:29]\ns_waitcnt lgkmcnt(0)\ns_sub_u32 s{ST0+24}, s28, s{ST0+24}")
E(f"""
    s_mov_b32 s32, {f32(2.0**32)}
    s_mov_b32 s34, {f32(-LOG2E * 2.0**-32)}
    s_mov_b32 s31, {LDS_MAX}
    v_rcp_f32 v{P}, v{P}
    v_rcp_f32 v{P+1}, v{P+1}
    v_rcp_f32 v{P+2}, v{P+2}
    v_rcp_f32 v{P+3}, v{P+3}
; the sums were read behind the count of waves that are on their last chain; with all twelve there they are complete
L_dw:
    s_waitcnt lgkmcnt(0)
    v_readfirstlane_b32 s30, v3
    s_add_u32 s30, s30, s{S_SAFE}
    s_cmp_lt_u32 s30, 12
    s_cbranch_scc1 L_dr
L_dx:
    s_cmp_ge_u32 s3, 8
    s_cbranch_scc1 L_d1
""")
for k in range(4): E(aggread(12, k, 0))
E("L_d1:")
def reread():
    E(f"L_dr:\ns_sub_u32 s31, s31, 1\ns_cbranch_scc1 L_dx\nds_read_b32 v3, v2 offset:{L_DYN}")
    for k in range(4): E(aggread(F, k, 32))
    E("s_branch L_dw")
emit_to(outofline, reread)
OSC = {0: "", 1: " sc1", 2: " nt"}[OPT["osc"]]
def silu(y, first):
    for p in range(2): E(f"v_pk_mul_f32 v[{36+2*p}:{37+2*p}], v[{y+2*p}:{y+2*p+1}], s[34:35] op_sel_hi:[1,0]")
    for k in range(4): E(f"v_exp_f32 v{36+k}, v{36+k}")
    E(f"v_pk_add_f32 v[10:11], v[{y}:{y+1}], v[{y+2}:{y+3}]" if first else f"v_pk_add_f32 v[10:11], v[10:11], v[{y}:{y+1}]")
    for p in range(2): E(f"v_pk_fma_f32 v[{36+2*p}:{37+2*p}], v[{36+2*p}:{37+2*p}], s[32:33], s[32:33] op_sel_hi:[1,0,0]")
    for k in range(4): E(f"v_rcp_f32 v{36+k}, v{36+k}")
    E("v_mov_b32 v9, 0x207" if first else f"v_pk_add_f32 v[10:11], v[10:11], v[{y+2}:{y+3}]")
    for p in range(2): E(f"v_pk_mul_f32 v[{36+2*p}:{37+2*p}], v[{y+2*p}:{y+2*p+1}], v[{36+2*p}:{37+2*p}]")
    o = 44 if first else 46
    E(f"v_cvt_pk_bf16_f32 v{o}, v36, v37\nv_cvt_pk_bf16_f32 v{o+1}, v38, v39")
    E(f"global_store_dwordx2 v69, v[{o}:{o+1}], s[18:19]{OSC}")
for k in range(4): E(f"v_cvt_f32_f64 v{28+k}, v[{F+2*k}:{F+2*k+1}]")
for p in range(2): E(f"v_pk_fma_f32 v[{28+2*p}:{29+2*p}], v[{N+2*p}:{N+2*p+1}], v[{P+2*p}:{P+2*p+1}], v[{28+2*p}:{29+2*p}]")
silu(28, True)
E(f"""
    s_cmp_ge_u32 s3, 8
    s_cbranch_scc1 L_e4
    v_subrev_u32 v69, {32*256}, v69
    s_waitcnt lgkmcnt(0)
""")
for k in range(4): E(f"v_cvt_f32_f64 v{28+k}, v[{12+2*k}:{13+2*k}]")
silu(28, False)
E(f"""
L_e4:
    v_add_f32 v10, v10, v11
    v_cmp_class_f32 vcc, v10, v9
    v_mov_b32 v2, 0
    s_cmp_lg_u32 s{S_SAFE}, 0
    s_cbranch_scc1 L_fin
    {"s_branch" if OPT["nosafe"] else "s_cbranch_vccz"} L_e5
    ds_write_b32 v2, v9 offset:{L_FLAG}
    s_waitcnt lgkmcnt(0)
L_e5:
    s_barrier                               ; B6
    ds_read_b32 v2, v2 offset:{L_FLAG}
    s_waitcnt lgkmcnt(0)
    v_readfirstlane_b32 s30, v2
    s_cmp_lg_u32 s30, 0
    s_cbranch_scc1 L_gosafe
L_fin:
""")
if OPT["stamps"]:
    E("s_waitcnt vmcnt(0)"); STAMP(13); STAMP_OUT()
if OPT["probe"] >= 0:
    T_ = ST0 + 2*OPT["probe"]
    E(f"""
    s_cmp_lg_u32 s3, {OPT["pw"]}
    s_cbranch_scc1 L_end
    s_cmp_lg_u32 s2, {OPT["pg"] if OPT["pg"] >= 0 else "s2"}
    s_cbranch_scc1 L_end
    s_sub_u32 s30, s{T_}, s{ST0}
    s_lshl_b32 s30, s30, 2
    s_add_u32 s30, s30, 3000
    s_min_u32 s30, s30, 20000
L_spin:
    s_memrealtime s[28:29]
    s_waitcnt lgkmcnt(0)
    s_sub_u32 s28, s28, s{ST0}
    s_cmp_lt_u32 s28, s30
    s_cbranch_scc1 L_spin
    """)
E(f"""
L_end:
    s_endpgm
; ---------------- fall back: redo the node terms, then evaluate edge by edge
L_gosafe:
    s_mov_b32 s{S_SAFE}, 16
    s_setprio 0
    s_waitcnt vmcnt(0) lgkmcnt(0)
    s_barrier
    s_branch L_restart
""")
out += outofline
for r in retries: E(r)
E(f"""
L_safe:
    v_and_b32 v2, 15, v1
    v_lshlrev_b32 v3, 3, v2
    v_add_u32 v3, {L_C}, v3
""")
for k in range(4):
    for s in range(4):
        E(f"ds_read_u16 v{80+4*k+s}, v3 offset:{128*k + 2*s}")
E("s_waitcnt lgkmcnt(0)")
for i in range(16):
    E(f"v_lshlrev_b32 v{80+i}, 16, v{80+i}\nv_mul_f32 v{80+i}, s40, v{80+i}")
E(f"""
    v_lshrrev_b32 v24, 4, v1
    v_mul_u32_u24 v24, 3, v24               ; 3*quarter
    s_movk_i32 s33, {NSTR}
    v_add_u32 v25, {L_NODE}, v{LN8}
    s_mov_b32 s34, s3
    s_mov_b32 s35, {POLL_MAX}
L_scell:
    s_lshl_b32 s30, s34, 10
    s_lshl_b32 s31, s{S_BUCK}, 3
    s_add_u32 s30, s30, s31
    s_add_u32 s30, s30, {WS_ROW}
    v_mov_b32 v26, s30
    global_load_dword v32, v26, s[20:21] sc1
    s_mul_i32 s30, s34, {SORTB//4}
    s_add_u32 s30, s30, {WS_REC//4}
    s_waitcnt vmcnt(0)
    v_bfe_u32 v28, v32, 12, 12              ; 3*count
    v_and_b32 v27, 0xfff, v32
    v_add_u32 v27, s30, v27
L_sver:
    v_mov_b32 v29, v1
    v_mov_b32 v31, 0
L_sv1:
    v_cmp_ge_u32 vcc, v28, v29
    s_and_saveexec_b64 s[48:49], vcc
    s_cbranch_execz L_sv2
    v_add_lshl_u32 v30, v27, v29, 2
    global_load_dword v32, v30, s[20:21] sc1
    s_waitcnt vmcnt(0)
    v_add_u32 v31, v31, v32
    s_mov_b64 exec, s[48:49]
    v_add_u32 v29, 64, v29
    s_branch L_sv1
L_sv2:
    s_mov_b64 exec, s[48:49]
""")
scan(31)
E(f"""
    s_nop 0
    v_readlane_b32 s30, v31, 63
    s_cmp_eq_u32 s30, s{S_TAG+1}
    s_cbranch_scc1 L_sok
    s_sub_u32 s35, s35, 1
    s_cbranch_scc0 L_sver
    s_branch L_sdone
L_sok:
    v_mov_b32 v29, v24
L_srec:
    v_cmp_gt_u32 vcc, v28, v29
    s_and_saveexec_b64 s[48:49], vcc
    s_cbranch_execz L_snext
    v_add_lshl_u32 v30, v27, v29, 2
    global_load_dwordx3 v[32:34], v30, s[20:21] offset:4 sc1
    s_waitcnt vmcnt(0)
    v_and_b32 v30, 0x3fff00, v32
    v_add_u32 v30, v30, v{LN16}
    buffer_load_dwordx4 v[36:39], v30, s[36:39], 0 offen sc1
    v_lshrrev_b32 v31, 24, v32
    v_mad_u32_u24 v31, v31, s33, v25
    ds_read_b64 v[40:41], v31 offset:512
    v_lshlrev_b32 v44, 16, v33
    v_and_b32 v45, 0xffff0000, v33
    v_lshlrev_b32 v46, 16, v34
    v_and_b32 v47, 0xffff0000, v34
    s_waitcnt vmcnt(0) lgkmcnt(0)
    v_lshlrev_b32 v48, 16, v40
    v_and_b32 v49, 0xffff0000, v40
    v_lshlrev_b32 v50, 16, v41
    v_and_b32 v51, 0xffff0000, v41
""")
for s in range(4):
    E(f"v_lshlrev_b32 v52, 16, v{36+s}\nv_add_f32 v{48+s}, v{48+s}, v52")
    for k in range(4):
        E(f"v_fmac_f32 v{48+s}, v{44+k}, v{80+4*k+s}")
for s in range(4): E(f"v_exp_f32 v{48+s}, v{48+s}")
E("s_nop 0")
for s in range(4): E(f"v_add_f32 v{48+s}, 1.0, v{48+s}")
for s in range(4): E(f"v_rcp_f32 v{48+s}, v{48+s}")
E("s_nop 0")
for s in range(4): E(f"v_mul_f32 v{48+s}, v{48+s}, v{36+s}")
for s in range(4): E(f"v_cvt_f64_f32 v[{54+2*s}:{55+2*s}], v{48+s}")
for s in range(4): E(f"ds_add_f64 v31, v[{54+2*s}:{55+2*s}] offset:{128*s}")
E(f"""
    s_mov_b64 exec, s[48:49]
    v_add_u32 v29, 12, v29
    s_branch L_srec
L_snext:
    s_mov_b64 exec, s[48:49]
    s_add_u32 s34, s34, {NW}
    s_cmp_lt_u32 s34, {NCHUNK}
    s_cbranch_scc1 L_scell
L_sdone:
    s_waitcnt lgkmcnt(0)
    s_barrier
    v_mov_b32 v3, 0
""")
for k in range(4): E(f"v_mov_b32 v{N+k}, 0\nv_mov_b32 v{P+k}, 1.0"); E(aggread(F, k, 32))
E(f"""
    s_branch L_mdone
L_codeend:
.section .rodata,"a"
.p2align 6
.amdhsa_kernel {NAME}
.amdhsa_next_free_vgpr 168
.amdhsa_next_free_sgpr 102
.amdhsa_accum_offset 168
.amdhsa_group_segment_fixed_size 0
.amdhsa_kernarg_size 80
.amdhsa_user_sgpr_count 2
.amdhsa_user_sgpr_kernarg_segment_ptr 1
.amdhsa_system_sgpr_workgroup_id_x 1
.end_amdhsa_kernel
""")
if OPT["al"]:
    i0 = out.index("L_L0:"); i1 = out.index("L_mdone:")
    mid = []; odd = False
    for l in out[i0:i1]:
        t = l.strip()
        if t.endswith(":") or t.startswith(";"): mid.append(l); continue
        four = t.startswith(("s_", "v_exp"))
        if not four and odd and OPT["al"] >= 3:
            mid.append("    s_nop 0"); odd = False
        if four: odd = not odd
        mid.append(l)
    pre = [".p2align 6, , 60"] if OPT["al"] != 2 else [".p2align 6, , 60", "    s_nop 0"]
    out = out[:i0] + pre + mid + out[i1:]
if OPT["drop"]:
    i0 = out.index("L_L0:"); i1 = out.index("L_mdone:")
    pats = {1: ("smfmac",), 2: ("mfma",), 3: ("32x32x8",), 4: ("smfmac",), 5: ("v_exp",)}[OPT["drop"]]
    repl = {4: "    s_nop 2", 5: "    s_nop 1"}.get(OPT["drop"])
    mid = []
    for l in out[i0:i1]:
        if any(x in l for x in pats):
            if repl: mid.append(repl)
        else: mid.append(l)
    if OPT["drop"] == 3: mid = [l.replace("v[88:103] cbsz", "0 cbsz").replace("v[72:87] cbsz", "0 cbsz") for l in mid]
    out = out[:i0] + mid + out[i1:]
if OPT["nochain"]:
    i0 = out.index("L_L0:"); i1 = out.index("L_mdone:")
    out = out[:i0] + [l for l in out[i0:i1] if not any(x in l for x in ("v_exp", "v_pk_", "mfma", "v_rcp", "v_cvt"))] + out[i1:]
open(sys.argv[1], "w").write("\n".join(out) + "\n")
```
